```python
import torch

def _softmax(x, axis=-1):
    return torch.softmax(x, dim=axis)
def _gelu(x):
    return torch.nn.functional.gelu(x, approximate="tanh")
def _silu(x):
    return torch.nn.functional.silu(x)
def _sigmoid(x):
    return torch.sigmoid(x)
def _layernorm(x, axis=-1, eps=1e-5):
    m = x.mean(dim=axis, keepdim=True)
    v = x.var(dim=axis, keepdim=True, unbiased=False)
    return (x - m) / torch.sqrt(v + eps)
def _scatter_add(tgt, idx, src, axis=0):
    return tgt.clone().index_add_(axis, idx, src)
def _segment_sum(src, seg, n):
    out = torch.zeros((n,) + src.shape[1:], dtype=src.dtype)
    return out.index_add_(0, seg, src)
def _pad(x, pw):
    flat = tuple(v for pair in reversed(pw) for v in pair)
    return torch.nn.functional.pad(x, flat)

kernel_name = 'interleave_layers__softmax_full_mha__sliding_local_dilated__prompt'

def setup_inputs():

    _w = (lambda a: (lambda t: t.to(torch.bfloat16) if t.is_floating_point() else t)(torch.as_tensor(a)))
    def _A_setup():
        B, S, D = 1, 2048, 640
        return {
            "x": _w((lambda *s: torch.randn(*s, dtype=torch.bfloat16) * 0.05)(B, S, D)),
            "wqkv": _w((lambda *s: torch.randn(*s, dtype=torch.bfloat16) * 0.05)(D, 3 * D)),
            "wo": _w((lambda *s: torch.randn(*s, dtype=torch.bfloat16) * 0.05)(D, D)),
        }
    _A_in = _A_setup()

    def _B_setup():
        B, S, D = 1, 2048, 640
        return {
            "x": _w((lambda *s: torch.randn(*s, dtype=torch.bfloat16) * 0.05)(B, S, D)),
            "wqkv": _w((lambda *s: torch.randn(*s, dtype=torch.bfloat16) * 0.05)(D, 3 * D)),
            "wo": _w((lambda *s: torch.randn(*s, dtype=torch.bfloat16) * 0.05)(D, D)),
        }
    _B_in = _B_setup()

    return {
        "A_x": _A_in["x"],
        "A_wqkv": _A_in["wqkv"],
        "A_wo": _A_in["wo"],
        "B_x": _B_in["x"],
        "B_wqkv": _B_in["wqkv"],
        "B_wo": _B_in["wo"],
    }

def reference(A_x, A_wqkv, A_wo, B_x, B_wqkv, B_wo):
    def _A_ref(x, wqkv, wo):
        B, S, D = x.shape
        H = 32; Dh = D // H
        qkv = (lambda x, *d: x.permute(*d))((x @ wqkv).reshape(B, S, 3, H, Dh), 2, 0, 3, 1, 4)
        q, k, v = qkv[0], qkv[1], qkv[2]
        scale = Dh ** -0.5
        scores = torch.einsum("bhqd,bhkd->bhqk", q, k) * scale
        p = _softmax(scores, axis=-1)
        o = torch.einsum("bhqk,bhkd->bhqd", p, v)
        return (lambda x, *d: x.permute(*d))(o, 0, 2, 1, 3).reshape(B, S, D) @ wo

    def _B_ref(x, wqkv, wo):
        B, S, D = x.shape
        H = 32; Dh = D // H
        W, dil = 8, 2
        qkv = (lambda x, *d: x.permute(*d))((x @ wqkv).reshape(B, S, 3, H, Dh), 2, 0, 3, 1, 4)
        q, k, v = qkv[0], qkv[1], qkv[2]
        scale = Dh ** -0.5
        pos = torch.arange(S)
        off = torch.arange(W) * dil
        idx = pos[:, None] - off[None, :]
        mask = idx >= 0
        idx_c = torch.where(mask, idx, 0).reshape(-1)
        kg = k[:, :, idx_c, :].reshape(B, H, S, W, Dh)
        vg = v[:, :, idx_c, :].reshape(B, H, S, W, Dh)
        logits = torch.einsum("bhsd,bhswd->bhsw", q, kg) * scale
        logits = torch.where(mask[None, None, :, :], logits, -1e9)
        attn = _softmax(logits, axis=-1)
        o = torch.einsum("bhsw,bhswd->bhsd", attn, vg)
        return (lambda x, *d: x.permute(*d))(o, 0, 2, 1, 3).reshape(B, S, D) @ wo

    x = A_x
    x = x + _A_ref(_layernorm(x, axis=-1), A_wqkv, A_wo)
    x = x + _B_ref(_layernorm(x, axis=-1), B_wqkv, B_wo)
    x = x + _A_ref(_layernorm(x, axis=-1), A_wqkv, A_wo)
    x = x + _B_ref(_layernorm(x, axis=-1), B_wqkv, B_wo)
    return x
```

```python
import re
REG = re.compile(r'\b([vas])(\d+)\b|\b([vas])\[(\d+):(\d+)\]')
TRANS = ('v_exp_', 'v_log_', 'v_rcp_', 'v_rsq_', 'v_sqrt_', 'v_sin_', 'v_cos_')
def regs(tok):
    out = set()
    for m in REG.finditer(tok):
        if m.group(1): out.add((m.group(1), int(m.group(2))))
        else:
            for i in range(int(m.group(4)), int(m.group(5))+1): out.add((m.group(3), i))
    if re.search(r'\bvcc\b', tok): out.add(('s','vcc'))
    if re.search(r'\bm0\b', tok): out.add(('s','m0'))
    if re.search(r'\bexec\b', tok): out.add(('s','exec'))
    return out
def passes(op):
    if '32x32x4_2b' in op: return 16
    if '32x32x16' in op or '32x32x8' in op: return 8
    if '16x16x32' in op or '16x16x16' in op: return 4
    raise ValueError(op)
class I:
    def __init__(s, line):
        s.line = line
        t = line.split(';')[0].strip()
        p = t.split(None, 1)
        s.op = p[0]
        ops = [x.strip() for x in re.split(r',(?![^\[]*\])', p[1])] if len(p) > 1 else []
        s.ops = ops
        op = s.op
        s.mfma = op.startswith('v_mfma')
        s.valu = op.startswith('v_') and not s.mfma
        s.salu = op.startswith('s_')
        s.ds = op.startswith('ds_')
        s.vmem = op.startswith('buffer_') or op.startswith('global_')
        s.trans = op.startswith(TRANS)
        s.dot = op.startswith('v_dot')
        s.perml = op.startswith('v_permlane')
        s.dpp = 'row_' in t or 'quad_perm' in t or '_dpp' in op
        s.w = set(); s.r = set()
        s.states = 1
        if op == 's_nop': s.states = int(ops[0], 0) + 1
        if s.mfma:
            s.w = regs(ops[0]); s.A = regs(ops[1]); s.B = regs(ops[2]); s.C = regs(ops[3].split()[0]); s.r = s.A | s.B | s.C
            s.p = passes(op)
        elif s.valu:
            if op.startswith('v_cmp'):
                s.w = regs(ops[0]);
                for o in ops[1:]: s.r |= regs(o)
                if op.startswith('v_cmpx'): s.w.add(('s','exec'))
            elif s.perml:
                s.w = regs(ops[0]) | regs(ops[1]); s.r = set(s.w)
            else:
                s.w = regs(ops[0])
                st = 1
                if op.startswith(('v_add_co','v_sub_co','v_addc_co','v_subb_co','v_div_scale')):
                    s.w |= regs(ops[1]); st = 2
                for o in ops[st:]: s.r |= regs(o)
                if op.startswith(('v_fmac','v_dot2c','v_mac','v_pk_fmac','v_writelane')): s.r |= regs(ops[0])
        elif s.ds:
            if op.startswith(('ds_read','ds_bpermute','ds_permute','ds_swizzle')):
                s.w = regs(ops[0])
                for o in ops[1:]: s.r |= regs(o)
            else:
                for o in ops: s.r |= regs(o)
        elif s.vmem:
            s.lds = bool(re.search(r'\blds\b', t))
            if 'load' in op and not s.lds:
                s.w = regs(ops[0])
                for o in ops[1:]: s.r |= regs(o)
            else:
                for o in ops: s.r |= regs(o)
                if s.lds: s.r.add(('s','m0'))
            s.widestore = 'store' in op and ('x3' in op or 'x4' in op)
            if s.widestore:
                s.data = regs(ops[0]) if op.startswith('buffer_') else regs(ops[1])
        elif s.salu:
            if op.startswith(('s_cmp','s_cbranch','s_branch','s_waitcnt','s_barrier','s_nop','s_endpgm','s_setprio','s_sleep')):
                for o in ops: s.r |= regs(o)
            else:
                if ops: s.w = regs(ops[0])
                for o in ops[1:]: s.r |= regs(o)
                if 'saveexec' in op: s.w.add(('s','exec'))
def need(a, b):
    n = 0
    vw = {x for x in a.w if x[0] in 'va'}
    sw = {x for x in a.w if x[0] == 's'}
    if a.valu and not a.dot:
        if b.mfma and (vw & b.r): n = max(n, 2)
    if a.valu:
        if b.perml and (vw & b.r): n = max(n, 2)
        if b.valu and b.dpp and (vw & b.r): n = max(n, 2)
        if b.op.startswith(('v_readlane','v_readfirstlane')) and (vw & b.r): n = max(n, 1)
        if a.trans and b.valu and not b.trans and (vw & b.r): n = max(n, 1)
        if a.trans and b.mfma and (vw & b.r): n = max(n, 2)
        if sw:
            if b.valu and (sw & b.r): n = max(n, 2)
            if b.op.startswith(('v_readlane','v_writelane')) and (sw & b.r): n = max(n, 4)
            if b.vmem and (sw & b.r): n = max(n, 5)
            if ('s','exec') in sw:
                if b.mfma: n = max(n, 4)
                if b.perml or b.op.startswith(('v_readlane','v_readfirstlane','v_writelane')): n = max(n, 4)
                if b.valu and b.dpp: n = max(n, 5)
    if a.dot:
        if b.dot and b.op == a.op:
            srcs = set()
            for o in b.ops[1:3]: srcs |= regs(o)
            if vw & srcs: n = max(n, 3)
        elif (vw & (b.r | b.w)): n = max(n, 3)
    if a.salu and ('s','m0') in a.w and b.vmem and getattr(b,'lds',False): n = max(n, 1)
    if a.vmem and getattr(a,'widestore',False):
        if b.valu and (a.data & b.w): n = max(n, 2)
        elif (a.data & b.w): n = max(n, 1)
    if a.mfma:
        p = a.p
        if b.mfma:
            if a.w & b.C:
                if a.w == b.C and a.p == b.p: n = max(n, 0 if p >= 4 else 2)
                else: n = max(n, p + 2)
            if a.w & (b.A | b.B): n = max(n, p + 4)
            if (a.w & b.w) and not (a.w & b.C): n = max(n, p + 2)
        elif b.valu or b.vmem or b.ds:
            if a.w & (b.r | b.w): n = max(n, p + 4)
            if b.valu and (a.C & b.w): n = max(n, p - 1)
    return n
def lint(lines, name=''):
    ins = []
    for l in lines:
        t = l.split(';')[0].strip()
        if not t or t.endswith(':') or t.startswith('.'): continue
        ins.append(I(l))
    bad = 0
    for j, b in enumerate(ins):
        d = 0
        for i in range(j-1, max(-1, j-24), -1):
            a = ins[i]
            n = need(a, b)
            if n > d:
                print(f"[lint {name}] need {n} have {d}:\n    {a.line.strip()}\n    {b.line.strip()}")
                bad += 1
            d += a.states
            if d >= 21: break
    return bad
```

```python
import sys, math
from lint import lint

NAME = "interleave_layers__softmax_full_mha__sliding_local_dilated__prompt"
S, D, H, DH = 2048, 640, 32, 20
XT_A = 0
XT_B = XT_A + S*D*2
OT   = XT_B + S*D*2
OBT  = OT + S*D*2
QIMG = OBT + S*D*2
KVIMG = QIMG + H*64*2560
ST_A = KVIMG + H*64*2560
ST_B = ST_A + S*64
U_A  = ST_B + S*64
U_B  = U_A + 8192
WS_END = U_B + 8192
CSCALE = (DH ** -0.5) * math.log2(math.e)
import struct
def fbits(x): return "0x%08x" % struct.unpack("<I", struct.pack("<f", x))[0]

FM = [(0,16),(32,48),(80,96),(112,128),(64,144)]
def FX(ks, t):
    return 160*(ks//5) + FM[ks%5][t]

class KB:
    def __init__(s, name):
        s.name = name; s.L = []; s.vm = []; s.lg = []
    def e(s, line): s.L.append("    " + line)
    def c(s, txt): s.L.append("    ; " + txt)
    def label(s, l): s.L.append(l + ":")
    def vmop(s, line, tag=None): s.e(line); s.vm.append(tag); assert len(s.vm) <= 63, (s.name, len(s.vm))
    def dsop(s, line, tag=None): s.e(line); s.lg.append(tag)
    def _n(s, lst, tag):
        idx = max(i for i, t in enumerate(lst) if t == tag)
        return idx
    def waitvm(s, tag):
        if tag not in s.vm: return
        i = s._n(s.vm, tag); n = len(s.vm) - 1 - i
        s.e(f"s_waitcnt vmcnt({n})"); s.vm = s.vm[i+1:]
    def waitlg(s, tag):
        if tag not in s.lg: return
        i = s._n(s.lg, tag); n = len(s.lg) - 1 - i
        if n > 15: n = 15; i = len(s.lg) - 1 - n
        s.e(f"s_waitcnt lgkmcnt({n})"); s.lg = s.lg[i+1:]
    def waitall(s):
        s.e("s_waitcnt vmcnt(0) lgkmcnt(0)"); s.vm = []; s.lg = []
    def srd(s, r, base, nbytes):
        s.e(f"s_mov_b32 s{r}, s{base}")
        s.e(f"s_and_b32 s{r+1}, s{base+1}, 0xffff")
        s.e(f"s_mov_b32 s{r+2}, {nbytes}")
        s.e(f"s_mov_b32 s{r+3}, 0x20000")
    def text(s, vgpr, accum, sgpr=96):
        out = [".text", f".globl {s.name}", ".p2align 8", f".type {s.name},@function", f"{s.name}:"]
        out += s.L
        out += ['.section .rodata,"a"', ".p2align 6", f".amdhsa_kernel {s.name}",
                f"  .amdhsa_next_free_vgpr {vgpr}", f"  .amdhsa_next_free_sgpr {sgpr}", f"  .amdhsa_accum_offset {accum}",
                "  .amdhsa_group_segment_fixed_size 0", "  .amdhsa_kernarg_size 72", "  .amdhsa_user_sgpr_count 2",
                "  .amdhsa_user_sgpr_kernarg_segment_ptr 1", "  .amdhsa_system_sgpr_workgroup_id_x 1", ".end_amdhsa_kernel"]
        nb = lint(s.L, s.name)
        assert nb == 0, f"{nb} hazards in {s.name}"
        return "\n".join(out) + "\n"
    def allred32(s, op, v, t):
        s.e(f"v_mov_b32 v{t}, v{v}"); s.e("s_nop 1")
        s.e(f"v_permlane32_swap_b32 v{v}, v{t}"); s.e("s_nop 1")
        s.e(f"{op} v{v}, v{v}, v{t}")
    def allred16(s, op, v, t):
        s.e(f"v_mov_b32 v{t}, v{v}"); s.e("s_nop 1")
        s.e(f"v_permlane16_swap_b32 v{v}, v{t}"); s.e("s_nop 1")
        s.e(f"{op} v{v}, v{v}, v{t}")

def vr(a, n): return f"v[{a}:{a+n-1}]" if n > 1 else f"v{a}"
def ar(a, n): return f"a[{a}:{a+n-1}]" if n > 1 else f"a{a}"

def k_prep():
    k = KB("prep_kernel"); e = k.e
    e("s_cmp_ge_u32 s2, 248"); e("s_cbranch_scc1 prep_end")
    e("s_load_dwordx2 s[4:5], s[0:1], 0"); e("s_load_dwordx2 s[6:7], s[0:1], 64")
    e("s_load_dwordx2 s[20:21], s[0:1], 8"); e("s_load_dwordx2 s[22:23], s[0:1], 32")
    e("v_and_b32 v1, 63, v0"); e("v_lshrrev_b32 v2, 6, v0")
    e("s_waitcnt lgkmcnt(0)")
    k.srd(12, 6, WS_END)
    e("s_cmp_ge_u32 s2, 128"); e("s_cbranch_scc1 prep_u")
    k.srd(8, 4, S*D*2)
    e("v_and_b32 v3, 15, v1"); e("v_lshrrev_b32 v4, 4, v1")
    e("s_lshl_b32 s16, s2, 4"); e("v_add_u32 v5, s16, v3")
    e("v_mul_u32_u24 v6, 1280, v5")
    e("v_mul_u32_u24 v7, 320, v2"); e("v_add_u32 v6, v6, v7")
    e("v_lshl_add_u32 v6, v4, 3, v6")
    for i in range(5):
        for t in range(2):
            k.vmop(f"buffer_load_dwordx2 {vr(12+4*i+2*t,2)}, v6, s[8:11], 0 offen offset:{2*FM[i][t]}", "x")
    e("s_mul_i32 s17, s2, 20480"); e(f"s_add_u32 s17, s17, {XT_A}"); e("s_add_u32 s18, s17, 4096")
    e("v_mul_u32_u24 v7, 5120, v2"); e("v_lshl_add_u32 v7, v1, 4, v7")
    e("v_mov_b32 v8, 0"); e("v_mov_b32 v9, 0"); e("v_mov_b32 v10, 0"); e("v_mov_b32 v11, 0")
    e("v_mov_b32 v32, 0x3f803f80")
    k.waitvm("x")
    for i in range(5):
        if i < 4: k.vmop(f"buffer_store_dwordx4 {vr(12+4*i,4)}, v7, s[12:15], s17 offen offset:{1024*i}")
        else: k.vmop(f"buffer_store_dwordx4 {vr(12+4*i,4)}, v7, s[12:15], s18 offen")
    for r in range(12, 32):
        e(f"v_dot2_f32_bf16 v8, v{r}, v32, v8")
    for r in range(12, 32):
        e(f"v_dot2_f32_bf16 v9, v{r}, v{r}, v9")
    e("s_nop 2")
    k.allred16("v_add_f32", 8, 33); k.allred32("v_add_f32", 8, 33)
    k.allred16("v_add_f32", 9, 33); k.allred32("v_add_f32", 9, 33)
    e("v_lshlrev_b32 v5, 6, v5"); e("v_lshl_add_u32 v5, v2, 4, v5")
    e(f"s_mov_b32 s19, {ST_A}")
    e("s_mov_b64 exec, 0xffff")
    k.vmop("buffer_store_dwordx4 v[8:11], v5, s[12:15], s19 offen")
    e("s_endpgm")
    k.label("prep_u"); k.vm = []
    e("s_sub_u32 s16, s2, 128"); e("s_cmp_ge_u32 s16, 60")
    e("s_cselect_b32 s24, s22, s20"); e("s_cselect_b32 s25, s23, s21")
    e(f"s_cselect_b32 s26, {U_B-U_A}, 0"); e("s_cselect_b32 s27, 60, 0"); e(f"s_add_u32 s26, s26, {U_A}")
    e("s_sub_u32 s16, s16, s27")
    k.srd(8, 24, D*3*D*2)
    e("v_and_b32 v3, 3, v0"); e("v_lshrrev_b32 v4, 2, v0")
    e("v_mul_u32_u24 v5, 3840, v4"); e("v_lshl_add_u32 v5, v3, 4, v5")
    e("s_lshl_b32 s17, s16, 6")
    for i in range(10):
        k.vmop(f"buffer_load_dwordx4 {vr(16+4*i,4)}, v5, s[8:11], s17 offen", f"w{i}")
        if i < 9: e(f"s_add_u32 s17, s17, {64*3840}")
    for j in range(8): e(f"v_mov_b32 v{8+j}, 0")
    for i in range(10):
        k.waitvm(f"w{i}")
        for j in range(4):
            e(f"v_lshlrev_b32 v6, 16, v{16+4*i+j}"); e(f"v_and_b32 v7, 0xffff0000, v{16+4*i+j}")
            e(f"v_add_f32 v{8+2*j}, v{8+2*j}, v6"); e(f"v_add_f32 v{9+2*j}, v{9+2*j}, v7")
    e("v_lshlrev_b32 v5, 5, v0")
    e("ds_write_b128 v5, v[8:11]"); e("ds_write_b128 v5, v[12:15] offset:16")
    e("s_waitcnt lgkmcnt(0)"); e("s_barrier")
    e("v_cmp_gt_u32 vcc, 64, v0"); e("s_and_saveexec_b64 s[28:29], vcc"); e("s_cbranch_execz prep_end")
    e("v_and_b32 v3, 31, v0"); e("v_lshrrev_b32 v4, 5, v0")
    e("v_lshlrev_b32 v5, 2, v3"); e("v_lshl_add_u32 v5, v4, 12, v5")
    e("v_mov_b32 v8, 0")
    for b in range(4):
        for i in range(8): e(f"ds_read_b32 v{16+i}, v5 offset:{(8*b+i)*128}")
        e("s_waitcnt lgkmcnt(0)")
        for i in range(8): e(f"v_add_f32 v8, v8, v{16+i}")
    k.allred32("v_add_f32", 8, 9)
    e("v_lshlrev_b32 v5, 2, v3"); e("s_lshl_b32 s17, s16, 7"); e("s_add_u32 s17, s17, s26")
    e("buffer_store_dword v8, v5, s[12:15], s17 offen")
    k.label("prep_end"); e("s_endpgm")
    return k.text(64, 64)

def stats_finish(k, s1, s2, mean, rstd, t):
    e = k.e
    e(f"v_mul_f32 v{mean}, {fbits(1.0/D)}, v{s1}")
    e(f"v_mul_f32 v{t}, {fbits(1.0/D)}, v{s2}")
    e(f"v_fma_f32 v{t}, -v{mean}, v{mean}, v{t}")
    e(f"v_max_f32 v{t}, 0, v{t}")
    e(f"v_add_f32 v{t}, {fbits(1e-5)}, v{t}")
    e(f"v_rsq_f32 v{rstd}, v{t}")
    e("s_nop 0")

def split3(k, src, d, t, kind, maskv=None):
    e = k.e
    if kind == 'm':
        e(f"v_xor_b32 v{t+1}, 0x80000000, v{src}"); src = t+1
    e(f"v_and_b32 v{t}, 0xffff0000, v{src}")
    e(f"v_sub_f32 v{t+2}, v{src}, v{t}")
    if kind == 'u':
        e(f"v_cvt_pk_bf16_f32 v{d}, v{t}, v{t+2}")
        e(f"v_lshrrev_b32 v{d+1}, 16, v{t}")
    else:
        e(f"v_cvt_pk_bf16_f32 v{d}, v{t}, v{t}")
        e(f"v_cvt_pk_bf16_f32 v{d+1}, v{t+2}, 0")
    if maskv is not None:
        e(f"v_and_b32 v{d}, v{d}, v{maskv}"); e(f"v_and_b32 v{d+1}, v{d+1}, v{maskv}")

def k_qkva():
    k = KB("qkva_kernel"); e = k.e
    ACC, BF, RS = 64, 128, 160
    e("s_cmp_ge_u32 s2, 256"); e("s_cbranch_scc1 qkva_end")
    e("s_load_dwordx2 s[4:5], s[0:1], 8"); e("s_load_dwordx2 s[6:7], s[0:1], 64")
    e("s_and_b32 s20, s2, 7"); e("s_lshr_b32 s21, s2, 3")
    e("s_lshr_b32 s22, s20, 1"); e("s_lshl_b32 s22, s22, 2"); e("s_and_b32 s23, s21, 3"); e("s_add_u32 s16, s22, s23")
    e("s_and_b32 s22, s20, 1"); e("s_lshl_b32 s22, s22, 3"); e("s_lshr_b32 s23, s21, 2"); e("s_add_u32 s17, s22, s23")
    e("s_cmp_ge_u32 s17, 15"); e("s_cbranch_scc1 qkva_end")
    e("v_lshrrev_b32 v2, 6, v0"); e("v_and_b32 v1, 63, v0")
    e("v_readfirstlane_b32 s18, v2")
    e("v_and_b32 v3, 31, v1"); e("v_lshrrev_b32 v4, 5, v1")
    e("v_and_b32 v5, 15, v1"); e("v_lshrrev_b32 v6, 4, v1")
    e("v_bfe_u32 v7, v1, 4, 1"); e("v_mul_u32_u24 v8, 20480, v7"); e("v_lshl_add_u32 v8, v4, 8, v8"); e("v_lshl_add_u32 v8, v5, 4, v8")
    e("v_lshl_add_u32 v9, v2, 2, v6"); e("v_mul_u32_u24 v9, 3840, v9")
    e("v_lshrrev_b32 v10, 2, v5"); e("v_xor_b32 v10, v10, v6"); e("v_lshl_add_u32 v9, v10, 6, v9")
    e("v_and_b32 v10, 3, v1"); e("v_lshl_add_u32 v9, v10, 4, v9")
    e("s_lshl_b32 s22, s17, 8"); e("v_add_u32 v9, s22, v9")
    e("s_lshl_b32 s19, s16, 2"); e("s_add_u32 s19, s19, s18")
    e("s_mul_i32 s24, s19, 40960"); e(f"s_add_u32 s24, s24, {XT_A}")
    for i in range(1, 5): e(f"s_add_u32 s{24+i}, s24, {4096*i}")
    e("s_lshl_b32 s29, s18, 10")
    e("v_lshlrev_b32 v11, 6, v3"); e("v_lshl_add_u32 v11, v4, 5, v11")
    e("s_lshl_b32 s30, s19, 11"); e(f"s_add_u32 s30, s30, {ST_A}")
    e("v_lshlrev_b32 v12, 2, v3")
    e("s_lshl_b32 s31, s17, 9"); e(f"s_add_u32 s31, s31, {U_A}")
    e("s_waitcnt lgkmcnt(0)")
    k.srd(8, 4, D*3*D*2); k.srd(12, 6, WS_END)
    k.vmop("buffer_load_dwordx4 v[16:19], v11, s[12:15], s30 offen", "st")
    k.vmop("buffer_load_dwordx4 v[20:23], v11, s[12:15], s30 offen offset:16", "st")
    for jf in range(4): k.vmop(f"buffer_load_dword v{24+jf}, v12, s[12:15], s31 offen offset:{128*jf}", "st")
    def issue(ks):
        for u in range(2):
            k.vmop(f"buffer_load_dwordx4 {ar(8*ks+4*u,4)}, v8, s[12:15], s{24+ks//4} offen offset:{(ks%4)*1024+u*512}", f"d{ks}")
        for t in range(2):
            e(f"s_add_u32 m0, s29, {FX(ks,t)*256}"); e(f"s_mov_b32 s32, {FX(ks,t)*3840}")
            k.vmop("buffer_load_dwordx4 v9, s[8:11], s32 offen lds", f"d{ks}")
    NPRE = 14
    for ks in range(NPRE): issue(ks)
    e("v_lshrrev_b32 v13, 2, v5")
    e("v_lshl_add_u32 v14, v4, 2, v13"); e("v_lshlrev_b32 v14, 8, v14")
    e("v_lshl_add_u32 v14, v7, 5, v14"); e("v_lshl_add_u32 v14, v10, 3, v14")
    for jf in range(4):
        e(f"v_xor_b32 v15, {jf}, v13"); e(f"v_lshl_add_u32 v{40+jf}, v15, 6, v14")
    e("v_subrev_u32 v44, 1, v4")
    e("v_not_b32 v45, v44")
    k.waitvm("st")
    e("v_add_f32 v16, v16, v18"); e("v_add_f32 v17, v17, v19"); e("v_add_f32 v20, v20, v22"); e("v_add_f32 v21, v21, v23")
    e("v_add_f32 v16, v16, v20"); e("v_add_f32 v17, v17, v21")
    k.allred32("v_add_f32", 16, 18); k.allred32("v_add_f32", 17, 18)
    stats_finish(k, 16, 17, 46, 47, 18)
    split3(k, 46, 48, 18, 'm', 44)
    for jf in range(4): split3(k, 24+jf, 50+2*jf, 18, 'u')
    e("s_cmp_ge_u32 s17, 10"); e("s_cbranch_scc1 qkva_v")
    vm_save = list(k.vm)
    SYNC = {0:0, 1:1, 2:3, 4:5, 6:7, 8:9, 10:11, 12:13, 14:15, 16:17, 18:19}
    def mainloop(vmode):
        acc = lambda jf: vr(ACC+16*jf, 16)
        e("s_nop 1")
        for jf in range(4):
            if vmode: e(f"v_mfma_f32_32x32x8_bf16 {acc(jf)}, v[48:49], {vr(50+2*jf,2)}, 0")
            else:     e(f"v_mfma_f32_32x32x8_bf16 {acc(jf)}, {vr(50+2*jf,2)}, v[48:49], 0")
        def sync(ks):
            if ks in SYNC:
                k.waitvm(f"d{SYNC[ks]}"); e("s_barrier")
        def reads(n):
            ks, u = n//2, n%2
            if u == 0:
                sync(ks)
                if ks % 5 == 0 and ks > 0:
                    for jf in range(4): e(f"v_add_u32 v{40+jf}, 40960, v{40+jf}")
            for jf in range(4):
                for t in range(2):
                    off = (FX(ks,t) - 160*(ks//5) + 8*u)*256
                    k.dsop(f"ds_read_b64_tr_b16 {vr(BF+16*(n%2)+4*jf+2*t,2)}, v{40+jf} offset:{off}", f"b{n}")
        reads(0)
        for n in range(40):
            ks, u = n//2, n%2
            if n+1 < 40: reads(n+1)
            if u == 0 and NPRE + ks < 20: issue(NPRE + ks)
            k.waitlg(f"b{n}")
            for jf in range(4):
                a = ar(8*ks+4*u, 4); b = vr(BF+16*(n%2)+4*jf, 4)
                if vmode: e(f"v_mfma_f32_32x32x16_bf16 {acc(jf)}, {a}, {b}, {acc(jf)}")
                else:     e(f"v_mfma_f32_32x32x16_bf16 {acc(jf)}, {b}, {a}, {acc(jf)}")
    mainloop(False)
    e("s_cmp_ge_u32 s17, 5")
    e(f"s_cselect_b32 s33, {KVIMG-QIMG}, 0"); e(f"s_cselect_b32 s34, 1.0, {fbits(CSCALE)}"); e("s_cselect_b32 s35, 5, 0")
    e(f"s_add_u32 s33, s33, {QIMG}")
    e("s_sub_u32 s35, s17, s35")
    e("s_mul_i32 s36, s19, 2560"); e("s_add_u32 s33, s33, s36")
    e("v_mul_f32 v47, s34, v47")
    e("v_lshlrev_b32 v16, 4, v3"); e("v_lshlrev_b32 v19, 3, v3")
    e("v_and_b32 v17, v44, v16"); e("v_and_b32 v20, v45, v19"); e("v_or_b32 v17, v17, v20")
    e("v_and_b32 v18, v44, v19"); e("v_and_b32 v20, v45, v16"); e("v_or_b32 v18, v18, v20")
    e("s_nop 4")
    for jf in range(4):
        for r in range(16): e(f"v_mul_f32 v{ACC+16*jf+r}, v{ACC+16*jf+r}, v47")
        for r in range(8): e(f"v_cvt_pk_bf16_f32 v{BF+8*jf+r}, v{ACC+16*jf+2*r}, v{ACC+16*jf+2*r+1}")
    for v in range(1, 5):
        e(f"s_cmp_eq_u32 s35, {v}"); e(f"s_cbranch_scc1 qkva_e{v}")
    for v in range(5):
        if v: k.label(f"qkva_e{v}")
        for jf in range(4):
            for a in range(4):
                def off(G):
                    h, g5 = divmod(G, 5)
                    return (h*163840 + ((g5//2)*512 + (g5%2)*8 if g5 < 4 else 1024), 16 if g5 < 4 else 8)
                (o0, s0), (o1, s1) = off(32*v+8*jf+2*a), off(32*v+8*jf+2*a+1)
                base = {(16,16):16, (16,8):17, (8,16):18}[(s0,s1)]
                t = 20 + (4*jf+a) % 4
                if o1 >= o0: e(f"v_and_b32 v{t}, {o1-o0}, v45")
                else:        e(f"v_and_b32 v{t}, {o0-o1}, v44")
                e(f"s_add_u32 s36, s33, {min(o0,o1)}")
                e(f"v_add_u32 v{t}, v{t}, v{base}")
                e(f"buffer_store_dwordx2 {vr(BF+8*jf+2*a,2)}, v{t}, s[12:15], s36 offen")
        e("s_endpgm")
    k.label("qkva_v"); k.vm = vm_save; k.lg = []
    e("v_lshlrev_b32 v16, 4, v4")
    for r in range(16):
        e(f"v_add_u32 v17, {(8*(r//4) + r%4)*4}, v16")
        k.dsop(f"ds_bpermute_b32 v{RS+r}, v17, v47", "rs")
        if r == 7: k.waitlg("rs")
    k.waitlg("rs")
    mainloop(True)
    e("s_sub_u32 s35, s17, 10"); e("s_lshl_b32 s35, s35, 7")
    e("s_mul_i32 s36, s19, 2560"); e(f"s_add_u32 s33, s36, {KVIMG+1280}")
    e("v_mul_u32_u24 v20, 320, v4")
    for jf in range(4):
        e(f"v_add_u32 v16, s35, v3")
        if jf: e(f"v_add_u32 v16, {32*jf}, v16")
        e("v_mul_u32_u24 v17, 52429, v16"); e("v_lshrrev_b32 v17, 20, v17")
        e("v_mul_u32_u24 v18, 20, v17"); e("v_sub_u32 v18, v16, v18")
        e("v_mul_u32_u24 v17, 163840, v17"); e("v_lshl_add_u32 v17, v18, 4, v17")
        e(f"v_add_u32 v{24+jf}, v17, v20")
    for jf in range(4):
        for r in range(16): e(f"v_mul_f32 v{ACC+16*jf+r}, v{ACC+16*jf+r}, v{RS+r}")
        for r in range(8): e(f"v_cvt_pk_bf16_f32 v{BF+8*jf+r}, v{ACC+16*jf+2*r}, v{ACC+16*jf+2*r+1}")
        for u in range(2):
            e(f"buffer_store_dwordx4 {vr(BF+8*jf+4*u,4)}, v{24+jf}, s[12:15], s33 offen offset:{640*u}")
    k.label("qkva_end"); e("s_endpgm")
    return k.text(176+160, 176)

def k_attn():
    k = KB("attn_kernel"); e = k.e
    KA, KT, VA = 4, 5, 6
    Q, QT = 8, 12
    KF = [16, 24]; VF = [32, 40]; SS = [48, 64]; P = 80; O = 96; NM = 112
    e("s_cmp_ge_u32 s2, 256"); e("s_cbranch_scc1 attn_end")
    e("s_load_dwordx2 s[6:7], s[0:1], 64")
    e("s_and_b32 s20, s2, 7"); e("s_lshr_b32 s21, s2, 3")
    e("s_lshl_b32 s16, s20, 2"); e("s_and_b32 s22, s21, 3"); e("s_add_u32 s16, s16, s22")
    e("s_lshr_b32 s17, s21, 2")
    e("v_lshrrev_b32 v2, 6, v0"); e("v_and_b32 v1, 63, v0")
    e("v_readfirstlane_b32 s18, v2")
    e("v_and_b32 v3, 31, v1"); e("v_lshrrev_b32 v7, 5, v1")
    e(f"v_lshlrev_b32 v{KA}, 4, v1")
    e(f"v_lshlrev_b32 v{KT}, 3, v3")
    e("s_mul_i32 s19, s16, 163840")
    e("s_lshl_b32 s23, s17, 3"); e("s_add_u32 s23, s23, s18")
    e("s_mul_i32 s24, s23, 2560"); e("s_add_u32 s24, s24, s19"); e(f"s_add_u32 s24, s24, {QIMG}")
    e("s_lshl_b32 s25, s18, 10")
    e("s_add_u32 s26, s19, s25"); e(f"s_add_u32 s26, s26, {KVIMG}")
    e("s_waitcnt lgkmcnt(0)")
    k.srd(12, 6, WS_END)
    k.vmop(f"buffer_load_dwordx4 {vr(Q,4)}, v{KA}, s[12:15], s24 offen", "q")
    k.vmop(f"buffer_load_dwordx2 {vr(QT,2)}, v{KT}, s[12:15], s24 offen offset:1024", "q")
    for i in range(20):
        e(f"s_add_u32 m0, s25, {8192*i}")
        if i: e(f"s_add_u32 s26, s26, 8192")
        else: e("s_nop 0")
        k.vmop(f"buffer_load_dwordx4 v{KA}, s[12:15], s26 offen lds", f"i{i}")
    e(f"v_add_u32 v{KT}, 1024, v{KT}")
    e(f"v_mul_u32_u24 v{VA}, 20, v7"); e(f"v_add_u32 v{VA}, v{VA}, v3"); e(f"v_lshlrev_b32 v{VA}, 4, v{VA}")
    e(f"v_add_u32 v{VA}, 1280, v{VA}")
    e("s_mov_b32 s28, 0x000fffff"); e("s_mov_b32 s29, 0x000fffff")
    e("v_cmp_eq_u32 vcc, 20, v3"); e("v_mov_b32 v14, 0x3f803f80"); e("s_nop 0")
    e("v_cndmask_b32 v14, 0, v14, vcc")
    for r in range(16): e(f"v_mov_b32 v{VF[0]+r}, v14")
    for r in range(16): e(f"v_mov_b32 v{NM+r}, 0")
    e("v_subrev_u32 v15, 1, v7")
    k.waitvm("q")
    e(f"v_and_b32 v{QT}, v{QT}, v15"); e(f"v_and_b32 v{QT+1}, v{QT+1}, v15")
    e("s_mov_b32 s30, 0")
    k.waitvm("i1"); e("s_barrier")
    n_sync1 = len(k.vm) - 1 - k._n(k.vm, "i5")
    k.label("attn_pass")
    for r in range(16): e(f"v_mov_b32 v{O+r}, 0")
    for r in range(4): e(f"v_mov_b32 v{P+4+r}, 0")
    def rdK(buf, off):
        e(f"ds_read_b128 {vr(KF[buf],4)}, v{KA} offset:{off}")
        e(f"ds_read_b64 {vr(KF[buf]+4,2)}, v{KT} offset:{off}")
    def rdV(buf, off):
        e("s_mov_b64 exec, s[28:29]")
        e(f"ds_read_b128 {vr(VF[buf],4)}, v{VA} offset:{off}")
        e(f"ds_read_b128 {vr(VF[buf]+4,4)}, v{VA} offset:{off+640}")
        e("s_mov_b64 exec, -1")
    def qkm(sb, kb): e(f"v_mfma_f32_32x32x16_bf16 {vr(SS[sb],16)}, {vr(KF[kb],4)}, {vr(Q,4)}, {vr(NM,16)}")
    def qkt(sb, kb): e(f"v_mfma_f32_32x32x8_bf16 {vr(SS[sb],16)}, {vr(KF[kb]+4,2)}, {vr(QT,2)}, {vr(SS[sb],16)}")
    def pv(vb, u):   e(f"v_mfma_f32_32x32x16_bf16 {vr(O,16)}, {vr(VF[vb]+4*u,4)}, {vr(P+4*u,4)}, {vr(O,16)}")
    rdK(0, 0); rdK(1, 2560); rdV(0, 0)
    e("s_waitcnt lgkmcnt(4)")
    qkm(0, 0); e("s_nop 10"); qkt(0, 0); e("s_nop 7")
    e("s_mov_b32 s31, 0")
    NT = 4
    body_start = len(k.L)
    k.label("attn_loop")
    for j in range(NT):
        p = j % 2; s = SS[p]
        ex = lambda i: e(f"v_exp_f32 v{s+i}, v{s+i}")
        cv = lambda i: e(f"v_cvt_pk_bf16_f32 v{P+i}, v{s+2*i}, v{s+2*i+1}")
        e("s_waitcnt lgkmcnt(0)")
        qkm(1-p, 1-p)
        rdK(p, (j+2)*2560)
        for i in range(0, 4): ex(i)
        pv(1-p, 1)
        rdV(1-p, (j+1)*2560)
        for i in range(4, 8): ex(i)
        for i in range(0, 4): cv(i)
        qkt(1-p, 1-p)
        for i in range(8, 12): ex(i)
        pv(p, 0)
        for i in range(12, 16): ex(i)
        for i in range(4, 8): cv(i)
    for r in (KA, KT, VA): e(f"v_add_u32 v{r}, {NT*2560}, v{r}")
    e("s_add_u32 s31, s31, 1")
    e("s_cmp_eq_u32 s30, 0"); e("s_cbranch_scc0 attn_nosync")
    e("s_cmp_eq_u32 s31, 1"); e("s_cbranch_scc0 attn_s2")
    e(f"s_waitcnt vmcnt({n_sync1})"); e("s_barrier"); e("s_branch attn_loop")
    k.label("attn_s2")
    e("s_cmp_eq_u32 s31, 4"); e("s_cbranch_scc0 attn_nosync")
    e("s_waitcnt vmcnt(0)"); e("s_barrier")
    k.label("attn_nosync")
    e(f"s_cmp_lt_u32 s31, {64//NT}"); e("s_cbranch_scc1 attn_loop")
    body = k.L[body_start:]
    assert lint(body + body, "attn_loop2") == 0
    pv(1, 1)
    e("s_waitcnt lgkmcnt(0)")
    e("s_nop 11")
    e(f"v_mov_b32 v16, v{O+8}"); e(f"v_mov_b32 v17, v{O+8}"); e("s_nop 1")
    e("v_permlane32_swap_b32 v16, v17")
    e(f"v_max3_f32 v18, abs(v{O}), abs(v{O+1}), abs(v{O+2})")
    for r in range(3, 11, 2): e(f"v_max3_f32 v18, abs(v{O+r}), abs(v{O+r+1}), v18")
    e(f"v_max_f32 v18, abs(v{O+11}), v18")
    e(f"s_mov_b32 s32, {fbits(2.0**-60)}"); e(f"s_mov_b32 s33, {fbits(2.0**100)}"); e(f"s_mov_b32 s34, {fbits(2.0**126)}")
    e("v_cmp_le_f32 vcc, s32, v17"); e("v_cmp_ge_f32 s[36:37], s33, v17"); e("v_cmp_gt_f32 s[38:39], s34, v18")
    e("s_nop 3")
    e("s_and_b64 s[36:37], s[36:37], vcc"); e("s_and_b64 s[36:37], s[36:37], s[38:39]")
    e("s_cmp_eq_u64 s[36:37], -1"); e("s_cbranch_scc1 attn_fin")
    e("s_cmp_eq_u32 s30, 0"); e("s_cbranch_scc0 attn_fin")
    e("s_mov_b32 s30, 1")
    for r in (KA, KT, VA): e(f"v_subrev_u32 v{r}, 163840, v{r}")
    e(f"v_mov_b32 v18, v{KA}"); e(f"v_mov_b32 v19, v{KT}"); e("v_mov_b32 v20, 0xff800000")
    e("s_mov_b32 s31, 0")
    k.label("attn_mx")
    e(f"ds_read_b128 {vr(24,4)}, v18"); e(f"ds_read_b64 {vr(28,2)}, v19")
    e("s_waitcnt lgkmcnt(0)")
    e(f"v_mfma_f32_32x32x16_bf16 {vr(SS[0],16)}, {vr(24,4)}, {vr(Q,4)}, 0"); e("s_nop 10")
    e(f"v_mfma_f32_32x32x8_bf16 {vr(SS[0],16)}, {vr(28,2)}, {vr(QT,2)}, {vr(SS[0],16)}"); e("s_nop 12")
    for r in range(0, 16, 2): e(f"v_max3_f32 v20, v{SS[0]+r}, v{SS[0]+r+1}, v20")
    e("v_add_u32 v18, 2560, v18"); e("v_add_u32 v19, 2560, v19")
    e("s_add_u32 s31, s31, 1"); e("s_cmp_lt_u32 s31, 64"); e("s_cbranch_scc1 attn_mx")
    k.allred32("v_max_f32", 20, 21)
    e("v_xor_b32 v20, 0x80000000, v20")
    for r in range(16): e(f"v_mov_b32 v{NM+r}, v20")
    for r in range(16): e(f"v_mov_b32 v{VF[0]+r}, v14")
    e("s_branch attn_pass")
    k.label("attn_fin")
    e("v_rcp_f32 v17, v17")
    e("s_mul_i32 s32, s23, 40960"); e(f"s_add_u32 s32, s32, {OT}")
    e("s_lshr_b32 s33, s16, 1"); e("s_lshl_b32 s33, s33, 10"); e("s_and_b32 s34, s16, 1"); e("s_lshl_b32 s34, s34, 9")
    e("s_add_u32 s33, s33, s34"); e("s_add_u32 s33, s33, s32")
    e("s_lshr_b32 s34, s16, 3"); e("s_add_u32 s34, s34, 16"); e("s_lshl_b32 s34, s34, 10"); e("s_add_u32 s34, s34, s32")
    e("s_and_b32 s35, s16, 3"); e("s_lshl_b32 s35, s35, 8"); e("s_add_u32 s34, s34, s35")
    e("s_bfe_u32 s35, s16, 0x10002"); e("s_lshl_b32 s35, s35, 3"); e("s_add_u32 s34, s34, s35")
    for r in range(12): e(f"v_mul_f32 v{O+r}, v{O+r}, v17")
    for r in range(6): e(f"v_cvt_pk_bf16_f32 v{P+r}, v{O+2*r}, v{O+2*r+1}")
    e("v_lshrrev_b32 v18, 4, v3"); e("v_mul_u32_u24 v18, 20480, v18"); e("v_and_b32 v19, 15, v3")
    e("v_lshl_add_u32 v18, v19, 4, v18"); e("v_lshl_add_u32 v19, v7, 8, v18")
    e(f"buffer_store_dwordx4 {vr(P,4)}, v19, s[12:15], s33 offen")
    e("s_mov_b32 exec_hi, 0")
    e(f"buffer_store_dwordx2 {vr(P+4,2)}, v18, s[12:15], s34 offen")
    k.label("attn_end"); e("s_endpgm")
    return k.text(128, 128)

def k_proj(name, fmt, woff, xin, xout, stout, final):
    k = KB(name); e = k.e
    src = OT if fmt == 'O' else OBT
    A, ACC, BF, RESID = 64, 24, 144, 44
    e("s_cmp_ge_u32 s2, 256"); e(f"s_cbranch_scc1 {name}_end")
    e(f"s_load_dwordx2 s[4:5], s[0:1], {woff}"); e("s_load_dwordx2 s[6:7], s[0:1], 64")
    if final: e("s_load_dwordx2 s[40:41], s[0:1], 48")
    e("s_and_b32 s20, s2, 7"); e("s_lshr_b32 s21, s2, 3")
    e("s_lshr_b32 s22, s20, 1"); e("s_lshl_b32 s22, s22, 3"); e("s_and_b32 s23, s21, 7"); e("s_add_u32 s16, s22, s23")
    e("s_and_b32 s22, s20, 1"); e("s_lshl_b32 s22, s22, 2"); e("s_lshr_b32 s23, s21, 3"); e("s_add_u32 s17, s22, s23")
    e("v_lshrrev_b32 v2, 6, v0"); e("v_and_b32 v1, 63, v0")
    e("v_readfirstlane_b32 s18, v2")
    e("v_lshlrev_b32 v3, 4, v1")
    for i in range(5):
        e(f"v_add_u32 v9, {64*i}, v1"); e("v_mul_u32_u24 v10, 6554, v9"); e("v_lshrrev_b32 v10, 16, v10")
        e("v_mul_u32_u24 v11, 1120, v10"); e(f"v_lshl_add_u32 v{4+i}, v9, 4, v11")
    e("s_lshl_b32 s19, s16, 2"); e("s_add_u32 s19, s19, s18")
    e("s_mul_i32 s24, s19, 20480")
    e("s_lshr_b32 s33, s17, 1"); e("s_mul_i32 s33, s33, 5120"); e("s_add_u32 s33, s33, s24")
    e("s_and_b32 s34, s17, 1"); e("s_lshl_b32 s35, s34, 11"); e("s_add_u32 s35, s35, s33")
    e("s_lshl_b32 s34, s34, 3"); e("s_add_u32 s36, s33, s34"); e("s_add_u32 s36, s36, 4096")
    e(f"s_add_u32 s37, s35, {xin}"); e(f"s_add_u32 s38, s36, {xin}")
    e(f"s_add_u32 s24, s24, {src}")
    for i in range(1, 5): e(f"s_add_u32 s{24+i}, s24, {4096*i}")
    e("s_mul_i32 s29, s18, 5120")
    e("s_mul_i32 s30, s18, 40960"); e("s_mul_i32 s31, s17, 160"); e("s_add_u32 s30, s30, s31")
    e("s_waitcnt lgkmcnt(0)")
    k.srd(8, 4, D*D*2); k.srd(12, 6, WS_END)
    steps = []
    for ks in range(20):
        if ks < 16:
            rows = [40*ks + (8*t if fmt == 'O' else 20*t) for t in range(2)]
            mx = 40*ks + 35; base = 'L1'
        else:
            rows = [160*(ks-16) + 80*t + 16 for t in range(2)]
            mx = 160*(ks-16) + 159; base = 'L2'
        steps.append((mx // 128, ks, rows, base))
    steps.sort()
    k.vmop(f"buffer_load_dwordx4 {vr(RESID,4)}, v3, s[12:15], s37 offen", "r")
    k.vmop(f"buffer_load_dwordx4 {vr(RESID+4,4)}, v3, s[12:15], s37 offen offset:1024", "r")
    k.vmop(f"buffer_load_dwordx2 {vr(RESID+8,2)}, v3, s[12:15], s38 offen", "r")
    for c in range(5):
        for i in range(5):
            e(f"s_add_u32 m0, s29, {c*20480 + i*1024}")
            if i == 0: e(f"s_add_u32 s32, s30, {c*163840}")
            else: e("s_nop 0")
            k.vmop(f"buffer_load_dwordx4 v{4+i}, s[8:11], s32 offen lds", f"c{c}")
        for (cc, ks, _, _) in steps:
            if cc == c:
                k.vmop(f"buffer_load_dwordx4 {vr(A+4*ks,4)}, v3, s[12:15], s{24+ks//4} offen offset:{(ks%4)*1024}", f"c{c}")
    e("v_lshrrev_b32 v9, 4, v1"); e("v_bfe_u32 v10, v1, 2, 2"); e("v_and_b32 v11, 3, v1")
    if fmt == 'O':
        e("v_lshrrev_b32 v12, 1, v9"); e("v_mul_u32_u24 v12, 20, v12"); e("v_and_b32 v13, 1, v9"); e("v_lshl_add_u32 v12, v13, 2, v12")
    else:
        e("v_lshlrev_b32 v12, 2, v9")
    e("v_add_u32 v12, v12, v10"); e("v_mul_u32_u24 v12, 160, v12"); e("v_lshl_add_u32 v12, v11, 3, v12")
    e("v_mul_u32_u24 v13, 20, v9"); e("v_add_u32 v13, v13, v10"); e("v_mul_u32_u24 v13, 160, v13"); e("v_lshl_add_u32 v13, v11, 3, v13")
    e("v_add_u32 v14, 51200, v12"); e("v_add_u32 v15, 51200, v13")
    k.waitvm("r")
    for i in range(10):
        e(f"v_lshlrev_b32 v{ACC+2*i}, 16, v{RESID+i}"); e(f"v_and_b32 v{ACC+2*i+1}, 0xffff0000, v{RESID+i}")
    def reads(n):
        cc, ks, rows, base = steps[n]
        if n == 0 or steps[n-1][0] != cc:
            k.waitvm(f"c{cc}"); e("s_barrier")
        for nf in range(5):
            for t in range(2):
                off = rows[t]*160 + nf*32; b = 12 if base == 'L1' else 13
                if off >= 51200: off -= 51200; b += 2
                k.dsop(f"ds_read_b64_tr_b16 {vr(BF+20*(n%2)+4*nf+2*t,2)}, v{b} offset:{off}", f"b{n}")
    reads(0)
    for n in range(20):
        if n+1 < 20: reads(n+1)
        k.waitlg(f"b{n}")
        ks = steps[n][1]
        for nf in range(5):
            e(f"v_mfma_f32_16x16x32_bf16 {vr(ACC+4*nf,4)}, {vr(BF+20*(n%2)+4*nf,4)}, {vr(A+4*ks,4)}, {vr(ACC+4*nf,4)}")
    if final:
        k.srd(44, 40, S*D*2)
        e("v_and_b32 v16, 15, v1"); e("v_mul_u32_u24 v16, 1280, v16"); e("v_lshl_add_u32 v16, v9, 3, v16")
        e("s_mul_i32 s32, s19, 20480"); e("s_add_u32 s32, s32, s31")
        e("s_nop 3")
        for nf in range(5):
            for r in range(2): e(f"v_cvt_pk_bf16_f32 v{RESID+2*nf+r}, v{ACC+4*nf+2*r}, v{ACC+4*nf+2*r+1}")
            e(f"buffer_store_dwordx2 {vr(RESID+2*nf,2)}, v16, s[44:47], s32 offen offset:{32*nf}")
    else:
        e(f"s_add_u32 s37, s35, {xout}"); e(f"s_add_u32 s38, s36, {xout}")
        e("s_lshl_b32 s32, s19, 10"); e("s_lshl_b32 s33, s17, 3"); e("s_add_u32 s32, s32, s33"); e(f"s_add_u32 s32, s32, {stout}")
        e("v_and_b32 v16, 15, v1"); e("v_lshlrev_b32 v16, 6, v16")
        for i in range(10): e(f"v_cvt_pk_bf16_f32 v{RESID+i}, v{ACC+2*i}, v{ACC+2*i+1}")
        e(f"buffer_store_dwordx4 {vr(RESID,4)}, v3, s[12:15], s37 offen")
        e(f"buffer_store_dwordx4 {vr(RESID+4,4)}, v3, s[12:15], s37 offen offset:1024")
        e(f"buffer_store_dwordx2 {vr(RESID+8,2)}, v3, s[12:15], s38 offen")
        e(f"v_add_f32 v18, v{ACC}, v{ACC+1}"); e(f"v_mul_f32 v19, v{ACC}, v{ACC}"); e(f"v_fmac_f32 v19, v{ACC+1}, v{ACC+1}")
        for i in range(2, 20):
            e(f"v_add_f32 v18, v18, v{ACC+i}"); e(f"v_fmac_f32 v19, v{ACC+i}, v{ACC+i}")
        k.allred16("v_add_f32", 18, 20); k.allred16("v_add_f32", 19, 21)
        k.allred32("v_add_f32", 18, 20); k.allred32("v_add_f32", 19, 21)
        e("s_mov_b64 exec, 0xffff")
        e("buffer_store_dwordx2 v[18:19], v16, s[12:15], s32 offen")
    k.label(f"{name}_end"); e("s_endpgm")
    return k.text(184, 184)

def k_qkvb():
    k = KB("qkvb_kernel"); e = k.e
    ACC, BF = 64, 160
    RSV = 224
    acc = lambda b, F: ACC + 32*b + 4*F
    TOKF = (0, 1, 2, 3, 6); FEAF = (4, 5, 7); HALOF = (2, 3, 4, 5, 6, 7)
    OB = {0:[0,8,16,24], 1:[40,48,56,64], 2:[80,88,96,104], 3:[120,128,136,144], 4:[160,168,176,184], 5:[200,208,216,224],
          6:[32,72,112,152], 7:[192,232,240,248]}
    e("s_cmp_ge_u32 s2, 256"); e("s_cbranch_scc1 qkvb_end")
    e("s_load_dwordx2 s[4:5], s[0:1], 32"); e("s_load_dwordx2 s[6:7], s[0:1], 64")
    e("s_and_b32 s20, s2, 7"); e("s_lshr_b32 s21, s2, 3")
    e("s_lshr_b32 s22, s20, 1"); e("s_lshl_b32 s22, s22, 2"); e("s_and_b32 s23, s21, 3"); e("s_add_u32 s16, s22, s23")
    e("s_and_b32 s22, s20, 1"); e("s_lshl_b32 s22, s22, 3"); e("s_lshr_b32 s23, s21, 2"); e("s_add_u32 s17, s22, s23")
    e("v_lshrrev_b32 v2, 6, v0"); e("v_and_b32 v1, 63, v0")
    e("v_readfirstlane_b32 s18, v2")
    e("v_and_b32 v5, 15, v1"); e("v_lshrrev_b32 v6, 4, v1")
    e("v_lshlrev_b32 v3, 4, v1")
    e("v_and_b32 v7, 1, v2"); e("v_lshl_add_u32 v7, v7, 2, v6"); e("v_lshlrev_b32 v7, 1, v7"); e("v_xor_b32 v7, v7, v5")
    e("v_mul_u32_u24 v8, 52, v7"); e("v_lshrrev_b32 v8, 8, v8")
    e("v_mul_u32_u24 v9, 1200, v8"); e("v_lshl_add_u32 v9, v7, 4, v9")
    e("v_lshl_add_u32 v10, v2, 2, v6"); e("v_mul_u32_u24 v10, 3840, v10"); e("v_add_u32 v9, v9, v10")
    e("s_mul_i32 s22, s17, 80"); e("v_add_u32 v9, s22, v9")
    e("v_cmp_eq_u32 vcc, 15, v7"); e("v_mov_b32 v10, 0x40000000"); e("s_nop 0"); e("v_cndmask_b32 v9, v9, v10, vcc")
    e("s_lshl_b32 s19, s16, 3"); e("s_lshl_b32 s22, s18, 1"); e("s_add_u32 s19, s19, s22")
    e("s_max_u32 s22, s19, 1"); e("s_sub_u32 s22, s22, 1")
    e("s_mul_i32 s24, s22, 20480"); e(f"s_add_u32 s24, s24, {XT_B}")
    e("s_mul_i32 s25, s19, 20480"); e(f"s_add_u32 s25, s25, {XT_B}"); e("s_add_u32 s26, s25, 20480")
    e("s_lshl_b32 s27, s22, 10"); e(f"s_add_u32 s27, s27, {ST_B}")
    e("s_lshl_b32 s28, s19, 10"); e(f"s_add_u32 s28, s28, {ST_B}")
    e("s_lshl_b32 s29, s18, 10")
    e("v_lshlrev_b32 v11, 6, v5"); e("v_lshl_add_u32 v11, v6, 4, v11")
    e("v_lshrrev_b32 v12, 2, v5"); e("v_and_b32 v13, 3, v5")
    e("v_lshlrev_b32 v14, 2, v5")
    e("v_and_b32 v15, 1, v12"); e("v_mul_u32_u24 v15, 80, v15"); e("v_lshl_add_u32 v15, v13, 2, v15")
    e("v_lshrrev_b32 v16, 1, v12"); e("v_mul_u32_u24 v16, 2560, v16"); e("v_add_u32 v16, v16, v15")
    e("s_mul_i32 s30, s17, 160"); e(f"s_add_u32 s30, s30, {U_B}")
    e("s_add_u32 s31, s30, 2560"); e("s_add_u32 s33, s30, 5120")
    e("s_waitcnt lgkmcnt(0)")
    k.srd(8, 4, D*3*D*2); k.srd(12, 6, WS_END)
    k.vmop("buffer_load_dwordx4 v[20:23], v11, s[12:15], s27 offen", "st")
    k.vmop("buffer_load_dwordx4 v[24:27], v11, s[12:15], s28 offen", "st")
    k.vmop("buffer_load_dwordx4 v[28:31], v11, s[12:15], s28 offen offset:1024", "st")
    for F in range(6):
        k.vmop(f"buffer_load_dword v{32+F}, v14, s[12:15], s{[30,31,33][F//2]} offen offset:{80*(F%2)}", "st")
    k.vmop("buffer_load_dword v38, v16, s[12:15], s30 offen offset:64", "st")
    k.vmop("buffer_load_dword v39, v15, s[12:15], s33 offen offset:64", "st")
    def issue(ks):
        for b in range(3):
            if ks % 4 == 0 and ks > 0: e(f"s_add_u32 s{24+b}, s{24+b}, 4096")
            k.vmop(f"buffer_load_dwordx4 {ar(80*b+4*ks,4)}, v3, s[12:15], s{24+b} offen offset:{(ks%4)*1024}", f"d{ks}")
        for t in range(2):
            e(f"s_add_u32 m0, s29, {FX(ks,t)*256}"); e(f"s_mov_b32 s32, {FX(ks,t)*3840}")
            k.vmop("buffer_load_dwordx4 v9, s[8:11], s32 offen lds", f"d{ks}")
    NPRE = 10
    for ks in range(NPRE): issue(ks)
    e("v_lshl_add_u32 v17, v6, 2, v12")
    e("v_and_b32 v18, 7, v17"); e("v_lshlrev_b32 v18, 5, v18")
    e("v_lshlrev_b32 v17, 8, v17")
    for F in range(8):
        o = OB[F]
        if F < 6:
            e(f"v_lshl_add_u32 v19, v13, 3, {o[0]}" if o[0] <= 64 else f"v_lshlrev_b32 v19, 3, v13")
            if o[0] > 64: e(f"v_add_u32 v19, {o[0]}, v19")
        elif F == 6:
            e("v_mul_u32_u24 v19, 40, v13"); e("v_add_u32 v19, 32, v19")
        else:
            e("v_min_u32 v19, 1, v13"); e("v_lshlrev_b32 v19, 5, v19"); e("v_lshl_add_u32 v19, v13, 3, v19"); e("v_add_u32 v19, 192, v19")
        e("v_xor_b32 v19, v19, v18"); e(f"v_add_u32 v{40+F}, v19, v17")
    e("v_cmp_eq_u32 vcc, 0, v6"); e("s_nop 1"); e("v_cndmask_b32 v4, 0, -1, vcc")
    k.waitvm("st")
    for b in range(3):
        s = 20 + 4*b
        e(f"v_add_f32 v{s}, v{s}, v{s+2}"); e(f"v_add_f32 v{s+1}, v{s+1}, v{s+3}")
        k.allred16("v_add_f32", s, s+2); k.allred16("v_add_f32", s+1, s+3)
        k.allred32("v_add_f32", s, s+2); k.allred32("v_add_f32", s+1, s+3)
        stats_finish(k, s, s+1, s+2, 48+b, s+3)
        split3(k, s+2, 52+2*b, 17, 'm', 4)
    for F in range(8): split3(k, 32+F, BF+32+2*F, 17, 'u')
    e("v_lshlrev_b32 v17, 4, v6")
    for b in range(3):
        for r in range(4):
            e(f"v_add_u32 v18, {4*r}, v17")
            k.dsop(f"ds_bpermute_b32 v{RSV+4*b+r}, v18, v{48+b}", "rs")
    for b in range(3):
        for F in (range(8) if b else HALOF):
            U, M = vr(BF+32+2*F, 2), vr(52+2*b, 2)
            if F in TOKF: e(f"v_mfma_f32_16x16x16_bf16 {vr(acc(b,F),4)}, {U}, {M}, 0")
            else:         e(f"v_mfma_f32_16x16x16_bf16 {vr(acc(b,F),4)}, {M}, {U}, 0")
    k.waitlg("rs")
    SYNC = {0:0, 1:1, 2:3, 4:5, 6:7, 8:9, 10:11, 12:13, 14:15, 16:17, 18:19}
    def reads(ks, half):
        if half == 0:
            if ks in SYNC: k.waitvm(f"d{SYNC[ks]}"); e("s_barrier")
            if ks % 5 == 0 and ks > 0:
                for F in range(8): e(f"v_add_u32 v{40+F}, 40960, v{40+F}")
        for F in range(4*half, 4*half+4):
            for t in range(2):
                off = (FX(ks,t) - 160*(ks//5))*256
                k.dsop(f"ds_read_b64_tr_b16 {vr(BF+32*(ks%2)+4*F+2*t,2)}, v{40+F} offset:{off}", f"b{ks}_{half}")
    reads(0, 0); reads(0, 1)
    for ks in range(20):
        for half in range(2):
            k.waitlg(f"b{ks}_{half}")
            if ks+1 < 20: reads(ks+1, half)
            if half == 0 and NPRE + ks < 20: issue(NPRE + ks)
            for F in range(4*half, 4*half+4):
                for b in range(3):
                    if b == 0 and F not in HALOF: continue
                    a = ar(80*b+4*ks, 4); w = vr(BF+32*(ks%2)+4*F, 4); c = vr(acc(b,F), 4)
                    if F in TOKF: e(f"v_mfma_f32_16x16x32_bf16 {c}, {w}, {a}, {c}")
                    else:         e(f"v_mfma_f32_16x16x32_bf16 {c}, {a}, {w}, {c}")
    KO = lambda b, h: BF + 8*b + 4*h
    QO = lambda b, h: BF + 24 + 8*(b-1) + 4*h
    VO = lambda F, b: BF + 40 + 8*FEAF.index(F) + 2*b
    MC, MP, MP1 = 20, 24, 28
    NEG = fbits(-1e30)
    e("v_lshlrev_b32 v17, 2, v6"); e("v_sub_u32 v17, v5, v17")
    e(f"v_mov_b32 v19, {NEG}")
    for r in range(4):
        e(f"v_subrev_u32 v18, {r}, v17")
        e("v_and_b32 v16, 0x80000001, v18"); e("v_cmp_eq_u32 vcc, 0, v16"); e("s_nop 1")
        e(f"v_cndmask_b32 v{MC+r}, v19, 0, vcc")
        e("v_cmp_eq_u32 vcc, 0x80000000, v16"); e("s_nop 1")
        e(f"v_cndmask_b32 v{MP+r}, v19, 0, vcc")
    e("s_cmp_eq_u32 s19, 0"); e(f"s_cselect_b32 s34, {NEG}, 0")
    for r in range(4): e(f"v_add_f32 v{MP1+r}, s34, v{MP+r}")
    for b in (1, 2):
        e(f"v_mul_f32 v{32+b}, {fbits(CSCALE)}, v{48+b}")
    e("v_cmp_gt_u32 vcc, 2, v6"); e("s_nop 1")
    for b in (1, 2): e(f"v_cndmask_b32 v{35+b}, v{48+b}, v{32+b}, vcc")
    e("v_mov_b32 v35, v48")
    e("v_cmp_eq_u32 vcc, 2, v6"); e("s_nop 1"); e("v_cndmask_b32 v38, 0, -1, vcc")
    e("v_cmp_eq_u32 vcc, 3, v6"); e("s_nop 1"); e("v_cndmask_b32 v39, 0, -1, vcc")
    def scale_pack(b, F, sc, dst):
        a = acc(b, F)
        for r in range(4): e(f"v_mul_f32 v{a+r}, v{a+r}, v{sc(r)}")
        for r in range(2): e(f"v_cvt_pk_bf16_f32 v{dst+r}, v{a+2*r}, v{a+2*r+1}")
    for b in range(3):
        for h in range(2): scale_pack(b, 2+h, lambda r: 48+b, KO(b,h))
        scale_pack(b, 6, lambda r: 35+b, KO(b,0)+2)
        for r in range(2): e(f"v_mov_b32 v{KO(b,1)+2+r}, v{KO(b,0)+2+r}")
        for F in FEAF: scale_pack(b, F, lambda r: RSV+4*b+r, VO(F,b))
        if b:
            for h in range(2): scale_pack(b, h, lambda r: 32+b, QO(b,h))
            for r in range(2):
                e(f"v_mov_b32 v{40+2*r}, v{KO(b,0)+2+r}"); e(f"v_mov_b32 v{41+2*r}, v{KO(b,0)+2+r}")
            e("s_nop 0")
            for r in range(2): e(f"v_permlane32_swap_b32 v{40+2*r}, v{41+2*r}")
            e("s_nop 0")
            for h in range(2):
                for r in range(2): e(f"v_and_b32 v{QO(b,h)+2+r}, v{40+2*r}, v{38+h}")
    units = [(b, h) for b in (1, 2) for h in range(2)]
    SU = lambda i: ACC + 8*i
    TU = lambda i: ACC + 32 + 4*i
    PU = lambda i: ACC + 48 + 4*i
    OU = lambda i: ACC + 64 + 8*i
    e("s_nop 1")
    for i, (b, h) in enumerate(units):
        e(f"v_mfma_f32_16x16x32_bf16 {vr(SU(i),4)}, {vr(KO(b-1,h),4)}, {vr(QO(b,h),4)}, {vr(MP1 if b == 1 else MP,4)}")
        e(f"v_mfma_f32_16x16x32_bf16 {vr(SU(i)+4,4)}, {vr(KO(b,h),4)}, {vr(QO(b,h),4)}, {vr(MC,4)}")
    e("s_nop 3")
    def allred(op):
        for sw in ("v_permlane16_swap_b32", "v_permlane32_swap_b32"):
            for i in range(4): e(f"v_mov_b32 v{TU(i)+1}, v{TU(i)}")
            for i in range(4): e(f"{sw} v{TU(i)}, v{TU(i)+1}")
            for i in range(4): e(f"{op} v{TU(i)}, v{TU(i)}, v{TU(i)+1}")
    for i in range(4):
        s = SU(i)
        e(f"v_max3_f32 v{TU(i)}, v{s}, v{s+1}, v{s+2}"); e(f"v_max3_f32 v{TU(i)}, v{s+3}, v{s+4}, v{TU(i)}")
        e(f"v_max3_f32 v{TU(i)}, v{s+5}, v{s+6}, v{TU(i)}"); e(f"v_max_f32 v{TU(i)}, v{s+7}, v{TU(i)}")
    allred("v_max_f32")
    for i in range(4):
        for r in range(8): e(f"v_sub_f32 v{SU(i)+r}, v{SU(i)+r}, v{TU(i)}")
    for i in range(4):
        for r in range(8): e(f"v_exp_f32 v{SU(i)+r}, v{SU(i)+r}")
    for i in range(4):
        s = SU(i)
        e(f"v_add_f32 v{TU(i)}, v{s}, v{s+1}")
        for r in range(2, 8): e(f"v_add_f32 v{TU(i)}, v{TU(i)}, v{s+r}")
    allred("v_add_f32")
    for i in range(4): e(f"v_rcp_f32 v{TU(i)}, v{TU(i)}")
    for i in range(4):
        for r in range(8): e(f"v_mul_f32 v{SU(i)+r}, v{SU(i)+r}, v{TU(i)}")
        for r in range(4): e(f"v_cvt_pk_bf16_f32 v{PU(i)+r}, v{SU(i)+2*r}, v{SU(i)+2*r+1}")
    e("s_nop 1")
    for i, (b, h) in enumerate(units):
        e(f"v_mfma_f32_16x16x32_bf16 {vr(OU(i),4)}, {vr(VO(4+h,b-1),4)}, {vr(PU(i),4)}, 0")
        e(f"v_mfma_f32_16x16x32_bf16 {vr(OU(i)+4,4)}, {vr(VO(7,b-1),4)}, {vr(PU(i),4)}, 0")
    e("s_mul_i32 s24, s19, 20480"); e(f"s_add_u32 s24, s24, {OBT}")
    e("s_lshl_b32 s25, s17, 10"); e("s_add_u32 s25, s25, s24"); e("s_add_u32 s26, s25, 20480")
    e("s_lshr_b32 s27, s17, 2"); e("s_add_u32 s27, s27, 16"); e("s_lshl_b32 s27, s27, 10"); e("s_add_u32 s27, s27, s24")
    e("s_and_b32 s28, s17, 1"); e("s_lshl_b32 s28, s28, 9"); e("s_add_u32 s27, s27, s28")
    e("s_bfe_u32 s28, s17, 0x10001"); e("s_lshl_b32 s28, s28, 3"); e("s_add_u32 s27, s27, s28"); e("s_add_u32 s28, s27, 20480")
    e("v_cmp_eq_u32 vcc, 0, v6")
    for bi in range(2):
        o0, o1 = OU(2*bi), OU(2*bi+1); d = 40 + 8*bi
        e(f"v_cvt_pk_bf16_f32 v{d}, v{o0}, v{o0+1}"); e(f"v_cvt_pk_bf16_f32 v{d+1}, v{o0+2}, v{o0+3}")
        e(f"v_cvt_pk_bf16_f32 v{d+2}, v{o1}, v{o1+1}"); e(f"v_cvt_pk_bf16_f32 v{d+3}, v{o1+2}, v{o1+3}")
        e(f"buffer_store_dwordx4 {vr(d,4)}, v3, s[12:15], s{25+bi} offen")
        for r in range(4): e(f"v_cndmask_b32 v{o0+4+r}, v{o1+4+r}, v{o0+4+r}, vcc")
        e(f"v_cvt_pk_bf16_f32 v{d+4}, v{o0+4}, v{o0+5}"); e(f"v_cvt_pk_bf16_f32 v{d+5}, v{o0+6}, v{o0+7}")
    e("s_mov_b32 exec_hi, 0")
    for bi in range(2): e(f"buffer_store_dwordx2 {vr(44+8*bi,2)}, v3, s[12:15], s{27+bi} offen")
    k.label("qkvb_end"); e("s_endpgm")
    return k.text(236+240, 236)

def build():
    L = [("prep_kernel", 248, 256, 8192)]
    for it in range(2):
        L += [("qkva_kernel", 256, 256, 163840), ("attn_kernel", 256, 512, 163840), ("proja_kernel", 256, 256, 102400),
              ("qkvb_kernel", 256, 256, 163840), ("projb_kernel" if it == 0 else "projf_kernel", 256, 256, 102400)]
    hdr = open("cdna_kernels/" + NAME + ".s.ref").read().split("; Override launch")[0]
    out = hdr
    for n, g, b, lds in L: out += f"; @launch kernel={n} grid=({g},1,1) block=({b},1,1) lds={lds}\n"
    out += '.amdgcn_target "amdgcn-amd-amdhsa--gfx950"\n'
    out += k_prep() + k_qkva() + k_attn()
    out += k_proj("proja_kernel", 'O', 16, XT_A, XT_B, ST_B, False)
    out += k_qkvb()
    out += k_proj("projb_kernel", 'OB', 40, XT_B, XT_A, ST_A, False)
    out += k_proj("projf_kernel", 'OB', 40, XT_B, None, None, True)
    return out

if __name__ == "__main__":
    dst = sys.argv[1] if len(sys.argv) > 1 else "cdna_kernels/" + NAME + ".s"
    open(dst, "w").write(build())
    print("wrote", dst)
```

```python
import sys, math
from lint import lint

NAME = "interleave_layers__softmax_full_mha__sliding_local_dilated__prompt"
S, D, H, DH = 2048, 640, 32, 20
XT_A = 0
XT_B = XT_A + S*D*2
OT   = XT_B + S*D*2
OBT  = OT + S*D*2
QIMG = OBT + S*D*2
KVIMG = QIMG + H*64*2560
ST_A = KVIMG + H*64*2560
ST_B = ST_A + S*64
U_A  = ST_B + S*64
U_B  = U_A + 8192
STAMPS = U_B + 8192
WS_END = STAMPS + 8*262144
import os
STAMP = int(os.environ.get("STAMP", "0"))
CSCALE = (DH ** -0.5) * math.log2(math.e)
import struct
def fbits(x): return "0x%08x" % struct.unpack("<I", struct.pack("<f", x))[0]

FM = [(0,16),(32,48),(80,96),(112,128),(64,144)]
def FX(ks, t):
    return 160*(ks//5) + FM[ks%5][t]

class KB:
    def __init__(s, name):
        s.name = name; s.L = []; s.vm = []; s.lg = []
    def e(s, line): s.L.append("    " + line)
    def c(s, txt): s.L.append("    ; " + txt)
    def label(s, l): s.L.append(l + ":")
    def vmop(s, line, tag=None): s.e(line); s.vm.append(tag); assert len(s.vm) <= 63, (s.name, len(s.vm))
    def dsop(s, line, tag=None): s.e(line); s.lg.append(tag)
    def _n(s, lst, tag):
        idx = max(i for i, t in enumerate(lst) if t == tag)
        return idx
    def waitvm(s, tag):
        if tag not in s.vm: return
        i = s._n(s.vm, tag); n = len(s.vm) - 1 - i
        s.e(f"s_waitcnt vmcnt({n})"); s.vm = s.vm[i+1:]
    def waitlg(s, tag):
        if tag not in s.lg: return
        i = s._n(s.lg, tag); n = len(s.lg) - 1 - i
        if n > 15: n = 15; i = len(s.lg) - 1 - n
        s.e(f"s_waitcnt lgkmcnt({n})"); s.lg = s.lg[i+1:]
    def waitall(s):
        s.e("s_waitcnt vmcnt(0) lgkmcnt(0)"); s.vm = []; s.lg = []
    def srd(s, r, base, nbytes):
        s.e(f"s_mov_b32 s{r}, s{base}")
        s.e(f"s_and_b32 s{r+1}, s{base+1}, 0xffff")
        s.e(f"s_mov_b32 s{r+2}, {nbytes}")
        s.e(f"s_mov_b32 s{r+3}, 0x20000")
    def stamp(s, i):
        if not STAMP: return
        s.e(f"s_memtime s[{64+2*i}:{65+2*i}]")
    def rstamp(s, i):
        if not STAMP: return
        s.e(f"s_memrealtime s[{64+2*i}:{65+2*i}]")
    def dump(s, n, slot):
        if not STAMP: return
        e = s.e
        e("s_waitcnt lgkmcnt(0)")
        e("s_mov_b64 exec, 1")
        e("s_lshl_b32 s60, s2, 4"); e("s_add_u32 s60, s60, s18"); e("s_lshl_b32 s60, s60, 6"); e(f"s_add_u32 s60, s60, {STAMPS + slot*262144}")
        e("v_mov_b32 v0, 0")
        for i in range(n):
            e(f"v_mov_b32 v1, s{64+2*i}")
            e(f"buffer_store_dword v1, v0, s[12:15], s60 offen offset:{4*i}")
    def text(s, vgpr, accum, sgpr=96):
        out = [".text", f".globl {s.name}", ".p2align 8", f".type {s.name},@function", f"{s.name}:"]
        out += s.L
        out += ['.section .rodata,"a"', ".p2align 6", f".amdhsa_kernel {s.name}",
                f"  .amdhsa_next_free_vgpr {vgpr}", f"  .amdhsa_next_free_sgpr {sgpr}", f"  .amdhsa_accum_offset {accum}",
                "  .amdhsa_group_segment_fixed_size 0", "  .amdhsa_kernarg_size 72", "  .amdhsa_user_sgpr_count 2",
                "  .amdhsa_user_sgpr_kernarg_segment_ptr 1", "  .amdhsa_system_sgpr_workgroup_id_x 1", ".end_amdhsa_kernel"]
        nb = lint(s.L, s.name)
        assert nb == 0, f"{nb} hazards in {s.name}"
        return "\n".join(out) + "\n"
    def allred32(s, op, v, t):
        s.e(f"v_mov_b32 v{t}, v{v}"); s.e("s_nop 1")
        s.e(f"v_permlane32_swap_b32 v{v}, v{t}"); s.e("s_nop 1")
        s.e(f"{op} v{v}, v{v}, v{t}")
    def allred16(s, op, v, t):
        s.e(f"v_mov_b32 v{t}, v{v}"); s.e("s_nop 1")
        s.e(f"v_permlane16_swap_b32 v{v}, v{t}"); s.e("s_nop 1")
        s.e(f"{op} v{v}, v{v}, v{t}")

def vr(a, n): return f"v[{a}:{a+n-1}]" if n > 1 else f"v{a}"
def ar(a, n): return f"a[{a}:{a+n-1}]" if n > 1 else f"a{a}"

def k_prep():
    k = KB("prep_kernel"); e = k.e
    e("s_cmp_ge_u32 s2, 248"); e("s_cbranch_scc1 prep_end")
    e("s_load_dwordx2 s[4:5], s[0:1], 0"); e("s_load_dwordx2 s[6:7], s[0:1], 64")
    e("s_load_dwordx2 s[20:21], s[0:1], 8"); e("s_load_dwordx2 s[22:23], s[0:1], 32")
    e("v_and_b32 v1, 63, v0"); e("v_lshrrev_b32 v2, 6, v0")
    e("s_waitcnt lgkmcnt(0)")
    k.srd(12, 6, WS_END)
    e("s_cmp_ge_u32 s2, 128"); e("s_cbranch_scc1 prep_u")
    k.srd(8, 4, S*D*2)
    e("v_and_b32 v3, 15, v1"); e("v_lshrrev_b32 v4, 4, v1")
    e("s_lshl_b32 s16, s2, 4"); e("v_add_u32 v5, s16, v3")
    e("v_mul_u32_u24 v6, 1280, v5")
    e("v_mul_u32_u24 v7, 320, v2"); e("v_add_u32 v6, v6, v7")
    e("v_lshl_add_u32 v6, v4, 3, v6")
    for i in range(5):
        for t in range(2):
            k.vmop(f"buffer_load_dwordx2 {vr(12+4*i+2*t,2)}, v6, s[8:11], 0 offen offset:{2*FM[i][t]}", "x")
    e("s_mul_i32 s17, s2, 20480"); e(f"s_add_u32 s17, s17, {XT_A}"); e("s_add_u32 s18, s17, 4096")
    e("v_mul_u32_u24 v7, 5120, v2"); e("v_lshl_add_u32 v7, v1, 4, v7")
    e("v_mov_b32 v8, 0"); e("v_mov_b32 v9, 0"); e("v_mov_b32 v10, 0"); e("v_mov_b32 v11, 0")
    e("v_mov_b32 v32, 0x3f803f80")
    k.waitvm("x")
    for i in range(5):
        if i < 4: k.vmop(f"buffer_store_dwordx4 {vr(12+4*i,4)}, v7, s[12:15], s17 offen offset:{1024*i}")
        else: k.vmop(f"buffer_store_dwordx4 {vr(12+4*i,4)}, v7, s[12:15], s18 offen")
    for r in range(12, 32):
        e(f"v_dot2_f32_bf16 v8, v{r}, v32, v8")
    for r in range(12, 32):
        e(f"v_dot2_f32_bf16 v9, v{r}, v{r}, v9")
    e("s_nop 2")
    k.allred16("v_add_f32", 8, 33); k.allred32("v_add_f32", 8, 33)
    k.allred16("v_add_f32", 9, 33); k.allred32("v_add_f32", 9, 33)
    e("v_lshlrev_b32 v5, 6, v5"); e("v_lshl_add_u32 v5, v2, 4, v5")
    e(f"s_mov_b32 s19, {ST_A}")
    e("s_mov_b64 exec, 0xffff")
    k.vmop("buffer_store_dwordx4 v[8:11], v5, s[12:15], s19 offen")
    e("s_endpgm")
    k.label("prep_u"); k.vm = []
    e("s_sub_u32 s16, s2, 128"); e("s_cmp_ge_u32 s16, 60")
    e("s_cselect_b32 s24, s22, s20"); e("s_cselect_b32 s25, s23, s21")
    e(f"s_cselect_b32 s26, {U_B-U_A}, 0"); e("s_cselect_b32 s27, 60, 0"); e(f"s_add_u32 s26, s26, {U_A}")
    e("s_sub_u32 s16, s16, s27")
    k.srd(8, 24, D*3*D*2)
    e("v_and_b32 v3, 3, v0"); e("v_lshrrev_b32 v4, 2, v0")
    e("v_mul_u32_u24 v5, 3840, v4"); e("v_lshl_add_u32 v5, v3, 4, v5")
    e("s_lshl_b32 s17, s16, 6")
    for i in range(10):
        k.vmop(f"buffer_load_dwordx4 {vr(16+4*i,4)}, v5, s[8:11], s17 offen", f"w{i}")
        if i < 9: e(f"s_add_u32 s17, s17, {64*3840}")
    for j in range(8): e(f"v_mov_b32 v{8+j}, 0")
    for i in range(10):
        k.waitvm(f"w{i}")
        for j in range(4):
            e(f"v_lshlrev_b32 v6, 16, v{16+4*i+j}"); e(f"v_and_b32 v7, 0xffff0000, v{16+4*i+j}")
            e(f"v_add_f32 v{8+2*j}, v{8+2*j}, v6"); e(f"v_add_f32 v{9+2*j}, v{9+2*j}, v7")
    e("v_lshlrev_b32 v5, 5, v0")
    e("ds_write_b128 v5, v[8:11]"); e("ds_write_b128 v5, v[12:15] offset:16")
    e("s_waitcnt lgkmcnt(0)"); e("s_barrier")
    e("v_cmp_gt_u32 vcc, 64, v0"); e("s_and_saveexec_b64 s[28:29], vcc"); e("s_cbranch_execz prep_end")
    e("v_and_b32 v3, 31, v0"); e("v_lshrrev_b32 v4, 5, v0")
    e("v_lshlrev_b32 v5, 2, v3"); e("v_lshl_add_u32 v5, v4, 12, v5")
    e("v_mov_b32 v8, 0")
    for b in range(4):
        for i in range(8): e(f"ds_read_b32 v{16+i}, v5 offset:{(8*b+i)*128}")
        e("s_waitcnt lgkmcnt(0)")
        for i in range(8): e(f"v_add_f32 v8, v8, v{16+i}")
    k.allred32("v_add_f32", 8, 9)
    e("v_lshlrev_b32 v5, 2, v3"); e("s_lshl_b32 s17, s16, 7"); e("s_add_u32 s17, s17, s26")
    e("buffer_store_dword v8, v5, s[12:15], s17 offen")
    k.label("prep_end"); e("s_endpgm")
    return k.text(64, 64)

def stats_finish(k, s1, s2, mean, rstd, t):
    e = k.e
    e(f"v_mul_f32 v{mean}, {fbits(1.0/D)}, v{s1}")
    e(f"v_mul_f32 v{t}, {fbits(1.0/D)}, v{s2}")
    e(f"v_fma_f32 v{t}, -v{mean}, v{mean}, v{t}")
    e(f"v_max_f32 v{t}, 0, v{t}")
    e(f"v_add_f32 v{t}, {fbits(1e-5)}, v{t}")
    e(f"v_rsq_f32 v{rstd}, v{t}")
    e("s_nop 0")

def split3(k, src, d, t, kind, maskv=None):
    e = k.e
    if kind == 'm':
        e(f"v_xor_b32 v{t+1}, 0x80000000, v{src}"); src = t+1
    e(f"v_and_b32 v{t}, 0xffff0000, v{src}")
    e(f"v_sub_f32 v{t+2}, v{src}, v{t}")
    if kind == 'u':
        e(f"v_cvt_pk_bf16_f32 v{d}, v{t}, v{t+2}")
        e(f"v_lshrrev_b32 v{d+1}, 16, v{t}")
    else:
        e(f"v_cvt_pk_bf16_f32 v{d}, v{t}, v{t}")
        e(f"v_cvt_pk_bf16_f32 v{d+1}, v{t+2}, 0")
    if maskv is not None:
        e(f"v_and_b32 v{d}, v{d}, v{maskv}"); e(f"v_and_b32 v{d+1}, v{d+1}, v{maskv}")

def k_qkva():
    k = KB("qkva_kernel"); e = k.e
    ACC, BF, RS = 64, 128, 160
    e("s_cmp_ge_u32 s2, 256"); e("s_cbranch_scc1 qkva_end"); k.stamp(0); k.rstamp(1)
    e("s_load_dwordx2 s[4:5], s[0:1], 8"); e("s_load_dwordx2 s[6:7], s[0:1], 64")
    e("s_and_b32 s20, s2, 7"); e("s_lshr_b32 s21, s2, 3")
    e("s_lshr_b32 s22, s20, 1"); e("s_lshl_b32 s22, s22, 2"); e("s_and_b32 s23, s21, 3"); e("s_add_u32 s16, s22, s23")
    e("s_and_b32 s22, s20, 1"); e("s_lshl_b32 s22, s22, 3"); e("s_lshr_b32 s23, s21, 2"); e("s_add_u32 s17, s22, s23")
    e("s_cmp_ge_u32 s17, 15"); e("s_cbranch_scc1 qkva_end")
    e("v_lshrrev_b32 v2, 6, v0"); e("v_and_b32 v1, 63, v0")
    e("v_readfirstlane_b32 s18, v2")
    e("v_and_b32 v3, 31, v1"); e("v_lshrrev_b32 v4, 5, v1")
    e("v_and_b32 v5, 15, v1"); e("v_lshrrev_b32 v6, 4, v1")
    e("v_bfe_u32 v7, v1, 4, 1"); e("v_mul_u32_u24 v8, 20480, v7"); e("v_lshl_add_u32 v8, v4, 8, v8"); e("v_lshl_add_u32 v8, v5, 4, v8")
    e("v_lshl_add_u32 v9, v2, 2, v6"); e("v_mul_u32_u24 v9, 3840, v9")
    e("v_lshrrev_b32 v10, 2, v5"); e("v_xor_b32 v10, v10, v6"); e("v_lshl_add_u32 v9, v10, 6, v9")
    e("v_and_b32 v10, 3, v1"); e("v_lshl_add_u32 v9, v10, 4, v9")
    e("s_lshl_b32 s22, s17, 8"); e("v_add_u32 v9, s22, v9")
    e("s_lshl_b32 s19, s16, 2"); e("s_add_u32 s19, s19, s18")
    e("s_mul_i32 s24, s19, 40960"); e(f"s_add_u32 s24, s24, {XT_A}")
    for i in range(1, 5): e(f"s_add_u32 s{24+i}, s24, {4096*i}")
    e("s_lshl_b32 s29, s18, 10")
    e("v_lshlrev_b32 v11, 6, v3"); e("v_lshl_add_u32 v11, v4, 5, v11")
    e("s_lshl_b32 s30, s19, 11"); e(f"s_add_u32 s30, s30, {ST_A}")
    e("v_lshlrev_b32 v12, 2, v3")
    e("s_lshl_b32 s31, s17, 9"); e(f"s_add_u32 s31, s31, {U_A}")
    e("s_waitcnt lgkmcnt(0)")
    k.stamp(2); k.srd(8, 4, D*3*D*2); k.srd(12, 6, WS_END)
    k.vmop("buffer_load_dwordx4 v[16:19], v11, s[12:15], s30 offen", "st")
    k.vmop("buffer_load_dwordx4 v[20:23], v11, s[12:15], s30 offen offset:16", "st")
    for jf in range(4): k.vmop(f"buffer_load_dword v{24+jf}, v12, s[12:15], s31 offen offset:{128*jf}", "st")
    def issue(ks):
        for u in range(2):
            k.vmop(f"buffer_load_dwordx4 {ar(8*ks+4*u,4)}, v8, s[12:15], s{24+ks//4} offen offset:{(ks%4)*1024+u*512}", f"d{ks}")
        for t in range(2):
            e(f"s_add_u32 m0, s29, {FX(ks,t)*256}"); e(f"s_mov_b32 s32, {FX(ks,t)*3840}")
            k.vmop("buffer_load_dwordx4 v9, s[8:11], s32 offen lds", f"d{ks}")
    NPRE = 14
    for ks in range(NPRE): issue(ks)
    e("v_lshrrev_b32 v13, 2, v5")
    e("v_lshl_add_u32 v14, v4, 2, v13"); e("v_lshlrev_b32 v14, 8, v14")
    e("v_lshl_add_u32 v14, v7, 5, v14"); e("v_lshl_add_u32 v14, v10, 3, v14")
    for jf in range(4):
        e(f"v_xor_b32 v15, {jf}, v13"); e(f"v_lshl_add_u32 v{40+jf}, v15, 6, v14")
    e("v_subrev_u32 v44, 1, v4")
    e("v_not_b32 v45, v44")
    k.waitvm("st")
    e("v_add_f32 v16, v16, v18"); e("v_add_f32 v17, v17, v19"); e("v_add_f32 v20, v20, v22"); e("v_add_f32 v21, v21, v23")
    e("v_add_f32 v16, v16, v20"); e("v_add_f32 v17, v17, v21")
    k.allred32("v_add_f32", 16, 18); k.allred32("v_add_f32", 17, 18)
    stats_finish(k, 16, 17, 46, 47, 18)
    split3(k, 46, 48, 18, 'm', 44)
    for jf in range(4): split3(k, 24+jf, 50+2*jf, 18, 'u')
    e("s_cmp_ge_u32 s17, 10"); e("s_cbranch_scc1 qkva_v")
    vm_save = list(k.vm)
    SYNC = {0:0, 1:1, 2:3, 4:5, 6:7, 8:9, 10:11, 12:13, 14:15, 16:17, 18:19}
    def mainloop(vmode):
        acc = lambda jf: vr(ACC+16*jf, 16)
        e("s_nop 1")
        for jf in range(4):
            if vmode: e(f"v_mfma_f32_32x32x8_bf16 {acc(jf)}, v[48:49], {vr(50+2*jf,2)}, 0")
            else:     e(f"v_mfma_f32_32x32x8_bf16 {acc(jf)}, {vr(50+2*jf,2)}, v[48:49], 0")
        def sync(ks):
            if ks in SYNC:
                k.waitvm(f"d{SYNC[ks]}"); e("s_barrier")
                if ks == 0: k.stamp(3)
                if ks == 10: k.stamp(7)
        def reads(n):
            ks, u = n//2, n%2
            if u == 0:
                sync(ks)
                if ks % 5 == 0 and ks > 0:
                    for jf in range(4): e(f"v_add_u32 v{40+jf}, 40960, v{40+jf}")
            for jf in range(4):
                for t in range(2):
                    off = (FX(ks,t) - 160*(ks//5) + 8*u)*256
                    k.dsop(f"ds_read_b64_tr_b16 {vr(BF+16*(n%2)+4*jf+2*t,2)}, v{40+jf} offset:{off}", f"b{n}")
        reads(0)
        for n in range(40):
            ks, u = n//2, n%2
            if n+1 < 40: reads(n+1)
            if u == 0 and NPRE + ks < 20: issue(NPRE + ks)
            k.waitlg(f"b{n}")
            for jf in range(4):
                a = ar(8*ks+4*u, 4); b = vr(BF+16*(n%2)+4*jf, 4)
                if vmode: e(f"v_mfma_f32_32x32x16_bf16 {acc(jf)}, {a}, {b}, {acc(jf)}")
                else:     e(f"v_mfma_f32_32x32x16_bf16 {acc(jf)}, {b}, {a}, {acc(jf)}")
    mainloop(False); k.stamp(4)
    e("s_cmp_ge_u32 s17, 5")
    e(f"s_cselect_b32 s33, {KVIMG-QIMG}, 0"); e(f"s_cselect_b32 s34, 1.0, {fbits(CSCALE)}"); e("s_cselect_b32 s35, 5, 0")
    e(f"s_add_u32 s33, s33, {QIMG}")
    e("s_sub_u32 s35, s17, s35")
    e("s_mul_i32 s36, s19, 2560"); e("s_add_u32 s33, s33, s36")
    e("v_mul_f32 v47, s34, v47")
    e("v_lshlrev_b32 v16, 4, v3"); e("v_lshlrev_b32 v19, 3, v3")
    e("v_and_b32 v17, v44, v16"); e("v_and_b32 v20, v45, v19"); e("v_or_b32 v17, v17, v20")
    e("v_and_b32 v18, v44, v19"); e("v_and_b32 v20, v45, v16"); e("v_or_b32 v18, v18, v20")
    e("s_nop 4")
    for jf in range(4):
        for r in range(16): e(f"v_mul_f32 v{ACC+16*jf+r}, v{ACC+16*jf+r}, v47")
        for r in range(8): e(f"v_cvt_pk_bf16_f32 v{BF+8*jf+r}, v{ACC+16*jf+2*r}, v{ACC+16*jf+2*r+1}")
    for v in range(1, 5):
        e(f"s_cmp_eq_u32 s35, {v}"); e(f"s_cbranch_scc1 qkva_e{v}")
    for v in range(5):
        if v: k.label(f"qkva_e{v}")
        for jf in range(4):
            for a in range(4):
                def off(G):
                    h, g5 = divmod(G, 5)
                    return (h*163840 + ((g5//2)*512 + (g5%2)*8 if g5 < 4 else 1024), 16 if g5 < 4 else 8)
                (o0, s0), (o1, s1) = off(32*v+8*jf+2*a), off(32*v+8*jf+2*a+1)
                base = {(16,16):16, (16,8):17, (8,16):18}[(s0,s1)]
                t = 20 + (4*jf+a) % 4
                if o1 >= o0: e(f"v_and_b32 v{t}, {o1-o0}, v45")
                else:        e(f"v_and_b32 v{t}, {o0-o1}, v44")
                e(f"s_add_u32 s36, s33, {min(o0,o1)}")
                e(f"v_add_u32 v{t}, v{t}, v{base}")
                e(f"buffer_store_dwordx2 {vr(BF+8*jf+2*a,2)}, v{t}, s[12:15], s36 offen")
        k.stamp(5); k.rstamp(6); k.dump(8, 0)
        e("s_endpgm")
    k.label("qkva_v"); k.vm = vm_save; k.lg = []
    e("v_lshlrev_b32 v16, 4, v4")
    for r in range(16):
        e(f"v_add_u32 v17, {(8*(r//4) + r%4)*4}, v16")
        k.dsop(f"ds_bpermute_b32 v{RS+r}, v17, v47", "rs")
        if r == 7: k.waitlg("rs")
    k.waitlg("rs")
    mainloop(True); k.stamp(4)
    e("s_sub_u32 s35, s17, 10"); e("s_lshl_b32 s35, s35, 7")
    e("s_mul_i32 s36, s19, 2560"); e(f"s_add_u32 s33, s36, {KVIMG+1280}")
    e("v_mul_u32_u24 v20, 320, v4")
    for jf in range(4):
        e(f"v_add_u32 v16, s35, v3")
        if jf: e(f"v_add_u32 v16, {32*jf}, v16")
        e("v_mul_u32_u24 v17, 52429, v16"); e("v_lshrrev_b32 v17, 20, v17")
        e("v_mul_u32_u24 v18, 20, v17"); e("v_sub_u32 v18, v16, v18")
        e("v_mul_u32_u24 v17, 163840, v17"); e("v_lshl_add_u32 v17, v18, 4, v17")
        e(f"v_add_u32 v{24+jf}, v17, v20")
    for jf in range(4):
        for r in range(16): e(f"v_mul_f32 v{ACC+16*jf+r}, v{ACC+16*jf+r}, v{RS+r}")
        for r in range(8): e(f"v_cvt_pk_bf16_f32 v{BF+8*jf+r}, v{ACC+16*jf+2*r}, v{ACC+16*jf+2*r+1}")
        for u in range(2):
            e(f"buffer_store_dwordx4 {vr(BF+8*jf+4*u,4)}, v{24+jf}, s[12:15], s33 offen offset:{640*u}")
    k.stamp(5); k.rstamp(6); k.dump(8, 0)
    k.label("qkva_end"); e("s_endpgm")
    return k.text(176+160, 176)

def k_attn():
    k = KB("attn_kernel"); e = k.e
    KA, KT, VA = 4, 5, 6
    Q, QT = 8, 12
    KF = [16, 24]; VF = [32, 40]; SS = [48, 64]; P = 80; O = 96; NM = 112
    e("s_cmp_ge_u32 s2, 256"); e("s_cbranch_scc1 attn_end"); k.stamp(0); k.rstamp(1)
    e("s_load_dwordx2 s[6:7], s[0:1], 64")
    e("s_and_b32 s20, s2, 7"); e("s_lshr_b32 s21, s2, 3")
    e("s_lshl_b32 s16, s20, 2"); e("s_and_b32 s22, s21, 3"); e("s_add_u32 s16, s16, s22")
    e("s_lshr_b32 s17, s21, 2")
    e("v_lshrrev_b32 v2, 6, v0"); e("v_and_b32 v1, 63, v0")
    e("v_readfirstlane_b32 s18, v2")
    e("v_and_b32 v3, 31, v1"); e("v_lshrrev_b32 v7, 5, v1")
    e(f"v_lshlrev_b32 v{KA}, 4, v1")
    e(f"v_lshlrev_b32 v{KT}, 3, v3")
    e("s_mul_i32 s19, s16, 163840")
    e("s_lshl_b32 s23, s17, 3"); e("s_add_u32 s23, s23, s18")
    e("s_mul_i32 s24, s23, 2560"); e("s_add_u32 s24, s24, s19"); e(f"s_add_u32 s24, s24, {QIMG}")
    e("s_lshl_b32 s25, s18, 10")
    e("s_add_u32 s26, s19, s25"); e(f"s_add_u32 s26, s26, {KVIMG}")
    e("s_waitcnt lgkmcnt(0)")
    k.stamp(2); k.srd(12, 6, WS_END)
    k.vmop(f"buffer_load_dwordx4 {vr(Q,4)}, v{KA}, s[12:15], s24 offen", "q")
    k.vmop(f"buffer_load_dwordx2 {vr(QT,2)}, v{KT}, s[12:15], s24 offen offset:1024", "q")
    for i in range(20):
        e(f"s_add_u32 m0, s25, {8192*i}")
        if i: e(f"s_add_u32 s26, s26, 8192")
        else: e("s_nop 0")
        k.vmop(f"buffer_load_dwordx4 v{KA}, s[12:15], s26 offen lds", f"i{i}")
    e(f"v_add_u32 v{KT}, 1024, v{KT}")
    e(f"v_mul_u32_u24 v{VA}, 20, v7"); e(f"v_add_u32 v{VA}, v{VA}, v3"); e(f"v_lshlrev_b32 v{VA}, 4, v{VA}")
    e(f"v_add_u32 v{VA}, 1280, v{VA}")
    e("s_mov_b32 s28, 0x000fffff"); e("s_mov_b32 s29, 0x000fffff")
    e("v_cmp_eq_u32 vcc, 20, v3"); e("v_mov_b32 v14, 0x3f803f80"); e("s_nop 0")
    e("v_cndmask_b32 v14, 0, v14, vcc")
    for r in range(16): e(f"v_mov_b32 v{VF[0]+r}, v14")
    for r in range(16): e(f"v_mov_b32 v{NM+r}, 0")
    e("v_subrev_u32 v15, 1, v7")
    k.waitvm("q")
    e(f"v_and_b32 v{QT}, v{QT}, v15"); e(f"v_and_b32 v{QT+1}, v{QT+1}, v15")
    e("s_mov_b32 s30, 0")
    k.waitvm("i1"); e("s_barrier"); k.stamp(3)
    n_sync1 = len(k.vm) - 1 - k._n(k.vm, "i5")
    k.label("attn_pass")
    for r in range(16): e(f"v_mov_b32 v{O+r}, 0")
    for r in range(4): e(f"v_mov_b32 v{P+4+r}, 0")
    def rdK(buf, off):
        e(f"ds_read_b128 {vr(KF[buf],4)}, v{KA} offset:{off}")
        e(f"ds_read_b64 {vr(KF[buf]+4,2)}, v{KT} offset:{off}")
    def rdV(buf, off):
        e("s_mov_b64 exec, s[28:29]")
        e(f"ds_read_b128 {vr(VF[buf],4)}, v{VA} offset:{off}")
        e(f"ds_read_b128 {vr(VF[buf]+4,4)}, v{VA} offset:{off+640}")
        e("s_mov_b64 exec, -1")
    def qkm(sb, kb): e(f"v_mfma_f32_32x32x16_bf16 {vr(SS[sb],16)}, {vr(KF[kb],4)}, {vr(Q,4)}, {vr(NM,16)}")
    def qkt(sb, kb): e(f"v_mfma_f32_32x32x8_bf16 {vr(SS[sb],16)}, {vr(KF[kb]+4,2)}, {vr(QT,2)}, {vr(SS[sb],16)}")
    def pv(vb, u):   e(f"v_mfma_f32_32x32x16_bf16 {vr(O,16)}, {vr(VF[vb]+4*u,4)}, {vr(P+4*u,4)}, {vr(O,16)}")
    rdK(0, 0); rdK(1, 2560); rdV(0, 0)
    e("s_waitcnt lgkmcnt(4)")
    qkm(0, 0); e("s_nop 10"); qkt(0, 0); e("s_nop 7")
    e("s_mov_b32 s31, 0")
    NT = 4
    body_start = len(k.L)
    k.label("attn_loop")
    for j in range(NT):
        p = j % 2; s = SS[p]
        ex = lambda i: e(f"v_exp_f32 v{s+i}, v{s+i}")
        cv = lambda i: e(f"v_cvt_pk_bf16_f32 v{P+i}, v{s+2*i}, v{s+2*i+1}")
        e("s_waitcnt lgkmcnt(0)")
        qkm(1-p, 1-p)
        rdK(p, (j+2)*2560)
        for i in range(0, 4): ex(i)
        pv(1-p, 1)
        rdV(1-p, (j+1)*2560)
        for i in range(4, 8): ex(i)
        for i in range(0, 4): cv(i)
        qkt(1-p, 1-p)
        for i in range(8, 12): ex(i)
        pv(p, 0)
        for i in range(12, 16): ex(i)
        for i in range(4, 8): cv(i)
    for r in (KA, KT, VA): e(f"v_add_u32 v{r}, {NT*2560}, v{r}")
    e("s_add_u32 s31, s31, 1")
    e("s_cmp_eq_u32 s30, 0"); e("s_cbranch_scc0 attn_nosync")
    e("s_cmp_eq_u32 s31, 1"); e("s_cbranch_scc0 attn_s2")
    e(f"s_waitcnt vmcnt({n_sync1})"); e("s_barrier"); e("s_branch attn_loop")
    k.label("attn_s2")
    e("s_cmp_eq_u32 s31, 4"); e("s_cbranch_scc0 attn_nosync")
    e("s_waitcnt vmcnt(0)"); e("s_barrier")
    k.label("attn_nosync")
    e(f"s_cmp_lt_u32 s31, {64//NT}"); e("s_cbranch_scc1 attn_loop")
    body = k.L[body_start:]
    assert lint(body + body, "attn_loop2") == 0
    pv(1, 1); k.stamp(4)
    e("s_waitcnt lgkmcnt(0)")
    e("s_nop 11")
    e(f"v_mov_b32 v16, v{O+8}"); e(f"v_mov_b32 v17, v{O+8}"); e("s_nop 1")
    e("v_permlane32_swap_b32 v16, v17")
    e(f"v_max3_f32 v18, abs(v{O}), abs(v{O+1}), abs(v{O+2})")
    for r in range(3, 11, 2): e(f"v_max3_f32 v18, abs(v{O+r}), abs(v{O+r+1}), v18")
    e(f"v_max_f32 v18, abs(v{O+11}), v18")
    e(f"s_mov_b32 s32, {fbits(2.0**-60)}"); e(f"s_mov_b32 s33, {fbits(2.0**100)}"); e(f"s_mov_b32 s34, {fbits(2.0**126)}")
    e("v_cmp_le_f32 vcc, s32, v17"); e("v_cmp_ge_f32 s[36:37], s33, v17"); e("v_cmp_gt_f32 s[38:39], s34, v18")
    e("s_nop 3")
    e("s_and_b64 s[36:37], s[36:37], vcc"); e("s_and_b64 s[36:37], s[36:37], s[38:39]")
    e("s_cmp_eq_u64 s[36:37], -1"); e("s_cbranch_scc1 attn_fin")
    e("s_cmp_eq_u32 s30, 0"); e("s_cbranch_scc0 attn_fin")
    e("s_mov_b32 s30, 1")
    for r in (KA, KT, VA): e(f"v_subrev_u32 v{r}, 163840, v{r}")
    e(f"v_mov_b32 v18, v{KA}"); e(f"v_mov_b32 v19, v{KT}"); e("v_mov_b32 v20, 0xff800000")
    e("s_mov_b32 s31, 0")
    k.label("attn_mx")
    e(f"ds_read_b128 {vr(24,4)}, v18"); e(f"ds_read_b64 {vr(28,2)}, v19")
    e("s_waitcnt lgkmcnt(0)")
    e(f"v_mfma_f32_32x32x16_bf16 {vr(SS[0],16)}, {vr(24,4)}, {vr(Q,4)}, 0"); e("s_nop 10")
    e(f"v_mfma_f32_32x32x8_bf16 {vr(SS[0],16)}, {vr(28,2)}, {vr(QT,2)}, {vr(SS[0],16)}"); e("s_nop 12")
    for r in range(0, 16, 2): e(f"v_max3_f32 v20, v{SS[0]+r}, v{SS[0]+r+1}, v20")
    e("v_add_u32 v18, 2560, v18"); e("v_add_u32 v19, 2560, v19")
    e("s_add_u32 s31, s31, 1"); e("s_cmp_lt_u32 s31, 64"); e("s_cbranch_scc1 attn_mx")
    k.allred32("v_max_f32", 20, 21)
    e("v_xor_b32 v20, 0x80000000, v20")
    for r in range(16): e(f"v_mov_b32 v{NM+r}, v20")
    for r in range(16): e(f"v_mov_b32 v{VF[0]+r}, v14")
    e("s_branch attn_pass")
    k.label("attn_fin")
    e("v_rcp_f32 v17, v17")
    e("s_mul_i32 s32, s23, 40960"); e(f"s_add_u32 s32, s32, {OT}")
    e("s_lshr_b32 s33, s16, 1"); e("s_lshl_b32 s33, s33, 10"); e("s_and_b32 s34, s16, 1"); e("s_lshl_b32 s34, s34, 9")
    e("s_add_u32 s33, s33, s34"); e("s_add_u32 s33, s33, s32")
    e("s_lshr_b32 s34, s16, 3"); e("s_add_u32 s34, s34, 16"); e("s_lshl_b32 s34, s34, 10"); e("s_add_u32 s34, s34, s32")
    e("s_and_b32 s35, s16, 3"); e("s_lshl_b32 s35, s35, 8"); e("s_add_u32 s34, s34, s35")
    e("s_bfe_u32 s35, s16, 0x10002"); e("s_lshl_b32 s35, s35, 3"); e("s_add_u32 s34, s34, s35")
    for r in range(12): e(f"v_mul_f32 v{O+r}, v{O+r}, v17")
    for r in range(6): e(f"v_cvt_pk_bf16_f32 v{P+r}, v{O+2*r}, v{O+2*r+1}")
    e("v_lshrrev_b32 v18, 4, v3"); e("v_mul_u32_u24 v18, 20480, v18"); e("v_and_b32 v19, 15, v3")
    e("v_lshl_add_u32 v18, v19, 4, v18"); e("v_lshl_add_u32 v19, v7, 8, v18")
    e(f"buffer_store_dwordx4 {vr(P,4)}, v19, s[12:15], s33 offen")
    e("s_mov_b32 exec_hi, 0")
    e(f"buffer_store_dwordx2 {vr(P+4,2)}, v18, s[12:15], s34 offen")
    k.stamp(5); k.rstamp(6); k.dump(8, 1)
    k.label("attn_end"); e("s_endpgm")
    return k.text(128, 128)

def k_proj(name, fmt, woff, xin, xout, stout, final):
    k = KB(name); e = k.e
    src = OT if fmt == 'O' else OBT
    A, ACC, BF, RESID = 64, 24, 144, 44
    e("s_cmp_ge_u32 s2, 256"); e(f"s_cbranch_scc1 {name}_end"); k.stamp(0); k.rstamp(1)
    e(f"s_load_dwordx2 s[4:5], s[0:1], {woff}"); e("s_load_dwordx2 s[6:7], s[0:1], 64")
    if final: e("s_load_dwordx2 s[40:41], s[0:1], 48")
    e("s_and_b32 s20, s2, 7"); e("s_lshr_b32 s21, s2, 3")
    e("s_lshr_b32 s22, s20, 1"); e("s_lshl_b32 s22, s22, 3"); e("s_and_b32 s23, s21, 7"); e("s_add_u32 s16, s22, s23")
    e("s_and_b32 s22, s20, 1"); e("s_lshl_b32 s22, s22, 2"); e("s_lshr_b32 s23, s21, 3"); e("s_add_u32 s17, s22, s23")
    e("v_lshrrev_b32 v2, 6, v0"); e("v_and_b32 v1, 63, v0")
    e("v_readfirstlane_b32 s18, v2")
    e("v_lshlrev_b32 v3, 4, v1")
    for i in range(5):
        e(f"v_add_u32 v9, {64*i}, v1"); e("v_mul_u32_u24 v10, 6554, v9"); e("v_lshrrev_b32 v10, 16, v10")
        e("v_mul_u32_u24 v11, 1120, v10"); e(f"v_lshl_add_u32 v{4+i}, v9, 4, v11")
    e("s_lshl_b32 s19, s16, 2"); e("s_add_u32 s19, s19, s18")
    e("s_mul_i32 s24, s19, 20480")
    e("s_lshr_b32 s33, s17, 1"); e("s_mul_i32 s33, s33, 5120"); e("s_add_u32 s33, s33, s24")
    e("s_and_b32 s34, s17, 1"); e("s_lshl_b32 s35, s34, 11"); e("s_add_u32 s35, s35, s33")
    e("s_lshl_b32 s34, s34, 3"); e("s_add_u32 s36, s33, s34"); e("s_add_u32 s36, s36, 4096")
    e(f"s_add_u32 s37, s35, {xin}"); e(f"s_add_u32 s38, s36, {xin}")
    e(f"s_add_u32 s24, s24, {src}")
    for i in range(1, 5): e(f"s_add_u32 s{24+i}, s24, {4096*i}")
    e("s_mul_i32 s29, s18, 5120")
    e("s_mul_i32 s30, s18, 40960"); e("s_mul_i32 s31, s17, 160"); e("s_add_u32 s30, s30, s31")
    e("s_waitcnt lgkmcnt(0)")
    k.stamp(2); k.srd(8, 4, D*D*2); k.srd(12, 6, WS_END)
    steps = []
    for ks in range(20):
        if ks < 16:
            rows = [40*ks + (8*t if fmt == 'O' else 20*t) for t in range(2)]
            mx = 40*ks + 35; base = 'L1'
        else:
            rows = [160*(ks-16) + 80*t + 16 for t in range(2)]
            mx = 160*(ks-16) + 159; base = 'L2'
        steps.append((mx // 128, ks, rows, base))
    steps.sort()
    k.vmop(f"buffer_load_dwordx4 {vr(RESID,4)}, v3, s[12:15], s37 offen", "r")
    k.vmop(f"buffer_load_dwordx4 {vr(RESID+4,4)}, v3, s[12:15], s37 offen offset:1024", "r")
    k.vmop(f"buffer_load_dwordx2 {vr(RESID+8,2)}, v3, s[12:15], s38 offen", "r")
    for c in range(5):
        for i in range(5):
            e(f"s_add_u32 m0, s29, {c*20480 + i*1024}")
            if i == 0: e(f"s_add_u32 s32, s30, {c*163840}")
            else: e("s_nop 0")
            k.vmop(f"buffer_load_dwordx4 v{4+i}, s[8:11], s32 offen lds", f"c{c}")
        for (cc, ks, _, _) in steps:
            if cc == c:
                k.vmop(f"buffer_load_dwordx4 {vr(A+4*ks,4)}, v3, s[12:15], s{24+ks//4} offen offset:{(ks%4)*1024}", f"c{c}")
    e("v_lshrrev_b32 v9, 4, v1"); e("v_bfe_u32 v10, v1, 2, 2"); e("v_and_b32 v11, 3, v1")
    if fmt == 'O':
        e("v_lshrrev_b32 v12, 1, v9"); e("v_mul_u32_u24 v12, 20, v12"); e("v_and_b32 v13, 1, v9"); e("v_lshl_add_u32 v12, v13, 2, v12")
    else:
        e("v_lshlrev_b32 v12, 2, v9")
    e("v_add_u32 v12, v12, v10"); e("v_mul_u32_u24 v12, 160, v12"); e("v_lshl_add_u32 v12, v11, 3, v12")
    e("v_mul_u32_u24 v13, 20, v9"); e("v_add_u32 v13, v13, v10"); e("v_mul_u32_u24 v13, 160, v13"); e("v_lshl_add_u32 v13, v11, 3, v13")
    e("v_add_u32 v14, 51200, v12"); e("v_add_u32 v15, 51200, v13")
    k.waitvm("r")
    for i in range(10):
        e(f"v_lshlrev_b32 v{ACC+2*i}, 16, v{RESID+i}"); e(f"v_and_b32 v{ACC+2*i+1}, 0xffff0000, v{RESID+i}")
    def reads(n):
        cc, ks, rows, base = steps[n]
        if n == 0 or steps[n-1][0] != cc:
            k.waitvm(f"c{cc}"); e("s_barrier")
            if cc == 0: k.stamp(3)
            if cc == 4: k.stamp(7)
        for nf in range(5):
            for t in range(2):
                off = rows[t]*160 + nf*32; b = 12 if base == 'L1' else 13
                if off >= 51200: off -= 51200; b += 2
                k.dsop(f"ds_read_b64_tr_b16 {vr(BF+20*(n%2)+4*nf+2*t,2)}, v{b} offset:{off}", f"b{n}")
    reads(0)
    for n in range(20):
        if n+1 < 20: reads(n+1)
        k.waitlg(f"b{n}")
        ks = steps[n][1]
        for nf in range(5):
            e(f"v_mfma_f32_16x16x32_bf16 {vr(ACC+4*nf,4)}, {vr(BF+20*(n%2)+4*nf,4)}, {vr(A+4*ks,4)}, {vr(ACC+4*nf,4)}")
    k.stamp(4)
    if final:
        k.srd(44, 40, S*D*2)
        e("v_and_b32 v16, 15, v1"); e("v_mul_u32_u24 v16, 1280, v16"); e("v_lshl_add_u32 v16, v9, 3, v16")
        e("s_mul_i32 s32, s19, 20480"); e("s_add_u32 s32, s32, s31")
        e("s_nop 3")
        for nf in range(5):
            for r in range(2): e(f"v_cvt_pk_bf16_f32 v{RESID+2*nf+r}, v{ACC+4*nf+2*r}, v{ACC+4*nf+2*r+1}")
            e(f"buffer_store_dwordx2 {vr(RESID+2*nf,2)}, v16, s[44:47], s32 offen offset:{32*nf}")
    else:
        e(f"s_add_u32 s37, s35, {xout}"); e(f"s_add_u32 s38, s36, {xout}")
        e("s_lshl_b32 s32, s19, 10"); e("s_lshl_b32 s33, s17, 3"); e("s_add_u32 s32, s32, s33"); e(f"s_add_u32 s32, s32, {stout}")
        e("v_and_b32 v16, 15, v1"); e("v_lshlrev_b32 v16, 6, v16")
        for i in range(10): e(f"v_cvt_pk_bf16_f32 v{RESID+i}, v{ACC+2*i}, v{ACC+2*i+1}")
        e(f"buffer_store_dwordx4 {vr(RESID,4)}, v3, s[12:15], s37 offen")
        e(f"buffer_store_dwordx4 {vr(RESID+4,4)}, v3, s[12:15], s37 offen offset:1024")
        e(f"buffer_store_dwordx2 {vr(RESID+8,2)}, v3, s[12:15], s38 offen")
        e(f"v_add_f32 v18, v{ACC}, v{ACC+1}"); e(f"v_mul_f32 v19, v{ACC}, v{ACC}"); e(f"v_fmac_f32 v19, v{ACC+1}, v{ACC+1}")
        for i in range(2, 20):
            e(f"v_add_f32 v18, v18, v{ACC+i}"); e(f"v_fmac_f32 v19, v{ACC+i}, v{ACC+i}")
        k.allred16("v_add_f32", 18, 20); k.allred16("v_add_f32", 19, 21)
        k.allred32("v_add_f32", 18, 20); k.allred32("v_add_f32", 19, 21)
        e("s_mov_b64 exec, 0xffff")
        e("buffer_store_dwordx2 v[18:19], v16, s[12:15], s32 offen")
    k.stamp(5); k.rstamp(6); k.dump(8, {'proja_kernel':2,'projb_kernel':4,'projf_kernel':5}[name])
    k.label(f"{name}_end"); e("s_endpgm")
    return k.text(184, 184)

def k_qkvb():
    k = KB("qkvb_kernel"); e = k.e
    ACC, BF = 64, 160
    RSV = 224
    acc = lambda b, F: ACC + 32*b + 4*F
    TOKF = (0, 1, 2, 3, 6); FEAF = (4, 5, 7); HALOF = (2, 3, 4, 5, 6, 7)
    OB = {0:[0,8,16,24], 1:[40,48,56,64], 2:[80,88,96,104], 3:[120,128,136,144], 4:[160,168,176,184], 5:[200,208,216,224],
          6:[32,72,112,152], 7:[192,232,240,248]}
    e("s_cmp_ge_u32 s2, 256"); e("s_cbranch_scc1 qkvb_end"); k.stamp(0); k.rstamp(1)
    e("s_load_dwordx2 s[4:5], s[0:1], 32"); e("s_load_dwordx2 s[6:7], s[0:1], 64")
    e("s_and_b32 s20, s2, 7"); e("s_lshr_b32 s21, s2, 3")
    e("s_lshr_b32 s22, s20, 1"); e("s_lshl_b32 s22, s22, 2"); e("s_and_b32 s23, s21, 3"); e("s_add_u32 s16, s22, s23")
    e("s_and_b32 s22, s20, 1"); e("s_lshl_b32 s22, s22, 3"); e("s_lshr_b32 s23, s21, 2"); e("s_add_u32 s17, s22, s23")
    e("v_lshrrev_b32 v2, 6, v0"); e("v_and_b32 v1, 63, v0")
    e("v_readfirstlane_b32 s18, v2")
    e("v_and_b32 v5, 15, v1"); e("v_lshrrev_b32 v6, 4, v1")
    e("v_lshlrev_b32 v3, 4, v1")
    e("v_and_b32 v7, 1, v2"); e("v_lshl_add_u32 v7, v7, 2, v6"); e("v_lshlrev_b32 v7, 1, v7"); e("v_xor_b32 v7, v7, v5")
    e("v_mul_u32_u24 v8, 52, v7"); e("v_lshrrev_b32 v8, 8, v8")
    e("v_mul_u32_u24 v9, 1200, v8"); e("v_lshl_add_u32 v9, v7, 4, v9")
    e("v_lshl_add_u32 v10, v2, 2, v6"); e("v_mul_u32_u24 v10, 3840, v10"); e("v_add_u32 v9, v9, v10")
    e("s_mul_i32 s22, s17, 80"); e("v_add_u32 v9, s22, v9")
    e("v_cmp_eq_u32 vcc, 15, v7"); e("v_mov_b32 v10, 0x40000000"); e("s_nop 0"); e("v_cndmask_b32 v9, v9, v10, vcc")
    e("s_lshl_b32 s19, s16, 3"); e("s_lshl_b32 s22, s18, 1"); e("s_add_u32 s19, s19, s22")
    e("s_max_u32 s22, s19, 1"); e("s_sub_u32 s22, s22, 1")
    e("s_mul_i32 s24, s22, 20480"); e(f"s_add_u32 s24, s24, {XT_B}")
    e("s_mul_i32 s25, s19, 20480"); e(f"s_add_u32 s25, s25, {XT_B}"); e("s_add_u32 s26, s25, 20480")
    e("s_lshl_b32 s27, s22, 10"); e(f"s_add_u32 s27, s27, {ST_B}")
    e("s_lshl_b32 s28, s19, 10"); e(f"s_add_u32 s28, s28, {ST_B}")
    e("s_lshl_b32 s29, s18, 10")
    e("v_lshlrev_b32 v11, 6, v5"); e("v_lshl_add_u32 v11, v6, 4, v11")
    e("v_lshrrev_b32 v12, 2, v5"); e("v_and_b32 v13, 3, v5")
    e("v_lshlrev_b32 v14, 2, v5")
    e("v_and_b32 v15, 1, v12"); e("v_mul_u32_u24 v15, 80, v15"); e("v_lshl_add_u32 v15, v13, 2, v15")
    e("v_lshrrev_b32 v16, 1, v12"); e("v_mul_u32_u24 v16, 2560, v16"); e("v_add_u32 v16, v16, v15")
    e("s_mul_i32 s30, s17, 160"); e(f"s_add_u32 s30, s30, {U_B}")
    e("s_add_u32 s31, s30, 2560"); e("s_add_u32 s33, s30, 5120")
    e("s_waitcnt lgkmcnt(0)")
    k.stamp(2); k.srd(8, 4, D*3*D*2); k.srd(12, 6, WS_END)
    k.vmop("buffer_load_dwordx4 v[20:23], v11, s[12:15], s27 offen", "st")
    k.vmop("buffer_load_dwordx4 v[24:27], v11, s[12:15], s28 offen", "st")
    k.vmop("buffer_load_dwordx4 v[28:31], v11, s[12:15], s28 offen offset:1024", "st")
    for F in range(6):
        k.vmop(f"buffer_load_dword v{32+F}, v14, s[12:15], s{[30,31,33][F//2]} offen offset:{80*(F%2)}", "st")
    k.vmop("buffer_load_dword v38, v16, s[12:15], s30 offen offset:64", "st")
    k.vmop("buffer_load_dword v39, v15, s[12:15], s33 offen offset:64", "st")
    def issue(ks):
        for b in range(3):
            if ks % 4 == 0 and ks > 0: e(f"s_add_u32 s{24+b}, s{24+b}, 4096")
            k.vmop(f"buffer_load_dwordx4 {ar(80*b+4*ks,4)}, v3, s[12:15], s{24+b} offen offset:{(ks%4)*1024}", f"d{ks}")
        for t in range(2):
            e(f"s_add_u32 m0, s29, {FX(ks,t)*256}"); e(f"s_mov_b32 s32, {FX(ks,t)*3840}")
            k.vmop("buffer_load_dwordx4 v9, s[8:11], s32 offen lds", f"d{ks}")
    NPRE = 10
    for ks in range(NPRE): issue(ks)
    e("v_lshl_add_u32 v17, v6, 2, v12")
    e("v_and_b32 v18, 7, v17"); e("v_lshlrev_b32 v18, 5, v18")
    e("v_lshlrev_b32 v17, 8, v17")
    for F in range(8):
        o = OB[F]
        if F < 6:
            e(f"v_lshl_add_u32 v19, v13, 3, {o[0]}" if o[0] <= 64 else f"v_lshlrev_b32 v19, 3, v13")
            if o[0] > 64: e(f"v_add_u32 v19, {o[0]}, v19")
        elif F == 6:
            e("v_mul_u32_u24 v19, 40, v13"); e("v_add_u32 v19, 32, v19")
        else:
            e("v_min_u32 v19, 1, v13"); e("v_lshlrev_b32 v19, 5, v19"); e("v_lshl_add_u32 v19, v13, 3, v19"); e("v_add_u32 v19, 192, v19")
        e("v_xor_b32 v19, v19, v18"); e(f"v_add_u32 v{40+F}, v19, v17")
    e("v_cmp_eq_u32 vcc, 0, v6"); e("s_nop 1"); e("v_cndmask_b32 v4, 0, -1, vcc")
    k.waitvm("st")
    for b in range(3):
        s = 20 + 4*b
        e(f"v_add_f32 v{s}, v{s}, v{s+2}"); e(f"v_add_f32 v{s+1}, v{s+1}, v{s+3}")
        k.allred16("v_add_f32", s, s+2); k.allred16("v_add_f32", s+1, s+3)
        k.allred32("v_add_f32", s, s+2); k.allred32("v_add_f32", s+1, s+3)
        stats_finish(k, s, s+1, s+2, 48+b, s+3)
        split3(k, s+2, 52+2*b, 17, 'm', 4)
    for F in range(8): split3(k, 32+F, BF+32+2*F, 17, 'u')
    e("v_lshlrev_b32 v17, 4, v6")
    for b in range(3):
        for r in range(4):
            e(f"v_add_u32 v18, {4*r}, v17")
            k.dsop(f"ds_bpermute_b32 v{RSV+4*b+r}, v18, v{48+b}", "rs")
    for b in range(3):
        for F in (range(8) if b else HALOF):
            U, M = vr(BF+32+2*F, 2), vr(52+2*b, 2)
            if F in TOKF: e(f"v_mfma_f32_16x16x16_bf16 {vr(acc(b,F),4)}, {U}, {M}, 0")
            else:         e(f"v_mfma_f32_16x16x16_bf16 {vr(acc(b,F),4)}, {M}, {U}, 0")
    k.waitlg("rs")
    SYNC = {0:0, 1:1, 2:3, 4:5, 6:7, 8:9, 10:11, 12:13, 14:15, 16:17, 18:19}
    def reads(ks, half):
        if half == 0:
            if ks in SYNC: k.waitvm(f"d{SYNC[ks]}"); e("s_barrier")
            if ks == 0: k.stamp(3)
            if ks == 10: k.stamp(7)
            if ks % 5 == 0 and ks > 0:
                for F in range(8): e(f"v_add_u32 v{40+F}, 40960, v{40+F}")
        for F in range(4*half, 4*half+4):
            for t in range(2):
                off = (FX(ks,t) - 160*(ks//5))*256
                k.dsop(f"ds_read_b64_tr_b16 {vr(BF+32*(ks%2)+4*F+2*t,2)}, v{40+F} offset:{off}", f"b{ks}_{half}")
    reads(0, 0); reads(0, 1)
    for ks in range(20):
        for half in range(2):
            k.waitlg(f"b{ks}_{half}")
            if ks+1 < 20: reads(ks+1, half)
            if half == 0 and NPRE + ks < 20: issue(NPRE + ks)
            for F in range(4*half, 4*half+4):
                for b in range(3):
                    if b == 0 and F not in HALOF: continue
                    a = ar(80*b+4*ks, 4); w = vr(BF+32*(ks%2)+4*F, 4); c = vr(acc(b,F), 4)
                    if F in TOKF: e(f"v_mfma_f32_16x16x32_bf16 {c}, {w}, {a}, {c}")
                    else:         e(f"v_mfma_f32_16x16x32_bf16 {c}, {a}, {w}, {c}")
    k.stamp(4)
    KO = lambda b, h: BF + 8*b + 4*h
    QO = lambda b, h: BF + 24 + 8*(b-1) + 4*h
    VO = lambda F, b: BF + 40 + 8*FEAF.index(F) + 2*b
    MC, MP, MP1 = 20, 24, 28
    NEG = fbits(-1e30)
    e("v_lshlrev_b32 v17, 2, v6"); e("v_sub_u32 v17, v5, v17")
    e(f"v_mov_b32 v19, {NEG}")
    for r in range(4):
        e(f"v_subrev_u32 v18, {r}, v17")
        e("v_and_b32 v16, 0x80000001, v18"); e("v_cmp_eq_u32 vcc, 0, v16"); e("s_nop 1")
        e(f"v_cndmask_b32 v{MC+r}, v19, 0, vcc")
        e("v_cmp_eq_u32 vcc, 0x80000000, v16"); e("s_nop 1")
        e(f"v_cndmask_b32 v{MP+r}, v19, 0, vcc")
    e("s_cmp_eq_u32 s19, 0"); e(f"s_cselect_b32 s34, {NEG}, 0")
    for r in range(4): e(f"v_add_f32 v{MP1+r}, s34, v{MP+r}")
    for b in (1, 2):
        e(f"v_mul_f32 v{32+b}, {fbits(CSCALE)}, v{48+b}")
    e("v_cmp_gt_u32 vcc, 2, v6"); e("s_nop 1")
    for b in (1, 2): e(f"v_cndmask_b32 v{35+b}, v{48+b}, v{32+b}, vcc")
    e("v_mov_b32 v35, v48")
    e("v_cmp_eq_u32 vcc, 2, v6"); e("s_nop 1"); e("v_cndmask_b32 v38, 0, -1, vcc")
    e("v_cmp_eq_u32 vcc, 3, v6"); e("s_nop 1"); e("v_cndmask_b32 v39, 0, -1, vcc")
    def scale_pack(b, F, sc, dst):
        a = acc(b, F)
        for r in range(4): e(f"v_mul_f32 v{a+r}, v{a+r}, v{sc(r)}")
        for r in range(2): e(f"v_cvt_pk_bf16_f32 v{dst+r}, v{a+2*r}, v{a+2*r+1}")
    for b in range(3):
        for h in range(2): scale_pack(b, 2+h, lambda r: 48+b, KO(b,h))
        scale_pack(b, 6, lambda r: 35+b, KO(b,0)+2)
        for r in range(2): e(f"v_mov_b32 v{KO(b,1)+2+r}, v{KO(b,0)+2+r}")
        for F in FEAF: scale_pack(b, F, lambda r: RSV+4*b+r, VO(F,b))
        if b:
            for h in range(2): scale_pack(b, h, lambda r: 32+b, QO(b,h))
            for r in range(2):
                e(f"v_mov_b32 v{40+2*r}, v{KO(b,0)+2+r}"); e(f"v_mov_b32 v{41+2*r}, v{KO(b,0)+2+r}")
            e("s_nop 0")
            for r in range(2): e(f"v_permlane32_swap_b32 v{40+2*r}, v{41+2*r}")
            e("s_nop 0")
            for h in range(2):
                for r in range(2): e(f"v_and_b32 v{QO(b,h)+2+r}, v{40+2*r}, v{38+h}")
    units = [(b, h) for b in (1, 2) for h in range(2)]
    SU = lambda i: ACC + 8*i
    TU = lambda i: ACC + 32 + 4*i
    PU = lambda i: ACC + 48 + 4*i
    OU = lambda i: ACC + 64 + 8*i
    e("s_nop 1")
    for i, (b, h) in enumerate(units):
        e(f"v_mfma_f32_16x16x32_bf16 {vr(SU(i),4)}, {vr(KO(b-1,h),4)}, {vr(QO(b,h),4)}, {vr(MP1 if b == 1 else MP,4)}")
        e(f"v_mfma_f32_16x16x32_bf16 {vr(SU(i)+4,4)}, {vr(KO(b,h),4)}, {vr(QO(b,h),4)}, {vr(MC,4)}")
    e("s_nop 3")
    def allred(op):
        for sw in ("v_permlane16_swap_b32", "v_permlane32_swap_b32"):
            for i in range(4): e(f"v_mov_b32 v{TU(i)+1}, v{TU(i)}")
            for i in range(4): e(f"{sw} v{TU(i)}, v{TU(i)+1}")
            for i in range(4): e(f"{op} v{TU(i)}, v{TU(i)}, v{TU(i)+1}")
    for i in range(4):
        s = SU(i)
        e(f"v_max3_f32 v{TU(i)}, v{s}, v{s+1}, v{s+2}"); e(f"v_max3_f32 v{TU(i)}, v{s+3}, v{s+4}, v{TU(i)}")
        e(f"v_max3_f32 v{TU(i)}, v{s+5}, v{s+6}, v{TU(i)}"); e(f"v_max_f32 v{TU(i)}, v{s+7}, v{TU(i)}")
    allred("v_max_f32")
    for i in range(4):
        for r in range(8): e(f"v_sub_f32 v{SU(i)+r}, v{SU(i)+r}, v{TU(i)}")
    for i in range(4):
        for r in range(8): e(f"v_exp_f32 v{SU(i)+r}, v{SU(i)+r}")
    for i in range(4):
        s = SU(i)
        e(f"v_add_f32 v{TU(i)}, v{s}, v{s+1}")
        for r in range(2, 8): e(f"v_add_f32 v{TU(i)}, v{TU(i)}, v{s+r}")
    allred("v_add_f32")
    for i in range(4): e(f"v_rcp_f32 v{TU(i)}, v{TU(i)}")
    for i in range(4):
        for r in range(8): e(f"v_mul_f32 v{SU(i)+r}, v{SU(i)+r}, v{TU(i)}")
        for r in range(4): e(f"v_cvt_pk_bf16_f32 v{PU(i)+r}, v{SU(i)+2*r}, v{SU(i)+2*r+1}")
    e("s_nop 1")
    for i, (b, h) in enumerate(units):
        e(f"v_mfma_f32_16x16x32_bf16 {vr(OU(i),4)}, {vr(VO(4+h,b-1),4)}, {vr(PU(i),4)}, 0")
        e(f"v_mfma_f32_16x16x32_bf16 {vr(OU(i)+4,4)}, {vr(VO(7,b-1),4)}, {vr(PU(i),4)}, 0")
    e("s_mul_i32 s24, s19, 20480"); e(f"s_add_u32 s24, s24, {OBT}")
    e("s_lshl_b32 s25, s17, 10"); e("s_add_u32 s25, s25, s24"); e("s_add_u32 s26, s25, 20480")
    e("s_lshr_b32 s27, s17, 2"); e("s_add_u32 s27, s27, 16"); e("s_lshl_b32 s27, s27, 10"); e("s_add_u32 s27, s27, s24")
    e("s_and_b32 s28, s17, 1"); e("s_lshl_b32 s28, s28, 9"); e("s_add_u32 s27, s27, s28")
    e("s_bfe_u32 s28, s17, 0x10001"); e("s_lshl_b32 s28, s28, 3"); e("s_add_u32 s27, s27, s28"); e("s_add_u32 s28, s27, 20480")
    e("v_cmp_eq_u32 vcc, 0, v6")
    for bi in range(2):
        o0, o1 = OU(2*bi), OU(2*bi+1); d = 40 + 8*bi
        e(f"v_cvt_pk_bf16_f32 v{d}, v{o0}, v{o0+1}"); e(f"v_cvt_pk_bf16_f32 v{d+1}, v{o0+2}, v{o0+3}")
        e(f"v_cvt_pk_bf16_f32 v{d+2}, v{o1}, v{o1+1}"); e(f"v_cvt_pk_bf16_f32 v{d+3}, v{o1+2}, v{o1+3}")
        e(f"buffer_store_dwordx4 {vr(d,4)}, v3, s[12:15], s{25+bi} offen")
        for r in range(4): e(f"v_cndmask_b32 v{o0+4+r}, v{o1+4+r}, v{o0+4+r}, vcc")
        e(f"v_cvt_pk_bf16_f32 v{d+4}, v{o0+4}, v{o0+5}"); e(f"v_cvt_pk_bf16_f32 v{d+5}, v{o0+6}, v{o0+7}")
    e("s_mov_b32 exec_hi, 0")
    for bi in range(2): e(f"buffer_store_dwordx2 {vr(44+8*bi,2)}, v3, s[12:15], s{27+bi} offen")
    k.stamp(5); k.rstamp(6); k.dump(8, 3)
    k.label("qkvb_end"); e("s_endpgm")
    return k.text(236+240, 236)

def build():
    L = [("prep_kernel", 248, 256, 8192)]
    for it in range(2):
        L += [("qkva_kernel", 256, 256, 163840), ("attn_kernel", 256, 512, 163840), ("proja_kernel", 256, 256, 102400),
              ("qkvb_kernel", 256, 256, 163840), ("projb_kernel" if it == 0 else "projf_kernel", 256, 256, 102400)]
    hdr = open("cdna_kernels/" + NAME + ".s.ref").read().split("; Override launch")[0]
    out = hdr
    for n, g, b, lds in L: out += f"; @launch kernel={n} grid=({g},1,1) block=({b},1,1) lds={lds}\n"
    out += '.amdgcn_target "amdgcn-amd-amdhsa--gfx950"\n'
    out += k_prep() + k_qkva() + k_attn()
    out += k_proj("proja_kernel", 'O', 16, XT_A, XT_B, ST_B, False)
    out += k_qkvb()
    out += k_proj("projb_kernel", 'OB', 40, XT_B, XT_A, ST_A, False)
    out += k_proj("projf_kernel", 'OB', 40, XT_B, None, None, True)
    return out

if __name__ == "__main__":
    dst = sys.argv[1] if len(sys.argv) > 1 else "cdna_kernels/" + NAME + ".s"
    open(dst, "w").write(build())
    print("wrote", dst)
```

```python
import sys, math
from lint import lint

NAME = "interleave_layers__softmax_full_mha__sliding_local_dilated__prompt"
S, D, H, DH = 2048, 640, 32, 20
XT_A = 0
XT_B = XT_A + S*D*2
OT   = XT_B + S*D*2
OBT  = OT + S*D*2
QIMG = OBT + S*D*2
KVIMG = QIMG + H*64*2560
ST_A = KVIMG + H*64*2560
ST_B = ST_A + S*64
U_A  = ST_B + S*64
U_B  = U_A + 32768
WA_I = U_B + 32768
WOA_I = WA_I + 15*163840
WB_I = WOA_I + 819200
WOB_I = WB_I + 16*163840
STAMPS = WOB_I + 819200
WS_END = STAMPS + 8*262144
import os
STAMP = int(os.environ.get("STAMP", "0"))
ATTN_WAVES = 8
AV = os.environ.get("AV", "")
CSCALE = (DH ** -0.5) * math.log2(math.e)
import struct
def fbits(x): return "0x%08x" % struct.unpack("<I", struct.pack("<f", x))[0]

FM = [(0,16),(32,48),(80,96),(112,128),(64,144)]
def FX(ks, t):
    return 160*(ks//5) + FM[ks%5][t]

class KB:
    def __init__(s, name):
        s.name = name; s.L = []; s.vm = []; s.lg = []
    def e(s, line): s.L.append("    " + line)
    def c(s, txt): s.L.append("    ; " + txt)
    def label(s, l): s.L.append(l + ":")
    def vmop(s, line, tag=None): s.e(line); s.vm.append(tag); assert len(s.vm) <= 63, (s.name, len(s.vm))
    def dsop(s, line, tag=None): s.e(line); s.lg.append(tag)
    def _n(s, lst, tag):
        idx = max(i for i, t in enumerate(lst) if t == tag)
        return idx
    def waitvm(s, tag):
        if tag not in s.vm: return
        i = s._n(s.vm, tag); n = len(s.vm) - 1 - i
        s.e(f"s_waitcnt vmcnt({n})"); s.vm = s.vm[i+1:]
    def waitlg(s, tag):
        if tag not in s.lg: return
        i = s._n(s.lg, tag); n = len(s.lg) - 1 - i
        if n > 15: n = 15; i = len(s.lg) - 1 - n
        s.e(f"s_waitcnt lgkmcnt({n})"); s.lg = s.lg[i+1:]
    def waitall(s):
        s.e("s_waitcnt vmcnt(0) lgkmcnt(0)"); s.vm = []; s.lg = []
    def srd(s, r, base, nbytes):
        s.e(f"s_mov_b32 s{r}, s{base}")
        s.e(f"s_and_b32 s{r+1}, s{base+1}, 0xffff")
        s.e(f"s_mov_b32 s{r+2}, {nbytes}")
        s.e(f"s_mov_b32 s{r+3}, 0x20000")
    def stamp(s, i):
        if not STAMP: return
        s.e(f"s_memtime s[{64+2*i}:{65+2*i}]")
    def rstamp(s, i):
        if not STAMP: return
        s.e(f"s_memrealtime s[{64+2*i}:{65+2*i}]")
    def dump(s, n, slot):
        if not STAMP: return
        e = s.e
        e("s_waitcnt lgkmcnt(0)")
        e("s_mov_b64 exec, 1")
        e("s_lshl_b32 s60, s2, 4"); e("s_add_u32 s60, s60, s18"); e("s_lshl_b32 s60, s60, 6"); e(f"s_add_u32 s60, s60, {STAMPS + slot*262144}")
        e("v_mov_b32 v0, 0")
        for i in range(n):
            e(f"v_mov_b32 v1, s{64+2*i}")
            e(f"buffer_store_dword v1, v0, s[12:15], s60 offen offset:{4*i}")
    def text(s, vgpr, accum, sgpr=96):
        out = [".text", f".globl {s.name}", ".p2align 8", f".type {s.name},@function", f"{s.name}:"]
        out += s.L
        out += ['.section .rodata,"a"', ".p2align 6", f".amdhsa_kernel {s.name}",
                f"  .amdhsa_next_free_vgpr {vgpr}", f"  .amdhsa_next_free_sgpr {sgpr}", f"  .amdhsa_accum_offset {accum}",
                "  .amdhsa_group_segment_fixed_size 0", "  .amdhsa_kernarg_size 72", "  .amdhsa_user_sgpr_count 2",
                "  .amdhsa_user_sgpr_kernarg_segment_ptr 1", "  .amdhsa_system_sgpr_workgroup_id_x 1", ".end_amdhsa_kernel"]
        nb = lint(s.L, s.name)
        assert nb == 0, f"{nb} hazards in {s.name}"
        return "\n".join(out) + "\n"
    def allred32(s, op, v, t):
        s.e(f"v_mov_b32 v{t}, v{v}"); s.e("s_nop 1")
        s.e(f"v_permlane32_swap_b32 v{v}, v{t}"); s.e("s_nop 1")
        s.e(f"{op} v{v}, v{v}, v{t}")
    def allred16(s, op, v, t):
        s.e(f"v_mov_b32 v{t}, v{v}"); s.e("s_nop 1")
        s.e(f"v_permlane16_swap_b32 v{v}, v{t}"); s.e("s_nop 1")
        s.e(f"{op} v{v}, v{v}, v{t}")

def vr(a, n): return f"v[{a}:{a+n-1}]" if n > 1 else f"v{a}"
def ar(a, n): return f"a[{a}:{a+n-1}]" if n > 1 else f"a{a}"

def k_prep():
    k = KB("prep_kernel"); e = k.e
    NX, NA, NB, NO = 128, 60, 64, 64
    e(f"s_cmp_ge_u32 s2, {NX+NA+NB+NO}"); e("s_cbranch_scc1 prep_end")
    e("s_load_dwordx2 s[4:5], s[0:1], 0"); e("s_load_dwordx2 s[6:7], s[0:1], 64")
    e("s_load_dwordx4 s[20:23], s[0:1], 8"); e("s_load_dwordx4 s[24:27], s[0:1], 32")
    e("v_and_b32 v1, 63, v0"); e("v_lshrrev_b32 v2, 6, v0")
    e("s_waitcnt lgkmcnt(0)")
    k.srd(12, 6, WS_END)
    e(f"s_cmp_ge_u32 s2, {NX+NA+NB}"); e("s_cbranch_scc1 prep_o")
    e(f"s_cmp_ge_u32 s2, {NX+NA}"); e("s_cbranch_scc1 prep_b")
    e(f"s_cmp_ge_u32 s2, {NX}"); e("s_cbranch_scc1 prep_u")
    k.srd(8, 4, S*D*2)
    e("s_and_b32 s16, s2, 7"); e("s_lshl_b32 s16, s16, 4"); e("s_lshr_b32 s17, s2, 3"); e("s_add_u32 s3, s16, s17")
    e("v_and_b32 v3, 15, v1"); e("v_lshrrev_b32 v4, 4, v1")
    e("s_lshl_b32 s16, s3, 4"); e("v_add_u32 v5, s16, v3")
    e("v_mul_u32_u24 v6, 1280, v5")
    e("v_mul_u32_u24 v7, 320, v2"); e("v_add_u32 v6, v6, v7")
    e("v_lshl_add_u32 v6, v4, 3, v6")
    for i in range(5):
        for t in range(2):
            k.vmop(f"buffer_load_dwordx2 {vr(12+4*i+2*t,2)}, v6, s[8:11], 0 offen offset:{2*FM[i][t]} nt", "x")
    e("s_mul_i32 s17, s3, 20480"); e(f"s_add_u32 s17, s17, {XT_A}"); e("s_add_u32 s18, s17, 4096")
    e("v_mul_u32_u24 v7, 5120, v2"); e("v_lshl_add_u32 v7, v1, 4, v7")
    e("v_mov_b32 v8, 0"); e("v_mov_b32 v9, 0"); e("v_mov_b32 v10, 0"); e("v_mov_b32 v11, 0")
    e("v_mov_b32 v32, 0x3f803f80")
    k.waitvm("x")
    for i in range(5):
        if i < 4: k.vmop(f"buffer_store_dwordx4 {vr(12+4*i,4)}, v7, s[12:15], s17 offen offset:{1024*i}")
        else: k.vmop(f"buffer_store_dwordx4 {vr(12+4*i,4)}, v7, s[12:15], s18 offen")
    for r in range(12, 32):
        e(f"v_dot2_f32_bf16 v8, v{r}, v32, v8")
    for r in range(12, 32):
        e(f"v_dot2_f32_bf16 v9, v{r}, v{r}, v9")
    e("s_nop 2")
    k.allred16("v_add_f32", 8, 33); k.allred32("v_add_f32", 8, 33)
    k.allred16("v_add_f32", 9, 33); k.allred32("v_add_f32", 9, 33)
    e("v_lshlrev_b32 v5, 6, v5"); e("v_lshl_add_u32 v5, v2, 4, v5")
    e(f"s_mov_b32 s19, {ST_A}")
    e("s_mov_b64 exec, 0xffff")
    k.vmop("buffer_store_dwordx4 v[8:11], v5, s[12:15], s19 offen")
    e("s_endpgm")
    def colsum(regs, acc):
        for r in regs: e(f"v_dot2_f32_bf16 v{acc}, v{r}, v60, v{acc}")
    k.label("prep_u"); k.vm = []
    e(f"s_sub_u32 s16, s2, {NX}"); e("s_and_b32 s17, s16, 3"); e("s_lshr_b32 s16, s16, 2")
    k.srd(8, 20, D*3*D*2)
    e("v_readfirstlane_b32 s18, v2")
    e("v_and_b32 v5, 15, v1"); e("v_lshrrev_b32 v6, 4, v1"); e("v_and_b32 v10, 3, v1")
    e("v_lshl_add_u32 v9, v2, 2, v6"); e("v_mul_u32_u24 v9, 3840, v9")
    e("v_lshrrev_b32 v7, 2, v5"); e("v_xor_b32 v8, v7, v6"); e("v_lshl_add_u32 v9, v8, 6, v9"); e("v_lshl_add_u32 v9, v10, 4, v9")
    e(f"s_mul_i32 s19, s17, {160*3840}"); e("s_lshl_b32 s28, s16, 8"); e("s_add_u32 s19, s19, s28"); e("s_lshl_b32 s29, s18, 10")
    for i in range(10):
        e(f"s_add_u32 m0, s29, {4096*i}")
        e(f"s_add_u32 s28, s19, {16*3840*i}")
        e("buffer_load_dwordx4 v9, s[8:11], s28 offen nt lds")
    e("v_lshrrev_b32 v4, 5, v1"); e("v_lshl_add_u32 v11, v4, 2, v7"); e("v_lshlrev_b32 v11, 8, v11")
    e("v_bfe_u32 v8, v1, 4, 1"); e("v_lshl_add_u32 v11, v8, 5, v11"); e("v_lshl_add_u32 v11, v10, 3, v11")
    e("v_xor_b32 v8, v2, v7"); e("v_lshl_add_u32 v11, v8, 6, v11")
    e("v_lshlrev_b32 v3, 4, v1"); e("v_mov_b32 v60, 0x3f803f80"); e("v_mov_b32 v8, 0")
    e("s_mul_i32 s19, s16, 163840"); e("s_mul_i32 s28, s17, 40960"); e("s_add_u32 s19, s19, s28"); e("s_add_u32 s19, s19, s29"); e(f"s_add_u32 s19, s19, {WA_I}")
    e("s_waitcnt vmcnt(0)"); e("s_barrier")
    for n in range(10):
        for t in range(2): e(f"ds_read_b64_tr_b16 {vr(16+4*n+2*t,2)}, v11 offset:{(FM[n//2][t]+8*(n%2))*256}")
        if n == 5: e("s_waitcnt lgkmcnt(0)")
    e("s_waitcnt lgkmcnt(0)")
    for n in range(10):
        e(f"buffer_store_dwordx4 {vr(16+4*n,4)}, v3, s[12:15], s19 offen")
        if n < 9: e("s_add_u32 s19, s19, 4096")
    colsum(range(16, 56), 8); e("s_nop 2")
    k.allred32("v_add_f32", 8, 9)
    e("v_and_b32 v5, 31, v1"); e("v_lshlrev_b32 v5, 4, v5")
    e("s_lshl_b32 s19, s16, 11"); e("s_lshl_b32 s28, s18, 9"); e("s_add_u32 s19, s19, s28"); e("s_lshl_b32 s28, s17, 2"); e("s_add_u32 s19, s19, s28"); e(f"s_add_u32 s19, s19, {U_A}")
    e("s_mov_b32 exec_hi, 0")
    e("buffer_store_dword v8, v5, s[12:15], s19 offen")
    e("s_endpgm")
    k.label("prep_b")
    e(f"s_sub_u32 s16, s2, {NX+NA}"); e("s_and_b32 s17, s16, 3"); e("s_lshr_b32 s16, s16, 2")
    k.srd(8, 24, D*3*D*2)
    e("v_readfirstlane_b32 s18, v2")
    e("v_and_b32 v5, 15, v1"); e("v_lshrrev_b32 v6, 4, v1")
    e("v_and_b32 v7, 1, v2"); e("v_lshl_add_u32 v7, v7, 2, v6"); e("v_lshlrev_b32 v7, 1, v7"); e("v_xor_b32 v7, v7, v5"); e("v_min_u32 v7, 14, v7")
    e("v_mul_u32_u24 v8, 52, v7"); e("v_lshrrev_b32 v8, 8, v8"); e("v_mul_u32_u24 v9, 1200, v8"); e("v_lshl_add_u32 v9, v7, 4, v9")
    e("v_lshl_add_u32 v10, v2, 2, v6"); e("v_mul_u32_u24 v10, 3840, v10"); e("v_add_u32 v9, v9, v10")
    e(f"s_mul_i32 s19, s17, {160*3840}"); e("s_mul_i32 s28, s16, 80"); e("s_add_u32 s19, s19, s28"); e("s_lshl_b32 s29, s18, 10")
    for i in range(10):
        e(f"s_add_u32 m0, s29, {4096*i}")
        e(f"s_add_u32 s28, s19, {16*3840*i}")
        e("buffer_load_dwordx4 v9, s[8:11], s28 offen nt lds")
    e("v_lshrrev_b32 v12, 2, v5"); e("v_and_b32 v13, 3, v5")
    e("s_mul_i32 s28, s18, 80"); e("v_lshlrev_b32 v10, 3, v13"); e("v_add_u32 v10, s28, v10"); e("v_add_u32 v11, 40, v10")
    e("s_cmp_lt_u32 s18, 3"); e("s_cbranch_scc1 prep_b1")
    e("v_mul_u32_u24 v10, 40, v13"); e("v_add_u32 v10, 32, v10")
    e("v_and_b32 v11, 1, v13"); e("v_mul_u32_u24 v11, 40, v11"); e("v_add_u32 v11, 192, v11")
    k.label("prep_b1")
    e("v_lshl_add_u32 v14, v6, 2, v12"); e("v_and_b32 v15, 7, v14"); e("v_lshlrev_b32 v15, 5, v15"); e("v_lshlrev_b32 v14, 8, v14")
    e("v_xor_b32 v10, v10, v15"); e("v_add_u32 v10, v10, v14"); e("v_xor_b32 v11, v11, v15"); e("v_add_u32 v11, v11, v14")
    e("v_lshlrev_b32 v3, 4, v1"); e("v_mov_b32 v60, 0x3f803f80"); e("v_mov_b32 v8, 0"); e("v_mov_b32 v9, 0")
    e("s_mul_i32 s19, s16, 163840"); e("s_mul_i32 s28, s17, 40960"); e("s_add_u32 s19, s19, s28"); e("s_lshl_b32 s28, s18, 11"); e("s_add_u32 s19, s19, s28"); e(f"s_add_u32 s19, s19, {WB_I}")
    e("s_waitcnt vmcnt(0)"); e("s_barrier")
    for n in range(10):
        for t in range(2): e(f"ds_read_b64_tr_b16 {vr(16+4*n+2*t,2)}, v{10+n%2} offset:{FM[n//2][t]*256}")
        if n == 5: e("s_waitcnt lgkmcnt(0)")
    e("s_waitcnt lgkmcnt(0)")
    for n in range(10):
        e(f"buffer_store_dwordx4 {vr(16+4*n,4)}, v3, s[12:15], s19 offen offset:{1024*(n%2)}")
        if n % 2 and n < 9: e("s_add_u32 s19, s19, 8192")
    for f in range(2): colsum([16+8*m+4*f+q for m in range(5) for q in range(4)], 8+f)
    e("s_nop 2")
    for f in range(2): k.allred16("v_add_f32", 8+f, 12); k.allred32("v_add_f32", 8+f, 12)
    e("v_lshlrev_b32 v5, 4, v5")
    e("s_lshl_b32 s19, s16, 11"); e("s_lshl_b32 s28, s18, 9"); e("s_add_u32 s19, s19, s28"); e("s_lshl_b32 s28, s17, 2"); e("s_add_u32 s19, s19, s28"); e(f"s_add_u32 s19, s19, {U_B}")
    e("s_mov_b64 exec, 0xffff")
    e("buffer_store_dword v8, v5, s[12:15], s19 offen"); e("buffer_store_dword v9, v5, s[12:15], s19 offen offset:256")
    e("s_endpgm")
    k.label("prep_o")
    e(f"s_sub_u32 s16, s2, {NX+NA+NB}"); e("s_and_b32 s17, s16, 3"); e("s_lshr_b32 s30, s16, 5"); e("s_bfe_u32 s16, s16, 0x30002")
    e("s_cmp_eq_u32 s30, 1")
    e("s_cselect_b32 s28, s26, s22"); e("s_cselect_b32 s29, s27, s23"); e(f"s_cselect_b32 s31, {WOB_I-WOA_I}, 0")
    k.srd(8, 28, D*D*2)
    e("v_readfirstlane_b32 s18, v2")
    def pat(dst, src):
        e(f"v_mul_u32_u24 v10, 6554, v{src}"); e("v_lshrrev_b32 v10, 16, v10"); e("v_mul_u32_u24 v10, 1120, v10"); e(f"v_lshl_add_u32 v{dst}, v{src}, 4, v10")
    for i in range(5):
        e(f"v_add_u32 v9, {64*i}, v1"); pat(4+i, 9)
    pat(11, 0)
    e(f"s_mul_i32 s19, s17, {160*1280}"); e("s_mul_i32 s28, s16, 160"); e("s_add_u32 s19, s19, s28")
    e("s_mul_i32 s28, s18, 40960"); e("s_add_u32 s28, s28, s19"); e("s_mul_i32 s29, s18, 5120")
    for i in range(5):
        e(f"s_add_u32 m0, s29, {1024*i}"); e("s_nop 0")
        e(f"buffer_load_dwordx4 v{4+i}, s[8:11], s28 offen nt lds")
    e("s_lshl_b32 s29, s18, 10"); e("s_add_u32 m0, s29, 20480"); e("s_add_u32 s28, s19, 163840")
    e("buffer_load_dwordx4 v11, s[8:11], s28 offen nt lds")
    e("s_cmp_eq_u32 s18, 0"); e("s_cbranch_scc0 prep_o1")
    e("s_mov_b32 m0, 24576"); e("s_nop 0")
    e("buffer_load_dwordx4 v8, s[8:11], s28 offen nt lds")
    k.label("prep_o1")
    e("v_lshrrev_b32 v9, 4, v1"); e("v_bfe_u32 v10, v1, 2, 2"); e("v_and_b32 v11, 3, v1")
    e("v_lshlrev_b32 v12, 2, v9"); e("s_mov_b32 s28, 3200")
    e("s_cmp_eq_u32 s30, 1"); e("s_cbranch_scc1 prep_o2")
    e("v_lshrrev_b32 v12, 1, v9"); e("v_mul_u32_u24 v12, 20, v12"); e("v_and_b32 v13, 1, v9"); e("v_lshl_add_u32 v12, v13, 2, v12"); e("s_mov_b32 s28, 1280")
    k.label("prep_o2")
    e("v_add_u32 v12, v12, v10"); e("v_mul_u32_u24 v12, 160, v12"); e("v_lshl_add_u32 v12, v11, 3, v12")
    e("s_mul_i32 s29, s18, 6400"); e("v_add_u32 v12, s29, v12"); e("v_add_u32 v13, s28, v12")
    e("v_mul_u32_u24 v14, 20, v9"); e("v_add_u32 v14, v14, v10"); e("v_mul_u32_u24 v14, 160, v14"); e("v_lshl_add_u32 v14, v11, 3, v14")
    e("v_lshlrev_b32 v3, 4, v1")
    e("s_mul_i32 s19, s16, 102400"); e("s_add_u32 s19, s19, s31"); e(f"s_add_u32 s19, s19, {WOA_I}")
    e("s_lshl_b32 s28, s17, 2"); e("s_add_u32 s28, s28, s18"); e("s_mul_i32 s28, s28, 5120"); e("s_add_u32 s28, s28, s19"); e("s_add_u32 s29, s28, 4096")
    e("s_waitcnt vmcnt(0)"); e("s_barrier")
    for nf in range(5):
        for t in range(2): e(f"ds_read_b64_tr_b16 {vr(16+4*nf+2*t,2)}, v{12+t} offset:{32*nf}")
    e("s_waitcnt lgkmcnt(0)")
    for nf in range(5): e(f"buffer_store_dwordx4 {vr(16+4*nf,4)}, v3, s[12:15], s{28 if nf < 4 else 29} offen offset:{1024*(nf%4)}")
    e("s_cmp_eq_u32 s18, 0"); e("s_cbranch_scc0 prep_end")
    for nf in range(5):
        for t in range(2): e(f"ds_read_b64_tr_b16 {vr(36+4*nf+2*t,2)}, v14 offset:{(80*t+16)*160+32*nf}")
    e("s_add_u32 s28, s17, 16"); e("s_mul_i32 s28, s28, 5120"); e("s_add_u32 s28, s28, s19"); e("s_add_u32 s29, s28, 4096")
    e("s_waitcnt lgkmcnt(0)")
    for nf in range(5): e(f"buffer_store_dwordx4 {vr(36+4*nf,4)}, v3, s[12:15], s{28 if nf < 4 else 29} offen offset:{1024*(nf%4)}")
    k.label("prep_end"); e("s_endpgm")
    return k.text(64, 64)

def stats_finish(k, s1, s2, mean, rstd, t):
    e = k.e
    e(f"v_mul_f32 v{mean}, {fbits(1.0/D)}, v{s1}")
    e(f"v_mul_f32 v{t}, {fbits(1.0/D)}, v{s2}")
    e(f"v_fma_f32 v{t}, -v{mean}, v{mean}, v{t}")
    e(f"v_max_f32 v{t}, 0, v{t}")
    e(f"v_add_f32 v{t}, {fbits(1e-5)}, v{t}")
    e(f"v_rsq_f32 v{rstd}, v{t}")
    e("s_nop 0")

def split3(k, src, d, t, kind, maskv=None):
    e = k.e
    if kind == 'm':
        e(f"v_xor_b32 v{t+1}, 0x80000000, v{src}"); src = t+1
    e(f"v_and_b32 v{t}, 0xffff0000, v{src}")
    e(f"v_sub_f32 v{t+2}, v{src}, v{t}")
    if kind == 'u':
        e(f"v_cvt_pk_bf16_f32 v{d}, v{t}, v{t+2}")
        e(f"v_lshrrev_b32 v{d+1}, 16, v{t}")
    else:
        e(f"v_cvt_pk_bf16_f32 v{d}, v{t}, v{t}")
        e(f"v_cvt_pk_bf16_f32 v{d+1}, v{t+2}, 0")
    if maskv is not None:
        e(f"v_and_b32 v{d}, v{d}, v{maskv}"); e(f"v_and_b32 v{d+1}, v{d+1}, v{maskv}")

def k_qkva():
    k = KB("qkva_kernel"); e = k.e
    ACC, BF, RS = 64, 128, 168
    DEP = int(os.environ.get('DEPA', '3')); R = 10
    e("s_cmp_ge_u32 s2, 256"); e("s_cbranch_scc1 qkva_end"); k.stamp(0); k.rstamp(1)
    e("s_load_dwordx2 s[6:7], s[0:1], 64")
    e("s_and_b32 s20, s2, 7"); e("s_lshr_b32 s21, s2, 3")
    e("s_lshl_b32 s22, s20, 1"); e("s_and_b32 s23, s21, 1"); e("s_add_u32 s16, s22, s23")
    e("s_lshr_b32 s17, s21, 1")
    e("v_lshrrev_b32 v2, 6, v0"); e("v_and_b32 v1, 63, v0")
    e("v_readfirstlane_b32 s18, v2")
    e("s_cmp_ge_u32 s17, 15"); e("s_cbranch_scc1 qkva_end")
    e("v_lshlrev_b32 v9, 4, v1")
    e("s_cmp_ge_u32 s18, 4"); e("s_cbranch_scc1 qkva_ld")
    e("v_and_b32 v3, 31, v1"); e("v_lshrrev_b32 v4, 5, v1")
    e("v_and_b32 v5, 15, v1")
    e("s_lshl_b32 s19, s16, 2"); e("s_add_u32 s19, s19, s18")
    e("v_lshlrev_b32 v11, 6, v3"); e("v_lshl_add_u32 v11, v4, 5, v11")
    e("s_lshl_b32 s30, s19, 11"); e(f"s_add_u32 s30, s30, {ST_A}")
    e("v_lshlrev_b32 v12, 4, v3")
    e("s_lshl_b32 s31, s17, 11"); e(f"s_add_u32 s31, s31, {U_A}")
    e("s_waitcnt lgkmcnt(0)")
    k.stamp(2); k.srd(12, 6, WS_END)
    k.vmop("buffer_load_dwordx4 v[16:19], v11, s[12:15], s30 offen", "st")
    k.vmop("buffer_load_dwordx4 v[20:23], v11, s[12:15], s30 offen offset:16", "st")
    for jf in range(4): k.vmop(f"buffer_load_dwordx4 {vr(24+4*jf,4)}, v12, s[12:15], s31 offen offset:{512*jf}", "st")
    e("v_bfe_u32 v7, v1, 4, 1"); e("v_lshl_add_u32 v7, v2, 1, v7"); e("v_lshlrev_b32 v40, 10, v7")
    e("v_lshl_add_u32 v40, v4, 8, v40"); e("v_lshl_add_u32 v40, v5, 4, v40")
    e("v_add_u32 v43, 8192, v9")
    for i in (1, 2): e(f"v_add_u32 v{40+i}, {65536*i}, v40"); e(f"v_add_u32 v{43+i}, {65536*i}, v43")
    e("v_subrev_u32 v58, 1, v4")
    e("v_not_b32 v59, v58")
    k.waitvm("st")
    e("v_add_f32 v16, v16, v18"); e("v_add_f32 v17, v17, v19"); e("v_add_f32 v20, v20, v22"); e("v_add_f32 v21, v21, v23")
    e("v_add_f32 v16, v16, v20"); e("v_add_f32 v17, v17, v21")
    k.allred32("v_add_f32", 16, 18); k.allred32("v_add_f32", 17, 18)
    stats_finish(k, 16, 17, 46, 47, 18)
    split3(k, 46, 48, 18, 'm', 58)
    for jf in range(4):
        u = 24+4*jf
        e(f"v_add_f32 v{u}, v{u}, v{u+1}"); e(f"v_add_f32 v{u+2}, v{u+2}, v{u+3}"); e(f"v_add_f32 v{u}, v{u}, v{u+2}")
        split3(k, u, 50+2*jf, 18, 'u')
    e("s_cmp_ge_u32 s17, 10"); e("s_cbranch_scc1 qkva_v")
    vm_save = list(k.vm)
    def mainloop(vmode):
        acc = lambda jf: vr(ACC+16*jf, 16)
        def reads(n):
            ks, u = n//2, n%2
            if u == 0:
                e("s_barrier")
                if ks == 0: k.stamp(3)
                if ks == 10: k.stamp(7)
            sl = (ks % R) * 16384; hi = sl >> 16; sl &= 0xffff
            k.dsop(f"ds_read_b128 {vr(BF+20*(n%2),4)}, v{40+hi} offset:{sl+512*u}", f"b{n}")
            for jf in range(4):
                k.dsop(f"ds_read_b128 {vr(BF+20*(n%2)+4+4*jf,4)}, v{43+hi} offset:{sl+(4*u+jf)*1024}", f"b{n}")
        for jf in range(4):
            if vmode: e(f"v_mfma_f32_32x32x8_bf16 {acc(jf)}, v[48:49], {vr(50+2*jf,2)}, 0")
            else:     e(f"v_mfma_f32_32x32x8_bf16 {acc(jf)}, {vr(50+2*jf,2)}, v[48:49], 0")
        reads(0)
        for n in range(40):
            if n+1 < 40: reads(n+1)
            k.waitlg(f"b{n}")
            for jf in range(4):
                a = vr(BF+20*(n%2), 4); b = vr(BF+20*(n%2)+4+4*jf, 4)
                if vmode: e(f"v_mfma_f32_32x32x16_bf16 {acc(jf)}, {a}, {b}, {acc(jf)}")
                else:     e(f"v_mfma_f32_32x32x16_bf16 {acc(jf)}, {b}, {a}, {acc(jf)}")
    mainloop(False); k.stamp(4)
    e("s_cmp_ge_u32 s17, 5")
    e(f"s_cselect_b32 s33, {KVIMG-QIMG}, 0"); e(f"s_cselect_b32 s34, 1.0, {fbits(CSCALE)}"); e("s_cselect_b32 s35, 5, 0")
    e(f"s_add_u32 s33, s33, {QIMG}")
    e("s_sub_u32 s35, s17, s35")
    e("s_mul_i32 s36, s19, 2560"); e("s_add_u32 s33, s33, s36")
    e("v_mul_f32 v47, s34, v47")
    e("v_lshlrev_b32 v16, 4, v3"); e("v_lshlrev_b32 v19, 3, v3")
    e("v_and_b32 v17, v58, v16"); e("v_and_b32 v20, v59, v19"); e("v_or_b32 v17, v17, v20")
    e("v_and_b32 v18, v58, v19"); e("v_and_b32 v20, v59, v16"); e("v_or_b32 v18, v18, v20")
    e("s_nop 4")
    for jf in range(4):
        for r in range(16): e(f"v_mul_f32 v{ACC+16*jf+r}, v{ACC+16*jf+r}, v47")
        for r in range(8): e(f"v_cvt_pk_bf16_f32 v{BF+8*jf+r}, v{ACC+16*jf+2*r}, v{ACC+16*jf+2*r+1}")
    for v in range(1, 5):
        e(f"s_cmp_eq_u32 s35, {v}"); e(f"s_cbranch_scc1 qkva_e{v}")
    for v in range(5):
        if v: k.label(f"qkva_e{v}")
        for jf in range(4):
            for a in range(4):
                def off(G):
                    h, g5 = divmod(G, 5)
                    return (h*163840 + ((g5//2)*512 + (g5%2)*8 if g5 < 4 else 1024), 16 if g5 < 4 else 8)
                (o0, s0), (o1, s1) = off(32*v+8*jf+2*a), off(32*v+8*jf+2*a+1)
                base = {(16,16):16, (16,8):17, (8,16):18}[(s0,s1)]
                t = 20 + (4*jf+a) % 4
                if o1 >= o0: e(f"v_and_b32 v{t}, {o1-o0}, v59")
                else:        e(f"v_and_b32 v{t}, {o0-o1}, v58")
                e(f"s_add_u32 s36, s33, {min(o0,o1)}")
                e(f"v_add_u32 v{t}, v{t}, v{base}")
                e(f"buffer_store_dwordx2 {vr(BF+8*jf+2*a,2)}, v{t}, s[12:15], s36 offen")
        k.stamp(5); k.rstamp(6); k.dump(8, 0)
        e("s_endpgm")
    k.label("qkva_v"); k.vm = vm_save; k.lg = []
    e("v_lshlrev_b32 v16, 4, v4")
    for r in range(16):
        e(f"v_add_u32 v17, {(8*(r//4) + r%4)*4}, v16")
        k.dsop(f"ds_bpermute_b32 v{RS+r}, v17, v47", "rs")
        if r == 7: k.waitlg("rs")
    k.waitlg("rs")
    mainloop(True); k.stamp(4)
    e("s_sub_u32 s35, s17, 10"); e("s_lshl_b32 s35, s35, 7")
    e("s_mul_i32 s36, s19, 2560"); e(f"s_add_u32 s33, s36, {KVIMG+1280}")
    e("v_mul_u32_u24 v20, 320, v4")
    for jf in range(4):
        e(f"v_add_u32 v16, s35, v3")
        if jf: e(f"v_add_u32 v16, {32*jf}, v16")
        e("v_mul_u32_u24 v17, 52429, v16"); e("v_lshrrev_b32 v17, 20, v17")
        e("v_mul_u32_u24 v18, 20, v17"); e("v_sub_u32 v18, v16, v18")
        e("v_mul_u32_u24 v17, 163840, v17"); e("v_lshl_add_u32 v17, v18, 4, v17")
        e(f"v_add_u32 v{24+jf}, v17, v20")
    for jf in range(4):
        for r in range(16): e(f"v_mul_f32 v{ACC+16*jf+r}, v{ACC+16*jf+r}, v{RS+r}")
        for r in range(8): e(f"v_cvt_pk_bf16_f32 v{BF+8*jf+r}, v{ACC+16*jf+2*r}, v{ACC+16*jf+2*r+1}")
        for u in range(2):
            e(f"buffer_store_dwordx4 {vr(BF+8*jf+4*u,4)}, v{24+jf}, s[12:15], s33 offen offset:{640*u}")
    k.stamp(5); k.rstamp(6); k.dump(8, 0)
    e("s_endpgm")
    k.label("qkva_ld"); k.vm = []; k.lg = []
    e("s_sub_u32 s19, s18, 4"); e("s_lshl_b32 s29, s19, 11")
    e("s_lshl_b32 s22, s16, 2"); e("s_add_u32 s22, s22, s19"); e("s_mul_i32 s24, s22, 40960"); e(f"s_add_u32 s24, s24, {XT_A}")
    e("s_mul_i32 s25, s17, 163840"); e("s_add_u32 s25, s25, s29"); e(f"s_add_u32 s25, s25, {WA_I}")
    e("v_add_u32 v8, 19456, v9")
    e("s_waitcnt lgkmcnt(0)")
    k.srd(12, 6, WS_END)
    def ld(ks):
        sl = (ks % R) * 16384
        e(f"s_add_u32 m0, s29, {sl+8192}"); e(f"s_add_u32 s32, s25, {8192*ks}")
        k.vmop("buffer_load_dwordx4 v9, s[12:15], s32 offen lds", f"d{ks}")
        k.vmop("buffer_load_dwordx4 v9, s[12:15], s32 offen offset:1024 lds", f"d{ks}")
        e(f"s_add_u32 m0, s29, {sl}"); e(f"s_add_u32 s33, s24, {1024*ks}")
        k.vmop("buffer_load_dwordx4 v9, s[12:15], s33 offen lds", f"d{ks}")
        k.vmop("buffer_load_dwordx4 v8, s[12:15], s33 offen offset:1024 lds", f"d{ks}")
    for ks in range(DEP): ld(ks)
    for ks in range(20):
        k.waitvm(f"d{ks}"); e("s_barrier")
        if ks + DEP < 20: ld(ks + DEP)
    k.label("qkva_end"); e("s_endpgm")
    return k.text(184, 184)

def k_attn():
    k = KB("attn_kernel"); e = k.e
    KA, KT, VA = 4, 5, 6
    Q = [8, 14]
    KF = [24, 32]; VF = [40, 48]; SS = [56, 72]; P = 88; O = [96, 112]
    PF = 124
    PF = 128
    e("s_cmp_ge_u32 s2, 256"); e("s_cbranch_scc1 attn_end"); k.stamp(0); k.rstamp(1)
    e("s_load_dwordx2 s[6:7], s[0:1], 64")
    e("s_and_b32 s20, s2, 7"); e("s_lshr_b32 s21, s2, 3")
    e("s_lshl_b32 s16, s20, 2"); e("s_and_b32 s22, s21, 3"); e("s_add_u32 s16, s16, s22")
    e("s_lshr_b32 s17, s21, 2")
    e("v_lshrrev_b32 v2, 6, v0"); e("v_and_b32 v1, 63, v0")
    e("v_readfirstlane_b32 s18, v2")
    e("v_and_b32 v3, 31, v1"); e("v_lshrrev_b32 v7, 5, v1")
    e("v_lshlrev_b32 v22, 4, v1"); e("v_lshlrev_b32 v23, 3, v3")
    e("s_mul_i32 s19, s16, 163840")
    e("s_and_b32 s40, s18, 3"); e("s_lshr_b32 s41, s18, 2")
    e("s_lshl_b32 s23, s17, 3"); e("s_lshl_b32 s22, s40, 1"); e("s_add_u32 s23, s23, s22")
    e("s_mul_i32 s24, s23, 2560"); e("s_add_u32 s24, s24, s19"); e(f"s_add_u32 s24, s24, {QIMG}")
    e("s_mul_i32 s42, s41, 81920")
    e("s_lshl_b32 s25, s40, 10"); e("s_add_u32 s25, s25, s42")
    e("s_add_u32 s26, s19, s25"); e(f"s_add_u32 s26, s26, {KVIMG}")
    e("s_waitcnt lgkmcnt(0)")
    k.stamp(2); k.srd(12, 6, WS_END)
    rnd = [0]
    def dma():
        i = rnd[0]; rnd[0] += 1
        e(f"s_add_u32 m0, s25, {4096*i}"); e(f"s_add_u32 s27, s26, {4096*i}")
        k.vmop(f"buffer_load_dwordx4 v22, s[12:15], s27 offen lds", f"i{i}")
    dma()
    for x in range(2):
        k.vmop(f"buffer_load_dwordx4 {vr(Q[x],4)}, v22, s[12:15], s24 offen offset:{2560*x}", "q")
        k.vmop(f"buffer_load_dwordx2 {vr(Q[x]+4,2)}, v23, s[12:15], s24 offen offset:{2560*x+1024}", "q")
    for _ in range(3): dma()
    e(f"v_add_u32 v{KA}, s42, v22")
    e(f"v_add_u32 v{KT}, s42, v23"); e(f"v_add_u32 v{KT}, 1024, v{KT}")
    e("v_mul_u32_u24 v21, 20, v7"); e("v_add_u32 v21, v21, v3"); e("v_lshlrev_b32 v21, 4, v21")
    e("v_add_u32 v21, 1280, v21"); e(f"v_add_u32 v{VA}, s42, v21")
    e("s_mov_b32 s28, 0x000fffff"); e("s_mov_b32 s29, 0x000fffff")
    e("v_cmp_eq_u32 vcc, 20, v3"); e("v_mov_b32 v20, 0x3f803f80"); e("s_nop 0")
    e("v_cndmask_b32 v20, 0, v20, vcc")
    for r in range(16): e(f"v_mov_b32 v{VF[0]+r}, v20")
    for r in range(32): e(f"v_mov_b32 v{O[0]+r}, 0")
    for r in range(4): e(f"v_mov_b32 v{P+4+r}, 0")
    e("v_subrev_u32 v30, 1, v7")
    e("s_lshl_b32 s43, s21, 3"); e("s_add_u32 s43, s43, s18"); e("s_mul_i32 s43, s43, 14336"); e(f"s_add_u32 s43, s43, {WOA_I}")
    k.waitvm("q")
    for x in range(2):
        e(f"v_and_b32 v{Q[x]+4}, v{Q[x]+4}, v30"); e(f"v_and_b32 v{Q[x]+5}, v{Q[x]+5}, v30")
    k.waitvm("i1"); e("s_barrier"); k.stamp(3)
    def rdK(buf, off):
        e(f"ds_read_b128 {vr(KF[buf],4)}, v{KA} offset:{off}")
        e(f"ds_read_b64 {vr(KF[buf]+4,2)}, v{KT} offset:{off}")
    def rdV(buf, off):
        e("s_mov_b64 exec, s[28:29]")
        e(f"ds_read_b128 {vr(VF[buf],4)}, v{VA} offset:{off}")
        e(f"ds_read_b128 {vr(VF[buf]+4,4)}, v{VA} offset:{off+640}")
        e("s_mov_b64 exec, -1")
    def qkm(x, kb): e(f"v_mfma_f32_32x32x16_bf16 {vr(SS[x],16)}, {vr(KF[kb],4)}, {vr(Q[x],4)}, 0")
    def qkt(x, kb): e(f"v_mfma_f32_32x32x8_bf16 {vr(SS[x],16)}, {vr(KF[kb]+4,2)}, {vr(Q[x]+4,2)}, {vr(SS[x],16)}")
    def pv(x, vb, u): e(f"v_mfma_f32_32x32x16_bf16 {vr(O[x],16)}, {vr(VF[vb]+4*u,4)}, {vr(P+4*u,4)}, {vr(O[x],16)}")
    def unit(x, t, rel, extra=None):
        p = t % 2; s = SS[x]
        ex = lambda i: e(f"v_exp_f32 v{s+i}, v{s+i}")
        cv = lambda i: e(f"v_cvt_pk_bf16_f32 v{P+i}, v{s+2*i}, v{s+2*i+1}")
        kb = p if x == 0 else 1-p
        if x == 1: e("s_waitcnt lgkmcnt(2)")
        qkm(1-x, kb)
        if x == 1: rdK(p, (t+2-rel)*2560)
        for i in range(0, 4): ex(i)
        if x == 0:
            pv(1, 1-p, 1); rdV(1-p, (t+1-rel)*2560)
        else:
            pv(0, p, 1)
        if extra: extra()
        for i in range(4, 8): ex(i)
        for i in range(0, 4): cv(i)
        qkt(1-x, kb)
        for i in range(8, 12): ex(i)
        if x == 0: e("s_waitcnt lgkmcnt(4)")
        pv(x, p, 0)
        for i in range(12, 16): ex(i)
        for i in range(4, 8): cv(i)
    rdK(0, 0); rdV(0, 0); rdK(1, 2560)
    e("s_waitcnt lgkmcnt(4)")
    qkm(0, 0); e("s_nop 10"); qkt(0, 0); e("s_nop 10")
    SYN = {1: 3, 4: 7, 7: 19}
    for t in range(16):
        if t in SYN: k.waitvm(f"i{SYN[t]}"); e("s_barrier")
        if t == 7 and 'noprio' not in AV:
            e("s_cmp_ge_u32 s18, 4"); e("s_cbranch_scc0 attn_np"); e("s_setprio 1"); k.label("attn_np")
        d2 = lambda: (dma(), dma())
        unit(0, t, 0, d2 if rnd[0] < 20 else None)
        unit(1, t, 0, d2 if rnd[0] < 20 else None)
    for r in (KA, KT, VA): e(f"v_add_u32 v{r}, {16*2560}, v{r}")
    e("s_mov_b32 s31, 0")
    def pref():
        e(f"buffer_load_dwordx4 {vr(PF,4)}, v22, s[12:15], s43 offen"); e("s_add_u32 s43, s43, 1024")
    e(".p2align 3")
    body_start = len(k.L)
    k.label("attn_loop")
    NT = 4
    for t in range(NT):
        unit(0, t, 0, pref if 'nopf' not in AV else None); unit(1, t, 0)
    for r in (KA, KT, VA): e(f"v_add_u32 v{r}, {NT*2560}, v{r}")
    e("s_add_u32 s31, s31, 1")
    e("s_cmp_eq_u32 s31, 3"); e("s_cbranch_scc0 attn_l1"); e("s_setprio 0"); k.label("attn_l1")
    e(f"s_cmp_lt_u32 s31, {16//NT}"); e("s_cbranch_scc1 attn_loop")
    body = k.L[body_start:]
    assert lint(body + body, "attn_loop2") == 0
    pv(1, 1, 1); k.stamp(4)
    e("s_waitcnt lgkmcnt(0)"); e("s_barrier")
    e("s_mul_i32 s32, s18, 3072"); e("s_xor_b32 s33, s18, 4"); e("s_mul_i32 s33, s33, 3072")
    e("v_add_u32 v24, s32, v22"); e("v_add_u32 v25, s33, v22")
    e("s_add_u32 s23, s23, s41")
    e("s_nop 4")
    e("s_cmp_eq_u32 s41, 0"); e("s_cbranch_scc1 attn_k0")
    for i in range(3): e(f"ds_write_b128 v24, {vr(O[0]+4*i,4)} offset:{1024*i}")
    for r in range(12): e(f"v_mov_b32 v{O[0]+r}, v{O[1]+r}")
    for r in range(6): e(f"v_mov_b32 v{Q[0]+r}, v{Q[1]+r}")
    e("s_branch attn_k1")
    k.label("attn_k0")
    for i in range(3): e(f"ds_write_b128 v24, {vr(O[1]+4*i,4)} offset:{1024*i}")
    k.label("attn_k1")
    e("s_waitcnt lgkmcnt(0)"); e("s_barrier")
    for i in range(3): e(f"ds_read_b128 {vr(SS[0]+4*i,4)}, v25 offset:{1024*i}")
    e("s_waitcnt lgkmcnt(0)")
    OO = O[0]
    for r in range(12): e(f"v_add_f32 v{OO+r}, v{OO+r}, v{SS[0]+r}")
    e("s_mov_b32 s30, 0")
    k.label("attn_chk")
    e(f"v_mov_b32 v30, v{OO+8}"); e(f"v_mov_b32 v31, v{OO+8}"); e("s_nop 1")
    e("v_permlane32_swap_b32 v30, v31")
    e(f"v_max3_f32 v38, abs(v{OO}), abs(v{OO+1}), abs(v{OO+2})")
    for r in range(3, 11, 2): e(f"v_max3_f32 v38, abs(v{OO+r}), abs(v{OO+r+1}), v38")
    e(f"v_max_f32 v38, abs(v{OO+11}), v38")
    e(f"s_mov_b32 s32, {fbits(2.0**-60)}"); e(f"s_mov_b32 s33, {fbits(2.0**100)}"); e(f"s_mov_b32 s34, {fbits(2.0**126)}")
    e("v_cmp_le_f32 vcc, s32, v31"); e("v_cmp_ge_f32 s[36:37], s33, v31"); e("v_cmp_gt_f32 s[38:39], s34, v38")
    e("s_nop 3")
    e("s_and_b64 s[36:37], s[36:37], vcc"); e("s_and_b64 s[36:37], s[36:37], s[38:39]")
    e("s_cmp_eq_u64 s[36:37], -1"); e("s_cbranch_scc1 attn_fin")
    e("s_cmp_eq_u32 s30, 0"); e("s_cbranch_scc0 attn_fin")
    e("s_mov_b32 s30, 1")
    e("s_waitcnt vmcnt(0)")
    NM = O[1]
    e("v_mov_b32 v32, 0xff800000")
    def slowqk(c):
        e(f"buffer_load_dwordx4 {vr(KF[0],4)}, v22, s[12:15], s27 offen")
        e(f"buffer_load_dwordx2 {vr(KF[0]+4,2)}, v23, s[12:15], s27 offen offset:1024")
        e("s_waitcnt vmcnt(0)")
        e(f"v_mfma_f32_32x32x16_bf16 {vr(SS[0],16)}, {vr(KF[0],4)}, {vr(Q[0],4)}, {c}"); e("s_nop 10")
        e(f"v_mfma_f32_32x32x8_bf16 {vr(SS[0],16)}, {vr(KF[0]+4,2)}, {vr(Q[0]+4,2)}, {vr(SS[0],16)}"); e("s_nop 12")
    e(f"s_add_u32 s27, s19, {KVIMG}"); e("s_mov_b32 s31, 0")
    k.label("attn_mx")
    slowqk("0")
    for r in range(0, 16, 2): e(f"v_max3_f32 v32, v{SS[0]+r}, v{SS[0]+r+1}, v32")
    e("s_add_u32 s27, s27, 2560")
    e("s_add_u32 s31, s31, 1"); e("s_cmp_lt_u32 s31, 64"); e("s_cbranch_scc1 attn_mx")
    k.allred32("v_max_f32", 32, 33)
    e("v_xor_b32 v32, 0x80000000, v32")
    for r in range(16): e(f"v_mov_b32 v{NM+r}, v32")
    for r in range(16): e(f"v_mov_b32 v{OO+r}, 0")
    for r in range(8): e(f"v_mov_b32 v{VF[0]+r}, v20")
    e(f"s_add_u32 s27, s19, {KVIMG}"); e("s_mov_b32 s31, 0")
    k.label("attn_sl")
    e("s_mov_b64 exec, s[28:29]")
    e(f"buffer_load_dwordx4 {vr(VF[0],4)}, v21, s[12:15], s27 offen")
    e(f"buffer_load_dwordx4 {vr(VF[0]+4,4)}, v21, s[12:15], s27 offen offset:640")
    e("s_mov_b64 exec, -1")
    slowqk(vr(NM,16))
    for i in range(16): e(f"v_exp_f32 v{SS[0]+i}, v{SS[0]+i}")
    e("s_nop 0")
    for i in range(8): e(f"v_cvt_pk_bf16_f32 v{P+i}, v{SS[0]+2*i}, v{SS[0]+2*i+1}")
    e("s_nop 1")
    pv(0, 0, 0); pv(0, 0, 1)
    e("s_add_u32 s27, s27, 2560")
    e("s_add_u32 s31, s31, 1"); e("s_cmp_lt_u32 s31, 64"); e("s_cbranch_scc1 attn_sl")
    e("s_nop 12"); e("s_branch attn_chk")
    k.label("attn_fin")
    e("v_rcp_f32 v31, v31")
    e("s_mul_i32 s32, s23, 40960"); e(f"s_add_u32 s32, s32, {OT}")
    e("s_lshr_b32 s33, s16, 1"); e("s_lshl_b32 s33, s33, 10"); e("s_and_b32 s34, s16, 1"); e("s_lshl_b32 s34, s34, 9")
    e("s_add_u32 s33, s33, s34"); e("s_add_u32 s33, s33, s32")
    e("s_lshr_b32 s34, s16, 3"); e("s_add_u32 s34, s34, 16"); e("s_lshl_b32 s34, s34, 10"); e("s_add_u32 s34, s34, s32")
    e("s_and_b32 s35, s16, 3"); e("s_lshl_b32 s35, s35, 8"); e("s_add_u32 s34, s34, s35")
    e("s_bfe_u32 s35, s16, 0x10002"); e("s_lshl_b32 s35, s35, 3"); e("s_add_u32 s34, s34, s35")
    for r in range(12): e(f"v_mul_f32 v{OO+r}, v{OO+r}, v31")
    for r in range(6): e(f"v_cvt_pk_bf16_f32 v{P+r}, v{OO+2*r}, v{OO+2*r+1}")
    e("v_lshrrev_b32 v38, 4, v3"); e("v_mul_u32_u24 v38, 20480, v38"); e("v_and_b32 v39, 15, v3")
    e("v_lshl_add_u32 v38, v39, 4, v38"); e("v_lshl_add_u32 v39, v7, 8, v38")
    e(f"buffer_store_dwordx4 {vr(P,4)}, v39, s[12:15], s33 offen")
    e("s_mov_b32 exec_hi, 0")
    e(f"buffer_store_dwordx2 {vr(P+4,2)}, v38, s[12:15], s34 offen")
    k.stamp(5); k.rstamp(6); k.dump(8, 1)
    k.label("attn_end"); e("s_endpgm")
    return k.text(132, 132)

def k_proj(name, fmt, wimg, xin, xout, stout, final):
    k = KB(name); e = k.e
    src = OT if fmt == 'O' else OBT
    DEP = int(os.environ.get('DEPP', '2')); RA = 12; ABASE = 102400
    ACC, BF, RESID = 24, 64, 44
    e("s_cmp_ge_u32 s2, 256"); e(f"s_cbranch_scc1 {name}_end"); k.stamp(0); k.rstamp(1)
    e("s_load_dwordx2 s[6:7], s[0:1], 64")
    if final: e("s_load_dwordx2 s[40:41], s[0:1], 48")
    e("s_and_b32 s20, s2, 7"); e("s_lshr_b32 s21, s2, 3")
    e("s_lshl_b32 s22, s20, 2"); e("s_and_b32 s23, s21, 3"); e("s_add_u32 s16, s22, s23")
    e("s_lshr_b32 s17, s21, 2")
    e("v_lshrrev_b32 v2, 6, v0"); e("v_and_b32 v1, 63, v0")
    e("v_readfirstlane_b32 s18, v2")
    e("v_lshlrev_b32 v3, 4, v1")
    e("s_and_b32 s39, s18, 3"); e("s_lshl_b32 s19, s16, 2"); e("s_add_u32 s19, s19, s39")
    e("s_mul_i32 s24, s19, 20480"); e("s_lshl_b32 s29, s39, 10")
    e("s_cmp_ge_u32 s18, 4"); e(f"s_cbranch_scc1 {name}_ld")
    e("s_lshr_b32 s33, s17, 1"); e("s_mul_i32 s33, s33, 5120"); e("s_add_u32 s33, s33, s24")
    e("s_and_b32 s34, s17, 1"); e("s_lshl_b32 s35, s34, 11"); e("s_add_u32 s35, s35, s33")
    e("s_lshl_b32 s34, s34, 3"); e("s_add_u32 s36, s33, s34"); e("s_add_u32 s36, s36, 4096")
    e(f"s_add_u32 s37, s35, {xin}"); e(f"s_add_u32 s38, s36, {xin}")
    e("s_mul_i32 s31, s17, 160")
    e("s_waitcnt lgkmcnt(0)")
    k.stamp(2); k.srd(12, 6, WS_END)
    k.vmop(f"buffer_load_dwordx4 {vr(RESID,4)}, v3, s[12:15], s37 offen", "r")
    k.vmop(f"buffer_load_dwordx4 {vr(RESID+4,4)}, v3, s[12:15], s37 offen offset:1024", "r")
    k.vmop(f"buffer_load_dwordx2 {vr(RESID+8,2)}, v3, s[12:15], s38 offen", "r")
    e("v_lshrrev_b32 v9, 4, v1")
    e("v_add_u32 v12, 61440, v3"); e(f"s_add_u32 s30, s29, {ABASE}"); e("v_add_u32 v13, s30, v3")
    def reads(n):
        if n % 2 == 0:
            e("s_barrier")
            if n == 0: k.stamp(3)
            if n == 10: k.stamp(7)
        k.dsop(f"ds_read_b128 {vr(BF+24*(n%2),4)}, v13 offset:{(n%RA)*4096}", f"b{n}")
        for nf in range(5):
            off = n*5120 + nf*1024; b = 3
            if n >= 12: off -= 61440; b = 12
            k.dsop(f"ds_read_b128 {vr(BF+24*(n%2)+4+4*nf,4)}, v{b} offset:{off}", f"b{n}")
    k.waitvm("r")
    for i in range(10):
        e(f"v_lshlrev_b32 v{ACC+2*i}, 16, v{RESID+i}"); e(f"v_and_b32 v{ACC+2*i+1}, 0xffff0000, v{RESID+i}")
    reads(0)
    for n in range(20):
        if n+1 < 20: reads(n+1)
        k.waitlg(f"b{n}")
        for nf in range(5):
            e(f"v_mfma_f32_16x16x32_bf16 {vr(ACC+4*nf,4)}, {vr(BF+24*(n%2)+4+4*nf,4)}, {vr(BF+24*(n%2),4)}, {vr(ACC+4*nf,4)}")
    k.stamp(4)
    if final:
        k.srd(44, 40, S*D*2)
        e("v_and_b32 v16, 15, v1"); e("v_mul_u32_u24 v16, 1280, v16"); e("v_lshl_add_u32 v16, v9, 3, v16")
        e("s_mul_i32 s32, s19, 20480"); e("s_add_u32 s32, s32, s31")
        e("s_nop 3")
        for nf in range(5):
            for r in range(2): e(f"v_cvt_pk_bf16_f32 v{RESID+2*nf+r}, v{ACC+4*nf+2*r}, v{ACC+4*nf+2*r+1}")
            e(f"buffer_store_dwordx2 {vr(RESID+2*nf,2)}, v16, s[44:47], s32 offen offset:{32*nf}")
    else:
        e(f"s_add_u32 s37, s35, {xout}"); e(f"s_add_u32 s38, s36, {xout}")
        e("s_lshl_b32 s32, s19, 10"); e("s_lshl_b32 s33, s17, 3"); e("s_add_u32 s32, s32, s33"); e(f"s_add_u32 s32, s32, {stout}")
        e("v_and_b32 v16, 15, v1"); e("v_lshlrev_b32 v16, 6, v16")
        for i in range(10): e(f"v_cvt_pk_bf16_f32 v{RESID+i}, v{ACC+2*i}, v{ACC+2*i+1}")
        e(f"buffer_store_dwordx4 {vr(RESID,4)}, v3, s[12:15], s37 offen")
        e(f"buffer_store_dwordx4 {vr(RESID+4,4)}, v3, s[12:15], s37 offen offset:1024")
        e(f"buffer_store_dwordx2 {vr(RESID+8,2)}, v3, s[12:15], s38 offen")
        e(f"v_add_f32 v18, v{ACC}, v{ACC+1}"); e(f"v_mul_f32 v19, v{ACC}, v{ACC}"); e(f"v_fmac_f32 v19, v{ACC+1}, v{ACC+1}")
        for i in range(2, 20):
            e(f"v_add_f32 v18, v18, v{ACC+i}"); e(f"v_fmac_f32 v19, v{ACC+i}, v{ACC+i}")
        k.allred16("v_add_f32", 18, 20); k.allred16("v_add_f32", 19, 21)
        k.allred32("v_add_f32", 18, 20); k.allred32("v_add_f32", 19, 21)
        e("s_mov_b64 exec, 0xffff")
        e("buffer_store_dwordx2 v[18:19], v16, s[12:15], s32 offen")
    k.stamp(5); k.rstamp(6); k.dump(8, {'proja_kernel':2,'projb_kernel':4,'projf_kernel':5}[name])
    e("s_endpgm")
    k.label(f"{name}_ld"); k.vm = []; k.lg = []
    e(f"s_add_u32 s24, s24, {src}")
    e("s_mul_i32 s30, s17, 102400"); e("s_add_u32 s30, s30, s29"); e(f"s_add_u32 s30, s30, {wimg}")
    e("s_waitcnt lgkmcnt(0)")
    k.srd(12, 6, WS_END)
    nr = [0]
    def ld(g):
        need = -(-10*(g+1) // 4)
        while nr[0] < need:
            e(f"s_add_u32 m0, s29, {4096*nr[0]}"); e(f"s_add_u32 s32, s30, {4096*nr[0]}")
            k.vmop("buffer_load_dwordx4 v3, s[12:15], s32 offen lds", f"g{g}"); nr[0] += 1
        for n in (2*g, 2*g+1):
            e(f"s_add_u32 m0, s29, {ABASE + (n%RA)*4096}"); e(f"s_add_u32 s32, s24, {1024*n}")
            k.vmop("buffer_load_dwordx4 v3, s[12:15], s32 offen lds", f"g{g}")
    for g in range(DEP): ld(g)
    for g in range(10):
        k.waitvm(f"g{g}"); e("s_barrier")
        if g + DEP < 10: ld(g + DEP)
    k.label(f"{name}_end"); e("s_endpgm")
    return k.text(112, 112)

def k_qkvb():
    k = KB("qkvb_kernel"); e = k.e
    DEP = int(os.environ.get('DEPB', '3')); R = 8; HALO = 131072; EX = 65536
    ACC, BF = 64, 160
    RSV = 240
    acc = lambda b, F: ACC + 32*b + 4*F
    TOKF = (0, 1, 2, 3, 6); FEAF = (4, 5, 7)
    e("s_cmp_ge_u32 s2, 256"); e("s_cbranch_scc1 qkvb_end"); k.stamp(0); k.rstamp(1)
    e("s_load_dwordx2 s[6:7], s[0:1], 64")
    e("s_and_b32 s20, s2, 7"); e("s_lshr_b32 s21, s2, 3")
    e("s_lshl_b32 s22, s20, 1"); e("s_and_b32 s23, s21, 1"); e("s_add_u32 s16, s22, s23")
    e("s_lshr_b32 s17, s21, 1")
    e("v_lshrrev_b32 v2, 6, v0"); e("v_and_b32 v1, 63, v0")
    e("v_readfirstlane_b32 s18, v2")
    e("v_and_b32 v5, 15, v1"); e("v_lshrrev_b32 v6, 4, v1")
    e("v_lshlrev_b32 v3, 4, v1")
    e("s_and_b32 s39, s18, 3")
    e("s_lshl_b32 s22, s16, 3"); e("s_lshl_b32 s19, s39, 1"); e("s_add_u32 s19, s19, s22")
    e("v_lshlrev_b32 v11, 6, v5"); e("v_lshl_add_u32 v11, v6, 4, v11")
    e("v_lshlrev_b32 v14, 4, v5")
    e("s_lshl_b32 s30, s17, 11"); e(f"s_add_u32 s30, s30, {U_B}")
    e("v_cmp_eq_u32 vcc, 0, v6"); e("v_lshlrev_b32 v10, 4, v6"); e("s_nop 0"); e("v_cndmask_b32 v4, 0, -1, vcc")
    def stats(s, rstd, mop):
        e(f"v_add_f32 v{s}, v{s}, v{s+2}"); e(f"v_add_f32 v{s+1}, v{s+1}, v{s+3}")
        k.allred16("v_add_f32", s, s+2); k.allred16("v_add_f32", s+1, s+3)
        k.allred32("v_add_f32", s, s+2); k.allred32("v_add_f32", s+1, s+3)
        stats_finish(k, s, s+1, s+2, rstd, s+3)
        split3(k, s+2, mop, 17, 'm', 4)
    def usum(u, dst):
        e(f"v_add_f32 v{u}, v{u}, v{u+1}"); e(f"v_add_f32 v{u+2}, v{u+2}, v{u+3}"); e(f"v_add_f32 v{u}, v{u}, v{u+2}")
        split3(k, u, dst, 17, 'u')
    def scale_pack(a, sc, dst):
        for r in range(4): e(f"v_mul_f32 v{a+r}, v{a+r}, v{sc(r)}")
        for r in range(2): e(f"v_cvt_pk_bf16_f32 v{dst+r}, v{a+2*r}, v{a+2*r+1}")
    e("s_cmp_ge_u32 s18, 4"); e("s_cbranch_scc1 qkvb_ld")
    e("s_lshl_b32 s28, s19, 10"); e(f"s_add_u32 s28, s28, {ST_B}")
    e("s_waitcnt lgkmcnt(0)")
    k.stamp(2); k.srd(12, 6, WS_END)
    k.vmop("buffer_load_dwordx4 v[24:27], v11, s[12:15], s28 offen", "st")
    k.vmop("buffer_load_dwordx4 v[28:31], v11, s[12:15], s28 offen offset:1024", "st")
    for F in range(8): k.vmop(f"buffer_load_dwordx4 {vr(64+4*F,4)}, v14, s[12:15], s30 offen offset:{256*F}", "st")
    e("s_lshl_b32 s29, s18, 11"); e("v_add_u32 v40, s29, v3"); e("v_add_u32 v41, 65536, v40")
    e("v_add_u32 v42, 8192, v3"); e("v_add_u32 v43, 65536, v42")
    k.waitvm("st")
    for b in (1, 2): stats(20+4*b, 48+b, 52+2*b)
    for F in range(8): usum(64+4*F, 20+2*F)
    for b in (1, 2):
        for r in range(4):
            e(f"v_add_u32 v18, {4*r}, v10")
            k.dsop(f"ds_bpermute_b32 v{RSV+4*b+r}, v18, v{48+b}", "rs")
    for b in (1, 2):
        for F in range(8):
            U, M = vr(20+2*F, 2), vr(52+2*b, 2)
            if F in TOKF: e(f"v_mfma_f32_16x16x16_bf16 {vr(acc(b,F),4)}, {U}, {M}, 0")
            else:         e(f"v_mfma_f32_16x16x16_bf16 {vr(acc(b,F),4)}, {M}, {U}, 0")
    k.waitlg("rs")
    def reads(ks, half):
        sl = (ks % R) * 16384; hi = sl >> 16; sl &= 0xffff
        if half == 0:
            e("s_barrier")
            if ks == 0: k.stamp(3)
            if ks == 10: k.stamp(7)
            for b in range(2): k.dsop(f"ds_read_b128 {vr(BF+40*(ks%2)+32+4*b,4)}, v{40+hi} offset:{sl+1024*b}", f"b{ks}_0")
        for F in range(4*half, 4*half+4):
            k.dsop(f"ds_read_b128 {vr(BF+40*(ks%2)+4*F,4)}, v{42+hi} offset:{sl+1024*F}", f"b{ks}_{half}")
    reads(0, 0); reads(0, 1)
    def mm(b, F, ks):
        a = vr(BF+40*(ks%2)+32+4*(b-1), 4); w = vr(BF+40*(ks%2)+4*F, 4); c = vr(acc(b,F), 4)
        if F in TOKF: e(f"v_mfma_f32_16x16x32_bf16 {c}, {w}, {a}, {c}")
        else:         e(f"v_mfma_f32_16x16x32_bf16 {c}, {a}, {w}, {c}")
    for ks in range(20):
        for half in range(2):
            k.waitlg(f"b{ks}_{half}")
            if ks+1 < 20: reads(ks+1, half)
            for F in range(4*half, 4*half+4): mm(1, F, ks); mm(2, F, ks)
    k.stamp(4)
    KO = lambda b, h: BF + 8*b + 4*h
    QO = lambda b, h: BF + 24 + 8*(b-1) + 4*h
    VO = lambda F, b: BF + 40 + 8*FEAF.index(F) + 2*b
    MC, MP, MP1 = 20, 24, 28
    NEG = fbits(-1e30)
    e("s_mul_i32 s35, s18, 5120"); e(f"s_add_u32 s35, s35, {EX}"); e("v_add_u32 v9, s35, v3")
    e("v_lshlrev_b32 v17, 2, v6"); e("v_sub_u32 v17, v5, v17")
    e(f"v_mov_b32 v19, {NEG}")
    for b in (1, 2):
        e(f"v_mul_f32 v{32+b}, {fbits(CSCALE)}, v{48+b}")
    e("v_cmp_gt_u32 vcc, 2, v6"); e("s_nop 1")
    for b in (1, 2): e(f"v_cndmask_b32 v{35+b}, v{48+b}, v{32+b}, vcc")
    def kv_pack(b):
        for h in range(2): scale_pack(acc(b, 2+h), lambda r: 48+b, KO(b,h))
        scale_pack(acc(b, 6), lambda r: 35+b, KO(b,0)+2)
        for r in range(2): e(f"v_mov_b32 v{KO(b,1)+2+r}, v{KO(b,0)+2+r}")
        for F in FEAF: scale_pack(acc(b, F), lambda r: RSV+4*b+r, VO(F,b))
    kv_pack(2)
    for h in range(2): e(f"ds_write_b128 v9, {vr(KO(2,h),4)} offset:{5120+1024*h}")
    for n, F in enumerate(FEAF): e(f"ds_write_b64 v9, {vr(VO(F,2),2)} offset:{5120+2048+1024*n}")
    kv_pack(1)
    e("s_waitcnt lgkmcnt(0)"); e("s_barrier")
    for h in range(2): e(f"ds_read_b128 {vr(KO(0,h),4)}, v9 offset:{1024*h}")
    for n, F in enumerate(FEAF): e(f"ds_read_b64 {vr(VO(F,0),2)}, v9 offset:{2048+1024*n}")
    for r in range(4):
        e(f"v_subrev_u32 v18, {r}, v17")
        e("v_and_b32 v16, 0x80000001, v18"); e("v_cmp_eq_u32 vcc, 0, v16"); e("v_cmp_eq_u32 s[38:39], s40, v16") if False else e("s_nop 1")
        e(f"v_cndmask_b32 v{MC+r}, v19, 0, vcc")
        e("v_cmp_eq_u32 vcc, 0x80000000, v16"); e("s_nop 1")
        e(f"v_cndmask_b32 v{MP+r}, v19, 0, vcc")
    e("s_cmp_eq_u32 s19, 0"); e(f"s_cselect_b32 s34, {NEG}, 0")
    for r in range(4): e(f"v_add_f32 v{MP1+r}, s34, v{MP+r}")
    e("v_cmp_eq_u32 vcc, 2, v6"); e("s_nop 1"); e("v_cndmask_b32 v38, 0, -1, vcc")
    e("v_cmp_eq_u32 vcc, 3, v6"); e("s_nop 1"); e("v_cndmask_b32 v39, 0, -1, vcc")
    for b in (1, 2):
        for h in range(2): scale_pack(acc(b, h), lambda r: 32+b, QO(b,h))
        for r in range(2):
            e(f"v_mov_b32 v{40+2*r}, v{KO(b,0)+2+r}"); e(f"v_mov_b32 v{41+2*r}, v{KO(b,0)+2+r}")
        e("s_nop 0")
        for r in range(2): e(f"v_permlane32_swap_b32 v{40+2*r}, v{41+2*r}")
        e("s_nop 0")
        for h in range(2):
            for r in range(2): e(f"v_and_b32 v{QO(b,h)+2+r}, v{40+2*r}, v{38+h}")
    e("s_waitcnt lgkmcnt(0)")
    units = [(b, h) for b in (1, 2) for h in range(2)]
    SU = lambda i: ACC + 8*i
    TU = lambda i: ACC + 32 + 4*i
    PU = lambda i: ACC + 48 + 4*i
    OU = lambda i: ACC + 64 + 8*i
    e("s_nop 1")
    for i, (b, h) in enumerate(units):
        e(f"v_mfma_f32_16x16x32_bf16 {vr(SU(i),4)}, {vr(KO(b-1,h),4)}, {vr(QO(b,h),4)}, {vr(MP1 if b == 1 else MP,4)}")
        e(f"v_mfma_f32_16x16x32_bf16 {vr(SU(i)+4,4)}, {vr(KO(b,h),4)}, {vr(QO(b,h),4)}, {vr(MC,4)}")
    e("s_nop 3")
    def allred(op):
        for sw in ("v_permlane16_swap_b32", "v_permlane32_swap_b32"):
            for i in range(4): e(f"v_mov_b32 v{TU(i)+1}, v{TU(i)}")
            for i in range(4): e(f"{sw} v{TU(i)}, v{TU(i)+1}")
            for i in range(4): e(f"{op} v{TU(i)}, v{TU(i)}, v{TU(i)+1}")
    for i in range(4):
        s = SU(i)
        e(f"v_max3_f32 v{TU(i)}, v{s}, v{s+1}, v{s+2}"); e(f"v_max3_f32 v{TU(i)}, v{s+3}, v{s+4}, v{TU(i)}")
        e(f"v_max3_f32 v{TU(i)}, v{s+5}, v{s+6}, v{TU(i)}"); e(f"v_max_f32 v{TU(i)}, v{s+7}, v{TU(i)}")
    allred("v_max_f32")
    for i in range(4):
        for r in range(8): e(f"v_sub_f32 v{SU(i)+r}, v{SU(i)+r}, v{TU(i)}")
    for i in range(4):
        for r in range(8): e(f"v_exp_f32 v{SU(i)+r}, v{SU(i)+r}")
    for i in range(4):
        s = SU(i)
        e(f"v_add_f32 v{TU(i)}, v{s}, v{s+1}")
        for r in range(2, 8): e(f"v_add_f32 v{TU(i)}, v{TU(i)}, v{s+r}")
    allred("v_add_f32")
    for i in range(4): e(f"v_rcp_f32 v{TU(i)}, v{TU(i)}")
    for i in range(4):
        for r in range(8): e(f"v_mul_f32 v{SU(i)+r}, v{SU(i)+r}, v{TU(i)}")
        for r in range(4): e(f"v_cvt_pk_bf16_f32 v{PU(i)+r}, v{SU(i)+2*r}, v{SU(i)+2*r+1}")
    e("s_nop 1")
    for i, (b, h) in enumerate(units):
        e(f"v_mfma_f32_16x16x32_bf16 {vr(OU(i),4)}, {vr(VO(4+h,b-1),4)}, {vr(PU(i),4)}, 0")
        e(f"v_mfma_f32_16x16x32_bf16 {vr(OU(i)+4,4)}, {vr(VO(7,b-1),4)}, {vr(PU(i),4)}, 0")
    e("s_mul_i32 s24, s19, 20480"); e(f"s_add_u32 s24, s24, {OBT}")
    e("s_lshl_b32 s25, s17, 10"); e("s_add_u32 s25, s25, s24"); e("s_add_u32 s26, s25, 20480")
    e("s_lshr_b32 s27, s17, 2"); e("s_add_u32 s27, s27, 16"); e("s_lshl_b32 s27, s27, 10"); e("s_add_u32 s27, s27, s24")
    e("s_and_b32 s28, s17, 1"); e("s_lshl_b32 s28, s28, 9"); e("s_add_u32 s27, s27, s28")
    e("s_bfe_u32 s28, s17, 0x10001"); e("s_lshl_b32 s28, s28, 3"); e("s_add_u32 s27, s27, s28"); e("s_add_u32 s28, s27, 20480")
    e("v_cmp_eq_u32 vcc, 0, v6")
    for bi in range(2):
        o0, o1 = OU(2*bi), OU(2*bi+1); d = 40 + 8*bi
        e(f"v_cvt_pk_bf16_f32 v{d}, v{o0}, v{o0+1}"); e(f"v_cvt_pk_bf16_f32 v{d+1}, v{o0+2}, v{o0+3}")
        e(f"v_cvt_pk_bf16_f32 v{d+2}, v{o1}, v{o1+1}"); e(f"v_cvt_pk_bf16_f32 v{d+3}, v{o1+2}, v{o1+3}")
        e(f"buffer_store_dwordx4 {vr(d,4)}, v3, s[12:15], s{25+bi} offen")
        for r in range(4): e(f"v_cndmask_b32 v{o0+4+r}, v{o1+4+r}, v{o0+4+r}, vcc")
        e(f"v_cvt_pk_bf16_f32 v{d+4}, v{o0+4}, v{o0+5}"); e(f"v_cvt_pk_bf16_f32 v{d+5}, v{o0+6}, v{o0+7}")
    e("s_mov_b32 exec_hi, 0")
    for bi in range(2): e(f"buffer_store_dwordx2 {vr(44+8*bi,2)}, v3, s[12:15], s{27+bi} offen")
    k.stamp(5); k.rstamp(6); k.dump(8, 3)
    e("s_endpgm")
    k.label("qkvb_ld"); k.vm = []; k.lg = []
    e("s_max_u32 s22, s22, 1"); e("s_sub_u32 s22, s22, 1")
    e("s_lshl_b32 s29, s39, 11"); e("s_lshl_b32 s38, s39, 10")
    e("s_mul_i32 s24, s22, 20480"); e(f"s_add_u32 s24, s24, {XT_B}"); e("s_add_u32 s24, s24, s38")
    e("s_mul_i32 s25, s19, 20480"); e(f"s_add_u32 s25, s25, {XT_B}")
    e("s_mul_i32 s26, s17, 163840"); e("s_add_u32 s26, s26, s29"); e(f"s_add_u32 s26, s26, {WB_I}")
    e("s_lshl_b32 s27, s22, 10"); e(f"s_add_u32 s27, s27, {ST_B}")
    e("s_min_u32 s40, s39, 2")
    e("s_cmp_lt_u32 s39, 2"); e("s_cselect_b32 s41, 2, 4"); e("s_cselect_b32 s42, 4, 5")
    e("s_add_u32 s41, s41, s40"); e("s_add_u32 s42, s42, s40")
    e("s_lshl_b32 s43, s41, 8"); e("s_add_u32 s43, s43, s30"); e("s_lshl_b32 s44, s42, 8"); e("s_add_u32 s44, s44, s30")
    e("v_add_u32 v8, 19456, v3")
    e("s_waitcnt lgkmcnt(0)")
    k.srd(12, 6, WS_END)
    def ld(ks):
        sl = (ks % R) * 16384
        e(f"s_add_u32 m0, s29, {sl+8192}"); e(f"s_add_u32 s32, s26, {8192*ks}")
        k.vmop("buffer_load_dwordx4 v3, s[12:15], s32 offen lds", f"d{ks}")
        k.vmop("buffer_load_dwordx4 v3, s[12:15], s32 offen offset:1024 lds", f"d{ks}")
        e(f"s_add_u32 m0, s29, {sl}"); e(f"s_add_u32 s33, s25, {1024*ks}")
        k.vmop("buffer_load_dwordx4 v3, s[12:15], s33 offen lds", f"d{ks}")
        k.vmop("buffer_load_dwordx4 v8, s[12:15], s33 offen offset:1024 lds", f"d{ks}")
        if ks % 4 == 0:
            e(f"s_add_u32 m0, s38, {HALO+1024*ks}"); e(f"s_add_u32 s33, s24, {1024*ks}")
            k.vmop("buffer_load_dwordx4 v3, s[12:15], s33 offen lds", f"d{ks}")
    ld(0)
    k.vmop("buffer_load_dwordx4 v[24:27], v11, s[12:15], s27 offen", "st")
    k.vmop("buffer_load_dwordx4 v[64:67], v14, s[12:15], s43 offen", "st")
    k.vmop("buffer_load_dwordx4 v[68:71], v14, s[12:15], s44 offen", "st")
    for ks in range(1, DEP): ld(ks)
    e("s_lshl_b32 s41, s41, 10"); e("s_add_u32 s41, s41, 8192"); e("s_lshl_b32 s42, s42, 10"); e("s_add_u32 s42, s42, 8192")
    e("v_add_u32 v40, s41, v3"); e("v_add_u32 v41, 65536, v40"); e("v_add_u32 v42, s42, v3"); e("v_add_u32 v43, 65536, v42")
    e(f"v_add_u32 v44, {HALO}, v3")
    for ks in range(20):
        k.waitvm(f"d{ks}"); e("s_barrier")
        sl = (ks % R) * 16384; hi = sl >> 16; sl &= 0xffff
        fb = 96 + 12*(ks%2)
        k.dsop(f"ds_read_b128 {vr(fb,4)}, v44 offset:{1024*ks}", "h")
        k.dsop(f"ds_read_b128 {vr(fb+4,4)}, v{40+hi} offset:{sl}", "h")
        k.dsop(f"ds_read_b128 {vr(fb+8,4)}, v{42+hi} offset:{sl}", "h")
        if ks + DEP < 20: ld(ks + DEP)
        if ks == 0:
            k.waitvm("st")
            stats(24, 48, 52); usum(64, 20); usum(68, 22)
            for r in range(4):
                e(f"v_add_u32 v18, {4*r}, v10")
                k.dsop(f"ds_bpermute_b32 v{72+r}, v18, v48", "h")
            e("v_mfma_f32_16x16x16_bf16 v[80:83], v[20:21], v[52:53], 0")
            e("v_mfma_f32_16x16x16_bf16 v[84:87], v[52:53], v[22:23], 0")
        k.waitlg("h")
        e(f"v_mfma_f32_16x16x32_bf16 v[80:83], {vr(fb+4,4)}, {vr(fb,4)}, v[80:83]")
        e(f"v_mfma_f32_16x16x32_bf16 v[84:87], {vr(fb,4)}, {vr(fb+8,4)}, v[84:87]")
    e("s_lshl_b32 s41, s39, 10"); e("s_cmp_lt_u32 s39, 2"); e("s_cselect_b32 s41, s41, 8"); e("s_cselect_b32 s42, s41, 1032")
    e("s_lshl_b32 s40, s40, 10")
    e(f"v_add_u32 v9, {EX}, v3"); e("v_add_u32 v12, s41, v9"); e("v_add_u32 v13, s42, v9"); e("v_add_u32 v15, s40, v9")
    scale_pack(80, lambda r: 48, 88); scale_pack(84, lambda r: 72+r, 90)
    e("ds_write_b64 v12, v[88:89]"); e("ds_write_b64 v13, v[88:89]"); e("ds_write_b64 v15, v[90:91] offset:2048")
    e("s_waitcnt lgkmcnt(0)"); e("s_barrier")
    k.label("qkvb_end"); e("s_endpgm")
    return k.text(252, 252)

def build():
    L = [("prep_kernel", 316, 256, 40960)]
    for it in range(2):
        L += [("qkva_kernel", 256, 512, 163840), ("attn_kernel", 256, 512, 163840), ("proja_kernel", 256, 512, 151552),
              ("qkvb_kernel", 256, 512, 163840), ("projb_kernel" if it == 0 else "projf_kernel", 256, 512, 151552)]
    hdr = open("cdna_kernels/" + NAME + ".s.ref").read().split("; Override launch")[0]
    out = hdr
    for n, g, b, lds in L: out += f"; @launch kernel={n} grid=({g},1,1) block=({b},1,1) lds={lds}\n"
    out += '.amdgcn_target "amdgcn-amd-amdhsa--gfx950"\n'
    out += k_prep() + k_qkva() + k_attn()
    out += k_proj("proja_kernel", 'O', WOA_I, XT_A, XT_B, ST_B, False)
    out += k_qkvb()
    out += k_proj("projb_kernel", 'OB', WOB_I, XT_B, XT_A, ST_A, False)
    out += k_proj("projf_kernel", 'OB', WOB_I, XT_B, None, None, True)
    return out

if __name__ == "__main__":
    dst = sys.argv[1] if len(sys.argv) > 1 else "cdna_kernels/" + NAME + ".s"
    open(dst, "w").write(build())
    print("wrote", dst)
```

```python
import re
REG = re.compile(r'\b([vas])(\d+)\b|\b([vas])\[(\d+):(\d+)\]')
TRANS = ('v_exp_', 'v_log_', 'v_rcp_', 'v_rsq_', 'v_sqrt_', 'v_sin_', 'v_cos_')
def regs(tok):
    out = set()
    for m in REG.finditer(tok):
        if m.group(1): out.add((m.group(1), int(m.group(2))))
        else:
            for i in range(int(m.group(4)), int(m.group(5))+1): out.add((m.group(3), i))
    if re.search(r'\bvcc\b', tok): out.add(('s','vcc'))
    if re.search(r'\bm0\b', tok): out.add(('s','m0'))
    if re.search(r'\bexec\b', tok): out.add(('s','exec'))
    return out
def passes(op):
    if '32x32x4_2b' in op: return 16
    if '32x32x16' in op or '32x32x8' in op: return 8
    if '16x16x32' in op or '16x16x16' in op: return 4
    raise ValueError(op)
class I:
    def __init__(s, line):
        s.line = line
        t = line.split(';')[0].strip()
        p = t.split(None, 1)
        s.op = p[0]
        ops = [x.strip() for x in re.split(r',(?![^\[]*\])', p[1])] if len(p) > 1 else []
        s.ops = ops
        op = s.op
        s.mfma = op.startswith('v_mfma')
        s.valu = op.startswith('v_') and not s.mfma
        s.salu = op.startswith('s_')
        s.ds = op.startswith('ds_')
        s.vmem = op.startswith('buffer_') or op.startswith('global_')
        s.trans = op.startswith(TRANS)
        s.dot = op.startswith('v_dot')
        s.perml = op.startswith('v_permlane')
        s.dpp = 'row_' in t or 'quad_perm' in t or '_dpp' in op
        s.w = set(); s.r = set()
        s.states = 1
        if op == 's_nop': s.states = int(ops[0], 0) + 1
        if s.mfma:
            s.w = regs(ops[0]); s.A = regs(ops[1]); s.B = regs(ops[2]); s.C = regs(ops[3].split()[0]); s.r = s.A | s.B | s.C
            s.p = passes(op)
        elif s.valu:
            if op.startswith('v_cmp'):
                s.w = regs(ops[0]);
                for o in ops[1:]: s.r |= regs(o)
                if op.startswith('v_cmpx'): s.w.add(('s','exec'))
            elif s.perml:
                s.w = regs(ops[0]) | regs(ops[1]); s.r = set(s.w)
            else:
                s.w = regs(ops[0])
                st = 1
                if op.startswith(('v_add_co','v_sub_co','v_addc_co','v_subb_co','v_div_scale')):
                    s.w |= regs(ops[1]); st = 2
                for o in ops[st:]: s.r |= regs(o)
                if op.startswith(('v_fmac','v_dot2c','v_mac','v_pk_fmac','v_writelane')): s.r |= regs(ops[0])
        elif s.ds:
            if op.startswith(('ds_read','ds_bpermute','ds_permute','ds_swizzle')):
                s.w = regs(ops[0])
                for o in ops[1:]: s.r |= regs(o)
            else:
                for o in ops: s.r |= regs(o)
        elif s.vmem:
            s.lds = bool(re.search(r'\blds\b', t))
            if 'load' in op and not s.lds:
                s.w = regs(ops[0])
                for o in ops[1:]: s.r |= regs(o)
            else:
                for o in ops: s.r |= regs(o)
                if s.lds: s.r.add(('s','m0'))
            s.widestore = 'store' in op and ('x3' in op or 'x4' in op)
            if s.widestore:
                s.data = regs(ops[0]) if op.startswith('buffer_') else regs(ops[1])
        elif s.salu:
            if op.startswith(('s_cmp','s_cbranch','s_branch','s_waitcnt','s_barrier','s_nop','s_endpgm','s_setprio','s_sleep')):
                for o in ops: s.r |= regs(o)
            else:
                if ops: s.w = regs(ops[0])
                for o in ops[1:]: s.r |= regs(o)
                if 'saveexec' in op: s.w.add(('s','exec'))
def need(a, b):
    n = 0
    vw = {x for x in a.w if x[0] in 'va'}
    sw = {x for x in a.w if x[0] == 's'}
    if a.valu and not a.dot:
        if b.mfma and (vw & b.r): n = max(n, 2)
    if a.valu:
        if b.perml and (vw & b.r): n = max(n, 2)
        if b.valu and b.dpp and (vw & b.r): n = max(n, 2)
        if b.op.startswith(('v_readlane','v_readfirstlane')) and (vw & b.r): n = max(n, 1)
        if a.trans and b.valu and not b.trans and (vw & b.r): n = max(n, 1)
        if a.trans and b.mfma and (vw & b.r): n = max(n, 2)
        if sw:
            if b.valu and (sw & b.r): n = max(n, 2)
            if b.op.startswith(('v_readlane','v_writelane')) and (sw & b.r): n = max(n, 4)
            if b.vmem and (sw & b.r): n = max(n, 5)
            if ('s','exec') in sw:
                if b.mfma: n = max(n, 4)
                if b.perml or b.op.startswith(('v_readlane','v_readfirstlane','v_writelane')): n = max(n, 4)
                if b.valu and b.dpp: n = max(n, 5)
    if a.dot:
        if b.dot and b.op == a.op:
            srcs = set()
            for o in b.ops[1:3]: srcs |= regs(o)
            if vw & srcs: n = max(n, 3)
        elif (vw & (b.r | b.w)): n = max(n, 3)
    if a.salu and ('s','m0') in a.w and b.vmem and getattr(b,'lds',False): n = max(n, 1)
    if a.vmem and getattr(a,'widestore',False):
        if b.valu and (a.data & b.w): n = max(n, 2)
        elif (a.data & b.w): n = max(n, 1)
    if a.mfma:
        p = a.p
        if b.mfma:
            if a.w & b.C:
                if a.w == b.C and a.p == b.p: n = max(n, 0 if p >= 4 else 2)
                else: n = max(n, p + 2)
            if a.w & (b.A | b.B): n = max(n, p + 4)
            if (a.w & b.w) and not (a.w & b.C): n = max(n, p + 2)
        elif b.valu or b.vmem or b.ds:
            if a.w & (b.r | b.w): n = max(n, p + 4)
            if b.valu and (a.C & b.w): n = max(n, p - 1)
    return n
def lint(lines, name=''):
    ins = []
    for l in lines:
        t = l.split(';')[0].strip()
        if not t or t.endswith(':') or t.startswith('.'): continue
        ins.append(I(l))
    bad = 0
    for j, b in enumerate(ins):
        d = 0
        for i in range(j-1, max(-1, j-24), -1):
            a = ins[i]
            n = need(a, b)
            if n > d:
                print(f"[lint {name}] need {n} have {d}:\n    {a.line.strip()}\n    {b.line.strip()}")
                bad += 1
            d += a.states
            if d >= 21: break
    return bad

def fix(lines):
    out = []; hist = []; added = 0
    for l in lines:
        t = l.split(';')[0].strip()
        if not t or t.endswith(':') or t.startswith('.'):
            out.append(l); continue
        b = I(l); d = 0; short = 0
        for a in reversed(hist[-24:]):
            n = need(a, b)
            if n > d: short = max(short, n - d)
            d += a.states
            if d >= 21: break
        while short > 0:
            n = min(short, 16); nl = f"    s_nop {n-1}"; out.append(nl); hist.append(I(nl)); short -= n; added += 1
        out.append(l); hist.append(b)
    return out, added
```

```python
import sys, math
from lint import lint, fix

NAME = "interleave_layers__softmax_full_mha__sliding_local_dilated__prompt"
S, D, H, DH = 2048, 640, 32, 20
XS = S*D*2
IMG = H*64*2560
QI = H*64*1280
TOUCH0 = 0
OT = 0; OBT = XS
XT = [None, 2*XS, 3*XS, 2*XS]
ST = [None, 4*XS, 4*XS + S*64, 4*XS]
QIMG = [None, 4*XS + 2*S*64]; KVIMG = [None, QIMG[1] + QI]
TOUCH1 = QIMG[1]
QIMG[0] = KVIMG[1] + IMG; KVIMG[0] = QIMG[0] + QI
XT[0] = KVIMG[0] + IMG; ST[0] = XT[0] + XS
U_A  = ST[0] + S*64
U_B  = U_A + 32768
CNT  = U_B + 32768
WA_I = CNT + 131072
WOA_I = WA_I + 15*163840
WB_I = WOA_I + 819200
WOB_I = WB_I + 16*163840
STAMPS = WOB_I + 819200
WS_END = STAMPS + 16*262144
def C1(L): return CNT + L*65536
def C2(L): return C1(L) + 64*256
def C3(L): return C2(L) + 34*256
def C4(L): return C3(L) + 16*256
import os
STAMP = int(os.environ.get("STAMP", "0"))
ATTN_WAVES = 8
AV = os.environ.get("AV", "")
CSCALE = (DH ** -0.5) * math.log2(math.e)
import struct
def fbits(x): return "0x%08x" % struct.unpack("<I", struct.pack("<f", x))[0]

FM = [(0,16),(32,48),(80,96),(112,128),(64,144)]
def FX(ks, t):
    return 160*(ks//5) + FM[ks%5][t]

class KB:
    def __init__(s, name):
        s.name = name; s.L = []; s.vm = []; s.lg = []; s.cap = None
    def e(s, line):
        if s.cap is not None: s.cap.append(('e', line, None))
        else: s.L.append("    " + line)
    def capture(s, fn):
        s.cap = []; fn(); c = s.cap; s.cap = None
        return [x for x in c if not (x[0] == 'e' and x[1].startswith('s_nop'))]
    def fill(s, lst, n=1):
        for _ in range(n):
            if not lst: return
            kind, a, b = lst.pop(0)
            if kind == 'e':
                s.e(a)
                if a.startswith('s_cmp'):
                    while lst and lst[0][0] == 'e' and lst[0][1].startswith('s_cselect'): s.e(lst.pop(0)[1])
            elif kind == 'ds': s.dsop(a, b)
            elif kind == 'wvm': s.waitvm(a)
            elif kind == 'wlg': s.waitlg(a)
    def c(s, txt): s.L.append("    ; " + txt)
    def label(s, l): s.L.append(l + ":")
    def vmop(s, line, tag=None): s.e(line); s.vm.append(tag); assert len(s.vm) <= 63, (s.name, len(s.vm))
    def dsop(s, line, tag=None):
        if s.cap is not None: s.cap.append(('ds', line, tag)); return
        s.e(line); s.lg.append(tag)
    def _n(s, lst, tag):
        idx = max(i for i, t in enumerate(lst) if t == tag)
        return idx
    def waitvm(s, tag):
        if s.cap is not None: s.cap.append(('wvm', tag, None)); return
        if tag not in s.vm: return
        i = s._n(s.vm, tag); n = len(s.vm) - 1 - i
        s.e(f"s_waitcnt vmcnt({n})"); s.vm = s.vm[i+1:]
    def waitlg(s, tag):
        if s.cap is not None: s.cap.append(('wlg', tag, None)); return
        if tag not in s.lg: return
        i = s._n(s.lg, tag); n = len(s.lg) - 1 - i
        if n > 15: n = 15; i = len(s.lg) - 1 - n
        s.e(f"s_waitcnt lgkmcnt({n})"); s.lg = s.lg[i+1:]
    def waitall(s):
        s.e("s_waitcnt vmcnt(0) lgkmcnt(0)"); s.vm = []; s.lg = []
    def srd(s, r, base, nbytes):
        s.e(f"s_mov_b32 s{r}, s{base}")
        s.e(f"s_and_b32 s{r+1}, s{base+1}, 0xffff")
        s.e(f"s_mov_b32 s{r+2}, {nbytes}")
        s.e(f"s_mov_b32 s{r+3}, 0x20000")
    def stamp(s, i):
        if not STAMP: return
        op = "s_memrealtime" if os.environ.get("RT") else "s_memtime"
        s.e(f"{op} s[{64+2*i}:{65+2*i}]" if i < 10 else f"{op} s[{72+2*i}:{73+2*i}]")
    def rstamp(s, i):
        if not STAMP: return
        s.e(f"s_memrealtime s[{64+2*i}:{65+2*i}]")
    def dump(s, n=8, slot=None, wave="s18"):
        if not STAMP: return
        e = s.e
        e("s_load_dwordx2 s[84:85], s[0:1], 56"); e("s_waitcnt vmcnt(0)"); e("s_memrealtime s[86:87]"); e("s_waitcnt lgkmcnt(0)")
        e("s_mov_b64 exec, 1")
        e("s_bfe_u32 s84, s84, 0x50009"); e("s_lshl_b32 s84, s84, 18")
        e("s_lshl_b32 s60, s2, 3"); e(f"s_add_u32 s60, s60, {wave}"); e("s_lshl_b32 s60, s60, 6"); e(f"s_add_u32 s60, s60, {STAMPS}"); e("s_add_u32 s60, s60, s84")
        e("v_mov_b32 v0, 0")
        for i in range(n):
            e(f"v_mov_b32 v1, s{64+2*i if i < 10 else 72+2*i}")
            e(f"buffer_store_dword v1, v0, s[12:15], s60 offen offset:{4*i}")
        e("v_mov_b32 v1, s86"); e("buffer_store_dword v1, v0, s[12:15], s60 offen offset:60")
    def rtdump(s):
        if not STAMP: return
        s.e("v_lshrrev_b32 v1, 6, v0"); s.e("s_nop 0"); s.e("v_readfirstlane_b32 s61, v1"); s.dump(2, wave="s61")
    def text(s, vgpr, accum, sgpr=102):
        s.L, added = fix(s.L)
        if os.environ.get("V"): print(s.name, "auto nops:", added, "lines:", len(s.L))
        out = [".text", f".globl {s.name}", ".p2align 8", f".type {s.name},@function", f"{s.name}:"]
        out += s.L
        out += ['.section .rodata,"a"', ".p2align 6", f".amdhsa_kernel {s.name}",
                f"  .amdhsa_next_free_vgpr {vgpr}", f"  .amdhsa_next_free_sgpr {sgpr}", f"  .amdhsa_accum_offset {accum}",
                "  .amdhsa_group_segment_fixed_size 0", "  .amdhsa_kernarg_size 72", "  .amdhsa_user_sgpr_count 2",
                "  .amdhsa_user_sgpr_kernarg_segment_ptr 1", "  .amdhsa_system_sgpr_workgroup_id_x 1", ".end_amdhsa_kernel"]
        nb = lint(s.L, s.name)
        assert nb == 0, f"{nb} hazards in {s.name}"
        return "\n".join(out) + "\n"
    def allred32(s, op, v, t):
        s.e(f"v_mov_b32 v{t}, v{v}"); s.e("s_nop 1")
        s.e(f"v_permlane32_swap_b32 v{v}, v{t}"); s.e("s_nop 1")
        s.e(f"{op} v{v}, v{v}, v{t}")
    def allred16(s, op, v, t):
        s.e(f"v_mov_b32 v{t}, v{v}"); s.e("s_nop 1")
        s.e(f"v_permlane16_swap_b32 v{v}, v{t}"); s.e("s_nop 1")
        s.e(f"{op} v{v}, v{v}, v{t}")

def vr(a, n): return f"v[{a}:{a+n-1}]" if n > 1 else f"v{a}"
def ar(a, n): return f"a[{a}:{a+n-1}]" if n > 1 else f"a{a}"

def k_prep():
    PSC = os.environ.get("PSC", "sc1")
    k = KB("prep_kernel"); e = k.e
    NX, NA, NB, NO = 128, 60, 64, 64
    e(f"s_cmp_ge_u32 s2, {NX+NA+NB+NO}"); e("s_cbranch_scc1 prep_end0"); k.rstamp(1)
    e("s_load_dwordx2 s[4:5], s[0:1], 0"); e("s_load_dwordx2 s[6:7], s[0:1], 64")
    e("s_load_dwordx4 s[20:23], s[0:1], 8"); e("s_load_dwordx4 s[24:27], s[0:1], 32")
    e("v_and_b32 v1, 63, v0"); e("v_lshrrev_b32 v2, 6, v0")
    e("s_waitcnt lgkmcnt(0)")
    k.srd(12, 6, WS_END)
    e(f"s_cmp_ge_u32 s2, {NX+NA+NB}"); e("s_cbranch_scc1 prep_o")
    e(f"s_cmp_ge_u32 s2, {NX+NA}"); e("s_cbranch_scc1 prep_b")
    e(f"s_cmp_ge_u32 s2, {NX}"); e("s_cbranch_scc1 prep_u")
    k.srd(8, 4, S*D*2)
    e("s_and_b32 s16, s2, 7"); e("s_lshl_b32 s16, s16, 4"); e("s_lshr_b32 s17, s2, 3"); e("s_add_u32 s3, s16, s17")
    e("v_and_b32 v3, 15, v1"); e("v_lshrrev_b32 v4, 4, v1")
    e("s_lshl_b32 s16, s3, 4"); e("v_add_u32 v5, s16, v3")
    e("v_mul_u32_u24 v6, 1280, v5")
    e("v_mul_u32_u24 v7, 320, v2"); e("v_add_u32 v6, v6, v7")
    e("v_lshl_add_u32 v6, v4, 3, v6")
    for i in range(5):
        for t in range(2):
            k.vmop(f"buffer_load_dwordx2 {vr(12+4*i+2*t,2)}, v6, s[8:11], 0 offen offset:{2*FM[i][t]} nt", "x")
    e("s_mul_i32 s17, s3, 20480"); e(f"s_add_u32 s17, s17, {XT[0]}"); e("s_add_u32 s18, s17, 4096")
    e("v_mul_u32_u24 v7, 5120, v2"); e("v_lshl_add_u32 v7, v1, 4, v7")
    e("v_mov_b32 v8, 0"); e("v_mov_b32 v9, 0"); e("v_mov_b32 v10, 0"); e("v_mov_b32 v11, 0")
    e("v_mov_b32 v32, 0x3f803f80")
    k.waitvm("x")
    for i in range(5):
        if i < 4: k.vmop(f"buffer_store_dwordx4 {vr(12+4*i,4)}, v7, s[12:15], s17 offen offset:{1024*i} {PSC}")
        else: k.vmop(f"buffer_store_dwordx4 {vr(12+4*i,4)}, v7, s[12:15], s18 offen {PSC}")
    for r in range(12, 32):
        e(f"v_dot2_f32_bf16 v8, v{r}, v32, v8")
    for r in range(12, 32):
        e(f"v_dot2_f32_bf16 v9, v{r}, v{r}, v9")
    e("s_nop 2")
    k.allred16("v_add_f32", 8, 33); k.allred32("v_add_f32", 8, 33)
    k.allred16("v_add_f32", 9, 33); k.allred32("v_add_f32", 9, 33)
    e("v_cmp_gt_u32 vcc, 16, v1"); e("v_lshlrev_b32 v5, 3, v1"); e("v_lshl_add_u32 v5, v2, 8, v5")
    e("v_cndmask_b32 v8, 0, v8, vcc"); e("v_cndmask_b32 v9, 0, v9, vcc")
    e("s_lshl_b32 s19, s3, 10"); e(f"s_add_u32 s19, s19, {ST[0]}")
    e("s_lshl_b32 s18, s3, 10"); e(f"s_add_u32 s18, s18, {CNT}")
    e("s_mov_b32 exec_hi, 0")
    k.vmop("buffer_store_dwordx2 v[8:9], v5, s[12:15], s19 offen")
    e("s_mov_b64 exec, 0x1111111111111111" if False else "s_mov_b64 exec, -1")
    e("v_cmp_gt_u32 vcc, 128, v0"); e("s_and_saveexec_b64 s[28:29], vcc"); e("s_cbranch_execz prep_end")
    e("v_lshlrev_b32 v6, 3, v0")
    k.vmop("buffer_store_dwordx2 v[10:11], v6, s[12:15], s18 offen")
    k.rtdump(); e("s_endpgm")
    def colsum(regs, acc):
        for r in regs: e(f"v_dot2_f32_bf16 v{acc}, v{r}, v60, v{acc}")
    k.label("prep_u"); k.vm = []
    e(f"s_sub_u32 s16, s2, {NX}"); e("s_and_b32 s17, s16, 3"); e("s_lshr_b32 s16, s16, 2")
    k.srd(8, 20, D*3*D*2)
    e("v_readfirstlane_b32 s18, v2")
    e("v_and_b32 v5, 15, v1"); e("v_lshrrev_b32 v6, 4, v1"); e("v_and_b32 v10, 3, v1")
    e("v_lshl_add_u32 v9, v2, 2, v6"); e("v_mul_u32_u24 v9, 3840, v9")
    e("v_lshrrev_b32 v7, 2, v5"); e("v_xor_b32 v8, v7, v6"); e("v_lshl_add_u32 v9, v8, 6, v9"); e("v_lshl_add_u32 v9, v10, 4, v9")
    e(f"s_mul_i32 s19, s17, {160*3840}"); e("s_lshl_b32 s28, s16, 8"); e("s_add_u32 s19, s19, s28"); e("s_lshl_b32 s29, s18, 10")
    for i in range(10):
        e(f"s_add_u32 m0, s29, {4096*i}")
        e(f"s_add_u32 s28, s19, {16*3840*i}")
        e("buffer_load_dwordx4 v9, s[8:11], s28 offen nt lds")
    e("v_lshrrev_b32 v4, 5, v1"); e("v_lshl_add_u32 v11, v4, 2, v7"); e("v_lshlrev_b32 v11, 8, v11")
    e("v_bfe_u32 v8, v1, 4, 1"); e("v_lshl_add_u32 v11, v8, 5, v11"); e("v_lshl_add_u32 v11, v10, 3, v11")
    e("v_xor_b32 v8, v2, v7"); e("v_lshl_add_u32 v11, v8, 6, v11")
    e("v_lshlrev_b32 v3, 4, v1"); e("v_mov_b32 v60, 0x3f803f80"); e("v_mov_b32 v8, 0")
    e("s_mul_i32 s19, s16, 163840"); e("s_mul_i32 s28, s17, 40960"); e("s_add_u32 s19, s19, s28"); e("s_add_u32 s19, s19, s29"); e(f"s_add_u32 s19, s19, {WA_I}")
    e("s_waitcnt vmcnt(0)"); e("s_barrier")
    for n in range(10):
        for t in range(2): e(f"ds_read_b64_tr_b16 {vr(16+4*n+2*t,2)}, v11 offset:{(FM[n//2][t]+8*(n%2))*256}")
        if n == 5: e("s_waitcnt lgkmcnt(0)")
    e("s_waitcnt lgkmcnt(0)")
    for n in range(10):
        e(f"buffer_store_dwordx4 {vr(16+4*n,4)}, v3, s[12:15], s19 offen {PSC}")
        if n < 9: e("s_add_u32 s19, s19, 4096")
    colsum(range(16, 56), 8); e("s_nop 2")
    k.allred32("v_add_f32", 8, 9)
    e("v_and_b32 v5, 31, v1"); e("v_lshlrev_b32 v5, 4, v5")
    e("s_lshl_b32 s19, s16, 11"); e("s_lshl_b32 s28, s18, 9"); e("s_add_u32 s19, s19, s28"); e("s_lshl_b32 s28, s17, 2"); e("s_add_u32 s19, s19, s28"); e(f"s_add_u32 s19, s19, {U_A}")
    e("s_mov_b32 exec_hi, 0")
    e("buffer_store_dword v8, v5, s[12:15], s19 offen")
    k.rtdump(); e("s_endpgm")
    k.label("prep_b")
    e(f"s_sub_u32 s16, s2, {NX+NA}"); e("s_and_b32 s17, s16, 3"); e("s_lshr_b32 s16, s16, 2")
    k.srd(8, 24, D*3*D*2)
    e("v_readfirstlane_b32 s18, v2")
    e("v_and_b32 v5, 15, v1"); e("v_lshrrev_b32 v6, 4, v1")
    e("v_and_b32 v7, 1, v2"); e("v_lshl_add_u32 v7, v7, 2, v6"); e("v_lshlrev_b32 v7, 1, v7"); e("v_xor_b32 v7, v7, v5"); e("v_min_u32 v7, 14, v7")
    e("v_mul_u32_u24 v8, 52, v7"); e("v_lshrrev_b32 v8, 8, v8"); e("v_mul_u32_u24 v9, 1200, v8"); e("v_lshl_add_u32 v9, v7, 4, v9")
    e("v_lshl_add_u32 v10, v2, 2, v6"); e("v_mul_u32_u24 v10, 3840, v10"); e("v_add_u32 v9, v9, v10")
    e(f"s_mul_i32 s19, s17, {160*3840}"); e("s_mul_i32 s28, s16, 80"); e("s_add_u32 s19, s19, s28"); e("s_lshl_b32 s29, s18, 10")
    for i in range(10):
        e(f"s_add_u32 m0, s29, {4096*i}")
        e(f"s_add_u32 s28, s19, {16*3840*i}")
        e("buffer_load_dwordx4 v9, s[8:11], s28 offen nt lds")
    e("v_lshrrev_b32 v12, 2, v5"); e("v_and_b32 v13, 3, v5")
    e("s_mul_i32 s28, s18, 80"); e("v_lshlrev_b32 v10, 3, v13"); e("v_add_u32 v10, s28, v10"); e("v_add_u32 v11, 40, v10")
    e("s_cmp_lt_u32 s18, 3"); e("s_cbranch_scc1 prep_b1")
    e("v_mul_u32_u24 v10, 40, v13"); e("v_add_u32 v10, 32, v10")
    e("v_and_b32 v11, 1, v13"); e("v_mul_u32_u24 v11, 40, v11"); e("v_add_u32 v11, 192, v11")
    k.label("prep_b1")
    e("v_lshl_add_u32 v14, v6, 2, v12"); e("v_and_b32 v15, 7, v14"); e("v_lshlrev_b32 v15, 5, v15"); e("v_lshlrev_b32 v14, 8, v14")
    e("v_xor_b32 v10, v10, v15"); e("v_add_u32 v10, v10, v14"); e("v_xor_b32 v11, v11, v15"); e("v_add_u32 v11, v11, v14")
    e("v_lshlrev_b32 v3, 4, v1"); e("v_mov_b32 v60, 0x3f803f80"); e("v_mov_b32 v8, 0"); e("v_mov_b32 v9, 0")
    e("s_mul_i32 s19, s16, 163840"); e("s_mul_i32 s28, s17, 40960"); e("s_add_u32 s19, s19, s28"); e("s_lshl_b32 s28, s18, 11"); e("s_add_u32 s19, s19, s28"); e(f"s_add_u32 s19, s19, {WB_I}")
    e("s_waitcnt vmcnt(0)"); e("s_barrier")
    for n in range(10):
        for t in range(2): e(f"ds_read_b64_tr_b16 {vr(16+4*n+2*t,2)}, v{10+n%2} offset:{FM[n//2][t]*256}")
        if n == 5: e("s_waitcnt lgkmcnt(0)")
    e("s_waitcnt lgkmcnt(0)")
    for n in range(10):
        e(f"buffer_store_dwordx4 {vr(16+4*n,4)}, v3, s[12:15], s19 offen offset:{1024*(n%2)} {PSC}")
        if n % 2 and n < 9: e("s_add_u32 s19, s19, 8192")
    for f in range(2): colsum([16+8*m+4*f+q for m in range(5) for q in range(4)], 8+f)
    e("s_nop 2")
    for f in range(2): k.allred16("v_add_f32", 8+f, 12); k.allred32("v_add_f32", 8+f, 12)
    e("v_lshlrev_b32 v5, 4, v5")
    e("s_lshl_b32 s19, s16, 11"); e("s_lshl_b32 s28, s18, 9"); e("s_add_u32 s19, s19, s28"); e("s_lshl_b32 s28, s17, 2"); e("s_add_u32 s19, s19, s28"); e(f"s_add_u32 s19, s19, {U_B}")
    e("s_mov_b64 exec, 0xffff")
    e("buffer_store_dword v8, v5, s[12:15], s19 offen"); e("buffer_store_dword v9, v5, s[12:15], s19 offen offset:256")
    k.rtdump(); e("s_endpgm")
    k.label("prep_o")
    e(f"s_sub_u32 s16, s2, {NX+NA+NB}"); e("s_and_b32 s17, s16, 3"); e("s_lshr_b32 s30, s16, 5"); e("s_bfe_u32 s16, s16, 0x30002")
    e("s_cmp_eq_u32 s30, 1")
    e("s_cselect_b32 s28, s26, s22"); e("s_cselect_b32 s29, s27, s23"); e(f"s_cselect_b32 s31, {WOB_I-WOA_I}, 0")
    k.srd(8, 28, D*D*2)
    e("v_readfirstlane_b32 s18, v2")
    def pat(dst, src):
        e(f"v_mul_u32_u24 v10, 6554, v{src}"); e("v_lshrrev_b32 v10, 16, v10"); e("v_mul_u32_u24 v10, 1120, v10"); e(f"v_lshl_add_u32 v{dst}, v{src}, 4, v10")
    for i in range(5):
        e(f"v_add_u32 v9, {64*i}, v1"); pat(4+i, 9)
    pat(11, 0)
    e(f"s_mul_i32 s19, s17, {160*1280}"); e("s_mul_i32 s28, s16, 160"); e("s_add_u32 s19, s19, s28")
    e("s_mul_i32 s28, s18, 40960"); e("s_add_u32 s28, s28, s19"); e("s_mul_i32 s29, s18, 5120")
    for i in range(5):
        e(f"s_add_u32 m0, s29, {1024*i}"); e("s_nop 0")
        e(f"buffer_load_dwordx4 v{4+i}, s[8:11], s28 offen nt lds")
    e("s_lshl_b32 s29, s18, 10"); e("s_add_u32 m0, s29, 20480"); e("s_add_u32 s28, s19, 163840")
    e("buffer_load_dwordx4 v11, s[8:11], s28 offen nt lds")
    e("s_cmp_eq_u32 s18, 0"); e("s_cbranch_scc0 prep_o1")
    e("s_mov_b32 m0, 24576"); e("s_nop 0")
    e("buffer_load_dwordx4 v8, s[8:11], s28 offen nt lds")
    k.label("prep_o1")
    e("v_lshrrev_b32 v9, 4, v1"); e("v_bfe_u32 v10, v1, 2, 2"); e("v_and_b32 v11, 3, v1")
    e("v_lshlrev_b32 v12, 2, v9"); e("s_mov_b32 s28, 3200")
    e("s_cmp_eq_u32 s30, 1"); e("s_cbranch_scc1 prep_o2")
    e("v_lshrrev_b32 v12, 1, v9"); e("v_mul_u32_u24 v12, 20, v12"); e("v_and_b32 v13, 1, v9"); e("v_lshl_add_u32 v12, v13, 2, v12"); e("s_mov_b32 s28, 1280")
    k.label("prep_o2")
    e("v_add_u32 v12, v12, v10"); e("v_mul_u32_u24 v12, 160, v12"); e("v_lshl_add_u32 v12, v11, 3, v12")
    e("s_mul_i32 s29, s18, 6400"); e("v_add_u32 v12, s29, v12"); e("v_add_u32 v13, s28, v12")
    e("v_mul_u32_u24 v14, 20, v9"); e("v_add_u32 v14, v14, v10"); e("v_mul_u32_u24 v14, 160, v14"); e("v_lshl_add_u32 v14, v11, 3, v14")
    e("v_lshlrev_b32 v3, 4, v1")
    e("s_mul_i32 s19, s16, 102400"); e("s_add_u32 s19, s19, s31"); e(f"s_add_u32 s19, s19, {WOA_I}")
    e("s_lshl_b32 s28, s17, 2"); e("s_add_u32 s28, s28, s18"); e("s_mul_i32 s28, s28, 5120"); e("s_add_u32 s28, s28, s19"); e("s_add_u32 s29, s28, 4096")
    e("s_waitcnt vmcnt(0)"); e("s_barrier")
    for nf in range(5):
        for t in range(2): e(f"ds_read_b64_tr_b16 {vr(16+4*nf+2*t,2)}, v{12+t} offset:{32*nf}")
    e("s_waitcnt lgkmcnt(0)")
    for nf in range(5): e(f"buffer_store_dwordx4 {vr(16+4*nf,4)}, v3, s[12:15], s{28 if nf < 4 else 29} offen offset:{1024*(nf%4)} {PSC}")
    e("s_cmp_eq_u32 s18, 0"); e("s_cbranch_scc0 prep_end")
    for nf in range(5):
        for t in range(2): e(f"ds_read_b64_tr_b16 {vr(36+4*nf+2*t,2)}, v14 offset:{(80*t+16)*160+32*nf}")
    e("s_add_u32 s28, s17, 16"); e("s_mul_i32 s28, s28, 5120"); e("s_add_u32 s28, s28, s19"); e("s_add_u32 s29, s28, 4096")
    e("s_waitcnt lgkmcnt(0)")
    for nf in range(5): e(f"buffer_store_dwordx4 {vr(36+4*nf,4)}, v3, s[12:15], s{28 if nf < 4 else 29} offen offset:{1024*(nf%4)} {PSC}")
    k.label("prep_end"); k.rtdump(); k.label("prep_end0"); e("s_endpgm")
    return k.text(64, 64)

def stats_finish(k, s1, s2, mean, rstd, t):
    e = k.e
    e(f"v_mul_f32 v{mean}, {fbits(1.0/D)}, v{s1}")
    e(f"v_mul_f32 v{t}, {fbits(1.0/D)}, v{s2}")
    e(f"v_fma_f32 v{t}, -v{mean}, v{mean}, v{t}")
    e(f"v_max_f32 v{t}, 0, v{t}")
    e(f"v_add_f32 v{t}, {fbits(1e-5)}, v{t}")
    e(f"v_rsq_f32 v{rstd}, v{t}")
    e("s_nop 0")

def split3(k, src, d, t, kind, maskv=None):
    e = k.e
    if kind == 'm':
        e(f"v_xor_b32 v{t+1}, 0x80000000, v{src}"); src = t+1
    e(f"v_and_b32 v{t}, 0xffff0000, v{src}")
    e(f"v_sub_f32 v{t+2}, v{src}, v{t}")
    if kind == 'u':
        e(f"v_cvt_pk_bf16_f32 v{d}, v{t}, v{t+2}")
        e(f"v_lshrrev_b32 v{d+1}, 16, v{t}")
    else:
        e(f"v_cvt_pk_bf16_f32 v{d}, v{t}, v{t}")
        e(f"v_cvt_pk_bf16_f32 v{d+1}, v{t+2}, 0")
    if maskv is not None:
        e(f"v_and_b32 v{d}, v{d}, v{maskv}"); e(f"v_and_b32 v{d+1}, v{d+1}, v{maskv}")

SC = "sc1"
EARLY = int(os.environ.get('EARLY', '6'))
ENV = lambda n, d: int(os.environ.get(n, d))

def common(k, nwg=256):
    e = k.e
    e(f"s_cmp_ge_u32 s2, {nwg}"); e(f"s_cbranch_scc1 {k.name}_end"); k.stamp(0); k.rstamp(1)
    e("s_load_dwordx2 s[6:7], s[0:1], 64"); e("s_load_dwordx2 s[46:47], s[0:1], 48")
    e("s_and_b32 s20, s2, 7"); e("s_lshr_b32 s21, s2, 3")
    e("v_lshrrev_b32 v2, 6, v0"); e("v_and_b32 v1, 63, v0")
    e("v_readfirstlane_b32 s18, v2")
    e("s_and_b32 s39, s18, 3"); e("s_lshl_b32 s45, s39, 10")

def ids_mt(k):
    k.e("s_lshl_b32 s22, s20, 1"); k.e("s_and_b32 s23, s21, 1"); k.e("s_add_u32 s16, s22, s23"); k.e("s_lshr_b32 s17, s21, 1")
def ids_rt(k):
    k.e("s_lshl_b32 s22, s20, 2"); k.e("s_and_b32 s23, s21, 3"); k.e("s_add_u32 s16, s22, s23"); k.e("s_lshr_b32 s17, s21, 2")

LW = 163824
PV_ = 240
def lw_init(k):
    e = k.e
    e(f"v_mov_b32 v{PV_+3}, {LW}")
    for i in range(3): e(f"v_mov_b32 v{PV_+i}, 0")
    e(f"ds_write_b96 v{PV_+3}, v[{PV_}:{PV_+2}]"); e(f"ds_write_b32 v{PV_+3}, v{PV_} offset:12")

def signal(k, tag, word, nw, addr_code, younger=0):
    e = k.e
    addr_code()
    e(f"v_mov_b32 v{PV_+3}, {LW}"); e(f"v_mov_b32 v{PV_}, 1")
    e("s_mov_b64 exec, 1")
    e(f"s_waitcnt vmcnt({younger})"); k.vm = k.vm[len(k.vm)-younger:] if younger else []
    if tag == os.environ.get("FOC"): k.stamp(2)
    e(f"ds_add_rtn_u32 v{PV_+2}, v{PV_+3}, v{PV_} offset:{8*word}")
    e("s_waitcnt lgkmcnt(0)"); k.lg = []
    e(f"v_readfirstlane_b32 s49, v{PV_+2}")
    e("s_mov_b64 exec, s[56:57]")
    e(f"s_cmp_eq_u32 s49, {nw-1}"); e(f"s_cbranch_scc0 {k.name}_{tag}_sg")
    e(f"buffer_atomic_add v{PV_}, v{PV_+1}, s[12:15], s48 offen {SC}")
    if os.environ.get("FOC2") == tag: k.stamp(4)
    k.label(f"{k.name}_{tag}_sg")
    e("s_mov_b64 exec, -1")

def wait_go(k, tag, word, poll_code):
    e = k.e; nm = f"{k.name}_{tag}"
    e(f"v_mov_b32 v{PV_+3}, {LW}"); e("s_mov_b32 s49, 0")
    if poll_code:
        e("s_cmp_eq_u32 s18, 0"); e(f"s_cbranch_scc0 {nm}_sp")
        poll_code()
        e("s_mov_b64 exec, s[56:57]")
        if os.environ.get("FOC") == "g" + tag: k.stamp(2)
        k.label(f"{nm}_pl")
        e(f"v_mov_b32 v{PV_}, 0")
        e(f"buffer_atomic_add v{PV_}, v{PV_+1}, s[12:15], s48 offen sc0 sc1")
        e("s_add_u32 s49, s49, 1")
        e("s_waitcnt vmcnt(0)")
        e(f"v_cmp_ge_u32 vcc, v{PV_}, v{PV_+2}")
        e("s_cmp_ge_u32 s49, 0x20000"); e(f"s_cbranch_scc1 {nm}_px")
        e("s_cmp_eq_u64 vcc, exec"); e(f"s_cbranch_scc0 {nm}_pl")
        k.label(f"{nm}_px")
        if os.environ.get("FOC") == "g" + tag: e("s_add_u32 s70, s64, s49")
        e("s_mov_b64 exec, 1"); e(f"v_mov_b32 v{PV_}, 1")
        e(f"ds_write_b32 v{PV_+3}, v{PV_} offset:{8*word+4}")
        e(f"s_branch {nm}_go")
    k.label(f"{nm}_sp")
    e("s_sleep 1")
    e(f"ds_read_b32 v{PV_}, v{PV_+3} offset:{8*word+4}")
    e("s_add_u32 s49, s49, 1")
    e("s_waitcnt lgkmcnt(0)")
    e(f"v_readfirstlane_b32 s44, v{PV_}")
    e("s_cmp_ge_u32 s49, 0x400000"); e(f"s_cbranch_scc1 {nm}_go")
    e("s_cmp_eq_u32 s44, 0"); e(f"s_cbranch_scc1 {nm}_sp")
    k.label(f"{nm}_go")
    e("s_mov_b64 exec, -1")

class Wdma:
    def __init__(s, k, n, base=50, tag="w"): s.k = k; s.n = n; s.i = 0; s.base = base; s.tag = tag
    def one(s, i):
        s.k.e(f"s_add_u32 m0, s45, {4096*i}"); s.k.e(f"s_add_u32 s32, s{s.base}, {4096*i}")
        s.k.vmop("buffer_load_dwordx4 v3, s[12:15], s32 offen lds", f"{s.tag}{i}")
    def go(s, upto):
        while s.i < min(upto, s.n): s.one(s.i); s.i += 1
    def rng(s, a, b, thr=0):
        for i in range(a, b):
            s.one(i)
            if thr and len(s.k.vm) >= thr: s.k.e(f"s_waitcnt vmcnt({thr-1})"); s.k.vm = s.k.vm[len(s.k.vm)-thr+1:]

def ph_attn(k, L):
    e = k.e; nm = k.name
    KA, KT, VA = 4, 5, 6
    Q = [8, 14]; KF = [24, 32]; VF = [40, 48]; SS = [56, 72]; P = 88; O = [96, 112]; PF = 128
    SCR = 102400
    ids_rt(k)
    e("v_and_b32 v3, 31, v1"); e("v_lshrrev_b32 v7, 5, v1")
    e("v_lshlrev_b32 v22, 4, v1"); e("v_lshlrev_b32 v23, 3, v3")
    e("s_mul_i32 s19, s16, 163840")
    e("s_lshr_b32 s41, s18, 2")
    e("s_lshl_b32 s23, s17, 3"); e("s_lshl_b32 s22, s39, 1"); e("s_add_u32 s23, s23, s22")
    e("s_mul_i32 s24, s23, 1280"); e("s_lshr_b32 s22, s19, 1"); e("s_add_u32 s24, s24, s22"); e(f"s_add_u32 s24, s24, {QIMG[L]}")
    e("s_mul_i32 s42, s41, 81920")
    e("s_add_u32 s25, s45, s42")
    e("s_add_u32 s26, s19, s25"); e(f"s_add_u32 s26, s26, {KVIMG[L]}")
    e("s_waitcnt lgkmcnt(0)")
    k.stamp(2); k.srd(12, 6, WS_END)
    rnd = [0]
    def dma():
        i = rnd[0]; rnd[0] += 1
        e(f"s_add_u32 m0, s25, {4096*i}"); e(f"s_add_u32 s27, s26, {4096*i}")
        k.vmop(f"buffer_load_dwordx4 v22, s[12:15], s27 offen lds", f"i{i}")
    dma()
    for x in range(2):
        k.vmop(f"buffer_load_dwordx4 {vr(Q[x],4)}, v22, s[12:15], s24 offen offset:{1280*x}", "q")
        k.vmop(f"buffer_load_dwordx2 {vr(Q[x]+4,2)}, v23, s[12:15], s24 offen offset:{1280*x+1024}", "q")
    for _ in range(3): dma()
    e(f"v_add_u32 v{KA}, s42, v22")
    e(f"v_add_u32 v{KT}, s42, v23"); e(f"v_add_u32 v{KT}, 1024, v{KT}")
    e("v_mul_u32_u24 v21, 20, v7"); e("v_add_u32 v21, v21, v3"); e("v_lshlrev_b32 v21, 4, v21")
    e("v_add_u32 v21, 1280, v21"); e(f"v_add_u32 v{VA}, s42, v21")
    e("s_mov_b32 s28, 0x000fffff"); e("s_mov_b32 s29, 0x000fffff")
    e("v_cmp_eq_u32 vcc, 20, v3"); e("v_mov_b32 v20, 0x3f803f80"); e("s_nop 0")
    e("v_cndmask_b32 v20, 0, v20, vcc")
    for r in range(16): e(f"v_mov_b32 v{VF[0]+r}, v20")
    for r in range(32): e(f"v_mov_b32 v{O[0]+r}, 0")
    for r in range(4): e(f"v_mov_b32 v{P+4+r}, 0")
    e("v_subrev_u32 v30, 1, v7")
    e("s_lshl_b32 s43, s21, 3"); e("s_add_u32 s43, s43, s18"); e("s_mul_i32 s43, s43, 14336"); e(f"s_add_u32 s43, s43, {WOA_I}")
    e("v_lshlrev_b32 v134, 6, v1"); e("s_lshl_b32 s55, s2, 3"); e("s_add_u32 s55, s55, s18")
    TCH = ENV('TCH', '7'); NTM = 7 if (TCH == 6 and L == 0) else 31
    e(f"v_lshlrev_b32 v134, {TCH if L == 0 else 6}, v1"); e("s_mov_b32 s44, s18" if NTM == 7 else "s_lshl_b32 s44, s18, 1")
    if L == 0: e(f"s_mul_i32 s62, s55, {-(-(TOUCH1-TOUCH0)//2048//128)*128}"); e("s_mov_b32 s63, 4096" if False else "s_mov_b32 s63, 2688")
    else: e("s_mul_i32 s55, s55, 1280"); k.srd(60, 46, S*D*2)
    e("s_add_u32 s23, s23, s41")
    e("s_mul_i32 s32, s23, 40960"); e(f"s_add_u32 s32, s32, {OT}")
    e("s_lshr_b32 s51, s16, 1"); e("s_lshl_b32 s51, s51, 10"); e("s_and_b32 s34, s16, 1"); e("s_lshl_b32 s34, s34, 9")
    e("s_add_u32 s51, s51, s34"); e("s_add_u32 s51, s51, s32")
    e("s_lshr_b32 s52, s16, 3"); e("s_add_u32 s52, s52, 16"); e("s_lshl_b32 s52, s52, 10"); e("s_add_u32 s52, s52, s32")
    e("s_and_b32 s35, s16, 3"); e("s_lshl_b32 s35, s35, 8"); e("s_add_u32 s52, s52, s35")
    e("s_bfe_u32 s35, s16, 0x10002"); e("s_lshl_b32 s35, s35, 3"); e("s_add_u32 s52, s52, s35")
    e("v_lshrrev_b32 v38, 4, v3"); e("v_mul_u32_u24 v38, 20480, v38"); e("v_and_b32 v39, 15, v3")
    e("v_lshl_add_u32 v38, v39, 4, v38"); e("v_lshl_add_u32 v39, v7, 8, v38")
    e("s_lshl_b32 s59, s18, 10"); e("s_mul_i32 s50, s17, 102400"); e("s_add_u32 s50, s50, s59"); e(f"s_add_u32 s50, s50, {WOA_I}")
    e("s_mul_i32 s32, s18, 3072"); e("s_xor_b32 s33, s18, 4"); e("s_mul_i32 s33, s33, 3072")
    e(f"v_add_u32 v132, {SCR}, v22"); e("v_add_u32 v133, s33, v132"); e("v_add_u32 v132, s32, v132")
    k.waitvm("q")
    for x in range(2):
        e(f"v_and_b32 v{Q[x]+4}, v{Q[x]+4}, v30"); e(f"v_and_b32 v{Q[x]+5}, v{Q[x]+5}, v30")
    k.waitvm("i1"); e("s_barrier"); k.stamp(3)
    def rdK(buf, off):
        e(f"ds_read_b128 {vr(KF[buf],4)}, v{KA} offset:{off}")
        e(f"ds_read_b64 {vr(KF[buf]+4,2)}, v{KT} offset:{off}")
    def rdV(buf, off):
        e("s_mov_b64 exec, s[28:29]")
        e(f"ds_read_b128 {vr(VF[buf],4)}, v{VA} offset:{off}")
        e(f"ds_read_b128 {vr(VF[buf]+4,4)}, v{VA} offset:{off+640}")
        e("s_mov_b64 exec, -1")
    def qkm(x, kb): e(f"v_mfma_f32_32x32x16_bf16 {vr(SS[x],16)}, {vr(KF[kb],4)}, {vr(Q[x],4)}, 0")
    def qkt(x, kb): e(f"v_mfma_f32_32x32x8_bf16 {vr(SS[x],16)}, {vr(KF[kb]+4,2)}, {vr(Q[x]+4,2)}, {vr(SS[x],16)}")
    def pv(x, vb, u): e(f"v_mfma_f32_32x32x16_bf16 {vr(O[x],16)}, {vr(VF[vb]+4*u,4)}, {vr(P+4*u,4)}, {vr(O[x],16)}")
    def unit(x, t, extra=None):
        p = t % 2; s = SS[x]
        ex = lambda i: e(f"v_exp_f32 v{s+i}, v{s+i}")
        cv = lambda i: e(f"v_cvt_pk_bf16_f32 v{P+i}, v{s+2*i}, v{s+2*i+1}")
        kb = p if x == 0 else 1-p
        if x == 1: e("s_waitcnt lgkmcnt(2)")
        qkm(1-x, kb)
        if x == 1: rdK(p, (t+2)*2560)
        for i in range(0, 4): ex(i)
        if x == 0:
            pv(1, 1-p, 1); rdV(1-p, (t+1)*2560)
        else:
            pv(0, p, 1)
        if extra: extra()
        for i in range(4, 8): ex(i)
        for i in range(0, 4): cv(i)
        qkt(1-x, kb)
        for i in range(8, 12): ex(i)
        if x == 0: e("s_waitcnt lgkmcnt(4)")
        pv(x, p, 0)
        for i in range(12, 16): ex(i)
        for i in range(4, 8): cv(i)
    def touch(t):
        e(f"s_cmp_eq_u32 s44, {t}"); e(f"s_cbranch_scc0 {nm}_t{t}")
        if L == 0: e(f"buffer_load_dword v{PF}, v134, s[12:15], s62 offen"); e("s_add_u32 s62, s62, s63")
        else: e(f"buffer_load_dword v{PF}, v134, s[60:63], s55 offen")
        k.label(f"{nm}_t{t}")
    rdK(0, 0); rdV(0, 0); rdK(1, 2560)
    e("s_waitcnt lgkmcnt(4)")
    qkm(0, 0); e("s_nop 10"); qkt(0, 0); e("s_nop 10")
    SYN = {1: 3, 4: 7, 7: 19}; PEEL = 8
    for t in range(PEEL):
        if t in SYN: k.waitvm(f"i{SYN[t]}"); e("s_barrier")
        if t == 7:
            e("s_cmp_ge_u32 s18, 4"); e(f"s_cbranch_scc0 {nm}_np"); e("s_setprio 1"); k.label(f"{nm}_np")
        d2 = lambda: (dma(), dma())
        unit(0, t, d2 if rnd[0] < 20 else None)
        unit(1, t, d2 if rnd[0] < 20 else None)
    for r in (KA, KT, VA): e(f"v_add_u32 v{r}, {PEEL*2560}, v{r}")
    e("s_mov_b32 s31, 0")
    def pref():
        e(f"buffer_load_dwordx4 {vr(PF,4)}, v22, s[12:15], s43 offen"); e("s_add_u32 s43, s43, 1024")
    e(".p2align 3")
    body_start = len(k.L)
    k.label(f"{nm}_aloop")
    NT = 4; NIT = (32 - PEEL)//NT
    for t in range(NT):
        unit(0, t, pref if t != 3 else None); unit(1, t, (lambda: touch(t)) if TCH else None)
    for r in (KA, KT, VA): e(f"v_add_u32 v{r}, {NT*2560}, v{r}")
    e("s_add_u32 s31, s31, 1"); e("s_sub_u32 s44, s44, 4"); e(f"s_and_b32 s44, s44, {NTM}")
    e(f"s_cmp_eq_u32 s31, {NIT-1}"); e(f"s_cbranch_scc0 {nm}_l1"); e("s_setprio 0"); k.label(f"{nm}_l1")
    e(f"s_cmp_lt_u32 s31, {NIT}"); e(f"s_cbranch_scc1 {nm}_aloop")
    body = k.L[body_start:]
    assert lint(body + body, "attn_loop2") == 0
    pv(1, 1, 1); k.stamp(4)
    e("s_waitcnt lgkmcnt(0)"); e("s_barrier")
    for i in range(EARLY//2):
        e(f"s_add_u32 m0, s59, {8192*i}"); e(f"s_add_u32 s27, s50, {8192*i}")
        e("buffer_load_dwordx4 v22, s[12:15], s27 offen lds")
    e("s_mov_b32 s30, 0")
    e("s_cmp_eq_u32 s41, 0"); e(f"s_cbranch_scc1 {nm}_k0")
    e("s_nop 6")
    for i in range(3): e(f"ds_write_b128 v132, {vr(O[0]+4*i,4)} offset:{1024*i}")
    for r in range(12): e(f"v_mov_b32 v{O[0]+r}, v{O[1]+r}")
    for r in range(6): e(f"v_mov_b32 v{Q[0]+r}, v{Q[1]+r}")
    e(f"s_branch {nm}_k1")
    k.label(f"{nm}_k0")
    lw_init(k); e("s_nop 3")
    for i in range(3): e(f"ds_write_b128 v132, {vr(O[1]+4*i,4)} offset:{1024*i}")
    k.label(f"{nm}_k1")
    e(f"s_mov_b32 s32, {fbits(2.0**-60)}"); e(f"s_mov_b32 s33, {fbits(2.0**100)}"); e(f"s_mov_b32 s34, {fbits(2.0**126)}")
    e("s_waitcnt lgkmcnt(0)"); e("s_barrier")
    for i in (2, 0, 1): e(f"ds_read_b128 {vr(SS[0]+4*i,4)}, v133 offset:{1024*i}")
    OO = O[0]
    e("s_waitcnt lgkmcnt(2)")
    for r in range(8, 12): e(f"v_add_f32 v{OO+r}, v{OO+r}, v{SS[0]+r}")
    e("s_waitcnt lgkmcnt(0)")
    for r in range(8): e(f"v_add_f32 v{OO+r}, v{OO+r}, v{SS[0]+r}")
    k.label(f"{nm}_chk")
    e(f"v_mov_b32 v30, v{OO+8}"); e(f"v_mov_b32 v31, v{OO+8}")
    e(f"v_max3_f32 v28, abs(v{OO}), abs(v{OO+1}), abs(v{OO+2})")
    e("v_permlane32_swap_b32 v30, v31")
    for r in range(3, 11, 2): e(f"v_max3_f32 v28, abs(v{OO+r}), abs(v{OO+r+1}), v28")
    e(f"v_max_f32 v28, abs(v{OO+11}), v28")
    e("v_cmp_le_f32 vcc, s32, v31"); e("v_cmp_ge_f32 s[36:37], s33, v31"); e("v_cmp_gt_f32 s[40:41], s34, v28")
    e("v_rcp_f32 v31, v31")
    e("s_and_b64 s[36:37], s[36:37], vcc"); e("s_and_b64 s[36:37], s[36:37], s[40:41]")
    e("s_cmp_eq_u64 s[36:37], -1"); e(f"s_cbranch_scc1 {nm}_fin")
    e("s_cmp_eq_u32 s30, 0"); e(f"s_cbranch_scc0 {nm}_fin")
    e("s_mov_b32 s30, 1")
    e("s_waitcnt vmcnt(0)")
    NM = O[1]
    e("v_mov_b32 v32, 0xff800000")
    def slowqk(c):
        e(f"buffer_load_dwordx4 {vr(KF[0],4)}, v22, s[12:15], s27 offen")
        e(f"buffer_load_dwordx2 {vr(KF[0]+4,2)}, v23, s[12:15], s27 offen offset:1024")
        e("s_waitcnt vmcnt(0)")
        e(f"v_mfma_f32_32x32x16_bf16 {vr(SS[0],16)}, {vr(KF[0],4)}, {vr(Q[0],4)}, {c}"); e("s_nop 10")
        e(f"v_mfma_f32_32x32x8_bf16 {vr(SS[0],16)}, {vr(KF[0]+4,2)}, {vr(Q[0]+4,2)}, {vr(SS[0],16)}"); e("s_nop 12")
    e(f"s_add_u32 s27, s19, {KVIMG[L]}"); e("s_mov_b32 s31, 0")
    k.label(f"{nm}_mx")
    slowqk("0")
    for r in range(0, 16, 2): e(f"v_max3_f32 v32, v{SS[0]+r}, v{SS[0]+r+1}, v32")
    e("s_add_u32 s27, s27, 2560")
    e("s_add_u32 s31, s31, 1"); e("s_cmp_lt_u32 s31, 64"); e(f"s_cbranch_scc1 {nm}_mx")
    k.allred32("v_max_f32", 32, 33)
    e("v_xor_b32 v32, 0x80000000, v32")
    for r in range(16): e(f"v_mov_b32 v{NM+r}, v32")
    for r in range(16): e(f"v_mov_b32 v{OO+r}, 0")
    for r in range(8): e(f"v_mov_b32 v{VF[0]+r}, v20")
    e(f"s_add_u32 s27, s19, {KVIMG[L]}"); e("s_mov_b32 s31, 0")
    k.label(f"{nm}_sl")
    e("s_mov_b64 exec, s[28:29]")
    e(f"buffer_load_dwordx4 {vr(VF[0],4)}, v21, s[12:15], s27 offen")
    e(f"buffer_load_dwordx4 {vr(VF[0]+4,4)}, v21, s[12:15], s27 offen offset:640")
    e("s_mov_b64 exec, -1")
    slowqk(vr(NM,16))
    for i in range(16): e(f"v_exp_f32 v{SS[0]+i}, v{SS[0]+i}")
    e("s_nop 0")
    for i in range(8): e(f"v_cvt_pk_bf16_f32 v{P+i}, v{SS[0]+2*i}, v{SS[0]+2*i+1}")
    e("s_nop 1")
    pv(0, 0, 0); pv(0, 0, 1)
    e("s_add_u32 s27, s27, 2560")
    e("s_add_u32 s31, s31, 1"); e("s_cmp_lt_u32 s31, 64"); e(f"s_cbranch_scc1 {nm}_sl")
    e("s_nop 12"); e(f"s_branch {nm}_chk")
    k.label(f"{nm}_fin")
    e("s_nop 0")
    for r in range(12): e(f"v_mul_f32 v{OO+r}, v{OO+r}, v31")
    for r in range(6): e(f"v_cvt_pk_bf16_f32 v{P+r}, v{OO+2*r}, v{OO+2*r+1}")
    e(f"buffer_store_dwordx4 {vr(P,4)}, v39, s[12:15], s51 offen {SC}")
    e("s_mov_b32 exec_hi, 0")
    e(f"buffer_store_dwordx2 {vr(P+4,2)}, v38, s[12:15], s52 offen {SC}")
    e("s_mov_b64 exec, -1")
    e("v_lshlrev_b32 v3, 4, v1")
    k.vm = []; k.lg = []

def proj_c(k, tag, src, xin, xout, stout, final, cnt_code, word, st0):
    e = k.e
    ACC, RESID, A, BF = 24, 44, 76, 156
    NA0 = ENV('PA0', '8')
    ids_rt(k)
    e("s_lshl_b32 s19, s16, 2"); e("s_add_u32 s19, s19, s39")
    e("s_mul_i32 s24, s19, 20480")
    e("s_lshr_b32 s33, s17, 1"); e("s_mul_i32 s33, s33, 5120"); e("s_add_u32 s33, s33, s24")
    e("s_and_b32 s34, s17, 1"); e("s_lshl_b32 s35, s34, 11"); e("s_add_u32 s35, s35, s33")
    e("s_lshl_b32 s34, s34, 3"); e("s_add_u32 s36, s33, s34"); e("s_add_u32 s36, s36, 4096")
    e(f"s_add_u32 s37, s35, {xin}"); e(f"s_add_u32 s38, s36, {xin}")
    k.vmop(f"buffer_load_dwordx4 {vr(RESID,4)}, v3, s[12:15], s37 offen {SC}", "r")
    k.vmop(f"buffer_load_dwordx4 {vr(RESID+4,4)}, v3, s[12:15], s37 offen offset:1024 {SC}", "r")
    k.vmop(f"buffer_load_dwordx2 {vr(RESID+8,2)}, v3, s[12:15], s38 offen {SC}", "r")
    e(f"s_add_u32 s24, s24, {src}")
    for i in range(1, 5): e(f"s_add_u32 s{24+i}, s24, {4096*i}")
    e("v_lshrrev_b32 v9, 4, v1"); e("v_add_u32 v12, 61440, v3")
    wait_go(k, tag, word, cnt_code)
    k.stamp(st0)
    def ldA(n): k.vmop(f"buffer_load_dwordx4 {vr(A+4*n,4)}, v3, s[12:15], s{24+n//4} offen offset:{(n%4)*1024} {SC}", f"a{n}")
    for n in range(NA0): ldA(n)
    k.waitvm("r")
    for i in range(10):
        e(f"v_lshlrev_b32 v{ACC+2*i}, 16, v{RESID+i}"); e(f"v_and_b32 v{ACC+2*i+1}, 0xffff0000, v{RESID+i}")
    def rd(n, nf):
        off = n*5120 + nf*1024; b = 3
        if n >= 12: off -= 61440; b = 12
        k.dsop(f"ds_read_b128 {vr(BF+20*(n%2)+4*nf,4)}, v{b} offset:{off}", f"b{n}_{nf}")
    e("s_barrier")
    for n in range(2):
        for nf in range(5): rd(n, nf)
    for n in range(20):
        k.waitvm(f"a{n}")
        if n == 0: k.stamp(st0+1)
        for nf in range(5):
            if nf in (0, 2, 4): k.waitlg(f"b{n}_{min(nf+1,4)}")
            if n == 12 and nf == 0 and not final: e("s_barrier")
            e(f"v_mfma_f32_16x16x32_bf16 {vr(ACC+4*nf,4)}, {vr(BF+20*(n%2)+4*nf,4)}, {vr(A+4*n,4)}, {vr(ACC+4*nf,4)}")
            if n + 2 < 20: rd(n+2, nf)
            if nf == 0 and n + NA0 < 20: ldA(n + NA0)
    if not final: e("s_barrier")
    if final:
        e("v_and_b32 v16, 15, v1"); e("v_mul_u32_u24 v16, 1280, v16"); e("v_lshl_add_u32 v16, v9, 3, v16")
        e("s_mul_i32 s32, s19, 20480"); e("s_mul_i32 s31, s17, 160"); e("s_add_u32 s32, s32, s31")
        for nf in range(5):
            for r in range(2): e(f"v_cvt_pk_bf16_f32 v{RESID+2*nf+r}, v{ACC+4*nf+2*r}, v{ACC+4*nf+2*r+1}")
            e(f"buffer_store_dwordx2 {vr(RESID+2*nf,2)}, v16, s[60:63], s32 offen offset:{32*nf}")
    else:
        e(f"s_add_u32 s37, s35, {xout}"); e(f"s_add_u32 s38, s36, {xout}")
        e("s_lshl_b32 s32, s19, 10"); e("s_lshl_b32 s33, s17, 7"); e("s_add_u32 s32, s32, s33"); e(f"s_add_u32 s32, s32, {stout}")
        e("v_lshlrev_b32 v16, 3, v1")
        for i in range(10): e(f"v_cvt_pk_bf16_f32 v{RESID+i}, v{ACC+2*i}, v{ACC+2*i+1}")
        e(f"buffer_store_dwordx4 {vr(RESID,4)}, v3, s[12:15], s37 offen {SC}")
        e(f"buffer_store_dwordx4 {vr(RESID+4,4)}, v3, s[12:15], s37 offen offset:1024 {SC}")
        e(f"buffer_store_dwordx2 {vr(RESID+8,2)}, v3, s[12:15], s38 offen {SC}")
        e(f"v_add_f32 v18, v{ACC}, v{ACC+1}"); e(f"v_mul_f32 v19, v{ACC}, v{ACC}"); e(f"v_add_f32 v20, v{ACC+2}, v{ACC+3}"); e(f"v_mul_f32 v21, v{ACC+1}, v{ACC+1}")
        e(f"v_fmac_f32 v19, v{ACC+2}, v{ACC+2}"); e(f"v_fmac_f32 v21, v{ACC+3}, v{ACC+3}")
        for i in range(4, 20, 2):
            e(f"v_add_f32 v18, v18, v{ACC+i}"); e(f"v_fmac_f32 v19, v{ACC+i}, v{ACC+i}")
            e(f"v_add_f32 v20, v20, v{ACC+i+1}"); e(f"v_fmac_f32 v21, v{ACC+i+1}, v{ACC+i+1}")
        e("v_add_f32 v18, v18, v20"); e("v_add_f32 v19, v19, v21")
        for sw in ("v_permlane16_swap_b32", "v_permlane32_swap_b32"):
            e("v_mov_b32 v20, v18"); e("v_mov_b32 v21, v19"); e("s_nop 0")
            e(f"{sw} v18, v20"); e(f"{sw} v19, v21"); e("s_nop 0")
            e("v_add_f32 v18, v18, v20"); e("v_add_f32 v19, v19, v21")
        e("s_mov_b64 exec, 0xffff")
        e(f"buffer_store_dwordx2 v[18:19], v16, s[12:15], s32 offen {SC}")
    k.stamp(st0+2)

def proj_l(k, wimg, nxt, src, sig=None, done=0):
    e = k.e
    if nxt is not None:
        ids_mt(k)
        e("s_min_u32 s17, s17, 14" if nxt == WA_I else "s_nop 0")
        e("s_mul_i32 s58, s17, 163840"); e("s_add_u32 s58, s58, s45"); e(f"s_add_u32 s58, s58, {nxt}")
    ids_rt(k)
    e("s_mul_i32 s50, s17, 102400"); e("s_add_u32 s50, s50, s45"); e(f"s_add_u32 s50, s50, {wimg}")
    e("s_mul_i32 s51, s16, 81920"); e("s_lshl_b32 s52, s17, 2"); e("s_add_u32 s52, s52, s39"); e("s_mul_i32 s52, s52, 2560"); e("s_add_u32 s51, s51, s52"); e(f"s_add_u32 s51, s51, {src}")
    e("v_min_u32 v21, 39, v1"); e("v_lshlrev_b32 v21, 6, v21")
    w = Wdma(k, 25, 50, "o"); k.vm = []
    T1, T2 = ENV('T1', '4'), ENV('T2', '3')
    if sig:
        n = ENV('N1', '2'); w.rng(done, done + n); signal(k, "s1l", 0, 8, sig, n); done += n
    w.rng(done, 25, T1 if sig else 0)
    w2 = Wdma(k, 40, 58)
    if nxt is not None: w2.rng(32, 39, T1 if sig else 0)
    k.waitvm("o24")
    e("s_barrier")
    if ENV('ATOUCH', '1'):
        k.vmop("buffer_load_dword v20, v21, s[12:15], s51 offen")
    if nxt is not None:
        w2.rng(25, 32)
        e("s_barrier")
        w2.rng(0, 15)
        e("s_barrier")
        k.waitvm("w14")
        w2.rng(15, 25, T2)
    return w2

def stats16(k, s, rstd, mop, mask):
    e = k.e
    e(f"v_add_f32 v{s}, v{s}, v{s+2}"); e(f"v_add_f32 v{s+1}, v{s+1}, v{s+3}")
    k.allred16("v_add_f32", s, s+2); k.allred16("v_add_f32", s+1, s+3)
    k.allred32("v_add_f32", s, s+2); k.allred32("v_add_f32", s+1, s+3)
    stats_finish(k, s, s+1, s+2, rstd, s+3)
    split3(k, s+2, mop, 17, 'm', mask)
def usum(k, u, dst, t=17):
    e = k.e
    e(f"v_add_f32 v{u}, v{u}, v{u+1}"); e(f"v_add_f32 v{u+2}, v{u+2}, v{u+3}"); e(f"v_add_f32 v{u}, v{u}, v{u+2}")
    split3(k, u, dst, t, 'u')
def scale_pack(k, a, sc, dst):
    for r in range(4): k.e(f"v_mul_f32 v{a+r}, v{a+r}, v{sc(r)}")
    for r in range(2): k.e(f"v_cvt_pk_bf16_f32 v{dst+r}, v{a+2*r}, v{a+2*r+1}")
EX = 102400
TOKF = (0, 1, 2, 3, 6); FEAF = (4, 5, 7)

def atouch_pre(k, xin):
    e = k.e
    e("s_mul_i32 s51, s16, 163840"); e("s_lshl_b32 s52, s17, 2"); e("s_add_u32 s52, s52, s39"); e("s_mul_i32 s52, s52, 2560"); e("s_add_u32 s51, s51, s52"); e(f"s_add_u32 s51, s51, {xin}")
    e("v_min_u32 v21, 39, v1"); e("v_lshlrev_b32 v21, 6, v21")

def qkvb_pre(k):
    e = k.e
    ids_mt(k)
    e("v_and_b32 v5, 15, v1"); e("v_lshrrev_b32 v6, 4, v1")
    e("s_lshl_b32 s22, s16, 3"); e("s_lshl_b32 s19, s39, 1"); e("s_add_u32 s19, s19, s22")
    e("v_lshlrev_b32 v11, 3, v5"); e("v_lshl_add_u32 v11, v6, 8, v11")
    e("v_lshlrev_b32 v14, 4, v5")
    e("s_lshl_b32 s30, s17, 11"); e(f"s_add_u32 s30, s30, {U_B}")
    e("v_cmp_eq_u32 vcc, 0, v6"); e("v_lshlrev_b32 v10, 4, v6"); e("s_nop 0"); e("v_cndmask_b32 v4, 0, -1, vcc")

def qkvb_c(k, L, xin, stin, st0):
    e = k.e; nm = k.name
    DA = 5
    ACC, BF, AR, RSV = 64, 160, 192, 228
    acc = lambda b, F: ACC + 32*b + 4*F
    qkvb_pre(k)
    for F in range(8): k.vmop(f"buffer_load_dwordx4 {vr(64+4*F,4)}, v14, s[12:15], s30 offen offset:{256*F}", "u")
    e("s_lshl_b32 s28, s19, 10"); e(f"s_add_u32 s28, s28, {stin}")
    e("s_mul_i32 s25, s19, 20480"); e(f"s_add_u32 s25, s25, {xin}"); e("s_add_u32 s26, s25, 20480")
    e("v_add_u32 v41, 65536, v3"); e("v_add_u32 v42, 131072, v3")
    def c2():
        e("s_lshl_b32 s48, s16, 9"); e(f"s_add_u32 s48, s48, {C2(L)}")
        e(f"v_lshlrev_b32 v{PV_+1}, 8, v1"); e(f"v_lshlrev_b32 v{PV_+2}, 3, v1"); e(f"v_sub_u32 v{PV_+2}, 16, v{PV_+2}")
        e("s_cmp_eq_u32 s16, 0"); e("s_cselect_b64 s[56:57], 1, 3")
    wait_go(k, "p3", 1, c2)
    k.stamp(st0)
    def ldA(ks):
        for b in range(2):
            if ks % 4 == 0 and ks > 0: e(f"s_add_u32 s{25+b}, s{25+b}, 4096")
            k.vmop(f"buffer_load_dwordx4 {vr(AR+8*(ks%DA)+4*b,4)}, v3, s[12:15], s{25+b} offen offset:{(ks%4)*1024} {SC}", f"a{ks}")
    ldA(0)
    for b in range(2):
        for q in range(2): k.vmop(f"buffer_load_dwordx2 {vr(24+4*b+2*q,2)}, v11, s[12:15], s28 offen offset:{1024*b+128*q} {SC}", "st")
    for ks in range(1, DA-1): ldA(ks)
    MC, MP, MP1 = 64, 68, 72
    NEG = fbits(-1e30)
    def prolog():
        k.waitvm("st")
        for b in (1, 2): stats16(k, 20+4*b, 48+b, 52+2*b, 4)
        for F in range(8): usum(k, 64+4*F, 20+2*F)
        for b in (1, 2):
            for r in range(4):
                e(f"v_add_u32 v18, {4*r}, v10")
                k.dsop(f"ds_bpermute_b32 v{RSV+4*b+r}, v18, v{48+b}", "rs")
        e("v_lshlrev_b32 v17, 2, v6"); e("v_sub_u32 v17, v5, v17")
        e(f"v_mov_b32 v19, {NEG}")
        for r in range(4):
            e(f"v_subrev_u32 v18, {r}, v17"); e("v_and_b32 v16, 0x80000001, v18")
            e("v_cmp_eq_u32 vcc, 0, v16"); e(f"v_cndmask_b32 v{MC+r}, v19, 0, vcc")
            e("v_cmp_eq_u32 vcc, 0x80000000, v16"); e(f"v_cndmask_b32 v{MP+r}, v19, 0, vcc")
        e("s_cmp_eq_u32 s19, 0"); e(f"s_cselect_b32 s34, {NEG}, 0")
        for r in range(4): e(f"v_add_f32 v{MP1+r}, s34, v{MP+r}")
        e("v_cmp_eq_u32 vcc, 2, v6"); e("v_cndmask_b32 v38, 0, -1, vcc")
        e("v_cmp_eq_u32 vcc, 3, v6"); e("v_cndmask_b32 v39, 0, -1, vcc")
        for b in (1, 2): e(f"v_mul_f32 v{58+b}, {fbits(CSCALE)}, v{48+b}")
        e("v_cmp_gt_u32 vcc, 2, v6")
        for b in (1, 2): e(f"v_cndmask_b32 v{35+b}, v{48+b}, v{58+b}, vcc")
        e("s_mul_i32 s35, s18, 5120"); e(f"s_add_u32 s35, s35, {EX}"); e("v_add_u32 v9, s35, v3")
        e("s_mul_i32 s24, s19, 20480"); e(f"s_add_u32 s24, s24, {OBT}")
        e("s_lshl_b32 s51, s17, 10"); e("s_add_u32 s51, s51, s24"); e("s_add_u32 s52, s51, 20480")
        e("s_lshr_b32 s53, s17, 2"); e("s_add_u32 s53, s53, 16"); e("s_lshl_b32 s53, s53, 10"); e("s_add_u32 s53, s53, s24")
        e("s_and_b32 s54, s17, 1"); e("s_lshl_b32 s54, s54, 9"); e("s_add_u32 s53, s53, s54")
        e("s_bfe_u32 s54, s17, 0x10001"); e("s_lshl_b32 s54, s54, 3"); e("s_add_u32 s53, s53, s54"); e("s_add_u32 s54, s53, 20480")
    fl = k.capture(prolog)
    def rd(ks, F):
        off = ks*8192 + 1024*F; hi = off >> 16
        k.dsop(f"ds_read_b128 {vr(BF+4*F,4)}, v{(3,41,42)[hi]} offset:{off & 0xffff}", f"b{ks}_{F}")
    def mm(b, F, ks):
        a = vr(AR+8*(ks%DA)+4*(b-1), 4); w = vr(BF+4*F, 4); c = vr(acc(b,F), 4); ci = c if ks else "0"
        if F in TOKF: e(f"v_mfma_f32_16x16x32_bf16 {c}, {w}, {a}, {ci}")
        else:         e(f"v_mfma_f32_16x16x32_bf16 {c}, {a}, {w}, {ci}")
    e("s_barrier")
    for F in range(8): rd(0, F)
    for ks in range(20):
        k.waitvm(f"a{ks}")
        if ks == 0: k.stamp(st0+1)
        if ks == 6: e("s_barrier")
        for F in range(8):
            if F % 2 == 0: k.waitlg(f"b{ks}_{F+1}")
            mm(1, F, ks)
            if ks >= 1: k.fill(fl, 1)
            mm(2, F, ks)
            if ks + 1 < 20: rd(ks+1, F)
            if F == 0 and ks + DA - 1 < 20: ldA(ks + DA - 1)
            if ks >= 1 and F % 2: k.fill(fl, 1)
        if ks == 18:
            k.fill(fl, 1000)
            for b in (1, 2):
                for F in range(8):
                    U, M = vr(20+2*F, 2), vr(52+2*b, 2)
                    if F in TOKF: e(f"v_mfma_f32_16x16x16_bf16 {vr(acc(b,F),4)}, {U}, {M}, {vr(acc(b,F),4)}")
                    else:         e(f"v_mfma_f32_16x16x16_bf16 {vr(acc(b,F),4)}, {M}, {U}, {vr(acc(b,F),4)}")
    k.stamp(st0+2)
    e("s_barrier")
    if os.environ.get("FOC") == "s3": k.stamp(3)
    e("s_cmp_eq_u32 s18, 0"); e(f"s_cbranch_scc0 {nm}_ni"); lw_init(k); k.label(f"{nm}_ni")
    KO = lambda b, h: BF + 8*b + 4*h
    QO = lambda b, h: BF + 24 + 8*(b-1) + 4*h
    VO = lambda F, b: BF + 40 + 8*FEAF.index(F) + 2*b
    def kv_pack(b):
        for h in range(2): scale_pack(k, acc(b, 2+h), lambda r: 48+b, KO(b,h))
        scale_pack(k, acc(b, 6), lambda r: 35+b, KO(b,0)+2)
        for r in range(2): e(f"v_mov_b32 v{KO(b,1)+2+r}, v{KO(b,0)+2+r}")
        for F in FEAF: scale_pack(k, acc(b, F), lambda r: RSV+4*b+r, VO(F,b))
    kv_pack(2)
    for h in range(2): e(f"ds_write_b128 v9, {vr(KO(2,h),4)} offset:{5120+1024*h}")
    for n, F in enumerate(FEAF): e(f"ds_write_b64 v9, {vr(VO(F,2),2)} offset:{5120+2048+1024*n}")
    kv_pack(1)
    e("s_waitcnt lgkmcnt(0)"); e("s_barrier")
    if os.environ.get("FOC") == "s3": k.stamp(4)
    for h in range(2): e(f"ds_read_b128 {vr(KO(0,h),4)}, v9 offset:{1024*h}")
    for n, F in enumerate(FEAF): e(f"ds_read_b64 {vr(VO(F,0),2)}, v9 offset:{2048+1024*n}")
    for b in (1, 2):
        for h in range(2): scale_pack(k, acc(b, h), lambda r: 58+b, QO(b,h))
        for r in range(2):
            e(f"v_mov_b32 v{40+2*r}, v{KO(b,0)+2+r}"); e(f"v_mov_b32 v{41+2*r}, v{KO(b,0)+2+r}")
        for r in range(2): e(f"v_permlane32_swap_b32 v{40+2*r}, v{41+2*r}")
        e("s_nop 0")
        for h in range(2):
            for r in range(2): e(f"v_and_b32 v{QO(b,h)+2+r}, v{40+2*r}, v{38+h}")
    e("s_waitcnt lgkmcnt(0)")
    units = [(b, h) for b in (1, 2) for h in range(2)]
    SU = lambda i: 20 + 8*i if i < 2 else 76 + 8*(i-2)
    TU = lambda i: ACC + 32 + 4*i
    PU = lambda i: ACC + 48 + 4*i
    OU = lambda i: ACC + 64 + 8*i
    for i, (b, h) in enumerate(units):
        e(f"v_mfma_f32_16x16x32_bf16 {vr(SU(i),4)}, {vr(KO(b-1,h),4)}, {vr(QO(b,h),4)}, {vr(MP1 if b == 1 else MP,4)}")
        e(f"v_mfma_f32_16x16x32_bf16 {vr(SU(i)+4,4)}, {vr(KO(b,h),4)}, {vr(QO(b,h),4)}, {vr(MC,4)}")
    def allred(op):
        for sw in ("v_permlane16_swap_b32", "v_permlane32_swap_b32"):
            for i in range(4): e(f"v_mov_b32 v{TU(i)+1}, v{TU(i)}")
            for i in range(4): e(f"{sw} v{TU(i)}, v{TU(i)+1}")
            for i in range(4): e(f"{op} v{TU(i)}, v{TU(i)}, v{TU(i)+1}")
    for i in range(4):
        s = SU(i)
        e(f"v_max3_f32 v{TU(i)}, v{s}, v{s+1}, v{s+2}"); e(f"v_max3_f32 v{TU(i)}, v{s+3}, v{s+4}, v{TU(i)}")
        e(f"v_max3_f32 v{TU(i)}, v{s+5}, v{s+6}, v{TU(i)}"); e(f"v_max_f32 v{TU(i)}, v{s+7}, v{TU(i)}")
    allred("v_max_f32")
    for i in range(4):
        for r in range(8): e(f"v_sub_f32 v{SU(i)+r}, v{SU(i)+r}, v{TU(i)}")
    for i in range(4):
        for r in range(8): e(f"v_exp_f32 v{SU(i)+r}, v{SU(i)+r}")
    for i in range(4):
        s = SU(i)
        e(f"v_add_f32 v{TU(i)}, v{s}, v{s+1}")
        for r in range(2, 8): e(f"v_add_f32 v{TU(i)}, v{TU(i)}, v{s+r}")
    allred("v_add_f32")
    for i in range(4): e(f"v_rcp_f32 v{TU(i)}, v{TU(i)}")
    for i in range(4):
        for r in range(8): e(f"v_mul_f32 v{SU(i)+r}, v{SU(i)+r}, v{TU(i)}")
        for r in range(4): e(f"v_cvt_pk_bf16_f32 v{PU(i)+r}, v{SU(i)+2*r}, v{SU(i)+2*r+1}")
    for i, (b, h) in enumerate(units):
        e(f"v_mfma_f32_16x16x32_bf16 {vr(OU(i),4)}, {vr(VO(4+h,b-1),4)}, {vr(PU(i),4)}, 0")
        e(f"v_mfma_f32_16x16x32_bf16 {vr(OU(i)+4,4)}, {vr(VO(7,b-1),4)}, {vr(PU(i),4)}, 0")
    e("v_cmp_eq_u32 vcc, 0, v6")
    for bi in range(2):
        o0, o1 = OU(2*bi), OU(2*bi+1); d = 40 + 8*bi
        e(f"v_cvt_pk_bf16_f32 v{d}, v{o0}, v{o0+1}"); e(f"v_cvt_pk_bf16_f32 v{d+1}, v{o0+2}, v{o0+3}")
        e(f"v_cvt_pk_bf16_f32 v{d+2}, v{o1}, v{o1+1}"); e(f"v_cvt_pk_bf16_f32 v{d+3}, v{o1+2}, v{o1+3}")
        e(f"buffer_store_dwordx4 {vr(d,4)}, v3, s[12:15], s{51+bi} offen {SC}")
        for r in range(4): e(f"v_cndmask_b32 v{o0+4+r}, v{o1+4+r}, v{o0+4+r}, vcc")
        e(f"v_cvt_pk_bf16_f32 v{d+4}, v{o0+4}, v{o0+5}"); e(f"v_cvt_pk_bf16_f32 v{d+5}, v{o0+6}, v{o0+7}")
    e("s_mov_b32 exec_hi, 0")
    for bi in range(2): e(f"buffer_store_dwordx2 {vr(44+8*bi,2)}, v3, s[12:15], s{53+bi} offen {SC}")

def qkvb_l(k, L, xin, stin, w):
    e = k.e; nm = k.name
    qkvb_pre(k)
    e("s_max_u32 s22, s22, 1"); e("s_sub_u32 s22, s22, 1")
    e("s_mul_i32 s24, s22, 20480"); e(f"s_add_u32 s24, s24, {xin}")
    e("s_lshl_b32 s27, s22, 10"); e(f"s_add_u32 s27, s27, {stin}")
    e("s_min_u32 s40, s39, 2")
    e("s_cmp_lt_u32 s39, 2"); e("s_cselect_b32 s41, 2, 4"); e("s_cselect_b32 s42, 4, 5")
    e("s_add_u32 s41, s41, s40"); e("s_add_u32 s42, s42, s40")
    e("s_lshl_b32 s43, s41, 8"); e("s_add_u32 s43, s43, s30"); e("s_lshl_b32 s44, s42, 8"); e("s_add_u32 s44, s44, s30")
    e("s_lshl_b32 s41, s41, 10"); e("s_lshl_b32 s42, s42, 10")
    for i in range(3):
        e(f"v_add_u32 v{40+i}, s41, v3"); e(f"v_add_u32 v{43+i}, s42, v3")
        if i: e(f"v_add_u32 v{40+i}, {65536*i}, v{40+i}"); e(f"v_add_u32 v{43+i}, {65536*i}, v{43+i}")
    atouch_pre(k, xin)
    e("s_barrier")
    if ENV('ATOUCH', '1'): k.vmop("buffer_load_dword v20, v21, s[12:15], s51 offen")
    w.one(39)
    e("s_cmp_eq_u32 s39, 3"); e(f"s_cbranch_scc1 {nm}_h3")
    for q in range(2): k.vmop(f"buffer_load_dwordx2 {vr(24+2*q,2)}, v11, s[12:15], s27 offen offset:{128*q} {SC}", "st")
    k.vmop("buffer_load_dwordx4 v[64:67], v14, s[12:15], s43 offen", "st")
    k.vmop("buffer_load_dwordx4 v[68:71], v14, s[12:15], s44 offen", "st")
    for ks in range(20):
        if ks % 4 == 0 and ks: e("s_add_u32 s24, s24, 4096")
        k.vmop(f"buffer_load_dwordx4 {vr(128+4*ks,4)}, v3, s[12:15], s24 offen offset:{(ks%4)*1024} {SC}", f"h{ks}")
        if ks == 3: k.waitvm("w39"); e("s_barrier")
    k.waitvm("st")
    stats16(k, 24, 48, 52, 4); usum(k, 64, 20); usum(k, 68, 22)
    for r in range(4):
        e(f"v_add_u32 v18, {4*r}, v10")
        k.dsop(f"ds_bpermute_b32 v{72+r}, v18, v48", "r")
    e("v_mfma_f32_16x16x16_bf16 v[80:83], v[20:21], v[52:53], 0")
    e("v_mfma_f32_16x16x16_bf16 v[84:87], v[52:53], v[22:23], 0")
    def rd(ks):
        off = ks*8192; hi = off >> 16; fb = 96 + 8*(ks%3)
        k.dsop(f"ds_read_b128 {vr(fb,4)}, v{40+hi} offset:{off & 0xffff}", f"r{ks}")
        k.dsop(f"ds_read_b128 {vr(fb+4,4)}, v{43+hi} offset:{off & 0xffff}", f"r{ks}")
    rd(0); rd(1)
    for ks in range(20):
        if ks + 2 < 20: rd(ks+2)
        k.waitvm(f"h{ks}"); k.waitlg(f"r{ks}")
        fb = 96 + 8*(ks%3)
        e(f"v_mfma_f32_16x16x32_bf16 v[80:83], {vr(fb,4)}, {vr(128+4*ks,4)}, v[80:83]")
        e(f"v_mfma_f32_16x16x32_bf16 v[84:87], {vr(128+4*ks,4)}, {vr(fb+4,4)}, v[84:87]")
    e("s_lshl_b32 s41, s39, 10"); e("s_cmp_lt_u32 s39, 2"); e("s_cselect_b32 s41, s41, 8"); e("s_cselect_b32 s42, s41, 1032")
    e("s_lshl_b32 s40, s40, 10")
    e(f"v_add_u32 v9, {EX}, v3"); e("v_add_u32 v12, s41, v9"); e("v_add_u32 v13, s42, v9"); e("v_add_u32 v15, s40, v9")
    scale_pack(k, 80, lambda r: 48, 88); scale_pack(k, 84, lambda r: 72+r, 90)
    e("s_barrier")
    e("ds_write_b64 v12, v[88:89]"); e("ds_write_b64 v13, v[88:89]"); e("ds_write_b64 v15, v[90:91] offset:2048")
    e("s_waitcnt lgkmcnt(0)")
    e(f"s_branch {nm}_h4")
    k.label(f"{nm}_h3")
    e("s_waitcnt vmcnt(0)"); e("s_barrier"); e("s_barrier")
    k.label(f"{nm}_h4")
    e("s_barrier")
    k.vm = []; k.lg = []

def one(k, target):
    k.e(f"v_mov_b32 v{PV_+1}, 0"); k.e(f"v_mov_b32 v{PV_+2}, {target}"); k.e("s_mov_b64 s[56:57], 1")

def qkva_c(k, L, xin, stin, img, cnt, wbar, st0):
    e = k.e; nm = k.name
    DA = 5
    ACC, BF, AR, RS = 64, 128, 160, 200
    e("v_and_b32 v10, 31, v1"); e("v_lshrrev_b32 v4, 5, v1"); e("v_and_b32 v5, 15, v1")
    e("s_lshl_b32 s19, s16, 2"); e("s_add_u32 s19, s19, s18")
    e("v_lshlrev_b32 v12, 4, v10")
    e("s_lshl_b32 s31, s17, 11"); e(f"s_add_u32 s31, s31, {U_A}")
    for jf in range(4): k.vmop(f"buffer_load_dwordx4 {vr(24+4*jf,4)}, v12, s[12:15], s31 offen offset:{512*jf}", "u")
    e("v_bfe_u32 v7, v1, 4, 1"); e("v_mul_u32_u24 v8, 20480, v7"); e("v_lshl_add_u32 v8, v4, 8, v8"); e("v_lshl_add_u32 v8, v5, 4, v8")
    e("v_lshlrev_b32 v11, 10, v7"); e("v_lshl_add_u32 v11, v4, 9, v11"); e("v_lshl_add_u32 v11, v5, 3, v11")
    e("s_lshl_b32 s30, s19, 11"); e(f"s_add_u32 s30, s30, {stin}")
    e("s_mul_i32 s24, s19, 40960"); e(f"s_add_u32 s24, s24, {xin}")
    e("v_add_u32 v41, 65536, v3"); e("v_add_u32 v42, 131072, v3")
    e("v_subrev_u32 v58, 1, v4"); e("v_not_b32 v59, v58")
    sc = SC if cnt is not None else ""
    if cnt is not None:
        def c4(): one(k, 16); e("s_lshl_b32 s48, s16, 8"); e(f"s_add_u32 s48, s48, {cnt}")
        wait_go(k, "p5", 1, c4)
    k.stamp(st0)
    def ldA(ks):
        if ks % 4 == 0 and ks > 0: e("s_add_u32 s24, s24, 4096")
        for u in range(2):
            k.vmop(f"buffer_load_dwordx4 {vr(AR+8*(ks%DA)+4*u,4)}, v8, s[12:15], s24 offen offset:{(ks%4)*1024+512*u} {sc}", f"a{ks}")
    ldA(0)
    for q in range(4): k.vmop(f"buffer_load_dwordx2 {vr(16+2*q,2)}, v11, s[12:15], s30 offen offset:{128*q} {sc}", "st")
    for ks in range(1, DA-1): ldA(ks)
    def prolog(vmode):
        k.waitvm("st")
        e("v_add_f32 v16, v16, v18"); e("v_add_f32 v17, v17, v19"); e("v_add_f32 v20, v20, v22"); e("v_add_f32 v21, v21, v23")
        e("v_add_f32 v16, v16, v20"); e("v_add_f32 v17, v17, v21")
        k.allred32("v_add_f32", 16, 18); k.allred32("v_add_f32", 17, 18)
        stats_finish(k, 16, 17, 46, 47, 18)
        split3(k, 46, 48, 18, 'm', 58)
        for jf in range(4): usum(k, 24+4*jf, 50+2*jf, 18)
        if vmode:
            e("v_lshlrev_b32 v16, 4, v4")
            for r in range(16):
                e(f"v_add_u32 v17, {(8*(r//4) + r%4)*4}, v16")
                k.dsop(f"ds_bpermute_b32 v{RS+r}, v17, v47", "rs")
            e("s_sub_u32 s35, s17, 10"); e("s_lshl_b32 s35, s35, 7")
            e("s_mul_i32 s36, s19, 2560"); e(f"s_add_u32 s33, s36, {KVIMG[img]+1280}")
            e("v_mul_u32_u24 v20, 320, v4")
            for jf in range(4):
                e(f"v_add_u32 v16, s35, v10")
                if jf: e(f"v_add_u32 v16, {32*jf}, v16")
                e("v_mul_u32_u24 v17, 52429, v16"); e("v_lshrrev_b32 v17, 20, v17")
                e("v_mul_u32_u24 v18, 20, v17"); e("v_sub_u32 v18, v16, v18")
                e("v_mul_u32_u24 v17, 163840, v17"); e("v_lshl_add_u32 v17, v18, 4, v17")
                e(f"v_add_u32 v{24+jf}, v17, v20")
        else:
            e("s_cmp_ge_u32 s17, 5")
            e(f"s_cselect_b32 s33, {QI}, 0"); e(f"s_cselect_b32 s34, 1.0, {fbits(CSCALE)}"); e("s_cselect_b32 s35, 5, 0"); e("s_cselect_b32 s37, 1, 0")
            e("v_mul_f32 v47, s34, v47")
            e(f"s_add_u32 s33, s33, {QIMG[img]}")
            e("s_sub_u32 s35, s17, s35")
            e("s_mul_i32 s36, s19, 1280"); e("s_lshl_b32 s36, s36, s37"); e("s_add_u32 s33, s33, s36")
            e("s_lshl_b32 s34, 81920, s37")
            e("v_lshlrev_b32 v16, 4, v10"); e("v_lshlrev_b32 v17, 3, v10")
            e("v_lshl_add_u32 v18, v4, 9, v16")
            e("s_sub_u32 s36, s34, 512"); e("v_and_b32 v19, s36, v59"); e("v_add_u32 v19, v19, v16")
            e("s_mov_b32 s52, -1"); e("s_mov_b32 s53, 0"); e("s_mov_b32 s54, 0"); e("s_mov_b32 s55, -1")
    e("s_cmp_ge_u32 s17, 10"); e(f"s_cbranch_scc1 {nm}_qv")
    vm_save = list(k.vm)
    def mainloop(vmode):
        acc = lambda jf: vr(ACC+16*jf, 16)
        fl = k.capture(lambda: prolog(vmode))
        def rd(ks, f):
            off = ks*8192 + 1024*f; hi = off >> 16
            k.dsop(f"ds_read_b128 {vr(BF+4*f,4)}, v{(3,41,42)[hi]} offset:{off & 0xffff}", f"b{ks}_{f}")
        e("s_barrier")
        for f in range(8): rd(0, f)
        for ks in range(20):
            k.waitvm(f"a{ks}")
            if ks == 0: k.stamp(st0+1)
            if ks + 1 in wbar: e("s_barrier")
            for f in range(8):
                u, jf = f//4, f%4
                if f % 2 == 0: k.waitlg(f"b{ks}_{f+1}")
                a = vr(AR+8*(ks%DA)+4*u, 4); b = vr(BF+4*f, 4); c = acc(jf) if (ks or u) else "0"
                if vmode: e(f"v_mfma_f32_32x32x16_bf16 {acc(jf)}, {a}, {b}, {c}")
                else:     e(f"v_mfma_f32_32x32x16_bf16 {acc(jf)}, {b}, {a}, {c}")
                if ks + 1 < 20: rd(ks+1, f)
                if f == 0 and ks + DA - 1 < 20: ldA(ks + DA - 1)
                if ks >= 1: k.fill(fl, 2)
            if ks == 15:
                k.fill(fl, 1000)
                for jf in range(4):
                    if vmode: e(f"v_mfma_f32_32x32x8_bf16 {acc(jf)}, v[48:49], {vr(50+2*jf,2)}, {acc(jf)}")
                    else:     e(f"v_mfma_f32_32x32x8_bf16 {acc(jf)}, {vr(50+2*jf,2)}, v[48:49], {acc(jf)}")
        k.stamp(st0+2)
    mainloop(False)
    for v in range(1, 5):
        e(f"s_cmp_eq_u32 s35, {v}"); e(f"s_cbranch_scc1 {nm}_e{v}")
    QSC = os.environ.get("QSC", "sc1")
    for v in range(5):
        if v: k.label(f"{nm}_e{v}")
        e("s_nop 7")
        for jf in range(4):
            for r in range(16): e(f"v_mul_f32 v{ACC+16*jf+r}, v{ACC+16*jf+r}, v47")
            for r in range(8): e(f"v_cvt_pk_bf16_f32 v{BF+8*jf+r}, v{ACC+16*jf+2*r}, v{ACC+16*jf+2*r+1}")
            for a2 in range(2):
                x = BF+8*jf+4*a2
                e(f"v_permlane32_swap_b32 v{x}, v{x+2}"); e(f"v_permlane32_swap_b32 v{x+1}, v{x+3}")
            for a2 in range(2):
                x = BF+8*jf+4*a2
                G = [32*v+8*jf+4*a2, 32*v+8*jf+4*a2+2]
                def main(g):
                    h = g // 5; r = g % 5
                    return h, (r // 2 if h % 2 == 0 else (r - 1) // 2)
                st = [g % 10 == 4 for g in G]
                def hoff(dst, h, c):
                    if h: e(f"s_mul_i32 s{dst}, s34, {h}"); e(f"s_add_u32 s{dst}, s{dst}, s33")
                    else: e(f"s_mov_b32 s{dst}, s33")
                    if c: e(f"s_add_u32 s{dst}, s{dst}, {c}")
                if not any(st):
                    (h0, p0), (h1, p1) = main(G[0]), main(G[1])
                    hoff(36, h0, 512*p0)
                    if h0 == h1: e(f"buffer_store_dwordx4 {vr(x,4)}, v18, s[12:15], s36 offen {QSC}")
                    else:        e(f"buffer_store_dwordx4 {vr(x,4)}, v19, s[12:15], s36 offen {QSC}")
                    assert (h0 == h1 and (p0, p1) == (0, 1)) or (h1 == h0 + 1 and (p0, p1) == (1, 0))
                else:
                    m = st.index(False); q = 1 - m
                    h, p = main(G[m]); hoff(36, h, 512*p); hoff(37, G[q] // 5, 1024); e("s_add_u32 s38, s37, s34")
                    e(f"s_mov_b64 exec, s[{52+2*m}:{53+2*m}]")
                    e(f"buffer_store_dwordx4 {vr(x,4)}, v16, s[12:15], s36 offen {QSC}")
                    e(f"s_mov_b64 exec, s[{52+2*q}:{53+2*q}]")
                    e(f"buffer_store_dwordx2 {vr(x,2)}, v17, s[12:15], s37 offen {QSC}")
                    e(f"buffer_store_dwordx2 {vr(x+2,2)}, v17, s[12:15], s38 offen {QSC}")
                    e("s_mov_b64 exec, -1")
        e(f"s_branch {nm}_fin5")
    k.label(f"{nm}_qv"); k.vm = vm_save; k.lg = []
    mainloop(True)
    VSC = os.environ.get("VSC", "sc1")
    for jf in range(4):
        for r in range(16): e(f"v_mul_f32 v{ACC+16*jf+r}, v{ACC+16*jf+r}, v{RS+r}")
        for r in range(8): e(f"v_cvt_pk_bf16_f32 v{BF+8*jf+r}, v{ACC+16*jf+2*r}, v{ACC+16*jf+2*r+1}")
        for u in range(2):
            e(f"buffer_store_dwordx4 {vr(BF+8*jf+4*u,4)}, v{24+jf}, s[12:15], s33 offen offset:{640*u} {VSC}")
    k.label(f"{nm}_fin5")

def k_qkva():
    k = KB("qkva_kernel"); e = k.e
    common(k); ids_mt(k)
    e("s_cmp_ge_u32 s17, 15"); e("s_cbranch_scc1 qkva_kernel_end")
    e("v_lshlrev_b32 v3, 4, v1")
    e("s_mul_i32 s50, s17, 163840"); e("s_add_u32 s50, s50, s45"); e(f"s_add_u32 s50, s50, {WA_I}")
    e("s_waitcnt lgkmcnt(0)")
    k.stamp(2); k.srd(12, 6, WS_END)
    e("s_cmp_ge_u32 s18, 4"); e("s_cbranch_scc1 qkva_kernel_ld")
    WB = [1, 2, 4, 6, 8, 10, 12, 14, 16, 18]
    qkva_c(k, 0, XT[0], ST[0], 0, None, WB, 3)
    k.stamp(6); k.dump(8)
    e("s_endpgm")
    k.label("qkva_kernel_ld"); k.vm = []; k.lg = []
    w = Wdma(k, 40); LA = ENV('QLA', '5')
    bars = [0] + WB
    for i, s_ in enumerate(bars):
        last = (bars[i+1] if i + 1 < len(bars) else 20) - 1
        w.go(2*(last+1) + (LA if i else 2))
        k.waitvm(f"w{2*last+1}"); e("s_barrier")
    k.label("qkva_kernel_end"); e("s_endpgm")
    return k.text(216, 216)

def k_chain(name, L):
    final = L == 1
    k = KB(name); e = k.e
    common(k)
    ph_attn(k, L)
    k.stamp(5)
    xa, xb, xc = XT[2*L], XT[2*L+1], XT[2]
    def a1():
        e("s_lshl_b32 s48, s17, 3"); e("s_and_b32 s49, s16, 1"); e("s_add_u32 s48, s48, s49"); e("s_lshl_b32 s48, s48, 8"); e(f"s_add_u32 s48, s48, {C1(L)}")
        e(f"v_lshlrev_b32 v{PV_+1}, 9, v1"); e("s_mov_b64 s[56:57], 15")
    e("s_cmp_ge_u32 s18, 4"); e(f"s_cbranch_scc1 {name}_ld")
    signal(k, "s1", 0, 8, a1)
    def c1():
        e("s_lshl_b32 s48, s16, 9"); e(f"s_add_u32 s48, s48, {C1(L)}")
        e(f"v_lshlrev_b32 v{PV_+1}, 8, v1"); e(f"v_mov_b32 v{PV_+2}, 16"); e("s_mov_b64 s[56:57], 3")
    proj_c(k, "p2", OT, xa, xb, ST[2*L+1], False, c1, 0, 6)
    def a2():
        e("s_lshr_b32 s48, s16, 1"); e("s_lshl_b32 s48, s48, 9"); e(f"s_add_u32 s48, s48, {C2(L)}")
        e(f"v_mul_u32_u24 v{PV_+1}, 768, v1"); e("s_bitcmp1_b32 s16, 0"); e("s_cselect_b64 s[56:57], 3, 1")
    signal(k, "s2", 1, 4, a2)
    qkvb_c(k, L, xb, ST[2*L+1], 9)
    def a3(): one(k, 0); e("s_lshl_b32 s48, s16, 8"); e(f"s_add_u32 s48, s48, {C3(L)}")
    signal(k, "s3", 0, 4, a3)
    def c3(): one(k, 16); e("s_lshr_b32 s48, s16, 1"); e("s_lshl_b32 s48, s48, 8"); e(f"s_add_u32 s48, s48, {C3(L)}")
    if final:
        proj_c(k, "p4", OBT, xb, None, None, True, c3, 0, 12)
    else:
        S_ = k.stamp
        proj_c(k, "p4", OBT, xb, xc, ST[2], False, c3, 0, 12)
        def a4(): one(k, 0); e("s_lshr_b32 s48, s16, 1"); e("s_lshl_b32 s48, s48, 8"); e(f"s_add_u32 s48, s48, {C4(L)}")
        signal(k, "s4", 1, 4, a4)
        ids_mt(k)
        e("s_cmp_ge_u32 s17, 15"); e(f"s_cbranch_scc1 {name}_dmp")
        if os.environ.get("FOC") == "p5": st5 = 2
        else: k.stamp = lambda i: None; st5 = 0
        qkva_c(k, L, xc, ST[2], 1, C4(L), [7], st5)
        k.stamp = S_
    k.label(f"{name}_dmp")
    k.dump(15)
    e("s_endpgm")
    k.label(f"{name}_ld"); k.vm = []; k.lg = []
    w = proj_l(k, WOA_I, WB_I, OT, a1, EARLY)
    qkvb_l(k, L, xb, ST[2*L+1], w)
    w = proj_l(k, WOB_I, None if final else WA_I, OBT)
    if not final:
        ids_mt(k)
        e("s_cmp_ge_u32 s17, 15"); e(f"s_cbranch_scc1 {name}_end")
        atouch_pre(k, xc)
        e("s_barrier")
        if ENV('ATOUCH', '1'): e("buffer_load_dword v20, v21, s[12:15], s51 offen")
        w.one(39); e("s_waitcnt vmcnt(0)"); e("s_barrier")
    k.label(f"{name}_end"); e("s_endpgm")
    return k.text(244, 244)

def build():
    L = [("prep_kernel", 316, 256, 40960), ("qkva_kernel", 256, 512, 163840), ("chaina_kernel", 256, 512, 163840), ("chainb_kernel", 256, 512, 163840)]
    hdr = open("cdna_kernels/" + NAME + ".s.ref").read().split("; Override launch")[0]
    out = hdr
    for n, g, b, lds in L: out += f"; @launch kernel={n} grid=({g},1,1) block=({b},1,1) lds={lds}\n"
    out += '.amdgcn_target "amdgcn-amd-amdhsa--gfx950"\n'
    out += k_prep() + k_qkva() + k_chain("chaina_kernel", 0) + k_chain("chainb_kernel", 1)
    return out

if __name__ == "__main__":
    dst = sys.argv[1] if len(sys.argv) > 1 else "cdna_kernels/" + NAME + ".s"
    open(dst, "w").write(build())
    print("wrote", dst)
```

```python
import sys, math
from lint import lint, fix

NAME = "interleave_layers__softmax_full_mha__sliding_local_dilated__prompt"
S, D, H, DH = 2048, 640, 32, 20
XS = S*D*2
IMG = H*64*2560
QI = H*64*1280
TOUCH0 = 0
OT = 0; OBT = XS
XT = [None, 2*XS, 3*XS, 2*XS]
ST = [None, 4*XS, 4*XS + S*64, 4*XS]
QIMG = [None, 4*XS + 2*S*64]; KVIMG = [None, QIMG[1] + QI]
TOUCH1 = QIMG[1]
QIMG[0] = KVIMG[1] + IMG; KVIMG[0] = QIMG[0] + QI
XT[0] = KVIMG[0] + IMG; ST[0] = XT[0] + XS
U_A  = ST[0] + S*64
U_B  = U_A + 32768
CNT  = U_B + 32768
WA_I = CNT + 131072
WOA_I = WA_I + 15*163840
WB_I = WOA_I + 819200
WOB_I = WB_I + 16*163840
STAMPS = WOB_I + 819200
WS_END = STAMPS + 16*262144
def C1(L): return CNT + L*65536
def C2(L): return C1(L) + 64*256
def C3(L): return C2(L) + 34*256
def C4(L): return C3(L) + 16*256
import os
STAMP = int(os.environ.get("STAMP", "0"))
ATTN_WAVES = 8
AV = os.environ.get("AV", "")
CSCALE = (DH ** -0.5) * math.log2(math.e)
import struct
def fbits(x): return "0x%08x" % struct.unpack("<I", struct.pack("<f", x))[0]

FM = [(0,16),(32,48),(80,96),(112,128),(64,144)]
def FX(ks, t):
    return 160*(ks//5) + FM[ks%5][t]

class KB:
    def __init__(s, name):
        s.name = name; s.L = []; s.vm = []; s.lg = []; s.cap = None
    def e(s, line):
        if s.cap is not None: s.cap.append(('e', line, None))
        else: s.L.append("    " + line)
    def capture(s, fn):
        s.cap = []; fn(); c = s.cap; s.cap = None
        return [x for x in c if not (x[0] == 'e' and x[1].startswith('s_nop'))]
    def fill(s, lst, n=1):
        for _ in range(n):
            if not lst: return
            kind, a, b = lst.pop(0)
            if kind == 'e':
                s.e(a)
                if a.startswith('s_cmp'):
                    while lst and lst[0][0] == 'e' and lst[0][1].startswith('s_cselect'): s.e(lst.pop(0)[1])
            elif kind == 'ds': s.dsop(a, b)
            elif kind == 'wvm': s.waitvm(a)
            elif kind == 'wlg': s.waitlg(a)
    def c(s, txt): s.L.append("    ; " + txt)
    def label(s, l): s.L.append(l + ":")
    def vmop(s, line, tag=None): s.e(line); s.vm.append(tag); assert len(s.vm) <= 63, (s.name, len(s.vm))
    def dsop(s, line, tag=None):
        if s.cap is not None: s.cap.append(('ds', line, tag)); return
        s.e(line); s.lg.append(tag)
    def _n(s, lst, tag):
        idx = max(i for i, t in enumerate(lst) if t == tag)
        return idx
    def waitvm(s, tag):
        if s.cap is not None: s.cap.append(('wvm', tag, None)); return
        if tag not in s.vm: return
        i = s._n(s.vm, tag); n = len(s.vm) - 1 - i
        s.e(f"s_waitcnt vmcnt({n})"); s.vm = s.vm[i+1:]
    def waitlg(s, tag):
        if s.cap is not None: s.cap.append(('wlg', tag, None)); return
        if tag not in s.lg: return
        i = s._n(s.lg, tag); n = len(s.lg) - 1 - i
        if n > 15: n = 15; i = len(s.lg) - 1 - n
        s.e(f"s_waitcnt lgkmcnt({n})"); s.lg = s.lg[i+1:]
    def waitall(s):
        s.e("s_waitcnt vmcnt(0) lgkmcnt(0)"); s.vm = []; s.lg = []
    def srd(s, r, base, nbytes):
        s.e(f"s_mov_b32 s{r}, s{base}")
        s.e(f"s_and_b32 s{r+1}, s{base+1}, 0xffff")
        s.e(f"s_mov_b32 s{r+2}, {nbytes}")
        s.e(f"s_mov_b32 s{r+3}, 0x20000")
    def stamp(s, i):
        if not STAMP: return
        op = "s_memrealtime" if os.environ.get("RT") else "s_memtime"
        s.e(f"{op} s[{64+2*i}:{65+2*i}]" if i < 10 else f"{op} s[{72+2*i}:{73+2*i}]")
    def rstamp(s, i):
        if not STAMP: return
        s.e(f"s_memrealtime s[{64+2*i}:{65+2*i}]")
    def dump(s, n=8, slot=None, wave="s18"):
        if not STAMP: return
        e = s.e
        if os.environ.get("DBG"):
            idx, base, slots = {"prep": (0, 0, [1]), "qkva": (1, 2, [1]), "chai": (2, 4, [1, 3, 5, 8, 11]) if s.name[5] == "a" else (3, 10, [1, 3, 5, 8, 11])}[s.name[:4]]
            s.dbgn = getattr(s, "dbgn", 0) + 1
            lab = f"{s.name}_dbg{s.dbgn}"
            e("s_cmp_eq_u32 s2, 0"); e(f"s_cbranch_scc0 {lab}"); e(f"s_cmp_eq_u32 {wave}, 0"); e(f"s_cbranch_scc0 {lab}")
            e("s_load_dwordx2 s[84:85], s[0:1], 56"); e("s_waitcnt vmcnt(0)"); e("s_memrealtime s[86:87]"); e("s_waitcnt lgkmcnt(0)")
            e(f"s_sub_u32 s84, s84, {512*idx}"); e("s_subb_u32 s85, s85, 0")
            s.srd(88, 84, 256); e("s_mov_b64 exec, 1"); e("v_mov_b32 v0, 0")
            for q, i in enumerate(slots):
                e(f"v_mov_b32 v1, s{64+2*i if i < 10 else 72+2*i}"); e(f"buffer_store_dword v1, v0, s[88:91], 0 offen offset:{4*(base+q)}")
            e("v_mov_b32 v1, s86"); e(f"buffer_store_dword v1, v0, s[88:91], 0 offen offset:{4*(base+len(slots))}")
            s.label(lab)
            return
        e("s_load_dwordx2 s[84:85], s[0:1], 56"); e("s_waitcnt vmcnt(0)"); e("s_memrealtime s[86:87]"); e("s_waitcnt lgkmcnt(0)")
        e("s_mov_b64 exec, 1")
        e("s_bfe_u32 s84, s84, 0x50009"); e("s_lshl_b32 s84, s84, 18")
        e("s_lshl_b32 s60, s2, 3"); e(f"s_add_u32 s60, s60, {wave}"); e("s_lshl_b32 s60, s60, 6"); e(f"s_add_u32 s60, s60, {STAMPS}"); e("s_add_u32 s60, s60, s84")
        e("v_mov_b32 v0, 0")
        for i in range(n):
            e(f"v_mov_b32 v1, s{64+2*i if i < 10 else 72+2*i}")
            e(f"buffer_store_dword v1, v0, s[12:15], s60 offen offset:{4*i}")
        e("v_mov_b32 v1, s86"); e("buffer_store_dword v1, v0, s[12:15], s60 offen offset:60")
    def rtdump(s):
        if not STAMP: return
        s.e("v_lshrrev_b32 v1, 6, v0"); s.e("s_nop 0"); s.e("v_readfirstlane_b32 s61, v1"); s.dump(2, wave="s61")
    def text(s, vgpr, accum, sgpr=102):
        s.L, added = fix(s.L)
        if os.environ.get("V"): print(s.name, "auto nops:", added, "lines:", len(s.L))
        out = [".text", f".globl {s.name}", ".p2align 8", f".type {s.name},@function", f"{s.name}:"]
        out += s.L
        out += ['.section .rodata,"a"', ".p2align 6", f".amdhsa_kernel {s.name}",
                f"  .amdhsa_next_free_vgpr {vgpr}", f"  .amdhsa_next_free_sgpr {sgpr}", f"  .amdhsa_accum_offset {accum}",
                "  .amdhsa_group_segment_fixed_size 0", "  .amdhsa_kernarg_size 72", "  .amdhsa_user_sgpr_count 2",
                "  .amdhsa_user_sgpr_kernarg_segment_ptr 1", "  .amdhsa_system_sgpr_workgroup_id_x 1", ".end_amdhsa_kernel"]
        nb = lint(s.L, s.name)
        assert nb == 0, f"{nb} hazards in {s.name}"
        return "\n".join(out) + "\n"
    def allred32(s, op, v, t):
        s.e(f"v_mov_b32 v{t}, v{v}"); s.e("s_nop 1")
        s.e(f"v_permlane32_swap_b32 v{v}, v{t}"); s.e("s_nop 1")
        s.e(f"{op} v{v}, v{v}, v{t}")
    def allred16(s, op, v, t):
        s.e(f"v_mov_b32 v{t}, v{v}"); s.e("s_nop 1")
        s.e(f"v_permlane16_swap_b32 v{v}, v{t}"); s.e("s_nop 1")
        s.e(f"{op} v{v}, v{v}, v{t}")

def vr(a, n): return f"v[{a}:{a+n-1}]" if n > 1 else f"v{a}"
def ar(a, n): return f"a[{a}:{a+n-1}]" if n > 1 else f"a{a}"

def k_prep():
    PSC = os.environ.get("PSC", "sc1")
    k = KB("prep_kernel"); e = k.e
    NX, NA, NB, NO = 128, 60, 64, 64
    e(f"s_cmp_ge_u32 s2, {NX+NA+NB+NO}"); e("s_cbranch_scc1 prep_end0"); k.rstamp(1)
    e("s_load_dwordx2 s[4:5], s[0:1], 0"); e("s_load_dwordx2 s[6:7], s[0:1], 64")
    e("s_load_dwordx4 s[20:23], s[0:1], 8"); e("s_load_dwordx4 s[24:27], s[0:1], 32")
    e("v_and_b32 v1, 63, v0"); e("v_lshrrev_b32 v2, 6, v0")
    e("s_waitcnt lgkmcnt(0)")
    k.srd(12, 6, WS_END)
    e(f"s_cmp_ge_u32 s2, {NX+NA+NB}"); e("s_cbranch_scc1 prep_o")
    e(f"s_cmp_ge_u32 s2, {NX+NA}"); e("s_cbranch_scc1 prep_b")
    e(f"s_cmp_ge_u32 s2, {NX}"); e("s_cbranch_scc1 prep_u")
    k.srd(8, 4, S*D*2)
    e("s_and_b32 s16, s2, 7"); e("s_lshl_b32 s16, s16, 4"); e("s_lshr_b32 s17, s2, 3"); e("s_add_u32 s3, s16, s17")
    e("v_and_b32 v3, 15, v1"); e("v_lshrrev_b32 v4, 4, v1")
    e("s_lshl_b32 s16, s3, 4"); e("v_add_u32 v5, s16, v3")
    e("v_mul_u32_u24 v6, 1280, v5")
    e("v_mul_u32_u24 v7, 320, v2"); e("v_add_u32 v6, v6, v7")
    e("v_lshl_add_u32 v6, v4, 3, v6")
    for i in range(5):
        for t in range(2):
            k.vmop(f"buffer_load_dwordx2 {vr(12+4*i+2*t,2)}, v6, s[8:11], 0 offen offset:{2*FM[i][t]} nt", "x")
    e("s_mul_i32 s17, s3, 20480"); e(f"s_add_u32 s17, s17, {XT[0]}"); e("s_add_u32 s18, s17, 4096")
    e("v_mul_u32_u24 v7, 5120, v2"); e("v_lshl_add_u32 v7, v1, 4, v7")
    e("v_mov_b32 v8, 0"); e("v_mov_b32 v9, 0"); e("v_mov_b32 v10, 0"); e("v_mov_b32 v11, 0")
    e("v_mov_b32 v32, 0x3f803f80")
    k.waitvm("x")
    for i in range(5):
        if i < 4: k.vmop(f"buffer_store_dwordx4 {vr(12+4*i,4)}, v7, s[12:15], s17 offen offset:{1024*i} {PSC}")
        else: k.vmop(f"buffer_store_dwordx4 {vr(12+4*i,4)}, v7, s[12:15], s18 offen {PSC}")
    for r in range(12, 32):
        e(f"v_dot2_f32_bf16 v8, v{r}, v32, v8")
    for r in range(12, 32):
        e(f"v_dot2_f32_bf16 v9, v{r}, v{r}, v9")
    e("s_nop 2")
    k.allred16("v_add_f32", 8, 33); k.allred32("v_add_f32", 8, 33)
    k.allred16("v_add_f32", 9, 33); k.allred32("v_add_f32", 9, 33)
    e("v_cmp_gt_u32 vcc, 16, v1"); e("v_lshlrev_b32 v5, 3, v1"); e("v_lshl_add_u32 v5, v2, 8, v5")
    e("v_cndmask_b32 v8, 0, v8, vcc"); e("v_cndmask_b32 v9, 0, v9, vcc")
    e("s_lshl_b32 s19, s3, 10"); e(f"s_add_u32 s19, s19, {ST[0]}")
    e("s_lshl_b32 s18, s3, 10"); e(f"s_add_u32 s18, s18, {CNT}")
    e("s_mov_b32 exec_hi, 0")
    k.vmop("buffer_store_dwordx2 v[8:9], v5, s[12:15], s19 offen")
    e("s_mov_b64 exec, 0x1111111111111111" if False else "s_mov_b64 exec, -1")
    e("v_cmp_gt_u32 vcc, 128, v0"); e("s_and_saveexec_b64 s[28:29], vcc"); e("s_cbranch_execz prep_end")
    e("v_lshlrev_b32 v6, 3, v0")
    k.vmop("buffer_store_dwordx2 v[10:11], v6, s[12:15], s18 offen")
    k.rtdump(); e("s_endpgm")
    def colsum(regs, acc):
        for r in regs: e(f"v_dot2_f32_bf16 v{acc}, v{r}, v60, v{acc}")
    k.label("prep_u"); k.vm = []
    e(f"s_sub_u32 s16, s2, {NX}"); e("s_and_b32 s17, s16, 3"); e("s_lshr_b32 s16, s16, 2")
    k.srd(8, 20, D*3*D*2)
    e("v_readfirstlane_b32 s18, v2")
    e("v_and_b32 v5, 15, v1"); e("v_lshrrev_b32 v6, 4, v1"); e("v_and_b32 v10, 3, v1")
    e("v_lshl_add_u32 v9, v2, 2, v6"); e("v_mul_u32_u24 v9, 3840, v9")
    e("v_lshrrev_b32 v7, 2, v5"); e("v_xor_b32 v8, v7, v6"); e("v_lshl_add_u32 v9, v8, 6, v9"); e("v_lshl_add_u32 v9, v10, 4, v9")
    e(f"s_mul_i32 s19, s17, {160*3840}"); e("s_lshl_b32 s28, s16, 8"); e("s_add_u32 s19, s19, s28"); e("s_lshl_b32 s29, s18, 10")
    for i in range(10):
        e(f"s_add_u32 m0, s29, {4096*i}")
        e(f"s_add_u32 s28, s19, {16*3840*i}")
        e("buffer_load_dwordx4 v9, s[8:11], s28 offen nt lds")
    e("v_lshrrev_b32 v4, 5, v1"); e("v_lshl_add_u32 v11, v4, 2, v7"); e("v_lshlrev_b32 v11, 8, v11")
    e("v_bfe_u32 v8, v1, 4, 1"); e("v_lshl_add_u32 v11, v8, 5, v11"); e("v_lshl_add_u32 v11, v10, 3, v11")
    e("v_xor_b32 v8, v2, v7"); e("v_lshl_add_u32 v11, v8, 6, v11")
    e("v_lshlrev_b32 v3, 4, v1"); e("v_mov_b32 v60, 0x3f803f80"); e("v_mov_b32 v8, 0")
    e("s_mul_i32 s19, s16, 163840"); e("s_mul_i32 s28, s17, 40960"); e("s_add_u32 s19, s19, s28"); e("s_add_u32 s19, s19, s29"); e(f"s_add_u32 s19, s19, {WA_I}")
    e("s_waitcnt vmcnt(0)"); e("s_barrier")
    for n in range(10):
        for t in range(2): e(f"ds_read_b64_tr_b16 {vr(16+4*n+2*t,2)}, v11 offset:{(FM[n//2][t]+8*(n%2))*256}")
        if n == 5: e("s_waitcnt lgkmcnt(0)")
    e("s_waitcnt lgkmcnt(0)")
    for n in range(10):
        e(f"buffer_store_dwordx4 {vr(16+4*n,4)}, v3, s[12:15], s19 offen {PSC}")
        if n < 9: e("s_add_u32 s19, s19, 4096")
    colsum(range(16, 56), 8); e("s_nop 2")
    k.allred32("v_add_f32", 8, 9)
    e("v_and_b32 v5, 31, v1"); e("v_lshlrev_b32 v5, 4, v5")
    e("s_lshl_b32 s19, s16, 11"); e("s_lshl_b32 s28, s18, 9"); e("s_add_u32 s19, s19, s28"); e("s_lshl_b32 s28, s17, 2"); e("s_add_u32 s19, s19, s28"); e(f"s_add_u32 s19, s19, {U_A}")
    e("s_mov_b32 exec_hi, 0")
    e("buffer_store_dword v8, v5, s[12:15], s19 offen")
    k.rtdump(); e("s_endpgm")
    k.label("prep_b")
    e(f"s_sub_u32 s16, s2, {NX+NA}"); e("s_and_b32 s17, s16, 3"); e("s_lshr_b32 s16, s16, 2")
    k.srd(8, 24, D*3*D*2)
    e("v_readfirstlane_b32 s18, v2")
    e("v_and_b32 v5, 15, v1"); e("v_lshrrev_b32 v6, 4, v1")
    e("v_and_b32 v7, 1, v2"); e("v_lshl_add_u32 v7, v7, 2, v6"); e("v_lshlrev_b32 v7, 1, v7"); e("v_xor_b32 v7, v7, v5"); e("v_min_u32 v7, 14, v7")
    e("v_mul_u32_u24 v8, 52, v7"); e("v_lshrrev_b32 v8, 8, v8"); e("v_mul_u32_u24 v9, 1200, v8"); e("v_lshl_add_u32 v9, v7, 4, v9")
    e("v_lshl_add_u32 v10, v2, 2, v6"); e("v_mul_u32_u24 v10, 3840, v10"); e("v_add_u32 v9, v9, v10")
    e(f"s_mul_i32 s19, s17, {160*3840}"); e("s_mul_i32 s28, s16, 80"); e("s_add_u32 s19, s19, s28"); e("s_lshl_b32 s29, s18, 10")
    for i in range(10):
        e(f"s_add_u32 m0, s29, {4096*i}")
        e(f"s_add_u32 s28, s19, {16*3840*i}")
        e("buffer_load_dwordx4 v9, s[8:11], s28 offen nt lds")
    e("v_lshrrev_b32 v12, 2, v5"); e("v_and_b32 v13, 3, v5")
    e("s_mul_i32 s28, s18, 80"); e("v_lshlrev_b32 v10, 3, v13"); e("v_add_u32 v10, s28, v10"); e("v_add_u32 v11, 40, v10")
    e("s_cmp_lt_u32 s18, 3"); e("s_cbranch_scc1 prep_b1")
    e("v_mul_u32_u24 v10, 40, v13"); e("v_add_u32 v10, 32, v10")
    e("v_and_b32 v11, 1, v13"); e("v_mul_u32_u24 v11, 40, v11"); e("v_add_u32 v11, 192, v11")
    k.label("prep_b1")
    e("v_lshl_add_u32 v14, v6, 2, v12"); e("v_and_b32 v15, 7, v14"); e("v_lshlrev_b32 v15, 5, v15"); e("v_lshlrev_b32 v14, 8, v14")
    e("v_xor_b32 v10, v10, v15"); e("v_add_u32 v10, v10, v14"); e("v_xor_b32 v11, v11, v15"); e("v_add_u32 v11, v11, v14")
    e("v_lshlrev_b32 v3, 4, v1"); e("v_mov_b32 v60, 0x3f803f80"); e("v_mov_b32 v8, 0"); e("v_mov_b32 v9, 0")
    e("s_mul_i32 s19, s16, 163840"); e("s_mul_i32 s28, s17, 40960"); e("s_add_u32 s19, s19, s28"); e("s_lshl_b32 s28, s18, 11"); e("s_add_u32 s19, s19, s28"); e(f"s_add_u32 s19, s19, {WB_I}")
    e("s_waitcnt vmcnt(0)"); e("s_barrier")
    for n in range(10):
        for t in range(2): e(f"ds_read_b64_tr_b16 {vr(16+4*n+2*t,2)}, v{10+n%2} offset:{FM[n//2][t]*256}")
        if n == 5: e("s_waitcnt lgkmcnt(0)")
    e("s_waitcnt lgkmcnt(0)")
    for n in range(10):
        e(f"buffer_store_dwordx4 {vr(16+4*n,4)}, v3, s[12:15], s19 offen offset:{1024*(n%2)} {PSC}")
        if n % 2 and n < 9: e("s_add_u32 s19, s19, 8192")
    for f in range(2): colsum([16+8*m+4*f+q for m in range(5) for q in range(4)], 8+f)
    e("s_nop 2")
    for f in range(2): k.allred16("v_add_f32", 8+f, 12); k.allred32("v_add_f32", 8+f, 12)
    e("v_lshlrev_b32 v5, 4, v5")
    e("s_lshl_b32 s19, s16, 11"); e("s_lshl_b32 s28, s18, 9"); e("s_add_u32 s19, s19, s28"); e("s_lshl_b32 s28, s17, 2"); e("s_add_u32 s19, s19, s28"); e(f"s_add_u32 s19, s19, {U_B}")
    e("s_mov_b64 exec, 0xffff")
    e("buffer_store_dword v8, v5, s[12:15], s19 offen"); e("buffer_store_dword v9, v5, s[12:15], s19 offen offset:256")
    k.rtdump(); e("s_endpgm")
    k.label("prep_o")
    e(f"s_sub_u32 s16, s2, {NX+NA+NB}"); e("s_and_b32 s17, s16, 3"); e("s_lshr_b32 s30, s16, 5"); e("s_bfe_u32 s16, s16, 0x30002")
    e("s_cmp_eq_u32 s30, 1")
    e("s_cselect_b32 s28, s26, s22"); e("s_cselect_b32 s29, s27, s23"); e(f"s_cselect_b32 s31, {WOB_I-WOA_I}, 0")
    k.srd(8, 28, D*D*2)
    e("v_readfirstlane_b32 s18, v2")
    def pat(dst, src):
        e(f"v_mul_u32_u24 v10, 6554, v{src}"); e("v_lshrrev_b32 v10, 16, v10"); e("v_mul_u32_u24 v10, 1120, v10"); e(f"v_lshl_add_u32 v{dst}, v{src}, 4, v10")
    for i in range(5):
        e(f"v_add_u32 v9, {64*i}, v1"); pat(4+i, 9)
    pat(11, 0)
    e(f"s_mul_i32 s19, s17, {160*1280}"); e("s_mul_i32 s28, s16, 160"); e("s_add_u32 s19, s19, s28")
    e("s_mul_i32 s28, s18, 40960"); e("s_add_u32 s28, s28, s19"); e("s_mul_i32 s29, s18, 5120")
    for i in range(5):
        e(f"s_add_u32 m0, s29, {1024*i}"); e("s_nop 0")
        e(f"buffer_load_dwordx4 v{4+i}, s[8:11], s28 offen nt lds")
    e("s_lshl_b32 s29, s18, 10"); e("s_add_u32 m0, s29, 20480"); e("s_add_u32 s28, s19, 163840")
    e("buffer_load_dwordx4 v11, s[8:11], s28 offen nt lds")
    e("s_cmp_eq_u32 s18, 0"); e("s_cbranch_scc0 prep_o1")
    e("s_mov_b32 m0, 24576"); e("s_nop 0")
    e("buffer_load_dwordx4 v8, s[8:11], s28 offen nt lds")
    k.label("prep_o1")
    e("v_lshrrev_b32 v9, 4, v1"); e("v_bfe_u32 v10, v1, 2, 2"); e("v_and_b32 v11, 3, v1")
    e("v_lshlrev_b32 v12, 2, v9"); e("s_mov_b32 s28, 3200")
    e("s_cmp_eq_u32 s30, 1"); e("s_cbranch_scc1 prep_o2")
    e("v_lshrrev_b32 v12, 1, v9"); e("v_mul_u32_u24 v12, 20, v12"); e("v_and_b32 v13, 1, v9"); e("v_lshl_add_u32 v12, v13, 2, v12"); e("s_mov_b32 s28, 1280")
    k.label("prep_o2")
    e("v_add_u32 v12, v12, v10"); e("v_mul_u32_u24 v12, 160, v12"); e("v_lshl_add_u32 v12, v11, 3, v12")
    e("s_mul_i32 s29, s18, 6400"); e("v_add_u32 v12, s29, v12"); e("v_add_u32 v13, s28, v12")
    e("v_mul_u32_u24 v14, 20, v9"); e("v_add_u32 v14, v14, v10"); e("v_mul_u32_u24 v14, 160, v14"); e("v_lshl_add_u32 v14, v11, 3, v14")
    e("v_lshlrev_b32 v3, 4, v1")
    e("s_mul_i32 s19, s16, 102400"); e("s_add_u32 s19, s19, s31"); e(f"s_add_u32 s19, s19, {WOA_I}")
    e("s_lshl_b32 s28, s17, 2"); e("s_add_u32 s28, s28, s18"); e("s_mul_i32 s28, s28, 5120"); e("s_add_u32 s28, s28, s19"); e("s_add_u32 s29, s28, 4096")
    e("s_waitcnt vmcnt(0)"); e("s_barrier")
    for nf in range(5):
        for t in range(2): e(f"ds_read_b64_tr_b16 {vr(16+4*nf+2*t,2)}, v{12+t} offset:{32*nf}")
    e("s_waitcnt lgkmcnt(0)")
    for nf in range(5): e(f"buffer_store_dwordx4 {vr(16+4*nf,4)}, v3, s[12:15], s{28 if nf < 4 else 29} offen offset:{1024*(nf%4)} {PSC}")
    e("s_cmp_eq_u32 s18, 0"); e("s_cbranch_scc0 prep_end")
    for nf in range(5):
        for t in range(2): e(f"ds_read_b64_tr_b16 {vr(36+4*nf+2*t,2)}, v14 offset:{(80*t+16)*160+32*nf}")
    e("s_add_u32 s28, s17, 16"); e("s_mul_i32 s28, s28, 5120"); e("s_add_u32 s28, s28, s19"); e("s_add_u32 s29, s28, 4096")
    e("s_waitcnt lgkmcnt(0)")
    for nf in range(5): e(f"buffer_store_dwordx4 {vr(36+4*nf,4)}, v3, s[12:15], s{28 if nf < 4 else 29} offen offset:{1024*(nf%4)} {PSC}")
    k.label("prep_end"); k.rtdump(); k.label("prep_end0"); e("s_endpgm")
    return k.text(64, 64)

def stats_finish(k, s1, s2, mean, rstd, t):
    e = k.e
    e(f"v_mul_f32 v{mean}, {fbits(1.0/D)}, v{s1}")
    e(f"v_mul_f32 v{t}, {fbits(1.0/D)}, v{s2}")
    e(f"v_fma_f32 v{t}, -v{mean}, v{mean}, v{t}")
    e(f"v_max_f32 v{t}, 0, v{t}")
    e(f"v_add_f32 v{t}, {fbits(1e-5)}, v{t}")
    e(f"v_rsq_f32 v{rstd}, v{t}")
    e("s_nop 0")

def split3(k, src, d, t, kind, maskv=None):
    e = k.e
    if kind == 'm':
        e(f"v_xor_b32 v{t+1}, 0x80000000, v{src}"); src = t+1
    e(f"v_and_b32 v{t}, 0xffff0000, v{src}")
    e(f"v_sub_f32 v{t+2}, v{src}, v{t}")
    if kind == 'u':
        e(f"v_cvt_pk_bf16_f32 v{d}, v{t}, v{t+2}")
        e(f"v_lshrrev_b32 v{d+1}, 16, v{t}")
    else:
        e(f"v_cvt_pk_bf16_f32 v{d}, v{t}, v{t}")
        e(f"v_cvt_pk_bf16_f32 v{d+1}, v{t+2}, 0")
    if maskv is not None:
        e(f"v_and_b32 v{d}, v{d}, v{maskv}"); e(f"v_and_b32 v{d+1}, v{d+1}, v{maskv}")

SC = "sc1"
EARLY = int(os.environ.get('EARLY', '6'))
ENV = lambda n, d: int(os.environ.get(n, d))

def common(k, nwg=256):
    e = k.e
    e(f"s_cmp_ge_u32 s2, {nwg}"); e(f"s_cbranch_scc1 {k.name}_end"); k.stamp(0); k.rstamp(1)
    e("s_load_dwordx2 s[6:7], s[0:1], 64"); e("s_load_dwordx2 s[46:47], s[0:1], 48")
    e("s_and_b32 s20, s2, 7"); e("s_lshr_b32 s21, s2, 3")
    e("v_lshrrev_b32 v2, 6, v0"); e("v_and_b32 v1, 63, v0")
    e("v_readfirstlane_b32 s18, v2")
    e("s_and_b32 s39, s18, 3"); e("s_lshl_b32 s45, s39, 10")

def ids_mt(k):
    k.e("s_lshl_b32 s22, s20, 1"); k.e("s_and_b32 s23, s21, 1"); k.e("s_add_u32 s16, s22, s23"); k.e("s_lshr_b32 s17, s21, 1")
def ids_rt(k):
    k.e("s_lshl_b32 s22, s20, 2"); k.e("s_and_b32 s23, s21, 3"); k.e("s_add_u32 s16, s22, s23"); k.e("s_lshr_b32 s17, s21, 2")

LW = 163824
PV_ = 240
def lw_init(k):
    e = k.e
    e(f"v_mov_b32 v{PV_+3}, {LW}")
    for i in range(3): e(f"v_mov_b32 v{PV_+i}, 0")
    e(f"ds_write_b96 v{PV_+3}, v[{PV_}:{PV_+2}]"); e(f"ds_write_b32 v{PV_+3}, v{PV_} offset:12")

def signal(k, tag, word, nw, addr_code, younger=0):
    e = k.e
    addr_code()
    e(f"v_mov_b32 v{PV_+3}, {LW}"); e(f"v_mov_b32 v{PV_}, 1")
    e("s_mov_b64 exec, 1")
    e(f"s_waitcnt vmcnt({younger})"); k.vm = k.vm[len(k.vm)-younger:] if younger else []
    if tag == os.environ.get("FOC"): k.stamp(2)
    e(f"ds_add_rtn_u32 v{PV_+2}, v{PV_+3}, v{PV_} offset:{8*word}")
    e("s_waitcnt lgkmcnt(0)"); k.lg = []
    e(f"v_readfirstlane_b32 s49, v{PV_+2}")
    e("s_mov_b64 exec, s[56:57]")
    e(f"s_cmp_eq_u32 s49, {nw-1}"); e(f"s_cbranch_scc0 {k.name}_{tag}_sg")
    e(f"buffer_atomic_add v{PV_}, v{PV_+1}, s[12:15], s48 offen {SC}")
    if os.environ.get("FOC2") == tag: k.stamp(4)
    k.label(f"{k.name}_{tag}_sg")
    e("s_mov_b64 exec, -1")

def wait_go(k, tag, word, poll_code):
    e = k.e; nm = f"{k.name}_{tag}"
    e(f"v_mov_b32 v{PV_+3}, {LW}"); e("s_mov_b32 s49, 0")
    if poll_code:
        e("s_cmp_eq_u32 s18, 0"); e(f"s_cbranch_scc0 {nm}_sp")
        poll_code()
        e("s_mov_b64 exec, s[56:57]")
        if os.environ.get("FOC") == "g" + tag: k.stamp(2)
        k.label(f"{nm}_pl")
        e(f"v_mov_b32 v{PV_}, 0")
        e(f"buffer_atomic_add v{PV_}, v{PV_+1}, s[12:15], s48 offen sc0 sc1")
        e("s_add_u32 s49, s49, 1")
        e("s_waitcnt vmcnt(0)")
        e(f"v_cmp_ge_u32 vcc, v{PV_}, v{PV_+2}")
        e("s_cmp_ge_u32 s49, 0x20000"); e(f"s_cbranch_scc1 {nm}_px")
        e("s_cmp_eq_u64 vcc, exec"); e(f"s_cbranch_scc0 {nm}_pl")
        k.label(f"{nm}_px")
        if os.environ.get("FOC") == "g" + tag: e("s_add_u32 s70, s64, s49")
        e("s_mov_b64 exec, 1"); e(f"v_mov_b32 v{PV_}, 1")
        e(f"ds_write_b32 v{PV_+3}, v{PV_} offset:{8*word+4}")
        e(f"s_branch {nm}_go")
    k.label(f"{nm}_sp")
    e("s_sleep 1")
    e(f"ds_read_b32 v{PV_}, v{PV_+3} offset:{8*word+4}")
    e("s_add_u32 s49, s49, 1")
    e("s_waitcnt lgkmcnt(0)")
    e(f"v_readfirstlane_b32 s44, v{PV_}")
    e("s_cmp_ge_u32 s49, 0x400000"); e(f"s_cbranch_scc1 {nm}_go")
    e("s_cmp_eq_u32 s44, 0"); e(f"s_cbranch_scc1 {nm}_sp")
    k.label(f"{nm}_go")
    e("s_mov_b64 exec, -1")

class Wdma:
    def __init__(s, k, n, base=50, tag="w"): s.k = k; s.n = n; s.i = 0; s.base = base; s.tag = tag
    def one(s, i):
        s.k.e(f"s_add_u32 m0, s45, {4096*i}"); s.k.e(f"s_add_u32 s32, s{s.base}, {4096*i}")
        s.k.vmop("buffer_load_dwordx4 v3, s[12:15], s32 offen lds", f"{s.tag}{i}")
    def go(s, upto):
        while s.i < min(upto, s.n): s.one(s.i); s.i += 1
    def rng(s, a, b, thr=0):
        for i in range(a, b):
            s.one(i)
            if thr and len(s.k.vm) >= thr: s.k.e(f"s_waitcnt vmcnt({thr-1})"); s.k.vm = s.k.vm[len(s.k.vm)-thr+1:]

def ph_attn(k, L):
    e = k.e; nm = k.name
    KA, KT, VA = 4, 5, 6
    Q = [8, 14]; KF = [24, 32]; VF = [40, 48]; SS = [56, 72]; P = 88; O = [96, 112]; PF = 128
    SCR = 102400
    ids_rt(k)
    e("v_and_b32 v3, 31, v1"); e("v_lshrrev_b32 v7, 5, v1")
    e("v_lshlrev_b32 v22, 4, v1"); e("v_lshlrev_b32 v23, 3, v3")
    e("s_mul_i32 s19, s16, 163840")
    e("s_lshr_b32 s41, s18, 2")
    e("s_lshl_b32 s23, s17, 3"); e("s_lshl_b32 s22, s39, 1"); e("s_add_u32 s23, s23, s22")
    e("s_mul_i32 s24, s23, 1280"); e("s_lshr_b32 s22, s19, 1"); e("s_add_u32 s24, s24, s22"); e(f"s_add_u32 s24, s24, {QIMG[L]}")
    e("s_mul_i32 s42, s41, 81920")
    e("s_add_u32 s25, s45, s42")
    e("s_add_u32 s26, s19, s25"); e(f"s_add_u32 s26, s26, {KVIMG[L]}")
    e("s_waitcnt lgkmcnt(0)")
    k.stamp(2); k.srd(12, 6, WS_END)
    rnd = [0]
    def dma():
        i = rnd[0]; rnd[0] += 1
        e(f"s_add_u32 m0, s25, {4096*i}"); e(f"s_add_u32 s27, s26, {4096*i}")
        k.vmop(f"buffer_load_dwordx4 v22, s[12:15], s27 offen lds", f"i{i}")
    dma()
    for x in range(2):
        k.vmop(f"buffer_load_dwordx4 {vr(Q[x],4)}, v22, s[12:15], s24 offen offset:{1280*x}", "q")
        k.vmop(f"buffer_load_dwordx2 {vr(Q[x]+4,2)}, v23, s[12:15], s24 offen offset:{1280*x+1024}", "q")
    for _ in range(3): dma()
    e(f"v_add_u32 v{KA}, s42, v22")
    e(f"v_add_u32 v{KT}, s42, v23"); e(f"v_add_u32 v{KT}, 1024, v{KT}")
    e("v_mul_u32_u24 v21, 20, v7"); e("v_add_u32 v21, v21, v3"); e("v_lshlrev_b32 v21, 4, v21")
    e("v_add_u32 v21, 1280, v21"); e(f"v_add_u32 v{VA}, s42, v21")
    e("s_mov_b32 s28, 0x000fffff"); e("s_mov_b32 s29, 0x000fffff")
    e("v_cmp_eq_u32 vcc, 20, v3"); e("v_mov_b32 v20, 0x3f803f80"); e("s_nop 0")
    e("v_cndmask_b32 v20, 0, v20, vcc")
    for r in range(16): e(f"v_mov_b32 v{VF[0]+r}, v20")
    for r in range(32): e(f"v_mov_b32 v{O[0]+r}, 0")
    for r in range(4): e(f"v_mov_b32 v{P+4+r}, 0")
    e("v_subrev_u32 v30, 1, v7")
    e("s_lshl_b32 s43, s21, 3"); e("s_add_u32 s43, s43, s18"); e("s_mul_i32 s43, s43, 14336"); e(f"s_add_u32 s43, s43, {WOA_I}")
    e("v_lshlrev_b32 v134, 6, v1"); e("s_lshl_b32 s55, s2, 3"); e("s_add_u32 s55, s55, s18")
    TCH = ENV('TCH', '7'); NTM = 7 if (TCH == 6 and L == 0) else 31
    e(f"v_lshlrev_b32 v134, {TCH if L == 0 else 6}, v1"); e("s_mov_b32 s44, s18" if NTM == 7 else "s_lshl_b32 s44, s18, 1")
    if L == 0: e(f"s_mul_i32 s62, s55, {-(-(TOUCH1-TOUCH0)//2048//128)*128}"); e("s_mov_b32 s63, 4096" if False else "s_mov_b32 s63, 2688")
    else: e("s_mul_i32 s55, s55, 1280"); k.srd(60, 46, S*D*2)
    e("s_add_u32 s23, s23, s41")
    e("s_mul_i32 s32, s23, 40960"); e(f"s_add_u32 s32, s32, {OT}")
    e("s_lshr_b32 s51, s16, 1"); e("s_lshl_b32 s51, s51, 10"); e("s_and_b32 s34, s16, 1"); e("s_lshl_b32 s34, s34, 9")
    e("s_add_u32 s51, s51, s34"); e("s_add_u32 s51, s51, s32")
    e("s_lshr_b32 s52, s16, 3"); e("s_add_u32 s52, s52, 16"); e("s_lshl_b32 s52, s52, 10"); e("s_add_u32 s52, s52, s32")
    e("s_and_b32 s35, s16, 3"); e("s_lshl_b32 s35, s35, 8"); e("s_add_u32 s52, s52, s35")
    e("s_bfe_u32 s35, s16, 0x10002"); e("s_lshl_b32 s35, s35, 3"); e("s_add_u32 s52, s52, s35")
    e("v_lshrrev_b32 v38, 4, v3"); e("v_mul_u32_u24 v38, 20480, v38"); e("v_and_b32 v39, 15, v3")
    e("v_lshl_add_u32 v38, v39, 4, v38"); e("v_lshl_add_u32 v39, v7, 8, v38")
    e("s_lshl_b32 s59, s18, 10"); e("s_mul_i32 s50, s17, 102400"); e("s_add_u32 s50, s50, s59"); e(f"s_add_u32 s50, s50, {WOA_I}")
    e("s_mul_i32 s32, s18, 3072"); e("s_xor_b32 s33, s18, 4"); e("s_mul_i32 s33, s33, 3072")
    e(f"v_add_u32 v132, {SCR}, v22"); e("v_add_u32 v133, s33, v132"); e("v_add_u32 v132, s32, v132")
    k.waitvm("q")
    for x in range(2):
        e(f"v_and_b32 v{Q[x]+4}, v{Q[x]+4}, v30"); e(f"v_and_b32 v{Q[x]+5}, v{Q[x]+5}, v30")
    k.waitvm("i1"); e("s_barrier"); k.stamp(3)
    def rdK(buf, off):
        e(f"ds_read_b128 {vr(KF[buf],4)}, v{KA} offset:{off}")
        e(f"ds_read_b64 {vr(KF[buf]+4,2)}, v{KT} offset:{off}")
    def rdV(buf, off):
        e("s_mov_b64 exec, s[28:29]")
        e(f"ds_read_b128 {vr(VF[buf],4)}, v{VA} offset:{off}")
        e(f"ds_read_b128 {vr(VF[buf]+4,4)}, v{VA} offset:{off+640}")
        e("s_mov_b64 exec, -1")
    def qkm(x, kb): e(f"v_mfma_f32_32x32x16_bf16 {vr(SS[x],16)}, {vr(KF[kb],4)}, {vr(Q[x],4)}, 0")
    def qkt(x, kb): e(f"v_mfma_f32_32x32x8_bf16 {vr(SS[x],16)}, {vr(KF[kb]+4,2)}, {vr(Q[x]+4,2)}, {vr(SS[x],16)}")
    def pv(x, vb, u): e(f"v_mfma_f32_32x32x16_bf16 {vr(O[x],16)}, {vr(VF[vb]+4*u,4)}, {vr(P+4*u,4)}, {vr(O[x],16)}")
    def unit(x, t, extra=None):
        p = t % 2; s = SS[x]
        ex = lambda i: e(f"v_exp_f32 v{s+i}, v{s+i}")
        cv = lambda i: e(f"v_cvt_pk_bf16_f32 v{P+i}, v{s+2*i}, v{s+2*i+1}")
        kb = p if x == 0 else 1-p
        if x == 1: e("s_waitcnt lgkmcnt(2)")
        qkm(1-x, kb)
        if x == 1: rdK(p, (t+2)*2560)
        for i in range(0, 4): ex(i)
        if x == 0:
            pv(1, 1-p, 1); rdV(1-p, (t+1)*2560)
        else:
            pv(0, p, 1)
        if extra: extra()
        for i in range(4, 8): ex(i)
        for i in range(0, 4): cv(i)
        qkt(1-x, kb)
        for i in range(8, 12): ex(i)
        if x == 0: e("s_waitcnt lgkmcnt(4)")
        pv(x, p, 0)
        for i in range(12, 16): ex(i)
        for i in range(4, 8): cv(i)
    def touch(t):
        e(f"s_cmp_eq_u32 s44, {t}"); e(f"s_cbranch_scc0 {nm}_t{t}")
        if L == 0: e(f"buffer_load_dword v{PF}, v134, s[12:15], s62 offen"); e("s_add_u32 s62, s62, s63")
        else: e(f"buffer_load_dword v{PF}, v134, s[60:63], s55 offen")
        k.label(f"{nm}_t{t}")
    rdK(0, 0); rdV(0, 0); rdK(1, 2560)
    e("s_waitcnt lgkmcnt(4)")
    qkm(0, 0); e("s_nop 10"); qkt(0, 0); e("s_nop 10")
    SYN = {1: 3, 4: 7, 7: 19}; PEEL = 8
    for t in range(PEEL):
        if t in SYN: k.waitvm(f"i{SYN[t]}"); e("s_barrier")
        if t == 7:
            e("s_cmp_ge_u32 s18, 4"); e(f"s_cbranch_scc0 {nm}_np"); e("s_setprio 1"); k.label(f"{nm}_np")
        d2 = lambda: (dma(), dma())
        unit(0, t, d2 if rnd[0] < 20 else None)
        unit(1, t, d2 if rnd[0] < 20 else None)
    for r in (KA, KT, VA): e(f"v_add_u32 v{r}, {PEEL*2560}, v{r}")
    e("s_mov_b32 s31, 0")
    def pref():
        e(f"buffer_load_dwordx4 {vr(PF,4)}, v22, s[12:15], s43 offen"); e("s_add_u32 s43, s43, 1024")
    e(".p2align 3")
    body_start = len(k.L)
    k.label(f"{nm}_aloop")
    NT = 4; NIT = (32 - PEEL)//NT
    for t in range(NT):
        unit(0, t, pref if t != 3 else None); unit(1, t, (lambda: touch(t)) if TCH else None)
    for r in (KA, KT, VA): e(f"v_add_u32 v{r}, {NT*2560}, v{r}")
    e("s_add_u32 s31, s31, 1"); e("s_sub_u32 s44, s44, 4"); e(f"s_and_b32 s44, s44, {NTM}")
    e(f"s_cmp_eq_u32 s31, {NIT-1}"); e(f"s_cbranch_scc0 {nm}_l1"); e("s_setprio 0"); k.label(f"{nm}_l1")
    e(f"s_cmp_lt_u32 s31, {NIT}"); e(f"s_cbranch_scc1 {nm}_aloop")
    body = k.L[body_start:]
    assert lint(body + body, "attn_loop2") == 0
    pv(1, 1, 1); k.stamp(4)
    e("s_waitcnt lgkmcnt(0)"); e("s_barrier")
    for i in range(EARLY//2):
        e(f"s_add_u32 m0, s59, {8192*i}"); e(f"s_add_u32 s27, s50, {8192*i}")
        e("buffer_load_dwordx4 v22, s[12:15], s27 offen lds")
    e("s_mov_b32 s30, 0")
    e("s_cmp_eq_u32 s41, 0"); e(f"s_cbranch_scc1 {nm}_k0")
    e("s_nop 6")
    for i in range(3): e(f"ds_write_b128 v132, {vr(O[0]+4*i,4)} offset:{1024*i}")
    for r in range(12): e(f"v_mov_b32 v{O[0]+r}, v{O[1]+r}")
    for r in range(6): e(f"v_mov_b32 v{Q[0]+r}, v{Q[1]+r}")
    e(f"s_branch {nm}_k1")
    k.label(f"{nm}_k0")
    lw_init(k); e("s_nop 3")
    for i in range(3): e(f"ds_write_b128 v132, {vr(O[1]+4*i,4)} offset:{1024*i}")
    k.label(f"{nm}_k1")
    e(f"s_mov_b32 s32, {fbits(2.0**-60)}"); e(f"s_mov_b32 s33, {fbits(2.0**100)}"); e(f"s_mov_b32 s34, {fbits(2.0**126)}")
    e("s_waitcnt lgkmcnt(0)"); e("s_barrier")
    for i in (2, 0, 1): e(f"ds_read_b128 {vr(SS[0]+4*i,4)}, v133 offset:{1024*i}")
    OO = O[0]
    e("s_waitcnt lgkmcnt(2)")
    for r in range(8, 12): e(f"v_add_f32 v{OO+r}, v{OO+r}, v{SS[0]+r}")
    e("s_waitcnt lgkmcnt(0)")
    for r in range(8): e(f"v_add_f32 v{OO+r}, v{OO+r}, v{SS[0]+r}")
    k.label(f"{nm}_chk")
    e(f"v_mov_b32 v30, v{OO+8}"); e(f"v_mov_b32 v31, v{OO+8}")
    e(f"v_max3_f32 v28, abs(v{OO}), abs(v{OO+1}), abs(v{OO+2})")
    e("v_permlane32_swap_b32 v30, v31")
    for r in range(3, 11, 2): e(f"v_max3_f32 v28, abs(v{OO+r}), abs(v{OO+r+1}), v28")
    e(f"v_max_f32 v28, abs(v{OO+11}), v28")
    e("v_cmp_le_f32 vcc, s32, v31"); e("v_cmp_ge_f32 s[36:37], s33, v31"); e("v_cmp_gt_f32 s[40:41], s34, v28")
    e("v_rcp_f32 v31, v31")
    e("s_and_b64 s[36:37], s[36:37], vcc"); e("s_and_b64 s[36:37], s[36:37], s[40:41]")
    e("s_cmp_eq_u64 s[36:37], -1"); e(f"s_cbranch_scc1 {nm}_fin")
    e("s_cmp_eq_u32 s30, 0"); e(f"s_cbranch_scc0 {nm}_fin")
    e("s_mov_b32 s30, 1")
    e("s_waitcnt vmcnt(0)")
    NM = O[1]
    e("v_mov_b32 v32, 0xff800000")
    def slowqk(c):
        e(f"buffer_load_dwordx4 {vr(KF[0],4)}, v22, s[12:15], s27 offen")
        e(f"buffer_load_dwordx2 {vr(KF[0]+4,2)}, v23, s[12:15], s27 offen offset:1024")
        e("s_waitcnt vmcnt(0)")
        e(f"v_mfma_f32_32x32x16_bf16 {vr(SS[0],16)}, {vr(KF[0],4)}, {vr(Q[0],4)}, {c}"); e("s_nop 10")
        e(f"v_mfma_f32_32x32x8_bf16 {vr(SS[0],16)}, {vr(KF[0]+4,2)}, {vr(Q[0]+4,2)}, {vr(SS[0],16)}"); e("s_nop 12")
    e(f"s_add_u32 s27, s19, {KVIMG[L]}"); e("s_mov_b32 s31, 0")
    k.label(f"{nm}_mx")
    slowqk("0")
    for r in range(0, 16, 2): e(f"v_max3_f32 v32, v{SS[0]+r}, v{SS[0]+r+1}, v32")
    e("s_add_u32 s27, s27, 2560")
    e("s_add_u32 s31, s31, 1"); e("s_cmp_lt_u32 s31, 64"); e(f"s_cbranch_scc1 {nm}_mx")
    k.allred32("v_max_f32", 32, 33)
    e("v_xor_b32 v32, 0x80000000, v32")
    for r in range(16): e(f"v_mov_b32 v{NM+r}, v32")
    for r in range(16): e(f"v_mov_b32 v{OO+r}, 0")
    for r in range(8): e(f"v_mov_b32 v{VF[0]+r}, v20")
    e(f"s_add_u32 s27, s19, {KVIMG[L]}"); e("s_mov_b32 s31, 0")
    k.label(f"{nm}_sl")
    e("s_mov_b64 exec, s[28:29]")
    e(f"buffer_load_dwordx4 {vr(VF[0],4)}, v21, s[12:15], s27 offen")
    e(f"buffer_load_dwordx4 {vr(VF[0]+4,4)}, v21, s[12:15], s27 offen offset:640")
    e("s_mov_b64 exec, -1")
    slowqk(vr(NM,16))
    for i in range(16): e(f"v_exp_f32 v{SS[0]+i}, v{SS[0]+i}")
    e("s_nop 0")
    for i in range(8): e(f"v_cvt_pk_bf16_f32 v{P+i}, v{SS[0]+2*i}, v{SS[0]+2*i+1}")
    e("s_nop 1")
    pv(0, 0, 0); pv(0, 0, 1)
    e("s_add_u32 s27, s27, 2560")
    e("s_add_u32 s31, s31, 1"); e("s_cmp_lt_u32 s31, 64"); e(f"s_cbranch_scc1 {nm}_sl")
    e("s_nop 12"); e(f"s_branch {nm}_chk")
    k.label(f"{nm}_fin")
    e("s_nop 0")
    for r in range(12): e(f"v_mul_f32 v{OO+r}, v{OO+r}, v31")
    for r in range(6): e(f"v_cvt_pk_bf16_f32 v{P+r}, v{OO+2*r}, v{OO+2*r+1}")
    e(f"buffer_store_dwordx4 {vr(P,4)}, v39, s[12:15], s51 offen {SC}")
    e("s_mov_b32 exec_hi, 0")
    e(f"buffer_store_dwordx2 {vr(P+4,2)}, v38, s[12:15], s52 offen {SC}")
    e("s_mov_b64 exec, -1")
    e("v_lshlrev_b32 v3, 4, v1")
    k.vm = []; k.lg = []

def proj_c(k, tag, src, xin, xout, stout, final, cnt_code, word, st0):
    e = k.e
    ACC, RESID, A, BF = 24, 44, 76, 156
    NA0 = ENV('PA0', '8')
    ids_rt(k)
    e("s_lshl_b32 s19, s16, 2"); e("s_add_u32 s19, s19, s39")
    e("s_mul_i32 s24, s19, 20480")
    e("s_lshr_b32 s33, s17, 1"); e("s_mul_i32 s33, s33, 5120"); e("s_add_u32 s33, s33, s24")
    e("s_and_b32 s34, s17, 1"); e("s_lshl_b32 s35, s34, 11"); e("s_add_u32 s35, s35, s33")
    e("s_lshl_b32 s34, s34, 3"); e("s_add_u32 s36, s33, s34"); e("s_add_u32 s36, s36, 4096")
    e(f"s_add_u32 s37, s35, {xin}"); e(f"s_add_u32 s38, s36, {xin}")
    k.vmop(f"buffer_load_dwordx4 {vr(RESID,4)}, v3, s[12:15], s37 offen {SC}", "r")
    k.vmop(f"buffer_load_dwordx4 {vr(RESID+4,4)}, v3, s[12:15], s37 offen offset:1024 {SC}", "r")
    k.vmop(f"buffer_load_dwordx2 {vr(RESID+8,2)}, v3, s[12:15], s38 offen {SC}", "r")
    e(f"s_add_u32 s24, s24, {src}")
    for i in range(1, 5): e(f"s_add_u32 s{24+i}, s24, {4096*i}")
    e("v_lshrrev_b32 v9, 4, v1"); e("v_add_u32 v12, 61440, v3")
    wait_go(k, tag, word, cnt_code)
    k.stamp(st0)
    def ldA(n): k.vmop(f"buffer_load_dwordx4 {vr(A+4*n,4)}, v3, s[12:15], s{24+n//4} offen offset:{(n%4)*1024} {SC}", f"a{n}")
    for n in range(NA0): ldA(n)
    k.waitvm("r")
    for i in range(10):
        e(f"v_lshlrev_b32 v{ACC+2*i}, 16, v{RESID+i}"); e(f"v_and_b32 v{ACC+2*i+1}, 0xffff0000, v{RESID+i}")
    def rd(n, nf):
        off = n*5120 + nf*1024; b = 3
        if n >= 12: off -= 61440; b = 12
        k.dsop(f"ds_read_b128 {vr(BF+20*(n%2)+4*nf,4)}, v{b} offset:{off}", f"b{n}_{nf}")
    e("s_barrier")
    for n in range(2):
        for nf in range(5): rd(n, nf)
    for n in range(20):
        k.waitvm(f"a{n}")
        if n == 0: k.stamp(st0+1)
        for nf in range(5):
            if nf in (0, 2, 4): k.waitlg(f"b{n}_{min(nf+1,4)}")
            if n == 12 and nf == 0 and not final: e("s_barrier")
            e(f"v_mfma_f32_16x16x32_bf16 {vr(ACC+4*nf,4)}, {vr(BF+20*(n%2)+4*nf,4)}, {vr(A+4*n,4)}, {vr(ACC+4*nf,4)}")
            if n + 2 < 20: rd(n+2, nf)
            if nf == 0 and n + NA0 < 20: ldA(n + NA0)
    if not final: e("s_barrier")
    if final:
        e("v_and_b32 v16, 15, v1"); e("v_mul_u32_u24 v16, 1280, v16"); e("v_lshl_add_u32 v16, v9, 3, v16")
        e("s_mul_i32 s32, s19, 20480"); e("s_mul_i32 s31, s17, 160"); e("s_add_u32 s32, s32, s31")
        for nf in range(5):
            for r in range(2): e(f"v_cvt_pk_bf16_f32 v{RESID+2*nf+r}, v{ACC+4*nf+2*r}, v{ACC+4*nf+2*r+1}")
            e(f"buffer_store_dwordx2 {vr(RESID+2*nf,2)}, v16, s[60:63], s32 offen offset:{32*nf}")
    else:
        e(f"s_add_u32 s37, s35, {xout}"); e(f"s_add_u32 s38, s36, {xout}")
        e("s_lshl_b32 s32, s19, 10"); e("s_lshl_b32 s33, s17, 7"); e("s_add_u32 s32, s32, s33"); e(f"s_add_u32 s32, s32, {stout}")
        e("v_lshlrev_b32 v16, 3, v1")
        for i in range(10): e(f"v_cvt_pk_bf16_f32 v{RESID+i}, v{ACC+2*i}, v{ACC+2*i+1}")
        e(f"buffer_store_dwordx4 {vr(RESID,4)}, v3, s[12:15], s37 offen {SC}")
        e(f"buffer_store_dwordx4 {vr(RESID+4,4)}, v3, s[12:15], s37 offen offset:1024 {SC}")
        e(f"buffer_store_dwordx2 {vr(RESID+8,2)}, v3, s[12:15], s38 offen {SC}")
        e(f"v_add_f32 v18, v{ACC}, v{ACC+1}"); e(f"v_mul_f32 v19, v{ACC}, v{ACC}"); e(f"v_add_f32 v20, v{ACC+2}, v{ACC+3}"); e(f"v_mul_f32 v21, v{ACC+1}, v{ACC+1}")
        e(f"v_fmac_f32 v19, v{ACC+2}, v{ACC+2}"); e(f"v_fmac_f32 v21, v{ACC+3}, v{ACC+3}")
        for i in range(4, 20, 2):
            e(f"v_add_f32 v18, v18, v{ACC+i}"); e(f"v_fmac_f32 v19, v{ACC+i}, v{ACC+i}")
            e(f"v_add_f32 v20, v20, v{ACC+i+1}"); e(f"v_fmac_f32 v21, v{ACC+i+1}, v{ACC+i+1}")
        e("v_add_f32 v18, v18, v20"); e("v_add_f32 v19, v19, v21")
        for sw in ("v_permlane16_swap_b32", "v_permlane32_swap_b32"):
            e("v_mov_b32 v20, v18"); e("v_mov_b32 v21, v19"); e("s_nop 0")
            e(f"{sw} v18, v20"); e(f"{sw} v19, v21"); e("s_nop 0")
            e("v_add_f32 v18, v18, v20"); e("v_add_f32 v19, v19, v21")
        e("s_mov_b64 exec, 0xffff")
        e(f"buffer_store_dwordx2 v[18:19], v16, s[12:15], s32 offen {SC}")
    k.stamp(st0+2)

def proj_l(k, wimg, nxt, src, sig=None, done=0):
    e = k.e
    if nxt is not None:
        ids_mt(k)
        e("s_min_u32 s17, s17, 14" if nxt == WA_I else "s_nop 0")
        e("s_mul_i32 s58, s17, 163840"); e("s_add_u32 s58, s58, s45"); e(f"s_add_u32 s58, s58, {nxt}")
    ids_rt(k)
    e("s_mul_i32 s50, s17, 102400"); e("s_add_u32 s50, s50, s45"); e(f"s_add_u32 s50, s50, {wimg}")
    e("s_mul_i32 s51, s16, 81920"); e("s_lshl_b32 s52, s17, 2"); e("s_add_u32 s52, s52, s39"); e("s_mul_i32 s52, s52, 2560"); e("s_add_u32 s51, s51, s52"); e(f"s_add_u32 s51, s51, {src}")
    e("v_min_u32 v21, 39, v1"); e("v_lshlrev_b32 v21, 6, v21")
    w = Wdma(k, 25, 50, "o"); k.vm = []
    T1, T2 = ENV('T1', '4'), ENV('T2', '3')
    if sig:
        n = ENV('N1', '2'); w.rng(done, done + n); signal(k, "s1l", 0, 8, sig, n); done += n
    w.rng(done, 25, T1 if sig else 0)
    w2 = Wdma(k, 40, 58)
    if nxt is not None: w2.rng(32, 39, T1 if sig else 0)
    k.waitvm("o24")
    e("s_barrier")
    if ENV('ATOUCH', '1'):
        k.vmop("buffer_load_dword v20, v21, s[12:15], s51 offen")
    if nxt is not None:
        w2.rng(25, 32)
        e("s_barrier")
        w2.rng(0, 15)
        e("s_barrier")
        k.waitvm("w14")
        w2.rng(15, 25, T2)
    return w2

def stats16(k, s, rstd, mop, mask):
    e = k.e
    e(f"v_add_f32 v{s}, v{s}, v{s+2}"); e(f"v_add_f32 v{s+1}, v{s+1}, v{s+3}")
    k.allred16("v_add_f32", s, s+2); k.allred16("v_add_f32", s+1, s+3)
    k.allred32("v_add_f32", s, s+2); k.allred32("v_add_f32", s+1, s+3)
    stats_finish(k, s, s+1, s+2, rstd, s+3)
    split3(k, s+2, mop, 17, 'm', mask)
def usum(k, u, dst, t=17):
    e = k.e
    e(f"v_add_f32 v{u}, v{u}, v{u+1}"); e(f"v_add_f32 v{u+2}, v{u+2}, v{u+3}"); e(f"v_add_f32 v{u}, v{u}, v{u+2}")
    split3(k, u, dst, t, 'u')
def scale_pack(k, a, sc, dst):
    for r in range(4): k.e(f"v_mul_f32 v{a+r}, v{a+r}, v{sc(r)}")
    for r in range(2): k.e(f"v_cvt_pk_bf16_f32 v{dst+r}, v{a+2*r}, v{a+2*r+1}")
EX = 102400
TOKF = (0, 1, 2, 3, 6); FEAF = (4, 5, 7)

def atouch_pre(k, xin):
    e = k.e
    e("s_mul_i32 s51, s16, 163840"); e("s_lshl_b32 s52, s17, 2"); e("s_add_u32 s52, s52, s39"); e("s_mul_i32 s52, s52, 2560"); e("s_add_u32 s51, s51, s52"); e(f"s_add_u32 s51, s51, {xin}")
    e("v_min_u32 v21, 39, v1"); e("v_lshlrev_b32 v21, 6, v21")

def qkvb_pre(k):
    e = k.e
    ids_mt(k)
    e("v_and_b32 v5, 15, v1"); e("v_lshrrev_b32 v6, 4, v1")
    e("s_lshl_b32 s22, s16, 3"); e("s_lshl_b32 s19, s39, 1"); e("s_add_u32 s19, s19, s22")
    e("v_lshlrev_b32 v11, 3, v5"); e("v_lshl_add_u32 v11, v6, 8, v11")
    e("v_lshlrev_b32 v14, 4, v5")
    e("s_lshl_b32 s30, s17, 11"); e(f"s_add_u32 s30, s30, {U_B}")
    e("v_cmp_eq_u32 vcc, 0, v6"); e("v_lshlrev_b32 v10, 4, v6"); e("s_nop 0"); e("v_cndmask_b32 v4, 0, -1, vcc")

def qkvb_c(k, L, xin, stin, st0):
    e = k.e; nm = k.name
    DA = 5
    ACC, BF, AR, RSV = 64, 160, 192, 228
    acc = lambda b, F: ACC + 32*b + 4*F
    qkvb_pre(k)
    for F in range(8): k.vmop(f"buffer_load_dwordx4 {vr(64+4*F,4)}, v14, s[12:15], s30 offen offset:{256*F}", "u")
    e("s_lshl_b32 s28, s19, 10"); e(f"s_add_u32 s28, s28, {stin}")
    e("s_mul_i32 s25, s19, 20480"); e(f"s_add_u32 s25, s25, {xin}"); e("s_add_u32 s26, s25, 20480")
    e("v_add_u32 v41, 65536, v3"); e("v_add_u32 v42, 131072, v3")
    def c2():
        e("s_lshl_b32 s48, s16, 9"); e(f"s_add_u32 s48, s48, {C2(L)}")
        e(f"v_lshlrev_b32 v{PV_+1}, 8, v1"); e(f"v_lshlrev_b32 v{PV_+2}, 3, v1"); e(f"v_sub_u32 v{PV_+2}, 16, v{PV_+2}")
        e("s_cmp_eq_u32 s16, 0"); e("s_cselect_b64 s[56:57], 1, 3")
    wait_go(k, "p3", 1, c2)
    k.stamp(st0)
    def ldA(ks):
        for b in range(2):
            if ks % 4 == 0 and ks > 0: e(f"s_add_u32 s{25+b}, s{25+b}, 4096")
            k.vmop(f"buffer_load_dwordx4 {vr(AR+8*(ks%DA)+4*b,4)}, v3, s[12:15], s{25+b} offen offset:{(ks%4)*1024} {SC}", f"a{ks}")
    ldA(0)
    for b in range(2):
        for q in range(2): k.vmop(f"buffer_load_dwordx2 {vr(24+4*b+2*q,2)}, v11, s[12:15], s28 offen offset:{1024*b+128*q} {SC}", "st")
    for ks in range(1, DA-1): ldA(ks)
    MC, MP, MP1 = 64, 68, 72
    NEG = fbits(-1e30)
    def prolog():
        k.waitvm("st")
        for b in (1, 2): stats16(k, 20+4*b, 48+b, 52+2*b, 4)
        for F in range(8): usum(k, 64+4*F, 20+2*F)
        for b in (1, 2):
            for r in range(4):
                e(f"v_add_u32 v18, {4*r}, v10")
                k.dsop(f"ds_bpermute_b32 v{RSV+4*b+r}, v18, v{48+b}", "rs")
        e("v_lshlrev_b32 v17, 2, v6"); e("v_sub_u32 v17, v5, v17")
        e(f"v_mov_b32 v19, {NEG}")
        for r in range(4):
            e(f"v_subrev_u32 v18, {r}, v17"); e("v_and_b32 v16, 0x80000001, v18")
            e("v_cmp_eq_u32 vcc, 0, v16"); e(f"v_cndmask_b32 v{MC+r}, v19, 0, vcc")
            e("v_cmp_eq_u32 vcc, 0x80000000, v16"); e(f"v_cndmask_b32 v{MP+r}, v19, 0, vcc")
        e("s_cmp_eq_u32 s19, 0"); e(f"s_cselect_b32 s34, {NEG}, 0")
        for r in range(4): e(f"v_add_f32 v{MP1+r}, s34, v{MP+r}")
        e("v_cmp_eq_u32 vcc, 2, v6"); e("v_cndmask_b32 v38, 0, -1, vcc")
        e("v_cmp_eq_u32 vcc, 3, v6"); e("v_cndmask_b32 v39, 0, -1, vcc")
        for b in (1, 2): e(f"v_mul_f32 v{58+b}, {fbits(CSCALE)}, v{48+b}")
        e("v_cmp_gt_u32 vcc, 2, v6")
        for b in (1, 2): e(f"v_cndmask_b32 v{35+b}, v{48+b}, v{58+b}, vcc")
        e("s_mul_i32 s35, s18, 5120"); e(f"s_add_u32 s35, s35, {EX}"); e("v_add_u32 v9, s35, v3")
        e("s_mul_i32 s24, s19, 20480"); e(f"s_add_u32 s24, s24, {OBT}")
        e("s_lshl_b32 s51, s17, 10"); e("s_add_u32 s51, s51, s24"); e("s_add_u32 s52, s51, 20480")
        e("s_lshr_b32 s53, s17, 2"); e("s_add_u32 s53, s53, 16"); e("s_lshl_b32 s53, s53, 10"); e("s_add_u32 s53, s53, s24")
        e("s_and_b32 s54, s17, 1"); e("s_lshl_b32 s54, s54, 9"); e("s_add_u32 s53, s53, s54")
        e("s_bfe_u32 s54, s17, 0x10001"); e("s_lshl_b32 s54, s54, 3"); e("s_add_u32 s53, s53, s54"); e("s_add_u32 s54, s53, 20480")
    fl = k.capture(prolog)
    def rd(ks, F):
        off = ks*8192 + 1024*F; hi = off >> 16
        k.dsop(f"ds_read_b128 {vr(BF+4*F,4)}, v{(3,41,42)[hi]} offset:{off & 0xffff}", f"b{ks}_{F}")
    def mm(b, F, ks):
        a = vr(AR+8*(ks%DA)+4*(b-1), 4); w = vr(BF+4*F, 4); c = vr(acc(b,F), 4); ci = c if ks else "0"
        if F in TOKF: e(f"v_mfma_f32_16x16x32_bf16 {c}, {w}, {a}, {ci}")
        else:         e(f"v_mfma_f32_16x16x32_bf16 {c}, {a}, {w}, {ci}")
    e("s_barrier")
    for F in range(8): rd(0, F)
    for ks in range(20):
        k.waitvm(f"a{ks}")
        if ks == 0: k.stamp(st0+1)
        if ks == 6: e("s_barrier")
        for F in range(8):
            if F % 2 == 0: k.waitlg(f"b{ks}_{F+1}")
            mm(1, F, ks)
            if ks >= 1: k.fill(fl, 1)
            mm(2, F, ks)
            if ks + 1 < 20: rd(ks+1, F)
            if F == 0 and ks + DA - 1 < 20: ldA(ks + DA - 1)
            if ks >= 1 and F % 2: k.fill(fl, 1)
        if ks == 18:
            k.fill(fl, 1000)
            for b in (1, 2):
                for F in range(8):
                    U, M = vr(20+2*F, 2), vr(52+2*b, 2)
                    if F in TOKF: e(f"v_mfma_f32_16x16x16_bf16 {vr(acc(b,F),4)}, {U}, {M}, {vr(acc(b,F),4)}")
                    else:         e(f"v_mfma_f32_16x16x16_bf16 {vr(acc(b,F),4)}, {M}, {U}, {vr(acc(b,F),4)}")
    k.stamp(st0+2)
    e("s_barrier")
    if os.environ.get("FOC") == "s3": k.stamp(3)
    e("s_cmp_eq_u32 s18, 0"); e(f"s_cbranch_scc0 {nm}_ni"); lw_init(k); k.label(f"{nm}_ni")
    KO = lambda b, h: BF + 8*b + 4*h
    QO = lambda b, h: BF + 24 + 8*(b-1) + 4*h
    VO = lambda F, b: BF + 40 + 8*FEAF.index(F) + 2*b
    def kv_pack(b):
        for h in range(2): scale_pack(k, acc(b, 2+h), lambda r: 48+b, KO(b,h))
        scale_pack(k, acc(b, 6), lambda r: 35+b, KO(b,0)+2)
        for r in range(2): e(f"v_mov_b32 v{KO(b,1)+2+r}, v{KO(b,0)+2+r}")
        for F in FEAF: scale_pack(k, acc(b, F), lambda r: RSV+4*b+r, VO(F,b))
    kv_pack(2)
    for h in range(2): e(f"ds_write_b128 v9, {vr(KO(2,h),4)} offset:{5120+1024*h}")
    for n, F in enumerate(FEAF): e(f"ds_write_b64 v9, {vr(VO(F,2),2)} offset:{5120+2048+1024*n}")
    kv_pack(1)
    e("s_waitcnt lgkmcnt(0)"); e("s_barrier")
    if os.environ.get("FOC") == "s3": k.stamp(4)
    for h in range(2): e(f"ds_read_b128 {vr(KO(0,h),4)}, v9 offset:{1024*h}")
    for n, F in enumerate(FEAF): e(f"ds_read_b64 {vr(VO(F,0),2)}, v9 offset:{2048+1024*n}")
    for b in (1, 2):
        for h in range(2): scale_pack(k, acc(b, h), lambda r: 58+b, QO(b,h))
        for r in range(2):
            e(f"v_mov_b32 v{40+2*r}, v{KO(b,0)+2+r}"); e(f"v_mov_b32 v{41+2*r}, v{KO(b,0)+2+r}")
        for r in range(2): e(f"v_permlane32_swap_b32 v{40+2*r}, v{41+2*r}")
        e("s_nop 0")
        for h in range(2):
            for r in range(2): e(f"v_and_b32 v{QO(b,h)+2+r}, v{40+2*r}, v{38+h}")
    e("s_waitcnt lgkmcnt(0)")
    units = [(b, h) for b in (1, 2) for h in range(2)]
    SU = lambda i: 20 + 8*i if i < 2 else 76 + 8*(i-2)
    TU = lambda i: ACC + 32 + 4*i
    PU = lambda i: ACC + 48 + 4*i
    OU = lambda i: ACC + 64 + 8*i
    for i, (b, h) in enumerate(units):
        e(f"v_mfma_f32_16x16x32_bf16 {vr(SU(i),4)}, {vr(KO(b-1,h),4)}, {vr(QO(b,h),4)}, {vr(MP1 if b == 1 else MP,4)}")
        e(f"v_mfma_f32_16x16x32_bf16 {vr(SU(i)+4,4)}, {vr(KO(b,h),4)}, {vr(QO(b,h),4)}, {vr(MC,4)}")
    def allred(op):
        for sw in ("v_permlane16_swap_b32", "v_permlane32_swap_b32"):
            for i in range(4): e(f"v_mov_b32 v{TU(i)+1}, v{TU(i)}")
            for i in range(4): e(f"{sw} v{TU(i)}, v{TU(i)+1}")
            for i in range(4): e(f"{op} v{TU(i)}, v{TU(i)}, v{TU(i)+1}")
    for i in range(4):
        s = SU(i)
        e(f"v_max3_f32 v{TU(i)}, v{s}, v{s+1}, v{s+2}"); e(f"v_max3_f32 v{TU(i)}, v{s+3}, v{s+4}, v{TU(i)}")
        e(f"v_max3_f32 v{TU(i)}, v{s+5}, v{s+6}, v{TU(i)}"); e(f"v_max_f32 v{TU(i)}, v{s+7}, v{TU(i)}")
    allred("v_max_f32")
    for i in range(4):
        for r in range(8): e(f"v_sub_f32 v{SU(i)+r}, v{SU(i)+r}, v{TU(i)}")
    for i in range(4):
        for r in range(8): e(f"v_exp_f32 v{SU(i)+r}, v{SU(i)+r}")
    for i in range(4):
        s = SU(i)
        e(f"v_add_f32 v{TU(i)}, v{s}, v{s+1}")
        for r in range(2, 8): e(f"v_add_f32 v{TU(i)}, v{TU(i)}, v{s+r}")
    allred("v_add_f32")
    for i in range(4): e(f"v_rcp_f32 v{TU(i)}, v{TU(i)}")
    for i in range(4):
        for r in range(8): e(f"v_mul_f32 v{SU(i)+r}, v{SU(i)+r}, v{TU(i)}")
        for r in range(4): e(f"v_cvt_pk_bf16_f32 v{PU(i)+r}, v{SU(i)+2*r}, v{SU(i)+2*r+1}")
    for i, (b, h) in enumerate(units):
        e(f"v_mfma_f32_16x16x32_bf16 {vr(OU(i),4)}, {vr(VO(4+h,b-1),4)}, {vr(PU(i),4)}, 0")
        e(f"v_mfma_f32_16x16x32_bf16 {vr(OU(i)+4,4)}, {vr(VO(7,b-1),4)}, {vr(PU(i),4)}, 0")
    e("v_cmp_eq_u32 vcc, 0, v6")
    for bi in range(2):
        o0, o1 = OU(2*bi), OU(2*bi+1); d = 40 + 8*bi
        e(f"v_cvt_pk_bf16_f32 v{d}, v{o0}, v{o0+1}"); e(f"v_cvt_pk_bf16_f32 v{d+1}, v{o0+2}, v{o0+3}")
        e(f"v_cvt_pk_bf16_f32 v{d+2}, v{o1}, v{o1+1}"); e(f"v_cvt_pk_bf16_f32 v{d+3}, v{o1+2}, v{o1+3}")
        e(f"buffer_store_dwordx4 {vr(d,4)}, v3, s[12:15], s{51+bi} offen {SC}")
        for r in range(4): e(f"v_cndmask_b32 v{o0+4+r}, v{o1+4+r}, v{o0+4+r}, vcc")
        e(f"v_cvt_pk_bf16_f32 v{d+4}, v{o0+4}, v{o0+5}"); e(f"v_cvt_pk_bf16_f32 v{d+5}, v{o0+6}, v{o0+7}")
    e("s_mov_b32 exec_hi, 0")
    for bi in range(2): e(f"buffer_store_dwordx2 {vr(44+8*bi,2)}, v3, s[12:15], s{53+bi} offen {SC}")

def qkvb_l(k, L, xin, stin, w):
    e = k.e; nm = k.name
    qkvb_pre(k)
    e("s_max_u32 s22, s22, 1"); e("s_sub_u32 s22, s22, 1")
    e("s_mul_i32 s24, s22, 20480"); e(f"s_add_u32 s24, s24, {xin}")
    e("s_lshl_b32 s27, s22, 10"); e(f"s_add_u32 s27, s27, {stin}")
    e("s_min_u32 s40, s39, 2")
    e("s_cmp_lt_u32 s39, 2"); e("s_cselect_b32 s41, 2, 4"); e("s_cselect_b32 s42, 4, 5")
    e("s_add_u32 s41, s41, s40"); e("s_add_u32 s42, s42, s40")
    e("s_lshl_b32 s43, s41, 8"); e("s_add_u32 s43, s43, s30"); e("s_lshl_b32 s44, s42, 8"); e("s_add_u32 s44, s44, s30")
    e("s_lshl_b32 s41, s41, 10"); e("s_lshl_b32 s42, s42, 10")
    for i in range(3):
        e(f"v_add_u32 v{40+i}, s41, v3"); e(f"v_add_u32 v{43+i}, s42, v3")
        if i: e(f"v_add_u32 v{40+i}, {65536*i}, v{40+i}"); e(f"v_add_u32 v{43+i}, {65536*i}, v{43+i}")
    atouch_pre(k, xin)
    e("s_barrier")
    if ENV('ATOUCH', '1'): k.vmop("buffer_load_dword v20, v21, s[12:15], s51 offen")
    w.one(39)
    e("s_cmp_eq_u32 s39, 3"); e(f"s_cbranch_scc1 {nm}_h3")
    for q in range(2): k.vmop(f"buffer_load_dwordx2 {vr(24+2*q,2)}, v11, s[12:15], s27 offen offset:{128*q} {SC}", "st")
    k.vmop("buffer_load_dwordx4 v[64:67], v14, s[12:15], s43 offen", "st")
    k.vmop("buffer_load_dwordx4 v[68:71], v14, s[12:15], s44 offen", "st")
    for ks in range(20):
        if ks % 4 == 0 and ks: e("s_add_u32 s24, s24, 4096")
        k.vmop(f"buffer_load_dwordx4 {vr(128+4*ks,4)}, v3, s[12:15], s24 offen offset:{(ks%4)*1024} {SC}", f"h{ks}")
        if ks == 3: k.waitvm("w39"); e("s_barrier")
    k.waitvm("st")
    stats16(k, 24, 48, 52, 4); usum(k, 64, 20); usum(k, 68, 22)
    for r in range(4):
        e(f"v_add_u32 v18, {4*r}, v10")
        k.dsop(f"ds_bpermute_b32 v{72+r}, v18, v48", "r")
    e("v_mfma_f32_16x16x16_bf16 v[80:83], v[20:21], v[52:53], 0")
    e("v_mfma_f32_16x16x16_bf16 v[84:87], v[52:53], v[22:23], 0")
    def rd(ks):
        off = ks*8192; hi = off >> 16; fb = 96 + 8*(ks%3)
        k.dsop(f"ds_read_b128 {vr(fb,4)}, v{40+hi} offset:{off & 0xffff}", f"r{ks}")
        k.dsop(f"ds_read_b128 {vr(fb+4,4)}, v{43+hi} offset:{off & 0xffff}", f"r{ks}")
    rd(0); rd(1)
    for ks in range(20):
        if ks + 2 < 20: rd(ks+2)
        k.waitvm(f"h{ks}"); k.waitlg(f"r{ks}")
        fb = 96 + 8*(ks%3)
        e(f"v_mfma_f32_16x16x32_bf16 v[80:83], {vr(fb,4)}, {vr(128+4*ks,4)}, v[80:83]")
        e(f"v_mfma_f32_16x16x32_bf16 v[84:87], {vr(128+4*ks,4)}, {vr(fb+4,4)}, v[84:87]")
    e("s_lshl_b32 s41, s39, 10"); e("s_cmp_lt_u32 s39, 2"); e("s_cselect_b32 s41, s41, 8"); e("s_cselect_b32 s42, s41, 1032")
    e("s_lshl_b32 s40, s40, 10")
    e(f"v_add_u32 v9, {EX}, v3"); e("v_add_u32 v12, s41, v9"); e("v_add_u32 v13, s42, v9"); e("v_add_u32 v15, s40, v9")
    scale_pack(k, 80, lambda r: 48, 88); scale_pack(k, 84, lambda r: 72+r, 90)
    e("s_barrier")
    e("ds_write_b64 v12, v[88:89]"); e("ds_write_b64 v13, v[88:89]"); e("ds_write_b64 v15, v[90:91] offset:2048")
    e("s_waitcnt lgkmcnt(0)")
    e(f"s_branch {nm}_h4")
    k.label(f"{nm}_h3")
    e("s_waitcnt vmcnt(0)"); e("s_barrier"); e("s_barrier")
    k.label(f"{nm}_h4")
    e("s_barrier")
    k.vm = []; k.lg = []

def one(k, target):
    k.e(f"v_mov_b32 v{PV_+1}, 0"); k.e(f"v_mov_b32 v{PV_+2}, {target}"); k.e("s_mov_b64 s[56:57], 1")

def qkva_c(k, L, xin, stin, img, cnt, wbar, st0):
    e = k.e; nm = k.name
    DA = 5
    ACC, BF, AR, RS = 64, 128, 160, 200
    e("v_and_b32 v10, 31, v1"); e("v_lshrrev_b32 v4, 5, v1"); e("v_and_b32 v5, 15, v1")
    e("s_lshl_b32 s19, s16, 2"); e("s_add_u32 s19, s19, s18")
    e("v_lshlrev_b32 v12, 4, v10")
    e("s_lshl_b32 s31, s17, 11"); e(f"s_add_u32 s31, s31, {U_A}")
    for jf in range(4): k.vmop(f"buffer_load_dwordx4 {vr(24+4*jf,4)}, v12, s[12:15], s31 offen offset:{512*jf}", "u")
    e("v_bfe_u32 v7, v1, 4, 1"); e("v_mul_u32_u24 v8, 20480, v7"); e("v_lshl_add_u32 v8, v4, 8, v8"); e("v_lshl_add_u32 v8, v5, 4, v8")
    e("v_lshlrev_b32 v11, 10, v7"); e("v_lshl_add_u32 v11, v4, 9, v11"); e("v_lshl_add_u32 v11, v5, 3, v11")
    e("s_lshl_b32 s30, s19, 11"); e(f"s_add_u32 s30, s30, {stin}")
    e("s_mul_i32 s24, s19, 40960"); e(f"s_add_u32 s24, s24, {xin}")
    e("v_add_u32 v41, 65536, v3"); e("v_add_u32 v42, 131072, v3")
    e("v_subrev_u32 v58, 1, v4"); e("v_not_b32 v59, v58")
    sc = SC if cnt is not None else ""
    if cnt is not None:
        def c4(): one(k, 16); e("s_lshl_b32 s48, s16, 8"); e(f"s_add_u32 s48, s48, {cnt}")
        wait_go(k, "p5", 1, c4)
    k.stamp(st0)
    def ldA(ks):
        if ks % 4 == 0 and ks > 0: e("s_add_u32 s24, s24, 4096")
        for u in range(2):
            k.vmop(f"buffer_load_dwordx4 {vr(AR+8*(ks%DA)+4*u,4)}, v8, s[12:15], s24 offen offset:{(ks%4)*1024+512*u} {sc}", f"a{ks}")
    ldA(0)
    for q in range(4): k.vmop(f"buffer_load_dwordx2 {vr(16+2*q,2)}, v11, s[12:15], s30 offen offset:{128*q} {sc}", "st")
    for ks in range(1, DA-1): ldA(ks)
    def prolog(vmode):
        k.waitvm("st")
        e("v_add_f32 v16, v16, v18"); e("v_add_f32 v17, v17, v19"); e("v_add_f32 v20, v20, v22"); e("v_add_f32 v21, v21, v23")
        e("v_add_f32 v16, v16, v20"); e("v_add_f32 v17, v17, v21")
        k.allred32("v_add_f32", 16, 18); k.allred32("v_add_f32", 17, 18)
        stats_finish(k, 16, 17, 46, 47, 18)
        split3(k, 46, 48, 18, 'm', 58)
        for jf in range(4): usum(k, 24+4*jf, 50+2*jf, 18)
        if vmode:
            e("v_lshlrev_b32 v16, 4, v4")
            for r in range(16):
                e(f"v_add_u32 v17, {(8*(r//4) + r%4)*4}, v16")
                k.dsop(f"ds_bpermute_b32 v{RS+r}, v17, v47", "rs")
            e("s_sub_u32 s35, s17, 10"); e("s_lshl_b32 s35, s35, 7")
            e("s_mul_i32 s36, s19, 2560"); e(f"s_add_u32 s33, s36, {KVIMG[img]+1280}")
            e("v_mul_u32_u24 v20, 320, v4")
            for jf in range(4):
                e(f"v_add_u32 v16, s35, v10")
                if jf: e(f"v_add_u32 v16, {32*jf}, v16")
                e("v_mul_u32_u24 v17, 52429, v16"); e("v_lshrrev_b32 v17, 20, v17")
                e("v_mul_u32_u24 v18, 20, v17"); e("v_sub_u32 v18, v16, v18")
                e("v_mul_u32_u24 v17, 163840, v17"); e("v_lshl_add_u32 v17, v18, 4, v17")
                e(f"v_add_u32 v{24+jf}, v17, v20")
        else:
            e("s_cmp_ge_u32 s17, 5")
            e(f"s_cselect_b32 s33, {QI}, 0"); e(f"s_cselect_b32 s34, 1.0, {fbits(CSCALE)}"); e("s_cselect_b32 s35, 5, 0"); e("s_cselect_b32 s37, 1, 0")
            e("v_mul_f32 v47, s34, v47")
            e(f"s_add_u32 s33, s33, {QIMG[img]}")
            e("s_sub_u32 s35, s17, s35")
            e("s_mul_i32 s36, s19, 1280"); e("s_lshl_b32 s36, s36, s37"); e("s_add_u32 s33, s33, s36")
            e("s_lshl_b32 s34, 81920, s37")
            e("v_lshlrev_b32 v16, 4, v10"); e("v_lshlrev_b32 v17, 3, v10")
            e("v_lshl_add_u32 v18, v4, 9, v16")
            e("s_sub_u32 s36, s34, 512"); e("v_and_b32 v19, s36, v59"); e("v_add_u32 v19, v19, v16")
            e("s_mov_b32 s52, -1"); e("s_mov_b32 s53, 0"); e("s_mov_b32 s54, 0"); e("s_mov_b32 s55, -1")
    e("s_cmp_ge_u32 s17, 10"); e(f"s_cbranch_scc1 {nm}_qv")
    vm_save = list(k.vm)
    def mainloop(vmode):
        acc = lambda jf: vr(ACC+16*jf, 16)
        fl = k.capture(lambda: prolog(vmode))
        def rd(ks, f):
            off = ks*8192 + 1024*f; hi = off >> 16
            k.dsop(f"ds_read_b128 {vr(BF+4*f,4)}, v{(3,41,42)[hi]} offset:{off & 0xffff}", f"b{ks}_{f}")
        e("s_barrier")
        for f in range(8): rd(0, f)
        for ks in range(20):
            k.waitvm(f"a{ks}")
            if ks == 0: k.stamp(st0+1)
            if ks + 1 in wbar: e("s_barrier")
            for f in range(8):
                u, jf = f//4, f%4
                if f % 2 == 0: k.waitlg(f"b{ks}_{f+1}")
                a = vr(AR+8*(ks%DA)+4*u, 4); b = vr(BF+4*f, 4); c = acc(jf) if (ks or u) else "0"
                if vmode: e(f"v_mfma_f32_32x32x16_bf16 {acc(jf)}, {a}, {b}, {c}")
                else:     e(f"v_mfma_f32_32x32x16_bf16 {acc(jf)}, {b}, {a}, {c}")
                if ks + 1 < 20: rd(ks+1, f)
                if f == 0 and ks + DA - 1 < 20: ldA(ks + DA - 1)
                if ks >= 1: k.fill(fl, 2)
            if ks == 15:
                k.fill(fl, 1000)
                for jf in range(4):
                    if vmode: e(f"v_mfma_f32_32x32x8_bf16 {acc(jf)}, v[48:49], {vr(50+2*jf,2)}, {acc(jf)}")
                    else:     e(f"v_mfma_f32_32x32x8_bf16 {acc(jf)}, {vr(50+2*jf,2)}, v[48:49], {acc(jf)}")
        k.stamp(st0+2)
    mainloop(False)
    for v in range(1, 5):
        e(f"s_cmp_eq_u32 s35, {v}"); e(f"s_cbranch_scc1 {nm}_e{v}")
    QSC = os.environ.get("QSC", "sc1")
    for v in range(5):
        if v: k.label(f"{nm}_e{v}")
        e("s_nop 7")
        for jf in range(4):
            for r in range(16): e(f"v_mul_f32 v{ACC+16*jf+r}, v{ACC+16*jf+r}, v47")
            for r in range(8): e(f"v_cvt_pk_bf16_f32 v{BF+8*jf+r}, v{ACC+16*jf+2*r}, v{ACC+16*jf+2*r+1}")
            for a2 in range(2):
                x = BF+8*jf+4*a2
                e(f"v_permlane32_swap_b32 v{x}, v{x+2}"); e(f"v_permlane32_swap_b32 v{x+1}, v{x+3}")
            for a2 in range(2):
                x = BF+8*jf+4*a2
                G = [32*v+8*jf+4*a2, 32*v+8*jf+4*a2+2]
                def main(g):
                    h = g // 5; r = g % 5
                    return h, (r // 2 if h % 2 == 0 else (r - 1) // 2)
                st = [g % 10 == 4 for g in G]
                def hoff(dst, h, c):
                    if h: e(f"s_mul_i32 s{dst}, s34, {h}"); e(f"s_add_u32 s{dst}, s{dst}, s33")
                    else: e(f"s_mov_b32 s{dst}, s33")
                    if c: e(f"s_add_u32 s{dst}, s{dst}, {c}")
                if not any(st):
                    (h0, p0), (h1, p1) = main(G[0]), main(G[1])
                    hoff(36, h0, 512*p0)
                    if h0 == h1: e(f"buffer_store_dwordx4 {vr(x,4)}, v18, s[12:15], s36 offen {QSC}")
                    else:        e(f"buffer_store_dwordx4 {vr(x,4)}, v19, s[12:15], s36 offen {QSC}")
                    assert (h0 == h1 and (p0, p1) == (0, 1)) or (h1 == h0 + 1 and (p0, p1) == (1, 0))
                else:
                    m = st.index(False); q = 1 - m
                    h, p = main(G[m]); hoff(36, h, 512*p); hoff(37, G[q] // 5, 1024); e("s_add_u32 s38, s37, s34")
                    e(f"s_mov_b64 exec, s[{52+2*m}:{53+2*m}]")
                    e(f"buffer_store_dwordx4 {vr(x,4)}, v16, s[12:15], s36 offen {QSC}")
                    e(f"s_mov_b64 exec, s[{52+2*q}:{53+2*q}]")
                    e(f"buffer_store_dwordx2 {vr(x,2)}, v17, s[12:15], s37 offen {QSC}")
                    e(f"buffer_store_dwordx2 {vr(x+2,2)}, v17, s[12:15], s38 offen {QSC}")
                    e("s_mov_b64 exec, -1")
        e(f"s_branch {nm}_fin5")
    k.label(f"{nm}_qv"); k.vm = vm_save; k.lg = []
    mainloop(True)
    VSC = os.environ.get("VSC", "sc1")
    for jf in range(4):
        for r in range(16): e(f"v_mul_f32 v{ACC+16*jf+r}, v{ACC+16*jf+r}, v{RS+r}")
        for r in range(8): e(f"v_cvt_pk_bf16_f32 v{BF+8*jf+r}, v{ACC+16*jf+2*r}, v{ACC+16*jf+2*r+1}")
        for u in range(2):
            e(f"buffer_store_dwordx4 {vr(BF+8*jf+4*u,4)}, v{24+jf}, s[12:15], s33 offen offset:{640*u} {VSC}")
    k.label(f"{nm}_fin5")

def k_qkva():
    k = KB("qkva_kernel"); e = k.e
    common(k); ids_mt(k)
    e("s_cmp_ge_u32 s17, 15"); e("s_cbranch_scc1 qkva_kernel_end")
    e("v_lshlrev_b32 v3, 4, v1")
    e("s_mul_i32 s50, s17, 163840"); e("s_add_u32 s50, s50, s45"); e(f"s_add_u32 s50, s50, {WA_I}")
    e("s_waitcnt lgkmcnt(0)")
    k.stamp(2); k.srd(12, 6, WS_END)
    e("s_cmp_ge_u32 s18, 4"); e("s_cbranch_scc1 qkva_kernel_ld")
    WB = [1, 2, 4, 6, 8, 10, 12, 14, 16, 18]
    qkva_c(k, 0, XT[0], ST[0], 0, None, WB, 3)
    k.stamp(6); k.dump(8)
    e("s_endpgm")
    k.label("qkva_kernel_ld"); k.vm = []; k.lg = []
    w = Wdma(k, 40); LA = ENV('QLA', '5')
    bars = [0] + WB
    for i, s_ in enumerate(bars):
        last = (bars[i+1] if i + 1 < len(bars) else 20) - 1
        w.go(2*(last+1) + (LA if i else 2))
        k.waitvm(f"w{2*last+1}"); e("s_barrier")
    k.label("qkva_kernel_end"); e("s_endpgm")
    return k.text(216, 216)

def k_chain(name, L):
    final = L == 1
    k = KB(name); e = k.e
    common(k)
    ph_attn(k, L)
    k.stamp(5)
    xa, xb, xc = XT[2*L], XT[2*L+1], XT[2]
    def a1():
        e("s_lshl_b32 s48, s17, 3"); e("s_and_b32 s49, s16, 1"); e("s_add_u32 s48, s48, s49"); e("s_lshl_b32 s48, s48, 8"); e(f"s_add_u32 s48, s48, {C1(L)}")
        e(f"v_lshlrev_b32 v{PV_+1}, 9, v1"); e("s_mov_b64 s[56:57], 15")
    e("s_cmp_ge_u32 s18, 4"); e(f"s_cbranch_scc1 {name}_ld")
    signal(k, "s1", 0, 8, a1)
    def c1():
        e("s_lshl_b32 s48, s16, 9"); e(f"s_add_u32 s48, s48, {C1(L)}")
        e(f"v_lshlrev_b32 v{PV_+1}, 8, v1"); e(f"v_mov_b32 v{PV_+2}, 16"); e("s_mov_b64 s[56:57], 3")
    proj_c(k, "p2", OT, xa, xb, ST[2*L+1], False, c1, 0, 6)
    def a2():
        e("s_lshr_b32 s48, s16, 1"); e("s_lshl_b32 s48, s48, 9"); e(f"s_add_u32 s48, s48, {C2(L)}")
        e(f"v_mul_u32_u24 v{PV_+1}, 768, v1"); e("s_bitcmp1_b32 s16, 0"); e("s_cselect_b64 s[56:57], 3, 1")
    signal(k, "s2", 1, 4, a2)
    qkvb_c(k, L, xb, ST[2*L+1], 9)
    def a3(): one(k, 0); e("s_lshl_b32 s48, s16, 8"); e(f"s_add_u32 s48, s48, {C3(L)}")
    signal(k, "s3", 0, 4, a3)
    def c3(): one(k, 16); e("s_lshr_b32 s48, s16, 1"); e("s_lshl_b32 s48, s48, 8"); e(f"s_add_u32 s48, s48, {C3(L)}")
    if final:
        proj_c(k, "p4", OBT, xb, None, None, True, c3, 0, 12)
    else:
        S_ = k.stamp
        proj_c(k, "p4", OBT, xb, xc, ST[2], False, c3, 0, 12)
        def a4(): one(k, 0); e("s_lshr_b32 s48, s16, 1"); e("s_lshl_b32 s48, s48, 8"); e(f"s_add_u32 s48, s48, {C4(L)}")
        signal(k, "s4", 1, 4, a4)
        ids_mt(k)
        e("s_cmp_ge_u32 s17, 15"); e(f"s_cbranch_scc1 {name}_dmp")
        if os.environ.get("FOC") == "p5": st5 = 2
        else: k.stamp = lambda i: None; st5 = 0
        qkva_c(k, L, xc, ST[2], 1, C4(L), [7], st5)
        k.stamp = S_
    k.label(f"{name}_dmp")
    k.dump(15)
    e("s_endpgm")
    k.label(f"{name}_ld"); k.vm = []; k.lg = []
    w = proj_l(k, WOA_I, WB_I, OT, a1, EARLY)
    qkvb_l(k, L, xb, ST[2*L+1], w)
    w = proj_l(k, WOB_I, None if final else WA_I, OBT)
    if not final:
        ids_mt(k)
        e("s_cmp_ge_u32 s17, 15"); e(f"s_cbranch_scc1 {name}_end")
        atouch_pre(k, xc)
        e("s_barrier")
        if ENV('ATOUCH', '1'): e("buffer_load_dword v20, v21, s[12:15], s51 offen")
        w.one(39); e("s_waitcnt vmcnt(0)"); e("s_barrier")
    k.label(f"{name}_end"); e("s_endpgm")
    return k.text(244, 244)

def build():
    L = [("prep_kernel", 316, 256, 40960), ("qkva_kernel", 256, 512, 163840), ("chaina_kernel", 256, 512, 163840), ("chainb_kernel", 256, 512, 163840)]
    hdr = open("cdna_kernels/" + NAME + ".s.ref").read().split("; Override launch")[0]
    out = hdr
    for n, g, b, lds in L: out += f"; @launch kernel={n} grid=({g},1,1) block=({b},1,1) lds={lds}\n"
    out += '.amdgcn_target "amdgcn-amd-amdhsa--gfx950"\n'
    out += k_prep() + k_qkva() + k_chain("chaina_kernel", 0) + k_chain("chainb_kernel", 1)
    return out

if __name__ == "__main__":
    dst = sys.argv[1] if len(sys.argv) > 1 else "cdna_kernels/" + NAME + ".s"
    open(dst, "w").write(build())
    print("wrote", dst)
```

```python
import sys, math
from lint import lint, fix

NAME = "interleave_layers__softmax_full_mha__sliding_local_dilated__prompt"
S, D, H, DH = 2048, 640, 32, 20
XS = S*D*2
IMG = H*64*2560
QI = H*64*1280
TOUCH0 = 0
OT = 0; OBT = XS
XT = [None, 2*XS, 3*XS, 2*XS]
ST = [None, 4*XS, 4*XS + S*64, 4*XS]
QIMG = [None, 4*XS + 2*S*64]; KVIMG = [None, QIMG[1] + QI]
TOUCH1 = QIMG[1]
QIMG[0] = KVIMG[1] + IMG; KVIMG[0] = QIMG[0] + QI
XT[0] = KVIMG[0] + IMG; ST[0] = XT[0] + XS
U_A  = ST[0] + S*64
U_B  = U_A + 32768
CNT  = U_B + 32768
WA_I = CNT + 131072
WOA_I = WA_I + 15*163840
WB_I = WOA_I + 819200
WOB_I = WB_I + 16*163840
STAMPS = WOB_I + 819200
WS_END = STAMPS + 16*262144
def C1(L): return CNT + L*65536
def C2(L): return C1(L) + 64*256
def C3(L): return C2(L) + 34*256
def C4(L): return C3(L) + 16*256
import os
STAMP = int(os.environ.get("STAMP", "0"))
ATTN_WAVES = 8
AV = os.environ.get("AV", "")
CSCALE = (DH ** -0.5) * math.log2(math.e)
import struct
def fbits(x): return "0x%08x" % struct.unpack("<I", struct.pack("<f", x))[0]

FM = [(0,16),(32,48),(80,96),(112,128),(64,144)]
def FX(ks, t):
    return 160*(ks//5) + FM[ks%5][t]

class KB:
    def __init__(s, name):
        s.name = name; s.L = []; s.vm = []; s.lg = []; s.cap = None
    def e(s, line):
        if s.cap is not None: s.cap.append(('e', line, None))
        else: s.L.append("    " + line)
    def capture(s, fn):
        s.cap = []; fn(); c = s.cap; s.cap = None
        return [x for x in c if not (x[0] == 'e' and x[1].startswith('s_nop'))]
    def fill(s, lst, n=1):
        for _ in range(n):
            if not lst: return
            kind, a, b = lst.pop(0)
            if kind == 'e':
                s.e(a)
                if a.startswith('s_cmp'):
                    while lst and lst[0][0] == 'e' and lst[0][1].startswith('s_cselect'): s.e(lst.pop(0)[1])
            elif kind == 'ds': s.dsop(a, b)
            elif kind == 'wvm': s.waitvm(a)
            elif kind == 'wlg': s.waitlg(a)
    def c(s, txt): s.L.append("    ; " + txt)
    def label(s, l): s.L.append(l + ":")
    def vmop(s, line, tag=None): s.e(line); s.vm.append(tag); assert len(s.vm) <= 63, (s.name, len(s.vm))
    def dsop(s, line, tag=None):
        if s.cap is not None: s.cap.append(('ds', line, tag)); return
        s.e(line); s.lg.append(tag)
    def _n(s, lst, tag):
        idx = max(i for i, t in enumerate(lst) if t == tag)
        return idx
    def waitvm(s, tag):
        if s.cap is not None: s.cap.append(('wvm', tag, None)); return
        if tag not in s.vm: return
        i = s._n(s.vm, tag); n = len(s.vm) - 1 - i
        s.e(f"s_waitcnt vmcnt({n})"); s.vm = s.vm[i+1:]
    def waitlg(s, tag):
        if s.cap is not None: s.cap.append(('wlg', tag, None)); return
        if tag not in s.lg: return
        i = s._n(s.lg, tag); n = len(s.lg) - 1 - i
        if n > 15: n = 15; i = len(s.lg) - 1 - n
        s.e(f"s_waitcnt lgkmcnt({n})"); s.lg = s.lg[i+1:]
    def waitall(s):
        s.e("s_waitcnt vmcnt(0) lgkmcnt(0)"); s.vm = []; s.lg = []
    def srd(s, r, base, nbytes):
        s.e(f"s_mov_b32 s{r}, s{base}")
        s.e(f"s_and_b32 s{r+1}, s{base+1}, 0xffff")
        s.e(f"s_mov_b32 s{r+2}, {nbytes}")
        s.e(f"s_mov_b32 s{r+3}, 0x20000")
    def stamp(s, i):
        if not STAMP: return
        op = "s_memrealtime" if os.environ.get("RT") else "s_memtime"
        s.e(f"{op} s[{64+2*i}:{65+2*i}]" if i < 10 else f"{op} s[{72+2*i}:{73+2*i}]")
    def rstamp(s, i):
        if not STAMP: return
        s.e(f"s_memrealtime s[{64+2*i}:{65+2*i}]")
    def dump(s, n=8, slot=None, wave="s18"):
        if not STAMP: return
        e = s.e
        if os.environ.get("DBG"):
            idx, base, slots = {"prep": (0, 0, [1]), "qkva": (1, 2, [1]), "chai": (2, 4, [1, 3, 5, 8, 11]) if s.name[5] == "a" else (3, 10, [1, 3, 5, 8, 11])}[s.name[:4]]
            s.dbgn = getattr(s, "dbgn", 0) + 1
            lab = f"{s.name}_dbg{s.dbgn}"
            e("s_cmp_eq_u32 s2, 0"); e(f"s_cbranch_scc0 {lab}"); e(f"s_cmp_eq_u32 {wave}, 0"); e(f"s_cbranch_scc0 {lab}")
            e("s_load_dwordx2 s[84:85], s[0:1], 56"); e("s_waitcnt vmcnt(0)"); e("s_memrealtime s[86:87]"); e("s_waitcnt lgkmcnt(0)")
            e("s_mov_b64 exec, 1"); e("v_mov_b32 v0, 0"); e(f"s_mov_b32 s83, {STAMPS}")
            for q, i in enumerate(slots):
                e(f"v_mov_b32 v1, s{64+2*i if i < 10 else 72+2*i}"); e(f"buffer_store_dword v1, v0, s[12:15], s83 offen offset:{4*(base+q)} sc1")
            e("v_mov_b32 v1, s86"); e(f"buffer_store_dword v1, v0, s[12:15], s83 offen offset:{4*(base+len(slots))} sc1")
            if idx == 3:
                e("s_waitcnt vmcnt(0)"); e("s_mov_b64 exec, 0xffff"); e("v_mbcnt_lo_u32_b32 v0, -1, 0"); e("v_lshlrev_b32 v0, 2, v0")
                e("buffer_load_dword v1, v0, s[12:15], s83 offen sc1"); s.srd(88, 84, 256); e("s_waitcnt vmcnt(0)")
                e("buffer_store_dword v1, v0, s[88:91], 0 offen")
                e(f"s_sub_u32 s84, s84, {512*idx}"); e("s_subb_u32 s85, s85, 0"); s.srd(88, 84, 256)
                e("buffer_store_dword v1, v0, s[88:91], 0 offen")
            s.label(lab)
            return
        e("s_load_dwordx2 s[84:85], s[0:1], 56"); e("s_waitcnt vmcnt(0)"); e("s_memrealtime s[86:87]"); e("s_waitcnt lgkmcnt(0)")
        e("s_mov_b64 exec, 1")
        e("s_bfe_u32 s84, s84, 0x50009"); e("s_lshl_b32 s84, s84, 18")
        e("s_lshl_b32 s60, s2, 3"); e(f"s_add_u32 s60, s60, {wave}"); e("s_lshl_b32 s60, s60, 6"); e(f"s_add_u32 s60, s60, {STAMPS}"); e("s_add_u32 s60, s60, s84")
        e("v_mov_b32 v0, 0")
        for i in range(n):
            e(f"v_mov_b32 v1, s{64+2*i if i < 10 else 72+2*i}")
            e(f"buffer_store_dword v1, v0, s[12:15], s60 offen offset:{4*i}")
        e("v_mov_b32 v1, s86"); e("buffer_store_dword v1, v0, s[12:15], s60 offen offset:60")
    def rtdump(s):
        if not STAMP: return
        s.e("v_lshrrev_b32 v1, 6, v0"); s.e("s_nop 0"); s.e("v_readfirstlane_b32 s61, v1"); s.dump(2, wave="s61")
    def text(s, vgpr, accum, sgpr=102):
        s.L, added = fix(s.L)
        if os.environ.get("V"): print(s.name, "auto nops:", added, "lines:", len(s.L))
        out = [".text", f".globl {s.name}", ".p2align 8", f".type {s.name},@function", f"{s.name}:"]
        out += s.L
        out += ['.section .rodata,"a"', ".p2align 6", f".amdhsa_kernel {s.name}",
                f"  .amdhsa_next_free_vgpr {vgpr}", f"  .amdhsa_next_free_sgpr {sgpr}", f"  .amdhsa_accum_offset {accum}",
                "  .amdhsa_group_segment_fixed_size 0", "  .amdhsa_kernarg_size 72", "  .amdhsa_user_sgpr_count 2",
                "  .amdhsa_user_sgpr_kernarg_segment_ptr 1", "  .amdhsa_system_sgpr_workgroup_id_x 1", ".end_amdhsa_kernel"]
        nb = lint(s.L, s.name)
        assert nb == 0, f"{nb} hazards in {s.name}"
        return "\n".join(out) + "\n"
    def allred32(s, op, v, t):
        s.e(f"v_mov_b32 v{t}, v{v}"); s.e("s_nop 1")
        s.e(f"v_permlane32_swap_b32 v{v}, v{t}"); s.e("s_nop 1")
        s.e(f"{op} v{v}, v{v}, v{t}")
    def allred16(s, op, v, t):
        s.e(f"v_mov_b32 v{t}, v{v}"); s.e("s_nop 1")
        s.e(f"v_permlane16_swap_b32 v{v}, v{t}"); s.e("s_nop 1")
        s.e(f"{op} v{v}, v{v}, v{t}")

def vr(a, n): return f"v[{a}:{a+n-1}]" if n > 1 else f"v{a}"
def ar(a, n): return f"a[{a}:{a+n-1}]" if n > 1 else f"a{a}"

def k_prep():
    PSC = os.environ.get("PSC", "sc1")
    k = KB("prep_kernel"); e = k.e
    NX, NA, NB, NO = 128, 60, 64, 64
    e(f"s_cmp_ge_u32 s2, {NX+NA+NB+NO}"); e("s_cbranch_scc1 prep_end0"); k.rstamp(1)
    e("s_load_dwordx2 s[4:5], s[0:1], 0"); e("s_load_dwordx2 s[6:7], s[0:1], 64")
    e("s_load_dwordx4 s[20:23], s[0:1], 8"); e("s_load_dwordx4 s[24:27], s[0:1], 32")
    e("v_and_b32 v1, 63, v0"); e("v_lshrrev_b32 v2, 6, v0")
    e("s_waitcnt lgkmcnt(0)")
    k.srd(12, 6, WS_END)
    e(f"s_cmp_ge_u32 s2, {NX+NA+NB}"); e("s_cbranch_scc1 prep_o")
    e(f"s_cmp_ge_u32 s2, {NX+NA}"); e("s_cbranch_scc1 prep_b")
    e(f"s_cmp_ge_u32 s2, {NX}"); e("s_cbranch_scc1 prep_u")
    k.srd(8, 4, S*D*2)
    e("s_and_b32 s16, s2, 7"); e("s_lshl_b32 s16, s16, 4"); e("s_lshr_b32 s17, s2, 3"); e("s_add_u32 s3, s16, s17")
    e("v_and_b32 v3, 15, v1"); e("v_lshrrev_b32 v4, 4, v1")
    e("s_lshl_b32 s16, s3, 4"); e("v_add_u32 v5, s16, v3")
    e("v_mul_u32_u24 v6, 1280, v5")
    e("v_mul_u32_u24 v7, 320, v2"); e("v_add_u32 v6, v6, v7")
    e("v_lshl_add_u32 v6, v4, 3, v6")
    for i in range(5):
        for t in range(2):
            k.vmop(f"buffer_load_dwordx2 {vr(12+4*i+2*t,2)}, v6, s[8:11], 0 offen offset:{2*FM[i][t]} nt", "x")
    e("s_mul_i32 s17, s3, 20480"); e(f"s_add_u32 s17, s17, {XT[0]}"); e("s_add_u32 s18, s17, 4096")
    e("v_mul_u32_u24 v7, 5120, v2"); e("v_lshl_add_u32 v7, v1, 4, v7")
    e("v_mov_b32 v8, 0"); e("v_mov_b32 v9, 0"); e("v_mov_b32 v10, 0"); e("v_mov_b32 v11, 0")
    e("v_mov_b32 v32, 0x3f803f80")
    k.waitvm("x")
    for i in range(5):
        if i < 4: k.vmop(f"buffer_store_dwordx4 {vr(12+4*i,4)}, v7, s[12:15], s17 offen offset:{1024*i} {PSC}")
        else: k.vmop(f"buffer_store_dwordx4 {vr(12+4*i,4)}, v7, s[12:15], s18 offen {PSC}")
    for r in range(12, 32):
        e(f"v_dot2_f32_bf16 v8, v{r}, v32, v8")
    for r in range(12, 32):
        e(f"v_dot2_f32_bf16 v9, v{r}, v{r}, v9")
    e("s_nop 2")
    k.allred16("v_add_f32", 8, 33); k.allred32("v_add_f32", 8, 33)
    k.allred16("v_add_f32", 9, 33); k.allred32("v_add_f32", 9, 33)
    e("v_cmp_gt_u32 vcc, 16, v1"); e("v_lshlrev_b32 v5, 3, v1"); e("v_lshl_add_u32 v5, v2, 8, v5")
    e("v_cndmask_b32 v8, 0, v8, vcc"); e("v_cndmask_b32 v9, 0, v9, vcc")
    e("s_lshl_b32 s19, s3, 10"); e(f"s_add_u32 s19, s19, {ST[0]}")
    e("s_lshl_b32 s18, s3, 10"); e(f"s_add_u32 s18, s18, {CNT}")
    e("s_mov_b32 exec_hi, 0")
    k.vmop("buffer_store_dwordx2 v[8:9], v5, s[12:15], s19 offen")
    e("s_mov_b64 exec, 0x1111111111111111" if False else "s_mov_b64 exec, -1")
    e("v_cmp_gt_u32 vcc, 128, v0"); e("s_and_saveexec_b64 s[28:29], vcc"); e("s_cbranch_execz prep_end")
    e("v_lshlrev_b32 v6, 3, v0")
    k.vmop("buffer_store_dwordx2 v[10:11], v6, s[12:15], s18 offen")
    k.rtdump(); e("s_endpgm")
    def colsum(regs, acc):
        for r in regs: e(f"v_dot2_f32_bf16 v{acc}, v{r}, v60, v{acc}")
    k.label("prep_u"); k.vm = []
    e(f"s_sub_u32 s16, s2, {NX}"); e("s_and_b32 s17, s16, 3"); e("s_lshr_b32 s16, s16, 2")
    k.srd(8, 20, D*3*D*2)
    e("v_readfirstlane_b32 s18, v2")
    e("v_and_b32 v5, 15, v1"); e("v_lshrrev_b32 v6, 4, v1"); e("v_and_b32 v10, 3, v1")
    e("v_lshl_add_u32 v9, v2, 2, v6"); e("v_mul_u32_u24 v9, 3840, v9")
    e("v_lshrrev_b32 v7, 2, v5"); e("v_xor_b32 v8, v7, v6"); e("v_lshl_add_u32 v9, v8, 6, v9"); e("v_lshl_add_u32 v9, v10, 4, v9")
    e(f"s_mul_i32 s19, s17, {160*3840}"); e("s_lshl_b32 s28, s16, 8"); e("s_add_u32 s19, s19, s28"); e("s_lshl_b32 s29, s18, 10")
    for i in range(10):
        e(f"s_add_u32 m0, s29, {4096*i}")
        e(f"s_add_u32 s28, s19, {16*3840*i}")
        e("buffer_load_dwordx4 v9, s[8:11], s28 offen nt lds")
    e("v_lshrrev_b32 v4, 5, v1"); e("v_lshl_add_u32 v11, v4, 2, v7"); e("v_lshlrev_b32 v11, 8, v11")
    e("v_bfe_u32 v8, v1, 4, 1"); e("v_lshl_add_u32 v11, v8, 5, v11"); e("v_lshl_add_u32 v11, v10, 3, v11")
    e("v_xor_b32 v8, v2, v7"); e("v_lshl_add_u32 v11, v8, 6, v11")
    e("v_lshlrev_b32 v3, 4, v1"); e("v_mov_b32 v60, 0x3f803f80"); e("v_mov_b32 v8, 0")
    e("s_mul_i32 s19, s16, 163840"); e("s_mul_i32 s28, s17, 40960"); e("s_add_u32 s19, s19, s28"); e("s_add_u32 s19, s19, s29"); e(f"s_add_u32 s19, s19, {WA_I}")
    e("s_waitcnt vmcnt(0)"); e("s_barrier")
    for n in range(10):
        for t in range(2): e(f"ds_read_b64_tr_b16 {vr(16+4*n+2*t,2)}, v11 offset:{(FM[n//2][t]+8*(n%2))*256}")
        if n == 5: e("s_waitcnt lgkmcnt(0)")
    e("s_waitcnt lgkmcnt(0)")
    for n in range(10):
        e(f"buffer_store_dwordx4 {vr(16+4*n,4)}, v3, s[12:15], s19 offen {PSC}")
        if n < 9: e("s_add_u32 s19, s19, 4096")
    colsum(range(16, 56), 8); e("s_nop 2")
    k.allred32("v_add_f32", 8, 9)
    e("v_and_b32 v5, 31, v1"); e("v_lshlrev_b32 v5, 4, v5")
    e("s_lshl_b32 s19, s16, 11"); e("s_lshl_b32 s28, s18, 9"); e("s_add_u32 s19, s19, s28"); e("s_lshl_b32 s28, s17, 2"); e("s_add_u32 s19, s19, s28"); e(f"s_add_u32 s19, s19, {U_A}")
    e("s_mov_b32 exec_hi, 0")
    e("buffer_store_dword v8, v5, s[12:15], s19 offen")
    k.rtdump(); e("s_endpgm")
    k.label("prep_b")
    e(f"s_sub_u32 s16, s2, {NX+NA}"); e("s_and_b32 s17, s16, 3"); e("s_lshr_b32 s16, s16, 2")
    k.srd(8, 24, D*3*D*2)
    e("v_readfirstlane_b32 s18, v2")
    e("v_and_b32 v5, 15, v1"); e("v_lshrrev_b32 v6, 4, v1")
    e("v_and_b32 v7, 1, v2"); e("v_lshl_add_u32 v7, v7, 2, v6"); e("v_lshlrev_b32 v7, 1, v7"); e("v_xor_b32 v7, v7, v5"); e("v_min_u32 v7, 14, v7")
    e("v_mul_u32_u24 v8, 52, v7"); e("v_lshrrev_b32 v8, 8, v8"); e("v_mul_u32_u24 v9, 1200, v8"); e("v_lshl_add_u32 v9, v7, 4, v9")
    e("v_lshl_add_u32 v10, v2, 2, v6"); e("v_mul_u32_u24 v10, 3840, v10"); e("v_add_u32 v9, v9, v10")
    e(f"s_mul_i32 s19, s17, {160*3840}"); e("s_mul_i32 s28, s16, 80"); e("s_add_u32 s19, s19, s28"); e("s_lshl_b32 s29, s18, 10")
    for i in range(10):
        e(f"s_add_u32 m0, s29, {4096*i}")
        e(f"s_add_u32 s28, s19, {16*3840*i}")
        e("buffer_load_dwordx4 v9, s[8:11], s28 offen nt lds")
    e("v_lshrrev_b32 v12, 2, v5"); e("v_and_b32 v13, 3, v5")
    e("s_mul_i32 s28, s18, 80"); e("v_lshlrev_b32 v10, 3, v13"); e("v_add_u32 v10, s28, v10"); e("v_add_u32 v11, 40, v10")
    e("s_cmp_lt_u32 s18, 3"); e("s_cbranch_scc1 prep_b1")
    e("v_mul_u32_u24 v10, 40, v13"); e("v_add_u32 v10, 32, v10")
    e("v_and_b32 v11, 1, v13"); e("v_mul_u32_u24 v11, 40, v11"); e("v_add_u32 v11, 192, v11")
    k.label("prep_b1")
    e("v_lshl_add_u32 v14, v6, 2, v12"); e("v_and_b32 v15, 7, v14"); e("v_lshlrev_b32 v15, 5, v15"); e("v_lshlrev_b32 v14, 8, v14")
    e("v_xor_b32 v10, v10, v15"); e("v_add_u32 v10, v10, v14"); e("v_xor_b32 v11, v11, v15"); e("v_add_u32 v11, v11, v14")
    e("v_lshlrev_b32 v3, 4, v1"); e("v_mov_b32 v60, 0x3f803f80"); e("v_mov_b32 v8, 0"); e("v_mov_b32 v9, 0")
    e("s_mul_i32 s19, s16, 163840"); e("s_mul_i32 s28, s17, 40960"); e("s_add_u32 s19, s19, s28"); e("s_lshl_b32 s28, s18, 11"); e("s_add_u32 s19, s19, s28"); e(f"s_add_u32 s19, s19, {WB_I}")
    e("s_waitcnt vmcnt(0)"); e("s_barrier")
    for n in range(10):
        for t in range(2): e(f"ds_read_b64_tr_b16 {vr(16+4*n+2*t,2)}, v{10+n%2} offset:{FM[n//2][t]*256}")
        if n == 5: e("s_waitcnt lgkmcnt(0)")
    e("s_waitcnt lgkmcnt(0)")
    for n in range(10):
        e(f"buffer_store_dwordx4 {vr(16+4*n,4)}, v3, s[12:15], s19 offen offset:{1024*(n%2)} {PSC}")
        if n % 2 and n < 9: e("s_add_u32 s19, s19, 8192")
    for f in range(2): colsum([16+8*m+4*f+q for m in range(5) for q in range(4)], 8+f)
    e("s_nop 2")
    for f in range(2): k.allred16("v_add_f32", 8+f, 12); k.allred32("v_add_f32", 8+f, 12)
    e("v_lshlrev_b32 v5, 4, v5")
    e("s_lshl_b32 s19, s16, 11"); e("s_lshl_b32 s28, s18, 9"); e("s_add_u32 s19, s19, s28"); e("s_lshl_b32 s28, s17, 2"); e("s_add_u32 s19, s19, s28"); e(f"s_add_u32 s19, s19, {U_B}")
    e("s_mov_b64 exec, 0xffff")
    e("buffer_store_dword v8, v5, s[12:15], s19 offen"); e("buffer_store_dword v9, v5, s[12:15], s19 offen offset:256")
    k.rtdump(); e("s_endpgm")
    k.label("prep_o")
    e(f"s_sub_u32 s16, s2, {NX+NA+NB}"); e("s_and_b32 s17, s16, 3"); e("s_lshr_b32 s30, s16, 5"); e("s_bfe_u32 s16, s16, 0x30002")
    e("s_cmp_eq_u32 s30, 1")
    e("s_cselect_b32 s28, s26, s22"); e("s_cselect_b32 s29, s27, s23"); e(f"s_cselect_b32 s31, {WOB_I-WOA_I}, 0")
    k.srd(8, 28, D*D*2)
    e("v_readfirstlane_b32 s18, v2")
    def pat(dst, src):
        e(f"v_mul_u32_u24 v10, 6554, v{src}"); e("v_lshrrev_b32 v10, 16, v10"); e("v_mul_u32_u24 v10, 1120, v10"); e(f"v_lshl_add_u32 v{dst}, v{src}, 4, v10")
    for i in range(5):
        e(f"v_add_u32 v9, {64*i}, v1"); pat(4+i, 9)
    pat(11, 0)
    e(f"s_mul_i32 s19, s17, {160*1280}"); e("s_mul_i32 s28, s16, 160"); e("s_add_u32 s19, s19, s28")
    e("s_mul_i32 s28, s18, 40960"); e("s_add_u32 s28, s28, s19"); e("s_mul_i32 s29, s18, 5120")
    for i in range(5):
        e(f"s_add_u32 m0, s29, {1024*i}"); e("s_nop 0")
        e(f"buffer_load_dwordx4 v{4+i}, s[8:11], s28 offen nt lds")
    e("s_lshl_b32 s29, s18, 10"); e("s_add_u32 m0, s29, 20480"); e("s_add_u32 s28, s19, 163840")
    e("buffer_load_dwordx4 v11, s[8:11], s28 offen nt lds")
    e("s_cmp_eq_u32 s18, 0"); e("s_cbranch_scc0 prep_o1")
    e("s_mov_b32 m0, 24576"); e("s_nop 0")
    e("buffer_load_dwordx4 v8, s[8:11], s28 offen nt lds")
    k.label("prep_o1")
    e("v_lshrrev_b32 v9, 4, v1"); e("v_bfe_u32 v10, v1, 2, 2"); e("v_and_b32 v11, 3, v1")
    e("v_lshlrev_b32 v12, 2, v9"); e("s_mov_b32 s28, 3200")
    e("s_cmp_eq_u32 s30, 1"); e("s_cbranch_scc1 prep_o2")
    e("v_lshrrev_b32 v12, 1, v9"); e("v_mul_u32_u24 v12, 20, v12"); e("v_and_b32 v13, 1, v9"); e("v_lshl_add_u32 v12, v13, 2, v12"); e("s_mov_b32 s28, 1280")
    k.label("prep_o2")
    e("v_add_u32 v12, v12, v10"); e("v_mul_u32_u24 v12, 160, v12"); e("v_lshl_add_u32 v12, v11, 3, v12")
    e("s_mul_i32 s29, s18, 6400"); e("v_add_u32 v12, s29, v12"); e("v_add_u32 v13, s28, v12")
    e("v_mul_u32_u24 v14, 20, v9"); e("v_add_u32 v14, v14, v10"); e("v_mul_u32_u24 v14, 160, v14"); e("v_lshl_add_u32 v14, v11, 3, v14")
    e("v_lshlrev_b32 v3, 4, v1")
    e("s_mul_i32 s19, s16, 102400"); e("s_add_u32 s19, s19, s31"); e(f"s_add_u32 s19, s19, {WOA_I}")
    e("s_lshl_b32 s28, s17, 2"); e("s_add_u32 s28, s28, s18"); e("s_mul_i32 s28, s28, 5120"); e("s_add_u32 s28, s28, s19"); e("s_add_u32 s29, s28, 4096")
    e("s_waitcnt vmcnt(0)"); e("s_barrier")
    for nf in range(5):
        for t in range(2): e(f"ds_read_b64_tr_b16 {vr(16+4*nf+2*t,2)}, v{12+t} offset:{32*nf}")
    e("s_waitcnt lgkmcnt(0)")
    for nf in range(5): e(f"buffer_store_dwordx4 {vr(16+4*nf,4)}, v3, s[12:15], s{28 if nf < 4 else 29} offen offset:{1024*(nf%4)} {PSC}")
    e("s_cmp_eq_u32 s18, 0"); e("s_cbranch_scc0 prep_end")
    for nf in range(5):
        for t in range(2): e(f"ds_read_b64_tr_b16 {vr(36+4*nf+2*t,2)}, v14 offset:{(80*t+16)*160+32*nf}")
    e("s_add_u32 s28, s17, 16"); e("s_mul_i32 s28, s28, 5120"); e("s_add_u32 s28, s28, s19"); e("s_add_u32 s29, s28, 4096")
    e("s_waitcnt lgkmcnt(0)")
    for nf in range(5): e(f"buffer_store_dwordx4 {vr(36+4*nf,4)}, v3, s[12:15], s{28 if nf < 4 else 29} offen offset:{1024*(nf%4)} {PSC}")
    k.label("prep_end"); k.rtdump(); k.label("prep_end0"); e("s_endpgm")
    return k.text(64, 64)

def stats_finish(k, s1, s2, mean, rstd, t):
    e = k.e
    e(f"v_mul_f32 v{mean}, {fbits(1.0/D)}, v{s1}")
    e(f"v_mul_f32 v{t}, {fbits(1.0/D)}, v{s2}")
    e(f"v_fma_f32 v{t}, -v{mean}, v{mean}, v{t}")
    e(f"v_max_f32 v{t}, 0, v{t}")
    e(f"v_add_f32 v{t}, {fbits(1e-5)}, v{t}")
    e(f"v_rsq_f32 v{rstd}, v{t}")
    e("s_nop 0")

def split3(k, src, d, t, kind, maskv=None):
    e = k.e
    if kind == 'm':
        e(f"v_xor_b32 v{t+1}, 0x80000000, v{src}"); src = t+1
    e(f"v_and_b32 v{t}, 0xffff0000, v{src}")
    e(f"v_sub_f32 v{t+2}, v{src}, v{t}")
    if kind == 'u':
        e(f"v_cvt_pk_bf16_f32 v{d}, v{t}, v{t+2}")
        e(f"v_lshrrev_b32 v{d+1}, 16, v{t}")
    else:
        e(f"v_cvt_pk_bf16_f32 v{d}, v{t}, v{t}")
        e(f"v_cvt_pk_bf16_f32 v{d+1}, v{t+2}, 0")
    if maskv is not None:
        e(f"v_and_b32 v{d}, v{d}, v{maskv}"); e(f"v_and_b32 v{d+1}, v{d+1}, v{maskv}")

SC = "sc1"
EARLY = int(os.environ.get('EARLY', '6'))
ENV = lambda n, d: int(os.environ.get(n, d))

def common(k, nwg=256):
    e = k.e
    e(f"s_cmp_ge_u32 s2, {nwg}"); e(f"s_cbranch_scc1 {k.name}_end"); k.stamp(0); k.rstamp(1)
    e("s_load_dwordx2 s[6:7], s[0:1], 64"); e("s_load_dwordx2 s[46:47], s[0:1], 48")
    e("s_and_b32 s20, s2, 7"); e("s_lshr_b32 s21, s2, 3")
    e("v_lshrrev_b32 v2, 6, v0"); e("v_and_b32 v1, 63, v0")
    e("v_readfirstlane_b32 s18, v2")
    e("s_and_b32 s39, s18, 3"); e("s_lshl_b32 s45, s39, 10")

def ids_mt(k):
    k.e("s_lshl_b32 s22, s20, 1"); k.e("s_and_b32 s23, s21, 1"); k.e("s_add_u32 s16, s22, s23"); k.e("s_lshr_b32 s17, s21, 1")
def ids_rt(k):
    k.e("s_lshl_b32 s22, s20, 2"); k.e("s_and_b32 s23, s21, 3"); k.e("s_add_u32 s16, s22, s23"); k.e("s_lshr_b32 s17, s21, 2")

LW = 163824
PV_ = 240
def lw_init(k):
    e = k.e
    e(f"v_mov_b32 v{PV_+3}, {LW}")
    for i in range(3): e(f"v_mov_b32 v{PV_+i}, 0")
    e(f"ds_write_b96 v{PV_+3}, v[{PV_}:{PV_+2}]"); e(f"ds_write_b32 v{PV_+3}, v{PV_} offset:12")

def signal(k, tag, word, nw, addr_code, younger=0):
    e = k.e
    addr_code()
    e(f"v_mov_b32 v{PV_+3}, {LW}"); e(f"v_mov_b32 v{PV_}, 1")
    e("s_mov_b64 exec, 1")
    e(f"s_waitcnt vmcnt({younger})"); k.vm = k.vm[len(k.vm)-younger:] if younger else []
    if tag == os.environ.get("FOC"): k.stamp(2)
    e(f"ds_add_rtn_u32 v{PV_+2}, v{PV_+3}, v{PV_} offset:{8*word}")
    e("s_waitcnt lgkmcnt(0)"); k.lg = []
    e(f"v_readfirstlane_b32 s49, v{PV_+2}")
    e("s_mov_b64 exec, s[56:57]")
    e(f"s_cmp_eq_u32 s49, {nw-1}"); e(f"s_cbranch_scc0 {k.name}_{tag}_sg")
    e(f"buffer_atomic_add v{PV_}, v{PV_+1}, s[12:15], s48 offen {SC}")
    if os.environ.get("FOC2") == tag: k.stamp(4)
    k.label(f"{k.name}_{tag}_sg")
    e("s_mov_b64 exec, -1")

def wait_go(k, tag, word, poll_code):
    e = k.e; nm = f"{k.name}_{tag}"
    e(f"v_mov_b32 v{PV_+3}, {LW}"); e("s_mov_b32 s49, 0")
    if poll_code:
        e("s_cmp_eq_u32 s18, 0"); e(f"s_cbranch_scc0 {nm}_sp")
        poll_code()
        e("s_mov_b64 exec, s[56:57]")
        if os.environ.get("FOC") == "g" + tag: k.stamp(2)
        k.label(f"{nm}_pl")
        e(f"v_mov_b32 v{PV_}, 0")
        e(f"buffer_atomic_add v{PV_}, v{PV_+1}, s[12:15], s48 offen sc0 sc1")
        e("s_add_u32 s49, s49, 1")
        e("s_waitcnt vmcnt(0)")
        e(f"v_cmp_ge_u32 vcc, v{PV_}, v{PV_+2}")
        e("s_cmp_ge_u32 s49, 0x20000"); e(f"s_cbranch_scc1 {nm}_px")
        e("s_cmp_eq_u64 vcc, exec"); e(f"s_cbranch_scc0 {nm}_pl")
        k.label(f"{nm}_px")
        if os.environ.get("FOC") == "g" + tag: e("s_add_u32 s70, s64, s49")
        e("s_mov_b64 exec, 1"); e(f"v_mov_b32 v{PV_}, 1")
        e(f"ds_write_b32 v{PV_+3}, v{PV_} offset:{8*word+4}")
        e(f"s_branch {nm}_go")
    k.label(f"{nm}_sp")
    e("s_sleep 1")
    e(f"ds_read_b32 v{PV_}, v{PV_+3} offset:{8*word+4}")
    e("s_add_u32 s49, s49, 1")
    e("s_waitcnt lgkmcnt(0)")
    e(f"v_readfirstlane_b32 s44, v{PV_}")
    e("s_cmp_ge_u32 s49, 0x400000"); e(f"s_cbranch_scc1 {nm}_go")
    e("s_cmp_eq_u32 s44, 0"); e(f"s_cbranch_scc1 {nm}_sp")
    k.label(f"{nm}_go")
    e("s_mov_b64 exec, -1")

class Wdma:
    def __init__(s, k, n, base=50, tag="w"): s.k = k; s.n = n; s.i = 0; s.base = base; s.tag = tag
    def one(s, i):
        s.k.e(f"s_add_u32 m0, s45, {4096*i}"); s.k.e(f"s_add_u32 s32, s{s.base}, {4096*i}")
        s.k.vmop("buffer_load_dwordx4 v3, s[12:15], s32 offen lds", f"{s.tag}{i}")
    def go(s, upto):
        while s.i < min(upto, s.n): s.one(s.i); s.i += 1
    def rng(s, a, b, thr=0):
        for i in range(a, b):
            s.one(i)
            if thr and len(s.k.vm) >= thr: s.k.e(f"s_waitcnt vmcnt({thr-1})"); s.k.vm = s.k.vm[len(s.k.vm)-thr+1:]

def ph_attn(k, L):
    e = k.e; nm = k.name
    KA, KT, VA = 4, 5, 6
    Q = [8, 14]; KF = [24, 32]; VF = [40, 48]; SS = [56, 72]; P = 88; O = [96, 112]; PF = 128
    SCR = 102400
    ids_rt(k)
    e("v_and_b32 v3, 31, v1"); e("v_lshrrev_b32 v7, 5, v1")
    e("v_lshlrev_b32 v22, 4, v1"); e("v_lshlrev_b32 v23, 3, v3")
    e("s_mul_i32 s19, s16, 163840")
    e("s_lshr_b32 s41, s18, 2")
    e("s_lshl_b32 s23, s17, 3"); e("s_lshl_b32 s22, s39, 1"); e("s_add_u32 s23, s23, s22")
    e("s_mul_i32 s24, s23, 1280"); e("s_lshr_b32 s22, s19, 1"); e("s_add_u32 s24, s24, s22"); e(f"s_add_u32 s24, s24, {QIMG[L]}")
    e("s_mul_i32 s42, s41, 81920")
    e("s_add_u32 s25, s45, s42")
    e("s_add_u32 s26, s19, s25"); e(f"s_add_u32 s26, s26, {KVIMG[L]}")
    e("s_waitcnt lgkmcnt(0)")
    k.stamp(2); k.srd(12, 6, WS_END)
    rnd = [0]
    def dma():
        i = rnd[0]; rnd[0] += 1
        e(f"s_add_u32 m0, s25, {4096*i}"); e(f"s_add_u32 s27, s26, {4096*i}")
        k.vmop(f"buffer_load_dwordx4 v22, s[12:15], s27 offen lds", f"i{i}")
    dma()
    for x in range(2):
        k.vmop(f"buffer_load_dwordx4 {vr(Q[x],4)}, v22, s[12:15], s24 offen offset:{1280*x}", "q")
        k.vmop(f"buffer_load_dwordx2 {vr(Q[x]+4,2)}, v23, s[12:15], s24 offen offset:{1280*x+1024}", "q")
    for _ in range(3): dma()
    e(f"v_add_u32 v{KA}, s42, v22")
    e(f"v_add_u32 v{KT}, s42, v23"); e(f"v_add_u32 v{KT}, 1024, v{KT}")
    e("v_mul_u32_u24 v21, 20, v7"); e("v_add_u32 v21, v21, v3"); e("v_lshlrev_b32 v21, 4, v21")
    e("v_add_u32 v21, 1280, v21"); e(f"v_add_u32 v{VA}, s42, v21")
    e("s_mov_b32 s28, 0x000fffff"); e("s_mov_b32 s29, 0x000fffff")
    e("v_cmp_eq_u32 vcc, 20, v3"); e("v_mov_b32 v20, 0x3f803f80"); e("s_nop 0")
    e("v_cndmask_b32 v20, 0, v20, vcc")
    for r in range(16): e(f"v_mov_b32 v{VF[0]+r}, v20")
    for r in range(32): e(f"v_mov_b32 v{O[0]+r}, 0")
    for r in range(4): e(f"v_mov_b32 v{P+4+r}, 0")
    e("v_subrev_u32 v30, 1, v7")
    e("s_lshl_b32 s43, s21, 3"); e("s_add_u32 s43, s43, s18"); e("s_mul_i32 s43, s43, 14336"); e(f"s_add_u32 s43, s43, {WOA_I}")
    e("v_lshlrev_b32 v134, 6, v1"); e("s_lshl_b32 s55, s2, 3"); e("s_add_u32 s55, s55, s18")
    TCH = ENV('TCH', '7'); NTM = 7 if (TCH == 6 and L == 0) else 31
    e(f"v_lshlrev_b32 v134, {TCH if L == 0 else 6}, v1"); e("s_mov_b32 s44, s18" if NTM == 7 else "s_lshl_b32 s44, s18, 1")
    if L == 0: e(f"s_mul_i32 s62, s55, {-(-(TOUCH1-TOUCH0)//2048//128)*128}"); e("s_mov_b32 s63, 4096" if False else "s_mov_b32 s63, 2688")
    else: e("s_mul_i32 s55, s55, 1280"); k.srd(60, 46, S*D*2)
    e("s_add_u32 s23, s23, s41")
    e("s_mul_i32 s32, s23, 40960"); e(f"s_add_u32 s32, s32, {OT}")
    e("s_lshr_b32 s51, s16, 1"); e("s_lshl_b32 s51, s51, 10"); e("s_and_b32 s34, s16, 1"); e("s_lshl_b32 s34, s34, 9")
    e("s_add_u32 s51, s51, s34"); e("s_add_u32 s51, s51, s32")
    e("s_lshr_b32 s52, s16, 3"); e("s_add_u32 s52, s52, 16"); e("s_lshl_b32 s52, s52, 10"); e("s_add_u32 s52, s52, s32")
    e("s_and_b32 s35, s16, 3"); e("s_lshl_b32 s35, s35, 8"); e("s_add_u32 s52, s52, s35")
    e("s_bfe_u32 s35, s16, 0x10002"); e("s_lshl_b32 s35, s35, 3"); e("s_add_u32 s52, s52, s35")
    e("v_lshrrev_b32 v38, 4, v3"); e("v_mul_u32_u24 v38, 20480, v38"); e("v_and_b32 v39, 15, v3")
    e("v_lshl_add_u32 v38, v39, 4, v38"); e("v_lshl_add_u32 v39, v7, 8, v38")
    e("s_lshl_b32 s59, s18, 10"); e("s_mul_i32 s50, s17, 102400"); e("s_add_u32 s50, s50, s59"); e(f"s_add_u32 s50, s50, {WOA_I}")
    e("s_mul_i32 s32, s18, 3072"); e("s_xor_b32 s33, s18, 4"); e("s_mul_i32 s33, s33, 3072")
    e(f"v_add_u32 v132, {SCR}, v22"); e("v_add_u32 v133, s33, v132"); e("v_add_u32 v132, s32, v132")
    k.waitvm("q")
    for x in range(2):
        e(f"v_and_b32 v{Q[x]+4}, v{Q[x]+4}, v30"); e(f"v_and_b32 v{Q[x]+5}, v{Q[x]+5}, v30")
    k.waitvm("i1"); e("s_barrier"); k.stamp(3)
    def rdK(buf, off):
        e(f"ds_read_b128 {vr(KF[buf],4)}, v{KA} offset:{off}")
        e(f"ds_read_b64 {vr(KF[buf]+4,2)}, v{KT} offset:{off}")
    def rdV(buf, off):
        e("s_mov_b64 exec, s[28:29]")
        e(f"ds_read_b128 {vr(VF[buf],4)}, v{VA} offset:{off}")
        e(f"ds_read_b128 {vr(VF[buf]+4,4)}, v{VA} offset:{off+640}")
        e("s_mov_b64 exec, -1")
    def qkm(x, kb): e(f"v_mfma_f32_32x32x16_bf16 {vr(SS[x],16)}, {vr(KF[kb],4)}, {vr(Q[x],4)}, 0")
    def qkt(x, kb): e(f"v_mfma_f32_32x32x8_bf16 {vr(SS[x],16)}, {vr(KF[kb]+4,2)}, {vr(Q[x]+4,2)}, {vr(SS[x],16)}")
    def pv(x, vb, u): e(f"v_mfma_f32_32x32x16_bf16 {vr(O[x],16)}, {vr(VF[vb]+4*u,4)}, {vr(P+4*u,4)}, {vr(O[x],16)}")
    def unit(x, t, extra=None):
        p = t % 2; s = SS[x]
        ex = lambda i: e(f"v_exp_f32 v{s+i}, v{s+i}")
        cv = lambda i: e(f"v_cvt_pk_bf16_f32 v{P+i}, v{s+2*i}, v{s+2*i+1}")
        kb = p if x == 0 else 1-p
        if x == 1: e("s_waitcnt lgkmcnt(2)")
        qkm(1-x, kb)
        if x == 1: rdK(p, (t+2)*2560)
        for i in range(0, 4): ex(i)
        if x == 0:
            pv(1, 1-p, 1); rdV(1-p, (t+1)*2560)
        else:
            pv(0, p, 1)
        if extra: extra()
        for i in range(4, 8): ex(i)
        for i in range(0, 4): cv(i)
        qkt(1-x, kb)
        for i in range(8, 12): ex(i)
        if x == 0: e("s_waitcnt lgkmcnt(4)")
        pv(x, p, 0)
        for i in range(12, 16): ex(i)
        for i in range(4, 8): cv(i)
    def touch(t):
        e(f"s_cmp_eq_u32 s44, {t}"); e(f"s_cbranch_scc0 {nm}_t{t}")
        if L == 0: e(f"buffer_load_dword v{PF}, v134, s[12:15], s62 offen"); e("s_add_u32 s62, s62, s63")
        else: e(f"buffer_load_dword v{PF}, v134, s[60:63], s55 offen")
        k.label(f"{nm}_t{t}")
    rdK(0, 0); rdV(0, 0); rdK(1, 2560)
    e("s_waitcnt lgkmcnt(4)")
    qkm(0, 0); e("s_nop 10"); qkt(0, 0); e("s_nop 10")
    SYN = {1: 3, 4: 7, 7: 19}; PEEL = 8
    for t in range(PEEL):
        if t in SYN: k.waitvm(f"i{SYN[t]}"); e("s_barrier")
        if t == 7:
            e("s_cmp_ge_u32 s18, 4"); e(f"s_cbranch_scc0 {nm}_np"); e("s_setprio 1"); k.label(f"{nm}_np")
        d2 = lambda: (dma(), dma())
        unit(0, t, d2 if rnd[0] < 20 else None)
        unit(1, t, d2 if rnd[0] < 20 else None)
    for r in (KA, KT, VA): e(f"v_add_u32 v{r}, {PEEL*2560}, v{r}")
    e("s_mov_b32 s31, 0")
    def pref():
        e(f"buffer_load_dwordx4 {vr(PF,4)}, v22, s[12:15], s43 offen"); e("s_add_u32 s43, s43, 1024")
    e(".p2align 3")
    body_start = len(k.L)
    k.label(f"{nm}_aloop")
    NT = 4; NIT = (32 - PEEL)//NT
    for t in range(NT):
        unit(0, t, pref if t != 3 else None); unit(1, t, (lambda: touch(t)) if TCH else None)
    for r in (KA, KT, VA): e(f"v_add_u32 v{r}, {NT*2560}, v{r}")
    e("s_add_u32 s31, s31, 1"); e("s_sub_u32 s44, s44, 4"); e(f"s_and_b32 s44, s44, {NTM}")
    e(f"s_cmp_eq_u32 s31, {NIT-1}"); e(f"s_cbranch_scc0 {nm}_l1"); e("s_setprio 0"); k.label(f"{nm}_l1")
    e(f"s_cmp_lt_u32 s31, {NIT}"); e(f"s_cbranch_scc1 {nm}_aloop")
    body = k.L[body_start:]
    assert lint(body + body, "attn_loop2") == 0
    pv(1, 1, 1); k.stamp(4)
    e("s_waitcnt lgkmcnt(0)"); e("s_barrier")
    for i in range(EARLY//2):
        e(f"s_add_u32 m0, s59, {8192*i}"); e(f"s_add_u32 s27, s50, {8192*i}")
        e("buffer_load_dwordx4 v22, s[12:15], s27 offen lds")
    e("s_mov_b32 s30, 0")
    e("s_cmp_eq_u32 s41, 0"); e(f"s_cbranch_scc1 {nm}_k0")
    e("s_nop 6")
    for i in range(3): e(f"ds_write_b128 v132, {vr(O[0]+4*i,4)} offset:{1024*i}")
    for r in range(12): e(f"v_mov_b32 v{O[0]+r}, v{O[1]+r}")
    for r in range(6): e(f"v_mov_b32 v{Q[0]+r}, v{Q[1]+r}")
    e(f"s_branch {nm}_k1")
    k.label(f"{nm}_k0")
    lw_init(k); e("s_nop 3")
    for i in range(3): e(f"ds_write_b128 v132, {vr(O[1]+4*i,4)} offset:{1024*i}")
    k.label(f"{nm}_k1")
    e(f"s_mov_b32 s32, {fbits(2.0**-60)}"); e(f"s_mov_b32 s33, {fbits(2.0**100)}"); e(f"s_mov_b32 s34, {fbits(2.0**126)}")
    e("s_waitcnt lgkmcnt(0)"); e("s_barrier")
    for i in (2, 0, 1): e(f"ds_read_b128 {vr(SS[0]+4*i,4)}, v133 offset:{1024*i}")
    OO = O[0]
    e("s_waitcnt lgkmcnt(2)")
    for r in range(8, 12): e(f"v_add_f32 v{OO+r}, v{OO+r}, v{SS[0]+r}")
    e("s_waitcnt lgkmcnt(0)")
    for r in range(8): e(f"v_add_f32 v{OO+r}, v{OO+r}, v{SS[0]+r}")
    k.label(f"{nm}_chk")
    e(f"v_mov_b32 v30, v{OO+8}"); e(f"v_mov_b32 v31, v{OO+8}")
    e(f"v_max3_f32 v28, abs(v{OO}), abs(v{OO+1}), abs(v{OO+2})")
    e("v_permlane32_swap_b32 v30, v31")
    for r in range(3, 11, 2): e(f"v_max3_f32 v28, abs(v{OO+r}), abs(v{OO+r+1}), v28")
    e(f"v_max_f32 v28, abs(v{OO+11}), v28")
    e("v_cmp_le_f32 vcc, s32, v31"); e("v_cmp_ge_f32 s[36:37], s33, v31"); e("v_cmp_gt_f32 s[40:41], s34, v28")
    e("v_rcp_f32 v31, v31")
    e("s_and_b64 s[36:37], s[36:37], vcc"); e("s_and_b64 s[36:37], s[36:37], s[40:41]")
    e("s_cmp_eq_u64 s[36:37], -1"); e(f"s_cbranch_scc1 {nm}_fin")
    e("s_cmp_eq_u32 s30, 0"); e(f"s_cbranch_scc0 {nm}_fin")
    e("s_mov_b32 s30, 1")
    e("s_waitcnt vmcnt(0)")
    NM = O[1]
    e("v_mov_b32 v32, 0xff800000")
    def slowqk(c):
        e(f"buffer_load_dwordx4 {vr(KF[0],4)}, v22, s[12:15], s27 offen")
        e(f"buffer_load_dwordx2 {vr(KF[0]+4,2)}, v23, s[12:15], s27 offen offset:1024")
        e("s_waitcnt vmcnt(0)")
        e(f"v_mfma_f32_32x32x16_bf16 {vr(SS[0],16)}, {vr(KF[0],4)}, {vr(Q[0],4)}, {c}"); e("s_nop 10")
        e(f"v_mfma_f32_32x32x8_bf16 {vr(SS[0],16)}, {vr(KF[0]+4,2)}, {vr(Q[0]+4,2)}, {vr(SS[0],16)}"); e("s_nop 12")
    e(f"s_add_u32 s27, s19, {KVIMG[L]}"); e("s_mov_b32 s31, 0")
    k.label(f"{nm}_mx")
    slowqk("0")
    for r in range(0, 16, 2): e(f"v_max3_f32 v32, v{SS[0]+r}, v{SS[0]+r+1}, v32")
    e("s_add_u32 s27, s27, 2560")
    e("s_add_u32 s31, s31, 1"); e("s_cmp_lt_u32 s31, 64"); e(f"s_cbranch_scc1 {nm}_mx")
    k.allred32("v_max_f32", 32, 33)
    e("v_xor_b32 v32, 0x80000000, v32")
    for r in range(16): e(f"v_mov_b32 v{NM+r}, v32")
    for r in range(16): e(f"v_mov_b32 v{OO+r}, 0")
    for r in range(8): e(f"v_mov_b32 v{VF[0]+r}, v20")
    e(f"s_add_u32 s27, s19, {KVIMG[L]}"); e("s_mov_b32 s31, 0")
    k.label(f"{nm}_sl")
    e("s_mov_b64 exec, s[28:29]")
    e(f"buffer_load_dwordx4 {vr(VF[0],4)}, v21, s[12:15], s27 offen")
    e(f"buffer_load_dwordx4 {vr(VF[0]+4,4)}, v21, s[12:15], s27 offen offset:640")
    e("s_mov_b64 exec, -1")
    slowqk(vr(NM,16))
    for i in range(16): e(f"v_exp_f32 v{SS[0]+i}, v{SS[0]+i}")
    e("s_nop 0")
    for i in range(8): e(f"v_cvt_pk_bf16_f32 v{P+i}, v{SS[0]+2*i}, v{SS[0]+2*i+1}")
    e("s_nop 1")
    pv(0, 0, 0); pv(0, 0, 1)
    e("s_add_u32 s27, s27, 2560")
    e("s_add_u32 s31, s31, 1"); e("s_cmp_lt_u32 s31, 64"); e(f"s_cbranch_scc1 {nm}_sl")
    e("s_nop 12"); e(f"s_branch {nm}_chk")
    k.label(f"{nm}_fin")
    e("s_nop 0")
    for r in range(12): e(f"v_mul_f32 v{OO+r}, v{OO+r}, v31")
    for r in range(6): e(f"v_cvt_pk_bf16_f32 v{P+r}, v{OO+2*r}, v{OO+2*r+1}")
    e(f"buffer_store_dwordx4 {vr(P,4)}, v39, s[12:15], s51 offen {SC}")
    e("s_mov_b32 exec_hi, 0")
    e(f"buffer_store_dwordx2 {vr(P+4,2)}, v38, s[12:15], s52 offen {SC}")
    e("s_mov_b64 exec, -1")
    e("v_lshlrev_b32 v3, 4, v1")
    k.vm = []; k.lg = []

def proj_c(k, tag, src, xin, xout, stout, final, cnt_code, word, st0):
    e = k.e
    ACC, RESID, A, BF = 24, 44, 76, 156
    NA0 = ENV('PA0', '8')
    ids_rt(k)
    e("s_lshl_b32 s19, s16, 2"); e("s_add_u32 s19, s19, s39")
    e("s_mul_i32 s24, s19, 20480")
    e("s_lshr_b32 s33, s17, 1"); e("s_mul_i32 s33, s33, 5120"); e("s_add_u32 s33, s33, s24")
    e("s_and_b32 s34, s17, 1"); e("s_lshl_b32 s35, s34, 11"); e("s_add_u32 s35, s35, s33")
    e("s_lshl_b32 s34, s34, 3"); e("s_add_u32 s36, s33, s34"); e("s_add_u32 s36, s36, 4096")
    e(f"s_add_u32 s37, s35, {xin}"); e(f"s_add_u32 s38, s36, {xin}")
    k.vmop(f"buffer_load_dwordx4 {vr(RESID,4)}, v3, s[12:15], s37 offen {SC}", "r")
    k.vmop(f"buffer_load_dwordx4 {vr(RESID+4,4)}, v3, s[12:15], s37 offen offset:1024 {SC}", "r")
    k.vmop(f"buffer_load_dwordx2 {vr(RESID+8,2)}, v3, s[12:15], s38 offen {SC}", "r")
    e(f"s_add_u32 s24, s24, {src}")
    for i in range(1, 5): e(f"s_add_u32 s{24+i}, s24, {4096*i}")
    e("v_lshrrev_b32 v9, 4, v1"); e("v_add_u32 v12, 61440, v3")
    wait_go(k, tag, word, cnt_code)
    k.stamp(st0)
    def ldA(n): k.vmop(f"buffer_load_dwordx4 {vr(A+4*n,4)}, v3, s[12:15], s{24+n//4} offen offset:{(n%4)*1024} {SC}", f"a{n}")
    for n in range(NA0): ldA(n)
    k.waitvm("r")
    for i in range(10):
        e(f"v_lshlrev_b32 v{ACC+2*i}, 16, v{RESID+i}"); e(f"v_and_b32 v{ACC+2*i+1}, 0xffff0000, v{RESID+i}")
    def rd(n, nf):
        off = n*5120 + nf*1024; b = 3
        if n >= 12: off -= 61440; b = 12
        k.dsop(f"ds_read_b128 {vr(BF+20*(n%2)+4*nf,4)}, v{b} offset:{off}", f"b{n}_{nf}")
    e("s_barrier")
    for n in range(2):
        for nf in range(5): rd(n, nf)
    for n in range(20):
        k.waitvm(f"a{n}")
        if n == 0: k.stamp(st0+1)
        for nf in range(5):
            if nf in (0, 2, 4): k.waitlg(f"b{n}_{min(nf+1,4)}")
            if n == 12 and nf == 0 and not final: e("s_barrier")
            e(f"v_mfma_f32_16x16x32_bf16 {vr(ACC+4*nf,4)}, {vr(BF+20*(n%2)+4*nf,4)}, {vr(A+4*n,4)}, {vr(ACC+4*nf,4)}")
            if n + 2 < 20: rd(n+2, nf)
            if nf == 0 and n + NA0 < 20: ldA(n + NA0)
    if not final: e("s_barrier")
    if final:
        e("v_and_b32 v16, 15, v1"); e("v_mul_u32_u24 v16, 1280, v16"); e("v_lshl_add_u32 v16, v9, 3, v16")
        e("s_mul_i32 s32, s19, 20480"); e("s_mul_i32 s31, s17, 160"); e("s_add_u32 s32, s32, s31")
        for nf in range(5):
            for r in range(2): e(f"v_cvt_pk_bf16_f32 v{RESID+2*nf+r}, v{ACC+4*nf+2*r}, v{ACC+4*nf+2*r+1}")
            e(f"buffer_store_dwordx2 {vr(RESID+2*nf,2)}, v16, s[60:63], s32 offen offset:{32*nf}")
    else:
        e(f"s_add_u32 s37, s35, {xout}"); e(f"s_add_u32 s38, s36, {xout}")
        e("s_lshl_b32 s32, s19, 10"); e("s_lshl_b32 s33, s17, 7"); e("s_add_u32 s32, s32, s33"); e(f"s_add_u32 s32, s32, {stout}")
        e("v_lshlrev_b32 v16, 3, v1")
        for i in range(10): e(f"v_cvt_pk_bf16_f32 v{RESID+i}, v{ACC+2*i}, v{ACC+2*i+1}")
        e(f"buffer_store_dwordx4 {vr(RESID,4)}, v3, s[12:15], s37 offen {SC}")
        e(f"buffer_store_dwordx4 {vr(RESID+4,4)}, v3, s[12:15], s37 offen offset:1024 {SC}")
        e(f"buffer_store_dwordx2 {vr(RESID+8,2)}, v3, s[12:15], s38 offen {SC}")
        e(f"v_add_f32 v18, v{ACC}, v{ACC+1}"); e(f"v_mul_f32 v19, v{ACC}, v{ACC}"); e(f"v_add_f32 v20, v{ACC+2}, v{ACC+3}"); e(f"v_mul_f32 v21, v{ACC+1}, v{ACC+1}")
        e(f"v_fmac_f32 v19, v{ACC+2}, v{ACC+2}"); e(f"v_fmac_f32 v21, v{ACC+3}, v{ACC+3}")
        for i in range(4, 20, 2):
            e(f"v_add_f32 v18, v18, v{ACC+i}"); e(f"v_fmac_f32 v19, v{ACC+i}, v{ACC+i}")
            e(f"v_add_f32 v20, v20, v{ACC+i+1}"); e(f"v_fmac_f32 v21, v{ACC+i+1}, v{ACC+i+1}")
        e("v_add_f32 v18, v18, v20"); e("v_add_f32 v19, v19, v21")
        for sw in ("v_permlane16_swap_b32", "v_permlane32_swap_b32"):
            e("v_mov_b32 v20, v18"); e("v_mov_b32 v21, v19"); e("s_nop 0")
            e(f"{sw} v18, v20"); e(f"{sw} v19, v21"); e("s_nop 0")
            e("v_add_f32 v18, v18, v20"); e("v_add_f32 v19, v19, v21")
        e("s_mov_b64 exec, 0xffff")
        e(f"buffer_store_dwordx2 v[18:19], v16, s[12:15], s32 offen {SC}")
    k.stamp(st0+2)

def proj_l(k, wimg, nxt, src, sig=None, done=0):
    e = k.e
    if nxt is not None:
        ids_mt(k)
        e("s_min_u32 s17, s17, 14" if nxt == WA_I else "s_nop 0")
        e("s_mul_i32 s58, s17, 163840"); e("s_add_u32 s58, s58, s45"); e(f"s_add_u32 s58, s58, {nxt}")
    ids_rt(k)
    e("s_mul_i32 s50, s17, 102400"); e("s_add_u32 s50, s50, s45"); e(f"s_add_u32 s50, s50, {wimg}")
    e("s_mul_i32 s51, s16, 81920"); e("s_lshl_b32 s52, s17, 2"); e("s_add_u32 s52, s52, s39"); e("s_mul_i32 s52, s52, 2560"); e("s_add_u32 s51, s51, s52"); e(f"s_add_u32 s51, s51, {src}")
    e("v_min_u32 v21, 39, v1"); e("v_lshlrev_b32 v21, 6, v21")
    w = Wdma(k, 25, 50, "o"); k.vm = []
    T1, T2 = ENV('T1', '4'), ENV('T2', '3')
    if sig:
        n = ENV('N1', '2'); w.rng(done, done + n); signal(k, "s1l", 0, 8, sig, n); done += n
    w.rng(done, 25, T1 if sig else 0)
    w2 = Wdma(k, 40, 58)
    if nxt is not None: w2.rng(32, 39, T1 if sig else 0)
    k.waitvm("o24")
    e("s_barrier")
    if ENV('ATOUCH', '1'):
        k.vmop("buffer_load_dword v20, v21, s[12:15], s51 offen")
    if nxt is not None:
        w2.rng(25, 32)
        e("s_barrier")
        w2.rng(0, 15)
        e("s_barrier")
        k.waitvm("w14")
        w2.rng(15, 25, T2)
    return w2

def stats16(k, s, rstd, mop, mask):
    e = k.e
    e(f"v_add_f32 v{s}, v{s}, v{s+2}"); e(f"v_add_f32 v{s+1}, v{s+1}, v{s+3}")
    k.allred16("v_add_f32", s, s+2); k.allred16("v_add_f32", s+1, s+3)
    k.allred32("v_add_f32", s, s+2); k.allred32("v_add_f32", s+1, s+3)
    stats_finish(k, s, s+1, s+2, rstd, s+3)
    split3(k, s+2, mop, 17, 'm', mask)
def usum(k, u, dst, t=17):
    e = k.e
    e(f"v_add_f32 v{u}, v{u}, v{u+1}"); e(f"v_add_f32 v{u+2}, v{u+2}, v{u+3}"); e(f"v_add_f32 v{u}, v{u}, v{u+2}")
    split3(k, u, dst, t, 'u')
def scale_pack(k, a, sc, dst):
    for r in range(4): k.e(f"v_mul_f32 v{a+r}, v{a+r}, v{sc(r)}")
    for r in range(2): k.e(f"v_cvt_pk_bf16_f32 v{dst+r}, v{a+2*r}, v{a+2*r+1}")
EX = 102400
TOKF = (0, 1, 2, 3, 6); FEAF = (4, 5, 7)

def atouch_pre(k, xin):
    e = k.e
    e("s_mul_i32 s51, s16, 163840"); e("s_lshl_b32 s52, s17, 2"); e("s_add_u32 s52, s52, s39"); e("s_mul_i32 s52, s52, 2560"); e("s_add_u32 s51, s51, s52"); e(f"s_add_u32 s51, s51, {xin}")
    e("v_min_u32 v21, 39, v1"); e("v_lshlrev_b32 v21, 6, v21")

def qkvb_pre(k):
    e = k.e
    ids_mt(k)
    e("v_and_b32 v5, 15, v1"); e("v_lshrrev_b32 v6, 4, v1")
    e("s_lshl_b32 s22, s16, 3"); e("s_lshl_b32 s19, s39, 1"); e("s_add_u32 s19, s19, s22")
    e("v_lshlrev_b32 v11, 3, v5"); e("v_lshl_add_u32 v11, v6, 8, v11")
    e("v_lshlrev_b32 v14, 4, v5")
    e("s_lshl_b32 s30, s17, 11"); e(f"s_add_u32 s30, s30, {U_B}")
    e("v_cmp_eq_u32 vcc, 0, v6"); e("v_lshlrev_b32 v10, 4, v6"); e("s_nop 0"); e("v_cndmask_b32 v4, 0, -1, vcc")

def qkvb_c(k, L, xin, stin, st0):
    e = k.e; nm = k.name
    DA = 5
    ACC, BF, AR, RSV = 64, 160, 192, 228
    acc = lambda b, F: ACC + 32*b + 4*F
    qkvb_pre(k)
    for F in range(8): k.vmop(f"buffer_load_dwordx4 {vr(64+4*F,4)}, v14, s[12:15], s30 offen offset:{256*F}", "u")
    e("s_lshl_b32 s28, s19, 10"); e(f"s_add_u32 s28, s28, {stin}")
    e("s_mul_i32 s25, s19, 20480"); e(f"s_add_u32 s25, s25, {xin}"); e("s_add_u32 s26, s25, 20480")
    e("v_add_u32 v41, 65536, v3"); e("v_add_u32 v42, 131072, v3")
    def c2():
        e("s_lshl_b32 s48, s16, 9"); e(f"s_add_u32 s48, s48, {C2(L)}")
        e(f"v_lshlrev_b32 v{PV_+1}, 8, v1"); e(f"v_lshlrev_b32 v{PV_+2}, 3, v1"); e(f"v_sub_u32 v{PV_+2}, 16, v{PV_+2}")
        e("s_cmp_eq_u32 s16, 0"); e("s_cselect_b64 s[56:57], 1, 3")
    wait_go(k, "p3", 1, c2)
    k.stamp(st0)
    def ldA(ks):
        for b in range(2):
            if ks % 4 == 0 and ks > 0: e(f"s_add_u32 s{25+b}, s{25+b}, 4096")
            k.vmop(f"buffer_load_dwordx4 {vr(AR+8*(ks%DA)+4*b,4)}, v3, s[12:15], s{25+b} offen offset:{(ks%4)*1024} {SC}", f"a{ks}")
    ldA(0)
    for b in range(2):
        for q in range(2): k.vmop(f"buffer_load_dwordx2 {vr(24+4*b+2*q,2)}, v11, s[12:15], s28 offen offset:{1024*b+128*q} {SC}", "st")
    for ks in range(1, DA-1): ldA(ks)
    MC, MP, MP1 = 64, 68, 72
    NEG = fbits(-1e30)
    def prolog():
        k.waitvm("st")
        for b in (1, 2): stats16(k, 20+4*b, 48+b, 52+2*b, 4)
        for F in range(8): usum(k, 64+4*F, 20+2*F)
        for b in (1, 2):
            for r in range(4):
                e(f"v_add_u32 v18, {4*r}, v10")
                k.dsop(f"ds_bpermute_b32 v{RSV+4*b+r}, v18, v{48+b}", "rs")
        e("v_lshlrev_b32 v17, 2, v6"); e("v_sub_u32 v17, v5, v17")
        e(f"v_mov_b32 v19, {NEG}")
        for r in range(4):
            e(f"v_subrev_u32 v18, {r}, v17"); e("v_and_b32 v16, 0x80000001, v18")
            e("v_cmp_eq_u32 vcc, 0, v16"); e(f"v_cndmask_b32 v{MC+r}, v19, 0, vcc")
            e("v_cmp_eq_u32 vcc, 0x80000000, v16"); e(f"v_cndmask_b32 v{MP+r}, v19, 0, vcc")
        e("s_cmp_eq_u32 s19, 0"); e(f"s_cselect_b32 s34, {NEG}, 0")
        for r in range(4): e(f"v_add_f32 v{MP1+r}, s34, v{MP+r}")
        e("v_cmp_eq_u32 vcc, 2, v6"); e("v_cndmask_b32 v38, 0, -1, vcc")
        e("v_cmp_eq_u32 vcc, 3, v6"); e("v_cndmask_b32 v39, 0, -1, vcc")
        for b in (1, 2): e(f"v_mul_f32 v{58+b}, {fbits(CSCALE)}, v{48+b}")
        e("v_cmp_gt_u32 vcc, 2, v6")
        for b in (1, 2): e(f"v_cndmask_b32 v{35+b}, v{48+b}, v{58+b}, vcc")
        e("s_mul_i32 s35, s18, 5120"); e(f"s_add_u32 s35, s35, {EX}"); e("v_add_u32 v9, s35, v3")
        e("s_mul_i32 s24, s19, 20480"); e(f"s_add_u32 s24, s24, {OBT}")
        e("s_lshl_b32 s51, s17, 10"); e("s_add_u32 s51, s51, s24"); e("s_add_u32 s52, s51, 20480")
        e("s_lshr_b32 s53, s17, 2"); e("s_add_u32 s53, s53, 16"); e("s_lshl_b32 s53, s53, 10"); e("s_add_u32 s53, s53, s24")
        e("s_and_b32 s54, s17, 1"); e("s_lshl_b32 s54, s54, 9"); e("s_add_u32 s53, s53, s54")
        e("s_bfe_u32 s54, s17, 0x10001"); e("s_lshl_b32 s54, s54, 3"); e("s_add_u32 s53, s53, s54"); e("s_add_u32 s54, s53, 20480")
    fl = k.capture(prolog)
    def rd(ks, F):
        off = ks*8192 + 1024*F; hi = off >> 16
        k.dsop(f"ds_read_b128 {vr(BF+4*F,4)}, v{(3,41,42)[hi]} offset:{off & 0xffff}", f"b{ks}_{F}")
    def mm(b, F, ks):
        a = vr(AR+8*(ks%DA)+4*(b-1), 4); w = vr(BF+4*F, 4); c = vr(acc(b,F), 4); ci = c if ks else "0"
        if F in TOKF: e(f"v_mfma_f32_16x16x32_bf16 {c}, {w}, {a}, {ci}")
        else:         e(f"v_mfma_f32_16x16x32_bf16 {c}, {a}, {w}, {ci}")
    e("s_barrier")
    for F in range(8): rd(0, F)
    for ks in range(20):
        k.waitvm(f"a{ks}")
        if ks == 0: k.stamp(st0+1)
        if ks == 6: e("s_barrier")
        for F in range(8):
            if F % 2 == 0: k.waitlg(f"b{ks}_{F+1}")
            mm(1, F, ks)
            if ks >= 1: k.fill(fl, 1)
            mm(2, F, ks)
            if ks + 1 < 20: rd(ks+1, F)
            if F == 0 and ks + DA - 1 < 20: ldA(ks + DA - 1)
            if ks >= 1 and F % 2: k.fill(fl, 1)
        if ks == 18:
            k.fill(fl, 1000)
            for b in (1, 2):
                for F in range(8):
                    U, M = vr(20+2*F, 2), vr(52+2*b, 2)
                    if F in TOKF: e(f"v_mfma_f32_16x16x16_bf16 {vr(acc(b,F),4)}, {U}, {M}, {vr(acc(b,F),4)}")
                    else:         e(f"v_mfma_f32_16x16x16_bf16 {vr(acc(b,F),4)}, {M}, {U}, {vr(acc(b,F),4)}")
    k.stamp(st0+2)
    e("s_barrier")
    if os.environ.get("FOC") == "s3": k.stamp(3)
    e("s_cmp_eq_u32 s18, 0"); e(f"s_cbranch_scc0 {nm}_ni"); lw_init(k); k.label(f"{nm}_ni")
    KO = lambda b, h: BF + 8*b + 4*h
    QO = lambda b, h: BF + 24 + 8*(b-1) + 4*h
    VO = lambda F, b: BF + 40 + 8*FEAF.index(F) + 2*b
    def kv_pack(b):
        for h in range(2): scale_pack(k, acc(b, 2+h), lambda r: 48+b, KO(b,h))
        scale_pack(k, acc(b, 6), lambda r: 35+b, KO(b,0)+2)
        for r in range(2): e(f"v_mov_b32 v{KO(b,1)+2+r}, v{KO(b,0)+2+r}")
        for F in FEAF: scale_pack(k, acc(b, F), lambda r: RSV+4*b+r, VO(F,b))
    kv_pack(2)
    for h in range(2): e(f"ds_write_b128 v9, {vr(KO(2,h),4)} offset:{5120+1024*h}")
    for n, F in enumerate(FEAF): e(f"ds_write_b64 v9, {vr(VO(F,2),2)} offset:{5120+2048+1024*n}")
    kv_pack(1)
    e("s_waitcnt lgkmcnt(0)"); e("s_barrier")
    if os.environ.get("FOC") == "s3": k.stamp(4)
    for h in range(2): e(f"ds_read_b128 {vr(KO(0,h),4)}, v9 offset:{1024*h}")
    for n, F in enumerate(FEAF): e(f"ds_read_b64 {vr(VO(F,0),2)}, v9 offset:{2048+1024*n}")
    for b in (1, 2):
        for h in range(2): scale_pack(k, acc(b, h), lambda r: 58+b, QO(b,h))
        for r in range(2):
            e(f"v_mov_b32 v{40+2*r}, v{KO(b,0)+2+r}"); e(f"v_mov_b32 v{41+2*r}, v{KO(b,0)+2+r}")
        for r in range(2): e(f"v_permlane32_swap_b32 v{40+2*r}, v{41+2*r}")
        e("s_nop 0")
        for h in range(2):
            for r in range(2): e(f"v_and_b32 v{QO(b,h)+2+r}, v{40+2*r}, v{38+h}")
    e("s_waitcnt lgkmcnt(0)")
    units = [(b, h) for b in (1, 2) for h in range(2)]
    SU = lambda i: 20 + 8*i if i < 2 else 76 + 8*(i-2)
    TU = lambda i: ACC + 32 + 4*i
    PU = lambda i: ACC + 48 + 4*i
    OU = lambda i: ACC + 64 + 8*i
    for i, (b, h) in enumerate(units):
        e(f"v_mfma_f32_16x16x32_bf16 {vr(SU(i),4)}, {vr(KO(b-1,h),4)}, {vr(QO(b,h),4)}, {vr(MP1 if b == 1 else MP,4)}")
        e(f"v_mfma_f32_16x16x32_bf16 {vr(SU(i)+4,4)}, {vr(KO(b,h),4)}, {vr(QO(b,h),4)}, {vr(MC,4)}")
    def allred(op):
        for sw in ("v_permlane16_swap_b32", "v_permlane32_swap_b32"):
            for i in range(4): e(f"v_mov_b32 v{TU(i)+1}, v{TU(i)}")
            for i in range(4): e(f"{sw} v{TU(i)}, v{TU(i)+1}")
            for i in range(4): e(f"{op} v{TU(i)}, v{TU(i)}, v{TU(i)+1}")
    for i in range(4):
        s = SU(i)
        e(f"v_max3_f32 v{TU(i)}, v{s}, v{s+1}, v{s+2}"); e(f"v_max3_f32 v{TU(i)}, v{s+3}, v{s+4}, v{TU(i)}")
        e(f"v_max3_f32 v{TU(i)}, v{s+5}, v{s+6}, v{TU(i)}"); e(f"v_max_f32 v{TU(i)}, v{s+7}, v{TU(i)}")
    allred("v_max_f32")
    for i in range(4):
        for r in range(8): e(f"v_sub_f32 v{SU(i)+r}, v{SU(i)+r}, v{TU(i)}")
    for i in range(4):
        for r in range(8): e(f"v_exp_f32 v{SU(i)+r}, v{SU(i)+r}")
    for i in range(4):
        s = SU(i)
        e(f"v_add_f32 v{TU(i)}, v{s}, v{s+1}")
        for r in range(2, 8): e(f"v_add_f32 v{TU(i)}, v{TU(i)}, v{s+r}")
    allred("v_add_f32")
    for i in range(4): e(f"v_rcp_f32 v{TU(i)}, v{TU(i)}")
    for i in range(4):
        for r in range(8): e(f"v_mul_f32 v{SU(i)+r}, v{SU(i)+r}, v{TU(i)}")
        for r in range(4): e(f"v_cvt_pk_bf16_f32 v{PU(i)+r}, v{SU(i)+2*r}, v{SU(i)+2*r+1}")
    for i, (b, h) in enumerate(units):
        e(f"v_mfma_f32_16x16x32_bf16 {vr(OU(i),4)}, {vr(VO(4+h,b-1),4)}, {vr(PU(i),4)}, 0")
        e(f"v_mfma_f32_16x16x32_bf16 {vr(OU(i)+4,4)}, {vr(VO(7,b-1),4)}, {vr(PU(i),4)}, 0")
    e("v_cmp_eq_u32 vcc, 0, v6")
    for bi in range(2):
        o0, o1 = OU(2*bi), OU(2*bi+1); d = 40 + 8*bi
        e(f"v_cvt_pk_bf16_f32 v{d}, v{o0}, v{o0+1}"); e(f"v_cvt_pk_bf16_f32 v{d+1}, v{o0+2}, v{o0+3}")
        e(f"v_cvt_pk_bf16_f32 v{d+2}, v{o1}, v{o1+1}"); e(f"v_cvt_pk_bf16_f32 v{d+3}, v{o1+2}, v{o1+3}")
        e(f"buffer_store_dwordx4 {vr(d,4)}, v3, s[12:15], s{51+bi} offen {SC}")
        for r in range(4): e(f"v_cndmask_b32 v{o0+4+r}, v{o1+4+r}, v{o0+4+r}, vcc")
        e(f"v_cvt_pk_bf16_f32 v{d+4}, v{o0+4}, v{o0+5}"); e(f"v_cvt_pk_bf16_f32 v{d+5}, v{o0+6}, v{o0+7}")
    e("s_mov_b32 exec_hi, 0")
    for bi in range(2): e(f"buffer_store_dwordx2 {vr(44+8*bi,2)}, v3, s[12:15], s{53+bi} offen {SC}")

def qkvb_l(k, L, xin, stin, w):
    e = k.e; nm = k.name
    qkvb_pre(k)
    e("s_max_u32 s22, s22, 1"); e("s_sub_u32 s22, s22, 1")
    e("s_mul_i32 s24, s22, 20480"); e(f"s_add_u32 s24, s24, {xin}")
    e("s_lshl_b32 s27, s22, 10"); e(f"s_add_u32 s27, s27, {stin}")
    e("s_min_u32 s40, s39, 2")
    e("s_cmp_lt_u32 s39, 2"); e("s_cselect_b32 s41, 2, 4"); e("s_cselect_b32 s42, 4, 5")
    e("s_add_u32 s41, s41, s40"); e("s_add_u32 s42, s42, s40")
    e("s_lshl_b32 s43, s41, 8"); e("s_add_u32 s43, s43, s30"); e("s_lshl_b32 s44, s42, 8"); e("s_add_u32 s44, s44, s30")
    e("s_lshl_b32 s41, s41, 10"); e("s_lshl_b32 s42, s42, 10")
    for i in range(3):
        e(f"v_add_u32 v{40+i}, s41, v3"); e(f"v_add_u32 v{43+i}, s42, v3")
        if i: e(f"v_add_u32 v{40+i}, {65536*i}, v{40+i}"); e(f"v_add_u32 v{43+i}, {65536*i}, v{43+i}")
    atouch_pre(k, xin)
    e("s_barrier")
    if ENV('ATOUCH', '1'): k.vmop("buffer_load_dword v20, v21, s[12:15], s51 offen")
    w.one(39)
    e("s_cmp_eq_u32 s39, 3"); e(f"s_cbranch_scc1 {nm}_h3")
    for q in range(2): k.vmop(f"buffer_load_dwordx2 {vr(24+2*q,2)}, v11, s[12:15], s27 offen offset:{128*q} {SC}", "st")
    k.vmop("buffer_load_dwordx4 v[64:67], v14, s[12:15], s43 offen", "st")
    k.vmop("buffer_load_dwordx4 v[68:71], v14, s[12:15], s44 offen", "st")
    for ks in range(20):
        if ks % 4 == 0 and ks: e("s_add_u32 s24, s24, 4096")
        k.vmop(f"buffer_load_dwordx4 {vr(128+4*ks,4)}, v3, s[12:15], s24 offen offset:{(ks%4)*1024} {SC}", f"h{ks}")
        if ks == 3: k.waitvm("w39"); e("s_barrier")
    k.waitvm("st")
    stats16(k, 24, 48, 52, 4); usum(k, 64, 20); usum(k, 68, 22)
    for r in range(4):
        e(f"v_add_u32 v18, {4*r}, v10")
        k.dsop(f"ds_bpermute_b32 v{72+r}, v18, v48", "r")
    e("v_mfma_f32_16x16x16_bf16 v[80:83], v[20:21], v[52:53], 0")
    e("v_mfma_f32_16x16x16_bf16 v[84:87], v[52:53], v[22:23], 0")
    def rd(ks):
        off = ks*8192; hi = off >> 16; fb = 96 + 8*(ks%3)
        k.dsop(f"ds_read_b128 {vr(fb,4)}, v{40+hi} offset:{off & 0xffff}", f"r{ks}")
        k.dsop(f"ds_read_b128 {vr(fb+4,4)}, v{43+hi} offset:{off & 0xffff}", f"r{ks}")
    rd(0); rd(1)
    for ks in range(20):
        if ks + 2 < 20: rd(ks+2)
        k.waitvm(f"h{ks}"); k.waitlg(f"r{ks}")
        fb = 96 + 8*(ks%3)
        e(f"v_mfma_f32_16x16x32_bf16 v[80:83], {vr(fb,4)}, {vr(128+4*ks,4)}, v[80:83]")
        e(f"v_mfma_f32_16x16x32_bf16 v[84:87], {vr(128+4*ks,4)}, {vr(fb+4,4)}, v[84:87]")
    e("s_lshl_b32 s41, s39, 10"); e("s_cmp_lt_u32 s39, 2"); e("s_cselect_b32 s41, s41, 8"); e("s_cselect_b32 s42, s41, 1032")
    e("s_lshl_b32 s40, s40, 10")
    e(f"v_add_u32 v9, {EX}, v3"); e("v_add_u32 v12, s41, v9"); e("v_add_u32 v13, s42, v9"); e("v_add_u32 v15, s40, v9")
    scale_pack(k, 80, lambda r: 48, 88); scale_pack(k, 84, lambda r: 72+r, 90)
    e("s_barrier")
    e("ds_write_b64 v12, v[88:89]"); e("ds_write_b64 v13, v[88:89]"); e("ds_write_b64 v15, v[90:91] offset:2048")
    e("s_waitcnt lgkmcnt(0)")
    e(f"s_branch {nm}_h4")
    k.label(f"{nm}_h3")
    e("s_waitcnt vmcnt(0)"); e("s_barrier"); e("s_barrier")
    k.label(f"{nm}_h4")
    e("s_barrier")
    k.vm = []; k.lg = []

def one(k, target):
    k.e(f"v_mov_b32 v{PV_+1}, 0"); k.e(f"v_mov_b32 v{PV_+2}, {target}"); k.e("s_mov_b64 s[56:57], 1")

def qkva_c(k, L, xin, stin, img, cnt, wbar, st0):
    e = k.e; nm = k.name
    DA = 5
    ACC, BF, AR, RS = 64, 128, 160, 200
    e("v_and_b32 v10, 31, v1"); e("v_lshrrev_b32 v4, 5, v1"); e("v_and_b32 v5, 15, v1")
    e("s_lshl_b32 s19, s16, 2"); e("s_add_u32 s19, s19, s18")
    e("v_lshlrev_b32 v12, 4, v10")
    e("s_lshl_b32 s31, s17, 11"); e(f"s_add_u32 s31, s31, {U_A}")
    for jf in range(4): k.vmop(f"buffer_load_dwordx4 {vr(24+4*jf,4)}, v12, s[12:15], s31 offen offset:{512*jf}", "u")
    e("v_bfe_u32 v7, v1, 4, 1"); e("v_mul_u32_u24 v8, 20480, v7"); e("v_lshl_add_u32 v8, v4, 8, v8"); e("v_lshl_add_u32 v8, v5, 4, v8")
    e("v_lshlrev_b32 v11, 10, v7"); e("v_lshl_add_u32 v11, v4, 9, v11"); e("v_lshl_add_u32 v11, v5, 3, v11")
    e("s_lshl_b32 s30, s19, 11"); e(f"s_add_u32 s30, s30, {stin}")
    e("s_mul_i32 s24, s19, 40960"); e(f"s_add_u32 s24, s24, {xin}")
    e("v_add_u32 v41, 65536, v3"); e("v_add_u32 v42, 131072, v3")
    e("v_subrev_u32 v58, 1, v4"); e("v_not_b32 v59, v58")
    sc = SC if cnt is not None else ""
    if cnt is not None:
        def c4(): one(k, 16); e("s_lshl_b32 s48, s16, 8"); e(f"s_add_u32 s48, s48, {cnt}")
        wait_go(k, "p5", 1, c4)
    k.stamp(st0)
    def ldA(ks):
        if ks % 4 == 0 and ks > 0: e("s_add_u32 s24, s24, 4096")
        for u in range(2):
            k.vmop(f"buffer_load_dwordx4 {vr(AR+8*(ks%DA)+4*u,4)}, v8, s[12:15], s24 offen offset:{(ks%4)*1024+512*u} {sc}", f"a{ks}")
    ldA(0)
    for q in range(4): k.vmop(f"buffer_load_dwordx2 {vr(16+2*q,2)}, v11, s[12:15], s30 offen offset:{128*q} {sc}", "st")
    for ks in range(1, DA-1): ldA(ks)
    def prolog(vmode):
        k.waitvm("st")
        e("v_add_f32 v16, v16, v18"); e("v_add_f32 v17, v17, v19"); e("v_add_f32 v20, v20, v22"); e("v_add_f32 v21, v21, v23")
        e("v_add_f32 v16, v16, v20"); e("v_add_f32 v17, v17, v21")
        k.allred32("v_add_f32", 16, 18); k.allred32("v_add_f32", 17, 18)
        stats_finish(k, 16, 17, 46, 47, 18)
        split3(k, 46, 48, 18, 'm', 58)
        for jf in range(4): usum(k, 24+4*jf, 50+2*jf, 18)
        if vmode:
            e("v_lshlrev_b32 v16, 4, v4")
            for r in range(16):
                e(f"v_add_u32 v17, {(8*(r//4) + r%4)*4}, v16")
                k.dsop(f"ds_bpermute_b32 v{RS+r}, v17, v47", "rs")
            e("s_sub_u32 s35, s17, 10"); e("s_lshl_b32 s35, s35, 7")
            e("s_mul_i32 s36, s19, 2560"); e(f"s_add_u32 s33, s36, {KVIMG[img]+1280}")
            e("v_mul_u32_u24 v20, 320, v4")
            for jf in range(4):
                e(f"v_add_u32 v16, s35, v10")
                if jf: e(f"v_add_u32 v16, {32*jf}, v16")
                e("v_mul_u32_u24 v17, 52429, v16"); e("v_lshrrev_b32 v17, 20, v17")
                e("v_mul_u32_u24 v18, 20, v17"); e("v_sub_u32 v18, v16, v18")
                e("v_mul_u32_u24 v17, 163840, v17"); e("v_lshl_add_u32 v17, v18, 4, v17")
                e(f"v_add_u32 v{24+jf}, v17, v20")
        else:
            e("s_cmp_ge_u32 s17, 5")
            e(f"s_cselect_b32 s33, {QI}, 0"); e(f"s_cselect_b32 s34, 1.0, {fbits(CSCALE)}"); e("s_cselect_b32 s35, 5, 0"); e("s_cselect_b32 s37, 1, 0")
            e("v_mul_f32 v47, s34, v47")
            e(f"s_add_u32 s33, s33, {QIMG[img]}")
            e("s_sub_u32 s35, s17, s35")
            e("s_mul_i32 s36, s19, 1280"); e("s_lshl_b32 s36, s36, s37"); e("s_add_u32 s33, s33, s36")
            e("s_lshl_b32 s34, 81920, s37")
            e("v_lshlrev_b32 v16, 4, v10"); e("v_lshlrev_b32 v17, 3, v10")
            e("v_lshl_add_u32 v18, v4, 9, v16")
            e("s_sub_u32 s36, s34, 512"); e("v_and_b32 v19, s36, v59"); e("v_add_u32 v19, v19, v16")
            e("s_mov_b32 s52, -1"); e("s_mov_b32 s53, 0"); e("s_mov_b32 s54, 0"); e("s_mov_b32 s55, -1")
    e("s_cmp_ge_u32 s17, 10"); e(f"s_cbranch_scc1 {nm}_qv")
    vm_save = list(k.vm)
    def mainloop(vmode):
        acc = lambda jf: vr(ACC+16*jf, 16)
        fl = k.capture(lambda: prolog(vmode))
        def rd(ks, f):
            off = ks*8192 + 1024*f; hi = off >> 16
            k.dsop(f"ds_read_b128 {vr(BF+4*f,4)}, v{(3,41,42)[hi]} offset:{off & 0xffff}", f"b{ks}_{f}")
        e("s_barrier")
        for f in range(8): rd(0, f)
        for ks in range(20):
            k.waitvm(f"a{ks}")
            if ks == 0: k.stamp(st0+1)
            if ks + 1 in wbar: e("s_barrier")
            for f in range(8):
                u, jf = f//4, f%4
                if f % 2 == 0: k.waitlg(f"b{ks}_{f+1}")
                a = vr(AR+8*(ks%DA)+4*u, 4); b = vr(BF+4*f, 4); c = acc(jf) if (ks or u) else "0"
                if vmode: e(f"v_mfma_f32_32x32x16_bf16 {acc(jf)}, {a}, {b}, {c}")
                else:     e(f"v_mfma_f32_32x32x16_bf16 {acc(jf)}, {b}, {a}, {c}")
                if ks + 1 < 20: rd(ks+1, f)
                if f == 0 and ks + DA - 1 < 20: ldA(ks + DA - 1)
                if ks >= 1: k.fill(fl, 2)
            if ks == 15:
                k.fill(fl, 1000)
                for jf in range(4):
                    if vmode: e(f"v_mfma_f32_32x32x8_bf16 {acc(jf)}, v[48:49], {vr(50+2*jf,2)}, {acc(jf)}")
                    else:     e(f"v_mfma_f32_32x32x8_bf16 {acc(jf)}, {vr(50+2*jf,2)}, v[48:49], {acc(jf)}")
        k.stamp(st0+2)
    mainloop(False)
    for v in range(1, 5):
        e(f"s_cmp_eq_u32 s35, {v}"); e(f"s_cbranch_scc1 {nm}_e{v}")
    QSC = os.environ.get("QSC", "sc1")
    for v in range(5):
        if v: k.label(f"{nm}_e{v}")
        e("s_nop 7")
        for jf in range(4):
            for r in range(16): e(f"v_mul_f32 v{ACC+16*jf+r}, v{ACC+16*jf+r}, v47")
            for r in range(8): e(f"v_cvt_pk_bf16_f32 v{BF+8*jf+r}, v{ACC+16*jf+2*r}, v{ACC+16*jf+2*r+1}")
            for a2 in range(2):
                x = BF+8*jf+4*a2
                e(f"v_permlane32_swap_b32 v{x}, v{x+2}"); e(f"v_permlane32_swap_b32 v{x+1}, v{x+3}")
            for a2 in range(2):
                x = BF+8*jf+4*a2
                G = [32*v+8*jf+4*a2, 32*v+8*jf+4*a2+2]
                def main(g):
                    h = g // 5; r = g % 5
                    return h, (r // 2 if h % 2 == 0 else (r - 1) // 2)
                st = [g % 10 == 4 for g in G]
                def hoff(dst, h, c):
                    if h: e(f"s_mul_i32 s{dst}, s34, {h}"); e(f"s_add_u32 s{dst}, s{dst}, s33")
                    else: e(f"s_mov_b32 s{dst}, s33")
                    if c: e(f"s_add_u32 s{dst}, s{dst}, {c}")
                if not any(st):
                    (h0, p0), (h1, p1) = main(G[0]), main(G[1])
                    hoff(36, h0, 512*p0)
                    if h0 == h1: e(f"buffer_store_dwordx4 {vr(x,4)}, v18, s[12:15], s36 offen {QSC}")
                    else:        e(f"buffer_store_dwordx4 {vr(x,4)}, v19, s[12:15], s36 offen {QSC}")
                    assert (h0 == h1 and (p0, p1) == (0, 1)) or (h1 == h0 + 1 and (p0, p1) == (1, 0))
                else:
                    m = st.index(False); q = 1 - m
                    h, p = main(G[m]); hoff(36, h, 512*p); hoff(37, G[q] // 5, 1024); e("s_add_u32 s38, s37, s34")
                    e(f"s_mov_b64 exec, s[{52+2*m}:{53+2*m}]")
                    e(f"buffer_store_dwordx4 {vr(x,4)}, v16, s[12:15], s36 offen {QSC}")
                    e(f"s_mov_b64 exec, s[{52+2*q}:{53+2*q}]")
                    e(f"buffer_store_dwordx2 {vr(x,2)}, v17, s[12:15], s37 offen {QSC}")
                    e(f"buffer_store_dwordx2 {vr(x+2,2)}, v17, s[12:15], s38 offen {QSC}")
                    e("s_mov_b64 exec, -1")
        e(f"s_branch {nm}_fin5")
    k.label(f"{nm}_qv"); k.vm = vm_save; k.lg = []
    mainloop(True)
    VSC = os.environ.get("VSC", "sc1")
    for jf in range(4):
        for r in range(16): e(f"v_mul_f32 v{ACC+16*jf+r}, v{ACC+16*jf+r}, v{RS+r}")
        for r in range(8): e(f"v_cvt_pk_bf16_f32 v{BF+8*jf+r}, v{ACC+16*jf+2*r}, v{ACC+16*jf+2*r+1}")
        for u in range(2):
            e(f"buffer_store_dwordx4 {vr(BF+8*jf+4*u,4)}, v{24+jf}, s[12:15], s33 offen offset:{640*u} {VSC}")
    k.label(f"{nm}_fin5")

def k_qkva():
    k = KB("qkva_kernel"); e = k.e
    common(k); ids_mt(k)
    e("s_cmp_ge_u32 s17, 15"); e("s_cbranch_scc1 qkva_kernel_end")
    e("v_lshlrev_b32 v3, 4, v1")
    e("s_mul_i32 s50, s17, 163840"); e("s_add_u32 s50, s50, s45"); e(f"s_add_u32 s50, s50, {WA_I}")
    e("s_waitcnt lgkmcnt(0)")
    k.stamp(2); k.srd(12, 6, WS_END)
    e("s_cmp_ge_u32 s18, 4"); e("s_cbranch_scc1 qkva_kernel_ld")
    WB = [1, 2, 4, 6, 8, 10, 12, 14, 16, 18]
    qkva_c(k, 0, XT[0], ST[0], 0, None, WB, 3)
    k.stamp(6); k.dump(8)
    e("s_endpgm")
    k.label("qkva_kernel_ld"); k.vm = []; k.lg = []
    w = Wdma(k, 40); LA = ENV('QLA', '5')
    bars = [0] + WB
    for i, s_ in enumerate(bars):
        last = (bars[i+1] if i + 1 < len(bars) else 20) - 1
        w.go(2*(last+1) + (LA if i else 2))
        k.waitvm(f"w{2*last+1}"); e("s_barrier")
    k.label("qkva_kernel_end"); e("s_endpgm")
    return k.text(216, 216)

def k_chain(name, L):
    final = L == 1
    k = KB(name); e = k.e
    common(k)
    ph_attn(k, L)
    k.stamp(5)
    xa, xb, xc = XT[2*L], XT[2*L+1], XT[2]
    def a1():
        e("s_lshl_b32 s48, s17, 3"); e("s_and_b32 s49, s16, 1"); e("s_add_u32 s48, s48, s49"); e("s_lshl_b32 s48, s48, 8"); e(f"s_add_u32 s48, s48, {C1(L)}")
        e(f"v_lshlrev_b32 v{PV_+1}, 9, v1"); e("s_mov_b64 s[56:57], 15")
    e("s_cmp_ge_u32 s18, 4"); e(f"s_cbranch_scc1 {name}_ld")
    signal(k, "s1", 0, 8, a1)
    def c1():
        e("s_lshl_b32 s48, s16, 9"); e(f"s_add_u32 s48, s48, {C1(L)}")
        e(f"v_lshlrev_b32 v{PV_+1}, 8, v1"); e(f"v_mov_b32 v{PV_+2}, 16"); e("s_mov_b64 s[56:57], 3")
    proj_c(k, "p2", OT, xa, xb, ST[2*L+1], False, c1, 0, 6)
    def a2():
        e("s_lshr_b32 s48, s16, 1"); e("s_lshl_b32 s48, s48, 9"); e(f"s_add_u32 s48, s48, {C2(L)}")
        e(f"v_mul_u32_u24 v{PV_+1}, 768, v1"); e("s_bitcmp1_b32 s16, 0"); e("s_cselect_b64 s[56:57], 3, 1")
    signal(k, "s2", 1, 4, a2)
    qkvb_c(k, L, xb, ST[2*L+1], 9)
    def a3(): one(k, 0); e("s_lshl_b32 s48, s16, 8"); e(f"s_add_u32 s48, s48, {C3(L)}")
    signal(k, "s3", 0, 4, a3)
    def c3(): one(k, 16); e("s_lshr_b32 s48, s16, 1"); e("s_lshl_b32 s48, s48, 8"); e(f"s_add_u32 s48, s48, {C3(L)}")
    if final:
        proj_c(k, "p4", OBT, xb, None, None, True, c3, 0, 12)
    else:
        S_ = k.stamp
        proj_c(k, "p4", OBT, xb, xc, ST[2], False, c3, 0, 12)
        def a4(): one(k, 0); e("s_lshr_b32 s48, s16, 1"); e("s_lshl_b32 s48, s48, 8"); e(f"s_add_u32 s48, s48, {C4(L)}")
        signal(k, "s4", 1, 4, a4)
        ids_mt(k)
        e("s_cmp_ge_u32 s17, 15"); e(f"s_cbranch_scc1 {name}_dmp")
        if os.environ.get("FOC") == "p5": st5 = 2
        else: k.stamp = lambda i: None; st5 = 0
        qkva_c(k, L, xc, ST[2], 1, C4(L), [7], st5)
        k.stamp = S_
    k.label(f"{name}_dmp")
    k.dump(15)
    e("s_endpgm")
    k.label(f"{name}_ld"); k.vm = []; k.lg = []
    w = proj_l(k, WOA_I, WB_I, OT, a1, EARLY)
    qkvb_l(k, L, xb, ST[2*L+1], w)
    w = proj_l(k, WOB_I, None if final else WA_I, OBT)
    if not final:
        ids_mt(k)
        e("s_cmp_ge_u32 s17, 15"); e(f"s_cbranch_scc1 {name}_end")
        atouch_pre(k, xc)
        e("s_barrier")
        if ENV('ATOUCH', '1'): e("buffer_load_dword v20, v21, s[12:15], s51 offen")
        w.one(39); e("s_waitcnt vmcnt(0)"); e("s_barrier")
    k.label(f"{name}_end"); e("s_endpgm")
    return k.text(244, 244)

def build():
    L = [("prep_kernel", 316, 256, 40960), ("qkva_kernel", 256, 512, 163840), ("chaina_kernel", 256, 512, 163840), ("chainb_kernel", 256, 512, 163840)]
    hdr = open("cdna_kernels/" + NAME + ".s.ref").read().split("; Override launch")[0]
    out = hdr
    for n, g, b, lds in L: out += f"; @launch kernel={n} grid=({g},1,1) block=({b},1,1) lds={lds}\n"
    out += '.amdgcn_target "amdgcn-amd-amdhsa--gfx950"\n'
    out += k_prep() + k_qkva() + k_chain("chaina_kernel", 0) + k_chain("chainb_kernel", 1)
    return out

if __name__ == "__main__":
    dst = sys.argv[1] if len(sys.argv) > 1 else "cdna_kernels/" + NAME + ".s"
    open(dst, "w").write(build())
    print("wrote", dst)
```

```python
import sys, math
from lint import lint, fix

NAME = "interleave_layers__softmax_full_mha__sliding_local_dilated__prompt"
S, D, H, DH = 2048, 640, 32, 20
XS = S*D*2
IMG = H*64*2560
QI = H*64*1280
TOUCH0 = 0
OT = 0; OBT = XS
XT = [None, 2*XS, 3*XS, 2*XS]
ST = [None, 4*XS, 4*XS + S*64, 4*XS]
QIMG = [None, 4*XS + 2*S*64]; KVIMG = [None, QIMG[1] + QI]
TOUCH1 = QIMG[1]
QIMG[0] = KVIMG[1] + IMG; KVIMG[0] = QIMG[0] + QI
XT[0] = KVIMG[0] + IMG; ST[0] = XT[0] + XS
U_A  = ST[0] + S*64
U_B  = U_A + 32768
CNT  = U_B + 32768
WA_I = CNT + 131072
WOA_I = WA_I + 15*163840
WB_I = WOA_I + 819200
WOB_I = WB_I + 16*163840
STAMPS = WOB_I + 819200
WS_END = STAMPS + 16*262144
def C1(L): return CNT + L*65536
def C2(L): return C1(L) + 64*256
def C3(L): return C2(L) + 34*256
def C4(L): return C3(L) + 16*256
import os
STAMP = int(os.environ.get("STAMP", "0"))
ATTN_WAVES = 8
AV = os.environ.get("AV", "")
CSCALE = (DH ** -0.5) * math.log2(math.e)
import struct
def fbits(x): return "0x%08x" % struct.unpack("<I", struct.pack("<f", x))[0]

FM = [(0,16),(32,48),(80,96),(112,128),(64,144)]
def FX(ks, t):
    return 160*(ks//5) + FM[ks%5][t]

class KB:
    def __init__(s, name):
        s.name = name; s.L = []; s.vm = []; s.lg = []; s.cap = None
    def e(s, line):
        if s.cap is not None: s.cap.append(('e', line, None))
        else: s.L.append("    " + line)
    def capture(s, fn):
        s.cap = []; fn(); c = s.cap; s.cap = None
        return [x for x in c if not (x[0] == 'e' and x[1].startswith('s_nop'))]
    def fill(s, lst, n=1):
        for _ in range(n):
            if not lst: return
            kind, a, b = lst.pop(0)
            if kind == 'e':
                s.e(a)
                if a.startswith('s_cmp'):
                    while lst and lst[0][0] == 'e' and lst[0][1].startswith('s_cselect'): s.e(lst.pop(0)[1])
            elif kind == 'ds': s.dsop(a, b)
            elif kind == 'wvm': s.waitvm(a)
            elif kind == 'wlg': s.waitlg(a)
    def c(s, txt): s.L.append("    ; " + txt)
    def label(s, l): s.L.append(l + ":")
    def vmop(s, line, tag=None): s.e(line); s.vm.append(tag); assert len(s.vm) <= 63, (s.name, len(s.vm))
    def dsop(s, line, tag=None):
        if s.cap is not None: s.cap.append(('ds', line, tag)); return
        s.e(line); s.lg.append(tag)
    def _n(s, lst, tag):
        idx = max(i for i, t in enumerate(lst) if t == tag)
        return idx
    def waitvm(s, tag):
        if s.cap is not None: s.cap.append(('wvm', tag, None)); return
        if tag not in s.vm: return
        i = s._n(s.vm, tag); n = len(s.vm) - 1 - i
        s.e(f"s_waitcnt vmcnt({n})"); s.vm = s.vm[i+1:]
    def waitlg(s, tag):
        if s.cap is not None: s.cap.append(('wlg', tag, None)); return
        if tag not in s.lg: return
        i = s._n(s.lg, tag); n = len(s.lg) - 1 - i
        if n > 15: n = 15; i = len(s.lg) - 1 - n
        s.e(f"s_waitcnt lgkmcnt({n})"); s.lg = s.lg[i+1:]
    def waitall(s):
        s.e("s_waitcnt vmcnt(0) lgkmcnt(0)"); s.vm = []; s.lg = []
    def srd(s, r, base, nbytes):
        s.e(f"s_mov_b32 s{r}, s{base}")
        s.e(f"s_and_b32 s{r+1}, s{base+1}, 0xffff")
        s.e(f"s_mov_b32 s{r+2}, {nbytes}")
        s.e(f"s_mov_b32 s{r+3}, 0x20000")
    def stamp(s, i):
        if not STAMP: return
        op = "s_memrealtime" if os.environ.get("RT") else "s_memtime"
        s.e(f"{op} s[{64+2*i}:{65+2*i}]" if i < 10 else f"{op} s[{72+2*i}:{73+2*i}]")
    def rstamp(s, i):
        if not STAMP: return
        s.e(f"s_memrealtime s[{64+2*i}:{65+2*i}]")
    def dump(s, n=8, slot=None, wave="s18"):
        if not STAMP: return
        e = s.e
        if os.environ.get("DBG"):
            idx, base, slots = {"fron": (0, 0, [1, 3, 4]), "chai": (1, 4, [1, 3, 5, 8, 11]) if s.name[5] == "a" else (2, 10, [1, 3, 5, 8, 11])}[s.name[:4]]
            s.dbgn = getattr(s, "dbgn", 0) + 1
            lab = f"{s.name}_dbg{s.dbgn}"
            e("s_cmp_eq_u32 s2, 0"); e(f"s_cbranch_scc0 {lab}"); e(f"s_cmp_eq_u32 {wave}, 0"); e(f"s_cbranch_scc0 {lab}")
            e("s_load_dwordx2 s[84:85], s[0:1], 56"); e("s_waitcnt vmcnt(0)"); e("s_memrealtime s[86:87]"); e("s_waitcnt lgkmcnt(0)")
            e("s_mov_b64 exec, 1"); e("v_mov_b32 v0, 0"); e(f"s_mov_b32 s83, {STAMPS}")
            for q, i in enumerate(slots):
                e(f"v_mov_b32 v1, s{64+2*i if i < 10 else 72+2*i}"); e(f"buffer_store_dword v1, v0, s[12:15], s83 offen offset:{4*(base+q)} sc1")
            e("v_mov_b32 v1, s86"); e(f"buffer_store_dword v1, v0, s[12:15], s83 offen offset:{4*(base+len(slots))} sc1")
            if idx == 2:
                e("s_waitcnt vmcnt(0)"); e("s_mov_b64 exec, 0xffff"); e("v_mbcnt_lo_u32_b32 v0, -1, 0"); e("v_lshlrev_b32 v0, 2, v0")
                e("buffer_load_dword v1, v0, s[12:15], s83 offen sc1"); s.srd(88, 84, 256); e("s_waitcnt vmcnt(0)")
                e("buffer_store_dword v1, v0, s[88:91], 0 offen")
                e(f"s_sub_u32 s84, s84, {512*idx}"); e("s_subb_u32 s85, s85, 0"); s.srd(88, 84, 256)
                e("buffer_store_dword v1, v0, s[88:91], 0 offen")
            s.label(lab)
            return
        e("s_load_dwordx2 s[84:85], s[0:1], 56"); e("s_waitcnt vmcnt(0)"); e("s_memrealtime s[86:87]"); e("s_waitcnt lgkmcnt(0)")
        e("s_mov_b64 exec, 1")
        e("s_bfe_u32 s84, s84, 0x50009"); e("s_lshl_b32 s84, s84, 18")
        e("s_lshl_b32 s60, s2, 3"); e(f"s_add_u32 s60, s60, {wave}"); e("s_lshl_b32 s60, s60, 6"); e(f"s_add_u32 s60, s60, {STAMPS}"); e("s_add_u32 s60, s60, s84")
        e("v_mov_b32 v0, 0")
        for i in range(n):
            e(f"v_mov_b32 v1, s{64+2*i if i < 10 else 72+2*i}")
            e(f"buffer_store_dword v1, v0, s[12:15], s60 offen offset:{4*i}")
        e("v_mov_b32 v1, s86"); e("buffer_store_dword v1, v0, s[12:15], s60 offen offset:60")
    def rtdump(s):
        if not STAMP: return
        s.e("v_lshrrev_b32 v1, 6, v0"); s.e("s_nop 0"); s.e("v_readfirstlane_b32 s61, v1"); s.dump(2, wave="s61")
    def text(s, vgpr, accum, sgpr=102):
        s.L, added = fix(s.L)
        if os.environ.get("V"): print(s.name, "auto nops:", added, "lines:", len(s.L))
        out = [".text", f".globl {s.name}", ".p2align 8", f".type {s.name},@function", f"{s.name}:"]
        out += s.L
        out += ['.section .rodata,"a"', ".p2align 6", f".amdhsa_kernel {s.name}",
                f"  .amdhsa_next_free_vgpr {vgpr}", f"  .amdhsa_next_free_sgpr {sgpr}", f"  .amdhsa_accum_offset {accum}",
                "  .amdhsa_group_segment_fixed_size 0", "  .amdhsa_kernarg_size 72", "  .amdhsa_user_sgpr_count 2",
                "  .amdhsa_user_sgpr_kernarg_segment_ptr 1", "  .amdhsa_system_sgpr_workgroup_id_x 1", ".end_amdhsa_kernel"]
        nb = lint(s.L, s.name)
        assert nb == 0, f"{nb} hazards in {s.name}"
        return "\n".join(out) + "\n"
    def allred32(s, op, v, t):
        s.e(f"v_mov_b32 v{t}, v{v}"); s.e("s_nop 1")
        s.e(f"v_permlane32_swap_b32 v{v}, v{t}"); s.e("s_nop 1")
        s.e(f"{op} v{v}, v{v}, v{t}")
    def allred16(s, op, v, t):
        s.e(f"v_mov_b32 v{t}, v{v}"); s.e("s_nop 1")
        s.e(f"v_permlane16_swap_b32 v{v}, v{t}"); s.e("s_nop 1")
        s.e(f"{op} v{v}, v{v}, v{t}")

def vr(a, n): return f"v[{a}:{a+n-1}]" if n > 1 else f"v{a}"
def ar(a, n): return f"a[{a}:{a+n-1}]" if n > 1 else f"a{a}"

def k_prep():
    PSC = os.environ.get("PSC", "sc1")
    k = KB("prep_kernel"); e = k.e
    NX, NA, NB, NO = 128, 60, 64, 64
    e(f"s_cmp_ge_u32 s2, {NX+NA+NB+NO}"); e("s_cbranch_scc1 prep_end0"); k.rstamp(1)
    e("s_load_dwordx2 s[4:5], s[0:1], 0"); e("s_load_dwordx2 s[6:7], s[0:1], 64")
    e("s_load_dwordx4 s[20:23], s[0:1], 8"); e("s_load_dwordx4 s[24:27], s[0:1], 32")
    e("v_and_b32 v1, 63, v0"); e("v_lshrrev_b32 v2, 6, v0")
    e("s_waitcnt lgkmcnt(0)")
    k.srd(12, 6, WS_END)
    e(f"s_cmp_ge_u32 s2, {NX+NA+NB}"); e("s_cbranch_scc1 prep_o")
    e(f"s_cmp_ge_u32 s2, {NX+NA}"); e("s_cbranch_scc1 prep_b")
    e(f"s_cmp_ge_u32 s2, {NX}"); e("s_cbranch_scc1 prep_u")
    k.srd(8, 4, S*D*2)
    e("s_and_b32 s16, s2, 7"); e("s_lshl_b32 s16, s16, 4"); e("s_lshr_b32 s17, s2, 3"); e("s_add_u32 s3, s16, s17")
    e("v_and_b32 v3, 15, v1"); e("v_lshrrev_b32 v4, 4, v1")
    e("s_lshl_b32 s16, s3, 4"); e("v_add_u32 v5, s16, v3")
    e("v_mul_u32_u24 v6, 1280, v5")
    e("v_mul_u32_u24 v7, 320, v2"); e("v_add_u32 v6, v6, v7")
    e("v_lshl_add_u32 v6, v4, 3, v6")
    for i in range(5):
        for t in range(2):
            k.vmop(f"buffer_load_dwordx2 {vr(12+4*i+2*t,2)}, v6, s[8:11], 0 offen offset:{2*FM[i][t]} nt", "x")
    e("s_mul_i32 s17, s3, 20480"); e(f"s_add_u32 s17, s17, {XT[0]}"); e("s_add_u32 s18, s17, 4096")
    e("v_mul_u32_u24 v7, 5120, v2"); e("v_lshl_add_u32 v7, v1, 4, v7")
    e("v_mov_b32 v8, 0"); e("v_mov_b32 v9, 0"); e("v_mov_b32 v10, 0"); e("v_mov_b32 v11, 0")
    e("v_mov_b32 v32, 0x3f803f80")
    k.waitvm("x")
    for i in range(5):
        if i < 4: k.vmop(f"buffer_store_dwordx4 {vr(12+4*i,4)}, v7, s[12:15], s17 offen offset:{1024*i} {PSC}")
        else: k.vmop(f"buffer_store_dwordx4 {vr(12+4*i,4)}, v7, s[12:15], s18 offen {PSC}")
    for r in range(12, 32):
        e(f"v_dot2_f32_bf16 v8, v{r}, v32, v8")
    for r in range(12, 32):
        e(f"v_dot2_f32_bf16 v9, v{r}, v{r}, v9")
    e("s_nop 2")
    k.allred16("v_add_f32", 8, 33); k.allred32("v_add_f32", 8, 33)
    k.allred16("v_add_f32", 9, 33); k.allred32("v_add_f32", 9, 33)
    e("v_cmp_gt_u32 vcc, 16, v1"); e("v_lshlrev_b32 v5, 3, v1"); e("v_lshl_add_u32 v5, v2, 8, v5")
    e("v_cndmask_b32 v8, 0, v8, vcc"); e("v_cndmask_b32 v9, 0, v9, vcc")
    e("s_lshl_b32 s19, s3, 10"); e(f"s_add_u32 s19, s19, {ST[0]}")
    e("s_lshl_b32 s18, s3, 10"); e(f"s_add_u32 s18, s18, {CNT}")
    e("s_mov_b32 exec_hi, 0")
    k.vmop("buffer_store_dwordx2 v[8:9], v5, s[12:15], s19 offen")
    e("s_mov_b64 exec, 0x1111111111111111" if False else "s_mov_b64 exec, -1")
    e("v_cmp_gt_u32 vcc, 128, v0"); e("s_and_saveexec_b64 s[28:29], vcc"); e("s_cbranch_execz prep_end")
    e("v_lshlrev_b32 v6, 3, v0")
    k.vmop("buffer_store_dwordx2 v[10:11], v6, s[12:15], s18 offen")
    k.rtdump(); e("s_endpgm")
    def colsum(regs, acc):
        for r in regs: e(f"v_dot2_f32_bf16 v{acc}, v{r}, v60, v{acc}")
    k.label("prep_u"); k.vm = []
    e(f"s_sub_u32 s16, s2, {NX}"); e("s_and_b32 s17, s16, 3"); e("s_lshr_b32 s16, s16, 2")
    k.srd(8, 20, D*3*D*2)
    e("v_readfirstlane_b32 s18, v2")
    e("v_and_b32 v5, 15, v1"); e("v_lshrrev_b32 v6, 4, v1"); e("v_and_b32 v10, 3, v1")
    e("v_lshl_add_u32 v9, v2, 2, v6"); e("v_mul_u32_u24 v9, 3840, v9")
    e("v_lshrrev_b32 v7, 2, v5"); e("v_xor_b32 v8, v7, v6"); e("v_lshl_add_u32 v9, v8, 6, v9"); e("v_lshl_add_u32 v9, v10, 4, v9")
    e(f"s_mul_i32 s19, s17, {160*3840}"); e("s_lshl_b32 s28, s16, 8"); e("s_add_u32 s19, s19, s28"); e("s_lshl_b32 s29, s18, 10")
    for i in range(10):
        e(f"s_add_u32 m0, s29, {4096*i}")
        e(f"s_add_u32 s28, s19, {16*3840*i}")
        e("buffer_load_dwordx4 v9, s[8:11], s28 offen nt lds")
    e("v_lshrrev_b32 v4, 5, v1"); e("v_lshl_add_u32 v11, v4, 2, v7"); e("v_lshlrev_b32 v11, 8, v11")
    e("v_bfe_u32 v8, v1, 4, 1"); e("v_lshl_add_u32 v11, v8, 5, v11"); e("v_lshl_add_u32 v11, v10, 3, v11")
    e("v_xor_b32 v8, v2, v7"); e("v_lshl_add_u32 v11, v8, 6, v11")
    e("v_lshlrev_b32 v3, 4, v1"); e("v_mov_b32 v60, 0x3f803f80"); e("v_mov_b32 v8, 0")
    e("s_mul_i32 s19, s16, 163840"); e("s_mul_i32 s28, s17, 40960"); e("s_add_u32 s19, s19, s28"); e("s_add_u32 s19, s19, s29"); e(f"s_add_u32 s19, s19, {WA_I}")
    e("s_waitcnt vmcnt(0)"); e("s_barrier")
    for n in range(10):
        for t in range(2): e(f"ds_read_b64_tr_b16 {vr(16+4*n+2*t,2)}, v11 offset:{(FM[n//2][t]+8*(n%2))*256}")
        if n == 5: e("s_waitcnt lgkmcnt(0)")
    e("s_waitcnt lgkmcnt(0)")
    for n in range(10):
        e(f"buffer_store_dwordx4 {vr(16+4*n,4)}, v3, s[12:15], s19 offen {PSC}")
        if n < 9: e("s_add_u32 s19, s19, 4096")
    colsum(range(16, 56), 8); e("s_nop 2")
    k.allred32("v_add_f32", 8, 9)
    e("v_and_b32 v5, 31, v1"); e("v_lshlrev_b32 v5, 4, v5")
    e("s_lshl_b32 s19, s16, 11"); e("s_lshl_b32 s28, s18, 9"); e("s_add_u32 s19, s19, s28"); e("s_lshl_b32 s28, s17, 2"); e("s_add_u32 s19, s19, s28"); e(f"s_add_u32 s19, s19, {U_A}")
    e("s_mov_b32 exec_hi, 0")
    e("buffer_store_dword v8, v5, s[12:15], s19 offen")
    k.rtdump(); e("s_endpgm")
    k.label("prep_b")
    e(f"s_sub_u32 s16, s2, {NX+NA}"); e("s_and_b32 s17, s16, 3"); e("s_lshr_b32 s16, s16, 2")
    k.srd(8, 24, D*3*D*2)
    e("v_readfirstlane_b32 s18, v2")
    e("v_and_b32 v5, 15, v1"); e("v_lshrrev_b32 v6, 4, v1")
    e("v_and_b32 v7, 1, v2"); e("v_lshl_add_u32 v7, v7, 2, v6"); e("v_lshlrev_b32 v7, 1, v7"); e("v_xor_b32 v7, v7, v5"); e("v_min_u32 v7, 14, v7")
    e("v_mul_u32_u24 v8, 52, v7"); e("v_lshrrev_b32 v8, 8, v8"); e("v_mul_u32_u24 v9, 1200, v8"); e("v_lshl_add_u32 v9, v7, 4, v9")
    e("v_lshl_add_u32 v10, v2, 2, v6"); e("v_mul_u32_u24 v10, 3840, v10"); e("v_add_u32 v9, v9, v10")
    e(f"s_mul_i32 s19, s17, {160*3840}"); e("s_mul_i32 s28, s16, 80"); e("s_add_u32 s19, s19, s28"); e("s_lshl_b32 s29, s18, 10")
    for i in range(10):
        e(f"s_add_u32 m0, s29, {4096*i}")
        e(f"s_add_u32 s28, s19, {16*3840*i}")
        e("buffer_load_dwordx4 v9, s[8:11], s28 offen nt lds")
    e("v_lshrrev_b32 v12, 2, v5"); e("v_and_b32 v13, 3, v5")
    e("s_mul_i32 s28, s18, 80"); e("v_lshlrev_b32 v10, 3, v13"); e("v_add_u32 v10, s28, v10"); e("v_add_u32 v11, 40, v10")
    e("s_cmp_lt_u32 s18, 3"); e("s_cbranch_scc1 prep_b1")
    e("v_mul_u32_u24 v10, 40, v13"); e("v_add_u32 v10, 32, v10")
    e("v_and_b32 v11, 1, v13"); e("v_mul_u32_u24 v11, 40, v11"); e("v_add_u32 v11, 192, v11")
    k.label("prep_b1")
    e("v_lshl_add_u32 v14, v6, 2, v12"); e("v_and_b32 v15, 7, v14"); e("v_lshlrev_b32 v15, 5, v15"); e("v_lshlrev_b32 v14, 8, v14")
    e("v_xor_b32 v10, v10, v15"); e("v_add_u32 v10, v10, v14"); e("v_xor_b32 v11, v11, v15"); e("v_add_u32 v11, v11, v14")
    e("v_lshlrev_b32 v3, 4, v1"); e("v_mov_b32 v60, 0x3f803f80"); e("v_mov_b32 v8, 0"); e("v_mov_b32 v9, 0")
    e("s_mul_i32 s19, s16, 163840"); e("s_mul_i32 s28, s17, 40960"); e("s_add_u32 s19, s19, s28"); e("s_lshl_b32 s28, s18, 11"); e("s_add_u32 s19, s19, s28"); e(f"s_add_u32 s19, s19, {WB_I}")
    e("s_waitcnt vmcnt(0)"); e("s_barrier")
    for n in range(10):
        for t in range(2): e(f"ds_read_b64_tr_b16 {vr(16+4*n+2*t,2)}, v{10+n%2} offset:{FM[n//2][t]*256}")
        if n == 5: e("s_waitcnt lgkmcnt(0)")
    e("s_waitcnt lgkmcnt(0)")
    for n in range(10):
        e(f"buffer_store_dwordx4 {vr(16+4*n,4)}, v3, s[12:15], s19 offen offset:{1024*(n%2)} {PSC}")
        if n % 2 and n < 9: e("s_add_u32 s19, s19, 8192")
    for f in range(2): colsum([16+8*m+4*f+q for m in range(5) for q in range(4)], 8+f)
    e("s_nop 2")
    for f in range(2): k.allred16("v_add_f32", 8+f, 12); k.allred32("v_add_f32", 8+f, 12)
    e("v_lshlrev_b32 v5, 4, v5")
    e("s_lshl_b32 s19, s16, 11"); e("s_lshl_b32 s28, s18, 9"); e("s_add_u32 s19, s19, s28"); e("s_lshl_b32 s28, s17, 2"); e("s_add_u32 s19, s19, s28"); e(f"s_add_u32 s19, s19, {U_B}")
    e("s_mov_b64 exec, 0xffff")
    e("buffer_store_dword v8, v5, s[12:15], s19 offen"); e("buffer_store_dword v9, v5, s[12:15], s19 offen offset:256")
    k.rtdump(); e("s_endpgm")
    k.label("prep_o")
    e(f"s_sub_u32 s16, s2, {NX+NA+NB}"); e("s_and_b32 s17, s16, 3"); e("s_lshr_b32 s30, s16, 5"); e("s_bfe_u32 s16, s16, 0x30002")
    e("s_cmp_eq_u32 s30, 1")
    e("s_cselect_b32 s28, s26, s22"); e("s_cselect_b32 s29, s27, s23"); e(f"s_cselect_b32 s31, {WOB_I-WOA_I}, 0")
    k.srd(8, 28, D*D*2)
    e("v_readfirstlane_b32 s18, v2")
    def pat(dst, src):
        e(f"v_mul_u32_u24 v10, 6554, v{src}"); e("v_lshrrev_b32 v10, 16, v10"); e("v_mul_u32_u24 v10, 1120, v10"); e(f"v_lshl_add_u32 v{dst}, v{src}, 4, v10")
    for i in range(5):
        e(f"v_add_u32 v9, {64*i}, v1"); pat(4+i, 9)
    pat(11, 0)
    e(f"s_mul_i32 s19, s17, {160*1280}"); e("s_mul_i32 s28, s16, 160"); e("s_add_u32 s19, s19, s28")
    e("s_mul_i32 s28, s18, 40960"); e("s_add_u32 s28, s28, s19"); e("s_mul_i32 s29, s18, 5120")
    for i in range(5):
        e(f"s_add_u32 m0, s29, {1024*i}"); e("s_nop 0")
        e(f"buffer_load_dwordx4 v{4+i}, s[8:11], s28 offen nt lds")
    e("s_lshl_b32 s29, s18, 10"); e("s_add_u32 m0, s29, 20480"); e("s_add_u32 s28, s19, 163840")
    e("buffer_load_dwordx4 v11, s[8:11], s28 offen nt lds")
    e("s_cmp_eq_u32 s18, 0"); e("s_cbranch_scc0 prep_o1")
    e("s_mov_b32 m0, 24576"); e("s_nop 0")
    e("buffer_load_dwordx4 v8, s[8:11], s28 offen nt lds")
    k.label("prep_o1")
    e("v_lshrrev_b32 v9, 4, v1"); e("v_bfe_u32 v10, v1, 2, 2"); e("v_and_b32 v11, 3, v1")
    e("v_lshlrev_b32 v12, 2, v9"); e("s_mov_b32 s28, 3200")
    e("s_cmp_eq_u32 s30, 1"); e("s_cbranch_scc1 prep_o2")
    e("v_lshrrev_b32 v12, 1, v9"); e("v_mul_u32_u24 v12, 20, v12"); e("v_and_b32 v13, 1, v9"); e("v_lshl_add_u32 v12, v13, 2, v12"); e("s_mov_b32 s28, 1280")
    k.label("prep_o2")
    e("v_add_u32 v12, v12, v10"); e("v_mul_u32_u24 v12, 160, v12"); e("v_lshl_add_u32 v12, v11, 3, v12")
    e("s_mul_i32 s29, s18, 6400"); e("v_add_u32 v12, s29, v12"); e("v_add_u32 v13, s28, v12")
    e("v_mul_u32_u24 v14, 20, v9"); e("v_add_u32 v14, v14, v10"); e("v_mul_u32_u24 v14, 160, v14"); e("v_lshl_add_u32 v14, v11, 3, v14")
    e("v_lshlrev_b32 v3, 4, v1")
    e("s_mul_i32 s19, s16, 102400"); e("s_add_u32 s19, s19, s31"); e(f"s_add_u32 s19, s19, {WOA_I}")
    e("s_lshl_b32 s28, s17, 2"); e("s_add_u32 s28, s28, s18"); e("s_mul_i32 s28, s28, 5120"); e("s_add_u32 s28, s28, s19"); e("s_add_u32 s29, s28, 4096")
    e("s_waitcnt vmcnt(0)"); e("s_barrier")
    for nf in range(5):
        for t in range(2): e(f"ds_read_b64_tr_b16 {vr(16+4*nf+2*t,2)}, v{12+t} offset:{32*nf}")
    e("s_waitcnt lgkmcnt(0)")
    for nf in range(5): e(f"buffer_store_dwordx4 {vr(16+4*nf,4)}, v3, s[12:15], s{28 if nf < 4 else 29} offen offset:{1024*(nf%4)} {PSC}")
    e("s_cmp_eq_u32 s18, 0"); e("s_cbranch_scc0 prep_end")
    for nf in range(5):
        for t in range(2): e(f"ds_read_b64_tr_b16 {vr(36+4*nf+2*t,2)}, v14 offset:{(80*t+16)*160+32*nf}")
    e("s_add_u32 s28, s17, 16"); e("s_mul_i32 s28, s28, 5120"); e("s_add_u32 s28, s28, s19"); e("s_add_u32 s29, s28, 4096")
    e("s_waitcnt lgkmcnt(0)")
    for nf in range(5): e(f"buffer_store_dwordx4 {vr(36+4*nf,4)}, v3, s[12:15], s{28 if nf < 4 else 29} offen offset:{1024*(nf%4)} {PSC}")
    k.label("prep_end"); k.rtdump(); k.label("prep_end0"); e("s_endpgm")
    return k.text(64, 64)

def stats_finish(k, s1, s2, mean, rstd, t):
    e = k.e
    e(f"v_mul_f32 v{mean}, {fbits(1.0/D)}, v{s1}")
    e(f"v_mul_f32 v{t}, {fbits(1.0/D)}, v{s2}")
    e(f"v_fma_f32 v{t}, -v{mean}, v{mean}, v{t}")
    e(f"v_max_f32 v{t}, 0, v{t}")
    e(f"v_add_f32 v{t}, {fbits(1e-5)}, v{t}")
    e(f"v_rsq_f32 v{rstd}, v{t}")
    e("s_nop 0")

def split3(k, src, d, t, kind, maskv=None):
    e = k.e
    if kind == 'm':
        e(f"v_xor_b32 v{t+1}, 0x80000000, v{src}"); src = t+1
    e(f"v_and_b32 v{t}, 0xffff0000, v{src}")
    e(f"v_sub_f32 v{t+2}, v{src}, v{t}")
    if kind == 'u':
        e(f"v_cvt_pk_bf16_f32 v{d}, v{t}, v{t+2}")
        e(f"v_lshrrev_b32 v{d+1}, 16, v{t}")
    else:
        e(f"v_cvt_pk_bf16_f32 v{d}, v{t}, v{t}")
        e(f"v_cvt_pk_bf16_f32 v{d+1}, v{t+2}, 0")
    if maskv is not None:
        e(f"v_and_b32 v{d}, v{d}, v{maskv}"); e(f"v_and_b32 v{d+1}, v{d+1}, v{maskv}")

SC = "sc1"
EARLY = int(os.environ.get('EARLY', '6'))
ENV = lambda n, d: int(os.environ.get(n, d))

def common(k, nwg=256):
    e = k.e
    e(f"s_cmp_ge_u32 s2, {nwg}"); e(f"s_cbranch_scc1 {k.name}_end"); k.stamp(0); k.rstamp(1)
    e("s_load_dwordx2 s[6:7], s[0:1], 64"); e("s_load_dwordx2 s[46:47], s[0:1], 48")
    e("s_and_b32 s20, s2, 7"); e("s_lshr_b32 s21, s2, 3")
    e("v_lshrrev_b32 v2, 6, v0"); e("v_and_b32 v1, 63, v0")
    e("v_readfirstlane_b32 s18, v2")
    e("s_and_b32 s39, s18, 3"); e("s_lshl_b32 s45, s39, 10")

def ids_mt(k):
    k.e("s_lshl_b32 s22, s20, 1"); k.e("s_and_b32 s23, s21, 1"); k.e("s_add_u32 s16, s22, s23"); k.e("s_lshr_b32 s17, s21, 1")
def ids_rt(k):
    k.e("s_lshl_b32 s22, s20, 2"); k.e("s_and_b32 s23, s21, 3"); k.e("s_add_u32 s16, s22, s23"); k.e("s_lshr_b32 s17, s21, 2")

LW = 163824
PV_ = 240
def lw_init(k):
    e = k.e
    e(f"v_mov_b32 v{PV_+3}, {LW}")
    for i in range(3): e(f"v_mov_b32 v{PV_+i}, 0")
    e(f"ds_write_b96 v{PV_+3}, v[{PV_}:{PV_+2}]"); e(f"ds_write_b32 v{PV_+3}, v{PV_} offset:12")

def signal(k, tag, word, nw, addr_code, younger=0):
    e = k.e
    addr_code()
    e(f"v_mov_b32 v{PV_+3}, {LW}"); e(f"v_mov_b32 v{PV_}, 1")
    e("s_mov_b64 exec, 1")
    e(f"s_waitcnt vmcnt({younger})"); k.vm = k.vm[len(k.vm)-younger:] if younger else []
    if tag == os.environ.get("FOC"): k.stamp(2)
    e(f"ds_add_rtn_u32 v{PV_+2}, v{PV_+3}, v{PV_} offset:{8*word}")
    e("s_waitcnt lgkmcnt(0)"); k.lg = []
    e(f"v_readfirstlane_b32 s49, v{PV_+2}")
    e("s_mov_b64 exec, s[56:57]")
    e(f"s_cmp_eq_u32 s49, {nw-1}"); e(f"s_cbranch_scc0 {k.name}_{tag}_sg")
    e(f"buffer_atomic_add v{PV_}, v{PV_+1}, s[12:15], s48 offen {SC}")
    if os.environ.get("FOC2") == tag: k.stamp(4)
    k.label(f"{k.name}_{tag}_sg")
    e("s_mov_b64 exec, -1")

def wait_go(k, tag, word, poll_code):
    e = k.e; nm = f"{k.name}_{tag}"
    e(f"v_mov_b32 v{PV_+3}, {LW}"); e("s_mov_b32 s49, 0")
    if poll_code:
        e("s_cmp_eq_u32 s18, 0"); e(f"s_cbranch_scc0 {nm}_sp")
        poll_code()
        e("s_mov_b64 exec, s[56:57]")
        if os.environ.get("FOC") == "g" + tag: k.stamp(2)
        k.label(f"{nm}_pl")
        e(f"v_mov_b32 v{PV_}, 0")
        e(f"buffer_atomic_add v{PV_}, v{PV_+1}, s[12:15], s48 offen sc0 sc1")
        e("s_add_u32 s49, s49, 1")
        e("s_waitcnt vmcnt(0)")
        e(f"v_cmp_ge_u32 vcc, v{PV_}, v{PV_+2}")
        e("s_cmp_ge_u32 s49, 0x20000"); e(f"s_cbranch_scc1 {nm}_px")
        e("s_cmp_eq_u64 vcc, exec"); e(f"s_cbranch_scc0 {nm}_pl")
        k.label(f"{nm}_px")
        if os.environ.get("FOC") == "g" + tag: e("s_add_u32 s70, s64, s49")
        e("s_mov_b64 exec, 1"); e(f"v_mov_b32 v{PV_}, 1")
        e(f"ds_write_b32 v{PV_+3}, v{PV_} offset:{8*word+4}")
        e(f"s_branch {nm}_go")
    k.label(f"{nm}_sp")
    e("s_sleep 1")
    e(f"ds_read_b32 v{PV_}, v{PV_+3} offset:{8*word+4}")
    e("s_add_u32 s49, s49, 1")
    e("s_waitcnt lgkmcnt(0)")
    e(f"v_readfirstlane_b32 s44, v{PV_}")
    e("s_cmp_ge_u32 s49, 0x400000"); e(f"s_cbranch_scc1 {nm}_go")
    e("s_cmp_eq_u32 s44, 0"); e(f"s_cbranch_scc1 {nm}_sp")
    k.label(f"{nm}_go")
    e("s_mov_b64 exec, -1")

class Wdma:
    def __init__(s, k, n, base=50, tag="w"): s.k = k; s.n = n; s.i = 0; s.base = base; s.tag = tag
    def one(s, i):
        s.k.e(f"s_add_u32 m0, s45, {4096*i}"); s.k.e(f"s_add_u32 s32, s{s.base}, {4096*i}")
        s.k.vmop("buffer_load_dwordx4 v3, s[12:15], s32 offen lds", f"{s.tag}{i}")
    def go(s, upto):
        while s.i < min(upto, s.n): s.one(s.i); s.i += 1
    def rng(s, a, b, thr=0):
        for i in range(a, b):
            s.one(i)
            if thr and len(s.k.vm) >= thr: s.k.e(f"s_waitcnt vmcnt({thr-1})"); s.k.vm = s.k.vm[len(s.k.vm)-thr+1:]

def ph_attn(k, L):
    e = k.e; nm = k.name
    KA, KT, VA = 4, 5, 6
    Q = [8, 14]; KF = [24, 32]; VF = [40, 48]; SS = [56, 72]; P = 88; O = [96, 112]; PF = 128
    SCR = 102400
    ids_rt(k)
    e("v_and_b32 v3, 31, v1"); e("v_lshrrev_b32 v7, 5, v1")
    e("v_lshlrev_b32 v22, 4, v1"); e("v_lshlrev_b32 v23, 3, v3")
    e("s_mul_i32 s19, s16, 163840")
    e("s_lshr_b32 s41, s18, 2")
    e("s_lshl_b32 s23, s17, 3"); e("s_lshl_b32 s22, s39, 1"); e("s_add_u32 s23, s23, s22")
    e("s_mul_i32 s24, s23, 1280"); e("s_lshr_b32 s22, s19, 1"); e("s_add_u32 s24, s24, s22"); e(f"s_add_u32 s24, s24, {QIMG[L]}")
    e("s_mul_i32 s42, s41, 81920")
    e("s_add_u32 s25, s45, s42")
    e("s_add_u32 s26, s19, s25"); e(f"s_add_u32 s26, s26, {KVIMG[L]}")
    e("s_waitcnt lgkmcnt(0)")
    k.stamp(2); k.srd(12, 6, WS_END)
    rnd = [0]
    def dma():
        i = rnd[0]; rnd[0] += 1
        e(f"s_add_u32 m0, s25, {4096*i}"); e(f"s_add_u32 s27, s26, {4096*i}")
        k.vmop(f"buffer_load_dwordx4 v22, s[12:15], s27 offen lds", f"i{i}")
    dma()
    for x in range(2):
        k.vmop(f"buffer_load_dwordx4 {vr(Q[x],4)}, v22, s[12:15], s24 offen offset:{1280*x}", "q")
        k.vmop(f"buffer_load_dwordx2 {vr(Q[x]+4,2)}, v23, s[12:15], s24 offen offset:{1280*x+1024}", "q")
    for _ in range(3): dma()
    e(f"v_add_u32 v{KA}, s42, v22")
    e(f"v_add_u32 v{KT}, s42, v23"); e(f"v_add_u32 v{KT}, 1024, v{KT}")
    e("v_mul_u32_u24 v21, 20, v7"); e("v_add_u32 v21, v21, v3"); e("v_lshlrev_b32 v21, 4, v21")
    e("v_add_u32 v21, 1280, v21"); e(f"v_add_u32 v{VA}, s42, v21")
    e("s_mov_b32 s28, 0x000fffff"); e("s_mov_b32 s29, 0x000fffff")
    e("v_cmp_eq_u32 vcc, 20, v3"); e("v_mov_b32 v20, 0x3f803f80"); e("s_nop 0")
    e("v_cndmask_b32 v20, 0, v20, vcc")
    for r in range(16): e(f"v_mov_b32 v{VF[0]+r}, v20")
    for r in range(32): e(f"v_mov_b32 v{O[0]+r}, 0")
    for r in range(4): e(f"v_mov_b32 v{P+4+r}, 0")
    e("v_subrev_u32 v30, 1, v7")
    e("s_lshl_b32 s43, s21, 3"); e("s_add_u32 s43, s43, s18"); e("s_mul_i32 s43, s43, 14336"); e(f"s_add_u32 s43, s43, {WOA_I}")
    e("v_lshlrev_b32 v134, 6, v1"); e("s_lshl_b32 s55, s2, 3"); e("s_add_u32 s55, s55, s18")
    TCH = ENV('TCH', '7'); NTM = 7 if (TCH == 6 and L == 0) else 31
    e(f"v_lshlrev_b32 v134, {TCH if L == 0 else 6}, v1"); e("s_mov_b32 s44, s18" if NTM == 7 else "s_lshl_b32 s44, s18, 1")
    if L == 0: e(f"s_mul_i32 s62, s55, {-(-(TOUCH1-TOUCH0)//2048//128)*128}"); e("s_mov_b32 s63, 4096" if False else "s_mov_b32 s63, 2688")
    else: e("s_mul_i32 s55, s55, 1280"); k.srd(60, 46, S*D*2)
    e("s_add_u32 s23, s23, s41")
    e("s_mul_i32 s32, s23, 40960"); e(f"s_add_u32 s32, s32, {OT}")
    e("s_lshr_b32 s51, s16, 1"); e("s_lshl_b32 s51, s51, 10"); e("s_and_b32 s34, s16, 1"); e("s_lshl_b32 s34, s34, 9")
    e("s_add_u32 s51, s51, s34"); e("s_add_u32 s51, s51, s32")
    e("s_lshr_b32 s52, s16, 3"); e("s_add_u32 s52, s52, 16"); e("s_lshl_b32 s52, s52, 10"); e("s_add_u32 s52, s52, s32")
    e("s_and_b32 s35, s16, 3"); e("s_lshl_b32 s35, s35, 8"); e("s_add_u32 s52, s52, s35")
    e("s_bfe_u32 s35, s16, 0x10002"); e("s_lshl_b32 s35, s35, 3"); e("s_add_u32 s52, s52, s35")
    e("v_lshrrev_b32 v38, 4, v3"); e("v_mul_u32_u24 v38, 20480, v38"); e("v_and_b32 v39, 15, v3")
    e("v_lshl_add_u32 v38, v39, 4, v38"); e("v_lshl_add_u32 v39, v7, 8, v38")
    e("s_lshl_b32 s59, s18, 10"); e("s_mul_i32 s50, s17, 102400"); e("s_add_u32 s50, s50, s59"); e(f"s_add_u32 s50, s50, {WOA_I}")
    e("s_mul_i32 s32, s18, 3072"); e("s_xor_b32 s33, s18, 4"); e("s_mul_i32 s33, s33, 3072")
    e(f"v_add_u32 v132, {SCR}, v22"); e("v_add_u32 v133, s33, v132"); e("v_add_u32 v132, s32, v132")
    k.waitvm("q")
    for x in range(2):
        e(f"v_and_b32 v{Q[x]+4}, v{Q[x]+4}, v30"); e(f"v_and_b32 v{Q[x]+5}, v{Q[x]+5}, v30")
    k.waitvm("i1"); e("s_barrier"); k.stamp(3)
    def rdK(buf, off):
        e(f"ds_read_b128 {vr(KF[buf],4)}, v{KA} offset:{off}")
        e(f"ds_read_b64 {vr(KF[buf]+4,2)}, v{KT} offset:{off}")
    def rdV(buf, off):
        e("s_mov_b64 exec, s[28:29]")
        e(f"ds_read_b128 {vr(VF[buf],4)}, v{VA} offset:{off}")
        e(f"ds_read_b128 {vr(VF[buf]+4,4)}, v{VA} offset:{off+640}")
        e("s_mov_b64 exec, -1")
    def qkm(x, kb): e(f"v_mfma_f32_32x32x16_bf16 {vr(SS[x],16)}, {vr(KF[kb],4)}, {vr(Q[x],4)}, 0")
    def qkt(x, kb): e(f"v_mfma_f32_32x32x8_bf16 {vr(SS[x],16)}, {vr(KF[kb]+4,2)}, {vr(Q[x]+4,2)}, {vr(SS[x],16)}")
    def pv(x, vb, u): e(f"v_mfma_f32_32x32x16_bf16 {vr(O[x],16)}, {vr(VF[vb]+4*u,4)}, {vr(P+4*u,4)}, {vr(O[x],16)}")
    def unit(x, t, extra=None):
        p = t % 2; s = SS[x]
        ex = lambda i: e(f"v_exp_f32 v{s+i}, v{s+i}")
        cv = lambda i: e(f"v_cvt_pk_bf16_f32 v{P+i}, v{s+2*i}, v{s+2*i+1}")
        kb = p if x == 0 else 1-p
        if x == 1: e("s_waitcnt lgkmcnt(2)")
        qkm(1-x, kb)
        if x == 1: rdK(p, (t+2)*2560)
        for i in range(0, 4): ex(i)
        if x == 0:
            pv(1, 1-p, 1); rdV(1-p, (t+1)*2560)
        else:
            pv(0, p, 1)
        if extra: extra()
        for i in range(4, 8): ex(i)
        for i in range(0, 4): cv(i)
        qkt(1-x, kb)
        for i in range(8, 12): ex(i)
        if x == 0: e("s_waitcnt lgkmcnt(4)")
        pv(x, p, 0)
        for i in range(12, 16): ex(i)
        for i in range(4, 8): cv(i)
    def touch(t):
        e(f"s_cmp_eq_u32 s44, {t}"); e(f"s_cbranch_scc0 {nm}_t{t}")
        if L == 0: e(f"buffer_load_dword v{PF}, v134, s[12:15], s62 offen"); e("s_add_u32 s62, s62, s63")
        else: e(f"buffer_load_dword v{PF}, v134, s[60:63], s55 offen")
        k.label(f"{nm}_t{t}")
    rdK(0, 0); rdV(0, 0); rdK(1, 2560)
    e("s_waitcnt lgkmcnt(4)")
    qkm(0, 0); e("s_nop 10"); qkt(0, 0); e("s_nop 10")
    SYN = {1: 3, 4: 7, 7: 19}; PEEL = 8
    for t in range(PEEL):
        if t in SYN: k.waitvm(f"i{SYN[t]}"); e("s_barrier")
        if t == 7:
            e("s_cmp_ge_u32 s18, 4"); e(f"s_cbranch_scc0 {nm}_np"); e("s_setprio 1"); k.label(f"{nm}_np")
        d2 = lambda: (dma(), dma())
        unit(0, t, d2 if rnd[0] < 20 else None)
        unit(1, t, d2 if rnd[0] < 20 else None)
    for r in (KA, KT, VA): e(f"v_add_u32 v{r}, {PEEL*2560}, v{r}")
    e("s_mov_b32 s31, 0")
    def pref():
        e(f"buffer_load_dwordx4 {vr(PF,4)}, v22, s[12:15], s43 offen"); e("s_add_u32 s43, s43, 1024")
    e(".p2align 3")
    body_start = len(k.L)
    k.label(f"{nm}_aloop")
    NT = 4; NIT = (32 - PEEL)//NT
    for t in range(NT):
        unit(0, t, pref if t != 3 else None); unit(1, t, (lambda: touch(t)) if TCH else None)
    for r in (KA, KT, VA): e(f"v_add_u32 v{r}, {NT*2560}, v{r}")
    e("s_add_u32 s31, s31, 1"); e("s_sub_u32 s44, s44, 4"); e(f"s_and_b32 s44, s44, {NTM}")
    e(f"s_cmp_eq_u32 s31, {NIT-1}"); e(f"s_cbranch_scc0 {nm}_l1"); e("s_setprio 0"); k.label(f"{nm}_l1")
    e(f"s_cmp_lt_u32 s31, {NIT}"); e(f"s_cbranch_scc1 {nm}_aloop")
    body = k.L[body_start:]
    assert lint(body + body, "attn_loop2") == 0
    pv(1, 1, 1); k.stamp(4)
    e("s_waitcnt lgkmcnt(0)"); e("s_barrier")
    for i in range(EARLY//2):
        e(f"s_add_u32 m0, s59, {8192*i}"); e(f"s_add_u32 s27, s50, {8192*i}")
        e("buffer_load_dwordx4 v22, s[12:15], s27 offen lds")
    e("s_mov_b32 s30, 0")
    e("s_cmp_eq_u32 s41, 0"); e(f"s_cbranch_scc1 {nm}_k0")
    e("s_nop 6")
    for i in range(3): e(f"ds_write_b128 v132, {vr(O[0]+4*i,4)} offset:{1024*i}")
    for r in range(12): e(f"v_mov_b32 v{O[0]+r}, v{O[1]+r}")
    for r in range(6): e(f"v_mov_b32 v{Q[0]+r}, v{Q[1]+r}")
    e(f"s_branch {nm}_k1")
    k.label(f"{nm}_k0")
    lw_init(k); e("s_nop 3")
    for i in range(3): e(f"ds_write_b128 v132, {vr(O[1]+4*i,4)} offset:{1024*i}")
    k.label(f"{nm}_k1")
    e(f"s_mov_b32 s32, {fbits(2.0**-60)}"); e(f"s_mov_b32 s33, {fbits(2.0**100)}"); e(f"s_mov_b32 s34, {fbits(2.0**126)}")
    e("s_waitcnt lgkmcnt(0)"); e("s_barrier")
    for i in (2, 0, 1): e(f"ds_read_b128 {vr(SS[0]+4*i,4)}, v133 offset:{1024*i}")
    OO = O[0]
    e("s_waitcnt lgkmcnt(2)")
    for r in range(8, 12): e(f"v_add_f32 v{OO+r}, v{OO+r}, v{SS[0]+r}")
    e("s_waitcnt lgkmcnt(0)")
    for r in range(8): e(f"v_add_f32 v{OO+r}, v{OO+r}, v{SS[0]+r}")
    k.label(f"{nm}_chk")
    e(f"v_mov_b32 v30, v{OO+8}"); e(f"v_mov_b32 v31, v{OO+8}")
    e(f"v_max3_f32 v28, abs(v{OO}), abs(v{OO+1}), abs(v{OO+2})")
    e("v_permlane32_swap_b32 v30, v31")
    for r in range(3, 11, 2): e(f"v_max3_f32 v28, abs(v{OO+r}), abs(v{OO+r+1}), v28")
    e(f"v_max_f32 v28, abs(v{OO+11}), v28")
    e("v_cmp_le_f32 vcc, s32, v31"); e("v_cmp_ge_f32 s[36:37], s33, v31"); e("v_cmp_gt_f32 s[40:41], s34, v28")
    e("v_rcp_f32 v31, v31")
    e("s_and_b64 s[36:37], s[36:37], vcc"); e("s_and_b64 s[36:37], s[36:37], s[40:41]")
    e("s_cmp_eq_u64 s[36:37], -1"); e(f"s_cbranch_scc1 {nm}_fin")
    e("s_cmp_eq_u32 s30, 0"); e(f"s_cbranch_scc0 {nm}_fin")
    e("s_mov_b32 s30, 1")
    e("s_waitcnt vmcnt(0)")
    NM = O[1]
    e("v_mov_b32 v32, 0xff800000")
    def slowqk(c):
        e(f"buffer_load_dwordx4 {vr(KF[0],4)}, v22, s[12:15], s27 offen")
        e(f"buffer_load_dwordx2 {vr(KF[0]+4,2)}, v23, s[12:15], s27 offen offset:1024")
        e("s_waitcnt vmcnt(0)")
        e(f"v_mfma_f32_32x32x16_bf16 {vr(SS[0],16)}, {vr(KF[0],4)}, {vr(Q[0],4)}, {c}"); e("s_nop 10")
        e(f"v_mfma_f32_32x32x8_bf16 {vr(SS[0],16)}, {vr(KF[0]+4,2)}, {vr(Q[0]+4,2)}, {vr(SS[0],16)}"); e("s_nop 12")
    e(f"s_add_u32 s27, s19, {KVIMG[L]}"); e("s_mov_b32 s31, 0")
    k.label(f"{nm}_mx")
    slowqk("0")
    for r in range(0, 16, 2): e(f"v_max3_f32 v32, v{SS[0]+r}, v{SS[0]+r+1}, v32")
    e("s_add_u32 s27, s27, 2560")
    e("s_add_u32 s31, s31, 1"); e("s_cmp_lt_u32 s31, 64"); e(f"s_cbranch_scc1 {nm}_mx")
    k.allred32("v_max_f32", 32, 33)
    e("v_xor_b32 v32, 0x80000000, v32")
    for r in range(16): e(f"v_mov_b32 v{NM+r}, v32")
    for r in range(16): e(f"v_mov_b32 v{OO+r}, 0")
    for r in range(8): e(f"v_mov_b32 v{VF[0]+r}, v20")
    e(f"s_add_u32 s27, s19, {KVIMG[L]}"); e("s_mov_b32 s31, 0")
    k.label(f"{nm}_sl")
    e("s_mov_b64 exec, s[28:29]")
    e(f"buffer_load_dwordx4 {vr(VF[0],4)}, v21, s[12:15], s27 offen")
    e(f"buffer_load_dwordx4 {vr(VF[0]+4,4)}, v21, s[12:15], s27 offen offset:640")
    e("s_mov_b64 exec, -1")
    slowqk(vr(NM,16))
    for i in range(16): e(f"v_exp_f32 v{SS[0]+i}, v{SS[0]+i}")
    e("s_nop 0")
    for i in range(8): e(f"v_cvt_pk_bf16_f32 v{P+i}, v{SS[0]+2*i}, v{SS[0]+2*i+1}")
    e("s_nop 1")
    pv(0, 0, 0); pv(0, 0, 1)
    e("s_add_u32 s27, s27, 2560")
    e("s_add_u32 s31, s31, 1"); e("s_cmp_lt_u32 s31, 64"); e(f"s_cbranch_scc1 {nm}_sl")
    e("s_nop 12"); e(f"s_branch {nm}_chk")
    k.label(f"{nm}_fin")
    e("s_nop 0")
    for r in range(12): e(f"v_mul_f32 v{OO+r}, v{OO+r}, v31")
    for r in range(6): e(f"v_cvt_pk_bf16_f32 v{P+r}, v{OO+2*r}, v{OO+2*r+1}")
    e(f"buffer_store_dwordx4 {vr(P,4)}, v39, s[12:15], s51 offen {SC}")
    e("s_mov_b32 exec_hi, 0")
    e(f"buffer_store_dwordx2 {vr(P+4,2)}, v38, s[12:15], s52 offen {SC}")
    e("s_mov_b64 exec, -1")
    e("v_lshlrev_b32 v3, 4, v1")
    k.vm = []; k.lg = []

def proj_c(k, tag, src, xin, xout, stout, final, cnt_code, word, st0):
    e = k.e
    ACC, RESID, A, BF = 24, 44, 76, 156
    NA0 = ENV('PA0', '8')
    ids_rt(k)
    e("s_lshl_b32 s19, s16, 2"); e("s_add_u32 s19, s19, s39")
    e("s_mul_i32 s24, s19, 20480")
    e("s_lshr_b32 s33, s17, 1"); e("s_mul_i32 s33, s33, 5120"); e("s_add_u32 s33, s33, s24")
    e("s_and_b32 s34, s17, 1"); e("s_lshl_b32 s35, s34, 11"); e("s_add_u32 s35, s35, s33")
    e("s_lshl_b32 s34, s34, 3"); e("s_add_u32 s36, s33, s34"); e("s_add_u32 s36, s36, 4096")
    e(f"s_add_u32 s37, s35, {xin}"); e(f"s_add_u32 s38, s36, {xin}")
    k.vmop(f"buffer_load_dwordx4 {vr(RESID,4)}, v3, s[12:15], s37 offen {SC}", "r")
    k.vmop(f"buffer_load_dwordx4 {vr(RESID+4,4)}, v3, s[12:15], s37 offen offset:1024 {SC}", "r")
    k.vmop(f"buffer_load_dwordx2 {vr(RESID+8,2)}, v3, s[12:15], s38 offen {SC}", "r")
    e(f"s_add_u32 s24, s24, {src}")
    for i in range(1, 5): e(f"s_add_u32 s{24+i}, s24, {4096*i}")
    e("v_lshrrev_b32 v9, 4, v1"); e("v_add_u32 v12, 61440, v3")
    wait_go(k, tag, word, cnt_code)
    k.stamp(st0)
    def ldA(n): k.vmop(f"buffer_load_dwordx4 {vr(A+4*n,4)}, v3, s[12:15], s{24+n//4} offen offset:{(n%4)*1024} {SC}", f"a{n}")
    for n in range(NA0): ldA(n)
    k.waitvm("r")
    for i in range(10):
        e(f"v_lshlrev_b32 v{ACC+2*i}, 16, v{RESID+i}"); e(f"v_and_b32 v{ACC+2*i+1}, 0xffff0000, v{RESID+i}")
    def rd(n, nf):
        off = n*5120 + nf*1024; b = 3
        if n >= 12: off -= 61440; b = 12
        k.dsop(f"ds_read_b128 {vr(BF+20*(n%2)+4*nf,4)}, v{b} offset:{off}", f"b{n}_{nf}")
    e("s_barrier")
    for n in range(2):
        for nf in range(5): rd(n, nf)
    for n in range(20):
        k.waitvm(f"a{n}")
        if n == 0: k.stamp(st0+1)
        for nf in range(5):
            if nf in (0, 2, 4): k.waitlg(f"b{n}_{min(nf+1,4)}")
            if n == 12 and nf == 0 and not final: e("s_barrier")
            e(f"v_mfma_f32_16x16x32_bf16 {vr(ACC+4*nf,4)}, {vr(BF+20*(n%2)+4*nf,4)}, {vr(A+4*n,4)}, {vr(ACC+4*nf,4)}")
            if n + 2 < 20: rd(n+2, nf)
            if nf == 0 and n + NA0 < 20: ldA(n + NA0)
    if not final: e("s_barrier")
    if final:
        e("v_and_b32 v16, 15, v1"); e("v_mul_u32_u24 v16, 1280, v16"); e("v_lshl_add_u32 v16, v9, 3, v16")
        e("s_mul_i32 s32, s19, 20480"); e("s_mul_i32 s31, s17, 160"); e("s_add_u32 s32, s32, s31")
        for nf in range(5):
            for r in range(2): e(f"v_cvt_pk_bf16_f32 v{RESID+2*nf+r}, v{ACC+4*nf+2*r}, v{ACC+4*nf+2*r+1}")
            e(f"buffer_store_dwordx2 {vr(RESID+2*nf,2)}, v16, s[60:63], s32 offen offset:{32*nf}")
    else:
        e(f"s_add_u32 s37, s35, {xout}"); e(f"s_add_u32 s38, s36, {xout}")
        e("s_lshl_b32 s32, s19, 10"); e("s_lshl_b32 s33, s17, 7"); e("s_add_u32 s32, s32, s33"); e(f"s_add_u32 s32, s32, {stout}")
        e("v_lshlrev_b32 v16, 3, v1")
        for i in range(10): e(f"v_cvt_pk_bf16_f32 v{RESID+i}, v{ACC+2*i}, v{ACC+2*i+1}")
        e(f"buffer_store_dwordx4 {vr(RESID,4)}, v3, s[12:15], s37 offen {SC}")
        e(f"buffer_store_dwordx4 {vr(RESID+4,4)}, v3, s[12:15], s37 offen offset:1024 {SC}")
        e(f"buffer_store_dwordx2 {vr(RESID+8,2)}, v3, s[12:15], s38 offen {SC}")
        e(f"v_add_f32 v18, v{ACC}, v{ACC+1}"); e(f"v_mul_f32 v19, v{ACC}, v{ACC}"); e(f"v_add_f32 v20, v{ACC+2}, v{ACC+3}"); e(f"v_mul_f32 v21, v{ACC+1}, v{ACC+1}")
        e(f"v_fmac_f32 v19, v{ACC+2}, v{ACC+2}"); e(f"v_fmac_f32 v21, v{ACC+3}, v{ACC+3}")
        for i in range(4, 20, 2):
            e(f"v_add_f32 v18, v18, v{ACC+i}"); e(f"v_fmac_f32 v19, v{ACC+i}, v{ACC+i}")
            e(f"v_add_f32 v20, v20, v{ACC+i+1}"); e(f"v_fmac_f32 v21, v{ACC+i+1}, v{ACC+i+1}")
        e("v_add_f32 v18, v18, v20"); e("v_add_f32 v19, v19, v21")
        for sw in ("v_permlane16_swap_b32", "v_permlane32_swap_b32"):
            e("v_mov_b32 v20, v18"); e("v_mov_b32 v21, v19"); e("s_nop 0")
            e(f"{sw} v18, v20"); e(f"{sw} v19, v21"); e("s_nop 0")
            e("v_add_f32 v18, v18, v20"); e("v_add_f32 v19, v19, v21")
        e("s_mov_b64 exec, 0xffff")
        e(f"buffer_store_dwordx2 v[18:19], v16, s[12:15], s32 offen {SC}")
    k.stamp(st0+2)

def proj_l(k, wimg, nxt, src, sig=None, done=0):
    e = k.e
    if nxt is not None:
        ids_mt(k)
        e("s_min_u32 s17, s17, 14" if nxt == WA_I else "s_nop 0")
        e("s_mul_i32 s58, s17, 163840"); e("s_add_u32 s58, s58, s45"); e(f"s_add_u32 s58, s58, {nxt}")
    ids_rt(k)
    e("s_mul_i32 s50, s17, 102400"); e("s_add_u32 s50, s50, s45"); e(f"s_add_u32 s50, s50, {wimg}")
    e("s_mul_i32 s51, s16, 81920"); e("s_lshl_b32 s52, s17, 2"); e("s_add_u32 s52, s52, s39"); e("s_mul_i32 s52, s52, 2560"); e("s_add_u32 s51, s51, s52"); e(f"s_add_u32 s51, s51, {src}")
    e("v_min_u32 v21, 39, v1"); e("v_lshlrev_b32 v21, 6, v21")
    w = Wdma(k, 25, 50, "o"); k.vm = []
    T1, T2 = ENV('T1', '4'), ENV('T2', '3')
    if sig:
        n = ENV('N1', '2'); w.rng(done, done + n); signal(k, "s1l", 0, 8, sig, n); done += n
    w.rng(done, 25, T1 if sig else 0)
    w2 = Wdma(k, 40, 58)
    if nxt is not None: w2.rng(32, 39, T1 if sig else 0)
    k.waitvm("o24")
    e("s_barrier")
    if ENV('ATOUCH', '1'):
        k.vmop("buffer_load_dword v20, v21, s[12:15], s51 offen")
    if nxt is not None:
        w2.rng(25, 32)
        e("s_barrier")
        w2.rng(0, 15)
        e("s_barrier")
        k.waitvm("w14")
        w2.rng(15, 25, T2)
    return w2

def stats16(k, s, rstd, mop, mask):
    e = k.e
    e(f"v_add_f32 v{s}, v{s}, v{s+2}"); e(f"v_add_f32 v{s+1}, v{s+1}, v{s+3}")
    k.allred16("v_add_f32", s, s+2); k.allred16("v_add_f32", s+1, s+3)
    k.allred32("v_add_f32", s, s+2); k.allred32("v_add_f32", s+1, s+3)
    stats_finish(k, s, s+1, s+2, rstd, s+3)
    split3(k, s+2, mop, 17, 'm', mask)
def usum(k, u, dst, t=17):
    e = k.e
    e(f"v_add_f32 v{u}, v{u}, v{u+1}"); e(f"v_add_f32 v{u+2}, v{u+2}, v{u+3}"); e(f"v_add_f32 v{u}, v{u}, v{u+2}")
    split3(k, u, dst, t, 'u')
def scale_pack(k, a, sc, dst):
    for r in range(4): k.e(f"v_mul_f32 v{a+r}, v{a+r}, v{sc(r)}")
    for r in range(2): k.e(f"v_cvt_pk_bf16_f32 v{dst+r}, v{a+2*r}, v{a+2*r+1}")
EX = 102400
TOKF = (0, 1, 2, 3, 6); FEAF = (4, 5, 7)

def atouch_pre(k, xin):
    e = k.e
    e("s_mul_i32 s51, s16, 163840"); e("s_lshl_b32 s52, s17, 2"); e("s_add_u32 s52, s52, s39"); e("s_mul_i32 s52, s52, 2560"); e("s_add_u32 s51, s51, s52"); e(f"s_add_u32 s51, s51, {xin}")
    e("v_min_u32 v21, 39, v1"); e("v_lshlrev_b32 v21, 6, v21")

def qkvb_pre(k):
    e = k.e
    ids_mt(k)
    e("v_and_b32 v5, 15, v1"); e("v_lshrrev_b32 v6, 4, v1")
    e("s_lshl_b32 s22, s16, 3"); e("s_lshl_b32 s19, s39, 1"); e("s_add_u32 s19, s19, s22")
    e("v_lshlrev_b32 v11, 3, v5"); e("v_lshl_add_u32 v11, v6, 8, v11")
    e("v_lshlrev_b32 v14, 4, v5")
    e("s_lshl_b32 s30, s17, 11"); e(f"s_add_u32 s30, s30, {U_B}")
    e("v_cmp_eq_u32 vcc, 0, v6"); e("v_lshlrev_b32 v10, 4, v6"); e("s_nop 0"); e("v_cndmask_b32 v4, 0, -1, vcc")

def qkvb_c(k, L, xin, stin, st0):
    e = k.e; nm = k.name
    DA = 5
    ACC, BF, AR, RSV = 64, 160, 192, 228
    acc = lambda b, F: ACC + 32*b + 4*F
    qkvb_pre(k)
    for F in range(8): k.vmop(f"buffer_load_dwordx4 {vr(64+4*F,4)}, v14, s[12:15], s30 offen offset:{256*F}", "u")
    e("s_lshl_b32 s28, s19, 10"); e(f"s_add_u32 s28, s28, {stin}")
    e("s_mul_i32 s25, s19, 20480"); e(f"s_add_u32 s25, s25, {xin}"); e("s_add_u32 s26, s25, 20480")
    e("v_add_u32 v41, 65536, v3"); e("v_add_u32 v42, 131072, v3")
    def c2():
        e("s_lshl_b32 s48, s16, 9"); e(f"s_add_u32 s48, s48, {C2(L)}")
        e(f"v_lshlrev_b32 v{PV_+1}, 8, v1"); e(f"v_lshlrev_b32 v{PV_+2}, 3, v1"); e(f"v_sub_u32 v{PV_+2}, 16, v{PV_+2}")
        e("s_cmp_eq_u32 s16, 0"); e("s_cselect_b64 s[56:57], 1, 3")
    wait_go(k, "p3", 1, c2)
    k.stamp(st0)
    def ldA(ks):
        for b in range(2):
            if ks % 4 == 0 and ks > 0: e(f"s_add_u32 s{25+b}, s{25+b}, 4096")
            k.vmop(f"buffer_load_dwordx4 {vr(AR+8*(ks%DA)+4*b,4)}, v3, s[12:15], s{25+b} offen offset:{(ks%4)*1024} {SC}", f"a{ks}")
    ldA(0)
    for b in range(2):
        for q in range(2): k.vmop(f"buffer_load_dwordx2 {vr(24+4*b+2*q,2)}, v11, s[12:15], s28 offen offset:{1024*b+128*q} {SC}", "st")
    for ks in range(1, DA-1): ldA(ks)
    MC, MP, MP1 = 64, 68, 72
    NEG = fbits(-1e30)
    def prolog():
        k.waitvm("st")
        for b in (1, 2): stats16(k, 20+4*b, 48+b, 52+2*b, 4)
        for F in range(8): usum(k, 64+4*F, 20+2*F)
        for b in (1, 2):
            for r in range(4):
                e(f"v_add_u32 v18, {4*r}, v10")
                k.dsop(f"ds_bpermute_b32 v{RSV+4*b+r}, v18, v{48+b}", "rs")
        e("v_lshlrev_b32 v17, 2, v6"); e("v_sub_u32 v17, v5, v17")
        e(f"v_mov_b32 v19, {NEG}")
        for r in range(4):
            e(f"v_subrev_u32 v18, {r}, v17"); e("v_and_b32 v16, 0x80000001, v18")
            e("v_cmp_eq_u32 vcc, 0, v16"); e(f"v_cndmask_b32 v{MC+r}, v19, 0, vcc")
            e("v_cmp_eq_u32 vcc, 0x80000000, v16"); e(f"v_cndmask_b32 v{MP+r}, v19, 0, vcc")
        e("s_cmp_eq_u32 s19, 0"); e(f"s_cselect_b32 s34, {NEG}, 0")
        for r in range(4): e(f"v_add_f32 v{MP1+r}, s34, v{MP+r}")
        e("v_cmp_eq_u32 vcc, 2, v6"); e("v_cndmask_b32 v38, 0, -1, vcc")
        e("v_cmp_eq_u32 vcc, 3, v6"); e("v_cndmask_b32 v39, 0, -1, vcc")
        for b in (1, 2): e(f"v_mul_f32 v{58+b}, {fbits(CSCALE)}, v{48+b}")
        e("v_cmp_gt_u32 vcc, 2, v6")
        for b in (1, 2): e(f"v_cndmask_b32 v{35+b}, v{48+b}, v{58+b}, vcc")
        e("s_mul_i32 s35, s18, 5120"); e(f"s_add_u32 s35, s35, {EX}"); e("v_add_u32 v9, s35, v3")
        e("s_mul_i32 s24, s19, 20480"); e(f"s_add_u32 s24, s24, {OBT}")
        e("s_lshl_b32 s51, s17, 10"); e("s_add_u32 s51, s51, s24"); e("s_add_u32 s52, s51, 20480")
        e("s_lshr_b32 s53, s17, 2"); e("s_add_u32 s53, s53, 16"); e("s_lshl_b32 s53, s53, 10"); e("s_add_u32 s53, s53, s24")
        e("s_and_b32 s54, s17, 1"); e("s_lshl_b32 s54, s54, 9"); e("s_add_u32 s53, s53, s54")
        e("s_bfe_u32 s54, s17, 0x10001"); e("s_lshl_b32 s54, s54, 3"); e("s_add_u32 s53, s53, s54"); e("s_add_u32 s54, s53, 20480")
    fl = k.capture(prolog)
    def rd(ks, F):
        off = ks*8192 + 1024*F; hi = off >> 16
        k.dsop(f"ds_read_b128 {vr(BF+4*F,4)}, v{(3,41,42)[hi]} offset:{off & 0xffff}", f"b{ks}_{F}")
    def mm(b, F, ks):
        a = vr(AR+8*(ks%DA)+4*(b-1), 4); w = vr(BF+4*F, 4); c = vr(acc(b,F), 4); ci = c if ks else "0"
        if F in TOKF: e(f"v_mfma_f32_16x16x32_bf16 {c}, {w}, {a}, {ci}")
        else:         e(f"v_mfma_f32_16x16x32_bf16 {c}, {a}, {w}, {ci}")
    e("s_barrier")
    for F in range(8): rd(0, F)
    for ks in range(20):
        k.waitvm(f"a{ks}")
        if ks == 0: k.stamp(st0+1)
        if ks == 6: e("s_barrier")
        for F in range(8):
            if F % 2 == 0: k.waitlg(f"b{ks}_{F+1}")
            mm(1, F, ks)
            if ks >= 1: k.fill(fl, 1)
            mm(2, F, ks)
            if ks + 1 < 20: rd(ks+1, F)
            if F == 0 and ks + DA - 1 < 20: ldA(ks + DA - 1)
            if ks >= 1 and F % 2: k.fill(fl, 1)
        if ks == 18:
            k.fill(fl, 1000)
            for b in (1, 2):
                for F in range(8):
                    U, M = vr(20+2*F, 2), vr(52+2*b, 2)
                    if F in TOKF: e(f"v_mfma_f32_16x16x16_bf16 {vr(acc(b,F),4)}, {U}, {M}, {vr(acc(b,F),4)}")
                    else:         e(f"v_mfma_f32_16x16x16_bf16 {vr(acc(b,F),4)}, {M}, {U}, {vr(acc(b,F),4)}")
    k.stamp(st0+2)
    e("s_barrier")
    if os.environ.get("FOC") == "s3": k.stamp(3)
    e("s_cmp_eq_u32 s18, 0"); e(f"s_cbranch_scc0 {nm}_ni"); lw_init(k); k.label(f"{nm}_ni")
    KO = lambda b, h: BF + 8*b + 4*h
    QO = lambda b, h: BF + 24 + 8*(b-1) + 4*h
    VO = lambda F, b: BF + 40 + 8*FEAF.index(F) + 2*b
    def kv_pack(b):
        for h in range(2): scale_pack(k, acc(b, 2+h), lambda r: 48+b, KO(b,h))
        scale_pack(k, acc(b, 6), lambda r: 35+b, KO(b,0)+2)
        for r in range(2): e(f"v_mov_b32 v{KO(b,1)+2+r}, v{KO(b,0)+2+r}")
        for F in FEAF: scale_pack(k, acc(b, F), lambda r: RSV+4*b+r, VO(F,b))
    kv_pack(2)
    for h in range(2): e(f"ds_write_b128 v9, {vr(KO(2,h),4)} offset:{5120+1024*h}")
    for n, F in enumerate(FEAF): e(f"ds_write_b64 v9, {vr(VO(F,2),2)} offset:{5120+2048+1024*n}")
    kv_pack(1)
    e("s_waitcnt lgkmcnt(0)"); e("s_barrier")
    if os.environ.get("FOC") == "s3": k.stamp(4)
    for h in range(2): e(f"ds_read_b128 {vr(KO(0,h),4)}, v9 offset:{1024*h}")
    for n, F in enumerate(FEAF): e(f"ds_read_b64 {vr(VO(F,0),2)}, v9 offset:{2048+1024*n}")
    for b in (1, 2):
        for h in range(2): scale_pack(k, acc(b, h), lambda r: 58+b, QO(b,h))
        for r in range(2):
            e(f"v_mov_b32 v{40+2*r}, v{KO(b,0)+2+r}"); e(f"v_mov_b32 v{41+2*r}, v{KO(b,0)+2+r}")
        for r in range(2): e(f"v_permlane32_swap_b32 v{40+2*r}, v{41+2*r}")
        e("s_nop 0")
        for h in range(2):
            for r in range(2): e(f"v_and_b32 v{QO(b,h)+2+r}, v{40+2*r}, v{38+h}")
    e("s_waitcnt lgkmcnt(0)")
    units = [(b, h) for b in (1, 2) for h in range(2)]
    SU = lambda i: 20 + 8*i if i < 2 else 76 + 8*(i-2)
    TU = lambda i: ACC + 32 + 4*i
    PU = lambda i: ACC + 48 + 4*i
    OU = lambda i: ACC + 64 + 8*i
    for i, (b, h) in enumerate(units):
        e(f"v_mfma_f32_16x16x32_bf16 {vr(SU(i),4)}, {vr(KO(b-1,h),4)}, {vr(QO(b,h),4)}, {vr(MP1 if b == 1 else MP,4)}")
        e(f"v_mfma_f32_16x16x32_bf16 {vr(SU(i)+4,4)}, {vr(KO(b,h),4)}, {vr(QO(b,h),4)}, {vr(MC,4)}")
    def allred(op):
        for sw in ("v_permlane16_swap_b32", "v_permlane32_swap_b32"):
            for i in range(4): e(f"v_mov_b32 v{TU(i)+1}, v{TU(i)}")
            for i in range(4): e(f"{sw} v{TU(i)}, v{TU(i)+1}")
            for i in range(4): e(f"{op} v{TU(i)}, v{TU(i)}, v{TU(i)+1}")
    for i in range(4):
        s = SU(i)
        e(f"v_max3_f32 v{TU(i)}, v{s}, v{s+1}, v{s+2}"); e(f"v_max3_f32 v{TU(i)}, v{s+3}, v{s+4}, v{TU(i)}")
        e(f"v_max3_f32 v{TU(i)}, v{s+5}, v{s+6}, v{TU(i)}"); e(f"v_max_f32 v{TU(i)}, v{s+7}, v{TU(i)}")
    allred("v_max_f32")
    for i in range(4):
        for r in range(8): e(f"v_sub_f32 v{SU(i)+r}, v{SU(i)+r}, v{TU(i)}")
    for i in range(4):
        for r in range(8): e(f"v_exp_f32 v{SU(i)+r}, v{SU(i)+r}")
    for i in range(4):
        s = SU(i)
        e(f"v_add_f32 v{TU(i)}, v{s}, v{s+1}")
        for r in range(2, 8): e(f"v_add_f32 v{TU(i)}, v{TU(i)}, v{s+r}")
    allred("v_add_f32")
    for i in range(4): e(f"v_rcp_f32 v{TU(i)}, v{TU(i)}")
    for i in range(4):
        for r in range(8): e(f"v_mul_f32 v{SU(i)+r}, v{SU(i)+r}, v{TU(i)}")
        for r in range(4): e(f"v_cvt_pk_bf16_f32 v{PU(i)+r}, v{SU(i)+2*r}, v{SU(i)+2*r+1}")
    for i, (b, h) in enumerate(units):
        e(f"v_mfma_f32_16x16x32_bf16 {vr(OU(i),4)}, {vr(VO(4+h,b-1),4)}, {vr(PU(i),4)}, 0")
        e(f"v_mfma_f32_16x16x32_bf16 {vr(OU(i)+4,4)}, {vr(VO(7,b-1),4)}, {vr(PU(i),4)}, 0")
    e("v_cmp_eq_u32 vcc, 0, v6")
    for bi in range(2):
        o0, o1 = OU(2*bi), OU(2*bi+1); d = 40 + 8*bi
        e(f"v_cvt_pk_bf16_f32 v{d}, v{o0}, v{o0+1}"); e(f"v_cvt_pk_bf16_f32 v{d+1}, v{o0+2}, v{o0+3}")
        e(f"v_cvt_pk_bf16_f32 v{d+2}, v{o1}, v{o1+1}"); e(f"v_cvt_pk_bf16_f32 v{d+3}, v{o1+2}, v{o1+3}")
        e(f"buffer_store_dwordx4 {vr(d,4)}, v3, s[12:15], s{51+bi} offen {SC}")
        for r in range(4): e(f"v_cndmask_b32 v{o0+4+r}, v{o1+4+r}, v{o0+4+r}, vcc")
        e(f"v_cvt_pk_bf16_f32 v{d+4}, v{o0+4}, v{o0+5}"); e(f"v_cvt_pk_bf16_f32 v{d+5}, v{o0+6}, v{o0+7}")
    e("s_mov_b32 exec_hi, 0")
    for bi in range(2): e(f"buffer_store_dwordx2 {vr(44+8*bi,2)}, v3, s[12:15], s{53+bi} offen {SC}")

def qkvb_l(k, L, xin, stin, w):
    e = k.e; nm = k.name
    qkvb_pre(k)
    e("s_max_u32 s22, s22, 1"); e("s_sub_u32 s22, s22, 1")
    e("s_mul_i32 s24, s22, 20480"); e(f"s_add_u32 s24, s24, {xin}")
    e("s_lshl_b32 s27, s22, 10"); e(f"s_add_u32 s27, s27, {stin}")
    e("s_min_u32 s40, s39, 2")
    e("s_cmp_lt_u32 s39, 2"); e("s_cselect_b32 s41, 2, 4"); e("s_cselect_b32 s42, 4, 5")
    e("s_add_u32 s41, s41, s40"); e("s_add_u32 s42, s42, s40")
    e("s_lshl_b32 s43, s41, 8"); e("s_add_u32 s43, s43, s30"); e("s_lshl_b32 s44, s42, 8"); e("s_add_u32 s44, s44, s30")
    e("s_lshl_b32 s41, s41, 10"); e("s_lshl_b32 s42, s42, 10")
    for i in range(3):
        e(f"v_add_u32 v{40+i}, s41, v3"); e(f"v_add_u32 v{43+i}, s42, v3")
        if i: e(f"v_add_u32 v{40+i}, {65536*i}, v{40+i}"); e(f"v_add_u32 v{43+i}, {65536*i}, v{43+i}")
    atouch_pre(k, xin)
    e("s_barrier")
    if ENV('ATOUCH', '1'): k.vmop("buffer_load_dword v20, v21, s[12:15], s51 offen")
    w.one(39)
    e("s_cmp_eq_u32 s39, 3"); e(f"s_cbranch_scc1 {nm}_h3")
    for q in range(2): k.vmop(f"buffer_load_dwordx2 {vr(24+2*q,2)}, v11, s[12:15], s27 offen offset:{128*q} {SC}", "st")
    k.vmop("buffer_load_dwordx4 v[64:67], v14, s[12:15], s43 offen", "st")
    k.vmop("buffer_load_dwordx4 v[68:71], v14, s[12:15], s44 offen", "st")
    for ks in range(20):
        if ks % 4 == 0 and ks: e("s_add_u32 s24, s24, 4096")
        k.vmop(f"buffer_load_dwordx4 {vr(128+4*ks,4)}, v3, s[12:15], s24 offen offset:{(ks%4)*1024} {SC}", f"h{ks}")
        if ks == 3: k.waitvm("w39"); e("s_barrier")
    k.waitvm("st")
    stats16(k, 24, 48, 52, 4); usum(k, 64, 20); usum(k, 68, 22)
    for r in range(4):
        e(f"v_add_u32 v18, {4*r}, v10")
        k.dsop(f"ds_bpermute_b32 v{72+r}, v18, v48", "r")
    e("v_mfma_f32_16x16x16_bf16 v[80:83], v[20:21], v[52:53], 0")
    e("v_mfma_f32_16x16x16_bf16 v[84:87], v[52:53], v[22:23], 0")
    def rd(ks):
        off = ks*8192; hi = off >> 16; fb = 96 + 8*(ks%3)
        k.dsop(f"ds_read_b128 {vr(fb,4)}, v{40+hi} offset:{off & 0xffff}", f"r{ks}")
        k.dsop(f"ds_read_b128 {vr(fb+4,4)}, v{43+hi} offset:{off & 0xffff}", f"r{ks}")
    rd(0); rd(1)
    for ks in range(20):
        if ks + 2 < 20: rd(ks+2)
        k.waitvm(f"h{ks}"); k.waitlg(f"r{ks}")
        fb = 96 + 8*(ks%3)
        e(f"v_mfma_f32_16x16x32_bf16 v[80:83], {vr(fb,4)}, {vr(128+4*ks,4)}, v[80:83]")
        e(f"v_mfma_f32_16x16x32_bf16 v[84:87], {vr(128+4*ks,4)}, {vr(fb+4,4)}, v[84:87]")
    e("s_lshl_b32 s41, s39, 10"); e("s_cmp_lt_u32 s39, 2"); e("s_cselect_b32 s41, s41, 8"); e("s_cselect_b32 s42, s41, 1032")
    e("s_lshl_b32 s40, s40, 10")
    e(f"v_add_u32 v9, {EX}, v3"); e("v_add_u32 v12, s41, v9"); e("v_add_u32 v13, s42, v9"); e("v_add_u32 v15, s40, v9")
    scale_pack(k, 80, lambda r: 48, 88); scale_pack(k, 84, lambda r: 72+r, 90)
    e("s_barrier")
    e("ds_write_b64 v12, v[88:89]"); e("ds_write_b64 v13, v[88:89]"); e("ds_write_b64 v15, v[90:91] offset:2048")
    e("s_waitcnt lgkmcnt(0)")
    e(f"s_branch {nm}_h4")
    k.label(f"{nm}_h3")
    e("s_waitcnt vmcnt(0)"); e("s_barrier"); e("s_barrier")
    k.label(f"{nm}_h4")
    e("s_barrier")
    k.vm = []; k.lg = []

def one(k, target):
    k.e(f"v_mov_b32 v{PV_+1}, 0"); k.e(f"v_mov_b32 v{PV_+2}, {target}"); k.e("s_mov_b64 s[56:57], 1")

def addr_v(k, img):
    e = k.e
    e("s_sub_u32 s35, s17, 10"); e("s_lshl_b32 s35, s35, 7")
    e("s_mul_i32 s36, s19, 2560"); e(f"s_add_u32 s33, s36, {KVIMG[img]+1280}")
    e("v_mul_u32_u24 v20, 320, v4")
    for jf in range(4):
        e(f"v_add_u32 v16, s35, v10")
        if jf: e(f"v_add_u32 v16, {32*jf}, v16")
        e("v_mul_u32_u24 v17, 52429, v16"); e("v_lshrrev_b32 v17, 20, v17")
        e("v_mul_u32_u24 v18, 20, v17"); e("v_sub_u32 v18, v16, v18")
        e("v_mul_u32_u24 v17, 163840, v17"); e("v_lshl_add_u32 v17, v18, 4, v17")
        e(f"v_add_u32 v{24+jf}, v17, v20")
def addr_qk(k, img):
    e = k.e
    e("s_cmp_ge_u32 s17, 5")
    e(f"s_cselect_b32 s33, {QI}, 0"); e(f"s_cselect_b32 s59, 1.0, {fbits(CSCALE)}"); e("s_cselect_b32 s35, 5, 0"); e("s_cselect_b32 s37, 1, 0")
    e(f"s_add_u32 s33, s33, {QIMG[img]}")
    e("s_sub_u32 s35, s17, s35")
    e("s_mul_i32 s36, s19, 1280"); e("s_lshl_b32 s36, s36, s37"); e("s_add_u32 s33, s33, s36")
    e("s_lshl_b32 s34, 81920, s37")
    e("v_lshlrev_b32 v16, 4, v10"); e("v_lshlrev_b32 v17, 3, v10")
    e("v_lshl_add_u32 v18, v4, 9, v16")
    e("s_sub_u32 s36, s34, 512"); e("v_and_b32 v19, s36, v59"); e("v_add_u32 v19, v19, v16")
    e("s_mov_b32 s52, -1"); e("s_mov_b32 s53, 0"); e("s_mov_b32 s54, 0"); e("s_mov_b32 s55, -1")
def epi_qk(k, ACC, BF):
    e = k.e; nm = k.name
    for v in range(1, 5):
        e(f"s_cmp_eq_u32 s35, {v}"); e(f"s_cbranch_scc1 {nm}_e{v}")
    QSC = os.environ.get("QSC", "sc1")
    for v in range(5):
        if v: k.label(f"{nm}_e{v}")
        e("s_nop 7")
        for jf in range(4):
            for r in range(16): e(f"v_mul_f32 v{ACC+16*jf+r}, v{ACC+16*jf+r}, v47")
            for r in range(8): e(f"v_cvt_pk_bf16_f32 v{BF+8*jf+r}, v{ACC+16*jf+2*r}, v{ACC+16*jf+2*r+1}")
            for a2 in range(2):
                x = BF+8*jf+4*a2
                e(f"v_permlane32_swap_b32 v{x}, v{x+2}"); e(f"v_permlane32_swap_b32 v{x+1}, v{x+3}")
            for a2 in range(2):
                x = BF+8*jf+4*a2
                G = [32*v+8*jf+4*a2, 32*v+8*jf+4*a2+2]
                def main(g):
                    h = g // 5; r = g % 5
                    return h, (r // 2 if h % 2 == 0 else (r - 1) // 2)
                st = [g % 10 == 4 for g in G]
                def hoff(dst, h, c):
                    if h: e(f"s_mul_i32 s{dst}, s34, {h}"); e(f"s_add_u32 s{dst}, s{dst}, s33")
                    else: e(f"s_mov_b32 s{dst}, s33")
                    if c: e(f"s_add_u32 s{dst}, s{dst}, {c}")
                if not any(st):
                    (h0, p0), (h1, p1) = main(G[0]), main(G[1])
                    hoff(36, h0, 512*p0)
                    if h0 == h1: e(f"buffer_store_dwordx4 {vr(x,4)}, v18, s[12:15], s36 offen {QSC}")
                    else:        e(f"buffer_store_dwordx4 {vr(x,4)}, v19, s[12:15], s36 offen {QSC}")
                    assert (h0 == h1 and (p0, p1) == (0, 1)) or (h1 == h0 + 1 and (p0, p1) == (1, 0))
                else:
                    m = st.index(False); q = 1 - m
                    h, p = main(G[m]); hoff(36, h, 512*p); hoff(37, G[q] // 5, 1024); e("s_add_u32 s38, s37, s34")
                    e(f"s_mov_b64 exec, s[{52+2*m}:{53+2*m}]")
                    e(f"buffer_store_dwordx4 {vr(x,4)}, v16, s[12:15], s36 offen {QSC}")
                    e(f"s_mov_b64 exec, s[{52+2*q}:{53+2*q}]")
                    e(f"buffer_store_dwordx2 {vr(x,2)}, v17, s[12:15], s37 offen {QSC}")
                    e(f"buffer_store_dwordx2 {vr(x+2,2)}, v17, s[12:15], s38 offen {QSC}")
                    e("s_mov_b64 exec, -1")
        e(f"s_branch {nm}_fin5")
def epi_v(k, ACC, BF, RS):
    e = k.e
    VSC = os.environ.get("VSC", "sc1")
    for jf in range(4):
        for r in range(16): e(f"v_mul_f32 v{ACC+16*jf+r}, v{ACC+16*jf+r}, v{RS+r}")
        for r in range(8): e(f"v_cvt_pk_bf16_f32 v{BF+8*jf+r}, v{ACC+16*jf+2*r}, v{ACC+16*jf+2*r+1}")
        for u in range(2):
            e(f"buffer_store_dwordx4 {vr(BF+8*jf+4*u,4)}, v{24+jf}, s[12:15], s33 offen offset:{640*u} {VSC}")

def qkva_c(k, L, xin, stin, img, cnt, wbar, st0):
    e = k.e; nm = k.name
    DA = 5
    ACC, BF, AR, RS = 64, 128, 160, 200
    e("v_and_b32 v10, 31, v1"); e("v_lshrrev_b32 v4, 5, v1"); e("v_and_b32 v5, 15, v1")
    e("s_lshl_b32 s19, s16, 2"); e("s_add_u32 s19, s19, s18")
    e("v_lshlrev_b32 v12, 4, v10")
    e("s_lshl_b32 s31, s17, 11"); e(f"s_add_u32 s31, s31, {U_A}")
    for jf in range(4): k.vmop(f"buffer_load_dwordx4 {vr(24+4*jf,4)}, v12, s[12:15], s31 offen offset:{512*jf}", "u")
    e("v_bfe_u32 v7, v1, 4, 1"); e("v_mul_u32_u24 v8, 20480, v7"); e("v_lshl_add_u32 v8, v4, 8, v8"); e("v_lshl_add_u32 v8, v5, 4, v8")
    e("v_lshlrev_b32 v11, 10, v7"); e("v_lshl_add_u32 v11, v4, 9, v11"); e("v_lshl_add_u32 v11, v5, 3, v11")
    e("s_lshl_b32 s30, s19, 11"); e(f"s_add_u32 s30, s30, {stin}")
    e("s_mul_i32 s24, s19, 40960"); e(f"s_add_u32 s24, s24, {xin}")
    e("v_add_u32 v41, 65536, v3"); e("v_add_u32 v42, 131072, v3")
    e("v_subrev_u32 v58, 1, v4"); e("v_not_b32 v59, v58")
    sc = SC if cnt is not None else ""
    if cnt is not None:
        def c4(): one(k, 16); e("s_lshl_b32 s48, s16, 8"); e(f"s_add_u32 s48, s48, {cnt}")
        wait_go(k, "p5", 1, c4)
    k.stamp(st0)
    def ldA(ks):
        if ks % 4 == 0 and ks > 0: e("s_add_u32 s24, s24, 4096")
        for u in range(2):
            k.vmop(f"buffer_load_dwordx4 {vr(AR+8*(ks%DA)+4*u,4)}, v8, s[12:15], s24 offen offset:{(ks%4)*1024+512*u} {sc}", f"a{ks}")
    ldA(0)
    for q in range(4): k.vmop(f"buffer_load_dwordx2 {vr(16+2*q,2)}, v11, s[12:15], s30 offen offset:{128*q} {sc}", "st")
    for ks in range(1, DA-1): ldA(ks)
    def prolog(vmode):
        k.waitvm("st")
        e("v_add_f32 v16, v16, v18"); e("v_add_f32 v17, v17, v19"); e("v_add_f32 v20, v20, v22"); e("v_add_f32 v21, v21, v23")
        e("v_add_f32 v16, v16, v20"); e("v_add_f32 v17, v17, v21")
        k.allred32("v_add_f32", 16, 18); k.allred32("v_add_f32", 17, 18)
        stats_finish(k, 16, 17, 46, 47, 18)
        split3(k, 46, 48, 18, 'm', 58)
        for jf in range(4): usum(k, 24+4*jf, 50+2*jf, 18)
        if vmode:
            e("v_lshlrev_b32 v16, 4, v4")
            for r in range(16):
                e(f"v_add_u32 v17, {(8*(r//4) + r%4)*4}, v16")
                k.dsop(f"ds_bpermute_b32 v{RS+r}, v17, v47", "rs")
            addr_v(k, img)
        else:
            addr_qk(k, img); e("v_mul_f32 v47, s59, v47")
    e("s_cmp_ge_u32 s17, 10"); e(f"s_cbranch_scc1 {nm}_qv")
    vm_save = list(k.vm)
    def mainloop(vmode):
        acc = lambda jf: vr(ACC+16*jf, 16)
        fl = k.capture(lambda: prolog(vmode))
        def rd(ks, f):
            off = ks*8192 + 1024*f; hi = off >> 16
            k.dsop(f"ds_read_b128 {vr(BF+4*f,4)}, v{(3,41,42)[hi]} offset:{off & 0xffff}", f"b{ks}_{f}")
        e("s_barrier")
        for f in range(8): rd(0, f)
        for ks in range(20):
            k.waitvm(f"a{ks}")
            if ks == 0: k.stamp(st0+1)
            if ks + 1 in wbar: e("s_barrier")
            for f in range(8):
                u, jf = f//4, f%4
                if f % 2 == 0: k.waitlg(f"b{ks}_{f+1}")
                a = vr(AR+8*(ks%DA)+4*u, 4); b = vr(BF+4*f, 4); c = acc(jf) if (ks or u) else "0"
                if vmode: e(f"v_mfma_f32_32x32x16_bf16 {acc(jf)}, {a}, {b}, {c}")
                else:     e(f"v_mfma_f32_32x32x16_bf16 {acc(jf)}, {b}, {a}, {c}")
                if ks + 1 < 20: rd(ks+1, f)
                if f == 0 and ks + DA - 1 < 20: ldA(ks + DA - 1)
                if ks >= 1: k.fill(fl, 2)
            if ks == 15:
                k.fill(fl, 1000)
                for jf in range(4):
                    if vmode: e(f"v_mfma_f32_32x32x8_bf16 {acc(jf)}, v[48:49], {vr(50+2*jf,2)}, {acc(jf)}")
                    else:     e(f"v_mfma_f32_32x32x8_bf16 {acc(jf)}, {vr(50+2*jf,2)}, v[48:49], {acc(jf)}")
        k.stamp(st0+2)
    mainloop(False)
    epi_qk(k, ACC, BF)
    k.label(f"{nm}_qv"); k.vm = vm_save; k.lg = []
    mainloop(True)
    epi_v(k, ACC, BF, RS)
    k.label(f"{nm}_fin5")

def k_qkva():
    k = KB("qkva_kernel"); e = k.e
    common(k); ids_mt(k)
    e("s_cmp_ge_u32 s17, 15"); e("s_cbranch_scc1 qkva_kernel_end")
    e("v_lshlrev_b32 v3, 4, v1")
    e("s_mul_i32 s50, s17, 163840"); e("s_add_u32 s50, s50, s45"); e(f"s_add_u32 s50, s50, {WA_I}")
    e("s_waitcnt lgkmcnt(0)")
    k.stamp(2); k.srd(12, 6, WS_END)
    e("s_cmp_ge_u32 s18, 4"); e("s_cbranch_scc1 qkva_kernel_ld")
    WB = [1, 2, 4, 6, 8, 10, 12, 14, 16, 18]
    qkva_c(k, 0, XT[0], ST[0], 0, None, WB, 3)
    k.stamp(6); k.dump(8)
    e("s_endpgm")
    k.label("qkva_kernel_ld"); k.vm = []; k.lg = []
    w = Wdma(k, 40); LA = ENV('QLA', '5')
    bars = [0] + WB
    for i, s_ in enumerate(bars):
        last = (bars[i+1] if i + 1 < len(bars) else 20) - 1
        w.go(2*(last+1) + (LA if i else 2))
        k.waitvm(f"w{2*last+1}"); e("s_barrier")
    k.label("qkva_kernel_end"); e("s_endpgm")
    return k.text(216, 216)


def k_front():
    k = KB("front_kernel"); e = k.e; nm = k.name
    R, DEP, SCRB, UT = 4, 2, 131072, 65536
    NEED = [0, 1, 3, 4, 4]
    need = lambda ks: (5*(ks//5) + NEED[ks%5]) // 2
    slot = lambda st: (st % R) * 32768
    e("s_cmp_ge_u32 s2, 256"); e(f"s_cbranch_scc1 {nm}_end"); k.stamp(0); k.rstamp(1)
    e("s_load_dwordx4 s[60:63], s[0:1], 0"); e("s_load_dwordx2 s[6:7], s[0:1], 64")
    e("s_load_dwordx2 s[46:47], s[0:1], 16"); e("s_load_dwordx4 s[40:43], s[0:1], 32")
    e("s_and_b32 s20, s2, 7"); e("s_lshr_b32 s21, s2, 3")
    e("v_lshrrev_b32 v2, 6, v0"); e("v_and_b32 v1, 63, v0")
    e("v_readfirstlane_b32 s18, v2")
    e("s_and_b32 s39, s18, 3"); e("s_lshl_b32 s45, s39, 10")
    ids_mt(k)
    e("v_lshlrev_b32 v3, 4, v1"); e("v_lshlrev_b32 v9, 6, v1")
    e("s_lshl_b32 s22, s2, 3"); e("s_add_u32 s22, s22, s18"); e("s_mul_i32 s23, s22, 1200"); e("s_mul_i32 s22, s22, 1280")
    e("s_waitcnt lgkmcnt(0)")
    k.stamp(2)
    k.srd(8, 60, S*D*2); k.srd(28, 62, D*3*D*2); k.srd(12, 6, WS_END)
    if ENV('BURST', '1'):
        e("s_mov_b64 exec, 0xfffff")
        e("buffer_load_dword v240, v9, s[8:11], s22 offen"); e("buffer_load_dword v241, v9, s[28:31], s23 offen")
        e("s_mov_b64 exec, -1")
    if ENV('CPF', '1'):
        e("s_getpc_b64 s[34:35]"); k.label(f"{nm}_pc")
        e(f"s_sub_u32 s34, s34, {nm}_pc - {nm}"); e("s_subb_u32 s35, s35, 0")
        e("v_lshlrev_b32 v242, 3, v0"); e("s_lshl_b32 s36, s21, 12"); e("v_add_u32 v242, s36, v242")
        e(f"v_and_b32 v242, 0xffffffc0, v242"); e(f"v_min_u32 v242, code_end - {nm} - 4, v242")
        e("s_mov_b64 exec, 0x0101010101010101" if False else "s_nop 0")
        e("global_load_dword v243, v242, s[34:35]")
    e("s_cmp_ge_u32 s17, 15"); e(f"s_cbranch_scc1 {nm}_ub")
    e("v_and_b32 v10, 31, v1"); e("v_lshrrev_b32 v4, 5, v1"); e("v_and_b32 v5, 15, v1"); e("v_bfe_u32 v7, v1, 4, 1")
    e("v_lshrrev_b32 v13, 2, v5"); e("v_and_b32 v6, 3, v1")
    e("v_lshl_add_u32 v14, v4, 2, v13"); e("v_lshlrev_b32 v14, 8, v14"); e("v_lshl_add_u32 v14, v7, 5, v14"); e("v_lshl_add_u32 v14, v6, 3, v14")
    e("v_add_u32 v14, 16384, v14")
    e("s_mul_i32 s48, s17, 16"); e("s_add_u32 s48, s48, s16"); e("s_lshl_b32 s48, s48, 2"); e("s_add_u32 s48, s48, s39")
    e("s_lshl_b32 s49, s39, 13"); e(f"s_add_u32 s49, s49, {SCRB}")
    e("s_mul_i32 s50, s48, 3277"); e("s_lshr_b32 s50, s50, 16"); e("s_mul_i32 s51, s50, 20"); e("s_sub_u32 s51, s48, s51")
    SF = ENV('SF', '8')
    e("s_cmp_ge_u32 s18, 4"); e(f"s_cbranch_scc1 {nm}_ld")
    ACC, BF, AR, RS = 64, 128, 160, 200
    BA, AA = 216, 224
    def side_issue():
        e("v_lshrrev_b32 v35, 4, v1")
        e("s_cmp_ge_u32 s48, 640"); e(f"s_cbranch_scc1 {nm}_s2")
        e("s_cmp_ge_u32 s48, 320"); e(f"s_cbranch_scc1 {nm}_s1")
        k.srd(52, 40, D*3*D*2)
        e("s_mul_i32 s56, s51, 52"); e("s_lshr_b32 s56, s56, 8"); e("s_mul_i32 s57, s56, 5"); e("s_sub_u32 s57, s51, s57")
        e("s_lshl_b32 s58, s57, 5"); e("s_cmp_ge_u32 s57, 2"); e("s_cselect_b32 s59, 16, 0"); e("s_add_u32 s58, s58, s59")
        e("s_add_u32 s59, s58, 16"); e("s_cmp_eq_u32 s57, 4"); e("s_cselect_b32 s58, 64, s58"); e("s_cselect_b32 s59, 144, s59")
        e("s_mul_i32 s56, s56, 160"); e("s_add_u32 s58, s58, s56"); e("s_add_u32 s59, s59, s56")
        e("s_mul_i32 s58, s58, 3840"); e("s_mul_i32 s59, s59, 3840"); e("s_mul_i32 s56, s50, 80"); e("s_add_u32 s58, s58, s56"); e("s_add_u32 s59, s59, s56")
        for par in range(2):
            e(f"v_add_u32 v32, {4*par}, v35"); e("v_lshlrev_b32 v32, 1, v32"); e("v_xor_b32 v32, v32, v5"); e("v_min_u32 v32, 14, v32")
            e("v_mul_u32_u24 v33, 52, v32"); e("v_lshrrev_b32 v33, 8, v33"); e("v_mul_u32_u24 v33, 1200, v33"); e("v_lshl_add_u32 v33, v32, 4, v33")
            e("v_mul_u32_u24 v32, 3840, v35"); e(f"v_add_u32 v{36+par}, v33, v32")
        for t in range(2):
            for i in range(4):
                e(f"s_add_u32 m0, s49, {4096*t+1024*i}"); e(f"s_add_u32 s32, s{58+t}, {4*3840*i}")
                e(f"buffer_load_dwordx4 v{36+i%2}, s[52:55], s32 offen nt lds")
        e(f"s_branch {nm}_s2")
        k.label(f"{nm}_s1")
        e("s_cmp_ge_u32 s50, 24"); e("s_cselect_b32 s56, s42, s46"); e("s_cselect_b32 s57, s43, s47")
        k.srd(52, 56, D*D*2)
        e("s_and_b32 s56, s50, 7"); e("s_mul_i32 s56, s56, 160")
        e("s_mul_i32 s58, s51, 40"); e("s_sub_u32 s59, s51, 16"); e("s_mul_i32 s59, s59, 160"); e("s_add_u32 s59, s59, 16")
        e("s_cmp_lt_u32 s51, 16"); e("s_cselect_b32 s58, s58, s59"); e("s_cselect_b32 s57, 4, 2"); e("s_cselect_b32 s59, 4, 16")
        e("s_mul_i32 s58, s58, 1280"); e("s_add_u32 s58, s58, s56")
        for i in range(5):
            e(f"v_add_u32 v32, {64*i}, v1"); e("v_mul_u32_u24 v33, 6554, v32"); e("v_lshrrev_b32 v33, 16, v33")
            e("v_lshrrev_b32 v34, s57, v33"); e("v_mul_u32_u24 v34, s59, v34"); e("v_mul_u32_u24 v34, 1280, v34")
            e("v_mul_u32_u24 v33, 1120, v33"); e("v_add_u32 v34, v34, v33"); e("v_lshl_add_u32 v34, v32, 4, v34")
            e(f"s_add_u32 m0, s49, {1024*i}"); e("s_nop 0")
            e("buffer_load_dwordx4 v34, s[52:55], s58 offen nt lds")
        k.label(f"{nm}_s2")
    side_issue()
    e("s_lshl_b32 s19, s16, 2"); e("s_add_u32 s19, s19, s18")
    for jf in range(4):
        e(f"v_xor_b32 v15, {jf}, v13"); e(f"v_lshl_add_u32 v{BA+jf}, v15, 6, v14"); e(f"v_add_u32 v{BA+4+jf}, 65536, v{BA+jf}")
    e("v_lshl_add_u32 v15, v2, 5, v10"); e("v_lshlrev_b32 v15, 7, v15"); e("v_lshl_add_u32 v15, v4, 3, v15"); e("v_bfe_u32 v12, v10, 1, 3")
    for q in range(8):
        e(f"v_xor_b32 v11, {q}, v12"); e(f"v_lshl_add_u32 v{AA+q}, v11, 4, v15"); e(f"v_add_u32 v{AA+8+q}, 65536, v{AA+q}")
    e("v_mul_u32_u24 v8, 20480, v7"); e("v_lshl_add_u32 v8, v4, 8, v8"); e("v_lshl_add_u32 v8, v5, 4, v8")
    e("s_mul_i32 s24, s19, 40960"); e(f"s_add_u32 s24, s24, {XT[0]}")
    e("v_subrev_u32 v58, 1, v4"); e("v_not_b32 v59, v58")
    e("v_mov_b32 v60, 0x3f803f80"); e("v_mov_b32 v44, 0"); e("v_mov_b32 v45, 0")
    e("s_cmp_ge_u32 s17, 10"); e(f"s_cbranch_scc1 {nm}_qv")
    def side_finish(tg):
        e("s_mov_b32 s56, 0x7ff00000"); e("s_mov_b32 s57, s56"); e("s_mov_b32 s58, s56")
        e("s_cmp_ge_u32 s48, 640"); e(f"s_cbranch_scc1 {nm}_{tg}g2")
        e("s_waitcnt vmcnt(0) lgkmcnt(0)")
        e("s_cmp_ge_u32 s48, 320"); e(f"s_cbranch_scc1 {nm}_{tg}f1")
        e("v_lshl_add_u32 v32, v35, 2, v13"); e("v_and_b32 v33, 7, v32"); e("v_lshlrev_b32 v33, 5, v33"); e("v_lshlrev_b32 v32, 8, v32"); e("v_add_u32 v32, s49, v32")
        e("s_mul_i32 s56, s50, 163840"); e("s_lshl_b32 s57, s51, 13"); e("s_add_u32 s56, s56, s57"); e(f"s_add_u32 s56, s56, {WB_I}"); e("s_add_u32 s57, s56, 4096"); e("s_mov_b32 s58, s57")
        for F in range(8):
            if F < 6:
                e("v_lshlrev_b32 v34, 3, v6")
                if F: e(f"v_add_u32 v34, {40*F}, v34")
            elif F == 6: e("v_mul_u32_u24 v34, 40, v6"); e("v_add_u32 v34, 32, v34")
            else: e("v_and_b32 v34, 1, v6"); e("v_mul_u32_u24 v34, 40, v34"); e("v_add_u32 v34, 192, v34")
            e("v_xor_b32 v34, v34, v33"); e("v_add_u32 v34, v34, v32")
            for t in range(2): e(f"ds_read_b64_tr_b16 {vr(176+4*F+2*t,2)}, v34 offset:{4096*t}")
            if F == 3: e("s_waitcnt lgkmcnt(0)")
        e(f"s_branch {nm}_{tg}f2")
        k.label(f"{nm}_{tg}f1")
        e("v_lshlrev_b32 v32, 2, v35"); e("s_mov_b32 s56, 2560")
        e("s_cmp_ge_u32 s50, 24"); e(f"s_cbranch_scc1 {nm}_{tg}f3"); e("s_cmp_ge_u32 s51, 16"); e(f"s_cbranch_scc1 {nm}_{tg}f3")
        e("v_lshrrev_b32 v32, 1, v35"); e("v_lshlrev_b32 v32, 4, v32"); e("v_and_b32 v33, 1, v35"); e("v_lshl_add_u32 v32, v33, 2, v32"); e("s_mov_b32 s56, 1280")
        k.label(f"{nm}_{tg}f3")
        e("v_add_u32 v32, v32, v13"); e("v_mul_u32_u24 v32, 160, v32"); e("v_lshl_add_u32 v32, v6, 3, v32"); e("v_add_u32 v32, s49, v32"); e("v_add_u32 v33, s56, v32")
        for nf in range(5):
            for t in range(2): e(f"ds_read_b64_tr_b16 {vr(176+4*nf+2*t,2)}, v{32+t} offset:{32*nf}")
        e("s_cmp_ge_u32 s50, 24"); e(f"s_cselect_b32 s56, {WOB_I-WOA_I}, 0"); e("s_and_b32 s57, s50, 7"); e("s_mul_i32 s57, s57, 102400"); e("s_add_u32 s56, s56, s57")
        e("s_mul_i32 s57, s51, 5120"); e("s_add_u32 s56, s56, s57"); e(f"s_add_u32 s56, s56, {WOA_I}"); e("s_add_u32 s57, s56, 4096")
        k.label(f"{nm}_{tg}f2")
        e("s_waitcnt lgkmcnt(0)")
        k.label(f"{nm}_{tg}g2")
    def mainloop(vmode):
        tagm = "v" if vmode else "q"
        acc = lambda jf: vr(ACC+16*jf, 16)
        fl = k.capture(lambda: addr_v(k, 0) if vmode else addr_qk(k, 0))
        def loc(ks, t):
            F = FX(ks, t); return slot(F//64), F % 64
        def rdB(ks, f):
            u, jf = f//4, f%4
            for t in range(2):
                sl, rin = loc(ks, t); off = sl + (rin + 8*u)*256
                k.dsop(f"ds_read_b64_tr_b16 {vr(BF+4*f+2*t,2)}, v{BA+4*(sl>>16)+jf} offset:{off & 0xffff}", f"b{ks}_{f}")
        def rdA(ks):
            for u in range(2):
                for t in range(2):
                    sl, rin = loc(ks, t)
                    k.dsop(f"ds_read_b64 {vr(AR+8*(ks%2)+4*u+2*t,2)}, v{AA+8*(sl>>16)+rin//8+u} offset:{sl & 0xffff}", f"b{ks}_a")
        kb = [-1]
        def bars(ks):
            while kb[0] < need(ks):
                if k.lg: e("s_waitcnt lgkmcnt(0)"); k.lg = []
                e("s_barrier"); kb[0] += 1
        bars(0); k.stamp(3)
        rdA(0)
        for f in range(8): rdB(0, f)
        for ks in range(20):
            for f in range(8):
                u, jf = f//4, f%4
                k.waitlg(f"b{ks}_{f}")
                a = vr(AR+8*(ks%2)+4*u, 4); b = vr(BF+4*f, 4); c = acc(jf) if (ks or u) else "0"
                if vmode: e(f"v_mfma_f32_32x32x16_bf16 {acc(jf)}, {a}, {b}, {c}")
                else:     e(f"v_mfma_f32_32x32x16_bf16 {acc(jf)}, {b}, {a}, {c}")
                if ks + 1 < 20:
                    if f == 0: bars(ks+1); rdA(ks+1)
                    rdB(ks+1, f)
                if ks >= 1: k.fill(fl, 1)
            for r in range(8): e(f"v_dot2_f32_bf16 v44, v{AR+8*(ks%2)+r}, v60, v44")
            for r in range(8): e(f"v_dot2_f32_bf16 v45, v{AR+8*(ks%2)+r}, v{AR+8*(ks%2)+r}, v45")
            e(f"s_cmp_eq_u32 s17, {ks % 15}"); e(f"s_cbranch_scc0 {nm}_x{tagm}{ks}")
            e(f"s_add_u32 s32, s24, {1024*ks}")
            for u in range(2): e(f"buffer_store_dwordx4 {vr(AR+8*(ks%2)+4*u,4)}, v8, s[12:15], s32 offen offset:{512*u} {SC}")
            k.label(f"{nm}_x{tagm}{ks}")
            if ks == SF: side_finish(tagm)
            if SF < ks <= SF + 8:
                F = ks - SF - 1
                e(f"buffer_store_dwordx4 {vr(176+4*F,4)}, v3, s[12:15], s{56 if F < 4 else 57 if F == 4 else 58} offen offset:{1024*(F%4)} {SC}")
        assert not fl
        k.stamp(4)
        k.allred32("v_add_f32", 44, 20); k.allred32("v_add_f32", 45, 21)
        stats_finish(k, 44, 45, 46, 47, 20)
        split3(k, 46, 48, 20, 'm', 58)
        e(f"v_lshlrev_b32 v23, 2, v10")
        if vmode:
            e("v_lshlrev_b32 v20, 4, v4")
            for r in range(16):
                e(f"v_add_u32 v21, {(8*(r//4) + r%4)*4}, v20")
                e(f"ds_bpermute_b32 v{RS+r}, v21, v47")
        else: e("v_mul_f32 v47, s59, v47")
        e("s_barrier")
        e(f"v_add_u32 v23, {UT}, v23")
        for jf in range(4): e(f"ds_read_b32 v{28+jf}, v23 offset:{128*jf}")
        e("s_waitcnt lgkmcnt(0)"); k.lg = []
        for jf in range(4):
            split3(k, 28+jf, 50+2*jf, 20, 'u')
            if vmode: e(f"v_mfma_f32_32x32x8_bf16 {acc(jf)}, v[48:49], {vr(50+2*jf,2)}, {acc(jf)}")
            else:     e(f"v_mfma_f32_32x32x8_bf16 {acc(jf)}, {vr(50+2*jf,2)}, v[48:49], {acc(jf)}")
        k.stamp(5)
    mainloop(False)
    epi_qk(k, ACC, BF)
    k.label(f"{nm}_qv"); k.lg = []
    mainloop(True)
    epi_v(k, ACC, BF, RS)
    k.label(f"{nm}_fin5")
    k.stamp(6); k.dump(8)
    e("s_endpgm")
    k.label(f"{nm}_ld"); k.vm = []; k.lg = []
    e("v_lshrrev_b32 v16, 4, v1"); e("v_and_b32 v17, 3, v2")
    e("v_lshl_add_u32 v18, v17, 2, v16"); e("v_mul_u32_u24 v20, 3840, v18")
    e("v_xor_b32 v18, v13, v16"); e("v_lshl_add_u32 v20, v18, 6, v20"); e("v_lshl_add_u32 v20, v6, 4, v20")
    e("v_lshrrev_b32 v18, 3, v1"); e("v_lshl_add_u32 v19, v17, 5, v18"); e("v_and_b32 v23, 7, v1")
    for i in range(4):
        e(f"v_add_u32 v42, {8*i}, v19"); e("v_bfe_u32 v43, v42, 1, 3"); e("v_xor_b32 v43, v43, v23")
        e("v_mul_u32_u24 v42, 1280, v42"); e(f"v_lshl_add_u32 v{48+i}, v43, 4, v42")
        if i: e(f"v_subrev_u32 v{48+i}, {1024*i}, v{48+i}")
    e("s_lshl_b32 s25, s17, 8"); e("s_mul_i32 s24, s16, 163840"); e("s_lshl_b32 s26, s39, 12")
    def ld(st):
        for i in range(4):
            e(f"s_add_u32 m0, s45, {slot(st)+16384+4096*i}"); e(f"s_add_u32 s32, s25, {(64*st+16*i)*3840}")
            k.vmop("buffer_load_dwordx4 v20, s[28:31], s32 offen lds", f"d{st}")
            if i == 1:
                e(f"s_add_u32 m0, s26, {slot(st)}"); e(f"s_add_u32 s33, s24, {128*st}")
                for q in range(4): k.vmop(f"buffer_load_dwordx4 v{48+q}, s[8:11], s33 offen offset:{1024*q} lds", f"d{st}")
    for kb in range(DEP): ld(kb)
    e("v_xor_b32 v15, v17, v13"); e("v_lshl_add_u32 v40, v15, 6, v14"); e("v_add_u32 v41, 65536, v40")
    e("v_mov_b32 v45, 0"); e("v_mov_b32 v44, 0")
    e("s_mul_i32 s27, s17, 163840"); e("s_add_u32 s27, s27, s45"); e(f"s_add_u32 s27, s27, {WA_I}")
    done = [0]
    def steps_upto(kb):
        while done[0] < 20 and need(done[0]) <= kb:
            ks = done[0]; done[0] += 1; fb = 96 + 8*(ks%2)
            for u in range(2):
                for t in range(2):
                    F = FX(ks, t); sl = slot(F//64)
                    e(f"ds_read_b64_tr_b16 {vr(fb+4*u+2*t,2)}, v{40+(sl>>16)} offset:{(sl + (F%64 + 8*u)*256) & 0xffff}")
            e("s_waitcnt lgkmcnt(0)")
            for r in range(8):
                e(f"v_lshlrev_b32 v46, 16, v{fb+r}"); e(f"v_and_b32 v47, 0xffff0000, v{fb+r}"); e("v_add_f32 v44, v44, v46"); e("v_add_f32 v45, v45, v47")
            e(f"s_cmp_eq_u32 s16, {ks % 16}"); e(f"s_cbranch_scc0 {nm}_w{ks}")
            for r in range(8): e(f"v_mov_b32 v{112+8*(ks//16)+r}, v{fb+r}")
            k.label(f"{nm}_w{ks}")
    def wa_store(q):
        e("s_lshl_b32 s32, s16, 13"); e("s_add_u32 s32, s32, s27")
        if q: e("s_add_u32 s32, s32, 131072")
        e("s_add_u32 s33, s32, 4096")
        for u in range(2): k.vmop(f"buffer_store_dwordx4 {vr(112+8*q+4*u,4)}, v3, s[12:15], s{32+u} offen {SC}")
    for kb in range(10):
        k.waitvm(f"d{kb}"); e("s_barrier")
        if kb + DEP < 10: ld(kb + DEP)
        steps_upto(kb)
        if kb == 8: wa_store(0)
    e("v_add_f32 v44, v44, v45")
    k.allred32("v_add_f32", 44, 45)
    e("v_lshlrev_b32 v24, 2, v10"); e("s_lshl_b32 s32, s39, 7"); e(f"s_add_u32 s32, s32, {UT}"); e("v_add_u32 v24, s32, v24")
    e("ds_write_b32 v24, v44"); e("s_waitcnt lgkmcnt(0)"); e("s_barrier")
    e("s_cmp_ge_u32 s16, 4"); e(f"s_cbranch_scc1 {nm}_end"); wa_store(1)
    e("s_cmp_eq_u32 s16, 0"); e(f"s_cbranch_scc0 {nm}_end")
    e("v_mov_b32 v45, 0"); e("v_mov_b32 v46, 0"); e("v_mov_b32 v47, 0"); e("v_lshlrev_b32 v24, 4, v10")
    e("s_lshl_b32 s32, s17, 11"); e("s_lshl_b32 s33, s39, 9"); e("s_add_u32 s32, s32, s33"); e(f"s_add_u32 s32, s32, {U_A}")
    e("s_mov_b32 exec_hi, 0"); e(f"buffer_store_dwordx4 v[44:47], v24, s[12:15], s32 offen {SC}")
    e("s_endpgm")
    k.label(f"{nm}_ub"); k.vm = []; k.lg = []
    k.srd(52, 40, D*3*D*2)
    for j in range(8): e(f"v_mov_b32 v{8+j}, 0")
    e("v_lshlrev_b32 v4, 4, v0"); e("s_lshl_b32 s24, s16, 13"); e(f"s_add_u32 s24, s24, {CNT}")
    k.vmop(f"buffer_store_dwordx4 v[8:11], v4, s[12:15], s24 offen {SC}")
    e("v_and_b32 v5, 15, v0"); e("v_lshrrev_b32 v6, 4, v0"); e("v_min_u32 v7, 14, v5")
    e("v_mul_u32_u24 v16, 52, v7"); e("v_lshrrev_b32 v16, 8, v16"); e("v_mul_u32_u24 v16, 1200, v16"); e("v_lshl_add_u32 v16, v7, 4, v16")
    e("v_mul_u32_u24 v17, 3840, v6"); e("v_add_u32 v16, v16, v17"); e("s_mul_i32 s24, s16, 80")
    for i in range(20):
        k.vmop(f"buffer_load_dwordx4 {vr(24+4*i,4)}, v16, s[52:55], s24 offen", f"w{i}")
        if i < 19: e(f"s_add_u32 s24, s24, {32*3840}")
    for i in range(20):
        k.waitvm(f"w{i}")
        for j in range(4):
            r = 24+4*i+j
            e(f"v_lshlrev_b32 v18, 16, v{r}"); e(f"v_and_b32 v19, 0xffff0000, v{r}")
            e(f"v_add_f32 v{8+2*j}, v{8+2*j}, v18"); e(f"v_add_f32 v{9+2*j}, v{9+2*j}, v19")
    e("v_lshlrev_b32 v4, 5, v0")
    e("ds_write_b128 v4, v[8:11]"); e("ds_write_b128 v4, v[12:15] offset:16")
    e("s_waitcnt lgkmcnt(0)"); e("s_barrier")
    e("v_cmp_gt_u32 vcc, 128, v0"); e("s_and_saveexec_b64 s[24:25], vcc"); e(f"s_cbranch_execz {nm}_end")
    e("v_lshrrev_b32 v6, 4, v0"); e("v_mul_u32_u24 v7, 20, v6"); e("v_add_u32 v7, v7, v5")
    e("v_lshrrev_b32 v16, 2, v5"); e("v_and_b32 v17, 3, v5"); e("v_mul_u32_u24 v18, 20, v16"); e("v_add3_u32 v18, v18, v17, 16")
    e("v_and_b32 v16, 1, v16"); e("v_mul_u32_u24 v19, 20, v16"); e("v_add_u32 v19, v19, v17"); e("v_add_u32 v19, 96, v19")
    e("v_cmp_eq_u32 vcc, 6, v6"); e("v_cndmask_b32 v7, v7, v18, vcc"); e("v_cmp_eq_u32 vcc, 7, v6"); e("v_cndmask_b32 v7, v7, v19, vcc")
    e("v_lshlrev_b32 v7, 2, v7"); e("v_mov_b32 v8, 0")
    for b in range(4):
        for i in range(8): e(f"ds_read_b32 v{24+i}, v7 offset:{(8*b+i)*512}")
        e("s_waitcnt lgkmcnt(0)")
        for i in range(8): e(f"v_add_f32 v8, v8, v{24+i}")
    e("v_mov_b32 v9, 0"); e("v_mov_b32 v10, 0"); e("v_mov_b32 v11, 0"); e("v_lshlrev_b32 v4, 4, v0")
    e("s_lshl_b32 s26, s16, 11"); e(f"s_add_u32 s26, s26, {U_B}")
    e(f"buffer_store_dwordx4 v[8:11], v4, s[12:15], s26 offen {SC}")
    k.label(f"{nm}_end"); e("s_endpgm")
    return k.text(244, 244)

def k_chain(name, L):
    final = L == 1
    k = KB(name); e = k.e
    common(k)
    ph_attn(k, L)
    k.stamp(5)
    xa, xb, xc = XT[2*L], XT[2*L+1], XT[2]
    def a1():
        e("s_lshl_b32 s48, s17, 3"); e("s_and_b32 s49, s16, 1"); e("s_add_u32 s48, s48, s49"); e("s_lshl_b32 s48, s48, 8"); e(f"s_add_u32 s48, s48, {C1(L)}")
        e(f"v_lshlrev_b32 v{PV_+1}, 9, v1"); e("s_mov_b64 s[56:57], 15")
    e("s_cmp_ge_u32 s18, 4"); e(f"s_cbranch_scc1 {name}_ld")
    signal(k, "s1", 0, 8, a1)
    def c1():
        e("s_lshl_b32 s48, s16, 9"); e(f"s_add_u32 s48, s48, {C1(L)}")
        e(f"v_lshlrev_b32 v{PV_+1}, 8, v1"); e(f"v_mov_b32 v{PV_+2}, 16"); e("s_mov_b64 s[56:57], 3")
    proj_c(k, "p2", OT, xa, xb, ST[2*L+1], False, c1, 0, 6)
    def a2():
        e("s_lshr_b32 s48, s16, 1"); e("s_lshl_b32 s48, s48, 9"); e(f"s_add_u32 s48, s48, {C2(L)}")
        e(f"v_mul_u32_u24 v{PV_+1}, 768, v1"); e("s_bitcmp1_b32 s16, 0"); e("s_cselect_b64 s[56:57], 3, 1")
    signal(k, "s2", 1, 4, a2)
    qkvb_c(k, L, xb, ST[2*L+1], 9)
    def a3(): one(k, 0); e("s_lshl_b32 s48, s16, 8"); e(f"s_add_u32 s48, s48, {C3(L)}")
    signal(k, "s3", 0, 4, a3)
    def c3(): one(k, 16); e("s_lshr_b32 s48, s16, 1"); e("s_lshl_b32 s48, s48, 8"); e(f"s_add_u32 s48, s48, {C3(L)}")
    if final:
        proj_c(k, "p4", OBT, xb, None, None, True, c3, 0, 12)
    else:
        S_ = k.stamp
        proj_c(k, "p4", OBT, xb, xc, ST[2], False, c3, 0, 12)
        def a4(): one(k, 0); e("s_lshr_b32 s48, s16, 1"); e("s_lshl_b32 s48, s48, 8"); e(f"s_add_u32 s48, s48, {C4(L)}")
        signal(k, "s4", 1, 4, a4)
        ids_mt(k)
        e("s_cmp_ge_u32 s17, 15"); e(f"s_cbranch_scc1 {name}_dmp")
        if os.environ.get("FOC") == "p5": st5 = 2
        else: k.stamp = lambda i: None; st5 = 0
        qkva_c(k, L, xc, ST[2], 1, C4(L), [7], st5)
        k.stamp = S_
    k.label(f"{name}_dmp")
    k.dump(15)
    e("s_endpgm")
    k.label(f"{name}_ld"); k.vm = []; k.lg = []
    w = proj_l(k, WOA_I, WB_I, OT, a1, EARLY)
    qkvb_l(k, L, xb, ST[2*L+1], w)
    w = proj_l(k, WOB_I, None if final else WA_I, OBT)
    if not final:
        ids_mt(k)
        e("s_cmp_ge_u32 s17, 15"); e(f"s_cbranch_scc1 {name}_end")
        atouch_pre(k, xc)
        e("s_barrier")
        if ENV('ATOUCH', '1'): e("buffer_load_dword v20, v21, s[12:15], s51 offen")
        w.one(39); e("s_waitcnt vmcnt(0)"); e("s_barrier")
    k.label(f"{name}_end"); e("s_endpgm")
    return k.text(244, 244)

def build():
    L = [("front_kernel", 256, 512, 163840), ("chaina_kernel", 256, 512, 163840), ("chainb_kernel", 256, 512, 163840)]
    hdr = open("cdna_kernels/" + NAME + ".s.ref").read().split("; Override launch")[0]
    out = hdr
    for n, g, b, lds in L: out += f"; @launch kernel={n} grid=({g},1,1) block=({b},1,1) lds={lds}\n"
    out += '.amdgcn_target "amdgcn-amd-amdhsa--gfx950"\n'
    out += k_front() + k_chain("chaina_kernel", 0) + k_chain("chainb_kernel", 1)
    out += ".text\ncode_end:\n"
    return out

if __name__ == "__main__":
    dst = sys.argv[1] if len(sys.argv) > 1 else "cdna_kernels/" + NAME + ".s"
    open(dst, "w").write(build())
    print("wrote", dst)
```

```python
import sys, math
from lint import lint, fix

NAME = "interleave_layers__softmax_full_mha__sliding_local_dilated__prompt"
S, D, H, DH = 2048, 640, 32, 20
XS = S*D*2
IMG = H*64*2560
QI = H*64*1280
TOUCH0 = 0
OT = 0; OBT = XS
XT = [None, 2*XS, 3*XS, 2*XS]
ST = [None, 4*XS, 4*XS + S*64, 4*XS]
QIMG = [None, 4*XS + 2*S*64]; KVIMG = [None, QIMG[1] + QI]
TOUCH1 = QIMG[1]
QIMG[0] = KVIMG[1] + IMG; KVIMG[0] = QIMG[0] + QI
XT[0] = KVIMG[0] + IMG; ST[0] = XT[0] + XS
U_A  = ST[0] + S*64
U_B  = U_A + 32768
CNT  = U_B + 163840
WA_I = CNT + 131072
WOA_I = WA_I + 15*163840
WB_I = WOA_I + 819200
WOB_I = WB_I + 16*163840
STAMPS = WOB_I + 819200
WS_END = STAMPS + 16*262144
def C1(L): return CNT + L*65536
def C2(L): return C1(L) + 64*256
def C3(L): return C2(L) + 34*256
def C4(L): return C3(L) + 16*256
import os
STAMP = int(os.environ.get("STAMP", "0"))
ATTN_WAVES = 8
AV = os.environ.get("AV", "")
CSCALE = (DH ** -0.5) * math.log2(math.e)
import struct
def fbits(x): return "0x%08x" % struct.unpack("<I", struct.pack("<f", x))[0]

FM = [(0,16),(32,48),(80,96),(112,128),(64,144)]
def FX(ks, t):
    return 160*(ks//5) + FM[ks%5][t]

class KB:
    def __init__(s, name):
        s.name = name; s.L = []; s.vm = []; s.lg = []; s.cap = None
    def e(s, line):
        if s.cap is not None: s.cap.append(('e', line, None))
        else: s.L.append("    " + line)
    def capture(s, fn):
        s.cap = []; fn(); c = s.cap; s.cap = None
        return [x for x in c if not (x[0] == 'e' and x[1].startswith('s_nop'))]
    def fill(s, lst, n=1):
        for _ in range(n):
            if not lst: return
            kind, a, b = lst.pop(0)
            if kind == 'e':
                s.e(a)
                if a.startswith('s_cmp'):
                    while lst and lst[0][0] == 'e' and lst[0][1].startswith('s_cselect'): s.e(lst.pop(0)[1])
            elif kind == 'ds': s.dsop(a, b)
            elif kind == 'wvm': s.waitvm(a)
            elif kind == 'wlg': s.waitlg(a)
    def c(s, txt): s.L.append("    ; " + txt)
    def label(s, l): s.L.append(l + ":")
    def vmop(s, line, tag=None): s.e(line); s.vm.append(tag); assert len(s.vm) <= 63, (s.name, len(s.vm))
    def dsop(s, line, tag=None):
        if s.cap is not None: s.cap.append(('ds', line, tag)); return
        s.e(line); s.lg.append(tag)
    def _n(s, lst, tag):
        idx = max(i for i, t in enumerate(lst) if t == tag)
        return idx
    def waitvm(s, tag):
        if s.cap is not None: s.cap.append(('wvm', tag, None)); return
        if tag not in s.vm: return
        i = s._n(s.vm, tag); n = len(s.vm) - 1 - i
        s.e(f"s_waitcnt vmcnt({n})"); s.vm = s.vm[i+1:]
    def waitlg(s, tag):
        if s.cap is not None: s.cap.append(('wlg', tag, None)); return
        if tag not in s.lg: return
        i = s._n(s.lg, tag); n = len(s.lg) - 1 - i
        if n > 15: n = 15; i = len(s.lg) - 1 - n
        s.e(f"s_waitcnt lgkmcnt({n})"); s.lg = s.lg[i+1:]
    def waitall(s):
        s.e("s_waitcnt vmcnt(0) lgkmcnt(0)"); s.vm = []; s.lg = []
    def srd(s, r, base, nbytes):
        s.e(f"s_mov_b32 s{r}, s{base}")
        s.e(f"s_and_b32 s{r+1}, s{base+1}, 0xffff")
        s.e(f"s_mov_b32 s{r+2}, {nbytes}")
        s.e(f"s_mov_b32 s{r+3}, 0x20000")
    def stamp(s, i):
        if not STAMP: return
        op = "s_memrealtime" if os.environ.get("RT") else "s_memtime"
        s.e(f"{op} s[{64+2*i}:{65+2*i}]" if i < 10 else f"{op} s[{72+2*i}:{73+2*i}]")
    def rstamp(s, i):
        if not STAMP: return
        s.e(f"s_memrealtime s[{64+2*i}:{65+2*i}]")
    def dump(s, n=8, slot=None, wave="s18"):
        if not STAMP: return
        e = s.e
        if os.environ.get("DBG"):
            idx, base, slots = {"fron": (0, 0, [1, 3, 4]), "chai": (1, 4, [1, 3, 5, 8, 11]) if s.name[5] == "a" else (2, 10, [1, 3, 5, 8, 11])}[s.name[:4]]
            s.dbgn = getattr(s, "dbgn", 0) + 1
            lab = f"{s.name}_dbg{s.dbgn}"
            e("s_cmp_eq_u32 s2, 0"); e(f"s_cbranch_scc0 {lab}"); e(f"s_cmp_eq_u32 {wave}, 0"); e(f"s_cbranch_scc0 {lab}")
            e("s_load_dwordx2 s[84:85], s[0:1], 56"); e("s_waitcnt vmcnt(0)"); e("s_memrealtime s[86:87]"); e("s_waitcnt lgkmcnt(0)")
            e("s_mov_b64 exec, 1"); e("v_mov_b32 v0, 0"); e(f"s_mov_b32 s83, {STAMPS}")
            for q, i in enumerate(slots):
                e(f"v_mov_b32 v1, s{64+2*i if i < 10 else 72+2*i}"); e(f"buffer_store_dword v1, v0, s[12:15], s83 offen offset:{4*(base+q)} sc1")
            e("v_mov_b32 v1, s86"); e(f"buffer_store_dword v1, v0, s[12:15], s83 offen offset:{4*(base+len(slots))} sc1")
            if idx == 2:
                e("s_waitcnt vmcnt(0)"); e("s_mov_b64 exec, 0xffff"); e("v_mbcnt_lo_u32_b32 v0, -1, 0"); e("v_lshlrev_b32 v0, 2, v0")
                e("buffer_load_dword v1, v0, s[12:15], s83 offen sc1"); s.srd(88, 84, 256); e("s_waitcnt vmcnt(0)")
                e("buffer_store_dword v1, v0, s[88:91], 0 offen")
                e(f"s_sub_u32 s84, s84, {512*idx}"); e("s_subb_u32 s85, s85, 0"); s.srd(88, 84, 256)
                e("buffer_store_dword v1, v0, s[88:91], 0 offen")
            s.label(lab)
            return
        e("s_load_dwordx2 s[84:85], s[0:1], 56"); e("s_waitcnt vmcnt(0)"); e("s_memrealtime s[86:87]"); e("s_waitcnt lgkmcnt(0)")
        e("s_mov_b64 exec, 1")
        e("s_bfe_u32 s84, s84, 0x50009"); e("s_lshl_b32 s84, s84, 18")
        e("s_lshl_b32 s60, s2, 3"); e(f"s_add_u32 s60, s60, {wave}"); e("s_lshl_b32 s60, s60, 6"); e(f"s_add_u32 s60, s60, {STAMPS}"); e("s_add_u32 s60, s60, s84")
        e("v_mov_b32 v0, 0")
        for i in range(n):
            e(f"v_mov_b32 v1, s{64+2*i if i < 10 else 72+2*i}")
            e(f"buffer_store_dword v1, v0, s[12:15], s60 offen offset:{4*i}")
        e("v_mov_b32 v1, s86"); e("buffer_store_dword v1, v0, s[12:15], s60 offen offset:60")
    def rtdump(s):
        if not STAMP: return
        s.e("v_lshrrev_b32 v1, 6, v0"); s.e("s_nop 0"); s.e("v_readfirstlane_b32 s61, v1"); s.dump(2, wave="s61")
    def text(s, vgpr, accum, sgpr=102):
        s.L, added = fix(s.L)
        if os.environ.get("V"): print(s.name, "auto nops:", added, "lines:", len(s.L))
        out = [".text", f".globl {s.name}", ".p2align 8", f".type {s.name},@function", f"{s.name}:"]
        out += s.L
        out += ['.section .rodata,"a"', ".p2align 6", f".amdhsa_kernel {s.name}",
                f"  .amdhsa_next_free_vgpr {vgpr}", f"  .amdhsa_next_free_sgpr {sgpr}", f"  .amdhsa_accum_offset {accum}",
                "  .amdhsa_group_segment_fixed_size 0", "  .amdhsa_kernarg_size 72", "  .amdhsa_user_sgpr_count 2",
                "  .amdhsa_user_sgpr_kernarg_segment_ptr 1", "  .amdhsa_system_sgpr_workgroup_id_x 1", ".end_amdhsa_kernel"]
        nb = lint(s.L, s.name)
        assert nb == 0, f"{nb} hazards in {s.name}"
        return "\n".join(out) + "\n"
    def allred32(s, op, v, t):
        s.e(f"v_mov_b32 v{t}, v{v}"); s.e("s_nop 1")
        s.e(f"v_permlane32_swap_b32 v{v}, v{t}"); s.e("s_nop 1")
        s.e(f"{op} v{v}, v{v}, v{t}")
    def allred16(s, op, v, t):
        s.e(f"v_mov_b32 v{t}, v{v}"); s.e("s_nop 1")
        s.e(f"v_permlane16_swap_b32 v{v}, v{t}"); s.e("s_nop 1")
        s.e(f"{op} v{v}, v{v}, v{t}")

def vr(a, n): return f"v[{a}:{a+n-1}]" if n > 1 else f"v{a}"
def ar(a, n): return f"a[{a}:{a+n-1}]" if n > 1 else f"a{a}"

def k_prep():
    PSC = os.environ.get("PSC", "sc1")
    k = KB("prep_kernel"); e = k.e
    NX, NA, NB, NO = 128, 60, 64, 64
    e(f"s_cmp_ge_u32 s2, {NX+NA+NB+NO}"); e("s_cbranch_scc1 prep_end0"); k.rstamp(1)
    e("s_load_dwordx2 s[4:5], s[0:1], 0"); e("s_load_dwordx2 s[6:7], s[0:1], 64")
    e("s_load_dwordx4 s[20:23], s[0:1], 8"); e("s_load_dwordx4 s[24:27], s[0:1], 32")
    e("v_and_b32 v1, 63, v0"); e("v_lshrrev_b32 v2, 6, v0")
    e("s_waitcnt lgkmcnt(0)")
    k.srd(12, 6, WS_END)
    e(f"s_cmp_ge_u32 s2, {NX+NA+NB}"); e("s_cbranch_scc1 prep_o")
    e(f"s_cmp_ge_u32 s2, {NX+NA}"); e("s_cbranch_scc1 prep_b")
    e(f"s_cmp_ge_u32 s2, {NX}"); e("s_cbranch_scc1 prep_u")
    k.srd(8, 4, S*D*2)
    e("s_and_b32 s16, s2, 7"); e("s_lshl_b32 s16, s16, 4"); e("s_lshr_b32 s17, s2, 3"); e("s_add_u32 s3, s16, s17")
    e("v_and_b32 v3, 15, v1"); e("v_lshrrev_b32 v4, 4, v1")
    e("s_lshl_b32 s16, s3, 4"); e("v_add_u32 v5, s16, v3")
    e("v_mul_u32_u24 v6, 1280, v5")
    e("v_mul_u32_u24 v7, 320, v2"); e("v_add_u32 v6, v6, v7")
    e("v_lshl_add_u32 v6, v4, 3, v6")
    for i in range(5):
        for t in range(2):
            k.vmop(f"buffer_load_dwordx2 {vr(12+4*i+2*t,2)}, v6, s[8:11], 0 offen offset:{2*FM[i][t]} nt", "x")
    e("s_mul_i32 s17, s3, 20480"); e(f"s_add_u32 s17, s17, {XT[0]}"); e("s_add_u32 s18, s17, 4096")
    e("v_mul_u32_u24 v7, 5120, v2"); e("v_lshl_add_u32 v7, v1, 4, v7")
    e("v_mov_b32 v8, 0"); e("v_mov_b32 v9, 0"); e("v_mov_b32 v10, 0"); e("v_mov_b32 v11, 0")
    e("v_mov_b32 v32, 0x3f803f80")
    k.waitvm("x")
    for i in range(5):
        if i < 4: k.vmop(f"buffer_store_dwordx4 {vr(12+4*i,4)}, v7, s[12:15], s17 offen offset:{1024*i} {PSC}")
        else: k.vmop(f"buffer_store_dwordx4 {vr(12+4*i,4)}, v7, s[12:15], s18 offen {PSC}")
    for r in range(12, 32):
        e(f"v_dot2_f32_bf16 v8, v{r}, v32, v8")
    for r in range(12, 32):
        e(f"v_dot2_f32_bf16 v9, v{r}, v{r}, v9")
    e("s_nop 2")
    k.allred16("v_add_f32", 8, 33); k.allred32("v_add_f32", 8, 33)
    k.allred16("v_add_f32", 9, 33); k.allred32("v_add_f32", 9, 33)
    e("v_cmp_gt_u32 vcc, 16, v1"); e("v_lshlrev_b32 v5, 3, v1"); e("v_lshl_add_u32 v5, v2, 8, v5")
    e("v_cndmask_b32 v8, 0, v8, vcc"); e("v_cndmask_b32 v9, 0, v9, vcc")
    e("s_lshl_b32 s19, s3, 10"); e(f"s_add_u32 s19, s19, {ST[0]}")
    e("s_lshl_b32 s18, s3, 10"); e(f"s_add_u32 s18, s18, {CNT}")
    e("s_mov_b32 exec_hi, 0")
    k.vmop("buffer_store_dwordx2 v[8:9], v5, s[12:15], s19 offen")
    e("s_mov_b64 exec, 0x1111111111111111" if False else "s_mov_b64 exec, -1")
    e("v_cmp_gt_u32 vcc, 128, v0"); e("s_and_saveexec_b64 s[28:29], vcc"); e("s_cbranch_execz prep_end")
    e("v_lshlrev_b32 v6, 3, v0")
    k.vmop("buffer_store_dwordx2 v[10:11], v6, s[12:15], s18 offen")
    k.rtdump(); e("s_endpgm")
    def colsum(regs, acc):
        for r in regs: e(f"v_dot2_f32_bf16 v{acc}, v{r}, v60, v{acc}")
    k.label("prep_u"); k.vm = []
    e(f"s_sub_u32 s16, s2, {NX}"); e("s_and_b32 s17, s16, 3"); e("s_lshr_b32 s16, s16, 2")
    k.srd(8, 20, D*3*D*2)
    e("v_readfirstlane_b32 s18, v2")
    e("v_and_b32 v5, 15, v1"); e("v_lshrrev_b32 v6, 4, v1"); e("v_and_b32 v10, 3, v1")
    e("v_lshl_add_u32 v9, v2, 2, v6"); e("v_mul_u32_u24 v9, 3840, v9")
    e("v_lshrrev_b32 v7, 2, v5"); e("v_xor_b32 v8, v7, v6"); e("v_lshl_add_u32 v9, v8, 6, v9"); e("v_lshl_add_u32 v9, v10, 4, v9")
    e(f"s_mul_i32 s19, s17, {160*3840}"); e("s_lshl_b32 s28, s16, 8"); e("s_add_u32 s19, s19, s28"); e("s_lshl_b32 s29, s18, 10")
    for i in range(10):
        e(f"s_add_u32 m0, s29, {4096*i}")
        e(f"s_add_u32 s28, s19, {16*3840*i}")
        e("buffer_load_dwordx4 v9, s[8:11], s28 offen nt lds")
    e("v_lshrrev_b32 v4, 5, v1"); e("v_lshl_add_u32 v11, v4, 2, v7"); e("v_lshlrev_b32 v11, 8, v11")
    e("v_bfe_u32 v8, v1, 4, 1"); e("v_lshl_add_u32 v11, v8, 5, v11"); e("v_lshl_add_u32 v11, v10, 3, v11")
    e("v_xor_b32 v8, v2, v7"); e("v_lshl_add_u32 v11, v8, 6, v11")
    e("v_lshlrev_b32 v3, 4, v1"); e("v_mov_b32 v60, 0x3f803f80"); e("v_mov_b32 v8, 0")
    e("s_mul_i32 s19, s16, 163840"); e("s_mul_i32 s28, s17, 40960"); e("s_add_u32 s19, s19, s28"); e("s_add_u32 s19, s19, s29"); e(f"s_add_u32 s19, s19, {WA_I}")
    e("s_waitcnt vmcnt(0)"); e("s_barrier")
    for n in range(10):
        for t in range(2): e(f"ds_read_b64_tr_b16 {vr(16+4*n+2*t,2)}, v11 offset:{(FM[n//2][t]+8*(n%2))*256}")
        if n == 5: e("s_waitcnt lgkmcnt(0)")
    e("s_waitcnt lgkmcnt(0)")
    for n in range(10):
        e(f"buffer_store_dwordx4 {vr(16+4*n,4)}, v3, s[12:15], s19 offen {PSC}")
        if n < 9: e("s_add_u32 s19, s19, 4096")
    colsum(range(16, 56), 8); e("s_nop 2")
    k.allred32("v_add_f32", 8, 9)
    e("v_and_b32 v5, 31, v1"); e("v_lshlrev_b32 v5, 4, v5")
    e("s_lshl_b32 s19, s16, 11"); e("s_lshl_b32 s28, s18, 9"); e("s_add_u32 s19, s19, s28"); e("s_lshl_b32 s28, s17, 2"); e("s_add_u32 s19, s19, s28"); e(f"s_add_u32 s19, s19, {U_A}")
    e("s_mov_b32 exec_hi, 0")
    e("buffer_store_dword v8, v5, s[12:15], s19 offen")
    k.rtdump(); e("s_endpgm")
    k.label("prep_b")
    e(f"s_sub_u32 s16, s2, {NX+NA}"); e("s_and_b32 s17, s16, 3"); e("s_lshr_b32 s16, s16, 2")
    k.srd(8, 24, D*3*D*2)
    e("v_readfirstlane_b32 s18, v2")
    e("v_and_b32 v5, 15, v1"); e("v_lshrrev_b32 v6, 4, v1")
    e("v_and_b32 v7, 1, v2"); e("v_lshl_add_u32 v7, v7, 2, v6"); e("v_lshlrev_b32 v7, 1, v7"); e("v_xor_b32 v7, v7, v5"); e("v_min_u32 v7, 14, v7")
    e("v_mul_u32_u24 v8, 52, v7"); e("v_lshrrev_b32 v8, 8, v8"); e("v_mul_u32_u24 v9, 1200, v8"); e("v_lshl_add_u32 v9, v7, 4, v9")
    e("v_lshl_add_u32 v10, v2, 2, v6"); e("v_mul_u32_u24 v10, 3840, v10"); e("v_add_u32 v9, v9, v10")
    e(f"s_mul_i32 s19, s17, {160*3840}"); e("s_mul_i32 s28, s16, 80"); e("s_add_u32 s19, s19, s28"); e("s_lshl_b32 s29, s18, 10")
    for i in range(10):
        e(f"s_add_u32 m0, s29, {4096*i}")
        e(f"s_add_u32 s28, s19, {16*3840*i}")
        e("buffer_load_dwordx4 v9, s[8:11], s28 offen nt lds")
    e("v_lshrrev_b32 v12, 2, v5"); e("v_and_b32 v13, 3, v5")
    e("s_mul_i32 s28, s18, 80"); e("v_lshlrev_b32 v10, 3, v13"); e("v_add_u32 v10, s28, v10"); e("v_add_u32 v11, 40, v10")
    e("s_cmp_lt_u32 s18, 3"); e("s_cbranch_scc1 prep_b1")
    e("v_mul_u32_u24 v10, 40, v13"); e("v_add_u32 v10, 32, v10")
    e("v_and_b32 v11, 1, v13"); e("v_mul_u32_u24 v11, 40, v11"); e("v_add_u32 v11, 192, v11")
    k.label("prep_b1")
    e("v_lshl_add_u32 v14, v6, 2, v12"); e("v_and_b32 v15, 7, v14"); e("v_lshlrev_b32 v15, 5, v15"); e("v_lshlrev_b32 v14, 8, v14")
    e("v_xor_b32 v10, v10, v15"); e("v_add_u32 v10, v10, v14"); e("v_xor_b32 v11, v11, v15"); e("v_add_u32 v11, v11, v14")
    e("v_lshlrev_b32 v3, 4, v1"); e("v_mov_b32 v60, 0x3f803f80"); e("v_mov_b32 v8, 0"); e("v_mov_b32 v9, 0")
    e("s_mul_i32 s19, s16, 163840"); e("s_mul_i32 s28, s17, 40960"); e("s_add_u32 s19, s19, s28"); e("s_lshl_b32 s28, s18, 11"); e("s_add_u32 s19, s19, s28"); e(f"s_add_u32 s19, s19, {WB_I}")
    e("s_waitcnt vmcnt(0)"); e("s_barrier")
    for n in range(10):
        for t in range(2): e(f"ds_read_b64_tr_b16 {vr(16+4*n+2*t,2)}, v{10+n%2} offset:{FM[n//2][t]*256}")
        if n == 5: e("s_waitcnt lgkmcnt(0)")
    e("s_waitcnt lgkmcnt(0)")
    for n in range(10):
        e(f"buffer_store_dwordx4 {vr(16+4*n,4)}, v3, s[12:15], s19 offen offset:{1024*(n%2)} {PSC}")
        if n % 2 and n < 9: e("s_add_u32 s19, s19, 8192")
    for f in range(2): colsum([16+8*m+4*f+q for m in range(5) for q in range(4)], 8+f)
    e("s_nop 2")
    for f in range(2): k.allred16("v_add_f32", 8+f, 12); k.allred32("v_add_f32", 8+f, 12)
    e("v_lshlrev_b32 v5, 4, v5")
    e("s_lshl_b32 s19, s16, 11"); e("s_lshl_b32 s28, s18, 9"); e("s_add_u32 s19, s19, s28"); e("s_lshl_b32 s28, s17, 2"); e("s_add_u32 s19, s19, s28"); e(f"s_add_u32 s19, s19, {U_B}")
    e("s_mov_b64 exec, 0xffff")
    e("buffer_store_dword v8, v5, s[12:15], s19 offen"); e("buffer_store_dword v9, v5, s[12:15], s19 offen offset:256")
    k.rtdump(); e("s_endpgm")
    k.label("prep_o")
    e(f"s_sub_u32 s16, s2, {NX+NA+NB}"); e("s_and_b32 s17, s16, 3"); e("s_lshr_b32 s30, s16, 5"); e("s_bfe_u32 s16, s16, 0x30002")
    e("s_cmp_eq_u32 s30, 1")
    e("s_cselect_b32 s28, s26, s22"); e("s_cselect_b32 s29, s27, s23"); e(f"s_cselect_b32 s31, {WOB_I-WOA_I}, 0")
    k.srd(8, 28, D*D*2)
    e("v_readfirstlane_b32 s18, v2")
    def pat(dst, src):
        e(f"v_mul_u32_u24 v10, 6554, v{src}"); e("v_lshrrev_b32 v10, 16, v10"); e("v_mul_u32_u24 v10, 1120, v10"); e(f"v_lshl_add_u32 v{dst}, v{src}, 4, v10")
    for i in range(5):
        e(f"v_add_u32 v9, {64*i}, v1"); pat(4+i, 9)
    pat(11, 0)
    e(f"s_mul_i32 s19, s17, {160*1280}"); e("s_mul_i32 s28, s16, 160"); e("s_add_u32 s19, s19, s28")
    e("s_mul_i32 s28, s18, 40960"); e("s_add_u32 s28, s28, s19"); e("s_mul_i32 s29, s18, 5120")
    for i in range(5):
        e(f"s_add_u32 m0, s29, {1024*i}"); e("s_nop 0")
        e(f"buffer_load_dwordx4 v{4+i}, s[8:11], s28 offen nt lds")
    e("s_lshl_b32 s29, s18, 10"); e("s_add_u32 m0, s29, 20480"); e("s_add_u32 s28, s19, 163840")
    e("buffer_load_dwordx4 v11, s[8:11], s28 offen nt lds")
    e("s_cmp_eq_u32 s18, 0"); e("s_cbranch_scc0 prep_o1")
    e("s_mov_b32 m0, 24576"); e("s_nop 0")
    e("buffer_load_dwordx4 v8, s[8:11], s28 offen nt lds")
    k.label("prep_o1")
    e("v_lshrrev_b32 v9, 4, v1"); e("v_bfe_u32 v10, v1, 2, 2"); e("v_and_b32 v11, 3, v1")
    e("v_lshlrev_b32 v12, 2, v9"); e("s_mov_b32 s28, 3200")
    e("s_cmp_eq_u32 s30, 1"); e("s_cbranch_scc1 prep_o2")
    e("v_lshrrev_b32 v12, 1, v9"); e("v_mul_u32_u24 v12, 20, v12"); e("v_and_b32 v13, 1, v9"); e("v_lshl_add_u32 v12, v13, 2, v12"); e("s_mov_b32 s28, 1280")
    k.label("prep_o2")
    e("v_add_u32 v12, v12, v10"); e("v_mul_u32_u24 v12, 160, v12"); e("v_lshl_add_u32 v12, v11, 3, v12")
    e("s_mul_i32 s29, s18, 6400"); e("v_add_u32 v12, s29, v12"); e("v_add_u32 v13, s28, v12")
    e("v_mul_u32_u24 v14, 20, v9"); e("v_add_u32 v14, v14, v10"); e("v_mul_u32_u24 v14, 160, v14"); e("v_lshl_add_u32 v14, v11, 3, v14")
    e("v_lshlrev_b32 v3, 4, v1")
    e("s_mul_i32 s19, s16, 102400"); e("s_add_u32 s19, s19, s31"); e(f"s_add_u32 s19, s19, {WOA_I}")
    e("s_lshl_b32 s28, s17, 2"); e("s_add_u32 s28, s28, s18"); e("s_mul_i32 s28, s28, 5120"); e("s_add_u32 s28, s28, s19"); e("s_add_u32 s29, s28, 4096")
    e("s_waitcnt vmcnt(0)"); e("s_barrier")
    for nf in range(5):
        for t in range(2): e(f"ds_read_b64_tr_b16 {vr(16+4*nf+2*t,2)}, v{12+t} offset:{32*nf}")
    e("s_waitcnt lgkmcnt(0)")
    for nf in range(5): e(f"buffer_store_dwordx4 {vr(16+4*nf,4)}, v3, s[12:15], s{28 if nf < 4 else 29} offen offset:{1024*(nf%4)} {PSC}")
    e("s_cmp_eq_u32 s18, 0"); e("s_cbranch_scc0 prep_end")
    for nf in range(5):
        for t in range(2): e(f"ds_read_b64_tr_b16 {vr(36+4*nf+2*t,2)}, v14 offset:{(80*t+16)*160+32*nf}")
    e("s_add_u32 s28, s17, 16"); e("s_mul_i32 s28, s28, 5120"); e("s_add_u32 s28, s28, s19"); e("s_add_u32 s29, s28, 4096")
    e("s_waitcnt lgkmcnt(0)")
    for nf in range(5): e(f"buffer_store_dwordx4 {vr(36+4*nf,4)}, v3, s[12:15], s{28 if nf < 4 else 29} offen offset:{1024*(nf%4)} {PSC}")
    k.label("prep_end"); k.rtdump(); k.label("prep_end0"); e("s_endpgm")
    return k.text(64, 64)

def stats_finish(k, s1, s2, mean, rstd, t):
    e = k.e
    e(f"v_mul_f32 v{mean}, {fbits(1.0/D)}, v{s1}")
    e(f"v_mul_f32 v{t}, {fbits(1.0/D)}, v{s2}")
    e(f"v_fma_f32 v{t}, -v{mean}, v{mean}, v{t}")
    e(f"v_max_f32 v{t}, 0, v{t}")
    e(f"v_add_f32 v{t}, {fbits(1e-5)}, v{t}")
    e(f"v_rsq_f32 v{rstd}, v{t}")
    e("s_nop 0")

def split3(k, src, d, t, kind, maskv=None):
    e = k.e
    if kind == 'm':
        e(f"v_xor_b32 v{t+1}, 0x80000000, v{src}"); src = t+1
    e(f"v_and_b32 v{t}, 0xffff0000, v{src}")
    e(f"v_sub_f32 v{t+2}, v{src}, v{t}")
    if kind == 'u':
        e(f"v_cvt_pk_bf16_f32 v{d}, v{t}, v{t+2}")
        e(f"v_lshrrev_b32 v{d+1}, 16, v{t}")
    else:
        e(f"v_cvt_pk_bf16_f32 v{d}, v{t}, v{t}")
        e(f"v_cvt_pk_bf16_f32 v{d+1}, v{t+2}, 0")
    if maskv is not None:
        e(f"v_and_b32 v{d}, v{d}, v{maskv}"); e(f"v_and_b32 v{d+1}, v{d+1}, v{maskv}")

SC = "sc1"
EARLY = int(os.environ.get('EARLY', '6'))
ENV = lambda n, d: int(os.environ.get(n, d))

def common(k, nwg=256):
    e = k.e
    e(f"s_cmp_ge_u32 s2, {nwg}"); e(f"s_cbranch_scc1 {k.name}_end"); k.stamp(0); k.rstamp(1)
    e("s_load_dwordx2 s[6:7], s[0:1], 64"); e("s_load_dwordx2 s[46:47], s[0:1], 48")
    e("s_and_b32 s20, s2, 7"); e("s_lshr_b32 s21, s2, 3")
    e("v_lshrrev_b32 v2, 6, v0"); e("v_and_b32 v1, 63, v0")
    e("v_readfirstlane_b32 s18, v2")
    e("s_and_b32 s39, s18, 3"); e("s_lshl_b32 s45, s39, 10")

def ids_mt(k):
    k.e("s_lshl_b32 s22, s20, 1"); k.e("s_and_b32 s23, s21, 1"); k.e("s_add_u32 s16, s22, s23"); k.e("s_lshr_b32 s17, s21, 1")
def ids_rt(k):
    k.e("s_lshl_b32 s22, s20, 2"); k.e("s_and_b32 s23, s21, 3"); k.e("s_add_u32 s16, s22, s23"); k.e("s_lshr_b32 s17, s21, 2")

LW = 163824
PV_ = 240
def lw_init(k):
    e = k.e
    e(f"v_mov_b32 v{PV_+3}, {LW}")
    for i in range(3): e(f"v_mov_b32 v{PV_+i}, 0")
    e(f"ds_write_b96 v{PV_+3}, v[{PV_}:{PV_+2}]"); e(f"ds_write_b32 v{PV_+3}, v{PV_} offset:12")

def signal(k, tag, word, nw, addr_code, younger=0):
    e = k.e
    addr_code()
    e(f"v_mov_b32 v{PV_+3}, {LW}"); e(f"v_mov_b32 v{PV_}, 1")
    e("s_mov_b64 exec, 1")
    e(f"s_waitcnt vmcnt({younger})"); k.vm = k.vm[len(k.vm)-younger:] if younger else []
    if tag == os.environ.get("FOC"): k.stamp(2)
    e(f"ds_add_rtn_u32 v{PV_+2}, v{PV_+3}, v{PV_} offset:{8*word}")
    e("s_waitcnt lgkmcnt(0)"); k.lg = []
    e(f"v_readfirstlane_b32 s49, v{PV_+2}")
    e("s_mov_b64 exec, s[56:57]")
    e(f"s_cmp_eq_u32 s49, {nw-1}"); e(f"s_cbranch_scc0 {k.name}_{tag}_sg")
    e(f"buffer_atomic_add v{PV_}, v{PV_+1}, s[12:15], s48 offen {SC}")
    if os.environ.get("FOC2") == tag: k.stamp(4)
    k.label(f"{k.name}_{tag}_sg")
    e("s_mov_b64 exec, -1")

def wait_go(k, tag, word, poll_code):
    e = k.e; nm = f"{k.name}_{tag}"
    e(f"v_mov_b32 v{PV_+3}, {LW}"); e("s_mov_b32 s49, 0")
    if poll_code:
        e("s_cmp_eq_u32 s18, 0"); e(f"s_cbranch_scc0 {nm}_sp")
        poll_code()
        e("s_mov_b64 exec, s[56:57]")
        if os.environ.get("FOC") == "g" + tag: k.stamp(2)
        k.label(f"{nm}_pl")
        e(f"v_mov_b32 v{PV_}, 0")
        e(f"buffer_atomic_add v{PV_}, v{PV_+1}, s[12:15], s48 offen sc0 sc1")
        e("s_add_u32 s49, s49, 1")
        e("s_waitcnt vmcnt(0)")
        e(f"v_cmp_ge_u32 vcc, v{PV_}, v{PV_+2}")
        e("s_cmp_ge_u32 s49, 0x20000"); e(f"s_cbranch_scc1 {nm}_px")
        e("s_cmp_eq_u64 vcc, exec"); e(f"s_cbranch_scc0 {nm}_pl")
        k.label(f"{nm}_px")
        if os.environ.get("FOC") == "g" + tag: e("s_add_u32 s70, s64, s49")
        e("s_mov_b64 exec, 1"); e(f"v_mov_b32 v{PV_}, 1")
        e(f"ds_write_b32 v{PV_+3}, v{PV_} offset:{8*word+4}")
        e(f"s_branch {nm}_go")
    k.label(f"{nm}_sp")
    e("s_sleep 1")
    e(f"ds_read_b32 v{PV_}, v{PV_+3} offset:{8*word+4}")
    e("s_add_u32 s49, s49, 1")
    e("s_waitcnt lgkmcnt(0)")
    e(f"v_readfirstlane_b32 s44, v{PV_}")
    e("s_cmp_ge_u32 s49, 0x400000"); e(f"s_cbranch_scc1 {nm}_go")
    e("s_cmp_eq_u32 s44, 0"); e(f"s_cbranch_scc1 {nm}_sp")
    k.label(f"{nm}_go")
    e("s_mov_b64 exec, -1")

class Wdma:
    def __init__(s, k, n, base=50, tag="w"): s.k = k; s.n = n; s.i = 0; s.base = base; s.tag = tag
    def one(s, i):
        s.k.e(f"s_add_u32 m0, s45, {4096*i}"); s.k.e(f"s_add_u32 s32, s{s.base}, {4096*i}")
        s.k.vmop("buffer_load_dwordx4 v3, s[12:15], s32 offen lds", f"{s.tag}{i}")
    def go(s, upto):
        while s.i < min(upto, s.n): s.one(s.i); s.i += 1
    def rng(s, a, b, thr=0):
        for i in range(a, b):
            s.one(i)
            if thr and len(s.k.vm) >= thr: s.k.e(f"s_waitcnt vmcnt({thr-1})"); s.k.vm = s.k.vm[len(s.k.vm)-thr+1:]

def ph_attn(k, L):
    e = k.e; nm = k.name
    KA, KT, VA = 4, 5, 6
    Q = [8, 14]; KF = [24, 32]; VF = [40, 48]; SS = [56, 72]; P = 88; O = [96, 112]; PF = 128
    SCR = 102400
    ids_rt(k)
    e("v_and_b32 v3, 31, v1"); e("v_lshrrev_b32 v7, 5, v1")
    e("v_lshlrev_b32 v22, 4, v1"); e("v_lshlrev_b32 v23, 3, v3")
    e("s_mul_i32 s19, s16, 163840")
    e("s_lshr_b32 s41, s18, 2")
    e("s_lshl_b32 s23, s17, 3"); e("s_lshl_b32 s22, s39, 1"); e("s_add_u32 s23, s23, s22")
    e("s_mul_i32 s24, s23, 1280"); e("s_lshr_b32 s22, s19, 1"); e("s_add_u32 s24, s24, s22"); e(f"s_add_u32 s24, s24, {QIMG[L]}")
    e("s_mul_i32 s42, s41, 81920")
    e("s_add_u32 s25, s45, s42")
    e("s_add_u32 s26, s19, s25"); e(f"s_add_u32 s26, s26, {KVIMG[L]}")
    e("s_waitcnt lgkmcnt(0)")
    k.stamp(2); k.srd(12, 6, WS_END)
    rnd = [0]
    def dma():
        i = rnd[0]; rnd[0] += 1
        e(f"s_add_u32 m0, s25, {4096*i}"); e(f"s_add_u32 s27, s26, {4096*i}")
        k.vmop(f"buffer_load_dwordx4 v22, s[12:15], s27 offen lds", f"i{i}")
    dma()
    for x in range(2):
        k.vmop(f"buffer_load_dwordx4 {vr(Q[x],4)}, v22, s[12:15], s24 offen offset:{1280*x}", "q")
        k.vmop(f"buffer_load_dwordx2 {vr(Q[x]+4,2)}, v23, s[12:15], s24 offen offset:{1280*x+1024}", "q")
    for _ in range(3): dma()
    e(f"v_add_u32 v{KA}, s42, v22")
    e(f"v_add_u32 v{KT}, s42, v23"); e(f"v_add_u32 v{KT}, 1024, v{KT}")
    e("v_mul_u32_u24 v21, 20, v7"); e("v_add_u32 v21, v21, v3"); e("v_lshlrev_b32 v21, 4, v21")
    e("v_add_u32 v21, 1280, v21"); e(f"v_add_u32 v{VA}, s42, v21")
    e("s_mov_b32 s28, 0x000fffff"); e("s_mov_b32 s29, 0x000fffff")
    e("v_cmp_eq_u32 vcc, 20, v3"); e("v_mov_b32 v20, 0x3f803f80"); e("s_nop 0")
    e("v_cndmask_b32 v20, 0, v20, vcc")
    for r in range(16): e(f"v_mov_b32 v{VF[0]+r}, v20")
    for r in range(32): e(f"v_mov_b32 v{O[0]+r}, 0")
    for r in range(4): e(f"v_mov_b32 v{P+4+r}, 0")
    e("v_subrev_u32 v30, 1, v7")
    e("s_lshl_b32 s43, s21, 3"); e("s_add_u32 s43, s43, s18"); e("s_mul_i32 s43, s43, 14336"); e(f"s_add_u32 s43, s43, {WOA_I}")
    e("v_lshlrev_b32 v134, 6, v1"); e("s_lshl_b32 s55, s2, 3"); e("s_add_u32 s55, s55, s18")
    TCH = ENV('TCH', '7'); NTM = 7 if (TCH == 6 and L == 0) else 31
    e(f"v_lshlrev_b32 v134, {TCH if L == 0 else 6}, v1"); e("s_mov_b32 s44, s18" if NTM == 7 else "s_lshl_b32 s44, s18, 1")
    if L == 0: e(f"s_mul_i32 s62, s55, {-(-(TOUCH1-TOUCH0)//2048//128)*128}"); e("s_mov_b32 s63, 4096" if False else "s_mov_b32 s63, 2688")
    else: e("s_mul_i32 s55, s55, 1280"); k.srd(60, 46, S*D*2)
    e("s_add_u32 s23, s23, s41")
    e("s_mul_i32 s32, s23, 40960"); e(f"s_add_u32 s32, s32, {OT}")
    e("s_lshr_b32 s51, s16, 1"); e("s_lshl_b32 s51, s51, 10"); e("s_and_b32 s34, s16, 1"); e("s_lshl_b32 s34, s34, 9")
    e("s_add_u32 s51, s51, s34"); e("s_add_u32 s51, s51, s32")
    e("s_lshr_b32 s52, s16, 3"); e("s_add_u32 s52, s52, 16"); e("s_lshl_b32 s52, s52, 10"); e("s_add_u32 s52, s52, s32")
    e("s_and_b32 s35, s16, 3"); e("s_lshl_b32 s35, s35, 8"); e("s_add_u32 s52, s52, s35")
    e("s_bfe_u32 s35, s16, 0x10002"); e("s_lshl_b32 s35, s35, 3"); e("s_add_u32 s52, s52, s35")
    e("v_lshrrev_b32 v38, 4, v3"); e("v_mul_u32_u24 v38, 20480, v38"); e("v_and_b32 v39, 15, v3")
    e("v_lshl_add_u32 v38, v39, 4, v38"); e("v_lshl_add_u32 v39, v7, 8, v38")
    e("s_lshl_b32 s59, s18, 10"); e("s_mul_i32 s50, s17, 102400"); e("s_add_u32 s50, s50, s59"); e(f"s_add_u32 s50, s50, {WOA_I}")
    e("s_mul_i32 s32, s18, 3072"); e("s_xor_b32 s33, s18, 4"); e("s_mul_i32 s33, s33, 3072")
    e(f"v_add_u32 v132, {SCR}, v22"); e("v_add_u32 v133, s33, v132"); e("v_add_u32 v132, s32, v132")
    k.waitvm("q")
    for x in range(2):
        e(f"v_and_b32 v{Q[x]+4}, v{Q[x]+4}, v30"); e(f"v_and_b32 v{Q[x]+5}, v{Q[x]+5}, v30")
    k.waitvm("i1"); e("s_barrier"); k.stamp(3)
    def rdK(buf, off):
        e(f"ds_read_b128 {vr(KF[buf],4)}, v{KA} offset:{off}")
        e(f"ds_read_b64 {vr(KF[buf]+4,2)}, v{KT} offset:{off}")
    def rdV(buf, off):
        e("s_mov_b64 exec, s[28:29]")
        e(f"ds_read_b128 {vr(VF[buf],4)}, v{VA} offset:{off}")
        e(f"ds_read_b128 {vr(VF[buf]+4,4)}, v{VA} offset:{off+640}")
        e("s_mov_b64 exec, -1")
    def qkm(x, kb): e(f"v_mfma_f32_32x32x16_bf16 {vr(SS[x],16)}, {vr(KF[kb],4)}, {vr(Q[x],4)}, 0")
    def qkt(x, kb): e(f"v_mfma_f32_32x32x8_bf16 {vr(SS[x],16)}, {vr(KF[kb]+4,2)}, {vr(Q[x]+4,2)}, {vr(SS[x],16)}")
    def pv(x, vb, u): e(f"v_mfma_f32_32x32x16_bf16 {vr(O[x],16)}, {vr(VF[vb]+4*u,4)}, {vr(P+4*u,4)}, {vr(O[x],16)}")
    def unit(x, t, extra=None):
        p = t % 2; s = SS[x]
        ex = lambda i: e(f"v_exp_f32 v{s+i}, v{s+i}")
        cv = lambda i: e(f"v_cvt_pk_bf16_f32 v{P+i}, v{s+2*i}, v{s+2*i+1}")
        kb = p if x == 0 else 1-p
        if x == 1: e("s_waitcnt lgkmcnt(2)")
        qkm(1-x, kb)
        if x == 1: rdK(p, (t+2)*2560)
        for i in range(0, 4): ex(i)
        if x == 0:
            pv(1, 1-p, 1); rdV(1-p, (t+1)*2560)
        else:
            pv(0, p, 1)
        if extra: extra()
        for i in range(4, 8): ex(i)
        for i in range(0, 4): cv(i)
        qkt(1-x, kb)
        for i in range(8, 12): ex(i)
        if x == 0: e("s_waitcnt lgkmcnt(4)")
        pv(x, p, 0)
        for i in range(12, 16): ex(i)
        for i in range(4, 8): cv(i)
    def touch(t):
        e(f"s_cmp_eq_u32 s44, {t}"); e(f"s_cbranch_scc0 {nm}_t{t}")
        if L == 0: e(f"buffer_load_dword v{PF}, v134, s[12:15], s62 offen"); e("s_add_u32 s62, s62, s63")
        else: e(f"buffer_load_dword v{PF}, v134, s[60:63], s55 offen")
        k.label(f"{nm}_t{t}")
    rdK(0, 0); rdV(0, 0); rdK(1, 2560)
    e("s_waitcnt lgkmcnt(4)")
    qkm(0, 0); e("s_nop 10"); qkt(0, 0); e("s_nop 10")
    SYN = {1: 3, 4: 7, 7: 19}; PEEL = 8
    for t in range(PEEL):
        if t in SYN: k.waitvm(f"i{SYN[t]}"); e("s_barrier")
        if t == 7:
            e("s_cmp_ge_u32 s18, 4"); e(f"s_cbranch_scc0 {nm}_np"); e("s_setprio 1"); k.label(f"{nm}_np")
        d2 = lambda: (dma(), dma())
        unit(0, t, d2 if rnd[0] < 20 else None)
        unit(1, t, d2 if rnd[0] < 20 else None)
    for r in (KA, KT, VA): e(f"v_add_u32 v{r}, {PEEL*2560}, v{r}")
    e("s_mov_b32 s31, 0")
    def pref():
        e(f"buffer_load_dwordx4 {vr(PF,4)}, v22, s[12:15], s43 offen"); e("s_add_u32 s43, s43, 1024")
    e(".p2align 3")
    body_start = len(k.L)
    k.label(f"{nm}_aloop")
    NT = 4; NIT = (32 - PEEL)//NT
    for t in range(NT):
        unit(0, t, pref if t != 3 else None); unit(1, t, (lambda: touch(t)) if TCH else None)
    for r in (KA, KT, VA): e(f"v_add_u32 v{r}, {NT*2560}, v{r}")
    e("s_add_u32 s31, s31, 1"); e("s_sub_u32 s44, s44, 4"); e(f"s_and_b32 s44, s44, {NTM}")
    e(f"s_cmp_eq_u32 s31, {NIT-1}"); e(f"s_cbranch_scc0 {nm}_l1"); e("s_setprio 0"); k.label(f"{nm}_l1")
    e(f"s_cmp_lt_u32 s31, {NIT}"); e(f"s_cbranch_scc1 {nm}_aloop")
    body = k.L[body_start:]
    assert lint(body + body, "attn_loop2") == 0
    pv(1, 1, 1); k.stamp(4)
    e("s_waitcnt lgkmcnt(0)"); e("s_barrier")
    for i in range(EARLY//2):
        e(f"s_add_u32 m0, s59, {8192*i}"); e(f"s_add_u32 s27, s50, {8192*i}")
        e("buffer_load_dwordx4 v22, s[12:15], s27 offen lds")
    e("s_mov_b32 s30, 0")
    e("s_cmp_eq_u32 s41, 0"); e(f"s_cbranch_scc1 {nm}_k0")
    e("s_nop 6")
    for i in range(3): e(f"ds_write_b128 v132, {vr(O[0]+4*i,4)} offset:{1024*i}")
    for r in range(12): e(f"v_mov_b32 v{O[0]+r}, v{O[1]+r}")
    for r in range(6): e(f"v_mov_b32 v{Q[0]+r}, v{Q[1]+r}")
    e(f"s_branch {nm}_k1")
    k.label(f"{nm}_k0")
    lw_init(k); e("s_nop 3")
    for i in range(3): e(f"ds_write_b128 v132, {vr(O[1]+4*i,4)} offset:{1024*i}")
    k.label(f"{nm}_k1")
    e(f"s_mov_b32 s32, {fbits(2.0**-60)}"); e(f"s_mov_b32 s33, {fbits(2.0**100)}"); e(f"s_mov_b32 s34, {fbits(2.0**126)}")
    e("s_waitcnt lgkmcnt(0)"); e("s_barrier")
    for i in (2, 0, 1): e(f"ds_read_b128 {vr(SS[0]+4*i,4)}, v133 offset:{1024*i}")
    OO = O[0]
    e("s_waitcnt lgkmcnt(2)")
    for r in range(8, 12): e(f"v_add_f32 v{OO+r}, v{OO+r}, v{SS[0]+r}")
    e("s_waitcnt lgkmcnt(0)")
    for r in range(8): e(f"v_add_f32 v{OO+r}, v{OO+r}, v{SS[0]+r}")
    k.label(f"{nm}_chk")
    e(f"v_mov_b32 v30, v{OO+8}"); e(f"v_mov_b32 v31, v{OO+8}")
    e(f"v_max3_f32 v28, abs(v{OO}), abs(v{OO+1}), abs(v{OO+2})")
    e("v_permlane32_swap_b32 v30, v31")
    for r in range(3, 11, 2): e(f"v_max3_f32 v28, abs(v{OO+r}), abs(v{OO+r+1}), v28")
    e(f"v_max_f32 v28, abs(v{OO+11}), v28")
    e("v_cmp_le_f32 vcc, s32, v31"); e("v_cmp_ge_f32 s[36:37], s33, v31"); e("v_cmp_gt_f32 s[40:41], s34, v28")
    e("v_rcp_f32 v31, v31")
    e("s_and_b64 s[36:37], s[36:37], vcc"); e("s_and_b64 s[36:37], s[36:37], s[40:41]")
    e("s_cmp_eq_u64 s[36:37], -1"); e(f"s_cbranch_scc1 {nm}_fin")
    e("s_cmp_eq_u32 s30, 0"); e(f"s_cbranch_scc0 {nm}_fin")
    e("s_mov_b32 s30, 1")
    e("s_waitcnt vmcnt(0)")
    NM = O[1]
    e("v_mov_b32 v32, 0xff800000")
    def slowqk(c):
        e(f"buffer_load_dwordx4 {vr(KF[0],4)}, v22, s[12:15], s27 offen")
        e(f"buffer_load_dwordx2 {vr(KF[0]+4,2)}, v23, s[12:15], s27 offen offset:1024")
        e("s_waitcnt vmcnt(0)")
        e(f"v_mfma_f32_32x32x16_bf16 {vr(SS[0],16)}, {vr(KF[0],4)}, {vr(Q[0],4)}, {c}"); e("s_nop 10")
        e(f"v_mfma_f32_32x32x8_bf16 {vr(SS[0],16)}, {vr(KF[0]+4,2)}, {vr(Q[0]+4,2)}, {vr(SS[0],16)}"); e("s_nop 12")
    e(f"s_add_u32 s27, s19, {KVIMG[L]}"); e("s_mov_b32 s31, 0")
    k.label(f"{nm}_mx")
    slowqk("0")
    for r in range(0, 16, 2): e(f"v_max3_f32 v32, v{SS[0]+r}, v{SS[0]+r+1}, v32")
    e("s_add_u32 s27, s27, 2560")
    e("s_add_u32 s31, s31, 1"); e("s_cmp_lt_u32 s31, 64"); e(f"s_cbranch_scc1 {nm}_mx")
    k.allred32("v_max_f32", 32, 33)
    e("v_xor_b32 v32, 0x80000000, v32")
    for r in range(16): e(f"v_mov_b32 v{NM+r}, v32")
    for r in range(16): e(f"v_mov_b32 v{OO+r}, 0")
    for r in range(8): e(f"v_mov_b32 v{VF[0]+r}, v20")
    e(f"s_add_u32 s27, s19, {KVIMG[L]}"); e("s_mov_b32 s31, 0")
    k.label(f"{nm}_sl")
    e("s_mov_b64 exec, s[28:29]")
    e(f"buffer_load_dwordx4 {vr(VF[0],4)}, v21, s[12:15], s27 offen")
    e(f"buffer_load_dwordx4 {vr(VF[0]+4,4)}, v21, s[12:15], s27 offen offset:640")
    e("s_mov_b64 exec, -1")
    slowqk(vr(NM,16))
    for i in range(16): e(f"v_exp_f32 v{SS[0]+i}, v{SS[0]+i}")
    e("s_nop 0")
    for i in range(8): e(f"v_cvt_pk_bf16_f32 v{P+i}, v{SS[0]+2*i}, v{SS[0]+2*i+1}")
    e("s_nop 1")
    pv(0, 0, 0); pv(0, 0, 1)
    e("s_add_u32 s27, s27, 2560")
    e("s_add_u32 s31, s31, 1"); e("s_cmp_lt_u32 s31, 64"); e(f"s_cbranch_scc1 {nm}_sl")
    e("s_nop 12"); e(f"s_branch {nm}_chk")
    k.label(f"{nm}_fin")
    e("s_nop 0")
    for r in range(12): e(f"v_mul_f32 v{OO+r}, v{OO+r}, v31")
    for r in range(6): e(f"v_cvt_pk_bf16_f32 v{P+r}, v{OO+2*r}, v{OO+2*r+1}")
    e(f"buffer_store_dwordx4 {vr(P,4)}, v39, s[12:15], s51 offen {SC}")
    e("s_mov_b32 exec_hi, 0")
    e(f"buffer_store_dwordx2 {vr(P+4,2)}, v38, s[12:15], s52 offen {SC}")
    e("s_mov_b64 exec, -1")
    e("v_lshlrev_b32 v3, 4, v1")
    k.vm = []; k.lg = []

def proj_c(k, tag, src, xin, xout, stout, final, cnt_code, word, st0):
    e = k.e
    ACC, RESID, A, BF = 24, 44, 76, 156
    NA0 = ENV('PA0', '8')
    ids_rt(k)
    e("s_lshl_b32 s19, s16, 2"); e("s_add_u32 s19, s19, s39")
    e("s_mul_i32 s24, s19, 20480")
    e("s_lshr_b32 s33, s17, 1"); e("s_mul_i32 s33, s33, 5120"); e("s_add_u32 s33, s33, s24")
    e("s_and_b32 s34, s17, 1"); e("s_mul_i32 s35, s34, 3072"); e("s_add_u32 s35, s35, s33")
    e("s_lshl_b32 s36, s34, 9"); e("s_add_u32 s36, s36, s33"); e("s_add_u32 s36, s36, 2048")
    e(f"s_add_u32 s37, s35, {xin}"); e(f"s_add_u32 s38, s36, {xin}")
    e("v_lshrrev_b32 v13, 5, v1"); e("v_lshlrev_b32 v13, 8, v13"); e("v_and_b32 v14, 15, v1"); e("v_lshl_add_u32 v13, v14, 4, v13")
    e("v_bfe_u32 v14, v1, 4, 1"); e("v_lshl_add_u32 v13, v14, 3, v13")
    k.vmop(f"buffer_load_dwordx4 {vr(RESID,4)}, v3, s[12:15], s37 offen {SC}", "r")
    k.vmop(f"buffer_load_dwordx4 {vr(RESID+4,4)}, v3, s[12:15], s37 offen offset:1024 {SC}", "r")
    k.vmop(f"buffer_load_dwordx2 {vr(RESID+8,2)}, v13, s[12:15], s38 offen {SC}", "r")
    e(f"s_add_u32 s24, s24, {src}")
    for i in range(1, 5): e(f"s_add_u32 s{24+i}, s24, {4096*i}")
    e("v_lshrrev_b32 v9, 4, v1"); e("v_add_u32 v12, 61440, v3")
    wait_go(k, tag, word, cnt_code)
    k.stamp(st0)
    def ldA(n): k.vmop(f"buffer_load_dwordx4 {vr(A+4*n,4)}, v3, s[12:15], s{24+n//4} offen offset:{(n%4)*1024} {SC}", f"a{n}")
    for n in range(NA0): ldA(n)
    k.waitvm("r")
    for i in range(10):
        e(f"v_lshlrev_b32 v{ACC+2*i}, 16, v{RESID+i}"); e(f"v_and_b32 v{ACC+2*i+1}, 0xffff0000, v{RESID+i}")
    def rd(n, nf):
        off = n*5120 + nf*1024; b = 3
        if n >= 12: off -= 61440; b = 12
        k.dsop(f"ds_read_b128 {vr(BF+20*(n%2)+4*nf,4)}, v{b} offset:{off}", f"b{n}_{nf}")
    e("s_barrier")
    for n in range(2):
        for nf in range(5): rd(n, nf)
    for n in range(20):
        k.waitvm(f"a{n}")
        if n == 0: k.stamp(st0+1)
        for nf in range(5):
            if nf in (0, 2, 4): k.waitlg(f"b{n}_{min(nf+1,4)}")
            if n == 12 and nf == 0 and not final: e("s_barrier")
            e(f"v_mfma_f32_16x16x32_bf16 {vr(ACC+4*nf,4)}, {vr(BF+20*(n%2)+4*nf,4)}, {vr(A+4*n,4)}, {vr(ACC+4*nf,4)}")
            if n + 2 < 20: rd(n+2, nf)
            if nf == 0 and n + NA0 < 20: ldA(n + NA0)
    if not final: e("s_barrier")
    if final:
        e("v_and_b32 v16, 15, v1"); e("v_mul_u32_u24 v16, 1280, v16"); e("v_lshl_add_u32 v17, v9, 3, v16"); e("v_lshl_add_u32 v16, v9, 4, v16")
        e("s_mul_i32 s32, s19, 20480"); e("s_mul_i32 s31, s17, 160"); e("s_add_u32 s32, s32, s31")
        e("s_lshl_b32 s31, s34, 5"); e("s_add_u32 s33, s32, s31"); e("s_xor_b32 s31, s34, 1"); e("s_lshl_b32 s31, s31, 7"); e("s_add_u32 s32, s32, s31")
        FSC = os.environ.get("FSC", "")
        for i in range(10): e(f"v_cvt_pk_bf16_f32 v{RESID+i}, v{ACC+2*i}, v{ACC+2*i+1}")
        e(f"buffer_store_dwordx4 {vr(RESID,4)}, v16, s[60:63], s33 offen {FSC}")
        e(f"buffer_store_dwordx4 {vr(RESID+4,4)}, v16, s[60:63], s33 offen offset:64 {FSC}")
        e(f"buffer_store_dwordx2 {vr(RESID+8,2)}, v17, s[60:63], s32 offen {FSC}")
    else:
        e(f"s_add_u32 s37, s35, {xout}"); e(f"s_add_u32 s38, s36, {xout}")
        e("s_lshl_b32 s32, s19, 10"); e("s_lshl_b32 s33, s17, 7"); e("s_add_u32 s32, s32, s33"); e(f"s_add_u32 s32, s32, {stout}")
        e("v_lshlrev_b32 v16, 3, v1")
        for i in range(10): e(f"v_cvt_pk_bf16_f32 v{RESID+i}, v{ACC+2*i}, v{ACC+2*i+1}")
        e(f"buffer_store_dwordx4 {vr(RESID,4)}, v3, s[12:15], s37 offen {SC}")
        e(f"buffer_store_dwordx4 {vr(RESID+4,4)}, v3, s[12:15], s37 offen offset:1024 {SC}")
        e(f"buffer_store_dwordx2 {vr(RESID+8,2)}, v13, s[12:15], s38 offen {SC}")
        e(f"v_add_f32 v18, v{ACC}, v{ACC+1}"); e(f"v_mul_f32 v19, v{ACC}, v{ACC}"); e(f"v_add_f32 v20, v{ACC+2}, v{ACC+3}"); e(f"v_mul_f32 v21, v{ACC+1}, v{ACC+1}")
        e(f"v_fmac_f32 v19, v{ACC+2}, v{ACC+2}"); e(f"v_fmac_f32 v21, v{ACC+3}, v{ACC+3}")
        for i in range(4, 20, 2):
            e(f"v_add_f32 v18, v18, v{ACC+i}"); e(f"v_fmac_f32 v19, v{ACC+i}, v{ACC+i}")
            e(f"v_add_f32 v20, v20, v{ACC+i+1}"); e(f"v_fmac_f32 v21, v{ACC+i+1}, v{ACC+i+1}")
        e("v_add_f32 v18, v18, v20"); e("v_add_f32 v19, v19, v21")
        for sw in ("v_permlane16_swap_b32", "v_permlane32_swap_b32"):
            e("v_mov_b32 v20, v18"); e("v_mov_b32 v21, v19"); e("s_nop 0")
            e(f"{sw} v18, v20"); e(f"{sw} v19, v21"); e("s_nop 0")
            e("v_add_f32 v18, v18, v20"); e("v_add_f32 v19, v19, v21")
        e("s_mov_b64 exec, 0xffff")
        e(f"buffer_store_dwordx2 v[18:19], v16, s[12:15], s32 offen {SC}")
    k.stamp(st0+2)

def proj_l(k, wimg, nxt, src, sig=None, done=0):
    e = k.e
    if nxt is not None:
        ids_mt(k)
        e("s_min_u32 s17, s17, 14" if nxt == WA_I else "s_nop 0")
        e("s_mul_i32 s58, s17, 163840"); e("s_add_u32 s58, s58, s45"); e(f"s_add_u32 s58, s58, {nxt}")
    ids_rt(k)
    e("s_mul_i32 s50, s17, 102400"); e("s_add_u32 s50, s50, s45"); e(f"s_add_u32 s50, s50, {wimg}")
    e("s_mul_i32 s51, s16, 81920"); e("s_lshl_b32 s52, s17, 2"); e("s_add_u32 s52, s52, s39"); e("s_mul_i32 s52, s52, 2560"); e("s_add_u32 s51, s51, s52"); e(f"s_add_u32 s51, s51, {src}")
    e("v_min_u32 v21, 39, v1"); e("v_lshlrev_b32 v21, 6, v21")
    w = Wdma(k, 25, 50, "o"); k.vm = []
    T1, T2 = ENV('T1', '4'), ENV('T2', '3')
    if sig:
        n = ENV('N1', '2'); w.rng(done, done + n); signal(k, "s1l", 0, 8, sig, n); done += n
        ub_prep(k, 0)
    w.rng(done, 25, T1 if sig else 0)
    w2 = Wdma(k, 40, 58)
    if nxt is not None: w2.rng(32, 39, T1 if sig else 0)
    if sig: ub_prep(k, 1)
    k.waitvm("o24")
    e("s_barrier")
    if ENV('ATOUCH', '1'):
        k.vmop("buffer_load_dword v20, v21, s[12:15], s51 offen")
    if nxt is not None:
        w2.rng(25, 32)
        e("s_barrier")
        w2.rng(0, 15)
        e("s_barrier")
        k.waitvm("w14")
        w2.rng(15, 25, T2)
    return w2

def stats16(k, s, rstd, mop, mask):
    e = k.e
    e(f"v_add_f32 v{s}, v{s}, v{s+2}"); e(f"v_add_f32 v{s+1}, v{s+1}, v{s+3}")
    k.allred16("v_add_f32", s, s+2); k.allred16("v_add_f32", s+1, s+3)
    k.allred32("v_add_f32", s, s+2); k.allred32("v_add_f32", s+1, s+3)
    stats_finish(k, s, s+1, s+2, rstd, s+3)
    split3(k, s+2, mop, 17, 'm', mask)
def usum(k, u, dst, t=17):
    e = k.e
    e(f"v_add_f32 v{u}, v{u}, v{u+1}"); e(f"v_add_f32 v{u+2}, v{u+2}, v{u+3}"); e(f"v_add_f32 v{u}, v{u}, v{u+2}")
    split3(k, u, dst, t, 'u')
def scale_pack(k, a, sc, dst):
    for r in range(4): k.e(f"v_mul_f32 v{a+r}, v{a+r}, v{sc(r)}")
    for r in range(2): k.e(f"v_cvt_pk_bf16_f32 v{dst+r}, v{a+2*r}, v{a+2*r+1}")
EX = 102400
UOFF = lambda F: (F//4)*8192 + 7168 + (F%4)*256 + 128
TOKF = (0, 1, 2, 3, 6); FEAF = (4, 5, 7)

def ub_prep(k, part):
    e = k.e
    if part: return ub_fin(k)
    e("v_and_b32 v5, 15, v1"); e("v_lshrrev_b32 v6, 4, v1"); e("s_lshr_b32 s30, s21, 1")
    e("v_mul_u32_u24 v12, 2560, v6"); e("v_lshl_add_u32 v12, v5, 2, v12")
    e("s_mul_i32 s30, s30, 10240"); e("s_lshl_b32 s31, s39, 7"); e("s_add_u32 s30, s30, s31"); e(f"s_add_u32 s30, s30, {U_B}")
    for q in range(2):
        for j_ in range(5): k.vmop(f"buffer_load_dword v{64+5*q+j_}, v12, s[12:15], s30 offen offset:{512*j_+64*q}", "up")
    e("s_lshr_b32 s30, s39, 1"); e("s_lshl_b32 s30, s30, 13"); e("s_and_b32 s31, s39, 1"); e("s_lshl_b32 s31, s31, 9"); e("s_add_u32 s30, s30, s31")
    e("v_lshlrev_b32 v51, 3, v5"); e("v_add_u32 v46, s30, v51")
def ub_fin(k):
    e = k.e
    k.waitvm("up")
    for q in range(2):
        u = 64+5*q
        e(f"v_add_f32 v{u}, v{u}, v{u+1}"); e(f"v_add_f32 v{u+2}, v{u+2}, v{u+3}"); e(f"v_add_f32 v{u}, v{u}, v{u+4}"); e(f"v_add_f32 v{u}, v{u}, v{u+2}")
        k.allred16("v_add_f32", u, u+1); k.allred32("v_add_f32", u, u+1)
        split3(k, u, 28+2*q, 17, 'u')

def atouch_pre(k, xin):
    e = k.e
    e("s_mul_i32 s51, s16, 163840"); e("s_lshl_b32 s52, s17, 2"); e("s_add_u32 s52, s52, s39"); e("s_mul_i32 s52, s52, 2560"); e("s_add_u32 s51, s51, s52"); e(f"s_add_u32 s51, s51, {xin}")
    e("v_min_u32 v21, 39, v1"); e("v_lshlrev_b32 v21, 6, v21")

def qkvb_pre(k):
    e = k.e
    ids_mt(k)
    e("v_and_b32 v5, 15, v1"); e("v_lshrrev_b32 v6, 4, v1")
    e("s_lshl_b32 s22, s16, 3"); e("s_lshl_b32 s19, s39, 1"); e("s_add_u32 s19, s19, s22")
    e("v_lshlrev_b32 v11, 3, v5"); e("v_lshl_add_u32 v11, v6, 8, v11")
    e("v_cmp_eq_u32 vcc, 0, v6"); e("v_lshlrev_b32 v10, 4, v6"); e("s_nop 0"); e("v_cndmask_b32 v4, 0, -1, vcc")

def qkvb_c(k, L, xin, stin, st0):
    e = k.e; nm = k.name
    DA = 5
    ACC, BF, AR, RSV = 64, 160, 192, 228
    acc = lambda b, F: ACC + 32*b + 4*F
    qkvb_pre(k)
    e("s_lshl_b32 s28, s19, 10"); e(f"s_add_u32 s28, s28, {stin}")
    e("s_mul_i32 s25, s19, 20480"); e(f"s_add_u32 s25, s25, {xin}"); e("s_add_u32 s26, s25, 20480")
    e("v_add_u32 v41, 65536, v3"); e("v_add_u32 v42, 131072, v3")
    def c2():
        e("s_lshl_b32 s48, s16, 9"); e(f"s_add_u32 s48, s48, {C2(L)}")
        e(f"v_lshlrev_b32 v{PV_+1}, 8, v1"); e(f"v_lshlrev_b32 v{PV_+2}, 3, v1"); e(f"v_sub_u32 v{PV_+2}, 16, v{PV_+2}")
        e("s_cmp_eq_u32 s16, 0"); e("s_cselect_b64 s[56:57], 1, 3")
    wait_go(k, "p3", 1, c2)
    k.stamp(st0)
    def ldA(ks):
        for b in range(2):
            if ks % 4 == 0 and ks > 0: e(f"s_add_u32 s{25+b}, s{25+b}, 4096")
            k.vmop(f"buffer_load_dwordx4 {vr(AR+8*(ks%DA)+4*b,4)}, v3, s[12:15], s{25+b} offen offset:{(ks%4)*1024} {SC}", f"a{ks}")
    ldA(0)
    for b in range(2):
        for q in range(2): k.vmop(f"buffer_load_dwordx2 {vr(24+4*b+2*q,2)}, v11, s[12:15], s28 offen offset:{1024*b+128*q} {SC}", "st")
    for ks in range(1, DA-1): ldA(ks)
    MC, MP, MP1 = 64, 68, 72
    NEG = fbits(-1e30)
    def prolog():
        k.waitvm("st")
        for b in (1, 2): stats16(k, 20+4*b, 48+b, 52+2*b, 4)
        for b in (1, 2):
            for r in range(4):
                e(f"v_add_u32 v18, {4*r}, v10")
                k.dsop(f"ds_bpermute_b32 v{RSV+4*b+r}, v18, v{48+b}", "rs")
        e("v_lshlrev_b32 v43, 3, v5")
        e("v_lshlrev_b32 v17, 2, v6"); e("v_sub_u32 v17, v5, v17")
        e(f"v_mov_b32 v19, {NEG}")
        for r in range(4):
            e(f"v_subrev_u32 v18, {r}, v17"); e("v_and_b32 v16, 0x80000001, v18")
            e("v_cmp_eq_u32 vcc, 0, v16"); e(f"v_cndmask_b32 v{MC+r}, v19, 0, vcc")
            e("v_cmp_eq_u32 vcc, 0x80000000, v16"); e(f"v_cndmask_b32 v{MP+r}, v19, 0, vcc")
        e("s_cmp_eq_u32 s19, 0"); e(f"s_cselect_b32 s34, {NEG}, 0")
        for r in range(4): e(f"v_add_f32 v{MP1+r}, s34, v{MP+r}")
        e("v_cmp_eq_u32 vcc, 2, v6"); e("v_cndmask_b32 v38, 0, -1, vcc")
        e("v_cmp_eq_u32 vcc, 3, v6"); e("v_cndmask_b32 v39, 0, -1, vcc")
        for b in (1, 2): e(f"v_mul_f32 v{58+b}, {fbits(CSCALE)}, v{48+b}")
        e("v_cmp_gt_u32 vcc, 2, v6")
        for b in (1, 2): e(f"v_cndmask_b32 v{35+b}, v{48+b}, v{58+b}, vcc")
        e("s_mul_i32 s35, s18, 5120"); e(f"s_add_u32 s35, s35, {EX}"); e("v_add_u32 v9, s35, v3")
        e("s_mul_i32 s24, s19, 20480"); e(f"s_add_u32 s24, s24, {OBT}")
        e("s_lshl_b32 s51, s17, 10"); e("s_add_u32 s51, s51, s24"); e("s_add_u32 s52, s51, 20480")
        e("s_lshr_b32 s53, s17, 2"); e("s_add_u32 s53, s53, 16"); e("s_lshl_b32 s53, s53, 10"); e("s_add_u32 s53, s53, s24")
        e("s_and_b32 s54, s17, 1"); e("s_lshl_b32 s54, s54, 9"); e("s_add_u32 s53, s53, s54")
        e("s_bfe_u32 s54, s17, 0x10001"); e("s_lshl_b32 s54, s54, 3"); e("s_add_u32 s53, s53, s54"); e("s_add_u32 s54, s53, 20480")
    fl = k.capture(prolog)
    def rd(ks, F):
        off = ks*8192 + 1024*F; hi = off >> 16
        k.dsop(f"ds_read_b128 {vr(BF+4*F,4)}, v{(3,41,42)[hi]} offset:{off & 0xffff}", f"b{ks}_{F}")
    def mm(b, F, ks):
        a = vr(AR+8*(ks%DA)+4*(b-1), 4); w = vr(BF+4*F, 4); c = vr(acc(b,F), 4); ci = c if ks else "0"
        if F in TOKF: e(f"v_mfma_f32_16x16x32_bf16 {c}, {w}, {a}, {ci}")
        else:         e(f"v_mfma_f32_16x16x32_bf16 {c}, {a}, {w}, {ci}")
    e("s_barrier")
    for F in range(8): rd(0, F)
    for ks in range(20):
        k.waitvm(f"a{ks}")
        if ks == 0: k.stamp(st0+1)
        if ks == 6: e("s_barrier")
        if ks == 16:
            k.fill(fl, 1000)
            for F in range(8): k.dsop(f"ds_read_b64 {vr(20+2*F,2)}, v43 offset:{UOFF(F)}", "uo")
        for F in range(8):
            if F % 2 == 0: k.waitlg(f"b{ks}_{F+1}")
            mm(1, F, ks)
            if ks >= 1: k.fill(fl, 1)
            mm(2, F, ks)
            if ks + 1 < 20: rd(ks+1, F)
            if F == 0 and ks + DA - 1 < 20: ldA(ks + DA - 1)
            if ks >= 1 and F % 2: k.fill(fl, 1)
        if ks == 18:
            k.fill(fl, 1000)
            for b in (1, 2):
                for F in range(8):
                    U, M = vr(20+2*F, 2), vr(52+2*b, 2)
                    if F in TOKF: e(f"v_mfma_f32_16x16x16_bf16 {vr(acc(b,F),4)}, {U}, {M}, {vr(acc(b,F),4)}")
                    else:         e(f"v_mfma_f32_16x16x16_bf16 {vr(acc(b,F),4)}, {M}, {U}, {vr(acc(b,F),4)}")
    k.stamp(st0+2)
    e("s_barrier")
    if os.environ.get("FOC") == "s3": k.stamp(3)
    e("s_cmp_eq_u32 s18, 0"); e(f"s_cbranch_scc0 {nm}_ni"); lw_init(k); k.label(f"{nm}_ni")
    KO = lambda b, h: BF + 8*b + 4*h
    QO = lambda b, h: BF + 24 + 8*(b-1) + 4*h
    VO = lambda F, b: BF + 40 + 8*FEAF.index(F) + 2*b
    def kv_pack(b):
        for h in range(2): scale_pack(k, acc(b, 2+h), lambda r: 48+b, KO(b,h))
        scale_pack(k, acc(b, 6), lambda r: 35+b, KO(b,0)+2)
        for r in range(2): e(f"v_mov_b32 v{KO(b,1)+2+r}, v{KO(b,0)+2+r}")
        for F in FEAF: scale_pack(k, acc(b, F), lambda r: RSV+4*b+r, VO(F,b))
    kv_pack(2)
    for h in range(2): e(f"ds_write_b128 v9, {vr(KO(2,h),4)} offset:{5120+1024*h}")
    for n, F in enumerate(FEAF): e(f"ds_write_b64 v9, {vr(VO(F,2),2)} offset:{5120+2048+1024*n}")
    kv_pack(1)
    e("s_waitcnt lgkmcnt(0)"); e("s_barrier")
    if os.environ.get("FOC") == "s3": k.stamp(4)
    for h in range(2): e(f"ds_read_b128 {vr(KO(0,h),4)}, v9 offset:{1024*h}")
    for n, F in enumerate(FEAF): e(f"ds_read_b64 {vr(VO(F,0),2)}, v9 offset:{2048+1024*n}")
    for b in (1, 2):
        for h in range(2): scale_pack(k, acc(b, h), lambda r: 58+b, QO(b,h))
        for r in range(2):
            e(f"v_mov_b32 v{40+2*r}, v{KO(b,0)+2+r}"); e(f"v_mov_b32 v{41+2*r}, v{KO(b,0)+2+r}")
        for r in range(2): e(f"v_permlane32_swap_b32 v{40+2*r}, v{41+2*r}")
        e("s_nop 0")
        for h in range(2):
            for r in range(2): e(f"v_and_b32 v{QO(b,h)+2+r}, v{40+2*r}, v{38+h}")
    e("s_waitcnt lgkmcnt(0)")
    units = [(b, h) for b in (1, 2) for h in range(2)]
    SU = lambda i: 20 + 8*i if i < 2 else 76 + 8*(i-2)
    TU = lambda i: ACC + 32 + 4*i
    PU = lambda i: ACC + 48 + 4*i
    OU = lambda i: ACC + 64 + 8*i
    for i, (b, h) in enumerate(units):
        e(f"v_mfma_f32_16x16x32_bf16 {vr(SU(i),4)}, {vr(KO(b-1,h),4)}, {vr(QO(b,h),4)}, {vr(MP1 if b == 1 else MP,4)}")
        e(f"v_mfma_f32_16x16x32_bf16 {vr(SU(i)+4,4)}, {vr(KO(b,h),4)}, {vr(QO(b,h),4)}, {vr(MC,4)}")
    def allred(op):
        for sw in ("v_permlane16_swap_b32", "v_permlane32_swap_b32"):
            for i in range(4): e(f"v_mov_b32 v{TU(i)+1}, v{TU(i)}")
            for i in range(4): e(f"{sw} v{TU(i)}, v{TU(i)+1}")
            for i in range(4): e(f"{op} v{TU(i)}, v{TU(i)}, v{TU(i)+1}")
    for i in range(4):
        s = SU(i)
        e(f"v_max3_f32 v{TU(i)}, v{s}, v{s+1}, v{s+2}"); e(f"v_max3_f32 v{TU(i)}, v{s+3}, v{s+4}, v{TU(i)}")
        e(f"v_max3_f32 v{TU(i)}, v{s+5}, v{s+6}, v{TU(i)}"); e(f"v_max_f32 v{TU(i)}, v{s+7}, v{TU(i)}")
    allred("v_max_f32")
    for i in range(4):
        for r in range(8): e(f"v_sub_f32 v{SU(i)+r}, v{SU(i)+r}, v{TU(i)}")
    for i in range(4):
        for r in range(8): e(f"v_exp_f32 v{SU(i)+r}, v{SU(i)+r}")
    for i in range(4):
        s = SU(i)
        e(f"v_add_f32 v{TU(i)}, v{s}, v{s+1}")
        for r in range(2, 8): e(f"v_add_f32 v{TU(i)}, v{TU(i)}, v{s+r}")
    allred("v_add_f32")
    for i in range(4): e(f"v_rcp_f32 v{TU(i)}, v{TU(i)}")
    for i in range(4):
        for r in range(8): e(f"v_mul_f32 v{SU(i)+r}, v{SU(i)+r}, v{TU(i)}")
        for r in range(4): e(f"v_cvt_pk_bf16_f32 v{PU(i)+r}, v{SU(i)+2*r}, v{SU(i)+2*r+1}")
    for i, (b, h) in enumerate(units):
        e(f"v_mfma_f32_16x16x32_bf16 {vr(OU(i),4)}, {vr(VO(4+h,b-1),4)}, {vr(PU(i),4)}, 0")
        e(f"v_mfma_f32_16x16x32_bf16 {vr(OU(i)+4,4)}, {vr(VO(7,b-1),4)}, {vr(PU(i),4)}, 0")
    e("v_cmp_eq_u32 vcc, 0, v6")
    for bi in range(2):
        o0, o1 = OU(2*bi), OU(2*bi+1); d = 40 + 8*bi
        e(f"v_cvt_pk_bf16_f32 v{d}, v{o0}, v{o0+1}"); e(f"v_cvt_pk_bf16_f32 v{d+1}, v{o0+2}, v{o0+3}")
        e(f"v_cvt_pk_bf16_f32 v{d+2}, v{o1}, v{o1+1}"); e(f"v_cvt_pk_bf16_f32 v{d+3}, v{o1+2}, v{o1+3}")
        e(f"buffer_store_dwordx4 {vr(d,4)}, v3, s[12:15], s{51+bi} offen {SC}")
        for r in range(4): e(f"v_cndmask_b32 v{o0+4+r}, v{o1+4+r}, v{o0+4+r}, vcc")
        e(f"v_cvt_pk_bf16_f32 v{d+4}, v{o0+4}, v{o0+5}"); e(f"v_cvt_pk_bf16_f32 v{d+5}, v{o0+6}, v{o0+7}")
    e("s_mov_b32 exec_hi, 0")
    for bi in range(2): e(f"buffer_store_dwordx2 {vr(44+8*bi,2)}, v3, s[12:15], s{53+bi} offen {SC}")

def qkvb_l(k, L, xin, stin, w):
    e = k.e; nm = k.name
    qkvb_pre(k)
    e("s_max_u32 s22, s22, 1"); e("s_sub_u32 s22, s22, 1")
    e("s_mul_i32 s24, s22, 20480"); e(f"s_add_u32 s24, s24, {xin}")
    e("s_lshl_b32 s27, s22, 10"); e(f"s_add_u32 s27, s27, {stin}")
    e("s_min_u32 s40, s39, 2")
    e("s_cmp_lt_u32 s39, 2"); e("s_cselect_b32 s41, 2, 4"); e("s_cselect_b32 s42, 4, 5")
    e("s_add_u32 s41, s41, s40"); e("s_add_u32 s42, s42, s40")
    for d_, s_ in ((43, 41), (44, 42)):
        e(f"s_lshr_b32 s{d_}, s{s_}, 2"); e(f"s_lshl_b32 s{d_}, s{d_}, 13"); e(f"s_and_b32 s32, s{s_}, 3"); e("s_lshl_b32 s32, s32, 8")
        e(f"s_add_u32 s{d_}, s{d_}, s32"); e(f"s_add_u32 s{d_}, s{d_}, {UOFF(0)}")
    e("s_lshl_b32 s41, s41, 10"); e("s_lshl_b32 s42, s42, 10")
    for i in range(3):
        e(f"v_add_u32 v{40+i}, s41, v3"); e(f"v_add_u32 v{43+i}, s42, v3")
        if i: e(f"v_add_u32 v{40+i}, {65536*i}, v{40+i}"); e(f"v_add_u32 v{43+i}, {65536*i}, v{43+i}")
    atouch_pre(k, xin)
    e("s_barrier")
    e(f"ds_write_b64 v46, v[28:29] offset:{UOFF(0)}"); e(f"ds_write_b64 v46, v[30:31] offset:{UOFF(1)}")
    if ENV('ATOUCH', '1'): k.vmop("buffer_load_dword v20, v21, s[12:15], s51 offen")
    w.one(39)
    for q in range(2): k.vmop(f"buffer_load_dwordx2 {vr(24+2*q,2)}, v11, s[12:15], s27 offen offset:{128*q} {SC}", "st")
    e("s_cmp_eq_u32 s39, 3"); e("s_cselect_b32 s24, 0x7ff00000, s24")
    HL = ENV('HL', '3')
    def ldh(ks):
        if ks % 4 == 0 and ks: e("s_add_u32 s24, s24, 4096")
        k.vmop(f"buffer_load_dwordx4 {vr(128+4*ks,4)}, v3, s[12:15], s24 offen offset:{(ks%4)*1024} {SC}", f"h{ks}")
    for ks in range(HL): ldh(ks)
    k.waitvm("w39"); e("s_waitcnt lgkmcnt(0)"); e("s_barrier")
    k.waitvm("st")
    stats16(k, 24, 48, 52, 4)
    for r in range(4):
        e(f"v_add_u32 v18, {4*r}, v10")
        k.dsop(f"ds_bpermute_b32 v{72+r}, v18, v48", "r")
    def rd(ks):
        off = ks*8192; hi = off >> 16; fb = 96 + 8*(ks%3)
        k.dsop(f"ds_read_b128 {vr(fb,4)}, v{40+hi} offset:{off & 0xffff}", f"r{ks}")
        k.dsop(f"ds_read_b128 {vr(fb+4,4)}, v{43+hi} offset:{off & 0xffff}", f"r{ks}")
    rd(0); rd(1)
    for ks in range(20):
        if ks + 2 < 20: rd(ks+2)
        if ks + HL < 20: ldh(ks + HL)
        k.waitvm(f"h{ks}"); k.waitlg(f"r{ks}")
        fb = 96 + 8*(ks%3)
        e(f"v_mfma_f32_16x16x32_bf16 v[80:83], {vr(fb,4)}, {vr(128+4*ks,4)}, {'v[80:83]' if ks else 0}")
        e(f"v_mfma_f32_16x16x32_bf16 v[84:87], {vr(128+4*ks,4)}, {vr(fb+4,4)}, {'v[84:87]' if ks else 0}")
    e("v_add_u32 v12, s43, v51"); e("v_add_u32 v13, s44, v51")
    e("ds_read_b64 v[20:21], v12"); e("ds_read_b64 v[22:23], v13")
    e("s_lshl_b32 s41, s39, 10"); e("s_cmp_lt_u32 s39, 2"); e("s_cselect_b32 s41, s41, 8"); e("s_cselect_b32 s42, s41, 1032")
    e("s_lshl_b32 s40, s40, 10")
    e(f"v_add_u32 v9, {EX}, v3"); e("v_add_u32 v12, s41, v9"); e("v_add_u32 v13, s42, v9"); e("v_add_u32 v15, s40, v9")
    e("s_waitcnt lgkmcnt(0)")
    e("v_mfma_f32_16x16x16_bf16 v[80:83], v[20:21], v[52:53], v[80:83]")
    e("v_mfma_f32_16x16x16_bf16 v[84:87], v[52:53], v[22:23], v[84:87]")
    scale_pack(k, 80, lambda r: 48, 88); scale_pack(k, 84, lambda r: 72+r, 90)
    e("s_barrier")
    e("s_cmp_eq_u32 s39, 3"); e(f"s_cbranch_scc1 {nm}_h4")
    e("ds_write_b64 v12, v[88:89]"); e("ds_write_b64 v13, v[88:89]"); e("ds_write_b64 v15, v[90:91] offset:2048")
    e("s_waitcnt lgkmcnt(0)")
    k.label(f"{nm}_h4")
    e("s_barrier")
    k.vm = []; k.lg = []

def one(k, target):
    k.e(f"v_mov_b32 v{PV_+1}, 0"); k.e(f"v_mov_b32 v{PV_+2}, {target}"); k.e("s_mov_b64 s[56:57], 1")

def addr_v(k, img):
    e = k.e
    e("s_sub_u32 s35, s17, 10"); e("s_lshl_b32 s35, s35, 7")
    e("s_mul_i32 s36, s19, 2560"); e(f"s_add_u32 s33, s36, {KVIMG[img]+1280}")
    e("v_mul_u32_u24 v20, 320, v4")
    for jf in range(4):
        e(f"v_add_u32 v16, s35, v10")
        if jf: e(f"v_add_u32 v16, {32*jf}, v16")
        e("v_mul_u32_u24 v17, 52429, v16"); e("v_lshrrev_b32 v17, 20, v17")
        e("v_mul_u32_u24 v18, 20, v17"); e("v_sub_u32 v18, v16, v18")
        e("v_mul_u32_u24 v17, 163840, v17"); e("v_lshl_add_u32 v17, v18, 4, v17")
        e(f"v_add_u32 v{24+jf}, v17, v20")
def addr_qk(k, img, xm=52):
    e = k.e; k.xm = xm
    e("s_cmp_ge_u32 s17, 5")
    e(f"s_cselect_b32 s33, {QI}, 0"); e(f"s_cselect_b32 s59, 1.0, {fbits(CSCALE)}"); e("s_cselect_b32 s35, 5, 0"); e("s_cselect_b32 s37, 1, 0")
    e(f"s_add_u32 s33, s33, {QIMG[img]}")
    e("s_sub_u32 s35, s17, s35")
    e("s_mul_i32 s36, s19, 1280"); e("s_lshl_b32 s36, s36, s37"); e("s_add_u32 s33, s33, s36")
    e("s_lshl_b32 s34, 81920, s37")
    e("v_lshlrev_b32 v16, 4, v10"); e("v_lshlrev_b32 v17, 3, v10")
    e("v_lshl_add_u32 v18, v4, 9, v16")
    e("s_sub_u32 s36, s34, 512"); e("v_and_b32 v19, s36, v59"); e("v_add_u32 v19, v19, v16")
    e(f"s_mov_b32 s{xm}, -1"); e(f"s_mov_b32 s{xm+1}, 0"); e(f"s_mov_b32 s{xm+2}, 0"); e(f"s_mov_b32 s{xm+3}, -1")
def epi_qk(k, ACC, BF):
    e = k.e; nm = k.name
    for v in range(1, 5):
        e(f"s_cmp_eq_u32 s35, {v}"); e(f"s_cbranch_scc1 {nm}_e{v}")
    QSC = os.environ.get("QSC", "sc1")
    for v in range(5):
        if v: k.label(f"{nm}_e{v}")
        e("s_nop 7")
        for jf in range(4):
            for r in range(16): e(f"v_mul_f32 v{ACC+16*jf+r}, v{ACC+16*jf+r}, v47")
            for r in range(8): e(f"v_cvt_pk_bf16_f32 v{BF+8*jf+r}, v{ACC+16*jf+2*r}, v{ACC+16*jf+2*r+1}")
            for a2 in range(2):
                x = BF+8*jf+4*a2
                e(f"v_permlane32_swap_b32 v{x}, v{x+2}"); e(f"v_permlane32_swap_b32 v{x+1}, v{x+3}")
            for a2 in range(2):
                x = BF+8*jf+4*a2
                G = [32*v+8*jf+4*a2, 32*v+8*jf+4*a2+2]
                def main(g):
                    h = g // 5; r = g % 5
                    return h, (r // 2 if h % 2 == 0 else (r - 1) // 2)
                st = [g % 10 == 4 for g in G]
                def hoff(dst, h, c):
                    if h: e(f"s_mul_i32 s{dst}, s34, {h}"); e(f"s_add_u32 s{dst}, s{dst}, s33")
                    else: e(f"s_mov_b32 s{dst}, s33")
                    if c: e(f"s_add_u32 s{dst}, s{dst}, {c}")
                if not any(st):
                    (h0, p0), (h1, p1) = main(G[0]), main(G[1])
                    hoff(36, h0, 512*p0)
                    if h0 == h1: e(f"buffer_store_dwordx4 {vr(x,4)}, v18, s[12:15], s36 offen {QSC}")
                    else:        e(f"buffer_store_dwordx4 {vr(x,4)}, v19, s[12:15], s36 offen {QSC}")
                    assert (h0 == h1 and (p0, p1) == (0, 1)) or (h1 == h0 + 1 and (p0, p1) == (1, 0))
                else:
                    m = st.index(False); q = 1 - m
                    h, p = main(G[m]); hoff(36, h, 512*p); hoff(37, G[q] // 5, 1024); e("s_add_u32 s38, s37, s34")
                    e(f"s_mov_b64 exec, s[{k.xm+2*m}:{k.xm+1+2*m}]")
                    e(f"buffer_store_dwordx4 {vr(x,4)}, v16, s[12:15], s36 offen {QSC}")
                    e(f"s_mov_b64 exec, s[{k.xm+2*q}:{k.xm+1+2*q}]")
                    e(f"buffer_store_dwordx2 {vr(x,2)}, v17, s[12:15], s37 offen {QSC}")
                    e(f"buffer_store_dwordx2 {vr(x+2,2)}, v17, s[12:15], s38 offen {QSC}")
                    e("s_mov_b64 exec, -1")
        e(f"s_branch {nm}_fin5")
def epi_v(k, ACC, BF, RS):
    e = k.e
    VSC = os.environ.get("VSC", "sc1")
    for jf in range(4):
        for r in range(16): e(f"v_mul_f32 v{ACC+16*jf+r}, v{ACC+16*jf+r}, v{RS+r}")
        for r in range(8): e(f"v_cvt_pk_bf16_f32 v{BF+8*jf+r}, v{ACC+16*jf+2*r}, v{ACC+16*jf+2*r+1}")
        for u in range(2):
            e(f"buffer_store_dwordx4 {vr(BF+8*jf+4*u,4)}, v{24+jf}, s[12:15], s33 offen offset:{640*u} {VSC}")

def qkva_c(k, L, xin, stin, img, cnt, wbar, st0):
    e = k.e; nm = k.name
    DA = 5
    ACC, BF, AR, RS = 64, 128, 160, 200
    e("v_and_b32 v10, 31, v1"); e("v_lshrrev_b32 v4, 5, v1"); e("v_and_b32 v5, 15, v1")
    e("s_lshl_b32 s19, s16, 2"); e("s_add_u32 s19, s19, s18")
    e("v_lshlrev_b32 v12, 4, v10")
    e("s_lshl_b32 s31, s17, 11"); e(f"s_add_u32 s31, s31, {U_A}")
    for jf in range(4): k.vmop(f"buffer_load_dwordx4 {vr(24+4*jf,4)}, v12, s[12:15], s31 offen offset:{512*jf}", "u")
    e("v_bfe_u32 v7, v1, 4, 1"); e("v_mul_u32_u24 v8, 20480, v7"); e("v_lshl_add_u32 v8, v4, 8, v8"); e("v_lshl_add_u32 v8, v5, 4, v8")
    e("v_lshlrev_b32 v11, 10, v7"); e("v_lshl_add_u32 v11, v4, 9, v11"); e("v_lshl_add_u32 v11, v5, 3, v11")
    e("s_lshl_b32 s30, s19, 11"); e(f"s_add_u32 s30, s30, {stin}")
    e("s_mul_i32 s24, s19, 40960"); e(f"s_add_u32 s24, s24, {xin}")
    e("v_add_u32 v41, 65536, v3"); e("v_add_u32 v42, 131072, v3")
    e("v_subrev_u32 v58, 1, v4"); e("v_not_b32 v59, v58")
    sc = SC if cnt is not None else ""
    if cnt is not None:
        def c4(): one(k, 16); e("s_lshl_b32 s48, s16, 8"); e(f"s_add_u32 s48, s48, {cnt}")
        wait_go(k, "p5", 1, c4)
    k.stamp(st0)
    def ldA(ks):
        if ks % 4 == 0 and ks > 0: e("s_add_u32 s24, s24, 4096")
        for u in range(2):
            k.vmop(f"buffer_load_dwordx4 {vr(AR+8*(ks%DA)+4*u,4)}, v8, s[12:15], s24 offen offset:{(ks%4)*1024+512*u} {sc}", f"a{ks}")
    ldA(0)
    for q in range(4): k.vmop(f"buffer_load_dwordx2 {vr(16+2*q,2)}, v11, s[12:15], s30 offen offset:{128*q} {sc}", "st")
    for ks in range(1, DA-1): ldA(ks)
    def prolog(vmode):
        k.waitvm("st")
        e("v_add_f32 v16, v16, v18"); e("v_add_f32 v17, v17, v19"); e("v_add_f32 v20, v20, v22"); e("v_add_f32 v21, v21, v23")
        e("v_add_f32 v16, v16, v20"); e("v_add_f32 v17, v17, v21")
        k.allred32("v_add_f32", 16, 18); k.allred32("v_add_f32", 17, 18)
        stats_finish(k, 16, 17, 46, 47, 18)
        split3(k, 46, 48, 18, 'm', 58)
        for jf in range(4): usum(k, 24+4*jf, 50+2*jf, 18)
        if vmode:
            e("v_lshlrev_b32 v16, 4, v4")
            for r in range(16):
                e(f"v_add_u32 v17, {(8*(r//4) + r%4)*4}, v16")
                k.dsop(f"ds_bpermute_b32 v{RS+r}, v17, v47", "rs")
            addr_v(k, img)
        else:
            addr_qk(k, img); e("v_mul_f32 v47, s59, v47")
    e("s_cmp_ge_u32 s17, 10"); e(f"s_cbranch_scc1 {nm}_qv")
    vm_save = list(k.vm)
    def mainloop(vmode):
        acc = lambda jf: vr(ACC+16*jf, 16)
        fl = k.capture(lambda: prolog(vmode))
        def rd(ks, f):
            off = ks*8192 + 1024*f; hi = off >> 16
            k.dsop(f"ds_read_b128 {vr(BF+4*f,4)}, v{(3,41,42)[hi]} offset:{off & 0xffff}", f"b{ks}_{f}")
        e("s_barrier")
        for f in range(8): rd(0, f)
        for ks in range(20):
            k.waitvm(f"a{ks}")
            if ks == 0: k.stamp(st0+1)
            if ks + 1 in wbar: e("s_barrier")
            for f in range(8):
                u, jf = f//4, f%4
                if f % 2 == 0: k.waitlg(f"b{ks}_{f+1}")
                a = vr(AR+8*(ks%DA)+4*u, 4); b = vr(BF+4*f, 4); c = acc(jf) if (ks or u) else "0"
                if vmode: e(f"v_mfma_f32_32x32x16_bf16 {acc(jf)}, {a}, {b}, {c}")
                else:     e(f"v_mfma_f32_32x32x16_bf16 {acc(jf)}, {b}, {a}, {c}")
                if ks + 1 < 20: rd(ks+1, f)
                if f == 0 and ks + DA - 1 < 20: ldA(ks + DA - 1)
                if ks >= 1: k.fill(fl, 2)
            if ks == 15:
                k.fill(fl, 1000)
                for jf in range(4):
                    if vmode: e(f"v_mfma_f32_32x32x8_bf16 {acc(jf)}, v[48:49], {vr(50+2*jf,2)}, {acc(jf)}")
                    else:     e(f"v_mfma_f32_32x32x8_bf16 {acc(jf)}, {vr(50+2*jf,2)}, v[48:49], {acc(jf)}")
        k.stamp(st0+2)
    mainloop(False)
    epi_qk(k, ACC, BF)
    k.label(f"{nm}_qv"); k.vm = vm_save; k.lg = []
    mainloop(True)
    epi_v(k, ACC, BF, RS)
    k.label(f"{nm}_fin5")

def k_qkva():
    k = KB("qkva_kernel"); e = k.e
    common(k); ids_mt(k)
    e("s_cmp_ge_u32 s17, 15"); e("s_cbranch_scc1 qkva_kernel_end")
    e("v_lshlrev_b32 v3, 4, v1")
    e("s_mul_i32 s50, s17, 163840"); e("s_add_u32 s50, s50, s45"); e(f"s_add_u32 s50, s50, {WA_I}")
    e("s_waitcnt lgkmcnt(0)")
    k.stamp(2); k.srd(12, 6, WS_END)
    e("s_cmp_ge_u32 s18, 4"); e("s_cbranch_scc1 qkva_kernel_ld")
    WB = [1, 2, 4, 6, 8, 10, 12, 14, 16, 18]
    qkva_c(k, 0, XT[0], ST[0], 0, None, WB, 3)
    k.stamp(6); k.dump(8)
    e("s_endpgm")
    k.label("qkva_kernel_ld"); k.vm = []; k.lg = []
    w = Wdma(k, 40); LA = ENV('QLA', '5')
    bars = [0] + WB
    for i, s_ in enumerate(bars):
        last = (bars[i+1] if i + 1 < len(bars) else 20) - 1
        w.go(2*(last+1) + (LA if i else 2))
        k.waitvm(f"w{2*last+1}"); e("s_barrier")
    k.label("qkva_kernel_end"); e("s_endpgm")
    return k.text(216, 216)


def k_front():
    k = KB("front_kernel"); e = k.e; nm = k.name
    R, DEP, SCRB, UT = 4, 2, 131072, 65536
    need = lambda ks: ks // 2
    slot = lambda st: (st % R) * 32768
    e("s_cmp_ge_u32 s2, 256"); e(f"s_cbranch_scc1 {nm}_end"); k.stamp(0); k.rstamp(1)
    e("s_load_dwordx4 s[60:63], s[0:1], 0"); e("s_load_dwordx2 s[6:7], s[0:1], 64")
    e("s_load_dwordx2 s[46:47], s[0:1], 16"); e("s_load_dwordx2 s[4:5], s[0:1], 56"); e("s_load_dwordx4 s[40:43], s[0:1], 32")
    e("s_and_b32 s20, s2, 7"); e("s_lshr_b32 s21, s2, 3")
    e("v_lshrrev_b32 v2, 6, v0"); e("v_and_b32 v1, 63, v0")
    e("v_readfirstlane_b32 s18, v2")
    e("s_and_b32 s39, s18, 3"); e("s_lshl_b32 s45, s39, 10")
    ids_mt(k)
    e("v_lshlrev_b32 v3, 4, v1"); e("v_lshlrev_b32 v9, 6, v1")
    e("s_lshl_b32 s22, s2, 2"); e("s_add_u32 s22, s22, s39"); e("s_mul_i32 s23, s22, 2400"); e("s_mul_i32 s22, s22, 2560")
    e("s_waitcnt lgkmcnt(0)")
    k.stamp(2)
    k.srd(8, 60, S*D*2); k.srd(28, 62, D*3*D*2); k.srd(12, 6, WS_END)
    def burst():
        if ENV('BURST', '1'):
            e("s_mov_b32 exec_hi, 0xff")
            e("buffer_load_dword v240, v9, s[8:11], s22 offen"); e("buffer_load_dword v241, v9, s[28:31], s23 offen")
            e("s_mov_b64 exec, -1")
    def codepf(tg):
        if ENV('CPF', '1'):
            e("s_getpc_b64 s[34:35]"); k.label(f"{nm}_pc{tg}")
            e(f"s_sub_u32 s34, s34, {nm}_pc{tg} - {nm}"); e("s_subb_u32 s35, s35, 0")
            e("v_lshlrev_b32 v242, 4, v0"); e("s_lshl_b32 s36, s21, 12"); e("v_add_u32 v242, s36, v242")
            e(f"v_and_b32 v242, 0xffffffc0, v242"); e(f"v_min_u32 v242, code_end - {nm} - 4, v242")
            e("global_load_dword v243, v242, s[34:35]")
    e("s_cmp_ge_u32 s17, 15"); e(f"s_cbranch_scc1 {nm}_ub")
    e("v_and_b32 v10, 31, v1"); e("v_lshrrev_b32 v4, 5, v1"); e("v_and_b32 v5, 15, v1"); e("v_bfe_u32 v7, v1, 4, 1")
    e("v_lshrrev_b32 v13, 2, v5"); e("v_and_b32 v6, 3, v1")
    e("v_lshl_add_u32 v14, v4, 3, v13"); e("v_lshlrev_b32 v14, 8, v14"); e("v_lshl_add_u32 v14, v7, 5, v14"); e("v_lshl_add_u32 v14, v6, 3, v14")
    e("v_add_u32 v14, 16384, v14")
    e("s_mul_i32 s48, s17, 16"); e("s_add_u32 s48, s48, s16"); e("s_lshl_b32 s48, s48, 2"); e("s_add_u32 s48, s48, s39")
    e("s_lshl_b32 s49, s39, 13"); e(f"s_add_u32 s49, s49, {SCRB}")
    e("s_mul_i32 s50, s48, 3277"); e("s_lshr_b32 s50, s50, 16"); e("s_mul_i32 s51, s50, 20"); e("s_sub_u32 s51, s48, s51")
    SF = ENV('SF', '10')
    e("s_cmp_ge_u32 s18, 4"); e(f"s_cbranch_scc1 {nm}_ld")
    burst(); codepf("c")
    ACC, BF, AR, RS = 64, 128, 160, 200
    BA, AA = 216, 224
    SV = 192
    e("v_lshrrev_b32 v35, 4, v1")
    e("s_mov_b32 s56, 0x7ff00000"); e("s_mov_b32 s57, s56"); e("s_mov_b32 s58, s56")
    e("s_cmp_ge_u32 s48, 320"); e(f"s_cbranch_scc1 {nm}_s1")
    k.srd(52, 40, D*3*D*2)
    e(f"s_mul_i32 s27, s51, {32*3840}"); e("s_mul_i32 s25, s50, 80"); e("s_add_u32 s27, s27, s25")
    for par in range(2):
        e(f"v_add_u32 v32, {4*par}, v35"); e("v_lshlrev_b32 v32, 1, v32"); e("v_xor_b32 v32, v32, v5"); e("v_min_u32 v32, 14, v32")
        e("v_mul_u32_u24 v33, 52, v32"); e("v_lshrrev_b32 v33, 8, v33"); e("v_mul_u32_u24 v33, 1200, v33"); e("v_lshl_add_u32 v33, v32, 4, v33")
        e("v_mul_u32_u24 v32, 3840, v35"); e(f"v_add_u32 v{SV+par}, v33, v32")
    e("v_and_b32 v33, 1, v35"); e("v_lshl_add_u32 v33, v33, 2, v13"); e("v_lshlrev_b32 v33, 5, v33")
    e("v_lshl_add_u32 v32, v35, 3, v13"); e("v_lshlrev_b32 v32, 8, v32"); e("v_add_u32 v32, s49, v32")
    for F in range(8):
        if F < 6:
            e("v_lshlrev_b32 v34, 3, v6")
            if F: e(f"v_add_u32 v34, {40*F}, v34")
        elif F == 6: e("v_mul_u32_u24 v34, 40, v6"); e("v_add_u32 v34, 32, v34")
        else: e("v_and_b32 v34, 1, v6"); e("v_mul_u32_u24 v34, 40, v34"); e("v_add_u32 v34, 192, v34")
        e("v_xor_b32 v34, v34, v33"); e(f"v_add_u32 v{36+F}, v34, v32")
    e("s_mul_i32 s56, s50, 163840"); e("s_lshl_b32 s57, s51, 13"); e("s_add_u32 s56, s56, s57"); e(f"s_add_u32 s56, s56, {WB_I}"); e("s_add_u32 s57, s56, 4096"); e("s_mov_b32 s58, s57")
    e(f"s_branch {nm}_s2")
    k.label(f"{nm}_s1")
    e("s_cmp_ge_u32 s50, 24"); e("s_cselect_b32 s26, s42, s46"); e("s_cselect_b32 s27, s43, s47")
    k.srd(52, 26, D*D*2)
    e("s_cmp_ge_u32 s48, 640"); e(f"s_cbranch_scc1 {nm}_s2")
    e("s_and_b32 s25, s50, 7"); e("s_mul_i32 s25, s25, 160")
    e("s_mul_i32 s27, s51, 40"); e("s_sub_u32 s44, s51, 16"); e("s_mul_i32 s44, s44, 160"); e("s_add_u32 s44, s44, 16")
    e("s_cmp_lt_u32 s51, 16"); e("s_cselect_b32 s27, s27, s44"); e("s_cselect_b32 s26, 4, 2"); e("s_cselect_b32 s44, 4, 16")
    e("s_mul_i32 s27, s27, 1280"); e("s_add_u32 s27, s27, s25")
    for i in range(5):
        e(f"v_add_u32 v32, {64*i}, v1"); e("v_mul_u32_u24 v33, 6554, v32"); e("v_lshrrev_b32 v33, 16, v33")
        e("v_lshrrev_b32 v34, s26, v33"); e("v_mul_u32_u24 v34, s44, v34"); e("v_mul_u32_u24 v34, 1280, v34")
        e("v_mul_u32_u24 v33, 1120, v33"); e("v_add_u32 v34, v34, v33"); e(f"v_lshl_add_u32 v{SV+i}, v32, 4, v34")
    e("v_lshlrev_b32 v32, 2, v35"); e("s_mov_b32 s25, 2560")
    e("s_cmp_ge_u32 s50, 24"); e(f"s_cbranch_scc1 {nm}_f3"); e("s_cmp_ge_u32 s51, 16"); e(f"s_cbranch_scc1 {nm}_f3")
    e("v_lshrrev_b32 v32, 1, v35"); e("v_lshlrev_b32 v32, 4, v32"); e("v_and_b32 v33, 1, v35"); e("v_lshl_add_u32 v32, v33, 2, v32"); e("s_mov_b32 s25, 1280")
    k.label(f"{nm}_f3")
    e("v_add_u32 v32, v32, v13"); e("v_mul_u32_u24 v32, 160, v32"); e("v_add_u32 v32, s49, v32")
    e("s_and_b32 s26, s50, 1"); e("s_lshl_b32 s44, s26, 5"); e("s_xor_b32 s26, s26, 1"); e("s_lshl_b32 s26, s26, 7")
    e("v_lshl_add_u32 v36, v6, 4, v32"); e("v_add_u32 v36, s44, v36"); e("v_add_u32 v37, s25, v36")
    e("v_lshl_add_u32 v38, v6, 3, v32"); e("v_add_u32 v38, s26, v38"); e("v_add_u32 v39, s25, v38")
    e("s_cmp_ge_u32 s50, 24"); e(f"s_cselect_b32 s56, {WOB_I-WOA_I}, 0"); e("s_and_b32 s57, s50, 7"); e("s_mul_i32 s57, s57, 102400"); e("s_add_u32 s56, s56, s57")
    e("s_mul_i32 s57, s51, 5120"); e("s_add_u32 s56, s56, s57"); e(f"s_add_u32 s56, s56, {WOA_I}"); e("s_add_u32 s57, s56, 4096")
    k.label(f"{nm}_s2")
    e("s_lshl_b32 s38, s48, 9"); e(f"s_add_u32 s38, s38, {U_B}"); e("s_cmp_ge_u32 s48, 320"); e("s_cselect_b32 s38, 0x7ff00000, s38")
    e("v_lshlrev_b32 v9, 2, v1")
    UP = lambda F: (36, 40, 44, 48, 52, 208, 212, 28)[F]
    def side_issue(tg):
        e("s_cmp_ge_u32 s48, 320"); e(f"s_cbranch_scc1 {nm}_{tg}i1")
        for i in range(8):
            e(f"s_add_u32 m0, s49, {1024*i}"); e(f"s_add_u32 s32, s27, {4*3840*i}")
            e(f"buffer_load_dwordx4 v{SV+(i>>1)%2}, s[52:55], s32 offen nt lds")
        e(f"s_branch {nm}_{tg}i2")
        k.label(f"{nm}_{tg}i1")
        e("s_cmp_ge_u32 s48, 640"); e(f"s_cbranch_scc1 {nm}_{tg}i2")
        for i in range(5):
            e(f"s_add_u32 m0, s49, {1024*i}"); e("s_nop 0")
            e(f"buffer_load_dwordx4 v{SV+i}, s[52:55], s27 offen nt lds")
        k.label(f"{nm}_{tg}i2")
    e("s_lshl_b32 s19, s16, 2"); e("s_add_u32 s19, s19, s18")
    for jf in range(4):
        e(f"v_xor_b32 v15, {jf}, v13"); e(f"v_lshl_add_u32 v{BA+jf}, v15, 6, v14"); e(f"v_add_u32 v{BA+4+jf}, 65536, v{BA+jf}")
    e("v_lshl_add_u32 v15, v2, 5, v10"); e("v_lshlrev_b32 v15, 7, v15"); e("v_bfe_u32 v12, v10, 1, 3"); e("v_xor_b32 v12, v12, v4")
    for q in range(4):
        e(f"v_xor_b32 v11, {2*q}, v12"); e(f"v_lshl_add_u32 v{AA+q}, v11, 4, v15"); e(f"v_add_u32 v{AA+4+q}, 65536, v{AA+q}")
    e("v_mul_u32_u24 v8, 20480, v7"); e("v_lshl_add_u32 v8, v4, 8, v8"); e("v_lshl_add_u32 v8, v5, 4, v8")
    e("s_mul_i32 s24, s19, 40960"); e(f"s_add_u32 s24, s24, {XT[0]}")
    e("v_subrev_u32 v58, 1, v4"); e("v_not_b32 v59, v58")
    e("s_cmp_ge_u32 s17, 10"); e(f"s_cbranch_scc1 {nm}_qv")
    def side_finish(tg):
        e("s_waitcnt vmcnt(0) lgkmcnt(0)"); k.lg = []
        e("s_cmp_ge_u32 s48, 320"); e(f"s_cbranch_scc1 {nm}_{tg}f1")
        for F in range(8):
            for t in range(2): e(f"ds_read_b64_tr_b16 {vr(176+4*F+2*t,2)}, v{36+F} offset:{1024*t}")
        e(f"s_branch {nm}_{tg}f2")
        k.label(f"{nm}_{tg}f1")
        for nf in range(5):
            for t in range(2): e(f"ds_read_b64_tr_b16 {vr(176+4*nf+2*t,2)}, v{36+t if nf < 4 else 38+t} offset:{64*(nf//2)+8*(nf%2) if nf < 4 else 0}")
        k.label(f"{nm}_{tg}f2")
        k.lg = ["side"]
    def mainloop(vmode):
        tagm = "v" if vmode else "q"
        acc = lambda jf: vr(ACC+16*jf, 16)
        fl = k.capture(lambda: addr_v(k, 0) if vmode else addr_qk(k, 0, 28))
        def rdB(ks, f):
            u, jf = f//4, f%4; sl = slot(ks//2)
            for t in range(2):
                off = sl + (32*(ks%2) + 16*u + 4*t)*256
                k.dsop(f"ds_read_b64_tr_b16 {vr(BF+4*f+2*t,2)}, v{BA+4*(sl>>16)+jf} offset:{off & 0xffff}", f"b{ks}_{f}")
        def rdA(ks):
            sl = slot(ks//2)
            for u in range(2): k.dsop(f"ds_read_b128 {vr(AR+8*(ks%2)+4*u,4)}, v{AA+4*(sl>>16)+2*(ks%2)+u} offset:{sl & 0xffff}", f"b{ks}_a")
        kb = [-1]
        def bars(ks):
            while kb[0] < need(ks): e("s_barrier"); kb[0] += 1
        bars(0); k.stamp(3)
        rdA(0)
        for f in range(8): rdB(0, f)
        for ks in range(20):
            for f in range(8):
                u, jf = f//4, f%4
                k.waitlg(f"b{ks}_{f}")
                a = vr(AR+8*(ks%2)+4*u, 4); b = vr(BF+4*f, 4); c = acc(jf) if (ks or u) else "0"
                if vmode: e(f"v_mfma_f32_32x32x16_bf16 {acc(jf)}, {a}, {b}, {c}")
                else:     e(f"v_mfma_f32_32x32x16_bf16 {acc(jf)}, {b}, {a}, {c}")
                if ks + 1 < 20:
                    if f == 0: bars(ks+1); rdA(ks+1)
                    rdB(ks+1, f)
                if ks >= 4: k.fill(fl, 1)
            e(f"s_cmp_eq_u32 s17, {ks % 15}"); e(f"s_cbranch_scc0 {nm}_x{tagm}{ks}")
            e(f"s_add_u32 s32, s24, {1024*ks}")
            for u in range(2): e(f"buffer_store_dwordx4 {vr(AR+8*(ks%2)+4*u,4)}, v8, s[12:15], s32 offen offset:{512*u} {SC}")
            k.label(f"{nm}_x{tagm}{ks}")
            if ks in (0, 1, 4, 9, 10, 14): k.stamp(7 + (0, 1, 4, 9, 10, 14).index(ks))
            if ks == ENV('SI', '1'): side_issue(tagm)
            if ks == SF: side_finish(tagm)
            if ks == SF + 1:
                k.waitlg("side")
                for r in range(4): e(f"v_mov_b32 v{60+r}, 0x3f803f80")
                for F in range(8): e(f"v_mfma_f32_16x16x32_bf16 {vr(28+4*(F%4)+(16 if F >= 4 else 0) if False else UP(F),4)}, v[60:63], {vr(176+4*F,4)}, 0")
            if ks == SF + 2:
                for q in range(2):
                    for g in range(1, 4):
                        e(f"v_cmp_eq_u32 vcc, {g}, v35"); e(f"v_cndmask_b32 v{UP(4*q)}, v{UP(4*q)}, v{UP(4*q+g)}, vcc")
                    e(f"buffer_store_dword v{UP(4*q)}, v9, s[12:15], s38 offen offset:{256*q} {SC}")
            if SF < ks <= SF + 8:
                F = ks - SF - 1
                k.waitlg("side")
                e(f"buffer_store_dwordx4 {vr(176+4*F,4)}, v3, s[12:15], s{56 if F < 4 else 57 if F == 4 else 58} offen offset:{1024*(F%4)} {SC}")
        assert not fl
        k.stamp(4)
        e(f"v_lshlrev_b32 v23, 2, v10"); e(f"v_add_u32 v23, {UT}, v23"); e("s_lshl_b32 s32, s18, 8"); e("v_add_u32 v22, s32, v23")
        if vmode: e("v_lshlrev_b32 v21, 4, v4"); e(f"s_add_u32 s32, s32, {UT}"); e("v_add_u32 v21, s32, v21")
        e("s_barrier")
        e("ds_read_b32 v48, v22 offset:1024"); e("ds_read_b32 v49, v22 offset:1152")
        for jf in range(4): e(f"ds_read_b32 v{28+2*jf}, v23 offset:{256*jf}"); e(f"ds_read_b32 v{29+2*jf}, v23 offset:{256*jf+128}")
        if vmode:
            for a_ in range(4): e(f"ds_read_b128 {vr(RS+4*a_,4)}, v21 offset:{2048+32*a_}")
        else: e("ds_read_b32 v47, v22 offset:2048")
        e("s_waitcnt lgkmcnt(0)"); k.lg = []
        e("v_and_b32 v48, v48, v58"); e("v_and_b32 v49, v49, v58")
        if not vmode: e("v_mul_f32 v47, s59, v47")
        for jf in range(4):
            if vmode: e(f"v_mfma_f32_32x32x8_bf16 {acc(jf)}, v[48:49], {vr(28+2*jf,2)}, {acc(jf)}")
            else:     e(f"v_mfma_f32_32x32x8_bf16 {acc(jf)}, {vr(28+2*jf,2)}, v[48:49], {acc(jf)}")
        k.stamp(5)
    mainloop(False)
    epi_qk(k, ACC, BF)
    k.label(f"{nm}_qv"); k.lg = []
    mainloop(True)
    epi_v(k, ACC, BF, RS)
    k.label(f"{nm}_fin5")
    k.stamp(6); k.dump(13)
    e("s_endpgm")
    k.label(f"{nm}_ld"); k.vm = []; k.lg = []
    e(f"s_setprio {ENV('LPRIO', '2')}")
    e("v_lshrrev_b32 v16, 4, v1"); e("v_and_b32 v17, 3, v2")
    e("v_lshl_add_u32 v18, v17, 2, v16"); e("v_mul_u32_u24 v20, 3840, v18")
    e("v_xor_b32 v18, v13, v16"); e("v_lshl_add_u32 v20, v18, 6, v20"); e("v_lshl_add_u32 v20, v6, 4, v20")
    e("v_lshrrev_b32 v18, 3, v1"); e("v_lshl_add_u32 v19, v17, 5, v18"); e("v_and_b32 v23, 7, v1")
    for i in range(4):
        e(f"v_add_u32 v42, {8*i}, v19"); e("v_bfe_u32 v43, v42, 1, 3"); e("v_xor_b32 v43, v43, v23")
        e("v_mul_u32_u24 v42, 1280, v42"); e(f"v_lshl_add_u32 v{48+i}, v43, 4, v42")
        if i: e(f"v_subrev_u32 v{48+i}, {1024*i}, v{48+i}")
    e("s_lshl_b32 s25, s17, 8"); e("s_mul_i32 s24, s16, 163840"); e("s_lshl_b32 s26, s39, 12")
    def ld1(st, n):
        if n < 4:
            e(f"s_add_u32 m0, s45, {slot(st)+16384+4096*n}"); e(f"s_add_u32 s32, s25, {(64*st+16*n)*3840}")
            k.vmop("buffer_load_dwordx4 v20, s[28:31], s32 offen lds", f"d{st}")
        else:
            e(f"s_add_u32 m0, s26, {slot(st)}"); e(f"s_add_u32 s33, s24, {128*st}")
            k.vmop(f"buffer_load_dwordx4 v{44+n}, s[8:11], s33 offen offset:{1024*(n-4)} lds", f"d{st}")
    ORD = [0, 4, 1, 5, 2, 6, 3, 7]
    def ld(st):
        for n in ORD: ld1(st, n)
    ld(0)
    e("v_xor_b32 v15, v17, v13"); e("v_lshl_add_u32 v40, v15, 6, v14"); e("v_add_u32 v41, 65536, v40")
    for r in range(4): e(f"v_mov_b32 v{60+r}, 0x3f803f80")
    k.srd(52, 4, 256)
    e("s_mul_i32 s27, s17, 163840"); e("s_add_u32 s27, s27, s45"); e(f"s_add_u32 s27, s27, {WA_I}")
    ld(1)
    done = [0]
    def steps_of(kb):
        r = []
        while done[0] < 20 and need(done[0]) <= kb: r.append(done[0]); done[0] += 1
        return r
    def wa_store(q):
        e("s_lshl_b32 s32, s16, 13"); e("s_add_u32 s32, s32, s27")
        if q: e("s_add_u32 s32, s32, 131072")
        e("s_add_u32 s33, s32, 4096")
        for u in range(2): k.vmop(f"buffer_store_dwordx4 {vr(112+8*q+4*u,4)}, v3, s[12:15], s{32+u} offen {SC}")
    for kb in range(10):
        if kb == 5: k.stamp(5)
        k.waitvm(f"d{kb}")
        if kb == 5: k.stamp(6)
        e("s_barrier")
        if kb in (4, 5): k.stamp(2 if kb == 4 else 7)
        sl = slot(kb); todo = list(ORD) if kb + DEP < 10 else []
        nxt = lambda: ld1(kb + DEP, todo.pop(0)) if todo else None
        sts = steps_of(kb)
        for n_, ks in enumerate(sts):
            for u in range(2):
                for t in range(2):
                    e(f"ds_read_b64_tr_b16 {vr(136+8*n_+4*u+2*t,2)}, v{40+(sl>>16)} offset:{(sl + (32*(ks%2) + 16*u + 4*t)*256) & 0xffff}")
        nxt(); nxt()
        if kb == 4: k.stamp(3)
        e("s_waitcnt lgkmcnt(0)")
        mf = [(n_, ks, u) for n_, ks in enumerate(sts) for u in range(2)]
        for n_, ks, u in mf:
            e(f"v_mfma_f32_32x32x16_bf16 v[64:79], v[60:63], {vr(136+8*n_+4*u,4)}, {'v[64:79]' if ks or u else 0}")
            nxt()
        nxt(); nxt()
        if kb == 4: k.stamp(4)
        for n_, ks in enumerate(sts):
            e(f"s_cmp_eq_u32 s16, {ks % 16}"); e(f"s_cbranch_scc0 {nm}_w{ks}")
            for r in range(8): e(f"v_mov_b32 v{112+8*(ks//16)+r}, v{136+8*n_+r}")
            k.label(f"{nm}_w{ks}")
        assert not todo
        if kb == 8:
            e("v_mov_b32 v24, 0"); e("s_lshl_b32 s32, s16, 2"); e("s_mov_b32 s33, 0")
            k.label(f"{nm}_pl")
            e(f"buffer_load_dword v25, v24, s[52:55], s32 offen {SC}"); e("s_add_u32 s33, s33, 1"); e("s_waitcnt vmcnt(0)"); k.vm = []
            e("v_readfirstlane_b32 s34, v25"); e("s_cmp_ge_u32 s33, 0x20000"); e(f"s_cbranch_scc1 {nm}_px")
            e("s_cmp_eq_u32 s34, 0"); e(f"s_cbranch_scc1 {nm}_pl")
            k.label(f"{nm}_px")
            e("v_lshlrev_b32 v24, 3, v10"); e("s_lshl_b32 s32, s16, 10"); e("s_lshl_b32 s33, s39, 8"); e("s_add_u32 s32, s32, s33"); e(f"s_add_u32 s32, s32, {ST[0]}")
            k.vmop(f"buffer_load_dwordx2 v[44:45], v24, s[12:15], s32 offen {SC}", "rs")
            wa_store(0)
    k.waitvm("rs")
    stats_finish(k, 44, 45, 28, 29, 30)
    split3(k, 28, 32, 36, 'm'); split3(k, 64, 34, 36, 'u')
    e("v_lshlrev_b32 v24, 2, v10"); e("s_lshl_b32 s32, s39, 8"); e(f"s_add_u32 s32, s32, {UT}"); e("v_add_u32 v24, s32, v24")
    e("ds_write_b32 v24, v34"); e("ds_write_b32 v24, v35 offset:128"); e("ds_write_b32 v24, v32 offset:1024"); e("ds_write_b32 v24, v33 offset:1152"); e("ds_write_b32 v24, v29 offset:2048")
    e("s_waitcnt lgkmcnt(0)"); e("s_barrier")
    e("v_mov_b32 v44, v64")
    e("s_cmp_ge_u32 s16, 4"); e(f"s_cbranch_scc1 {nm}_le"); wa_store(1)
    e("s_cmp_eq_u32 s16, 0"); e(f"s_cbranch_scc0 {nm}_le")
    e("v_mov_b32 v45, 0"); e("v_mov_b32 v46, 0"); e("v_mov_b32 v47, 0"); e("v_lshlrev_b32 v24, 4, v10")
    e("s_lshl_b32 s32, s17, 11"); e("s_lshl_b32 s33, s39, 9"); e("s_add_u32 s32, s32, s33"); e(f"s_add_u32 s32, s32, {U_A}")
    e("s_mov_b32 exec_hi, 0"); e(f"buffer_store_dwordx4 v[44:47], v24, s[12:15], s32 offen {SC}")
    k.label(f"{nm}_le"); k.dump(8)
    e("s_endpgm")
    k.label(f"{nm}_ub"); k.vm = []; k.lg = []
    e("v_lshrrev_b32 v4, 3, v1"); e("v_lshl_add_u32 v4, v2, 4, v4"); e("v_mul_u32_u24 v5, 1280, v4"); e("v_and_b32 v6, 7, v1"); e("v_lshl_add_u32 v5, v6, 4, v5")
    e("s_mul_i32 s24, s16, 163840"); e("s_add_u32 s25, s24, 10240")
    for b_ in range(2):
        for i in range(10): k.vmop(f"buffer_load_dwordx4 {vr(24+40*b_+4*i,4)}, v5, s[8:11], s{24+b_} offen offset:{128*i}", f"x{b_}{i}")
    for j in range(8): e(f"v_mov_b32 v{8+j}, 0")
    e("v_mov_b32 v7, 0x3f803f80")
    e("v_lshlrev_b32 v16, 4, v0"); e("s_lshl_b32 s26, s16, 13"); e(f"s_add_u32 s26, s26, {CNT}")
    k.vmop(f"buffer_store_dwordx4 v[12:15], v16, s[12:15], s26 offen {SC}")
    for b_ in range(2):
        for i in range(10):
            k.waitvm(f"x{b_}{i}")
            for q in range(4):
                r = 24+40*b_+4*i+q
                e(f"v_dot2_f32_bf16 v{8+2*b_}, v{r}, v7, v{8+2*b_}"); e(f"v_dot2_f32_bf16 v{9+2*b_}, v{r}, v{r}, v{9+2*b_}")
    for dpp in ("quad_perm:[1,0,3,2]", "quad_perm:[2,3,0,1]", "row_half_mirror"):
        for q in range(4): e(f"v_add_f32_dpp v{8+q}, v{8+q}, v{8+q} {dpp} row_mask:0xf bank_mask:0xf")
    e("v_lshlrev_b32 v4, 3, v4"); e("s_lshl_b32 s26, s16, 10"); e(f"s_add_u32 s26, s26, {ST[0]}")
    e("v_cmp_eq_u32 vcc, 0, v6"); k.srd(52, 4, 256); e("s_mov_b64 exec, vcc")
    e(f"buffer_store_dwordx2 v[8:9], v4, s[12:15], s26 offen {SC}"); e(f"buffer_store_dwordx2 v[10:11], v4, s[12:15], s26 offen offset:64 {SC}")
    e("s_waitcnt vmcnt(0)"); e("s_barrier")
    e("s_mov_b64 exec, -1")
    e("s_cmp_ge_u32 s18, 4"); e(f"s_cbranch_scc1 {nm}_end")
    codepf("u")
    e("s_cmp_eq_u32 s18, 0"); e(f"s_cbranch_scc0 {nm}_end")
    e("v_mov_b32 v4, 0"); e("v_mov_b32 v5, 1"); e("s_lshl_b32 s26, s16, 2"); e("s_mov_b64 exec, 1")
    e(f"buffer_store_dword v5, v4, s[52:55], s26 offen {SC}")
    k.label(f"{nm}_end"); e("s_endpgm")
    return k.text(244, 244)

def k_chain(name, L):
    final = L == 1
    k = KB(name); e = k.e
    common(k)
    ph_attn(k, L)
    k.stamp(5)
    xa, xb, xc = XT[2*L], XT[2*L+1], XT[2]
    def a1():
        e("s_lshl_b32 s48, s17, 3"); e("s_and_b32 s49, s16, 1"); e("s_add_u32 s48, s48, s49"); e("s_lshl_b32 s48, s48, 8"); e(f"s_add_u32 s48, s48, {C1(L)}")
        e(f"v_lshlrev_b32 v{PV_+1}, 9, v1"); e("s_mov_b64 s[56:57], 15")
    e("s_cmp_ge_u32 s18, 4"); e(f"s_cbranch_scc1 {name}_ld")
    signal(k, "s1", 0, 8, a1)
    def c1():
        e("s_lshl_b32 s48, s16, 9"); e(f"s_add_u32 s48, s48, {C1(L)}")
        e(f"v_lshlrev_b32 v{PV_+1}, 8, v1"); e(f"v_mov_b32 v{PV_+2}, 16"); e("s_mov_b64 s[56:57], 3")
    proj_c(k, "p2", OT, xa, xb, ST[2*L+1], False, c1, 0, 6)
    def a2():
        e("s_lshr_b32 s48, s16, 1"); e("s_lshl_b32 s48, s48, 9"); e(f"s_add_u32 s48, s48, {C2(L)}")
        e(f"v_mul_u32_u24 v{PV_+1}, 768, v1"); e("s_bitcmp1_b32 s16, 0"); e("s_cselect_b64 s[56:57], 3, 1")
    signal(k, "s2", 1, 4, a2)
    qkvb_c(k, L, xb, ST[2*L+1], 9)
    def a3(): one(k, 0); e("s_lshl_b32 s48, s16, 8"); e(f"s_add_u32 s48, s48, {C3(L)}")
    signal(k, "s3", 0, 4, a3)
    def c3(): one(k, 16); e("s_lshr_b32 s48, s16, 1"); e("s_lshl_b32 s48, s48, 8"); e(f"s_add_u32 s48, s48, {C3(L)}")
    if final:
        proj_c(k, "p4", OBT, xb, None, None, True, c3, 0, 12)
    else:
        S_ = k.stamp
        proj_c(k, "p4", OBT, xb, xc, ST[2], False, c3, 0, 12)
        def a4(): one(k, 0); e("s_lshr_b32 s48, s16, 1"); e("s_lshl_b32 s48, s48, 8"); e(f"s_add_u32 s48, s48, {C4(L)}")
        signal(k, "s4", 1, 4, a4)
        ids_mt(k)
        e("s_cmp_ge_u32 s17, 15"); e(f"s_cbranch_scc1 {name}_dmp")
        if os.environ.get("FOC") == "p5": st5 = 2
        else: k.stamp = lambda i: None; st5 = 0
        qkva_c(k, L, xc, ST[2], 1, C4(L), [7], st5)
        k.stamp = S_
    k.label(f"{name}_dmp")
    k.dump(15)
    e("s_endpgm")
    k.label(f"{name}_ld"); k.vm = []; k.lg = []
    e(f"s_setprio {ENV('LPRIO', '2')}")
    w = proj_l(k, WOA_I, WB_I, OT, a1, EARLY)
    qkvb_l(k, L, xb, ST[2*L+1], w)
    w = proj_l(k, WOB_I, None if final else WA_I, OBT)
    if not final:
        ids_mt(k)
        e("s_cmp_ge_u32 s17, 15"); e(f"s_cbranch_scc1 {name}_end")
        atouch_pre(k, xc)
        e("s_barrier")
        if ENV('ATOUCH', '1'): e("buffer_load_dword v20, v21, s[12:15], s51 offen")
        w.one(39); e("s_waitcnt vmcnt(0)"); e("s_barrier")
    k.label(f"{name}_end"); e("s_endpgm")
    return k.text(244, 244)

def build():
    L = [("front_kernel", 256, 512, 163840), ("chaina_kernel", 256, 512, 163840), ("chainb_kernel", 256, 512, 163840)]
    hdr = open("cdna_kernels/" + NAME + ".s.ref").read().split("; Override launch")[0]
    out = hdr
    for n, g, b, lds in L: out += f"; @launch kernel={n} grid=({g},1,1) block=({b},1,1) lds={lds}\n"
    out += '.amdgcn_target "amdgcn-amd-amdhsa--gfx950"\n'
    out += k_front() + k_chain("chaina_kernel", 0) + k_chain("chainb_kernel", 1)
    out += ".text\ncode_end:\n"
    return out

if __name__ == "__main__":
    dst = sys.argv[1] if len(sys.argv) > 1 else "cdna_kernels/" + NAME + ".s"
    open(dst, "w").write(build())
    print("wrote", dst)
```

```python
import sys, math
from lint import lint, fix

NAME = "interleave_layers__softmax_full_mha__sliding_local_dilated__prompt"
S, D, H, DH = 2048, 640, 32, 20
XS = S*D*2
IMG = H*64*2560
QI = H*64*1280
TOUCH0 = 0
OT = 0; OBT = XS
XT = [None, 2*XS, 3*XS, 2*XS]
ST = [None, 4*XS, 4*XS + S*64, 4*XS]
QIMG = [None, 4*XS + 2*S*64]; KVIMG = [None, QIMG[1] + QI]
TOUCH1 = QIMG[1]
QIMG[0] = KVIMG[1] + IMG; KVIMG[0] = QIMG[0] + QI
XT[0] = KVIMG[0] + IMG; ST[0] = XT[0] + XS
U_A  = ST[0] + S*64
U_B  = U_A + 32768
CNT  = U_B + 163840
WA_I = CNT + 131072
WOA_I = WA_I + 15*163840
WB_I = WOA_I + 819200
WOB_I = WB_I + 16*163840
STAMPS = WOB_I + 819200
WS_END = STAMPS + 16*262144
def C1(L): return CNT + L*65536
def C2(L): return C1(L) + 64*256
def C3(L): return C2(L) + 34*256
def C4(L): return C3(L) + 16*256
import os
STAMP = int(os.environ.get("STAMP", "0"))
ATTN_WAVES = 8
AV = os.environ.get("AV", "")
CSCALE = (DH ** -0.5) * math.log2(math.e)
import struct
def fbits(x): return "0x%08x" % struct.unpack("<I", struct.pack("<f", x))[0]

FM = [(0,16),(32,48),(80,96),(112,128),(64,144)]
def FX(ks, t):
    return 160*(ks//5) + FM[ks%5][t]

class KB:
    def __init__(s, name):
        s.name = name; s.L = []; s.vm = []; s.lg = []; s.cap = None
    def e(s, line):
        if s.cap is not None: s.cap.append(('e', line, None))
        else: s.L.append("    " + line)
    def capture(s, fn):
        s.cap = []; fn(); c = s.cap; s.cap = None
        return [x for x in c if not (x[0] == 'e' and x[1].startswith('s_nop'))]
    def fill(s, lst, n=1):
        for _ in range(n):
            if not lst: return
            kind, a, b = lst.pop(0)
            if kind == 'e':
                s.e(a)
                if a.startswith('s_cmp'):
                    while lst and lst[0][0] == 'e' and lst[0][1].startswith('s_cselect'): s.e(lst.pop(0)[1])
            elif kind == 'ds': s.dsop(a, b)
            elif kind == 'wvm': s.waitvm(a)
            elif kind == 'wlg': s.waitlg(a)
    def c(s, txt): s.L.append("    ; " + txt)
    def label(s, l): s.L.append(l + ":")
    def vmop(s, line, tag=None): s.e(line); s.vm.append(tag); assert len(s.vm) <= 63, (s.name, len(s.vm))
    def dsop(s, line, tag=None):
        if s.cap is not None: s.cap.append(('ds', line, tag)); return
        s.e(line); s.lg.append(tag)
    def _n(s, lst, tag):
        idx = max(i for i, t in enumerate(lst) if t == tag)
        return idx
    def waitvm(s, tag):
        if s.cap is not None: s.cap.append(('wvm', tag, None)); return
        if tag not in s.vm: return
        i = s._n(s.vm, tag); n = len(s.vm) - 1 - i
        s.e(f"s_waitcnt vmcnt({n})"); s.vm = s.vm[i+1:]
    def waitlg(s, tag):
        if s.cap is not None: s.cap.append(('wlg', tag, None)); return
        if tag not in s.lg: return
        i = s._n(s.lg, tag); n = len(s.lg) - 1 - i
        if n > 15: n = 15; i = len(s.lg) - 1 - n
        s.e(f"s_waitcnt lgkmcnt({n})"); s.lg = s.lg[i+1:]
    def waitall(s):
        s.e("s_waitcnt vmcnt(0) lgkmcnt(0)"); s.vm = []; s.lg = []
    def srd(s, r, base, nbytes):
        s.e(f"s_mov_b32 s{r}, s{base}")
        s.e(f"s_and_b32 s{r+1}, s{base+1}, 0xffff")
        s.e(f"s_mov_b32 s{r+2}, {nbytes}")
        s.e(f"s_mov_b32 s{r+3}, 0x20000")
    def stamp(s, i):
        if not STAMP: return
        op = "s_memrealtime" if os.environ.get("RT") else "s_memtime"
        s.e(f"{op} s[{64+2*i}:{65+2*i}]" if i < 10 else f"{op} s[{72+2*i}:{73+2*i}]")
    def rstamp(s, i):
        if not STAMP: return
        s.e(f"s_memrealtime s[{64+2*i}:{65+2*i}]")
    def dump(s, n=8, slot=None, wave="s18"):
        if not STAMP: return
        e = s.e
        if os.environ.get("DBG"):
            idx, base, slots = {"fron": (0, 0, [1, 3, 4]), "chai": (1, 4, [1, 3, 5, 8, 11]) if s.name[5] == "a" else (2, 10, [1, 3, 5, 8, 11])}[s.name[:4]]
            s.dbgn = getattr(s, "dbgn", 0) + 1
            lab = f"{s.name}_dbg{s.dbgn}"
            e("s_cmp_eq_u32 s2, 0"); e(f"s_cbranch_scc0 {lab}"); e(f"s_cmp_eq_u32 {wave}, 0"); e(f"s_cbranch_scc0 {lab}")
            e("s_load_dwordx2 s[84:85], s[0:1], 56"); e("s_waitcnt vmcnt(0)"); e("s_memrealtime s[86:87]"); e("s_waitcnt lgkmcnt(0)")
            e("s_mov_b64 exec, 1"); e("v_mov_b32 v0, 0"); e(f"s_mov_b32 s83, {STAMPS}")
            for q, i in enumerate(slots):
                e(f"v_mov_b32 v1, s{64+2*i if i < 10 else 72+2*i}"); e(f"buffer_store_dword v1, v0, s[12:15], s83 offen offset:{4*(base+q)} sc1")
            e("v_mov_b32 v1, s86"); e(f"buffer_store_dword v1, v0, s[12:15], s83 offen offset:{4*(base+len(slots))} sc1")
            if idx == 2:
                e("s_waitcnt vmcnt(0)"); e("s_mov_b64 exec, 0xffff"); e("v_mbcnt_lo_u32_b32 v0, -1, 0"); e("v_lshlrev_b32 v0, 2, v0")
                e("buffer_load_dword v1, v0, s[12:15], s83 offen sc1"); s.srd(88, 84, 256); e("s_waitcnt vmcnt(0)")
                e("buffer_store_dword v1, v0, s[88:91], 0 offen")
                e(f"s_sub_u32 s84, s84, {512*idx}"); e("s_subb_u32 s85, s85, 0"); s.srd(88, 84, 256)
                e("buffer_store_dword v1, v0, s[88:91], 0 offen")
            s.label(lab)
            return
        e("s_load_dwordx2 s[84:85], s[0:1], 56"); e("s_waitcnt vmcnt(0)"); e("s_memrealtime s[86:87]"); e("s_waitcnt lgkmcnt(0)")
        e("s_mov_b64 exec, 1")
        e("s_bfe_u32 s84, s84, 0x50009"); e("s_lshl_b32 s84, s84, 18")
        e("s_lshl_b32 s60, s2, 3"); e(f"s_add_u32 s60, s60, {wave}"); e("s_lshl_b32 s60, s60, 6"); e(f"s_add_u32 s60, s60, {STAMPS}"); e("s_add_u32 s60, s60, s84")
        e("v_mov_b32 v0, 0")
        for i in range(n):
            e(f"v_mov_b32 v1, s{64+2*i if i < 10 else 72+2*i}")
            e(f"buffer_store_dword v1, v0, s[12:15], s60 offen offset:{4*i}")
        e("v_mov_b32 v1, s86"); e("buffer_store_dword v1, v0, s[12:15], s60 offen offset:60")
    def rtdump(s):
        if not STAMP: return
        s.e("v_lshrrev_b32 v1, 6, v0"); s.e("s_nop 0"); s.e("v_readfirstlane_b32 s61, v1"); s.dump(2, wave="s61")
    def text(s, vgpr, accum, sgpr=102):
        s.L, added = fix(s.L)
        if os.environ.get("V"): print(s.name, "auto nops:", added, "lines:", len(s.L))
        out = [".text", f".globl {s.name}", ".p2align 8", f".type {s.name},@function", f"{s.name}:"]
        out += s.L
        out += ['.section .rodata,"a"', ".p2align 6", f".amdhsa_kernel {s.name}",
                f"  .amdhsa_next_free_vgpr {vgpr}", f"  .amdhsa_next_free_sgpr {sgpr}", f"  .amdhsa_accum_offset {accum}",
                "  .amdhsa_group_segment_fixed_size 0", "  .amdhsa_kernarg_size 72", "  .amdhsa_user_sgpr_count 2",
                "  .amdhsa_user_sgpr_kernarg_segment_ptr 1", "  .amdhsa_system_sgpr_workgroup_id_x 1", ".end_amdhsa_kernel"]
        nb = lint(s.L, s.name)
        assert nb == 0, f"{nb} hazards in {s.name}"
        return "\n".join(out) + "\n"
    def allred32(s, op, v, t):
        s.e(f"v_mov_b32 v{t}, v{v}"); s.e("s_nop 1")
        s.e(f"v_permlane32_swap_b32 v{v}, v{t}"); s.e("s_nop 1")
        s.e(f"{op} v{v}, v{v}, v{t}")
    def allred16(s, op, v, t):
        s.e(f"v_mov_b32 v{t}, v{v}"); s.e("s_nop 1")
        s.e(f"v_permlane16_swap_b32 v{v}, v{t}"); s.e("s_nop 1")
        s.e(f"{op} v{v}, v{v}, v{t}")

def vr(a, n): return f"v[{a}:{a+n-1}]" if n > 1 else f"v{a}"
def ar(a, n): return f"a[{a}:{a+n-1}]" if n > 1 else f"a{a}"

def k_prep():
    PSC = os.environ.get("PSC", "sc1")
    k = KB("prep_kernel"); e = k.e
    NX, NA, NB, NO = 128, 60, 64, 64
    e(f"s_cmp_ge_u32 s2, {NX+NA+NB+NO}"); e("s_cbranch_scc1 prep_end0"); k.rstamp(1)
    e("s_load_dwordx2 s[4:5], s[0:1], 0"); e("s_load_dwordx2 s[6:7], s[0:1], 64")
    e("s_load_dwordx4 s[20:23], s[0:1], 8"); e("s_load_dwordx4 s[24:27], s[0:1], 32")
    e("v_and_b32 v1, 63, v0"); e("v_lshrrev_b32 v2, 6, v0")
    e("s_waitcnt lgkmcnt(0)")
    k.srd(12, 6, WS_END)
    e(f"s_cmp_ge_u32 s2, {NX+NA+NB}"); e("s_cbranch_scc1 prep_o")
    e(f"s_cmp_ge_u32 s2, {NX+NA}"); e("s_cbranch_scc1 prep_b")
    e(f"s_cmp_ge_u32 s2, {NX}"); e("s_cbranch_scc1 prep_u")
    k.srd(8, 4, S*D*2)
    e("s_and_b32 s16, s2, 7"); e("s_lshl_b32 s16, s16, 4"); e("s_lshr_b32 s17, s2, 3"); e("s_add_u32 s3, s16, s17")
    e("v_and_b32 v3, 15, v1"); e("v_lshrrev_b32 v4, 4, v1")
    e("s_lshl_b32 s16, s3, 4"); e("v_add_u32 v5, s16, v3")
    e("v_mul_u32_u24 v6, 1280, v5")
    e("v_mul_u32_u24 v7, 320, v2"); e("v_add_u32 v6, v6, v7")
    e("v_lshl_add_u32 v6, v4, 3, v6")
    for i in range(5):
        for t in range(2):
            k.vmop(f"buffer_load_dwordx2 {vr(12+4*i+2*t,2)}, v6, s[8:11], 0 offen offset:{2*FM[i][t]} nt", "x")
    e("s_mul_i32 s17, s3, 20480"); e(f"s_add_u32 s17, s17, {XT[0]}"); e("s_add_u32 s18, s17, 4096")
    e("v_mul_u32_u24 v7, 5120, v2"); e("v_lshl_add_u32 v7, v1, 4, v7")
    e("v_mov_b32 v8, 0"); e("v_mov_b32 v9, 0"); e("v_mov_b32 v10, 0"); e("v_mov_b32 v11, 0")
    e("v_mov_b32 v32, 0x3f803f80")
    k.waitvm("x")
    for i in range(5):
        if i < 4: k.vmop(f"buffer_store_dwordx4 {vr(12+4*i,4)}, v7, s[12:15], s17 offen offset:{1024*i} {PSC}")
        else: k.vmop(f"buffer_store_dwordx4 {vr(12+4*i,4)}, v7, s[12:15], s18 offen {PSC}")
    for r in range(12, 32):
        e(f"v_dot2_f32_bf16 v8, v{r}, v32, v8")
    for r in range(12, 32):
        e(f"v_dot2_f32_bf16 v9, v{r}, v{r}, v9")
    e("s_nop 2")
    k.allred16("v_add_f32", 8, 33); k.allred32("v_add_f32", 8, 33)
    k.allred16("v_add_f32", 9, 33); k.allred32("v_add_f32", 9, 33)
    e("v_cmp_gt_u32 vcc, 16, v1"); e("v_lshlrev_b32 v5, 3, v1"); e("v_lshl_add_u32 v5, v2, 8, v5")
    e("v_cndmask_b32 v8, 0, v8, vcc"); e("v_cndmask_b32 v9, 0, v9, vcc")
    e("s_lshl_b32 s19, s3, 10"); e(f"s_add_u32 s19, s19, {ST[0]}")
    e("s_lshl_b32 s18, s3, 10"); e(f"s_add_u32 s18, s18, {CNT}")
    e("s_mov_b32 exec_hi, 0")
    k.vmop("buffer_store_dwordx2 v[8:9], v5, s[12:15], s19 offen")
    e("s_mov_b64 exec, 0x1111111111111111" if False else "s_mov_b64 exec, -1")
    e("v_cmp_gt_u32 vcc, 128, v0"); e("s_and_saveexec_b64 s[28:29], vcc"); e("s_cbranch_execz prep_end")
    e("v_lshlrev_b32 v6, 3, v0")
    k.vmop("buffer_store_dwordx2 v[10:11], v6, s[12:15], s18 offen")
    k.rtdump(); e("s_endpgm")
    def colsum(regs, acc):
        for r in regs: e(f"v_dot2_f32_bf16 v{acc}, v{r}, v60, v{acc}")
    k.label("prep_u"); k.vm = []
    e(f"s_sub_u32 s16, s2, {NX}"); e("s_and_b32 s17, s16, 3"); e("s_lshr_b32 s16, s16, 2")
    k.srd(8, 20, D*3*D*2)
    e("v_readfirstlane_b32 s18, v2")
    e("v_and_b32 v5, 15, v1"); e("v_lshrrev_b32 v6, 4, v1"); e("v_and_b32 v10, 3, v1")
    e("v_lshl_add_u32 v9, v2, 2, v6"); e("v_mul_u32_u24 v9, 3840, v9")
    e("v_lshrrev_b32 v7, 2, v5"); e("v_xor_b32 v8, v7, v6"); e("v_lshl_add_u32 v9, v8, 6, v9"); e("v_lshl_add_u32 v9, v10, 4, v9")
    e(f"s_mul_i32 s19, s17, {160*3840}"); e("s_lshl_b32 s28, s16, 8"); e("s_add_u32 s19, s19, s28"); e("s_lshl_b32 s29, s18, 10")
    for i in range(10):
        e(f"s_add_u32 m0, s29, {4096*i}")
        e(f"s_add_u32 s28, s19, {16*3840*i}")
        e("buffer_load_dwordx4 v9, s[8:11], s28 offen nt lds")
    e("v_lshrrev_b32 v4, 5, v1"); e("v_lshl_add_u32 v11, v4, 2, v7"); e("v_lshlrev_b32 v11, 8, v11")
    e("v_bfe_u32 v8, v1, 4, 1"); e("v_lshl_add_u32 v11, v8, 5, v11"); e("v_lshl_add_u32 v11, v10, 3, v11")
    e("v_xor_b32 v8, v2, v7"); e("v_lshl_add_u32 v11, v8, 6, v11")
    e("v_lshlrev_b32 v3, 4, v1"); e("v_mov_b32 v60, 0x3f803f80"); e("v_mov_b32 v8, 0")
    e("s_mul_i32 s19, s16, 163840"); e("s_mul_i32 s28, s17, 40960"); e("s_add_u32 s19, s19, s28"); e("s_add_u32 s19, s19, s29"); e(f"s_add_u32 s19, s19, {WA_I}")
    e("s_waitcnt vmcnt(0)"); e("s_barrier")
    for n in range(10):
        for t in range(2): e(f"ds_read_b64_tr_b16 {vr(16+4*n+2*t,2)}, v11 offset:{(FM[n//2][t]+8*(n%2))*256}")
        if n == 5: e("s_waitcnt lgkmcnt(0)")
    e("s_waitcnt lgkmcnt(0)")
    for n in range(10):
        e(f"buffer_store_dwordx4 {vr(16+4*n,4)}, v3, s[12:15], s19 offen {PSC}")
        if n < 9: e("s_add_u32 s19, s19, 4096")
    colsum(range(16, 56), 8); e("s_nop 2")
    k.allred32("v_add_f32", 8, 9)
    e("v_and_b32 v5, 31, v1"); e("v_lshlrev_b32 v5, 4, v5")
    e("s_lshl_b32 s19, s16, 11"); e("s_lshl_b32 s28, s18, 9"); e("s_add_u32 s19, s19, s28"); e("s_lshl_b32 s28, s17, 2"); e("s_add_u32 s19, s19, s28"); e(f"s_add_u32 s19, s19, {U_A}")
    e("s_mov_b32 exec_hi, 0")
    e("buffer_store_dword v8, v5, s[12:15], s19 offen")
    k.rtdump(); e("s_endpgm")
    k.label("prep_b")
    e(f"s_sub_u32 s16, s2, {NX+NA}"); e("s_and_b32 s17, s16, 3"); e("s_lshr_b32 s16, s16, 2")
    k.srd(8, 24, D*3*D*2)
    e("v_readfirstlane_b32 s18, v2")
    e("v_and_b32 v5, 15, v1"); e("v_lshrrev_b32 v6, 4, v1")
    e("v_and_b32 v7, 1, v2"); e("v_lshl_add_u32 v7, v7, 2, v6"); e("v_lshlrev_b32 v7, 1, v7"); e("v_xor_b32 v7, v7, v5"); e("v_min_u32 v7, 14, v7")
    e("v_mul_u32_u24 v8, 52, v7"); e("v_lshrrev_b32 v8, 8, v8"); e("v_mul_u32_u24 v9, 1200, v8"); e("v_lshl_add_u32 v9, v7, 4, v9")
    e("v_lshl_add_u32 v10, v2, 2, v6"); e("v_mul_u32_u24 v10, 3840, v10"); e("v_add_u32 v9, v9, v10")
    e(f"s_mul_i32 s19, s17, {160*3840}"); e("s_mul_i32 s28, s16, 80"); e("s_add_u32 s19, s19, s28"); e("s_lshl_b32 s29, s18, 10")
    for i in range(10):
        e(f"s_add_u32 m0, s29, {4096*i}")
        e(f"s_add_u32 s28, s19, {16*3840*i}")
        e("buffer_load_dwordx4 v9, s[8:11], s28 offen nt lds")
    e("v_lshrrev_b32 v12, 2, v5"); e("v_and_b32 v13, 3, v5")
    e("s_mul_i32 s28, s18, 80"); e("v_lshlrev_b32 v10, 3, v13"); e("v_add_u32 v10, s28, v10"); e("v_add_u32 v11, 40, v10")
    e("s_cmp_lt_u32 s18, 3"); e("s_cbranch_scc1 prep_b1")
    e("v_mul_u32_u24 v10, 40, v13"); e("v_add_u32 v10, 32, v10")
    e("v_and_b32 v11, 1, v13"); e("v_mul_u32_u24 v11, 40, v11"); e("v_add_u32 v11, 192, v11")
    k.label("prep_b1")
    e("v_lshl_add_u32 v14, v6, 2, v12"); e("v_and_b32 v15, 7, v14"); e("v_lshlrev_b32 v15, 5, v15"); e("v_lshlrev_b32 v14, 8, v14")
    e("v_xor_b32 v10, v10, v15"); e("v_add_u32 v10, v10, v14"); e("v_xor_b32 v11, v11, v15"); e("v_add_u32 v11, v11, v14")
    e("v_lshlrev_b32 v3, 4, v1"); e("v_mov_b32 v60, 0x3f803f80"); e("v_mov_b32 v8, 0"); e("v_mov_b32 v9, 0")
    e("s_mul_i32 s19, s16, 163840"); e("s_mul_i32 s28, s17, 40960"); e("s_add_u32 s19, s19, s28"); e("s_lshl_b32 s28, s18, 11"); e("s_add_u32 s19, s19, s28"); e(f"s_add_u32 s19, s19, {WB_I}")
    e("s_waitcnt vmcnt(0)"); e("s_barrier")
    for n in range(10):
        for t in range(2): e(f"ds_read_b64_tr_b16 {vr(16+4*n+2*t,2)}, v{10+n%2} offset:{FM[n//2][t]*256}")
        if n == 5: e("s_waitcnt lgkmcnt(0)")
    e("s_waitcnt lgkmcnt(0)")
    for n in range(10):
        e(f"buffer_store_dwordx4 {vr(16+4*n,4)}, v3, s[12:15], s19 offen offset:{1024*(n%2)} {PSC}")
        if n % 2 and n < 9: e("s_add_u32 s19, s19, 8192")
    for f in range(2): colsum([16+8*m+4*f+q for m in range(5) for q in range(4)], 8+f)
    e("s_nop 2")
    for f in range(2): k.allred16("v_add_f32", 8+f, 12); k.allred32("v_add_f32", 8+f, 12)
    e("v_lshlrev_b32 v5, 4, v5")
    e("s_lshl_b32 s19, s16, 11"); e("s_lshl_b32 s28, s18, 9"); e("s_add_u32 s19, s19, s28"); e("s_lshl_b32 s28, s17, 2"); e("s_add_u32 s19, s19, s28"); e(f"s_add_u32 s19, s19, {U_B}")
    e("s_mov_b64 exec, 0xffff")
    e("buffer_store_dword v8, v5, s[12:15], s19 offen"); e("buffer_store_dword v9, v5, s[12:15], s19 offen offset:256")
    k.rtdump(); e("s_endpgm")
    k.label("prep_o")
    e(f"s_sub_u32 s16, s2, {NX+NA+NB}"); e("s_and_b32 s17, s16, 3"); e("s_lshr_b32 s30, s16, 5"); e("s_bfe_u32 s16, s16, 0x30002")
    e("s_cmp_eq_u32 s30, 1")
    e("s_cselect_b32 s28, s26, s22"); e("s_cselect_b32 s29, s27, s23"); e(f"s_cselect_b32 s31, {WOB_I-WOA_I}, 0")
    k.srd(8, 28, D*D*2)
    e("v_readfirstlane_b32 s18, v2")
    def pat(dst, src):
        e(f"v_mul_u32_u24 v10, 6554, v{src}"); e("v_lshrrev_b32 v10, 16, v10"); e("v_mul_u32_u24 v10, 1120, v10"); e(f"v_lshl_add_u32 v{dst}, v{src}, 4, v10")
    for i in range(5):
        e(f"v_add_u32 v9, {64*i}, v1"); pat(4+i, 9)
    pat(11, 0)
    e(f"s_mul_i32 s19, s17, {160*1280}"); e("s_mul_i32 s28, s16, 160"); e("s_add_u32 s19, s19, s28")
    e("s_mul_i32 s28, s18, 40960"); e("s_add_u32 s28, s28, s19"); e("s_mul_i32 s29, s18, 5120")
    for i in range(5):
        e(f"s_add_u32 m0, s29, {1024*i}"); e("s_nop 0")
        e(f"buffer_load_dwordx4 v{4+i}, s[8:11], s28 offen nt lds")
    e("s_lshl_b32 s29, s18, 10"); e("s_add_u32 m0, s29, 20480"); e("s_add_u32 s28, s19, 163840")
    e("buffer_load_dwordx4 v11, s[8:11], s28 offen nt lds")
    e("s_cmp_eq_u32 s18, 0"); e("s_cbranch_scc0 prep_o1")
    e("s_mov_b32 m0, 24576"); e("s_nop 0")
    e("buffer_load_dwordx4 v8, s[8:11], s28 offen nt lds")
    k.label("prep_o1")
    e("v_lshrrev_b32 v9, 4, v1"); e("v_bfe_u32 v10, v1, 2, 2"); e("v_and_b32 v11, 3, v1")
    e("v_lshlrev_b32 v12, 2, v9"); e("s_mov_b32 s28, 3200")
    e("s_cmp_eq_u32 s30, 1"); e("s_cbranch_scc1 prep_o2")
    e("v_lshrrev_b32 v12, 1, v9"); e("v_mul_u32_u24 v12, 20, v12"); e("v_and_b32 v13, 1, v9"); e("v_lshl_add_u32 v12, v13, 2, v12"); e("s_mov_b32 s28, 1280")
    k.label("prep_o2")
    e("v_add_u32 v12, v12, v10"); e("v_mul_u32_u24 v12, 160, v12"); e("v_lshl_add_u32 v12, v11, 3, v12")
    e("s_mul_i32 s29, s18, 6400"); e("v_add_u32 v12, s29, v12"); e("v_add_u32 v13, s28, v12")
    e("v_mul_u32_u24 v14, 20, v9"); e("v_add_u32 v14, v14, v10"); e("v_mul_u32_u24 v14, 160, v14"); e("v_lshl_add_u32 v14, v11, 3, v14")
    e("v_lshlrev_b32 v3, 4, v1")
    e("s_mul_i32 s19, s16, 102400"); e("s_add_u32 s19, s19, s31"); e(f"s_add_u32 s19, s19, {WOA_I}")
    e("s_lshl_b32 s28, s17, 2"); e("s_add_u32 s28, s28, s18"); e("s_mul_i32 s28, s28, 5120"); e("s_add_u32 s28, s28, s19"); e("s_add_u32 s29, s28, 4096")
    e("s_waitcnt vmcnt(0)"); e("s_barrier")
    for nf in range(5):
        for t in range(2): e(f"ds_read_b64_tr_b16 {vr(16+4*nf+2*t,2)}, v{12+t} offset:{32*nf}")
    e("s_waitcnt lgkmcnt(0)")
    for nf in range(5): e(f"buffer_store_dwordx4 {vr(16+4*nf,4)}, v3, s[12:15], s{28 if nf < 4 else 29} offen offset:{1024*(nf%4)} {PSC}")
    e("s_cmp_eq_u32 s18, 0"); e("s_cbranch_scc0 prep_end")
    for nf in range(5):
        for t in range(2): e(f"ds_read_b64_tr_b16 {vr(36+4*nf+2*t,2)}, v14 offset:{(80*t+16)*160+32*nf}")
    e("s_add_u32 s28, s17, 16"); e("s_mul_i32 s28, s28, 5120"); e("s_add_u32 s28, s28, s19"); e("s_add_u32 s29, s28, 4096")
    e("s_waitcnt lgkmcnt(0)")
    for nf in range(5): e(f"buffer_store_dwordx4 {vr(36+4*nf,4)}, v3, s[12:15], s{28 if nf < 4 else 29} offen offset:{1024*(nf%4)} {PSC}")
    k.label("prep_end"); k.rtdump(); k.label("prep_end0"); e("s_endpgm")
    return k.text(64, 64)

def stats_finish(k, s1, s2, mean, rstd, t):
    e = k.e
    e(f"v_mul_f32 v{mean}, {fbits(1.0/D)}, v{s1}")
    e(f"v_mul_f32 v{t}, {fbits(1.0/D)}, v{s2}")
    e(f"v_fma_f32 v{t}, -v{mean}, v{mean}, v{t}")
    e(f"v_max_f32 v{t}, 0, v{t}")
    e(f"v_add_f32 v{t}, {fbits(1e-5)}, v{t}")
    e(f"v_rsq_f32 v{rstd}, v{t}")
    e("s_nop 0")

def split3(k, src, d, t, kind, maskv=None):
    e = k.e
    if kind == 'm':
        e(f"v_xor_b32 v{t+1}, 0x80000000, v{src}"); src = t+1
    e(f"v_and_b32 v{t}, 0xffff0000, v{src}")
    e(f"v_sub_f32 v{t+2}, v{src}, v{t}")
    if kind == 'u':
        e(f"v_cvt_pk_bf16_f32 v{d}, v{t}, v{t+2}")
        e(f"v_lshrrev_b32 v{d+1}, 16, v{t}")
    else:
        e(f"v_cvt_pk_bf16_f32 v{d}, v{t}, v{t}")
        e(f"v_cvt_pk_bf16_f32 v{d+1}, v{t+2}, 0")
    if maskv is not None:
        e(f"v_and_b32 v{d}, v{d}, v{maskv}"); e(f"v_and_b32 v{d+1}, v{d+1}, v{maskv}")

SC = "sc1"
EARLY = int(os.environ.get('EARLY', '6'))
ENV = lambda n, d: int(os.environ.get(n, d))

def common(k, nwg=256):
    e = k.e
    e(f"s_cmp_ge_u32 s2, {nwg}"); e(f"s_cbranch_scc1 {k.name}_end"); k.stamp(0); k.rstamp(1)
    e("s_load_dwordx2 s[6:7], s[0:1], 64"); e("s_load_dwordx2 s[46:47], s[0:1], 48")
    e("s_and_b32 s20, s2, 7"); e("s_lshr_b32 s21, s2, 3")
    e("v_lshrrev_b32 v2, 6, v0"); e("v_and_b32 v1, 63, v0")
    e("v_readfirstlane_b32 s18, v2")
    e("s_and_b32 s39, s18, 3"); e("s_lshl_b32 s45, s39, 10")

def ids_mt(k):
    k.e("s_lshl_b32 s22, s20, 1"); k.e("s_and_b32 s23, s21, 1"); k.e("s_add_u32 s16, s22, s23"); k.e("s_lshr_b32 s17, s21, 1")
def ids_rt(k):
    k.e("s_lshl_b32 s22, s20, 2"); k.e("s_and_b32 s23, s21, 3"); k.e("s_add_u32 s16, s22, s23"); k.e("s_lshr_b32 s17, s21, 2")

LW = 163824
PV_ = 240
def lw_init(k):
    e = k.e
    e(f"v_mov_b32 v{PV_+3}, {LW}")
    for i in range(3): e(f"v_mov_b32 v{PV_+i}, 0")
    e(f"ds_write_b96 v{PV_+3}, v[{PV_}:{PV_+2}]"); e(f"ds_write_b32 v{PV_+3}, v{PV_} offset:12")

def signal(k, tag, word, nw, addr_code, younger=0):
    e = k.e
    addr_code()
    e(f"v_mov_b32 v{PV_+3}, {LW}"); e(f"v_mov_b32 v{PV_}, 1")
    e("s_mov_b64 exec, 1")
    e(f"s_waitcnt vmcnt({younger})"); k.vm = k.vm[len(k.vm)-younger:] if younger else []
    if tag == os.environ.get("FOC"): k.stamp(2)
    e(f"ds_add_rtn_u32 v{PV_+2}, v{PV_+3}, v{PV_} offset:{8*word}")
    e("s_waitcnt lgkmcnt(0)"); k.lg = []
    e(f"v_readfirstlane_b32 s49, v{PV_+2}")
    e("s_mov_b64 exec, s[56:57]")
    e(f"s_cmp_eq_u32 s49, {nw-1}"); e(f"s_cbranch_scc0 {k.name}_{tag}_sg")
    e(f"buffer_atomic_add v{PV_}, v{PV_+1}, s[12:15], s48 offen {SC}")
    if os.environ.get("FOC2") == tag: k.stamp(4)
    k.label(f"{k.name}_{tag}_sg")
    e("s_mov_b64 exec, -1")

def wait_go(k, tag, word, poll_code):
    e = k.e; nm = f"{k.name}_{tag}"
    e(f"v_mov_b32 v{PV_+3}, {LW}"); e("s_mov_b32 s49, 0")
    if poll_code:
        e("s_cmp_eq_u32 s18, 0"); e(f"s_cbranch_scc0 {nm}_sp")
        poll_code()
        e("s_mov_b64 exec, s[56:57]")
        if os.environ.get("FOC") == "g" + tag: k.stamp(2)
        k.label(f"{nm}_pl")
        e(f"v_mov_b32 v{PV_}, 0")
        e(f"buffer_atomic_add v{PV_}, v{PV_+1}, s[12:15], s48 offen sc0 sc1")
        e("s_add_u32 s49, s49, 1")
        e("s_waitcnt vmcnt(0)")
        e(f"v_cmp_ge_u32 vcc, v{PV_}, v{PV_+2}")
        e("s_cmp_ge_u32 s49, 0x20000"); e(f"s_cbranch_scc1 {nm}_px")
        e("s_cmp_eq_u64 vcc, exec"); e(f"s_cbranch_scc0 {nm}_pl")
        k.label(f"{nm}_px")
        if os.environ.get("FOC") == "g" + tag: e("s_add_u32 s70, s64, s49")
        e("s_mov_b64 exec, 1"); e(f"v_mov_b32 v{PV_}, 1")
        e(f"ds_write_b32 v{PV_+3}, v{PV_} offset:{8*word+4}")
        e(f"s_branch {nm}_go")
    k.label(f"{nm}_sp")
    e("s_sleep 1")
    e(f"ds_read_b32 v{PV_}, v{PV_+3} offset:{8*word+4}")
    e("s_add_u32 s49, s49, 1")
    e("s_waitcnt lgkmcnt(0)")
    e(f"v_readfirstlane_b32 s44, v{PV_}")
    e("s_cmp_ge_u32 s49, 0x400000"); e(f"s_cbranch_scc1 {nm}_go")
    e("s_cmp_eq_u32 s44, 0"); e(f"s_cbranch_scc1 {nm}_sp")
    k.label(f"{nm}_go")
    e("s_mov_b64 exec, -1")

class Wdma:
    def __init__(s, k, n, base=50, tag="w"): s.k = k; s.n = n; s.i = 0; s.base = base; s.tag = tag
    def one(s, i):
        s.k.e(f"s_add_u32 m0, s45, {4096*i}"); s.k.e(f"s_add_u32 s32, s{s.base}, {4096*i}")
        s.k.vmop("buffer_load_dwordx4 v3, s[12:15], s32 offen lds", f"{s.tag}{i}")
    def go(s, upto):
        while s.i < min(upto, s.n): s.one(s.i); s.i += 1
    def rng(s, a, b, thr=0):
        for i in range(a, b):
            s.one(i)
            if thr and len(s.k.vm) >= thr: s.k.e(f"s_waitcnt vmcnt({thr-1})"); s.k.vm = s.k.vm[len(s.k.vm)-thr+1:]

def ph_attn(k, L):
    e = k.e; nm = k.name
    KA, KT, VA = 4, 5, 6
    Q = [8, 14]; KF = [24, 32]; VF = [40, 48]; SS = [56, 72]; P = 88; O = [96, 112]; PF = 128
    SCR = 128000; TOP = 128000
    ids_rt(k)
    e("v_and_b32 v3, 31, v1"); e("v_lshrrev_b32 v7, 5, v1")
    e("v_lshlrev_b32 v22, 4, v1"); e("v_lshlrev_b32 v23, 3, v3")
    e("s_mul_i32 s19, s16, 163840")
    e("s_lshr_b32 s41, s18, 2")
    e("s_lshl_b32 s23, s17, 3"); e("s_lshl_b32 s22, s39, 1"); e("s_add_u32 s23, s23, s22")
    e("s_add_u32 s23, s23, s41")
    e("s_lshr_b32 s22, s19, 1"); e(f"s_add_u32 s22, s22, {QIMG[L]}")
    e("s_mul_i32 s24, s23, 1280"); e("s_add_u32 s24, s24, s22"); e("s_xor_b32 s40, s23, 1"); e("s_mul_i32 s40, s40, 1280"); e("s_add_u32 s40, s40, s22")
    e("s_mul_i32 s42, s41, 2560"); e(f"s_add_u32 s42, s42, {TOP}")
    e("s_lshl_b32 s25, s18, 10")
    e(f"s_add_u32 s26, s19, {KVIMG[L]}")
    e("s_waitcnt lgkmcnt(0)")
    k.stamp(2); k.srd(12, 6, WS_END)
    rnd = [0]
    def dma():
        i = rnd[0]; rnd[0] += 1
        if i == 4:
            e("s_cmp_lt_u32 s18, 3"); e("s_cselect_b32 s27, 163840, 0"); e("s_add_u32 s27, s27, s25"); e("s_sub_u32 m0, s27, 3072")
        else: e(f"s_add_u32 m0, s25, {(TOP + 8192*i) if i < 4 else 8192*i - 35840}")
        e("s_add_u32 s27, s26, m0")
        k.vmop(f"buffer_load_dwordx4 v22, s[12:15], s27 offen lds", f"i{i}")
    dma()
    for x in range(2):
        k.vmop(f"buffer_load_dwordx4 {vr(Q[x],4)}, v22, s[12:15], s{(24,40)[x]} offen", "q")
        k.vmop(f"buffer_load_dwordx2 {vr(Q[x]+4,2)}, v23, s[12:15], s{(24,40)[x]} offen offset:1024", "q")
    for _ in range(3): dma()
    e(f"v_add_u32 v{KA}, s42, v22")
    e(f"v_add_u32 v{KT}, s42, v23"); e(f"v_add_u32 v{KT}, 1024, v{KT}")
    e("v_mul_u32_u24 v21, 20, v7"); e("v_add_u32 v21, v21, v3"); e("v_lshlrev_b32 v21, 4, v21")
    e("v_add_u32 v21, 1280, v21"); e(f"v_add_u32 v{VA}, s42, v21")
    e("s_mov_b32 s28, 0x000fffff"); e("s_mov_b32 s29, 0x000fffff")
    e("v_cmp_eq_u32 vcc, 20, v3"); e("v_mov_b32 v20, 0x3f803f80"); e("s_nop 0")
    e("v_cndmask_b32 v20, 0, v20, vcc")
    for r in range(16): e(f"v_mov_b32 v{VF[0]+r}, v20")
    for r in range(32): e(f"v_mov_b32 v{O[0]+r}, 0")
    for r in range(4): e(f"v_mov_b32 v{P+4+r}, 0")
    e("v_subrev_u32 v30, 1, v7")
    e("s_lshl_b32 s43, s21, 3"); e("s_add_u32 s43, s43, s18"); e("s_mul_i32 s43, s43, 14336"); e(f"s_add_u32 s43, s43, {WOA_I}")
    if L == 1: k.srd(60, 46, S*D*2)
    e("s_mul_i32 s32, s23, 40960"); e(f"s_add_u32 s32, s32, {OT}")
    e("s_lshr_b32 s51, s16, 1"); e("s_lshl_b32 s51, s51, 10"); e("s_and_b32 s34, s16, 1"); e("s_lshl_b32 s34, s34, 9")
    e("s_add_u32 s51, s51, s34"); e("s_add_u32 s51, s51, s32")
    e("s_lshr_b32 s52, s16, 3"); e("s_add_u32 s52, s52, 16"); e("s_lshl_b32 s52, s52, 10"); e("s_add_u32 s52, s52, s32")
    e("s_and_b32 s35, s16, 3"); e("s_lshl_b32 s35, s35, 8"); e("s_add_u32 s52, s52, s35")
    e("s_bfe_u32 s35, s16, 0x10002"); e("s_lshl_b32 s35, s35, 3"); e("s_add_u32 s52, s52, s35")
    e("v_lshrrev_b32 v38, 4, v3"); e("v_mul_u32_u24 v38, 20480, v38"); e("v_and_b32 v39, 15, v3")
    e("v_lshl_add_u32 v38, v39, 4, v38"); e("v_lshl_add_u32 v39, v7, 8, v38")
    e("s_lshl_b32 s59, s18, 10"); e("s_mul_i32 s50, s17, 102400"); e("s_add_u32 s50, s50, s59"); e(f"s_add_u32 s50, s50, {WOA_I}")
    e("s_mul_i32 s32, s18, 3072"); e("s_xor_b32 s33, s18, 4"); e("s_mul_i32 s33, s33, 3072")
    e(f"v_add_u32 v132, {SCR}, v22"); e("v_add_u32 v133, s33, v132"); e("v_add_u32 v132, s32, v132")
    k.waitvm("q")
    for x in range(2):
        e(f"v_and_b32 v{Q[x]+4}, v{Q[x]+4}, v30"); e(f"v_and_b32 v{Q[x]+5}, v{Q[x]+5}, v30")
    k.waitvm("i1"); e("s_barrier"); k.stamp(3)
    def rdK(buf, off):
        off *= 2
        e(f"ds_read_b128 {vr(KF[buf],4)}, v{KA} offset:{off}")
        e(f"ds_read_b64 {vr(KF[buf]+4,2)}, v{KT} offset:{off}")
    def rdV(buf, off):
        off *= 2
        e("s_mov_b64 exec, s[28:29]")
        e(f"ds_read_b128 {vr(VF[buf],4)}, v{VA} offset:{off}")
        e(f"ds_read_b128 {vr(VF[buf]+4,4)}, v{VA} offset:{off+640}")
        e("s_mov_b64 exec, -1")
    def qkm(x, kb): e(f"v_mfma_f32_32x32x16_bf16 {vr(SS[x],16)}, {vr(KF[kb],4)}, {vr(Q[x],4)}, 0")
    def qkt(x, kb): e(f"v_mfma_f32_32x32x8_bf16 {vr(SS[x],16)}, {vr(KF[kb]+4,2)}, {vr(Q[x]+4,2)}, {vr(SS[x],16)}")
    def pv(x, vb, u): e(f"v_mfma_f32_32x32x16_bf16 {vr(O[x],16)}, {vr(VF[vb]+4*u,4)}, {vr(P+4*u,4)}, {vr(O[x],16)}")
    def unit(x, t, extra=None, peel=False):
        p = t % 2; s = SS[x]
        ex = lambda i: e(f"v_exp_f32 v{s+i}, v{s+i}")
        cv = lambda i: e(f"v_cvt_pk_bf16_f32 v{P+i}, v{s+2*i}, v{s+2*i+1}")
        kb = p if x == 0 else 1-p
        if x == 1: e("s_waitcnt lgkmcnt(2)")
        qkm(1-x, kb)
        if x == 1:
            if peel and t == 5:
                for r in (KA, KT): e(f"v_subrev_u32 v{r}, {TOP}, v{r}")
            rdK(p, (t+2-(7 if peel and t >= 5 else 0))*2560)
        for i in range(0, 4): ex(i)
        if x == 0:
            pv(1, 1-p, 1)
            if peel and t == 6: e(f"v_subrev_u32 v{VA}, {TOP}, v{VA}")
            rdV(1-p, (t+1-(7 if peel and t >= 6 else 0))*2560)
        else:
            pv(0, p, 1)
        if extra: extra()
        for i in range(4, 8): ex(i)
        for i in range(0, 4): cv(i)
        qkt(1-x, kb)
        for i in range(8, 12): ex(i)
        if x == 0: e("s_waitcnt lgkmcnt(4)")
        pv(x, p, 0)
        for i in range(12, 16): ex(i)
        for i in range(4, 8): cv(i)
    rdK(0, 0); rdV(0, 0); rdK(1, 2560)
    e("s_waitcnt lgkmcnt(4)")
    qkm(0, 0); e("s_nop 10"); qkt(0, 0); e("s_nop 10")
    SYN = {1: 3, 4: 7, 7: 19}; PEEL = 8
    for t in range(PEEL):
        if t in SYN: k.waitvm(f"i{SYN[t]}"); e("s_barrier")
        if t == 7:
            e("s_cmp_ge_u32 s18, 4"); e(f"s_cbranch_scc0 {nm}_np"); e("s_setprio 1"); k.label(f"{nm}_np")
        d2 = lambda: (dma(), dma())
        unit(0, t, d2 if rnd[0] < 20 else (lambda: lw_init(k)) if t == 7 else None, True)
        unit(1, t, d2 if rnd[0] < 20 else None, True)
    for r in (KA, KT, VA): e(f"v_add_u32 v{r}, {(PEEL-7)*5120}, v{r}")
    e("s_mov_b32 s31, 0")
    if os.environ.get("FOC") == "at": k.stamp(2)
    def pref():
        e(f"buffer_load_dwordx4 {vr(PF,4)}, v22, s[12:15], s43 offen"); e("s_add_u32 s43, s43, 1024")
    e(".p2align 3")
    body_start = len(k.L)
    k.label(f"{nm}_aloop")
    NT = 4; NIT = (32 - PEEL)//NT; SW = ENV('SW', '19')
    for t in range(NT):
        def sw():
            e(f"s_cmp_eq_u32 s31, {SW//NT}"); e(f"s_cbranch_scc0 {nm}_l1"); e("s_setprio 0"); k.label(f"{nm}_l1")
        unit(0, t, pref if t != 3 and ENV('PFW', '1') else None); unit(1, t, sw if t == SW % NT else None)
    for r in (KA, KT, VA): e(f"v_add_u32 v{r}, {NT*5120}, v{r}")
    e("s_add_u32 s31, s31, 1")
    e(f"s_cmp_lt_u32 s31, {NIT}"); e(f"s_cbranch_scc1 {nm}_aloop")
    body = k.L[body_start:]
    assert lint(body + body, "attn_loop2") == 0
    pv(1, 1, 1); k.stamp(4)
    e("s_mov_b32 s30, 0")
    e(f"s_mov_b32 s32, {fbits(2.0**-60)}"); e(f"s_mov_b32 s33, {fbits(2.0**100)}"); e(f"s_mov_b32 s34, {fbits(2.0**126)}")
    e("s_nop 7")
    for i in range(3): e(f"ds_write_b128 v132, {vr(O[1]+4*i,4)} offset:{1024*i}")
    e("s_waitcnt lgkmcnt(0)"); e("s_barrier")
    for i in (2, 0, 1): e(f"ds_read_b128 {vr(SS[0]+4*i,4)}, v133 offset:{1024*i}")
    OO = O[0]
    e("s_waitcnt lgkmcnt(2)")
    for r in range(8, 12): e(f"v_add_f32 v{OO+r}, v{OO+r}, v{SS[0]+r}")
    e("s_waitcnt lgkmcnt(0)")
    for r in range(8): e(f"v_add_f32 v{OO+r}, v{OO+r}, v{SS[0]+r}")
    k.label(f"{nm}_chk")
    e(f"v_mov_b32 v30, v{OO+8}"); e(f"v_mov_b32 v31, v{OO+8}")
    e(f"v_max3_f32 v28, abs(v{OO}), abs(v{OO+1}), abs(v{OO+2})")
    e("v_permlane32_swap_b32 v30, v31")
    for r in range(3, 11, 2): e(f"v_max3_f32 v28, abs(v{OO+r}), abs(v{OO+r+1}), v28")
    e(f"v_max_f32 v28, abs(v{OO+11}), v28")
    e("v_cmp_le_f32 vcc, s32, v31"); e("v_cmp_ge_f32 s[36:37], s33, v31"); e("v_cmp_gt_f32 s[40:41], s34, v28")
    e("v_rcp_f32 v31, v31")
    e("s_and_b64 s[36:37], s[36:37], vcc"); e("s_and_b64 s[36:37], s[36:37], s[40:41]")
    e("s_cmp_eq_u64 s[36:37], -1"); e(f"s_cbranch_scc0 {nm}_slow")
    def slowpath():
        k.label(f"{nm}_slow")
        e("s_cmp_eq_u32 s30, 0"); e(f"s_cbranch_scc0 {nm}_fin")
        e("s_mov_b32 s30, 1")
        e("s_waitcnt vmcnt(0)")
        NM = O[1]
        e("v_mov_b32 v32, 0xff800000")
        def slowqk(c):
            e(f"buffer_load_dwordx4 {vr(KF[0],4)}, v22, s[12:15], s27 offen")
            e(f"buffer_load_dwordx2 {vr(KF[0]+4,2)}, v23, s[12:15], s27 offen offset:1024")
            e("s_waitcnt vmcnt(0)")
            e(f"v_mfma_f32_32x32x16_bf16 {vr(SS[0],16)}, {vr(KF[0],4)}, {vr(Q[0],4)}, {c}"); e("s_nop 10")
            e(f"v_mfma_f32_32x32x8_bf16 {vr(SS[0],16)}, {vr(KF[0]+4,2)}, {vr(Q[0]+4,2)}, {vr(SS[0],16)}"); e("s_nop 12")
        e(f"s_add_u32 s27, s19, {KVIMG[L]}"); e("s_mov_b32 s31, 0")
        k.label(f"{nm}_mx")
        slowqk("0")
        for r in range(0, 16, 2): e(f"v_max3_f32 v32, v{SS[0]+r}, v{SS[0]+r+1}, v32")
        e("s_add_u32 s27, s27, 2560")
        e("s_add_u32 s31, s31, 1"); e("s_cmp_lt_u32 s31, 64"); e(f"s_cbranch_scc1 {nm}_mx")
        k.allred32("v_max_f32", 32, 33)
        e("v_xor_b32 v32, 0x80000000, v32")
        for r in range(16): e(f"v_mov_b32 v{NM+r}, v32")
        for r in range(16): e(f"v_mov_b32 v{OO+r}, 0")
        for r in range(8): e(f"v_mov_b32 v{VF[0]+r}, v20")
        e(f"s_add_u32 s27, s19, {KVIMG[L]}"); e("s_mov_b32 s31, 0")
        k.label(f"{nm}_sl")
        e("s_mov_b64 exec, s[28:29]")
        e(f"buffer_load_dwordx4 {vr(VF[0],4)}, v21, s[12:15], s27 offen")
        e(f"buffer_load_dwordx4 {vr(VF[0]+4,4)}, v21, s[12:15], s27 offen offset:640")
        e("s_mov_b64 exec, -1")
        slowqk(vr(NM,16))
        for i in range(16): e(f"v_exp_f32 v{SS[0]+i}, v{SS[0]+i}")
        e("s_nop 0")
        for i in range(8): e(f"v_cvt_pk_bf16_f32 v{P+i}, v{SS[0]+2*i}, v{SS[0]+2*i+1}")
        e("s_nop 1")
        pv(0, 0, 0); pv(0, 0, 1)
        e("s_add_u32 s27, s27, 2560")
        e("s_add_u32 s31, s31, 1"); e("s_cmp_lt_u32 s31, 64"); e(f"s_cbranch_scc1 {nm}_sl")
        e("s_nop 12"); e(f"s_branch {nm}_chk")
    k.tail = slowpath
    k.label(f"{nm}_fin")
    e("s_nop 0")
    for r in range(12): e(f"v_mul_f32 v{OO+r}, v{OO+r}, v31")
    for r in range(6): e(f"v_cvt_pk_bf16_f32 v{P+r}, v{OO+2*r}, v{OO+2*r+1}")
    e(f"buffer_store_dwordx4 {vr(P,4)}, v39, s[12:15], s51 offen {SC}")
    e("s_mov_b32 exec_hi, 0")
    e(f"buffer_store_dwordx2 {vr(P+4,2)}, v38, s[12:15], s52 offen {SC}")
    e("s_mov_b64 exec, -1")
    k.stamp(5)
    for i in range(EARLY//2):
        e(f"s_add_u32 m0, s59, {8192*i}"); e(f"s_add_u32 s27, s50, {8192*i}")
        e("buffer_load_dwordx4 v22, s[12:15], s27 offen lds")
    e("v_lshlrev_b32 v3, 4, v1")
    k.vm = []; k.lg = []

def proj_c(k, tag, src, xin, xout, stout, final, cnt_code, word, st0):
    e = k.e
    ACC, RESID, A, BF = 24, 44, 76, 156
    NA0 = ENV('PA0', '8')
    ids_rt(k)
    e("s_lshl_b32 s19, s16, 2"); e("s_add_u32 s19, s19, s39")
    e("s_mul_i32 s24, s19, 20480")
    e("s_lshr_b32 s33, s17, 1"); e("s_mul_i32 s33, s33, 5120"); e("s_add_u32 s33, s33, s24")
    e("s_and_b32 s34, s17, 1"); e("s_mul_i32 s35, s34, 3072"); e("s_add_u32 s35, s35, s33")
    e("s_lshl_b32 s36, s34, 9"); e("s_add_u32 s36, s36, s33"); e("s_add_u32 s36, s36, 2048")
    e(f"s_add_u32 s37, s35, {xin}"); e(f"s_add_u32 s38, s36, {xin}")
    e("v_lshrrev_b32 v13, 5, v1"); e("v_lshlrev_b32 v13, 8, v13"); e("v_and_b32 v14, 15, v1"); e("v_lshl_add_u32 v13, v14, 4, v13")
    e("v_bfe_u32 v14, v1, 4, 1"); e("v_lshl_add_u32 v13, v14, 3, v13")
    k.vmop(f"buffer_load_dwordx4 {vr(RESID,4)}, v3, s[12:15], s37 offen {SC}", "r")
    k.vmop(f"buffer_load_dwordx4 {vr(RESID+4,4)}, v3, s[12:15], s37 offen offset:1024 {SC}", "r")
    k.vmop(f"buffer_load_dwordx2 {vr(RESID+8,2)}, v13, s[12:15], s38 offen {SC}", "r")
    e(f"s_add_u32 s24, s24, {src}")
    for i in range(1, 5): e(f"s_add_u32 s{24+i}, s24, {4096*i}")
    e("v_lshrrev_b32 v9, 4, v1"); e("v_add_u32 v12, 61440, v3")
    wait_go(k, tag, word, cnt_code)
    k.stamp(st0)
    def ldA(n): k.vmop(f"buffer_load_dwordx4 {vr(A+4*n,4)}, v3, s[12:15], s{24+n//4} offen offset:{(n%4)*1024} {SC}", f"a{n}")
    for n in range(NA0): ldA(n)
    k.waitvm("r")
    for i in range(10):
        e(f"v_lshlrev_b32 v{ACC+2*i}, 16, v{RESID+i}"); e(f"v_and_b32 v{ACC+2*i+1}, 0xffff0000, v{RESID+i}")
    def rd(n, nf):
        off = n*5120 + nf*1024; b = 3
        if n >= 12: off -= 61440; b = 12
        k.dsop(f"ds_read_b128 {vr(BF+20*(n%2)+4*nf,4)}, v{b} offset:{off}", f"b{n}_{nf}")
    e("s_barrier")
    for n in range(2):
        for nf in range(5): rd(n, nf)
    for n in range(20):
        k.waitvm(f"a{n}")
        if n == 0: k.stamp(st0+1)
        for nf in range(5):
            if nf in (0, 2, 4): k.waitlg(f"b{n}_{min(nf+1,4)}")
            if n == 12 and nf == 0 and not final: e("s_barrier")
            e(f"v_mfma_f32_16x16x32_bf16 {vr(ACC+4*nf,4)}, {vr(BF+20*(n%2)+4*nf,4)}, {vr(A+4*n,4)}, {vr(ACC+4*nf,4)}")
            if n + 2 < 20: rd(n+2, nf)
            if nf == 0 and n + NA0 < 20: ldA(n + NA0)
    if not final: e("s_barrier")
    if final:
        e("v_and_b32 v16, 15, v1"); e("v_mul_u32_u24 v16, 1280, v16"); e("v_lshl_add_u32 v17, v9, 3, v16"); e("v_lshl_add_u32 v16, v9, 4, v16")
        e("s_mul_i32 s32, s19, 20480"); e("s_mul_i32 s31, s17, 160"); e("s_add_u32 s32, s32, s31")
        e("s_lshl_b32 s31, s34, 5"); e("s_add_u32 s33, s32, s31"); e("s_xor_b32 s31, s34, 1"); e("s_lshl_b32 s31, s31, 7"); e("s_add_u32 s32, s32, s31")
        FSC = os.environ.get("FSC", "")
        for i in range(10): e(f"v_cvt_pk_bf16_f32 v{RESID+i}, v{ACC+2*i}, v{ACC+2*i+1}")
        e(f"buffer_store_dwordx4 {vr(RESID,4)}, v16, s[60:63], s33 offen {FSC}")
        e(f"buffer_store_dwordx4 {vr(RESID+4,4)}, v16, s[60:63], s33 offen offset:64 {FSC}")
        e(f"buffer_store_dwordx2 {vr(RESID+8,2)}, v17, s[60:63], s32 offen {FSC}")
    else:
        e(f"s_add_u32 s37, s35, {xout}"); e(f"s_add_u32 s38, s36, {xout}")
        e("s_lshl_b32 s32, s19, 10"); e("s_lshl_b32 s33, s17, 7"); e("s_add_u32 s32, s32, s33"); e(f"s_add_u32 s32, s32, {stout}")
        e("v_lshlrev_b32 v16, 3, v1")
        for i in range(10): e(f"v_cvt_pk_bf16_f32 v{RESID+i}, v{ACC+2*i}, v{ACC+2*i+1}")
        e(f"buffer_store_dwordx4 {vr(RESID,4)}, v3, s[12:15], s37 offen {SC}")
        e(f"buffer_store_dwordx4 {vr(RESID+4,4)}, v3, s[12:15], s37 offen offset:1024 {SC}")
        e(f"buffer_store_dwordx2 {vr(RESID+8,2)}, v13, s[12:15], s38 offen {SC}")
        e(f"v_add_f32 v18, v{ACC}, v{ACC+1}"); e(f"v_mul_f32 v19, v{ACC}, v{ACC}"); e(f"v_add_f32 v20, v{ACC+2}, v{ACC+3}"); e(f"v_mul_f32 v21, v{ACC+1}, v{ACC+1}")
        e(f"v_fmac_f32 v19, v{ACC+2}, v{ACC+2}"); e(f"v_fmac_f32 v21, v{ACC+3}, v{ACC+3}")
        for i in range(4, 20, 2):
            e(f"v_add_f32 v18, v18, v{ACC+i}"); e(f"v_fmac_f32 v19, v{ACC+i}, v{ACC+i}")
            e(f"v_add_f32 v20, v20, v{ACC+i+1}"); e(f"v_fmac_f32 v21, v{ACC+i+1}, v{ACC+i+1}")
        e("v_add_f32 v18, v18, v20"); e("v_add_f32 v19, v19, v21")
        for sw in ("v_permlane16_swap_b32", "v_permlane32_swap_b32"):
            e("v_mov_b32 v20, v18"); e("v_mov_b32 v21, v19"); e("s_nop 0")
            e(f"{sw} v18, v20"); e(f"{sw} v19, v21"); e("s_nop 0")
            e("v_add_f32 v18, v18, v20"); e("v_add_f32 v19, v19, v21")
        e("s_mov_b64 exec, 0xffff")
        e(f"buffer_store_dwordx2 v[18:19], v16, s[12:15], s32 offen {SC}")
    k.stamp(st0+2)

def proj_l(k, wimg, nxt, src, sig=None, done=0):
    e = k.e
    if nxt is not None:
        ids_mt(k)
        e("s_min_u32 s17, s17, 14" if nxt == WA_I else "s_nop 0")
        e("s_mul_i32 s58, s17, 163840"); e("s_add_u32 s58, s58, s45"); e(f"s_add_u32 s58, s58, {nxt}")
    ids_rt(k)
    e("s_mul_i32 s50, s17, 102400"); e("s_add_u32 s50, s50, s45"); e(f"s_add_u32 s50, s50, {wimg}")
    e("s_mul_i32 s51, s16, 81920"); e("s_lshl_b32 s52, s17, 2"); e("s_add_u32 s52, s52, s39"); e("s_mul_i32 s52, s52, 2560"); e("s_add_u32 s51, s51, s52"); e(f"s_add_u32 s51, s51, {src}")
    e("v_min_u32 v21, 39, v1"); e("v_lshlrev_b32 v21, 6, v21")
    w = Wdma(k, 25, 50, "o"); k.vm = []
    T1, T2 = ENV('T1', '0'), ENV('T2', '4')
    if sig:
        k.vm = ["e"] * (EARLY//2); signal(k, "s1l", 0, 8, sig, EARLY//2)
        ub_prep(k, 0)
    w.rng(done, 25, T1 if sig else 0)
    w2 = Wdma(k, 40, 58)
    if sig:
        w2.rng(25, 31, T1)
        e(f"v_mov_b32 v{PV_+3}, {LW}"); e("s_mov_b32 s49, 0")
        k.label(f"{k.name}_a8")
        e(f"ds_read_b32 v{PV_}, v{PV_+3}"); e("s_add_u32 s49, s49, 1"); e("s_waitcnt lgkmcnt(0)"); e(f"v_readfirstlane_b32 s44, v{PV_}")
        e("s_cmp_ge_u32 s49, 0x400000"); e("s_cselect_b32 s44, 8, s44"); e("s_cmp_lt_u32 s44, 8"); e(f"s_cbranch_scc1 {k.name}_a8")
    if nxt is not None: w2.rng(31 if sig else 32, 39, T1 if sig else 0)
    if sig: ub_prep(k, 1)
    k.waitvm("o24")
    e("s_barrier")
    if ENV('ATOUCH', '1'):
        k.vmop("buffer_load_dword v20, v21, s[12:15], s51 offen")
    if nxt is not None:
        if not sig: w2.rng(25, 32)
        e("s_barrier")
        w2.rng(0, 15)
        e("s_barrier")
        k.waitvm("w14")
        w2.rng(15, 25, T2)
    return w2

def stats16(k, s, rstd, mop, mask):
    e = k.e
    e(f"v_add_f32 v{s}, v{s}, v{s+2}"); e(f"v_add_f32 v{s+1}, v{s+1}, v{s+3}")
    k.allred16("v_add_f32", s, s+2); k.allred16("v_add_f32", s+1, s+3)
    k.allred32("v_add_f32", s, s+2); k.allred32("v_add_f32", s+1, s+3)
    stats_finish(k, s, s+1, s+2, rstd, s+3)
    split3(k, s+2, mop, 17, 'm', mask)
def usum(k, u, dst, t=17):
    e = k.e
    e(f"v_add_f32 v{u}, v{u}, v{u+1}"); e(f"v_add_f32 v{u+2}, v{u+2}, v{u+3}"); e(f"v_add_f32 v{u}, v{u}, v{u+2}")
    split3(k, u, dst, t, 'u')
def scale_pack(k, a, sc, dst):
    for r in range(4): k.e(f"v_mul_f32 v{a+r}, v{a+r}, v{sc(r)}")
    for r in range(2): k.e(f"v_cvt_pk_bf16_f32 v{dst+r}, v{a+2*r}, v{a+2*r+1}")
EX = 102400
UOFF = lambda F: (F//4)*8192 + 7168 + (F%4)*256 + 128
TOKF = (0, 1, 2, 3, 6); FEAF = (4, 5, 7)

def ub_prep(k, part):
    e = k.e
    if part: return ub_fin(k)
    e("v_and_b32 v5, 15, v1"); e("v_lshrrev_b32 v6, 4, v1"); e("s_lshr_b32 s30, s21, 1")
    e("v_mul_u32_u24 v12, 2560, v6"); e("v_lshl_add_u32 v12, v5, 2, v12")
    e("s_mul_i32 s30, s30, 10240"); e("s_lshl_b32 s31, s39, 7"); e("s_add_u32 s30, s30, s31"); e(f"s_add_u32 s30, s30, {U_B}")
    for q in range(2):
        for j_ in range(5): k.vmop(f"buffer_load_dword v{64+5*q+j_}, v12, s[12:15], s30 offen offset:{512*j_+64*q}", "up")
    e("s_lshr_b32 s30, s39, 1"); e("s_lshl_b32 s30, s30, 13"); e("s_and_b32 s31, s39, 1"); e("s_lshl_b32 s31, s31, 9"); e("s_add_u32 s30, s30, s31")
    e("v_lshlrev_b32 v51, 3, v5"); e("v_add_u32 v46, s30, v51")
def ub_fin(k):
    e = k.e
    k.waitvm("up")
    for q in range(2):
        u = 64+5*q
        e(f"v_add_f32 v{u}, v{u}, v{u+1}"); e(f"v_add_f32 v{u+2}, v{u+2}, v{u+3}"); e(f"v_add_f32 v{u}, v{u}, v{u+4}"); e(f"v_add_f32 v{u}, v{u}, v{u+2}")
        k.allred16("v_add_f32", u, u+1); k.allred32("v_add_f32", u, u+1)
        split3(k, u, 28+2*q, 17, 'u')

def atouch_pre(k, xin):
    e = k.e
    e("s_mul_i32 s51, s16, 163840"); e("s_lshl_b32 s52, s17, 2"); e("s_add_u32 s52, s52, s39"); e("s_mul_i32 s52, s52, 2560"); e("s_add_u32 s51, s51, s52"); e(f"s_add_u32 s51, s51, {xin}")
    e("v_min_u32 v21, 39, v1"); e("v_lshlrev_b32 v21, 6, v21")

def qkvb_pre(k):
    e = k.e
    ids_mt(k)
    e("v_and_b32 v5, 15, v1"); e("v_lshrrev_b32 v6, 4, v1")
    e("s_lshl_b32 s22, s16, 3"); e("s_lshl_b32 s19, s39, 1"); e("s_add_u32 s19, s19, s22")
    e("v_lshlrev_b32 v11, 3, v5"); e("v_lshl_add_u32 v11, v6, 8, v11")
    e("v_cmp_eq_u32 vcc, 0, v6"); e("v_lshlrev_b32 v10, 4, v6"); e("s_nop 0"); e("v_cndmask_b32 v4, 0, -1, vcc")

def qkvb_c(k, L, xin, stin, st0):
    e = k.e; nm = k.name
    DA = 5
    ACC, BF, AR, RSV = 64, 160, 192, 228
    acc = lambda b, F: ACC + 32*b + 4*F
    qkvb_pre(k)
    e("s_lshl_b32 s28, s19, 10"); e(f"s_add_u32 s28, s28, {stin}")
    e("s_mul_i32 s25, s19, 20480"); e(f"s_add_u32 s25, s25, {xin}"); e("s_add_u32 s26, s25, 20480")
    e("v_add_u32 v41, 65536, v3"); e("v_add_u32 v42, 131072, v3")
    def c2():
        e("s_lshl_b32 s48, s16, 9"); e(f"s_add_u32 s48, s48, {C2(L)}")
        e(f"v_lshlrev_b32 v{PV_+1}, 8, v1"); e(f"v_lshlrev_b32 v{PV_+2}, 3, v1"); e(f"v_sub_u32 v{PV_+2}, 16, v{PV_+2}")
        e("s_cmp_eq_u32 s16, 0"); e("s_cselect_b64 s[56:57], 1, 3")
    wait_go(k, "p3", 1, c2)
    k.stamp(st0)
    def ldA(ks):
        for b in range(2):
            if ks % 4 == 0 and ks > 0: e(f"s_add_u32 s{25+b}, s{25+b}, 4096")
            k.vmop(f"buffer_load_dwordx4 {vr(AR+8*(ks%DA)+4*b,4)}, v3, s[12:15], s{25+b} offen offset:{(ks%4)*1024} {SC}", f"a{ks}")
    ldA(0)
    for b in range(2):
        for q in range(2): k.vmop(f"buffer_load_dwordx2 {vr(24+4*b+2*q,2)}, v11, s[12:15], s28 offen offset:{1024*b+128*q} {SC}", "st")
    for ks in range(1, DA-1): ldA(ks)
    MC, MP, MP1 = 64, 68, 72
    NEG = fbits(-1e30)
    def prolog():
        k.waitvm("st")
        for b in (1, 2): stats16(k, 20+4*b, 48+b, 52+2*b, 4)
        for b in (1, 2):
            for r in range(4):
                e(f"v_add_u32 v18, {4*r}, v10")
                k.dsop(f"ds_bpermute_b32 v{RSV+4*b+r}, v18, v{48+b}", "rs")
        e("v_lshlrev_b32 v43, 3, v5")
        e("v_lshlrev_b32 v17, 2, v6"); e("v_sub_u32 v17, v5, v17")
        e(f"v_mov_b32 v19, {NEG}")
        for r in range(4):
            e(f"v_subrev_u32 v18, {r}, v17"); e("v_and_b32 v16, 0x80000001, v18")
            e("v_cmp_eq_u32 vcc, 0, v16"); e(f"v_cndmask_b32 v{MC+r}, v19, 0, vcc")
            e("v_cmp_eq_u32 vcc, 0x80000000, v16"); e(f"v_cndmask_b32 v{MP+r}, v19, 0, vcc")
        e("s_cmp_eq_u32 s19, 0"); e(f"s_cselect_b32 s34, {NEG}, 0")
        for r in range(4): e(f"v_add_f32 v{MP1+r}, s34, v{MP+r}")
        e("v_cmp_eq_u32 vcc, 2, v6"); e("v_cndmask_b32 v38, 0, -1, vcc")
        e("v_cmp_eq_u32 vcc, 3, v6"); e("v_cndmask_b32 v39, 0, -1, vcc")
        for b in (1, 2): e(f"v_mul_f32 v{58+b}, {fbits(CSCALE)}, v{48+b}")
        e("v_cmp_gt_u32 vcc, 2, v6")
        for b in (1, 2): e(f"v_cndmask_b32 v{35+b}, v{48+b}, v{58+b}, vcc")
        e("s_mul_i32 s35, s18, 5120"); e(f"s_add_u32 s35, s35, {EX}"); e("v_add_u32 v9, s35, v3")
        e("s_mul_i32 s24, s19, 20480"); e(f"s_add_u32 s24, s24, {OBT}")
        e("s_lshl_b32 s51, s17, 10"); e("s_add_u32 s51, s51, s24"); e("s_add_u32 s52, s51, 20480")
        e("s_lshr_b32 s53, s17, 2"); e("s_add_u32 s53, s53, 16"); e("s_lshl_b32 s53, s53, 10"); e("s_add_u32 s53, s53, s24")
        e("s_and_b32 s54, s17, 1"); e("s_lshl_b32 s54, s54, 9"); e("s_add_u32 s53, s53, s54")
        e("s_bfe_u32 s54, s17, 0x10001"); e("s_lshl_b32 s54, s54, 3"); e("s_add_u32 s53, s53, s54"); e("s_add_u32 s54, s53, 20480")
    fl = k.capture(prolog)
    def rd(ks, F):
        off = ks*8192 + 1024*F; hi = off >> 16
        k.dsop(f"ds_read_b128 {vr(BF+4*F,4)}, v{(3,41,42)[hi]} offset:{off & 0xffff}", f"b{ks}_{F}")
    def mm(b, F, ks):
        a = vr(AR+8*(ks%DA)+4*(b-1), 4); w = vr(BF+4*F, 4); c = vr(acc(b,F), 4); ci = c if ks else "0"
        if F in TOKF: e(f"v_mfma_f32_16x16x32_bf16 {c}, {w}, {a}, {ci}")
        else:         e(f"v_mfma_f32_16x16x32_bf16 {c}, {a}, {w}, {ci}")
    e("s_barrier")
    for F in range(8): rd(0, F)
    for ks in range(20):
        k.waitvm(f"a{ks}")
        if ks == 0: k.stamp(st0+1)
        if ks == 6: e("s_barrier")
        if ks == 16:
            k.fill(fl, 1000)
            for F in range(8): k.dsop(f"ds_read_b64 {vr(20+2*F,2)}, v43 offset:{UOFF(F)}", "uo")
        for F in range(8):
            if F % 2 == 0: k.waitlg(f"b{ks}_{F+1}")
            mm(1, F, ks)
            if ks >= 1: k.fill(fl, 1)
            mm(2, F, ks)
            if ks + 1 < 20: rd(ks+1, F)
            if F == 0 and ks + DA - 1 < 20: ldA(ks + DA - 1)
            if ks >= 1 and F % 2: k.fill(fl, 1)
        if ks == 18:
            k.fill(fl, 1000)
            for b in (1, 2):
                for F in range(8):
                    U, M = vr(20+2*F, 2), vr(52+2*b, 2)
                    if F in TOKF: e(f"v_mfma_f32_16x16x16_bf16 {vr(acc(b,F),4)}, {U}, {M}, {vr(acc(b,F),4)}")
                    else:         e(f"v_mfma_f32_16x16x16_bf16 {vr(acc(b,F),4)}, {M}, {U}, {vr(acc(b,F),4)}")
    k.stamp(st0+2)
    e("s_barrier")
    if os.environ.get("FOC") == "s3": k.stamp(3)
    e("s_cmp_eq_u32 s18, 0"); e(f"s_cbranch_scc0 {nm}_ni"); lw_init(k); k.label(f"{nm}_ni")
    KO = lambda b, h: BF + 8*b + 4*h
    QO = lambda b, h: BF + 24 + 8*(b-1) + 4*h
    VO = lambda F, b: BF + 40 + 8*FEAF.index(F) + 2*b
    def kv_pack(b):
        for h in range(2): scale_pack(k, acc(b, 2+h), lambda r: 48+b, KO(b,h))
        scale_pack(k, acc(b, 6), lambda r: 35+b, KO(b,0)+2)
        for r in range(2): e(f"v_mov_b32 v{KO(b,1)+2+r}, v{KO(b,0)+2+r}")
        for F in FEAF: scale_pack(k, acc(b, F), lambda r: RSV+4*b+r, VO(F,b))
    kv_pack(2)
    for h in range(2): e(f"ds_write_b128 v9, {vr(KO(2,h),4)} offset:{5120+1024*h}")
    for n, F in enumerate(FEAF): e(f"ds_write_b64 v9, {vr(VO(F,2),2)} offset:{5120+2048+1024*n}")
    kv_pack(1)
    e("s_waitcnt lgkmcnt(0)"); e("s_barrier")
    if os.environ.get("FOC") == "s3": k.stamp(4)
    for h in range(2): e(f"ds_read_b128 {vr(KO(0,h),4)}, v9 offset:{1024*h}")
    for n, F in enumerate(FEAF): e(f"ds_read_b64 {vr(VO(F,0),2)}, v9 offset:{2048+1024*n}")
    for b in (1, 2):
        for h in range(2): scale_pack(k, acc(b, h), lambda r: 58+b, QO(b,h))
        for r in range(2):
            e(f"v_mov_b32 v{40+2*r}, v{KO(b,0)+2+r}"); e(f"v_mov_b32 v{41+2*r}, v{KO(b,0)+2+r}")
        for r in range(2): e(f"v_permlane32_swap_b32 v{40+2*r}, v{41+2*r}")
        e("s_nop 0")
        for h in range(2):
            for r in range(2): e(f"v_and_b32 v{QO(b,h)+2+r}, v{40+2*r}, v{38+h}")
    e("s_waitcnt lgkmcnt(0)")
    units = [(b, h) for b in (1, 2) for h in range(2)]
    SU = lambda i: 20 + 8*i if i < 2 else 76 + 8*(i-2)
    TU = lambda i: ACC + 32 + 4*i
    PU = lambda i: ACC + 48 + 4*i
    OU = lambda i: ACC + 64 + 8*i
    for i, (b, h) in enumerate(units):
        e(f"v_mfma_f32_16x16x32_bf16 {vr(SU(i),4)}, {vr(KO(b-1,h),4)}, {vr(QO(b,h),4)}, {vr(MP1 if b == 1 else MP,4)}")
        e(f"v_mfma_f32_16x16x32_bf16 {vr(SU(i)+4,4)}, {vr(KO(b,h),4)}, {vr(QO(b,h),4)}, {vr(MC,4)}")
    def allred(op):
        for sw in ("v_permlane16_swap_b32", "v_permlane32_swap_b32"):
            for i in range(4): e(f"v_mov_b32 v{TU(i)+1}, v{TU(i)}")
            for i in range(4): e(f"{sw} v{TU(i)}, v{TU(i)+1}")
            for i in range(4): e(f"{op} v{TU(i)}, v{TU(i)}, v{TU(i)+1}")
    for i in range(4):
        s = SU(i)
        e(f"v_max3_f32 v{TU(i)}, v{s}, v{s+1}, v{s+2}"); e(f"v_max3_f32 v{TU(i)}, v{s+3}, v{s+4}, v{TU(i)}")
        e(f"v_max3_f32 v{TU(i)}, v{s+5}, v{s+6}, v{TU(i)}"); e(f"v_max_f32 v{TU(i)}, v{s+7}, v{TU(i)}")
    allred("v_max_f32")
    for i in range(4):
        for r in range(8): e(f"v_sub_f32 v{SU(i)+r}, v{SU(i)+r}, v{TU(i)}")
    for i in range(4):
        for r in range(8): e(f"v_exp_f32 v{SU(i)+r}, v{SU(i)+r}")
    for i in range(4):
        s = SU(i)
        e(f"v_add_f32 v{TU(i)}, v{s}, v{s+1}")
        for r in range(2, 8): e(f"v_add_f32 v{TU(i)}, v{TU(i)}, v{s+r}")
    allred("v_add_f32")
    for i in range(4): e(f"v_rcp_f32 v{TU(i)}, v{TU(i)}")
    for i in range(4):
        for r in range(8): e(f"v_mul_f32 v{SU(i)+r}, v{SU(i)+r}, v{TU(i)}")
        for r in range(4): e(f"v_cvt_pk_bf16_f32 v{PU(i)+r}, v{SU(i)+2*r}, v{SU(i)+2*r+1}")
    for i, (b, h) in enumerate(units):
        e(f"v_mfma_f32_16x16x32_bf16 {vr(OU(i),4)}, {vr(VO(4+h,b-1),4)}, {vr(PU(i),4)}, 0")
        e(f"v_mfma_f32_16x16x32_bf16 {vr(OU(i)+4,4)}, {vr(VO(7,b-1),4)}, {vr(PU(i),4)}, 0")
    e("v_cmp_eq_u32 vcc, 0, v6")
    for bi in range(2):
        o0, o1 = OU(2*bi), OU(2*bi+1); d = 40 + 8*bi
        e(f"v_cvt_pk_bf16_f32 v{d}, v{o0}, v{o0+1}"); e(f"v_cvt_pk_bf16_f32 v{d+1}, v{o0+2}, v{o0+3}")
        e(f"v_cvt_pk_bf16_f32 v{d+2}, v{o1}, v{o1+1}"); e(f"v_cvt_pk_bf16_f32 v{d+3}, v{o1+2}, v{o1+3}")
        e(f"buffer_store_dwordx4 {vr(d,4)}, v3, s[12:15], s{51+bi} offen {SC}")
        for r in range(4): e(f"v_cndmask_b32 v{o0+4+r}, v{o1+4+r}, v{o0+4+r}, vcc")
        e(f"v_cvt_pk_bf16_f32 v{d+4}, v{o0+4}, v{o0+5}"); e(f"v_cvt_pk_bf16_f32 v{d+5}, v{o0+6}, v{o0+7}")
    e("s_mov_b32 exec_hi, 0")
    for bi in range(2): e(f"buffer_store_dwordx2 {vr(44+8*bi,2)}, v3, s[12:15], s{53+bi} offen {SC}")

def qkvb_l(k, L, xin, stin, w):
    e = k.e; nm = k.name
    qkvb_pre(k)
    e("s_max_u32 s22, s22, 1"); e("s_sub_u32 s22, s22, 1")
    e("s_mul_i32 s24, s22, 20480"); e(f"s_add_u32 s24, s24, {xin}")
    e("s_lshl_b32 s27, s22, 10"); e(f"s_add_u32 s27, s27, {stin}")
    e("s_min_u32 s40, s39, 2")
    e("s_cmp_lt_u32 s39, 2"); e("s_cselect_b32 s41, 2, 4"); e("s_cselect_b32 s42, 4, 5")
    e("s_add_u32 s41, s41, s40"); e("s_add_u32 s42, s42, s40")
    for d_, s_ in ((43, 41), (44, 42)):
        e(f"s_lshr_b32 s{d_}, s{s_}, 2"); e(f"s_lshl_b32 s{d_}, s{d_}, 13"); e(f"s_and_b32 s32, s{s_}, 3"); e("s_lshl_b32 s32, s32, 8")
        e(f"s_add_u32 s{d_}, s{d_}, s32"); e(f"s_add_u32 s{d_}, s{d_}, {UOFF(0)}")
    e("s_lshl_b32 s41, s41, 10"); e("s_lshl_b32 s42, s42, 10")
    for i in range(3):
        e(f"v_add_u32 v{40+i}, s41, v3"); e(f"v_add_u32 v{43+i}, s42, v3")
        if i: e(f"v_add_u32 v{40+i}, {65536*i}, v{40+i}"); e(f"v_add_u32 v{43+i}, {65536*i}, v{43+i}")
    atouch_pre(k, xin)
    e("s_barrier")
    e(f"ds_write_b64 v46, v[28:29] offset:{UOFF(0)}"); e(f"ds_write_b64 v46, v[30:31] offset:{UOFF(1)}")
    if ENV('ATOUCH', '1'): k.vmop("buffer_load_dword v20, v21, s[12:15], s51 offen")
    w.one(39)
    for q in range(2): k.vmop(f"buffer_load_dwordx2 {vr(24+2*q,2)}, v11, s[12:15], s27 offen offset:{128*q} {SC}", "st")
    e("s_cmp_eq_u32 s39, 3"); e("s_cselect_b32 s24, 0x7ff00000, s24")
    HL = ENV('HL', '3')
    def ldh(ks):
        if ks % 4 == 0 and ks: e("s_add_u32 s24, s24, 4096")
        k.vmop(f"buffer_load_dwordx4 {vr(128+4*ks,4)}, v3, s[12:15], s24 offen offset:{(ks%4)*1024} {SC}", f"h{ks}")
    for ks in range(HL): ldh(ks)
    k.waitvm("w39"); e("s_waitcnt lgkmcnt(0)"); e("s_barrier")
    k.waitvm("st")
    stats16(k, 24, 48, 52, 4)
    for r in range(4):
        e(f"v_add_u32 v18, {4*r}, v10")
        k.dsop(f"ds_bpermute_b32 v{72+r}, v18, v48", "r")
    def rd(ks):
        off = ks*8192; hi = off >> 16; fb = 96 + 8*(ks%3)
        k.dsop(f"ds_read_b128 {vr(fb,4)}, v{40+hi} offset:{off & 0xffff}", f"r{ks}")
        k.dsop(f"ds_read_b128 {vr(fb+4,4)}, v{43+hi} offset:{off & 0xffff}", f"r{ks}")
    rd(0); rd(1)
    for ks in range(20):
        if ks + 2 < 20: rd(ks+2)
        if ks + HL < 20: ldh(ks + HL)
        k.waitvm(f"h{ks}"); k.waitlg(f"r{ks}")
        fb = 96 + 8*(ks%3)
        e(f"v_mfma_f32_16x16x32_bf16 v[80:83], {vr(fb,4)}, {vr(128+4*ks,4)}, {'v[80:83]' if ks else 0}")
        e(f"v_mfma_f32_16x16x32_bf16 v[84:87], {vr(128+4*ks,4)}, {vr(fb+4,4)}, {'v[84:87]' if ks else 0}")
    e("v_add_u32 v12, s43, v51"); e("v_add_u32 v13, s44, v51")
    e("ds_read_b64 v[20:21], v12"); e("ds_read_b64 v[22:23], v13")
    e("s_lshl_b32 s41, s39, 10"); e("s_cmp_lt_u32 s39, 2"); e("s_cselect_b32 s41, s41, 8"); e("s_cselect_b32 s42, s41, 1032")
    e("s_lshl_b32 s40, s40, 10")
    e(f"v_add_u32 v9, {EX}, v3"); e("v_add_u32 v12, s41, v9"); e("v_add_u32 v13, s42, v9"); e("v_add_u32 v15, s40, v9")
    e("s_waitcnt lgkmcnt(0)")
    e("v_mfma_f32_16x16x16_bf16 v[80:83], v[20:21], v[52:53], v[80:83]")
    e("v_mfma_f32_16x16x16_bf16 v[84:87], v[52:53], v[22:23], v[84:87]")
    scale_pack(k, 80, lambda r: 48, 88); scale_pack(k, 84, lambda r: 72+r, 90)
    e("s_barrier")
    e("s_cmp_eq_u32 s39, 3"); e(f"s_cbranch_scc1 {nm}_h4")
    e("ds_write_b64 v12, v[88:89]"); e("ds_write_b64 v13, v[88:89]"); e("ds_write_b64 v15, v[90:91] offset:2048")
    e("s_waitcnt lgkmcnt(0)")
    k.label(f"{nm}_h4")
    e("s_barrier")
    k.vm = []; k.lg = []

def one(k, target):
    k.e(f"v_mov_b32 v{PV_+1}, 0"); k.e(f"v_mov_b32 v{PV_+2}, {target}"); k.e("s_mov_b64 s[56:57], 1")

def kvpos(k):
    k.e("s_and_b32 s36, s19, 31"); k.e("s_lshl_b32 s36, s36, 1"); k.e("s_lshr_b32 s34, s19, 5"); k.e("s_add_u32 s36, s36, s34")
    k.e("s_add_u32 s36, s36, 50"); k.e("s_and_b32 s36, s36, 63")
def addr_v(k, img):
    e = k.e
    e("s_sub_u32 s35, s17, 10"); e("s_lshl_b32 s35, s35, 7")
    kvpos(k); e("s_mul_i32 s36, s36, 2560"); e(f"s_add_u32 s33, s36, {KVIMG[img]+1280}")
    e("v_mul_u32_u24 v20, 320, v4")
    for jf in range(4):
        e(f"v_add_u32 v16, s35, v10")
        if jf: e(f"v_add_u32 v16, {32*jf}, v16")
        e("v_mul_u32_u24 v17, 52429, v16"); e("v_lshrrev_b32 v17, 20, v17")
        e("v_mul_u32_u24 v18, 20, v17"); e("v_sub_u32 v18, v16, v18")
        e("v_mul_u32_u24 v17, 163840, v17"); e("v_lshl_add_u32 v17, v18, 4, v17")
        e(f"v_add_u32 v{24+jf}, v17, v20")
def addr_qk(k, img, xm=52):
    e = k.e; k.xm = xm
    e("s_cmp_ge_u32 s17, 5")
    e(f"s_cselect_b32 s33, {QI}, 0"); e(f"s_cselect_b32 s59, 1.0, {fbits(CSCALE)}"); e("s_cselect_b32 s35, 5, 0"); e("s_cselect_b32 s37, 1, 0")
    e(f"s_add_u32 s33, s33, {QIMG[img]}")
    e("s_sub_u32 s35, s17, s35")
    kvpos(k); e("s_cmp_eq_u32 s37, 0"); e("s_cselect_b32 s36, s19, s36")
    e("s_mul_i32 s36, s36, 1280"); e("s_lshl_b32 s36, s36, s37"); e("s_add_u32 s33, s33, s36")
    e("s_lshl_b32 s34, 81920, s37")
    e("v_lshlrev_b32 v16, 4, v10"); e("v_lshlrev_b32 v17, 3, v10")
    e("v_lshl_add_u32 v18, v4, 9, v16")
    e("s_sub_u32 s36, s34, 512"); e("v_and_b32 v19, s36, v59"); e("v_add_u32 v19, v19, v16")
    e(f"s_mov_b32 s{xm}, -1"); e(f"s_mov_b32 s{xm+1}, 0"); e(f"s_mov_b32 s{xm+2}, 0"); e(f"s_mov_b32 s{xm+3}, -1")
def epi_qk(k, ACC, BF):
    e = k.e; nm = k.name
    for v in range(1, 5):
        e(f"s_cmp_eq_u32 s35, {v}"); e(f"s_cbranch_scc1 {nm}_e{v}")
    QSC = os.environ.get("QSC", "sc1")
    for v in range(5):
        if v: k.label(f"{nm}_e{v}")
        e("s_nop 7")
        for jf in range(4):
            for r in range(16): e(f"v_mul_f32 v{ACC+16*jf+r}, v{ACC+16*jf+r}, v47")
            for r in range(8): e(f"v_cvt_pk_bf16_f32 v{BF+8*jf+r}, v{ACC+16*jf+2*r}, v{ACC+16*jf+2*r+1}")
            for a2 in range(2):
                x = BF+8*jf+4*a2
                e(f"v_permlane32_swap_b32 v{x}, v{x+2}"); e(f"v_permlane32_swap_b32 v{x+1}, v{x+3}")
            for a2 in range(2):
                x = BF+8*jf+4*a2
                G = [32*v+8*jf+4*a2, 32*v+8*jf+4*a2+2]
                def main(g):
                    h = g // 5; r = g % 5
                    return h, (r // 2 if h % 2 == 0 else (r - 1) // 2)
                st = [g % 10 == 4 for g in G]
                def hoff(dst, h, c):
                    if h: e(f"s_mul_i32 s{dst}, s34, {h}"); e(f"s_add_u32 s{dst}, s{dst}, s33")
                    else: e(f"s_mov_b32 s{dst}, s33")
                    if c: e(f"s_add_u32 s{dst}, s{dst}, {c}")
                if not any(st):
                    (h0, p0), (h1, p1) = main(G[0]), main(G[1])
                    hoff(36, h0, 512*p0)
                    if h0 == h1: e(f"buffer_store_dwordx4 {vr(x,4)}, v18, s[12:15], s36 offen {QSC}")
                    else:        e(f"buffer_store_dwordx4 {vr(x,4)}, v19, s[12:15], s36 offen {QSC}")
                    assert (h0 == h1 and (p0, p1) == (0, 1)) or (h1 == h0 + 1 and (p0, p1) == (1, 0))
                else:
                    m = st.index(False); q = 1 - m
                    h, p = main(G[m]); hoff(36, h, 512*p); hoff(37, G[q] // 5, 1024); e("s_add_u32 s38, s37, s34")
                    e(f"s_mov_b64 exec, s[{k.xm+2*m}:{k.xm+1+2*m}]")
                    e(f"buffer_store_dwordx4 {vr(x,4)}, v16, s[12:15], s36 offen {QSC}")
                    e(f"s_mov_b64 exec, s[{k.xm+2*q}:{k.xm+1+2*q}]")
                    e(f"buffer_store_dwordx2 {vr(x,2)}, v17, s[12:15], s37 offen {QSC}")
                    e(f"buffer_store_dwordx2 {vr(x+2,2)}, v17, s[12:15], s38 offen {QSC}")
                    e("s_mov_b64 exec, -1")
        e(f"s_branch {nm}_fin5")
def epi_v(k, ACC, BF, RS):
    e = k.e
    VSC = os.environ.get("VSC", "sc1")
    for jf in range(4):
        for r in range(16): e(f"v_mul_f32 v{ACC+16*jf+r}, v{ACC+16*jf+r}, v{RS+r}")
        for r in range(8): e(f"v_cvt_pk_bf16_f32 v{BF+8*jf+r}, v{ACC+16*jf+2*r}, v{ACC+16*jf+2*r+1}")
        for u in range(2):
            e(f"buffer_store_dwordx4 {vr(BF+8*jf+4*u,4)}, v{24+jf}, s[12:15], s33 offen offset:{640*u} {VSC}")

def qkva_c(k, L, xin, stin, img, cnt, wbar, st0):
    e = k.e; nm = k.name
    DA = 5
    ACC, BF, AR, RS = 64, 128, 160, 200
    e("v_and_b32 v10, 31, v1"); e("v_lshrrev_b32 v4, 5, v1"); e("v_and_b32 v5, 15, v1")
    e("s_lshl_b32 s19, s16, 2"); e("s_add_u32 s19, s19, s18")
    e("v_lshlrev_b32 v12, 4, v10")
    e("s_lshl_b32 s31, s17, 11"); e(f"s_add_u32 s31, s31, {U_A}")
    for jf in range(4): k.vmop(f"buffer_load_dwordx4 {vr(24+4*jf,4)}, v12, s[12:15], s31 offen offset:{512*jf}", "u")
    e("v_bfe_u32 v7, v1, 4, 1"); e("v_mul_u32_u24 v8, 20480, v7"); e("v_lshl_add_u32 v8, v4, 8, v8"); e("v_lshl_add_u32 v8, v5, 4, v8")
    e("v_lshlrev_b32 v11, 10, v7"); e("v_lshl_add_u32 v11, v4, 9, v11"); e("v_lshl_add_u32 v11, v5, 3, v11")
    e("s_lshl_b32 s30, s19, 11"); e(f"s_add_u32 s30, s30, {stin}")
    e("s_mul_i32 s24, s19, 40960"); e(f"s_add_u32 s24, s24, {xin}")
    e("v_add_u32 v41, 65536, v3"); e("v_add_u32 v42, 131072, v3")
    e("v_subrev_u32 v58, 1, v4"); e("v_not_b32 v59, v58")
    sc = SC if cnt is not None else ""
    if cnt is not None:
        def c4(): one(k, 16); e("s_lshl_b32 s48, s16, 8"); e(f"s_add_u32 s48, s48, {cnt}")
        wait_go(k, "p5", 1, c4)
    k.stamp(st0)
    def ldA(ks):
        if ks % 4 == 0 and ks > 0: e("s_add_u32 s24, s24, 4096")
        for u in range(2):
            k.vmop(f"buffer_load_dwordx4 {vr(AR+8*(ks%DA)+4*u,4)}, v8, s[12:15], s24 offen offset:{(ks%4)*1024+512*u} {sc}", f"a{ks}")
    ldA(0)
    for q in range(4): k.vmop(f"buffer_load_dwordx2 {vr(16+2*q,2)}, v11, s[12:15], s30 offen offset:{128*q} {sc}", "st")
    for ks in range(1, DA-1): ldA(ks)
    def prolog(vmode):
        k.waitvm("st")
        e("v_add_f32 v16, v16, v18"); e("v_add_f32 v17, v17, v19"); e("v_add_f32 v20, v20, v22"); e("v_add_f32 v21, v21, v23")
        e("v_add_f32 v16, v16, v20"); e("v_add_f32 v17, v17, v21")
        k.allred32("v_add_f32", 16, 18); k.allred32("v_add_f32", 17, 18)
        stats_finish(k, 16, 17, 46, 47, 18)
        split3(k, 46, 48, 18, 'm', 58)
        for jf in range(4): usum(k, 24+4*jf, 50+2*jf, 18)
        if vmode:
            e("v_lshlrev_b32 v16, 4, v4")
            for r in range(16):
                e(f"v_add_u32 v17, {(8*(r//4) + r%4)*4}, v16")
                k.dsop(f"ds_bpermute_b32 v{RS+r}, v17, v47", "rs")
            addr_v(k, img)
        else:
            addr_qk(k, img); e("v_mul_f32 v47, s59, v47")
    e("s_cmp_ge_u32 s17, 10"); e(f"s_cbranch_scc1 {nm}_qv")
    vm_save = list(k.vm)
    def mainloop(vmode):
        acc = lambda jf: vr(ACC+16*jf, 16)
        fl = k.capture(lambda: prolog(vmode))
        def rd(ks, f):
            off = ks*8192 + 1024*f; hi = off >> 16
            k.dsop(f"ds_read_b128 {vr(BF+4*f,4)}, v{(3,41,42)[hi]} offset:{off & 0xffff}", f"b{ks}_{f}")
        e("s_barrier")
        for f in range(8): rd(0, f)
        for ks in range(20):
            k.waitvm(f"a{ks}")
            if ks == 0: k.stamp(st0+1)
            if ks + 1 in wbar: e("s_barrier")
            for f in range(8):
                u, jf = f//4, f%4
                if f % 2 == 0: k.waitlg(f"b{ks}_{f+1}")
                a = vr(AR+8*(ks%DA)+4*u, 4); b = vr(BF+4*f, 4); c = acc(jf) if (ks or u) else "0"
                if vmode: e(f"v_mfma_f32_32x32x16_bf16 {acc(jf)}, {a}, {b}, {c}")
                else:     e(f"v_mfma_f32_32x32x16_bf16 {acc(jf)}, {b}, {a}, {c}")
                if ks + 1 < 20: rd(ks+1, f)
                if f == 0 and ks + DA - 1 < 20: ldA(ks + DA - 1)
                if ks >= 1: k.fill(fl, 2)
            if ks == 15:
                k.fill(fl, 1000)
                for jf in range(4):
                    if vmode: e(f"v_mfma_f32_32x32x8_bf16 {acc(jf)}, v[48:49], {vr(50+2*jf,2)}, {acc(jf)}")
                    else:     e(f"v_mfma_f32_32x32x8_bf16 {acc(jf)}, {vr(50+2*jf,2)}, v[48:49], {acc(jf)}")
        k.stamp(st0+2)
    mainloop(False)
    epi_qk(k, ACC, BF)
    k.label(f"{nm}_qv"); k.vm = vm_save; k.lg = []
    mainloop(True)
    epi_v(k, ACC, BF, RS)
    k.label(f"{nm}_fin5")

def k_qkva():
    k = KB("qkva_kernel"); e = k.e
    common(k); ids_mt(k)
    e("s_cmp_ge_u32 s17, 15"); e("s_cbranch_scc1 qkva_kernel_end")
    e("v_lshlrev_b32 v3, 4, v1")
    e("s_mul_i32 s50, s17, 163840"); e("s_add_u32 s50, s50, s45"); e(f"s_add_u32 s50, s50, {WA_I}")
    e("s_waitcnt lgkmcnt(0)")
    k.stamp(2); k.srd(12, 6, WS_END)
    e("s_cmp_ge_u32 s18, 4"); e("s_cbranch_scc1 qkva_kernel_ld")
    WB = [1, 2, 4, 6, 8, 10, 12, 14, 16, 18]
    qkva_c(k, 0, XT[0], ST[0], 0, None, WB, 3)
    k.stamp(6); k.dump(8)
    e("s_endpgm")
    k.label("qkva_kernel_ld"); k.vm = []; k.lg = []
    w = Wdma(k, 40); LA = ENV('QLA', '5')
    bars = [0] + WB
    for i, s_ in enumerate(bars):
        last = (bars[i+1] if i + 1 < len(bars) else 20) - 1
        w.go(2*(last+1) + (LA if i else 2))
        k.waitvm(f"w{2*last+1}"); e("s_barrier")
    k.label("qkva_kernel_end"); e("s_endpgm")
    return k.text(216, 216)


def k_front():
    k = KB("front_kernel"); e = k.e; nm = k.name
    R, DEP, SCRB, UT = 4, 2, 131072, 65536
    need = lambda ks: ks // 2
    slot = lambda st: (st % R) * 32768
    e("s_cmp_ge_u32 s2, 256"); e(f"s_cbranch_scc1 {nm}_end"); k.stamp(0); k.rstamp(1)
    e("s_load_dwordx4 s[60:63], s[0:1], 0"); e("s_load_dwordx2 s[6:7], s[0:1], 64")
    e("s_load_dwordx2 s[46:47], s[0:1], 16"); e("s_load_dwordx2 s[4:5], s[0:1], 56"); e("s_load_dwordx4 s[40:43], s[0:1], 32")
    e("s_and_b32 s20, s2, 7"); e("s_lshr_b32 s21, s2, 3")
    e("v_lshrrev_b32 v2, 6, v0"); e("v_and_b32 v1, 63, v0")
    e("v_readfirstlane_b32 s18, v2")
    e("s_and_b32 s39, s18, 3"); e("s_lshl_b32 s45, s39, 10")
    ids_mt(k)
    e("v_lshlrev_b32 v3, 4, v1"); e(f"v_lshlrev_b32 v9, {ENV('BST', '7')}, v1")
    e("s_lshl_b32 s22, s2, 2"); e("s_add_u32 s22, s22, s39"); e("s_mul_i32 s23, s22, 2400"); e("s_mul_i32 s22, s22, 2560")
    def kwait():
        e("s_waitcnt lgkmcnt(0)")
        k.stamp(2)
        k.srd(8, 60, S*D*2); k.srd(28, 62, D*3*D*2); k.srd(12, 6, WS_END)
    def burst():
        if ENV('BURST', '1'):
            e("s_mov_b32 exec_hi, 0xff" if ENV('BST', '7') == 6 else "s_mov_b64 exec, 0xfffff")
            e("buffer_load_dword v240, v9, s[8:11], s22 offen"); e("buffer_load_dword v241, v9, s[28:31], s23 offen")
            e("s_mov_b64 exec, -1")
    def codepf(tg):
        if ENV('CPF', '1'):
            e("s_getpc_b64 s[34:35]"); k.label(f"{nm}_pc{tg}")
            e(f"s_sub_u32 s34, s34, {nm}_pc{tg} - {nm}"); e("s_subb_u32 s35, s35, 0")
            e("v_lshlrev_b32 v242, 4, v0"); e("s_lshl_b32 s36, s21, 12"); e("v_add_u32 v242, s36, v242")
            e(f"v_and_b32 v242, 0xffffffc0, v242"); e(f"v_min_u32 v242, code_end - {nm} - 4, v242")
            e("global_load_dword v243, v242, s[34:35]")
    e("s_cmp_ge_u32 s17, 15"); e(f"s_cbranch_scc1 {nm}_ub")
    e("v_and_b32 v10, 31, v1"); e("v_lshrrev_b32 v4, 5, v1"); e("v_and_b32 v5, 15, v1"); e("v_bfe_u32 v7, v1, 4, 1")
    e("v_lshrrev_b32 v13, 2, v5"); e("v_and_b32 v6, 3, v1")
    e("v_lshl_add_u32 v14, v4, 3, v13"); e("v_lshlrev_b32 v14, 8, v14"); e("v_lshl_add_u32 v14, v7, 5, v14"); e("v_lshl_add_u32 v14, v6, 3, v14")
    e("v_add_u32 v14, 16384, v14")
    e("s_mul_i32 s48, s17, 16"); e("s_add_u32 s48, s48, s16"); e("s_lshl_b32 s48, s48, 2"); e("s_add_u32 s48, s48, s39")
    e("s_lshl_b32 s49, s39, 13"); e(f"s_add_u32 s49, s49, {SCRB}")
    e("s_mul_i32 s50, s48, 3277"); e("s_lshr_b32 s50, s50, 16"); e("s_mul_i32 s51, s50, 20"); e("s_sub_u32 s51, s48, s51")
    SF = ENV('SF', '10')
    e("s_cmp_ge_u32 s18, 4"); e(f"s_cbranch_scc1 {nm}_ld")
    kwait(); burst(); codepf("c")
    ACC, BF, AR, RS = 64, 128, 160, 200
    BA, AA = 216, 224
    SV = 192
    e("v_lshrrev_b32 v35, 4, v1")
    for r in list(range(SV, SV+5)) + list(range(36, 44)): e(f"v_mov_b32 v{r}, 0")
    e("s_mov_b32 s27, 0")
    e("s_mov_b32 s56, 0x7ff00000"); e("s_mov_b32 s57, s56"); e("s_mov_b32 s58, s56")
    e("s_cmp_ge_u32 s48, 320"); e(f"s_cbranch_scc1 {nm}_s1")
    k.srd(52, 40, D*3*D*2)
    e(f"s_mul_i32 s27, s51, {32*3840}"); e("s_mul_i32 s25, s50, 80"); e("s_add_u32 s27, s27, s25")
    for par in range(2):
        e(f"v_add_u32 v32, {4*par}, v35"); e("v_lshlrev_b32 v32, 1, v32"); e("v_xor_b32 v32, v32, v5"); e("v_min_u32 v32, 14, v32")
        e("v_mul_u32_u24 v33, 52, v32"); e("v_lshrrev_b32 v33, 8, v33"); e("v_mul_u32_u24 v33, 1200, v33"); e("v_lshl_add_u32 v33, v32, 4, v33")
        e("v_mul_u32_u24 v32, 3840, v35"); e(f"v_add_u32 v{SV+par}, v33, v32")
    e("v_and_b32 v33, 1, v35"); e("v_lshl_add_u32 v33, v33, 2, v13"); e("v_lshlrev_b32 v33, 5, v33")
    e("v_lshl_add_u32 v32, v35, 3, v13"); e("v_lshlrev_b32 v32, 8, v32"); e("v_add_u32 v32, s49, v32")
    for F in range(8):
        if F < 6:
            e("v_lshlrev_b32 v34, 3, v6")
            if F: e(f"v_add_u32 v34, {40*F}, v34")
        elif F == 6: e("v_mul_u32_u24 v34, 40, v6"); e("v_add_u32 v34, 32, v34")
        else: e("v_and_b32 v34, 1, v6"); e("v_mul_u32_u24 v34, 40, v34"); e("v_add_u32 v34, 192, v34")
        e("v_xor_b32 v34, v34, v33"); e(f"v_add_u32 v{36+F}, v34, v32")
    e("s_mul_i32 s56, s50, 163840"); e("s_lshl_b32 s57, s51, 13"); e("s_add_u32 s56, s56, s57"); e(f"s_add_u32 s56, s56, {WB_I}"); e("s_add_u32 s57, s56, 4096"); e("s_mov_b32 s58, s57")
    e(f"s_branch {nm}_s2")
    k.label(f"{nm}_s1")
    e("s_cmp_ge_u32 s50, 24"); e("s_cselect_b32 s26, s42, s46"); e("s_cselect_b32 s27, s43, s47")
    k.srd(52, 26, D*D*2)
    e("s_cmp_ge_u32 s48, 640"); e(f"s_cbranch_scc1 {nm}_s2")
    e("s_and_b32 s25, s50, 7"); e("s_mul_i32 s25, s25, 160")
    e("s_mul_i32 s27, s51, 40"); e("s_sub_u32 s44, s51, 16"); e("s_mul_i32 s44, s44, 160"); e("s_add_u32 s44, s44, 16")
    e("s_cmp_lt_u32 s51, 16"); e("s_cselect_b32 s27, s27, s44"); e("s_cselect_b32 s26, 4, 2"); e("s_cselect_b32 s44, 4, 16")
    e("s_mul_i32 s27, s27, 1280"); e("s_add_u32 s27, s27, s25")
    for i in range(5):
        e(f"v_add_u32 v32, {64*i}, v1"); e("v_mul_u32_u24 v33, 6554, v32"); e("v_lshrrev_b32 v33, 16, v33")
        e("v_lshrrev_b32 v34, s26, v33"); e("v_mul_u32_u24 v34, s44, v34"); e("v_mul_u32_u24 v34, 1280, v34")
        e("v_mul_u32_u24 v33, 1120, v33"); e("v_add_u32 v34, v34, v33"); e(f"v_lshl_add_u32 v{SV+i}, v32, 4, v34")
    e("v_lshlrev_b32 v32, 2, v35"); e("s_mov_b32 s25, 2560")
    e("s_cmp_ge_u32 s50, 24"); e(f"s_cbranch_scc1 {nm}_f3"); e("s_cmp_ge_u32 s51, 16"); e(f"s_cbranch_scc1 {nm}_f3")
    e("v_lshrrev_b32 v32, 1, v35"); e("v_lshlrev_b32 v32, 4, v32"); e("v_and_b32 v33, 1, v35"); e("v_lshl_add_u32 v32, v33, 2, v32"); e("s_mov_b32 s25, 1280")
    k.label(f"{nm}_f3")
    e("v_add_u32 v32, v32, v13"); e("v_mul_u32_u24 v32, 160, v32"); e("v_add_u32 v32, s49, v32")
    e("s_and_b32 s26, s50, 1"); e("s_lshl_b32 s44, s26, 5"); e("s_xor_b32 s26, s26, 1"); e("s_lshl_b32 s26, s26, 7")
    e("v_lshl_add_u32 v36, v6, 4, v32"); e("v_add_u32 v36, s44, v36"); e("v_add_u32 v37, s25, v36")
    e("v_lshl_add_u32 v38, v6, 3, v32"); e("v_add_u32 v38, s26, v38"); e("v_add_u32 v39, s25, v38")
    e("s_cmp_ge_u32 s50, 24"); e(f"s_cselect_b32 s56, {WOB_I-WOA_I}, 0"); e("s_and_b32 s57, s50, 7"); e("s_mul_i32 s57, s57, 102400"); e("s_add_u32 s56, s56, s57")
    e("s_mul_i32 s57, s51, 5120"); e("s_add_u32 s56, s56, s57"); e(f"s_add_u32 s56, s56, {WOA_I}"); e("s_add_u32 s57, s56, 4096")
    k.label(f"{nm}_s2")
    e("s_lshl_b32 s38, s48, 9"); e(f"s_add_u32 s38, s38, {U_B}"); e("s_cmp_ge_u32 s48, 320"); e("s_cselect_b32 s38, 0x7ff00000, s38")
    e("v_lshlrev_b32 v9, 2, v1")
    UP = lambda F: (36, 40, 44, 48, 52, 208, 212, 28)[F]
    def side_issue(tg):
        e("s_cmp_ge_u32 s48, 320"); e(f"s_cbranch_scc1 {nm}_{tg}i1")
        for i in range(8):
            e(f"s_add_u32 m0, s49, {1024*i}"); e(f"s_add_u32 s32, s27, {4*3840*i}")
            e(f"buffer_load_dwordx4 v{SV+(i>>1)%2}, s[52:55], s32 offen nt lds")
        e(f"s_branch {nm}_{tg}i2")
        k.label(f"{nm}_{tg}i1")
        e("s_cmp_ge_u32 s48, 640"); e(f"s_cbranch_scc1 {nm}_{tg}i2")
        for i in range(5):
            e(f"s_add_u32 m0, s49, {1024*i}"); e("s_nop 0")
            e(f"buffer_load_dwordx4 v{SV+i}, s[52:55], s27 offen nt lds")
        k.label(f"{nm}_{tg}i2")
    e("s_lshl_b32 s19, s16, 2"); e("s_add_u32 s19, s19, s18")
    for jf in range(4):
        e(f"v_xor_b32 v15, {jf}, v13"); e(f"v_lshl_add_u32 v{BA+jf}, v15, 6, v14"); e(f"v_add_u32 v{BA+4+jf}, 65536, v{BA+jf}")
    e("v_lshl_add_u32 v15, v2, 5, v10"); e("v_lshlrev_b32 v15, 7, v15"); e("v_bfe_u32 v12, v10, 1, 3"); e("v_xor_b32 v12, v12, v4")
    for q in range(4):
        e(f"v_xor_b32 v11, {2*q}, v12"); e(f"v_lshl_add_u32 v{AA+q}, v11, 4, v15"); e(f"v_add_u32 v{AA+4+q}, 65536, v{AA+q}")
    e("v_mul_u32_u24 v8, 20480, v7"); e("v_lshl_add_u32 v8, v4, 8, v8"); e("v_lshl_add_u32 v8, v5, 4, v8")
    e("s_mul_i32 s24, s19, 40960"); e(f"s_add_u32 s24, s24, {XT[0]}")
    e("v_subrev_u32 v58, 1, v4"); e("v_not_b32 v59, v58")
    e("s_cmp_ge_u32 s17, 10"); e(f"s_cbranch_scc1 {nm}_qv")
    def side_finish(tg):
        e("s_waitcnt vmcnt(0) lgkmcnt(0)"); k.lg = []
        e("s_cmp_ge_u32 s48, 320"); e(f"s_cbranch_scc1 {nm}_{tg}f1")
        for F in range(8):
            for t in range(2): e(f"ds_read_b64_tr_b16 {vr(176+4*F+2*t,2)}, v{36+F} offset:{1024*t}")
        e(f"s_branch {nm}_{tg}f2")
        k.label(f"{nm}_{tg}f1")
        for nf in range(5):
            for t in range(2): e(f"ds_read_b64_tr_b16 {vr(176+4*nf+2*t,2)}, v{36+t if nf < 4 else 38+t} offset:{64*(nf//2)+8*(nf%2) if nf < 4 else 0}")
        k.label(f"{nm}_{tg}f2")
        k.lg = ["side"]
    def mainloop(vmode):
        tagm = "v" if vmode else "q"
        acc = lambda jf: vr(ACC+16*jf, 16)
        fl = k.capture(lambda: addr_v(k, 0) if vmode else addr_qk(k, 0, 28))
        def rdB(ks, f):
            u, jf = f//4, f%4; sl = slot(ks//2)
            for t in range(2):
                off = sl + (32*(ks%2) + 16*u + 4*t)*256
                k.dsop(f"ds_read_b64_tr_b16 {vr(BF+4*f+2*t,2)}, v{BA+4*(sl>>16)+jf} offset:{off & 0xffff}", f"b{ks}_{f}")
        def rdA(ks):
            sl = slot(ks//2)
            for u in range(2): k.dsop(f"ds_read_b128 {vr(AR+8*(ks%2)+4*u,4)}, v{AA+4*(sl>>16)+2*(ks%2)+u} offset:{sl & 0xffff}", f"b{ks}_a")
        kb = [-1]
        def bars(ks):
            while kb[0] < need(ks): e("s_barrier"); kb[0] += 1
        bars(0); k.stamp(3)
        rdA(0)
        for f in range(8): rdB(0, f)
        for ks in range(20):
            for f in range(8):
                u, jf = f//4, f%4
                k.waitlg(f"b{ks}_{f}")
                a = vr(AR+8*(ks%2)+4*u, 4); b = vr(BF+4*f, 4); c = acc(jf) if (ks or u) else "0"
                if vmode: e(f"v_mfma_f32_32x32x16_bf16 {acc(jf)}, {a}, {b}, {c}")
                else:     e(f"v_mfma_f32_32x32x16_bf16 {acc(jf)}, {b}, {a}, {c}")
                if ks + 1 < 20:
                    if f == 0: bars(ks+1); rdA(ks+1)
                    rdB(ks+1, f)
                if ks >= 4: k.fill(fl, 1)
            e(f"s_cmp_eq_u32 s17, {ks % 15}"); e(f"s_cbranch_scc0 {nm}_x{tagm}{ks}")
            e(f"s_add_u32 s32, s24, {1024*ks}")
            for u in range(2): e(f"buffer_store_dwordx4 {vr(AR+8*(ks%2)+4*u,4)}, v8, s[12:15], s32 offen offset:{512*u} {SC}")
            k.label(f"{nm}_x{tagm}{ks}")
            if ks in (0, 1, 4, 9, 10, 14): k.stamp(7 + (0, 1, 4, 9, 10, 14).index(ks))
            if ks == ENV('SI', '1') and ENV('SIDE', '1'): side_issue(tagm)
            if ks == SF: side_finish(tagm)
            if ks == SF + 1:
                k.waitlg("side")
                for r in range(4): e(f"v_mov_b32 v{60+r}, 0x3f803f80")
                for F in range(8): e(f"v_mfma_f32_16x16x32_bf16 {vr(28+4*(F%4)+(16 if F >= 4 else 0) if False else UP(F),4)}, v[60:63], {vr(176+4*F,4)}, 0")
            if ks == SF + 2:
                for q in range(2):
                    for g in range(1, 4):
                        e(f"v_cmp_eq_u32 vcc, {g}, v35"); e(f"v_cndmask_b32 v{UP(4*q)}, v{UP(4*q)}, v{UP(4*q+g)}, vcc")
                    e(f"buffer_store_dword v{UP(4*q)}, v9, s[12:15], s38 offen offset:{256*q} {SC}")
            if SF < ks <= SF + 8 and ENV('SIDE', '1'):
                F = ks - SF - 1
                k.waitlg("side")
                e(f"buffer_store_dwordx4 {vr(176+4*F,4)}, v3, s[12:15], s{56 if F < 4 else 57 if F == 4 else 58} offen offset:{1024*(F%4)} {SC}")
        assert not fl
        k.stamp(4)
        e(f"v_lshlrev_b32 v23, 2, v10"); e(f"v_add_u32 v23, {UT}, v23"); e("s_lshl_b32 s32, s18, 8"); e("v_add_u32 v22, s32, v23")
        if vmode: e("v_lshlrev_b32 v21, 4, v4"); e(f"s_add_u32 s32, s32, {UT}"); e("v_add_u32 v21, s32, v21")
        e("s_barrier")
        e("ds_read_b32 v48, v22 offset:1024"); e("ds_read_b32 v49, v22 offset:1152")
        for jf in range(4): e(f"ds_read_b32 v{28+2*jf}, v23 offset:{256*jf}"); e(f"ds_read_b32 v{29+2*jf}, v23 offset:{256*jf+128}")
        if vmode:
            for a_ in range(4): e(f"ds_read_b128 {vr(RS+4*a_,4)}, v21 offset:{2048+32*a_}")
        else: e("ds_read_b32 v47, v22 offset:2048")
        e("s_waitcnt lgkmcnt(0)"); k.lg = []
        e("v_and_b32 v48, v48, v58"); e("v_and_b32 v49, v49, v58")
        if not vmode: e("v_mul_f32 v47, s59, v47")
        for jf in range(4):
            if vmode: e(f"v_mfma_f32_32x32x8_bf16 {acc(jf)}, v[48:49], {vr(28+2*jf,2)}, {acc(jf)}")
            else:     e(f"v_mfma_f32_32x32x8_bf16 {acc(jf)}, {vr(28+2*jf,2)}, v[48:49], {acc(jf)}")
        k.stamp(5)
    mainloop(False)
    epi_qk(k, ACC, BF)
    k.label(f"{nm}_qv"); k.lg = []
    mainloop(True)
    epi_v(k, ACC, BF, RS)
    k.label(f"{nm}_fin5")
    k.stamp(6); k.dump(13)
    e("s_endpgm")
    k.label(f"{nm}_ld"); k.vm = []; k.lg = []
    e(f"s_setprio {ENV('LPRIO', '2')}")
    e("v_lshrrev_b32 v16, 4, v1"); e("v_and_b32 v17, 3, v2")
    e("v_lshl_add_u32 v18, v17, 2, v16"); e("v_mul_u32_u24 v20, 3840, v18")
    e("v_xor_b32 v18, v13, v16"); e("v_lshl_add_u32 v20, v18, 6, v20"); e("v_lshl_add_u32 v20, v6, 4, v20")
    e("v_lshrrev_b32 v18, 3, v1"); e("v_lshl_add_u32 v19, v17, 5, v18"); e("v_and_b32 v23, 7, v1")
    for i in range(4):
        e(f"v_add_u32 v42, {8*i}, v19"); e("v_bfe_u32 v43, v42, 1, 3"); e("v_xor_b32 v43, v43, v23")
        e("v_mul_u32_u24 v42, 1280, v42"); e(f"v_lshl_add_u32 v{48+i}, v43, 4, v42")
        if i: e(f"v_subrev_u32 v{48+i}, {1024*i}, v{48+i}")
    e("s_lshl_b32 s25, s17, 8"); e("s_mul_i32 s24, s16, 163840"); e("s_lshl_b32 s26, s39, 12")
    def ld1(st, n):
        if n < 4:
            e(f"s_add_u32 m0, s45, {slot(st)+16384+4096*n}"); e(f"s_add_u32 s32, s25, {(64*st+16*n)*3840}")
            k.vmop("buffer_load_dwordx4 v20, s[28:31], s32 offen lds", f"d{st}")
        else:
            e(f"s_add_u32 m0, s26, {slot(st)}"); e(f"s_add_u32 s33, s24, {128*st}")
            k.vmop(f"buffer_load_dwordx4 v{44+n}, s[8:11], s33 offen offset:{1024*(n-4)} lds", f"d{st}")
    ORD = [0, 4, 1, 5, 2, 6, 3, 7]
    def ld(st):
        for n in ORD: ld1(st, n)
    kwait(); ld(0)
    e("v_xor_b32 v15, v17, v13"); e("v_lshl_add_u32 v40, v15, 6, v14"); e("v_add_u32 v41, 65536, v40")
    for r in range(4): e(f"v_mov_b32 v{60+r}, 0x3f803f80")
    k.srd(52, 4, 256)
    e("s_mul_i32 s27, s17, 163840"); e("s_add_u32 s27, s27, s45"); e(f"s_add_u32 s27, s27, {WA_I}")
    if ENV('LD1', '0'): ld(1)
    done = [0]
    def steps_of(kb):
        r = []
        while done[0] < 20 and need(done[0]) <= kb: r.append(done[0]); done[0] += 1
        return r
    def wa_store(q):
        e("s_lshl_b32 s32, s16, 13"); e("s_add_u32 s32, s32, s27")
        if q: e("s_add_u32 s32, s32, 131072")
        e("s_add_u32 s33, s32, 4096")
        for u in range(2): k.vmop(f"buffer_store_dwordx4 {vr(112+8*q+4*u,4)}, v3, s[12:15], s{32+u} offen {SC}")
    for kb in range(10):
        if kb == 5: k.stamp(5)
        k.waitvm(f"d{kb}")
        if kb == 5: k.stamp(6)
        e("s_barrier")
        if kb in (4, 5): k.stamp(2 if kb == 4 else 7)
        if kb == 0 and not ENV('LD1', '0'): ld(1)
        sl = slot(kb); todo = list(ORD) if kb + DEP < 10 else []
        nxt = lambda: ld1(kb + DEP, todo.pop(0)) if todo else None
        sts = steps_of(kb)
        for n_, ks in enumerate(sts):
            for u in range(2):
                for t in range(2):
                    e(f"ds_read_b64_tr_b16 {vr(136+8*n_+4*u+2*t,2)}, v{40+(sl>>16)} offset:{(sl + (32*(ks%2) + 16*u + 4*t)*256) & 0xffff}")
        nxt(); nxt()
        if kb == 4: k.stamp(3)
        e("s_waitcnt lgkmcnt(0)")
        mf = [(n_, ks, u) for n_, ks in enumerate(sts) for u in range(2)]
        for n_, ks, u in mf:
            e(f"v_mfma_f32_32x32x16_bf16 v[64:79], v[60:63], {vr(136+8*n_+4*u,4)}, {'v[64:79]' if ks or u else 0}")
            nxt()
        nxt(); nxt()
        if kb == 4: k.stamp(4)
        for n_, ks in enumerate(sts):
            e(f"s_cmp_eq_u32 s16, {ks % 16}"); e(f"s_cbranch_scc0 {nm}_w{ks}")
            for r in range(8): e(f"v_mov_b32 v{112+8*(ks//16)+r}, v{136+8*n_+r}")
            k.label(f"{nm}_w{ks}")
        assert not todo
        if kb == 8:
            e("v_mov_b32 v24, 0"); e("s_lshl_b32 s32, s16, 2"); e("s_mov_b32 s33, 0")
            k.label(f"{nm}_pl")
            e(f"buffer_load_dword v25, v24, s[52:55], s32 offen {SC}"); e("s_add_u32 s33, s33, 1"); e("s_waitcnt vmcnt(0)"); k.vm = []
            e("v_readfirstlane_b32 s34, v25"); e("s_cmp_ge_u32 s33, 0x20000"); e(f"s_cbranch_scc1 {nm}_px")
            e("s_cmp_eq_u32 s34, 0"); e(f"s_cbranch_scc1 {nm}_pl")
            k.label(f"{nm}_px")
            e("v_lshlrev_b32 v24, 3, v10"); e("s_lshl_b32 s32, s16, 10"); e("s_lshl_b32 s33, s39, 8"); e("s_add_u32 s32, s32, s33"); e(f"s_add_u32 s32, s32, {ST[0]}")
            k.vmop(f"buffer_load_dwordx2 v[44:45], v24, s[12:15], s32 offen {SC}", "rs")
            wa_store(0)
    k.waitvm("rs")
    stats_finish(k, 44, 45, 28, 29, 30)
    split3(k, 28, 32, 36, 'm'); split3(k, 64, 34, 36, 'u')
    e("v_lshlrev_b32 v24, 2, v10"); e("s_lshl_b32 s32, s39, 8"); e(f"s_add_u32 s32, s32, {UT}"); e("v_add_u32 v24, s32, v24")
    e("ds_write_b32 v24, v34"); e("ds_write_b32 v24, v35 offset:128"); e("ds_write_b32 v24, v32 offset:1024"); e("ds_write_b32 v24, v33 offset:1152"); e("ds_write_b32 v24, v29 offset:2048")
    e("s_waitcnt lgkmcnt(0)"); e("s_barrier")
    e("v_mov_b32 v44, v64")
    e("s_cmp_ge_u32 s16, 4"); e(f"s_cbranch_scc1 {nm}_le"); wa_store(1)
    e("s_cmp_eq_u32 s16, 0"); e(f"s_cbranch_scc0 {nm}_le")
    e("v_mov_b32 v45, 0"); e("v_mov_b32 v46, 0"); e("v_mov_b32 v47, 0"); e("v_lshlrev_b32 v24, 4, v10")
    e("s_lshl_b32 s32, s17, 11"); e("s_lshl_b32 s33, s39, 9"); e("s_add_u32 s32, s32, s33"); e(f"s_add_u32 s32, s32, {U_A}")
    e("s_mov_b32 exec_hi, 0"); e(f"buffer_store_dwordx4 v[44:47], v24, s[12:15], s32 offen {SC}")
    k.label(f"{nm}_le"); k.dump(8)
    e("s_endpgm")
    k.label(f"{nm}_ub"); k.vm = []; k.lg = []
    kwait()
    e("v_lshrrev_b32 v4, 3, v1"); e("v_lshl_add_u32 v4, v2, 4, v4"); e("v_mul_u32_u24 v5, 1280, v4"); e("v_and_b32 v6, 7, v1"); e("v_lshl_add_u32 v5, v6, 4, v5")
    e("s_mul_i32 s24, s16, 163840"); e("s_add_u32 s25, s24, 10240")
    for b_ in range(2):
        for i in range(10): k.vmop(f"buffer_load_dwordx4 {vr(24+40*b_+4*i,4)}, v5, s[8:11], s{24+b_} offen offset:{128*i}", f"x{b_}{i}")
    for j in range(8): e(f"v_mov_b32 v{8+j}, 0")
    e("v_mov_b32 v7, 0x3f803f80")
    e("v_lshlrev_b32 v16, 4, v0"); e("s_lshl_b32 s26, s16, 13"); e(f"s_add_u32 s26, s26, {CNT}")
    k.vmop(f"buffer_store_dwordx4 v[12:15], v16, s[12:15], s26 offen {SC}")
    for b_ in range(2):
        for i in range(10):
            k.waitvm(f"x{b_}{i}")
            for q in range(4):
                r = 24+40*b_+4*i+q
                e(f"v_dot2_f32_bf16 v{8+2*b_}, v{r}, v7, v{8+2*b_}"); e(f"v_dot2_f32_bf16 v{9+2*b_}, v{r}, v{r}, v{9+2*b_}")
    for dpp in ("quad_perm:[1,0,3,2]", "quad_perm:[2,3,0,1]", "row_half_mirror"):
        for q in range(4): e(f"v_add_f32_dpp v{8+q}, v{8+q}, v{8+q} {dpp} row_mask:0xf bank_mask:0xf")
    e("v_lshlrev_b32 v4, 3, v4"); e("s_lshl_b32 s26, s16, 10"); e(f"s_add_u32 s26, s26, {ST[0]}")
    e("v_cmp_eq_u32 vcc, 0, v6"); k.srd(52, 4, 256); e("s_mov_b64 exec, vcc")
    e(f"buffer_store_dwordx2 v[8:9], v4, s[12:15], s26 offen {SC}"); e(f"buffer_store_dwordx2 v[10:11], v4, s[12:15], s26 offen offset:64 {SC}")
    e("s_waitcnt vmcnt(0)"); e("s_barrier")
    e("s_mov_b64 exec, -1")
    e("s_cmp_ge_u32 s18, 4"); e(f"s_cbranch_scc1 {nm}_end")
    codepf("u")
    e("s_cmp_eq_u32 s18, 0"); e(f"s_cbranch_scc0 {nm}_end")
    e("v_mov_b32 v4, 0"); e("v_mov_b32 v5, 1"); e("s_lshl_b32 s26, s16, 2"); e("s_mov_b64 exec, 1")
    e(f"buffer_store_dword v5, v4, s[52:55], s26 offen {SC}")
    k.label(f"{nm}_end"); e("s_endpgm")
    return k.text(244, 244)

def k_chain(name, L):
    final = L == 1
    k = KB(name); e = k.e
    common(k)
    ph_attn(k, L)
    xa, xb, xc = XT[2*L], XT[2*L+1], XT[2]
    def a1():
        e("s_lshl_b32 s48, s17, 3"); e("s_and_b32 s49, s16, 1"); e("s_add_u32 s48, s48, s49"); e("s_lshl_b32 s48, s48, 8"); e(f"s_add_u32 s48, s48, {C1(L)}")
        e(f"v_lshlrev_b32 v{PV_+1}, 9, v1"); e("s_mov_b64 s[56:57], 15")
    e("s_cmp_ge_u32 s18, 4"); e(f"s_cbranch_scc1 {name}_ld")
    k.vm = ["e"] * (EARLY//2)
    signal(k, "s1", 0, 8, a1, EARLY//2)
    def c1():
        e("s_lshl_b32 s48, s16, 9"); e(f"s_add_u32 s48, s48, {C1(L)}")
        e(f"v_lshlrev_b32 v{PV_+1}, 8, v1"); e(f"v_mov_b32 v{PV_+2}, 16"); e("s_mov_b64 s[56:57], 3")
    proj_c(k, "p2", OT, xa, xb, ST[2*L+1], False, c1, 0, 6)
    def a2():
        e("s_lshr_b32 s48, s16, 1"); e("s_lshl_b32 s48, s48, 9"); e(f"s_add_u32 s48, s48, {C2(L)}")
        e(f"v_mul_u32_u24 v{PV_+1}, 768, v1"); e("s_bitcmp1_b32 s16, 0"); e("s_cselect_b64 s[56:57], 3, 1")
    signal(k, "s2", 1, 4, a2)
    qkvb_c(k, L, xb, ST[2*L+1], 9)
    def a3(): one(k, 0); e("s_lshl_b32 s48, s16, 8"); e(f"s_add_u32 s48, s48, {C3(L)}")
    signal(k, "s3", 0, 4, a3)
    def c3(): one(k, 16); e("s_lshr_b32 s48, s16, 1"); e("s_lshl_b32 s48, s48, 8"); e(f"s_add_u32 s48, s48, {C3(L)}")
    if final:
        proj_c(k, "p4", OBT, xb, None, None, True, c3, 0, 12)
    else:
        S_ = k.stamp
        proj_c(k, "p4", OBT, xb, xc, ST[2], False, c3, 0, 12)
        def a4(): one(k, 0); e("s_lshr_b32 s48, s16, 1"); e("s_lshl_b32 s48, s48, 8"); e(f"s_add_u32 s48, s48, {C4(L)}")
        signal(k, "s4", 1, 4, a4)
        ids_mt(k)
        e("s_cmp_ge_u32 s17, 15"); e(f"s_cbranch_scc1 {name}_dmp")
        if os.environ.get("FOC") == "p5": st5 = 2
        else: k.stamp = lambda i: None; st5 = 0
        qkva_c(k, L, xc, ST[2], 1, C4(L), [7], st5)
        k.stamp = S_
    k.label(f"{name}_dmp")
    k.dump(15)
    e("s_endpgm")
    k.label(f"{name}_ld"); k.vm = []; k.lg = []
    e(f"s_setprio {ENV('LPRIO', '2')}")
    w = proj_l(k, WOA_I, WB_I, OT, a1, EARLY)
    qkvb_l(k, L, xb, ST[2*L+1], w)
    w = proj_l(k, WOB_I, None if final else WA_I, OBT)
    if not final:
        ids_mt(k)
        e("s_cmp_ge_u32 s17, 15"); e(f"s_cbranch_scc1 {name}_end")
        atouch_pre(k, xc)
        e("s_barrier")
        if ENV('ATOUCH', '1'): e("buffer_load_dword v20, v21, s[12:15], s51 offen")
        w.one(39); e("s_waitcnt vmcnt(0)"); e("s_barrier")
    k.dump(6)
    k.label(f"{name}_end"); e("s_endpgm")
    k.tail()
    return k.text(244, 244)

def build():
    L = [("front_kernel", 256, 512, 163840), ("chaina_kernel", 256, 512, 163840), ("chainb_kernel", 256, 512, 163840)]
    hdr = open("cdna_kernels/" + NAME + ".s.ref").read().split("; Override launch")[0]
    out = hdr
    for n, g, b, lds in L: out += f"; @launch kernel={n} grid=({g},1,1) block=({b},1,1) lds={lds}\n"
    out += '.amdgcn_target "amdgcn-amd-amdhsa--gfx950"\n'
    out += k_front() + k_chain("chaina_kernel", 0) + k_chain("chainb_kernel", 1)
    out += ".text\ncode_end:\n"
    return out

if __name__ == "__main__":
    dst = sys.argv[1] if len(sys.argv) > 1 else "cdna_kernels/" + NAME + ".s"
    open(dst, "w").write(build())
    print("wrote", dst)
```

```python
import sys, math
from lint import lint, fix

NAME = "interleave_layers__softmax_full_mha__sliding_local_dilated__prompt"
S, D, H, DH = 2048, 640, 32, 20
XS = S*D*2
IMG = H*64*2560
QI = H*64*1280
OT = 0; OBT = XS; XM = 2*XS; XI = 3*XS
STM = 4*XS; STI = STM + S*64
QIMG = STI + S*64; KVIMG = QIMG + QI
CNT = KVIMG + IMG
C1 = CNT; C2 = C1 + 64*256; C3 = C2 + 34*256; C4 = C3 + 16*256; C0 = C4 + 16*256
LS = CNT + 65536
U_A = 2*LS
U_B = U_A + 32768
WA_I = U_B + 163840
WOA_I = WA_I + 15*163840
WB_I = WOA_I + 819200
WOB_I = WB_I + 16*163840
STAMPS = WOB_I + 819200
WS_END = STAMPS + 16*262144
import os
STAMP = int(os.environ.get("STAMP", "0"))
ATTN_WAVES = 8
AV = os.environ.get("AV", "")
CSCALE = (DH ** -0.5) * math.log2(math.e)
import struct
def fbits(x): return "0x%08x" % struct.unpack("<I", struct.pack("<f", x))[0]

FM = [(0,16),(32,48),(80,96),(112,128),(64,144)]
def FX(ks, t):
    return 160*(ks//5) + FM[ks%5][t]

class KB:
    def __init__(s, name):
        s.name = name; s.L = []; s.vm = []; s.lg = []; s.cap = None
    def e(s, line):
        if s.cap is not None: s.cap.append(('e', line, None))
        else: s.L.append("    " + line)
    def capture(s, fn):
        s.cap = []; fn(); c = s.cap; s.cap = None
        return [x for x in c if not (x[0] == 'e' and x[1].startswith('s_nop'))]
    def fill(s, lst, n=1):
        for _ in range(n):
            if not lst: return
            kind, a, b = lst.pop(0)
            if kind == 'e':
                s.e(a)
                if a.startswith('s_cmp'):
                    while lst and lst[0][0] == 'e' and lst[0][1].startswith('s_cselect'): s.e(lst.pop(0)[1])
            elif kind == 'ds': s.dsop(a, b)
            elif kind == 'wvm': s.waitvm(a)
            elif kind == 'wlg': s.waitlg(a)
    def c(s, txt): s.L.append("    ; " + txt)
    def label(s, l): s.L.append(l + ":")
    def vmop(s, line, tag=None): s.e(line); s.vm.append(tag); assert len(s.vm) <= 63, (s.name, len(s.vm))
    def dsop(s, line, tag=None):
        if s.cap is not None: s.cap.append(('ds', line, tag)); return
        s.e(line); s.lg.append(tag)
    def _n(s, lst, tag):
        idx = max(i for i, t in enumerate(lst) if t == tag)
        return idx
    def waitvm(s, tag):
        if s.cap is not None: s.cap.append(('wvm', tag, None)); return
        if tag not in s.vm: return
        i = s._n(s.vm, tag); n = len(s.vm) - 1 - i
        s.e(f"s_waitcnt vmcnt({n})"); s.vm = s.vm[i+1:]
    def waitlg(s, tag):
        if s.cap is not None: s.cap.append(('wlg', tag, None)); return
        if tag not in s.lg: return
        i = s._n(s.lg, tag); n = len(s.lg) - 1 - i
        if n > 15: n = 15; i = len(s.lg) - 1 - n
        s.e(f"s_waitcnt lgkmcnt({n})"); s.lg = s.lg[i+1:]
    def waitall(s):
        s.e("s_waitcnt vmcnt(0) lgkmcnt(0)"); s.vm = []; s.lg = []
    def srd(s, r, base, nbytes):
        s.e(f"s_mov_b32 s{r}, s{base}")
        s.e(f"s_and_b32 s{r+1}, s{base+1}, 0xffff")
        s.e(f"s_mov_b32 s{r+2}, {nbytes}")
        s.e(f"s_mov_b32 s{r+3}, 0x20000")
    def stamp(s, i):
        if not STAMP: return
        op = "s_memrealtime" if os.environ.get("RT") else "s_memtime"
        s.e(f"{op} s[{64+2*i}:{65+2*i}]" if i < 10 else f"{op} s[{72+2*i}:{73+2*i}]")
    def rstamp(s, i):
        if not STAMP: return
        s.e(f"s_memrealtime s[{64+2*i}:{65+2*i}]")
    def dump(s, n=8, slot="0", wave="s18"):
        if not STAMP: return
        e = s.e
        e("s_memrealtime s[86:87]"); e("s_waitcnt lgkmcnt(0)")
        e("s_mov_b64 exec, 1")
        e(f"s_lshl_b32 s84, {slot}, 18")
        e("s_lshl_b32 s85, s2, 3"); e(f"s_add_u32 s85, s85, {wave}"); e("s_lshl_b32 s85, s85, 6"); e(f"s_add_u32 s85, s85, {STAMPS}"); e("s_add_u32 s85, s85, s84")
        e("v_mov_b32 v244, 0")
        for i in range(n):
            e(f"v_mov_b32 v245, s{64+2*i if i < 10 else 72+2*i}")
            e(f"buffer_store_dword v245, v244, s[12:15], s85 offen offset:{4*i}")
        e("v_mov_b32 v245, s86"); e("buffer_store_dword v245, v244, s[12:15], s85 offen offset:60")
        e("s_mov_b64 exec, -1")
    def text(s, vgpr, accum, sgpr=102):
        s.L, added = fix(s.L)
        if os.environ.get("V"): print(s.name, "auto nops:", added, "lines:", len(s.L))
        out = [".text", f".globl {s.name}", ".p2align 8", f".type {s.name},@function", f"{s.name}:"]
        out += s.L
        out += ['.section .rodata,"a"', ".p2align 6", f".amdhsa_kernel {s.name}",
                f"  .amdhsa_next_free_vgpr {vgpr}", f"  .amdhsa_next_free_sgpr {sgpr}", f"  .amdhsa_accum_offset {accum}",
                "  .amdhsa_group_segment_fixed_size 0", "  .amdhsa_kernarg_size 72", "  .amdhsa_user_sgpr_count 2",
                "  .amdhsa_user_sgpr_kernarg_segment_ptr 1", "  .amdhsa_system_sgpr_workgroup_id_x 1", ".end_amdhsa_kernel"]
        nb = lint(s.L, s.name)
        assert nb == 0, f"{nb} hazards in {s.name}"
        return "\n".join(out) + "\n"
    def allred32(s, op, v, t):
        s.e(f"v_mov_b32 v{t}, v{v}"); s.e("s_nop 1")
        s.e(f"v_permlane32_swap_b32 v{v}, v{t}"); s.e("s_nop 1")
        s.e(f"{op} v{v}, v{v}, v{t}")
    def allred16(s, op, v, t):
        s.e(f"v_mov_b32 v{t}, v{v}"); s.e("s_nop 1")
        s.e(f"v_permlane16_swap_b32 v{v}, v{t}"); s.e("s_nop 1")
        s.e(f"{op} v{v}, v{v}, v{t}")

def vr(a, n): return f"v[{a}:{a+n-1}]" if n > 1 else f"v{a}"
def ar(a, n): return f"a[{a}:{a+n-1}]" if n > 1 else f"a{a}"

def stats_finish(k, s1, s2, mean, rstd, t):
    e = k.e
    e(f"v_mul_f32 v{mean}, {fbits(1.0/D)}, v{s1}")
    e(f"v_mul_f32 v{t}, {fbits(1.0/D)}, v{s2}")
    e(f"v_fma_f32 v{t}, -v{mean}, v{mean}, v{t}")
    e(f"v_max_f32 v{t}, 0, v{t}")
    e(f"v_add_f32 v{t}, {fbits(1e-5)}, v{t}")
    e(f"v_rsq_f32 v{rstd}, v{t}")
    e("s_nop 0")

def split3(k, src, d, t, kind, maskv=None):
    e = k.e
    if kind == 'm':
        e(f"v_xor_b32 v{t+1}, 0x80000000, v{src}"); src = t+1
    e(f"v_and_b32 v{t}, 0xffff0000, v{src}")
    e(f"v_sub_f32 v{t+2}, v{src}, v{t}")
    if kind == 'u':
        e(f"v_cvt_pk_bf16_f32 v{d}, v{t}, v{t+2}")
        e(f"v_lshrrev_b32 v{d+1}, 16, v{t}")
    else:
        e(f"v_cvt_pk_bf16_f32 v{d}, v{t}, v{t}")
        e(f"v_cvt_pk_bf16_f32 v{d+1}, v{t+2}, 0")
    if maskv is not None:
        e(f"v_and_b32 v{d}, v{d}, v{maskv}"); e(f"v_and_b32 v{d+1}, v{d+1}, v{maskv}")

SC = "sc1"
EARLY = int(os.environ.get('EARLY', '6'))
ENV = lambda n, d: int(os.environ.get(n, d))

def ids_mt(k):
    k.e("s_lshl_b32 s22, s20, 1"); k.e("s_and_b32 s23, s21, 1"); k.e("s_add_u32 s16, s22, s23"); k.e("s_lshr_b32 s17, s21, 1")
def ids_rt(k):
    k.e("s_lshl_b32 s22, s20, 2"); k.e("s_and_b32 s23, s21, 3"); k.e("s_add_u32 s16, s22, s23"); k.e("s_lshr_b32 s17, s21, 2")

LW = 163824
PV_ = 240
def lw_init(k):
    e = k.e
    e(f"v_mov_b32 v{PV_+3}, {LW}")
    for i in range(3): e(f"v_mov_b32 v{PV_+i}, 0")
    e(f"ds_write_b96 v{PV_+3}, v[{PV_}:{PV_+2}]"); e(f"ds_write_b32 v{PV_+3}, v{PV_} offset:12")

def lwc_init(k):
    k.e(f"v_mov_b32 v{PV_+3}, {LW-8}"); k.e(f"v_mov_b32 v{PV_}, 0"); k.e(f"v_mov_b32 v{PV_+1}, 0")
    k.e(f"ds_write_b64 v{PV_+3}, v[{PV_}:{PV_+1}]"); k.e("s_waitcnt lgkmcnt(0)")

def signal(k, tag, word, nw, addr_code, younger=0, srd="s[8:11]"):
    e = k.e
    addr_code()
    e(f"v_mov_b32 v{PV_+3}, {LW-8}"); e(f"v_mov_b32 v{PV_}, 1")
    e("s_mov_b64 exec, 1")
    assert younger == 0
    e("s_waitcnt vmcnt(0)"); k.vm = []
    if tag == os.environ.get("FOC"): k.stamp(2)
    e(f"ds_add_rtn_u32 v{PV_+2}, v{PV_+3}, v{PV_} offset:{8*word+8}")
    e("s_waitcnt lgkmcnt(0)"); k.lg = []
    e(f"v_readfirstlane_b32 s49, v{PV_+2}")
    e("s_mov_b64 exec, s[56:57]")
    e(f"s_cmp_eq_u32 s49, {nw-1}"); e(f"s_cbranch_scc0 {k.name}_{tag}_sg")
    e(f"buffer_atomic_add v{PV_}, v{PV_+1}, {srd}, s48 offen {SC}")
    if os.environ.get("FOC2") == tag: k.stamp(4)
    k.label(f"{k.name}_{tag}_sg")
    e("s_mov_b64 exec, -1")

def wait_go(k, tag, word, poll_code):
    e = k.e; nm = f"{k.name}_{tag}"
    e(f"v_mov_b32 v{PV_+3}, {LW-8}"); e("s_mov_b32 s49, 0")
    if poll_code:
        e("s_cmp_eq_u32 s18, 0"); e(f"s_cbranch_scc0 {nm}_sp")
        poll_code()
        e("s_mov_b64 exec, s[56:57]")
        if os.environ.get("FOC") == "g" + tag: k.stamp(2)
        k.label(f"{nm}_pl")
        e(f"v_mov_b32 v{PV_}, 0")
        e(f"buffer_atomic_add v{PV_}, v{PV_+1}, s[8:11], s48 offen sc0 sc1")
        e("s_add_u32 s49, s49, 1")
        e("s_waitcnt vmcnt(0)")
        e(f"v_cmp_ge_u32 vcc, v{PV_}, v{PV_+2}")
        e("s_cmp_ge_u32 s49, 0x20000"); e(f"s_cbranch_scc1 {nm}_px")
        e("s_cmp_eq_u64 vcc, exec"); e(f"s_cbranch_scc0 {nm}_pl")
        k.label(f"{nm}_px")
        if os.environ.get("FOC") == "g" + tag: e("s_add_u32 s70, s64, s49")
        e("s_mov_b64 exec, 1"); e(f"v_mov_b32 v{PV_}, 1")
        e(f"ds_write_b32 v{PV_+3}, v{PV_} offset:{8*word+12}")
        e(f"s_branch {nm}_go")
    k.label(f"{nm}_sp")
    e("s_sleep 1")
    e(f"ds_read_b32 v{PV_}, v{PV_+3} offset:{8*word+12}")
    e("s_add_u32 s49, s49, 1")
    e("s_waitcnt lgkmcnt(0)")
    e(f"v_readfirstlane_b32 s44, v{PV_}")
    e("s_cmp_ge_u32 s49, 0x400000"); e(f"s_cbranch_scc1 {nm}_go")
    e("s_cmp_eq_u32 s44, 0"); e(f"s_cbranch_scc1 {nm}_sp")
    k.label(f"{nm}_go")
    e("s_mov_b64 exec, -1")

class Wdma:
    def __init__(s, k, n, base=50, tag="w"): s.k = k; s.n = n; s.i = 0; s.base = base; s.tag = tag
    def one(s, i):
        s.k.e(f"s_add_u32 m0, s45, {4096*i}"); s.k.e(f"s_add_u32 s32, s{s.base}, {4096*i}")
        s.k.vmop(f"buffer_load_dwordx4 v3, s[12:15], s32 offen {SC} lds", f"{s.tag}{i}")
    def go(s, upto):
        while s.i < min(upto, s.n): s.one(s.i); s.i += 1
    def rng(s, a, b, thr=0):
        for i in range(a, b):
            s.one(i)
            if thr and len(s.k.vm) >= thr: s.k.e(f"s_waitcnt vmcnt({thr-1})"); s.k.vm = s.k.vm[len(s.k.vm)-thr+1:]

def ph_attn(k):
    e = k.e; nm = k.name
    KA, KT, VA = 4, 5, 6
    Q = [8, 14]; KF = [24, 32]; VF = [40, 48]; SS = [56, 72]; P = 88; O = [96, 112]; PF = 128
    SCR = 128000; TOP = 128000
    ids_rt(k)
    e("v_and_b32 v3, 31, v1"); e("v_lshrrev_b32 v7, 5, v1")
    e("v_lshlrev_b32 v22, 4, v1"); e("v_lshlrev_b32 v23, 3, v3")
    e("s_mul_i32 s19, s16, 163840")
    e("s_lshr_b32 s41, s18, 2")
    e("s_lshl_b32 s23, s17, 3"); e("s_lshl_b32 s22, s39, 1"); e("s_add_u32 s23, s23, s22")
    e("s_add_u32 s23, s23, s41")
    e("s_lshr_b32 s22, s19, 1"); e(f"s_add_u32 s22, s22, {QIMG}")
    e("s_mul_i32 s24, s23, 1280"); e("s_add_u32 s24, s24, s22"); e("s_xor_b32 s40, s23, 1"); e("s_mul_i32 s40, s40, 1280"); e("s_add_u32 s40, s40, s22")
    e("s_mul_i32 s42, s41, 2560"); e(f"s_add_u32 s42, s42, {TOP}")
    e("s_lshl_b32 s25, s18, 10")
    e(f"s_add_u32 s26, s19, {KVIMG}")
    rnd = [0]
    def dma():
        i = rnd[0]; rnd[0] += 1
        if i == 4:
            e("s_cmp_lt_u32 s18, 3"); e("s_cselect_b32 s27, 163840, 0"); e("s_add_u32 s27, s27, s25"); e("s_sub_u32 m0, s27, 3072")
        else: e(f"s_add_u32 m0, s25, {(TOP + 8192*i) if i < 4 else 8192*i - 35840}")
        e("s_add_u32 s27, s26, m0")
        k.vmop(f"buffer_load_dwordx4 v22, s[8:11], s27 offen {SC} lds", f"i{i}")
    e(f"v_add_u32 v{KA}, s42, v22")
    e(f"v_add_u32 v{KT}, s42, v23"); e(f"v_add_u32 v{KT}, 1024, v{KT}")
    e("v_mul_u32_u24 v21, 20, v7"); e("v_add_u32 v21, v21, v3"); e("v_lshlrev_b32 v21, 4, v21")
    e("v_add_u32 v21, 1280, v21"); e(f"v_add_u32 v{VA}, s42, v21")
    e("s_mov_b32 s28, 0x000fffff"); e("s_mov_b32 s29, 0x000fffff")
    e("v_cmp_eq_u32 vcc, 20, v3"); e("v_mov_b32 v20, 0x3f803f80"); e("s_nop 0")
    e("v_cndmask_b32 v20, 0, v20, vcc")
    for r in range(16): e(f"v_mov_b32 v{VF[0]+r}, v20")
    for r in range(32): e(f"v_mov_b32 v{O[0]+r}, 0")
    for r in range(4): e(f"v_mov_b32 v{P+4+r}, 0")
    e("v_subrev_u32 v30, 1, v7")
    e("s_lshl_b32 s43, s21, 3"); e("s_add_u32 s43, s43, s18"); e("s_mul_i32 s43, s43, 14336"); e(f"s_add_u32 s43, s43, {WOA_I}")
    e("s_mul_i32 s32, s23, 40960"); e(f"s_add_u32 s32, s32, {OT}")
    e("s_lshr_b32 s51, s16, 1"); e("s_lshl_b32 s51, s51, 10"); e("s_and_b32 s34, s16, 1"); e("s_lshl_b32 s34, s34, 9")
    e("s_add_u32 s51, s51, s34"); e("s_add_u32 s51, s51, s32")
    e("s_lshr_b32 s52, s16, 3"); e("s_add_u32 s52, s52, 16"); e("s_lshl_b32 s52, s52, 10"); e("s_add_u32 s52, s52, s32")
    e("s_and_b32 s35, s16, 3"); e("s_lshl_b32 s35, s35, 8"); e("s_add_u32 s52, s52, s35")
    e("s_bfe_u32 s35, s16, 0x10002"); e("s_lshl_b32 s35, s35, 3"); e("s_add_u32 s52, s52, s35")
    e("v_lshrrev_b32 v38, 4, v3"); e("v_mul_u32_u24 v38, 20480, v38"); e("v_and_b32 v39, 15, v3")
    e("v_lshl_add_u32 v38, v39, 4, v38"); e("v_lshl_add_u32 v39, v7, 8, v38")
    e("s_lshl_b32 s59, s18, 10"); e("s_mul_i32 s50, s17, 102400"); e("s_add_u32 s50, s50, s59"); e(f"s_add_u32 s50, s50, {WOA_I}")
    e("s_mul_i32 s32, s18, 3072"); e("s_xor_b32 s33, s18, 4"); e("s_mul_i32 s33, s33, 3072")
    e(f"v_add_u32 v132, {SCR}, v22"); e("v_add_u32 v133, s33, v132"); e("v_add_u32 v132, s32, v132")
    def c0(nl):
        e("s_lshl_b32 s48, s17, 8"); e(f"s_add_u32 s48, s48, {C0}"); e(f"v_mov_b32 v{PV_+2}, 16")
        e("s_mul_i32 s32, s16, 20"); e("s_add_u32 s33, s32, 19"); e("s_lshr_b32 s32, s32, 7"); e("s_lshr_b32 s33, s33, 7"); e("s_sub_u32 s33, s33, s32")
        e(f"v_lshrrev_b32 v{PV_+1}, 1, v1"); e(f"v_mul_u32_u24 v{PV_+1}, 5, v{PV_+1}"); e(f"v_and_b32 v{PV_}, s33, v1"); e(f"v_add3_u32 v{PV_+1}, v{PV_+1}, v{PV_}, s32")
        e(f"v_lshlrev_b32 v{PV_+1}, 11, v{PV_+1}"); e("s_mov_b64 s[56:57], 63")
    wait_go(k, "t", -1, lambda: c0(6))
    k.stamp(2)
    dma()
    for x in range(2):
        k.vmop(f"buffer_load_dwordx4 {vr(Q[x],4)}, v22, s[8:11], s{(24,40)[x]} offen {SC}", "q")
        k.vmop(f"buffer_load_dwordx2 {vr(Q[x]+4,2)}, v23, s[8:11], s{(24,40)[x]} offen offset:1024 {SC}", "q")
    for _ in range(3): dma()
    e("v_lshlrev_b32 v134, 11, v1"); e("s_lshl_b32 s44, s17, 8"); e(f"s_add_u32 s44, s44, {C0}")
    k.waitvm("q")
    for x in range(2):
        e(f"v_and_b32 v{Q[x]+4}, v{Q[x]+4}, v30"); e(f"v_and_b32 v{Q[x]+5}, v{Q[x]+5}, v30")
    k.waitvm("i1"); e("s_barrier"); k.stamp(3)
    def rdK(buf, off):
        off *= 2
        e(f"ds_read_b128 {vr(KF[buf],4)}, v{KA} offset:{off}")
        e(f"ds_read_b64 {vr(KF[buf]+4,2)}, v{KT} offset:{off}")
    def rdV(buf, off):
        off *= 2
        e("s_mov_b64 exec, s[28:29]")
        e(f"ds_read_b128 {vr(VF[buf],4)}, v{VA} offset:{off}")
        e(f"ds_read_b128 {vr(VF[buf]+4,4)}, v{VA} offset:{off+640}")
        e("s_mov_b64 exec, -1")
    def qkm(x, kb): e(f"v_mfma_f32_32x32x16_bf16 {vr(SS[x],16)}, {vr(KF[kb],4)}, {vr(Q[x],4)}, 0")
    def qkt(x, kb): e(f"v_mfma_f32_32x32x8_bf16 {vr(SS[x],16)}, {vr(KF[kb]+4,2)}, {vr(Q[x]+4,2)}, {vr(SS[x],16)}")
    def pv(x, vb, u): e(f"v_mfma_f32_32x32x16_bf16 {vr(O[x],16)}, {vr(VF[vb]+4*u,4)}, {vr(P+4*u,4)}, {vr(O[x],16)}")
    def unit(x, t, extra=None, peel=False):
        p = t % 2; s = SS[x]
        ex = lambda i: e(f"v_exp_f32 v{s+i}, v{s+i}")
        cv = lambda i: e(f"v_cvt_pk_bf16_f32 v{P+i}, v{s+2*i}, v{s+2*i+1}")
        kb = p if x == 0 else 1-p
        if x == 1: e("s_waitcnt lgkmcnt(2)")
        qkm(1-x, kb)
        if x == 1:
            if peel and t == 5:
                for r in (KA, KT): e(f"v_subrev_u32 v{r}, {TOP}, v{r}")
            rdK(p, (t+2-(7 if peel and t >= 5 else 0))*2560)
        for i in range(0, 4): ex(i)
        if x == 0:
            pv(1, 1-p, 1)
            if peel and t == 6: e(f"v_subrev_u32 v{VA}, {TOP}, v{VA}")
            rdV(1-p, (t+1-(7 if peel and t >= 6 else 0))*2560)
        else:
            pv(0, p, 1)
        if extra: extra()
        for i in range(4, 8): ex(i)
        for i in range(0, 4): cv(i)
        qkt(1-x, kb)
        for i in range(8, 12): ex(i)
        if x == 0: e("s_waitcnt lgkmcnt(4)")
        pv(x, p, 0)
        for i in range(12, 16): ex(i)
        for i in range(4, 8): cv(i)
    rdK(0, 0); rdV(0, 0); rdK(1, 2560)
    e("s_waitcnt lgkmcnt(4)")
    qkm(0, 0); e("s_nop 10"); qkt(0, 0); e("s_nop 10")
    SYN = {1: 3, 4: 7, 7: 19}; PEEL = 8
    for t in range(PEEL):
        if t in SYN: k.waitvm(f"i{SYN[t]}"); e("s_barrier")
        if t == 7:
            e("s_cmp_ge_u32 s18, 4"); e(f"s_cbranch_scc0 {nm}_np"); e("s_setprio 1"); k.label(f"{nm}_np")
        d2 = lambda: (dma(), dma())
        unit(0, t, d2 if rnd[0] < 20 else (lambda: lw_init(k)) if t == 7 else None, True)
        unit(1, t, d2 if rnd[0] < 20 else None, True)
    for r in (KA, KT, VA): e(f"v_add_u32 v{r}, {(PEEL-7)*5120}, v{r}")
    e("s_mov_b32 s31, 0"); e("s_cmp_eq_u32 s18, 0"); e("s_cselect_b32 s55, 1, 99"); e("v_mov_b32 v135, 16")
    if os.environ.get("FOC") == "at": k.stamp(2)
    def pref():
        e(f"buffer_load_dwordx4 {vr(PF,4)}, v22, s[12:15], s43 offen {SC}"); e("s_add_u32 s43, s43, 1024")
    e(".p2align 3")
    body_start = len(k.L)
    k.label(f"{nm}_aloop")
    NT = 4; NIT = (32 - PEEL)//NT; SW = ENV('SW', '19')
    for t in range(NT):
        def sw():
            e(f"s_cmp_eq_u32 s31, {SW//NT}"); e(f"s_cbranch_scc0 {nm}_l1"); e("s_setprio 0"); k.label(f"{nm}_l1")
        def late():
            e("s_cmp_eq_u32 s31, s55"); e(f"s_cbranch_scc0 {nm}_l2")
            e("s_mov_b64 exec, 0x7fff"); e("v_mov_b32 v135, 0"); e("buffer_atomic_add v135, v134, s[8:11], s44 offen sc0 sc1"); e("s_mov_b64 exec, -1")
            k.label(f"{nm}_l2")
        unit(0, t, pref if t != 3 else late); unit(1, t, sw if t == SW % NT else None)
    for r in (KA, KT, VA): e(f"v_add_u32 v{r}, {NT*5120}, v{r}")
    e("s_add_u32 s31, s31, 1")
    e(f"s_cmp_lt_u32 s31, {NIT}"); e(f"s_cbranch_scc1 {nm}_aloop")
    body = k.L[body_start:]
    assert lint(body + body, "attn_loop2") == 0
    pv(1, 1, 1); k.stamp(4)
    e("s_mov_b32 s30, 0")
    e(f"s_mov_b32 s32, {fbits(2.0**-60)}"); e(f"s_mov_b32 s33, {fbits(2.0**100)}"); e(f"s_mov_b32 s34, {fbits(2.0**126)}")
    e("s_nop 7")
    for i in range(3): e(f"ds_write_b128 v132, {vr(O[1]+4*i,4)} offset:{1024*i}")
    e("s_waitcnt vmcnt(0)"); e("v_cmp_gt_u32 vcc, 16, v135"); e("s_and_b32 s36, vcc_lo, 0x7fff"); e(f"s_cbranch_scc1 {nm}_late")
    k.label(f"{nm}_lok")
    e("s_waitcnt lgkmcnt(0)"); e("s_barrier")
    for i in (2, 0, 1): e(f"ds_read_b128 {vr(SS[0]+4*i,4)}, v133 offset:{1024*i}")
    OO = O[0]
    e("s_waitcnt lgkmcnt(2)")
    for r in range(8, 12): e(f"v_add_f32 v{OO+r}, v{OO+r}, v{SS[0]+r}")
    e("s_waitcnt lgkmcnt(0)")
    for r in range(8): e(f"v_add_f32 v{OO+r}, v{OO+r}, v{SS[0]+r}")
    k.label(f"{nm}_chk")
    e(f"v_mov_b32 v30, v{OO+8}"); e(f"v_mov_b32 v31, v{OO+8}")
    e(f"v_max3_f32 v28, abs(v{OO}), abs(v{OO+1}), abs(v{OO+2})")
    e("v_permlane32_swap_b32 v30, v31")
    for r in range(3, 11, 2): e(f"v_max3_f32 v28, abs(v{OO+r}), abs(v{OO+r+1}), v28")
    e(f"v_max_f32 v28, abs(v{OO+11}), v28")
    e("v_cmp_le_f32 vcc, s32, v31"); e("v_cmp_ge_f32 s[36:37], s33, v31"); e("v_cmp_gt_f32 s[40:41], s34, v28")
    e("v_rcp_f32 v31, v31")
    e("s_and_b64 s[36:37], s[36:37], vcc"); e("s_and_b64 s[36:37], s[36:37], s[40:41]")
    e("s_cmp_eq_u64 s[36:37], -1"); e(f"s_cbranch_scc0 {nm}_slow")
    def slowpath():
        k.label(f"{nm}_late")
        e("s_mov_b32 s49, 0"); e("s_mov_b64 exec, 0x7fff")
        k.label(f"{nm}_late1")
        e("v_mov_b32 v135, 0"); e("buffer_atomic_add v135, v134, s[8:11], s44 offen sc0 sc1"); e("s_add_u32 s49, s49, 1"); e("s_waitcnt vmcnt(0)")
        e("v_cmp_gt_u32 vcc, 16, v135"); e("s_cmp_ge_u32 s49, 0x20000"); e("s_cselect_b32 s36, 0, vcc_lo"); e("s_cmp_lg_u32 s36, 0"); e(f"s_cbranch_scc1 {nm}_late1")
        e("s_mov_b64 exec, -1"); e(f"s_branch {nm}_lok")
        k.label(f"{nm}_slow")
        e("s_cmp_eq_u32 s30, 0"); e(f"s_cbranch_scc0 {nm}_fin")
        e("s_mov_b32 s30, 1")
        e("s_waitcnt vmcnt(0)")
        NM = O[1]
        e("v_mov_b32 v32, 0xff800000")
        def slowqk(c):
            e(f"buffer_load_dwordx4 {vr(KF[0],4)}, v22, s[8:11], s27 offen {SC}")
            e(f"buffer_load_dwordx2 {vr(KF[0]+4,2)}, v23, s[8:11], s27 offen offset:1024 {SC}")
            e("s_waitcnt vmcnt(0)")
            e(f"v_mfma_f32_32x32x16_bf16 {vr(SS[0],16)}, {vr(KF[0],4)}, {vr(Q[0],4)}, {c}"); e("s_nop 10")
            e(f"v_mfma_f32_32x32x8_bf16 {vr(SS[0],16)}, {vr(KF[0]+4,2)}, {vr(Q[0]+4,2)}, {vr(SS[0],16)}"); e("s_nop 12")
        e(f"s_add_u32 s27, s19, {KVIMG}"); e("s_mov_b32 s31, 0")
        k.label(f"{nm}_mx")
        slowqk("0")
        for r in range(0, 16, 2): e(f"v_max3_f32 v32, v{SS[0]+r}, v{SS[0]+r+1}, v32")
        e("s_add_u32 s27, s27, 2560")
        e("s_add_u32 s31, s31, 1"); e("s_cmp_lt_u32 s31, 64"); e(f"s_cbranch_scc1 {nm}_mx")
        k.allred32("v_max_f32", 32, 33)
        e("v_xor_b32 v32, 0x80000000, v32")
        for r in range(16): e(f"v_mov_b32 v{NM+r}, v32")
        for r in range(16): e(f"v_mov_b32 v{OO+r}, 0")
        for r in range(8): e(f"v_mov_b32 v{VF[0]+r}, v20")
        e(f"s_add_u32 s27, s19, {KVIMG}"); e("s_mov_b32 s31, 0")
        k.label(f"{nm}_sl")
        e("s_mov_b64 exec, s[28:29]")
        e(f"buffer_load_dwordx4 {vr(VF[0],4)}, v21, s[8:11], s27 offen {SC}")
        e(f"buffer_load_dwordx4 {vr(VF[0]+4,4)}, v21, s[8:11], s27 offen offset:640 {SC}")
        e("s_mov_b64 exec, -1")
        slowqk(vr(NM,16))
        for i in range(16): e(f"v_exp_f32 v{SS[0]+i}, v{SS[0]+i}")
        e("s_nop 0")
        for i in range(8): e(f"v_cvt_pk_bf16_f32 v{P+i}, v{SS[0]+2*i}, v{SS[0]+2*i+1}")
        e("s_nop 1")
        pv(0, 0, 0); pv(0, 0, 1)
        e("s_add_u32 s27, s27, 2560")
        e("s_add_u32 s31, s31, 1"); e("s_cmp_lt_u32 s31, 64"); e(f"s_cbranch_scc1 {nm}_sl")
        e("s_nop 12"); e(f"s_branch {nm}_chk")
    k.tail = slowpath
    k.label(f"{nm}_fin")
    e("s_nop 0")
    for r in range(12): e(f"v_mul_f32 v{OO+r}, v{OO+r}, v31")
    for r in range(6): e(f"v_cvt_pk_bf16_f32 v{P+r}, v{OO+2*r}, v{OO+2*r+1}")
    e(f"buffer_store_dwordx4 {vr(P,4)}, v39, s[8:11], s51 offen {SC}")
    e("s_mov_b32 exec_hi, 0")
    e(f"buffer_store_dwordx2 {vr(P+4,2)}, v38, s[8:11], s52 offen {SC}")
    e("s_mov_b64 exec, -1")
    k.stamp(5)
    e("v_lshlrev_b32 v3, 4, v1")
    k.vm = []; k.lg = []

def proj_c(k, tag, src, xin, xout, stout, last, cnt_code, word, st0):
    final = False
    e = k.e
    ACC, RESID, A, BF = 24, 44, 76, 156
    NA0 = ENV('PA0', '8')
    ids_rt(k)
    e("s_lshl_b32 s19, s16, 2"); e("s_add_u32 s19, s19, s39")
    e("s_mul_i32 s24, s19, 20480")
    e("s_lshr_b32 s33, s17, 1"); e("s_mul_i32 s33, s33, 5120"); e("s_add_u32 s33, s33, s24")
    e("s_and_b32 s34, s17, 1"); e("s_mul_i32 s35, s34, 3072"); e("s_add_u32 s35, s35, s33")
    e("s_lshl_b32 s36, s34, 9"); e("s_add_u32 s36, s36, s33"); e("s_add_u32 s36, s36, 2048")
    e(f"s_add_u32 s37, s35, {xin}"); e(f"s_add_u32 s38, s36, {xin}")
    e("v_lshrrev_b32 v13, 5, v1"); e("v_lshlrev_b32 v13, 8, v13"); e("v_and_b32 v14, 15, v1"); e("v_lshl_add_u32 v13, v14, 4, v13")
    e("v_bfe_u32 v14, v1, 4, 1"); e("v_lshl_add_u32 v13, v14, 3, v13")
    k.vmop(f"buffer_load_dwordx4 {vr(RESID,4)}, v3, s[8:11], s37 offen {SC}", "r")
    k.vmop(f"buffer_load_dwordx4 {vr(RESID+4,4)}, v3, s[8:11], s37 offen offset:1024 {SC}", "r")
    k.vmop(f"buffer_load_dwordx2 {vr(RESID+8,2)}, v13, s[8:11], s38 offen {SC}", "r")
    e(f"s_add_u32 s24, s24, {src}")
    for i in range(1, 5): e(f"s_add_u32 s{24+i}, s24, {4096*i}")
    e("v_lshrrev_b32 v9, 4, v1"); e("v_add_u32 v12, 61440, v3")
    wait_go(k, tag, word, cnt_code)
    k.stamp(st0)
    def ldA(n): k.vmop(f"buffer_load_dwordx4 {vr(A+4*n,4)}, v3, s[8:11], s{24+n//4} offen offset:{(n%4)*1024} {SC}", f"a{n}")
    for n in range(NA0): ldA(n)
    k.waitvm("r")
    for i in range(10):
        e(f"v_lshlrev_b32 v{ACC+2*i}, 16, v{RESID+i}"); e(f"v_and_b32 v{ACC+2*i+1}, 0xffff0000, v{RESID+i}")
    def rd(n, nf):
        off = n*5120 + nf*1024; b = 3
        if n >= 12: off -= 61440; b = 12
        k.dsop(f"ds_read_b128 {vr(BF+20*(n%2)+4*nf,4)}, v{b} offset:{off}", f"b{n}_{nf}")
    e("s_barrier")
    for n in range(2):
        for nf in range(5): rd(n, nf)
    for n in range(20):
        k.waitvm(f"a{n}")
        if n == 0: k.stamp(st0+1)
        for nf in range(5):
            if nf in (0, 2, 4): k.waitlg(f"b{n}_{min(nf+1,4)}")
            if n == 12 and nf == 0 and not final: e("s_barrier")
            e(f"v_mfma_f32_16x16x32_bf16 {vr(ACC+4*nf,4)}, {vr(BF+20*(n%2)+4*nf,4)}, {vr(A+4*n,4)}, {vr(ACC+4*nf,4)}")
            if n + 2 < 20: rd(n+2, nf)
            if nf == 0 and n + NA0 < 20: ldA(n + NA0)
    e("s_barrier")
    if last:
        e("s_cmp_eq_u32 s3, 0"); e(f"s_cbranch_scc1 {k.name}_nf")
        e("v_and_b32 v16, 15, v1"); e("v_mul_u32_u24 v16, 1280, v16"); e("v_lshl_add_u32 v17, v9, 3, v16"); e("v_lshl_add_u32 v16, v9, 4, v16")
        e("s_mul_i32 s32, s19, 20480"); e("s_mul_i32 s31, s17, 160"); e("s_add_u32 s32, s32, s31")
        e("s_lshl_b32 s31, s34, 5"); e("s_add_u32 s33, s32, s31"); e("s_xor_b32 s31, s34, 1"); e("s_lshl_b32 s31, s31, 7"); e("s_add_u32 s32, s32, s31")
        FSC = os.environ.get("FSC", "")
        for i in range(10): e(f"v_cvt_pk_bf16_f32 v{RESID+i}, v{ACC+2*i}, v{ACC+2*i+1}")
        e(f"buffer_store_dwordx4 {vr(RESID,4)}, v16, s[60:63], s33 offen {FSC}")
        e(f"buffer_store_dwordx4 {vr(RESID+4,4)}, v16, s[60:63], s33 offen offset:64 {FSC}")
        e(f"buffer_store_dwordx2 {vr(RESID+8,2)}, v17, s[60:63], s32 offen {FSC}")
        k.stamp(st0+2)
        if STAMP: e("s_waitcnt vmcnt(0)")
        k.dump(15, "2")
        e("s_endpgm")
        k.label(f"{k.name}_nf")
    if True:
        e(f"s_add_u32 s37, s35, {xout}"); e(f"s_add_u32 s38, s36, {xout}")
        e("s_lshl_b32 s32, s19, 10"); e("s_lshl_b32 s33, s17, 7"); e("s_add_u32 s32, s32, s33"); e(f"s_add_u32 s32, s32, {stout}")
        e("v_lshlrev_b32 v16, 3, v1")
        for i in range(10): e(f"v_cvt_pk_bf16_f32 v{RESID+i}, v{ACC+2*i}, v{ACC+2*i+1}")
        e(f"buffer_store_dwordx4 {vr(RESID,4)}, v3, s[8:11], s37 offen {SC}")
        e(f"buffer_store_dwordx4 {vr(RESID+4,4)}, v3, s[8:11], s37 offen offset:1024 {SC}")
        e(f"buffer_store_dwordx2 {vr(RESID+8,2)}, v13, s[8:11], s38 offen {SC}")
        e(f"v_add_f32 v18, v{ACC}, v{ACC+1}"); e(f"v_mul_f32 v19, v{ACC}, v{ACC}"); e(f"v_add_f32 v20, v{ACC+2}, v{ACC+3}"); e(f"v_mul_f32 v21, v{ACC+1}, v{ACC+1}")
        e(f"v_fmac_f32 v19, v{ACC+2}, v{ACC+2}"); e(f"v_fmac_f32 v21, v{ACC+3}, v{ACC+3}")
        for i in range(4, 20, 2):
            e(f"v_add_f32 v18, v18, v{ACC+i}"); e(f"v_fmac_f32 v19, v{ACC+i}, v{ACC+i}")
            e(f"v_add_f32 v20, v20, v{ACC+i+1}"); e(f"v_fmac_f32 v21, v{ACC+i+1}, v{ACC+i+1}")
        e("v_add_f32 v18, v18, v20"); e("v_add_f32 v19, v19, v21")
        for sw in ("v_permlane16_swap_b32", "v_permlane32_swap_b32"):
            e("v_mov_b32 v20, v18"); e("v_mov_b32 v21, v19"); e("s_nop 0")
            e(f"{sw} v18, v20"); e(f"{sw} v19, v21"); e("s_nop 0")
            e("v_add_f32 v18, v18, v20"); e("v_add_f32 v19, v19, v21")
        e("s_mov_b64 exec, 0xffff")
        e(f"buffer_store_dwordx2 v[18:19], v16, s[8:11], s32 offen {SC}")
    k.stamp(st0+2)

def proj_l(k, wimg, nxt, src, sig=None, done=0, last=False):
    e = k.e
    if nxt is not None:
        ids_mt(k)
        e("s_min_u32 s17, s17, 14" if nxt == WA_I else "s_nop 0")
        e("s_mul_i32 s58, s17, 163840"); e("s_add_u32 s58, s58, s45"); e(f"s_add_u32 s58, s58, {nxt}")
    ids_rt(k)
    e("s_mul_i32 s50, s17, 102400"); e("s_add_u32 s50, s50, s45"); e(f"s_add_u32 s50, s50, {wimg}")
    e("s_mul_i32 s51, s16, 81920"); e("s_lshl_b32 s52, s17, 2"); e("s_add_u32 s52, s52, s39"); e("s_mul_i32 s52, s52, 2560"); e("s_add_u32 s51, s51, s52"); e(f"s_add_u32 s51, s51, {src}")
    e("v_min_u32 v21, 39, v1"); e("v_lshlrev_b32 v21, 6, v21")
    w = Wdma(k, 25, 50, "o"); k.vm = []
    T1, T2 = ENV('T1', '0'), ENV('T2', '4')
    if sig:
        signal(k, "s1l", 0, 8, sig)
        ub_prep(k, 0)
    w.rng(done, 25, T1 if sig else 0)
    w2 = Wdma(k, 40, 58)
    if last:
        e("s_cmp_eq_u32 s3, 0"); e(f"s_cbranch_scc1 {k.name}_nl")
        e("s_waitcnt vmcnt(0)"); e("s_barrier"); e("buffer_load_dword v20, v21, s[8:11], s51 offen"); e("s_endpgm")
        k.label(f"{k.name}_nl")
    if sig:
        w2.rng(25, 31, T1)
        e(f"v_mov_b32 v{PV_+3}, {LW}"); e("s_mov_b32 s49, 0")
        k.label(f"{k.name}_a8")
        e(f"ds_read_b32 v{PV_}, v{PV_+3}"); e("s_add_u32 s49, s49, 1"); e("s_waitcnt lgkmcnt(0)"); e(f"v_readfirstlane_b32 s44, v{PV_}")
        e("s_cmp_ge_u32 s49, 0x400000"); e("s_cselect_b32 s44, 8, s44"); e("s_cmp_lt_u32 s44, 8"); e(f"s_cbranch_scc1 {k.name}_a8")
    if nxt is not None: w2.rng(31 if sig else 32, 39, T1 if sig else 0)
    if sig: ub_prep(k, 1)
    k.waitvm("o24")
    e("s_barrier")
    if ENV('ATOUCH', '1'):
        k.vmop("buffer_load_dword v20, v21, s[8:11], s51 offen")
    if nxt is not None:
        if not sig: w2.rng(25, 32)
        e("s_barrier")
        w2.rng(0, 15)
        e("s_barrier")
        k.waitvm("w14")
        w2.rng(15, 25, T2)
    return w2

def stats16(k, s, rstd, mop, mask):
    e = k.e
    e(f"v_add_f32 v{s}, v{s}, v{s+2}"); e(f"v_add_f32 v{s+1}, v{s+1}, v{s+3}")
    k.allred16("v_add_f32", s, s+2); k.allred16("v_add_f32", s+1, s+3)
    k.allred32("v_add_f32", s, s+2); k.allred32("v_add_f32", s+1, s+3)
    stats_finish(k, s, s+1, s+2, rstd, s+3)
    split3(k, s+2, mop, 17, 'm', mask)
def usum(k, u, dst, t=17):
    e = k.e
    e(f"v_add_f32 v{u}, v{u}, v{u+1}"); e(f"v_add_f32 v{u+2}, v{u+2}, v{u+3}"); e(f"v_add_f32 v{u}, v{u}, v{u+2}")
    split3(k, u, dst, t, 'u')
def scale_pack(k, a, sc, dst):
    for r in range(4): k.e(f"v_mul_f32 v{a+r}, v{a+r}, v{sc(r)}")
    for r in range(2): k.e(f"v_cvt_pk_bf16_f32 v{dst+r}, v{a+2*r}, v{a+2*r+1}")
EX = 102400
UOFF = lambda F: (F//4)*8192 + 7168 + (F%4)*256 + 128
TOKF = (0, 1, 2, 3, 6); FEAF = (4, 5, 7)

def ub_prep(k, part):
    e = k.e
    if part: return ub_fin(k)
    e("v_and_b32 v5, 15, v1"); e("v_lshrrev_b32 v6, 4, v1"); e("s_lshr_b32 s30, s21, 1")
    e("v_mul_u32_u24 v12, 2560, v6"); e("v_lshl_add_u32 v12, v5, 2, v12")
    e("s_mul_i32 s30, s30, 10240"); e("s_lshl_b32 s31, s39, 7"); e("s_add_u32 s30, s30, s31"); e(f"s_add_u32 s30, s30, {U_B}")
    for q in range(2):
        for j_ in range(5): k.vmop(f"buffer_load_dword v{64+5*q+j_}, v12, s[12:15], s30 offen offset:{512*j_+64*q}", "up")
    e("s_lshr_b32 s30, s39, 1"); e("s_lshl_b32 s30, s30, 13"); e("s_and_b32 s31, s39, 1"); e("s_lshl_b32 s31, s31, 9"); e("s_add_u32 s30, s30, s31")
    e("v_lshlrev_b32 v51, 3, v5"); e("v_add_u32 v46, s30, v51")
def ub_fin(k):
    e = k.e
    k.waitvm("up")
    for q in range(2):
        u = 64+5*q
        e(f"v_add_f32 v{u}, v{u}, v{u+1}"); e(f"v_add_f32 v{u+2}, v{u+2}, v{u+3}"); e(f"v_add_f32 v{u}, v{u}, v{u+4}"); e(f"v_add_f32 v{u}, v{u}, v{u+2}")
        k.allred16("v_add_f32", u, u+1); k.allred32("v_add_f32", u, u+1)
        split3(k, u, 28+2*q, 17, 'u')

def atouch_pre(k, xin):
    e = k.e
    e("s_mul_i32 s51, s16, 163840"); e("s_lshl_b32 s52, s17, 2"); e("s_add_u32 s52, s52, s39"); e("s_mul_i32 s52, s52, 2560"); e("s_add_u32 s51, s51, s52"); e(f"s_add_u32 s51, s51, {xin}")
    e("v_min_u32 v21, 39, v1"); e("v_lshlrev_b32 v21, 6, v21")

def qkvb_pre(k):
    e = k.e
    ids_mt(k)
    e("v_and_b32 v5, 15, v1"); e("v_lshrrev_b32 v6, 4, v1")
    e("s_lshl_b32 s22, s16, 3"); e("s_lshl_b32 s19, s39, 1"); e("s_add_u32 s19, s19, s22")
    e("v_lshlrev_b32 v11, 3, v5"); e("v_lshl_add_u32 v11, v6, 8, v11")
    e("v_cmp_eq_u32 vcc, 0, v6"); e("v_lshlrev_b32 v10, 4, v6"); e("s_nop 0"); e("v_cndmask_b32 v4, 0, -1, vcc")

def qkvb_c(k, xin, stin, st0):
    e = k.e; nm = k.name
    DA = 5
    ACC, BF, AR, RSV = 64, 160, 192, 228
    acc = lambda b, F: ACC + 32*b + 4*F
    qkvb_pre(k)
    e("s_lshl_b32 s28, s19, 10"); e(f"s_add_u32 s28, s28, {stin}")
    e("s_mul_i32 s25, s19, 20480"); e(f"s_add_u32 s25, s25, {xin}"); e("s_add_u32 s26, s25, 20480")
    e("v_add_u32 v41, 65536, v3"); e("v_add_u32 v42, 131072, v3")
    def c2():
        e("s_lshl_b32 s48, s16, 9"); e(f"s_add_u32 s48, s48, {C2}")
        e(f"v_lshlrev_b32 v{PV_+1}, 8, v1"); e(f"v_lshlrev_b32 v{PV_+2}, 3, v1"); e(f"v_sub_u32 v{PV_+2}, 16, v{PV_+2}")
        e("s_cmp_eq_u32 s16, 0"); e("s_cselect_b64 s[56:57], 1, 3")
    wait_go(k, "p3", 1, c2)
    k.stamp(st0)
    def ldA(ks):
        for b in range(2):
            if ks % 4 == 0 and ks > 0: e(f"s_add_u32 s{25+b}, s{25+b}, 4096")
            k.vmop(f"buffer_load_dwordx4 {vr(AR+8*(ks%DA)+4*b,4)}, v3, s[8:11], s{25+b} offen offset:{(ks%4)*1024} {SC}", f"a{ks}")
    ldA(0)
    for b in range(2):
        for q in range(2): k.vmop(f"buffer_load_dwordx2 {vr(24+4*b+2*q,2)}, v11, s[8:11], s28 offen offset:{1024*b+128*q} {SC}", "st")
    for ks in range(1, DA-1): ldA(ks)
    MC, MP, MP1 = 64, 68, 72
    NEG = fbits(-1e30)
    def prolog():
        k.waitvm("st")
        for b in (1, 2): stats16(k, 20+4*b, 48+b, 52+2*b, 4)
        for b in (1, 2):
            for r in range(4):
                e(f"v_add_u32 v18, {4*r}, v10")
                k.dsop(f"ds_bpermute_b32 v{RSV+4*b+r}, v18, v{48+b}", "rs")
        e("v_lshlrev_b32 v43, 3, v5")
        e("v_lshlrev_b32 v17, 2, v6"); e("v_sub_u32 v17, v5, v17")
        e(f"v_mov_b32 v19, {NEG}")
        for r in range(4):
            e(f"v_subrev_u32 v18, {r}, v17"); e("v_and_b32 v16, 0x80000001, v18")
            e("v_cmp_eq_u32 vcc, 0, v16"); e(f"v_cndmask_b32 v{MC+r}, v19, 0, vcc")
            e("v_cmp_eq_u32 vcc, 0x80000000, v16"); e(f"v_cndmask_b32 v{MP+r}, v19, 0, vcc")
        e("s_cmp_eq_u32 s19, 0"); e(f"s_cselect_b32 s34, {NEG}, 0")
        for r in range(4): e(f"v_add_f32 v{MP1+r}, s34, v{MP+r}")
        e("v_cmp_eq_u32 vcc, 2, v6"); e("v_cndmask_b32 v38, 0, -1, vcc")
        e("v_cmp_eq_u32 vcc, 3, v6"); e("v_cndmask_b32 v39, 0, -1, vcc")
        for b in (1, 2): e(f"v_mul_f32 v{58+b}, {fbits(CSCALE)}, v{48+b}")
        e("v_cmp_gt_u32 vcc, 2, v6")
        for b in (1, 2): e(f"v_cndmask_b32 v{35+b}, v{48+b}, v{58+b}, vcc")
        e("s_mul_i32 s35, s18, 5120"); e(f"s_add_u32 s35, s35, {EX}"); e("v_add_u32 v9, s35, v3")
        e("s_mul_i32 s24, s19, 20480"); e(f"s_add_u32 s24, s24, {OBT}")
        e("s_lshl_b32 s51, s17, 10"); e("s_add_u32 s51, s51, s24"); e("s_add_u32 s52, s51, 20480")
        e("s_lshr_b32 s53, s17, 2"); e("s_add_u32 s53, s53, 16"); e("s_lshl_b32 s53, s53, 10"); e("s_add_u32 s53, s53, s24")
        e("s_and_b32 s54, s17, 1"); e("s_lshl_b32 s54, s54, 9"); e("s_add_u32 s53, s53, s54")
        e("s_bfe_u32 s54, s17, 0x10001"); e("s_lshl_b32 s54, s54, 3"); e("s_add_u32 s53, s53, s54"); e("s_add_u32 s54, s53, 20480")
    fl = k.capture(prolog)
    def rd(ks, F):
        off = ks*8192 + 1024*F; hi = off >> 16
        k.dsop(f"ds_read_b128 {vr(BF+4*F,4)}, v{(3,41,42)[hi]} offset:{off & 0xffff}", f"b{ks}_{F}")
    def mm(b, F, ks):
        a = vr(AR+8*(ks%DA)+4*(b-1), 4); w = vr(BF+4*F, 4); c = vr(acc(b,F), 4); ci = c if ks else "0"
        if F in TOKF: e(f"v_mfma_f32_16x16x32_bf16 {c}, {w}, {a}, {ci}")
        else:         e(f"v_mfma_f32_16x16x32_bf16 {c}, {a}, {w}, {ci}")
    e("s_barrier")
    for F in range(8): rd(0, F)
    for ks in range(20):
        k.waitvm(f"a{ks}")
        if ks == 0: k.stamp(st0+1)
        if ks == 6: e("s_barrier")
        if ks == 16:
            k.fill(fl, 1000)
            for F in range(8): k.dsop(f"ds_read_b64 {vr(20+2*F,2)}, v43 offset:{UOFF(F)}", "uo")
        for F in range(8):
            if F % 2 == 0: k.waitlg(f"b{ks}_{F+1}")
            mm(1, F, ks)
            if ks >= 1: k.fill(fl, 1)
            mm(2, F, ks)
            if ks + 1 < 20: rd(ks+1, F)
            if F == 0 and ks + DA - 1 < 20: ldA(ks + DA - 1)
            if ks >= 1 and F % 2: k.fill(fl, 1)
        if ks == 18:
            k.fill(fl, 1000)
            for b in (1, 2):
                for F in range(8):
                    U, M = vr(20+2*F, 2), vr(52+2*b, 2)
                    if F in TOKF: e(f"v_mfma_f32_16x16x16_bf16 {vr(acc(b,F),4)}, {U}, {M}, {vr(acc(b,F),4)}")
                    else:         e(f"v_mfma_f32_16x16x16_bf16 {vr(acc(b,F),4)}, {M}, {U}, {vr(acc(b,F),4)}")
    k.stamp(st0+2)
    e("s_barrier")
    if os.environ.get("FOC") == "s3": k.stamp(3)
    e("s_cmp_eq_u32 s18, 0"); e(f"s_cbranch_scc0 {nm}_ni"); lw_init(k); k.label(f"{nm}_ni")
    KO = lambda b, h: BF + 8*b + 4*h
    QO = lambda b, h: BF + 24 + 8*(b-1) + 4*h
    VO = lambda F, b: BF + 40 + 8*FEAF.index(F) + 2*b
    def kv_pack(b):
        for h in range(2): scale_pack(k, acc(b, 2+h), lambda r: 48+b, KO(b,h))
        scale_pack(k, acc(b, 6), lambda r: 35+b, KO(b,0)+2)
        for r in range(2): e(f"v_mov_b32 v{KO(b,1)+2+r}, v{KO(b,0)+2+r}")
        for F in FEAF: scale_pack(k, acc(b, F), lambda r: RSV+4*b+r, VO(F,b))
    kv_pack(2)
    for h in range(2): e(f"ds_write_b128 v9, {vr(KO(2,h),4)} offset:{5120+1024*h}")
    for n, F in enumerate(FEAF): e(f"ds_write_b64 v9, {vr(VO(F,2),2)} offset:{5120+2048+1024*n}")
    kv_pack(1)
    e("s_waitcnt lgkmcnt(0)"); e("s_barrier")
    if os.environ.get("FOC") == "s3": k.stamp(4)
    for h in range(2): e(f"ds_read_b128 {vr(KO(0,h),4)}, v9 offset:{1024*h}")
    for n, F in enumerate(FEAF): e(f"ds_read_b64 {vr(VO(F,0),2)}, v9 offset:{2048+1024*n}")
    for b in (1, 2):
        for h in range(2): scale_pack(k, acc(b, h), lambda r: 58+b, QO(b,h))
        for r in range(2):
            e(f"v_mov_b32 v{40+2*r}, v{KO(b,0)+2+r}"); e(f"v_mov_b32 v{41+2*r}, v{KO(b,0)+2+r}")
        for r in range(2): e(f"v_permlane32_swap_b32 v{40+2*r}, v{41+2*r}")
        e("s_nop 0")
        for h in range(2):
            for r in range(2): e(f"v_and_b32 v{QO(b,h)+2+r}, v{40+2*r}, v{38+h}")
    e("s_waitcnt lgkmcnt(0)")
    units = [(b, h) for b in (1, 2) for h in range(2)]
    SU = lambda i: 20 + 8*i if i < 2 else 76 + 8*(i-2)
    TU = lambda i: ACC + 32 + 4*i
    PU = lambda i: ACC + 48 + 4*i
    OU = lambda i: ACC + 64 + 8*i
    for i, (b, h) in enumerate(units):
        e(f"v_mfma_f32_16x16x32_bf16 {vr(SU(i),4)}, {vr(KO(b-1,h),4)}, {vr(QO(b,h),4)}, {vr(MP1 if b == 1 else MP,4)}")
        e(f"v_mfma_f32_16x16x32_bf16 {vr(SU(i)+4,4)}, {vr(KO(b,h),4)}, {vr(QO(b,h),4)}, {vr(MC,4)}")
    def allred(op):
        for sw in ("v_permlane16_swap_b32", "v_permlane32_swap_b32"):
            for i in range(4): e(f"v_mov_b32 v{TU(i)+1}, v{TU(i)}")
            for i in range(4): e(f"{sw} v{TU(i)}, v{TU(i)+1}")
            for i in range(4): e(f"{op} v{TU(i)}, v{TU(i)}, v{TU(i)+1}")
    for i in range(4):
        s = SU(i)
        e(f"v_max3_f32 v{TU(i)}, v{s}, v{s+1}, v{s+2}"); e(f"v_max3_f32 v{TU(i)}, v{s+3}, v{s+4}, v{TU(i)}")
        e(f"v_max3_f32 v{TU(i)}, v{s+5}, v{s+6}, v{TU(i)}"); e(f"v_max_f32 v{TU(i)}, v{s+7}, v{TU(i)}")
    allred("v_max_f32")
    for i in range(4):
        for r in range(8): e(f"v_sub_f32 v{SU(i)+r}, v{SU(i)+r}, v{TU(i)}")
    for i in range(4):
        for r in range(8): e(f"v_exp_f32 v{SU(i)+r}, v{SU(i)+r}")
    for i in range(4):
        s = SU(i)
        e(f"v_add_f32 v{TU(i)}, v{s}, v{s+1}")
        for r in range(2, 8): e(f"v_add_f32 v{TU(i)}, v{TU(i)}, v{s+r}")
    allred("v_add_f32")
    for i in range(4): e(f"v_rcp_f32 v{TU(i)}, v{TU(i)}")
    for i in range(4):
        for r in range(8): e(f"v_mul_f32 v{SU(i)+r}, v{SU(i)+r}, v{TU(i)}")
        for r in range(4): e(f"v_cvt_pk_bf16_f32 v{PU(i)+r}, v{SU(i)+2*r}, v{SU(i)+2*r+1}")
    for i, (b, h) in enumerate(units):
        e(f"v_mfma_f32_16x16x32_bf16 {vr(OU(i),4)}, {vr(VO(4+h,b-1),4)}, {vr(PU(i),4)}, 0")
        e(f"v_mfma_f32_16x16x32_bf16 {vr(OU(i)+4,4)}, {vr(VO(7,b-1),4)}, {vr(PU(i),4)}, 0")
    e("v_cmp_eq_u32 vcc, 0, v6")
    for bi in range(2):
        o0, o1 = OU(2*bi), OU(2*bi+1); d = 40 + 8*bi
        e(f"v_cvt_pk_bf16_f32 v{d}, v{o0}, v{o0+1}"); e(f"v_cvt_pk_bf16_f32 v{d+1}, v{o0+2}, v{o0+3}")
        e(f"v_cvt_pk_bf16_f32 v{d+2}, v{o1}, v{o1+1}"); e(f"v_cvt_pk_bf16_f32 v{d+3}, v{o1+2}, v{o1+3}")
        e(f"buffer_store_dwordx4 {vr(d,4)}, v3, s[8:11], s{51+bi} offen {SC}")
        for r in range(4): e(f"v_cndmask_b32 v{o0+4+r}, v{o1+4+r}, v{o0+4+r}, vcc")
        e(f"v_cvt_pk_bf16_f32 v{d+4}, v{o0+4}, v{o0+5}"); e(f"v_cvt_pk_bf16_f32 v{d+5}, v{o0+6}, v{o0+7}")
    e("s_mov_b32 exec_hi, 0")
    for bi in range(2): e(f"buffer_store_dwordx2 {vr(44+8*bi,2)}, v3, s[8:11], s{53+bi} offen {SC}")

def qkvb_l(k, xin, stin, w):
    e = k.e; nm = k.name
    qkvb_pre(k)
    e("s_max_u32 s22, s22, 1"); e("s_sub_u32 s22, s22, 1")
    e("s_mul_i32 s24, s22, 20480"); e(f"s_add_u32 s24, s24, {xin}")
    e("s_lshl_b32 s27, s22, 10"); e(f"s_add_u32 s27, s27, {stin}")
    e("s_min_u32 s40, s39, 2")
    e("s_cmp_lt_u32 s39, 2"); e("s_cselect_b32 s41, 2, 4"); e("s_cselect_b32 s42, 4, 5")
    e("s_add_u32 s41, s41, s40"); e("s_add_u32 s42, s42, s40")
    for d_, s_ in ((43, 41), (44, 42)):
        e(f"s_lshr_b32 s{d_}, s{s_}, 2"); e(f"s_lshl_b32 s{d_}, s{d_}, 13"); e(f"s_and_b32 s32, s{s_}, 3"); e("s_lshl_b32 s32, s32, 8")
        e(f"s_add_u32 s{d_}, s{d_}, s32"); e(f"s_add_u32 s{d_}, s{d_}, {UOFF(0)}")
    e("s_lshl_b32 s41, s41, 10"); e("s_lshl_b32 s42, s42, 10")
    for i in range(3):
        e(f"v_add_u32 v{40+i}, s41, v3"); e(f"v_add_u32 v{43+i}, s42, v3")
        if i: e(f"v_add_u32 v{40+i}, {65536*i}, v{40+i}"); e(f"v_add_u32 v{43+i}, {65536*i}, v{43+i}")
    atouch_pre(k, xin)
    e("s_barrier")
    e(f"ds_write_b64 v46, v[28:29] offset:{UOFF(0)}"); e(f"ds_write_b64 v46, v[30:31] offset:{UOFF(1)}")
    if ENV('ATOUCH', '1'): k.vmop("buffer_load_dword v20, v21, s[8:11], s51 offen")
    w.one(39)
    for q in range(2): k.vmop(f"buffer_load_dwordx2 {vr(24+2*q,2)}, v11, s[8:11], s27 offen offset:{128*q} {SC}", "st")
    e("s_cmp_eq_u32 s39, 3"); e("s_cselect_b32 s24, 0x7ff00000, s24")
    HL = ENV('HL', '3')
    def ldh(ks):
        if ks % 4 == 0 and ks: e("s_add_u32 s24, s24, 4096")
        k.vmop(f"buffer_load_dwordx4 {vr(128+4*ks,4)}, v3, s[8:11], s24 offen offset:{(ks%4)*1024} {SC}", f"h{ks}")
    for ks in range(HL): ldh(ks)
    k.waitvm("w39"); e("s_waitcnt lgkmcnt(0)"); e("s_barrier")
    k.waitvm("st")
    stats16(k, 24, 48, 52, 4)
    for r in range(4):
        e(f"v_add_u32 v18, {4*r}, v10")
        k.dsop(f"ds_bpermute_b32 v{72+r}, v18, v48", "r")
    def rd(ks):
        off = ks*8192; hi = off >> 16; fb = 96 + 8*(ks%3)
        k.dsop(f"ds_read_b128 {vr(fb,4)}, v{40+hi} offset:{off & 0xffff}", f"r{ks}")
        k.dsop(f"ds_read_b128 {vr(fb+4,4)}, v{43+hi} offset:{off & 0xffff}", f"r{ks}")
    rd(0); rd(1)
    for ks in range(20):
        if ks + 2 < 20: rd(ks+2)
        if ks + HL < 20: ldh(ks + HL)
        k.waitvm(f"h{ks}"); k.waitlg(f"r{ks}")
        fb = 96 + 8*(ks%3)
        e(f"v_mfma_f32_16x16x32_bf16 v[80:83], {vr(fb,4)}, {vr(128+4*ks,4)}, {'v[80:83]' if ks else 0}")
        e(f"v_mfma_f32_16x16x32_bf16 v[84:87], {vr(128+4*ks,4)}, {vr(fb+4,4)}, {'v[84:87]' if ks else 0}")
    e("v_add_u32 v12, s43, v51"); e("v_add_u32 v13, s44, v51")
    e("ds_read_b64 v[20:21], v12"); e("ds_read_b64 v[22:23], v13")
    e("s_lshl_b32 s41, s39, 10"); e("s_cmp_lt_u32 s39, 2"); e("s_cselect_b32 s41, s41, 8"); e("s_cselect_b32 s42, s41, 1032")
    e("s_lshl_b32 s40, s40, 10")
    e(f"v_add_u32 v9, {EX}, v3"); e("v_add_u32 v12, s41, v9"); e("v_add_u32 v13, s42, v9"); e("v_add_u32 v15, s40, v9")
    e("s_waitcnt lgkmcnt(0)")
    e("v_mfma_f32_16x16x16_bf16 v[80:83], v[20:21], v[52:53], v[80:83]")
    e("v_mfma_f32_16x16x16_bf16 v[84:87], v[52:53], v[22:23], v[84:87]")
    scale_pack(k, 80, lambda r: 48, 88); scale_pack(k, 84, lambda r: 72+r, 90)
    e("s_barrier")
    e("s_cmp_eq_u32 s39, 3"); e(f"s_cbranch_scc1 {nm}_h4")
    e("ds_write_b64 v12, v[88:89]"); e("ds_write_b64 v13, v[88:89]"); e("ds_write_b64 v15, v[90:91] offset:2048")
    e("s_waitcnt lgkmcnt(0)")
    k.label(f"{nm}_h4")
    e("s_barrier")
    k.vm = []; k.lg = []

def one(k, target):
    k.e(f"v_mov_b32 v{PV_+1}, 0"); k.e(f"v_mov_b32 v{PV_+2}, {target}"); k.e("s_mov_b64 s[56:57], 1")

def kvpos(k):
    k.e("s_and_b32 s36, s19, 31"); k.e("s_lshl_b32 s36, s36, 1"); k.e("s_lshr_b32 s34, s19, 5"); k.e("s_add_u32 s36, s36, s34")
    k.e("s_add_u32 s36, s36, 50"); k.e("s_and_b32 s36, s36, 63")
def addr_v(k, img):
    e = k.e
    e("s_sub_u32 s35, s17, 10"); e("s_lshl_b32 s35, s35, 7")
    kvpos(k); e("s_mul_i32 s36, s36, 2560"); e(f"s_add_u32 s33, s36, {img+KVIMG+1280}")
    e("v_mul_u32_u24 v20, 320, v4")
    for jf in range(4):
        e(f"v_add_u32 v16, s35, v10")
        if jf: e(f"v_add_u32 v16, {32*jf}, v16")
        e("v_mul_u32_u24 v17, 52429, v16"); e("v_lshrrev_b32 v17, 20, v17")
        e("v_mul_u32_u24 v18, 20, v17"); e("v_sub_u32 v18, v16, v18")
        e("v_mul_u32_u24 v17, 163840, v17"); e("v_lshl_add_u32 v17, v18, 4, v17")
        e(f"v_add_u32 v{24+jf}, v17, v20")
def addr_qk(k, img, xm=52):
    e = k.e; k.xm = xm
    e("s_cmp_ge_u32 s17, 5")
    e(f"s_cselect_b32 s33, {QI}, 0"); e(f"s_cselect_b32 s59, 1.0, {fbits(CSCALE)}"); e("s_cselect_b32 s35, 5, 0"); e("s_cselect_b32 s37, 1, 0")
    e(f"s_add_u32 s33, s33, {img+QIMG}")
    e("s_sub_u32 s35, s17, s35")
    kvpos(k); e("s_cmp_eq_u32 s37, 0"); e("s_cselect_b32 s36, s19, s36")
    e("s_mul_i32 s36, s36, 1280"); e("s_lshl_b32 s36, s36, s37"); e("s_add_u32 s33, s33, s36")
    e("s_lshl_b32 s34, 81920, s37")
    e("v_lshlrev_b32 v16, 4, v10"); e("v_lshlrev_b32 v17, 3, v10")
    e("v_lshl_add_u32 v18, v4, 9, v16")
    e("s_sub_u32 s36, s34, 512"); e("v_and_b32 v19, s36, v59"); e("v_add_u32 v19, v19, v16")
    e(f"s_mov_b32 s{xm}, -1"); e(f"s_mov_b32 s{xm+1}, 0"); e(f"s_mov_b32 s{xm+2}, 0"); e(f"s_mov_b32 s{xm+3}, -1")
def epi_qk(k, ACC, BF):
    e = k.e; nm = k.name + k.ptag
    for v in range(1, 5):
        e(f"s_cmp_eq_u32 s35, {v}"); e(f"s_cbranch_scc1 {nm}_e{v}")
    QSC = os.environ.get("QSC", "sc1")
    for v in range(5):
        if v: k.label(f"{nm}_e{v}")
        e("s_nop 7")
        for jf in range(4):
            for r in range(16): e(f"v_mul_f32 v{ACC+16*jf+r}, v{ACC+16*jf+r}, v47")
            for r in range(8): e(f"v_cvt_pk_bf16_f32 v{BF+8*jf+r}, v{ACC+16*jf+2*r}, v{ACC+16*jf+2*r+1}")
            for a2 in range(2):
                x = BF+8*jf+4*a2
                e(f"v_permlane32_swap_b32 v{x}, v{x+2}"); e(f"v_permlane32_swap_b32 v{x+1}, v{x+3}")
            for a2 in range(2):
                x = BF+8*jf+4*a2
                G = [32*v+8*jf+4*a2, 32*v+8*jf+4*a2+2]
                def main(g):
                    h = g // 5; r = g % 5
                    return h, (r // 2 if h % 2 == 0 else (r - 1) // 2)
                st = [g % 10 == 4 for g in G]
                def hoff(dst, h, c):
                    if h: e(f"s_mul_i32 s{dst}, s34, {h}"); e(f"s_add_u32 s{dst}, s{dst}, s33")
                    else: e(f"s_mov_b32 s{dst}, s33")
                    if c: e(f"s_add_u32 s{dst}, s{dst}, {c}")
                if not any(st):
                    (h0, p0), (h1, p1) = main(G[0]), main(G[1])
                    hoff(36, h0, 512*p0)
                    if h0 == h1: e(f"buffer_store_dwordx4 {vr(x,4)}, v18, {k.srdo}, s36 offen {QSC}")
                    else:        e(f"buffer_store_dwordx4 {vr(x,4)}, v19, {k.srdo}, s36 offen {QSC}")
                    assert (h0 == h1 and (p0, p1) == (0, 1)) or (h1 == h0 + 1 and (p0, p1) == (1, 0))
                else:
                    m = st.index(False); q = 1 - m
                    h, p = main(G[m]); hoff(36, h, 512*p); hoff(37, G[q] // 5, 1024); e("s_add_u32 s38, s37, s34")
                    e(f"s_mov_b64 exec, s[{k.xm+2*m}:{k.xm+1+2*m}]")
                    e(f"buffer_store_dwordx4 {vr(x,4)}, v16, {k.srdo}, s36 offen {QSC}")
                    e(f"s_mov_b64 exec, s[{k.xm+2*q}:{k.xm+1+2*q}]")
                    e(f"buffer_store_dwordx2 {vr(x,2)}, v17, {k.srdo}, s37 offen {QSC}")
                    e(f"buffer_store_dwordx2 {vr(x+2,2)}, v17, {k.srdo}, s38 offen {QSC}")
                    e("s_mov_b64 exec, -1")
        e(f"s_branch {nm}_fin5")
def epi_v(k, ACC, BF, RS):
    e = k.e
    VSC = os.environ.get("VSC", "sc1")
    for jf in range(4):
        for r in range(16): e(f"v_mul_f32 v{ACC+16*jf+r}, v{ACC+16*jf+r}, v{RS+r}")
        for r in range(8): e(f"v_cvt_pk_bf16_f32 v{BF+8*jf+r}, v{ACC+16*jf+2*r}, v{ACC+16*jf+2*r+1}")
        for u in range(2):
            e(f"buffer_store_dwordx4 {vr(BF+8*jf+4*u,4)}, v{24+jf}, {k.srdo}, s33 offen offset:{640*u} {VSC}")

def qkva_c(k, xin, stin, img, cnt, wbar, st0):
    k.ptag = '_p5'; k.srdo = 's[8:11]'
    e = k.e; nm = k.name + k.ptag
    DA = 5
    ACC, BF, AR, RS = 64, 128, 160, 200
    e("v_and_b32 v10, 31, v1"); e("v_lshrrev_b32 v4, 5, v1"); e("v_and_b32 v5, 15, v1")
    e("s_lshl_b32 s19, s16, 2"); e("s_add_u32 s19, s19, s18")
    e("v_lshlrev_b32 v12, 4, v10")
    e("s_lshl_b32 s31, s17, 11"); e(f"s_add_u32 s31, s31, {U_A}")
    for jf in range(4): k.vmop(f"buffer_load_dwordx4 {vr(24+4*jf,4)}, v12, s[12:15], s31 offen offset:{512*jf}", "u")
    e("v_bfe_u32 v7, v1, 4, 1"); e("v_mul_u32_u24 v8, 20480, v7"); e("v_lshl_add_u32 v8, v4, 8, v8"); e("v_lshl_add_u32 v8, v5, 4, v8")
    e("v_lshlrev_b32 v11, 10, v7"); e("v_lshl_add_u32 v11, v4, 9, v11"); e("v_lshl_add_u32 v11, v5, 3, v11")
    e("s_lshl_b32 s30, s19, 11"); e(f"s_add_u32 s30, s30, {stin}")
    e("s_mul_i32 s24, s19, 40960"); e(f"s_add_u32 s24, s24, {xin}")
    e("v_add_u32 v41, 65536, v3"); e("v_add_u32 v42, 131072, v3")
    e("v_subrev_u32 v58, 1, v4"); e("v_not_b32 v59, v58")
    sc = SC if cnt is not None else ""
    if cnt is not None:
        def c4(): one(k, 16); e("s_lshl_b32 s48, s16, 8"); e(f"s_add_u32 s48, s48, {cnt}")
        wait_go(k, "p5", 1, c4)
    k.stamp(st0)
    def ldA(ks):
        if ks % 4 == 0 and ks > 0: e("s_add_u32 s24, s24, 4096")
        for u in range(2):
            k.vmop(f"buffer_load_dwordx4 {vr(AR+8*(ks%DA)+4*u,4)}, v8, s[8:11], s24 offen offset:{(ks%4)*1024+512*u} {sc}", f"a{ks}")
    ldA(0)
    for q in range(4): k.vmop(f"buffer_load_dwordx2 {vr(16+2*q,2)}, v11, s[8:11], s30 offen offset:{128*q} {sc}", "st")
    for ks in range(1, DA-1): ldA(ks)
    def prolog(vmode):
        k.waitvm("st")
        e("v_add_f32 v16, v16, v18"); e("v_add_f32 v17, v17, v19"); e("v_add_f32 v20, v20, v22"); e("v_add_f32 v21, v21, v23")
        e("v_add_f32 v16, v16, v20"); e("v_add_f32 v17, v17, v21")
        k.allred32("v_add_f32", 16, 18); k.allred32("v_add_f32", 17, 18)
        stats_finish(k, 16, 17, 46, 47, 18)
        split3(k, 46, 48, 18, 'm', 58)
        for jf in range(4): usum(k, 24+4*jf, 50+2*jf, 18)
        if vmode:
            e("v_lshlrev_b32 v16, 4, v4")
            for r in range(16):
                e(f"v_add_u32 v17, {(8*(r//4) + r%4)*4}, v16")
                k.dsop(f"ds_bpermute_b32 v{RS+r}, v17, v47", "rs")
            addr_v(k, img)
        else:
            addr_qk(k, img); e("v_mul_f32 v47, s59, v47")
    e("s_cmp_ge_u32 s17, 10"); e(f"s_cbranch_scc1 {nm}_qv")
    vm_save = list(k.vm)
    def mainloop(vmode):
        acc = lambda jf: vr(ACC+16*jf, 16)
        fl = k.capture(lambda: prolog(vmode))
        def rd(ks, f):
            off = ks*8192 + 1024*f; hi = off >> 16
            k.dsop(f"ds_read_b128 {vr(BF+4*f,4)}, v{(3,41,42)[hi]} offset:{off & 0xffff}", f"b{ks}_{f}")
        e("s_barrier")
        for f in range(8): rd(0, f)
        for ks in range(20):
            k.waitvm(f"a{ks}")
            if ks == 0: k.stamp(st0+1)
            if ks + 1 in wbar: e("s_barrier")
            for f in range(8):
                u, jf = f//4, f%4
                if f % 2 == 0: k.waitlg(f"b{ks}_{f+1}")
                a = vr(AR+8*(ks%DA)+4*u, 4); b = vr(BF+4*f, 4); c = acc(jf) if (ks or u) else "0"
                if vmode: e(f"v_mfma_f32_32x32x16_bf16 {acc(jf)}, {a}, {b}, {c}")
                else:     e(f"v_mfma_f32_32x32x16_bf16 {acc(jf)}, {b}, {a}, {c}")
                if ks + 1 < 20: rd(ks+1, f)
                if f == 0 and ks + DA - 1 < 20: ldA(ks + DA - 1)
                if ks >= 1: k.fill(fl, 2)
            if ks == 15:
                k.fill(fl, 1000)
                for jf in range(4):
                    if vmode: e(f"v_mfma_f32_32x32x8_bf16 {acc(jf)}, v[48:49], {vr(50+2*jf,2)}, {acc(jf)}")
                    else:     e(f"v_mfma_f32_32x32x8_bf16 {acc(jf)}, {vr(50+2*jf,2)}, v[48:49], {acc(jf)}")
        k.stamp(st0+2)
        e("s_barrier")
    mainloop(False)
    epi_qk(k, ACC, BF)
    k.label(f"{nm}_qv"); k.vm = vm_save; k.lg = []
    mainloop(True)
    epi_v(k, ACC, BF, RS)
    k.label(f"{nm}_fin5")

def ph_front(k):
    k.ptag = "_f"; k.srdo = "s[12:15]"
    e = k.e; nm = k.name + k.ptag; kn = k.name
    R, DEP, SCRB, UT = 4, 2, 131072, 65536
    need = lambda ks: ks // 2
    slot = lambda st: (st % R) * 32768
    e("s_cmp_ge_u32 s2, 256"); e(f"s_cbranch_scc1 {kn}_end"); k.stamp(0); k.rstamp(1)
    e("s_load_dwordx4 s[60:63], s[0:1], 0"); e("s_load_dwordx2 s[6:7], s[0:1], 64")
    e("s_load_dwordx2 s[46:47], s[0:1], 16"); e("s_load_dwordx2 s[4:5], s[0:1], 56"); e("s_load_dwordx4 s[40:43], s[0:1], 32")
    e("s_and_b32 s20, s2, 7"); e("s_lshr_b32 s21, s2, 3")
    e("v_lshrrev_b32 v2, 6, v0"); e("v_and_b32 v1, 63, v0")
    e("v_readfirstlane_b32 s18, v2")
    e("s_and_b32 s39, s18, 3"); e("s_lshl_b32 s45, s39, 10")
    ids_mt(k)
    e("v_lshlrev_b32 v3, 4, v1"); e(f"v_lshlrev_b32 v9, {ENV('BST', '7')}, v1")
    e("s_lshl_b32 s22, s2, 2"); e("s_add_u32 s22, s22, s39"); e("s_mul_i32 s23, s22, 2400"); e("s_mul_i32 s22, s22, 2560")
    def kwait():
        e("s_waitcnt lgkmcnt(0)")
        k.stamp(2)
        k.srd(8, 60, S*D*2); k.srd(28, 62, D*3*D*2); k.srd(12, 6, WS_END)
    def burst():
        if ENV('BURST', '1'):
            e("s_mov_b32 exec_hi, 0xff" if ENV('BST', '7') == 6 else "s_mov_b64 exec, 0xfffff")
            e("buffer_load_dword v240, v9, s[8:11], s22 offen"); e("buffer_load_dword v241, v9, s[28:31], s23 offen")
            e("s_mov_b64 exec, -1")
    def codepf(tg):
        if ENV('CPF', '1'):
            e("s_getpc_b64 s[34:35]"); k.label(f"{nm}_pc{tg}")
            e(f"s_sub_u32 s34, s34, {nm}_pc{tg} - {kn}"); e("s_subb_u32 s35, s35, 0")
            e("v_lshlrev_b32 v242, 4, v0"); e("s_lshl_b32 s36, s21, 12"); e("v_add_u32 v242, s36, v242")
            e(f"v_and_b32 v242, 0xffffffc0, v242"); e(f"v_min_u32 v242, code_end - {kn} - 4, v242")
            e("global_load_dword v243, v242, s[34:35]")
    e("s_cmp_ge_u32 s17, 15"); e(f"s_cbranch_scc1 {nm}_ub")
    e("v_and_b32 v10, 31, v1"); e("v_lshrrev_b32 v4, 5, v1"); e("v_and_b32 v5, 15, v1"); e("v_bfe_u32 v7, v1, 4, 1")
    e("v_lshrrev_b32 v13, 2, v5"); e("v_and_b32 v6, 3, v1")
    e("v_lshl_add_u32 v14, v4, 3, v13"); e("v_lshlrev_b32 v14, 8, v14"); e("v_lshl_add_u32 v14, v7, 5, v14"); e("v_lshl_add_u32 v14, v6, 3, v14")
    e("v_add_u32 v14, 16384, v14")
    e("s_mul_i32 s48, s17, 16"); e("s_add_u32 s48, s48, s16"); e("s_lshl_b32 s48, s48, 2"); e("s_add_u32 s48, s48, s39")
    e("s_lshl_b32 s49, s39, 13"); e(f"s_add_u32 s49, s49, {SCRB}")
    e("s_mul_i32 s50, s48, 3277"); e("s_lshr_b32 s50, s50, 16"); e("s_mul_i32 s51, s50, 20"); e("s_sub_u32 s51, s48, s51")
    def a0():
        e("s_lshl_b32 s48, s17, 11"); e(f"s_add_u32 s48, s48, {C0}"); e(f"v_lshlrev_b32 v{PV_+1}, 8, v1"); e("s_mov_b64 s[56:57], 0xff")
    SF = ENV('SF', '10')
    e("s_cmp_ge_u32 s18, 4"); e(f"s_cbranch_scc1 {nm}_ld")
    kwait(); burst(); codepf("c")
    ACC, BF, AR, RS = 64, 128, 160, 200
    BA, AA = 216, 224
    SV = 192
    e("v_lshrrev_b32 v35, 4, v1")
    for r in list(range(SV, SV+5)) + list(range(36, 44)): e(f"v_mov_b32 v{r}, 0")
    e("s_mov_b32 s27, 0")
    e("s_mov_b32 s56, 0x7ff00000"); e("s_mov_b32 s57, s56"); e("s_mov_b32 s58, s56")
    e("s_cmp_ge_u32 s48, 320"); e(f"s_cbranch_scc1 {nm}_s1")
    k.srd(52, 40, D*3*D*2)
    e(f"s_mul_i32 s27, s51, {32*3840}"); e("s_mul_i32 s25, s50, 80"); e("s_add_u32 s27, s27, s25")
    for par in range(2):
        e(f"v_add_u32 v32, {4*par}, v35"); e("v_lshlrev_b32 v32, 1, v32"); e("v_xor_b32 v32, v32, v5"); e("v_min_u32 v32, 14, v32")
        e("v_mul_u32_u24 v33, 52, v32"); e("v_lshrrev_b32 v33, 8, v33"); e("v_mul_u32_u24 v33, 1200, v33"); e("v_lshl_add_u32 v33, v32, 4, v33")
        e("v_mul_u32_u24 v32, 3840, v35"); e(f"v_add_u32 v{SV+par}, v33, v32")
    e("v_and_b32 v33, 1, v35"); e("v_lshl_add_u32 v33, v33, 2, v13"); e("v_lshlrev_b32 v33, 5, v33")
    e("v_lshl_add_u32 v32, v35, 3, v13"); e("v_lshlrev_b32 v32, 8, v32"); e("v_add_u32 v32, s49, v32")
    for F in range(8):
        if F < 6:
            e("v_lshlrev_b32 v34, 3, v6")
            if F: e(f"v_add_u32 v34, {40*F}, v34")
        elif F == 6: e("v_mul_u32_u24 v34, 40, v6"); e("v_add_u32 v34, 32, v34")
        else: e("v_and_b32 v34, 1, v6"); e("v_mul_u32_u24 v34, 40, v34"); e("v_add_u32 v34, 192, v34")
        e("v_xor_b32 v34, v34, v33"); e(f"v_add_u32 v{36+F}, v34, v32")
    e("s_mul_i32 s56, s50, 163840"); e("s_lshl_b32 s57, s51, 13"); e("s_add_u32 s56, s56, s57"); e(f"s_add_u32 s56, s56, {WB_I}"); e("s_add_u32 s57, s56, 4096"); e("s_mov_b32 s58, s57")
    e(f"s_branch {nm}_s2")
    k.label(f"{nm}_s1")
    e("s_cmp_ge_u32 s50, 24"); e("s_cselect_b32 s26, s42, s46"); e("s_cselect_b32 s27, s43, s47")
    k.srd(52, 26, D*D*2)
    e("s_cmp_ge_u32 s48, 640"); e(f"s_cbranch_scc1 {nm}_s2")
    e("s_and_b32 s25, s50, 7"); e("s_mul_i32 s25, s25, 160")
    e("s_mul_i32 s27, s51, 40"); e("s_sub_u32 s44, s51, 16"); e("s_mul_i32 s44, s44, 160"); e("s_add_u32 s44, s44, 16")
    e("s_cmp_lt_u32 s51, 16"); e("s_cselect_b32 s27, s27, s44"); e("s_cselect_b32 s26, 4, 2"); e("s_cselect_b32 s44, 4, 16")
    e("s_mul_i32 s27, s27, 1280"); e("s_add_u32 s27, s27, s25")
    for i in range(5):
        e(f"v_add_u32 v32, {64*i}, v1"); e("v_mul_u32_u24 v33, 6554, v32"); e("v_lshrrev_b32 v33, 16, v33")
        e("v_lshrrev_b32 v34, s26, v33"); e("v_mul_u32_u24 v34, s44, v34"); e("v_mul_u32_u24 v34, 1280, v34")
        e("v_mul_u32_u24 v33, 1120, v33"); e("v_add_u32 v34, v34, v33"); e(f"v_lshl_add_u32 v{SV+i}, v32, 4, v34")
    e("v_lshlrev_b32 v32, 2, v35"); e("s_mov_b32 s25, 2560")
    e("s_cmp_ge_u32 s50, 24"); e(f"s_cbranch_scc1 {nm}_f3"); e("s_cmp_ge_u32 s51, 16"); e(f"s_cbranch_scc1 {nm}_f3")
    e("v_lshrrev_b32 v32, 1, v35"); e("v_lshlrev_b32 v32, 4, v32"); e("v_and_b32 v33, 1, v35"); e("v_lshl_add_u32 v32, v33, 2, v32"); e("s_mov_b32 s25, 1280")
    k.label(f"{nm}_f3")
    e("v_add_u32 v32, v32, v13"); e("v_mul_u32_u24 v32, 160, v32"); e("v_add_u32 v32, s49, v32")
    e("s_and_b32 s26, s50, 1"); e("s_lshl_b32 s44, s26, 5"); e("s_xor_b32 s26, s26, 1"); e("s_lshl_b32 s26, s26, 7")
    e("v_lshl_add_u32 v36, v6, 4, v32"); e("v_add_u32 v36, s44, v36"); e("v_add_u32 v37, s25, v36")
    e("v_lshl_add_u32 v38, v6, 3, v32"); e("v_add_u32 v38, s26, v38"); e("v_add_u32 v39, s25, v38")
    e("s_cmp_ge_u32 s50, 24"); e(f"s_cselect_b32 s56, {WOB_I-WOA_I}, 0"); e("s_and_b32 s57, s50, 7"); e("s_mul_i32 s57, s57, 102400"); e("s_add_u32 s56, s56, s57")
    e("s_mul_i32 s57, s51, 5120"); e("s_add_u32 s56, s56, s57"); e(f"s_add_u32 s56, s56, {WOA_I}"); e("s_add_u32 s57, s56, 4096")
    k.label(f"{nm}_s2")
    e("s_lshl_b32 s38, s48, 9"); e(f"s_add_u32 s38, s38, {U_B}"); e("s_cmp_ge_u32 s48, 320"); e("s_cselect_b32 s38, 0x7ff00000, s38")
    e("v_lshlrev_b32 v9, 2, v1")
    UP = lambda F: (36, 40, 44, 48, 52, 208, 212, 28)[F]
    def side_issue(tg):
        e("s_cmp_ge_u32 s48, 320"); e(f"s_cbranch_scc1 {nm}_{tg}i1")
        for i in range(8):
            e(f"s_add_u32 m0, s49, {1024*i}"); e(f"s_add_u32 s32, s27, {4*3840*i}")
            e(f"buffer_load_dwordx4 v{SV+(i>>1)%2}, s[52:55], s32 offen nt lds")
        e(f"s_branch {nm}_{tg}i2")
        k.label(f"{nm}_{tg}i1")
        e("s_cmp_ge_u32 s48, 640"); e(f"s_cbranch_scc1 {nm}_{tg}i2")
        for i in range(5):
            e(f"s_add_u32 m0, s49, {1024*i}"); e("s_nop 0")
            e(f"buffer_load_dwordx4 v{SV+i}, s[52:55], s27 offen nt lds")
        k.label(f"{nm}_{tg}i2")
    e("s_lshl_b32 s19, s16, 2"); e("s_add_u32 s19, s19, s18")
    for jf in range(4):
        e(f"v_xor_b32 v15, {jf}, v13"); e(f"v_lshl_add_u32 v{BA+jf}, v15, 6, v14"); e(f"v_add_u32 v{BA+4+jf}, 65536, v{BA+jf}")
    e("v_lshl_add_u32 v15, v2, 5, v10"); e("v_lshlrev_b32 v15, 7, v15"); e("v_bfe_u32 v12, v10, 1, 3"); e("v_xor_b32 v12, v12, v4")
    for q in range(4):
        e(f"v_xor_b32 v11, {2*q}, v12"); e(f"v_lshl_add_u32 v{AA+q}, v11, 4, v15"); e(f"v_add_u32 v{AA+4+q}, 65536, v{AA+q}")
    e("v_mul_u32_u24 v8, 20480, v7"); e("v_lshl_add_u32 v8, v4, 8, v8"); e("v_lshl_add_u32 v8, v5, 4, v8")
    e("s_mul_i32 s24, s19, 40960"); e(f"s_add_u32 s24, s24, {XI}")
    e("v_subrev_u32 v58, 1, v4"); e("v_not_b32 v59, v58")
    e("s_cmp_ge_u32 s17, 10"); e(f"s_cbranch_scc1 {nm}_qv")
    def side_finish(tg):
        e("s_waitcnt vmcnt(0) lgkmcnt(0)"); k.lg = []
        e("s_cmp_ge_u32 s48, 320"); e(f"s_cbranch_scc1 {nm}_{tg}f1")
        for F in range(8):
            for t in range(2): e(f"ds_read_b64_tr_b16 {vr(176+4*F+2*t,2)}, v{36+F} offset:{1024*t}")
        e(f"s_branch {nm}_{tg}f2")
        k.label(f"{nm}_{tg}f1")
        for nf in range(5):
            for t in range(2): e(f"ds_read_b64_tr_b16 {vr(176+4*nf+2*t,2)}, v{36+t if nf < 4 else 38+t} offset:{64*(nf//2)+8*(nf%2) if nf < 4 else 0}")
        k.label(f"{nm}_{tg}f2")
        k.lg = ["side"]
    def mainloop(vmode):
        tagm = "v" if vmode else "q"
        acc = lambda jf: vr(ACC+16*jf, 16)
        fl = k.capture(lambda: addr_v(k, 0) if vmode else addr_qk(k, 0, 28))
        def rdB(ks, f):
            u, jf = f//4, f%4; sl = slot(ks//2)
            for t in range(2):
                off = sl + (32*(ks%2) + 16*u + 4*t)*256
                k.dsop(f"ds_read_b64_tr_b16 {vr(BF+4*f+2*t,2)}, v{BA+4*(sl>>16)+jf} offset:{off & 0xffff}", f"b{ks}_{f}")
        def rdA(ks):
            sl = slot(ks//2)
            for u in range(2): k.dsop(f"ds_read_b128 {vr(AR+8*(ks%2)+4*u,4)}, v{AA+4*(sl>>16)+2*(ks%2)+u} offset:{sl & 0xffff}", f"b{ks}_a")
        kb = [-1]
        def bars(ks):
            while kb[0] < need(ks): e("s_barrier"); kb[0] += 1
        bars(0); k.stamp(3)
        rdA(0)
        for f in range(8): rdB(0, f)
        for ks in range(20):
            for f in range(8):
                u, jf = f//4, f%4
                k.waitlg(f"b{ks}_{f}")
                a = vr(AR+8*(ks%2)+4*u, 4); b = vr(BF+4*f, 4); c = acc(jf) if (ks or u) else "0"
                if vmode: e(f"v_mfma_f32_32x32x16_bf16 {acc(jf)}, {a}, {b}, {c}")
                else:     e(f"v_mfma_f32_32x32x16_bf16 {acc(jf)}, {b}, {a}, {c}")
                if ks + 1 < 20:
                    if f == 0: bars(ks+1); rdA(ks+1)
                    rdB(ks+1, f)
                if ks >= 4: k.fill(fl, 1)
            e(f"s_cmp_eq_u32 s17, {ks % 15}"); e(f"s_cbranch_scc0 {nm}_x{tagm}{ks}")
            e(f"s_add_u32 s32, s24, {1024*ks}")
            for u in range(2): e(f"buffer_store_dwordx4 {vr(AR+8*(ks%2)+4*u,4)}, v8, s[12:15], s32 offen offset:{512*u} {SC}")
            k.label(f"{nm}_x{tagm}{ks}")
            if ks in (0, 1, 4, 9, 10, 14): k.stamp(7 + (0, 1, 4, 9, 10, 14).index(ks))
            if ks == ENV('SI', '1') and ENV('SIDE', '1'): side_issue(tagm)
            if ks == SF: side_finish(tagm)
            if ks == SF + 1:
                k.waitlg("side")
                for r in range(4): e(f"v_mov_b32 v{60+r}, 0x3f803f80")
                for F in range(8): e(f"v_mfma_f32_16x16x32_bf16 {vr(28+4*(F%4)+(16 if F >= 4 else 0) if False else UP(F),4)}, v[60:63], {vr(176+4*F,4)}, 0")
            if ks == SF + 2:
                for q in range(2):
                    for g in range(1, 4):
                        e(f"v_cmp_eq_u32 vcc, {g}, v35"); e(f"v_cndmask_b32 v{UP(4*q)}, v{UP(4*q)}, v{UP(4*q+g)}, vcc")
                    e(f"buffer_store_dword v{UP(4*q)}, v9, s[12:15], s38 offen offset:{256*q} {SC}")
            if SF < ks <= SF + 8 and ENV('SIDE', '1'):
                F = ks - SF - 1
                k.waitlg("side")
                e(f"buffer_store_dwordx4 {vr(176+4*F,4)}, v3, s[12:15], s{56 if F < 4 else 57 if F == 4 else 58} offen offset:{1024*(F%4)} {SC}")
        assert not fl
        k.stamp(4)
        e(f"v_lshlrev_b32 v23, 2, v10"); e(f"v_add_u32 v23, {UT}, v23"); e("s_lshl_b32 s32, s18, 8"); e("v_add_u32 v22, s32, v23")
        if vmode: e("v_lshlrev_b32 v21, 4, v4"); e(f"s_add_u32 s32, s32, {UT}"); e("v_add_u32 v21, s32, v21")
        e("s_barrier")
        e("ds_read_b32 v48, v22 offset:1024"); e("ds_read_b32 v49, v22 offset:1152")
        for jf in range(4): e(f"ds_read_b32 v{28+2*jf}, v23 offset:{256*jf}"); e(f"ds_read_b32 v{29+2*jf}, v23 offset:{256*jf+128}")
        if vmode:
            for a_ in range(4): e(f"ds_read_b128 {vr(RS+4*a_,4)}, v21 offset:{2048+32*a_}")
        else: e("ds_read_b32 v47, v22 offset:2048")
        e("s_waitcnt lgkmcnt(0)"); k.lg = []
        e("v_and_b32 v48, v48, v58"); e("v_and_b32 v49, v49, v58")
        if not vmode: e("v_mul_f32 v47, s59, v47")
        for jf in range(4):
            if vmode: e(f"v_mfma_f32_32x32x8_bf16 {acc(jf)}, v[48:49], {vr(28+2*jf,2)}, {acc(jf)}")
            else:     e(f"v_mfma_f32_32x32x8_bf16 {acc(jf)}, {vr(28+2*jf,2)}, v[48:49], {acc(jf)}")
        k.stamp(5)
    mainloop(False)
    epi_qk(k, ACC, BF)
    k.label(f"{nm}_qv"); k.lg = []
    mainloop(True)
    epi_v(k, ACC, BF, RS)
    k.label(f"{nm}_fin5")
    k.stamp(6)
    e("s_barrier")
    signal(k, "sf", -1, 8, a0, 0, "s[12:15]")
    k.dump(13)
    e(f"s_branch {kn}_t0")
    k.label(f"{nm}_ld"); k.vm = []; k.lg = []
    e(f"s_setprio {ENV('LPRIO', '2')}")
    e("v_lshrrev_b32 v16, 4, v1"); e("v_and_b32 v17, 3, v2")
    e("v_lshl_add_u32 v18, v17, 2, v16"); e("v_mul_u32_u24 v20, 3840, v18")
    e("v_xor_b32 v18, v13, v16"); e("v_lshl_add_u32 v20, v18, 6, v20"); e("v_lshl_add_u32 v20, v6, 4, v20")
    e("v_lshrrev_b32 v18, 3, v1"); e("v_lshl_add_u32 v19, v17, 5, v18"); e("v_and_b32 v23, 7, v1")
    for i in range(4):
        e(f"v_add_u32 v42, {8*i}, v19"); e("v_bfe_u32 v43, v42, 1, 3"); e("v_xor_b32 v43, v43, v23")
        e("v_mul_u32_u24 v42, 1280, v42"); e(f"v_lshl_add_u32 v{48+i}, v43, 4, v42")
        if i: e(f"v_subrev_u32 v{48+i}, {1024*i}, v{48+i}")
    e("s_lshl_b32 s25, s17, 8"); e("s_mul_i32 s24, s16, 163840"); e("s_lshl_b32 s26, s39, 12")
    def ld1(st, n):
        if n < 4:
            e(f"s_add_u32 m0, s45, {slot(st)+16384+4096*n}"); e(f"s_add_u32 s32, s25, {(64*st+16*n)*3840}")
            k.vmop("buffer_load_dwordx4 v20, s[28:31], s32 offen lds", f"d{st}")
        else:
            e(f"s_add_u32 m0, s26, {slot(st)}"); e(f"s_add_u32 s33, s24, {128*st}")
            k.vmop(f"buffer_load_dwordx4 v{44+n}, s[8:11], s33 offen offset:{1024*(n-4)} lds", f"d{st}")
    ORD = [0, 4, 1, 5, 2, 6, 3, 7]
    def ld(st):
        for n in ORD: ld1(st, n)
    kwait(); ld(0)
    e("v_xor_b32 v15, v17, v13"); e("v_lshl_add_u32 v40, v15, 6, v14"); e("v_add_u32 v41, 65536, v40")
    for r in range(4): e(f"v_mov_b32 v{60+r}, 0x3f803f80")
    k.srd(52, 4, 256)
    e("s_mul_i32 s27, s17, 163840"); e("s_add_u32 s27, s27, s45"); e(f"s_add_u32 s27, s27, {WA_I}")
    if ENV('LD1', '0'): ld(1)
    done = [0]
    def steps_of(kb):
        r = []
        while done[0] < 20 and need(done[0]) <= kb: r.append(done[0]); done[0] += 1
        return r
    def wa_store(q):
        e("s_lshl_b32 s32, s16, 13"); e("s_add_u32 s32, s32, s27")
        if q: e("s_add_u32 s32, s32, 131072")
        e("s_add_u32 s33, s32, 4096")
        for u in range(2): k.vmop(f"buffer_store_dwordx4 {vr(112+8*q+4*u,4)}, v3, s[12:15], s{32+u} offen {SC}")
    for kb in range(10):
        if kb == 5: k.stamp(5)
        k.waitvm(f"d{kb}")
        if kb == 5: k.stamp(6)
        e("s_barrier")
        if kb in (4, 5): k.stamp(2 if kb == 4 else 7)
        if kb == 0 and not ENV('LD1', '0'): ld(1)
        sl = slot(kb); todo = list(ORD) if kb + DEP < 10 else []
        nxt = lambda: ld1(kb + DEP, todo.pop(0)) if todo else None
        sts = steps_of(kb)
        for n_, ks in enumerate(sts):
            for u in range(2):
                for t in range(2):
                    e(f"ds_read_b64_tr_b16 {vr(136+8*n_+4*u+2*t,2)}, v{40+(sl>>16)} offset:{(sl + (32*(ks%2) + 16*u + 4*t)*256) & 0xffff}")
        nxt(); nxt()
        if kb == 4: k.stamp(3)
        e("s_waitcnt lgkmcnt(0)")
        mf = [(n_, ks, u) for n_, ks in enumerate(sts) for u in range(2)]
        for n_, ks, u in mf:
            e(f"v_mfma_f32_32x32x16_bf16 v[64:79], v[60:63], {vr(136+8*n_+4*u,4)}, {'v[64:79]' if ks or u else 0}")
            nxt()
        nxt(); nxt()
        if kb == 4: k.stamp(4)
        for n_, ks in enumerate(sts):
            e(f"s_cmp_eq_u32 s16, {ks % 16}"); e(f"s_cbranch_scc0 {nm}_w{ks}")
            for r in range(8): e(f"v_mov_b32 v{112+8*(ks//16)+r}, v{136+8*n_+r}")
            k.label(f"{nm}_w{ks}")
        assert not todo
        if kb == 8:
            e("v_and_b32 v24, 15, v1"); e("v_lshlrev_b32 v24, 2, v24"); e("s_mov_b32 s33, 0")
            k.label(f"{nm}_pl")
            e(f"buffer_load_dword v25, v24, s[52:55], 0 offen {SC}"); e("s_add_u32 s33, s33, 1"); e("s_waitcnt vmcnt(0)"); k.vm = []
            e("v_cmp_eq_u32 vcc, 0, v25"); e("s_cmp_ge_u32 s33, 0x20000"); e(f"s_cbranch_scc1 {nm}_px")
            e(f"s_cbranch_vccnz {nm}_pl")
            k.label(f"{nm}_px")
            e("v_lshlrev_b32 v24, 3, v10"); e("s_lshl_b32 s32, s16, 10"); e("s_lshl_b32 s33, s39, 8"); e("s_add_u32 s32, s32, s33"); e(f"s_add_u32 s32, s32, {STI}")
            k.vmop(f"buffer_load_dwordx2 v[44:45], v24, s[12:15], s32 offen {SC}", "rs")
            wa_store(0)
    k.waitvm("rs")
    stats_finish(k, 44, 45, 28, 29, 30)
    split3(k, 28, 32, 36, 'm'); split3(k, 64, 34, 36, 'u')
    e("v_lshlrev_b32 v24, 2, v10"); e("s_lshl_b32 s32, s39, 8"); e(f"s_add_u32 s32, s32, {UT}"); e("v_add_u32 v24, s32, v24")
    e("ds_write_b32 v24, v34"); e("ds_write_b32 v24, v35 offset:128"); e("ds_write_b32 v24, v32 offset:1024"); e("ds_write_b32 v24, v33 offset:1152"); e("ds_write_b32 v24, v29 offset:2048")
    e("s_waitcnt lgkmcnt(0)"); e("s_barrier")
    lwc_init(k); e("s_barrier")
    e("v_mov_b32 v44, v64")
    e("s_cmp_ge_u32 s16, 4"); e(f"s_cbranch_scc1 {nm}_le"); wa_store(1)
    e("s_cmp_eq_u32 s16, 0"); e(f"s_cbranch_scc0 {nm}_le")
    e("v_mov_b32 v45, 0"); e("v_mov_b32 v46, 0"); e("v_mov_b32 v47, 0"); e("v_lshlrev_b32 v24, 4, v10")
    e("s_lshl_b32 s32, s17, 11"); e("s_lshl_b32 s33, s39, 9"); e("s_add_u32 s32, s32, s33"); e(f"s_add_u32 s32, s32, {U_A}")
    e("s_mov_b32 exec_hi, 0"); e(f"buffer_store_dwordx4 v[44:47], v24, s[12:15], s32 offen {SC}")
    k.label(f"{nm}_le")
    e("s_mov_b64 exec, -1")
    signal(k, "sfl", -1, 8, a0, 0, "s[12:15]")
    k.dump(8)
    e(f"s_branch {kn}_t0")
    k.label(f"{nm}_ub"); k.vm = []; k.lg = []
    kwait()
    e("v_lshrrev_b32 v4, 3, v1"); e("v_lshl_add_u32 v4, v2, 4, v4"); e("v_mul_u32_u24 v5, 1280, v4"); e("v_and_b32 v6, 7, v1"); e("v_lshl_add_u32 v5, v6, 4, v5")
    e("s_mul_i32 s24, s16, 163840"); e("s_add_u32 s25, s24, 10240")
    for b_ in range(2):
        for i in range(10): k.vmop(f"buffer_load_dwordx4 {vr(24+40*b_+4*i,4)}, v5, s[8:11], s{24+b_} offen offset:{128*i}", f"x{b_}{i}")
    for j in range(8): e(f"v_mov_b32 v{8+j}, 0")
    e("v_mov_b32 v7, 0x3f803f80")
    e("v_lshlrev_b32 v16, 4, v0"); e("s_and_b32 s26, s16, 7"); e("s_lshl_b32 s26, s26, 13"); e(f"s_add_u32 s26, s26, {CNT}"); e("s_cmp_ge_u32 s16, 8"); e(f"s_cselect_b32 s27, {LS}, 0"); e("s_add_u32 s26, s26, s27")
    k.vmop(f"buffer_store_dwordx4 v[12:15], v16, s[12:15], s26 offen {SC}")
    for b_ in range(2):
        for i in range(10):
            k.waitvm(f"x{b_}{i}")
            for q in range(4):
                r = 24+40*b_+4*i+q
                e(f"v_dot2_f32_bf16 v{8+2*b_}, v{r}, v7, v{8+2*b_}"); e(f"v_dot2_f32_bf16 v{9+2*b_}, v{r}, v{r}, v{9+2*b_}")
    for dpp in ("quad_perm:[1,0,3,2]", "quad_perm:[2,3,0,1]", "row_half_mirror"):
        for q in range(4): e(f"v_add_f32_dpp v{8+q}, v{8+q}, v{8+q} {dpp} row_mask:0xf bank_mask:0xf")
    e("v_lshlrev_b32 v4, 3, v4"); e("s_lshl_b32 s26, s16, 10"); e(f"s_add_u32 s26, s26, {STI}")
    e("v_cmp_eq_u32 vcc, 0, v6"); k.srd(52, 4, 256); e("s_mov_b64 exec, vcc")
    e(f"buffer_store_dwordx2 v[8:9], v4, s[12:15], s26 offen {SC}"); e(f"buffer_store_dwordx2 v[10:11], v4, s[12:15], s26 offen offset:64 {SC}")
    e("s_mov_b64 exec, -1"); lwc_init(k)
    e("s_waitcnt vmcnt(0)"); e("s_barrier")
    e("s_cmp_ge_u32 s18, 4"); e(f"s_cbranch_scc1 {nm}_u2")
    codepf("u")
    e("s_cmp_eq_u32 s18, 0"); e(f"s_cbranch_scc0 {nm}_u2")
    e("v_mov_b32 v4, 0"); e("v_mov_b32 v5, 1"); e("s_lshl_b32 s26, s16, 2"); e("s_mov_b64 exec, 1")
    e(f"buffer_store_dword v5, v4, s[52:55], s26 offen {SC}")
    e("s_mov_b64 exec, 0xffff"); e("v_lshlrev_b32 v4, 2, v1"); e("s_mov_b32 s33, 0")
    k.label(f"{nm}_u1")
    e(f"buffer_load_dword v5, v4, s[52:55], 0 offen {SC}"); e("s_add_u32 s33, s33, 1"); e("s_waitcnt vmcnt(0)")
    e("v_cmp_eq_u32 vcc, 0, v5"); e("s_cmp_ge_u32 s33, 0x20000"); e(f"s_cbranch_scc1 {nm}_u2"); e(f"s_cbranch_vccnz {nm}_u1")
    k.label(f"{nm}_u2")
    e("s_mov_b64 exec, -1"); e("s_waitcnt vmcnt(0)")

def k_main():
    k = KB(NAME + "_kernel"); e = k.e; name = k.name
    ph_front(k)
    k.label(f"{name}_t0")
    e("s_load_dwordx2 s[46:47], s[0:1], 48"); e("s_mov_b32 s3, 0")
    k.srd(8, 6, 2*LS)
    e("s_waitcnt lgkmcnt(0)")
    k.srd(60, 46, S*D*2)
    k.label(f"{name}_top")
    k.vm = []; k.lg = []
    e("s_setprio 0"); k.stamp(0); k.rstamp(1)
    ph_attn(k)
    def a1():
        e("s_lshl_b32 s48, s17, 3"); e("s_and_b32 s49, s16, 1"); e("s_add_u32 s48, s48, s49"); e("s_lshl_b32 s48, s48, 8"); e(f"s_add_u32 s48, s48, {C1}")
        e(f"v_lshlrev_b32 v{PV_+1}, 9, v1"); e("s_mov_b64 s[56:57], 15")
    e("s_cmp_ge_u32 s18, 4"); e(f"s_cbranch_scc1 {name}_ld")
    signal(k, "s1", 0, 8, a1)
    def c1():
        e("s_lshl_b32 s48, s16, 9"); e(f"s_add_u32 s48, s48, {C1}")
        e(f"v_lshlrev_b32 v{PV_+1}, 8, v1"); e(f"v_mov_b32 v{PV_+2}, 16"); e("s_mov_b64 s[56:57], 3")
    proj_c(k, "p2", OT, XI, XM, STM, False, c1, 0, 6)
    def a2():
        e("s_lshr_b32 s48, s16, 1"); e("s_lshl_b32 s48, s48, 9"); e(f"s_add_u32 s48, s48, {C2}")
        e(f"v_mul_u32_u24 v{PV_+1}, 768, v1"); e("s_bitcmp1_b32 s16, 0"); e("s_cselect_b64 s[56:57], 3, 1")
    signal(k, "s2", 1, 4, a2)
    qkvb_c(k, XM, STM, 9)
    def a3(): one(k, 0); e("s_lshl_b32 s48, s16, 8"); e(f"s_add_u32 s48, s48, {C3}")
    signal(k, "s3", 0, 4, a3)
    def c3(): one(k, 16); e("s_lshr_b32 s48, s16, 1"); e("s_lshl_b32 s48, s48, 8"); e(f"s_add_u32 s48, s48, {C3}")
    proj_c(k, "p4", OBT, XM, LS + XI, LS + STI, True, c3, 0, 12)
    def a4(): one(k, 0); e("s_lshr_b32 s48, s16, 1"); e("s_lshl_b32 s48, s48, 8"); e(f"s_add_u32 s48, s48, {C4}")
    signal(k, "s4", 1, 4, a4)
    k.dump(15, "1")
    ids_mt(k)
    e("s_cmp_ge_u32 s17, 15"); e(f"s_cbranch_scc1 {name}_idle")
    qkva_c(k, LS + XI, LS + STI, LS, C4, [7], 3)
    k.stamp(6)
    e("s_barrier")
    def a5(): e("s_lshl_b32 s48, s17, 11"); e(f"s_add_u32 s48, s48, {LS + C0}"); e(f"v_lshlrev_b32 v{PV_+1}, 8, v1"); e("s_mov_b64 s[56:57], 0xff")
    signal(k, "s5", -1, 4, a5)
    k.dump(7, "3")
    k.label(f"{name}_t1")
    e("s_mov_b32 s3, 1"); e(f"s_add_u32 s8, s8, {LS}"); e("s_addc_u32 s9, s9, 0"); e(f"s_mov_b32 s10, {LS}")
    e(f"s_branch {name}_top")
    k.label(f"{name}_idle")
    for _ in range(4): e("s_barrier")
    e(f"s_branch {name}_t1")
    k.label(f"{name}_ld"); k.vm = []; k.lg = []
    e(f"s_setprio {ENV('LPRIO', '2')}")
    w = proj_l(k, WOA_I, WB_I, OT, a1, 0)
    qkvb_l(k, XM, STM, w)
    w = proj_l(k, WOB_I, WA_I, OBT, None, 0, True)
    ids_mt(k)
    atouch_pre(k, LS + XI)
    e("s_barrier")
    e("buffer_load_dword v20, v21, s[8:11], s51 offen")
    w.one(39); e("s_waitcnt vmcnt(0)"); e("s_barrier")
    e("s_barrier"); lwc_init(k); e("s_barrier")
    e(f"s_branch {name}_t1")
    k.label(f"{name}_end"); e("s_endpgm")
    k.tail()
    return k.text(248 if STAMP else 244, 248 if STAMP else 244)

def build():
    hdr = open("cdna_kernels/" + NAME + ".s.ref").read().split("; Override launch")[0]
    out = hdr + "; @launch grid=(256,1,1) block=(512,1,1) lds=163840\n"
    out += '.amdgcn_target "amdgcn-amd-amdhsa--gfx950"\n'
    out += k_main()
    out += ".text\ncode_end:\n"
    return out

if __name__ == "__main__":
    dst = sys.argv[1] if len(sys.argv) > 1 else "cdna_kernels/" + NAME + ".s"
    open(dst, "w").write(build())
    print("wrote", dst)
```

```python
import sys, math
from lint import lint, fix

NAME = "interleave_layers__softmax_full_mha__sliding_local_dilated__prompt"
S, D, H, DH = 2048, 640, 32, 20
XS = S*D*2
IMG = H*64*2560
QI = H*64*1280
OT = 0; OBT = XS; XM = 2*XS; XI = 3*XS
STM = 4*XS; STI = STM + S*64
QIMG = STI + S*64; KVIMG = QIMG + QI
CNT = KVIMG + IMG
C1 = CNT; C2 = C1 + 64*256; C3 = C2 + 34*256; C4 = C3 + 16*256; C0 = C4 + 16*256
LS = CNT + 65536
U_A = 2*LS
U_B = U_A + 32768
WA_I = U_B + 163840
WOA_I = WA_I + 15*163840
WB_I = WOA_I + 819200
WOB_I = WB_I + 16*163840
STAMPS = WOB_I + 819200
WS_END = STAMPS + 16*262144
import os
STAMP = int(os.environ.get("STAMP", "0"))
ATTN_WAVES = 8
AV = os.environ.get("AV", "")
CSCALE = (DH ** -0.5) * math.log2(math.e)
import struct
def fbits(x): return "0x%08x" % struct.unpack("<I", struct.pack("<f", x))[0]

FM = [(0,16),(32,48),(80,96),(112,128),(64,144)]
def FX(ks, t):
    return 160*(ks//5) + FM[ks%5][t]

class KB:
    def __init__(s, name):
        s.name = name; s.L = []; s.vm = []; s.lg = []; s.cap = None
    def e(s, line):
        if s.cap is not None: s.cap.append(('e', line, None))
        else: s.L.append("    " + line)
    def capture(s, fn):
        s.cap = []; fn(); c = s.cap; s.cap = None
        return [x for x in c if not (x[0] == 'e' and x[1].startswith('s_nop'))]
    def fill(s, lst, n=1):
        for _ in range(n):
            if not lst: return
            kind, a, b = lst.pop(0)
            if kind == 'e':
                s.e(a)
                if a.startswith('s_cmp'):
                    while lst and lst[0][0] == 'e' and lst[0][1].startswith('s_cselect'): s.e(lst.pop(0)[1])
            elif kind == 'ds': s.dsop(a, b)
            elif kind == 'wvm': s.waitvm(a)
            elif kind == 'wlg': s.waitlg(a)
    def c(s, txt): s.L.append("    ; " + txt)
    def label(s, l): s.L.append(l + ":")
    def vmop(s, line, tag=None): s.e(line); s.vm.append(tag); assert len(s.vm) <= 63, (s.name, len(s.vm))
    def dsop(s, line, tag=None):
        if s.cap is not None: s.cap.append(('ds', line, tag)); return
        s.e(line); s.lg.append(tag)
    def _n(s, lst, tag):
        idx = max(i for i, t in enumerate(lst) if t == tag)
        return idx
    def waitvm(s, tag):
        if s.cap is not None: s.cap.append(('wvm', tag, None)); return
        if tag not in s.vm: return
        i = s._n(s.vm, tag); n = len(s.vm) - 1 - i
        s.e(f"s_waitcnt vmcnt({n})"); s.vm = s.vm[i+1:]
    def waitlg(s, tag):
        if s.cap is not None: s.cap.append(('wlg', tag, None)); return
        if tag not in s.lg: return
        i = s._n(s.lg, tag); n = len(s.lg) - 1 - i
        if n > 15: n = 15; i = len(s.lg) - 1 - n
        s.e(f"s_waitcnt lgkmcnt({n})"); s.lg = s.lg[i+1:]
    def waitall(s):
        s.e("s_waitcnt vmcnt(0) lgkmcnt(0)"); s.vm = []; s.lg = []
    def srd(s, r, base, nbytes):
        s.e(f"s_mov_b32 s{r}, s{base}")
        s.e(f"s_and_b32 s{r+1}, s{base+1}, 0xffff")
        s.e(f"s_mov_b32 s{r+2}, {nbytes}")
        s.e(f"s_mov_b32 s{r+3}, 0x20000")
    def stamp(s, i):
        if not STAMP: return
        op = "s_memrealtime" if os.environ.get("RT") else "s_memtime"
        s.e(f"{op} s[{64+2*i}:{65+2*i}]" if i < 10 else f"{op} s[{72+2*i}:{73+2*i}]")
    def rstamp(s, i):
        if not STAMP: return
        s.e(f"s_memrealtime s[{64+2*i}:{65+2*i}]")
    def dump(s, n=8, slot="0", wave="s18"):
        if not STAMP: return
        e = s.e
        if os.environ.get("DBG"):
            keep = {"0": [(1, 246), (3, 247), (6, 248)], "1": [(2, 249), (5, 250), (14, 251)], "3": [(6, 252)], "2": [(2, 253), (5, 254), (14, 255)]}[slot]
            e("s_waitcnt lgkmcnt(0)")
            if n < 7 or (slot == "0" and n == 8): return
            for i, v in keep: e(f"v_mov_b32 v{v}, s{64+2*i if i < 10 else 72+2*i}")
            if slot == "2":
                e(f"s_cmp_eq_u32 s2, {os.environ['DBG']}"); e("s_cbranch_scc0 dbg_skip"); e("s_cmp_eq_u32 s18, 0"); e("s_cbranch_scc0 dbg_skip")
                e("s_load_dwordx2 s[84:85], s[0:1], 56"); e("s_memrealtime s[86:87]"); e("s_waitcnt lgkmcnt(0)")
                s.srd(88, 84, 256); e("s_mov_b64 exec, 1"); e("v_mov_b32 v0, 0"); e("v_mov_b32 v245, s86"); e("v_sub_u32 v245, v245, v246")
                for i in range(9):
                    e(f"v_sub_u32 v{247+i}, v{247+i}, v246"); e(f"buffer_store_dword v{247+i}, v0, s[88:91], 0 offen offset:{4*i}")
                e("buffer_store_dword v245, v0, s[88:91], 0 offen offset:36")
                s.label("dbg_skip")
            return
        e("s_memrealtime s[86:87]"); e("s_waitcnt lgkmcnt(0)")
        e("s_mov_b64 exec, 1")
        e(f"s_lshl_b32 s84, {slot}, 18")
        e("s_lshl_b32 s85, s2, 3"); e(f"s_add_u32 s85, s85, {wave}"); e("s_lshl_b32 s85, s85, 6"); e(f"s_add_u32 s85, s85, {STAMPS}"); e("s_add_u32 s85, s85, s84")
        e("v_mov_b32 v244, 0")
        for i in range(n):
            e(f"v_mov_b32 v245, s{64+2*i if i < 10 else 72+2*i}")
            e(f"buffer_store_dword v245, v244, s[12:15], s85 offen offset:{4*i}")
        e("v_mov_b32 v245, s86"); e("buffer_store_dword v245, v244, s[12:15], s85 offen offset:60")
        e("s_mov_b64 exec, -1")
    def text(s, vgpr, accum, sgpr=102):
        s.L, added = fix(s.L)
        if os.environ.get("V"): print(s.name, "auto nops:", added, "lines:", len(s.L))
        out = [".text", f".globl {s.name}", ".p2align 8", f".type {s.name},@function", f"{s.name}:"]
        out += s.L
        out += ['.section .rodata,"a"', ".p2align 6", f".amdhsa_kernel {s.name}",
                f"  .amdhsa_next_free_vgpr {vgpr}", f"  .amdhsa_next_free_sgpr {sgpr}", f"  .amdhsa_accum_offset {accum}",
                "  .amdhsa_group_segment_fixed_size 0", "  .amdhsa_kernarg_size 72", "  .amdhsa_user_sgpr_count 2",
                "  .amdhsa_user_sgpr_kernarg_segment_ptr 1", "  .amdhsa_system_sgpr_workgroup_id_x 1", ".end_amdhsa_kernel"]
        nb = lint(s.L, s.name)
        assert nb == 0, f"{nb} hazards in {s.name}"
        return "\n".join(out) + "\n"
    def allred32(s, op, v, t):
        s.e(f"v_mov_b32 v{t}, v{v}"); s.e("s_nop 1")
        s.e(f"v_permlane32_swap_b32 v{v}, v{t}"); s.e("s_nop 1")
        s.e(f"{op} v{v}, v{v}, v{t}")
    def allred16(s, op, v, t):
        s.e(f"v_mov_b32 v{t}, v{v}"); s.e("s_nop 1")
        s.e(f"v_permlane16_swap_b32 v{v}, v{t}"); s.e("s_nop 1")
        s.e(f"{op} v{v}, v{v}, v{t}")

def vr(a, n): return f"v[{a}:{a+n-1}]" if n > 1 else f"v{a}"
def ar(a, n): return f"a[{a}:{a+n-1}]" if n > 1 else f"a{a}"

def stats_finish(k, s1, s2, mean, rstd, t):
    e = k.e
    e(f"v_mul_f32 v{mean}, {fbits(1.0/D)}, v{s1}")
    e(f"v_mul_f32 v{t}, {fbits(1.0/D)}, v{s2}")
    e(f"v_fma_f32 v{t}, -v{mean}, v{mean}, v{t}")
    e(f"v_max_f32 v{t}, 0, v{t}")
    e(f"v_add_f32 v{t}, {fbits(1e-5)}, v{t}")
    e(f"v_rsq_f32 v{rstd}, v{t}")
    e("s_nop 0")

def split3(k, src, d, t, kind, maskv=None):
    e = k.e
    if kind == 'm':
        e(f"v_xor_b32 v{t+1}, 0x80000000, v{src}"); src = t+1
    e(f"v_and_b32 v{t}, 0xffff0000, v{src}")
    e(f"v_sub_f32 v{t+2}, v{src}, v{t}")
    if kind == 'u':
        e(f"v_cvt_pk_bf16_f32 v{d}, v{t}, v{t+2}")
        e(f"v_lshrrev_b32 v{d+1}, 16, v{t}")
    else:
        e(f"v_cvt_pk_bf16_f32 v{d}, v{t}, v{t}")
        e(f"v_cvt_pk_bf16_f32 v{d+1}, v{t+2}, 0")
    if maskv is not None:
        e(f"v_and_b32 v{d}, v{d}, v{maskv}"); e(f"v_and_b32 v{d+1}, v{d+1}, v{maskv}")

SC = "sc1"
EARLY = int(os.environ.get('EARLY', '6'))
ENV = lambda n, d: int(os.environ.get(n, d))

def ids_mt(k):
    k.e("s_lshl_b32 s22, s20, 1"); k.e("s_and_b32 s23, s21, 1"); k.e("s_add_u32 s16, s22, s23"); k.e("s_lshr_b32 s17, s21, 1")
def ids_rt(k):
    k.e("s_lshl_b32 s22, s20, 2"); k.e("s_and_b32 s23, s21, 3"); k.e("s_add_u32 s16, s22, s23"); k.e("s_lshr_b32 s17, s21, 2")

LW = 163824
PV_ = 240
def lw_init(k):
    e = k.e
    e(f"v_mov_b32 v{PV_+3}, {LW}")
    for i in range(3): e(f"v_mov_b32 v{PV_+i}, 0")
    e(f"ds_write_b96 v{PV_+3}, v[{PV_}:{PV_+2}]"); e(f"ds_write_b32 v{PV_+3}, v{PV_} offset:12")

def lwc_init(k):
    k.e(f"v_mov_b32 v{PV_+3}, {LW-8}"); k.e(f"v_mov_b32 v{PV_}, 0"); k.e(f"v_mov_b32 v{PV_+1}, 0")
    k.e(f"ds_write_b64 v{PV_+3}, v[{PV_}:{PV_+1}]"); k.e("s_waitcnt lgkmcnt(0)")

def signal(k, tag, word, nw, addr_code, younger=0, srd="s[8:11]"):
    e = k.e
    addr_code()
    e(f"v_mov_b32 v{PV_+3}, {LW-8}"); e(f"v_mov_b32 v{PV_}, 1")
    e("s_mov_b64 exec, 1")
    assert younger == 0
    e("s_waitcnt vmcnt(0)"); k.vm = []
    if tag == os.environ.get("FOC"): k.stamp(2)
    e(f"ds_add_rtn_u32 v{PV_+2}, v{PV_+3}, v{PV_} offset:{8*word+8}")
    e("s_waitcnt lgkmcnt(0)"); k.lg = []
    e(f"v_readfirstlane_b32 s49, v{PV_+2}")
    e("s_mov_b64 exec, s[56:57]")
    e(f"s_cmp_eq_u32 s49, {nw-1}"); e(f"s_cbranch_scc0 {k.name}_{tag}_sg")
    e(f"buffer_atomic_add v{PV_}, v{PV_+1}, {srd}, s48 offen {SC}")
    if os.environ.get("FOC2") == tag: k.stamp(4)
    k.label(f"{k.name}_{tag}_sg")
    e("s_mov_b64 exec, -1")

def wait_go(k, tag, word, poll_code):
    e = k.e; nm = f"{k.name}_{tag}"
    e(f"v_mov_b32 v{PV_+3}, {LW-8}"); e("s_mov_b32 s49, 0")
    if poll_code:
        e("s_cmp_eq_u32 s18, 0"); e(f"s_cbranch_scc0 {nm}_sp")
        poll_code()
        e("s_mov_b64 exec, s[56:57]")
        if os.environ.get("FOC") == "g" + tag: k.stamp(2)
        k.label(f"{nm}_pl")
        e(f"v_mov_b32 v{PV_}, 0")
        e(f"buffer_atomic_add v{PV_}, v{PV_+1}, s[8:11], s48 offen sc0 sc1")
        e("s_add_u32 s49, s49, 1")
        e("s_waitcnt vmcnt(0)")
        e(f"v_cmp_ge_u32 vcc, v{PV_}, v{PV_+2}")
        e("s_cmp_ge_u32 s49, 0x20000"); e(f"s_cbranch_scc1 {nm}_px")
        e("s_cmp_eq_u64 vcc, exec"); e(f"s_cbranch_scc0 {nm}_pl")
        k.label(f"{nm}_px")
        if os.environ.get("FOC") == "g" + tag: e("s_add_u32 s70, s64, s49")
        e("s_mov_b64 exec, 1"); e(f"v_mov_b32 v{PV_}, 1")
        e(f"ds_write_b32 v{PV_+3}, v{PV_} offset:{8*word+12}")
        e(f"s_branch {nm}_go")
    k.label(f"{nm}_sp")
    e("s_sleep 1")
    e(f"ds_read_b32 v{PV_}, v{PV_+3} offset:{8*word+12}")
    e("s_add_u32 s49, s49, 1")
    e("s_waitcnt lgkmcnt(0)")
    e(f"v_readfirstlane_b32 s44, v{PV_}")
    e("s_cmp_ge_u32 s49, 0x400000"); e(f"s_cbranch_scc1 {nm}_go")
    e("s_cmp_eq_u32 s44, 0"); e(f"s_cbranch_scc1 {nm}_sp")
    k.label(f"{nm}_go")
    e("s_mov_b64 exec, -1")

class Wdma:
    def __init__(s, k, n, base=50, tag="w"): s.k = k; s.n = n; s.i = 0; s.base = base; s.tag = tag
    def one(s, i):
        s.k.e(f"s_add_u32 m0, s45, {4096*i}"); s.k.e(f"s_add_u32 s32, s{s.base}, {4096*i}")
        s.k.vmop(f"buffer_load_dwordx4 v3, s[12:15], s32 offen {SC} lds", f"{s.tag}{i}")
    def go(s, upto):
        while s.i < min(upto, s.n): s.one(s.i); s.i += 1
    def rng(s, a, b, thr=0):
        for i in range(a, b):
            s.one(i)
            if thr and len(s.k.vm) >= thr: s.k.e(f"s_waitcnt vmcnt({thr-1})"); s.k.vm = s.k.vm[len(s.k.vm)-thr+1:]

def ph_attn(k):
    e = k.e; nm = k.name
    KA, KT, VA = 4, 5, 6
    Q = [8, 14]; KF = [24, 32]; VF = [40, 48]; SS = [56, 72]; P = 88; O = [96, 112]; PF = 128
    SCR = 128000; TOP = 128000
    ids_rt(k)
    e("v_and_b32 v3, 31, v1"); e("v_lshrrev_b32 v7, 5, v1")
    e("v_lshlrev_b32 v22, 4, v1"); e("v_lshlrev_b32 v23, 3, v3")
    e("s_mul_i32 s19, s16, 163840")
    e("s_lshr_b32 s41, s18, 2")
    e("s_lshl_b32 s23, s17, 3"); e("s_lshl_b32 s22, s39, 1"); e("s_add_u32 s23, s23, s22")
    e("s_add_u32 s23, s23, s41")
    e("s_lshr_b32 s22, s19, 1"); e(f"s_add_u32 s22, s22, {QIMG}")
    e("s_mul_i32 s24, s23, 1280"); e("s_add_u32 s24, s24, s22"); e("s_xor_b32 s40, s23, 1"); e("s_mul_i32 s40, s40, 1280"); e("s_add_u32 s40, s40, s22")
    e("s_mul_i32 s42, s41, 2560"); e(f"s_add_u32 s42, s42, {TOP}")
    e("s_lshl_b32 s25, s18, 10")
    e(f"s_add_u32 s26, s19, {KVIMG}")
    rnd = [0]
    def dma():
        i = rnd[0]; rnd[0] += 1
        if i == 4:
            e("s_cmp_lt_u32 s18, 3"); e("s_cselect_b32 s27, 163840, 0"); e("s_add_u32 s27, s27, s25"); e("s_sub_u32 m0, s27, 3072")
        else: e(f"s_add_u32 m0, s25, {(TOP + 8192*i) if i < 4 else 8192*i - 35840}")
        e("s_add_u32 s27, s26, m0")
        k.vmop(f"buffer_load_dwordx4 v22, s[8:11], s27 offen {SC} lds", f"i{i}")
    e(f"v_add_u32 v{KA}, s42, v22")
    e(f"v_add_u32 v{KT}, s42, v23"); e(f"v_add_u32 v{KT}, 1024, v{KT}")
    e("v_mul_u32_u24 v21, 20, v7"); e("v_add_u32 v21, v21, v3"); e("v_lshlrev_b32 v21, 4, v21")
    e("v_add_u32 v21, 1280, v21"); e(f"v_add_u32 v{VA}, s42, v21")
    e("s_mov_b32 s28, 0x000fffff"); e("s_mov_b32 s29, 0x000fffff")
    e("v_cmp_eq_u32 vcc, 20, v3"); e("v_mov_b32 v20, 0x3f803f80"); e("s_nop 0")
    e("v_cndmask_b32 v20, 0, v20, vcc")
    for r in range(16): e(f"v_mov_b32 v{VF[0]+r}, v20")
    for r in range(32): e(f"v_mov_b32 v{O[0]+r}, 0")
    for r in range(4): e(f"v_mov_b32 v{P+4+r}, 0")
    e("v_subrev_u32 v30, 1, v7")
    e("s_lshl_b32 s43, s21, 3"); e("s_add_u32 s43, s43, s18"); e("s_mul_i32 s43, s43, 14336"); e(f"s_add_u32 s43, s43, {WOA_I}")
    e("s_mul_i32 s32, s23, 40960"); e(f"s_add_u32 s32, s32, {OT}")
    e("s_lshr_b32 s51, s16, 1"); e("s_lshl_b32 s51, s51, 10"); e("s_and_b32 s34, s16, 1"); e("s_lshl_b32 s34, s34, 9")
    e("s_add_u32 s51, s51, s34"); e("s_add_u32 s51, s51, s32")
    e("s_lshr_b32 s52, s16, 3"); e("s_add_u32 s52, s52, 16"); e("s_lshl_b32 s52, s52, 10"); e("s_add_u32 s52, s52, s32")
    e("s_and_b32 s35, s16, 3"); e("s_lshl_b32 s35, s35, 8"); e("s_add_u32 s52, s52, s35")
    e("s_bfe_u32 s35, s16, 0x10002"); e("s_lshl_b32 s35, s35, 3"); e("s_add_u32 s52, s52, s35")
    e("v_lshrrev_b32 v38, 4, v3"); e("v_mul_u32_u24 v38, 20480, v38"); e("v_and_b32 v39, 15, v3")
    e("v_lshl_add_u32 v38, v39, 4, v38"); e("v_lshl_add_u32 v39, v7, 8, v38")
    e("s_lshl_b32 s59, s18, 10"); e("s_mul_i32 s50, s17, 102400"); e("s_add_u32 s50, s50, s59"); e(f"s_add_u32 s50, s50, {WOA_I}")
    e("s_mul_i32 s32, s18, 3072"); e("s_xor_b32 s33, s18, 4"); e("s_mul_i32 s33, s33, 3072")
    e(f"v_add_u32 v132, {SCR}, v22"); e("v_add_u32 v133, s33, v132"); e("v_add_u32 v132, s32, v132")
    def c0(nl):
        e("s_lshl_b32 s48, s17, 8"); e(f"s_add_u32 s48, s48, {C0}"); e(f"v_mov_b32 v{PV_+2}, 16")
        e("s_mul_i32 s32, s16, 20"); e("s_add_u32 s33, s32, 19"); e("s_lshr_b32 s32, s32, 7"); e("s_lshr_b32 s33, s33, 7"); e("s_sub_u32 s33, s33, s32")
        e(f"v_lshrrev_b32 v{PV_+1}, 1, v1"); e(f"v_mul_u32_u24 v{PV_+1}, 5, v{PV_+1}"); e(f"v_and_b32 v{PV_}, s33, v1"); e(f"v_add3_u32 v{PV_+1}, v{PV_+1}, v{PV_}, s32")
        e(f"v_lshlrev_b32 v{PV_+1}, 11, v{PV_+1}"); e("s_mov_b64 s[56:57], 63")
    wait_go(k, "t", -1, lambda: c0(6))
    k.stamp(2)
    dma()
    for x in range(2):
        k.vmop(f"buffer_load_dwordx4 {vr(Q[x],4)}, v22, s[8:11], s{(24,40)[x]} offen {SC}", "q")
        k.vmop(f"buffer_load_dwordx2 {vr(Q[x]+4,2)}, v23, s[8:11], s{(24,40)[x]} offen offset:1024 {SC}", "q")
    for _ in range(3): dma()
    e("v_lshlrev_b32 v134, 11, v1"); e("s_lshl_b32 s44, s17, 8"); e(f"s_add_u32 s44, s44, {C0}")
    k.waitvm("q")
    for x in range(2):
        e(f"v_and_b32 v{Q[x]+4}, v{Q[x]+4}, v30"); e(f"v_and_b32 v{Q[x]+5}, v{Q[x]+5}, v30")
    k.waitvm("i1"); e("s_barrier"); k.stamp(3)
    def rdK(buf, off):
        off *= 2
        e(f"ds_read_b128 {vr(KF[buf],4)}, v{KA} offset:{off}")
        e(f"ds_read_b64 {vr(KF[buf]+4,2)}, v{KT} offset:{off}")
    def rdV(buf, off):
        off *= 2
        e("s_mov_b64 exec, s[28:29]")
        e(f"ds_read_b128 {vr(VF[buf],4)}, v{VA} offset:{off}")
        e(f"ds_read_b128 {vr(VF[buf]+4,4)}, v{VA} offset:{off+640}")
        e("s_mov_b64 exec, -1")
    def qkm(x, kb): e(f"v_mfma_f32_32x32x16_bf16 {vr(SS[x],16)}, {vr(KF[kb],4)}, {vr(Q[x],4)}, 0")
    def qkt(x, kb): e(f"v_mfma_f32_32x32x8_bf16 {vr(SS[x],16)}, {vr(KF[kb]+4,2)}, {vr(Q[x]+4,2)}, {vr(SS[x],16)}")
    def pv(x, vb, u): e(f"v_mfma_f32_32x32x16_bf16 {vr(O[x],16)}, {vr(VF[vb]+4*u,4)}, {vr(P+4*u,4)}, {vr(O[x],16)}")
    def unit(x, t, extra=None, peel=False):
        p = t % 2; s = SS[x]
        ex = lambda i: e(f"v_exp_f32 v{s+i}, v{s+i}")
        cv = lambda i: e(f"v_cvt_pk_bf16_f32 v{P+i}, v{s+2*i}, v{s+2*i+1}")
        kb = p if x == 0 else 1-p
        if x == 1: e("s_waitcnt lgkmcnt(2)")
        qkm(1-x, kb)
        if x == 1:
            if peel and t == 5:
                for r in (KA, KT): e(f"v_subrev_u32 v{r}, {TOP}, v{r}")
            rdK(p, (t+2-(7 if peel and t >= 5 else 0))*2560)
        for i in range(0, 4): ex(i)
        if x == 0:
            pv(1, 1-p, 1)
            if peel and t == 6: e(f"v_subrev_u32 v{VA}, {TOP}, v{VA}")
            rdV(1-p, (t+1-(7 if peel and t >= 6 else 0))*2560)
        else:
            pv(0, p, 1)
        if extra: extra()
        for i in range(4, 8): ex(i)
        for i in range(0, 4): cv(i)
        qkt(1-x, kb)
        for i in range(8, 12): ex(i)
        if x == 0: e("s_waitcnt lgkmcnt(4)")
        pv(x, p, 0)
        for i in range(12, 16): ex(i)
        for i in range(4, 8): cv(i)
    rdK(0, 0); rdV(0, 0); rdK(1, 2560)
    e("s_waitcnt lgkmcnt(4)")
    qkm(0, 0); e("s_nop 10"); qkt(0, 0); e("s_nop 10")
    SYN = {1: 3, 4: 7, 7: 19}; PEEL = 8
    for t in range(PEEL):
        if t in SYN: k.waitvm(f"i{SYN[t]}"); e("s_barrier")
        if t == 7:
            e("s_cmp_ge_u32 s18, 4"); e(f"s_cbranch_scc0 {nm}_np"); e("s_setprio 1"); k.label(f"{nm}_np")
        d2 = lambda: (dma(), dma())
        unit(0, t, d2 if rnd[0] < 20 else (lambda: lw_init(k)) if t == 7 else None, True)
        unit(1, t, d2 if rnd[0] < 20 else None, True)
    for r in (KA, KT, VA): e(f"v_add_u32 v{r}, {(PEEL-7)*5120}, v{r}")
    e("s_mov_b32 s31, 0"); e("s_cmp_eq_u32 s18, 0"); e("s_cselect_b32 s55, 1, 99"); e("v_mov_b32 v135, 16")
    if os.environ.get("FOC") == "at": k.stamp(2)
    def pref():
        e(f"buffer_load_dwordx4 {vr(PF,4)}, v22, s[12:15], s43 offen {SC}"); e("s_add_u32 s43, s43, 1024")
    e(".p2align 3")
    body_start = len(k.L)
    k.label(f"{nm}_aloop")
    NT = 4; NIT = (32 - PEEL)//NT; SW = ENV('SW', '19')
    for t in range(NT):
        def sw():
            e(f"s_cmp_eq_u32 s31, {SW//NT}"); e(f"s_cbranch_scc0 {nm}_l1"); e("s_setprio 0"); k.label(f"{nm}_l1")
        def late():
            e("s_cmp_eq_u32 s31, s55"); e(f"s_cbranch_scc0 {nm}_l2")
            e("s_mov_b64 exec, 0x7fff"); e("v_mov_b32 v135, 0"); e("buffer_atomic_add v135, v134, s[8:11], s44 offen sc0 sc1"); e("s_mov_b64 exec, -1")
            k.label(f"{nm}_l2")
        unit(0, t, pref if t != 3 else late); unit(1, t, sw if t == SW % NT else None)
    for r in (KA, KT, VA): e(f"v_add_u32 v{r}, {NT*5120}, v{r}")
    e("s_add_u32 s31, s31, 1")
    e(f"s_cmp_lt_u32 s31, {NIT}"); e(f"s_cbranch_scc1 {nm}_aloop")
    body = k.L[body_start:]
    assert lint(body + body, "attn_loop2") == 0
    pv(1, 1, 1); k.stamp(4)
    e("s_mov_b32 s30, 0")
    e(f"s_mov_b32 s32, {fbits(2.0**-60)}"); e(f"s_mov_b32 s33, {fbits(2.0**100)}"); e(f"s_mov_b32 s34, {fbits(2.0**126)}")
    e("s_nop 7")
    for i in range(3): e(f"ds_write_b128 v132, {vr(O[1]+4*i,4)} offset:{1024*i}")
    e("s_waitcnt vmcnt(0)"); e("v_cmp_gt_u32 vcc, 16, v135"); e("s_and_b32 s36, vcc_lo, 0x7fff"); e(f"s_cbranch_scc1 {nm}_late")
    k.label(f"{nm}_lok")
    e("s_waitcnt lgkmcnt(0)"); e("s_barrier")
    for i in (2, 0, 1): e(f"ds_read_b128 {vr(SS[0]+4*i,4)}, v133 offset:{1024*i}")
    OO = O[0]
    e("s_waitcnt lgkmcnt(2)")
    for r in range(8, 12): e(f"v_add_f32 v{OO+r}, v{OO+r}, v{SS[0]+r}")
    e("s_waitcnt lgkmcnt(0)")
    for r in range(8): e(f"v_add_f32 v{OO+r}, v{OO+r}, v{SS[0]+r}")
    k.label(f"{nm}_chk")
    e(f"v_mov_b32 v30, v{OO+8}"); e(f"v_mov_b32 v31, v{OO+8}")
    e(f"v_max3_f32 v28, abs(v{OO}), abs(v{OO+1}), abs(v{OO+2})")
    e("v_permlane32_swap_b32 v30, v31")
    for r in range(3, 11, 2): e(f"v_max3_f32 v28, abs(v{OO+r}), abs(v{OO+r+1}), v28")
    e(f"v_max_f32 v28, abs(v{OO+11}), v28")
    e("v_cmp_le_f32 vcc, s32, v31"); e("v_cmp_ge_f32 s[36:37], s33, v31"); e("v_cmp_gt_f32 s[40:41], s34, v28")
    e("v_rcp_f32 v31, v31")
    e("s_and_b64 s[36:37], s[36:37], vcc"); e("s_and_b64 s[36:37], s[36:37], s[40:41]")
    e("s_cmp_eq_u64 s[36:37], -1"); e(f"s_cbranch_scc0 {nm}_slow")
    def slowpath():
        k.label(f"{nm}_late")
        e("s_mov_b32 s49, 0"); e("s_mov_b64 exec, 0x7fff")
        k.label(f"{nm}_late1")
        e("v_mov_b32 v135, 0"); e("buffer_atomic_add v135, v134, s[8:11], s44 offen sc0 sc1"); e("s_add_u32 s49, s49, 1"); e("s_waitcnt vmcnt(0)")
        e("v_cmp_gt_u32 vcc, 16, v135"); e("s_cmp_ge_u32 s49, 0x20000"); e("s_cselect_b32 s36, 0, vcc_lo"); e("s_cmp_lg_u32 s36, 0"); e(f"s_cbranch_scc1 {nm}_late1")
        e("s_mov_b64 exec, -1"); e(f"s_branch {nm}_lok")
        k.label(f"{nm}_slow")
        e("s_cmp_eq_u32 s30, 0"); e(f"s_cbranch_scc0 {nm}_fin")
        e("s_mov_b32 s30, 1")
        e("s_waitcnt vmcnt(0)")
        NM = O[1]
        e("v_mov_b32 v32, 0xff800000")
        def slowqk(c):
            e(f"buffer_load_dwordx4 {vr(KF[0],4)}, v22, s[8:11], s27 offen {SC}")
            e(f"buffer_load_dwordx2 {vr(KF[0]+4,2)}, v23, s[8:11], s27 offen offset:1024 {SC}")
            e("s_waitcnt vmcnt(0)")
            e(f"v_mfma_f32_32x32x16_bf16 {vr(SS[0],16)}, {vr(KF[0],4)}, {vr(Q[0],4)}, {c}"); e("s_nop 10")
            e(f"v_mfma_f32_32x32x8_bf16 {vr(SS[0],16)}, {vr(KF[0]+4,2)}, {vr(Q[0]+4,2)}, {vr(SS[0],16)}"); e("s_nop 12")
        e(f"s_add_u32 s27, s19, {KVIMG}"); e("s_mov_b32 s31, 0")
        k.label(f"{nm}_mx")
        slowqk("0")
        for r in range(0, 16, 2): e(f"v_max3_f32 v32, v{SS[0]+r}, v{SS[0]+r+1}, v32")
        e("s_add_u32 s27, s27, 2560")
        e("s_add_u32 s31, s31, 1"); e("s_cmp_lt_u32 s31, 64"); e(f"s_cbranch_scc1 {nm}_mx")
        k.allred32("v_max_f32", 32, 33)
        e("v_xor_b32 v32, 0x80000000, v32")
        for r in range(16): e(f"v_mov_b32 v{NM+r}, v32")
        for r in range(16): e(f"v_mov_b32 v{OO+r}, 0")
        for r in range(8): e(f"v_mov_b32 v{VF[0]+r}, v20")
        e(f"s_add_u32 s27, s19, {KVIMG}"); e("s_mov_b32 s31, 0")
        k.label(f"{nm}_sl")
        e("s_mov_b64 exec, s[28:29]")
        e(f"buffer_load_dwordx4 {vr(VF[0],4)}, v21, s[8:11], s27 offen {SC}")
        e(f"buffer_load_dwordx4 {vr(VF[0]+4,4)}, v21, s[8:11], s27 offen offset:640 {SC}")
        e("s_mov_b64 exec, -1")
        slowqk(vr(NM,16))
        for i in range(16): e(f"v_exp_f32 v{SS[0]+i}, v{SS[0]+i}")
        e("s_nop 0")
        for i in range(8): e(f"v_cvt_pk_bf16_f32 v{P+i}, v{SS[0]+2*i}, v{SS[0]+2*i+1}")
        e("s_nop 1")
        pv(0, 0, 0); pv(0, 0, 1)
        e("s_add_u32 s27, s27, 2560")
        e("s_add_u32 s31, s31, 1"); e("s_cmp_lt_u32 s31, 64"); e(f"s_cbranch_scc1 {nm}_sl")
        e("s_nop 12"); e(f"s_branch {nm}_chk")
    k.tail = slowpath
    k.label(f"{nm}_fin")
    e("s_nop 0")
    for r in range(12): e(f"v_mul_f32 v{OO+r}, v{OO+r}, v31")
    for r in range(6): e(f"v_cvt_pk_bf16_f32 v{P+r}, v{OO+2*r}, v{OO+2*r+1}")
    e(f"buffer_store_dwordx4 {vr(P,4)}, v39, s[8:11], s51 offen {SC}")
    e("s_mov_b32 exec_hi, 0")
    e(f"buffer_store_dwordx2 {vr(P+4,2)}, v38, s[8:11], s52 offen {SC}")
    e("s_mov_b64 exec, -1")
    k.stamp(5)
    e("v_lshlrev_b32 v3, 4, v1")
    k.vm = []; k.lg = []

def proj_c(k, tag, src, xin, xout, stout, last, cnt_code, word, st0):
    final = False
    e = k.e
    ACC, RESID, A, BF = 24, 44, 76, 156
    NA0 = ENV('PA0', '8')
    ids_rt(k)
    e("s_lshl_b32 s19, s16, 2"); e("s_add_u32 s19, s19, s39")
    e("s_mul_i32 s24, s19, 20480")
    e("s_lshr_b32 s33, s17, 1"); e("s_mul_i32 s33, s33, 5120"); e("s_add_u32 s33, s33, s24")
    e("s_and_b32 s34, s17, 1"); e("s_mul_i32 s35, s34, 3072"); e("s_add_u32 s35, s35, s33")
    e("s_lshl_b32 s36, s34, 9"); e("s_add_u32 s36, s36, s33"); e("s_add_u32 s36, s36, 2048")
    e(f"s_add_u32 s37, s35, {xin}"); e(f"s_add_u32 s38, s36, {xin}")
    e("v_lshrrev_b32 v13, 5, v1"); e("v_lshlrev_b32 v13, 8, v13"); e("v_and_b32 v14, 15, v1"); e("v_lshl_add_u32 v13, v14, 4, v13")
    e("v_bfe_u32 v14, v1, 4, 1"); e("v_lshl_add_u32 v13, v14, 3, v13")
    k.vmop(f"buffer_load_dwordx4 {vr(RESID,4)}, v3, s[8:11], s37 offen {SC}", "r")
    k.vmop(f"buffer_load_dwordx4 {vr(RESID+4,4)}, v3, s[8:11], s37 offen offset:1024 {SC}", "r")
    k.vmop(f"buffer_load_dwordx2 {vr(RESID+8,2)}, v13, s[8:11], s38 offen {SC}", "r")
    e(f"s_add_u32 s24, s24, {src}")
    for i in range(1, 5): e(f"s_add_u32 s{24+i}, s24, {4096*i}")
    e("v_lshrrev_b32 v9, 4, v1"); e("v_add_u32 v12, 61440, v3")
    wait_go(k, tag, word, cnt_code)
    k.stamp(st0)
    def ldA(n): k.vmop(f"buffer_load_dwordx4 {vr(A+4*n,4)}, v3, s[8:11], s{24+n//4} offen offset:{(n%4)*1024} {SC}", f"a{n}")
    for n in range(NA0): ldA(n)
    k.waitvm("r")
    for i in range(10):
        e(f"v_lshlrev_b32 v{ACC+2*i}, 16, v{RESID+i}"); e(f"v_and_b32 v{ACC+2*i+1}, 0xffff0000, v{RESID+i}")
    def rd(n, nf):
        off = n*5120 + nf*1024; b = 3
        if n >= 12: off -= 61440; b = 12
        k.dsop(f"ds_read_b128 {vr(BF+20*(n%2)+4*nf,4)}, v{b} offset:{off}", f"b{n}_{nf}")
    e("s_barrier")
    for n in range(2):
        for nf in range(5): rd(n, nf)
    for n in range(20):
        k.waitvm(f"a{n}")
        if n == 0: k.stamp(st0+1)
        for nf in range(5):
            if nf in (0, 2, 4): k.waitlg(f"b{n}_{min(nf+1,4)}")
            if n == 12 and nf == 0 and not final: e("s_barrier")
            e(f"v_mfma_f32_16x16x32_bf16 {vr(ACC+4*nf,4)}, {vr(BF+20*(n%2)+4*nf,4)}, {vr(A+4*n,4)}, {vr(ACC+4*nf,4)}")
            if n + 2 < 20: rd(n+2, nf)
            if nf == 0 and n + NA0 < 20: ldA(n + NA0)
    e("s_barrier")
    if last:
        e("s_cmp_eq_u32 s3, 0"); e(f"s_cbranch_scc1 {k.name}_nf")
        e("v_and_b32 v16, 15, v1"); e("v_mul_u32_u24 v16, 1280, v16"); e("v_lshl_add_u32 v17, v9, 3, v16"); e("v_lshl_add_u32 v16, v9, 4, v16")
        e("s_mul_i32 s32, s19, 20480"); e("s_mul_i32 s31, s17, 160"); e("s_add_u32 s32, s32, s31")
        e("s_lshl_b32 s31, s34, 5"); e("s_add_u32 s33, s32, s31"); e("s_xor_b32 s31, s34, 1"); e("s_lshl_b32 s31, s31, 7"); e("s_add_u32 s32, s32, s31")
        FSC = os.environ.get("FSC", "")
        for i in range(10): e(f"v_cvt_pk_bf16_f32 v{RESID+i}, v{ACC+2*i}, v{ACC+2*i+1}")
        e(f"buffer_store_dwordx4 {vr(RESID,4)}, v16, s[60:63], s33 offen {FSC}")
        e(f"buffer_store_dwordx4 {vr(RESID+4,4)}, v16, s[60:63], s33 offen offset:64 {FSC}")
        e(f"buffer_store_dwordx2 {vr(RESID+8,2)}, v17, s[60:63], s32 offen {FSC}")
        k.stamp(st0+2)
        if STAMP: e("s_waitcnt vmcnt(0)")
        k.dump(15, "2")
        e("s_endpgm")
        k.label(f"{k.name}_nf")
    if True:
        e(f"s_add_u32 s37, s35, {xout}"); e(f"s_add_u32 s38, s36, {xout}")
        e("s_lshl_b32 s32, s19, 10"); e("s_lshl_b32 s33, s17, 7"); e("s_add_u32 s32, s32, s33"); e(f"s_add_u32 s32, s32, {stout}")
        e("v_lshlrev_b32 v16, 3, v1")
        for i in range(10): e(f"v_cvt_pk_bf16_f32 v{RESID+i}, v{ACC+2*i}, v{ACC+2*i+1}")
        e(f"buffer_store_dwordx4 {vr(RESID,4)}, v3, s[8:11], s37 offen {SC}")
        e(f"buffer_store_dwordx4 {vr(RESID+4,4)}, v3, s[8:11], s37 offen offset:1024 {SC}")
        e(f"buffer_store_dwordx2 {vr(RESID+8,2)}, v13, s[8:11], s38 offen {SC}")
        e(f"v_add_f32 v18, v{ACC}, v{ACC+1}"); e(f"v_mul_f32 v19, v{ACC}, v{ACC}"); e(f"v_add_f32 v20, v{ACC+2}, v{ACC+3}"); e(f"v_mul_f32 v21, v{ACC+1}, v{ACC+1}")
        e(f"v_fmac_f32 v19, v{ACC+2}, v{ACC+2}"); e(f"v_fmac_f32 v21, v{ACC+3}, v{ACC+3}")
        for i in range(4, 20, 2):
            e(f"v_add_f32 v18, v18, v{ACC+i}"); e(f"v_fmac_f32 v19, v{ACC+i}, v{ACC+i}")
            e(f"v_add_f32 v20, v20, v{ACC+i+1}"); e(f"v_fmac_f32 v21, v{ACC+i+1}, v{ACC+i+1}")
        e("v_add_f32 v18, v18, v20"); e("v_add_f32 v19, v19, v21")
        for sw in ("v_permlane16_swap_b32", "v_permlane32_swap_b32"):
            e("v_mov_b32 v20, v18"); e("v_mov_b32 v21, v19"); e("s_nop 0")
            e(f"{sw} v18, v20"); e(f"{sw} v19, v21"); e("s_nop 0")
            e("v_add_f32 v18, v18, v20"); e("v_add_f32 v19, v19, v21")
        e("s_mov_b64 exec, 0xffff")
        e(f"buffer_store_dwordx2 v[18:19], v16, s[8:11], s32 offen {SC}")
    k.stamp(st0+2)

def proj_l(k, wimg, nxt, src, sig=None, done=0, last=False):
    e = k.e
    if nxt is not None:
        ids_mt(k)
        e("s_min_u32 s17, s17, 14" if nxt == WA_I else "s_nop 0")
        e("s_mul_i32 s58, s17, 163840"); e("s_add_u32 s58, s58, s45"); e(f"s_add_u32 s58, s58, {nxt}")
    ids_rt(k)
    e("s_mul_i32 s50, s17, 102400"); e("s_add_u32 s50, s50, s45"); e(f"s_add_u32 s50, s50, {wimg}")
    e("s_mul_i32 s51, s16, 81920"); e("s_lshl_b32 s52, s17, 2"); e("s_add_u32 s52, s52, s39"); e("s_mul_i32 s52, s52, 2560"); e("s_add_u32 s51, s51, s52"); e(f"s_add_u32 s51, s51, {src}")
    e("v_min_u32 v21, 39, v1"); e("v_lshlrev_b32 v21, 6, v21")
    w = Wdma(k, 25, 50, "o"); k.vm = []
    T1, T2 = ENV('T1', '0'), ENV('T2', '4')
    if sig:
        signal(k, "s1l", 0, 8, sig)
        ub_prep(k, 0)
    w.rng(done, 25, T1 if sig else 0)
    w2 = Wdma(k, 40, 58)
    if last:
        e("s_cmp_eq_u32 s3, 0"); e(f"s_cbranch_scc1 {k.name}_nl")
        e("s_waitcnt vmcnt(0)"); e("s_barrier"); e("buffer_load_dword v20, v21, s[8:11], s51 offen"); e("s_endpgm")
        k.label(f"{k.name}_nl")
    if sig:
        w2.rng(25, 31, T1)
        e(f"v_mov_b32 v{PV_+3}, {LW}"); e("s_mov_b32 s49, 0")
        k.label(f"{k.name}_a8")
        e(f"ds_read_b32 v{PV_}, v{PV_+3}"); e("s_add_u32 s49, s49, 1"); e("s_waitcnt lgkmcnt(0)"); e(f"v_readfirstlane_b32 s44, v{PV_}")
        e("s_cmp_ge_u32 s49, 0x400000"); e("s_cselect_b32 s44, 8, s44"); e("s_cmp_lt_u32 s44, 8"); e(f"s_cbranch_scc1 {k.name}_a8")
    if nxt is not None: w2.rng(31 if sig else 32, 39, T1 if sig else 0)
    if sig: ub_prep(k, 1)
    k.waitvm("o24")
    e("s_barrier")
    if ENV('ATOUCH', '1'):
        k.vmop("buffer_load_dword v20, v21, s[8:11], s51 offen")
    if nxt is not None:
        if not sig: w2.rng(25, 32)
        e("s_barrier")
        w2.rng(0, 15)
        e("s_barrier")
        k.waitvm("w14")
        w2.rng(15, 25, T2)
    return w2

def stats16(k, s, rstd, mop, mask):
    e = k.e
    e(f"v_add_f32 v{s}, v{s}, v{s+2}"); e(f"v_add_f32 v{s+1}, v{s+1}, v{s+3}")
    k.allred16("v_add_f32", s, s+2); k.allred16("v_add_f32", s+1, s+3)
    k.allred32("v_add_f32", s, s+2); k.allred32("v_add_f32", s+1, s+3)
    stats_finish(k, s, s+1, s+2, rstd, s+3)
    split3(k, s+2, mop, 17, 'm', mask)
def usum(k, u, dst, t=17):
    e = k.e
    e(f"v_add_f32 v{u}, v{u}, v{u+1}"); e(f"v_add_f32 v{u+2}, v{u+2}, v{u+3}"); e(f"v_add_f32 v{u}, v{u}, v{u+2}")
    split3(k, u, dst, t, 'u')
def scale_pack(k, a, sc, dst):
    for r in range(4): k.e(f"v_mul_f32 v{a+r}, v{a+r}, v{sc(r)}")
    for r in range(2): k.e(f"v_cvt_pk_bf16_f32 v{dst+r}, v{a+2*r}, v{a+2*r+1}")
EX = 102400
UOFF = lambda F: (F//4)*8192 + 7168 + (F%4)*256 + 128
TOKF = (0, 1, 2, 3, 6); FEAF = (4, 5, 7)

def ub_prep(k, part):
    e = k.e
    if part: return ub_fin(k)
    e("v_and_b32 v5, 15, v1"); e("v_lshrrev_b32 v6, 4, v1"); e("s_lshr_b32 s30, s21, 1")
    e("v_mul_u32_u24 v12, 2560, v6"); e("v_lshl_add_u32 v12, v5, 2, v12")
    e("s_mul_i32 s30, s30, 10240"); e("s_lshl_b32 s31, s39, 7"); e("s_add_u32 s30, s30, s31"); e(f"s_add_u32 s30, s30, {U_B}")
    for q in range(2):
        for j_ in range(5): k.vmop(f"buffer_load_dword v{64+5*q+j_}, v12, s[12:15], s30 offen offset:{512*j_+64*q}", "up")
    e("s_lshr_b32 s30, s39, 1"); e("s_lshl_b32 s30, s30, 13"); e("s_and_b32 s31, s39, 1"); e("s_lshl_b32 s31, s31, 9"); e("s_add_u32 s30, s30, s31")
    e("v_lshlrev_b32 v51, 3, v5"); e("v_add_u32 v46, s30, v51")
def ub_fin(k):
    e = k.e
    k.waitvm("up")
    for q in range(2):
        u = 64+5*q
        e(f"v_add_f32 v{u}, v{u}, v{u+1}"); e(f"v_add_f32 v{u+2}, v{u+2}, v{u+3}"); e(f"v_add_f32 v{u}, v{u}, v{u+4}"); e(f"v_add_f32 v{u}, v{u}, v{u+2}")
        k.allred16("v_add_f32", u, u+1); k.allred32("v_add_f32", u, u+1)
        split3(k, u, 28+2*q, 17, 'u')

def atouch_pre(k, xin):
    e = k.e
    e("s_mul_i32 s51, s16, 163840"); e("s_lshl_b32 s52, s17, 2"); e("s_add_u32 s52, s52, s39"); e("s_mul_i32 s52, s52, 2560"); e("s_add_u32 s51, s51, s52"); e(f"s_add_u32 s51, s51, {xin}")
    e("v_min_u32 v21, 39, v1"); e("v_lshlrev_b32 v21, 6, v21")

def qkvb_pre(k):
    e = k.e
    ids_mt(k)
    e("v_and_b32 v5, 15, v1"); e("v_lshrrev_b32 v6, 4, v1")
    e("s_lshl_b32 s22, s16, 3"); e("s_lshl_b32 s19, s39, 1"); e("s_add_u32 s19, s19, s22")
    e("v_lshlrev_b32 v11, 3, v5"); e("v_lshl_add_u32 v11, v6, 8, v11")
    e("v_cmp_eq_u32 vcc, 0, v6"); e("v_lshlrev_b32 v10, 4, v6"); e("s_nop 0"); e("v_cndmask_b32 v4, 0, -1, vcc")

def qkvb_c(k, xin, stin, st0):
    e = k.e; nm = k.name
    DA = 5
    ACC, BF, AR, RSV = 64, 160, 192, 228
    acc = lambda b, F: ACC + 32*b + 4*F
    qkvb_pre(k)
    e("s_lshl_b32 s28, s19, 10"); e(f"s_add_u32 s28, s28, {stin}")
    e("s_mul_i32 s25, s19, 20480"); e(f"s_add_u32 s25, s25, {xin}"); e("s_add_u32 s26, s25, 20480")
    e("v_add_u32 v41, 65536, v3"); e("v_add_u32 v42, 131072, v3")
    def c2():
        e("s_lshl_b32 s48, s16, 9"); e(f"s_add_u32 s48, s48, {C2}")
        e(f"v_lshlrev_b32 v{PV_+1}, 8, v1"); e(f"v_lshlrev_b32 v{PV_+2}, 3, v1"); e(f"v_sub_u32 v{PV_+2}, 16, v{PV_+2}")
        e("s_cmp_eq_u32 s16, 0"); e("s_cselect_b64 s[56:57], 1, 3")
    wait_go(k, "p3", 1, c2)
    k.stamp(st0)
    def ldA(ks):
        for b in range(2):
            if ks % 4 == 0 and ks > 0: e(f"s_add_u32 s{25+b}, s{25+b}, 4096")
            k.vmop(f"buffer_load_dwordx4 {vr(AR+8*(ks%DA)+4*b,4)}, v3, s[8:11], s{25+b} offen offset:{(ks%4)*1024} {SC}", f"a{ks}")
    ldA(0)
    for b in range(2):
        for q in range(2): k.vmop(f"buffer_load_dwordx2 {vr(24+4*b+2*q,2)}, v11, s[8:11], s28 offen offset:{1024*b+128*q} {SC}", "st")
    for ks in range(1, DA-1): ldA(ks)
    MC, MP, MP1 = 64, 68, 72
    NEG = fbits(-1e30)
    def prolog():
        k.waitvm("st")
        for b in (1, 2): stats16(k, 20+4*b, 48+b, 52+2*b, 4)
        for b in (1, 2):
            for r in range(4):
                e(f"v_add_u32 v18, {4*r}, v10")
                k.dsop(f"ds_bpermute_b32 v{RSV+4*b+r}, v18, v{48+b}", "rs")
        e("v_lshlrev_b32 v43, 3, v5")
        e("v_lshlrev_b32 v17, 2, v6"); e("v_sub_u32 v17, v5, v17")
        e(f"v_mov_b32 v19, {NEG}")
        for r in range(4):
            e(f"v_subrev_u32 v18, {r}, v17"); e("v_and_b32 v16, 0x80000001, v18")
            e("v_cmp_eq_u32 vcc, 0, v16"); e(f"v_cndmask_b32 v{MC+r}, v19, 0, vcc")
            e("v_cmp_eq_u32 vcc, 0x80000000, v16"); e(f"v_cndmask_b32 v{MP+r}, v19, 0, vcc")
        e("s_cmp_eq_u32 s19, 0"); e(f"s_cselect_b32 s34, {NEG}, 0")
        for r in range(4): e(f"v_add_f32 v{MP1+r}, s34, v{MP+r}")
        e("v_cmp_eq_u32 vcc, 2, v6"); e("v_cndmask_b32 v38, 0, -1, vcc")
        e("v_cmp_eq_u32 vcc, 3, v6"); e("v_cndmask_b32 v39, 0, -1, vcc")
        for b in (1, 2): e(f"v_mul_f32 v{58+b}, {fbits(CSCALE)}, v{48+b}")
        e("v_cmp_gt_u32 vcc, 2, v6")
        for b in (1, 2): e(f"v_cndmask_b32 v{35+b}, v{48+b}, v{58+b}, vcc")
        e("s_mul_i32 s35, s18, 5120"); e(f"s_add_u32 s35, s35, {EX}"); e("v_add_u32 v9, s35, v3")
        e("s_mul_i32 s24, s19, 20480"); e(f"s_add_u32 s24, s24, {OBT}")
        e("s_lshl_b32 s51, s17, 10"); e("s_add_u32 s51, s51, s24"); e("s_add_u32 s52, s51, 20480")
        e("s_lshr_b32 s53, s17, 2"); e("s_add_u32 s53, s53, 16"); e("s_lshl_b32 s53, s53, 10"); e("s_add_u32 s53, s53, s24")
        e("s_and_b32 s54, s17, 1"); e("s_lshl_b32 s54, s54, 9"); e("s_add_u32 s53, s53, s54")
        e("s_bfe_u32 s54, s17, 0x10001"); e("s_lshl_b32 s54, s54, 3"); e("s_add_u32 s53, s53, s54"); e("s_add_u32 s54, s53, 20480")
    fl = k.capture(prolog)
    def rd(ks, F):
        off = ks*8192 + 1024*F; hi = off >> 16
        k.dsop(f"ds_read_b128 {vr(BF+4*F,4)}, v{(3,41,42)[hi]} offset:{off & 0xffff}", f"b{ks}_{F}")
    def mm(b, F, ks):
        a = vr(AR+8*(ks%DA)+4*(b-1), 4); w = vr(BF+4*F, 4); c = vr(acc(b,F), 4); ci = c if ks else "0"
        if F in TOKF: e(f"v_mfma_f32_16x16x32_bf16 {c}, {w}, {a}, {ci}")
        else:         e(f"v_mfma_f32_16x16x32_bf16 {c}, {a}, {w}, {ci}")
    e("s_barrier")
    for F in range(8): rd(0, F)
    for ks in range(20):
        k.waitvm(f"a{ks}")
        if ks == 0: k.stamp(st0+1)
        if ks == 6: e("s_barrier")
        if ks == 16:
            k.fill(fl, 1000)
            for F in range(8): k.dsop(f"ds_read_b64 {vr(20+2*F,2)}, v43 offset:{UOFF(F)}", "uo")
        for F in range(8):
            if F % 2 == 0: k.waitlg(f"b{ks}_{F+1}")
            mm(1, F, ks)
            if ks >= 1: k.fill(fl, 1)
            mm(2, F, ks)
            if ks + 1 < 20: rd(ks+1, F)
            if F == 0 and ks + DA - 1 < 20: ldA(ks + DA - 1)
            if ks >= 1 and F % 2: k.fill(fl, 1)
        if ks == 18:
            k.fill(fl, 1000)
            for b in (1, 2):
                for F in range(8):
                    U, M = vr(20+2*F, 2), vr(52+2*b, 2)
                    if F in TOKF: e(f"v_mfma_f32_16x16x16_bf16 {vr(acc(b,F),4)}, {U}, {M}, {vr(acc(b,F),4)}")
                    else:         e(f"v_mfma_f32_16x16x16_bf16 {vr(acc(b,F),4)}, {M}, {U}, {vr(acc(b,F),4)}")
    k.stamp(st0+2)
    e("s_barrier")
    if os.environ.get("FOC") == "s3": k.stamp(3)
    e("s_cmp_eq_u32 s18, 0"); e(f"s_cbranch_scc0 {nm}_ni"); lw_init(k); k.label(f"{nm}_ni")
    KO = lambda b, h: BF + 8*b + 4*h
    QO = lambda b, h: BF + 24 + 8*(b-1) + 4*h
    VO = lambda F, b: BF + 40 + 8*FEAF.index(F) + 2*b
    def kv_pack(b):
        for h in range(2): scale_pack(k, acc(b, 2+h), lambda r: 48+b, KO(b,h))
        scale_pack(k, acc(b, 6), lambda r: 35+b, KO(b,0)+2)
        for r in range(2): e(f"v_mov_b32 v{KO(b,1)+2+r}, v{KO(b,0)+2+r}")
        for F in FEAF: scale_pack(k, acc(b, F), lambda r: RSV+4*b+r, VO(F,b))
    kv_pack(2)
    for h in range(2): e(f"ds_write_b128 v9, {vr(KO(2,h),4)} offset:{5120+1024*h}")
    for n, F in enumerate(FEAF): e(f"ds_write_b64 v9, {vr(VO(F,2),2)} offset:{5120+2048+1024*n}")
    kv_pack(1)
    e("s_waitcnt lgkmcnt(0)"); e("s_barrier")
    if os.environ.get("FOC") == "s3": k.stamp(4)
    for h in range(2): e(f"ds_read_b128 {vr(KO(0,h),4)}, v9 offset:{1024*h}")
    for n, F in enumerate(FEAF): e(f"ds_read_b64 {vr(VO(F,0),2)}, v9 offset:{2048+1024*n}")
    for b in (1, 2):
        for h in range(2): scale_pack(k, acc(b, h), lambda r: 58+b, QO(b,h))
        for r in range(2):
            e(f"v_mov_b32 v{40+2*r}, v{KO(b,0)+2+r}"); e(f"v_mov_b32 v{41+2*r}, v{KO(b,0)+2+r}")
        for r in range(2): e(f"v_permlane32_swap_b32 v{40+2*r}, v{41+2*r}")
        e("s_nop 0")
        for h in range(2):
            for r in range(2): e(f"v_and_b32 v{QO(b,h)+2+r}, v{40+2*r}, v{38+h}")
    e("s_waitcnt lgkmcnt(0)")
    units = [(b, h) for b in (1, 2) for h in range(2)]
    SU = lambda i: 20 + 8*i if i < 2 else 76 + 8*(i-2)
    TU = lambda i: ACC + 32 + 4*i
    PU = lambda i: ACC + 48 + 4*i
    OU = lambda i: ACC + 64 + 8*i
    for i, (b, h) in enumerate(units):
        e(f"v_mfma_f32_16x16x32_bf16 {vr(SU(i),4)}, {vr(KO(b-1,h),4)}, {vr(QO(b,h),4)}, {vr(MP1 if b == 1 else MP,4)}")
        e(f"v_mfma_f32_16x16x32_bf16 {vr(SU(i)+4,4)}, {vr(KO(b,h),4)}, {vr(QO(b,h),4)}, {vr(MC,4)}")
    def allred(op):
        for sw in ("v_permlane16_swap_b32", "v_permlane32_swap_b32"):
            for i in range(4): e(f"v_mov_b32 v{TU(i)+1}, v{TU(i)}")
            for i in range(4): e(f"{sw} v{TU(i)}, v{TU(i)+1}")
            for i in range(4): e(f"{op} v{TU(i)}, v{TU(i)}, v{TU(i)+1}")
    for i in range(4):
        s = SU(i)
        e(f"v_max3_f32 v{TU(i)}, v{s}, v{s+1}, v{s+2}"); e(f"v_max3_f32 v{TU(i)}, v{s+3}, v{s+4}, v{TU(i)}")
        e(f"v_max3_f32 v{TU(i)}, v{s+5}, v{s+6}, v{TU(i)}"); e(f"v_max_f32 v{TU(i)}, v{s+7}, v{TU(i)}")
    allred("v_max_f32")
    for i in range(4):
        for r in range(8): e(f"v_sub_f32 v{SU(i)+r}, v{SU(i)+r}, v{TU(i)}")
    for i in range(4):
        for r in range(8): e(f"v_exp_f32 v{SU(i)+r}, v{SU(i)+r}")
    for i in range(4):
        s = SU(i)
        e(f"v_add_f32 v{TU(i)}, v{s}, v{s+1}")
        for r in range(2, 8): e(f"v_add_f32 v{TU(i)}, v{TU(i)}, v{s+r}")
    allred("v_add_f32")
    for i in range(4): e(f"v_rcp_f32 v{TU(i)}, v{TU(i)}")
    for i in range(4):
        for r in range(8): e(f"v_mul_f32 v{SU(i)+r}, v{SU(i)+r}, v{TU(i)}")
        for r in range(4): e(f"v_cvt_pk_bf16_f32 v{PU(i)+r}, v{SU(i)+2*r}, v{SU(i)+2*r+1}")
    for i, (b, h) in enumerate(units):
        e(f"v_mfma_f32_16x16x32_bf16 {vr(OU(i),4)}, {vr(VO(4+h,b-1),4)}, {vr(PU(i),4)}, 0")
        e(f"v_mfma_f32_16x16x32_bf16 {vr(OU(i)+4,4)}, {vr(VO(7,b-1),4)}, {vr(PU(i),4)}, 0")
    e("v_cmp_eq_u32 vcc, 0, v6")
    for bi in range(2):
        o0, o1 = OU(2*bi), OU(2*bi+1); d = 40 + 8*bi
        e(f"v_cvt_pk_bf16_f32 v{d}, v{o0}, v{o0+1}"); e(f"v_cvt_pk_bf16_f32 v{d+1}, v{o0+2}, v{o0+3}")
        e(f"v_cvt_pk_bf16_f32 v{d+2}, v{o1}, v{o1+1}"); e(f"v_cvt_pk_bf16_f32 v{d+3}, v{o1+2}, v{o1+3}")
        e(f"buffer_store_dwordx4 {vr(d,4)}, v3, s[8:11], s{51+bi} offen {SC}")
        for r in range(4): e(f"v_cndmask_b32 v{o0+4+r}, v{o1+4+r}, v{o0+4+r}, vcc")
        e(f"v_cvt_pk_bf16_f32 v{d+4}, v{o0+4}, v{o0+5}"); e(f"v_cvt_pk_bf16_f32 v{d+5}, v{o0+6}, v{o0+7}")
    e("s_mov_b32 exec_hi, 0")
    for bi in range(2): e(f"buffer_store_dwordx2 {vr(44+8*bi,2)}, v3, s[8:11], s{53+bi} offen {SC}")

def qkvb_l(k, xin, stin, w):
    e = k.e; nm = k.name
    qkvb_pre(k)
    e("s_max_u32 s22, s22, 1"); e("s_sub_u32 s22, s22, 1")
    e("s_mul_i32 s24, s22, 20480"); e(f"s_add_u32 s24, s24, {xin}")
    e("s_lshl_b32 s27, s22, 10"); e(f"s_add_u32 s27, s27, {stin}")
    e("s_min_u32 s40, s39, 2")
    e("s_cmp_lt_u32 s39, 2"); e("s_cselect_b32 s41, 2, 4"); e("s_cselect_b32 s42, 4, 5")
    e("s_add_u32 s41, s41, s40"); e("s_add_u32 s42, s42, s40")
    for d_, s_ in ((43, 41), (44, 42)):
        e(f"s_lshr_b32 s{d_}, s{s_}, 2"); e(f"s_lshl_b32 s{d_}, s{d_}, 13"); e(f"s_and_b32 s32, s{s_}, 3"); e("s_lshl_b32 s32, s32, 8")
        e(f"s_add_u32 s{d_}, s{d_}, s32"); e(f"s_add_u32 s{d_}, s{d_}, {UOFF(0)}")
    e("s_lshl_b32 s41, s41, 10"); e("s_lshl_b32 s42, s42, 10")
    for i in range(3):
        e(f"v_add_u32 v{40+i}, s41, v3"); e(f"v_add_u32 v{43+i}, s42, v3")
        if i: e(f"v_add_u32 v{40+i}, {65536*i}, v{40+i}"); e(f"v_add_u32 v{43+i}, {65536*i}, v{43+i}")
    atouch_pre(k, xin)
    e("s_barrier")
    e(f"ds_write_b64 v46, v[28:29] offset:{UOFF(0)}"); e(f"ds_write_b64 v46, v[30:31] offset:{UOFF(1)}")
    if ENV('ATOUCH', '1'): k.vmop("buffer_load_dword v20, v21, s[8:11], s51 offen")
    w.one(39)
    for q in range(2): k.vmop(f"buffer_load_dwordx2 {vr(24+2*q,2)}, v11, s[8:11], s27 offen offset:{128*q} {SC}", "st")
    e("s_cmp_eq_u32 s39, 3"); e("s_cselect_b32 s24, 0x7ff00000, s24")
    HL = ENV('HL', '3')
    def ldh(ks):
        if ks % 4 == 0 and ks: e("s_add_u32 s24, s24, 4096")
        k.vmop(f"buffer_load_dwordx4 {vr(128+4*ks,4)}, v3, s[8:11], s24 offen offset:{(ks%4)*1024} {SC}", f"h{ks}")
    for ks in range(HL): ldh(ks)
    k.waitvm("w39"); e("s_waitcnt lgkmcnt(0)"); e("s_barrier")
    k.waitvm("st")
    stats16(k, 24, 48, 52, 4)
    for r in range(4):
        e(f"v_add_u32 v18, {4*r}, v10")
        k.dsop(f"ds_bpermute_b32 v{72+r}, v18, v48", "r")
    def rd(ks):
        off = ks*8192; hi = off >> 16; fb = 96 + 8*(ks%3)
        k.dsop(f"ds_read_b128 {vr(fb,4)}, v{40+hi} offset:{off & 0xffff}", f"r{ks}")
        k.dsop(f"ds_read_b128 {vr(fb+4,4)}, v{43+hi} offset:{off & 0xffff}", f"r{ks}")
    rd(0); rd(1)
    for ks in range(20):
        if ks + 2 < 20: rd(ks+2)
        if ks + HL < 20: ldh(ks + HL)
        k.waitvm(f"h{ks}"); k.waitlg(f"r{ks}")
        fb = 96 + 8*(ks%3)
        e(f"v_mfma_f32_16x16x32_bf16 v[80:83], {vr(fb,4)}, {vr(128+4*ks,4)}, {'v[80:83]' if ks else 0}")
        e(f"v_mfma_f32_16x16x32_bf16 v[84:87], {vr(128+4*ks,4)}, {vr(fb+4,4)}, {'v[84:87]' if ks else 0}")
    e("v_add_u32 v12, s43, v51"); e("v_add_u32 v13, s44, v51")
    e("ds_read_b64 v[20:21], v12"); e("ds_read_b64 v[22:23], v13")
    e("s_lshl_b32 s41, s39, 10"); e("s_cmp_lt_u32 s39, 2"); e("s_cselect_b32 s41, s41, 8"); e("s_cselect_b32 s42, s41, 1032")
    e("s_lshl_b32 s40, s40, 10")
    e(f"v_add_u32 v9, {EX}, v3"); e("v_add_u32 v12, s41, v9"); e("v_add_u32 v13, s42, v9"); e("v_add_u32 v15, s40, v9")
    e("s_waitcnt lgkmcnt(0)")
    e("v_mfma_f32_16x16x16_bf16 v[80:83], v[20:21], v[52:53], v[80:83]")
    e("v_mfma_f32_16x16x16_bf16 v[84:87], v[52:53], v[22:23], v[84:87]")
    scale_pack(k, 80, lambda r: 48, 88); scale_pack(k, 84, lambda r: 72+r, 90)
    e("s_barrier")
    e("s_cmp_eq_u32 s39, 3"); e(f"s_cbranch_scc1 {nm}_h4")
    e("ds_write_b64 v12, v[88:89]"); e("ds_write_b64 v13, v[88:89]"); e("ds_write_b64 v15, v[90:91] offset:2048")
    e("s_waitcnt lgkmcnt(0)")
    k.label(f"{nm}_h4")
    e("s_barrier")
    k.vm = []; k.lg = []

def one(k, target):
    k.e(f"v_mov_b32 v{PV_+1}, 0"); k.e(f"v_mov_b32 v{PV_+2}, {target}"); k.e("s_mov_b64 s[56:57], 1")

def kvpos(k):
    k.e("s_and_b32 s36, s19, 31"); k.e("s_lshl_b32 s36, s36, 1"); k.e("s_lshr_b32 s34, s19, 5"); k.e("s_add_u32 s36, s36, s34")
    k.e("s_add_u32 s36, s36, 50"); k.e("s_and_b32 s36, s36, 63")
def addr_v(k, img):
    e = k.e
    e("s_sub_u32 s35, s17, 10"); e("s_lshl_b32 s35, s35, 7")
    kvpos(k); e("s_mul_i32 s36, s36, 2560"); e(f"s_add_u32 s33, s36, {img+KVIMG+1280}")
    e("v_mul_u32_u24 v20, 320, v4")
    for jf in range(4):
        e(f"v_add_u32 v16, s35, v10")
        if jf: e(f"v_add_u32 v16, {32*jf}, v16")
        e("v_mul_u32_u24 v17, 52429, v16"); e("v_lshrrev_b32 v17, 20, v17")
        e("v_mul_u32_u24 v18, 20, v17"); e("v_sub_u32 v18, v16, v18")
        e("v_mul_u32_u24 v17, 163840, v17"); e("v_lshl_add_u32 v17, v18, 4, v17")
        e(f"v_add_u32 v{24+jf}, v17, v20")
def addr_qk(k, img, xm=52):
    e = k.e; k.xm = xm
    e("s_cmp_ge_u32 s17, 5")
    e(f"s_cselect_b32 s33, {QI}, 0"); e(f"s_cselect_b32 s59, 1.0, {fbits(CSCALE)}"); e("s_cselect_b32 s35, 5, 0"); e("s_cselect_b32 s37, 1, 0")
    e(f"s_add_u32 s33, s33, {img+QIMG}")
    e("s_sub_u32 s35, s17, s35")
    kvpos(k); e("s_cmp_eq_u32 s37, 0"); e("s_cselect_b32 s36, s19, s36")
    e("s_mul_i32 s36, s36, 1280"); e("s_lshl_b32 s36, s36, s37"); e("s_add_u32 s33, s33, s36")
    e("s_lshl_b32 s34, 81920, s37")
    e("v_lshlrev_b32 v16, 4, v10"); e("v_lshlrev_b32 v17, 3, v10")
    e("v_lshl_add_u32 v18, v4, 9, v16")
    e("s_sub_u32 s36, s34, 512"); e("v_and_b32 v19, s36, v59"); e("v_add_u32 v19, v19, v16")
    e(f"s_mov_b32 s{xm}, -1"); e(f"s_mov_b32 s{xm+1}, 0"); e(f"s_mov_b32 s{xm+2}, 0"); e(f"s_mov_b32 s{xm+3}, -1")
def epi_qk(k, ACC, BF):
    e = k.e; nm = k.name + k.ptag
    for v in range(1, 5):
        e(f"s_cmp_eq_u32 s35, {v}"); e(f"s_cbranch_scc1 {nm}_e{v}")
    QSC = os.environ.get("QSC", "sc1")
    for v in range(5):
        if v: k.label(f"{nm}_e{v}")
        e("s_nop 7")
        for jf in range(4):
            for r in range(16): e(f"v_mul_f32 v{ACC+16*jf+r}, v{ACC+16*jf+r}, v47")
            for r in range(8): e(f"v_cvt_pk_bf16_f32 v{BF+8*jf+r}, v{ACC+16*jf+2*r}, v{ACC+16*jf+2*r+1}")
            for a2 in range(2):
                x = BF+8*jf+4*a2
                e(f"v_permlane32_swap_b32 v{x}, v{x+2}"); e(f"v_permlane32_swap_b32 v{x+1}, v{x+3}")
            for a2 in range(2):
                x = BF+8*jf+4*a2
                G = [32*v+8*jf+4*a2, 32*v+8*jf+4*a2+2]
                def main(g):
                    h = g // 5; r = g % 5
                    return h, (r // 2 if h % 2 == 0 else (r - 1) // 2)
                st = [g % 10 == 4 for g in G]
                def hoff(dst, h, c):
                    if h: e(f"s_mul_i32 s{dst}, s34, {h}"); e(f"s_add_u32 s{dst}, s{dst}, s33")
                    else: e(f"s_mov_b32 s{dst}, s33")
                    if c: e(f"s_add_u32 s{dst}, s{dst}, {c}")
                if not any(st):
                    (h0, p0), (h1, p1) = main(G[0]), main(G[1])
                    hoff(36, h0, 512*p0)
                    if h0 == h1: e(f"buffer_store_dwordx4 {vr(x,4)}, v18, {k.srdo}, s36 offen {QSC}")
                    else:        e(f"buffer_store_dwordx4 {vr(x,4)}, v19, {k.srdo}, s36 offen {QSC}")
                    assert (h0 == h1 and (p0, p1) == (0, 1)) or (h1 == h0 + 1 and (p0, p1) == (1, 0))
                else:
                    m = st.index(False); q = 1 - m
                    h, p = main(G[m]); hoff(36, h, 512*p); hoff(37, G[q] // 5, 1024); e("s_add_u32 s38, s37, s34")
                    e(f"s_mov_b64 exec, s[{k.xm+2*m}:{k.xm+1+2*m}]")
                    e(f"buffer_store_dwordx4 {vr(x,4)}, v16, {k.srdo}, s36 offen {QSC}")
                    e(f"s_mov_b64 exec, s[{k.xm+2*q}:{k.xm+1+2*q}]")
                    e(f"buffer_store_dwordx2 {vr(x,2)}, v17, {k.srdo}, s37 offen {QSC}")
                    e(f"buffer_store_dwordx2 {vr(x+2,2)}, v17, {k.srdo}, s38 offen {QSC}")
                    e("s_mov_b64 exec, -1")
        e(f"s_branch {nm}_fin5")
def epi_v(k, ACC, BF, RS):
    e = k.e
    VSC = os.environ.get("VSC", "sc1")
    for jf in range(4):
        for r in range(16): e(f"v_mul_f32 v{ACC+16*jf+r}, v{ACC+16*jf+r}, v{RS+r}")
        for r in range(8): e(f"v_cvt_pk_bf16_f32 v{BF+8*jf+r}, v{ACC+16*jf+2*r}, v{ACC+16*jf+2*r+1}")
        for u in range(2):
            e(f"buffer_store_dwordx4 {vr(BF+8*jf+4*u,4)}, v{24+jf}, {k.srdo}, s33 offen offset:{640*u} {VSC}")

def qkva_c(k, xin, stin, img, cnt, wbar, st0):
    k.ptag = '_p5'; k.srdo = 's[8:11]'
    e = k.e; nm = k.name + k.ptag
    DA = 5
    ACC, BF, AR, RS = 64, 128, 160, 200
    e("v_and_b32 v10, 31, v1"); e("v_lshrrev_b32 v4, 5, v1"); e("v_and_b32 v5, 15, v1")
    e("s_lshl_b32 s19, s16, 2"); e("s_add_u32 s19, s19, s18")
    e("v_lshlrev_b32 v12, 4, v10")
    e("s_lshl_b32 s31, s17, 11"); e(f"s_add_u32 s31, s31, {U_A}")
    for jf in range(4): k.vmop(f"buffer_load_dwordx4 {vr(24+4*jf,4)}, v12, s[12:15], s31 offen offset:{512*jf}", "u")
    e("v_bfe_u32 v7, v1, 4, 1"); e("v_mul_u32_u24 v8, 20480, v7"); e("v_lshl_add_u32 v8, v4, 8, v8"); e("v_lshl_add_u32 v8, v5, 4, v8")
    e("v_lshlrev_b32 v11, 10, v7"); e("v_lshl_add_u32 v11, v4, 9, v11"); e("v_lshl_add_u32 v11, v5, 3, v11")
    e("s_lshl_b32 s30, s19, 11"); e(f"s_add_u32 s30, s30, {stin}")
    e("s_mul_i32 s24, s19, 40960"); e(f"s_add_u32 s24, s24, {xin}")
    e("v_add_u32 v41, 65536, v3"); e("v_add_u32 v42, 131072, v3")
    e("v_subrev_u32 v58, 1, v4"); e("v_not_b32 v59, v58")
    sc = SC if cnt is not None else ""
    if cnt is not None:
        def c4(): one(k, 16); e("s_lshl_b32 s48, s16, 8"); e(f"s_add_u32 s48, s48, {cnt}")
        wait_go(k, "p5", 1, c4)
    k.stamp(st0)
    def ldA(ks):
        if ks % 4 == 0 and ks > 0: e("s_add_u32 s24, s24, 4096")
        for u in range(2):
            k.vmop(f"buffer_load_dwordx4 {vr(AR+8*(ks%DA)+4*u,4)}, v8, s[8:11], s24 offen offset:{(ks%4)*1024+512*u} {sc}", f"a{ks}")
    ldA(0)
    for q in range(4): k.vmop(f"buffer_load_dwordx2 {vr(16+2*q,2)}, v11, s[8:11], s30 offen offset:{128*q} {sc}", "st")
    for ks in range(1, DA-1): ldA(ks)
    def prolog(vmode):
        k.waitvm("st")
        e("v_add_f32 v16, v16, v18"); e("v_add_f32 v17, v17, v19"); e("v_add_f32 v20, v20, v22"); e("v_add_f32 v21, v21, v23")
        e("v_add_f32 v16, v16, v20"); e("v_add_f32 v17, v17, v21")
        k.allred32("v_add_f32", 16, 18); k.allred32("v_add_f32", 17, 18)
        stats_finish(k, 16, 17, 46, 47, 18)
        split3(k, 46, 48, 18, 'm', 58)
        for jf in range(4): usum(k, 24+4*jf, 50+2*jf, 18)
        if vmode:
            e("v_lshlrev_b32 v16, 4, v4")
            for r in range(16):
                e(f"v_add_u32 v17, {(8*(r//4) + r%4)*4}, v16")
                k.dsop(f"ds_bpermute_b32 v{RS+r}, v17, v47", "rs")
            addr_v(k, img)
        else:
            addr_qk(k, img); e("v_mul_f32 v47, s59, v47")
    e("s_cmp_ge_u32 s17, 10"); e(f"s_cbranch_scc1 {nm}_qv")
    vm_save = list(k.vm)
    def mainloop(vmode):
        acc = lambda jf: vr(ACC+16*jf, 16)
        fl = k.capture(lambda: prolog(vmode))
        def rd(ks, f):
            off = ks*8192 + 1024*f; hi = off >> 16
            k.dsop(f"ds_read_b128 {vr(BF+4*f,4)}, v{(3,41,42)[hi]} offset:{off & 0xffff}", f"b{ks}_{f}")
        e("s_barrier")
        for f in range(8): rd(0, f)
        for ks in range(20):
            k.waitvm(f"a{ks}")
            if ks == 0: k.stamp(st0+1)
            if ks + 1 in wbar: e("s_barrier")
            for f in range(8):
                u, jf = f//4, f%4
                if f % 2 == 0: k.waitlg(f"b{ks}_{f+1}")
                a = vr(AR+8*(ks%DA)+4*u, 4); b = vr(BF+4*f, 4); c = acc(jf) if (ks or u) else "0"
                if vmode: e(f"v_mfma_f32_32x32x16_bf16 {acc(jf)}, {a}, {b}, {c}")
                else:     e(f"v_mfma_f32_32x32x16_bf16 {acc(jf)}, {b}, {a}, {c}")
                if ks + 1 < 20: rd(ks+1, f)
                if f == 0 and ks + DA - 1 < 20: ldA(ks + DA - 1)
                if ks >= 1: k.fill(fl, 2)
            if ks == 15:
                k.fill(fl, 1000)
                for jf in range(4):
                    if vmode: e(f"v_mfma_f32_32x32x8_bf16 {acc(jf)}, v[48:49], {vr(50+2*jf,2)}, {acc(jf)}")
                    else:     e(f"v_mfma_f32_32x32x8_bf16 {acc(jf)}, {vr(50+2*jf,2)}, v[48:49], {acc(jf)}")
        k.stamp(st0+2)
        e("s_barrier")
    mainloop(False)
    epi_qk(k, ACC, BF)
    k.label(f"{nm}_qv"); k.vm = vm_save; k.lg = []
    mainloop(True)
    epi_v(k, ACC, BF, RS)
    k.label(f"{nm}_fin5")

def ph_front(k):
    k.ptag = "_f"; k.srdo = "s[12:15]"
    e = k.e; nm = k.name + k.ptag; kn = k.name
    R, DEP, SCRB, UT = 4, 2, 131072, 65536
    need = lambda ks: ks // 2
    slot = lambda st: (st % R) * 32768
    e("s_cmp_ge_u32 s2, 256"); e(f"s_cbranch_scc1 {kn}_end"); k.stamp(0); k.rstamp(1)
    e("s_load_dwordx4 s[60:63], s[0:1], 0"); e("s_load_dwordx2 s[6:7], s[0:1], 64")
    e("s_load_dwordx2 s[46:47], s[0:1], 16"); e("s_load_dwordx2 s[4:5], s[0:1], 56"); e("s_load_dwordx4 s[40:43], s[0:1], 32")
    e("s_and_b32 s20, s2, 7"); e("s_lshr_b32 s21, s2, 3")
    e("v_lshrrev_b32 v2, 6, v0"); e("v_and_b32 v1, 63, v0")
    e("v_readfirstlane_b32 s18, v2")
    e("s_and_b32 s39, s18, 3"); e("s_lshl_b32 s45, s39, 10")
    ids_mt(k)
    e("v_lshlrev_b32 v3, 4, v1"); e(f"v_lshlrev_b32 v9, {ENV('BST', '7')}, v1")
    e("s_lshl_b32 s22, s2, 2"); e("s_add_u32 s22, s22, s39"); e("s_mul_i32 s23, s22, 2400"); e("s_mul_i32 s22, s22, 2560")
    def kwait():
        e("s_waitcnt lgkmcnt(0)")
        k.stamp(2)
        k.srd(8, 60, S*D*2); k.srd(28, 62, D*3*D*2); k.srd(12, 6, WS_END)
    def burst():
        if ENV('BURST', '1'):
            e("s_mov_b32 exec_hi, 0xff" if ENV('BST', '7') == 6 else "s_mov_b64 exec, 0xfffff")
            e("buffer_load_dword v240, v9, s[8:11], s22 offen"); e("buffer_load_dword v241, v9, s[28:31], s23 offen")
            e("s_mov_b64 exec, -1")
    def codepf(tg):
        if ENV('CPF', '1'):
            e("s_getpc_b64 s[34:35]"); k.label(f"{nm}_pc{tg}")
            e(f"s_sub_u32 s34, s34, {nm}_pc{tg} - {kn}"); e("s_subb_u32 s35, s35, 0")
            e("v_lshlrev_b32 v242, 4, v0"); e("s_lshl_b32 s36, s21, 12"); e("v_add_u32 v242, s36, v242")
            e(f"v_and_b32 v242, 0xffffffc0, v242"); e(f"v_min_u32 v242, code_end - {kn} - 4, v242")
            e("global_load_dword v243, v242, s[34:35]")
    e("s_cmp_ge_u32 s17, 15"); e(f"s_cbranch_scc1 {nm}_ub")
    e("v_and_b32 v10, 31, v1"); e("v_lshrrev_b32 v4, 5, v1"); e("v_and_b32 v5, 15, v1"); e("v_bfe_u32 v7, v1, 4, 1")
    e("v_lshrrev_b32 v13, 2, v5"); e("v_and_b32 v6, 3, v1")
    e("v_lshl_add_u32 v14, v4, 3, v13"); e("v_lshlrev_b32 v14, 8, v14"); e("v_lshl_add_u32 v14, v7, 5, v14"); e("v_lshl_add_u32 v14, v6, 3, v14")
    e("v_add_u32 v14, 16384, v14")
    e("s_mul_i32 s48, s17, 16"); e("s_add_u32 s48, s48, s16"); e("s_lshl_b32 s48, s48, 2"); e("s_add_u32 s48, s48, s39")
    e("s_lshl_b32 s49, s39, 13"); e(f"s_add_u32 s49, s49, {SCRB}")
    e("s_mul_i32 s50, s48, 3277"); e("s_lshr_b32 s50, s50, 16"); e("s_mul_i32 s51, s50, 20"); e("s_sub_u32 s51, s48, s51")
    def a0():
        e("s_lshl_b32 s48, s17, 11"); e(f"s_add_u32 s48, s48, {C0}"); e(f"v_lshlrev_b32 v{PV_+1}, 8, v1"); e("s_mov_b64 s[56:57], 0xff")
    SF = ENV('SF', '10')
    e("s_cmp_ge_u32 s18, 4"); e(f"s_cbranch_scc1 {nm}_ld")
    kwait(); burst(); codepf("c")
    ACC, BF, AR, RS = 64, 128, 160, 200
    BA, AA = 216, 224
    SV = 192
    e("v_lshrrev_b32 v35, 4, v1")
    for r in list(range(SV, SV+5)) + list(range(36, 44)): e(f"v_mov_b32 v{r}, 0")
    e("s_mov_b32 s27, 0")
    e("s_mov_b32 s56, 0x7ff00000"); e("s_mov_b32 s57, s56"); e("s_mov_b32 s58, s56")
    e("s_cmp_ge_u32 s48, 320"); e(f"s_cbranch_scc1 {nm}_s1")
    k.srd(52, 40, D*3*D*2)
    e(f"s_mul_i32 s27, s51, {32*3840}"); e("s_mul_i32 s25, s50, 80"); e("s_add_u32 s27, s27, s25")
    for par in range(2):
        e(f"v_add_u32 v32, {4*par}, v35"); e("v_lshlrev_b32 v32, 1, v32"); e("v_xor_b32 v32, v32, v5"); e("v_min_u32 v32, 14, v32")
        e("v_mul_u32_u24 v33, 52, v32"); e("v_lshrrev_b32 v33, 8, v33"); e("v_mul_u32_u24 v33, 1200, v33"); e("v_lshl_add_u32 v33, v32, 4, v33")
        e("v_mul_u32_u24 v32, 3840, v35"); e(f"v_add_u32 v{SV+par}, v33, v32")
    e("v_and_b32 v33, 1, v35"); e("v_lshl_add_u32 v33, v33, 2, v13"); e("v_lshlrev_b32 v33, 5, v33")
    e("v_lshl_add_u32 v32, v35, 3, v13"); e("v_lshlrev_b32 v32, 8, v32"); e("v_add_u32 v32, s49, v32")
    for F in range(8):
        if F < 6:
            e("v_lshlrev_b32 v34, 3, v6")
            if F: e(f"v_add_u32 v34, {40*F}, v34")
        elif F == 6: e("v_mul_u32_u24 v34, 40, v6"); e("v_add_u32 v34, 32, v34")
        else: e("v_and_b32 v34, 1, v6"); e("v_mul_u32_u24 v34, 40, v34"); e("v_add_u32 v34, 192, v34")
        e("v_xor_b32 v34, v34, v33"); e(f"v_add_u32 v{36+F}, v34, v32")
    e("s_mul_i32 s56, s50, 163840"); e("s_lshl_b32 s57, s51, 13"); e("s_add_u32 s56, s56, s57"); e(f"s_add_u32 s56, s56, {WB_I}"); e("s_add_u32 s57, s56, 4096"); e("s_mov_b32 s58, s57")
    e(f"s_branch {nm}_s2")
    k.label(f"{nm}_s1")
    e("s_cmp_ge_u32 s50, 24"); e("s_cselect_b32 s26, s42, s46"); e("s_cselect_b32 s27, s43, s47")
    k.srd(52, 26, D*D*2)
    e("s_cmp_ge_u32 s48, 640"); e(f"s_cbranch_scc1 {nm}_s2")
    e("s_and_b32 s25, s50, 7"); e("s_mul_i32 s25, s25, 160")
    e("s_mul_i32 s27, s51, 40"); e("s_sub_u32 s44, s51, 16"); e("s_mul_i32 s44, s44, 160"); e("s_add_u32 s44, s44, 16")
    e("s_cmp_lt_u32 s51, 16"); e("s_cselect_b32 s27, s27, s44"); e("s_cselect_b32 s26, 4, 2"); e("s_cselect_b32 s44, 4, 16")
    e("s_mul_i32 s27, s27, 1280"); e("s_add_u32 s27, s27, s25")
    for i in range(5):
        e(f"v_add_u32 v32, {64*i}, v1"); e("v_mul_u32_u24 v33, 6554, v32"); e("v_lshrrev_b32 v33, 16, v33")
        e("v_lshrrev_b32 v34, s26, v33"); e("v_mul_u32_u24 v34, s44, v34"); e("v_mul_u32_u24 v34, 1280, v34")
        e("v_mul_u32_u24 v33, 1120, v33"); e("v_add_u32 v34, v34, v33"); e(f"v_lshl_add_u32 v{SV+i}, v32, 4, v34")
    e("v_lshlrev_b32 v32, 2, v35"); e("s_mov_b32 s25, 2560")
    e("s_cmp_ge_u32 s50, 24"); e(f"s_cbranch_scc1 {nm}_f3"); e("s_cmp_ge_u32 s51, 16"); e(f"s_cbranch_scc1 {nm}_f3")
    e("v_lshrrev_b32 v32, 1, v35"); e("v_lshlrev_b32 v32, 4, v32"); e("v_and_b32 v33, 1, v35"); e("v_lshl_add_u32 v32, v33, 2, v32"); e("s_mov_b32 s25, 1280")
    k.label(f"{nm}_f3")
    e("v_add_u32 v32, v32, v13"); e("v_mul_u32_u24 v32, 160, v32"); e("v_add_u32 v32, s49, v32")
    e("s_and_b32 s26, s50, 1"); e("s_lshl_b32 s44, s26, 5"); e("s_xor_b32 s26, s26, 1"); e("s_lshl_b32 s26, s26, 7")
    e("v_lshl_add_u32 v36, v6, 4, v32"); e("v_add_u32 v36, s44, v36"); e("v_add_u32 v37, s25, v36")
    e("v_lshl_add_u32 v38, v6, 3, v32"); e("v_add_u32 v38, s26, v38"); e("v_add_u32 v39, s25, v38")
    e("s_cmp_ge_u32 s50, 24"); e(f"s_cselect_b32 s56, {WOB_I-WOA_I}, 0"); e("s_and_b32 s57, s50, 7"); e("s_mul_i32 s57, s57, 102400"); e("s_add_u32 s56, s56, s57")
    e("s_mul_i32 s57, s51, 5120"); e("s_add_u32 s56, s56, s57"); e(f"s_add_u32 s56, s56, {WOA_I}"); e("s_add_u32 s57, s56, 4096")
    k.label(f"{nm}_s2")
    e("s_lshl_b32 s38, s48, 9"); e(f"s_add_u32 s38, s38, {U_B}"); e("s_cmp_ge_u32 s48, 320"); e("s_cselect_b32 s38, 0x7ff00000, s38")
    e("v_lshlrev_b32 v9, 2, v1")
    UP = lambda F: (36, 40, 44, 48, 52, 208, 212, 28)[F]
    def side_issue(tg):
        e("s_cmp_ge_u32 s48, 320"); e(f"s_cbranch_scc1 {nm}_{tg}i1")
        for i in range(8):
            e(f"s_add_u32 m0, s49, {1024*i}"); e(f"s_add_u32 s32, s27, {4*3840*i}")
            e(f"buffer_load_dwordx4 v{SV+(i>>1)%2}, s[52:55], s32 offen nt lds")
        e(f"s_branch {nm}_{tg}i2")
        k.label(f"{nm}_{tg}i1")
        e("s_cmp_ge_u32 s48, 640"); e(f"s_cbranch_scc1 {nm}_{tg}i2")
        for i in range(5):
            e(f"s_add_u32 m0, s49, {1024*i}"); e("s_nop 0")
            e(f"buffer_load_dwordx4 v{SV+i}, s[52:55], s27 offen nt lds")
        k.label(f"{nm}_{tg}i2")
    e("s_lshl_b32 s19, s16, 2"); e("s_add_u32 s19, s19, s18")
    for jf in range(4):
        e(f"v_xor_b32 v15, {jf}, v13"); e(f"v_lshl_add_u32 v{BA+jf}, v15, 6, v14"); e(f"v_add_u32 v{BA+4+jf}, 65536, v{BA+jf}")
    e("v_lshl_add_u32 v15, v2, 5, v10"); e("v_lshlrev_b32 v15, 7, v15"); e("v_bfe_u32 v12, v10, 1, 3"); e("v_xor_b32 v12, v12, v4")
    for q in range(4):
        e(f"v_xor_b32 v11, {2*q}, v12"); e(f"v_lshl_add_u32 v{AA+q}, v11, 4, v15"); e(f"v_add_u32 v{AA+4+q}, 65536, v{AA+q}")
    e("v_mul_u32_u24 v8, 20480, v7"); e("v_lshl_add_u32 v8, v4, 8, v8"); e("v_lshl_add_u32 v8, v5, 4, v8")
    e("s_mul_i32 s24, s19, 40960"); e(f"s_add_u32 s24, s24, {XI}")
    e("v_subrev_u32 v58, 1, v4"); e("v_not_b32 v59, v58")
    e("s_cmp_ge_u32 s17, 10"); e(f"s_cbranch_scc1 {nm}_qv")
    def side_finish(tg):
        e("s_waitcnt vmcnt(0) lgkmcnt(0)"); k.lg = []
        e("s_cmp_ge_u32 s48, 320"); e(f"s_cbranch_scc1 {nm}_{tg}f1")
        for F in range(8):
            for t in range(2): e(f"ds_read_b64_tr_b16 {vr(176+4*F+2*t,2)}, v{36+F} offset:{1024*t}")
        e(f"s_branch {nm}_{tg}f2")
        k.label(f"{nm}_{tg}f1")
        for nf in range(5):
            for t in range(2): e(f"ds_read_b64_tr_b16 {vr(176+4*nf+2*t,2)}, v{36+t if nf < 4 else 38+t} offset:{64*(nf//2)+8*(nf%2) if nf < 4 else 0}")
        k.label(f"{nm}_{tg}f2")
        k.lg = ["side"]
    def mainloop(vmode):
        tagm = "v" if vmode else "q"
        acc = lambda jf: vr(ACC+16*jf, 16)
        fl = k.capture(lambda: addr_v(k, 0) if vmode else addr_qk(k, 0, 28))
        def rdB(ks, f):
            u, jf = f//4, f%4; sl = slot(ks//2)
            for t in range(2):
                off = sl + (32*(ks%2) + 16*u + 4*t)*256
                k.dsop(f"ds_read_b64_tr_b16 {vr(BF+4*f+2*t,2)}, v{BA+4*(sl>>16)+jf} offset:{off & 0xffff}", f"b{ks}_{f}")
        def rdA(ks):
            sl = slot(ks//2)
            for u in range(2): k.dsop(f"ds_read_b128 {vr(AR+8*(ks%2)+4*u,4)}, v{AA+4*(sl>>16)+2*(ks%2)+u} offset:{sl & 0xffff}", f"b{ks}_a")
        kb = [-1]
        def bars(ks):
            while kb[0] < need(ks): e("s_barrier"); kb[0] += 1
        bars(0); k.stamp(3)
        rdA(0)
        for f in range(8): rdB(0, f)
        for ks in range(20):
            for f in range(8):
                u, jf = f//4, f%4
                k.waitlg(f"b{ks}_{f}")
                a = vr(AR+8*(ks%2)+4*u, 4); b = vr(BF+4*f, 4); c = acc(jf) if (ks or u) else "0"
                if vmode: e(f"v_mfma_f32_32x32x16_bf16 {acc(jf)}, {a}, {b}, {c}")
                else:     e(f"v_mfma_f32_32x32x16_bf16 {acc(jf)}, {b}, {a}, {c}")
                if ks + 1 < 20:
                    if f == 0: bars(ks+1); rdA(ks+1)
                    rdB(ks+1, f)
                if ks >= 4: k.fill(fl, 1)
            e(f"s_cmp_eq_u32 s17, {ks % 15}"); e(f"s_cbranch_scc0 {nm}_x{tagm}{ks}")
            e(f"s_add_u32 s32, s24, {1024*ks}")
            for u in range(2): e(f"buffer_store_dwordx4 {vr(AR+8*(ks%2)+4*u,4)}, v8, s[12:15], s32 offen offset:{512*u} {SC}")
            k.label(f"{nm}_x{tagm}{ks}")
            if ks in (0, 1, 4, 9, 10, 14): k.stamp(7 + (0, 1, 4, 9, 10, 14).index(ks))
            if ks == ENV('SI', '1') and ENV('SIDE', '1'): side_issue(tagm)
            if ks == SF: side_finish(tagm)
            if ks == SF + 1:
                k.waitlg("side")
                for r in range(4): e(f"v_mov_b32 v{60+r}, 0x3f803f80")
                for F in range(8): e(f"v_mfma_f32_16x16x32_bf16 {vr(28+4*(F%4)+(16 if F >= 4 else 0) if False else UP(F),4)}, v[60:63], {vr(176+4*F,4)}, 0")
            if ks == SF + 2:
                for q in range(2):
                    for g in range(1, 4):
                        e(f"v_cmp_eq_u32 vcc, {g}, v35"); e(f"v_cndmask_b32 v{UP(4*q)}, v{UP(4*q)}, v{UP(4*q+g)}, vcc")
                    e(f"buffer_store_dword v{UP(4*q)}, v9, s[12:15], s38 offen offset:{256*q} {SC}")
            if SF < ks <= SF + 8 and ENV('SIDE', '1'):
                F = ks - SF - 1
                k.waitlg("side")
                e(f"buffer_store_dwordx4 {vr(176+4*F,4)}, v3, s[12:15], s{56 if F < 4 else 57 if F == 4 else 58} offen offset:{1024*(F%4)} {SC}")
        assert not fl
        k.stamp(4)
        e(f"v_lshlrev_b32 v23, 2, v10"); e(f"v_add_u32 v23, {UT}, v23"); e("s_lshl_b32 s32, s18, 8"); e("v_add_u32 v22, s32, v23")
        if vmode: e("v_lshlrev_b32 v21, 4, v4"); e(f"s_add_u32 s32, s32, {UT}"); e("v_add_u32 v21, s32, v21")
        e("s_barrier")
        e("ds_read_b32 v48, v22 offset:1024"); e("ds_read_b32 v49, v22 offset:1152")
        for jf in range(4): e(f"ds_read_b32 v{28+2*jf}, v23 offset:{256*jf}"); e(f"ds_read_b32 v{29+2*jf}, v23 offset:{256*jf+128}")
        if vmode:
            for a_ in range(4): e(f"ds_read_b128 {vr(RS+4*a_,4)}, v21 offset:{2048+32*a_}")
        else: e("ds_read_b32 v47, v22 offset:2048")
        e("s_waitcnt lgkmcnt(0)"); k.lg = []
        e("v_and_b32 v48, v48, v58"); e("v_and_b32 v49, v49, v58")
        if not vmode: e("v_mul_f32 v47, s59, v47")
        for jf in range(4):
            if vmode: e(f"v_mfma_f32_32x32x8_bf16 {acc(jf)}, v[48:49], {vr(28+2*jf,2)}, {acc(jf)}")
            else:     e(f"v_mfma_f32_32x32x8_bf16 {acc(jf)}, {vr(28+2*jf,2)}, v[48:49], {acc(jf)}")
        k.stamp(5)
    mainloop(False)
    epi_qk(k, ACC, BF)
    k.label(f"{nm}_qv"); k.lg = []
    mainloop(True)
    epi_v(k, ACC, BF, RS)
    k.label(f"{nm}_fin5")
    k.stamp(6)
    e("s_barrier")
    signal(k, "sf", -1, 8, a0, 0, "s[12:15]")
    k.dump(13)
    e(f"s_branch {kn}_t0")
    k.label(f"{nm}_ld"); k.vm = []; k.lg = []
    e(f"s_setprio {ENV('LPRIO', '2')}")
    e("v_lshrrev_b32 v16, 4, v1"); e("v_and_b32 v17, 3, v2")
    e("v_lshl_add_u32 v18, v17, 2, v16"); e("v_mul_u32_u24 v20, 3840, v18")
    e("v_xor_b32 v18, v13, v16"); e("v_lshl_add_u32 v20, v18, 6, v20"); e("v_lshl_add_u32 v20, v6, 4, v20")
    e("v_lshrrev_b32 v18, 3, v1"); e("v_lshl_add_u32 v19, v17, 5, v18"); e("v_and_b32 v23, 7, v1")
    for i in range(4):
        e(f"v_add_u32 v42, {8*i}, v19"); e("v_bfe_u32 v43, v42, 1, 3"); e("v_xor_b32 v43, v43, v23")
        e("v_mul_u32_u24 v42, 1280, v42"); e(f"v_lshl_add_u32 v{48+i}, v43, 4, v42")
        if i: e(f"v_subrev_u32 v{48+i}, {1024*i}, v{48+i}")
    e("s_lshl_b32 s25, s17, 8"); e("s_mul_i32 s24, s16, 163840"); e("s_lshl_b32 s26, s39, 12")
    def ld1(st, n):
        if n < 4:
            e(f"s_add_u32 m0, s45, {slot(st)+16384+4096*n}"); e(f"s_add_u32 s32, s25, {(64*st+16*n)*3840}")
            k.vmop("buffer_load_dwordx4 v20, s[28:31], s32 offen lds", f"d{st}")
        else:
            e(f"s_add_u32 m0, s26, {slot(st)}"); e(f"s_add_u32 s33, s24, {128*st}")
            k.vmop(f"buffer_load_dwordx4 v{44+n}, s[8:11], s33 offen offset:{1024*(n-4)} lds", f"d{st}")
    ORD = [0, 4, 1, 5, 2, 6, 3, 7]
    def ld(st):
        for n in ORD: ld1(st, n)
    kwait(); ld(0)
    e("v_xor_b32 v15, v17, v13"); e("v_lshl_add_u32 v40, v15, 6, v14"); e("v_add_u32 v41, 65536, v40")
    for r in range(4): e(f"v_mov_b32 v{60+r}, 0x3f803f80")
    k.srd(52, 4, 256)
    e("s_mul_i32 s27, s17, 163840"); e("s_add_u32 s27, s27, s45"); e(f"s_add_u32 s27, s27, {WA_I}")
    if ENV('LD1', '0'): ld(1)
    done = [0]
    def steps_of(kb):
        r = []
        while done[0] < 20 and need(done[0]) <= kb: r.append(done[0]); done[0] += 1
        return r
    def wa_store(q):
        e("s_lshl_b32 s32, s16, 13"); e("s_add_u32 s32, s32, s27")
        if q: e("s_add_u32 s32, s32, 131072")
        e("s_add_u32 s33, s32, 4096")
        for u in range(2): k.vmop(f"buffer_store_dwordx4 {vr(112+8*q+4*u,4)}, v3, s[12:15], s{32+u} offen {SC}")
    for kb in range(10):
        if kb == 5: k.stamp(5)
        k.waitvm(f"d{kb}")
        if kb == 5: k.stamp(6)
        e("s_barrier")
        if kb in (4, 5): k.stamp(2 if kb == 4 else 7)
        if kb == 0 and not ENV('LD1', '0'): ld(1)
        sl = slot(kb); todo = list(ORD) if kb + DEP < 10 else []
        nxt = lambda: ld1(kb + DEP, todo.pop(0)) if todo else None
        sts = steps_of(kb)
        for n_, ks in enumerate(sts):
            for u in range(2):
                for t in range(2):
                    e(f"ds_read_b64_tr_b16 {vr(136+8*n_+4*u+2*t,2)}, v{40+(sl>>16)} offset:{(sl + (32*(ks%2) + 16*u + 4*t)*256) & 0xffff}")
        nxt(); nxt()
        if kb == 4: k.stamp(3)
        e("s_waitcnt lgkmcnt(0)")
        mf = [(n_, ks, u) for n_, ks in enumerate(sts) for u in range(2)]
        for n_, ks, u in mf:
            e(f"v_mfma_f32_32x32x16_bf16 v[64:79], v[60:63], {vr(136+8*n_+4*u,4)}, {'v[64:79]' if ks or u else 0}")
            nxt()
        nxt(); nxt()
        if kb == 4: k.stamp(4)
        for n_, ks in enumerate(sts):
            e(f"s_cmp_eq_u32 s16, {ks % 16}"); e(f"s_cbranch_scc0 {nm}_w{ks}")
            for r in range(8): e(f"v_mov_b32 v{112+8*(ks//16)+r}, v{136+8*n_+r}")
            k.label(f"{nm}_w{ks}")
        assert not todo
        if kb == 8:
            e("v_and_b32 v24, 15, v1"); e("v_lshlrev_b32 v24, 2, v24"); e("s_mov_b32 s33, 0")
            k.label(f"{nm}_pl")
            e(f"buffer_load_dword v25, v24, s[52:55], 0 offen {SC}"); e("s_add_u32 s33, s33, 1"); e("s_waitcnt vmcnt(0)"); k.vm = []
            e("v_cmp_eq_u32 vcc, 0, v25"); e("s_cmp_ge_u32 s33, 0x20000"); e(f"s_cbranch_scc1 {nm}_px")
            e(f"s_cbranch_vccnz {nm}_pl")
            k.label(f"{nm}_px")
            e("v_lshlrev_b32 v24, 3, v10"); e("s_lshl_b32 s32, s16, 10"); e("s_lshl_b32 s33, s39, 8"); e("s_add_u32 s32, s32, s33"); e(f"s_add_u32 s32, s32, {STI}")
            k.vmop(f"buffer_load_dwordx2 v[44:45], v24, s[12:15], s32 offen {SC}", "rs")
            wa_store(0)
    k.waitvm("rs")
    stats_finish(k, 44, 45, 28, 29, 30)
    split3(k, 28, 32, 36, 'm'); split3(k, 64, 34, 36, 'u')
    e("v_lshlrev_b32 v24, 2, v10"); e("s_lshl_b32 s32, s39, 8"); e(f"s_add_u32 s32, s32, {UT}"); e("v_add_u32 v24, s32, v24")
    e("ds_write_b32 v24, v34"); e("ds_write_b32 v24, v35 offset:128"); e("ds_write_b32 v24, v32 offset:1024"); e("ds_write_b32 v24, v33 offset:1152"); e("ds_write_b32 v24, v29 offset:2048")
    e("s_waitcnt lgkmcnt(0)"); e("s_barrier")
    lwc_init(k); e("s_barrier")
    e("v_mov_b32 v44, v64")
    e("s_cmp_ge_u32 s16, 4"); e(f"s_cbranch_scc1 {nm}_le"); wa_store(1)
    e("s_cmp_eq_u32 s16, 0"); e(f"s_cbranch_scc0 {nm}_le")
    e("v_mov_b32 v45, 0"); e("v_mov_b32 v46, 0"); e("v_mov_b32 v47, 0"); e("v_lshlrev_b32 v24, 4, v10")
    e("s_lshl_b32 s32, s17, 11"); e("s_lshl_b32 s33, s39, 9"); e("s_add_u32 s32, s32, s33"); e(f"s_add_u32 s32, s32, {U_A}")
    e("s_mov_b32 exec_hi, 0"); e(f"buffer_store_dwordx4 v[44:47], v24, s[12:15], s32 offen {SC}")
    k.label(f"{nm}_le")
    e("s_mov_b64 exec, -1")
    signal(k, "sfl", -1, 8, a0, 0, "s[12:15]")
    k.dump(8)
    e(f"s_branch {kn}_t0")
    k.label(f"{nm}_ub"); k.vm = []; k.lg = []
    kwait()
    e("v_lshrrev_b32 v4, 3, v1"); e("v_lshl_add_u32 v4, v2, 4, v4"); e("v_mul_u32_u24 v5, 1280, v4"); e("v_and_b32 v6, 7, v1"); e("v_lshl_add_u32 v5, v6, 4, v5")
    e("s_mul_i32 s24, s16, 163840"); e("s_add_u32 s25, s24, 10240")
    for b_ in range(2):
        for i in range(10): k.vmop(f"buffer_load_dwordx4 {vr(24+40*b_+4*i,4)}, v5, s[8:11], s{24+b_} offen offset:{128*i}", f"x{b_}{i}")
    for j in range(8): e(f"v_mov_b32 v{8+j}, 0")
    e("v_mov_b32 v7, 0x3f803f80")
    e("v_lshlrev_b32 v16, 4, v0"); e("s_and_b32 s26, s16, 7"); e("s_lshl_b32 s26, s26, 13"); e(f"s_add_u32 s26, s26, {CNT}"); e("s_cmp_ge_u32 s16, 8"); e(f"s_cselect_b32 s27, {LS}, 0"); e("s_add_u32 s26, s26, s27")
    k.vmop(f"buffer_store_dwordx4 v[12:15], v16, s[12:15], s26 offen {SC}")
    for b_ in range(2):
        for i in range(10):
            k.waitvm(f"x{b_}{i}")
            for q in range(4):
                r = 24+40*b_+4*i+q
                e(f"v_dot2_f32_bf16 v{8+2*b_}, v{r}, v7, v{8+2*b_}"); e(f"v_dot2_f32_bf16 v{9+2*b_}, v{r}, v{r}, v{9+2*b_}")
    for dpp in ("quad_perm:[1,0,3,2]", "quad_perm:[2,3,0,1]", "row_half_mirror"):
        for q in range(4): e(f"v_add_f32_dpp v{8+q}, v{8+q}, v{8+q} {dpp} row_mask:0xf bank_mask:0xf")
    e("v_lshlrev_b32 v4, 3, v4"); e("s_lshl_b32 s26, s16, 10"); e(f"s_add_u32 s26, s26, {STI}")
    e("v_cmp_eq_u32 vcc, 0, v6"); k.srd(52, 4, 256); e("s_mov_b64 exec, vcc")
    e(f"buffer_store_dwordx2 v[8:9], v4, s[12:15], s26 offen {SC}"); e(f"buffer_store_dwordx2 v[10:11], v4, s[12:15], s26 offen offset:64 {SC}")
    e("s_mov_b64 exec, -1"); lwc_init(k)
    e("s_waitcnt vmcnt(0)"); e("s_barrier")
    e("s_cmp_ge_u32 s18, 4"); e(f"s_cbranch_scc1 {nm}_u2")
    codepf("u")
    e("s_cmp_eq_u32 s18, 0"); e(f"s_cbranch_scc0 {nm}_u2")
    e("v_mov_b32 v4, 0"); e("v_mov_b32 v5, 1"); e("s_lshl_b32 s26, s16, 2"); e("s_mov_b64 exec, 1")
    e(f"buffer_store_dword v5, v4, s[52:55], s26 offen {SC}")
    e("s_mov_b64 exec, 0xffff"); e("v_lshlrev_b32 v4, 2, v1"); e("s_mov_b32 s33, 0")
    k.label(f"{nm}_u1")
    e(f"buffer_load_dword v5, v4, s[52:55], 0 offen {SC}"); e("s_add_u32 s33, s33, 1"); e("s_waitcnt vmcnt(0)")
    e("v_cmp_eq_u32 vcc, 0, v5"); e("s_cmp_ge_u32 s33, 0x20000"); e(f"s_cbranch_scc1 {nm}_u2"); e(f"s_cbranch_vccnz {nm}_u1")
    k.label(f"{nm}_u2")
    e("s_mov_b64 exec, -1"); e("s_waitcnt vmcnt(0)")

def k_main():
    k = KB(NAME + "_kernel"); e = k.e; name = k.name
    ph_front(k)
    k.label(f"{name}_t0")
    e("s_load_dwordx2 s[46:47], s[0:1], 48"); e("s_mov_b32 s3, 0")
    k.srd(8, 6, 2*LS)
    e("s_waitcnt lgkmcnt(0)")
    k.srd(60, 46, S*D*2)
    k.label(f"{name}_top")
    k.vm = []; k.lg = []
    e("s_setprio 0"); k.stamp(0); k.rstamp(1)
    ph_attn(k)
    def a1():
        e("s_lshl_b32 s48, s17, 3"); e("s_and_b32 s49, s16, 1"); e("s_add_u32 s48, s48, s49"); e("s_lshl_b32 s48, s48, 8"); e(f"s_add_u32 s48, s48, {C1}")
        e(f"v_lshlrev_b32 v{PV_+1}, 9, v1"); e("s_mov_b64 s[56:57], 15")
    e("s_cmp_ge_u32 s18, 4"); e(f"s_cbranch_scc1 {name}_ld")
    signal(k, "s1", 0, 8, a1)
    def c1():
        e("s_lshl_b32 s48, s16, 9"); e(f"s_add_u32 s48, s48, {C1}")
        e(f"v_lshlrev_b32 v{PV_+1}, 8, v1"); e(f"v_mov_b32 v{PV_+2}, 16"); e("s_mov_b64 s[56:57], 3")
    proj_c(k, "p2", OT, XI, XM, STM, False, c1, 0, 6)
    def a2():
        e("s_lshr_b32 s48, s16, 1"); e("s_lshl_b32 s48, s48, 9"); e(f"s_add_u32 s48, s48, {C2}")
        e(f"v_mul_u32_u24 v{PV_+1}, 768, v1"); e("s_bitcmp1_b32 s16, 0"); e("s_cselect_b64 s[56:57], 3, 1")
    signal(k, "s2", 1, 4, a2)
    qkvb_c(k, XM, STM, 9)
    def a3(): one(k, 0); e("s_lshl_b32 s48, s16, 8"); e(f"s_add_u32 s48, s48, {C3}")
    signal(k, "s3", 0, 4, a3)
    def c3(): one(k, 16); e("s_lshr_b32 s48, s16, 1"); e("s_lshl_b32 s48, s48, 8"); e(f"s_add_u32 s48, s48, {C3}")
    proj_c(k, "p4", OBT, XM, LS + XI, LS + STI, True, c3, 0, 12)
    def a4(): one(k, 0); e("s_lshr_b32 s48, s16, 1"); e("s_lshl_b32 s48, s48, 8"); e(f"s_add_u32 s48, s48, {C4}")
    signal(k, "s4", 1, 4, a4)
    k.dump(15, "1")
    ids_mt(k)
    e("s_cmp_ge_u32 s17, 15"); e(f"s_cbranch_scc1 {name}_idle")
    qkva_c(k, LS + XI, LS + STI, LS, C4, [7], 3)
    k.stamp(6)
    e("s_barrier")
    def a5(): e("s_lshl_b32 s48, s17, 11"); e(f"s_add_u32 s48, s48, {LS + C0}"); e(f"v_lshlrev_b32 v{PV_+1}, 8, v1"); e("s_mov_b64 s[56:57], 0xff")
    signal(k, "s5", -1, 4, a5)
    k.dump(7, "3")
    k.label(f"{name}_t1")
    e("s_mov_b32 s3, 1"); e(f"s_add_u32 s8, s8, {LS}"); e("s_addc_u32 s9, s9, 0"); e(f"s_mov_b32 s10, {LS}")
    e(f"s_branch {name}_top")
    k.label(f"{name}_idle")
    for _ in range(4): e("s_barrier")
    e(f"s_branch {name}_t1")
    k.label(f"{name}_ld"); k.vm = []; k.lg = []
    e(f"s_setprio {ENV('LPRIO', '2')}")
    w = proj_l(k, WOA_I, WB_I, OT, a1, 0)
    qkvb_l(k, XM, STM, w)
    w = proj_l(k, WOB_I, WA_I, OBT, None, 0, True)
    ids_mt(k)
    atouch_pre(k, LS + XI)
    e("s_barrier")
    e("buffer_load_dword v20, v21, s[8:11], s51 offen")
    w.one(39); e("s_waitcnt vmcnt(0)"); e("s_barrier")
    e("s_barrier"); lwc_init(k); e("s_barrier")
    e(f"s_branch {name}_t1")
    k.label(f"{name}_end"); e("s_endpgm")
    k.tail()
    return k.text(256 if STAMP else 244, 256 if STAMP else 244)

def build():
    hdr = open("cdna_kernels/" + NAME + ".s.ref").read().split("; Override launch")[0]
    out = hdr + "; @launch grid=(256,1,1) block=(512,1,1) lds=163840\n"
    out += '.amdgcn_target "amdgcn-amd-amdhsa--gfx950"\n'
    out += k_main()
    out += ".text\ncode_end:\n"
    return out

if __name__ == "__main__":
    dst = sys.argv[1] if len(sys.argv) > 1 else "cdna_kernels/" + NAME + ".s"
    open(dst, "w").write(build())
    print("wrote", dst)
```

```python
import sys, math
from lint import lint, fix

NAME = "interleave_layers__softmax_full_mha__sliding_local_dilated__prompt"
S, D, H, DH = 2048, 640, 32, 20
XS = S*D*2
IMG = H*64*2560
QI = H*64*1280
OT = 0; OBT = XS; XM = 2*XS; XI = 3*XS
STM = 4*XS; STI = STM + S*64
QIMG = STI + S*64; KVIMG = QIMG + QI
CNT = KVIMG + IMG
C1 = CNT; C2 = C1 + 64*256; C3 = C2 + 34*256; C4 = C3 + 16*256; C0 = C4 + 16*256
LS = CNT + 65536
CS = LS + C4
U_A = 2*LS
U_B = U_A + 32768
WA_I = U_B + 163840
WOA_I = WA_I + 15*163840
WB_I = WOA_I + 819200
WOB_I = WB_I + 16*163840
STAMPS = WOB_I + 819200
WS_END = STAMPS + 16*262144
import os
STAMP = int(os.environ.get("STAMP", "0"))
ATTN_WAVES = 8
AV = os.environ.get("AV", "")
CSCALE = (DH ** -0.5) * math.log2(math.e)
import struct
def fbits(x): return "0x%08x" % struct.unpack("<I", struct.pack("<f", x))[0]

FM = [(0,16),(32,48),(80,96),(112,128),(64,144)]
def FX(ks, t):
    return 160*(ks//5) + FM[ks%5][t]

class KB:
    def __init__(s, name):
        s.name = name; s.L = []; s.vm = []; s.lg = []; s.cap = None
    def e(s, line):
        if s.cap is not None: s.cap.append(('e', line, None))
        else: s.L.append("    " + line)
    def capture(s, fn):
        s.cap = []; fn(); c = s.cap; s.cap = None
        return [x for x in c if not (x[0] == 'e' and x[1].startswith('s_nop'))]
    def fill(s, lst, n=1):
        for _ in range(n):
            if not lst: return
            kind, a, b = lst.pop(0)
            if kind == 'e':
                s.e(a)
                if a.startswith('s_cmp'):
                    while lst and lst[0][0] == 'e' and lst[0][1].startswith('s_cselect'): s.e(lst.pop(0)[1])
            elif kind == 'ds': s.dsop(a, b)
            elif kind == 'wvm': s.waitvm(a)
            elif kind == 'wlg': s.waitlg(a)
    def c(s, txt): s.L.append("    ; " + txt)
    def label(s, l): s.L.append(l + ":")
    def vmop(s, line, tag=None): s.e(line); s.vm.append(tag); assert len(s.vm) <= 63, (s.name, len(s.vm))
    def dsop(s, line, tag=None):
        if s.cap is not None: s.cap.append(('ds', line, tag)); return
        s.e(line); s.lg.append(tag)
    def _n(s, lst, tag):
        idx = max(i for i, t in enumerate(lst) if t == tag)
        return idx
    def waitvm(s, tag):
        if s.cap is not None: s.cap.append(('wvm', tag, None)); return
        if tag not in s.vm: return
        i = s._n(s.vm, tag); n = len(s.vm) - 1 - i
        s.e(f"s_waitcnt vmcnt({n})"); s.vm = s.vm[i+1:]
    def waitlg(s, tag):
        if s.cap is not None: s.cap.append(('wlg', tag, None)); return
        if tag not in s.lg: return
        i = s._n(s.lg, tag); n = len(s.lg) - 1 - i
        if n > 15: n = 15; i = len(s.lg) - 1 - n
        s.e(f"s_waitcnt lgkmcnt({n})"); s.lg = s.lg[i+1:]
    def waitall(s):
        s.e("s_waitcnt vmcnt(0) lgkmcnt(0)"); s.vm = []; s.lg = []
    def srd(s, r, base, nbytes):
        s.e(f"s_mov_b32 s{r}, s{base}")
        s.e(f"s_and_b32 s{r+1}, s{base+1}, 0xffff")
        s.e(f"s_mov_b32 s{r+2}, {nbytes}")
        s.e(f"s_mov_b32 s{r+3}, 0x20000")
    def stamp(s, i):
        if not STAMP: return
        op = "s_memrealtime" if os.environ.get("RT") else "s_memtime"
        s.e(f"{op} s[{64+2*i}:{65+2*i}]" if i < 10 else f"{op} s[{72+2*i}:{73+2*i}]")
    def rstamp(s, i):
        if not STAMP: return
        s.e(f"s_memrealtime s[{64+2*i}:{65+2*i}]")
    def dump(s, n=8, slot="0", wave="s18"):
        if not STAMP: return
        e = s.e
        if os.environ.get("DBG"):
            keep = {"0": [(1, 246), (3, 247), (6, 248)], "1": [(2, 249), (5, 250), (14, 251)], "3": [(6, 252)], "2": [(2, 253), (5, 254), (14, 255)]}[slot]
            e("s_waitcnt lgkmcnt(0)")
            if n < 7 or (slot == "0" and n == 8): return
            for i, v in keep: e(f"v_mov_b32 v{v}, s{64+2*i if i < 10 else 72+2*i}")
            if slot == "2":
                e(f"s_cmp_eq_u32 s2, {os.environ['DBG']}"); e("s_cbranch_scc0 dbg_skip"); e("s_cmp_eq_u32 s18, 0"); e("s_cbranch_scc0 dbg_skip")
                e("s_load_dwordx2 s[84:85], s[0:1], 56"); e("s_memrealtime s[86:87]"); e("s_waitcnt lgkmcnt(0)")
                s.srd(88, 84, 256); e("s_mov_b64 exec, 1"); e("v_mov_b32 v0, 0"); e("v_mov_b32 v245, s86"); e("v_sub_u32 v245, v245, v246")
                for i in range(9):
                    e(f"v_sub_u32 v{247+i}, v{247+i}, v246"); e(f"buffer_store_dword v{247+i}, v0, s[88:91], 0 offen offset:{4*i}")
                e("buffer_store_dword v245, v0, s[88:91], 0 offen offset:36")
                s.label("dbg_skip")
            return
        e("s_memrealtime s[86:87]"); e("s_waitcnt lgkmcnt(0)")
        e("s_mov_b64 exec, 1")
        e(f"s_lshl_b32 s84, {slot}, 18")
        e("s_lshl_b32 s85, s2, 3"); e(f"s_add_u32 s85, s85, {wave}"); e("s_lshl_b32 s85, s85, 6"); e(f"s_add_u32 s85, s85, {STAMPS}"); e("s_add_u32 s85, s85, s84")
        e("v_mov_b32 v244, 0")
        for i in range(n):
            e(f"v_mov_b32 v245, s{64+2*i if i < 10 else 72+2*i}")
            e(f"buffer_store_dword v245, v244, s[12:15], s85 offen offset:{4*i}")
        e("v_mov_b32 v245, s86"); e("buffer_store_dword v245, v244, s[12:15], s85 offen offset:60")
        e("s_mov_b64 exec, -1")
    def text(s, vgpr, accum, sgpr=102):
        s.L, added = fix(s.L)
        if os.environ.get("V"): print(s.name, "auto nops:", added, "lines:", len(s.L))
        out = [".text", f".globl {s.name}", ".p2align 8", f".type {s.name},@function", f"{s.name}:"]
        out += s.L
        out += ['.section .rodata,"a"', ".p2align 6", f".amdhsa_kernel {s.name}",
                f"  .amdhsa_next_free_vgpr {vgpr}", f"  .amdhsa_next_free_sgpr {sgpr}", f"  .amdhsa_accum_offset {accum}",
                "  .amdhsa_group_segment_fixed_size 0", "  .amdhsa_kernarg_size 72", "  .amdhsa_user_sgpr_count 2",
                "  .amdhsa_user_sgpr_kernarg_segment_ptr 1", "  .amdhsa_system_sgpr_workgroup_id_x 1", ".end_amdhsa_kernel"]
        nb = lint(s.L, s.name)
        assert nb == 0, f"{nb} hazards in {s.name}"
        return "\n".join(out) + "\n"
    def allred32(s, op, v, t):
        s.e(f"v_mov_b32 v{t}, v{v}"); s.e("s_nop 1")
        s.e(f"v_permlane32_swap_b32 v{v}, v{t}"); s.e("s_nop 1")
        s.e(f"{op} v{v}, v{v}, v{t}")
    def allred16(s, op, v, t):
        s.e(f"v_mov_b32 v{t}, v{v}"); s.e("s_nop 1")
        s.e(f"v_permlane16_swap_b32 v{v}, v{t}"); s.e("s_nop 1")
        s.e(f"{op} v{v}, v{v}, v{t}")

def vr(a, n): return f"v[{a}:{a+n-1}]" if n > 1 else f"v{a}"
def ar(a, n): return f"a[{a}:{a+n-1}]" if n > 1 else f"a{a}"

def stats_finish(k, s1, s2, mean, rstd, t):
    e = k.e
    e(f"v_mul_f32 v{mean}, {fbits(1.0/D)}, v{s1}")
    e(f"v_mul_f32 v{t}, {fbits(1.0/D)}, v{s2}")
    e(f"v_fma_f32 v{t}, -v{mean}, v{mean}, v{t}")
    e(f"v_max_f32 v{t}, 0, v{t}")
    e(f"v_add_f32 v{t}, {fbits(1e-5)}, v{t}")
    e(f"v_rsq_f32 v{rstd}, v{t}")
    e("s_nop 0")

def split3(k, src, d, t, kind, maskv=None):
    e = k.e
    if kind == 'm':
        e(f"v_xor_b32 v{t+1}, 0x80000000, v{src}"); src = t+1
    e(f"v_and_b32 v{t}, 0xffff0000, v{src}")
    e(f"v_sub_f32 v{t+2}, v{src}, v{t}")
    if kind == 'u':
        e(f"v_cvt_pk_bf16_f32 v{d}, v{t}, v{t+2}")
        e(f"v_lshrrev_b32 v{d+1}, 16, v{t}")
    else:
        e(f"v_cvt_pk_bf16_f32 v{d}, v{t}, v{t}")
        e(f"v_cvt_pk_bf16_f32 v{d+1}, v{t+2}, 0")
    if maskv is not None:
        e(f"v_and_b32 v{d}, v{d}, v{maskv}"); e(f"v_and_b32 v{d+1}, v{d+1}, v{maskv}")

SC = "sc1"
EARLY = int(os.environ.get('EARLY', '6'))
ENV = lambda n, d: int(os.environ.get(n, d))

def ids_mt(k):
    k.e("s_lshl_b32 s22, s20, 1"); k.e("s_and_b32 s23, s21, 1"); k.e("s_add_u32 s16, s22, s23"); k.e("s_lshr_b32 s17, s21, 1")
def ids_rt(k):
    k.e("s_lshl_b32 s22, s20, 2"); k.e("s_and_b32 s23, s21, 3"); k.e("s_add_u32 s16, s22, s23"); k.e("s_lshr_b32 s17, s21, 2")

LW = 163824
PV_ = 240
def lw_init(k):
    e = k.e
    e(f"v_mov_b32 v{PV_+3}, {LW}")
    for i in range(3): e(f"v_mov_b32 v{PV_+i}, 0")
    e(f"ds_write_b96 v{PV_+3}, v[{PV_}:{PV_+2}]"); e(f"ds_write_b32 v{PV_+3}, v{PV_} offset:12")

def lwc_init(k):
    k.e(f"v_mov_b32 v{PV_+3}, {LW-8}"); k.e(f"v_mov_b32 v{PV_}, 0"); k.e(f"v_mov_b32 v{PV_+1}, 0")
    k.e(f"ds_write_b64 v{PV_+3}, v[{PV_}:{PV_+1}]"); k.e("s_waitcnt lgkmcnt(0)")

def signal(k, tag, word, nw, addr_code, younger=0, srd="s[8:11]"):
    e = k.e
    addr_code()
    e(f"v_mov_b32 v{PV_+3}, {LW-8}"); e(f"v_mov_b32 v{PV_}, 1")
    e("s_mov_b64 exec, 1")
    assert younger == 0
    e("s_waitcnt vmcnt(0)"); k.vm = []
    if tag == os.environ.get("FOC"): k.stamp(2)
    e(f"ds_add_rtn_u32 v{PV_+2}, v{PV_+3}, v{PV_} offset:{8*word+8}")
    e("s_waitcnt lgkmcnt(0)"); k.lg = []
    e(f"v_readfirstlane_b32 s49, v{PV_+2}")
    e("s_mov_b64 exec, s[56:57]")
    e(f"s_cmp_eq_u32 s49, {nw-1}"); e(f"s_cbranch_scc0 {k.name}_{tag}_sg")
    e(f"buffer_atomic_add v{PV_}, v{PV_+1}, {srd}, s48 offen {SC}")
    if os.environ.get("FOC2") == tag: k.stamp(4)
    k.label(f"{k.name}_{tag}_sg")
    e("s_mov_b64 exec, -1")

def wait_go(k, tag, word, poll_code):
    e = k.e; nm = f"{k.name}_{tag}"
    e(f"v_mov_b32 v{PV_+3}, {LW-8}"); e("s_mov_b32 s49, 0")
    if poll_code:
        e("s_cmp_eq_u32 s18, 0"); e(f"s_cbranch_scc0 {nm}_sp")
        poll_code()
        e("s_mov_b64 exec, s[56:57]")
        if os.environ.get("FOC") == "g" + tag: k.stamp(2)
        k.label(f"{nm}_pl")
        e(f"v_mov_b32 v{PV_}, 0")
        e(f"buffer_atomic_add v{PV_}, v{PV_+1}, s[8:11], s48 offen sc0 sc1")
        e("s_add_u32 s49, s49, 1")
        e("s_waitcnt vmcnt(0)")
        e(f"v_cmp_ge_u32 vcc, v{PV_}, v{PV_+2}")
        e("s_cmp_ge_u32 s49, 0x20000"); e(f"s_cbranch_scc1 {nm}_px")
        e("s_cmp_eq_u64 vcc, exec"); e(f"s_cbranch_scc0 {nm}_pl")
        k.label(f"{nm}_px")
        if os.environ.get("FOC") == "g" + tag: e("s_add_u32 s70, s64, s49")
        e("s_mov_b64 exec, 1"); e(f"v_mov_b32 v{PV_}, 1")
        e(f"ds_write_b32 v{PV_+3}, v{PV_} offset:{8*word+12}")
        e(f"s_branch {nm}_go")
    k.label(f"{nm}_sp")
    e("s_sleep 1")
    e(f"ds_read_b32 v{PV_}, v{PV_+3} offset:{8*word+12}")
    e("s_add_u32 s49, s49, 1")
    e("s_waitcnt lgkmcnt(0)")
    e(f"v_readfirstlane_b32 s44, v{PV_}")
    e("s_cmp_ge_u32 s49, 0x400000"); e(f"s_cbranch_scc1 {nm}_go")
    e("s_cmp_eq_u32 s44, 0"); e(f"s_cbranch_scc1 {nm}_sp")
    k.label(f"{nm}_go")
    e("s_mov_b64 exec, -1")

class Wdma:
    def __init__(s, k, n, base=50, tag="w"): s.k = k; s.n = n; s.i = 0; s.base = base; s.tag = tag
    def one(s, i):
        s.k.e(f"s_add_u32 m0, s45, {4096*i}"); s.k.e(f"s_add_u32 s32, s{s.base}, {4096*i}")
        s.k.vmop(f"buffer_load_dwordx4 v3, s[12:15], s32 offen {SC} lds", f"{s.tag}{i}")
    def go(s, upto):
        while s.i < min(upto, s.n): s.one(s.i); s.i += 1
    def rng(s, a, b, thr=0):
        for i in range(a, b):
            s.one(i)
            if thr and len(s.k.vm) >= thr: s.k.e(f"s_waitcnt vmcnt({thr-1})"); s.k.vm = s.k.vm[len(s.k.vm)-thr+1:]

SIDE_SV = 152; SIDE_D = 160; SIDE_U = 192
def side_setup(k):
    e = k.e; nm = k.name
    e("s_load_dwordx4 s[84:87], s[0:1], 32"); e("s_load_dwordx2 s[88:89], s[0:1], 16")
    e("s_mul_i32 s49, s2, 3"); e("s_add_u32 s49, s49, s18"); e("s_sub_u32 s49, s49, 4")
    e("s_sub_u32 s32, s18, 4"); e("s_cmp_lt_u32 s32, 3"); e("s_cselect_b32 s49, s49, 959"); e("s_cmp_eq_u32 s3, 0"); e("s_cselect_b32 s49, s49, 959")
    e("s_lshl_b32 s35, s39, 13"); e("s_add_u32 s35, s35, 128000")
    e("s_mul_i32 s36, s49, 3277"); e("s_lshr_b32 s36, s36, 16"); e("s_mul_i32 s37, s36, 20"); e("s_sub_u32 s37, s49, s37")
    e("v_and_b32 v140, 15, v1"); e("v_lshrrev_b32 v141, 2, v140"); e("v_and_b32 v142, 3, v1")
    e("s_waitcnt lgkmcnt(0)")
    SV = SIDE_SV
    e("v_lshrrev_b32 v136, 4, v1")
    for r in list(range(SV, SV+5)) + list(range(144, 152)): e(f"v_mov_b32 v{r}, 0")
    e("s_mov_b32 s5, 0")
    e("s_mov_b32 s53, 0x7ff00000"); e("s_mov_b32 s54, s53"); e("s_mov_b32 s58, s53")
    e("s_cmp_ge_u32 s49, 320"); e(f"s_cbranch_scc1 {nm}_ss1")
    k.srd(88, 84, D*3*D*2)
    e(f"s_mul_i32 s5, s37, {32*3840}"); e("s_mul_i32 s32, s36, 80"); e("s_add_u32 s5, s5, s32")
    for par in range(2):
        e(f"v_add_u32 v137, {4*par}, v136"); e("v_lshlrev_b32 v137, 1, v137"); e("v_xor_b32 v137, v137, v140"); e("v_min_u32 v137, 14, v137")
        e("v_mul_u32_u24 v138, 52, v137"); e("v_lshrrev_b32 v138, 8, v138"); e("v_mul_u32_u24 v138, 1200, v138"); e("v_lshl_add_u32 v138, v137, 4, v138")
        e("v_mul_u32_u24 v137, 3840, v136"); e(f"v_add_u32 v{SV+par}, v138, v137")
    e("v_and_b32 v138, 1, v136"); e("v_lshl_add_u32 v138, v138, 2, v141"); e("v_lshlrev_b32 v138, 5, v138")
    e("v_lshl_add_u32 v137, v136, 3, v141"); e("v_lshlrev_b32 v137, 8, v137"); e("v_add_u32 v137, s35, v137")
    for F in range(8):
        if F < 6:
            e("v_lshlrev_b32 v139, 3, v142")
            if F: e(f"v_add_u32 v139, {40*F}, v139")
        elif F == 6: e("v_mul_u32_u24 v139, 40, v142"); e("v_add_u32 v139, 32, v139")
        else: e("v_and_b32 v139, 1, v142"); e("v_mul_u32_u24 v139, 40, v139"); e("v_add_u32 v139, 192, v139")
        e("v_xor_b32 v139, v139, v138"); e(f"v_add_u32 v{144+F}, v139, v137")
    e("s_mul_i32 s53, s36, 163840"); e("s_lshl_b32 s54, s37, 13"); e("s_add_u32 s53, s53, s54"); e(f"s_add_u32 s53, s53, {WB_I}"); e("s_add_u32 s54, s53, 4096"); e("s_mov_b32 s58, s54")
    e(f"s_branch {nm}_ss2")
    k.label(f"{nm}_ss1")
    e("s_cmp_ge_u32 s36, 24"); e("s_cselect_b32 s32, s86, s88"); e("s_cselect_b32 s33, s87, s89")
    k.srd(88, 32, D*D*2)
    e("s_cmp_ge_u32 s49, 640"); e(f"s_cbranch_scc1 {nm}_ss2")
    e("s_and_b32 s32, s36, 7"); e("s_mul_i32 s32, s32, 160")
    e("s_mul_i32 s5, s37, 40"); e("s_sub_u32 s34, s37, 16"); e("s_mul_i32 s34, s34, 160"); e("s_add_u32 s34, s34, 16")
    e("s_cmp_lt_u32 s37, 16"); e("s_cselect_b32 s5, s5, s34"); e("s_cselect_b32 s33, 4, 2"); e("s_cselect_b32 s34, 4, 16")
    e("s_mul_i32 s5, s5, 1280"); e("s_add_u32 s5, s5, s32")
    for i in range(5):
        e(f"v_add_u32 v137, {64*i}, v1"); e("v_mul_u32_u24 v138, 6554, v137"); e("v_lshrrev_b32 v138, 16, v138")
        e("v_lshrrev_b32 v139, s33, v138"); e("v_mul_u32_u24 v139, s34, v139"); e("v_mul_u32_u24 v139, 1280, v139")
        e("v_mul_u32_u24 v138, 1120, v138"); e("v_add_u32 v139, v139, v138"); e(f"v_lshl_add_u32 v{SV+i}, v137, 4, v139")
    e("v_lshlrev_b32 v137, 2, v136"); e("s_mov_b32 s32, 2560")
    e("s_cmp_ge_u32 s36, 24"); e(f"s_cbranch_scc1 {nm}_sf3"); e("s_cmp_ge_u32 s37, 16"); e(f"s_cbranch_scc1 {nm}_sf3")
    e("v_lshrrev_b32 v137, 1, v136"); e("v_lshlrev_b32 v137, 4, v137"); e("v_and_b32 v138, 1, v136"); e("v_lshl_add_u32 v137, v138, 2, v137"); e("s_mov_b32 s32, 1280")
    k.label(f"{nm}_sf3")
    e("v_add_u32 v137, v137, v141"); e("v_mul_u32_u24 v137, 160, v137"); e("v_add_u32 v137, s35, v137")
    e("s_and_b32 s33, s36, 1"); e("s_lshl_b32 s34, s33, 5"); e("s_xor_b32 s33, s33, 1"); e("s_lshl_b32 s33, s33, 7")
    e("v_lshl_add_u32 v144, v142, 4, v137"); e("v_add_u32 v144, s34, v144"); e("v_add_u32 v145, s32, v144")
    e("v_lshl_add_u32 v146, v142, 3, v137"); e("v_add_u32 v146, s33, v146"); e("v_add_u32 v147, s32, v146")
    e("s_cmp_ge_u32 s36, 24"); e(f"s_cselect_b32 s53, {WOB_I-WOA_I}, 0"); e("s_and_b32 s54, s36, 7"); e("s_mul_i32 s54, s54, 102400"); e("s_add_u32 s53, s53, s54")
    e("s_mul_i32 s54, s37, 5120"); e("s_add_u32 s53, s53, s54"); e(f"s_add_u32 s53, s53, {WOA_I}"); e("s_add_u32 s54, s53, 4096")
    k.label(f"{nm}_ss2")
    e("s_lshl_b32 s38, s49, 9"); e(f"s_add_u32 s38, s38, {U_B}"); e("s_cmp_ge_u32 s49, 320"); e("s_cselect_b32 s38, 0x7ff00000, s38")
    e("v_lshlrev_b32 v143, 2, v1")
    e("s_cmp_lt_u32 s49, 640"); e("s_cselect_b32 s4, 2, 0"); e("s_cmp_lt_u32 s49, 320"); e("s_cselect_b32 s4, 1, s4")
    e("s_and_b32 s55, s49, 15"); e("s_lshl_b32 s55, s55, 8"); e(f"s_add_u32 s55, s55, {CS}")

def ph_attn(k):
    e = k.e; nm = k.name
    KA, KT, VA = 4, 5, 6
    Q = [8, 14]; KF = [24, 32]; VF = [40, 48]; SS = [56, 72]; P = 88; O = [96, 112]; PF = 208
    SCR = 128000; TOP = 128000
    ids_rt(k)
    e("v_and_b32 v3, 31, v1"); e("v_lshrrev_b32 v7, 5, v1")
    e("v_lshlrev_b32 v22, 4, v1"); e("v_lshlrev_b32 v23, 3, v3")
    e("s_mul_i32 s19, s16, 163840")
    e("s_lshr_b32 s41, s18, 2")
    e("s_lshl_b32 s23, s17, 3"); e("s_lshl_b32 s22, s39, 1"); e("s_add_u32 s23, s23, s22")
    e("s_add_u32 s23, s23, s41")
    e("s_lshr_b32 s22, s19, 1"); e(f"s_add_u32 s22, s22, {QIMG}")
    e("s_mul_i32 s24, s23, 1280"); e("s_add_u32 s24, s24, s22"); e("s_xor_b32 s40, s23, 1"); e("s_mul_i32 s40, s40, 1280"); e("s_add_u32 s40, s40, s22")
    e("s_mul_i32 s42, s41, 2560"); e(f"s_add_u32 s42, s42, {TOP}")
    e("s_lshl_b32 s25, s18, 10")
    e(f"s_add_u32 s26, s19, {KVIMG}")
    rnd = [0]
    def dma():
        i = rnd[0]; rnd[0] += 1
        if i == 4:
            e("s_cmp_lt_u32 s18, 3"); e("s_cselect_b32 s27, 163840, 0"); e("s_add_u32 s27, s27, s25"); e("s_sub_u32 m0, s27, 3072")
        else: e(f"s_add_u32 m0, s25, {(TOP + 8192*i) if i < 4 else 8192*i - 35840}")
        e("s_add_u32 s27, s26, m0")
        k.vmop(f"buffer_load_dwordx4 v22, s[8:11], s27 offen {SC} lds", f"i{i}")
    e(f"v_add_u32 v{KA}, s42, v22")
    e(f"v_add_u32 v{KT}, s42, v23"); e(f"v_add_u32 v{KT}, 1024, v{KT}")
    e("v_mul_u32_u24 v21, 20, v7"); e("v_add_u32 v21, v21, v3"); e("v_lshlrev_b32 v21, 4, v21")
    e("v_add_u32 v21, 1280, v21"); e(f"v_add_u32 v{VA}, s42, v21")
    e("s_mov_b32 s28, 0x000fffff"); e("s_mov_b32 s29, 0x000fffff")
    e("v_cmp_eq_u32 vcc, 20, v3"); e("v_mov_b32 v20, 0x3f803f80"); e("s_nop 0")
    e("v_cndmask_b32 v20, 0, v20, vcc")
    for r in range(16): e(f"v_mov_b32 v{VF[0]+r}, v20")
    for r in range(32): e(f"v_mov_b32 v{O[0]+r}, 0")
    for r in range(4): e(f"v_mov_b32 v{P+4+r}, 0")
    e("v_subrev_u32 v30, 1, v7")
    e("s_lshl_b32 s43, s21, 2"); e("s_add_u32 s43, s43, s39"); e("s_mul_i32 s43, s43, 27648"); e(f"s_add_u32 s43, s43, {WOA_I}")
    e("s_mul_i32 s32, s23, 40960"); e(f"s_add_u32 s32, s32, {OT}")
    e("s_lshr_b32 s51, s16, 1"); e("s_lshl_b32 s51, s51, 10"); e("s_and_b32 s34, s16, 1"); e("s_lshl_b32 s34, s34, 9")
    e("s_add_u32 s51, s51, s34"); e("s_add_u32 s51, s51, s32")
    e("s_lshr_b32 s52, s16, 3"); e("s_add_u32 s52, s52, 16"); e("s_lshl_b32 s52, s52, 10"); e("s_add_u32 s52, s52, s32")
    e("s_and_b32 s35, s16, 3"); e("s_lshl_b32 s35, s35, 8"); e("s_add_u32 s52, s52, s35")
    e("s_bfe_u32 s35, s16, 0x10002"); e("s_lshl_b32 s35, s35, 3"); e("s_add_u32 s52, s52, s35")
    e("v_lshrrev_b32 v38, 4, v3"); e("v_mul_u32_u24 v38, 20480, v38"); e("v_and_b32 v39, 15, v3")
    e("v_lshl_add_u32 v38, v39, 4, v38"); e("v_lshl_add_u32 v39, v7, 8, v38")
    e("s_mul_i32 s32, s18, 3072"); e("s_xor_b32 s33, s18, 4"); e("s_mul_i32 s33, s33, 3072")
    e(f"v_add_u32 v132, {SCR}, v22"); e("v_add_u32 v133, s33, v132"); e("v_add_u32 v132, s32, v132")
    def c0(nl):
        e("s_lshl_b32 s48, s17, 8"); e(f"s_add_u32 s48, s48, {C0}"); e(f"v_mov_b32 v{PV_+2}, 16")
        e("s_mul_i32 s32, s16, 20"); e("s_add_u32 s33, s32, 19"); e("s_lshr_b32 s32, s32, 7"); e("s_lshr_b32 s33, s33, 7"); e("s_sub_u32 s33, s33, s32")
        e(f"v_lshrrev_b32 v{PV_+1}, 1, v1"); e(f"v_mul_u32_u24 v{PV_+1}, 5, v{PV_+1}"); e(f"v_and_b32 v{PV_}, s33, v1"); e(f"v_add3_u32 v{PV_+1}, v{PV_+1}, v{PV_}, s32")
        e(f"v_lshlrev_b32 v{PV_+1}, 11, v{PV_+1}"); e("s_mov_b64 s[56:57], 63")
    side_setup(k)
    e("v_lshlrev_b32 v134, 11, v1"); e("s_lshl_b32 s32, s17, 8"); e(f"s_add_u32 s32, s32, {C0}"); e("v_add_u32 v134, s32, v134")
    e("v_lshlrev_b32 v135, 8, v1"); e(f"v_add_u32 v135, {CS - 4096}, v135"); e("v_cmp_gt_u32 vcc, 16, v1")
    e("v_cndmask_b32 v134, v135, v134, vcc"); e("v_cndmask_b32 v131, 40, 16, vcc"); e("v_mov_b32 v135, 64")
    wait_go(k, "t", -1, lambda: c0(6))
    k.stamp(2)
    dma()
    for x in range(2):
        k.vmop(f"buffer_load_dwordx4 {vr(Q[x],4)}, v22, s[8:11], s{(24,40)[x]} offen {SC}", "q")
        k.vmop(f"buffer_load_dwordx2 {vr(Q[x]+4,2)}, v23, s[8:11], s{(24,40)[x]} offen offset:1024 {SC}", "q")
    for _ in range(3): dma()
    k.waitvm("q")
    for x in range(2):
        e(f"v_and_b32 v{Q[x]+4}, v{Q[x]+4}, v30"); e(f"v_and_b32 v{Q[x]+5}, v{Q[x]+5}, v30")
    k.waitvm("i1"); e("s_barrier"); k.stamp(3)
    def rdK(buf, off):
        off *= 2
        e(f"ds_read_b128 {vr(KF[buf],4)}, v{KA} offset:{off}")
        e(f"ds_read_b64 {vr(KF[buf]+4,2)}, v{KT} offset:{off}")
    def rdV(buf, off):
        off *= 2
        e("s_mov_b64 exec, s[28:29]")
        e(f"ds_read_b128 {vr(VF[buf],4)}, v{VA} offset:{off}")
        e(f"ds_read_b128 {vr(VF[buf]+4,4)}, v{VA} offset:{off+640}")
        e("s_mov_b64 exec, -1")
    def qkm(x, kb): e(f"v_mfma_f32_32x32x16_bf16 {vr(SS[x],16)}, {vr(KF[kb],4)}, {vr(Q[x],4)}, 0")
    def qkt(x, kb): e(f"v_mfma_f32_32x32x8_bf16 {vr(SS[x],16)}, {vr(KF[kb]+4,2)}, {vr(Q[x]+4,2)}, {vr(SS[x],16)}")
    def pv(x, vb, u): e(f"v_mfma_f32_32x32x16_bf16 {vr(O[x],16)}, {vr(VF[vb]+4*u,4)}, {vr(P+4*u,4)}, {vr(O[x],16)}")
    def base(t):
        return 0 if t < 7 else 7 if t < 19 else 19 if t < 31 else 31
    def bump(regs, t):
        if t == 7:
            for r in regs: e(f"v_subrev_u32 v{r}, {TOP}, v{r}")
        elif t in (19, 31):
            for r in regs: e(f"v_add_u32 v{r}, {12*5120}, v{r}")
    def unit(x, t, extra=()):
        p = t % 2; s = SS[x]
        ex = lambda i: e(f"v_exp_f32 v{s+i}, v{s+i}")
        cv = lambda i: e(f"v_cvt_pk_bf16_f32 v{P+i}, v{s+2*i}, v{s+2*i+1}")
        kb = p if x == 0 else 1-p
        if x == 1: e("s_waitcnt lgkmcnt(2)" if t < 31 else "s_waitcnt lgkmcnt(0)")
        if not (x == 1 and t == 31): qkm(1-x, kb)
        if x == 1 and t + 2 < 32:
            bump((KA, KT), t+2); rdK(p, (t+2-base(t+2))*2560)
        for i in range(0, 4): ex(i)
        if x == 0:
            pv(1, 1-p, 1)
            if t + 1 < 32:
                bump((VA,), t+1); rdV(1-p, (t+1-base(t+1))*2560)
        else:
            pv(0, p, 1)
        for f_ in extra: f_()
        for i in range(4, 8): ex(i)
        for i in range(0, 4): cv(i)
        if not (x == 1 and t == 31): qkt(1-x, kb)
        for i in range(8, 12): ex(i)
        if x == 0: e(f"s_waitcnt lgkmcnt({4 if t < 31 else 0})")
        pv(x, p, 0)
        for i in range(12, 16): ex(i)
        for i in range(4, 8): cv(i)
    rdK(0, 0); rdV(0, 0); rdK(1, 2560)
    e("s_waitcnt lgkmcnt(4)")
    qkm(0, 0); e("s_nop 10"); qkt(0, 0); e("s_nop 10")
    SYN = {1: 3, 4: 7, 7: 19}; SW = ENV('SW', '27')
    T_SI, T_SR, T_SA, T_PF, T_LC = 8, ENV('TSR', '15'), 26, 11, 26
    hk = [0]
    def cond(test, fn):
        def g():
            hk[0] += 1; lab = f"{nm}_hk{hk[0]}"
            e(test); e(f"s_cbranch_scc0 {lab}"); fn(); k.label(lab)
        return g
    def prio1(): e("s_setprio 1")
    def pref():
        for _ in range(2): e(f"buffer_load_dwordx4 {vr(PF,4)}, v22, s[12:15], s43 offen {SC}"); e("s_add_u32 s43, s43, 1024")
    def side_issue():
        e("s_cmp_eq_u32 s4, 1"); e(f"s_cbranch_scc0 {nm}_i1")
        for i in range(8):
            e(f"s_add_u32 m0, s35, {1024*i}"); e(f"s_add_u32 s27, s5, {4*3840*i}")
            e(f"buffer_load_dwordx4 v{SIDE_SV+(i>>1)%2}, s[88:91], s27 offen nt lds")
        e(f"s_branch {nm}_i2")
        k.label(f"{nm}_i1")
        for i in range(5):
            e(f"s_add_u32 m0, s35, {1024*i}"); e("s_nop 0")
            e(f"buffer_load_dwordx4 v{SIDE_SV+i}, s[88:91], s5 offen nt lds")
        k.label(f"{nm}_i2")
    def side_read():
        e("s_waitcnt vmcnt(0)")
        e("s_cmp_eq_u32 s4, 1"); e(f"s_cbranch_scc0 {nm}_r1")
        for F in range(8):
            for t in range(2): e(f"ds_read_b64_tr_b16 {vr(SIDE_D+4*F+2*t,2)}, v{144+F} offset:{1024*t}")
        e(f"s_branch {nm}_r2")
        k.label(f"{nm}_r1")
        for nf in range(5):
            for t in range(2): e(f"ds_read_b64_tr_b16 {vr(SIDE_D+4*nf+2*t,2)}, v{144+t if nf < 4 else 146+t} offset:{64*(nf//2)+8*(nf%2) if nf < 4 else 0}")
        k.label(f"{nm}_r2")
    def side_done():
        e("s_waitcnt lgkmcnt(0)"); e(f"v_mov_b32 v{PV_+3}, {LW-8}"); e(f"v_mov_b32 v{PV_}, 1"); e("s_mov_b64 exec, 1")
        e(f"ds_add_u32 v{PV_+3}, v{PV_}"); e("s_mov_b64 exec, -1")
    UP = lambda F: SIDE_U + 4*F if F < 4 else 212 + 4*(F-4)
    def side_sum():
        for r in range(4): e(f"v_mov_b32 v{228+r}, 0x3f803f80")
        for F in range(8): e(f"v_mfma_f32_16x16x32_bf16 {vr(UP(F),4)}, v[228:231], {vr(SIDE_D+4*F,4)}, 0")
    def side_sum2():
        for q in range(2):
            for g in range(1, 4):
                e(f"v_cmp_eq_u32 vcc, {g}, v136"); e(f"v_cndmask_b32 v{UP(4*q)}, v{UP(4*q)}, v{UP(4*q+g)}, vcc")
            e(f"buffer_store_dword v{UP(4*q)}, v143, s[12:15], s38 offen offset:{256*q} {SC}")
    def side_store(F):
        return lambda: e(f"buffer_store_dwordx4 {vr(SIDE_D+4*F,4)}, v22, s[12:15], s{53 if F < 4 else 54 if F == 4 else 58} offen offset:{1024*(F%4)} {SC}")
    def side_arrive():
        e(f"v_mov_b32 v{PV_+1}, 0"); e(f"v_mov_b32 v{PV_}, 1"); e("s_waitcnt vmcnt(0)"); e("s_mov_b64 exec, 1")
        e(f"buffer_atomic_add v{PV_}, v{PV_+1}, s[12:15], s55 offen {SC}"); e("s_mov_b64 exec, -1")
    def late():
        e("s_mov_b32 exec_lo, 0xffff7fff"); e("s_mov_b32 exec_hi, 0"); e(f"buffer_load_dword v135, v134, s[12:15], 0 offen {SC}"); e("s_mov_b64 exec, -1")
    def init_words(): lw_init(k); e(f"v_mov_b32 v{PV_+3}, {LW-8}"); e(f"ds_write_b32 v{PV_+3}, v{PV_}")
    side = "s_cmp_lg_u32 s4, 0"
    for t in range(32):
        if t in SYN: k.waitvm(f"i{SYN[t]}"); e("s_barrier")
        x0, x1 = [], []
        if rnd[0] < 20: x0 += [dma, dma]; x1 += [dma, dma]
        if t == 6: x1.append(lambda: None)
        if t == 7: x0.append(cond("s_cmp_eq_u32 s18, 4", init_words))
        if t == 8: e("s_waitcnt lgkmcnt(2)"); e("s_barrier"); cond("s_cmp_ge_u32 s18, 4", prio1)()
        if t == T_SI: x1.append(cond(side, side_issue))
        if t == T_SR: x1.append(cond(side, side_read))
        if t == T_SR + 1: x0.append(cond("s_bitcmp1_b32 0x70, s18", side_done)); x1.append(cond("s_cmp_eq_u32 s4, 1", side_sum))
        if t == T_SR + 2: x0.append(cond("s_cmp_eq_u32 s4, 1", side_sum2))
        if T_SR + 1 <= t < T_SR + 9: x1.append(cond(side, side_store(t - T_SR - 1)))
        if t == T_SA: x0.append(cond(side, side_arrive))
        if T_PF <= t < T_PF + 14 and ENV('PFW', '1'): x0.append(cond("s_cmp_lt_u32 s18, 4", pref))
        if t == T_LC: x1.append(cond("s_cmp_eq_u32 s18, 0", late))
        if t == SW: x1.append(lambda: e("s_setprio 0"))
        if t == 31: x0.append(lambda: (e(f"v_mov_b32 v{PV_+3}, {LW-8}"), e(f"ds_read_b32 v{PV_+2}, v{PV_+3}")))
        unit(0, t, x0); unit(1, t, x1)
    pv(1, 1, 1); k.stamp(4)
    e("s_mov_b32 s30, 0")
    e(f"s_mov_b32 s32, {fbits(2.0**-60)}"); e(f"s_mov_b32 s33, {fbits(2.0**100)}"); e(f"s_mov_b32 s34, {fbits(2.0**126)}")
    e(f"v_readfirstlane_b32 s36, v{PV_+2}"); e("s_cmp_lt_u32 s36, 3"); e(f"s_cbranch_scc1 {nm}_scr")
    k.label(f"{nm}_scrok")
    e("s_nop 4")
    for i in range(3): e(f"ds_write_b128 v132, {vr(O[1]+4*i,4)} offset:{1024*i}")
    e("s_waitcnt vmcnt(0)"); e("v_cmp_gt_u32 vcc, v131, v135"); e(f"s_cbranch_vccnz {nm}_late")
    k.label(f"{nm}_lok")
    e("s_waitcnt lgkmcnt(0)"); e("s_barrier")
    for i in (2, 0, 1): e(f"ds_read_b128 {vr(SS[0]+4*i,4)}, v133 offset:{1024*i}")
    OO = O[0]
    e("s_waitcnt lgkmcnt(2)")
    for r in range(8, 12): e(f"v_add_f32 v{OO+r}, v{OO+r}, v{SS[0]+r}")
    e("s_waitcnt lgkmcnt(0)")
    for r in range(8): e(f"v_add_f32 v{OO+r}, v{OO+r}, v{SS[0]+r}")
    k.label(f"{nm}_chk")
    e(f"v_mov_b32 v30, v{OO+8}"); e(f"v_mov_b32 v31, v{OO+8}")
    e(f"v_max3_f32 v28, abs(v{OO}), abs(v{OO+1}), abs(v{OO+2})")
    e("v_permlane32_swap_b32 v30, v31")
    for r in range(3, 11, 2): e(f"v_max3_f32 v28, abs(v{OO+r}), abs(v{OO+r+1}), v28")
    e(f"v_max_f32 v28, abs(v{OO+11}), v28")
    e("v_cmp_le_f32 vcc, s32, v31"); e("v_cmp_ge_f32 s[36:37], s33, v31"); e("v_cmp_gt_f32 s[40:41], s34, v28")
    e("v_rcp_f32 v31, v31")
    e("s_and_b64 s[36:37], s[36:37], vcc"); e("s_and_b64 s[36:37], s[36:37], s[40:41]")
    e("s_cmp_eq_u64 s[36:37], -1"); e(f"s_cbranch_scc0 {nm}_slow")
    def slowpath():
        k.label(f"{nm}_late")
        e("s_mov_b32 s49, 0")
        k.label(f"{nm}_late1")
        e("s_sleep 8"); late(); e("s_add_u32 s49, s49, 1"); e("s_waitcnt vmcnt(0)")
        e("v_cmp_gt_u32 vcc, v131, v135"); e("s_cmp_ge_u32 s49, 0x20000"); e(f"s_cbranch_scc1 {nm}_lok"); e(f"s_cbranch_vccnz {nm}_late1")
        e(f"s_branch {nm}_lok")
        k.label(f"{nm}_scr")
        e("s_mov_b32 s49, 0")
        k.label(f"{nm}_scr1")
        e(f"ds_read_b32 v{PV_+2}, v{PV_+3}"); e("s_add_u32 s49, s49, 1"); e("s_waitcnt lgkmcnt(0)"); e(f"v_readfirstlane_b32 s36, v{PV_+2}")
        e("s_cmp_ge_u32 s49, 0x400000"); e(f"s_cbranch_scc1 {nm}_scrok"); e("s_cmp_lt_u32 s36, 3"); e(f"s_cbranch_scc1 {nm}_scr1")
        e(f"s_branch {nm}_scrok")
        k.label(f"{nm}_slow")
        e("s_cmp_eq_u32 s30, 0"); e(f"s_cbranch_scc0 {nm}_fin")
        e("s_mov_b32 s30, 1")
        e("s_waitcnt vmcnt(0)")
        NM = O[1]
        e("v_mov_b32 v32, 0xff800000")
        def slowqk(c):
            e(f"buffer_load_dwordx4 {vr(KF[0],4)}, v22, s[8:11], s27 offen {SC}")
            e(f"buffer_load_dwordx2 {vr(KF[0]+4,2)}, v23, s[8:11], s27 offen offset:1024 {SC}")
            e("s_waitcnt vmcnt(0)")
            e(f"v_mfma_f32_32x32x16_bf16 {vr(SS[0],16)}, {vr(KF[0],4)}, {vr(Q[0],4)}, {c}"); e("s_nop 10")
            e(f"v_mfma_f32_32x32x8_bf16 {vr(SS[0],16)}, {vr(KF[0]+4,2)}, {vr(Q[0]+4,2)}, {vr(SS[0],16)}"); e("s_nop 12")
        e(f"s_add_u32 s27, s19, {KVIMG}"); e("s_mov_b32 s31, 0")
        k.label(f"{nm}_mx")
        slowqk("0")
        for r in range(0, 16, 2): e(f"v_max3_f32 v32, v{SS[0]+r}, v{SS[0]+r+1}, v32")
        e("s_add_u32 s27, s27, 2560")
        e("s_add_u32 s31, s31, 1"); e("s_cmp_lt_u32 s31, 64"); e(f"s_cbranch_scc1 {nm}_mx")
        k.allred32("v_max_f32", 32, 33)
        e("v_xor_b32 v32, 0x80000000, v32")
        for r in range(16): e(f"v_mov_b32 v{NM+r}, v32")
        for r in range(16): e(f"v_mov_b32 v{OO+r}, 0")
        for r in range(8): e(f"v_mov_b32 v{VF[0]+r}, v20")
        e(f"s_add_u32 s27, s19, {KVIMG}"); e("s_mov_b32 s31, 0")
        k.label(f"{nm}_sl")
        e("s_mov_b64 exec, s[28:29]")
        e(f"buffer_load_dwordx4 {vr(VF[0],4)}, v21, s[8:11], s27 offen {SC}")
        e(f"buffer_load_dwordx4 {vr(VF[0]+4,4)}, v21, s[8:11], s27 offen offset:640 {SC}")
        e("s_mov_b64 exec, -1")
        slowqk(vr(NM,16))
        for i in range(16): e(f"v_exp_f32 v{SS[0]+i}, v{SS[0]+i}")
        e("s_nop 0")
        for i in range(8): e(f"v_cvt_pk_bf16_f32 v{P+i}, v{SS[0]+2*i}, v{SS[0]+2*i+1}")
        e("s_nop 1")
        pv(0, 0, 0); pv(0, 0, 1)
        e("s_add_u32 s27, s27, 2560")
        e("s_add_u32 s31, s31, 1"); e("s_cmp_lt_u32 s31, 64"); e(f"s_cbranch_scc1 {nm}_sl")
        e("s_nop 12"); e(f"s_branch {nm}_chk")
    k.tail = slowpath
    k.label(f"{nm}_fin")
    e("s_nop 0")
    for r in range(12): e(f"v_mul_f32 v{OO+r}, v{OO+r}, v31")
    for r in range(6): e(f"v_cvt_pk_bf16_f32 v{P+r}, v{OO+2*r}, v{OO+2*r+1}")
    e(f"buffer_store_dwordx4 {vr(P,4)}, v39, s[8:11], s51 offen {SC}")
    e("s_mov_b32 exec_hi, 0")
    e(f"buffer_store_dwordx2 {vr(P+4,2)}, v38, s[8:11], s52 offen {SC}")
    e("s_mov_b64 exec, -1")
    k.stamp(5)
    e("v_lshlrev_b32 v3, 4, v1")
    k.vm = []; k.lg = []

def proj_c(k, tag, src, xin, xout, stout, last, cnt_code, word, st0):
    final = False
    e = k.e
    ACC, RESID, A, BF = 24, 44, 76, 156
    NA0 = ENV('PA0', '8')
    ids_rt(k)
    e("s_lshl_b32 s19, s16, 2"); e("s_add_u32 s19, s19, s39")
    e("s_mul_i32 s24, s19, 20480")
    e("s_lshr_b32 s33, s17, 1"); e("s_mul_i32 s33, s33, 5120"); e("s_add_u32 s33, s33, s24")
    e("s_and_b32 s34, s17, 1"); e("s_mul_i32 s35, s34, 3072"); e("s_add_u32 s35, s35, s33")
    e("s_lshl_b32 s36, s34, 9"); e("s_add_u32 s36, s36, s33"); e("s_add_u32 s36, s36, 2048")
    e(f"s_add_u32 s37, s35, {xin}"); e(f"s_add_u32 s38, s36, {xin}")
    e("v_lshrrev_b32 v13, 5, v1"); e("v_lshlrev_b32 v13, 8, v13"); e("v_and_b32 v14, 15, v1"); e("v_lshl_add_u32 v13, v14, 4, v13")
    e("v_bfe_u32 v14, v1, 4, 1"); e("v_lshl_add_u32 v13, v14, 3, v13")
    k.vmop(f"buffer_load_dwordx4 {vr(RESID,4)}, v3, s[8:11], s37 offen {SC}", "r")
    k.vmop(f"buffer_load_dwordx4 {vr(RESID+4,4)}, v3, s[8:11], s37 offen offset:1024 {SC}", "r")
    k.vmop(f"buffer_load_dwordx2 {vr(RESID+8,2)}, v13, s[8:11], s38 offen {SC}", "r")
    e(f"s_add_u32 s24, s24, {src}")
    for i in range(1, 5): e(f"s_add_u32 s{24+i}, s24, {4096*i}")
    e("v_lshrrev_b32 v9, 4, v1"); e("v_add_u32 v12, 61440, v3")
    wait_go(k, tag, word, cnt_code)
    k.stamp(st0)
    def ldA(n): k.vmop(f"buffer_load_dwordx4 {vr(A+4*n,4)}, v3, s[8:11], s{24+n//4} offen offset:{(n%4)*1024} {SC}", f"a{n}")
    for n in range(NA0): ldA(n)
    k.waitvm("r")
    for i in range(10):
        e(f"v_lshlrev_b32 v{ACC+2*i}, 16, v{RESID+i}"); e(f"v_and_b32 v{ACC+2*i+1}, 0xffff0000, v{RESID+i}")
    def rd(n, nf):
        off = n*5120 + nf*1024; b = 3
        if n >= 12: off -= 61440; b = 12
        k.dsop(f"ds_read_b128 {vr(BF+20*(n%2)+4*nf,4)}, v{b} offset:{off}", f"b{n}_{nf}")
    e("s_barrier")
    for n in range(2):
        for nf in range(5): rd(n, nf)
    for n in range(20):
        k.waitvm(f"a{n}")
        if n == 0: k.stamp(st0+1)
        for nf in range(5):
            if nf in (0, 2, 4): k.waitlg(f"b{n}_{min(nf+1,4)}")
            if n == 12 and nf == 0 and not final: e("s_barrier")
            e(f"v_mfma_f32_16x16x32_bf16 {vr(ACC+4*nf,4)}, {vr(BF+20*(n%2)+4*nf,4)}, {vr(A+4*n,4)}, {vr(ACC+4*nf,4)}")
            if n + 2 < 20: rd(n+2, nf)
            if nf == 0 and n + NA0 < 20: ldA(n + NA0)
    e("s_barrier")
    if last:
        e("s_cmp_eq_u32 s3, 0"); e(f"s_cbranch_scc1 {k.name}_nf")
        e("v_and_b32 v16, 15, v1"); e("v_mul_u32_u24 v16, 1280, v16"); e("v_lshl_add_u32 v17, v9, 3, v16"); e("v_lshl_add_u32 v16, v9, 4, v16")
        e("s_mul_i32 s32, s19, 20480"); e("s_mul_i32 s31, s17, 160"); e("s_add_u32 s32, s32, s31")
        e("s_lshl_b32 s31, s34, 5"); e("s_add_u32 s33, s32, s31"); e("s_xor_b32 s31, s34, 1"); e("s_lshl_b32 s31, s31, 7"); e("s_add_u32 s32, s32, s31")
        FSC = os.environ.get("FSC", "")
        for i in range(10): e(f"v_cvt_pk_bf16_f32 v{RESID+i}, v{ACC+2*i}, v{ACC+2*i+1}")
        e(f"buffer_store_dwordx4 {vr(RESID,4)}, v16, s[60:63], s33 offen {FSC}")
        e(f"buffer_store_dwordx4 {vr(RESID+4,4)}, v16, s[60:63], s33 offen offset:64 {FSC}")
        e(f"buffer_store_dwordx2 {vr(RESID+8,2)}, v17, s[60:63], s32 offen {FSC}")
        k.stamp(st0+2)
        if STAMP: e("s_waitcnt vmcnt(0)")
        k.dump(15, "2")
        e("s_endpgm")
        k.label(f"{k.name}_nf")
    if True:
        e(f"s_add_u32 s37, s35, {xout}"); e(f"s_add_u32 s38, s36, {xout}")
        e("s_lshl_b32 s32, s19, 10"); e("s_lshl_b32 s33, s17, 7"); e("s_add_u32 s32, s32, s33"); e(f"s_add_u32 s32, s32, {stout}")
        e("v_lshlrev_b32 v16, 3, v1")
        for i in range(10): e(f"v_cvt_pk_bf16_f32 v{RESID+i}, v{ACC+2*i}, v{ACC+2*i+1}")
        e(f"buffer_store_dwordx4 {vr(RESID,4)}, v3, s[8:11], s37 offen {SC}")
        e(f"buffer_store_dwordx4 {vr(RESID+4,4)}, v3, s[8:11], s37 offen offset:1024 {SC}")
        e(f"buffer_store_dwordx2 {vr(RESID+8,2)}, v13, s[8:11], s38 offen {SC}")
        e(f"v_add_f32 v18, v{ACC}, v{ACC+1}"); e(f"v_mul_f32 v19, v{ACC}, v{ACC}"); e(f"v_add_f32 v20, v{ACC+2}, v{ACC+3}"); e(f"v_mul_f32 v21, v{ACC+1}, v{ACC+1}")
        e(f"v_fmac_f32 v19, v{ACC+2}, v{ACC+2}"); e(f"v_fmac_f32 v21, v{ACC+3}, v{ACC+3}")
        for i in range(4, 20, 2):
            e(f"v_add_f32 v18, v18, v{ACC+i}"); e(f"v_fmac_f32 v19, v{ACC+i}, v{ACC+i}")
            e(f"v_add_f32 v20, v20, v{ACC+i+1}"); e(f"v_fmac_f32 v21, v{ACC+i+1}, v{ACC+i+1}")
        e("v_add_f32 v18, v18, v20"); e("v_add_f32 v19, v19, v21")
        for sw in ("v_permlane16_swap_b32", "v_permlane32_swap_b32"):
            e("v_mov_b32 v20, v18"); e("v_mov_b32 v21, v19"); e("s_nop 0")
            e(f"{sw} v18, v20"); e(f"{sw} v19, v21"); e("s_nop 0")
            e("v_add_f32 v18, v18, v20"); e("v_add_f32 v19, v19, v21")
        e("s_mov_b64 exec, 0xffff")
        e(f"buffer_store_dwordx2 v[18:19], v16, s[8:11], s32 offen {SC}")
    k.stamp(st0+2)

def proj_l(k, wimg, nxt, src, sig=None, done=0, last=False):
    e = k.e
    if nxt is not None:
        ids_mt(k)
        e("s_min_u32 s17, s17, 14" if nxt == WA_I else "s_nop 0")
        e("s_mul_i32 s58, s17, 163840"); e("s_add_u32 s58, s58, s45"); e(f"s_add_u32 s58, s58, {nxt}")
    ids_rt(k)
    e("s_mul_i32 s50, s17, 102400"); e("s_add_u32 s50, s50, s45"); e(f"s_add_u32 s50, s50, {wimg}")
    e("s_mul_i32 s51, s16, 81920"); e("s_lshl_b32 s52, s17, 2"); e("s_add_u32 s52, s52, s39"); e("s_mul_i32 s52, s52, 2560"); e("s_add_u32 s51, s51, s52"); e(f"s_add_u32 s51, s51, {src}")
    e("v_min_u32 v21, 39, v1"); e("v_lshlrev_b32 v21, 6, v21")
    w = Wdma(k, 25, 50, "o"); k.vm = []
    T1, T2 = ENV('T1', '0'), ENV('T2', '4')
    if sig:
        signal(k, "s1l", 0, 8, sig)
        ub_prep(k, 0)
    w.rng(done, 25, T1 if sig else 0)
    w2 = Wdma(k, 40, 58)
    if last:
        e("s_cmp_eq_u32 s3, 0"); e(f"s_cbranch_scc1 {k.name}_nl")
        e("s_waitcnt vmcnt(0)"); e("s_barrier"); e("buffer_load_dword v20, v21, s[8:11], s51 offen"); e("s_endpgm")
        k.label(f"{k.name}_nl")
    if sig:
        w2.rng(25, 31, T1)
        e(f"v_mov_b32 v{PV_+3}, {LW}"); e("s_mov_b32 s49, 0")
        k.label(f"{k.name}_a8")
        e(f"ds_read_b32 v{PV_}, v{PV_+3}"); e("s_add_u32 s49, s49, 1"); e("s_waitcnt lgkmcnt(0)"); e(f"v_readfirstlane_b32 s44, v{PV_}")
        e("s_cmp_ge_u32 s49, 0x400000"); e("s_cselect_b32 s44, 8, s44"); e("s_cmp_lt_u32 s44, 8"); e(f"s_cbranch_scc1 {k.name}_a8")
    if nxt is not None: w2.rng(31 if sig else 32, 39, T1 if sig else 0)
    if sig: ub_prep(k, 1)
    k.waitvm("o24")
    e("s_barrier")
    if ENV('ATOUCH', '1'):
        k.vmop("buffer_load_dword v20, v21, s[8:11], s51 offen")
    if nxt is not None:
        if not sig: w2.rng(25, 32)
        e("s_barrier")
        w2.rng(0, 15)
        e("s_barrier")
        k.waitvm("w14")
        w2.rng(15, 25, T2)
    return w2

def stats16(k, s, rstd, mop, mask):
    e = k.e
    e(f"v_add_f32 v{s}, v{s}, v{s+2}"); e(f"v_add_f32 v{s+1}, v{s+1}, v{s+3}")
    k.allred16("v_add_f32", s, s+2); k.allred16("v_add_f32", s+1, s+3)
    k.allred32("v_add_f32", s, s+2); k.allred32("v_add_f32", s+1, s+3)
    stats_finish(k, s, s+1, s+2, rstd, s+3)
    split3(k, s+2, mop, 17, 'm', mask)
def usum(k, u, dst, t=17):
    e = k.e
    e(f"v_add_f32 v{u}, v{u}, v{u+1}"); e(f"v_add_f32 v{u+2}, v{u+2}, v{u+3}"); e(f"v_add_f32 v{u}, v{u}, v{u+2}")
    split3(k, u, dst, t, 'u')
def scale_pack(k, a, sc, dst):
    for r in range(4): k.e(f"v_mul_f32 v{a+r}, v{a+r}, v{sc(r)}")
    for r in range(2): k.e(f"v_cvt_pk_bf16_f32 v{dst+r}, v{a+2*r}, v{a+2*r+1}")
EX = 102400
UOFF = lambda F: (F//4)*8192 + 7168 + (F%4)*256 + 128
TOKF = (0, 1, 2, 3, 6); FEAF = (4, 5, 7)

def ub_prep(k, part):
    e = k.e
    if part: return ub_fin(k)
    e("v_and_b32 v5, 15, v1"); e("v_lshrrev_b32 v6, 4, v1"); e("s_lshr_b32 s30, s21, 1")
    e("v_mul_u32_u24 v12, 2560, v6"); e("v_lshl_add_u32 v12, v5, 2, v12")
    e("s_mul_i32 s30, s30, 10240"); e("s_lshl_b32 s31, s39, 7"); e("s_add_u32 s30, s30, s31"); e(f"s_add_u32 s30, s30, {U_B}")
    for q in range(2):
        for j_ in range(5): k.vmop(f"buffer_load_dword v{64+5*q+j_}, v12, s[12:15], s30 offen offset:{512*j_+64*q}", "up")
    e("s_lshr_b32 s30, s39, 1"); e("s_lshl_b32 s30, s30, 13"); e("s_and_b32 s31, s39, 1"); e("s_lshl_b32 s31, s31, 9"); e("s_add_u32 s30, s30, s31")
    e("v_lshlrev_b32 v51, 3, v5"); e("v_add_u32 v46, s30, v51")
def ub_fin(k):
    e = k.e
    k.waitvm("up")
    for q in range(2):
        u = 64+5*q
        e(f"v_add_f32 v{u}, v{u}, v{u+1}"); e(f"v_add_f32 v{u+2}, v{u+2}, v{u+3}"); e(f"v_add_f32 v{u}, v{u}, v{u+4}"); e(f"v_add_f32 v{u}, v{u}, v{u+2}")
        k.allred16("v_add_f32", u, u+1); k.allred32("v_add_f32", u, u+1)
        split3(k, u, 28+2*q, 17, 'u')

def atouch_pre(k, xin):
    e = k.e
    e("s_mul_i32 s51, s16, 163840"); e("s_lshl_b32 s52, s17, 2"); e("s_add_u32 s52, s52, s39"); e("s_mul_i32 s52, s52, 2560"); e("s_add_u32 s51, s51, s52"); e(f"s_add_u32 s51, s51, {xin}")
    e("v_min_u32 v21, 39, v1"); e("v_lshlrev_b32 v21, 6, v21")

def qkvb_pre(k):
    e = k.e
    ids_mt(k)
    e("v_and_b32 v5, 15, v1"); e("v_lshrrev_b32 v6, 4, v1")
    e("s_lshl_b32 s22, s16, 3"); e("s_lshl_b32 s19, s39, 1"); e("s_add_u32 s19, s19, s22")
    e("v_lshlrev_b32 v11, 3, v5"); e("v_lshl_add_u32 v11, v6, 8, v11")
    e("v_cmp_eq_u32 vcc, 0, v6"); e("v_lshlrev_b32 v10, 4, v6"); e("s_nop 0"); e("v_cndmask_b32 v4, 0, -1, vcc")

def qkvb_c(k, xin, stin, st0):
    e = k.e; nm = k.name
    DA = 5
    ACC, BF, AR, RSV = 64, 160, 192, 228
    acc = lambda b, F: ACC + 32*b + 4*F
    qkvb_pre(k)
    e("s_lshl_b32 s28, s19, 10"); e(f"s_add_u32 s28, s28, {stin}")
    e("s_mul_i32 s25, s19, 20480"); e(f"s_add_u32 s25, s25, {xin}"); e("s_add_u32 s26, s25, 20480")
    e("v_add_u32 v41, 65536, v3"); e("v_add_u32 v42, 131072, v3")
    def c2():
        e("s_lshl_b32 s48, s16, 9"); e(f"s_add_u32 s48, s48, {C2}")
        e(f"v_lshlrev_b32 v{PV_+1}, 8, v1"); e(f"v_lshlrev_b32 v{PV_+2}, 3, v1"); e(f"v_sub_u32 v{PV_+2}, 16, v{PV_+2}")
        e("s_cmp_eq_u32 s16, 0"); e("s_cselect_b64 s[56:57], 1, 3")
    wait_go(k, "p3", 1, c2)
    k.stamp(st0)
    def ldA(ks):
        for b in range(2):
            if ks % 4 == 0 and ks > 0: e(f"s_add_u32 s{25+b}, s{25+b}, 4096")
            k.vmop(f"buffer_load_dwordx4 {vr(AR+8*(ks%DA)+4*b,4)}, v3, s[8:11], s{25+b} offen offset:{(ks%4)*1024} {SC}", f"a{ks}")
    ldA(0)
    for b in range(2):
        for q in range(2): k.vmop(f"buffer_load_dwordx2 {vr(24+4*b+2*q,2)}, v11, s[8:11], s28 offen offset:{1024*b+128*q} {SC}", "st")
    for ks in range(1, DA-1): ldA(ks)
    MC, MP, MP1 = 64, 68, 72
    NEG = fbits(-1e30)
    def prolog():
        k.waitvm("st")
        for b in (1, 2): stats16(k, 20+4*b, 48+b, 52+2*b, 4)
        for b in (1, 2):
            for r in range(4):
                e(f"v_add_u32 v18, {4*r}, v10")
                k.dsop(f"ds_bpermute_b32 v{RSV+4*b+r}, v18, v{48+b}", "rs")
        e("v_lshlrev_b32 v43, 3, v5")
        e("v_lshlrev_b32 v17, 2, v6"); e("v_sub_u32 v17, v5, v17")
        e(f"v_mov_b32 v19, {NEG}")
        for r in range(4):
            e(f"v_subrev_u32 v18, {r}, v17"); e("v_and_b32 v16, 0x80000001, v18")
            e("v_cmp_eq_u32 vcc, 0, v16"); e(f"v_cndmask_b32 v{MC+r}, v19, 0, vcc")
            e("v_cmp_eq_u32 vcc, 0x80000000, v16"); e(f"v_cndmask_b32 v{MP+r}, v19, 0, vcc")
        e("s_cmp_eq_u32 s19, 0"); e(f"s_cselect_b32 s34, {NEG}, 0")
        for r in range(4): e(f"v_add_f32 v{MP1+r}, s34, v{MP+r}")
        e("v_cmp_eq_u32 vcc, 2, v6"); e("v_cndmask_b32 v38, 0, -1, vcc")
        e("v_cmp_eq_u32 vcc, 3, v6"); e("v_cndmask_b32 v39, 0, -1, vcc")
        for b in (1, 2): e(f"v_mul_f32 v{58+b}, {fbits(CSCALE)}, v{48+b}")
        e("v_cmp_gt_u32 vcc, 2, v6")
        for b in (1, 2): e(f"v_cndmask_b32 v{35+b}, v{48+b}, v{58+b}, vcc")
        e("s_mul_i32 s35, s18, 5120"); e(f"s_add_u32 s35, s35, {EX}"); e("v_add_u32 v9, s35, v3")
        e("s_mul_i32 s24, s19, 20480"); e(f"s_add_u32 s24, s24, {OBT}")
        e("s_lshl_b32 s51, s17, 10"); e("s_add_u32 s51, s51, s24"); e("s_add_u32 s52, s51, 20480")
        e("s_lshr_b32 s53, s17, 2"); e("s_add_u32 s53, s53, 16"); e("s_lshl_b32 s53, s53, 10"); e("s_add_u32 s53, s53, s24")
        e("s_and_b32 s54, s17, 1"); e("s_lshl_b32 s54, s54, 9"); e("s_add_u32 s53, s53, s54")
        e("s_bfe_u32 s54, s17, 0x10001"); e("s_lshl_b32 s54, s54, 3"); e("s_add_u32 s53, s53, s54"); e("s_add_u32 s54, s53, 20480")
    fl = k.capture(prolog)
    def rd(ks, F):
        off = ks*8192 + 1024*F; hi = off >> 16
        k.dsop(f"ds_read_b128 {vr(BF+4*F,4)}, v{(3,41,42)[hi]} offset:{off & 0xffff}", f"b{ks}_{F}")
    def mm(b, F, ks):
        a = vr(AR+8*(ks%DA)+4*(b-1), 4); w = vr(BF+4*F, 4); c = vr(acc(b,F), 4); ci = c if ks else "0"
        if F in TOKF: e(f"v_mfma_f32_16x16x32_bf16 {c}, {w}, {a}, {ci}")
        else:         e(f"v_mfma_f32_16x16x32_bf16 {c}, {a}, {w}, {ci}")
    e("s_barrier")
    for F in range(8): rd(0, F)
    for ks in range(20):
        k.waitvm(f"a{ks}")
        if ks == 0: k.stamp(st0+1)
        if ks == 6: e("s_barrier")
        if ks == 16:
            k.fill(fl, 1000)
            for F in range(8): k.dsop(f"ds_read_b64 {vr(20+2*F,2)}, v43 offset:{UOFF(F)}", "uo")
        for F in range(8):
            if F % 2 == 0: k.waitlg(f"b{ks}_{F+1}")
            mm(1, F, ks)
            if ks >= 1: k.fill(fl, 1)
            mm(2, F, ks)
            if ks + 1 < 20: rd(ks+1, F)
            if F == 0 and ks + DA - 1 < 20: ldA(ks + DA - 1)
            if ks >= 1 and F % 2: k.fill(fl, 1)
        if ks == 18:
            k.fill(fl, 1000)
            for b in (1, 2):
                for F in range(8):
                    U, M = vr(20+2*F, 2), vr(52+2*b, 2)
                    if F in TOKF: e(f"v_mfma_f32_16x16x16_bf16 {vr(acc(b,F),4)}, {U}, {M}, {vr(acc(b,F),4)}")
                    else:         e(f"v_mfma_f32_16x16x16_bf16 {vr(acc(b,F),4)}, {M}, {U}, {vr(acc(b,F),4)}")
    k.stamp(st0+2)
    e("s_barrier")
    if os.environ.get("FOC") == "s3": k.stamp(3)
    e("s_cmp_eq_u32 s18, 0"); e(f"s_cbranch_scc0 {nm}_ni"); lw_init(k); k.label(f"{nm}_ni")
    KO = lambda b, h: BF + 8*b + 4*h
    QO = lambda b, h: BF + 24 + 8*(b-1) + 4*h
    VO = lambda F, b: BF + 40 + 8*FEAF.index(F) + 2*b
    def kv_pack(b):
        for h in range(2): scale_pack(k, acc(b, 2+h), lambda r: 48+b, KO(b,h))
        scale_pack(k, acc(b, 6), lambda r: 35+b, KO(b,0)+2)
        for r in range(2): e(f"v_mov_b32 v{KO(b,1)+2+r}, v{KO(b,0)+2+r}")
        for F in FEAF: scale_pack(k, acc(b, F), lambda r: RSV+4*b+r, VO(F,b))
    kv_pack(2)
    for h in range(2): e(f"ds_write_b128 v9, {vr(KO(2,h),4)} offset:{5120+1024*h}")
    for n, F in enumerate(FEAF): e(f"ds_write_b64 v9, {vr(VO(F,2),2)} offset:{5120+2048+1024*n}")
    kv_pack(1)
    e("s_waitcnt lgkmcnt(0)"); e("s_barrier")
    if os.environ.get("FOC") == "s3": k.stamp(4)
    for h in range(2): e(f"ds_read_b128 {vr(KO(0,h),4)}, v9 offset:{1024*h}")
    for n, F in enumerate(FEAF): e(f"ds_read_b64 {vr(VO(F,0),2)}, v9 offset:{2048+1024*n}")
    for b in (1, 2):
        for h in range(2): scale_pack(k, acc(b, h), lambda r: 58+b, QO(b,h))
        for r in range(2):
            e(f"v_mov_b32 v{40+2*r}, v{KO(b,0)+2+r}"); e(f"v_mov_b32 v{41+2*r}, v{KO(b,0)+2+r}")
        for r in range(2): e(f"v_permlane32_swap_b32 v{40+2*r}, v{41+2*r}")
        e("s_nop 0")
        for h in range(2):
            for r in range(2): e(f"v_and_b32 v{QO(b,h)+2+r}, v{40+2*r}, v{38+h}")
    e("s_waitcnt lgkmcnt(0)")
    units = [(b, h) for b in (1, 2) for h in range(2)]
    SU = lambda i: 20 + 8*i if i < 2 else 76 + 8*(i-2)
    TU = lambda i: ACC + 32 + 4*i
    PU = lambda i: ACC + 48 + 4*i
    OU = lambda i: ACC + 64 + 8*i
    for i, (b, h) in enumerate(units):
        e(f"v_mfma_f32_16x16x32_bf16 {vr(SU(i),4)}, {vr(KO(b-1,h),4)}, {vr(QO(b,h),4)}, {vr(MP1 if b == 1 else MP,4)}")
        e(f"v_mfma_f32_16x16x32_bf16 {vr(SU(i)+4,4)}, {vr(KO(b,h),4)}, {vr(QO(b,h),4)}, {vr(MC,4)}")
    def allred(op):
        for sw in ("v_permlane16_swap_b32", "v_permlane32_swap_b32"):
            for i in range(4): e(f"v_mov_b32 v{TU(i)+1}, v{TU(i)}")
            for i in range(4): e(f"{sw} v{TU(i)}, v{TU(i)+1}")
            for i in range(4): e(f"{op} v{TU(i)}, v{TU(i)}, v{TU(i)+1}")
    for i in range(4):
        s = SU(i)
        e(f"v_max3_f32 v{TU(i)}, v{s}, v{s+1}, v{s+2}"); e(f"v_max3_f32 v{TU(i)}, v{s+3}, v{s+4}, v{TU(i)}")
        e(f"v_max3_f32 v{TU(i)}, v{s+5}, v{s+6}, v{TU(i)}"); e(f"v_max_f32 v{TU(i)}, v{s+7}, v{TU(i)}")
    allred("v_max_f32")
    for i in range(4):
        for r in range(8): e(f"v_sub_f32 v{SU(i)+r}, v{SU(i)+r}, v{TU(i)}")
    for i in range(4):
        for r in range(8): e(f"v_exp_f32 v{SU(i)+r}, v{SU(i)+r}")
    for i in range(4):
        s = SU(i)
        e(f"v_add_f32 v{TU(i)}, v{s}, v{s+1}")
        for r in range(2, 8): e(f"v_add_f32 v{TU(i)}, v{TU(i)}, v{s+r}")
    allred("v_add_f32")
    for i in range(4): e(f"v_rcp_f32 v{TU(i)}, v{TU(i)}")
    for i in range(4):
        for r in range(8): e(f"v_mul_f32 v{SU(i)+r}, v{SU(i)+r}, v{TU(i)}")
        for r in range(4): e(f"v_cvt_pk_bf16_f32 v{PU(i)+r}, v{SU(i)+2*r}, v{SU(i)+2*r+1}")
    for i, (b, h) in enumerate(units):
        e(f"v_mfma_f32_16x16x32_bf16 {vr(OU(i),4)}, {vr(VO(4+h,b-1),4)}, {vr(PU(i),4)}, 0")
        e(f"v_mfma_f32_16x16x32_bf16 {vr(OU(i)+4,4)}, {vr(VO(7,b-1),4)}, {vr(PU(i),4)}, 0")
    e("v_cmp_eq_u32 vcc, 0, v6")
    for bi in range(2):
        o0, o1 = OU(2*bi), OU(2*bi+1); d = 40 + 8*bi
        e(f"v_cvt_pk_bf16_f32 v{d}, v{o0}, v{o0+1}"); e(f"v_cvt_pk_bf16_f32 v{d+1}, v{o0+2}, v{o0+3}")
        e(f"v_cvt_pk_bf16_f32 v{d+2}, v{o1}, v{o1+1}"); e(f"v_cvt_pk_bf16_f32 v{d+3}, v{o1+2}, v{o1+3}")
        e(f"buffer_store_dwordx4 {vr(d,4)}, v3, s[8:11], s{51+bi} offen {SC}")
        for r in range(4): e(f"v_cndmask_b32 v{o0+4+r}, v{o1+4+r}, v{o0+4+r}, vcc")
        e(f"v_cvt_pk_bf16_f32 v{d+4}, v{o0+4}, v{o0+5}"); e(f"v_cvt_pk_bf16_f32 v{d+5}, v{o0+6}, v{o0+7}")
    e("s_mov_b32 exec_hi, 0")
    for bi in range(2): e(f"buffer_store_dwordx2 {vr(44+8*bi,2)}, v3, s[8:11], s{53+bi} offen {SC}")

def qkvb_l(k, xin, stin, w):
    e = k.e; nm = k.name
    qkvb_pre(k)
    e("s_max_u32 s22, s22, 1"); e("s_sub_u32 s22, s22, 1")
    e("s_mul_i32 s24, s22, 20480"); e(f"s_add_u32 s24, s24, {xin}")
    e("s_lshl_b32 s27, s22, 10"); e(f"s_add_u32 s27, s27, {stin}")
    e("s_min_u32 s40, s39, 2")
    e("s_cmp_lt_u32 s39, 2"); e("s_cselect_b32 s41, 2, 4"); e("s_cselect_b32 s42, 4, 5")
    e("s_add_u32 s41, s41, s40"); e("s_add_u32 s42, s42, s40")
    for d_, s_ in ((43, 41), (44, 42)):
        e(f"s_lshr_b32 s{d_}, s{s_}, 2"); e(f"s_lshl_b32 s{d_}, s{d_}, 13"); e(f"s_and_b32 s32, s{s_}, 3"); e("s_lshl_b32 s32, s32, 8")
        e(f"s_add_u32 s{d_}, s{d_}, s32"); e(f"s_add_u32 s{d_}, s{d_}, {UOFF(0)}")
    e("s_lshl_b32 s41, s41, 10"); e("s_lshl_b32 s42, s42, 10")
    for i in range(3):
        e(f"v_add_u32 v{40+i}, s41, v3"); e(f"v_add_u32 v{43+i}, s42, v3")
        if i: e(f"v_add_u32 v{40+i}, {65536*i}, v{40+i}"); e(f"v_add_u32 v{43+i}, {65536*i}, v{43+i}")
    atouch_pre(k, xin)
    e("s_barrier")
    e(f"ds_write_b64 v46, v[28:29] offset:{UOFF(0)}"); e(f"ds_write_b64 v46, v[30:31] offset:{UOFF(1)}")
    if ENV('ATOUCH', '1'): k.vmop("buffer_load_dword v20, v21, s[8:11], s51 offen")
    w.one(39)
    for q in range(2): k.vmop(f"buffer_load_dwordx2 {vr(24+2*q,2)}, v11, s[8:11], s27 offen offset:{128*q} {SC}", "st")
    e("s_cmp_eq_u32 s39, 3"); e("s_cselect_b32 s24, 0x7ff00000, s24")
    HL = ENV('HL', '3')
    def ldh(ks):
        if ks % 4 == 0 and ks: e("s_add_u32 s24, s24, 4096")
        k.vmop(f"buffer_load_dwordx4 {vr(128+4*ks,4)}, v3, s[8:11], s24 offen offset:{(ks%4)*1024} {SC}", f"h{ks}")
    for ks in range(HL): ldh(ks)
    k.waitvm("w39"); e("s_waitcnt lgkmcnt(0)"); e("s_barrier")
    k.waitvm("st")
    stats16(k, 24, 48, 52, 4)
    for r in range(4):
        e(f"v_add_u32 v18, {4*r}, v10")
        k.dsop(f"ds_bpermute_b32 v{72+r}, v18, v48", "r")
    def rd(ks):
        off = ks*8192; hi = off >> 16; fb = 96 + 8*(ks%3)
        k.dsop(f"ds_read_b128 {vr(fb,4)}, v{40+hi} offset:{off & 0xffff}", f"r{ks}")
        k.dsop(f"ds_read_b128 {vr(fb+4,4)}, v{43+hi} offset:{off & 0xffff}", f"r{ks}")
    rd(0); rd(1)
    for ks in range(20):
        if ks + 2 < 20: rd(ks+2)
        if ks + HL < 20: ldh(ks + HL)
        k.waitvm(f"h{ks}"); k.waitlg(f"r{ks}")
        fb = 96 + 8*(ks%3)
        e(f"v_mfma_f32_16x16x32_bf16 v[80:83], {vr(fb,4)}, {vr(128+4*ks,4)}, {'v[80:83]' if ks else 0}")
        e(f"v_mfma_f32_16x16x32_bf16 v[84:87], {vr(128+4*ks,4)}, {vr(fb+4,4)}, {'v[84:87]' if ks else 0}")
    e("v_add_u32 v12, s43, v51"); e("v_add_u32 v13, s44, v51")
    e("ds_read_b64 v[20:21], v12"); e("ds_read_b64 v[22:23], v13")
    e("s_lshl_b32 s41, s39, 10"); e("s_cmp_lt_u32 s39, 2"); e("s_cselect_b32 s41, s41, 8"); e("s_cselect_b32 s42, s41, 1032")
    e("s_lshl_b32 s40, s40, 10")
    e(f"v_add_u32 v9, {EX}, v3"); e("v_add_u32 v12, s41, v9"); e("v_add_u32 v13, s42, v9"); e("v_add_u32 v15, s40, v9")
    e("s_waitcnt lgkmcnt(0)")
    e("v_mfma_f32_16x16x16_bf16 v[80:83], v[20:21], v[52:53], v[80:83]")
    e("v_mfma_f32_16x16x16_bf16 v[84:87], v[52:53], v[22:23], v[84:87]")
    scale_pack(k, 80, lambda r: 48, 88); scale_pack(k, 84, lambda r: 72+r, 90)
    e("s_barrier")
    e("s_cmp_eq_u32 s39, 3"); e(f"s_cbranch_scc1 {nm}_h4")
    e("ds_write_b64 v12, v[88:89]"); e("ds_write_b64 v13, v[88:89]"); e("ds_write_b64 v15, v[90:91] offset:2048")
    e("s_waitcnt lgkmcnt(0)")
    k.label(f"{nm}_h4")
    e("s_barrier")
    k.vm = []; k.lg = []

def one(k, target):
    k.e(f"v_mov_b32 v{PV_+1}, 0"); k.e(f"v_mov_b32 v{PV_+2}, {target}"); k.e("s_mov_b64 s[56:57], 1")

def kvpos(k):
    k.e("s_and_b32 s36, s19, 31"); k.e("s_lshl_b32 s36, s36, 1"); k.e("s_lshr_b32 s34, s19, 5"); k.e("s_add_u32 s36, s36, s34")
    k.e("s_add_u32 s36, s36, 50"); k.e("s_and_b32 s36, s36, 63")
def addr_v(k, img):
    e = k.e
    e("s_sub_u32 s35, s17, 10"); e("s_lshl_b32 s35, s35, 7")
    kvpos(k); e("s_mul_i32 s36, s36, 2560"); e(f"s_add_u32 s33, s36, {img+KVIMG+1280}")
    e("v_mul_u32_u24 v20, 320, v4")
    for jf in range(4):
        e(f"v_add_u32 v16, s35, v10")
        if jf: e(f"v_add_u32 v16, {32*jf}, v16")
        e("v_mul_u32_u24 v17, 52429, v16"); e("v_lshrrev_b32 v17, 20, v17")
        e("v_mul_u32_u24 v18, 20, v17"); e("v_sub_u32 v18, v16, v18")
        e("v_mul_u32_u24 v17, 163840, v17"); e("v_lshl_add_u32 v17, v18, 4, v17")
        e(f"v_add_u32 v{24+jf}, v17, v20")
def addr_qk(k, img, xm=52):
    e = k.e; k.xm = xm
    e("s_cmp_ge_u32 s17, 5")
    e(f"s_cselect_b32 s33, {QI}, 0"); e(f"s_cselect_b32 s59, 1.0, {fbits(CSCALE)}"); e("s_cselect_b32 s35, 5, 0"); e("s_cselect_b32 s37, 1, 0")
    e(f"s_add_u32 s33, s33, {img+QIMG}")
    e("s_sub_u32 s35, s17, s35")
    kvpos(k); e("s_cmp_eq_u32 s37, 0"); e("s_cselect_b32 s36, s19, s36")
    e("s_mul_i32 s36, s36, 1280"); e("s_lshl_b32 s36, s36, s37"); e("s_add_u32 s33, s33, s36")
    e("s_lshl_b32 s34, 81920, s37")
    e("v_lshlrev_b32 v16, 4, v10"); e("v_lshlrev_b32 v17, 3, v10")
    e("v_lshl_add_u32 v18, v4, 9, v16")
    e("s_sub_u32 s36, s34, 512"); e("v_and_b32 v19, s36, v59"); e("v_add_u32 v19, v19, v16")
    e(f"s_mov_b32 s{xm}, -1"); e(f"s_mov_b32 s{xm+1}, 0"); e(f"s_mov_b32 s{xm+2}, 0"); e(f"s_mov_b32 s{xm+3}, -1")
def epi_qk(k, ACC, BF):
    e = k.e; nm = k.name + k.ptag
    for v in range(1, 5):
        e(f"s_cmp_eq_u32 s35, {v}"); e(f"s_cbranch_scc1 {nm}_e{v}")
    QSC = os.environ.get("QSC", "sc1")
    for v in range(5):
        if v: k.label(f"{nm}_e{v}")
        e("s_nop 7")
        for jf in range(4):
            for r in range(16): e(f"v_mul_f32 v{ACC+16*jf+r}, v{ACC+16*jf+r}, v47")
            for r in range(8): e(f"v_cvt_pk_bf16_f32 v{BF+8*jf+r}, v{ACC+16*jf+2*r}, v{ACC+16*jf+2*r+1}")
            for a2 in range(2):
                x = BF+8*jf+4*a2
                e(f"v_permlane32_swap_b32 v{x}, v{x+2}"); e(f"v_permlane32_swap_b32 v{x+1}, v{x+3}")
            for a2 in range(2):
                x = BF+8*jf+4*a2
                G = [32*v+8*jf+4*a2, 32*v+8*jf+4*a2+2]
                def main(g):
                    h = g // 5; r = g % 5
                    return h, (r // 2 if h % 2 == 0 else (r - 1) // 2)
                st = [g % 10 == 4 for g in G]
                def hoff(dst, h, c):
                    if h: e(f"s_mul_i32 s{dst}, s34, {h}"); e(f"s_add_u32 s{dst}, s{dst}, s33")
                    else: e(f"s_mov_b32 s{dst}, s33")
                    if c: e(f"s_add_u32 s{dst}, s{dst}, {c}")
                if not any(st):
                    (h0, p0), (h1, p1) = main(G[0]), main(G[1])
                    hoff(36, h0, 512*p0)
                    if h0 == h1: e(f"buffer_store_dwordx4 {vr(x,4)}, v18, {k.srdo}, s36 offen {QSC}")
                    else:        e(f"buffer_store_dwordx4 {vr(x,4)}, v19, {k.srdo}, s36 offen {QSC}")
                    assert (h0 == h1 and (p0, p1) == (0, 1)) or (h1 == h0 + 1 and (p0, p1) == (1, 0))
                else:
                    m = st.index(False); q = 1 - m
                    h, p = main(G[m]); hoff(36, h, 512*p); hoff(37, G[q] // 5, 1024); e("s_add_u32 s38, s37, s34")
                    e(f"s_mov_b64 exec, s[{k.xm+2*m}:{k.xm+1+2*m}]")
                    e(f"buffer_store_dwordx4 {vr(x,4)}, v16, {k.srdo}, s36 offen {QSC}")
                    e(f"s_mov_b64 exec, s[{k.xm+2*q}:{k.xm+1+2*q}]")
                    e(f"buffer_store_dwordx2 {vr(x,2)}, v17, {k.srdo}, s37 offen {QSC}")
                    e(f"buffer_store_dwordx2 {vr(x+2,2)}, v17, {k.srdo}, s38 offen {QSC}")
                    e("s_mov_b64 exec, -1")
        e(f"s_branch {nm}_fin5")
def epi_v(k, ACC, BF, RS):
    e = k.e
    VSC = os.environ.get("VSC", "sc1")
    for jf in range(4):
        for r in range(16): e(f"v_mul_f32 v{ACC+16*jf+r}, v{ACC+16*jf+r}, v{RS+r}")
        for r in range(8): e(f"v_cvt_pk_bf16_f32 v{BF+8*jf+r}, v{ACC+16*jf+2*r}, v{ACC+16*jf+2*r+1}")
        for u in range(2):
            e(f"buffer_store_dwordx4 {vr(BF+8*jf+4*u,4)}, v{24+jf}, {k.srdo}, s33 offen offset:{640*u} {VSC}")

def qkva_c(k, xin, stin, img, cnt, wbar, st0):
    k.ptag = '_p5'; k.srdo = 's[8:11]'
    e = k.e; nm = k.name + k.ptag
    DA = 5
    ACC, BF, AR, RS = 64, 128, 160, 200
    e("v_and_b32 v10, 31, v1"); e("v_lshrrev_b32 v4, 5, v1"); e("v_and_b32 v5, 15, v1")
    e("s_lshl_b32 s19, s16, 2"); e("s_add_u32 s19, s19, s18")
    e("v_lshlrev_b32 v12, 4, v10")
    e("s_lshl_b32 s31, s17, 11"); e(f"s_add_u32 s31, s31, {U_A}")
    for jf in range(4): k.vmop(f"buffer_load_dwordx4 {vr(24+4*jf,4)}, v12, s[12:15], s31 offen offset:{512*jf}", "u")
    e("v_bfe_u32 v7, v1, 4, 1"); e("v_mul_u32_u24 v8, 20480, v7"); e("v_lshl_add_u32 v8, v4, 8, v8"); e("v_lshl_add_u32 v8, v5, 4, v8")
    e("v_lshlrev_b32 v11, 10, v7"); e("v_lshl_add_u32 v11, v4, 9, v11"); e("v_lshl_add_u32 v11, v5, 3, v11")
    e("s_lshl_b32 s30, s19, 11"); e(f"s_add_u32 s30, s30, {stin}")
    e("s_mul_i32 s24, s19, 40960"); e(f"s_add_u32 s24, s24, {xin}")
    e("v_add_u32 v41, 65536, v3"); e("v_add_u32 v42, 131072, v3")
    e("v_subrev_u32 v58, 1, v4"); e("v_not_b32 v59, v58")
    sc = SC if cnt is not None else ""
    if cnt is not None:
        def c4(): one(k, 16); e("s_lshl_b32 s48, s16, 8"); e(f"s_add_u32 s48, s48, {cnt}")
        wait_go(k, "p5", 1, c4)
    k.stamp(st0)
    def ldA(ks):
        if ks % 4 == 0 and ks > 0: e("s_add_u32 s24, s24, 4096")
        for u in range(2):
            k.vmop(f"buffer_load_dwordx4 {vr(AR+8*(ks%DA)+4*u,4)}, v8, s[8:11], s24 offen offset:{(ks%4)*1024+512*u} {sc}", f"a{ks}")
    ldA(0)
    for q in range(4): k.vmop(f"buffer_load_dwordx2 {vr(16+2*q,2)}, v11, s[8:11], s30 offen offset:{128*q} {sc}", "st")
    for ks in range(1, DA-1): ldA(ks)
    def prolog(vmode):
        k.waitvm("st")
        e("v_add_f32 v16, v16, v18"); e("v_add_f32 v17, v17, v19"); e("v_add_f32 v20, v20, v22"); e("v_add_f32 v21, v21, v23")
        e("v_add_f32 v16, v16, v20"); e("v_add_f32 v17, v17, v21")
        k.allred32("v_add_f32", 16, 18); k.allred32("v_add_f32", 17, 18)
        stats_finish(k, 16, 17, 46, 47, 18)
        split3(k, 46, 48, 18, 'm', 58)
        for jf in range(4): usum(k, 24+4*jf, 50+2*jf, 18)
        if vmode:
            e("v_lshlrev_b32 v16, 4, v4")
            for r in range(16):
                e(f"v_add_u32 v17, {(8*(r//4) + r%4)*4}, v16")
                k.dsop(f"ds_bpermute_b32 v{RS+r}, v17, v47", "rs")
            addr_v(k, img)
        else:
            addr_qk(k, img); e("v_mul_f32 v47, s59, v47")
    e("s_cmp_ge_u32 s17, 10"); e(f"s_cbranch_scc1 {nm}_qv")
    vm_save = list(k.vm)
    def mainloop(vmode):
        acc = lambda jf: vr(ACC+16*jf, 16)
        fl = k.capture(lambda: prolog(vmode))
        def rd(ks, f):
            off = ks*8192 + 1024*f; hi = off >> 16
            k.dsop(f"ds_read_b128 {vr(BF+4*f,4)}, v{(3,41,42)[hi]} offset:{off & 0xffff}", f"b{ks}_{f}")
        e("s_barrier")
        for f in range(8): rd(0, f)
        for ks in range(20):
            k.waitvm(f"a{ks}")
            if ks == 0: k.stamp(st0+1)
            if ks + 1 in wbar: e("s_barrier")
            for f in range(8):
                u, jf = f//4, f%4
                if f % 2 == 0: k.waitlg(f"b{ks}_{f+1}")
                a = vr(AR+8*(ks%DA)+4*u, 4); b = vr(BF+4*f, 4); c = acc(jf) if (ks or u) else "0"
                if vmode: e(f"v_mfma_f32_32x32x16_bf16 {acc(jf)}, {a}, {b}, {c}")
                else:     e(f"v_mfma_f32_32x32x16_bf16 {acc(jf)}, {b}, {a}, {c}")
                if ks + 1 < 20: rd(ks+1, f)
                if f == 0 and ks + DA - 1 < 20: ldA(ks + DA - 1)
                if ks >= 1: k.fill(fl, 2)
            if ks == 15:
                k.fill(fl, 1000)
                for jf in range(4):
                    if vmode: e(f"v_mfma_f32_32x32x8_bf16 {acc(jf)}, v[48:49], {vr(50+2*jf,2)}, {acc(jf)}")
                    else:     e(f"v_mfma_f32_32x32x8_bf16 {acc(jf)}, {vr(50+2*jf,2)}, v[48:49], {acc(jf)}")
        k.stamp(st0+2)
        e("s_barrier")
    mainloop(False)
    epi_qk(k, ACC, BF)
    k.label(f"{nm}_qv"); k.vm = vm_save; k.lg = []
    mainloop(True)
    epi_v(k, ACC, BF, RS)
    k.label(f"{nm}_fin5")

def ph_front(k):
    k.ptag = "_f"; k.srdo = "s[12:15]"
    e = k.e; nm = k.name + k.ptag; kn = k.name
    R, DEP, SCRB, UT = 4, 2, 131072, 65536
    need = lambda ks: ks // 2
    slot = lambda st: (st % R) * 32768
    e("s_cmp_ge_u32 s2, 256"); e(f"s_cbranch_scc1 {kn}_end"); k.stamp(0); k.rstamp(1)
    e("s_load_dwordx4 s[60:63], s[0:1], 0"); e("s_load_dwordx2 s[6:7], s[0:1], 64")
    e("s_load_dwordx2 s[4:5], s[0:1], 56")
    e("s_and_b32 s20, s2, 7"); e("s_lshr_b32 s21, s2, 3")
    e("v_lshrrev_b32 v2, 6, v0"); e("v_and_b32 v1, 63, v0")
    e("v_readfirstlane_b32 s18, v2")
    e("s_and_b32 s39, s18, 3"); e("s_lshl_b32 s45, s39, 10")
    ids_mt(k)
    e("v_lshlrev_b32 v3, 4, v1"); e(f"v_lshlrev_b32 v9, {ENV('BST', '7')}, v1")
    e("s_lshl_b32 s22, s2, 2"); e("s_add_u32 s22, s22, s39"); e("s_mul_i32 s23, s22, 2400"); e("s_mul_i32 s22, s22, 2560")
    def kwait():
        e("s_waitcnt lgkmcnt(0)")
        k.stamp(2)
        k.srd(8, 60, S*D*2); k.srd(28, 62, D*3*D*2); k.srd(12, 6, WS_END)
    def burst():
        if ENV('BURST', '1'):
            e("s_mov_b32 exec_hi, 0xff" if ENV('BST', '7') == 6 else "s_mov_b64 exec, 0xfffff")
            e("buffer_load_dword v240, v9, s[8:11], s22 offen"); e("buffer_load_dword v241, v9, s[28:31], s23 offen")
            e("s_mov_b64 exec, -1")
    def codepf(tg):
        if ENV('CPF', '1'):
            e("s_getpc_b64 s[34:35]"); k.label(f"{nm}_pc{tg}")
            e(f"s_sub_u32 s34, s34, {nm}_pc{tg} - {kn}"); e("s_subb_u32 s35, s35, 0")
            e("v_lshlrev_b32 v242, 4, v0"); e("s_lshl_b32 s36, s21, 12"); e("v_add_u32 v242, s36, v242")
            e(f"v_and_b32 v242, 0xffffffc0, v242"); e(f"v_min_u32 v242, code_end - {kn} - 4, v242")
            e("global_load_dword v243, v242, s[34:35]")
    e("s_cmp_ge_u32 s17, 15"); e(f"s_cbranch_scc1 {nm}_ub")
    e("v_and_b32 v10, 31, v1"); e("v_lshrrev_b32 v4, 5, v1"); e("v_and_b32 v5, 15, v1"); e("v_bfe_u32 v7, v1, 4, 1")
    e("v_lshrrev_b32 v13, 2, v5"); e("v_and_b32 v6, 3, v1")
    e("v_lshl_add_u32 v14, v4, 3, v13"); e("v_lshlrev_b32 v14, 8, v14"); e("v_lshl_add_u32 v14, v7, 5, v14"); e("v_lshl_add_u32 v14, v6, 3, v14")
    e("v_add_u32 v14, 16384, v14")
    def a0():
        e("s_lshl_b32 s48, s17, 11"); e(f"s_add_u32 s48, s48, {C0}"); e(f"v_lshlrev_b32 v{PV_+1}, 8, v1"); e("s_mov_b64 s[56:57], 0xff")
    SF = ENV('SF', '10')
    e("s_cmp_ge_u32 s18, 4"); e(f"s_cbranch_scc1 {nm}_ld")
    kwait(); burst(); codepf("c")
    ACC, BF, AR, RS = 64, 128, 160, 200
    BA, AA = 216, 224
    e("s_lshl_b32 s19, s16, 2"); e("s_add_u32 s19, s19, s18")
    for jf in range(4):
        e(f"v_xor_b32 v15, {jf}, v13"); e(f"v_lshl_add_u32 v{BA+jf}, v15, 6, v14"); e(f"v_add_u32 v{BA+4+jf}, 65536, v{BA+jf}")
    e("v_lshl_add_u32 v15, v2, 5, v10"); e("v_lshlrev_b32 v15, 7, v15"); e("v_bfe_u32 v12, v10, 1, 3"); e("v_xor_b32 v12, v12, v4")
    for q in range(4):
        e(f"v_xor_b32 v11, {2*q}, v12"); e(f"v_lshl_add_u32 v{AA+q}, v11, 4, v15"); e(f"v_add_u32 v{AA+4+q}, 65536, v{AA+q}")
    e("v_mul_u32_u24 v8, 20480, v7"); e("v_lshl_add_u32 v8, v4, 8, v8"); e("v_lshl_add_u32 v8, v5, 4, v8")
    e("s_mul_i32 s24, s19, 40960"); e(f"s_add_u32 s24, s24, {XI}")
    e("v_subrev_u32 v58, 1, v4"); e("v_not_b32 v59, v58")
    e("s_cmp_ge_u32 s17, 10"); e(f"s_cbranch_scc1 {nm}_qv")
    def mainloop(vmode):
        tagm = "v" if vmode else "q"
        acc = lambda jf: vr(ACC+16*jf, 16)
        fl = k.capture(lambda: addr_v(k, 0) if vmode else addr_qk(k, 0, 28))
        def rdB(ks, f):
            u, jf = f//4, f%4; sl = slot(ks//2)
            for t in range(2):
                off = sl + (32*(ks%2) + 16*u + 4*t)*256
                k.dsop(f"ds_read_b64_tr_b16 {vr(BF+4*f+2*t,2)}, v{BA+4*(sl>>16)+jf} offset:{off & 0xffff}", f"b{ks}_{f}")
        def rdA(ks):
            sl = slot(ks//2)
            for u in range(2): k.dsop(f"ds_read_b128 {vr(AR+8*(ks%2)+4*u,4)}, v{AA+4*(sl>>16)+2*(ks%2)+u} offset:{sl & 0xffff}", f"b{ks}_a")
        kb = [-1]
        def bars(ks):
            while kb[0] < need(ks): e("s_barrier"); kb[0] += 1
        bars(0); k.stamp(3)
        rdA(0)
        for f in range(8): rdB(0, f)
        for ks in range(20):
            for f in range(8):
                u, jf = f//4, f%4
                k.waitlg(f"b{ks}_{f}")
                a = vr(AR+8*(ks%2)+4*u, 4); b = vr(BF+4*f, 4); c = acc(jf) if (ks or u) else "0"
                if vmode: e(f"v_mfma_f32_32x32x16_bf16 {acc(jf)}, {a}, {b}, {c}")
                else:     e(f"v_mfma_f32_32x32x16_bf16 {acc(jf)}, {b}, {a}, {c}")
                if ks + 1 < 20:
                    if f == 0: bars(ks+1); rdA(ks+1)
                    rdB(ks+1, f)
                if ks >= 4: k.fill(fl, 1)
            e(f"s_cmp_eq_u32 s17, {ks % 15}"); e(f"s_cbranch_scc0 {nm}_x{tagm}{ks}")
            e(f"s_add_u32 s32, s24, {1024*ks}")
            for u in range(2): e(f"buffer_store_dwordx4 {vr(AR+8*(ks%2)+4*u,4)}, v8, s[12:15], s32 offen offset:{512*u} {SC}")
            k.label(f"{nm}_x{tagm}{ks}")
            if ks in (0, 1, 4, 9, 10, 14): k.stamp(7 + (0, 1, 4, 9, 10, 14).index(ks))
        assert not fl
        k.stamp(4)
        e(f"v_lshlrev_b32 v23, 2, v10"); e(f"v_add_u32 v23, {UT}, v23"); e("s_lshl_b32 s32, s18, 8"); e("v_add_u32 v22, s32, v23")
        if vmode: e("v_lshlrev_b32 v21, 4, v4"); e(f"s_add_u32 s32, s32, {UT}"); e("v_add_u32 v21, s32, v21")
        e("s_barrier")
        e("ds_read_b32 v48, v22 offset:1024"); e("ds_read_b32 v49, v22 offset:1152")
        for jf in range(4): e(f"ds_read_b32 v{28+2*jf}, v23 offset:{256*jf}"); e(f"ds_read_b32 v{29+2*jf}, v23 offset:{256*jf+128}")
        if vmode:
            for a_ in range(4): e(f"ds_read_b128 {vr(RS+4*a_,4)}, v21 offset:{2048+32*a_}")
        else: e("ds_read_b32 v47, v22 offset:2048")
        e("s_waitcnt lgkmcnt(0)"); k.lg = []
        e("v_and_b32 v48, v48, v58"); e("v_and_b32 v49, v49, v58")
        if not vmode: e("v_mul_f32 v47, s59, v47")
        for jf in range(4):
            if vmode: e(f"v_mfma_f32_32x32x8_bf16 {acc(jf)}, v[48:49], {vr(28+2*jf,2)}, {acc(jf)}")
            else:     e(f"v_mfma_f32_32x32x8_bf16 {acc(jf)}, {vr(28+2*jf,2)}, v[48:49], {acc(jf)}")
        k.stamp(5)
    mainloop(False)
    epi_qk(k, ACC, BF)
    k.label(f"{nm}_qv"); k.lg = []
    mainloop(True)
    epi_v(k, ACC, BF, RS)
    k.label(f"{nm}_fin5")
    k.stamp(6)
    e("s_barrier")
    signal(k, "sf", -1, 8, a0, 0, "s[12:15]")
    k.dump(13)
    e(f"s_branch {kn}_t0")
    k.label(f"{nm}_ld"); k.vm = []; k.lg = []
    e(f"s_setprio {ENV('LPRIO', '2')}")
    e("v_lshrrev_b32 v16, 4, v1"); e("v_and_b32 v17, 3, v2")
    e("v_lshl_add_u32 v18, v17, 2, v16"); e("v_mul_u32_u24 v20, 3840, v18")
    e("v_xor_b32 v18, v13, v16"); e("v_lshl_add_u32 v20, v18, 6, v20"); e("v_lshl_add_u32 v20, v6, 4, v20")
    e("v_lshrrev_b32 v18, 3, v1"); e("v_lshl_add_u32 v19, v17, 5, v18"); e("v_and_b32 v23, 7, v1")
    for i in range(4):
        e(f"v_add_u32 v42, {8*i}, v19"); e("v_bfe_u32 v43, v42, 1, 3"); e("v_xor_b32 v43, v43, v23")
        e("v_mul_u32_u24 v42, 1280, v42"); e(f"v_lshl_add_u32 v{48+i}, v43, 4, v42")
        if i: e(f"v_subrev_u32 v{48+i}, {1024*i}, v{48+i}")
    e("s_lshl_b32 s25, s17, 8"); e("s_mul_i32 s24, s16, 163840"); e("s_lshl_b32 s26, s39, 12")
    def ld1(st, n):
        if n < 4:
            e(f"s_add_u32 m0, s45, {slot(st)+16384+4096*n}"); e(f"s_add_u32 s32, s25, {(64*st+16*n)*3840}")
            k.vmop("buffer_load_dwordx4 v20, s[28:31], s32 offen lds", f"d{st}")
        else:
            e(f"s_add_u32 m0, s26, {slot(st)}"); e(f"s_add_u32 s33, s24, {128*st}")
            k.vmop(f"buffer_load_dwordx4 v{44+n}, s[8:11], s33 offen offset:{1024*(n-4)} lds", f"d{st}")
    ORD = [0, 4, 1, 5, 2, 6, 3, 7]
    def ld(st):
        for n in ORD: ld1(st, n)
    kwait(); ld(0)
    e("v_xor_b32 v15, v17, v13"); e("v_lshl_add_u32 v40, v15, 6, v14"); e("v_add_u32 v41, 65536, v40")
    for r in range(4): e(f"v_mov_b32 v{60+r}, 0x3f803f80")
    k.srd(52, 4, 256)
    e("s_mul_i32 s27, s17, 163840"); e("s_add_u32 s27, s27, s45"); e(f"s_add_u32 s27, s27, {WA_I}")
    if ENV('LD1', '0'): ld(1)
    done = [0]
    def steps_of(kb):
        r = []
        while done[0] < 20 and need(done[0]) <= kb: r.append(done[0]); done[0] += 1
        return r
    def wa_store(q):
        e("s_lshl_b32 s32, s16, 13"); e("s_add_u32 s32, s32, s27")
        if q: e("s_add_u32 s32, s32, 131072")
        e("s_add_u32 s33, s32, 4096")
        for u in range(2): k.vmop(f"buffer_store_dwordx4 {vr(112+8*q+4*u,4)}, v3, s[12:15], s{32+u} offen {SC}")
    for kb in range(10):
        if kb == 5: k.stamp(5)
        k.waitvm(f"d{kb}")
        if kb == 5: k.stamp(6)
        e("s_barrier")
        if kb in (4, 5): k.stamp(2 if kb == 4 else 7)
        if kb == 0 and not ENV('LD1', '0'): ld(1)
        sl = slot(kb); todo = list(ORD) if kb + DEP < 10 else []
        nxt = lambda: ld1(kb + DEP, todo.pop(0)) if todo else None
        sts = steps_of(kb)
        for n_, ks in enumerate(sts):
            for u in range(2):
                for t in range(2):
                    e(f"ds_read_b64_tr_b16 {vr(136+8*n_+4*u+2*t,2)}, v{40+(sl>>16)} offset:{(sl + (32*(ks%2) + 16*u + 4*t)*256) & 0xffff}")
        nxt(); nxt()
        if kb == 4: k.stamp(3)
        e("s_waitcnt lgkmcnt(0)")
        mf = [(n_, ks, u) for n_, ks in enumerate(sts) for u in range(2)]
        for n_, ks, u in mf:
            e(f"v_mfma_f32_32x32x16_bf16 v[64:79], v[60:63], {vr(136+8*n_+4*u,4)}, {'v[64:79]' if ks or u else 0}")
            nxt()
        nxt(); nxt()
        if kb == 4: k.stamp(4)
        for n_, ks in enumerate(sts):
            e(f"s_cmp_eq_u32 s16, {ks % 16}"); e(f"s_cbranch_scc0 {nm}_w{ks}")
            for r in range(8): e(f"v_mov_b32 v{112+8*(ks//16)+r}, v{136+8*n_+r}")
            k.label(f"{nm}_w{ks}")
        assert not todo
        if kb == 8:
            e("v_and_b32 v24, 15, v1"); e("v_lshlrev_b32 v24, 2, v24"); e("s_mov_b32 s33, 0")
            k.label(f"{nm}_pl")
            e(f"buffer_load_dword v25, v24, s[52:55], 0 offen {SC}"); e("s_add_u32 s33, s33, 1"); e("s_waitcnt vmcnt(0)"); k.vm = []
            e("v_cmp_eq_u32 vcc, 0, v25"); e("s_cmp_ge_u32 s33, 0x20000"); e(f"s_cbranch_scc1 {nm}_px")
            e(f"s_cbranch_vccnz {nm}_pl")
            k.label(f"{nm}_px")
            e("v_lshlrev_b32 v24, 3, v10"); e("s_lshl_b32 s32, s16, 10"); e("s_lshl_b32 s33, s39, 8"); e("s_add_u32 s32, s32, s33"); e(f"s_add_u32 s32, s32, {STI}")
            k.vmop(f"buffer_load_dwordx2 v[44:45], v24, s[12:15], s32 offen {SC}", "rs")
            wa_store(0)
    k.waitvm("rs")
    stats_finish(k, 44, 45, 28, 29, 30)
    split3(k, 28, 32, 36, 'm'); split3(k, 64, 34, 36, 'u')
    e("v_lshlrev_b32 v24, 2, v10"); e("s_lshl_b32 s32, s39, 8"); e(f"s_add_u32 s32, s32, {UT}"); e("v_add_u32 v24, s32, v24")
    e("ds_write_b32 v24, v34"); e("ds_write_b32 v24, v35 offset:128"); e("ds_write_b32 v24, v32 offset:1024"); e("ds_write_b32 v24, v33 offset:1152"); e("ds_write_b32 v24, v29 offset:2048")
    e("s_waitcnt lgkmcnt(0)"); e("s_barrier")
    lwc_init(k); e("s_barrier")
    e("v_mov_b32 v44, v64")
    e("s_cmp_ge_u32 s16, 4"); e(f"s_cbranch_scc1 {nm}_le"); wa_store(1)
    e("s_cmp_eq_u32 s16, 0"); e(f"s_cbranch_scc0 {nm}_le")
    e("v_mov_b32 v45, 0"); e("v_mov_b32 v46, 0"); e("v_mov_b32 v47, 0"); e("v_lshlrev_b32 v24, 4, v10")
    e("s_lshl_b32 s32, s17, 11"); e("s_lshl_b32 s33, s39, 9"); e("s_add_u32 s32, s32, s33"); e(f"s_add_u32 s32, s32, {U_A}")
    e("s_mov_b32 exec_hi, 0"); e(f"buffer_store_dwordx4 v[44:47], v24, s[12:15], s32 offen {SC}")
    k.label(f"{nm}_le")
    e("s_mov_b64 exec, -1")
    signal(k, "sfl", -1, 8, a0, 0, "s[12:15]")
    k.dump(8)
    e(f"s_branch {kn}_t0")
    k.label(f"{nm}_ub"); k.vm = []; k.lg = []
    kwait()
    e("v_lshrrev_b32 v4, 3, v1"); e("v_lshl_add_u32 v4, v2, 4, v4"); e("v_mul_u32_u24 v5, 1280, v4"); e("v_and_b32 v6, 7, v1"); e("v_lshl_add_u32 v5, v6, 4, v5")
    e("s_mul_i32 s24, s16, 163840"); e("s_add_u32 s25, s24, 10240")
    for b_ in range(2):
        for i in range(10): k.vmop(f"buffer_load_dwordx4 {vr(24+40*b_+4*i,4)}, v5, s[8:11], s{24+b_} offen offset:{128*i}", f"x{b_}{i}")
    for j in range(8): e(f"v_mov_b32 v{8+j}, 0")
    e("v_mov_b32 v7, 0x3f803f80")
    e("v_lshlrev_b32 v16, 4, v0"); e("s_and_b32 s26, s16, 7"); e("s_lshl_b32 s26, s26, 13"); e(f"s_add_u32 s26, s26, {CNT}"); e("s_cmp_ge_u32 s16, 8"); e(f"s_cselect_b32 s27, {LS}, 0"); e("s_add_u32 s26, s26, s27")
    k.vmop(f"buffer_store_dwordx4 v[12:15], v16, s[12:15], s26 offen {SC}")
    for b_ in range(2):
        for i in range(10):
            k.waitvm(f"x{b_}{i}")
            for q in range(4):
                r = 24+40*b_+4*i+q
                e(f"v_dot2_f32_bf16 v{8+2*b_}, v{r}, v7, v{8+2*b_}"); e(f"v_dot2_f32_bf16 v{9+2*b_}, v{r}, v{r}, v{9+2*b_}")
    for dpp in ("quad_perm:[1,0,3,2]", "quad_perm:[2,3,0,1]", "row_half_mirror"):
        for q in range(4): e(f"v_add_f32_dpp v{8+q}, v{8+q}, v{8+q} {dpp} row_mask:0xf bank_mask:0xf")
    e("v_lshlrev_b32 v4, 3, v4"); e("s_lshl_b32 s26, s16, 10"); e(f"s_add_u32 s26, s26, {STI}")
    e("v_cmp_eq_u32 vcc, 0, v6"); k.srd(52, 4, 256); e("s_mov_b64 exec, vcc")
    e(f"buffer_store_dwordx2 v[8:9], v4, s[12:15], s26 offen {SC}"); e(f"buffer_store_dwordx2 v[10:11], v4, s[12:15], s26 offen offset:64 {SC}")
    e("s_mov_b64 exec, -1"); lwc_init(k)
    e("s_waitcnt vmcnt(0)"); e("s_barrier")
    e("s_cmp_ge_u32 s18, 4"); e(f"s_cbranch_scc1 {nm}_u2")
    codepf("u")
    e("s_cmp_eq_u32 s18, 0"); e(f"s_cbranch_scc0 {nm}_u2")
    e("v_mov_b32 v4, 0"); e("v_mov_b32 v5, 1"); e("s_lshl_b32 s26, s16, 2"); e("s_mov_b64 exec, 1")
    e(f"buffer_store_dword v5, v4, s[52:55], s26 offen {SC}")
    e("s_mov_b64 exec, 0xffff"); e("v_lshlrev_b32 v4, 2, v1"); e("s_mov_b32 s33, 0")
    k.label(f"{nm}_u1")
    e(f"buffer_load_dword v5, v4, s[52:55], 0 offen {SC}"); e("s_add_u32 s33, s33, 1"); e("s_waitcnt vmcnt(0)")
    e("v_cmp_eq_u32 vcc, 0, v5"); e("s_cmp_ge_u32 s33, 0x20000"); e(f"s_cbranch_scc1 {nm}_u2"); e(f"s_cbranch_vccnz {nm}_u1")
    k.label(f"{nm}_u2")
    e("s_mov_b64 exec, -1"); e("s_waitcnt vmcnt(0)")

def k_main():
    k = KB(NAME + "_kernel"); e = k.e; name = k.name
    ph_front(k)
    k.label(f"{name}_t0")
    e("s_load_dwordx2 s[46:47], s[0:1], 48"); e("s_mov_b32 s3, 0")
    k.srd(8, 6, 2*LS)
    e("s_waitcnt lgkmcnt(0)")
    k.srd(60, 46, S*D*2)
    k.label(f"{name}_top")
    k.vm = []; k.lg = []
    e("s_setprio 0"); k.stamp(0); k.rstamp(1)
    ph_attn(k)
    def a1():
        e("s_lshl_b32 s48, s17, 3"); e("s_and_b32 s49, s16, 1"); e("s_add_u32 s48, s48, s49"); e("s_lshl_b32 s48, s48, 8"); e(f"s_add_u32 s48, s48, {C1}")
        e(f"v_lshlrev_b32 v{PV_+1}, 9, v1"); e("s_mov_b64 s[56:57], 15")
    e("s_cmp_ge_u32 s18, 4"); e(f"s_cbranch_scc1 {name}_ld")
    signal(k, "s1", 0, 8, a1)
    def c1():
        e("s_lshl_b32 s48, s16, 9"); e(f"s_add_u32 s48, s48, {C1}")
        e(f"v_lshlrev_b32 v{PV_+1}, 8, v1"); e(f"v_mov_b32 v{PV_+2}, 16"); e("s_mov_b64 s[56:57], 3")
    proj_c(k, "p2", OT, XI, XM, STM, False, c1, 0, 6)
    def a2():
        e("s_lshr_b32 s48, s16, 1"); e("s_lshl_b32 s48, s48, 9"); e(f"s_add_u32 s48, s48, {C2}")
        e(f"v_mul_u32_u24 v{PV_+1}, 768, v1"); e("s_bitcmp1_b32 s16, 0"); e("s_cselect_b64 s[56:57], 3, 1")
    signal(k, "s2", 1, 4, a2)
    qkvb_c(k, XM, STM, 9)
    def a3(): one(k, 0); e("s_lshl_b32 s48, s16, 8"); e(f"s_add_u32 s48, s48, {C3}")
    signal(k, "s3", 0, 4, a3)
    def c3(): one(k, 16); e("s_lshr_b32 s48, s16, 1"); e("s_lshl_b32 s48, s48, 8"); e(f"s_add_u32 s48, s48, {C3}")
    proj_c(k, "p4", OBT, XM, LS + XI, LS + STI, True, c3, 0, 12)
    def a4(): one(k, 0); e("s_lshr_b32 s48, s16, 1"); e("s_lshl_b32 s48, s48, 8"); e(f"s_add_u32 s48, s48, {C4}")
    signal(k, "s4", 1, 4, a4)
    k.dump(15, "1")
    ids_mt(k)
    e("s_cmp_ge_u32 s17, 15"); e(f"s_cbranch_scc1 {name}_idle")
    qkva_c(k, LS + XI, LS + STI, LS, C4, [7], 3)
    k.stamp(6)
    e("s_barrier")
    def a5(): e("s_lshl_b32 s48, s17, 11"); e(f"s_add_u32 s48, s48, {LS + C0}"); e(f"v_lshlrev_b32 v{PV_+1}, 8, v1"); e("s_mov_b64 s[56:57], 0xff")
    signal(k, "s5", -1, 4, a5)
    k.dump(7, "3")
    k.label(f"{name}_t1")
    e("s_mov_b32 s3, 1"); e(f"s_add_u32 s8, s8, {LS}"); e("s_addc_u32 s9, s9, 0"); e(f"s_mov_b32 s10, {LS}")
    e(f"s_branch {name}_top")
    k.label(f"{name}_idle")
    for _ in range(4): e("s_barrier")
    e(f"s_branch {name}_t1")
    k.label(f"{name}_ld"); k.vm = []; k.lg = []
    e(f"s_setprio {ENV('LPRIO', '2')}")
    w = proj_l(k, WOA_I, WB_I, OT, a1, 0)
    qkvb_l(k, XM, STM, w)
    w = proj_l(k, WOB_I, WA_I, OBT, None, 0, True)
    ids_mt(k)
    atouch_pre(k, LS + XI)
    e("s_barrier")
    e("buffer_load_dword v20, v21, s[8:11], s51 offen")
    w.one(39); e("s_waitcnt vmcnt(0)"); e("s_barrier")
    e("s_barrier"); lwc_init(k); e("s_barrier")
    e(f"s_branch {name}_t1")
    k.label(f"{name}_end"); e("s_endpgm")
    k.tail()
    return k.text(256 if STAMP else 244, 256 if STAMP else 244)

def build():
    hdr = open("cdna_kernels/" + NAME + ".s.ref").read().split("; Override launch")[0]
    out = hdr + "; @launch grid=(256,1,1) block=(512,1,1) lds=163840\n"
    out += '.amdgcn_target "amdgcn-amd-amdhsa--gfx950"\n'
    out += k_main()
    out += ".text\ncode_end:\n"
    return out

if __name__ == "__main__":
    dst = sys.argv[1] if len(sys.argv) > 1 else "cdna_kernels/" + NAME + ".s"
    open(dst, "w").write(build())
    print("wrote", dst)
```

```python
import sys, math
from lint import lint, fix

NAME = "interleave_layers__softmax_full_mha__sliding_local_dilated__prompt"
S, D, H, DH = 2048, 640, 32, 20
XS = S*D*2
IMG = H*64*2560
QI = H*64*1280
OT = 0; OBT = XS; XM = 2*XS; XI = 3*XS
STM = 4*XS; STI = STM + S*64
QIMG = STI + S*64; KVIMG = QIMG + QI
CNT = KVIMG + IMG
C1 = CNT; C2 = C1 + 64*256; C3 = C2 + 34*256; C4 = C3 + 16*256; C0 = C4 + 16*256
LS = CNT + 65536
CS = LS + C4
U_A = 2*LS
U_B = U_A + 32768
WA_I = U_B + 163840
WOA_I = WA_I + 15*163840
WB_I = WOA_I + 819200
WOB_I = WB_I + 16*163840
STAMPS = WOB_I + 819200
WS_END = STAMPS + 16*262144
import os
STAMP = int(os.environ.get("STAMP", "0"))
ATTN_WAVES = 8
AV = os.environ.get("AV", "")
CSCALE = (DH ** -0.5) * math.log2(math.e)
import struct
def fbits(x): return "0x%08x" % struct.unpack("<I", struct.pack("<f", x))[0]

FM = [(0,16),(32,48),(80,96),(112,128),(64,144)]
def FX(ks, t):
    return 160*(ks//5) + FM[ks%5][t]

class KB:
    def __init__(s, name):
        s.name = name; s.L = []; s.vm = []; s.lg = []; s.cap = None
    def e(s, line):
        if s.cap is not None: s.cap.append(('e', line, None))
        else: s.L.append("    " + line)
    def capture(s, fn):
        s.cap = []; fn(); c = s.cap; s.cap = None
        return [x for x in c if not (x[0] == 'e' and x[1].startswith('s_nop'))]
    def fill(s, lst, n=1):
        for _ in range(n):
            if not lst: return
            kind, a, b = lst.pop(0)
            if kind == 'e':
                s.e(a)
                if a.startswith('s_cmp'):
                    while lst and lst[0][0] == 'e' and lst[0][1].startswith('s_cselect'): s.e(lst.pop(0)[1])
            elif kind == 'ds': s.dsop(a, b)
            elif kind == 'wvm': s.waitvm(a)
            elif kind == 'wlg': s.waitlg(a)
    def c(s, txt): s.L.append("    ; " + txt)
    def label(s, l): s.L.append(l + ":")
    def vmop(s, line, tag=None): s.e(line); s.vm.append(tag); assert len(s.vm) <= 63, (s.name, len(s.vm))
    def dsop(s, line, tag=None):
        if s.cap is not None: s.cap.append(('ds', line, tag)); return
        s.e(line); s.lg.append(tag)
    def _n(s, lst, tag):
        idx = max(i for i, t in enumerate(lst) if t == tag)
        return idx
    def waitvm(s, tag):
        if s.cap is not None: s.cap.append(('wvm', tag, None)); return
        if tag not in s.vm: return
        i = s._n(s.vm, tag); n = len(s.vm) - 1 - i
        s.e(f"s_waitcnt vmcnt({n})"); s.vm = s.vm[i+1:]
    def waitlg(s, tag):
        if s.cap is not None: s.cap.append(('wlg', tag, None)); return
        if tag not in s.lg: return
        i = s._n(s.lg, tag); n = len(s.lg) - 1 - i
        if n > 15: n = 15; i = len(s.lg) - 1 - n
        s.e(f"s_waitcnt lgkmcnt({n})"); s.lg = s.lg[i+1:]
    def waitall(s):
        s.e("s_waitcnt vmcnt(0) lgkmcnt(0)"); s.vm = []; s.lg = []
    def srd(s, r, base, nbytes):
        s.e(f"s_mov_b32 s{r}, s{base}")
        s.e(f"s_and_b32 s{r+1}, s{base+1}, 0xffff")
        s.e(f"s_mov_b32 s{r+2}, {nbytes}")
        s.e(f"s_mov_b32 s{r+3}, 0x20000")
    def stamp(s, i):
        if not STAMP: return
        op = "s_memrealtime" if os.environ.get("RT") else "s_memtime"
        s.e(f"{op} s[{64+2*i}:{65+2*i}]" if i < 10 else f"{op} s[{72+2*i}:{73+2*i}]")
    def rstamp(s, i):
        if not STAMP: return
        s.e(f"s_memrealtime s[{64+2*i}:{65+2*i}]")
    def dump(s, n=8, slot="0", wave="s18"):
        if not STAMP: return
        e = s.e
        if os.environ.get("DBG"):
            keep = {"0": [(1, 246), (3, 247), (6, 248)], "1": [(2, 249), (5, 250), (14, 251)], "3": [(6, 252)], "2": [(2, 253), (5, 254), (14, 255)]}[slot]
            e("s_waitcnt lgkmcnt(0)")
            if n < 7 or (slot == "0" and n == 8): return
            for i, v in keep: e(f"v_mov_b32 v{v}, s{64+2*i if i < 10 else 72+2*i}")
            if slot == "2":
                e(f"s_cmp_eq_u32 s2, {os.environ['DBG']}"); e("s_cbranch_scc0 dbg_skip"); e("s_cmp_eq_u32 s18, 0"); e("s_cbranch_scc0 dbg_skip")
                e("s_load_dwordx2 s[84:85], s[0:1], 56"); e("s_memrealtime s[86:87]"); e("s_waitcnt lgkmcnt(0)")
                s.srd(88, 84, 256); e("s_mov_b64 exec, 1"); e("v_mov_b32 v0, 0"); e("v_mov_b32 v245, s86"); e("v_sub_u32 v245, v245, v246")
                for i in range(9):
                    e(f"v_sub_u32 v{247+i}, v{247+i}, v246"); e(f"buffer_store_dword v{247+i}, v0, s[88:91], 0 offen offset:{4*i}")
                e("buffer_store_dword v245, v0, s[88:91], 0 offen offset:36")
                s.label("dbg_skip")
            return
        e("s_memrealtime s[86:87]"); e("s_waitcnt lgkmcnt(0)")
        e("s_mov_b64 exec, 1")
        e(f"s_lshl_b32 s84, {slot}, 18")
        e("s_lshl_b32 s85, s2, 3"); e(f"s_add_u32 s85, s85, {wave}"); e("s_lshl_b32 s85, s85, 6"); e(f"s_add_u32 s85, s85, {STAMPS}"); e("s_add_u32 s85, s85, s84")
        e("v_mov_b32 v244, 0")
        for i in range(n):
            e(f"v_mov_b32 v245, s{64+2*i if i < 10 else 72+2*i}")
            e(f"buffer_store_dword v245, v244, s[12:15], s85 offen offset:{4*i}")
        e("v_mov_b32 v245, s86"); e("buffer_store_dword v245, v244, s[12:15], s85 offen offset:60")
        e("s_mov_b64 exec, -1")
    def text(s, vgpr, accum, sgpr=102):
        s.L, added = fix(s.L)
        if os.environ.get("V"): print(s.name, "auto nops:", added, "lines:", len(s.L))
        out = [".text", f".globl {s.name}", ".p2align 8", f".type {s.name},@function", f"{s.name}:"]
        out += s.L
        out += ['.section .rodata,"a"', ".p2align 6", f".amdhsa_kernel {s.name}",
                f"  .amdhsa_next_free_vgpr {vgpr}", f"  .amdhsa_next_free_sgpr {sgpr}", f"  .amdhsa_accum_offset {accum}",
                "  .amdhsa_group_segment_fixed_size 0", "  .amdhsa_kernarg_size 72", "  .amdhsa_user_sgpr_count 2",
                "  .amdhsa_user_sgpr_kernarg_segment_ptr 1", "  .amdhsa_system_sgpr_workgroup_id_x 1", ".end_amdhsa_kernel"]
        nb = lint(s.L, s.name)
        assert nb == 0, f"{nb} hazards in {s.name}"
        return "\n".join(out) + "\n"
    def allred32(s, op, v, t):
        s.e(f"v_mov_b32 v{t}, v{v}"); s.e("s_nop 1")
        s.e(f"v_permlane32_swap_b32 v{v}, v{t}"); s.e("s_nop 1")
        s.e(f"{op} v{v}, v{v}, v{t}")
    def allred16(s, op, v, t):
        s.e(f"v_mov_b32 v{t}, v{v}"); s.e("s_nop 1")
        s.e(f"v_permlane16_swap_b32 v{v}, v{t}"); s.e("s_nop 1")
        s.e(f"{op} v{v}, v{v}, v{t}")

def vr(a, n): return f"v[{a}:{a+n-1}]" if n > 1 else f"v{a}"
def ar(a, n): return f"a[{a}:{a+n-1}]" if n > 1 else f"a{a}"

def stats_finish(k, s1, s2, mean, rstd, t):
    e = k.e
    e(f"v_mul_f32 v{mean}, {fbits(1.0/D)}, v{s1}")
    e(f"v_mul_f32 v{t}, {fbits(1.0/D)}, v{s2}")
    e(f"v_fma_f32 v{t}, -v{mean}, v{mean}, v{t}")
    e(f"v_max_f32 v{t}, 0, v{t}")
    e(f"v_add_f32 v{t}, {fbits(1e-5)}, v{t}")
    e(f"v_rsq_f32 v{rstd}, v{t}")
    e("s_nop 0")

def split3(k, src, d, t, kind, maskv=None):
    e = k.e
    if kind == 'm':
        e(f"v_xor_b32 v{t+1}, 0x80000000, v{src}"); src = t+1
    e(f"v_and_b32 v{t}, 0xffff0000, v{src}")
    e(f"v_sub_f32 v{t+2}, v{src}, v{t}")
    if kind == 'u':
        e(f"v_cvt_pk_bf16_f32 v{d}, v{t}, v{t+2}")
        e(f"v_lshrrev_b32 v{d+1}, 16, v{t}")
    else:
        e(f"v_cvt_pk_bf16_f32 v{d}, v{t}, v{t}")
        e(f"v_cvt_pk_bf16_f32 v{d+1}, v{t+2}, 0")
    if maskv is not None:
        e(f"v_and_b32 v{d}, v{d}, v{maskv}"); e(f"v_and_b32 v{d+1}, v{d+1}, v{maskv}")

SC = "sc1"
EARLY = int(os.environ.get('EARLY', '6'))
ENV = lambda n, d: int(os.environ.get(n, d))

def ids_mt(k):
    k.e("s_lshl_b32 s22, s20, 1"); k.e("s_and_b32 s23, s21, 1"); k.e("s_add_u32 s16, s22, s23"); k.e("s_lshr_b32 s17, s21, 1")
def ids_rt(k):
    k.e("s_lshl_b32 s22, s20, 2"); k.e("s_and_b32 s23, s21, 3"); k.e("s_add_u32 s16, s22, s23"); k.e("s_lshr_b32 s17, s21, 2")

LW = 163824
PV_ = 240
def lw_init(k):
    e = k.e
    e(f"v_mov_b32 v{PV_+3}, {LW}")
    for i in range(3): e(f"v_mov_b32 v{PV_+i}, 0")
    e(f"ds_write_b96 v{PV_+3}, v[{PV_}:{PV_+2}]"); e(f"ds_write_b32 v{PV_+3}, v{PV_} offset:12")

def lwc_init(k):
    k.e(f"v_mov_b32 v{PV_+3}, {LW-8}"); k.e(f"v_mov_b32 v{PV_}, 0"); k.e(f"v_mov_b32 v{PV_+1}, 0")
    k.e(f"ds_write_b64 v{PV_+3}, v[{PV_}:{PV_+1}]"); k.e("s_waitcnt lgkmcnt(0)")

def signal(k, tag, word, nw, addr_code, younger=0, srd="s[8:11]"):
    e = k.e
    addr_code()
    e(f"v_mov_b32 v{PV_+3}, {LW-8}"); e(f"v_mov_b32 v{PV_}, 1")
    e("s_mov_b64 exec, 1")
    assert younger == 0
    e("s_waitcnt vmcnt(0)"); k.vm = []
    if tag == os.environ.get("FOC"): k.stamp(2)
    e(f"ds_add_rtn_u32 v{PV_+2}, v{PV_+3}, v{PV_} offset:{8*word+8}")
    e("s_waitcnt lgkmcnt(0)"); k.lg = []
    e(f"v_readfirstlane_b32 s49, v{PV_+2}")
    e("s_mov_b64 exec, s[56:57]")
    e(f"s_cmp_eq_u32 s49, {nw-1}"); e(f"s_cbranch_scc0 {k.name}_{tag}_sg")
    e(f"buffer_atomic_add v{PV_}, v{PV_+1}, {srd}, s48 offen {SC}")
    if os.environ.get("FOC2") == tag: k.stamp(4)
    k.label(f"{k.name}_{tag}_sg")
    e("s_mov_b64 exec, -1")

def wait_go(k, tag, word, poll_code):
    e = k.e; nm = f"{k.name}_{tag}"
    e(f"v_mov_b32 v{PV_+3}, {LW-8}"); e("s_mov_b32 s49, 0")
    if poll_code:
        e("s_cmp_eq_u32 s18, 0"); e(f"s_cbranch_scc0 {nm}_sp")
        poll_code()
        e("s_mov_b64 exec, s[56:57]")
        if os.environ.get("FOC") == "g" + tag: k.stamp(2)
        k.label(f"{nm}_pl")
        e(f"v_mov_b32 v{PV_}, 0")
        e(f"buffer_atomic_add v{PV_}, v{PV_+1}, s[8:11], s48 offen sc0 sc1")
        e("s_add_u32 s49, s49, 1")
        e("s_waitcnt vmcnt(0)")
        e(f"v_cmp_ge_u32 vcc, v{PV_}, v{PV_+2}")
        e("s_cmp_ge_u32 s49, 0x20000"); e(f"s_cbranch_scc1 {nm}_px")
        e("s_cmp_eq_u64 vcc, exec"); e(f"s_cbranch_scc0 {nm}_pl")
        k.label(f"{nm}_px")
        if os.environ.get("FOC") == "g" + tag: e("s_add_u32 s70, s64, s49")
        e("s_mov_b64 exec, 1"); e(f"v_mov_b32 v{PV_}, 1")
        e(f"ds_write_b32 v{PV_+3}, v{PV_} offset:{8*word+12}")
        e(f"s_branch {nm}_go")
    k.label(f"{nm}_sp")
    e("s_sleep 1")
    e(f"ds_read_b32 v{PV_}, v{PV_+3} offset:{8*word+12}")
    e("s_add_u32 s49, s49, 1")
    e("s_waitcnt lgkmcnt(0)")
    e(f"v_readfirstlane_b32 s44, v{PV_}")
    e("s_cmp_ge_u32 s49, 0x400000"); e(f"s_cbranch_scc1 {nm}_go")
    e("s_cmp_eq_u32 s44, 0"); e(f"s_cbranch_scc1 {nm}_sp")
    k.label(f"{nm}_go")
    e("s_mov_b64 exec, -1")

class Wdma:
    def __init__(s, k, n, base=50, tag="w"): s.k = k; s.n = n; s.i = 0; s.base = base; s.tag = tag
    def one(s, i):
        s.k.e(f"s_add_u32 m0, s45, {4096*i}"); s.k.e(f"s_add_u32 s32, s{s.base}, {4096*i}")
        s.k.vmop(f"buffer_load_dwordx4 v3, s[12:15], s32 offen {SC} lds", f"{s.tag}{i}")
    def go(s, upto):
        while s.i < min(upto, s.n): s.one(s.i); s.i += 1
    def rng(s, a, b, thr=0):
        for i in range(a, b):
            s.one(i)
            if thr and len(s.k.vm) >= thr: s.k.e(f"s_waitcnt vmcnt({thr-1})"); s.k.vm = s.k.vm[len(s.k.vm)-thr+1:]

SIDE_SV = 152; SIDE_D = 160; SIDE_U = 192
def side_setup(k):
    e = k.e; nm = k.name
    e("s_load_dwordx4 s[84:87], s[0:1], 32"); e("s_load_dwordx2 s[88:89], s[0:1], 16")
    e("s_mul_i32 s49, s2, 3"); e("s_add_u32 s49, s49, s18"); e("s_sub_u32 s49, s49, 4")
    e("s_sub_u32 s32, s18, 4"); e("s_cmp_lt_u32 s32, 3"); e("s_cselect_b32 s49, s49, 959"); e("s_cmp_eq_u32 s3, 0"); e("s_cselect_b32 s49, s49, 959")
    e("s_lshl_b32 s35, s39, 13"); e("s_add_u32 s35, s35, 128000")
    e("s_mul_i32 s36, s49, 3277"); e("s_lshr_b32 s36, s36, 16"); e("s_mul_i32 s37, s36, 20"); e("s_sub_u32 s37, s49, s37")
    e("v_and_b32 v140, 15, v1"); e("v_lshrrev_b32 v141, 2, v140"); e("v_and_b32 v142, 3, v1")
    e("s_waitcnt lgkmcnt(0)")
    SV = SIDE_SV
    e("v_lshrrev_b32 v136, 4, v1")
    for r in list(range(SV, SV+5)) + list(range(144, 152)): e(f"v_mov_b32 v{r}, 0")
    e("s_mov_b32 s5, 0")
    e("s_mov_b32 s53, 0x7ff00000"); e("s_mov_b32 s54, s53"); e("s_mov_b32 s58, s53")
    e("s_cmp_ge_u32 s49, 320"); e(f"s_cbranch_scc1 {nm}_ss1")
    k.srd(88, 84, D*3*D*2)
    e(f"s_mul_i32 s5, s37, {32*3840}"); e("s_mul_i32 s32, s36, 80"); e("s_add_u32 s5, s5, s32")
    for par in range(2):
        e(f"v_add_u32 v137, {4*par}, v136"); e("v_lshlrev_b32 v137, 1, v137"); e("v_xor_b32 v137, v137, v140"); e("v_min_u32 v137, 14, v137")
        e("v_mul_u32_u24 v138, 52, v137"); e("v_lshrrev_b32 v138, 8, v138"); e("v_mul_u32_u24 v138, 1200, v138"); e("v_lshl_add_u32 v138, v137, 4, v138")
        e("v_mul_u32_u24 v137, 3840, v136"); e(f"v_add_u32 v{SV+par}, v138, v137")
    e("v_and_b32 v138, 1, v136"); e("v_lshl_add_u32 v138, v138, 2, v141"); e("v_lshlrev_b32 v138, 5, v138")
    e("v_lshl_add_u32 v137, v136, 3, v141"); e("v_lshlrev_b32 v137, 8, v137"); e("v_add_u32 v137, s35, v137")
    for F in range(8):
        if F < 6:
            e("v_lshlrev_b32 v139, 3, v142")
            if F: e(f"v_add_u32 v139, {40*F}, v139")
        elif F == 6: e("v_mul_u32_u24 v139, 40, v142"); e("v_add_u32 v139, 32, v139")
        else: e("v_and_b32 v139, 1, v142"); e("v_mul_u32_u24 v139, 40, v139"); e("v_add_u32 v139, 192, v139")
        e("v_xor_b32 v139, v139, v138"); e(f"v_add_u32 v{144+F}, v139, v137")
    e("s_mul_i32 s53, s36, 163840"); e("s_lshl_b32 s54, s37, 13"); e("s_add_u32 s53, s53, s54"); e(f"s_add_u32 s53, s53, {WB_I}"); e("s_add_u32 s54, s53, 4096"); e("s_mov_b32 s58, s54")
    e(f"s_branch {nm}_ss2")
    k.label(f"{nm}_ss1")
    e("s_cmp_ge_u32 s36, 24"); e("s_cselect_b32 s32, s86, s88"); e("s_cselect_b32 s33, s87, s89")
    k.srd(88, 32, D*D*2)
    e("s_cmp_ge_u32 s49, 640"); e(f"s_cbranch_scc1 {nm}_ss2")
    e("s_and_b32 s32, s36, 7"); e("s_mul_i32 s32, s32, 160")
    e("s_mul_i32 s5, s37, 40"); e("s_sub_u32 s34, s37, 16"); e("s_mul_i32 s34, s34, 160"); e("s_add_u32 s34, s34, 16")
    e("s_cmp_lt_u32 s37, 16"); e("s_cselect_b32 s5, s5, s34"); e("s_cselect_b32 s33, 4, 2"); e("s_cselect_b32 s34, 4, 16")
    e("s_mul_i32 s5, s5, 1280"); e("s_add_u32 s5, s5, s32")
    for i in range(5):
        e(f"v_add_u32 v137, {64*i}, v1"); e("v_mul_u32_u24 v138, 6554, v137"); e("v_lshrrev_b32 v138, 16, v138")
        e("v_lshrrev_b32 v139, s33, v138"); e("v_mul_u32_u24 v139, s34, v139"); e("v_mul_u32_u24 v139, 1280, v139")
        e("v_mul_u32_u24 v138, 1120, v138"); e("v_add_u32 v139, v139, v138"); e(f"v_lshl_add_u32 v{SV+i}, v137, 4, v139")
    e("v_lshlrev_b32 v137, 2, v136"); e("s_mov_b32 s32, 2560")
    e("s_cmp_ge_u32 s36, 24"); e(f"s_cbranch_scc1 {nm}_sf3"); e("s_cmp_ge_u32 s37, 16"); e(f"s_cbranch_scc1 {nm}_sf3")
    e("v_lshrrev_b32 v137, 1, v136"); e("v_lshlrev_b32 v137, 4, v137"); e("v_and_b32 v138, 1, v136"); e("v_lshl_add_u32 v137, v138, 2, v137"); e("s_mov_b32 s32, 1280")
    k.label(f"{nm}_sf3")
    e("v_add_u32 v137, v137, v141"); e("v_mul_u32_u24 v137, 160, v137"); e("v_add_u32 v137, s35, v137")
    e("s_and_b32 s33, s36, 1"); e("s_lshl_b32 s34, s33, 5"); e("s_xor_b32 s33, s33, 1"); e("s_lshl_b32 s33, s33, 7")
    e("v_lshl_add_u32 v144, v142, 4, v137"); e("v_add_u32 v144, s34, v144"); e("v_add_u32 v145, s32, v144")
    e("v_lshl_add_u32 v146, v142, 3, v137"); e("v_add_u32 v146, s33, v146"); e("v_add_u32 v147, s32, v146")
    e("s_cmp_ge_u32 s36, 24"); e(f"s_cselect_b32 s53, {WOB_I-WOA_I}, 0"); e("s_and_b32 s54, s36, 7"); e("s_mul_i32 s54, s54, 102400"); e("s_add_u32 s53, s53, s54")
    e("s_mul_i32 s54, s37, 5120"); e("s_add_u32 s53, s53, s54"); e(f"s_add_u32 s53, s53, {WOA_I}"); e("s_add_u32 s54, s53, 4096")
    k.label(f"{nm}_ss2")
    e("s_lshl_b32 s38, s49, 9"); e(f"s_add_u32 s38, s38, {U_B}"); e("s_cmp_ge_u32 s49, 320"); e("s_cselect_b32 s38, 0x7ff00000, s38")
    e("v_lshlrev_b32 v143, 2, v1")
    e("s_cmp_lt_u32 s49, 640"); e("s_cselect_b32 s4, 2, 0"); e("s_cmp_lt_u32 s49, 320"); e("s_cselect_b32 s4, 1, s4")
    e("s_and_b32 s55, s49, 15"); e("s_lshl_b32 s55, s55, 8"); e(f"s_add_u32 s55, s55, {CS}")

def ph_attn(k):
    e = k.e; nm = k.name
    KA, KT, VA = 4, 5, 6
    Q = [8, 14]; KF = [24, 32]; VF = [40, 48]; SS = [56, 72]; P = 88; O = [96, 112]; PF = 208
    SCR = 128000; TOP = 128000
    ids_rt(k)
    e("v_and_b32 v3, 31, v1"); e("v_lshrrev_b32 v7, 5, v1")
    e("v_lshlrev_b32 v22, 4, v1"); e("v_lshlrev_b32 v23, 3, v3")
    e("s_mul_i32 s19, s16, 163840")
    e("s_lshr_b32 s41, s18, 2")
    e("s_lshl_b32 s23, s17, 3"); e("s_lshl_b32 s22, s39, 1"); e("s_add_u32 s23, s23, s22")
    e("s_add_u32 s23, s23, s41")
    e("s_lshr_b32 s22, s19, 1"); e(f"s_add_u32 s22, s22, {QIMG}")
    e("s_mul_i32 s24, s23, 1280"); e("s_add_u32 s24, s24, s22"); e("s_xor_b32 s40, s23, 1"); e("s_mul_i32 s40, s40, 1280"); e("s_add_u32 s40, s40, s22")
    e("s_mul_i32 s42, s41, 2560"); e(f"s_add_u32 s42, s42, {TOP}")
    e("s_lshl_b32 s25, s18, 10")
    e(f"s_add_u32 s26, s19, {KVIMG}")
    rnd = [0]
    def dma():
        i = rnd[0]; rnd[0] += 1
        if i == 4:
            e("s_cmp_lt_u32 s18, 3"); e("s_cselect_b32 s27, 163840, 0"); e("s_add_u32 s27, s27, s25"); e("s_sub_u32 m0, s27, 3072")
        else: e(f"s_add_u32 m0, s25, {(TOP + 8192*i) if i < 4 else 8192*i - 35840}")
        e("s_add_u32 s27, s26, m0")
        k.vmop(f"buffer_load_dwordx4 v22, s[8:11], s27 offen {SC} lds", f"i{i}")
    e(f"v_add_u32 v{KA}, s42, v22")
    e(f"v_add_u32 v{KT}, s42, v23"); e(f"v_add_u32 v{KT}, 1024, v{KT}")
    e("v_mul_u32_u24 v21, 20, v7"); e("v_add_u32 v21, v21, v3"); e("v_lshlrev_b32 v21, 4, v21")
    e("v_add_u32 v21, 1280, v21"); e(f"v_add_u32 v{VA}, s42, v21")
    e("s_mov_b32 s28, 0x000fffff"); e("s_mov_b32 s29, 0x000fffff")
    e("v_cmp_eq_u32 vcc, 20, v3"); e("v_mov_b32 v20, 0x3f803f80"); e("s_nop 0")
    e("v_cndmask_b32 v20, 0, v20, vcc")
    for r in range(16): e(f"v_mov_b32 v{VF[0]+r}, v20")
    for r in range(32): e(f"v_mov_b32 v{O[0]+r}, 0")
    for r in range(4): e(f"v_mov_b32 v{P+4+r}, 0")
    e("v_subrev_u32 v30, 1, v7")
    e("s_lshl_b32 s43, s21, 2"); e("s_add_u32 s43, s43, s39"); e("s_mul_i32 s43, s43, 27648"); e(f"s_add_u32 s43, s43, {WOA_I}")
    e("s_mul_i32 s32, s23, 40960"); e(f"s_add_u32 s32, s32, {OT}")
    e("s_lshr_b32 s51, s16, 1"); e("s_lshl_b32 s51, s51, 10"); e("s_and_b32 s34, s16, 1"); e("s_lshl_b32 s34, s34, 9")
    e("s_add_u32 s51, s51, s34"); e("s_add_u32 s51, s51, s32")
    e("s_lshr_b32 s52, s16, 3"); e("s_add_u32 s52, s52, 16"); e("s_lshl_b32 s52, s52, 10"); e("s_add_u32 s52, s52, s32")
    e("s_and_b32 s35, s16, 3"); e("s_lshl_b32 s35, s35, 8"); e("s_add_u32 s52, s52, s35")
    e("s_bfe_u32 s35, s16, 0x10002"); e("s_lshl_b32 s35, s35, 3"); e("s_add_u32 s52, s52, s35")
    e("v_lshrrev_b32 v38, 4, v3"); e("v_mul_u32_u24 v38, 20480, v38"); e("v_and_b32 v39, 15, v3")
    e("v_lshl_add_u32 v38, v39, 4, v38"); e("v_lshl_add_u32 v39, v7, 8, v38")
    e("s_mul_i32 s32, s18, 3072"); e("s_xor_b32 s33, s18, 4"); e("s_mul_i32 s33, s33, 3072")
    e(f"v_add_u32 v132, {SCR}, v22"); e("v_add_u32 v133, s33, v132"); e("v_add_u32 v132, s32, v132")
    def c0(nl):
        e("s_lshl_b32 s48, s17, 8"); e(f"s_add_u32 s48, s48, {C0}"); e(f"v_mov_b32 v{PV_+2}, 16")
        e("s_mul_i32 s32, s16, 20"); e("s_add_u32 s33, s32, 19"); e("s_lshr_b32 s32, s32, 7"); e("s_lshr_b32 s33, s33, 7"); e("s_sub_u32 s33, s33, s32")
        e(f"v_lshrrev_b32 v{PV_+1}, 1, v1"); e(f"v_mul_u32_u24 v{PV_+1}, 5, v{PV_+1}"); e(f"v_and_b32 v{PV_}, s33, v1"); e(f"v_add3_u32 v{PV_+1}, v{PV_+1}, v{PV_}, s32")
        e(f"v_lshlrev_b32 v{PV_+1}, 11, v{PV_+1}"); e("s_mov_b64 s[56:57], 63")
    side_setup(k)
    e("v_lshlrev_b32 v134, 11, v1"); e("s_lshl_b32 s32, s17, 8"); e(f"s_add_u32 s32, s32, {C0}"); e("v_add_u32 v134, s32, v134")
    e("v_lshlrev_b32 v135, 8, v1"); e(f"v_add_u32 v135, {CS - 4096}, v135"); e("v_cmp_gt_u32 vcc, 16, v1")
    e("v_cndmask_b32 v134, v135, v134, vcc"); e("v_cndmask_b32 v131, 40, 16, vcc"); e("v_mov_b32 v135, 64")
    wait_go(k, "t", -1, lambda: c0(6))
    k.stamp(2)
    dma()
    for x in range(2):
        k.vmop(f"buffer_load_dwordx4 {vr(Q[x],4)}, v22, s[8:11], s{(24,40)[x]} offen {SC}", "q")
        k.vmop(f"buffer_load_dwordx2 {vr(Q[x]+4,2)}, v23, s[8:11], s{(24,40)[x]} offen offset:1024 {SC}", "q")
    for _ in range(3): dma()
    k.waitvm("q")
    for x in range(2):
        e(f"v_and_b32 v{Q[x]+4}, v{Q[x]+4}, v30"); e(f"v_and_b32 v{Q[x]+5}, v{Q[x]+5}, v30")
    k.waitvm("i1"); e("s_barrier"); k.stamp(3)
    def rdK(buf, off):
        off *= 2
        e(f"ds_read_b128 {vr(KF[buf],4)}, v{KA} offset:{off}")
        e(f"ds_read_b64 {vr(KF[buf]+4,2)}, v{KT} offset:{off}")
    def rdV(buf, off):
        off *= 2
        e("s_mov_b64 exec, s[28:29]")
        e(f"ds_read_b128 {vr(VF[buf],4)}, v{VA} offset:{off}")
        e(f"ds_read_b128 {vr(VF[buf]+4,4)}, v{VA} offset:{off+640}")
        e("s_mov_b64 exec, -1")
    def qkm(x, kb): e(f"v_mfma_f32_32x32x16_bf16 {vr(SS[x],16)}, {vr(KF[kb],4)}, {vr(Q[x],4)}, 0")
    def qkt(x, kb): e(f"v_mfma_f32_32x32x8_bf16 {vr(SS[x],16)}, {vr(KF[kb]+4,2)}, {vr(Q[x]+4,2)}, {vr(SS[x],16)}")
    def pv(x, vb, u): e(f"v_mfma_f32_32x32x16_bf16 {vr(O[x],16)}, {vr(VF[vb]+4*u,4)}, {vr(P+4*u,4)}, {vr(O[x],16)}")
    def base(t):
        return 0 if t < 7 else 7 if t < 19 else 19 if t < 31 else 31
    def bump(regs, t):
        if t == 7:
            for r in regs: e(f"v_subrev_u32 v{r}, {TOP}, v{r}")
        elif t in (19, 31):
            for r in regs: e(f"v_add_u32 v{r}, {12*5120}, v{r}")
    def unit(x, t, extra=()):
        p = t % 2; s = SS[x]
        ex = lambda i: e(f"v_exp_f32 v{s+i}, v{s+i}")
        cv = lambda i: e(f"v_cvt_pk_bf16_f32 v{P+i}, v{s+2*i}, v{s+2*i+1}")
        kb = p if x == 0 else 1-p
        if x == 1: e("s_waitcnt lgkmcnt(2)" if t < 31 else "s_waitcnt lgkmcnt(0)")
        if not (x == 1 and t == 31): qkm(1-x, kb)
        if x == 1 and t + 2 < 32:
            bump((KA, KT), t+2); rdK(p, (t+2-base(t+2))*2560)
        for i in range(0, 4): ex(i)
        if x == 0:
            pv(1, 1-p, 1)
            if t + 1 < 32:
                bump((VA,), t+1); rdV(1-p, (t+1-base(t+1))*2560)
        else:
            pv(0, p, 1)
        for f_ in extra: f_()
        for i in range(4, 8): ex(i)
        for i in range(0, 4): cv(i)
        if not (x == 1 and t == 31): qkt(1-x, kb)
        for i in range(8, 12): ex(i)
        if x == 0: e(f"s_waitcnt lgkmcnt({4 if t < 31 else 0})")
        pv(x, p, 0)
        for i in range(12, 16): ex(i)
        for i in range(4, 8): cv(i)
    rdK(0, 0); rdV(0, 0); rdK(1, 2560)
    e("s_waitcnt lgkmcnt(4)")
    qkm(0, 0); e("s_nop 10"); qkt(0, 0); e("s_nop 10")
    SYN = {1: 3, 4: 7, 7: 19}; SW = ENV('SW', '27')
    T_SI, T_SR, T_SA, T_PF, T_LC = 8, ENV('TSR', '15'), 26, 11, 26
    hk = [0]
    def cond(test, fn):
        def g():
            hk[0] += 1; lab = f"{nm}_hk{hk[0]}"
            e(test); e(f"s_cbranch_scc0 {lab}"); fn(); k.label(lab)
        return g
    def prio1(): e("s_setprio 1")
    def pref():
        for _ in range(2): e(f"buffer_load_dwordx4 {vr(PF,4)}, v22, s[12:15], s43 offen {SC}"); e("s_add_u32 s43, s43, 1024")
    def side_issue():
        e("s_cmp_eq_u32 s4, 1"); e(f"s_cbranch_scc0 {nm}_i1")
        for i in range(8):
            e(f"s_add_u32 m0, s35, {1024*i}"); e(f"s_add_u32 s27, s5, {4*3840*i}")
            e(f"buffer_load_dwordx4 v{SIDE_SV+(i>>1)%2}, s[88:91], s27 offen nt lds")
        e(f"s_branch {nm}_i2")
        k.label(f"{nm}_i1")
        for i in range(5):
            e(f"s_add_u32 m0, s35, {1024*i}"); e("s_nop 0")
            e(f"buffer_load_dwordx4 v{SIDE_SV+i}, s[88:91], s5 offen nt lds")
        k.label(f"{nm}_i2")
    def side_read():
        e("s_waitcnt vmcnt(0)")
        e("s_cmp_eq_u32 s4, 1"); e(f"s_cbranch_scc0 {nm}_r1")
        for F in range(8):
            for t in range(2): e(f"ds_read_b64_tr_b16 {vr(SIDE_D+4*F+2*t,2)}, v{144+F} offset:{1024*t}")
        e(f"s_branch {nm}_r2")
        k.label(f"{nm}_r1")
        for nf in range(5):
            for t in range(2): e(f"ds_read_b64_tr_b16 {vr(SIDE_D+4*nf+2*t,2)}, v{144+t if nf < 4 else 146+t} offset:{64*(nf//2)+8*(nf%2) if nf < 4 else 0}")
        k.label(f"{nm}_r2")
    def side_done():
        e("s_waitcnt lgkmcnt(0)"); e(f"v_mov_b32 v{PV_+3}, {LW-8}"); e(f"v_mov_b32 v{PV_}, 1"); e("s_mov_b64 exec, 1")
        e(f"ds_add_u32 v{PV_+3}, v{PV_}"); e("s_mov_b64 exec, -1")
    UP = lambda F: SIDE_U + 4*F if F < 4 else 212 + 4*(F-4)
    def side_sum():
        for r in range(4): e(f"v_mov_b32 v{228+r}, 0x3f803f80")
        for F in range(8): e(f"v_mfma_f32_16x16x32_bf16 {vr(UP(F),4)}, v[228:231], {vr(SIDE_D+4*F,4)}, 0")
    def side_sum2():
        for q in range(2):
            for g in range(1, 4):
                e(f"v_cmp_eq_u32 vcc, {g}, v136"); e(f"v_cndmask_b32 v{UP(4*q)}, v{UP(4*q)}, v{UP(4*q+g)}, vcc")
            e(f"buffer_store_dword v{UP(4*q)}, v143, s[12:15], s38 offen offset:{256*q} {SC}")
    def side_store(F):
        return lambda: e(f"buffer_store_dwordx4 {vr(SIDE_D+4*F,4)}, v22, s[12:15], s{53 if F < 4 else 54 if F == 4 else 58} offen offset:{1024*(F%4)} {SC}")
    def side_arrive():
        e(f"v_mov_b32 v{PV_+1}, 0"); e(f"v_mov_b32 v{PV_}, 1"); e("s_waitcnt vmcnt(0)"); e("s_mov_b64 exec, 1")
        e(f"buffer_atomic_add v{PV_}, v{PV_+1}, s[12:15], s55 offen {SC}"); e("s_mov_b64 exec, -1")
    def late():
        e("s_mov_b32 exec_lo, 0xffff7fff"); e("s_mov_b32 exec_hi, 0"); e(f"buffer_load_dword v135, v134, s[12:15], 0 offen {SC}"); e("s_mov_b64 exec, -1")
    def init_words(): lw_init(k); e(f"v_mov_b32 v{PV_+3}, {LW-8}"); e(f"ds_write_b32 v{PV_+3}, v{PV_}")
    side = "s_cmp_lg_u32 s4, 0"
    for t in range(32):
        if t in SYN: k.waitvm(f"i{SYN[t]}"); e("s_barrier")
        x0, x1 = [], []
        if rnd[0] < 20: x0 += [dma, dma]; x1 += [dma, dma]
        if t == 6: x1.append(lambda: None)
        if t == 7: x0.append(cond("s_cmp_eq_u32 s18, 4", init_words))
        if t == 8: e("s_waitcnt lgkmcnt(2)"); e("s_barrier"); cond("s_cmp_ge_u32 s18, 4", prio1)()
        if t == T_SI: x1.append(cond(side, side_issue))
        if t == T_SR: x1.append(cond(side, side_read))
        if t == T_SR + 1: x0.append(cond("s_bitcmp1_b32 0x70, s18", side_done)); x1.append(cond("s_cmp_eq_u32 s4, 1", side_sum))
        if t == T_SR + 2: x0.append(cond("s_cmp_eq_u32 s4, 1", side_sum2))
        if T_SR + 1 <= t < T_SR + 9: x1.append(cond(side, side_store(t - T_SR - 1)))
        if t == T_SA: x0.append(cond(side, side_arrive))
        if T_PF <= t < T_PF + 14 and ENV('PFW', '1'): x0.append(cond("s_cmp_lt_u32 s18, 4", pref))
        if t == T_LC: x1.append(cond("s_cmp_eq_u32 s18, 0", late))
        if t == SW: x1.append(lambda: e("s_setprio 0"))
        if t == 31: x0.append(lambda: (e(f"v_mov_b32 v{PV_+3}, {LW-8}"), e(f"ds_read_b32 v{PV_+2}, v{PV_+3}")))
        unit(0, t, x0); unit(1, t, x1)
    pv(1, 1, 1); k.stamp(4)
    e("s_mov_b32 s30, 0")
    e(f"s_mov_b32 s32, {fbits(2.0**-60)}"); e(f"s_mov_b32 s33, {fbits(2.0**100)}"); e(f"s_mov_b32 s34, {fbits(2.0**126)}")
    e(f"v_readfirstlane_b32 s36, v{PV_+2}"); e("s_cmp_lt_u32 s36, 3"); e(f"s_cbranch_scc1 {nm}_scr")
    k.label(f"{nm}_scrok")
    e("s_nop 4")
    for i in range(3): e(f"ds_write_b128 v132, {vr(O[1]+4*i,4)} offset:{1024*i}")
    e("s_waitcnt vmcnt(0)"); e("v_cmp_gt_u32 vcc, v131, v135"); e(f"s_cbranch_vccnz {nm}_late")
    k.label(f"{nm}_lok")
    e("s_waitcnt lgkmcnt(0)"); e("s_barrier")
    for i in (2, 0, 1): e(f"ds_read_b128 {vr(SS[0]+4*i,4)}, v133 offset:{1024*i}")
    OO = O[0]
    e("s_waitcnt lgkmcnt(2)")
    for r in range(8, 12): e(f"v_add_f32 v{OO+r}, v{OO+r}, v{SS[0]+r}")
    e("s_waitcnt lgkmcnt(0)")
    for r in range(8): e(f"v_add_f32 v{OO+r}, v{OO+r}, v{SS[0]+r}")
    k.label(f"{nm}_chk")
    e(f"v_mov_b32 v30, v{OO+8}"); e(f"v_mov_b32 v31, v{OO+8}")
    e(f"v_max3_f32 v28, abs(v{OO}), abs(v{OO+1}), abs(v{OO+2})")
    e("v_permlane32_swap_b32 v30, v31")
    for r in range(3, 11, 2): e(f"v_max3_f32 v28, abs(v{OO+r}), abs(v{OO+r+1}), v28")
    e(f"v_max_f32 v28, abs(v{OO+11}), v28")
    e("v_cmp_le_f32 vcc, s32, v31"); e("v_cmp_ge_f32 s[36:37], s33, v31"); e("v_cmp_gt_f32 s[40:41], s34, v28")
    e("v_rcp_f32 v31, v31")
    e("s_and_b64 s[36:37], s[36:37], vcc"); e("s_and_b64 s[36:37], s[36:37], s[40:41]")
    e("s_cmp_eq_u64 s[36:37], -1"); e(f"s_cbranch_scc0 {nm}_slow")
    def slowpath():
        k.label(f"{nm}_late")
        e("s_mov_b32 s49, 0")
        k.label(f"{nm}_late1")
        e("s_sleep 8"); late(); e("s_add_u32 s49, s49, 1"); e("s_waitcnt vmcnt(0)")
        e("v_cmp_gt_u32 vcc, v131, v135"); e("s_cmp_ge_u32 s49, 0x20000"); e(f"s_cbranch_scc1 {nm}_lok"); e(f"s_cbranch_vccnz {nm}_late1")
        e(f"s_branch {nm}_lok")
        k.label(f"{nm}_scr")
        e("s_mov_b32 s49, 0")
        k.label(f"{nm}_scr1")
        e(f"ds_read_b32 v{PV_+2}, v{PV_+3}"); e("s_add_u32 s49, s49, 1"); e("s_waitcnt lgkmcnt(0)"); e(f"v_readfirstlane_b32 s36, v{PV_+2}")
        e("s_cmp_ge_u32 s49, 0x400000"); e(f"s_cbranch_scc1 {nm}_scrok"); e("s_cmp_lt_u32 s36, 3"); e(f"s_cbranch_scc1 {nm}_scr1")
        e(f"s_branch {nm}_scrok")
        k.label(f"{nm}_slow")
        e("s_cmp_eq_u32 s30, 0"); e(f"s_cbranch_scc0 {nm}_fin")
        e("s_mov_b32 s30, 1")
        e("s_waitcnt vmcnt(0)")
        NM = O[1]
        e("v_mov_b32 v32, 0xff800000")
        def slowqk(c):
            e(f"buffer_load_dwordx4 {vr(KF[0],4)}, v22, s[8:11], s27 offen {SC}")
            e(f"buffer_load_dwordx2 {vr(KF[0]+4,2)}, v23, s[8:11], s27 offen offset:1024 {SC}")
            e("s_waitcnt vmcnt(0)")
            e(f"v_mfma_f32_32x32x16_bf16 {vr(SS[0],16)}, {vr(KF[0],4)}, {vr(Q[0],4)}, {c}"); e("s_nop 10")
            e(f"v_mfma_f32_32x32x8_bf16 {vr(SS[0],16)}, {vr(KF[0]+4,2)}, {vr(Q[0]+4,2)}, {vr(SS[0],16)}"); e("s_nop 12")
        e(f"s_add_u32 s27, s19, {KVIMG}"); e("s_mov_b32 s31, 0")
        k.label(f"{nm}_mx")
        slowqk("0")
        for r in range(0, 16, 2): e(f"v_max3_f32 v32, v{SS[0]+r}, v{SS[0]+r+1}, v32")
        e("s_add_u32 s27, s27, 2560")
        e("s_add_u32 s31, s31, 1"); e("s_cmp_lt_u32 s31, 64"); e(f"s_cbranch_scc1 {nm}_mx")
        k.allred32("v_max_f32", 32, 33)
        e("v_xor_b32 v32, 0x80000000, v32")
        for r in range(16): e(f"v_mov_b32 v{NM+r}, v32")
        for r in range(16): e(f"v_mov_b32 v{OO+r}, 0")
        for r in range(8): e(f"v_mov_b32 v{VF[0]+r}, v20")
        e(f"s_add_u32 s27, s19, {KVIMG}"); e("s_mov_b32 s31, 0")
        k.label(f"{nm}_sl")
        e("s_mov_b64 exec, s[28:29]")
        e(f"buffer_load_dwordx4 {vr(VF[0],4)}, v21, s[8:11], s27 offen {SC}")
        e(f"buffer_load_dwordx4 {vr(VF[0]+4,4)}, v21, s[8:11], s27 offen offset:640 {SC}")
        e("s_mov_b64 exec, -1")
        slowqk(vr(NM,16))
        for i in range(16): e(f"v_exp_f32 v{SS[0]+i}, v{SS[0]+i}")
        e("s_nop 0")
        for i in range(8): e(f"v_cvt_pk_bf16_f32 v{P+i}, v{SS[0]+2*i}, v{SS[0]+2*i+1}")
        e("s_nop 1")
        pv(0, 0, 0); pv(0, 0, 1)
        e("s_add_u32 s27, s27, 2560")
        e("s_add_u32 s31, s31, 1"); e("s_cmp_lt_u32 s31, 64"); e(f"s_cbranch_scc1 {nm}_sl")
        e("s_nop 12"); e(f"s_branch {nm}_chk")
    k.tail = slowpath
    k.label(f"{nm}_fin")
    e("s_nop 0")
    for r in range(12): e(f"v_mul_f32 v{OO+r}, v{OO+r}, v31")
    for r in range(6): e(f"v_cvt_pk_bf16_f32 v{P+r}, v{OO+2*r}, v{OO+2*r+1}")
    e(f"buffer_store_dwordx4 {vr(P,4)}, v39, s[8:11], s51 offen {SC}")
    e("s_mov_b32 exec_hi, 0")
    e(f"buffer_store_dwordx2 {vr(P+4,2)}, v38, s[8:11], s52 offen {SC}")
    e("s_mov_b64 exec, -1")
    k.stamp(5)
    e("v_lshlrev_b32 v3, 4, v1")
    k.vm = []; k.lg = []

def proj_c(k, tag, src, xin, xout, stout, last, cnt_code, word, st0):
    final = False
    e = k.e
    ACC, RESID, A, BF = 24, 44, 76, 156
    NA0 = ENV('PA0', '8')
    ids_rt(k)
    e("s_lshl_b32 s19, s16, 2"); e("s_add_u32 s19, s19, s39")
    e("s_mul_i32 s24, s19, 20480")
    e("s_lshr_b32 s33, s17, 1"); e("s_mul_i32 s33, s33, 5120"); e("s_add_u32 s33, s33, s24")
    e("s_and_b32 s34, s17, 1"); e("s_mul_i32 s35, s34, 3072"); e("s_add_u32 s35, s35, s33")
    e("s_lshl_b32 s36, s34, 9"); e("s_add_u32 s36, s36, s33"); e("s_add_u32 s36, s36, 2048")
    e(f"s_add_u32 s37, s35, {xin}"); e(f"s_add_u32 s38, s36, {xin}")
    e("v_lshrrev_b32 v13, 5, v1"); e("v_lshlrev_b32 v13, 8, v13"); e("v_and_b32 v14, 15, v1"); e("v_lshl_add_u32 v13, v14, 4, v13")
    e("v_bfe_u32 v14, v1, 4, 1"); e("v_lshl_add_u32 v13, v14, 3, v13")
    k.vmop(f"buffer_load_dwordx4 {vr(RESID,4)}, v3, s[8:11], s37 offen {SC}", "r")
    k.vmop(f"buffer_load_dwordx4 {vr(RESID+4,4)}, v3, s[8:11], s37 offen offset:1024 {SC}", "r")
    k.vmop(f"buffer_load_dwordx2 {vr(RESID+8,2)}, v13, s[8:11], s38 offen {SC}", "r")
    e(f"s_add_u32 s24, s24, {src}")
    for i in range(1, 5): e(f"s_add_u32 s{24+i}, s24, {4096*i}")
    e("v_lshrrev_b32 v9, 4, v1"); e("v_add_u32 v12, 61440, v3")
    wait_go(k, tag, word, cnt_code)
    k.stamp(st0)
    def ldA(n): k.vmop(f"buffer_load_dwordx4 {vr(A+4*n,4)}, v3, s[8:11], s{24+n//4} offen offset:{(n%4)*1024} {SC}", f"a{n}")
    for n in range(NA0): ldA(n)
    k.waitvm("r")
    for i in range(10):
        e(f"v_lshlrev_b32 v{ACC+2*i}, 16, v{RESID+i}"); e(f"v_and_b32 v{ACC+2*i+1}, 0xffff0000, v{RESID+i}")
    def rd(n, nf):
        off = n*5120 + nf*1024; b = 3
        if n >= 12: off -= 61440; b = 12
        k.dsop(f"ds_read_b128 {vr(BF+20*(n%2)+4*nf,4)}, v{b} offset:{off}", f"b{n}_{nf}")
    e("s_barrier")
    for n in range(2):
        for nf in range(5): rd(n, nf)
    for n in range(20):
        k.waitvm(f"a{n}")
        if n == 0: k.stamp(st0+1)
        for nf in range(5):
            if nf in (0, 2, 4): k.waitlg(f"b{n}_{min(nf+1,4)}")
            if n == 12 and nf == 0 and not final: e("s_barrier")
            e(f"v_mfma_f32_16x16x32_bf16 {vr(ACC+4*nf,4)}, {vr(BF+20*(n%2)+4*nf,4)}, {vr(A+4*n,4)}, {vr(ACC+4*nf,4)}")
            if n + 2 < 20: rd(n+2, nf)
            if nf == 0 and n + NA0 < 20: ldA(n + NA0)
    e("s_barrier")
    if last:
        e("s_cmp_eq_u32 s3, 0"); e(f"s_cbranch_scc1 {k.name}_nf")
        e("v_and_b32 v16, 15, v1"); e("v_mul_u32_u24 v16, 1280, v16"); e("v_lshl_add_u32 v17, v9, 3, v16"); e("v_lshl_add_u32 v16, v9, 4, v16")
        e("s_mul_i32 s32, s19, 20480"); e("s_mul_i32 s31, s17, 160"); e("s_add_u32 s32, s32, s31")
        e("s_lshl_b32 s31, s34, 5"); e("s_add_u32 s33, s32, s31"); e("s_xor_b32 s31, s34, 1"); e("s_lshl_b32 s31, s31, 7"); e("s_add_u32 s32, s32, s31")
        FSC = os.environ.get("FSC", "")
        for i in range(10): e(f"v_cvt_pk_bf16_f32 v{RESID+i}, v{ACC+2*i}, v{ACC+2*i+1}")
        e(f"buffer_store_dwordx4 {vr(RESID,4)}, v16, s[60:63], s33 offen {FSC}")
        e(f"buffer_store_dwordx4 {vr(RESID+4,4)}, v16, s[60:63], s33 offen offset:64 {FSC}")
        e(f"buffer_store_dwordx2 {vr(RESID+8,2)}, v17, s[60:63], s32 offen {FSC}")
        k.stamp(st0+2)
        if STAMP: e("s_waitcnt vmcnt(0)")
        k.dump(15, "2")
        e("s_endpgm")
        k.label(f"{k.name}_nf")
    if True:
        e(f"s_add_u32 s37, s35, {xout}"); e(f"s_add_u32 s38, s36, {xout}")
        e("s_lshl_b32 s32, s19, 10"); e("s_lshl_b32 s33, s17, 7"); e("s_add_u32 s32, s32, s33"); e(f"s_add_u32 s32, s32, {stout}")
        e("v_lshlrev_b32 v16, 3, v1")
        for i in range(10): e(f"v_cvt_pk_bf16_f32 v{RESID+i}, v{ACC+2*i}, v{ACC+2*i+1}")
        e(f"buffer_store_dwordx4 {vr(RESID,4)}, v3, s[8:11], s37 offen {SC}")
        e(f"buffer_store_dwordx4 {vr(RESID+4,4)}, v3, s[8:11], s37 offen offset:1024 {SC}")
        e(f"buffer_store_dwordx2 {vr(RESID+8,2)}, v13, s[8:11], s38 offen {SC}")
        e(f"v_add_f32 v18, v{ACC}, v{ACC+1}"); e(f"v_mul_f32 v19, v{ACC}, v{ACC}"); e(f"v_add_f32 v20, v{ACC+2}, v{ACC+3}"); e(f"v_mul_f32 v21, v{ACC+1}, v{ACC+1}")
        e(f"v_fmac_f32 v19, v{ACC+2}, v{ACC+2}"); e(f"v_fmac_f32 v21, v{ACC+3}, v{ACC+3}")
        for i in range(4, 20, 2):
            e(f"v_add_f32 v18, v18, v{ACC+i}"); e(f"v_fmac_f32 v19, v{ACC+i}, v{ACC+i}")
            e(f"v_add_f32 v20, v20, v{ACC+i+1}"); e(f"v_fmac_f32 v21, v{ACC+i+1}, v{ACC+i+1}")
        e("v_add_f32 v18, v18, v20"); e("v_add_f32 v19, v19, v21")
        for sw in ("v_permlane16_swap_b32", "v_permlane32_swap_b32"):
            e("v_mov_b32 v20, v18"); e("v_mov_b32 v21, v19"); e("s_nop 0")
            e(f"{sw} v18, v20"); e(f"{sw} v19, v21"); e("s_nop 0")
            e("v_add_f32 v18, v18, v20"); e("v_add_f32 v19, v19, v21")
        e("s_mov_b64 exec, 0xffff")
        e(f"buffer_store_dwordx2 v[18:19], v16, s[8:11], s32 offen {SC}")
    k.stamp(st0+2)

def proj_l(k, wimg, nxt, src, sig=None, done=0, last=False):
    e = k.e
    if nxt is not None:
        ids_mt(k)
        e("s_min_u32 s17, s17, 14" if nxt == WA_I else "s_nop 0")
        e("s_mul_i32 s58, s17, 163840"); e("s_add_u32 s58, s58, s45"); e(f"s_add_u32 s58, s58, {nxt}")
    ids_rt(k)
    e("s_mul_i32 s50, s17, 102400"); e("s_add_u32 s50, s50, s45"); e(f"s_add_u32 s50, s50, {wimg}")
    e("s_mul_i32 s51, s16, 81920"); e("s_lshl_b32 s52, s17, 2"); e("s_add_u32 s52, s52, s39"); e("s_mul_i32 s52, s52, 2560"); e("s_add_u32 s51, s51, s52"); e(f"s_add_u32 s51, s51, {src}")
    e("v_min_u32 v21, 39, v1"); e("v_lshlrev_b32 v21, 6, v21")
    w = Wdma(k, 25, 50, "o"); k.vm = []
    T1, T2 = ENV('T1', '0'), ENV('T2', '4')
    if sig:
        signal(k, "s1l", 0, 8, sig)
        ub_prep(k, 0)
    w.rng(done, 25, T1 if sig else 0)
    w2 = Wdma(k, 40, 58)
    if last:
        e("s_cmp_eq_u32 s3, 0"); e(f"s_cbranch_scc1 {k.name}_nl")
        e("s_waitcnt vmcnt(0)"); e("s_barrier"); e("buffer_load_dword v20, v21, s[8:11], s51 offen"); e("s_endpgm")
        k.label(f"{k.name}_nl")
    if sig:
        w2.rng(25, 31, T1)
        e(f"v_mov_b32 v{PV_+3}, {LW}"); e("s_mov_b32 s49, 0")
        k.label(f"{k.name}_a8")
        e(f"ds_read_b32 v{PV_}, v{PV_+3}"); e("s_add_u32 s49, s49, 1"); e("s_waitcnt lgkmcnt(0)"); e(f"v_readfirstlane_b32 s44, v{PV_}")
        e("s_cmp_ge_u32 s49, 0x400000"); e("s_cselect_b32 s44, 8, s44"); e("s_cmp_lt_u32 s44, 8"); e(f"s_cbranch_scc1 {k.name}_a8")
    if nxt is not None: w2.rng(31 if sig else 32, 39, T1 if sig else 0)
    if sig: ub_prep(k, 1)
    k.waitvm("o24")
    e("s_barrier")
    if ENV('ATOUCH', '1'):
        k.vmop("buffer_load_dword v20, v21, s[8:11], s51 offen")
    if nxt is not None:
        if not sig: w2.rng(25, 32)
        e("s_barrier")
        w2.rng(0, 15)
        e("s_barrier")
        k.waitvm("w14")
        w2.rng(15, 25, T2)
    return w2

def stats16(k, s, rstd, mop, mask):
    e = k.e
    e(f"v_add_f32 v{s}, v{s}, v{s+2}"); e(f"v_add_f32 v{s+1}, v{s+1}, v{s+3}")
    k.allred16("v_add_f32", s, s+2); k.allred16("v_add_f32", s+1, s+3)
    k.allred32("v_add_f32", s, s+2); k.allred32("v_add_f32", s+1, s+3)
    stats_finish(k, s, s+1, s+2, rstd, s+3)
    split3(k, s+2, mop, 17, 'm', mask)
def usum(k, u, dst, t=17):
    e = k.e
    e(f"v_add_f32 v{u}, v{u}, v{u+1}"); e(f"v_add_f32 v{u+2}, v{u+2}, v{u+3}"); e(f"v_add_f32 v{u}, v{u}, v{u+2}")
    split3(k, u, dst, t, 'u')
def scale_pack(k, a, sc, dst):
    for r in range(4): k.e(f"v_mul_f32 v{a+r}, v{a+r}, v{sc(r)}")
    for r in range(2): k.e(f"v_cvt_pk_bf16_f32 v{dst+r}, v{a+2*r}, v{a+2*r+1}")
EX = 102400
UOFF = lambda F: (F//4)*8192 + 7168 + (F%4)*256 + 128
TOKF = (0, 1, 2, 3, 6); FEAF = (4, 5, 7)

def ub_prep(k, part):
    e = k.e
    if part: return ub_fin(k)
    e("v_and_b32 v5, 15, v1"); e("v_lshrrev_b32 v6, 4, v1"); e("s_lshr_b32 s30, s21, 1")
    e("v_mul_u32_u24 v12, 2560, v6"); e("v_lshl_add_u32 v12, v5, 2, v12")
    e("s_mul_i32 s30, s30, 10240"); e("s_lshl_b32 s31, s39, 7"); e("s_add_u32 s30, s30, s31"); e(f"s_add_u32 s30, s30, {U_B}")
    for q in range(2):
        for j_ in range(5): k.vmop(f"buffer_load_dword v{64+5*q+j_}, v12, s[12:15], s30 offen offset:{512*j_+64*q}", "up")
    e("s_lshr_b32 s30, s39, 1"); e("s_lshl_b32 s30, s30, 13"); e("s_and_b32 s31, s39, 1"); e("s_lshl_b32 s31, s31, 9"); e("s_add_u32 s30, s30, s31")
    e("v_lshlrev_b32 v51, 3, v5"); e("v_add_u32 v46, s30, v51")
def ub_fin(k):
    e = k.e
    k.waitvm("up")
    for q in range(2):
        u = 64+5*q
        e(f"v_add_f32 v{u}, v{u}, v{u+1}"); e(f"v_add_f32 v{u+2}, v{u+2}, v{u+3}"); e(f"v_add_f32 v{u}, v{u}, v{u+4}"); e(f"v_add_f32 v{u}, v{u}, v{u+2}")
        k.allred16("v_add_f32", u, u+1); k.allred32("v_add_f32", u, u+1)
        split3(k, u, 28+2*q, 17, 'u')

def atouch_pre(k, xin):
    e = k.e
    e("s_mul_i32 s51, s16, 163840"); e("s_lshl_b32 s52, s17, 2"); e("s_add_u32 s52, s52, s39"); e("s_mul_i32 s52, s52, 2560"); e("s_add_u32 s51, s51, s52"); e(f"s_add_u32 s51, s51, {xin}")
    e("v_min_u32 v21, 39, v1"); e("v_lshlrev_b32 v21, 6, v21")

def qkvb_pre(k):
    e = k.e
    ids_mt(k)
    e("v_and_b32 v5, 15, v1"); e("v_lshrrev_b32 v6, 4, v1")
    e("s_lshl_b32 s22, s16, 3"); e("s_lshl_b32 s19, s39, 1"); e("s_add_u32 s19, s19, s22")
    e("v_lshlrev_b32 v11, 3, v5"); e("v_lshl_add_u32 v11, v6, 8, v11")
    e("v_cmp_eq_u32 vcc, 0, v6"); e("v_lshlrev_b32 v10, 4, v6"); e("s_nop 0"); e("v_cndmask_b32 v4, 0, -1, vcc")

def qkvb_c(k, xin, stin, st0):
    e = k.e; nm = k.name
    DA = 5
    ACC, BF, AR, RSV = 64, 160, 192, 228
    acc = lambda b, F: ACC + 32*b + 4*F
    qkvb_pre(k)
    e("s_lshl_b32 s28, s19, 10"); e(f"s_add_u32 s28, s28, {stin}")
    e("s_mul_i32 s25, s19, 20480"); e(f"s_add_u32 s25, s25, {xin}"); e("s_add_u32 s26, s25, 20480")
    e("v_add_u32 v41, 65536, v3"); e("v_add_u32 v42, 131072, v3")
    def c2():
        e("s_lshl_b32 s48, s16, 9"); e(f"s_add_u32 s48, s48, {C2}")
        e(f"v_lshlrev_b32 v{PV_+1}, 8, v1"); e(f"v_lshlrev_b32 v{PV_+2}, 3, v1"); e(f"v_sub_u32 v{PV_+2}, 16, v{PV_+2}")
        e("s_cmp_eq_u32 s16, 0"); e("s_cselect_b64 s[56:57], 1, 3")
    wait_go(k, "p3", 1, c2)
    k.stamp(st0)
    def ldA(ks):
        for b in range(2):
            if ks % 4 == 0 and ks > 0: e(f"s_add_u32 s{25+b}, s{25+b}, 4096")
            k.vmop(f"buffer_load_dwordx4 {vr(AR+8*(ks%DA)+4*b,4)}, v3, s[8:11], s{25+b} offen offset:{(ks%4)*1024} {SC}", f"a{ks}")
    ldA(0)
    for b in range(2):
        for q in range(2): k.vmop(f"buffer_load_dwordx2 {vr(24+4*b+2*q,2)}, v11, s[8:11], s28 offen offset:{1024*b+128*q} {SC}", "st")
    for ks in range(1, DA-1): ldA(ks)
    MC, MP, MP1 = 64, 68, 72
    NEG = fbits(-1e30)
    def prolog():
        k.waitvm("st")
        for b in (1, 2): stats16(k, 20+4*b, 48+b, 52+2*b, 4)
        for b in (1, 2):
            for r in range(4):
                e(f"v_add_u32 v18, {4*r}, v10")
                k.dsop(f"ds_bpermute_b32 v{RSV+4*b+r}, v18, v{48+b}", "rs")
        e("v_lshlrev_b32 v43, 3, v5")
        e("v_lshlrev_b32 v17, 2, v6"); e("v_sub_u32 v17, v5, v17")
        e(f"v_mov_b32 v19, {NEG}")
        for r in range(4):
            e(f"v_subrev_u32 v18, {r}, v17"); e("v_and_b32 v16, 0x80000001, v18")
            e("v_cmp_eq_u32 vcc, 0, v16"); e(f"v_cndmask_b32 v{MC+r}, v19, 0, vcc")
            e("v_cmp_eq_u32 vcc, 0x80000000, v16"); e(f"v_cndmask_b32 v{MP+r}, v19, 0, vcc")
        e("s_cmp_eq_u32 s19, 0"); e(f"s_cselect_b32 s34, {NEG}, 0")
        for r in range(4): e(f"v_add_f32 v{MP1+r}, s34, v{MP+r}")
        e("v_cmp_eq_u32 vcc, 2, v6"); e("v_cndmask_b32 v38, 0, -1, vcc")
        e("v_cmp_eq_u32 vcc, 3, v6"); e("v_cndmask_b32 v39, 0, -1, vcc")
        for b in (1, 2): e(f"v_mul_f32 v{58+b}, {fbits(CSCALE)}, v{48+b}")
        e("v_cmp_gt_u32 vcc, 2, v6")
        for b in (1, 2): e(f"v_cndmask_b32 v{35+b}, v{48+b}, v{58+b}, vcc")
        e("s_mul_i32 s35, s18, 5120"); e(f"s_add_u32 s35, s35, {EX}"); e("v_add_u32 v9, s35, v3")
        e("s_mul_i32 s24, s19, 20480"); e(f"s_add_u32 s24, s24, {OBT}")
        e("s_lshl_b32 s51, s17, 10"); e("s_add_u32 s51, s51, s24"); e("s_add_u32 s52, s51, 20480")
        e("s_lshr_b32 s53, s17, 2"); e("s_add_u32 s53, s53, 16"); e("s_lshl_b32 s53, s53, 10"); e("s_add_u32 s53, s53, s24")
        e("s_and_b32 s54, s17, 1"); e("s_lshl_b32 s54, s54, 9"); e("s_add_u32 s53, s53, s54")
        e("s_bfe_u32 s54, s17, 0x10001"); e("s_lshl_b32 s54, s54, 3"); e("s_add_u32 s53, s53, s54"); e("s_add_u32 s54, s53, 20480")
    fl = k.capture(prolog)
    def rd(ks, F):
        off = ks*8192 + 1024*F; hi = off >> 16
        k.dsop(f"ds_read_b128 {vr(BF+4*F,4)}, v{(3,41,42)[hi]} offset:{off & 0xffff}", f"b{ks}_{F}")
    def mm(b, F, ks):
        a = vr(AR+8*(ks%DA)+4*(b-1), 4); w = vr(BF+4*F, 4); c = vr(acc(b,F), 4); ci = c if ks else "0"
        if F in TOKF: e(f"v_mfma_f32_16x16x32_bf16 {c}, {w}, {a}, {ci}")
        else:         e(f"v_mfma_f32_16x16x32_bf16 {c}, {a}, {w}, {ci}")
    e("s_barrier")
    for F in range(8): rd(0, F)
    for ks in range(20):
        k.waitvm(f"a{ks}")
        if ks == 0: k.stamp(st0+1)
        if ks == 6: e("s_barrier")
        if ks == 16:
            k.fill(fl, 1000)
            for F in range(8): k.dsop(f"ds_read_b64 {vr(20+2*F,2)}, v43 offset:{UOFF(F)}", "uo")
        for F in range(8):
            if F % 2 == 0: k.waitlg(f"b{ks}_{F+1}")
            mm(1, F, ks)
            if ks >= 1: k.fill(fl, 1)
            mm(2, F, ks)
            if ks + 1 < 20: rd(ks+1, F)
            if F == 0 and ks + DA - 1 < 20: ldA(ks + DA - 1)
            if ks >= 1 and F % 2: k.fill(fl, 1)
        if ks == 18:
            k.fill(fl, 1000)
            for b in (1, 2):
                for F in range(8):
                    U, M = vr(20+2*F, 2), vr(52+2*b, 2)
                    if F in TOKF: e(f"v_mfma_f32_16x16x16_bf16 {vr(acc(b,F),4)}, {U}, {M}, {vr(acc(b,F),4)}")
                    else:         e(f"v_mfma_f32_16x16x16_bf16 {vr(acc(b,F),4)}, {M}, {U}, {vr(acc(b,F),4)}")
    k.stamp(st0+2)
    e("s_barrier")
    if os.environ.get("FOC") == "s3": k.stamp(3)
    e("s_cmp_eq_u32 s18, 0"); e(f"s_cbranch_scc0 {nm}_ni"); lw_init(k); k.label(f"{nm}_ni")
    KO = lambda b, h: BF + 8*b + 4*h
    QO = lambda b, h: BF + 24 + 8*(b-1) + 4*h
    VO = lambda F, b: BF + 40 + 8*FEAF.index(F) + 2*b
    def kv_pack(b):
        for h in range(2): scale_pack(k, acc(b, 2+h), lambda r: 48+b, KO(b,h))
        scale_pack(k, acc(b, 6), lambda r: 35+b, KO(b,0)+2)
        for r in range(2): e(f"v_mov_b32 v{KO(b,1)+2+r}, v{KO(b,0)+2+r}")
        for F in FEAF: scale_pack(k, acc(b, F), lambda r: RSV+4*b+r, VO(F,b))
    kv_pack(2)
    for h in range(2): e(f"ds_write_b128 v9, {vr(KO(2,h),4)} offset:{5120+1024*h}")
    for n, F in enumerate(FEAF): e(f"ds_write_b64 v9, {vr(VO(F,2),2)} offset:{5120+2048+1024*n}")
    kv_pack(1)
    e("s_waitcnt lgkmcnt(0)"); e("s_barrier")
    if os.environ.get("FOC") == "s3": k.stamp(4)
    for h in range(2): e(f"ds_read_b128 {vr(KO(0,h),4)}, v9 offset:{1024*h}")
    for n, F in enumerate(FEAF): e(f"ds_read_b64 {vr(VO(F,0),2)}, v9 offset:{2048+1024*n}")
    for b in (1, 2):
        for h in range(2): scale_pack(k, acc(b, h), lambda r: 58+b, QO(b,h))
        for r in range(2):
            e(f"v_mov_b32 v{40+2*r}, v{KO(b,0)+2+r}"); e(f"v_mov_b32 v{41+2*r}, v{KO(b,0)+2+r}")
        for r in range(2): e(f"v_permlane32_swap_b32 v{40+2*r}, v{41+2*r}")
        e("s_nop 0")
        for h in range(2):
            for r in range(2): e(f"v_and_b32 v{QO(b,h)+2+r}, v{40+2*r}, v{38+h}")
    e("s_waitcnt lgkmcnt(0)")
    units = [(b, h) for b in (1, 2) for h in range(2)]
    SU = lambda i: 20 + 8*i if i < 2 else 76 + 8*(i-2)
    TU = lambda i: ACC + 32 + 4*i
    PU = lambda i: ACC + 48 + 4*i
    OU = lambda i: ACC + 64 + 8*i
    for i, (b, h) in enumerate(units):
        e(f"v_mfma_f32_16x16x32_bf16 {vr(SU(i),4)}, {vr(KO(b-1,h),4)}, {vr(QO(b,h),4)}, {vr(MP1 if b == 1 else MP,4)}")
        e(f"v_mfma_f32_16x16x32_bf16 {vr(SU(i)+4,4)}, {vr(KO(b,h),4)}, {vr(QO(b,h),4)}, {vr(MC,4)}")
    def allred(op):
        for sw in ("v_permlane16_swap_b32", "v_permlane32_swap_b32"):
            for i in range(4): e(f"v_mov_b32 v{TU(i)+1}, v{TU(i)}")
            for i in range(4): e(f"{sw} v{TU(i)}, v{TU(i)+1}")
            for i in range(4): e(f"{op} v{TU(i)}, v{TU(i)}, v{TU(i)+1}")
    for i in range(4):
        s = SU(i)
        e(f"v_max3_f32 v{TU(i)}, v{s}, v{s+1}, v{s+2}"); e(f"v_max3_f32 v{TU(i)}, v{s+3}, v{s+4}, v{TU(i)}")
        e(f"v_max3_f32 v{TU(i)}, v{s+5}, v{s+6}, v{TU(i)}"); e(f"v_max_f32 v{TU(i)}, v{s+7}, v{TU(i)}")
    allred("v_max_f32")
    for i in range(4):
        for r in range(8): e(f"v_sub_f32 v{SU(i)+r}, v{SU(i)+r}, v{TU(i)}")
    for i in range(4):
        for r in range(8): e(f"v_exp_f32 v{SU(i)+r}, v{SU(i)+r}")
    for i in range(4):
        s = SU(i)
        e(f"v_add_f32 v{TU(i)}, v{s}, v{s+1}")
        for r in range(2, 8): e(f"v_add_f32 v{TU(i)}, v{TU(i)}, v{s+r}")
    allred("v_add_f32")
    for i in range(4): e(f"v_rcp_f32 v{TU(i)}, v{TU(i)}")
    for i in range(4):
        for r in range(8): e(f"v_mul_f32 v{SU(i)+r}, v{SU(i)+r}, v{TU(i)}")
        for r in range(4): e(f"v_cvt_pk_bf16_f32 v{PU(i)+r}, v{SU(i)+2*r}, v{SU(i)+2*r+1}")
    for i, (b, h) in enumerate(units):
        e(f"v_mfma_f32_16x16x32_bf16 {vr(OU(i),4)}, {vr(VO(4+h,b-1),4)}, {vr(PU(i),4)}, 0")
        e(f"v_mfma_f32_16x16x32_bf16 {vr(OU(i)+4,4)}, {vr(VO(7,b-1),4)}, {vr(PU(i),4)}, 0")
    e("v_cmp_eq_u32 vcc, 0, v6")
    for bi in range(2):
        o0, o1 = OU(2*bi), OU(2*bi+1); d = 40 + 8*bi
        e(f"v_cvt_pk_bf16_f32 v{d}, v{o0}, v{o0+1}"); e(f"v_cvt_pk_bf16_f32 v{d+1}, v{o0+2}, v{o0+3}")
        e(f"v_cvt_pk_bf16_f32 v{d+2}, v{o1}, v{o1+1}"); e(f"v_cvt_pk_bf16_f32 v{d+3}, v{o1+2}, v{o1+3}")
        e(f"buffer_store_dwordx4 {vr(d,4)}, v3, s[8:11], s{51+bi} offen {SC}")
        for r in range(4): e(f"v_cndmask_b32 v{o0+4+r}, v{o1+4+r}, v{o0+4+r}, vcc")
        e(f"v_cvt_pk_bf16_f32 v{d+4}, v{o0+4}, v{o0+5}"); e(f"v_cvt_pk_bf16_f32 v{d+5}, v{o0+6}, v{o0+7}")
    e("s_mov_b32 exec_hi, 0")
    for bi in range(2): e(f"buffer_store_dwordx2 {vr(44+8*bi,2)}, v3, s[8:11], s{53+bi} offen {SC}")

def qkvb_l(k, xin, stin, w):
    e = k.e; nm = k.name
    qkvb_pre(k)
    e("s_max_u32 s22, s22, 1"); e("s_sub_u32 s22, s22, 1")
    e("s_mul_i32 s24, s22, 20480"); e(f"s_add_u32 s24, s24, {xin}")
    e("s_lshl_b32 s27, s22, 10"); e(f"s_add_u32 s27, s27, {stin}")
    e("s_min_u32 s40, s39, 2")
    e("s_cmp_lt_u32 s39, 2"); e("s_cselect_b32 s41, 2, 4"); e("s_cselect_b32 s42, 4, 5")
    e("s_add_u32 s41, s41, s40"); e("s_add_u32 s42, s42, s40")
    for d_, s_ in ((43, 41), (44, 42)):
        e(f"s_lshr_b32 s{d_}, s{s_}, 2"); e(f"s_lshl_b32 s{d_}, s{d_}, 13"); e(f"s_and_b32 s32, s{s_}, 3"); e("s_lshl_b32 s32, s32, 8")
        e(f"s_add_u32 s{d_}, s{d_}, s32"); e(f"s_add_u32 s{d_}, s{d_}, {UOFF(0)}")
    e("s_lshl_b32 s41, s41, 10"); e("s_lshl_b32 s42, s42, 10")
    for i in range(3):
        e(f"v_add_u32 v{40+i}, s41, v3"); e(f"v_add_u32 v{43+i}, s42, v3")
        if i: e(f"v_add_u32 v{40+i}, {65536*i}, v{40+i}"); e(f"v_add_u32 v{43+i}, {65536*i}, v{43+i}")
    atouch_pre(k, xin)
    e("s_barrier")
    e(f"ds_write_b64 v46, v[28:29] offset:{UOFF(0)}"); e(f"ds_write_b64 v46, v[30:31] offset:{UOFF(1)}")
    if ENV('ATOUCH', '1'): k.vmop("buffer_load_dword v20, v21, s[8:11], s51 offen")
    w.one(39)
    for q in range(2): k.vmop(f"buffer_load_dwordx2 {vr(24+2*q,2)}, v11, s[8:11], s27 offen offset:{128*q} {SC}", "st")
    e("s_cmp_eq_u32 s39, 3"); e("s_cselect_b32 s24, 0x7ff00000, s24")
    HL = ENV('HL', '3')
    def ldh(ks):
        if ks % 4 == 0 and ks: e("s_add_u32 s24, s24, 4096")
        k.vmop(f"buffer_load_dwordx4 {vr(128+4*ks,4)}, v3, s[8:11], s24 offen offset:{(ks%4)*1024} {SC}", f"h{ks}")
    for ks in range(HL): ldh(ks)
    k.waitvm("w39"); e("s_waitcnt lgkmcnt(0)"); e("s_barrier")
    k.waitvm("st")
    stats16(k, 24, 48, 52, 4)
    for r in range(4):
        e(f"v_add_u32 v18, {4*r}, v10")
        k.dsop(f"ds_bpermute_b32 v{72+r}, v18, v48", "r")
    def rd(ks):
        off = ks*8192; hi = off >> 16; fb = 96 + 8*(ks%3)
        k.dsop(f"ds_read_b128 {vr(fb,4)}, v{40+hi} offset:{off & 0xffff}", f"r{ks}")
        k.dsop(f"ds_read_b128 {vr(fb+4,4)}, v{43+hi} offset:{off & 0xffff}", f"r{ks}")
    rd(0); rd(1)
    for ks in range(20):
        if ks + 2 < 20: rd(ks+2)
        if ks + HL < 20: ldh(ks + HL)
        k.waitvm(f"h{ks}"); k.waitlg(f"r{ks}")
        fb = 96 + 8*(ks%3)
        e(f"v_mfma_f32_16x16x32_bf16 v[80:83], {vr(fb,4)}, {vr(128+4*ks,4)}, {'v[80:83]' if ks else 0}")
        e(f"v_mfma_f32_16x16x32_bf16 v[84:87], {vr(128+4*ks,4)}, {vr(fb+4,4)}, {'v[84:87]' if ks else 0}")
    e("v_add_u32 v12, s43, v51"); e("v_add_u32 v13, s44, v51")
    e("ds_read_b64 v[20:21], v12"); e("ds_read_b64 v[22:23], v13")
    e("s_lshl_b32 s41, s39, 10"); e("s_cmp_lt_u32 s39, 2"); e("s_cselect_b32 s41, s41, 8"); e("s_cselect_b32 s42, s41, 1032")
    e("s_lshl_b32 s40, s40, 10")
    e(f"v_add_u32 v9, {EX}, v3"); e("v_add_u32 v12, s41, v9"); e("v_add_u32 v13, s42, v9"); e("v_add_u32 v15, s40, v9")
    e("s_waitcnt lgkmcnt(0)")
    e("v_mfma_f32_16x16x16_bf16 v[80:83], v[20:21], v[52:53], v[80:83]")
    e("v_mfma_f32_16x16x16_bf16 v[84:87], v[52:53], v[22:23], v[84:87]")
    scale_pack(k, 80, lambda r: 48, 88); scale_pack(k, 84, lambda r: 72+r, 90)
    e("s_barrier")
    e("s_cmp_eq_u32 s39, 3"); e(f"s_cbranch_scc1 {nm}_h4")
    e("ds_write_b64 v12, v[88:89]"); e("ds_write_b64 v13, v[88:89]"); e("ds_write_b64 v15, v[90:91] offset:2048")
    e("s_waitcnt lgkmcnt(0)")
    k.label(f"{nm}_h4")
    e("s_barrier")
    k.vm = []; k.lg = []

def one(k, target):
    k.e(f"v_mov_b32 v{PV_+1}, 0"); k.e(f"v_mov_b32 v{PV_+2}, {target}"); k.e("s_mov_b64 s[56:57], 1")

def kvpos(k):
    k.e("s_and_b32 s36, s19, 31"); k.e("s_lshl_b32 s36, s36, 1"); k.e("s_lshr_b32 s34, s19, 5"); k.e("s_add_u32 s36, s36, s34")
    k.e("s_add_u32 s36, s36, 50"); k.e("s_and_b32 s36, s36, 63")
def addr_v(k, img):
    e = k.e
    e("s_sub_u32 s35, s17, 10"); e("s_lshl_b32 s35, s35, 7")
    kvpos(k); e("s_mul_i32 s36, s36, 2560"); e(f"s_add_u32 s33, s36, {img+KVIMG+1280}")
    e("v_mul_u32_u24 v20, 320, v4")
    for jf in range(4):
        e(f"v_add_u32 v16, s35, v10")
        if jf: e(f"v_add_u32 v16, {32*jf}, v16")
        e("v_mul_u32_u24 v17, 52429, v16"); e("v_lshrrev_b32 v17, 20, v17")
        e("v_mul_u32_u24 v18, 20, v17"); e("v_sub_u32 v18, v16, v18")
        e("v_mul_u32_u24 v17, 163840, v17"); e("v_lshl_add_u32 v17, v18, 4, v17")
        e(f"v_add_u32 v{24+jf}, v17, v20")
def addr_qk(k, img, xm=52):
    e = k.e; k.xm = xm
    e("s_cmp_ge_u32 s17, 5")
    e(f"s_cselect_b32 s33, {QI}, 0"); e(f"s_cselect_b32 s59, 1.0, {fbits(CSCALE)}"); e("s_cselect_b32 s35, 5, 0"); e("s_cselect_b32 s37, 1, 0")
    e(f"s_add_u32 s33, s33, {img+QIMG}")
    e("s_sub_u32 s35, s17, s35")
    kvpos(k); e("s_cmp_eq_u32 s37, 0"); e("s_cselect_b32 s36, s19, s36")
    e("s_mul_i32 s36, s36, 1280"); e("s_lshl_b32 s36, s36, s37"); e("s_add_u32 s33, s33, s36")
    e("s_lshl_b32 s34, 81920, s37")
    e("v_lshlrev_b32 v16, 4, v10"); e("v_lshlrev_b32 v17, 3, v10")
    e("v_lshl_add_u32 v18, v4, 9, v16")
    e("s_sub_u32 s36, s34, 512"); e("v_and_b32 v19, s36, v59"); e("v_add_u32 v19, v19, v16")
    e(f"s_mov_b32 s{xm}, -1"); e(f"s_mov_b32 s{xm+1}, 0"); e(f"s_mov_b32 s{xm+2}, 0"); e(f"s_mov_b32 s{xm+3}, -1")
def epi_qk(k, ACC, BF):
    e = k.e; nm = k.name + k.ptag
    for v in range(1, 5):
        e(f"s_cmp_eq_u32 s35, {v}"); e(f"s_cbranch_scc1 {nm}_e{v}")
    QSC = os.environ.get("QSC", "sc1")
    for v in range(5):
        if v: k.label(f"{nm}_e{v}")
        e("s_nop 7")
        for jf in range(4):
            for r in range(16): e(f"v_mul_f32 v{ACC+16*jf+r}, v{ACC+16*jf+r}, v47")
            for r in range(8): e(f"v_cvt_pk_bf16_f32 v{BF+8*jf+r}, v{ACC+16*jf+2*r}, v{ACC+16*jf+2*r+1}")
            for a2 in range(2):
                x = BF+8*jf+4*a2
                e(f"v_permlane32_swap_b32 v{x}, v{x+2}"); e(f"v_permlane32_swap_b32 v{x+1}, v{x+3}")
            for a2 in range(2):
                x = BF+8*jf+4*a2
                G = [32*v+8*jf+4*a2, 32*v+8*jf+4*a2+2]
                def main(g):
                    h = g // 5; r = g % 5
                    return h, (r // 2 if h % 2 == 0 else (r - 1) // 2)
                st = [g % 10 == 4 for g in G]
                def hoff(dst, h, c):
                    if h: e(f"s_mul_i32 s{dst}, s34, {h}"); e(f"s_add_u32 s{dst}, s{dst}, s33")
                    else: e(f"s_mov_b32 s{dst}, s33")
                    if c: e(f"s_add_u32 s{dst}, s{dst}, {c}")
                if not any(st):
                    (h0, p0), (h1, p1) = main(G[0]), main(G[1])
                    hoff(36, h0, 512*p0)
                    if h0 == h1: e(f"buffer_store_dwordx4 {vr(x,4)}, v18, {k.srdo}, s36 offen {QSC}")
                    else:        e(f"buffer_store_dwordx4 {vr(x,4)}, v19, {k.srdo}, s36 offen {QSC}")
                    assert (h0 == h1 and (p0, p1) == (0, 1)) or (h1 == h0 + 1 and (p0, p1) == (1, 0))
                else:
                    m = st.index(False); q = 1 - m
                    h, p = main(G[m]); hoff(36, h, 512*p); hoff(37, G[q] // 5, 1024); e("s_add_u32 s38, s37, s34")
                    e(f"s_mov_b64 exec, s[{k.xm+2*m}:{k.xm+1+2*m}]")
                    e(f"buffer_store_dwordx4 {vr(x,4)}, v16, {k.srdo}, s36 offen {QSC}")
                    e(f"s_mov_b64 exec, s[{k.xm+2*q}:{k.xm+1+2*q}]")
                    e(f"buffer_store_dwordx2 {vr(x,2)}, v17, {k.srdo}, s37 offen {QSC}")
                    e(f"buffer_store_dwordx2 {vr(x+2,2)}, v17, {k.srdo}, s38 offen {QSC}")
                    e("s_mov_b64 exec, -1")
        e(f"s_branch {nm}_fin5")
def epi_v(k, ACC, BF, RS):
    e = k.e
    VSC = os.environ.get("VSC", "sc1")
    for jf in range(4):
        for r in range(16): e(f"v_mul_f32 v{ACC+16*jf+r}, v{ACC+16*jf+r}, v{RS+r}")
        for r in range(8): e(f"v_cvt_pk_bf16_f32 v{BF+8*jf+r}, v{ACC+16*jf+2*r}, v{ACC+16*jf+2*r+1}")
        for u in range(2):
            e(f"buffer_store_dwordx4 {vr(BF+8*jf+4*u,4)}, v{24+jf}, {k.srdo}, s33 offen offset:{640*u} {VSC}")

def qkva_c(k, xin, stin, img, cnt, wbar, st0):
    k.ptag = '_p5'; k.srdo = 's[8:11]'
    e = k.e; nm = k.name + k.ptag
    DA = 5
    ACC, BF, AR, RS = 64, 128, 160, 200
    e("v_and_b32 v10, 31, v1"); e("v_lshrrev_b32 v4, 5, v1"); e("v_and_b32 v5, 15, v1")
    e("s_lshl_b32 s19, s16, 2"); e("s_add_u32 s19, s19, s18")
    e("v_lshlrev_b32 v12, 4, v10")
    e("s_lshl_b32 s31, s17, 11"); e(f"s_add_u32 s31, s31, {U_A}")
    for jf in range(4): k.vmop(f"buffer_load_dwordx4 {vr(24+4*jf,4)}, v12, s[12:15], s31 offen offset:{512*jf}", "u")
    e("v_bfe_u32 v7, v1, 4, 1"); e("v_mul_u32_u24 v8, 20480, v7"); e("v_lshl_add_u32 v8, v4, 8, v8"); e("v_lshl_add_u32 v8, v5, 4, v8")
    e("v_lshlrev_b32 v11, 10, v7"); e("v_lshl_add_u32 v11, v4, 9, v11"); e("v_lshl_add_u32 v11, v5, 3, v11")
    e("s_lshl_b32 s30, s19, 11"); e(f"s_add_u32 s30, s30, {stin}")
    e("s_mul_i32 s24, s19, 40960"); e(f"s_add_u32 s24, s24, {xin}")
    e("v_add_u32 v41, 65536, v3"); e("v_add_u32 v42, 131072, v3")
    e("v_subrev_u32 v58, 1, v4"); e("v_not_b32 v59, v58")
    sc = SC if cnt is not None else ""
    if cnt is not None:
        def c4(): one(k, 16); e("s_lshl_b32 s48, s16, 8"); e(f"s_add_u32 s48, s48, {cnt}")
        wait_go(k, "p5", 1, c4)
    k.stamp(st0)
    def ldA(ks):
        if ks % 4 == 0 and ks > 0: e("s_add_u32 s24, s24, 4096")
        for u in range(2):
            k.vmop(f"buffer_load_dwordx4 {vr(AR+8*(ks%DA)+4*u,4)}, v8, s[8:11], s24 offen offset:{(ks%4)*1024+512*u} {sc}", f"a{ks}")
    ldA(0)
    for q in range(4): k.vmop(f"buffer_load_dwordx2 {vr(16+2*q,2)}, v11, s[8:11], s30 offen offset:{128*q} {sc}", "st")
    for ks in range(1, DA-1): ldA(ks)
    def prolog(vmode):
        k.waitvm("st")
        e("v_add_f32 v16, v16, v18"); e("v_add_f32 v17, v17, v19"); e("v_add_f32 v20, v20, v22"); e("v_add_f32 v21, v21, v23")
        e("v_add_f32 v16, v16, v20"); e("v_add_f32 v17, v17, v21")
        k.allred32("v_add_f32", 16, 18); k.allred32("v_add_f32", 17, 18)
        stats_finish(k, 16, 17, 46, 47, 18)
        split3(k, 46, 48, 18, 'm', 58)
        for jf in range(4): usum(k, 24+4*jf, 50+2*jf, 18)
        if vmode:
            e("v_lshlrev_b32 v16, 4, v4")
            for r in range(16):
                e(f"v_add_u32 v17, {(8*(r//4) + r%4)*4}, v16")
                k.dsop(f"ds_bpermute_b32 v{RS+r}, v17, v47", "rs")
            addr_v(k, img)
        else:
            addr_qk(k, img); e("v_mul_f32 v47, s59, v47")
    e("s_cmp_ge_u32 s17, 10"); e(f"s_cbranch_scc1 {nm}_qv")
    vm_save = list(k.vm)
    def mainloop(vmode):
        acc = lambda jf: vr(ACC+16*jf, 16)
        fl = k.capture(lambda: prolog(vmode))
        def rd(ks, f):
            off = ks*8192 + 1024*f; hi = off >> 16
            k.dsop(f"ds_read_b128 {vr(BF+4*f,4)}, v{(3,41,42)[hi]} offset:{off & 0xffff}", f"b{ks}_{f}")
        e("s_barrier")
        for f in range(8): rd(0, f)
        for ks in range(20):
            k.waitvm(f"a{ks}")
            if ks == 0: k.stamp(st0+1)
            if ks + 1 in wbar: e("s_barrier")
            for f in range(8):
                u, jf = f//4, f%4
                if f % 2 == 0: k.waitlg(f"b{ks}_{f+1}")
                a = vr(AR+8*(ks%DA)+4*u, 4); b = vr(BF+4*f, 4); c = acc(jf) if (ks or u) else "0"
                if vmode: e(f"v_mfma_f32_32x32x16_bf16 {acc(jf)}, {a}, {b}, {c}")
                else:     e(f"v_mfma_f32_32x32x16_bf16 {acc(jf)}, {b}, {a}, {c}")
                if ks + 1 < 20: rd(ks+1, f)
                if f == 0 and ks + DA - 1 < 20: ldA(ks + DA - 1)
                if ks >= 1: k.fill(fl, 2)
            if ks == 15:
                k.fill(fl, 1000)
                for jf in range(4):
                    if vmode: e(f"v_mfma_f32_32x32x8_bf16 {acc(jf)}, v[48:49], {vr(50+2*jf,2)}, {acc(jf)}")
                    else:     e(f"v_mfma_f32_32x32x8_bf16 {acc(jf)}, {vr(50+2*jf,2)}, v[48:49], {acc(jf)}")
        k.stamp(st0+2)
        e("s_barrier")
    mainloop(False)
    epi_qk(k, ACC, BF)
    k.label(f"{nm}_qv"); k.vm = vm_save; k.lg = []
    mainloop(True)
    epi_v(k, ACC, BF, RS)
    k.label(f"{nm}_fin5")

def ph_front(k):
    k.ptag = "_f"; k.srdo = "s[12:15]"
    e = k.e; nm = k.name + k.ptag; kn = k.name
    R, DEP, SCRB, UT = 4, 2, 131072, 65536
    need = lambda ks: ks // 2
    slot = lambda st: (st % R) * 32768
    e("s_cmp_ge_u32 s2, 256"); e(f"s_cbranch_scc1 {kn}_end"); k.stamp(0); k.rstamp(1)
    e("s_load_dwordx4 s[60:63], s[0:1], 0"); e("s_load_dwordx2 s[6:7], s[0:1], 64")
    e("s_load_dwordx2 s[4:5], s[0:1], 56")
    e("s_and_b32 s20, s2, 7"); e("s_lshr_b32 s21, s2, 3")
    e("v_lshrrev_b32 v2, 6, v0"); e("v_and_b32 v1, 63, v0")
    e("v_readfirstlane_b32 s18, v2")
    e("s_and_b32 s39, s18, 3"); e("s_lshl_b32 s45, s39, 10")
    ids_mt(k)
    e("v_lshlrev_b32 v3, 4, v1"); e(f"v_lshlrev_b32 v9, {ENV('BST', '7')}, v1")
    e("s_lshl_b32 s22, s2, 2"); e("s_add_u32 s22, s22, s39"); e("s_mul_i32 s23, s22, 2400"); e("s_mul_i32 s22, s22, 2560")
    def kwait():
        e("s_waitcnt lgkmcnt(0)")
        k.stamp(2)
        k.srd(8, 60, S*D*2); k.srd(28, 62, D*3*D*2); k.srd(12, 6, WS_END)
    def burst():
        if ENV('BURST', '1'):
            e("s_mov_b32 exec_hi, 0xff" if ENV('BST', '7') == 6 else "s_mov_b64 exec, 0xfffff")
            e("buffer_load_dword v240, v9, s[8:11], s22 offen"); e("buffer_load_dword v241, v9, s[28:31], s23 offen")
            e("s_mov_b64 exec, -1")
    def codepf(tg):
        if ENV('CPF', '1'):
            e("s_getpc_b64 s[34:35]"); k.label(f"{nm}_pc{tg}")
            e(f"s_sub_u32 s34, s34, {nm}_pc{tg} - {kn}"); e("s_subb_u32 s35, s35, 0")
            e("v_lshlrev_b32 v242, 4, v0"); e("s_lshl_b32 s36, s21, 12"); e("v_add_u32 v242, s36, v242")
            e(f"v_and_b32 v242, 0xffffffc0, v242"); e(f"v_min_u32 v242, code_end - {kn} - 4, v242")
            e("global_load_dword v243, v242, s[34:35]")
    e("s_cmp_ge_u32 s17, 15"); e(f"s_cbranch_scc1 {nm}_ub")
    e("v_and_b32 v10, 31, v1"); e("v_lshrrev_b32 v4, 5, v1"); e("v_and_b32 v5, 15, v1"); e("v_bfe_u32 v7, v1, 4, 1")
    e("v_lshrrev_b32 v13, 2, v5"); e("v_and_b32 v6, 3, v1")
    e("v_lshl_add_u32 v14, v4, 3, v13"); e("v_lshlrev_b32 v14, 8, v14"); e("v_lshl_add_u32 v14, v7, 5, v14"); e("v_lshl_add_u32 v14, v6, 3, v14")
    e("v_add_u32 v14, 16384, v14")
    def a0():
        e("s_lshl_b32 s48, s17, 11"); e(f"s_add_u32 s48, s48, {C0}"); e(f"v_lshlrev_b32 v{PV_+1}, 8, v1"); e("s_mov_b64 s[56:57], 0xff")
    SF = ENV('SF', '10')
    e("s_cmp_ge_u32 s18, 4"); e(f"s_cbranch_scc1 {nm}_ld")
    kwait(); burst(); codepf("c")
    if ENV('TLB', '1'):
        sh = ENV('TLBS', '21')
        e("s_load_dwordx4 s[84:87], s[0:1], 32"); e("s_load_dwordx2 s[88:89], s[0:1], 16"); e("s_load_dwordx2 s[90:91], s[0:1], 48")
        e(f"v_lshlrev_b32 v236, {sh}, v0" if sh < 21 else "v_lshlrev_b32 v236, 21, v1")
        e(f"v_min_u32 v236, {STAMPS-4}, v236")
        e("s_cmp_eq_u32 s18, 0" if sh == 21 else "s_cmp_lt_u32 s18, 4"); e(f"s_cbranch_scc0 {nm}_tl")
        e("buffer_load_dword v237, v236, s[12:15], 0 offen")
        e("v_and_b32 v236, 1, v1"); e("v_mul_u32_u24 v238, 819196, v236"); e("v_mul_u32_u24 v236, 2457596, v236"); e("s_mov_b64 exec, 3")
        e("s_waitcnt lgkmcnt(0)")
        e("global_load_dword v237, v236, s[84:85]"); e("global_load_dword v237, v238, s[86:87]"); e("global_load_dword v237, v238, s[88:89]"); e("global_load_dword v237, v236, s[90:91]")
        e("s_mov_b64 exec, -1")
        k.label(f"{nm}_tl")
        e("s_waitcnt lgkmcnt(0)")
    ACC, BF, AR, RS = 64, 128, 160, 200
    BA, AA = 216, 224
    e("s_lshl_b32 s19, s16, 2"); e("s_add_u32 s19, s19, s18")
    for jf in range(4):
        e(f"v_xor_b32 v15, {jf}, v13"); e(f"v_lshl_add_u32 v{BA+jf}, v15, 6, v14"); e(f"v_add_u32 v{BA+4+jf}, 65536, v{BA+jf}")
    e("v_lshl_add_u32 v15, v2, 5, v10"); e("v_lshlrev_b32 v15, 7, v15"); e("v_bfe_u32 v12, v10, 1, 3"); e("v_xor_b32 v12, v12, v4")
    for q in range(4):
        e(f"v_xor_b32 v11, {2*q}, v12"); e(f"v_lshl_add_u32 v{AA+q}, v11, 4, v15"); e(f"v_add_u32 v{AA+4+q}, 65536, v{AA+q}")
    e("v_mul_u32_u24 v8, 20480, v7"); e("v_lshl_add_u32 v8, v4, 8, v8"); e("v_lshl_add_u32 v8, v5, 4, v8")
    e("s_mul_i32 s24, s19, 40960"); e(f"s_add_u32 s24, s24, {XI}")
    e("v_subrev_u32 v58, 1, v4"); e("v_not_b32 v59, v58")
    e("s_cmp_ge_u32 s17, 10"); e(f"s_cbranch_scc1 {nm}_qv")
    def mainloop(vmode):
        tagm = "v" if vmode else "q"
        acc = lambda jf: vr(ACC+16*jf, 16)
        fl = k.capture(lambda: addr_v(k, 0) if vmode else addr_qk(k, 0, 28))
        def rdB(ks, f):
            u, jf = f//4, f%4; sl = slot(ks//2)
            for t in range(2):
                off = sl + (32*(ks%2) + 16*u + 4*t)*256
                k.dsop(f"ds_read_b64_tr_b16 {vr(BF+4*f+2*t,2)}, v{BA+4*(sl>>16)+jf} offset:{off & 0xffff}", f"b{ks}_{f}")
        def rdA(ks):
            sl = slot(ks//2)
            for u in range(2): k.dsop(f"ds_read_b128 {vr(AR+8*(ks%2)+4*u,4)}, v{AA+4*(sl>>16)+2*(ks%2)+u} offset:{sl & 0xffff}", f"b{ks}_a")
        kb = [-1]
        def bars(ks):
            while kb[0] < need(ks): e("s_barrier"); kb[0] += 1
        bars(0); k.stamp(3)
        rdA(0)
        for f in range(8): rdB(0, f)
        for ks in range(20):
            for f in range(8):
                u, jf = f//4, f%4
                k.waitlg(f"b{ks}_{f}")
                a = vr(AR+8*(ks%2)+4*u, 4); b = vr(BF+4*f, 4); c = acc(jf) if (ks or u) else "0"
                if vmode: e(f"v_mfma_f32_32x32x16_bf16 {acc(jf)}, {a}, {b}, {c}")
                else:     e(f"v_mfma_f32_32x32x16_bf16 {acc(jf)}, {b}, {a}, {c}")
                if ks + 1 < 20:
                    if f == 0: bars(ks+1); rdA(ks+1)
                    rdB(ks+1, f)
                if ks >= 4: k.fill(fl, 1)
            e(f"s_cmp_eq_u32 s17, {ks % 15}"); e(f"s_cbranch_scc0 {nm}_x{tagm}{ks}")
            e(f"s_add_u32 s32, s24, {1024*ks}")
            for u in range(2): e(f"buffer_store_dwordx4 {vr(AR+8*(ks%2)+4*u,4)}, v8, s[12:15], s32 offen offset:{512*u} {SC}")
            k.label(f"{nm}_x{tagm}{ks}")
            if ks in (0, 1, 4, 9, 10, 14): k.stamp(7 + (0, 1, 4, 9, 10, 14).index(ks))
        assert not fl
        k.stamp(4)
        e(f"v_lshlrev_b32 v23, 2, v10"); e(f"v_add_u32 v23, {UT}, v23"); e("s_lshl_b32 s32, s18, 8"); e("v_add_u32 v22, s32, v23")
        if vmode: e("v_lshlrev_b32 v21, 4, v4"); e(f"s_add_u32 s32, s32, {UT}"); e("v_add_u32 v21, s32, v21")
        e("s_barrier")
        e("ds_read_b32 v48, v22 offset:1024"); e("ds_read_b32 v49, v22 offset:1152")
        for jf in range(4): e(f"ds_read_b32 v{28+2*jf}, v23 offset:{256*jf}"); e(f"ds_read_b32 v{29+2*jf}, v23 offset:{256*jf+128}")
        if vmode:
            for a_ in range(4): e(f"ds_read_b128 {vr(RS+4*a_,4)}, v21 offset:{2048+32*a_}")
        else: e("ds_read_b32 v47, v22 offset:2048")
        e("s_waitcnt lgkmcnt(0)"); k.lg = []
        e("v_and_b32 v48, v48, v58"); e("v_and_b32 v49, v49, v58")
        if not vmode: e("v_mul_f32 v47, s59, v47")
        for jf in range(4):
            if vmode: e(f"v_mfma_f32_32x32x8_bf16 {acc(jf)}, v[48:49], {vr(28+2*jf,2)}, {acc(jf)}")
            else:     e(f"v_mfma_f32_32x32x8_bf16 {acc(jf)}, {vr(28+2*jf,2)}, v[48:49], {acc(jf)}")
        k.stamp(5)
    mainloop(False)
    epi_qk(k, ACC, BF)
    k.label(f"{nm}_qv"); k.lg = []
    mainloop(True)
    epi_v(k, ACC, BF, RS)
    k.label(f"{nm}_fin5")
    k.stamp(6)
    e("s_barrier")
    signal(k, "sf", -1, 8, a0, 0, "s[12:15]")
    k.dump(13)
    e(f"s_branch {kn}_t0")
    k.label(f"{nm}_ld"); k.vm = []; k.lg = []
    e(f"s_setprio {ENV('LPRIO', '2')}")
    e("v_lshrrev_b32 v16, 4, v1"); e("v_and_b32 v17, 3, v2")
    e("v_lshl_add_u32 v18, v17, 2, v16"); e("v_mul_u32_u24 v20, 3840, v18")
    e("v_xor_b32 v18, v13, v16"); e("v_lshl_add_u32 v20, v18, 6, v20"); e("v_lshl_add_u32 v20, v6, 4, v20")
    e("v_lshrrev_b32 v18, 3, v1"); e("v_lshl_add_u32 v19, v17, 5, v18"); e("v_and_b32 v23, 7, v1")
    for i in range(4):
        e(f"v_add_u32 v42, {8*i}, v19"); e("v_bfe_u32 v43, v42, 1, 3"); e("v_xor_b32 v43, v43, v23")
        e("v_mul_u32_u24 v42, 1280, v42"); e(f"v_lshl_add_u32 v{48+i}, v43, 4, v42")
        if i: e(f"v_subrev_u32 v{48+i}, {1024*i}, v{48+i}")
    e("s_lshl_b32 s25, s17, 8"); e("s_mul_i32 s24, s16, 163840"); e("s_lshl_b32 s26, s39, 12")
    def ld1(st, n):
        if n < 4:
            e(f"s_add_u32 m0, s45, {slot(st)+16384+4096*n}"); e(f"s_add_u32 s32, s25, {(64*st+16*n)*3840}")
            k.vmop("buffer_load_dwordx4 v20, s[28:31], s32 offen lds", f"d{st}")
        else:
            e(f"s_add_u32 m0, s26, {slot(st)}"); e(f"s_add_u32 s33, s24, {128*st}")
            k.vmop(f"buffer_load_dwordx4 v{44+n}, s[8:11], s33 offen offset:{1024*(n-4)} lds", f"d{st}")
    ORD = [0, 4, 1, 5, 2, 6, 3, 7]
    def ld(st):
        for n in ORD: ld1(st, n)
    kwait(); ld(0)
    e("v_xor_b32 v15, v17, v13"); e("v_lshl_add_u32 v40, v15, 6, v14"); e("v_add_u32 v41, 65536, v40")
    for r in range(4): e(f"v_mov_b32 v{60+r}, 0x3f803f80")
    k.srd(52, 4, 256)
    e("s_mul_i32 s27, s17, 163840"); e("s_add_u32 s27, s27, s45"); e(f"s_add_u32 s27, s27, {WA_I}")
    if ENV('LD1', '0'): ld(1)
    done = [0]
    def steps_of(kb):
        r = []
        while done[0] < 20 and need(done[0]) <= kb: r.append(done[0]); done[0] += 1
        return r
    def wa_store(q):
        e("s_lshl_b32 s32, s16, 13"); e("s_add_u32 s32, s32, s27")
        if q: e("s_add_u32 s32, s32, 131072")
        e("s_add_u32 s33, s32, 4096")
        for u in range(2): k.vmop(f"buffer_store_dwordx4 {vr(112+8*q+4*u,4)}, v3, s[12:15], s{32+u} offen {SC}")
    for kb in range(10):
        if kb == 5: k.stamp(5)
        k.waitvm(f"d{kb}")
        if kb == 5: k.stamp(6)
        e("s_barrier")
        if kb in (4, 5): k.stamp(2 if kb == 4 else 7)
        if kb == 0 and not ENV('LD1', '0'): ld(1)
        sl = slot(kb); todo = list(ORD) if kb + DEP < 10 else []
        nxt = lambda: ld1(kb + DEP, todo.pop(0)) if todo else None
        sts = steps_of(kb)
        for n_, ks in enumerate(sts):
            for u in range(2):
                for t in range(2):
                    e(f"ds_read_b64_tr_b16 {vr(136+8*n_+4*u+2*t,2)}, v{40+(sl>>16)} offset:{(sl + (32*(ks%2) + 16*u + 4*t)*256) & 0xffff}")
        nxt(); nxt()
        if kb == 4: k.stamp(3)
        e("s_waitcnt lgkmcnt(0)")
        mf = [(n_, ks, u) for n_, ks in enumerate(sts) for u in range(2)]
        for n_, ks, u in mf:
            e(f"v_mfma_f32_32x32x16_bf16 v[64:79], v[60:63], {vr(136+8*n_+4*u,4)}, {'v[64:79]' if ks or u else 0}")
            nxt()
        nxt(); nxt()
        if kb == 4: k.stamp(4)
        for n_, ks in enumerate(sts):
            e(f"s_cmp_eq_u32 s16, {ks % 16}"); e(f"s_cbranch_scc0 {nm}_w{ks}")
            for r in range(8): e(f"v_mov_b32 v{112+8*(ks//16)+r}, v{136+8*n_+r}")
            k.label(f"{nm}_w{ks}")
        assert not todo
        if kb == 8:
            e("v_and_b32 v24, 15, v1"); e("v_lshlrev_b32 v24, 2, v24"); e("s_mov_b32 s33, 0")
            k.label(f"{nm}_pl")
            e(f"buffer_load_dword v25, v24, s[52:55], 0 offen {SC}"); e("s_add_u32 s33, s33, 1"); e("s_waitcnt vmcnt(0)"); k.vm = []
            e("v_cmp_eq_u32 vcc, 0, v25"); e("s_cmp_ge_u32 s33, 0x20000"); e(f"s_cbranch_scc1 {nm}_px")
            e(f"s_cbranch_vccnz {nm}_pl")
            k.label(f"{nm}_px")
            e("v_lshlrev_b32 v24, 3, v10"); e("s_lshl_b32 s32, s16, 10"); e("s_lshl_b32 s33, s39, 8"); e("s_add_u32 s32, s32, s33"); e(f"s_add_u32 s32, s32, {STI}")
            k.vmop(f"buffer_load_dwordx2 v[44:45], v24, s[12:15], s32 offen {SC}", "rs")
            wa_store(0)
    k.waitvm("rs")
    stats_finish(k, 44, 45, 28, 29, 30)
    split3(k, 28, 32, 36, 'm'); split3(k, 64, 34, 36, 'u')
    e("v_lshlrev_b32 v24, 2, v10"); e("s_lshl_b32 s32, s39, 8"); e(f"s_add_u32 s32, s32, {UT}"); e("v_add_u32 v24, s32, v24")
    e("ds_write_b32 v24, v34"); e("ds_write_b32 v24, v35 offset:128"); e("ds_write_b32 v24, v32 offset:1024"); e("ds_write_b32 v24, v33 offset:1152"); e("ds_write_b32 v24, v29 offset:2048")
    e("s_waitcnt lgkmcnt(0)"); e("s_barrier")
    lwc_init(k); e("s_barrier")
    e("v_mov_b32 v44, v64")
    e("s_cmp_ge_u32 s16, 4"); e(f"s_cbranch_scc1 {nm}_le"); wa_store(1)
    e("s_cmp_eq_u32 s16, 0"); e(f"s_cbranch_scc0 {nm}_le")
    e("v_mov_b32 v45, 0"); e("v_mov_b32 v46, 0"); e("v_mov_b32 v47, 0"); e("v_lshlrev_b32 v24, 4, v10")
    e("s_lshl_b32 s32, s17, 11"); e("s_lshl_b32 s33, s39, 9"); e("s_add_u32 s32, s32, s33"); e(f"s_add_u32 s32, s32, {U_A}")
    e("s_mov_b32 exec_hi, 0"); e(f"buffer_store_dwordx4 v[44:47], v24, s[12:15], s32 offen {SC}")
    k.label(f"{nm}_le")
    e("s_mov_b64 exec, -1")
    signal(k, "sfl", -1, 8, a0, 0, "s[12:15]")
    k.dump(8)
    e(f"s_branch {kn}_t0")
    k.label(f"{nm}_ub"); k.vm = []; k.lg = []
    kwait()
    e("v_lshrrev_b32 v4, 3, v1"); e("v_lshl_add_u32 v4, v2, 4, v4"); e("v_mul_u32_u24 v5, 1280, v4"); e("v_and_b32 v6, 7, v1"); e("v_lshl_add_u32 v5, v6, 4, v5")
    e("s_mul_i32 s24, s16, 163840"); e("s_add_u32 s25, s24, 10240")
    for b_ in range(2):
        for i in range(10): k.vmop(f"buffer_load_dwordx4 {vr(24+40*b_+4*i,4)}, v5, s[8:11], s{24+b_} offen offset:{128*i}", f"x{b_}{i}")
    for j in range(8): e(f"v_mov_b32 v{8+j}, 0")
    e("v_mov_b32 v7, 0x3f803f80")
    e("v_lshlrev_b32 v16, 4, v0"); e("s_and_b32 s26, s16, 7"); e("s_lshl_b32 s26, s26, 13"); e(f"s_add_u32 s26, s26, {CNT}"); e("s_cmp_ge_u32 s16, 8"); e(f"s_cselect_b32 s27, {LS}, 0"); e("s_add_u32 s26, s26, s27")
    k.vmop(f"buffer_store_dwordx4 v[12:15], v16, s[12:15], s26 offen {SC}")
    for b_ in range(2):
        for i in range(10):
            k.waitvm(f"x{b_}{i}")
            for q in range(4):
                r = 24+40*b_+4*i+q
                e(f"v_dot2_f32_bf16 v{8+2*b_}, v{r}, v7, v{8+2*b_}"); e(f"v_dot2_f32_bf16 v{9+2*b_}, v{r}, v{r}, v{9+2*b_}")
    for dpp in ("quad_perm:[1,0,3,2]", "quad_perm:[2,3,0,1]", "row_half_mirror"):
        for q in range(4): e(f"v_add_f32_dpp v{8+q}, v{8+q}, v{8+q} {dpp} row_mask:0xf bank_mask:0xf")
    e("v_lshlrev_b32 v4, 3, v4"); e("s_lshl_b32 s26, s16, 10"); e(f"s_add_u32 s26, s26, {STI}")
    e("v_cmp_eq_u32 vcc, 0, v6"); k.srd(52, 4, 256); e("s_mov_b64 exec, vcc")
    e(f"buffer_store_dwordx2 v[8:9], v4, s[12:15], s26 offen {SC}"); e(f"buffer_store_dwordx2 v[10:11], v4, s[12:15], s26 offen offset:64 {SC}")
    e("s_mov_b64 exec, -1"); lwc_init(k)
    e("s_waitcnt vmcnt(0)"); e("s_barrier")
    e("s_cmp_ge_u32 s18, 4"); e(f"s_cbranch_scc1 {nm}_u2")
    codepf("u")
    e("s_cmp_eq_u32 s18, 0"); e(f"s_cbranch_scc0 {nm}_u2")
    e("v_mov_b32 v4, 0"); e("v_mov_b32 v5, 1"); e("s_lshl_b32 s26, s16, 2"); e("s_mov_b64 exec, 1")
    e(f"buffer_store_dword v5, v4, s[52:55], s26 offen {SC}")
    e("s_mov_b64 exec, 0xffff"); e("v_lshlrev_b32 v4, 2, v1"); e("s_mov_b32 s33, 0")
    k.label(f"{nm}_u1")
    e(f"buffer_load_dword v5, v4, s[52:55], 0 offen {SC}"); e("s_add_u32 s33, s33, 1"); e("s_waitcnt vmcnt(0)")
    e("v_cmp_eq_u32 vcc, 0, v5"); e("s_cmp_ge_u32 s33, 0x20000"); e(f"s_cbranch_scc1 {nm}_u2"); e(f"s_cbranch_vccnz {nm}_u1")
    k.label(f"{nm}_u2")
    e("s_mov_b64 exec, -1"); e("s_waitcnt vmcnt(0)")

def k_main():
    k = KB(NAME + "_kernel"); e = k.e; name = k.name
    ph_front(k)
    k.label(f"{name}_t0")
    e("s_load_dwordx2 s[46:47], s[0:1], 48"); e("s_mov_b32 s3, 0")
    k.srd(8, 6, 2*LS)
    e("s_waitcnt lgkmcnt(0)")
    k.srd(60, 46, S*D*2)
    k.label(f"{name}_top")
    k.vm = []; k.lg = []
    e("s_setprio 0"); k.stamp(0); k.rstamp(1)
    ph_attn(k)
    def a1():
        e("s_lshl_b32 s48, s17, 3"); e("s_and_b32 s49, s16, 1"); e("s_add_u32 s48, s48, s49"); e("s_lshl_b32 s48, s48, 8"); e(f"s_add_u32 s48, s48, {C1}")
        e(f"v_lshlrev_b32 v{PV_+1}, 9, v1"); e("s_mov_b64 s[56:57], 15")
    e("s_cmp_ge_u32 s18, 4"); e(f"s_cbranch_scc1 {name}_ld")
    signal(k, "s1", 0, 8, a1)
    def c1():
        e("s_lshl_b32 s48, s16, 9"); e(f"s_add_u32 s48, s48, {C1}")
        e(f"v_lshlrev_b32 v{PV_+1}, 8, v1"); e(f"v_mov_b32 v{PV_+2}, 16"); e("s_mov_b64 s[56:57], 3")
    proj_c(k, "p2", OT, XI, XM, STM, False, c1, 0, 6)
    def a2():
        e("s_lshr_b32 s48, s16, 1"); e("s_lshl_b32 s48, s48, 9"); e(f"s_add_u32 s48, s48, {C2}")
        e(f"v_mul_u32_u24 v{PV_+1}, 768, v1"); e("s_bitcmp1_b32 s16, 0"); e("s_cselect_b64 s[56:57], 3, 1")
    signal(k, "s2", 1, 4, a2)
    qkvb_c(k, XM, STM, 9)
    def a3(): one(k, 0); e("s_lshl_b32 s48, s16, 8"); e(f"s_add_u32 s48, s48, {C3}")
    signal(k, "s3", 0, 4, a3)
    def c3(): one(k, 16); e("s_lshr_b32 s48, s16, 1"); e("s_lshl_b32 s48, s48, 8"); e(f"s_add_u32 s48, s48, {C3}")
    proj_c(k, "p4", OBT, XM, LS + XI, LS + STI, True, c3, 0, 12)
    def a4(): one(k, 0); e("s_lshr_b32 s48, s16, 1"); e("s_lshl_b32 s48, s48, 8"); e(f"s_add_u32 s48, s48, {C4}")
    signal(k, "s4", 1, 4, a4)
    k.dump(15, "1")
    ids_mt(k)
    e("s_cmp_ge_u32 s17, 15"); e(f"s_cbranch_scc1 {name}_idle")
    qkva_c(k, LS + XI, LS + STI, LS, C4, [7], 3)
    k.stamp(6)
    e("s_barrier")
    def a5(): e("s_lshl_b32 s48, s17, 11"); e(f"s_add_u32 s48, s48, {LS + C0}"); e(f"v_lshlrev_b32 v{PV_+1}, 8, v1"); e("s_mov_b64 s[56:57], 0xff")
    signal(k, "s5", -1, 4, a5)
    k.dump(7, "3")
    k.label(f"{name}_t1")
    e("s_mov_b32 s3, 1"); e(f"s_add_u32 s8, s8, {LS}"); e("s_addc_u32 s9, s9, 0"); e(f"s_mov_b32 s10, {LS}")
    e(f"s_branch {name}_top")
    k.label(f"{name}_idle")
    for _ in range(4): e("s_barrier")
    e(f"s_branch {name}_t1")
    k.label(f"{name}_ld"); k.vm = []; k.lg = []
    e(f"s_setprio {ENV('LPRIO', '2')}")
    w = proj_l(k, WOA_I, WB_I, OT, a1, 0)
    qkvb_l(k, XM, STM, w)
    w = proj_l(k, WOB_I, WA_I, OBT, None, 0, True)
    ids_mt(k)
    atouch_pre(k, LS + XI)
    e("s_barrier")
    e("buffer_load_dword v20, v21, s[8:11], s51 offen")
    w.one(39); e("s_waitcnt vmcnt(0)"); e("s_barrier")
    e("s_barrier"); lwc_init(k); e("s_barrier")
    e(f"s_branch {name}_t1")
    k.label(f"{name}_end"); e("s_endpgm")
    k.tail()
    return k.text(256 if STAMP else 244, 256 if STAMP else 244)

def build():
    hdr = open("cdna_kernels/" + NAME + ".s.ref").read().split("; Override launch")[0]
    out = hdr + "; @launch grid=(256,1,1) block=(512,1,1) lds=163840\n"
    out += '.amdgcn_target "amdgcn-amd-amdhsa--gfx950"\n'
    out += k_main()
    out += ".text\ncode_end:\n"
    return out

if __name__ == "__main__":
    dst = sys.argv[1] if len(sys.argv) > 1 else "cdna_kernels/" + NAME + ".s"
    open(dst, "w").write(build())
    print("wrote", dst)
```

```python
import sys, math
from lint import lint, fix

NAME = "interleave_layers__softmax_full_mha__sliding_local_dilated__prompt"
S, D, H, DH = 2048, 640, 32, 20
XS = S*D*2
IMG = H*64*2560
QI = H*64*1280
OT = 0; OBT = XS; XM = 2*XS; XI = 3*XS
STM = 4*XS; STI = STM + S*64
QIMG = STI + S*64; KVIMG = QIMG + QI
CNT = KVIMG + IMG
C1 = CNT; C2 = C1 + 64*256; C3 = C2 + 34*256; C4 = C3 + 16*256; C0 = C4 + 16*256
LS = CNT + 65536
CS = LS + C4
U_A = 2*LS
U_B = U_A + 32768
WA_I = U_B + 163840
WOA_I = WA_I + 15*163840
WB_I = WOA_I + 819200
WOB_I = WB_I + 16*163840
STAMPS = WOB_I + 819200
WS_END = STAMPS + 16*262144
import os
STAMP = int(os.environ.get("STAMP", "0"))
ATTN_WAVES = 8
AV = os.environ.get("AV", "")
CSCALE = (DH ** -0.5) * math.log2(math.e)
import struct
def fbits(x): return "0x%08x" % struct.unpack("<I", struct.pack("<f", x))[0]

FM = [(0,16),(32,48),(80,96),(112,128),(64,144)]
def FX(ks, t):
    return 160*(ks//5) + FM[ks%5][t]

class KB:
    def __init__(s, name):
        s.name = name; s.L = []; s.vm = []; s.lg = []; s.cap = None
    def e(s, line):
        if s.cap is not None: s.cap.append(('e', line, None))
        else: s.L.append("    " + line)
    def capture(s, fn):
        s.cap = []; fn(); c = s.cap; s.cap = None
        return [x for x in c if not (x[0] == 'e' and x[1].startswith('s_nop'))]
    def fill(s, lst, n=1):
        for _ in range(n):
            if not lst: return
            kind, a, b = lst.pop(0)
            if kind == 'e':
                s.e(a)
                if a.startswith('s_cmp'):
                    while lst and lst[0][0] == 'e' and lst[0][1].startswith('s_cselect'): s.e(lst.pop(0)[1])
            elif kind == 'ds': s.dsop(a, b)
            elif kind == 'wvm': s.waitvm(a)
            elif kind == 'wlg': s.waitlg(a)
    def c(s, txt): s.L.append("    ; " + txt)
    def label(s, l): s.L.append(l + ":")
    def vmop(s, line, tag=None): s.e(line); s.vm.append(tag); assert len(s.vm) <= 63, (s.name, len(s.vm))
    def dsop(s, line, tag=None):
        if s.cap is not None: s.cap.append(('ds', line, tag)); return
        s.e(line); s.lg.append(tag)
    def _n(s, lst, tag):
        idx = max(i for i, t in enumerate(lst) if t == tag)
        return idx
    def waitvm(s, tag):
        if s.cap is not None: s.cap.append(('wvm', tag, None)); return
        if tag not in s.vm: return
        i = s._n(s.vm, tag); n = len(s.vm) - 1 - i
        s.e(f"s_waitcnt vmcnt({n})"); s.vm = s.vm[i+1:]
    def waitlg(s, tag):
        if s.cap is not None: s.cap.append(('wlg', tag, None)); return
        if tag not in s.lg: return
        i = s._n(s.lg, tag); n = len(s.lg) - 1 - i
        if n > 15: n = 15; i = len(s.lg) - 1 - n
        s.e(f"s_waitcnt lgkmcnt({n})"); s.lg = s.lg[i+1:]
    def waitall(s):
        s.e("s_waitcnt vmcnt(0) lgkmcnt(0)"); s.vm = []; s.lg = []
    def srd(s, r, base, nbytes):
        s.e(f"s_mov_b32 s{r}, s{base}")
        s.e(f"s_and_b32 s{r+1}, s{base+1}, 0xffff")
        s.e(f"s_mov_b32 s{r+2}, {nbytes}")
        s.e(f"s_mov_b32 s{r+3}, 0x20000")
    def stamp(s, i):
        if not STAMP: return
        op = "s_memrealtime" if os.environ.get("RT") else "s_memtime"
        s.e(f"{op} s[{64+2*i}:{65+2*i}]" if i < 10 else f"{op} s[{72+2*i}:{73+2*i}]")
    def rstamp(s, i):
        if not STAMP: return
        s.e(f"s_memrealtime s[{64+2*i}:{65+2*i}]")
    def dump(s, n=8, slot="0", wave="s18"):
        if not STAMP: return
        e = s.e
        if os.environ.get("DBG"):
            keep = {"0": [(1, 246), (3, 247), (6, 248)], "1": [(2, 249), (5, 250), (14, 251)], "3": [(6, 252)], "2": [(2, 253), (5, 254), (14, 255)]}[slot]
            e("s_waitcnt lgkmcnt(0)")
            if n < 7 or (slot == "0" and n == 8): return
            for i, v in keep: e(f"v_mov_b32 v{v}, s{64+2*i if i < 10 else 72+2*i}")
            if slot == "2":
                e(f"s_cmp_eq_u32 s2, {os.environ['DBG']}"); e("s_cbranch_scc0 dbg_skip"); e("s_cmp_eq_u32 s18, 0"); e("s_cbranch_scc0 dbg_skip")
                e("s_load_dwordx2 s[84:85], s[0:1], 56"); e("s_memrealtime s[86:87]"); e("s_waitcnt lgkmcnt(0)")
                s.srd(88, 84, 256); e("s_mov_b64 exec, 1"); e("v_mov_b32 v0, 0"); e("v_mov_b32 v245, s86"); e("v_sub_u32 v245, v245, v246")
                for i in range(9):
                    e(f"v_sub_u32 v{247+i}, v{247+i}, v246"); e(f"buffer_store_dword v{247+i}, v0, s[88:91], 0 offen offset:{4*i}")
                e("buffer_store_dword v245, v0, s[88:91], 0 offen offset:36")
                s.label("dbg_skip")
            return
        e("s_memrealtime s[86:87]"); e("s_waitcnt lgkmcnt(0)")
        e("s_mov_b64 exec, 1")
        e(f"s_lshl_b32 s84, {slot}, 18")
        e("s_lshl_b32 s85, s2, 3"); e(f"s_add_u32 s85, s85, {wave}"); e("s_lshl_b32 s85, s85, 6"); e(f"s_add_u32 s85, s85, {STAMPS}"); e("s_add_u32 s85, s85, s84")
        e("v_mov_b32 v244, 0")
        for i in range(n):
            e(f"v_mov_b32 v245, s{64+2*i if i < 10 else 72+2*i}")
            e(f"buffer_store_dword v245, v244, s[12:15], s85 offen offset:{4*i}")
        e("v_mov_b32 v245, s86"); e("buffer_store_dword v245, v244, s[12:15], s85 offen offset:60")
        e("s_mov_b64 exec, -1")
    def text(s, vgpr, accum, sgpr=102):
        s.L, added = fix(s.L)
        if os.environ.get("V"): print(s.name, "auto nops:", added, "lines:", len(s.L))
        out = [".text", f".globl {s.name}", ".p2align 8", f".type {s.name},@function", f"{s.name}:"]
        out += s.L
        out += ['.section .rodata,"a"', ".p2align 6", f".amdhsa_kernel {s.name}",
                f"  .amdhsa_next_free_vgpr {vgpr}", f"  .amdhsa_next_free_sgpr {sgpr}", f"  .amdhsa_accum_offset {accum}",
                "  .amdhsa_group_segment_fixed_size 0", "  .amdhsa_kernarg_size 72", "  .amdhsa_user_sgpr_count 2",
                "  .amdhsa_user_sgpr_kernarg_segment_ptr 1", "  .amdhsa_system_sgpr_workgroup_id_x 1", ".end_amdhsa_kernel"]
        nb = lint(s.L, s.name)
        assert nb == 0, f"{nb} hazards in {s.name}"
        return "\n".join(out) + "\n"
    def allred32(s, op, v, t):
        s.e(f"v_mov_b32 v{t}, v{v}"); s.e("s_nop 1")
        s.e(f"v_permlane32_swap_b32 v{v}, v{t}"); s.e("s_nop 1")
        s.e(f"{op} v{v}, v{v}, v{t}")
    def allred16(s, op, v, t):
        s.e(f"v_mov_b32 v{t}, v{v}"); s.e("s_nop 1")
        s.e(f"v_permlane16_swap_b32 v{v}, v{t}"); s.e("s_nop 1")
        s.e(f"{op} v{v}, v{v}, v{t}")

def vr(a, n): return f"v[{a}:{a+n-1}]" if n > 1 else f"v{a}"
def ar(a, n): return f"a[{a}:{a+n-1}]" if n > 1 else f"a{a}"

def stats_finish(k, s1, s2, mean, rstd, t):
    e = k.e
    e(f"v_mul_f32 v{mean}, {fbits(1.0/D)}, v{s1}")
    e(f"v_mul_f32 v{t}, {fbits(1.0/D)}, v{s2}")
    e(f"v_fma_f32 v{t}, -v{mean}, v{mean}, v{t}")
    e(f"v_max_f32 v{t}, 0, v{t}")
    e(f"v_add_f32 v{t}, {fbits(1e-5)}, v{t}")
    e(f"v_rsq_f32 v{rstd}, v{t}")
    e("s_nop 0")

def split3(k, src, d, t, kind, maskv=None):
    e = k.e
    if kind == 'm':
        e(f"v_xor_b32 v{t+1}, 0x80000000, v{src}"); src = t+1
    e(f"v_and_b32 v{t}, 0xffff0000, v{src}")
    e(f"v_sub_f32 v{t+2}, v{src}, v{t}")
    if kind == 'u':
        e(f"v_cvt_pk_bf16_f32 v{d}, v{t}, v{t+2}")
        e(f"v_lshrrev_b32 v{d+1}, 16, v{t}")
    else:
        e(f"v_cvt_pk_bf16_f32 v{d}, v{t}, v{t}")
        e(f"v_cvt_pk_bf16_f32 v{d+1}, v{t+2}, 0")
    if maskv is not None:
        e(f"v_and_b32 v{d}, v{d}, v{maskv}"); e(f"v_and_b32 v{d+1}, v{d+1}, v{maskv}")

SC = "sc1"
EARLY = int(os.environ.get('EARLY', '6'))
ENV = lambda n, d: int(os.environ.get(n, d))

def ids_mt(k):
    k.e("s_lshl_b32 s22, s20, 1"); k.e("s_and_b32 s23, s21, 1"); k.e("s_add_u32 s16, s22, s23"); k.e("s_lshr_b32 s17, s21, 1")
def ids_rt(k):
    k.e("s_lshl_b32 s22, s20, 2"); k.e("s_and_b32 s23, s21, 3"); k.e("s_add_u32 s16, s22, s23"); k.e("s_lshr_b32 s17, s21, 2")

LW = 163824
PV_ = 240
def lw_init(k):
    e = k.e
    e(f"v_mov_b32 v{PV_+3}, {LW}")
    for i in range(3): e(f"v_mov_b32 v{PV_+i}, 0")
    e(f"ds_write_b96 v{PV_+3}, v[{PV_}:{PV_+2}]"); e(f"ds_write_b32 v{PV_+3}, v{PV_} offset:12")

def lwc_init(k):
    k.e(f"v_mov_b32 v{PV_+3}, {LW-8}"); k.e(f"v_mov_b32 v{PV_}, 0"); k.e(f"v_mov_b32 v{PV_+1}, 0")
    k.e(f"ds_write_b64 v{PV_+3}, v[{PV_}:{PV_+1}]"); k.e("s_waitcnt lgkmcnt(0)")

def signal(k, tag, word, nw, addr_code, younger=0, srd="s[8:11]"):
    e = k.e
    addr_code()
    e(f"v_mov_b32 v{PV_+3}, {LW-8}"); e(f"v_mov_b32 v{PV_}, 1")
    e("s_mov_b64 exec, 1")
    assert younger == 0
    e("s_waitcnt vmcnt(0)"); k.vm = []
    if tag == os.environ.get("FOC"): k.stamp(2)
    e(f"ds_add_rtn_u32 v{PV_+2}, v{PV_+3}, v{PV_} offset:{8*word+8}")
    e("s_waitcnt lgkmcnt(0)"); k.lg = []
    e(f"v_readfirstlane_b32 s49, v{PV_+2}")
    e("s_mov_b64 exec, s[56:57]")
    e(f"s_cmp_eq_u32 s49, {nw-1}"); e(f"s_cbranch_scc0 {k.name}_{tag}_sg")
    e(f"buffer_atomic_add v{PV_}, v{PV_+1}, {srd}, s48 offen {SC}")
    if os.environ.get("FOC2") == tag: k.stamp(4)
    k.label(f"{k.name}_{tag}_sg")
    e("s_mov_b64 exec, -1")

def wait_go(k, tag, word, poll_code):
    e = k.e; nm = f"{k.name}_{tag}"
    e(f"v_mov_b32 v{PV_+3}, {LW-8}"); e("s_mov_b32 s49, 0")
    if poll_code:
        e("s_cmp_eq_u32 s18, 0"); e(f"s_cbranch_scc0 {nm}_sp")
        poll_code()
        e("s_mov_b64 exec, s[56:57]")
        if os.environ.get("FOC") == "g" + tag: k.stamp(2)
        k.label(f"{nm}_pl")
        e(f"v_mov_b32 v{PV_}, 0")
        e(f"buffer_atomic_add v{PV_}, v{PV_+1}, s[8:11], s48 offen sc0 sc1")
        e("s_add_u32 s49, s49, 1")
        e("s_waitcnt vmcnt(0)")
        e(f"v_cmp_ge_u32 vcc, v{PV_}, v{PV_+2}")
        e("s_cmp_ge_u32 s49, 0x20000"); e(f"s_cbranch_scc1 {nm}_px")
        e("s_cmp_eq_u64 vcc, exec"); e(f"s_cbranch_scc0 {nm}_pl")
        k.label(f"{nm}_px")
        if os.environ.get("FOC") == "g" + tag: e("s_add_u32 s70, s64, s49")
        e("s_mov_b64 exec, 1"); e(f"v_mov_b32 v{PV_}, 1")
        e(f"ds_write_b32 v{PV_+3}, v{PV_} offset:{8*word+12}")
        e(f"s_branch {nm}_go")
    k.label(f"{nm}_sp")
    e("s_sleep 1")
    e(f"ds_read_b32 v{PV_}, v{PV_+3} offset:{8*word+12}")
    e("s_add_u32 s49, s49, 1")
    e("s_waitcnt lgkmcnt(0)")
    e(f"v_readfirstlane_b32 s44, v{PV_}")
    e("s_cmp_ge_u32 s49, 0x400000"); e(f"s_cbranch_scc1 {nm}_go")
    e("s_cmp_eq_u32 s44, 0"); e(f"s_cbranch_scc1 {nm}_sp")
    k.label(f"{nm}_go")
    e("s_mov_b64 exec, -1")

class Wdma:
    def __init__(s, k, n, base=50, tag="w"): s.k = k; s.n = n; s.i = 0; s.base = base; s.tag = tag
    def one(s, i):
        s.k.e(f"s_add_u32 m0, s45, {4096*i}"); s.k.e(f"s_add_u32 s32, s{s.base}, {4096*i}")
        s.k.vmop(f"buffer_load_dwordx4 v3, s[12:15], s32 offen {SC} lds", f"{s.tag}{i}")
    def go(s, upto):
        while s.i < min(upto, s.n): s.one(s.i); s.i += 1
    def rng(s, a, b, thr=0):
        for i in range(a, b):
            s.one(i)
            if thr and len(s.k.vm) >= thr: s.k.e(f"s_waitcnt vmcnt({thr-1})"); s.k.vm = s.k.vm[len(s.k.vm)-thr+1:]

SIDE_SV = 152; SIDE_D = 160; SIDE_U = 192
def side_setup(k):
    e = k.e; nm = k.name
    e("s_load_dwordx4 s[84:87], s[0:1], 32"); e("s_load_dwordx2 s[88:89], s[0:1], 16")
    e("s_mul_i32 s49, s2, 3"); e("s_add_u32 s49, s49, s18"); e("s_sub_u32 s49, s49, 4")
    e("s_sub_u32 s32, s18, 4"); e("s_cmp_lt_u32 s32, 3"); e("s_cselect_b32 s49, s49, 959"); e("s_cmp_eq_u32 s3, 0"); e("s_cselect_b32 s49, s49, 959")
    e("s_lshl_b32 s35, s39, 13"); e("s_add_u32 s35, s35, 128000")
    e("s_mul_i32 s36, s49, 3277"); e("s_lshr_b32 s36, s36, 16"); e("s_mul_i32 s37, s36, 20"); e("s_sub_u32 s37, s49, s37")
    e("v_and_b32 v140, 15, v1"); e("v_lshrrev_b32 v141, 2, v140"); e("v_and_b32 v142, 3, v1")
    e("s_waitcnt lgkmcnt(0)")
    SV = SIDE_SV
    e("v_lshrrev_b32 v136, 4, v1")
    for r in list(range(SV, SV+5)) + list(range(144, 152)): e(f"v_mov_b32 v{r}, 0")
    e("s_mov_b32 s5, 0")
    e("s_mov_b32 s53, 0x7ff00000"); e("s_mov_b32 s54, s53"); e("s_mov_b32 s58, s53")
    e("s_cmp_ge_u32 s49, 320"); e(f"s_cbranch_scc1 {nm}_ss1")
    k.srd(88, 84, D*3*D*2)
    e(f"s_mul_i32 s5, s37, {32*3840}"); e("s_mul_i32 s32, s36, 80"); e("s_add_u32 s5, s5, s32")
    for par in range(2):
        e(f"v_add_u32 v137, {4*par}, v136"); e("v_lshlrev_b32 v137, 1, v137"); e("v_xor_b32 v137, v137, v140"); e("v_min_u32 v137, 14, v137")
        e("v_mul_u32_u24 v138, 52, v137"); e("v_lshrrev_b32 v138, 8, v138"); e("v_mul_u32_u24 v138, 1200, v138"); e("v_lshl_add_u32 v138, v137, 4, v138")
        e("v_mul_u32_u24 v137, 3840, v136"); e(f"v_add_u32 v{SV+par}, v138, v137")
    e("v_and_b32 v138, 1, v136"); e("v_lshl_add_u32 v138, v138, 2, v141"); e("v_lshlrev_b32 v138, 5, v138")
    e("v_lshl_add_u32 v137, v136, 3, v141"); e("v_lshlrev_b32 v137, 8, v137"); e("v_add_u32 v137, s35, v137")
    for F in range(8):
        if F < 6:
            e("v_lshlrev_b32 v139, 3, v142")
            if F: e(f"v_add_u32 v139, {40*F}, v139")
        elif F == 6: e("v_mul_u32_u24 v139, 40, v142"); e("v_add_u32 v139, 32, v139")
        else: e("v_and_b32 v139, 1, v142"); e("v_mul_u32_u24 v139, 40, v139"); e("v_add_u32 v139, 192, v139")
        e("v_xor_b32 v139, v139, v138"); e(f"v_add_u32 v{144+F}, v139, v137")
    e("s_mul_i32 s53, s36, 163840"); e("s_lshl_b32 s54, s37, 13"); e("s_add_u32 s53, s53, s54"); e(f"s_add_u32 s53, s53, {WB_I}"); e("s_add_u32 s54, s53, 4096"); e("s_mov_b32 s58, s54")
    e(f"s_branch {nm}_ss2")
    k.label(f"{nm}_ss1")
    e("s_cmp_ge_u32 s36, 24"); e("s_cselect_b32 s32, s86, s88"); e("s_cselect_b32 s33, s87, s89")
    k.srd(88, 32, D*D*2)
    e("s_cmp_ge_u32 s49, 640"); e(f"s_cbranch_scc1 {nm}_ss2")
    e("s_and_b32 s32, s36, 7"); e("s_mul_i32 s32, s32, 160")
    e("s_mul_i32 s5, s37, 40"); e("s_sub_u32 s34, s37, 16"); e("s_mul_i32 s34, s34, 160"); e("s_add_u32 s34, s34, 16")
    e("s_cmp_lt_u32 s37, 16"); e("s_cselect_b32 s5, s5, s34"); e("s_cselect_b32 s33, 4, 2"); e("s_cselect_b32 s34, 4, 16")
    e("s_mul_i32 s5, s5, 1280"); e("s_add_u32 s5, s5, s32")
    for i in range(5):
        e(f"v_add_u32 v137, {64*i}, v1"); e("v_mul_u32_u24 v138, 6554, v137"); e("v_lshrrev_b32 v138, 16, v138")
        e("v_lshrrev_b32 v139, s33, v138"); e("v_mul_u32_u24 v139, s34, v139"); e("v_mul_u32_u24 v139, 1280, v139")
        e("v_mul_u32_u24 v138, 1120, v138"); e("v_add_u32 v139, v139, v138"); e(f"v_lshl_add_u32 v{SV+i}, v137, 4, v139")
    e("v_lshlrev_b32 v137, 2, v136"); e("s_mov_b32 s32, 2560")
    e("s_cmp_ge_u32 s36, 24"); e(f"s_cbranch_scc1 {nm}_sf3"); e("s_cmp_ge_u32 s37, 16"); e(f"s_cbranch_scc1 {nm}_sf3")
    e("v_lshrrev_b32 v137, 1, v136"); e("v_lshlrev_b32 v137, 4, v137"); e("v_and_b32 v138, 1, v136"); e("v_lshl_add_u32 v137, v138, 2, v137"); e("s_mov_b32 s32, 1280")
    k.label(f"{nm}_sf3")
    e("v_add_u32 v137, v137, v141"); e("v_mul_u32_u24 v137, 160, v137"); e("v_add_u32 v137, s35, v137")
    e("s_and_b32 s33, s36, 1"); e("s_lshl_b32 s34, s33, 5"); e("s_xor_b32 s33, s33, 1"); e("s_lshl_b32 s33, s33, 7")
    e("v_lshl_add_u32 v144, v142, 4, v137"); e("v_add_u32 v144, s34, v144"); e("v_add_u32 v145, s32, v144")
    e("v_lshl_add_u32 v146, v142, 3, v137"); e("v_add_u32 v146, s33, v146"); e("v_add_u32 v147, s32, v146")
    e("s_cmp_ge_u32 s36, 24"); e(f"s_cselect_b32 s53, {WOB_I-WOA_I}, 0"); e("s_and_b32 s54, s36, 7"); e("s_mul_i32 s54, s54, 102400"); e("s_add_u32 s53, s53, s54")
    e("s_mul_i32 s54, s37, 5120"); e("s_add_u32 s53, s53, s54"); e(f"s_add_u32 s53, s53, {WOA_I}"); e("s_add_u32 s54, s53, 4096")
    k.label(f"{nm}_ss2")
    e("s_lshl_b32 s38, s49, 9"); e(f"s_add_u32 s38, s38, {U_B}"); e("s_cmp_ge_u32 s49, 320"); e("s_cselect_b32 s38, 0x7ff00000, s38")
    e("v_lshlrev_b32 v143, 2, v1")
    e("s_cmp_lt_u32 s49, 640"); e("s_cselect_b32 s4, 2, 0"); e("s_cmp_lt_u32 s49, 320"); e("s_cselect_b32 s4, 1, s4")
    e("s_and_b32 s55, s49, 15"); e("s_lshl_b32 s55, s55, 8"); e(f"s_add_u32 s55, s55, {CS}")

def ph_attn(k):
    e = k.e; nm = k.name
    KA, KT, VA = 4, 5, 6
    Q = [8, 14]; KF = [24, 32]; VF = [40, 48]; SS = [56, 72]; P = 88; O = [96, 112]; PF = 208
    SCR = 128000; TOP = 128000
    ids_rt(k)
    e("v_and_b32 v3, 31, v1"); e("v_lshrrev_b32 v7, 5, v1")
    e("v_lshlrev_b32 v22, 4, v1"); e("v_lshlrev_b32 v23, 3, v3")
    e("s_mul_i32 s19, s16, 163840")
    e("s_lshr_b32 s41, s18, 2")
    e("s_lshl_b32 s23, s17, 3"); e("s_lshl_b32 s22, s39, 1"); e("s_add_u32 s23, s23, s22")
    e("s_add_u32 s23, s23, s41")
    e("s_lshr_b32 s22, s19, 1"); e(f"s_add_u32 s22, s22, {QIMG}")
    e("s_mul_i32 s24, s23, 1280"); e("s_add_u32 s24, s24, s22"); e("s_xor_b32 s40, s23, 1"); e("s_mul_i32 s40, s40, 1280"); e("s_add_u32 s40, s40, s22")
    e("s_mul_i32 s42, s41, 2560"); e(f"s_add_u32 s42, s42, {TOP}")
    e("s_lshl_b32 s25, s18, 10")
    e(f"s_add_u32 s26, s19, {KVIMG}")
    rnd = [0]
    def dma():
        i = rnd[0]; rnd[0] += 1
        if i == 4:
            e("s_cmp_lt_u32 s18, 3"); e("s_cselect_b32 s27, 163840, 0"); e("s_add_u32 s27, s27, s25"); e("s_sub_u32 m0, s27, 3072")
        else: e(f"s_add_u32 m0, s25, {(TOP + 8192*i) if i < 4 else 8192*i - 35840}")
        e("s_add_u32 s27, s26, m0")
        k.vmop(f"buffer_load_dwordx4 v22, s[8:11], s27 offen {SC} lds", f"i{i}")
    e(f"v_add_u32 v{KA}, s42, v22")
    e(f"v_add_u32 v{KT}, s42, v23"); e(f"v_add_u32 v{KT}, 1024, v{KT}")
    e("v_mul_u32_u24 v21, 20, v7"); e("v_add_u32 v21, v21, v3"); e("v_lshlrev_b32 v21, 4, v21")
    e("v_add_u32 v21, 1280, v21"); e(f"v_add_u32 v{VA}, s42, v21")
    e("s_mov_b32 s28, 0x000fffff"); e("s_mov_b32 s29, 0x000fffff")
    e("v_cmp_eq_u32 vcc, 20, v3"); e("v_mov_b32 v20, 0x3f803f80"); e("s_nop 0")
    e("v_cndmask_b32 v20, 0, v20, vcc")
    for r in range(16): e(f"v_mov_b32 v{VF[0]+r}, v20")
    for r in range(32): e(f"v_mov_b32 v{O[0]+r}, 0")
    for r in range(4): e(f"v_mov_b32 v{P+4+r}, 0")
    e("v_subrev_u32 v30, 1, v7")
    e("s_lshl_b32 s43, s21, 2"); e("s_add_u32 s43, s43, s39"); e("s_mul_i32 s43, s43, 27648"); e(f"s_add_u32 s43, s43, {WOA_I}")
    e("s_mul_i32 s32, s23, 40960"); e(f"s_add_u32 s32, s32, {OT}")
    e("s_lshr_b32 s51, s16, 1"); e("s_lshl_b32 s51, s51, 10"); e("s_and_b32 s34, s16, 1"); e("s_lshl_b32 s34, s34, 9")
    e("s_add_u32 s51, s51, s34"); e("s_add_u32 s51, s51, s32")
    e("s_lshr_b32 s52, s16, 3"); e("s_add_u32 s52, s52, 16"); e("s_lshl_b32 s52, s52, 10"); e("s_add_u32 s52, s52, s32")
    e("s_and_b32 s35, s16, 3"); e("s_lshl_b32 s35, s35, 8"); e("s_add_u32 s52, s52, s35")
    e("s_bfe_u32 s35, s16, 0x10002"); e("s_lshl_b32 s35, s35, 3"); e("s_add_u32 s52, s52, s35")
    e("v_lshrrev_b32 v38, 4, v3"); e("v_mul_u32_u24 v38, 20480, v38"); e("v_and_b32 v39, 15, v3")
    e("v_lshl_add_u32 v38, v39, 4, v38"); e("v_lshl_add_u32 v39, v7, 8, v38")
    e("s_mul_i32 s32, s18, 3072"); e("s_xor_b32 s33, s18, 4"); e("s_mul_i32 s33, s33, 3072")
    e(f"v_add_u32 v132, {SCR}, v22"); e("v_add_u32 v133, s33, v132"); e("v_add_u32 v132, s32, v132")
    def c0(nl):
        e("s_lshl_b32 s48, s17, 8"); e(f"s_add_u32 s48, s48, {C0}"); e(f"v_mov_b32 v{PV_+2}, 16")
        e("s_mul_i32 s32, s16, 20"); e("s_add_u32 s33, s32, 19"); e("s_lshr_b32 s32, s32, 7"); e("s_lshr_b32 s33, s33, 7"); e("s_sub_u32 s33, s33, s32")
        e(f"v_lshrrev_b32 v{PV_+1}, 1, v1"); e(f"v_mul_u32_u24 v{PV_+1}, 5, v{PV_+1}"); e(f"v_and_b32 v{PV_}, s33, v1"); e(f"v_add3_u32 v{PV_+1}, v{PV_+1}, v{PV_}, s32")
        e(f"v_lshlrev_b32 v{PV_+1}, 11, v{PV_+1}"); e("s_mov_b64 s[56:57], 63")
    side_setup(k)
    e("v_lshlrev_b32 v134, 11, v1"); e("s_lshl_b32 s32, s17, 8"); e(f"s_add_u32 s32, s32, {C0}"); e("v_add_u32 v134, s32, v134")
    e("v_lshlrev_b32 v135, 8, v1"); e(f"v_add_u32 v135, {CS - 4096}, v135"); e("v_cmp_gt_u32 vcc, 16, v1")
    e("v_cndmask_b32 v134, v135, v134, vcc"); e("v_cndmask_b32 v131, 40, 16, vcc"); e("v_mov_b32 v135, 64")
    wait_go(k, "t", -1, lambda: c0(6))
    k.stamp(2)
    dma()
    for x in range(2):
        k.vmop(f"buffer_load_dwordx4 {vr(Q[x],4)}, v22, s[8:11], s{(24,40)[x]} offen {SC}", "q")
        k.vmop(f"buffer_load_dwordx2 {vr(Q[x]+4,2)}, v23, s[8:11], s{(24,40)[x]} offen offset:1024 {SC}", "q")
    for _ in range(3): dma()
    k.waitvm("q")
    for x in range(2):
        e(f"v_and_b32 v{Q[x]+4}, v{Q[x]+4}, v30"); e(f"v_and_b32 v{Q[x]+5}, v{Q[x]+5}, v30")
    k.waitvm("i1"); e("s_barrier"); k.stamp(3)
    def rdK(buf, off):
        off *= 2
        e(f"ds_read_b128 {vr(KF[buf],4)}, v{KA} offset:{off}")
        e(f"ds_read_b64 {vr(KF[buf]+4,2)}, v{KT} offset:{off}")
    def rdV(buf, off):
        off *= 2
        e("s_mov_b64 exec, s[28:29]")
        e(f"ds_read_b128 {vr(VF[buf],4)}, v{VA} offset:{off}")
        e(f"ds_read_b128 {vr(VF[buf]+4,4)}, v{VA} offset:{off+640}")
        e("s_mov_b64 exec, -1")
    def qkm(x, kb): e(f"v_mfma_f32_32x32x16_bf16 {vr(SS[x],16)}, {vr(KF[kb],4)}, {vr(Q[x],4)}, 0")
    def qkt(x, kb): e(f"v_mfma_f32_32x32x8_bf16 {vr(SS[x],16)}, {vr(KF[kb]+4,2)}, {vr(Q[x]+4,2)}, {vr(SS[x],16)}")
    def pv(x, vb, u): e(f"v_mfma_f32_32x32x16_bf16 {vr(O[x],16)}, {vr(VF[vb]+4*u,4)}, {vr(P+4*u,4)}, {vr(O[x],16)}")
    def base(t):
        return 0 if t < 7 else 7 if t < 19 else 19 if t < 31 else 31
    def bump(regs, t):
        if t == 7:
            for r in regs: e(f"v_subrev_u32 v{r}, {TOP}, v{r}")
        elif t in (19, 31):
            for r in regs: e(f"v_add_u32 v{r}, {12*5120}, v{r}")
    def unit(x, t, extra=()):
        p = t % 2; s = SS[x]
        ex = lambda i: e(f"v_exp_f32 v{s+i}, v{s+i}")
        cv = lambda i: e(f"v_cvt_pk_bf16_f32 v{P+i}, v{s+2*i}, v{s+2*i+1}")
        kb = p if x == 0 else 1-p
        if x == 1: e("s_waitcnt lgkmcnt(2)" if t < 31 else "s_waitcnt lgkmcnt(0)")
        if not (x == 1 and t == 31): qkm(1-x, kb)
        if x == 1 and t + 2 < 32:
            bump((KA, KT), t+2); rdK(p, (t+2-base(t+2))*2560)
        for i in range(0, 4): ex(i)
        if x == 0:
            pv(1, 1-p, 1)
            if t + 1 < 32:
                bump((VA,), t+1); rdV(1-p, (t+1-base(t+1))*2560)
        else:
            pv(0, p, 1)
        for f_ in extra: f_()
        for i in range(4, 8): ex(i)
        for i in range(0, 4): cv(i)
        if not (x == 1 and t == 31): qkt(1-x, kb)
        for i in range(8, 12): ex(i)
        if x == 0: e(f"s_waitcnt lgkmcnt({4 if t < 31 else 0})")
        pv(x, p, 0)
        for i in range(12, 16): ex(i)
        for i in range(4, 8): cv(i)
    rdK(0, 0); rdV(0, 0); rdK(1, 2560)
    e("s_waitcnt lgkmcnt(4)")
    qkm(0, 0); e("s_nop 10"); qkt(0, 0); e("s_nop 10")
    SYN = {1: 3, 4: 7, 7: 19}; SW = ENV('SW', '26')
    T_SI, T_SR, T_SA, T_PF, T_LC = 8, ENV('TSR', '15'), 26, 11, 26
    hk = [0]
    def cond(test, fn):
        def g():
            hk[0] += 1; lab = f"{nm}_hk{hk[0]}"
            e(test); e(f"s_cbranch_scc0 {lab}"); fn(); k.label(lab)
        return g
    def prio1(): e("s_setprio 1")
    def pref():
        for _ in range(2): e(f"buffer_load_dwordx4 {vr(PF,4)}, v22, s[12:15], s43 offen {SC}"); e("s_add_u32 s43, s43, 1024")
    def side_issue():
        e("s_cmp_eq_u32 s4, 1"); e(f"s_cbranch_scc0 {nm}_i1")
        for i in range(8):
            e(f"s_add_u32 m0, s35, {1024*i}"); e(f"s_add_u32 s27, s5, {4*3840*i}")
            e(f"buffer_load_dwordx4 v{SIDE_SV+(i>>1)%2}, s[88:91], s27 offen nt lds")
        e(f"s_branch {nm}_i2")
        k.label(f"{nm}_i1")
        for i in range(5):
            e(f"s_add_u32 m0, s35, {1024*i}"); e("s_nop 0")
            e(f"buffer_load_dwordx4 v{SIDE_SV+i}, s[88:91], s5 offen nt lds")
        k.label(f"{nm}_i2")
    def side_read():
        e("s_waitcnt vmcnt(0)")
        e("s_cmp_eq_u32 s4, 1"); e(f"s_cbranch_scc0 {nm}_r1")
        for F in range(8):
            for t in range(2): e(f"ds_read_b64_tr_b16 {vr(SIDE_D+4*F+2*t,2)}, v{144+F} offset:{1024*t}")
        e(f"s_branch {nm}_r2")
        k.label(f"{nm}_r1")
        for nf in range(5):
            for t in range(2): e(f"ds_read_b64_tr_b16 {vr(SIDE_D+4*nf+2*t,2)}, v{144+t if nf < 4 else 146+t} offset:{64*(nf//2)+8*(nf%2) if nf < 4 else 0}")
        k.label(f"{nm}_r2")
    def side_done():
        e("s_waitcnt lgkmcnt(0)"); e(f"v_mov_b32 v{PV_+3}, {LW-8}"); e(f"v_mov_b32 v{PV_}, 1"); e("s_mov_b64 exec, 1")
        e(f"ds_add_u32 v{PV_+3}, v{PV_}"); e("s_mov_b64 exec, -1")
    UP = lambda F: SIDE_U + 4*F if F < 4 else 212 + 4*(F-4)
    def side_sum():
        for r in range(4): e(f"v_mov_b32 v{228+r}, 0x3f803f80")
        for F in range(8): e(f"v_mfma_f32_16x16x32_bf16 {vr(UP(F),4)}, v[228:231], {vr(SIDE_D+4*F,4)}, 0")
    def side_sum2():
        for q in range(2):
            for g in range(1, 4):
                e(f"v_cmp_eq_u32 vcc, {g}, v136"); e(f"v_cndmask_b32 v{UP(4*q)}, v{UP(4*q)}, v{UP(4*q+g)}, vcc")
            e(f"buffer_store_dword v{UP(4*q)}, v143, s[12:15], s38 offen offset:{256*q} {SC}")
    def side_store(F):
        return lambda: e(f"buffer_store_dwordx4 {vr(SIDE_D+4*F,4)}, v22, s[12:15], s{53 if F < 4 else 54 if F == 4 else 58} offen offset:{1024*(F%4)} {SC}")
    def side_arrive():
        e(f"v_mov_b32 v{PV_+1}, 0"); e(f"v_mov_b32 v{PV_}, 1"); e("s_waitcnt vmcnt(0)"); e("s_mov_b64 exec, 1")
        e(f"buffer_atomic_add v{PV_}, v{PV_+1}, s[12:15], s55 offen {SC}"); e("s_mov_b64 exec, -1")
    def late():
        e("s_mov_b32 exec_lo, 0xffff7fff"); e("s_mov_b32 exec_hi, 0"); e(f"buffer_load_dword v135, v134, s[12:15], 0 offen {SC}"); e("s_mov_b64 exec, -1")
    def init_words(): lw_init(k); e(f"v_mov_b32 v{PV_+3}, {LW-8}"); e(f"ds_write_b32 v{PV_+3}, v{PV_}")
    side = "s_cmp_lg_u32 s4, 0"
    for t in range(32):
        if t in SYN: k.waitvm(f"i{SYN[t]}"); e("s_barrier")
        x0, x1 = [], []
        if rnd[0] < 20: x0 += [dma, dma]; x1 += [dma, dma]
        if t == 6: x1.append(lambda: None)
        if t == 7: x0.append(cond("s_cmp_eq_u32 s18, 4", init_words))
        if t == 8:
            e("s_waitcnt lgkmcnt(2)"); e("s_barrier"); cond("s_cmp_ge_u32 s18, 4", prio1)()
            if os.environ.get("FOC") == "at": k.stamp(2)
        if t == SW + 1 and os.environ.get("FOC") == "at": k.stamp(0)
        if t == T_SI: x1.append(cond(side, side_issue))
        if t == T_SR: x1.append(cond(side, side_read))
        if t == T_SR + 1: x0.append(cond("s_bitcmp1_b32 0x70, s18", side_done)); x1.append(cond("s_cmp_eq_u32 s4, 1", side_sum))
        if t == T_SR + 2: x0.append(cond("s_cmp_eq_u32 s4, 1", side_sum2))
        if T_SR + 1 <= t < T_SR + 9: x1.append(cond(side, side_store(t - T_SR - 1)))
        if t == T_SA: x0.append(cond(side, side_arrive))
        if T_PF <= t < T_PF + 14 and ENV('PFW', '1'): x0.append(cond("s_cmp_lt_u32 s18, 4", pref))
        if t == T_LC: x1.append(cond("s_cmp_eq_u32 s18, 0", late))
        if t == SW: x1.append(lambda: e("s_setprio 0"))
        if t == 31: x0.append(lambda: (e(f"v_mov_b32 v{PV_+3}, {LW-8}"), e(f"ds_read_b32 v{PV_+2}, v{PV_+3}")))
        unit(0, t, x0); unit(1, t, x1)
    pv(1, 1, 1); k.stamp(4)
    e("s_mov_b32 s30, 0")
    e(f"s_mov_b32 s32, {fbits(2.0**-60)}"); e(f"s_mov_b32 s33, {fbits(2.0**100)}"); e(f"s_mov_b32 s34, {fbits(2.0**126)}")
    e(f"v_readfirstlane_b32 s36, v{PV_+2}"); e("s_cmp_lt_u32 s36, 3"); e(f"s_cbranch_scc1 {nm}_scr")
    k.label(f"{nm}_scrok")
    e("s_nop 4")
    for i in range(3): e(f"ds_write_b128 v132, {vr(O[1]+4*i,4)} offset:{1024*i}")
    e("s_waitcnt vmcnt(0)"); e("v_cmp_gt_u32 vcc, v131, v135"); e(f"s_cbranch_vccnz {nm}_late")
    k.label(f"{nm}_lok")
    e("s_waitcnt lgkmcnt(0)"); e("s_barrier")
    for i in (2, 0, 1): e(f"ds_read_b128 {vr(SS[0]+4*i,4)}, v133 offset:{1024*i}")
    OO = O[0]
    e("s_waitcnt lgkmcnt(2)")
    for r in range(8, 12): e(f"v_add_f32 v{OO+r}, v{OO+r}, v{SS[0]+r}")
    e("s_waitcnt lgkmcnt(0)")
    for r in range(8): e(f"v_add_f32 v{OO+r}, v{OO+r}, v{SS[0]+r}")
    k.label(f"{nm}_chk")
    e(f"v_mov_b32 v30, v{OO+8}"); e(f"v_mov_b32 v31, v{OO+8}")
    e(f"v_max3_f32 v28, abs(v{OO}), abs(v{OO+1}), abs(v{OO+2})")
    e("v_permlane32_swap_b32 v30, v31")
    for r in range(3, 11, 2): e(f"v_max3_f32 v28, abs(v{OO+r}), abs(v{OO+r+1}), v28")
    e(f"v_max_f32 v28, abs(v{OO+11}), v28")
    e("v_cmp_le_f32 vcc, s32, v31"); e("v_cmp_ge_f32 s[36:37], s33, v31"); e("v_cmp_gt_f32 s[40:41], s34, v28")
    e("v_rcp_f32 v31, v31")
    e("s_and_b64 s[36:37], s[36:37], vcc"); e("s_and_b64 s[36:37], s[36:37], s[40:41]")
    e("s_cmp_eq_u64 s[36:37], -1"); e(f"s_cbranch_scc0 {nm}_slow")
    def slowpath():
        k.label(f"{nm}_late")
        e("s_mov_b32 s49, 0")
        k.label(f"{nm}_late1")
        e("s_sleep 8"); late(); e("s_add_u32 s49, s49, 1"); e("s_waitcnt vmcnt(0)")
        e("v_cmp_gt_u32 vcc, v131, v135"); e("s_cmp_ge_u32 s49, 0x20000"); e(f"s_cbranch_scc1 {nm}_lok"); e(f"s_cbranch_vccnz {nm}_late1")
        e(f"s_branch {nm}_lok")
        k.label(f"{nm}_scr")
        e("s_mov_b32 s49, 0")
        k.label(f"{nm}_scr1")
        e(f"ds_read_b32 v{PV_+2}, v{PV_+3}"); e("s_add_u32 s49, s49, 1"); e("s_waitcnt lgkmcnt(0)"); e(f"v_readfirstlane_b32 s36, v{PV_+2}")
        e("s_cmp_ge_u32 s49, 0x400000"); e(f"s_cbranch_scc1 {nm}_scrok"); e("s_cmp_lt_u32 s36, 3"); e(f"s_cbranch_scc1 {nm}_scr1")
        e(f"s_branch {nm}_scrok")
        k.label(f"{nm}_slow")
        e("s_cmp_eq_u32 s30, 0"); e(f"s_cbranch_scc0 {nm}_fin")
        e("s_mov_b32 s30, 1")
        e("s_waitcnt vmcnt(0)")
        NM = O[1]
        e("v_mov_b32 v32, 0xff800000")
        def slowqk(c):
            e(f"buffer_load_dwordx4 {vr(KF[0],4)}, v22, s[8:11], s27 offen {SC}")
            e(f"buffer_load_dwordx2 {vr(KF[0]+4,2)}, v23, s[8:11], s27 offen offset:1024 {SC}")
            e("s_waitcnt vmcnt(0)")
            e(f"v_mfma_f32_32x32x16_bf16 {vr(SS[0],16)}, {vr(KF[0],4)}, {vr(Q[0],4)}, {c}"); e("s_nop 10")
            e(f"v_mfma_f32_32x32x8_bf16 {vr(SS[0],16)}, {vr(KF[0]+4,2)}, {vr(Q[0]+4,2)}, {vr(SS[0],16)}"); e("s_nop 12")
        e(f"s_add_u32 s27, s19, {KVIMG}"); e("s_mov_b32 s31, 0")
        k.label(f"{nm}_mx")
        slowqk("0")
        for r in range(0, 16, 2): e(f"v_max3_f32 v32, v{SS[0]+r}, v{SS[0]+r+1}, v32")
        e("s_add_u32 s27, s27, 2560")
        e("s_add_u32 s31, s31, 1"); e("s_cmp_lt_u32 s31, 64"); e(f"s_cbranch_scc1 {nm}_mx")
        k.allred32("v_max_f32", 32, 33)
        e("v_xor_b32 v32, 0x80000000, v32")
        for r in range(16): e(f"v_mov_b32 v{NM+r}, v32")
        for r in range(16): e(f"v_mov_b32 v{OO+r}, 0")
        for r in range(8): e(f"v_mov_b32 v{VF[0]+r}, v20")
        e(f"s_add_u32 s27, s19, {KVIMG}"); e("s_mov_b32 s31, 0")
        k.label(f"{nm}_sl")
        e("s_mov_b64 exec, s[28:29]")
        e(f"buffer_load_dwordx4 {vr(VF[0],4)}, v21, s[8:11], s27 offen {SC}")
        e(f"buffer_load_dwordx4 {vr(VF[0]+4,4)}, v21, s[8:11], s27 offen offset:640 {SC}")
        e("s_mov_b64 exec, -1")
        slowqk(vr(NM,16))
        for i in range(16): e(f"v_exp_f32 v{SS[0]+i}, v{SS[0]+i}")
        e("s_nop 0")
        for i in range(8): e(f"v_cvt_pk_bf16_f32 v{P+i}, v{SS[0]+2*i}, v{SS[0]+2*i+1}")
        e("s_nop 1")
        pv(0, 0, 0); pv(0, 0, 1)
        e("s_add_u32 s27, s27, 2560")
        e("s_add_u32 s31, s31, 1"); e("s_cmp_lt_u32 s31, 64"); e(f"s_cbranch_scc1 {nm}_sl")
        e("s_nop 12"); e(f"s_branch {nm}_chk")
    k.tail = slowpath
    k.label(f"{nm}_fin")
    e("s_nop 0")
    for r in range(12): e(f"v_mul_f32 v{OO+r}, v{OO+r}, v31")
    for r in range(6): e(f"v_cvt_pk_bf16_f32 v{P+r}, v{OO+2*r}, v{OO+2*r+1}")
    e(f"buffer_store_dwordx4 {vr(P,4)}, v39, s[8:11], s51 offen {SC}")
    e("s_mov_b32 exec_hi, 0")
    e(f"buffer_store_dwordx2 {vr(P+4,2)}, v38, s[8:11], s52 offen {SC}")
    e("s_mov_b64 exec, -1")
    k.stamp(5)
    e("v_lshlrev_b32 v3, 4, v1")
    k.vm = []; k.lg = []

def proj_c(k, tag, src, xin, xout, stout, last, cnt_code, word, st0):
    final = False
    e = k.e
    ACC, RESID, A, BF = 24, 44, 76, 156
    NA0 = ENV('PA0', '8')
    ids_rt(k)
    e("s_lshl_b32 s19, s16, 2"); e("s_add_u32 s19, s19, s39")
    e("s_mul_i32 s24, s19, 20480")
    e("s_lshr_b32 s33, s17, 1"); e("s_mul_i32 s33, s33, 5120"); e("s_add_u32 s33, s33, s24")
    e("s_and_b32 s34, s17, 1"); e("s_mul_i32 s35, s34, 3072"); e("s_add_u32 s35, s35, s33")
    e("s_lshl_b32 s36, s34, 9"); e("s_add_u32 s36, s36, s33"); e("s_add_u32 s36, s36, 2048")
    e(f"s_add_u32 s37, s35, {xin}"); e(f"s_add_u32 s38, s36, {xin}")
    e("v_lshrrev_b32 v13, 5, v1"); e("v_lshlrev_b32 v13, 8, v13"); e("v_and_b32 v14, 15, v1"); e("v_lshl_add_u32 v13, v14, 4, v13")
    e("v_bfe_u32 v14, v1, 4, 1"); e("v_lshl_add_u32 v13, v14, 3, v13")
    k.vmop(f"buffer_load_dwordx4 {vr(RESID,4)}, v3, s[8:11], s37 offen {SC}", "r")
    k.vmop(f"buffer_load_dwordx4 {vr(RESID+4,4)}, v3, s[8:11], s37 offen offset:1024 {SC}", "r")
    k.vmop(f"buffer_load_dwordx2 {vr(RESID+8,2)}, v13, s[8:11], s38 offen {SC}", "r")
    e(f"s_add_u32 s24, s24, {src}")
    for i in range(1, 5): e(f"s_add_u32 s{24+i}, s24, {4096*i}")
    e("v_lshrrev_b32 v9, 4, v1"); e("v_add_u32 v12, 61440, v3")
    wait_go(k, tag, word, cnt_code)
    k.stamp(st0)
    def ldA(n): k.vmop(f"buffer_load_dwordx4 {vr(A+4*n,4)}, v3, s[8:11], s{24+n//4} offen offset:{(n%4)*1024} {SC}", f"a{n}")
    for n in range(NA0): ldA(n)
    k.waitvm("r")
    for i in range(10):
        e(f"v_lshlrev_b32 v{ACC+2*i}, 16, v{RESID+i}"); e(f"v_and_b32 v{ACC+2*i+1}, 0xffff0000, v{RESID+i}")
    def rd(n, nf):
        off = n*5120 + nf*1024; b = 3
        if n >= 12: off -= 61440; b = 12
        k.dsop(f"ds_read_b128 {vr(BF+20*(n%2)+4*nf,4)}, v{b} offset:{off}", f"b{n}_{nf}")
    e("s_barrier")
    for n in range(2):
        for nf in range(5): rd(n, nf)
    for n in range(20):
        k.waitvm(f"a{n}")
        if n == 0: k.stamp(st0+1)
        for nf in range(5):
            if nf in (0, 2, 4): k.waitlg(f"b{n}_{min(nf+1,4)}")
            if n == 12 and nf == 0 and not final: e("s_barrier")
            e(f"v_mfma_f32_16x16x32_bf16 {vr(ACC+4*nf,4)}, {vr(BF+20*(n%2)+4*nf,4)}, {vr(A+4*n,4)}, {vr(ACC+4*nf,4)}")
            if n + 2 < 20: rd(n+2, nf)
            if nf == 0 and n + NA0 < 20: ldA(n + NA0)
    e("s_barrier")
    if last:
        e("s_cmp_eq_u32 s3, 0"); e(f"s_cbranch_scc1 {k.name}_nf")
        e("v_and_b32 v16, 15, v1"); e("v_mul_u32_u24 v16, 1280, v16"); e("v_lshl_add_u32 v17, v9, 3, v16"); e("v_lshl_add_u32 v16, v9, 4, v16")
        e("s_mul_i32 s32, s19, 20480"); e("s_mul_i32 s31, s17, 160"); e("s_add_u32 s32, s32, s31")
        e("s_lshl_b32 s31, s34, 5"); e("s_add_u32 s33, s32, s31"); e("s_xor_b32 s31, s34, 1"); e("s_lshl_b32 s31, s31, 7"); e("s_add_u32 s32, s32, s31")
        FSC = os.environ.get("FSC", "")
        for i in range(10): e(f"v_cvt_pk_bf16_f32 v{RESID+i}, v{ACC+2*i}, v{ACC+2*i+1}")
        e(f"buffer_store_dwordx4 {vr(RESID,4)}, v16, s[60:63], s33 offen {FSC}")
        e(f"buffer_store_dwordx4 {vr(RESID+4,4)}, v16, s[60:63], s33 offen offset:64 {FSC}")
        e(f"buffer_store_dwordx2 {vr(RESID+8,2)}, v17, s[60:63], s32 offen {FSC}")
        k.stamp(st0+2)
        if STAMP: e("s_waitcnt vmcnt(0)")
        k.dump(15, "2")
        e("s_endpgm")
        k.label(f"{k.name}_nf")
    if True:
        e(f"s_add_u32 s37, s35, {xout}"); e(f"s_add_u32 s38, s36, {xout}")
        e("s_lshl_b32 s32, s19, 10"); e("s_lshl_b32 s33, s17, 7"); e("s_add_u32 s32, s32, s33"); e(f"s_add_u32 s32, s32, {stout}")
        e("v_lshlrev_b32 v16, 3, v1")
        for i in range(10): e(f"v_cvt_pk_bf16_f32 v{RESID+i}, v{ACC+2*i}, v{ACC+2*i+1}")
        e(f"buffer_store_dwordx4 {vr(RESID,4)}, v3, s[8:11], s37 offen {SC}")
        e(f"buffer_store_dwordx4 {vr(RESID+4,4)}, v3, s[8:11], s37 offen offset:1024 {SC}")
        e(f"buffer_store_dwordx2 {vr(RESID+8,2)}, v13, s[8:11], s38 offen {SC}")
        e(f"v_add_f32 v18, v{ACC}, v{ACC+1}"); e(f"v_mul_f32 v19, v{ACC}, v{ACC}"); e(f"v_add_f32 v20, v{ACC+2}, v{ACC+3}"); e(f"v_mul_f32 v21, v{ACC+1}, v{ACC+1}")
        e(f"v_fmac_f32 v19, v{ACC+2}, v{ACC+2}"); e(f"v_fmac_f32 v21, v{ACC+3}, v{ACC+3}")
        for i in range(4, 20, 2):
            e(f"v_add_f32 v18, v18, v{ACC+i}"); e(f"v_fmac_f32 v19, v{ACC+i}, v{ACC+i}")
            e(f"v_add_f32 v20, v20, v{ACC+i+1}"); e(f"v_fmac_f32 v21, v{ACC+i+1}, v{ACC+i+1}")
        e("v_add_f32 v18, v18, v20"); e("v_add_f32 v19, v19, v21")
        for sw in ("v_permlane16_swap_b32", "v_permlane32_swap_b32"):
            e("v_mov_b32 v20, v18"); e("v_mov_b32 v21, v19"); e("s_nop 0")
            e(f"{sw} v18, v20"); e(f"{sw} v19, v21"); e("s_nop 0")
            e("v_add_f32 v18, v18, v20"); e("v_add_f32 v19, v19, v21")
        e("s_mov_b64 exec, 0xffff")
        e(f"buffer_store_dwordx2 v[18:19], v16, s[8:11], s32 offen {SC}")
    k.stamp(st0+2)

def proj_l(k, wimg, nxt, src, sig=None, done=0, last=False):
    e = k.e
    if nxt is not None:
        ids_mt(k)
        e("s_min_u32 s17, s17, 14" if nxt == WA_I else "s_nop 0")
        e("s_mul_i32 s58, s17, 163840"); e("s_add_u32 s58, s58, s45"); e(f"s_add_u32 s58, s58, {nxt}")
    ids_rt(k)
    e("s_mul_i32 s50, s17, 102400"); e("s_add_u32 s50, s50, s45"); e(f"s_add_u32 s50, s50, {wimg}")
    e("s_mul_i32 s51, s16, 81920"); e("s_lshl_b32 s52, s17, 2"); e("s_add_u32 s52, s52, s39"); e("s_mul_i32 s52, s52, 2560"); e("s_add_u32 s51, s51, s52"); e(f"s_add_u32 s51, s51, {src}")
    e("v_min_u32 v21, 39, v1"); e("v_lshlrev_b32 v21, 6, v21")
    w = Wdma(k, 25, 50, "o"); k.vm = []
    T1, T2 = ENV('T1', '0'), ENV('T2', '4')
    if sig:
        signal(k, "s1l", 0, 8, sig)
        ub_prep(k, 0)
    w.rng(done, 25, T1 if sig else 0)
    w2 = Wdma(k, 40, 58)
    if last:
        e("s_cmp_eq_u32 s3, 0"); e(f"s_cbranch_scc1 {k.name}_nl")
        e("s_waitcnt vmcnt(0)"); e("s_barrier"); e("buffer_load_dword v20, v21, s[8:11], s51 offen"); e("s_endpgm")
        k.label(f"{k.name}_nl")
    if sig:
        w2.rng(25, 31, T1)
        e(f"v_mov_b32 v{PV_+3}, {LW}"); e("s_mov_b32 s49, 0")
        k.label(f"{k.name}_a8")
        e(f"ds_read_b32 v{PV_}, v{PV_+3}"); e("s_add_u32 s49, s49, 1"); e("s_waitcnt lgkmcnt(0)"); e(f"v_readfirstlane_b32 s44, v{PV_}")
        e("s_cmp_ge_u32 s49, 0x400000"); e("s_cselect_b32 s44, 8, s44"); e("s_cmp_lt_u32 s44, 8"); e(f"s_cbranch_scc1 {k.name}_a8")
    if nxt is not None: w2.rng(31 if sig else 32, 39, T1 if sig else 0)
    if sig: ub_prep(k, 1)
    k.waitvm("o24")
    e("s_barrier")
    if ENV('ATOUCH', '1'):
        k.vmop("buffer_load_dword v20, v21, s[8:11], s51 offen")
    if nxt is not None:
        if not sig: w2.rng(25, 32)
        e("s_barrier")
        w2.rng(0, 15)
        e("s_barrier")
        k.waitvm("w14")
        w2.rng(15, 25, T2)
    return w2

def stats16(k, s, rstd, mop, mask):
    e = k.e
    e(f"v_add_f32 v{s}, v{s}, v{s+2}"); e(f"v_add_f32 v{s+1}, v{s+1}, v{s+3}")
    k.allred16("v_add_f32", s, s+2); k.allred16("v_add_f32", s+1, s+3)
    k.allred32("v_add_f32", s, s+2); k.allred32("v_add_f32", s+1, s+3)
    stats_finish(k, s, s+1, s+2, rstd, s+3)
    split3(k, s+2, mop, 17, 'm', mask)
def usum(k, u, dst, t=17):
    e = k.e
    e(f"v_add_f32 v{u}, v{u}, v{u+1}"); e(f"v_add_f32 v{u+2}, v{u+2}, v{u+3}"); e(f"v_add_f32 v{u}, v{u}, v{u+2}")
    split3(k, u, dst, t, 'u')
def scale_pack(k, a, sc, dst):
    for r in range(4): k.e(f"v_mul_f32 v{a+r}, v{a+r}, v{sc(r)}")
    for r in range(2): k.e(f"v_cvt_pk_bf16_f32 v{dst+r}, v{a+2*r}, v{a+2*r+1}")
EX = 102400
SOFF = 2*8192 + 7296
UOFF = lambda F: (F//4)*8192 + 7168 + (F%4)*256 + 128
TOKF = (0, 1, 2, 3, 6); FEAF = (4, 5, 7)

def ub_prep(k, part):
    e = k.e
    if part: return ub_fin(k)
    e("v_and_b32 v5, 15, v1"); e("v_lshrrev_b32 v6, 4, v1"); e("s_lshr_b32 s30, s21, 1")
    e("v_mul_u32_u24 v12, 2560, v6"); e("v_lshl_add_u32 v12, v5, 2, v12")
    e("s_mul_i32 s30, s30, 10240"); e("s_lshl_b32 s31, s39, 7"); e("s_add_u32 s30, s30, s31"); e(f"s_add_u32 s30, s30, {U_B}")
    for q in range(2):
        for j_ in range(5): k.vmop(f"buffer_load_dword v{64+5*q+j_}, v12, s[12:15], s30 offen offset:{512*j_+64*q}", "up")
    e("s_lshr_b32 s30, s39, 1"); e("s_lshl_b32 s30, s30, 13"); e("s_and_b32 s31, s39, 1"); e("s_lshl_b32 s31, s31, 9"); e("s_add_u32 s30, s30, s31")
    e("v_lshlrev_b32 v51, 3, v5"); e("v_add_u32 v46, s30, v51")
def ub_fin(k):
    e = k.e
    k.waitvm("up")
    for q in range(2):
        u = 64+5*q
        e(f"v_add_f32 v{u}, v{u}, v{u+1}"); e(f"v_add_f32 v{u+2}, v{u+2}, v{u+3}"); e(f"v_add_f32 v{u}, v{u}, v{u+4}"); e(f"v_add_f32 v{u}, v{u}, v{u+2}")
        k.allred16("v_add_f32", u, u+1); k.allred32("v_add_f32", u, u+1)
        split3(k, u, 28+2*q, 17, 'u')

def atouch_pre(k, xin):
    e = k.e
    e("s_mul_i32 s51, s16, 163840"); e("s_lshl_b32 s52, s17, 2"); e("s_add_u32 s52, s52, s39"); e("s_mul_i32 s52, s52, 2560"); e("s_add_u32 s51, s51, s52"); e(f"s_add_u32 s51, s51, {xin}")
    e("v_min_u32 v21, 39, v1"); e("v_lshlrev_b32 v21, 6, v21")

def qkvb_pre(k):
    e = k.e
    ids_mt(k)
    e("v_and_b32 v5, 15, v1"); e("v_lshrrev_b32 v6, 4, v1")
    e("s_lshl_b32 s22, s16, 3"); e("s_lshl_b32 s19, s39, 1"); e("s_add_u32 s19, s19, s22")
    e("v_lshlrev_b32 v11, 3, v5"); e("v_lshl_add_u32 v11, v6, 8, v11")
    e("v_cmp_eq_u32 vcc, 0, v6"); e("v_lshlrev_b32 v10, 4, v6"); e("s_nop 0"); e("v_cndmask_b32 v4, 0, -1, vcc")

def qkvb_c(k, xin, stin, st0):
    e = k.e; nm = k.name
    DA = 5
    ACC, BF, AR, RSV = 64, 160, 192, 228
    acc = lambda b, F: ACC + 32*b + 4*F
    qkvb_pre(k)
    e("s_mul_i32 s25, s19, 20480"); e(f"s_add_u32 s25, s25, {xin}"); e("s_add_u32 s26, s25, 20480")
    e("v_add_u32 v41, 65536, v3"); e("v_add_u32 v42, 131072, v3")
    MC, MP, MP1 = 64, 68, 72
    NEG = fbits(-1e30)
    e("v_lshlrev_b32 v43, 3, v5")
    e("v_lshlrev_b32 v17, 2, v6"); e("v_sub_u32 v17, v5, v17")
    e(f"v_mov_b32 v19, {NEG}")
    for r in range(4):
        e(f"v_subrev_u32 v18, {r}, v17"); e("v_and_b32 v16, 0x80000001, v18")
        e("v_cmp_eq_u32 vcc, 0, v16"); e(f"v_cndmask_b32 v{MC+r}, v19, 0, vcc")
        e("v_cmp_eq_u32 vcc, 0x80000000, v16"); e(f"v_cndmask_b32 v{MP+r}, v19, 0, vcc")
    e("s_cmp_eq_u32 s19, 0"); e(f"s_cselect_b32 s34, {NEG}, 0")
    for r in range(4): e(f"v_add_f32 v{MP1+r}, s34, v{MP+r}")
    e("v_cmp_eq_u32 vcc, 2, v6"); e("v_cndmask_b32 v38, 0, -1, vcc")
    e("v_cmp_eq_u32 vcc, 3, v6"); e("v_cndmask_b32 v39, 0, -1, vcc")
    e("s_mov_b32 s30, -1"); e("s_mov_b32 s31, 0"); e("s_mov_b32 s28, 0xff00ff00"); e("s_mov_b32 s29, s28"); e("v_mov_b32 v47, 0x3f803f80")
    e("s_lshl_b32 s35, s18, 13"); e(f"s_add_u32 s35, s35, {SOFF}"); e("v_add_u32 v44, s35, v43"); e("v_lshl_add_u32 v45, v5, 2, s35"); e("v_add_u32 v46, s35, v10")
    e("s_mul_i32 s35, s18, 5120"); e(f"s_add_u32 s35, s35, {EX}"); e("v_add_u32 v9, s35, v3")
    e("s_mul_i32 s24, s19, 20480"); e(f"s_add_u32 s24, s24, {OBT}")
    e("s_lshl_b32 s51, s17, 10"); e("s_add_u32 s51, s51, s24"); e("s_add_u32 s52, s51, 20480")
    e("s_lshr_b32 s53, s17, 2"); e("s_add_u32 s53, s53, 16"); e("s_lshl_b32 s53, s53, 10"); e("s_add_u32 s53, s53, s24")
    e("s_and_b32 s54, s17, 1"); e("s_lshl_b32 s54, s54, 9"); e("s_add_u32 s53, s53, s54")
    e("s_bfe_u32 s54, s17, 0x10001"); e("s_lshl_b32 s54, s54, 3"); e("s_add_u32 s53, s53, s54"); e("s_add_u32 s54, s53, 20480")
    def c2():
        e("s_lshl_b32 s48, s16, 9"); e(f"s_add_u32 s48, s48, {C2}")
        e(f"v_lshlrev_b32 v{PV_+1}, 8, v1"); e(f"v_lshlrev_b32 v{PV_+2}, 3, v1"); e(f"v_sub_u32 v{PV_+2}, 16, v{PV_+2}")
        e("s_cmp_eq_u32 s16, 0"); e("s_cselect_b64 s[56:57], 1, 3")
    wait_go(k, "p3", 1, c2)
    k.stamp(st0)
    def ldA(ks):
        for b in range(2):
            if ks % 4 == 0 and ks > 0: e(f"s_add_u32 s{25+b}, s{25+b}, 4096")
            k.vmop(f"buffer_load_dwordx4 {vr(AR+8*(ks%DA)+4*b,4)}, v3, s[8:11], s{25+b} offen offset:{(ks%4)*1024} {SC}", f"a{ks}")
    for ks in range(DA-1): ldA(ks)
    def prolog():
        for b in (1, 2):
            k.dsop(f"ds_read_b64 {vr(52+2*b,2)}, v44 offset:{512*(b-1)}", "so"); k.dsop(f"ds_read_b32 v{48+b}, v45 offset:{512*(b-1)+256}", "so")
            k.dsop(f"ds_read_b128 {vr(RSV+4*b,4)}, v46 offset:{512*(b-1)+256}", "so")
        for F in range(8): k.dsop(f"ds_read_b64 {vr(20+2*F,2)}, v43 offset:{UOFF(F)}", "so")
        k.waitlg("so")
        for r in range(54, 58): e(f"v_and_b32 v{r}, v{r}, v4")
        for b in (1, 2): e(f"v_mul_f32 v{58+b}, {fbits(CSCALE)}, v{48+b}")
        for b in (1, 2): e(f"v_cndmask_b32 v{35+b}, v{48+b}, v{58+b}, s[30:31]")
    fl = k.capture(prolog)
    def rd(ks, F):
        off = ks*8192 + 1024*F; hi = off >> 16
        k.dsop(f"ds_read_b128 {vr(BF+4*F,4)}, v{(3,41,42)[hi]} offset:{off & 0xffff}", f"b{ks}_{F}")
    def mm(b, F, ks):
        a = vr(AR+8*(ks%DA)+4*(b-1), 4); w = vr(BF+4*F, 4); c = vr(acc(b,F), 4); ci = c if ks else "0"
        if F in TOKF: e(f"v_mfma_f32_16x16x32_bf16 {c}, {w}, {a}, {ci}")
        else:         e(f"v_mfma_f32_16x16x32_bf16 {c}, {a}, {w}, {ci}")
    WBS, H1S, H2S = 6, ENV('H1S', '17'), ENV('H2S', '19')
    e("s_barrier")
    for F in range(8): rd(0, F)
    for ks in range(20):
        k.waitvm(f"a{ks}")
        if ks == 0: k.stamp(st0+1)
        F3 = os.environ.get("FOC") == "p3b"
        if ks == WBS:
            if F3: k.stamp(0)
            e("s_barrier")
            if F3: k.stamp(2)
        if ks in (H1S, H2S):
            if F3: k.stamp(3 if ks == H1S else 5)
            e("s_barrier")
            if F3: k.stamp(4 if ks == H1S else 6)
        for F in range(8):
            if F % 2 == 0: k.waitlg(f"b{ks}_{F+1}")
            mm(1, F, ks)
            if ks >= 8 and F % 2: k.fill(fl, 1)
            mm(2, F, ks)
            if ks + 1 < 20: rd(ks+1, F)
            if F == 0 and ks + DA - 1 < 20: ldA(ks + DA - 1)
        if ks == 18:
            k.fill(fl, 1000)
            for b in (1, 2):
                for F in range(8):
                    U, M = vr(20+2*F, 2), vr(52+2*b, 2)
                    if F in TOKF: e(f"v_mfma_f32_16x16x16_bf16 {vr(acc(b,F),4)}, {U}, {M}, {vr(acc(b,F),4)}")
                    else:         e(f"v_mfma_f32_16x16x16_bf16 {vr(acc(b,F),4)}, {M}, {U}, {vr(acc(b,F),4)}")
    k.stamp(st0+2)
    e("s_barrier")
    if os.environ.get("FOC") == "s3": k.stamp(3)
    e("s_cmp_eq_u32 s18, 0"); e(f"s_cbranch_scc0 {nm}_ni"); lw_init(k); k.label(f"{nm}_ni")
    KO = lambda b, h: BF + 8*b + 4*h
    QO = lambda b, h: BF + 24 + 8*(b-1) + 4*h
    VO = lambda F, b: BF + 40 + 8*FEAF.index(F) + 2*b
    def kv_pack(b):
        for h in range(2): scale_pack(k, acc(b, 2+h), lambda r: 48+b, KO(b,h))
        scale_pack(k, acc(b, 6), lambda r: 35+b, KO(b,0)+2)
        for r in range(2): e(f"v_mov_b32 v{KO(b,1)+2+r}, v{KO(b,0)+2+r}")
        for F in FEAF: scale_pack(k, acc(b, F), lambda r: RSV+4*b+r, VO(F,b))
        for r in range(2): e(f"v_cndmask_b32 v{VO(7,b)+r}, v{VO(7,b)+r}, v47, s[28:29]")
    kv_pack(2)
    for h in range(2): e(f"ds_write_b128 v9, {vr(KO(2,h),4)} offset:{5120+1024*h}")
    for n, F in enumerate(FEAF): e(f"ds_write_b64 v9, {vr(VO(F,2),2)} offset:{5120+2048+1024*n}")
    kv_pack(1)
    e("s_waitcnt lgkmcnt(0)"); e("s_barrier")
    if os.environ.get("FOC") == "s3": k.stamp(4)
    for h in range(2): e(f"ds_read_b128 {vr(KO(0,h),4)}, v9 offset:{1024*h}")
    for n, F in enumerate(FEAF): e(f"ds_read_b64 {vr(VO(F,0),2)}, v9 offset:{2048+1024*n}")
    for b in (1, 2):
        for h in range(2): scale_pack(k, acc(b, h), lambda r: 58+b, QO(b,h))
        for r in range(2):
            e(f"v_mov_b32 v{40+2*r}, v{KO(b,0)+2+r}"); e(f"v_mov_b32 v{41+2*r}, v{KO(b,0)+2+r}")
        for r in range(2): e(f"v_permlane32_swap_b32 v{40+2*r}, v{41+2*r}")
        e("s_nop 0")
        for h in range(2):
            for r in range(2): e(f"v_and_b32 v{QO(b,h)+2+r}, v{40+2*r}, v{38+h}")
    e("s_waitcnt lgkmcnt(0)")
    units = [(b, h) for b in (1, 2) for h in range(2)]
    SU = lambda i: 20 + 8*i if i < 2 else 76 + 8*(i-2)
    TU = lambda i: ACC + 32 + 4*i
    PU = lambda i: ACC + 48 + 4*i
    OU = lambda i: ACC + 64 + 8*i
    for i, (b, h) in enumerate(units):
        e(f"v_mfma_f32_16x16x32_bf16 {vr(SU(i),4)}, {vr(KO(b-1,h),4)}, {vr(QO(b,h),4)}, {vr(MP1 if b == 1 else MP,4)}")
        e(f"v_mfma_f32_16x16x32_bf16 {vr(SU(i)+4,4)}, {vr(KO(b,h),4)}, {vr(QO(b,h),4)}, {vr(MC,4)}")
    def allred(op):
        for sw in ("v_permlane16_swap_b32", "v_permlane32_swap_b32"):
            for i in range(4): e(f"v_mov_b32 v{TU(i)+1}, v{TU(i)}")
            for i in range(4): e(f"{sw} v{TU(i)}, v{TU(i)+1}")
            for i in range(4): e(f"{op} v{TU(i)}, v{TU(i)}, v{TU(i)+1}")
    for i in range(4):
        s = SU(i)
        e(f"v_max3_f32 v{TU(i)}, v{s}, v{s+1}, v{s+2}"); e(f"v_max3_f32 v{TU(i)}, v{s+3}, v{s+4}, v{TU(i)}")
        e(f"v_max3_f32 v{TU(i)}, v{s+5}, v{s+6}, v{TU(i)}"); e(f"v_max_f32 v{TU(i)}, v{s+7}, v{TU(i)}")
    allred("v_max_f32")
    for i in range(4):
        for r in range(8): e(f"v_sub_f32 v{SU(i)+r}, v{SU(i)+r}, v{TU(i)}")
    for i in range(4):
        for r in range(8): e(f"v_exp_f32 v{SU(i)+r}, v{SU(i)+r}")
    for i in range(4):
        for r in range(4): e(f"v_cvt_pk_bf16_f32 v{PU(i)+r}, v{SU(i)+2*r}, v{SU(i)+2*r+1}")
    for i, (b, h) in enumerate(units):
        e(f"v_mfma_f32_16x16x32_bf16 {vr(OU(i)+4,4)}, {vr(VO(7,b-1),4)}, {vr(PU(i),4)}, 0")
    for i, (b, h) in enumerate(units):
        e(f"v_mfma_f32_16x16x32_bf16 {vr(OU(i),4)}, {vr(VO(4+h,b-1),4)}, {vr(PU(i),4)}, 0")
    for i in range(4): e(f"v_mov_b32 v{TU(i)}, v{OU(i)+4}"); e(f"v_mov_b32 v{TU(i)+1}, v{OU(i)+4}")
    for i in range(4): e(f"v_permlane32_swap_b32 v{TU(i)}, v{TU(i)+1}")
    for i in range(4): e(f"v_rcp_f32 v{TU(i)+1}, v{TU(i)+1}")
    e("v_cmp_eq_u32 vcc, 0, v6")
    for bi in range(2):
        o0, o1 = OU(2*bi), OU(2*bi+1); d = 40 + 8*bi; t0, t1 = TU(2*bi)+1, TU(2*bi+1)+1
        for r in range(4): e(f"v_mul_f32 v{o0+r}, v{o0+r}, v{t0}"); e(f"v_mul_f32 v{o1+r}, v{o1+r}, v{t1}")
        e(f"v_cvt_pk_bf16_f32 v{d}, v{o0}, v{o0+1}"); e(f"v_cvt_pk_bf16_f32 v{d+1}, v{o0+2}, v{o0+3}")
        e(f"v_cvt_pk_bf16_f32 v{d+2}, v{o1}, v{o1+1}"); e(f"v_cvt_pk_bf16_f32 v{d+3}, v{o1+2}, v{o1+3}")
        e(f"buffer_store_dwordx4 {vr(d,4)}, v3, s[8:11], s{51+bi} offen {SC}")
        e(f"v_cndmask_b32 v{t0}, v{t1}, v{t0}, vcc")
        for r in range(4): e(f"v_cndmask_b32 v{o0+4+r}, v{o1+4+r}, v{o0+4+r}, vcc")
        for r in range(4): e(f"v_mul_f32 v{o0+4+r}, v{o0+4+r}, v{t0}")
        e(f"v_cvt_pk_bf16_f32 v{d+4}, v{o0+4}, v{o0+5}"); e(f"v_cvt_pk_bf16_f32 v{d+5}, v{o0+6}, v{o0+7}")
    e("s_mov_b32 exec_hi, 0")
    for bi in range(2): e(f"buffer_store_dwordx2 {vr(44+8*bi,2)}, v3, s[8:11], s{53+bi} offen {SC}")

def qkvb_l(k, xin, stin, w):
    e = k.e; nm = k.name
    qkvb_pre(k)
    e("s_max_u32 s22, s22, 1"); e("s_sub_u32 s22, s22, 1")
    e("s_mul_i32 s24, s22, 20480"); e(f"s_add_u32 s24, s24, {xin}")
    e("s_lshl_b32 s27, s22, 10"); e(f"s_add_u32 s27, s27, {stin}")
    e("s_min_u32 s40, s39, 2")
    e("s_cmp_lt_u32 s39, 2"); e("s_cselect_b32 s41, 2, 4"); e("s_cselect_b32 s42, 4, 5")
    e("s_add_u32 s41, s41, s40"); e("s_add_u32 s42, s42, s40")
    for d_, s_ in ((43, 41), (44, 42)):
        e(f"s_lshr_b32 s{d_}, s{s_}, 2"); e(f"s_lshl_b32 s{d_}, s{d_}, 13"); e(f"s_and_b32 s32, s{s_}, 3"); e("s_lshl_b32 s32, s32, 8")
        e(f"s_add_u32 s{d_}, s{d_}, s32"); e(f"s_add_u32 s{d_}, s{d_}, {UOFF(0)}")
    HP = 49152
    e("s_lshl_b32 s41, s41, 10"); e("s_lshl_b32 s42, s42, 10"); e(f"s_add_u32 s41, s41, {HP-2048}"); e(f"s_add_u32 s42, s42, {HP-2048}")
    e("v_add_u32 v44, s41, v3"); e("v_add_u32 v45, s42, v3")
    e("s_lshl_b32 s32, s39, 13"); e("v_add_u32 v40, s32, v3"); e("v_add_u32 v41, 65536, v40"); e("v_add_u32 v42, 131072, v40")
    e("s_mul_i32 s33, s39, 6144"); e(f"s_add_u32 s33, s33, {HP}"); e("v_add_u32 v43, s33, v3")
    e(f"s_add_u32 s32, s32, {SOFF}"); e("v_add_u32 v47, s32, v51"); e("v_lshl_add_u32 v50, v5, 2, s32")
    e("s_add_u32 s24, s24, s45"); e("s_lshl_b32 s28, s19, 10"); e(f"s_add_u32 s28, s28, {stin}")
    atouch_pre(k, xin)
    e(f"s_setprio {ENV('P3PRIO', '0')}")
    e("s_barrier")
    for b in range(2):
        for q_ in range(2): k.vmop(f"buffer_load_dwordx2 {vr(32+4*b+2*q_,2)}, v11, s[8:11], s28 offen offset:{1024*b+128*q_} {SC}", "so")
    if ENV('ATOUCH', '1'): k.vmop("buffer_load_dword v20, v21, s[8:11], s51 offen")
    w.one(39)
    e(f"ds_write_b64 v46, v[28:29] offset:{UOFF(0)}"); e(f"ds_write_b64 v46, v[30:31] offset:{UOFF(1)}")
    for q_ in range(2): k.vmop(f"buffer_load_dwordx2 {vr(24+2*q_,2)}, v11, s[8:11], s27 offen offset:{128*q_} {SC}", "st")
    for i in range(5):
        k.vmop(f"buffer_load_dwordx4 {vr(128+4*i,4)}, v3, s[8:11], s24 offen {SC}", f"h{i}")
        if i < 4: e("s_add_u32 s24, s24, 4096")
    k.waitvm("so")
    for b in range(2):
        stats16(k, 32+4*b, 49, 54, None)
        e(f"ds_write_b64 v47, v[54:55] offset:{512*b}"); e(f"ds_write_b32 v50, v49 offset:{512*b+256}")
    k.waitvm("w39"); e("s_waitcnt lgkmcnt(0)"); e("s_barrier")
    HF = (2, 3, 4, 5, 6, 7)
    def rd(n):
        i, F = n // 6, HF[n % 6]
        k.dsop(f"ds_read_b128 {vr(96+4*(n%6),4)}, v{40+i//2} offset:{(i%2)*32768+1024*F}", f"r{n}")
    for n in range(6): rd(n)
    for n in range(30):
        i, F = n // 6, HF[n % 6]
        if n % 6 == 0: k.waitvm(f"h{i}")
        k.waitlg(f"r{n}")
        c = vr(148+4*(n%6), 4); a_ = vr(128+4*i, 4); w_ = vr(96+4*(n%6), 4)
        if F in TOKF: e(f"v_mfma_f32_16x16x32_bf16 {c}, {w_}, {a_}, {c if i else 0}")
        else:         e(f"v_mfma_f32_16x16x32_bf16 {c}, {a_}, {w_}, {c if i else 0}")
        if n + 6 < 30: rd(n + 6)
    stats16(k, 24, 48, 52, 4)
    for r in range(4):
        e(f"v_add_u32 v18, {4*r}, v10")
        e(f"ds_bpermute_b32 v{72+r}, v18, v48")
    e("v_add_u32 v12, s43, v51"); e("v_add_u32 v13, s44, v51")
    e("ds_read_b64 v[20:21], v12"); e("ds_read_b64 v[22:23], v13")
    e("s_barrier")
    for n in range(6): e(f"ds_write_b128 v43, {vr(148+4*n,4)} offset:{1024*n}")
    e("s_lshl_b32 s41, s39, 10"); e("s_cmp_lt_u32 s39, 2"); e("s_cselect_b32 s41, s41, 8"); e("s_cselect_b32 s42, s41, 1032")
    e("s_cselect_b64 s[30:31], 0, -1"); e("s_and_b32 s30, s30, 0xff00ff00"); e("s_mov_b32 s31, s30"); e("v_mov_b32 v56, 0x3f803f80")
    e("s_lshl_b32 s40, s40, 10")
    e(f"v_add_u32 v9, {EX}, v3"); e("v_add_u32 v12, s41, v9"); e("v_add_u32 v13, s42, v9"); e("v_add_u32 v15, s40, v9")
    e("s_waitcnt lgkmcnt(0)"); e("s_barrier")
    for p_ in range(4):
        e(f"ds_read_b128 {vr(96+8*p_,4)}, v44 offset:{6144*p_}"); e(f"ds_read_b128 {vr(100+8*p_,4)}, v45 offset:{6144*p_}")
    e("s_waitcnt lgkmcnt(0)")
    for r in range(8):
        e(f"v_add_f32 v{96+r}, v{96+r}, v{104+r}"); e(f"v_add_f32 v{112+r}, v{112+r}, v{120+r}"); e(f"v_add_f32 v{80+r}, v{96+r}, v{112+r}")
    e("v_mfma_f32_16x16x16_bf16 v[80:83], v[20:21], v[52:53], v[80:83]")
    e("v_mfma_f32_16x16x16_bf16 v[84:87], v[52:53], v[22:23], v[84:87]")
    scale_pack(k, 80, lambda r: 48, 88); scale_pack(k, 84, lambda r: 72+r, 90)
    for r in range(2): e(f"v_cndmask_b32 v{90+r}, v{90+r}, v56, s[30:31]")
    e("s_barrier")
    e("s_cmp_eq_u32 s39, 3"); e(f"s_cbranch_scc1 {nm}_h4")
    e("ds_write_b64 v12, v[88:89]"); e("ds_write_b64 v13, v[88:89]"); e("ds_write_b64 v15, v[90:91] offset:2048")
    e("s_waitcnt lgkmcnt(0)")
    k.label(f"{nm}_h4")
    e(f"s_setprio {ENV('LPRIO', '2')}")
    e("s_barrier")
    k.vm = []; k.lg = []

def one(k, target):
    k.e(f"v_mov_b32 v{PV_+1}, 0"); k.e(f"v_mov_b32 v{PV_+2}, {target}"); k.e("s_mov_b64 s[56:57], 1")

def kvpos(k):
    k.e("s_and_b32 s36, s19, 31"); k.e("s_lshl_b32 s36, s36, 1"); k.e("s_lshr_b32 s34, s19, 5"); k.e("s_add_u32 s36, s36, s34")
    k.e("s_add_u32 s36, s36, 50"); k.e("s_and_b32 s36, s36, 63")
def addr_v(k, img):
    e = k.e
    e("s_sub_u32 s35, s17, 10"); e("s_lshl_b32 s35, s35, 7")
    kvpos(k); e("s_mul_i32 s36, s36, 2560"); e(f"s_add_u32 s33, s36, {img+KVIMG+1280}")
    e("v_mul_u32_u24 v20, 320, v4")
    for jf in range(4):
        e(f"v_add_u32 v16, s35, v10")
        if jf: e(f"v_add_u32 v16, {32*jf}, v16")
        e("v_mul_u32_u24 v17, 52429, v16"); e("v_lshrrev_b32 v17, 20, v17")
        e("v_mul_u32_u24 v18, 20, v17"); e("v_sub_u32 v18, v16, v18")
        e("v_mul_u32_u24 v17, 163840, v17"); e("v_lshl_add_u32 v17, v18, 4, v17")
        e(f"v_add_u32 v{24+jf}, v17, v20")
def addr_qk(k, img, xm=52):
    e = k.e; k.xm = xm
    e("s_cmp_ge_u32 s17, 5")
    e(f"s_cselect_b32 s33, {QI}, 0"); e(f"s_cselect_b32 s59, 1.0, {fbits(CSCALE)}"); e("s_cselect_b32 s35, 5, 0"); e("s_cselect_b32 s37, 1, 0")
    e(f"s_add_u32 s33, s33, {img+QIMG}")
    e("s_sub_u32 s35, s17, s35")
    kvpos(k); e("s_cmp_eq_u32 s37, 0"); e("s_cselect_b32 s36, s19, s36")
    e("s_mul_i32 s36, s36, 1280"); e("s_lshl_b32 s36, s36, s37"); e("s_add_u32 s33, s33, s36")
    e("s_lshl_b32 s34, 81920, s37")
    e("v_lshlrev_b32 v16, 4, v10"); e("v_lshlrev_b32 v17, 3, v10")
    e("v_lshl_add_u32 v18, v4, 9, v16")
    e("s_sub_u32 s36, s34, 512"); e("v_and_b32 v19, s36, v59"); e("v_add_u32 v19, v19, v16")
    e(f"s_mov_b32 s{xm}, -1"); e(f"s_mov_b32 s{xm+1}, 0"); e(f"s_mov_b32 s{xm+2}, 0"); e(f"s_mov_b32 s{xm+3}, -1")
def epi_qk(k, ACC, BF):
    e = k.e; nm = k.name + k.ptag
    for v in range(1, 5):
        e(f"s_cmp_eq_u32 s35, {v}"); e(f"s_cbranch_scc1 {nm}_e{v}")
    QSC = os.environ.get("QSC", "sc1")
    for v in range(5):
        if v: k.label(f"{nm}_e{v}")
        e("s_nop 7")
        for jf in range(4):
            for r in range(16): e(f"v_mul_f32 v{ACC+16*jf+r}, v{ACC+16*jf+r}, v47")
            for r in range(8): e(f"v_cvt_pk_bf16_f32 v{BF+8*jf+r}, v{ACC+16*jf+2*r}, v{ACC+16*jf+2*r+1}")
            for a2 in range(2):
                x = BF+8*jf+4*a2
                e(f"v_permlane32_swap_b32 v{x}, v{x+2}"); e(f"v_permlane32_swap_b32 v{x+1}, v{x+3}")
            for a2 in range(2):
                x = BF+8*jf+4*a2
                G = [32*v+8*jf+4*a2, 32*v+8*jf+4*a2+2]
                def main(g):
                    h = g // 5; r = g % 5
                    return h, (r // 2 if h % 2 == 0 else (r - 1) // 2)
                st = [g % 10 == 4 for g in G]
                def hoff(dst, h, c):
                    if h: e(f"s_mul_i32 s{dst}, s34, {h}"); e(f"s_add_u32 s{dst}, s{dst}, s33")
                    else: e(f"s_mov_b32 s{dst}, s33")
                    if c: e(f"s_add_u32 s{dst}, s{dst}, {c}")
                if not any(st):
                    (h0, p0), (h1, p1) = main(G[0]), main(G[1])
                    hoff(36, h0, 512*p0)
                    if h0 == h1: e(f"buffer_store_dwordx4 {vr(x,4)}, v18, {k.srdo}, s36 offen {QSC}")
                    else:        e(f"buffer_store_dwordx4 {vr(x,4)}, v19, {k.srdo}, s36 offen {QSC}")
                    assert (h0 == h1 and (p0, p1) == (0, 1)) or (h1 == h0 + 1 and (p0, p1) == (1, 0))
                else:
                    m = st.index(False); q = 1 - m
                    h, p = main(G[m]); hoff(36, h, 512*p); hoff(37, G[q] // 5, 1024); e("s_add_u32 s38, s37, s34")
                    e(f"s_mov_b64 exec, s[{k.xm+2*m}:{k.xm+1+2*m}]")
                    e(f"buffer_store_dwordx4 {vr(x,4)}, v16, {k.srdo}, s36 offen {QSC}")
                    e(f"s_mov_b64 exec, s[{k.xm+2*q}:{k.xm+1+2*q}]")
                    e(f"buffer_store_dwordx2 {vr(x,2)}, v17, {k.srdo}, s37 offen {QSC}")
                    e(f"buffer_store_dwordx2 {vr(x+2,2)}, v17, {k.srdo}, s38 offen {QSC}")
                    e("s_mov_b64 exec, -1")
        e(f"s_branch {nm}_fin5")
def epi_v(k, ACC, BF, RS):
    e = k.e
    VSC = os.environ.get("VSC", "sc1")
    for jf in range(4):
        for r in range(16): e(f"v_mul_f32 v{ACC+16*jf+r}, v{ACC+16*jf+r}, v{RS+r}")
        for r in range(8): e(f"v_cvt_pk_bf16_f32 v{BF+8*jf+r}, v{ACC+16*jf+2*r}, v{ACC+16*jf+2*r+1}")
        for u in range(2):
            e(f"buffer_store_dwordx4 {vr(BF+8*jf+4*u,4)}, v{24+jf}, {k.srdo}, s33 offen offset:{640*u} {VSC}")

def qkva_c(k, xin, stin, img, cnt, wbar, st0):
    k.ptag = '_p5'; k.srdo = 's[8:11]'
    e = k.e; nm = k.name + k.ptag
    DA = 5
    ACC, BF, AR, RS = 64, 128, 160, 200
    e("v_and_b32 v10, 31, v1"); e("v_lshrrev_b32 v4, 5, v1"); e("v_and_b32 v5, 15, v1")
    e("s_lshl_b32 s19, s16, 2"); e("s_add_u32 s19, s19, s18")
    e("v_lshlrev_b32 v12, 4, v10")
    e("s_lshl_b32 s31, s17, 11"); e(f"s_add_u32 s31, s31, {U_A}")
    for jf in range(4): k.vmop(f"buffer_load_dwordx4 {vr(24+4*jf,4)}, v12, s[12:15], s31 offen offset:{512*jf}", "u")
    e("v_bfe_u32 v7, v1, 4, 1"); e("v_mul_u32_u24 v8, 20480, v7"); e("v_lshl_add_u32 v8, v4, 8, v8"); e("v_lshl_add_u32 v8, v5, 4, v8")
    e("v_lshlrev_b32 v11, 10, v7"); e("v_lshl_add_u32 v11, v4, 9, v11"); e("v_lshl_add_u32 v11, v5, 3, v11")
    e("s_lshl_b32 s30, s19, 11"); e(f"s_add_u32 s30, s30, {stin}")
    e("s_mul_i32 s24, s19, 40960"); e(f"s_add_u32 s24, s24, {xin}")
    e("v_add_u32 v41, 65536, v3"); e("v_add_u32 v42, 131072, v3")
    e("v_subrev_u32 v58, 1, v4"); e("v_not_b32 v59, v58")
    sc = SC if cnt is not None else ""
    if cnt is not None:
        def c4(): one(k, 16); e("s_lshl_b32 s48, s16, 8"); e(f"s_add_u32 s48, s48, {cnt}")
        wait_go(k, "p5", 1, c4)
    k.stamp(st0)
    def ldA(ks):
        if ks % 4 == 0 and ks > 0: e("s_add_u32 s24, s24, 4096")
        for u in range(2):
            k.vmop(f"buffer_load_dwordx4 {vr(AR+8*(ks%DA)+4*u,4)}, v8, s[8:11], s24 offen offset:{(ks%4)*1024+512*u} {sc}", f"a{ks}")
    ldA(0)
    for q in range(4): k.vmop(f"buffer_load_dwordx2 {vr(16+2*q,2)}, v11, s[8:11], s30 offen offset:{128*q} {sc}", "st")
    for ks in range(1, DA-1): ldA(ks)
    def prolog(vmode):
        k.waitvm("st")
        e("v_add_f32 v16, v16, v18"); e("v_add_f32 v17, v17, v19"); e("v_add_f32 v20, v20, v22"); e("v_add_f32 v21, v21, v23")
        e("v_add_f32 v16, v16, v20"); e("v_add_f32 v17, v17, v21")
        k.allred32("v_add_f32", 16, 18); k.allred32("v_add_f32", 17, 18)
        stats_finish(k, 16, 17, 46, 47, 18)
        split3(k, 46, 48, 18, 'm', 58)
        for jf in range(4): usum(k, 24+4*jf, 50+2*jf, 18)
        if vmode:
            e("v_lshlrev_b32 v16, 4, v4")
            for r in range(16):
                e(f"v_add_u32 v17, {(8*(r//4) + r%4)*4}, v16")
                k.dsop(f"ds_bpermute_b32 v{RS+r}, v17, v47", "rs")
            addr_v(k, img)
        else:
            addr_qk(k, img); e("v_mul_f32 v47, s59, v47")
    e("s_cmp_ge_u32 s17, 10"); e(f"s_cbranch_scc1 {nm}_qv")
    vm_save = list(k.vm)
    def mainloop(vmode):
        acc = lambda jf: vr(ACC+16*jf, 16)
        fl = k.capture(lambda: prolog(vmode))
        def rd(ks, f):
            off = ks*8192 + 1024*f; hi = off >> 16
            k.dsop(f"ds_read_b128 {vr(BF+4*f,4)}, v{(3,41,42)[hi]} offset:{off & 0xffff}", f"b{ks}_{f}")
        e("s_barrier")
        for f in range(8): rd(0, f)
        for ks in range(20):
            k.waitvm(f"a{ks}")
            if ks == 0: k.stamp(st0+1)
            if ks + 1 in wbar: e("s_barrier")
            for f in range(8):
                u, jf = f//4, f%4
                if f % 2 == 0: k.waitlg(f"b{ks}_{f+1}")
                a = vr(AR+8*(ks%DA)+4*u, 4); b = vr(BF+4*f, 4); c = acc(jf) if (ks or u) else "0"
                if vmode: e(f"v_mfma_f32_32x32x16_bf16 {acc(jf)}, {a}, {b}, {c}")
                else:     e(f"v_mfma_f32_32x32x16_bf16 {acc(jf)}, {b}, {a}, {c}")
                if ks + 1 < 20: rd(ks+1, f)
                if f == 0 and ks + DA - 1 < 20: ldA(ks + DA - 1)
                if ks >= 1: k.fill(fl, 2)
            if ks == 15:
                k.fill(fl, 1000)
                for jf in range(4):
                    if vmode: e(f"v_mfma_f32_32x32x8_bf16 {acc(jf)}, v[48:49], {vr(50+2*jf,2)}, {acc(jf)}")
                    else:     e(f"v_mfma_f32_32x32x8_bf16 {acc(jf)}, {vr(50+2*jf,2)}, v[48:49], {acc(jf)}")
        k.stamp(st0+2)
        e("s_barrier")
    mainloop(False)
    epi_qk(k, ACC, BF)
    k.label(f"{nm}_qv"); k.vm = vm_save; k.lg = []
    mainloop(True)
    epi_v(k, ACC, BF, RS)
    k.label(f"{nm}_fin5")

def ph_front(k):
    k.ptag = "_f"; k.srdo = "s[12:15]"
    e = k.e; nm = k.name + k.ptag; kn = k.name
    R, DEP, SCRB, UT = 4, 2, 131072, 65536
    need = lambda ks: ks // 2
    slot = lambda st: (st % R) * 32768
    e("s_cmp_ge_u32 s2, 256"); e(f"s_cbranch_scc1 {kn}_end"); k.stamp(0); k.rstamp(1)
    e("s_load_dwordx4 s[60:63], s[0:1], 0"); e("s_load_dwordx2 s[6:7], s[0:1], 64")
    e("s_load_dwordx2 s[4:5], s[0:1], 56")
    e("s_and_b32 s20, s2, 7"); e("s_lshr_b32 s21, s2, 3")
    e("v_lshrrev_b32 v2, 6, v0"); e("v_and_b32 v1, 63, v0")
    e("v_readfirstlane_b32 s18, v2")
    e("s_and_b32 s39, s18, 3"); e("s_lshl_b32 s45, s39, 10")
    ids_mt(k)
    e("v_lshlrev_b32 v3, 4, v1"); e(f"v_lshlrev_b32 v9, {ENV('BST', '6')}, v1")
    e("s_lshl_b32 s22, s2, 2"); e("s_add_u32 s22, s22, s39"); e("s_mul_i32 s23, s22, 2400"); e("s_mul_i32 s22, s22, 2560")
    def kwait():
        e("s_waitcnt lgkmcnt(0)")
        k.stamp(2)
        k.srd(8, 60, S*D*2); k.srd(28, 62, D*3*D*2); k.srd(12, 6, WS_END)
    def burst():
        if ENV('BURST', '1'):
            e("s_mov_b32 exec_hi, 0xff" if ENV('BST', '6') == 6 else "s_mov_b64 exec, 0xfffff")
            e("buffer_load_dword v240, v9, s[8:11], s22 offen"); e("buffer_load_dword v241, v9, s[28:31], s23 offen")
            e("s_mov_b64 exec, -1")
    def codepf(tg):
        if ENV('CPF', '1'):
            e("s_getpc_b64 s[34:35]"); k.label(f"{nm}_pc{tg}")
            e(f"s_sub_u32 s34, s34, {nm}_pc{tg} - {kn}"); e("s_subb_u32 s35, s35, 0")
            e("v_lshlrev_b32 v242, 4, v0"); e("s_lshl_b32 s36, s21, 12"); e("v_add_u32 v242, s36, v242")
            e(f"v_and_b32 v242, 0xffffffc0, v242"); e(f"v_min_u32 v242, code_end - {kn} - 4, v242")
            e("global_load_dword v243, v242, s[34:35]")
    e("s_cmp_ge_u32 s17, 15"); e(f"s_cbranch_scc1 {nm}_ub")
    e("v_and_b32 v10, 31, v1"); e("v_lshrrev_b32 v4, 5, v1"); e("v_and_b32 v5, 15, v1"); e("v_bfe_u32 v7, v1, 4, 1")
    e("v_lshrrev_b32 v13, 2, v5"); e("v_and_b32 v6, 3, v1")
    e("v_lshl_add_u32 v14, v4, 3, v13"); e("v_lshlrev_b32 v14, 8, v14"); e("v_lshl_add_u32 v14, v7, 5, v14"); e("v_lshl_add_u32 v14, v6, 3, v14")
    e("v_add_u32 v14, 16384, v14")
    def a0():
        e("s_lshl_b32 s48, s17, 11"); e(f"s_add_u32 s48, s48, {C0}"); e(f"v_lshlrev_b32 v{PV_+1}, 8, v1"); e("s_mov_b64 s[56:57], 0xff")
    SF = ENV('SF', '10')
    e("s_cmp_ge_u32 s18, 4"); e(f"s_cbranch_scc1 {nm}_ld")
    kwait(); burst(); codepf("c")
    if ENV('TLB', '1'):
        sh = ENV('TLBS', '18')
        e("s_load_dwordx4 s[84:87], s[0:1], 32"); e("s_load_dwordx2 s[88:89], s[0:1], 16"); e("s_load_dwordx2 s[90:91], s[0:1], 48")
        e(f"v_lshlrev_b32 v236, {sh}, v0" if sh < 21 else "v_lshlrev_b32 v236, 21, v1")
        e(f"v_min_u32 v236, {STAMPS-4}, v236")
        e("s_cmp_eq_u32 s18, 0" if sh == 21 else "s_cmp_lt_u32 s18, 4"); e(f"s_cbranch_scc0 {nm}_tl")
        e("buffer_load_dword v237, v236, s[12:15], 0 offen")
        e("v_and_b32 v236, 1, v1"); e("v_mul_u32_u24 v238, 819196, v236"); e("v_mul_u32_u24 v236, 2457596, v236"); e("s_mov_b64 exec, 3")
        e("s_waitcnt lgkmcnt(0)")
        e("global_load_dword v237, v236, s[84:85]"); e("global_load_dword v237, v238, s[86:87]"); e("global_load_dword v237, v238, s[88:89]"); e("global_load_dword v237, v236, s[90:91]")
        e("s_mov_b64 exec, -1")
        k.label(f"{nm}_tl")
        e("s_waitcnt lgkmcnt(0)")
    ACC, BF, AR, RS = 64, 128, 160, 200
    BA, AA = 216, 224
    e("s_lshl_b32 s19, s16, 2"); e("s_add_u32 s19, s19, s18")
    for jf in range(4):
        e(f"v_xor_b32 v15, {jf}, v13"); e(f"v_lshl_add_u32 v{BA+jf}, v15, 6, v14"); e(f"v_add_u32 v{BA+4+jf}, 65536, v{BA+jf}")
    e("v_lshl_add_u32 v15, v2, 5, v10"); e("v_lshlrev_b32 v15, 7, v15"); e("v_bfe_u32 v12, v10, 1, 3"); e("v_xor_b32 v12, v12, v4")
    for q in range(4):
        e(f"v_xor_b32 v11, {2*q}, v12"); e(f"v_lshl_add_u32 v{AA+q}, v11, 4, v15"); e(f"v_add_u32 v{AA+4+q}, 65536, v{AA+q}")
    e("v_mul_u32_u24 v8, 20480, v7"); e("v_lshl_add_u32 v8, v4, 8, v8"); e("v_lshl_add_u32 v8, v5, 4, v8")
    e("s_mul_i32 s24, s19, 40960"); e(f"s_add_u32 s24, s24, {XI}")
    e("v_subrev_u32 v58, 1, v4"); e("v_not_b32 v59, v58")
    e("s_cmp_ge_u32 s17, 10"); e(f"s_cbranch_scc1 {nm}_qv")
    def mainloop(vmode):
        tagm = "v" if vmode else "q"
        acc = lambda jf: vr(ACC+16*jf, 16)
        fl = k.capture(lambda: addr_v(k, 0) if vmode else addr_qk(k, 0, 28))
        def rdB(ks, f):
            u, jf = f//4, f%4; sl = slot(ks//2)
            for t in range(2):
                off = sl + (32*(ks%2) + 16*u + 4*t)*256
                k.dsop(f"ds_read_b64_tr_b16 {vr(BF+4*f+2*t,2)}, v{BA+4*(sl>>16)+jf} offset:{off & 0xffff}", f"b{ks}_{f}")
        def rdA(ks):
            sl = slot(ks//2)
            for u in range(2): k.dsop(f"ds_read_b128 {vr(AR+8*(ks%2)+4*u,4)}, v{AA+4*(sl>>16)+2*(ks%2)+u} offset:{sl & 0xffff}", f"b{ks}_a")
        kb = [-1]
        def bars(ks):
            while kb[0] < need(ks): e("s_barrier"); kb[0] += 1
        bars(0); k.stamp(3)
        rdA(0)
        for f in range(8): rdB(0, f)
        for ks in range(20):
            for f in range(8):
                u, jf = f//4, f%4
                if f % 2 == 0: k.waitlg(f"b{ks}_{f+1}")
                a = vr(AR+8*(ks%2)+4*u, 4); b = vr(BF+4*f, 4); c = acc(jf) if (ks or u) else "0"
                if vmode: e(f"v_mfma_f32_32x32x16_bf16 {acc(jf)}, {a}, {b}, {c}")
                else:     e(f"v_mfma_f32_32x32x16_bf16 {acc(jf)}, {b}, {a}, {c}")
                if ks + 1 < 20:
                    if f == 0: bars(ks+1); rdA(ks+1)
                    rdB(ks+1, f)
                if ks >= 4: k.fill(fl, 1)
            e(f"s_cmp_eq_u32 s17, {ks % 15}"); e(f"s_cbranch_scc0 {nm}_x{tagm}{ks}")
            e(f"s_add_u32 s32, s24, {1024*ks}")
            for u in range(2): e(f"buffer_store_dwordx4 {vr(AR+8*(ks%2)+4*u,4)}, v8, s[12:15], s32 offen offset:{512*u} {SC}")
            k.label(f"{nm}_x{tagm}{ks}")
            if ks in (0, 1, 4, 9, 10, 14): k.stamp(7 + (0, 1, 4, 9, 10, 14).index(ks))
        assert not fl
        k.stamp(4)
        e(f"v_lshlrev_b32 v23, 2, v10"); e(f"v_add_u32 v23, {UT}, v23"); e("s_lshl_b32 s32, s18, 8"); e("v_add_u32 v22, s32, v23")
        if vmode: e("v_lshlrev_b32 v21, 4, v4"); e(f"s_add_u32 s32, s32, {UT}"); e("v_add_u32 v21, s32, v21")
        e("s_barrier")
        e("ds_read_b32 v48, v22 offset:1024"); e("ds_read_b32 v49, v22 offset:1152")
        for jf in range(4): e(f"ds_read_b32 v{28+2*jf}, v23 offset:{256*jf}"); e(f"ds_read_b32 v{29+2*jf}, v23 offset:{256*jf+128}")
        if vmode:
            for a_ in range(4): e(f"ds_read_b128 {vr(RS+4*a_,4)}, v21 offset:{2048+32*a_}")
        else: e("ds_read_b32 v47, v22 offset:2048")
        e("s_waitcnt lgkmcnt(0)"); k.lg = []
        e("v_and_b32 v48, v48, v58"); e("v_and_b32 v49, v49, v58")
        if not vmode: e("v_mul_f32 v47, s59, v47")
        for jf in range(4):
            if vmode: e(f"v_mfma_f32_32x32x8_bf16 {acc(jf)}, v[48:49], {vr(28+2*jf,2)}, {acc(jf)}")
            else:     e(f"v_mfma_f32_32x32x8_bf16 {acc(jf)}, {vr(28+2*jf,2)}, v[48:49], {acc(jf)}")
        k.stamp(5)
    mainloop(False)
    epi_qk(k, ACC, BF)
    k.label(f"{nm}_qv"); k.lg = []
    mainloop(True)
    epi_v(k, ACC, BF, RS)
    k.label(f"{nm}_fin5")
    k.stamp(6)
    e("s_barrier")
    signal(k, "sf", -1, 8, a0, 0, "s[12:15]")
    k.dump(13)
    e(f"s_branch {kn}_t0")
    k.label(f"{nm}_ld"); k.vm = []; k.lg = []
    e(f"s_setprio {ENV('LPRIO', '2')}")
    e("v_lshrrev_b32 v16, 4, v1"); e("v_and_b32 v17, 3, v2")
    e("v_lshl_add_u32 v18, v17, 2, v16"); e("v_mul_u32_u24 v20, 3840, v18")
    e("v_xor_b32 v18, v13, v16"); e("v_lshl_add_u32 v20, v18, 6, v20"); e("v_lshl_add_u32 v20, v6, 4, v20")
    e("v_lshrrev_b32 v18, 3, v1"); e("v_lshl_add_u32 v19, v17, 5, v18"); e("v_and_b32 v23, 7, v1")
    for i in range(4):
        e(f"v_add_u32 v42, {8*i}, v19"); e("v_bfe_u32 v43, v42, 1, 3"); e("v_xor_b32 v43, v43, v23")
        e("v_mul_u32_u24 v42, 1280, v42"); e(f"v_lshl_add_u32 v{48+i}, v43, 4, v42")
        if i: e(f"v_subrev_u32 v{48+i}, {1024*i}, v{48+i}")
    e("s_lshl_b32 s25, s17, 8"); e("s_mul_i32 s24, s16, 163840"); e("s_lshl_b32 s26, s39, 12")
    def ld1(st, n):
        if n < 4:
            e(f"s_add_u32 m0, s45, {slot(st)+16384+4096*n}"); e(f"s_add_u32 s32, s25, {(64*st+16*n)*3840}")
            k.vmop("buffer_load_dwordx4 v20, s[28:31], s32 offen lds", f"d{st}")
        else:
            e(f"s_add_u32 m0, s26, {slot(st)}"); e(f"s_add_u32 s33, s24, {128*st}")
            k.vmop(f"buffer_load_dwordx4 v{44+n}, s[8:11], s33 offen offset:{1024*(n-4)} lds", f"d{st}")
    ORD = [0, 4, 1, 5, 2, 6, 3, 7]
    def ld(st):
        for n in ORD: ld1(st, n)
    kwait(); ld(0)
    e("v_xor_b32 v15, v17, v13"); e("v_lshl_add_u32 v40, v15, 6, v14"); e("v_add_u32 v41, 65536, v40")
    for r in range(4): e(f"v_mov_b32 v{60+r}, 0x3f803f80")
    k.srd(52, 4, 256)
    e("s_mul_i32 s27, s17, 163840"); e("s_add_u32 s27, s27, s45"); e(f"s_add_u32 s27, s27, {WA_I}")
    if ENV('LD1', '0'): ld(1)
    done = [0]
    def steps_of(kb):
        r = []
        while done[0] < 20 and need(done[0]) <= kb: r.append(done[0]); done[0] += 1
        return r
    def wa_store(q):
        e("s_lshl_b32 s32, s16, 13"); e("s_add_u32 s32, s32, s27")
        if q: e("s_add_u32 s32, s32, 131072")
        e("s_add_u32 s33, s32, 4096")
        for u in range(2): k.vmop(f"buffer_store_dwordx4 {vr(112+8*q+4*u,4)}, v3, s[12:15], s{32+u} offen {SC}")
    for kb in range(10):
        if kb == 5: k.stamp(5)
        k.waitvm(f"d{kb}")
        if kb == 5: k.stamp(6)
        e("s_barrier")
        if kb in (4, 5): k.stamp(2 if kb == 4 else 7)
        if kb == 0 and not ENV('LD1', '0'): ld(1)
        sl = slot(kb); todo = list(ORD) if kb + DEP < 10 else []
        nxt = lambda: ld1(kb + DEP, todo.pop(0)) if todo else None
        sts = steps_of(kb)
        for n_, ks in enumerate(sts):
            for u in range(2):
                for t in range(2):
                    e(f"ds_read_b64_tr_b16 {vr(136+8*n_+4*u+2*t,2)}, v{40+(sl>>16)} offset:{(sl + (32*(ks%2) + 16*u + 4*t)*256) & 0xffff}")
        nxt(); nxt()
        if kb == 4: k.stamp(3)
        e("s_waitcnt lgkmcnt(0)")
        mf = [(n_, ks, u) for n_, ks in enumerate(sts) for u in range(2)]
        for n_, ks, u in mf:
            e(f"v_mfma_f32_32x32x16_bf16 v[64:79], v[60:63], {vr(136+8*n_+4*u,4)}, {'v[64:79]' if ks or u else 0}")
            nxt()
        nxt(); nxt()
        if kb == 4: k.stamp(4)
        for n_, ks in enumerate(sts):
            e(f"s_cmp_eq_u32 s16, {ks % 16}"); e(f"s_cbranch_scc0 {nm}_w{ks}")
            for r in range(8): e(f"v_mov_b32 v{112+8*(ks//16)+r}, v{136+8*n_+r}")
            k.label(f"{nm}_w{ks}")
        assert not todo
        if kb == 8:
            e("v_and_b32 v24, 15, v1"); e("v_lshlrev_b32 v24, 2, v24"); e("s_mov_b32 s33, 0")
            k.label(f"{nm}_pl")
            e(f"buffer_load_dword v25, v24, s[52:55], 0 offen {SC}"); e("s_add_u32 s33, s33, 1"); e("s_waitcnt vmcnt(0)"); k.vm = []
            e("v_cmp_eq_u32 vcc, 0, v25"); e("s_cmp_ge_u32 s33, 0x20000"); e(f"s_cbranch_scc1 {nm}_px")
            e(f"s_cbranch_vccnz {nm}_pl")
            k.label(f"{nm}_px")
            e("v_lshlrev_b32 v24, 3, v10"); e("s_lshl_b32 s32, s16, 10"); e("s_lshl_b32 s33, s39, 8"); e("s_add_u32 s32, s32, s33"); e(f"s_add_u32 s32, s32, {STI}")
            k.vmop(f"buffer_load_dwordx2 v[44:45], v24, s[12:15], s32 offen {SC}", "rs")
            wa_store(0)
    k.waitvm("rs")
    stats_finish(k, 44, 45, 28, 29, 30)
    split3(k, 28, 32, 36, 'm'); split3(k, 64, 34, 36, 'u')
    e("v_lshlrev_b32 v24, 2, v10"); e("s_lshl_b32 s32, s39, 8"); e(f"s_add_u32 s32, s32, {UT}"); e("v_add_u32 v24, s32, v24")
    e("ds_write_b32 v24, v34"); e("ds_write_b32 v24, v35 offset:128"); e("ds_write_b32 v24, v32 offset:1024"); e("ds_write_b32 v24, v33 offset:1152"); e("ds_write_b32 v24, v29 offset:2048")
    e("s_waitcnt lgkmcnt(0)"); e("s_barrier")
    lwc_init(k); e("s_barrier")
    e("v_mov_b32 v44, v64")
    e("s_cmp_ge_u32 s16, 4"); e(f"s_cbranch_scc1 {nm}_le"); wa_store(1)
    e("s_cmp_eq_u32 s16, 0"); e(f"s_cbranch_scc0 {nm}_le")
    e("v_mov_b32 v45, 0"); e("v_mov_b32 v46, 0"); e("v_mov_b32 v47, 0"); e("v_lshlrev_b32 v24, 4, v10")
    e("s_lshl_b32 s32, s17, 11"); e("s_lshl_b32 s33, s39, 9"); e("s_add_u32 s32, s32, s33"); e(f"s_add_u32 s32, s32, {U_A}")
    e("s_mov_b32 exec_hi, 0"); e(f"buffer_store_dwordx4 v[44:47], v24, s[12:15], s32 offen {SC}")
    k.label(f"{nm}_le")
    e("s_mov_b64 exec, -1")
    signal(k, "sfl", -1, 8, a0, 0, "s[12:15]")
    k.dump(8)
    e(f"s_branch {kn}_t0")
    k.label(f"{nm}_ub"); k.vm = []; k.lg = []
    kwait()
    e("v_lshrrev_b32 v4, 3, v1"); e("v_lshl_add_u32 v4, v2, 4, v4"); e("v_mul_u32_u24 v5, 1280, v4"); e("v_and_b32 v6, 7, v1"); e("v_lshl_add_u32 v5, v6, 4, v5")
    e("s_mul_i32 s24, s16, 163840"); e("s_add_u32 s25, s24, 10240")
    for b_ in range(2):
        for i in range(10): k.vmop(f"buffer_load_dwordx4 {vr(24+40*b_+4*i,4)}, v5, s[8:11], s{24+b_} offen offset:{128*i}", f"x{b_}{i}")
    for j in range(8): e(f"v_mov_b32 v{8+j}, 0")
    e("v_mov_b32 v7, 0x3f803f80")
    e("v_lshlrev_b32 v16, 4, v0"); e("s_and_b32 s26, s16, 7"); e("s_lshl_b32 s26, s26, 13"); e(f"s_add_u32 s26, s26, {CNT}"); e("s_cmp_ge_u32 s16, 8"); e(f"s_cselect_b32 s27, {LS}, 0"); e("s_add_u32 s26, s26, s27")
    k.vmop(f"buffer_store_dwordx4 v[12:15], v16, s[12:15], s26 offen {SC}")
    for b_ in range(2):
        for i in range(10):
            k.waitvm(f"x{b_}{i}")
            for q in range(4):
                r = 24+40*b_+4*i+q
                e(f"v_dot2_f32_bf16 v{8+2*b_}, v{r}, v7, v{8+2*b_}"); e(f"v_dot2_f32_bf16 v{9+2*b_}, v{r}, v{r}, v{9+2*b_}")
    for dpp in ("quad_perm:[1,0,3,2]", "quad_perm:[2,3,0,1]", "row_half_mirror"):
        for q in range(4): e(f"v_add_f32_dpp v{8+q}, v{8+q}, v{8+q} {dpp} row_mask:0xf bank_mask:0xf")
    e("v_lshlrev_b32 v4, 3, v4"); e("s_lshl_b32 s26, s16, 10"); e(f"s_add_u32 s26, s26, {STI}")
    e("v_cmp_eq_u32 vcc, 0, v6"); k.srd(52, 4, 256); e("s_mov_b64 exec, vcc")
    e(f"buffer_store_dwordx2 v[8:9], v4, s[12:15], s26 offen {SC}"); e(f"buffer_store_dwordx2 v[10:11], v4, s[12:15], s26 offen offset:64 {SC}")
    e("s_mov_b64 exec, -1"); lwc_init(k)
    e("s_waitcnt vmcnt(0)"); e("s_barrier")
    e("s_cmp_ge_u32 s18, 4"); e(f"s_cbranch_scc1 {nm}_u2")
    codepf("u")
    e("s_cmp_eq_u32 s18, 0"); e(f"s_cbranch_scc0 {nm}_u2")
    e("v_mov_b32 v4, 0"); e("v_mov_b32 v5, 1"); e("s_lshl_b32 s26, s16, 2"); e("s_mov_b64 exec, 1")
    e(f"buffer_store_dword v5, v4, s[52:55], s26 offen {SC}")
    e("s_mov_b64 exec, 0xffff"); e("v_lshlrev_b32 v4, 2, v1"); e("s_mov_b32 s33, 0")
    k.label(f"{nm}_u1")
    e(f"buffer_load_dword v5, v4, s[52:55], 0 offen {SC}"); e("s_add_u32 s33, s33, 1"); e("s_waitcnt vmcnt(0)")
    e("v_cmp_eq_u32 vcc, 0, v5"); e("s_cmp_ge_u32 s33, 0x20000"); e(f"s_cbranch_scc1 {nm}_u2"); e(f"s_cbranch_vccnz {nm}_u1")
    k.label(f"{nm}_u2")
    e("s_mov_b64 exec, -1"); e("s_waitcnt vmcnt(0)")

def k_main():
    k = KB(NAME + "_kernel"); e = k.e; name = k.name
    ph_front(k)
    k.label(f"{name}_t0")
    e("s_load_dwordx2 s[46:47], s[0:1], 48"); e("s_mov_b32 s3, 0")
    k.srd(8, 6, 2*LS)
    e("s_waitcnt lgkmcnt(0)")
    k.srd(60, 46, S*D*2)
    k.label(f"{name}_top")
    k.vm = []; k.lg = []
    e("s_setprio 0"); k.stamp(0); k.rstamp(1)
    ph_attn(k)
    def a1():
        e("s_lshl_b32 s48, s17, 3"); e("s_and_b32 s49, s16, 1"); e("s_add_u32 s48, s48, s49"); e("s_lshl_b32 s48, s48, 8"); e(f"s_add_u32 s48, s48, {C1}")
        e(f"v_lshlrev_b32 v{PV_+1}, 9, v1"); e("s_mov_b64 s[56:57], 15")
    e("s_cmp_ge_u32 s18, 4"); e(f"s_cbranch_scc1 {name}_ld")
    signal(k, "s1", 0, 8, a1)
    def c1():
        e("s_lshl_b32 s48, s16, 9"); e(f"s_add_u32 s48, s48, {C1}")
        e(f"v_lshlrev_b32 v{PV_+1}, 8, v1"); e(f"v_mov_b32 v{PV_+2}, 16"); e("s_mov_b64 s[56:57], 3")
    proj_c(k, "p2", OT, XI, XM, STM, False, c1, 0, 6)
    def a2():
        e("s_lshr_b32 s48, s16, 1"); e("s_lshl_b32 s48, s48, 9"); e(f"s_add_u32 s48, s48, {C2}")
        e(f"v_mul_u32_u24 v{PV_+1}, 768, v1"); e("s_bitcmp1_b32 s16, 0"); e("s_cselect_b64 s[56:57], 3, 1")
    signal(k, "s2", 1, 4, a2)
    qkvb_c(k, XM, STM, 9)
    def a3(): one(k, 0); e("s_lshl_b32 s48, s16, 8"); e(f"s_add_u32 s48, s48, {C3}")
    signal(k, "s3", 0, 4, a3)
    def c3(): one(k, 16); e("s_lshr_b32 s48, s16, 1"); e("s_lshl_b32 s48, s48, 8"); e(f"s_add_u32 s48, s48, {C3}")
    proj_c(k, "p4", OBT, XM, LS + XI, LS + STI, True, c3, 0, 12)
    def a4(): one(k, 0); e("s_lshr_b32 s48, s16, 1"); e("s_lshl_b32 s48, s48, 8"); e(f"s_add_u32 s48, s48, {C4}")
    signal(k, "s4", 1, 4, a4)
    k.dump(15, "1")
    ids_mt(k)
    e("s_cmp_ge_u32 s17, 15"); e(f"s_cbranch_scc1 {name}_idle")
    qkva_c(k, LS + XI, LS + STI, LS, C4, [7], 3)
    k.stamp(6)
    e("s_barrier")
    def a5(): e("s_lshl_b32 s48, s17, 11"); e(f"s_add_u32 s48, s48, {LS + C0}"); e(f"v_lshlrev_b32 v{PV_+1}, 8, v1"); e("s_mov_b64 s[56:57], 0xff")
    signal(k, "s5", -1, 4, a5)
    k.dump(7, "3")
    k.label(f"{name}_t1")
    e("s_mov_b32 s3, 1"); e(f"s_add_u32 s8, s8, {LS}"); e("s_addc_u32 s9, s9, 0"); e(f"s_mov_b32 s10, {LS}")
    e(f"s_branch {name}_top")
    k.label(f"{name}_idle")
    for _ in range(4): e("s_barrier")
    e(f"s_branch {name}_t1")
    k.label(f"{name}_ld"); k.vm = []; k.lg = []
    if os.environ.get("FOC") == "at": e("s_add_u32 s84, s3, 4"); k.dump(8, "s84")
    e(f"s_setprio {ENV('LPRIO', '2')}")
    w = proj_l(k, WOA_I, WB_I, OT, a1, 0)
    qkvb_l(k, XM, STM, w)
    w = proj_l(k, WOB_I, WA_I, OBT, None, 0, True)
    ids_mt(k)
    atouch_pre(k, LS + XI)
    e("s_barrier")
    e("buffer_load_dword v20, v21, s[8:11], s51 offen")
    w.one(39); e("s_waitcnt vmcnt(0)"); e("s_barrier")
    e("s_barrier"); lwc_init(k); e("s_barrier")
    e(f"s_branch {name}_t1")
    k.label(f"{name}_end"); e("s_endpgm")
    k.tail()
    return k.text(256 if STAMP else 244, 256 if STAMP else 244)

def build():
    hdr = open("cdna_kernels/" + NAME + ".s.ref").read().split("; Override launch")[0]
    out = hdr + "; @launch grid=(256,1,1) block=(512,1,1) lds=163840\n"
    out += '.amdgcn_target "amdgcn-amd-amdhsa--gfx950"\n'
    out += k_main()
    out += ".text\ncode_end:\n"
    return out

if __name__ == "__main__":
    dst = sys.argv[1] if len(sys.argv) > 1 else "cdna_kernels/" + NAME + ".s"
    open(dst, "w").write(build())
    print("wrote", dst)
```

```python
import sys, math
from lint import lint, fix

NAME = "interleave_layers__softmax_full_mha__sliding_local_dilated__prompt"
S, D, H, DH = 2048, 640, 32, 20
XS = S*D*2
IMG = H*64*2560
QI = H*64*1280
OT = 0; OBT = XS; XM = 2*XS; XI = 3*XS
STM = 4*XS; STI = STM + S*64
QIMG = STI + S*64; KVIMG = QIMG + QI
CNT = KVIMG + IMG
C1 = CNT; C2 = C1 + 64*256; C3 = C2 + 34*256; C4 = C3 + 16*256; C0 = C4 + 16*256
LS = CNT + 65536
CS = LS + C4
U_A = 2*LS
U_B = U_A + 32768
WA_I = U_B + 163840
WOA_I = WA_I + 15*163840
WB_I = WOA_I + 819200
WOB_I = WB_I + 16*163840
STAMPS = WOB_I + 819200
WS_END = STAMPS + 16*262144
import os
STAMP = int(os.environ.get("STAMP", "0"))
ATTN_WAVES = 8
AV = os.environ.get("AV", "")
CSCALE = (DH ** -0.5) * math.log2(math.e)
import struct
def fbits(x): return "0x%08x" % struct.unpack("<I", struct.pack("<f", x))[0]

FM = [(0,16),(32,48),(80,96),(112,128),(64,144)]
def FX(ks, t):
    return 160*(ks//5) + FM[ks%5][t]

class KB:
    def __init__(s, name):
        s.name = name; s.L = []; s.vm = []; s.lg = []; s.cap = None
    def e(s, line):
        if s.cap is not None: s.cap.append(('e', line, None))
        else: s.L.append("    " + line)
    def capture(s, fn):
        s.cap = []; fn(); c = s.cap; s.cap = None
        return [x for x in c if not (x[0] == 'e' and x[1].startswith('s_nop'))]
    def fill(s, lst, n=1):
        for _ in range(n):
            if not lst: return
            kind, a, b = lst.pop(0)
            if kind == 'e':
                s.e(a)
                if a.startswith('s_cmp'):
                    while lst and lst[0][0] == 'e' and lst[0][1].startswith('s_cselect'): s.e(lst.pop(0)[1])
            elif kind == 'ds': s.dsop(a, b)
            elif kind == 'wvm': s.waitvm(a)
            elif kind == 'wlg': s.waitlg(a)
    def c(s, txt): s.L.append("    ; " + txt)
    def label(s, l): s.L.append(l + ":")
    def vmop(s, line, tag=None): s.e(line); s.vm.append(tag); assert len(s.vm) <= 63, (s.name, len(s.vm))
    def dsop(s, line, tag=None):
        if s.cap is not None: s.cap.append(('ds', line, tag)); return
        s.e(line); s.lg.append(tag)
    def _n(s, lst, tag):
        idx = max(i for i, t in enumerate(lst) if t == tag)
        return idx
    def waitvm(s, tag):
        if s.cap is not None: s.cap.append(('wvm', tag, None)); return
        if tag not in s.vm: return
        i = s._n(s.vm, tag); n = len(s.vm) - 1 - i
        s.e(f"s_waitcnt vmcnt({n})"); s.vm = s.vm[i+1:]
    def waitlg(s, tag):
        if s.cap is not None: s.cap.append(('wlg', tag, None)); return
        if tag not in s.lg: return
        i = s._n(s.lg, tag); n = len(s.lg) - 1 - i
        if n > 15: n = 15; i = len(s.lg) - 1 - n
        s.e(f"s_waitcnt lgkmcnt({n})"); s.lg = s.lg[i+1:]
    def waitall(s):
        s.e("s_waitcnt vmcnt(0) lgkmcnt(0)"); s.vm = []; s.lg = []
    def srd(s, r, base, nbytes):
        s.e(f"s_mov_b32 s{r}, s{base}")
        s.e(f"s_and_b32 s{r+1}, s{base+1}, 0xffff")
        s.e(f"s_mov_b32 s{r+2}, {nbytes}")
        s.e(f"s_mov_b32 s{r+3}, 0x20000")
    def stamp(s, i):
        if not STAMP: return
        op = "s_memrealtime" if os.environ.get("RT") else "s_memtime"
        s.e(f"{op} s[{64+2*i}:{65+2*i}]" if i < 10 else f"{op} s[{72+2*i}:{73+2*i}]")
    def rstamp(s, i):
        if not STAMP: return
        s.e(f"s_memrealtime s[{64+2*i}:{65+2*i}]")
    def dump(s, n=8, slot="0", wave="s18"):
        if not STAMP: return
        e = s.e
        if os.environ.get("DBG"):
            keep = {"0": [(1, 246), (3, 247), (6, 248)], "1": [(2, 249), (5, 250), (14, 251)], "3": [(6, 252)], "2": [(2, 253), (5, 254), (14, 255)]}[slot]
            e("s_waitcnt lgkmcnt(0)")
            if n < 7 or (slot == "0" and n == 8): return
            for i, v in keep: e(f"v_mov_b32 v{v}, s{64+2*i if i < 10 else 72+2*i}")
            if slot == "2":
                e(f"s_cmp_eq_u32 s2, {os.environ['DBG']}"); e("s_cbranch_scc0 dbg_skip"); e("s_cmp_eq_u32 s18, 0"); e("s_cbranch_scc0 dbg_skip")
                e("s_load_dwordx2 s[84:85], s[0:1], 56"); e("s_memrealtime s[86:87]"); e("s_waitcnt lgkmcnt(0)")
                s.srd(88, 84, 256); e("s_mov_b64 exec, 1"); e("v_mov_b32 v0, 0"); e("v_mov_b32 v245, s86"); e("v_sub_u32 v245, v245, v246")
                for i in range(9):
                    e(f"v_sub_u32 v{247+i}, v{247+i}, v246"); e(f"buffer_store_dword v{247+i}, v0, s[88:91], 0 offen offset:{4*i}")
                e("buffer_store_dword v245, v0, s[88:91], 0 offen offset:36")
                s.label("dbg_skip")
            return
        e("s_memrealtime s[86:87]"); e("s_waitcnt lgkmcnt(0)")
        e("s_mov_b64 exec, 1")
        e(f"s_lshl_b32 s84, {slot}, 18")
        e("s_lshl_b32 s85, s2, 3"); e(f"s_add_u32 s85, s85, {wave}"); e("s_lshl_b32 s85, s85, 6"); e(f"s_add_u32 s85, s85, {STAMPS}"); e("s_add_u32 s85, s85, s84")
        e("v_mov_b32 v244, 0")
        for i in range(n):
            e(f"v_mov_b32 v245, s{64+2*i if i < 10 else 72+2*i}")
            e(f"buffer_store_dword v245, v244, s[12:15], s85 offen offset:{4*i}")
        e("v_mov_b32 v245, s86"); e("buffer_store_dword v245, v244, s[12:15], s85 offen offset:60")
        e("s_mov_b64 exec, -1")
    def text(s, vgpr, accum, sgpr=102):
        s.L, added = fix(s.L)
        if os.environ.get("V"): print(s.name, "auto nops:", added, "lines:", len(s.L))
        out = [".text", f".globl {s.name}", ".p2align 8", f".type {s.name},@function", f"{s.name}:"]
        out += s.L
        out += ['.section .rodata,"a"', ".p2align 6", f".amdhsa_kernel {s.name}",
                f"  .amdhsa_next_free_vgpr {vgpr}", f"  .amdhsa_next_free_sgpr {sgpr}", f"  .amdhsa_accum_offset {accum}",
                "  .amdhsa_group_segment_fixed_size 0", "  .amdhsa_kernarg_size 72", "  .amdhsa_user_sgpr_count 2",
                "  .amdhsa_user_sgpr_kernarg_segment_ptr 1", "  .amdhsa_system_sgpr_workgroup_id_x 1", ".end_amdhsa_kernel"]
        nb = lint(s.L, s.name)
        assert nb == 0, f"{nb} hazards in {s.name}"
        return "\n".join(out) + "\n"
    def allred32(s, op, v, t):
        s.e(f"v_mov_b32 v{t}, v{v}"); s.e("s_nop 1")
        s.e(f"v_permlane32_swap_b32 v{v}, v{t}"); s.e("s_nop 1")
        s.e(f"{op} v{v}, v{v}, v{t}")
    def allred16(s, op, v, t):
        s.e(f"v_mov_b32 v{t}, v{v}"); s.e("s_nop 1")
        s.e(f"v_permlane16_swap_b32 v{v}, v{t}"); s.e("s_nop 1")
        s.e(f"{op} v{v}, v{v}, v{t}")

def vr(a, n): return f"v[{a}:{a+n-1}]" if n > 1 else f"v{a}"
def ar(a, n): return f"a[{a}:{a+n-1}]" if n > 1 else f"a{a}"

def stats_finish(k, s1, s2, mean, rstd, t):
    e = k.e
    e(f"v_mul_f32 v{mean}, {fbits(1.0/D)}, v{s1}")
    e(f"v_mul_f32 v{t}, {fbits(1.0/D)}, v{s2}")
    e(f"v_fma_f32 v{t}, -v{mean}, v{mean}, v{t}")
    e(f"v_max_f32 v{t}, 0, v{t}")
    e(f"v_add_f32 v{t}, {fbits(1e-5)}, v{t}")
    e(f"v_rsq_f32 v{rstd}, v{t}")
    e("s_nop 0")

def split3(k, src, d, t, kind, maskv=None):
    e = k.e
    if kind == 'm':
        e(f"v_xor_b32 v{t+1}, 0x80000000, v{src}"); src = t+1
    e(f"v_and_b32 v{t}, 0xffff0000, v{src}")
    e(f"v_sub_f32 v{t+2}, v{src}, v{t}")
    if kind == 'u':
        e(f"v_cvt_pk_bf16_f32 v{d}, v{t}, v{t+2}")
        e(f"v_lshrrev_b32 v{d+1}, 16, v{t}")
    else:
        e(f"v_cvt_pk_bf16_f32 v{d}, v{t}, v{t}")
        e(f"v_cvt_pk_bf16_f32 v{d+1}, v{t+2}, 0")
    if maskv is not None:
        e(f"v_and_b32 v{d}, v{d}, v{maskv}"); e(f"v_and_b32 v{d+1}, v{d+1}, v{maskv}")

SC = "sc1"
EARLY = int(os.environ.get('EARLY', '6'))
ENV = lambda n, d: int(os.environ.get(n, d))

def ids_mt(k):
    k.e("s_lshl_b32 s22, s20, 1"); k.e("s_and_b32 s23, s21, 1"); k.e("s_add_u32 s16, s22, s23"); k.e("s_lshr_b32 s17, s21, 1")
def ids_rt(k):
    k.e("s_lshl_b32 s22, s20, 2"); k.e("s_and_b32 s23, s21, 3"); k.e("s_add_u32 s16, s22, s23"); k.e("s_lshr_b32 s17, s21, 2")

LW = 163824
PV_ = 240
def lw_init(k):
    e = k.e
    e(f"v_mov_b32 v{PV_+3}, {LW}")
    for i in range(3): e(f"v_mov_b32 v{PV_+i}, 0")
    e(f"ds_write_b96 v{PV_+3}, v[{PV_}:{PV_+2}]"); e(f"ds_write_b32 v{PV_+3}, v{PV_} offset:12")

def lwc_init(k):
    k.e(f"v_mov_b32 v{PV_+3}, {LW-8}"); k.e(f"v_mov_b32 v{PV_}, 0"); k.e(f"v_mov_b32 v{PV_+1}, 0")
    k.e(f"ds_write_b64 v{PV_+3}, v[{PV_}:{PV_+1}]"); k.e("s_waitcnt lgkmcnt(0)")

def signal(k, tag, word, nw, addr_code, younger=0, srd="s[8:11]"):
    e = k.e
    addr_code()
    e(f"v_mov_b32 v{PV_+3}, {LW-8}"); e(f"v_mov_b32 v{PV_}, 1")
    e("s_mov_b64 exec, 1")
    assert younger == 0
    e("s_waitcnt vmcnt(0)"); k.vm = []
    if tag == os.environ.get("FOC"): k.stamp(2)
    e(f"ds_add_rtn_u32 v{PV_+2}, v{PV_+3}, v{PV_} offset:{8*word+8}")
    e("s_waitcnt lgkmcnt(0)"); k.lg = []
    e(f"v_readfirstlane_b32 s49, v{PV_+2}")
    e("s_mov_b64 exec, s[56:57]")
    e(f"s_cmp_eq_u32 s49, {nw-1}"); e(f"s_cbranch_scc0 {k.name}_{tag}_sg")
    e(f"buffer_atomic_add v{PV_}, v{PV_+1}, {srd}, s48 offen {SC}")
    if os.environ.get("FOC2") == tag: k.stamp(4)
    k.label(f"{k.name}_{tag}_sg")
    e("s_mov_b64 exec, -1")

def wait_go(k, tag, word, poll_code):
    e = k.e; nm = f"{k.name}_{tag}"
    e(f"v_mov_b32 v{PV_+3}, {LW-8}"); e("s_mov_b32 s49, 0")
    if poll_code:
        e("s_cmp_eq_u32 s18, 0"); e(f"s_cbranch_scc0 {nm}_sp")
        poll_code()
        e("s_mov_b64 exec, s[56:57]")
        if os.environ.get("FOC") == "g" + tag: k.stamp(2)
        k.label(f"{nm}_pl")
        e(f"v_mov_b32 v{PV_}, 0")
        e(f"buffer_atomic_add v{PV_}, v{PV_+1}, s[8:11], s48 offen sc0 sc1")
        e("s_add_u32 s49, s49, 1")
        e("s_waitcnt vmcnt(0)")
        e(f"v_cmp_ge_u32 vcc, v{PV_}, v{PV_+2}")
        e("s_cmp_ge_u32 s49, 0x20000"); e(f"s_cbranch_scc1 {nm}_px")
        e("s_cmp_eq_u64 vcc, exec"); e(f"s_cbranch_scc0 {nm}_pl")
        k.label(f"{nm}_px")
        if os.environ.get("FOC") == "g" + tag: e("s_add_u32 s70, s64, s49")
        e("s_mov_b64 exec, 1"); e(f"v_mov_b32 v{PV_}, 1")
        e(f"ds_write_b32 v{PV_+3}, v{PV_} offset:{8*word+12}")
        e(f"s_branch {nm}_go")
    k.label(f"{nm}_sp")
    e("s_sleep 1")
    e(f"ds_read_b32 v{PV_}, v{PV_+3} offset:{8*word+12}")
    e("s_add_u32 s49, s49, 1")
    e("s_waitcnt lgkmcnt(0)")
    e(f"v_readfirstlane_b32 s44, v{PV_}")
    e("s_cmp_ge_u32 s49, 0x400000"); e(f"s_cbranch_scc1 {nm}_go")
    e("s_cmp_eq_u32 s44, 0"); e(f"s_cbranch_scc1 {nm}_sp")
    k.label(f"{nm}_go")
    e("s_mov_b64 exec, -1")

class Wdma:
    def __init__(s, k, n, base=50, tag="w"): s.k = k; s.n = n; s.i = 0; s.base = base; s.tag = tag
    def one(s, i):
        s.k.e(f"s_add_u32 m0, s45, {4096*i}"); s.k.e(f"s_add_u32 s32, s{s.base}, {4096*i}")
        s.k.vmop(f"buffer_load_dwordx4 v3, s[12:15], s32 offen {SC} lds", f"{s.tag}{i}")
    def go(s, upto):
        while s.i < min(upto, s.n): s.one(s.i); s.i += 1
    def rng(s, a, b, thr=0):
        for i in range(a, b):
            s.one(i)
            if thr and len(s.k.vm) >= thr: s.k.e(f"s_waitcnt vmcnt({thr-1})"); s.k.vm = s.k.vm[len(s.k.vm)-thr+1:]

SIDE_SV = 152; SIDE_D = 160; SIDE_U = 192
def side_setup(k):
    e = k.e; nm = k.name
    e("s_load_dwordx4 s[84:87], s[0:1], 32"); e("s_load_dwordx2 s[88:89], s[0:1], 16")
    e("s_mul_i32 s49, s2, 3"); e("s_add_u32 s49, s49, s18"); e("s_sub_u32 s49, s49, 4")
    e("s_sub_u32 s32, s18, 4"); e("s_cmp_lt_u32 s32, 3"); e("s_cselect_b32 s49, s49, 959"); e("s_cmp_eq_u32 s3, 0"); e("s_cselect_b32 s49, s49, 959")
    e("s_lshl_b32 s35, s39, 13"); e("s_add_u32 s35, s35, 112640")
    e("s_mul_i32 s36, s49, 3277"); e("s_lshr_b32 s36, s36, 16"); e("s_mul_i32 s37, s36, 20"); e("s_sub_u32 s37, s49, s37")
    e("v_and_b32 v140, 15, v1"); e("v_lshrrev_b32 v141, 2, v140"); e("v_and_b32 v142, 3, v1")
    e("s_waitcnt lgkmcnt(0)")
    SV = SIDE_SV
    e("v_lshrrev_b32 v136, 4, v1")
    for r in list(range(SV, SV+5)) + list(range(144, 152)): e(f"v_mov_b32 v{r}, 0")
    e("s_mov_b32 s5, 0")
    e("s_mov_b32 s53, 0x7ff00000"); e("s_mov_b32 s54, s53"); e("s_mov_b32 s58, s53")
    e("s_cmp_ge_u32 s49, 320"); e(f"s_cbranch_scc1 {nm}_ss1")
    k.srd(88, 84, D*3*D*2)
    e(f"s_mul_i32 s5, s37, {32*3840}"); e("s_mul_i32 s32, s36, 80"); e("s_add_u32 s5, s5, s32")
    e("v_lshlrev_b32 v137, 2, v136"); e("v_xor_b32 v137, v137, v140"); e("v_min_u32 v137, 14, v137")
    e("v_mul_u32_u24 v138, 52, v137"); e("v_lshrrev_b32 v138, 8, v138"); e("v_mul_u32_u24 v138, 1200, v138"); e("v_lshl_add_u32 v138, v137, 4, v138")
    e("v_mul_u32_u24 v137, 3840, v136"); e(f"v_add_u32 v{SV}, v138, v137")
    e("v_lshrrev_b32 v137, 5, v1"); e("v_lshl_add_u32 v137, v137, 3, v141"); e("v_lshlrev_b32 v137, 8, v137"); e("v_and_b32 v138, 1, v136")
    e("v_lshl_add_u32 v137, v138, 5, v137"); e("v_lshl_add_u32 v137, v142, 3, v137"); e("v_add_u32 v137, s35, v137")
    for jf in range(4): e(f"v_xor_b32 v139, {jf}, v141"); e(f"v_lshl_add_u32 v{144+jf}, v139, 6, v137")
    e("s_mul_i32 s53, s36, 163840"); e("s_lshl_b32 s54, s37, 13"); e("s_add_u32 s53, s53, s54"); e(f"s_add_u32 s53, s53, {WB_I}"); e("s_add_u32 s54, s53, 4096"); e("s_mov_b32 s58, s54")
    e(f"s_branch {nm}_ss2")
    k.label(f"{nm}_ss1")
    e("s_cmp_ge_u32 s36, 24"); e("s_cselect_b32 s32, s86, s88"); e("s_cselect_b32 s33, s87, s89")
    k.srd(88, 32, D*D*2)
    e("s_cmp_ge_u32 s49, 640"); e(f"s_cbranch_scc1 {nm}_ss2")
    e("s_and_b32 s32, s36, 7"); e("s_mul_i32 s32, s32, 160")
    e("s_mul_i32 s5, s37, 40"); e("s_sub_u32 s34, s37, 16"); e("s_mul_i32 s34, s34, 160"); e("s_add_u32 s34, s34, 16")
    e("s_cmp_lt_u32 s37, 16"); e("s_cselect_b32 s5, s5, s34"); e("s_cselect_b32 s33, 4, 2"); e("s_cselect_b32 s34, 4, 16")
    e("s_mul_i32 s5, s5, 1280"); e("s_add_u32 s5, s5, s32")
    for i in range(5):
        e(f"v_add_u32 v137, {64*i}, v1"); e("v_mul_u32_u24 v138, 6554, v137"); e("v_lshrrev_b32 v138, 16, v138")
        e("v_lshrrev_b32 v139, s33, v138"); e("v_mul_u32_u24 v139, s34, v139"); e("v_mul_u32_u24 v139, 1280, v139")
        e("v_mul_u32_u24 v138, 1120, v138"); e("v_add_u32 v139, v139, v138"); e(f"v_lshl_add_u32 v{SV+i}, v137, 4, v139")
    e("v_lshlrev_b32 v137, 2, v136"); e("s_mov_b32 s32, 2560")
    e("s_cmp_ge_u32 s36, 24"); e(f"s_cbranch_scc1 {nm}_sf3"); e("s_cmp_ge_u32 s37, 16"); e(f"s_cbranch_scc1 {nm}_sf3")
    e("v_lshrrev_b32 v137, 1, v136"); e("v_lshlrev_b32 v137, 4, v137"); e("v_and_b32 v138, 1, v136"); e("v_lshl_add_u32 v137, v138, 2, v137"); e("s_mov_b32 s32, 1280")
    k.label(f"{nm}_sf3")
    e("v_add_u32 v137, v137, v141"); e("v_mul_u32_u24 v137, 160, v137"); e("v_add_u32 v137, s35, v137")
    e("s_and_b32 s33, s36, 1"); e("s_lshl_b32 s34, s33, 5"); e("s_xor_b32 s33, s33, 1"); e("s_lshl_b32 s33, s33, 7")
    e("v_lshl_add_u32 v144, v142, 4, v137"); e("v_add_u32 v144, s34, v144"); e("v_add_u32 v145, s32, v144")
    e("v_lshl_add_u32 v146, v142, 3, v137"); e("v_add_u32 v146, s33, v146"); e("v_add_u32 v147, s32, v146")
    e("s_cmp_ge_u32 s36, 24"); e(f"s_cselect_b32 s53, {WOB_I-WOA_I}, 0"); e("s_and_b32 s54, s36, 7"); e("s_mul_i32 s54, s54, 102400"); e("s_add_u32 s53, s53, s54")
    e("s_mul_i32 s54, s37, 5120"); e("s_add_u32 s53, s53, s54"); e(f"s_add_u32 s53, s53, {WOA_I}"); e("s_add_u32 s54, s53, 4096")
    k.label(f"{nm}_ss2")
    e("s_lshl_b32 s38, s49, 9"); e(f"s_add_u32 s38, s38, {U_B}"); e("s_cmp_ge_u32 s49, 320"); e("s_cselect_b32 s38, 0x7ff00000, s38")
    e("v_lshlrev_b32 v143, 2, v1")
    e("s_cmp_lt_u32 s49, 640"); e("s_cselect_b32 s4, 2, 0"); e("s_cmp_lt_u32 s49, 320"); e("s_cselect_b32 s4, 1, s4")
    e("s_and_b32 s55, s49, 15"); e("s_lshl_b32 s55, s55, 8"); e(f"s_add_u32 s55, s55, {CS}")

def ph_attn(k):
    e = k.e; nm = k.name
    KA, KT, VA = 4, 5, 6
    Q = [8, 14]; KF = [24, 32]; VF = [40, 48]; SS = [56, 72]; P = 88; O = [96, 112]; PF = 208
    SCR = 137216; TOP = 112640
    ids_rt(k)
    e("v_and_b32 v3, 31, v1"); e("v_lshrrev_b32 v7, 5, v1")
    e("v_lshlrev_b32 v22, 4, v1"); e("v_lshlrev_b32 v23, 3, v3")
    e("s_mul_i32 s19, s16, 163840")
    e("s_lshr_b32 s41, s18, 2")
    e("s_lshl_b32 s23, s17, 3"); e("s_lshl_b32 s22, s39, 1"); e("s_add_u32 s23, s23, s22")
    e("s_add_u32 s23, s23, s41")
    e("s_lshr_b32 s22, s19, 1"); e(f"s_add_u32 s22, s22, {QIMG}")
    e("s_mul_i32 s24, s23, 1280"); e("s_add_u32 s24, s24, s22"); e("s_xor_b32 s40, s23, 1"); e("s_mul_i32 s40, s40, 1280"); e("s_add_u32 s40, s40, s22")
    e("s_mul_i32 s42, s41, 2560"); e(f"s_add_u32 s42, s42, {TOP}")
    e("s_lshl_b32 s25, s18, 10")
    e(f"s_add_u32 s26, s19, {KVIMG}")
    rnd = [0]
    def dma():
        i = rnd[0]; rnd[0] += 1
        if i == 6:
            e("s_cmp_lt_u32 s18, 2"); e("s_cselect_b32 s27, 163840, 0"); e("s_add_u32 s27, s27, s25"); e("s_sub_u32 m0, s27, 2048")
        else: e(f"s_add_u32 m0, s25, {(TOP + 8192*i) if i < 6 else 8192*i - 51200}")
        e("s_add_u32 s27, s26, m0")
        k.vmop(f"buffer_load_dwordx4 v22, s[8:11], s27 offen {SC} lds", f"i{i}")
    e(f"v_add_u32 v{KA}, s42, v22")
    e(f"v_add_u32 v{KT}, s42, v23"); e(f"v_add_u32 v{KT}, 1024, v{KT}")
    if ENV('KTZ', '1'): e(f"v_lshl_add_u32 v{KT}, v7, 20, v{KT}")
    e("v_mul_u32_u24 v21, 20, v7"); e("v_add_u32 v21, v21, v3"); e("v_lshlrev_b32 v21, 4, v21")
    e("v_add_u32 v21, 1280, v21"); e(f"v_add_u32 v{VA}, s42, v21")
    e("s_mov_b32 s28, 0x000fffff"); e("s_mov_b32 s29, 0x000fffff")
    e("v_cmp_eq_u32 vcc, 20, v3"); e("v_mov_b32 v20, 0x3f803f80"); e("s_nop 0")
    e("v_cndmask_b32 v20, 0, v20, vcc")
    for r in range(16): e(f"v_mov_b32 v{VF[0]+r}, v20")
    for r in range(32): e(f"v_mov_b32 v{O[0]+r}, 0")
    for r in range(4): e(f"v_mov_b32 v{P+4+r}, 0")
    e("v_subrev_u32 v30, 1, v7")
    e("s_lshl_b32 s43, s21, 2"); e("s_add_u32 s43, s43, s39"); e("s_mul_i32 s43, s43, 27648"); e(f"s_add_u32 s43, s43, {WOA_I}")
    e("s_mul_i32 s32, s23, 40960"); e(f"s_add_u32 s32, s32, {OT}")
    e("s_lshr_b32 s51, s16, 1"); e("s_lshl_b32 s51, s51, 10"); e("s_and_b32 s34, s16, 1"); e("s_lshl_b32 s34, s34, 9")
    e("s_add_u32 s51, s51, s34"); e("s_add_u32 s51, s51, s32")
    e("s_lshr_b32 s52, s16, 3"); e("s_add_u32 s52, s52, 16"); e("s_lshl_b32 s52, s52, 10"); e("s_add_u32 s52, s52, s32")
    e("s_and_b32 s35, s16, 3"); e("s_lshl_b32 s35, s35, 8"); e("s_add_u32 s52, s52, s35")
    e("s_bfe_u32 s35, s16, 0x10002"); e("s_lshl_b32 s35, s35, 3"); e("s_add_u32 s52, s52, s35")
    e("v_lshrrev_b32 v38, 4, v3"); e("v_mul_u32_u24 v38, 20480, v38"); e("v_and_b32 v39, 15, v3")
    e("v_lshl_add_u32 v38, v39, 4, v38"); e("v_lshl_add_u32 v39, v7, 8, v38")
    e("s_mul_i32 s32, s18, 3072"); e("s_xor_b32 s33, s18, 4"); e("s_mul_i32 s33, s33, 3072")
    e(f"v_add_u32 v132, {SCR}, v22"); e("v_add_u32 v133, s33, v132"); e("v_add_u32 v132, s32, v132")
    def c0(nl):
        e("s_lshl_b32 s48, s17, 8"); e(f"s_add_u32 s48, s48, {C0}"); e(f"v_mov_b32 v{PV_+2}, 16")
        e("s_mul_i32 s32, s16, 20"); e("s_add_u32 s33, s32, 19"); e("s_lshr_b32 s32, s32, 7"); e("s_lshr_b32 s33, s33, 7"); e("s_sub_u32 s33, s33, s32")
        e(f"v_lshrrev_b32 v{PV_+1}, 1, v1"); e(f"v_mul_u32_u24 v{PV_+1}, 5, v{PV_+1}"); e(f"v_and_b32 v{PV_}, s33, v1"); e(f"v_add3_u32 v{PV_+1}, v{PV_+1}, v{PV_}, s32")
        e(f"v_lshlrev_b32 v{PV_+1}, 11, v{PV_+1}"); e("s_mov_b64 s[56:57], 63")
    side_setup(k)
    e("v_lshlrev_b32 v134, 11, v1"); e("s_lshl_b32 s32, s17, 8"); e(f"s_add_u32 s32, s32, {C0}"); e("v_add_u32 v134, s32, v134")
    e("v_lshlrev_b32 v135, 8, v1"); e(f"v_add_u32 v135, {CS - 4096}, v135"); e("v_cmp_gt_u32 vcc, 16, v1")
    e("v_cndmask_b32 v134, v135, v134, vcc"); e("v_cndmask_b32 v131, 40, 16, vcc"); e("v_mov_b32 v135, 64")
    wait_go(k, "t", -1, lambda: c0(6))
    k.stamp(2)
    dma()
    for x in range(2):
        k.vmop(f"buffer_load_dwordx4 {vr(Q[x],4)}, v22, s[8:11], s{(24,40)[x]} offen {SC}", "q")
        k.vmop(f"buffer_load_dwordx2 {vr(Q[x]+4,2)}, v23, s[8:11], s{(24,40)[x]} offen offset:1024 {SC}", "q")
    for _ in range(3): dma()
    k.waitvm("q")
    for x in range(2):
        e(f"v_and_b32 v{Q[x]+4}, v{Q[x]+4}, v30"); e(f"v_and_b32 v{Q[x]+5}, v{Q[x]+5}, v30")
    k.waitvm("i1"); e("s_barrier"); k.stamp(3)
    if os.environ.get("FOC") == "clk": k.rstamp(0)
    def rdK(buf, off):
        off *= 2
        e(f"ds_read_b128 {vr(KF[buf],4)}, v{KA} offset:{off}")
        e(f"ds_read_b64 {vr(KF[buf]+4,2)}, v{KT} offset:{off}")
    def rdV(buf, off):
        off *= 2
        e("s_mov_b64 exec, s[28:29]")
        e(f"ds_read_b128 {vr(VF[buf],4)}, v{VA} offset:{off}")
        e(f"ds_read_b128 {vr(VF[buf]+4,4)}, v{VA} offset:{off+640}")
        e("s_mov_b64 exec, -1")
    def qkm(x, kb): e(f"v_mfma_f32_32x32x16_bf16 {vr(SS[x],16)}, {vr(KF[kb],4)}, {vr(Q[x],4)}, 0")
    def qkt(x, kb): e(f"v_mfma_f32_32x32x8_bf16 {vr(SS[x],16)}, {vr(KF[kb]+4,2)}, {vr(Q[x]+4,2)}, {vr(SS[x],16)}")
    def pv(x, vb, u): e(f"v_mfma_f32_32x32x16_bf16 {vr(O[x],16)}, {vr(VF[vb]+4*u,4)}, {vr(P+4*u,4)}, {vr(O[x],16)}")
    def base(t):
        return 0 if t < 10 else 10 if t < 22 else 22
    def bump(regs, t):
        if t == 10:
            for r in regs: e(f"v_subrev_u32 v{r}, {TOP}, v{r}")
        elif t == 22:
            for r in regs: e(f"v_add_u32 v{r}, {12*5120}, v{r}")
    def unit(x, t, extra=()):
        p = t % 2; s = SS[x]
        ex = lambda i: e(f"v_exp_f32 v{s+i}, v{s+i}")
        cv = lambda i: e(f"v_cvt_pk_bf16_f32 v{P+i}, v{s+2*i}, v{s+2*i+1}")
        kb = p if x == 0 else 1-p
        if x == 1: e("s_waitcnt lgkmcnt(2)" if t < 31 else "s_waitcnt lgkmcnt(0)")
        if not (x == 1 and t == 31): qkm(1-x, kb)
        if x == 1 and t + 2 < 32:
            bump((KA, KT), t+2); rdK(p, (t+2-base(t+2))*2560)
        for i in range(0, 4): ex(i)
        if x == 0:
            pv(1, 1-p, 1)
            if t + 1 < 32:
                bump((VA,), t+1); rdV(1-p, (t+1-base(t+1))*2560)
        else:
            pv(0, p, 1)
        for f_ in extra: f_()
        for i in range(4, 8): ex(i)
        for i in range(0, 4): cv(i)
        if not (x == 1 and t == 31): qkt(1-x, kb)
        for i in range(8, 12): ex(i)
        if x == 0: e(f"s_waitcnt lgkmcnt({4 if t < 31 else 0})")
        pv(x, p, 0)
        for i in range(12, 16): ex(i)
        for i in range(4, 8): cv(i)
    rdK(0, 0); rdV(0, 0); rdK(1, 2560)
    e("s_waitcnt lgkmcnt(4)")
    qkm(0, 0); e("s_nop 10"); qkt(0, 0); e("s_nop 10")
    SYN = {1: 3, 4: 7, 10: 19}; SW = ENV('SW', '27')
    T_SI, T_SR, T_SA, T_PF, T_LC = 10, ENV('TSR', '16'), 26, 13, 27
    hk = [0]
    def cond(test, fn):
        def g():
            hk[0] += 1; lab = f"{nm}_hk{hk[0]}"
            e(test); e(f"s_cbranch_scc0 {lab}"); fn(); k.label(lab)
        return g
    def prio1(): e("s_setprio 1")
    def pref():
        for _ in range(2): e(f"buffer_load_dwordx4 {vr(PF,4)}, v22, s[12:15], s43 offen {SC}"); e("s_add_u32 s43, s43, 1024")
    def side_issue():
        e("s_cmp_eq_u32 s4, 1"); e(f"s_cbranch_scc0 {nm}_i1")
        for i in range(8):
            e(f"s_add_u32 m0, s35, {1024*i}"); e(f"s_add_u32 s27, s5, {4*3840*i}")
            e(f"buffer_load_dwordx4 v{SIDE_SV}, s[88:91], s27 offen nt lds")
        e(f"s_branch {nm}_i2")
        k.label(f"{nm}_i1")
        for i in range(5):
            e(f"s_add_u32 m0, s35, {1024*i}"); e("s_nop 0")
            e(f"buffer_load_dwordx4 v{SIDE_SV+i}, s[88:91], s5 offen nt lds")
        k.label(f"{nm}_i2")
    def side_read():
        e("s_waitcnt vmcnt(0)")
        e("s_cmp_eq_u32 s4, 1"); e(f"s_cbranch_scc0 {nm}_r1")
        for F in range(8):
            for t in range(2): e(f"ds_read_b64_tr_b16 {vr(SIDE_D+4*F+2*t,2)}, v{144+F%4} offset:{4096*(F//4)+1024*t}")
        e(f"s_branch {nm}_r2")
        k.label(f"{nm}_r1")
        for nf in range(5):
            for t in range(2): e(f"ds_read_b64_tr_b16 {vr(SIDE_D+4*nf+2*t,2)}, v{144+t if nf < 4 else 146+t} offset:{64*(nf//2)+8*(nf%2) if nf < 4 else 0}")
        k.label(f"{nm}_r2")
    def side_done():
        e("s_waitcnt lgkmcnt(0)"); e(f"v_mov_b32 v{PV_+3}, {LW-8}"); e(f"v_mov_b32 v{PV_}, 1"); e("s_mov_b64 exec, 1")
        e(f"ds_add_u32 v{PV_+3}, v{PV_}"); e("s_mov_b64 exec, -1")
    UA = (SIDE_U, 212)
    def side_sum(q):
        def g():
            if q == 0:
                for r in range(4): e(f"v_mov_b32 v{228+r}, 0x3f803f80")
            for u in range(2):
                for x in range(2): e(f"v_mfma_f32_32x32x16_bf16 {vr(UA[x],16)}, v[228:231], {vr(SIDE_D+16*u+8*q+4*x,4)}, {vr(UA[x],16) if u else 0}")
        return g
    def side_sum2(q):
        def g():
            e("v_cmp_gt_u32 vcc, 32, v1"); e(f"v_cndmask_b32 v{232+q}, v{UA[1]}, v{UA[0]}, vcc")
            e(f"buffer_store_dword v{232+q}, v143, s[12:15], s38 offen offset:{256*q} {SC}")
        return g
    def side_store(F):
        return lambda: e(f"buffer_store_dwordx4 {vr(SIDE_D+4*F,4)}, v22, s[12:15], s{53 if F < 4 else 54 if F == 4 else 58} offen offset:{1024*(F%4)} {SC}")
    def side_arrive():
        e(f"v_mov_b32 v{PV_+1}, 0"); e(f"v_mov_b32 v{PV_}, 1"); e("s_waitcnt vmcnt(0)"); e("s_mov_b64 exec, 1")
        e(f"buffer_atomic_add v{PV_}, v{PV_+1}, s[12:15], s55 offen {SC}"); e("s_mov_b64 exec, -1")
    def late():
        e("s_mov_b32 exec_lo, 0xffff7fff"); e("s_mov_b32 exec_hi, 0"); e(f"buffer_load_dword v135, v134, s[12:15], 0 offen {SC}"); e("s_mov_b64 exec, -1")
    def init_words(): lw_init(k); e(f"v_mov_b32 v{PV_+3}, {LW-8}"); e(f"ds_write_b32 v{PV_+3}, v{PV_}")
    side = "s_cmp_lg_u32 s4, 0"
    for t in range(32):
        if t in SYN: k.waitvm(f"i{SYN[t]}"); e("s_barrier")
        x0, x1 = [], []
        if rnd[0] < 20: x0 += [dma, dma]; x1 += [dma, dma]
        if t in (1, 4, 10): cond("s_cmp_ge_u32 s18, 4", prio1)()
        if t == 3: x0.append(lambda: e("s_setprio 0"))
        if t == 8: x1.append(lambda: e("s_setprio 0"))
        if t == 10:
            x0.append(cond("s_cmp_eq_u32 s18, 4", lambda: lw_init(k)))
            if os.environ.get("FOC") == "at": k.stamp(2)
        if t == SW + 1 and os.environ.get("FOC") == "at": k.stamp(0)
        if t == T_SI: x1.append(cond(side, side_issue))
        if t == T_SR: x1.append(cond(side, side_read))
        if t == T_SR + 1: x0.append(cond(side, lambda: e("s_waitcnt lgkmcnt(0)"))); x1.append(cond("s_cmp_eq_u32 s4, 1", side_sum(0)))
        if t == T_SR + 2: x0.append(cond("s_cmp_eq_u32 s4, 1", side_sum2(0))); x1.append(cond("s_cmp_eq_u32 s4, 1", side_sum(1)))
        if t == T_SR + 3: x0.append(cond("s_cmp_eq_u32 s4, 1", side_sum2(1)))
        if T_SR + 1 <= t < T_SR + 9: x1.append(cond(side, side_store(t - T_SR - 1)))
        if t == T_SA: x0.append(cond(side, side_arrive))
        if T_PF <= t < T_PF + 14 and ENV('PFW', '1'): x0.append(cond("s_cmp_lt_u32 s18, 4", pref))
        if t == T_LC: x1.append(cond("s_cmp_eq_u32 s18, 0", late))
        if t == SW: (x1 if ENV('SWX', '0') else x0).append(lambda: e("s_setprio 0"))
        unit(0, t, x0); unit(1, t, x1)
    pv(1, 1, 1); k.stamp(4)
    if os.environ.get("FOC") == "clk": k.rstamp(2)
    e("s_mov_b32 s30, 0")
    e(f"s_mov_b32 s32, {fbits(2.0**-60)}"); e(f"s_mov_b32 s33, {fbits(2.0**100)}"); e(f"s_mov_b32 s34, {fbits(2.0**126)}")
    k.label(f"{nm}_scrok")
    e("s_nop 7")
    for i in range(3): e(f"ds_write_b128 v132, {vr(O[1]+4*i,4)} offset:{1024*i}")
    e("s_waitcnt vmcnt(0)"); e("v_cmp_gt_u32 vcc, v131, v135"); e(f"s_cbranch_vccnz {nm}_late")
    k.label(f"{nm}_lok")
    e("s_waitcnt lgkmcnt(0)"); e("s_barrier")
    for i in (2, 0, 1): e(f"ds_read_b128 {vr(SS[0]+4*i,4)}, v133 offset:{1024*i}")
    OO = O[0]
    e("s_waitcnt lgkmcnt(2)")
    for r in range(8, 12): e(f"v_add_f32 v{OO+r}, v{OO+r}, v{SS[0]+r}")
    e("s_waitcnt lgkmcnt(0)")
    for r in range(8): e(f"v_add_f32 v{OO+r}, v{OO+r}, v{SS[0]+r}")
    k.label(f"{nm}_chk")
    e(f"v_mov_b32 v30, v{OO+8}"); e(f"v_mov_b32 v31, v{OO+8}")
    e(f"v_max3_f32 v28, abs(v{OO}), abs(v{OO+1}), abs(v{OO+2})")
    e("v_permlane32_swap_b32 v30, v31")
    for r in range(3, 11, 2): e(f"v_max3_f32 v28, abs(v{OO+r}), abs(v{OO+r+1}), v28")
    e(f"v_max_f32 v28, abs(v{OO+11}), v28")
    e("v_cmp_le_f32 vcc, s32, v31"); e("v_cmp_ge_f32 s[36:37], s33, v31"); e("v_cmp_gt_f32 s[40:41], s34, v28")
    e("v_rcp_f32 v31, v31")
    e("s_and_b64 s[36:37], s[36:37], vcc"); e("s_and_b64 s[36:37], s[36:37], s[40:41]")
    e("s_cmp_eq_u64 s[36:37], -1"); e(f"s_cbranch_scc0 {nm}_slow")
    def slowpath():
        k.label(f"{nm}_late")
        e("s_mov_b32 s49, 0")
        k.label(f"{nm}_late1")
        e("s_sleep 8"); late(); e("s_add_u32 s49, s49, 1"); e("s_waitcnt vmcnt(0)")
        e("v_cmp_gt_u32 vcc, v131, v135"); e("s_cmp_ge_u32 s49, 0x20000"); e(f"s_cbranch_scc1 {nm}_lok"); e(f"s_cbranch_vccnz {nm}_late1")
        e(f"s_branch {nm}_lok")
        k.label(f"{nm}_slow")
        e("s_cmp_eq_u32 s30, 0"); e(f"s_cbranch_scc0 {nm}_fin")
        e("s_mov_b32 s30, 1")
        e("s_waitcnt vmcnt(0)")
        NM = O[1]
        e("v_mov_b32 v32, 0xff800000")
        def slowqk(c):
            e(f"buffer_load_dwordx4 {vr(KF[0],4)}, v22, s[8:11], s27 offen {SC}")
            e(f"buffer_load_dwordx2 {vr(KF[0]+4,2)}, v23, s[8:11], s27 offen offset:1024 {SC}")
            e("s_waitcnt vmcnt(0)")
            e(f"v_mfma_f32_32x32x16_bf16 {vr(SS[0],16)}, {vr(KF[0],4)}, {vr(Q[0],4)}, {c}"); e("s_nop 10")
            e(f"v_mfma_f32_32x32x8_bf16 {vr(SS[0],16)}, {vr(KF[0]+4,2)}, {vr(Q[0]+4,2)}, {vr(SS[0],16)}"); e("s_nop 12")
        e(f"s_add_u32 s27, s19, {KVIMG}"); e("s_mov_b32 s31, 0")
        k.label(f"{nm}_mx")
        slowqk("0")
        for r in range(0, 16, 2): e(f"v_max3_f32 v32, v{SS[0]+r}, v{SS[0]+r+1}, v32")
        e("s_add_u32 s27, s27, 2560")
        e("s_add_u32 s31, s31, 1"); e("s_cmp_lt_u32 s31, 64"); e(f"s_cbranch_scc1 {nm}_mx")
        k.allred32("v_max_f32", 32, 33)
        e("v_xor_b32 v32, 0x80000000, v32")
        for r in range(16): e(f"v_mov_b32 v{NM+r}, v32")
        for r in range(16): e(f"v_mov_b32 v{OO+r}, 0")
        for r in range(8): e(f"v_mov_b32 v{VF[0]+r}, v20")
        e(f"s_add_u32 s27, s19, {KVIMG}"); e("s_mov_b32 s31, 0")
        k.label(f"{nm}_sl")
        e("s_mov_b64 exec, s[28:29]")
        e(f"buffer_load_dwordx4 {vr(VF[0],4)}, v21, s[8:11], s27 offen {SC}")
        e(f"buffer_load_dwordx4 {vr(VF[0]+4,4)}, v21, s[8:11], s27 offen offset:640 {SC}")
        e("s_mov_b64 exec, -1")
        slowqk(vr(NM,16))
        for i in range(16): e(f"v_exp_f32 v{SS[0]+i}, v{SS[0]+i}")
        e("s_nop 0")
        for i in range(8): e(f"v_cvt_pk_bf16_f32 v{P+i}, v{SS[0]+2*i}, v{SS[0]+2*i+1}")
        e("s_nop 1")
        pv(0, 0, 0); pv(0, 0, 1)
        e("s_add_u32 s27, s27, 2560")
        e("s_add_u32 s31, s31, 1"); e("s_cmp_lt_u32 s31, 64"); e(f"s_cbranch_scc1 {nm}_sl")
        e("s_nop 12"); e(f"s_branch {nm}_chk")
    k.tail = slowpath
    k.label(f"{nm}_fin")
    e("s_nop 0")
    for r in range(12): e(f"v_mul_f32 v{OO+r}, v{OO+r}, v31")
    for r in range(6): e(f"v_cvt_pk_bf16_f32 v{P+r}, v{OO+2*r}, v{OO+2*r+1}")
    e(f"buffer_store_dwordx4 {vr(P,4)}, v39, s[8:11], s51 offen {SC}")
    e("s_mov_b32 exec_hi, 0")
    e(f"buffer_store_dwordx2 {vr(P+4,2)}, v38, s[8:11], s52 offen {SC}")
    e("s_mov_b64 exec, -1")
    k.stamp(5)
    e("v_lshlrev_b32 v3, 4, v1")
    k.vm = []; k.lg = []

def proj_c(k, tag, src, xin, xout, stout, last, cnt_code, word, st0):
    final = False
    e = k.e
    ACC, RESID, A, BF = 24, 44, 76, 156
    NA0 = ENV('PA0', '8')
    ids_rt(k)
    e("s_lshl_b32 s19, s16, 2"); e("s_add_u32 s19, s19, s39")
    e("s_mul_i32 s24, s19, 20480")
    e("s_lshr_b32 s33, s17, 1"); e("s_mul_i32 s33, s33, 5120"); e("s_add_u32 s33, s33, s24")
    e("s_and_b32 s34, s17, 1"); e("s_mul_i32 s35, s34, 3072"); e("s_add_u32 s35, s35, s33")
    e("s_lshl_b32 s36, s34, 9"); e("s_add_u32 s36, s36, s33"); e("s_add_u32 s36, s36, 2048")
    e(f"s_add_u32 s37, s35, {xin}"); e(f"s_add_u32 s38, s36, {xin}")
    e("v_lshrrev_b32 v13, 5, v1"); e("v_lshlrev_b32 v13, 8, v13"); e("v_and_b32 v14, 15, v1"); e("v_lshl_add_u32 v13, v14, 4, v13")
    e("v_bfe_u32 v14, v1, 4, 1"); e("v_lshl_add_u32 v13, v14, 3, v13")
    k.vmop(f"buffer_load_dwordx4 {vr(RESID,4)}, v3, s[8:11], s37 offen {SC}", "r")
    k.vmop(f"buffer_load_dwordx4 {vr(RESID+4,4)}, v3, s[8:11], s37 offen offset:1024 {SC}", "r")
    k.vmop(f"buffer_load_dwordx2 {vr(RESID+8,2)}, v13, s[8:11], s38 offen {SC}", "r")
    e(f"s_add_u32 s24, s24, {src}")
    for i in range(1, 5): e(f"s_add_u32 s{24+i}, s24, {4096*i}")
    e("v_lshrrev_b32 v9, 4, v1"); e("v_add_u32 v12, 61440, v3")
    wait_go(k, tag, word, cnt_code)
    k.stamp(st0)
    def ldA(n): k.vmop(f"buffer_load_dwordx4 {vr(A+4*n,4)}, v3, s[8:11], s{24+n//4} offen offset:{(n%4)*1024} {SC}", f"a{n}")
    for n in range(NA0): ldA(n)
    k.waitvm("r")
    for i in range(10):
        e(f"v_lshlrev_b32 v{ACC+2*i}, 16, v{RESID+i}"); e(f"v_and_b32 v{ACC+2*i+1}, 0xffff0000, v{RESID+i}")
    def rd(n, nf):
        off = n*5120 + nf*1024; b = 3
        if n >= 12: off -= 61440; b = 12
        k.dsop(f"ds_read_b128 {vr(BF+20*(n%2)+4*nf,4)}, v{b} offset:{off}", f"b{n}_{nf}")
    e("s_barrier")
    for n in range(2):
        for nf in range(5): rd(n, nf)
    for n in range(20):
        k.waitvm(f"a{n}")
        if n == 0: k.stamp(st0+1)
        for nf in range(5):
            if nf in (0, 2, 4): k.waitlg(f"b{n}_{min(nf+1,4)}")
            if n == 12 and nf == 0 and not final: e("s_barrier")
            e(f"v_mfma_f32_16x16x32_bf16 {vr(ACC+4*nf,4)}, {vr(BF+20*(n%2)+4*nf,4)}, {vr(A+4*n,4)}, {vr(ACC+4*nf,4)}")
            if n + 2 < 20: rd(n+2, nf)
            if nf == 0 and n + NA0 < 20: ldA(n + NA0)
    e("s_barrier")
    if last:
        e("s_cmp_eq_u32 s3, 0"); e(f"s_cbranch_scc1 {k.name}_nf")
        e("v_and_b32 v16, 15, v1"); e("v_mul_u32_u24 v16, 1280, v16"); e("v_lshl_add_u32 v17, v9, 3, v16"); e("v_lshl_add_u32 v16, v9, 4, v16")
        e("s_mul_i32 s32, s19, 20480"); e("s_mul_i32 s31, s17, 160"); e("s_add_u32 s32, s32, s31")
        e("s_lshl_b32 s31, s34, 5"); e("s_add_u32 s33, s32, s31"); e("s_xor_b32 s31, s34, 1"); e("s_lshl_b32 s31, s31, 7"); e("s_add_u32 s32, s32, s31")
        FSC = os.environ.get("FSC", "")
        for i in range(10): e(f"v_cvt_pk_bf16_f32 v{RESID+i}, v{ACC+2*i}, v{ACC+2*i+1}")
        e(f"buffer_store_dwordx4 {vr(RESID,4)}, v16, s[60:63], s33 offen {FSC}")
        e(f"buffer_store_dwordx4 {vr(RESID+4,4)}, v16, s[60:63], s33 offen offset:64 {FSC}")
        e(f"buffer_store_dwordx2 {vr(RESID+8,2)}, v17, s[60:63], s32 offen {FSC}")
        k.stamp(st0+2)
        if STAMP: e("s_waitcnt vmcnt(0)")
        k.dump(15, "2")
        e("s_endpgm")
        k.label(f"{k.name}_nf")
    if True:
        e(f"s_add_u32 s37, s35, {xout}"); e(f"s_add_u32 s38, s36, {xout}")
        e("s_lshl_b32 s32, s19, 10"); e("s_lshl_b32 s33, s17, 7"); e("s_add_u32 s32, s32, s33"); e(f"s_add_u32 s32, s32, {stout}")
        e("v_lshlrev_b32 v16, 3, v1")
        for i in range(10): e(f"v_cvt_pk_bf16_f32 v{RESID+i}, v{ACC+2*i}, v{ACC+2*i+1}")
        e(f"buffer_store_dwordx4 {vr(RESID,4)}, v3, s[8:11], s37 offen {SC}")
        e(f"buffer_store_dwordx4 {vr(RESID+4,4)}, v3, s[8:11], s37 offen offset:1024 {SC}")
        e(f"buffer_store_dwordx2 {vr(RESID+8,2)}, v13, s[8:11], s38 offen {SC}")
        e(f"v_add_f32 v18, v{ACC}, v{ACC+1}"); e(f"v_mul_f32 v19, v{ACC}, v{ACC}"); e(f"v_add_f32 v20, v{ACC+2}, v{ACC+3}"); e(f"v_mul_f32 v21, v{ACC+1}, v{ACC+1}")
        e(f"v_fmac_f32 v19, v{ACC+2}, v{ACC+2}"); e(f"v_fmac_f32 v21, v{ACC+3}, v{ACC+3}")
        for i in range(4, 20, 2):
            e(f"v_add_f32 v18, v18, v{ACC+i}"); e(f"v_fmac_f32 v19, v{ACC+i}, v{ACC+i}")
            e(f"v_add_f32 v20, v20, v{ACC+i+1}"); e(f"v_fmac_f32 v21, v{ACC+i+1}, v{ACC+i+1}")
        e("v_add_f32 v18, v18, v20"); e("v_add_f32 v19, v19, v21")
        for sw in ("v_permlane16_swap_b32", "v_permlane32_swap_b32"):
            e("v_mov_b32 v20, v18"); e("v_mov_b32 v21, v19"); e("s_nop 0")
            e(f"{sw} v18, v20"); e(f"{sw} v19, v21"); e("s_nop 0")
            e("v_add_f32 v18, v18, v20"); e("v_add_f32 v19, v19, v21")
        e("s_mov_b64 exec, 0xffff")
        e(f"buffer_store_dwordx2 v[18:19], v16, s[8:11], s32 offen {SC}")
    k.stamp(st0+2)

def proj_l(k, wimg, nxt, src, sig=None, done=0, last=False):
    e = k.e
    if nxt is not None:
        ids_mt(k)
        e("s_min_u32 s17, s17, 14" if nxt == WA_I else "s_nop 0")
        e("s_mul_i32 s58, s17, 163840"); e("s_add_u32 s58, s58, s45"); e(f"s_add_u32 s58, s58, {nxt}")
    ids_rt(k)
    e("s_mul_i32 s50, s17, 102400"); e("s_add_u32 s50, s50, s45"); e(f"s_add_u32 s50, s50, {wimg}")
    e("s_mul_i32 s51, s16, 81920"); e("s_lshl_b32 s52, s17, 2"); e("s_add_u32 s52, s52, s39"); e("s_mul_i32 s52, s52, 2560"); e("s_add_u32 s51, s51, s52"); e(f"s_add_u32 s51, s51, {src}")
    e("v_min_u32 v21, 39, v1"); e("v_lshlrev_b32 v21, 6, v21")
    w = Wdma(k, 25, 50, "o"); k.vm = []
    T1, T2 = ENV('T1', '0'), ENV('T2', '4')
    if sig:
        signal(k, "s1l", 0, 8, sig)
        ub_prep(k, 0)
    if last: w.rng(0, 6); e("s_barrier"); done = 6
    w.rng(done, 25, T1 if sig else 0)
    w2 = Wdma(k, 40, 58)
    if last:
        e("s_cmp_eq_u32 s3, 0"); e(f"s_cbranch_scc1 {k.name}_nl")
        e("s_waitcnt vmcnt(0)"); e("s_barrier"); e("buffer_load_dword v20, v21, s[8:11], s51 offen"); e("s_endpgm")
        k.label(f"{k.name}_nl")
    if sig:
        w2.rng(25, 33, T1)
        e(f"v_mov_b32 v{PV_+3}, {LW}"); e("s_mov_b32 s49, 0")
        k.label(f"{k.name}_a8")
        e(f"ds_read_b32 v{PV_}, v{PV_+3}"); e("s_add_u32 s49, s49, 1"); e("s_waitcnt lgkmcnt(0)"); e(f"v_readfirstlane_b32 s44, v{PV_}")
        e("s_cmp_ge_u32 s49, 0x400000"); e("s_cselect_b32 s44, 8, s44"); e("s_cmp_lt_u32 s44, 8"); e(f"s_cbranch_scc1 {k.name}_a8")
    if nxt is not None: w2.rng(33 if sig else 32, 39, T1 if sig else 0)
    if sig: ub_prep(k, 1)
    k.waitvm("o24")
    e("s_barrier")
    if ENV('ATOUCH', '1'):
        k.vmop("buffer_load_dword v20, v21, s[8:11], s51 offen")
    if nxt is not None:
        if not sig: w2.rng(25, 32)
        e("s_barrier")
        w2.rng(0, 15)
        e("s_barrier")
        k.waitvm("w14")
        w2.rng(15, 25, T2)
    return w2

def stats16(k, s, rstd, mop, mask):
    e = k.e
    e(f"v_add_f32 v{s}, v{s}, v{s+2}"); e(f"v_add_f32 v{s+1}, v{s+1}, v{s+3}")
    k.allred16("v_add_f32", s, s+2); k.allred16("v_add_f32", s+1, s+3)
    k.allred32("v_add_f32", s, s+2); k.allred32("v_add_f32", s+1, s+3)
    stats_finish(k, s, s+1, s+2, rstd, s+3)
    split3(k, s+2, mop, 17, 'm', mask)
def usum(k, u, dst, t=17):
    e = k.e
    e(f"v_add_f32 v{u}, v{u}, v{u+1}"); e(f"v_add_f32 v{u+2}, v{u+2}, v{u+3}"); e(f"v_add_f32 v{u}, v{u}, v{u+2}")
    split3(k, u, dst, t, 'u')
def scale_pack(k, a, sc, dst):
    for r in range(4): k.e(f"v_mul_f32 v{a+r}, v{a+r}, v{sc(r)}")
    for r in range(2): k.e(f"v_cvt_pk_bf16_f32 v{dst+r}, v{a+2*r}, v{a+2*r+1}")
EX = 102400
SOFF = 2*8192 + 7296
UOFF = lambda F: (F//4)*8192 + 7168 + (F%4)*256 + 128
TOKF = (0, 1, 2, 3, 6); FEAF = (4, 5, 7)

UO = 3456
def ub_prep(k, part):
    e = k.e
    if part:
        k.waitvm("up")
        for j_ in range(5): e(f"v_add_f32 v{64+j_}, v{64+j_}, v{69+j_}")
        e("v_add_f32 v64, v64, v65"); e("v_add_f32 v66, v66, v67"); e("v_add_f32 v64, v64, v68"); e("v_add_f32 v64, v64, v66")
        k.allred32("v_add_f32", 64, 65); split3(k, 64, 28, 17, 'u')
        return
    e("v_lshrrev_b32 v6, 5, v1"); e("v_and_b32 v5, 31, v1"); e("s_lshr_b32 s30, s21, 1")
    e("v_mul_u32_u24 v12, 5120, v6"); e("v_lshl_add_u32 v12, v5, 2, v12")
    e("s_mul_i32 s30, s30, 10240"); e("s_lshl_b32 s31, s39, 7"); e("s_add_u32 s30, s30, s31"); e(f"s_add_u32 s30, s30, {U_B}"); e("s_add_u32 s31, s30, 2560")
    for j_ in range(10): k.vmop(f"buffer_load_dword v{64+j_}, v12, s[12:15], s{30+j_//5} offen offset:{512*(j_%5)}", "up")
    e("v_bfe_u32 v6, v1, 4, 1"); e("v_lshlrev_b32 v46, 9, v6"); e("v_and_b32 v5, 15, v1"); e("v_lshl_add_u32 v46, v5, 3, v46")
    e("s_lshl_b32 s30, s39, 12"); e("v_add_u32 v46, s30, v46")

def atouch_pre(k, xin):
    e = k.e
    e("s_mul_i32 s51, s16, 163840"); e("s_lshl_b32 s52, s17, 2"); e("s_add_u32 s52, s52, s39"); e("s_mul_i32 s52, s52, 2560"); e("s_add_u32 s51, s51, s52"); e(f"s_add_u32 s51, s51, {xin}")
    e("v_min_u32 v21, 39, v1"); e("v_lshlrev_b32 v21, 6, v21")

G_ACC, G_BF, G_AR, G_DA = 64, 128, 160, 5
def gemm32_pre(k, xin, stin):
    e = k.e
    e("v_and_b32 v10, 31, v1"); e("v_lshrrev_b32 v4, 5, v1"); e("v_and_b32 v5, 15, v1")
    e("s_lshl_b32 s19, s16, 2"); e("s_add_u32 s19, s19, s18")
    e("v_bfe_u32 v7, v1, 4, 1"); e("v_mul_u32_u24 v8, 20480, v7"); e("v_lshl_add_u32 v8, v4, 8, v8"); e("v_lshl_add_u32 v8, v5, 4, v8")
    e("v_lshlrev_b32 v11, 10, v7"); e("v_lshl_add_u32 v11, v4, 9, v11"); e("v_lshl_add_u32 v11, v5, 3, v11")
    e("s_lshl_b32 s30, s19, 11"); e(f"s_add_u32 s30, s30, {stin}")
    e("s_mul_i32 s24, s19, 40960"); e(f"s_add_u32 s24, s24, {xin}")
    e("v_add_u32 v41, 65536, v3"); e("v_add_u32 v42, 131072, v3")
    e("v_subrev_u32 v58, 1, v4"); e("v_not_b32 v59, v58")
def gemm32_loads(k):
    e = k.e
    def ldA(ks):
        if ks % 4 == 0 and ks > 0: e("s_add_u32 s24, s24, 4096")
        for u in range(2):
            k.vmop(f"buffer_load_dwordx4 {vr(G_AR+8*(ks%G_DA)+4*u,4)}, v8, s[8:11], s24 offen offset:{(ks%4)*1024+512*u} {SC}", f"a{ks}")
    ldA(0)
    for q in range(4): k.vmop(f"buffer_load_dwordx2 {vr(16+2*q,2)}, v11, s[8:11], s30 offen offset:{128*q} {SC}", "st")
    for ks in range(1, G_DA-1): ldA(ks)
    return ldA
def gemm32_stats(k):
    e = k.e
    k.waitvm("st")
    e("v_add_f32 v16, v16, v18"); e("v_add_f32 v17, v17, v19"); e("v_add_f32 v20, v20, v22"); e("v_add_f32 v21, v21, v23")
    e("v_add_f32 v16, v16, v20"); e("v_add_f32 v17, v17, v21")
    k.allred32("v_add_f32", 16, 18); k.allred32("v_add_f32", 17, 18)
    stats_finish(k, 16, 17, 46, 47, 18)
    split3(k, 46, 48, 18, 'm', 58)
def gemm32(k, vmode, fl, ldA, bars, st0, late=None):
    e = k.e; ACC, BF, AR, DA = G_ACC, G_BF, G_AR, G_DA
    acc = lambda jf: vr(ACC+16*jf, 16)
    def rd(ks, f):
        off = ks*8192 + 1024*f; hi = off >> 16
        k.dsop(f"ds_read_b128 {vr(BF+4*f,4)}, v{(3,41,42)[hi]} offset:{off & 0xffff}", f"b{ks}_{f}")
    e("s_barrier")
    for f in range(8): rd(0, f)
    for ks in range(20):
        k.waitvm(f"a{ks}")
        if ks == 0: k.stamp(st0+1)
        if ks in bars: e("s_barrier")
        if late and ks == late[0]: k.fill(fl, 1000); fl += late[1]
        for f in range(8):
            u, jf = f//4, f%4
            if f % 2 == 0: k.waitlg(f"b{ks}_{f+1}")
            a = vr(AR+8*(ks%DA)+4*u, 4); b = vr(BF+4*f, 4); c = acc(jf) if (ks or u) else "0"
            if vmode: e(f"v_mfma_f32_32x32x16_bf16 {acc(jf)}, {a}, {b}, {c}")
            else:     e(f"v_mfma_f32_32x32x16_bf16 {acc(jf)}, {b}, {a}, {c}")
            if ks + 1 < 20: rd(ks+1, f)
            if f == 0 and ks + DA - 1 < 20: ldA(ks + DA - 1)
            if ks >= 1: k.fill(fl, 2)
        if ks == 15:
            k.fill(fl, 1000)
            for jf in range(4):
                if vmode: e(f"v_mfma_f32_32x32x8_bf16 {acc(jf)}, v[48:49], {vr(50+2*jf,2)}, {acc(jf)}")
                else:     e(f"v_mfma_f32_32x32x8_bf16 {acc(jf)}, {vr(50+2*jf,2)}, v[48:49], {acc(jf)}")
    k.stamp(st0+2)

TB, TS = 88448, 296
def toff(G): return (0, 64, 128, 168, 208, 248)[G//5] + 8*(G%5)

def qkvb_c(k, xin, stin, st0):
    e = k.e; nm = k.name
    ACC, BF = G_ACC, G_BF
    ids_mt(k); gemm32_pre(k, xin, stin)
    e("v_lshrrev_b32 v6, 4, v1")
    MC, MP, MP1 = 200, 204, 208
    NEG = fbits(-1e30)
    e("v_lshlrev_b32 v17, 2, v6"); e("v_sub_u32 v17, v5, v17"); e(f"v_mov_b32 v19, {NEG}")
    for r in range(4):
        e(f"v_subrev_u32 v18, {r}, v17"); e("v_and_b32 v16, 0x80000001, v18")
        e("v_cmp_eq_u32 vcc, 0, v16"); e(f"v_cndmask_b32 v{MC+r}, v19, 0, vcc")
        e("v_cmp_eq_u32 vcc, 0x80000000, v16"); e(f"v_cndmask_b32 v{MP+r}, v19, 0, vcc")
    e("s_cmp_eq_u32 s19, 0"); e(f"s_cselect_b32 s34, {NEG}, 0")
    for r in range(4): e(f"v_add_f32 v{MP1+r}, s34, v{MP+r}")
    e(f"s_mul_i32 s35, s18, {32*TS}"); e(f"s_add_u32 s35, s35, {TB}")
    e(f"v_mul_u32_u24 v16, {TS}, v10"); e("v_add_u32 v16, s35, v16"); e(f"v_add_u32 v16, {16*TS}, v16")
    e("v_lshl_add_u32 v212, v4, 3, v16"); e("v_lshl_add_u32 v213, v4, 5, v16"); e("v_mov_b32 v219, v16")
    e("v_lshl_add_u32 v215, v4, 6, v16")
    e(f"v_mul_u32_u24 v16, {TS}, v5"); e("v_add_u32 v16, s35, v16"); e("v_lshl_add_u32 v216, v6, 4, v16")
    e("v_lshrrev_b32 v17, 2, v1"); e(f"v_mul_u32_u24 v16, {TS}, v17"); e("v_add_u32 v16, s35, v16"); e("v_and_b32 v17, 3, v1")
    e("v_lshl_add_u32 v217, v17, 3, v16")
    e("v_mul_u32_u24 v18, 40, v17"); e("v_add_u32 v18, 240, v18"); e("v_cmp_gt_u32 vcc, 2, v17"); e("v_mov_b32 v19, 288"); e("v_cndmask_b32 v18, v19, v18, vcc"); e("v_add_u32 v218, v16, v18")
    e("v_lshlrev_b32 v43, 9, v7"); e("v_lshl_add_u32 v43, v5, 3, v43")
    e("v_mov_b32 v220, 0"); e("v_mov_b32 v221, 0"); e("v_mov_b32 v222, 0x3f803f80"); e("v_mov_b32 v223, 0x3f803f80")
    e("s_mul_i32 s25, s19, 40960"); e(f"s_add_u32 s25, s25, {OBT}")
    e("s_lshl_b32 s51, s17, 10"); e("s_add_u32 s51, s51, s25"); e("s_add_u32 s52, s51, 20480")
    e("s_lshr_b32 s53, s17, 2"); e("s_add_u32 s53, s53, 16"); e("s_lshl_b32 s53, s53, 10"); e("s_add_u32 s53, s53, s25")
    e("s_and_b32 s54, s17, 1"); e("s_lshl_b32 s54, s54, 9"); e("s_add_u32 s53, s53, s54")
    e("s_bfe_u32 s54, s17, 0x10001"); e("s_lshl_b32 s54, s54, 3"); e("s_add_u32 s53, s53, s54"); e("s_add_u32 s54, s53, 20480")
    def c2():
        e("s_lshl_b32 s48, s16, 9"); e(f"s_add_u32 s48, s48, {C2}")
        e(f"v_lshlrev_b32 v{PV_+1}, 8, v1"); e(f"v_lshlrev_b32 v{PV_+2}, 3, v1"); e(f"v_sub_u32 v{PV_+2}, 16, v{PV_+2}")
        e("s_cmp_eq_u32 s16, 0"); e("s_cselect_b64 s[56:57], 1, 3")
    wait_go(k, "p3", 1, c2)
    k.stamp(st0)
    ldA = gemm32_loads(k)
    fl = k.capture(lambda: (gemm32_stats(k), e(f"v_mul_f32 v45, {fbits(CSCALE)}, v47")))
    def uops():
        for jf in range(4): k.dsop(f"ds_read_b64 {vr(50+2*jf,2)}, v43 offset:{UO+4096*jf}", "uo")
    gemm32(k, False, fl, ldA, {6, ENV('H1S', '16'), ENV('H2S', '18')}, st0, (8, k.capture(uops)))
    e("s_barrier")
    e("s_cmp_eq_u32 s18, 0"); e(f"s_cbranch_scc0 {nm}_ni"); lw_init(k); k.label(f"{nm}_ni")
    for q in range(3): e(f"ds_write_b64 v215, v[220:221] offset:{40+8*q}")
    e("ds_write_b64 v219, v[222:223] offset:288")
    for G in list(range(10, 30, 2)) + list(range(0, 10, 2)):
        a = ACC + 2*G; d = BF + G
        for r in range(4): e(f"v_mul_f32 v{a+r}, v{a+r}, v{45 if G < 10 else 47}")
        for r in range(2): e(f"v_cvt_pk_bf16_f32 v{d+r}, v{a+2*r}, v{a+2*r+1}")
        e(f"ds_write_b64 v{ {8: 212, 32: 213}[toff(G+1) - toff(G)] }, {vr(d,2)} offset:{toff(G)}")
    e("s_waitcnt lgkmcnt(0)"); e("s_barrier")
    KO = lambda b, h: 160 + 8*b + 4*h
    QO = lambda b, h: 184 + 8*(b-1) + 4*h
    VO = lambda F, b: 20 + 8*FEAF.index(F) + 2*b if False else 224 + 6*FEAF.index(F) + 2*b - (0)
    VO = lambda F, b: (128, 136, 144)[FEAF.index(F)] + 2*b
    for b in (1, 2):
        for h in range(2):
            for x in range(2): e(f"ds_read_b64 {vr(QO(b,h)+2*x,2)}, v216 offset:{16*b*TS+64*h+8*x}")
    for b in range(3):
        for h in range(2):
            for x in range(2): e(f"ds_read_b64 {vr(KO(b,h)+2*x,2)}, v216 offset:{16*b*TS+128+40*h+8*x}")
    e("s_waitcnt lgkmcnt(0)")
    for b in range(3):
        for h in range(2): e(f"ds_read_b64_tr_b16 {vr(VO(4+h,b),2)}, v217 offset:{16*b*TS+208+40*h}")
        e(f"ds_read_b64_tr_b16 {vr(VO(7,b),2)}, v218 offset:{16*b*TS}")
    units = [(b, h) for b in (1, 2) for h in range(2)]
    SU = lambda i: 64 + 8*i
    TU = lambda i: ACC + 32 + 4*i
    PU = lambda i: ACC + 48 + 4*i
    OU = lambda i: 64 + 8*i
    for i, (b, h) in enumerate(units):
        e(f"v_mfma_f32_16x16x32_bf16 {vr(SU(i),4)}, {vr(KO(b-1,h),4)}, {vr(QO(b,h),4)}, {vr(MP1 if b == 1 else MP,4)}")
        e(f"v_mfma_f32_16x16x32_bf16 {vr(SU(i)+4,4)}, {vr(KO(b,h),4)}, {vr(QO(b,h),4)}, {vr(MC,4)}")
    e("s_waitcnt lgkmcnt(0)"); e("s_barrier")
    def allred(op):
        for sw in ("v_permlane16_swap_b32", "v_permlane32_swap_b32"):
            for i in range(4): e(f"v_mov_b32 v{TU(i)+1}, v{TU(i)}")
            for i in range(4): e(f"{sw} v{TU(i)}, v{TU(i)+1}")
            for i in range(4): e(f"{op} v{TU(i)}, v{TU(i)}, v{TU(i)+1}")
    for i in range(4):
        s = SU(i)
        e(f"v_max3_f32 v{TU(i)}, v{s}, v{s+1}, v{s+2}"); e(f"v_max3_f32 v{TU(i)}, v{s+3}, v{s+4}, v{TU(i)}")
        e(f"v_max3_f32 v{TU(i)}, v{s+5}, v{s+6}, v{TU(i)}"); e(f"v_max_f32 v{TU(i)}, v{s+7}, v{TU(i)}")
    allred("v_max_f32")
    for i in range(4):
        for r in range(8): e(f"v_sub_f32 v{SU(i)+r}, v{SU(i)+r}, v{TU(i)}")
    for i in range(4):
        for r in range(8): e(f"v_exp_f32 v{SU(i)+r}, v{SU(i)+r}")
    for i in range(4):
        for r in range(4): e(f"v_cvt_pk_bf16_f32 v{PU(i)+r}, v{SU(i)+2*r}, v{SU(i)+2*r+1}")
    for i, (b, h) in enumerate(units):
        e(f"v_mfma_f32_16x16x32_bf16 {vr(OU(i)+4,4)}, {vr(VO(7,b-1),4)}, {vr(PU(i),4)}, 0")
    for i, (b, h) in enumerate(units):
        e(f"v_mfma_f32_16x16x32_bf16 {vr(OU(i),4)}, {vr(VO(4+h,b-1),4)}, {vr(PU(i),4)}, 0")
    for i in range(4): e(f"v_mov_b32 v{TU(i)}, v{OU(i)+4}"); e(f"v_mov_b32 v{TU(i)+1}, v{OU(i)+4}")
    for i in range(4): e(f"v_permlane32_swap_b32 v{TU(i)}, v{TU(i)+1}")
    for i in range(4): e(f"v_rcp_f32 v{TU(i)+1}, v{TU(i)+1}")
    e("v_cmp_eq_u32 vcc, 0, v6")
    for bi in range(2):
        o0, o1 = OU(2*bi), OU(2*bi+1); d = 40 + 8*bi; t0, t1 = TU(2*bi)+1, TU(2*bi+1)+1
        for r in range(4): e(f"v_mul_f32 v{o0+r}, v{o0+r}, v{t0}"); e(f"v_mul_f32 v{o1+r}, v{o1+r}, v{t1}")
        e(f"v_cvt_pk_bf16_f32 v{d}, v{o0}, v{o0+1}"); e(f"v_cvt_pk_bf16_f32 v{d+1}, v{o0+2}, v{o0+3}")
        e(f"v_cvt_pk_bf16_f32 v{d+2}, v{o1}, v{o1+1}"); e(f"v_cvt_pk_bf16_f32 v{d+3}, v{o1+2}, v{o1+3}")
        e(f"buffer_store_dwordx4 {vr(d,4)}, v3, s[8:11], s{51+bi} offen {SC}")
        e(f"v_cndmask_b32 v{t0}, v{t1}, v{t0}, vcc")
        for r in range(4): e(f"v_cndmask_b32 v{o0+4+r}, v{o1+4+r}, v{o0+4+r}, vcc")
        for r in range(4): e(f"v_mul_f32 v{o0+4+r}, v{o0+4+r}, v{t0}")
        e(f"v_cvt_pk_bf16_f32 v{d+4}, v{o0+4}, v{o0+5}"); e(f"v_cvt_pk_bf16_f32 v{d+5}, v{o0+6}, v{o0+7}")
    e("s_mov_b32 exec_hi, 0")
    for bi in range(2): e(f"buffer_store_dwordx2 {vr(44+8*bi,2)}, v3, s[8:11], s{53+bi} offen {SC}")

def qkvb_l(k, xin, stin, w):
    e = k.e; nm = k.name
    ids_mt(k)
    e("v_and_b32 v5, 15, v1"); e("v_lshrrev_b32 v6, 4, v1")
    e("v_lshlrev_b32 v11, 3, v5"); e("v_lshl_add_u32 v11, v6, 8, v11")
    e("v_cmp_eq_u32 vcc, 0, v6"); e("s_lshl_b32 s22, s16, 3"); e("s_max_u32 s22, s22, 1"); e("v_cndmask_b32 v4, 0, -1, vcc")
    e("s_sub_u32 s22, s22, 1")
    e("s_mul_i32 s24, s22, 20480"); e(f"s_add_u32 s24, s24, {xin}"); e("s_add_u32 s24, s24, s45")
    e("s_lshl_b32 s27, s22, 10"); e(f"s_add_u32 s27, s27, {stin}")
    HP = 49152
    e("v_lshrrev_b32 v12, 1, v6"); e("v_lshlrev_b32 v40, 12, v12"); e("v_and_b32 v12, 1, v6"); e("v_lshl_add_u32 v40, v12, 9, v40"); e("v_lshl_add_u32 v40, v5, 4, v40")
    e("s_lshl_b32 s32, s39, 13"); e("v_add_u32 v40, s32, v40"); e("v_add_u32 v41, 65536, v40"); e("v_add_u32 v42, 131072, v40")
    e("s_mul_i32 s33, s39, 6144"); e(f"s_add_u32 s33, s33, {HP}"); e("v_add_u32 v43, s33, v3")
    e("s_min_u32 s40, s39, 2"); e("s_lshl_b32 s41, s40, 11"); e(f"s_add_u32 s41, s41, {HP}"); e("v_add_u32 v44, s41, v3")
    e("s_lshl_b32 s41, s40, 12"); e("v_lshlrev_b32 v45, 3, v5"); e("v_add_u32 v45, s41, v45")
    e(f"v_mul_u32_u24 v12, {TS}, v5"); e(f"v_add_u32 v12, {TB}, v12"); e("s_lshl_b32 s41, s40, 3"); e("s_sub_u32 s41, s41, 2")
    for x in range(2):
        e(f"v_add_u32 v13, s41, v6")
        if x: e("v_add_u32 v13, 4, v13")
        e("v_add_u32 v14, 16, v13")
        e("v_cmp_gt_u32 vcc, 20, v13"); e("v_cndmask_b32 v14, 0, v14, vcc"); e(f"v_lshl_add_u32 v{50+x}, v14, 3, v12")
    e("v_mov_b32 v47, v12"); e("v_mov_b32 v56, 0x3f803f80"); e("v_mov_b32 v57, 0x3f803f80")
    atouch_pre(k, xin)
    e(f"s_setprio {ENV('P3PRIO', '0')}")
    e("s_barrier")
    if ENV('ATOUCH', '1'): k.vmop("buffer_load_dword v20, v21, s[8:11], s51 offen")
    w.one(39)
    e(f"ds_write_b64 v46, v[28:29] offset:{UO}")
    for q_ in range(2): k.vmop(f"buffer_load_dwordx2 {vr(24+2*q_,2)}, v11, s[8:11], s27 offen offset:{128*q_} {SC}", "st")
    for i in range(5):
        k.vmop(f"buffer_load_dwordx4 {vr(128+4*i,4)}, v3, s[8:11], s24 offen {SC}", f"h{i}")
        if i < 4: e("s_add_u32 s24, s24, 4096")
    k.waitvm("st")
    stats16(k, 24, 48, 52, 4)
    e("s_waitcnt lgkmcnt(0)"); e("s_barrier")
    def rd(n):
        i, j = n // 6, 2 + n % 6
        k.dsop(f"ds_read_b128 {vr(96+4*(n%6),4)}, v{40+i//2} offset:{(i%2)*32768+1024*(j//2)+256*(j%2)}", f"r{n}")
    for n in range(6): rd(n)
    for x in range(2): k.dsop(f"ds_read_b64 {vr(20+2*x,2)}, v45 offset:{UO+4096+512*x}", "u")
    for n in range(30):
        i = n // 6
        if n % 6 == 0: k.waitvm(f"h{i}")
        k.waitlg(f"r{n}")
        c = vr(148+4*(n%6), 4)
        e(f"v_mfma_f32_16x16x32_bf16 {c}, {vr(96+4*(n%6),4)}, {vr(128+4*i,4)}, {c if i else 0}")
        if n + 6 < 30: rd(n + 6)
    e("s_barrier")
    for n in range(6): e(f"ds_write_b128 v43, {vr(148+4*n,4)} offset:{1024*n}")
    e("s_waitcnt lgkmcnt(0)"); e("s_barrier")
    for p_ in range(4):
        for x in range(2): e(f"ds_read_b128 {vr(96+8*p_+4*x,4)}, v44 offset:{6144*p_+1024*x}")
    e("s_waitcnt lgkmcnt(0)")
    for r in range(8):
        e(f"v_add_f32 v{96+r}, v{96+r}, v{104+r}"); e(f"v_add_f32 v{112+r}, v{112+r}, v{120+r}"); e(f"v_add_f32 v{80+r}, v{96+r}, v{112+r}")
    for x in range(2): e(f"v_mfma_f32_16x16x16_bf16 {vr(80+4*x,4)}, {vr(20+2*x,2)}, v[52:53], {vr(80+4*x,4)}")
    for x in range(2): scale_pack(k, 80+4*x, lambda r: 48, 88+2*x)
    e("s_barrier")
    for x in range(2): e(f"ds_write_b64 v{50+x}, {vr(88+2*x,2)}")
    e("ds_write_b64 v47, v[56:57] offset:288")
    e(f"s_setprio {ENV('LPRIO', '2')}")
    e("s_waitcnt lgkmcnt(0)"); e("s_barrier")
    k.vm = []; k.lg = []

def one(k, target):
    k.e(f"v_mov_b32 v{PV_+1}, 0"); k.e(f"v_mov_b32 v{PV_+2}, {target}"); k.e("s_mov_b64 s[56:57], 1")

def kvpos(k):
    k.e("s_and_b32 s36, s19, 31"); k.e("s_lshl_b32 s36, s36, 1"); k.e("s_lshr_b32 s34, s19, 5"); k.e("s_add_u32 s36, s36, s34")
    k.e("s_add_u32 s36, s36, 44"); k.e("s_and_b32 s36, s36, 63")
def addr_v(k, img):
    e = k.e
    e("s_sub_u32 s35, s17, 10"); e("s_lshl_b32 s35, s35, 7")
    kvpos(k); e("s_mul_i32 s36, s36, 2560"); e(f"s_add_u32 s33, s36, {img+KVIMG+1280}")
    e("v_mul_u32_u24 v20, 320, v4")
    for jf in range(4):
        e(f"v_add_u32 v16, s35, v10")
        if jf: e(f"v_add_u32 v16, {32*jf}, v16")
        e("v_mul_u32_u24 v17, 52429, v16"); e("v_lshrrev_b32 v17, 20, v17")
        e("v_mul_u32_u24 v18, 20, v17"); e("v_sub_u32 v18, v16, v18")
        e("v_mul_u32_u24 v17, 163840, v17"); e("v_lshl_add_u32 v17, v18, 4, v17")
        e(f"v_add_u32 v{24+jf}, v17, v20")
def addr_qk(k, img, xm=52):
    e = k.e; k.xm = xm
    e("s_cmp_ge_u32 s17, 5")
    e(f"s_cselect_b32 s33, {QI}, 0"); e(f"s_cselect_b32 s59, 1.0, {fbits(CSCALE)}"); e("s_cselect_b32 s35, 5, 0"); e("s_cselect_b32 s37, 1, 0")
    e(f"s_add_u32 s33, s33, {img+QIMG}")
    e("s_sub_u32 s35, s17, s35")
    kvpos(k); e("s_cmp_eq_u32 s37, 0"); e("s_cselect_b32 s36, s19, s36")
    e("s_mul_i32 s36, s36, 1280"); e("s_lshl_b32 s36, s36, s37"); e("s_add_u32 s33, s33, s36")
    e("s_lshl_b32 s34, 81920, s37")
    e("v_lshlrev_b32 v16, 4, v10"); e("v_lshlrev_b32 v17, 3, v10")
    e("v_lshl_add_u32 v18, v4, 9, v16")
    e("s_sub_u32 s36, s34, 512"); e("v_and_b32 v19, s36, v59"); e("v_add_u32 v19, v19, v16")
    e(f"s_mov_b32 s{xm}, -1"); e(f"s_mov_b32 s{xm+1}, 0"); e(f"s_mov_b32 s{xm+2}, 0"); e(f"s_mov_b32 s{xm+3}, -1")
def epi_qk(k, ACC, BF):
    e = k.e; nm = k.name + k.ptag
    for v in range(1, 5):
        e(f"s_cmp_eq_u32 s35, {v}"); e(f"s_cbranch_scc1 {nm}_e{v}")
    QSC = os.environ.get("QSC", "sc1")
    for v in range(5):
        if v: k.label(f"{nm}_e{v}")
        e("s_nop 7")
        for jf in range(4):
            for r in range(16): e(f"v_mul_f32 v{ACC+16*jf+r}, v{ACC+16*jf+r}, v47")
            for r in range(8): e(f"v_cvt_pk_bf16_f32 v{BF+8*jf+r}, v{ACC+16*jf+2*r}, v{ACC+16*jf+2*r+1}")
            for a2 in range(2):
                x = BF+8*jf+4*a2
                e(f"v_permlane32_swap_b32 v{x}, v{x+2}"); e(f"v_permlane32_swap_b32 v{x+1}, v{x+3}")
            for a2 in range(2):
                x = BF+8*jf+4*a2
                G = [32*v+8*jf+4*a2, 32*v+8*jf+4*a2+2]
                def main(g):
                    h = g // 5; r = g % 5
                    return h, (r // 2 if h % 2 == 0 else (r - 1) // 2)
                st = [g % 10 == 4 for g in G]
                def hoff(dst, h, c):
                    if h: e(f"s_mul_i32 s{dst}, s34, {h}"); e(f"s_add_u32 s{dst}, s{dst}, s33")
                    else: e(f"s_mov_b32 s{dst}, s33")
                    if c: e(f"s_add_u32 s{dst}, s{dst}, {c}")
                if not any(st):
                    (h0, p0), (h1, p1) = main(G[0]), main(G[1])
                    hoff(36, h0, 512*p0)
                    if h0 == h1: e(f"buffer_store_dwordx4 {vr(x,4)}, v18, {k.srdo}, s36 offen {QSC}")
                    else:        e(f"buffer_store_dwordx4 {vr(x,4)}, v19, {k.srdo}, s36 offen {QSC}")
                    assert (h0 == h1 and (p0, p1) == (0, 1)) or (h1 == h0 + 1 and (p0, p1) == (1, 0))
                else:
                    m = st.index(False); q = 1 - m
                    h, p = main(G[m]); hoff(36, h, 512*p); hoff(37, G[q] // 5, 1024); e("s_add_u32 s38, s37, s34")
                    e(f"s_mov_b64 exec, s[{k.xm+2*m}:{k.xm+1+2*m}]")
                    e(f"buffer_store_dwordx4 {vr(x,4)}, v16, {k.srdo}, s36 offen {QSC}")
                    e(f"s_mov_b64 exec, s[{k.xm+2*q}:{k.xm+1+2*q}]")
                    e(f"buffer_store_dwordx2 {vr(x,2)}, v17, {k.srdo}, s37 offen {QSC}")
                    e(f"buffer_store_dwordx2 {vr(x+2,2)}, v17, {k.srdo}, s38 offen {QSC}")
                    e("s_mov_b64 exec, -1")
        e(f"s_branch {nm}_fin5")
def epi_v(k, ACC, BF, RS):
    e = k.e
    VSC = os.environ.get("VSC", "sc1")
    for jf in range(4):
        for r in range(16): e(f"v_mul_f32 v{ACC+16*jf+r}, v{ACC+16*jf+r}, v{RS+r}")
        for r in range(8): e(f"v_cvt_pk_bf16_f32 v{BF+8*jf+r}, v{ACC+16*jf+2*r}, v{ACC+16*jf+2*r+1}")
        for u in range(2):
            e(f"buffer_store_dwordx4 {vr(BF+8*jf+4*u,4)}, v{24+jf}, {k.srdo}, s33 offen offset:{640*u} {VSC}")

def qkva_c(k, xin, stin, img, cnt, wbar, st0):
    k.ptag = '_p5'; k.srdo = 's[8:11]'
    e = k.e; nm = k.name + k.ptag
    DA = 5
    ACC, BF, AR, RS = 64, 128, 160, 200
    gemm32_pre(k, xin, stin)
    e("v_lshlrev_b32 v12, 4, v10")
    e("s_lshl_b32 s31, s17, 11"); e(f"s_add_u32 s31, s31, {U_A}")
    for jf in range(4): k.vmop(f"buffer_load_dwordx4 {vr(24+4*jf,4)}, v12, s[12:15], s31 offen offset:{512*jf}", "u")
    def c4(): one(k, 16); e("s_lshl_b32 s48, s16, 8"); e(f"s_add_u32 s48, s48, {cnt}")
    wait_go(k, "p5", 1, c4)
    k.stamp(st0)
    ldA = gemm32_loads(k)
    def prolog(vmode):
        gemm32_stats(k)
        for jf in range(4): usum(k, 24+4*jf, 50+2*jf, 18)
        if vmode:
            e("v_lshlrev_b32 v16, 4, v4")
            for r in range(16):
                e(f"v_add_u32 v17, {(8*(r//4) + r%4)*4}, v16")
                k.dsop(f"ds_bpermute_b32 v{RS+r}, v17, v47", "rs")
            addr_v(k, img)
        else:
            addr_qk(k, img); e("v_mul_f32 v47, s59, v47")
    e("s_cmp_ge_u32 s17, 10"); e(f"s_cbranch_scc1 {nm}_qv")
    vm_save = list(k.vm)
    def mainloop(vmode):
        gemm32(k, vmode, k.capture(lambda: prolog(vmode)), ldA, {w_ - 1 for w_ in wbar}, st0)
        e("s_barrier")
    mainloop(False)
    epi_qk(k, ACC, BF)
    k.label(f"{nm}_qv"); k.vm = vm_save; k.lg = []
    mainloop(True)
    epi_v(k, ACC, BF, RS)
    k.label(f"{nm}_fin5")

def ph_front(k):
    k.ptag = "_f"; k.srdo = "s[12:15]"
    e = k.e; nm = k.name + k.ptag; kn = k.name
    R, DEP, SCRB, UT = 4, 2, 131072, 65536
    need = lambda ks: ks // 2
    slot = lambda st: (st % R) * 32768
    e("s_cmp_ge_u32 s2, 256"); e(f"s_cbranch_scc1 {kn}_end"); k.stamp(0); k.rstamp(1)
    e("s_load_dwordx4 s[60:63], s[0:1], 0"); e("s_load_dwordx2 s[6:7], s[0:1], 64")
    e("s_load_dwordx2 s[4:5], s[0:1], 56")
    e("s_and_b32 s20, s2, 7"); e("s_lshr_b32 s21, s2, 3")
    e("v_lshrrev_b32 v2, 6, v0"); e("v_and_b32 v1, 63, v0")
    e("v_readfirstlane_b32 s18, v2")
    e("s_and_b32 s39, s18, 3"); e("s_lshl_b32 s45, s39, 10")
    ids_mt(k)
    e("v_lshlrev_b32 v3, 4, v1"); e(f"v_lshlrev_b32 v9, {ENV('BST', '6')}, v1")
    e("s_lshl_b32 s22, s2, 2"); e("s_add_u32 s22, s22, s39"); e("s_mul_i32 s23, s22, 2400"); e("s_mul_i32 s22, s22, 2560")
    def kwait():
        e("s_waitcnt lgkmcnt(0)")
        k.stamp(2)
        k.srd(8, 60, S*D*2); k.srd(28, 62, D*3*D*2); k.srd(12, 6, WS_END)
    def burst():
        if ENV('BURST', '1'):
            e("s_mov_b32 exec_hi, 0xff" if ENV('BST', '6') == 6 else "s_mov_b64 exec, 0xfffff")
            e("buffer_load_dword v240, v9, s[8:11], s22 offen"); e("buffer_load_dword v241, v9, s[28:31], s23 offen")
            e("s_mov_b64 exec, -1")
    def codepf(tg):
        if ENV('CPF', '1'):
            e("s_getpc_b64 s[34:35]"); k.label(f"{nm}_pc{tg}")
            e(f"s_sub_u32 s34, s34, {nm}_pc{tg} - {kn}"); e("s_subb_u32 s35, s35, 0")
            e("v_lshlrev_b32 v242, 4, v0"); e("s_lshl_b32 s36, s21, 12"); e("v_add_u32 v242, s36, v242")
            e(f"v_and_b32 v242, 0xffffffc0, v242"); e(f"v_min_u32 v242, code_end - {kn} - 4, v242")
            e("global_load_dword v243, v242, s[34:35]")
    e("s_cmp_ge_u32 s17, 15"); e(f"s_cbranch_scc1 {nm}_ub")
    e("v_and_b32 v10, 31, v1"); e("v_lshrrev_b32 v4, 5, v1"); e("v_and_b32 v5, 15, v1"); e("v_bfe_u32 v7, v1, 4, 1")
    e("v_lshrrev_b32 v13, 2, v5"); e("v_and_b32 v6, 3, v1")
    e("v_lshl_add_u32 v14, v4, 3, v13"); e("v_lshlrev_b32 v14, 8, v14"); e("v_lshl_add_u32 v14, v7, 5, v14"); e("v_lshl_add_u32 v14, v6, 3, v14")
    e("v_add_u32 v14, 16384, v14")
    def a0():
        e("s_lshl_b32 s48, s17, 11"); e(f"s_add_u32 s48, s48, {C0}"); e(f"v_lshlrev_b32 v{PV_+1}, 8, v1"); e("s_mov_b64 s[56:57], 0xff")
    SF = ENV('SF', '10')
    e("s_cmp_ge_u32 s18, 4"); e(f"s_cbranch_scc1 {nm}_ld")
    kwait(); burst(); codepf("c")
    if ENV('TLB', '1'):
        sh = ENV('TLBS', '18')
        e("s_load_dwordx4 s[84:87], s[0:1], 32"); e("s_load_dwordx2 s[88:89], s[0:1], 16"); e("s_load_dwordx2 s[90:91], s[0:1], 48")
        e(f"v_lshlrev_b32 v236, {sh}, v0" if sh < 21 else "v_lshlrev_b32 v236, 21, v1")
        e(f"v_min_u32 v236, {STAMPS-4}, v236")
        e("s_cmp_eq_u32 s18, 0" if sh == 21 else "s_cmp_lt_u32 s18, 4"); e(f"s_cbranch_scc0 {nm}_tl")
        e("buffer_load_dword v237, v236, s[12:15], 0 offen")
        e("v_and_b32 v236, 1, v1"); e("v_mul_u32_u24 v238, 819196, v236"); e("v_mul_u32_u24 v236, 2457596, v236"); e("s_mov_b64 exec, 3")
        e("s_waitcnt lgkmcnt(0)")
        e("global_load_dword v237, v236, s[84:85]"); e("global_load_dword v237, v238, s[86:87]"); e("global_load_dword v237, v238, s[88:89]"); e("global_load_dword v237, v236, s[90:91]")
        e("s_mov_b64 exec, -1")
        k.label(f"{nm}_tl")
        e("s_waitcnt lgkmcnt(0)")
    ACC, BF, AR, RS = 64, 128, 160, 200
    BA, AA = 216, 224
    e("s_lshl_b32 s19, s16, 2"); e("s_add_u32 s19, s19, s18")
    for jf in range(4):
        e(f"v_xor_b32 v15, {jf}, v13"); e(f"v_lshl_add_u32 v{BA+jf}, v15, 6, v14"); e(f"v_add_u32 v{BA+4+jf}, 65536, v{BA+jf}")
    e("v_lshl_add_u32 v15, v2, 5, v10"); e("v_lshlrev_b32 v15, 7, v15"); e("v_bfe_u32 v12, v10, 1, 3"); e("v_xor_b32 v12, v12, v4")
    for q in range(4):
        e(f"v_xor_b32 v11, {2*q}, v12"); e(f"v_lshl_add_u32 v{AA+q}, v11, 4, v15"); e(f"v_add_u32 v{AA+4+q}, 65536, v{AA+q}")
    e("v_mul_u32_u24 v8, 20480, v7"); e("v_lshl_add_u32 v8, v4, 8, v8"); e("v_lshl_add_u32 v8, v5, 4, v8")
    e("s_mul_i32 s24, s19, 40960"); e(f"s_add_u32 s24, s24, {XI}")
    e("v_subrev_u32 v58, 1, v4"); e("v_not_b32 v59, v58")
    e("s_cmp_ge_u32 s17, 10"); e(f"s_cbranch_scc1 {nm}_qv")
    def mainloop(vmode):
        tagm = "v" if vmode else "q"
        acc = lambda jf: vr(ACC+16*jf, 16)
        fl = k.capture(lambda: addr_v(k, 0) if vmode else addr_qk(k, 0, 28))
        def rdB(ks, f):
            u, jf = f//4, f%4; sl = slot(ks//2)
            for t in range(2):
                off = sl + (32*(ks%2) + 16*u + 4*t)*256
                k.dsop(f"ds_read_b64_tr_b16 {vr(BF+4*f+2*t,2)}, v{BA+4*(sl>>16)+jf} offset:{off & 0xffff}", f"b{ks}_{f}")
        def rdA(ks):
            sl = slot(ks//2)
            for u in range(2): k.dsop(f"ds_read_b128 {vr(AR+8*(ks%2)+4*u,4)}, v{AA+4*(sl>>16)+2*(ks%2)+u} offset:{sl & 0xffff}", f"b{ks}_a")
        kb = [-1]
        def bars(ks):
            while kb[0] < need(ks): e("s_barrier"); kb[0] += 1
        bars(0); k.stamp(3)
        rdA(0)
        for f in range(8): rdB(0, f)
        for ks in range(20):
            for f in range(8):
                u, jf = f//4, f%4
                if f % 2 == 0: k.waitlg(f"b{ks}_{f+1}")
                a = vr(AR+8*(ks%2)+4*u, 4); b = vr(BF+4*f, 4); c = acc(jf) if (ks or u) else "0"
                if vmode: e(f"v_mfma_f32_32x32x16_bf16 {acc(jf)}, {a}, {b}, {c}")
                else:     e(f"v_mfma_f32_32x32x16_bf16 {acc(jf)}, {b}, {a}, {c}")
                if ks + 1 < 20:
                    if f == 0: bars(ks+1); rdA(ks+1)
                    rdB(ks+1, f)
                if ks >= 4: k.fill(fl, 1)
            e(f"s_cmp_eq_u32 s17, {ks % 15}"); e(f"s_cbranch_scc0 {nm}_x{tagm}{ks}")
            e(f"s_add_u32 s32, s24, {1024*ks}")
            for u in range(2): e(f"buffer_store_dwordx4 {vr(AR+8*(ks%2)+4*u,4)}, v8, s[12:15], s32 offen offset:{512*u} {SC}")
            k.label(f"{nm}_x{tagm}{ks}")
            if ks in (0, 1, 4, 9, 10, 14): k.stamp(7 + (0, 1, 4, 9, 10, 14).index(ks))
        assert not fl
        k.stamp(4)
        e(f"v_lshlrev_b32 v23, 2, v10"); e(f"v_add_u32 v23, {UT}, v23"); e("s_lshl_b32 s32, s18, 8"); e("v_add_u32 v22, s32, v23")
        if vmode: e("v_lshlrev_b32 v21, 4, v4"); e(f"s_add_u32 s32, s32, {UT}"); e("v_add_u32 v21, s32, v21")
        e("s_barrier")
        e("ds_read_b32 v48, v22 offset:1024"); e("ds_read_b32 v49, v22 offset:1152")
        for jf in range(4): e(f"ds_read_b32 v{28+2*jf}, v23 offset:{256*jf}"); e(f"ds_read_b32 v{29+2*jf}, v23 offset:{256*jf+128}")
        if vmode:
            for a_ in range(4): e(f"ds_read_b128 {vr(RS+4*a_,4)}, v21 offset:{2048+32*a_}")
        else: e("ds_read_b32 v47, v22 offset:2048")
        e("s_waitcnt lgkmcnt(0)"); k.lg = []
        e("v_and_b32 v48, v48, v58"); e("v_and_b32 v49, v49, v58")
        if not vmode: e("v_mul_f32 v47, s59, v47")
        for jf in range(4):
            if vmode: e(f"v_mfma_f32_32x32x8_bf16 {acc(jf)}, v[48:49], {vr(28+2*jf,2)}, {acc(jf)}")
            else:     e(f"v_mfma_f32_32x32x8_bf16 {acc(jf)}, {vr(28+2*jf,2)}, v[48:49], {acc(jf)}")
        k.stamp(5)
    mainloop(False)
    epi_qk(k, ACC, BF)
    k.label(f"{nm}_qv"); k.lg = []
    mainloop(True)
    epi_v(k, ACC, BF, RS)
    k.label(f"{nm}_fin5")
    k.stamp(6)
    e("s_barrier")
    signal(k, "sf", -1, 8, a0, 0, "s[12:15]")
    k.dump(13)
    e(f"s_branch {kn}_t0")
    k.label(f"{nm}_ld"); k.vm = []; k.lg = []
    e(f"s_setprio {ENV('LPRIO', '2')}")
    e("v_lshrrev_b32 v16, 4, v1"); e("v_and_b32 v17, 3, v2")
    e("v_lshl_add_u32 v18, v17, 2, v16"); e("v_mul_u32_u24 v20, 3840, v18")
    e("v_xor_b32 v18, v13, v16"); e("v_lshl_add_u32 v20, v18, 6, v20"); e("v_lshl_add_u32 v20, v6, 4, v20")
    e("v_lshrrev_b32 v18, 3, v1"); e("v_lshl_add_u32 v19, v17, 5, v18"); e("v_and_b32 v23, 7, v1")
    for i in range(4):
        e(f"v_add_u32 v42, {8*i}, v19"); e("v_bfe_u32 v43, v42, 1, 3"); e("v_xor_b32 v43, v43, v23")
        e("v_mul_u32_u24 v42, 1280, v42"); e(f"v_lshl_add_u32 v{48+i}, v43, 4, v42")
        if i: e(f"v_subrev_u32 v{48+i}, {1024*i}, v{48+i}")
    e("s_lshl_b32 s25, s17, 8"); e("s_mul_i32 s24, s16, 163840"); e("s_lshl_b32 s26, s39, 12")
    def ld1(st, n):
        if n < 4:
            e(f"s_add_u32 m0, s45, {slot(st)+16384+4096*n}"); e(f"s_add_u32 s32, s25, {(64*st+16*n)*3840}")
            k.vmop("buffer_load_dwordx4 v20, s[28:31], s32 offen lds", f"d{st}")
        else:
            e(f"s_add_u32 m0, s26, {slot(st)}"); e(f"s_add_u32 s33, s24, {128*st}")
            k.vmop(f"buffer_load_dwordx4 v{44+n}, s[8:11], s33 offen offset:{1024*(n-4)} lds", f"d{st}")
    ORD = [0, 4, 1, 5, 2, 6, 3, 7]
    def ld(st):
        for n in ORD: ld1(st, n)
    kwait(); ld(0)
    e("v_xor_b32 v15, v17, v13"); e("v_lshl_add_u32 v40, v15, 6, v14"); e("v_add_u32 v41, 65536, v40")
    e("v_and_b32 v42, 1, v16"); e("v_cmp_eq_u32 vcc, v42, v5"); e("v_mov_b32 v43, 0x3f803f80")
    for r in range(4): e(f"v_cndmask_b32 v{60+r}, 0, v43, vcc")
    k.srd(52, 4, 256)
    e("s_mul_i32 s27, s17, 163840"); e("s_add_u32 s27, s27, s45"); e(f"s_add_u32 s27, s27, {WA_I}")
    if ENV('LD1', '0'): ld(1)
    done = [0]
    def steps_of(kb):
        r = []
        while done[0] < 20 and need(done[0]) <= kb: r.append(done[0]); done[0] += 1
        return r
    def wa_store(q):
        e("s_lshl_b32 s32, s16, 13"); e("s_add_u32 s32, s32, s27")
        if q: e("s_add_u32 s32, s32, 131072")
        e("s_add_u32 s33, s32, 4096")
        for u in range(2): k.vmop(f"buffer_store_dwordx4 {vr(112+8*q+4*u,4)}, v3, s[12:15], s{32+u} offen {SC}")
    for kb in range(10):
        if kb == 5: k.stamp(5)
        k.waitvm(f"d{kb}")
        if kb == 5: k.stamp(6)
        e("s_barrier")
        if kb in (4, 5): k.stamp(2 if kb == 4 else 7)
        if kb == 0 and not ENV('LD1', '0'): ld(1)
        sl = slot(kb); todo = list(ORD) if kb + DEP < 10 else []
        nxt = lambda: ld1(kb + DEP, todo.pop(0)) if todo else None
        sts = steps_of(kb)
        for n_, ks in enumerate(sts):
            for u in range(2):
                for t in range(2):
                    e(f"ds_read_b64_tr_b16 {vr(136+8*n_+4*u+2*t,2)}, v{40+(sl>>16)} offset:{(sl + (32*(ks%2) + 16*u + 4*t)*256) & 0xffff}")
        nxt(); nxt()
        if kb == 4: k.stamp(3)
        e("s_waitcnt lgkmcnt(0)")
        mf = [(n_, ks, u) for n_, ks in enumerate(sts) for u in range(2)]
        for n_, ks, u in mf:
            e(f"v_mfma_f32_16x16x32_bf16 v[64:67], v[60:63], {vr(136+8*n_+4*u,4)}, {'v[64:67]' if ks or u else 0}")
            nxt()
        nxt(); nxt()
        if kb == 4: k.stamp(4)
        for n_, ks in enumerate(sts):
            e(f"s_cmp_eq_u32 s16, {ks % 16}"); e(f"s_cbranch_scc0 {nm}_w{ks}")
            for r in range(8): e(f"v_mov_b32 v{112+8*(ks//16)+r}, v{136+8*n_+r}")
            k.label(f"{nm}_w{ks}")
        assert not todo
        if kb == 8:
            e("v_and_b32 v24, 15, v1"); e("v_lshlrev_b32 v24, 2, v24"); e("s_mov_b32 s33, 0")
            k.label(f"{nm}_pl")
            e(f"buffer_load_dword v25, v24, s[52:55], 0 offen {SC}"); e("s_add_u32 s33, s33, 1"); e("s_waitcnt vmcnt(0)"); k.vm = []
            e("v_cmp_eq_u32 vcc, 0, v25"); e("s_cmp_ge_u32 s33, 0x20000"); e(f"s_cbranch_scc1 {nm}_px")
            e(f"s_cbranch_vccnz {nm}_pl")
            k.label(f"{nm}_px")
            e("v_lshlrev_b32 v24, 3, v10"); e("s_lshl_b32 s32, s16, 10"); e("s_lshl_b32 s33, s39, 8"); e("s_add_u32 s32, s32, s33"); e(f"s_add_u32 s32, s32, {STI}")
            k.vmop(f"buffer_load_dwordx2 v[44:45], v24, s[12:15], s32 offen {SC}", "rs")
            wa_store(0)
    k.waitvm("rs")
    stats_finish(k, 44, 45, 28, 29, 30)
    e("v_lshlrev_b32 v42, 2, v5"); e("ds_bpermute_b32 v68, v42, v64"); e("ds_bpermute_b32 v69, v42, v65"); e("v_cmp_eq_u32 vcc, 1, v7")
    split3(k, 28, 32, 36, 'm')
    e("s_waitcnt lgkmcnt(0)"); e("v_cndmask_b32 v64, v68, v69, vcc")
    split3(k, 64, 34, 36, 'u')
    e("v_lshlrev_b32 v24, 2, v10"); e("s_lshl_b32 s32, s39, 8"); e(f"s_add_u32 s32, s32, {UT}"); e("v_add_u32 v24, s32, v24")
    e("ds_write_b32 v24, v34"); e("ds_write_b32 v24, v35 offset:128"); e("ds_write_b32 v24, v32 offset:1024"); e("ds_write_b32 v24, v33 offset:1152"); e("ds_write_b32 v24, v29 offset:2048")
    e("s_waitcnt lgkmcnt(0)"); e("s_barrier")
    lwc_init(k); e("s_barrier")
    e("v_mov_b32 v44, v64")
    e("s_cmp_ge_u32 s16, 4"); e(f"s_cbranch_scc1 {nm}_le"); wa_store(1)
    e("s_cmp_eq_u32 s16, 0"); e(f"s_cbranch_scc0 {nm}_le")
    e("v_mov_b32 v45, 0"); e("v_mov_b32 v46, 0"); e("v_mov_b32 v47, 0"); e("v_lshlrev_b32 v24, 4, v10")
    e("s_lshl_b32 s32, s17, 11"); e("s_lshl_b32 s33, s39, 9"); e("s_add_u32 s32, s32, s33"); e(f"s_add_u32 s32, s32, {U_A}")
    e("s_mov_b32 exec_hi, 0"); e(f"buffer_store_dwordx4 v[44:47], v24, s[12:15], s32 offen {SC}")
    k.label(f"{nm}_le")
    e("s_mov_b64 exec, -1")
    signal(k, "sfl", -1, 8, a0, 0, "s[12:15]")
    k.dump(8)
    e(f"s_branch {kn}_t0")
    k.label(f"{nm}_ub"); k.vm = []; k.lg = []
    kwait()
    e("v_lshrrev_b32 v4, 3, v1"); e("v_lshl_add_u32 v4, v2, 4, v4"); e("v_mul_u32_u24 v5, 1280, v4"); e("v_and_b32 v6, 7, v1"); e("v_lshl_add_u32 v5, v6, 4, v5")
    e("s_mul_i32 s24, s16, 163840"); e("s_add_u32 s25, s24, 10240")
    for b_ in range(2):
        for i in range(10): k.vmop(f"buffer_load_dwordx4 {vr(24+40*b_+4*i,4)}, v5, s[8:11], s{24+b_} offen offset:{128*i}", f"x{b_}{i}")
    for j in range(8): e(f"v_mov_b32 v{8+j}, 0")
    e("v_mov_b32 v7, 0x3f803f80")
    e("v_lshlrev_b32 v16, 4, v0"); e("s_and_b32 s26, s16, 7"); e("s_lshl_b32 s26, s26, 13"); e(f"s_add_u32 s26, s26, {CNT}"); e("s_cmp_ge_u32 s16, 8"); e(f"s_cselect_b32 s27, {LS}, 0"); e("s_add_u32 s26, s26, s27")
    k.vmop(f"buffer_store_dwordx4 v[12:15], v16, s[12:15], s26 offen {SC}")
    for b_ in range(2):
        for i in range(10):
            k.waitvm(f"x{b_}{i}")
            for q in range(4):
                r = 24+40*b_+4*i+q
                e(f"v_dot2_f32_bf16 v{8+2*b_}, v{r}, v7, v{8+2*b_}"); e(f"v_dot2_f32_bf16 v{9+2*b_}, v{r}, v{r}, v{9+2*b_}")
    for dpp in ("quad_perm:[1,0,3,2]", "quad_perm:[2,3,0,1]", "row_half_mirror"):
        for q in range(4): e(f"v_add_f32_dpp v{8+q}, v{8+q}, v{8+q} {dpp} row_mask:0xf bank_mask:0xf")
    e("v_lshlrev_b32 v4, 3, v4"); e("s_lshl_b32 s26, s16, 10"); e(f"s_add_u32 s26, s26, {STI}")
    e("v_cmp_eq_u32 vcc, 0, v6"); k.srd(52, 4, 256); e("s_mov_b64 exec, vcc")
    e(f"buffer_store_dwordx2 v[8:9], v4, s[12:15], s26 offen {SC}"); e(f"buffer_store_dwordx2 v[10:11], v4, s[12:15], s26 offen offset:64 {SC}")
    e("s_mov_b64 exec, -1"); lwc_init(k)
    e("s_waitcnt vmcnt(0)"); e("s_barrier")
    e("s_cmp_ge_u32 s18, 4"); e(f"s_cbranch_scc1 {nm}_u2")
    codepf("u")
    e("s_cmp_eq_u32 s18, 0"); e(f"s_cbranch_scc0 {nm}_u2")
    e("v_mov_b32 v4, 0"); e("v_mov_b32 v5, 1"); e("s_lshl_b32 s26, s16, 2"); e("s_mov_b64 exec, 1")
    e(f"buffer_store_dword v5, v4, s[52:55], s26 offen {SC}")
    e("s_mov_b64 exec, 0xffff"); e("v_lshlrev_b32 v4, 2, v1"); e("s_mov_b32 s33, 0")
    k.label(f"{nm}_u1")
    e(f"buffer_load_dword v5, v4, s[52:55], 0 offen {SC}"); e("s_add_u32 s33, s33, 1"); e("s_waitcnt vmcnt(0)")
    e("v_cmp_eq_u32 vcc, 0, v5"); e("s_cmp_ge_u32 s33, 0x20000"); e(f"s_cbranch_scc1 {nm}_u2"); e(f"s_cbranch_vccnz {nm}_u1")
    k.label(f"{nm}_u2")
    e("s_mov_b64 exec, -1"); e("s_waitcnt vmcnt(0)")

def k_main():
    k = KB(NAME + "_kernel"); e = k.e; name = k.name
    ph_front(k)
    k.label(f"{name}_t0")
    e("s_load_dwordx2 s[46:47], s[0:1], 48"); e("s_mov_b32 s3, 0")
    k.srd(8, 6, 2*LS)
    e("s_waitcnt lgkmcnt(0)")
    k.srd(60, 46, S*D*2)
    k.label(f"{name}_top")
    k.vm = []; k.lg = []
    e("s_setprio 0"); k.stamp(0); k.rstamp(1)
    ph_attn(k)
    def a1():
        e("s_lshl_b32 s48, s17, 3"); e("s_and_b32 s49, s16, 1"); e("s_add_u32 s48, s48, s49"); e("s_lshl_b32 s48, s48, 8"); e(f"s_add_u32 s48, s48, {C1}")
        e(f"v_lshlrev_b32 v{PV_+1}, 9, v1"); e("s_mov_b64 s[56:57], 15")
    e("s_cmp_ge_u32 s18, 4"); e(f"s_cbranch_scc1 {name}_ld")
    signal(k, "s1", 0, 8, a1)
    def c1():
        e("s_lshl_b32 s48, s16, 9"); e(f"s_add_u32 s48, s48, {C1}")
        e(f"v_lshlrev_b32 v{PV_+1}, 8, v1"); e(f"v_mov_b32 v{PV_+2}, 16"); e("s_mov_b64 s[56:57], 3")
    proj_c(k, "p2", OT, XI, XM, STM, False, c1, 0, 6)
    def a2():
        e("s_lshr_b32 s48, s16, 1"); e("s_lshl_b32 s48, s48, 9"); e(f"s_add_u32 s48, s48, {C2}")
        e(f"v_mul_u32_u24 v{PV_+1}, 768, v1"); e("s_bitcmp1_b32 s16, 0"); e("s_cselect_b64 s[56:57], 3, 1")
    signal(k, "s2", 1, 4, a2)
    qkvb_c(k, XM, STM, 9)
    def a3(): one(k, 0); e("s_lshl_b32 s48, s16, 8"); e(f"s_add_u32 s48, s48, {C3}")
    signal(k, "s3", 0, 4, a3)
    def c3(): one(k, 16); e("s_lshr_b32 s48, s16, 1"); e("s_lshl_b32 s48, s48, 8"); e(f"s_add_u32 s48, s48, {C3}")
    proj_c(k, "p4", OBT, XM, LS + XI, LS + STI, True, c3, 0, 12)
    def a4(): one(k, 0); e("s_lshr_b32 s48, s16, 1"); e("s_lshl_b32 s48, s48, 8"); e(f"s_add_u32 s48, s48, {C4}")
    signal(k, "s4", 1, 4, a4)
    k.dump(15, "1")
    ids_mt(k)
    e("s_cmp_ge_u32 s17, 15"); e(f"s_cbranch_scc1 {name}_idle")
    qkva_c(k, LS + XI, LS + STI, LS, C4, [7], 3)
    k.stamp(6)
    e("s_barrier")
    def a5(): e("s_lshl_b32 s48, s17, 11"); e(f"s_add_u32 s48, s48, {LS + C0}"); e(f"v_lshlrev_b32 v{PV_+1}, 8, v1"); e("s_mov_b64 s[56:57], 0xff")
    signal(k, "s5", -1, 4, a5)
    k.dump(7, "3")
    k.label(f"{name}_t1")
    e("s_mov_b32 s3, 1"); e(f"s_add_u32 s8, s8, {LS}"); e("s_addc_u32 s9, s9, 0"); e(f"s_mov_b32 s10, {LS}")
    e(f"s_branch {name}_top")
    k.label(f"{name}_idle")
    for _ in range(4): e("s_barrier")
    e(f"s_branch {name}_t1")
    k.label(f"{name}_ld"); k.vm = []; k.lg = []
    if os.environ.get("FOC") == "at": e("s_add_u32 s84, s3, 4"); k.dump(8, "s84")
    e(f"s_setprio {ENV('LPRIO', '2')}")
    w = proj_l(k, WOA_I, WB_I, OT, a1, 0)
    qkvb_l(k, XM, STM, w)
    w = proj_l(k, WOB_I, WA_I, OBT, None, 0, True)
    ids_mt(k)
    atouch_pre(k, LS + XI)
    e("s_barrier")
    e("buffer_load_dword v20, v21, s[8:11], s51 offen")
    w.one(39); e("s_waitcnt vmcnt(0)"); e("s_barrier")
    e("s_barrier"); lwc_init(k); e("s_barrier")
    e(f"s_branch {name}_t1")
    k.label(f"{name}_end"); e("s_endpgm")
    k.tail()
    return k.text(256 if STAMP else 244, 256 if STAMP else 244)

def build():
    hdr = open("cdna_kernels/" + NAME + ".s.ref").read().split("; Override launch")[0]
    out = hdr + "; @launch grid=(256,1,1) block=(512,1,1) lds=163840\n"
    out += '.amdgcn_target "amdgcn-amd-amdhsa--gfx950"\n'
    out += k_main()
    out += ".text\ncode_end:\n"
    return out

if __name__ == "__main__":
    dst = sys.argv[1] if len(sys.argv) > 1 else "cdna_kernels/" + NAME + ".s"
    open(dst, "w").write(build())
    print("wrote", dst)
```

```python
import sys, math
from lint import lint, fix

NAME = "interleave_layers__softmax_full_mha__sliding_local_dilated__prompt"
S, D, H, DH = 2048, 640, 32, 20
XS = S*D*2
IMG = H*64*2560
QI = H*64*1280
CNT = 0
C1 = CNT; C2 = C1 + 64*256; C3 = C2 + 34*256; C4 = C3 + 16*256; C0 = C4 + 16*256
LS = 65536
CS = LS + C4
XI = 2*LS; STI = XI + XS
QIMG = STI + S*64; KVIMG = QIMG + QI
OT = KVIMG + IMG; OBT = OT + XS; XM = OBT + XS
STM = XM + XS
U_A = STM + S*64
U_B = U_A + 32768
WA_I = U_B + 163840
WOA_I = WA_I + 15*163840
WB_I = WOA_I + 819200
WOB_I = WB_I + 16*163840
STAMPS = WOB_I + 819200
WS_END = STAMPS + 16*262144
import os
STAMP = int(os.environ.get("STAMP", "0"))
ATTN_WAVES = 8
AV = os.environ.get("AV", "")
CSCALE = (DH ** -0.5) * math.log2(math.e)
import struct
def fbits(x): return "0x%08x" % struct.unpack("<I", struct.pack("<f", x))[0]

FM = [(0,16),(32,48),(80,96),(112,128),(64,144)]
def FX(ks, t):
    return 160*(ks//5) + FM[ks%5][t]

class KB:
    def __init__(s, name):
        s.name = name; s.L = []; s.vm = []; s.lg = []; s.cap = None
    def e(s, line):
        if s.cap is not None: s.cap.append(('e', line, None))
        else: s.L.append("    " + line)
    def capture(s, fn):
        s.cap = []; fn(); c = s.cap; s.cap = None
        return [x for x in c if not (x[0] == 'e' and x[1].startswith('s_nop'))]
    def fill(s, lst, n=1):
        for _ in range(n):
            if not lst: return
            kind, a, b = lst.pop(0)
            if kind == 'e':
                s.e(a)
                if a.startswith('s_cmp'):
                    while lst and lst[0][0] == 'e' and lst[0][1].startswith('s_cselect'): s.e(lst.pop(0)[1])
            elif kind == 'ds': s.dsop(a, b)
            elif kind == 'wvm': s.waitvm(a)
            elif kind == 'wlg': s.waitlg(a)
    def c(s, txt): s.L.append("    ; " + txt)
    def label(s, l): s.L.append(l + ":")
    def vmop(s, line, tag=None): s.e(line); s.vm.append(tag); assert len(s.vm) <= 63, (s.name, len(s.vm))
    def dsop(s, line, tag=None):
        if s.cap is not None: s.cap.append(('ds', line, tag)); return
        s.e(line); s.lg.append(tag)
    def _n(s, lst, tag):
        idx = max(i for i, t in enumerate(lst) if t == tag)
        return idx
    def waitvm(s, tag):
        if s.cap is not None: s.cap.append(('wvm', tag, None)); return
        if tag not in s.vm: return
        i = s._n(s.vm, tag); n = len(s.vm) - 1 - i
        s.e(f"s_waitcnt vmcnt({n})"); s.vm = s.vm[i+1:]
    def waitlg(s, tag):
        if s.cap is not None: s.cap.append(('wlg', tag, None)); return
        if tag not in s.lg: return
        i = s._n(s.lg, tag); n = len(s.lg) - 1 - i
        if n > 15: n = 15; i = len(s.lg) - 1 - n
        s.e(f"s_waitcnt lgkmcnt({n})"); s.lg = s.lg[i+1:]
    def waitall(s):
        s.e("s_waitcnt vmcnt(0) lgkmcnt(0)"); s.vm = []; s.lg = []
    def srd(s, r, base, nbytes):
        s.e(f"s_mov_b32 s{r}, s{base}")
        s.e(f"s_and_b32 s{r+1}, s{base+1}, 0xffff")
        s.e(f"s_mov_b32 s{r+2}, {nbytes}")
        s.e(f"s_mov_b32 s{r+3}, 0x20000")
    def stamp(s, i):
        if not STAMP: return
        op = "s_memrealtime" if os.environ.get("RT") else "s_memtime"
        s.e(f"{op} s[{64+2*i}:{65+2*i}]" if i < 10 else f"{op} s[{72+2*i}:{73+2*i}]")
    def rstamp(s, i):
        if not STAMP: return
        s.e(f"s_memrealtime s[{64+2*i}:{65+2*i}]")
    def dump(s, n=8, slot="0", wave="s18"):
        if not STAMP: return
        e = s.e
        if os.environ.get("DBG"):
            keep = {"0": [(1, 246), (3, 247), (6, 248)], "1": [(2, 249), (5, 250), (14, 251)], "3": [(6, 252)], "2": [(2, 253), (5, 254), (14, 255)]}[slot]
            e("s_waitcnt lgkmcnt(0)")
            if n < 7 or (slot == "0" and n == 8): return
            for i, v in keep: e(f"v_mov_b32 v{v}, s{64+2*i if i < 10 else 72+2*i}")
            if slot == "2":
                e(f"s_cmp_eq_u32 s2, {os.environ['DBG']}"); e("s_cbranch_scc0 dbg_skip"); e("s_cmp_eq_u32 s18, 0"); e("s_cbranch_scc0 dbg_skip")
                e("s_load_dwordx2 s[84:85], s[0:1], 56"); e("s_memrealtime s[86:87]"); e("s_waitcnt lgkmcnt(0)")
                s.srd(88, 84, 256); e("s_mov_b64 exec, 1"); e("v_mov_b32 v0, 0"); e("v_mov_b32 v245, s86"); e("v_sub_u32 v245, v245, v246")
                for i in range(9):
                    e(f"v_sub_u32 v{247+i}, v{247+i}, v246"); e(f"buffer_store_dword v{247+i}, v0, s[88:91], 0 offen offset:{4*i}")
                e("buffer_store_dword v245, v0, s[88:91], 0 offen offset:36")
                s.label("dbg_skip")
            return
        e("s_memrealtime s[86:87]"); e("s_waitcnt lgkmcnt(0)")
        e("s_mov_b64 exec, 1")
        e(f"s_lshl_b32 s84, {slot}, 18")
        e("s_lshl_b32 s85, s2, 3"); e(f"s_add_u32 s85, s85, {wave}"); e("s_lshl_b32 s85, s85, 6"); e(f"s_add_u32 s85, s85, {STAMPS}"); e("s_add_u32 s85, s85, s84")
        e("v_mov_b32 v244, 0")
        for i in range(n):
            e(f"v_mov_b32 v245, s{64+2*i if i < 10 else 72+2*i}")
            e(f"buffer_store_dword v245, v244, s[12:15], s85 offen offset:{4*i}")
        e("v_mov_b32 v245, s86"); e("buffer_store_dword v245, v244, s[12:15], s85 offen offset:60")
        e("s_mov_b64 exec, -1")
    def text(s, vgpr, accum, sgpr=102):
        s.L, added = fix(s.L)
        if os.environ.get("V"): print(s.name, "auto nops:", added, "lines:", len(s.L))
        out = [".text", f".globl {s.name}", ".p2align 8", f".type {s.name},@function", f"{s.name}:"]
        out += s.L
        out += ['.section .rodata,"a"', ".p2align 6", f".amdhsa_kernel {s.name}",
                f"  .amdhsa_next_free_vgpr {vgpr}", f"  .amdhsa_next_free_sgpr {sgpr}", f"  .amdhsa_accum_offset {accum}",
                "  .amdhsa_group_segment_fixed_size 0", "  .amdhsa_kernarg_size 72", "  .amdhsa_user_sgpr_count 2",
                "  .amdhsa_user_sgpr_kernarg_segment_ptr 1", "  .amdhsa_system_sgpr_workgroup_id_x 1", ".end_amdhsa_kernel"]
        nb = lint(s.L, s.name)
        assert nb == 0, f"{nb} hazards in {s.name}"
        return "\n".join(out) + "\n"
    def allred32(s, op, v, t):
        s.e(f"v_mov_b32 v{t}, v{v}"); s.e("s_nop 1")
        s.e(f"v_permlane32_swap_b32 v{v}, v{t}"); s.e("s_nop 1")
        s.e(f"{op} v{v}, v{v}, v{t}")
    def allred16(s, op, v, t):
        s.e(f"v_mov_b32 v{t}, v{v}"); s.e("s_nop 1")
        s.e(f"v_permlane16_swap_b32 v{v}, v{t}"); s.e("s_nop 1")
        s.e(f"{op} v{v}, v{v}, v{t}")

def vr(a, n): return f"v[{a}:{a+n-1}]" if n > 1 else f"v{a}"
def ar(a, n): return f"a[{a}:{a+n-1}]" if n > 1 else f"a{a}"

def stats_finish(k, s1, s2, mean, rstd, t):
    e = k.e
    e(f"v_mul_f32 v{mean}, {fbits(1.0/D)}, v{s1}")
    e(f"v_mul_f32 v{t}, {fbits(1.0/D)}, v{s2}")
    e(f"v_fma_f32 v{t}, -v{mean}, v{mean}, v{t}")
    e(f"v_max_f32 v{t}, 0, v{t}")
    e(f"v_add_f32 v{t}, {fbits(1e-5)}, v{t}")
    e(f"v_rsq_f32 v{rstd}, v{t}")
    e("s_nop 0")

def split3(k, src, d, t, kind, maskv=None):
    e = k.e
    if kind == 'm':
        e(f"v_xor_b32 v{t+1}, 0x80000000, v{src}"); src = t+1
    e(f"v_and_b32 v{t}, 0xffff0000, v{src}")
    e(f"v_sub_f32 v{t+2}, v{src}, v{t}")
    if kind == 'u':
        e(f"v_cvt_pk_bf16_f32 v{d}, v{t}, v{t+2}")
        e(f"v_lshrrev_b32 v{d+1}, 16, v{t}")
    else:
        e(f"v_cvt_pk_bf16_f32 v{d}, v{t}, v{t}")
        e(f"v_cvt_pk_bf16_f32 v{d+1}, v{t+2}, 0")
    if maskv is not None:
        e(f"v_and_b32 v{d}, v{d}, v{maskv}"); e(f"v_and_b32 v{d+1}, v{d+1}, v{maskv}")

SC = "sc1"
RS_ = lambda off: "s[12:15]" if off >= 2*LS else "s[8:11]"
EARLY = int(os.environ.get('EARLY', '6'))
ENV = lambda n, d: int(os.environ.get(n, d))

def ids_mt(k):
    k.e("s_lshl_b32 s22, s20, 1"); k.e("s_and_b32 s23, s21, 1"); k.e("s_add_u32 s16, s22, s23"); k.e("s_lshr_b32 s17, s21, 1")
def ids_rt(k):
    k.e("s_lshl_b32 s22, s20, 2"); k.e("s_and_b32 s23, s21, 3"); k.e("s_add_u32 s16, s22, s23"); k.e("s_lshr_b32 s17, s21, 2")

LW = 163824
PV_ = 240
def lw_init(k):
    e = k.e
    e(f"v_mov_b32 v{PV_+3}, {LW}")
    for i in range(3): e(f"v_mov_b32 v{PV_+i}, 0")
    e(f"ds_write_b96 v{PV_+3}, v[{PV_}:{PV_+2}]"); e(f"ds_write_b32 v{PV_+3}, v{PV_} offset:12")

def lwc_init(k):
    k.e(f"v_mov_b32 v{PV_+3}, {LW-8}"); k.e(f"v_mov_b32 v{PV_}, 0"); k.e(f"v_mov_b32 v{PV_+1}, 0")
    k.e(f"ds_write_b64 v{PV_+3}, v[{PV_}:{PV_+1}]"); k.e("s_waitcnt lgkmcnt(0)")

def signal(k, tag, word, nw, addr_code, younger=0, srd="s[8:11]"):
    e = k.e
    addr_code()
    e(f"v_mov_b32 v{PV_+3}, {LW-8}"); e(f"v_mov_b32 v{PV_}, 1")
    e("s_mov_b64 exec, 1")
    assert younger == 0
    e("s_waitcnt vmcnt(0)"); k.vm = []
    if tag == os.environ.get("FOC"): k.stamp(2)
    e(f"ds_add_rtn_u32 v{PV_+2}, v{PV_+3}, v{PV_} offset:{8*word+8}")
    e("s_waitcnt lgkmcnt(0)"); k.lg = []
    e(f"v_readfirstlane_b32 s49, v{PV_+2}")
    e("s_mov_b64 exec, s[56:57]")
    e(f"s_cmp_eq_u32 s49, {nw-1}"); e(f"s_cbranch_scc0 {k.name}_{tag}_sg")
    e(f"buffer_atomic_add v{PV_}, v{PV_+1}, {srd}, s48 offen {SC}")
    if os.environ.get("FOC2") == tag: k.stamp(4)
    k.label(f"{k.name}_{tag}_sg")
    e("s_mov_b64 exec, -1")

def wait_go(k, tag, word, poll_code):
    e = k.e; nm = f"{k.name}_{tag}"
    e(f"v_mov_b32 v{PV_+3}, {LW-8}"); e("s_mov_b32 s49, 0")
    if poll_code:
        e("s_cmp_eq_u32 s18, 0"); e(f"s_cbranch_scc0 {nm}_sp")
        poll_code()
        e("s_mov_b64 exec, s[56:57]")
        if os.environ.get("FOC") == "g" + tag: k.stamp(2)
        k.label(f"{nm}_pl")
        e(f"v_mov_b32 v{PV_}, 0")
        e(f"buffer_atomic_add v{PV_}, v{PV_+1}, s[8:11], s48 offen sc0 sc1")
        e("s_add_u32 s49, s49, 1")
        e("s_waitcnt vmcnt(0)")
        e(f"v_cmp_ge_u32 vcc, v{PV_}, v{PV_+2}")
        e("s_cmp_ge_u32 s49, 0x20000"); e(f"s_cbranch_scc1 {nm}_px")
        e("s_cmp_eq_u64 vcc, exec"); e(f"s_cbranch_scc0 {nm}_pl")
        k.label(f"{nm}_px")
        if os.environ.get("FOC") == "g" + tag: e("s_add_u32 s70, s64, s49")
        e("s_mov_b64 exec, 1"); e(f"v_mov_b32 v{PV_}, 1")
        e(f"ds_write_b32 v{PV_+3}, v{PV_} offset:{8*word+12}")
        e(f"s_branch {nm}_go")
    k.label(f"{nm}_sp")
    e("s_sleep 1")
    e(f"ds_read_b32 v{PV_}, v{PV_+3} offset:{8*word+12}")
    e("s_add_u32 s49, s49, 1")
    e("s_waitcnt lgkmcnt(0)")
    e(f"v_readfirstlane_b32 s44, v{PV_}")
    e("s_cmp_ge_u32 s49, 0x400000"); e(f"s_cbranch_scc1 {nm}_go")
    e("s_cmp_eq_u32 s44, 0"); e(f"s_cbranch_scc1 {nm}_sp")
    k.label(f"{nm}_go")
    e("s_mov_b64 exec, -1")

class Wdma:
    def __init__(s, k, n, base=50, tag="w"): s.k = k; s.n = n; s.i = 0; s.base = base; s.tag = tag
    def one(s, i):
        s.k.e(f"s_add_u32 m0, s45, {4096*i}"); s.k.e(f"s_add_u32 s32, s{s.base}, {4096*i}")
        s.k.vmop(f"buffer_load_dwordx4 v3, s[12:15], s32 offen {SC} lds", f"{s.tag}{i}")
    def go(s, upto):
        while s.i < min(upto, s.n): s.one(s.i); s.i += 1
    def rng(s, a, b, thr=0):
        for i in range(a, b):
            s.one(i)
            if thr and len(s.k.vm) >= thr: s.k.e(f"s_waitcnt vmcnt({thr-1})"); s.k.vm = s.k.vm[len(s.k.vm)-thr+1:]

SIDE_SV = 152; SIDE_D = 160; SIDE_U = 192
def side_setup(k):
    e = k.e; nm = k.name
    e("s_load_dwordx4 s[84:87], s[0:1], 32"); e("s_load_dwordx2 s[88:89], s[0:1], 16")
    e("s_mul_i32 s49, s2, 3"); e("s_add_u32 s49, s49, s18"); e("s_sub_u32 s49, s49, 4")
    e("s_sub_u32 s32, s18, 4"); e("s_cmp_lt_u32 s32, 3"); e("s_cselect_b32 s49, s49, 959"); e("s_cmp_eq_u32 s3, 0"); e("s_cselect_b32 s49, s49, 959")
    e("s_lshl_b32 s35, s39, 13"); e("s_add_u32 s35, s35, 112640")
    e("s_mul_i32 s36, s49, 3277"); e("s_lshr_b32 s36, s36, 16"); e("s_mul_i32 s37, s36, 20"); e("s_sub_u32 s37, s49, s37")
    e("v_and_b32 v140, 15, v1"); e("v_lshrrev_b32 v141, 2, v140"); e("v_and_b32 v142, 3, v1")
    e("s_waitcnt lgkmcnt(0)")
    SV = SIDE_SV
    e("v_lshrrev_b32 v136, 4, v1")
    for r in list(range(SV, SV+5)) + list(range(144, 152)): e(f"v_mov_b32 v{r}, 0")
    e("s_mov_b32 s5, 0")
    e("s_mov_b32 s53, 0x7ff00000"); e("s_mov_b32 s54, s53"); e("s_mov_b32 s58, s53")
    e("s_cmp_ge_u32 s49, 320"); e(f"s_cbranch_scc1 {nm}_ss1")
    k.srd(88, 84, D*3*D*2)
    e(f"s_mul_i32 s5, s37, {32*3840}"); e("s_mul_i32 s32, s36, 80"); e("s_add_u32 s5, s5, s32")
    e("v_lshlrev_b32 v137, 2, v136"); e("v_xor_b32 v137, v137, v140"); e("v_min_u32 v137, 14, v137")
    e("v_mul_u32_u24 v138, 52, v137"); e("v_lshrrev_b32 v138, 8, v138"); e("v_mul_u32_u24 v138, 1200, v138"); e("v_lshl_add_u32 v138, v137, 4, v138")
    e("v_mul_u32_u24 v137, 3840, v136"); e(f"v_add_u32 v{SV}, v138, v137")
    e("v_lshrrev_b32 v137, 5, v1"); e("v_lshl_add_u32 v137, v137, 3, v141"); e("v_lshlrev_b32 v137, 8, v137"); e("v_and_b32 v138, 1, v136")
    e("v_lshl_add_u32 v137, v138, 5, v137"); e("v_lshl_add_u32 v137, v142, 3, v137"); e("v_add_u32 v137, s35, v137")
    for jf in range(4): e(f"v_xor_b32 v139, {jf}, v141"); e(f"v_lshl_add_u32 v{144+jf}, v139, 6, v137")
    e("s_mul_i32 s53, s36, 163840"); e("s_lshl_b32 s54, s37, 13"); e("s_add_u32 s53, s53, s54"); e(f"s_add_u32 s53, s53, {WB_I}"); e("s_add_u32 s54, s53, 4096"); e("s_mov_b32 s58, s54")
    e(f"s_branch {nm}_ss2")
    k.label(f"{nm}_ss1")
    e("s_cmp_ge_u32 s36, 24"); e("s_cselect_b32 s32, s86, s88"); e("s_cselect_b32 s33, s87, s89")
    k.srd(88, 32, D*D*2)
    e("s_cmp_ge_u32 s49, 640"); e(f"s_cbranch_scc1 {nm}_ss2")
    e("s_and_b32 s32, s36, 7"); e("s_mul_i32 s32, s32, 160")
    e("s_mul_i32 s5, s37, 40"); e("s_sub_u32 s34, s37, 16"); e("s_mul_i32 s34, s34, 160"); e("s_add_u32 s34, s34, 16")
    e("s_cmp_lt_u32 s37, 16"); e("s_cselect_b32 s5, s5, s34"); e("s_cselect_b32 s33, 4, 2"); e("s_cselect_b32 s34, 4, 16")
    e("s_mul_i32 s5, s5, 1280"); e("s_add_u32 s5, s5, s32")
    for i in range(5):
        e(f"v_add_u32 v137, {64*i}, v1"); e("v_mul_u32_u24 v138, 6554, v137"); e("v_lshrrev_b32 v138, 16, v138")
        e("v_lshrrev_b32 v139, s33, v138"); e("v_mul_u32_u24 v139, s34, v139"); e("v_mul_u32_u24 v139, 1280, v139")
        e("v_mul_u32_u24 v138, 1120, v138"); e("v_add_u32 v139, v139, v138"); e(f"v_lshl_add_u32 v{SV+i}, v137, 4, v139")
    e("v_lshlrev_b32 v137, 2, v136"); e("s_mov_b32 s32, 2560")
    e("s_cmp_ge_u32 s36, 24"); e(f"s_cbranch_scc1 {nm}_sf3"); e("s_cmp_ge_u32 s37, 16"); e(f"s_cbranch_scc1 {nm}_sf3")
    e("v_lshrrev_b32 v137, 1, v136"); e("v_lshlrev_b32 v137, 4, v137"); e("v_and_b32 v138, 1, v136"); e("v_lshl_add_u32 v137, v138, 2, v137"); e("s_mov_b32 s32, 1280")
    k.label(f"{nm}_sf3")
    e("v_add_u32 v137, v137, v141"); e("v_mul_u32_u24 v137, 160, v137"); e("v_add_u32 v137, s35, v137")
    e("s_and_b32 s33, s36, 1"); e("s_lshl_b32 s34, s33, 5"); e("s_xor_b32 s33, s33, 1"); e("s_lshl_b32 s33, s33, 7")
    e("v_lshl_add_u32 v144, v142, 4, v137"); e("v_add_u32 v144, s34, v144"); e("v_add_u32 v145, s32, v144")
    e("v_lshl_add_u32 v146, v142, 3, v137"); e("v_add_u32 v146, s33, v146"); e("v_add_u32 v147, s32, v146")
    e("s_cmp_ge_u32 s36, 24"); e(f"s_cselect_b32 s53, {WOB_I-WOA_I}, 0"); e("s_and_b32 s54, s36, 7"); e("s_mul_i32 s54, s54, 102400"); e("s_add_u32 s53, s53, s54")
    e("s_mul_i32 s54, s37, 5120"); e("s_add_u32 s53, s53, s54"); e(f"s_add_u32 s53, s53, {WOA_I}"); e("s_add_u32 s54, s53, 4096")
    k.label(f"{nm}_ss2")
    e("s_lshl_b32 s38, s49, 9"); e(f"s_add_u32 s38, s38, {U_B}"); e("s_cmp_ge_u32 s49, 320"); e("s_cselect_b32 s38, 0x7ff00000, s38")
    e("v_lshlrev_b32 v143, 2, v1")
    e("s_cmp_lt_u32 s49, 640"); e("s_cselect_b32 s4, 2, 0"); e("s_cmp_lt_u32 s49, 320"); e("s_cselect_b32 s4, 1, s4")
    e("s_and_b32 s55, s49, 15"); e("s_lshl_b32 s55, s55, 8"); e(f"s_add_u32 s55, s55, {CS}")

def ph_attn(k):
    e = k.e; nm = k.name
    KA, KT, VA = 4, 5, 6
    Q = [8, 14]; KF = [24, 32]; VF = [40, 48]; SS = [56, 72]; P = 88; O = [96, 112]; PF = 208
    SCR = 137216; TOP = 112640
    ids_rt(k)
    e("v_and_b32 v3, 31, v1"); e("v_lshrrev_b32 v7, 5, v1")
    e("v_lshlrev_b32 v22, 4, v1"); e("v_lshlrev_b32 v23, 3, v3")
    e("s_mul_i32 s19, s16, 163840")
    e("s_lshr_b32 s41, s18, 2")
    e("s_lshl_b32 s23, s17, 3"); e("s_lshl_b32 s22, s39, 1"); e("s_add_u32 s23, s23, s22")
    e("s_add_u32 s23, s23, s41")
    e("s_lshr_b32 s22, s19, 1"); e(f"s_add_u32 s22, s22, {QIMG}")
    e("s_mul_i32 s24, s23, 1280"); e("s_add_u32 s24, s24, s22"); e("s_xor_b32 s40, s23, 1"); e("s_mul_i32 s40, s40, 1280"); e("s_add_u32 s40, s40, s22")
    e("s_mul_i32 s42, s41, 2560"); e(f"s_add_u32 s42, s42, {TOP}")
    e("s_lshl_b32 s25, s18, 10")
    e(f"s_add_u32 s26, s19, {KVIMG}")
    rnd = [0]
    def dma():
        i = rnd[0]; rnd[0] += 1
        if i == 6:
            e("s_cmp_lt_u32 s18, 2"); e("s_cselect_b32 s27, 163840, 0"); e("s_add_u32 s27, s27, s25"); e("s_sub_u32 m0, s27, 2048")
        else: e(f"s_add_u32 m0, s25, {(TOP + 8192*i) if i < 6 else 8192*i - 51200}")
        e("s_add_u32 s27, s26, m0")
        k.vmop(f"buffer_load_dwordx4 v22, s[12:15], s27 offen {SC} lds", f"i{i}")
    e(f"v_add_u32 v{KA}, s42, v22")
    e(f"v_add_u32 v{KT}, s42, v23"); e(f"v_add_u32 v{KT}, 1024, v{KT}")
    if ENV('KTZ', '1'): e(f"v_lshl_add_u32 v{KT}, v7, 20, v{KT}")
    e("v_mul_u32_u24 v21, 20, v7"); e("v_add_u32 v21, v21, v3"); e("v_lshlrev_b32 v21, 4, v21")
    e("v_add_u32 v21, 1280, v21"); e(f"v_add_u32 v{VA}, s42, v21")
    e("s_mov_b32 s28, 0x000fffff"); e("s_mov_b32 s29, 0x000fffff")
    e("v_cmp_eq_u32 vcc, 20, v3"); e("v_mov_b32 v20, 0x3f803f80"); e("s_nop 0")
    e("v_cndmask_b32 v20, 0, v20, vcc")
    for r in range(16): e(f"v_mov_b32 v{VF[0]+r}, v20")
    for r in range(32): e(f"v_mov_b32 v{O[0]+r}, 0")
    for r in range(4): e(f"v_mov_b32 v{P+4+r}, 0")
    e("v_subrev_u32 v30, 1, v7")
    e("s_lshl_b32 s43, s21, 2"); e("s_add_u32 s43, s43, s39"); e("s_mul_i32 s43, s43, 27648"); e(f"s_add_u32 s43, s43, {WOA_I}")
    e("s_mul_i32 s32, s23, 40960"); e(f"s_add_u32 s32, s32, {OT}")
    e("s_lshr_b32 s51, s16, 1"); e("s_lshl_b32 s51, s51, 10"); e("s_and_b32 s34, s16, 1"); e("s_lshl_b32 s34, s34, 9")
    e("s_add_u32 s51, s51, s34"); e("s_add_u32 s51, s51, s32")
    e("s_lshr_b32 s52, s16, 3"); e("s_add_u32 s52, s52, 16"); e("s_lshl_b32 s52, s52, 10"); e("s_add_u32 s52, s52, s32")
    e("s_and_b32 s35, s16, 3"); e("s_lshl_b32 s35, s35, 8"); e("s_add_u32 s52, s52, s35")
    e("s_bfe_u32 s35, s16, 0x10002"); e("s_lshl_b32 s35, s35, 3"); e("s_add_u32 s52, s52, s35")
    e("v_lshrrev_b32 v38, 4, v3"); e("v_mul_u32_u24 v38, 20480, v38"); e("v_and_b32 v39, 15, v3")
    e("v_lshl_add_u32 v38, v39, 4, v38"); e("v_lshl_add_u32 v39, v7, 8, v38")
    e("s_mul_i32 s32, s18, 3072"); e("s_xor_b32 s33, s18, 4"); e("s_mul_i32 s33, s33, 3072")
    e(f"v_add_u32 v132, {SCR}, v22"); e("v_add_u32 v133, s33, v132"); e("v_add_u32 v132, s32, v132")
    def c0(nl):
        e("s_lshl_b32 s48, s17, 8"); e(f"s_add_u32 s48, s48, {C0}"); e(f"v_mov_b32 v{PV_+2}, 16")
        e("s_mul_i32 s32, s16, 20"); e("s_add_u32 s33, s32, 19"); e("s_lshr_b32 s32, s32, 7"); e("s_lshr_b32 s33, s33, 7"); e("s_sub_u32 s33, s33, s32")
        e(f"v_lshrrev_b32 v{PV_+1}, 1, v1"); e(f"v_mul_u32_u24 v{PV_+1}, 5, v{PV_+1}"); e(f"v_and_b32 v{PV_}, s33, v1"); e(f"v_add3_u32 v{PV_+1}, v{PV_+1}, v{PV_}, s32")
        e(f"v_lshlrev_b32 v{PV_+1}, 11, v{PV_+1}"); e("s_mov_b64 s[56:57], 63")
    side_setup(k)
    e("s_lshl_b32 s59, s2, 2"); e("s_add_u32 s59, s59, s39"); e(f"s_mul_i32 s59, s59, {-(-(U_A - OT) // 1024 // 128) * 128}"); e(f"s_add_u32 s59, s59, {OT}")
    e("v_lshlrev_b32 v234, 7, v1")
    e("v_lshlrev_b32 v134, 11, v1"); e("s_lshl_b32 s32, s17, 8"); e(f"s_add_u32 s32, s32, {C0}"); e("v_add_u32 v134, s32, v134")
    e("v_lshlrev_b32 v135, 8, v1"); e(f"v_add_u32 v135, {CS - 4096}, v135"); e("v_cmp_gt_u32 vcc, 16, v1")
    e("v_cndmask_b32 v134, v135, v134, vcc"); e("v_cndmask_b32 v131, 40, 16, vcc"); e("v_mov_b32 v135, 64")
    wait_go(k, "t", -1, lambda: c0(6))
    k.stamp(2)
    e("s_or_b32 s44, s3, s41"); e("s_xor_b32 s44, s44, 1")
    dma()
    for x in range(2):
        k.vmop(f"buffer_load_dwordx4 {vr(Q[x],4)}, v22, s[12:15], s{(24,40)[x]} offen {SC}", "q")
        k.vmop(f"buffer_load_dwordx2 {vr(Q[x]+4,2)}, v23, s[12:15], s{(24,40)[x]} offen offset:1024 {SC}", "q")
    for _ in range(3): dma()
    k.waitvm("q")
    for x in range(2):
        e(f"v_and_b32 v{Q[x]+4}, v{Q[x]+4}, v30"); e(f"v_and_b32 v{Q[x]+5}, v{Q[x]+5}, v30")
    k.waitvm("i1"); e("s_barrier"); k.stamp(3)
    if os.environ.get("FOC") == "clk": k.rstamp(0)
    def rdK(buf, off):
        off *= 2
        e(f"ds_read_b128 {vr(KF[buf],4)}, v{KA} offset:{off}")
        e(f"ds_read_b64 {vr(KF[buf]+4,2)}, v{KT} offset:{off}")
    def rdV(buf, off):
        off *= 2
        e("s_mov_b64 exec, s[28:29]")
        e(f"ds_read_b128 {vr(VF[buf],4)}, v{VA} offset:{off}")
        e(f"ds_read_b128 {vr(VF[buf]+4,4)}, v{VA} offset:{off+640}")
        e("s_mov_b64 exec, -1")
    def qkm(x, kb): e(f"v_mfma_f32_32x32x16_bf16 {vr(SS[x],16)}, {vr(KF[kb],4)}, {vr(Q[x],4)}, 0")
    def qkt(x, kb): e(f"v_mfma_f32_32x32x8_bf16 {vr(SS[x],16)}, {vr(KF[kb]+4,2)}, {vr(Q[x]+4,2)}, {vr(SS[x],16)}")
    def pv(x, vb, u): e(f"v_mfma_f32_32x32x16_bf16 {vr(O[x],16)}, {vr(VF[vb]+4*u,4)}, {vr(P+4*u,4)}, {vr(O[x],16)}")
    def base(t):
        return 0 if t < 10 else 10 if t < 22 else 22
    def bump(regs, t):
        if t == 10:
            for r in regs: e(f"v_subrev_u32 v{r}, {TOP}, v{r}")
        elif t == 22:
            for r in regs: e(f"v_add_u32 v{r}, {12*5120}, v{r}")
    def unit(x, t, extra=()):
        p = t % 2; s = SS[x]
        ex = lambda i: e(f"v_exp_f32 v{s+i}, v{s+i}")
        cv = lambda i: e(f"v_cvt_pk_bf16_f32 v{P+i}, v{s+2*i}, v{s+2*i+1}")
        kb = p if x == 0 else 1-p
        if x == 1: e("s_waitcnt lgkmcnt(2)" if t < 31 else "s_waitcnt lgkmcnt(0)")
        if not (x == 1 and t == 31): qkm(1-x, kb)
        if x == 1 and t + 2 < 32:
            bump((KA, KT), t+2); rdK(p, (t+2-base(t+2))*2560)
        for i in range(0, 4): ex(i)
        if x == 0:
            pv(1, 1-p, 1)
            if t + 1 < 32:
                bump((VA,), t+1); rdV(1-p, (t+1-base(t+1))*2560)
        else:
            pv(0, p, 1)
        for f_ in extra: f_()
        for i in range(4, 8): ex(i)
        for i in range(0, 4): cv(i)
        if not (x == 1 and t == 31): qkt(1-x, kb)
        for i in range(8, 12): ex(i)
        if x == 0: e(f"s_waitcnt lgkmcnt({4 if t < 31 else 0})")
        pv(x, p, 0)
        for i in range(12, 16): ex(i)
        for i in range(4, 8): cv(i)
    rdK(0, 0); rdV(0, 0); rdK(1, 2560)
    e("s_waitcnt lgkmcnt(4)")
    qkm(0, 0); e("s_nop 10"); qkt(0, 0); e("s_nop 10")
    SYN = {1: 3, 4: 7, 10: 19}; SW = ENV('SW', '27')
    T_SI, T_SR, T_SA, T_PF, T_LC = 10, ENV('TSR', '16'), 26, 13, 27
    hk = [0]
    def cond(test, fn):
        def g():
            hk[0] += 1; lab = f"{nm}_hk{hk[0]}"
            e(test); e(f"s_cbranch_scc0 {lab}"); fn(); k.label(lab)
        return g
    def prio1(): e("s_setprio 1")
    def pref():
        for _ in range(2): e(f"buffer_load_dwordx4 {vr(PF,4)}, v22, s[12:15], s43 offen {SC}"); e("s_add_u32 s43, s43, 1024")
    def side_issue():
        e("s_cmp_eq_u32 s4, 1"); e(f"s_cbranch_scc0 {nm}_i1")
        for i in range(8):
            e(f"s_add_u32 m0, s35, {1024*i}"); e(f"s_add_u32 s27, s5, {4*3840*i}")
            e(f"buffer_load_dwordx4 v{SIDE_SV}, s[88:91], s27 offen nt lds")
        e(f"s_branch {nm}_i2")
        k.label(f"{nm}_i1")
        for i in range(5):
            e(f"s_add_u32 m0, s35, {1024*i}"); e("s_nop 0")
            e(f"buffer_load_dwordx4 v{SIDE_SV+i}, s[88:91], s5 offen nt lds")
        k.label(f"{nm}_i2")
    def side_read():
        e("s_waitcnt vmcnt(0)")
        e("s_cmp_eq_u32 s4, 1"); e(f"s_cbranch_scc0 {nm}_r1")
        for F in range(8):
            for t in range(2): e(f"ds_read_b64_tr_b16 {vr(SIDE_D+4*F+2*t,2)}, v{144+F%4} offset:{4096*(F//4)+1024*t}")
        e(f"s_branch {nm}_r2")
        k.label(f"{nm}_r1")
        for nf in range(5):
            for t in range(2): e(f"ds_read_b64_tr_b16 {vr(SIDE_D+4*nf+2*t,2)}, v{144+t if nf < 4 else 146+t} offset:{64*(nf//2)+8*(nf%2) if nf < 4 else 0}")
        k.label(f"{nm}_r2")
    def side_done():
        e("s_waitcnt lgkmcnt(0)"); e(f"v_mov_b32 v{PV_+3}, {LW-8}"); e(f"v_mov_b32 v{PV_}, 1"); e("s_mov_b64 exec, 1")
        e(f"ds_add_u32 v{PV_+3}, v{PV_}"); e("s_mov_b64 exec, -1")
    UA = (SIDE_U, 212)
    def side_sum(q):
        def g():
            if q == 0:
                for r in range(4): e(f"v_mov_b32 v{228+r}, 0x3f803f80")
            for u in range(2):
                for x in range(2): e(f"v_mfma_f32_32x32x16_bf16 {vr(UA[x],16)}, v[228:231], {vr(SIDE_D+16*u+8*q+4*x,4)}, {vr(UA[x],16) if u else 0}")
        return g
    def side_sum2(q):
        def g():
            e("v_cmp_gt_u32 vcc, 32, v1"); e(f"v_cndmask_b32 v{232+q}, v{UA[1]}, v{UA[0]}, vcc")
            e(f"buffer_store_dword v{232+q}, v143, s[12:15], s38 offen offset:{256*q} {SC}")
        return g
    def side_store(F):
        return lambda: e(f"buffer_store_dwordx4 {vr(SIDE_D+4*F,4)}, v22, s[12:15], s{53 if F < 4 else 54 if F == 4 else 58} offen offset:{1024*(F%4)} {SC}")
    def side_arrive():
        e(f"v_mov_b32 v{PV_+1}, 0"); e(f"v_mov_b32 v{PV_}, 1"); e("s_waitcnt vmcnt(0)"); e("s_mov_b64 exec, 1")
        e(f"buffer_atomic_add v{PV_}, v{PV_+1}, s[12:15], s55 offen {SC}"); e("s_mov_b64 exec, -1")
    def touch():
        e("buffer_load_dword v235, v234, s[12:15], s59 offen"); e("s_add_u32 s59, s59, 8192")
    def late():
        e("s_mov_b32 exec_lo, 0xffff7fff"); e("s_mov_b32 exec_hi, 0"); e(f"buffer_load_dword v135, v134, s[12:15], 0 offen {SC}"); e("s_mov_b64 exec, -1")
    def init_words(): lw_init(k); e(f"v_mov_b32 v{PV_+3}, {LW-8}"); e(f"ds_write_b32 v{PV_+3}, v{PV_}")
    side = "s_cmp_lg_u32 s4, 0"
    for t in range(32):
        if t in SYN: k.waitvm(f"i{SYN[t]}"); e("s_barrier")
        x0, x1 = [], []
        if rnd[0] < 20: x0 += [dma, dma]; x1 += [dma, dma]
        if t in (1, 4, 10): cond("s_cmp_ge_u32 s18, 4", prio1)()
        if t == 3: x0.append(lambda: e("s_setprio 0"))
        if t == 8: x1.append(lambda: e("s_setprio 0"))
        if t == 10:
            x0.append(cond("s_cmp_eq_u32 s18, 4", lambda: lw_init(k)))
            if os.environ.get("FOC") == "at": k.stamp(2)
        if t == SW + 1 and os.environ.get("FOC") == "at": k.stamp(0)
        if t == T_SI: x1.append(cond(side, side_issue))
        if t == T_SR: x1.append(cond(side, side_read))
        if t == T_SR + 1: x0.append(cond(side, lambda: e("s_waitcnt lgkmcnt(0)"))); x1.append(cond("s_cmp_eq_u32 s4, 1", side_sum(0)))
        if t == T_SR + 2: x0.append(cond("s_cmp_eq_u32 s4, 1", side_sum2(0))); x1.append(cond("s_cmp_eq_u32 s4, 1", side_sum(1)))
        if t == T_SR + 3: x0.append(cond("s_cmp_eq_u32 s4, 1", side_sum2(1)))
        if T_SR + 1 <= t < T_SR + 9: x1.append(cond(side, side_store(t - T_SR - 1)))
        if ENV('TCH', '0') and t == ENV('TCH', '0'): x0.append(cond("s_cmp_lg_u32 s44, 0", touch))
        if t == T_SA: x0.append(cond(side, side_arrive))
        if T_PF <= t < T_PF + 14 and ENV('PFW', '1'): x0.append(cond("s_cmp_lt_u32 s18, 4", pref))
        if t == T_LC: x1.append(cond("s_cmp_eq_u32 s18, 0", late))
        if t == SW: (x1 if ENV('SWX', '0') else x0).append(lambda: e("s_setprio 0"))
        unit(0, t, x0); unit(1, t, x1)
    pv(1, 1, 1); k.stamp(4)
    if os.environ.get("FOC") == "clk": k.rstamp(2)
    e("s_mov_b32 s30, 0")
    e(f"s_mov_b32 s32, {fbits(2.0**-60)}"); e(f"s_mov_b32 s33, {fbits(2.0**100)}"); e(f"s_mov_b32 s34, {fbits(2.0**126)}")
    k.label(f"{nm}_scrok")
    e("s_nop 7")
    for i in range(3): e(f"ds_write_b128 v132, {vr(O[1]+4*i,4)} offset:{1024*i}")
    e("s_waitcnt vmcnt(0)"); e("v_cmp_gt_u32 vcc, v131, v135"); e(f"s_cbranch_vccnz {nm}_late")
    k.label(f"{nm}_lok")
    e("s_waitcnt lgkmcnt(0)"); e("s_barrier")
    for i in (2, 0, 1): e(f"ds_read_b128 {vr(SS[0]+4*i,4)}, v133 offset:{1024*i}")
    OO = O[0]
    e("s_waitcnt lgkmcnt(2)")
    for r in range(8, 12): e(f"v_add_f32 v{OO+r}, v{OO+r}, v{SS[0]+r}")
    e("s_waitcnt lgkmcnt(0)")
    for r in range(8): e(f"v_add_f32 v{OO+r}, v{OO+r}, v{SS[0]+r}")
    k.label(f"{nm}_chk")
    e(f"v_mov_b32 v30, v{OO+8}"); e(f"v_mov_b32 v31, v{OO+8}")
    e(f"v_max3_f32 v28, abs(v{OO}), abs(v{OO+1}), abs(v{OO+2})")
    e("v_permlane32_swap_b32 v30, v31")
    for r in range(3, 11, 2): e(f"v_max3_f32 v28, abs(v{OO+r}), abs(v{OO+r+1}), v28")
    e(f"v_max_f32 v28, abs(v{OO+11}), v28")
    e("v_cmp_le_f32 vcc, s32, v31"); e("v_cmp_ge_f32 s[36:37], s33, v31"); e("v_cmp_gt_f32 s[40:41], s34, v28")
    e("v_rcp_f32 v31, v31")
    e("s_and_b64 s[36:37], s[36:37], vcc"); e("s_and_b64 s[36:37], s[36:37], s[40:41]")
    e("s_cmp_eq_u64 s[36:37], -1"); e(f"s_cbranch_scc0 {nm}_slow")
    def slowpath():
        k.label(f"{nm}_late")
        e("s_mov_b32 s49, 0")
        k.label(f"{nm}_late1")
        e("s_sleep 8"); late(); e("s_add_u32 s49, s49, 1"); e("s_waitcnt vmcnt(0)")
        e("v_cmp_gt_u32 vcc, v131, v135"); e("s_cmp_ge_u32 s49, 0x20000"); e(f"s_cbranch_scc1 {nm}_lok"); e(f"s_cbranch_vccnz {nm}_late1")
        e(f"s_branch {nm}_lok")
        k.label(f"{nm}_slow")
        e("s_cmp_eq_u32 s30, 0"); e(f"s_cbranch_scc0 {nm}_fin")
        e("s_mov_b32 s30, 1")
        e("s_waitcnt vmcnt(0)")
        NM = O[1]
        e("v_mov_b32 v32, 0xff800000")
        def slowqk(c):
            e(f"buffer_load_dwordx4 {vr(KF[0],4)}, v22, s[12:15], s27 offen {SC}")
            e(f"buffer_load_dwordx2 {vr(KF[0]+4,2)}, v23, s[12:15], s27 offen offset:1024 {SC}")
            e("s_waitcnt vmcnt(0)")
            e(f"v_mfma_f32_32x32x16_bf16 {vr(SS[0],16)}, {vr(KF[0],4)}, {vr(Q[0],4)}, {c}"); e("s_nop 10")
            e(f"v_mfma_f32_32x32x8_bf16 {vr(SS[0],16)}, {vr(KF[0]+4,2)}, {vr(Q[0]+4,2)}, {vr(SS[0],16)}"); e("s_nop 12")
        e(f"s_add_u32 s27, s19, {KVIMG}"); e("s_mov_b32 s31, 0")
        k.label(f"{nm}_mx")
        slowqk("0")
        for r in range(0, 16, 2): e(f"v_max3_f32 v32, v{SS[0]+r}, v{SS[0]+r+1}, v32")
        e("s_add_u32 s27, s27, 2560")
        e("s_add_u32 s31, s31, 1"); e("s_cmp_lt_u32 s31, 64"); e(f"s_cbranch_scc1 {nm}_mx")
        k.allred32("v_max_f32", 32, 33)
        e("v_xor_b32 v32, 0x80000000, v32")
        for r in range(16): e(f"v_mov_b32 v{NM+r}, v32")
        for r in range(16): e(f"v_mov_b32 v{OO+r}, 0")
        for r in range(8): e(f"v_mov_b32 v{VF[0]+r}, v20")
        e(f"s_add_u32 s27, s19, {KVIMG}"); e("s_mov_b32 s31, 0")
        k.label(f"{nm}_sl")
        e("s_mov_b64 exec, s[28:29]")
        e(f"buffer_load_dwordx4 {vr(VF[0],4)}, v21, s[12:15], s27 offen {SC}")
        e(f"buffer_load_dwordx4 {vr(VF[0]+4,4)}, v21, s[12:15], s27 offen offset:640 {SC}")
        e("s_mov_b64 exec, -1")
        slowqk(vr(NM,16))
        for i in range(16): e(f"v_exp_f32 v{SS[0]+i}, v{SS[0]+i}")
        e("s_nop 0")
        for i in range(8): e(f"v_cvt_pk_bf16_f32 v{P+i}, v{SS[0]+2*i}, v{SS[0]+2*i+1}")
        e("s_nop 1")
        pv(0, 0, 0); pv(0, 0, 1)
        e("s_add_u32 s27, s27, 2560")
        e("s_add_u32 s31, s31, 1"); e("s_cmp_lt_u32 s31, 64"); e(f"s_cbranch_scc1 {nm}_sl")
        e("s_nop 12"); e(f"s_branch {nm}_chk")
    k.tail = slowpath
    k.label(f"{nm}_fin")
    e("s_nop 0")
    for r in range(12): e(f"v_mul_f32 v{OO+r}, v{OO+r}, v31")
    for r in range(6): e(f"v_cvt_pk_bf16_f32 v{P+r}, v{OO+2*r}, v{OO+2*r+1}")
    e(f"buffer_store_dwordx4 {vr(P,4)}, v39, s[12:15], s51 offen {SC}")
    e("s_mov_b32 exec_hi, 0")
    e(f"buffer_store_dwordx2 {vr(P+4,2)}, v38, s[12:15], s52 offen {SC}")
    e("s_mov_b64 exec, -1")
    k.stamp(5)
    e("v_lshlrev_b32 v3, 4, v1")
    k.vm = []; k.lg = []

def proj_c(k, tag, src, xin, xout, stout, last, cnt_code, word, st0):
    final = False
    e = k.e
    ACC, RESID, A, BF = 24, 44, 76, 156
    NA0 = ENV('PA0', '8')
    ids_rt(k)
    e("s_lshl_b32 s19, s16, 2"); e("s_add_u32 s19, s19, s39")
    e("s_mul_i32 s24, s19, 20480")
    e("s_lshr_b32 s33, s17, 1"); e("s_mul_i32 s33, s33, 5120"); e("s_add_u32 s33, s33, s24")
    e("s_and_b32 s34, s17, 1"); e("s_mul_i32 s35, s34, 3072"); e("s_add_u32 s35, s35, s33")
    e("s_lshl_b32 s36, s34, 9"); e("s_add_u32 s36, s36, s33"); e("s_add_u32 s36, s36, 2048")
    e(f"s_add_u32 s37, s35, {xin}"); e(f"s_add_u32 s38, s36, {xin}")
    e("v_lshrrev_b32 v13, 5, v1"); e("v_lshlrev_b32 v13, 8, v13"); e("v_and_b32 v14, 15, v1"); e("v_lshl_add_u32 v13, v14, 4, v13")
    e("v_bfe_u32 v14, v1, 4, 1"); e("v_lshl_add_u32 v13, v14, 3, v13")
    k.vmop(f"buffer_load_dwordx4 {vr(RESID,4)}, v3, {RS_(xin)}, s37 offen {SC}", "r")
    k.vmop(f"buffer_load_dwordx4 {vr(RESID+4,4)}, v3, {RS_(xin)}, s37 offen offset:1024 {SC}", "r")
    k.vmop(f"buffer_load_dwordx2 {vr(RESID+8,2)}, v13, {RS_(xin)}, s38 offen {SC}", "r")
    e(f"s_add_u32 s24, s24, {src}")
    for i in range(1, 5): e(f"s_add_u32 s{24+i}, s24, {4096*i}")
    e("v_lshrrev_b32 v9, 4, v1"); e("v_add_u32 v12, 61440, v3")
    wait_go(k, tag, word, cnt_code)
    k.stamp(st0)
    def ldA(n): k.vmop(f"buffer_load_dwordx4 {vr(A+4*n,4)}, v3, s[12:15], s{24+n//4} offen offset:{(n%4)*1024} {SC}", f"a{n}")
    for n in range(NA0): ldA(n)
    k.waitvm("r")
    for i in range(10):
        e(f"v_lshlrev_b32 v{ACC+2*i}, 16, v{RESID+i}"); e(f"v_and_b32 v{ACC+2*i+1}, 0xffff0000, v{RESID+i}")
    def rd(n, nf):
        off = n*5120 + nf*1024; b = 3
        if n >= 12: off -= 61440; b = 12
        k.dsop(f"ds_read_b128 {vr(BF+20*(n%2)+4*nf,4)}, v{b} offset:{off}", f"b{n}_{nf}")
    e("s_barrier")
    for n in range(2):
        for nf in range(5): rd(n, nf)
    for n in range(20):
        k.waitvm(f"a{n}")
        if n == 0: k.stamp(st0+1)
        for nf in range(5):
            if nf in (0, 2, 4): k.waitlg(f"b{n}_{min(nf+1,4)}")
            if n == 12 and nf == 0 and not final: e("s_barrier")
            e(f"v_mfma_f32_16x16x32_bf16 {vr(ACC+4*nf,4)}, {vr(BF+20*(n%2)+4*nf,4)}, {vr(A+4*n,4)}, {vr(ACC+4*nf,4)}")
            if n + 2 < 20: rd(n+2, nf)
            if nf == 0 and n + NA0 < 20: ldA(n + NA0)
    e("s_barrier")
    if last:
        e("s_cmp_eq_u32 s3, 0"); e(f"s_cbranch_scc1 {k.name}_nf")
        e("v_and_b32 v16, 15, v1"); e("v_mul_u32_u24 v16, 1280, v16"); e("v_lshl_add_u32 v17, v9, 3, v16"); e("v_lshl_add_u32 v16, v9, 4, v16")
        e("s_mul_i32 s32, s19, 20480"); e("s_mul_i32 s31, s17, 160"); e("s_add_u32 s32, s32, s31")
        e("s_lshl_b32 s31, s34, 5"); e("s_add_u32 s33, s32, s31"); e("s_xor_b32 s31, s34, 1"); e("s_lshl_b32 s31, s31, 7"); e("s_add_u32 s32, s32, s31")
        FSC = os.environ.get("FSC", "")
        for i in range(10): e(f"v_cvt_pk_bf16_f32 v{RESID+i}, v{ACC+2*i}, v{ACC+2*i+1}")
        e(f"buffer_store_dwordx4 {vr(RESID,4)}, v16, s[60:63], s33 offen {FSC}")
        e(f"buffer_store_dwordx4 {vr(RESID+4,4)}, v16, s[60:63], s33 offen offset:64 {FSC}")
        e(f"buffer_store_dwordx2 {vr(RESID+8,2)}, v17, s[60:63], s32 offen {FSC}")
        k.stamp(st0+2)
        if STAMP: e("s_waitcnt vmcnt(0)")
        k.dump(15, "2")
        e("s_endpgm")
        k.label(f"{k.name}_nf")
    if True:
        e(f"s_add_u32 s37, s35, {xout}"); e(f"s_add_u32 s38, s36, {xout}")
        e("s_lshl_b32 s32, s19, 10"); e("s_lshl_b32 s33, s17, 7"); e("s_add_u32 s32, s32, s33"); e(f"s_add_u32 s32, s32, {stout}")
        e("v_lshlrev_b32 v16, 3, v1")
        for i in range(10): e(f"v_cvt_pk_bf16_f32 v{RESID+i}, v{ACC+2*i}, v{ACC+2*i+1}")
        e(f"buffer_store_dwordx4 {vr(RESID,4)}, v3, {RS_(xout)}, s37 offen {SC}")
        e(f"buffer_store_dwordx4 {vr(RESID+4,4)}, v3, {RS_(xout)}, s37 offen offset:1024 {SC}")
        e(f"buffer_store_dwordx2 {vr(RESID+8,2)}, v13, {RS_(xout)}, s38 offen {SC}")
        e(f"v_add_f32 v18, v{ACC}, v{ACC+1}"); e(f"v_mul_f32 v19, v{ACC}, v{ACC}"); e(f"v_add_f32 v20, v{ACC+2}, v{ACC+3}"); e(f"v_mul_f32 v21, v{ACC+1}, v{ACC+1}")
        e(f"v_fmac_f32 v19, v{ACC+2}, v{ACC+2}"); e(f"v_fmac_f32 v21, v{ACC+3}, v{ACC+3}")
        for i in range(4, 20, 2):
            e(f"v_add_f32 v18, v18, v{ACC+i}"); e(f"v_fmac_f32 v19, v{ACC+i}, v{ACC+i}")
            e(f"v_add_f32 v20, v20, v{ACC+i+1}"); e(f"v_fmac_f32 v21, v{ACC+i+1}, v{ACC+i+1}")
        e("v_add_f32 v18, v18, v20"); e("v_add_f32 v19, v19, v21")
        for sw in ("v_permlane16_swap_b32", "v_permlane32_swap_b32"):
            e("v_mov_b32 v20, v18"); e("v_mov_b32 v21, v19"); e("s_nop 0")
            e(f"{sw} v18, v20"); e(f"{sw} v19, v21"); e("s_nop 0")
            e("v_add_f32 v18, v18, v20"); e("v_add_f32 v19, v19, v21")
        e("s_mov_b64 exec, 0xffff")
        e(f"buffer_store_dwordx2 v[18:19], v16, {RS_(xout)}, s32 offen {SC}")
    k.stamp(st0+2)

def proj_l(k, wimg, nxt, src, sig=None, done=0, last=False):
    e = k.e
    if nxt is not None:
        ids_mt(k)
        e("s_min_u32 s17, s17, 14" if nxt == WA_I else "s_nop 0")
        e("s_mul_i32 s58, s17, 163840"); e("s_add_u32 s58, s58, s45"); e(f"s_add_u32 s58, s58, {nxt}")
    ids_rt(k)
    e("s_mul_i32 s50, s17, 102400"); e("s_add_u32 s50, s50, s45"); e(f"s_add_u32 s50, s50, {wimg}")
    e("s_mul_i32 s51, s16, 81920"); e("s_lshl_b32 s52, s17, 2"); e("s_add_u32 s52, s52, s39"); e("s_mul_i32 s52, s52, 2560"); e("s_add_u32 s51, s51, s52"); e(f"s_add_u32 s51, s51, {src}")
    e("v_min_u32 v21, 39, v1"); e("v_lshlrev_b32 v21, 6, v21")
    w = Wdma(k, 25, 50, "o"); k.vm = []
    T1, T2 = ENV('T1', '0'), ENV('T2', '4')
    if sig:
        signal(k, "s1l", 0, 8, sig)
        ub_prep(k, 0)
    if last: w.rng(0, 6); e("s_barrier"); done = 6
    w.rng(done, 25, T1 if sig else 0)
    w2 = Wdma(k, 40, 58)
    if last:
        e("s_cmp_eq_u32 s3, 0"); e(f"s_cbranch_scc1 {k.name}_nl")
        e("s_waitcnt vmcnt(0)"); e("s_barrier"); e("buffer_load_dword v20, v21, s[12:15], s51 offen"); e("s_endpgm")
        k.label(f"{k.name}_nl")
    if sig:
        w2.rng(25, 33, T1)
        e(f"v_mov_b32 v{PV_+3}, {LW}"); e("s_mov_b32 s49, 0")
        k.label(f"{k.name}_a8")
        e(f"ds_read_b32 v{PV_}, v{PV_+3}"); e("s_add_u32 s49, s49, 1"); e("s_waitcnt lgkmcnt(0)"); e(f"v_readfirstlane_b32 s44, v{PV_}")
        e("s_cmp_ge_u32 s49, 0x400000"); e("s_cselect_b32 s44, 8, s44"); e("s_cmp_lt_u32 s44, 8"); e(f"s_cbranch_scc1 {k.name}_a8")
    if nxt is not None: w2.rng(33 if sig else 32, 39, T1 if sig else 0)
    if sig: ub_prep(k, 1)
    k.waitvm("o24")
    e("s_barrier")
    if ENV('ATOUCH', '1'):
        k.vmop("buffer_load_dword v20, v21, s[12:15], s51 offen")
    if nxt is not None:
        if not sig: w2.rng(25, 32)
        e("s_barrier")
        w2.rng(0, 15)
        e("s_barrier")
        k.waitvm("w14")
        w2.rng(15, 25, T2)
    return w2

def stats16(k, s, rstd, mop, mask):
    e = k.e
    e(f"v_add_f32 v{s}, v{s}, v{s+2}"); e(f"v_add_f32 v{s+1}, v{s+1}, v{s+3}")
    k.allred16("v_add_f32", s, s+2); k.allred16("v_add_f32", s+1, s+3)
    k.allred32("v_add_f32", s, s+2); k.allred32("v_add_f32", s+1, s+3)
    stats_finish(k, s, s+1, s+2, rstd, s+3)
    split3(k, s+2, mop, 17, 'm', mask)
def usum(k, u, dst, t=17):
    e = k.e
    e(f"v_add_f32 v{u}, v{u}, v{u+1}"); e(f"v_add_f32 v{u+2}, v{u+2}, v{u+3}"); e(f"v_add_f32 v{u}, v{u}, v{u+2}")
    split3(k, u, dst, t, 'u')
def scale_pack(k, a, sc, dst):
    for r in range(4): k.e(f"v_mul_f32 v{a+r}, v{a+r}, v{sc(r)}")
    for r in range(2): k.e(f"v_cvt_pk_bf16_f32 v{dst+r}, v{a+2*r}, v{a+2*r+1}")
EX = 102400
SOFF = 2*8192 + 7296
UOFF = lambda F: (F//4)*8192 + 7168 + (F%4)*256 + 128
TOKF = (0, 1, 2, 3, 6); FEAF = (4, 5, 7)

UO = 3456
def ub_prep(k, part):
    e = k.e
    if part:
        k.waitvm("up")
        for j_ in range(5): e(f"v_add_f32 v{64+j_}, v{64+j_}, v{69+j_}")
        e("v_add_f32 v64, v64, v65"); e("v_add_f32 v66, v66, v67"); e("v_add_f32 v64, v64, v68"); e("v_add_f32 v64, v64, v66")
        k.allred32("v_add_f32", 64, 65); split3(k, 64, 28, 17, 'u')
        return
    e("v_lshrrev_b32 v6, 5, v1"); e("v_and_b32 v5, 31, v1"); e("s_lshr_b32 s30, s21, 1")
    e("v_mul_u32_u24 v12, 5120, v6"); e("v_lshl_add_u32 v12, v5, 2, v12")
    e("s_mul_i32 s30, s30, 10240"); e("s_lshl_b32 s31, s39, 7"); e("s_add_u32 s30, s30, s31"); e(f"s_add_u32 s30, s30, {U_B}"); e("s_add_u32 s31, s30, 2560")
    for j_ in range(10): k.vmop(f"buffer_load_dword v{64+j_}, v12, s[12:15], s{30+j_//5} offen offset:{512*(j_%5)}", "up")
    e("v_bfe_u32 v6, v1, 4, 1"); e("v_lshlrev_b32 v46, 9, v6"); e("v_and_b32 v5, 15, v1"); e("v_lshl_add_u32 v46, v5, 3, v46")
    e("s_lshl_b32 s30, s39, 12"); e("v_add_u32 v46, s30, v46")

def atouch_pre(k, xin):
    e = k.e
    e("s_mul_i32 s51, s16, 163840"); e("s_lshl_b32 s52, s17, 2"); e("s_add_u32 s52, s52, s39"); e("s_mul_i32 s52, s52, 2560"); e("s_add_u32 s51, s51, s52"); e(f"s_add_u32 s51, s51, {xin}")
    e("v_min_u32 v21, 39, v1"); e("v_lshlrev_b32 v21, 6, v21")

G_ACC, G_BF, G_AR, G_DA = 64, 128, 160, 5
def gemm32_pre(k, xin, stin):
    e = k.e
    e("v_and_b32 v10, 31, v1"); e("v_lshrrev_b32 v4, 5, v1"); e("v_and_b32 v5, 15, v1")
    e("s_lshl_b32 s19, s16, 2"); e("s_add_u32 s19, s19, s18")
    e("v_bfe_u32 v7, v1, 4, 1"); e("v_mul_u32_u24 v8, 20480, v7"); e("v_lshl_add_u32 v8, v4, 8, v8"); e("v_lshl_add_u32 v8, v5, 4, v8")
    e("v_lshlrev_b32 v11, 10, v7"); e("v_lshl_add_u32 v11, v4, 9, v11"); e("v_lshl_add_u32 v11, v5, 3, v11")
    e("s_lshl_b32 s30, s19, 11"); e(f"s_add_u32 s30, s30, {stin}")
    e("s_mul_i32 s24, s19, 40960"); e(f"s_add_u32 s24, s24, {xin}")
    e("v_add_u32 v41, 65536, v3"); e("v_add_u32 v42, 131072, v3")
    e("v_subrev_u32 v58, 1, v4"); e("v_not_b32 v59, v58")
def gemm32_loads(k, R):
    e = k.e
    def ldA(ks):
        if ks % 4 == 0 and ks > 0: e("s_add_u32 s24, s24, 4096")
        for u in range(2):
            k.vmop(f"buffer_load_dwordx4 {vr(G_AR+8*(ks%G_DA)+4*u,4)}, v8, {R}, s24 offen offset:{(ks%4)*1024+512*u} {SC}", f"a{ks}")
    ldA(0)
    for q in range(4): k.vmop(f"buffer_load_dwordx2 {vr(16+2*q,2)}, v11, {R}, s30 offen offset:{128*q} {SC}", "st")
    for ks in range(1, G_DA-1): ldA(ks)
    return ldA
def gemm32_stats(k):
    e = k.e
    k.waitvm("st")
    e("v_add_f32 v16, v16, v18"); e("v_add_f32 v17, v17, v19"); e("v_add_f32 v20, v20, v22"); e("v_add_f32 v21, v21, v23")
    e("v_add_f32 v16, v16, v20"); e("v_add_f32 v17, v17, v21")
    k.allred32("v_add_f32", 16, 18); k.allred32("v_add_f32", 17, 18)
    stats_finish(k, 16, 17, 46, 47, 18)
    split3(k, 46, 48, 18, 'm', 58)
def gemm32(k, vmode, fl, ldA, bars, st0, late=None):
    e = k.e; ACC, BF, AR, DA = G_ACC, G_BF, G_AR, G_DA
    acc = lambda jf: vr(ACC+16*jf, 16)
    def rd(ks, f):
        off = ks*8192 + 1024*f; hi = off >> 16
        k.dsop(f"ds_read_b128 {vr(BF+4*f,4)}, v{(3,41,42)[hi]} offset:{off & 0xffff}", f"b{ks}_{f}")
    e("s_barrier")
    for f in range(8): rd(0, f)
    for ks in range(20):
        k.waitvm(f"a{ks}")
        if ks == 0: k.stamp(st0+1)
        if ks in bars: e("s_barrier")
        if late and ks == late[0]: k.fill(fl, 1000); fl += late[1]
        for f in range(8):
            u, jf = f//4, f%4
            if f % 2 == 0: k.waitlg(f"b{ks}_{f+1}")
            a = vr(AR+8*(ks%DA)+4*u, 4); b = vr(BF+4*f, 4); c = acc(jf) if (ks or u) else "0"
            if vmode: e(f"v_mfma_f32_32x32x16_bf16 {acc(jf)}, {a}, {b}, {c}")
            else:     e(f"v_mfma_f32_32x32x16_bf16 {acc(jf)}, {b}, {a}, {c}")
            if ks + 1 < 20: rd(ks+1, f)
            if f == 0 and ks + DA - 1 < 20: ldA(ks + DA - 1)
            if ks >= 1: k.fill(fl, 2)
        if ks == 15:
            k.fill(fl, 1000)
            for jf in range(4):
                if vmode: e(f"v_mfma_f32_32x32x8_bf16 {acc(jf)}, v[48:49], {vr(50+2*jf,2)}, {acc(jf)}")
                else:     e(f"v_mfma_f32_32x32x8_bf16 {acc(jf)}, {vr(50+2*jf,2)}, v[48:49], {acc(jf)}")
    k.stamp(st0+2)

TB, TS = 88448, 296
def toff(G): return (0, 64, 128, 168, 208, 248)[G//5] + 8*(G%5)

def qkvb_c(k, xin, stin, st0):
    e = k.e; nm = k.name
    ACC, BF = G_ACC, G_BF
    ids_mt(k); gemm32_pre(k, xin, stin)
    e("v_lshrrev_b32 v6, 4, v1")
    MC, MP, MP1 = 200, 204, 208
    NEG = fbits(-1e30)
    e("v_lshlrev_b32 v17, 2, v6"); e("v_sub_u32 v17, v5, v17"); e(f"v_mov_b32 v19, {NEG}")
    for r in range(4):
        e(f"v_subrev_u32 v18, {r}, v17"); e("v_and_b32 v16, 0x80000001, v18")
        e("v_cmp_eq_u32 vcc, 0, v16"); e(f"v_cndmask_b32 v{MC+r}, v19, 0, vcc")
        e("v_cmp_eq_u32 vcc, 0x80000000, v16"); e(f"v_cndmask_b32 v{MP+r}, v19, 0, vcc")
    e("s_cmp_eq_u32 s19, 0"); e(f"s_cselect_b32 s34, {NEG}, 0")
    for r in range(4): e(f"v_add_f32 v{MP1+r}, s34, v{MP+r}")
    e(f"s_mul_i32 s35, s18, {32*TS}"); e(f"s_add_u32 s35, s35, {TB}")
    e(f"v_mul_u32_u24 v16, {TS}, v10"); e("v_add_u32 v16, s35, v16"); e(f"v_add_u32 v16, {16*TS}, v16")
    e("v_lshl_add_u32 v212, v4, 3, v16"); e("v_lshl_add_u32 v213, v4, 5, v16"); e("v_mov_b32 v219, v16")
    e("v_lshl_add_u32 v215, v4, 6, v16")
    e(f"v_mul_u32_u24 v16, {TS}, v5"); e("v_add_u32 v16, s35, v16"); e("v_lshl_add_u32 v216, v6, 4, v16")
    e("v_lshrrev_b32 v17, 2, v1"); e(f"v_mul_u32_u24 v16, {TS}, v17"); e("v_add_u32 v16, s35, v16"); e("v_and_b32 v17, 3, v1")
    e("v_lshl_add_u32 v217, v17, 3, v16")
    e("v_mul_u32_u24 v18, 40, v17"); e("v_add_u32 v18, 240, v18"); e("v_cmp_gt_u32 vcc, 2, v17"); e("v_mov_b32 v19, 288"); e("v_cndmask_b32 v18, v19, v18, vcc"); e("v_add_u32 v218, v16, v18")
    e("v_lshlrev_b32 v43, 9, v7"); e("v_lshl_add_u32 v43, v5, 3, v43")
    e("v_mov_b32 v220, 0"); e("v_mov_b32 v221, 0"); e("v_mov_b32 v222, 0x3f803f80"); e("v_mov_b32 v223, 0x3f803f80")
    e("s_mul_i32 s25, s19, 40960"); e(f"s_add_u32 s25, s25, {OBT}")
    e("s_lshl_b32 s51, s17, 10"); e("s_add_u32 s51, s51, s25"); e("s_add_u32 s52, s51, 20480")
    e("s_lshr_b32 s53, s17, 2"); e("s_add_u32 s53, s53, 16"); e("s_lshl_b32 s53, s53, 10"); e("s_add_u32 s53, s53, s25")
    e("s_and_b32 s54, s17, 1"); e("s_lshl_b32 s54, s54, 9"); e("s_add_u32 s53, s53, s54")
    e("s_bfe_u32 s54, s17, 0x10001"); e("s_lshl_b32 s54, s54, 3"); e("s_add_u32 s53, s53, s54"); e("s_add_u32 s54, s53, 20480")
    def c2():
        e("s_lshl_b32 s48, s16, 9"); e(f"s_add_u32 s48, s48, {C2}")
        e(f"v_lshlrev_b32 v{PV_+1}, 8, v1"); e(f"v_lshlrev_b32 v{PV_+2}, 3, v1"); e(f"v_sub_u32 v{PV_+2}, 16, v{PV_+2}")
        e("s_cmp_eq_u32 s16, 0"); e("s_cselect_b64 s[56:57], 1, 3")
    e("s_cmp_eq_u32 s18, 1"); e(f"s_cbranch_scc0 {nm}_ad"); e("v_lshlrev_b32 v16, 8, v1"); e("s_mov_b32 s49, 0")
    k.label(f"{nm}_ap")
    e(f"buffer_load_dword v17, v16, s[8:11], 0 offen offset:{C1} {SC}"); e("s_add_u32 s49, s49, 1"); e("s_waitcnt vmcnt(0)")
    e("v_cmp_gt_u32 vcc, 16, v17"); e("s_cmp_ge_u32 s49, 0x20000"); e(f"s_cbranch_scc1 {nm}_ad"); e(f"s_cbranch_vccnz {nm}_ap")
    k.label(f"{nm}_ad")
    wait_go(k, "p3", 1, c2)
    k.stamp(st0)
    ldA = gemm32_loads(k, RS_(xin))
    fl = k.capture(lambda: (gemm32_stats(k), e(f"v_mul_f32 v45, {fbits(CSCALE)}, v47")))
    def uops():
        for jf in range(4): k.dsop(f"ds_read_b64 {vr(50+2*jf,2)}, v43 offset:{UO+4096*jf}", "uo")
    gemm32(k, False, fl, ldA, {6, ENV('H1S', '16'), ENV('H2S', '18')}, st0, (8, k.capture(uops)))
    e("s_barrier")
    e("s_cmp_eq_u32 s18, 0"); e(f"s_cbranch_scc0 {nm}_ni"); lw_init(k); k.label(f"{nm}_ni")
    for q in range(3): e(f"ds_write_b64 v215, v[220:221] offset:{40+8*q}")
    e("ds_write_b64 v219, v[222:223] offset:288")
    for G in list(range(10, 30, 2)) + list(range(0, 10, 2)):
        a = ACC + 2*G; d = BF + G
        for r in range(4): e(f"v_mul_f32 v{a+r}, v{a+r}, v{45 if G < 10 else 47}")
        for r in range(2): e(f"v_cvt_pk_bf16_f32 v{d+r}, v{a+2*r}, v{a+2*r+1}")
        e(f"ds_write_b64 v{ {8: 212, 32: 213}[toff(G+1) - toff(G)] }, {vr(d,2)} offset:{toff(G)}")
    e("s_waitcnt lgkmcnt(0)"); e("s_barrier")
    KO = lambda b, h: 160 + 8*b + 4*h
    QO = lambda b, h: 184 + 8*(b-1) + 4*h
    VO = lambda F, b: 20 + 8*FEAF.index(F) + 2*b if False else 224 + 6*FEAF.index(F) + 2*b - (0)
    VO = lambda F, b: (128, 136, 144)[FEAF.index(F)] + 2*b
    for b in (1, 2):
        for h in range(2):
            for x in range(2): e(f"ds_read_b64 {vr(QO(b,h)+2*x,2)}, v216 offset:{16*b*TS+64*h+8*x}")
    for b in range(3):
        for h in range(2):
            for x in range(2): e(f"ds_read_b64 {vr(KO(b,h)+2*x,2)}, v216 offset:{16*b*TS+128+40*h+8*x}")
    e("s_waitcnt lgkmcnt(0)")
    for b in range(3):
        for h in range(2): e(f"ds_read_b64_tr_b16 {vr(VO(4+h,b),2)}, v217 offset:{16*b*TS+208+40*h}")
        e(f"ds_read_b64_tr_b16 {vr(VO(7,b),2)}, v218 offset:{16*b*TS}")
    units = [(b, h) for b in (1, 2) for h in range(2)]
    SU = lambda i: 64 + 8*i
    TU = lambda i: ACC + 32 + 4*i
    PU = lambda i: ACC + 48 + 4*i
    OU = lambda i: 64 + 8*i
    for i, (b, h) in enumerate(units):
        e(f"v_mfma_f32_16x16x32_bf16 {vr(SU(i),4)}, {vr(KO(b-1,h),4)}, {vr(QO(b,h),4)}, {vr(MP1 if b == 1 else MP,4)}")
        e(f"v_mfma_f32_16x16x32_bf16 {vr(SU(i)+4,4)}, {vr(KO(b,h),4)}, {vr(QO(b,h),4)}, {vr(MC,4)}")
    e("s_waitcnt lgkmcnt(0)"); e("s_barrier")
    def allred(op):
        for sw in ("v_permlane16_swap_b32", "v_permlane32_swap_b32"):
            for i in range(4): e(f"v_mov_b32 v{TU(i)+1}, v{TU(i)}")
            for i in range(4): e(f"{sw} v{TU(i)}, v{TU(i)+1}")
            for i in range(4): e(f"{op} v{TU(i)}, v{TU(i)}, v{TU(i)+1}")
    for i in range(4):
        s = SU(i)
        e(f"v_max3_f32 v{TU(i)}, v{s}, v{s+1}, v{s+2}"); e(f"v_max3_f32 v{TU(i)}, v{s+3}, v{s+4}, v{TU(i)}")
        e(f"v_max3_f32 v{TU(i)}, v{s+5}, v{s+6}, v{TU(i)}"); e(f"v_max_f32 v{TU(i)}, v{s+7}, v{TU(i)}")
    allred("v_max_f32")
    for i in range(4):
        for r in range(8): e(f"v_sub_f32 v{SU(i)+r}, v{SU(i)+r}, v{TU(i)}")
    for i in range(4):
        for r in range(8): e(f"v_exp_f32 v{SU(i)+r}, v{SU(i)+r}")
    for i in range(4):
        for r in range(4): e(f"v_cvt_pk_bf16_f32 v{PU(i)+r}, v{SU(i)+2*r}, v{SU(i)+2*r+1}")
    for i, (b, h) in enumerate(units):
        e(f"v_mfma_f32_16x16x32_bf16 {vr(OU(i)+4,4)}, {vr(VO(7,b-1),4)}, {vr(PU(i),4)}, 0")
    for i, (b, h) in enumerate(units):
        e(f"v_mfma_f32_16x16x32_bf16 {vr(OU(i),4)}, {vr(VO(4+h,b-1),4)}, {vr(PU(i),4)}, 0")
    for i in range(4): e(f"v_mov_b32 v{TU(i)}, v{OU(i)+4}"); e(f"v_mov_b32 v{TU(i)+1}, v{OU(i)+4}")
    for i in range(4): e(f"v_permlane32_swap_b32 v{TU(i)}, v{TU(i)+1}")
    for i in range(4): e(f"v_rcp_f32 v{TU(i)+1}, v{TU(i)+1}")
    e("v_cmp_eq_u32 vcc, 0, v6")
    for bi in range(2):
        o0, o1 = OU(2*bi), OU(2*bi+1); d = 40 + 8*bi; t0, t1 = TU(2*bi)+1, TU(2*bi+1)+1
        for r in range(4): e(f"v_mul_f32 v{o0+r}, v{o0+r}, v{t0}"); e(f"v_mul_f32 v{o1+r}, v{o1+r}, v{t1}")
        e(f"v_cvt_pk_bf16_f32 v{d}, v{o0}, v{o0+1}"); e(f"v_cvt_pk_bf16_f32 v{d+1}, v{o0+2}, v{o0+3}")
        e(f"v_cvt_pk_bf16_f32 v{d+2}, v{o1}, v{o1+1}"); e(f"v_cvt_pk_bf16_f32 v{d+3}, v{o1+2}, v{o1+3}")
        e(f"buffer_store_dwordx4 {vr(d,4)}, v3, s[12:15], s{51+bi} offen {SC}")
        e(f"v_cndmask_b32 v{t0}, v{t1}, v{t0}, vcc")
        for r in range(4): e(f"v_cndmask_b32 v{o0+4+r}, v{o1+4+r}, v{o0+4+r}, vcc")
        for r in range(4): e(f"v_mul_f32 v{o0+4+r}, v{o0+4+r}, v{t0}")
        e(f"v_cvt_pk_bf16_f32 v{d+4}, v{o0+4}, v{o0+5}"); e(f"v_cvt_pk_bf16_f32 v{d+5}, v{o0+6}, v{o0+7}")
    e("s_mov_b32 exec_hi, 0")
    for bi in range(2): e(f"buffer_store_dwordx2 {vr(44+8*bi,2)}, v3, s[12:15], s{53+bi} offen {SC}")

def qkvb_l(k, xin, stin, w):
    e = k.e; nm = k.name
    ids_mt(k)
    e("v_and_b32 v5, 15, v1"); e("v_lshrrev_b32 v6, 4, v1")
    e("v_lshlrev_b32 v11, 3, v5"); e("v_lshl_add_u32 v11, v6, 8, v11")
    e("v_cmp_eq_u32 vcc, 0, v6"); e("s_lshl_b32 s22, s16, 3"); e("s_max_u32 s22, s22, 1"); e("v_cndmask_b32 v4, 0, -1, vcc")
    e("s_sub_u32 s22, s22, 1")
    e("s_mul_i32 s24, s22, 20480"); e(f"s_add_u32 s24, s24, {xin}"); e("s_add_u32 s24, s24, s45")
    e("s_lshl_b32 s27, s22, 10"); e(f"s_add_u32 s27, s27, {stin}")
    HP = 49152
    e("v_lshrrev_b32 v12, 1, v6"); e("v_lshlrev_b32 v40, 12, v12"); e("v_and_b32 v12, 1, v6"); e("v_lshl_add_u32 v40, v12, 9, v40"); e("v_lshl_add_u32 v40, v5, 4, v40")
    e("s_lshl_b32 s32, s39, 13"); e("v_add_u32 v40, s32, v40"); e("v_add_u32 v41, 65536, v40"); e("v_add_u32 v42, 131072, v40")
    e("s_mul_i32 s33, s39, 6144"); e(f"s_add_u32 s33, s33, {HP}"); e("v_add_u32 v43, s33, v3")
    e("s_min_u32 s40, s39, 2"); e("s_lshl_b32 s41, s40, 11"); e(f"s_add_u32 s41, s41, {HP}"); e("v_add_u32 v44, s41, v3")
    e("s_lshl_b32 s41, s40, 12"); e("v_lshlrev_b32 v45, 3, v5"); e("v_add_u32 v45, s41, v45")
    e(f"v_mul_u32_u24 v12, {TS}, v5"); e(f"v_add_u32 v12, {TB}, v12"); e("s_lshl_b32 s41, s40, 3"); e("s_sub_u32 s41, s41, 2")
    for x in range(2):
        e(f"v_add_u32 v13, s41, v6")
        if x: e("v_add_u32 v13, 4, v13")
        e("v_add_u32 v14, 16, v13")
        e("v_cmp_gt_u32 vcc, 20, v13"); e("v_cndmask_b32 v14, 0, v14, vcc"); e(f"v_lshl_add_u32 v{50+x}, v14, 3, v12")
    e("v_mov_b32 v47, v12"); e("v_mov_b32 v56, 0x3f803f80"); e("v_mov_b32 v57, 0x3f803f80")
    atouch_pre(k, xin)
    e(f"s_setprio {ENV('P3PRIO', '0')}")
    e("s_barrier")
    if ENV('ATOUCH', '1'): k.vmop("buffer_load_dword v20, v21, s[12:15], s51 offen")
    w.one(39)
    e(f"ds_write_b64 v46, v[28:29] offset:{UO}")
    for q_ in range(2): k.vmop(f"buffer_load_dwordx2 {vr(24+2*q_,2)}, v11, s[12:15], s27 offen offset:{128*q_} {SC}", "st")
    for i in range(5):
        k.vmop(f"buffer_load_dwordx4 {vr(128+4*i,4)}, v3, s[12:15], s24 offen {SC}", f"h{i}")
        if i < 4: e("s_add_u32 s24, s24, 4096")
    k.waitvm("st")
    stats16(k, 24, 48, 52, 4)
    e("s_waitcnt lgkmcnt(0)"); e("s_barrier")
    def rd(n):
        i, j = n // 6, 2 + n % 6
        k.dsop(f"ds_read_b128 {vr(96+4*(n%6),4)}, v{40+i//2} offset:{(i%2)*32768+1024*(j//2)+256*(j%2)}", f"r{n}")
    for n in range(6): rd(n)
    for x in range(2): k.dsop(f"ds_read_b64 {vr(20+2*x,2)}, v45 offset:{UO+4096+512*x}", "u")
    for n in range(30):
        i = n // 6
        if n % 6 == 0: k.waitvm(f"h{i}")
        k.waitlg(f"r{n}")
        c = vr(148+4*(n%6), 4)
        e(f"v_mfma_f32_16x16x32_bf16 {c}, {vr(96+4*(n%6),4)}, {vr(128+4*i,4)}, {c if i else 0}")
        if n + 6 < 30: rd(n + 6)
    e("s_barrier")
    for n in range(6): e(f"ds_write_b128 v43, {vr(148+4*n,4)} offset:{1024*n}")
    e("s_waitcnt lgkmcnt(0)"); e("s_barrier")
    for p_ in range(4):
        for x in range(2): e(f"ds_read_b128 {vr(96+8*p_+4*x,4)}, v44 offset:{6144*p_+1024*x}")
    e("s_waitcnt lgkmcnt(0)")
    for r in range(8):
        e(f"v_add_f32 v{96+r}, v{96+r}, v{104+r}"); e(f"v_add_f32 v{112+r}, v{112+r}, v{120+r}"); e(f"v_add_f32 v{80+r}, v{96+r}, v{112+r}")
    for x in range(2): e(f"v_mfma_f32_16x16x16_bf16 {vr(80+4*x,4)}, {vr(20+2*x,2)}, v[52:53], {vr(80+4*x,4)}")
    for x in range(2): scale_pack(k, 80+4*x, lambda r: 48, 88+2*x)
    e("s_barrier")
    for x in range(2): e(f"ds_write_b64 v{50+x}, {vr(88+2*x,2)}")
    e("ds_write_b64 v47, v[56:57] offset:288")
    e(f"s_setprio {ENV('LPRIO', '2')}")
    e("s_waitcnt lgkmcnt(0)"); e("s_barrier")
    k.vm = []; k.lg = []

def one(k, target):
    k.e(f"v_mov_b32 v{PV_+1}, 0"); k.e(f"v_mov_b32 v{PV_+2}, {target}"); k.e("s_mov_b64 s[56:57], 1")

def kvpos(k):
    k.e("s_and_b32 s36, s19, 31"); k.e("s_lshl_b32 s36, s36, 1"); k.e("s_lshr_b32 s34, s19, 5"); k.e("s_add_u32 s36, s36, s34")
    k.e("s_add_u32 s36, s36, 44"); k.e("s_and_b32 s36, s36, 63")
def addr_v(k, img):
    e = k.e
    e("s_sub_u32 s35, s17, 10"); e("s_lshl_b32 s35, s35, 7")
    kvpos(k); e("s_mul_i32 s36, s36, 2560"); e(f"s_add_u32 s33, s36, {img+KVIMG+1280}")
    e("v_mul_u32_u24 v20, 320, v4")
    for jf in range(4):
        e(f"v_add_u32 v16, s35, v10")
        if jf: e(f"v_add_u32 v16, {32*jf}, v16")
        e("v_mul_u32_u24 v17, 52429, v16"); e("v_lshrrev_b32 v17, 20, v17")
        e("v_mul_u32_u24 v18, 20, v17"); e("v_sub_u32 v18, v16, v18")
        e("v_mul_u32_u24 v17, 163840, v17"); e("v_lshl_add_u32 v17, v18, 4, v17")
        e(f"v_add_u32 v{24+jf}, v17, v20")
def addr_qk(k, img, xm=52):
    e = k.e; k.xm = xm
    e("s_cmp_ge_u32 s17, 5")
    e(f"s_cselect_b32 s33, {QI}, 0"); e(f"s_cselect_b32 s59, 1.0, {fbits(CSCALE)}"); e("s_cselect_b32 s35, 5, 0"); e("s_cselect_b32 s37, 1, 0")
    e(f"s_add_u32 s33, s33, {img+QIMG}")
    e("s_sub_u32 s35, s17, s35")
    kvpos(k); e("s_cmp_eq_u32 s37, 0"); e("s_cselect_b32 s36, s19, s36")
    e("s_mul_i32 s36, s36, 1280"); e("s_lshl_b32 s36, s36, s37"); e("s_add_u32 s33, s33, s36")
    e("s_lshl_b32 s34, 81920, s37")
    e("v_lshlrev_b32 v16, 4, v10"); e("v_lshlrev_b32 v17, 3, v10")
    e("v_lshl_add_u32 v18, v4, 9, v16")
    e("s_sub_u32 s36, s34, 512"); e("v_and_b32 v19, s36, v59"); e("v_add_u32 v19, v19, v16")
    e(f"s_mov_b32 s{xm}, -1"); e(f"s_mov_b32 s{xm+1}, 0"); e(f"s_mov_b32 s{xm+2}, 0"); e(f"s_mov_b32 s{xm+3}, -1")
def epi_qk(k, ACC, BF):
    e = k.e; nm = k.name + k.ptag
    for v in range(1, 5):
        e(f"s_cmp_eq_u32 s35, {v}"); e(f"s_cbranch_scc1 {nm}_e{v}")
    QSC = os.environ.get("QSC", "sc1")
    for v in range(5):
        if v: k.label(f"{nm}_e{v}")
        e("s_nop 7")
        for jf in range(4):
            for r in range(16): e(f"v_mul_f32 v{ACC+16*jf+r}, v{ACC+16*jf+r}, v47")
            for r in range(8): e(f"v_cvt_pk_bf16_f32 v{BF+8*jf+r}, v{ACC+16*jf+2*r}, v{ACC+16*jf+2*r+1}")
            for a2 in range(2):
                x = BF+8*jf+4*a2
                e(f"v_permlane32_swap_b32 v{x}, v{x+2}"); e(f"v_permlane32_swap_b32 v{x+1}, v{x+3}")
            for a2 in range(2):
                x = BF+8*jf+4*a2
                G = [32*v+8*jf+4*a2, 32*v+8*jf+4*a2+2]
                def main(g):
                    h = g // 5; r = g % 5
                    return h, (r // 2 if h % 2 == 0 else (r - 1) // 2)
                st = [g % 10 == 4 for g in G]
                def hoff(dst, h, c):
                    if h: e(f"s_mul_i32 s{dst}, s34, {h}"); e(f"s_add_u32 s{dst}, s{dst}, s33")
                    else: e(f"s_mov_b32 s{dst}, s33")
                    if c: e(f"s_add_u32 s{dst}, s{dst}, {c}")
                if not any(st):
                    (h0, p0), (h1, p1) = main(G[0]), main(G[1])
                    hoff(36, h0, 512*p0)
                    if h0 == h1: e(f"buffer_store_dwordx4 {vr(x,4)}, v18, {k.srdo}, s36 offen {QSC}")
                    else:        e(f"buffer_store_dwordx4 {vr(x,4)}, v19, {k.srdo}, s36 offen {QSC}")
                    assert (h0 == h1 and (p0, p1) == (0, 1)) or (h1 == h0 + 1 and (p0, p1) == (1, 0))
                else:
                    m = st.index(False); q = 1 - m
                    h, p = main(G[m]); hoff(36, h, 512*p); hoff(37, G[q] // 5, 1024); e("s_add_u32 s38, s37, s34")
                    e(f"s_mov_b64 exec, s[{k.xm+2*m}:{k.xm+1+2*m}]")
                    e(f"buffer_store_dwordx4 {vr(x,4)}, v16, {k.srdo}, s36 offen {QSC}")
                    e(f"s_mov_b64 exec, s[{k.xm+2*q}:{k.xm+1+2*q}]")
                    e(f"buffer_store_dwordx2 {vr(x,2)}, v17, {k.srdo}, s37 offen {QSC}")
                    e(f"buffer_store_dwordx2 {vr(x+2,2)}, v17, {k.srdo}, s38 offen {QSC}")
                    e("s_mov_b64 exec, -1")
        e(f"s_branch {nm}_fin5")
def epi_v(k, ACC, BF, RS):
    e = k.e
    VSC = os.environ.get("VSC", "sc1")
    for jf in range(4):
        for r in range(16): e(f"v_mul_f32 v{ACC+16*jf+r}, v{ACC+16*jf+r}, v{RS+r}")
        for r in range(8): e(f"v_cvt_pk_bf16_f32 v{BF+8*jf+r}, v{ACC+16*jf+2*r}, v{ACC+16*jf+2*r+1}")
        for u in range(2):
            e(f"buffer_store_dwordx4 {vr(BF+8*jf+4*u,4)}, v{24+jf}, {k.srdo}, s33 offen offset:{640*u} {VSC}")

def qkva_c(k, xin, stin, img, cnt, wbar, st0):
    k.ptag = '_p5'; k.srdo = 's[12:15]'
    e = k.e; nm = k.name + k.ptag
    DA = 5
    ACC, BF, AR, RS = 64, 128, 160, 200
    gemm32_pre(k, xin, stin)
    e("v_lshlrev_b32 v12, 4, v10")
    e("s_lshl_b32 s31, s17, 11"); e(f"s_add_u32 s31, s31, {U_A}")
    for jf in range(4): k.vmop(f"buffer_load_dwordx4 {vr(24+4*jf,4)}, v12, s[12:15], s31 offen offset:{512*jf}", "u")
    def c4(): one(k, 16); e("s_lshl_b32 s48, s16, 8"); e(f"s_add_u32 s48, s48, {cnt}")
    wait_go(k, "p5", 1, c4)
    k.stamp(st0)
    ldA = gemm32_loads(k, RS_(xin))
    def prolog(vmode):
        gemm32_stats(k)
        for jf in range(4): usum(k, 24+4*jf, 50+2*jf, 18)
        if vmode:
            e("v_lshlrev_b32 v16, 4, v4")
            for r in range(16):
                e(f"v_add_u32 v17, {(8*(r//4) + r%4)*4}, v16")
                k.dsop(f"ds_bpermute_b32 v{RS+r}, v17, v47", "rs")
            addr_v(k, img)
        else:
            addr_qk(k, img); e("v_mul_f32 v47, s59, v47")
    e("s_cmp_ge_u32 s17, 10"); e(f"s_cbranch_scc1 {nm}_qv")
    vm_save = list(k.vm)
    def mainloop(vmode):
        gemm32(k, vmode, k.capture(lambda: prolog(vmode)), ldA, {w_ - 1 for w_ in wbar}, st0)
        e("s_barrier")
    mainloop(False)
    epi_qk(k, ACC, BF)
    k.label(f"{nm}_qv"); k.vm = vm_save; k.lg = []
    mainloop(True)
    epi_v(k, ACC, BF, RS)
    k.label(f"{nm}_fin5")

def ph_front(k):
    k.ptag = "_f"; k.srdo = "s[12:15]"
    e = k.e; nm = k.name + k.ptag; kn = k.name
    R, DEP, SCRB, UT = 4, 2, 131072, 65536
    need = lambda ks: ks // 2
    slot = lambda st: (st % R) * 32768
    e("s_cmp_ge_u32 s2, 256"); e(f"s_cbranch_scc1 {kn}_end"); k.stamp(0); k.rstamp(1)
    e("s_load_dwordx4 s[60:63], s[0:1], 0"); e("s_load_dwordx2 s[6:7], s[0:1], 64")
    e("s_load_dwordx2 s[4:5], s[0:1], 56")
    e("s_and_b32 s20, s2, 7"); e("s_lshr_b32 s21, s2, 3")
    e("v_lshrrev_b32 v2, 6, v0"); e("v_and_b32 v1, 63, v0")
    e("v_readfirstlane_b32 s18, v2")
    e("s_and_b32 s39, s18, 3"); e("s_lshl_b32 s45, s39, 10")
    ids_mt(k)
    e("v_lshlrev_b32 v3, 4, v1"); e(f"v_lshlrev_b32 v9, {ENV('BST', '6')}, v1")
    e("s_lshl_b32 s22, s2, 2"); e("s_add_u32 s22, s22, s39"); e("s_mul_i32 s23, s22, 2400"); e("s_mul_i32 s22, s22, 2560")
    def kwait():
        e("s_waitcnt lgkmcnt(0)")
        k.stamp(2)
        k.srd(8, 60, S*D*2); k.srd(28, 62, D*3*D*2); k.srd(12, 6, WS_END)
    def burst():
        if ENV('BURST', '1'):
            e("s_mov_b32 exec_hi, 0xff" if ENV('BST', '6') == 6 else "s_mov_b64 exec, 0xfffff")
            e("buffer_load_dword v240, v9, s[8:11], s22 offen"); e("buffer_load_dword v241, v9, s[28:31], s23 offen")
            e("s_mov_b64 exec, -1")
    def codepf(tg):
        if ENV('CPF', '1'):
            e("s_getpc_b64 s[34:35]"); k.label(f"{nm}_pc{tg}")
            e(f"s_sub_u32 s34, s34, {nm}_pc{tg} - {kn}"); e("s_subb_u32 s35, s35, 0")
            e("v_lshlrev_b32 v242, 4, v0"); e("s_lshl_b32 s36, s21, 12"); e("v_add_u32 v242, s36, v242")
            e(f"v_and_b32 v242, 0xffffffc0, v242"); e(f"v_min_u32 v242, code_end - {kn} - 4, v242")
            e("global_load_dword v243, v242, s[34:35]")
    e("s_cmp_ge_u32 s17, 15"); e(f"s_cbranch_scc1 {nm}_ub")
    e("v_and_b32 v10, 31, v1"); e("v_lshrrev_b32 v4, 5, v1"); e("v_and_b32 v5, 15, v1"); e("v_bfe_u32 v7, v1, 4, 1")
    e("v_lshrrev_b32 v13, 2, v5"); e("v_and_b32 v6, 3, v1")
    e("v_lshl_add_u32 v14, v4, 3, v13"); e("v_lshlrev_b32 v14, 8, v14"); e("v_lshl_add_u32 v14, v7, 5, v14"); e("v_lshl_add_u32 v14, v6, 3, v14")
    e("v_add_u32 v14, 16384, v14")
    def a0():
        e("s_lshl_b32 s48, s17, 11"); e(f"s_add_u32 s48, s48, {C0}"); e(f"v_lshlrev_b32 v{PV_+1}, 8, v1"); e("s_mov_b64 s[56:57], 0xff")
    SF = ENV('SF', '10')
    e("s_cmp_ge_u32 s18, 4"); e(f"s_cbranch_scc1 {nm}_ld")
    kwait(); burst(); codepf("c")
    if ENV('TLB', '1'):
        sh = ENV('TLBS', '18')
        e("s_load_dwordx4 s[84:87], s[0:1], 32"); e("s_load_dwordx2 s[88:89], s[0:1], 16"); e("s_load_dwordx2 s[90:91], s[0:1], 48")
        e(f"v_lshlrev_b32 v236, {sh}, v0" if sh < 21 else "v_lshlrev_b32 v236, 21, v1")
        e(f"v_min_u32 v236, {STAMPS-4}, v236")
        e("s_cmp_eq_u32 s18, 0" if sh == 21 else "s_cmp_lt_u32 s18, 4"); e(f"s_cbranch_scc0 {nm}_tl")
        e("buffer_load_dword v237, v236, s[12:15], 0 offen")
        e("v_and_b32 v236, 1, v1"); e("v_mul_u32_u24 v238, 819196, v236"); e("v_mul_u32_u24 v236, 2457596, v236"); e("s_mov_b64 exec, 3")
        e("s_waitcnt lgkmcnt(0)")
        e("global_load_dword v237, v236, s[84:85]"); e("global_load_dword v237, v238, s[86:87]"); e("global_load_dword v237, v238, s[88:89]"); e("global_load_dword v237, v236, s[90:91]")
        e("s_mov_b64 exec, -1")
        k.label(f"{nm}_tl")
        e("s_waitcnt lgkmcnt(0)")
    ACC, BF, AR, RS = 64, 128, 160, 200
    BA, AA = 216, 224
    e("s_lshl_b32 s19, s16, 2"); e("s_add_u32 s19, s19, s18")
    for jf in range(4):
        e(f"v_xor_b32 v15, {jf}, v13"); e(f"v_lshl_add_u32 v{BA+jf}, v15, 6, v14"); e(f"v_add_u32 v{BA+4+jf}, 65536, v{BA+jf}")
    e("v_lshl_add_u32 v15, v2, 5, v10"); e("v_lshlrev_b32 v15, 7, v15"); e("v_bfe_u32 v12, v10, 1, 3"); e("v_xor_b32 v12, v12, v4")
    for q in range(4):
        e(f"v_xor_b32 v11, {2*q}, v12"); e(f"v_lshl_add_u32 v{AA+q}, v11, 4, v15"); e(f"v_add_u32 v{AA+4+q}, 65536, v{AA+q}")
    e("v_mul_u32_u24 v8, 20480, v7"); e("v_lshl_add_u32 v8, v4, 8, v8"); e("v_lshl_add_u32 v8, v5, 4, v8")
    e("s_mul_i32 s24, s19, 40960"); e(f"s_add_u32 s24, s24, {XI}")
    e("v_subrev_u32 v58, 1, v4"); e("v_not_b32 v59, v58")
    e("s_cmp_ge_u32 s17, 10"); e(f"s_cbranch_scc1 {nm}_qv")
    def mainloop(vmode):
        tagm = "v" if vmode else "q"
        acc = lambda jf: vr(ACC+16*jf, 16)
        fl = k.capture(lambda: addr_v(k, 0) if vmode else addr_qk(k, 0, 28))
        def rdB(ks, f):
            u, jf = f//4, f%4; sl = slot(ks//2)
            for t in range(2):
                off = sl + (32*(ks%2) + 16*u + 4*t)*256
                k.dsop(f"ds_read_b64_tr_b16 {vr(BF+4*f+2*t,2)}, v{BA+4*(sl>>16)+jf} offset:{off & 0xffff}", f"b{ks}_{f}")
        def rdA(ks):
            sl = slot(ks//2)
            for u in range(2): k.dsop(f"ds_read_b128 {vr(AR+8*(ks%2)+4*u,4)}, v{AA+4*(sl>>16)+2*(ks%2)+u} offset:{sl & 0xffff}", f"b{ks}_a")
        kb = [-1]
        def bars(ks):
            while kb[0] < need(ks): e("s_barrier"); kb[0] += 1
        bars(0); k.stamp(3)
        rdA(0)
        for f in range(8): rdB(0, f)
        for ks in range(20):
            for f in range(8):
                u, jf = f//4, f%4
                if f % 2 == 0: k.waitlg(f"b{ks}_{f+1}")
                a = vr(AR+8*(ks%2)+4*u, 4); b = vr(BF+4*f, 4); c = acc(jf) if (ks or u) else "0"
                if vmode: e(f"v_mfma_f32_32x32x16_bf16 {acc(jf)}, {a}, {b}, {c}")
                else:     e(f"v_mfma_f32_32x32x16_bf16 {acc(jf)}, {b}, {a}, {c}")
                if ks + 1 < 20:
                    if f == 0: bars(ks+1); rdA(ks+1)
                    rdB(ks+1, f)
                if ks >= 4: k.fill(fl, 1)
            e(f"s_cmp_eq_u32 s17, {ks % 15}"); e(f"s_cbranch_scc0 {nm}_x{tagm}{ks}")
            e(f"s_add_u32 s32, s24, {1024*ks}")
            for u in range(2): e(f"buffer_store_dwordx4 {vr(AR+8*(ks%2)+4*u,4)}, v8, s[12:15], s32 offen offset:{512*u} {SC}")
            k.label(f"{nm}_x{tagm}{ks}")
            if ks in (0, 1, 4, 9, 10, 14): k.stamp(7 + (0, 1, 4, 9, 10, 14).index(ks))
        assert not fl
        k.stamp(4)
        e(f"v_lshlrev_b32 v23, 2, v10"); e(f"v_add_u32 v23, {UT}, v23"); e("s_lshl_b32 s32, s18, 8"); e("v_add_u32 v22, s32, v23")
        if vmode: e("v_lshlrev_b32 v21, 4, v4"); e(f"s_add_u32 s32, s32, {UT}"); e("v_add_u32 v21, s32, v21")
        e("s_barrier")
        e("ds_read_b32 v48, v22 offset:1024"); e("ds_read_b32 v49, v22 offset:1152")
        for jf in range(4): e(f"ds_read_b32 v{28+2*jf}, v23 offset:{256*jf}"); e(f"ds_read_b32 v{29+2*jf}, v23 offset:{256*jf+128}")
        if vmode:
            for a_ in range(4): e(f"ds_read_b128 {vr(RS+4*a_,4)}, v21 offset:{2048+32*a_}")
        else: e("ds_read_b32 v47, v22 offset:2048")
        e("s_waitcnt lgkmcnt(0)"); k.lg = []
        e("v_and_b32 v48, v48, v58"); e("v_and_b32 v49, v49, v58")
        if not vmode: e("v_mul_f32 v47, s59, v47")
        for jf in range(4):
            if vmode: e(f"v_mfma_f32_32x32x8_bf16 {acc(jf)}, v[48:49], {vr(28+2*jf,2)}, {acc(jf)}")
            else:     e(f"v_mfma_f32_32x32x8_bf16 {acc(jf)}, {vr(28+2*jf,2)}, v[48:49], {acc(jf)}")
        k.stamp(5)
    mainloop(False)
    epi_qk(k, ACC, BF)
    k.label(f"{nm}_qv"); k.lg = []
    mainloop(True)
    epi_v(k, ACC, BF, RS)
    k.label(f"{nm}_fin5")
    k.stamp(6)
    e("s_barrier")
    signal(k, "sf", -1, 8, a0, 0, "s[12:15]")
    k.dump(13)
    e(f"s_branch {kn}_t0")
    k.label(f"{nm}_ld"); k.vm = []; k.lg = []
    e(f"s_setprio {ENV('LPRIO', '2')}")
    e("v_lshrrev_b32 v16, 4, v1"); e("v_and_b32 v17, 3, v2")
    e("v_lshl_add_u32 v18, v17, 2, v16"); e("v_mul_u32_u24 v20, 3840, v18")
    e("v_xor_b32 v18, v13, v16"); e("v_lshl_add_u32 v20, v18, 6, v20"); e("v_lshl_add_u32 v20, v6, 4, v20")
    e("v_lshrrev_b32 v18, 3, v1"); e("v_lshl_add_u32 v19, v17, 5, v18"); e("v_and_b32 v23, 7, v1")
    for i in range(4):
        e(f"v_add_u32 v42, {8*i}, v19"); e("v_bfe_u32 v43, v42, 1, 3"); e("v_xor_b32 v43, v43, v23")
        e("v_mul_u32_u24 v42, 1280, v42"); e(f"v_lshl_add_u32 v{48+i}, v43, 4, v42")
        if i: e(f"v_subrev_u32 v{48+i}, {1024*i}, v{48+i}")
    e("s_lshl_b32 s25, s17, 8"); e("s_mul_i32 s24, s16, 163840"); e("s_lshl_b32 s26, s39, 12")
    def ld1(st, n):
        if n < 4:
            e(f"s_add_u32 m0, s45, {slot(st)+16384+4096*n}"); e(f"s_add_u32 s32, s25, {(64*st+16*n)*3840}")
            k.vmop("buffer_load_dwordx4 v20, s[28:31], s32 offen lds", f"d{st}")
        else:
            e(f"s_add_u32 m0, s26, {slot(st)}"); e(f"s_add_u32 s33, s24, {128*st}")
            k.vmop(f"buffer_load_dwordx4 v{44+n}, s[8:11], s33 offen offset:{1024*(n-4)} lds", f"d{st}")
    ORD = [0, 4, 1, 5, 2, 6, 3, 7]
    def ld(st):
        for n in ORD: ld1(st, n)
    kwait(); ld(0)
    e("v_xor_b32 v15, v17, v13"); e("v_lshl_add_u32 v40, v15, 6, v14"); e("v_add_u32 v41, 65536, v40")
    e("v_and_b32 v42, 1, v16"); e("v_cmp_eq_u32 vcc, v42, v5"); e("v_mov_b32 v43, 0x3f803f80")
    for r in range(4): e(f"v_cndmask_b32 v{60+r}, 0, v43, vcc")
    k.srd(52, 4, 256)
    e("s_mul_i32 s27, s17, 163840"); e("s_add_u32 s27, s27, s45"); e(f"s_add_u32 s27, s27, {WA_I}")
    if ENV('LD1', '0'): ld(1)
    done = [0]
    def steps_of(kb):
        r = []
        while done[0] < 20 and need(done[0]) <= kb: r.append(done[0]); done[0] += 1
        return r
    def wa_store(q):
        e("s_lshl_b32 s32, s16, 13"); e("s_add_u32 s32, s32, s27")
        if q: e("s_add_u32 s32, s32, 131072")
        e("s_add_u32 s33, s32, 4096")
        for u in range(2): k.vmop(f"buffer_store_dwordx4 {vr(112+8*q+4*u,4)}, v3, s[12:15], s{32+u} offen {SC}")
    for kb in range(10):
        if kb == 5: k.stamp(5)
        k.waitvm(f"d{kb}")
        if kb == 5: k.stamp(6)
        e("s_barrier")
        if kb in (4, 5): k.stamp(2 if kb == 4 else 7)
        if kb == 0 and not ENV('LD1', '0'): ld(1)
        sl = slot(kb); todo = list(ORD) if kb + DEP < 10 else []
        nxt = lambda: ld1(kb + DEP, todo.pop(0)) if todo else None
        sts = steps_of(kb)
        for n_, ks in enumerate(sts):
            for u in range(2):
                for t in range(2):
                    e(f"ds_read_b64_tr_b16 {vr(136+8*n_+4*u+2*t,2)}, v{40+(sl>>16)} offset:{(sl + (32*(ks%2) + 16*u + 4*t)*256) & 0xffff}")
        nxt(); nxt()
        if kb == 4: k.stamp(3)
        e("s_waitcnt lgkmcnt(0)")
        mf = [(n_, ks, u) for n_, ks in enumerate(sts) for u in range(2)]
        for n_, ks, u in mf:
            e(f"v_mfma_f32_16x16x32_bf16 v[64:67], v[60:63], {vr(136+8*n_+4*u,4)}, {'v[64:67]' if ks or u else 0}")
            nxt()
        nxt(); nxt()
        if kb == 4: k.stamp(4)
        for n_, ks in enumerate(sts):
            e(f"s_cmp_eq_u32 s16, {ks % 16}"); e(f"s_cbranch_scc0 {nm}_w{ks}")
            for r in range(8): e(f"v_mov_b32 v{112+8*(ks//16)+r}, v{136+8*n_+r}")
            k.label(f"{nm}_w{ks}")
        assert not todo
        if kb == 8:
            e("v_and_b32 v24, 15, v1"); e("v_lshlrev_b32 v24, 2, v24"); e("s_mov_b32 s33, 0")
            k.label(f"{nm}_pl")
            e(f"buffer_load_dword v25, v24, s[52:55], 0 offen {SC}"); e("s_add_u32 s33, s33, 1"); e("s_waitcnt vmcnt(0)"); k.vm = []
            e("v_cmp_eq_u32 vcc, 0, v25"); e("s_cmp_ge_u32 s33, 0x20000"); e(f"s_cbranch_scc1 {nm}_px")
            e(f"s_cbranch_vccnz {nm}_pl")
            k.label(f"{nm}_px")
            e("v_lshlrev_b32 v24, 3, v10"); e("s_lshl_b32 s32, s16, 10"); e("s_lshl_b32 s33, s39, 8"); e("s_add_u32 s32, s32, s33"); e(f"s_add_u32 s32, s32, {STI}")
            k.vmop(f"buffer_load_dwordx2 v[44:45], v24, s[12:15], s32 offen {SC}", "rs")
            wa_store(0)
    k.waitvm("rs")
    stats_finish(k, 44, 45, 28, 29, 30)
    e("v_lshlrev_b32 v42, 2, v5"); e("ds_bpermute_b32 v68, v42, v64"); e("ds_bpermute_b32 v69, v42, v65"); e("v_cmp_eq_u32 vcc, 1, v7")
    split3(k, 28, 32, 36, 'm')
    e("s_waitcnt lgkmcnt(0)"); e("v_cndmask_b32 v64, v68, v69, vcc")
    split3(k, 64, 34, 36, 'u')
    e("v_lshlrev_b32 v24, 2, v10"); e("s_lshl_b32 s32, s39, 8"); e(f"s_add_u32 s32, s32, {UT}"); e("v_add_u32 v24, s32, v24")
    e("ds_write_b32 v24, v34"); e("ds_write_b32 v24, v35 offset:128"); e("ds_write_b32 v24, v32 offset:1024"); e("ds_write_b32 v24, v33 offset:1152"); e("ds_write_b32 v24, v29 offset:2048")
    e("s_waitcnt lgkmcnt(0)"); e("s_barrier")
    lwc_init(k); e("s_barrier")
    e("v_mov_b32 v44, v64")
    e("s_cmp_ge_u32 s16, 4"); e(f"s_cbranch_scc1 {nm}_le"); wa_store(1)
    e("s_cmp_eq_u32 s16, 0"); e(f"s_cbranch_scc0 {nm}_le")
    e("v_mov_b32 v45, 0"); e("v_mov_b32 v46, 0"); e("v_mov_b32 v47, 0"); e("v_lshlrev_b32 v24, 4, v10")
    e("s_lshl_b32 s32, s17, 11"); e("s_lshl_b32 s33, s39, 9"); e("s_add_u32 s32, s32, s33"); e(f"s_add_u32 s32, s32, {U_A}")
    e("s_mov_b32 exec_hi, 0"); e(f"buffer_store_dwordx4 v[44:47], v24, s[12:15], s32 offen {SC}")
    k.label(f"{nm}_le")
    e("s_mov_b64 exec, -1")
    signal(k, "sfl", -1, 8, a0, 0, "s[12:15]")
    k.dump(8)
    e(f"s_branch {kn}_t0")
    k.label(f"{nm}_ub"); k.vm = []; k.lg = []
    kwait()
    e("v_lshrrev_b32 v4, 3, v1"); e("v_lshl_add_u32 v4, v2, 4, v4"); e("v_mul_u32_u24 v5, 1280, v4"); e("v_and_b32 v6, 7, v1"); e("v_lshl_add_u32 v5, v6, 4, v5")
    e("s_mul_i32 s24, s16, 163840"); e("s_add_u32 s25, s24, 10240")
    for b_ in range(2):
        for i in range(10): k.vmop(f"buffer_load_dwordx4 {vr(24+40*b_+4*i,4)}, v5, s[8:11], s{24+b_} offen offset:{128*i}", f"x{b_}{i}")
    for j in range(8): e(f"v_mov_b32 v{8+j}, 0")
    e("v_mov_b32 v7, 0x3f803f80")
    e("v_lshlrev_b32 v16, 4, v0"); e("s_and_b32 s26, s16, 7"); e("s_lshl_b32 s26, s26, 13"); e(f"s_add_u32 s26, s26, {CNT}"); e("s_cmp_ge_u32 s16, 8"); e(f"s_cselect_b32 s27, {LS}, 0"); e("s_add_u32 s26, s26, s27")
    k.vmop(f"buffer_store_dwordx4 v[12:15], v16, s[12:15], s26 offen {SC}")
    for b_ in range(2):
        for i in range(10):
            k.waitvm(f"x{b_}{i}")
            for q in range(4):
                r = 24+40*b_+4*i+q
                e(f"v_dot2_f32_bf16 v{8+2*b_}, v{r}, v7, v{8+2*b_}"); e(f"v_dot2_f32_bf16 v{9+2*b_}, v{r}, v{r}, v{9+2*b_}")
    for dpp in ("quad_perm:[1,0,3,2]", "quad_perm:[2,3,0,1]", "row_half_mirror"):
        for q in range(4): e(f"v_add_f32_dpp v{8+q}, v{8+q}, v{8+q} {dpp} row_mask:0xf bank_mask:0xf")
    e("v_lshlrev_b32 v4, 3, v4"); e("s_lshl_b32 s26, s16, 10"); e(f"s_add_u32 s26, s26, {STI}")
    e("v_cmp_eq_u32 vcc, 0, v6"); k.srd(52, 4, 256); e("s_mov_b64 exec, vcc")
    e(f"buffer_store_dwordx2 v[8:9], v4, s[12:15], s26 offen {SC}"); e(f"buffer_store_dwordx2 v[10:11], v4, s[12:15], s26 offen offset:64 {SC}")
    e("s_mov_b64 exec, -1"); lwc_init(k)
    e("s_waitcnt vmcnt(0)"); e("s_barrier")
    e("s_cmp_ge_u32 s18, 4"); e(f"s_cbranch_scc1 {nm}_u2")
    codepf("u")
    e("s_cmp_eq_u32 s18, 0"); e(f"s_cbranch_scc0 {nm}_u2")
    e("v_mov_b32 v4, 0"); e("v_mov_b32 v5, 1"); e("s_lshl_b32 s26, s16, 2"); e("s_mov_b64 exec, 1")
    e(f"buffer_store_dword v5, v4, s[52:55], s26 offen {SC}")
    e("s_mov_b64 exec, 0xffff"); e("v_lshlrev_b32 v4, 2, v1"); e("s_mov_b32 s33, 0")
    k.label(f"{nm}_u1")
    e(f"buffer_load_dword v5, v4, s[52:55], 0 offen {SC}"); e("s_add_u32 s33, s33, 1"); e("s_waitcnt vmcnt(0)")
    e("v_cmp_eq_u32 vcc, 0, v5"); e("s_cmp_ge_u32 s33, 0x20000"); e(f"s_cbranch_scc1 {nm}_u2"); e(f"s_cbranch_vccnz {nm}_u1")
    k.label(f"{nm}_u2")
    e("s_mov_b64 exec, -1"); e("s_waitcnt vmcnt(0)")

def k_main():
    k = KB(NAME + "_kernel"); e = k.e; name = k.name
    ph_front(k)
    k.label(f"{name}_t0")
    e("s_load_dwordx2 s[46:47], s[0:1], 48"); e("s_mov_b32 s3, 0")
    k.srd(8, 6, 2*LS)
    e("s_waitcnt lgkmcnt(0)")
    k.srd(60, 46, S*D*2)
    k.label(f"{name}_top")
    k.vm = []; k.lg = []
    e("s_setprio 0"); k.stamp(0); k.rstamp(1)
    ph_attn(k)
    def a1():
        e("s_lshl_b32 s48, s17, 3"); e("s_and_b32 s49, s16, 1"); e("s_add_u32 s48, s48, s49"); e("s_lshl_b32 s48, s48, 8"); e(f"s_add_u32 s48, s48, {C1}")
        e(f"v_lshlrev_b32 v{PV_+1}, 9, v1"); e("s_mov_b64 s[56:57], 15")
    e("s_cmp_ge_u32 s18, 4"); e(f"s_cbranch_scc1 {name}_ld")
    signal(k, "s1", 0, 8, a1)
    def c1():
        e("s_lshl_b32 s48, s16, 9"); e(f"s_add_u32 s48, s48, {C1}")
        e(f"v_lshlrev_b32 v{PV_+1}, 8, v1"); e(f"v_mov_b32 v{PV_+2}, 16"); e("s_mov_b64 s[56:57], 3")
    proj_c(k, "p2", OT, XI, XM, STM, False, c1, 0, 6)
    def a2():
        e("s_lshr_b32 s48, s16, 1"); e("s_lshl_b32 s48, s48, 9"); e(f"s_add_u32 s48, s48, {C2}")
        e(f"v_mul_u32_u24 v{PV_+1}, 768, v1"); e("s_bitcmp1_b32 s16, 0"); e("s_cselect_b64 s[56:57], 3, 1")
    signal(k, "s2", 1, 4, a2)
    qkvb_c(k, XM, STM, 9)
    def a3(): one(k, 0); e("s_lshl_b32 s48, s16, 8"); e(f"s_add_u32 s48, s48, {C3}")
    signal(k, "s3", 0, 4, a3)
    def c3(): one(k, 16); e("s_lshr_b32 s48, s16, 1"); e("s_lshl_b32 s48, s48, 8"); e(f"s_add_u32 s48, s48, {C3}")
    proj_c(k, "p4", OBT, XM, XI, STI, True, c3, 0, 12)
    def a4(): one(k, 0); e("s_lshr_b32 s48, s16, 1"); e("s_lshl_b32 s48, s48, 8"); e(f"s_add_u32 s48, s48, {C4}")
    signal(k, "s4", 1, 4, a4)
    k.dump(15, "1")
    ids_mt(k)
    e("s_cmp_ge_u32 s17, 15"); e(f"s_cbranch_scc1 {name}_idle")
    qkva_c(k, XI, STI, 0, C4, [7], 3)
    k.stamp(6)
    e("s_barrier")
    def a5(): e("s_lshl_b32 s48, s17, 11"); e(f"s_add_u32 s48, s48, {LS + C0}"); e(f"v_lshlrev_b32 v{PV_+1}, 8, v1"); e("s_mov_b64 s[56:57], 0xff")
    signal(k, "s5", -1, 4, a5)
    k.dump(7, "3")
    k.label(f"{name}_t1")
    e("s_mov_b32 s3, 1"); e(f"s_add_u32 s8, s8, {LS}"); e("s_addc_u32 s9, s9, 0"); e(f"s_mov_b32 s10, {LS}")
    e(f"s_branch {name}_top")
    k.label(f"{name}_idle")
    for _ in range(4): e("s_barrier")
    e(f"s_branch {name}_t1")
    k.label(f"{name}_ld"); k.vm = []; k.lg = []
    if os.environ.get("FOC") == "at": e("s_add_u32 s84, s3, 4"); k.dump(8, "s84")
    e(f"s_setprio {ENV('LPRIO', '2')}")
    w = proj_l(k, WOA_I, WB_I, OT, a1, 0)
    qkvb_l(k, XM, STM, w)
    w = proj_l(k, WOB_I, WA_I, OBT, None, 0, True)
    ids_mt(k)
    atouch_pre(k, XI)
    e("s_barrier")
    e("buffer_load_dword v20, v21, s[12:15], s51 offen")
    w.one(39); e("s_waitcnt vmcnt(0)"); e("s_barrier")
    e("s_barrier"); lwc_init(k); e("s_barrier")
    e(f"s_branch {name}_t1")
    k.label(f"{name}_end"); e("s_endpgm")
    k.tail()
    return k.text(256 if STAMP else 244, 256 if STAMP else 244)

def build():
    hdr = open("cdna_kernels/" + NAME + ".s.ref").read().split("; Override launch")[0]
    out = hdr + "; @launch grid=(256,1,1) block=(512,1,1) lds=163840\n"
    out += '.amdgcn_target "amdgcn-amd-amdhsa--gfx950"\n'
    out += k_main()
    out += ".text\ncode_end:\n"
    return out

if __name__ == "__main__":
    dst = sys.argv[1] if len(sys.argv) > 1 else "cdna_kernels/" + NAME + ".s"
    open(dst, "w").write(build())
    print("wrote", dst)
```

```python
import sys, math
from lint import lint, fix

NAME = "interleave_layers__softmax_full_mha__sliding_local_dilated__prompt"
S, D, H, DH = 2048, 640, 32, 20
XS = S*D*2
IMG = H*64*2560
QI = H*64*1280
CNT = 0
C1 = CNT; C2 = C1 + 64*256; C3 = C2 + 34*256; C4 = C3 + 16*256; C0 = C4 + 16*256
LS = 65536
CS = LS + C4
XI = 2*LS; STI = XI + XS
QIMG = STI + S*64; KVIMG = QIMG + QI
OT = KVIMG + IMG; OBT = OT + XS; XM = OBT + XS
STM = XM + XS
U_A = STM + S*64
U_B = U_A + 32768
WA_I = U_B + 163840
WOA_I = WA_I + 15*163840
WB_I = WOA_I + 819200
WOB_I = WB_I + 16*163840
STAMPS = WOB_I + 819200
WS_END = STAMPS + 16*262144
import os
STAMP = int(os.environ.get("STAMP", "0"))
ATTN_WAVES = 8
AV = os.environ.get("AV", "")
CSCALE = (DH ** -0.5) * math.log2(math.e)
import struct
def fbits(x): return "0x%08x" % struct.unpack("<I", struct.pack("<f", x))[0]

FM = [(0,16),(32,48),(80,96),(112,128),(64,144)]
def FX(ks, t):
    return 160*(ks//5) + FM[ks%5][t]

class KB:
    def __init__(s, name):
        s.name = name; s.L = []; s.vm = []; s.lg = []; s.cap = None
    def e(s, line):
        if s.cap is not None: s.cap.append(('e', line, None))
        else: s.L.append("    " + line)
    def capture(s, fn):
        s.cap = []; fn(); c = s.cap; s.cap = None
        return [x for x in c if not (x[0] == 'e' and x[1].startswith('s_nop'))]
    def fill(s, lst, n=1):
        for _ in range(n):
            if not lst: return
            kind, a, b = lst.pop(0)
            if kind == 'e':
                s.e(a)
                if a.startswith('s_cmp'):
                    while lst and lst[0][0] == 'e' and lst[0][1].startswith('s_cselect'): s.e(lst.pop(0)[1])
            elif kind == 'ds': s.dsop(a, b)
            elif kind == 'wvm': s.waitvm(a)
            elif kind == 'wlg': s.waitlg(a)
    def c(s, txt): s.L.append("    ; " + txt)
    def label(s, l): s.L.append(l + ":")
    def vmop(s, line, tag=None): s.e(line); s.vm.append(tag); assert len(s.vm) <= 63, (s.name, len(s.vm))
    def dsop(s, line, tag=None):
        if s.cap is not None: s.cap.append(('ds', line, tag)); return
        s.e(line); s.lg.append(tag)
    def _n(s, lst, tag):
        idx = max(i for i, t in enumerate(lst) if t == tag)
        return idx
    def waitvm(s, tag):
        if s.cap is not None: s.cap.append(('wvm', tag, None)); return
        if tag not in s.vm: return
        i = s._n(s.vm, tag); n = len(s.vm) - 1 - i
        s.e(f"s_waitcnt vmcnt({n})"); s.vm = s.vm[i+1:]
    def waitlg(s, tag):
        if s.cap is not None: s.cap.append(('wlg', tag, None)); return
        if tag not in s.lg: return
        i = s._n(s.lg, tag); n = len(s.lg) - 1 - i
        if n > 15: n = 15; i = len(s.lg) - 1 - n
        s.e(f"s_waitcnt lgkmcnt({n})"); s.lg = s.lg[i+1:]
    def waitall(s):
        s.e("s_waitcnt vmcnt(0) lgkmcnt(0)"); s.vm = []; s.lg = []
    def srd(s, r, base, nbytes):
        s.e(f"s_mov_b32 s{r}, s{base}")
        s.e(f"s_and_b32 s{r+1}, s{base+1}, 0xffff")
        s.e(f"s_mov_b32 s{r+2}, {nbytes}")
        s.e(f"s_mov_b32 s{r+3}, 0x20000")
    def stamp(s, i):
        if not STAMP: return
        op = "s_memrealtime" if os.environ.get("RT") else "s_memtime"
        s.e(f"{op} s[{64+2*i}:{65+2*i}]" if i < 10 else f"{op} s[{72+2*i}:{73+2*i}]")
    def rstamp(s, i):
        if not STAMP: return
        s.e(f"s_memrealtime s[{64+2*i}:{65+2*i}]")
    def dump(s, n=8, slot="0", wave="s18"):
        if not STAMP: return
        e = s.e
        if os.environ.get("DBG"):
            keep = {"0": [(1, 246), (3, 247), (6, 248)], "1": [(2, 249), (5, 250), (14, 251)], "3": [(6, 252)], "2": [(2, 253), (5, 254), (14, 255)]}[slot]
            e("s_waitcnt lgkmcnt(0)")
            if n < 7 or (slot == "0" and n == 8): return
            for i, v in keep: e(f"v_mov_b32 v{v}, s{64+2*i if i < 10 else 72+2*i}")
            if slot == "2":
                e(f"s_cmp_eq_u32 s2, {os.environ['DBG']}"); e("s_cbranch_scc0 dbg_skip"); e("s_cmp_eq_u32 s18, 0"); e("s_cbranch_scc0 dbg_skip")
                e("s_load_dwordx2 s[84:85], s[0:1], 56"); e("s_memrealtime s[86:87]"); e("s_waitcnt lgkmcnt(0)")
                s.srd(88, 84, 256); e("s_mov_b64 exec, 1"); e("v_mov_b32 v0, 0"); e("v_mov_b32 v245, s86"); e("v_sub_u32 v245, v245, v246")
                for i in range(9):
                    e(f"v_sub_u32 v{247+i}, v{247+i}, v246"); e(f"buffer_store_dword v{247+i}, v0, s[88:91], 0 offen offset:{4*i}")
                e("buffer_store_dword v245, v0, s[88:91], 0 offen offset:36")
                s.label("dbg_skip")
            return
        e("s_memrealtime s[86:87]"); e("s_waitcnt lgkmcnt(0)")
        e("s_mov_b64 exec, 1")
        e(f"s_lshl_b32 s84, {slot}, 18")
        e("s_lshl_b32 s85, s2, 3"); e(f"s_add_u32 s85, s85, {wave}"); e("s_lshl_b32 s85, s85, 6"); e(f"s_add_u32 s85, s85, {STAMPS}"); e("s_add_u32 s85, s85, s84")
        e("v_mov_b32 v244, 0")
        for i in range(n):
            e(f"v_mov_b32 v245, s{64+2*i if i < 10 else 72+2*i}")
            e(f"buffer_store_dword v245, v244, s[12:15], s85 offen offset:{4*i}")
        e("v_mov_b32 v245, s86"); e("buffer_store_dword v245, v244, s[12:15], s85 offen offset:60")
        e("s_mov_b64 exec, -1")
    def text(s, vgpr, accum, sgpr=102):
        s.L, added = fix(s.L)
        if os.environ.get("V"): print(s.name, "auto nops:", added, "lines:", len(s.L))
        out = [".text", f".globl {s.name}", ".p2align 8", f".type {s.name},@function", f"{s.name}:"]
        out += s.L
        out += ['.section .rodata,"a"', ".p2align 6", f".amdhsa_kernel {s.name}",
                f"  .amdhsa_next_free_vgpr {vgpr}", f"  .amdhsa_next_free_sgpr {sgpr}", f"  .amdhsa_accum_offset {accum}",
                "  .amdhsa_group_segment_fixed_size 0", "  .amdhsa_kernarg_size 72", "  .amdhsa_user_sgpr_count 2",
                "  .amdhsa_user_sgpr_kernarg_segment_ptr 1", "  .amdhsa_system_sgpr_workgroup_id_x 1", ".end_amdhsa_kernel"]
        nb = lint(s.L, s.name)
        assert nb == 0, f"{nb} hazards in {s.name}"
        return "\n".join(out) + "\n"
    def allred32(s, op, v, t):
        s.e(f"v_mov_b32 v{t}, v{v}"); s.e("s_nop 1")
        s.e(f"v_permlane32_swap_b32 v{v}, v{t}"); s.e("s_nop 1")
        s.e(f"{op} v{v}, v{v}, v{t}")
    def allred16(s, op, v, t):
        s.e(f"v_mov_b32 v{t}, v{v}"); s.e("s_nop 1")
        s.e(f"v_permlane16_swap_b32 v{v}, v{t}"); s.e("s_nop 1")
        s.e(f"{op} v{v}, v{v}, v{t}")

def vr(a, n): return f"v[{a}:{a+n-1}]" if n > 1 else f"v{a}"
def ar(a, n): return f"a[{a}:{a+n-1}]" if n > 1 else f"a{a}"

def stats_finish(k, s1, s2, mean, rstd, t):
    e = k.e
    e(f"v_mul_f32 v{mean}, {fbits(1.0/D)}, v{s1}")
    e(f"v_mul_f32 v{t}, {fbits(1.0/D)}, v{s2}")
    e(f"v_fma_f32 v{t}, -v{mean}, v{mean}, v{t}")
    e(f"v_max_f32 v{t}, 0, v{t}")
    e(f"v_add_f32 v{t}, {fbits(1e-5)}, v{t}")
    e(f"v_rsq_f32 v{rstd}, v{t}")
    e("s_nop 0")

def split3(k, src, d, t, kind, maskv=None):
    e = k.e
    if kind == 'm':
        e(f"v_xor_b32 v{t+1}, 0x80000000, v{src}"); src = t+1
    e(f"v_and_b32 v{t}, 0xffff0000, v{src}")
    e(f"v_sub_f32 v{t+2}, v{src}, v{t}")
    if kind == 'u':
        e(f"v_cvt_pk_bf16_f32 v{d}, v{t}, v{t+2}")
        e(f"v_lshrrev_b32 v{d+1}, 16, v{t}")
    else:
        e(f"v_cvt_pk_bf16_f32 v{d}, v{t}, v{t}")
        e(f"v_cvt_pk_bf16_f32 v{d+1}, v{t+2}, 0")
    if maskv is not None:
        e(f"v_and_b32 v{d}, v{d}, v{maskv}"); e(f"v_and_b32 v{d+1}, v{d+1}, v{maskv}")

SC = "sc1"
RS_ = lambda off: "s[12:15]" if off >= 2*LS else "s[8:11]"
EARLY = int(os.environ.get('EARLY', '6'))
ENV = lambda n, d: int(os.environ.get(n, d))

def ids_mt(k):
    k.e("s_lshl_b32 s22, s20, 1"); k.e("s_and_b32 s23, s21, 1"); k.e("s_add_u32 s16, s22, s23"); k.e("s_lshr_b32 s17, s21, 1")
def ids_rt(k):
    k.e("s_lshl_b32 s22, s20, 2"); k.e("s_and_b32 s23, s21, 3"); k.e("s_add_u32 s16, s22, s23"); k.e("s_lshr_b32 s17, s21, 2")

LW = 163824
PV_ = 240
def lw_init(k):
    e = k.e
    e(f"v_mov_b32 v{PV_+3}, {LW}")
    for i in range(3): e(f"v_mov_b32 v{PV_+i}, 0")
    e(f"ds_write_b96 v{PV_+3}, v[{PV_}:{PV_+2}]"); e(f"ds_write_b32 v{PV_+3}, v{PV_} offset:12")

def lwc_init(k):
    k.e(f"v_mov_b32 v{PV_+3}, {LW-8}"); k.e(f"v_mov_b32 v{PV_}, 0"); k.e(f"v_mov_b32 v{PV_+1}, 0")
    k.e(f"ds_write_b64 v{PV_+3}, v[{PV_}:{PV_+1}]"); k.e("s_waitcnt lgkmcnt(0)")

def signal(k, tag, word, nw, addr_code, younger=0, srd="s[8:11]"):
    e = k.e
    addr_code()
    e(f"v_mov_b32 v{PV_+3}, {LW-8}"); e(f"v_mov_b32 v{PV_}, 1")
    e("s_mov_b64 exec, 1")
    assert younger == 0
    e("s_waitcnt vmcnt(0)"); k.vm = []
    if tag == os.environ.get("FOC"): k.stamp(2)
    e(f"ds_add_rtn_u32 v{PV_+2}, v{PV_+3}, v{PV_} offset:{8*word+8}")
    e("s_waitcnt lgkmcnt(0)"); k.lg = []
    e(f"v_readfirstlane_b32 s49, v{PV_+2}")
    e("s_mov_b64 exec, s[56:57]")
    e(f"s_cmp_eq_u32 s49, {nw-1}"); e(f"s_cbranch_scc0 {k.name}_{tag}_sg")
    e(f"buffer_atomic_add v{PV_}, v{PV_+1}, {srd}, s48 offen {SC}")
    if os.environ.get("FOC2") == tag: k.stamp(4)
    k.label(f"{k.name}_{tag}_sg")
    e("s_mov_b64 exec, -1")

def wait_go(k, tag, word, poll_code):
    e = k.e; nm = f"{k.name}_{tag}"
    e(f"v_mov_b32 v{PV_+3}, {LW-8}"); e("s_mov_b32 s49, 0")
    if poll_code:
        e("s_cmp_eq_u32 s18, 0"); e(f"s_cbranch_scc0 {nm}_sp")
        poll_code()
        e("s_mov_b64 exec, s[56:57]")
        if os.environ.get("FOC") == "g" + tag: k.stamp(2)
        k.label(f"{nm}_pl")
        e(f"v_mov_b32 v{PV_}, 0")
        e(f"buffer_atomic_add v{PV_}, v{PV_+1}, s[8:11], s48 offen sc0 sc1")
        e("s_add_u32 s49, s49, 1")
        e("s_waitcnt vmcnt(0)")
        e(f"v_cmp_ge_u32 vcc, v{PV_}, v{PV_+2}")
        e("s_cmp_ge_u32 s49, 0x20000"); e(f"s_cbranch_scc1 {nm}_px")
        e("s_cmp_eq_u64 vcc, exec"); e(f"s_cbranch_scc0 {nm}_pl")
        k.label(f"{nm}_px")
        if os.environ.get("FOC") == "g" + tag: e("s_add_u32 s70, s64, s49")
        e("s_mov_b64 exec, 1"); e(f"v_mov_b32 v{PV_}, 1")
        e(f"ds_write_b32 v{PV_+3}, v{PV_} offset:{8*word+12}")
        e(f"s_branch {nm}_go")
    k.label(f"{nm}_sp")
    e("s_sleep 1")
    e(f"ds_read_b32 v{PV_}, v{PV_+3} offset:{8*word+12}")
    e("s_add_u32 s49, s49, 1")
    e("s_waitcnt lgkmcnt(0)")
    e(f"v_readfirstlane_b32 s44, v{PV_}")
    e("s_cmp_ge_u32 s49, 0x400000"); e(f"s_cbranch_scc1 {nm}_go")
    e("s_cmp_eq_u32 s44, 0"); e(f"s_cbranch_scc1 {nm}_sp")
    k.label(f"{nm}_go")
    e("s_mov_b64 exec, -1")

class Wdma:
    def __init__(s, k, n, base=50, tag="w"): s.k = k; s.n = n; s.i = 0; s.base = base; s.tag = tag
    def one(s, i):
        s.k.e(f"s_add_u32 m0, s45, {4096*i}"); s.k.e(f"s_add_u32 s32, s{s.base}, {4096*i}")
        s.k.vmop(f"buffer_load_dwordx4 v3, s[12:15], s32 offen {SC} lds", f"{s.tag}{i}")
    def go(s, upto):
        while s.i < min(upto, s.n): s.one(s.i); s.i += 1
    def rng(s, a, b, thr=0):
        for i in range(a, b):
            s.one(i)
            if thr and len(s.k.vm) >= thr: s.k.e(f"s_waitcnt vmcnt({thr-1})"); s.k.vm = s.k.vm[len(s.k.vm)-thr+1:]

SIDE_SV = 152; SIDE_D = 160; SIDE_U = 192
def side_setup(k):
    e = k.e; nm = k.name
    e("s_load_dwordx4 s[84:87], s[0:1], 32"); e("s_load_dwordx2 s[88:89], s[0:1], 16")
    e("s_mul_i32 s49, s2, 3"); e("s_add_u32 s49, s49, s18"); e("s_sub_u32 s49, s49, 4")
    e("s_sub_u32 s32, s18, 4"); e("s_cmp_lt_u32 s32, 3"); e("s_cselect_b32 s49, s49, 959"); e("s_cmp_eq_u32 s3, 0"); e("s_cselect_b32 s49, s49, 959")
    e("s_lshl_b32 s35, s39, 13"); e("s_add_u32 s35, s35, 112640")
    e("s_mul_i32 s36, s49, 3277"); e("s_lshr_b32 s36, s36, 16"); e("s_mul_i32 s37, s36, 20"); e("s_sub_u32 s37, s49, s37")
    e("v_and_b32 v140, 15, v1"); e("v_lshrrev_b32 v141, 2, v140"); e("v_and_b32 v142, 3, v1")
    e("s_waitcnt lgkmcnt(0)")
    SV = SIDE_SV
    e("v_lshrrev_b32 v136, 4, v1")
    for r in list(range(SV, SV+5)) + list(range(144, 152)): e(f"v_mov_b32 v{r}, 0")
    e("s_mov_b32 s5, 0")
    e("s_mov_b32 s53, 0x7ff00000"); e("s_mov_b32 s54, s53"); e("s_mov_b32 s58, s53")
    e("s_cmp_ge_u32 s49, 320"); e(f"s_cbranch_scc1 {nm}_ss1")
    k.srd(88, 84, D*3*D*2)
    e(f"s_mul_i32 s5, s37, {32*3840}"); e("s_mul_i32 s32, s36, 80"); e("s_add_u32 s5, s5, s32")
    e("v_lshlrev_b32 v137, 2, v136"); e("v_xor_b32 v137, v137, v140"); e("v_min_u32 v137, 14, v137")
    e("v_mul_u32_u24 v138, 52, v137"); e("v_lshrrev_b32 v138, 8, v138"); e("v_mul_u32_u24 v138, 1200, v138"); e("v_lshl_add_u32 v138, v137, 4, v138")
    e("v_mul_u32_u24 v137, 3840, v136"); e(f"v_add_u32 v{SV}, v138, v137")
    e("v_lshrrev_b32 v137, 5, v1"); e("v_lshl_add_u32 v137, v137, 3, v141"); e("v_lshlrev_b32 v137, 8, v137"); e("v_and_b32 v138, 1, v136")
    e("v_lshl_add_u32 v137, v138, 5, v137"); e("v_lshl_add_u32 v137, v142, 3, v137"); e("v_add_u32 v137, s35, v137")
    for jf in range(4): e(f"v_xor_b32 v139, {jf}, v141"); e(f"v_lshl_add_u32 v{144+jf}, v139, 6, v137")
    e("s_mul_i32 s53, s36, 163840"); e("s_lshl_b32 s54, s37, 13"); e("s_add_u32 s53, s53, s54"); e(f"s_add_u32 s53, s53, {WB_I}"); e("s_add_u32 s54, s53, 4096"); e("s_mov_b32 s58, s54")
    e(f"s_branch {nm}_ss2")
    k.label(f"{nm}_ss1")
    e("s_cmp_ge_u32 s36, 24"); e("s_cselect_b32 s32, s86, s88"); e("s_cselect_b32 s33, s87, s89")
    k.srd(88, 32, D*D*2)
    e("s_cmp_ge_u32 s49, 640"); e(f"s_cbranch_scc1 {nm}_ss2")
    e("s_and_b32 s32, s36, 7"); e("s_mul_i32 s32, s32, 160")
    e("s_mul_i32 s5, s37, 40"); e("s_sub_u32 s34, s37, 16"); e("s_mul_i32 s34, s34, 160"); e("s_add_u32 s34, s34, 16")
    e("s_cmp_lt_u32 s37, 16"); e("s_cselect_b32 s5, s5, s34"); e("s_cselect_b32 s33, 4, 2"); e("s_cselect_b32 s34, 4, 16")
    e("s_mul_i32 s5, s5, 1280"); e("s_add_u32 s5, s5, s32")
    for i in range(5):
        e(f"v_add_u32 v137, {64*i}, v1"); e("v_mul_u32_u24 v138, 6554, v137"); e("v_lshrrev_b32 v138, 16, v138")
        e("v_lshrrev_b32 v139, s33, v138"); e("v_mul_u32_u24 v139, s34, v139"); e("v_mul_u32_u24 v139, 1280, v139")
        e("v_mul_u32_u24 v138, 1120, v138"); e("v_add_u32 v139, v139, v138"); e(f"v_lshl_add_u32 v{SV+i}, v137, 4, v139")
    e("v_lshlrev_b32 v137, 2, v136"); e("s_mov_b32 s32, 2560")
    e("s_cmp_ge_u32 s36, 24"); e(f"s_cbranch_scc1 {nm}_sf3"); e("s_cmp_ge_u32 s37, 16"); e(f"s_cbranch_scc1 {nm}_sf3")
    e("v_lshrrev_b32 v137, 1, v136"); e("v_lshlrev_b32 v137, 4, v137"); e("v_and_b32 v138, 1, v136"); e("v_lshl_add_u32 v137, v138, 2, v137"); e("s_mov_b32 s32, 1280")
    k.label(f"{nm}_sf3")
    e("v_add_u32 v137, v137, v141"); e("v_mul_u32_u24 v137, 160, v137"); e("v_add_u32 v137, s35, v137")
    e("s_and_b32 s33, s36, 1"); e("s_lshl_b32 s34, s33, 5"); e("s_xor_b32 s33, s33, 1"); e("s_lshl_b32 s33, s33, 7")
    e("v_lshl_add_u32 v144, v142, 4, v137"); e("v_add_u32 v144, s34, v144"); e("v_add_u32 v145, s32, v144")
    e("v_lshl_add_u32 v146, v142, 3, v137"); e("v_add_u32 v146, s33, v146"); e("v_add_u32 v147, s32, v146")
    e("s_cmp_ge_u32 s36, 24"); e(f"s_cselect_b32 s53, {WOB_I-WOA_I}, 0"); e("s_and_b32 s54, s36, 7"); e("s_mul_i32 s54, s54, 102400"); e("s_add_u32 s53, s53, s54")
    e("s_mul_i32 s54, s37, 5120"); e("s_add_u32 s53, s53, s54"); e(f"s_add_u32 s53, s53, {WOA_I}"); e("s_add_u32 s54, s53, 4096")
    k.label(f"{nm}_ss2")
    e("s_lshl_b32 s38, s49, 9"); e(f"s_add_u32 s38, s38, {U_B}"); e("s_cmp_ge_u32 s49, 320"); e("s_cselect_b32 s38, 0x7ff00000, s38")
    e("v_lshlrev_b32 v143, 2, v1")
    e("s_cmp_lt_u32 s49, 640"); e("s_cselect_b32 s4, 2, 0"); e("s_cmp_lt_u32 s49, 320"); e("s_cselect_b32 s4, 1, s4")
    e("s_and_b32 s55, s49, 15"); e("s_lshl_b32 s55, s55, 8"); e(f"s_add_u32 s55, s55, {CS}")

def ph_attn(k):
    e = k.e; nm = k.name
    KA, KT, VA = 4, 5, 6
    Q = [8, 14]; KF = [24, 32]; VF = [40, 48]; SS = [56, 72]; P = 88; O = [96, 112]; PF = 208
    SCR = 137216; TOP = 112640
    ids_rt(k)
    e("v_and_b32 v3, 31, v1"); e("v_lshrrev_b32 v7, 5, v1")
    e("v_lshlrev_b32 v22, 4, v1"); e("v_lshlrev_b32 v23, 3, v3")
    e("s_mul_i32 s19, s16, 163840")
    e("s_lshr_b32 s41, s18, 2")
    e("s_lshl_b32 s23, s17, 3"); e("s_lshl_b32 s22, s39, 1"); e("s_add_u32 s23, s23, s22")
    e("s_add_u32 s23, s23, s41")
    e("s_lshr_b32 s22, s19, 1"); e(f"s_add_u32 s22, s22, {QIMG}")
    e("s_mul_i32 s24, s23, 1280"); e("s_add_u32 s24, s24, s22"); e("s_xor_b32 s40, s23, 1"); e("s_mul_i32 s40, s40, 1280"); e("s_add_u32 s40, s40, s22")
    e("s_mul_i32 s42, s41, 2560"); e(f"s_add_u32 s42, s42, {TOP}")
    e("s_lshl_b32 s25, s18, 10")
    e(f"s_add_u32 s26, s19, {KVIMG}")
    rnd = [0]
    def dma():
        i = rnd[0]; rnd[0] += 1
        if i == 6:
            e("s_cmp_lt_u32 s18, 2"); e("s_cselect_b32 s27, 163840, 0"); e("s_add_u32 s27, s27, s25"); e("s_sub_u32 m0, s27, 2048")
        else: e(f"s_add_u32 m0, s25, {(TOP + 8192*i) if i < 6 else 8192*i - 51200}")
        e("s_add_u32 s27, s26, m0")
        k.vmop(f"buffer_load_dwordx4 v22, s[12:15], s27 offen {SC} lds", f"i{i}")
    e(f"v_add_u32 v{KA}, s42, v22")
    e(f"v_add_u32 v{KT}, s42, v23"); e(f"v_add_u32 v{KT}, 1024, v{KT}")
    if ENV('KTZ', '1'): e(f"v_lshl_add_u32 v{KT}, v7, 20, v{KT}")
    e("v_mul_u32_u24 v21, 20, v7"); e("v_add_u32 v21, v21, v3"); e("v_lshlrev_b32 v21, 4, v21")
    e("v_add_u32 v21, 1280, v21"); e(f"v_add_u32 v{VA}, s42, v21")
    e("s_mov_b32 s28, 0x000fffff"); e("s_mov_b32 s29, 0x000fffff")
    e("v_cmp_eq_u32 vcc, 20, v3"); e("v_mov_b32 v20, 0x3f803f80"); e("s_nop 0")
    e("v_cndmask_b32 v20, 0, v20, vcc")
    for r in range(16): e(f"v_mov_b32 v{VF[0]+r}, v20")
    for r in range(32): e(f"v_mov_b32 v{O[0]+r}, 0")
    for r in range(4): e(f"v_mov_b32 v{P+4+r}, 0")
    e("v_subrev_u32 v30, 1, v7")
    e("s_lshl_b32 s43, s21, 2"); e("s_add_u32 s43, s43, s39"); e("s_mul_i32 s43, s43, 27648"); e(f"s_add_u32 s43, s43, {WOA_I}")
    e("s_mul_i32 s32, s23, 40960"); e(f"s_add_u32 s32, s32, {OT}")
    e("s_lshr_b32 s51, s16, 1"); e("s_lshl_b32 s51, s51, 10"); e("s_and_b32 s34, s16, 1"); e("s_lshl_b32 s34, s34, 9")
    e("s_add_u32 s51, s51, s34"); e("s_add_u32 s51, s51, s32")
    e("s_lshr_b32 s52, s16, 3"); e("s_add_u32 s52, s52, 16"); e("s_lshl_b32 s52, s52, 10"); e("s_add_u32 s52, s52, s32")
    e("s_and_b32 s35, s16, 3"); e("s_lshl_b32 s35, s35, 8"); e("s_add_u32 s52, s52, s35")
    e("s_bfe_u32 s35, s16, 0x10002"); e("s_lshl_b32 s35, s35, 3"); e("s_add_u32 s52, s52, s35")
    e("v_lshrrev_b32 v38, 4, v3"); e("v_mul_u32_u24 v38, 20480, v38"); e("v_and_b32 v39, 15, v3")
    e("v_lshl_add_u32 v38, v39, 4, v38"); e("v_lshl_add_u32 v39, v7, 8, v38")
    e("s_mul_i32 s32, s18, 3072"); e("s_xor_b32 s33, s18, 4"); e("s_mul_i32 s33, s33, 3072")
    e(f"v_add_u32 v132, {SCR}, v22"); e("v_add_u32 v133, s33, v132"); e("v_add_u32 v132, s32, v132")
    def c0(nl):
        e("s_lshl_b32 s48, s17, 8"); e(f"s_add_u32 s48, s48, {C0}"); e(f"v_mov_b32 v{PV_+2}, 16")
        e("s_mul_i32 s32, s16, 20"); e("s_add_u32 s33, s32, 19"); e("s_lshr_b32 s32, s32, 7"); e("s_lshr_b32 s33, s33, 7"); e("s_sub_u32 s33, s33, s32")
        e(f"v_lshrrev_b32 v{PV_+1}, 1, v1"); e(f"v_mul_u32_u24 v{PV_+1}, 5, v{PV_+1}"); e(f"v_and_b32 v{PV_}, s33, v1"); e(f"v_add3_u32 v{PV_+1}, v{PV_+1}, v{PV_}, s32")
        e(f"v_lshlrev_b32 v{PV_+1}, 11, v{PV_+1}"); e("s_mov_b64 s[56:57], 63")
    side_setup(k)
    e("s_lshl_b32 s59, s2, 2"); e("s_add_u32 s59, s59, s39"); e("s_mul_i32 s50, s59, 2560"); e(f"s_mul_i32 s59, s59, {-(-(U_A - OT) // 1024 // 128) * 128}"); e(f"s_add_u32 s59, s59, {OT}")
    e("v_lshlrev_b32 v234, 7, v1")
    e("v_lshlrev_b32 v134, 11, v1"); e("s_lshl_b32 s32, s17, 8"); e(f"s_add_u32 s32, s32, {C0}"); e("v_add_u32 v134, s32, v134")
    e("v_lshlrev_b32 v135, 8, v1"); e(f"v_add_u32 v135, {CS - 4096}, v135"); e("v_cmp_gt_u32 vcc, 16, v1")
    e("v_cndmask_b32 v134, v135, v134, vcc"); e("v_cndmask_b32 v131, 40, 16, vcc"); e("v_mov_b32 v135, 64")
    wait_go(k, "t", -1, lambda: c0(6))
    k.stamp(2)
    dma()
    for x in range(2):
        k.vmop(f"buffer_load_dwordx4 {vr(Q[x],4)}, v22, s[12:15], s{(24,40)[x]} offen {SC}", "q")
        k.vmop(f"buffer_load_dwordx2 {vr(Q[x]+4,2)}, v23, s[12:15], s{(24,40)[x]} offen offset:1024 {SC}", "q")
    for _ in range(3): dma()
    k.waitvm("q")
    for x in range(2):
        e(f"v_and_b32 v{Q[x]+4}, v{Q[x]+4}, v30"); e(f"v_and_b32 v{Q[x]+5}, v{Q[x]+5}, v30")
    k.waitvm("i1"); e("s_barrier"); k.stamp(3)
    if os.environ.get("FOC") == "clk": k.rstamp(0)
    def rdK(buf, off):
        off *= 2
        e(f"ds_read_b128 {vr(KF[buf],4)}, v{KA} offset:{off}")
        e(f"ds_read_b64 {vr(KF[buf]+4,2)}, v{KT} offset:{off}")
    def rdV(buf, off):
        off *= 2
        e("s_mov_b64 exec, s[28:29]")
        e(f"ds_read_b128 {vr(VF[buf],4)}, v{VA} offset:{off}")
        e(f"ds_read_b128 {vr(VF[buf]+4,4)}, v{VA} offset:{off+640}")
        e("s_mov_b64 exec, -1")
    def qkm(x, kb): e(f"v_mfma_f32_32x32x16_bf16 {vr(SS[x],16)}, {vr(KF[kb],4)}, {vr(Q[x],4)}, 0")
    def qkt(x, kb): e(f"v_mfma_f32_32x32x8_bf16 {vr(SS[x],16)}, {vr(KF[kb]+4,2)}, {vr(Q[x]+4,2)}, {vr(SS[x],16)}")
    def pv(x, vb, u): e(f"v_mfma_f32_32x32x16_bf16 {vr(O[x],16)}, {vr(VF[vb]+4*u,4)}, {vr(P+4*u,4)}, {vr(O[x],16)}")
    def base(t):
        return 0 if t < 10 else 10 if t < 22 else 22
    def bump(regs, t):
        if t == 10:
            for r in regs: e(f"v_subrev_u32 v{r}, {TOP}, v{r}")
        elif t == 22:
            for r in regs: e(f"v_add_u32 v{r}, {12*5120}, v{r}")
    def unit(x, t, extra=()):
        p = t % 2; s = SS[x]
        ex = lambda i: e(f"v_exp_f32 v{s+i}, v{s+i}")
        cv = lambda i: e(f"v_cvt_pk_bf16_f32 v{P+i}, v{s+2*i}, v{s+2*i+1}")
        kb = p if x == 0 else 1-p
        if x == 1: e("s_waitcnt lgkmcnt(2)" if t < 31 else "s_waitcnt lgkmcnt(0)")
        if not (x == 1 and t == 31): qkm(1-x, kb)
        if x == 1 and t + 2 < 32:
            bump((KA, KT), t+2); rdK(p, (t+2-base(t+2))*2560)
        for i in range(0, 4): ex(i)
        if x == 0:
            pv(1, 1-p, 1)
            if t + 1 < 32:
                bump((VA,), t+1); rdV(1-p, (t+1-base(t+1))*2560)
        else:
            pv(0, p, 1)
        for f_ in extra: f_()
        for i in range(4, 8): ex(i)
        for i in range(0, 4): cv(i)
        if not (x == 1 and t == 31): qkt(1-x, kb)
        for i in range(8, 12): ex(i)
        if x == 0: e(f"s_waitcnt lgkmcnt({4 if t < 31 else 0})")
        pv(x, p, 0)
        for i in range(12, 16): ex(i)
        for i in range(4, 8): cv(i)
    rdK(0, 0); rdV(0, 0); rdK(1, 2560)
    e("s_waitcnt lgkmcnt(4)")
    qkm(0, 0); e("s_nop 10"); qkt(0, 0); e("s_nop 10")
    SYN = {1: 3, 4: 7, 10: 19}; SW = ENV('SW', '27')
    T_SI, T_SR, T_SA, T_PF, T_LC = 10, ENV('TSR', '16'), 26, 13, 27
    hk = [0]
    def cond(test, fn):
        def g():
            hk[0] += 1; lab = f"{nm}_hk{hk[0]}"
            e(test); e(f"s_cbranch_scc0 {lab}"); fn(); k.label(lab)
        return g
    def prio1(): e("s_setprio 1")
    def pref():
        for _ in range(2): e(f"buffer_load_dwordx4 {vr(PF,4)}, v22, s[12:15], s43 offen {SC}"); e("s_add_u32 s43, s43, 1024")
    def side_issue():
        e("s_cmp_eq_u32 s4, 1"); e(f"s_cbranch_scc0 {nm}_i1")
        for i in range(8):
            e(f"s_add_u32 m0, s35, {1024*i}"); e(f"s_add_u32 s27, s5, {4*3840*i}")
            e(f"buffer_load_dwordx4 v{SIDE_SV}, s[88:91], s27 offen nt lds")
        e(f"s_branch {nm}_i2")
        k.label(f"{nm}_i1")
        for i in range(5):
            e(f"s_add_u32 m0, s35, {1024*i}"); e("s_nop 0")
            e(f"buffer_load_dwordx4 v{SIDE_SV+i}, s[88:91], s5 offen nt lds")
        k.label(f"{nm}_i2")
    def side_read():
        e("s_waitcnt vmcnt(0)")
        e("s_cmp_eq_u32 s4, 1"); e(f"s_cbranch_scc0 {nm}_r1")
        for F in range(8):
            for t in range(2): e(f"ds_read_b64_tr_b16 {vr(SIDE_D+4*F+2*t,2)}, v{144+F%4} offset:{4096*(F//4)+1024*t}")
        e(f"s_branch {nm}_r2")
        k.label(f"{nm}_r1")
        for nf in range(5):
            for t in range(2): e(f"ds_read_b64_tr_b16 {vr(SIDE_D+4*nf+2*t,2)}, v{144+t if nf < 4 else 146+t} offset:{64*(nf//2)+8*(nf%2) if nf < 4 else 0}")
        k.label(f"{nm}_r2")
    def side_done():
        e("s_waitcnt lgkmcnt(0)"); e(f"v_mov_b32 v{PV_+3}, {LW-8}"); e(f"v_mov_b32 v{PV_}, 1"); e("s_mov_b64 exec, 1")
        e(f"ds_add_u32 v{PV_+3}, v{PV_}"); e("s_mov_b64 exec, -1")
    UA = (SIDE_U, 212)
    def side_sum(q):
        def g():
            if q == 0:
                for r in range(4): e(f"v_mov_b32 v{228+r}, 0x3f803f80")
            for u in range(2):
                for x in range(2): e(f"v_mfma_f32_32x32x16_bf16 {vr(UA[x],16)}, v[228:231], {vr(SIDE_D+16*u+8*q+4*x,4)}, {vr(UA[x],16) if u else 0}")
        return g
    def side_sum2(q):
        def g():
            e("v_cmp_gt_u32 vcc, 32, v1"); e(f"v_cndmask_b32 v{232+q}, v{UA[1]}, v{UA[0]}, vcc")
            e(f"buffer_store_dword v{232+q}, v143, s[12:15], s38 offen offset:{256*q} {SC}")
        return g
    def side_store(F):
        return lambda: e(f"buffer_store_dwordx4 {vr(SIDE_D+4*F,4)}, v22, s[12:15], s{53 if F < 4 else 54 if F == 4 else 58} offen offset:{1024*(F%4)} {SC}")
    def side_arrive():
        e(f"v_mov_b32 v{PV_+1}, 0"); e(f"v_mov_b32 v{PV_}, 1"); e("s_waitcnt vmcnt(0)"); e("s_mov_b64 exec, 1")
        e(f"buffer_atomic_add v{PV_}, v{PV_+1}, s[12:15], s55 offen {SC}"); e("s_mov_b64 exec, -1")
    def touch():
        e("s_cmp_eq_u32 s3, 0"); e(f"s_cbranch_scc0 {nm}_t2")
        e("buffer_load_dword v235, v234, s[12:15], s59 offen"); e(f"s_branch {nm}_t3")
        k.label(f"{nm}_t2")
        if ENV('TOUT', '1'):
            e("s_mov_b64 exec, 0xfffff"); e("buffer_load_dword v235, v234, s[60:63], s50 offen"); e("s_mov_b64 exec, -1")
        k.label(f"{nm}_t3")
    def late():
        e("s_mov_b32 exec_lo, 0xffff7fff"); e("s_mov_b32 exec_hi, 0"); e(f"buffer_load_dword v135, v134, s[12:15], 0 offen {SC}"); e("s_mov_b64 exec, -1")
    def init_words(): lw_init(k); e(f"v_mov_b32 v{PV_+3}, {LW-8}"); e(f"ds_write_b32 v{PV_+3}, v{PV_}")
    side = "s_cmp_lg_u32 s4, 0"
    for t in range(32):
        if t in SYN: k.waitvm(f"i{SYN[t]}"); e("s_barrier")
        x0, x1 = [], []
        if rnd[0] < 20: x0 += [dma, dma]; x1 += [dma, dma]
        if t in (1, 4, 10): cond("s_cmp_ge_u32 s18, 4", prio1)()
        if t == 3: x0.append(lambda: e("s_setprio 0"))
        if t == 8: x1.append(lambda: e("s_setprio 0"))
        if t == 10:
            x0.append(cond("s_cmp_eq_u32 s18, 4", lambda: lw_init(k)))
            if os.environ.get("FOC") == "at": k.stamp(2)
        if t == SW + 1 and os.environ.get("FOC") == "at": k.stamp(0)
        if t == T_SI: x1.append(cond(side, side_issue))
        if t == T_SR: x1.append(cond(side, side_read))
        if t == T_SR + 1: x0.append(cond(side, lambda: e("s_waitcnt lgkmcnt(0)"))); x1.append(cond("s_cmp_eq_u32 s4, 1", side_sum(0)))
        if t == T_SR + 2: x0.append(cond("s_cmp_eq_u32 s4, 1", side_sum2(0))); x1.append(cond("s_cmp_eq_u32 s4, 1", side_sum(1)))
        if t == T_SR + 3: x0.append(cond("s_cmp_eq_u32 s4, 1", side_sum2(1)))
        if T_SR + 1 <= t < T_SR + 9: x1.append(cond(side, side_store(t - T_SR - 1)))
        if ENV('TCH', '5') and t == ENV('TCH', '5'): x0.append(cond("s_cmp_lt_u32 s18, 4", touch))
        if t == T_SA: x0.append(cond(side, side_arrive))
        if T_PF <= t < T_PF + 14 and ENV('PFW', '1'): x0.append(cond("s_cmp_lt_u32 s18, 4", pref))
        if t == T_LC: x1.append(cond("s_cmp_eq_u32 s18, 0", late))
        if t == SW: (x1 if ENV('SWX', '0') else x0).append(lambda: e("s_setprio 0"))
        unit(0, t, x0); unit(1, t, x1)
    pv(1, 1, 1); k.stamp(4)
    if os.environ.get("FOC") == "clk": k.rstamp(2)
    e("s_mov_b32 s30, 0")
    e(f"s_mov_b32 s32, {fbits(2.0**-60)}"); e(f"s_mov_b32 s33, {fbits(2.0**100)}"); e(f"s_mov_b32 s34, {fbits(2.0**126)}")
    k.label(f"{nm}_scrok")
    e("s_nop 7")
    for i in range(3): e(f"ds_write_b128 v132, {vr(O[1]+4*i,4)} offset:{1024*i}")
    e("s_waitcnt vmcnt(0)"); e("v_cmp_gt_u32 vcc, v131, v135"); e(f"s_cbranch_vccnz {nm}_late")
    k.label(f"{nm}_lok")
    e("s_waitcnt lgkmcnt(0)"); e("s_barrier")
    for i in (2, 0, 1): e(f"ds_read_b128 {vr(SS[0]+4*i,4)}, v133 offset:{1024*i}")
    OO = O[0]
    e("s_waitcnt lgkmcnt(2)")
    for r in range(8, 12): e(f"v_add_f32 v{OO+r}, v{OO+r}, v{SS[0]+r}")
    e("s_waitcnt lgkmcnt(0)")
    for r in range(8): e(f"v_add_f32 v{OO+r}, v{OO+r}, v{SS[0]+r}")
    k.label(f"{nm}_chk")
    e(f"v_mov_b32 v30, v{OO+8}"); e(f"v_mov_b32 v31, v{OO+8}")
    e(f"v_max3_f32 v28, abs(v{OO}), abs(v{OO+1}), abs(v{OO+2})")
    e("v_permlane32_swap_b32 v30, v31")
    for r in range(3, 11, 2): e(f"v_max3_f32 v28, abs(v{OO+r}), abs(v{OO+r+1}), v28")
    e(f"v_max_f32 v28, abs(v{OO+11}), v28")
    e("v_cmp_le_f32 vcc, s32, v31"); e("v_cmp_ge_f32 s[36:37], s33, v31"); e("v_cmp_gt_f32 s[40:41], s34, v28")
    e("v_rcp_f32 v31, v31")
    e("s_and_b64 s[36:37], s[36:37], vcc"); e("s_and_b64 s[36:37], s[36:37], s[40:41]")
    e("s_cmp_eq_u64 s[36:37], -1"); e(f"s_cbranch_scc0 {nm}_slow")
    def slowpath():
        k.label(f"{nm}_late")
        e("s_mov_b32 s49, 0")
        k.label(f"{nm}_late1")
        e("s_sleep 8"); late(); e("s_add_u32 s49, s49, 1"); e("s_waitcnt vmcnt(0)")
        e("v_cmp_gt_u32 vcc, v131, v135"); e("s_cmp_ge_u32 s49, 0x20000"); e(f"s_cbranch_scc1 {nm}_lok"); e(f"s_cbranch_vccnz {nm}_late1")
        e(f"s_branch {nm}_lok")
        k.label(f"{nm}_slow")
        e("s_cmp_eq_u32 s30, 0"); e(f"s_cbranch_scc0 {nm}_fin")
        e("s_mov_b32 s30, 1")
        e("s_waitcnt vmcnt(0)")
        NM = O[1]
        e("v_mov_b32 v32, 0xff800000")
        def slowqk(c):
            e(f"buffer_load_dwordx4 {vr(KF[0],4)}, v22, s[12:15], s27 offen {SC}")
            e(f"buffer_load_dwordx2 {vr(KF[0]+4,2)}, v23, s[12:15], s27 offen offset:1024 {SC}")
            e("s_waitcnt vmcnt(0)")
            e(f"v_mfma_f32_32x32x16_bf16 {vr(SS[0],16)}, {vr(KF[0],4)}, {vr(Q[0],4)}, {c}"); e("s_nop 10")
            e(f"v_mfma_f32_32x32x8_bf16 {vr(SS[0],16)}, {vr(KF[0]+4,2)}, {vr(Q[0]+4,2)}, {vr(SS[0],16)}"); e("s_nop 12")
        e(f"s_add_u32 s27, s19, {KVIMG}"); e("s_mov_b32 s31, 0")
        k.label(f"{nm}_mx")
        slowqk("0")
        for r in range(0, 16, 2): e(f"v_max3_f32 v32, v{SS[0]+r}, v{SS[0]+r+1}, v32")
        e("s_add_u32 s27, s27, 2560")
        e("s_add_u32 s31, s31, 1"); e("s_cmp_lt_u32 s31, 64"); e(f"s_cbranch_scc1 {nm}_mx")
        k.allred32("v_max_f32", 32, 33)
        e("v_xor_b32 v32, 0x80000000, v32")
        for r in range(16): e(f"v_mov_b32 v{NM+r}, v32")
        for r in range(16): e(f"v_mov_b32 v{OO+r}, 0")
        for r in range(8): e(f"v_mov_b32 v{VF[0]+r}, v20")
        e(f"s_add_u32 s27, s19, {KVIMG}"); e("s_mov_b32 s31, 0")
        k.label(f"{nm}_sl")
        e("s_mov_b64 exec, s[28:29]")
        e(f"buffer_load_dwordx4 {vr(VF[0],4)}, v21, s[12:15], s27 offen {SC}")
        e(f"buffer_load_dwordx4 {vr(VF[0]+4,4)}, v21, s[12:15], s27 offen offset:640 {SC}")
        e("s_mov_b64 exec, -1")
        slowqk(vr(NM,16))
        for i in range(16): e(f"v_exp_f32 v{SS[0]+i}, v{SS[0]+i}")
        e("s_nop 0")
        for i in range(8): e(f"v_cvt_pk_bf16_f32 v{P+i}, v{SS[0]+2*i}, v{SS[0]+2*i+1}")
        e("s_nop 1")
        pv(0, 0, 0); pv(0, 0, 1)
        e("s_add_u32 s27, s27, 2560")
        e("s_add_u32 s31, s31, 1"); e("s_cmp_lt_u32 s31, 64"); e(f"s_cbranch_scc1 {nm}_sl")
        e("s_nop 12"); e(f"s_branch {nm}_chk")
    k.tail = slowpath
    k.label(f"{nm}_fin")
    e("s_nop 0")
    for r in range(12): e(f"v_mul_f32 v{OO+r}, v{OO+r}, v31")
    for r in range(6): e(f"v_cvt_pk_bf16_f32 v{P+r}, v{OO+2*r}, v{OO+2*r+1}")
    e(f"buffer_store_dwordx4 {vr(P,4)}, v39, s[12:15], s51 offen {SC}")
    e("s_mov_b32 exec_hi, 0")
    e(f"buffer_store_dwordx2 {vr(P+4,2)}, v38, s[12:15], s52 offen {SC}")
    e("s_mov_b64 exec, -1")
    k.stamp(5)
    e("v_lshlrev_b32 v3, 4, v1")
    k.vm = []; k.lg = []

def proj_c(k, tag, src, xin, xout, stout, last, cnt_code, word, st0):
    final = False
    e = k.e
    ACC, RESID, A, BF = 24, 44, 76, 156
    NA0 = ENV('PA0', '8')
    ids_rt(k)
    e("s_lshl_b32 s19, s16, 2"); e("s_add_u32 s19, s19, s39")
    e("s_mul_i32 s24, s19, 20480")
    e("s_lshr_b32 s33, s17, 1"); e("s_mul_i32 s33, s33, 5120"); e("s_add_u32 s33, s33, s24")
    e("s_and_b32 s34, s17, 1"); e("s_mul_i32 s35, s34, 3072"); e("s_add_u32 s35, s35, s33")
    e("s_lshl_b32 s36, s34, 9"); e("s_add_u32 s36, s36, s33"); e("s_add_u32 s36, s36, 2048")
    e(f"s_add_u32 s37, s35, {xin}"); e(f"s_add_u32 s38, s36, {xin}")
    e("v_lshrrev_b32 v13, 5, v1"); e("v_lshlrev_b32 v13, 8, v13"); e("v_and_b32 v14, 15, v1"); e("v_lshl_add_u32 v13, v14, 4, v13")
    e("v_bfe_u32 v14, v1, 4, 1"); e("v_lshl_add_u32 v13, v14, 3, v13")
    k.vmop(f"buffer_load_dwordx4 {vr(RESID,4)}, v3, {RS_(xin)}, s37 offen {SC}", "r")
    k.vmop(f"buffer_load_dwordx4 {vr(RESID+4,4)}, v3, {RS_(xin)}, s37 offen offset:1024 {SC}", "r")
    k.vmop(f"buffer_load_dwordx2 {vr(RESID+8,2)}, v13, {RS_(xin)}, s38 offen {SC}", "r")
    e(f"s_add_u32 s24, s24, {src}")
    for i in range(1, 5): e(f"s_add_u32 s{24+i}, s24, {4096*i}")
    e("v_lshrrev_b32 v9, 4, v1"); e("v_add_u32 v12, 61440, v3")
    wait_go(k, tag, word, cnt_code)
    k.stamp(st0)
    def ldA(n): k.vmop(f"buffer_load_dwordx4 {vr(A+4*n,4)}, v3, s[12:15], s{24+n//4} offen offset:{(n%4)*1024} {SC}", f"a{n}")
    for n in range(NA0): ldA(n)
    k.waitvm("r")
    for i in range(10):
        e(f"v_lshlrev_b32 v{ACC+2*i}, 16, v{RESID+i}"); e(f"v_and_b32 v{ACC+2*i+1}, 0xffff0000, v{RESID+i}")
    def rd(n, nf):
        off = n*5120 + nf*1024; b = 3
        if n >= 12: off -= 61440; b = 12
        k.dsop(f"ds_read_b128 {vr(BF+20*(n%2)+4*nf,4)}, v{b} offset:{off}", f"b{n}_{nf}")
    e("s_barrier")
    for n in range(2):
        for nf in range(5): rd(n, nf)
    for n in range(20):
        k.waitvm(f"a{n}")
        if n == 0: k.stamp(st0+1)
        for nf in range(5):
            if nf in (0, 2, 4): k.waitlg(f"b{n}_{min(nf+1,4)}")
            if n == 12 and nf == 0 and not final: e("s_barrier")
            e(f"v_mfma_f32_16x16x32_bf16 {vr(ACC+4*nf,4)}, {vr(BF+20*(n%2)+4*nf,4)}, {vr(A+4*n,4)}, {vr(ACC+4*nf,4)}")
            if n + 2 < 20: rd(n+2, nf)
            if nf == 0 and n + NA0 < 20: ldA(n + NA0)
    e("s_barrier")
    if last:
        e("s_cmp_eq_u32 s3, 0"); e(f"s_cbranch_scc1 {k.name}_nf")
        e("v_and_b32 v16, 15, v1"); e("v_mul_u32_u24 v16, 1280, v16"); e("v_lshl_add_u32 v17, v9, 3, v16"); e("v_lshl_add_u32 v16, v9, 4, v16")
        e("s_mul_i32 s32, s19, 20480"); e("s_mul_i32 s31, s17, 160"); e("s_add_u32 s32, s32, s31")
        e("s_lshl_b32 s31, s34, 5"); e("s_add_u32 s33, s32, s31"); e("s_xor_b32 s31, s34, 1"); e("s_lshl_b32 s31, s31, 7"); e("s_add_u32 s32, s32, s31")
        FSC = os.environ.get("FSC", "")
        for i in range(10): e(f"v_cvt_pk_bf16_f32 v{RESID+i}, v{ACC+2*i}, v{ACC+2*i+1}")
        e(f"buffer_store_dwordx4 {vr(RESID,4)}, v16, s[60:63], s33 offen {FSC}")
        e(f"buffer_store_dwordx4 {vr(RESID+4,4)}, v16, s[60:63], s33 offen offset:64 {FSC}")
        e(f"buffer_store_dwordx2 {vr(RESID+8,2)}, v17, s[60:63], s32 offen {FSC}")
        k.stamp(st0+2)
        if STAMP: e("s_waitcnt vmcnt(0)")
        k.dump(15, "2")
        e("s_endpgm")
        k.label(f"{k.name}_nf")
    if True:
        e(f"s_add_u32 s37, s35, {xout}"); e(f"s_add_u32 s38, s36, {xout}")
        e("s_lshl_b32 s32, s19, 10"); e("s_lshl_b32 s33, s17, 7"); e("s_add_u32 s32, s32, s33"); e(f"s_add_u32 s32, s32, {stout}")
        e("v_lshlrev_b32 v16, 3, v1")
        for i in range(10): e(f"v_cvt_pk_bf16_f32 v{RESID+i}, v{ACC+2*i}, v{ACC+2*i+1}")
        e(f"buffer_store_dwordx4 {vr(RESID,4)}, v3, {RS_(xout)}, s37 offen {SC}")
        e(f"buffer_store_dwordx4 {vr(RESID+4,4)}, v3, {RS_(xout)}, s37 offen offset:1024 {SC}")
        e(f"buffer_store_dwordx2 {vr(RESID+8,2)}, v13, {RS_(xout)}, s38 offen {SC}")
        e(f"v_add_f32 v18, v{ACC}, v{ACC+1}"); e(f"v_mul_f32 v19, v{ACC}, v{ACC}"); e(f"v_add_f32 v20, v{ACC+2}, v{ACC+3}"); e(f"v_mul_f32 v21, v{ACC+1}, v{ACC+1}")
        e(f"v_fmac_f32 v19, v{ACC+2}, v{ACC+2}"); e(f"v_fmac_f32 v21, v{ACC+3}, v{ACC+3}")
        for i in range(4, 20, 2):
            e(f"v_add_f32 v18, v18, v{ACC+i}"); e(f"v_fmac_f32 v19, v{ACC+i}, v{ACC+i}")
            e(f"v_add_f32 v20, v20, v{ACC+i+1}"); e(f"v_fmac_f32 v21, v{ACC+i+1}, v{ACC+i+1}")
        e("v_add_f32 v18, v18, v20"); e("v_add_f32 v19, v19, v21")
        for sw in ("v_permlane16_swap_b32", "v_permlane32_swap_b32"):
            e("v_mov_b32 v20, v18"); e("v_mov_b32 v21, v19"); e("s_nop 0")
            e(f"{sw} v18, v20"); e(f"{sw} v19, v21"); e("s_nop 0")
            e("v_add_f32 v18, v18, v20"); e("v_add_f32 v19, v19, v21")
        e("s_mov_b64 exec, 0xffff")
        e(f"buffer_store_dwordx2 v[18:19], v16, {RS_(xout)}, s32 offen {SC}")
    k.stamp(st0+2)

def proj_l(k, wimg, nxt, src, sig=None, done=0, last=False):
    e = k.e
    if nxt is not None:
        ids_mt(k)
        e("s_min_u32 s17, s17, 14" if nxt == WA_I else "s_nop 0")
        e("s_mul_i32 s58, s17, 163840"); e("s_add_u32 s58, s58, s45"); e(f"s_add_u32 s58, s58, {nxt}")
    ids_rt(k)
    e("s_mul_i32 s50, s17, 102400"); e("s_add_u32 s50, s50, s45"); e(f"s_add_u32 s50, s50, {wimg}")
    e("s_mul_i32 s51, s16, 81920"); e("s_lshl_b32 s52, s17, 2"); e("s_add_u32 s52, s52, s39"); e("s_mul_i32 s52, s52, 2560"); e("s_add_u32 s51, s51, s52"); e(f"s_add_u32 s51, s51, {src}")
    e("v_min_u32 v21, 39, v1"); e("v_lshlrev_b32 v21, 6, v21")
    w = Wdma(k, 25, 50, "o"); k.vm = []
    T1, T2 = ENV('T1', '0'), ENV('T2', '4')
    if sig:
        signal(k, "s1l", 0, 8, sig)
        ub_prep(k, 0)
    if last: w.rng(0, 6); e("s_barrier"); done = 6
    w.rng(done, 25, T1 if sig else 0)
    w2 = Wdma(k, 40, 58)
    if last:
        e("s_cmp_eq_u32 s3, 0"); e(f"s_cbranch_scc1 {k.name}_nl")
        e("s_waitcnt vmcnt(0)"); e("s_barrier"); e("buffer_load_dword v20, v21, s[12:15], s51 offen"); e("s_endpgm")
        k.label(f"{k.name}_nl")
    if sig:
        w2.rng(25, 33, T1)
        e(f"v_mov_b32 v{PV_+3}, {LW}"); e("s_mov_b32 s49, 0")
        k.label(f"{k.name}_a8")
        e(f"ds_read_b32 v{PV_}, v{PV_+3}"); e("s_add_u32 s49, s49, 1"); e("s_waitcnt lgkmcnt(0)"); e(f"v_readfirstlane_b32 s44, v{PV_}")
        e("s_cmp_ge_u32 s49, 0x400000"); e("s_cselect_b32 s44, 8, s44"); e("s_cmp_lt_u32 s44, 8"); e(f"s_cbranch_scc1 {k.name}_a8")
    if nxt is not None: w2.rng(33 if sig else 32, 39, T1 if sig else 0)
    if sig: ub_prep(k, 1)
    k.waitvm("o24")
    e("s_barrier")
    if ENV('ATOUCH', '1'):
        k.vmop("buffer_load_dword v20, v21, s[12:15], s51 offen")
    if nxt is not None:
        if not sig: w2.rng(25, 32)
        e("s_barrier")
        w2.rng(0, 15)
        e("s_barrier")
        k.waitvm("w14")
        w2.rng(15, 25, T2)
    return w2

def stats16(k, s, rstd, mop, mask):
    e = k.e
    e(f"v_add_f32 v{s}, v{s}, v{s+2}"); e(f"v_add_f32 v{s+1}, v{s+1}, v{s+3}")
    k.allred16("v_add_f32", s, s+2); k.allred16("v_add_f32", s+1, s+3)
    k.allred32("v_add_f32", s, s+2); k.allred32("v_add_f32", s+1, s+3)
    stats_finish(k, s, s+1, s+2, rstd, s+3)
    split3(k, s+2, mop, 17, 'm', mask)
def usum(k, u, dst, t=17):
    e = k.e
    e(f"v_add_f32 v{u}, v{u}, v{u+1}"); e(f"v_add_f32 v{u+2}, v{u+2}, v{u+3}"); e(f"v_add_f32 v{u}, v{u}, v{u+2}")
    split3(k, u, dst, t, 'u')
def scale_pack(k, a, sc, dst):
    for r in range(4): k.e(f"v_mul_f32 v{a+r}, v{a+r}, v{sc(r)}")
    for r in range(2): k.e(f"v_cvt_pk_bf16_f32 v{dst+r}, v{a+2*r}, v{a+2*r+1}")
EX = 102400
SOFF = 2*8192 + 7296
UOFF = lambda F: (F//4)*8192 + 7168 + (F%4)*256 + 128
TOKF = (0, 1, 2, 3, 6); FEAF = (4, 5, 7)

UO = 3456
def ub_prep(k, part):
    e = k.e
    if part:
        k.waitvm("up")
        for j_ in range(5): e(f"v_add_f32 v{64+j_}, v{64+j_}, v{69+j_}")
        e("v_add_f32 v64, v64, v65"); e("v_add_f32 v66, v66, v67"); e("v_add_f32 v64, v64, v68"); e("v_add_f32 v64, v64, v66")
        k.allred32("v_add_f32", 64, 65); split3(k, 64, 28, 17, 'u')
        return
    e("v_lshrrev_b32 v6, 5, v1"); e("v_and_b32 v5, 31, v1"); e("s_lshr_b32 s30, s21, 1")
    e("v_mul_u32_u24 v12, 5120, v6"); e("v_lshl_add_u32 v12, v5, 2, v12")
    e("s_mul_i32 s30, s30, 10240"); e("s_lshl_b32 s31, s39, 7"); e("s_add_u32 s30, s30, s31"); e(f"s_add_u32 s30, s30, {U_B}"); e("s_add_u32 s31, s30, 2560")
    for j_ in range(10): k.vmop(f"buffer_load_dword v{64+j_}, v12, s[12:15], s{30+j_//5} offen offset:{512*(j_%5)}", "up")
    e("v_bfe_u32 v6, v1, 4, 1"); e("v_lshlrev_b32 v46, 9, v6"); e("v_and_b32 v5, 15, v1"); e("v_lshl_add_u32 v46, v5, 3, v46")
    e("s_lshl_b32 s30, s39, 12"); e("v_add_u32 v46, s30, v46")

def atouch_pre(k, xin):
    e = k.e
    e("s_mul_i32 s51, s16, 163840"); e("s_lshl_b32 s52, s17, 2"); e("s_add_u32 s52, s52, s39"); e("s_mul_i32 s52, s52, 2560"); e("s_add_u32 s51, s51, s52"); e(f"s_add_u32 s51, s51, {xin}")
    e("v_min_u32 v21, 39, v1"); e("v_lshlrev_b32 v21, 6, v21")

G_ACC, G_BF, G_AR, G_DA = 64, 128, 160, 5
def gemm32_pre(k, xin, stin):
    e = k.e
    e("v_and_b32 v10, 31, v1"); e("v_lshrrev_b32 v4, 5, v1"); e("v_and_b32 v5, 15, v1")
    e("s_lshl_b32 s19, s16, 2"); e("s_add_u32 s19, s19, s18")
    e("v_bfe_u32 v7, v1, 4, 1"); e("v_mul_u32_u24 v8, 20480, v7"); e("v_lshl_add_u32 v8, v4, 8, v8"); e("v_lshl_add_u32 v8, v5, 4, v8")
    e("v_lshlrev_b32 v11, 10, v7"); e("v_lshl_add_u32 v11, v4, 9, v11"); e("v_lshl_add_u32 v11, v5, 3, v11")
    e("s_lshl_b32 s30, s19, 11"); e(f"s_add_u32 s30, s30, {stin}")
    e("s_mul_i32 s24, s19, 40960"); e(f"s_add_u32 s24, s24, {xin}")
    e("v_add_u32 v41, 65536, v3"); e("v_add_u32 v42, 131072, v3")
    e("v_subrev_u32 v58, 1, v4"); e("v_not_b32 v59, v58")
def gemm32_loads(k, R):
    e = k.e
    def ldA(ks):
        if ks % 4 == 0 and ks > 0: e("s_add_u32 s24, s24, 4096")
        for u in range(2):
            k.vmop(f"buffer_load_dwordx4 {vr(G_AR+8*(ks%G_DA)+4*u,4)}, v8, {R}, s24 offen offset:{(ks%4)*1024+512*u} {SC}", f"a{ks}")
    ldA(0)
    for q in range(4): k.vmop(f"buffer_load_dwordx2 {vr(16+2*q,2)}, v11, {R}, s30 offen offset:{128*q} {SC}", "st")
    for ks in range(1, G_DA-1): ldA(ks)
    return ldA
def gemm32_stats(k):
    e = k.e
    k.waitvm("st")
    e("v_add_f32 v16, v16, v18"); e("v_add_f32 v17, v17, v19"); e("v_add_f32 v20, v20, v22"); e("v_add_f32 v21, v21, v23")
    e("v_add_f32 v16, v16, v20"); e("v_add_f32 v17, v17, v21")
    k.allred32("v_add_f32", 16, 18); k.allred32("v_add_f32", 17, 18)
    stats_finish(k, 16, 17, 46, 47, 18)
    split3(k, 46, 48, 18, 'm', 58)
def gemm32(k, vmode, fl, ldA, bars, st0, late=None):
    e = k.e; ACC, BF, AR, DA = G_ACC, G_BF, G_AR, G_DA
    acc = lambda jf: vr(ACC+16*jf, 16)
    def rd(ks, f):
        off = ks*8192 + 1024*f; hi = off >> 16
        k.dsop(f"ds_read_b128 {vr(BF+4*f,4)}, v{(3,41,42)[hi]} offset:{off & 0xffff}", f"b{ks}_{f}")
    e("s_barrier")
    for f in range(8): rd(0, f)
    for ks in range(20):
        k.waitvm(f"a{ks}")
        if ks == 0: k.stamp(st0+1)
        if ks in bars: e("s_barrier")
        if late and ks == late[0]: k.fill(fl, 1000); fl += late[1]
        for f in range(8):
            u, jf = f//4, f%4
            if f % 2 == 0: k.waitlg(f"b{ks}_{f+1}")
            a = vr(AR+8*(ks%DA)+4*u, 4); b = vr(BF+4*f, 4); c = acc(jf) if (ks or u) else "0"
            if vmode: e(f"v_mfma_f32_32x32x16_bf16 {acc(jf)}, {a}, {b}, {c}")
            else:     e(f"v_mfma_f32_32x32x16_bf16 {acc(jf)}, {b}, {a}, {c}")
            if ks + 1 < 20: rd(ks+1, f)
            if f == 0 and ks + DA - 1 < 20: ldA(ks + DA - 1)
            if ks >= 1: k.fill(fl, 2)
        if ks == 15:
            k.fill(fl, 1000)
            for jf in range(4):
                if vmode: e(f"v_mfma_f32_32x32x8_bf16 {acc(jf)}, v[48:49], {vr(50+2*jf,2)}, {acc(jf)}")
                else:     e(f"v_mfma_f32_32x32x8_bf16 {acc(jf)}, {vr(50+2*jf,2)}, v[48:49], {acc(jf)}")
    k.stamp(st0+2)

TB, TS = 88448, 296
def toff(G): return (0, 64, 128, 168, 208, 248)[G//5] + 8*(G%5)

def qkvb_c(k, xin, stin, st0):
    e = k.e; nm = k.name
    ACC, BF = G_ACC, G_BF
    ids_mt(k); gemm32_pre(k, xin, stin)
    e("v_lshrrev_b32 v6, 4, v1")
    MC, MP, MP1 = 200, 204, 208
    NEG = fbits(-1e30)
    e("v_lshlrev_b32 v17, 2, v6"); e("v_sub_u32 v17, v5, v17"); e(f"v_mov_b32 v19, {NEG}")
    for r in range(4):
        e(f"v_subrev_u32 v18, {r}, v17"); e("v_and_b32 v16, 0x80000001, v18")
        e("v_cmp_eq_u32 vcc, 0, v16"); e(f"v_cndmask_b32 v{MC+r}, v19, 0, vcc")
        e("v_cmp_eq_u32 vcc, 0x80000000, v16"); e(f"v_cndmask_b32 v{MP+r}, v19, 0, vcc")
    e("s_cmp_eq_u32 s19, 0"); e(f"s_cselect_b32 s34, {NEG}, 0")
    for r in range(4): e(f"v_add_f32 v{MP1+r}, s34, v{MP+r}")
    e(f"s_mul_i32 s35, s18, {32*TS}"); e(f"s_add_u32 s35, s35, {TB}")
    e(f"v_mul_u32_u24 v16, {TS}, v10"); e("v_add_u32 v16, s35, v16"); e(f"v_add_u32 v16, {16*TS}, v16")
    e("v_lshl_add_u32 v212, v4, 3, v16"); e("v_lshl_add_u32 v213, v4, 5, v16"); e("v_mov_b32 v219, v16")
    e("v_lshl_add_u32 v215, v4, 6, v16")
    e(f"v_mul_u32_u24 v16, {TS}, v5"); e("v_add_u32 v16, s35, v16"); e("v_lshl_add_u32 v216, v6, 4, v16")
    e("v_lshrrev_b32 v17, 2, v1"); e(f"v_mul_u32_u24 v16, {TS}, v17"); e("v_add_u32 v16, s35, v16"); e("v_and_b32 v17, 3, v1")
    e("v_lshl_add_u32 v217, v17, 3, v16")
    e("v_mul_u32_u24 v18, 40, v17"); e("v_add_u32 v18, 240, v18"); e("v_cmp_gt_u32 vcc, 2, v17"); e("v_mov_b32 v19, 288"); e("v_cndmask_b32 v18, v19, v18, vcc"); e("v_add_u32 v218, v16, v18")
    e("v_lshlrev_b32 v43, 9, v7"); e("v_lshl_add_u32 v43, v5, 3, v43")
    e("v_mov_b32 v220, 0"); e("v_mov_b32 v221, 0"); e("v_mov_b32 v222, 0x3f803f80"); e("v_mov_b32 v223, 0x3f803f80")
    e("s_mul_i32 s25, s19, 40960"); e(f"s_add_u32 s25, s25, {OBT}")
    e("s_lshl_b32 s51, s17, 10"); e("s_add_u32 s51, s51, s25"); e("s_add_u32 s52, s51, 20480")
    e("s_lshr_b32 s53, s17, 2"); e("s_add_u32 s53, s53, 16"); e("s_lshl_b32 s53, s53, 10"); e("s_add_u32 s53, s53, s25")
    e("s_and_b32 s54, s17, 1"); e("s_lshl_b32 s54, s54, 9"); e("s_add_u32 s53, s53, s54")
    e("s_bfe_u32 s54, s17, 0x10001"); e("s_lshl_b32 s54, s54, 3"); e("s_add_u32 s53, s53, s54"); e("s_add_u32 s54, s53, 20480")
    def c2():
        e("s_lshl_b32 s48, s16, 9"); e(f"s_add_u32 s48, s48, {C2}")
        e(f"v_lshlrev_b32 v{PV_+1}, 8, v1"); e(f"v_lshlrev_b32 v{PV_+2}, 3, v1"); e(f"v_sub_u32 v{PV_+2}, 16, v{PV_+2}")
        e("s_cmp_eq_u32 s16, 0"); e("s_cselect_b64 s[56:57], 1, 3")
    e("s_cmp_eq_u32 s18, 1"); e(f"s_cbranch_scc0 {nm}_ad"); e("v_lshlrev_b32 v16, 8, v1"); e("s_mov_b32 s49, 0")
    k.label(f"{nm}_ap")
    e(f"buffer_load_dword v17, v16, s[8:11], 0 offen offset:{C1} {SC}"); e("s_add_u32 s49, s49, 1"); e("s_waitcnt vmcnt(0)")
    e("v_cmp_gt_u32 vcc, 16, v17"); e("s_cmp_ge_u32 s49, 0x20000"); e(f"s_cbranch_scc1 {nm}_ad"); e(f"s_cbranch_vccnz {nm}_ap")
    k.label(f"{nm}_ad")
    wait_go(k, "p3", 1, c2)
    k.stamp(st0)
    ldA = gemm32_loads(k, RS_(xin))
    fl = k.capture(lambda: (gemm32_stats(k), e(f"v_mul_f32 v45, {fbits(CSCALE)}, v47")))
    def uops():
        for jf in range(4): k.dsop(f"ds_read_b64 {vr(50+2*jf,2)}, v43 offset:{UO+4096*jf}", "uo")
    gemm32(k, False, fl, ldA, {6, ENV('H1S', '16'), ENV('H2S', '18')}, st0, (8, k.capture(uops)))
    e("s_barrier")
    e("s_cmp_eq_u32 s18, 0"); e(f"s_cbranch_scc0 {nm}_ni"); lw_init(k); k.label(f"{nm}_ni")
    for q in range(3): e(f"ds_write_b64 v215, v[220:221] offset:{40+8*q}")
    e("ds_write_b64 v219, v[222:223] offset:288")
    for G in list(range(10, 30, 2)) + list(range(0, 10, 2)):
        a = ACC + 2*G; d = BF + G
        for r in range(4): e(f"v_mul_f32 v{a+r}, v{a+r}, v{45 if G < 10 else 47}")
        for r in range(2): e(f"v_cvt_pk_bf16_f32 v{d+r}, v{a+2*r}, v{a+2*r+1}")
        e(f"ds_write_b64 v{ {8: 212, 32: 213}[toff(G+1) - toff(G)] }, {vr(d,2)} offset:{toff(G)}")
    e("s_waitcnt lgkmcnt(0)"); e("s_barrier")
    KO = lambda b, h: 160 + 8*b + 4*h
    QO = lambda b, h: 184 + 8*(b-1) + 4*h
    VO = lambda F, b: 20 + 8*FEAF.index(F) + 2*b if False else 224 + 6*FEAF.index(F) + 2*b - (0)
    VO = lambda F, b: (128, 136, 144)[FEAF.index(F)] + 2*b
    for b in (1, 2):
        for h in range(2):
            for x in range(2): e(f"ds_read_b64 {vr(QO(b,h)+2*x,2)}, v216 offset:{16*b*TS+64*h+8*x}")
    for b in range(3):
        for h in range(2):
            for x in range(2): e(f"ds_read_b64 {vr(KO(b,h)+2*x,2)}, v216 offset:{16*b*TS+128+40*h+8*x}")
    e("s_waitcnt lgkmcnt(0)")
    for b in range(3):
        for h in range(2): e(f"ds_read_b64_tr_b16 {vr(VO(4+h,b),2)}, v217 offset:{16*b*TS+208+40*h}")
        e(f"ds_read_b64_tr_b16 {vr(VO(7,b),2)}, v218 offset:{16*b*TS}")
    units = [(b, h) for b in (1, 2) for h in range(2)]
    SU = lambda i: 64 + 8*i
    TU = lambda i: ACC + 32 + 4*i
    PU = lambda i: ACC + 48 + 4*i
    OU = lambda i: 64 + 8*i
    for i, (b, h) in enumerate(units):
        e(f"v_mfma_f32_16x16x32_bf16 {vr(SU(i),4)}, {vr(KO(b-1,h),4)}, {vr(QO(b,h),4)}, {vr(MP1 if b == 1 else MP,4)}")
        e(f"v_mfma_f32_16x16x32_bf16 {vr(SU(i)+4,4)}, {vr(KO(b,h),4)}, {vr(QO(b,h),4)}, {vr(MC,4)}")
    e("s_waitcnt lgkmcnt(0)"); e("s_barrier")
    def allred(op):
        for sw in ("v_permlane16_swap_b32", "v_permlane32_swap_b32"):
            for i in range(4): e(f"v_mov_b32 v{TU(i)+1}, v{TU(i)}")
            for i in range(4): e(f"{sw} v{TU(i)}, v{TU(i)+1}")
            for i in range(4): e(f"{op} v{TU(i)}, v{TU(i)}, v{TU(i)+1}")
    for i in range(4):
        s = SU(i)
        e(f"v_max3_f32 v{TU(i)}, v{s}, v{s+1}, v{s+2}"); e(f"v_max3_f32 v{TU(i)}, v{s+3}, v{s+4}, v{TU(i)}")
        e(f"v_max3_f32 v{TU(i)}, v{s+5}, v{s+6}, v{TU(i)}"); e(f"v_max_f32 v{TU(i)}, v{s+7}, v{TU(i)}")
    allred("v_max_f32")
    for i in range(4):
        for r in range(8): e(f"v_sub_f32 v{SU(i)+r}, v{SU(i)+r}, v{TU(i)}")
    for i in range(4):
        for r in range(8): e(f"v_exp_f32 v{SU(i)+r}, v{SU(i)+r}")
    for i in range(4):
        for r in range(4): e(f"v_cvt_pk_bf16_f32 v{PU(i)+r}, v{SU(i)+2*r}, v{SU(i)+2*r+1}")
    for i, (b, h) in enumerate(units):
        e(f"v_mfma_f32_16x16x32_bf16 {vr(OU(i)+4,4)}, {vr(VO(7,b-1),4)}, {vr(PU(i),4)}, 0")
    for i, (b, h) in enumerate(units):
        e(f"v_mfma_f32_16x16x32_bf16 {vr(OU(i),4)}, {vr(VO(4+h,b-1),4)}, {vr(PU(i),4)}, 0")
    for i in range(4): e(f"v_mov_b32 v{TU(i)}, v{OU(i)+4}"); e(f"v_mov_b32 v{TU(i)+1}, v{OU(i)+4}")
    for i in range(4): e(f"v_permlane32_swap_b32 v{TU(i)}, v{TU(i)+1}")
    for i in range(4): e(f"v_rcp_f32 v{TU(i)+1}, v{TU(i)+1}")
    e("v_cmp_eq_u32 vcc, 0, v6")
    for bi in range(2):
        o0, o1 = OU(2*bi), OU(2*bi+1); d = 40 + 8*bi; t0, t1 = TU(2*bi)+1, TU(2*bi+1)+1
        for r in range(4): e(f"v_mul_f32 v{o0+r}, v{o0+r}, v{t0}"); e(f"v_mul_f32 v{o1+r}, v{o1+r}, v{t1}")
        e(f"v_cvt_pk_bf16_f32 v{d}, v{o0}, v{o0+1}"); e(f"v_cvt_pk_bf16_f32 v{d+1}, v{o0+2}, v{o0+3}")
        e(f"v_cvt_pk_bf16_f32 v{d+2}, v{o1}, v{o1+1}"); e(f"v_cvt_pk_bf16_f32 v{d+3}, v{o1+2}, v{o1+3}")
        e(f"buffer_store_dwordx4 {vr(d,4)}, v3, s[12:15], s{51+bi} offen {SC}")
        e(f"v_cndmask_b32 v{t0}, v{t1}, v{t0}, vcc")
        for r in range(4): e(f"v_cndmask_b32 v{o0+4+r}, v{o1+4+r}, v{o0+4+r}, vcc")
        for r in range(4): e(f"v_mul_f32 v{o0+4+r}, v{o0+4+r}, v{t0}")
        e(f"v_cvt_pk_bf16_f32 v{d+4}, v{o0+4}, v{o0+5}"); e(f"v_cvt_pk_bf16_f32 v{d+5}, v{o0+6}, v{o0+7}")
    e("s_mov_b32 exec_hi, 0")
    for bi in range(2): e(f"buffer_store_dwordx2 {vr(44+8*bi,2)}, v3, s[12:15], s{53+bi} offen {SC}")

def qkvb_l(k, xin, stin, w):
    e = k.e; nm = k.name
    ids_mt(k)
    e("v_and_b32 v5, 15, v1"); e("v_lshrrev_b32 v6, 4, v1")
    e("v_lshlrev_b32 v11, 3, v5"); e("v_lshl_add_u32 v11, v6, 8, v11")
    e("v_cmp_eq_u32 vcc, 0, v6"); e("s_lshl_b32 s22, s16, 3"); e("s_max_u32 s22, s22, 1"); e("v_cndmask_b32 v4, 0, -1, vcc")
    e("s_sub_u32 s22, s22, 1")
    e("s_mul_i32 s24, s22, 20480"); e(f"s_add_u32 s24, s24, {xin}"); e("s_add_u32 s24, s24, s45")
    e("s_lshl_b32 s27, s22, 10"); e(f"s_add_u32 s27, s27, {stin}")
    HP = 49152
    e("v_lshrrev_b32 v12, 1, v6"); e("v_lshlrev_b32 v40, 12, v12"); e("v_and_b32 v12, 1, v6"); e("v_lshl_add_u32 v40, v12, 9, v40"); e("v_lshl_add_u32 v40, v5, 4, v40")
    e("s_lshl_b32 s32, s39, 13"); e("v_add_u32 v40, s32, v40"); e("v_add_u32 v41, 65536, v40"); e("v_add_u32 v42, 131072, v40")
    e("s_mul_i32 s33, s39, 6144"); e(f"s_add_u32 s33, s33, {HP}"); e("v_add_u32 v43, s33, v3")
    e("s_min_u32 s40, s39, 2"); e("s_lshl_b32 s41, s40, 11"); e(f"s_add_u32 s41, s41, {HP}"); e("v_add_u32 v44, s41, v3")
    e("s_lshl_b32 s41, s40, 12"); e("v_lshlrev_b32 v45, 3, v5"); e("v_add_u32 v45, s41, v45")
    e(f"v_mul_u32_u24 v12, {TS}, v5"); e(f"v_add_u32 v12, {TB}, v12"); e("s_lshl_b32 s41, s40, 3"); e("s_sub_u32 s41, s41, 2")
    for x in range(2):
        e(f"v_add_u32 v13, s41, v6")
        if x: e("v_add_u32 v13, 4, v13")
        e("v_add_u32 v14, 16, v13")
        e("v_cmp_gt_u32 vcc, 20, v13"); e("v_cndmask_b32 v14, 0, v14, vcc"); e(f"v_lshl_add_u32 v{50+x}, v14, 3, v12")
    e("v_mov_b32 v47, v12"); e("v_mov_b32 v56, 0x3f803f80"); e("v_mov_b32 v57, 0x3f803f80")
    atouch_pre(k, xin)
    e(f"s_setprio {ENV('P3PRIO', '0')}")
    e("s_barrier")
    if ENV('ATOUCH', '1'): k.vmop("buffer_load_dword v20, v21, s[12:15], s51 offen")
    w.one(39)
    e(f"ds_write_b64 v46, v[28:29] offset:{UO}")
    for q_ in range(2): k.vmop(f"buffer_load_dwordx2 {vr(24+2*q_,2)}, v11, s[12:15], s27 offen offset:{128*q_} {SC}", "st")
    for i in range(5):
        k.vmop(f"buffer_load_dwordx4 {vr(128+4*i,4)}, v3, s[12:15], s24 offen {SC}", f"h{i}")
        if i < 4: e("s_add_u32 s24, s24, 4096")
    k.waitvm("st")
    stats16(k, 24, 48, 52, 4)
    e("s_waitcnt lgkmcnt(0)"); e("s_barrier")
    def rd(n):
        i, j = n // 6, 2 + n % 6
        k.dsop(f"ds_read_b128 {vr(96+4*(n%6),4)}, v{40+i//2} offset:{(i%2)*32768+1024*(j//2)+256*(j%2)}", f"r{n}")
    for n in range(6): rd(n)
    for x in range(2): k.dsop(f"ds_read_b64 {vr(20+2*x,2)}, v45 offset:{UO+4096+512*x}", "u")
    for n in range(30):
        i = n // 6
        if n % 6 == 0: k.waitvm(f"h{i}")
        k.waitlg(f"r{n}")
        c = vr(148+4*(n%6), 4)
        e(f"v_mfma_f32_16x16x32_bf16 {c}, {vr(96+4*(n%6),4)}, {vr(128+4*i,4)}, {c if i else 0}")
        if n + 6 < 30: rd(n + 6)
    e("s_barrier")
    for n in range(6): e(f"ds_write_b128 v43, {vr(148+4*n,4)} offset:{1024*n}")
    e("s_waitcnt lgkmcnt(0)"); e("s_barrier")
    for p_ in range(4):
        for x in range(2): e(f"ds_read_b128 {vr(96+8*p_+4*x,4)}, v44 offset:{6144*p_+1024*x}")
    e("s_waitcnt lgkmcnt(0)")
    for r in range(8):
        e(f"v_add_f32 v{96+r}, v{96+r}, v{104+r}"); e(f"v_add_f32 v{112+r}, v{112+r}, v{120+r}"); e(f"v_add_f32 v{80+r}, v{96+r}, v{112+r}")
    for x in range(2): e(f"v_mfma_f32_16x16x16_bf16 {vr(80+4*x,4)}, {vr(20+2*x,2)}, v[52:53], {vr(80+4*x,4)}")
    for x in range(2): scale_pack(k, 80+4*x, lambda r: 48, 88+2*x)
    e("s_barrier")
    for x in range(2): e(f"ds_write_b64 v{50+x}, {vr(88+2*x,2)}")
    e("ds_write_b64 v47, v[56:57] offset:288")
    e(f"s_setprio {ENV('LPRIO', '2')}")
    e("s_waitcnt lgkmcnt(0)"); e("s_barrier")
    k.vm = []; k.lg = []

def one(k, target):
    k.e(f"v_mov_b32 v{PV_+1}, 0"); k.e(f"v_mov_b32 v{PV_+2}, {target}"); k.e("s_mov_b64 s[56:57], 1")

def kvpos(k):
    k.e("s_and_b32 s36, s19, 31"); k.e("s_lshl_b32 s36, s36, 1"); k.e("s_lshr_b32 s34, s19, 5"); k.e("s_add_u32 s36, s36, s34")
    k.e("s_add_u32 s36, s36, 44"); k.e("s_and_b32 s36, s36, 63")
def addr_v(k, img):
    e = k.e
    e("s_sub_u32 s35, s17, 10"); e("s_lshl_b32 s35, s35, 7")
    kvpos(k); e("s_mul_i32 s36, s36, 2560"); e(f"s_add_u32 s33, s36, {img+KVIMG+1280}")
    e("v_mul_u32_u24 v20, 320, v4")
    for jf in range(4):
        e(f"v_add_u32 v16, s35, v10")
        if jf: e(f"v_add_u32 v16, {32*jf}, v16")
        e("v_mul_u32_u24 v17, 52429, v16"); e("v_lshrrev_b32 v17, 20, v17")
        e("v_mul_u32_u24 v18, 20, v17"); e("v_sub_u32 v18, v16, v18")
        e("v_mul_u32_u24 v17, 163840, v17"); e("v_lshl_add_u32 v17, v18, 4, v17")
        e(f"v_add_u32 v{24+jf}, v17, v20")
def addr_qk(k, img, xm=52):
    e = k.e; k.xm = xm
    e("s_cmp_ge_u32 s17, 5")
    e(f"s_cselect_b32 s33, {QI}, 0"); e(f"s_cselect_b32 s59, 1.0, {fbits(CSCALE)}"); e("s_cselect_b32 s35, 5, 0"); e("s_cselect_b32 s37, 1, 0")
    e(f"s_add_u32 s33, s33, {img+QIMG}")
    e("s_sub_u32 s35, s17, s35")
    kvpos(k); e("s_cmp_eq_u32 s37, 0"); e("s_cselect_b32 s36, s19, s36")
    e("s_mul_i32 s36, s36, 1280"); e("s_lshl_b32 s36, s36, s37"); e("s_add_u32 s33, s33, s36")
    e("s_lshl_b32 s34, 81920, s37")
    e("v_lshlrev_b32 v16, 4, v10"); e("v_lshlrev_b32 v17, 3, v10")
    e("v_lshl_add_u32 v18, v4, 9, v16")
    e("s_sub_u32 s36, s34, 512"); e("v_and_b32 v19, s36, v59"); e("v_add_u32 v19, v19, v16")
    e(f"s_mov_b32 s{xm}, -1"); e(f"s_mov_b32 s{xm+1}, 0"); e(f"s_mov_b32 s{xm+2}, 0"); e(f"s_mov_b32 s{xm+3}, -1")
def epi_qk(k, ACC, BF):
    e = k.e; nm = k.name + k.ptag
    for v in range(1, 5):
        e(f"s_cmp_eq_u32 s35, {v}"); e(f"s_cbranch_scc1 {nm}_e{v}")
    QSC = os.environ.get("QSC", "sc1")
    for v in range(5):
        if v: k.label(f"{nm}_e{v}")
        e("s_nop 7")
        for jf in range(4):
            for r in range(16): e(f"v_mul_f32 v{ACC+16*jf+r}, v{ACC+16*jf+r}, v47")
            for r in range(8): e(f"v_cvt_pk_bf16_f32 v{BF+8*jf+r}, v{ACC+16*jf+2*r}, v{ACC+16*jf+2*r+1}")
            for a2 in range(2):
                x = BF+8*jf+4*a2
                e(f"v_permlane32_swap_b32 v{x}, v{x+2}"); e(f"v_permlane32_swap_b32 v{x+1}, v{x+3}")
            for a2 in range(2):
                x = BF+8*jf+4*a2
                G = [32*v+8*jf+4*a2, 32*v+8*jf+4*a2+2]
                def main(g):
                    h = g // 5; r = g % 5
                    return h, (r // 2 if h % 2 == 0 else (r - 1) // 2)
                st = [g % 10 == 4 for g in G]
                def hoff(dst, h, c):
                    if h: e(f"s_mul_i32 s{dst}, s34, {h}"); e(f"s_add_u32 s{dst}, s{dst}, s33")
                    else: e(f"s_mov_b32 s{dst}, s33")
                    if c: e(f"s_add_u32 s{dst}, s{dst}, {c}")
                if not any(st):
                    (h0, p0), (h1, p1) = main(G[0]), main(G[1])
                    hoff(36, h0, 512*p0)
                    if h0 == h1: e(f"buffer_store_dwordx4 {vr(x,4)}, v18, {k.srdo}, s36 offen {QSC}")
                    else:        e(f"buffer_store_dwordx4 {vr(x,4)}, v19, {k.srdo}, s36 offen {QSC}")
                    assert (h0 == h1 and (p0, p1) == (0, 1)) or (h1 == h0 + 1 and (p0, p1) == (1, 0))
                else:
                    m = st.index(False); q = 1 - m
                    h, p = main(G[m]); hoff(36, h, 512*p); hoff(37, G[q] // 5, 1024); e("s_add_u32 s38, s37, s34")
                    e(f"s_mov_b64 exec, s[{k.xm+2*m}:{k.xm+1+2*m}]")
                    e(f"buffer_store_dwordx4 {vr(x,4)}, v16, {k.srdo}, s36 offen {QSC}")
                    e(f"s_mov_b64 exec, s[{k.xm+2*q}:{k.xm+1+2*q}]")
                    e(f"buffer_store_dwordx2 {vr(x,2)}, v17, {k.srdo}, s37 offen {QSC}")
                    e(f"buffer_store_dwordx2 {vr(x+2,2)}, v17, {k.srdo}, s38 offen {QSC}")
                    e("s_mov_b64 exec, -1")
        e(f"s_branch {nm}_fin5")
def epi_v(k, ACC, BF, RS):
    e = k.e
    VSC = os.environ.get("VSC", "sc1")
    for jf in range(4):
        for r in range(16): e(f"v_mul_f32 v{ACC+16*jf+r}, v{ACC+16*jf+r}, v{RS+r}")
        for r in range(8): e(f"v_cvt_pk_bf16_f32 v{BF+8*jf+r}, v{ACC+16*jf+2*r}, v{ACC+16*jf+2*r+1}")
        for u in range(2):
            e(f"buffer_store_dwordx4 {vr(BF+8*jf+4*u,4)}, v{24+jf}, {k.srdo}, s33 offen offset:{640*u} {VSC}")

def qkva_c(k, xin, stin, img, cnt, wbar, st0):
    k.ptag = '_p5'; k.srdo = 's[12:15]'
    e = k.e; nm = k.name + k.ptag
    DA = 5
    ACC, BF, AR, RS = 64, 128, 160, 200
    gemm32_pre(k, xin, stin)
    e("v_lshlrev_b32 v12, 4, v10")
    e("s_lshl_b32 s31, s17, 11"); e(f"s_add_u32 s31, s31, {U_A}")
    for jf in range(4): k.vmop(f"buffer_load_dwordx4 {vr(24+4*jf,4)}, v12, s[12:15], s31 offen offset:{512*jf}", "u")
    def c4(): one(k, 16); e("s_lshl_b32 s48, s16, 8"); e(f"s_add_u32 s48, s48, {cnt}")
    wait_go(k, "p5", 1, c4)
    k.stamp(st0)
    ldA = gemm32_loads(k, RS_(xin))
    def prolog(vmode):
        gemm32_stats(k)
        for jf in range(4): usum(k, 24+4*jf, 50+2*jf, 18)
        if vmode:
            e("v_lshlrev_b32 v16, 4, v4")
            for r in range(16):
                e(f"v_add_u32 v17, {(8*(r//4) + r%4)*4}, v16")
                k.dsop(f"ds_bpermute_b32 v{RS+r}, v17, v47", "rs")
            addr_v(k, img)
        else:
            addr_qk(k, img); e("v_mul_f32 v47, s59, v47")
    e("s_cmp_ge_u32 s17, 10"); e(f"s_cbranch_scc1 {nm}_qv")
    vm_save = list(k.vm)
    def mainloop(vmode):
        gemm32(k, vmode, k.capture(lambda: prolog(vmode)), ldA, {w_ - 1 for w_ in wbar}, st0)
        e("s_barrier")
    mainloop(False)
    epi_qk(k, ACC, BF)
    k.label(f"{nm}_qv"); k.vm = vm_save; k.lg = []
    mainloop(True)
    epi_v(k, ACC, BF, RS)
    k.label(f"{nm}_fin5")

def ph_front(k):
    k.ptag = "_f"; k.srdo = "s[12:15]"
    e = k.e; nm = k.name + k.ptag; kn = k.name
    R, DEP, SCRB, UT = 4, 2, 131072, 65536
    need = lambda ks: ks // 2
    slot = lambda st: (st % R) * 32768
    e("s_cmp_ge_u32 s2, 256"); e(f"s_cbranch_scc1 {kn}_end"); k.stamp(0); k.rstamp(1)
    e("s_load_dwordx4 s[60:63], s[0:1], 0"); e("s_load_dwordx2 s[6:7], s[0:1], 64")
    e("s_load_dwordx2 s[4:5], s[0:1], 56")
    e("s_and_b32 s20, s2, 7"); e("s_lshr_b32 s21, s2, 3")
    e("v_lshrrev_b32 v2, 6, v0"); e("v_and_b32 v1, 63, v0")
    e("v_readfirstlane_b32 s18, v2")
    e("s_and_b32 s39, s18, 3"); e("s_lshl_b32 s45, s39, 10")
    ids_mt(k)
    e("v_lshlrev_b32 v3, 4, v1"); e(f"v_lshlrev_b32 v9, {ENV('BST', '6')}, v1")
    e("s_lshl_b32 s22, s2, 2"); e("s_add_u32 s22, s22, s39"); e("s_mul_i32 s23, s22, 2400"); e("s_mul_i32 s22, s22, 2560")
    def kwait():
        e("s_waitcnt lgkmcnt(0)")
        k.stamp(2)
        k.srd(8, 60, S*D*2); k.srd(28, 62, D*3*D*2); k.srd(12, 6, WS_END)
    def burst():
        if ENV('BURST', '1'):
            e("s_mov_b32 exec_hi, 0xff" if ENV('BST', '6') == 6 else "s_mov_b64 exec, 0xfffff")
            e("buffer_load_dword v240, v9, s[8:11], s22 offen"); e("buffer_load_dword v241, v9, s[28:31], s23 offen")
            e("s_mov_b64 exec, -1")
    def codepf(tg):
        if ENV('CPF', '1'):
            e("s_getpc_b64 s[34:35]"); k.label(f"{nm}_pc{tg}")
            e(f"s_sub_u32 s34, s34, {nm}_pc{tg} - {kn}"); e("s_subb_u32 s35, s35, 0")
            e("v_lshlrev_b32 v242, 4, v0"); e("s_lshl_b32 s36, s21, 12"); e("v_add_u32 v242, s36, v242")
            e(f"v_and_b32 v242, 0xffffffc0, v242"); e(f"v_min_u32 v242, code_end - {kn} - 4, v242")
            e("global_load_dword v243, v242, s[34:35]")
    e("s_cmp_ge_u32 s17, 15"); e(f"s_cbranch_scc1 {nm}_ub")
    e("v_and_b32 v10, 31, v1"); e("v_lshrrev_b32 v4, 5, v1"); e("v_and_b32 v5, 15, v1"); e("v_bfe_u32 v7, v1, 4, 1")
    e("v_lshrrev_b32 v13, 2, v5"); e("v_and_b32 v6, 3, v1")
    e("v_lshl_add_u32 v14, v4, 3, v13"); e("v_lshlrev_b32 v14, 8, v14"); e("v_lshl_add_u32 v14, v7, 5, v14"); e("v_lshl_add_u32 v14, v6, 3, v14")
    e("v_add_u32 v14, 16384, v14")
    def a0():
        e("s_lshl_b32 s48, s17, 11"); e(f"s_add_u32 s48, s48, {C0}"); e(f"v_lshlrev_b32 v{PV_+1}, 8, v1"); e("s_mov_b64 s[56:57], 0xff")
    SF = ENV('SF', '10')
    e("s_cmp_ge_u32 s18, 4"); e(f"s_cbranch_scc1 {nm}_ld")
    kwait(); burst(); codepf("c")
    if ENV('TLB', '1'):
        sh = ENV('TLBS', '18')
        e("s_load_dwordx4 s[84:87], s[0:1], 32"); e("s_load_dwordx2 s[88:89], s[0:1], 16"); e("s_load_dwordx2 s[90:91], s[0:1], 48")
        e(f"v_lshlrev_b32 v236, {sh}, v0" if sh < 21 else "v_lshlrev_b32 v236, 21, v1")
        e(f"v_min_u32 v236, {STAMPS-4}, v236")
        e("s_cmp_eq_u32 s18, 0" if sh == 21 else "s_cmp_lt_u32 s18, 4"); e(f"s_cbranch_scc0 {nm}_tl")
        e("buffer_load_dword v237, v236, s[12:15], 0 offen")
        e("v_and_b32 v236, 1, v1"); e("v_mul_u32_u24 v238, 819196, v236"); e("v_mul_u32_u24 v236, 2457596, v236"); e("s_mov_b64 exec, 3")
        e("s_waitcnt lgkmcnt(0)")
        e("global_load_dword v237, v236, s[84:85]"); e("global_load_dword v237, v238, s[86:87]"); e("global_load_dword v237, v238, s[88:89]"); e("global_load_dword v237, v236, s[90:91]")
        e("s_mov_b64 exec, -1")
        k.label(f"{nm}_tl")
        e("s_waitcnt lgkmcnt(0)")
    ACC, BF, AR, RS = 64, 128, 160, 200
    BA, AA = 216, 224
    e("s_lshl_b32 s19, s16, 2"); e("s_add_u32 s19, s19, s18")
    for jf in range(4):
        e(f"v_xor_b32 v15, {jf}, v13"); e(f"v_lshl_add_u32 v{BA+jf}, v15, 6, v14"); e(f"v_add_u32 v{BA+4+jf}, 65536, v{BA+jf}")
    e("v_lshl_add_u32 v15, v2, 5, v10"); e("v_lshlrev_b32 v15, 7, v15"); e("v_bfe_u32 v12, v10, 1, 3"); e("v_xor_b32 v12, v12, v4")
    for q in range(4):
        e(f"v_xor_b32 v11, {2*q}, v12"); e(f"v_lshl_add_u32 v{AA+q}, v11, 4, v15"); e(f"v_add_u32 v{AA+4+q}, 65536, v{AA+q}")
    e("v_mul_u32_u24 v8, 20480, v7"); e("v_lshl_add_u32 v8, v4, 8, v8"); e("v_lshl_add_u32 v8, v5, 4, v8")
    e("s_mul_i32 s24, s19, 40960"); e(f"s_add_u32 s24, s24, {XI}")
    e("v_subrev_u32 v58, 1, v4"); e("v_not_b32 v59, v58")
    e("s_lshl_b32 s40, s2, 2"); e("s_add_u32 s40, s40, s39"); e("s_mul_i32 s40, s40, 8192"); e(f"s_add_u32 s40, s40, {QIMG}"); e("v_lshlrev_b32 v238, 7, v1")
    e("s_cmp_ge_u32 s17, 10"); e(f"s_cbranch_scc1 {nm}_qv")
    def mainloop(vmode):
        tagm = "v" if vmode else "q"
        acc = lambda jf: vr(ACC+16*jf, 16)
        fl = k.capture(lambda: addr_v(k, 0) if vmode else addr_qk(k, 0, 28))
        def rdB(ks, f):
            u, jf = f//4, f%4; sl = slot(ks//2)
            for t in range(2):
                off = sl + (32*(ks%2) + 16*u + 4*t)*256
                k.dsop(f"ds_read_b64_tr_b16 {vr(BF+4*f+2*t,2)}, v{BA+4*(sl>>16)+jf} offset:{off & 0xffff}", f"b{ks}_{f}")
        def rdA(ks):
            sl = slot(ks//2)
            for u in range(2): k.dsop(f"ds_read_b128 {vr(AR+8*(ks%2)+4*u,4)}, v{AA+4*(sl>>16)+2*(ks%2)+u} offset:{sl & 0xffff}", f"b{ks}_a")
        kb = [-1]
        def bars(ks):
            while kb[0] < need(ks): e("s_barrier"); kb[0] += 1
        bars(0); k.stamp(3)
        rdA(0)
        for f in range(8): rdB(0, f)
        for ks in range(20):
            for f in range(8):
                u, jf = f//4, f%4
                if f % 2 == 0: k.waitlg(f"b{ks}_{f+1}")
                a = vr(AR+8*(ks%2)+4*u, 4); b = vr(BF+4*f, 4); c = acc(jf) if (ks or u) else "0"
                if vmode: e(f"v_mfma_f32_32x32x16_bf16 {acc(jf)}, {a}, {b}, {c}")
                else:     e(f"v_mfma_f32_32x32x16_bf16 {acc(jf)}, {b}, {a}, {c}")
                if ks + 1 < 20:
                    if f == 0: bars(ks+1); rdA(ks+1)
                    rdB(ks+1, f)
                if ks >= 4: k.fill(fl, 1)
            e(f"s_cmp_eq_u32 s17, {ks % 15}"); e(f"s_cbranch_scc0 {nm}_x{tagm}{ks}")
            e(f"s_add_u32 s32, s24, {1024*ks}")
            for u in range(2): e(f"buffer_store_dwordx4 {vr(AR+8*(ks%2)+4*u,4)}, v8, s[12:15], s32 offen offset:{512*u} {SC}")
            k.label(f"{nm}_x{tagm}{ks}")
            if ENV('FT', '0') and ks == ENV('FT', '0'): e("buffer_load_dword v239, v238, s[12:15], s40 offen")
            if ks in (0, 1, 4, 9, 10, 14): k.stamp(7 + (0, 1, 4, 9, 10, 14).index(ks))
        assert not fl
        k.stamp(4)
        e(f"v_lshlrev_b32 v23, 2, v10"); e(f"v_add_u32 v23, {UT}, v23"); e("s_lshl_b32 s32, s18, 8"); e("v_add_u32 v22, s32, v23")
        if vmode: e("v_lshlrev_b32 v21, 4, v4"); e(f"s_add_u32 s32, s32, {UT}"); e("v_add_u32 v21, s32, v21")
        e("s_barrier")
        e("ds_read_b32 v48, v22 offset:1024"); e("ds_read_b32 v49, v22 offset:1152")
        for jf in range(4): e(f"ds_read_b32 v{28+2*jf}, v23 offset:{256*jf}"); e(f"ds_read_b32 v{29+2*jf}, v23 offset:{256*jf+128}")
        if vmode:
            for a_ in range(4): e(f"ds_read_b128 {vr(RS+4*a_,4)}, v21 offset:{2048+32*a_}")
        else: e("ds_read_b32 v47, v22 offset:2048")
        e("s_waitcnt lgkmcnt(0)"); k.lg = []
        e("v_and_b32 v48, v48, v58"); e("v_and_b32 v49, v49, v58")
        if not vmode: e("v_mul_f32 v47, s59, v47")
        for jf in range(4):
            if vmode: e(f"v_mfma_f32_32x32x8_bf16 {acc(jf)}, v[48:49], {vr(28+2*jf,2)}, {acc(jf)}")
            else:     e(f"v_mfma_f32_32x32x8_bf16 {acc(jf)}, {vr(28+2*jf,2)}, v[48:49], {acc(jf)}")
        k.stamp(5)
    mainloop(False)
    epi_qk(k, ACC, BF)
    k.label(f"{nm}_qv"); k.lg = []
    mainloop(True)
    epi_v(k, ACC, BF, RS)
    k.label(f"{nm}_fin5")
    k.stamp(6)
    e("s_barrier")
    signal(k, "sf", -1, 8, a0, 0, "s[12:15]")
    k.dump(13)
    e(f"s_branch {kn}_t0")
    k.label(f"{nm}_ld"); k.vm = []; k.lg = []
    e(f"s_setprio {ENV('LPRIO', '2')}")
    e("v_lshrrev_b32 v16, 4, v1"); e("v_and_b32 v17, 3, v2")
    e("v_lshl_add_u32 v18, v17, 2, v16"); e("v_mul_u32_u24 v20, 3840, v18")
    e("v_xor_b32 v18, v13, v16"); e("v_lshl_add_u32 v20, v18, 6, v20"); e("v_lshl_add_u32 v20, v6, 4, v20")
    e("v_lshrrev_b32 v18, 3, v1"); e("v_lshl_add_u32 v19, v17, 5, v18"); e("v_and_b32 v23, 7, v1")
    for i in range(4):
        e(f"v_add_u32 v42, {8*i}, v19"); e("v_bfe_u32 v43, v42, 1, 3"); e("v_xor_b32 v43, v43, v23")
        e("v_mul_u32_u24 v42, 1280, v42"); e(f"v_lshl_add_u32 v{48+i}, v43, 4, v42")
        if i: e(f"v_subrev_u32 v{48+i}, {1024*i}, v{48+i}")
    e("s_lshl_b32 s25, s17, 8"); e("s_mul_i32 s24, s16, 163840"); e("s_lshl_b32 s26, s39, 12")
    def ld1(st, n):
        if n < 4:
            e(f"s_add_u32 m0, s45, {slot(st)+16384+4096*n}"); e(f"s_add_u32 s32, s25, {(64*st+16*n)*3840}")
            k.vmop("buffer_load_dwordx4 v20, s[28:31], s32 offen lds", f"d{st}")
        else:
            e(f"s_add_u32 m0, s26, {slot(st)}"); e(f"s_add_u32 s33, s24, {128*st}")
            k.vmop(f"buffer_load_dwordx4 v{44+n}, s[8:11], s33 offen offset:{1024*(n-4)} lds", f"d{st}")
    ORD = [0, 4, 1, 5, 2, 6, 3, 7]
    def ld(st):
        for n in ORD: ld1(st, n)
    kwait(); ld(0)
    e("v_xor_b32 v15, v17, v13"); e("v_lshl_add_u32 v40, v15, 6, v14"); e("v_add_u32 v41, 65536, v40")
    e("v_and_b32 v42, 1, v16"); e("v_cmp_eq_u32 vcc, v42, v5"); e("v_mov_b32 v43, 0x3f803f80")
    for r in range(4): e(f"v_cndmask_b32 v{60+r}, 0, v43, vcc")
    k.srd(52, 4, 256)
    e("s_mul_i32 s27, s17, 163840"); e("s_add_u32 s27, s27, s45"); e(f"s_add_u32 s27, s27, {WA_I}")
    if ENV('LD1', '0'): ld(1)
    done = [0]
    def steps_of(kb):
        r = []
        while done[0] < 20 and need(done[0]) <= kb: r.append(done[0]); done[0] += 1
        return r
    def wa_store(q):
        e("s_lshl_b32 s32, s16, 13"); e("s_add_u32 s32, s32, s27")
        if q: e("s_add_u32 s32, s32, 131072")
        e("s_add_u32 s33, s32, 4096")
        for u in range(2): k.vmop(f"buffer_store_dwordx4 {vr(112+8*q+4*u,4)}, v3, s[12:15], s{32+u} offen {SC}")
    for kb in range(10):
        if kb == 5: k.stamp(5)
        k.waitvm(f"d{kb}")
        if kb == 5: k.stamp(6)
        e("s_barrier")
        if kb in (4, 5): k.stamp(2 if kb == 4 else 7)
        if kb == 0 and not ENV('LD1', '0'): ld(1)
        sl = slot(kb); todo = list(ORD) if kb + DEP < 10 else []
        nxt = lambda: ld1(kb + DEP, todo.pop(0)) if todo else None
        sts = steps_of(kb)
        for n_, ks in enumerate(sts):
            for u in range(2):
                for t in range(2):
                    e(f"ds_read_b64_tr_b16 {vr(136+8*n_+4*u+2*t,2)}, v{40+(sl>>16)} offset:{(sl + (32*(ks%2) + 16*u + 4*t)*256) & 0xffff}")
        nxt(); nxt()
        if kb == 4: k.stamp(3)
        e("s_waitcnt lgkmcnt(0)")
        mf = [(n_, ks, u) for n_, ks in enumerate(sts) for u in range(2)]
        for n_, ks, u in mf:
            e(f"v_mfma_f32_16x16x32_bf16 v[64:67], v[60:63], {vr(136+8*n_+4*u,4)}, {'v[64:67]' if ks or u else 0}")
            nxt()
        nxt(); nxt()
        if kb == 4: k.stamp(4)
        for n_, ks in enumerate(sts):
            e(f"s_cmp_eq_u32 s16, {ks % 16}"); e(f"s_cbranch_scc0 {nm}_w{ks}")
            for r in range(8): e(f"v_mov_b32 v{112+8*(ks//16)+r}, v{136+8*n_+r}")
            k.label(f"{nm}_w{ks}")
        assert not todo
        if kb == 8:
            e("v_and_b32 v24, 15, v1"); e("v_lshlrev_b32 v24, 2, v24"); e("s_mov_b32 s33, 0")
            k.label(f"{nm}_pl")
            e(f"buffer_load_dword v25, v24, s[52:55], 0 offen {SC}"); e("s_add_u32 s33, s33, 1"); e("s_waitcnt vmcnt(0)"); k.vm = []
            e("v_cmp_eq_u32 vcc, 0, v25"); e("s_cmp_ge_u32 s33, 0x20000"); e(f"s_cbranch_scc1 {nm}_px")
            e(f"s_cbranch_vccnz {nm}_pl")
            k.label(f"{nm}_px")
            e("v_lshlrev_b32 v24, 3, v10"); e("s_lshl_b32 s32, s16, 10"); e("s_lshl_b32 s33, s39, 8"); e("s_add_u32 s32, s32, s33"); e(f"s_add_u32 s32, s32, {STI}")
            k.vmop(f"buffer_load_dwordx2 v[44:45], v24, s[12:15], s32 offen {SC}", "rs")
            wa_store(0)
    k.waitvm("rs")
    stats_finish(k, 44, 45, 28, 29, 30)
    e("v_lshlrev_b32 v42, 2, v5"); e("ds_bpermute_b32 v68, v42, v64"); e("ds_bpermute_b32 v69, v42, v65"); e("v_cmp_eq_u32 vcc, 1, v7")
    split3(k, 28, 32, 36, 'm')
    e("s_waitcnt lgkmcnt(0)"); e("v_cndmask_b32 v64, v68, v69, vcc")
    split3(k, 64, 34, 36, 'u')
    e("v_lshlrev_b32 v24, 2, v10"); e("s_lshl_b32 s32, s39, 8"); e(f"s_add_u32 s32, s32, {UT}"); e("v_add_u32 v24, s32, v24")
    e("ds_write_b32 v24, v34"); e("ds_write_b32 v24, v35 offset:128"); e("ds_write_b32 v24, v32 offset:1024"); e("ds_write_b32 v24, v33 offset:1152"); e("ds_write_b32 v24, v29 offset:2048")
    e("s_waitcnt lgkmcnt(0)"); e("s_barrier")
    lwc_init(k); e("s_barrier")
    e("v_mov_b32 v44, v64")
    e("s_cmp_ge_u32 s16, 4"); e(f"s_cbranch_scc1 {nm}_le"); wa_store(1)
    e("s_cmp_eq_u32 s16, 0"); e(f"s_cbranch_scc0 {nm}_le")
    e("v_mov_b32 v45, 0"); e("v_mov_b32 v46, 0"); e("v_mov_b32 v47, 0"); e("v_lshlrev_b32 v24, 4, v10")
    e("s_lshl_b32 s32, s17, 11"); e("s_lshl_b32 s33, s39, 9"); e("s_add_u32 s32, s32, s33"); e(f"s_add_u32 s32, s32, {U_A}")
    e("s_mov_b32 exec_hi, 0"); e(f"buffer_store_dwordx4 v[44:47], v24, s[12:15], s32 offen {SC}")
    k.label(f"{nm}_le")
    e("s_mov_b64 exec, -1")
    signal(k, "sfl", -1, 8, a0, 0, "s[12:15]")
    k.dump(8)
    e(f"s_branch {kn}_t0")
    k.label(f"{nm}_ub"); k.vm = []; k.lg = []
    kwait()
    e("v_lshrrev_b32 v4, 3, v1"); e("v_lshl_add_u32 v4, v2, 4, v4"); e("v_mul_u32_u24 v5, 1280, v4"); e("v_and_b32 v6, 7, v1"); e("v_lshl_add_u32 v5, v6, 4, v5")
    e("s_mul_i32 s24, s16, 163840"); e("s_add_u32 s25, s24, 10240")
    for b_ in range(2):
        for i in range(10): k.vmop(f"buffer_load_dwordx4 {vr(24+40*b_+4*i,4)}, v5, s[8:11], s{24+b_} offen offset:{128*i}", f"x{b_}{i}")
    for j in range(8): e(f"v_mov_b32 v{8+j}, 0")
    e("v_mov_b32 v7, 0x3f803f80")
    e("v_lshlrev_b32 v16, 4, v0"); e("s_and_b32 s26, s16, 7"); e("s_lshl_b32 s26, s26, 13"); e(f"s_add_u32 s26, s26, {CNT}"); e("s_cmp_ge_u32 s16, 8"); e(f"s_cselect_b32 s27, {LS}, 0"); e("s_add_u32 s26, s26, s27")
    k.vmop(f"buffer_store_dwordx4 v[12:15], v16, s[12:15], s26 offen {SC}")
    for b_ in range(2):
        for i in range(10):
            k.waitvm(f"x{b_}{i}")
            for q in range(4):
                r = 24+40*b_+4*i+q
                e(f"v_dot2_f32_bf16 v{8+2*b_}, v{r}, v7, v{8+2*b_}"); e(f"v_dot2_f32_bf16 v{9+2*b_}, v{r}, v{r}, v{9+2*b_}")
    for dpp in ("quad_perm:[1,0,3,2]", "quad_perm:[2,3,0,1]", "row_half_mirror"):
        for q in range(4): e(f"v_add_f32_dpp v{8+q}, v{8+q}, v{8+q} {dpp} row_mask:0xf bank_mask:0xf")
    e("v_lshlrev_b32 v4, 3, v4"); e("s_lshl_b32 s26, s16, 10"); e(f"s_add_u32 s26, s26, {STI}")
    e("v_cmp_eq_u32 vcc, 0, v6"); k.srd(52, 4, 256); e("s_mov_b64 exec, vcc")
    e(f"buffer_store_dwordx2 v[8:9], v4, s[12:15], s26 offen {SC}"); e(f"buffer_store_dwordx2 v[10:11], v4, s[12:15], s26 offen offset:64 {SC}")
    e("s_mov_b64 exec, -1"); lwc_init(k)
    e("s_waitcnt vmcnt(0)"); e("s_barrier")
    e("s_cmp_ge_u32 s18, 4"); e(f"s_cbranch_scc1 {nm}_u2")
    codepf("u")
    e("s_cmp_eq_u32 s18, 0"); e(f"s_cbranch_scc0 {nm}_u2")
    e("v_mov_b32 v4, 0"); e("v_mov_b32 v5, 1"); e("s_lshl_b32 s26, s16, 2"); e("s_mov_b64 exec, 1")
    e(f"buffer_store_dword v5, v4, s[52:55], s26 offen {SC}")
    e("s_mov_b64 exec, 0xffff"); e("v_lshlrev_b32 v4, 2, v1"); e("s_mov_b32 s33, 0")
    k.label(f"{nm}_u1")
    e(f"buffer_load_dword v5, v4, s[52:55], 0 offen {SC}"); e("s_add_u32 s33, s33, 1"); e("s_waitcnt vmcnt(0)")
    e("v_cmp_eq_u32 vcc, 0, v5"); e("s_cmp_ge_u32 s33, 0x20000"); e(f"s_cbranch_scc1 {nm}_u2"); e(f"s_cbranch_vccnz {nm}_u1")
    k.label(f"{nm}_u2")
    e("s_mov_b64 exec, -1"); e("s_waitcnt vmcnt(0)")

def k_main():
    k = KB(NAME + "_kernel"); e = k.e; name = k.name
    ph_front(k)
    k.label(f"{name}_t0")
    e("s_load_dwordx2 s[46:47], s[0:1], 48"); e("s_mov_b32 s3, 0")
    k.srd(8, 6, 2*LS)
    e("s_waitcnt lgkmcnt(0)")
    k.srd(60, 46, S*D*2)
    k.label(f"{name}_top")
    k.vm = []; k.lg = []
    e("s_setprio 0"); k.stamp(0); k.rstamp(1)
    ph_attn(k)
    def a1():
        e("s_lshl_b32 s48, s17, 3"); e("s_and_b32 s49, s16, 1"); e("s_add_u32 s48, s48, s49"); e("s_lshl_b32 s48, s48, 8"); e(f"s_add_u32 s48, s48, {C1}")
        e(f"v_lshlrev_b32 v{PV_+1}, 9, v1"); e("s_mov_b64 s[56:57], 15")
    e("s_cmp_ge_u32 s18, 4"); e(f"s_cbranch_scc1 {name}_ld")
    signal(k, "s1", 0, 8, a1)
    def c1():
        e("s_lshl_b32 s48, s16, 9"); e(f"s_add_u32 s48, s48, {C1}")
        e(f"v_lshlrev_b32 v{PV_+1}, 8, v1"); e(f"v_mov_b32 v{PV_+2}, 16"); e("s_mov_b64 s[56:57], 3")
    proj_c(k, "p2", OT, XI, XM, STM, False, c1, 0, 6)
    def a2():
        e("s_lshr_b32 s48, s16, 1"); e("s_lshl_b32 s48, s48, 9"); e(f"s_add_u32 s48, s48, {C2}")
        e(f"v_mul_u32_u24 v{PV_+1}, 768, v1"); e("s_bitcmp1_b32 s16, 0"); e("s_cselect_b64 s[56:57], 3, 1")
    signal(k, "s2", 1, 4, a2)
    qkvb_c(k, XM, STM, 9)
    def a3(): one(k, 0); e("s_lshl_b32 s48, s16, 8"); e(f"s_add_u32 s48, s48, {C3}")
    signal(k, "s3", 0, 4, a3)
    def c3(): one(k, 16); e("s_lshr_b32 s48, s16, 1"); e("s_lshl_b32 s48, s48, 8"); e(f"s_add_u32 s48, s48, {C3}")
    proj_c(k, "p4", OBT, XM, XI, STI, True, c3, 0, 12)
    def a4(): one(k, 0); e("s_lshr_b32 s48, s16, 1"); e("s_lshl_b32 s48, s48, 8"); e(f"s_add_u32 s48, s48, {C4}")
    signal(k, "s4", 1, 4, a4)
    k.dump(15, "1")
    ids_mt(k)
    e("s_cmp_ge_u32 s17, 15"); e(f"s_cbranch_scc1 {name}_idle")
    qkva_c(k, XI, STI, 0, C4, [7], 3)
    k.stamp(6)
    e("s_barrier")
    def a5(): e("s_lshl_b32 s48, s17, 11"); e(f"s_add_u32 s48, s48, {LS + C0}"); e(f"v_lshlrev_b32 v{PV_+1}, 8, v1"); e("s_mov_b64 s[56:57], 0xff")
    signal(k, "s5", -1, 4, a5)
    k.dump(7, "3")
    k.label(f"{name}_t1")
    e("s_mov_b32 s3, 1"); e(f"s_add_u32 s8, s8, {LS}"); e("s_addc_u32 s9, s9, 0"); e(f"s_mov_b32 s10, {LS}")
    e(f"s_branch {name}_top")
    k.label(f"{name}_idle")
    for _ in range(4): e("s_barrier")
    e(f"s_branch {name}_t1")
    k.label(f"{name}_ld"); k.vm = []; k.lg = []
    if os.environ.get("FOC") == "at": e("s_add_u32 s84, s3, 4"); k.dump(8, "s84")
    e(f"s_setprio {ENV('LPRIO', '2')}")
    w = proj_l(k, WOA_I, WB_I, OT, a1, 0)
    qkvb_l(k, XM, STM, w)
    w = proj_l(k, WOB_I, WA_I, OBT, None, 0, True)
    ids_mt(k)
    atouch_pre(k, XI)
    e("s_barrier")
    e("buffer_load_dword v20, v21, s[12:15], s51 offen")
    w.one(39); e("s_waitcnt vmcnt(0)"); e("s_barrier")
    e("s_barrier"); lwc_init(k); e("s_barrier")
    e(f"s_branch {name}_t1")
    k.label(f"{name}_end"); e("s_endpgm")
    k.tail()
    return k.text(256 if STAMP else 244, 256 if STAMP else 244)

def build():
    hdr = open("cdna_kernels/" + NAME + ".s.ref").read().split("; Override launch")[0]
    out = hdr + "; @launch grid=(256,1,1) block=(512,1,1) lds=163840\n"
    out += '.amdgcn_target "amdgcn-amd-amdhsa--gfx950"\n'
    out += k_main()
    out += ".text\ncode_end:\n"
    return out

if __name__ == "__main__":
    dst = sys.argv[1] if len(sys.argv) > 1 else "cdna_kernels/" + NAME + ".s"
    open(dst, "w").write(build())
    print("wrote", dst)
```

```python
import sys, math
from lint import lint, fix

NAME = "interleave_layers__softmax_full_mha__sliding_local_dilated__prompt"
S, D, H, DH = 2048, 640, 32, 20
XS = S*D*2
IMG = H*64*2560
QI = H*64*1280
CNT = 0
C1 = CNT; C2 = C1 + 64*256; C3 = C2 + 34*256; C4 = C3 + 16*256; C0 = C4 + 16*256
LS = 65536
CS = LS + C4
XI = 2*LS; STI = XI + XS
QIMG = STI + S*64; KVIMG = QIMG + QI
OT = KVIMG + IMG; OBT = OT + XS; XM = OBT + XS
STM = XM + XS
U_A = STM + S*64
U_B = U_A + 32768
WA_I = U_B + 163840
WOA_I = WA_I + 15*163840
WB_I = WOA_I + 819200
WOB_I = WB_I + 16*163840
STAMPS = WOB_I + 819200
WS_END = STAMPS + 16*262144
import os
STAMP = int(os.environ.get("STAMP", "0"))
ATTN_WAVES = 8
AV = os.environ.get("AV", "")
CSCALE = (DH ** -0.5) * math.log2(math.e)
import struct
def fbits(x): return "0x%08x" % struct.unpack("<I", struct.pack("<f", x))[0]

FM = [(0,16),(32,48),(80,96),(112,128),(64,144)]
def FX(ks, t):
    return 160*(ks//5) + FM[ks%5][t]

class KB:
    def __init__(s, name):
        s.name = name; s.L = []; s.vm = []; s.lg = []; s.cap = None
    def e(s, line):
        if s.cap is not None: s.cap.append(('e', line, None))
        else: s.L.append("    " + line)
    def capture(s, fn):
        s.cap = []; fn(); c = s.cap; s.cap = None
        return [x for x in c if not (x[0] == 'e' and x[1].startswith('s_nop'))]
    def fill(s, lst, n=1):
        for _ in range(n):
            if not lst: return
            kind, a, b = lst.pop(0)
            if kind == 'e':
                s.e(a)
                if a.startswith('s_cmp'):
                    while lst and lst[0][0] == 'e' and lst[0][1].startswith('s_cselect'): s.e(lst.pop(0)[1])
            elif kind == 'ds': s.dsop(a, b)
            elif kind == 'wvm': s.waitvm(a)
            elif kind == 'wlg': s.waitlg(a)
    def c(s, txt): s.L.append("    ; " + txt)
    def label(s, l): s.L.append(l + ":")
    def vmop(s, line, tag=None): s.e(line); s.vm.append(tag); assert len(s.vm) <= 63, (s.name, len(s.vm))
    def dsop(s, line, tag=None):
        if s.cap is not None: s.cap.append(('ds', line, tag)); return
        s.e(line); s.lg.append(tag)
    def _n(s, lst, tag):
        idx = max(i for i, t in enumerate(lst) if t == tag)
        return idx
    def waitvm(s, tag):
        if s.cap is not None: s.cap.append(('wvm', tag, None)); return
        if tag not in s.vm: return
        i = s._n(s.vm, tag); n = len(s.vm) - 1 - i
        s.e(f"s_waitcnt vmcnt({n})"); s.vm = s.vm[i+1:]
    def waitlg(s, tag):
        if s.cap is not None: s.cap.append(('wlg', tag, None)); return
        if tag not in s.lg: return
        i = s._n(s.lg, tag); n = len(s.lg) - 1 - i
        if n > 15: n = 15; i = len(s.lg) - 1 - n
        s.e(f"s_waitcnt lgkmcnt({n})"); s.lg = s.lg[i+1:]
    def waitall(s):
        s.e("s_waitcnt vmcnt(0) lgkmcnt(0)"); s.vm = []; s.lg = []
    def srd(s, r, base, nbytes):
        s.e(f"s_mov_b32 s{r}, s{base}")
        s.e(f"s_and_b32 s{r+1}, s{base+1}, 0xffff")
        s.e(f"s_mov_b32 s{r+2}, {nbytes}")
        s.e(f"s_mov_b32 s{r+3}, 0x20000")
    def stamp(s, i):
        if not STAMP: return
        op = "s_memrealtime" if os.environ.get("RT") else "s_memtime"
        s.e(f"{op} s[{64+2*i}:{65+2*i}]" if i < 10 else f"{op} s[{72+2*i}:{73+2*i}]")
    def rstamp(s, i):
        if not STAMP: return
        s.e(f"s_memrealtime s[{64+2*i}:{65+2*i}]")
    def dump(s, n=8, slot="0", wave="s18"):
        if not STAMP: return
        e = s.e
        if os.environ.get("DBG"):
            keep = {"0": [(1, 246), (3, 247), (6, 248)], "1": [(2, 249), (5, 250), (14, 251)], "3": [(6, 252)], "2": [(2, 253), (5, 254), (14, 255)]}[slot]
            e("s_waitcnt lgkmcnt(0)")
            if n < 7 or (slot == "0" and n == 8): return
            for i, v in keep: e(f"v_mov_b32 v{v}, s{64+2*i if i < 10 else 72+2*i}")
            if slot == "2":
                e(f"s_cmp_eq_u32 s2, {os.environ['DBG']}"); e("s_cbranch_scc0 dbg_skip"); e("s_cmp_eq_u32 s18, 0"); e("s_cbranch_scc0 dbg_skip")
                e("s_load_dwordx2 s[84:85], s[0:1], 56"); e("s_memrealtime s[86:87]"); e("s_waitcnt lgkmcnt(0)")
                s.srd(88, 84, 256); e("s_mov_b64 exec, 1"); e("v_mov_b32 v0, 0"); e("v_mov_b32 v245, s86"); e("v_sub_u32 v245, v245, v246")
                for i in range(9):
                    e(f"v_sub_u32 v{247+i}, v{247+i}, v246"); e(f"buffer_store_dword v{247+i}, v0, s[88:91], 0 offen offset:{4*i}")
                e("buffer_store_dword v245, v0, s[88:91], 0 offen offset:36")
                s.label("dbg_skip")
            return
        e("s_memrealtime s[86:87]"); e("s_waitcnt lgkmcnt(0)")
        e("s_mov_b64 exec, 1")
        e(f"s_lshl_b32 s84, {slot}, 18")
        e("s_lshl_b32 s85, s2, 3"); e(f"s_add_u32 s85, s85, {wave}"); e("s_lshl_b32 s85, s85, 6"); e(f"s_add_u32 s85, s85, {STAMPS}"); e("s_add_u32 s85, s85, s84")
        e("v_mov_b32 v244, 0")
        for i in range(n):
            e(f"v_mov_b32 v245, s{64+2*i if i < 10 else 72+2*i}")
            e(f"buffer_store_dword v245, v244, s[12:15], s85 offen offset:{4*i}")
        e("v_mov_b32 v245, s86"); e("buffer_store_dword v245, v244, s[12:15], s85 offen offset:60")
        e("s_mov_b64 exec, -1")
    def text(s, vgpr, accum, sgpr=102):
        s.L, added = fix(s.L)
        if os.environ.get("V"): print(s.name, "auto nops:", added, "lines:", len(s.L))
        out = [".text", f".globl {s.name}", ".p2align 8", f".type {s.name},@function", f"{s.name}:"]
        out += s.L
        out += ['.section .rodata,"a"', ".p2align 6", f".amdhsa_kernel {s.name}",
                f"  .amdhsa_next_free_vgpr {vgpr}", f"  .amdhsa_next_free_sgpr {sgpr}", f"  .amdhsa_accum_offset {accum}",
                "  .amdhsa_group_segment_fixed_size 0", "  .amdhsa_kernarg_size 72", "  .amdhsa_user_sgpr_count 2",
                "  .amdhsa_user_sgpr_kernarg_segment_ptr 1", "  .amdhsa_system_sgpr_workgroup_id_x 1", ".end_amdhsa_kernel"]
        nb = lint(s.L, s.name)
        assert nb == 0, f"{nb} hazards in {s.name}"
        return "\n".join(out) + "\n"
    def allred32(s, op, v, t):
        s.e(f"v_mov_b32 v{t}, v{v}"); s.e("s_nop 1")
        s.e(f"v_permlane32_swap_b32 v{v}, v{t}"); s.e("s_nop 1")
        s.e(f"{op} v{v}, v{v}, v{t}")
    def allred16(s, op, v, t):
        s.e(f"v_mov_b32 v{t}, v{v}"); s.e("s_nop 1")
        s.e(f"v_permlane16_swap_b32 v{v}, v{t}"); s.e("s_nop 1")
        s.e(f"{op} v{v}, v{v}, v{t}")

def vr(a, n): return f"v[{a}:{a+n-1}]" if n > 1 else f"v{a}"
def ar(a, n): return f"a[{a}:{a+n-1}]" if n > 1 else f"a{a}"

def stats_finish(k, s1, s2, mean, rstd, t):
    e = k.e
    e(f"v_mul_f32 v{mean}, {fbits(1.0/D)}, v{s1}")
    e(f"v_mul_f32 v{t}, {fbits(1.0/D)}, v{s2}")
    e(f"v_fma_f32 v{t}, -v{mean}, v{mean}, v{t}")
    e(f"v_max_f32 v{t}, 0, v{t}")
    e(f"v_add_f32 v{t}, {fbits(1e-5)}, v{t}")
    e(f"v_rsq_f32 v{rstd}, v{t}")
    e("s_nop 0")

def split3(k, src, d, t, kind, maskv=None):
    e = k.e
    if kind == 'm':
        e(f"v_xor_b32 v{t+1}, 0x80000000, v{src}"); src = t+1
    e(f"v_and_b32 v{t}, 0xffff0000, v{src}")
    e(f"v_sub_f32 v{t+2}, v{src}, v{t}")
    if kind == 'u':
        e(f"v_cvt_pk_bf16_f32 v{d}, v{t}, v{t+2}")
        e(f"v_lshrrev_b32 v{d+1}, 16, v{t}")
    else:
        e(f"v_cvt_pk_bf16_f32 v{d}, v{t}, v{t}")
        e(f"v_cvt_pk_bf16_f32 v{d+1}, v{t+2}, 0")
    if maskv is not None:
        e(f"v_and_b32 v{d}, v{d}, v{maskv}"); e(f"v_and_b32 v{d+1}, v{d+1}, v{maskv}")

SC = "sc1"
RS_ = lambda off: "s[12:15]" if off >= 2*LS else "s[8:11]"
EARLY = int(os.environ.get('EARLY', '6'))
ENV = lambda n, d: int(os.environ.get(n, d))

def ids_mt(k):
    k.e("s_lshl_b32 s22, s20, 1"); k.e("s_and_b32 s23, s21, 1"); k.e("s_add_u32 s16, s22, s23"); k.e("s_lshr_b32 s17, s21, 1")
def ids_rt(k):
    k.e("s_lshl_b32 s22, s20, 2"); k.e("s_and_b32 s23, s21, 3"); k.e("s_add_u32 s16, s22, s23"); k.e("s_lshr_b32 s17, s21, 2")

LW = 163824
PV_ = 240
def lw_init(k):
    e = k.e
    e(f"v_mov_b32 v{PV_+3}, {LW}")
    for i in range(3): e(f"v_mov_b32 v{PV_+i}, 0")
    e(f"ds_write_b96 v{PV_+3}, v[{PV_}:{PV_+2}]"); e(f"ds_write_b32 v{PV_+3}, v{PV_} offset:12")

def lwc_init(k):
    k.e(f"v_mov_b32 v{PV_+3}, {LW-8}"); k.e(f"v_mov_b32 v{PV_}, 0"); k.e(f"v_mov_b32 v{PV_+1}, 0")
    k.e(f"ds_write_b64 v{PV_+3}, v[{PV_}:{PV_+1}]"); k.e("s_waitcnt lgkmcnt(0)")

def signal(k, tag, word, nw, addr_code, younger=0, srd="s[8:11]"):
    e = k.e
    addr_code()
    e(f"v_mov_b32 v{PV_+3}, {LW-8}"); e(f"v_mov_b32 v{PV_}, 1")
    e("s_mov_b64 exec, 1")
    assert younger == 0
    e("s_waitcnt vmcnt(0)"); k.vm = []
    if tag == os.environ.get("FOC"): k.stamp(2)
    e(f"ds_add_rtn_u32 v{PV_+2}, v{PV_+3}, v{PV_} offset:{8*word+8}")
    e("s_waitcnt lgkmcnt(0)"); k.lg = []
    e(f"v_readfirstlane_b32 s49, v{PV_+2}")
    e("s_mov_b64 exec, s[56:57]")
    e(f"s_cmp_eq_u32 s49, {nw-1}"); e(f"s_cbranch_scc0 {k.name}_{tag}_sg")
    e(f"buffer_atomic_add v{PV_}, v{PV_+1}, {srd}, s48 offen {SC}")
    if os.environ.get("FOC2") == tag: k.stamp(4)
    k.label(f"{k.name}_{tag}_sg")
    e("s_mov_b64 exec, -1")

def wait_go(k, tag, word, poll_code):
    e = k.e; nm = f"{k.name}_{tag}"
    e(f"v_mov_b32 v{PV_+3}, {LW-8}"); e("s_mov_b32 s49, 0")
    if poll_code:
        e("s_cmp_eq_u32 s18, 0"); e(f"s_cbranch_scc0 {nm}_sp")
        poll_code()
        e("s_mov_b64 exec, s[56:57]")
        if os.environ.get("FOC") == "g" + tag: k.stamp(2)
        k.label(f"{nm}_pl")
        e(f"v_mov_b32 v{PV_}, 0")
        e(f"buffer_atomic_add v{PV_}, v{PV_+1}, s[8:11], s48 offen sc0 sc1")
        e("s_add_u32 s49, s49, 1")
        e("s_waitcnt vmcnt(0)")
        e(f"v_cmp_ge_u32 vcc, v{PV_}, v{PV_+2}")
        e("s_cmp_ge_u32 s49, 0x20000"); e(f"s_cbranch_scc1 {nm}_px")
        e("s_cmp_eq_u64 vcc, exec"); e(f"s_cbranch_scc0 {nm}_pl")
        k.label(f"{nm}_px")
        if os.environ.get("FOC") == "g" + tag: e("s_add_u32 s70, s64, s49")
        e("s_mov_b64 exec, 1"); e(f"v_mov_b32 v{PV_}, 1")
        e(f"ds_write_b32 v{PV_+3}, v{PV_} offset:{8*word+12}")
        e(f"s_branch {nm}_go")
    k.label(f"{nm}_sp")
    e("s_sleep 1")
    e(f"ds_read_b32 v{PV_}, v{PV_+3} offset:{8*word+12}")
    e("s_add_u32 s49, s49, 1")
    e("s_waitcnt lgkmcnt(0)")
    e(f"v_readfirstlane_b32 s44, v{PV_}")
    e("s_cmp_ge_u32 s49, 0x400000"); e(f"s_cbranch_scc1 {nm}_go")
    e("s_cmp_eq_u32 s44, 0"); e(f"s_cbranch_scc1 {nm}_sp")
    k.label(f"{nm}_go")
    e("s_mov_b64 exec, -1")

class Wdma:
    def __init__(s, k, n, base=50, tag="w"): s.k = k; s.n = n; s.i = 0; s.base = base; s.tag = tag
    def one(s, i):
        s.k.e(f"s_add_u32 m0, s45, {4096*i}"); s.k.e(f"s_add_u32 s32, s{s.base}, {4096*i}")
        s.k.vmop(f"buffer_load_dwordx4 v3, s[12:15], s32 offen {SC} lds", f"{s.tag}{i}")
    def go(s, upto):
        while s.i < min(upto, s.n): s.one(s.i); s.i += 1
    def rng(s, a, b, thr=0):
        for i in range(a, b):
            s.one(i)
            if thr and len(s.k.vm) >= thr: s.k.e(f"s_waitcnt vmcnt({thr-1})"); s.k.vm = s.k.vm[len(s.k.vm)-thr+1:]

SIDE_SV = 152; SIDE_D = 160; SIDE_U = 192
def side_setup(k):
    e = k.e; nm = k.name
    e("s_load_dwordx4 s[84:87], s[0:1], 32"); e("s_load_dwordx2 s[88:89], s[0:1], 16")
    e("s_mul_i32 s49, s2, 3"); e("s_add_u32 s49, s49, s18"); e("s_sub_u32 s49, s49, 4")
    e("s_sub_u32 s32, s18, 4"); e("s_cmp_lt_u32 s32, 3"); e("s_cselect_b32 s49, s49, 959"); e("s_cmp_eq_u32 s3, 0"); e("s_cselect_b32 s49, s49, 959")
    e("s_lshl_b32 s35, s39, 13"); e("s_add_u32 s35, s35, 112640")
    e("s_mul_i32 s36, s49, 3277"); e("s_lshr_b32 s36, s36, 16"); e("s_mul_i32 s37, s36, 20"); e("s_sub_u32 s37, s49, s37")
    e("v_and_b32 v140, 15, v1"); e("v_lshrrev_b32 v141, 2, v140"); e("v_and_b32 v142, 3, v1")
    e("s_waitcnt lgkmcnt(0)")
    SV = SIDE_SV
    e("v_lshrrev_b32 v136, 4, v1")
    for r in list(range(SV, SV+5)) + list(range(144, 152)): e(f"v_mov_b32 v{r}, 0")
    e("s_mov_b32 s5, 0")
    e("s_mov_b32 s53, 0x7ff00000"); e("s_mov_b32 s54, s53"); e("s_mov_b32 s58, s53")
    e("s_cmp_ge_u32 s49, 320"); e(f"s_cbranch_scc1 {nm}_ss1")
    k.srd(88, 84, D*3*D*2)
    e(f"s_mul_i32 s5, s37, {32*3840}"); e("s_mul_i32 s32, s36, 80"); e("s_add_u32 s5, s5, s32")
    e("v_lshlrev_b32 v137, 2, v136"); e("v_xor_b32 v137, v137, v140"); e("v_min_u32 v137, 14, v137")
    e("v_mul_u32_u24 v138, 52, v137"); e("v_lshrrev_b32 v138, 8, v138"); e("v_mul_u32_u24 v138, 1200, v138"); e("v_lshl_add_u32 v138, v137, 4, v138")
    e("v_mul_u32_u24 v137, 3840, v136"); e(f"v_add_u32 v{SV}, v138, v137")
    e("v_lshrrev_b32 v137, 5, v1"); e("v_lshl_add_u32 v137, v137, 3, v141"); e("v_lshlrev_b32 v137, 8, v137"); e("v_and_b32 v138, 1, v136")
    e("v_lshl_add_u32 v137, v138, 5, v137"); e("v_lshl_add_u32 v137, v142, 3, v137"); e("v_add_u32 v137, s35, v137")
    for jf in range(4): e(f"v_xor_b32 v139, {jf}, v141"); e(f"v_lshl_add_u32 v{144+jf}, v139, 6, v137")
    e("s_mul_i32 s53, s36, 163840"); e("s_lshl_b32 s54, s37, 13"); e("s_add_u32 s53, s53, s54"); e(f"s_add_u32 s53, s53, {WB_I}"); e("s_add_u32 s54, s53, 4096"); e("s_mov_b32 s58, s54")
    e(f"s_branch {nm}_ss2")
    k.label(f"{nm}_ss1")
    e("s_cmp_ge_u32 s36, 24"); e("s_cselect_b32 s32, s86, s88"); e("s_cselect_b32 s33, s87, s89")
    k.srd(88, 32, D*D*2)
    e("s_cmp_ge_u32 s49, 640"); e(f"s_cbranch_scc1 {nm}_ss2")
    e("s_and_b32 s32, s36, 7"); e("s_mul_i32 s32, s32, 160")
    e("s_mul_i32 s5, s37, 40"); e("s_sub_u32 s34, s37, 16"); e("s_mul_i32 s34, s34, 160"); e("s_add_u32 s34, s34, 16")
    e("s_cmp_lt_u32 s37, 16"); e("s_cselect_b32 s5, s5, s34"); e("s_cselect_b32 s33, 4, 2"); e("s_cselect_b32 s34, 4, 16")
    e("s_mul_i32 s5, s5, 1280"); e("s_add_u32 s5, s5, s32")
    for i in range(5):
        e(f"v_add_u32 v137, {64*i}, v1"); e("v_mul_u32_u24 v138, 6554, v137"); e("v_lshrrev_b32 v138, 16, v138")
        e("v_lshrrev_b32 v139, s33, v138"); e("v_mul_u32_u24 v139, s34, v139"); e("v_mul_u32_u24 v139, 1280, v139")
        e("v_mul_u32_u24 v138, 1120, v138"); e("v_add_u32 v139, v139, v138"); e(f"v_lshl_add_u32 v{SV+i}, v137, 4, v139")
    e("v_lshlrev_b32 v137, 2, v136"); e("s_mov_b32 s32, 2560")
    e("s_cmp_ge_u32 s36, 24"); e(f"s_cbranch_scc1 {nm}_sf3"); e("s_cmp_ge_u32 s37, 16"); e(f"s_cbranch_scc1 {nm}_sf3")
    e("v_lshrrev_b32 v137, 1, v136"); e("v_lshlrev_b32 v137, 4, v137"); e("v_and_b32 v138, 1, v136"); e("v_lshl_add_u32 v137, v138, 2, v137"); e("s_mov_b32 s32, 1280")
    k.label(f"{nm}_sf3")
    e("v_add_u32 v137, v137, v141"); e("v_mul_u32_u24 v137, 160, v137"); e("v_add_u32 v137, s35, v137")
    e("s_and_b32 s33, s36, 1"); e("s_lshl_b32 s34, s33, 5"); e("s_xor_b32 s33, s33, 1"); e("s_lshl_b32 s33, s33, 7")
    e("v_lshl_add_u32 v144, v142, 4, v137"); e("v_add_u32 v144, s34, v144"); e("v_add_u32 v145, s32, v144")
    e("v_lshl_add_u32 v146, v142, 3, v137"); e("v_add_u32 v146, s33, v146"); e("v_add_u32 v147, s32, v146")
    e("s_cmp_ge_u32 s36, 24"); e(f"s_cselect_b32 s53, {WOB_I-WOA_I}, 0"); e("s_and_b32 s54, s36, 7"); e("s_mul_i32 s54, s54, 102400"); e("s_add_u32 s53, s53, s54")
    e("s_mul_i32 s54, s37, 5120"); e("s_add_u32 s53, s53, s54"); e(f"s_add_u32 s53, s53, {WOA_I}"); e("s_add_u32 s54, s53, 4096")
    k.label(f"{nm}_ss2")
    e("s_lshl_b32 s38, s49, 9"); e(f"s_add_u32 s38, s38, {U_B}"); e("s_cmp_ge_u32 s49, 320"); e("s_cselect_b32 s38, 0x7ff00000, s38")
    e("v_lshlrev_b32 v143, 2, v1")
    e("s_cmp_lt_u32 s49, 640"); e("s_cselect_b32 s4, 2, 0"); e("s_cmp_lt_u32 s49, 320"); e("s_cselect_b32 s4, 1, s4")
    e("s_and_b32 s55, s49, 15"); e("s_lshl_b32 s55, s55, 8"); e(f"s_add_u32 s55, s55, {CS}")

def ph_attn(k):
    e = k.e; nm = k.name
    KA, KT, VA = 4, 5, 6
    Q = [8, 14]; KF = [24, 32]; VF = [40, 48]; SS = [56, 72]; P = 88; O = [96, 112]; PF = 208
    SCR = 137216; TOP = 112640
    ids_rt(k)
    e("v_and_b32 v3, 31, v1"); e("v_lshrrev_b32 v7, 5, v1")
    e("v_lshlrev_b32 v22, 4, v1"); e("v_lshlrev_b32 v23, 3, v3")
    e("s_mul_i32 s19, s16, 163840")
    e("s_lshr_b32 s41, s18, 2")
    e("s_lshl_b32 s23, s17, 3"); e("s_lshl_b32 s22, s39, 1"); e("s_add_u32 s23, s23, s22")
    e("s_add_u32 s23, s23, s41")
    e("s_lshr_b32 s22, s19, 1"); e(f"s_add_u32 s22, s22, {QIMG}")
    e("s_mul_i32 s24, s23, 1280"); e("s_add_u32 s24, s24, s22"); e("s_xor_b32 s40, s23, 1"); e("s_mul_i32 s40, s40, 1280"); e("s_add_u32 s40, s40, s22")
    e("s_mul_i32 s42, s41, 2560"); e(f"s_add_u32 s42, s42, {TOP}")
    e("s_lshl_b32 s25, s18, 10")
    e(f"s_add_u32 s26, s19, {KVIMG}")
    rnd = [0]
    def dma():
        i = rnd[0]; rnd[0] += 1
        if i == 6:
            e("s_cmp_lt_u32 s18, 2"); e("s_cselect_b32 s27, 163840, 0"); e("s_add_u32 s27, s27, s25"); e("s_sub_u32 m0, s27, 2048")
        else: e(f"s_add_u32 m0, s25, {(TOP + 8192*i) if i < 6 else 8192*i - 51200}")
        e("s_add_u32 s27, s26, m0")
        k.vmop(f"buffer_load_dwordx4 v22, s[12:15], s27 offen {SC} lds", f"i{i}")
    e(f"v_add_u32 v{KA}, s42, v22")
    e(f"v_add_u32 v{KT}, s42, v23"); e(f"v_add_u32 v{KT}, 1024, v{KT}")
    if ENV('KTZ', '1'): e(f"v_lshl_add_u32 v{KT}, v7, 20, v{KT}")
    e("v_mul_u32_u24 v21, 20, v7"); e("v_add_u32 v21, v21, v3"); e("v_lshlrev_b32 v21, 4, v21")
    e("v_add_u32 v21, 1280, v21"); e(f"v_add_u32 v{VA}, s42, v21")
    e("s_mov_b32 s28, 0x000fffff"); e("s_mov_b32 s29, 0x000fffff")
    e("v_cmp_eq_u32 vcc, 20, v3"); e("v_mov_b32 v20, 0x3f803f80"); e("s_nop 0")
    e("v_cndmask_b32 v20, 0, v20, vcc")
    for r in range(16): e(f"v_mov_b32 v{VF[0]+r}, v20")
    for r in range(32): e(f"v_mov_b32 v{O[0]+r}, 0")
    for r in range(4): e(f"v_mov_b32 v{P+4+r}, 0")
    e("v_subrev_u32 v30, 1, v7")
    e("s_lshl_b32 s43, s21, 2"); e("s_add_u32 s43, s43, s39"); e("s_mul_i32 s43, s43, 27648"); e(f"s_add_u32 s43, s43, {WOA_I}")
    e("s_mul_i32 s32, s23, 40960"); e(f"s_add_u32 s32, s32, {OT}")
    e("s_lshr_b32 s51, s16, 1"); e("s_lshl_b32 s51, s51, 10"); e("s_and_b32 s34, s16, 1"); e("s_lshl_b32 s34, s34, 9")
    e("s_add_u32 s51, s51, s34"); e("s_add_u32 s51, s51, s32")
    e("s_lshr_b32 s52, s16, 3"); e("s_add_u32 s52, s52, 16"); e("s_lshl_b32 s52, s52, 10"); e("s_add_u32 s52, s52, s32")
    e("s_and_b32 s35, s16, 3"); e("s_lshl_b32 s35, s35, 8"); e("s_add_u32 s52, s52, s35")
    e("s_bfe_u32 s35, s16, 0x10002"); e("s_lshl_b32 s35, s35, 3"); e("s_add_u32 s52, s52, s35")
    e("v_lshrrev_b32 v38, 4, v3"); e("v_mul_u32_u24 v38, 20480, v38"); e("v_and_b32 v39, 15, v3")
    e("v_lshl_add_u32 v38, v39, 4, v38"); e("v_lshl_add_u32 v39, v7, 8, v38")
    e("s_mul_i32 s32, s18, 3072"); e("s_xor_b32 s33, s18, 4"); e("s_mul_i32 s33, s33, 3072")
    e(f"v_add_u32 v132, {SCR}, v22"); e("v_add_u32 v133, s33, v132"); e("v_add_u32 v132, s32, v132")
    def c0(nl):
        e("s_lshl_b32 s48, s17, 8"); e(f"s_add_u32 s48, s48, {C0}"); e(f"v_mov_b32 v{PV_+2}, 16")
        e("s_mul_i32 s32, s16, 20"); e("s_add_u32 s33, s32, 19"); e("s_lshr_b32 s32, s32, 7"); e("s_lshr_b32 s33, s33, 7"); e("s_sub_u32 s33, s33, s32")
        e(f"v_lshrrev_b32 v{PV_+1}, 1, v1"); e(f"v_mul_u32_u24 v{PV_+1}, 5, v{PV_+1}"); e(f"v_and_b32 v{PV_}, s33, v1"); e(f"v_add3_u32 v{PV_+1}, v{PV_+1}, v{PV_}, s32")
        e(f"v_lshlrev_b32 v{PV_+1}, 11, v{PV_+1}"); e("s_mov_b64 s[56:57], 63")
    side_setup(k)
    e("s_lshl_b32 s59, s2, 2"); e("s_add_u32 s59, s59, s39"); e("s_mul_i32 s50, s59, 2560"); e(f"s_mul_i32 s59, s59, {-(-(U_A - OT) // 1024 // 128) * 128}"); e(f"s_add_u32 s59, s59, {OT}")
    e("v_lshlrev_b32 v234, 7, v1")
    e("v_lshlrev_b32 v134, 11, v1"); e("s_lshl_b32 s32, s17, 8"); e(f"s_add_u32 s32, s32, {C0}"); e("v_add_u32 v134, s32, v134")
    e("v_lshlrev_b32 v135, 8, v1"); e(f"v_add_u32 v135, {CS - 4096}, v135"); e("v_cmp_gt_u32 vcc, 16, v1")
    e("v_cndmask_b32 v134, v135, v134, vcc"); e("v_cndmask_b32 v131, 40, 16, vcc"); e("v_mov_b32 v135, 64")
    wait_go(k, "t", -1, lambda: c0(6))
    k.stamp(2)
    dma()
    for x in range(2):
        k.vmop(f"buffer_load_dwordx4 {vr(Q[x],4)}, v22, s[12:15], s{(24,40)[x]} offen {SC}", "q")
        k.vmop(f"buffer_load_dwordx2 {vr(Q[x]+4,2)}, v23, s[12:15], s{(24,40)[x]} offen offset:1024 {SC}", "q")
    for _ in range(3): dma()
    k.waitvm("q")
    for x in range(2):
        e(f"v_and_b32 v{Q[x]+4}, v{Q[x]+4}, v30"); e(f"v_and_b32 v{Q[x]+5}, v{Q[x]+5}, v30")
    k.waitvm("i1"); e("s_barrier"); k.stamp(3)
    if os.environ.get("FOC") == "clk": k.rstamp(0)
    def rdK(buf, off):
        off *= 2
        e(f"ds_read_b128 {vr(KF[buf],4)}, v{KA} offset:{off}")
        e(f"ds_read_b64 {vr(KF[buf]+4,2)}, v{KT} offset:{off}")
    def rdV(buf, off):
        off *= 2
        e("s_mov_b64 exec, s[28:29]")
        e(f"ds_read_b128 {vr(VF[buf],4)}, v{VA} offset:{off}")
        e(f"ds_read_b128 {vr(VF[buf]+4,4)}, v{VA} offset:{off+640}")
        e("s_mov_b64 exec, -1")
    def qkm(x, kb): e(f"v_mfma_f32_32x32x16_bf16 {vr(SS[x],16)}, {vr(KF[kb],4)}, {vr(Q[x],4)}, 0")
    def qkt(x, kb): e(f"v_mfma_f32_32x32x8_bf16 {vr(SS[x],16)}, {vr(KF[kb]+4,2)}, {vr(Q[x]+4,2)}, {vr(SS[x],16)}")
    def pv(x, vb, u): e(f"v_mfma_f32_32x32x16_bf16 {vr(O[x],16)}, {vr(VF[vb]+4*u,4)}, {vr(P+4*u,4)}, {vr(O[x],16)}")
    def base(t):
        return 0 if t < 10 else 10 if t < 22 else 22
    def bump(regs, t):
        if t == 10:
            for r in regs: e(f"v_subrev_u32 v{r}, {TOP}, v{r}")
        elif t == 22:
            for r in regs: e(f"v_add_u32 v{r}, {12*5120}, v{r}")
    def unit(x, t, extra=()):
        p = t % 2; s = SS[x]
        ex = lambda i: e(f"v_exp_f32 v{s+i}, v{s+i}")
        cv = lambda i: e(f"v_cvt_pk_bf16_f32 v{P+i}, v{s+2*i}, v{s+2*i+1}")
        kb = p if x == 0 else 1-p
        if x == 1: e("s_waitcnt lgkmcnt(2)" if t < 31 else "s_waitcnt lgkmcnt(0)")
        if not (x == 1 and t == 31): qkm(1-x, kb)
        if x == 1 and t + 2 < 32:
            bump((KA, KT), t+2); rdK(p, (t+2-base(t+2))*2560)
        for i in range(0, 4): ex(i)
        if x == 0:
            pv(1, 1-p, 1)
            if t + 1 < 32:
                bump((VA,), t+1); rdV(1-p, (t+1-base(t+1))*2560)
        else:
            pv(0, p, 1)
        for f_ in extra: f_()
        for i in range(4, 8): ex(i)
        for i in range(0, 4): cv(i)
        if not (x == 1 and t == 31): qkt(1-x, kb)
        for i in range(8, 12): ex(i)
        if x == 0: e(f"s_waitcnt lgkmcnt({4 if t < 31 else 0})")
        pv(x, p, 0)
        for i in range(12, 16): ex(i)
        for i in range(4, 8): cv(i)
    rdK(0, 0); rdV(0, 0); rdK(1, 2560)
    e("s_waitcnt lgkmcnt(4)")
    qkm(0, 0); e("s_nop 10"); qkt(0, 0); e("s_nop 10")
    SYN = {1: 3, 4: 7, 10: 19}; SW = ENV('SW', '27')
    T_SI, T_SR, T_SA, T_PF, T_LC = 10, ENV('TSR', '16'), 26, 13, 27
    hk = [0]
    def cond(test, fn):
        def g():
            hk[0] += 1; lab = f"{nm}_hk{hk[0]}"
            e(test); e(f"s_cbranch_scc0 {lab}"); fn(); k.label(lab)
        return g
    def prio1(): e("s_setprio 1")
    def pref():
        for _ in range(2): e(f"buffer_load_dwordx4 {vr(PF,4)}, v22, s[12:15], s43 offen {SC}"); e("s_add_u32 s43, s43, 1024")
    def side_issue():
        e("s_cmp_eq_u32 s4, 1"); e(f"s_cbranch_scc0 {nm}_i1")
        for i in range(8):
            e(f"s_add_u32 m0, s35, {1024*i}"); e(f"s_add_u32 s27, s5, {4*3840*i}")
            e(f"buffer_load_dwordx4 v{SIDE_SV}, s[88:91], s27 offen {os.environ.get('SNT', 'nt')} lds")
        e(f"s_branch {nm}_i2")
        k.label(f"{nm}_i1")
        for i in range(5):
            e(f"s_add_u32 m0, s35, {1024*i}"); e("s_nop 0")
            e(f"buffer_load_dwordx4 v{SIDE_SV+i}, s[88:91], s5 offen {os.environ.get('SNT', 'nt')} lds")
        k.label(f"{nm}_i2")
    def side_read():
        e("s_waitcnt vmcnt(0)")
        e("s_cmp_eq_u32 s4, 1"); e(f"s_cbranch_scc0 {nm}_r1")
        for F in range(8):
            for t in range(2): e(f"ds_read_b64_tr_b16 {vr(SIDE_D+4*F+2*t,2)}, v{144+F%4} offset:{4096*(F//4)+1024*t}")
        e(f"s_branch {nm}_r2")
        k.label(f"{nm}_r1")
        for nf in range(5):
            for t in range(2): e(f"ds_read_b64_tr_b16 {vr(SIDE_D+4*nf+2*t,2)}, v{144+t if nf < 4 else 146+t} offset:{64*(nf//2)+8*(nf%2) if nf < 4 else 0}")
        k.label(f"{nm}_r2")
    def side_done():
        e("s_waitcnt lgkmcnt(0)"); e(f"v_mov_b32 v{PV_+3}, {LW-8}"); e(f"v_mov_b32 v{PV_}, 1"); e("s_mov_b64 exec, 1")
        e(f"ds_add_u32 v{PV_+3}, v{PV_}"); e("s_mov_b64 exec, -1")
    UA = (SIDE_U, 212)
    def side_sum(q):
        def g():
            if q == 0:
                for r in range(4): e(f"v_mov_b32 v{228+r}, 0x3f803f80")
            for u in range(2):
                for x in range(2): e(f"v_mfma_f32_32x32x16_bf16 {vr(UA[x],16)}, v[228:231], {vr(SIDE_D+16*u+8*q+4*x,4)}, {vr(UA[x],16) if u else 0}")
        return g
    def side_sum2(q):
        def g():
            e("v_cmp_gt_u32 vcc, 32, v1"); e(f"v_cndmask_b32 v{232+q}, v{UA[1]}, v{UA[0]}, vcc")
            e(f"buffer_store_dword v{232+q}, v143, s[12:15], s38 offen offset:{256*q} {SC}")
        return g
    def side_store(F):
        return lambda: e(f"buffer_store_dwordx4 {vr(SIDE_D+4*F,4)}, v22, s[12:15], s{53 if F < 4 else 54 if F == 4 else 58} offen offset:{1024*(F%4)} {SC}")
    def side_arrive():
        e(f"v_mov_b32 v{PV_+1}, 0"); e(f"v_mov_b32 v{PV_}, 1"); e("s_waitcnt vmcnt(0)"); e("s_mov_b64 exec, 1")
        e(f"buffer_atomic_add v{PV_}, v{PV_+1}, s[12:15], s55 offen {SC}"); e("s_mov_b64 exec, -1")
    def touch():
        e("s_cmp_eq_u32 s3, 0"); e(f"s_cbranch_scc0 {nm}_t2")
        e("buffer_load_dword v235, v234, s[12:15], s59 offen"); e(f"s_branch {nm}_t3")
        k.label(f"{nm}_t2")
        if ENV('TOUT', '0'):
            e("s_mov_b64 exec, 0xfffff"); e("buffer_load_dword v235, v234, s[60:63], s50 offen"); e("s_mov_b64 exec, -1")
        k.label(f"{nm}_t3")
    def late():
        e("s_mov_b32 exec_lo, 0xffff7fff"); e("s_mov_b32 exec_hi, 0"); e(f"buffer_load_dword v135, v134, s[12:15], 0 offen {SC}"); e("s_mov_b64 exec, -1")
    def init_words(): lw_init(k); e(f"v_mov_b32 v{PV_+3}, {LW-8}"); e(f"ds_write_b32 v{PV_+3}, v{PV_}")
    side = "s_cmp_lg_u32 s4, 0"
    for t in range(32):
        if t in SYN: k.waitvm(f"i{SYN[t]}"); e("s_barrier")
        x0, x1 = [], []
        if rnd[0] < 20: x0 += [dma, dma]; x1 += [dma, dma]
        if t in (1, 4, 10): cond("s_cmp_ge_u32 s18, 4", prio1)()
        if t == 3: x0.append(lambda: e("s_setprio 0"))
        if t == 8: x1.append(lambda: e("s_setprio 0"))
        if t == 10:
            x0.append(cond("s_cmp_eq_u32 s18, 4", lambda: lw_init(k)))
            if os.environ.get("FOC") == "at": k.stamp(2)
        if t == SW + 1 and os.environ.get("FOC") == "at": k.stamp(0)
        if t == T_SI: x1.append(cond(side, side_issue))
        if t == T_SR: x1.append(cond(side, side_read))
        if t == T_SR + 1: x0.append(cond(side, lambda: e("s_waitcnt lgkmcnt(0)"))); x1.append(cond("s_cmp_eq_u32 s4, 1", side_sum(0)))
        if t == T_SR + 2: x0.append(cond("s_cmp_eq_u32 s4, 1", side_sum2(0))); x1.append(cond("s_cmp_eq_u32 s4, 1", side_sum(1)))
        if t == T_SR + 3: x0.append(cond("s_cmp_eq_u32 s4, 1", side_sum2(1)))
        if T_SR + 1 <= t < T_SR + 9: x1.append(cond(side, side_store(t - T_SR - 1)))
        if ENV('TCH', '6') and t == ENV('TCH', '6'): x0.append(cond("s_cmp_lt_u32 s18, 4", touch))
        if t == T_SA: x0.append(cond(side, side_arrive))
        if T_PF <= t < T_PF + 14 and ENV('PFW', '1'): x0.append(cond("s_cmp_lt_u32 s18, 4", pref))
        if t == T_LC: x1.append(cond("s_cmp_eq_u32 s18, 0", late))
        if t == SW: (x1 if ENV('SWX', '0') else x0).append(lambda: e("s_setprio 0"))
        unit(0, t, x0); unit(1, t, x1)
    pv(1, 1, 1); k.stamp(4)
    if os.environ.get("FOC") == "clk": k.rstamp(2)
    e("s_mov_b32 s30, 0")
    e(f"s_mov_b32 s32, {fbits(2.0**-60)}"); e(f"s_mov_b32 s33, {fbits(2.0**100)}"); e(f"s_mov_b32 s34, {fbits(2.0**126)}")
    k.label(f"{nm}_scrok")
    e("s_nop 7")
    for i in range(3): e(f"ds_write_b128 v132, {vr(O[1]+4*i,4)} offset:{1024*i}")
    e("s_waitcnt vmcnt(0)"); e("v_cmp_gt_u32 vcc, v131, v135"); e(f"s_cbranch_vccnz {nm}_late")
    k.label(f"{nm}_lok")
    e("s_waitcnt lgkmcnt(0)"); e("s_barrier")
    for i in (2, 0, 1): e(f"ds_read_b128 {vr(SS[0]+4*i,4)}, v133 offset:{1024*i}")
    OO = O[0]
    e("s_waitcnt lgkmcnt(2)")
    for r in range(8, 12): e(f"v_add_f32 v{OO+r}, v{OO+r}, v{SS[0]+r}")
    e("s_waitcnt lgkmcnt(0)")
    for r in range(8): e(f"v_add_f32 v{OO+r}, v{OO+r}, v{SS[0]+r}")
    k.label(f"{nm}_chk")
    e(f"v_mov_b32 v30, v{OO+8}"); e(f"v_mov_b32 v31, v{OO+8}")
    e(f"v_max3_f32 v28, abs(v{OO}), abs(v{OO+1}), abs(v{OO+2})")
    e("v_permlane32_swap_b32 v30, v31")
    for r in range(3, 11, 2): e(f"v_max3_f32 v28, abs(v{OO+r}), abs(v{OO+r+1}), v28")
    e(f"v_max_f32 v28, abs(v{OO+11}), v28")
    e("v_cmp_le_f32 vcc, s32, v31"); e("v_cmp_ge_f32 s[36:37], s33, v31"); e("v_cmp_gt_f32 s[40:41], s34, v28")
    e("v_rcp_f32 v31, v31")
    e("s_and_b64 s[36:37], s[36:37], vcc"); e("s_and_b64 s[36:37], s[36:37], s[40:41]")
    e("s_cmp_eq_u64 s[36:37], -1"); e(f"s_cbranch_scc0 {nm}_slow")
    def slowpath():
        k.label(f"{nm}_late")
        e("s_mov_b32 s49, 0")
        k.label(f"{nm}_late1")
        e("s_sleep 8"); late(); e("s_add_u32 s49, s49, 1"); e("s_waitcnt vmcnt(0)")
        e("v_cmp_gt_u32 vcc, v131, v135"); e("s_cmp_ge_u32 s49, 0x20000"); e(f"s_cbranch_scc1 {nm}_lok"); e(f"s_cbranch_vccnz {nm}_late1")
        e(f"s_branch {nm}_lok")
        k.label(f"{nm}_slow")
        e("s_cmp_eq_u32 s30, 0"); e(f"s_cbranch_scc0 {nm}_fin")
        e("s_mov_b32 s30, 1")
        e("s_waitcnt vmcnt(0)")
        NM = O[1]
        e("v_mov_b32 v32, 0xff800000")
        def slowqk(c):
            e(f"buffer_load_dwordx4 {vr(KF[0],4)}, v22, s[12:15], s27 offen {SC}")
            e(f"buffer_load_dwordx2 {vr(KF[0]+4,2)}, v23, s[12:15], s27 offen offset:1024 {SC}")
            e("s_waitcnt vmcnt(0)")
            e(f"v_mfma_f32_32x32x16_bf16 {vr(SS[0],16)}, {vr(KF[0],4)}, {vr(Q[0],4)}, {c}"); e("s_nop 10")
            e(f"v_mfma_f32_32x32x8_bf16 {vr(SS[0],16)}, {vr(KF[0]+4,2)}, {vr(Q[0]+4,2)}, {vr(SS[0],16)}"); e("s_nop 12")
        e(f"s_add_u32 s27, s19, {KVIMG}"); e("s_mov_b32 s31, 0")
        k.label(f"{nm}_mx")
        slowqk("0")
        for r in range(0, 16, 2): e(f"v_max3_f32 v32, v{SS[0]+r}, v{SS[0]+r+1}, v32")
        e("s_add_u32 s27, s27, 2560")
        e("s_add_u32 s31, s31, 1"); e("s_cmp_lt_u32 s31, 64"); e(f"s_cbranch_scc1 {nm}_mx")
        k.allred32("v_max_f32", 32, 33)
        e("v_xor_b32 v32, 0x80000000, v32")
        for r in range(16): e(f"v_mov_b32 v{NM+r}, v32")
        for r in range(16): e(f"v_mov_b32 v{OO+r}, 0")
        for r in range(8): e(f"v_mov_b32 v{VF[0]+r}, v20")
        e(f"s_add_u32 s27, s19, {KVIMG}"); e("s_mov_b32 s31, 0")
        k.label(f"{nm}_sl")
        e("s_mov_b64 exec, s[28:29]")
        e(f"buffer_load_dwordx4 {vr(VF[0],4)}, v21, s[12:15], s27 offen {SC}")
        e(f"buffer_load_dwordx4 {vr(VF[0]+4,4)}, v21, s[12:15], s27 offen offset:640 {SC}")
        e("s_mov_b64 exec, -1")
        slowqk(vr(NM,16))
        for i in range(16): e(f"v_exp_f32 v{SS[0]+i}, v{SS[0]+i}")
        e("s_nop 0")
        for i in range(8): e(f"v_cvt_pk_bf16_f32 v{P+i}, v{SS[0]+2*i}, v{SS[0]+2*i+1}")
        e("s_nop 1")
        pv(0, 0, 0); pv(0, 0, 1)
        e("s_add_u32 s27, s27, 2560")
        e("s_add_u32 s31, s31, 1"); e("s_cmp_lt_u32 s31, 64"); e(f"s_cbranch_scc1 {nm}_sl")
        e("s_nop 12"); e(f"s_branch {nm}_chk")
    k.tail = slowpath
    k.label(f"{nm}_fin")
    e("s_nop 0")
    for r in range(12): e(f"v_mul_f32 v{OO+r}, v{OO+r}, v31")
    for r in range(6): e(f"v_cvt_pk_bf16_f32 v{P+r}, v{OO+2*r}, v{OO+2*r+1}")
    e(f"buffer_store_dwordx4 {vr(P,4)}, v39, s[12:15], s51 offen {SC}")
    e("s_mov_b32 exec_hi, 0")
    e(f"buffer_store_dwordx2 {vr(P+4,2)}, v38, s[12:15], s52 offen {SC}")
    e("s_mov_b64 exec, -1")
    k.stamp(5)
    e("v_lshlrev_b32 v3, 4, v1")
    k.vm = []; k.lg = []

def proj_c(k, tag, src, xin, xout, stout, last, cnt_code, word, st0):
    final = False
    e = k.e
    ACC, RESID, A, BF = 24, 44, 76, 156
    NA0 = ENV('PA0', '8')
    ids_rt(k)
    e("s_lshl_b32 s19, s16, 2"); e("s_add_u32 s19, s19, s39")
    e("s_mul_i32 s24, s19, 20480")
    e("s_lshr_b32 s33, s17, 1"); e("s_mul_i32 s33, s33, 5120"); e("s_add_u32 s33, s33, s24")
    e("s_and_b32 s34, s17, 1"); e("s_mul_i32 s35, s34, 3072"); e("s_add_u32 s35, s35, s33")
    e("s_lshl_b32 s36, s34, 9"); e("s_add_u32 s36, s36, s33"); e("s_add_u32 s36, s36, 2048")
    e(f"s_add_u32 s37, s35, {xin}"); e(f"s_add_u32 s38, s36, {xin}")
    e("v_lshrrev_b32 v13, 5, v1"); e("v_lshlrev_b32 v13, 8, v13"); e("v_and_b32 v14, 15, v1"); e("v_lshl_add_u32 v13, v14, 4, v13")
    e("v_bfe_u32 v14, v1, 4, 1"); e("v_lshl_add_u32 v13, v14, 3, v13")
    k.vmop(f"buffer_load_dwordx4 {vr(RESID,4)}, v3, {RS_(xin)}, s37 offen {SC}", "r")
    k.vmop(f"buffer_load_dwordx4 {vr(RESID+4,4)}, v3, {RS_(xin)}, s37 offen offset:1024 {SC}", "r")
    k.vmop(f"buffer_load_dwordx2 {vr(RESID+8,2)}, v13, {RS_(xin)}, s38 offen {SC}", "r")
    e(f"s_add_u32 s24, s24, {src}")
    for i in range(1, 5): e(f"s_add_u32 s{24+i}, s24, {4096*i}")
    e("v_lshrrev_b32 v9, 4, v1"); e("v_add_u32 v12, 61440, v3")
    wait_go(k, tag, word, cnt_code)
    k.stamp(st0)
    def ldA(n): k.vmop(f"buffer_load_dwordx4 {vr(A+4*n,4)}, v3, s[12:15], s{24+n//4} offen offset:{(n%4)*1024} {SC}", f"a{n}")
    for n in range(NA0): ldA(n)
    k.waitvm("r")
    for i in range(10):
        e(f"v_lshlrev_b32 v{ACC+2*i}, 16, v{RESID+i}"); e(f"v_and_b32 v{ACC+2*i+1}, 0xffff0000, v{RESID+i}")
    def rd(n, nf):
        off = n*5120 + nf*1024; b = 3
        if n >= 12: off -= 61440; b = 12
        k.dsop(f"ds_read_b128 {vr(BF+20*(n%2)+4*nf,4)}, v{b} offset:{off}", f"b{n}_{nf}")
    e("s_barrier")
    for n in range(2):
        for nf in range(5): rd(n, nf)
    for n in range(20):
        k.waitvm(f"a{n}")
        if n == 0: k.stamp(st0+1)
        for nf in range(5):
            if nf in (0, 2, 4): k.waitlg(f"b{n}_{min(nf+1,4)}")
            if n == 12 and nf == 0 and not final: e("s_barrier")
            e(f"v_mfma_f32_16x16x32_bf16 {vr(ACC+4*nf,4)}, {vr(BF+20*(n%2)+4*nf,4)}, {vr(A+4*n,4)}, {vr(ACC+4*nf,4)}")
            if n + 2 < 20: rd(n+2, nf)
            if nf == 0 and n + NA0 < 20: ldA(n + NA0)
    e("s_barrier")
    if last:
        e("s_cmp_eq_u32 s3, 0"); e(f"s_cbranch_scc1 {k.name}_nf")
        e("v_and_b32 v16, 15, v1"); e("v_mul_u32_u24 v16, 1280, v16"); e("v_lshl_add_u32 v17, v9, 3, v16"); e("v_lshl_add_u32 v16, v9, 4, v16")
        e("s_mul_i32 s32, s19, 20480"); e("s_mul_i32 s31, s17, 160"); e("s_add_u32 s32, s32, s31")
        e("s_lshl_b32 s31, s34, 5"); e("s_add_u32 s33, s32, s31"); e("s_xor_b32 s31, s34, 1"); e("s_lshl_b32 s31, s31, 7"); e("s_add_u32 s32, s32, s31")
        FSC = os.environ.get("FSC", "")
        for i in range(10): e(f"v_cvt_pk_bf16_f32 v{RESID+i}, v{ACC+2*i}, v{ACC+2*i+1}")
        e(f"buffer_store_dwordx4 {vr(RESID,4)}, v16, s[60:63], s33 offen {FSC}")
        e(f"buffer_store_dwordx4 {vr(RESID+4,4)}, v16, s[60:63], s33 offen offset:64 {FSC}")
        e(f"buffer_store_dwordx2 {vr(RESID+8,2)}, v17, s[60:63], s32 offen {FSC}")
        k.stamp(st0+2)
        if STAMP: e("s_waitcnt vmcnt(0)")
        k.dump(15, "2")
        e("s_endpgm")
        k.label(f"{k.name}_nf")
    if True:
        e(f"s_add_u32 s37, s35, {xout}"); e(f"s_add_u32 s38, s36, {xout}")
        e("s_lshl_b32 s32, s19, 10"); e("s_lshl_b32 s33, s17, 7"); e("s_add_u32 s32, s32, s33"); e(f"s_add_u32 s32, s32, {stout}")
        e("v_lshlrev_b32 v16, 3, v1")
        for i in range(10): e(f"v_cvt_pk_bf16_f32 v{RESID+i}, v{ACC+2*i}, v{ACC+2*i+1}")
        e(f"buffer_store_dwordx4 {vr(RESID,4)}, v3, {RS_(xout)}, s37 offen {SC}")
        e(f"buffer_store_dwordx4 {vr(RESID+4,4)}, v3, {RS_(xout)}, s37 offen offset:1024 {SC}")
        e(f"buffer_store_dwordx2 {vr(RESID+8,2)}, v13, {RS_(xout)}, s38 offen {SC}")
        e(f"v_add_f32 v18, v{ACC}, v{ACC+1}"); e(f"v_mul_f32 v19, v{ACC}, v{ACC}"); e(f"v_add_f32 v20, v{ACC+2}, v{ACC+3}"); e(f"v_mul_f32 v21, v{ACC+1}, v{ACC+1}")
        e(f"v_fmac_f32 v19, v{ACC+2}, v{ACC+2}"); e(f"v_fmac_f32 v21, v{ACC+3}, v{ACC+3}")
        for i in range(4, 20, 2):
            e(f"v_add_f32 v18, v18, v{ACC+i}"); e(f"v_fmac_f32 v19, v{ACC+i}, v{ACC+i}")
            e(f"v_add_f32 v20, v20, v{ACC+i+1}"); e(f"v_fmac_f32 v21, v{ACC+i+1}, v{ACC+i+1}")
        e("v_add_f32 v18, v18, v20"); e("v_add_f32 v19, v19, v21")
        for sw in ("v_permlane16_swap_b32", "v_permlane32_swap_b32"):
            e("v_mov_b32 v20, v18"); e("v_mov_b32 v21, v19"); e("s_nop 0")
            e(f"{sw} v18, v20"); e(f"{sw} v19, v21"); e("s_nop 0")
            e("v_add_f32 v18, v18, v20"); e("v_add_f32 v19, v19, v21")
        e("s_mov_b64 exec, 0xffff")
        e(f"buffer_store_dwordx2 v[18:19], v16, {RS_(xout)}, s32 offen {SC}")
    k.stamp(st0+2)

def proj_l(k, wimg, nxt, src, sig=None, done=0, last=False):
    e = k.e
    if nxt is not None:
        ids_mt(k)
        e("s_min_u32 s17, s17, 14" if nxt == WA_I else "s_nop 0")
        e("s_mul_i32 s58, s17, 163840"); e("s_add_u32 s58, s58, s45"); e(f"s_add_u32 s58, s58, {nxt}")
    ids_rt(k)
    e("s_mul_i32 s50, s17, 102400"); e("s_add_u32 s50, s50, s45"); e(f"s_add_u32 s50, s50, {wimg}")
    e("s_mul_i32 s51, s16, 81920"); e("s_lshl_b32 s52, s17, 2"); e("s_add_u32 s52, s52, s39"); e("s_mul_i32 s52, s52, 2560"); e("s_add_u32 s51, s51, s52"); e(f"s_add_u32 s51, s51, {src}")
    e("v_min_u32 v21, 39, v1"); e("v_lshlrev_b32 v21, 6, v21")
    w = Wdma(k, 25, 50, "o"); k.vm = []
    T1, T2 = ENV('T1', '0'), ENV('T2', '4')
    if sig:
        signal(k, "s1l", 0, 8, sig)
        ub_prep(k, 0)
    if last: w.rng(0, 6); e("s_barrier"); done = 6
    w.rng(done, 25, T1 if sig else 0)
    w2 = Wdma(k, 40, 58)
    if last:
        e("s_cmp_eq_u32 s3, 0"); e(f"s_cbranch_scc1 {k.name}_nl")
        e("s_waitcnt vmcnt(0)"); e("s_barrier"); e("buffer_load_dword v20, v21, s[12:15], s51 offen"); e("s_endpgm")
        k.label(f"{k.name}_nl")
    if sig:
        w2.rng(25, 33, T1)
        e(f"v_mov_b32 v{PV_+3}, {LW}"); e("s_mov_b32 s49, 0")
        k.label(f"{k.name}_a8")
        e(f"ds_read_b32 v{PV_}, v{PV_+3}"); e("s_add_u32 s49, s49, 1"); e("s_waitcnt lgkmcnt(0)"); e(f"v_readfirstlane_b32 s44, v{PV_}")
        e("s_cmp_ge_u32 s49, 0x400000"); e("s_cselect_b32 s44, 8, s44"); e("s_cmp_lt_u32 s44, 8"); e(f"s_cbranch_scc1 {k.name}_a8")
    if nxt is not None: w2.rng(33 if sig else 32, 39, T1 if sig else 0)
    if sig: ub_prep(k, 1)
    k.waitvm("o24")
    e("s_barrier")
    if ENV('ATOUCH', '1'):
        k.vmop("buffer_load_dword v20, v21, s[12:15], s51 offen")
    if nxt is not None:
        if not sig: w2.rng(25, 32)
        e("s_barrier")
        w2.rng(0, 15)
        e("s_barrier")
        k.waitvm("w14")
        w2.rng(15, 25, T2)
    return w2

def stats16(k, s, rstd, mop, mask):
    e = k.e
    e(f"v_add_f32 v{s}, v{s}, v{s+2}"); e(f"v_add_f32 v{s+1}, v{s+1}, v{s+3}")
    k.allred16("v_add_f32", s, s+2); k.allred16("v_add_f32", s+1, s+3)
    k.allred32("v_add_f32", s, s+2); k.allred32("v_add_f32", s+1, s+3)
    stats_finish(k, s, s+1, s+2, rstd, s+3)
    split3(k, s+2, mop, 17, 'm', mask)
def usum(k, u, dst, t=17):
    e = k.e
    e(f"v_add_f32 v{u}, v{u}, v{u+1}"); e(f"v_add_f32 v{u+2}, v{u+2}, v{u+3}"); e(f"v_add_f32 v{u}, v{u}, v{u+2}")
    split3(k, u, dst, t, 'u')
def scale_pack(k, a, sc, dst):
    for r in range(4): k.e(f"v_mul_f32 v{a+r}, v{a+r}, v{sc(r)}")
    for r in range(2): k.e(f"v_cvt_pk_bf16_f32 v{dst+r}, v{a+2*r}, v{a+2*r+1}")
EX = 102400
SOFF = 2*8192 + 7296
UOFF = lambda F: (F//4)*8192 + 7168 + (F%4)*256 + 128
TOKF = (0, 1, 2, 3, 6); FEAF = (4, 5, 7)

UO = 3456
def ub_prep(k, part):
    e = k.e
    if part:
        k.waitvm("up")
        for j_ in range(5): e(f"v_add_f32 v{64+j_}, v{64+j_}, v{69+j_}")
        e("v_add_f32 v64, v64, v65"); e("v_add_f32 v66, v66, v67"); e("v_add_f32 v64, v64, v68"); e("v_add_f32 v64, v64, v66")
        k.allred32("v_add_f32", 64, 65); split3(k, 64, 28, 17, 'u')
        return
    e("v_lshrrev_b32 v6, 5, v1"); e("v_and_b32 v5, 31, v1"); e("s_lshr_b32 s30, s21, 1")
    e("v_mul_u32_u24 v12, 5120, v6"); e("v_lshl_add_u32 v12, v5, 2, v12")
    e("s_mul_i32 s30, s30, 10240"); e("s_lshl_b32 s31, s39, 7"); e("s_add_u32 s30, s30, s31"); e(f"s_add_u32 s30, s30, {U_B}"); e("s_add_u32 s31, s30, 2560")
    for j_ in range(10): k.vmop(f"buffer_load_dword v{64+j_}, v12, s[12:15], s{30+j_//5} offen offset:{512*(j_%5)}", "up")
    e("v_bfe_u32 v6, v1, 4, 1"); e("v_lshlrev_b32 v46, 9, v6"); e("v_and_b32 v5, 15, v1"); e("v_lshl_add_u32 v46, v5, 3, v46")
    e("s_lshl_b32 s30, s39, 12"); e("v_add_u32 v46, s30, v46")

def atouch_pre(k, xin):
    e = k.e
    e("s_mul_i32 s51, s16, 163840"); e("s_lshl_b32 s52, s17, 2"); e("s_add_u32 s52, s52, s39"); e("s_mul_i32 s52, s52, 2560"); e("s_add_u32 s51, s51, s52"); e(f"s_add_u32 s51, s51, {xin}")
    e("v_min_u32 v21, 39, v1"); e("v_lshlrev_b32 v21, 6, v21")

G_ACC, G_BF, G_AR, G_DA = 64, 128, 160, 5
def gemm32_pre(k, xin, stin):
    e = k.e
    e("v_and_b32 v10, 31, v1"); e("v_lshrrev_b32 v4, 5, v1"); e("v_and_b32 v5, 15, v1")
    e("s_lshl_b32 s19, s16, 2"); e("s_add_u32 s19, s19, s18")
    e("v_bfe_u32 v7, v1, 4, 1"); e("v_mul_u32_u24 v8, 20480, v7"); e("v_lshl_add_u32 v8, v4, 8, v8"); e("v_lshl_add_u32 v8, v5, 4, v8")
    e("v_lshlrev_b32 v11, 10, v7"); e("v_lshl_add_u32 v11, v4, 9, v11"); e("v_lshl_add_u32 v11, v5, 3, v11")
    e("s_lshl_b32 s30, s19, 11"); e(f"s_add_u32 s30, s30, {stin}")
    e("s_mul_i32 s24, s19, 40960"); e(f"s_add_u32 s24, s24, {xin}")
    e("v_add_u32 v41, 65536, v3"); e("v_add_u32 v42, 131072, v3")
    e("v_subrev_u32 v58, 1, v4"); e("v_not_b32 v59, v58")
def gemm32_loads(k, R):
    e = k.e
    def ldA(ks):
        if ks % 4 == 0 and ks > 0: e("s_add_u32 s24, s24, 4096")
        for u in range(2):
            k.vmop(f"buffer_load_dwordx4 {vr(G_AR+8*(ks%G_DA)+4*u,4)}, v8, {R}, s24 offen offset:{(ks%4)*1024+512*u} {SC}", f"a{ks}")
    ldA(0)
    for q in range(4): k.vmop(f"buffer_load_dwordx2 {vr(16+2*q,2)}, v11, {R}, s30 offen offset:{128*q} {SC}", "st")
    for ks in range(1, G_DA-1): ldA(ks)
    return ldA
def gemm32_stats(k):
    e = k.e
    k.waitvm("st")
    e("v_add_f32 v16, v16, v18"); e("v_add_f32 v17, v17, v19"); e("v_add_f32 v20, v20, v22"); e("v_add_f32 v21, v21, v23")
    e("v_add_f32 v16, v16, v20"); e("v_add_f32 v17, v17, v21")
    k.allred32("v_add_f32", 16, 18); k.allred32("v_add_f32", 17, 18)
    stats_finish(k, 16, 17, 46, 47, 18)
    split3(k, 46, 48, 18, 'm', 58)
def gemm32(k, vmode, fl, ldA, bars, st0, late=None):
    e = k.e; ACC, BF, AR, DA = G_ACC, G_BF, G_AR, G_DA
    acc = lambda jf: vr(ACC+16*jf, 16)
    def rd(ks, f):
        off = ks*8192 + 1024*f; hi = off >> 16
        k.dsop(f"ds_read_b128 {vr(BF+4*f,4)}, v{(3,41,42)[hi]} offset:{off & 0xffff}", f"b{ks}_{f}")
    e("s_barrier")
    for f in range(8): rd(0, f)
    for ks in range(20):
        k.waitvm(f"a{ks}")
        if ks == 0: k.stamp(st0+1)
        if ks in bars: e("s_barrier")
        if late and ks == late[0]: k.fill(fl, 1000); fl += late[1]
        for f in range(8):
            u, jf = f//4, f%4
            if f % 2 == 0: k.waitlg(f"b{ks}_{f+1}")
            a = vr(AR+8*(ks%DA)+4*u, 4); b = vr(BF+4*f, 4); c = acc(jf) if (ks or u) else "0"
            if vmode: e(f"v_mfma_f32_32x32x16_bf16 {acc(jf)}, {a}, {b}, {c}")
            else:     e(f"v_mfma_f32_32x32x16_bf16 {acc(jf)}, {b}, {a}, {c}")
            if ks + 1 < 20: rd(ks+1, f)
            if f == 0 and ks + DA - 1 < 20: ldA(ks + DA - 1)
            if ks >= 1: k.fill(fl, 2)
        if ks == 15:
            k.fill(fl, 1000)
            for jf in range(4):
                if vmode: e(f"v_mfma_f32_32x32x8_bf16 {acc(jf)}, v[48:49], {vr(50+2*jf,2)}, {acc(jf)}")
                else:     e(f"v_mfma_f32_32x32x8_bf16 {acc(jf)}, {vr(50+2*jf,2)}, v[48:49], {acc(jf)}")
    k.stamp(st0+2)

TB, TS = 88448, 296
def toff(G): return (0, 64, 128, 168, 208, 248)[G//5] + 8*(G%5)

def qkvb_c(k, xin, stin, st0):
    e = k.e; nm = k.name
    ACC, BF = G_ACC, G_BF
    ids_mt(k); gemm32_pre(k, xin, stin)
    e("v_lshrrev_b32 v6, 4, v1")
    MC, MP, MP1 = 200, 204, 208
    NEG = fbits(-1e30)
    e("v_lshlrev_b32 v17, 2, v6"); e("v_sub_u32 v17, v5, v17"); e(f"v_mov_b32 v19, {NEG}")
    for r in range(4):
        e(f"v_subrev_u32 v18, {r}, v17"); e("v_and_b32 v16, 0x80000001, v18")
        e("v_cmp_eq_u32 vcc, 0, v16"); e(f"v_cndmask_b32 v{MC+r}, v19, 0, vcc")
        e("v_cmp_eq_u32 vcc, 0x80000000, v16"); e(f"v_cndmask_b32 v{MP+r}, v19, 0, vcc")
    e("s_cmp_eq_u32 s19, 0"); e(f"s_cselect_b32 s34, {NEG}, 0")
    for r in range(4): e(f"v_add_f32 v{MP1+r}, s34, v{MP+r}")
    e(f"s_mul_i32 s35, s18, {32*TS}"); e(f"s_add_u32 s35, s35, {TB}")
    e(f"v_mul_u32_u24 v16, {TS}, v10"); e("v_add_u32 v16, s35, v16"); e(f"v_add_u32 v16, {16*TS}, v16")
    e("v_lshl_add_u32 v212, v4, 3, v16"); e("v_lshl_add_u32 v213, v4, 5, v16"); e("v_mov_b32 v219, v16")
    e("v_lshl_add_u32 v215, v4, 6, v16")
    e(f"v_mul_u32_u24 v16, {TS}, v5"); e("v_add_u32 v16, s35, v16"); e("v_lshl_add_u32 v216, v6, 4, v16")
    e("v_lshrrev_b32 v17, 2, v1"); e(f"v_mul_u32_u24 v16, {TS}, v17"); e("v_add_u32 v16, s35, v16"); e("v_and_b32 v17, 3, v1")
    e("v_lshl_add_u32 v217, v17, 3, v16")
    e("v_mul_u32_u24 v18, 40, v17"); e("v_add_u32 v18, 240, v18"); e("v_cmp_gt_u32 vcc, 2, v17"); e("v_mov_b32 v19, 288"); e("v_cndmask_b32 v18, v19, v18, vcc"); e("v_add_u32 v218, v16, v18")
    e("v_lshlrev_b32 v43, 9, v7"); e("v_lshl_add_u32 v43, v5, 3, v43")
    e("v_mov_b32 v220, 0"); e("v_mov_b32 v221, 0"); e("v_mov_b32 v222, 0x3f803f80"); e("v_mov_b32 v223, 0x3f803f80")
    e("s_mul_i32 s25, s19, 40960"); e(f"s_add_u32 s25, s25, {OBT}")
    e("s_lshl_b32 s51, s17, 10"); e("s_add_u32 s51, s51, s25"); e("s_add_u32 s52, s51, 20480")
    e("s_lshr_b32 s53, s17, 2"); e("s_add_u32 s53, s53, 16"); e("s_lshl_b32 s53, s53, 10"); e("s_add_u32 s53, s53, s25")
    e("s_and_b32 s54, s17, 1"); e("s_lshl_b32 s54, s54, 9"); e("s_add_u32 s53, s53, s54")
    e("s_bfe_u32 s54, s17, 0x10001"); e("s_lshl_b32 s54, s54, 3"); e("s_add_u32 s53, s53, s54"); e("s_add_u32 s54, s53, 20480")
    def c2():
        e("s_lshl_b32 s48, s16, 9"); e(f"s_add_u32 s48, s48, {C2}")
        e(f"v_lshlrev_b32 v{PV_+1}, 8, v1"); e(f"v_lshlrev_b32 v{PV_+2}, 3, v1"); e(f"v_sub_u32 v{PV_+2}, 16, v{PV_+2}")
        e("s_cmp_eq_u32 s16, 0"); e("s_cselect_b64 s[56:57], 1, 3")
    e("s_cmp_eq_u32 s18, 1"); e(f"s_cbranch_scc0 {nm}_ad"); e("v_lshlrev_b32 v16, 8, v1"); e("s_mov_b32 s49, 0")
    k.label(f"{nm}_ap")
    e(f"buffer_load_dword v17, v16, s[8:11], 0 offen offset:{C1} {SC}"); e("s_add_u32 s49, s49, 1"); e("s_waitcnt vmcnt(0)")
    e("v_cmp_gt_u32 vcc, 16, v17"); e("s_cmp_ge_u32 s49, 0x20000"); e(f"s_cbranch_scc1 {nm}_ad"); e(f"s_cbranch_vccnz {nm}_ap")
    k.label(f"{nm}_ad")
    wait_go(k, "p3", 1, c2)
    k.stamp(st0)
    ldA = gemm32_loads(k, RS_(xin))
    fl = k.capture(lambda: (gemm32_stats(k), e(f"v_mul_f32 v45, {fbits(CSCALE)}, v47")))
    def uops():
        for jf in range(4): k.dsop(f"ds_read_b64 {vr(50+2*jf,2)}, v43 offset:{UO+4096*jf}", "uo")
    gemm32(k, False, fl, ldA, {6, ENV('H1S', '16'), ENV('H2S', '18')}, st0, (8, k.capture(uops)))
    e("s_barrier")
    e("s_cmp_eq_u32 s18, 0"); e(f"s_cbranch_scc0 {nm}_ni"); lw_init(k); k.label(f"{nm}_ni")
    for q in range(3): e(f"ds_write_b64 v215, v[220:221] offset:{40+8*q}")
    e("ds_write_b64 v219, v[222:223] offset:288")
    for G in list(range(10, 30, 2)) + list(range(0, 10, 2)):
        a = ACC + 2*G; d = BF + G
        for r in range(4): e(f"v_mul_f32 v{a+r}, v{a+r}, v{45 if G < 10 else 47}")
        for r in range(2): e(f"v_cvt_pk_bf16_f32 v{d+r}, v{a+2*r}, v{a+2*r+1}")
        e(f"ds_write_b64 v{ {8: 212, 32: 213}[toff(G+1) - toff(G)] }, {vr(d,2)} offset:{toff(G)}")
    e("s_waitcnt lgkmcnt(0)"); e("s_barrier")
    KO = lambda b, h: 160 + 8*b + 4*h
    QO = lambda b, h: 184 + 8*(b-1) + 4*h
    VO = lambda F, b: 20 + 8*FEAF.index(F) + 2*b if False else 224 + 6*FEAF.index(F) + 2*b - (0)
    VO = lambda F, b: (128, 136, 144)[FEAF.index(F)] + 2*b
    for b in (1, 2):
        for h in range(2):
            for x in range(2): e(f"ds_read_b64 {vr(QO(b,h)+2*x,2)}, v216 offset:{16*b*TS+64*h+8*x}")
    for b in range(3):
        for h in range(2):
            for x in range(2): e(f"ds_read_b64 {vr(KO(b,h)+2*x,2)}, v216 offset:{16*b*TS+128+40*h+8*x}")
    e("s_waitcnt lgkmcnt(0)")
    for b in range(3):
        for h in range(2): e(f"ds_read_b64_tr_b16 {vr(VO(4+h,b),2)}, v217 offset:{16*b*TS+208+40*h}")
        e(f"ds_read_b64_tr_b16 {vr(VO(7,b),2)}, v218 offset:{16*b*TS}")
    units = [(b, h) for b in (1, 2) for h in range(2)]
    SU = lambda i: 64 + 8*i
    TU = lambda i: ACC + 32 + 4*i
    PU = lambda i: ACC + 48 + 4*i
    OU = lambda i: 64 + 8*i
    for i, (b, h) in enumerate(units):
        e(f"v_mfma_f32_16x16x32_bf16 {vr(SU(i),4)}, {vr(KO(b-1,h),4)}, {vr(QO(b,h),4)}, {vr(MP1 if b == 1 else MP,4)}")
        e(f"v_mfma_f32_16x16x32_bf16 {vr(SU(i)+4,4)}, {vr(KO(b,h),4)}, {vr(QO(b,h),4)}, {vr(MC,4)}")
    e("s_waitcnt lgkmcnt(0)"); e("s_barrier")
    def allred(op):
        for sw in ("v_permlane16_swap_b32", "v_permlane32_swap_b32"):
            for i in range(4): e(f"v_mov_b32 v{TU(i)+1}, v{TU(i)}")
            for i in range(4): e(f"{sw} v{TU(i)}, v{TU(i)+1}")
            for i in range(4): e(f"{op} v{TU(i)}, v{TU(i)}, v{TU(i)+1}")
    for i in range(4):
        s = SU(i)
        e(f"v_max3_f32 v{TU(i)}, v{s}, v{s+1}, v{s+2}"); e(f"v_max3_f32 v{TU(i)}, v{s+3}, v{s+4}, v{TU(i)}")
        e(f"v_max3_f32 v{TU(i)}, v{s+5}, v{s+6}, v{TU(i)}"); e(f"v_max_f32 v{TU(i)}, v{s+7}, v{TU(i)}")
    allred("v_max_f32")
    for i in range(4):
        for r in range(8): e(f"v_sub_f32 v{SU(i)+r}, v{SU(i)+r}, v{TU(i)}")
    for i in range(4):
        for r in range(8): e(f"v_exp_f32 v{SU(i)+r}, v{SU(i)+r}")
    for i in range(4):
        for r in range(4): e(f"v_cvt_pk_bf16_f32 v{PU(i)+r}, v{SU(i)+2*r}, v{SU(i)+2*r+1}")
    for i, (b, h) in enumerate(units):
        e(f"v_mfma_f32_16x16x32_bf16 {vr(OU(i)+4,4)}, {vr(VO(7,b-1),4)}, {vr(PU(i),4)}, 0")
    for i, (b, h) in enumerate(units):
        e(f"v_mfma_f32_16x16x32_bf16 {vr(OU(i),4)}, {vr(VO(4+h,b-1),4)}, {vr(PU(i),4)}, 0")
    for i in range(4): e(f"v_mov_b32 v{TU(i)}, v{OU(i)+4}"); e(f"v_mov_b32 v{TU(i)+1}, v{OU(i)+4}")
    for i in range(4): e(f"v_permlane32_swap_b32 v{TU(i)}, v{TU(i)+1}")
    for i in range(4): e(f"v_rcp_f32 v{TU(i)+1}, v{TU(i)+1}")
    e("v_cmp_eq_u32 vcc, 0, v6")
    for bi in range(2):
        o0, o1 = OU(2*bi), OU(2*bi+1); d = 40 + 8*bi; t0, t1 = TU(2*bi)+1, TU(2*bi+1)+1
        for r in range(4): e(f"v_mul_f32 v{o0+r}, v{o0+r}, v{t0}"); e(f"v_mul_f32 v{o1+r}, v{o1+r}, v{t1}")
        e(f"v_cvt_pk_bf16_f32 v{d}, v{o0}, v{o0+1}"); e(f"v_cvt_pk_bf16_f32 v{d+1}, v{o0+2}, v{o0+3}")
        e(f"v_cvt_pk_bf16_f32 v{d+2}, v{o1}, v{o1+1}"); e(f"v_cvt_pk_bf16_f32 v{d+3}, v{o1+2}, v{o1+3}")
        e(f"buffer_store_dwordx4 {vr(d,4)}, v3, s[12:15], s{51+bi} offen {SC}")
        e(f"v_cndmask_b32 v{t0}, v{t1}, v{t0}, vcc")
        for r in range(4): e(f"v_cndmask_b32 v{o0+4+r}, v{o1+4+r}, v{o0+4+r}, vcc")
        for r in range(4): e(f"v_mul_f32 v{o0+4+r}, v{o0+4+r}, v{t0}")
        e(f"v_cvt_pk_bf16_f32 v{d+4}, v{o0+4}, v{o0+5}"); e(f"v_cvt_pk_bf16_f32 v{d+5}, v{o0+6}, v{o0+7}")
    e("s_mov_b32 exec_hi, 0")
    for bi in range(2): e(f"buffer_store_dwordx2 {vr(44+8*bi,2)}, v3, s[12:15], s{53+bi} offen {SC}")

def qkvb_l(k, xin, stin, w):
    e = k.e; nm = k.name
    ids_mt(k)
    e("v_and_b32 v5, 15, v1"); e("v_lshrrev_b32 v6, 4, v1")
    e("v_lshlrev_b32 v11, 3, v5"); e("v_lshl_add_u32 v11, v6, 8, v11")
    e("v_cmp_eq_u32 vcc, 0, v6"); e("s_lshl_b32 s22, s16, 3"); e("s_max_u32 s22, s22, 1"); e("v_cndmask_b32 v4, 0, -1, vcc")
    e("s_sub_u32 s22, s22, 1")
    e("s_mul_i32 s24, s22, 20480"); e(f"s_add_u32 s24, s24, {xin}"); e("s_add_u32 s24, s24, s45")
    e("s_lshl_b32 s27, s22, 10"); e(f"s_add_u32 s27, s27, {stin}")
    HP = 49152
    e("v_lshrrev_b32 v12, 1, v6"); e("v_lshlrev_b32 v40, 12, v12"); e("v_and_b32 v12, 1, v6"); e("v_lshl_add_u32 v40, v12, 9, v40"); e("v_lshl_add_u32 v40, v5, 4, v40")
    e("s_lshl_b32 s32, s39, 13"); e("v_add_u32 v40, s32, v40"); e("v_add_u32 v41, 65536, v40"); e("v_add_u32 v42, 131072, v40")
    e("s_mul_i32 s33, s39, 6144"); e(f"s_add_u32 s33, s33, {HP}"); e("v_add_u32 v43, s33, v3")
    e("s_min_u32 s40, s39, 2"); e("s_lshl_b32 s41, s40, 11"); e(f"s_add_u32 s41, s41, {HP}"); e("v_add_u32 v44, s41, v3")
    e("s_lshl_b32 s41, s40, 12"); e("v_lshlrev_b32 v45, 3, v5"); e("v_add_u32 v45, s41, v45")
    e(f"v_mul_u32_u24 v12, {TS}, v5"); e(f"v_add_u32 v12, {TB}, v12"); e("s_lshl_b32 s41, s40, 3"); e("s_sub_u32 s41, s41, 2")
    for x in range(2):
        e(f"v_add_u32 v13, s41, v6")
        if x: e("v_add_u32 v13, 4, v13")
        e("v_add_u32 v14, 16, v13")
        e("v_cmp_gt_u32 vcc, 20, v13"); e("v_cndmask_b32 v14, 0, v14, vcc"); e(f"v_lshl_add_u32 v{50+x}, v14, 3, v12")
    e("v_mov_b32 v47, v12"); e("v_mov_b32 v56, 0x3f803f80"); e("v_mov_b32 v57, 0x3f803f80")
    atouch_pre(k, xin)
    e(f"s_setprio {ENV('P3PRIO', '0')}")
    e("s_barrier")
    if ENV('ATOUCH', '1'): k.vmop("buffer_load_dword v20, v21, s[12:15], s51 offen")
    w.one(39)
    e(f"ds_write_b64 v46, v[28:29] offset:{UO}")
    for q_ in range(2): k.vmop(f"buffer_load_dwordx2 {vr(24+2*q_,2)}, v11, s[12:15], s27 offen offset:{128*q_} {SC}", "st")
    for i in range(5):
        k.vmop(f"buffer_load_dwordx4 {vr(128+4*i,4)}, v3, s[12:15], s24 offen {SC}", f"h{i}")
        if i < 4: e("s_add_u32 s24, s24, 4096")
    k.waitvm("st")
    stats16(k, 24, 48, 52, 4)
    e("s_waitcnt lgkmcnt(0)"); e("s_barrier")
    def rd(n):
        i, j = n // 6, 2 + n % 6
        k.dsop(f"ds_read_b128 {vr(96+4*(n%6),4)}, v{40+i//2} offset:{(i%2)*32768+1024*(j//2)+256*(j%2)}", f"r{n}")
    for n in range(6): rd(n)
    for x in range(2): k.dsop(f"ds_read_b64 {vr(20+2*x,2)}, v45 offset:{UO+4096+512*x}", "u")
    for n in range(30):
        i = n // 6
        if n % 6 == 0: k.waitvm(f"h{i}")
        k.waitlg(f"r{n}")
        c = vr(148+4*(n%6), 4)
        e(f"v_mfma_f32_16x16x32_bf16 {c}, {vr(96+4*(n%6),4)}, {vr(128+4*i,4)}, {c if i else 0}")
        if n + 6 < 30: rd(n + 6)
    e("s_barrier")
    for n in range(6): e(f"ds_write_b128 v43, {vr(148+4*n,4)} offset:{1024*n}")
    e("s_waitcnt lgkmcnt(0)"); e("s_barrier")
    for p_ in range(4):
        for x in range(2): e(f"ds_read_b128 {vr(96+8*p_+4*x,4)}, v44 offset:{6144*p_+1024*x}")
    e("s_waitcnt lgkmcnt(0)")
    for r in range(8):
        e(f"v_add_f32 v{96+r}, v{96+r}, v{104+r}"); e(f"v_add_f32 v{112+r}, v{112+r}, v{120+r}"); e(f"v_add_f32 v{80+r}, v{96+r}, v{112+r}")
    for x in range(2): e(f"v_mfma_f32_16x16x16_bf16 {vr(80+4*x,4)}, {vr(20+2*x,2)}, v[52:53], {vr(80+4*x,4)}")
    for x in range(2): scale_pack(k, 80+4*x, lambda r: 48, 88+2*x)
    e("s_barrier")
    for x in range(2): e(f"ds_write_b64 v{50+x}, {vr(88+2*x,2)}")
    e("ds_write_b64 v47, v[56:57] offset:288")
    e(f"s_setprio {ENV('LPRIO', '2')}")
    e("s_waitcnt lgkmcnt(0)"); e("s_barrier")
    k.vm = []; k.lg = []

def one(k, target):
    k.e(f"v_mov_b32 v{PV_+1}, 0"); k.e(f"v_mov_b32 v{PV_+2}, {target}"); k.e("s_mov_b64 s[56:57], 1")

def kvpos(k):
    k.e("s_and_b32 s36, s19, 31"); k.e("s_lshl_b32 s36, s36, 1"); k.e("s_lshr_b32 s34, s19, 5"); k.e("s_add_u32 s36, s36, s34")
    k.e("s_add_u32 s36, s36, 44"); k.e("s_and_b32 s36, s36, 63")
def addr_v(k, img):
    e = k.e
    e("s_sub_u32 s35, s17, 10"); e("s_lshl_b32 s35, s35, 7")
    kvpos(k); e("s_mul_i32 s36, s36, 2560"); e(f"s_add_u32 s33, s36, {img+KVIMG+1280}")
    e("v_mul_u32_u24 v20, 320, v4")
    for jf in range(4):
        e(f"v_add_u32 v16, s35, v10")
        if jf: e(f"v_add_u32 v16, {32*jf}, v16")
        e("v_mul_u32_u24 v17, 52429, v16"); e("v_lshrrev_b32 v17, 20, v17")
        e("v_mul_u32_u24 v18, 20, v17"); e("v_sub_u32 v18, v16, v18")
        e("v_mul_u32_u24 v17, 163840, v17"); e("v_lshl_add_u32 v17, v18, 4, v17")
        e(f"v_add_u32 v{24+jf}, v17, v20")
def addr_qk(k, img, xm=52):
    e = k.e; k.xm = xm
    e("s_cmp_ge_u32 s17, 5")
    e(f"s_cselect_b32 s33, {QI}, 0"); e(f"s_cselect_b32 s59, 1.0, {fbits(CSCALE)}"); e("s_cselect_b32 s35, 5, 0"); e("s_cselect_b32 s37, 1, 0")
    e(f"s_add_u32 s33, s33, {img+QIMG}")
    e("s_sub_u32 s35, s17, s35")
    kvpos(k); e("s_cmp_eq_u32 s37, 0"); e("s_cselect_b32 s36, s19, s36")
    e("s_mul_i32 s36, s36, 1280"); e("s_lshl_b32 s36, s36, s37"); e("s_add_u32 s33, s33, s36")
    e("s_lshl_b32 s34, 81920, s37")
    e("v_lshlrev_b32 v16, 4, v10"); e("v_lshlrev_b32 v17, 3, v10")
    e("v_lshl_add_u32 v18, v4, 9, v16")
    e("s_sub_u32 s36, s34, 512"); e("v_and_b32 v19, s36, v59"); e("v_add_u32 v19, v19, v16")
    e(f"s_mov_b32 s{xm}, -1"); e(f"s_mov_b32 s{xm+1}, 0"); e(f"s_mov_b32 s{xm+2}, 0"); e(f"s_mov_b32 s{xm+3}, -1")
def epi_qk(k, ACC, BF):
    e = k.e; nm = k.name + k.ptag
    for v in range(1, 5):
        e(f"s_cmp_eq_u32 s35, {v}"); e(f"s_cbranch_scc1 {nm}_e{v}")
    QSC = os.environ.get("QSC", "sc1")
    for v in range(5):
        if v: k.label(f"{nm}_e{v}")
        e("s_nop 7")
        for jf in range(4):
            for r in range(16): e(f"v_mul_f32 v{ACC+16*jf+r}, v{ACC+16*jf+r}, v47")
            for r in range(8): e(f"v_cvt_pk_bf16_f32 v{BF+8*jf+r}, v{ACC+16*jf+2*r}, v{ACC+16*jf+2*r+1}")
            for a2 in range(2):
                x = BF+8*jf+4*a2
                e(f"v_permlane32_swap_b32 v{x}, v{x+2}"); e(f"v_permlane32_swap_b32 v{x+1}, v{x+3}")
            for a2 in range(2):
                x = BF+8*jf+4*a2
                G = [32*v+8*jf+4*a2, 32*v+8*jf+4*a2+2]
                def main(g):
                    h = g // 5; r = g % 5
                    return h, (r // 2 if h % 2 == 0 else (r - 1) // 2)
                st = [g % 10 == 4 for g in G]
                def hoff(dst, h, c):
                    if h: e(f"s_mul_i32 s{dst}, s34, {h}"); e(f"s_add_u32 s{dst}, s{dst}, s33")
                    else: e(f"s_mov_b32 s{dst}, s33")
                    if c: e(f"s_add_u32 s{dst}, s{dst}, {c}")
                if not any(st):
                    (h0, p0), (h1, p1) = main(G[0]), main(G[1])
                    hoff(36, h0, 512*p0)
                    if h0 == h1: e(f"buffer_store_dwordx4 {vr(x,4)}, v18, {k.srdo}, s36 offen {QSC}")
                    else:        e(f"buffer_store_dwordx4 {vr(x,4)}, v19, {k.srdo}, s36 offen {QSC}")
                    assert (h0 == h1 and (p0, p1) == (0, 1)) or (h1 == h0 + 1 and (p0, p1) == (1, 0))
                else:
                    m = st.index(False); q = 1 - m
                    h, p = main(G[m]); hoff(36, h, 512*p); hoff(37, G[q] // 5, 1024); e("s_add_u32 s38, s37, s34")
                    e(f"s_mov_b64 exec, s[{k.xm+2*m}:{k.xm+1+2*m}]")
                    e(f"buffer_store_dwordx4 {vr(x,4)}, v16, {k.srdo}, s36 offen {QSC}")
                    e(f"s_mov_b64 exec, s[{k.xm+2*q}:{k.xm+1+2*q}]")
                    e(f"buffer_store_dwordx2 {vr(x,2)}, v17, {k.srdo}, s37 offen {QSC}")
                    e(f"buffer_store_dwordx2 {vr(x+2,2)}, v17, {k.srdo}, s38 offen {QSC}")
                    e("s_mov_b64 exec, -1")
        e(f"s_branch {nm}_fin5")
def epi_v(k, ACC, BF, RS):
    e = k.e
    VSC = os.environ.get("VSC", "sc1")
    for jf in range(4):
        for r in range(16): e(f"v_mul_f32 v{ACC+16*jf+r}, v{ACC+16*jf+r}, v{RS+r}")
        for r in range(8): e(f"v_cvt_pk_bf16_f32 v{BF+8*jf+r}, v{ACC+16*jf+2*r}, v{ACC+16*jf+2*r+1}")
        for u in range(2):
            e(f"buffer_store_dwordx4 {vr(BF+8*jf+4*u,4)}, v{24+jf}, {k.srdo}, s33 offen offset:{640*u} {VSC}")

def qkva_c(k, xin, stin, img, cnt, wbar, st0):
    k.ptag = '_p5'; k.srdo = 's[12:15]'
    e = k.e; nm = k.name + k.ptag
    DA = 5
    ACC, BF, AR, RS = 64, 128, 160, 200
    gemm32_pre(k, xin, stin)
    e("v_lshlrev_b32 v12, 4, v10")
    e("s_lshl_b32 s31, s17, 11"); e(f"s_add_u32 s31, s31, {U_A}")
    for jf in range(4): k.vmop(f"buffer_load_dwordx4 {vr(24+4*jf,4)}, v12, s[12:15], s31 offen offset:{512*jf}", "u")
    def c4(): one(k, 16); e("s_lshl_b32 s48, s16, 8"); e(f"s_add_u32 s48, s48, {cnt}")
    wait_go(k, "p5", 1, c4)
    k.stamp(st0)
    ldA = gemm32_loads(k, RS_(xin))
    def prolog(vmode):
        gemm32_stats(k)
        for jf in range(4): usum(k, 24+4*jf, 50+2*jf, 18)
        if vmode:
            e("v_lshlrev_b32 v16, 4, v4")
            for r in range(16):
                e(f"v_add_u32 v17, {(8*(r//4) + r%4)*4}, v16")
                k.dsop(f"ds_bpermute_b32 v{RS+r}, v17, v47", "rs")
            addr_v(k, img)
        else:
            addr_qk(k, img); e("v_mul_f32 v47, s59, v47")
    e("s_cmp_ge_u32 s17, 10"); e(f"s_cbranch_scc1 {nm}_qv")
    vm_save = list(k.vm)
    def mainloop(vmode):
        gemm32(k, vmode, k.capture(lambda: prolog(vmode)), ldA, {w_ - 1 for w_ in wbar}, st0)
        e("s_barrier")
    mainloop(False)
    epi_qk(k, ACC, BF)
    k.label(f"{nm}_qv"); k.vm = vm_save; k.lg = []
    mainloop(True)
    epi_v(k, ACC, BF, RS)
    k.label(f"{nm}_fin5")

def ph_front(k):
    k.ptag = "_f"; k.srdo = "s[12:15]"
    e = k.e; nm = k.name + k.ptag; kn = k.name
    R, DEP, SCRB, UT = 4, 2, 131072, 65536
    need = lambda ks: ks // 2
    slot = lambda st: (st % R) * 32768
    e("s_cmp_ge_u32 s2, 256"); e(f"s_cbranch_scc1 {kn}_end"); k.stamp(0); k.rstamp(1)
    e("s_load_dwordx4 s[60:63], s[0:1], 0"); e("s_load_dwordx2 s[6:7], s[0:1], 64")
    e("s_load_dwordx2 s[4:5], s[0:1], 56")
    e("s_and_b32 s20, s2, 7"); e("s_lshr_b32 s21, s2, 3")
    e("v_lshrrev_b32 v2, 6, v0"); e("v_and_b32 v1, 63, v0")
    e("v_readfirstlane_b32 s18, v2")
    e("s_and_b32 s39, s18, 3"); e("s_lshl_b32 s45, s39, 10")
    ids_mt(k)
    e("v_lshlrev_b32 v3, 4, v1"); e(f"v_lshlrev_b32 v9, {ENV('BST', '6')}, v1")
    e("s_lshl_b32 s22, s2, 2"); e("s_add_u32 s22, s22, s39"); e("s_mul_i32 s23, s22, 2400")
    if ENV('XLOC', '1'): e("s_lshl_b32 s22, s20, 5"); e("s_add_u32 s22, s22, s21"); e("s_lshl_b32 s22, s22, 2"); e("s_add_u32 s22, s22, s39")
    e("s_mul_i32 s22, s22, 2560")
    def kwait():
        e("s_waitcnt lgkmcnt(0)")
        k.stamp(2)
        k.srd(8, 60, S*D*2); k.srd(28, 62, D*3*D*2); k.srd(12, 6, WS_END)
    def burst():
        if ENV('BURST', '1'):
            e("s_mov_b32 exec_hi, 0xff" if ENV('BST', '6') == 6 else "s_mov_b64 exec, 0xfffff")
            e(f"buffer_load_dword v240, v9, s[8:11], s22 offen {os.environ.get('XNT', '')}"); e(f"buffer_load_dword v241, v9, s[28:31], s23 offen {os.environ.get('WNT', '')}")
            e("s_mov_b64 exec, -1")
    def codepf(tg):
        if ENV('CPF', '1'):
            e("s_getpc_b64 s[34:35]"); k.label(f"{nm}_pc{tg}")
            e(f"s_sub_u32 s34, s34, {nm}_pc{tg} - {kn}"); e("s_subb_u32 s35, s35, 0")
            e("v_lshlrev_b32 v242, 4, v0"); e("s_lshl_b32 s36, s21, 12"); e("v_add_u32 v242, s36, v242")
            e(f"v_and_b32 v242, 0xffffffc0, v242"); e(f"v_min_u32 v242, code_end - {kn} - 4, v242")
            e("global_load_dword v243, v242, s[34:35]")
    e("s_cmp_ge_u32 s17, 15"); e(f"s_cbranch_scc1 {nm}_ub")
    e("v_and_b32 v10, 31, v1"); e("v_lshrrev_b32 v4, 5, v1"); e("v_and_b32 v5, 15, v1"); e("v_bfe_u32 v7, v1, 4, 1")
    e("v_lshrrev_b32 v13, 2, v5"); e("v_and_b32 v6, 3, v1")
    e("v_lshl_add_u32 v14, v4, 3, v13"); e("v_lshlrev_b32 v14, 8, v14"); e("v_lshl_add_u32 v14, v7, 5, v14"); e("v_lshl_add_u32 v14, v6, 3, v14")
    e("v_add_u32 v14, 16384, v14")
    def a0():
        e("s_lshl_b32 s48, s17, 11"); e(f"s_add_u32 s48, s48, {C0}"); e(f"v_lshlrev_b32 v{PV_+1}, 8, v1"); e("s_mov_b64 s[56:57], 0xff")
    SF = ENV('SF', '10')
    e("s_cmp_ge_u32 s18, 4"); e(f"s_cbranch_scc1 {nm}_ld")
    kwait(); burst(); codepf("c")
    if ENV('TLB', '1'):
        sh = ENV('TLBS', '18')
        e("s_load_dwordx4 s[84:87], s[0:1], 32"); e("s_load_dwordx2 s[88:89], s[0:1], 16")
        e(f"v_lshlrev_b32 v236, {sh}, v0" if sh < 21 else "v_lshlrev_b32 v236, 21, v1")
        e(f"v_min_u32 v236, {STAMPS-4}, v236")
        e("s_cmp_eq_u32 s18, 0" if sh == 21 else "s_cmp_lt_u32 s18, 4"); e(f"s_cbranch_scc0 {nm}_tl")
        e("buffer_load_dword v237, v236, s[12:15], 0 offen")
        e("v_and_b32 v236, 1, v1"); e("v_mul_u32_u24 v238, 819196, v236"); e("v_mul_u32_u24 v236, 2457596, v236"); e("s_mov_b64 exec, 3")
        e("s_waitcnt lgkmcnt(0)")
        e("global_load_dword v237, v236, s[84:85]"); e("global_load_dword v237, v238, s[86:87]"); e("global_load_dword v237, v238, s[88:89]")
        e("s_mov_b64 exec, -1")
        k.label(f"{nm}_tl")
        e("s_waitcnt lgkmcnt(0)")
    ACC, BF, AR, RS = 64, 128, 160, 200
    BA, AA = 216, 224
    e("s_lshl_b32 s19, s16, 2"); e("s_add_u32 s19, s19, s18")
    for jf in range(4):
        e(f"v_xor_b32 v15, {jf}, v13"); e(f"v_lshl_add_u32 v{BA+jf}, v15, 6, v14"); e(f"v_add_u32 v{BA+4+jf}, 65536, v{BA+jf}")
    e("v_lshl_add_u32 v15, v2, 5, v10"); e("v_lshlrev_b32 v15, 7, v15"); e("v_bfe_u32 v12, v10, 1, 3"); e("v_xor_b32 v12, v12, v4")
    for q in range(4):
        e(f"v_xor_b32 v11, {2*q}, v12"); e(f"v_lshl_add_u32 v{AA+q}, v11, 4, v15"); e(f"v_add_u32 v{AA+4+q}, 65536, v{AA+q}")
    e("v_mul_u32_u24 v8, 20480, v7"); e("v_lshl_add_u32 v8, v4, 8, v8"); e("v_lshl_add_u32 v8, v5, 4, v8")
    e("s_mul_i32 s24, s19, 40960"); e(f"s_add_u32 s24, s24, {XI}")
    e("v_subrev_u32 v58, 1, v4"); e("v_not_b32 v59, v58")
    e("s_lshl_b32 s40, s2, 2"); e("s_add_u32 s40, s40, s39"); e("s_mul_i32 s40, s40, 8192"); e(f"s_add_u32 s40, s40, {QIMG}"); e("v_lshlrev_b32 v238, 7, v1")
    e("s_cmp_ge_u32 s17, 10"); e(f"s_cbranch_scc1 {nm}_qv")
    def mainloop(vmode):
        tagm = "v" if vmode else "q"
        acc = lambda jf: vr(ACC+16*jf, 16)
        fl = k.capture(lambda: addr_v(k, 0) if vmode else addr_qk(k, 0, 28))
        def rdB(ks, f):
            u, jf = f//4, f%4; sl = slot(ks//2)
            for t in range(2):
                off = sl + (32*(ks%2) + 16*u + 4*t)*256
                k.dsop(f"ds_read_b64_tr_b16 {vr(BF+4*f+2*t,2)}, v{BA+4*(sl>>16)+jf} offset:{off & 0xffff}", f"b{ks}_{f}")
        def rdA(ks):
            sl = slot(ks//2)
            for u in range(2): k.dsop(f"ds_read_b128 {vr(AR+8*(ks%2)+4*u,4)}, v{AA+4*(sl>>16)+2*(ks%2)+u} offset:{sl & 0xffff}", f"b{ks}_a")
        kb = [-1]
        def bars(ks):
            while kb[0] < need(ks): e("s_barrier"); kb[0] += 1
        bars(0); k.stamp(3)
        rdA(0)
        for f in range(8): rdB(0, f)
        for ks in range(20):
            for f in range(8):
                u, jf = f//4, f%4
                if f % 2 == 0: k.waitlg(f"b{ks}_{f+1}")
                a = vr(AR+8*(ks%2)+4*u, 4); b = vr(BF+4*f, 4); c = acc(jf) if (ks or u) else "0"
                if vmode: e(f"v_mfma_f32_32x32x16_bf16 {acc(jf)}, {a}, {b}, {c}")
                else:     e(f"v_mfma_f32_32x32x16_bf16 {acc(jf)}, {b}, {a}, {c}")
                if ks + 1 < 20:
                    if f == 0: bars(ks+1); rdA(ks+1)
                    rdB(ks+1, f)
                if ks >= 4: k.fill(fl, 1)
            e(f"s_cmp_eq_u32 s17, {ks % 15}"); e(f"s_cbranch_scc0 {nm}_x{tagm}{ks}")
            e(f"s_add_u32 s32, s24, {1024*ks}")
            for u in range(2): e(f"buffer_store_dwordx4 {vr(AR+8*(ks%2)+4*u,4)}, v8, s[12:15], s32 offen offset:{512*u} {SC}")
            k.label(f"{nm}_x{tagm}{ks}")
            if ENV('FT', '0') and ks == ENV('FT', '0'): e("buffer_load_dword v239, v238, s[12:15], s40 offen")
            if ks in (0, 1, 4, 9, 10, 14): k.stamp(7 + (0, 1, 4, 9, 10, 14).index(ks))
        assert not fl
        k.stamp(4)
        e(f"v_lshlrev_b32 v23, 2, v10"); e(f"v_add_u32 v23, {UT}, v23"); e("s_lshl_b32 s32, s18, 8"); e("v_add_u32 v22, s32, v23")
        if vmode: e("v_lshlrev_b32 v21, 4, v4"); e(f"s_add_u32 s32, s32, {UT}"); e("v_add_u32 v21, s32, v21")
        e("s_barrier")
        e("ds_read_b32 v48, v22 offset:1024"); e("ds_read_b32 v49, v22 offset:1152")
        for jf in range(4): e(f"ds_read_b32 v{28+2*jf}, v23 offset:{256*jf}"); e(f"ds_read_b32 v{29+2*jf}, v23 offset:{256*jf+128}")
        if vmode:
            for a_ in range(4): e(f"ds_read_b128 {vr(RS+4*a_,4)}, v21 offset:{2048+32*a_}")
        else: e("ds_read_b32 v47, v22 offset:2048")
        e("s_waitcnt lgkmcnt(0)"); k.lg = []
        e("v_and_b32 v48, v48, v58"); e("v_and_b32 v49, v49, v58")
        if not vmode: e("v_mul_f32 v47, s59, v47")
        for jf in range(4):
            if vmode: e(f"v_mfma_f32_32x32x8_bf16 {acc(jf)}, v[48:49], {vr(28+2*jf,2)}, {acc(jf)}")
            else:     e(f"v_mfma_f32_32x32x8_bf16 {acc(jf)}, {vr(28+2*jf,2)}, v[48:49], {acc(jf)}")
        k.stamp(5)
    mainloop(False)
    epi_qk(k, ACC, BF)
    k.label(f"{nm}_qv"); k.lg = []
    mainloop(True)
    epi_v(k, ACC, BF, RS)
    k.label(f"{nm}_fin5")
    k.stamp(6)
    e("s_barrier")
    signal(k, "sf", -1, 8, a0, 0, "s[12:15]")
    k.dump(13)
    e(f"s_branch {kn}_t0")
    k.label(f"{nm}_ld"); k.vm = []; k.lg = []
    e(f"s_setprio {ENV('LPRIO', '2')}")
    e("v_lshrrev_b32 v16, 4, v1"); e("v_and_b32 v17, 3, v2")
    e("v_lshl_add_u32 v18, v17, 2, v16"); e("v_mul_u32_u24 v20, 3840, v18")
    e("v_xor_b32 v18, v13, v16"); e("v_lshl_add_u32 v20, v18, 6, v20"); e("v_lshl_add_u32 v20, v6, 4, v20")
    e("v_lshrrev_b32 v18, 3, v1"); e("v_lshl_add_u32 v19, v17, 5, v18"); e("v_and_b32 v23, 7, v1")
    for i in range(4):
        e(f"v_add_u32 v42, {8*i}, v19"); e("v_bfe_u32 v43, v42, 1, 3"); e("v_xor_b32 v43, v43, v23")
        e("v_mul_u32_u24 v42, 1280, v42"); e(f"v_lshl_add_u32 v{48+i}, v43, 4, v42")
        if i: e(f"v_subrev_u32 v{48+i}, {1024*i}, v{48+i}")
    e("s_lshl_b32 s25, s17, 8"); e("s_mul_i32 s24, s16, 163840"); e("s_lshl_b32 s26, s39, 12")
    def ld1(st, n):
        if n < 4:
            e(f"s_add_u32 m0, s45, {slot(st)+16384+4096*n}"); e(f"s_add_u32 s32, s25, {(64*st+16*n)*3840}")
            k.vmop(f"buffer_load_dwordx4 v20, s[28:31], s32 offen {os.environ.get('WNT2', '')} lds", f"d{st}")
        else:
            e(f"s_add_u32 m0, s26, {slot(st)}"); e(f"s_add_u32 s33, s24, {128*st}")
            k.vmop(f"buffer_load_dwordx4 v{44+n}, s[8:11], s33 offen offset:{1024*(n-4)} {os.environ.get('XNT2', '')} lds", f"d{st}")
    ORD = [0, 4, 1, 5, 2, 6, 3, 7]
    def ld(st):
        for n in ORD: ld1(st, n)
    kwait(); ld(0)
    e("v_xor_b32 v15, v17, v13"); e("v_lshl_add_u32 v40, v15, 6, v14"); e("v_add_u32 v41, 65536, v40")
    e("v_and_b32 v42, 1, v16"); e("v_cmp_eq_u32 vcc, v42, v5"); e("v_mov_b32 v43, 0x3f803f80")
    for r in range(4): e(f"v_cndmask_b32 v{60+r}, 0, v43, vcc")
    k.srd(52, 4, 256)
    e("s_mul_i32 s27, s17, 163840"); e("s_add_u32 s27, s27, s45"); e(f"s_add_u32 s27, s27, {WA_I}")
    if ENV('LD1', '0'): ld(1)
    done = [0]
    def steps_of(kb):
        r = []
        while done[0] < 20 and need(done[0]) <= kb: r.append(done[0]); done[0] += 1
        return r
    def wa_store(q):
        e("s_lshl_b32 s32, s16, 13"); e("s_add_u32 s32, s32, s27")
        if q: e("s_add_u32 s32, s32, 131072")
        e("s_add_u32 s33, s32, 4096")
        for u in range(2): k.vmop(f"buffer_store_dwordx4 {vr(112+8*q+4*u,4)}, v3, s[12:15], s{32+u} offen {SC}")
    for kb in range(10):
        if kb == 5: k.stamp(5)
        k.waitvm(f"d{kb}")
        if kb == 5: k.stamp(6)
        e("s_barrier")
        if kb in (4, 5): k.stamp(2 if kb == 4 else 7)
        if kb == 0 and not ENV('LD1', '0'): ld(1)
        sl = slot(kb); todo = list(ORD) if kb + DEP < 10 else []
        nxt = lambda: ld1(kb + DEP, todo.pop(0)) if todo else None
        sts = steps_of(kb)
        for n_, ks in enumerate(sts):
            for u in range(2):
                for t in range(2):
                    e(f"ds_read_b64_tr_b16 {vr(136+8*n_+4*u+2*t,2)}, v{40+(sl>>16)} offset:{(sl + (32*(ks%2) + 16*u + 4*t)*256) & 0xffff}")
        nxt(); nxt()
        if kb == 4: k.stamp(3)
        e("s_waitcnt lgkmcnt(0)")
        mf = [(n_, ks, u) for n_, ks in enumerate(sts) for u in range(2)]
        for n_, ks, u in mf:
            e(f"v_mfma_f32_16x16x32_bf16 v[64:67], v[60:63], {vr(136+8*n_+4*u,4)}, {'v[64:67]' if ks or u else 0}")
            nxt()
        nxt(); nxt()
        if kb == 4: k.stamp(4)
        for n_, ks in enumerate(sts):
            e(f"s_cmp_eq_u32 s16, {ks % 16}"); e(f"s_cbranch_scc0 {nm}_w{ks}")
            for r in range(8): e(f"v_mov_b32 v{112+8*(ks//16)+r}, v{136+8*n_+r}")
            k.label(f"{nm}_w{ks}")
        assert not todo
        if kb == 8:
            e("v_and_b32 v24, 15, v1"); e("v_lshlrev_b32 v24, 2, v24"); e("s_mov_b32 s33, 0")
            k.label(f"{nm}_pl")
            e(f"buffer_load_dword v25, v24, s[52:55], 0 offen {SC}"); e("s_add_u32 s33, s33, 1"); e("s_waitcnt vmcnt(0)"); k.vm = []
            e("v_cmp_eq_u32 vcc, 0, v25"); e("s_cmp_ge_u32 s33, 0x20000"); e(f"s_cbranch_scc1 {nm}_px")
            e(f"s_cbranch_vccnz {nm}_pl")
            k.label(f"{nm}_px")
            e("v_lshlrev_b32 v24, 3, v10"); e("s_lshl_b32 s32, s16, 10"); e("s_lshl_b32 s33, s39, 8"); e("s_add_u32 s32, s32, s33"); e(f"s_add_u32 s32, s32, {STI}")
            k.vmop(f"buffer_load_dwordx2 v[44:45], v24, s[12:15], s32 offen {SC}", "rs")
            wa_store(0)
    k.waitvm("rs")
    stats_finish(k, 44, 45, 28, 29, 30)
    e("v_lshlrev_b32 v42, 2, v5"); e("ds_bpermute_b32 v68, v42, v64"); e("ds_bpermute_b32 v69, v42, v65"); e("v_cmp_eq_u32 vcc, 1, v7")
    split3(k, 28, 32, 36, 'm')
    e("s_waitcnt lgkmcnt(0)"); e("v_cndmask_b32 v64, v68, v69, vcc")
    split3(k, 64, 34, 36, 'u')
    e("v_lshlrev_b32 v24, 2, v10"); e("s_lshl_b32 s32, s39, 8"); e(f"s_add_u32 s32, s32, {UT}"); e("v_add_u32 v24, s32, v24")
    e("ds_write_b32 v24, v34"); e("ds_write_b32 v24, v35 offset:128"); e("ds_write_b32 v24, v32 offset:1024"); e("ds_write_b32 v24, v33 offset:1152"); e("ds_write_b32 v24, v29 offset:2048")
    e("s_waitcnt lgkmcnt(0)"); e("s_barrier")
    lwc_init(k); e("s_barrier")
    e("v_mov_b32 v44, v64")
    e("s_cmp_ge_u32 s16, 4"); e(f"s_cbranch_scc1 {nm}_le"); wa_store(1)
    e("s_cmp_eq_u32 s16, 0"); e(f"s_cbranch_scc0 {nm}_le")
    e("v_mov_b32 v45, 0"); e("v_mov_b32 v46, 0"); e("v_mov_b32 v47, 0"); e("v_lshlrev_b32 v24, 4, v10")
    e("s_lshl_b32 s32, s17, 11"); e("s_lshl_b32 s33, s39, 9"); e("s_add_u32 s32, s32, s33"); e(f"s_add_u32 s32, s32, {U_A}")
    e("s_mov_b32 exec_hi, 0"); e(f"buffer_store_dwordx4 v[44:47], v24, s[12:15], s32 offen {SC}")
    k.label(f"{nm}_le")
    e("s_mov_b64 exec, -1")
    signal(k, "sfl", -1, 8, a0, 0, "s[12:15]")
    k.dump(8)
    e(f"s_branch {kn}_t0")
    k.label(f"{nm}_ub"); k.vm = []; k.lg = []
    kwait()
    e("v_lshrrev_b32 v4, 3, v1"); e("v_lshl_add_u32 v4, v2, 4, v4"); e("v_mul_u32_u24 v5, 1280, v4"); e("v_and_b32 v6, 7, v1"); e("v_lshl_add_u32 v5, v6, 4, v5")
    e("s_mul_i32 s24, s16, 163840"); e("s_add_u32 s25, s24, 10240")
    for b_ in range(2):
        for i in range(10): k.vmop(f"buffer_load_dwordx4 {vr(24+40*b_+4*i,4)}, v5, s[8:11], s{24+b_} offen offset:{128*i} {os.environ.get('XNT2', '')}", f"x{b_}{i}")
    for j in range(8): e(f"v_mov_b32 v{8+j}, 0")
    e("v_mov_b32 v7, 0x3f803f80")
    e("v_lshlrev_b32 v16, 4, v0"); e("s_and_b32 s26, s16, 7"); e("s_lshl_b32 s26, s26, 13"); e(f"s_add_u32 s26, s26, {CNT}"); e("s_cmp_ge_u32 s16, 8"); e(f"s_cselect_b32 s27, {LS}, 0"); e("s_add_u32 s26, s26, s27")
    k.vmop(f"buffer_store_dwordx4 v[12:15], v16, s[12:15], s26 offen {SC}")
    for b_ in range(2):
        for i in range(10):
            k.waitvm(f"x{b_}{i}")
            for q in range(4):
                r = 24+40*b_+4*i+q
                e(f"v_dot2_f32_bf16 v{8+2*b_}, v{r}, v7, v{8+2*b_}"); e(f"v_dot2_f32_bf16 v{9+2*b_}, v{r}, v{r}, v{9+2*b_}")
    for dpp in ("quad_perm:[1,0,3,2]", "quad_perm:[2,3,0,1]", "row_half_mirror"):
        for q in range(4): e(f"v_add_f32_dpp v{8+q}, v{8+q}, v{8+q} {dpp} row_mask:0xf bank_mask:0xf")
    e("v_lshlrev_b32 v4, 3, v4"); e("s_lshl_b32 s26, s16, 10"); e(f"s_add_u32 s26, s26, {STI}")
    e("v_cmp_eq_u32 vcc, 0, v6"); k.srd(52, 4, 256); e("s_mov_b64 exec, vcc")
    e(f"buffer_store_dwordx2 v[8:9], v4, s[12:15], s26 offen {SC}"); e(f"buffer_store_dwordx2 v[10:11], v4, s[12:15], s26 offen offset:64 {SC}")
    e("s_mov_b64 exec, -1"); lwc_init(k)
    e("s_waitcnt vmcnt(0)"); e("s_barrier")
    e("s_cmp_ge_u32 s18, 4"); e(f"s_cbranch_scc1 {nm}_u2")
    codepf("u")
    e("s_cmp_eq_u32 s18, 0"); e(f"s_cbranch_scc0 {nm}_u2")
    e("v_mov_b32 v4, 0"); e("v_mov_b32 v5, 1"); e("s_lshl_b32 s26, s16, 2"); e("s_mov_b64 exec, 1")
    e(f"buffer_store_dword v5, v4, s[52:55], s26 offen {SC}")
    e("s_mov_b64 exec, 0xffff"); e("v_lshlrev_b32 v4, 2, v1"); e("s_mov_b32 s33, 0")
    k.label(f"{nm}_u1")
    e(f"buffer_load_dword v5, v4, s[52:55], 0 offen {SC}"); e("s_add_u32 s33, s33, 1"); e("s_waitcnt vmcnt(0)")
    e("v_cmp_eq_u32 vcc, 0, v5"); e("s_cmp_ge_u32 s33, 0x20000"); e(f"s_cbranch_scc1 {nm}_u2"); e(f"s_cbranch_vccnz {nm}_u1")
    k.label(f"{nm}_u2")
    e("s_mov_b64 exec, -1"); e("s_waitcnt vmcnt(0)")

def k_main():
    k = KB(NAME + "_kernel"); e = k.e; name = k.name
    ph_front(k)
    k.label(f"{name}_t0")
    e("s_load_dwordx2 s[46:47], s[0:1], 48"); e("s_mov_b32 s3, 0")
    k.srd(8, 6, 2*LS)
    e("s_waitcnt lgkmcnt(0)")
    k.srd(60, 46, S*D*2)
    k.label(f"{name}_top")
    k.vm = []; k.lg = []
    e("s_setprio 0"); k.stamp(0); k.rstamp(1)
    ph_attn(k)
    def a1():
        e("s_lshl_b32 s48, s17, 3"); e("s_and_b32 s49, s16, 1"); e("s_add_u32 s48, s48, s49"); e("s_lshl_b32 s48, s48, 8"); e(f"s_add_u32 s48, s48, {C1}")
        e(f"v_lshlrev_b32 v{PV_+1}, 9, v1"); e("s_mov_b64 s[56:57], 15")
    e("s_cmp_ge_u32 s18, 4"); e(f"s_cbranch_scc1 {name}_ld")
    signal(k, "s1", 0, 8, a1)
    def c1():
        e("s_lshl_b32 s48, s16, 9"); e(f"s_add_u32 s48, s48, {C1}")
        e(f"v_lshlrev_b32 v{PV_+1}, 8, v1"); e(f"v_mov_b32 v{PV_+2}, 16"); e("s_mov_b64 s[56:57], 3")
    proj_c(k, "p2", OT, XI, XM, STM, False, c1, 0, 6)
    def a2():
        e("s_lshr_b32 s48, s16, 1"); e("s_lshl_b32 s48, s48, 9"); e(f"s_add_u32 s48, s48, {C2}")
        e(f"v_mul_u32_u24 v{PV_+1}, 768, v1"); e("s_bitcmp1_b32 s16, 0"); e("s_cselect_b64 s[56:57], 3, 1")
    signal(k, "s2", 1, 4, a2)
    qkvb_c(k, XM, STM, 9)
    def a3(): one(k, 0); e("s_lshl_b32 s48, s16, 8"); e(f"s_add_u32 s48, s48, {C3}")
    signal(k, "s3", 0, 4, a3)
    def c3(): one(k, 16); e("s_lshr_b32 s48, s16, 1"); e("s_lshl_b32 s48, s48, 8"); e(f"s_add_u32 s48, s48, {C3}")
    proj_c(k, "p4", OBT, XM, XI, STI, True, c3, 0, 12)
    def a4(): one(k, 0); e("s_lshr_b32 s48, s16, 1"); e("s_lshl_b32 s48, s48, 8"); e(f"s_add_u32 s48, s48, {C4}")
    signal(k, "s4", 1, 4, a4)
    k.dump(15, "1")
    ids_mt(k)
    e("s_cmp_ge_u32 s17, 15"); e(f"s_cbranch_scc1 {name}_idle")
    qkva_c(k, XI, STI, 0, C4, [7], 3)
    k.stamp(6)
    e("s_barrier")
    def a5(): e("s_lshl_b32 s48, s17, 11"); e(f"s_add_u32 s48, s48, {LS + C0}"); e(f"v_lshlrev_b32 v{PV_+1}, 8, v1"); e("s_mov_b64 s[56:57], 0xff")
    signal(k, "s5", -1, 4, a5)
    k.dump(7, "3")
    k.label(f"{name}_t1")
    e("s_mov_b32 s3, 1"); e(f"s_add_u32 s8, s8, {LS}"); e("s_addc_u32 s9, s9, 0"); e(f"s_mov_b32 s10, {LS}")
    e(f"s_branch {name}_top")
    k.label(f"{name}_idle")
    for _ in range(4): e("s_barrier")
    e(f"s_branch {name}_t1")
    k.label(f"{name}_ld"); k.vm = []; k.lg = []
    if os.environ.get("FOC") == "at": e("s_add_u32 s84, s3, 4"); k.dump(8, "s84")
    e(f"s_setprio {ENV('LPRIO', '2')}")
    w = proj_l(k, WOA_I, WB_I, OT, a1, 0)
    qkvb_l(k, XM, STM, w)
    w = proj_l(k, WOB_I, WA_I, OBT, None, 0, True)
    ids_mt(k)
    atouch_pre(k, XI)
    e("s_barrier")
    e("buffer_load_dword v20, v21, s[12:15], s51 offen")
    w.one(39); e("s_waitcnt vmcnt(0)"); e("s_barrier")
    e("s_barrier"); lwc_init(k); e("s_barrier")
    e(f"s_branch {name}_t1")
    k.label(f"{name}_end"); e("s_endpgm")
    k.tail()
    return k.text(256 if STAMP else 244, 256 if STAMP else 244)

def build():
    hdr = open("cdna_kernels/" + NAME + ".s.ref").read().split("; Override launch")[0]
    out = hdr + "; @launch grid=(256,1,1) block=(512,1,1) lds=163840\n"
    out += '.amdgcn_target "amdgcn-amd-amdhsa--gfx950"\n'
    out += k_main()
    out += ".text\ncode_end:\n"
    return out

if __name__ == "__main__":
    dst = sys.argv[1] if len(sys.argv) > 1 else "cdna_kernels/" + NAME + ".s"
    open(dst, "w").write(build())
    print("wrote", dst)
```

```python
import sys, math
from lint import lint, fix

NAME = "interleave_layers__softmax_full_mha__sliding_local_dilated__prompt"
S, D, H, DH = 2048, 640, 32, 20
XS = S*D*2
IMG = H*64*2560
QI = H*64*1280
CNT = 0
C1 = CNT; C2 = C1 + 64*256; C3 = C2 + 34*256; C4 = C3 + 16*256; C0 = C4 + 16*256
LS = 65536
CS = LS + C4
XI = 2*LS; STI = XI + XS
QIMG = STI + S*64; KVIMG = QIMG + QI
OT = KVIMG + IMG; OBT = OT + XS; XM = OBT + XS
STM = XM + XS
U_A = STM + S*64
U_B = U_A + 32768
WA_I = U_B + 163840
WOA_I = WA_I + 15*163840
WB_I = WOA_I + 819200
WOB_I = WB_I + 16*163840
STAMPS = WOB_I + 819200
WS_END = STAMPS + 16*262144
import os
STAMP = int(os.environ.get("STAMP", "0"))
ATTN_WAVES = 8
AV = os.environ.get("AV", "")
CSCALE = (DH ** -0.5) * math.log2(math.e)
import struct
def fbits(x): return "0x%08x" % struct.unpack("<I", struct.pack("<f", x))[0]

FM = [(0,16),(32,48),(80,96),(112,128),(64,144)]
def FX(ks, t):
    return 160*(ks//5) + FM[ks%5][t]

class KB:
    def __init__(s, name):
        s.name = name; s.L = []; s.vm = []; s.lg = []; s.cap = None
    def e(s, line):
        if s.cap is not None: s.cap.append(('e', line, None))
        else: s.L.append("    " + line)
    def capture(s, fn):
        s.cap = []; fn(); c = s.cap; s.cap = None
        return [x for x in c if not (x[0] == 'e' and x[1].startswith('s_nop'))]
    def fill(s, lst, n=1):
        for _ in range(n):
            if not lst: return
            kind, a, b = lst.pop(0)
            if kind == 'e':
                s.e(a)
                if a.startswith('s_cmp'):
                    while lst and lst[0][0] == 'e' and lst[0][1].startswith('s_cselect'): s.e(lst.pop(0)[1])
            elif kind == 'ds': s.dsop(a, b)
            elif kind == 'wvm': s.waitvm(a)
            elif kind == 'wlg': s.waitlg(a)
    def c(s, txt): s.L.append("    ; " + txt)
    def label(s, l): s.L.append(l + ":")
    def vmop(s, line, tag=None): s.e(line); s.vm.append(tag); assert len(s.vm) <= 63, (s.name, len(s.vm))
    def dsop(s, line, tag=None):
        if s.cap is not None: s.cap.append(('ds', line, tag)); return
        s.e(line); s.lg.append(tag)
    def _n(s, lst, tag):
        idx = max(i for i, t in enumerate(lst) if t == tag)
        return idx
    def waitvm(s, tag):
        if s.cap is not None: s.cap.append(('wvm', tag, None)); return
        if tag not in s.vm: return
        i = s._n(s.vm, tag); n = len(s.vm) - 1 - i
        s.e(f"s_waitcnt vmcnt({n})"); s.vm = s.vm[i+1:]
    def waitlg(s, tag):
        if s.cap is not None: s.cap.append(('wlg', tag, None)); return
        if tag not in s.lg: return
        i = s._n(s.lg, tag); n = len(s.lg) - 1 - i
        if n > 15: n = 15; i = len(s.lg) - 1 - n
        s.e(f"s_waitcnt lgkmcnt({n})"); s.lg = s.lg[i+1:]
    def waitall(s):
        s.e("s_waitcnt vmcnt(0) lgkmcnt(0)"); s.vm = []; s.lg = []
    def srd(s, r, base, nbytes):
        s.e(f"s_mov_b32 s{r}, s{base}")
        s.e(f"s_and_b32 s{r+1}, s{base+1}, 0xffff")
        s.e(f"s_mov_b32 s{r+2}, {nbytes}")
        s.e(f"s_mov_b32 s{r+3}, 0x20000")
    def stamp(s, i):
        if not STAMP: return
        op = "s_memrealtime" if os.environ.get("RT") else "s_memtime"
        s.e(f"{op} s[{64+2*i}:{65+2*i}]" if i < 10 else f"{op} s[{72+2*i}:{73+2*i}]")
    def rstamp(s, i):
        if not STAMP: return
        s.e(f"s_memrealtime s[{64+2*i}:{65+2*i}]")
    def dump(s, n=8, slot="0", wave="s18"):
        if not STAMP: return
        e = s.e
        if os.environ.get("DBG"):
            keep = {"0": [(1, 246), (3, 247), (6, 248)], "1": [(2, 249), (5, 250), (14, 251)], "3": [(6, 252)], "2": [(2, 253), (5, 254), (14, 255)]}[slot]
            e("s_waitcnt lgkmcnt(0)")
            if n < 7 or (slot == "0" and n == 8): return
            for i, v in keep: e(f"v_mov_b32 v{v}, s{64+2*i if i < 10 else 72+2*i}")
            if slot == "2":
                e(f"s_cmp_eq_u32 s2, {os.environ['DBG']}"); e("s_cbranch_scc0 dbg_skip"); e("s_cmp_eq_u32 s18, 0"); e("s_cbranch_scc0 dbg_skip")
                e("s_load_dwordx2 s[84:85], s[0:1], 56"); e("s_memrealtime s[86:87]"); e("s_waitcnt lgkmcnt(0)")
                s.srd(88, 84, 256); e("s_mov_b64 exec, 1"); e("v_mov_b32 v0, 0"); e("v_mov_b32 v245, s86"); e("v_sub_u32 v245, v245, v246")
                for i in range(9):
                    e(f"v_sub_u32 v{247+i}, v{247+i}, v246"); e(f"buffer_store_dword v{247+i}, v0, s[88:91], 0 offen offset:{4*i}")
                e("buffer_store_dword v245, v0, s[88:91], 0 offen offset:36")
                s.label("dbg_skip")
            return
        e("s_memrealtime s[86:87]"); e("s_waitcnt lgkmcnt(0)")
        e("s_mov_b64 exec, 1")
        e(f"s_lshl_b32 s84, {slot}, 18")
        e("s_lshl_b32 s85, s2, 3"); e(f"s_add_u32 s85, s85, {wave}"); e("s_lshl_b32 s85, s85, 6"); e(f"s_add_u32 s85, s85, {STAMPS}"); e("s_add_u32 s85, s85, s84")
        e("v_mov_b32 v244, 0")
        for i in range(n):
            e(f"v_mov_b32 v245, s{64+2*i if i < 10 else 72+2*i}")
            e(f"buffer_store_dword v245, v244, s[12:15], s85 offen offset:{4*i}")
        e("v_mov_b32 v245, s86"); e("buffer_store_dword v245, v244, s[12:15], s85 offen offset:60")
        e("s_mov_b64 exec, -1")
    def text(s, vgpr, accum, sgpr=102):
        s.L, added = fix(s.L)
        if os.environ.get("V"): print(s.name, "auto nops:", added, "lines:", len(s.L))
        out = [".text", f".globl {s.name}", ".p2align 8", f".type {s.name},@function", f"{s.name}:"]
        out += s.L
        out += ['.section .rodata,"a"', ".p2align 6", f".amdhsa_kernel {s.name}",
                f"  .amdhsa_next_free_vgpr {vgpr}", f"  .amdhsa_next_free_sgpr {sgpr}", f"  .amdhsa_accum_offset {accum}",
                "  .amdhsa_group_segment_fixed_size 0", "  .amdhsa_kernarg_size 72", "  .amdhsa_user_sgpr_count 2",
                "  .amdhsa_user_sgpr_kernarg_segment_ptr 1", "  .amdhsa_system_sgpr_workgroup_id_x 1", ".end_amdhsa_kernel"]
        nb = lint(s.L, s.name)
        assert nb == 0, f"{nb} hazards in {s.name}"
        return "\n".join(out) + "\n"
    def allred32(s, op, v, t):
        s.e(f"v_mov_b32 v{t}, v{v}"); s.e("s_nop 1")
        s.e(f"v_permlane32_swap_b32 v{v}, v{t}"); s.e("s_nop 1")
        s.e(f"{op} v{v}, v{v}, v{t}")
    def allred16(s, op, v, t):
        s.e(f"v_mov_b32 v{t}, v{v}"); s.e("s_nop 1")
        s.e(f"v_permlane16_swap_b32 v{v}, v{t}"); s.e("s_nop 1")
        s.e(f"{op} v{v}, v{v}, v{t}")

def vr(a, n): return f"v[{a}:{a+n-1}]" if n > 1 else f"v{a}"
def ar(a, n): return f"a[{a}:{a+n-1}]" if n > 1 else f"a{a}"

def stats_finish(k, s1, s2, mean, rstd, t):
    e = k.e
    e(f"v_mul_f32 v{mean}, {fbits(1.0/D)}, v{s1}")
    e(f"v_mul_f32 v{t}, {fbits(1.0/D)}, v{s2}")
    e(f"v_fma_f32 v{t}, -v{mean}, v{mean}, v{t}")
    e(f"v_max_f32 v{t}, 0, v{t}")
    e(f"v_add_f32 v{t}, {fbits(1e-5)}, v{t}")
    e(f"v_rsq_f32 v{rstd}, v{t}")
    e("s_nop 0")

def split3(k, src, d, t, kind, maskv=None):
    e = k.e
    if kind == 'm':
        e(f"v_xor_b32 v{t+1}, 0x80000000, v{src}"); src = t+1
    e(f"v_and_b32 v{t}, 0xffff0000, v{src}")
    e(f"v_sub_f32 v{t+2}, v{src}, v{t}")
    if kind == 'u':
        e(f"v_cvt_pk_bf16_f32 v{d}, v{t}, v{t+2}")
        e(f"v_lshrrev_b32 v{d+1}, 16, v{t}")
    else:
        e(f"v_cvt_pk_bf16_f32 v{d}, v{t}, v{t}")
        e(f"v_cvt_pk_bf16_f32 v{d+1}, v{t+2}, 0")
    if maskv is not None:
        e(f"v_and_b32 v{d}, v{d}, v{maskv}"); e(f"v_and_b32 v{d+1}, v{d+1}, v{maskv}")

SC = "sc1"
RS_ = lambda off: "s[12:15]" if off >= 2*LS else "s[8:11]"
EARLY = int(os.environ.get('EARLY', '6'))
ENV = lambda n, d: int(os.environ.get(n, d))

def ids_mt(k):
    k.e("s_lshl_b32 s22, s20, 1"); k.e("s_and_b32 s23, s21, 1"); k.e("s_add_u32 s16, s22, s23"); k.e("s_lshr_b32 s17, s21, 1")
def ids_rt(k):
    k.e("s_lshl_b32 s22, s20, 2"); k.e("s_and_b32 s23, s21, 3"); k.e("s_add_u32 s16, s22, s23"); k.e("s_lshr_b32 s17, s21, 2")

LW = 163824
PV_ = 240
def lw_init(k):
    e = k.e
    e(f"v_mov_b32 v{PV_+3}, {LW}")
    for i in range(3): e(f"v_mov_b32 v{PV_+i}, 0")
    e(f"ds_write_b96 v{PV_+3}, v[{PV_}:{PV_+2}]"); e(f"ds_write_b32 v{PV_+3}, v{PV_} offset:12")

def lwc_init(k):
    k.e(f"v_mov_b32 v{PV_+3}, {LW-8}"); k.e(f"v_mov_b32 v{PV_}, 0"); k.e(f"v_mov_b32 v{PV_+1}, 0")
    k.e(f"ds_write_b64 v{PV_+3}, v[{PV_}:{PV_+1}]"); k.e("s_waitcnt lgkmcnt(0)")

def signal(k, tag, word, nw, addr_code, younger=0, srd="s[8:11]"):
    e = k.e
    addr_code()
    e(f"v_mov_b32 v{PV_+3}, {LW-8}"); e(f"v_mov_b32 v{PV_}, 1")
    e("s_mov_b64 exec, 1")
    assert younger == 0
    e("s_waitcnt vmcnt(0)"); k.vm = []
    if tag == os.environ.get("FOC"): k.stamp(2)
    e(f"ds_add_rtn_u32 v{PV_+2}, v{PV_+3}, v{PV_} offset:{8*word+8}")
    e("s_waitcnt lgkmcnt(0)"); k.lg = []
    e(f"v_readfirstlane_b32 s49, v{PV_+2}")
    e("s_mov_b64 exec, s[56:57]")
    e(f"s_cmp_eq_u32 s49, {nw-1}"); e(f"s_cbranch_scc0 {k.name}_{tag}_sg")
    e(f"buffer_atomic_add v{PV_}, v{PV_+1}, {srd}, s48 offen {SC}")
    if os.environ.get("FOC2") == tag: k.stamp(4)
    k.label(f"{k.name}_{tag}_sg")
    e("s_mov_b64 exec, -1")

def wait_go(k, tag, word, poll_code):
    e = k.e; nm = f"{k.name}_{tag}"
    e(f"v_mov_b32 v{PV_+3}, {LW-8}"); e("s_mov_b32 s49, 0")
    if poll_code:
        e("s_cmp_eq_u32 s18, 0"); e(f"s_cbranch_scc0 {nm}_sp")
        poll_code()
        e("s_mov_b64 exec, s[56:57]")
        if os.environ.get("FOC") == "g" + tag: k.stamp(2)
        k.label(f"{nm}_pl")
        e(f"v_mov_b32 v{PV_}, 0")
        e(f"buffer_atomic_add v{PV_}, v{PV_+1}, s[8:11], s48 offen sc0 sc1")
        e("s_add_u32 s49, s49, 1")
        e("s_waitcnt vmcnt(0)")
        e(f"v_cmp_ge_u32 vcc, v{PV_}, v{PV_+2}")
        e("s_cmp_ge_u32 s49, 0x20000"); e(f"s_cbranch_scc1 {nm}_px")
        e("s_cmp_eq_u64 vcc, exec"); e(f"s_cbranch_scc0 {nm}_pl")
        k.label(f"{nm}_px")
        if os.environ.get("FOC") == "g" + tag: e("s_add_u32 s70, s64, s49")
        e("s_mov_b64 exec, 1"); e(f"v_mov_b32 v{PV_}, 1")
        e(f"ds_write_b32 v{PV_+3}, v{PV_} offset:{8*word+12}")
        e(f"s_branch {nm}_go")
    k.label(f"{nm}_sp")
    e("s_sleep 1")
    e(f"ds_read_b32 v{PV_}, v{PV_+3} offset:{8*word+12}")
    e("s_add_u32 s49, s49, 1")
    e("s_waitcnt lgkmcnt(0)")
    e(f"v_readfirstlane_b32 s44, v{PV_}")
    e("s_cmp_ge_u32 s49, 0x400000"); e(f"s_cbranch_scc1 {nm}_go")
    e("s_cmp_eq_u32 s44, 0"); e(f"s_cbranch_scc1 {nm}_sp")
    k.label(f"{nm}_go")
    e("s_mov_b64 exec, -1")

class Wdma:
    def __init__(s, k, n, base=50, tag="w"): s.k = k; s.n = n; s.i = 0; s.base = base; s.tag = tag
    def one(s, i):
        s.k.e(f"s_add_u32 m0, s45, {4096*i}"); s.k.e(f"s_add_u32 s32, s{s.base}, {4096*i}")
        s.k.vmop(f"buffer_load_dwordx4 v3, s[12:15], s32 offen {SC} lds", f"{s.tag}{i}")
    def go(s, upto):
        while s.i < min(upto, s.n): s.one(s.i); s.i += 1
    def rng(s, a, b, thr=0):
        for i in range(a, b):
            s.one(i)
            if thr and len(s.k.vm) >= thr: s.k.e(f"s_waitcnt vmcnt({thr-1})"); s.k.vm = s.k.vm[len(s.k.vm)-thr+1:]

SIDE_SV = 152; SIDE_D = 160; SIDE_U = 192
def side_setup(k):
    e = k.e; nm = k.name
    e("s_load_dwordx4 s[84:87], s[0:1], 32"); e("s_load_dwordx2 s[88:89], s[0:1], 16")
    e("s_mul_i32 s49, s2, 3"); e("s_add_u32 s49, s49, s18"); e("s_sub_u32 s49, s49, 4")
    e("s_sub_u32 s32, s18, 4"); e("s_cmp_lt_u32 s32, 3"); e("s_cselect_b32 s49, s49, 959"); e("s_cmp_eq_u32 s3, 0"); e("s_cselect_b32 s49, s49, 959")
    e("s_lshl_b32 s35, s39, 13"); e("s_add_u32 s35, s35, 112640")
    e("s_mul_i32 s36, s49, 3277"); e("s_lshr_b32 s36, s36, 16"); e("s_mul_i32 s37, s36, 20"); e("s_sub_u32 s37, s49, s37")
    e("v_and_b32 v140, 15, v1"); e("v_lshrrev_b32 v141, 2, v140"); e("v_and_b32 v142, 3, v1")
    e("s_waitcnt lgkmcnt(0)")
    SV = SIDE_SV
    e("v_lshrrev_b32 v136, 4, v1")
    for r in list(range(SV, SV+5)) + list(range(144, 152)): e(f"v_mov_b32 v{r}, 0")
    e("s_mov_b32 s5, 0")
    e("s_mov_b32 s53, 0x7ff00000"); e("s_mov_b32 s54, s53"); e("s_mov_b32 s58, s53")
    e("s_cmp_ge_u32 s49, 320"); e(f"s_cbranch_scc1 {nm}_ss1")
    k.srd(88, 84, D*3*D*2)
    e(f"s_mul_i32 s5, s37, {32*3840}"); e("s_mul_i32 s32, s36, 80"); e("s_add_u32 s5, s5, s32")
    e("v_lshlrev_b32 v137, 2, v136"); e("v_xor_b32 v137, v137, v140"); e("v_min_u32 v137, 14, v137")
    e("v_mul_u32_u24 v138, 52, v137"); e("v_lshrrev_b32 v138, 8, v138"); e("v_mul_u32_u24 v138, 1200, v138"); e("v_lshl_add_u32 v138, v137, 4, v138")
    e("v_mul_u32_u24 v137, 3840, v136"); e(f"v_add_u32 v{SV}, v138, v137")
    e("v_lshrrev_b32 v137, 5, v1"); e("v_lshl_add_u32 v137, v137, 3, v141"); e("v_lshlrev_b32 v137, 8, v137"); e("v_and_b32 v138, 1, v136")
    e("v_lshl_add_u32 v137, v138, 5, v137"); e("v_lshl_add_u32 v137, v142, 3, v137"); e("v_add_u32 v137, s35, v137")
    for jf in range(4): e(f"v_xor_b32 v139, {jf}, v141"); e(f"v_lshl_add_u32 v{144+jf}, v139, 6, v137")
    e("s_mul_i32 s53, s36, 163840"); e("s_lshl_b32 s54, s37, 13"); e("s_add_u32 s53, s53, s54"); e(f"s_add_u32 s53, s53, {WB_I}"); e("s_add_u32 s54, s53, 4096"); e("s_mov_b32 s58, s54")
    e(f"s_branch {nm}_ss2")
    k.label(f"{nm}_ss1")
    e("s_cmp_ge_u32 s36, 24"); e("s_cselect_b32 s32, s86, s88"); e("s_cselect_b32 s33, s87, s89")
    k.srd(88, 32, D*D*2)
    e("s_cmp_ge_u32 s49, 640"); e(f"s_cbranch_scc1 {nm}_ss2")
    e("s_and_b32 s32, s36, 7"); e("s_mul_i32 s32, s32, 160")
    e("s_mul_i32 s5, s37, 40"); e("s_sub_u32 s34, s37, 16"); e("s_mul_i32 s34, s34, 160"); e("s_add_u32 s34, s34, 16")
    e("s_cmp_lt_u32 s37, 16"); e("s_cselect_b32 s5, s5, s34"); e("s_cselect_b32 s33, 4, 2"); e("s_cselect_b32 s34, 4, 16")
    e("s_mul_i32 s5, s5, 1280"); e("s_add_u32 s5, s5, s32")
    for i in range(5):
        e(f"v_add_u32 v137, {64*i}, v1"); e("v_mul_u32_u24 v138, 6554, v137"); e("v_lshrrev_b32 v138, 16, v138")
        e("v_lshrrev_b32 v139, s33, v138"); e("v_mul_u32_u24 v139, s34, v139"); e("v_mul_u32_u24 v139, 1280, v139")
        e("v_mul_u32_u24 v138, 1120, v138"); e("v_add_u32 v139, v139, v138"); e(f"v_lshl_add_u32 v{SV+i}, v137, 4, v139")
    e("v_lshlrev_b32 v137, 2, v136"); e("s_mov_b32 s32, 2560")
    e("s_cmp_ge_u32 s36, 24"); e(f"s_cbranch_scc1 {nm}_sf3"); e("s_cmp_ge_u32 s37, 16"); e(f"s_cbranch_scc1 {nm}_sf3")
    e("v_lshrrev_b32 v137, 1, v136"); e("v_lshlrev_b32 v137, 4, v137"); e("v_and_b32 v138, 1, v136"); e("v_lshl_add_u32 v137, v138, 2, v137"); e("s_mov_b32 s32, 1280")
    k.label(f"{nm}_sf3")
    e("v_add_u32 v137, v137, v141"); e("v_mul_u32_u24 v137, 160, v137"); e("v_add_u32 v137, s35, v137")
    e("s_and_b32 s33, s36, 1"); e("s_lshl_b32 s34, s33, 5"); e("s_xor_b32 s33, s33, 1"); e("s_lshl_b32 s33, s33, 7")
    e("v_lshl_add_u32 v144, v142, 4, v137"); e("v_add_u32 v144, s34, v144"); e("v_add_u32 v145, s32, v144")
    e("v_lshl_add_u32 v146, v142, 3, v137"); e("v_add_u32 v146, s33, v146"); e("v_add_u32 v147, s32, v146")
    e("s_cmp_ge_u32 s36, 24"); e(f"s_cselect_b32 s53, {WOB_I-WOA_I}, 0"); e("s_and_b32 s54, s36, 7"); e("s_mul_i32 s54, s54, 102400"); e("s_add_u32 s53, s53, s54")
    e("s_mul_i32 s54, s37, 5120"); e("s_add_u32 s53, s53, s54"); e(f"s_add_u32 s53, s53, {WOA_I}"); e("s_add_u32 s54, s53, 4096")
    k.label(f"{nm}_ss2")
    e("s_lshl_b32 s38, s49, 9"); e(f"s_add_u32 s38, s38, {U_B}"); e("s_cmp_ge_u32 s49, 320"); e("s_cselect_b32 s38, 0x7ff00000, s38")
    e("v_lshlrev_b32 v143, 2, v1")
    e("s_cmp_lt_u32 s49, 640"); e("s_cselect_b32 s4, 2, 0"); e("s_cmp_lt_u32 s49, 320"); e("s_cselect_b32 s4, 1, s4")
    e("s_and_b32 s55, s49, 15"); e("s_lshl_b32 s55, s55, 8"); e(f"s_add_u32 s55, s55, {CS}")

def ph_attn(k):
    e = k.e; nm = k.name
    KA, KT, VA = 4, 5, 6
    Q = [8, 14]; KF = [24, 32]; VF = [40, 48]; SS = [56, 72]; P = 88; O = [96, 112]; PF = 208
    SCR = 137216; TOP = 112640
    ids_rt(k)
    e("v_and_b32 v3, 31, v1"); e("v_lshrrev_b32 v7, 5, v1")
    e("v_lshlrev_b32 v22, 4, v1"); e("v_lshlrev_b32 v23, 3, v3")
    e("s_mul_i32 s19, s16, 163840")
    e("s_lshr_b32 s41, s18, 2")
    e("s_lshl_b32 s23, s17, 3"); e("s_lshl_b32 s22, s39, 1"); e("s_add_u32 s23, s23, s22")
    e("s_add_u32 s23, s23, s41")
    e("s_lshr_b32 s22, s19, 1"); e(f"s_add_u32 s22, s22, {QIMG}")
    e("s_mul_i32 s24, s23, 1280"); e("s_add_u32 s24, s24, s22"); e("s_xor_b32 s40, s23, 1"); e("s_mul_i32 s40, s40, 1280"); e("s_add_u32 s40, s40, s22")
    e("s_mul_i32 s42, s41, 2560"); e(f"s_add_u32 s42, s42, {TOP}")
    e("s_lshl_b32 s25, s18, 10")
    e(f"s_add_u32 s26, s19, {KVIMG}")
    rnd = [0]
    def dma():
        i = rnd[0]; rnd[0] += 1
        if i == 6:
            e("s_cmp_lt_u32 s18, 2"); e("s_cselect_b32 s27, 163840, 0"); e("s_add_u32 s27, s27, s25"); e("s_sub_u32 m0, s27, 2048")
        else: e(f"s_add_u32 m0, s25, {(TOP + 8192*i) if i < 6 else 8192*i - 51200}")
        e("s_add_u32 s27, s26, m0")
        k.vmop(f"buffer_load_dwordx4 v22, s[12:15], s27 offen {SC} lds", f"i{i}")
    e(f"v_add_u32 v{KA}, s42, v22")
    e(f"v_add_u32 v{KT}, s42, v23"); e(f"v_add_u32 v{KT}, 1024, v{KT}")
    if ENV('KTZ', '1'): e(f"v_lshl_add_u32 v{KT}, v7, 20, v{KT}")
    e("v_mul_u32_u24 v21, 20, v7"); e("v_add_u32 v21, v21, v3"); e("v_lshlrev_b32 v21, 4, v21")
    e("v_add_u32 v21, 1280, v21"); e(f"v_add_u32 v{VA}, s42, v21")
    e("s_mov_b32 s28, 0x000fffff"); e("s_mov_b32 s29, 0x000fffff")
    e("v_cmp_eq_u32 vcc, 20, v3"); e("v_mov_b32 v20, 0x3f803f80"); e("s_nop 0")
    e("v_cndmask_b32 v20, 0, v20, vcc")
    for r in range(16): e(f"v_mov_b32 v{VF[0]+r}, v20")
    for r in range(32): e(f"v_mov_b32 v{O[0]+r}, 0")
    for r in range(4): e(f"v_mov_b32 v{P+4+r}, 0")
    e("v_subrev_u32 v30, 1, v7")
    e("s_lshl_b32 s43, s21, 2"); e("s_add_u32 s43, s43, s39"); e("s_mul_i32 s43, s43, 27648"); e(f"s_add_u32 s43, s43, {WOA_I}")
    e("s_mul_i32 s32, s23, 40960"); e(f"s_add_u32 s32, s32, {OT}")
    e("s_lshr_b32 s51, s16, 1"); e("s_lshl_b32 s51, s51, 10"); e("s_and_b32 s34, s16, 1"); e("s_lshl_b32 s34, s34, 9")
    e("s_add_u32 s51, s51, s34"); e("s_add_u32 s51, s51, s32")
    e("s_lshr_b32 s52, s16, 3"); e("s_add_u32 s52, s52, 16"); e("s_lshl_b32 s52, s52, 10"); e("s_add_u32 s52, s52, s32")
    e("s_and_b32 s35, s16, 3"); e("s_lshl_b32 s35, s35, 8"); e("s_add_u32 s52, s52, s35")
    e("s_bfe_u32 s35, s16, 0x10002"); e("s_lshl_b32 s35, s35, 3"); e("s_add_u32 s52, s52, s35")
    e("v_lshrrev_b32 v38, 4, v3"); e("v_mul_u32_u24 v38, 20480, v38"); e("v_and_b32 v39, 15, v3")
    e("v_lshl_add_u32 v38, v39, 4, v38"); e("v_lshl_add_u32 v39, v7, 8, v38")
    e("s_mul_i32 s32, s18, 3072"); e("s_xor_b32 s33, s18, 4"); e("s_mul_i32 s33, s33, 3072")
    e(f"v_add_u32 v132, {SCR}, v22"); e("v_add_u32 v133, s33, v132"); e("v_add_u32 v132, s32, v132")
    def c0(nl):
        e("s_lshl_b32 s48, s17, 8"); e(f"s_add_u32 s48, s48, {C0}"); e(f"v_mov_b32 v{PV_+2}, 16")
        e("s_mul_i32 s32, s16, 20"); e("s_add_u32 s33, s32, 19"); e("s_lshr_b32 s32, s32, 7"); e("s_lshr_b32 s33, s33, 7"); e("s_sub_u32 s33, s33, s32")
        e(f"v_lshrrev_b32 v{PV_+1}, 1, v1"); e(f"v_mul_u32_u24 v{PV_+1}, 5, v{PV_+1}"); e(f"v_and_b32 v{PV_}, s33, v1"); e(f"v_add3_u32 v{PV_+1}, v{PV_+1}, v{PV_}, s32")
        e(f"v_lshlrev_b32 v{PV_+1}, 11, v{PV_+1}"); e("s_mov_b64 s[56:57], 63")
    side_setup(k)
    e("s_lshl_b32 s59, s2, 2"); e("s_add_u32 s59, s59, s39"); e("s_mul_i32 s50, s59, 2560"); e(f"s_mul_i32 s59, s59, {-(-(U_A - OT) // 1024 // 128) * 128}"); e(f"s_add_u32 s59, s59, {OT}")
    e("v_lshlrev_b32 v234, 7, v1")
    e("v_lshlrev_b32 v134, 11, v1"); e("s_lshl_b32 s32, s17, 8"); e(f"s_add_u32 s32, s32, {C0}"); e("v_add_u32 v134, s32, v134")
    e("v_lshlrev_b32 v135, 8, v1"); e(f"v_add_u32 v135, {CS - 4096}, v135"); e("v_cmp_gt_u32 vcc, 16, v1")
    e("v_cndmask_b32 v134, v135, v134, vcc"); e("v_cndmask_b32 v131, 40, 16, vcc"); e("v_mov_b32 v135, 64")
    wait_go(k, "t", -1, lambda: c0(6))
    k.stamp(2)
    dma()
    for x in range(2):
        k.vmop(f"buffer_load_dwordx4 {vr(Q[x],4)}, v22, s[12:15], s{(24,40)[x]} offen {SC}", "q")
        k.vmop(f"buffer_load_dwordx2 {vr(Q[x]+4,2)}, v23, s[12:15], s{(24,40)[x]} offen offset:1024 {SC}", "q")
    for _ in range(3): dma()
    k.waitvm("q")
    for x in range(2):
        e(f"v_and_b32 v{Q[x]+4}, v{Q[x]+4}, v30"); e(f"v_and_b32 v{Q[x]+5}, v{Q[x]+5}, v30")
    k.waitvm("i1"); e("s_barrier"); k.stamp(3)
    if os.environ.get("FOC") == "clk": k.rstamp(0)
    def rdK(buf, off):
        off *= 2
        e(f"ds_read_b128 {vr(KF[buf],4)}, v{KA} offset:{off}")
        e(f"ds_read_b64 {vr(KF[buf]+4,2)}, v{KT} offset:{off}")
    def rdV(buf, off):
        off *= 2
        e("s_mov_b64 exec, s[28:29]")
        e(f"ds_read_b128 {vr(VF[buf],4)}, v{VA} offset:{off}")
        e(f"ds_read_b128 {vr(VF[buf]+4,4)}, v{VA} offset:{off+640}")
        e("s_mov_b64 exec, -1")
    def qkm(x, kb): e(f"v_mfma_f32_32x32x16_bf16 {vr(SS[x],16)}, {vr(KF[kb],4)}, {vr(Q[x],4)}, 0")
    def qkt(x, kb): e(f"v_mfma_f32_32x32x8_bf16 {vr(SS[x],16)}, {vr(KF[kb]+4,2)}, {vr(Q[x]+4,2)}, {vr(SS[x],16)}")
    def pv(x, vb, u): e(f"v_mfma_f32_32x32x16_bf16 {vr(O[x],16)}, {vr(VF[vb]+4*u,4)}, {vr(P+4*u,4)}, {vr(O[x],16)}")
    def base(t):
        return 0 if t < 10 else 10 if t < 22 else 22
    def bump(regs, t):
        if t == 10:
            for r in regs: e(f"v_subrev_u32 v{r}, {TOP}, v{r}")
        elif t == 22:
            for r in regs: e(f"v_add_u32 v{r}, {12*5120}, v{r}")
    def unit(x, t, extra=()):
        p = t % 2; s = SS[x]
        ex = lambda i: e(f"v_exp_f32 v{s+i}, v{s+i}")
        cv = lambda i: e(f"v_cvt_pk_bf16_f32 v{P+i}, v{s+2*i}, v{s+2*i+1}")
        kb = p if x == 0 else 1-p
        if x == 1: e("s_waitcnt lgkmcnt(2)" if t < 31 else "s_waitcnt lgkmcnt(0)")
        if not (x == 1 and t == 31): qkm(1-x, kb)
        if x == 1 and t + 2 < 32:
            bump((KA, KT), t+2); rdK(p, (t+2-base(t+2))*2560)
        for i in range(0, 4): ex(i)
        if x == 0:
            pv(1, 1-p, 1)
            if t + 1 < 32:
                bump((VA,), t+1); rdV(1-p, (t+1-base(t+1))*2560)
        else:
            pv(0, p, 1)
        for f_ in extra: f_()
        for i in range(4, 8): ex(i)
        for i in range(0, 4): cv(i)
        if not (x == 1 and t == 31): qkt(1-x, kb)
        for i in range(8, 12): ex(i)
        if x == 0: e(f"s_waitcnt lgkmcnt({4 if t < 31 else 0})")
        pv(x, p, 0)
        for i in range(12, 16): ex(i)
        for i in range(4, 8): cv(i)
    rdK(0, 0); rdV(0, 0); rdK(1, 2560)
    e("s_waitcnt lgkmcnt(4)")
    qkm(0, 0); e("s_nop 10"); qkt(0, 0); e("s_nop 10")
    SYN = {1: 3, 4: 7, 10: 19}; SW = ENV('SW', '27')
    T_SI, T_SR, T_SA, T_PF, T_LC = 10, ENV('TSR', '16'), 26, 13, 27
    hk = [0]
    def cond(test, fn):
        def g():
            hk[0] += 1; lab = f"{nm}_hk{hk[0]}"
            e(test); e(f"s_cbranch_scc0 {lab}"); fn(); k.label(lab)
        return g
    def prio1(): e("s_setprio 1")
    def pref():
        for _ in range(2): e(f"buffer_load_dwordx4 {vr(PF,4)}, v22, s[12:15], s43 offen {SC}"); e("s_add_u32 s43, s43, 1024")
    def side_issue():
        e("s_cmp_eq_u32 s4, 1"); e(f"s_cbranch_scc0 {nm}_i1")
        for i in range(8):
            e(f"s_add_u32 m0, s35, {1024*i}"); e(f"s_add_u32 s27, s5, {4*3840*i}")
            e(f"buffer_load_dwordx4 v{SIDE_SV}, s[88:91], s27 offen {os.environ.get('SNT', 'nt')} lds")
        e(f"s_branch {nm}_i2")
        k.label(f"{nm}_i1")
        for i in range(5):
            e(f"s_add_u32 m0, s35, {1024*i}"); e("s_nop 0")
            e(f"buffer_load_dwordx4 v{SIDE_SV+i}, s[88:91], s5 offen {os.environ.get('SNT', 'nt')} lds")
        k.label(f"{nm}_i2")
    def side_read():
        e("s_waitcnt vmcnt(0)")
        e("s_cmp_eq_u32 s4, 1"); e(f"s_cbranch_scc0 {nm}_r1")
        for F in range(8):
            for t in range(2): e(f"ds_read_b64_tr_b16 {vr(SIDE_D+4*F+2*t,2)}, v{144+F%4} offset:{4096*(F//4)+1024*t}")
        e(f"s_branch {nm}_r2")
        k.label(f"{nm}_r1")
        for nf in range(5):
            for t in range(2): e(f"ds_read_b64_tr_b16 {vr(SIDE_D+4*nf+2*t,2)}, v{144+t if nf < 4 else 146+t} offset:{64*(nf//2)+8*(nf%2) if nf < 4 else 0}")
        k.label(f"{nm}_r2")
    def side_done():
        e("s_waitcnt lgkmcnt(0)"); e(f"v_mov_b32 v{PV_+3}, {LW-8}"); e(f"v_mov_b32 v{PV_}, 1"); e("s_mov_b64 exec, 1")
        e(f"ds_add_u32 v{PV_+3}, v{PV_}"); e("s_mov_b64 exec, -1")
    UA = (SIDE_U, 212)
    def side_sum(q):
        def g():
            if q == 0:
                for r in range(4): e(f"v_mov_b32 v{228+r}, 0x3f803f80")
            for u in range(2):
                for x in range(2): e(f"v_mfma_f32_32x32x16_bf16 {vr(UA[x],16)}, v[228:231], {vr(SIDE_D+16*u+8*q+4*x,4)}, {vr(UA[x],16) if u else 0}")
        return g
    def side_sum2(q):
        def g():
            e("v_cmp_gt_u32 vcc, 32, v1"); e(f"v_cndmask_b32 v{232+q}, v{UA[1]}, v{UA[0]}, vcc")
            e(f"buffer_store_dword v{232+q}, v143, s[12:15], s38 offen offset:{256*q} {SC}")
        return g
    def side_store(F):
        return lambda: e(f"buffer_store_dwordx4 {vr(SIDE_D+4*F,4)}, v22, s[12:15], s{53 if F < 4 else 54 if F == 4 else 58} offen offset:{1024*(F%4)} {SC}")
    def side_arrive():
        e(f"v_mov_b32 v{PV_+1}, 0"); e(f"v_mov_b32 v{PV_}, 1"); e("s_waitcnt vmcnt(0)"); e("s_mov_b64 exec, 1")
        e(f"buffer_atomic_add v{PV_}, v{PV_+1}, s[12:15], s55 offen {SC}"); e("s_mov_b64 exec, -1")
    def touch():
        e("s_cmp_eq_u32 s3, 0"); e(f"s_cbranch_scc0 {nm}_t2")
        e("buffer_load_dword v235, v234, s[12:15], s59 offen"); e(f"s_branch {nm}_t3")
        k.label(f"{nm}_t2")
        if ENV('TOUT', '0'):
            e("s_mov_b64 exec, 0xfffff"); e("buffer_load_dword v235, v234, s[60:63], s50 offen"); e("s_mov_b64 exec, -1")
        k.label(f"{nm}_t3")
    def late():
        e("s_mov_b32 exec_lo, 0xffff7fff"); e("s_mov_b32 exec_hi, 0"); e(f"buffer_load_dword v135, v134, s[12:15], 0 offen {SC}"); e("s_mov_b64 exec, -1")
    def init_words(): lw_init(k); e(f"v_mov_b32 v{PV_+3}, {LW-8}"); e(f"ds_write_b32 v{PV_+3}, v{PV_}")
    side = "s_cmp_lg_u32 s4, 0"
    for t in range(32):
        if t in SYN: k.waitvm(f"i{SYN[t]}"); e("s_barrier")
        x0, x1 = [], []
        if rnd[0] < 20: x0 += [dma, dma]; x1 += [dma, dma]
        if t in (1, 4, 10): cond("s_cmp_ge_u32 s18, 4", prio1)()
        if t == 3: x0.append(lambda: e("s_setprio 0"))
        if t == 8: x1.append(lambda: e("s_setprio 0"))
        if t == 10:
            x0.append(cond("s_cmp_eq_u32 s18, 4", lambda: lw_init(k)))
            if os.environ.get("FOC") == "at": k.stamp(2)
        if t == SW + 1 and os.environ.get("FOC") == "at": k.stamp(0)
        if t == T_SI: x1.append(cond(side, side_issue))
        if t == T_SR: x1.append(cond(side, side_read))
        if t == T_SR + 1: x0.append(cond(side, lambda: e("s_waitcnt lgkmcnt(0)"))); x1.append(cond("s_cmp_eq_u32 s4, 1", side_sum(0)))
        if t == T_SR + 2: x0.append(cond("s_cmp_eq_u32 s4, 1", side_sum2(0))); x1.append(cond("s_cmp_eq_u32 s4, 1", side_sum(1)))
        if t == T_SR + 3: x0.append(cond("s_cmp_eq_u32 s4, 1", side_sum2(1)))
        if T_SR + 1 <= t < T_SR + 9: x1.append(cond(side, side_store(t - T_SR - 1)))
        if ENV('TCH', '6') and t == ENV('TCH', '6'): x0.append(cond("s_cmp_lt_u32 s18, 4", touch))
        if t == T_SA: x0.append(cond(side, side_arrive))
        if T_PF <= t < T_PF + 14 and ENV('PFW', '1'): x0.append(cond("s_cmp_lt_u32 s18, 4", pref))
        if t == T_LC: x1.append(cond("s_cmp_eq_u32 s18, 0", late))
        if t == SW: (x1 if ENV('SWX', '0') else x0).append(lambda: e("s_setprio 0"))
        unit(0, t, x0); unit(1, t, x1)
    pv(1, 1, 1); k.stamp(4)
    if os.environ.get("FOC") == "clk": k.rstamp(2)
    e("s_mov_b32 s30, 0")
    e(f"s_mov_b32 s32, {fbits(2.0**-60)}"); e(f"s_mov_b32 s33, {fbits(2.0**100)}"); e(f"s_mov_b32 s34, {fbits(2.0**126)}")
    k.label(f"{nm}_scrok")
    e("s_nop 7")
    for i in range(3): e(f"ds_write_b128 v132, {vr(O[1]+4*i,4)} offset:{1024*i}")
    e("s_waitcnt vmcnt(0)"); e("v_cmp_gt_u32 vcc, v131, v135"); e(f"s_cbranch_vccnz {nm}_late")
    k.label(f"{nm}_lok")
    e("s_waitcnt lgkmcnt(0)"); e("s_barrier")
    for i in (2, 0, 1): e(f"ds_read_b128 {vr(SS[0]+4*i,4)}, v133 offset:{1024*i}")
    OO = O[0]
    e("s_waitcnt lgkmcnt(2)")
    for r in range(8, 12): e(f"v_add_f32 v{OO+r}, v{OO+r}, v{SS[0]+r}")
    e("s_waitcnt lgkmcnt(0)")
    for r in range(8): e(f"v_add_f32 v{OO+r}, v{OO+r}, v{SS[0]+r}")
    k.label(f"{nm}_chk")
    e(f"v_mov_b32 v30, v{OO+8}"); e(f"v_mov_b32 v31, v{OO+8}")
    e(f"v_max3_f32 v28, abs(v{OO}), abs(v{OO+1}), abs(v{OO+2})")
    e("v_permlane32_swap_b32 v30, v31")
    for r in range(3, 11, 2): e(f"v_max3_f32 v28, abs(v{OO+r}), abs(v{OO+r+1}), v28")
    e(f"v_max_f32 v28, abs(v{OO+11}), v28")
    e("v_cmp_le_f32 vcc, s32, v31"); e("v_cmp_ge_f32 s[36:37], s33, v31"); e("v_cmp_gt_f32 s[40:41], s34, v28")
    e("v_rcp_f32 v31, v31")
    e("s_and_b64 s[36:37], s[36:37], vcc"); e("s_and_b64 s[36:37], s[36:37], s[40:41]")
    e("s_cmp_eq_u64 s[36:37], -1"); e(f"s_cbranch_scc0 {nm}_slow")
    def slowpath():
        k.label(f"{nm}_late")
        e("s_mov_b32 s49, 0")
        k.label(f"{nm}_late1")
        e("s_sleep 8"); late(); e("s_add_u32 s49, s49, 1"); e("s_waitcnt vmcnt(0)")
        e("v_cmp_gt_u32 vcc, v131, v135"); e("s_cmp_ge_u32 s49, 0x20000"); e(f"s_cbranch_scc1 {nm}_lok"); e(f"s_cbranch_vccnz {nm}_late1")
        e(f"s_branch {nm}_lok")
        k.label(f"{nm}_slow")
        e("s_cmp_eq_u32 s30, 0"); e(f"s_cbranch_scc0 {nm}_fin")
        e("s_mov_b32 s30, 1")
        e("s_waitcnt vmcnt(0)")
        NM = O[1]
        e("v_mov_b32 v32, 0xff800000")
        def slowqk(c):
            e(f"buffer_load_dwordx4 {vr(KF[0],4)}, v22, s[12:15], s27 offen {SC}")
            e(f"buffer_load_dwordx2 {vr(KF[0]+4,2)}, v23, s[12:15], s27 offen offset:1024 {SC}")
            e("s_waitcnt vmcnt(0)")
            e(f"v_mfma_f32_32x32x16_bf16 {vr(SS[0],16)}, {vr(KF[0],4)}, {vr(Q[0],4)}, {c}"); e("s_nop 10")
            e(f"v_mfma_f32_32x32x8_bf16 {vr(SS[0],16)}, {vr(KF[0]+4,2)}, {vr(Q[0]+4,2)}, {vr(SS[0],16)}"); e("s_nop 12")
        e(f"s_add_u32 s27, s19, {KVIMG}"); e("s_mov_b32 s31, 0")
        k.label(f"{nm}_mx")
        slowqk("0")
        for r in range(0, 16, 2): e(f"v_max3_f32 v32, v{SS[0]+r}, v{SS[0]+r+1}, v32")
        e("s_add_u32 s27, s27, 2560")
        e("s_add_u32 s31, s31, 1"); e("s_cmp_lt_u32 s31, 64"); e(f"s_cbranch_scc1 {nm}_mx")
        k.allred32("v_max_f32", 32, 33)
        e("v_xor_b32 v32, 0x80000000, v32")
        for r in range(16): e(f"v_mov_b32 v{NM+r}, v32")
        for r in range(16): e(f"v_mov_b32 v{OO+r}, 0")
        for r in range(8): e(f"v_mov_b32 v{VF[0]+r}, v20")
        e(f"s_add_u32 s27, s19, {KVIMG}"); e("s_mov_b32 s31, 0")
        k.label(f"{nm}_sl")
        e("s_mov_b64 exec, s[28:29]")
        e(f"buffer_load_dwordx4 {vr(VF[0],4)}, v21, s[12:15], s27 offen {SC}")
        e(f"buffer_load_dwordx4 {vr(VF[0]+4,4)}, v21, s[12:15], s27 offen offset:640 {SC}")
        e("s_mov_b64 exec, -1")
        slowqk(vr(NM,16))
        for i in range(16): e(f"v_exp_f32 v{SS[0]+i}, v{SS[0]+i}")
        e("s_nop 0")
        for i in range(8): e(f"v_cvt_pk_bf16_f32 v{P+i}, v{SS[0]+2*i}, v{SS[0]+2*i+1}")
        e("s_nop 1")
        pv(0, 0, 0); pv(0, 0, 1)
        e("s_add_u32 s27, s27, 2560")
        e("s_add_u32 s31, s31, 1"); e("s_cmp_lt_u32 s31, 64"); e(f"s_cbranch_scc1 {nm}_sl")
        e("s_nop 12"); e(f"s_branch {nm}_chk")
    k.tail = slowpath
    k.label(f"{nm}_fin")
    e("s_nop 0")
    for r in range(12): e(f"v_mul_f32 v{OO+r}, v{OO+r}, v31")
    for r in range(6): e(f"v_cvt_pk_bf16_f32 v{P+r}, v{OO+2*r}, v{OO+2*r+1}")
    e(f"buffer_store_dwordx4 {vr(P,4)}, v39, s[12:15], s51 offen {SC}")
    e("s_mov_b32 exec_hi, 0")
    e(f"buffer_store_dwordx2 {vr(P+4,2)}, v38, s[12:15], s52 offen {SC}")
    e("s_mov_b64 exec, -1")
    k.stamp(5)
    e("v_lshlrev_b32 v3, 4, v1")
    k.vm = []; k.lg = []

def proj_c(k, tag, src, xin, xout, stout, last, cnt_code, word, st0):
    final = False
    e = k.e
    ACC, RESID, A, BF = 24, 44, 76, 156
    NA0 = ENV('PA0', '8')
    ids_rt(k)
    e("s_lshl_b32 s19, s16, 2"); e("s_add_u32 s19, s19, s39")
    e("s_mul_i32 s24, s19, 20480")
    e("s_lshr_b32 s33, s17, 1"); e("s_mul_i32 s33, s33, 5120"); e("s_add_u32 s33, s33, s24")
    e("s_and_b32 s34, s17, 1"); e("s_mul_i32 s35, s34, 3072"); e("s_add_u32 s35, s35, s33")
    e("s_lshl_b32 s36, s34, 9"); e("s_add_u32 s36, s36, s33"); e("s_add_u32 s36, s36, 2048")
    e(f"s_add_u32 s37, s35, {xin}"); e(f"s_add_u32 s38, s36, {xin}")
    e("v_lshrrev_b32 v13, 5, v1"); e("v_lshlrev_b32 v13, 8, v13"); e("v_and_b32 v14, 15, v1"); e("v_lshl_add_u32 v13, v14, 4, v13")
    e("v_bfe_u32 v14, v1, 4, 1"); e("v_lshl_add_u32 v13, v14, 3, v13")
    k.vmop(f"buffer_load_dwordx4 {vr(RESID,4)}, v3, {RS_(xin)}, s37 offen {SC}", "r")
    k.vmop(f"buffer_load_dwordx4 {vr(RESID+4,4)}, v3, {RS_(xin)}, s37 offen offset:1024 {SC}", "r")
    k.vmop(f"buffer_load_dwordx2 {vr(RESID+8,2)}, v13, {RS_(xin)}, s38 offen {SC}", "r")
    e(f"s_add_u32 s24, s24, {src}")
    for i in range(1, 5): e(f"s_add_u32 s{24+i}, s24, {4096*i}")
    e("v_lshrrev_b32 v9, 4, v1"); e("v_add_u32 v12, 61440, v3")
    wait_go(k, tag, word, cnt_code)
    k.stamp(st0)
    def ldA(n): k.vmop(f"buffer_load_dwordx4 {vr(A+4*n,4)}, v3, s[12:15], s{24+n//4} offen offset:{(n%4)*1024} {SC}", f"a{n}")
    for n in range(NA0): ldA(n)
    k.waitvm("r")
    for i in range(10):
        e(f"v_lshlrev_b32 v{ACC+2*i}, 16, v{RESID+i}"); e(f"v_and_b32 v{ACC+2*i+1}, 0xffff0000, v{RESID+i}")
    def rd(n, nf):
        off = n*5120 + nf*1024; b = 3
        if n >= 12: off -= 61440; b = 12
        k.dsop(f"ds_read_b128 {vr(BF+20*(n%2)+4*nf,4)}, v{b} offset:{off}", f"b{n}_{nf}")
    e("s_barrier")
    for n in range(2):
        for nf in range(5): rd(n, nf)
    for n in range(20):
        k.waitvm(f"a{n}")
        if n == 0: k.stamp(st0+1)
        for nf in range(5):
            if nf in (0, 2, 4): k.waitlg(f"b{n}_{min(nf+1,4)}")
            if n == 12 and nf == 0 and not final: e("s_barrier")
            e(f"v_mfma_f32_16x16x32_bf16 {vr(ACC+4*nf,4)}, {vr(BF+20*(n%2)+4*nf,4)}, {vr(A+4*n,4)}, {vr(ACC+4*nf,4)}")
            if n + 2 < 20: rd(n+2, nf)
            if nf == 0 and n + NA0 < 20: ldA(n + NA0)
    e("s_barrier")
    if last:
        e("s_cmp_eq_u32 s3, 0"); e(f"s_cbranch_scc1 {k.name}_nf")
        e("v_and_b32 v16, 15, v1"); e("v_mul_u32_u24 v16, 1280, v16"); e("v_lshl_add_u32 v17, v9, 3, v16"); e("v_lshl_add_u32 v16, v9, 4, v16")
        e("s_mul_i32 s32, s19, 20480"); e("s_mul_i32 s31, s17, 160"); e("s_add_u32 s32, s32, s31")
        e("s_lshl_b32 s31, s34, 5"); e("s_add_u32 s33, s32, s31"); e("s_xor_b32 s31, s34, 1"); e("s_lshl_b32 s31, s31, 7"); e("s_add_u32 s32, s32, s31")
        FSC = os.environ.get("FSC", "")
        for i in range(10): e(f"v_cvt_pk_bf16_f32 v{RESID+i}, v{ACC+2*i}, v{ACC+2*i+1}")
        e(f"buffer_store_dwordx4 {vr(RESID,4)}, v16, s[60:63], s33 offen {FSC}")
        e(f"buffer_store_dwordx4 {vr(RESID+4,4)}, v16, s[60:63], s33 offen offset:64 {FSC}")
        e(f"buffer_store_dwordx2 {vr(RESID+8,2)}, v17, s[60:63], s32 offen {FSC}")
        k.stamp(st0+2)
        if STAMP: e("s_waitcnt vmcnt(0)")
        k.dump(15, "2")
        e("s_endpgm")
        k.label(f"{k.name}_nf")
    if True:
        e(f"s_add_u32 s37, s35, {xout}"); e(f"s_add_u32 s38, s36, {xout}")
        e("s_lshl_b32 s32, s19, 10"); e("s_lshl_b32 s33, s17, 7"); e("s_add_u32 s32, s32, s33"); e(f"s_add_u32 s32, s32, {stout}")
        e("v_lshlrev_b32 v16, 3, v1")
        for i in range(10): e(f"v_cvt_pk_bf16_f32 v{RESID+i}, v{ACC+2*i}, v{ACC+2*i+1}")
        e(f"buffer_store_dwordx4 {vr(RESID,4)}, v3, {RS_(xout)}, s37 offen {SC}")
        e(f"buffer_store_dwordx4 {vr(RESID+4,4)}, v3, {RS_(xout)}, s37 offen offset:1024 {SC}")
        e(f"buffer_store_dwordx2 {vr(RESID+8,2)}, v13, {RS_(xout)}, s38 offen {SC}")
        e(f"v_add_f32 v18, v{ACC}, v{ACC+1}"); e(f"v_mul_f32 v19, v{ACC}, v{ACC}"); e(f"v_add_f32 v20, v{ACC+2}, v{ACC+3}"); e(f"v_mul_f32 v21, v{ACC+1}, v{ACC+1}")
        e(f"v_fmac_f32 v19, v{ACC+2}, v{ACC+2}"); e(f"v_fmac_f32 v21, v{ACC+3}, v{ACC+3}")
        for i in range(4, 20, 2):
            e(f"v_add_f32 v18, v18, v{ACC+i}"); e(f"v_fmac_f32 v19, v{ACC+i}, v{ACC+i}")
            e(f"v_add_f32 v20, v20, v{ACC+i+1}"); e(f"v_fmac_f32 v21, v{ACC+i+1}, v{ACC+i+1}")
        e("v_add_f32 v18, v18, v20"); e("v_add_f32 v19, v19, v21")
        for sw in ("v_permlane16_swap_b32", "v_permlane32_swap_b32"):
            e("v_mov_b32 v20, v18"); e("v_mov_b32 v21, v19"); e("s_nop 0")
            e(f"{sw} v18, v20"); e(f"{sw} v19, v21"); e("s_nop 0")
            e("v_add_f32 v18, v18, v20"); e("v_add_f32 v19, v19, v21")
        e("s_mov_b64 exec, 0xffff")
        e(f"buffer_store_dwordx2 v[18:19], v16, {RS_(xout)}, s32 offen {SC}")
    k.stamp(st0+2)

def proj_l(k, wimg, nxt, src, sig=None, done=0, last=False):
    e = k.e
    if nxt is not None:
        ids_mt(k)
        e("s_min_u32 s17, s17, 14" if nxt == WA_I else "s_nop 0")
        e("s_mul_i32 s58, s17, 163840"); e("s_add_u32 s58, s58, s45"); e(f"s_add_u32 s58, s58, {nxt}")
    ids_rt(k)
    e("s_mul_i32 s50, s17, 102400"); e("s_add_u32 s50, s50, s45"); e(f"s_add_u32 s50, s50, {wimg}")
    e("s_mul_i32 s51, s16, 81920"); e("s_lshl_b32 s52, s17, 2"); e("s_add_u32 s52, s52, s39"); e("s_mul_i32 s52, s52, 2560"); e("s_add_u32 s51, s51, s52"); e(f"s_add_u32 s51, s51, {src}")
    e("v_min_u32 v21, 39, v1"); e("v_lshlrev_b32 v21, 6, v21")
    w = Wdma(k, 25, 50, "o"); k.vm = []
    T1, T2 = ENV('T1', '0'), ENV('T2', '3')
    if sig:
        signal(k, "s1l", 0, 8, sig)
        ub_prep(k, 0)
    if last: w.rng(0, 6); e("s_barrier"); done = 6
    w.rng(done, 25, T1 if sig else ENV('T4', '0'))
    w2 = Wdma(k, 40, 58)
    if last:
        e("s_cmp_eq_u32 s3, 0"); e(f"s_cbranch_scc1 {k.name}_nl")
        e("s_waitcnt vmcnt(0)"); e("s_barrier"); e("buffer_load_dword v20, v21, s[12:15], s51 offen"); e("s_endpgm")
        k.label(f"{k.name}_nl")
    if sig:
        w2.rng(25, 33, T1)
        e(f"v_mov_b32 v{PV_+3}, {LW}"); e("s_mov_b32 s49, 0")
        k.label(f"{k.name}_a8")
        e(f"ds_read_b32 v{PV_}, v{PV_+3}"); e("s_add_u32 s49, s49, 1"); e("s_waitcnt lgkmcnt(0)"); e(f"v_readfirstlane_b32 s44, v{PV_}")
        e("s_cmp_ge_u32 s49, 0x400000"); e("s_cselect_b32 s44, 8, s44"); e("s_cmp_lt_u32 s44, 8"); e(f"s_cbranch_scc1 {k.name}_a8")
    if nxt is not None: w2.rng(33 if sig else 32, 39, T1 if sig else ENV('T4', '0'))
    if sig: ub_prep(k, 1)
    k.waitvm("o24")
    e("s_barrier")
    if ENV('ATOUCH', '1'):
        k.vmop("buffer_load_dword v20, v21, s[12:15], s51 offen")
    if nxt is not None:
        if not sig: w2.rng(25, 32)
        e("s_barrier")
        w2.rng(0, 15, ENV('T3', '0'))
        e("s_barrier")
        k.waitvm("w14")
        if ENV('LSL', '0'): e(f"s_sleep {ENV('LSL', '0')}")
        w2.rng(15, 25, T2)
    return w2

def stats16(k, s, rstd, mop, mask):
    e = k.e
    e(f"v_add_f32 v{s}, v{s}, v{s+2}"); e(f"v_add_f32 v{s+1}, v{s+1}, v{s+3}")
    k.allred16("v_add_f32", s, s+2); k.allred16("v_add_f32", s+1, s+3)
    k.allred32("v_add_f32", s, s+2); k.allred32("v_add_f32", s+1, s+3)
    stats_finish(k, s, s+1, s+2, rstd, s+3)
    split3(k, s+2, mop, 17, 'm', mask)
def usum(k, u, dst, t=17):
    e = k.e
    e(f"v_add_f32 v{u}, v{u}, v{u+1}"); e(f"v_add_f32 v{u+2}, v{u+2}, v{u+3}"); e(f"v_add_f32 v{u}, v{u}, v{u+2}")
    split3(k, u, dst, t, 'u')
def scale_pack(k, a, sc, dst):
    for r in range(4): k.e(f"v_mul_f32 v{a+r}, v{a+r}, v{sc(r)}")
    for r in range(2): k.e(f"v_cvt_pk_bf16_f32 v{dst+r}, v{a+2*r}, v{a+2*r+1}")
EX = 102400
SOFF = 2*8192 + 7296
UOFF = lambda F: (F//4)*8192 + 7168 + (F%4)*256 + 128
TOKF = (0, 1, 2, 3, 6); FEAF = (4, 5, 7)

UO = 3456
def ub_prep(k, part):
    e = k.e
    if part:
        k.waitvm("up")
        for j_ in range(5): e(f"v_add_f32 v{64+j_}, v{64+j_}, v{69+j_}")
        e("v_add_f32 v64, v64, v65"); e("v_add_f32 v66, v66, v67"); e("v_add_f32 v64, v64, v68"); e("v_add_f32 v64, v64, v66")
        k.allred32("v_add_f32", 64, 65); split3(k, 64, 28, 17, 'u')
        return
    e("v_lshrrev_b32 v6, 5, v1"); e("v_and_b32 v5, 31, v1"); e("s_lshr_b32 s30, s21, 1")
    e("v_mul_u32_u24 v12, 5120, v6"); e("v_lshl_add_u32 v12, v5, 2, v12")
    e("s_mul_i32 s30, s30, 10240"); e("s_lshl_b32 s31, s39, 7"); e("s_add_u32 s30, s30, s31"); e(f"s_add_u32 s30, s30, {U_B}"); e("s_add_u32 s31, s30, 2560")
    for j_ in range(10): k.vmop(f"buffer_load_dword v{64+j_}, v12, s[12:15], s{30+j_//5} offen offset:{512*(j_%5)}", "up")
    e("v_bfe_u32 v6, v1, 4, 1"); e("v_lshlrev_b32 v46, 9, v6"); e("v_and_b32 v5, 15, v1"); e("v_lshl_add_u32 v46, v5, 3, v46")
    e("s_lshl_b32 s30, s39, 12"); e("v_add_u32 v46, s30, v46")

def atouch_pre(k, xin):
    e = k.e
    e("s_mul_i32 s51, s16, 163840"); e("s_lshl_b32 s52, s17, 2"); e("s_add_u32 s52, s52, s39"); e("s_mul_i32 s52, s52, 2560"); e("s_add_u32 s51, s51, s52"); e(f"s_add_u32 s51, s51, {xin}")
    e("v_min_u32 v21, 39, v1"); e("v_lshlrev_b32 v21, 6, v21")

G_ACC, G_BF, G_AR, G_DA = 64, 128, 160, 5
def gemm32_pre(k, xin, stin):
    e = k.e
    e("v_and_b32 v10, 31, v1"); e("v_lshrrev_b32 v4, 5, v1"); e("v_and_b32 v5, 15, v1")
    e("s_lshl_b32 s19, s16, 2"); e("s_add_u32 s19, s19, s18")
    e("v_bfe_u32 v7, v1, 4, 1"); e("v_mul_u32_u24 v8, 20480, v7"); e("v_lshl_add_u32 v8, v4, 8, v8"); e("v_lshl_add_u32 v8, v5, 4, v8")
    e("v_lshlrev_b32 v11, 10, v7"); e("v_lshl_add_u32 v11, v4, 9, v11"); e("v_lshl_add_u32 v11, v5, 3, v11")
    e("s_lshl_b32 s30, s19, 11"); e(f"s_add_u32 s30, s30, {stin}")
    e("s_mul_i32 s24, s19, 40960"); e(f"s_add_u32 s24, s24, {xin}")
    e("v_add_u32 v41, 65536, v3"); e("v_add_u32 v42, 131072, v3")
    e("v_subrev_u32 v58, 1, v4"); e("v_not_b32 v59, v58")
def gemm32_loads(k, R):
    e = k.e
    def ldA(ks):
        if ks % 4 == 0 and ks > 0: e("s_add_u32 s24, s24, 4096")
        for u in range(2):
            k.vmop(f"buffer_load_dwordx4 {vr(G_AR+8*(ks%G_DA)+4*u,4)}, v8, {R}, s24 offen offset:{(ks%4)*1024+512*u} {SC}", f"a{ks}")
    ldA(0)
    for q in range(4): k.vmop(f"buffer_load_dwordx2 {vr(16+2*q,2)}, v11, {R}, s30 offen offset:{128*q} {SC}", "st")
    for ks in range(1, G_DA-1): ldA(ks)
    return ldA
def gemm32_stats(k):
    e = k.e
    k.waitvm("st")
    e("v_add_f32 v16, v16, v18"); e("v_add_f32 v17, v17, v19"); e("v_add_f32 v20, v20, v22"); e("v_add_f32 v21, v21, v23")
    e("v_add_f32 v16, v16, v20"); e("v_add_f32 v17, v17, v21")
    k.allred32("v_add_f32", 16, 18); k.allred32("v_add_f32", 17, 18)
    stats_finish(k, 16, 17, 46, 47, 18)
    split3(k, 46, 48, 18, 'm', 58)
def gemm32(k, vmode, fl, ldA, bars, st0, late=None):
    e = k.e; ACC, BF, AR, DA = G_ACC, G_BF, G_AR, G_DA
    acc = lambda jf: vr(ACC+16*jf, 16)
    def rd(ks, f):
        off = ks*8192 + 1024*f; hi = off >> 16
        k.dsop(f"ds_read_b128 {vr(BF+4*f,4)}, v{(3,41,42)[hi]} offset:{off & 0xffff}", f"b{ks}_{f}")
    e("s_barrier")
    for f in range(8): rd(0, f)
    for ks in range(20):
        k.waitvm(f"a{ks}")
        if ks == 0: k.stamp(st0+1)
        if ks in bars: e("s_barrier")
        if late and ks == late[0]: k.fill(fl, 1000); fl += late[1]
        for f in range(8):
            u, jf = f//4, f%4
            if f % 2 == 0: k.waitlg(f"b{ks}_{f+1}")
            a = vr(AR+8*(ks%DA)+4*u, 4); b = vr(BF+4*f, 4); c = acc(jf) if (ks or u) else "0"
            if vmode: e(f"v_mfma_f32_32x32x16_bf16 {acc(jf)}, {a}, {b}, {c}")
            else:     e(f"v_mfma_f32_32x32x16_bf16 {acc(jf)}, {b}, {a}, {c}")
            if ks + 1 < 20: rd(ks+1, f)
            if f == 0 and ks + DA - 1 < 20: ldA(ks + DA - 1)
            if ks >= 1: k.fill(fl, 2)
        if ks == 15:
            k.fill(fl, 1000)
            for jf in range(4):
                if vmode: e(f"v_mfma_f32_32x32x8_bf16 {acc(jf)}, v[48:49], {vr(50+2*jf,2)}, {acc(jf)}")
                else:     e(f"v_mfma_f32_32x32x8_bf16 {acc(jf)}, {vr(50+2*jf,2)}, v[48:49], {acc(jf)}")
    k.stamp(st0+2)

TB, TS = 88448, 296
def toff(G): return (0, 64, 128, 168, 208, 248)[G//5] + 8*(G%5)

def qkvb_c(k, xin, stin, st0):
    e = k.e; nm = k.name
    ACC, BF = G_ACC, G_BF
    ids_mt(k); gemm32_pre(k, xin, stin)
    e("v_lshrrev_b32 v6, 4, v1")
    MC, MP, MP1 = 200, 204, 208
    NEG = fbits(-1e30)
    e("v_lshlrev_b32 v17, 2, v6"); e("v_sub_u32 v17, v5, v17"); e(f"v_mov_b32 v19, {NEG}")
    for r in range(4):
        e(f"v_subrev_u32 v18, {r}, v17"); e("v_and_b32 v16, 0x80000001, v18")
        e("v_cmp_eq_u32 vcc, 0, v16"); e(f"v_cndmask_b32 v{MC+r}, v19, 0, vcc")
        e("v_cmp_eq_u32 vcc, 0x80000000, v16"); e(f"v_cndmask_b32 v{MP+r}, v19, 0, vcc")
    e("s_cmp_eq_u32 s19, 0"); e(f"s_cselect_b32 s34, {NEG}, 0")
    for r in range(4): e(f"v_add_f32 v{MP1+r}, s34, v{MP+r}")
    e(f"s_mul_i32 s35, s18, {32*TS}"); e(f"s_add_u32 s35, s35, {TB}")
    e(f"v_mul_u32_u24 v16, {TS}, v10"); e("v_add_u32 v16, s35, v16"); e(f"v_add_u32 v16, {16*TS}, v16")
    e("v_lshl_add_u32 v212, v4, 3, v16"); e("v_lshl_add_u32 v213, v4, 5, v16"); e("v_mov_b32 v219, v16")
    e("v_lshl_add_u32 v215, v4, 6, v16")
    e(f"v_mul_u32_u24 v16, {TS}, v5"); e("v_add_u32 v16, s35, v16"); e("v_lshl_add_u32 v216, v6, 4, v16")
    e("v_lshrrev_b32 v17, 2, v1"); e(f"v_mul_u32_u24 v16, {TS}, v17"); e("v_add_u32 v16, s35, v16"); e("v_and_b32 v17, 3, v1")
    e("v_lshl_add_u32 v217, v17, 3, v16")
    e("v_mul_u32_u24 v18, 40, v17"); e("v_add_u32 v18, 240, v18"); e("v_cmp_gt_u32 vcc, 2, v17"); e("v_mov_b32 v19, 288"); e("v_cndmask_b32 v18, v19, v18, vcc"); e("v_add_u32 v218, v16, v18")
    e("v_lshlrev_b32 v43, 9, v7"); e("v_lshl_add_u32 v43, v5, 3, v43")
    e("v_mov_b32 v220, 0"); e("v_mov_b32 v221, 0"); e("v_mov_b32 v222, 0x3f803f80"); e("v_mov_b32 v223, 0x3f803f80")
    e("s_mul_i32 s25, s19, 40960"); e(f"s_add_u32 s25, s25, {OBT}")
    e("s_lshl_b32 s51, s17, 10"); e("s_add_u32 s51, s51, s25"); e("s_add_u32 s52, s51, 20480")
    e("s_lshr_b32 s53, s17, 2"); e("s_add_u32 s53, s53, 16"); e("s_lshl_b32 s53, s53, 10"); e("s_add_u32 s53, s53, s25")
    e("s_and_b32 s54, s17, 1"); e("s_lshl_b32 s54, s54, 9"); e("s_add_u32 s53, s53, s54")
    e("s_bfe_u32 s54, s17, 0x10001"); e("s_lshl_b32 s54, s54, 3"); e("s_add_u32 s53, s53, s54"); e("s_add_u32 s54, s53, 20480")
    def c2():
        e("s_lshl_b32 s48, s16, 9"); e(f"s_add_u32 s48, s48, {C2}")
        e(f"v_lshlrev_b32 v{PV_+1}, 8, v1"); e(f"v_lshlrev_b32 v{PV_+2}, 3, v1"); e(f"v_sub_u32 v{PV_+2}, 16, v{PV_+2}")
        e("s_cmp_eq_u32 s16, 0"); e("s_cselect_b64 s[56:57], 1, 3")
    e("s_cmp_eq_u32 s18, 1"); e(f"s_cbranch_scc0 {nm}_ad"); e("v_lshlrev_b32 v16, 8, v1"); e("s_mov_b32 s49, 0")
    k.label(f"{nm}_ap")
    e(f"buffer_load_dword v17, v16, s[8:11], 0 offen offset:{C1} {SC}"); e("s_add_u32 s49, s49, 1"); e("s_waitcnt vmcnt(0)")
    e("v_cmp_gt_u32 vcc, 16, v17"); e("s_cmp_ge_u32 s49, 0x20000"); e(f"s_cbranch_scc1 {nm}_ad"); e(f"s_cbranch_vccnz {nm}_ap")
    k.label(f"{nm}_ad")
    wait_go(k, "p3", 1, c2)
    k.stamp(st0)
    ldA = gemm32_loads(k, RS_(xin))
    fl = k.capture(lambda: (gemm32_stats(k), e(f"v_mul_f32 v45, {fbits(CSCALE)}, v47")))
    def uops():
        for jf in range(4): k.dsop(f"ds_read_b64 {vr(50+2*jf,2)}, v43 offset:{UO+4096*jf}", "uo")
    gemm32(k, False, fl, ldA, {6, ENV('H1S', '16'), ENV('H2S', '18')}, st0, (8, k.capture(uops)))
    e("s_barrier")
    e("s_cmp_eq_u32 s18, 0"); e(f"s_cbranch_scc0 {nm}_ni"); lw_init(k); k.label(f"{nm}_ni")
    for q in range(3): e(f"ds_write_b64 v215, v[220:221] offset:{40+8*q}")
    e("ds_write_b64 v219, v[222:223] offset:288")
    for G in list(range(10, 30, 2)) + list(range(0, 10, 2)):
        a = ACC + 2*G; d = BF + G
        for r in range(4): e(f"v_mul_f32 v{a+r}, v{a+r}, v{45 if G < 10 else 47}")
        for r in range(2): e(f"v_cvt_pk_bf16_f32 v{d+r}, v{a+2*r}, v{a+2*r+1}")
        e(f"ds_write_b64 v{ {8: 212, 32: 213}[toff(G+1) - toff(G)] }, {vr(d,2)} offset:{toff(G)}")
    e("s_waitcnt lgkmcnt(0)"); e("s_barrier")
    KO = lambda b, h: 160 + 8*b + 4*h
    QO = lambda b, h: 184 + 8*(b-1) + 4*h
    VO = lambda F, b: 20 + 8*FEAF.index(F) + 2*b if False else 224 + 6*FEAF.index(F) + 2*b - (0)
    VO = lambda F, b: (128, 136, 144)[FEAF.index(F)] + 2*b
    for b in (1, 2):
        for h in range(2):
            for x in range(2): e(f"ds_read_b64 {vr(QO(b,h)+2*x,2)}, v216 offset:{16*b*TS+64*h+8*x}")
    for b in range(3):
        for h in range(2):
            for x in range(2): e(f"ds_read_b64 {vr(KO(b,h)+2*x,2)}, v216 offset:{16*b*TS+128+40*h+8*x}")
    e("s_waitcnt lgkmcnt(0)")
    for b in range(3):
        for h in range(2): e(f"ds_read_b64_tr_b16 {vr(VO(4+h,b),2)}, v217 offset:{16*b*TS+208+40*h}")
        e(f"ds_read_b64_tr_b16 {vr(VO(7,b),2)}, v218 offset:{16*b*TS}")
    units = [(b, h) for b in (1, 2) for h in range(2)]
    SU = lambda i: 64 + 8*i
    TU = lambda i: ACC + 32 + 4*i
    PU = lambda i: ACC + 48 + 4*i
    OU = lambda i: 64 + 8*i
    for i, (b, h) in enumerate(units):
        e(f"v_mfma_f32_16x16x32_bf16 {vr(SU(i),4)}, {vr(KO(b-1,h),4)}, {vr(QO(b,h),4)}, {vr(MP1 if b == 1 else MP,4)}")
        e(f"v_mfma_f32_16x16x32_bf16 {vr(SU(i)+4,4)}, {vr(KO(b,h),4)}, {vr(QO(b,h),4)}, {vr(MC,4)}")
    e("s_waitcnt lgkmcnt(0)"); e("s_barrier")
    def allred(op):
        for sw in ("v_permlane16_swap_b32", "v_permlane32_swap_b32"):
            for i in range(4): e(f"v_mov_b32 v{TU(i)+1}, v{TU(i)}")
            for i in range(4): e(f"{sw} v{TU(i)}, v{TU(i)+1}")
            for i in range(4): e(f"{op} v{TU(i)}, v{TU(i)}, v{TU(i)+1}")
    for i in range(4):
        s = SU(i)
        e(f"v_max3_f32 v{TU(i)}, v{s}, v{s+1}, v{s+2}"); e(f"v_max3_f32 v{TU(i)}, v{s+3}, v{s+4}, v{TU(i)}")
        e(f"v_max3_f32 v{TU(i)}, v{s+5}, v{s+6}, v{TU(i)}"); e(f"v_max_f32 v{TU(i)}, v{s+7}, v{TU(i)}")
    allred("v_max_f32")
    for i in range(4):
        for r in range(8): e(f"v_sub_f32 v{SU(i)+r}, v{SU(i)+r}, v{TU(i)}")
    for i in range(4):
        for r in range(8): e(f"v_exp_f32 v{SU(i)+r}, v{SU(i)+r}")
    for i in range(4):
        for r in range(4): e(f"v_cvt_pk_bf16_f32 v{PU(i)+r}, v{SU(i)+2*r}, v{SU(i)+2*r+1}")
    for i, (b, h) in enumerate(units):
        e(f"v_mfma_f32_16x16x32_bf16 {vr(OU(i)+4,4)}, {vr(VO(7,b-1),4)}, {vr(PU(i),4)}, 0")
    for i, (b, h) in enumerate(units):
        e(f"v_mfma_f32_16x16x32_bf16 {vr(OU(i),4)}, {vr(VO(4+h,b-1),4)}, {vr(PU(i),4)}, 0")
    for i in range(4): e(f"v_mov_b32 v{TU(i)}, v{OU(i)+4}"); e(f"v_mov_b32 v{TU(i)+1}, v{OU(i)+4}")
    for i in range(4): e(f"v_permlane32_swap_b32 v{TU(i)}, v{TU(i)+1}")
    for i in range(4): e(f"v_rcp_f32 v{TU(i)+1}, v{TU(i)+1}")
    e("v_cmp_eq_u32 vcc, 0, v6")
    for bi in range(2):
        o0, o1 = OU(2*bi), OU(2*bi+1); d = 40 + 8*bi; t0, t1 = TU(2*bi)+1, TU(2*bi+1)+1
        for r in range(4): e(f"v_mul_f32 v{o0+r}, v{o0+r}, v{t0}"); e(f"v_mul_f32 v{o1+r}, v{o1+r}, v{t1}")
        e(f"v_cvt_pk_bf16_f32 v{d}, v{o0}, v{o0+1}"); e(f"v_cvt_pk_bf16_f32 v{d+1}, v{o0+2}, v{o0+3}")
        e(f"v_cvt_pk_bf16_f32 v{d+2}, v{o1}, v{o1+1}"); e(f"v_cvt_pk_bf16_f32 v{d+3}, v{o1+2}, v{o1+3}")
        e(f"buffer_store_dwordx4 {vr(d,4)}, v3, s[12:15], s{51+bi} offen {SC}")
        e(f"v_cndmask_b32 v{t0}, v{t1}, v{t0}, vcc")
        for r in range(4): e(f"v_cndmask_b32 v{o0+4+r}, v{o1+4+r}, v{o0+4+r}, vcc")
        for r in range(4): e(f"v_mul_f32 v{o0+4+r}, v{o0+4+r}, v{t0}")
        e(f"v_cvt_pk_bf16_f32 v{d+4}, v{o0+4}, v{o0+5}"); e(f"v_cvt_pk_bf16_f32 v{d+5}, v{o0+6}, v{o0+7}")
    e("s_mov_b32 exec_hi, 0")
    for bi in range(2): e(f"buffer_store_dwordx2 {vr(44+8*bi,2)}, v3, s[12:15], s{53+bi} offen {SC}")

def qkvb_l(k, xin, stin, w):
    e = k.e; nm = k.name
    ids_mt(k)
    e("v_and_b32 v5, 15, v1"); e("v_lshrrev_b32 v6, 4, v1")
    e("v_lshlrev_b32 v11, 3, v5"); e("v_lshl_add_u32 v11, v6, 8, v11")
    e("v_cmp_eq_u32 vcc, 0, v6"); e("s_lshl_b32 s22, s16, 3"); e("s_max_u32 s22, s22, 1"); e("v_cndmask_b32 v4, 0, -1, vcc")
    e("s_sub_u32 s22, s22, 1")
    e("s_mul_i32 s24, s22, 20480"); e(f"s_add_u32 s24, s24, {xin}"); e("s_add_u32 s24, s24, s45")
    e("s_lshl_b32 s27, s22, 10"); e(f"s_add_u32 s27, s27, {stin}")
    HP = 49152
    e("v_lshrrev_b32 v12, 1, v6"); e("v_lshlrev_b32 v40, 12, v12"); e("v_and_b32 v12, 1, v6"); e("v_lshl_add_u32 v40, v12, 9, v40"); e("v_lshl_add_u32 v40, v5, 4, v40")
    e("s_lshl_b32 s32, s39, 13"); e("v_add_u32 v40, s32, v40"); e("v_add_u32 v41, 65536, v40"); e("v_add_u32 v42, 131072, v40")
    e("s_mul_i32 s33, s39, 6144"); e(f"s_add_u32 s33, s33, {HP}"); e("v_add_u32 v43, s33, v3")
    e("s_min_u32 s40, s39, 2"); e("s_lshl_b32 s41, s40, 11"); e(f"s_add_u32 s41, s41, {HP}"); e("v_add_u32 v44, s41, v3")
    e("s_lshl_b32 s41, s40, 12"); e("v_lshlrev_b32 v45, 3, v5"); e("v_add_u32 v45, s41, v45")
    e(f"v_mul_u32_u24 v12, {TS}, v5"); e(f"v_add_u32 v12, {TB}, v12"); e("s_lshl_b32 s41, s40, 3"); e("s_sub_u32 s41, s41, 2")
    for x in range(2):
        e(f"v_add_u32 v13, s41, v6")
        if x: e("v_add_u32 v13, 4, v13")
        e("v_add_u32 v14, 16, v13")
        e("v_cmp_gt_u32 vcc, 20, v13"); e("v_cndmask_b32 v14, 0, v14, vcc"); e(f"v_lshl_add_u32 v{50+x}, v14, 3, v12")
    e("v_mov_b32 v47, v12"); e("v_mov_b32 v56, 0x3f803f80"); e("v_mov_b32 v57, 0x3f803f80")
    atouch_pre(k, xin)
    e(f"s_setprio {ENV('P3PRIO', '0')}")
    e("s_barrier")
    if ENV('ATOUCH', '1'): k.vmop("buffer_load_dword v20, v21, s[12:15], s51 offen")
    w.one(39)
    e(f"ds_write_b64 v46, v[28:29] offset:{UO}")
    for q_ in range(2): k.vmop(f"buffer_load_dwordx2 {vr(24+2*q_,2)}, v11, s[12:15], s27 offen offset:{128*q_} {SC}", "st")
    for i in range(5):
        k.vmop(f"buffer_load_dwordx4 {vr(128+4*i,4)}, v3, s[12:15], s24 offen {SC}", f"h{i}")
        if i < 4: e("s_add_u32 s24, s24, 4096")
    k.waitvm("st")
    stats16(k, 24, 48, 52, 4)
    e("s_waitcnt lgkmcnt(0)"); e("s_barrier")
    def rd(n):
        i, j = n // 6, 2 + n % 6
        k.dsop(f"ds_read_b128 {vr(96+4*(n%6),4)}, v{40+i//2} offset:{(i%2)*32768+1024*(j//2)+256*(j%2)}", f"r{n}")
    for n in range(6): rd(n)
    for x in range(2): k.dsop(f"ds_read_b64 {vr(20+2*x,2)}, v45 offset:{UO+4096+512*x}", "u")
    for n in range(30):
        i = n // 6
        if n % 6 == 0: k.waitvm(f"h{i}")
        k.waitlg(f"r{n}")
        c = vr(148+4*(n%6), 4)
        e(f"v_mfma_f32_16x16x32_bf16 {c}, {vr(96+4*(n%6),4)}, {vr(128+4*i,4)}, {c if i else 0}")
        if n + 6 < 30: rd(n + 6)
    e("s_barrier")
    for n in range(6): e(f"ds_write_b128 v43, {vr(148+4*n,4)} offset:{1024*n}")
    e("s_waitcnt lgkmcnt(0)"); e("s_barrier")
    for p_ in range(4):
        for x in range(2): e(f"ds_read_b128 {vr(96+8*p_+4*x,4)}, v44 offset:{6144*p_+1024*x}")
    e("s_waitcnt lgkmcnt(0)")
    for r in range(8):
        e(f"v_add_f32 v{96+r}, v{96+r}, v{104+r}"); e(f"v_add_f32 v{112+r}, v{112+r}, v{120+r}"); e(f"v_add_f32 v{80+r}, v{96+r}, v{112+r}")
    for x in range(2): e(f"v_mfma_f32_16x16x16_bf16 {vr(80+4*x,4)}, {vr(20+2*x,2)}, v[52:53], {vr(80+4*x,4)}")
    for x in range(2): scale_pack(k, 80+4*x, lambda r: 48, 88+2*x)
    e("s_barrier")
    for x in range(2): e(f"ds_write_b64 v{50+x}, {vr(88+2*x,2)}")
    e("ds_write_b64 v47, v[56:57] offset:288")
    e(f"s_setprio {ENV('LPRIO', '2')}")
    e("s_waitcnt lgkmcnt(0)"); e("s_barrier")
    k.vm = []; k.lg = []

def one(k, target):
    k.e(f"v_mov_b32 v{PV_+1}, 0"); k.e(f"v_mov_b32 v{PV_+2}, {target}"); k.e("s_mov_b64 s[56:57], 1")

def kvpos(k):
    k.e("s_and_b32 s36, s19, 31"); k.e("s_lshl_b32 s36, s36, 1"); k.e("s_lshr_b32 s34, s19, 5"); k.e("s_add_u32 s36, s36, s34")
    k.e("s_add_u32 s36, s36, 44"); k.e("s_and_b32 s36, s36, 63")
def addr_v(k, img):
    e = k.e
    e("s_sub_u32 s35, s17, 10"); e("s_lshl_b32 s35, s35, 7")
    kvpos(k); e("s_mul_i32 s36, s36, 2560"); e(f"s_add_u32 s33, s36, {img+KVIMG+1280}")
    e("v_mul_u32_u24 v20, 320, v4")
    for jf in range(4):
        e(f"v_add_u32 v16, s35, v10")
        if jf: e(f"v_add_u32 v16, {32*jf}, v16")
        e("v_mul_u32_u24 v17, 52429, v16"); e("v_lshrrev_b32 v17, 20, v17")
        e("v_mul_u32_u24 v18, 20, v17"); e("v_sub_u32 v18, v16, v18")
        e("v_mul_u32_u24 v17, 163840, v17"); e("v_lshl_add_u32 v17, v18, 4, v17")
        e(f"v_add_u32 v{24+jf}, v17, v20")
def addr_qk(k, img, xm=52):
    e = k.e; k.xm = xm
    e("s_cmp_ge_u32 s17, 5")
    e(f"s_cselect_b32 s33, {QI}, 0"); e(f"s_cselect_b32 s59, 1.0, {fbits(CSCALE)}"); e("s_cselect_b32 s35, 5, 0"); e("s_cselect_b32 s37, 1, 0")
    e(f"s_add_u32 s33, s33, {img+QIMG}")
    e("s_sub_u32 s35, s17, s35")
    kvpos(k); e("s_cmp_eq_u32 s37, 0"); e("s_cselect_b32 s36, s19, s36")
    e("s_mul_i32 s36, s36, 1280"); e("s_lshl_b32 s36, s36, s37"); e("s_add_u32 s33, s33, s36")
    e("s_lshl_b32 s34, 81920, s37")
    e("v_lshlrev_b32 v16, 4, v10"); e("v_lshlrev_b32 v17, 3, v10")
    e("v_lshl_add_u32 v18, v4, 9, v16")
    e("s_sub_u32 s36, s34, 512"); e("v_and_b32 v19, s36, v59"); e("v_add_u32 v19, v19, v16")
    e(f"s_mov_b32 s{xm}, -1"); e(f"s_mov_b32 s{xm+1}, 0"); e(f"s_mov_b32 s{xm+2}, 0"); e(f"s_mov_b32 s{xm+3}, -1")
def epi_qk(k, ACC, BF):
    e = k.e; nm = k.name + k.ptag
    for v in range(1, 5):
        e(f"s_cmp_eq_u32 s35, {v}"); e(f"s_cbranch_scc1 {nm}_e{v}")
    QSC = os.environ.get("QSC", "sc1")
    for v in range(5):
        if v: k.label(f"{nm}_e{v}")
        e("s_nop 7")
        for jf in range(4):
            for r in range(16): e(f"v_mul_f32 v{ACC+16*jf+r}, v{ACC+16*jf+r}, v47")
            for r in range(8): e(f"v_cvt_pk_bf16_f32 v{BF+8*jf+r}, v{ACC+16*jf+2*r}, v{ACC+16*jf+2*r+1}")
            for a2 in range(2):
                x = BF+8*jf+4*a2
                e(f"v_permlane32_swap_b32 v{x}, v{x+2}"); e(f"v_permlane32_swap_b32 v{x+1}, v{x+3}")
            for a2 in range(2):
                x = BF+8*jf+4*a2
                G = [32*v+8*jf+4*a2, 32*v+8*jf+4*a2+2]
                def main(g):
                    h = g // 5; r = g % 5
                    return h, (r // 2 if h % 2 == 0 else (r - 1) // 2)
                st = [g % 10 == 4 for g in G]
                def hoff(dst, h, c):
                    if h: e(f"s_mul_i32 s{dst}, s34, {h}"); e(f"s_add_u32 s{dst}, s{dst}, s33")
                    else: e(f"s_mov_b32 s{dst}, s33")
                    if c: e(f"s_add_u32 s{dst}, s{dst}, {c}")
                if not any(st):
                    (h0, p0), (h1, p1) = main(G[0]), main(G[1])
                    hoff(36, h0, 512*p0)
                    if h0 == h1: e(f"buffer_store_dwordx4 {vr(x,4)}, v18, {k.srdo}, s36 offen {QSC}")
                    else:        e(f"buffer_store_dwordx4 {vr(x,4)}, v19, {k.srdo}, s36 offen {QSC}")
                    assert (h0 == h1 and (p0, p1) == (0, 1)) or (h1 == h0 + 1 and (p0, p1) == (1, 0))
                else:
                    m = st.index(False); q = 1 - m
                    h, p = main(G[m]); hoff(36, h, 512*p); hoff(37, G[q] // 5, 1024); e("s_add_u32 s38, s37, s34")
                    e(f"s_mov_b64 exec, s[{k.xm+2*m}:{k.xm+1+2*m}]")
                    e(f"buffer_store_dwordx4 {vr(x,4)}, v16, {k.srdo}, s36 offen {QSC}")
                    e(f"s_mov_b64 exec, s[{k.xm+2*q}:{k.xm+1+2*q}]")
                    e(f"buffer_store_dwordx2 {vr(x,2)}, v17, {k.srdo}, s37 offen {QSC}")
                    e(f"buffer_store_dwordx2 {vr(x+2,2)}, v17, {k.srdo}, s38 offen {QSC}")
                    e("s_mov_b64 exec, -1")
        e(f"s_branch {nm}_fin5")
def epi_v(k, ACC, BF, RS):
    e = k.e
    VSC = os.environ.get("VSC", "sc1")
    for jf in range(4):
        for r in range(16): e(f"v_mul_f32 v{ACC+16*jf+r}, v{ACC+16*jf+r}, v{RS+r}")
        for r in range(8): e(f"v_cvt_pk_bf16_f32 v{BF+8*jf+r}, v{ACC+16*jf+2*r}, v{ACC+16*jf+2*r+1}")
        for u in range(2):
            e(f"buffer_store_dwordx4 {vr(BF+8*jf+4*u,4)}, v{24+jf}, {k.srdo}, s33 offen offset:{640*u} {VSC}")

def qkva_c(k, xin, stin, img, cnt, wbar, st0):
    k.ptag = '_p5'; k.srdo = 's[12:15]'
    e = k.e; nm = k.name + k.ptag
    DA = 5
    ACC, BF, AR, RS = 64, 128, 160, 200
    gemm32_pre(k, xin, stin)
    e("v_lshlrev_b32 v12, 4, v10")
    e("s_lshl_b32 s31, s17, 11"); e(f"s_add_u32 s31, s31, {U_A}")
    for jf in range(4): k.vmop(f"buffer_load_dwordx4 {vr(24+4*jf,4)}, v12, s[12:15], s31 offen offset:{512*jf}", "u")
    def c4(): one(k, 16); e("s_lshl_b32 s48, s16, 8"); e(f"s_add_u32 s48, s48, {cnt}")
    wait_go(k, "p5", 1, c4)
    k.stamp(st0)
    ldA = gemm32_loads(k, RS_(xin))
    def prolog(vmode):
        gemm32_stats(k)
        for jf in range(4): usum(k, 24+4*jf, 50+2*jf, 18)
        if vmode:
            e("v_lshlrev_b32 v16, 4, v4")
            for r in range(16):
                e(f"v_add_u32 v17, {(8*(r//4) + r%4)*4}, v16")
                k.dsop(f"ds_bpermute_b32 v{RS+r}, v17, v47", "rs")
            addr_v(k, img)
        else:
            addr_qk(k, img); e("v_mul_f32 v47, s59, v47")
    e("s_cmp_ge_u32 s17, 10"); e(f"s_cbranch_scc1 {nm}_qv")
    vm_save = list(k.vm)
    def mainloop(vmode):
        gemm32(k, vmode, k.capture(lambda: prolog(vmode)), ldA, {w_ - 1 for w_ in wbar}, st0)
        e("s_barrier")
    mainloop(False)
    epi_qk(k, ACC, BF)
    k.label(f"{nm}_qv"); k.vm = vm_save; k.lg = []
    mainloop(True)
    epi_v(k, ACC, BF, RS)
    k.label(f"{nm}_fin5")

def ph_front(k):
    k.ptag = "_f"; k.srdo = "s[12:15]"
    e = k.e; nm = k.name + k.ptag; kn = k.name
    R, DEP, SCRB, UT = 4, 2, 131072, 65536
    need = lambda ks: ks // 2
    slot = lambda st: (st % R) * 32768
    e("s_cmp_ge_u32 s2, 256"); e(f"s_cbranch_scc1 {kn}_end"); k.stamp(0); k.rstamp(1)
    e("s_load_dwordx4 s[60:63], s[0:1], 0"); e("s_load_dwordx2 s[6:7], s[0:1], 64")
    e("s_load_dwordx2 s[4:5], s[0:1], 56")
    e("s_and_b32 s20, s2, 7"); e("s_lshr_b32 s21, s2, 3")
    e("v_lshrrev_b32 v2, 6, v0"); e("v_and_b32 v1, 63, v0")
    e("v_readfirstlane_b32 s18, v2")
    e("s_and_b32 s39, s18, 3"); e("s_lshl_b32 s45, s39, 10")
    ids_mt(k)
    e("v_lshlrev_b32 v3, 4, v1"); e(f"v_lshlrev_b32 v9, {ENV('BST', '6')}, v1")
    e("s_lshl_b32 s22, s2, 2"); e("s_add_u32 s22, s22, s39"); e("s_mul_i32 s23, s22, 2400")
    if ENV('XLOC', '1'): e("s_lshl_b32 s22, s20, 5"); e("s_add_u32 s22, s22, s21"); e("s_lshl_b32 s22, s22, 2"); e("s_add_u32 s22, s22, s39")
    e("s_mul_i32 s22, s22, 2560")
    def kwait():
        e("s_waitcnt lgkmcnt(0)")
        k.stamp(2)
        k.srd(8, 60, S*D*2); k.srd(28, 62, D*3*D*2); k.srd(12, 6, WS_END)
    def burst():
        if ENV('BURST', '1'):
            e("s_mov_b32 exec_hi, 0xff" if ENV('BST', '6') == 6 else "s_mov_b64 exec, 0xfffff")
            e(f"buffer_load_dword v240, v9, s[8:11], s22 offen {os.environ.get('XNT', '')}"); e(f"buffer_load_dword v241, v9, s[28:31], s23 offen {os.environ.get('WNT', '')}")
            e("s_mov_b64 exec, -1")
    def codepf(tg):
        if ENV('CPF', '1'):
            e("s_getpc_b64 s[34:35]"); k.label(f"{nm}_pc{tg}")
            e(f"s_sub_u32 s34, s34, {nm}_pc{tg} - {kn}"); e("s_subb_u32 s35, s35, 0")
            e("v_lshlrev_b32 v242, 4, v0"); e("s_lshl_b32 s36, s21, 12"); e("v_add_u32 v242, s36, v242")
            e(f"v_and_b32 v242, 0xffffffc0, v242"); e(f"v_min_u32 v242, code_end - {kn} - 4, v242")
            e("global_load_dword v243, v242, s[34:35]")
    e("s_cmp_ge_u32 s17, 15"); e(f"s_cbranch_scc1 {nm}_ub")
    e("v_and_b32 v10, 31, v1"); e("v_lshrrev_b32 v4, 5, v1"); e("v_and_b32 v5, 15, v1"); e("v_bfe_u32 v7, v1, 4, 1")
    e("v_lshrrev_b32 v13, 2, v5"); e("v_and_b32 v6, 3, v1")
    e("v_lshl_add_u32 v14, v4, 3, v13"); e("v_lshlrev_b32 v14, 8, v14"); e("v_lshl_add_u32 v14, v7, 5, v14"); e("v_lshl_add_u32 v14, v6, 3, v14")
    e("v_add_u32 v14, 16384, v14")
    def a0():
        e("s_lshl_b32 s48, s17, 11"); e(f"s_add_u32 s48, s48, {C0}"); e(f"v_lshlrev_b32 v{PV_+1}, 8, v1"); e("s_mov_b64 s[56:57], 0xff")
    SF = ENV('SF', '10')
    e("s_cmp_ge_u32 s18, 4"); e(f"s_cbranch_scc1 {nm}_ld")
    kwait(); burst(); codepf("c")
    if ENV('TLB', '1'):
        sh = ENV('TLBS', '18')
        e("s_load_dwordx4 s[84:87], s[0:1], 32"); e("s_load_dwordx2 s[88:89], s[0:1], 16")
        e(f"v_lshlrev_b32 v236, {sh}, v0" if sh < 21 else "v_lshlrev_b32 v236, 21, v1")
        e(f"v_min_u32 v236, {STAMPS-4}, v236")
        e("s_cmp_eq_u32 s18, 0" if sh == 21 else "s_cmp_lt_u32 s18, 4"); e(f"s_cbranch_scc0 {nm}_tl")
        e("buffer_load_dword v237, v236, s[12:15], 0 offen")
        e("v_and_b32 v236, 1, v1"); e("v_mul_u32_u24 v238, 819196, v236"); e("v_mul_u32_u24 v236, 2457596, v236"); e("s_mov_b64 exec, 3")
        e("s_waitcnt lgkmcnt(0)")
        e("global_load_dword v237, v236, s[84:85]"); e("global_load_dword v237, v238, s[86:87]"); e("global_load_dword v237, v238, s[88:89]")
        e("s_mov_b64 exec, -1")
        k.label(f"{nm}_tl")
        e("s_waitcnt lgkmcnt(0)")
    ACC, BF, AR, RS = 64, 128, 160, 200
    BA, AA = 216, 224
    e("s_lshl_b32 s19, s16, 2"); e("s_add_u32 s19, s19, s18")
    for jf in range(4):
        e(f"v_xor_b32 v15, {jf}, v13"); e(f"v_lshl_add_u32 v{BA+jf}, v15, 6, v14"); e(f"v_add_u32 v{BA+4+jf}, 65536, v{BA+jf}")
    e("v_lshl_add_u32 v15, v2, 5, v10"); e("v_lshlrev_b32 v15, 7, v15"); e("v_bfe_u32 v12, v10, 1, 3"); e("v_xor_b32 v12, v12, v4")
    for q in range(4):
        e(f"v_xor_b32 v11, {2*q}, v12"); e(f"v_lshl_add_u32 v{AA+q}, v11, 4, v15"); e(f"v_add_u32 v{AA+4+q}, 65536, v{AA+q}")
    e("v_mul_u32_u24 v8, 20480, v7"); e("v_lshl_add_u32 v8, v4, 8, v8"); e("v_lshl_add_u32 v8, v5, 4, v8")
    e("s_mul_i32 s24, s19, 40960"); e(f"s_add_u32 s24, s24, {XI}")
    e("v_subrev_u32 v58, 1, v4"); e("v_not_b32 v59, v58")
    e("s_lshl_b32 s40, s2, 2"); e("s_add_u32 s40, s40, s39"); e("s_mul_i32 s40, s40, 8192"); e(f"s_add_u32 s40, s40, {QIMG}"); e("v_lshlrev_b32 v238, 7, v1")
    e("s_cmp_ge_u32 s17, 10"); e(f"s_cbranch_scc1 {nm}_qv")
    def mainloop(vmode):
        tagm = "v" if vmode else "q"
        acc = lambda jf: vr(ACC+16*jf, 16)
        fl = k.capture(lambda: addr_v(k, 0) if vmode else addr_qk(k, 0, 28))
        def rdB(ks, f):
            u, jf = f//4, f%4; sl = slot(ks//2)
            for t in range(2):
                off = sl + (32*(ks%2) + 16*u + 4*t)*256
                k.dsop(f"ds_read_b64_tr_b16 {vr(BF+4*f+2*t,2)}, v{BA+4*(sl>>16)+jf} offset:{off & 0xffff}", f"b{ks}_{f}")
        def rdA(ks):
            sl = slot(ks//2)
            for u in range(2): k.dsop(f"ds_read_b128 {vr(AR+8*(ks%2)+4*u,4)}, v{AA+4*(sl>>16)+2*(ks%2)+u} offset:{sl & 0xffff}", f"b{ks}_a")
        kb = [-1]
        def bars(ks):
            while kb[0] < need(ks): e("s_barrier"); kb[0] += 1
        bars(0); k.stamp(3)
        rdA(0)
        for f in range(8): rdB(0, f)
        for ks in range(20):
            for f in range(8):
                u, jf = f//4, f%4
                if f % 2 == 0: k.waitlg(f"b{ks}_{f+1}")
                a = vr(AR+8*(ks%2)+4*u, 4); b = vr(BF+4*f, 4); c = acc(jf) if (ks or u) else "0"
                if vmode: e(f"v_mfma_f32_32x32x16_bf16 {acc(jf)}, {a}, {b}, {c}")
                else:     e(f"v_mfma_f32_32x32x16_bf16 {acc(jf)}, {b}, {a}, {c}")
                if ks + 1 < 20:
                    if f == 0: bars(ks+1); rdA(ks+1)
                    rdB(ks+1, f)
                if ks >= 4: k.fill(fl, 1)
            e(f"s_cmp_eq_u32 s17, {ks % 15}"); e(f"s_cbranch_scc0 {nm}_x{tagm}{ks}")
            e(f"s_add_u32 s32, s24, {1024*ks}")
            for u in range(2): e(f"buffer_store_dwordx4 {vr(AR+8*(ks%2)+4*u,4)}, v8, s[12:15], s32 offen offset:{512*u} {SC}")
            k.label(f"{nm}_x{tagm}{ks}")
            if ENV('FT', '0') and ks == ENV('FT', '0'): e("buffer_load_dword v239, v238, s[12:15], s40 offen")
            if ks in (0, 1, 4, 9, 10, 14): k.stamp(7 + (0, 1, 4, 9, 10, 14).index(ks))
        assert not fl
        k.stamp(4)
        e(f"v_lshlrev_b32 v23, 2, v10"); e(f"v_add_u32 v23, {UT}, v23"); e("s_lshl_b32 s32, s18, 8"); e("v_add_u32 v22, s32, v23")
        if vmode: e("v_lshlrev_b32 v21, 4, v4"); e(f"s_add_u32 s32, s32, {UT}"); e("v_add_u32 v21, s32, v21")
        e("s_barrier")
        e("ds_read_b32 v48, v22 offset:1024"); e("ds_read_b32 v49, v22 offset:1152")
        for jf in range(4): e(f"ds_read_b32 v{28+2*jf}, v23 offset:{256*jf}"); e(f"ds_read_b32 v{29+2*jf}, v23 offset:{256*jf+128}")
        if vmode:
            for a_ in range(4): e(f"ds_read_b128 {vr(RS+4*a_,4)}, v21 offset:{2048+32*a_}")
        else: e("ds_read_b32 v47, v22 offset:2048")
        e("s_waitcnt lgkmcnt(0)"); k.lg = []
        e("v_and_b32 v48, v48, v58"); e("v_and_b32 v49, v49, v58")
        if not vmode: e("v_mul_f32 v47, s59, v47")
        for jf in range(4):
            if vmode: e(f"v_mfma_f32_32x32x8_bf16 {acc(jf)}, v[48:49], {vr(28+2*jf,2)}, {acc(jf)}")
            else:     e(f"v_mfma_f32_32x32x8_bf16 {acc(jf)}, {vr(28+2*jf,2)}, v[48:49], {acc(jf)}")
        k.stamp(5)
    mainloop(False)
    epi_qk(k, ACC, BF)
    k.label(f"{nm}_qv"); k.lg = []
    mainloop(True)
    epi_v(k, ACC, BF, RS)
    k.label(f"{nm}_fin5")
    k.stamp(6)
    e("s_barrier")
    signal(k, "sf", -1, 8, a0, 0, "s[12:15]")
    k.dump(13)
    e(f"s_branch {kn}_t0")
    k.label(f"{nm}_ld"); k.vm = []; k.lg = []
    e(f"s_setprio {ENV('LPRIO', '2')}")
    e("v_lshrrev_b32 v16, 4, v1"); e("v_and_b32 v17, 3, v2")
    e("v_lshl_add_u32 v18, v17, 2, v16"); e("v_mul_u32_u24 v20, 3840, v18")
    e("v_xor_b32 v18, v13, v16"); e("v_lshl_add_u32 v20, v18, 6, v20"); e("v_lshl_add_u32 v20, v6, 4, v20")
    e("v_lshrrev_b32 v18, 3, v1"); e("v_lshl_add_u32 v19, v17, 5, v18"); e("v_and_b32 v23, 7, v1")
    for i in range(4):
        e(f"v_add_u32 v42, {8*i}, v19"); e("v_bfe_u32 v43, v42, 1, 3"); e("v_xor_b32 v43, v43, v23")
        e("v_mul_u32_u24 v42, 1280, v42"); e(f"v_lshl_add_u32 v{48+i}, v43, 4, v42")
        if i: e(f"v_subrev_u32 v{48+i}, {1024*i}, v{48+i}")
    e("s_lshl_b32 s25, s17, 8"); e("s_mul_i32 s24, s16, 163840"); e("s_lshl_b32 s26, s39, 12")
    def ld1(st, n):
        if n < 4:
            e(f"s_add_u32 m0, s45, {slot(st)+16384+4096*n}"); e(f"s_add_u32 s32, s25, {(64*st+16*n)*3840}")
            k.vmop(f"buffer_load_dwordx4 v20, s[28:31], s32 offen {os.environ.get('WNT2', '')} lds", f"d{st}")
        else:
            e(f"s_add_u32 m0, s26, {slot(st)}"); e(f"s_add_u32 s33, s24, {128*st}")
            k.vmop(f"buffer_load_dwordx4 v{44+n}, s[8:11], s33 offen offset:{1024*(n-4)} {os.environ.get('XNT2', '')} lds", f"d{st}")
    ORD = [0, 4, 1, 5, 2, 6, 3, 7]
    def ld(st):
        for n in ORD: ld1(st, n)
    kwait(); ld(0)
    e("v_xor_b32 v15, v17, v13"); e("v_lshl_add_u32 v40, v15, 6, v14"); e("v_add_u32 v41, 65536, v40")
    e("v_and_b32 v42, 1, v16"); e("v_cmp_eq_u32 vcc, v42, v5"); e("v_mov_b32 v43, 0x3f803f80")
    for r in range(4): e(f"v_cndmask_b32 v{60+r}, 0, v43, vcc")
    k.srd(52, 4, 256)
    e("s_mul_i32 s27, s17, 163840"); e("s_add_u32 s27, s27, s45"); e(f"s_add_u32 s27, s27, {WA_I}")
    if ENV('LD1', '0'): ld(1)
    done = [0]
    def steps_of(kb):
        r = []
        while done[0] < 20 and need(done[0]) <= kb: r.append(done[0]); done[0] += 1
        return r
    def wa_store(q):
        e("s_lshl_b32 s32, s16, 13"); e("s_add_u32 s32, s32, s27")
        if q: e("s_add_u32 s32, s32, 131072")
        e("s_add_u32 s33, s32, 4096")
        for u in range(2): k.vmop(f"buffer_store_dwordx4 {vr(112+8*q+4*u,4)}, v3, s[12:15], s{32+u} offen {SC}")
    for kb in range(10):
        if kb == 5: k.stamp(5)
        k.waitvm(f"d{kb}")
        if kb == 5: k.stamp(6)
        e("s_barrier")
        if kb in (4, 5): k.stamp(2 if kb == 4 else 7)
        if kb == 0 and not ENV('LD1', '0'): ld(1)
        sl = slot(kb); todo = list(ORD) if kb + DEP < 10 else []
        nxt = lambda: ld1(kb + DEP, todo.pop(0)) if todo else None
        sts = steps_of(kb)
        for n_, ks in enumerate(sts):
            for u in range(2):
                for t in range(2):
                    e(f"ds_read_b64_tr_b16 {vr(136+8*n_+4*u+2*t,2)}, v{40+(sl>>16)} offset:{(sl + (32*(ks%2) + 16*u + 4*t)*256) & 0xffff}")
        nxt(); nxt()
        if kb == 4: k.stamp(3)
        e("s_waitcnt lgkmcnt(0)")
        mf = [(n_, ks, u) for n_, ks in enumerate(sts) for u in range(2)]
        for n_, ks, u in mf:
            e(f"v_mfma_f32_16x16x32_bf16 v[64:67], v[60:63], {vr(136+8*n_+4*u,4)}, {'v[64:67]' if ks or u else 0}")
            nxt()
        nxt(); nxt()
        if kb == 4: k.stamp(4)
        for n_, ks in enumerate(sts):
            e(f"s_cmp_eq_u32 s16, {ks % 16}"); e(f"s_cbranch_scc0 {nm}_w{ks}")
            for r in range(8): e(f"v_mov_b32 v{112+8*(ks//16)+r}, v{136+8*n_+r}")
            k.label(f"{nm}_w{ks}")
        assert not todo
        if kb == 8:
            e("v_and_b32 v24, 15, v1"); e("v_lshlrev_b32 v24, 2, v24"); e("s_mov_b32 s33, 0")
            k.label(f"{nm}_pl")
            e(f"buffer_load_dword v25, v24, s[52:55], 0 offen {SC}"); e("s_add_u32 s33, s33, 1"); e("s_waitcnt vmcnt(0)"); k.vm = []
            e("v_cmp_eq_u32 vcc, 0, v25"); e("s_cmp_ge_u32 s33, 0x20000"); e(f"s_cbranch_scc1 {nm}_px")
            e(f"s_cbranch_vccnz {nm}_pl")
            k.label(f"{nm}_px")
            e("v_lshlrev_b32 v24, 3, v10"); e("s_lshl_b32 s32, s16, 10"); e("s_lshl_b32 s33, s39, 8"); e("s_add_u32 s32, s32, s33"); e(f"s_add_u32 s32, s32, {STI}")
            k.vmop(f"buffer_load_dwordx2 v[44:45], v24, s[12:15], s32 offen {SC}", "rs")
            wa_store(0)
    k.waitvm("rs")
    stats_finish(k, 44, 45, 28, 29, 30)
    e("v_lshlrev_b32 v42, 2, v5"); e("ds_bpermute_b32 v68, v42, v64"); e("ds_bpermute_b32 v69, v42, v65"); e("v_cmp_eq_u32 vcc, 1, v7")
    split3(k, 28, 32, 36, 'm')
    e("s_waitcnt lgkmcnt(0)"); e("v_cndmask_b32 v64, v68, v69, vcc")
    split3(k, 64, 34, 36, 'u')
    e("v_lshlrev_b32 v24, 2, v10"); e("s_lshl_b32 s32, s39, 8"); e(f"s_add_u32 s32, s32, {UT}"); e("v_add_u32 v24, s32, v24")
    e("ds_write_b32 v24, v34"); e("ds_write_b32 v24, v35 offset:128"); e("ds_write_b32 v24, v32 offset:1024"); e("ds_write_b32 v24, v33 offset:1152"); e("ds_write_b32 v24, v29 offset:2048")
    e("s_waitcnt lgkmcnt(0)"); e("s_barrier")
    lwc_init(k); e("s_barrier")
    e("v_mov_b32 v44, v64")
    e("s_cmp_ge_u32 s16, 4"); e(f"s_cbranch_scc1 {nm}_le"); wa_store(1)
    e("s_cmp_eq_u32 s16, 0"); e(f"s_cbranch_scc0 {nm}_le")
    e("v_mov_b32 v45, 0"); e("v_mov_b32 v46, 0"); e("v_mov_b32 v47, 0"); e("v_lshlrev_b32 v24, 4, v10")
    e("s_lshl_b32 s32, s17, 11"); e("s_lshl_b32 s33, s39, 9"); e("s_add_u32 s32, s32, s33"); e(f"s_add_u32 s32, s32, {U_A}")
    e("s_mov_b32 exec_hi, 0"); e(f"buffer_store_dwordx4 v[44:47], v24, s[12:15], s32 offen {SC}")
    k.label(f"{nm}_le")
    e("s_mov_b64 exec, -1")
    signal(k, "sfl", -1, 8, a0, 0, "s[12:15]")
    k.dump(8)
    e(f"s_branch {kn}_t0")
    k.label(f"{nm}_ub"); k.vm = []; k.lg = []
    kwait()
    e("v_lshrrev_b32 v4, 3, v1"); e("v_lshl_add_u32 v4, v2, 4, v4"); e("v_mul_u32_u24 v5, 1280, v4"); e("v_and_b32 v6, 7, v1"); e("v_lshl_add_u32 v5, v6, 4, v5")
    e("s_mul_i32 s24, s16, 163840"); e("s_add_u32 s25, s24, 10240")
    for b_ in range(2):
        for i in range(10): k.vmop(f"buffer_load_dwordx4 {vr(24+40*b_+4*i,4)}, v5, s[8:11], s{24+b_} offen offset:{128*i} {os.environ.get('XNT2', '')}", f"x{b_}{i}")
    for j in range(8): e(f"v_mov_b32 v{8+j}, 0")
    e("v_mov_b32 v7, 0x3f803f80")
    e("v_lshlrev_b32 v16, 4, v0"); e("s_and_b32 s26, s16, 7"); e("s_lshl_b32 s26, s26, 13"); e(f"s_add_u32 s26, s26, {CNT}"); e("s_cmp_ge_u32 s16, 8"); e(f"s_cselect_b32 s27, {LS}, 0"); e("s_add_u32 s26, s26, s27")
    k.vmop(f"buffer_store_dwordx4 v[12:15], v16, s[12:15], s26 offen {SC}")
    for b_ in range(2):
        for i in range(10):
            k.waitvm(f"x{b_}{i}")
            for q in range(4):
                r = 24+40*b_+4*i+q
                e(f"v_dot2_f32_bf16 v{8+2*b_}, v{r}, v7, v{8+2*b_}"); e(f"v_dot2_f32_bf16 v{9+2*b_}, v{r}, v{r}, v{9+2*b_}")
    for dpp in ("quad_perm:[1,0,3,2]", "quad_perm:[2,3,0,1]", "row_half_mirror"):
        for q in range(4): e(f"v_add_f32_dpp v{8+q}, v{8+q}, v{8+q} {dpp} row_mask:0xf bank_mask:0xf")
    e("v_lshlrev_b32 v4, 3, v4"); e("s_lshl_b32 s26, s16, 10"); e(f"s_add_u32 s26, s26, {STI}")
    e("v_cmp_eq_u32 vcc, 0, v6"); k.srd(52, 4, 256); e("s_mov_b64 exec, vcc")
    e(f"buffer_store_dwordx2 v[8:9], v4, s[12:15], s26 offen {SC}"); e(f"buffer_store_dwordx2 v[10:11], v4, s[12:15], s26 offen offset:64 {SC}")
    e("s_mov_b64 exec, -1"); lwc_init(k)
    e("s_waitcnt vmcnt(0)"); e("s_barrier")
    e("s_cmp_ge_u32 s18, 4"); e(f"s_cbranch_scc1 {nm}_u2")
    codepf("u")
    e("s_cmp_eq_u32 s18, 0"); e(f"s_cbranch_scc0 {nm}_u2")
    e("v_mov_b32 v4, 0"); e("v_mov_b32 v5, 1"); e("s_lshl_b32 s26, s16, 2"); e("s_mov_b64 exec, 1")
    e(f"buffer_store_dword v5, v4, s[52:55], s26 offen {SC}")
    e("s_mov_b64 exec, 0xffff"); e("v_lshlrev_b32 v4, 2, v1"); e("s_mov_b32 s33, 0")
    k.label(f"{nm}_u1")
    e(f"buffer_load_dword v5, v4, s[52:55], 0 offen {SC}"); e("s_add_u32 s33, s33, 1"); e("s_waitcnt vmcnt(0)")
    e("v_cmp_eq_u32 vcc, 0, v5"); e("s_cmp_ge_u32 s33, 0x20000"); e(f"s_cbranch_scc1 {nm}_u2"); e(f"s_cbranch_vccnz {nm}_u1")
    k.label(f"{nm}_u2")
    e("s_mov_b64 exec, -1"); e("s_waitcnt vmcnt(0)")

def k_main():
    k = KB(NAME + "_kernel"); e = k.e; name = k.name
    ph_front(k)
    k.label(f"{name}_t0")
    e("s_load_dwordx2 s[46:47], s[0:1], 48"); e("s_mov_b32 s3, 0")
    k.srd(8, 6, 2*LS)
    e("s_waitcnt lgkmcnt(0)")
    k.srd(60, 46, S*D*2)
    k.label(f"{name}_top")
    k.vm = []; k.lg = []
    e("s_setprio 0"); k.stamp(0); k.rstamp(1)
    ph_attn(k)
    def a1():
        e("s_lshl_b32 s48, s17, 3"); e("s_and_b32 s49, s16, 1"); e("s_add_u32 s48, s48, s49"); e("s_lshl_b32 s48, s48, 8"); e(f"s_add_u32 s48, s48, {C1}")
        e(f"v_lshlrev_b32 v{PV_+1}, 9, v1"); e("s_mov_b64 s[56:57], 15")
    e("s_cmp_ge_u32 s18, 4"); e(f"s_cbranch_scc1 {name}_ld")
    signal(k, "s1", 0, 8, a1)
    def c1():
        e("s_lshl_b32 s48, s16, 9"); e(f"s_add_u32 s48, s48, {C1}")
        e(f"v_lshlrev_b32 v{PV_+1}, 8, v1"); e(f"v_mov_b32 v{PV_+2}, 16"); e("s_mov_b64 s[56:57], 3")
    proj_c(k, "p2", OT, XI, XM, STM, False, c1, 0, 6)
    def a2():
        e("s_lshr_b32 s48, s16, 1"); e("s_lshl_b32 s48, s48, 9"); e(f"s_add_u32 s48, s48, {C2}")
        e(f"v_mul_u32_u24 v{PV_+1}, 768, v1"); e("s_bitcmp1_b32 s16, 0"); e("s_cselect_b64 s[56:57], 3, 1")
    signal(k, "s2", 1, 4, a2)
    qkvb_c(k, XM, STM, 9)
    def a3(): one(k, 0); e("s_lshl_b32 s48, s16, 8"); e(f"s_add_u32 s48, s48, {C3}")
    signal(k, "s3", 0, 4, a3)
    def c3(): one(k, 16); e("s_lshr_b32 s48, s16, 1"); e("s_lshl_b32 s48, s48, 8"); e(f"s_add_u32 s48, s48, {C3}")
    proj_c(k, "p4", OBT, XM, XI, STI, True, c3, 0, 12)
    def a4(): one(k, 0); e("s_lshr_b32 s48, s16, 1"); e("s_lshl_b32 s48, s48, 8"); e(f"s_add_u32 s48, s48, {C4}")
    signal(k, "s4", 1, 4, a4)
    k.dump(15, "1")
    ids_mt(k)
    e("s_cmp_ge_u32 s17, 15"); e(f"s_cbranch_scc1 {name}_idle")
    qkva_c(k, XI, STI, 0, C4, [7], 3)
    k.stamp(6)
    e("s_barrier")
    def a5(): e("s_lshl_b32 s48, s17, 11"); e(f"s_add_u32 s48, s48, {LS + C0}"); e(f"v_lshlrev_b32 v{PV_+1}, 8, v1"); e("s_mov_b64 s[56:57], 0xff")
    signal(k, "s5", -1, 4, a5)
    k.dump(7, "3")
    k.label(f"{name}_t1")
    e("s_mov_b32 s3, 1"); e(f"s_add_u32 s8, s8, {LS}"); e("s_addc_u32 s9, s9, 0"); e(f"s_mov_b32 s10, {LS}")
    e(f"s_branch {name}_top")
    k.label(f"{name}_idle")
    for _ in range(4): e("s_barrier")
    e(f"s_branch {name}_t1")
    k.label(f"{name}_ld"); k.vm = []; k.lg = []
    if os.environ.get("FOC") == "at": e("s_add_u32 s84, s3, 4"); k.dump(8, "s84")
    e(f"s_setprio {ENV('LPRIO', '2')}")
    w = proj_l(k, WOA_I, WB_I, OT, a1, 0)
    qkvb_l(k, XM, STM, w)
    w = proj_l(k, WOB_I, WA_I, OBT, None, 0, True)
    ids_mt(k)
    atouch_pre(k, XI)
    e("s_barrier")
    e("buffer_load_dword v20, v21, s[12:15], s51 offen")
    w.one(39); e("s_waitcnt vmcnt(0)"); e("s_barrier")
    e("s_barrier"); lwc_init(k); e("s_barrier")
    e(f"s_branch {name}_t1")
    k.label(f"{name}_end"); e("s_endpgm")
    k.tail()
    return k.text(256 if STAMP else 244, 256 if STAMP else 244)

def build():
    hdr = open("cdna_kernels/" + NAME + ".s.ref").read().split("; Override launch")[0]
    out = hdr + "; @launch grid=(256,1,1) block=(512,1,1) lds=163840\n"
    out += '.amdgcn_target "amdgcn-amd-amdhsa--gfx950"\n'
    out += k_main()
    out += ".text\ncode_end:\n"
    return out

if __name__ == "__main__":
    dst = sys.argv[1] if len(sys.argv) > 1 else "cdna_kernels/" + NAME + ".s"
    open(dst, "w").write(build())
    print("wrote", dst)
```

```python
import sys, math
from lint import lint, fix

NAME = "interleave_layers__softmax_full_mha__sliding_local_dilated__prompt"
S, D, H, DH = 2048, 640, 32, 20
XS = S*D*2
IMG = H*64*2560
QI = H*64*1280
CNT = 0
C1 = CNT; C2 = C1 + 64*256; C3 = C2 + 34*256; C4 = C3 + 16*256; C0 = C4 + 16*256
LS = 65536
CS = LS + C4
XI = 2*LS; STI = XI + XS
QIMG = STI + S*64; KVIMG = QIMG + QI
OT = KVIMG + IMG; OBT = OT + XS; XM = OBT + XS
STM = XM + XS
U_A = STM + S*64
U_B = U_A + 32768
WA_I = U_B + 163840
WOA_I = WA_I + 15*163840
WB_I = WOA_I + 819200
WOB_I = WB_I + 16*163840
STAMPS = WOB_I + 819200
WS_END = STAMPS + 16*262144
import os
STAMP = int(os.environ.get("STAMP", "0"))
ATTN_WAVES = 8
AV = os.environ.get("AV", "")
CSCALE = (DH ** -0.5) * math.log2(math.e)
import struct
def fbits(x): return "0x%08x" % struct.unpack("<I", struct.pack("<f", x))[0]

FM = [(0,16),(32,48),(80,96),(112,128),(64,144)]
def FX(ks, t):
    return 160*(ks//5) + FM[ks%5][t]

class KB:
    def __init__(s, name):
        s.name = name; s.L = []; s.vm = []; s.lg = []; s.cap = None
    def e(s, line):
        if s.cap is not None: s.cap.append(('e', line, None))
        else: s.L.append("    " + line)
    def capture(s, fn):
        s.cap = []; fn(); c = s.cap; s.cap = None
        return [x for x in c if not (x[0] == 'e' and x[1].startswith('s_nop'))]
    def fill(s, lst, n=1):
        for _ in range(n):
            if not lst: return
            kind, a, b = lst.pop(0)
            if kind == 'e':
                s.e(a)
                if a.startswith('s_cmp'):
                    while lst and lst[0][0] == 'e' and lst[0][1].startswith('s_cselect'): s.e(lst.pop(0)[1])
            elif kind == 'ds': s.dsop(a, b)
            elif kind == 'wvm': s.waitvm(a)
            elif kind == 'wlg': s.waitlg(a)
    def c(s, txt): s.L.append("    ; " + txt)
    def label(s, l): s.L.append(l + ":")
    def vmop(s, line, tag=None): s.e(line); s.vm.append(tag); assert len(s.vm) <= 63, (s.name, len(s.vm))
    def dsop(s, line, tag=None):
        if s.cap is not None: s.cap.append(('ds', line, tag)); return
        s.e(line); s.lg.append(tag)
    def _n(s, lst, tag):
        idx = max(i for i, t in enumerate(lst) if t == tag)
        return idx
    def waitvm(s, tag):
        if s.cap is not None: s.cap.append(('wvm', tag, None)); return
        if tag not in s.vm: return
        i = s._n(s.vm, tag); n = len(s.vm) - 1 - i
        s.e(f"s_waitcnt vmcnt({n})"); s.vm = s.vm[i+1:]
    def waitlg(s, tag):
        if s.cap is not None: s.cap.append(('wlg', tag, None)); return
        if tag not in s.lg: return
        i = s._n(s.lg, tag); n = len(s.lg) - 1 - i
        if n > 15: n = 15; i = len(s.lg) - 1 - n
        s.e(f"s_waitcnt lgkmcnt({n})"); s.lg = s.lg[i+1:]
    def waitall(s):
        s.e("s_waitcnt vmcnt(0) lgkmcnt(0)"); s.vm = []; s.lg = []
    def srd(s, r, base, nbytes):
        s.e(f"s_mov_b32 s{r}, s{base}")
        s.e(f"s_and_b32 s{r+1}, s{base+1}, 0xffff")
        s.e(f"s_mov_b32 s{r+2}, {nbytes}")
        s.e(f"s_mov_b32 s{r+3}, 0x20000")
    def stamp(s, i):
        if not STAMP: return
        op = "s_memrealtime" if os.environ.get("RT") else "s_memtime"
        s.e(f"{op} s[{64+2*i}:{65+2*i}]" if i < 10 else f"{op} s[{72+2*i}:{73+2*i}]")
    def rstamp(s, i):
        if not STAMP: return
        s.e(f"s_memrealtime s[{64+2*i}:{65+2*i}]")
    def dump(s, n=8, slot="0", wave="s18"):
        if not STAMP: return
        e = s.e
        if os.environ.get("DBG"):
            keep = {"0": [(1, 246), (3, 247), (6, 248)], "1": [(2, 249), (5, 250), (14, 251)], "3": [(6, 252)], "2": [(2, 253), (5, 254), (14, 255)]}[slot]
            e("s_waitcnt lgkmcnt(0)")
            if n < 7 or (slot == "0" and n == 8): return
            for i, v in keep: e(f"v_mov_b32 v{v}, s{64+2*i if i < 10 else 72+2*i}")
            if slot == "2":
                e(f"s_cmp_eq_u32 s2, {os.environ['DBG']}"); e("s_cbranch_scc0 dbg_skip"); e("s_cmp_eq_u32 s18, 0"); e("s_cbranch_scc0 dbg_skip")
                e("s_load_dwordx2 s[84:85], s[0:1], 56"); e("s_memrealtime s[86:87]"); e("s_waitcnt lgkmcnt(0)")
                s.srd(88, 84, 256); e("s_mov_b64 exec, 1"); e("v_mov_b32 v0, 0"); e("v_mov_b32 v245, s86"); e("v_sub_u32 v245, v245, v246")
                for i in range(9):
                    e(f"v_sub_u32 v{247+i}, v{247+i}, v246"); e(f"buffer_store_dword v{247+i}, v0, s[88:91], 0 offen offset:{4*i}")
                e("buffer_store_dword v245, v0, s[88:91], 0 offen offset:36")
                s.label("dbg_skip")
            return
        e("s_memrealtime s[86:87]"); e("s_waitcnt lgkmcnt(0)")
        e("s_mov_b64 exec, 1")
        e(f"s_lshl_b32 s84, {slot}, 18")
        e("s_lshl_b32 s85, s2, 3"); e(f"s_add_u32 s85, s85, {wave}"); e("s_lshl_b32 s85, s85, 6"); e(f"s_add_u32 s85, s85, {STAMPS}"); e("s_add_u32 s85, s85, s84")
        e("v_mov_b32 v244, 0")
        for i in range(n):
            e(f"v_mov_b32 v245, s{64+2*i if i < 10 else 72+2*i}")
            e(f"buffer_store_dword v245, v244, s[12:15], s85 offen offset:{4*i}")
        e("v_mov_b32 v245, s86"); e("buffer_store_dword v245, v244, s[12:15], s85 offen offset:60")
        e("s_mov_b64 exec, -1")
    def text(s, vgpr, accum, sgpr=102):
        s.L, added = fix(s.L)
        if os.environ.get("V"): print(s.name, "auto nops:", added, "lines:", len(s.L))
        out = [".text", f".globl {s.name}", ".p2align 8", f".type {s.name},@function", f"{s.name}:"]
        out += s.L
        out += ['.section .rodata,"a"', ".p2align 6", f".amdhsa_kernel {s.name}",
                f"  .amdhsa_next_free_vgpr {vgpr}", f"  .amdhsa_next_free_sgpr {sgpr}", f"  .amdhsa_accum_offset {accum}",
                "  .amdhsa_group_segment_fixed_size 0", "  .amdhsa_kernarg_size 72", "  .amdhsa_user_sgpr_count 2",
                "  .amdhsa_user_sgpr_kernarg_segment_ptr 1", "  .amdhsa_system_sgpr_workgroup_id_x 1", ".end_amdhsa_kernel"]
        nb = lint(s.L, s.name)
        assert nb == 0, f"{nb} hazards in {s.name}"
        return "\n".join(out) + "\n"
    def allred32(s, op, v, t):
        s.e(f"v_mov_b32 v{t}, v{v}"); s.e("s_nop 1")
        s.e(f"v_permlane32_swap_b32 v{v}, v{t}"); s.e("s_nop 1")
        s.e(f"{op} v{v}, v{v}, v{t}")
    def allred16(s, op, v, t):
        s.e(f"v_mov_b32 v{t}, v{v}"); s.e("s_nop 1")
        s.e(f"v_permlane16_swap_b32 v{v}, v{t}"); s.e("s_nop 1")
        s.e(f"{op} v{v}, v{v}, v{t}")

def vr(a, n): return f"v[{a}:{a+n-1}]" if n > 1 else f"v{a}"
def ar(a, n): return f"a[{a}:{a+n-1}]" if n > 1 else f"a{a}"

def stats_finish(k, s1, s2, mean, rstd, t):
    e = k.e
    e(f"v_mul_f32 v{mean}, {fbits(1.0/D)}, v{s1}")
    e(f"v_mul_f32 v{t}, {fbits(1.0/D)}, v{s2}")
    e(f"v_fma_f32 v{t}, -v{mean}, v{mean}, v{t}")
    e(f"v_max_f32 v{t}, 0, v{t}")
    e(f"v_add_f32 v{t}, {fbits(1e-5)}, v{t}")
    e(f"v_rsq_f32 v{rstd}, v{t}")
    e("s_nop 0")

def split3(k, src, d, t, kind, maskv=None):
    e = k.e
    if kind == 'm':
        e(f"v_xor_b32 v{t+1}, 0x80000000, v{src}"); src = t+1
    e(f"v_and_b32 v{t}, 0xffff0000, v{src}")
    e(f"v_sub_f32 v{t+2}, v{src}, v{t}")
    if kind == 'u':
        e(f"v_cvt_pk_bf16_f32 v{d}, v{t}, v{t+2}")
        e(f"v_lshrrev_b32 v{d+1}, 16, v{t}")
    else:
        e(f"v_cvt_pk_bf16_f32 v{d}, v{t}, v{t}")
        e(f"v_cvt_pk_bf16_f32 v{d+1}, v{t+2}, 0")
    if maskv is not None:
        e(f"v_and_b32 v{d}, v{d}, v{maskv}"); e(f"v_and_b32 v{d+1}, v{d+1}, v{maskv}")

SC = "sc1"
RS_ = lambda off: "s[12:15]" if off >= 2*LS else "s[8:11]"
EARLY = int(os.environ.get('EARLY', '6'))
ENV = lambda n, d: int(os.environ.get(n, d))

def ids_mt(k):
    k.e("s_lshl_b32 s22, s20, 1"); k.e("s_and_b32 s23, s21, 1"); k.e("s_add_u32 s16, s22, s23"); k.e("s_lshr_b32 s17, s21, 1")
def ids_rt(k):
    k.e("s_lshl_b32 s22, s20, 2"); k.e("s_and_b32 s23, s21, 3"); k.e("s_add_u32 s16, s22, s23"); k.e("s_lshr_b32 s17, s21, 2")

LW = 163824
PV_ = 240
def lw_init(k):
    e = k.e
    e(f"v_mov_b32 v{PV_+3}, {LW}")
    for i in range(3): e(f"v_mov_b32 v{PV_+i}, 0")
    e(f"ds_write_b96 v{PV_+3}, v[{PV_}:{PV_+2}]"); e(f"ds_write_b32 v{PV_+3}, v{PV_} offset:12")

def lwc_init(k):
    k.e(f"v_mov_b32 v{PV_+3}, {LW-8}"); k.e(f"v_mov_b32 v{PV_}, 0"); k.e(f"v_mov_b32 v{PV_+1}, 0")
    k.e(f"ds_write_b64 v{PV_+3}, v[{PV_}:{PV_+1}]"); k.e("s_waitcnt lgkmcnt(0)")

def signal(k, tag, word, nw, addr_code, younger=0, srd="s[8:11]"):
    e = k.e
    addr_code()
    e(f"v_mov_b32 v{PV_+3}, {LW-8}"); e(f"v_mov_b32 v{PV_}, 1")
    e("s_mov_b64 exec, 1")
    assert younger == 0
    e("s_waitcnt vmcnt(0)"); k.vm = []
    if tag == os.environ.get("FOC"): k.stamp(2)
    e(f"ds_add_rtn_u32 v{PV_+2}, v{PV_+3}, v{PV_} offset:{8*word+8}")
    e("s_waitcnt lgkmcnt(0)"); k.lg = []
    e(f"v_readfirstlane_b32 s49, v{PV_+2}")
    e("s_mov_b64 exec, s[56:57]")
    e(f"s_cmp_eq_u32 s49, {nw-1}"); e(f"s_cbranch_scc0 {k.name}_{tag}_sg")
    e(f"buffer_atomic_add v{PV_}, v{PV_+1}, {srd}, s48 offen {SC}")
    if os.environ.get("FOC2") == tag: k.stamp(4)
    k.label(f"{k.name}_{tag}_sg")
    e("s_mov_b64 exec, -1")

def wait_go(k, tag, word, poll_code):
    e = k.e; nm = f"{k.name}_{tag}"
    e(f"v_mov_b32 v{PV_+3}, {LW-8}"); e("s_mov_b32 s49, 0")
    if poll_code:
        e("s_cmp_eq_u32 s18, 0"); e(f"s_cbranch_scc0 {nm}_sp")
        poll_code()
        e("s_mov_b64 exec, s[56:57]")
        if os.environ.get("FOC") == "g" + tag: k.stamp(2)
        k.label(f"{nm}_pl")
        e(f"v_mov_b32 v{PV_}, 0")
        e(f"buffer_atomic_add v{PV_}, v{PV_+1}, s[8:11], s48 offen sc0 sc1")
        e("s_add_u32 s49, s49, 1")
        e("s_waitcnt vmcnt(0)")
        e(f"v_cmp_ge_u32 vcc, v{PV_}, v{PV_+2}")
        e("s_cmp_ge_u32 s49, 0x20000"); e(f"s_cbranch_scc1 {nm}_px")
        e("s_cmp_eq_u64 vcc, exec"); e(f"s_cbranch_scc0 {nm}_pl")
        k.label(f"{nm}_px")
        if os.environ.get("FOC") == "g" + tag: e("s_add_u32 s70, s64, s49")
        e("s_mov_b64 exec, 1"); e(f"v_mov_b32 v{PV_}, 1")
        e(f"ds_write_b32 v{PV_+3}, v{PV_} offset:{8*word+12}")
        e(f"s_branch {nm}_go")
    k.label(f"{nm}_sp")
    e("s_sleep 1")
    e(f"ds_read_b32 v{PV_}, v{PV_+3} offset:{8*word+12}")
    e("s_add_u32 s49, s49, 1")
    e("s_waitcnt lgkmcnt(0)")
    e(f"v_readfirstlane_b32 s44, v{PV_}")
    e("s_cmp_ge_u32 s49, 0x400000"); e(f"s_cbranch_scc1 {nm}_go")
    e("s_cmp_eq_u32 s44, 0"); e(f"s_cbranch_scc1 {nm}_sp")
    k.label(f"{nm}_go")
    e("s_mov_b64 exec, -1")

class Wdma:
    def __init__(s, k, n, base=50, tag="w"): s.k = k; s.n = n; s.i = 0; s.base = base; s.tag = tag
    def one(s, i):
        s.k.e(f"s_add_u32 m0, s45, {4096*i}"); s.k.e(f"s_add_u32 s32, s{s.base}, {4096*i}")
        s.k.vmop(f"buffer_load_dwordx4 v3, s[12:15], s32 offen {SC} lds", f"{s.tag}{i}")
    def go(s, upto):
        while s.i < min(upto, s.n): s.one(s.i); s.i += 1
    def rng(s, a, b, thr=0):
        for i in range(a, b):
            s.one(i)
            if thr and len(s.k.vm) >= thr: s.k.e(f"s_waitcnt vmcnt({thr-1})"); s.k.vm = s.k.vm[len(s.k.vm)-thr+1:]

SIDE_SV = 152; SIDE_D = 160; SIDE_U = 192
def side_setup(k):
    e = k.e; nm = k.name
    e("s_load_dwordx4 s[84:87], s[0:1], 32"); e("s_load_dwordx2 s[88:89], s[0:1], 16")
    e("s_mul_i32 s49, s2, 3"); e("s_add_u32 s49, s49, s18"); e("s_sub_u32 s49, s49, 4")
    e("s_sub_u32 s32, s18, 4"); e("s_cmp_lt_u32 s32, 3"); e("s_cselect_b32 s49, s49, 959"); e("s_cmp_eq_u32 s3, 0"); e("s_cselect_b32 s49, s49, 959")
    e("s_lshl_b32 s35, s39, 13"); e("s_add_u32 s35, s35, 112640")
    e("s_mul_i32 s36, s49, 3277"); e("s_lshr_b32 s36, s36, 16"); e("s_mul_i32 s37, s36, 20"); e("s_sub_u32 s37, s49, s37")
    e("v_and_b32 v140, 15, v1"); e("v_lshrrev_b32 v141, 2, v140"); e("v_and_b32 v142, 3, v1")
    e("s_waitcnt lgkmcnt(0)")
    SV = SIDE_SV
    e("v_lshrrev_b32 v136, 4, v1")
    for r in list(range(SV, SV+5)) + list(range(144, 152)): e(f"v_mov_b32 v{r}, 0")
    e("s_mov_b32 s5, 0")
    e("s_mov_b32 s53, 0x7ff00000"); e("s_mov_b32 s54, s53"); e("s_mov_b32 s58, s53")
    e("s_cmp_ge_u32 s49, 320"); e(f"s_cbranch_scc1 {nm}_ss1")
    k.srd(88, 84, D*3*D*2)
    e(f"s_mul_i32 s5, s37, {32*3840}"); e("s_mul_i32 s32, s36, 80"); e("s_add_u32 s5, s5, s32")
    e("v_lshlrev_b32 v137, 2, v136"); e("v_xor_b32 v137, v137, v140"); e("v_min_u32 v137, 14, v137")
    e("v_mul_u32_u24 v138, 52, v137"); e("v_lshrrev_b32 v138, 8, v138"); e("v_mul_u32_u24 v138, 1200, v138"); e("v_lshl_add_u32 v138, v137, 4, v138")
    e("v_mul_u32_u24 v137, 3840, v136"); e(f"v_add_u32 v{SV}, v138, v137")
    e("v_lshrrev_b32 v137, 5, v1"); e("v_lshl_add_u32 v137, v137, 3, v141"); e("v_lshlrev_b32 v137, 8, v137"); e("v_and_b32 v138, 1, v136")
    e("v_lshl_add_u32 v137, v138, 5, v137"); e("v_lshl_add_u32 v137, v142, 3, v137"); e("v_add_u32 v137, s35, v137")
    for jf in range(4): e(f"v_xor_b32 v139, {jf}, v141"); e(f"v_lshl_add_u32 v{144+jf}, v139, 6, v137")
    e("s_mul_i32 s53, s36, 163840"); e("s_lshl_b32 s54, s37, 13"); e("s_add_u32 s53, s53, s54"); e(f"s_add_u32 s53, s53, {WB_I}"); e("s_add_u32 s54, s53, 4096"); e("s_mov_b32 s58, s54")
    e(f"s_branch {nm}_ss2")
    k.label(f"{nm}_ss1")
    e("s_cmp_ge_u32 s36, 24"); e("s_cselect_b32 s32, s86, s88"); e("s_cselect_b32 s33, s87, s89")
    k.srd(88, 32, D*D*2)
    e("s_cmp_ge_u32 s49, 640"); e(f"s_cbranch_scc1 {nm}_ss2")
    e("s_and_b32 s32, s36, 7"); e("s_mul_i32 s32, s32, 160")
    e("s_mul_i32 s5, s37, 40"); e("s_sub_u32 s34, s37, 16"); e("s_mul_i32 s34, s34, 160"); e("s_add_u32 s34, s34, 16")
    e("s_cmp_lt_u32 s37, 16"); e("s_cselect_b32 s5, s5, s34"); e("s_cselect_b32 s33, 4, 2"); e("s_cselect_b32 s34, 4, 16")
    e("s_mul_i32 s5, s5, 1280"); e("s_add_u32 s5, s5, s32")
    for i in range(5):
        e(f"v_add_u32 v137, {64*i}, v1"); e("v_mul_u32_u24 v138, 6554, v137"); e("v_lshrrev_b32 v138, 16, v138")
        e("v_lshrrev_b32 v139, s33, v138"); e("v_mul_u32_u24 v139, s34, v139"); e("v_mul_u32_u24 v139, 1280, v139")
        e("v_mul_u32_u24 v138, 1120, v138"); e("v_add_u32 v139, v139, v138"); e(f"v_lshl_add_u32 v{SV+i}, v137, 4, v139")
    e("v_lshlrev_b32 v137, 2, v136"); e("s_mov_b32 s32, 2560")
    e("s_cmp_ge_u32 s36, 24"); e(f"s_cbranch_scc1 {nm}_sf3"); e("s_cmp_ge_u32 s37, 16"); e(f"s_cbranch_scc1 {nm}_sf3")
    e("v_lshrrev_b32 v137, 1, v136"); e("v_lshlrev_b32 v137, 4, v137"); e("v_and_b32 v138, 1, v136"); e("v_lshl_add_u32 v137, v138, 2, v137"); e("s_mov_b32 s32, 1280")
    k.label(f"{nm}_sf3")
    e("v_add_u32 v137, v137, v141"); e("v_mul_u32_u24 v137, 160, v137"); e("v_add_u32 v137, s35, v137")
    e("s_and_b32 s33, s36, 1"); e("s_lshl_b32 s34, s33, 5"); e("s_xor_b32 s33, s33, 1"); e("s_lshl_b32 s33, s33, 7")
    e("v_lshl_add_u32 v144, v142, 4, v137"); e("v_add_u32 v144, s34, v144"); e("v_add_u32 v145, s32, v144")
    e("v_lshl_add_u32 v146, v142, 3, v137"); e("v_add_u32 v146, s33, v146"); e("v_add_u32 v147, s32, v146")
    e("s_cmp_ge_u32 s36, 24"); e(f"s_cselect_b32 s53, {WOB_I-WOA_I}, 0"); e("s_and_b32 s54, s36, 7"); e("s_mul_i32 s54, s54, 102400"); e("s_add_u32 s53, s53, s54")
    e("s_mul_i32 s54, s37, 5120"); e("s_add_u32 s53, s53, s54"); e(f"s_add_u32 s53, s53, {WOA_I}"); e("s_add_u32 s54, s53, 4096")
    k.label(f"{nm}_ss2")
    e("s_lshl_b32 s38, s49, 9"); e(f"s_add_u32 s38, s38, {U_B}"); e("s_cmp_ge_u32 s49, 320"); e("s_cselect_b32 s38, 0x7ff00000, s38")
    e("v_lshlrev_b32 v143, 2, v1")
    e("s_cmp_lt_u32 s49, 640"); e("s_cselect_b32 s4, 2, 0"); e("s_cmp_lt_u32 s49, 320"); e("s_cselect_b32 s4, 1, s4")
    e("s_and_b32 s55, s49, 15"); e("s_lshl_b32 s55, s55, 8"); e(f"s_add_u32 s55, s55, {CS}")

def ph_attn(k):
    e = k.e; nm = k.name
    KA, KT, VA = 4, 5, 6
    Q = [8, 14]; KF = [24, 32]; VF = [40, 48]; SS = [56, 72]; P = 88; O = [96, 112]; PF = 208
    SCR = 137216; TOP = 112640
    ids_rt(k)
    e("v_and_b32 v3, 31, v1"); e("v_lshrrev_b32 v7, 5, v1")
    e("v_lshlrev_b32 v22, 4, v1"); e("v_lshlrev_b32 v23, 3, v3")
    e("s_mul_i32 s19, s16, 163840")
    e("s_lshr_b32 s41, s18, 2")
    e("s_lshl_b32 s23, s17, 3"); e("s_lshl_b32 s22, s39, 1"); e("s_add_u32 s23, s23, s22")
    e("s_add_u32 s23, s23, s41")
    e("s_lshr_b32 s22, s19, 1"); e(f"s_add_u32 s22, s22, {QIMG}")
    e("s_mul_i32 s24, s23, 1280"); e("s_add_u32 s24, s24, s22"); e("s_xor_b32 s40, s23, 1"); e("s_mul_i32 s40, s40, 1280"); e("s_add_u32 s40, s40, s22")
    e("s_mul_i32 s42, s41, 2560"); e(f"s_add_u32 s42, s42, {TOP}")
    e("s_lshl_b32 s25, s18, 10")
    e(f"s_add_u32 s26, s19, {KVIMG}")
    rnd = [0]
    def dma():
        i = rnd[0]; rnd[0] += 1
        if i == 6:
            e("s_cmp_lt_u32 s18, 2"); e("s_cselect_b32 s27, 163840, 0"); e("s_add_u32 s27, s27, s25"); e("s_sub_u32 m0, s27, 2048")
        else: e(f"s_add_u32 m0, s25, {(TOP + 8192*i) if i < 6 else 8192*i - 51200}")
        e("s_add_u32 s27, s26, m0")
        k.vmop(f"buffer_load_dwordx4 v22, s[12:15], s27 offen {SC} lds", f"i{i}")
    e(f"v_add_u32 v{KA}, s42, v22")
    e(f"v_add_u32 v{KT}, s42, v23"); e(f"v_add_u32 v{KT}, 1024, v{KT}")
    if ENV('KTZ', '1'): e(f"v_lshl_add_u32 v{KT}, v7, 20, v{KT}")
    e("v_mul_u32_u24 v21, 20, v7"); e("v_add_u32 v21, v21, v3"); e("v_lshlrev_b32 v21, 4, v21")
    e("v_add_u32 v21, 1280, v21"); e(f"v_add_u32 v{VA}, s42, v21")
    e("s_mov_b32 s28, 0x000fffff"); e("s_mov_b32 s29, 0x000fffff")
    e("v_cmp_eq_u32 vcc, 20, v3"); e("v_mov_b32 v20, 0x3f803f80"); e("s_nop 0")
    e("v_cndmask_b32 v20, 0, v20, vcc")
    for r in range(16): e(f"v_mov_b32 v{VF[0]+r}, v20")
    for r in range(32): e(f"v_mov_b32 v{O[0]+r}, 0")
    for r in range(4): e(f"v_mov_b32 v{P+4+r}, 0")
    e("v_subrev_u32 v30, 1, v7")
    e("s_lshl_b32 s43, s21, 2"); e("s_add_u32 s43, s43, s39"); e(f"s_mul_i32 s43, s43, {2048*ENV('NPF', '14') - 1024}"); e(f"s_add_u32 s43, s43, {WOA_I}")
    e("s_mul_i32 s32, s23, 40960"); e(f"s_add_u32 s32, s32, {OT}")
    e("s_lshr_b32 s51, s16, 1"); e("s_lshl_b32 s51, s51, 10"); e("s_and_b32 s34, s16, 1"); e("s_lshl_b32 s34, s34, 9")
    e("s_add_u32 s51, s51, s34"); e("s_add_u32 s51, s51, s32")
    e("s_lshr_b32 s52, s16, 3"); e("s_add_u32 s52, s52, 16"); e("s_lshl_b32 s52, s52, 10"); e("s_add_u32 s52, s52, s32")
    e("s_and_b32 s35, s16, 3"); e("s_lshl_b32 s35, s35, 8"); e("s_add_u32 s52, s52, s35")
    e("s_bfe_u32 s35, s16, 0x10002"); e("s_lshl_b32 s35, s35, 3"); e("s_add_u32 s52, s52, s35")
    e("v_lshrrev_b32 v38, 4, v3"); e("v_mul_u32_u24 v38, 20480, v38"); e("v_and_b32 v39, 15, v3")
    e("v_lshl_add_u32 v38, v39, 4, v38"); e("v_lshl_add_u32 v39, v7, 8, v38")
    e("s_mul_i32 s32, s18, 3072"); e("s_xor_b32 s33, s18, 4"); e("s_mul_i32 s33, s33, 3072")
    e(f"v_add_u32 v132, {SCR}, v22"); e("v_add_u32 v133, s33, v132"); e("v_add_u32 v132, s32, v132")
    def c0(nl):
        e("s_lshl_b32 s48, s17, 8"); e(f"s_add_u32 s48, s48, {C0}"); e(f"v_mov_b32 v{PV_+2}, 16")
        e("s_mul_i32 s32, s16, 20"); e("s_add_u32 s33, s32, 19"); e("s_lshr_b32 s32, s32, 7"); e("s_lshr_b32 s33, s33, 7"); e("s_sub_u32 s33, s33, s32")
        e(f"v_lshrrev_b32 v{PV_+1}, 1, v1"); e(f"v_mul_u32_u24 v{PV_+1}, 5, v{PV_+1}"); e(f"v_and_b32 v{PV_}, s33, v1"); e(f"v_add3_u32 v{PV_+1}, v{PV_+1}, v{PV_}, s32")
        e(f"v_lshlrev_b32 v{PV_+1}, 11, v{PV_+1}"); e("s_mov_b64 s[56:57], 63")
    side_setup(k)
    e("s_lshl_b32 s59, s2, 2"); e("s_add_u32 s59, s59, s39"); e("s_mul_i32 s50, s59, 2560"); e(f"s_mul_i32 s59, s59, {-(-(U_A - OT) // 1024 // 128) * 128}"); e(f"s_add_u32 s59, s59, {OT}")
    e("v_lshlrev_b32 v234, 7, v1")
    e("v_lshlrev_b32 v134, 11, v1"); e("s_lshl_b32 s32, s17, 8"); e(f"s_add_u32 s32, s32, {C0}"); e("v_add_u32 v134, s32, v134")
    e("v_lshlrev_b32 v135, 8, v1"); e(f"v_add_u32 v135, {CS - 4096}, v135"); e("v_cmp_gt_u32 vcc, 16, v1")
    e("v_cndmask_b32 v134, v135, v134, vcc"); e("v_cndmask_b32 v131, 40, 16, vcc"); e("v_mov_b32 v135, 64")
    wait_go(k, "t", -1, lambda: c0(6))
    k.stamp(2)
    dma()
    for x in range(2):
        k.vmop(f"buffer_load_dwordx4 {vr(Q[x],4)}, v22, s[12:15], s{(24,40)[x]} offen {SC}", "q")
        k.vmop(f"buffer_load_dwordx2 {vr(Q[x]+4,2)}, v23, s[12:15], s{(24,40)[x]} offen offset:1024 {SC}", "q")
    for _ in range(3): dma()
    k.waitvm("q")
    for x in range(2):
        e(f"v_and_b32 v{Q[x]+4}, v{Q[x]+4}, v30"); e(f"v_and_b32 v{Q[x]+5}, v{Q[x]+5}, v30")
    k.waitvm("i1"); e("s_barrier"); k.stamp(3)
    if os.environ.get("FOC") == "clk": k.rstamp(0)
    def rdK(buf, off):
        off *= 2
        e(f"ds_read_b128 {vr(KF[buf],4)}, v{KA} offset:{off}")
        e(f"ds_read_b64 {vr(KF[buf]+4,2)}, v{KT} offset:{off}")
    def rdV(buf, off):
        off *= 2
        e("s_mov_b64 exec, s[28:29]")
        e(f"ds_read_b128 {vr(VF[buf],4)}, v{VA} offset:{off}")
        e(f"ds_read_b128 {vr(VF[buf]+4,4)}, v{VA} offset:{off+640}")
        e("s_mov_b64 exec, -1")
    def qkm(x, kb): e(f"v_mfma_f32_32x32x16_bf16 {vr(SS[x],16)}, {vr(KF[kb],4)}, {vr(Q[x],4)}, 0")
    def qkt(x, kb): e(f"v_mfma_f32_32x32x8_bf16 {vr(SS[x],16)}, {vr(KF[kb]+4,2)}, {vr(Q[x]+4,2)}, {vr(SS[x],16)}")
    def pv(x, vb, u): e(f"v_mfma_f32_32x32x16_bf16 {vr(O[x],16)}, {vr(VF[vb]+4*u,4)}, {vr(P+4*u,4)}, {vr(O[x],16)}")
    def base(t):
        return 0 if t < 10 else 10 if t < 22 else 22
    def bump(regs, t):
        if t == 10:
            for r in regs: e(f"v_subrev_u32 v{r}, {TOP}, v{r}")
        elif t == 22:
            for r in regs: e(f"v_add_u32 v{r}, {12*5120}, v{r}")
    def unit(x, t, extra=()):
        p = t % 2; s = SS[x]
        ex = lambda i: e(f"v_exp_f32 v{s+i}, v{s+i}")
        cv = lambda i: e(f"v_cvt_pk_bf16_f32 v{P+i}, v{s+2*i}, v{s+2*i+1}")
        kb = p if x == 0 else 1-p
        if x == 1: e("s_waitcnt lgkmcnt(2)" if t < 31 else "s_waitcnt lgkmcnt(0)")
        if not (x == 1 and t == 31): qkm(1-x, kb)
        if x == 1 and t + 2 < 32:
            bump((KA, KT), t+2); rdK(p, (t+2-base(t+2))*2560)
        for i in range(0, 4): ex(i)
        if x == 0:
            pv(1, 1-p, 1)
            if t + 1 < 32:
                bump((VA,), t+1); rdV(1-p, (t+1-base(t+1))*2560)
        else:
            pv(0, p, 1)
        for f_ in extra: f_()
        for i in range(4, 8): ex(i)
        for i in range(0, 4): cv(i)
        if not (x == 1 and t == 31): qkt(1-x, kb)
        for i in range(8, 12): ex(i)
        if x == 0: e(f"s_waitcnt lgkmcnt({4 if t < 31 else 0})")
        pv(x, p, 0)
        for i in range(12, 16): ex(i)
        for i in range(4, 8): cv(i)
    rdK(0, 0); rdV(0, 0); rdK(1, 2560)
    e("s_waitcnt lgkmcnt(4)")
    qkm(0, 0); e("s_nop 10"); qkt(0, 0); e("s_nop 10")
    SYN = {1: 3, 4: 7, 10: 19}; SW = ENV('SW', '27')
    T_SI, T_SR, T_SA, T_PF, T_LC = 10, ENV('TSR', '16'), 26, ENV('TPF', '13'), 27
    hk = [0]
    def cond(test, fn):
        def g():
            hk[0] += 1; lab = f"{nm}_hk{hk[0]}"
            e(test); e(f"s_cbranch_scc0 {lab}"); fn(); k.label(lab)
        return g
    def prio1(): e("s_setprio 1")
    def pref():
        for _ in range(2): e(f"buffer_load_dwordx4 {vr(PF,4)}, v22, s[12:15], s43 offen {SC}"); e("s_add_u32 s43, s43, 1024")
    def side_issue():
        e("s_cmp_eq_u32 s4, 1"); e(f"s_cbranch_scc0 {nm}_i1")
        for i in range(8):
            e(f"s_add_u32 m0, s35, {1024*i}"); e(f"s_add_u32 s27, s5, {4*3840*i}")
            e(f"buffer_load_dwordx4 v{SIDE_SV}, s[88:91], s27 offen {os.environ.get('SNT', 'nt')} lds")
        e(f"s_branch {nm}_i2")
        k.label(f"{nm}_i1")
        for i in range(5):
            e(f"s_add_u32 m0, s35, {1024*i}"); e("s_nop 0")
            e(f"buffer_load_dwordx4 v{SIDE_SV+i}, s[88:91], s5 offen {os.environ.get('SNT', 'nt')} lds")
        k.label(f"{nm}_i2")
    def side_read():
        e("s_waitcnt vmcnt(0)")
        e("s_cmp_eq_u32 s4, 1"); e(f"s_cbranch_scc0 {nm}_r1")
        for F in range(8):
            for t in range(2): e(f"ds_read_b64_tr_b16 {vr(SIDE_D+4*F+2*t,2)}, v{144+F%4} offset:{4096*(F//4)+1024*t}")
        e(f"s_branch {nm}_r2")
        k.label(f"{nm}_r1")
        for nf in range(5):
            for t in range(2): e(f"ds_read_b64_tr_b16 {vr(SIDE_D+4*nf+2*t,2)}, v{144+t if nf < 4 else 146+t} offset:{64*(nf//2)+8*(nf%2) if nf < 4 else 0}")
        k.label(f"{nm}_r2")
    def side_done():
        e("s_waitcnt lgkmcnt(0)"); e(f"v_mov_b32 v{PV_+3}, {LW-8}"); e(f"v_mov_b32 v{PV_}, 1"); e("s_mov_b64 exec, 1")
        e(f"ds_add_u32 v{PV_+3}, v{PV_}"); e("s_mov_b64 exec, -1")
    UA = (SIDE_U, 212)
    def side_sum(q):
        def g():
            if q == 0:
                for r in range(4): e(f"v_mov_b32 v{228+r}, 0x3f803f80")
            for u in range(2):
                for x in range(2): e(f"v_mfma_f32_32x32x16_bf16 {vr(UA[x],16)}, v[228:231], {vr(SIDE_D+16*u+8*q+4*x,4)}, {vr(UA[x],16) if u else 0}")
        return g
    def side_sum2(q):
        def g():
            e("v_cmp_gt_u32 vcc, 32, v1"); e(f"v_cndmask_b32 v{232+q}, v{UA[1]}, v{UA[0]}, vcc")
            e(f"buffer_store_dword v{232+q}, v143, s[12:15], s38 offen offset:{256*q} {SC}")
        return g
    def side_store(F):
        return lambda: e(f"buffer_store_dwordx4 {vr(SIDE_D+4*F,4)}, v22, s[12:15], s{53 if F < 4 else 54 if F == 4 else 58} offen offset:{1024*(F%4)} {SC}")
    def side_arrive():
        e(f"v_mov_b32 v{PV_+1}, 0"); e(f"v_mov_b32 v{PV_}, 1"); e("s_waitcnt vmcnt(0)"); e("s_mov_b64 exec, 1")
        e(f"buffer_atomic_add v{PV_}, v{PV_+1}, s[12:15], s55 offen {SC}"); e("s_mov_b64 exec, -1")
    def touch():
        e("s_cmp_eq_u32 s3, 0"); e(f"s_cbranch_scc0 {nm}_t2")
        e("buffer_load_dword v235, v234, s[12:15], s59 offen"); e(f"s_branch {nm}_t3")
        k.label(f"{nm}_t2")
        if ENV('TOUT', '0'):
            e("s_mov_b64 exec, 0xfffff"); e("buffer_load_dword v235, v234, s[60:63], s50 offen"); e("s_mov_b64 exec, -1")
        k.label(f"{nm}_t3")
    def late():
        e("s_mov_b32 exec_lo, 0xffff7fff"); e("s_mov_b32 exec_hi, 0"); e(f"buffer_load_dword v135, v134, s[12:15], 0 offen {SC}"); e("s_mov_b64 exec, -1")
    def init_words(): lw_init(k); e(f"v_mov_b32 v{PV_+3}, {LW-8}"); e(f"ds_write_b32 v{PV_+3}, v{PV_}")
    side = "s_cmp_lg_u32 s4, 0"
    for t in range(32):
        if t in SYN: k.waitvm(f"i{SYN[t]}"); e("s_barrier")
        x0, x1 = [], []
        if rnd[0] < 20: x0 += [dma, dma]; x1 += [dma, dma]
        if t in (1, 4, 10): cond("s_cmp_ge_u32 s18, 4", prio1)()
        if t == 3: x0.append(lambda: e("s_setprio 0"))
        if t == 8: x1.append(lambda: e("s_setprio 0"))
        if t == 10:
            x0.append(cond("s_cmp_eq_u32 s18, 4", lambda: lw_init(k)))
            if os.environ.get("FOC") == "at": k.stamp(2)
        if t == SW + 1 and os.environ.get("FOC") == "at": k.stamp(0)
        if t == T_SI: x1.append(cond(side, side_issue))
        if t == T_SR: x1.append(cond(side, side_read))
        if t == T_SR + 1: x0.append(cond(side, lambda: e("s_waitcnt lgkmcnt(0)"))); x1.append(cond("s_cmp_eq_u32 s4, 1", side_sum(0)))
        if t == T_SR + 2: x0.append(cond("s_cmp_eq_u32 s4, 1", side_sum2(0))); x1.append(cond("s_cmp_eq_u32 s4, 1", side_sum(1)))
        if t == T_SR + 3: x0.append(cond("s_cmp_eq_u32 s4, 1", side_sum2(1)))
        if T_SR + 1 <= t < T_SR + 9: x1.append(cond(side, side_store(t - T_SR - 1)))
        if ENV('TCH', '6') and t == ENV('TCH', '6'): x0.append(cond("s_cmp_lt_u32 s18, 4", touch))
        if t == T_SA: x0.append(cond(side, side_arrive))
        if T_PF <= t < T_PF + ENV('NPF', '14') and ENV('PFW', '1'): x0.append(cond("s_cmp_lt_u32 s18, 4", pref))
        if t == T_LC: x1.append(cond("s_cmp_eq_u32 s18, 0", late))
        if t == SW: (x1 if ENV('SWX', '0') else x0).append(lambda: e("s_setprio 0"))
        unit(0, t, x0); unit(1, t, x1)
    pv(1, 1, 1); k.stamp(4)
    if os.environ.get("FOC") == "clk": k.rstamp(2)
    e("s_mov_b32 s30, 0")
    e(f"s_mov_b32 s32, {fbits(2.0**-60)}"); e(f"s_mov_b32 s33, {fbits(2.0**100)}"); e(f"s_mov_b32 s34, {fbits(2.0**126)}")
    k.label(f"{nm}_scrok")
    e("s_nop 7")
    for i in range(3): e(f"ds_write_b128 v132, {vr(O[1]+4*i,4)} offset:{1024*i}")
    e("s_waitcnt vmcnt(0)"); e("v_cmp_gt_u32 vcc, v131, v135"); e(f"s_cbranch_vccnz {nm}_late")
    k.label(f"{nm}_lok")
    e("s_waitcnt lgkmcnt(0)"); e("s_barrier")
    for i in (2, 0, 1): e(f"ds_read_b128 {vr(SS[0]+4*i,4)}, v133 offset:{1024*i}")
    OO = O[0]
    e("s_waitcnt lgkmcnt(2)")
    for r in range(8, 12): e(f"v_add_f32 v{OO+r}, v{OO+r}, v{SS[0]+r}")
    e("s_waitcnt lgkmcnt(0)")
    for r in range(8): e(f"v_add_f32 v{OO+r}, v{OO+r}, v{SS[0]+r}")
    k.label(f"{nm}_chk")
    e(f"v_mov_b32 v30, v{OO+8}"); e(f"v_mov_b32 v31, v{OO+8}")
    e(f"v_max3_f32 v28, abs(v{OO}), abs(v{OO+1}), abs(v{OO+2})")
    e("v_permlane32_swap_b32 v30, v31")
    for r in range(3, 11, 2): e(f"v_max3_f32 v28, abs(v{OO+r}), abs(v{OO+r+1}), v28")
    e(f"v_max_f32 v28, abs(v{OO+11}), v28")
    e("v_cmp_le_f32 vcc, s32, v31"); e("v_cmp_ge_f32 s[36:37], s33, v31"); e("v_cmp_gt_f32 s[40:41], s34, v28")
    e("v_rcp_f32 v31, v31")
    e("s_and_b64 s[36:37], s[36:37], vcc"); e("s_and_b64 s[36:37], s[36:37], s[40:41]")
    e("s_cmp_eq_u64 s[36:37], -1"); e(f"s_cbranch_scc0 {nm}_slow")
    def slowpath():
        k.label(f"{nm}_late")
        e("s_mov_b32 s49, 0")
        k.label(f"{nm}_late1")
        e("s_sleep 8"); late(); e("s_add_u32 s49, s49, 1"); e("s_waitcnt vmcnt(0)")
        e("v_cmp_gt_u32 vcc, v131, v135"); e("s_cmp_ge_u32 s49, 0x20000"); e(f"s_cbranch_scc1 {nm}_lok"); e(f"s_cbranch_vccnz {nm}_late1")
        e(f"s_branch {nm}_lok")
        k.label(f"{nm}_slow")
        e("s_cmp_eq_u32 s30, 0"); e(f"s_cbranch_scc0 {nm}_fin")
        e("s_mov_b32 s30, 1")
        e("s_waitcnt vmcnt(0)")
        NM = O[1]
        e("v_mov_b32 v32, 0xff800000")
        def slowqk(c):
            e(f"buffer_load_dwordx4 {vr(KF[0],4)}, v22, s[12:15], s27 offen {SC}")
            e(f"buffer_load_dwordx2 {vr(KF[0]+4,2)}, v23, s[12:15], s27 offen offset:1024 {SC}")
            e("s_waitcnt vmcnt(0)")
            e(f"v_mfma_f32_32x32x16_bf16 {vr(SS[0],16)}, {vr(KF[0],4)}, {vr(Q[0],4)}, {c}"); e("s_nop 10")
            e(f"v_mfma_f32_32x32x8_bf16 {vr(SS[0],16)}, {vr(KF[0]+4,2)}, {vr(Q[0]+4,2)}, {vr(SS[0],16)}"); e("s_nop 12")
        e(f"s_add_u32 s27, s19, {KVIMG}"); e("s_mov_b32 s31, 0")
        k.label(f"{nm}_mx")
        slowqk("0")
        for r in range(0, 16, 2): e(f"v_max3_f32 v32, v{SS[0]+r}, v{SS[0]+r+1}, v32")
        e("s_add_u32 s27, s27, 2560")
        e("s_add_u32 s31, s31, 1"); e("s_cmp_lt_u32 s31, 64"); e(f"s_cbranch_scc1 {nm}_mx")
        k.allred32("v_max_f32", 32, 33)
        e("v_xor_b32 v32, 0x80000000, v32")
        for r in range(16): e(f"v_mov_b32 v{NM+r}, v32")
        for r in range(16): e(f"v_mov_b32 v{OO+r}, 0")
        for r in range(8): e(f"v_mov_b32 v{VF[0]+r}, v20")
        e(f"s_add_u32 s27, s19, {KVIMG}"); e("s_mov_b32 s31, 0")
        k.label(f"{nm}_sl")
        e("s_mov_b64 exec, s[28:29]")
        e(f"buffer_load_dwordx4 {vr(VF[0],4)}, v21, s[12:15], s27 offen {SC}")
        e(f"buffer_load_dwordx4 {vr(VF[0]+4,4)}, v21, s[12:15], s27 offen offset:640 {SC}")
        e("s_mov_b64 exec, -1")
        slowqk(vr(NM,16))
        for i in range(16): e(f"v_exp_f32 v{SS[0]+i}, v{SS[0]+i}")
        e("s_nop 0")
        for i in range(8): e(f"v_cvt_pk_bf16_f32 v{P+i}, v{SS[0]+2*i}, v{SS[0]+2*i+1}")
        e("s_nop 1")
        pv(0, 0, 0); pv(0, 0, 1)
        e("s_add_u32 s27, s27, 2560")
        e("s_add_u32 s31, s31, 1"); e("s_cmp_lt_u32 s31, 64"); e(f"s_cbranch_scc1 {nm}_sl")
        e("s_nop 12"); e(f"s_branch {nm}_chk")
    k.tail = slowpath
    k.label(f"{nm}_fin")
    e("s_nop 0")
    for r in range(12): e(f"v_mul_f32 v{OO+r}, v{OO+r}, v31")
    for r in range(6): e(f"v_cvt_pk_bf16_f32 v{P+r}, v{OO+2*r}, v{OO+2*r+1}")
    e(f"buffer_store_dwordx4 {vr(P,4)}, v39, s[12:15], s51 offen {SC}")
    e("s_mov_b32 exec_hi, 0")
    e(f"buffer_store_dwordx2 {vr(P+4,2)}, v38, s[12:15], s52 offen {SC}")
    e("s_mov_b64 exec, -1")
    k.stamp(5)
    e("v_lshlrev_b32 v3, 4, v1")
    k.vm = []; k.lg = []

def proj_c(k, tag, src, xin, xout, stout, last, cnt_code, word, st0):
    final = False
    e = k.e
    ACC, RESID, A, BF = 24, 44, 76, 156
    NA0 = ENV('PA0', '8')
    ids_rt(k)
    e("s_lshl_b32 s19, s16, 2"); e("s_add_u32 s19, s19, s39")
    e("s_mul_i32 s24, s19, 20480")
    e("s_lshr_b32 s33, s17, 1"); e("s_mul_i32 s33, s33, 5120"); e("s_add_u32 s33, s33, s24")
    e("s_and_b32 s34, s17, 1"); e("s_mul_i32 s35, s34, 3072"); e("s_add_u32 s35, s35, s33")
    e("s_lshl_b32 s36, s34, 9"); e("s_add_u32 s36, s36, s33"); e("s_add_u32 s36, s36, 2048")
    e(f"s_add_u32 s37, s35, {xin}"); e(f"s_add_u32 s38, s36, {xin}")
    e("v_lshrrev_b32 v13, 5, v1"); e("v_lshlrev_b32 v13, 8, v13"); e("v_and_b32 v14, 15, v1"); e("v_lshl_add_u32 v13, v14, 4, v13")
    e("v_bfe_u32 v14, v1, 4, 1"); e("v_lshl_add_u32 v13, v14, 3, v13")
    k.vmop(f"buffer_load_dwordx4 {vr(RESID,4)}, v3, {RS_(xin)}, s37 offen {SC}", "r")
    k.vmop(f"buffer_load_dwordx4 {vr(RESID+4,4)}, v3, {RS_(xin)}, s37 offen offset:1024 {SC}", "r")
    k.vmop(f"buffer_load_dwordx2 {vr(RESID+8,2)}, v13, {RS_(xin)}, s38 offen {SC}", "r")
    e(f"s_add_u32 s24, s24, {src}")
    for i in range(1, 5): e(f"s_add_u32 s{24+i}, s24, {4096*i}")
    e("v_lshrrev_b32 v9, 4, v1"); e("v_add_u32 v12, 61440, v3")
    wait_go(k, tag, word, cnt_code)
    k.stamp(st0)
    def ldA(n): k.vmop(f"buffer_load_dwordx4 {vr(A+4*n,4)}, v3, s[12:15], s{24+n//4} offen offset:{(n%4)*1024} {SC}", f"a{n}")
    for n in range(NA0): ldA(n)
    k.waitvm("r")
    for i in range(10):
        e(f"v_lshlrev_b32 v{ACC+2*i}, 16, v{RESID+i}"); e(f"v_and_b32 v{ACC+2*i+1}, 0xffff0000, v{RESID+i}")
    def rd(n, nf):
        off = n*5120 + nf*1024; b = 3
        if n >= 12: off -= 61440; b = 12
        k.dsop(f"ds_read_b128 {vr(BF+20*(n%2)+4*nf,4)}, v{b} offset:{off}", f"b{n}_{nf}")
    e("s_barrier")
    for n in range(2):
        for nf in range(5): rd(n, nf)
    for n in range(20):
        if n < 2 or n % 2 == 0: k.waitvm(f"a{min(n + (n >= 2), 19)}")
        if n == 0: k.stamp(st0+1)
        for nf in range(5):
            if ENV('PW1', '1'):
                if nf == 0: k.waitlg(f"b{n}_4")
            elif nf in (0, 2, 4): k.waitlg(f"b{n}_{min(nf+1,4)}")
            if n == 12 and nf == 0 and not final: e("s_barrier")
            e(f"v_mfma_f32_16x16x32_bf16 {vr(ACC+4*nf,4)}, {vr(BF+20*(n%2)+4*nf,4)}, {vr(A+4*n,4)}, {vr(ACC+4*nf,4)}")
            if n + 2 < 20: rd(n+2, nf)
            if nf == 0 and n + NA0 < 20: ldA(n + NA0)
    e("s_barrier")
    if last:
        e("s_cmp_eq_u32 s3, 0"); e(f"s_cbranch_scc1 {k.name}_nf")
        e("v_and_b32 v16, 15, v1"); e("v_mul_u32_u24 v16, 1280, v16"); e("v_lshl_add_u32 v17, v9, 3, v16"); e("v_lshl_add_u32 v16, v9, 4, v16")
        e("s_mul_i32 s32, s19, 20480"); e("s_mul_i32 s31, s17, 160"); e("s_add_u32 s32, s32, s31")
        e("s_lshl_b32 s31, s34, 5"); e("s_add_u32 s33, s32, s31"); e("s_xor_b32 s31, s34, 1"); e("s_lshl_b32 s31, s31, 7"); e("s_add_u32 s32, s32, s31")
        FSC = os.environ.get("FSC", "")
        for i in range(10): e(f"v_cvt_pk_bf16_f32 v{RESID+i}, v{ACC+2*i}, v{ACC+2*i+1}")
        e(f"buffer_store_dwordx4 {vr(RESID,4)}, v16, s[60:63], s33 offen {FSC}")
        e(f"buffer_store_dwordx4 {vr(RESID+4,4)}, v16, s[60:63], s33 offen offset:64 {FSC}")
        e(f"buffer_store_dwordx2 {vr(RESID+8,2)}, v17, s[60:63], s32 offen {FSC}")
        k.stamp(st0+2)
        if STAMP: e("s_waitcnt vmcnt(0)")
        k.dump(15, "2")
        e("s_endpgm")
        k.label(f"{k.name}_nf")
    if True:
        e(f"s_add_u32 s37, s35, {xout}"); e(f"s_add_u32 s38, s36, {xout}")
        e("s_lshl_b32 s32, s19, 10"); e("s_lshl_b32 s33, s17, 7"); e("s_add_u32 s32, s32, s33"); e(f"s_add_u32 s32, s32, {stout}")
        e("v_lshlrev_b32 v16, 3, v1")
        for i in range(10): e(f"v_cvt_pk_bf16_f32 v{RESID+i}, v{ACC+2*i}, v{ACC+2*i+1}")
        e(f"buffer_store_dwordx4 {vr(RESID,4)}, v3, {RS_(xout)}, s37 offen {SC}")
        e(f"buffer_store_dwordx4 {vr(RESID+4,4)}, v3, {RS_(xout)}, s37 offen offset:1024 {SC}")
        e(f"buffer_store_dwordx2 {vr(RESID+8,2)}, v13, {RS_(xout)}, s38 offen {SC}")
        e(f"v_add_f32 v18, v{ACC}, v{ACC+1}"); e(f"v_mul_f32 v19, v{ACC}, v{ACC}"); e(f"v_add_f32 v20, v{ACC+2}, v{ACC+3}"); e(f"v_mul_f32 v21, v{ACC+1}, v{ACC+1}")
        e(f"v_fmac_f32 v19, v{ACC+2}, v{ACC+2}"); e(f"v_fmac_f32 v21, v{ACC+3}, v{ACC+3}")
        for i in range(4, 20, 2):
            e(f"v_add_f32 v18, v18, v{ACC+i}"); e(f"v_fmac_f32 v19, v{ACC+i}, v{ACC+i}")
            e(f"v_add_f32 v20, v20, v{ACC+i+1}"); e(f"v_fmac_f32 v21, v{ACC+i+1}, v{ACC+i+1}")
        e("v_add_f32 v18, v18, v20"); e("v_add_f32 v19, v19, v21")
        for sw in ("v_permlane16_swap_b32", "v_permlane32_swap_b32"):
            e("v_mov_b32 v20, v18"); e("v_mov_b32 v21, v19"); e("s_nop 0")
            e(f"{sw} v18, v20"); e(f"{sw} v19, v21"); e("s_nop 0")
            e("v_add_f32 v18, v18, v20"); e("v_add_f32 v19, v19, v21")
        e("s_mov_b64 exec, 0xffff")
        e(f"buffer_store_dwordx2 v[18:19], v16, {RS_(xout)}, s32 offen {SC}")
    k.stamp(st0+2)

def proj_l(k, wimg, nxt, src, sig=None, done=0, last=False):
    e = k.e
    if nxt is not None:
        ids_mt(k)
        e("s_min_u32 s17, s17, 14" if nxt == WA_I else "s_nop 0")
        e("s_mul_i32 s58, s17, 163840"); e("s_add_u32 s58, s58, s45"); e(f"s_add_u32 s58, s58, {nxt}")
    ids_rt(k)
    e("s_mul_i32 s50, s17, 102400"); e("s_add_u32 s50, s50, s45"); e(f"s_add_u32 s50, s50, {wimg}")
    e("s_mul_i32 s51, s16, 81920"); e("s_lshl_b32 s52, s17, 2"); e("s_add_u32 s52, s52, s39"); e("s_mul_i32 s52, s52, 2560"); e("s_add_u32 s51, s51, s52"); e(f"s_add_u32 s51, s51, {src}")
    e("v_min_u32 v21, 39, v1"); e("v_lshlrev_b32 v21, 6, v21")
    w = Wdma(k, 25, 50, "o"); k.vm = []
    T1, T2 = ENV('T1', '0'), ENV('T2', '3')
    if sig:
        signal(k, "s1l", 0, 8, sig)
        ub_prep(k, 0)
    if last: w.rng(0, 6); e("s_barrier"); done = 6
    w.rng(done, 25, T1 if sig else ENV('T4', '0'))
    w2 = Wdma(k, 40, 58)
    if last:
        e("s_cmp_eq_u32 s3, 0"); e(f"s_cbranch_scc1 {k.name}_nl")
        e("s_waitcnt vmcnt(0)"); e("s_barrier"); e("buffer_load_dword v20, v21, s[12:15], s51 offen"); e("s_endpgm")
        k.label(f"{k.name}_nl")
    if sig:
        w2.rng(25, 33, T1)
        e(f"v_mov_b32 v{PV_+3}, {LW}"); e("s_mov_b32 s49, 0")
        k.label(f"{k.name}_a8")
        e(f"ds_read_b32 v{PV_}, v{PV_+3}"); e("s_add_u32 s49, s49, 1"); e("s_waitcnt lgkmcnt(0)"); e(f"v_readfirstlane_b32 s44, v{PV_}")
        e("s_cmp_ge_u32 s49, 0x400000"); e("s_cselect_b32 s44, 8, s44"); e("s_cmp_lt_u32 s44, 8"); e(f"s_cbranch_scc1 {k.name}_a8")
    if nxt is not None: w2.rng(33 if sig else 32, 39, T1 if sig else ENV('T4', '0'))
    if sig: ub_prep(k, 1)
    if last and ENV('WPF', '0'):
        e("v_lshlrev_b32 v22, 7, v1"); e("s_and_b32 s32, s21, 1"); e("s_lshl_b32 s32, s32, 2"); e("s_add_u32 s32, s32, s39"); e("s_lshl_b32 s32, s32, 14")
        e("s_sub_u32 s33, s58, s45"); e("s_add_u32 s33, s33, s32")
        for i in range(2):
            k.vmop(f"buffer_load_dword v23, v22, s[12:15], s33 offen {SC}"); e("s_add_u32 s33, s33, 8192")
            if ENV('WPF', '0') == 2: e("s_waitcnt vmcnt(0)"); k.vm = []
    k.waitvm("o24")
    e("s_barrier")
    if ENV('ATOUCH', '1'):
        k.vmop("buffer_load_dword v20, v21, s[12:15], s51 offen")
    if nxt is not None:
        if not sig: w2.rng(25, 32)
        e("s_barrier")
        w2.rng(0, 15, ENV('T3', '0'))
        e("s_barrier")
        k.waitvm("w14")
        if ENV('LSL', '0'): e(f"s_sleep {ENV('LSL', '0')}")
        w2.rng(15, 25, T2)
    return w2

def stats16(k, s, rstd, mop, mask):
    e = k.e
    e(f"v_add_f32 v{s}, v{s}, v{s+2}"); e(f"v_add_f32 v{s+1}, v{s+1}, v{s+3}")
    k.allred16("v_add_f32", s, s+2); k.allred16("v_add_f32", s+1, s+3)
    k.allred32("v_add_f32", s, s+2); k.allred32("v_add_f32", s+1, s+3)
    stats_finish(k, s, s+1, s+2, rstd, s+3)
    split3(k, s+2, mop, 17, 'm', mask)
def usum(k, u, dst, t=17):
    e = k.e
    e(f"v_add_f32 v{u}, v{u}, v{u+1}"); e(f"v_add_f32 v{u+2}, v{u+2}, v{u+3}"); e(f"v_add_f32 v{u}, v{u}, v{u+2}")
    split3(k, u, dst, t, 'u')
def scale_pack(k, a, sc, dst):
    for r in range(4): k.e(f"v_mul_f32 v{a+r}, v{a+r}, v{sc(r)}")
    for r in range(2): k.e(f"v_cvt_pk_bf16_f32 v{dst+r}, v{a+2*r}, v{a+2*r+1}")
EX = 102400
SOFF = 2*8192 + 7296
UOFF = lambda F: (F//4)*8192 + 7168 + (F%4)*256 + 128
TOKF = (0, 1, 2, 3, 6); FEAF = (4, 5, 7)

UO = 3456
def ub_prep(k, part):
    e = k.e
    if part:
        k.waitvm("up")
        for j_ in range(5): e(f"v_add_f32 v{64+j_}, v{64+j_}, v{69+j_}")
        e("v_add_f32 v64, v64, v65"); e("v_add_f32 v66, v66, v67"); e("v_add_f32 v64, v64, v68"); e("v_add_f32 v64, v64, v66")
        k.allred32("v_add_f32", 64, 65); split3(k, 64, 28, 17, 'u')
        return
    e("v_lshrrev_b32 v6, 5, v1"); e("v_and_b32 v5, 31, v1"); e("s_lshr_b32 s30, s21, 1")
    e("v_mul_u32_u24 v12, 5120, v6"); e("v_lshl_add_u32 v12, v5, 2, v12")
    e("s_mul_i32 s30, s30, 10240"); e("s_lshl_b32 s31, s39, 7"); e("s_add_u32 s30, s30, s31"); e(f"s_add_u32 s30, s30, {U_B}"); e("s_add_u32 s31, s30, 2560")
    for j_ in range(10): k.vmop(f"buffer_load_dword v{64+j_}, v12, s[12:15], s{30+j_//5} offen offset:{512*(j_%5)}", "up")
    e("v_bfe_u32 v6, v1, 4, 1"); e("v_lshlrev_b32 v46, 9, v6"); e("v_and_b32 v5, 15, v1"); e("v_lshl_add_u32 v46, v5, 3, v46")
    e("s_lshl_b32 s30, s39, 12"); e("v_add_u32 v46, s30, v46")

def atouch_pre(k, xin):
    e = k.e
    e("s_mul_i32 s51, s16, 163840"); e("s_lshl_b32 s52, s17, 2"); e("s_add_u32 s52, s52, s39"); e("s_mul_i32 s52, s52, 2560"); e("s_add_u32 s51, s51, s52"); e(f"s_add_u32 s51, s51, {xin}")
    e("v_min_u32 v21, 39, v1"); e("v_lshlrev_b32 v21, 6, v21")

G_ACC, G_BF, G_AR, G_DA = 64, 128, 160, 5
def gemm32_pre(k, xin, stin):
    e = k.e
    e("v_and_b32 v10, 31, v1"); e("v_lshrrev_b32 v4, 5, v1"); e("v_and_b32 v5, 15, v1")
    e("s_lshl_b32 s19, s16, 2"); e("s_add_u32 s19, s19, s18")
    e("v_bfe_u32 v7, v1, 4, 1"); e("v_mul_u32_u24 v8, 20480, v7"); e("v_lshl_add_u32 v8, v4, 8, v8"); e("v_lshl_add_u32 v8, v5, 4, v8")
    e("v_lshlrev_b32 v11, 10, v7"); e("v_lshl_add_u32 v11, v4, 9, v11"); e("v_lshl_add_u32 v11, v5, 3, v11")
    e("s_lshl_b32 s30, s19, 11"); e(f"s_add_u32 s30, s30, {stin}")
    e("s_mul_i32 s24, s19, 40960"); e(f"s_add_u32 s24, s24, {xin}")
    e("v_add_u32 v41, 65536, v3"); e("v_add_u32 v42, 131072, v3")
    e("v_subrev_u32 v58, 1, v4"); e("v_not_b32 v59, v58")
def gemm32_loads(k, R):
    e = k.e
    def ldA(ks):
        if ks % 4 == 0 and ks > 0: e("s_add_u32 s24, s24, 4096")
        for u in range(2):
            k.vmop(f"buffer_load_dwordx4 {vr(G_AR+8*(ks%G_DA)+4*u,4)}, v8, {R}, s24 offen offset:{(ks%4)*1024+512*u} {SC}", f"a{ks}")
    ldA(0)
    for q in range(4): k.vmop(f"buffer_load_dwordx2 {vr(16+2*q,2)}, v11, {R}, s30 offen offset:{128*q} {SC}", "st")
    for ks in range(1, G_DA-1): ldA(ks)
    return ldA
def gemm32_stats(k):
    e = k.e
    k.waitvm("st")
    e("v_add_f32 v16, v16, v18"); e("v_add_f32 v17, v17, v19"); e("v_add_f32 v20, v20, v22"); e("v_add_f32 v21, v21, v23")
    e("v_add_f32 v16, v16, v20"); e("v_add_f32 v17, v17, v21")
    k.allred32("v_add_f32", 16, 18); k.allred32("v_add_f32", 17, 18)
    stats_finish(k, 16, 17, 46, 47, 18)
    split3(k, 46, 48, 18, 'm', 58)
def gemm32(k, vmode, fl, ldA, bars, st0, late=None):
    e = k.e; ACC, BF, AR, DA = G_ACC, G_BF, G_AR, G_DA
    acc = lambda jf: vr(ACC+16*jf, 16)
    def rd(ks, f):
        off = ks*8192 + 1024*f; hi = off >> 16
        k.dsop(f"ds_read_b128 {vr(BF+4*f,4)}, v{(3,41,42)[hi]} offset:{off & 0xffff}", f"b{ks}_{f}")
    e("s_barrier")
    for f in range(8): rd(0, f)
    for ks in range(20):
        k.waitvm(f"a{ks}")
        if ks == 0: k.stamp(st0+1)
        if ks in bars: e("s_barrier")
        if late and ks == late[0]: k.fill(fl, 1000); fl += late[1]
        for f in range(8):
            u, jf = f//4, f%4
            if f % 2 == 0: k.waitlg(f"b{ks}_{f+1}")
            a = vr(AR+8*(ks%DA)+4*u, 4); b = vr(BF+4*f, 4); c = acc(jf) if (ks or u) else "0"
            if vmode: e(f"v_mfma_f32_32x32x16_bf16 {acc(jf)}, {a}, {b}, {c}")
            else:     e(f"v_mfma_f32_32x32x16_bf16 {acc(jf)}, {b}, {a}, {c}")
            if ks + 1 < 20: rd(ks+1, f)
            if f == 0 and ks + DA - 1 < 20: ldA(ks + DA - 1)
            if ks >= 1: k.fill(fl, 2)
        if ks == 15:
            k.fill(fl, 1000)
            for jf in range(4):
                if vmode: e(f"v_mfma_f32_32x32x8_bf16 {acc(jf)}, v[48:49], {vr(50+2*jf,2)}, {acc(jf)}")
                else:     e(f"v_mfma_f32_32x32x8_bf16 {acc(jf)}, {vr(50+2*jf,2)}, v[48:49], {acc(jf)}")
    k.stamp(st0+2)

TB, TS = 88448, 296
def toff(G): return (0, 64, 128, 168, 208, 248)[G//5] + 8*(G%5)

def qkvb_c(k, xin, stin, st0):
    e = k.e; nm = k.name
    ACC, BF = G_ACC, G_BF
    ids_mt(k); gemm32_pre(k, xin, stin)
    e("v_lshrrev_b32 v6, 4, v1")
    MC, MP, MP1 = 200, 204, 208
    NEG = fbits(-1e30)
    e("v_lshlrev_b32 v17, 2, v6"); e("v_sub_u32 v17, v5, v17"); e(f"v_mov_b32 v19, {NEG}")
    for r in range(4):
        e(f"v_subrev_u32 v18, {r}, v17"); e("v_and_b32 v16, 0x80000001, v18")
        e("v_cmp_eq_u32 vcc, 0, v16"); e(f"v_cndmask_b32 v{MC+r}, v19, 0, vcc")
        e("v_cmp_eq_u32 vcc, 0x80000000, v16"); e(f"v_cndmask_b32 v{MP+r}, v19, 0, vcc")
    e("s_cmp_eq_u32 s19, 0"); e(f"s_cselect_b32 s34, {NEG}, 0")
    for r in range(4): e(f"v_add_f32 v{MP1+r}, s34, v{MP+r}")
    e(f"s_mul_i32 s35, s18, {32*TS}"); e(f"s_add_u32 s35, s35, {TB}")
    e(f"v_mul_u32_u24 v16, {TS}, v10"); e("v_add_u32 v16, s35, v16"); e(f"v_add_u32 v16, {16*TS}, v16")
    e("v_lshl_add_u32 v212, v4, 3, v16"); e("v_lshl_add_u32 v213, v4, 5, v16"); e("v_mov_b32 v219, v16")
    e("v_lshl_add_u32 v215, v4, 6, v16")
    e(f"v_mul_u32_u24 v16, {TS}, v5"); e("v_add_u32 v16, s35, v16"); e("v_lshl_add_u32 v216, v6, 4, v16")
    e("v_lshrrev_b32 v17, 2, v1"); e(f"v_mul_u32_u24 v16, {TS}, v17"); e("v_add_u32 v16, s35, v16"); e("v_and_b32 v17, 3, v1")
    e("v_lshl_add_u32 v217, v17, 3, v16")
    e("v_mul_u32_u24 v18, 40, v17"); e("v_add_u32 v18, 240, v18"); e("v_cmp_gt_u32 vcc, 2, v17"); e("v_mov_b32 v19, 288"); e("v_cndmask_b32 v18, v19, v18, vcc"); e("v_add_u32 v218, v16, v18")
    e("v_lshlrev_b32 v43, 9, v7"); e("v_lshl_add_u32 v43, v5, 3, v43")
    e("v_mov_b32 v220, 0"); e("v_mov_b32 v221, 0"); e("v_mov_b32 v222, 0x3f803f80"); e("v_mov_b32 v223, 0x3f803f80")
    e("s_mul_i32 s25, s19, 40960"); e(f"s_add_u32 s25, s25, {OBT}")
    e("s_lshl_b32 s51, s17, 10"); e("s_add_u32 s51, s51, s25"); e("s_add_u32 s52, s51, 20480")
    e("s_lshr_b32 s53, s17, 2"); e("s_add_u32 s53, s53, 16"); e("s_lshl_b32 s53, s53, 10"); e("s_add_u32 s53, s53, s25")
    e("s_and_b32 s54, s17, 1"); e("s_lshl_b32 s54, s54, 9"); e("s_add_u32 s53, s53, s54")
    e("s_bfe_u32 s54, s17, 0x10001"); e("s_lshl_b32 s54, s54, 3"); e("s_add_u32 s53, s53, s54"); e("s_add_u32 s54, s53, 20480")
    def c2():
        e("s_lshl_b32 s48, s16, 9"); e(f"s_add_u32 s48, s48, {C2}")
        e(f"v_lshlrev_b32 v{PV_+1}, 8, v1"); e(f"v_lshlrev_b32 v{PV_+2}, 3, v1"); e(f"v_sub_u32 v{PV_+2}, 16, v{PV_+2}")
        e("s_cmp_eq_u32 s16, 0"); e("s_cselect_b64 s[56:57], 1, 3")
    e("s_cmp_eq_u32 s18, 1"); e(f"s_cbranch_scc0 {nm}_ad"); e("v_lshlrev_b32 v16, 8, v1"); e("s_mov_b32 s49, 0")
    k.label(f"{nm}_ap")
    e(f"buffer_load_dword v17, v16, s[8:11], 0 offen offset:{C1} {SC}"); e("s_add_u32 s49, s49, 1"); e("s_waitcnt vmcnt(0)")
    e("v_cmp_gt_u32 vcc, 16, v17"); e("s_cmp_ge_u32 s49, 0x20000"); e(f"s_cbranch_scc1 {nm}_ad"); e(f"s_cbranch_vccnz {nm}_ap")
    k.label(f"{nm}_ad")
    wait_go(k, "p3", 1, c2)
    k.stamp(st0)
    ldA = gemm32_loads(k, RS_(xin))
    fl = k.capture(lambda: (gemm32_stats(k), e(f"v_mul_f32 v45, {fbits(CSCALE)}, v47")))
    def uops():
        for jf in range(4): k.dsop(f"ds_read_b64 {vr(50+2*jf,2)}, v43 offset:{UO+4096*jf}", "uo")
    gemm32(k, False, fl, ldA, {6, ENV('H1S', '16'), ENV('H2S', '18')}, st0, (8, k.capture(uops)))
    e("s_barrier")
    e("s_cmp_eq_u32 s18, 0"); e(f"s_cbranch_scc0 {nm}_ni"); lw_init(k); k.label(f"{nm}_ni")
    for q in range(3): e(f"ds_write_b64 v215, v[220:221] offset:{40+8*q}")
    e("ds_write_b64 v219, v[222:223] offset:288")
    for G in list(range(10, 30, 2)) + list(range(0, 10, 2)):
        a = ACC + 2*G; d = BF + G
        for r in range(4): e(f"v_mul_f32 v{a+r}, v{a+r}, v{45 if G < 10 else 47}")
        for r in range(2): e(f"v_cvt_pk_bf16_f32 v{d+r}, v{a+2*r}, v{a+2*r+1}")
        e(f"ds_write_b64 v{ {8: 212, 32: 213}[toff(G+1) - toff(G)] }, {vr(d,2)} offset:{toff(G)}")
    e("s_waitcnt lgkmcnt(0)"); e("s_barrier")
    KO = lambda b, h: 160 + 8*b + 4*h
    QO = lambda b, h: 184 + 8*(b-1) + 4*h
    VO = lambda F, b: 20 + 8*FEAF.index(F) + 2*b if False else 224 + 6*FEAF.index(F) + 2*b - (0)
    VO = lambda F, b: (128, 136, 144)[FEAF.index(F)] + 2*b
    for b in (1, 2):
        for h in range(2):
            for x in range(2): e(f"ds_read_b64 {vr(QO(b,h)+2*x,2)}, v216 offset:{16*b*TS+64*h+8*x}")
    for b in range(3):
        for h in range(2):
            for x in range(2): e(f"ds_read_b64 {vr(KO(b,h)+2*x,2)}, v216 offset:{16*b*TS+128+40*h+8*x}")
    e("s_waitcnt lgkmcnt(0)")
    for b in range(3):
        for h in range(2): e(f"ds_read_b64_tr_b16 {vr(VO(4+h,b),2)}, v217 offset:{16*b*TS+208+40*h}")
        e(f"ds_read_b64_tr_b16 {vr(VO(7,b),2)}, v218 offset:{16*b*TS}")
    units = [(b, h) for b in (1, 2) for h in range(2)]
    SU = lambda i: 64 + 8*i
    TU = lambda i: ACC + 32 + 4*i
    PU = lambda i: ACC + 48 + 4*i
    OU = lambda i: 64 + 8*i
    for i, (b, h) in enumerate(units):
        e(f"v_mfma_f32_16x16x32_bf16 {vr(SU(i),4)}, {vr(KO(b-1,h),4)}, {vr(QO(b,h),4)}, {vr(MP1 if b == 1 else MP,4)}")
        e(f"v_mfma_f32_16x16x32_bf16 {vr(SU(i)+4,4)}, {vr(KO(b,h),4)}, {vr(QO(b,h),4)}, {vr(MC,4)}")
    e("s_waitcnt lgkmcnt(0)"); e("s_barrier")
    def allred(op):
        for sw in ("v_permlane16_swap_b32", "v_permlane32_swap_b32"):
            for i in range(4): e(f"v_mov_b32 v{TU(i)+1}, v{TU(i)}")
            for i in range(4): e(f"{sw} v{TU(i)}, v{TU(i)+1}")
            for i in range(4): e(f"{op} v{TU(i)}, v{TU(i)}, v{TU(i)+1}")
    for i in range(4):
        s = SU(i)
        e(f"v_max3_f32 v{TU(i)}, v{s}, v{s+1}, v{s+2}"); e(f"v_max3_f32 v{TU(i)}, v{s+3}, v{s+4}, v{TU(i)}")
        e(f"v_max3_f32 v{TU(i)}, v{s+5}, v{s+6}, v{TU(i)}"); e(f"v_max_f32 v{TU(i)}, v{s+7}, v{TU(i)}")
    allred("v_max_f32")
    for i in range(4):
        for r in range(8): e(f"v_sub_f32 v{SU(i)+r}, v{SU(i)+r}, v{TU(i)}")
    for i in range(4):
        for r in range(8): e(f"v_exp_f32 v{SU(i)+r}, v{SU(i)+r}")
    for i in range(4):
        for r in range(4): e(f"v_cvt_pk_bf16_f32 v{PU(i)+r}, v{SU(i)+2*r}, v{SU(i)+2*r+1}")
    for i, (b, h) in enumerate(units):
        e(f"v_mfma_f32_16x16x32_bf16 {vr(OU(i)+4,4)}, {vr(VO(7,b-1),4)}, {vr(PU(i),4)}, 0")
    for i, (b, h) in enumerate(units):
        e(f"v_mfma_f32_16x16x32_bf16 {vr(OU(i),4)}, {vr(VO(4+h,b-1),4)}, {vr(PU(i),4)}, 0")
    for i in range(4): e(f"v_mov_b32 v{TU(i)}, v{OU(i)+4}"); e(f"v_mov_b32 v{TU(i)+1}, v{OU(i)+4}")
    for i in range(4): e(f"v_permlane32_swap_b32 v{TU(i)}, v{TU(i)+1}")
    for i in range(4): e(f"v_rcp_f32 v{TU(i)+1}, v{TU(i)+1}")
    e("v_cmp_eq_u32 vcc, 0, v6")
    for bi in range(2):
        o0, o1 = OU(2*bi), OU(2*bi+1); d = 40 + 8*bi; t0, t1 = TU(2*bi)+1, TU(2*bi+1)+1
        for r in range(4): e(f"v_mul_f32 v{o0+r}, v{o0+r}, v{t0}"); e(f"v_mul_f32 v{o1+r}, v{o1+r}, v{t1}")
        e(f"v_cvt_pk_bf16_f32 v{d}, v{o0}, v{o0+1}"); e(f"v_cvt_pk_bf16_f32 v{d+1}, v{o0+2}, v{o0+3}")
        e(f"v_cvt_pk_bf16_f32 v{d+2}, v{o1}, v{o1+1}"); e(f"v_cvt_pk_bf16_f32 v{d+3}, v{o1+2}, v{o1+3}")
        e(f"buffer_store_dwordx4 {vr(d,4)}, v3, s[12:15], s{51+bi} offen {SC}")
        e(f"v_cndmask_b32 v{t0}, v{t1}, v{t0}, vcc")
        for r in range(4): e(f"v_cndmask_b32 v{o0+4+r}, v{o1+4+r}, v{o0+4+r}, vcc")
        for r in range(4): e(f"v_mul_f32 v{o0+4+r}, v{o0+4+r}, v{t0}")
        e(f"v_cvt_pk_bf16_f32 v{d+4}, v{o0+4}, v{o0+5}"); e(f"v_cvt_pk_bf16_f32 v{d+5}, v{o0+6}, v{o0+7}")
    e("s_mov_b32 exec_hi, 0")
    for bi in range(2): e(f"buffer_store_dwordx2 {vr(44+8*bi,2)}, v3, s[12:15], s{53+bi} offen {SC}")

def qkvb_l(k, xin, stin, w):
    e = k.e; nm = k.name
    ids_mt(k)
    e("v_and_b32 v5, 15, v1"); e("v_lshrrev_b32 v6, 4, v1")
    e("v_lshlrev_b32 v11, 3, v5"); e("v_lshl_add_u32 v11, v6, 8, v11")
    e("v_cmp_eq_u32 vcc, 0, v6"); e("s_lshl_b32 s22, s16, 3"); e("s_max_u32 s22, s22, 1"); e("v_cndmask_b32 v4, 0, -1, vcc")
    e("s_sub_u32 s22, s22, 1")
    e("s_mul_i32 s24, s22, 20480"); e(f"s_add_u32 s24, s24, {xin}"); e("s_add_u32 s24, s24, s45")
    e("s_lshl_b32 s27, s22, 10"); e(f"s_add_u32 s27, s27, {stin}")
    HP = 49152
    e("v_lshrrev_b32 v12, 1, v6"); e("v_lshlrev_b32 v40, 12, v12"); e("v_and_b32 v12, 1, v6"); e("v_lshl_add_u32 v40, v12, 9, v40"); e("v_lshl_add_u32 v40, v5, 4, v40")
    e("s_lshl_b32 s32, s39, 13"); e("v_add_u32 v40, s32, v40"); e("v_add_u32 v41, 65536, v40"); e("v_add_u32 v42, 131072, v40")
    e("s_mul_i32 s33, s39, 6144"); e(f"s_add_u32 s33, s33, {HP}"); e("v_add_u32 v43, s33, v3")
    e("s_min_u32 s40, s39, 2"); e("s_lshl_b32 s41, s40, 11"); e(f"s_add_u32 s41, s41, {HP}"); e("v_add_u32 v44, s41, v3")
    e("s_lshl_b32 s41, s40, 12"); e("v_lshlrev_b32 v45, 3, v5"); e("v_add_u32 v45, s41, v45")
    e(f"v_mul_u32_u24 v12, {TS}, v5"); e(f"v_add_u32 v12, {TB}, v12"); e("s_lshl_b32 s41, s40, 3"); e("s_sub_u32 s41, s41, 2")
    for x in range(2):
        e(f"v_add_u32 v13, s41, v6")
        if x: e("v_add_u32 v13, 4, v13")
        e("v_add_u32 v14, 16, v13")
        e("v_cmp_gt_u32 vcc, 20, v13"); e("v_cndmask_b32 v14, 0, v14, vcc"); e(f"v_lshl_add_u32 v{50+x}, v14, 3, v12")
    e("v_mov_b32 v47, v12"); e("v_mov_b32 v56, 0x3f803f80"); e("v_mov_b32 v57, 0x3f803f80")
    atouch_pre(k, xin)
    e(f"s_setprio {ENV('P3PRIO', '0')}")
    e("s_barrier")
    if ENV('ATOUCH', '1'): k.vmop("buffer_load_dword v20, v21, s[12:15], s51 offen")
    w.one(39)
    e(f"ds_write_b64 v46, v[28:29] offset:{UO}")
    for q_ in range(2): k.vmop(f"buffer_load_dwordx2 {vr(24+2*q_,2)}, v11, s[12:15], s27 offen offset:{128*q_} {SC}", "st")
    for i in range(5):
        k.vmop(f"buffer_load_dwordx4 {vr(128+4*i,4)}, v3, s[12:15], s24 offen {SC}", f"h{i}")
        if i < 4: e("s_add_u32 s24, s24, 4096")
    k.waitvm("st")
    stats16(k, 24, 48, 52, 4)
    e("s_waitcnt lgkmcnt(0)"); e("s_barrier")
    def rd(n):
        i, j = n // 6, 2 + n % 6
        k.dsop(f"ds_read_b128 {vr(96+4*(n%6),4)}, v{40+i//2} offset:{(i%2)*32768+1024*(j//2)+256*(j%2)}", f"r{n}")
    for n in range(6): rd(n)
    for x in range(2): k.dsop(f"ds_read_b64 {vr(20+2*x,2)}, v45 offset:{UO+4096+512*x}", "u")
    for n in range(30):
        i = n // 6
        if n % 6 == 0: k.waitvm(f"h{i}")
        k.waitlg(f"r{n}")
        c = vr(148+4*(n%6), 4)
        e(f"v_mfma_f32_16x16x32_bf16 {c}, {vr(96+4*(n%6),4)}, {vr(128+4*i,4)}, {c if i else 0}")
        if n + 6 < 30: rd(n + 6)
    e("s_barrier")
    for n in range(6): e(f"ds_write_b128 v43, {vr(148+4*n,4)} offset:{1024*n}")
    e("s_waitcnt lgkmcnt(0)"); e("s_barrier")
    for p_ in range(4):
        for x in range(2): e(f"ds_read_b128 {vr(96+8*p_+4*x,4)}, v44 offset:{6144*p_+1024*x}")
    e("s_waitcnt lgkmcnt(0)")
    for r in range(8):
        e(f"v_add_f32 v{96+r}, v{96+r}, v{104+r}"); e(f"v_add_f32 v{112+r}, v{112+r}, v{120+r}"); e(f"v_add_f32 v{80+r}, v{96+r}, v{112+r}")
    for x in range(2): e(f"v_mfma_f32_16x16x16_bf16 {vr(80+4*x,4)}, {vr(20+2*x,2)}, v[52:53], {vr(80+4*x,4)}")
    for x in range(2): scale_pack(k, 80+4*x, lambda r: 48, 88+2*x)
    e("s_barrier")
    for x in range(2): e(f"ds_write_b64 v{50+x}, {vr(88+2*x,2)}")
    e("ds_write_b64 v47, v[56:57] offset:288")
    e(f"s_setprio {ENV('LPRIO', '2')}")
    e("s_waitcnt lgkmcnt(0)"); e("s_barrier")
    k.vm = []; k.lg = []

def one(k, target):
    k.e(f"v_mov_b32 v{PV_+1}, 0"); k.e(f"v_mov_b32 v{PV_+2}, {target}"); k.e("s_mov_b64 s[56:57], 1")

def kvpos(k):
    k.e("s_and_b32 s36, s19, 31"); k.e("s_lshl_b32 s36, s36, 1"); k.e("s_lshr_b32 s34, s19, 5"); k.e("s_add_u32 s36, s36, s34")
    k.e("s_add_u32 s36, s36, 44"); k.e("s_and_b32 s36, s36, 63")
def addr_v(k, img):
    e = k.e
    e("s_sub_u32 s35, s17, 10"); e("s_lshl_b32 s35, s35, 7")
    kvpos(k); e("s_mul_i32 s36, s36, 2560"); e(f"s_add_u32 s33, s36, {img+KVIMG+1280}")
    e("v_mul_u32_u24 v20, 320, v4")
    for jf in range(4):
        e(f"v_add_u32 v16, s35, v10")
        if jf: e(f"v_add_u32 v16, {32*jf}, v16")
        e("v_mul_u32_u24 v17, 52429, v16"); e("v_lshrrev_b32 v17, 20, v17")
        e("v_mul_u32_u24 v18, 20, v17"); e("v_sub_u32 v18, v16, v18")
        e("v_mul_u32_u24 v17, 163840, v17"); e("v_lshl_add_u32 v17, v18, 4, v17")
        e(f"v_add_u32 v{24+jf}, v17, v20")
def addr_qk(k, img, xm=52):
    e = k.e; k.xm = xm
    e("s_cmp_ge_u32 s17, 5")
    e(f"s_cselect_b32 s33, {QI}, 0"); e(f"s_cselect_b32 s59, 1.0, {fbits(CSCALE)}"); e("s_cselect_b32 s35, 5, 0"); e("s_cselect_b32 s37, 1, 0")
    e(f"s_add_u32 s33, s33, {img+QIMG}")
    e("s_sub_u32 s35, s17, s35")
    kvpos(k); e("s_cmp_eq_u32 s37, 0"); e("s_cselect_b32 s36, s19, s36")
    e("s_mul_i32 s36, s36, 1280"); e("s_lshl_b32 s36, s36, s37"); e("s_add_u32 s33, s33, s36")
    e("s_lshl_b32 s34, 81920, s37")
    e("v_lshlrev_b32 v16, 4, v10"); e("v_lshlrev_b32 v17, 3, v10")
    e("v_lshl_add_u32 v18, v4, 9, v16")
    e("s_sub_u32 s36, s34, 512"); e("v_and_b32 v19, s36, v59"); e("v_add_u32 v19, v19, v16")
    e(f"s_mov_b32 s{xm}, -1"); e(f"s_mov_b32 s{xm+1}, 0"); e(f"s_mov_b32 s{xm+2}, 0"); e(f"s_mov_b32 s{xm+3}, -1")
def epi_qk(k, ACC, BF):
    e = k.e; nm = k.name + k.ptag
    for v in range(1, 5):
        e(f"s_cmp_eq_u32 s35, {v}"); e(f"s_cbranch_scc1 {nm}_e{v}")
    QSC = os.environ.get("QSC", "sc1")
    for v in range(5):
        if v: k.label(f"{nm}_e{v}")
        e("s_nop 7")
        for jf in range(4):
            for r in range(16): e(f"v_mul_f32 v{ACC+16*jf+r}, v{ACC+16*jf+r}, v47")
            for r in range(8): e(f"v_cvt_pk_bf16_f32 v{BF+8*jf+r}, v{ACC+16*jf+2*r}, v{ACC+16*jf+2*r+1}")
            for a2 in range(2):
                x = BF+8*jf+4*a2
                e(f"v_permlane32_swap_b32 v{x}, v{x+2}"); e(f"v_permlane32_swap_b32 v{x+1}, v{x+3}")
            for a2 in range(2):
                x = BF+8*jf+4*a2
                G = [32*v+8*jf+4*a2, 32*v+8*jf+4*a2+2]
                def main(g):
                    h = g // 5; r = g % 5
                    return h, (r // 2 if h % 2 == 0 else (r - 1) // 2)
                st = [g % 10 == 4 for g in G]
                def hoff(dst, h, c):
                    if h: e(f"s_mul_i32 s{dst}, s34, {h}"); e(f"s_add_u32 s{dst}, s{dst}, s33")
                    else: e(f"s_mov_b32 s{dst}, s33")
                    if c: e(f"s_add_u32 s{dst}, s{dst}, {c}")
                if not any(st):
                    (h0, p0), (h1, p1) = main(G[0]), main(G[1])
                    hoff(36, h0, 512*p0)
                    if h0 == h1: e(f"buffer_store_dwordx4 {vr(x,4)}, v18, {k.srdo}, s36 offen {QSC}")
                    else:        e(f"buffer_store_dwordx4 {vr(x,4)}, v19, {k.srdo}, s36 offen {QSC}")
                    assert (h0 == h1 and (p0, p1) == (0, 1)) or (h1 == h0 + 1 and (p0, p1) == (1, 0))
                else:
                    m = st.index(False); q = 1 - m
                    h, p = main(G[m]); hoff(36, h, 512*p); hoff(37, G[q] // 5, 1024); e("s_add_u32 s38, s37, s34")
                    e(f"s_mov_b64 exec, s[{k.xm+2*m}:{k.xm+1+2*m}]")
                    e(f"buffer_store_dwordx4 {vr(x,4)}, v16, {k.srdo}, s36 offen {QSC}")
                    e(f"s_mov_b64 exec, s[{k.xm+2*q}:{k.xm+1+2*q}]")
                    e(f"buffer_store_dwordx2 {vr(x,2)}, v17, {k.srdo}, s37 offen {QSC}")
                    e(f"buffer_store_dwordx2 {vr(x+2,2)}, v17, {k.srdo}, s38 offen {QSC}")
                    e("s_mov_b64 exec, -1")
        e(f"s_branch {nm}_fin5")
def epi_v(k, ACC, BF, RS):
    e = k.e
    VSC = os.environ.get("VSC", "sc1")
    for jf in range(4):
        for r in range(16): e(f"v_mul_f32 v{ACC+16*jf+r}, v{ACC+16*jf+r}, v{RS+r}")
        for r in range(8): e(f"v_cvt_pk_bf16_f32 v{BF+8*jf+r}, v{ACC+16*jf+2*r}, v{ACC+16*jf+2*r+1}")
        for u in range(2):
            e(f"buffer_store_dwordx4 {vr(BF+8*jf+4*u,4)}, v{24+jf}, {k.srdo}, s33 offen offset:{640*u} {VSC}")

def qkva_c(k, xin, stin, img, cnt, wbar, st0):
    k.ptag = '_p5'; k.srdo = 's[12:15]'
    e = k.e; nm = k.name + k.ptag
    DA = 5
    ACC, BF, AR, RS = 64, 128, 160, 200
    gemm32_pre(k, xin, stin)
    e("v_lshlrev_b32 v12, 4, v10")
    e("s_lshl_b32 s31, s17, 11"); e(f"s_add_u32 s31, s31, {U_A}")
    for jf in range(4): k.vmop(f"buffer_load_dwordx4 {vr(24+4*jf,4)}, v12, s[12:15], s31 offen offset:{512*jf}", "u")
    def c4(): one(k, 16); e("s_lshl_b32 s48, s16, 8"); e(f"s_add_u32 s48, s48, {cnt}")
    wait_go(k, "p5", 1, c4)
    k.stamp(st0)
    ldA = gemm32_loads(k, RS_(xin))
    def prolog(vmode):
        gemm32_stats(k)
        for jf in range(4): usum(k, 24+4*jf, 50+2*jf, 18)
        if vmode:
            e("v_lshlrev_b32 v16, 4, v4")
            for r in range(16):
                e(f"v_add_u32 v17, {(8*(r//4) + r%4)*4}, v16")
                k.dsop(f"ds_bpermute_b32 v{RS+r}, v17, v47", "rs")
            addr_v(k, img)
        else:
            addr_qk(k, img); e("v_mul_f32 v47, s59, v47")
    e("s_cmp_ge_u32 s17, 10"); e(f"s_cbranch_scc1 {nm}_qv")
    vm_save = list(k.vm)
    def mainloop(vmode):
        gemm32(k, vmode, k.capture(lambda: prolog(vmode)), ldA, {w_ - 1 for w_ in wbar}, st0)
        e("s_barrier")
    mainloop(False)
    epi_qk(k, ACC, BF)
    k.label(f"{nm}_qv"); k.vm = vm_save; k.lg = []
    mainloop(True)
    epi_v(k, ACC, BF, RS)
    k.label(f"{nm}_fin5")

def ph_front(k):
    k.ptag = "_f"; k.srdo = "s[12:15]"
    e = k.e; nm = k.name + k.ptag; kn = k.name
    R, DEP, SCRB, UT = 4, 2, 131072, 65536
    need = lambda ks: ks // 2
    slot = lambda st: (st % R) * 32768
    e("s_cmp_ge_u32 s2, 256"); e(f"s_cbranch_scc1 {kn}_end"); k.stamp(0); k.rstamp(1)
    e("s_load_dwordx4 s[60:63], s[0:1], 0"); e("s_load_dwordx2 s[6:7], s[0:1], 64")
    e("s_load_dwordx2 s[4:5], s[0:1], 56")
    e("s_and_b32 s20, s2, 7"); e("s_lshr_b32 s21, s2, 3")
    e("v_lshrrev_b32 v2, 6, v0"); e("v_and_b32 v1, 63, v0")
    e("v_readfirstlane_b32 s18, v2")
    e("s_and_b32 s39, s18, 3"); e("s_lshl_b32 s45, s39, 10")
    ids_mt(k)
    e("v_lshlrev_b32 v3, 4, v1"); e(f"v_lshlrev_b32 v9, {ENV('BST', '6')}, v1")
    e("s_lshl_b32 s22, s2, 2"); e("s_add_u32 s22, s22, s39"); e("s_mul_i32 s23, s22, 2400")
    if ENV('XLOC', '1'): e("s_lshl_b32 s22, s20, 5"); e("s_add_u32 s22, s22, s21"); e("s_lshl_b32 s22, s22, 2"); e("s_add_u32 s22, s22, s39")
    e("s_mul_i32 s22, s22, 2560")
    def kwait():
        e("s_waitcnt lgkmcnt(0)")
        k.stamp(2)
        k.srd(8, 60, S*D*2); k.srd(28, 62, D*3*D*2); k.srd(12, 6, WS_END)
    def burst():
        if ENV('BURST', '1'):
            e("s_mov_b32 exec_hi, 0xff" if ENV('BST', '6') == 6 else "s_mov_b64 exec, 0xfffff")
            e(f"buffer_load_dword v240, v9, s[8:11], s22 offen {os.environ.get('XNT', '')}"); e(f"buffer_load_dword v241, v9, s[28:31], s23 offen {os.environ.get('WNT', '')}")
            e("s_mov_b64 exec, -1")
    def codepf(tg):
        if ENV('CPF', '1'):
            e("s_getpc_b64 s[34:35]"); k.label(f"{nm}_pc{tg}")
            e(f"s_sub_u32 s34, s34, {nm}_pc{tg} - {kn}"); e("s_subb_u32 s35, s35, 0")
            e("v_lshlrev_b32 v242, 4, v0"); e("s_lshl_b32 s36, s21, 12"); e("v_add_u32 v242, s36, v242")
            e(f"v_and_b32 v242, 0xffffffc0, v242"); e(f"v_min_u32 v242, code_end - {kn} - 4, v242")
            e("global_load_dword v243, v242, s[34:35]")
    e("s_cmp_ge_u32 s17, 15"); e(f"s_cbranch_scc1 {nm}_ub")
    e("v_and_b32 v10, 31, v1"); e("v_lshrrev_b32 v4, 5, v1"); e("v_and_b32 v5, 15, v1"); e("v_bfe_u32 v7, v1, 4, 1")
    e("v_lshrrev_b32 v13, 2, v5"); e("v_and_b32 v6, 3, v1")
    e("v_lshl_add_u32 v14, v4, 3, v13"); e("v_lshlrev_b32 v14, 8, v14"); e("v_lshl_add_u32 v14, v7, 5, v14"); e("v_lshl_add_u32 v14, v6, 3, v14")
    e("v_add_u32 v14, 16384, v14")
    def a0():
        e("s_lshl_b32 s48, s17, 11"); e(f"s_add_u32 s48, s48, {C0}"); e(f"v_lshlrev_b32 v{PV_+1}, 8, v1"); e("s_mov_b64 s[56:57], 0xff")
    SF = ENV('SF', '10')
    e("s_cmp_ge_u32 s18, 4"); e(f"s_cbranch_scc1 {nm}_ld")
    kwait(); burst(); codepf("c")
    if ENV('TLB', '1'):
        sh = ENV('TLBS', '18')
        e("s_load_dwordx4 s[84:87], s[0:1], 32"); e("s_load_dwordx2 s[88:89], s[0:1], 16")
        e(f"v_lshlrev_b32 v236, {sh}, v0" if sh < 21 else "v_lshlrev_b32 v236, 21, v1")
        e(f"v_min_u32 v236, {STAMPS-4}, v236")
        e("s_cmp_eq_u32 s18, 0" if sh == 21 else "s_cmp_lt_u32 s18, 4"); e(f"s_cbranch_scc0 {nm}_tl")
        e("buffer_load_dword v237, v236, s[12:15], 0 offen")
        e("v_and_b32 v236, 1, v1"); e("v_mul_u32_u24 v238, 819196, v236"); e("v_mul_u32_u24 v236, 2457596, v236"); e("s_mov_b64 exec, 3")
        e("s_waitcnt lgkmcnt(0)")
        e("global_load_dword v237, v236, s[84:85]"); e("global_load_dword v237, v238, s[86:87]"); e("global_load_dword v237, v238, s[88:89]")
        e("s_mov_b64 exec, -1")
        k.label(f"{nm}_tl")
        e("s_waitcnt lgkmcnt(0)")
    ACC, BF, AR, RS = 64, 128, 160, 200
    BA, AA = 216, 224
    e("s_lshl_b32 s19, s16, 2"); e("s_add_u32 s19, s19, s18")
    for jf in range(4):
        e(f"v_xor_b32 v15, {jf}, v13"); e(f"v_lshl_add_u32 v{BA+jf}, v15, 6, v14"); e(f"v_add_u32 v{BA+4+jf}, 65536, v{BA+jf}")
    e("v_lshl_add_u32 v15, v2, 5, v10"); e("v_lshlrev_b32 v15, 7, v15"); e("v_bfe_u32 v12, v10, 1, 3"); e("v_xor_b32 v12, v12, v4")
    for q in range(4):
        e(f"v_xor_b32 v11, {2*q}, v12"); e(f"v_lshl_add_u32 v{AA+q}, v11, 4, v15"); e(f"v_add_u32 v{AA+4+q}, 65536, v{AA+q}")
    e("v_mul_u32_u24 v8, 20480, v7"); e("v_lshl_add_u32 v8, v4, 8, v8"); e("v_lshl_add_u32 v8, v5, 4, v8")
    e("s_mul_i32 s24, s19, 40960"); e(f"s_add_u32 s24, s24, {XI}")
    e("v_subrev_u32 v58, 1, v4"); e("v_not_b32 v59, v58")
    e("s_lshl_b32 s40, s2, 2"); e("s_add_u32 s40, s40, s39"); e("s_mul_i32 s40, s40, 8192"); e(f"s_add_u32 s40, s40, {QIMG}"); e("v_lshlrev_b32 v238, 7, v1")
    e("s_cmp_ge_u32 s17, 10"); e(f"s_cbranch_scc1 {nm}_qv")
    def mainloop(vmode):
        tagm = "v" if vmode else "q"
        acc = lambda jf: vr(ACC+16*jf, 16)
        fl = k.capture(lambda: addr_v(k, 0) if vmode else addr_qk(k, 0, 28))
        def rdB(ks, f):
            u, jf = f//4, f%4; sl = slot(ks//2)
            for t in range(2):
                off = sl + (32*(ks%2) + 16*u + 4*t)*256
                k.dsop(f"ds_read_b64_tr_b16 {vr(BF+4*f+2*t,2)}, v{BA+4*(sl>>16)+jf} offset:{off & 0xffff}", f"b{ks}_{f}")
        def rdA(ks):
            sl = slot(ks//2)
            for u in range(2): k.dsop(f"ds_read_b128 {vr(AR+8*(ks%2)+4*u,4)}, v{AA+4*(sl>>16)+2*(ks%2)+u} offset:{sl & 0xffff}", f"b{ks}_a")
        kb = [-1]
        def bars(ks):
            while kb[0] < need(ks): e("s_barrier"); kb[0] += 1
        bars(0); k.stamp(3)
        rdA(0)
        for f in range(8): rdB(0, f)
        for ks in range(20):
            for f in range(8):
                u, jf = f//4, f%4
                if f % 2 == 0: k.waitlg(f"b{ks}_{f+1}")
                a = vr(AR+8*(ks%2)+4*u, 4); b = vr(BF+4*f, 4); c = acc(jf) if (ks or u) else "0"
                if vmode: e(f"v_mfma_f32_32x32x16_bf16 {acc(jf)}, {a}, {b}, {c}")
                else:     e(f"v_mfma_f32_32x32x16_bf16 {acc(jf)}, {b}, {a}, {c}")
                if ks + 1 < 20:
                    if f == 0: bars(ks+1); rdA(ks+1)
                    rdB(ks+1, f)
                if ks >= 4: k.fill(fl, 1)
            e(f"s_cmp_eq_u32 s17, {ks % 15}"); e(f"s_cbranch_scc0 {nm}_x{tagm}{ks}")
            e(f"s_add_u32 s32, s24, {1024*ks}")
            for u in range(2): e(f"buffer_store_dwordx4 {vr(AR+8*(ks%2)+4*u,4)}, v8, s[12:15], s32 offen offset:{512*u} {SC}")
            k.label(f"{nm}_x{tagm}{ks}")
            if ENV('FT', '0') and ks == ENV('FT', '0'): e("buffer_load_dword v239, v238, s[12:15], s40 offen")
            if ks in (0, 1, 4, 9, 10, 14): k.stamp(7 + (0, 1, 4, 9, 10, 14).index(ks))
        assert not fl
        k.stamp(4)
        e(f"v_lshlrev_b32 v23, 2, v10"); e(f"v_add_u32 v23, {UT}, v23"); e("s_lshl_b32 s32, s18, 8"); e("v_add_u32 v22, s32, v23")
        if vmode: e("v_lshlrev_b32 v21, 4, v4"); e(f"s_add_u32 s32, s32, {UT}"); e("v_add_u32 v21, s32, v21")
        e("s_barrier")
        e("ds_read_b32 v48, v22 offset:1024"); e("ds_read_b32 v49, v22 offset:1152")
        for jf in range(4): e(f"ds_read_b32 v{28+2*jf}, v23 offset:{256*jf}"); e(f"ds_read_b32 v{29+2*jf}, v23 offset:{256*jf+128}")
        if vmode:
            for a_ in range(4): e(f"ds_read_b128 {vr(RS+4*a_,4)}, v21 offset:{2048+32*a_}")
        else: e("ds_read_b32 v47, v22 offset:2048")
        e("s_waitcnt lgkmcnt(0)"); k.lg = []
        e("v_and_b32 v48, v48, v58"); e("v_and_b32 v49, v49, v58")
        if not vmode: e("v_mul_f32 v47, s59, v47")
        for jf in range(4):
            if vmode: e(f"v_mfma_f32_32x32x8_bf16 {acc(jf)}, v[48:49], {vr(28+2*jf,2)}, {acc(jf)}")
            else:     e(f"v_mfma_f32_32x32x8_bf16 {acc(jf)}, {vr(28+2*jf,2)}, v[48:49], {acc(jf)}")
        k.stamp(5)
    mainloop(False)
    epi_qk(k, ACC, BF)
    k.label(f"{nm}_qv"); k.lg = []
    mainloop(True)
    epi_v(k, ACC, BF, RS)
    k.label(f"{nm}_fin5")
    k.stamp(6)
    e("s_barrier")
    signal(k, "sf", -1, 8, a0, 0, "s[12:15]")
    k.dump(13)
    e(f"s_branch {kn}_t0")
    k.label(f"{nm}_ld"); k.vm = []; k.lg = []
    e(f"s_setprio {ENV('LPRIO', '2')}")
    e("v_lshrrev_b32 v16, 4, v1"); e("v_and_b32 v17, 3, v2")
    e("v_lshl_add_u32 v18, v17, 2, v16"); e("v_mul_u32_u24 v20, 3840, v18")
    e("v_xor_b32 v18, v13, v16"); e("v_lshl_add_u32 v20, v18, 6, v20"); e("v_lshl_add_u32 v20, v6, 4, v20")
    e("v_lshrrev_b32 v18, 3, v1"); e("v_lshl_add_u32 v19, v17, 5, v18"); e("v_and_b32 v23, 7, v1")
    for i in range(4):
        e(f"v_add_u32 v42, {8*i}, v19"); e("v_bfe_u32 v43, v42, 1, 3"); e("v_xor_b32 v43, v43, v23")
        e("v_mul_u32_u24 v42, 1280, v42"); e(f"v_lshl_add_u32 v{48+i}, v43, 4, v42")
        if i: e(f"v_subrev_u32 v{48+i}, {1024*i}, v{48+i}")
    e("s_lshl_b32 s25, s17, 8"); e("s_mul_i32 s24, s16, 163840"); e("s_lshl_b32 s26, s39, 12")
    def ld1(st, n):
        if n < 4:
            e(f"s_add_u32 m0, s45, {slot(st)+16384+4096*n}"); e(f"s_add_u32 s32, s25, {(64*st+16*n)*3840}")
            k.vmop(f"buffer_load_dwordx4 v20, s[28:31], s32 offen {os.environ.get('WNT2', '')} lds", f"d{st}")
        else:
            e(f"s_add_u32 m0, s26, {slot(st)}"); e(f"s_add_u32 s33, s24, {128*st}")
            k.vmop(f"buffer_load_dwordx4 v{44+n}, s[8:11], s33 offen offset:{1024*(n-4)} {os.environ.get('XNT2', '')} lds", f"d{st}")
    ORD = [0, 4, 1, 5, 2, 6, 3, 7]
    def ld(st):
        for n in ORD: ld1(st, n)
    kwait(); ld(0)
    e("v_xor_b32 v15, v17, v13"); e("v_lshl_add_u32 v40, v15, 6, v14"); e("v_add_u32 v41, 65536, v40")
    e("v_and_b32 v42, 1, v16"); e("v_cmp_eq_u32 vcc, v42, v5"); e("v_mov_b32 v43, 0x3f803f80")
    for r in range(4): e(f"v_cndmask_b32 v{60+r}, 0, v43, vcc")
    k.srd(52, 4, 256)
    e("s_mul_i32 s27, s17, 163840"); e("s_add_u32 s27, s27, s45"); e(f"s_add_u32 s27, s27, {WA_I}")
    if ENV('LD1', '0'): ld(1)
    done = [0]
    def steps_of(kb):
        r = []
        while done[0] < 20 and need(done[0]) <= kb: r.append(done[0]); done[0] += 1
        return r
    def wa_store(q):
        e("s_lshl_b32 s32, s16, 13"); e("s_add_u32 s32, s32, s27")
        if q: e("s_add_u32 s32, s32, 131072")
        e("s_add_u32 s33, s32, 4096")
        for u in range(2): k.vmop(f"buffer_store_dwordx4 {vr(112+8*q+4*u,4)}, v3, s[12:15], s{32+u} offen {SC}")
    for kb in range(10):
        if kb == 5: k.stamp(5)
        k.waitvm(f"d{kb}")
        if kb == 5: k.stamp(6)
        e("s_barrier")
        if kb in (4, 5): k.stamp(2 if kb == 4 else 7)
        if kb == 0 and not ENV('LD1', '0'): ld(1)
        sl = slot(kb); todo = list(ORD) if kb + DEP < 10 else []
        nxt = lambda: ld1(kb + DEP, todo.pop(0)) if todo else None
        sts = steps_of(kb)
        for n_, ks in enumerate(sts):
            for u in range(2):
                for t in range(2):
                    e(f"ds_read_b64_tr_b16 {vr(136+8*n_+4*u+2*t,2)}, v{40+(sl>>16)} offset:{(sl + (32*(ks%2) + 16*u + 4*t)*256) & 0xffff}")
        nxt(); nxt()
        if kb == 4: k.stamp(3)
        e("s_waitcnt lgkmcnt(0)")
        mf = [(n_, ks, u) for n_, ks in enumerate(sts) for u in range(2)]
        for n_, ks, u in mf:
            e(f"v_mfma_f32_16x16x32_bf16 v[64:67], v[60:63], {vr(136+8*n_+4*u,4)}, {'v[64:67]' if ks or u else 0}")
            nxt()
        nxt(); nxt()
        if kb == 4: k.stamp(4)
        for n_, ks in enumerate(sts):
            e(f"s_cmp_eq_u32 s16, {ks % 16}"); e(f"s_cbranch_scc0 {nm}_w{ks}")
            for r in range(8): e(f"v_mov_b32 v{112+8*(ks//16)+r}, v{136+8*n_+r}")
            k.label(f"{nm}_w{ks}")
        assert not todo
        if kb == 8:
            e("v_and_b32 v24, 15, v1"); e("v_lshlrev_b32 v24, 2, v24"); e("s_mov_b32 s33, 0")
            k.label(f"{nm}_pl")
            e(f"buffer_load_dword v25, v24, s[52:55], 0 offen {SC}"); e("s_add_u32 s33, s33, 1"); e("s_waitcnt vmcnt(0)"); k.vm = []
            e("v_cmp_eq_u32 vcc, 0, v25"); e("s_cmp_ge_u32 s33, 0x20000"); e(f"s_cbranch_scc1 {nm}_px")
            e(f"s_cbranch_vccnz {nm}_pl")
            k.label(f"{nm}_px")
            e("v_lshlrev_b32 v24, 3, v10"); e("s_lshl_b32 s32, s16, 10"); e("s_lshl_b32 s33, s39, 8"); e("s_add_u32 s32, s32, s33"); e(f"s_add_u32 s32, s32, {STI}")
            k.vmop(f"buffer_load_dwordx2 v[44:45], v24, s[12:15], s32 offen {SC}", "rs")
            wa_store(0)
    k.waitvm("rs")
    stats_finish(k, 44, 45, 28, 29, 30)
    e("v_lshlrev_b32 v42, 2, v5"); e("ds_bpermute_b32 v68, v42, v64"); e("ds_bpermute_b32 v69, v42, v65"); e("v_cmp_eq_u32 vcc, 1, v7")
    split3(k, 28, 32, 36, 'm')
    e("s_waitcnt lgkmcnt(0)"); e("v_cndmask_b32 v64, v68, v69, vcc")
    split3(k, 64, 34, 36, 'u')
    e("v_lshlrev_b32 v24, 2, v10"); e("s_lshl_b32 s32, s39, 8"); e(f"s_add_u32 s32, s32, {UT}"); e("v_add_u32 v24, s32, v24")
    e("ds_write_b32 v24, v34"); e("ds_write_b32 v24, v35 offset:128"); e("ds_write_b32 v24, v32 offset:1024"); e("ds_write_b32 v24, v33 offset:1152"); e("ds_write_b32 v24, v29 offset:2048")
    e("s_waitcnt lgkmcnt(0)"); e("s_barrier")
    lwc_init(k); e("s_barrier")
    e("v_mov_b32 v44, v64")
    e("s_cmp_ge_u32 s16, 4"); e(f"s_cbranch_scc1 {nm}_le"); wa_store(1)
    e("s_cmp_eq_u32 s16, 0"); e(f"s_cbranch_scc0 {nm}_le")
    e("v_mov_b32 v45, 0"); e("v_mov_b32 v46, 0"); e("v_mov_b32 v47, 0"); e("v_lshlrev_b32 v24, 4, v10")
    e("s_lshl_b32 s32, s17, 11"); e("s_lshl_b32 s33, s39, 9"); e("s_add_u32 s32, s32, s33"); e(f"s_add_u32 s32, s32, {U_A}")
    e("s_mov_b32 exec_hi, 0"); e(f"buffer_store_dwordx4 v[44:47], v24, s[12:15], s32 offen {SC}")
    k.label(f"{nm}_le")
    e("s_mov_b64 exec, -1")
    signal(k, "sfl", -1, 8, a0, 0, "s[12:15]")
    k.dump(8)
    e(f"s_branch {kn}_t0")
    k.label(f"{nm}_ub"); k.vm = []; k.lg = []
    kwait()
    e("v_lshrrev_b32 v4, 3, v1"); e("v_lshl_add_u32 v4, v2, 4, v4"); e("v_mul_u32_u24 v5, 1280, v4"); e("v_and_b32 v6, 7, v1"); e("v_lshl_add_u32 v5, v6, 4, v5")
    e("s_mul_i32 s24, s16, 163840"); e("s_add_u32 s25, s24, 10240")
    for b_ in range(2):
        for i in range(10): k.vmop(f"buffer_load_dwordx4 {vr(24+40*b_+4*i,4)}, v5, s[8:11], s{24+b_} offen offset:{128*i} {os.environ.get('XNT2', '')}", f"x{b_}{i}")
    for j in range(8): e(f"v_mov_b32 v{8+j}, 0")
    e("v_mov_b32 v7, 0x3f803f80")
    e("v_lshlrev_b32 v16, 4, v0"); e("s_and_b32 s26, s16, 7"); e("s_lshl_b32 s26, s26, 13"); e(f"s_add_u32 s26, s26, {CNT}"); e("s_cmp_ge_u32 s16, 8"); e(f"s_cselect_b32 s27, {LS}, 0"); e("s_add_u32 s26, s26, s27")
    k.vmop(f"buffer_store_dwordx4 v[12:15], v16, s[12:15], s26 offen {SC}")
    for b_ in range(2):
        for i in range(10):
            k.waitvm(f"x{b_}{i}")
            for q in range(4):
                r = 24+40*b_+4*i+q
                e(f"v_dot2_f32_bf16 v{8+2*b_}, v{r}, v7, v{8+2*b_}"); e(f"v_dot2_f32_bf16 v{9+2*b_}, v{r}, v{r}, v{9+2*b_}")
    for dpp in ("quad_perm:[1,0,3,2]", "quad_perm:[2,3,0,1]", "row_half_mirror"):
        for q in range(4): e(f"v_add_f32_dpp v{8+q}, v{8+q}, v{8+q} {dpp} row_mask:0xf bank_mask:0xf")
    e("v_lshlrev_b32 v4, 3, v4"); e("s_lshl_b32 s26, s16, 10"); e(f"s_add_u32 s26, s26, {STI}")
    e("v_cmp_eq_u32 vcc, 0, v6"); k.srd(52, 4, 256); e("s_mov_b64 exec, vcc")
    e(f"buffer_store_dwordx2 v[8:9], v4, s[12:15], s26 offen {SC}"); e(f"buffer_store_dwordx2 v[10:11], v4, s[12:15], s26 offen offset:64 {SC}")
    e("s_mov_b64 exec, -1"); lwc_init(k)
    e("s_waitcnt vmcnt(0)"); e("s_barrier")
    e("s_cmp_ge_u32 s18, 4"); e(f"s_cbranch_scc1 {nm}_u2")
    codepf("u")
    e("s_cmp_eq_u32 s18, 0"); e(f"s_cbranch_scc0 {nm}_u2")
    e("v_mov_b32 v4, 0"); e("v_mov_b32 v5, 1"); e("s_lshl_b32 s26, s16, 2"); e("s_mov_b64 exec, 1")
    e(f"buffer_store_dword v5, v4, s[52:55], s26 offen {SC}")
    e("s_mov_b64 exec, 0xffff"); e("v_lshlrev_b32 v4, 2, v1"); e("s_mov_b32 s33, 0")
    k.label(f"{nm}_u1")
    e(f"buffer_load_dword v5, v4, s[52:55], 0 offen {SC}"); e("s_add_u32 s33, s33, 1"); e("s_waitcnt vmcnt(0)")
    e("v_cmp_eq_u32 vcc, 0, v5"); e("s_cmp_ge_u32 s33, 0x20000"); e(f"s_cbranch_scc1 {nm}_u2"); e(f"s_cbranch_vccnz {nm}_u1")
    k.label(f"{nm}_u2")
    e("s_mov_b64 exec, -1"); e("s_waitcnt vmcnt(0)")

def k_main():
    k = KB(NAME + "_kernel"); e = k.e; name = k.name
    ph_front(k)
    k.label(f"{name}_t0")
    e("s_load_dwordx2 s[46:47], s[0:1], 48"); e("s_mov_b32 s3, 0")
    k.srd(8, 6, 2*LS)
    e("s_waitcnt lgkmcnt(0)")
    k.srd(60, 46, S*D*2)
    k.label(f"{name}_top")
    k.vm = []; k.lg = []
    e("s_setprio 0"); k.stamp(0); k.rstamp(1)
    ph_attn(k)
    def a1():
        e("s_lshl_b32 s48, s17, 3"); e("s_and_b32 s49, s16, 1"); e("s_add_u32 s48, s48, s49"); e("s_lshl_b32 s48, s48, 8"); e(f"s_add_u32 s48, s48, {C1}")
        e(f"v_lshlrev_b32 v{PV_+1}, 9, v1"); e("s_mov_b64 s[56:57], 15")
    e("s_cmp_ge_u32 s18, 4"); e(f"s_cbranch_scc1 {name}_ld")
    signal(k, "s1", 0, 8, a1)
    def c1():
        e("s_lshl_b32 s48, s16, 9"); e(f"s_add_u32 s48, s48, {C1}")
        e(f"v_lshlrev_b32 v{PV_+1}, 8, v1"); e(f"v_mov_b32 v{PV_+2}, 16"); e("s_mov_b64 s[56:57], 3")
    proj_c(k, "p2", OT, XI, XM, STM, False, c1, 0, 6)
    def a2():
        e("s_lshr_b32 s48, s16, 1"); e("s_lshl_b32 s48, s48, 9"); e(f"s_add_u32 s48, s48, {C2}")
        e(f"v_mul_u32_u24 v{PV_+1}, 768, v1"); e("s_bitcmp1_b32 s16, 0"); e("s_cselect_b64 s[56:57], 3, 1")
    signal(k, "s2", 1, 4, a2)
    qkvb_c(k, XM, STM, 9)
    def a3(): one(k, 0); e("s_lshl_b32 s48, s16, 8"); e(f"s_add_u32 s48, s48, {C3}")
    signal(k, "s3", 0, 4, a3)
    def c3(): one(k, 16); e("s_lshr_b32 s48, s16, 1"); e("s_lshl_b32 s48, s48, 8"); e(f"s_add_u32 s48, s48, {C3}")
    proj_c(k, "p4", OBT, XM, XI, STI, True, c3, 0, 12)
    def a4(): one(k, 0); e("s_lshr_b32 s48, s16, 1"); e("s_lshl_b32 s48, s48, 8"); e(f"s_add_u32 s48, s48, {C4}")
    signal(k, "s4", 1, 4, a4)
    k.dump(15, "1")
    ids_mt(k)
    e("s_cmp_ge_u32 s17, 15"); e(f"s_cbranch_scc1 {name}_idle")
    qkva_c(k, XI, STI, 0, C4, [7], 3)
    k.stamp(6)
    e("s_barrier")
    def a5(): e("s_lshl_b32 s48, s17, 11"); e(f"s_add_u32 s48, s48, {LS + C0}"); e(f"v_lshlrev_b32 v{PV_+1}, 8, v1"); e("s_mov_b64 s[56:57], 0xff")
    signal(k, "s5", -1, 4, a5)
    k.dump(7, "3")
    k.label(f"{name}_t1")
    e("s_mov_b32 s3, 1"); e(f"s_add_u32 s8, s8, {LS}"); e("s_addc_u32 s9, s9, 0"); e(f"s_mov_b32 s10, {LS}")
    e(f"s_branch {name}_top")
    k.label(f"{name}_idle")
    for _ in range(4): e("s_barrier")
    e(f"s_branch {name}_t1")
    k.label(f"{name}_ld"); k.vm = []; k.lg = []
    if os.environ.get("FOC") == "at": e("s_add_u32 s84, s3, 4"); k.dump(8, "s84")
    e(f"s_setprio {ENV('LPRIO', '2')}")
    w = proj_l(k, WOA_I, WB_I, OT, a1, 0)
    qkvb_l(k, XM, STM, w)
    w = proj_l(k, WOB_I, WA_I, OBT, None, 0, True)
    ids_mt(k)
    atouch_pre(k, XI)
    e("s_barrier")
    e("buffer_load_dword v20, v21, s[12:15], s51 offen")
    w.one(39); e("s_waitcnt vmcnt(0)"); e("s_barrier")
    e("s_barrier"); lwc_init(k); e("s_barrier")
    e(f"s_branch {name}_t1")
    k.label(f"{name}_end"); e("s_endpgm")
    k.tail()
    return k.text(256 if STAMP else 244, 256 if STAMP else 244)

def build():
    hdr = open("cdna_kernels/" + NAME + ".s.ref").read().split("; Override launch")[0]
    out = hdr + "; @launch grid=(256,1,1) block=(512,1,1) lds=163840\n"
    out += '.amdgcn_target "amdgcn-amd-amdhsa--gfx950"\n'
    out += k_main()
    out += ".text\ncode_end:\n"
    return out

if __name__ == "__main__":
    dst = sys.argv[1] if len(sys.argv) > 1 else "cdna_kernels/" + NAME + ".s"
    open(dst, "w").write(build())
    print("wrote", dst)
```

```python
import sys, math
from lint import lint, fix

NAME = "interleave_layers__softmax_full_mha__sliding_local_dilated__prompt"
S, D, H, DH = 2048, 640, 32, 20
XS = S*D*2
IMG = H*64*2560
QI = H*64*1280
CNT = 0
C1 = CNT; C2 = C1 + 64*256; C3 = C2 + 34*256; C4 = C3 + 16*256; C0 = C4 + 16*256
LS = 65536
CS = LS + C4
XI = 2*LS; STI = XI + XS
QIMG = STI + S*64; KVIMG = QIMG + QI
OT = KVIMG + IMG; OBT = OT + XS; XM = OBT + XS
STM = XM + XS
U_A = STM + S*64
U_B = U_A + 32768
WA_I = U_B + 163840
WOA_I = WA_I + 15*163840
WB_I = WOA_I + 819200
WOB_I = WB_I + 16*163840
STAMPS = WOB_I + 819200
WS_END = STAMPS + 16*262144
import os
STAMP = int(os.environ.get("STAMP", "0"))
ATTN_WAVES = 8
AV = os.environ.get("AV", "")
CSCALE = (DH ** -0.5) * math.log2(math.e)
import struct
def fbits(x): return "0x%08x" % struct.unpack("<I", struct.pack("<f", x))[0]

FM = [(0,16),(32,48),(80,96),(112,128),(64,144)]
def FX(ks, t):
    return 160*(ks//5) + FM[ks%5][t]

class KB:
    def __init__(s, name):
        s.name = name; s.L = []; s.vm = []; s.lg = []; s.cap = None
    def e(s, line):
        if s.cap is not None: s.cap.append(('e', line, None))
        else: s.L.append("    " + line)
    def capture(s, fn):
        s.cap = []; fn(); c = s.cap; s.cap = None
        return [x for x in c if not (x[0] == 'e' and x[1].startswith('s_nop'))]
    def fill(s, lst, n=1):
        for _ in range(n):
            if not lst: return
            kind, a, b = lst.pop(0)
            if kind == 'e':
                s.e(a)
                if a.startswith('s_mov_b64 exec, s['):
                    while True:
                        x = lst.pop(0)[1]; s.e(x)
                        if x == 's_mov_b64 exec, -1': break
                if a.startswith('s_cmp'):
                    while lst and lst[0][0] == 'e' and lst[0][1].startswith('s_cselect'): s.e(lst.pop(0)[1])
            elif kind == 'ds': s.dsop(a, b)
            elif kind == 'wvm': s.waitvm(a)
            elif kind == 'wlg': s.waitlg(a)
    def c(s, txt): s.L.append("    ; " + txt)
    def label(s, l): s.L.append(l + ":")
    def vmop(s, line, tag=None): s.e(line); s.vm.append(tag); assert len(s.vm) <= 63, (s.name, len(s.vm))
    def dsop(s, line, tag=None):
        if s.cap is not None: s.cap.append(('ds', line, tag)); return
        s.e(line); s.lg.append(tag)
    def _n(s, lst, tag):
        idx = max(i for i, t in enumerate(lst) if t == tag)
        return idx
    def waitvm(s, tag):
        if s.cap is not None: s.cap.append(('wvm', tag, None)); return
        if tag not in s.vm: return
        i = s._n(s.vm, tag); n = len(s.vm) - 1 - i
        s.e(f"s_waitcnt vmcnt({n})"); s.vm = s.vm[i+1:]
    def waitlg(s, tag):
        if s.cap is not None: s.cap.append(('wlg', tag, None)); return
        if tag not in s.lg: return
        i = s._n(s.lg, tag); n = len(s.lg) - 1 - i
        if n > 15: n = 15; i = len(s.lg) - 1 - n
        s.e(f"s_waitcnt lgkmcnt({n})"); s.lg = s.lg[i+1:]
    def waitall(s):
        s.e("s_waitcnt vmcnt(0) lgkmcnt(0)"); s.vm = []; s.lg = []
    def srd(s, r, base, nbytes):
        s.e(f"s_mov_b32 s{r}, s{base}")
        s.e(f"s_and_b32 s{r+1}, s{base+1}, 0xffff")
        s.e(f"s_mov_b32 s{r+2}, {nbytes}")
        s.e(f"s_mov_b32 s{r+3}, 0x20000")
    def stamp(s, i):
        if not STAMP: return
        op = "s_memrealtime" if os.environ.get("RT") else "s_memtime"
        s.e(f"{op} s[{64+2*i}:{65+2*i}]" if i < 10 else f"{op} s[{72+2*i}:{73+2*i}]")
    def rstamp(s, i):
        if not STAMP: return
        s.e(f"s_memrealtime s[{64+2*i}:{65+2*i}]")
    def dump(s, n=8, slot="0", wave="s18"):
        if not STAMP: return
        e = s.e
        if os.environ.get("DBG"):
            keep = {"0": [(1, 246), (3, 247), (6, 248)], "1": [(2, 249), (5, 250), (14, 251)], "3": [(6, 252)], "2": [(2, 253), (5, 254), (14, 255)]}[slot]
            e("s_waitcnt lgkmcnt(0)")
            if n < 7 or (slot == "0" and n == 8): return
            for i, v in keep: e(f"v_mov_b32 v{v}, s{64+2*i if i < 10 else 72+2*i}")
            if slot == "2":
                e(f"s_cmp_eq_u32 s2, {os.environ['DBG']}"); e("s_cbranch_scc0 dbg_skip"); e("s_cmp_eq_u32 s18, 0"); e("s_cbranch_scc0 dbg_skip")
                e("s_load_dwordx2 s[84:85], s[0:1], 56"); e("s_memrealtime s[86:87]"); e("s_waitcnt lgkmcnt(0)")
                s.srd(88, 84, 256); e("s_mov_b64 exec, 1"); e("v_mov_b32 v0, 0"); e("v_mov_b32 v245, s86"); e("v_sub_u32 v245, v245, v246")
                for i in range(9):
                    e(f"v_sub_u32 v{247+i}, v{247+i}, v246"); e(f"buffer_store_dword v{247+i}, v0, s[88:91], 0 offen offset:{4*i}")
                e("buffer_store_dword v245, v0, s[88:91], 0 offen offset:36")
                s.label("dbg_skip")
            return
        e("s_memrealtime s[86:87]"); e("s_waitcnt lgkmcnt(0)")
        e("s_mov_b64 exec, 1")
        e(f"s_lshl_b32 s84, {slot}, 18")
        e("s_lshl_b32 s85, s2, 3"); e(f"s_add_u32 s85, s85, {wave}"); e("s_lshl_b32 s85, s85, 6"); e(f"s_add_u32 s85, s85, {STAMPS}"); e("s_add_u32 s85, s85, s84")
        e("v_mov_b32 v244, 0")
        for i in range(n):
            e(f"v_mov_b32 v245, s{64+2*i if i < 10 else 72+2*i}")
            e(f"buffer_store_dword v245, v244, s[12:15], s85 offen offset:{4*i}")
        e("v_mov_b32 v245, s86"); e("buffer_store_dword v245, v244, s[12:15], s85 offen offset:60")
        e("s_mov_b64 exec, -1")
    def text(s, vgpr, accum, sgpr=102):
        s.L, added = fix(s.L)
        if os.environ.get("V"): print(s.name, "auto nops:", added, "lines:", len(s.L))
        out = [".text", f".globl {s.name}", ".p2align 8", f".type {s.name},@function", f"{s.name}:"]
        out += s.L
        out += ['.section .rodata,"a"', ".p2align 6", f".amdhsa_kernel {s.name}",
                f"  .amdhsa_next_free_vgpr {vgpr}", f"  .amdhsa_next_free_sgpr {sgpr}", f"  .amdhsa_accum_offset {accum}",
                "  .amdhsa_group_segment_fixed_size 0", "  .amdhsa_kernarg_size 72", "  .amdhsa_user_sgpr_count 2",
                "  .amdhsa_user_sgpr_kernarg_segment_ptr 1", "  .amdhsa_system_sgpr_workgroup_id_x 1", ".end_amdhsa_kernel"]
        nb = lint(s.L, s.name)
        assert nb == 0, f"{nb} hazards in {s.name}"
        return "\n".join(out) + "\n"
    def allred32(s, op, v, t):
        s.e(f"v_mov_b32 v{t}, v{v}"); s.e("s_nop 1")
        s.e(f"v_permlane32_swap_b32 v{v}, v{t}"); s.e("s_nop 1")
        s.e(f"{op} v{v}, v{v}, v{t}")
    def allred16(s, op, v, t):
        s.e(f"v_mov_b32 v{t}, v{v}"); s.e("s_nop 1")
        s.e(f"v_permlane16_swap_b32 v{v}, v{t}"); s.e("s_nop 1")
        s.e(f"{op} v{v}, v{v}, v{t}")

def vr(a, n): return f"v[{a}:{a+n-1}]" if n > 1 else f"v{a}"
def ar(a, n): return f"a[{a}:{a+n-1}]" if n > 1 else f"a{a}"

def stats_finish(k, s1, s2, mean, rstd, t):
    e = k.e
    e(f"v_mul_f32 v{mean}, {fbits(1.0/D)}, v{s1}")
    e(f"v_mul_f32 v{t}, {fbits(1.0/D)}, v{s2}")
    e(f"v_fma_f32 v{t}, -v{mean}, v{mean}, v{t}")
    e(f"v_max_f32 v{t}, 0, v{t}")
    e(f"v_add_f32 v{t}, {fbits(1e-5)}, v{t}")
    e(f"v_rsq_f32 v{rstd}, v{t}")
    e("s_nop 0")

def split3(k, src, d, t, kind, maskv=None):
    e = k.e
    if kind == 'm':
        e(f"v_xor_b32 v{t+1}, 0x80000000, v{src}"); src = t+1
    e(f"v_and_b32 v{t}, 0xffff0000, v{src}")
    e(f"v_sub_f32 v{t+2}, v{src}, v{t}")
    if kind == 'u':
        e(f"v_cvt_pk_bf16_f32 v{d}, v{t}, v{t+2}")
        e(f"v_lshrrev_b32 v{d+1}, 16, v{t}")
    else:
        e(f"v_cvt_pk_bf16_f32 v{d}, v{t}, v{t}")
        e(f"v_cvt_pk_bf16_f32 v{d+1}, v{t+2}, 0")
    if maskv is not None:
        e(f"v_and_b32 v{d}, v{d}, v{maskv}"); e(f"v_and_b32 v{d+1}, v{d+1}, v{maskv}")

SC = "sc1"
RS_ = lambda off: "s[12:15]" if off >= 2*LS else "s[8:11]"
EARLY = int(os.environ.get('EARLY', '6'))
ENV = lambda n, d: int(os.environ.get(n, d))

def ids_mt(k):
    k.e("s_lshl_b32 s22, s20, 1"); k.e("s_and_b32 s23, s21, 1"); k.e("s_add_u32 s16, s22, s23"); k.e("s_lshr_b32 s17, s21, 1")
def ids_rt(k):
    k.e("s_lshl_b32 s22, s20, 2"); k.e("s_and_b32 s23, s21, 3"); k.e("s_add_u32 s16, s22, s23"); k.e("s_lshr_b32 s17, s21, 2")

LW = 163824
PV_ = 240
def lw_init(k):
    e = k.e
    e(f"v_mov_b32 v{PV_+3}, {LW}")
    for i in range(3): e(f"v_mov_b32 v{PV_+i}, 0")
    e(f"ds_write_b96 v{PV_+3}, v[{PV_}:{PV_+2}]"); e(f"ds_write_b32 v{PV_+3}, v{PV_} offset:12")

def lwc_init(k):
    k.e(f"v_mov_b32 v{PV_+3}, {LW-8}"); k.e(f"v_mov_b32 v{PV_}, 0"); k.e(f"v_mov_b32 v{PV_+1}, 0")
    k.e(f"ds_write_b64 v{PV_+3}, v[{PV_}:{PV_+1}]"); k.e("s_waitcnt lgkmcnt(0)")

def signal(k, tag, word, nw, addr_code, younger=0, srd="s[8:11]"):
    e = k.e
    addr_code()
    e(f"v_mov_b32 v{PV_+3}, {LW-8}"); e(f"v_mov_b32 v{PV_}, 1")
    e("s_mov_b64 exec, 1")
    assert younger == 0
    e("s_waitcnt vmcnt(0)"); k.vm = []
    if tag == os.environ.get("FOC"): k.stamp(2)
    e(f"ds_add_rtn_u32 v{PV_+2}, v{PV_+3}, v{PV_} offset:{8*word+8}")
    e("s_waitcnt lgkmcnt(0)"); k.lg = []
    e(f"v_readfirstlane_b32 s49, v{PV_+2}")
    e("s_mov_b64 exec, s[56:57]")
    e(f"s_cmp_eq_u32 s49, {nw-1}"); e(f"s_cbranch_scc0 {k.name}_{tag}_sg")
    e(f"buffer_atomic_add v{PV_}, v{PV_+1}, {srd}, s48 offen {SC}")
    if os.environ.get("FOC2") == tag: k.stamp(4)
    k.label(f"{k.name}_{tag}_sg")
    e("s_mov_b64 exec, -1")

def wait_go(k, tag, word, poll_code):
    e = k.e; nm = f"{k.name}_{tag}"
    e(f"v_mov_b32 v{PV_+3}, {LW-8}"); e("s_mov_b32 s49, 0")
    if poll_code:
        e("s_cmp_eq_u32 s18, 0"); e(f"s_cbranch_scc0 {nm}_sp")
        poll_code()
        e("s_mov_b64 exec, s[56:57]")
        if os.environ.get("FOC") == "g" + tag: k.stamp(2)
        k.label(f"{nm}_pl")
        e(f"v_mov_b32 v{PV_}, 0")
        e(f"buffer_atomic_add v{PV_}, v{PV_+1}, s[8:11], s48 offen sc0 sc1")
        e("s_add_u32 s49, s49, 1")
        e("s_waitcnt vmcnt(0)")
        e(f"v_cmp_ge_u32 vcc, v{PV_}, v{PV_+2}")
        e("s_cmp_ge_u32 s49, 0x20000"); e(f"s_cbranch_scc1 {nm}_px")
        e("s_cmp_eq_u64 vcc, exec"); e(f"s_cbranch_scc0 {nm}_pl")
        k.label(f"{nm}_px")
        if os.environ.get("FOC") == "g" + tag: e("s_add_u32 s70, s64, s49")
        e("s_mov_b64 exec, 1"); e(f"v_mov_b32 v{PV_}, 1")
        e(f"ds_write_b32 v{PV_+3}, v{PV_} offset:{8*word+12}")
        e(f"s_branch {nm}_go")
    k.label(f"{nm}_sp")
    e("s_sleep 1")
    e(f"ds_read_b32 v{PV_}, v{PV_+3} offset:{8*word+12}")
    e("s_add_u32 s49, s49, 1")
    e("s_waitcnt lgkmcnt(0)")
    e(f"v_readfirstlane_b32 s44, v{PV_}")
    e("s_cmp_ge_u32 s49, 0x400000"); e(f"s_cbranch_scc1 {nm}_go")
    e("s_cmp_eq_u32 s44, 0"); e(f"s_cbranch_scc1 {nm}_sp")
    k.label(f"{nm}_go")
    e("s_mov_b64 exec, -1")

class Wdma:
    def __init__(s, k, n, base=50, tag="w"): s.k = k; s.n = n; s.i = 0; s.base = base; s.tag = tag
    def one(s, i):
        s.k.e(f"s_add_u32 m0, s45, {4096*i}"); s.k.e(f"s_add_u32 s32, s{s.base}, {4096*i}")
        s.k.vmop(f"buffer_load_dwordx4 v3, s[12:15], s32 offen {SC} lds", f"{s.tag}{i}")
    def go(s, upto):
        while s.i < min(upto, s.n): s.one(s.i); s.i += 1
    def rng(s, a, b, thr=0):
        for i in range(a, b):
            s.one(i)
            if thr and len(s.k.vm) >= thr: s.k.e(f"s_waitcnt vmcnt({thr-1})"); s.k.vm = s.k.vm[len(s.k.vm)-thr+1:]

SIDE_SV = 152; SIDE_D = 160; SIDE_U = 192
def side_setup(k):
    e = k.e; nm = k.name
    e("s_load_dwordx4 s[84:87], s[0:1], 32"); e("s_load_dwordx2 s[88:89], s[0:1], 16")
    e("s_mul_i32 s49, s2, 3"); e("s_add_u32 s49, s49, s18"); e("s_sub_u32 s49, s49, 4")
    e("s_sub_u32 s32, s18, 4"); e("s_cmp_lt_u32 s32, 3"); e("s_cselect_b32 s49, s49, 959"); e("s_cmp_eq_u32 s3, 0"); e("s_cselect_b32 s49, s49, 959")
    e("s_lshl_b32 s35, s39, 13"); e("s_add_u32 s35, s35, 112640")
    e("s_mul_i32 s36, s49, 3277"); e("s_lshr_b32 s36, s36, 16"); e("s_mul_i32 s37, s36, 20"); e("s_sub_u32 s37, s49, s37")
    e("v_and_b32 v140, 15, v1"); e("v_lshrrev_b32 v141, 2, v140"); e("v_and_b32 v142, 3, v1")
    e("s_waitcnt lgkmcnt(0)")
    SV = SIDE_SV
    e("v_lshrrev_b32 v136, 4, v1")
    for r in list(range(SV, SV+5)) + list(range(144, 152)): e(f"v_mov_b32 v{r}, 0")
    e("s_mov_b32 s5, 0")
    e("s_mov_b32 s53, 0x7ff00000"); e("s_mov_b32 s54, s53"); e("s_mov_b32 s58, s53")
    e("s_cmp_ge_u32 s49, 320"); e(f"s_cbranch_scc1 {nm}_ss1")
    k.srd(88, 84, D*3*D*2)
    e(f"s_mul_i32 s5, s37, {32*3840}"); e("s_mul_i32 s32, s36, 80"); e("s_add_u32 s5, s5, s32")
    e("v_lshlrev_b32 v137, 2, v136"); e("v_xor_b32 v137, v137, v140"); e("v_min_u32 v137, 14, v137")
    e("v_mul_u32_u24 v138, 52, v137"); e("v_lshrrev_b32 v138, 8, v138"); e("v_mul_u32_u24 v138, 1200, v138"); e("v_lshl_add_u32 v138, v137, 4, v138")
    e("v_mul_u32_u24 v137, 3840, v136"); e(f"v_add_u32 v{SV}, v138, v137")
    e("v_lshrrev_b32 v137, 5, v1"); e("v_lshl_add_u32 v137, v137, 3, v141"); e("v_lshlrev_b32 v137, 8, v137"); e("v_and_b32 v138, 1, v136")
    e("v_lshl_add_u32 v137, v138, 5, v137"); e("v_lshl_add_u32 v137, v142, 3, v137"); e("v_add_u32 v137, s35, v137")
    for jf in range(4): e(f"v_xor_b32 v139, {jf}, v141"); e(f"v_lshl_add_u32 v{144+jf}, v139, 6, v137")
    e("s_mul_i32 s53, s36, 163840"); e("s_lshl_b32 s54, s37, 13"); e("s_add_u32 s53, s53, s54"); e(f"s_add_u32 s53, s53, {WB_I}"); e("s_add_u32 s54, s53, 4096"); e("s_mov_b32 s58, s54")
    e(f"s_branch {nm}_ss2")
    k.label(f"{nm}_ss1")
    e("s_cmp_ge_u32 s36, 24"); e("s_cselect_b32 s32, s86, s88"); e("s_cselect_b32 s33, s87, s89")
    k.srd(88, 32, D*D*2)
    e("s_cmp_ge_u32 s49, 640"); e(f"s_cbranch_scc1 {nm}_ss2")
    e("s_and_b32 s32, s36, 7"); e("s_mul_i32 s32, s32, 160")
    e("s_mul_i32 s5, s37, 40"); e("s_sub_u32 s34, s37, 16"); e("s_mul_i32 s34, s34, 160"); e("s_add_u32 s34, s34, 16")
    e("s_cmp_lt_u32 s37, 16"); e("s_cselect_b32 s5, s5, s34"); e("s_cselect_b32 s33, 4, 2"); e("s_cselect_b32 s34, 4, 16")
    e("s_mul_i32 s5, s5, 1280"); e("s_add_u32 s5, s5, s32")
    for i in range(5):
        e(f"v_add_u32 v137, {64*i}, v1"); e("v_mul_u32_u24 v138, 6554, v137"); e("v_lshrrev_b32 v138, 16, v138")
        e("v_lshrrev_b32 v139, s33, v138"); e("v_mul_u32_u24 v139, s34, v139"); e("v_mul_u32_u24 v139, 1280, v139")
        e("v_mul_u32_u24 v138, 1120, v138"); e("v_add_u32 v139, v139, v138"); e(f"v_lshl_add_u32 v{SV+i}, v137, 4, v139")
    e("v_lshlrev_b32 v137, 2, v136"); e("s_mov_b32 s32, 2560")
    e("s_cmp_ge_u32 s36, 24"); e(f"s_cbranch_scc1 {nm}_sf3"); e("s_cmp_ge_u32 s37, 16"); e(f"s_cbranch_scc1 {nm}_sf3")
    e("v_lshrrev_b32 v137, 1, v136"); e("v_lshlrev_b32 v137, 4, v137"); e("v_and_b32 v138, 1, v136"); e("v_lshl_add_u32 v137, v138, 2, v137"); e("s_mov_b32 s32, 1280")
    k.label(f"{nm}_sf3")
    e("v_add_u32 v137, v137, v141"); e("v_mul_u32_u24 v137, 160, v137"); e("v_add_u32 v137, s35, v137")
    e("s_and_b32 s33, s36, 1"); e("s_lshl_b32 s34, s33, 5"); e("s_xor_b32 s33, s33, 1"); e("s_lshl_b32 s33, s33, 7")
    e("v_lshl_add_u32 v144, v142, 4, v137"); e("v_add_u32 v144, s34, v144"); e("v_add_u32 v145, s32, v144")
    e("v_lshl_add_u32 v146, v142, 3, v137"); e("v_add_u32 v146, s33, v146"); e("v_add_u32 v147, s32, v146")
    e("s_cmp_ge_u32 s36, 24"); e(f"s_cselect_b32 s53, {WOB_I-WOA_I}, 0"); e("s_and_b32 s54, s36, 7"); e("s_mul_i32 s54, s54, 102400"); e("s_add_u32 s53, s53, s54")
    e("s_mul_i32 s54, s37, 5120"); e("s_add_u32 s53, s53, s54"); e(f"s_add_u32 s53, s53, {WOA_I}"); e("s_add_u32 s54, s53, 4096")
    k.label(f"{nm}_ss2")
    e("s_lshl_b32 s38, s49, 9"); e(f"s_add_u32 s38, s38, {U_B}"); e("s_cmp_ge_u32 s49, 320"); e("s_cselect_b32 s38, 0x7ff00000, s38")
    e("v_lshlrev_b32 v143, 2, v1")
    e("s_cmp_lt_u32 s49, 640"); e("s_cselect_b32 s4, 2, 0"); e("s_cmp_lt_u32 s49, 320"); e("s_cselect_b32 s4, 1, s4")
    e("s_and_b32 s55, s49, 15"); e("s_lshl_b32 s55, s55, 8"); e(f"s_add_u32 s55, s55, {CS}")

def ph_attn(k):
    e = k.e; nm = k.name
    KA, KT, VA = 4, 5, 6
    Q = [8, 14]; KF = [24, 32]; VF = [40, 48]; SS = [56, 72]; P = 88; O = [96, 112]; PF = 208
    SCR = 137216; TOP = 112640
    ids_rt(k)
    e("v_and_b32 v3, 31, v1"); e("v_lshrrev_b32 v7, 5, v1")
    e("v_lshlrev_b32 v22, 4, v1"); e("v_lshlrev_b32 v23, 3, v3")
    e("s_mul_i32 s19, s16, 163840")
    e("s_lshr_b32 s41, s18, 2")
    e("s_lshl_b32 s23, s17, 3"); e("s_lshl_b32 s22, s39, 1"); e("s_add_u32 s23, s23, s22")
    e("s_add_u32 s23, s23, s41")
    e("s_lshr_b32 s22, s19, 1"); e(f"s_add_u32 s22, s22, {QIMG}")
    e("s_mul_i32 s24, s23, 1280"); e("s_add_u32 s24, s24, s22"); e("s_xor_b32 s40, s23, 1"); e("s_mul_i32 s40, s40, 1280"); e("s_add_u32 s40, s40, s22")
    e("s_mul_i32 s42, s41, 2560"); e(f"s_add_u32 s42, s42, {TOP}")
    e("s_lshl_b32 s25, s18, 10")
    e(f"s_add_u32 s26, s19, {KVIMG}")
    rnd = [0]
    def dma():
        i = rnd[0]; rnd[0] += 1
        if i == 6:
            e("s_cmp_lt_u32 s18, 2"); e("s_cselect_b32 s27, 163840, 0"); e("s_add_u32 s27, s27, s25"); e("s_sub_u32 m0, s27, 2048")
        else: e(f"s_add_u32 m0, s25, {(TOP + 8192*i) if i < 6 else 8192*i - 51200}")
        e("s_add_u32 s27, s26, m0")
        k.vmop(f"buffer_load_dwordx4 v22, s[12:15], s27 offen {SC} lds", f"i{i}")
    e(f"v_add_u32 v{KA}, s42, v22")
    e(f"v_add_u32 v{KT}, s42, v23"); e(f"v_add_u32 v{KT}, 1024, v{KT}")
    if ENV('KTZ', '1'): e(f"v_lshl_add_u32 v{KT}, v7, 20, v{KT}")
    e("v_mul_u32_u24 v21, 20, v7"); e("v_add_u32 v21, v21, v3"); e("v_lshlrev_b32 v21, 4, v21")
    e("v_add_u32 v21, 1280, v21"); e(f"v_add_u32 v{VA}, s42, v21")
    e("s_mov_b32 s28, 0x000fffff"); e("s_mov_b32 s29, 0x000fffff")
    e("v_cmp_eq_u32 vcc, 20, v3"); e("v_mov_b32 v20, 0x3f803f80"); e("s_nop 0")
    e("v_cndmask_b32 v20, 0, v20, vcc")
    for r in range(16): e(f"v_mov_b32 v{VF[0]+r}, v20")
    for r in range(32): e(f"v_mov_b32 v{O[0]+r}, 0")
    for r in range(4): e(f"v_mov_b32 v{P+4+r}, 0")
    e("v_subrev_u32 v30, 1, v7")
    e("s_lshl_b32 s43, s21, 2"); e("s_add_u32 s43, s43, s39"); e(f"s_mul_i32 s43, s43, {2048*ENV('NPF', '14') - 1024}"); e(f"s_add_u32 s43, s43, {WOA_I}")
    e("s_mul_i32 s32, s23, 40960"); e(f"s_add_u32 s32, s32, {OT}")
    e("s_lshr_b32 s51, s16, 1"); e("s_lshl_b32 s51, s51, 10"); e("s_and_b32 s34, s16, 1"); e("s_lshl_b32 s34, s34, 9")
    e("s_add_u32 s51, s51, s34"); e("s_add_u32 s51, s51, s32")
    e("s_lshr_b32 s52, s16, 3"); e("s_add_u32 s52, s52, 16"); e("s_lshl_b32 s52, s52, 10"); e("s_add_u32 s52, s52, s32")
    e("s_and_b32 s35, s16, 3"); e("s_lshl_b32 s35, s35, 8"); e("s_add_u32 s52, s52, s35")
    e("s_bfe_u32 s35, s16, 0x10002"); e("s_lshl_b32 s35, s35, 3"); e("s_add_u32 s52, s52, s35")
    e("v_lshrrev_b32 v38, 4, v3"); e("v_mul_u32_u24 v38, 20480, v38"); e("v_and_b32 v39, 15, v3")
    e("v_lshl_add_u32 v38, v39, 4, v38"); e("v_lshl_add_u32 v39, v7, 8, v38")
    e("s_mul_i32 s32, s18, 3072"); e("s_xor_b32 s33, s18, 4"); e("s_mul_i32 s33, s33, 3072")
    e(f"v_add_u32 v132, {SCR}, v22"); e("v_add_u32 v133, s33, v132"); e("v_add_u32 v132, s32, v132")
    def c0(nl):
        e("s_lshl_b32 s48, s17, 8"); e(f"s_add_u32 s48, s48, {C0}"); e(f"v_mov_b32 v{PV_+2}, 16")
        e("s_mul_i32 s32, s16, 20"); e("s_add_u32 s33, s32, 19"); e("s_lshr_b32 s32, s32, 7"); e("s_lshr_b32 s33, s33, 7"); e("s_sub_u32 s33, s33, s32")
        e(f"v_lshrrev_b32 v{PV_+1}, 1, v1"); e(f"v_mul_u32_u24 v{PV_+1}, 5, v{PV_+1}"); e(f"v_and_b32 v{PV_}, s33, v1"); e(f"v_add3_u32 v{PV_+1}, v{PV_+1}, v{PV_}, s32")
        e(f"v_lshlrev_b32 v{PV_+1}, 11, v{PV_+1}"); e("s_mov_b64 s[56:57], 63")
    side_setup(k)
    e("s_lshl_b32 s59, s2, 2"); e("s_add_u32 s59, s59, s39"); e("s_mul_i32 s50, s59, 2560"); e(f"s_mul_i32 s59, s59, {-(-(U_A - OT) // 1024 // 128) * 128}"); e(f"s_add_u32 s59, s59, {OT}")
    e("v_lshlrev_b32 v234, 7, v1")
    e("v_lshlrev_b32 v134, 11, v1"); e("s_lshl_b32 s32, s17, 8"); e(f"s_add_u32 s32, s32, {C0}"); e("v_add_u32 v134, s32, v134")
    e("v_lshlrev_b32 v135, 8, v1"); e(f"v_add_u32 v135, {CS - 4096}, v135"); e("v_cmp_gt_u32 vcc, 16, v1")
    e("v_cndmask_b32 v134, v135, v134, vcc"); e("v_cndmask_b32 v131, 40, 16, vcc"); e("v_mov_b32 v135, 64")
    wait_go(k, "t", -1, lambda: c0(6))
    k.stamp(2)
    dma()
    for x in range(2):
        k.vmop(f"buffer_load_dwordx4 {vr(Q[x],4)}, v22, s[12:15], s{(24,40)[x]} offen {SC}", "q")
        k.vmop(f"buffer_load_dwordx2 {vr(Q[x]+4,2)}, v23, s[12:15], s{(24,40)[x]} offen offset:1024 {SC}", "q")
    for _ in range(3): dma()
    k.waitvm("q")
    for x in range(2):
        e(f"v_and_b32 v{Q[x]+4}, v{Q[x]+4}, v30"); e(f"v_and_b32 v{Q[x]+5}, v{Q[x]+5}, v30")
    k.waitvm("i1"); e("s_barrier"); k.stamp(3)
    if os.environ.get("FOC") == "clk": k.rstamp(0)
    def rdK(buf, off):
        off *= 2
        e(f"ds_read_b128 {vr(KF[buf],4)}, v{KA} offset:{off}")
        e(f"ds_read_b64 {vr(KF[buf]+4,2)}, v{KT} offset:{off}")
    def rdV(buf, off):
        off *= 2
        e("s_mov_b64 exec, s[28:29]")
        e(f"ds_read_b128 {vr(VF[buf],4)}, v{VA} offset:{off}")
        e(f"ds_read_b128 {vr(VF[buf]+4,4)}, v{VA} offset:{off+640}")
        e("s_mov_b64 exec, -1")
    def qkm(x, kb): e(f"v_mfma_f32_32x32x16_bf16 {vr(SS[x],16)}, {vr(KF[kb],4)}, {vr(Q[x],4)}, 0")
    def qkt(x, kb): e(f"v_mfma_f32_32x32x8_bf16 {vr(SS[x],16)}, {vr(KF[kb]+4,2)}, {vr(Q[x]+4,2)}, {vr(SS[x],16)}")
    def pv(x, vb, u): e(f"v_mfma_f32_32x32x16_bf16 {vr(O[x],16)}, {vr(VF[vb]+4*u,4)}, {vr(P+4*u,4)}, {vr(O[x],16)}")
    def base(t):
        return 0 if t < 10 else 10 if t < 22 else 22
    def bump(regs, t):
        if t == 10:
            for r in regs: e(f"v_subrev_u32 v{r}, {TOP}, v{r}")
        elif t == 22:
            for r in regs: e(f"v_add_u32 v{r}, {12*5120}, v{r}")
    def unit(x, t, extra=()):
        p = t % 2; s = SS[x]
        ex = lambda i: e(f"v_exp_f32 v{s+i}, v{s+i}")
        cv = lambda i: e(f"v_cvt_pk_bf16_f32 v{P+i}, v{s+2*i}, v{s+2*i+1}")
        kb = p if x == 0 else 1-p
        if x == 1: e("s_waitcnt lgkmcnt(2)" if t < 31 else "s_waitcnt lgkmcnt(0)")
        if not (x == 1 and t == 31): qkm(1-x, kb)
        if x == 1 and t + 2 < 32:
            bump((KA, KT), t+2); rdK(p, (t+2-base(t+2))*2560)
        for i in range(0, 4): ex(i)
        if x == 0:
            pv(1, 1-p, 1)
            if t + 1 < 32:
                bump((VA,), t+1); rdV(1-p, (t+1-base(t+1))*2560)
        else:
            pv(0, p, 1)
        for f_ in extra: f_()
        for i in range(4, 8): ex(i)
        for i in range(0, 4): cv(i)
        if not (x == 1 and t == 31): qkt(1-x, kb)
        for i in range(8, 12): ex(i)
        if x == 0: e(f"s_waitcnt lgkmcnt({4 if t < 31 else 0})")
        pv(x, p, 0)
        for i in range(12, 16): ex(i)
        for i in range(4, 8): cv(i)
    rdK(0, 0); rdV(0, 0); rdK(1, 2560)
    e("s_waitcnt lgkmcnt(4)")
    qkm(0, 0); e("s_nop 10"); qkt(0, 0); e("s_nop 10")
    SYN = {1: 3, 4: 7, 10: 19}; SW = ENV('SW', '27')
    T_SI, T_SR, T_SA, T_PF, T_LC = 10, ENV('TSR', '16'), 26, ENV('TPF', '15'), 27
    hk = [0]
    def cond(test, fn):
        def g():
            hk[0] += 1; lab = f"{nm}_hk{hk[0]}"
            e(test); e(f"s_cbranch_scc0 {lab}"); fn(); k.label(lab)
        return g
    def prio1(): e("s_setprio 1")
    def pref():
        for _ in range(2): e(f"buffer_load_dwordx4 {vr(PF,4)}, v22, s[12:15], s43 offen {SC}"); e("s_add_u32 s43, s43, 1024")
    def side_issue():
        e("s_cmp_eq_u32 s4, 1"); e(f"s_cbranch_scc0 {nm}_i1")
        for i in range(8):
            e(f"s_add_u32 m0, s35, {1024*i}"); e(f"s_add_u32 s27, s5, {4*3840*i}")
            e(f"buffer_load_dwordx4 v{SIDE_SV}, s[88:91], s27 offen {os.environ.get('SNT', 'nt')} lds")
        e(f"s_branch {nm}_i2")
        k.label(f"{nm}_i1")
        for i in range(5):
            e(f"s_add_u32 m0, s35, {1024*i}"); e("s_nop 0")
            e(f"buffer_load_dwordx4 v{SIDE_SV+i}, s[88:91], s5 offen {os.environ.get('SNT', 'nt')} lds")
        k.label(f"{nm}_i2")
    def side_read():
        e("s_waitcnt vmcnt(0)")
        e("s_cmp_eq_u32 s4, 1"); e(f"s_cbranch_scc0 {nm}_r1")
        for F in range(8):
            for t in range(2): e(f"ds_read_b64_tr_b16 {vr(SIDE_D+4*F+2*t,2)}, v{144+F%4} offset:{4096*(F//4)+1024*t}")
        e(f"s_branch {nm}_r2")
        k.label(f"{nm}_r1")
        for nf in range(5):
            for t in range(2): e(f"ds_read_b64_tr_b16 {vr(SIDE_D+4*nf+2*t,2)}, v{144+t if nf < 4 else 146+t} offset:{64*(nf//2)+8*(nf%2) if nf < 4 else 0}")
        k.label(f"{nm}_r2")
    def side_done():
        e("s_waitcnt lgkmcnt(0)"); e(f"v_mov_b32 v{PV_+3}, {LW-8}"); e(f"v_mov_b32 v{PV_}, 1"); e("s_mov_b64 exec, 1")
        e(f"ds_add_u32 v{PV_+3}, v{PV_}"); e("s_mov_b64 exec, -1")
    UA = (SIDE_U, 212)
    def side_sum(q):
        def g():
            if q == 0:
                for r in range(4): e(f"v_mov_b32 v{228+r}, 0x3f803f80")
            for u in range(2):
                for x in range(2): e(f"v_mfma_f32_32x32x16_bf16 {vr(UA[x],16)}, v[228:231], {vr(SIDE_D+16*u+8*q+4*x,4)}, {vr(UA[x],16) if u else 0}")
        return g
    def side_sum2(q):
        def g():
            e("v_cmp_gt_u32 vcc, 32, v1"); e(f"v_cndmask_b32 v{232+q}, v{UA[1]}, v{UA[0]}, vcc")
            e(f"buffer_store_dword v{232+q}, v143, s[12:15], s38 offen offset:{256*q} {SC}")
        return g
    def side_store(F):
        return lambda: e(f"buffer_store_dwordx4 {vr(SIDE_D+4*F,4)}, v22, s[12:15], s{53 if F < 4 else 54 if F == 4 else 58} offen offset:{1024*(F%4)} {SC}")
    def side_arrive():
        e(f"v_mov_b32 v{PV_+1}, 0"); e(f"v_mov_b32 v{PV_}, 1"); e("s_waitcnt vmcnt(0)"); e("s_mov_b64 exec, 1")
        e(f"buffer_atomic_add v{PV_}, v{PV_+1}, s[12:15], s55 offen {SC}"); e("s_mov_b64 exec, -1")
    def touch():
        e("s_cmp_eq_u32 s3, 0"); e(f"s_cbranch_scc0 {nm}_t2")
        e("buffer_load_dword v235, v234, s[12:15], s59 offen"); e(f"s_branch {nm}_t3")
        k.label(f"{nm}_t2")
        if ENV('TOUT', '0'):
            e("s_mov_b64 exec, 0xfffff"); e("buffer_load_dword v235, v234, s[60:63], s50 offen"); e("s_mov_b64 exec, -1")
        k.label(f"{nm}_t3")
    def late():
        e("s_mov_b32 exec_lo, 0xffff7fff"); e("s_mov_b32 exec_hi, 0"); e(f"buffer_load_dword v135, v134, s[12:15], 0 offen {SC}"); e("s_mov_b64 exec, -1")
    def init_words(): lw_init(k); e(f"v_mov_b32 v{PV_+3}, {LW-8}"); e(f"ds_write_b32 v{PV_+3}, v{PV_}")
    side = "s_cmp_lg_u32 s4, 0"
    for t in range(32):
        if t in SYN: k.waitvm(f"i{SYN[t]}"); e("s_barrier")
        x0, x1 = [], []
        if rnd[0] < 20: x0 += [dma, dma]; x1 += [dma, dma]
        if t in (1, 4, 10): cond("s_cmp_ge_u32 s18, 4", prio1)()
        if t == 3: x0.append(lambda: e("s_setprio 0"))
        if t == 8: x1.append(lambda: e("s_setprio 0"))
        if t == 10:
            x0.append(cond("s_cmp_eq_u32 s18, 4", lambda: lw_init(k)))
            if os.environ.get("FOC") == "at": k.stamp(2)
        if t == SW + 1 and os.environ.get("FOC") == "at": k.stamp(0)
        if t == T_SI: x1.append(cond(side, side_issue))
        if t == T_SR: x1.append(cond(side, side_read))
        if t == T_SR + 1: x0.append(cond(side, lambda: e("s_waitcnt lgkmcnt(0)"))); x1.append(cond("s_cmp_eq_u32 s4, 1", side_sum(0)))
        if t == T_SR + 2: x0.append(cond("s_cmp_eq_u32 s4, 1", side_sum2(0))); x1.append(cond("s_cmp_eq_u32 s4, 1", side_sum(1)))
        if t == T_SR + 3: x0.append(cond("s_cmp_eq_u32 s4, 1", side_sum2(1)))
        if T_SR + 1 <= t < T_SR + 9: x1.append(cond(side, side_store(t - T_SR - 1)))
        if ENV('TCH', '6') and t == ENV('TCH', '6'): x0.append(cond("s_cmp_lt_u32 s18, 4", touch))
        if t == T_SA: x0.append(cond(side, side_arrive))
        if T_PF <= t < T_PF + ENV('NPF', '14') and ENV('PFW', '1'): x0.append(cond("s_cmp_lt_u32 s18, 4", pref))
        if t == T_LC: x1.append(cond("s_cmp_eq_u32 s18, 0", late))
        if t == SW: (x1 if ENV('SWX', '0') else x0).append(lambda: e("s_setprio 0"))
        unit(0, t, x0); unit(1, t, x1)
    pv(1, 1, 1); k.stamp(4)
    if os.environ.get("FOC") == "clk": k.rstamp(2)
    e("s_mov_b32 s30, 0")
    e(f"s_mov_b32 s32, {fbits(2.0**-60)}"); e(f"s_mov_b32 s33, {fbits(2.0**100)}"); e(f"s_mov_b32 s34, {fbits(2.0**126)}")
    k.label(f"{nm}_scrok")
    e("s_nop 7")
    for i in range(3): e(f"ds_write_b128 v132, {vr(O[1]+4*i,4)} offset:{1024*i}")
    e("s_waitcnt vmcnt(0)"); e("v_cmp_gt_u32 vcc, v131, v135"); e(f"s_cbranch_vccnz {nm}_late")
    k.label(f"{nm}_lok")
    e("s_waitcnt lgkmcnt(0)"); e("s_barrier")
    for i in (2, 0, 1): e(f"ds_read_b128 {vr(SS[0]+4*i,4)}, v133 offset:{1024*i}")
    OO = O[0]
    e("s_waitcnt lgkmcnt(2)")
    for r in range(8, 12): e(f"v_add_f32 v{OO+r}, v{OO+r}, v{SS[0]+r}")
    e("s_waitcnt lgkmcnt(0)")
    for r in range(8): e(f"v_add_f32 v{OO+r}, v{OO+r}, v{SS[0]+r}")
    k.label(f"{nm}_chk")
    e(f"v_mov_b32 v30, v{OO+8}"); e(f"v_mov_b32 v31, v{OO+8}")
    e(f"v_max3_f32 v28, abs(v{OO}), abs(v{OO+1}), abs(v{OO+2})")
    e("v_permlane32_swap_b32 v30, v31")
    for r in range(3, 11, 2): e(f"v_max3_f32 v28, abs(v{OO+r}), abs(v{OO+r+1}), v28")
    e(f"v_max_f32 v28, abs(v{OO+11}), v28")
    e("v_cmp_le_f32 vcc, s32, v31"); e("v_cmp_ge_f32 s[36:37], s33, v31"); e("v_cmp_gt_f32 s[40:41], s34, v28")
    e("v_rcp_f32 v31, v31")
    e("s_and_b64 s[36:37], s[36:37], vcc"); e("s_and_b64 s[36:37], s[36:37], s[40:41]")
    e("s_cmp_eq_u64 s[36:37], -1"); e(f"s_cbranch_scc0 {nm}_slow")
    def slowpath():
        k.label(f"{nm}_late")
        e("s_mov_b32 s49, 0")
        k.label(f"{nm}_late1")
        e("s_sleep 8"); late(); e("s_add_u32 s49, s49, 1"); e("s_waitcnt vmcnt(0)")
        e("v_cmp_gt_u32 vcc, v131, v135"); e("s_cmp_ge_u32 s49, 0x20000"); e(f"s_cbranch_scc1 {nm}_lok"); e(f"s_cbranch_vccnz {nm}_late1")
        e(f"s_branch {nm}_lok")
        k.label(f"{nm}_slow")
        e("s_cmp_eq_u32 s30, 0"); e(f"s_cbranch_scc0 {nm}_fin")
        e("s_mov_b32 s30, 1")
        e("s_waitcnt vmcnt(0)")
        NM = O[1]
        e("v_mov_b32 v32, 0xff800000")
        def slowqk(c):
            e(f"buffer_load_dwordx4 {vr(KF[0],4)}, v22, s[12:15], s27 offen {SC}")
            e(f"buffer_load_dwordx2 {vr(KF[0]+4,2)}, v23, s[12:15], s27 offen offset:1024 {SC}")
            e("s_waitcnt vmcnt(0)")
            e(f"v_mfma_f32_32x32x16_bf16 {vr(SS[0],16)}, {vr(KF[0],4)}, {vr(Q[0],4)}, {c}"); e("s_nop 10")
            e(f"v_mfma_f32_32x32x8_bf16 {vr(SS[0],16)}, {vr(KF[0]+4,2)}, {vr(Q[0]+4,2)}, {vr(SS[0],16)}"); e("s_nop 12")
        e(f"s_add_u32 s27, s19, {KVIMG}"); e("s_mov_b32 s31, 0")
        k.label(f"{nm}_mx")
        slowqk("0")
        for r in range(0, 16, 2): e(f"v_max3_f32 v32, v{SS[0]+r}, v{SS[0]+r+1}, v32")
        e("s_add_u32 s27, s27, 2560")
        e("s_add_u32 s31, s31, 1"); e("s_cmp_lt_u32 s31, 64"); e(f"s_cbranch_scc1 {nm}_mx")
        k.allred32("v_max_f32", 32, 33)
        e("v_xor_b32 v32, 0x80000000, v32")
        for r in range(16): e(f"v_mov_b32 v{NM+r}, v32")
        for r in range(16): e(f"v_mov_b32 v{OO+r}, 0")
        for r in range(8): e(f"v_mov_b32 v{VF[0]+r}, v20")
        e(f"s_add_u32 s27, s19, {KVIMG}"); e("s_mov_b32 s31, 0")
        k.label(f"{nm}_sl")
        e("s_mov_b64 exec, s[28:29]")
        e(f"buffer_load_dwordx4 {vr(VF[0],4)}, v21, s[12:15], s27 offen {SC}")
        e(f"buffer_load_dwordx4 {vr(VF[0]+4,4)}, v21, s[12:15], s27 offen offset:640 {SC}")
        e("s_mov_b64 exec, -1")
        slowqk(vr(NM,16))
        for i in range(16): e(f"v_exp_f32 v{SS[0]+i}, v{SS[0]+i}")
        e("s_nop 0")
        for i in range(8): e(f"v_cvt_pk_bf16_f32 v{P+i}, v{SS[0]+2*i}, v{SS[0]+2*i+1}")
        e("s_nop 1")
        pv(0, 0, 0); pv(0, 0, 1)
        e("s_add_u32 s27, s27, 2560")
        e("s_add_u32 s31, s31, 1"); e("s_cmp_lt_u32 s31, 64"); e(f"s_cbranch_scc1 {nm}_sl")
        e("s_nop 12"); e(f"s_branch {nm}_chk")
    k.tail = slowpath
    k.label(f"{nm}_fin")
    e("s_nop 0")
    for r in range(12): e(f"v_mul_f32 v{OO+r}, v{OO+r}, v31")
    for r in range(6): e(f"v_cvt_pk_bf16_f32 v{P+r}, v{OO+2*r}, v{OO+2*r+1}")
    e(f"buffer_store_dwordx4 {vr(P,4)}, v39, s[12:15], s51 offen {SC}")
    e("s_mov_b32 exec_hi, 0")
    e(f"buffer_store_dwordx2 {vr(P+4,2)}, v38, s[12:15], s52 offen {SC}")
    e("s_mov_b64 exec, -1")
    k.stamp(5)
    e("v_lshlrev_b32 v3, 4, v1")
    k.vm = []; k.lg = []

def proj_c(k, tag, src, xin, xout, stout, last, cnt_code, word, st0):
    final = False
    e = k.e
    ACC, RESID, A, BF = 24, 44, 76, 156
    NA0 = ENV('PA0', '8')
    ids_rt(k)
    e("s_lshl_b32 s19, s16, 2"); e("s_add_u32 s19, s19, s39")
    e("s_mul_i32 s24, s19, 20480")
    e("s_lshr_b32 s33, s17, 1"); e("s_mul_i32 s33, s33, 5120"); e("s_add_u32 s33, s33, s24")
    e("s_and_b32 s34, s17, 1"); e("s_mul_i32 s35, s34, 3072"); e("s_add_u32 s35, s35, s33")
    e("s_lshl_b32 s36, s34, 9"); e("s_add_u32 s36, s36, s33"); e("s_add_u32 s36, s36, 2048")
    e(f"s_add_u32 s37, s35, {xin}"); e(f"s_add_u32 s38, s36, {xin}")
    e("v_lshrrev_b32 v13, 5, v1"); e("v_lshlrev_b32 v13, 8, v13"); e("v_and_b32 v14, 15, v1"); e("v_lshl_add_u32 v13, v14, 4, v13")
    e("v_bfe_u32 v14, v1, 4, 1"); e("v_lshl_add_u32 v13, v14, 3, v13")
    k.vmop(f"buffer_load_dwordx4 {vr(RESID,4)}, v3, {RS_(xin)}, s37 offen {SC}", "r")
    k.vmop(f"buffer_load_dwordx4 {vr(RESID+4,4)}, v3, {RS_(xin)}, s37 offen offset:1024 {SC}", "r")
    k.vmop(f"buffer_load_dwordx2 {vr(RESID+8,2)}, v13, {RS_(xin)}, s38 offen {SC}", "r")
    e(f"s_add_u32 s24, s24, {src}")
    for i in range(1, 5): e(f"s_add_u32 s{24+i}, s24, {4096*i}")
    e("v_lshrrev_b32 v9, 4, v1"); e("v_add_u32 v12, 61440, v3")
    wait_go(k, tag, word, cnt_code)
    k.stamp(st0)
    def ldA(n): k.vmop(f"buffer_load_dwordx4 {vr(A+4*n,4)}, v3, s[12:15], s{24+n//4} offen offset:{(n%4)*1024} {SC}", f"a{n}")
    for n in range(NA0): ldA(n)
    k.waitvm("r")
    for i in range(10):
        e(f"v_lshlrev_b32 v{ACC+2*i}, 16, v{RESID+i}"); e(f"v_and_b32 v{ACC+2*i+1}, 0xffff0000, v{RESID+i}")
    def rd(n, nf):
        off = n*5120 + nf*1024; b = 3
        if n >= 12: off -= 61440; b = 12
        k.dsop(f"ds_read_b128 {vr(BF+20*(n%2)+4*nf,4)}, v{b} offset:{off}", f"b{n}_{nf}")
    e("s_barrier")
    for n in range(2):
        for nf in range(5): rd(n, nf)
    for n in range(20):
        if n < 2 or n % 2 == 0: k.waitvm(f"a{min(n + (n >= 2), 19)}")
        if n == 0: k.stamp(st0+1)
        for nf in range(5):
            if ENV('PW1', '1'):
                if nf == 0: k.waitlg(f"b{n}_4")
            elif nf in (0, 2, 4): k.waitlg(f"b{n}_{min(nf+1,4)}")
            if n == 12 and nf == 0 and not final: e("s_barrier")
            e(f"v_mfma_f32_16x16x32_bf16 {vr(ACC+4*nf,4)}, {vr(BF+20*(n%2)+4*nf,4)}, {vr(A+4*n,4)}, {vr(ACC+4*nf,4)}")
            if n + 2 < 20: rd(n+2, nf)
            if nf == 0 and n + NA0 < 20: ldA(n + NA0)
    e("s_barrier")
    if last:
        e("s_cmp_eq_u32 s3, 0"); e(f"s_cbranch_scc1 {k.name}_nf")
        e("v_and_b32 v16, 15, v1"); e("v_mul_u32_u24 v16, 1280, v16"); e("v_lshl_add_u32 v17, v9, 3, v16"); e("v_lshl_add_u32 v16, v9, 4, v16")
        e("s_mul_i32 s32, s19, 20480"); e("s_mul_i32 s31, s17, 160"); e("s_add_u32 s32, s32, s31")
        e("s_lshl_b32 s31, s34, 5"); e("s_add_u32 s33, s32, s31"); e("s_xor_b32 s31, s34, 1"); e("s_lshl_b32 s31, s31, 7"); e("s_add_u32 s32, s32, s31")
        FSC = os.environ.get("FSC", "")
        for i in range(10): e(f"v_cvt_pk_bf16_f32 v{RESID+i}, v{ACC+2*i}, v{ACC+2*i+1}")
        e(f"buffer_store_dwordx4 {vr(RESID,4)}, v16, s[60:63], s33 offen {FSC}")
        e(f"buffer_store_dwordx4 {vr(RESID+4,4)}, v16, s[60:63], s33 offen offset:64 {FSC}")
        e(f"buffer_store_dwordx2 {vr(RESID+8,2)}, v17, s[60:63], s32 offen {FSC}")
        k.stamp(st0+2)
        if STAMP: e("s_waitcnt vmcnt(0)")
        k.dump(15, "2")
        e("s_endpgm")
        k.label(f"{k.name}_nf")
    if True:
        e(f"s_add_u32 s37, s35, {xout}"); e(f"s_add_u32 s38, s36, {xout}")
        e("s_lshl_b32 s32, s19, 10"); e("s_lshl_b32 s33, s17, 7"); e("s_add_u32 s32, s32, s33"); e(f"s_add_u32 s32, s32, {stout}")
        e("v_lshlrev_b32 v16, 3, v1")
        for i in range(10): e(f"v_cvt_pk_bf16_f32 v{RESID+i}, v{ACC+2*i}, v{ACC+2*i+1}")
        e(f"buffer_store_dwordx4 {vr(RESID,4)}, v3, {RS_(xout)}, s37 offen {SC}")
        e(f"buffer_store_dwordx4 {vr(RESID+4,4)}, v3, {RS_(xout)}, s37 offen offset:1024 {SC}")
        e(f"buffer_store_dwordx2 {vr(RESID+8,2)}, v13, {RS_(xout)}, s38 offen {SC}")
        e(f"v_add_f32 v18, v{ACC}, v{ACC+1}"); e(f"v_mul_f32 v19, v{ACC}, v{ACC}"); e(f"v_add_f32 v20, v{ACC+2}, v{ACC+3}"); e(f"v_mul_f32 v21, v{ACC+1}, v{ACC+1}")
        e(f"v_fmac_f32 v19, v{ACC+2}, v{ACC+2}"); e(f"v_fmac_f32 v21, v{ACC+3}, v{ACC+3}")
        for i in range(4, 20, 2):
            e(f"v_add_f32 v18, v18, v{ACC+i}"); e(f"v_fmac_f32 v19, v{ACC+i}, v{ACC+i}")
            e(f"v_add_f32 v20, v20, v{ACC+i+1}"); e(f"v_fmac_f32 v21, v{ACC+i+1}, v{ACC+i+1}")
        e("v_add_f32 v18, v18, v20"); e("v_add_f32 v19, v19, v21")
        for sw in ("v_permlane16_swap_b32", "v_permlane32_swap_b32"):
            e("v_mov_b32 v20, v18"); e("v_mov_b32 v21, v19"); e("s_nop 0")
            e(f"{sw} v18, v20"); e(f"{sw} v19, v21"); e("s_nop 0")
            e("v_add_f32 v18, v18, v20"); e("v_add_f32 v19, v19, v21")
        e("s_mov_b64 exec, 0xffff")
        e(f"buffer_store_dwordx2 v[18:19], v16, {RS_(xout)}, s32 offen {SC}")
    k.stamp(st0+2)

def proj_l(k, wimg, nxt, src, sig=None, done=0, last=False):
    e = k.e
    if nxt is not None:
        ids_mt(k)
        e("s_min_u32 s17, s17, 14" if nxt == WA_I else "s_nop 0")
        e("s_mul_i32 s58, s17, 163840"); e("s_add_u32 s58, s58, s45"); e(f"s_add_u32 s58, s58, {nxt}")
    ids_rt(k)
    e("s_mul_i32 s50, s17, 102400"); e("s_add_u32 s50, s50, s45"); e(f"s_add_u32 s50, s50, {wimg}")
    e("s_mul_i32 s51, s16, 81920"); e("s_lshl_b32 s52, s17, 2"); e("s_add_u32 s52, s52, s39"); e("s_mul_i32 s52, s52, 2560"); e("s_add_u32 s51, s51, s52"); e(f"s_add_u32 s51, s51, {src}")
    e("v_min_u32 v21, 39, v1"); e("v_lshlrev_b32 v21, 6, v21")
    w = Wdma(k, 25, 50, "o"); k.vm = []
    T1, T2 = ENV('T1', '0'), ENV('T2', '3')
    if sig:
        signal(k, "s1l", 0, 8, sig)
        ub_prep(k, 0)
    if last: w.rng(0, 6); e("s_barrier"); done = 6
    w.rng(done, 25, T1 if sig else ENV('T4', '0'))
    w2 = Wdma(k, 40, 58)
    if last:
        e("s_cmp_eq_u32 s3, 0"); e(f"s_cbranch_scc1 {k.name}_nl")
        e("s_waitcnt vmcnt(0)"); e("s_barrier"); e("buffer_load_dword v20, v21, s[12:15], s51 offen"); e("s_endpgm")
        k.label(f"{k.name}_nl")
    if sig:
        w2.rng(25, 33, T1)
        e(f"v_mov_b32 v{PV_+3}, {LW}"); e("s_mov_b32 s49, 0")
        k.label(f"{k.name}_a8")
        e(f"ds_read_b32 v{PV_}, v{PV_+3}"); e("s_add_u32 s49, s49, 1"); e("s_waitcnt lgkmcnt(0)"); e(f"v_readfirstlane_b32 s44, v{PV_}")
        e("s_cmp_ge_u32 s49, 0x400000"); e("s_cselect_b32 s44, 8, s44"); e("s_cmp_lt_u32 s44, 8"); e(f"s_cbranch_scc1 {k.name}_a8")
    if nxt is not None: w2.rng(33 if sig else 32, 39, T1 if sig else ENV('T4', '0'))
    if sig: ub_prep(k, 1)
    if last and ENV('WPF', '0'):
        e("v_lshlrev_b32 v22, 7, v1"); e("s_and_b32 s32, s21, 1"); e("s_lshl_b32 s32, s32, 2"); e("s_add_u32 s32, s32, s39"); e("s_lshl_b32 s32, s32, 14")
        e("s_sub_u32 s33, s58, s45"); e("s_add_u32 s33, s33, s32")
        for i in range(2):
            k.vmop(f"buffer_load_dword v23, v22, s[12:15], s33 offen {SC}"); e("s_add_u32 s33, s33, 8192")
            if ENV('WPF', '0') == 2: e("s_waitcnt vmcnt(0)"); k.vm = []
    k.waitvm("o24")
    e("s_barrier")
    if ENV('ATOUCH', '0'):
        k.vmop("buffer_load_dword v20, v21, s[12:15], s51 offen")
    if nxt is not None:
        if not sig: w2.rng(25, 32)
        e("s_barrier")
        w2.rng(0, 15, ENV('T3', '0'))
        e("s_barrier")
        k.waitvm("w14")
        if ENV('LSL', '0'): e(f"s_sleep {ENV('LSL', '0')}")
        w2.rng(15, 25, T2)
    return w2

def stats16(k, s, rstd, mop, mask):
    e = k.e
    e(f"v_add_f32 v{s}, v{s}, v{s+2}"); e(f"v_add_f32 v{s+1}, v{s+1}, v{s+3}")
    k.allred16("v_add_f32", s, s+2); k.allred16("v_add_f32", s+1, s+3)
    k.allred32("v_add_f32", s, s+2); k.allred32("v_add_f32", s+1, s+3)
    stats_finish(k, s, s+1, s+2, rstd, s+3)
    split3(k, s+2, mop, 17, 'm', mask)
def usum(k, u, dst, t=17):
    e = k.e
    e(f"v_add_f32 v{u}, v{u}, v{u+1}"); e(f"v_add_f32 v{u+2}, v{u+2}, v{u+3}"); e(f"v_add_f32 v{u}, v{u}, v{u+2}")
    split3(k, u, dst, t, 'u')
def scale_pack(k, a, sc, dst):
    for r in range(4): k.e(f"v_mul_f32 v{a+r}, v{a+r}, v{sc(r)}")
    for r in range(2): k.e(f"v_cvt_pk_bf16_f32 v{dst+r}, v{a+2*r}, v{a+2*r+1}")
EX = 102400
SOFF = 2*8192 + 7296
UOFF = lambda F: (F//4)*8192 + 7168 + (F%4)*256 + 128
TOKF = (0, 1, 2, 3, 6); FEAF = (4, 5, 7)

UO = 3456
def ub_prep(k, part):
    e = k.e
    if part:
        k.waitvm("up")
        for j_ in range(5): e(f"v_add_f32 v{64+j_}, v{64+j_}, v{69+j_}")
        e("v_add_f32 v64, v64, v65"); e("v_add_f32 v66, v66, v67"); e("v_add_f32 v64, v64, v68"); e("v_add_f32 v64, v64, v66")
        k.allred32("v_add_f32", 64, 65); split3(k, 64, 28, 17, 'u')
        return
    e("v_lshrrev_b32 v6, 5, v1"); e("v_and_b32 v5, 31, v1"); e("s_lshr_b32 s30, s21, 1")
    e("v_mul_u32_u24 v12, 5120, v6"); e("v_lshl_add_u32 v12, v5, 2, v12")
    e("s_mul_i32 s30, s30, 10240"); e("s_lshl_b32 s31, s39, 7"); e("s_add_u32 s30, s30, s31"); e(f"s_add_u32 s30, s30, {U_B}"); e("s_add_u32 s31, s30, 2560")
    for j_ in range(10): k.vmop(f"buffer_load_dword v{64+j_}, v12, s[12:15], s{30+j_//5} offen offset:{512*(j_%5)}", "up")
    e("v_bfe_u32 v6, v1, 4, 1"); e("v_lshlrev_b32 v46, 9, v6"); e("v_and_b32 v5, 15, v1"); e("v_lshl_add_u32 v46, v5, 3, v46")
    e("s_lshl_b32 s30, s39, 12"); e("v_add_u32 v46, s30, v46")

def atouch_pre(k, xin):
    e = k.e
    e("s_mul_i32 s51, s16, 163840"); e("s_lshl_b32 s52, s17, 2"); e("s_add_u32 s52, s52, s39"); e("s_mul_i32 s52, s52, 2560"); e("s_add_u32 s51, s51, s52"); e(f"s_add_u32 s51, s51, {xin}")
    e("v_min_u32 v21, 39, v1"); e("v_lshlrev_b32 v21, 6, v21")

G_ACC, G_BF, G_AR, G_DA = 64, 128, 160, 5
def gemm32_pre(k, xin, stin):
    e = k.e
    e("v_and_b32 v10, 31, v1"); e("v_lshrrev_b32 v4, 5, v1"); e("v_and_b32 v5, 15, v1")
    e("s_lshl_b32 s19, s16, 2"); e("s_add_u32 s19, s19, s18")
    e("v_bfe_u32 v7, v1, 4, 1"); e("v_mul_u32_u24 v8, 20480, v7"); e("v_lshl_add_u32 v8, v4, 8, v8"); e("v_lshl_add_u32 v8, v5, 4, v8")
    e("v_lshlrev_b32 v11, 10, v7"); e("v_lshl_add_u32 v11, v4, 9, v11"); e("v_lshl_add_u32 v11, v5, 3, v11")
    e("s_lshl_b32 s30, s19, 11"); e(f"s_add_u32 s30, s30, {stin}")
    e("s_mul_i32 s24, s19, 40960"); e(f"s_add_u32 s24, s24, {xin}")
    e("v_add_u32 v41, 65536, v3"); e("v_add_u32 v42, 131072, v3")
    e("v_subrev_u32 v58, 1, v4"); e("v_not_b32 v59, v58")
def gemm32_loads(k, R):
    e = k.e
    def ldA(ks):
        if ks % 4 == 0 and ks > 0: e("s_add_u32 s24, s24, 4096")
        for u in range(2):
            k.vmop(f"buffer_load_dwordx4 {vr(G_AR+8*(ks%G_DA)+4*u,4)}, v8, {R}, s24 offen offset:{(ks%4)*1024+512*u} {SC}", f"a{ks}")
    ldA(0)
    for q in range(4): k.vmop(f"buffer_load_dwordx2 {vr(16+2*q,2)}, v11, {R}, s30 offen offset:{128*q} {SC}", "st")
    for ks in range(1, G_DA-1): ldA(ks)
    return ldA
def gemm32_stats(k):
    e = k.e
    k.waitvm("st")
    e("v_add_f32 v16, v16, v18"); e("v_add_f32 v17, v17, v19"); e("v_add_f32 v20, v20, v22"); e("v_add_f32 v21, v21, v23")
    e("v_add_f32 v16, v16, v20"); e("v_add_f32 v17, v17, v21")
    k.allred32("v_add_f32", 16, 18); k.allred32("v_add_f32", 17, 18)
    stats_finish(k, 16, 17, 46, 47, 18)
    split3(k, 46, 48, 18, 'm', 58)
TN = 4
def gemm32(k, vmode, fl, ldA, bars, st0, late=None):
    e = k.e; ACC, BF, AR, DA = G_ACC, G_BF, G_AR, G_DA
    acc = lambda jf: vr(ACC+16*jf, 16)
    ops = [(ks, f//4, f%4) for ks in range(20-TN) for f in range(8)] + [(ks, u, jf) for jf in range(4) for ks in range(20-TN, 20) for u in range(2)]
    def rd(i):
        ks, u, jf = ops[i]; off = ks*8192 + 1024*(4*u+jf); hi = off >> 16
        k.dsop(f"ds_read_b128 {vr(BF+4*(i%8),4)}, v{(3,41,42)[hi]} offset:{off & 0xffff}", f"b{i}")
    def mm(i):
        ks, u, jf = ops[i]
        if i % 2 == 0: k.waitlg(f"b{i+1}")
        a = vr(AR+8*(ks%DA)+4*u, 4); b = vr(BF+4*(i%8), 4); c = acc(jf) if (ks or u) else "0"
        if vmode: e(f"v_mfma_f32_32x32x16_bf16 {acc(jf)}, {a}, {b}, {c}")
        else:     e(f"v_mfma_f32_32x32x16_bf16 {acc(jf)}, {b}, {a}, {c}")
        if i + 8 < 160: rd(i + 8)
    e("s_barrier")
    for i in range(8): rd(i)
    for ks in range(20-TN):
        k.waitvm(f"a{ks}")
        if ks == 0: k.stamp(st0+1)
        if ks in bars: e("s_barrier")
        if late and ks == late[0]: k.fill(fl, 1000); fl += late[1]
        for f in range(8):
            mm(8*ks + f)
            if f == 0 and ks + DA - 1 < 20: ldA(ks + DA - 1)
            if ks >= 1: k.fill(fl, 2)
    k.fill(fl, 1000)
    for jf in range(4):
        if vmode: e(f"v_mfma_f32_32x32x8_bf16 {acc(jf)}, v[48:49], {vr(50+2*jf,2)}, {acc(jf)}")
        else:     e(f"v_mfma_f32_32x32x8_bf16 {acc(jf)}, {vr(50+2*jf,2)}, v[48:49], {acc(jf)}")
    def tail(epi, tbars=(), end=None):
        pend = []
        for jf in range(4):
            if jf in tbars: e("s_barrier")
            for n in range(2*TN):
                i = 8*(20-TN) + 2*TN*jf + n
                if n % 2 == 0: k.waitvm(f"a{ops[i][0]}")
                mm(i)
                if n >= 2: k.fill(pend, ENV('TFILL', '5'))
            k.fill(pend, 1000)
            if jf == 3:
                k.stamp(st0+2)
                if end: end()
            pend = k.capture(lambda: epi(jf))
        k.fill(pend, 1000)
    return tail

TB, TS = 88448, 296
def toff(G): return (0, 64, 128, 168, 208, 248)[G//5] + 8*(G%5)

def qkvb_c(k, xin, stin, st0):
    e = k.e; nm = k.name
    ACC, BF = G_ACC, G_BF
    ids_mt(k); gemm32_pre(k, xin, stin)
    e("v_lshrrev_b32 v6, 4, v1")
    MC, MP, MP1 = 200, 204, 208
    NEG = fbits(-1e30)
    e("v_lshlrev_b32 v17, 2, v6"); e("v_sub_u32 v17, v5, v17"); e(f"v_mov_b32 v19, {NEG}")
    for r in range(4):
        e(f"v_subrev_u32 v18, {r}, v17"); e("v_and_b32 v16, 0x80000001, v18")
        e("v_cmp_eq_u32 vcc, 0, v16"); e(f"v_cndmask_b32 v{MC+r}, v19, 0, vcc")
        e("v_cmp_eq_u32 vcc, 0x80000000, v16"); e(f"v_cndmask_b32 v{MP+r}, v19, 0, vcc")
    e("s_cmp_eq_u32 s19, 0"); e(f"s_cselect_b32 s34, {NEG}, 0")
    for r in range(4): e(f"v_add_f32 v{MP1+r}, s34, v{MP+r}")
    e(f"s_mul_i32 s35, s18, {32*TS}"); e(f"s_add_u32 s35, s35, {TB}")
    e(f"v_mul_u32_u24 v16, {TS}, v10"); e("v_add_u32 v16, s35, v16"); e(f"v_add_u32 v16, {16*TS}, v16")
    e("v_lshl_add_u32 v212, v4, 3, v16"); e("v_lshl_add_u32 v213, v4, 5, v16"); e("v_mov_b32 v219, v16")
    e("v_lshl_add_u32 v215, v4, 6, v16")
    e(f"v_mul_u32_u24 v16, {TS}, v5"); e("v_add_u32 v16, s35, v16"); e("v_lshl_add_u32 v216, v6, 4, v16")
    e("v_lshrrev_b32 v17, 2, v1"); e(f"v_mul_u32_u24 v16, {TS}, v17"); e("v_add_u32 v16, s35, v16"); e("v_and_b32 v17, 3, v1")
    e("v_lshl_add_u32 v217, v17, 3, v16")
    e("v_mul_u32_u24 v18, 40, v17"); e("v_add_u32 v18, 240, v18"); e("v_cmp_gt_u32 vcc, 2, v17"); e("v_mov_b32 v19, 288"); e("v_cndmask_b32 v18, v19, v18, vcc"); e("v_add_u32 v218, v16, v18")
    e("v_lshlrev_b32 v43, 9, v7"); e("v_lshl_add_u32 v43, v5, 3, v43")
    e("v_mov_b32 v220, 0"); e("v_mov_b32 v221, 0"); e("v_mov_b32 v222, 0x3f803f80"); e("v_mov_b32 v223, 0x3f803f80")
    e("s_mul_i32 s25, s19, 40960"); e(f"s_add_u32 s25, s25, {OBT}")
    e("s_lshl_b32 s51, s17, 10"); e("s_add_u32 s51, s51, s25"); e("s_add_u32 s52, s51, 20480")
    e("s_lshr_b32 s53, s17, 2"); e("s_add_u32 s53, s53, 16"); e("s_lshl_b32 s53, s53, 10"); e("s_add_u32 s53, s53, s25")
    e("s_and_b32 s54, s17, 1"); e("s_lshl_b32 s54, s54, 9"); e("s_add_u32 s53, s53, s54")
    e("s_bfe_u32 s54, s17, 0x10001"); e("s_lshl_b32 s54, s54, 3"); e("s_add_u32 s53, s53, s54"); e("s_add_u32 s54, s53, 20480")
    def c2():
        e("s_lshl_b32 s48, s16, 9"); e(f"s_add_u32 s48, s48, {C2}")
        e(f"v_lshlrev_b32 v{PV_+1}, 8, v1"); e(f"v_lshlrev_b32 v{PV_+2}, 3, v1"); e(f"v_sub_u32 v{PV_+2}, 16, v{PV_+2}")
        e("s_cmp_eq_u32 s16, 0"); e("s_cselect_b64 s[56:57], 1, 3")
    e("s_cmp_eq_u32 s18, 1"); e(f"s_cbranch_scc0 {nm}_ad"); e("v_lshlrev_b32 v16, 8, v1"); e("s_mov_b32 s49, 0")
    k.label(f"{nm}_ap")
    e(f"buffer_load_dword v17, v16, s[8:11], 0 offen offset:{C1} {SC}"); e("s_add_u32 s49, s49, 1"); e("s_waitcnt vmcnt(0)")
    e("v_cmp_gt_u32 vcc, 16, v17"); e("s_cmp_ge_u32 s49, 0x20000"); e(f"s_cbranch_scc1 {nm}_ad"); e(f"s_cbranch_vccnz {nm}_ap")
    k.label(f"{nm}_ad")
    wait_go(k, "p3", 1, c2)
    k.stamp(st0)
    ldA = gemm32_loads(k, RS_(xin))
    fl = k.capture(lambda: (gemm32_stats(k), e(f"v_mul_f32 v45, {fbits(CSCALE)}, v47")))
    def uops():
        for jf in range(4): k.dsop(f"ds_read_b64 {vr(50+2*jf,2)}, v43 offset:{UO+4096*jf}", "uo")
    tail = gemm32(k, False, fl, ldA, {6}, st0, (8, k.capture(uops)))
    def tab(jf):
        if jf == 0:
            for q in range(3): k.dsop(f"ds_write_b64 v215, v[220:221] offset:{40+8*q}")
            k.dsop("ds_write_b64 v219, v[222:223] offset:288")
        for G in range(8*jf, min(8*jf+8, 30), 2):
            a = ACC + 2*G
            for r in range(4): e(f"v_mul_f32 v{a+r}, v{a+r}, v{45 if G < 10 else 47}")
            for r in range(2): e(f"v_cvt_pk_bf16_f32 v{a+r}, v{a+2*r}, v{a+2*r+1}")
            k.dsop(f"ds_write_b64 v{ {8: 212, 32: 213}[toff(G+1) - toff(G)] }, {vr(a,2)} offset:{toff(G)}")
    def words():
        e("s_cmp_eq_u32 s18, 0"); e(f"s_cbranch_scc0 {nm}_ni"); lw_init(k); k.label(f"{nm}_ni")
    tail(tab, (0, 2), words)
    e("s_waitcnt lgkmcnt(0)"); e("s_barrier")
    KO = lambda b, h: 160 + 8*b + 4*h
    QO = lambda b, h: 184 + 8*(b-1) + 4*h
    VO = lambda F, b: 20 + 8*FEAF.index(F) + 2*b if False else 224 + 6*FEAF.index(F) + 2*b - (0)
    VO = lambda F, b: (128, 136, 144)[FEAF.index(F)] + 2*b
    for b in (1, 2):
        for h in range(2):
            for x in range(2): e(f"ds_read_b64 {vr(QO(b,h)+2*x,2)}, v216 offset:{16*b*TS+64*h+8*x}")
    for b in range(3):
        for h in range(2):
            for x in range(2): e(f"ds_read_b64 {vr(KO(b,h)+2*x,2)}, v216 offset:{16*b*TS+128+40*h+8*x}")
    e("s_waitcnt lgkmcnt(0)")
    for b in range(3):
        for h in range(2): e(f"ds_read_b64_tr_b16 {vr(VO(4+h,b),2)}, v217 offset:{16*b*TS+208+40*h}")
        e(f"ds_read_b64_tr_b16 {vr(VO(7,b),2)}, v218 offset:{16*b*TS}")
    units = [(b, h) for b in (1, 2) for h in range(2)]
    SU = lambda i: 64 + 8*i
    TU = lambda i: ACC + 32 + 4*i
    PU = lambda i: ACC + 48 + 4*i
    OU = lambda i: 64 + 8*i
    for i, (b, h) in enumerate(units):
        e(f"v_mfma_f32_16x16x32_bf16 {vr(SU(i),4)}, {vr(KO(b-1,h),4)}, {vr(QO(b,h),4)}, {vr(MP1 if b == 1 else MP,4)}")
        e(f"v_mfma_f32_16x16x32_bf16 {vr(SU(i)+4,4)}, {vr(KO(b,h),4)}, {vr(QO(b,h),4)}, {vr(MC,4)}")
    e("s_waitcnt lgkmcnt(0)"); e("s_barrier")
    def allred(op):
        for sw in ("v_permlane16_swap_b32", "v_permlane32_swap_b32"):
            for i in range(4): e(f"v_mov_b32 v{TU(i)+1}, v{TU(i)}")
            for i in range(4): e(f"{sw} v{TU(i)}, v{TU(i)+1}")
            for i in range(4): e(f"{op} v{TU(i)}, v{TU(i)}, v{TU(i)+1}")
    for i in range(4):
        s = SU(i)
        e(f"v_max3_f32 v{TU(i)}, v{s}, v{s+1}, v{s+2}"); e(f"v_max3_f32 v{TU(i)}, v{s+3}, v{s+4}, v{TU(i)}")
        e(f"v_max3_f32 v{TU(i)}, v{s+5}, v{s+6}, v{TU(i)}"); e(f"v_max_f32 v{TU(i)}, v{s+7}, v{TU(i)}")
    allred("v_max_f32")
    for i in range(4):
        for r in range(8): e(f"v_sub_f32 v{SU(i)+r}, v{SU(i)+r}, v{TU(i)}")
    for i in range(4):
        for r in range(8): e(f"v_exp_f32 v{SU(i)+r}, v{SU(i)+r}")
    for i in range(4):
        for r in range(4): e(f"v_cvt_pk_bf16_f32 v{PU(i)+r}, v{SU(i)+2*r}, v{SU(i)+2*r+1}")
    for i, (b, h) in enumerate(units):
        e(f"v_mfma_f32_16x16x32_bf16 {vr(OU(i)+4,4)}, {vr(VO(7,b-1),4)}, {vr(PU(i),4)}, 0")
    for i, (b, h) in enumerate(units):
        e(f"v_mfma_f32_16x16x32_bf16 {vr(OU(i),4)}, {vr(VO(4+h,b-1),4)}, {vr(PU(i),4)}, 0")
    for i in range(4): e(f"v_mov_b32 v{TU(i)}, v{OU(i)+4}"); e(f"v_mov_b32 v{TU(i)+1}, v{OU(i)+4}")
    for i in range(4): e(f"v_permlane32_swap_b32 v{TU(i)}, v{TU(i)+1}")
    for i in range(4): e(f"v_rcp_f32 v{TU(i)+1}, v{TU(i)+1}")
    e("v_cmp_eq_u32 vcc, 0, v6")
    for bi in range(2):
        o0, o1 = OU(2*bi), OU(2*bi+1); d = 40 + 8*bi; t0, t1 = TU(2*bi)+1, TU(2*bi+1)+1
        for r in range(4): e(f"v_mul_f32 v{o0+r}, v{o0+r}, v{t0}"); e(f"v_mul_f32 v{o1+r}, v{o1+r}, v{t1}")
        e(f"v_cvt_pk_bf16_f32 v{d}, v{o0}, v{o0+1}"); e(f"v_cvt_pk_bf16_f32 v{d+1}, v{o0+2}, v{o0+3}")
        e(f"v_cvt_pk_bf16_f32 v{d+2}, v{o1}, v{o1+1}"); e(f"v_cvt_pk_bf16_f32 v{d+3}, v{o1+2}, v{o1+3}")
        e(f"buffer_store_dwordx4 {vr(d,4)}, v3, s[12:15], s{51+bi} offen {SC}")
        e(f"v_cndmask_b32 v{t0}, v{t1}, v{t0}, vcc")
        for r in range(4): e(f"v_cndmask_b32 v{o0+4+r}, v{o1+4+r}, v{o0+4+r}, vcc")
        for r in range(4): e(f"v_mul_f32 v{o0+4+r}, v{o0+4+r}, v{t0}")
        e(f"v_cvt_pk_bf16_f32 v{d+4}, v{o0+4}, v{o0+5}"); e(f"v_cvt_pk_bf16_f32 v{d+5}, v{o0+6}, v{o0+7}")
    e("s_mov_b32 exec_hi, 0")
    for bi in range(2): e(f"buffer_store_dwordx2 {vr(44+8*bi,2)}, v3, s[12:15], s{53+bi} offen {SC}")

def qkvb_l(k, xin, stin, w):
    e = k.e; nm = k.name
    ids_mt(k)
    e("v_and_b32 v5, 15, v1"); e("v_lshrrev_b32 v6, 4, v1")
    e("v_lshlrev_b32 v11, 3, v5"); e("v_lshl_add_u32 v11, v6, 8, v11")
    e("v_cmp_eq_u32 vcc, 0, v6"); e("s_lshl_b32 s22, s16, 3"); e("s_max_u32 s22, s22, 1"); e("v_cndmask_b32 v4, 0, -1, vcc")
    e("s_sub_u32 s22, s22, 1")
    e("s_mul_i32 s24, s22, 20480"); e(f"s_add_u32 s24, s24, {xin}"); e("s_add_u32 s24, s24, s45")
    e("s_lshl_b32 s27, s22, 10"); e(f"s_add_u32 s27, s27, {stin}")
    HP = 49152
    e("v_lshrrev_b32 v12, 1, v6"); e("v_lshlrev_b32 v40, 12, v12"); e("v_and_b32 v12, 1, v6"); e("v_lshl_add_u32 v40, v12, 9, v40"); e("v_lshl_add_u32 v40, v5, 4, v40")
    e("s_lshl_b32 s32, s39, 13"); e("v_add_u32 v40, s32, v40"); e("v_add_u32 v41, 65536, v40"); e("v_add_u32 v42, 131072, v40")
    e("s_mul_i32 s33, s39, 6144"); e(f"s_add_u32 s33, s33, {HP}"); e("v_add_u32 v43, s33, v3")
    e("s_min_u32 s40, s39, 2"); e("s_lshl_b32 s41, s40, 11"); e(f"s_add_u32 s41, s41, {HP}"); e("v_add_u32 v44, s41, v3")
    e("s_lshl_b32 s41, s40, 12"); e("v_lshlrev_b32 v45, 3, v5"); e("v_add_u32 v45, s41, v45")
    e(f"v_mul_u32_u24 v12, {TS}, v5"); e(f"v_add_u32 v12, {TB}, v12"); e("s_lshl_b32 s41, s40, 3"); e("s_sub_u32 s41, s41, 2")
    for x in range(2):
        e(f"v_add_u32 v13, s41, v6")
        if x: e("v_add_u32 v13, 4, v13")
        e("v_add_u32 v14, 16, v13")
        e("v_cmp_gt_u32 vcc, 20, v13"); e("v_cndmask_b32 v14, 0, v14, vcc"); e(f"v_lshl_add_u32 v{50+x}, v14, 3, v12")
    e("v_mov_b32 v47, v12"); e("v_mov_b32 v56, 0x3f803f80"); e("v_mov_b32 v57, 0x3f803f80")
    atouch_pre(k, xin)
    e(f"s_setprio {ENV('P3PRIO', '0')}")
    e("s_barrier")
    if ENV('ATOUCH', '0'): k.vmop("buffer_load_dword v20, v21, s[12:15], s51 offen")
    w.one(39)
    e(f"ds_write_b64 v46, v[28:29] offset:{UO}")
    for q_ in range(2): k.vmop(f"buffer_load_dwordx2 {vr(24+2*q_,2)}, v11, s[12:15], s27 offen offset:{128*q_} {SC}", "st")
    for i in range(5):
        k.vmop(f"buffer_load_dwordx4 {vr(128+4*i,4)}, v3, s[12:15], s24 offen {SC}", f"h{i}")
        if i < 4: e("s_add_u32 s24, s24, 4096")
    k.waitvm("st")
    stats16(k, 24, 48, 52, 4)
    e("s_waitcnt lgkmcnt(0)"); e("s_barrier")
    def rd(n):
        i, j = n // 6, 2 + n % 6
        k.dsop(f"ds_read_b128 {vr(96+4*(n%6),4)}, v{40+i//2} offset:{(i%2)*32768+1024*(j//2)+256*(j%2)}", f"r{n}")
    for n in range(6): rd(n)
    for x in range(2): k.dsop(f"ds_read_b64 {vr(20+2*x,2)}, v45 offset:{UO+4096+512*x}", "u")
    for n in range(30):
        i = n // 6
        if n % 6 == 0: k.waitvm(f"h{i}")
        k.waitlg(f"r{n}")
        c = vr(148+4*(n%6), 4)
        e(f"v_mfma_f32_16x16x32_bf16 {c}, {vr(96+4*(n%6),4)}, {vr(128+4*i,4)}, {c if i else 0}")
        if n + 6 < 30: rd(n + 6)
    e("s_barrier")
    for n in range(6): e(f"ds_write_b128 v43, {vr(148+4*n,4)} offset:{1024*n}")
    e("s_waitcnt lgkmcnt(0)"); e("s_barrier")
    for p_ in range(4):
        for x in range(2): e(f"ds_read_b128 {vr(96+8*p_+4*x,4)}, v44 offset:{6144*p_+1024*x}")
    e("s_waitcnt lgkmcnt(0)")
    for r in range(8):
        e(f"v_add_f32 v{96+r}, v{96+r}, v{104+r}"); e(f"v_add_f32 v{112+r}, v{112+r}, v{120+r}"); e(f"v_add_f32 v{80+r}, v{96+r}, v{112+r}")
    for x in range(2): e(f"v_mfma_f32_16x16x16_bf16 {vr(80+4*x,4)}, {vr(20+2*x,2)}, v[52:53], {vr(80+4*x,4)}")
    for x in range(2): scale_pack(k, 80+4*x, lambda r: 48, 88+2*x)
    for x in range(2): e(f"ds_write_b64 v{50+x}, {vr(88+2*x,2)}")
    e("ds_write_b64 v47, v[56:57] offset:288")
    e(f"s_setprio {ENV('LPRIO', '2')}")
    e("s_waitcnt lgkmcnt(0)"); e("s_barrier")
    k.vm = []; k.lg = []

def one(k, target):
    k.e(f"v_mov_b32 v{PV_+1}, 0"); k.e(f"v_mov_b32 v{PV_+2}, {target}"); k.e("s_mov_b64 s[56:57], 1")

def kvpos(k):
    k.e("s_and_b32 s36, s19, 31"); k.e("s_lshl_b32 s36, s36, 1"); k.e("s_lshr_b32 s34, s19, 5"); k.e("s_add_u32 s36, s36, s34")
    k.e("s_add_u32 s36, s36, 44"); k.e("s_and_b32 s36, s36, 63")
def addr_v(k, img):
    e = k.e
    e("s_sub_u32 s35, s17, 10"); e("s_lshl_b32 s35, s35, 7")
    kvpos(k); e("s_mul_i32 s36, s36, 2560"); e(f"s_add_u32 s33, s36, {img+KVIMG+1280}")
    e("v_mul_u32_u24 v20, 320, v4")
    for jf in range(4):
        e(f"v_add_u32 v16, s35, v10")
        if jf: e(f"v_add_u32 v16, {32*jf}, v16")
        e("v_mul_u32_u24 v17, 52429, v16"); e("v_lshrrev_b32 v17, 20, v17")
        e("v_mul_u32_u24 v18, 20, v17"); e("v_sub_u32 v18, v16, v18")
        e("v_mul_u32_u24 v17, 163840, v17"); e("v_lshl_add_u32 v17, v18, 4, v17")
        e(f"v_add_u32 v{24+jf}, v17, v20")
def addr_qk(k, img, xm=52):
    e = k.e; k.xm = xm
    e("s_cmp_ge_u32 s17, 5")
    e(f"s_cselect_b32 s33, {QI}, 0"); e(f"s_cselect_b32 s59, 1.0, {fbits(CSCALE)}"); e("s_cselect_b32 s35, 5, 0"); e("s_cselect_b32 s37, 1, 0")
    e(f"s_add_u32 s33, s33, {img+QIMG}")
    e("s_sub_u32 s35, s17, s35")
    kvpos(k); e("s_cmp_eq_u32 s37, 0"); e("s_cselect_b32 s36, s19, s36")
    e("s_mul_i32 s36, s36, 1280"); e("s_lshl_b32 s36, s36, s37"); e("s_add_u32 s33, s33, s36")
    e("s_lshl_b32 s34, 81920, s37")
    e("v_lshlrev_b32 v16, 4, v10"); e("v_lshlrev_b32 v17, 3, v10")
    e("v_lshl_add_u32 v18, v4, 9, v16")
    e("s_sub_u32 s36, s34, 512"); e("v_and_b32 v19, s36, v59"); e("v_add_u32 v19, v19, v16")
    e(f"s_mov_b32 s{xm}, -1"); e(f"s_mov_b32 s{xm+1}, 0"); e(f"s_mov_b32 s{xm+2}, 0"); e(f"s_mov_b32 s{xm+3}, -1")
def epi_qk1(k, v, jf):
    e = k.e; A = G_ACC + 16*jf
    QSC = os.environ.get("QSC", "sc1")
    for r in range(16): e(f"v_mul_f32 v{A+r}, v{A+r}, v47")
    for r in range(8): e(f"v_cvt_pk_bf16_f32 v{A+r}, v{A+2*r}, v{A+2*r+1}")
    for a2 in range(2):
        x = A + 4*a2
        e(f"v_permlane32_swap_b32 v{x}, v{x+2}"); e(f"v_permlane32_swap_b32 v{x+1}, v{x+3}")
    for a2 in range(2):
        x = A + 4*a2
        G = [32*v+8*jf+4*a2, 32*v+8*jf+4*a2+2]
        def main(g):
            h = g // 5; r = g % 5
            return h, (r // 2 if h % 2 == 0 else (r - 1) // 2)
        st = [g % 10 == 4 for g in G]
        def hoff(dst, h):
            if not h: return 33
            e(f"s_mul_i32 s{dst}, s34, {h}"); e(f"s_add_u32 s{dst}, s{dst}, s33"); return dst
        if not any(st):
            (h0, p0), (h1, p1) = main(G[0]), main(G[1])
            assert (h0 == h1 and (p0, p1) == (0, 1)) or (h1 == h0 + 1 and (p0, p1) == (1, 0))
            e(f"buffer_store_dwordx4 {vr(x,4)}, v{18 if h0 == h1 else 19}, {k.srdo}, s{hoff(36, h0)} offen offset:{512*p0} {QSC}")
        else:
            m = st.index(False); q = 1 - m
            h, p = main(G[m]); s0 = hoff(36, h); s1 = hoff(37, G[q] // 5); e(f"s_add_u32 s38, s{s1}, s34")
            e(f"s_mov_b64 exec, s[{k.xm+2*m}:{k.xm+1+2*m}]")
            e(f"buffer_store_dwordx4 {vr(x,4)}, v16, {k.srdo}, s{s0} offen offset:{512*p} {QSC}")
            e(f"s_mov_b64 exec, s[{k.xm+2*q}:{k.xm+1+2*q}]")
            e(f"buffer_store_dwordx2 {vr(x,2)}, v17, {k.srdo}, s{s1} offen offset:1024 {QSC}")
            e(f"buffer_store_dwordx2 {vr(x+2,2)}, v17, {k.srdo}, s38 offen offset:1024 {QSC}")
            e("s_mov_b64 exec, -1")
def epi_v1(k, jf, RS):
    e = k.e; A = G_ACC + 16*jf
    for r in range(16): e(f"v_mul_f32 v{A+r}, v{A+r}, v{RS+r}")
    for r in range(8): e(f"v_cvt_pk_bf16_f32 v{A+r}, v{A+2*r}, v{A+2*r+1}")
    for u in range(2): e(f"buffer_store_dwordx4 {vr(A+4*u,4)}, v{24+jf}, {k.srdo}, s33 offen offset:{640*u} {os.environ.get('VSC', 'sc1')}")
def dispatch5(k, body):
    e = k.e; nm = k.name + k.ptag
    for v in range(1, 5):
        e(f"s_cmp_eq_u32 s35, {v}"); e(f"s_cbranch_scc1 {nm}_e{v}")
    vm, lg = list(k.vm), list(k.lg)
    for v in range(5):
        if v: k.label(f"{nm}_e{v}")
        k.vm, k.lg = list(vm), list(lg)
        body(v); e(f"s_branch {nm}_fin5")
def epi_qk(k, ACC, BF):
    dispatch5(k, lambda v: (k.e("s_nop 7"), [epi_qk1(k, v, jf) for jf in range(4)]))
def epi_v(k, ACC, BF, RS):
    for jf in range(4): epi_v1(k, jf, RS)

def qkva_c(k, xin, stin, img, cnt, wbar, st0):
    k.ptag = '_p5'; k.srdo = 's[12:15]'
    e = k.e; nm = k.name + k.ptag
    DA = 5
    ACC, BF, AR, RS = 64, 128, 160, 200
    gemm32_pre(k, xin, stin)
    e("v_lshlrev_b32 v12, 4, v10")
    e("s_lshl_b32 s31, s17, 11"); e(f"s_add_u32 s31, s31, {U_A}")
    for jf in range(4): k.vmop(f"buffer_load_dwordx4 {vr(24+4*jf,4)}, v12, s[12:15], s31 offen offset:{512*jf}", "u")
    def c4(): one(k, 16); e("s_lshl_b32 s48, s16, 8"); e(f"s_add_u32 s48, s48, {cnt}")
    wait_go(k, "p5", 1, c4)
    k.stamp(st0)
    ldA = gemm32_loads(k, RS_(xin))
    def prolog(vmode):
        gemm32_stats(k)
        for jf in range(4): usum(k, 24+4*jf, 50+2*jf, 18)
        if vmode:
            e("v_lshlrev_b32 v16, 4, v4")
            for r in range(16):
                e(f"v_add_u32 v17, {(8*(r//4) + r%4)*4}, v16")
                k.dsop(f"ds_bpermute_b32 v{RS+r}, v17, v47", "rs")
            addr_v(k, img)
        else:
            addr_qk(k, img); e("v_mul_f32 v47, s59, v47")
    e("s_cmp_ge_u32 s17, 10"); e(f"s_cbranch_scc1 {nm}_qv")
    vm_save = list(k.vm)
    l5a = lambda: e("s_barrier")
    tail = gemm32(k, False, k.capture(lambda: prolog(False)), ldA, {w_ - 1 for w_ in wbar}, st0)
    dispatch5(k, lambda v: tail(lambda jf: epi_qk1(k, v, jf), (), l5a))
    k.label(f"{nm}_qv"); k.vm = vm_save; k.lg = []
    tail = gemm32(k, True, k.capture(lambda: prolog(True)), ldA, {w_ - 1 for w_ in wbar}, st0)
    tail(lambda jf: epi_v1(k, jf, RS), (), l5a)
    k.label(f"{nm}_fin5")

def ph_front(k):
    k.ptag = "_f"; k.srdo = "s[12:15]"
    e = k.e; nm = k.name + k.ptag; kn = k.name
    R, DEP, SCRB, UT = 4, 2, 131072, 65536
    need = lambda ks: ks // 2
    slot = lambda st: (st % R) * 32768
    e("s_cmp_ge_u32 s2, 256"); e(f"s_cbranch_scc1 {kn}_end"); k.stamp(0); k.rstamp(1)
    e("s_load_dwordx4 s[60:63], s[0:1], 0"); e("s_load_dwordx2 s[6:7], s[0:1], 64")
    e("s_load_dwordx2 s[4:5], s[0:1], 56")
    e("s_and_b32 s20, s2, 7"); e("s_lshr_b32 s21, s2, 3")
    e("v_lshrrev_b32 v2, 6, v0"); e("v_and_b32 v1, 63, v0")
    e("v_readfirstlane_b32 s18, v2")
    e("s_and_b32 s39, s18, 3"); e("s_lshl_b32 s45, s39, 10")
    ids_mt(k)
    e("v_lshlrev_b32 v3, 4, v1"); e(f"v_lshlrev_b32 v9, {ENV('BST', '6')}, v1")
    e("s_lshl_b32 s22, s2, 2"); e("s_add_u32 s22, s22, s39"); e("s_mul_i32 s23, s22, 2400")
    if ENV('XLOC', '1'): e("s_lshl_b32 s22, s20, 5"); e("s_add_u32 s22, s22, s21"); e("s_lshl_b32 s22, s22, 2"); e("s_add_u32 s22, s22, s39")
    e("s_mul_i32 s22, s22, 2560")
    def kwait():
        e("s_waitcnt lgkmcnt(0)")
        k.stamp(2)
        k.srd(8, 60, S*D*2); k.srd(28, 62, D*3*D*2); k.srd(12, 6, WS_END)
    def burst():
        if ENV('BURST', '1'):
            e("s_mov_b32 exec_hi, 0xff" if ENV('BST', '6') == 6 else "s_mov_b64 exec, 0xfffff")
            e(f"buffer_load_dword v240, v9, s[8:11], s22 offen {os.environ.get('XNT', '')}"); e(f"buffer_load_dword v241, v9, s[28:31], s23 offen {os.environ.get('WNT', '')}")
            e("s_mov_b64 exec, -1")
    def codepf(tg):
        if ENV('CPF', '1'):
            e("s_getpc_b64 s[34:35]"); k.label(f"{nm}_pc{tg}")
            e(f"s_sub_u32 s34, s34, {nm}_pc{tg} - {kn}"); e("s_subb_u32 s35, s35, 0")
            e("v_lshlrev_b32 v242, 4, v0"); e("s_lshl_b32 s36, s21, 12"); e("v_add_u32 v242, s36, v242")
            e(f"v_and_b32 v242, 0xffffffc0, v242"); e(f"v_min_u32 v242, code_end - {kn} - 4, v242")
            e("global_load_dword v243, v242, s[34:35]")
    e("s_cmp_ge_u32 s17, 15"); e(f"s_cbranch_scc1 {nm}_ub")
    e("v_and_b32 v10, 31, v1"); e("v_lshrrev_b32 v4, 5, v1"); e("v_and_b32 v5, 15, v1"); e("v_bfe_u32 v7, v1, 4, 1")
    e("v_lshrrev_b32 v13, 2, v5"); e("v_and_b32 v6, 3, v1")
    e("v_lshl_add_u32 v14, v4, 3, v13"); e("v_lshlrev_b32 v14, 8, v14"); e("v_lshl_add_u32 v14, v7, 5, v14"); e("v_lshl_add_u32 v14, v6, 3, v14")
    e("v_add_u32 v14, 16384, v14")
    def a0():
        e("s_lshl_b32 s48, s17, 11"); e(f"s_add_u32 s48, s48, {C0}"); e(f"v_lshlrev_b32 v{PV_+1}, 8, v1"); e("s_mov_b64 s[56:57], 0xff")
    SF = ENV('SF', '10')
    e("s_cmp_ge_u32 s18, 4"); e(f"s_cbranch_scc1 {nm}_ld")
    kwait(); burst(); codepf("c")
    if ENV('TLB', '1'):
        sh = ENV('TLBS', '18')
        e("s_load_dwordx4 s[84:87], s[0:1], 32"); e("s_load_dwordx2 s[88:89], s[0:1], 16")
        e(f"v_lshlrev_b32 v236, {sh}, v0" if sh < 21 else "v_lshlrev_b32 v236, 21, v1")
        e(f"v_min_u32 v236, {STAMPS-4}, v236")
        e("s_cmp_eq_u32 s18, 0" if sh == 21 else "s_cmp_lt_u32 s18, 4"); e(f"s_cbranch_scc0 {nm}_tl")
        e("buffer_load_dword v237, v236, s[12:15], 0 offen")
        e("v_and_b32 v236, 1, v1"); e("v_mul_u32_u24 v238, 819196, v236"); e("v_mul_u32_u24 v236, 2457596, v236"); e("s_mov_b64 exec, 3")
        e("s_waitcnt lgkmcnt(0)")
        e("global_load_dword v237, v236, s[84:85]"); e("global_load_dword v237, v238, s[86:87]"); e("global_load_dword v237, v238, s[88:89]")
        e("s_mov_b64 exec, -1")
        k.label(f"{nm}_tl")
        e("s_waitcnt lgkmcnt(0)")
    ACC, BF, AR, RS = 64, 128, 160, 200
    BA, AA = 216, 224
    e("s_lshl_b32 s19, s16, 2"); e("s_add_u32 s19, s19, s18")
    for jf in range(4):
        e(f"v_xor_b32 v15, {jf}, v13"); e(f"v_lshl_add_u32 v{BA+jf}, v15, 6, v14"); e(f"v_add_u32 v{BA+4+jf}, 65536, v{BA+jf}")
    e("v_lshl_add_u32 v15, v2, 5, v10"); e("v_lshlrev_b32 v15, 7, v15"); e("v_bfe_u32 v12, v10, 1, 3"); e("v_xor_b32 v12, v12, v4")
    for q in range(4):
        e(f"v_xor_b32 v11, {2*q}, v12"); e(f"v_lshl_add_u32 v{AA+q}, v11, 4, v15"); e(f"v_add_u32 v{AA+4+q}, 65536, v{AA+q}")
    e("v_mul_u32_u24 v8, 20480, v7"); e("v_lshl_add_u32 v8, v4, 8, v8"); e("v_lshl_add_u32 v8, v5, 4, v8")
    e("s_mul_i32 s24, s19, 40960"); e(f"s_add_u32 s24, s24, {XI}")
    e("v_subrev_u32 v58, 1, v4"); e("v_not_b32 v59, v58")
    e("s_lshl_b32 s40, s2, 2"); e("s_add_u32 s40, s40, s39"); e("s_mul_i32 s40, s40, 8192"); e(f"s_add_u32 s40, s40, {QIMG}"); e("v_lshlrev_b32 v238, 7, v1")
    e("s_cmp_ge_u32 s17, 10"); e(f"s_cbranch_scc1 {nm}_qv")
    def mainloop(vmode):
        tagm = "v" if vmode else "q"
        acc = lambda jf: vr(ACC+16*jf, 16)
        fl = k.capture(lambda: addr_v(k, 0) if vmode else addr_qk(k, 0, 28))
        def rdB(ks, f):
            u, jf = f//4, f%4; sl = slot(ks//2)
            for t in range(2):
                off = sl + (32*(ks%2) + 16*u + 4*t)*256
                k.dsop(f"ds_read_b64_tr_b16 {vr(BF+4*f+2*t,2)}, v{BA+4*(sl>>16)+jf} offset:{off & 0xffff}", f"b{ks}_{f}")
        def rdA(ks):
            sl = slot(ks//2)
            for u in range(2): k.dsop(f"ds_read_b128 {vr(AR+8*(ks%2)+4*u,4)}, v{AA+4*(sl>>16)+2*(ks%2)+u} offset:{sl & 0xffff}", f"b{ks}_a")
        kb = [-1]
        def bars(ks):
            while kb[0] < need(ks): e("s_barrier"); kb[0] += 1
        bars(0); k.stamp(3)
        rdA(0)
        for f in range(8): rdB(0, f)
        for ks in range(20):
            for f in range(8):
                u, jf = f//4, f%4
                if f % 2 == 0: k.waitlg(f"b{ks}_{f+1}")
                a = vr(AR+8*(ks%2)+4*u, 4); b = vr(BF+4*f, 4); c = acc(jf) if (ks or u) else "0"
                if vmode: e(f"v_mfma_f32_32x32x16_bf16 {acc(jf)}, {a}, {b}, {c}")
                else:     e(f"v_mfma_f32_32x32x16_bf16 {acc(jf)}, {b}, {a}, {c}")
                if ks + 1 < 20:
                    if f == 0: bars(ks+1); rdA(ks+1)
                    rdB(ks+1, f)
                if ks >= 4: k.fill(fl, 1)
            e(f"s_cmp_eq_u32 s17, {ks % 15}"); e(f"s_cbranch_scc0 {nm}_x{tagm}{ks}")
            e(f"s_add_u32 s32, s24, {1024*ks}")
            for u in range(2): e(f"buffer_store_dwordx4 {vr(AR+8*(ks%2)+4*u,4)}, v8, s[12:15], s32 offen offset:{512*u} {SC}")
            k.label(f"{nm}_x{tagm}{ks}")
            if ENV('FT', '0') and ks == ENV('FT', '0'): e("buffer_load_dword v239, v238, s[12:15], s40 offen")
            if ks in (0, 1, 4, 9, 10, 14): k.stamp(7 + (0, 1, 4, 9, 10, 14).index(ks))
        assert not fl
        k.stamp(4)
        e(f"v_lshlrev_b32 v23, 2, v10"); e(f"v_add_u32 v23, {UT}, v23"); e("s_lshl_b32 s32, s18, 8"); e("v_add_u32 v22, s32, v23")
        if vmode: e("v_lshlrev_b32 v21, 4, v4"); e(f"s_add_u32 s32, s32, {UT}"); e("v_add_u32 v21, s32, v21")
        e("s_barrier")
        e("ds_read_b32 v48, v22 offset:1024"); e("ds_read_b32 v49, v22 offset:1152")
        for jf in range(4): e(f"ds_read_b32 v{28+2*jf}, v23 offset:{256*jf}"); e(f"ds_read_b32 v{29+2*jf}, v23 offset:{256*jf+128}")
        if vmode:
            for a_ in range(4): e(f"ds_read_b128 {vr(RS+4*a_,4)}, v21 offset:{2048+32*a_}")
        else: e("ds_read_b32 v47, v22 offset:2048")
        e("s_waitcnt lgkmcnt(0)"); k.lg = []
        e("v_and_b32 v48, v48, v58"); e("v_and_b32 v49, v49, v58")
        if not vmode: e("v_mul_f32 v47, s59, v47")
        for jf in range(4):
            if vmode: e(f"v_mfma_f32_32x32x8_bf16 {acc(jf)}, v[48:49], {vr(28+2*jf,2)}, {acc(jf)}")
            else:     e(f"v_mfma_f32_32x32x8_bf16 {acc(jf)}, {vr(28+2*jf,2)}, v[48:49], {acc(jf)}")
        k.stamp(5)
    mainloop(False)
    epi_qk(k, ACC, BF)
    k.label(f"{nm}_qv"); k.lg = []
    mainloop(True)
    epi_v(k, ACC, BF, RS)
    k.label(f"{nm}_fin5")
    k.stamp(6)
    e("s_barrier")
    signal(k, "sf", -1, 8, a0, 0, "s[12:15]")
    k.dump(13)
    e(f"s_branch {kn}_t0")
    k.label(f"{nm}_ld"); k.vm = []; k.lg = []
    e(f"s_setprio {ENV('LPRIO', '2')}")
    e("v_lshrrev_b32 v16, 4, v1"); e("v_and_b32 v17, 3, v2")
    e("v_lshl_add_u32 v18, v17, 2, v16"); e("v_mul_u32_u24 v20, 3840, v18")
    e("v_xor_b32 v18, v13, v16"); e("v_lshl_add_u32 v20, v18, 6, v20"); e("v_lshl_add_u32 v20, v6, 4, v20")
    e("v_lshrrev_b32 v18, 3, v1"); e("v_lshl_add_u32 v19, v17, 5, v18"); e("v_and_b32 v23, 7, v1")
    for i in range(4):
        e(f"v_add_u32 v42, {8*i}, v19"); e("v_bfe_u32 v43, v42, 1, 3"); e("v_xor_b32 v43, v43, v23")
        e("v_mul_u32_u24 v42, 1280, v42"); e(f"v_lshl_add_u32 v{48+i}, v43, 4, v42")
        if i: e(f"v_subrev_u32 v{48+i}, {1024*i}, v{48+i}")
    e("s_lshl_b32 s25, s17, 8"); e("s_mul_i32 s24, s16, 163840"); e("s_lshl_b32 s26, s39, 12")
    def ld1(st, n):
        if n < 4:
            e(f"s_add_u32 m0, s45, {slot(st)+16384+4096*n}"); e(f"s_add_u32 s32, s25, {(64*st+16*n)*3840}")
            k.vmop(f"buffer_load_dwordx4 v20, s[28:31], s32 offen {os.environ.get('WNT2', '')} lds", f"d{st}")
        else:
            e(f"s_add_u32 m0, s26, {slot(st)}"); e(f"s_add_u32 s33, s24, {128*st}")
            k.vmop(f"buffer_load_dwordx4 v{44+n}, s[8:11], s33 offen offset:{1024*(n-4)} {os.environ.get('XNT2', '')} lds", f"d{st}")
    ORD = [0, 4, 1, 5, 2, 6, 3, 7]
    def ld(st):
        for n in ORD: ld1(st, n)
    kwait(); ld(0)
    e("v_xor_b32 v15, v17, v13"); e("v_lshl_add_u32 v40, v15, 6, v14"); e("v_add_u32 v41, 65536, v40")
    e("v_and_b32 v42, 1, v16"); e("v_cmp_eq_u32 vcc, v42, v5"); e("v_mov_b32 v43, 0x3f803f80")
    for r in range(4): e(f"v_cndmask_b32 v{60+r}, 0, v43, vcc")
    k.srd(52, 4, 256)
    e("s_mul_i32 s27, s17, 163840"); e("s_add_u32 s27, s27, s45"); e(f"s_add_u32 s27, s27, {WA_I}")
    if ENV('LD1', '0'): ld(1)
    done = [0]
    def steps_of(kb):
        r = []
        while done[0] < 20 and need(done[0]) <= kb: r.append(done[0]); done[0] += 1
        return r
    def wa_store(q):
        e("s_lshl_b32 s32, s16, 13"); e("s_add_u32 s32, s32, s27")
        if q: e("s_add_u32 s32, s32, 131072")
        e("s_add_u32 s33, s32, 4096")
        for u in range(2): k.vmop(f"buffer_store_dwordx4 {vr(112+8*q+4*u,4)}, v3, s[12:15], s{32+u} offen {SC}")
    for kb in range(10):
        if kb == 5: k.stamp(5)
        k.waitvm(f"d{kb}")
        if kb == 5: k.stamp(6)
        e("s_barrier")
        if kb in (4, 5): k.stamp(2 if kb == 4 else 7)
        if kb == 0 and not ENV('LD1', '0'): ld(1)
        sl = slot(kb); todo = list(ORD) if kb + DEP < 10 else []
        nxt = lambda: ld1(kb + DEP, todo.pop(0)) if todo else None
        sts = steps_of(kb)
        for n_, ks in enumerate(sts):
            for u in range(2):
                for t in range(2):
                    e(f"ds_read_b64_tr_b16 {vr(136+8*n_+4*u+2*t,2)}, v{40+(sl>>16)} offset:{(sl + (32*(ks%2) + 16*u + 4*t)*256) & 0xffff}")
        nxt(); nxt()
        if kb == 4: k.stamp(3)
        e("s_waitcnt lgkmcnt(0)")
        mf = [(n_, ks, u) for n_, ks in enumerate(sts) for u in range(2)]
        for n_, ks, u in mf:
            e(f"v_mfma_f32_16x16x32_bf16 v[64:67], v[60:63], {vr(136+8*n_+4*u,4)}, {'v[64:67]' if ks or u else 0}")
            nxt()
        nxt(); nxt()
        if kb == 4: k.stamp(4)
        for n_, ks in enumerate(sts):
            e(f"s_cmp_eq_u32 s16, {ks % 16}"); e(f"s_cbranch_scc0 {nm}_w{ks}")
            for r in range(8): e(f"v_mov_b32 v{112+8*(ks//16)+r}, v{136+8*n_+r}")
            k.label(f"{nm}_w{ks}")
        assert not todo
        if kb == 8:
            e("v_and_b32 v24, 15, v1"); e("v_lshlrev_b32 v24, 2, v24"); e("s_mov_b32 s33, 0")
            k.label(f"{nm}_pl")
            e(f"buffer_load_dword v25, v24, s[52:55], 0 offen {SC}"); e("s_add_u32 s33, s33, 1"); e("s_waitcnt vmcnt(0)"); k.vm = []
            e("v_cmp_eq_u32 vcc, 0, v25"); e("s_cmp_ge_u32 s33, 0x20000"); e(f"s_cbranch_scc1 {nm}_px")
            e(f"s_cbranch_vccnz {nm}_pl")
            k.label(f"{nm}_px")
            e("v_lshlrev_b32 v24, 3, v10"); e("s_lshl_b32 s32, s16, 10"); e("s_lshl_b32 s33, s39, 8"); e("s_add_u32 s32, s32, s33"); e(f"s_add_u32 s32, s32, {STI}")
            k.vmop(f"buffer_load_dwordx2 v[44:45], v24, s[12:15], s32 offen {SC}", "rs")
            wa_store(0)
    k.waitvm("rs")
    stats_finish(k, 44, 45, 28, 29, 30)
    e("v_lshlrev_b32 v42, 2, v5"); e("ds_bpermute_b32 v68, v42, v64"); e("ds_bpermute_b32 v69, v42, v65"); e("v_cmp_eq_u32 vcc, 1, v7")
    split3(k, 28, 32, 36, 'm')
    e("s_waitcnt lgkmcnt(0)"); e("v_cndmask_b32 v64, v68, v69, vcc")
    split3(k, 64, 34, 36, 'u')
    e("v_lshlrev_b32 v24, 2, v10"); e("s_lshl_b32 s32, s39, 8"); e(f"s_add_u32 s32, s32, {UT}"); e("v_add_u32 v24, s32, v24")
    e("ds_write_b32 v24, v34"); e("ds_write_b32 v24, v35 offset:128"); e("ds_write_b32 v24, v32 offset:1024"); e("ds_write_b32 v24, v33 offset:1152"); e("ds_write_b32 v24, v29 offset:2048")
    e("s_waitcnt lgkmcnt(0)"); e("s_barrier")
    lwc_init(k); e("s_barrier")
    e("v_mov_b32 v44, v64")
    e("s_cmp_ge_u32 s16, 4"); e(f"s_cbranch_scc1 {nm}_le"); wa_store(1)
    e("s_cmp_eq_u32 s16, 0"); e(f"s_cbranch_scc0 {nm}_le")
    e("v_mov_b32 v45, 0"); e("v_mov_b32 v46, 0"); e("v_mov_b32 v47, 0"); e("v_lshlrev_b32 v24, 4, v10")
    e("s_lshl_b32 s32, s17, 11"); e("s_lshl_b32 s33, s39, 9"); e("s_add_u32 s32, s32, s33"); e(f"s_add_u32 s32, s32, {U_A}")
    e("s_mov_b32 exec_hi, 0"); e(f"buffer_store_dwordx4 v[44:47], v24, s[12:15], s32 offen {SC}")
    k.label(f"{nm}_le")
    e("s_mov_b64 exec, -1")
    signal(k, "sfl", -1, 8, a0, 0, "s[12:15]")
    k.dump(8)
    e(f"s_branch {kn}_t0")
    k.label(f"{nm}_ub"); k.vm = []; k.lg = []
    kwait()
    e("v_lshrrev_b32 v4, 3, v1"); e("v_lshl_add_u32 v4, v2, 4, v4"); e("v_mul_u32_u24 v5, 1280, v4"); e("v_and_b32 v6, 7, v1"); e("v_lshl_add_u32 v5, v6, 4, v5")
    e("s_mul_i32 s24, s16, 163840"); e("s_add_u32 s25, s24, 10240")
    for b_ in range(2):
        for i in range(10): k.vmop(f"buffer_load_dwordx4 {vr(24+40*b_+4*i,4)}, v5, s[8:11], s{24+b_} offen offset:{128*i} {os.environ.get('XNT2', '')}", f"x{b_}{i}")
    for j in range(8): e(f"v_mov_b32 v{8+j}, 0")
    e("v_mov_b32 v7, 0x3f803f80")
    e("v_lshlrev_b32 v16, 4, v0"); e("s_and_b32 s26, s16, 7"); e("s_lshl_b32 s26, s26, 13"); e(f"s_add_u32 s26, s26, {CNT}"); e("s_cmp_ge_u32 s16, 8"); e(f"s_cselect_b32 s27, {LS}, 0"); e("s_add_u32 s26, s26, s27")
    k.vmop(f"buffer_store_dwordx4 v[12:15], v16, s[12:15], s26 offen {SC}")
    for b_ in range(2):
        for i in range(10):
            k.waitvm(f"x{b_}{i}")
            for q in range(4):
                r = 24+40*b_+4*i+q
                e(f"v_dot2_f32_bf16 v{8+2*b_}, v{r}, v7, v{8+2*b_}"); e(f"v_dot2_f32_bf16 v{9+2*b_}, v{r}, v{r}, v{9+2*b_}")
    for dpp in ("quad_perm:[1,0,3,2]", "quad_perm:[2,3,0,1]", "row_half_mirror"):
        for q in range(4): e(f"v_add_f32_dpp v{8+q}, v{8+q}, v{8+q} {dpp} row_mask:0xf bank_mask:0xf")
    e("v_lshlrev_b32 v4, 3, v4"); e("s_lshl_b32 s26, s16, 10"); e(f"s_add_u32 s26, s26, {STI}")
    e("v_cmp_eq_u32 vcc, 0, v6"); k.srd(52, 4, 256); e("s_mov_b64 exec, vcc")
    e(f"buffer_store_dwordx2 v[8:9], v4, s[12:15], s26 offen {SC}"); e(f"buffer_store_dwordx2 v[10:11], v4, s[12:15], s26 offen offset:64 {SC}")
    e("s_mov_b64 exec, -1"); lwc_init(k)
    e("s_waitcnt vmcnt(0)"); e("s_barrier")
    e("s_cmp_ge_u32 s18, 4"); e(f"s_cbranch_scc1 {nm}_u2")
    codepf("u")
    e("s_cmp_eq_u32 s18, 0"); e(f"s_cbranch_scc0 {nm}_u2")
    e("v_mov_b32 v4, 0"); e("v_mov_b32 v5, 1"); e("s_lshl_b32 s26, s16, 2"); e("s_mov_b64 exec, 1")
    e(f"buffer_store_dword v5, v4, s[52:55], s26 offen {SC}")
    e("s_mov_b64 exec, 0xffff"); e("v_lshlrev_b32 v4, 2, v1"); e("s_mov_b32 s33, 0")
    k.label(f"{nm}_u1")
    e(f"buffer_load_dword v5, v4, s[52:55], 0 offen {SC}"); e("s_add_u32 s33, s33, 1"); e("s_waitcnt vmcnt(0)")
    e("v_cmp_eq_u32 vcc, 0, v5"); e("s_cmp_ge_u32 s33, 0x20000"); e(f"s_cbranch_scc1 {nm}_u2"); e(f"s_cbranch_vccnz {nm}_u1")
    k.label(f"{nm}_u2")
    e("s_mov_b64 exec, -1"); e("s_waitcnt vmcnt(0)")

def k_main():
    k = KB(NAME + "_kernel"); e = k.e; name = k.name
    ph_front(k)
    k.label(f"{name}_t0")
    e("s_load_dwordx2 s[46:47], s[0:1], 48"); e("s_mov_b32 s3, 0")
    k.srd(8, 6, 2*LS)
    e("s_waitcnt lgkmcnt(0)")
    k.srd(60, 46, S*D*2)
    k.label(f"{name}_top")
    k.vm = []; k.lg = []
    e("s_setprio 0"); k.stamp(0); k.rstamp(1)
    ph_attn(k)
    def a1():
        e("s_lshl_b32 s48, s17, 3"); e("s_and_b32 s49, s16, 1"); e("s_add_u32 s48, s48, s49"); e("s_lshl_b32 s48, s48, 8"); e(f"s_add_u32 s48, s48, {C1}")
        e(f"v_lshlrev_b32 v{PV_+1}, 9, v1"); e("s_mov_b64 s[56:57], 15")
    e("s_cmp_ge_u32 s18, 4"); e(f"s_cbranch_scc1 {name}_ld")
    signal(k, "s1", 0, 8, a1)
    def c1():
        e("s_lshl_b32 s48, s16, 9"); e(f"s_add_u32 s48, s48, {C1}")
        e(f"v_lshlrev_b32 v{PV_+1}, 8, v1"); e(f"v_mov_b32 v{PV_+2}, 16"); e("s_mov_b64 s[56:57], 3")
    proj_c(k, "p2", OT, XI, XM, STM, False, c1, 0, 6)
    def a2():
        e("s_lshr_b32 s48, s16, 1"); e("s_lshl_b32 s48, s48, 9"); e(f"s_add_u32 s48, s48, {C2}")
        e(f"v_mul_u32_u24 v{PV_+1}, 768, v1"); e("s_bitcmp1_b32 s16, 0"); e("s_cselect_b64 s[56:57], 3, 1")
    signal(k, "s2", 1, 4, a2)
    qkvb_c(k, XM, STM, 9)
    def a3(): one(k, 0); e("s_lshl_b32 s48, s16, 8"); e(f"s_add_u32 s48, s48, {C3}")
    signal(k, "s3", 0, 4, a3)
    def c3(): one(k, 16); e("s_lshr_b32 s48, s16, 1"); e("s_lshl_b32 s48, s48, 8"); e(f"s_add_u32 s48, s48, {C3}")
    proj_c(k, "p4", OBT, XM, XI, STI, True, c3, 0, 12)
    def a4(): one(k, 0); e("s_lshr_b32 s48, s16, 1"); e("s_lshl_b32 s48, s48, 8"); e(f"s_add_u32 s48, s48, {C4}")
    signal(k, "s4", 1, 4, a4)
    k.dump(15, "1")
    ids_mt(k)
    e("s_cmp_ge_u32 s17, 15"); e(f"s_cbranch_scc1 {name}_idle")
    qkva_c(k, XI, STI, 0, C4, [7], 3)
    k.stamp(6)
    e("s_barrier")
    def a5(): e("s_lshl_b32 s48, s17, 11"); e(f"s_add_u32 s48, s48, {LS + C0}"); e(f"v_lshlrev_b32 v{PV_+1}, 8, v1"); e("s_mov_b64 s[56:57], 0xff")
    signal(k, "s5", -1, 4, a5)
    k.dump(7, "3")
    k.label(f"{name}_t1")
    e("s_mov_b32 s3, 1"); e(f"s_add_u32 s8, s8, {LS}"); e("s_addc_u32 s9, s9, 0"); e(f"s_mov_b32 s10, {LS}")
    e(f"s_branch {name}_top")
    k.label(f"{name}_idle")
    for _ in range(4): e("s_barrier")
    e(f"s_branch {name}_t1")
    k.label(f"{name}_ld"); k.vm = []; k.lg = []
    if os.environ.get("FOC") == "at": e("s_add_u32 s84, s3, 4"); k.dump(8, "s84")
    e(f"s_setprio {ENV('LPRIO', '2')}")
    w = proj_l(k, WOA_I, WB_I, OT, a1, 0)
    qkvb_l(k, XM, STM, w)
    w = proj_l(k, WOB_I, WA_I, OBT, None, 0, True)
    ids_mt(k)
    atouch_pre(k, XI)
    e("s_barrier")
    w.one(39); e("s_waitcnt vmcnt(0)"); e("s_barrier")
    e("s_barrier"); lwc_init(k); e("s_barrier")
    e(f"s_branch {name}_t1")
    k.label(f"{name}_end"); e("s_endpgm")
    k.tail()
    return k.text(256 if STAMP else 244, 256 if STAMP else 244)

def build():
    hdr = open("cdna_kernels/" + NAME + ".s.ref").read().split("; Override launch")[0]
    out = hdr + "; @launch grid=(256,1,1) block=(512,1,1) lds=163840\n"
    out += '.amdgcn_target "amdgcn-amd-amdhsa--gfx950"\n'
    out += k_main()
    out += ".text\ncode_end:\n"
    return out

if __name__ == "__main__":
    dst = sys.argv[1] if len(sys.argv) > 1 else "cdna_kernels/" + NAME + ".s"
    open(dst, "w").write(build())
    print("wrote", dst)
```

```python
import sys, math
from lint import lint, fix

NAME = "interleave_layers__softmax_full_mha__sliding_local_dilated__prompt"
S, D, H, DH = 2048, 640, 32, 20
XS = S*D*2
IMG = H*64*2560
QI = H*64*1280
CNT = 0
C1 = CNT; C2 = C1 + 64*256; C3 = C2 + 34*256; C4 = C3 + 16*256; C0 = C4 + 16*256
LS = 65536
CS = LS + C4
XI = 2*LS; STI = XI + XS
QIMG = STI + S*64; KVIMG = QIMG + QI
OT = KVIMG + IMG; OBT = OT + XS; XM = OBT + XS
STM = XM + XS
U_A = STM + S*64
U_B = U_A + 32768
WA_I = U_B + 163840
WOA_I = WA_I + 15*163840
WB_I = WOA_I + 819200
WOB_I = WB_I + 16*163840
STAMPS = WOB_I + 819200
WS_END = STAMPS + 16*262144
import os
STAMP = int(os.environ.get("STAMP", "0"))
ATTN_WAVES = 8
AV = os.environ.get("AV", "")
CSCALE = (DH ** -0.5) * math.log2(math.e)
import struct
def fbits(x): return "0x%08x" % struct.unpack("<I", struct.pack("<f", x))[0]

FM = [(0,16),(32,48),(80,96),(112,128),(64,144)]
def FX(ks, t):
    return 160*(ks//5) + FM[ks%5][t]

class KB:
    def __init__(s, name):
        s.name = name; s.L = []; s.vm = []; s.lg = []; s.cap = None
    def e(s, line):
        if s.cap is not None: s.cap.append(('e', line, None))
        else: s.L.append("    " + line)
    def capture(s, fn):
        s.cap = []; fn(); c = s.cap; s.cap = None
        return [x for x in c if not (x[0] == 'e' and x[1].startswith('s_nop'))]
    def fill(s, lst, n=1):
        for _ in range(n):
            if not lst: return
            kind, a, b = lst.pop(0)
            if kind == 'e':
                s.e(a)
                if a.startswith('s_mov_b64 exec, s['):
                    while True:
                        x = lst.pop(0)[1]; s.e(x)
                        if x == 's_mov_b64 exec, -1': break
                if a.startswith('s_cmp'):
                    while lst and lst[0][0] == 'e' and lst[0][1].startswith('s_cselect'): s.e(lst.pop(0)[1])
            elif kind == 'ds': s.dsop(a, b)
            elif kind == 'wvm': s.waitvm(a)
            elif kind == 'wlg': s.waitlg(a)
    def c(s, txt): s.L.append("    ; " + txt)
    def label(s, l): s.L.append(l + ":")
    def vmop(s, line, tag=None): s.e(line); s.vm.append(tag); assert len(s.vm) <= 63, (s.name, len(s.vm))
    def dsop(s, line, tag=None):
        if s.cap is not None: s.cap.append(('ds', line, tag)); return
        s.e(line); s.lg.append(tag)
    def _n(s, lst, tag):
        idx = max(i for i, t in enumerate(lst) if t == tag)
        return idx
    def waitvm(s, tag):
        if s.cap is not None: s.cap.append(('wvm', tag, None)); return
        if tag not in s.vm: return
        i = s._n(s.vm, tag); n = len(s.vm) - 1 - i
        s.e(f"s_waitcnt vmcnt({n})"); s.vm = s.vm[i+1:]
    def waitlg(s, tag):
        if s.cap is not None: s.cap.append(('wlg', tag, None)); return
        if tag not in s.lg: return
        i = s._n(s.lg, tag); n = len(s.lg) - 1 - i
        if n > 15: n = 15; i = len(s.lg) - 1 - n
        s.e(f"s_waitcnt lgkmcnt({n})"); s.lg = s.lg[i+1:]
    def waitall(s):
        s.e("s_waitcnt vmcnt(0) lgkmcnt(0)"); s.vm = []; s.lg = []
    def srd(s, r, base, nbytes):
        s.e(f"s_mov_b32 s{r}, s{base}")
        s.e(f"s_and_b32 s{r+1}, s{base+1}, 0xffff")
        s.e(f"s_mov_b32 s{r+2}, {nbytes}")
        s.e(f"s_mov_b32 s{r+3}, 0x20000")
    def stamp(s, i):
        if not STAMP: return
        op = "s_memrealtime" if os.environ.get("RT") else "s_memtime"
        s.e(f"{op} s[{64+2*i}:{65+2*i}]" if i < 10 else f"{op} s[{72+2*i}:{73+2*i}]")
    def rstamp(s, i):
        if not STAMP: return
        s.e(f"s_memrealtime s[{64+2*i}:{65+2*i}]")
    def dump(s, n=8, slot="0", wave="s18"):
        if not STAMP: return
        e = s.e
        if os.environ.get("DBG"):
            keep = {"0": [(1, 246), (3, 247), (6, 248)], "1": [(2, 249), (5, 250), (14, 251)], "3": [(6, 252)], "2": [(2, 253), (5, 254), (14, 255)]}[slot]
            e("s_waitcnt lgkmcnt(0)")
            if n < 7 or (slot == "0" and n == 8): return
            for i, v in keep: e(f"v_mov_b32 v{v}, s{64+2*i if i < 10 else 72+2*i}")
            if slot == "2":
                e(f"s_cmp_eq_u32 s2, {os.environ['DBG']}"); e("s_cbranch_scc0 dbg_skip"); e("s_cmp_eq_u32 s18, 0"); e("s_cbranch_scc0 dbg_skip")
                e("s_load_dwordx2 s[84:85], s[0:1], 56"); e("s_memrealtime s[86:87]"); e("s_waitcnt lgkmcnt(0)")
                s.srd(88, 84, 256); e("s_mov_b64 exec, 1"); e("v_mov_b32 v0, 0"); e("v_mov_b32 v245, s86"); e("v_sub_u32 v245, v245, v246")
                for i in range(9):
                    e(f"v_sub_u32 v{247+i}, v{247+i}, v246"); e(f"buffer_store_dword v{247+i}, v0, s[88:91], 0 offen offset:{4*i}")
                e("buffer_store_dword v245, v0, s[88:91], 0 offen offset:36")
                s.label("dbg_skip")
            return
        e("s_memrealtime s[86:87]"); e("s_waitcnt lgkmcnt(0)")
        e("s_mov_b64 exec, 1")
        e(f"s_lshl_b32 s84, {slot}, 18")
        e("s_lshl_b32 s85, s2, 3"); e(f"s_add_u32 s85, s85, {wave}"); e("s_lshl_b32 s85, s85, 6"); e(f"s_add_u32 s85, s85, {STAMPS}"); e("s_add_u32 s85, s85, s84")
        e("v_mov_b32 v244, 0")
        for i in range(n):
            e(f"v_mov_b32 v245, s{64+2*i if i < 10 else 72+2*i}")
            e(f"buffer_store_dword v245, v244, s[12:15], s85 offen offset:{4*i}")
        e("v_mov_b32 v245, s86"); e("buffer_store_dword v245, v244, s[12:15], s85 offen offset:60")
        e("s_mov_b64 exec, -1")
    def text(s, vgpr, accum, sgpr=102):
        s.L, added = fix(s.L)
        if os.environ.get("V"): print(s.name, "auto nops:", added, "lines:", len(s.L))
        out = [".text", f".globl {s.name}", ".p2align 8", f".type {s.name},@function", f"{s.name}:"]
        out += s.L
        out += ['.section .rodata,"a"', ".p2align 6", f".amdhsa_kernel {s.name}",
                f"  .amdhsa_next_free_vgpr {vgpr}", f"  .amdhsa_next_free_sgpr {sgpr}", f"  .amdhsa_accum_offset {accum}",
                "  .amdhsa_group_segment_fixed_size 0", "  .amdhsa_kernarg_size 72", "  .amdhsa_user_sgpr_count 2",
                "  .amdhsa_user_sgpr_kernarg_segment_ptr 1", "  .amdhsa_system_sgpr_workgroup_id_x 1", ".end_amdhsa_kernel"]
        nb = lint(s.L, s.name)
        assert nb == 0, f"{nb} hazards in {s.name}"
        return "\n".join(out) + "\n"
    def allred32(s, op, v, t):
        s.e(f"v_mov_b32 v{t}, v{v}"); s.e("s_nop 1")
        s.e(f"v_permlane32_swap_b32 v{v}, v{t}"); s.e("s_nop 1")
        s.e(f"{op} v{v}, v{v}, v{t}")
    def allred16(s, op, v, t):
        s.e(f"v_mov_b32 v{t}, v{v}"); s.e("s_nop 1")
        s.e(f"v_permlane16_swap_b32 v{v}, v{t}"); s.e("s_nop 1")
        s.e(f"{op} v{v}, v{v}, v{t}")

def vr(a, n): return f"v[{a}:{a+n-1}]" if n > 1 else f"v{a}"
def ar(a, n): return f"a[{a}:{a+n-1}]" if n > 1 else f"a{a}"

def stats_finish(k, s1, s2, mean, rstd, t):
    e = k.e
    e(f"v_mul_f32 v{mean}, {fbits(1.0/D)}, v{s1}")
    e(f"v_mul_f32 v{t}, {fbits(1.0/D)}, v{s2}")
    e(f"v_fma_f32 v{t}, -v{mean}, v{mean}, v{t}")
    e(f"v_max_f32 v{t}, 0, v{t}")
    e(f"v_add_f32 v{t}, {fbits(1e-5)}, v{t}")
    e(f"v_rsq_f32 v{rstd}, v{t}")
    e("s_nop 0")

def split3(k, src, d, t, kind, maskv=None):
    e = k.e
    if kind == 'm':
        e(f"v_xor_b32 v{t+1}, 0x80000000, v{src}"); src = t+1
    e(f"v_and_b32 v{t}, 0xffff0000, v{src}")
    e(f"v_sub_f32 v{t+2}, v{src}, v{t}")
    if kind == 'u':
        e(f"v_cvt_pk_bf16_f32 v{d}, v{t}, v{t+2}")
        e(f"v_lshrrev_b32 v{d+1}, 16, v{t}")
    else:
        e(f"v_cvt_pk_bf16_f32 v{d}, v{t}, v{t}")
        e(f"v_cvt_pk_bf16_f32 v{d+1}, v{t+2}, 0")
    if maskv is not None:
        e(f"v_and_b32 v{d}, v{d}, v{maskv}"); e(f"v_and_b32 v{d+1}, v{d+1}, v{maskv}")

SC = "sc1"
RS_ = lambda off: "s[12:15]" if off >= 2*LS else "s[8:11]"
EARLY = int(os.environ.get('EARLY', '6'))
ENV = lambda n, d: int(os.environ.get(n, d))

def ids_mt(k):
    k.e("s_lshl_b32 s22, s20, 1"); k.e("s_and_b32 s23, s21, 1"); k.e("s_add_u32 s16, s22, s23"); k.e("s_lshr_b32 s17, s21, 1")
def ids_rt(k):
    k.e("s_lshl_b32 s22, s20, 2"); k.e("s_and_b32 s23, s21, 3"); k.e("s_add_u32 s16, s22, s23"); k.e("s_lshr_b32 s17, s21, 2")

LW = 163824
PV_ = 240
def lw_init(k):
    e = k.e
    e(f"v_mov_b32 v{PV_+3}, {LW}")
    for i in range(3): e(f"v_mov_b32 v{PV_+i}, 0")
    e(f"ds_write_b96 v{PV_+3}, v[{PV_}:{PV_+2}]"); e(f"ds_write_b32 v{PV_+3}, v{PV_} offset:12")

def lwc_init(k):
    k.e(f"v_mov_b32 v{PV_+3}, {LW-8}"); k.e(f"v_mov_b32 v{PV_}, 0"); k.e(f"v_mov_b32 v{PV_+1}, 0")
    k.e(f"ds_write_b64 v{PV_+3}, v[{PV_}:{PV_+1}]"); k.e("s_waitcnt lgkmcnt(0)")

def signal(k, tag, word, nw, addr_code, younger=0, srd="s[8:11]"):
    e = k.e
    addr_code()
    e(f"v_mov_b32 v{PV_+3}, {LW-8}"); e(f"v_mov_b32 v{PV_}, 1")
    e("s_mov_b64 exec, 1")
    assert younger == 0
    e("s_waitcnt vmcnt(0)"); k.vm = []
    if tag == os.environ.get("FOC"): k.stamp(2)
    e(f"ds_add_rtn_u32 v{PV_+2}, v{PV_+3}, v{PV_} offset:{8*word+8}")
    e("s_waitcnt lgkmcnt(0)"); k.lg = []
    e(f"v_readfirstlane_b32 s49, v{PV_+2}")
    e("s_mov_b64 exec, s[56:57]")
    e(f"s_cmp_eq_u32 s49, {nw-1}"); e(f"s_cbranch_scc0 {k.name}_{tag}_sg")
    e(f"buffer_atomic_add v{PV_}, v{PV_+1}, {srd}, s48 offen {SC}")
    if os.environ.get("FOC2") == tag: k.stamp(4)
    k.label(f"{k.name}_{tag}_sg")
    e("s_mov_b64 exec, -1")

def wait_go(k, tag, word, poll_code):
    e = k.e; nm = f"{k.name}_{tag}"
    e(f"v_mov_b32 v{PV_+3}, {LW-8}"); e("s_mov_b32 s49, 0")
    if poll_code:
        e("s_cmp_eq_u32 s18, 0"); e(f"s_cbranch_scc0 {nm}_sp")
        poll_code()
        e("s_mov_b64 exec, s[56:57]")
        if os.environ.get("FOC") == "g" + tag: k.stamp(2)
        k.label(f"{nm}_pl")
        e(f"v_mov_b32 v{PV_}, 0")
        e(f"buffer_atomic_add v{PV_}, v{PV_+1}, s[8:11], s48 offen sc0 sc1")
        e("s_add_u32 s49, s49, 1")
        e("s_waitcnt vmcnt(0)")
        e(f"v_cmp_ge_u32 vcc, v{PV_}, v{PV_+2}")
        e("s_cmp_ge_u32 s49, 0x20000"); e(f"s_cbranch_scc1 {nm}_px")
        e("s_cmp_eq_u64 vcc, exec"); e(f"s_cbranch_scc0 {nm}_pl")
        k.label(f"{nm}_px")
        if os.environ.get("FOC") == "g" + tag: e("s_add_u32 s70, s64, s49")
        e("s_mov_b64 exec, 1"); e(f"v_mov_b32 v{PV_}, 1")
        e(f"ds_write_b32 v{PV_+3}, v{PV_} offset:{8*word+12}")
        e(f"s_branch {nm}_go")
    k.label(f"{nm}_sp")
    e("s_sleep 1")
    e(f"ds_read_b32 v{PV_}, v{PV_+3} offset:{8*word+12}")
    e("s_add_u32 s49, s49, 1")
    e("s_waitcnt lgkmcnt(0)")
    e(f"v_readfirstlane_b32 s44, v{PV_}")
    e("s_cmp_ge_u32 s49, 0x400000"); e(f"s_cbranch_scc1 {nm}_go")
    e("s_cmp_eq_u32 s44, 0"); e(f"s_cbranch_scc1 {nm}_sp")
    k.label(f"{nm}_go")
    e("s_mov_b64 exec, -1")

class Wdma:
    def __init__(s, k, n, base=50, tag="w"): s.k = k; s.n = n; s.i = 0; s.base = base; s.tag = tag
    def one(s, i):
        s.k.e(f"s_add_u32 m0, s45, {4096*i}"); s.k.e(f"s_add_u32 s32, s{s.base}, {4096*i}")
        s.k.vmop(f"buffer_load_dwordx4 v3, s[12:15], s32 offen {SC} lds", f"{s.tag}{i}")
    def go(s, upto):
        while s.i < min(upto, s.n): s.one(s.i); s.i += 1
    def rng(s, a, b, thr=0):
        for i in range(a, b):
            s.one(i)
            if thr and len(s.k.vm) >= thr: s.k.e(f"s_waitcnt vmcnt({thr-1})"); s.k.vm = s.k.vm[len(s.k.vm)-thr+1:]

SIDE_SV = 152; SIDE_D = 160; SIDE_U = 192
def side_setup(k):
    e = k.e; nm = k.name
    e("s_load_dwordx4 s[84:87], s[0:1], 32"); e("s_load_dwordx2 s[88:89], s[0:1], 16")
    e("s_mul_i32 s49, s2, 3"); e("s_add_u32 s49, s49, s18"); e("s_sub_u32 s49, s49, 4")
    e("s_sub_u32 s32, s18, 4"); e("s_cmp_lt_u32 s32, 3"); e("s_cselect_b32 s49, s49, 959"); e("s_cmp_eq_u32 s3, 0"); e("s_cselect_b32 s49, s49, 959")
    e("s_lshl_b32 s35, s39, 13"); e("s_add_u32 s35, s35, 112640")
    e("s_mul_i32 s36, s49, 3277"); e("s_lshr_b32 s36, s36, 16"); e("s_mul_i32 s37, s36, 20"); e("s_sub_u32 s37, s49, s37")
    e("v_and_b32 v140, 15, v1"); e("v_lshrrev_b32 v141, 2, v140"); e("v_and_b32 v142, 3, v1")
    e("s_waitcnt lgkmcnt(0)")
    SV = SIDE_SV
    e("v_lshrrev_b32 v136, 4, v1")
    for r in list(range(SV, SV+5)) + list(range(144, 152)): e(f"v_mov_b32 v{r}, 0")
    e("s_mov_b32 s5, 0")
    e("s_mov_b32 s53, 0x7ff00000"); e("s_mov_b32 s54, s53"); e("s_mov_b32 s58, s53")
    e("s_cmp_ge_u32 s49, 320"); e(f"s_cbranch_scc1 {nm}_ss1")
    k.srd(88, 84, D*3*D*2)
    e(f"s_mul_i32 s5, s37, {32*3840}"); e("s_mul_i32 s32, s36, 80"); e("s_add_u32 s5, s5, s32")
    e("v_lshlrev_b32 v137, 2, v136"); e("v_xor_b32 v137, v137, v140"); e("v_min_u32 v137, 14, v137")
    e("v_mul_u32_u24 v138, 52, v137"); e("v_lshrrev_b32 v138, 8, v138"); e("v_mul_u32_u24 v138, 1200, v138"); e("v_lshl_add_u32 v138, v137, 4, v138")
    e("v_mul_u32_u24 v137, 3840, v136"); e(f"v_add_u32 v{SV}, v138, v137")
    e("v_lshrrev_b32 v137, 5, v1"); e("v_lshl_add_u32 v137, v137, 3, v141"); e("v_lshlrev_b32 v137, 8, v137"); e("v_and_b32 v138, 1, v136")
    e("v_lshl_add_u32 v137, v138, 5, v137"); e("v_lshl_add_u32 v137, v142, 3, v137"); e("v_add_u32 v137, s35, v137")
    for jf in range(4): e(f"v_xor_b32 v139, {jf}, v141"); e(f"v_lshl_add_u32 v{144+jf}, v139, 6, v137")
    e("s_mul_i32 s53, s36, 163840"); e("s_lshl_b32 s54, s37, 13"); e("s_add_u32 s53, s53, s54"); e(f"s_add_u32 s53, s53, {WB_I}"); e("s_add_u32 s54, s53, 4096"); e("s_mov_b32 s58, s54")
    e(f"s_branch {nm}_ss2")
    k.label(f"{nm}_ss1")
    e("s_cmp_ge_u32 s36, 24"); e("s_cselect_b32 s32, s86, s88"); e("s_cselect_b32 s33, s87, s89")
    k.srd(88, 32, D*D*2)
    e("s_cmp_ge_u32 s49, 640"); e(f"s_cbranch_scc1 {nm}_ss2")
    e("s_and_b32 s32, s36, 7"); e("s_mul_i32 s32, s32, 160")
    e("s_mul_i32 s5, s37, 40"); e("s_sub_u32 s34, s37, 16"); e("s_mul_i32 s34, s34, 160"); e("s_add_u32 s34, s34, 16")
    e("s_cmp_lt_u32 s37, 16"); e("s_cselect_b32 s5, s5, s34"); e("s_cselect_b32 s33, 4, 2"); e("s_cselect_b32 s34, 4, 16")
    e("s_mul_i32 s5, s5, 1280"); e("s_add_u32 s5, s5, s32")
    for i in range(5):
        e(f"v_add_u32 v137, {64*i}, v1"); e("v_mul_u32_u24 v138, 6554, v137"); e("v_lshrrev_b32 v138, 16, v138")
        e("v_lshrrev_b32 v139, s33, v138"); e("v_mul_u32_u24 v139, s34, v139"); e("v_mul_u32_u24 v139, 1280, v139")
        e("v_mul_u32_u24 v138, 1120, v138"); e("v_add_u32 v139, v139, v138"); e(f"v_lshl_add_u32 v{SV+i}, v137, 4, v139")
    e("v_lshlrev_b32 v137, 2, v136"); e("s_mov_b32 s32, 2560")
    e("s_cmp_ge_u32 s36, 24"); e(f"s_cbranch_scc1 {nm}_sf3"); e("s_cmp_ge_u32 s37, 16"); e(f"s_cbranch_scc1 {nm}_sf3")
    e("v_lshrrev_b32 v137, 1, v136"); e("v_lshlrev_b32 v137, 4, v137"); e("v_and_b32 v138, 1, v136"); e("v_lshl_add_u32 v137, v138, 2, v137"); e("s_mov_b32 s32, 1280")
    k.label(f"{nm}_sf3")
    e("v_add_u32 v137, v137, v141"); e("v_mul_u32_u24 v137, 160, v137"); e("v_add_u32 v137, s35, v137")
    e("s_and_b32 s33, s36, 1"); e("s_lshl_b32 s34, s33, 5"); e("s_xor_b32 s33, s33, 1"); e("s_lshl_b32 s33, s33, 7")
    e("v_lshl_add_u32 v144, v142, 4, v137"); e("v_add_u32 v144, s34, v144"); e("v_add_u32 v145, s32, v144")
    e("v_lshl_add_u32 v146, v142, 3, v137"); e("v_add_u32 v146, s33, v146"); e("v_add_u32 v147, s32, v146")
    e("s_cmp_ge_u32 s36, 24"); e(f"s_cselect_b32 s53, {WOB_I-WOA_I}, 0"); e("s_and_b32 s54, s36, 7"); e("s_mul_i32 s54, s54, 102400"); e("s_add_u32 s53, s53, s54")
    e("s_mul_i32 s54, s37, 5120"); e("s_add_u32 s53, s53, s54"); e(f"s_add_u32 s53, s53, {WOA_I}"); e("s_add_u32 s54, s53, 4096")
    k.label(f"{nm}_ss2")
    e("s_lshl_b32 s38, s49, 9"); e(f"s_add_u32 s38, s38, {U_B}"); e("s_cmp_ge_u32 s49, 320"); e("s_cselect_b32 s38, 0x7ff00000, s38")
    e("v_lshlrev_b32 v143, 2, v1")
    e("s_cmp_lt_u32 s49, 640"); e("s_cselect_b32 s4, 2, 0"); e("s_cmp_lt_u32 s49, 320"); e("s_cselect_b32 s4, 1, s4")
    e("s_and_b32 s55, s49, 15"); e("s_lshl_b32 s55, s55, 8"); e(f"s_add_u32 s55, s55, {CS}")

def ph_attn(k):
    e = k.e; nm = k.name
    KA, KT, VA = 4, 5, 6
    Q = [8, 14]; KF = [24, 32]; VF = [40, 48]; SS = [56, 72]; P = 88; O = [96, 112]; PF = 208
    SCR = 137216; TOP = 112640
    ids_rt(k)
    e("v_and_b32 v3, 31, v1"); e("v_lshrrev_b32 v7, 5, v1")
    e("v_lshlrev_b32 v22, 4, v1"); e("v_lshlrev_b32 v23, 3, v3")
    e("s_mul_i32 s19, s16, 163840")
    e("s_lshr_b32 s41, s18, 2")
    e("s_lshl_b32 s23, s17, 3"); e("s_lshl_b32 s22, s39, 1"); e("s_add_u32 s23, s23, s22")
    e("s_add_u32 s23, s23, s41")
    e("s_lshr_b32 s22, s19, 1"); e(f"s_add_u32 s22, s22, {QIMG}")
    e("s_mul_i32 s24, s23, 1280"); e("s_add_u32 s24, s24, s22"); e("s_xor_b32 s40, s23, 1"); e("s_mul_i32 s40, s40, 1280"); e("s_add_u32 s40, s40, s22")
    e("s_mul_i32 s42, s41, 2560"); e(f"s_add_u32 s42, s42, {TOP}")
    e("s_lshl_b32 s25, s18, 10")
    e(f"s_add_u32 s26, s19, {KVIMG}")
    rnd = [0]
    def dma():
        i = rnd[0]; rnd[0] += 1
        if i == 6:
            e("s_cmp_lt_u32 s18, 2"); e("s_cselect_b32 s27, 163840, 0"); e("s_add_u32 s27, s27, s25"); e("s_sub_u32 m0, s27, 2048")
        else: e(f"s_add_u32 m0, s25, {(TOP + 8192*i) if i < 6 else 8192*i - 51200}")
        e("s_add_u32 s27, s26, m0")
        k.vmop(f"buffer_load_dwordx4 v22, s[12:15], s27 offen {SC} lds", f"i{i}")
    e(f"v_add_u32 v{KA}, s42, v22")
    e(f"v_add_u32 v{KT}, s42, v23"); e(f"v_add_u32 v{KT}, 1024, v{KT}")
    if ENV('KTZ', '1'): e(f"v_lshl_add_u32 v{KT}, v7, 20, v{KT}")
    e("v_mul_u32_u24 v21, 20, v7"); e("v_add_u32 v21, v21, v3"); e("v_lshlrev_b32 v21, 4, v21")
    e("v_add_u32 v21, 1280, v21"); e(f"v_add_u32 v{VA}, s42, v21")
    e("s_mov_b32 s28, 0x000fffff"); e("s_mov_b32 s29, 0x000fffff")
    e("v_cmp_eq_u32 vcc, 20, v3"); e("v_mov_b32 v20, 0x3f803f80"); e("s_nop 0")
    e("v_cndmask_b32 v20, 0, v20, vcc")
    for r in range(16): e(f"v_mov_b32 v{VF[0]+r}, v20")
    for r in range(32): e(f"v_mov_b32 v{O[0]+r}, 0")
    for r in range(4): e(f"v_mov_b32 v{P+4+r}, 0")
    e("v_subrev_u32 v30, 1, v7")
    e("s_lshl_b32 s43, s21, 2"); e("s_add_u32 s43, s43, s39"); e(f"s_mul_i32 s43, s43, {2048*ENV('NPF', '14') - 1024}"); e(f"s_add_u32 s43, s43, {WOA_I}")
    e("s_mul_i32 s32, s23, 40960"); e(f"s_add_u32 s32, s32, {OT}")
    e("s_lshr_b32 s51, s16, 1"); e("s_lshl_b32 s51, s51, 10"); e("s_and_b32 s34, s16, 1"); e("s_lshl_b32 s34, s34, 9")
    e("s_add_u32 s51, s51, s34"); e("s_add_u32 s51, s51, s32")
    e("s_lshr_b32 s52, s16, 3"); e("s_add_u32 s52, s52, 16"); e("s_lshl_b32 s52, s52, 10"); e("s_add_u32 s52, s52, s32")
    e("s_and_b32 s35, s16, 3"); e("s_lshl_b32 s35, s35, 8"); e("s_add_u32 s52, s52, s35")
    e("s_bfe_u32 s35, s16, 0x10002"); e("s_lshl_b32 s35, s35, 3"); e("s_add_u32 s52, s52, s35")
    e("v_lshrrev_b32 v38, 4, v3"); e("v_mul_u32_u24 v38, 20480, v38"); e("v_and_b32 v39, 15, v3")
    e("v_lshl_add_u32 v38, v39, 4, v38"); e("v_lshl_add_u32 v39, v7, 8, v38")
    e("s_mul_i32 s32, s18, 3072"); e("s_xor_b32 s33, s18, 4"); e("s_mul_i32 s33, s33, 3072")
    e(f"v_add_u32 v132, {SCR}, v22"); e("v_add_u32 v133, s33, v132"); e("v_add_u32 v132, s32, v132")
    def c0(nl):
        e("s_lshl_b32 s48, s17, 8"); e(f"s_add_u32 s48, s48, {C0}"); e(f"v_mov_b32 v{PV_+2}, 16")
        e("s_mul_i32 s32, s16, 20"); e("s_add_u32 s33, s32, 19"); e("s_lshr_b32 s32, s32, 7"); e("s_lshr_b32 s33, s33, 7"); e("s_sub_u32 s33, s33, s32")
        e(f"v_lshrrev_b32 v{PV_+1}, 1, v1"); e(f"v_mul_u32_u24 v{PV_+1}, 5, v{PV_+1}"); e(f"v_and_b32 v{PV_}, s33, v1"); e(f"v_add3_u32 v{PV_+1}, v{PV_+1}, v{PV_}, s32")
        e(f"v_lshlrev_b32 v{PV_+1}, 11, v{PV_+1}"); e("s_mov_b64 s[56:57], 63")
    side_setup(k)
    e("s_lshl_b32 s59, s2, 2"); e("s_add_u32 s59, s59, s39"); e("s_mul_i32 s50, s59, 2560"); e(f"s_mul_i32 s59, s59, {-(-(U_A - OT) // 1024 // 128) * 128}"); e(f"s_add_u32 s59, s59, {OT}")
    e("v_lshlrev_b32 v234, 7, v1")
    e("v_lshlrev_b32 v134, 11, v1"); e("s_lshl_b32 s32, s17, 8"); e(f"s_add_u32 s32, s32, {C0}"); e("v_add_u32 v134, s32, v134")
    e("v_lshlrev_b32 v135, 8, v1"); e(f"v_add_u32 v135, {CS - 4096}, v135"); e("v_cmp_gt_u32 vcc, 16, v1")
    e("v_cndmask_b32 v134, v135, v134, vcc"); e("v_cndmask_b32 v131, 40, 16, vcc"); e("v_mov_b32 v135, 64")
    wait_go(k, "t", -1, lambda: c0(6))
    k.stamp(2)
    dma()
    for x in range(2):
        k.vmop(f"buffer_load_dwordx4 {vr(Q[x],4)}, v22, s[12:15], s{(24,40)[x]} offen {SC}", "q")
        k.vmop(f"buffer_load_dwordx2 {vr(Q[x]+4,2)}, v23, s[12:15], s{(24,40)[x]} offen offset:1024 {SC}", "q")
    for _ in range(3): dma()
    k.waitvm("q")
    for x in range(2):
        e(f"v_and_b32 v{Q[x]+4}, v{Q[x]+4}, v30"); e(f"v_and_b32 v{Q[x]+5}, v{Q[x]+5}, v30")
    k.waitvm("i1"); e("s_barrier"); k.stamp(3)
    if os.environ.get("FOC") == "clk": k.rstamp(0)
    def rdK(buf, off):
        off *= 2
        e(f"ds_read_b128 {vr(KF[buf],4)}, v{KA} offset:{off}")
        e(f"ds_read_b64 {vr(KF[buf]+4,2)}, v{KT} offset:{off}")
    def rdV(buf, off):
        off *= 2
        e("s_mov_b64 exec, s[28:29]")
        e(f"ds_read_b128 {vr(VF[buf],4)}, v{VA} offset:{off}")
        e(f"ds_read_b128 {vr(VF[buf]+4,4)}, v{VA} offset:{off+640}")
        e("s_mov_b64 exec, -1")
    def qkm(x, kb): e(f"v_mfma_f32_32x32x16_bf16 {vr(SS[x],16)}, {vr(KF[kb],4)}, {vr(Q[x],4)}, 0")
    def qkt(x, kb): e(f"v_mfma_f32_32x32x8_bf16 {vr(SS[x],16)}, {vr(KF[kb]+4,2)}, {vr(Q[x]+4,2)}, {vr(SS[x],16)}")
    def pv(x, vb, u): e(f"v_mfma_f32_32x32x16_bf16 {vr(O[x],16)}, {vr(VF[vb]+4*u,4)}, {vr(P+4*u,4)}, {vr(O[x],16)}")
    def base(t):
        return 0 if t < 10 else 10 if t < 22 else 22
    def bump(regs, t):
        if t == 10:
            for r in regs: e(f"v_subrev_u32 v{r}, {TOP}, v{r}")
        elif t == 22:
            for r in regs: e(f"v_add_u32 v{r}, {12*5120}, v{r}")
    def unit(x, t, extra=()):
        p = t % 2; s = SS[x]
        ex = lambda i: e(f"v_exp_f32 v{s+i}, v{s+i}")
        cv = lambda i: e(f"v_cvt_pk_bf16_f32 v{P+i}, v{s+2*i}, v{s+2*i+1}")
        kb = p if x == 0 else 1-p
        if x == 1: e("s_waitcnt lgkmcnt(2)" if t < 31 else "s_waitcnt lgkmcnt(0)")
        if not (x == 1 and t == 31): qkm(1-x, kb)
        if x == 1 and t + 2 < 32:
            bump((KA, KT), t+2); rdK(p, (t+2-base(t+2))*2560)
        for i in range(0, 4): ex(i)
        if x == 0:
            pv(1, 1-p, 1)
            if t + 1 < 32:
                bump((VA,), t+1); rdV(1-p, (t+1-base(t+1))*2560)
        else:
            pv(0, p, 1)
        for f_ in extra: f_()
        for i in range(4, 8): ex(i)
        for i in range(0, 4): cv(i)
        if not (x == 1 and t == 31): qkt(1-x, kb)
        for i in range(8, 12): ex(i)
        if x == 0: e(f"s_waitcnt lgkmcnt({4 if t < 31 else 0})")
        pv(x, p, 0)
        for i in range(12, 16): ex(i)
        for i in range(4, 8): cv(i)
    rdK(0, 0); rdV(0, 0); rdK(1, 2560)
    e("s_waitcnt lgkmcnt(4)")
    qkm(0, 0); e("s_nop 10"); qkt(0, 0); e("s_nop 10")
    SYN = {1: 3, 4: 7, 10: 19}; SW = ENV('SW', '27')
    T_SI, T_SR, T_SA, T_PF, T_LC = 10, ENV('TSR', '16'), 26, ENV('TPF', '15'), 27
    hk = [0]
    def cond(test, fn):
        def g():
            hk[0] += 1; lab = f"{nm}_hk{hk[0]}"
            e(test); e(f"s_cbranch_scc0 {lab}"); fn(); k.label(lab)
        return g
    def prio1(): e("s_setprio 1")
    def pref():
        for _ in range(2): e(f"buffer_load_dwordx4 {vr(PF,4)}, v22, s[12:15], s43 offen {SC}"); e("s_add_u32 s43, s43, 1024")
    def side_issue():
        e("s_cmp_eq_u32 s4, 1"); e(f"s_cbranch_scc0 {nm}_i1")
        for i in range(8):
            e(f"s_add_u32 m0, s35, {1024*i}"); e(f"s_add_u32 s27, s5, {4*3840*i}")
            e(f"buffer_load_dwordx4 v{SIDE_SV}, s[88:91], s27 offen {os.environ.get('SNT', 'nt')} lds")
        e(f"s_branch {nm}_i2")
        k.label(f"{nm}_i1")
        for i in range(5):
            e(f"s_add_u32 m0, s35, {1024*i}"); e("s_nop 0")
            e(f"buffer_load_dwordx4 v{SIDE_SV+i}, s[88:91], s5 offen {os.environ.get('SNT', 'nt')} lds")
        k.label(f"{nm}_i2")
    def side_read():
        e("s_waitcnt vmcnt(0)")
        e("s_cmp_eq_u32 s4, 1"); e(f"s_cbranch_scc0 {nm}_r1")
        for F in range(8):
            for t in range(2): e(f"ds_read_b64_tr_b16 {vr(SIDE_D+4*F+2*t,2)}, v{144+F%4} offset:{4096*(F//4)+1024*t}")
        e(f"s_branch {nm}_r2")
        k.label(f"{nm}_r1")
        for nf in range(5):
            for t in range(2): e(f"ds_read_b64_tr_b16 {vr(SIDE_D+4*nf+2*t,2)}, v{144+t if nf < 4 else 146+t} offset:{64*(nf//2)+8*(nf%2) if nf < 4 else 0}")
        k.label(f"{nm}_r2")
    def side_done():
        e("s_waitcnt lgkmcnt(0)"); e(f"v_mov_b32 v{PV_+3}, {LW-8}"); e(f"v_mov_b32 v{PV_}, 1"); e("s_mov_b64 exec, 1")
        e(f"ds_add_u32 v{PV_+3}, v{PV_}"); e("s_mov_b64 exec, -1")
    UA = (SIDE_U, 212)
    def side_sum(q):
        def g():
            if q == 0:
                for r in range(4): e(f"v_mov_b32 v{228+r}, 0x3f803f80")
            for u in range(2):
                for x in range(2): e(f"v_mfma_f32_32x32x16_bf16 {vr(UA[x],16)}, v[228:231], {vr(SIDE_D+16*u+8*q+4*x,4)}, {vr(UA[x],16) if u else 0}")
        return g
    def side_sum2(q):
        def g():
            e("v_cmp_gt_u32 vcc, 32, v1"); e(f"v_cndmask_b32 v{232+q}, v{UA[1]}, v{UA[0]}, vcc")
            e(f"buffer_store_dword v{232+q}, v143, s[12:15], s38 offen offset:{256*q} {SC}")
        return g
    def side_store(F):
        return lambda: e(f"buffer_store_dwordx4 {vr(SIDE_D+4*F,4)}, v22, s[12:15], s{53 if F < 4 else 54 if F == 4 else 58} offen offset:{1024*(F%4)} {SC}")
    def side_arrive():
        e(f"v_mov_b32 v{PV_+1}, 0"); e(f"v_mov_b32 v{PV_}, 1"); e("s_waitcnt vmcnt(0)"); e("s_mov_b64 exec, 1")
        e(f"buffer_atomic_add v{PV_}, v{PV_+1}, s[12:15], s55 offen {SC}"); e("s_mov_b64 exec, -1")
    def touch():
        e("s_cmp_eq_u32 s3, 0"); e(f"s_cbranch_scc0 {nm}_t2")
        e("buffer_load_dword v235, v234, s[12:15], s59 offen"); e(f"s_branch {nm}_t3")
        k.label(f"{nm}_t2")
        if ENV('TOUT', '0'):
            e("s_mov_b64 exec, 0xfffff"); e("buffer_load_dword v235, v234, s[60:63], s50 offen"); e("s_mov_b64 exec, -1")
        k.label(f"{nm}_t3")
    def late():
        e("s_mov_b32 exec_lo, 0xffff7fff"); e("s_mov_b32 exec_hi, 0"); e(f"buffer_load_dword v135, v134, s[12:15], 0 offen {SC}"); e("s_mov_b64 exec, -1")
    def init_words(): lw_init(k); e(f"v_mov_b32 v{PV_+3}, {LW-8}"); e(f"ds_write_b32 v{PV_+3}, v{PV_}")
    side = "s_cmp_lg_u32 s4, 0"
    for t in range(32):
        if t in SYN: k.waitvm(f"i{SYN[t]}"); e("s_barrier")
        x0, x1 = [], []
        if rnd[0] < 20: x0 += [dma, dma]; x1 += [dma, dma]
        if t in (1, 4, 10): cond("s_cmp_ge_u32 s18, 4", prio1)()
        if t == 3: x0.append(lambda: e("s_setprio 0"))
        if t == 8: x1.append(lambda: e("s_setprio 0"))
        if t == 10:
            x0.append(cond("s_cmp_eq_u32 s18, 4", lambda: lw_init(k)))
            if os.environ.get("FOC") == "at": k.stamp(2)
        if t == SW + 1 and os.environ.get("FOC") == "at": k.stamp(0)
        if t == T_SI: x1.append(cond(side, side_issue))
        if t == T_SR: x1.append(cond(side, side_read))
        if t == T_SR + 1: x0.append(cond(side, lambda: e("s_waitcnt lgkmcnt(0)"))); x1.append(cond("s_cmp_eq_u32 s4, 1", side_sum(0)))
        if t == T_SR + 2: x0.append(cond("s_cmp_eq_u32 s4, 1", side_sum2(0))); x1.append(cond("s_cmp_eq_u32 s4, 1", side_sum(1)))
        if t == T_SR + 3: x0.append(cond("s_cmp_eq_u32 s4, 1", side_sum2(1)))
        if T_SR + 1 <= t < T_SR + 9: x1.append(cond(side, side_store(t - T_SR - 1)))
        if ENV('TCH', '6') and t == ENV('TCH', '6'): x0.append(cond("s_cmp_lt_u32 s18, 4", touch))
        if t == T_SA: x0.append(cond(side, side_arrive))
        if T_PF <= t < T_PF + ENV('NPF', '14') and ENV('PFW', '1'): x0.append(cond("s_cmp_lt_u32 s18, 4", pref))
        if t == T_LC: x1.append(cond("s_cmp_eq_u32 s18, 0", late))
        if t == SW: (x1 if ENV('SWX', '0') else x0).append(lambda: e("s_setprio 0"))
        unit(0, t, x0); unit(1, t, x1)
    pv(1, 1, 1); k.stamp(4)
    if os.environ.get("FOC") == "clk": k.rstamp(2)
    e("s_mov_b32 s30, 0")
    e(f"s_mov_b32 s32, {fbits(2.0**-60)}"); e(f"s_mov_b32 s33, {fbits(2.0**100)}"); e(f"s_mov_b32 s34, {fbits(2.0**126)}")
    k.label(f"{nm}_scrok")
    e("s_nop 7")
    for i in range(3): e(f"ds_write_b128 v132, {vr(O[1]+4*i,4)} offset:{1024*i}")
    e("s_waitcnt vmcnt(0)"); e("v_cmp_gt_u32 vcc, v131, v135"); e(f"s_cbranch_vccnz {nm}_late")
    k.label(f"{nm}_lok")
    e("s_waitcnt lgkmcnt(0)"); e("s_barrier")
    for i in (2, 0, 1): e(f"ds_read_b128 {vr(SS[0]+4*i,4)}, v133 offset:{1024*i}")
    OO = O[0]
    e("s_waitcnt lgkmcnt(2)")
    for r in range(8, 12): e(f"v_add_f32 v{OO+r}, v{OO+r}, v{SS[0]+r}")
    e("s_waitcnt lgkmcnt(0)")
    for r in range(8): e(f"v_add_f32 v{OO+r}, v{OO+r}, v{SS[0]+r}")
    k.label(f"{nm}_chk")
    e(f"v_mov_b32 v30, v{OO+8}"); e(f"v_mov_b32 v31, v{OO+8}")
    e(f"v_max3_f32 v28, abs(v{OO}), abs(v{OO+1}), abs(v{OO+2})")
    e("v_permlane32_swap_b32 v30, v31")
    for r in range(3, 11, 2): e(f"v_max3_f32 v28, abs(v{OO+r}), abs(v{OO+r+1}), v28")
    e(f"v_max_f32 v28, abs(v{OO+11}), v28")
    e("v_cmp_le_f32 vcc, s32, v31"); e("v_cmp_ge_f32 s[36:37], s33, v31"); e("v_cmp_gt_f32 s[40:41], s34, v28")
    e("v_rcp_f32 v31, v31")
    e("s_and_b64 s[36:37], s[36:37], vcc"); e("s_and_b64 s[36:37], s[36:37], s[40:41]")
    e("s_cmp_eq_u64 s[36:37], -1"); e(f"s_cbranch_scc0 {nm}_slow")
    def slowpath():
        k.label(f"{nm}_late")
        e("s_mov_b32 s49, 0")
        k.label(f"{nm}_late1")
        e("s_sleep 8"); late(); e("s_add_u32 s49, s49, 1"); e("s_waitcnt vmcnt(0)")
        e("v_cmp_gt_u32 vcc, v131, v135"); e("s_cmp_ge_u32 s49, 0x20000"); e(f"s_cbranch_scc1 {nm}_lok"); e(f"s_cbranch_vccnz {nm}_late1")
        e(f"s_branch {nm}_lok")
        k.label(f"{nm}_slow")
        e("s_cmp_eq_u32 s30, 0"); e(f"s_cbranch_scc0 {nm}_fin")
        e("s_mov_b32 s30, 1")
        e("s_waitcnt vmcnt(0)")
        NM = O[1]
        e("v_mov_b32 v32, 0xff800000")
        def slowqk(c):
            e(f"buffer_load_dwordx4 {vr(KF[0],4)}, v22, s[12:15], s27 offen {SC}")
            e(f"buffer_load_dwordx2 {vr(KF[0]+4,2)}, v23, s[12:15], s27 offen offset:1024 {SC}")
            e("s_waitcnt vmcnt(0)")
            e(f"v_mfma_f32_32x32x16_bf16 {vr(SS[0],16)}, {vr(KF[0],4)}, {vr(Q[0],4)}, {c}"); e("s_nop 10")
            e(f"v_mfma_f32_32x32x8_bf16 {vr(SS[0],16)}, {vr(KF[0]+4,2)}, {vr(Q[0]+4,2)}, {vr(SS[0],16)}"); e("s_nop 12")
        e(f"s_add_u32 s27, s19, {KVIMG}"); e("s_mov_b32 s31, 0")
        k.label(f"{nm}_mx")
        slowqk("0")
        for r in range(0, 16, 2): e(f"v_max3_f32 v32, v{SS[0]+r}, v{SS[0]+r+1}, v32")
        e("s_add_u32 s27, s27, 2560")
        e("s_add_u32 s31, s31, 1"); e("s_cmp_lt_u32 s31, 64"); e(f"s_cbranch_scc1 {nm}_mx")
        k.allred32("v_max_f32", 32, 33)
        e("v_xor_b32 v32, 0x80000000, v32")
        for r in range(16): e(f"v_mov_b32 v{NM+r}, v32")
        for r in range(16): e(f"v_mov_b32 v{OO+r}, 0")
        for r in range(8): e(f"v_mov_b32 v{VF[0]+r}, v20")
        e(f"s_add_u32 s27, s19, {KVIMG}"); e("s_mov_b32 s31, 0")
        k.label(f"{nm}_sl")
        e("s_mov_b64 exec, s[28:29]")
        e(f"buffer_load_dwordx4 {vr(VF[0],4)}, v21, s[12:15], s27 offen {SC}")
        e(f"buffer_load_dwordx4 {vr(VF[0]+4,4)}, v21, s[12:15], s27 offen offset:640 {SC}")
        e("s_mov_b64 exec, -1")
        slowqk(vr(NM,16))
        for i in range(16): e(f"v_exp_f32 v{SS[0]+i}, v{SS[0]+i}")
        e("s_nop 0")
        for i in range(8): e(f"v_cvt_pk_bf16_f32 v{P+i}, v{SS[0]+2*i}, v{SS[0]+2*i+1}")
        e("s_nop 1")
        pv(0, 0, 0); pv(0, 0, 1)
        e("s_add_u32 s27, s27, 2560")
        e("s_add_u32 s31, s31, 1"); e("s_cmp_lt_u32 s31, 64"); e(f"s_cbranch_scc1 {nm}_sl")
        e("s_nop 12"); e(f"s_branch {nm}_chk")
    k.tail = slowpath
    k.label(f"{nm}_fin")
    e("s_nop 0")
    for r in range(12): e(f"v_mul_f32 v{OO+r}, v{OO+r}, v31")
    for r in range(6): e(f"v_cvt_pk_bf16_f32 v{P+r}, v{OO+2*r}, v{OO+2*r+1}")
    e(f"buffer_store_dwordx4 {vr(P,4)}, v39, s[12:15], s51 offen {SC}")
    e("s_mov_b32 exec_hi, 0")
    e(f"buffer_store_dwordx2 {vr(P+4,2)}, v38, s[12:15], s52 offen {SC}")
    e("s_mov_b64 exec, -1")
    k.stamp(5)
    e("v_lshlrev_b32 v3, 4, v1")
    k.vm = []; k.lg = []

def proj_c(k, tag, src, xin, xout, stout, last, cnt_code, word, st0):
    final = False
    e = k.e
    ACC, RESID, A, BF = 24, 44, 76, 156
    NA0 = ENV('PA0', '8')
    ids_rt(k)
    e("s_lshl_b32 s19, s16, 2"); e("s_add_u32 s19, s19, s39")
    e("s_mul_i32 s24, s19, 20480")
    e("s_lshr_b32 s33, s17, 1"); e("s_mul_i32 s33, s33, 5120"); e("s_add_u32 s33, s33, s24")
    e("s_and_b32 s34, s17, 1"); e("s_mul_i32 s35, s34, 3072"); e("s_add_u32 s35, s35, s33")
    e("s_lshl_b32 s36, s34, 9"); e("s_add_u32 s36, s36, s33"); e("s_add_u32 s36, s36, 2048")
    e(f"s_add_u32 s37, s35, {xin}"); e(f"s_add_u32 s38, s36, {xin}")
    e("v_lshrrev_b32 v13, 5, v1"); e("v_lshlrev_b32 v13, 8, v13"); e("v_and_b32 v14, 15, v1"); e("v_lshl_add_u32 v13, v14, 4, v13")
    e("v_bfe_u32 v14, v1, 4, 1"); e("v_lshl_add_u32 v13, v14, 3, v13")
    k.vmop(f"buffer_load_dwordx4 {vr(RESID,4)}, v3, {RS_(xin)}, s37 offen {SC}", "r")
    k.vmop(f"buffer_load_dwordx4 {vr(RESID+4,4)}, v3, {RS_(xin)}, s37 offen offset:1024 {SC}", "r")
    k.vmop(f"buffer_load_dwordx2 {vr(RESID+8,2)}, v13, {RS_(xin)}, s38 offen {SC}", "r")
    e(f"s_add_u32 s24, s24, {src}")
    for i in range(1, 5): e(f"s_add_u32 s{24+i}, s24, {4096*i}")
    e("v_lshrrev_b32 v9, 4, v1"); e("v_add_u32 v12, 61440, v3")
    wait_go(k, tag, word, cnt_code)
    k.stamp(st0)
    def ldA(n): k.vmop(f"buffer_load_dwordx4 {vr(A+4*n,4)}, v3, s[12:15], s{24+n//4} offen offset:{(n%4)*1024} {SC}", f"a{n}")
    for n in range(NA0): ldA(n)
    k.waitvm("r")
    for i in range(10):
        e(f"v_lshlrev_b32 v{ACC+2*i}, 16, v{RESID+i}"); e(f"v_and_b32 v{ACC+2*i+1}, 0xffff0000, v{RESID+i}")
    def rd(n, nf):
        off = n*5120 + nf*1024; b = 3
        if n >= 12: off -= 61440; b = 12
        k.dsop(f"ds_read_b128 {vr(BF+20*(n%2)+4*nf,4)}, v{b} offset:{off}", f"b{n}_{nf}")
    e("s_barrier")
    for n in range(2):
        for nf in range(5): rd(n, nf)
    for n in range(20):
        if n < 2 or n % 2 == 0: k.waitvm(f"a{min(n + (n >= 2), 19)}")
        if n == 0: k.stamp(st0+1)
        for nf in range(5):
            if ENV('PW1', '1'):
                if nf == 0: k.waitlg(f"b{n}_4")
            elif nf in (0, 2, 4): k.waitlg(f"b{n}_{min(nf+1,4)}")
            if n == 12 and nf == 0 and not final: e("s_barrier")
            e(f"v_mfma_f32_16x16x32_bf16 {vr(ACC+4*nf,4)}, {vr(BF+20*(n%2)+4*nf,4)}, {vr(A+4*n,4)}, {vr(ACC+4*nf,4)}")
            if n + 2 < 20: rd(n+2, nf)
            if nf == 0 and n + NA0 < 20: ldA(n + NA0)
    e("s_barrier")
    if last:
        e("s_cmp_eq_u32 s3, 0"); e(f"s_cbranch_scc1 {k.name}_nf")
        e("v_and_b32 v16, 15, v1"); e("v_mul_u32_u24 v16, 1280, v16"); e("v_lshl_add_u32 v17, v9, 3, v16"); e("v_lshl_add_u32 v16, v9, 4, v16")
        e("s_mul_i32 s32, s19, 20480"); e("s_mul_i32 s31, s17, 160"); e("s_add_u32 s32, s32, s31")
        e("s_lshl_b32 s31, s34, 5"); e("s_add_u32 s33, s32, s31"); e("s_xor_b32 s31, s34, 1"); e("s_lshl_b32 s31, s31, 7"); e("s_add_u32 s32, s32, s31")
        FSC = os.environ.get("FSC", "")
        for i in range(10): e(f"v_cvt_pk_bf16_f32 v{RESID+i}, v{ACC+2*i}, v{ACC+2*i+1}")
        e(f"buffer_store_dwordx4 {vr(RESID,4)}, v16, s[60:63], s33 offen {FSC}")
        e(f"buffer_store_dwordx4 {vr(RESID+4,4)}, v16, s[60:63], s33 offen offset:64 {FSC}")
        e(f"buffer_store_dwordx2 {vr(RESID+8,2)}, v17, s[60:63], s32 offen {FSC}")
        k.stamp(st0+2)
        if STAMP: e("s_waitcnt vmcnt(0)")
        k.dump(15, "2")
        e("s_endpgm")
        k.label(f"{k.name}_nf")
    if True:
        e(f"s_add_u32 s37, s35, {xout}"); e(f"s_add_u32 s38, s36, {xout}")
        e("s_lshl_b32 s32, s19, 10"); e("s_lshl_b32 s33, s17, 7"); e("s_add_u32 s32, s32, s33"); e(f"s_add_u32 s32, s32, {stout}")
        e("v_lshlrev_b32 v16, 3, v1")
        for i in range(10): e(f"v_cvt_pk_bf16_f32 v{RESID+i}, v{ACC+2*i}, v{ACC+2*i+1}")
        e(f"buffer_store_dwordx4 {vr(RESID,4)}, v3, {RS_(xout)}, s37 offen {SC}")
        e(f"buffer_store_dwordx4 {vr(RESID+4,4)}, v3, {RS_(xout)}, s37 offen offset:1024 {SC}")
        e(f"buffer_store_dwordx2 {vr(RESID+8,2)}, v13, {RS_(xout)}, s38 offen {SC}")
        e(f"v_add_f32 v18, v{ACC}, v{ACC+1}"); e(f"v_mul_f32 v19, v{ACC}, v{ACC}"); e(f"v_add_f32 v20, v{ACC+2}, v{ACC+3}"); e(f"v_mul_f32 v21, v{ACC+1}, v{ACC+1}")
        e(f"v_fmac_f32 v19, v{ACC+2}, v{ACC+2}"); e(f"v_fmac_f32 v21, v{ACC+3}, v{ACC+3}")
        for i in range(4, 20, 2):
            e(f"v_add_f32 v18, v18, v{ACC+i}"); e(f"v_fmac_f32 v19, v{ACC+i}, v{ACC+i}")
            e(f"v_add_f32 v20, v20, v{ACC+i+1}"); e(f"v_fmac_f32 v21, v{ACC+i+1}, v{ACC+i+1}")
        e("v_add_f32 v18, v18, v20"); e("v_add_f32 v19, v19, v21")
        for sw in ("v_permlane16_swap_b32", "v_permlane32_swap_b32"):
            e("v_mov_b32 v20, v18"); e("v_mov_b32 v21, v19"); e("s_nop 0")
            e(f"{sw} v18, v20"); e(f"{sw} v19, v21"); e("s_nop 0")
            e("v_add_f32 v18, v18, v20"); e("v_add_f32 v19, v19, v21")
        e("s_mov_b64 exec, 0xffff")
        e(f"buffer_store_dwordx2 v[18:19], v16, {RS_(xout)}, s32 offen {SC}")
    k.stamp(st0+2)

def proj_l(k, wimg, nxt, src, sig=None, done=0, last=False):
    e = k.e
    if nxt is not None:
        ids_mt(k)
        e("s_min_u32 s17, s17, 14" if nxt == WA_I else "s_nop 0")
        e("s_mul_i32 s58, s17, 163840"); e("s_add_u32 s58, s58, s45"); e(f"s_add_u32 s58, s58, {nxt}")
    ids_rt(k)
    e("s_mul_i32 s50, s17, 102400"); e("s_add_u32 s50, s50, s45"); e(f"s_add_u32 s50, s50, {wimg}")
    e("s_mul_i32 s51, s16, 81920"); e("s_lshl_b32 s52, s17, 2"); e("s_add_u32 s52, s52, s39"); e("s_mul_i32 s52, s52, 2560"); e("s_add_u32 s51, s51, s52"); e(f"s_add_u32 s51, s51, {src}")
    e("v_min_u32 v21, 39, v1"); e("v_lshlrev_b32 v21, 6, v21")
    w = Wdma(k, 25, 50, "o"); k.vm = []
    T1, T2 = ENV('T1', '0'), ENV('T2', '3')
    if sig:
        signal(k, "s1l", 0, 8, sig)
        ub_prep(k, 0)
    if last: w.rng(0, 6); e("s_barrier"); done = 6
    w.rng(done, 25, T1 if sig else ENV('T4', '0'))
    w2 = Wdma(k, 40, 58)
    if last:
        e("s_cmp_eq_u32 s3, 0"); e(f"s_cbranch_scc1 {k.name}_nl")
        e("s_waitcnt vmcnt(0)"); e("s_barrier"); e("buffer_load_dword v20, v21, s[12:15], s51 offen"); e("s_endpgm")
        k.label(f"{k.name}_nl")
    if sig:
        w2.rng(25, 33, T1)
        e(f"v_mov_b32 v{PV_+3}, {LW}"); e("s_mov_b32 s49, 0")
        k.label(f"{k.name}_a8")
        e(f"ds_read_b32 v{PV_}, v{PV_+3}"); e("s_add_u32 s49, s49, 1"); e("s_waitcnt lgkmcnt(0)"); e(f"v_readfirstlane_b32 s44, v{PV_}")
        e("s_cmp_ge_u32 s49, 0x400000"); e("s_cselect_b32 s44, 8, s44"); e("s_cmp_lt_u32 s44, 8"); e(f"s_cbranch_scc1 {k.name}_a8")
    if nxt is not None: w2.rng(33 if sig else 32, 39, T1 if sig else ENV('T4', '0'))
    if sig: ub_prep(k, 1)
    if last and ENV('WPF', '0'):
        e("v_lshlrev_b32 v22, 7, v1"); e("s_and_b32 s32, s21, 1"); e("s_lshl_b32 s32, s32, 2"); e("s_add_u32 s32, s32, s39"); e("s_lshl_b32 s32, s32, 14")
        e("s_sub_u32 s33, s58, s45"); e("s_add_u32 s33, s33, s32")
        for i in range(2):
            k.vmop(f"buffer_load_dword v23, v22, s[12:15], s33 offen {SC}"); e("s_add_u32 s33, s33, 8192")
            if ENV('WPF', '0') == 2: e("s_waitcnt vmcnt(0)"); k.vm = []
    k.waitvm("o24")
    e("s_barrier")
    if ENV('ATOUCH', '0'):
        k.vmop("buffer_load_dword v20, v21, s[12:15], s51 offen")
    if nxt is not None:
        if not sig: w2.rng(25, 32)
        e("s_barrier")
        w2.rng(0, 15, ENV('T3', '0'))
        e("s_barrier")
        k.waitvm("w14")
        if ENV('LSL', '0'): e(f"s_sleep {ENV('LSL', '0')}")
        w2.rng(15, 25, T2)
    return w2

def stats16(k, s, rstd, mop, mask):
    e = k.e
    e(f"v_add_f32 v{s}, v{s}, v{s+2}"); e(f"v_add_f32 v{s+1}, v{s+1}, v{s+3}")
    k.allred16("v_add_f32", s, s+2); k.allred16("v_add_f32", s+1, s+3)
    k.allred32("v_add_f32", s, s+2); k.allred32("v_add_f32", s+1, s+3)
    stats_finish(k, s, s+1, s+2, rstd, s+3)
    split3(k, s+2, mop, 17, 'm', mask)
def usum(k, u, dst, t=17):
    e = k.e
    e(f"v_add_f32 v{u}, v{u}, v{u+1}"); e(f"v_add_f32 v{u+2}, v{u+2}, v{u+3}"); e(f"v_add_f32 v{u}, v{u}, v{u+2}")
    split3(k, u, dst, t, 'u')
def scale_pack(k, a, sc, dst):
    for r in range(4): k.e(f"v_mul_f32 v{a+r}, v{a+r}, v{sc(r)}")
    for r in range(2): k.e(f"v_cvt_pk_bf16_f32 v{dst+r}, v{a+2*r}, v{a+2*r+1}")
EX = 102400
SOFF = 2*8192 + 7296
UOFF = lambda F: (F//4)*8192 + 7168 + (F%4)*256 + 128
TOKF = (0, 1, 2, 3, 6); FEAF = (4, 5, 7)

UO = 3456
def ub_prep(k, part):
    e = k.e
    if part:
        k.waitvm("up")
        for j_ in range(5): e(f"v_add_f32 v{64+j_}, v{64+j_}, v{69+j_}")
        e("v_add_f32 v64, v64, v65"); e("v_add_f32 v66, v66, v67"); e("v_add_f32 v64, v64, v68"); e("v_add_f32 v64, v64, v66")
        k.allred32("v_add_f32", 64, 65); split3(k, 64, 28, 17, 'u')
        return
    e("v_lshrrev_b32 v6, 5, v1"); e("v_and_b32 v5, 31, v1"); e("s_lshr_b32 s30, s21, 1")
    e("v_mul_u32_u24 v12, 5120, v6"); e("v_lshl_add_u32 v12, v5, 2, v12")
    e("s_mul_i32 s30, s30, 10240"); e("s_lshl_b32 s31, s39, 7"); e("s_add_u32 s30, s30, s31"); e(f"s_add_u32 s30, s30, {U_B}"); e("s_add_u32 s31, s30, 2560")
    for j_ in range(10): k.vmop(f"buffer_load_dword v{64+j_}, v12, s[12:15], s{30+j_//5} offen offset:{512*(j_%5)}", "up")
    e("v_bfe_u32 v6, v1, 4, 1"); e("v_lshlrev_b32 v46, 9, v6"); e("v_and_b32 v5, 15, v1"); e("v_lshl_add_u32 v46, v5, 3, v46")
    e("s_lshl_b32 s30, s39, 12"); e("v_add_u32 v46, s30, v46")

def atouch_pre(k, xin):
    e = k.e
    e("s_mul_i32 s51, s16, 163840"); e("s_lshl_b32 s52, s17, 2"); e("s_add_u32 s52, s52, s39"); e("s_mul_i32 s52, s52, 2560"); e("s_add_u32 s51, s51, s52"); e(f"s_add_u32 s51, s51, {xin}")
    e("v_min_u32 v21, 39, v1"); e("v_lshlrev_b32 v21, 6, v21")

G_ACC, G_BF, G_AR, G_DA = 64, 128, 160, 5
def gemm32_pre(k, xin, stin):
    e = k.e
    e("v_and_b32 v10, 31, v1"); e("v_lshrrev_b32 v4, 5, v1"); e("v_and_b32 v5, 15, v1")
    e("s_lshl_b32 s19, s16, 2"); e("s_add_u32 s19, s19, s18")
    e("v_bfe_u32 v7, v1, 4, 1"); e("v_mul_u32_u24 v8, 20480, v7"); e("v_lshl_add_u32 v8, v4, 8, v8"); e("v_lshl_add_u32 v8, v5, 4, v8")
    e("v_lshlrev_b32 v11, 10, v7"); e("v_lshl_add_u32 v11, v4, 9, v11"); e("v_lshl_add_u32 v11, v5, 3, v11")
    e("s_lshl_b32 s30, s19, 11"); e(f"s_add_u32 s30, s30, {stin}")
    e("s_mul_i32 s24, s19, 40960"); e(f"s_add_u32 s24, s24, {xin}")
    e("v_add_u32 v41, 65536, v3"); e("v_add_u32 v42, 131072, v3")
    e("v_subrev_u32 v58, 1, v4"); e("v_not_b32 v59, v58")
def gemm32_loads(k, R):
    e = k.e
    def ldA(ks):
        if ks % 4 == 0 and ks > 0: e("s_add_u32 s24, s24, 4096")
        for u in range(2):
            k.vmop(f"buffer_load_dwordx4 {vr(G_AR+8*(ks%G_DA)+4*u,4)}, v8, {R}, s24 offen offset:{(ks%4)*1024+512*u} {SC}", f"a{ks}")
    ldA(0)
    for q in range(4): k.vmop(f"buffer_load_dwordx2 {vr(16+2*q,2)}, v11, {R}, s30 offen offset:{128*q} {SC}", "st")
    for ks in range(1, G_DA-1): ldA(ks)
    return ldA
def gemm32_stats(k):
    e = k.e
    k.waitvm("st")
    e("v_add_f32 v16, v16, v18"); e("v_add_f32 v17, v17, v19"); e("v_add_f32 v20, v20, v22"); e("v_add_f32 v21, v21, v23")
    e("v_add_f32 v16, v16, v20"); e("v_add_f32 v17, v17, v21")
    k.allred32("v_add_f32", 16, 18); k.allred32("v_add_f32", 17, 18)
    stats_finish(k, 16, 17, 46, 47, 18)
    split3(k, 46, 48, 18, 'm', 58)
TN = 4
def gemm32(k, vmode, fl, ldA, bars, st0, late=None):
    e = k.e; ACC, BF, AR, DA = G_ACC, G_BF, G_AR, G_DA
    acc = lambda jf: vr(ACC+16*jf, 16)
    ops = [(ks, f//4, f%4) for ks in range(20-TN) for f in range(8)] + [(ks, u, jf) for jf in range(4) for ks in range(20-TN, 20) for u in range(2)]
    def rd(i):
        ks, u, jf = ops[i]; off = ks*8192 + 1024*(4*u+jf); hi = off >> 16
        k.dsop(f"ds_read_b128 {vr(BF+4*(i%8),4)}, v{(3,41,42)[hi]} offset:{off & 0xffff}", f"b{i}")
    def mm(i):
        ks, u, jf = ops[i]
        if i % 2 == 0: k.waitlg(f"b{i+1}")
        a = vr(AR+8*(ks%DA)+4*u, 4); b = vr(BF+4*(i%8), 4); c = acc(jf) if (ks or u) else "0"
        if vmode: e(f"v_mfma_f32_32x32x16_bf16 {acc(jf)}, {a}, {b}, {c}")
        else:     e(f"v_mfma_f32_32x32x16_bf16 {acc(jf)}, {b}, {a}, {c}")
        if i + 8 < 160: rd(i + 8)
    e("s_barrier")
    for i in range(8): rd(i)
    for ks in range(20-TN):
        k.waitvm(f"a{ks}")
        if ks == 0: k.stamp(st0+1)
        if ks in bars: e("s_barrier")
        if late and ks == late[0]: k.fill(fl, 1000); fl += late[1]
        for f in range(8):
            mm(8*ks + f)
            if f == 0 and ks + DA - 1 < 20: ldA(ks + DA - 1)
            if ks >= 1: k.fill(fl, 2)
    k.fill(fl, 1000)
    for jf in range(4):
        if vmode: e(f"v_mfma_f32_32x32x8_bf16 {acc(jf)}, v[48:49], {vr(50+2*jf,2)}, {acc(jf)}")
        else:     e(f"v_mfma_f32_32x32x8_bf16 {acc(jf)}, {vr(50+2*jf,2)}, v[48:49], {acc(jf)}")
    def tail(epi, tbars=(), end=None):
        pend = []
        for jf in range(4):
            if jf in tbars: e("s_barrier")
            for n in range(2*TN):
                i = 8*(20-TN) + 2*TN*jf + n
                if n % 2 == 0: k.waitvm(f"a{ops[i][0]}")
                mm(i)
                if n >= 2: k.fill(pend, ENV('TFILL', '5'))
            k.fill(pend, 1000)
            if jf == 3:
                k.stamp(st0+2)
                if end: end()
            pend = k.capture(lambda: epi(jf))
        k.fill(pend, 1000)
    return tail

TB, TS = 88448, 296
def toff(G): return (0, 64, 128, 168, 208, 248)[G//5] + 8*(G%5)

def qkvb_c(k, xin, stin, st0):
    e = k.e; nm = k.name
    ACC, BF = G_ACC, G_BF
    ids_mt(k); gemm32_pre(k, xin, stin)
    e("v_lshrrev_b32 v6, 4, v1")
    MC, MP, MP1 = 200, 204, 208
    NEG = fbits(-1e30)
    e("v_lshlrev_b32 v17, 2, v6"); e("v_sub_u32 v17, v5, v17"); e(f"v_mov_b32 v19, {NEG}")
    for r in range(4):
        e(f"v_subrev_u32 v18, {r}, v17"); e("v_and_b32 v16, 0x80000001, v18")
        e("v_cmp_eq_u32 vcc, 0, v16"); e(f"v_cndmask_b32 v{MC+r}, v19, 0, vcc")
        e("v_cmp_eq_u32 vcc, 0x80000000, v16"); e(f"v_cndmask_b32 v{MP+r}, v19, 0, vcc")
    e("s_cmp_eq_u32 s19, 0"); e(f"s_cselect_b32 s34, {NEG}, 0")
    for r in range(4): e(f"v_add_f32 v{MP1+r}, s34, v{MP+r}")
    e(f"s_mul_i32 s35, s18, {32*TS}"); e(f"s_add_u32 s35, s35, {TB}")
    e(f"v_mul_u32_u24 v16, {TS}, v10"); e("v_add_u32 v16, s35, v16"); e(f"v_add_u32 v16, {16*TS}, v16")
    e("v_lshl_add_u32 v212, v4, 3, v16"); e("v_lshl_add_u32 v213, v4, 5, v16"); e("v_mov_b32 v219, v16")
    e("v_lshl_add_u32 v215, v4, 6, v16")
    e(f"v_mul_u32_u24 v16, {TS}, v5"); e("v_add_u32 v16, s35, v16"); e("v_lshl_add_u32 v216, v6, 4, v16")
    e("v_lshrrev_b32 v17, 2, v1"); e(f"v_mul_u32_u24 v16, {TS}, v17"); e("v_add_u32 v16, s35, v16"); e("v_and_b32 v17, 3, v1")
    e("v_lshl_add_u32 v217, v17, 3, v16")
    e("v_mul_u32_u24 v18, 40, v17"); e("v_add_u32 v18, 240, v18"); e("v_cmp_gt_u32 vcc, 2, v17"); e("v_mov_b32 v19, 288"); e("v_cndmask_b32 v18, v19, v18, vcc"); e("v_add_u32 v218, v16, v18")
    e("v_lshlrev_b32 v43, 9, v7"); e("v_lshl_add_u32 v43, v5, 3, v43")
    e("v_mov_b32 v220, 0"); e("v_mov_b32 v221, 0"); e("v_mov_b32 v222, 0x3f803f80"); e("v_mov_b32 v223, 0x3f803f80")
    e("s_mul_i32 s25, s19, 40960"); e(f"s_add_u32 s25, s25, {OBT}")
    e("s_lshl_b32 s51, s17, 10"); e("s_add_u32 s51, s51, s25"); e("s_add_u32 s52, s51, 20480")
    e("s_lshr_b32 s53, s17, 2"); e("s_add_u32 s53, s53, 16"); e("s_lshl_b32 s53, s53, 10"); e("s_add_u32 s53, s53, s25")
    e("s_and_b32 s54, s17, 1"); e("s_lshl_b32 s54, s54, 9"); e("s_add_u32 s53, s53, s54")
    e("s_bfe_u32 s54, s17, 0x10001"); e("s_lshl_b32 s54, s54, 3"); e("s_add_u32 s53, s53, s54"); e("s_add_u32 s54, s53, 20480")
    def c2():
        e("s_lshl_b32 s48, s16, 9"); e(f"s_add_u32 s48, s48, {C2}")
        e(f"v_lshlrev_b32 v{PV_+1}, 8, v1"); e(f"v_lshlrev_b32 v{PV_+2}, 3, v1"); e(f"v_sub_u32 v{PV_+2}, 16, v{PV_+2}")
        e("s_cmp_eq_u32 s16, 0"); e("s_cselect_b64 s[56:57], 1, 3")
    e("s_cmp_eq_u32 s18, 1"); e(f"s_cbranch_scc0 {nm}_ad"); e("v_lshlrev_b32 v16, 8, v1"); e("s_mov_b32 s49, 0")
    k.label(f"{nm}_ap")
    e(f"buffer_load_dword v17, v16, s[8:11], 0 offen offset:{C1} {SC}"); e("s_add_u32 s49, s49, 1"); e("s_waitcnt vmcnt(0)")
    e("v_cmp_gt_u32 vcc, 16, v17"); e("s_cmp_ge_u32 s49, 0x20000"); e(f"s_cbranch_scc1 {nm}_ad"); e(f"s_cbranch_vccnz {nm}_ap")
    k.label(f"{nm}_ad")
    wait_go(k, "p3", 1, c2)
    k.stamp(st0)
    ldA = gemm32_loads(k, RS_(xin))
    fl = k.capture(lambda: (gemm32_stats(k), e(f"v_mul_f32 v45, {fbits(CSCALE)}, v47")))
    def uops():
        for jf in range(4): k.dsop(f"ds_read_b64 {vr(50+2*jf,2)}, v43 offset:{UO+4096*jf}", "uo")
    tail = gemm32(k, False, fl, ldA, {6}, st0, (8, k.capture(uops)))
    def tab(jf):
        if jf == 0:
            for q in range(3): k.dsop(f"ds_write_b64 v215, v[220:221] offset:{40+8*q}")
            k.dsop("ds_write_b64 v219, v[222:223] offset:288")
        for G in range(8*jf, min(8*jf+8, 30), 2):
            a = ACC + 2*G
            for r in range(4): e(f"v_mul_f32 v{a+r}, v{a+r}, v{45 if G < 10 else 47}")
            for r in range(2): e(f"v_cvt_pk_bf16_f32 v{a+r}, v{a+2*r}, v{a+2*r+1}")
            k.dsop(f"ds_write_b64 v{ {8: 212, 32: 213}[toff(G+1) - toff(G)] }, {vr(a,2)} offset:{toff(G)}")
    def words():
        e("s_cmp_eq_u32 s18, 0"); e(f"s_cbranch_scc0 {nm}_ni"); lw_init(k); k.label(f"{nm}_ni")
    tail(tab, (0, 2), words)
    e("s_waitcnt lgkmcnt(0)"); e("s_barrier")
    KO = lambda b, h: 160 + 8*b + 4*h
    QO = lambda b, h: 184 + 8*(b-1) + 4*h
    VO = lambda F, b: 20 + 8*FEAF.index(F) + 2*b if False else 224 + 6*FEAF.index(F) + 2*b - (0)
    VO = lambda F, b: (128, 136, 144)[FEAF.index(F)] + 2*b
    for b in (1, 2):
        for h in range(2):
            for x in range(2): e(f"ds_read_b64 {vr(QO(b,h)+2*x,2)}, v216 offset:{16*b*TS+64*h+8*x}")
    for b in range(3):
        for h in range(2):
            for x in range(2): e(f"ds_read_b64 {vr(KO(b,h)+2*x,2)}, v216 offset:{16*b*TS+128+40*h+8*x}")
    e("s_waitcnt lgkmcnt(0)")
    for b in range(3):
        for h in range(2): e(f"ds_read_b64_tr_b16 {vr(VO(4+h,b),2)}, v217 offset:{16*b*TS+208+40*h}")
        e(f"ds_read_b64_tr_b16 {vr(VO(7,b),2)}, v218 offset:{16*b*TS}")
    units = [(b, h) for b in (1, 2) for h in range(2)]
    SU = lambda i: 64 + 8*i
    TU = lambda i: ACC + 32 + 4*i
    PU = lambda i: ACC + 48 + 4*i
    OU = lambda i: 64 + 8*i
    for i, (b, h) in enumerate(units):
        e(f"v_mfma_f32_16x16x32_bf16 {vr(SU(i),4)}, {vr(KO(b-1,h),4)}, {vr(QO(b,h),4)}, {vr(MP1 if b == 1 else MP,4)}")
        e(f"v_mfma_f32_16x16x32_bf16 {vr(SU(i)+4,4)}, {vr(KO(b,h),4)}, {vr(QO(b,h),4)}, {vr(MC,4)}")
    e("s_waitcnt lgkmcnt(0)"); e("s_barrier")
    def allred(op):
        for sw in ("v_permlane16_swap_b32", "v_permlane32_swap_b32"):
            for i in range(4): e(f"v_mov_b32 v{TU(i)+1}, v{TU(i)}")
            for i in range(4): e(f"{sw} v{TU(i)}, v{TU(i)+1}")
            for i in range(4): e(f"{op} v{TU(i)}, v{TU(i)}, v{TU(i)+1}")
    for i in range(4):
        s = SU(i)
        e(f"v_max3_f32 v{TU(i)}, v{s}, v{s+1}, v{s+2}"); e(f"v_max3_f32 v{TU(i)}, v{s+3}, v{s+4}, v{TU(i)}")
        e(f"v_max3_f32 v{TU(i)}, v{s+5}, v{s+6}, v{TU(i)}"); e(f"v_max_f32 v{TU(i)}, v{s+7}, v{TU(i)}")
    allred("v_max_f32")
    for i in range(4):
        for r in range(8): e(f"v_sub_f32 v{SU(i)+r}, v{SU(i)+r}, v{TU(i)}")
    for i in range(4):
        for r in range(8): e(f"v_exp_f32 v{SU(i)+r}, v{SU(i)+r}")
    for i in range(4):
        for r in range(4): e(f"v_cvt_pk_bf16_f32 v{PU(i)+r}, v{SU(i)+2*r}, v{SU(i)+2*r+1}")
    for i, (b, h) in enumerate(units):
        e(f"v_mfma_f32_16x16x32_bf16 {vr(OU(i)+4,4)}, {vr(VO(7,b-1),4)}, {vr(PU(i),4)}, 0")
    for i, (b, h) in enumerate(units):
        e(f"v_mfma_f32_16x16x32_bf16 {vr(OU(i),4)}, {vr(VO(4+h,b-1),4)}, {vr(PU(i),4)}, 0")
    for i in range(4): e(f"v_mov_b32 v{TU(i)}, v{OU(i)+4}"); e(f"v_mov_b32 v{TU(i)+1}, v{OU(i)+4}")
    for i in range(4): e(f"v_permlane32_swap_b32 v{TU(i)}, v{TU(i)+1}")
    for i in range(4): e(f"v_rcp_f32 v{TU(i)+1}, v{TU(i)+1}")
    e("v_cmp_eq_u32 vcc, 0, v6")
    for bi in range(2):
        o0, o1 = OU(2*bi), OU(2*bi+1); d = 40 + 8*bi; t0, t1 = TU(2*bi)+1, TU(2*bi+1)+1
        for r in range(4): e(f"v_mul_f32 v{o0+r}, v{o0+r}, v{t0}"); e(f"v_mul_f32 v{o1+r}, v{o1+r}, v{t1}")
        e(f"v_cvt_pk_bf16_f32 v{d}, v{o0}, v{o0+1}"); e(f"v_cvt_pk_bf16_f32 v{d+1}, v{o0+2}, v{o0+3}")
        e(f"v_cvt_pk_bf16_f32 v{d+2}, v{o1}, v{o1+1}"); e(f"v_cvt_pk_bf16_f32 v{d+3}, v{o1+2}, v{o1+3}")
        e(f"buffer_store_dwordx4 {vr(d,4)}, v3, s[12:15], s{51+bi} offen {SC}")
        e(f"v_cndmask_b32 v{t0}, v{t1}, v{t0}, vcc")
        for r in range(4): e(f"v_cndmask_b32 v{o0+4+r}, v{o1+4+r}, v{o0+4+r}, vcc")
        for r in range(4): e(f"v_mul_f32 v{o0+4+r}, v{o0+4+r}, v{t0}")
        e(f"v_cvt_pk_bf16_f32 v{d+4}, v{o0+4}, v{o0+5}"); e(f"v_cvt_pk_bf16_f32 v{d+5}, v{o0+6}, v{o0+7}")
    e("s_mov_b32 exec_hi, 0")
    for bi in range(2): e(f"buffer_store_dwordx2 {vr(44+8*bi,2)}, v3, s[12:15], s{53+bi} offen {SC}")

def qkvb_l(k, xin, stin, w):
    e = k.e; nm = k.name
    ids_mt(k)
    e("v_and_b32 v5, 15, v1"); e("v_lshrrev_b32 v6, 4, v1")
    e("v_lshlrev_b32 v11, 3, v5"); e("v_lshl_add_u32 v11, v6, 8, v11")
    e("v_cmp_eq_u32 vcc, 0, v6"); e("s_lshl_b32 s22, s16, 3"); e("s_max_u32 s22, s22, 1"); e("v_cndmask_b32 v4, 0, -1, vcc")
    e("s_sub_u32 s22, s22, 1")
    e("s_mul_i32 s24, s22, 20480"); e(f"s_add_u32 s24, s24, {xin}"); e("s_add_u32 s24, s24, s45")
    e("s_lshl_b32 s27, s22, 10"); e(f"s_add_u32 s27, s27, {stin}")
    HP = 49152
    e("v_lshrrev_b32 v12, 1, v6"); e("v_lshlrev_b32 v40, 12, v12"); e("v_and_b32 v12, 1, v6"); e("v_lshl_add_u32 v40, v12, 9, v40"); e("v_lshl_add_u32 v40, v5, 4, v40")
    e("s_lshl_b32 s32, s39, 13"); e("v_add_u32 v40, s32, v40"); e("v_add_u32 v41, 65536, v40"); e("v_add_u32 v42, 131072, v40")
    e("s_mul_i32 s33, s39, 6144"); e(f"s_add_u32 s33, s33, {HP}"); e("v_add_u32 v43, s33, v3")
    e("s_min_u32 s40, s39, 2"); e("s_lshl_b32 s41, s40, 11"); e(f"s_add_u32 s41, s41, {HP}"); e("v_add_u32 v44, s41, v3")
    e("s_lshl_b32 s41, s40, 12"); e("v_lshlrev_b32 v45, 3, v5"); e("v_add_u32 v45, s41, v45")
    e(f"v_mul_u32_u24 v12, {TS}, v5"); e(f"v_add_u32 v12, {TB}, v12"); e("s_lshl_b32 s41, s40, 3"); e("s_sub_u32 s41, s41, 2")
    for x in range(2):
        e(f"v_add_u32 v13, s41, v6")
        if x: e("v_add_u32 v13, 4, v13")
        e("v_add_u32 v14, 16, v13")
        e("v_cmp_gt_u32 vcc, 20, v13"); e("v_cndmask_b32 v14, 0, v14, vcc"); e(f"v_lshl_add_u32 v{50+x}, v14, 3, v12")
    e("v_mov_b32 v47, v12"); e("v_mov_b32 v56, 0x3f803f80"); e("v_mov_b32 v57, 0x3f803f80")
    atouch_pre(k, xin)
    e(f"s_setprio {ENV('P3PRIO', '0')}")
    e("s_barrier")
    if ENV('ATOUCH', '0'): k.vmop("buffer_load_dword v20, v21, s[12:15], s51 offen")
    w.one(39)
    e(f"ds_write_b64 v46, v[28:29] offset:{UO}")
    for q_ in range(2): k.vmop(f"buffer_load_dwordx2 {vr(24+2*q_,2)}, v11, s[12:15], s27 offen offset:{128*q_} {SC}", "st")
    for i in range(5):
        k.vmop(f"buffer_load_dwordx4 {vr(128+4*i,4)}, v3, s[12:15], s24 offen {SC}", f"h{i}")
        if i < 4: e("s_add_u32 s24, s24, 4096")
    k.waitvm("st")
    stats16(k, 24, 48, 52, 4)
    e("s_waitcnt lgkmcnt(0)"); e("s_barrier")
    def rd(n):
        i, j = n // 6, 2 + n % 6
        k.dsop(f"ds_read_b128 {vr(96+4*(n%6),4)}, v{40+i//2} offset:{(i%2)*32768+1024*(j//2)+256*(j%2)}", f"r{n}")
    for n in range(6): rd(n)
    for x in range(2): k.dsop(f"ds_read_b64 {vr(20+2*x,2)}, v45 offset:{UO+4096+512*x}", "u")
    for n in range(30):
        i = n // 6
        if n % 6 == 0: k.waitvm(f"h{i}")
        k.waitlg(f"r{n}")
        c = vr(148+4*(n%6), 4)
        e(f"v_mfma_f32_16x16x32_bf16 {c}, {vr(96+4*(n%6),4)}, {vr(128+4*i,4)}, {c if i else 0}")
        if n + 6 < 30: rd(n + 6)
    e("s_barrier")
    for n in range(6): e(f"ds_write_b128 v43, {vr(148+4*n,4)} offset:{1024*n}")
    e("s_waitcnt lgkmcnt(0)"); e("s_barrier")
    for p_ in range(4):
        for x in range(2): e(f"ds_read_b128 {vr(96+8*p_+4*x,4)}, v44 offset:{6144*p_+1024*x}")
    e("s_waitcnt lgkmcnt(0)")
    for r in range(8):
        e(f"v_add_f32 v{96+r}, v{96+r}, v{104+r}"); e(f"v_add_f32 v{112+r}, v{112+r}, v{120+r}"); e(f"v_add_f32 v{80+r}, v{96+r}, v{112+r}")
    for x in range(2): e(f"v_mfma_f32_16x16x16_bf16 {vr(80+4*x,4)}, {vr(20+2*x,2)}, v[52:53], {vr(80+4*x,4)}")
    for x in range(2): scale_pack(k, 80+4*x, lambda r: 48, 88+2*x)
    for x in range(2): e(f"ds_write_b64 v{50+x}, {vr(88+2*x,2)}")
    e("ds_write_b64 v47, v[56:57] offset:288")
    e(f"s_setprio {ENV('LPRIO', '2')}")
    e("s_waitcnt lgkmcnt(0)"); e("s_barrier")
    k.vm = []; k.lg = []

def one(k, target):
    k.e(f"v_mov_b32 v{PV_+1}, 0"); k.e(f"v_mov_b32 v{PV_+2}, {target}"); k.e("s_mov_b64 s[56:57], 1")

def kvpos(k):
    k.e("s_and_b32 s36, s19, 31"); k.e("s_lshl_b32 s36, s36, 1"); k.e("s_lshr_b32 s34, s19, 5"); k.e("s_add_u32 s36, s36, s34")
    k.e("s_add_u32 s36, s36, 44"); k.e("s_and_b32 s36, s36, 63")
def addr_v(k, img):
    e = k.e
    e("s_sub_u32 s35, s17, 10"); e("s_lshl_b32 s35, s35, 7")
    kvpos(k); e("s_mul_i32 s36, s36, 2560"); e(f"s_add_u32 s33, s36, {img+KVIMG+1280}")
    e("v_mul_u32_u24 v20, 320, v4")
    for jf in range(4):
        e(f"v_add_u32 v16, s35, v10")
        if jf: e(f"v_add_u32 v16, {32*jf}, v16")
        e("v_mul_u32_u24 v17, 52429, v16"); e("v_lshrrev_b32 v17, 20, v17")
        e("v_mul_u32_u24 v18, 20, v17"); e("v_sub_u32 v18, v16, v18")
        e("v_mul_u32_u24 v17, 163840, v17"); e("v_lshl_add_u32 v17, v18, 4, v17")
        e(f"v_add_u32 v{24+jf}, v17, v20")
def addr_qk(k, img, xm=52):
    e = k.e; k.xm = xm
    e("s_cmp_ge_u32 s17, 5")
    e(f"s_cselect_b32 s33, {QI}, 0"); e(f"s_cselect_b32 s59, 1.0, {fbits(CSCALE)}"); e("s_cselect_b32 s35, 5, 0"); e("s_cselect_b32 s37, 1, 0")
    e(f"s_add_u32 s33, s33, {img+QIMG}")
    e("s_sub_u32 s35, s17, s35")
    kvpos(k); e("s_cmp_eq_u32 s37, 0"); e("s_cselect_b32 s36, s19, s36")
    e("s_mul_i32 s36, s36, 1280"); e("s_lshl_b32 s36, s36, s37"); e("s_add_u32 s33, s33, s36")
    e("s_lshl_b32 s34, 81920, s37")
    e("v_lshlrev_b32 v16, 4, v10"); e("v_lshlrev_b32 v17, 3, v10")
    e("v_lshl_add_u32 v18, v4, 9, v16")
    e("s_sub_u32 s36, s34, 512"); e("v_and_b32 v19, s36, v59"); e("v_add_u32 v19, v19, v16")
    e(f"s_mov_b32 s{xm}, -1"); e(f"s_mov_b32 s{xm+1}, 0"); e(f"s_mov_b32 s{xm+2}, 0"); e(f"s_mov_b32 s{xm+3}, -1")
def epi_qk1(k, v, jf):
    e = k.e; A = G_ACC + 16*jf
    QSC = os.environ.get("QSC", "sc1")
    for r in range(16): e(f"v_mul_f32 v{A+r}, v{A+r}, v47")
    for r in range(8): e(f"v_cvt_pk_bf16_f32 v{A+r}, v{A+2*r}, v{A+2*r+1}")
    for a2 in range(2):
        x = A + 4*a2
        e(f"v_permlane32_swap_b32 v{x}, v{x+2}"); e(f"v_permlane32_swap_b32 v{x+1}, v{x+3}")
    for a2 in range(2):
        x = A + 4*a2
        G = [32*v+8*jf+4*a2, 32*v+8*jf+4*a2+2]
        def main(g):
            h = g // 5; r = g % 5
            return h, (r // 2 if h % 2 == 0 else (r - 1) // 2)
        st = [g % 10 == 4 for g in G]
        def hoff(dst, h):
            if not h: return 33
            e(f"s_mul_i32 s{dst}, s34, {h}"); e(f"s_add_u32 s{dst}, s{dst}, s33"); return dst
        if not any(st):
            (h0, p0), (h1, p1) = main(G[0]), main(G[1])
            assert (h0 == h1 and (p0, p1) == (0, 1)) or (h1 == h0 + 1 and (p0, p1) == (1, 0))
            e(f"buffer_store_dwordx4 {vr(x,4)}, v{18 if h0 == h1 else 19}, {k.srdo}, s{hoff(36, h0)} offen offset:{512*p0} {QSC}")
        else:
            m = st.index(False); q = 1 - m
            h, p = main(G[m]); s0 = hoff(36, h); s1 = hoff(37, G[q] // 5); e(f"s_add_u32 s38, s{s1}, s34")
            e(f"s_mov_b64 exec, s[{k.xm+2*m}:{k.xm+1+2*m}]")
            e(f"buffer_store_dwordx4 {vr(x,4)}, v16, {k.srdo}, s{s0} offen offset:{512*p} {QSC}")
            e(f"s_mov_b64 exec, s[{k.xm+2*q}:{k.xm+1+2*q}]")
            e(f"buffer_store_dwordx2 {vr(x,2)}, v17, {k.srdo}, s{s1} offen offset:1024 {QSC}")
            e(f"buffer_store_dwordx2 {vr(x+2,2)}, v17, {k.srdo}, s38 offen offset:1024 {QSC}")
            e("s_mov_b64 exec, -1")
def epi_v1(k, jf, RS):
    e = k.e; A = G_ACC + 16*jf
    for r in range(16): e(f"v_mul_f32 v{A+r}, v{A+r}, v{RS+r}")
    for r in range(8): e(f"v_cvt_pk_bf16_f32 v{A+r}, v{A+2*r}, v{A+2*r+1}")
    for u in range(2): e(f"buffer_store_dwordx4 {vr(A+4*u,4)}, v{24+jf}, {k.srdo}, s33 offen offset:{640*u} {os.environ.get('VSC', 'sc1')}")
def dispatch5(k, body):
    e = k.e; nm = k.name + k.ptag
    for v in range(1, 5):
        e(f"s_cmp_eq_u32 s35, {v}"); e(f"s_cbranch_scc1 {nm}_e{v}")
    vm, lg = list(k.vm), list(k.lg)
    for v in range(5):
        if v: k.label(f"{nm}_e{v}")
        k.vm, k.lg = list(vm), list(lg)
        body(v); e(f"s_branch {nm}_fin5")
def epi_qk(k, ACC, BF):
    dispatch5(k, lambda v: (k.e("s_nop 7"), [epi_qk1(k, v, jf) for jf in range(4)]))
def epi_v(k, ACC, BF, RS):
    for jf in range(4): epi_v1(k, jf, RS)

def qkva_c(k, xin, stin, img, cnt, wbar, st0):
    k.ptag = '_p5'; k.srdo = 's[12:15]'
    e = k.e; nm = k.name + k.ptag
    DA = 5
    ACC, BF, AR, RS = 64, 128, 160, 200
    gemm32_pre(k, xin, stin)
    e("v_lshlrev_b32 v12, 4, v10")
    e("s_lshl_b32 s31, s17, 11"); e(f"s_add_u32 s31, s31, {U_A}")
    for jf in range(4): k.vmop(f"buffer_load_dwordx4 {vr(24+4*jf,4)}, v12, s[12:15], s31 offen offset:{512*jf}", "u")
    def c4(): one(k, 16); e("s_lshl_b32 s48, s16, 8"); e(f"s_add_u32 s48, s48, {cnt}")
    wait_go(k, "p5", 1, c4)
    k.stamp(st0)
    ldA = gemm32_loads(k, RS_(xin))
    def prolog(vmode):
        gemm32_stats(k)
        for jf in range(4): usum(k, 24+4*jf, 50+2*jf, 18)
        if vmode:
            e("v_lshlrev_b32 v16, 4, v4")
            for r in range(16):
                e(f"v_add_u32 v17, {(8*(r//4) + r%4)*4}, v16")
                k.dsop(f"ds_bpermute_b32 v{RS+r}, v17, v47", "rs")
            addr_v(k, img)
        else:
            addr_qk(k, img); e("v_mul_f32 v47, s59, v47")
    e("s_cmp_ge_u32 s17, 10"); e(f"s_cbranch_scc1 {nm}_qv")
    vm_save = list(k.vm)
    l5a = lambda: e("s_barrier")
    tail = gemm32(k, False, k.capture(lambda: prolog(False)), ldA, {w_ - 1 for w_ in wbar}, st0)
    dispatch5(k, lambda v: tail(lambda jf: epi_qk1(k, v, jf), (), l5a))
    k.label(f"{nm}_qv"); k.vm = vm_save; k.lg = []
    tail = gemm32(k, True, k.capture(lambda: prolog(True)), ldA, {w_ - 1 for w_ in wbar}, st0)
    tail(lambda jf: epi_v1(k, jf, RS), (), l5a)
    k.label(f"{nm}_fin5")

def ph_front(k):
    k.ptag = "_f"; k.srdo = "s[12:15]"
    e = k.e; nm = k.name + k.ptag; kn = k.name
    R, DEP, SCRB, UT = 4, 2, 131072, 65536
    need = lambda ks: ks // 2
    slot = lambda st: (st % R) * 32768
    e("s_cmp_ge_u32 s2, 256"); e(f"s_cbranch_scc1 {kn}_end"); k.stamp(0); k.rstamp(1)
    e("s_load_dwordx4 s[60:63], s[0:1], 0"); e("s_load_dwordx2 s[6:7], s[0:1], 64")
    e("s_load_dwordx2 s[4:5], s[0:1], 56")
    e("s_and_b32 s20, s2, 7"); e("s_lshr_b32 s21, s2, 3")
    e("v_lshrrev_b32 v2, 6, v0"); e("v_and_b32 v1, 63, v0")
    e("v_readfirstlane_b32 s18, v2")
    e("s_and_b32 s39, s18, 3"); e("s_lshl_b32 s45, s39, 10")
    ids_mt(k)
    e("v_lshlrev_b32 v3, 4, v1"); e(f"v_lshlrev_b32 v9, {ENV('BST', '6')}, v1")
    e("s_lshl_b32 s22, s2, 2"); e("s_add_u32 s22, s22, s39"); e("s_mul_i32 s23, s22, 2400")
    if ENV('XLOC', '1'): e("s_lshl_b32 s22, s20, 5"); e("s_add_u32 s22, s22, s21"); e("s_lshl_b32 s22, s22, 2"); e("s_add_u32 s22, s22, s39")
    e("s_mul_i32 s22, s22, 2560")
    def kwait():
        e("s_waitcnt lgkmcnt(0)")
        k.stamp(2)
        k.srd(8, 60, S*D*2); k.srd(28, 62, D*3*D*2); k.srd(12, 6, WS_END)
    def burst():
        if ENV('BURST', '1'):
            e("s_mov_b32 exec_hi, 0xff" if ENV('BST', '6') == 6 else "s_mov_b64 exec, 0xfffff")
            e(f"buffer_load_dword v240, v9, s[8:11], s22 offen {os.environ.get('XNT', '')}"); e(f"buffer_load_dword v241, v9, s[28:31], s23 offen {os.environ.get('WNT', '')}")
            e("s_mov_b64 exec, -1")
    def codepf(tg):
        if ENV('CPF', '1'):
            e("s_getpc_b64 s[34:35]"); k.label(f"{nm}_pc{tg}")
            e(f"s_sub_u32 s34, s34, {nm}_pc{tg} - {kn}"); e("s_subb_u32 s35, s35, 0")
            e("v_lshlrev_b32 v242, 4, v0"); e("s_lshl_b32 s36, s21, 12"); e("v_add_u32 v242, s36, v242")
            e(f"v_and_b32 v242, 0xffffffc0, v242"); e(f"v_min_u32 v242, code_end - {kn} - 4, v242")
            e("global_load_dword v243, v242, s[34:35]")
    e("s_cmp_ge_u32 s17, 15"); e(f"s_cbranch_scc1 {nm}_ub")
    e("v_and_b32 v10, 31, v1"); e("v_lshrrev_b32 v4, 5, v1"); e("v_and_b32 v5, 15, v1"); e("v_bfe_u32 v7, v1, 4, 1")
    e("v_lshrrev_b32 v13, 2, v5"); e("v_and_b32 v6, 3, v1")
    e("v_lshl_add_u32 v14, v4, 3, v13"); e("v_lshlrev_b32 v14, 8, v14"); e("v_lshl_add_u32 v14, v7, 5, v14"); e("v_lshl_add_u32 v14, v6, 3, v14")
    e("v_add_u32 v14, 16384, v14")
    def a0():
        e("s_lshl_b32 s48, s17, 11"); e(f"s_add_u32 s48, s48, {C0}"); e(f"v_lshlrev_b32 v{PV_+1}, 8, v1"); e("s_mov_b64 s[56:57], 0xff")
    SF = ENV('SF', '10')
    e("s_cmp_ge_u32 s18, 4"); e(f"s_cbranch_scc1 {nm}_ld")
    kwait(); burst(); codepf("c")
    if ENV('TLB', '1'):
        sh = ENV('TLBS', '18')
        e("s_load_dwordx4 s[84:87], s[0:1], 32"); e("s_load_dwordx2 s[88:89], s[0:1], 16")
        e(f"v_lshlrev_b32 v236, {sh}, v0" if sh < 21 else "v_lshlrev_b32 v236, 21, v1")
        e(f"v_min_u32 v236, {STAMPS-4}, v236")
        e("s_cmp_eq_u32 s18, 0" if sh == 21 else "s_cmp_lt_u32 s18, 4"); e(f"s_cbranch_scc0 {nm}_tl")
        e("buffer_load_dword v237, v236, s[12:15], 0 offen")
        e("v_and_b32 v236, 1, v1"); e("v_mul_u32_u24 v238, 819196, v236"); e("v_mul_u32_u24 v236, 2457596, v236"); e("s_mov_b64 exec, 3")
        e("s_waitcnt lgkmcnt(0)")
        e("global_load_dword v237, v236, s[84:85]"); e("global_load_dword v237, v238, s[86:87]"); e("global_load_dword v237, v238, s[88:89]")
        e("s_mov_b64 exec, -1")
        k.label(f"{nm}_tl")
        e("s_waitcnt lgkmcnt(0)")
    ACC, BF, AR, RS = 64, 128, 160, 200
    BA, AA = 216, 224
    e("s_lshl_b32 s19, s16, 2"); e("s_add_u32 s19, s19, s18")
    for jf in range(4):
        e(f"v_xor_b32 v15, {jf}, v13"); e(f"v_lshl_add_u32 v{BA+jf}, v15, 6, v14"); e(f"v_add_u32 v{BA+4+jf}, 65536, v{BA+jf}")
    e("v_lshl_add_u32 v15, v2, 5, v10"); e("v_lshlrev_b32 v15, 7, v15"); e("v_bfe_u32 v12, v10, 1, 3"); e("v_xor_b32 v12, v12, v4")
    for q in range(4):
        e(f"v_xor_b32 v11, {2*q}, v12"); e(f"v_lshl_add_u32 v{AA+q}, v11, 4, v15"); e(f"v_add_u32 v{AA+4+q}, 65536, v{AA+q}")
    e("v_mul_u32_u24 v8, 20480, v7"); e("v_lshl_add_u32 v8, v4, 8, v8"); e("v_lshl_add_u32 v8, v5, 4, v8")
    e("s_mul_i32 s24, s19, 40960"); e(f"s_add_u32 s24, s24, {XI}")
    e("v_subrev_u32 v58, 1, v4"); e("v_not_b32 v59, v58")
    e("s_lshl_b32 s40, s2, 2"); e("s_add_u32 s40, s40, s39"); e("s_mul_i32 s40, s40, 8192"); e(f"s_add_u32 s40, s40, {QIMG}"); e("v_lshlrev_b32 v238, 7, v1")
    e("s_cmp_ge_u32 s17, 10"); e(f"s_cbranch_scc1 {nm}_qv")
    FTN = ENV('FTN', '2'); K1 = 20 - FTN
    def mainloop(vmode):
        tagm = "v" if vmode else "q"
        acc = lambda jf: vr(ACC+16*jf, 16)
        fl = k.capture(lambda: addr_v(k, 0) if vmode else addr_qk(k, 0, 28))
        ops = [(ks, f//4, f%4) for ks in range(K1) for f in range(8)] + [(ks, u, jf) for jf in range(4) for ks in range(K1, 20) for u in range(2)]
        kb = [-1]; na = [0]
        def rdA(ks):
            sl = slot(ks//2)
            for u in range(2): k.dsop(f"ds_read_b128 {vr(AR+8*(ks%4)+4*u,4)}, v{AA+4*(sl>>16)+2*(ks%2)+u} offset:{sl & 0xffff}", f"a{ks}")
        def rd(i):
            ks, u, jf = ops[i]; sl = slot(ks//2)
            while kb[0] < need(ks): e("s_barrier"); kb[0] += 1
            while na[0] <= ks: rdA(na[0]); na[0] += 1
            for t in range(2):
                off = sl + (32*(ks%2) + 16*u + 4*t)*256
                k.dsop(f"ds_read_b64_tr_b16 {vr(BF+4*(i%8)+2*t,2)}, v{BA+4*(sl>>16)+jf} offset:{off & 0xffff}", f"b{i}")
        def mm(i):
            ks, u, jf = ops[i]
            if i % 2 == 0: k.waitlg(f"b{i+1}")
            a = vr(AR+8*(ks%4)+4*u, 4); b = vr(BF+4*(i%8), 4); c = acc(jf) if (ks or u) else "0"
            if vmode: e(f"v_mfma_f32_32x32x16_bf16 {acc(jf)}, {a}, {b}, {c}")
            else:     e(f"v_mfma_f32_32x32x16_bf16 {acc(jf)}, {b}, {a}, {c}")
            if i + 8 < 160: rd(i + 8)
        def xst(ks, tg):
            e(f"s_cmp_eq_u32 s17, {ks % 15}"); e(f"s_cbranch_scc0 {nm}_x{tg}{ks}")
            e(f"s_add_u32 s32, s24, {1024*ks}")
            for u in range(2): e(f"buffer_store_dwordx4 {vr(AR+8*(ks%4)+4*u,4)}, v8, s[12:15], s32 offen offset:{512*u} {SC}")
            k.label(f"{nm}_x{tg}{ks}")
        for i in range(8):
            rd(i)
            if i == 0: k.stamp(3)
        for ks in range(K1):
            for f in range(8):
                mm(8*ks + f)
                if ks >= 4: k.fill(fl, 1)
            xst(ks, tagm)
            if ks in (0, 1, 4, 9, 10, 14): k.stamp(7 + (0, 1, 4, 9, 10, 14).index(ks))
        assert not fl
        e(f"v_lshlrev_b32 v23, 2, v10"); e(f"v_add_u32 v23, {UT}, v23"); e("s_lshl_b32 s32, s18, 8"); e("v_add_u32 v22, s32, v23")
        if vmode: e("v_lshlrev_b32 v21, 4, v4"); e(f"s_add_u32 s32, s32, {UT}"); e("v_add_u32 v21, s32, v21")
        for n in range(2*FTN): mm(8*K1 + n)
        for ks in range(K1, 20): xst(ks, tagm)
        assert kb[0] == 9
        k.stamp(4)
        e("s_barrier")
        k.dsop("ds_read_b32 v48, v22 offset:1024", "u"); k.dsop("ds_read_b32 v49, v22 offset:1152", "u")
        for jf in range(4): k.dsop(f"ds_read_b32 v{28+2*jf}, v23 offset:{256*jf}", "u"); k.dsop(f"ds_read_b32 v{29+2*jf}, v23 offset:{256*jf+128}", "u")
        if vmode:
            for a_ in range(4): k.dsop(f"ds_read_b128 {vr(RS+4*a_,4)}, v21 offset:{2048+32*a_}", "u")
        else: k.dsop("ds_read_b32 v47, v22 offset:2048", "u")
        def corr(jf):
            if vmode: e(f"v_mfma_f32_32x32x8_bf16 {acc(jf)}, v[48:49], {vr(28+2*jf,2)}, {acc(jf)}")
            else:     e(f"v_mfma_f32_32x32x8_bf16 {acc(jf)}, {vr(28+2*jf,2)}, v[48:49], {acc(jf)}")
        for n in range(2): mm(8*K1 + 2*FTN + n)
        k.waitlg("u")
        e("v_and_b32 v48, v48, v58"); e("v_and_b32 v49, v49, v58")
        if not vmode: e("v_mul_f32 v47, s59, v47")
        corr(0)
        k.stamp(5)
        def tail(epi):
            pend = k.capture(lambda: epi(0))
            for jf in range(1, 4):
                for n in range(2 if jf == 1 else 0, 2*FTN):
                    mm(8*K1 + 2*FTN*jf + n)
                    if n >= (4 if jf == 1 else 2): k.fill(pend, ENV('TFILL', '5'))
                corr(jf)
                k.fill(pend, 1000)
                pend = k.capture(lambda: epi(jf))
            k.fill(pend, 1000)
        return tail
    tail = mainloop(False)
    dispatch5(k, lambda v: tail(lambda jf: epi_qk1(k, v, jf)))
    k.label(f"{nm}_qv"); k.lg = []
    tail = mainloop(True)
    tail(lambda jf: epi_v1(k, jf, RS))
    k.label(f"{nm}_fin5")
    k.stamp(6)
    e("s_barrier")
    signal(k, "sf", -1, 8, a0, 0, "s[12:15]")
    k.dump(13)
    e(f"s_branch {kn}_t0")
    k.label(f"{nm}_ld"); k.vm = []; k.lg = []
    e(f"s_setprio {ENV('LPRIO', '2')}")
    e("v_lshrrev_b32 v16, 4, v1"); e("v_and_b32 v17, 3, v2")
    e("v_lshl_add_u32 v18, v17, 2, v16"); e("v_mul_u32_u24 v20, 3840, v18")
    e("v_xor_b32 v18, v13, v16"); e("v_lshl_add_u32 v20, v18, 6, v20"); e("v_lshl_add_u32 v20, v6, 4, v20")
    e("v_lshrrev_b32 v18, 3, v1"); e("v_lshl_add_u32 v19, v17, 5, v18"); e("v_and_b32 v23, 7, v1")
    for i in range(4):
        e(f"v_add_u32 v42, {8*i}, v19"); e("v_bfe_u32 v43, v42, 1, 3"); e("v_xor_b32 v43, v43, v23")
        e("v_mul_u32_u24 v42, 1280, v42"); e(f"v_lshl_add_u32 v{48+i}, v43, 4, v42")
        if i: e(f"v_subrev_u32 v{48+i}, {1024*i}, v{48+i}")
    e("s_lshl_b32 s25, s17, 8"); e("s_mul_i32 s24, s16, 163840"); e("s_lshl_b32 s26, s39, 12")
    def ld1(st, n):
        if n < 4:
            e(f"s_add_u32 m0, s45, {slot(st)+16384+4096*n}"); e(f"s_add_u32 s32, s25, {(64*st+16*n)*3840}")
            k.vmop(f"buffer_load_dwordx4 v20, s[28:31], s32 offen {os.environ.get('WNT2', '')} lds", f"d{st}")
        else:
            e(f"s_add_u32 m0, s26, {slot(st)}"); e(f"s_add_u32 s33, s24, {128*st}")
            k.vmop(f"buffer_load_dwordx4 v{44+n}, s[8:11], s33 offen offset:{1024*(n-4)} {os.environ.get('XNT2', '')} lds", f"d{st}")
    ORD = [0, 4, 1, 5, 2, 6, 3, 7]
    def ld(st):
        for n in ORD: ld1(st, n)
    kwait(); ld(0)
    e("v_xor_b32 v15, v17, v13"); e("v_lshl_add_u32 v40, v15, 6, v14"); e("v_add_u32 v41, 65536, v40")
    e("v_and_b32 v42, 1, v16"); e("v_cmp_eq_u32 vcc, v42, v5"); e("v_mov_b32 v43, 0x3f803f80")
    for r in range(4): e(f"v_cndmask_b32 v{60+r}, 0, v43, vcc")
    k.srd(52, 4, 256)
    e("s_mul_i32 s27, s17, 163840"); e("s_add_u32 s27, s27, s45"); e(f"s_add_u32 s27, s27, {WA_I}")
    if ENV('LD1', '0'): ld(1)
    done = [0]
    def steps_of(kb):
        r = []
        while done[0] < 20 and need(done[0]) <= kb: r.append(done[0]); done[0] += 1
        return r
    def wa_store(q):
        e("s_lshl_b32 s32, s16, 13"); e("s_add_u32 s32, s32, s27")
        if q: e("s_add_u32 s32, s32, 131072")
        e("s_add_u32 s33, s32, 4096")
        for u in range(2): k.vmop(f"buffer_store_dwordx4 {vr(112+8*q+4*u,4)}, v3, s[12:15], s{32+u} offen {SC}")
    for kb in range(10):
        if kb == 5: k.stamp(5)
        k.waitvm(f"d{kb}")
        if kb == 5: k.stamp(6)
        e("s_barrier")
        if kb in (4, 5): k.stamp(2 if kb == 4 else 7)
        if kb == 0 and not ENV('LD1', '0'): ld(1)
        sl = slot(kb); todo = list(ORD) if kb + DEP < 10 else []
        nxt = lambda: ld1(kb + DEP, todo.pop(0)) if todo else None
        sts = steps_of(kb)
        for n_, ks in enumerate(sts):
            for u in range(2):
                for t in range(2):
                    e(f"ds_read_b64_tr_b16 {vr(136+8*n_+4*u+2*t,2)}, v{40+(sl>>16)} offset:{(sl + (32*(ks%2) + 16*u + 4*t)*256) & 0xffff}")
        nxt(); nxt()
        if kb == 4: k.stamp(3)
        e("s_waitcnt lgkmcnt(0)")
        mf = [(n_, ks, u) for n_, ks in enumerate(sts) for u in range(2)]
        for n_, ks, u in mf:
            e(f"v_mfma_f32_16x16x32_bf16 v[64:67], v[60:63], {vr(136+8*n_+4*u,4)}, {'v[64:67]' if ks or u else 0}")
            nxt()
        nxt(); nxt()
        if kb == 4: k.stamp(4)
        for n_, ks in enumerate(sts):
            e(f"s_cmp_eq_u32 s16, {ks % 16}"); e(f"s_cbranch_scc0 {nm}_w{ks}")
            for r in range(8): e(f"v_mov_b32 v{112+8*(ks//16)+r}, v{136+8*n_+r}")
            k.label(f"{nm}_w{ks}")
        assert not todo
        if kb == 8:
            e("v_and_b32 v24, 15, v1"); e("v_lshlrev_b32 v24, 2, v24"); e("s_mov_b32 s33, 0")
            k.label(f"{nm}_pl")
            e(f"buffer_load_dword v25, v24, s[52:55], 0 offen {SC}"); e("s_add_u32 s33, s33, 1"); e("s_waitcnt vmcnt(0)"); k.vm = []
            e("v_cmp_eq_u32 vcc, 0, v25"); e("s_cmp_ge_u32 s33, 0x20000"); e(f"s_cbranch_scc1 {nm}_px")
            e(f"s_cbranch_vccnz {nm}_pl")
            k.label(f"{nm}_px")
            e("v_lshlrev_b32 v24, 3, v10"); e("s_lshl_b32 s32, s16, 10"); e("s_lshl_b32 s33, s39, 8"); e("s_add_u32 s32, s32, s33"); e(f"s_add_u32 s32, s32, {STI}")
            k.vmop(f"buffer_load_dwordx2 v[44:45], v24, s[12:15], s32 offen {SC}", "rs")
            wa_store(0)
    k.waitvm("rs")
    stats_finish(k, 44, 45, 28, 29, 30)
    e("v_lshlrev_b32 v42, 2, v5"); e("ds_bpermute_b32 v68, v42, v64"); e("ds_bpermute_b32 v69, v42, v65"); e("v_cmp_eq_u32 vcc, 1, v7")
    split3(k, 28, 32, 36, 'm')
    e("s_waitcnt lgkmcnt(0)"); e("v_cndmask_b32 v64, v68, v69, vcc")
    split3(k, 64, 34, 36, 'u')
    e("v_lshlrev_b32 v24, 2, v10"); e("s_lshl_b32 s32, s39, 8"); e(f"s_add_u32 s32, s32, {UT}"); e("v_add_u32 v24, s32, v24")
    e("ds_write_b32 v24, v34"); e("ds_write_b32 v24, v35 offset:128"); e("ds_write_b32 v24, v32 offset:1024"); e("ds_write_b32 v24, v33 offset:1152"); e("ds_write_b32 v24, v29 offset:2048")
    e("s_waitcnt lgkmcnt(0)"); e("s_barrier")
    lwc_init(k); e("s_barrier")
    e("v_mov_b32 v44, v64")
    e("s_cmp_ge_u32 s16, 4"); e(f"s_cbranch_scc1 {nm}_le"); wa_store(1)
    e("s_cmp_eq_u32 s16, 0"); e(f"s_cbranch_scc0 {nm}_le")
    e("v_mov_b32 v45, 0"); e("v_mov_b32 v46, 0"); e("v_mov_b32 v47, 0"); e("v_lshlrev_b32 v24, 4, v10")
    e("s_lshl_b32 s32, s17, 11"); e("s_lshl_b32 s33, s39, 9"); e("s_add_u32 s32, s32, s33"); e(f"s_add_u32 s32, s32, {U_A}")
    e("s_mov_b32 exec_hi, 0"); e(f"buffer_store_dwordx4 v[44:47], v24, s[12:15], s32 offen {SC}")
    k.label(f"{nm}_le")
    e("s_mov_b64 exec, -1")
    signal(k, "sfl", -1, 8, a0, 0, "s[12:15]")
    k.dump(8)
    e(f"s_branch {kn}_t0")
    k.label(f"{nm}_ub"); k.vm = []; k.lg = []
    kwait()
    e("v_lshrrev_b32 v4, 3, v1"); e("v_lshl_add_u32 v4, v2, 4, v4"); e("v_mul_u32_u24 v5, 1280, v4"); e("v_and_b32 v6, 7, v1"); e("v_lshl_add_u32 v5, v6, 4, v5")
    e("s_mul_i32 s24, s16, 163840"); e("s_add_u32 s25, s24, 10240")
    for b_ in range(2):
        for i in range(10): k.vmop(f"buffer_load_dwordx4 {vr(24+40*b_+4*i,4)}, v5, s[8:11], s{24+b_} offen offset:{128*i} {os.environ.get('XNT2', '')}", f"x{b_}{i}")
    for j in range(8): e(f"v_mov_b32 v{8+j}, 0")
    e("v_mov_b32 v7, 0x3f803f80")
    e("v_lshlrev_b32 v16, 4, v0"); e("s_and_b32 s26, s16, 7"); e("s_lshl_b32 s26, s26, 13"); e(f"s_add_u32 s26, s26, {CNT}"); e("s_cmp_ge_u32 s16, 8"); e(f"s_cselect_b32 s27, {LS}, 0"); e("s_add_u32 s26, s26, s27")
    k.vmop(f"buffer_store_dwordx4 v[12:15], v16, s[12:15], s26 offen {SC}")
    for b_ in range(2):
        for i in range(10):
            k.waitvm(f"x{b_}{i}")
            for q in range(4):
                r = 24+40*b_+4*i+q
                e(f"v_dot2_f32_bf16 v{8+2*b_}, v{r}, v7, v{8+2*b_}"); e(f"v_dot2_f32_bf16 v{9+2*b_}, v{r}, v{r}, v{9+2*b_}")
    for dpp in ("quad_perm:[1,0,3,2]", "quad_perm:[2,3,0,1]", "row_half_mirror"):
        for q in range(4): e(f"v_add_f32_dpp v{8+q}, v{8+q}, v{8+q} {dpp} row_mask:0xf bank_mask:0xf")
    e("v_lshlrev_b32 v4, 3, v4"); e("s_lshl_b32 s26, s16, 10"); e(f"s_add_u32 s26, s26, {STI}")
    e("v_cmp_eq_u32 vcc, 0, v6"); k.srd(52, 4, 256); e("s_mov_b64 exec, vcc")
    e(f"buffer_store_dwordx2 v[8:9], v4, s[12:15], s26 offen {SC}"); e(f"buffer_store_dwordx2 v[10:11], v4, s[12:15], s26 offen offset:64 {SC}")
    e("s_mov_b64 exec, -1"); lwc_init(k)
    e("s_waitcnt vmcnt(0)"); e("s_barrier")
    e("s_cmp_ge_u32 s18, 4"); e(f"s_cbranch_scc1 {nm}_u2")
    codepf("u")
    e("s_cmp_eq_u32 s18, 0"); e(f"s_cbranch_scc0 {nm}_u2")
    e("v_mov_b32 v4, 0"); e("v_mov_b32 v5, 1"); e("s_lshl_b32 s26, s16, 2"); e("s_mov_b64 exec, 1")
    e(f"buffer_store_dword v5, v4, s[52:55], s26 offen {SC}")
    e("s_mov_b64 exec, 0xffff"); e("v_lshlrev_b32 v4, 2, v1"); e("s_mov_b32 s33, 0")
    k.label(f"{nm}_u1")
    e(f"buffer_load_dword v5, v4, s[52:55], 0 offen {SC}"); e("s_add_u32 s33, s33, 1"); e("s_waitcnt vmcnt(0)")
    e("v_cmp_eq_u32 vcc, 0, v5"); e("s_cmp_ge_u32 s33, 0x20000"); e(f"s_cbranch_scc1 {nm}_u2"); e(f"s_cbranch_vccnz {nm}_u1")
    k.label(f"{nm}_u2")
    e("s_mov_b64 exec, -1"); e("s_waitcnt vmcnt(0)")

def k_main():
    k = KB(NAME + "_kernel"); e = k.e; name = k.name
    ph_front(k)
    k.label(f"{name}_t0")
    e("s_load_dwordx2 s[46:47], s[0:1], 48"); e("s_mov_b32 s3, 0")
    k.srd(8, 6, 2*LS)
    e("s_waitcnt lgkmcnt(0)")
    k.srd(60, 46, S*D*2)
    k.label(f"{name}_top")
    k.vm = []; k.lg = []
    e("s_setprio 0"); k.stamp(0); k.rstamp(1)
    ph_attn(k)
    def a1():
        e("s_lshl_b32 s48, s17, 3"); e("s_and_b32 s49, s16, 1"); e("s_add_u32 s48, s48, s49"); e("s_lshl_b32 s48, s48, 8"); e(f"s_add_u32 s48, s48, {C1}")
        e(f"v_lshlrev_b32 v{PV_+1}, 9, v1"); e("s_mov_b64 s[56:57], 15")
    e("s_cmp_ge_u32 s18, 4"); e(f"s_cbranch_scc1 {name}_ld")
    signal(k, "s1", 0, 8, a1)
    def c1():
        e("s_lshl_b32 s48, s16, 9"); e(f"s_add_u32 s48, s48, {C1}")
        e(f"v_lshlrev_b32 v{PV_+1}, 8, v1"); e(f"v_mov_b32 v{PV_+2}, 16"); e("s_mov_b64 s[56:57], 3")
    proj_c(k, "p2", OT, XI, XM, STM, False, c1, 0, 6)
    def a2():
        e("s_lshr_b32 s48, s16, 1"); e("s_lshl_b32 s48, s48, 9"); e(f"s_add_u32 s48, s48, {C2}")
        e(f"v_mul_u32_u24 v{PV_+1}, 768, v1"); e("s_bitcmp1_b32 s16, 0"); e("s_cselect_b64 s[56:57], 3, 1")
    signal(k, "s2", 1, 4, a2)
    qkvb_c(k, XM, STM, 9)
    def a3(): one(k, 0); e("s_lshl_b32 s48, s16, 8"); e(f"s_add_u32 s48, s48, {C3}")
    signal(k, "s3", 0, 4, a3)
    def c3(): one(k, 16); e("s_lshr_b32 s48, s16, 1"); e("s_lshl_b32 s48, s48, 8"); e(f"s_add_u32 s48, s48, {C3}")
    proj_c(k, "p4", OBT, XM, XI, STI, True, c3, 0, 12)
    def a4(): one(k, 0); e("s_lshr_b32 s48, s16, 1"); e("s_lshl_b32 s48, s48, 8"); e(f"s_add_u32 s48, s48, {C4}")
    signal(k, "s4", 1, 4, a4)
    k.dump(15, "1")
    ids_mt(k)
    e("s_cmp_ge_u32 s17, 15"); e(f"s_cbranch_scc1 {name}_idle")
    qkva_c(k, XI, STI, 0, C4, [7], 3)
    k.stamp(6)
    e("s_barrier")
    def a5(): e("s_lshl_b32 s48, s17, 11"); e(f"s_add_u32 s48, s48, {LS + C0}"); e(f"v_lshlrev_b32 v{PV_+1}, 8, v1"); e("s_mov_b64 s[56:57], 0xff")
    signal(k, "s5", -1, 4, a5)
    k.dump(7, "3")
    k.label(f"{name}_t1")
    e("s_mov_b32 s3, 1"); e(f"s_add_u32 s8, s8, {LS}"); e("s_addc_u32 s9, s9, 0"); e(f"s_mov_b32 s10, {LS}")
    e(f"s_branch {name}_top")
    k.label(f"{name}_idle")
    for _ in range(4): e("s_barrier")
    e(f"s_branch {name}_t1")
    k.label(f"{name}_ld"); k.vm = []; k.lg = []
    if os.environ.get("FOC") == "at": e("s_add_u32 s84, s3, 4"); k.dump(8, "s84")
    e(f"s_setprio {ENV('LPRIO', '2')}")
    w = proj_l(k, WOA_I, WB_I, OT, a1, 0)
    qkvb_l(k, XM, STM, w)
    w = proj_l(k, WOB_I, WA_I, OBT, None, 0, True)
    ids_mt(k)
    atouch_pre(k, XI)
    e("s_barrier")
    w.one(39); e("s_waitcnt vmcnt(0)"); e("s_barrier")
    e("s_barrier"); lwc_init(k); e("s_barrier")
    e(f"s_branch {name}_t1")
    k.label(f"{name}_end"); e("s_endpgm")
    k.tail()
    return k.text(256 if STAMP else 244, 256 if STAMP else 244)

def build():
    hdr = open("cdna_kernels/" + NAME + ".s.ref").read().split("; Override launch")[0]
    out = hdr + "; @launch grid=(256,1,1) block=(512,1,1) lds=163840\n"
    out += '.amdgcn_target "amdgcn-amd-amdhsa--gfx950"\n'
    out += k_main()
    out += ".text\ncode_end:\n"
    return out

if __name__ == "__main__":
    dst = sys.argv[1] if len(sys.argv) > 1 else "cdna_kernels/" + NAME + ".s"
    open(dst, "w").write(build())
    print("wrote", dst)
```

```python
import sys, math
from lint import lint, fix

NAME = "interleave_layers__softmax_full_mha__sliding_local_dilated__prompt"
S, D, H, DH = 2048, 640, 32, 20
XS = S*D*2
IMG = H*64*2560
QI = H*64*1280
CNT = 0
C1 = CNT; C2 = C1 + 64*256; C3 = C2 + 34*256; C4 = C3 + 16*256; C0 = C4 + 16*256
LS = 65536
CS = LS + C4
XI = 2*LS; STI = XI + XS
QIMG = STI + S*64; KVIMG = QIMG + QI
OT = KVIMG + IMG; OBT = OT + XS; XM = OBT + XS
STM = XM + XS
U_A = STM + S*64
U_B = U_A + 32768
WA_I = U_B + 163840
WOA_I = WA_I + 15*163840
WB_I = WOA_I + 819200
WOB_I = WB_I + 16*163840
STAMPS = WOB_I + 819200
WS_END = STAMPS + 16*262144
import os
STAMP = int(os.environ.get("STAMP", "0"))
ATTN_WAVES = 8
AV = os.environ.get("AV", "")
CSCALE = (DH ** -0.5) * math.log2(math.e)
import struct
def fbits(x): return "0x%08x" % struct.unpack("<I", struct.pack("<f", x))[0]

FM = [(0,16),(32,48),(80,96),(112,128),(64,144)]
def FX(ks, t):
    return 160*(ks//5) + FM[ks%5][t]

class KB:
    def __init__(s, name):
        s.name = name; s.L = []; s.vm = []; s.lg = []; s.cap = None
    def e(s, line):
        if s.cap is not None: s.cap.append(('e', line, None))
        else: s.L.append("    " + line)
    def capture(s, fn):
        s.cap = []; fn(); c = s.cap; s.cap = None
        return [x for x in c if not (x[0] == 'e' and x[1].startswith('s_nop'))]
    def fill(s, lst, n=1):
        for _ in range(n):
            if not lst: return
            kind, a, b = lst.pop(0)
            if kind == 'e':
                s.e(a)
                if a.startswith('s_mov_b64 exec, s['):
                    while True:
                        x = lst.pop(0)[1]; s.e(x)
                        if x == 's_mov_b64 exec, -1': break
                if a.startswith('s_cmp'):
                    while lst and lst[0][0] == 'e' and lst[0][1].startswith('s_cselect'): s.e(lst.pop(0)[1])
            elif kind == 'ds': s.dsop(a, b)
            elif kind == 'wvm': s.waitvm(a)
            elif kind == 'wlg': s.waitlg(a)
    def c(s, txt): s.L.append("    ; " + txt)
    def label(s, l): s.L.append(l + ":")
    def vmop(s, line, tag=None): s.e(line); s.vm.append(tag); assert len(s.vm) <= 63, (s.name, len(s.vm))
    def dsop(s, line, tag=None):
        if s.cap is not None: s.cap.append(('ds', line, tag)); return
        s.e(line); s.lg.append(tag)
    def _n(s, lst, tag):
        idx = max(i for i, t in enumerate(lst) if t == tag)
        return idx
    def waitvm(s, tag):
        if s.cap is not None: s.cap.append(('wvm', tag, None)); return
        if tag not in s.vm: return
        i = s._n(s.vm, tag); n = len(s.vm) - 1 - i
        s.e(f"s_waitcnt vmcnt({n})"); s.vm = s.vm[i+1:]
    def waitlg(s, tag):
        if s.cap is not None: s.cap.append(('wlg', tag, None)); return
        if tag not in s.lg: return
        i = s._n(s.lg, tag); n = len(s.lg) - 1 - i
        if n > 15: n = 15; i = len(s.lg) - 1 - n
        s.e(f"s_waitcnt lgkmcnt({n})"); s.lg = s.lg[i+1:]
    def waitall(s):
        s.e("s_waitcnt vmcnt(0) lgkmcnt(0)"); s.vm = []; s.lg = []
    def srd(s, r, base, nbytes):
        s.e(f"s_mov_b32 s{r}, s{base}")
        s.e(f"s_and_b32 s{r+1}, s{base+1}, 0xffff")
        s.e(f"s_mov_b32 s{r+2}, {nbytes}")
        s.e(f"s_mov_b32 s{r+3}, 0x20000")
    def stamp(s, i):
        if not STAMP: return
        op = "s_memrealtime" if os.environ.get("RT") else "s_memtime"
        s.e(f"{op} s[{64+2*i}:{65+2*i}]" if i < 10 else f"{op} s[{72+2*i}:{73+2*i}]")
    def rstamp(s, i):
        if not STAMP: return
        s.e(f"s_memrealtime s[{64+2*i}:{65+2*i}]")
    def dump(s, n=8, slot="0", wave="s18"):
        if not STAMP: return
        e = s.e
        if os.environ.get("DBG"):
            keep = {"0": [(1, 246), (3, 247), (6, 248)], "1": [(2, 249), (5, 250), (14, 251)], "3": [(6, 252)], "2": [(2, 253), (5, 254), (14, 255)]}[slot]
            e("s_waitcnt lgkmcnt(0)")
            if n < 7 or (slot == "0" and n == 8): return
            for i, v in keep: e(f"v_mov_b32 v{v}, s{64+2*i if i < 10 else 72+2*i}")
            if slot == "2":
                e(f"s_cmp_eq_u32 s2, {os.environ['DBG']}"); e("s_cbranch_scc0 dbg_skip"); e("s_cmp_eq_u32 s18, 0"); e("s_cbranch_scc0 dbg_skip")
                e("s_load_dwordx2 s[84:85], s[0:1], 56"); e("s_memrealtime s[86:87]"); e("s_waitcnt lgkmcnt(0)")
                s.srd(88, 84, 256); e("s_mov_b64 exec, 1"); e("v_mov_b32 v0, 0"); e("v_mov_b32 v245, s86"); e("v_sub_u32 v245, v245, v246")
                for i in range(9):
                    e(f"v_sub_u32 v{247+i}, v{247+i}, v246"); e(f"buffer_store_dword v{247+i}, v0, s[88:91], 0 offen offset:{4*i}")
                e("buffer_store_dword v245, v0, s[88:91], 0 offen offset:36")
                s.label("dbg_skip")
            return
        e("s_memrealtime s[86:87]"); e("s_waitcnt lgkmcnt(0)")
        e("s_mov_b64 exec, 1")
        e(f"s_lshl_b32 s84, {slot}, 18")
        e("s_lshl_b32 s85, s2, 3"); e(f"s_add_u32 s85, s85, {wave}"); e("s_lshl_b32 s85, s85, 6"); e(f"s_add_u32 s85, s85, {STAMPS}"); e("s_add_u32 s85, s85, s84")
        e("v_mov_b32 v244, 0")
        for i in range(n):
            e(f"v_mov_b32 v245, s{64+2*i if i < 10 else 72+2*i}")
            e(f"buffer_store_dword v245, v244, s[12:15], s85 offen offset:{4*i}")
        e("v_mov_b32 v245, s86"); e("buffer_store_dword v245, v244, s[12:15], s85 offen offset:60")
        e("s_mov_b64 exec, -1")
    def text(s, vgpr, accum, sgpr=102):
        s.L, added = fix(s.L)
        if os.environ.get("V"): print(s.name, "auto nops:", added, "lines:", len(s.L))
        out = [".text", f".globl {s.name}", ".p2align 8", f".type {s.name},@function", f"{s.name}:"]
        out += s.L
        out += ['.section .rodata,"a"', ".p2align 6", f".amdhsa_kernel {s.name}",
                f"  .amdhsa_next_free_vgpr {vgpr}", f"  .amdhsa_next_free_sgpr {sgpr}", f"  .amdhsa_accum_offset {accum}",
                "  .amdhsa_group_segment_fixed_size 0", "  .amdhsa_kernarg_size 72", "  .amdhsa_user_sgpr_count 2",
                "  .amdhsa_user_sgpr_kernarg_segment_ptr 1", "  .amdhsa_system_sgpr_workgroup_id_x 1", ".end_amdhsa_kernel"]
        nb = lint(s.L, s.name)
        assert nb == 0, f"{nb} hazards in {s.name}"
        return "\n".join(out) + "\n"
    def allred32(s, op, v, t):
        s.e(f"v_mov_b32 v{t}, v{v}"); s.e("s_nop 1")
        s.e(f"v_permlane32_swap_b32 v{v}, v{t}"); s.e("s_nop 1")
        s.e(f"{op} v{v}, v{v}, v{t}")
    def allred16(s, op, v, t):
        s.e(f"v_mov_b32 v{t}, v{v}"); s.e("s_nop 1")
        s.e(f"v_permlane16_swap_b32 v{v}, v{t}"); s.e("s_nop 1")
        s.e(f"{op} v{v}, v{v}, v{t}")

def vr(a, n): return f"v[{a}:{a+n-1}]" if n > 1 else f"v{a}"
def ar(a, n): return f"a[{a}:{a+n-1}]" if n > 1 else f"a{a}"

def stats_finish(k, s1, s2, mean, rstd, t):
    e = k.e
    e(f"v_mul_f32 v{mean}, {fbits(1.0/D)}, v{s1}")
    e(f"v_mul_f32 v{t}, {fbits(1.0/D)}, v{s2}")
    e(f"v_fma_f32 v{t}, -v{mean}, v{mean}, v{t}")
    e(f"v_max_f32 v{t}, 0, v{t}")
    e(f"v_add_f32 v{t}, {fbits(1e-5)}, v{t}")
    e(f"v_rsq_f32 v{rstd}, v{t}")
    e("s_nop 0")

def split3(k, src, d, t, kind, maskv=None):
    e = k.e
    if kind == 'm':
        e(f"v_xor_b32 v{t+1}, 0x80000000, v{src}"); src = t+1
    e(f"v_and_b32 v{t}, 0xffff0000, v{src}")
    e(f"v_sub_f32 v{t+2}, v{src}, v{t}")
    if kind == 'u':
        e(f"v_cvt_pk_bf16_f32 v{d}, v{t}, v{t+2}")
        e(f"v_lshrrev_b32 v{d+1}, 16, v{t}")
    else:
        e(f"v_cvt_pk_bf16_f32 v{d}, v{t}, v{t}")
        e(f"v_cvt_pk_bf16_f32 v{d+1}, v{t+2}, 0")
    if maskv is not None:
        e(f"v_and_b32 v{d}, v{d}, v{maskv}"); e(f"v_and_b32 v{d+1}, v{d+1}, v{maskv}")

SC = "sc1"
RS_ = lambda off: "s[12:15]" if off >= 2*LS else "s[8:11]"
EARLY = int(os.environ.get('EARLY', '6'))
ENV = lambda n, d: int(os.environ.get(n, d))

def ids_mt(k):
    k.e("s_lshl_b32 s22, s20, 1"); k.e("s_and_b32 s23, s21, 1"); k.e("s_add_u32 s16, s22, s23"); k.e("s_lshr_b32 s17, s21, 1")
def ids_rt(k):
    k.e("s_lshl_b32 s22, s20, 2"); k.e("s_and_b32 s23, s21, 3"); k.e("s_add_u32 s16, s22, s23"); k.e("s_lshr_b32 s17, s21, 2")

LW = 163824
PV_ = 240
def lw_init(k):
    e = k.e
    e(f"v_mov_b32 v{PV_+3}, {LW}")
    for i in range(3): e(f"v_mov_b32 v{PV_+i}, 0")
    e(f"ds_write_b96 v{PV_+3}, v[{PV_}:{PV_+2}]"); e(f"ds_write_b32 v{PV_+3}, v{PV_} offset:12")

def lwc_init(k):
    k.e(f"v_mov_b32 v{PV_+3}, {LW-8}"); k.e(f"v_mov_b32 v{PV_}, 0"); k.e(f"v_mov_b32 v{PV_+1}, 0")
    k.e(f"ds_write_b64 v{PV_+3}, v[{PV_}:{PV_+1}]"); k.e("s_waitcnt lgkmcnt(0)")

def signal(k, tag, word, nw, addr_code, younger=0, srd="s[8:11]"):
    e = k.e
    addr_code()
    e(f"v_mov_b32 v{PV_+3}, {LW-8}"); e(f"v_mov_b32 v{PV_}, 1")
    e("s_mov_b64 exec, 1")
    assert younger == 0
    e("s_waitcnt vmcnt(0)"); k.vm = []
    if tag == os.environ.get("FOC"): k.stamp(2)
    e(f"ds_add_rtn_u32 v{PV_+2}, v{PV_+3}, v{PV_} offset:{8*word+8}")
    e("s_waitcnt lgkmcnt(0)"); k.lg = []
    e(f"v_readfirstlane_b32 s49, v{PV_+2}")
    e("s_mov_b64 exec, s[56:57]")
    e(f"s_cmp_eq_u32 s49, {nw-1}"); e(f"s_cbranch_scc0 {k.name}_{tag}_sg")
    e(f"buffer_atomic_add v{PV_}, v{PV_+1}, {srd}, s48 offen {SC}")
    if os.environ.get("FOC2") == tag: k.stamp(4)
    k.label(f"{k.name}_{tag}_sg")
    e("s_mov_b64 exec, -1")

def wait_go(k, tag, word, poll_code):
    e = k.e; nm = f"{k.name}_{tag}"
    e(f"v_mov_b32 v{PV_+3}, {LW-8}"); e("s_mov_b32 s49, 0")
    if poll_code:
        e("s_cmp_eq_u32 s18, 0"); e(f"s_cbranch_scc0 {nm}_sp")
        poll_code()
        e("s_mov_b64 exec, s[56:57]")
        if os.environ.get("FOC") == "g" + tag: k.stamp(2)
        k.label(f"{nm}_pl")
        e(f"v_mov_b32 v{PV_}, 0")
        e(f"buffer_atomic_add v{PV_}, v{PV_+1}, s[8:11], s48 offen sc0 sc1")
        e("s_add_u32 s49, s49, 1")
        e("s_waitcnt vmcnt(0)")
        e(f"v_cmp_ge_u32 vcc, v{PV_}, v{PV_+2}")
        e("s_cmp_ge_u32 s49, 0x20000"); e(f"s_cbranch_scc1 {nm}_px")
        e("s_cmp_eq_u64 vcc, exec"); e(f"s_cbranch_scc0 {nm}_pl")
        k.label(f"{nm}_px")
        if os.environ.get("FOC") == "g" + tag: e("s_add_u32 s70, s64, s49")
        e("s_mov_b64 exec, 1"); e(f"v_mov_b32 v{PV_}, 1")
        e(f"ds_write_b32 v{PV_+3}, v{PV_} offset:{8*word+12}")
        e(f"s_branch {nm}_go")
    k.label(f"{nm}_sp")
    e("s_sleep 1")
    e(f"ds_read_b32 v{PV_}, v{PV_+3} offset:{8*word+12}")
    e("s_add_u32 s49, s49, 1")
    e("s_waitcnt lgkmcnt(0)")
    e(f"v_readfirstlane_b32 s44, v{PV_}")
    e("s_cmp_ge_u32 s49, 0x400000"); e(f"s_cbranch_scc1 {nm}_go")
    e("s_cmp_eq_u32 s44, 0"); e(f"s_cbranch_scc1 {nm}_sp")
    k.label(f"{nm}_go")
    e("s_mov_b64 exec, -1")

class Wdma:
    def __init__(s, k, n, base=50, tag="w"): s.k = k; s.n = n; s.i = 0; s.base = base; s.tag = tag
    def one(s, i):
        s.k.e(f"s_add_u32 m0, s45, {4096*i}"); s.k.e(f"s_add_u32 s32, s{s.base}, {4096*i}")
        s.k.vmop(f"buffer_load_dwordx4 v3, s[12:15], s32 offen {SC} lds", f"{s.tag}{i}")
    def go(s, upto):
        while s.i < min(upto, s.n): s.one(s.i); s.i += 1
    def rng(s, a, b, thr=0):
        for i in range(a, b):
            s.one(i)
            if thr and len(s.k.vm) >= thr: s.k.e(f"s_waitcnt vmcnt({thr-1})"); s.k.vm = s.k.vm[len(s.k.vm)-thr+1:]

SIDE_SV = 152; SIDE_D = 160; SIDE_U = 192
def side_setup(k):
    e = k.e; nm = k.name
    e("s_load_dwordx4 s[84:87], s[0:1], 32"); e("s_load_dwordx2 s[88:89], s[0:1], 16")
    e("s_mul_i32 s49, s2, 3"); e("s_add_u32 s49, s49, s18"); e("s_sub_u32 s49, s49, 4")
    e("s_sub_u32 s32, s18, 4"); e("s_cmp_lt_u32 s32, 3"); e("s_cselect_b32 s49, s49, 959"); e("s_cmp_eq_u32 s3, 0"); e("s_cselect_b32 s49, s49, 959")
    e("s_lshl_b32 s35, s39, 13"); e("s_add_u32 s35, s35, 112640")
    e("s_mul_i32 s36, s49, 3277"); e("s_lshr_b32 s36, s36, 16"); e("s_mul_i32 s37, s36, 20"); e("s_sub_u32 s37, s49, s37")
    e("v_and_b32 v140, 15, v1"); e("v_lshrrev_b32 v141, 2, v140"); e("v_and_b32 v142, 3, v1")
    e("s_waitcnt lgkmcnt(0)")
    SV = SIDE_SV
    e("v_lshrrev_b32 v136, 4, v1")
    for r in list(range(SV, SV+5)) + list(range(144, 152)): e(f"v_mov_b32 v{r}, 0")
    e("s_mov_b32 s5, 0")
    e("s_mov_b32 s53, 0x7ff00000"); e("s_mov_b32 s54, s53"); e("s_mov_b32 s58, s53")
    e("s_cmp_ge_u32 s49, 320"); e(f"s_cbranch_scc1 {nm}_ss1")
    k.srd(88, 84, D*3*D*2)
    e(f"s_mul_i32 s5, s37, {32*3840}"); e("s_mul_i32 s32, s36, 80"); e("s_add_u32 s5, s5, s32")
    e("v_lshlrev_b32 v137, 2, v136"); e("v_xor_b32 v137, v137, v140"); e("v_min_u32 v137, 14, v137")
    e("v_mul_u32_u24 v138, 52, v137"); e("v_lshrrev_b32 v138, 8, v138"); e("v_mul_u32_u24 v138, 1200, v138"); e("v_lshl_add_u32 v138, v137, 4, v138")
    e("v_mul_u32_u24 v137, 3840, v136"); e(f"v_add_u32 v{SV}, v138, v137")
    e("v_lshrrev_b32 v137, 5, v1"); e("v_lshl_add_u32 v137, v137, 3, v141"); e("v_lshlrev_b32 v137, 8, v137"); e("v_and_b32 v138, 1, v136")
    e("v_lshl_add_u32 v137, v138, 5, v137"); e("v_lshl_add_u32 v137, v142, 3, v137"); e("v_add_u32 v137, s35, v137")
    for jf in range(4): e(f"v_xor_b32 v139, {jf}, v141"); e(f"v_lshl_add_u32 v{144+jf}, v139, 6, v137")
    e("s_mul_i32 s53, s36, 163840"); e("s_lshl_b32 s54, s37, 13"); e("s_add_u32 s53, s53, s54"); e(f"s_add_u32 s53, s53, {WB_I}"); e("s_add_u32 s54, s53, 4096"); e("s_mov_b32 s58, s54")
    e(f"s_branch {nm}_ss2")
    k.label(f"{nm}_ss1")
    e("s_cmp_ge_u32 s36, 24"); e("s_cselect_b32 s32, s86, s88"); e("s_cselect_b32 s33, s87, s89")
    k.srd(88, 32, D*D*2)
    e("s_cmp_ge_u32 s49, 640"); e(f"s_cbranch_scc1 {nm}_ss2")
    e("s_and_b32 s32, s36, 7"); e("s_mul_i32 s32, s32, 160")
    e("s_mul_i32 s5, s37, 40"); e("s_sub_u32 s34, s37, 16"); e("s_mul_i32 s34, s34, 160"); e("s_add_u32 s34, s34, 16")
    e("s_cmp_lt_u32 s37, 16"); e("s_cselect_b32 s5, s5, s34"); e("s_cselect_b32 s33, 4, 2"); e("s_cselect_b32 s34, 4, 16")
    e("s_mul_i32 s5, s5, 1280"); e("s_add_u32 s5, s5, s32")
    for i in range(5):
        e(f"v_add_u32 v137, {64*i}, v1"); e("v_mul_u32_u24 v138, 6554, v137"); e("v_lshrrev_b32 v138, 16, v138")
        e("v_lshrrev_b32 v139, s33, v138"); e("v_mul_u32_u24 v139, s34, v139"); e("v_mul_u32_u24 v139, 1280, v139")
        e("v_mul_u32_u24 v138, 1120, v138"); e("v_add_u32 v139, v139, v138"); e(f"v_lshl_add_u32 v{SV+i}, v137, 4, v139")
    e("v_lshlrev_b32 v137, 2, v136"); e("s_mov_b32 s32, 2560")
    e("s_cmp_ge_u32 s36, 24"); e(f"s_cbranch_scc1 {nm}_sf3"); e("s_cmp_ge_u32 s37, 16"); e(f"s_cbranch_scc1 {nm}_sf3")
    e("v_lshrrev_b32 v137, 1, v136"); e("v_lshlrev_b32 v137, 4, v137"); e("v_and_b32 v138, 1, v136"); e("v_lshl_add_u32 v137, v138, 2, v137"); e("s_mov_b32 s32, 1280")
    k.label(f"{nm}_sf3")
    e("v_add_u32 v137, v137, v141"); e("v_mul_u32_u24 v137, 160, v137"); e("v_add_u32 v137, s35, v137")
    e("s_and_b32 s33, s36, 1"); e("s_lshl_b32 s34, s33, 5"); e("s_xor_b32 s33, s33, 1"); e("s_lshl_b32 s33, s33, 7")
    e("v_lshl_add_u32 v144, v142, 4, v137"); e("v_add_u32 v144, s34, v144"); e("v_add_u32 v145, s32, v144")
    e("v_lshl_add_u32 v146, v142, 3, v137"); e("v_add_u32 v146, s33, v146"); e("v_add_u32 v147, s32, v146")
    e("s_cmp_ge_u32 s36, 24"); e(f"s_cselect_b32 s53, {WOB_I-WOA_I}, 0"); e("s_and_b32 s54, s36, 7"); e("s_mul_i32 s54, s54, 102400"); e("s_add_u32 s53, s53, s54")
    e("s_mul_i32 s54, s37, 5120"); e("s_add_u32 s53, s53, s54"); e(f"s_add_u32 s53, s53, {WOA_I}"); e("s_add_u32 s54, s53, 4096")
    k.label(f"{nm}_ss2")
    e("s_lshl_b32 s38, s49, 9"); e(f"s_add_u32 s38, s38, {U_B}"); e("s_cmp_ge_u32 s49, 320"); e("s_cselect_b32 s38, 0x7ff00000, s38")
    e("v_lshlrev_b32 v143, 2, v1")
    e("s_cmp_lt_u32 s49, 640"); e("s_cselect_b32 s4, 2, 0"); e("s_cmp_lt_u32 s49, 320"); e("s_cselect_b32 s4, 1, s4")
    e("s_and_b32 s55, s49, 15"); e("s_lshl_b32 s55, s55, 8"); e(f"s_add_u32 s55, s55, {CS}")

def ph_attn(k):
    e = k.e; nm = k.name
    KA, KT, VA = 4, 5, 6
    Q = [8, 14]; KF = [24, 32]; VF = [40, 48]; SS = [56, 72]; P = 88; O = [96, 112]; PF = 208
    SCR = 137216; TOP = 112640
    ids_rt(k)
    e("v_and_b32 v3, 31, v1"); e("v_lshrrev_b32 v7, 5, v1")
    e("v_lshlrev_b32 v22, 4, v1"); e("v_lshlrev_b32 v23, 3, v3")
    e("s_mul_i32 s19, s16, 163840")
    e("s_lshr_b32 s41, s18, 2")
    e("s_lshl_b32 s23, s17, 3"); e("s_lshl_b32 s22, s39, 1"); e("s_add_u32 s23, s23, s22")
    e("s_add_u32 s23, s23, s41")
    e("s_lshr_b32 s22, s19, 1"); e(f"s_add_u32 s22, s22, {QIMG}")
    e("s_mul_i32 s24, s23, 1280"); e("s_add_u32 s24, s24, s22"); e("s_xor_b32 s40, s23, 1"); e("s_mul_i32 s40, s40, 1280"); e("s_add_u32 s40, s40, s22")
    e("s_mul_i32 s42, s41, 2560"); e(f"s_add_u32 s42, s42, {TOP}")
    e("s_lshl_b32 s25, s18, 10")
    e(f"s_add_u32 s26, s19, {KVIMG}")
    rnd = [0]
    def dma():
        i = rnd[0]; rnd[0] += 1
        if i == 6:
            e("s_cmp_lt_u32 s18, 2"); e("s_cselect_b32 s27, 163840, 0"); e("s_add_u32 s27, s27, s25"); e("s_sub_u32 m0, s27, 2048")
        else: e(f"s_add_u32 m0, s25, {(TOP + 8192*i) if i < 6 else 8192*i - 51200}")
        e("s_add_u32 s27, s26, m0")
        k.vmop(f"buffer_load_dwordx4 v22, s[12:15], s27 offen {SC} lds", f"i{i}")
    e(f"v_add_u32 v{KA}, s42, v22")
    e(f"v_add_u32 v{KT}, s42, v23"); e(f"v_add_u32 v{KT}, 1024, v{KT}")
    if ENV('KTZ', '1'): e(f"v_lshl_add_u32 v{KT}, v7, 20, v{KT}")
    e("v_mul_u32_u24 v21, 20, v7"); e("v_add_u32 v21, v21, v3"); e("v_lshlrev_b32 v21, 4, v21")
    e("v_add_u32 v21, 1280, v21"); e(f"v_add_u32 v{VA}, s42, v21")
    e("s_mov_b32 s28, 0x000fffff"); e("s_mov_b32 s29, 0x000fffff")
    e("v_cmp_eq_u32 vcc, 20, v3"); e("v_mov_b32 v20, 0x3f803f80"); e("s_nop 0")
    e("v_cndmask_b32 v20, 0, v20, vcc")
    for r in range(16): e(f"v_mov_b32 v{VF[0]+r}, v20")
    for r in range(32): e(f"v_mov_b32 v{O[0]+r}, 0")
    for r in range(4): e(f"v_mov_b32 v{P+4+r}, 0")
    e("v_subrev_u32 v30, 1, v7")
    e("s_lshl_b32 s43, s21, 2"); e("s_add_u32 s43, s43, s39"); e(f"s_mul_i32 s43, s43, {2048*ENV('NPF', '14') - 1024}"); e(f"s_add_u32 s43, s43, {WOA_I}")
    e("s_mul_i32 s32, s23, 40960"); e(f"s_add_u32 s32, s32, {OT}")
    e("s_lshr_b32 s51, s16, 1"); e("s_lshl_b32 s51, s51, 10"); e("s_and_b32 s34, s16, 1"); e("s_lshl_b32 s34, s34, 9")
    e("s_add_u32 s51, s51, s34"); e("s_add_u32 s51, s51, s32")
    e("s_lshr_b32 s52, s16, 3"); e("s_add_u32 s52, s52, 16"); e("s_lshl_b32 s52, s52, 10"); e("s_add_u32 s52, s52, s32")
    e("s_and_b32 s35, s16, 3"); e("s_lshl_b32 s35, s35, 8"); e("s_add_u32 s52, s52, s35")
    e("s_bfe_u32 s35, s16, 0x10002"); e("s_lshl_b32 s35, s35, 3"); e("s_add_u32 s52, s52, s35")
    e("v_lshrrev_b32 v38, 4, v3"); e("v_mul_u32_u24 v38, 20480, v38"); e("v_and_b32 v39, 15, v3")
    e("v_lshl_add_u32 v38, v39, 4, v38"); e("v_lshl_add_u32 v39, v7, 8, v38")
    e("s_mul_i32 s32, s18, 3072"); e("s_xor_b32 s33, s18, 4"); e("s_mul_i32 s33, s33, 3072")
    e(f"v_add_u32 v132, {SCR}, v22"); e("v_add_u32 v133, s33, v132"); e("v_add_u32 v132, s32, v132")
    def c0(nl):
        e("s_lshl_b32 s48, s17, 8"); e(f"s_add_u32 s48, s48, {C0}"); e(f"v_mov_b32 v{PV_+2}, 16")
        e("s_mul_i32 s32, s16, 20"); e("s_add_u32 s33, s32, 19"); e("s_lshr_b32 s32, s32, 7"); e("s_lshr_b32 s33, s33, 7"); e("s_sub_u32 s33, s33, s32")
        e(f"v_lshrrev_b32 v{PV_+1}, 1, v1"); e(f"v_mul_u32_u24 v{PV_+1}, 5, v{PV_+1}"); e(f"v_and_b32 v{PV_}, s33, v1"); e(f"v_add3_u32 v{PV_+1}, v{PV_+1}, v{PV_}, s32")
        e(f"v_lshlrev_b32 v{PV_+1}, 11, v{PV_+1}"); e("s_mov_b64 s[56:57], 63")
    side_setup(k)
    e("s_lshl_b32 s59, s2, 2"); e("s_add_u32 s59, s59, s39"); e("s_mul_i32 s50, s59, 2560"); e(f"s_mul_i32 s59, s59, {-(-(U_A - OT) // 1024 // 128) * 128}"); e(f"s_add_u32 s59, s59, {OT}")
    e("v_lshlrev_b32 v234, 7, v1")
    e("v_lshlrev_b32 v134, 11, v1"); e("s_lshl_b32 s32, s17, 8"); e(f"s_add_u32 s32, s32, {C0}"); e("v_add_u32 v134, s32, v134")
    e("v_lshlrev_b32 v135, 8, v1"); e(f"v_add_u32 v135, {CS - 4096}, v135"); e("v_cmp_gt_u32 vcc, 16, v1")
    e("v_cndmask_b32 v134, v135, v134, vcc"); e("v_cndmask_b32 v131, 40, 16, vcc"); e("v_mov_b32 v135, 64")
    wait_go(k, "t", -1, lambda: c0(6))
    k.stamp(2)
    dma()
    for x in range(2):
        k.vmop(f"buffer_load_dwordx4 {vr(Q[x],4)}, v22, s[12:15], s{(24,40)[x]} offen {SC}", "q")
        k.vmop(f"buffer_load_dwordx2 {vr(Q[x]+4,2)}, v23, s[12:15], s{(24,40)[x]} offen offset:1024 {SC}", "q")
    for _ in range(3): dma()
    k.waitvm("q")
    for x in range(2):
        e(f"v_and_b32 v{Q[x]+4}, v{Q[x]+4}, v30"); e(f"v_and_b32 v{Q[x]+5}, v{Q[x]+5}, v30")
    k.waitvm("i1"); e("s_barrier"); k.stamp(3)
    if os.environ.get("FOC") == "clk": k.rstamp(0)
    def rdK(buf, off):
        off *= 2
        e(f"ds_read_b128 {vr(KF[buf],4)}, v{KA} offset:{off}")
        e(f"ds_read_b64 {vr(KF[buf]+4,2)}, v{KT} offset:{off}")
    def rdV(buf, off):
        off *= 2
        e("s_mov_b64 exec, s[28:29]")
        e(f"ds_read_b128 {vr(VF[buf],4)}, v{VA} offset:{off}")
        e(f"ds_read_b128 {vr(VF[buf]+4,4)}, v{VA} offset:{off+640}")
        e("s_mov_b64 exec, -1")
    def qkm(x, kb): e(f"v_mfma_f32_32x32x16_bf16 {vr(SS[x],16)}, {vr(KF[kb],4)}, {vr(Q[x],4)}, 0")
    def qkt(x, kb): e(f"v_mfma_f32_32x32x8_bf16 {vr(SS[x],16)}, {vr(KF[kb]+4,2)}, {vr(Q[x]+4,2)}, {vr(SS[x],16)}")
    def pv(x, vb, u): e(f"v_mfma_f32_32x32x16_bf16 {vr(O[x],16)}, {vr(VF[vb]+4*u,4)}, {vr(P+4*u,4)}, {vr(O[x],16)}")
    def base(t):
        return 0 if t < 10 else 10 if t < 22 else 22
    def bump(regs, t):
        if t == 10:
            for r in regs: e(f"v_subrev_u32 v{r}, {TOP}, v{r}")
        elif t == 22:
            for r in regs: e(f"v_add_u32 v{r}, {12*5120}, v{r}")
    def unit(x, t, extra=()):
        p = t % 2; s = SS[x]
        ex = lambda i: e(f"v_exp_f32 v{s+i}, v{s+i}")
        cv = lambda i: e(f"v_cvt_pk_bf16_f32 v{P+i}, v{s+2*i}, v{s+2*i+1}")
        kb = p if x == 0 else 1-p
        if x == 1: e("s_waitcnt lgkmcnt(2)" if t < 31 else "s_waitcnt lgkmcnt(0)")
        if not (x == 1 and t == 31): qkm(1-x, kb)
        if x == 1 and t + 2 < 32:
            bump((KA, KT), t+2); rdK(p, (t+2-base(t+2))*2560)
        for i in range(0, 4): ex(i)
        if x == 0:
            pv(1, 1-p, 1)
            if t + 1 < 32:
                bump((VA,), t+1); rdV(1-p, (t+1-base(t+1))*2560)
        else:
            pv(0, p, 1)
        for f_ in extra: f_()
        for i in range(4, 8): ex(i)
        for i in range(0, 4): cv(i)
        if not (x == 1 and t == 31): qkt(1-x, kb)
        for i in range(8, 12): ex(i)
        if x == 0: e(f"s_waitcnt lgkmcnt({4 if t < 31 else 0})")
        pv(x, p, 0)
        for i in range(12, 16): ex(i)
        for i in range(4, 8): cv(i)
    rdK(0, 0); rdV(0, 0); rdK(1, 2560)
    e("s_waitcnt lgkmcnt(4)")
    qkm(0, 0); e("s_nop 10"); qkt(0, 0); e("s_nop 10")
    SYN = {1: 3, 4: 7, 10: 19}; SW = ENV('SW', '27')
    T_SI, T_SR, T_SA, T_PF, T_LC = 10, ENV('TSR', '16'), 26, ENV('TPF', '15'), 27
    hk = [0]
    def cond(test, fn):
        def g():
            hk[0] += 1; lab = f"{nm}_hk{hk[0]}"
            e(test); e(f"s_cbranch_scc0 {lab}"); fn(); k.label(lab)
        return g
    def prio1(): e("s_setprio 1")
    def pref():
        for _ in range(2): e(f"buffer_load_dwordx4 {vr(PF,4)}, v22, s[12:15], s43 offen {SC}"); e("s_add_u32 s43, s43, 1024")
    def side_issue():
        e("s_cmp_eq_u32 s4, 1"); e(f"s_cbranch_scc0 {nm}_i1")
        for i in range(8):
            e(f"s_add_u32 m0, s35, {1024*i}"); e(f"s_add_u32 s27, s5, {4*3840*i}")
            e(f"buffer_load_dwordx4 v{SIDE_SV}, s[88:91], s27 offen {os.environ.get('SNT', 'nt')} lds")
        e(f"s_branch {nm}_i2")
        k.label(f"{nm}_i1")
        for i in range(5):
            e(f"s_add_u32 m0, s35, {1024*i}"); e("s_nop 0")
            e(f"buffer_load_dwordx4 v{SIDE_SV+i}, s[88:91], s5 offen {os.environ.get('SNT', 'nt')} lds")
        k.label(f"{nm}_i2")
    def side_read():
        e("s_waitcnt vmcnt(0)")
        e("s_cmp_eq_u32 s4, 1"); e(f"s_cbranch_scc0 {nm}_r1")
        for F in range(8):
            for t in range(2): e(f"ds_read_b64_tr_b16 {vr(SIDE_D+4*F+2*t,2)}, v{144+F%4} offset:{4096*(F//4)+1024*t}")
        e(f"s_branch {nm}_r2")
        k.label(f"{nm}_r1")
        for nf in range(5):
            for t in range(2): e(f"ds_read_b64_tr_b16 {vr(SIDE_D+4*nf+2*t,2)}, v{144+t if nf < 4 else 146+t} offset:{64*(nf//2)+8*(nf%2) if nf < 4 else 0}")
        k.label(f"{nm}_r2")
    def side_done():
        e("s_waitcnt lgkmcnt(0)"); e(f"v_mov_b32 v{PV_+3}, {LW-8}"); e(f"v_mov_b32 v{PV_}, 1"); e("s_mov_b64 exec, 1")
        e(f"ds_add_u32 v{PV_+3}, v{PV_}"); e("s_mov_b64 exec, -1")
    UA = (SIDE_U, 212)
    def side_sum(q):
        def g():
            if q == 0:
                for r in range(4): e(f"v_mov_b32 v{228+r}, 0x3f803f80")
            for u in range(2):
                for x in range(2): e(f"v_mfma_f32_32x32x16_bf16 {vr(UA[x],16)}, v[228:231], {vr(SIDE_D+16*u+8*q+4*x,4)}, {vr(UA[x],16) if u else 0}")
        return g
    def side_sum2(q):
        def g():
            e("v_cmp_gt_u32 vcc, 32, v1"); e(f"v_cndmask_b32 v{232+q}, v{UA[1]}, v{UA[0]}, vcc")
            e(f"buffer_store_dword v{232+q}, v143, s[12:15], s38 offen offset:{256*q} {SC}")
        return g
    def side_store(F):
        return lambda: e(f"buffer_store_dwordx4 {vr(SIDE_D+4*F,4)}, v22, s[12:15], s{53 if F < 4 else 54 if F == 4 else 58} offen offset:{1024*(F%4)} {SC}")
    def side_arrive():
        e(f"v_mov_b32 v{PV_+1}, 0"); e(f"v_mov_b32 v{PV_}, 1"); e("s_waitcnt vmcnt(0)"); e("s_mov_b64 exec, 1")
        e(f"buffer_atomic_add v{PV_}, v{PV_+1}, s[12:15], s55 offen {SC}"); e("s_mov_b64 exec, -1")
    def touch():
        e("s_cmp_eq_u32 s3, 0"); e(f"s_cbranch_scc0 {nm}_t2")
        e("buffer_load_dword v235, v234, s[12:15], s59 offen"); e(f"s_branch {nm}_t3")
        k.label(f"{nm}_t2")
        if ENV('TOUT', '0'):
            e("s_mov_b64 exec, 0xfffff"); e("buffer_load_dword v235, v234, s[60:63], s50 offen"); e("s_mov_b64 exec, -1")
        k.label(f"{nm}_t3")
    def late():
        e("s_mov_b32 exec_lo, 0xffff7fff"); e("s_mov_b32 exec_hi, 0"); e(f"buffer_load_dword v135, v134, s[12:15], 0 offen {SC}"); e("s_mov_b64 exec, -1")
    def init_words(): lw_init(k); e(f"v_mov_b32 v{PV_+3}, {LW-8}"); e(f"ds_write_b32 v{PV_+3}, v{PV_}")
    side = "s_cmp_lg_u32 s4, 0"
    for t in range(32):
        if t in SYN: k.waitvm(f"i{SYN[t]}"); e("s_barrier")
        x0, x1 = [], []
        if rnd[0] < 20: x0 += [dma, dma]; x1 += [dma, dma]
        if t in (1, 4, 10): cond("s_cmp_ge_u32 s18, 4", prio1)()
        if t == 3: x0.append(lambda: e("s_setprio 0"))
        if t == 8: x1.append(lambda: e("s_setprio 0"))
        if t == 10:
            x0.append(cond("s_cmp_eq_u32 s18, 4", lambda: lw_init(k)))
            if os.environ.get("FOC") == "at": k.stamp(2)
        if t == SW + 1 and os.environ.get("FOC") == "at": k.stamp(0)
        if t == T_SI: x1.append(cond(side, side_issue))
        if t == T_SR: x1.append(cond(side, side_read))
        if t == T_SR + 1: x0.append(cond(side, lambda: e("s_waitcnt lgkmcnt(0)"))); x1.append(cond("s_cmp_eq_u32 s4, 1", side_sum(0)))
        if t == T_SR + 2: x0.append(cond("s_cmp_eq_u32 s4, 1", side_sum2(0))); x1.append(cond("s_cmp_eq_u32 s4, 1", side_sum(1)))
        if t == T_SR + 3: x0.append(cond("s_cmp_eq_u32 s4, 1", side_sum2(1)))
        if T_SR + 1 <= t < T_SR + 9: x1.append(cond(side, side_store(t - T_SR - 1)))
        if ENV('TCH', '6') and t == ENV('TCH', '6'): x0.append(lambda: k.waitvm("i19") if ENV('TW', '1') else None); x0.append(cond("s_cmp_lt_u32 s18, 4", touch))
        if t == T_SA: x0.append(cond(side, side_arrive))
        if T_PF <= t < T_PF + ENV('NPF', '14') and ENV('PFW', '1'): x0.append(cond("s_cmp_lt_u32 s18, 4", pref))
        if t == T_LC: x1.append(cond("s_cmp_eq_u32 s18, 0", late))
        if t == SW: (x1 if ENV('SWX', '0') else x0).append(lambda: e("s_setprio 0"))
        unit(0, t, x0); unit(1, t, x1)
    pv(1, 1, 1); k.stamp(4)
    if os.environ.get("FOC") == "clk": k.rstamp(2)
    e("s_mov_b32 s30, 0")
    e(f"s_mov_b32 s32, {fbits(2.0**-60)}"); e(f"s_mov_b32 s33, {fbits(2.0**100)}"); e(f"s_mov_b32 s34, {fbits(2.0**126)}")
    k.label(f"{nm}_scrok")
    e("s_nop 7")
    for i in range(3): e(f"ds_write_b128 v132, {vr(O[1]+4*i,4)} offset:{1024*i}")
    e("s_waitcnt vmcnt(0)"); e("v_cmp_gt_u32 vcc, v131, v135"); e(f"s_cbranch_vccnz {nm}_late")
    k.label(f"{nm}_lok")
    e("s_waitcnt lgkmcnt(0)"); e("s_barrier")
    for i in (2, 0, 1): e(f"ds_read_b128 {vr(SS[0]+4*i,4)}, v133 offset:{1024*i}")
    OO = O[0]
    e("s_waitcnt lgkmcnt(2)")
    for r in range(8, 12): e(f"v_add_f32 v{OO+r}, v{OO+r}, v{SS[0]+r}")
    e("s_waitcnt lgkmcnt(0)")
    for r in range(8): e(f"v_add_f32 v{OO+r}, v{OO+r}, v{SS[0]+r}")
    k.label(f"{nm}_chk")
    e(f"v_mov_b32 v30, v{OO+8}"); e(f"v_mov_b32 v31, v{OO+8}")
    e(f"v_max3_f32 v28, abs(v{OO}), abs(v{OO+1}), abs(v{OO+2})")
    e("v_permlane32_swap_b32 v30, v31")
    e(f"v_max3_f32 v28, abs(v{OO+3}), abs(v{OO+4}), v28")
    e("v_rcp_f32 v30, v31")
    e(f"v_max3_f32 v28, abs(v{OO+5}), abs(v{OO+6}), v28")
    for r in range(12): e(f"v_mul_f32 v{SS[1]+r}, v{OO+r}, v30")
    for r in range(6): e(f"v_cvt_pk_bf16_f32 v{P+r}, v{SS[1]+2*r}, v{SS[1]+2*r+1}")
    e(f"buffer_store_dwordx4 {vr(P,4)}, v39, s[12:15], s51 offen {SC}")
    e("s_mov_b32 exec_hi, 0")
    e(f"buffer_store_dwordx2 {vr(P+4,2)}, v38, s[12:15], s52 offen {SC}")
    e("s_mov_b64 exec, -1")
    for r in range(7, 11, 2): e(f"v_max3_f32 v28, abs(v{OO+r}), abs(v{OO+r+1}), v28")
    e(f"v_max_f32 v28, abs(v{OO+11}), v28")
    e("v_cmp_le_f32 vcc, s32, v31"); e("v_cmp_ge_f32 s[36:37], s33, v31"); e("v_cmp_gt_f32 s[40:41], s34, v28")
    e("s_and_b64 s[36:37], s[36:37], vcc"); e("s_and_b64 s[36:37], s[36:37], s[40:41]")
    e("s_cmp_eq_u64 s[36:37], -1"); e(f"s_cbranch_scc0 {nm}_slow")
    def slowpath():
        k.label(f"{nm}_late")
        e("s_mov_b32 s49, 0")
        k.label(f"{nm}_late1")
        e("s_sleep 8"); late(); e("s_add_u32 s49, s49, 1"); e("s_waitcnt vmcnt(0)")
        e("v_cmp_gt_u32 vcc, v131, v135"); e("s_cmp_ge_u32 s49, 0x20000"); e(f"s_cbranch_scc1 {nm}_lok"); e(f"s_cbranch_vccnz {nm}_late1")
        e(f"s_branch {nm}_lok")
        k.label(f"{nm}_slow")
        e("s_cmp_eq_u32 s30, 0"); e(f"s_cbranch_scc0 {nm}_fin")
        e("s_mov_b32 s30, 1")
        e("s_waitcnt vmcnt(0)")
        NM = O[1]
        e("v_mov_b32 v32, 0xff800000")
        def slowqk(c):
            e(f"buffer_load_dwordx4 {vr(KF[0],4)}, v22, s[12:15], s27 offen {SC}")
            e(f"buffer_load_dwordx2 {vr(KF[0]+4,2)}, v23, s[12:15], s27 offen offset:1024 {SC}")
            e("s_waitcnt vmcnt(0)")
            e(f"v_mfma_f32_32x32x16_bf16 {vr(SS[0],16)}, {vr(KF[0],4)}, {vr(Q[0],4)}, {c}"); e("s_nop 10")
            e(f"v_mfma_f32_32x32x8_bf16 {vr(SS[0],16)}, {vr(KF[0]+4,2)}, {vr(Q[0]+4,2)}, {vr(SS[0],16)}"); e("s_nop 12")
        e(f"s_add_u32 s27, s19, {KVIMG}"); e("s_mov_b32 s31, 0")
        k.label(f"{nm}_mx")
        slowqk("0")
        for r in range(0, 16, 2): e(f"v_max3_f32 v32, v{SS[0]+r}, v{SS[0]+r+1}, v32")
        e("s_add_u32 s27, s27, 2560")
        e("s_add_u32 s31, s31, 1"); e("s_cmp_lt_u32 s31, 64"); e(f"s_cbranch_scc1 {nm}_mx")
        k.allred32("v_max_f32", 32, 33)
        e("v_xor_b32 v32, 0x80000000, v32")
        for r in range(16): e(f"v_mov_b32 v{NM+r}, v32")
        for r in range(16): e(f"v_mov_b32 v{OO+r}, 0")
        for r in range(8): e(f"v_mov_b32 v{VF[0]+r}, v20")
        e(f"s_add_u32 s27, s19, {KVIMG}"); e("s_mov_b32 s31, 0")
        k.label(f"{nm}_sl")
        e("s_mov_b64 exec, s[28:29]")
        e(f"buffer_load_dwordx4 {vr(VF[0],4)}, v21, s[12:15], s27 offen {SC}")
        e(f"buffer_load_dwordx4 {vr(VF[0]+4,4)}, v21, s[12:15], s27 offen offset:640 {SC}")
        e("s_mov_b64 exec, -1")
        slowqk(vr(NM,16))
        for i in range(16): e(f"v_exp_f32 v{SS[0]+i}, v{SS[0]+i}")
        e("s_nop 0")
        for i in range(8): e(f"v_cvt_pk_bf16_f32 v{P+i}, v{SS[0]+2*i}, v{SS[0]+2*i+1}")
        e("s_nop 1")
        pv(0, 0, 0); pv(0, 0, 1)
        e("s_add_u32 s27, s27, 2560")
        e("s_add_u32 s31, s31, 1"); e("s_cmp_lt_u32 s31, 64"); e(f"s_cbranch_scc1 {nm}_sl")
        e("s_nop 12"); e(f"s_branch {nm}_chk")
    k.tail = slowpath
    k.label(f"{nm}_fin")
    k.stamp(5)
    e("v_lshlrev_b32 v3, 4, v1")
    k.vm = []; k.lg = []

def proj_c(k, tag, src, xin, xout, stout, last, cnt_code, word, st0):
    final = False
    e = k.e
    ACC, RESID, A, BF = 24, 44, 76, 156
    NA0 = ENV('PA0', '8')
    ids_rt(k)
    e("s_lshl_b32 s19, s16, 2"); e("s_add_u32 s19, s19, s39")
    e("s_mul_i32 s24, s19, 20480")
    e("s_lshr_b32 s33, s17, 1"); e("s_mul_i32 s33, s33, 5120"); e("s_add_u32 s33, s33, s24")
    e("s_and_b32 s34, s17, 1"); e("s_mul_i32 s35, s34, 3072"); e("s_add_u32 s35, s35, s33")
    e("s_lshl_b32 s36, s34, 9"); e("s_add_u32 s36, s36, s33"); e("s_add_u32 s36, s36, 2048")
    e(f"s_add_u32 s37, s35, {xin}"); e(f"s_add_u32 s38, s36, {xin}")
    e("v_lshrrev_b32 v13, 5, v1"); e("v_lshlrev_b32 v13, 8, v13"); e("v_and_b32 v14, 15, v1"); e("v_lshl_add_u32 v13, v14, 4, v13")
    e("v_bfe_u32 v14, v1, 4, 1"); e("v_lshl_add_u32 v13, v14, 3, v13")
    k.vmop(f"buffer_load_dwordx4 {vr(RESID,4)}, v3, {RS_(xin)}, s37 offen {SC}", "r")
    k.vmop(f"buffer_load_dwordx4 {vr(RESID+4,4)}, v3, {RS_(xin)}, s37 offen offset:1024 {SC}", "r")
    k.vmop(f"buffer_load_dwordx2 {vr(RESID+8,2)}, v13, {RS_(xin)}, s38 offen {SC}", "r")
    e(f"s_add_u32 s24, s24, {src}")
    for i in range(1, 5): e(f"s_add_u32 s{24+i}, s24, {4096*i}")
    e("v_lshrrev_b32 v9, 4, v1"); e("v_add_u32 v12, 61440, v3")
    wait_go(k, tag, word, cnt_code)
    k.stamp(st0)
    def ldA(n): k.vmop(f"buffer_load_dwordx4 {vr(A+4*n,4)}, v3, s[12:15], s{24+n//4} offen offset:{(n%4)*1024} {SC}", f"a{n}")
    for n in range(NA0): ldA(n)
    k.waitvm("r")
    for i in range(10):
        e(f"v_lshlrev_b32 v{ACC+2*i}, 16, v{RESID+i}"); e(f"v_and_b32 v{ACC+2*i+1}, 0xffff0000, v{RESID+i}")
    def rd(n, nf):
        off = n*5120 + nf*1024; b = 3
        if n >= 12: off -= 61440; b = 12
        k.dsop(f"ds_read_b128 {vr(BF+20*(n%2)+4*nf,4)}, v{b} offset:{off}", f"b{n}_{nf}")
    e("s_barrier")
    for n in range(2):
        for nf in range(5): rd(n, nf)
    for n in range(20):
        if n < 2 or n % 2 == 0: k.waitvm(f"a{min(n + (n >= 2), 19)}")
        if n == 0: k.stamp(st0+1)
        for nf in range(5):
            if ENV('PW1', '1'):
                if nf == 0: k.waitlg(f"b{n}_4")
            elif nf in (0, 2, 4): k.waitlg(f"b{n}_{min(nf+1,4)}")
            if n == 12 and nf == 0 and not final: e("s_barrier")
            e(f"v_mfma_f32_16x16x32_bf16 {vr(ACC+4*nf,4)}, {vr(BF+20*(n%2)+4*nf,4)}, {vr(A+4*n,4)}, {vr(ACC+4*nf,4)}")
            if n + 2 < 20: rd(n+2, nf)
            if nf == 0 and n + NA0 < 20: ldA(n + NA0)
    e("s_barrier")
    if last:
        e("s_cmp_eq_u32 s3, 0"); e(f"s_cbranch_scc1 {k.name}_nf")
        e("v_and_b32 v16, 15, v1"); e("v_mul_u32_u24 v16, 1280, v16"); e("v_lshl_add_u32 v17, v9, 3, v16"); e("v_lshl_add_u32 v16, v9, 4, v16")
        e("s_mul_i32 s32, s19, 20480"); e("s_mul_i32 s31, s17, 160"); e("s_add_u32 s32, s32, s31")
        e("s_lshl_b32 s31, s34, 5"); e("s_add_u32 s33, s32, s31"); e("s_xor_b32 s31, s34, 1"); e("s_lshl_b32 s31, s31, 7"); e("s_add_u32 s32, s32, s31")
        FSC = os.environ.get("FSC", "")
        for i in range(10): e(f"v_cvt_pk_bf16_f32 v{RESID+i}, v{ACC+2*i}, v{ACC+2*i+1}")
        e(f"buffer_store_dwordx4 {vr(RESID,4)}, v16, s[60:63], s33 offen {FSC}")
        e(f"buffer_store_dwordx4 {vr(RESID+4,4)}, v16, s[60:63], s33 offen offset:64 {FSC}")
        e(f"buffer_store_dwordx2 {vr(RESID+8,2)}, v17, s[60:63], s32 offen {FSC}")
        k.stamp(st0+2)
        if STAMP: e("s_waitcnt vmcnt(0)")
        k.dump(15, "2")
        e("s_endpgm")
        k.label(f"{k.name}_nf")
    if True:
        e(f"s_add_u32 s37, s35, {xout}"); e(f"s_add_u32 s38, s36, {xout}")
        e("s_lshl_b32 s32, s19, 10"); e("s_lshl_b32 s33, s17, 7"); e("s_add_u32 s32, s32, s33"); e(f"s_add_u32 s32, s32, {stout}")
        e("v_lshlrev_b32 v16, 3, v1")
        for i in range(10): e(f"v_cvt_pk_bf16_f32 v{RESID+i}, v{ACC+2*i}, v{ACC+2*i+1}")
        e(f"buffer_store_dwordx4 {vr(RESID,4)}, v3, {RS_(xout)}, s37 offen {SC}")
        e(f"buffer_store_dwordx4 {vr(RESID+4,4)}, v3, {RS_(xout)}, s37 offen offset:1024 {SC}")
        e(f"buffer_store_dwordx2 {vr(RESID+8,2)}, v13, {RS_(xout)}, s38 offen {SC}")
        e(f"v_add_f32 v18, v{ACC}, v{ACC+1}"); e(f"v_mul_f32 v19, v{ACC}, v{ACC}"); e(f"v_add_f32 v20, v{ACC+2}, v{ACC+3}"); e(f"v_mul_f32 v21, v{ACC+1}, v{ACC+1}")
        e(f"v_fmac_f32 v19, v{ACC+2}, v{ACC+2}"); e(f"v_fmac_f32 v21, v{ACC+3}, v{ACC+3}")
        for i in range(4, 20, 2):
            e(f"v_add_f32 v18, v18, v{ACC+i}"); e(f"v_fmac_f32 v19, v{ACC+i}, v{ACC+i}")
            e(f"v_add_f32 v20, v20, v{ACC+i+1}"); e(f"v_fmac_f32 v21, v{ACC+i+1}, v{ACC+i+1}")
        e("v_add_f32 v18, v18, v20"); e("v_add_f32 v19, v19, v21")
        for sw in ("v_permlane16_swap_b32", "v_permlane32_swap_b32"):
            e("v_mov_b32 v20, v18"); e("v_mov_b32 v21, v19"); e("s_nop 0")
            e(f"{sw} v18, v20"); e(f"{sw} v19, v21"); e("s_nop 0")
            e("v_add_f32 v18, v18, v20"); e("v_add_f32 v19, v19, v21")
        e("s_mov_b64 exec, 0xffff")
        e(f"buffer_store_dwordx2 v[18:19], v16, {RS_(xout)}, s32 offen {SC}")
    k.stamp(st0+2)

def proj_l(k, wimg, nxt, src, sig=None, done=0, last=False):
    e = k.e
    if nxt is not None:
        ids_mt(k)
        e("s_min_u32 s17, s17, 14" if nxt == WA_I else "s_nop 0")
        e("s_mul_i32 s58, s17, 163840"); e("s_add_u32 s58, s58, s45"); e(f"s_add_u32 s58, s58, {nxt}")
    ids_rt(k)
    e("s_mul_i32 s50, s17, 102400"); e("s_add_u32 s50, s50, s45"); e(f"s_add_u32 s50, s50, {wimg}")
    e("s_mul_i32 s51, s16, 81920"); e("s_lshl_b32 s52, s17, 2"); e("s_add_u32 s52, s52, s39"); e("s_mul_i32 s52, s52, 2560"); e("s_add_u32 s51, s51, s52"); e(f"s_add_u32 s51, s51, {src}")
    e("v_min_u32 v21, 39, v1"); e("v_lshlrev_b32 v21, 6, v21")
    w = Wdma(k, 25, 50, "o"); k.vm = []
    T1, T2 = ENV('T1', '0'), ENV('T2', '3')
    if sig:
        signal(k, "s1l", 0, 8, sig)
        ub_prep(k, 0)
    if last: w.rng(0, 6); e("s_barrier"); done = 6
    w.rng(done, 25, T1 if sig else ENV('T4', '0'))
    w2 = Wdma(k, 40, 58)
    if last:
        e("s_cmp_eq_u32 s3, 0"); e(f"s_cbranch_scc1 {k.name}_nl")
        e("s_waitcnt vmcnt(0)"); e("s_barrier"); e("buffer_load_dword v20, v21, s[12:15], s51 offen"); e("s_endpgm")
        k.label(f"{k.name}_nl")
    if sig:
        w2.rng(25, 33, T1)
        e(f"v_mov_b32 v{PV_+3}, {LW}"); e("s_mov_b32 s49, 0")
        k.label(f"{k.name}_a8")
        e(f"ds_read_b32 v{PV_}, v{PV_+3}"); e("s_add_u32 s49, s49, 1"); e("s_waitcnt lgkmcnt(0)"); e(f"v_readfirstlane_b32 s44, v{PV_}")
        e("s_cmp_ge_u32 s49, 0x400000"); e("s_cselect_b32 s44, 8, s44"); e("s_cmp_lt_u32 s44, 8"); e(f"s_cbranch_scc1 {k.name}_a8")
    if nxt is not None: w2.rng(33 if sig else 32, 39, T1 if sig else ENV('T4', '0'))
    if sig: ub_prep(k, 1)
    if last and ENV('WPF', '0'):
        e("v_lshlrev_b32 v22, 7, v1"); e("s_and_b32 s32, s21, 1"); e("s_lshl_b32 s32, s32, 2"); e("s_add_u32 s32, s32, s39"); e("s_lshl_b32 s32, s32, 14")
        e("s_sub_u32 s33, s58, s45"); e("s_add_u32 s33, s33, s32")
        for i in range(2):
            k.vmop(f"buffer_load_dword v23, v22, s[12:15], s33 offen {SC}"); e("s_add_u32 s33, s33, 8192")
            if ENV('WPF', '0') == 2: e("s_waitcnt vmcnt(0)"); k.vm = []
    k.waitvm("o24")
    e("s_barrier")
    if ENV('ATOUCH', '0'):
        k.vmop("buffer_load_dword v20, v21, s[12:15], s51 offen")
    if nxt is not None:
        if not sig: w2.rng(25, 32)
        e("s_barrier")
        w2.rng(0, 15, ENV('T3', '0'))
        e("s_barrier")
        k.waitvm("w14")
        if ENV('LSL', '0'): e(f"s_sleep {ENV('LSL', '0')}")
        w2.rng(15, 25, T2)
    return w2

def stats16(k, s, rstd, mop, mask):
    e = k.e
    e(f"v_add_f32 v{s}, v{s}, v{s+2}"); e(f"v_add_f32 v{s+1}, v{s+1}, v{s+3}")
    k.allred16("v_add_f32", s, s+2); k.allred16("v_add_f32", s+1, s+3)
    k.allred32("v_add_f32", s, s+2); k.allred32("v_add_f32", s+1, s+3)
    stats_finish(k, s, s+1, s+2, rstd, s+3)
    split3(k, s+2, mop, 17, 'm', mask)
def usum(k, u, dst, t=17):
    e = k.e
    e(f"v_add_f32 v{u}, v{u}, v{u+1}"); e(f"v_add_f32 v{u+2}, v{u+2}, v{u+3}"); e(f"v_add_f32 v{u}, v{u}, v{u+2}")
    split3(k, u, dst, t, 'u')
def scale_pack(k, a, sc, dst):
    for r in range(4): k.e(f"v_mul_f32 v{a+r}, v{a+r}, v{sc(r)}")
    for r in range(2): k.e(f"v_cvt_pk_bf16_f32 v{dst+r}, v{a+2*r}, v{a+2*r+1}")
EX = 102400
SOFF = 2*8192 + 7296
UOFF = lambda F: (F//4)*8192 + 7168 + (F%4)*256 + 128
TOKF = (0, 1, 2, 3, 6); FEAF = (4, 5, 7)

UO = 3456
def ub_prep(k, part):
    e = k.e
    if part:
        k.waitvm("up")
        for j_ in range(5): e(f"v_add_f32 v{64+j_}, v{64+j_}, v{69+j_}")
        e("v_add_f32 v64, v64, v65"); e("v_add_f32 v66, v66, v67"); e("v_add_f32 v64, v64, v68"); e("v_add_f32 v64, v64, v66")
        k.allred32("v_add_f32", 64, 65); split3(k, 64, 28, 17, 'u')
        return
    e("v_lshrrev_b32 v6, 5, v1"); e("v_and_b32 v5, 31, v1"); e("s_lshr_b32 s30, s21, 1")
    e("v_mul_u32_u24 v12, 5120, v6"); e("v_lshl_add_u32 v12, v5, 2, v12")
    e("s_mul_i32 s30, s30, 10240"); e("s_lshl_b32 s31, s39, 7"); e("s_add_u32 s30, s30, s31"); e(f"s_add_u32 s30, s30, {U_B}"); e("s_add_u32 s31, s30, 2560")
    for j_ in range(10): k.vmop(f"buffer_load_dword v{64+j_}, v12, s[12:15], s{30+j_//5} offen offset:{512*(j_%5)}", "up")
    e("v_bfe_u32 v6, v1, 4, 1"); e("v_lshlrev_b32 v46, 9, v6"); e("v_and_b32 v5, 15, v1"); e("v_lshl_add_u32 v46, v5, 3, v46")
    e("s_lshl_b32 s30, s39, 12"); e("v_add_u32 v46, s30, v46")

def atouch_pre(k, xin):
    e = k.e
    e("s_mul_i32 s51, s16, 163840"); e("s_lshl_b32 s52, s17, 2"); e("s_add_u32 s52, s52, s39"); e("s_mul_i32 s52, s52, 2560"); e("s_add_u32 s51, s51, s52"); e(f"s_add_u32 s51, s51, {xin}")
    e("v_min_u32 v21, 39, v1"); e("v_lshlrev_b32 v21, 6, v21")

G_ACC, G_BF, G_AR, G_DA = 64, 128, 160, 5
def gemm32_pre(k, xin, stin):
    e = k.e
    e("v_and_b32 v10, 31, v1"); e("v_lshrrev_b32 v4, 5, v1"); e("v_and_b32 v5, 15, v1")
    e("s_lshl_b32 s19, s16, 2"); e("s_add_u32 s19, s19, s18")
    e("v_bfe_u32 v7, v1, 4, 1"); e("v_mul_u32_u24 v8, 20480, v7"); e("v_lshl_add_u32 v8, v4, 8, v8"); e("v_lshl_add_u32 v8, v5, 4, v8")
    e("v_lshlrev_b32 v11, 10, v7"); e("v_lshl_add_u32 v11, v4, 9, v11"); e("v_lshl_add_u32 v11, v5, 3, v11")
    e("s_lshl_b32 s30, s19, 11"); e(f"s_add_u32 s30, s30, {stin}")
    e("s_mul_i32 s24, s19, 40960"); e(f"s_add_u32 s24, s24, {xin}")
    e("v_add_u32 v41, 65536, v3"); e("v_add_u32 v42, 131072, v3")
    e("v_subrev_u32 v58, 1, v4"); e("v_not_b32 v59, v58")
def gemm32_loads(k, R):
    e = k.e
    def ldA(ks):
        if ks % 4 == 0 and ks > 0: e("s_add_u32 s24, s24, 4096")
        for u in range(2):
            k.vmop(f"buffer_load_dwordx4 {vr(G_AR+8*(ks%G_DA)+4*u,4)}, v8, {R}, s24 offen offset:{(ks%4)*1024+512*u} {SC}", f"a{ks}")
    ldA(0)
    for q in range(4): k.vmop(f"buffer_load_dwordx2 {vr(16+2*q,2)}, v11, {R}, s30 offen offset:{128*q} {SC}", "st")
    for ks in range(1, G_DA-1): ldA(ks)
    return ldA
def gemm32_stats(k):
    e = k.e
    k.waitvm("st")
    e("v_add_f32 v16, v16, v18"); e("v_add_f32 v17, v17, v19"); e("v_add_f32 v20, v20, v22"); e("v_add_f32 v21, v21, v23")
    e("v_add_f32 v16, v16, v20"); e("v_add_f32 v17, v17, v21")
    k.allred32("v_add_f32", 16, 18); k.allred32("v_add_f32", 17, 18)
    stats_finish(k, 16, 17, 46, 47, 18)
    split3(k, 46, 48, 18, 'm', 58)
TN = 4
def gemm32(k, vmode, fl, ldA, bars, st0, late=None):
    e = k.e; ACC, BF, AR, DA = G_ACC, G_BF, G_AR, G_DA
    acc = lambda jf: vr(ACC+16*jf, 16)
    ops = [(ks, f//4, f%4) for ks in range(20-TN) for f in range(8)] + [(ks, u, jf) for jf in range(4) for ks in range(20-TN, 20) for u in range(2)]
    def rd(i):
        ks, u, jf = ops[i]; off = ks*8192 + 1024*(4*u+jf); hi = off >> 16
        k.dsop(f"ds_read_b128 {vr(BF+4*(i%8),4)}, v{(3,41,42)[hi]} offset:{off & 0xffff}", f"b{i}")
    def mm(i):
        ks, u, jf = ops[i]
        if i % 2 == 0: k.waitlg(f"b{i+1}")
        a = vr(AR+8*(ks%DA)+4*u, 4); b = vr(BF+4*(i%8), 4); c = acc(jf) if (ks or u) else "0"
        if vmode: e(f"v_mfma_f32_32x32x16_bf16 {acc(jf)}, {a}, {b}, {c}")
        else:     e(f"v_mfma_f32_32x32x16_bf16 {acc(jf)}, {b}, {a}, {c}")
        if i + 8 < 160: rd(i + 8)
    e("s_barrier")
    for i in range(8): rd(i)
    for ks in range(20-TN):
        k.waitvm(f"a{ks}")
        if ks == 0: k.stamp(st0+1)
        if ks in bars: e("s_barrier")
        if late and ks == late[0]: k.fill(fl, 1000); fl += late[1]
        for f in range(8):
            mm(8*ks + f)
            if f == 0 and ks + DA - 1 < 20: ldA(ks + DA - 1)
            if ks >= 1: k.fill(fl, 2)
    k.fill(fl, 1000)
    for jf in range(4):
        if vmode: e(f"v_mfma_f32_32x32x8_bf16 {acc(jf)}, v[48:49], {vr(50+2*jf,2)}, {acc(jf)}")
        else:     e(f"v_mfma_f32_32x32x8_bf16 {acc(jf)}, {vr(50+2*jf,2)}, v[48:49], {acc(jf)}")
    def tail(epi, tbars=(), end=None):
        pend = []
        for jf in range(4):
            if jf in tbars: e("s_barrier")
            for n in range(2*TN):
                i = 8*(20-TN) + 2*TN*jf + n
                if n % 2 == 0: k.waitvm(f"a{ops[i][0]}")
                mm(i)
                if n >= 2: k.fill(pend, ENV('TFILL', '5'))
            k.fill(pend, 1000)
            if jf == 3:
                k.stamp(st0+2)
                if end: end()
            pend = k.capture(lambda: epi(jf))
        k.fill(pend, 1000)
    return tail

TB, TS = 88448, 296
def toff(G): return (0, 64, 128, 168, 208, 248)[G//5] + 8*(G%5)

def qkvb_c(k, xin, stin, st0):
    e = k.e; nm = k.name
    ACC, BF = G_ACC, G_BF
    ids_mt(k); gemm32_pre(k, xin, stin)
    e("v_lshrrev_b32 v6, 4, v1")
    MC, MP, MP1 = 200, 204, 208
    NEG = fbits(-1e30)
    e("v_lshlrev_b32 v17, 2, v6"); e("v_sub_u32 v17, v5, v17"); e(f"v_mov_b32 v19, {NEG}")
    for r in range(4):
        e(f"v_subrev_u32 v18, {r}, v17"); e("v_and_b32 v16, 0x80000001, v18")
        e("v_cmp_eq_u32 vcc, 0, v16"); e(f"v_cndmask_b32 v{MC+r}, v19, 0, vcc")
        e("v_cmp_eq_u32 vcc, 0x80000000, v16"); e(f"v_cndmask_b32 v{MP+r}, v19, 0, vcc")
    e("s_cmp_eq_u32 s19, 0"); e(f"s_cselect_b32 s34, {NEG}, 0")
    for r in range(4): e(f"v_add_f32 v{MP1+r}, s34, v{MP+r}")
    e(f"s_mul_i32 s35, s18, {32*TS}"); e(f"s_add_u32 s35, s35, {TB}")
    e(f"v_mul_u32_u24 v16, {TS}, v10"); e("v_add_u32 v16, s35, v16"); e(f"v_add_u32 v16, {16*TS}, v16")
    e("v_lshl_add_u32 v212, v4, 3, v16"); e("v_lshl_add_u32 v213, v4, 5, v16"); e("v_mov_b32 v219, v16")
    e("v_lshl_add_u32 v215, v4, 6, v16")
    e(f"v_mul_u32_u24 v16, {TS}, v5"); e("v_add_u32 v16, s35, v16"); e("v_lshl_add_u32 v216, v6, 4, v16")
    e("v_lshrrev_b32 v17, 2, v1"); e(f"v_mul_u32_u24 v16, {TS}, v17"); e("v_add_u32 v16, s35, v16"); e("v_and_b32 v17, 3, v1")
    e("v_lshl_add_u32 v217, v17, 3, v16")
    e("v_mul_u32_u24 v18, 40, v17"); e("v_add_u32 v18, 240, v18"); e("v_cmp_gt_u32 vcc, 2, v17"); e("v_mov_b32 v19, 288"); e("v_cndmask_b32 v18, v19, v18, vcc"); e("v_add_u32 v218, v16, v18")
    e("v_lshlrev_b32 v43, 9, v7"); e("v_lshl_add_u32 v43, v5, 3, v43")
    e("v_mov_b32 v220, 0"); e("v_mov_b32 v221, 0"); e("v_mov_b32 v222, 0x3f803f80"); e("v_mov_b32 v223, 0x3f803f80")
    e("s_mul_i32 s25, s19, 40960"); e(f"s_add_u32 s25, s25, {OBT}")
    e("s_lshl_b32 s51, s17, 10"); e("s_add_u32 s51, s51, s25"); e("s_add_u32 s52, s51, 20480")
    e("s_lshr_b32 s53, s17, 2"); e("s_add_u32 s53, s53, 16"); e("s_lshl_b32 s53, s53, 10"); e("s_add_u32 s53, s53, s25")
    e("s_and_b32 s54, s17, 1"); e("s_lshl_b32 s54, s54, 9"); e("s_add_u32 s53, s53, s54")
    e("s_bfe_u32 s54, s17, 0x10001"); e("s_lshl_b32 s54, s54, 3"); e("s_add_u32 s53, s53, s54"); e("s_add_u32 s54, s53, 20480")
    def c2():
        e("s_lshl_b32 s48, s16, 9"); e(f"s_add_u32 s48, s48, {C2}")
        e(f"v_lshlrev_b32 v{PV_+1}, 8, v1"); e(f"v_lshlrev_b32 v{PV_+2}, 3, v1"); e(f"v_sub_u32 v{PV_+2}, 16, v{PV_+2}")
        e("s_cmp_eq_u32 s16, 0"); e("s_cselect_b64 s[56:57], 1, 3")
    e("s_cmp_eq_u32 s18, 1"); e(f"s_cbranch_scc0 {nm}_ad"); e("v_lshlrev_b32 v16, 8, v1"); e("s_mov_b32 s49, 0")
    k.label(f"{nm}_ap")
    e(f"buffer_load_dword v17, v16, s[8:11], 0 offen offset:{C1} {SC}"); e("s_add_u32 s49, s49, 1"); e("s_waitcnt vmcnt(0)")
    e("v_cmp_gt_u32 vcc, 16, v17"); e("s_cmp_ge_u32 s49, 0x20000"); e(f"s_cbranch_scc1 {nm}_ad"); e(f"s_cbranch_vccnz {nm}_ap")
    k.label(f"{nm}_ad")
    wait_go(k, "p3", 1, c2)
    k.stamp(st0)
    ldA = gemm32_loads(k, RS_(xin))
    fl = k.capture(lambda: (gemm32_stats(k), e(f"v_mul_f32 v45, {fbits(CSCALE)}, v47")))
    def uops():
        for jf in range(4): k.dsop(f"ds_read_b64 {vr(50+2*jf,2)}, v43 offset:{UO+4096*jf}", "uo")
    tail = gemm32(k, False, fl, ldA, {6}, st0, (8, k.capture(uops)))
    def tab(jf):
        if jf == 0:
            for q in range(3): k.dsop(f"ds_write_b64 v215, v[220:221] offset:{40+8*q}")
            k.dsop("ds_write_b64 v219, v[222:223] offset:288")
        for G in range(8*jf, min(8*jf+8, 30), 2):
            a = ACC + 2*G
            for r in range(4): e(f"v_mul_f32 v{a+r}, v{a+r}, v{45 if G < 10 else 47}")
            for r in range(2): e(f"v_cvt_pk_bf16_f32 v{a+r}, v{a+2*r}, v{a+2*r+1}")
            k.dsop(f"ds_write_b64 v{ {8: 212, 32: 213}[toff(G+1) - toff(G)] }, {vr(a,2)} offset:{toff(G)}")
    def words():
        e("s_cmp_eq_u32 s18, 0"); e(f"s_cbranch_scc0 {nm}_ni"); lw_init(k); k.label(f"{nm}_ni")
    tail(tab, (0, 2), words)
    e("s_waitcnt lgkmcnt(0)"); e("s_barrier")
    KO = lambda b, h: 160 + 8*b + 4*h
    QO = lambda b, h: 184 + 8*(b-1) + 4*h
    VO = lambda F, b: 20 + 8*FEAF.index(F) + 2*b if False else 224 + 6*FEAF.index(F) + 2*b - (0)
    VO = lambda F, b: (128, 136, 144)[FEAF.index(F)] + 2*b
    for b in (1, 2):
        for h in range(2):
            for x in range(2): e(f"ds_read_b64 {vr(QO(b,h)+2*x,2)}, v216 offset:{16*b*TS+64*h+8*x}")
    for b in range(3):
        for h in range(2):
            for x in range(2): e(f"ds_read_b64 {vr(KO(b,h)+2*x,2)}, v216 offset:{16*b*TS+128+40*h+8*x}")
    e("s_waitcnt lgkmcnt(0)")
    for b in range(3):
        for h in range(2): e(f"ds_read_b64_tr_b16 {vr(VO(4+h,b),2)}, v217 offset:{16*b*TS+208+40*h}")
        e(f"ds_read_b64_tr_b16 {vr(VO(7,b),2)}, v218 offset:{16*b*TS}")
    units = [(b, h) for b in (1, 2) for h in range(2)]
    SU = lambda i: 64 + 8*i
    TU = lambda i: ACC + 32 + 4*i
    PU = lambda i: ACC + 48 + 4*i
    OU = lambda i: 64 + 8*i
    for i, (b, h) in enumerate(units):
        e(f"v_mfma_f32_16x16x32_bf16 {vr(SU(i),4)}, {vr(KO(b-1,h),4)}, {vr(QO(b,h),4)}, {vr(MP1 if b == 1 else MP,4)}")
        e(f"v_mfma_f32_16x16x32_bf16 {vr(SU(i)+4,4)}, {vr(KO(b,h),4)}, {vr(QO(b,h),4)}, {vr(MC,4)}")
    e("s_waitcnt lgkmcnt(0)"); e("s_barrier")
    def allred(op):
        for sw in ("v_permlane16_swap_b32", "v_permlane32_swap_b32"):
            for i in range(4): e(f"v_mov_b32 v{TU(i)+1}, v{TU(i)}")
            for i in range(4): e(f"{sw} v{TU(i)}, v{TU(i)+1}")
            for i in range(4): e(f"{op} v{TU(i)}, v{TU(i)}, v{TU(i)+1}")
    for i in range(4):
        s = SU(i)
        e(f"v_max3_f32 v{TU(i)}, v{s}, v{s+1}, v{s+2}"); e(f"v_max3_f32 v{TU(i)}, v{s+3}, v{s+4}, v{TU(i)}")
        e(f"v_max3_f32 v{TU(i)}, v{s+5}, v{s+6}, v{TU(i)}"); e(f"v_max_f32 v{TU(i)}, v{s+7}, v{TU(i)}")
    allred("v_max_f32")
    for i in range(4):
        for r in range(8): e(f"v_sub_f32 v{SU(i)+r}, v{SU(i)+r}, v{TU(i)}")
    for i in range(4):
        for r in range(8): e(f"v_exp_f32 v{SU(i)+r}, v{SU(i)+r}")
    for i in range(4):
        for r in range(4): e(f"v_cvt_pk_bf16_f32 v{PU(i)+r}, v{SU(i)+2*r}, v{SU(i)+2*r+1}")
    for i, (b, h) in enumerate(units):
        e(f"v_mfma_f32_16x16x32_bf16 {vr(OU(i)+4,4)}, {vr(VO(7,b-1),4)}, {vr(PU(i),4)}, 0")
    for i, (b, h) in enumerate(units):
        e(f"v_mfma_f32_16x16x32_bf16 {vr(OU(i),4)}, {vr(VO(4+h,b-1),4)}, {vr(PU(i),4)}, 0")
    for i in range(4): e(f"v_mov_b32 v{TU(i)}, v{OU(i)+4}"); e(f"v_mov_b32 v{TU(i)+1}, v{OU(i)+4}")
    for i in range(4): e(f"v_permlane32_swap_b32 v{TU(i)}, v{TU(i)+1}")
    for i in range(4): e(f"v_rcp_f32 v{TU(i)+1}, v{TU(i)+1}")
    e("v_cmp_eq_u32 vcc, 0, v6")
    for bi in range(2):
        o0, o1 = OU(2*bi), OU(2*bi+1); d = 40 + 8*bi; t0, t1 = TU(2*bi)+1, TU(2*bi+1)+1
        for r in range(4): e(f"v_mul_f32 v{o0+r}, v{o0+r}, v{t0}"); e(f"v_mul_f32 v{o1+r}, v{o1+r}, v{t1}")
        e(f"v_cvt_pk_bf16_f32 v{d}, v{o0}, v{o0+1}"); e(f"v_cvt_pk_bf16_f32 v{d+1}, v{o0+2}, v{o0+3}")
        e(f"v_cvt_pk_bf16_f32 v{d+2}, v{o1}, v{o1+1}"); e(f"v_cvt_pk_bf16_f32 v{d+3}, v{o1+2}, v{o1+3}")
        e(f"buffer_store_dwordx4 {vr(d,4)}, v3, s[12:15], s{51+bi} offen {SC}")
        e(f"v_cndmask_b32 v{t0}, v{t1}, v{t0}, vcc")
        for r in range(4): e(f"v_cndmask_b32 v{o0+4+r}, v{o1+4+r}, v{o0+4+r}, vcc")
        for r in range(4): e(f"v_mul_f32 v{o0+4+r}, v{o0+4+r}, v{t0}")
        e(f"v_cvt_pk_bf16_f32 v{d+4}, v{o0+4}, v{o0+5}"); e(f"v_cvt_pk_bf16_f32 v{d+5}, v{o0+6}, v{o0+7}")
    e("s_mov_b32 exec_hi, 0")
    for bi in range(2): e(f"buffer_store_dwordx2 {vr(44+8*bi,2)}, v3, s[12:15], s{53+bi} offen {SC}")

def qkvb_l(k, xin, stin, w):
    e = k.e; nm = k.name
    ids_mt(k)
    e("v_and_b32 v5, 15, v1"); e("v_lshrrev_b32 v6, 4, v1")
    e("v_lshlrev_b32 v11, 3, v5"); e("v_lshl_add_u32 v11, v6, 8, v11")
    e("v_cmp_eq_u32 vcc, 0, v6"); e("s_lshl_b32 s22, s16, 3"); e("s_max_u32 s22, s22, 1"); e("v_cndmask_b32 v4, 0, -1, vcc")
    e("s_sub_u32 s22, s22, 1")
    e("s_mul_i32 s24, s22, 20480"); e(f"s_add_u32 s24, s24, {xin}"); e("s_add_u32 s24, s24, s45")
    e("s_lshl_b32 s27, s22, 10"); e(f"s_add_u32 s27, s27, {stin}")
    HP = 49152
    e("v_lshrrev_b32 v12, 1, v6"); e("v_lshlrev_b32 v40, 12, v12"); e("v_and_b32 v12, 1, v6"); e("v_lshl_add_u32 v40, v12, 9, v40"); e("v_lshl_add_u32 v40, v5, 4, v40")
    e("s_lshl_b32 s32, s39, 13"); e("v_add_u32 v40, s32, v40"); e("v_add_u32 v41, 65536, v40"); e("v_add_u32 v42, 131072, v40")
    e("s_mul_i32 s33, s39, 6144"); e(f"s_add_u32 s33, s33, {HP}"); e("v_add_u32 v43, s33, v3")
    e("s_min_u32 s40, s39, 2"); e("s_lshl_b32 s41, s40, 11"); e(f"s_add_u32 s41, s41, {HP}"); e("v_add_u32 v44, s41, v3")
    e("s_lshl_b32 s41, s40, 12"); e("v_lshlrev_b32 v45, 3, v5"); e("v_add_u32 v45, s41, v45")
    e(f"v_mul_u32_u24 v12, {TS}, v5"); e(f"v_add_u32 v12, {TB}, v12"); e("s_lshl_b32 s41, s40, 3"); e("s_sub_u32 s41, s41, 2")
    for x in range(2):
        e(f"v_add_u32 v13, s41, v6")
        if x: e("v_add_u32 v13, 4, v13")
        e("v_add_u32 v14, 16, v13")
        e("v_cmp_gt_u32 vcc, 20, v13"); e("v_cndmask_b32 v14, 0, v14, vcc"); e(f"v_lshl_add_u32 v{50+x}, v14, 3, v12")
    e("v_mov_b32 v47, v12"); e("v_mov_b32 v56, 0x3f803f80"); e("v_mov_b32 v57, 0x3f803f80")
    atouch_pre(k, xin)
    e(f"s_setprio {ENV('P3PRIO', '0')}")
    e("s_barrier")
    if ENV('ATOUCH', '0'): k.vmop("buffer_load_dword v20, v21, s[12:15], s51 offen")
    w.one(39)
    e(f"ds_write_b64 v46, v[28:29] offset:{UO}")
    for q_ in range(2): k.vmop(f"buffer_load_dwordx2 {vr(24+2*q_,2)}, v11, s[12:15], s27 offen offset:{128*q_} {SC}", "st")
    for i in range(5):
        k.vmop(f"buffer_load_dwordx4 {vr(128+4*i,4)}, v3, s[12:15], s24 offen {SC}", f"h{i}")
        if i < 4: e("s_add_u32 s24, s24, 4096")
    k.waitvm("st")
    stats16(k, 24, 48, 52, 4)
    e("s_waitcnt lgkmcnt(0)"); e("s_barrier")
    def rd(n):
        i, j = n // 6, 2 + n % 6
        k.dsop(f"ds_read_b128 {vr(96+4*(n%6),4)}, v{40+i//2} offset:{(i%2)*32768+1024*(j//2)+256*(j%2)}", f"r{n}")
    for n in range(6): rd(n)
    for x in range(2): k.dsop(f"ds_read_b64 {vr(20+2*x,2)}, v45 offset:{UO+4096+512*x}", "u")
    for n in range(30):
        i = n // 6
        if n % 6 == 0: k.waitvm(f"h{i}")
        k.waitlg(f"r{n}")
        c = vr(148+4*(n%6), 4)
        e(f"v_mfma_f32_16x16x32_bf16 {c}, {vr(96+4*(n%6),4)}, {vr(128+4*i,4)}, {c if i else 0}")
        if n + 6 < 30: rd(n + 6)
    e("s_barrier")
    for n in range(6): e(f"ds_write_b128 v43, {vr(148+4*n,4)} offset:{1024*n}")
    e("s_waitcnt lgkmcnt(0)"); e("s_barrier")
    for p_ in range(4):
        for x in range(2): e(f"ds_read_b128 {vr(96+8*p_+4*x,4)}, v44 offset:{6144*p_+1024*x}")
    e("s_waitcnt lgkmcnt(0)")
    for r in range(8):
        e(f"v_add_f32 v{96+r}, v{96+r}, v{104+r}"); e(f"v_add_f32 v{112+r}, v{112+r}, v{120+r}"); e(f"v_add_f32 v{80+r}, v{96+r}, v{112+r}")
    for x in range(2): e(f"v_mfma_f32_16x16x16_bf16 {vr(80+4*x,4)}, {vr(20+2*x,2)}, v[52:53], {vr(80+4*x,4)}")
    for x in range(2): scale_pack(k, 80+4*x, lambda r: 48, 88+2*x)
    for x in range(2): e(f"ds_write_b64 v{50+x}, {vr(88+2*x,2)}")
    e("ds_write_b64 v47, v[56:57] offset:288")
    e(f"s_setprio {ENV('LPRIO', '2')}")
    e("s_waitcnt lgkmcnt(0)"); e("s_barrier")
    k.vm = []; k.lg = []

def one(k, target):
    k.e(f"v_mov_b32 v{PV_+1}, 0"); k.e(f"v_mov_b32 v{PV_+2}, {target}"); k.e("s_mov_b64 s[56:57], 1")

def kvpos(k):
    k.e("s_and_b32 s36, s19, 31"); k.e("s_lshl_b32 s36, s36, 1"); k.e("s_lshr_b32 s34, s19, 5"); k.e("s_add_u32 s36, s36, s34")
    k.e("s_add_u32 s36, s36, 44"); k.e("s_and_b32 s36, s36, 63")
def addr_v(k, img):
    e = k.e
    e("s_sub_u32 s35, s17, 10"); e("s_lshl_b32 s35, s35, 7")
    kvpos(k); e("s_mul_i32 s36, s36, 2560"); e(f"s_add_u32 s33, s36, {img+KVIMG+1280}")
    e("v_mul_u32_u24 v20, 320, v4")
    for jf in range(4):
        e(f"v_add_u32 v16, s35, v10")
        if jf: e(f"v_add_u32 v16, {32*jf}, v16")
        e("v_mul_u32_u24 v17, 52429, v16"); e("v_lshrrev_b32 v17, 20, v17")
        e("v_mul_u32_u24 v18, 20, v17"); e("v_sub_u32 v18, v16, v18")
        e("v_mul_u32_u24 v17, 163840, v17"); e("v_lshl_add_u32 v17, v18, 4, v17")
        e(f"v_add_u32 v{24+jf}, v17, v20")
def addr_qk(k, img, xm=52):
    e = k.e; k.xm = xm
    e("s_cmp_ge_u32 s17, 5")
    e(f"s_cselect_b32 s33, {QI}, 0"); e(f"s_cselect_b32 s59, 1.0, {fbits(CSCALE)}"); e("s_cselect_b32 s35, 5, 0"); e("s_cselect_b32 s37, 1, 0")
    e(f"s_add_u32 s33, s33, {img+QIMG}")
    e("s_sub_u32 s35, s17, s35")
    kvpos(k); e("s_cmp_eq_u32 s37, 0"); e("s_cselect_b32 s36, s19, s36")
    e("s_mul_i32 s36, s36, 1280"); e("s_lshl_b32 s36, s36, s37"); e("s_add_u32 s33, s33, s36")
    e("s_lshl_b32 s34, 81920, s37")
    e("v_lshlrev_b32 v16, 4, v10"); e("v_lshlrev_b32 v17, 3, v10")
    e("v_lshl_add_u32 v18, v4, 9, v16")
    e("s_sub_u32 s36, s34, 512"); e("v_and_b32 v19, s36, v59"); e("v_add_u32 v19, v19, v16")
    e(f"s_mov_b32 s{xm}, -1"); e(f"s_mov_b32 s{xm+1}, 0"); e(f"s_mov_b32 s{xm+2}, 0"); e(f"s_mov_b32 s{xm+3}, -1")
def epi_qk1(k, v, jf):
    e = k.e; A = G_ACC + 16*jf
    QSC = os.environ.get("QSC", "sc1")
    for r in range(16): e(f"v_mul_f32 v{A+r}, v{A+r}, v47")
    for r in range(8): e(f"v_cvt_pk_bf16_f32 v{A+r}, v{A+2*r}, v{A+2*r+1}")
    for a2 in range(2):
        x = A + 4*a2
        e(f"v_permlane32_swap_b32 v{x}, v{x+2}"); e(f"v_permlane32_swap_b32 v{x+1}, v{x+3}")
    for a2 in range(2):
        x = A + 4*a2
        G = [32*v+8*jf+4*a2, 32*v+8*jf+4*a2+2]
        def main(g):
            h = g // 5; r = g % 5
            return h, (r // 2 if h % 2 == 0 else (r - 1) // 2)
        st = [g % 10 == 4 for g in G]
        def hoff(dst, h):
            if not h: return 33
            e(f"s_mul_i32 s{dst}, s34, {h}"); e(f"s_add_u32 s{dst}, s{dst}, s33"); return dst
        if not any(st):
            (h0, p0), (h1, p1) = main(G[0]), main(G[1])
            assert (h0 == h1 and (p0, p1) == (0, 1)) or (h1 == h0 + 1 and (p0, p1) == (1, 0))
            e(f"buffer_store_dwordx4 {vr(x,4)}, v{18 if h0 == h1 else 19}, {k.srdo}, s{hoff(36, h0)} offen offset:{512*p0} {QSC}")
        else:
            m = st.index(False); q = 1 - m
            h, p = main(G[m]); s0 = hoff(36, h); s1 = hoff(37, G[q] // 5); e(f"s_add_u32 s38, s{s1}, s34")
            e(f"s_mov_b64 exec, s[{k.xm+2*m}:{k.xm+1+2*m}]")
            e(f"buffer_store_dwordx4 {vr(x,4)}, v16, {k.srdo}, s{s0} offen offset:{512*p} {QSC}")
            e(f"s_mov_b64 exec, s[{k.xm+2*q}:{k.xm+1+2*q}]")
            e(f"buffer_store_dwordx2 {vr(x,2)}, v17, {k.srdo}, s{s1} offen offset:1024 {QSC}")
            e(f"buffer_store_dwordx2 {vr(x+2,2)}, v17, {k.srdo}, s38 offen offset:1024 {QSC}")
            e("s_mov_b64 exec, -1")
def epi_v1(k, jf, RS):
    e = k.e; A = G_ACC + 16*jf
    for r in range(16): e(f"v_mul_f32 v{A+r}, v{A+r}, v{RS+r}")
    for r in range(8): e(f"v_cvt_pk_bf16_f32 v{A+r}, v{A+2*r}, v{A+2*r+1}")
    for u in range(2): e(f"buffer_store_dwordx4 {vr(A+4*u,4)}, v{24+jf}, {k.srdo}, s33 offen offset:{640*u} {os.environ.get('VSC', 'sc1')}")
def dispatch5(k, body):
    e = k.e; nm = k.name + k.ptag
    for v in range(1, 5):
        e(f"s_cmp_eq_u32 s35, {v}"); e(f"s_cbranch_scc1 {nm}_e{v}")
    vm, lg = list(k.vm), list(k.lg)
    for v in range(5):
        if v: k.label(f"{nm}_e{v}")
        k.vm, k.lg = list(vm), list(lg)
        body(v); e(f"s_branch {nm}_fin5")
def epi_qk(k, ACC, BF):
    dispatch5(k, lambda v: (k.e("s_nop 7"), [epi_qk1(k, v, jf) for jf in range(4)]))
def epi_v(k, ACC, BF, RS):
    for jf in range(4): epi_v1(k, jf, RS)

def qkva_c(k, xin, stin, img, cnt, wbar, st0):
    k.ptag = '_p5'; k.srdo = 's[12:15]'
    e = k.e; nm = k.name + k.ptag
    DA = 5
    ACC, BF, AR, RS = 64, 128, 160, 200
    gemm32_pre(k, xin, stin)
    e("v_lshlrev_b32 v12, 4, v10")
    e("s_lshl_b32 s31, s17, 11"); e(f"s_add_u32 s31, s31, {U_A}")
    for jf in range(4): k.vmop(f"buffer_load_dwordx4 {vr(24+4*jf,4)}, v12, s[12:15], s31 offen offset:{512*jf}", "u")
    def c4(): one(k, 16); e("s_lshl_b32 s48, s16, 8"); e(f"s_add_u32 s48, s48, {cnt}")
    wait_go(k, "p5", 1, c4)
    k.stamp(st0)
    ldA = gemm32_loads(k, RS_(xin))
    def prolog(vmode):
        gemm32_stats(k)
        for jf in range(4): usum(k, 24+4*jf, 50+2*jf, 18)
        if vmode:
            e("v_lshlrev_b32 v16, 4, v4")
            for r in range(16):
                e(f"v_add_u32 v17, {(8*(r//4) + r%4)*4}, v16")
                k.dsop(f"ds_bpermute_b32 v{RS+r}, v17, v47", "rs")
            addr_v(k, img)
        else:
            addr_qk(k, img); e("v_mul_f32 v47, s59, v47")
    e("s_cmp_ge_u32 s17, 10"); e(f"s_cbranch_scc1 {nm}_qv")
    vm_save = list(k.vm)
    l5a = lambda: e("s_barrier")
    tail = gemm32(k, False, k.capture(lambda: prolog(False)), ldA, {w_ - 1 for w_ in wbar}, st0)
    dispatch5(k, lambda v: tail(lambda jf: epi_qk1(k, v, jf), (), l5a))
    k.label(f"{nm}_qv"); k.vm = vm_save; k.lg = []
    tail = gemm32(k, True, k.capture(lambda: prolog(True)), ldA, {w_ - 1 for w_ in wbar}, st0)
    tail(lambda jf: epi_v1(k, jf, RS), (), l5a)
    k.label(f"{nm}_fin5")

def ph_front(k):
    k.ptag = "_f"; k.srdo = "s[12:15]"
    e = k.e; nm = k.name + k.ptag; kn = k.name
    R, DEP, SCRB, UT = 4, 2, 131072, 65536
    need = lambda ks: ks // 2
    slot = lambda st: (st % R) * 32768
    e("s_cmp_ge_u32 s2, 256"); e(f"s_cbranch_scc1 {kn}_end"); k.stamp(0); k.rstamp(1)
    e("s_load_dwordx4 s[60:63], s[0:1], 0"); e("s_load_dwordx2 s[6:7], s[0:1], 64")
    e("s_load_dwordx2 s[4:5], s[0:1], 56")
    e("s_and_b32 s20, s2, 7"); e("s_lshr_b32 s21, s2, 3")
    e("v_lshrrev_b32 v2, 6, v0"); e("v_and_b32 v1, 63, v0")
    e("v_readfirstlane_b32 s18, v2")
    e("s_and_b32 s39, s18, 3"); e("s_lshl_b32 s45, s39, 10")
    ids_mt(k)
    e("v_lshlrev_b32 v3, 4, v1"); e(f"v_lshlrev_b32 v9, {ENV('BST', '6')}, v1")
    e("s_lshl_b32 s22, s2, 2"); e("s_add_u32 s22, s22, s39"); e("s_mul_i32 s23, s22, 2400")
    if ENV('XLOC', '1'): e("s_lshl_b32 s22, s20, 5"); e("s_add_u32 s22, s22, s21"); e("s_lshl_b32 s22, s22, 2"); e("s_add_u32 s22, s22, s39")
    e("s_mul_i32 s22, s22, 2560")
    def kwait():
        e("s_waitcnt lgkmcnt(0)")
        k.stamp(2)
        k.srd(8, 60, S*D*2); k.srd(28, 62, D*3*D*2); k.srd(12, 6, WS_END)
    def burst():
        if ENV('BURST', '1'):
            e("s_mov_b32 exec_hi, 0xff" if ENV('BST', '6') == 6 else "s_mov_b64 exec, 0xfffff")
            e(f"buffer_load_dword v240, v9, s[8:11], s22 offen {os.environ.get('XNT', '')}"); e(f"buffer_load_dword v241, v9, s[28:31], s23 offen {os.environ.get('WNT', '')}")
            e("s_mov_b64 exec, -1")
    def codepf(tg):
        if ENV('CPF', '1'):
            e("s_getpc_b64 s[34:35]"); k.label(f"{nm}_pc{tg}")
            e(f"s_sub_u32 s34, s34, {nm}_pc{tg} - {kn}"); e("s_subb_u32 s35, s35, 0")
            e("v_lshlrev_b32 v242, 4, v0"); e("s_lshl_b32 s36, s21, 12"); e("v_add_u32 v242, s36, v242")
            e(f"v_and_b32 v242, 0xffffffc0, v242"); e(f"v_min_u32 v242, code_end - {kn} - 4, v242")
            e("global_load_dword v243, v242, s[34:35]")
    e("s_cmp_ge_u32 s17, 15"); e(f"s_cbranch_scc1 {nm}_ub")
    e("v_and_b32 v10, 31, v1"); e("v_lshrrev_b32 v4, 5, v1"); e("v_and_b32 v5, 15, v1"); e("v_bfe_u32 v7, v1, 4, 1")
    e("v_lshrrev_b32 v13, 2, v5"); e("v_and_b32 v6, 3, v1")
    e("v_lshl_add_u32 v14, v4, 3, v13"); e("v_lshlrev_b32 v14, 8, v14"); e("v_lshl_add_u32 v14, v7, 5, v14"); e("v_lshl_add_u32 v14, v6, 3, v14")
    e("v_add_u32 v14, 16384, v14")
    def a0():
        e("s_lshl_b32 s48, s17, 11"); e(f"s_add_u32 s48, s48, {C0}"); e(f"v_lshlrev_b32 v{PV_+1}, 8, v1"); e("s_mov_b64 s[56:57], 0xff")
    SF = ENV('SF', '10')
    e("s_cmp_ge_u32 s18, 4"); e(f"s_cbranch_scc1 {nm}_ld")
    kwait(); burst(); codepf("c")
    if ENV('TLB', '1'):
        sh = ENV('TLBS', '18')
        e("s_load_dwordx4 s[84:87], s[0:1], 32"); e("s_load_dwordx2 s[88:89], s[0:1], 16")
        e(f"v_lshlrev_b32 v236, {sh}, v0" if sh < 21 else "v_lshlrev_b32 v236, 21, v1")
        e(f"v_min_u32 v236, {STAMPS-4}, v236")
        e("s_cmp_eq_u32 s18, 0" if sh == 21 else "s_cmp_lt_u32 s18, 4"); e(f"s_cbranch_scc0 {nm}_tl")
        e("buffer_load_dword v237, v236, s[12:15], 0 offen")
        e("v_and_b32 v236, 1, v1"); e("v_mul_u32_u24 v238, 819196, v236"); e("v_mul_u32_u24 v236, 2457596, v236"); e("s_mov_b64 exec, 3")
        e("s_waitcnt lgkmcnt(0)")
        e("global_load_dword v237, v236, s[84:85]"); e("global_load_dword v237, v238, s[86:87]"); e("global_load_dword v237, v238, s[88:89]")
        e("s_mov_b64 exec, -1")
        k.label(f"{nm}_tl")
        e("s_waitcnt lgkmcnt(0)")
    ACC, BF, AR, RS = 64, 128, 160, 200
    BA, AA = 216, 224
    e("s_lshl_b32 s19, s16, 2"); e("s_add_u32 s19, s19, s18")
    for jf in range(4):
        e(f"v_xor_b32 v15, {jf}, v13"); e(f"v_lshl_add_u32 v{BA+jf}, v15, 6, v14"); e(f"v_add_u32 v{BA+4+jf}, 65536, v{BA+jf}")
    e("v_lshl_add_u32 v15, v2, 5, v10"); e("v_lshlrev_b32 v15, 7, v15"); e("v_bfe_u32 v12, v10, 1, 3"); e("v_xor_b32 v12, v12, v4")
    for q in range(4):
        e(f"v_xor_b32 v11, {2*q}, v12"); e(f"v_lshl_add_u32 v{AA+q}, v11, 4, v15"); e(f"v_add_u32 v{AA+4+q}, 65536, v{AA+q}")
    e("v_mul_u32_u24 v8, 20480, v7"); e("v_lshl_add_u32 v8, v4, 8, v8"); e("v_lshl_add_u32 v8, v5, 4, v8")
    e("s_mul_i32 s24, s19, 40960"); e(f"s_add_u32 s24, s24, {XI}")
    e("v_subrev_u32 v58, 1, v4"); e("v_not_b32 v59, v58")
    e("s_lshl_b32 s40, s2, 2"); e("s_add_u32 s40, s40, s39"); e("s_mul_i32 s40, s40, 8192"); e(f"s_add_u32 s40, s40, {QIMG}"); e("v_lshlrev_b32 v238, 7, v1")
    e("s_cmp_ge_u32 s17, 10"); e(f"s_cbranch_scc1 {nm}_qv")
    FTN = ENV('FTN', '2'); K1 = 20 - FTN
    def mainloop(vmode):
        tagm = "v" if vmode else "q"
        acc = lambda jf: vr(ACC+16*jf, 16)
        fl = k.capture(lambda: addr_v(k, 0) if vmode else addr_qk(k, 0, 28))
        ops = [(ks, f//4, f%4) for ks in range(K1) for f in range(8)] + [(ks, u, jf) for jf in range(4) for ks in range(K1, 20) for u in range(2)]
        kb = [-1]; na = [0]
        def rdA(ks):
            sl = slot(ks//2)
            for u in range(2): k.dsop(f"ds_read_b128 {vr(AR+8*(ks%4)+4*u,4)}, v{AA+4*(sl>>16)+2*(ks%2)+u} offset:{sl & 0xffff}", f"a{ks}")
        def rd(i):
            ks, u, jf = ops[i]; sl = slot(ks//2)
            while kb[0] < need(ks): e("s_barrier"); kb[0] += 1
            while na[0] <= ks: rdA(na[0]); na[0] += 1
            for t in range(2):
                off = sl + (32*(ks%2) + 16*u + 4*t)*256
                k.dsop(f"ds_read_b64_tr_b16 {vr(BF+4*(i%8)+2*t,2)}, v{BA+4*(sl>>16)+jf} offset:{off & 0xffff}", f"b{i}")
        def mm(i):
            ks, u, jf = ops[i]
            if i % 2 == 0: k.waitlg(f"b{i+1}")
            a = vr(AR+8*(ks%4)+4*u, 4); b = vr(BF+4*(i%8), 4); c = acc(jf) if (ks or u) else "0"
            if vmode: e(f"v_mfma_f32_32x32x16_bf16 {acc(jf)}, {a}, {b}, {c}")
            else:     e(f"v_mfma_f32_32x32x16_bf16 {acc(jf)}, {b}, {a}, {c}")
            if i + 8 < 160: rd(i + 8)
        def xst(ks, tg):
            e(f"s_cmp_eq_u32 s17, {ks % 15}"); e(f"s_cbranch_scc0 {nm}_x{tg}{ks}")
            e(f"s_add_u32 s32, s24, {1024*ks}")
            for u in range(2): e(f"buffer_store_dwordx4 {vr(AR+8*(ks%4)+4*u,4)}, v8, s[12:15], s32 offen offset:{512*u} {SC}")
            k.label(f"{nm}_x{tg}{ks}")
        for i in range(8):
            rd(i)
            if i == 0: k.stamp(3)
        for ks in range(K1):
            for f in range(8):
                mm(8*ks + f)
                if ks >= 4: k.fill(fl, 1)
            xst(ks, tagm)
            if ks in (0, 1, 4, 9, 10, 14): k.stamp(7 + (0, 1, 4, 9, 10, 14).index(ks))
        assert not fl
        e(f"v_lshlrev_b32 v23, 2, v10"); e(f"v_add_u32 v23, {UT}, v23"); e("s_lshl_b32 s32, s18, 8"); e("v_add_u32 v22, s32, v23")
        if vmode: e("v_lshlrev_b32 v21, 4, v4"); e(f"s_add_u32 s32, s32, {UT}"); e("v_add_u32 v21, s32, v21")
        for n in range(2*FTN): mm(8*K1 + n)
        for ks in range(K1, 20): xst(ks, tagm)
        assert kb[0] == 9
        k.stamp(4)
        e("s_barrier")
        k.dsop("ds_read_b32 v48, v22 offset:1024", "u"); k.dsop("ds_read_b32 v49, v22 offset:1152", "u")
        for jf in range(4): k.dsop(f"ds_read_b32 v{28+2*jf}, v23 offset:{256*jf}", "u"); k.dsop(f"ds_read_b32 v{29+2*jf}, v23 offset:{256*jf+128}", "u")
        if vmode:
            for a_ in range(4): k.dsop(f"ds_read_b128 {vr(RS+4*a_,4)}, v21 offset:{2048+32*a_}", "u")
        else: k.dsop("ds_read_b32 v47, v22 offset:2048", "u")
        def corr(jf):
            if vmode: e(f"v_mfma_f32_32x32x8_bf16 {acc(jf)}, v[48:49], {vr(28+2*jf,2)}, {acc(jf)}")
            else:     e(f"v_mfma_f32_32x32x8_bf16 {acc(jf)}, {vr(28+2*jf,2)}, v[48:49], {acc(jf)}")
        for n in range(2): mm(8*K1 + 2*FTN + n)
        k.waitlg("u")
        e("v_and_b32 v48, v48, v58"); e("v_and_b32 v49, v49, v58")
        if not vmode: e("v_mul_f32 v47, s59, v47")
        corr(0)
        k.stamp(5)
        def tail(epi):
            pend = k.capture(lambda: epi(0))
            for jf in range(1, 4):
                for n in range(2 if jf == 1 else 0, 2*FTN):
                    mm(8*K1 + 2*FTN*jf + n)
                    if n >= (4 if jf == 1 else 2): k.fill(pend, ENV('TFILL', '5'))
                corr(jf)
                k.fill(pend, 1000)
                pend = k.capture(lambda: epi(jf))
            k.fill(pend, 1000)
        return tail
    tail = mainloop(False)
    dispatch5(k, lambda v: tail(lambda jf: epi_qk1(k, v, jf)))
    k.label(f"{nm}_qv"); k.lg = []
    tail = mainloop(True)
    tail(lambda jf: epi_v1(k, jf, RS))
    k.label(f"{nm}_fin5")
    k.stamp(6)
    e("s_barrier")
    signal(k, "sf", -1, 8, a0, 0, "s[12:15]")
    k.dump(13)
    e(f"s_branch {kn}_t0")
    k.label(f"{nm}_ld"); k.vm = []; k.lg = []
    e(f"s_setprio {ENV('LPRIO', '2')}")
    e("v_lshrrev_b32 v16, 4, v1"); e("v_and_b32 v17, 3, v2")
    e("v_lshl_add_u32 v18, v17, 2, v16"); e("v_mul_u32_u24 v20, 3840, v18")
    e("v_xor_b32 v18, v13, v16"); e("v_lshl_add_u32 v20, v18, 6, v20"); e("v_lshl_add_u32 v20, v6, 4, v20")
    e("v_lshrrev_b32 v18, 3, v1"); e("v_lshl_add_u32 v19, v17, 5, v18"); e("v_and_b32 v23, 7, v1")
    for i in range(4):
        e(f"v_add_u32 v42, {8*i}, v19"); e("v_bfe_u32 v43, v42, 1, 3"); e("v_xor_b32 v43, v43, v23")
        e("v_mul_u32_u24 v42, 1280, v42"); e(f"v_lshl_add_u32 v{48+i}, v43, 4, v42")
        if i: e(f"v_subrev_u32 v{48+i}, {1024*i}, v{48+i}")
    e("s_lshl_b32 s25, s17, 8"); e("s_mul_i32 s24, s16, 163840"); e("s_lshl_b32 s26, s39, 12")
    def ld1(st, n):
        if n < 4:
            e(f"s_add_u32 m0, s45, {slot(st)+16384+4096*n}"); e(f"s_add_u32 s32, s25, {(64*st+16*n)*3840}")
            k.vmop(f"buffer_load_dwordx4 v20, s[28:31], s32 offen {os.environ.get('WNT2', '')} lds", f"d{st}")
        else:
            e(f"s_add_u32 m0, s26, {slot(st)}"); e(f"s_add_u32 s33, s24, {128*st}")
            k.vmop(f"buffer_load_dwordx4 v{44+n}, s[8:11], s33 offen offset:{1024*(n-4)} {os.environ.get('XNT2', '')} lds", f"d{st}")
    ORD = [0, 4, 1, 5, 2, 6, 3, 7]
    def ld(st):
        for n in ORD: ld1(st, n)
    kwait(); ld(0)
    e("v_xor_b32 v15, v17, v13"); e("v_lshl_add_u32 v40, v15, 6, v14"); e("v_add_u32 v41, 65536, v40")
    e("v_and_b32 v42, 1, v16"); e("v_cmp_eq_u32 vcc, v42, v5"); e("v_mov_b32 v43, 0x3f803f80")
    for r in range(4): e(f"v_cndmask_b32 v{60+r}, 0, v43, vcc")
    k.srd(52, 4, 256)
    e("s_mul_i32 s27, s17, 163840"); e("s_add_u32 s27, s27, s45"); e(f"s_add_u32 s27, s27, {WA_I}")
    if ENV('LD1', '0'): ld(1)
    done = [0]
    def steps_of(kb):
        r = []
        while done[0] < 20 and need(done[0]) <= kb: r.append(done[0]); done[0] += 1
        return r
    def wa_store(q):
        e("s_lshl_b32 s32, s16, 13"); e("s_add_u32 s32, s32, s27")
        if q: e("s_add_u32 s32, s32, 131072")
        e("s_add_u32 s33, s32, 4096")
        for u in range(2): k.vmop(f"buffer_store_dwordx4 {vr(112+8*q+4*u,4)}, v3, s[12:15], s{32+u} offen {SC}")
    for kb in range(10):
        if kb == 5: k.stamp(5)
        k.waitvm(f"d{kb}")
        if kb == 5: k.stamp(6)
        e("s_barrier")
        if kb in (4, 5): k.stamp(2 if kb == 4 else 7)
        if kb == 0 and not ENV('LD1', '0'): ld(1)
        sl = slot(kb); todo = list(ORD) if kb + DEP < 10 else []
        nxt = lambda: ld1(kb + DEP, todo.pop(0)) if todo else None
        sts = steps_of(kb)
        for n_, ks in enumerate(sts):
            for u in range(2):
                for t in range(2):
                    e(f"ds_read_b64_tr_b16 {vr(136+8*n_+4*u+2*t,2)}, v{40+(sl>>16)} offset:{(sl + (32*(ks%2) + 16*u + 4*t)*256) & 0xffff}")
        nxt(); nxt()
        if kb == 4: k.stamp(3)
        e("s_waitcnt lgkmcnt(0)")
        mf = [(n_, ks, u) for n_, ks in enumerate(sts) for u in range(2)]
        for n_, ks, u in mf:
            e(f"v_mfma_f32_16x16x32_bf16 v[64:67], v[60:63], {vr(136+8*n_+4*u,4)}, {'v[64:67]' if ks or u else 0}")
            nxt()
        nxt(); nxt()
        if kb == 4: k.stamp(4)
        for n_, ks in enumerate(sts):
            e(f"s_cmp_eq_u32 s16, {ks % 16}"); e(f"s_cbranch_scc0 {nm}_w{ks}")
            for r in range(8): e(f"v_mov_b32 v{112+8*(ks//16)+r}, v{136+8*n_+r}")
            k.label(f"{nm}_w{ks}")
        assert not todo
        if kb == 8:
            e("v_and_b32 v24, 15, v1"); e("v_lshlrev_b32 v24, 2, v24"); e("s_mov_b32 s33, 0")
            k.label(f"{nm}_pl")
            e(f"buffer_load_dword v25, v24, s[52:55], 0 offen {SC}"); e("s_add_u32 s33, s33, 1"); e("s_waitcnt vmcnt(0)"); k.vm = []
            e("v_cmp_eq_u32 vcc, 0, v25"); e("s_cmp_ge_u32 s33, 0x20000"); e(f"s_cbranch_scc1 {nm}_px")
            e(f"s_cbranch_vccnz {nm}_pl")
            k.label(f"{nm}_px")
            e("v_lshlrev_b32 v24, 3, v10"); e("s_lshl_b32 s32, s16, 10"); e("s_lshl_b32 s33, s39, 8"); e("s_add_u32 s32, s32, s33"); e(f"s_add_u32 s32, s32, {STI}")
            k.vmop(f"buffer_load_dwordx2 v[44:45], v24, s[12:15], s32 offen {SC}", "rs")
        if kb == 9: k.waitvm("rs"); wa_store(0)
    k.waitvm("rs")
    stats_finish(k, 44, 45, 28, 29, 30)
    e("v_lshlrev_b32 v42, 2, v5"); e("ds_bpermute_b32 v68, v42, v64"); e("ds_bpermute_b32 v69, v42, v65"); e("v_cmp_eq_u32 vcc, 1, v7")
    split3(k, 28, 32, 36, 'm')
    e("s_waitcnt lgkmcnt(0)"); e("v_cndmask_b32 v64, v68, v69, vcc")
    split3(k, 64, 34, 36, 'u')
    e("v_lshlrev_b32 v24, 2, v10"); e("s_lshl_b32 s32, s39, 8"); e(f"s_add_u32 s32, s32, {UT}"); e("v_add_u32 v24, s32, v24")
    e("ds_write_b32 v24, v34"); e("ds_write_b32 v24, v35 offset:128"); e("ds_write_b32 v24, v32 offset:1024"); e("ds_write_b32 v24, v33 offset:1152"); e("ds_write_b32 v24, v29 offset:2048")
    e("s_waitcnt lgkmcnt(0)"); e("s_barrier")
    lwc_init(k); e("s_barrier")
    e("v_mov_b32 v44, v64")
    e("s_cmp_ge_u32 s16, 4"); e(f"s_cbranch_scc1 {nm}_le"); wa_store(1)
    e("s_cmp_eq_u32 s16, 0"); e(f"s_cbranch_scc0 {nm}_le")
    e("v_mov_b32 v45, 0"); e("v_mov_b32 v46, 0"); e("v_mov_b32 v47, 0"); e("v_lshlrev_b32 v24, 4, v10")
    e("s_lshl_b32 s32, s17, 11"); e("s_lshl_b32 s33, s39, 9"); e("s_add_u32 s32, s32, s33"); e(f"s_add_u32 s32, s32, {U_A}")
    e("s_mov_b32 exec_hi, 0"); e(f"buffer_store_dwordx4 v[44:47], v24, s[12:15], s32 offen {SC}")
    k.label(f"{nm}_le")
    e("s_mov_b64 exec, -1")
    signal(k, "sfl", -1, 8, a0, 0, "s[12:15]")
    k.dump(8)
    e(f"s_branch {kn}_t0")
    k.label(f"{nm}_ub"); k.vm = []; k.lg = []
    kwait()
    e("v_lshrrev_b32 v4, 3, v1"); e("v_lshl_add_u32 v4, v2, 4, v4"); e("v_mul_u32_u24 v5, 1280, v4"); e("v_and_b32 v6, 7, v1"); e("v_lshl_add_u32 v5, v6, 4, v5")
    e("s_mul_i32 s24, s16, 163840"); e("s_add_u32 s25, s24, 10240")
    for b_ in range(2):
        for i in range(10): k.vmop(f"buffer_load_dwordx4 {vr(24+40*b_+4*i,4)}, v5, s[8:11], s{24+b_} offen offset:{128*i} {os.environ.get('XNT2', '')}", f"x{b_}{i}")
    for j in range(8): e(f"v_mov_b32 v{8+j}, 0")
    e("v_mov_b32 v7, 0x3f803f80")
    e("v_lshlrev_b32 v16, 4, v0"); e("s_and_b32 s26, s16, 7"); e("s_lshl_b32 s26, s26, 13"); e(f"s_add_u32 s26, s26, {CNT}"); e("s_cmp_ge_u32 s16, 8"); e(f"s_cselect_b32 s27, {LS}, 0"); e("s_add_u32 s26, s26, s27")
    k.vmop(f"buffer_store_dwordx4 v[12:15], v16, s[12:15], s26 offen {SC}")
    for b_ in range(2):
        for i in range(10):
            k.waitvm(f"x{b_}{i}")
            for q in range(4):
                r = 24+40*b_+4*i+q
                e(f"v_dot2_f32_bf16 v{8+2*b_}, v{r}, v7, v{8+2*b_}"); e(f"v_dot2_f32_bf16 v{9+2*b_}, v{r}, v{r}, v{9+2*b_}")
    for dpp in ("quad_perm:[1,0,3,2]", "quad_perm:[2,3,0,1]", "row_half_mirror"):
        for q in range(4): e(f"v_add_f32_dpp v{8+q}, v{8+q}, v{8+q} {dpp} row_mask:0xf bank_mask:0xf")
    e("v_lshlrev_b32 v4, 3, v4"); e("s_lshl_b32 s26, s16, 10"); e(f"s_add_u32 s26, s26, {STI}")
    e("v_cmp_eq_u32 vcc, 0, v6"); k.srd(52, 4, 256); e("s_mov_b64 exec, vcc")
    e(f"buffer_store_dwordx2 v[8:9], v4, s[12:15], s26 offen {SC}"); e(f"buffer_store_dwordx2 v[10:11], v4, s[12:15], s26 offen offset:64 {SC}")
    e("s_mov_b64 exec, -1"); lwc_init(k)
    e("s_waitcnt vmcnt(0)"); e("s_barrier")
    e("s_cmp_ge_u32 s18, 4"); e(f"s_cbranch_scc1 {nm}_u2")
    codepf("u")
    e("s_cmp_eq_u32 s18, 0"); e(f"s_cbranch_scc0 {nm}_u2")
    e("v_mov_b32 v4, 0"); e("v_mov_b32 v5, 1"); e("s_lshl_b32 s26, s16, 2"); e("s_mov_b64 exec, 1")
    e(f"buffer_store_dword v5, v4, s[52:55], s26 offen {SC}")
    e("s_mov_b64 exec, 0xffff"); e("v_lshlrev_b32 v4, 2, v1"); e("s_mov_b32 s33, 0")
    k.label(f"{nm}_u1")
    e(f"buffer_load_dword v5, v4, s[52:55], 0 offen {SC}"); e("s_add_u32 s33, s33, 1"); e("s_waitcnt vmcnt(0)")
    e("v_cmp_eq_u32 vcc, 0, v5"); e("s_cmp_ge_u32 s33, 0x20000"); e(f"s_cbranch_scc1 {nm}_u2"); e(f"s_cbranch_vccnz {nm}_u1")
    k.label(f"{nm}_u2")
    e("s_mov_b64 exec, -1"); e("s_waitcnt vmcnt(0)")

def k_main():
    k = KB(NAME + "_kernel"); e = k.e; name = k.name
    ph_front(k)
    k.label(f"{name}_t0")
    e("s_load_dwordx2 s[46:47], s[0:1], 48"); e("s_mov_b32 s3, 0")
    k.srd(8, 6, 2*LS)
    e("s_waitcnt lgkmcnt(0)")
    k.srd(60, 46, S*D*2)
    k.label(f"{name}_top")
    k.vm = []; k.lg = []
    e("s_setprio 0"); k.stamp(0); k.rstamp(1)
    ph_attn(k)
    def a1():
        e("s_lshl_b32 s48, s17, 3"); e("s_and_b32 s49, s16, 1"); e("s_add_u32 s48, s48, s49"); e("s_lshl_b32 s48, s48, 8"); e(f"s_add_u32 s48, s48, {C1}")
        e(f"v_lshlrev_b32 v{PV_+1}, 9, v1"); e("s_mov_b64 s[56:57], 15")
    e("s_cmp_ge_u32 s18, 4"); e(f"s_cbranch_scc1 {name}_ld")
    signal(k, "s1", 0, 8, a1)
    def c1():
        e("s_lshl_b32 s48, s16, 9"); e(f"s_add_u32 s48, s48, {C1}")
        e(f"v_lshlrev_b32 v{PV_+1}, 8, v1"); e(f"v_mov_b32 v{PV_+2}, 16"); e("s_mov_b64 s[56:57], 3")
    proj_c(k, "p2", OT, XI, XM, STM, False, c1, 0, 6)
    def a2():
        e("s_lshr_b32 s48, s16, 1"); e("s_lshl_b32 s48, s48, 9"); e(f"s_add_u32 s48, s48, {C2}")
        e(f"v_mul_u32_u24 v{PV_+1}, 768, v1"); e("s_bitcmp1_b32 s16, 0"); e("s_cselect_b64 s[56:57], 3, 1")
    signal(k, "s2", 1, 4, a2)
    qkvb_c(k, XM, STM, 9)
    def a3(): one(k, 0); e("s_lshl_b32 s48, s16, 8"); e(f"s_add_u32 s48, s48, {C3}")
    signal(k, "s3", 0, 4, a3)
    def c3(): one(k, 16); e("s_lshr_b32 s48, s16, 1"); e("s_lshl_b32 s48, s48, 8"); e(f"s_add_u32 s48, s48, {C3}")
    proj_c(k, "p4", OBT, XM, XI, STI, True, c3, 0, 12)
    def a4(): one(k, 0); e("s_lshr_b32 s48, s16, 1"); e("s_lshl_b32 s48, s48, 8"); e(f"s_add_u32 s48, s48, {C4}")
    signal(k, "s4", 1, 4, a4)
    k.dump(15, "1")
    ids_mt(k)
    e("s_cmp_ge_u32 s17, 15"); e(f"s_cbranch_scc1 {name}_idle")
    qkva_c(k, XI, STI, 0, C4, [7], 3)
    k.stamp(6)
    e("s_barrier")
    def a5(): e("s_lshl_b32 s48, s17, 11"); e(f"s_add_u32 s48, s48, {LS + C0}"); e(f"v_lshlrev_b32 v{PV_+1}, 8, v1"); e("s_mov_b64 s[56:57], 0xff")
    signal(k, "s5", -1, 4, a5)
    k.dump(7, "3")
    k.label(f"{name}_t1")
    e("s_mov_b32 s3, 1"); e(f"s_add_u32 s8, s8, {LS}"); e("s_addc_u32 s9, s9, 0"); e(f"s_mov_b32 s10, {LS}")
    e(f"s_branch {name}_top")
    k.label(f"{name}_idle")
    for _ in range(4): e("s_barrier")
    e(f"s_branch {name}_t1")
    k.label(f"{name}_ld"); k.vm = []; k.lg = []
    if os.environ.get("FOC") == "at": e("s_add_u32 s84, s3, 4"); k.dump(8, "s84")
    e(f"s_setprio {ENV('LPRIO', '2')}")
    w = proj_l(k, WOA_I, WB_I, OT, a1, 0)
    qkvb_l(k, XM, STM, w)
    w = proj_l(k, WOB_I, WA_I, OBT, None, 0, True)
    ids_mt(k)
    atouch_pre(k, XI)
    e("s_barrier")
    w.one(39); e("s_waitcnt vmcnt(0)"); e("s_barrier")
    e("s_barrier"); lwc_init(k); e("s_barrier")
    e(f"s_branch {name}_t1")
    k.label(f"{name}_end"); e("s_endpgm")
    k.tail()
    return k.text(256 if STAMP else 244, 256 if STAMP else 244)

def build():
    hdr = open("cdna_kernels/" + NAME + ".s.ref").read().split("; Override launch")[0]
    out = hdr + "; @launch grid=(256,1,1) block=(512,1,1) lds=163840\n"
    out += '.amdgcn_target "amdgcn-amd-amdhsa--gfx950"\n'
    out += k_main()
    out += ".text\ncode_end:\n"
    return out

if __name__ == "__main__":
    dst = sys.argv[1] if len(sys.argv) > 1 else "cdna_kernels/" + NAME + ".s"
    open(dst, "w").write(build())
    print("wrote", dst)
```

```python
import sys, math
from lint import lint, fix

NAME = "interleave_layers__softmax_full_mha__sliding_local_dilated__prompt"
S, D, H, DH = 2048, 640, 32, 20
XS = S*D*2
IMG = H*64*2560
QI = H*64*1280
CNT = 0
C1 = CNT; C2 = C1 + 64*256; C3 = C2 + 34*256; C4 = C3 + 16*256; C0 = C4 + 16*256
LS = 65536
CS = LS + C4
XI = 2*LS; STI = XI + XS
QIMG = STI + S*64; KVIMG = QIMG + QI
OT = KVIMG + IMG; OBT = OT + XS; XM = OBT + XS
STM = XM + XS
U_A = STM + S*64
U_B = U_A + 32768
WA_I = U_B + 163840
WOA_I = WA_I + 15*163840
WB_I = WOA_I + 819200
WOB_I = WB_I + 16*163840
STAMPS = WOB_I + 819200
WS_END = STAMPS + 16*262144
import os
STAMP = int(os.environ.get("STAMP", "0"))
ATTN_WAVES = 8
AV = os.environ.get("AV", "")
CSCALE = (DH ** -0.5) * math.log2(math.e)
import struct
def fbits(x): return "0x%08x" % struct.unpack("<I", struct.pack("<f", x))[0]

FM = [(0,16),(32,48),(80,96),(112,128),(64,144)]
def FX(ks, t):
    return 160*(ks//5) + FM[ks%5][t]

class KB:
    def __init__(s, name):
        s.name = name; s.L = []; s.vm = []; s.lg = []; s.cap = None
    def e(s, line):
        if s.cap is not None: s.cap.append(('e', line, None))
        else: s.L.append("    " + line)
    def capture(s, fn):
        s.cap = []; fn(); c = s.cap; s.cap = None
        return [x for x in c if not (x[0] == 'e' and x[1].startswith('s_nop'))]
    def fill(s, lst, n=1):
        for _ in range(n):
            if not lst: return
            kind, a, b = lst.pop(0)
            if kind == 'e':
                s.e(a)
                if a.startswith('s_mov_b64 exec, s['):
                    while True:
                        x = lst.pop(0)[1]; s.e(x)
                        if x == 's_mov_b64 exec, -1': break
                if a.startswith('s_cmp'):
                    while lst and lst[0][0] == 'e' and lst[0][1].startswith('s_cselect'): s.e(lst.pop(0)[1])
            elif kind == 'ds': s.dsop(a, b)
            elif kind == 'wvm': s.waitvm(a)
            elif kind == 'wlg': s.waitlg(a)
    def c(s, txt): s.L.append("    ; " + txt)
    def label(s, l): s.L.append(l + ":")
    def vmop(s, line, tag=None): s.e(line); s.vm.append(tag); assert len(s.vm) <= 63, (s.name, len(s.vm))
    def dsop(s, line, tag=None):
        if s.cap is not None: s.cap.append(('ds', line, tag)); return
        s.e(line); s.lg.append(tag)
    def _n(s, lst, tag):
        idx = max(i for i, t in enumerate(lst) if t == tag)
        return idx
    def waitvm(s, tag):
        if s.cap is not None: s.cap.append(('wvm', tag, None)); return
        if tag not in s.vm: return
        i = s._n(s.vm, tag); n = len(s.vm) - 1 - i
        s.e(f"s_waitcnt vmcnt({n})"); s.vm = s.vm[i+1:]
    def waitlg(s, tag):
        if s.cap is not None: s.cap.append(('wlg', tag, None)); return
        if tag not in s.lg: return
        i = s._n(s.lg, tag); n = len(s.lg) - 1 - i
        if n > 15: n = 15; i = len(s.lg) - 1 - n
        s.e(f"s_waitcnt lgkmcnt({n})"); s.lg = s.lg[i+1:]
    def waitall(s):
        s.e("s_waitcnt vmcnt(0) lgkmcnt(0)"); s.vm = []; s.lg = []
    def srd(s, r, base, nbytes):
        s.e(f"s_mov_b32 s{r}, s{base}")
        s.e(f"s_and_b32 s{r+1}, s{base+1}, 0xffff")
        s.e(f"s_mov_b32 s{r+2}, {nbytes}")
        s.e(f"s_mov_b32 s{r+3}, 0x20000")
    def stamp(s, i):
        if not STAMP: return
        op = "s_memrealtime" if os.environ.get("RT") else "s_memtime"
        s.e(f"{op} s[{64+2*i}:{65+2*i}]" if i < 10 else f"{op} s[{72+2*i}:{73+2*i}]")
    def rstamp(s, i):
        if not STAMP: return
        s.e(f"s_memrealtime s[{64+2*i}:{65+2*i}]")
    def dump(s, n=8, slot="0", wave="s18"):
        if not STAMP: return
        e = s.e
        if os.environ.get("DBG"):
            keep = {"0": [(1, 246), (3, 247), (6, 248)], "1": [(2, 249), (5, 250), (14, 251)], "3": [(6, 252)], "2": [(2, 253), (5, 254), (14, 255)]}[slot]
            e("s_waitcnt lgkmcnt(0)")
            if n < 7 or (slot == "0" and n == 8): return
            for i, v in keep: e(f"v_mov_b32 v{v}, s{64+2*i if i < 10 else 72+2*i}")
            if slot == "2":
                e(f"s_cmp_eq_u32 s2, {os.environ['DBG']}"); e("s_cbranch_scc0 dbg_skip"); e("s_cmp_eq_u32 s18, 0"); e("s_cbranch_scc0 dbg_skip")
                e("s_load_dwordx2 s[84:85], s[0:1], 56"); e("s_memrealtime s[86:87]"); e("s_waitcnt lgkmcnt(0)")
                s.srd(88, 84, 256); e("s_mov_b64 exec, 1"); e("v_mov_b32 v0, 0"); e("v_mov_b32 v245, s86"); e("v_sub_u32 v245, v245, v246")
                for i in range(9):
                    e(f"v_sub_u32 v{247+i}, v{247+i}, v246"); e(f"buffer_store_dword v{247+i}, v0, s[88:91], 0 offen offset:{4*i}")
                e("buffer_store_dword v245, v0, s[88:91], 0 offen offset:36")
                s.label("dbg_skip")
            return
        e("s_memrealtime s[86:87]"); e("s_waitcnt lgkmcnt(0)")
        e("s_mov_b64 exec, 1")
        e(f"s_lshl_b32 s84, {slot}, 18")
        e("s_lshl_b32 s85, s2, 3"); e(f"s_add_u32 s85, s85, {wave}"); e("s_lshl_b32 s85, s85, 6"); e(f"s_add_u32 s85, s85, {STAMPS}"); e("s_add_u32 s85, s85, s84")
        e("v_mov_b32 v244, 0")
        for i in range(n):
            e(f"v_mov_b32 v245, s{64+2*i if i < 10 else 72+2*i}")
            e(f"buffer_store_dword v245, v244, s[12:15], s85 offen offset:{4*i}")
        e("v_mov_b32 v245, s86"); e("buffer_store_dword v245, v244, s[12:15], s85 offen offset:60")
        e("s_mov_b64 exec, -1")
    def text(s, vgpr, accum, sgpr=102):
        s.L, added = fix(s.L)
        if os.environ.get("V"): print(s.name, "auto nops:", added, "lines:", len(s.L))
        out = [".text", f".globl {s.name}", ".p2align 8", f".type {s.name},@function", f"{s.name}:"]
        out += s.L
        out += ['.section .rodata,"a"', ".p2align 6", f".amdhsa_kernel {s.name}",
                f"  .amdhsa_next_free_vgpr {vgpr}", f"  .amdhsa_next_free_sgpr {sgpr}", f"  .amdhsa_accum_offset {accum}",
                "  .amdhsa_group_segment_fixed_size 0", "  .amdhsa_kernarg_size 72", "  .amdhsa_user_sgpr_count 2",
                "  .amdhsa_user_sgpr_kernarg_segment_ptr 1", "  .amdhsa_system_sgpr_workgroup_id_x 1", ".end_amdhsa_kernel"]
        nb = lint(s.L, s.name)
        assert nb == 0, f"{nb} hazards in {s.name}"
        return "\n".join(out) + "\n"
    def allred32(s, op, v, t):
        s.e(f"v_mov_b32 v{t}, v{v}"); s.e("s_nop 1")
        s.e(f"v_permlane32_swap_b32 v{v}, v{t}"); s.e("s_nop 1")
        s.e(f"{op} v{v}, v{v}, v{t}")
    def allred16(s, op, v, t):
        s.e(f"v_mov_b32 v{t}, v{v}"); s.e("s_nop 1")
        s.e(f"v_permlane16_swap_b32 v{v}, v{t}"); s.e("s_nop 1")
        s.e(f"{op} v{v}, v{v}, v{t}")

def vr(a, n): return f"v[{a}:{a+n-1}]" if n > 1 else f"v{a}"
def ar(a, n): return f"a[{a}:{a+n-1}]" if n > 1 else f"a{a}"

def stats_finish(k, s1, s2, mean, rstd, t):
    e = k.e
    e(f"v_mul_f32 v{mean}, {fbits(1.0/D)}, v{s1}")
    e(f"v_mul_f32 v{t}, {fbits(1.0/D)}, v{s2}")
    e(f"v_fma_f32 v{t}, -v{mean}, v{mean}, v{t}")
    e(f"v_max_f32 v{t}, 0, v{t}")
    e(f"v_add_f32 v{t}, {fbits(1e-5)}, v{t}")
    e(f"v_rsq_f32 v{rstd}, v{t}")
    e("s_nop 0")

def split3(k, src, d, t, kind, maskv=None):
    e = k.e
    if kind == 'm':
        e(f"v_xor_b32 v{t+1}, 0x80000000, v{src}"); src = t+1
    e(f"v_and_b32 v{t}, 0xffff0000, v{src}")
    e(f"v_sub_f32 v{t+2}, v{src}, v{t}")
    if kind == 'u':
        e(f"v_cvt_pk_bf16_f32 v{d}, v{t}, v{t+2}")
        e(f"v_lshrrev_b32 v{d+1}, 16, v{t}")
    else:
        e(f"v_cvt_pk_bf16_f32 v{d}, v{t}, v{t}")
        e(f"v_cvt_pk_bf16_f32 v{d+1}, v{t+2}, 0")
    if maskv is not None:
        e(f"v_and_b32 v{d}, v{d}, v{maskv}"); e(f"v_and_b32 v{d+1}, v{d+1}, v{maskv}")

SC = "sc1"
RS_ = lambda off: "s[12:15]" if off >= 2*LS else "s[8:11]"
EARLY = int(os.environ.get('EARLY', '6'))
ENV = lambda n, d: int(os.environ.get(n, d))

def ids_mt(k):
    k.e("s_lshl_b32 s22, s20, 1"); k.e("s_and_b32 s23, s21, 1"); k.e("s_add_u32 s16, s22, s23"); k.e("s_lshr_b32 s17, s21, 1")
def ids_rt(k):
    k.e("s_lshl_b32 s22, s20, 2"); k.e("s_and_b32 s23, s21, 3"); k.e("s_add_u32 s16, s22, s23"); k.e("s_lshr_b32 s17, s21, 2")

LW = 163824
PV_ = 240
def lw_init(k):
    e = k.e
    e(f"v_mov_b32 v{PV_+3}, {LW}")
    for i in range(3): e(f"v_mov_b32 v{PV_+i}, 0")
    e(f"ds_write_b96 v{PV_+3}, v[{PV_}:{PV_+2}]"); e(f"ds_write_b32 v{PV_+3}, v{PV_} offset:12")

def lwc_init(k):
    k.e(f"v_mov_b32 v{PV_+3}, {LW-8}"); k.e(f"v_mov_b32 v{PV_}, 0"); k.e(f"v_mov_b32 v{PV_+1}, 0")
    k.e(f"ds_write_b64 v{PV_+3}, v[{PV_}:{PV_+1}]"); k.e("s_waitcnt lgkmcnt(0)")

def signal(k, tag, word, nw, addr_code, younger=0, srd="s[8:11]"):
    e = k.e
    addr_code()
    e(f"v_mov_b32 v{PV_+3}, {LW-8}"); e(f"v_mov_b32 v{PV_}, 1")
    e("s_mov_b64 exec, 1")
    assert younger == 0
    e("s_waitcnt vmcnt(0)"); k.vm = []
    if tag == os.environ.get("FOC"): k.stamp(2)
    e(f"ds_add_rtn_u32 v{PV_+2}, v{PV_+3}, v{PV_} offset:{8*word+8}")
    e("s_waitcnt lgkmcnt(0)"); k.lg = []
    e(f"v_readfirstlane_b32 s49, v{PV_+2}")
    e("s_mov_b64 exec, s[56:57]")
    e(f"s_cmp_eq_u32 s49, {nw-1}"); e(f"s_cbranch_scc0 {k.name}_{tag}_sg")
    e(f"buffer_atomic_add v{PV_}, v{PV_+1}, {srd}, s48 offen {SC}")
    if os.environ.get("FOC2") == tag: k.stamp(4)
    k.label(f"{k.name}_{tag}_sg")
    e("s_mov_b64 exec, -1")

def wait_go(k, tag, word, poll_code):
    e = k.e; nm = f"{k.name}_{tag}"
    e(f"v_mov_b32 v{PV_+3}, {LW-8}"); e("s_mov_b32 s49, 0")
    if poll_code:
        e("s_cmp_eq_u32 s18, 0"); e(f"s_cbranch_scc0 {nm}_sp")
        poll_code()
        e("s_mov_b64 exec, s[56:57]")
        if os.environ.get("FOC") == "g" + tag: k.stamp(2)
        k.label(f"{nm}_pl")
        e(f"v_mov_b32 v{PV_}, 0")
        e(f"buffer_atomic_add v{PV_}, v{PV_+1}, s[8:11], s48 offen sc0 sc1")
        e("s_add_u32 s49, s49, 1")
        e("s_waitcnt vmcnt(0)")
        e(f"v_cmp_ge_u32 vcc, v{PV_}, v{PV_+2}")
        e("s_cmp_ge_u32 s49, 0x20000"); e(f"s_cbranch_scc1 {nm}_px")
        e("s_cmp_eq_u64 vcc, exec"); e(f"s_cbranch_scc0 {nm}_pl")
        k.label(f"{nm}_px")
        if os.environ.get("FOC") == "g" + tag: e("s_add_u32 s70, s64, s49")
        e("s_mov_b64 exec, 1"); e(f"v_mov_b32 v{PV_}, 1")
        e(f"ds_write_b32 v{PV_+3}, v{PV_} offset:{8*word+12}")
        e(f"s_branch {nm}_go")
    k.label(f"{nm}_sp")
    e("s_sleep 1")
    e(f"ds_read_b32 v{PV_}, v{PV_+3} offset:{8*word+12}")
    e("s_add_u32 s49, s49, 1")
    e("s_waitcnt lgkmcnt(0)")
    e(f"v_readfirstlane_b32 s44, v{PV_}")
    e("s_cmp_ge_u32 s49, 0x400000"); e(f"s_cbranch_scc1 {nm}_go")
    e("s_cmp_eq_u32 s44, 0"); e(f"s_cbranch_scc1 {nm}_sp")
    k.label(f"{nm}_go")
    e("s_mov_b64 exec, -1")

class Wdma:
    def __init__(s, k, n, base=50, tag="w"): s.k = k; s.n = n; s.i = 0; s.base = base; s.tag = tag
    def one(s, i):
        s.k.e(f"s_add_u32 m0, s45, {4096*i}"); s.k.e(f"s_add_u32 s32, s{s.base}, {4096*i}")
        s.k.vmop(f"buffer_load_dwordx4 v3, s[12:15], s32 offen {SC} lds", f"{s.tag}{i}")
    def go(s, upto):
        while s.i < min(upto, s.n): s.one(s.i); s.i += 1
    def rng(s, a, b, thr=0):
        for i in range(a, b):
            s.one(i)
            if thr and len(s.k.vm) >= thr: s.k.e(f"s_waitcnt vmcnt({thr-1})"); s.k.vm = s.k.vm[len(s.k.vm)-thr+1:]

SIDE_SV = 152; SIDE_D = 160; SIDE_U = 192
def side_setup(k):
    e = k.e; nm = k.name
    e("s_load_dwordx4 s[84:87], s[0:1], 32"); e("s_load_dwordx2 s[88:89], s[0:1], 16")
    e("s_mul_i32 s49, s2, 3"); e("s_add_u32 s49, s49, s18"); e("s_sub_u32 s49, s49, 4")
    e("s_sub_u32 s32, s18, 4"); e("s_cmp_lt_u32 s32, 3"); e("s_cselect_b32 s49, s49, 959"); e("s_cmp_eq_u32 s3, 0"); e("s_cselect_b32 s49, s49, 959")
    e("s_lshl_b32 s35, s39, 13"); e("s_add_u32 s35, s35, 112640")
    e("s_mul_i32 s36, s49, 3277"); e("s_lshr_b32 s36, s36, 16"); e("s_mul_i32 s37, s36, 20"); e("s_sub_u32 s37, s49, s37")
    e("v_and_b32 v140, 15, v1"); e("v_lshrrev_b32 v141, 2, v140"); e("v_and_b32 v142, 3, v1")
    e("s_waitcnt lgkmcnt(0)")
    SV = SIDE_SV
    e("v_lshrrev_b32 v136, 4, v1")
    for r in list(range(SV, SV+5)) + list(range(144, 152)): e(f"v_mov_b32 v{r}, 0")
    e("s_mov_b32 s5, 0")
    e("s_mov_b32 s53, 0x7ff00000"); e("s_mov_b32 s54, s53"); e("s_mov_b32 s58, s53")
    e("s_cmp_ge_u32 s49, 320"); e(f"s_cbranch_scc1 {nm}_ss1")
    k.srd(88, 84, D*3*D*2)
    e(f"s_mul_i32 s5, s37, {32*3840}"); e("s_mul_i32 s32, s36, 80"); e("s_add_u32 s5, s5, s32")
    e("v_lshlrev_b32 v137, 2, v136"); e("v_xor_b32 v137, v137, v140"); e("v_min_u32 v137, 14, v137")
    e("v_mul_u32_u24 v138, 52, v137"); e("v_lshrrev_b32 v138, 8, v138"); e("v_mul_u32_u24 v138, 1200, v138"); e("v_lshl_add_u32 v138, v137, 4, v138")
    e("v_mul_u32_u24 v137, 3840, v136"); e(f"v_add_u32 v{SV}, v138, v137")
    e("v_lshrrev_b32 v137, 5, v1"); e("v_lshl_add_u32 v137, v137, 3, v141"); e("v_lshlrev_b32 v137, 8, v137"); e("v_and_b32 v138, 1, v136")
    e("v_lshl_add_u32 v137, v138, 5, v137"); e("v_lshl_add_u32 v137, v142, 3, v137"); e("v_add_u32 v137, s35, v137")
    for jf in range(4): e(f"v_xor_b32 v139, {jf}, v141"); e(f"v_lshl_add_u32 v{144+jf}, v139, 6, v137")
    e("s_mul_i32 s53, s36, 163840"); e("s_lshl_b32 s54, s37, 13"); e("s_add_u32 s53, s53, s54"); e(f"s_add_u32 s53, s53, {WB_I}"); e("s_add_u32 s54, s53, 4096"); e("s_mov_b32 s58, s54")
    e(f"s_branch {nm}_ss2")
    k.label(f"{nm}_ss1")
    e("s_cmp_ge_u32 s36, 24"); e("s_cselect_b32 s32, s86, s88"); e("s_cselect_b32 s33, s87, s89")
    k.srd(88, 32, D*D*2)
    e("s_cmp_ge_u32 s49, 640"); e(f"s_cbranch_scc1 {nm}_ss2")
    e("s_and_b32 s32, s36, 7"); e("s_mul_i32 s32, s32, 160")
    e("s_mul_i32 s5, s37, 40"); e("s_sub_u32 s34, s37, 16"); e("s_mul_i32 s34, s34, 160"); e("s_add_u32 s34, s34, 16")
    e("s_cmp_lt_u32 s37, 16"); e("s_cselect_b32 s5, s5, s34"); e("s_cselect_b32 s33, 4, 2"); e("s_cselect_b32 s34, 4, 16")
    e("s_mul_i32 s5, s5, 1280"); e("s_add_u32 s5, s5, s32")
    for i in range(5):
        e(f"v_add_u32 v137, {64*i}, v1"); e("v_mul_u32_u24 v138, 6554, v137"); e("v_lshrrev_b32 v138, 16, v138")
        e("v_lshrrev_b32 v139, s33, v138"); e("v_mul_u32_u24 v139, s34, v139"); e("v_mul_u32_u24 v139, 1280, v139")
        e("v_mul_u32_u24 v138, 1120, v138"); e("v_add_u32 v139, v139, v138"); e(f"v_lshl_add_u32 v{SV+i}, v137, 4, v139")
    e("v_lshlrev_b32 v137, 2, v136"); e("s_mov_b32 s32, 2560")
    e("s_cmp_ge_u32 s36, 24"); e(f"s_cbranch_scc1 {nm}_sf3"); e("s_cmp_ge_u32 s37, 16"); e(f"s_cbranch_scc1 {nm}_sf3")
    e("v_lshrrev_b32 v137, 1, v136"); e("v_lshlrev_b32 v137, 4, v137"); e("v_and_b32 v138, 1, v136"); e("v_lshl_add_u32 v137, v138, 2, v137"); e("s_mov_b32 s32, 1280")
    k.label(f"{nm}_sf3")
    e("v_add_u32 v137, v137, v141"); e("v_mul_u32_u24 v137, 160, v137"); e("v_add_u32 v137, s35, v137")
    e("s_and_b32 s33, s36, 1"); e("s_lshl_b32 s34, s33, 5"); e("s_xor_b32 s33, s33, 1"); e("s_lshl_b32 s33, s33, 7")
    e("v_lshl_add_u32 v144, v142, 4, v137"); e("v_add_u32 v144, s34, v144"); e("v_add_u32 v145, s32, v144")
    e("v_lshl_add_u32 v146, v142, 3, v137"); e("v_add_u32 v146, s33, v146"); e("v_add_u32 v147, s32, v146")
    e("s_cmp_ge_u32 s36, 24"); e(f"s_cselect_b32 s53, {WOB_I-WOA_I}, 0"); e("s_and_b32 s54, s36, 7"); e("s_mul_i32 s54, s54, 102400"); e("s_add_u32 s53, s53, s54")
    e("s_mul_i32 s54, s37, 5120"); e("s_add_u32 s53, s53, s54"); e(f"s_add_u32 s53, s53, {WOA_I}"); e("s_add_u32 s54, s53, 4096")
    k.label(f"{nm}_ss2")
    e("s_lshl_b32 s38, s49, 9"); e(f"s_add_u32 s38, s38, {U_B}"); e("s_cmp_ge_u32 s49, 320"); e("s_cselect_b32 s38, 0x7ff00000, s38")
    e("v_lshlrev_b32 v143, 2, v1")
    e("s_cmp_lt_u32 s49, 640"); e("s_cselect_b32 s4, 2, 0"); e("s_cmp_lt_u32 s49, 320"); e("s_cselect_b32 s4, 1, s4")
    e("s_and_b32 s55, s49, 15"); e("s_lshl_b32 s55, s55, 8"); e(f"s_add_u32 s55, s55, {CS}")

def ph_attn(k):
    e = k.e; nm = k.name
    KA, KT, VA = 4, 5, 6
    Q = [8, 14]; KF = [24, 32]; VF = [40, 48]; SS = [56, 72]; P = 88; O = [96, 112]; PF = 208
    SCR = 137216; TOP = 112640
    ids_rt(k)
    e("v_and_b32 v3, 31, v1"); e("v_lshrrev_b32 v7, 5, v1")
    e("v_lshlrev_b32 v22, 4, v1"); e("v_lshlrev_b32 v23, 3, v3")
    e("s_mul_i32 s19, s16, 163840")
    e("s_lshr_b32 s41, s18, 2")
    e("s_lshl_b32 s23, s17, 3"); e("s_lshl_b32 s22, s39, 1"); e("s_add_u32 s23, s23, s22")
    e("s_add_u32 s23, s23, s41")
    e("s_lshr_b32 s22, s19, 1"); e(f"s_add_u32 s22, s22, {QIMG}")
    e("s_mul_i32 s24, s23, 1280"); e("s_add_u32 s24, s24, s22"); e("s_xor_b32 s40, s23, 1"); e("s_mul_i32 s40, s40, 1280"); e("s_add_u32 s40, s40, s22")
    e("s_mul_i32 s42, s41, 2560"); e(f"s_add_u32 s42, s42, {TOP}")
    e("s_lshl_b32 s25, s18, 10")
    e(f"s_add_u32 s26, s19, {KVIMG}")
    rnd = [0]
    def dma():
        i = rnd[0]; rnd[0] += 1
        if i == 6:
            e("s_cmp_lt_u32 s18, 2"); e("s_cselect_b32 s27, 163840, 0"); e("s_add_u32 s27, s27, s25"); e("s_sub_u32 m0, s27, 2048")
        else: e(f"s_add_u32 m0, s25, {(TOP + 8192*i) if i < 6 else 8192*i - 51200}")
        e("s_add_u32 s27, s26, m0")
        k.vmop(f"buffer_load_dwordx4 v22, s[12:15], s27 offen {SC} lds", f"i{i}")
    e(f"v_add_u32 v{KA}, s42, v22")
    e(f"v_add_u32 v{KT}, s42, v23"); e(f"v_add_u32 v{KT}, 1024, v{KT}")
    if ENV('KTZ', '1'): e(f"v_lshl_add_u32 v{KT}, v7, 20, v{KT}")
    e("v_mul_u32_u24 v21, 20, v7"); e("v_add_u32 v21, v21, v3"); e("v_lshlrev_b32 v21, 4, v21")
    e("v_add_u32 v21, 1280, v21"); e(f"v_add_u32 v{VA}, s42, v21")
    e("s_mov_b32 s28, 0x000fffff"); e("s_mov_b32 s29, 0x000fffff")
    e("v_cmp_eq_u32 vcc, 20, v3"); e("v_mov_b32 v20, 0x3f803f80"); e("s_nop 0")
    e("v_cndmask_b32 v20, 0, v20, vcc")
    for r in range(16): e(f"v_mov_b32 v{VF[0]+r}, v20")
    for r in range(32): e(f"v_mov_b32 v{O[0]+r}, 0")
    for r in range(4): e(f"v_mov_b32 v{P+4+r}, 0")
    e("v_subrev_u32 v30, 1, v7")
    e("s_lshl_b32 s43, s21, 2"); e("s_add_u32 s43, s43, s39"); e(f"s_mul_i32 s43, s43, {2048*ENV('NPF', '14') - 1024}"); e(f"s_add_u32 s43, s43, {WOA_I}")
    e("s_mul_i32 s32, s23, 40960"); e(f"s_add_u32 s32, s32, {OT}")
    e("s_lshr_b32 s51, s16, 1"); e("s_lshl_b32 s51, s51, 10"); e("s_and_b32 s34, s16, 1"); e("s_lshl_b32 s34, s34, 9")
    e("s_add_u32 s51, s51, s34"); e("s_add_u32 s51, s51, s32")
    e("s_lshr_b32 s52, s16, 3"); e("s_add_u32 s52, s52, 16"); e("s_lshl_b32 s52, s52, 10"); e("s_add_u32 s52, s52, s32")
    e("s_and_b32 s35, s16, 3"); e("s_lshl_b32 s35, s35, 8"); e("s_add_u32 s52, s52, s35")
    e("s_bfe_u32 s35, s16, 0x10002"); e("s_lshl_b32 s35, s35, 3"); e("s_add_u32 s52, s52, s35")
    e("v_lshrrev_b32 v38, 4, v3"); e("v_mul_u32_u24 v38, 20480, v38"); e("v_and_b32 v39, 15, v3")
    e("v_lshl_add_u32 v38, v39, 4, v38"); e("v_lshl_add_u32 v39, v7, 8, v38")
    e("s_mul_i32 s32, s18, 3072"); e("s_xor_b32 s33, s18, 4"); e("s_mul_i32 s33, s33, 3072")
    e(f"v_add_u32 v132, {SCR}, v22"); e("v_add_u32 v133, s33, v132"); e("v_add_u32 v132, s32, v132")
    def c0(nl):
        e("s_lshl_b32 s48, s17, 8"); e(f"s_add_u32 s48, s48, {C0}"); e(f"v_mov_b32 v{PV_+2}, 16")
        e("s_mul_i32 s32, s16, 20"); e("s_add_u32 s33, s32, 19"); e("s_lshr_b32 s32, s32, 7"); e("s_lshr_b32 s33, s33, 7"); e("s_sub_u32 s33, s33, s32")
        e(f"v_lshrrev_b32 v{PV_+1}, 1, v1"); e(f"v_mul_u32_u24 v{PV_+1}, 5, v{PV_+1}"); e(f"v_and_b32 v{PV_}, s33, v1"); e(f"v_add3_u32 v{PV_+1}, v{PV_+1}, v{PV_}, s32")
        e(f"v_lshlrev_b32 v{PV_+1}, 11, v{PV_+1}"); e("s_mov_b64 s[56:57], 63")
    side_setup(k)
    e("s_lshl_b32 s59, s2, 2"); e("s_add_u32 s59, s59, s39"); e("s_mul_i32 s50, s59, 2560"); e(f"s_mul_i32 s59, s59, {-(-(U_A - OT) // 1024 // 128) * 128}"); e(f"s_add_u32 s59, s59, {OT}")
    e("v_lshlrev_b32 v234, 7, v1")
    e("v_lshlrev_b32 v134, 11, v1"); e("s_lshl_b32 s32, s17, 8"); e(f"s_add_u32 s32, s32, {C0}"); e("v_add_u32 v134, s32, v134")
    e("v_lshlrev_b32 v135, 8, v1"); e(f"v_add_u32 v135, {CS - 4096}, v135"); e("v_cmp_gt_u32 vcc, 16, v1")
    e("v_cndmask_b32 v134, v135, v134, vcc"); e("v_cndmask_b32 v131, 40, 16, vcc"); e("v_mov_b32 v135, 64")
    wait_go(k, "t", -1, lambda: c0(6))
    k.stamp(2)
    dma()
    for x in range(2):
        k.vmop(f"buffer_load_dwordx4 {vr(Q[x],4)}, v22, s[12:15], s{(24,40)[x]} offen {SC}", "q")
        k.vmop(f"buffer_load_dwordx2 {vr(Q[x]+4,2)}, v23, s[12:15], s{(24,40)[x]} offen offset:1024 {SC}", "q")
    for _ in range(3): dma()
    k.waitvm("q")
    for x in range(2):
        e(f"v_and_b32 v{Q[x]+4}, v{Q[x]+4}, v30"); e(f"v_and_b32 v{Q[x]+5}, v{Q[x]+5}, v30")
    k.waitvm("i1"); e("s_barrier"); k.stamp(3)
    if os.environ.get("FOC") == "clk": k.rstamp(0)
    def rdK(buf, off):
        off *= 2
        e(f"ds_read_b128 {vr(KF[buf],4)}, v{KA} offset:{off}")
        e(f"ds_read_b64 {vr(KF[buf]+4,2)}, v{KT} offset:{off}")
    def rdV(buf, off):
        off *= 2
        e("s_mov_b64 exec, s[28:29]")
        e(f"ds_read_b128 {vr(VF[buf],4)}, v{VA} offset:{off}")
        e(f"ds_read_b128 {vr(VF[buf]+4,4)}, v{VA} offset:{off+640}")
        e("s_mov_b64 exec, -1")
    def qkm(x, kb): e(f"v_mfma_f32_32x32x16_bf16 {vr(SS[x],16)}, {vr(KF[kb],4)}, {vr(Q[x],4)}, 0")
    def qkt(x, kb): e(f"v_mfma_f32_32x32x8_bf16 {vr(SS[x],16)}, {vr(KF[kb]+4,2)}, {vr(Q[x]+4,2)}, {vr(SS[x],16)}")
    def pv(x, vb, u): e(f"v_mfma_f32_32x32x16_bf16 {vr(O[x],16)}, {vr(VF[vb]+4*u,4)}, {vr(P+4*u,4)}, {vr(O[x],16)}")
    def base(t):
        return 0 if t < 10 else 10 if t < 22 else 22
    def bump(regs, t):
        if t == 10:
            for r in regs: e(f"v_subrev_u32 v{r}, {TOP}, v{r}")
        elif t == 22:
            for r in regs: e(f"v_add_u32 v{r}, {12*5120}, v{r}")
    def unit(x, t, extra=()):
        p = t % 2; s = SS[x]
        ex = lambda i: e(f"v_exp_f32 v{s+i}, v{s+i}")
        cv = lambda i: e(f"v_cvt_pk_bf16_f32 v{P+i}, v{s+2*i}, v{s+2*i+1}")
        kb = p if x == 0 else 1-p
        if x == 1: e("s_waitcnt lgkmcnt(2)" if t < 31 else "s_waitcnt lgkmcnt(0)")
        if not (x == 1 and t == 31): qkm(1-x, kb)
        if x == 1 and t + 2 < 32:
            bump((KA, KT), t+2); rdK(p, (t+2-base(t+2))*2560)
        for i in range(0, 4): ex(i)
        if x == 0:
            pv(1, 1-p, 1)
            if t + 1 < 32:
                bump((VA,), t+1); rdV(1-p, (t+1-base(t+1))*2560)
        else:
            pv(0, p, 1)
        for f_ in extra: f_()
        for i in range(4, 8): ex(i)
        for i in range(0, 4): cv(i)
        if not (x == 1 and t == 31): qkt(1-x, kb)
        for i in range(8, 12): ex(i)
        if x == 0: e(f"s_waitcnt lgkmcnt({4 if t < 31 else 0})")
        pv(x, p, 0)
        for i in range(12, 16): ex(i)
        for i in range(4, 8): cv(i)
    rdK(0, 0); rdV(0, 0); rdK(1, 2560)
    e("s_waitcnt lgkmcnt(4)")
    qkm(0, 0); e("s_nop 10"); qkt(0, 0); e("s_nop 10")
    SYN = {1: 3, 4: 7, 10: 19}; SW = ENV('SW', '27')
    T_SI, T_SR, T_SA, T_PF, T_LC = 10, ENV('TSR', '16'), 26, ENV('TPF', '15'), 27
    hk = [0]
    def cond(test, fn):
        def g():
            hk[0] += 1; lab = f"{nm}_hk{hk[0]}"
            e(test); e(f"s_cbranch_scc0 {lab}"); fn(); k.label(lab)
        return g
    def prio1(): e("s_setprio 1")
    def pref():
        for _ in range(2): e(f"buffer_load_dwordx4 {vr(PF,4)}, v22, s[12:15], s43 offen {SC}"); e("s_add_u32 s43, s43, 1024")
    def side_issue():
        e("s_cmp_eq_u32 s4, 1"); e(f"s_cbranch_scc0 {nm}_i1")
        for i in range(8):
            e(f"s_add_u32 m0, s35, {1024*i}"); e(f"s_add_u32 s27, s5, {4*3840*i}")
            e(f"buffer_load_dwordx4 v{SIDE_SV}, s[88:91], s27 offen {os.environ.get('SNT', 'nt')} lds")
        e(f"s_branch {nm}_i2")
        k.label(f"{nm}_i1")
        for i in range(5):
            e(f"s_add_u32 m0, s35, {1024*i}"); e("s_nop 0")
            e(f"buffer_load_dwordx4 v{SIDE_SV+i}, s[88:91], s5 offen {os.environ.get('SNT', 'nt')} lds")
        k.label(f"{nm}_i2")
    def side_read():
        e("s_waitcnt vmcnt(0)")
        e("s_cmp_eq_u32 s4, 1"); e(f"s_cbranch_scc0 {nm}_r1")
        for F in range(8):
            for t in range(2): e(f"ds_read_b64_tr_b16 {vr(SIDE_D+4*F+2*t,2)}, v{144+F%4} offset:{4096*(F//4)+1024*t}")
        e(f"s_branch {nm}_r2")
        k.label(f"{nm}_r1")
        for nf in range(5):
            for t in range(2): e(f"ds_read_b64_tr_b16 {vr(SIDE_D+4*nf+2*t,2)}, v{144+t if nf < 4 else 146+t} offset:{64*(nf//2)+8*(nf%2) if nf < 4 else 0}")
        k.label(f"{nm}_r2")
    def side_done():
        e("s_waitcnt lgkmcnt(0)"); e(f"v_mov_b32 v{PV_+3}, {LW-8}"); e(f"v_mov_b32 v{PV_}, 1"); e("s_mov_b64 exec, 1")
        e(f"ds_add_u32 v{PV_+3}, v{PV_}"); e("s_mov_b64 exec, -1")
    UA = (SIDE_U, 212)
    def side_sum(q):
        def g():
            if q == 0:
                for r in range(4): e(f"v_mov_b32 v{228+r}, 0x3f803f80")
            for u in range(2):
                for x in range(2): e(f"v_mfma_f32_32x32x16_bf16 {vr(UA[x],16)}, v[228:231], {vr(SIDE_D+16*u+8*q+4*x,4)}, {vr(UA[x],16) if u else 0}")
        return g
    def side_sum2(q):
        def g():
            e("v_cmp_gt_u32 vcc, 32, v1"); e(f"v_cndmask_b32 v{232+q}, v{UA[1]}, v{UA[0]}, vcc")
            e(f"buffer_store_dword v{232+q}, v143, s[12:15], s38 offen offset:{256*q} {SC}")
        return g
    def side_store(F):
        return lambda: e(f"buffer_store_dwordx4 {vr(SIDE_D+4*F,4)}, v22, s[12:15], s{53 if F < 4 else 54 if F == 4 else 58} offen offset:{1024*(F%4)} {SC}")
    def side_arrive():
        e(f"v_mov_b32 v{PV_+1}, 0"); e(f"v_mov_b32 v{PV_}, 1"); e("s_waitcnt vmcnt(0)"); e("s_mov_b64 exec, 1")
        e(f"buffer_atomic_add v{PV_}, v{PV_+1}, s[12:15], s55 offen {SC}"); e("s_mov_b64 exec, -1")
    def touch():
        e("s_cmp_eq_u32 s3, 0"); e(f"s_cbranch_scc0 {nm}_t2")
        e("buffer_load_dword v235, v234, s[12:15], s59 offen"); e(f"s_branch {nm}_t3")
        k.label(f"{nm}_t2")
        if ENV('TOUT', '0'):
            e("s_mov_b64 exec, 0xfffff"); e("buffer_load_dword v235, v234, s[60:63], s50 offen"); e("s_mov_b64 exec, -1")
        k.label(f"{nm}_t3")
    def late():
        e("s_mov_b32 exec_lo, 0xffff7fff"); e("s_mov_b32 exec_hi, 0"); e(f"buffer_load_dword v135, v134, s[12:15], 0 offen {SC}"); e("s_mov_b64 exec, -1")
    def init_words(): lw_init(k); e(f"v_mov_b32 v{PV_+3}, {LW-8}"); e(f"ds_write_b32 v{PV_+3}, v{PV_}")
    side = "s_cmp_lg_u32 s4, 0"
    for t in range(32):
        if t in SYN: k.waitvm(f"i{SYN[t]}"); e("s_barrier")
        x0, x1 = [], []
        if rnd[0] < 20: x0 += [dma, dma]; x1 += [dma, dma]
        if t in (1, 4, 10): cond("s_cmp_ge_u32 s18, 4", prio1)()
        if t == 3: x0.append(lambda: e("s_setprio 0"))
        if t == 8: x1.append(lambda: e("s_setprio 0"))
        if t == 10:
            x0.append(cond("s_cmp_eq_u32 s18, 4", lambda: lw_init(k)))
            if os.environ.get("FOC") == "at": k.stamp(2)
        if t == SW + 1 and os.environ.get("FOC") == "at": k.stamp(0)
        if t == T_SI: x1.append(cond(side, side_issue))
        if t == T_SR: x1.append(cond(side, side_read))
        if t == T_SR + 1: x0.append(cond(side, lambda: e("s_waitcnt lgkmcnt(0)"))); x1.append(cond("s_cmp_eq_u32 s4, 1", side_sum(0)))
        if t == T_SR + 2: x0.append(cond("s_cmp_eq_u32 s4, 1", side_sum2(0))); x1.append(cond("s_cmp_eq_u32 s4, 1", side_sum(1)))
        if t == T_SR + 3: x0.append(cond("s_cmp_eq_u32 s4, 1", side_sum2(1)))
        if T_SR + 1 <= t < T_SR + 9: x1.append(cond(side, side_store(t - T_SR - 1)))
        if ENV('TCH', '7') and t == ENV('TCH', '7'): x0.append(lambda: k.waitvm("i19") if ENV('TW', '1') else None); x0.append(cond("s_cmp_lt_u32 s18, 4", touch))
        if t == T_SA: x0.append(cond(side, side_arrive))
        if T_PF <= t < T_PF + ENV('NPF', '14') and ENV('PFW', '1'): x0.append(cond("s_cmp_lt_u32 s18, 4", pref))
        if t == T_LC: x1.append(cond("s_cmp_eq_u32 s18, 0", late))
        if t == SW: (x1 if ENV('SWX', '0') else x0).append(lambda: e("s_setprio 0"))
        unit(0, t, x0); unit(1, t, x1)
    pv(1, 1, 1); k.stamp(4)
    if os.environ.get("FOC") == "clk": k.rstamp(2)
    e("s_mov_b32 s30, 0")
    e(f"s_mov_b32 s32, {fbits(2.0**-60)}"); e(f"s_mov_b32 s33, {fbits(2.0**100)}"); e(f"s_mov_b32 s34, {fbits(2.0**126)}")
    k.label(f"{nm}_scrok")
    e("s_nop 7")
    for i in range(3): e(f"ds_write_b128 v132, {vr(O[1]+4*i,4)} offset:{1024*i}")
    e("s_waitcnt vmcnt(0)"); e("v_cmp_gt_u32 vcc, v131, v135"); e(f"s_cbranch_vccnz {nm}_late")
    k.label(f"{nm}_lok")
    e("s_waitcnt lgkmcnt(0)"); e("s_barrier")
    for i in (2, 0, 1): e(f"ds_read_b128 {vr(SS[0]+4*i,4)}, v133 offset:{1024*i}")
    OO = O[0]
    e("s_waitcnt lgkmcnt(2)")
    for r in range(8, 12): e(f"v_add_f32 v{OO+r}, v{OO+r}, v{SS[0]+r}")
    e("s_waitcnt lgkmcnt(0)")
    for r in range(8): e(f"v_add_f32 v{OO+r}, v{OO+r}, v{SS[0]+r}")
    k.label(f"{nm}_chk")
    e(f"v_mov_b32 v30, v{OO+8}"); e(f"v_mov_b32 v31, v{OO+8}")
    e(f"v_max3_f32 v28, abs(v{OO}), abs(v{OO+1}), abs(v{OO+2})")
    e("v_permlane32_swap_b32 v30, v31")
    e(f"v_max3_f32 v28, abs(v{OO+3}), abs(v{OO+4}), v28")
    e("v_rcp_f32 v30, v31")
    e(f"v_max3_f32 v28, abs(v{OO+5}), abs(v{OO+6}), v28")
    for r in range(12): e(f"v_mul_f32 v{SS[1]+r}, v{OO+r}, v30")
    for r in range(6): e(f"v_cvt_pk_bf16_f32 v{P+r}, v{SS[1]+2*r}, v{SS[1]+2*r+1}")
    e(f"buffer_store_dwordx4 {vr(P,4)}, v39, s[12:15], s51 offen {SC}")
    e("s_mov_b32 exec_hi, 0")
    e(f"buffer_store_dwordx2 {vr(P+4,2)}, v38, s[12:15], s52 offen {SC}")
    e("s_mov_b64 exec, -1")
    for r in range(7, 11, 2): e(f"v_max3_f32 v28, abs(v{OO+r}), abs(v{OO+r+1}), v28")
    e(f"v_max_f32 v28, abs(v{OO+11}), v28")
    e("v_cmp_le_f32 vcc, s32, v31"); e("v_cmp_ge_f32 s[36:37], s33, v31"); e("v_cmp_gt_f32 s[40:41], s34, v28")
    e("s_and_b64 s[36:37], s[36:37], vcc"); e("s_and_b64 s[36:37], s[36:37], s[40:41]")
    e("s_cmp_eq_u64 s[36:37], -1"); e(f"s_cbranch_scc0 {nm}_slow")
    def slowpath():
        k.label(f"{nm}_late")
        e("s_mov_b32 s49, 0")
        k.label(f"{nm}_late1")
        e("s_sleep 8"); late(); e("s_add_u32 s49, s49, 1"); e("s_waitcnt vmcnt(0)")
        e("v_cmp_gt_u32 vcc, v131, v135"); e("s_cmp_ge_u32 s49, 0x20000"); e(f"s_cbranch_scc1 {nm}_lok"); e(f"s_cbranch_vccnz {nm}_late1")
        e(f"s_branch {nm}_lok")
        k.label(f"{nm}_slow")
        e("s_cmp_eq_u32 s30, 0"); e(f"s_cbranch_scc0 {nm}_fin")
        e("s_mov_b32 s30, 1")
        e("s_waitcnt vmcnt(0)")
        NM = O[1]
        e("v_mov_b32 v32, 0xff800000")
        def slowqk(c):
            e(f"buffer_load_dwordx4 {vr(KF[0],4)}, v22, s[12:15], s27 offen {SC}")
            e(f"buffer_load_dwordx2 {vr(KF[0]+4,2)}, v23, s[12:15], s27 offen offset:1024 {SC}")
            e("s_waitcnt vmcnt(0)")
            e(f"v_mfma_f32_32x32x16_bf16 {vr(SS[0],16)}, {vr(KF[0],4)}, {vr(Q[0],4)}, {c}"); e("s_nop 10")
            e(f"v_mfma_f32_32x32x8_bf16 {vr(SS[0],16)}, {vr(KF[0]+4,2)}, {vr(Q[0]+4,2)}, {vr(SS[0],16)}"); e("s_nop 12")
        e(f"s_add_u32 s27, s19, {KVIMG}"); e("s_mov_b32 s31, 0")
        k.label(f"{nm}_mx")
        slowqk("0")
        for r in range(0, 16, 2): e(f"v_max3_f32 v32, v{SS[0]+r}, v{SS[0]+r+1}, v32")
        e("s_add_u32 s27, s27, 2560")
        e("s_add_u32 s31, s31, 1"); e("s_cmp_lt_u32 s31, 64"); e(f"s_cbranch_scc1 {nm}_mx")
        k.allred32("v_max_f32", 32, 33)
        e("v_xor_b32 v32, 0x80000000, v32")
        for r in range(16): e(f"v_mov_b32 v{NM+r}, v32")
        for r in range(16): e(f"v_mov_b32 v{OO+r}, 0")
        for r in range(8): e(f"v_mov_b32 v{VF[0]+r}, v20")
        e(f"s_add_u32 s27, s19, {KVIMG}"); e("s_mov_b32 s31, 0")
        k.label(f"{nm}_sl")
        e("s_mov_b64 exec, s[28:29]")
        e(f"buffer_load_dwordx4 {vr(VF[0],4)}, v21, s[12:15], s27 offen {SC}")
        e(f"buffer_load_dwordx4 {vr(VF[0]+4,4)}, v21, s[12:15], s27 offen offset:640 {SC}")
        e("s_mov_b64 exec, -1")
        slowqk(vr(NM,16))
        for i in range(16): e(f"v_exp_f32 v{SS[0]+i}, v{SS[0]+i}")
        e("s_nop 0")
        for i in range(8): e(f"v_cvt_pk_bf16_f32 v{P+i}, v{SS[0]+2*i}, v{SS[0]+2*i+1}")
        e("s_nop 1")
        pv(0, 0, 0); pv(0, 0, 1)
        e("s_add_u32 s27, s27, 2560")
        e("s_add_u32 s31, s31, 1"); e("s_cmp_lt_u32 s31, 64"); e(f"s_cbranch_scc1 {nm}_sl")
        e("s_nop 12"); e(f"s_branch {nm}_chk")
    k.tail = slowpath
    k.label(f"{nm}_fin")
    k.stamp(5)
    e("v_lshlrev_b32 v3, 4, v1")
    k.vm = []; k.lg = []

def proj_c(k, tag, src, xin, xout, stout, last, cnt_code, word, st0):
    final = False
    e = k.e
    ACC, RESID, A, BF = 24, 44, 76, 156
    NA0 = ENV('PA0', '8')
    ids_rt(k)
    e("s_lshl_b32 s19, s16, 2"); e("s_add_u32 s19, s19, s39")
    e("s_mul_i32 s24, s19, 20480")
    e("s_lshr_b32 s33, s17, 1"); e("s_mul_i32 s33, s33, 5120"); e("s_add_u32 s33, s33, s24")
    e("s_and_b32 s34, s17, 1"); e("s_mul_i32 s35, s34, 3072"); e("s_add_u32 s35, s35, s33")
    e("s_lshl_b32 s36, s34, 9"); e("s_add_u32 s36, s36, s33"); e("s_add_u32 s36, s36, 2048")
    e(f"s_add_u32 s37, s35, {xin}"); e(f"s_add_u32 s38, s36, {xin}")
    e("v_lshrrev_b32 v13, 5, v1"); e("v_lshlrev_b32 v13, 8, v13"); e("v_and_b32 v14, 15, v1"); e("v_lshl_add_u32 v13, v14, 4, v13")
    e("v_bfe_u32 v14, v1, 4, 1"); e("v_lshl_add_u32 v13, v14, 3, v13")
    k.vmop(f"buffer_load_dwordx4 {vr(RESID,4)}, v3, {RS_(xin)}, s37 offen {SC}", "r")
    k.vmop(f"buffer_load_dwordx4 {vr(RESID+4,4)}, v3, {RS_(xin)}, s37 offen offset:1024 {SC}", "r")
    k.vmop(f"buffer_load_dwordx2 {vr(RESID+8,2)}, v13, {RS_(xin)}, s38 offen {SC}", "r")
    e(f"s_add_u32 s24, s24, {src}")
    for i in range(1, 5): e(f"s_add_u32 s{24+i}, s24, {4096*i}")
    e("v_lshrrev_b32 v9, 4, v1"); e("v_add_u32 v12, 61440, v3")
    wait_go(k, tag, word, cnt_code)
    k.stamp(st0)
    def ldA(n): k.vmop(f"buffer_load_dwordx4 {vr(A+4*n,4)}, v3, s[12:15], s{24+n//4} offen offset:{(n%4)*1024} {SC}", f"a{n}")
    for n in range(NA0): ldA(n)
    k.waitvm("r")
    for i in range(10):
        e(f"v_lshlrev_b32 v{ACC+2*i}, 16, v{RESID+i}"); e(f"v_and_b32 v{ACC+2*i+1}, 0xffff0000, v{RESID+i}")
    def rd(n, nf):
        off = n*5120 + nf*1024; b = 3
        if n >= 12: off -= 61440; b = 12
        k.dsop(f"ds_read_b128 {vr(BF+20*(n%2)+4*nf,4)}, v{b} offset:{off}", f"b{n}_{nf}")
    e("s_barrier")
    for n in range(2):
        for nf in range(5): rd(n, nf)
    for n in range(20):
        if n < 2 or n % 2 == 0: k.waitvm(f"a{min(n + (n >= 2), 19)}")
        if n == 0: k.stamp(st0+1)
        for nf in range(5):
            if ENV('PW1', '1'):
                if nf == 0: k.waitlg(f"b{n}_4")
            elif nf in (0, 2, 4): k.waitlg(f"b{n}_{min(nf+1,4)}")
            if n == 12 and nf == 0 and not final: e("s_barrier")
            e(f"v_mfma_f32_16x16x32_bf16 {vr(ACC+4*nf,4)}, {vr(BF+20*(n%2)+4*nf,4)}, {vr(A+4*n,4)}, {vr(ACC+4*nf,4)}")
            if n + 2 < 20: rd(n+2, nf)
            if nf == 0 and n + NA0 < 20: ldA(n + NA0)
    e("s_barrier")
    if last:
        e("s_cmp_eq_u32 s3, 0"); e(f"s_cbranch_scc1 {k.name}_nf")
        e("v_and_b32 v16, 15, v1"); e("v_mul_u32_u24 v16, 1280, v16"); e("v_lshl_add_u32 v17, v9, 3, v16"); e("v_lshl_add_u32 v16, v9, 4, v16")
        e("s_mul_i32 s32, s19, 20480"); e("s_mul_i32 s31, s17, 160"); e("s_add_u32 s32, s32, s31")
        e("s_lshl_b32 s31, s34, 5"); e("s_add_u32 s33, s32, s31"); e("s_xor_b32 s31, s34, 1"); e("s_lshl_b32 s31, s31, 7"); e("s_add_u32 s32, s32, s31")
        FSC = os.environ.get("FSC", "")
        for i in range(10): e(f"v_cvt_pk_bf16_f32 v{RESID+i}, v{ACC+2*i}, v{ACC+2*i+1}")
        e(f"buffer_store_dwordx4 {vr(RESID,4)}, v16, s[60:63], s33 offen {FSC}")
        e(f"buffer_store_dwordx4 {vr(RESID+4,4)}, v16, s[60:63], s33 offen offset:64 {FSC}")
        e(f"buffer_store_dwordx2 {vr(RESID+8,2)}, v17, s[60:63], s32 offen {FSC}")
        k.stamp(st0+2)
        if STAMP: e("s_waitcnt vmcnt(0)")
        k.dump(15, "2")
        e("s_endpgm")
        k.label(f"{k.name}_nf")
    if True:
        e(f"s_add_u32 s37, s35, {xout}"); e(f"s_add_u32 s38, s36, {xout}")
        e("s_lshl_b32 s32, s19, 10"); e("s_lshl_b32 s33, s17, 7"); e("s_add_u32 s32, s32, s33"); e(f"s_add_u32 s32, s32, {stout}")
        e("v_lshlrev_b32 v16, 3, v1")
        for i in range(10): e(f"v_cvt_pk_bf16_f32 v{RESID+i}, v{ACC+2*i}, v{ACC+2*i+1}")
        e(f"buffer_store_dwordx4 {vr(RESID,4)}, v3, {RS_(xout)}, s37 offen {SC}")
        e(f"buffer_store_dwordx4 {vr(RESID+4,4)}, v3, {RS_(xout)}, s37 offen offset:1024 {SC}")
        e(f"buffer_store_dwordx2 {vr(RESID+8,2)}, v13, {RS_(xout)}, s38 offen {SC}")
        e(f"v_add_f32 v18, v{ACC}, v{ACC+1}"); e(f"v_mul_f32 v19, v{ACC}, v{ACC}"); e(f"v_add_f32 v20, v{ACC+2}, v{ACC+3}"); e(f"v_mul_f32 v21, v{ACC+1}, v{ACC+1}")
        e(f"v_fmac_f32 v19, v{ACC+2}, v{ACC+2}"); e(f"v_fmac_f32 v21, v{ACC+3}, v{ACC+3}")
        for i in range(4, 20, 2):
            e(f"v_add_f32 v18, v18, v{ACC+i}"); e(f"v_fmac_f32 v19, v{ACC+i}, v{ACC+i}")
            e(f"v_add_f32 v20, v20, v{ACC+i+1}"); e(f"v_fmac_f32 v21, v{ACC+i+1}, v{ACC+i+1}")
        e("v_add_f32 v18, v18, v20"); e("v_add_f32 v19, v19, v21")
        for sw in ("v_permlane16_swap_b32", "v_permlane32_swap_b32"):
            e("v_mov_b32 v20, v18"); e("v_mov_b32 v21, v19"); e("s_nop 0")
            e(f"{sw} v18, v20"); e(f"{sw} v19, v21"); e("s_nop 0")
            e("v_add_f32 v18, v18, v20"); e("v_add_f32 v19, v19, v21")
        e("s_mov_b64 exec, 0xffff")
        e(f"buffer_store_dwordx2 v[18:19], v16, {RS_(xout)}, s32 offen {SC}")
    k.stamp(st0+2)

def proj_l(k, wimg, nxt, src, sig=None, done=0, last=False):
    e = k.e
    if nxt is not None:
        ids_mt(k)
        e("s_min_u32 s17, s17, 14" if nxt == WA_I else "s_nop 0")
        e("s_mul_i32 s58, s17, 163840"); e("s_add_u32 s58, s58, s45"); e(f"s_add_u32 s58, s58, {nxt}")
    ids_rt(k)
    e("s_mul_i32 s50, s17, 102400"); e("s_add_u32 s50, s50, s45"); e(f"s_add_u32 s50, s50, {wimg}")
    e("s_mul_i32 s51, s16, 81920"); e("s_lshl_b32 s52, s17, 2"); e("s_add_u32 s52, s52, s39"); e("s_mul_i32 s52, s52, 2560"); e("s_add_u32 s51, s51, s52"); e(f"s_add_u32 s51, s51, {src}")
    e("v_min_u32 v21, 39, v1"); e("v_lshlrev_b32 v21, 6, v21")
    w = Wdma(k, 25, 50, "o"); k.vm = []
    T1, T2 = ENV('T1', '0'), ENV('T2', '3')
    if sig:
        def a8():
            e(f"v_mov_b32 v{PV_+3}, {LW}"); e("s_mov_b32 s49, 0")
            k.label(f"{k.name}_a8")
            e(f"ds_read_b32 v{PV_}, v{PV_+3}"); e("s_add_u32 s49, s49, 1"); e("s_waitcnt lgkmcnt(0)"); e(f"v_readfirstlane_b32 s44, v{PV_}")
            e("s_cmp_ge_u32 s49, 0x400000"); e("s_cselect_b32 s44, 8, s44"); e("s_cmp_lt_u32 s44, 8"); e(f"s_cbranch_scc1 {k.name}_a8")
        signal(k, "s1l", 0, 8, sig)
        if ENV('A8E', '1'): a8()
        ub_prep(k, 0)
    if last: w.rng(0, 6); e("s_barrier"); done = 6
    w.rng(done, 25, T1 if sig else ENV('T4', '0'))
    w2 = Wdma(k, 40, 58)
    if last:
        e("s_cmp_eq_u32 s3, 0"); e(f"s_cbranch_scc1 {k.name}_nl")
        e("s_waitcnt vmcnt(0)"); e("s_barrier"); e("buffer_load_dword v20, v21, s[12:15], s51 offen"); e("s_endpgm")
        k.label(f"{k.name}_nl")
    if sig:
        w2.rng(25, 33, T1)
        if not ENV('A8E', '1'): a8()
    if nxt is not None: w2.rng(33 if sig else 32, 39, T1 if sig else ENV('T4', '0'))
    if sig: ub_prep(k, 1)
    if last and ENV('WPF', '0'):
        e("v_lshlrev_b32 v22, 7, v1"); e("s_and_b32 s32, s21, 1"); e("s_lshl_b32 s32, s32, 2"); e("s_add_u32 s32, s32, s39"); e("s_lshl_b32 s32, s32, 14")
        e("s_sub_u32 s33, s58, s45"); e("s_add_u32 s33, s33, s32")
        for i in range(2):
            k.vmop(f"buffer_load_dword v23, v22, s[12:15], s33 offen {SC}"); e("s_add_u32 s33, s33, 8192")
            if ENV('WPF', '0') == 2: e("s_waitcnt vmcnt(0)"); k.vm = []
    k.waitvm("o24")
    e("s_barrier")
    if ENV('ATOUCH', '0'):
        k.vmop("buffer_load_dword v20, v21, s[12:15], s51 offen")
    if nxt is not None:
        if not sig: w2.rng(25, 32)
        e("s_barrier")
        w2.rng(0, 15, ENV('T3', '0'))
        e("s_barrier")
        k.waitvm("w14")
        if ENV('LSL', '0'): e(f"s_sleep {ENV('LSL', '0')}")
        w2.rng(15, 25, T2)
    return w2

def stats16(k, s, rstd, mop, mask):
    e = k.e
    e(f"v_add_f32 v{s}, v{s}, v{s+2}"); e(f"v_add_f32 v{s+1}, v{s+1}, v{s+3}")
    k.allred16("v_add_f32", s, s+2); k.allred16("v_add_f32", s+1, s+3)
    k.allred32("v_add_f32", s, s+2); k.allred32("v_add_f32", s+1, s+3)
    stats_finish(k, s, s+1, s+2, rstd, s+3)
    split3(k, s+2, mop, 17, 'm', mask)
def usum(k, u, dst, t=17):
    e = k.e
    e(f"v_add_f32 v{u}, v{u}, v{u+1}"); e(f"v_add_f32 v{u+2}, v{u+2}, v{u+3}"); e(f"v_add_f32 v{u}, v{u}, v{u+2}")
    split3(k, u, dst, t, 'u')
def scale_pack(k, a, sc, dst):
    for r in range(4): k.e(f"v_mul_f32 v{a+r}, v{a+r}, v{sc(r)}")
    for r in range(2): k.e(f"v_cvt_pk_bf16_f32 v{dst+r}, v{a+2*r}, v{a+2*r+1}")
EX = 102400
SOFF = 2*8192 + 7296
UOFF = lambda F: (F//4)*8192 + 7168 + (F%4)*256 + 128
TOKF = (0, 1, 2, 3, 6); FEAF = (4, 5, 7)

UO = 3456
def ub_prep(k, part):
    e = k.e
    if part:
        k.waitvm("up")
        for j_ in range(5): e(f"v_add_f32 v{64+j_}, v{64+j_}, v{69+j_}")
        e("v_add_f32 v64, v64, v65"); e("v_add_f32 v66, v66, v67"); e("v_add_f32 v64, v64, v68"); e("v_add_f32 v64, v64, v66")
        k.allred32("v_add_f32", 64, 65); split3(k, 64, 28, 17, 'u')
        return
    e("v_lshrrev_b32 v6, 5, v1"); e("v_and_b32 v5, 31, v1"); e("s_lshr_b32 s30, s21, 1")
    e("v_mul_u32_u24 v12, 5120, v6"); e("v_lshl_add_u32 v12, v5, 2, v12")
    e("s_mul_i32 s30, s30, 10240"); e("s_lshl_b32 s31, s39, 7"); e("s_add_u32 s30, s30, s31"); e(f"s_add_u32 s30, s30, {U_B}"); e("s_add_u32 s31, s30, 2560")
    for j_ in range(10): k.vmop(f"buffer_load_dword v{64+j_}, v12, s[12:15], s{30+j_//5} offen offset:{512*(j_%5)}", "up")
    e("v_bfe_u32 v6, v1, 4, 1"); e("v_lshlrev_b32 v46, 9, v6"); e("v_and_b32 v5, 15, v1"); e("v_lshl_add_u32 v46, v5, 3, v46")
    e("s_lshl_b32 s30, s39, 12"); e("v_add_u32 v46, s30, v46")

def atouch_pre(k, xin):
    e = k.e
    e("s_mul_i32 s51, s16, 163840"); e("s_lshl_b32 s52, s17, 2"); e("s_add_u32 s52, s52, s39"); e("s_mul_i32 s52, s52, 2560"); e("s_add_u32 s51, s51, s52"); e(f"s_add_u32 s51, s51, {xin}")
    e("v_min_u32 v21, 39, v1"); e("v_lshlrev_b32 v21, 6, v21")

G_ACC, G_BF, G_AR, G_DA = 64, 128, 160, 5
def gemm32_pre(k, xin, stin):
    e = k.e
    e("v_and_b32 v10, 31, v1"); e("v_lshrrev_b32 v4, 5, v1"); e("v_and_b32 v5, 15, v1")
    e("s_lshl_b32 s19, s16, 2"); e("s_add_u32 s19, s19, s18")
    e("v_bfe_u32 v7, v1, 4, 1"); e("v_mul_u32_u24 v8, 20480, v7"); e("v_lshl_add_u32 v8, v4, 8, v8"); e("v_lshl_add_u32 v8, v5, 4, v8")
    e("v_lshlrev_b32 v11, 10, v7"); e("v_lshl_add_u32 v11, v4, 9, v11"); e("v_lshl_add_u32 v11, v5, 3, v11")
    e("s_lshl_b32 s30, s19, 11"); e(f"s_add_u32 s30, s30, {stin}")
    e("s_mul_i32 s24, s19, 40960"); e(f"s_add_u32 s24, s24, {xin}")
    e("v_add_u32 v41, 65536, v3"); e("v_add_u32 v42, 131072, v3")
    e("v_subrev_u32 v58, 1, v4"); e("v_not_b32 v59, v58")
def gemm32_loads(k, R):
    e = k.e
    def ldA(ks):
        if ks % 4 == 0 and ks > 0: e("s_add_u32 s24, s24, 4096")
        for u in range(2):
            k.vmop(f"buffer_load_dwordx4 {vr(G_AR+8*(ks%G_DA)+4*u,4)}, v8, {R}, s24 offen offset:{(ks%4)*1024+512*u} {SC}", f"a{ks}")
    ldA(0)
    for q in range(4): k.vmop(f"buffer_load_dwordx2 {vr(16+2*q,2)}, v11, {R}, s30 offen offset:{128*q} {SC}", "st")
    for ks in range(1, G_DA-1): ldA(ks)
    return ldA
def gemm32_stats(k):
    e = k.e
    k.waitvm("st")
    e("v_add_f32 v16, v16, v18"); e("v_add_f32 v17, v17, v19"); e("v_add_f32 v20, v20, v22"); e("v_add_f32 v21, v21, v23")
    e("v_add_f32 v16, v16, v20"); e("v_add_f32 v17, v17, v21")
    k.allred32("v_add_f32", 16, 18); k.allred32("v_add_f32", 17, 18)
    stats_finish(k, 16, 17, 46, 47, 18)
    split3(k, 46, 48, 18, 'm', 58)
TN = 4
def gemm32(k, vmode, fl, ldA, bars, st0, late=None):
    e = k.e; ACC, BF, AR, DA = G_ACC, G_BF, G_AR, G_DA
    acc = lambda jf: vr(ACC+16*jf, 16)
    ops = [(ks, f//4, f%4) for ks in range(20-TN) for f in range(8)] + [(ks, u, jf) for jf in range(4) for ks in range(20-TN, 20) for u in range(2)]
    def rd(i):
        ks, u, jf = ops[i]; off = ks*8192 + 1024*(4*u+jf); hi = off >> 16
        k.dsop(f"ds_read_b128 {vr(BF+4*(i%8),4)}, v{(3,41,42)[hi]} offset:{off & 0xffff}", f"b{i}")
    def mm(i):
        ks, u, jf = ops[i]
        if i % 2 == 0: k.waitlg(f"b{i+1}")
        a = vr(AR+8*(ks%DA)+4*u, 4); b = vr(BF+4*(i%8), 4); c = acc(jf) if (ks or u) else "0"
        if vmode: e(f"v_mfma_f32_32x32x16_bf16 {acc(jf)}, {a}, {b}, {c}")
        else:     e(f"v_mfma_f32_32x32x16_bf16 {acc(jf)}, {b}, {a}, {c}")
        if i + 8 < 160: rd(i + 8)
    e("s_barrier")
    for i in range(8): rd(i)
    for ks in range(20-TN):
        k.waitvm(f"a{ks}")
        if ks == 0: k.stamp(st0+1)
        if ks in bars: e("s_barrier")
        if late and ks == late[0]: k.fill(fl, 1000); fl += late[1]
        for f in range(8):
            mm(8*ks + f)
            if f == 0 and ks + DA - 1 < 20: ldA(ks + DA - 1)
            if ks >= 1: k.fill(fl, 2)
    k.fill(fl, 1000)
    for jf in range(4):
        if vmode: e(f"v_mfma_f32_32x32x8_bf16 {acc(jf)}, v[48:49], {vr(50+2*jf,2)}, {acc(jf)}")
        else:     e(f"v_mfma_f32_32x32x8_bf16 {acc(jf)}, {vr(50+2*jf,2)}, v[48:49], {acc(jf)}")
    def tail(epi, tbars=(), end=None):
        pend = []
        for jf in range(4):
            if jf in tbars: e("s_barrier")
            for n in range(2*TN):
                i = 8*(20-TN) + 2*TN*jf + n
                if n % 2 == 0: k.waitvm(f"a{ops[i][0]}")
                mm(i)
                if n >= 2: k.fill(pend, ENV('TFILL', '5'))
            k.fill(pend, 1000)
            if jf == 3:
                k.stamp(st0+2)
                if end: end()
            pend = k.capture(lambda: epi(jf))
        k.fill(pend, 1000)
    return tail

TB, TS = 88448, 296
def toff(G): return (0, 64, 128, 168, 208, 248)[G//5] + 8*(G%5)

def qkvb_c(k, xin, stin, st0):
    e = k.e; nm = k.name
    ACC, BF = G_ACC, G_BF
    ids_mt(k); gemm32_pre(k, xin, stin)
    e("v_lshrrev_b32 v6, 4, v1")
    MC, MP, MP1 = 200, 204, 208
    NEG = fbits(-1e30)
    e("v_lshlrev_b32 v17, 2, v6"); e("v_sub_u32 v17, v5, v17"); e(f"v_mov_b32 v19, {NEG}")
    for r in range(4):
        e(f"v_subrev_u32 v18, {r}, v17"); e("v_and_b32 v16, 0x80000001, v18")
        e("v_cmp_eq_u32 vcc, 0, v16"); e(f"v_cndmask_b32 v{MC+r}, v19, 0, vcc")
        e("v_cmp_eq_u32 vcc, 0x80000000, v16"); e(f"v_cndmask_b32 v{MP+r}, v19, 0, vcc")
    e("s_cmp_eq_u32 s19, 0"); e(f"s_cselect_b32 s34, {NEG}, 0")
    for r in range(4): e(f"v_add_f32 v{MP1+r}, s34, v{MP+r}")
    e(f"s_mul_i32 s35, s18, {32*TS}"); e(f"s_add_u32 s35, s35, {TB}")
    e(f"v_mul_u32_u24 v16, {TS}, v10"); e("v_add_u32 v16, s35, v16"); e(f"v_add_u32 v16, {16*TS}, v16")
    e("v_lshl_add_u32 v212, v4, 3, v16"); e("v_lshl_add_u32 v213, v4, 5, v16"); e("v_mov_b32 v219, v16")
    e("v_lshl_add_u32 v215, v4, 6, v16")
    e(f"v_mul_u32_u24 v16, {TS}, v5"); e("v_add_u32 v16, s35, v16"); e("v_lshl_add_u32 v216, v6, 4, v16")
    e("v_lshrrev_b32 v17, 2, v1"); e(f"v_mul_u32_u24 v16, {TS}, v17"); e("v_add_u32 v16, s35, v16"); e("v_and_b32 v17, 3, v1")
    e("v_lshl_add_u32 v217, v17, 3, v16")
    e("v_mul_u32_u24 v18, 40, v17"); e("v_add_u32 v18, 240, v18"); e("v_cmp_gt_u32 vcc, 2, v17"); e("v_mov_b32 v19, 288"); e("v_cndmask_b32 v18, v19, v18, vcc"); e("v_add_u32 v218, v16, v18")
    e("v_lshlrev_b32 v43, 9, v7"); e("v_lshl_add_u32 v43, v5, 3, v43")
    e("v_mov_b32 v220, 0"); e("v_mov_b32 v221, 0"); e("v_mov_b32 v222, 0x3f803f80"); e("v_mov_b32 v223, 0x3f803f80")
    e("s_mul_i32 s25, s19, 40960"); e(f"s_add_u32 s25, s25, {OBT}")
    e("s_lshl_b32 s51, s17, 10"); e("s_add_u32 s51, s51, s25"); e("s_add_u32 s52, s51, 20480")
    e("s_lshr_b32 s53, s17, 2"); e("s_add_u32 s53, s53, 16"); e("s_lshl_b32 s53, s53, 10"); e("s_add_u32 s53, s53, s25")
    e("s_and_b32 s54, s17, 1"); e("s_lshl_b32 s54, s54, 9"); e("s_add_u32 s53, s53, s54")
    e("s_bfe_u32 s54, s17, 0x10001"); e("s_lshl_b32 s54, s54, 3"); e("s_add_u32 s53, s53, s54"); e("s_add_u32 s54, s53, 20480")
    def c2():
        e("s_lshl_b32 s48, s16, 9"); e(f"s_add_u32 s48, s48, {C2}")
        e(f"v_lshlrev_b32 v{PV_+1}, 8, v1"); e(f"v_lshlrev_b32 v{PV_+2}, 3, v1"); e(f"v_sub_u32 v{PV_+2}, 16, v{PV_+2}")
        e("s_cmp_eq_u32 s16, 0"); e("s_cselect_b64 s[56:57], 1, 3")
    e("s_cmp_eq_u32 s18, 1"); e(f"s_cbranch_scc0 {nm}_ad"); e("v_lshlrev_b32 v16, 8, v1"); e("s_mov_b32 s49, 0")
    k.label(f"{nm}_ap")
    e(f"buffer_load_dword v17, v16, s[8:11], 0 offen offset:{C1} {SC}"); e("s_add_u32 s49, s49, 1"); e("s_waitcnt vmcnt(0)")
    e("v_cmp_gt_u32 vcc, 16, v17"); e("s_cmp_ge_u32 s49, 0x20000"); e(f"s_cbranch_scc1 {nm}_ad"); e(f"s_cbranch_vccnz {nm}_ap")
    k.label(f"{nm}_ad")
    wait_go(k, "p3", 1, c2)
    k.stamp(st0)
    ldA = gemm32_loads(k, RS_(xin))
    fl = k.capture(lambda: (gemm32_stats(k), e(f"v_mul_f32 v45, {fbits(CSCALE)}, v47")))
    def uops():
        for jf in range(4): k.dsop(f"ds_read_b64 {vr(50+2*jf,2)}, v43 offset:{UO+4096*jf}", "uo")
    tail = gemm32(k, False, fl, ldA, {6}, st0, (8, k.capture(uops)))
    def tab(jf):
        if jf == 0:
            for q in range(3): k.dsop(f"ds_write_b64 v215, v[220:221] offset:{40+8*q}")
            k.dsop("ds_write_b64 v219, v[222:223] offset:288")
        for G in range(8*jf, min(8*jf+8, 30), 2):
            a = ACC + 2*G
            for r in range(4): e(f"v_mul_f32 v{a+r}, v{a+r}, v{45 if G < 10 else 47}")
            for r in range(2): e(f"v_cvt_pk_bf16_f32 v{a+r}, v{a+2*r}, v{a+2*r+1}")
            k.dsop(f"ds_write_b64 v{ {8: 212, 32: 213}[toff(G+1) - toff(G)] }, {vr(a,2)} offset:{toff(G)}")
    def words():
        e("s_cmp_eq_u32 s18, 0"); e(f"s_cbranch_scc0 {nm}_ni"); lw_init(k); k.label(f"{nm}_ni")
    tail(tab, (0, 2), words)
    e("s_waitcnt lgkmcnt(0)"); e("s_barrier")
    KO = lambda b, h: 160 + 8*b + 4*h
    QO = lambda b, h: 184 + 8*(b-1) + 4*h
    VO = lambda F, b: 20 + 8*FEAF.index(F) + 2*b if False else 224 + 6*FEAF.index(F) + 2*b - (0)
    VO = lambda F, b: (128, 136, 144)[FEAF.index(F)] + 2*b
    for b in (1, 2):
        for h in range(2):
            for x in range(2): e(f"ds_read_b64 {vr(QO(b,h)+2*x,2)}, v216 offset:{16*b*TS+64*h+8*x}")
    for b in range(3):
        for h in range(2):
            for x in range(2): e(f"ds_read_b64 {vr(KO(b,h)+2*x,2)}, v216 offset:{16*b*TS+128+40*h+8*x}")
    e("s_waitcnt lgkmcnt(0)")
    for b in range(3):
        for h in range(2): e(f"ds_read_b64_tr_b16 {vr(VO(4+h,b),2)}, v217 offset:{16*b*TS+208+40*h}")
        e(f"ds_read_b64_tr_b16 {vr(VO(7,b),2)}, v218 offset:{16*b*TS}")
    units = [(b, h) for b in (1, 2) for h in range(2)]
    SU = lambda i: 64 + 8*i
    TU = lambda i: ACC + 32 + 4*i
    PU = lambda i: ACC + 48 + 4*i
    OU = lambda i: 64 + 8*i
    for i, (b, h) in enumerate(units):
        e(f"v_mfma_f32_16x16x32_bf16 {vr(SU(i),4)}, {vr(KO(b-1,h),4)}, {vr(QO(b,h),4)}, {vr(MP1 if b == 1 else MP,4)}")
        e(f"v_mfma_f32_16x16x32_bf16 {vr(SU(i)+4,4)}, {vr(KO(b,h),4)}, {vr(QO(b,h),4)}, {vr(MC,4)}")
    e("s_waitcnt lgkmcnt(0)"); e("s_barrier")
    def allred(op):
        for sw in ("v_permlane16_swap_b32", "v_permlane32_swap_b32"):
            for i in range(4): e(f"v_mov_b32 v{TU(i)+1}, v{TU(i)}")
            for i in range(4): e(f"{sw} v{TU(i)}, v{TU(i)+1}")
            for i in range(4): e(f"{op} v{TU(i)}, v{TU(i)}, v{TU(i)+1}")
    for i in range(4):
        s = SU(i)
        e(f"v_max3_f32 v{TU(i)}, v{s}, v{s+1}, v{s+2}"); e(f"v_max3_f32 v{TU(i)}, v{s+3}, v{s+4}, v{TU(i)}")
        e(f"v_max3_f32 v{TU(i)}, v{s+5}, v{s+6}, v{TU(i)}"); e(f"v_max_f32 v{TU(i)}, v{s+7}, v{TU(i)}")
    allred("v_max_f32")
    for i in range(4):
        for r in range(8): e(f"v_sub_f32 v{SU(i)+r}, v{SU(i)+r}, v{TU(i)}")
    for i in range(4):
        for r in range(8): e(f"v_exp_f32 v{SU(i)+r}, v{SU(i)+r}")
    for i in range(4):
        for r in range(4): e(f"v_cvt_pk_bf16_f32 v{PU(i)+r}, v{SU(i)+2*r}, v{SU(i)+2*r+1}")
    for i, (b, h) in enumerate(units):
        e(f"v_mfma_f32_16x16x32_bf16 {vr(OU(i)+4,4)}, {vr(VO(7,b-1),4)}, {vr(PU(i),4)}, 0")
    for i, (b, h) in enumerate(units):
        e(f"v_mfma_f32_16x16x32_bf16 {vr(OU(i),4)}, {vr(VO(4+h,b-1),4)}, {vr(PU(i),4)}, 0")
    for i in range(4): e(f"v_mov_b32 v{TU(i)}, v{OU(i)+4}"); e(f"v_mov_b32 v{TU(i)+1}, v{OU(i)+4}")
    for i in range(4): e(f"v_permlane32_swap_b32 v{TU(i)}, v{TU(i)+1}")
    for i in range(4): e(f"v_rcp_f32 v{TU(i)+1}, v{TU(i)+1}")
    e("v_cmp_eq_u32 vcc, 0, v6")
    for bi in range(2):
        o0, o1 = OU(2*bi), OU(2*bi+1); d = 40 + 8*bi; t0, t1 = TU(2*bi)+1, TU(2*bi+1)+1
        for r in range(4): e(f"v_mul_f32 v{o0+r}, v{o0+r}, v{t0}"); e(f"v_mul_f32 v{o1+r}, v{o1+r}, v{t1}")
        e(f"v_cvt_pk_bf16_f32 v{d}, v{o0}, v{o0+1}"); e(f"v_cvt_pk_bf16_f32 v{d+1}, v{o0+2}, v{o0+3}")
        e(f"v_cvt_pk_bf16_f32 v{d+2}, v{o1}, v{o1+1}"); e(f"v_cvt_pk_bf16_f32 v{d+3}, v{o1+2}, v{o1+3}")
        e(f"buffer_store_dwordx4 {vr(d,4)}, v3, s[12:15], s{51+bi} offen {SC}")
        e(f"v_cndmask_b32 v{t0}, v{t1}, v{t0}, vcc")
        for r in range(4): e(f"v_cndmask_b32 v{o0+4+r}, v{o1+4+r}, v{o0+4+r}, vcc")
        for r in range(4): e(f"v_mul_f32 v{o0+4+r}, v{o0+4+r}, v{t0}")
        e(f"v_cvt_pk_bf16_f32 v{d+4}, v{o0+4}, v{o0+5}"); e(f"v_cvt_pk_bf16_f32 v{d+5}, v{o0+6}, v{o0+7}")
    e("s_mov_b32 exec_hi, 0")
    for bi in range(2): e(f"buffer_store_dwordx2 {vr(44+8*bi,2)}, v3, s[12:15], s{53+bi} offen {SC}")

def qkvb_l(k, xin, stin, w):
    e = k.e; nm = k.name
    ids_mt(k)
    e("v_and_b32 v5, 15, v1"); e("v_lshrrev_b32 v6, 4, v1")
    e("v_lshlrev_b32 v11, 3, v5"); e("v_lshl_add_u32 v11, v6, 8, v11")
    e("v_cmp_eq_u32 vcc, 0, v6"); e("s_lshl_b32 s22, s16, 3"); e("s_max_u32 s22, s22, 1"); e("v_cndmask_b32 v4, 0, -1, vcc")
    e("s_sub_u32 s22, s22, 1")
    e("s_mul_i32 s24, s22, 20480"); e(f"s_add_u32 s24, s24, {xin}"); e("s_add_u32 s24, s24, s45")
    e("s_lshl_b32 s27, s22, 10"); e(f"s_add_u32 s27, s27, {stin}")
    HP = 49152
    e("v_lshrrev_b32 v12, 1, v6"); e("v_lshlrev_b32 v40, 12, v12"); e("v_and_b32 v12, 1, v6"); e("v_lshl_add_u32 v40, v12, 9, v40"); e("v_lshl_add_u32 v40, v5, 4, v40")
    e("s_lshl_b32 s32, s39, 13"); e("v_add_u32 v40, s32, v40"); e("v_add_u32 v41, 65536, v40"); e("v_add_u32 v42, 131072, v40")
    e("s_mul_i32 s33, s39, 6144"); e(f"s_add_u32 s33, s33, {HP}"); e("v_add_u32 v43, s33, v3")
    e("s_min_u32 s40, s39, 2"); e("s_lshl_b32 s41, s40, 11"); e(f"s_add_u32 s41, s41, {HP}"); e("v_add_u32 v44, s41, v3")
    e("s_lshl_b32 s41, s40, 12"); e("v_lshlrev_b32 v45, 3, v5"); e("v_add_u32 v45, s41, v45")
    e(f"v_mul_u32_u24 v12, {TS}, v5"); e(f"v_add_u32 v12, {TB}, v12"); e("s_lshl_b32 s41, s40, 3"); e("s_sub_u32 s41, s41, 2")
    for x in range(2):
        e(f"v_add_u32 v13, s41, v6")
        if x: e("v_add_u32 v13, 4, v13")
        e("v_add_u32 v14, 16, v13")
        e("v_cmp_gt_u32 vcc, 20, v13"); e("v_cndmask_b32 v14, 0, v14, vcc"); e(f"v_lshl_add_u32 v{50+x}, v14, 3, v12")
    e("v_mov_b32 v47, v12"); e("v_mov_b32 v56, 0x3f803f80"); e("v_mov_b32 v57, 0x3f803f80")
    atouch_pre(k, xin)
    e(f"s_setprio {ENV('P3PRIO', '0')}")
    e("s_barrier")
    if ENV('ATOUCH', '0'): k.vmop("buffer_load_dword v20, v21, s[12:15], s51 offen")
    w.one(39)
    e(f"ds_write_b64 v46, v[28:29] offset:{UO}")
    for q_ in range(2): k.vmop(f"buffer_load_dwordx2 {vr(24+2*q_,2)}, v11, s[12:15], s27 offen offset:{128*q_} {SC}", "st")
    for i in range(5):
        k.vmop(f"buffer_load_dwordx4 {vr(128+4*i,4)}, v3, s[12:15], s24 offen {SC}", f"h{i}")
        if i < 4: e("s_add_u32 s24, s24, 4096")
    k.waitvm("st")
    stats16(k, 24, 48, 52, 4)
    e("s_waitcnt lgkmcnt(0)"); e("s_barrier")
    def rd(n):
        i, j = n // 6, 2 + n % 6
        k.dsop(f"ds_read_b128 {vr(96+4*(n%6),4)}, v{40+i//2} offset:{(i%2)*32768+1024*(j//2)+256*(j%2)}", f"r{n}")
    for n in range(6): rd(n)
    for x in range(2): k.dsop(f"ds_read_b64 {vr(20+2*x,2)}, v45 offset:{UO+4096+512*x}", "u")
    for n in range(30):
        i = n // 6
        if n % 6 == 0: k.waitvm(f"h{i}")
        k.waitlg(f"r{n}")
        c = vr(148+4*(n%6), 4)
        e(f"v_mfma_f32_16x16x32_bf16 {c}, {vr(96+4*(n%6),4)}, {vr(128+4*i,4)}, {c if i else 0}")
        if n + 6 < 30: rd(n + 6)
    e("s_barrier")
    for n in range(6): e(f"ds_write_b128 v43, {vr(148+4*n,4)} offset:{1024*n}")
    e("s_waitcnt lgkmcnt(0)"); e("s_barrier")
    for p_ in range(4):
        for x in range(2): e(f"ds_read_b128 {vr(96+8*p_+4*x,4)}, v44 offset:{6144*p_+1024*x}")
    e("s_waitcnt lgkmcnt(0)")
    for r in range(8):
        e(f"v_add_f32 v{96+r}, v{96+r}, v{104+r}"); e(f"v_add_f32 v{112+r}, v{112+r}, v{120+r}"); e(f"v_add_f32 v{80+r}, v{96+r}, v{112+r}")
    for x in range(2): e(f"v_mfma_f32_16x16x16_bf16 {vr(80+4*x,4)}, {vr(20+2*x,2)}, v[52:53], {vr(80+4*x,4)}")
    for x in range(2): scale_pack(k, 80+4*x, lambda r: 48, 88+2*x)
    for x in range(2): e(f"ds_write_b64 v{50+x}, {vr(88+2*x,2)}")
    e("ds_write_b64 v47, v[56:57] offset:288")
    e(f"s_setprio {ENV('LPRIO', '2')}")
    e("s_waitcnt lgkmcnt(0)"); e("s_barrier")
    k.vm = []; k.lg = []

def one(k, target):
    k.e(f"v_mov_b32 v{PV_+1}, 0"); k.e(f"v_mov_b32 v{PV_+2}, {target}"); k.e("s_mov_b64 s[56:57], 1")

def kvpos(k):
    k.e("s_and_b32 s36, s19, 31"); k.e("s_lshl_b32 s36, s36, 1"); k.e("s_lshr_b32 s34, s19, 5"); k.e("s_add_u32 s36, s36, s34")
    k.e("s_add_u32 s36, s36, 44"); k.e("s_and_b32 s36, s36, 63")
def addr_v(k, img):
    e = k.e
    e("s_sub_u32 s35, s17, 10"); e("s_lshl_b32 s35, s35, 7")
    kvpos(k); e("s_mul_i32 s36, s36, 2560"); e(f"s_add_u32 s33, s36, {img+KVIMG+1280}")
    e("v_mul_u32_u24 v20, 320, v4")
    for jf in range(4):
        e(f"v_add_u32 v16, s35, v10")
        if jf: e(f"v_add_u32 v16, {32*jf}, v16")
        e("v_mul_u32_u24 v17, 52429, v16"); e("v_lshrrev_b32 v17, 20, v17")
        e("v_mul_u32_u24 v18, 20, v17"); e("v_sub_u32 v18, v16, v18")
        e("v_mul_u32_u24 v17, 163840, v17"); e("v_lshl_add_u32 v17, v18, 4, v17")
        e(f"v_add_u32 v{24+jf}, v17, v20")
def addr_qk(k, img, xm=52):
    e = k.e; k.xm = xm
    e("s_cmp_ge_u32 s17, 5")
    e(f"s_cselect_b32 s33, {QI}, 0"); e(f"s_cselect_b32 s59, 1.0, {fbits(CSCALE)}"); e("s_cselect_b32 s35, 5, 0"); e("s_cselect_b32 s37, 1, 0")
    e(f"s_add_u32 s33, s33, {img+QIMG}")
    e("s_sub_u32 s35, s17, s35")
    kvpos(k); e("s_cmp_eq_u32 s37, 0"); e("s_cselect_b32 s36, s19, s36")
    e("s_mul_i32 s36, s36, 1280"); e("s_lshl_b32 s36, s36, s37"); e("s_add_u32 s33, s33, s36")
    e("s_lshl_b32 s34, 81920, s37")
    e("v_lshlrev_b32 v16, 4, v10"); e("v_lshlrev_b32 v17, 3, v10")
    e("v_lshl_add_u32 v18, v4, 9, v16")
    e("s_sub_u32 s36, s34, 512"); e("v_and_b32 v19, s36, v59"); e("v_add_u32 v19, v19, v16")
    e(f"s_mov_b32 s{xm}, -1"); e(f"s_mov_b32 s{xm+1}, 0"); e(f"s_mov_b32 s{xm+2}, 0"); e(f"s_mov_b32 s{xm+3}, -1")
def epi_qk1(k, v, jf):
    e = k.e; A = G_ACC + 16*jf
    QSC = os.environ.get("QSC", "sc1")
    for r in range(16): e(f"v_mul_f32 v{A+r}, v{A+r}, v47")
    for r in range(8): e(f"v_cvt_pk_bf16_f32 v{A+r}, v{A+2*r}, v{A+2*r+1}")
    for a2 in range(2):
        x = A + 4*a2
        e(f"v_permlane32_swap_b32 v{x}, v{x+2}"); e(f"v_permlane32_swap_b32 v{x+1}, v{x+3}")
    for a2 in range(2):
        x = A + 4*a2
        G = [32*v+8*jf+4*a2, 32*v+8*jf+4*a2+2]
        def main(g):
            h = g // 5; r = g % 5
            return h, (r // 2 if h % 2 == 0 else (r - 1) // 2)
        st = [g % 10 == 4 for g in G]
        def hoff(dst, h):
            if not h: return 33
            e(f"s_mul_i32 s{dst}, s34, {h}"); e(f"s_add_u32 s{dst}, s{dst}, s33"); return dst
        if not any(st):
            (h0, p0), (h1, p1) = main(G[0]), main(G[1])
            assert (h0 == h1 and (p0, p1) == (0, 1)) or (h1 == h0 + 1 and (p0, p1) == (1, 0))
            e(f"buffer_store_dwordx4 {vr(x,4)}, v{18 if h0 == h1 else 19}, {k.srdo}, s{hoff(36, h0)} offen offset:{512*p0} {QSC}")
        else:
            m = st.index(False); q = 1 - m
            h, p = main(G[m]); s0 = hoff(36, h); s1 = hoff(37, G[q] // 5); e(f"s_add_u32 s38, s{s1}, s34")
            e(f"s_mov_b64 exec, s[{k.xm+2*m}:{k.xm+1+2*m}]")
            e(f"buffer_store_dwordx4 {vr(x,4)}, v16, {k.srdo}, s{s0} offen offset:{512*p} {QSC}")
            e(f"s_mov_b64 exec, s[{k.xm+2*q}:{k.xm+1+2*q}]")
            e(f"buffer_store_dwordx2 {vr(x,2)}, v17, {k.srdo}, s{s1} offen offset:1024 {QSC}")
            e(f"buffer_store_dwordx2 {vr(x+2,2)}, v17, {k.srdo}, s38 offen offset:1024 {QSC}")
            e("s_mov_b64 exec, -1")
def epi_v1(k, jf, RS):
    e = k.e; A = G_ACC + 16*jf
    for r in range(16): e(f"v_mul_f32 v{A+r}, v{A+r}, v{RS+r}")
    for r in range(8): e(f"v_cvt_pk_bf16_f32 v{A+r}, v{A+2*r}, v{A+2*r+1}")
    for u in range(2): e(f"buffer_store_dwordx4 {vr(A+4*u,4)}, v{24+jf}, {k.srdo}, s33 offen offset:{640*u} {os.environ.get('VSC', 'sc1')}")
def dispatch5(k, body):
    e = k.e; nm = k.name + k.ptag
    for v in range(1, 5):
        e(f"s_cmp_eq_u32 s35, {v}"); e(f"s_cbranch_scc1 {nm}_e{v}")
    vm, lg = list(k.vm), list(k.lg)
    for v in range(5):
        if v: k.label(f"{nm}_e{v}")
        k.vm, k.lg = list(vm), list(lg)
        body(v); e(f"s_branch {nm}_fin5")
def epi_qk(k, ACC, BF):
    dispatch5(k, lambda v: (k.e("s_nop 7"), [epi_qk1(k, v, jf) for jf in range(4)]))
def epi_v(k, ACC, BF, RS):
    for jf in range(4): epi_v1(k, jf, RS)

def qkva_c(k, xin, stin, img, cnt, wbar, st0):
    k.ptag = '_p5'; k.srdo = 's[12:15]'
    e = k.e; nm = k.name + k.ptag
    DA = 5
    ACC, BF, AR, RS = 64, 128, 160, 200
    gemm32_pre(k, xin, stin)
    e("v_lshlrev_b32 v12, 4, v10")
    e("s_lshl_b32 s31, s17, 11"); e(f"s_add_u32 s31, s31, {U_A}")
    for jf in range(4): k.vmop(f"buffer_load_dwordx4 {vr(24+4*jf,4)}, v12, s[12:15], s31 offen offset:{512*jf}", "u")
    def c4(): one(k, 16); e("s_lshl_b32 s48, s16, 8"); e(f"s_add_u32 s48, s48, {cnt}")
    wait_go(k, "p5", 1, c4)
    k.stamp(st0)
    ldA = gemm32_loads(k, RS_(xin))
    def prolog(vmode):
        gemm32_stats(k)
        for jf in range(4): usum(k, 24+4*jf, 50+2*jf, 18)
        if vmode:
            e("v_lshlrev_b32 v16, 4, v4")
            for r in range(16):
                e(f"v_add_u32 v17, {(8*(r//4) + r%4)*4}, v16")
                k.dsop(f"ds_bpermute_b32 v{RS+r}, v17, v47", "rs")
            addr_v(k, img)
        else:
            addr_qk(k, img); e("v_mul_f32 v47, s59, v47")
    e("s_cmp_ge_u32 s17, 10"); e(f"s_cbranch_scc1 {nm}_qv")
    vm_save = list(k.vm)
    l5a = lambda: e("s_barrier")
    tail = gemm32(k, False, k.capture(lambda: prolog(False)), ldA, {w_ - 1 for w_ in wbar}, st0)
    dispatch5(k, lambda v: tail(lambda jf: epi_qk1(k, v, jf), (), l5a))
    k.label(f"{nm}_qv"); k.vm = vm_save; k.lg = []
    tail = gemm32(k, True, k.capture(lambda: prolog(True)), ldA, {w_ - 1 for w_ in wbar}, st0)
    tail(lambda jf: epi_v1(k, jf, RS), (), l5a)
    k.label(f"{nm}_fin5")

def ph_front(k):
    k.ptag = "_f"; k.srdo = "s[12:15]"
    e = k.e; nm = k.name + k.ptag; kn = k.name
    R, DEP, SCRB, UT = 4, 2, 131072, 65536
    need = lambda ks: ks // 2
    slot = lambda st: (st % R) * 32768
    e("s_cmp_ge_u32 s2, 256"); e(f"s_cbranch_scc1 {kn}_end"); k.stamp(0); k.rstamp(1)
    e("s_load_dwordx4 s[60:63], s[0:1], 0"); e("s_load_dwordx2 s[6:7], s[0:1], 64")
    e("s_load_dwordx2 s[4:5], s[0:1], 56")
    e("s_and_b32 s20, s2, 7"); e("s_lshr_b32 s21, s2, 3")
    e("v_lshrrev_b32 v2, 6, v0"); e("v_and_b32 v1, 63, v0")
    e("v_readfirstlane_b32 s18, v2")
    e("s_and_b32 s39, s18, 3"); e("s_lshl_b32 s45, s39, 10")
    ids_mt(k)
    e("v_lshlrev_b32 v3, 4, v1"); e(f"v_lshlrev_b32 v9, {ENV('BST', '6')}, v1")
    e("s_lshl_b32 s22, s2, 2"); e("s_add_u32 s22, s22, s39"); e("s_mul_i32 s23, s22, 2400")
    if ENV('XLOC', '1'): e("s_lshl_b32 s22, s20, 5"); e("s_add_u32 s22, s22, s21"); e("s_lshl_b32 s22, s22, 2"); e("s_add_u32 s22, s22, s39")
    e("s_mul_i32 s22, s22, 2560")
    def kwait():
        e("s_waitcnt lgkmcnt(0)")
        k.stamp(2)
        k.srd(8, 60, S*D*2); k.srd(28, 62, D*3*D*2); k.srd(12, 6, WS_END)
    def burst():
        if ENV('BURST', '1'):
            e("s_mov_b32 exec_hi, 0xff" if ENV('BST', '6') == 6 else "s_mov_b64 exec, 0xfffff")
            e(f"buffer_load_dword v240, v9, s[8:11], s22 offen {os.environ.get('XNT', '')}"); e(f"buffer_load_dword v241, v9, s[28:31], s23 offen {os.environ.get('WNT', '')}")
            e("s_mov_b64 exec, -1")
    def codepf(tg):
        if ENV('CPF', '1'):
            e("s_getpc_b64 s[34:35]"); k.label(f"{nm}_pc{tg}")
            e(f"s_sub_u32 s34, s34, {nm}_pc{tg} - {kn}"); e("s_subb_u32 s35, s35, 0")
            e("v_lshlrev_b32 v242, 4, v0"); e("s_lshl_b32 s36, s21, 12"); e("v_add_u32 v242, s36, v242")
            e(f"v_and_b32 v242, 0xffffffc0, v242"); e(f"v_min_u32 v242, code_end - {kn} - 4, v242")
            e("global_load_dword v243, v242, s[34:35]")
    e("s_cmp_ge_u32 s17, 15"); e(f"s_cbranch_scc1 {nm}_ub")
    e("v_and_b32 v10, 31, v1"); e("v_lshrrev_b32 v4, 5, v1"); e("v_and_b32 v5, 15, v1"); e("v_bfe_u32 v7, v1, 4, 1")
    e("v_lshrrev_b32 v13, 2, v5"); e("v_and_b32 v6, 3, v1")
    e("v_lshl_add_u32 v14, v4, 3, v13"); e("v_lshlrev_b32 v14, 8, v14"); e("v_lshl_add_u32 v14, v7, 5, v14"); e("v_lshl_add_u32 v14, v6, 3, v14")
    e("v_add_u32 v14, 16384, v14")
    def a0():
        e("s_lshl_b32 s48, s17, 11"); e(f"s_add_u32 s48, s48, {C0}"); e(f"v_lshlrev_b32 v{PV_+1}, 8, v1"); e("s_mov_b64 s[56:57], 0xff")
    SF = ENV('SF', '10')
    e("s_cmp_ge_u32 s18, 4"); e(f"s_cbranch_scc1 {nm}_ld")
    kwait(); burst(); codepf("c")
    if ENV('TLB', '1'):
        sh = ENV('TLBS', '18')
        e("s_load_dwordx4 s[84:87], s[0:1], 32"); e("s_load_dwordx2 s[88:89], s[0:1], 16")
        e(f"v_lshlrev_b32 v236, {sh}, v0" if sh < 21 else "v_lshlrev_b32 v236, 21, v1")
        e(f"v_min_u32 v236, {STAMPS-4}, v236")
        e("s_cmp_eq_u32 s18, 0" if sh == 21 else "s_cmp_lt_u32 s18, 4"); e(f"s_cbranch_scc0 {nm}_tl")
        e("buffer_load_dword v237, v236, s[12:15], 0 offen")
        e("v_and_b32 v236, 1, v1"); e("v_mul_u32_u24 v238, 819196, v236"); e("v_mul_u32_u24 v236, 2457596, v236"); e("s_mov_b64 exec, 3")
        e("s_waitcnt lgkmcnt(0)")
        e("global_load_dword v237, v236, s[84:85]"); e("global_load_dword v237, v238, s[86:87]"); e("global_load_dword v237, v238, s[88:89]")
        e("s_mov_b64 exec, -1")
        k.label(f"{nm}_tl")
        e("s_waitcnt lgkmcnt(0)")
    ACC, BF, AR, RS = 64, 128, 160, 200
    BA, AA = 216, 224
    e("s_lshl_b32 s19, s16, 2"); e("s_add_u32 s19, s19, s18")
    for jf in range(4):
        e(f"v_xor_b32 v15, {jf}, v13"); e(f"v_lshl_add_u32 v{BA+jf}, v15, 6, v14"); e(f"v_add_u32 v{BA+4+jf}, 65536, v{BA+jf}")
    e("v_lshl_add_u32 v15, v2, 5, v10"); e("v_lshlrev_b32 v15, 7, v15"); e("v_bfe_u32 v12, v10, 1, 3"); e("v_xor_b32 v12, v12, v4")
    for q in range(4):
        e(f"v_xor_b32 v11, {2*q}, v12"); e(f"v_lshl_add_u32 v{AA+q}, v11, 4, v15"); e(f"v_add_u32 v{AA+4+q}, 65536, v{AA+q}")
    e("v_mul_u32_u24 v8, 20480, v7"); e("v_lshl_add_u32 v8, v4, 8, v8"); e("v_lshl_add_u32 v8, v5, 4, v8")
    e("s_mul_i32 s24, s19, 40960"); e(f"s_add_u32 s24, s24, {XI}")
    e("v_subrev_u32 v58, 1, v4"); e("v_not_b32 v59, v58")
    e("s_lshl_b32 s40, s2, 2"); e("s_add_u32 s40, s40, s39"); e("s_mul_i32 s40, s40, 8192"); e(f"s_add_u32 s40, s40, {QIMG}"); e("v_lshlrev_b32 v238, 7, v1")
    e("s_cmp_ge_u32 s17, 10"); e(f"s_cbranch_scc1 {nm}_qv")
    FTN = ENV('FTN', '2'); K1 = 20 - FTN
    def mainloop(vmode):
        tagm = "v" if vmode else "q"
        acc = lambda jf: vr(ACC+16*jf, 16)
        fl = k.capture(lambda: addr_v(k, 0) if vmode else addr_qk(k, 0, 28))
        ops = [(ks, f//4, f%4) for ks in range(K1) for f in range(8)] + [(ks, u, jf) for jf in range(4) for ks in range(K1, 20) for u in range(2)]
        kb = [-1]; na = [0]
        def rdA(ks):
            sl = slot(ks//2)
            for u in range(2): k.dsop(f"ds_read_b128 {vr(AR+8*(ks%4)+4*u,4)}, v{AA+4*(sl>>16)+2*(ks%2)+u} offset:{sl & 0xffff}", f"a{ks}")
        def rd(i):
            ks, u, jf = ops[i]; sl = slot(ks//2)
            while kb[0] < need(ks): e("s_barrier"); kb[0] += 1
            while na[0] <= ks: rdA(na[0]); na[0] += 1
            for t in range(2):
                off = sl + (32*(ks%2) + 16*u + 4*t)*256
                k.dsop(f"ds_read_b64_tr_b16 {vr(BF+4*(i%8)+2*t,2)}, v{BA+4*(sl>>16)+jf} offset:{off & 0xffff}", f"b{i}")
        def mm(i):
            ks, u, jf = ops[i]
            if i % 2 == 0: k.waitlg(f"b{i+1}")
            a = vr(AR+8*(ks%4)+4*u, 4); b = vr(BF+4*(i%8), 4); c = acc(jf) if (ks or u) else "0"
            if vmode: e(f"v_mfma_f32_32x32x16_bf16 {acc(jf)}, {a}, {b}, {c}")
            else:     e(f"v_mfma_f32_32x32x16_bf16 {acc(jf)}, {b}, {a}, {c}")
            if i + 8 < 160: rd(i + 8)
        def xst(ks, tg):
            e(f"s_cmp_eq_u32 s17, {ks % 15}"); e(f"s_cbranch_scc0 {nm}_x{tg}{ks}")
            e(f"s_add_u32 s32, s24, {1024*ks}")
            for u in range(2): e(f"buffer_store_dwordx4 {vr(AR+8*(ks%4)+4*u,4)}, v8, s[12:15], s32 offen offset:{512*u} {SC}")
            k.label(f"{nm}_x{tg}{ks}")
        for i in range(8):
            rd(i)
            if i == 0: k.stamp(3)
        for ks in range(K1):
            for f in range(8):
                mm(8*ks + f)
                if ks >= 4: k.fill(fl, 1)
            xst(ks, tagm)
            if ks in (0, 1, 4, 9, 10, 14): k.stamp(7 + (0, 1, 4, 9, 10, 14).index(ks))
        assert not fl
        e(f"v_lshlrev_b32 v23, 2, v10"); e(f"v_add_u32 v23, {UT}, v23"); e("s_lshl_b32 s32, s18, 8"); e("v_add_u32 v22, s32, v23")
        if vmode: e("v_lshlrev_b32 v21, 4, v4"); e(f"s_add_u32 s32, s32, {UT}"); e("v_add_u32 v21, s32, v21")
        for n in range(2*FTN): mm(8*K1 + n)
        for ks in range(K1, 20): xst(ks, tagm)
        assert kb[0] == 9
        k.stamp(4)
        e("s_barrier")
        k.dsop("ds_read_b32 v48, v22 offset:1024", "u"); k.dsop("ds_read_b32 v49, v22 offset:1152", "u")
        for jf in range(4): k.dsop(f"ds_read_b32 v{28+2*jf}, v23 offset:{256*jf}", "u"); k.dsop(f"ds_read_b32 v{29+2*jf}, v23 offset:{256*jf+128}", "u")
        if vmode:
            for a_ in range(4): k.dsop(f"ds_read_b128 {vr(RS+4*a_,4)}, v21 offset:{2048+32*a_}", "u")
        else: k.dsop("ds_read_b32 v47, v22 offset:2048", "u")
        def corr(jf):
            if vmode: e(f"v_mfma_f32_32x32x8_bf16 {acc(jf)}, v[48:49], {vr(28+2*jf,2)}, {acc(jf)}")
            else:     e(f"v_mfma_f32_32x32x8_bf16 {acc(jf)}, {vr(28+2*jf,2)}, v[48:49], {acc(jf)}")
        for n in range(2): mm(8*K1 + 2*FTN + n)
        k.waitlg("u")
        e("v_and_b32 v48, v48, v58"); e("v_and_b32 v49, v49, v58")
        if not vmode: e("v_mul_f32 v47, s59, v47")
        corr(0)
        k.stamp(5)
        def tail(epi):
            pend = k.capture(lambda: epi(0))
            for jf in range(1, 4):
                for n in range(2 if jf == 1 else 0, 2*FTN):
                    mm(8*K1 + 2*FTN*jf + n)
                    if n >= (4 if jf == 1 else 2): k.fill(pend, ENV('TFILL', '5'))
                corr(jf)
                k.fill(pend, 1000)
                pend = k.capture(lambda: epi(jf))
            k.fill(pend, 1000)
        return tail
    tail = mainloop(False)
    dispatch5(k, lambda v: tail(lambda jf: epi_qk1(k, v, jf)))
    k.label(f"{nm}_qv"); k.lg = []
    tail = mainloop(True)
    tail(lambda jf: epi_v1(k, jf, RS))
    k.label(f"{nm}_fin5")
    k.stamp(6)
    e("s_barrier")
    signal(k, "sf", -1, 8, a0, 0, "s[12:15]")
    k.dump(13)
    e(f"s_branch {kn}_t0")
    k.label(f"{nm}_ld"); k.vm = []; k.lg = []
    e(f"s_setprio {ENV('LPRIO', '2')}")
    e("v_lshrrev_b32 v16, 4, v1"); e("v_and_b32 v17, 3, v2")
    e("v_lshl_add_u32 v18, v17, 2, v16"); e("v_mul_u32_u24 v20, 3840, v18")
    e("v_xor_b32 v18, v13, v16"); e("v_lshl_add_u32 v20, v18, 6, v20"); e("v_lshl_add_u32 v20, v6, 4, v20")
    e("v_lshrrev_b32 v18, 3, v1"); e("v_lshl_add_u32 v19, v17, 5, v18"); e("v_and_b32 v23, 7, v1")
    for i in range(4):
        e(f"v_add_u32 v42, {8*i}, v19"); e("v_bfe_u32 v43, v42, 1, 3"); e("v_xor_b32 v43, v43, v23")
        e("v_mul_u32_u24 v42, 1280, v42"); e(f"v_lshl_add_u32 v{48+i}, v43, 4, v42")
        if i: e(f"v_subrev_u32 v{48+i}, {1024*i}, v{48+i}")
    e("s_lshl_b32 s25, s17, 8"); e("s_mul_i32 s24, s16, 163840"); e("s_lshl_b32 s26, s39, 12")
    def ld1(st, n):
        if n < 4:
            e(f"s_add_u32 m0, s45, {slot(st)+16384+4096*n}"); e(f"s_add_u32 s32, s25, {(64*st+16*n)*3840}")
            k.vmop(f"buffer_load_dwordx4 v20, s[28:31], s32 offen {os.environ.get('WNT2', '')} lds", f"d{st}")
        else:
            e(f"s_add_u32 m0, s26, {slot(st)}"); e(f"s_add_u32 s33, s24, {128*st}")
            k.vmop(f"buffer_load_dwordx4 v{44+n}, s[8:11], s33 offen offset:{1024*(n-4)} {os.environ.get('XNT2', '')} lds", f"d{st}")
    ORD = [0, 4, 1, 5, 2, 6, 3, 7]
    def ld(st):
        for n in ORD: ld1(st, n)
    kwait(); ld(0)
    e("v_xor_b32 v15, v17, v13"); e("v_lshl_add_u32 v40, v15, 6, v14"); e("v_add_u32 v41, 65536, v40")
    e("v_and_b32 v42, 1, v16"); e("v_cmp_eq_u32 vcc, v42, v5"); e("v_mov_b32 v43, 0x3f803f80")
    for r in range(4): e(f"v_cndmask_b32 v{60+r}, 0, v43, vcc")
    k.srd(52, 4, 256)
    e("s_mul_i32 s27, s17, 163840"); e("s_add_u32 s27, s27, s45"); e(f"s_add_u32 s27, s27, {WA_I}")
    if ENV('LD1', '0'): ld(1)
    done = [0]
    def steps_of(kb):
        r = []
        while done[0] < 20 and need(done[0]) <= kb: r.append(done[0]); done[0] += 1
        return r
    def wa_store(q):
        e("s_lshl_b32 s32, s16, 13"); e("s_add_u32 s32, s32, s27")
        if q: e("s_add_u32 s32, s32, 131072")
        e("s_add_u32 s33, s32, 4096")
        for u in range(2): k.vmop(f"buffer_store_dwordx4 {vr(112+8*q+4*u,4)}, v3, s[12:15], s{32+u} offen {SC}")
    for kb in range(10):
        if kb == 5: k.stamp(5)
        k.waitvm(f"d{kb}")
        if kb == 5: k.stamp(6)
        e("s_barrier")
        if kb in (4, 5): k.stamp(2 if kb == 4 else 7)
        if kb == 0 and not ENV('LD1', '0'): ld(1)
        sl = slot(kb); todo = list(ORD) if kb + DEP < 10 else []
        nxt = lambda: ld1(kb + DEP, todo.pop(0)) if todo else None
        sts = steps_of(kb)
        for n_, ks in enumerate(sts):
            for u in range(2):
                for t in range(2):
                    e(f"ds_read_b64_tr_b16 {vr(136+8*n_+4*u+2*t,2)}, v{40+(sl>>16)} offset:{(sl + (32*(ks%2) + 16*u + 4*t)*256) & 0xffff}")
        nxt(); nxt()
        if kb == 4: k.stamp(3)
        e("s_waitcnt lgkmcnt(0)")
        mf = [(n_, ks, u) for n_, ks in enumerate(sts) for u in range(2)]
        for n_, ks, u in mf:
            e(f"v_mfma_f32_16x16x32_bf16 v[64:67], v[60:63], {vr(136+8*n_+4*u,4)}, {'v[64:67]' if ks or u else 0}")
            nxt()
        nxt(); nxt()
        if kb == 4: k.stamp(4)
        for n_, ks in enumerate(sts):
            e(f"s_cmp_eq_u32 s16, {ks % 16}"); e(f"s_cbranch_scc0 {nm}_w{ks}")
            for r in range(8): e(f"v_mov_b32 v{112+8*(ks//16)+r}, v{136+8*n_+r}")
            k.label(f"{nm}_w{ks}")
        assert not todo
        if kb == 8:
            e("v_and_b32 v24, 15, v1"); e("v_lshlrev_b32 v24, 2, v24"); e("s_mov_b32 s33, 0")
            k.label(f"{nm}_pl")
            e(f"buffer_load_dword v25, v24, s[52:55], 0 offen {SC}"); e("s_add_u32 s33, s33, 1"); e("s_waitcnt vmcnt(0)"); k.vm = []
            e("v_cmp_eq_u32 vcc, 0, v25"); e("s_cmp_ge_u32 s33, 0x20000"); e(f"s_cbranch_scc1 {nm}_px")
            e(f"s_cbranch_vccnz {nm}_pl")
            k.label(f"{nm}_px")
            e("v_lshlrev_b32 v24, 3, v10"); e("s_lshl_b32 s32, s16, 10"); e("s_lshl_b32 s33, s39, 8"); e("s_add_u32 s32, s32, s33"); e(f"s_add_u32 s32, s32, {STI}")
            k.vmop(f"buffer_load_dwordx2 v[44:45], v24, s[12:15], s32 offen {SC}", "rs")
        if kb == 9: k.waitvm("rs"); wa_store(0)
    k.waitvm("rs")
    stats_finish(k, 44, 45, 28, 29, 30)
    e("v_lshlrev_b32 v42, 2, v5"); e("ds_bpermute_b32 v68, v42, v64"); e("ds_bpermute_b32 v69, v42, v65"); e("v_cmp_eq_u32 vcc, 1, v7")
    split3(k, 28, 32, 36, 'm')
    e("s_waitcnt lgkmcnt(0)"); e("v_cndmask_b32 v64, v68, v69, vcc")
    split3(k, 64, 34, 36, 'u')
    e("v_lshlrev_b32 v24, 2, v10"); e("s_lshl_b32 s32, s39, 8"); e(f"s_add_u32 s32, s32, {UT}"); e("v_add_u32 v24, s32, v24")
    e("ds_write_b32 v24, v34"); e("ds_write_b32 v24, v35 offset:128"); e("ds_write_b32 v24, v32 offset:1024"); e("ds_write_b32 v24, v33 offset:1152"); e("ds_write_b32 v24, v29 offset:2048")
    e("s_waitcnt lgkmcnt(0)"); e("s_barrier")
    lwc_init(k); e("s_barrier")
    e("v_mov_b32 v44, v64")
    e("s_cmp_ge_u32 s16, 4"); e(f"s_cbranch_scc1 {nm}_le"); wa_store(1)
    e("s_cmp_eq_u32 s16, 0"); e(f"s_cbranch_scc0 {nm}_le")
    e("v_mov_b32 v45, 0"); e("v_mov_b32 v46, 0"); e("v_mov_b32 v47, 0"); e("v_lshlrev_b32 v24, 4, v10")
    e("s_lshl_b32 s32, s17, 11"); e("s_lshl_b32 s33, s39, 9"); e("s_add_u32 s32, s32, s33"); e(f"s_add_u32 s32, s32, {U_A}")
    e("s_mov_b32 exec_hi, 0"); e(f"buffer_store_dwordx4 v[44:47], v24, s[12:15], s32 offen {SC}")
    k.label(f"{nm}_le")
    e("s_mov_b64 exec, -1")
    signal(k, "sfl", -1, 8, a0, 0, "s[12:15]")
    k.dump(8)
    e(f"s_branch {kn}_t0")
    k.label(f"{nm}_ub"); k.vm = []; k.lg = []
    kwait()
    e("v_lshrrev_b32 v4, 3, v1"); e("v_lshl_add_u32 v4, v2, 4, v4"); e("v_mul_u32_u24 v5, 1280, v4"); e("v_and_b32 v6, 7, v1"); e("v_lshl_add_u32 v5, v6, 4, v5")
    e("s_mul_i32 s24, s16, 163840"); e("s_add_u32 s25, s24, 10240")
    for b_ in range(2):
        for i in range(10): k.vmop(f"buffer_load_dwordx4 {vr(24+40*b_+4*i,4)}, v5, s[8:11], s{24+b_} offen offset:{128*i} {os.environ.get('XNT2', '')}", f"x{b_}{i}")
    for j in range(8): e(f"v_mov_b32 v{8+j}, 0")
    e("v_mov_b32 v7, 0x3f803f80")
    e("v_lshlrev_b32 v16, 4, v0"); e("s_and_b32 s26, s16, 7"); e("s_lshl_b32 s26, s26, 13"); e(f"s_add_u32 s26, s26, {CNT}"); e("s_cmp_ge_u32 s16, 8"); e(f"s_cselect_b32 s27, {LS}, 0"); e("s_add_u32 s26, s26, s27")
    k.vmop(f"buffer_store_dwordx4 v[12:15], v16, s[12:15], s26 offen {SC}")
    for b_ in range(2):
        for i in range(10):
            k.waitvm(f"x{b_}{i}")
            for q in range(4):
                r = 24+40*b_+4*i+q
                e(f"v_dot2_f32_bf16 v{8+2*b_}, v{r}, v7, v{8+2*b_}"); e(f"v_dot2_f32_bf16 v{9+2*b_}, v{r}, v{r}, v{9+2*b_}")
    for dpp in ("quad_perm:[1,0,3,2]", "quad_perm:[2,3,0,1]", "row_half_mirror"):
        for q in range(4): e(f"v_add_f32_dpp v{8+q}, v{8+q}, v{8+q} {dpp} row_mask:0xf bank_mask:0xf")
    e("v_lshlrev_b32 v4, 3, v4"); e("s_lshl_b32 s26, s16, 10"); e(f"s_add_u32 s26, s26, {STI}")
    e("v_cmp_eq_u32 vcc, 0, v6"); k.srd(52, 4, 256); e("s_mov_b64 exec, vcc")
    e(f"buffer_store_dwordx2 v[8:9], v4, s[12:15], s26 offen {SC}"); e(f"buffer_store_dwordx2 v[10:11], v4, s[12:15], s26 offen offset:64 {SC}")
    e("s_mov_b64 exec, -1"); lwc_init(k)
    e("s_waitcnt vmcnt(0)"); e("s_barrier")
    e("s_cmp_ge_u32 s18, 4"); e(f"s_cbranch_scc1 {nm}_u2")
    codepf("u")
    e("s_cmp_eq_u32 s18, 0"); e(f"s_cbranch_scc0 {nm}_u2")
    e("v_mov_b32 v4, 0"); e("v_mov_b32 v5, 1"); e("s_lshl_b32 s26, s16, 2"); e("s_mov_b64 exec, 1")
    e(f"buffer_store_dword v5, v4, s[52:55], s26 offen {SC}")
    e("s_mov_b64 exec, 0xffff"); e("v_lshlrev_b32 v4, 2, v1"); e("s_mov_b32 s33, 0")
    k.label(f"{nm}_u1")
    e(f"buffer_load_dword v5, v4, s[52:55], 0 offen {SC}"); e("s_add_u32 s33, s33, 1"); e("s_waitcnt vmcnt(0)")
    e("v_cmp_eq_u32 vcc, 0, v5"); e("s_cmp_ge_u32 s33, 0x20000"); e(f"s_cbranch_scc1 {nm}_u2"); e(f"s_cbranch_vccnz {nm}_u1")
    k.label(f"{nm}_u2")
    e("s_mov_b64 exec, -1"); e("s_waitcnt vmcnt(0)")

def k_main():
    k = KB(NAME + "_kernel"); e = k.e; name = k.name
    ph_front(k)
    k.label(f"{name}_t0")
    e("s_load_dwordx2 s[46:47], s[0:1], 48"); e("s_mov_b32 s3, 0")
    k.srd(8, 6, 2*LS)
    e("s_waitcnt lgkmcnt(0)")
    k.srd(60, 46, S*D*2)
    k.label(f"{name}_top")
    k.vm = []; k.lg = []
    e("s_setprio 0"); k.stamp(0); k.rstamp(1)
    ph_attn(k)
    def a1():
        e("s_lshl_b32 s48, s17, 3"); e("s_and_b32 s49, s16, 1"); e("s_add_u32 s48, s48, s49"); e("s_lshl_b32 s48, s48, 8"); e(f"s_add_u32 s48, s48, {C1}")
        e(f"v_lshlrev_b32 v{PV_+1}, 9, v1"); e("s_mov_b64 s[56:57], 15")
    e("s_cmp_ge_u32 s18, 4"); e(f"s_cbranch_scc1 {name}_ld")
    signal(k, "s1", 0, 8, a1)
    def c1():
        e("s_lshl_b32 s48, s16, 9"); e(f"s_add_u32 s48, s48, {C1}")
        e(f"v_lshlrev_b32 v{PV_+1}, 8, v1"); e(f"v_mov_b32 v{PV_+2}, 16"); e("s_mov_b64 s[56:57], 3")
    proj_c(k, "p2", OT, XI, XM, STM, False, c1, 0, 6)
    def a2():
        e("s_lshr_b32 s48, s16, 1"); e("s_lshl_b32 s48, s48, 9"); e(f"s_add_u32 s48, s48, {C2}")
        e(f"v_mul_u32_u24 v{PV_+1}, 768, v1"); e("s_bitcmp1_b32 s16, 0"); e("s_cselect_b64 s[56:57], 3, 1")
    signal(k, "s2", 1, 4, a2)
    qkvb_c(k, XM, STM, 9)
    def a3(): one(k, 0); e("s_lshl_b32 s48, s16, 8"); e(f"s_add_u32 s48, s48, {C3}")
    signal(k, "s3", 0, 4, a3)
    def c3(): one(k, 16); e("s_lshr_b32 s48, s16, 1"); e("s_lshl_b32 s48, s48, 8"); e(f"s_add_u32 s48, s48, {C3}")
    proj_c(k, "p4", OBT, XM, XI, STI, True, c3, 0, 12)
    def a4(): one(k, 0); e("s_lshr_b32 s48, s16, 1"); e("s_lshl_b32 s48, s48, 8"); e(f"s_add_u32 s48, s48, {C4}")
    signal(k, "s4", 1, 4, a4)
    k.dump(15, "1")
    ids_mt(k)
    e("s_cmp_ge_u32 s17, 15"); e(f"s_cbranch_scc1 {name}_idle")
    qkva_c(k, XI, STI, 0, C4, [7], 3)
    k.stamp(6)
    e("s_barrier")
    def a5(): e("s_lshl_b32 s48, s17, 11"); e(f"s_add_u32 s48, s48, {LS + C0}"); e(f"v_lshlrev_b32 v{PV_+1}, 8, v1"); e("s_mov_b64 s[56:57], 0xff")
    signal(k, "s5", -1, 4, a5)
    k.dump(7, "3")
    k.label(f"{name}_t1")
    e("s_mov_b32 s3, 1"); e(f"s_add_u32 s8, s8, {LS}"); e("s_addc_u32 s9, s9, 0"); e(f"s_mov_b32 s10, {LS}")
    e(f"s_branch {name}_top")
    k.label(f"{name}_idle")
    for _ in range(4): e("s_barrier")
    e(f"s_branch {name}_t1")
    k.label(f"{name}_ld"); k.vm = []; k.lg = []
    if os.environ.get("FOC") == "at": e("s_add_u32 s84, s3, 4"); k.dump(8, "s84")
    e(f"s_setprio {ENV('LPRIO', '2')}")
    w = proj_l(k, WOA_I, WB_I, OT, a1, 0)
    qkvb_l(k, XM, STM, w)
    w = proj_l(k, WOB_I, WA_I, OBT, None, 0, True)
    ids_mt(k)
    atouch_pre(k, XI)
    e("s_barrier")
    w.one(39); e("s_waitcnt vmcnt(0)"); e("s_barrier")
    e("s_barrier"); lwc_init(k); e("s_barrier")
    e(f"s_branch {name}_t1")
    k.label(f"{name}_end"); e("s_endpgm")
    k.tail()
    return k.text(256 if STAMP else 244, 256 if STAMP else 244)

def build():
    hdr = open("cdna_kernels/" + NAME + ".s.ref").read().split("; Override launch")[0]
    out = hdr + "; @launch grid=(256,1,1) block=(512,1,1) lds=163840\n"
    out += '.amdgcn_target "amdgcn-amd-amdhsa--gfx950"\n'
    out += k_main()
    out += ".text\ncode_end:\n"
    return out

if __name__ == "__main__":
    dst = sys.argv[1] if len(sys.argv) > 1 else "cdna_kernels/" + NAME + ".s"
    open(dst, "w").write(build())
    print("wrote", dst)
```

```python
import sys, math
from lint import lint, fix

NAME = "interleave_layers__softmax_full_mha__sliding_local_dilated__prompt"
S, D, H, DH = 2048, 640, 32, 20
XS = S*D*2
IMG = H*64*2560
QI = H*64*1280
CNT = 0
C1 = CNT; C2 = C1 + 64*256; C3 = C2 + 34*256; C4 = C3 + 16*256; C0 = C4 + 16*256
LS = 65536
CS = LS + C4
XI = 2*LS; STI = XI + XS
QIMG = STI + S*64; KVIMG = QIMG + QI
OT = KVIMG + IMG; OBT = OT + XS; XM = OBT + XS
STM = XM + XS
U_A = STM + S*64
U_B = U_A + 32768
WA_I = U_B + 163840
WOA_I = WA_I + 15*163840
WB_I = WOA_I + 819200
WOB_I = WB_I + 16*163840
STAMPS = WOB_I + 819200
WS_END = STAMPS + 16*262144
import os
STAMP = int(os.environ.get("STAMP", "0"))
ATTN_WAVES = 8
AV = os.environ.get("AV", "")
CSCALE = (DH ** -0.5) * math.log2(math.e)
import struct
def fbits(x): return "0x%08x" % struct.unpack("<I", struct.pack("<f", x))[0]

FM = [(0,16),(32,48),(80,96),(112,128),(64,144)]
def FX(ks, t):
    return 160*(ks//5) + FM[ks%5][t]

class KB:
    def __init__(s, name):
        s.name = name; s.L = []; s.vm = []; s.lg = []; s.cap = None
    def e(s, line):
        if s.cap is not None: s.cap.append(('e', line, None))
        else: s.L.append("    " + line)
    def capture(s, fn):
        s.cap = []; fn(); c = s.cap; s.cap = None
        return [x for x in c if not (x[0] == 'e' and x[1].startswith('s_nop'))]
    def fill(s, lst, n=1):
        for _ in range(n):
            if not lst: return
            kind, a, b = lst.pop(0)
            if kind == 'e':
                s.e(a)
                if a.startswith('s_mov_b64 exec, s['):
                    while True:
                        x = lst.pop(0)[1]; s.e(x)
                        if x == 's_mov_b64 exec, -1': break
                if a.startswith('s_cmp'):
                    while lst and lst[0][0] == 'e' and lst[0][1].startswith('s_cselect'): s.e(lst.pop(0)[1])
            elif kind == 'ds': s.dsop(a, b)
            elif kind == 'wvm': s.waitvm(a)
            elif kind == 'wlg': s.waitlg(a)
    def c(s, txt): s.L.append("    ; " + txt)
    def label(s, l): s.L.append(l + ":")
    def vmop(s, line, tag=None): s.e(line); s.vm.append(tag); assert len(s.vm) <= 63, (s.name, len(s.vm))
    def dsop(s, line, tag=None):
        if s.cap is not None: s.cap.append(('ds', line, tag)); return
        s.e(line); s.lg.append(tag)
    def _n(s, lst, tag):
        idx = max(i for i, t in enumerate(lst) if t == tag)
        return idx
    def waitvm(s, tag):
        if s.cap is not None: s.cap.append(('wvm', tag, None)); return
        if tag not in s.vm: return
        i = s._n(s.vm, tag); n = len(s.vm) - 1 - i
        s.e(f"s_waitcnt vmcnt({n})"); s.vm = s.vm[i+1:]
    def waitlg(s, tag):
        if s.cap is not None: s.cap.append(('wlg', tag, None)); return
        if tag not in s.lg: return
        i = s._n(s.lg, tag); n = len(s.lg) - 1 - i
        if n > 15: n = 15; i = len(s.lg) - 1 - n
        s.e(f"s_waitcnt lgkmcnt({n})"); s.lg = s.lg[i+1:]
    def waitall(s):
        s.e("s_waitcnt vmcnt(0) lgkmcnt(0)"); s.vm = []; s.lg = []
    def srd(s, r, base, nbytes):
        s.e(f"s_mov_b32 s{r}, s{base}")
        s.e(f"s_and_b32 s{r+1}, s{base+1}, 0xffff")
        s.e(f"s_mov_b32 s{r+2}, {nbytes}")
        s.e(f"s_mov_b32 s{r+3}, 0x20000")
    def stamp(s, i):
        if not STAMP: return
        op = "s_memrealtime" if os.environ.get("RT") else "s_memtime"
        s.e(f"{op} s[{64+2*i}:{65+2*i}]" if i < 10 else f"{op} s[{72+2*i}:{73+2*i}]")
    def rstamp(s, i):
        if not STAMP: return
        s.e(f"s_memrealtime s[{64+2*i}:{65+2*i}]")
    def dump(s, n=8, slot="0", wave="s18"):
        if not STAMP: return
        e = s.e
        if os.environ.get("DBG"):
            keep = {"0": [(1, 246), (3, 247), (6, 248)], "1": [(2, 249), (5, 250), (14, 251)], "3": [(6, 252)], "2": [(2, 253), (5, 254), (14, 255)]}[slot]
            e("s_waitcnt lgkmcnt(0)")
            if n < 7 or (slot == "0" and n == 8): return
            for i, v in keep: e(f"v_mov_b32 v{v}, s{64+2*i if i < 10 else 72+2*i}")
            if slot == "2":
                e(f"s_cmp_eq_u32 s2, {os.environ['DBG']}"); e("s_cbranch_scc0 dbg_skip"); e("s_cmp_eq_u32 s18, 0"); e("s_cbranch_scc0 dbg_skip")
                e("s_load_dwordx2 s[84:85], s[0:1], 56"); e("s_memrealtime s[86:87]"); e("s_waitcnt lgkmcnt(0)")
                s.srd(88, 84, 256); e("s_mov_b64 exec, 1"); e("v_mov_b32 v0, 0"); e("v_mov_b32 v245, s86"); e("v_sub_u32 v245, v245, v246")
                for i in range(9):
                    e(f"v_sub_u32 v{247+i}, v{247+i}, v246"); e(f"buffer_store_dword v{247+i}, v0, s[88:91], 0 offen offset:{4*i}")
                e("buffer_store_dword v245, v0, s[88:91], 0 offen offset:36")
                s.label("dbg_skip")
            return
        e("s_memrealtime s[86:87]"); e("s_waitcnt lgkmcnt(0)")
        e("s_mov_b64 exec, 1")
        e(f"s_lshl_b32 s84, {slot}, 18")
        e("s_lshl_b32 s85, s2, 3"); e(f"s_add_u32 s85, s85, {wave}"); e("s_lshl_b32 s85, s85, 6"); e(f"s_add_u32 s85, s85, {STAMPS}"); e("s_add_u32 s85, s85, s84")
        e("v_mov_b32 v244, 0")
        for i in range(n):
            e(f"v_mov_b32 v245, s{64+2*i if i < 10 else 72+2*i}")
            e(f"buffer_store_dword v245, v244, s[12:15], s85 offen offset:{4*i}")
        e("v_mov_b32 v245, s86"); e("buffer_store_dword v245, v244, s[12:15], s85 offen offset:60")
        e("s_mov_b64 exec, -1")
    def text(s, vgpr, accum, sgpr=102):
        s.L, added = fix(s.L)
        if os.environ.get("V"): print(s.name, "auto nops:", added, "lines:", len(s.L))
        out = [".text", f".globl {s.name}", ".p2align 8", f".type {s.name},@function", f"{s.name}:"]
        out += s.L
        out += ['.section .rodata,"a"', ".p2align 6", f".amdhsa_kernel {s.name}",
                f"  .amdhsa_next_free_vgpr {vgpr}", f"  .amdhsa_next_free_sgpr {sgpr}", f"  .amdhsa_accum_offset {accum}",
                "  .amdhsa_group_segment_fixed_size 0", "  .amdhsa_kernarg_size 72", "  .amdhsa_user_sgpr_count 2",
                "  .amdhsa_user_sgpr_kernarg_segment_ptr 1", "  .amdhsa_system_sgpr_workgroup_id_x 1", ".end_amdhsa_kernel"]
        nb = lint(s.L, s.name)
        assert nb == 0, f"{nb} hazards in {s.name}"
        return "\n".join(out) + "\n"
    def allred32(s, op, v, t):
        s.e(f"v_mov_b32 v{t}, v{v}"); s.e("s_nop 1")
        s.e(f"v_permlane32_swap_b32 v{v}, v{t}"); s.e("s_nop 1")
        s.e(f"{op} v{v}, v{v}, v{t}")
    def allred16(s, op, v, t):
        s.e(f"v_mov_b32 v{t}, v{v}"); s.e("s_nop 1")
        s.e(f"v_permlane16_swap_b32 v{v}, v{t}"); s.e("s_nop 1")
        s.e(f"{op} v{v}, v{v}, v{t}")

def vr(a, n): return f"v[{a}:{a+n-1}]" if n > 1 else f"v{a}"
def ar(a, n): return f"a[{a}:{a+n-1}]" if n > 1 else f"a{a}"

def stats_finish(k, s1, s2, mean, rstd, t):
    e = k.e
    e(f"v_mul_f32 v{mean}, {fbits(1.0/D)}, v{s1}")
    e(f"v_mul_f32 v{t}, {fbits(1.0/D)}, v{s2}")
    e(f"v_fma_f32 v{t}, -v{mean}, v{mean}, v{t}")
    e(f"v_max_f32 v{t}, 0, v{t}")
    e(f"v_add_f32 v{t}, {fbits(1e-5)}, v{t}")
    e(f"v_rsq_f32 v{rstd}, v{t}")
    e("s_nop 0")

def split3(k, src, d, t, kind, maskv=None):
    e = k.e
    if kind == 'm':
        e(f"v_xor_b32 v{t+1}, 0x80000000, v{src}"); src = t+1
    e(f"v_and_b32 v{t}, 0xffff0000, v{src}")
    e(f"v_sub_f32 v{t+2}, v{src}, v{t}")
    if kind == 'u':
        e(f"v_cvt_pk_bf16_f32 v{d}, v{t}, v{t+2}")
        e(f"v_lshrrev_b32 v{d+1}, 16, v{t}")
    else:
        e(f"v_cvt_pk_bf16_f32 v{d}, v{t}, v{t}")
        e(f"v_cvt_pk_bf16_f32 v{d+1}, v{t+2}, 0")
    if maskv is not None:
        e(f"v_and_b32 v{d}, v{d}, v{maskv}"); e(f"v_and_b32 v{d+1}, v{d+1}, v{maskv}")

SC = "sc1"
RS_ = lambda off: "s[12:15]" if off >= 2*LS else "s[8:11]"
EARLY = int(os.environ.get('EARLY', '6'))
ENV = lambda n, d: int(os.environ.get(n, d))

def ids_mt(k):
    k.e("s_lshl_b32 s22, s20, 1"); k.e("s_and_b32 s23, s21, 1"); k.e("s_add_u32 s16, s22, s23"); k.e("s_lshr_b32 s17, s21, 1")
def ids_rt(k):
    k.e("s_lshl_b32 s22, s20, 2"); k.e("s_and_b32 s23, s21, 3"); k.e("s_add_u32 s16, s22, s23"); k.e("s_lshr_b32 s17, s21, 2")

LW = 163824
PV_ = 240
def lw_init(k):
    e = k.e
    e(f"v_mov_b32 v{PV_+3}, {LW}")
    for i in range(3): e(f"v_mov_b32 v{PV_+i}, 0")
    e(f"ds_write_b96 v{PV_+3}, v[{PV_}:{PV_+2}]"); e(f"ds_write_b32 v{PV_+3}, v{PV_} offset:12")

def lwc_init(k):
    k.e(f"v_mov_b32 v{PV_+3}, {LW-8}"); k.e(f"v_mov_b32 v{PV_}, 0"); k.e(f"v_mov_b32 v{PV_+1}, 0")
    k.e(f"ds_write_b64 v{PV_+3}, v[{PV_}:{PV_+1}]"); k.e("s_waitcnt lgkmcnt(0)")

def signal(k, tag, word, nw, addr_code, younger=0, srd="s[8:11]"):
    e = k.e
    addr_code()
    e(f"v_mov_b32 v{PV_+3}, {LW-8}"); e(f"v_mov_b32 v{PV_}, 1")
    e("s_mov_b64 exec, 1")
    assert younger == 0
    e("s_waitcnt vmcnt(0)"); k.vm = []
    if tag == os.environ.get("FOC"): k.stamp(2)
    e(f"ds_add_rtn_u32 v{PV_+2}, v{PV_+3}, v{PV_} offset:{8*word+8}")
    e("s_waitcnt lgkmcnt(0)"); k.lg = []
    e(f"v_readfirstlane_b32 s49, v{PV_+2}")
    e("s_mov_b64 exec, s[56:57]")
    e(f"s_cmp_eq_u32 s49, {nw-1}"); e(f"s_cbranch_scc0 {k.name}_{tag}_sg")
    e(f"buffer_atomic_add v{PV_}, v{PV_+1}, {srd}, s48 offen {SC}")
    if os.environ.get("FOC2") == tag: k.stamp(4)
    k.label(f"{k.name}_{tag}_sg")
    e("s_mov_b64 exec, -1")

def wait_go(k, tag, word, poll_code):
    e = k.e; nm = f"{k.name}_{tag}"
    e(f"v_mov_b32 v{PV_+3}, {LW-8}"); e("s_mov_b32 s49, 0")
    if poll_code:
        e("s_cmp_eq_u32 s18, 0"); e(f"s_cbranch_scc0 {nm}_sp")
        poll_code()
        e("s_mov_b64 exec, s[56:57]")
        if os.environ.get("FOC") == "g" + tag: k.stamp(2)
        k.label(f"{nm}_pl")
        e(f"v_mov_b32 v{PV_}, 0")
        e(f"buffer_atomic_add v{PV_}, v{PV_+1}, s[8:11], s48 offen sc0 sc1")
        e("s_add_u32 s49, s49, 1")
        e("s_waitcnt vmcnt(0)")
        e(f"v_cmp_ge_u32 vcc, v{PV_}, v{PV_+2}")
        e("s_cmp_ge_u32 s49, 0x20000"); e(f"s_cbranch_scc1 {nm}_px")
        e("s_cmp_eq_u64 vcc, exec"); e(f"s_cbranch_scc0 {nm}_pl")
        k.label(f"{nm}_px")
        if os.environ.get("FOC") == "g" + tag: e("s_add_u32 s70, s64, s49")
        e("s_mov_b64 exec, 1"); e(f"v_mov_b32 v{PV_}, 1")
        e(f"ds_write_b32 v{PV_+3}, v{PV_} offset:{8*word+12}")
        e(f"s_branch {nm}_go")
    k.label(f"{nm}_sp")
    e("s_sleep 1")
    e(f"ds_read_b32 v{PV_}, v{PV_+3} offset:{8*word+12}")
    e("s_add_u32 s49, s49, 1")
    e("s_waitcnt lgkmcnt(0)")
    e(f"v_readfirstlane_b32 s44, v{PV_}")
    e("s_cmp_ge_u32 s49, 0x400000"); e(f"s_cbranch_scc1 {nm}_go")
    e("s_cmp_eq_u32 s44, 0"); e(f"s_cbranch_scc1 {nm}_sp")
    k.label(f"{nm}_go")
    e("s_mov_b64 exec, -1")

class Wdma:
    def __init__(s, k, n, base=50, tag="w"): s.k = k; s.n = n; s.i = 0; s.base = base; s.tag = tag
    def one(s, i):
        s.k.e(f"s_add_u32 m0, s45, {4096*i}"); s.k.e(f"s_add_u32 s32, s{s.base}, {4096*i}")
        s.k.vmop(f"buffer_load_dwordx4 v3, s[12:15], s32 offen {SC} lds", f"{s.tag}{i}")
    def go(s, upto):
        while s.i < min(upto, s.n): s.one(s.i); s.i += 1
    def rng(s, a, b, thr=0):
        for i in range(a, b):
            s.one(i)
            if thr and len(s.k.vm) >= thr: s.k.e(f"s_waitcnt vmcnt({thr-1})"); s.k.vm = s.k.vm[len(s.k.vm)-thr+1:]

SIDE_SV = 152; SIDE_D = 160; SIDE_U = 192
def side_setup(k):
    e = k.e; nm = k.name
    e("s_load_dwordx4 s[84:87], s[0:1], 32"); e("s_load_dwordx2 s[88:89], s[0:1], 16")
    e("s_mul_i32 s49, s2, 3"); e("s_add_u32 s49, s49, s18"); e("s_sub_u32 s49, s49, 4")
    e("s_sub_u32 s32, s18, 4"); e("s_cmp_lt_u32 s32, 3"); e("s_cselect_b32 s49, s49, 959"); e("s_cmp_eq_u32 s3, 0"); e("s_cselect_b32 s49, s49, 959")
    e("s_lshl_b32 s35, s39, 13"); e("s_add_u32 s35, s35, 112640")
    e("s_mul_i32 s36, s49, 3277"); e("s_lshr_b32 s36, s36, 16"); e("s_mul_i32 s37, s36, 20"); e("s_sub_u32 s37, s49, s37")
    e("v_and_b32 v140, 15, v1"); e("v_lshrrev_b32 v141, 2, v140"); e("v_and_b32 v142, 3, v1")
    e("s_waitcnt lgkmcnt(0)")
    SV = SIDE_SV
    e("v_lshrrev_b32 v136, 4, v1")
    for r in list(range(SV, SV+5)) + list(range(144, 152)): e(f"v_mov_b32 v{r}, 0")
    e("s_mov_b32 s5, 0")
    e("s_mov_b32 s53, 0x7ff00000"); e("s_mov_b32 s54, s53"); e("s_mov_b32 s58, s53")
    e("s_cmp_ge_u32 s49, 320"); e(f"s_cbranch_scc1 {nm}_ss1")
    k.srd(88, 84, D*3*D*2)
    e(f"s_mul_i32 s5, s37, {32*3840}"); e("s_mul_i32 s32, s36, 80"); e("s_add_u32 s5, s5, s32")
    e("v_lshlrev_b32 v137, 2, v136"); e("v_xor_b32 v137, v137, v140"); e("v_min_u32 v137, 14, v137")
    e("v_mul_u32_u24 v138, 52, v137"); e("v_lshrrev_b32 v138, 8, v138"); e("v_mul_u32_u24 v138, 1200, v138"); e("v_lshl_add_u32 v138, v137, 4, v138")
    e("v_mul_u32_u24 v137, 3840, v136"); e(f"v_add_u32 v{SV}, v138, v137")
    e("v_lshrrev_b32 v137, 5, v1"); e("v_lshl_add_u32 v137, v137, 3, v141"); e("v_lshlrev_b32 v137, 8, v137"); e("v_and_b32 v138, 1, v136")
    e("v_lshl_add_u32 v137, v138, 5, v137"); e("v_lshl_add_u32 v137, v142, 3, v137"); e("v_add_u32 v137, s35, v137")
    for jf in range(4): e(f"v_xor_b32 v139, {jf}, v141"); e(f"v_lshl_add_u32 v{144+jf}, v139, 6, v137")
    e("s_mul_i32 s53, s36, 163840"); e("s_lshl_b32 s54, s37, 13"); e("s_add_u32 s53, s53, s54"); e(f"s_add_u32 s53, s53, {WB_I}"); e("s_add_u32 s54, s53, 4096"); e("s_mov_b32 s58, s54")
    e(f"s_branch {nm}_ss2")
    k.label(f"{nm}_ss1")
    e("s_cmp_ge_u32 s36, 24"); e("s_cselect_b32 s32, s86, s88"); e("s_cselect_b32 s33, s87, s89")
    k.srd(88, 32, D*D*2)
    e("s_cmp_ge_u32 s49, 640"); e(f"s_cbranch_scc1 {nm}_ss2")
    e("s_and_b32 s32, s36, 7"); e("s_mul_i32 s32, s32, 160")
    e("s_mul_i32 s5, s37, 40"); e("s_sub_u32 s34, s37, 16"); e("s_mul_i32 s34, s34, 160"); e("s_add_u32 s34, s34, 16")
    e("s_cmp_lt_u32 s37, 16"); e("s_cselect_b32 s5, s5, s34"); e("s_cselect_b32 s33, 4, 2"); e("s_cselect_b32 s34, 4, 16")
    e("s_mul_i32 s5, s5, 1280"); e("s_add_u32 s5, s5, s32")
    for i in range(5):
        e(f"v_add_u32 v137, {64*i}, v1"); e("v_mul_u32_u24 v138, 6554, v137"); e("v_lshrrev_b32 v138, 16, v138")
        e("v_lshrrev_b32 v139, s33, v138"); e("v_mul_u32_u24 v139, s34, v139"); e("v_mul_u32_u24 v139, 1280, v139")
        e("v_mul_u32_u24 v138, 1120, v138"); e("v_add_u32 v139, v139, v138"); e(f"v_lshl_add_u32 v{SV+i}, v137, 4, v139")
    e("v_lshlrev_b32 v137, 2, v136"); e("s_mov_b32 s32, 2560")
    e("s_cmp_ge_u32 s36, 24"); e(f"s_cbranch_scc1 {nm}_sf3"); e("s_cmp_ge_u32 s37, 16"); e(f"s_cbranch_scc1 {nm}_sf3")
    e("v_lshrrev_b32 v137, 1, v136"); e("v_lshlrev_b32 v137, 4, v137"); e("v_and_b32 v138, 1, v136"); e("v_lshl_add_u32 v137, v138, 2, v137"); e("s_mov_b32 s32, 1280")
    k.label(f"{nm}_sf3")
    e("v_add_u32 v137, v137, v141"); e("v_mul_u32_u24 v137, 160, v137"); e("v_add_u32 v137, s35, v137")
    e("s_and_b32 s33, s36, 1"); e("s_lshl_b32 s34, s33, 5"); e("s_xor_b32 s33, s33, 1"); e("s_lshl_b32 s33, s33, 7")
    e("v_lshl_add_u32 v144, v142, 4, v137"); e("v_add_u32 v144, s34, v144"); e("v_add_u32 v145, s32, v144")
    e("v_lshl_add_u32 v146, v142, 3, v137"); e("v_add_u32 v146, s33, v146"); e("v_add_u32 v147, s32, v146")
    e("s_cmp_ge_u32 s36, 24"); e(f"s_cselect_b32 s53, {WOB_I-WOA_I}, 0"); e("s_and_b32 s54, s36, 7"); e("s_mul_i32 s54, s54, 102400"); e("s_add_u32 s53, s53, s54")
    e("s_mul_i32 s54, s37, 5120"); e("s_add_u32 s53, s53, s54"); e(f"s_add_u32 s53, s53, {WOA_I}"); e("s_add_u32 s54, s53, 4096")
    k.label(f"{nm}_ss2")
    e("s_lshl_b32 s38, s49, 9"); e(f"s_add_u32 s38, s38, {U_B}"); e("s_cmp_ge_u32 s49, 320"); e("s_cselect_b32 s38, 0x7ff00000, s38")
    e("v_lshlrev_b32 v143, 2, v1")
    e("s_cmp_lt_u32 s49, 640"); e("s_cselect_b32 s4, 2, 0"); e("s_cmp_lt_u32 s49, 320"); e("s_cselect_b32 s4, 1, s4")
    e("s_and_b32 s55, s49, 15"); e("s_lshl_b32 s55, s55, 8"); e(f"s_add_u32 s55, s55, {CS}")

def ph_attn(k):
    e = k.e; nm = k.name
    KA, KT, VA = 4, 5, 6
    Q = [8, 14]; KF = [24, 32]; VF = [40, 48]; SS = [56, 72]; P = 88; O = [96, 112]; PF = 208
    SCR = 137216; TOP = 112640
    ids_rt(k)
    e("v_and_b32 v3, 31, v1"); e("v_lshrrev_b32 v7, 5, v1")
    e("v_lshlrev_b32 v22, 4, v1"); e("v_lshlrev_b32 v23, 3, v3")
    e("s_mul_i32 s19, s16, 163840")
    e("s_lshr_b32 s41, s18, 2")
    e("s_lshl_b32 s23, s17, 3"); e("s_lshl_b32 s22, s39, 1"); e("s_add_u32 s23, s23, s22")
    e("s_add_u32 s23, s23, s41")
    e("s_lshr_b32 s22, s19, 1"); e(f"s_add_u32 s22, s22, {QIMG}")
    e("s_mul_i32 s24, s23, 1280"); e("s_add_u32 s24, s24, s22"); e("s_xor_b32 s40, s23, 1"); e("s_mul_i32 s40, s40, 1280"); e("s_add_u32 s40, s40, s22")
    e("s_mul_i32 s42, s41, 2560"); e(f"s_add_u32 s42, s42, {TOP}")
    e("s_lshl_b32 s25, s18, 10")
    e(f"s_add_u32 s26, s19, {KVIMG}")
    rnd = [0]
    def dma():
        i = rnd[0]; rnd[0] += 1
        if i == 6:
            e("s_cmp_lt_u32 s18, 2"); e("s_cselect_b32 s27, 163840, 0"); e("s_add_u32 s27, s27, s25"); e("s_sub_u32 m0, s27, 2048")
        else: e(f"s_add_u32 m0, s25, {(TOP + 8192*i) if i < 6 else 8192*i - 51200}")
        e("s_add_u32 s27, s26, m0")
        k.vmop(f"buffer_load_dwordx4 v22, s[12:15], s27 offen {SC} lds", f"i{i}")
    e(f"v_add_u32 v{KA}, s42, v22")
    e(f"v_add_u32 v{KT}, s42, v23"); e(f"v_add_u32 v{KT}, 1024, v{KT}")
    if ENV('KTZ', '1'): e(f"v_lshl_add_u32 v{KT}, v7, 20, v{KT}")
    e("v_mul_u32_u24 v21, 20, v7"); e("v_add_u32 v21, v21, v3"); e("v_lshlrev_b32 v21, 4, v21")
    e("v_add_u32 v21, 1280, v21"); e(f"v_add_u32 v{VA}, s42, v21")
    e("s_mov_b32 s28, 0x000fffff"); e("s_mov_b32 s29, 0x000fffff")
    e("v_cmp_eq_u32 vcc, 20, v3"); e("v_mov_b32 v20, 0x3f803f80"); e("s_nop 0")
    e("v_cndmask_b32 v20, 0, v20, vcc")
    for r in range(16): e(f"v_mov_b32 v{VF[0]+r}, v20")
    for r in range(32): e(f"v_mov_b32 v{O[0]+r}, 0")
    for r in range(4): e(f"v_mov_b32 v{P+4+r}, 0")
    e("v_subrev_u32 v30, 1, v7")
    e("s_lshl_b32 s43, s21, 2"); e("s_add_u32 s43, s43, s39"); e(f"s_mul_i32 s43, s43, {2048*ENV('NPF', '14') - 1024}"); e(f"s_add_u32 s43, s43, {WOA_I}")
    e("s_mul_i32 s32, s23, 40960"); e(f"s_add_u32 s32, s32, {OT}")
    e("s_lshr_b32 s51, s16, 1"); e("s_lshl_b32 s51, s51, 10"); e("s_and_b32 s34, s16, 1"); e("s_lshl_b32 s34, s34, 9")
    e("s_add_u32 s51, s51, s34"); e("s_add_u32 s51, s51, s32")
    e("s_lshr_b32 s52, s16, 3"); e("s_add_u32 s52, s52, 16"); e("s_lshl_b32 s52, s52, 10"); e("s_add_u32 s52, s52, s32")
    e("s_and_b32 s35, s16, 3"); e("s_lshl_b32 s35, s35, 8"); e("s_add_u32 s52, s52, s35")
    e("s_bfe_u32 s35, s16, 0x10002"); e("s_lshl_b32 s35, s35, 3"); e("s_add_u32 s52, s52, s35")
    e("v_lshrrev_b32 v38, 4, v3"); e("v_mul_u32_u24 v38, 20480, v38"); e("v_and_b32 v39, 15, v3")
    e("v_lshl_add_u32 v38, v39, 4, v38"); e("v_lshl_add_u32 v39, v7, 8, v38")
    e("s_mul_i32 s32, s18, 3072"); e("s_xor_b32 s33, s18, 4"); e("s_mul_i32 s33, s33, 3072")
    e(f"v_add_u32 v132, {SCR}, v22"); e("v_add_u32 v133, s33, v132"); e("v_add_u32 v132, s32, v132")
    def c0(nl):
        e("s_lshl_b32 s48, s17, 8"); e(f"s_add_u32 s48, s48, {C0}"); e(f"v_mov_b32 v{PV_+2}, 16")
        e("s_mul_i32 s32, s16, 20"); e("s_add_u32 s33, s32, 19"); e("s_lshr_b32 s32, s32, 7"); e("s_lshr_b32 s33, s33, 7"); e("s_sub_u32 s33, s33, s32")
        e(f"v_lshrrev_b32 v{PV_+1}, 1, v1"); e(f"v_mul_u32_u24 v{PV_+1}, 5, v{PV_+1}"); e(f"v_and_b32 v{PV_}, s33, v1"); e(f"v_add3_u32 v{PV_+1}, v{PV_+1}, v{PV_}, s32")
        e(f"v_lshlrev_b32 v{PV_+1}, 11, v{PV_+1}"); e("s_mov_b64 s[56:57], 63")
    side_setup(k)
    e("s_lshl_b32 s59, s2, 2"); e("s_add_u32 s59, s59, s39"); e("s_mul_i32 s50, s17, 102400"); e("s_add_u32 s50, s50, s25"); e(f"s_add_u32 s50, s50, {WOA_I}"); e(f"s_mul_i32 s59, s59, {-(-(U_A - OT) // 1024 // 128) * 128}"); e(f"s_add_u32 s59, s59, {OT}")
    e("v_lshlrev_b32 v234, 7, v1")
    e("v_lshlrev_b32 v134, 11, v1"); e("s_lshl_b32 s32, s17, 8"); e(f"s_add_u32 s32, s32, {C0}"); e("v_add_u32 v134, s32, v134")
    e("v_lshlrev_b32 v135, 8, v1"); e(f"v_add_u32 v135, {CS - 4096}, v135"); e("v_cmp_gt_u32 vcc, 16, v1")
    e("v_cndmask_b32 v134, v135, v134, vcc"); e("v_cndmask_b32 v131, 40, 16, vcc"); e("v_mov_b32 v135, 64")
    wait_go(k, "t", -1, lambda: c0(6))
    k.stamp(2)
    e("s_or_b32 s44, s3, s41"); e("s_xor_b32 s44, s44, 1")
    dma()
    for x in range(2):
        k.vmop(f"buffer_load_dwordx4 {vr(Q[x],4)}, v22, s[12:15], s{(24,40)[x]} offen {SC}", "q")
        k.vmop(f"buffer_load_dwordx2 {vr(Q[x]+4,2)}, v23, s[12:15], s{(24,40)[x]} offen offset:1024 {SC}", "q")
    for _ in range(3): dma()
    k.waitvm("q")
    for x in range(2):
        e(f"v_and_b32 v{Q[x]+4}, v{Q[x]+4}, v30"); e(f"v_and_b32 v{Q[x]+5}, v{Q[x]+5}, v30")
    k.waitvm("i1"); e("s_barrier"); k.stamp(3)
    if os.environ.get("FOC") == "clk": k.rstamp(0)
    def rdK(buf, off):
        off *= 2
        e(f"ds_read_b128 {vr(KF[buf],4)}, v{KA} offset:{off}")
        e(f"ds_read_b64 {vr(KF[buf]+4,2)}, v{KT} offset:{off}")
    def rdV(buf, off):
        off *= 2
        e("s_mov_b64 exec, s[28:29]")
        e(f"ds_read_b128 {vr(VF[buf],4)}, v{VA} offset:{off}")
        e(f"ds_read_b128 {vr(VF[buf]+4,4)}, v{VA} offset:{off+640}")
        e("s_mov_b64 exec, -1")
    def qkm(x, kb): e(f"v_mfma_f32_32x32x16_bf16 {vr(SS[x],16)}, {vr(KF[kb],4)}, {vr(Q[x],4)}, 0")
    def qkt(x, kb): e(f"v_mfma_f32_32x32x8_bf16 {vr(SS[x],16)}, {vr(KF[kb]+4,2)}, {vr(Q[x]+4,2)}, {vr(SS[x],16)}")
    def pv(x, vb, u): e(f"v_mfma_f32_32x32x16_bf16 {vr(O[x],16)}, {vr(VF[vb]+4*u,4)}, {vr(P+4*u,4)}, {vr(O[x],16)}")
    def base(t):
        return 0 if t < 10 else 10 if t < 22 else 22
    def bump(regs, t):
        if t == 10:
            for r in regs: e(f"v_subrev_u32 v{r}, {TOP}, v{r}")
        elif t == 22:
            for r in regs: e(f"v_add_u32 v{r}, {12*5120}, v{r}")
    def unit(x, t, extra=()):
        p = t % 2; s = SS[x]
        ex = lambda i: e(f"v_exp_f32 v{s+i}, v{s+i}")
        cv = lambda i: e(f"v_cvt_pk_bf16_f32 v{P+i}, v{s+2*i}, v{s+2*i+1}")
        kb = p if x == 0 else 1-p
        if x == 1: e("s_waitcnt lgkmcnt(2)" if t < 31 else "s_waitcnt lgkmcnt(0)")
        if not (x == 1 and t == 31): qkm(1-x, kb)
        if x == 1 and t + 2 < 32:
            bump((KA, KT), t+2); rdK(p, (t+2-base(t+2))*2560)
        for i in range(0, 4): ex(i)
        if x == 0:
            pv(1, 1-p, 1)
            if t + 1 < 32:
                bump((VA,), t+1); rdV(1-p, (t+1-base(t+1))*2560)
        else:
            pv(0, p, 1)
        for f_ in extra: f_()
        for i in range(4, 8): ex(i)
        for i in range(0, 4): cv(i)
        if not (x == 1 and t == 31): qkt(1-x, kb)
        for i in range(8, 12): ex(i)
        if x == 0: e(f"s_waitcnt lgkmcnt({4 if t < 31 else 0})")
        pv(x, p, 0)
        for i in range(12, 16): ex(i)
        for i in range(4, 8): cv(i)
    rdK(0, 0); rdV(0, 0); rdK(1, 2560)
    e("s_waitcnt lgkmcnt(4)")
    qkm(0, 0); e("s_nop 10"); qkt(0, 0); e("s_nop 10")
    SYN = {1: 3, 4: 7, 10: 19}; SW = ENV('SW', '27')
    T_SI, T_SR, T_SA, T_PF, T_LC = 10, ENV('TSR', '16'), 26, ENV('TPF', '15'), 27
    hk = [0]
    def cond(test, fn):
        def g():
            hk[0] += 1; lab = f"{nm}_hk{hk[0]}"
            e(test); e(f"s_cbranch_scc0 {lab}"); fn(); k.label(lab)
        return g
    def prio1(): e("s_setprio 1")
    def pref():
        for _ in range(2): e(f"buffer_load_dwordx4 {vr(PF,4)}, v22, s[12:15], s43 offen {SC}"); e("s_add_u32 s43, s43, 1024")
    def side_issue():
        e("s_cmp_eq_u32 s4, 1"); e(f"s_cbranch_scc0 {nm}_i1")
        for i in range(8):
            e(f"s_add_u32 m0, s35, {1024*i}"); e(f"s_add_u32 s27, s5, {4*3840*i}")
            e(f"buffer_load_dwordx4 v{SIDE_SV}, s[88:91], s27 offen {os.environ.get('SNT', 'nt')} lds")
        e(f"s_branch {nm}_i2")
        k.label(f"{nm}_i1")
        for i in range(5):
            e(f"s_add_u32 m0, s35, {1024*i}"); e("s_nop 0")
            e(f"buffer_load_dwordx4 v{SIDE_SV+i}, s[88:91], s5 offen {os.environ.get('SNT', 'nt')} lds")
        k.label(f"{nm}_i2")
    def side_read():
        e("s_waitcnt vmcnt(0)")
        e("s_cmp_eq_u32 s4, 1"); e(f"s_cbranch_scc0 {nm}_r1")
        for F in range(8):
            for t in range(2): e(f"ds_read_b64_tr_b16 {vr(SIDE_D+4*F+2*t,2)}, v{144+F%4} offset:{4096*(F//4)+1024*t}")
        e(f"s_branch {nm}_r2")
        k.label(f"{nm}_r1")
        for nf in range(5):
            for t in range(2): e(f"ds_read_b64_tr_b16 {vr(SIDE_D+4*nf+2*t,2)}, v{144+t if nf < 4 else 146+t} offset:{64*(nf//2)+8*(nf%2) if nf < 4 else 0}")
        k.label(f"{nm}_r2")
    def side_done():
        e("s_waitcnt lgkmcnt(0)"); e(f"v_mov_b32 v{PV_+3}, {LW-8}"); e(f"v_mov_b32 v{PV_}, 1"); e("s_mov_b64 exec, 1")
        e(f"ds_add_u32 v{PV_+3}, v{PV_}"); e("s_mov_b64 exec, -1")
    UA = (SIDE_U, 212)
    def side_sum(q):
        def g():
            if q == 0:
                for r in range(4): e(f"v_mov_b32 v{228+r}, 0x3f803f80")
            for u in range(2):
                for x in range(2): e(f"v_mfma_f32_32x32x16_bf16 {vr(UA[x],16)}, v[228:231], {vr(SIDE_D+16*u+8*q+4*x,4)}, {vr(UA[x],16) if u else 0}")
        return g
    def side_sum2(q):
        def g():
            e("v_cmp_gt_u32 vcc, 32, v1"); e(f"v_cndmask_b32 v{232+q}, v{UA[1]}, v{UA[0]}, vcc")
            e(f"buffer_store_dword v{232+q}, v143, s[12:15], s38 offen offset:{256*q} {SC}")
        return g
    def side_store(F):
        return lambda: e(f"buffer_store_dwordx4 {vr(SIDE_D+4*F,4)}, v22, s[12:15], s{53 if F < 4 else 54 if F == 4 else 58} offen offset:{1024*(F%4)} {SC}")
    def side_arrive():
        e(f"v_mov_b32 v{PV_+1}, 0"); e(f"v_mov_b32 v{PV_}, 1"); e("s_waitcnt vmcnt(0)"); e("s_mov_b64 exec, 1")
        e(f"buffer_atomic_add v{PV_}, v{PV_+1}, s[12:15], s55 offen {SC}"); e("s_mov_b64 exec, -1")
    def touch():
        e("buffer_load_dword v235, v234, s[12:15], s59 offen")
    def late():
        e("s_mov_b32 exec_lo, 0xffff7fff"); e("s_mov_b32 exec_hi, 0"); e(f"buffer_load_dword v135, v134, s[12:15], 0 offen {SC}"); e("s_mov_b64 exec, -1")
    def init_words(): lw_init(k); e(f"v_mov_b32 v{PV_+3}, {LW-8}"); e(f"ds_write_b32 v{PV_+3}, v{PV_}")
    side = "s_cmp_lg_u32 s4, 0"
    for t in range(32):
        if t in SYN: k.waitvm(f"i{SYN[t]}"); e("s_barrier")
        x0, x1 = [], []
        if rnd[0] < 20: x0 += [dma, dma]; x1 += [dma, dma]
        if t in (1, 4, 10): cond("s_cmp_ge_u32 s18, 4", prio1)()
        if t == 3: x0.append(lambda: e("s_setprio 0"))
        if t == 8: x1.append(lambda: e("s_setprio 0"))
        if t == 10:
            x0.append(cond("s_cmp_eq_u32 s18, 4", lambda: lw_init(k)))
            if os.environ.get("FOC") == "at": k.stamp(2)
        if t == SW + 1 and os.environ.get("FOC") == "at": k.stamp(0)
        if t == T_SI: x1.append(cond(side, side_issue))
        if t == T_SR: x1.append(cond(side, side_read))
        if t == T_SR + 1: x0.append(cond(side, lambda: e("s_waitcnt lgkmcnt(0)"))); x1.append(cond("s_cmp_eq_u32 s4, 1", side_sum(0)))
        if t == T_SR + 2: x0.append(cond("s_cmp_eq_u32 s4, 1", side_sum2(0))); x1.append(cond("s_cmp_eq_u32 s4, 1", side_sum(1)))
        if t == T_SR + 3: x0.append(cond("s_cmp_eq_u32 s4, 1", side_sum2(1)))
        if T_SR + 1 <= t < T_SR + 9: x1.append(cond(side, side_store(t - T_SR - 1)))
        if ENV('TCH', '7') and t == ENV('TCH', '7'): x0.append(lambda: k.waitvm("i19") if ENV('TW', '1') else None); x0.append(cond("s_cmp_lg_u32 s44, 0", touch))
        if t == T_SA: x0.append(cond(side, side_arrive))
        if T_PF <= t < T_PF + ENV('NPF', '14') and ENV('PFW', '1'): x0.append(cond("s_cmp_lt_u32 s18, 4", pref))
        if t == T_LC: x1.append(cond("s_cmp_eq_u32 s18, 0", late))
        if t == SW: (x1 if ENV('SWX', '0') else x0).append(lambda: e("s_setprio 0"))
        unit(0, t, x0); unit(1, t, x1)
    pv(1, 1, 1); k.stamp(4)
    if os.environ.get("FOC") == "clk": k.rstamp(2)
    e("s_mov_b32 s30, 0")
    e(f"s_mov_b32 s32, {fbits(2.0**-60)}"); e(f"s_mov_b32 s33, {fbits(2.0**100)}"); e(f"s_mov_b32 s34, {fbits(2.0**126)}")
    k.label(f"{nm}_scrok")
    e("s_nop 7")
    for i in range(3): e(f"ds_write_b128 v132, {vr(O[1]+4*i,4)} offset:{1024*i}")
    e("s_waitcnt vmcnt(0)"); e("v_cmp_gt_u32 vcc, v131, v135"); e(f"s_cbranch_vccnz {nm}_late")
    k.label(f"{nm}_lok")
    e("s_waitcnt lgkmcnt(0)"); e("s_barrier")
    for i in (2, 0, 1): e(f"ds_read_b128 {vr(SS[0]+4*i,4)}, v133 offset:{1024*i}")
    OO = O[0]
    e("s_waitcnt lgkmcnt(2)")
    for r in range(8, 12): e(f"v_add_f32 v{OO+r}, v{OO+r}, v{SS[0]+r}")
    e("s_waitcnt lgkmcnt(0)")
    for r in range(8): e(f"v_add_f32 v{OO+r}, v{OO+r}, v{SS[0]+r}")
    k.label(f"{nm}_chk")
    e(f"v_mov_b32 v30, v{OO+8}"); e(f"v_mov_b32 v31, v{OO+8}")
    e(f"v_max3_f32 v28, abs(v{OO}), abs(v{OO+1}), abs(v{OO+2})")
    e("v_permlane32_swap_b32 v30, v31")
    e(f"v_max3_f32 v28, abs(v{OO+3}), abs(v{OO+4}), v28")
    e("v_rcp_f32 v30, v31")
    e(f"v_max3_f32 v28, abs(v{OO+5}), abs(v{OO+6}), v28")
    for r in range(12): e(f"v_mul_f32 v{SS[1]+r}, v{OO+r}, v30")
    for r in range(6): e(f"v_cvt_pk_bf16_f32 v{P+r}, v{SS[1]+2*r}, v{SS[1]+2*r+1}")
    e(f"buffer_store_dwordx4 {vr(P,4)}, v39, s[12:15], s51 offen {SC}")
    e("s_mov_b32 exec_hi, 0")
    e(f"buffer_store_dwordx2 {vr(P+4,2)}, v38, s[12:15], s52 offen {SC}")
    e("s_mov_b64 exec, -1")
    for i in range(EARLY//2):
        e(f"s_add_u32 m0, s25, {8192*i}"); e(f"s_add_u32 s27, s50, {8192*i}")
        e(f"buffer_load_dwordx4 v22, s[12:15], s27 offen {SC} lds")
    for r in range(7, 11, 2): e(f"v_max3_f32 v28, abs(v{OO+r}), abs(v{OO+r+1}), v28")
    e(f"v_max_f32 v28, abs(v{OO+11}), v28")
    e("v_cmp_le_f32 vcc, s32, v31"); e("v_cmp_ge_f32 s[36:37], s33, v31"); e("v_cmp_gt_f32 s[40:41], s34, v28")
    e("s_and_b64 s[36:37], s[36:37], vcc"); e("s_and_b64 s[36:37], s[36:37], s[40:41]")
    e("s_cmp_eq_u64 s[36:37], -1"); e(f"s_cbranch_scc0 {nm}_slow")
    def slowpath():
        k.label(f"{nm}_late")
        e("s_mov_b32 s49, 0")
        k.label(f"{nm}_late1")
        e("s_sleep 8"); late(); e("s_add_u32 s49, s49, 1"); e("s_waitcnt vmcnt(0)")
        e("v_cmp_gt_u32 vcc, v131, v135"); e("s_cmp_ge_u32 s49, 0x20000"); e(f"s_cbranch_scc1 {nm}_lok"); e(f"s_cbranch_vccnz {nm}_late1")
        e(f"s_branch {nm}_lok")
        k.label(f"{nm}_slow")
        e("s_cmp_eq_u32 s30, 0"); e(f"s_cbranch_scc0 {nm}_fin")
        e("s_mov_b32 s30, 1")
        e("s_waitcnt vmcnt(0)")
        NM = O[1]
        e("v_mov_b32 v32, 0xff800000")
        def slowqk(c):
            e(f"buffer_load_dwordx4 {vr(KF[0],4)}, v22, s[12:15], s27 offen {SC}")
            e(f"buffer_load_dwordx2 {vr(KF[0]+4,2)}, v23, s[12:15], s27 offen offset:1024 {SC}")
            e("s_waitcnt vmcnt(0)")
            e(f"v_mfma_f32_32x32x16_bf16 {vr(SS[0],16)}, {vr(KF[0],4)}, {vr(Q[0],4)}, {c}"); e("s_nop 10")
            e(f"v_mfma_f32_32x32x8_bf16 {vr(SS[0],16)}, {vr(KF[0]+4,2)}, {vr(Q[0]+4,2)}, {vr(SS[0],16)}"); e("s_nop 12")
        e(f"s_add_u32 s27, s19, {KVIMG}"); e("s_mov_b32 s31, 0")
        k.label(f"{nm}_mx")
        slowqk("0")
        for r in range(0, 16, 2): e(f"v_max3_f32 v32, v{SS[0]+r}, v{SS[0]+r+1}, v32")
        e("s_add_u32 s27, s27, 2560")
        e("s_add_u32 s31, s31, 1"); e("s_cmp_lt_u32 s31, 64"); e(f"s_cbranch_scc1 {nm}_mx")
        k.allred32("v_max_f32", 32, 33)
        e("v_xor_b32 v32, 0x80000000, v32")
        for r in range(16): e(f"v_mov_b32 v{NM+r}, v32")
        for r in range(16): e(f"v_mov_b32 v{OO+r}, 0")
        for r in range(8): e(f"v_mov_b32 v{VF[0]+r}, v20")
        e(f"s_add_u32 s27, s19, {KVIMG}"); e("s_mov_b32 s31, 0")
        k.label(f"{nm}_sl")
        e("s_mov_b64 exec, s[28:29]")
        e(f"buffer_load_dwordx4 {vr(VF[0],4)}, v21, s[12:15], s27 offen {SC}")
        e(f"buffer_load_dwordx4 {vr(VF[0]+4,4)}, v21, s[12:15], s27 offen offset:640 {SC}")
        e("s_mov_b64 exec, -1")
        slowqk(vr(NM,16))
        for i in range(16): e(f"v_exp_f32 v{SS[0]+i}, v{SS[0]+i}")
        e("s_nop 0")
        for i in range(8): e(f"v_cvt_pk_bf16_f32 v{P+i}, v{SS[0]+2*i}, v{SS[0]+2*i+1}")
        e("s_nop 1")
        pv(0, 0, 0); pv(0, 0, 1)
        e("s_add_u32 s27, s27, 2560")
        e("s_add_u32 s31, s31, 1"); e("s_cmp_lt_u32 s31, 64"); e(f"s_cbranch_scc1 {nm}_sl")
        e("s_nop 12"); e(f"s_branch {nm}_chk")
    k.tail = slowpath
    k.label(f"{nm}_fin")
    k.stamp(5)
    e("v_lshlrev_b32 v3, 4, v1")
    k.vm = []; k.lg = []

def proj_c(k, tag, src, xin, xout, stout, last, cnt_code, word, st0):
    final = False
    e = k.e
    ACC, RESID, A, BF = 24, 44, 76, 156
    NA0 = ENV('PA0', '8')
    ids_rt(k)
    e("s_lshl_b32 s19, s16, 2"); e("s_add_u32 s19, s19, s39")
    e("s_mul_i32 s24, s19, 20480")
    e("s_lshr_b32 s33, s17, 1"); e("s_mul_i32 s33, s33, 5120"); e("s_add_u32 s33, s33, s24")
    e("s_and_b32 s34, s17, 1"); e("s_mul_i32 s35, s34, 3072"); e("s_add_u32 s35, s35, s33")
    e("s_lshl_b32 s36, s34, 9"); e("s_add_u32 s36, s36, s33"); e("s_add_u32 s36, s36, 2048")
    e(f"s_add_u32 s37, s35, {xin}"); e(f"s_add_u32 s38, s36, {xin}")
    e("v_lshrrev_b32 v13, 5, v1"); e("v_lshlrev_b32 v13, 8, v13"); e("v_and_b32 v14, 15, v1"); e("v_lshl_add_u32 v13, v14, 4, v13")
    e("v_bfe_u32 v14, v1, 4, 1"); e("v_lshl_add_u32 v13, v14, 3, v13")
    k.vmop(f"buffer_load_dwordx4 {vr(RESID,4)}, v3, {RS_(xin)}, s37 offen {SC}", "r")
    k.vmop(f"buffer_load_dwordx4 {vr(RESID+4,4)}, v3, {RS_(xin)}, s37 offen offset:1024 {SC}", "r")
    k.vmop(f"buffer_load_dwordx2 {vr(RESID+8,2)}, v13, {RS_(xin)}, s38 offen {SC}", "r")
    e(f"s_add_u32 s24, s24, {src}")
    for i in range(1, 5): e(f"s_add_u32 s{24+i}, s24, {4096*i}")
    e("v_lshrrev_b32 v9, 4, v1"); e("v_add_u32 v12, 61440, v3")
    wait_go(k, tag, word, cnt_code)
    k.stamp(st0)
    def ldA(n): k.vmop(f"buffer_load_dwordx4 {vr(A+4*n,4)}, v3, s[12:15], s{24+n//4} offen offset:{(n%4)*1024} {SC}", f"a{n}")
    for n in range(NA0): ldA(n)
    k.waitvm("r")
    for i in range(10):
        e(f"v_lshlrev_b32 v{ACC+2*i}, 16, v{RESID+i}"); e(f"v_and_b32 v{ACC+2*i+1}, 0xffff0000, v{RESID+i}")
    def rd(n, nf):
        off = n*5120 + nf*1024; b = 3
        if n >= 12: off -= 61440; b = 12
        k.dsop(f"ds_read_b128 {vr(BF+20*(n%2)+4*nf,4)}, v{b} offset:{off}", f"b{n}_{nf}")
    e("s_barrier")
    for n in range(2):
        for nf in range(5): rd(n, nf)
    for n in range(20):
        if n < 2 or n % 2 == 0: k.waitvm(f"a{min(n + (n >= 2), 19)}")
        if n == 0: k.stamp(st0+1)
        for nf in range(5):
            if ENV('PW1', '1'):
                if nf == 0: k.waitlg(f"b{n}_4")
            elif nf in (0, 2, 4): k.waitlg(f"b{n}_{min(nf+1,4)}")
            if n == 12 and nf == 0 and not final: e("s_barrier")
            e(f"v_mfma_f32_16x16x32_bf16 {vr(ACC+4*nf,4)}, {vr(BF+20*(n%2)+4*nf,4)}, {vr(A+4*n,4)}, {vr(ACC+4*nf,4)}")
            if n + 2 < 20: rd(n+2, nf)
            if nf == 0 and n + NA0 < 20: ldA(n + NA0)
    e("s_barrier")
    if last:
        e("s_cmp_eq_u32 s3, 0"); e(f"s_cbranch_scc1 {k.name}_nf")
        e("v_and_b32 v16, 15, v1"); e("v_mul_u32_u24 v16, 1280, v16"); e("v_lshl_add_u32 v17, v9, 3, v16"); e("v_lshl_add_u32 v16, v9, 4, v16")
        e("s_mul_i32 s32, s19, 20480"); e("s_mul_i32 s31, s17, 160"); e("s_add_u32 s32, s32, s31")
        e("s_lshl_b32 s31, s34, 5"); e("s_add_u32 s33, s32, s31"); e("s_xor_b32 s31, s34, 1"); e("s_lshl_b32 s31, s31, 7"); e("s_add_u32 s32, s32, s31")
        FSC = os.environ.get("FSC", "")
        for i in range(10): e(f"v_cvt_pk_bf16_f32 v{RESID+i}, v{ACC+2*i}, v{ACC+2*i+1}")
        e(f"buffer_store_dwordx4 {vr(RESID,4)}, v16, s[60:63], s33 offen {FSC}")
        e(f"buffer_store_dwordx4 {vr(RESID+4,4)}, v16, s[60:63], s33 offen offset:64 {FSC}")
        e(f"buffer_store_dwordx2 {vr(RESID+8,2)}, v17, s[60:63], s32 offen {FSC}")
        k.stamp(st0+2)
        if STAMP: e("s_waitcnt vmcnt(0)")
        k.dump(15, "2")
        e("s_endpgm")
        k.label(f"{k.name}_nf")
    if True:
        e(f"s_add_u32 s37, s35, {xout}"); e(f"s_add_u32 s38, s36, {xout}")
        e("s_lshl_b32 s32, s19, 10"); e("s_lshl_b32 s33, s17, 7"); e("s_add_u32 s32, s32, s33"); e(f"s_add_u32 s32, s32, {stout}")
        e("v_lshlrev_b32 v16, 3, v1")
        for i in range(10): e(f"v_cvt_pk_bf16_f32 v{RESID+i}, v{ACC+2*i}, v{ACC+2*i+1}")
        e(f"buffer_store_dwordx4 {vr(RESID,4)}, v3, {RS_(xout)}, s37 offen {SC}")
        e(f"buffer_store_dwordx4 {vr(RESID+4,4)}, v3, {RS_(xout)}, s37 offen offset:1024 {SC}")
        e(f"buffer_store_dwordx2 {vr(RESID+8,2)}, v13, {RS_(xout)}, s38 offen {SC}")
        e(f"v_add_f32 v18, v{ACC}, v{ACC+1}"); e(f"v_mul_f32 v19, v{ACC}, v{ACC}"); e(f"v_add_f32 v20, v{ACC+2}, v{ACC+3}"); e(f"v_mul_f32 v21, v{ACC+1}, v{ACC+1}")
        e(f"v_fmac_f32 v19, v{ACC+2}, v{ACC+2}"); e(f"v_fmac_f32 v21, v{ACC+3}, v{ACC+3}")
        for i in range(4, 20, 2):
            e(f"v_add_f32 v18, v18, v{ACC+i}"); e(f"v_fmac_f32 v19, v{ACC+i}, v{ACC+i}")
            e(f"v_add_f32 v20, v20, v{ACC+i+1}"); e(f"v_fmac_f32 v21, v{ACC+i+1}, v{ACC+i+1}")
        e("v_add_f32 v18, v18, v20"); e("v_add_f32 v19, v19, v21")
        for sw in ("v_permlane16_swap_b32", "v_permlane32_swap_b32"):
            e("v_mov_b32 v20, v18"); e("v_mov_b32 v21, v19"); e("s_nop 0")
            e(f"{sw} v18, v20"); e(f"{sw} v19, v21"); e("s_nop 0")
            e("v_add_f32 v18, v18, v20"); e("v_add_f32 v19, v19, v21")
        e("s_mov_b64 exec, 0xffff")
        e(f"buffer_store_dwordx2 v[18:19], v16, {RS_(xout)}, s32 offen {SC}")
    k.stamp(st0+2)

def proj_l(k, wimg, nxt, src, sig=None, done=0, last=False):
    e = k.e
    if nxt is not None:
        ids_mt(k)
        e("s_min_u32 s17, s17, 14" if nxt == WA_I else "s_nop 0")
        e("s_mul_i32 s58, s17, 163840"); e("s_add_u32 s58, s58, s45"); e(f"s_add_u32 s58, s58, {nxt}")
    ids_rt(k)
    e("s_mul_i32 s50, s17, 102400"); e("s_add_u32 s50, s50, s45"); e(f"s_add_u32 s50, s50, {wimg}")
    e("s_mul_i32 s51, s16, 81920"); e("s_lshl_b32 s52, s17, 2"); e("s_add_u32 s52, s52, s39"); e("s_mul_i32 s52, s52, 2560"); e("s_add_u32 s51, s51, s52"); e(f"s_add_u32 s51, s51, {src}")
    e("v_min_u32 v21, 39, v1"); e("v_lshlrev_b32 v21, 6, v21")
    w = Wdma(k, 25, 50, "o"); k.vm = []
    T1, T2 = ENV('T1', '0'), ENV('T2', '3')
    if sig:
        def a8():
            e(f"v_mov_b32 v{PV_+3}, {LW}"); e("s_mov_b32 s49, 0")
            k.label(f"{k.name}_a8")
            e(f"ds_read_b32 v{PV_}, v{PV_+3}"); e("s_add_u32 s49, s49, 1"); e("s_waitcnt lgkmcnt(0)"); e(f"v_readfirstlane_b32 s44, v{PV_}")
            e("s_cmp_ge_u32 s49, 0x400000"); e("s_cselect_b32 s44, 8, s44"); e("s_cmp_lt_u32 s44, 8"); e(f"s_cbranch_scc1 {k.name}_a8")
        signal(k, "s1l", 0, 8, sig)
        if ENV('A8E', '0'): a8()
        ub_prep(k, 0)
    if last: w.rng(0, 6); e("s_barrier"); done = 6
    w.rng(done, 25, T1 if sig else ENV('T4', '0'))
    w2 = Wdma(k, 40, 58)
    if last:
        e("s_cmp_eq_u32 s3, 0"); e(f"s_cbranch_scc1 {k.name}_nl")
        e("s_waitcnt vmcnt(0)"); e("s_barrier"); e("buffer_load_dword v20, v21, s[12:15], s51 offen"); e("s_endpgm")
        k.label(f"{k.name}_nl")
    if sig:
        w2.rng(25, 33, T1)
        if not ENV('A8E', '0'): a8()
    if nxt is not None: w2.rng(33 if sig else 32, 39, T1 if sig else ENV('T4', '0'))
    if sig: ub_prep(k, 1)
    if last and ENV('WPF', '0'):
        e("v_lshlrev_b32 v22, 7, v1"); e("s_and_b32 s32, s21, 1"); e("s_lshl_b32 s32, s32, 2"); e("s_add_u32 s32, s32, s39"); e("s_lshl_b32 s32, s32, 14")
        e("s_sub_u32 s33, s58, s45"); e("s_add_u32 s33, s33, s32")
        for i in range(2):
            k.vmop(f"buffer_load_dword v23, v22, s[12:15], s33 offen {SC}"); e("s_add_u32 s33, s33, 8192")
            if ENV('WPF', '0') == 2: e("s_waitcnt vmcnt(0)"); k.vm = []
    k.waitvm("o24")
    e("s_barrier")
    if ENV('ATOUCH', '0'):
        k.vmop("buffer_load_dword v20, v21, s[12:15], s51 offen")
    if nxt is not None:
        if not sig: w2.rng(25, 32)
        e("s_barrier")
        w2.rng(0, 15, ENV('T3', '0'))
        e("s_barrier")
        k.waitvm("w14")
        if ENV('LSL', '0'): e(f"s_sleep {ENV('LSL', '0')}")
        w2.rng(15, 25, T2)
    return w2

def stats16(k, s, rstd, mop, mask):
    e = k.e
    e(f"v_add_f32 v{s}, v{s}, v{s+2}"); e(f"v_add_f32 v{s+1}, v{s+1}, v{s+3}")
    k.allred16("v_add_f32", s, s+2); k.allred16("v_add_f32", s+1, s+3)
    k.allred32("v_add_f32", s, s+2); k.allred32("v_add_f32", s+1, s+3)
    stats_finish(k, s, s+1, s+2, rstd, s+3)
    split3(k, s+2, mop, 17, 'm', mask)
def usum(k, u, dst, t=17):
    e = k.e
    e(f"v_add_f32 v{u}, v{u}, v{u+1}"); e(f"v_add_f32 v{u+2}, v{u+2}, v{u+3}"); e(f"v_add_f32 v{u}, v{u}, v{u+2}")
    split3(k, u, dst, t, 'u')
def scale_pack(k, a, sc, dst):
    for r in range(4): k.e(f"v_mul_f32 v{a+r}, v{a+r}, v{sc(r)}")
    for r in range(2): k.e(f"v_cvt_pk_bf16_f32 v{dst+r}, v{a+2*r}, v{a+2*r+1}")
EX = 102400
SOFF = 2*8192 + 7296
UOFF = lambda F: (F//4)*8192 + 7168 + (F%4)*256 + 128
TOKF = (0, 1, 2, 3, 6); FEAF = (4, 5, 7)

UO = 3456
def ub_prep(k, part):
    e = k.e
    if part:
        k.waitvm("up")
        for j_ in range(5): e(f"v_add_f32 v{64+j_}, v{64+j_}, v{69+j_}")
        e("v_add_f32 v64, v64, v65"); e("v_add_f32 v66, v66, v67"); e("v_add_f32 v64, v64, v68"); e("v_add_f32 v64, v64, v66")
        k.allred32("v_add_f32", 64, 65); split3(k, 64, 28, 17, 'u')
        return
    e("v_lshrrev_b32 v6, 5, v1"); e("v_and_b32 v5, 31, v1"); e("s_lshr_b32 s30, s21, 1")
    e("v_mul_u32_u24 v12, 5120, v6"); e("v_lshl_add_u32 v12, v5, 2, v12")
    e("s_mul_i32 s30, s30, 10240"); e("s_lshl_b32 s31, s39, 7"); e("s_add_u32 s30, s30, s31"); e(f"s_add_u32 s30, s30, {U_B}"); e("s_add_u32 s31, s30, 2560")
    for j_ in range(10): k.vmop(f"buffer_load_dword v{64+j_}, v12, s[12:15], s{30+j_//5} offen offset:{512*(j_%5)}", "up")
    e("v_bfe_u32 v6, v1, 4, 1"); e("v_lshlrev_b32 v46, 9, v6"); e("v_and_b32 v5, 15, v1"); e("v_lshl_add_u32 v46, v5, 3, v46")
    e("s_lshl_b32 s30, s39, 12"); e("v_add_u32 v46, s30, v46")

def atouch_pre(k, xin):
    e = k.e
    e("s_mul_i32 s51, s16, 163840"); e("s_lshl_b32 s52, s17, 2"); e("s_add_u32 s52, s52, s39"); e("s_mul_i32 s52, s52, 2560"); e("s_add_u32 s51, s51, s52"); e(f"s_add_u32 s51, s51, {xin}")
    e("v_min_u32 v21, 39, v1"); e("v_lshlrev_b32 v21, 6, v21")

G_ACC, G_BF, G_AR, G_DA = 64, 128, 160, 5
def gemm32_pre(k, xin, stin):
    e = k.e
    e("v_and_b32 v10, 31, v1"); e("v_lshrrev_b32 v4, 5, v1"); e("v_and_b32 v5, 15, v1")
    e("s_lshl_b32 s19, s16, 2"); e("s_add_u32 s19, s19, s18")
    e("v_bfe_u32 v7, v1, 4, 1"); e("v_mul_u32_u24 v8, 20480, v7"); e("v_lshl_add_u32 v8, v4, 8, v8"); e("v_lshl_add_u32 v8, v5, 4, v8")
    e("v_lshlrev_b32 v11, 10, v7"); e("v_lshl_add_u32 v11, v4, 9, v11"); e("v_lshl_add_u32 v11, v5, 3, v11")
    e("s_lshl_b32 s30, s19, 11"); e(f"s_add_u32 s30, s30, {stin}")
    e("s_mul_i32 s24, s19, 40960"); e(f"s_add_u32 s24, s24, {xin}")
    e("v_add_u32 v41, 65536, v3"); e("v_add_u32 v42, 131072, v3")
    e("v_subrev_u32 v58, 1, v4"); e("v_not_b32 v59, v58")
def gemm32_loads(k, R):
    e = k.e
    def ldA(ks):
        if ks % 4 == 0 and ks > 0: e("s_add_u32 s24, s24, 4096")
        for u in range(2):
            k.vmop(f"buffer_load_dwordx4 {vr(G_AR+8*(ks%G_DA)+4*u,4)}, v8, {R}, s24 offen offset:{(ks%4)*1024+512*u} {SC}", f"a{ks}")
    ldA(0)
    for q in range(4): k.vmop(f"buffer_load_dwordx2 {vr(16+2*q,2)}, v11, {R}, s30 offen offset:{128*q} {SC}", "st")
    for ks in range(1, G_DA-1): ldA(ks)
    return ldA
def gemm32_stats(k):
    e = k.e
    k.waitvm("st")
    e("v_add_f32 v16, v16, v18"); e("v_add_f32 v17, v17, v19"); e("v_add_f32 v20, v20, v22"); e("v_add_f32 v21, v21, v23")
    e("v_add_f32 v16, v16, v20"); e("v_add_f32 v17, v17, v21")
    k.allred32("v_add_f32", 16, 18); k.allred32("v_add_f32", 17, 18)
    stats_finish(k, 16, 17, 46, 47, 18)
    split3(k, 46, 48, 18, 'm', 58)
TN = 4
def gemm32(k, vmode, fl, ldA, bars, st0, late=None):
    e = k.e; ACC, BF, AR, DA = G_ACC, G_BF, G_AR, G_DA
    acc = lambda jf: vr(ACC+16*jf, 16)
    ops = [(ks, f//4, f%4) for ks in range(20-TN) for f in range(8)] + [(ks, u, jf) for jf in range(4) for ks in range(20-TN, 20) for u in range(2)]
    def rd(i):
        ks, u, jf = ops[i]; off = ks*8192 + 1024*(4*u+jf); hi = off >> 16
        k.dsop(f"ds_read_b128 {vr(BF+4*(i%8),4)}, v{(3,41,42)[hi]} offset:{off & 0xffff}", f"b{i}")
    def mm(i):
        ks, u, jf = ops[i]
        if i % 2 == 0: k.waitlg(f"b{i+1}")
        a = vr(AR+8*(ks%DA)+4*u, 4); b = vr(BF+4*(i%8), 4); c = acc(jf) if (ks or u) else "0"
        if vmode: e(f"v_mfma_f32_32x32x16_bf16 {acc(jf)}, {a}, {b}, {c}")
        else:     e(f"v_mfma_f32_32x32x16_bf16 {acc(jf)}, {b}, {a}, {c}")
        if i + 8 < 160: rd(i + 8)
    e("s_barrier")
    for i in range(8): rd(i)
    for ks in range(20-TN):
        k.waitvm(f"a{ks}")
        if ks == 0: k.stamp(st0+1)
        if ks in bars: e("s_barrier")
        if late and ks == late[0]: k.fill(fl, 1000); fl += late[1]
        for f in range(8):
            mm(8*ks + f)
            if f == 0 and ks + DA - 1 < 20: ldA(ks + DA - 1)
            if ks >= 1: k.fill(fl, 2)
    k.fill(fl, 1000)
    for jf in range(4):
        if vmode: e(f"v_mfma_f32_32x32x8_bf16 {acc(jf)}, v[48:49], {vr(50+2*jf,2)}, {acc(jf)}")
        else:     e(f"v_mfma_f32_32x32x8_bf16 {acc(jf)}, {vr(50+2*jf,2)}, v[48:49], {acc(jf)}")
    def tail(epi, tbars=(), end=None):
        pend = []
        for jf in range(4):
            if jf in tbars: e("s_barrier")
            for n in range(2*TN):
                i = 8*(20-TN) + 2*TN*jf + n
                if n % 2 == 0: k.waitvm(f"a{ops[i][0]}")
                mm(i)
                if n >= 2: k.fill(pend, ENV('TFILL', '5'))
            k.fill(pend, 1000)
            if jf == 3:
                k.stamp(st0+2)
                if end: end()
            pend = k.capture(lambda: epi(jf))
        k.fill(pend, 1000)
    return tail

TB, TS = 88448, 296
def toff(G): return (0, 64, 128, 168, 208, 248)[G//5] + 8*(G%5)

def qkvb_c(k, xin, stin, st0):
    e = k.e; nm = k.name
    ACC, BF = G_ACC, G_BF
    ids_mt(k); gemm32_pre(k, xin, stin)
    e("v_lshrrev_b32 v6, 4, v1")
    MC, MP, MP1 = 200, 204, 208
    NEG = fbits(-1e30)
    e("v_lshlrev_b32 v17, 2, v6"); e("v_sub_u32 v17, v5, v17"); e(f"v_mov_b32 v19, {NEG}")
    for r in range(4):
        e(f"v_subrev_u32 v18, {r}, v17"); e("v_and_b32 v16, 0x80000001, v18")
        e("v_cmp_eq_u32 vcc, 0, v16"); e(f"v_cndmask_b32 v{MC+r}, v19, 0, vcc")
        e("v_cmp_eq_u32 vcc, 0x80000000, v16"); e(f"v_cndmask_b32 v{MP+r}, v19, 0, vcc")
    e("s_cmp_eq_u32 s19, 0"); e(f"s_cselect_b32 s34, {NEG}, 0")
    for r in range(4): e(f"v_add_f32 v{MP1+r}, s34, v{MP+r}")
    e(f"s_mul_i32 s35, s18, {32*TS}"); e(f"s_add_u32 s35, s35, {TB}")
    e(f"v_mul_u32_u24 v16, {TS}, v10"); e("v_add_u32 v16, s35, v16"); e(f"v_add_u32 v16, {16*TS}, v16")
    e("v_lshl_add_u32 v212, v4, 3, v16"); e("v_lshl_add_u32 v213, v4, 5, v16"); e("v_mov_b32 v219, v16")
    e("v_lshl_add_u32 v215, v4, 6, v16")
    e(f"v_mul_u32_u24 v16, {TS}, v5"); e("v_add_u32 v16, s35, v16"); e("v_lshl_add_u32 v216, v6, 4, v16")
    e("v_lshrrev_b32 v17, 2, v1"); e(f"v_mul_u32_u24 v16, {TS}, v17"); e("v_add_u32 v16, s35, v16"); e("v_and_b32 v17, 3, v1")
    e("v_lshl_add_u32 v217, v17, 3, v16")
    e("v_mul_u32_u24 v18, 40, v17"); e("v_add_u32 v18, 240, v18"); e("v_cmp_gt_u32 vcc, 2, v17"); e("v_mov_b32 v19, 288"); e("v_cndmask_b32 v18, v19, v18, vcc"); e("v_add_u32 v218, v16, v18")
    e("v_lshlrev_b32 v43, 9, v7"); e("v_lshl_add_u32 v43, v5, 3, v43")
    e("v_mov_b32 v220, 0"); e("v_mov_b32 v221, 0"); e("v_mov_b32 v222, 0x3f803f80"); e("v_mov_b32 v223, 0x3f803f80")
    e("s_mul_i32 s25, s19, 40960"); e(f"s_add_u32 s25, s25, {OBT}")
    e("s_lshl_b32 s51, s17, 10"); e("s_add_u32 s51, s51, s25"); e("s_add_u32 s52, s51, 20480")
    e("s_lshr_b32 s53, s17, 2"); e("s_add_u32 s53, s53, 16"); e("s_lshl_b32 s53, s53, 10"); e("s_add_u32 s53, s53, s25")
    e("s_and_b32 s54, s17, 1"); e("s_lshl_b32 s54, s54, 9"); e("s_add_u32 s53, s53, s54")
    e("s_bfe_u32 s54, s17, 0x10001"); e("s_lshl_b32 s54, s54, 3"); e("s_add_u32 s53, s53, s54"); e("s_add_u32 s54, s53, 20480")
    def c2():
        e("s_lshl_b32 s48, s16, 9"); e(f"s_add_u32 s48, s48, {C2}")
        e(f"v_lshlrev_b32 v{PV_+1}, 8, v1"); e(f"v_lshlrev_b32 v{PV_+2}, 3, v1"); e(f"v_sub_u32 v{PV_+2}, 16, v{PV_+2}")
        e("s_cmp_eq_u32 s16, 0"); e("s_cselect_b64 s[56:57], 1, 3")
    e("s_cmp_eq_u32 s18, 1"); e(f"s_cbranch_scc0 {nm}_ad"); e("v_lshlrev_b32 v16, 8, v1"); e("s_mov_b32 s49, 0")
    k.label(f"{nm}_ap")
    e(f"buffer_load_dword v17, v16, s[8:11], 0 offen offset:{C1} {SC}"); e("s_add_u32 s49, s49, 1"); e("s_waitcnt vmcnt(0)")
    e("v_cmp_gt_u32 vcc, 16, v17"); e("s_cmp_ge_u32 s49, 0x20000"); e(f"s_cbranch_scc1 {nm}_ad"); e(f"s_cbranch_vccnz {nm}_ap")
    k.label(f"{nm}_ad")
    wait_go(k, "p3", 1, c2)
    k.stamp(st0)
    ldA = gemm32_loads(k, RS_(xin))
    fl = k.capture(lambda: (gemm32_stats(k), e(f"v_mul_f32 v45, {fbits(CSCALE)}, v47")))
    def uops():
        for jf in range(4): k.dsop(f"ds_read_b64 {vr(50+2*jf,2)}, v43 offset:{UO+4096*jf}", "uo")
    tail = gemm32(k, False, fl, ldA, {6}, st0, (8, k.capture(uops)))
    def tab(jf):
        if jf == 0:
            for q in range(3): k.dsop(f"ds_write_b64 v215, v[220:221] offset:{40+8*q}")
            k.dsop("ds_write_b64 v219, v[222:223] offset:288")
        for G in range(8*jf, min(8*jf+8, 30), 2):
            a = ACC + 2*G
            for r in range(4): e(f"v_mul_f32 v{a+r}, v{a+r}, v{45 if G < 10 else 47}")
            for r in range(2): e(f"v_cvt_pk_bf16_f32 v{a+r}, v{a+2*r}, v{a+2*r+1}")
            k.dsop(f"ds_write_b64 v{ {8: 212, 32: 213}[toff(G+1) - toff(G)] }, {vr(a,2)} offset:{toff(G)}")
    def words():
        e("s_cmp_eq_u32 s18, 0"); e(f"s_cbranch_scc0 {nm}_ni"); lw_init(k); k.label(f"{nm}_ni")
    tail(tab, (0, 2), words)
    e("s_waitcnt lgkmcnt(0)"); e("s_barrier")
    KO = lambda b, h: 160 + 8*b + 4*h
    QO = lambda b, h: 184 + 8*(b-1) + 4*h
    VO = lambda F, b: 20 + 8*FEAF.index(F) + 2*b if False else 224 + 6*FEAF.index(F) + 2*b - (0)
    VO = lambda F, b: (128, 136, 144)[FEAF.index(F)] + 2*b
    for b in (1, 2):
        for h in range(2):
            for x in range(2): e(f"ds_read_b64 {vr(QO(b,h)+2*x,2)}, v216 offset:{16*b*TS+64*h+8*x}")
    for b in range(3):
        for h in range(2):
            for x in range(2): e(f"ds_read_b64 {vr(KO(b,h)+2*x,2)}, v216 offset:{16*b*TS+128+40*h+8*x}")
    e("s_waitcnt lgkmcnt(0)")
    for b in range(3):
        for h in range(2): e(f"ds_read_b64_tr_b16 {vr(VO(4+h,b),2)}, v217 offset:{16*b*TS+208+40*h}")
        e(f"ds_read_b64_tr_b16 {vr(VO(7,b),2)}, v218 offset:{16*b*TS}")
    units = [(b, h) for b in (1, 2) for h in range(2)]
    SU = lambda i: 64 + 8*i
    TU = lambda i: ACC + 32 + 4*i
    PU = lambda i: ACC + 48 + 4*i
    OU = lambda i: 64 + 8*i
    for i, (b, h) in enumerate(units):
        e(f"v_mfma_f32_16x16x32_bf16 {vr(SU(i),4)}, {vr(KO(b-1,h),4)}, {vr(QO(b,h),4)}, {vr(MP1 if b == 1 else MP,4)}")
        e(f"v_mfma_f32_16x16x32_bf16 {vr(SU(i)+4,4)}, {vr(KO(b,h),4)}, {vr(QO(b,h),4)}, {vr(MC,4)}")
    e("s_waitcnt lgkmcnt(0)"); e("s_barrier")
    def allred(op):
        for sw in ("v_permlane16_swap_b32", "v_permlane32_swap_b32"):
            for i in range(4): e(f"v_mov_b32 v{TU(i)+1}, v{TU(i)}")
            for i in range(4): e(f"{sw} v{TU(i)}, v{TU(i)+1}")
            for i in range(4): e(f"{op} v{TU(i)}, v{TU(i)}, v{TU(i)+1}")
    for i in range(4):
        s = SU(i)
        e(f"v_max3_f32 v{TU(i)}, v{s}, v{s+1}, v{s+2}"); e(f"v_max3_f32 v{TU(i)}, v{s+3}, v{s+4}, v{TU(i)}")
        e(f"v_max3_f32 v{TU(i)}, v{s+5}, v{s+6}, v{TU(i)}"); e(f"v_max_f32 v{TU(i)}, v{s+7}, v{TU(i)}")
    allred("v_max_f32")
    for i in range(4):
        for r in range(8): e(f"v_sub_f32 v{SU(i)+r}, v{SU(i)+r}, v{TU(i)}")
    for i in range(4):
        for r in range(8): e(f"v_exp_f32 v{SU(i)+r}, v{SU(i)+r}")
    for i in range(4):
        for r in range(4): e(f"v_cvt_pk_bf16_f32 v{PU(i)+r}, v{SU(i)+2*r}, v{SU(i)+2*r+1}")
    for i, (b, h) in enumerate(units):
        e(f"v_mfma_f32_16x16x32_bf16 {vr(OU(i)+4,4)}, {vr(VO(7,b-1),4)}, {vr(PU(i),4)}, 0")
    for i, (b, h) in enumerate(units):
        e(f"v_mfma_f32_16x16x32_bf16 {vr(OU(i),4)}, {vr(VO(4+h,b-1),4)}, {vr(PU(i),4)}, 0")
    for i in range(4): e(f"v_mov_b32 v{TU(i)}, v{OU(i)+4}"); e(f"v_mov_b32 v{TU(i)+1}, v{OU(i)+4}")
    for i in range(4): e(f"v_permlane32_swap_b32 v{TU(i)}, v{TU(i)+1}")
    for i in range(4): e(f"v_rcp_f32 v{TU(i)+1}, v{TU(i)+1}")
    e("v_cmp_eq_u32 vcc, 0, v6")
    for bi in range(2):
        o0, o1 = OU(2*bi), OU(2*bi+1); d = 40 + 8*bi; t0, t1 = TU(2*bi)+1, TU(2*bi+1)+1
        for r in range(4): e(f"v_mul_f32 v{o0+r}, v{o0+r}, v{t0}"); e(f"v_mul_f32 v{o1+r}, v{o1+r}, v{t1}")
        e(f"v_cvt_pk_bf16_f32 v{d}, v{o0}, v{o0+1}"); e(f"v_cvt_pk_bf16_f32 v{d+1}, v{o0+2}, v{o0+3}")
        e(f"v_cvt_pk_bf16_f32 v{d+2}, v{o1}, v{o1+1}"); e(f"v_cvt_pk_bf16_f32 v{d+3}, v{o1+2}, v{o1+3}")
        e(f"buffer_store_dwordx4 {vr(d,4)}, v3, s[12:15], s{51+bi} offen {SC}")
        e(f"v_cndmask_b32 v{t0}, v{t1}, v{t0}, vcc")
        for r in range(4): e(f"v_cndmask_b32 v{o0+4+r}, v{o1+4+r}, v{o0+4+r}, vcc")
        for r in range(4): e(f"v_mul_f32 v{o0+4+r}, v{o0+4+r}, v{t0}")
        e(f"v_cvt_pk_bf16_f32 v{d+4}, v{o0+4}, v{o0+5}"); e(f"v_cvt_pk_bf16_f32 v{d+5}, v{o0+6}, v{o0+7}")
    e("s_mov_b32 exec_hi, 0")
    for bi in range(2): e(f"buffer_store_dwordx2 {vr(44+8*bi,2)}, v3, s[12:15], s{53+bi} offen {SC}")

def qkvb_l(k, xin, stin, w):
    e = k.e; nm = k.name
    ids_mt(k)
    e("v_and_b32 v5, 15, v1"); e("v_lshrrev_b32 v6, 4, v1")
    e("v_lshlrev_b32 v11, 3, v5"); e("v_lshl_add_u32 v11, v6, 8, v11")
    e("v_cmp_eq_u32 vcc, 0, v6"); e("s_lshl_b32 s22, s16, 3"); e("s_max_u32 s22, s22, 1"); e("v_cndmask_b32 v4, 0, -1, vcc")
    e("s_sub_u32 s22, s22, 1")
    e("s_mul_i32 s24, s22, 20480"); e(f"s_add_u32 s24, s24, {xin}"); e("s_add_u32 s24, s24, s45")
    e("s_lshl_b32 s27, s22, 10"); e(f"s_add_u32 s27, s27, {stin}")
    HP = 49152
    e("v_lshrrev_b32 v12, 1, v6"); e("v_lshlrev_b32 v40, 12, v12"); e("v_and_b32 v12, 1, v6"); e("v_lshl_add_u32 v40, v12, 9, v40"); e("v_lshl_add_u32 v40, v5, 4, v40")
    e("s_lshl_b32 s32, s39, 13"); e("v_add_u32 v40, s32, v40"); e("v_add_u32 v41, 65536, v40"); e("v_add_u32 v42, 131072, v40")
    e("s_mul_i32 s33, s39, 6144"); e(f"s_add_u32 s33, s33, {HP}"); e("v_add_u32 v43, s33, v3")
    e("s_min_u32 s40, s39, 2"); e("s_lshl_b32 s41, s40, 11"); e(f"s_add_u32 s41, s41, {HP}"); e("v_add_u32 v44, s41, v3")
    e("s_lshl_b32 s41, s40, 12"); e("v_lshlrev_b32 v45, 3, v5"); e("v_add_u32 v45, s41, v45")
    e(f"v_mul_u32_u24 v12, {TS}, v5"); e(f"v_add_u32 v12, {TB}, v12"); e("s_lshl_b32 s41, s40, 3"); e("s_sub_u32 s41, s41, 2")
    for x in range(2):
        e(f"v_add_u32 v13, s41, v6")
        if x: e("v_add_u32 v13, 4, v13")
        e("v_add_u32 v14, 16, v13")
        e("v_cmp_gt_u32 vcc, 20, v13"); e("v_cndmask_b32 v14, 0, v14, vcc"); e(f"v_lshl_add_u32 v{50+x}, v14, 3, v12")
    e("v_mov_b32 v47, v12"); e("v_mov_b32 v56, 0x3f803f80"); e("v_mov_b32 v57, 0x3f803f80")
    atouch_pre(k, xin)
    e(f"s_setprio {ENV('P3PRIO', '0')}")
    e("s_barrier")
    if ENV('ATOUCH', '0'): k.vmop("buffer_load_dword v20, v21, s[12:15], s51 offen")
    w.one(39)
    e(f"ds_write_b64 v46, v[28:29] offset:{UO}")
    for q_ in range(2): k.vmop(f"buffer_load_dwordx2 {vr(24+2*q_,2)}, v11, s[12:15], s27 offen offset:{128*q_} {SC}", "st")
    for i in range(5):
        k.vmop(f"buffer_load_dwordx4 {vr(128+4*i,4)}, v3, s[12:15], s24 offen {SC}", f"h{i}")
        if i < 4: e("s_add_u32 s24, s24, 4096")
    k.waitvm("st")
    stats16(k, 24, 48, 52, 4)
    e("s_waitcnt lgkmcnt(0)"); e("s_barrier")
    def rd(n):
        i, j = n // 6, 2 + n % 6
        k.dsop(f"ds_read_b128 {vr(96+4*(n%6),4)}, v{40+i//2} offset:{(i%2)*32768+1024*(j//2)+256*(j%2)}", f"r{n}")
    for n in range(6): rd(n)
    for x in range(2): k.dsop(f"ds_read_b64 {vr(20+2*x,2)}, v45 offset:{UO+4096+512*x}", "u")
    for n in range(30):
        i = n // 6
        if n % 6 == 0: k.waitvm(f"h{i}")
        k.waitlg(f"r{n}")
        c = vr(148+4*(n%6), 4)
        e(f"v_mfma_f32_16x16x32_bf16 {c}, {vr(96+4*(n%6),4)}, {vr(128+4*i,4)}, {c if i else 0}")
        if n + 6 < 30: rd(n + 6)
    e("s_barrier")
    for n in range(6): e(f"ds_write_b128 v43, {vr(148+4*n,4)} offset:{1024*n}")
    e("s_waitcnt lgkmcnt(0)"); e("s_barrier")
    for p_ in range(4):
        for x in range(2): e(f"ds_read_b128 {vr(96+8*p_+4*x,4)}, v44 offset:{6144*p_+1024*x}")
    e("s_waitcnt lgkmcnt(0)")
    for r in range(8):
        e(f"v_add_f32 v{96+r}, v{96+r}, v{104+r}"); e(f"v_add_f32 v{112+r}, v{112+r}, v{120+r}"); e(f"v_add_f32 v{80+r}, v{96+r}, v{112+r}")
    for x in range(2): e(f"v_mfma_f32_16x16x16_bf16 {vr(80+4*x,4)}, {vr(20+2*x,2)}, v[52:53], {vr(80+4*x,4)}")
    for x in range(2): scale_pack(k, 80+4*x, lambda r: 48, 88+2*x)
    for x in range(2): e(f"ds_write_b64 v{50+x}, {vr(88+2*x,2)}")
    e("ds_write_b64 v47, v[56:57] offset:288")
    e(f"s_setprio {ENV('LPRIO', '2')}")
    e("s_waitcnt lgkmcnt(0)"); e("s_barrier")
    k.vm = []; k.lg = []

def one(k, target):
    k.e(f"v_mov_b32 v{PV_+1}, 0"); k.e(f"v_mov_b32 v{PV_+2}, {target}"); k.e("s_mov_b64 s[56:57], 1")

def kvpos(k):
    k.e("s_and_b32 s36, s19, 31"); k.e("s_lshl_b32 s36, s36, 1"); k.e("s_lshr_b32 s34, s19, 5"); k.e("s_add_u32 s36, s36, s34")
    k.e("s_add_u32 s36, s36, 44"); k.e("s_and_b32 s36, s36, 63")
def addr_v(k, img):
    e = k.e
    e("s_sub_u32 s35, s17, 10"); e("s_lshl_b32 s35, s35, 7")
    kvpos(k); e("s_mul_i32 s36, s36, 2560"); e(f"s_add_u32 s33, s36, {img+KVIMG+1280}")
    e("v_mul_u32_u24 v20, 320, v4")
    for jf in range(4):
        e(f"v_add_u32 v16, s35, v10")
        if jf: e(f"v_add_u32 v16, {32*jf}, v16")
        e("v_mul_u32_u24 v17, 52429, v16"); e("v_lshrrev_b32 v17, 20, v17")
        e("v_mul_u32_u24 v18, 20, v17"); e("v_sub_u32 v18, v16, v18")
        e("v_mul_u32_u24 v17, 163840, v17"); e("v_lshl_add_u32 v17, v18, 4, v17")
        e(f"v_add_u32 v{24+jf}, v17, v20")
def addr_qk(k, img, xm=52):
    e = k.e; k.xm = xm
    e("s_cmp_ge_u32 s17, 5")
    e(f"s_cselect_b32 s33, {QI}, 0"); e(f"s_cselect_b32 s59, 1.0, {fbits(CSCALE)}"); e("s_cselect_b32 s35, 5, 0"); e("s_cselect_b32 s37, 1, 0")
    e(f"s_add_u32 s33, s33, {img+QIMG}")
    e("s_sub_u32 s35, s17, s35")
    kvpos(k); e("s_cmp_eq_u32 s37, 0"); e("s_cselect_b32 s36, s19, s36")
    e("s_mul_i32 s36, s36, 1280"); e("s_lshl_b32 s36, s36, s37"); e("s_add_u32 s33, s33, s36")
    e("s_lshl_b32 s34, 81920, s37")
    e("v_lshlrev_b32 v16, 4, v10"); e("v_lshlrev_b32 v17, 3, v10")
    e("v_lshl_add_u32 v18, v4, 9, v16")
    e("s_sub_u32 s36, s34, 512"); e("v_and_b32 v19, s36, v59"); e("v_add_u32 v19, v19, v16")
    e(f"s_mov_b32 s{xm}, -1"); e(f"s_mov_b32 s{xm+1}, 0"); e(f"s_mov_b32 s{xm+2}, 0"); e(f"s_mov_b32 s{xm+3}, -1")
def epi_qk1(k, v, jf):
    e = k.e; A = G_ACC + 16*jf
    QSC = os.environ.get("QSC", "sc1")
    for r in range(16): e(f"v_mul_f32 v{A+r}, v{A+r}, v47")
    for r in range(8): e(f"v_cvt_pk_bf16_f32 v{A+r}, v{A+2*r}, v{A+2*r+1}")
    for a2 in range(2):
        x = A + 4*a2
        e(f"v_permlane32_swap_b32 v{x}, v{x+2}"); e(f"v_permlane32_swap_b32 v{x+1}, v{x+3}")
    for a2 in range(2):
        x = A + 4*a2
        G = [32*v+8*jf+4*a2, 32*v+8*jf+4*a2+2]
        def main(g):
            h = g // 5; r = g % 5
            return h, (r // 2 if h % 2 == 0 else (r - 1) // 2)
        st = [g % 10 == 4 for g in G]
        def hoff(dst, h):
            if not h: return 33
            e(f"s_mul_i32 s{dst}, s34, {h}"); e(f"s_add_u32 s{dst}, s{dst}, s33"); return dst
        if not any(st):
            (h0, p0), (h1, p1) = main(G[0]), main(G[1])
            assert (h0 == h1 and (p0, p1) == (0, 1)) or (h1 == h0 + 1 and (p0, p1) == (1, 0))
            e(f"buffer_store_dwordx4 {vr(x,4)}, v{18 if h0 == h1 else 19}, {k.srdo}, s{hoff(36, h0)} offen offset:{512*p0} {QSC}")
        else:
            m = st.index(False); q = 1 - m
            h, p = main(G[m]); s0 = hoff(36, h); s1 = hoff(37, G[q] // 5); e(f"s_add_u32 s38, s{s1}, s34")
            e(f"s_mov_b64 exec, s[{k.xm+2*m}:{k.xm+1+2*m}]")
            e(f"buffer_store_dwordx4 {vr(x,4)}, v16, {k.srdo}, s{s0} offen offset:{512*p} {QSC}")
            e(f"s_mov_b64 exec, s[{k.xm+2*q}:{k.xm+1+2*q}]")
            e(f"buffer_store_dwordx2 {vr(x,2)}, v17, {k.srdo}, s{s1} offen offset:1024 {QSC}")
            e(f"buffer_store_dwordx2 {vr(x+2,2)}, v17, {k.srdo}, s38 offen offset:1024 {QSC}")
            e("s_mov_b64 exec, -1")
def epi_v1(k, jf, RS):
    e = k.e; A = G_ACC + 16*jf
    for r in range(16): e(f"v_mul_f32 v{A+r}, v{A+r}, v{RS+r}")
    for r in range(8): e(f"v_cvt_pk_bf16_f32 v{A+r}, v{A+2*r}, v{A+2*r+1}")
    for u in range(2): e(f"buffer_store_dwordx4 {vr(A+4*u,4)}, v{24+jf}, {k.srdo}, s33 offen offset:{640*u} {os.environ.get('VSC', 'sc1')}")
def dispatch5(k, body):
    e = k.e; nm = k.name + k.ptag
    for v in range(1, 5):
        e(f"s_cmp_eq_u32 s35, {v}"); e(f"s_cbranch_scc1 {nm}_e{v}")
    vm, lg = list(k.vm), list(k.lg)
    for v in range(5):
        if v: k.label(f"{nm}_e{v}")
        k.vm, k.lg = list(vm), list(lg)
        body(v); e(f"s_branch {nm}_fin5")
def epi_qk(k, ACC, BF):
    dispatch5(k, lambda v: (k.e("s_nop 7"), [epi_qk1(k, v, jf) for jf in range(4)]))
def epi_v(k, ACC, BF, RS):
    for jf in range(4): epi_v1(k, jf, RS)

def qkva_c(k, xin, stin, img, cnt, wbar, st0):
    k.ptag = '_p5'; k.srdo = 's[12:15]'
    e = k.e; nm = k.name + k.ptag
    DA = 5
    ACC, BF, AR, RS = 64, 128, 160, 200
    gemm32_pre(k, xin, stin)
    e("v_lshlrev_b32 v12, 4, v10")
    e("s_lshl_b32 s31, s17, 11"); e(f"s_add_u32 s31, s31, {U_A}")
    for jf in range(4): k.vmop(f"buffer_load_dwordx4 {vr(24+4*jf,4)}, v12, s[12:15], s31 offen offset:{512*jf}", "u")
    def c4(): one(k, 16); e("s_lshl_b32 s48, s16, 8"); e(f"s_add_u32 s48, s48, {cnt}")
    wait_go(k, "p5", 1, c4)
    k.stamp(st0)
    ldA = gemm32_loads(k, RS_(xin))
    def prolog(vmode):
        gemm32_stats(k)
        for jf in range(4): usum(k, 24+4*jf, 50+2*jf, 18)
        if vmode:
            e("v_lshlrev_b32 v16, 4, v4")
            for r in range(16):
                e(f"v_add_u32 v17, {(8*(r//4) + r%4)*4}, v16")
                k.dsop(f"ds_bpermute_b32 v{RS+r}, v17, v47", "rs")
            addr_v(k, img)
        else:
            addr_qk(k, img); e("v_mul_f32 v47, s59, v47")
    e("s_cmp_ge_u32 s17, 10"); e(f"s_cbranch_scc1 {nm}_qv")
    vm_save = list(k.vm)
    l5a = lambda: e("s_barrier")
    tail = gemm32(k, False, k.capture(lambda: prolog(False)), ldA, {w_ - 1 for w_ in wbar}, st0)
    dispatch5(k, lambda v: tail(lambda jf: epi_qk1(k, v, jf), (), l5a))
    k.label(f"{nm}_qv"); k.vm = vm_save; k.lg = []
    tail = gemm32(k, True, k.capture(lambda: prolog(True)), ldA, {w_ - 1 for w_ in wbar}, st0)
    tail(lambda jf: epi_v1(k, jf, RS), (), l5a)
    k.label(f"{nm}_fin5")

def ph_front(k):
    k.ptag = "_f"; k.srdo = "s[12:15]"
    e = k.e; nm = k.name + k.ptag; kn = k.name
    R, DEP, SCRB, UT = 4, 2, 131072, 65536
    need = lambda ks: ks // 2
    slot = lambda st: (st % R) * 32768
    e("s_cmp_ge_u32 s2, 256"); e(f"s_cbranch_scc1 {kn}_end"); k.stamp(0); k.rstamp(1)
    e("s_load_dwordx4 s[60:63], s[0:1], 0"); e("s_load_dwordx2 s[6:7], s[0:1], 64")
    e("s_load_dwordx2 s[4:5], s[0:1], 56")
    e("s_and_b32 s20, s2, 7"); e("s_lshr_b32 s21, s2, 3")
    e("v_lshrrev_b32 v2, 6, v0"); e("v_and_b32 v1, 63, v0")
    e("v_readfirstlane_b32 s18, v2")
    e("s_and_b32 s39, s18, 3"); e("s_lshl_b32 s45, s39, 10")
    ids_mt(k)
    e("v_lshlrev_b32 v3, 4, v1"); e(f"v_lshlrev_b32 v9, {ENV('BST', '6')}, v1")
    e("s_lshl_b32 s22, s2, 2"); e("s_add_u32 s22, s22, s39"); e("s_mul_i32 s23, s22, 2400")
    if ENV('XLOC', '1'): e("s_lshl_b32 s22, s20, 5"); e("s_add_u32 s22, s22, s21"); e("s_lshl_b32 s22, s22, 2"); e("s_add_u32 s22, s22, s39")
    e("s_mul_i32 s22, s22, 2560")
    def kwait():
        e("s_waitcnt lgkmcnt(0)")
        k.stamp(2)
        k.srd(8, 60, S*D*2); k.srd(28, 62, D*3*D*2); k.srd(12, 6, WS_END)
    def burst():
        if ENV('BURST', '1'):
            e("s_mov_b32 exec_hi, 0xff" if ENV('BST', '6') == 6 else "s_mov_b64 exec, 0xfffff")
            e(f"buffer_load_dword v240, v9, s[8:11], s22 offen {os.environ.get('XNT', '')}"); e(f"buffer_load_dword v241, v9, s[28:31], s23 offen {os.environ.get('WNT', '')}")
            e("s_mov_b64 exec, -1")
    def codepf(tg):
        if ENV('CPF', '1'):
            e("s_getpc_b64 s[34:35]"); k.label(f"{nm}_pc{tg}")
            e(f"s_sub_u32 s34, s34, {nm}_pc{tg} - {kn}"); e("s_subb_u32 s35, s35, 0")
            e("v_lshlrev_b32 v242, 4, v0"); e("s_lshl_b32 s36, s21, 12"); e("v_add_u32 v242, s36, v242")
            e(f"v_and_b32 v242, 0xffffffc0, v242"); e(f"v_min_u32 v242, code_end - {kn} - 4, v242")
            e("global_load_dword v243, v242, s[34:35]")
    e("s_cmp_ge_u32 s17, 15"); e(f"s_cbranch_scc1 {nm}_ub")
    e("v_and_b32 v10, 31, v1"); e("v_lshrrev_b32 v4, 5, v1"); e("v_and_b32 v5, 15, v1"); e("v_bfe_u32 v7, v1, 4, 1")
    e("v_lshrrev_b32 v13, 2, v5"); e("v_and_b32 v6, 3, v1")
    e("v_lshl_add_u32 v14, v4, 3, v13"); e("v_lshlrev_b32 v14, 8, v14"); e("v_lshl_add_u32 v14, v7, 5, v14"); e("v_lshl_add_u32 v14, v6, 3, v14")
    e("v_add_u32 v14, 16384, v14")
    def a0():
        e("s_lshl_b32 s48, s17, 11"); e(f"s_add_u32 s48, s48, {C0}"); e(f"v_lshlrev_b32 v{PV_+1}, 8, v1"); e("s_mov_b64 s[56:57], 0xff")
    SF = ENV('SF', '10')
    e("s_cmp_ge_u32 s18, 4"); e(f"s_cbranch_scc1 {nm}_ld")
    kwait(); burst(); codepf("c")
    if ENV('TLB', '1'):
        sh = ENV('TLBS', '18')
        e("s_load_dwordx4 s[84:87], s[0:1], 32"); e("s_load_dwordx2 s[88:89], s[0:1], 16")
        e(f"v_lshlrev_b32 v236, {sh}, v0" if sh < 21 else "v_lshlrev_b32 v236, 21, v1")
        e(f"v_min_u32 v236, {STAMPS-4}, v236")
        e("s_cmp_eq_u32 s18, 0" if sh == 21 else "s_cmp_lt_u32 s18, 4"); e(f"s_cbranch_scc0 {nm}_tl")
        e("buffer_load_dword v237, v236, s[12:15], 0 offen")
        e("v_and_b32 v236, 1, v1"); e("v_mul_u32_u24 v238, 819196, v236"); e("v_mul_u32_u24 v236, 2457596, v236"); e("s_mov_b64 exec, 3")
        e("s_waitcnt lgkmcnt(0)")
        e("global_load_dword v237, v236, s[84:85]"); e("global_load_dword v237, v238, s[86:87]"); e("global_load_dword v237, v238, s[88:89]")
        e("s_mov_b64 exec, -1")
        k.label(f"{nm}_tl")
        e("s_waitcnt lgkmcnt(0)")
    ACC, BF, AR, RS = 64, 128, 160, 200
    BA, AA = 216, 224
    e("s_lshl_b32 s19, s16, 2"); e("s_add_u32 s19, s19, s18")
    for jf in range(4):
        e(f"v_xor_b32 v15, {jf}, v13"); e(f"v_lshl_add_u32 v{BA+jf}, v15, 6, v14"); e(f"v_add_u32 v{BA+4+jf}, 65536, v{BA+jf}")
    e("v_lshl_add_u32 v15, v2, 5, v10"); e("v_lshlrev_b32 v15, 7, v15"); e("v_bfe_u32 v12, v10, 1, 3"); e("v_xor_b32 v12, v12, v4")
    for q in range(4):
        e(f"v_xor_b32 v11, {2*q}, v12"); e(f"v_lshl_add_u32 v{AA+q}, v11, 4, v15"); e(f"v_add_u32 v{AA+4+q}, 65536, v{AA+q}")
    e("v_mul_u32_u24 v8, 20480, v7"); e("v_lshl_add_u32 v8, v4, 8, v8"); e("v_lshl_add_u32 v8, v5, 4, v8")
    e("s_mul_i32 s24, s19, 40960"); e(f"s_add_u32 s24, s24, {XI}")
    e("v_subrev_u32 v58, 1, v4"); e("v_not_b32 v59, v58")
    e("s_lshl_b32 s40, s2, 2"); e("s_add_u32 s40, s40, s39"); e("s_mul_i32 s40, s40, 8192"); e(f"s_add_u32 s40, s40, {QIMG}"); e("v_lshlrev_b32 v238, 7, v1")
    e("s_cmp_ge_u32 s17, 10"); e(f"s_cbranch_scc1 {nm}_qv")
    FTN = ENV('FTN', '2'); K1 = 20 - FTN
    def mainloop(vmode):
        tagm = "v" if vmode else "q"
        acc = lambda jf: vr(ACC+16*jf, 16)
        fl = k.capture(lambda: addr_v(k, 0) if vmode else addr_qk(k, 0, 28))
        ops = [(ks, f//4, f%4) for ks in range(K1) for f in range(8)] + [(ks, u, jf) for jf in range(4) for ks in range(K1, 20) for u in range(2)]
        kb = [-1]; na = [0]
        def rdA(ks):
            sl = slot(ks//2)
            for u in range(2): k.dsop(f"ds_read_b128 {vr(AR+8*(ks%4)+4*u,4)}, v{AA+4*(sl>>16)+2*(ks%2)+u} offset:{sl & 0xffff}", f"a{ks}")
        def rd(i):
            ks, u, jf = ops[i]; sl = slot(ks//2)
            while kb[0] < need(ks): e("s_barrier"); kb[0] += 1
            while na[0] <= ks: rdA(na[0]); na[0] += 1
            for t in range(2):
                off = sl + (32*(ks%2) + 16*u + 4*t)*256
                k.dsop(f"ds_read_b64_tr_b16 {vr(BF+4*(i%8)+2*t,2)}, v{BA+4*(sl>>16)+jf} offset:{off & 0xffff}", f"b{i}")
        def mm(i):
            ks, u, jf = ops[i]
            if i % 2 == 0: k.waitlg(f"b{i+1}")
            a = vr(AR+8*(ks%4)+4*u, 4); b = vr(BF+4*(i%8), 4); c = acc(jf) if (ks or u) else "0"
            if vmode: e(f"v_mfma_f32_32x32x16_bf16 {acc(jf)}, {a}, {b}, {c}")
            else:     e(f"v_mfma_f32_32x32x16_bf16 {acc(jf)}, {b}, {a}, {c}")
            if i + 8 < 160: rd(i + 8)
        def xst(ks, tg):
            e(f"s_cmp_eq_u32 s17, {ks % 15}"); e(f"s_cbranch_scc0 {nm}_x{tg}{ks}")
            e(f"s_add_u32 s32, s24, {1024*ks}")
            for u in range(2): e(f"buffer_store_dwordx4 {vr(AR+8*(ks%4)+4*u,4)}, v8, s[12:15], s32 offen offset:{512*u} {SC}")
            k.label(f"{nm}_x{tg}{ks}")
        for i in range(8):
            rd(i)
            if i == 0: k.stamp(3)
        for ks in range(K1):
            for f in range(8):
                mm(8*ks + f)
                if ks >= 4: k.fill(fl, 1)
            xst(ks, tagm)
            if ks in (0, 1, 4, 9, 10, 14): k.stamp(7 + (0, 1, 4, 9, 10, 14).index(ks))
        assert not fl
        e(f"v_lshlrev_b32 v23, 2, v10"); e(f"v_add_u32 v23, {UT}, v23"); e("s_lshl_b32 s32, s18, 8"); e("v_add_u32 v22, s32, v23")
        if vmode: e("v_lshlrev_b32 v21, 4, v4"); e(f"s_add_u32 s32, s32, {UT}"); e("v_add_u32 v21, s32, v21")
        for n in range(2*FTN): mm(8*K1 + n)
        for ks in range(K1, 20): xst(ks, tagm)
        assert kb[0] == 9
        k.stamp(4)
        e("s_barrier")
        k.dsop("ds_read_b32 v48, v22 offset:1024", "u"); k.dsop("ds_read_b32 v49, v22 offset:1152", "u")
        for jf in range(4): k.dsop(f"ds_read_b32 v{28+2*jf}, v23 offset:{256*jf}", "u"); k.dsop(f"ds_read_b32 v{29+2*jf}, v23 offset:{256*jf+128}", "u")
        if vmode:
            for a_ in range(4): k.dsop(f"ds_read_b128 {vr(RS+4*a_,4)}, v21 offset:{2048+32*a_}", "u")
        else: k.dsop("ds_read_b32 v47, v22 offset:2048", "u")
        def corr(jf):
            if vmode: e(f"v_mfma_f32_32x32x8_bf16 {acc(jf)}, v[48:49], {vr(28+2*jf,2)}, {acc(jf)}")
            else:     e(f"v_mfma_f32_32x32x8_bf16 {acc(jf)}, {vr(28+2*jf,2)}, v[48:49], {acc(jf)}")
        for n in range(2): mm(8*K1 + 2*FTN + n)
        k.waitlg("u")
        e("v_and_b32 v48, v48, v58"); e("v_and_b32 v49, v49, v58")
        if not vmode: e("v_mul_f32 v47, s59, v47")
        corr(0)
        k.stamp(5)
        def tail(epi):
            pend = k.capture(lambda: epi(0))
            for jf in range(1, 4):
                for n in range(2 if jf == 1 else 0, 2*FTN):
                    mm(8*K1 + 2*FTN*jf + n)
                    if n >= (4 if jf == 1 else 2): k.fill(pend, ENV('TFILL', '5'))
                corr(jf)
                k.fill(pend, 1000)
                pend = k.capture(lambda: epi(jf))
            k.fill(pend, 1000)
        return tail
    tail = mainloop(False)
    dispatch5(k, lambda v: tail(lambda jf: epi_qk1(k, v, jf)))
    k.label(f"{nm}_qv"); k.lg = []
    tail = mainloop(True)
    tail(lambda jf: epi_v1(k, jf, RS))
    k.label(f"{nm}_fin5")
    k.stamp(6)
    e("s_barrier")
    signal(k, "sf", -1, 8, a0, 0, "s[12:15]")
    k.dump(13)
    e(f"s_branch {kn}_t0")
    k.label(f"{nm}_ld"); k.vm = []; k.lg = []
    e(f"s_setprio {ENV('LPRIO', '2')}")
    e("v_lshrrev_b32 v16, 4, v1"); e("v_and_b32 v17, 3, v2")
    e("v_lshl_add_u32 v18, v17, 2, v16"); e("v_mul_u32_u24 v20, 3840, v18")
    e("v_xor_b32 v18, v13, v16"); e("v_lshl_add_u32 v20, v18, 6, v20"); e("v_lshl_add_u32 v20, v6, 4, v20")
    e("v_lshrrev_b32 v18, 3, v1"); e("v_lshl_add_u32 v19, v17, 5, v18"); e("v_and_b32 v23, 7, v1")
    for i in range(4):
        e(f"v_add_u32 v42, {8*i}, v19"); e("v_bfe_u32 v43, v42, 1, 3"); e("v_xor_b32 v43, v43, v23")
        e("v_mul_u32_u24 v42, 1280, v42"); e(f"v_lshl_add_u32 v{48+i}, v43, 4, v42")
        if i: e(f"v_subrev_u32 v{48+i}, {1024*i}, v{48+i}")
    e("s_lshl_b32 s25, s17, 8"); e("s_mul_i32 s24, s16, 163840"); e("s_lshl_b32 s26, s39, 12")
    def ld1(st, n):
        if n < 4:
            e(f"s_add_u32 m0, s45, {slot(st)+16384+4096*n}"); e(f"s_add_u32 s32, s25, {(64*st+16*n)*3840}")
            k.vmop(f"buffer_load_dwordx4 v20, s[28:31], s32 offen {os.environ.get('WNT2', '')} lds", f"d{st}")
        else:
            e(f"s_add_u32 m0, s26, {slot(st)}"); e(f"s_add_u32 s33, s24, {128*st}")
            k.vmop(f"buffer_load_dwordx4 v{44+n}, s[8:11], s33 offen offset:{1024*(n-4)} {os.environ.get('XNT2', '')} lds", f"d{st}")
    ORD = [0, 4, 1, 5, 2, 6, 3, 7]
    def ld(st):
        for n in ORD: ld1(st, n)
    kwait(); ld(0)
    e("v_xor_b32 v15, v17, v13"); e("v_lshl_add_u32 v40, v15, 6, v14"); e("v_add_u32 v41, 65536, v40")
    e("v_and_b32 v42, 1, v16"); e("v_cmp_eq_u32 vcc, v42, v5"); e("v_mov_b32 v43, 0x3f803f80")
    for r in range(4): e(f"v_cndmask_b32 v{60+r}, 0, v43, vcc")
    k.srd(52, 4, 256)
    e("s_mul_i32 s27, s17, 163840"); e("s_add_u32 s27, s27, s45"); e(f"s_add_u32 s27, s27, {WA_I}")
    if ENV('LD1', '0'): ld(1)
    done = [0]
    def steps_of(kb):
        r = []
        while done[0] < 20 and need(done[0]) <= kb: r.append(done[0]); done[0] += 1
        return r
    def wa_store(q):
        e("s_lshl_b32 s32, s16, 13"); e("s_add_u32 s32, s32, s27")
        if q: e("s_add_u32 s32, s32, 131072")
        e("s_add_u32 s33, s32, 4096")
        for u in range(2): k.vmop(f"buffer_store_dwordx4 {vr(112+8*q+4*u,4)}, v3, s[12:15], s{32+u} offen {SC}")
    for kb in range(10):
        if kb == 5: k.stamp(5)
        k.waitvm(f"d{kb}")
        if kb == 5: k.stamp(6)
        e("s_barrier")
        if kb in (4, 5): k.stamp(2 if kb == 4 else 7)
        if kb == 0 and not ENV('LD1', '0'): ld(1)
        sl = slot(kb); todo = list(ORD) if kb + DEP < 10 else []
        nxt = lambda: ld1(kb + DEP, todo.pop(0)) if todo else None
        sts = steps_of(kb)
        for n_, ks in enumerate(sts):
            for u in range(2):
                for t in range(2):
                    e(f"ds_read_b64_tr_b16 {vr(136+8*n_+4*u+2*t,2)}, v{40+(sl>>16)} offset:{(sl + (32*(ks%2) + 16*u + 4*t)*256) & 0xffff}")
        nxt(); nxt()
        if kb == 4: k.stamp(3)
        e("s_waitcnt lgkmcnt(0)")
        mf = [(n_, ks, u) for n_, ks in enumerate(sts) for u in range(2)]
        for n_, ks, u in mf:
            e(f"v_mfma_f32_16x16x32_bf16 v[64:67], v[60:63], {vr(136+8*n_+4*u,4)}, {'v[64:67]' if ks or u else 0}")
            nxt()
        nxt(); nxt()
        if kb == 4: k.stamp(4)
        for n_, ks in enumerate(sts):
            e(f"s_cmp_eq_u32 s16, {ks % 16}"); e(f"s_cbranch_scc0 {nm}_w{ks}")
            for r in range(8): e(f"v_mov_b32 v{112+8*(ks//16)+r}, v{136+8*n_+r}")
            k.label(f"{nm}_w{ks}")
        assert not todo
        if kb == 8:
            e("v_and_b32 v24, 15, v1"); e("v_lshlrev_b32 v24, 2, v24"); e("s_mov_b32 s33, 0")
            k.label(f"{nm}_pl")
            e(f"buffer_load_dword v25, v24, s[52:55], 0 offen {SC}"); e("s_add_u32 s33, s33, 1"); e("s_waitcnt vmcnt(0)"); k.vm = []
            e("v_cmp_eq_u32 vcc, 0, v25"); e("s_cmp_ge_u32 s33, 0x20000"); e(f"s_cbranch_scc1 {nm}_px")
            e(f"s_cbranch_vccnz {nm}_pl")
            k.label(f"{nm}_px")
            e("v_lshlrev_b32 v24, 3, v10"); e("s_lshl_b32 s32, s16, 10"); e("s_lshl_b32 s33, s39, 8"); e("s_add_u32 s32, s32, s33"); e(f"s_add_u32 s32, s32, {STI}")
            k.vmop(f"buffer_load_dwordx2 v[44:45], v24, s[12:15], s32 offen {SC}", "rs")
        if kb == 9: k.waitvm("rs"); wa_store(0)
    k.waitvm("rs")
    stats_finish(k, 44, 45, 28, 29, 30)
    e("v_lshlrev_b32 v42, 2, v5"); e("ds_bpermute_b32 v68, v42, v64"); e("ds_bpermute_b32 v69, v42, v65"); e("v_cmp_eq_u32 vcc, 1, v7")
    split3(k, 28, 32, 36, 'm')
    e("s_waitcnt lgkmcnt(0)"); e("v_cndmask_b32 v64, v68, v69, vcc")
    split3(k, 64, 34, 36, 'u')
    e("v_lshlrev_b32 v24, 2, v10"); e("s_lshl_b32 s32, s39, 8"); e(f"s_add_u32 s32, s32, {UT}"); e("v_add_u32 v24, s32, v24")
    e("ds_write_b32 v24, v34"); e("ds_write_b32 v24, v35 offset:128"); e("ds_write_b32 v24, v32 offset:1024"); e("ds_write_b32 v24, v33 offset:1152"); e("ds_write_b32 v24, v29 offset:2048")
    e("s_waitcnt lgkmcnt(0)"); e("s_barrier")
    lwc_init(k); e("s_barrier")
    e("v_mov_b32 v44, v64")
    e("s_cmp_ge_u32 s16, 4"); e(f"s_cbranch_scc1 {nm}_le"); wa_store(1)
    e("s_cmp_eq_u32 s16, 0"); e(f"s_cbranch_scc0 {nm}_le")
    e("v_mov_b32 v45, 0"); e("v_mov_b32 v46, 0"); e("v_mov_b32 v47, 0"); e("v_lshlrev_b32 v24, 4, v10")
    e("s_lshl_b32 s32, s17, 11"); e("s_lshl_b32 s33, s39, 9"); e("s_add_u32 s32, s32, s33"); e(f"s_add_u32 s32, s32, {U_A}")
    e("s_mov_b32 exec_hi, 0"); e(f"buffer_store_dwordx4 v[44:47], v24, s[12:15], s32 offen {SC}")
    k.label(f"{nm}_le")
    e("s_mov_b64 exec, -1")
    signal(k, "sfl", -1, 8, a0, 0, "s[12:15]")
    k.dump(8)
    e(f"s_branch {kn}_t0")
    k.label(f"{nm}_ub"); k.vm = []; k.lg = []
    kwait()
    e("v_lshrrev_b32 v4, 3, v1"); e("v_lshl_add_u32 v4, v2, 4, v4"); e("v_mul_u32_u24 v5, 1280, v4"); e("v_and_b32 v6, 7, v1"); e("v_lshl_add_u32 v5, v6, 4, v5")
    e("s_mul_i32 s24, s16, 163840"); e("s_add_u32 s25, s24, 10240")
    for b_ in range(2):
        for i in range(10): k.vmop(f"buffer_load_dwordx4 {vr(24+40*b_+4*i,4)}, v5, s[8:11], s{24+b_} offen offset:{128*i} {os.environ.get('XNT2', '')}", f"x{b_}{i}")
    for j in range(8): e(f"v_mov_b32 v{8+j}, 0")
    e("v_mov_b32 v7, 0x3f803f80")
    e("v_lshlrev_b32 v16, 4, v0"); e("s_and_b32 s26, s16, 7"); e("s_lshl_b32 s26, s26, 13"); e(f"s_add_u32 s26, s26, {CNT}"); e("s_cmp_ge_u32 s16, 8"); e(f"s_cselect_b32 s27, {LS}, 0"); e("s_add_u32 s26, s26, s27")
    k.vmop(f"buffer_store_dwordx4 v[12:15], v16, s[12:15], s26 offen {SC}")
    for b_ in range(2):
        for i in range(10):
            k.waitvm(f"x{b_}{i}")
            for q in range(4):
                r = 24+40*b_+4*i+q
                e(f"v_dot2_f32_bf16 v{8+2*b_}, v{r}, v7, v{8+2*b_}"); e(f"v_dot2_f32_bf16 v{9+2*b_}, v{r}, v{r}, v{9+2*b_}")
    for dpp in ("quad_perm:[1,0,3,2]", "quad_perm:[2,3,0,1]", "row_half_mirror"):
        for q in range(4): e(f"v_add_f32_dpp v{8+q}, v{8+q}, v{8+q} {dpp} row_mask:0xf bank_mask:0xf")
    e("v_lshlrev_b32 v4, 3, v4"); e("s_lshl_b32 s26, s16, 10"); e(f"s_add_u32 s26, s26, {STI}")
    e("v_cmp_eq_u32 vcc, 0, v6"); k.srd(52, 4, 256); e("s_mov_b64 exec, vcc")
    e(f"buffer_store_dwordx2 v[8:9], v4, s[12:15], s26 offen {SC}"); e(f"buffer_store_dwordx2 v[10:11], v4, s[12:15], s26 offen offset:64 {SC}")
    e("s_mov_b64 exec, -1"); lwc_init(k)
    e("s_waitcnt vmcnt(0)"); e("s_barrier")
    e("s_cmp_ge_u32 s18, 4"); e(f"s_cbranch_scc1 {nm}_u2")
    codepf("u")
    e("s_cmp_eq_u32 s18, 0"); e(f"s_cbranch_scc0 {nm}_u2")
    e("v_mov_b32 v4, 0"); e("v_mov_b32 v5, 1"); e("s_lshl_b32 s26, s16, 2"); e("s_mov_b64 exec, 1")
    e(f"buffer_store_dword v5, v4, s[52:55], s26 offen {SC}")
    e("s_mov_b64 exec, 0xffff"); e("v_lshlrev_b32 v4, 2, v1"); e("s_mov_b32 s33, 0")
    k.label(f"{nm}_u1")
    e(f"buffer_load_dword v5, v4, s[52:55], 0 offen {SC}"); e("s_add_u32 s33, s33, 1"); e("s_waitcnt vmcnt(0)")
    e("v_cmp_eq_u32 vcc, 0, v5"); e("s_cmp_ge_u32 s33, 0x20000"); e(f"s_cbranch_scc1 {nm}_u2"); e(f"s_cbranch_vccnz {nm}_u1")
    k.label(f"{nm}_u2")
    e("s_mov_b64 exec, -1"); e("s_waitcnt vmcnt(0)")

def k_main():
    k = KB(NAME + "_kernel"); e = k.e; name = k.name
    ph_front(k)
    k.label(f"{name}_t0")
    e("s_load_dwordx2 s[46:47], s[0:1], 48"); e("s_mov_b32 s3, 0")
    k.srd(8, 6, 2*LS)
    e("s_waitcnt lgkmcnt(0)")
    k.srd(60, 46, S*D*2)
    k.label(f"{name}_top")
    k.vm = []; k.lg = []
    e("s_setprio 0"); k.stamp(0); k.rstamp(1)
    ph_attn(k)
    def a1():
        e("s_lshl_b32 s48, s17, 3"); e("s_and_b32 s49, s16, 1"); e("s_add_u32 s48, s48, s49"); e("s_lshl_b32 s48, s48, 8"); e(f"s_add_u32 s48, s48, {C1}")
        e(f"v_lshlrev_b32 v{PV_+1}, 9, v1"); e("s_mov_b64 s[56:57], 15")
    e("s_cmp_ge_u32 s18, 4"); e(f"s_cbranch_scc1 {name}_ld")
    signal(k, "s1", 0, 8, a1)
    def c1():
        e("s_lshl_b32 s48, s16, 9"); e(f"s_add_u32 s48, s48, {C1}")
        e(f"v_lshlrev_b32 v{PV_+1}, 8, v1"); e(f"v_mov_b32 v{PV_+2}, 16"); e("s_mov_b64 s[56:57], 3")
    proj_c(k, "p2", OT, XI, XM, STM, False, c1, 0, 6)
    def a2():
        e("s_lshr_b32 s48, s16, 1"); e("s_lshl_b32 s48, s48, 9"); e(f"s_add_u32 s48, s48, {C2}")
        e(f"v_mul_u32_u24 v{PV_+1}, 768, v1"); e("s_bitcmp1_b32 s16, 0"); e("s_cselect_b64 s[56:57], 3, 1")
    signal(k, "s2", 1, 4, a2)
    qkvb_c(k, XM, STM, 9)
    def a3(): one(k, 0); e("s_lshl_b32 s48, s16, 8"); e(f"s_add_u32 s48, s48, {C3}")
    signal(k, "s3", 0, 4, a3)
    def c3(): one(k, 16); e("s_lshr_b32 s48, s16, 1"); e("s_lshl_b32 s48, s48, 8"); e(f"s_add_u32 s48, s48, {C3}")
    proj_c(k, "p4", OBT, XM, XI, STI, True, c3, 0, 12)
    def a4(): one(k, 0); e("s_lshr_b32 s48, s16, 1"); e("s_lshl_b32 s48, s48, 8"); e(f"s_add_u32 s48, s48, {C4}")
    signal(k, "s4", 1, 4, a4)
    k.dump(15, "1")
    ids_mt(k)
    e("s_cmp_ge_u32 s17, 15"); e(f"s_cbranch_scc1 {name}_idle")
    qkva_c(k, XI, STI, 0, C4, [7], 3)
    k.stamp(6)
    e("s_barrier")
    def a5(): e("s_lshl_b32 s48, s17, 11"); e(f"s_add_u32 s48, s48, {LS + C0}"); e(f"v_lshlrev_b32 v{PV_+1}, 8, v1"); e("s_mov_b64 s[56:57], 0xff")
    signal(k, "s5", -1, 4, a5)
    k.dump(7, "3")
    k.label(f"{name}_t1")
    e("s_mov_b32 s3, 1"); e(f"s_add_u32 s8, s8, {LS}"); e("s_addc_u32 s9, s9, 0"); e(f"s_mov_b32 s10, {LS}")
    e(f"s_branch {name}_top")
    k.label(f"{name}_idle")
    for _ in range(4): e("s_barrier")
    e(f"s_branch {name}_t1")
    k.label(f"{name}_ld"); k.vm = []; k.lg = []
    if os.environ.get("FOC") == "at": e("s_add_u32 s84, s3, 4"); k.dump(8, "s84")
    e(f"s_setprio {ENV('LPRIO', '2')}")
    w = proj_l(k, WOA_I, WB_I, OT, a1, EARLY)
    qkvb_l(k, XM, STM, w)
    w = proj_l(k, WOB_I, WA_I, OBT, None, 0, True)
    ids_mt(k)
    atouch_pre(k, XI)
    e("s_barrier")
    w.one(39); e("s_waitcnt vmcnt(0)"); e("s_barrier")
    e("s_barrier"); lwc_init(k); e("s_barrier")
    e(f"s_branch {name}_t1")
    k.label(f"{name}_end"); e("s_endpgm")
    k.tail()
    return k.text(256 if STAMP else 244, 256 if STAMP else 244)

def build():
    hdr = open("cdna_kernels/" + NAME + ".s.ref").read().split("; Override launch")[0]
    out = hdr + "; @launch grid=(256,1,1) block=(512,1,1) lds=163840\n"
    out += '.amdgcn_target "amdgcn-amd-amdhsa--gfx950"\n'
    out += k_main()
    out += ".text\ncode_end:\n"
    return out

if __name__ == "__main__":
    dst = sys.argv[1] if len(sys.argv) > 1 else "cdna_kernels/" + NAME + ".s"
    open(dst, "w").write(build())
    print("wrote", dst)
```

```python
import sys, math
from lint import lint, fix

NAME = "interleave_layers__softmax_full_mha__sliding_local_dilated__prompt"
S, D, H, DH = 2048, 640, 32, 20
XS = S*D*2
IMG = H*64*2560
QI = H*64*1280
CNT = 0
C1 = CNT; C2 = C1 + 64*256; C3 = C2 + 34*256; C4 = C3 + 16*256; C0 = C4 + 16*256
LS = 65536
CS = LS + C4
XI = 2*LS; STI = XI + XS
QIMG = STI + S*64; KVIMG = QIMG + QI
OT = KVIMG + IMG; OBT = OT + XS; XM = OBT + XS
STM = XM + XS
U_A = STM + S*64
U_B = U_A + 32768
WA_I = U_B + 163840
WOA_I = WA_I + 15*163840
WB_I = WOA_I + 819200
WOB_I = WB_I + 16*163840
STAMPS = WOB_I + 819200
WS_END = STAMPS + 16*262144
import os
STAMP = int(os.environ.get("STAMP", "0"))
ATTN_WAVES = 8
AV = os.environ.get("AV", "")
CSCALE = (DH ** -0.5) * math.log2(math.e)
import struct
def fbits(x): return "0x%08x" % struct.unpack("<I", struct.pack("<f", x))[0]

FM = [(0,16),(32,48),(80,96),(112,128),(64,144)]
def FX(ks, t):
    return 160*(ks//5) + FM[ks%5][t]

class KB:
    def __init__(s, name):
        s.name = name; s.L = []; s.vm = []; s.lg = []; s.cap = None
    def e(s, line):
        if s.cap is not None: s.cap.append(('e', line, None))
        else: s.L.append("    " + line)
    def capture(s, fn):
        s.cap = []; fn(); c = s.cap; s.cap = None
        return [x for x in c if not (x[0] == 'e' and x[1].startswith('s_nop'))]
    def fill(s, lst, n=1):
        for _ in range(n):
            if not lst: return
            kind, a, b = lst.pop(0)
            if kind == 'e':
                s.e(a)
                if a.startswith('s_mov_b64 exec, s['):
                    while True:
                        x = lst.pop(0)[1]; s.e(x)
                        if x == 's_mov_b64 exec, -1': break
                if a.startswith('s_cmp'):
                    while lst and lst[0][0] == 'e' and lst[0][1].startswith('s_cselect'): s.e(lst.pop(0)[1])
            elif kind == 'ds': s.dsop(a, b)
            elif kind == 'wvm': s.waitvm(a)
            elif kind == 'wlg': s.waitlg(a)
    def c(s, txt): s.L.append("    ; " + txt)
    def label(s, l): s.L.append(l + ":")
    def vmop(s, line, tag=None): s.e(line); s.vm.append(tag); assert len(s.vm) <= 63, (s.name, len(s.vm))
    def dsop(s, line, tag=None):
        if s.cap is not None: s.cap.append(('ds', line, tag)); return
        s.e(line); s.lg.append(tag)
    def _n(s, lst, tag):
        idx = max(i for i, t in enumerate(lst) if t == tag)
        return idx
    def waitvm(s, tag):
        if s.cap is not None: s.cap.append(('wvm', tag, None)); return
        if tag not in s.vm: return
        i = s._n(s.vm, tag); n = len(s.vm) - 1 - i
        s.e(f"s_waitcnt vmcnt({n})"); s.vm = s.vm[i+1:]
    def waitlg(s, tag):
        if s.cap is not None: s.cap.append(('wlg', tag, None)); return
        if tag not in s.lg: return
        i = s._n(s.lg, tag); n = len(s.lg) - 1 - i
        if n > 15: n = 15; i = len(s.lg) - 1 - n
        s.e(f"s_waitcnt lgkmcnt({n})"); s.lg = s.lg[i+1:]
    def waitall(s):
        s.e("s_waitcnt vmcnt(0) lgkmcnt(0)"); s.vm = []; s.lg = []
    def srd(s, r, base, nbytes):
        s.e(f"s_mov_b32 s{r}, s{base}")
        s.e(f"s_and_b32 s{r+1}, s{base+1}, 0xffff")
        s.e(f"s_mov_b32 s{r+2}, {nbytes}")
        s.e(f"s_mov_b32 s{r+3}, 0x20000")
    def stamp(s, i):
        if not STAMP: return
        op = "s_memrealtime" if os.environ.get("RT") else "s_memtime"
        s.e(f"{op} s[{64+2*i}:{65+2*i}]" if i < 10 else f"{op} s[{72+2*i}:{73+2*i}]")
    def rstamp(s, i):
        if not STAMP: return
        s.e(f"s_memrealtime s[{64+2*i}:{65+2*i}]")
    def dump(s, n=8, slot="0", wave="s18"):
        if not STAMP: return
        e = s.e
        if os.environ.get("DBG"):
            keep = {"0": [(1, 246), (3, 247), (6, 248)], "1": [(2, 249), (5, 250), (14, 251)], "3": [(6, 252)], "2": [(2, 253), (5, 254), (14, 255)]}[slot]
            e("s_waitcnt lgkmcnt(0)")
            if n < 7 or (slot == "0" and n == 8): return
            for i, v in keep: e(f"v_mov_b32 v{v}, s{64+2*i if i < 10 else 72+2*i}")
            if slot == "2":
                e(f"s_cmp_eq_u32 s2, {os.environ['DBG']}"); e("s_cbranch_scc0 dbg_skip"); e("s_cmp_eq_u32 s18, 0"); e("s_cbranch_scc0 dbg_skip")
                e("s_load_dwordx2 s[84:85], s[0:1], 56"); e("s_memrealtime s[86:87]"); e("s_waitcnt lgkmcnt(0)")
                s.srd(88, 84, 256); e("s_mov_b64 exec, 1"); e("v_mov_b32 v0, 0"); e("v_mov_b32 v245, s86"); e("v_sub_u32 v245, v245, v246")
                for i in range(9):
                    e(f"v_sub_u32 v{247+i}, v{247+i}, v246"); e(f"buffer_store_dword v{247+i}, v0, s[88:91], 0 offen offset:{4*i}")
                e("buffer_store_dword v245, v0, s[88:91], 0 offen offset:36")
                s.label("dbg_skip")
            return
        e("s_memrealtime s[86:87]"); e("s_waitcnt lgkmcnt(0)")
        e("s_mov_b64 exec, 1")
        e(f"s_lshl_b32 s84, {slot}, 18")
        e("s_lshl_b32 s85, s2, 3"); e(f"s_add_u32 s85, s85, {wave}"); e("s_lshl_b32 s85, s85, 6"); e(f"s_add_u32 s85, s85, {STAMPS}"); e("s_add_u32 s85, s85, s84")
        e("v_mov_b32 v244, 0")
        for i in range(n):
            e(f"v_mov_b32 v245, s{64+2*i if i < 10 else 72+2*i}")
            e(f"buffer_store_dword v245, v244, s[12:15], s85 offen offset:{4*i}")
        e("v_mov_b32 v245, s86"); e("buffer_store_dword v245, v244, s[12:15], s85 offen offset:60")
        e("s_mov_b64 exec, -1")
    def text(s, vgpr, accum, sgpr=102):
        s.L, added = fix(s.L)
        if os.environ.get("V"): print(s.name, "auto nops:", added, "lines:", len(s.L))
        out = [".text", f".globl {s.name}", ".p2align 8", f".type {s.name},@function", f"{s.name}:"]
        out += s.L
        out += ['.section .rodata,"a"', ".p2align 6", f".amdhsa_kernel {s.name}",
                f"  .amdhsa_next_free_vgpr {vgpr}", f"  .amdhsa_next_free_sgpr {sgpr}", f"  .amdhsa_accum_offset {accum}",
                "  .amdhsa_group_segment_fixed_size 0", "  .amdhsa_kernarg_size 72", "  .amdhsa_user_sgpr_count 2",
                "  .amdhsa_user_sgpr_kernarg_segment_ptr 1", "  .amdhsa_system_sgpr_workgroup_id_x 1", ".end_amdhsa_kernel"]
        nb = lint(s.L, s.name)
        assert nb == 0, f"{nb} hazards in {s.name}"
        return "\n".join(out) + "\n"
    def allred32(s, op, v, t):
        s.e(f"v_mov_b32 v{t}, v{v}"); s.e("s_nop 1")
        s.e(f"v_permlane32_swap_b32 v{v}, v{t}"); s.e("s_nop 1")
        s.e(f"{op} v{v}, v{v}, v{t}")
    def allred16(s, op, v, t):
        s.e(f"v_mov_b32 v{t}, v{v}"); s.e("s_nop 1")
        s.e(f"v_permlane16_swap_b32 v{v}, v{t}"); s.e("s_nop 1")
        s.e(f"{op} v{v}, v{v}, v{t}")

def vr(a, n): return f"v[{a}:{a+n-1}]" if n > 1 else f"v{a}"
def ar(a, n): return f"a[{a}:{a+n-1}]" if n > 1 else f"a{a}"

def stats_finish(k, s1, s2, mean, rstd, t):
    e = k.e
    e(f"v_mul_f32 v{mean}, {fbits(1.0/D)}, v{s1}")
    e(f"v_mul_f32 v{t}, {fbits(1.0/D)}, v{s2}")
    e(f"v_fma_f32 v{t}, -v{mean}, v{mean}, v{t}")
    e(f"v_max_f32 v{t}, 0, v{t}")
    e(f"v_add_f32 v{t}, {fbits(1e-5)}, v{t}")
    e(f"v_rsq_f32 v{rstd}, v{t}")
    e("s_nop 0")

def split3(k, src, d, t, kind, maskv=None):
    e = k.e
    if kind == 'm':
        e(f"v_xor_b32 v{t+1}, 0x80000000, v{src}"); src = t+1
    e(f"v_and_b32 v{t}, 0xffff0000, v{src}")
    e(f"v_sub_f32 v{t+2}, v{src}, v{t}")
    if kind == 'u':
        e(f"v_cvt_pk_bf16_f32 v{d}, v{t}, v{t+2}")
        e(f"v_lshrrev_b32 v{d+1}, 16, v{t}")
    else:
        e(f"v_cvt_pk_bf16_f32 v{d}, v{t}, v{t}")
        e(f"v_cvt_pk_bf16_f32 v{d+1}, v{t+2}, 0")
    if maskv is not None:
        e(f"v_and_b32 v{d}, v{d}, v{maskv}"); e(f"v_and_b32 v{d+1}, v{d+1}, v{maskv}")

SC = "sc1"
RS_ = lambda off: "s[12:15]" if off >= 2*LS else "s[8:11]"
EARLY = int(os.environ.get('EARLY', '6'))
ENV = lambda n, d: int(os.environ.get(n, d))

def ids_mt(k):
    k.e("s_lshl_b32 s22, s20, 1"); k.e("s_and_b32 s23, s21, 1"); k.e("s_add_u32 s16, s22, s23"); k.e("s_lshr_b32 s17, s21, 1")
def ids_rt(k):
    k.e("s_lshl_b32 s22, s20, 2"); k.e("s_and_b32 s23, s21, 3"); k.e("s_add_u32 s16, s22, s23"); k.e("s_lshr_b32 s17, s21, 2")

LW = 163824
PV_ = 240
def lw_init(k):
    e = k.e
    e(f"v_mov_b32 v{PV_+3}, {LW}")
    for i in range(3): e(f"v_mov_b32 v{PV_+i}, 0")
    e(f"ds_write_b96 v{PV_+3}, v[{PV_}:{PV_+2}]"); e(f"ds_write_b32 v{PV_+3}, v{PV_} offset:12")

def lwc_init(k):
    k.e(f"v_mov_b32 v{PV_+3}, {LW-8}"); k.e(f"v_mov_b32 v{PV_}, 0"); k.e(f"v_mov_b32 v{PV_+1}, 0")
    k.e(f"ds_write_b64 v{PV_+3}, v[{PV_}:{PV_+1}]"); k.e("s_waitcnt lgkmcnt(0)")

def signal(k, tag, word, nw, addr_code, younger=0, srd="s[8:11]"):
    e = k.e
    addr_code()
    e(f"v_mov_b32 v{PV_+3}, {LW-8}"); e(f"v_mov_b32 v{PV_}, 1")
    e("s_mov_b64 exec, 1")
    assert younger == 0
    e("s_waitcnt vmcnt(0)"); k.vm = []
    if tag == os.environ.get("FOC"): k.stamp(2)
    e(f"ds_add_rtn_u32 v{PV_+2}, v{PV_+3}, v{PV_} offset:{8*word+8}")
    e("s_waitcnt lgkmcnt(0)"); k.lg = []
    e(f"v_readfirstlane_b32 s49, v{PV_+2}")
    e("s_mov_b64 exec, s[56:57]")
    e(f"s_cmp_eq_u32 s49, {nw-1}"); e(f"s_cbranch_scc0 {k.name}_{tag}_sg")
    e(f"buffer_atomic_add v{PV_}, v{PV_+1}, {srd}, s48 offen {SC}")
    if os.environ.get("FOC2") == tag: k.stamp(4)
    k.label(f"{k.name}_{tag}_sg")
    e("s_mov_b64 exec, -1")

def wait_go(k, tag, word, poll_code):
    e = k.e; nm = f"{k.name}_{tag}"
    e(f"v_mov_b32 v{PV_+3}, {LW-8}"); e("s_mov_b32 s49, 0")
    if poll_code:
        e("s_cmp_eq_u32 s18, 0"); e(f"s_cbranch_scc0 {nm}_sp")
        poll_code()
        e("s_mov_b64 exec, s[56:57]")
        if os.environ.get("FOC") == "g" + tag: k.stamp(2)
        k.label(f"{nm}_pl")
        e(f"v_mov_b32 v{PV_}, 0")
        e(f"buffer_atomic_add v{PV_}, v{PV_+1}, s[8:11], s48 offen sc0 sc1")
        e("s_add_u32 s49, s49, 1")
        e("s_waitcnt vmcnt(0)")
        e(f"v_cmp_ge_u32 vcc, v{PV_}, v{PV_+2}")
        e("s_cmp_ge_u32 s49, 0x20000"); e(f"s_cbranch_scc1 {nm}_px")
        e("s_cmp_eq_u64 vcc, exec"); e(f"s_cbranch_scc0 {nm}_pl")
        k.label(f"{nm}_px")
        if os.environ.get("FOC") == "g" + tag: e("s_add_u32 s70, s64, s49")
        e("s_mov_b64 exec, 1"); e(f"v_mov_b32 v{PV_}, 1")
        e(f"ds_write_b32 v{PV_+3}, v{PV_} offset:{8*word+12}")
        e(f"s_branch {nm}_go")
    k.label(f"{nm}_sp")
    e("s_sleep 1")
    e(f"ds_read_b32 v{PV_}, v{PV_+3} offset:{8*word+12}")
    e("s_add_u32 s49, s49, 1")
    e("s_waitcnt lgkmcnt(0)")
    e(f"v_readfirstlane_b32 s44, v{PV_}")
    e("s_cmp_ge_u32 s49, 0x400000"); e(f"s_cbranch_scc1 {nm}_go")
    e("s_cmp_eq_u32 s44, 0"); e(f"s_cbranch_scc1 {nm}_sp")
    k.label(f"{nm}_go")
    e("s_mov_b64 exec, -1")

class Wdma:
    def __init__(s, k, n, base=50, tag="w"): s.k = k; s.n = n; s.i = 0; s.base = base; s.tag = tag
    def one(s, i):
        s.k.e(f"s_add_u32 m0, s45, {4096*i}"); s.k.e(f"s_add_u32 s32, s{s.base}, {4096*i}")
        s.k.vmop(f"buffer_load_dwordx4 v3, s[12:15], s32 offen {SC} lds", f"{s.tag}{i}")
    def go(s, upto):
        while s.i < min(upto, s.n): s.one(s.i); s.i += 1
    def rng(s, a, b, thr=0):
        for i in range(a, b):
            s.one(i)
            if thr and len(s.k.vm) >= thr: s.k.e(f"s_waitcnt vmcnt({thr-1})"); s.k.vm = s.k.vm[len(s.k.vm)-thr+1:]

SIDE_SV = 152; SIDE_D = 160; SIDE_U = 192
def side_setup(k):
    e = k.e; nm = k.name
    e("s_load_dwordx4 s[84:87], s[0:1], 32"); e("s_load_dwordx2 s[88:89], s[0:1], 16")
    e("s_mul_i32 s49, s2, 3"); e("s_add_u32 s49, s49, s18"); e("s_sub_u32 s49, s49, 4")
    e("s_sub_u32 s32, s18, 4"); e("s_cmp_lt_u32 s32, 3"); e("s_cselect_b32 s49, s49, 959"); e("s_cmp_eq_u32 s3, 0"); e("s_cselect_b32 s49, s49, 959")
    e("s_lshl_b32 s35, s39, 13"); e("s_add_u32 s35, s35, 112640")
    e("s_mul_i32 s36, s49, 3277"); e("s_lshr_b32 s36, s36, 16"); e("s_mul_i32 s37, s36, 20"); e("s_sub_u32 s37, s49, s37")
    e("v_and_b32 v140, 15, v1"); e("v_lshrrev_b32 v141, 2, v140"); e("v_and_b32 v142, 3, v1")
    e("s_waitcnt lgkmcnt(0)")
    SV = SIDE_SV
    e("v_lshrrev_b32 v136, 4, v1")
    for r in list(range(SV, SV+5)) + list(range(144, 152)): e(f"v_mov_b32 v{r}, 0")
    e("s_mov_b32 s5, 0")
    e("s_mov_b32 s53, 0x7ff00000"); e("s_mov_b32 s54, s53"); e("s_mov_b32 s58, s53")
    e("s_cmp_ge_u32 s49, 320"); e(f"s_cbranch_scc1 {nm}_ss1")
    k.srd(88, 84, D*3*D*2)
    e(f"s_mul_i32 s5, s37, {32*3840}"); e("s_mul_i32 s32, s36, 80"); e("s_add_u32 s5, s5, s32")
    e("v_lshlrev_b32 v137, 2, v136"); e("v_xor_b32 v137, v137, v140"); e("v_min_u32 v137, 14, v137")
    e("v_mul_u32_u24 v138, 52, v137"); e("v_lshrrev_b32 v138, 8, v138"); e("v_mul_u32_u24 v138, 1200, v138"); e("v_lshl_add_u32 v138, v137, 4, v138")
    e("v_mul_u32_u24 v137, 3840, v136"); e(f"v_add_u32 v{SV}, v138, v137")
    e("v_lshrrev_b32 v137, 5, v1"); e("v_lshl_add_u32 v137, v137, 3, v141"); e("v_lshlrev_b32 v137, 8, v137"); e("v_and_b32 v138, 1, v136")
    e("v_lshl_add_u32 v137, v138, 5, v137"); e("v_lshl_add_u32 v137, v142, 3, v137"); e("v_add_u32 v137, s35, v137")
    for jf in range(4): e(f"v_xor_b32 v139, {jf}, v141"); e(f"v_lshl_add_u32 v{144+jf}, v139, 6, v137")
    e("s_mul_i32 s53, s36, 163840"); e("s_lshl_b32 s54, s37, 13"); e("s_add_u32 s53, s53, s54"); e(f"s_add_u32 s53, s53, {WB_I}"); e("s_add_u32 s54, s53, 4096"); e("s_mov_b32 s58, s54")
    e(f"s_branch {nm}_ss2")
    k.label(f"{nm}_ss1")
    e("s_cmp_ge_u32 s36, 24"); e("s_cselect_b32 s32, s86, s88"); e("s_cselect_b32 s33, s87, s89")
    k.srd(88, 32, D*D*2)
    e("s_cmp_ge_u32 s49, 640"); e(f"s_cbranch_scc1 {nm}_ss2")
    e("s_and_b32 s32, s36, 7"); e("s_mul_i32 s32, s32, 160")
    e("s_mul_i32 s5, s37, 40"); e("s_sub_u32 s34, s37, 16"); e("s_mul_i32 s34, s34, 160"); e("s_add_u32 s34, s34, 16")
    e("s_cmp_lt_u32 s37, 16"); e("s_cselect_b32 s5, s5, s34"); e("s_cselect_b32 s33, 4, 2"); e("s_cselect_b32 s34, 4, 16")
    e("s_mul_i32 s5, s5, 1280"); e("s_add_u32 s5, s5, s32")
    for i in range(5):
        e(f"v_add_u32 v137, {64*i}, v1"); e("v_mul_u32_u24 v138, 6554, v137"); e("v_lshrrev_b32 v138, 16, v138")
        e("v_lshrrev_b32 v139, s33, v138"); e("v_mul_u32_u24 v139, s34, v139"); e("v_mul_u32_u24 v139, 1280, v139")
        e("v_mul_u32_u24 v138, 1120, v138"); e("v_add_u32 v139, v139, v138"); e(f"v_lshl_add_u32 v{SV+i}, v137, 4, v139")
    e("v_lshlrev_b32 v137, 2, v136"); e("s_mov_b32 s32, 2560")
    e("s_cmp_ge_u32 s36, 24"); e(f"s_cbranch_scc1 {nm}_sf3"); e("s_cmp_ge_u32 s37, 16"); e(f"s_cbranch_scc1 {nm}_sf3")
    e("v_lshrrev_b32 v137, 1, v136"); e("v_lshlrev_b32 v137, 4, v137"); e("v_and_b32 v138, 1, v136"); e("v_lshl_add_u32 v137, v138, 2, v137"); e("s_mov_b32 s32, 1280")
    k.label(f"{nm}_sf3")
    e("v_add_u32 v137, v137, v141"); e("v_mul_u32_u24 v137, 160, v137"); e("v_add_u32 v137, s35, v137")
    e("s_and_b32 s33, s36, 1"); e("s_lshl_b32 s34, s33, 5"); e("s_xor_b32 s33, s33, 1"); e("s_lshl_b32 s33, s33, 7")
    e("v_lshl_add_u32 v144, v142, 4, v137"); e("v_add_u32 v144, s34, v144"); e("v_add_u32 v145, s32, v144")
    e("v_lshl_add_u32 v146, v142, 3, v137"); e("v_add_u32 v146, s33, v146"); e("v_add_u32 v147, s32, v146")
    e("s_cmp_ge_u32 s36, 24"); e(f"s_cselect_b32 s53, {WOB_I-WOA_I}, 0"); e("s_and_b32 s54, s36, 7"); e("s_mul_i32 s54, s54, 102400"); e("s_add_u32 s53, s53, s54")
    e("s_mul_i32 s54, s37, 5120"); e("s_add_u32 s53, s53, s54"); e(f"s_add_u32 s53, s53, {WOA_I}"); e("s_add_u32 s54, s53, 4096")
    k.label(f"{nm}_ss2")
    e("s_lshl_b32 s38, s49, 9"); e(f"s_add_u32 s38, s38, {U_B}"); e("s_cmp_ge_u32 s49, 320"); e("s_cselect_b32 s38, 0x7ff00000, s38")
    e("v_lshlrev_b32 v143, 2, v1")
    e("s_cmp_lt_u32 s49, 640"); e("s_cselect_b32 s4, 2, 0"); e("s_cmp_lt_u32 s49, 320"); e("s_cselect_b32 s4, 1, s4")
    e("s_and_b32 s55, s49, 15"); e("s_lshl_b32 s55, s55, 8"); e(f"s_add_u32 s55, s55, {CS}")

def ph_attn(k):
    e = k.e; nm = k.name
    KA, KT, VA = 4, 5, 6
    Q = [8, 14]; KF = [24, 32]; VF = [40, 48]; SS = [56, 72]; P = 88; O = [96, 112]; PF = 208
    SCR = 137216; TOP = 112640
    ids_rt(k)
    e("v_and_b32 v3, 31, v1"); e("v_lshrrev_b32 v7, 5, v1")
    e("v_lshlrev_b32 v22, 4, v1"); e("v_lshlrev_b32 v23, 3, v3")
    e("s_mul_i32 s19, s16, 163840")
    e("s_lshr_b32 s41, s18, 2")
    e("s_lshl_b32 s23, s17, 3"); e("s_lshl_b32 s22, s39, 1"); e("s_add_u32 s23, s23, s22")
    e("s_add_u32 s23, s23, s41")
    e("s_lshr_b32 s22, s19, 1"); e(f"s_add_u32 s22, s22, {QIMG}")
    e("s_mul_i32 s24, s23, 1280"); e("s_add_u32 s24, s24, s22"); e("s_xor_b32 s40, s23, 1"); e("s_mul_i32 s40, s40, 1280"); e("s_add_u32 s40, s40, s22")
    e("s_mul_i32 s42, s41, 2560"); e(f"s_add_u32 s42, s42, {TOP}")
    e("s_lshl_b32 s25, s18, 10")
    e(f"s_add_u32 s26, s19, {KVIMG}")
    rnd = [0]
    def dma():
        i = rnd[0]; rnd[0] += 1
        if i == 6:
            e("s_cmp_lt_u32 s18, 2"); e("s_cselect_b32 s27, 163840, 0"); e("s_add_u32 s27, s27, s25"); e("s_sub_u32 m0, s27, 2048")
        else: e(f"s_add_u32 m0, s25, {(TOP + 8192*i) if i < 6 else 8192*i - 51200}")
        e("s_add_u32 s27, s26, m0")
        k.vmop(f"buffer_load_dwordx4 v22, s[12:15], s27 offen {SC} lds", f"i{i}")
    e(f"v_add_u32 v{KA}, s42, v22")
    e(f"v_add_u32 v{KT}, s42, v23"); e(f"v_add_u32 v{KT}, 1024, v{KT}")
    if ENV('KTZ', '1'): e(f"v_lshl_add_u32 v{KT}, v7, 20, v{KT}")
    e("v_mul_u32_u24 v21, 20, v7"); e("v_add_u32 v21, v21, v3"); e("v_lshlrev_b32 v21, 4, v21")
    e("v_add_u32 v21, 1280, v21"); e(f"v_add_u32 v{VA}, s42, v21")
    e("s_mov_b32 s28, 0x000fffff"); e("s_mov_b32 s29, 0x000fffff")
    e("v_cmp_eq_u32 vcc, 20, v3"); e("v_mov_b32 v20, 0x3f803f80"); e("s_nop 0")
    e("v_cndmask_b32 v20, 0, v20, vcc")
    for r in range(16): e(f"v_mov_b32 v{VF[0]+r}, v20")
    for r in range(32): e(f"v_mov_b32 v{O[0]+r}, 0")
    for r in range(4): e(f"v_mov_b32 v{P+4+r}, 0")
    e("v_subrev_u32 v30, 1, v7")
    e("s_lshl_b32 s43, s21, 2"); e("s_add_u32 s43, s43, s39"); e(f"s_mul_i32 s43, s43, {2048*ENV('NPF', '14') - 1024}"); e(f"s_add_u32 s43, s43, {WOA_I}")
    e("s_mul_i32 s32, s23, 40960"); e(f"s_add_u32 s32, s32, {OT}")
    e("s_lshr_b32 s51, s16, 1"); e("s_lshl_b32 s51, s51, 10"); e("s_and_b32 s34, s16, 1"); e("s_lshl_b32 s34, s34, 9")
    e("s_add_u32 s51, s51, s34"); e("s_add_u32 s51, s51, s32")
    e("s_lshr_b32 s52, s16, 3"); e("s_add_u32 s52, s52, 16"); e("s_lshl_b32 s52, s52, 10"); e("s_add_u32 s52, s52, s32")
    e("s_and_b32 s35, s16, 3"); e("s_lshl_b32 s35, s35, 8"); e("s_add_u32 s52, s52, s35")
    e("s_bfe_u32 s35, s16, 0x10002"); e("s_lshl_b32 s35, s35, 3"); e("s_add_u32 s52, s52, s35")
    e("v_lshrrev_b32 v38, 4, v3"); e("v_mul_u32_u24 v38, 20480, v38"); e("v_and_b32 v39, 15, v3")
    e("v_lshl_add_u32 v38, v39, 4, v38"); e("v_lshl_add_u32 v39, v7, 8, v38")
    e("s_mul_i32 s32, s18, 3072"); e("s_xor_b32 s33, s18, 4"); e("s_mul_i32 s33, s33, 3072")
    e(f"v_add_u32 v132, {SCR}, v22"); e("v_add_u32 v133, s33, v132"); e("v_add_u32 v132, s32, v132")
    def c0(nl):
        e("s_lshl_b32 s48, s17, 8"); e(f"s_add_u32 s48, s48, {C0}"); e(f"v_mov_b32 v{PV_+2}, 16")
        e("s_mul_i32 s32, s16, 20"); e("s_add_u32 s33, s32, 19"); e("s_lshr_b32 s32, s32, 7"); e("s_lshr_b32 s33, s33, 7"); e("s_sub_u32 s33, s33, s32")
        e(f"v_lshrrev_b32 v{PV_+1}, 1, v1"); e(f"v_mul_u32_u24 v{PV_+1}, 5, v{PV_+1}"); e(f"v_and_b32 v{PV_}, s33, v1"); e(f"v_add3_u32 v{PV_+1}, v{PV_+1}, v{PV_}, s32")
        e(f"v_lshlrev_b32 v{PV_+1}, 11, v{PV_+1}"); e("s_mov_b64 s[56:57], 63")
    side_setup(k)
    e("s_lshl_b32 s59, s2, 2"); e("s_add_u32 s59, s59, s39"); e("s_mul_i32 s50, s17, 102400"); e("s_add_u32 s50, s50, s25"); e(f"s_add_u32 s50, s50, {WOA_I}"); e(f"s_mul_i32 s59, s59, {-(-(U_A - OT) // 1024 // 128) * 128}"); e(f"s_add_u32 s59, s59, {OT}")
    e("v_lshlrev_b32 v234, 7, v1")
    e("v_lshlrev_b32 v134, 11, v1"); e("s_lshl_b32 s32, s17, 8"); e(f"s_add_u32 s32, s32, {C0}"); e("v_add_u32 v134, s32, v134")
    e("v_lshlrev_b32 v135, 8, v1"); e(f"v_add_u32 v135, {CS - 4096}, v135"); e("v_cmp_gt_u32 vcc, 16, v1")
    e("v_cndmask_b32 v134, v135, v134, vcc"); e("v_cndmask_b32 v131, 40, 16, vcc"); e("v_mov_b32 v135, 64")
    wait_go(k, "t", -1, lambda: c0(6))
    k.stamp(2)
    e("s_or_b32 s44, s3, s41"); e("s_xor_b32 s44, s44, 1")
    dma()
    for x in range(2):
        k.vmop(f"buffer_load_dwordx4 {vr(Q[x],4)}, v22, s[12:15], s{(24,40)[x]} offen {SC}", "q")
        k.vmop(f"buffer_load_dwordx2 {vr(Q[x]+4,2)}, v23, s[12:15], s{(24,40)[x]} offen offset:1024 {SC}", "q")
    for _ in range(3): dma()
    k.waitvm("q")
    for x in range(2):
        e(f"v_and_b32 v{Q[x]+4}, v{Q[x]+4}, v30"); e(f"v_and_b32 v{Q[x]+5}, v{Q[x]+5}, v30")
    k.waitvm("i1"); e("s_barrier"); k.stamp(3)
    if os.environ.get("FOC") == "clk": k.rstamp(0)
    def rdK(buf, off):
        off *= 2
        e(f"ds_read_b128 {vr(KF[buf],4)}, v{KA} offset:{off}")
        e(f"ds_read_b64 {vr(KF[buf]+4,2)}, v{KT} offset:{off}")
    def rdV(buf, off):
        off *= 2
        e("s_mov_b64 exec, s[28:29]")
        e(f"ds_read_b128 {vr(VF[buf],4)}, v{VA} offset:{off}")
        e(f"ds_read_b128 {vr(VF[buf]+4,4)}, v{VA} offset:{off+640}")
        e("s_mov_b64 exec, -1")
    def qkm(x, kb): e(f"v_mfma_f32_32x32x16_bf16 {vr(SS[x],16)}, {vr(KF[kb],4)}, {vr(Q[x],4)}, 0")
    def qkt(x, kb): e(f"v_mfma_f32_32x32x8_bf16 {vr(SS[x],16)}, {vr(KF[kb]+4,2)}, {vr(Q[x]+4,2)}, {vr(SS[x],16)}")
    def pv(x, vb, u): e(f"v_mfma_f32_32x32x16_bf16 {vr(O[x],16)}, {vr(VF[vb]+4*u,4)}, {vr(P+4*u,4)}, {vr(O[x],16)}")
    def base(t):
        return 0 if t < 10 else 10 if t < 22 else 22
    def bump(regs, t):
        if t == 10:
            for r in regs: e(f"v_subrev_u32 v{r}, {TOP}, v{r}")
        elif t == 22:
            for r in regs: e(f"v_add_u32 v{r}, {12*5120}, v{r}")
    def unit(x, t, extra=()):
        p = t % 2; s = SS[x]
        ex = lambda i: e(f"v_exp_f32 v{s+i}, v{s+i}")
        cv = lambda i: e(f"v_cvt_pk_bf16_f32 v{P+i}, v{s+2*i}, v{s+2*i+1}")
        kb = p if x == 0 else 1-p
        if x == 1: e("s_waitcnt lgkmcnt(2)" if t < 31 else "s_waitcnt lgkmcnt(0)")
        if not (x == 1 and t == 31): qkm(1-x, kb)
        if x == 1 and t + 2 < 32:
            bump((KA, KT), t+2); rdK(p, (t+2-base(t+2))*2560)
        for i in range(0, 4): ex(i)
        if x == 0:
            pv(1, 1-p, 1)
            if t + 1 < 32:
                bump((VA,), t+1); rdV(1-p, (t+1-base(t+1))*2560)
        else:
            pv(0, p, 1)
        for f_ in extra: f_()
        for i in range(4, 8): ex(i)
        for i in range(0, 4): cv(i)
        if not (x == 1 and t == 31): qkt(1-x, kb)
        for i in range(8, 12): ex(i)
        if x == 0: e(f"s_waitcnt lgkmcnt({4 if t < 31 else 0})")
        pv(x, p, 0)
        for i in range(12, 16): ex(i)
        for i in range(4, 8): cv(i)
    rdK(0, 0); rdV(0, 0); rdK(1, 2560)
    e("s_waitcnt lgkmcnt(4)")
    qkm(0, 0); e("s_nop 10"); qkt(0, 0); e("s_nop 10")
    SYN = {1: 3, 4: 7, 10: 19}; SW = ENV('SW', '27')
    T_SI, T_SR, T_SA, T_PF, T_LC = 10, ENV('TSR', '16'), 26, ENV('TPF', '15'), 27
    hk = [0]
    def cond(test, fn):
        def g():
            hk[0] += 1; lab = f"{nm}_hk{hk[0]}"
            e(test); e(f"s_cbranch_scc0 {lab}"); fn(); k.label(lab)
        return g
    def prio1(): e("s_setprio 1")
    def pref():
        for _ in range(2): e(f"buffer_load_dwordx4 {vr(PF,4)}, v22, s[12:15], s43 offen {SC}"); e("s_add_u32 s43, s43, 1024")
    def side_issue():
        e("s_cmp_eq_u32 s4, 1"); e(f"s_cbranch_scc0 {nm}_i1")
        for i in range(8):
            e(f"s_add_u32 m0, s35, {1024*i}"); e(f"s_add_u32 s27, s5, {4*3840*i}")
            e(f"buffer_load_dwordx4 v{SIDE_SV}, s[88:91], s27 offen {os.environ.get('SNT', 'nt')} lds")
        e(f"s_branch {nm}_i2")
        k.label(f"{nm}_i1")
        for i in range(5):
            e(f"s_add_u32 m0, s35, {1024*i}"); e("s_nop 0")
            e(f"buffer_load_dwordx4 v{SIDE_SV+i}, s[88:91], s5 offen {os.environ.get('SNT', 'nt')} lds")
        k.label(f"{nm}_i2")
    def side_read():
        e("s_waitcnt vmcnt(0)")
        e("s_cmp_eq_u32 s4, 1"); e(f"s_cbranch_scc0 {nm}_r1")
        for F in range(8):
            for t in range(2): e(f"ds_read_b64_tr_b16 {vr(SIDE_D+4*F+2*t,2)}, v{144+F%4} offset:{4096*(F//4)+1024*t}")
        e(f"s_branch {nm}_r2")
        k.label(f"{nm}_r1")
        for nf in range(5):
            for t in range(2): e(f"ds_read_b64_tr_b16 {vr(SIDE_D+4*nf+2*t,2)}, v{144+t if nf < 4 else 146+t} offset:{64*(nf//2)+8*(nf%2) if nf < 4 else 0}")
        k.label(f"{nm}_r2")
    def side_done():
        e("s_waitcnt lgkmcnt(0)"); e(f"v_mov_b32 v{PV_+3}, {LW-8}"); e(f"v_mov_b32 v{PV_}, 1"); e("s_mov_b64 exec, 1")
        e(f"ds_add_u32 v{PV_+3}, v{PV_}"); e("s_mov_b64 exec, -1")
    UA = (SIDE_U, 212)
    def side_sum(q):
        def g():
            if q == 0:
                for r in range(4): e(f"v_mov_b32 v{228+r}, 0x3f803f80")
            for u in range(2):
                for x in range(2): e(f"v_mfma_f32_32x32x16_bf16 {vr(UA[x],16)}, v[228:231], {vr(SIDE_D+16*u+8*q+4*x,4)}, {vr(UA[x],16) if u else 0}")
        return g
    def side_sum2(q):
        def g():
            e("v_cmp_gt_u32 vcc, 32, v1"); e(f"v_cndmask_b32 v{232+q}, v{UA[1]}, v{UA[0]}, vcc")
            e(f"buffer_store_dword v{232+q}, v143, s[12:15], s38 offen offset:{256*q} {SC}")
        return g
    def side_store(F):
        return lambda: e(f"buffer_store_dwordx4 {vr(SIDE_D+4*F,4)}, v22, s[12:15], s{53 if F < 4 else 54 if F == 4 else 58} offen offset:{1024*(F%4)} {SC}")
    def side_arrive():
        e(f"v_mov_b32 v{PV_+1}, 0"); e(f"v_mov_b32 v{PV_}, 1"); e("s_waitcnt vmcnt(0)"); e("s_mov_b64 exec, 1")
        e(f"buffer_atomic_add v{PV_}, v{PV_+1}, s[12:15], s55 offen {SC}"); e("s_mov_b64 exec, -1")
    def touch():
        e("buffer_load_dword v235, v234, s[12:15], s59 offen")
    def late():
        e("s_mov_b32 exec_lo, 0xffff7fff"); e("s_mov_b32 exec_hi, 0"); e(f"buffer_load_dword v135, v134, s[12:15], 0 offen {SC}"); e("s_mov_b64 exec, -1")
    def init_words(): lw_init(k); e(f"v_mov_b32 v{PV_+3}, {LW-8}"); e(f"ds_write_b32 v{PV_+3}, v{PV_}")
    side = "s_cmp_lg_u32 s4, 0"
    for t in range(32):
        if t in SYN: k.waitvm(f"i{SYN[t]}"); e("s_barrier")
        x0, x1 = [], []
        if rnd[0] < 20: x0 += [dma, dma]; x1 += [dma, dma]
        if t in (1, 4, 10): cond("s_cmp_ge_u32 s18, 4", prio1)()
        if t == 3: x0.append(lambda: e("s_setprio 0"))
        if t == 8: x1.append(lambda: e("s_setprio 0"))
        if t == 10:
            x0.append(cond("s_cmp_eq_u32 s18, 4", lambda: lw_init(k)))
            if os.environ.get("FOC") == "at": k.stamp(2)
        if t == SW + 1 and os.environ.get("FOC") == "at": k.stamp(0)
        if t == T_SI: x1.append(cond(side, side_issue))
        if t == T_SR: x1.append(cond(side, side_read))
        if t == T_SR + 1: x0.append(cond(side, lambda: e("s_waitcnt lgkmcnt(0)"))); x1.append(cond("s_cmp_eq_u32 s4, 1", side_sum(0)))
        if t == T_SR + 2: x0.append(cond("s_cmp_eq_u32 s4, 1", side_sum2(0))); x1.append(cond("s_cmp_eq_u32 s4, 1", side_sum(1)))
        if t == T_SR + 3: x0.append(cond("s_cmp_eq_u32 s4, 1", side_sum2(1)))
        if T_SR + 1 <= t < T_SR + 9: x1.append(cond(side, side_store(t - T_SR - 1)))
        if ENV('TCH', '7') and t == ENV('TCH', '7'): x0.append(lambda: k.waitvm("i19") if ENV('TW', '1') else None); x0.append(cond("s_cmp_lg_u32 s44, 0", touch))
        if t == T_SA: x0.append(cond(side, side_arrive))
        if T_PF <= t < T_PF + ENV('NPF', '14') and ENV('PFW', '1'): x0.append(cond("s_cmp_lt_u32 s18, 4", pref))
        if t == T_LC: x1.append(cond("s_cmp_eq_u32 s18, 0", late))
        if t == SW: (x1 if ENV('SWX', '0') else x0).append(lambda: e("s_setprio 0"))
        unit(0, t, x0); unit(1, t, x1)
    pv(1, 1, 1); k.stamp(4)
    if os.environ.get("FOC") == "clk": k.rstamp(2)
    e("s_mov_b32 s30, 0")
    e(f"s_mov_b32 s32, {fbits(2.0**-60)}"); e(f"s_mov_b32 s33, {fbits(2.0**100)}"); e(f"s_mov_b32 s34, {fbits(2.0**126)}")
    k.label(f"{nm}_scrok")
    e("s_nop 7")
    for i in range(3): e(f"ds_write_b128 v132, {vr(O[1]+4*i,4)} offset:{1024*i}")
    e("s_waitcnt vmcnt(0)"); e("v_cmp_gt_u32 vcc, v131, v135"); e(f"s_cbranch_vccnz {nm}_late")
    k.label(f"{nm}_lok")
    e("s_waitcnt lgkmcnt(0)"); e("s_barrier")
    for i in (2, 0, 1): e(f"ds_read_b128 {vr(SS[0]+4*i,4)}, v133 offset:{1024*i}")
    OO = O[0]
    e("s_waitcnt lgkmcnt(2)")
    for r in range(8, 12): e(f"v_add_f32 v{OO+r}, v{OO+r}, v{SS[0]+r}")
    e("s_waitcnt lgkmcnt(0)")
    for r in range(8): e(f"v_add_f32 v{OO+r}, v{OO+r}, v{SS[0]+r}")
    k.label(f"{nm}_chk")
    e(f"v_mov_b32 v30, v{OO+8}"); e(f"v_mov_b32 v31, v{OO+8}")
    e(f"v_max3_f32 v28, abs(v{OO}), abs(v{OO+1}), abs(v{OO+2})")
    e("v_permlane32_swap_b32 v30, v31")
    e(f"v_max3_f32 v28, abs(v{OO+3}), abs(v{OO+4}), v28")
    e("v_rcp_f32 v30, v31")
    e(f"v_max3_f32 v28, abs(v{OO+5}), abs(v{OO+6}), v28")
    for r in range(12): e(f"v_mul_f32 v{SS[1]+r}, v{OO+r}, v30")
    for r in range(6): e(f"v_cvt_pk_bf16_f32 v{P+r}, v{SS[1]+2*r}, v{SS[1]+2*r+1}")
    e(f"buffer_store_dwordx4 {vr(P,4)}, v39, s[12:15], s51 offen {SC}")
    e("s_mov_b32 exec_hi, 0")
    e(f"buffer_store_dwordx2 {vr(P+4,2)}, v38, s[12:15], s52 offen {SC}")
    e("s_mov_b64 exec, -1")
    for i in range(EARLY//2):
        e(f"s_add_u32 m0, s25, {8192*i}"); e(f"s_add_u32 s27, s50, {8192*i}")
        e(f"buffer_load_dwordx4 v22, s[12:15], s27 offen {SC} lds")
    for r in range(7, 11, 2): e(f"v_max3_f32 v28, abs(v{OO+r}), abs(v{OO+r+1}), v28")
    e(f"v_max_f32 v28, abs(v{OO+11}), v28")
    e("v_cmp_le_f32 vcc, s32, v31"); e("v_cmp_ge_f32 s[36:37], s33, v31"); e("v_cmp_gt_f32 s[40:41], s34, v28")
    e("s_and_b64 s[36:37], s[36:37], vcc"); e("s_and_b64 s[36:37], s[36:37], s[40:41]")
    e("s_cmp_eq_u64 s[36:37], -1"); e(f"s_cbranch_scc0 {nm}_slow")
    def slowpath():
        k.label(f"{nm}_late")
        e("s_mov_b32 s49, 0")
        k.label(f"{nm}_late1")
        e("s_sleep 8"); late(); e("s_add_u32 s49, s49, 1"); e("s_waitcnt vmcnt(0)")
        e("v_cmp_gt_u32 vcc, v131, v135"); e("s_cmp_ge_u32 s49, 0x20000"); e(f"s_cbranch_scc1 {nm}_lok"); e(f"s_cbranch_vccnz {nm}_late1")
        e(f"s_branch {nm}_lok")
        k.label(f"{nm}_slow")
        e("s_cmp_eq_u32 s30, 0"); e(f"s_cbranch_scc0 {nm}_fin")
        e("s_mov_b32 s30, 1")
        e("s_waitcnt vmcnt(0)")
        NM = O[1]
        e("v_mov_b32 v32, 0xff800000")
        def slowqk(c):
            e(f"buffer_load_dwordx4 {vr(KF[0],4)}, v22, s[12:15], s27 offen {SC}")
            e(f"buffer_load_dwordx2 {vr(KF[0]+4,2)}, v23, s[12:15], s27 offen offset:1024 {SC}")
            e("s_waitcnt vmcnt(0)")
            e(f"v_mfma_f32_32x32x16_bf16 {vr(SS[0],16)}, {vr(KF[0],4)}, {vr(Q[0],4)}, {c}"); e("s_nop 10")
            e(f"v_mfma_f32_32x32x8_bf16 {vr(SS[0],16)}, {vr(KF[0]+4,2)}, {vr(Q[0]+4,2)}, {vr(SS[0],16)}"); e("s_nop 12")
        e(f"s_add_u32 s27, s19, {KVIMG}"); e("s_mov_b32 s31, 0")
        k.label(f"{nm}_mx")
        slowqk("0")
        for r in range(0, 16, 2): e(f"v_max3_f32 v32, v{SS[0]+r}, v{SS[0]+r+1}, v32")
        e("s_add_u32 s27, s27, 2560")
        e("s_add_u32 s31, s31, 1"); e("s_cmp_lt_u32 s31, 64"); e(f"s_cbranch_scc1 {nm}_mx")
        k.allred32("v_max_f32", 32, 33)
        e("v_xor_b32 v32, 0x80000000, v32")
        for r in range(16): e(f"v_mov_b32 v{NM+r}, v32")
        for r in range(16): e(f"v_mov_b32 v{OO+r}, 0")
        for r in range(8): e(f"v_mov_b32 v{VF[0]+r}, v20")
        e(f"s_add_u32 s27, s19, {KVIMG}"); e("s_mov_b32 s31, 0")
        k.label(f"{nm}_sl")
        e("s_mov_b64 exec, s[28:29]")
        e(f"buffer_load_dwordx4 {vr(VF[0],4)}, v21, s[12:15], s27 offen {SC}")
        e(f"buffer_load_dwordx4 {vr(VF[0]+4,4)}, v21, s[12:15], s27 offen offset:640 {SC}")
        e("s_mov_b64 exec, -1")
        slowqk(vr(NM,16))
        for i in range(16): e(f"v_exp_f32 v{SS[0]+i}, v{SS[0]+i}")
        e("s_nop 0")
        for i in range(8): e(f"v_cvt_pk_bf16_f32 v{P+i}, v{SS[0]+2*i}, v{SS[0]+2*i+1}")
        e("s_nop 1")
        pv(0, 0, 0); pv(0, 0, 1)
        e("s_add_u32 s27, s27, 2560")
        e("s_add_u32 s31, s31, 1"); e("s_cmp_lt_u32 s31, 64"); e(f"s_cbranch_scc1 {nm}_sl")
        e("s_nop 12"); e(f"s_branch {nm}_chk")
    k.tail = slowpath
    k.label(f"{nm}_fin")
    k.stamp(5)
    e("v_lshlrev_b32 v3, 4, v1")
    k.vm = []; k.lg = []

def proj_c(k, tag, src, xin, xout, stout, last, cnt_code, word, st0):
    final = False
    e = k.e
    ACC, RESID, A, BF = 24, 44, 76, 156
    NA0 = ENV('PA0', '8')
    ids_rt(k)
    e("s_lshl_b32 s19, s16, 2"); e("s_add_u32 s19, s19, s39")
    e("s_mul_i32 s24, s19, 20480")
    e("s_lshr_b32 s33, s17, 1"); e("s_mul_i32 s33, s33, 5120"); e("s_add_u32 s33, s33, s24")
    e("s_and_b32 s34, s17, 1"); e("s_mul_i32 s35, s34, 3072"); e("s_add_u32 s35, s35, s33")
    e("s_lshl_b32 s36, s34, 9"); e("s_add_u32 s36, s36, s33"); e("s_add_u32 s36, s36, 2048")
    e(f"s_add_u32 s37, s35, {xin}"); e(f"s_add_u32 s38, s36, {xin}")
    e("v_lshrrev_b32 v13, 5, v1"); e("v_lshlrev_b32 v13, 8, v13"); e("v_and_b32 v14, 15, v1"); e("v_lshl_add_u32 v13, v14, 4, v13")
    e("v_bfe_u32 v14, v1, 4, 1"); e("v_lshl_add_u32 v13, v14, 3, v13")
    k.vmop(f"buffer_load_dwordx4 {vr(RESID,4)}, v3, {RS_(xin)}, s37 offen {SC}", "r")
    k.vmop(f"buffer_load_dwordx4 {vr(RESID+4,4)}, v3, {RS_(xin)}, s37 offen offset:1024 {SC}", "r")
    k.vmop(f"buffer_load_dwordx2 {vr(RESID+8,2)}, v13, {RS_(xin)}, s38 offen {SC}", "r")
    e(f"s_add_u32 s24, s24, {src}")
    for i in range(1, 5): e(f"s_add_u32 s{24+i}, s24, {4096*i}")
    e("v_lshrrev_b32 v9, 4, v1"); e("v_add_u32 v12, 61440, v3")
    wait_go(k, tag, word, cnt_code)
    k.stamp(st0)
    def ldA(n): k.vmop(f"buffer_load_dwordx4 {vr(A+4*n,4)}, v3, s[12:15], s{24+n//4} offen offset:{(n%4)*1024} {SC}", f"a{n}")
    for n in range(NA0): ldA(n)
    k.waitvm("r")
    for i in range(10):
        e(f"v_lshlrev_b32 v{ACC+2*i}, 16, v{RESID+i}"); e(f"v_and_b32 v{ACC+2*i+1}, 0xffff0000, v{RESID+i}")
    def rd(n, nf):
        off = n*5120 + nf*1024; b = 3
        if n >= 12: off -= 61440; b = 12
        k.dsop(f"ds_read_b128 {vr(BF+20*(n%2)+4*nf,4)}, v{b} offset:{off}", f"b{n}_{nf}")
    e("s_barrier")
    for n in range(2):
        for nf in range(5): rd(n, nf)
    for n in range(20):
        if n < 2 or n % 2 == 0: k.waitvm(f"a{min(n + (n >= 2), 19)}")
        if n == 0: k.stamp(st0+1)
        for nf in range(5):
            if ENV('PW1', '1'):
                if nf == 0: k.waitlg(f"b{n}_4")
            elif nf in (0, 2, 4): k.waitlg(f"b{n}_{min(nf+1,4)}")
            if n == 12 and nf == 0 and not final: e("s_barrier")
            e(f"v_mfma_f32_16x16x32_bf16 {vr(ACC+4*nf,4)}, {vr(BF+20*(n%2)+4*nf,4)}, {vr(A+4*n,4)}, {vr(ACC+4*nf,4)}")
            if n + 2 < 20: rd(n+2, nf)
            if nf == 0 and n + NA0 < 20: ldA(n + NA0)
    e("s_barrier")
    if last:
        e("s_cmp_eq_u32 s3, 0"); e(f"s_cbranch_scc1 {k.name}_nf")
        e("v_and_b32 v16, 15, v1"); e("v_mul_u32_u24 v16, 1280, v16"); e("v_lshl_add_u32 v17, v9, 3, v16"); e("v_lshl_add_u32 v16, v9, 4, v16")
        e("s_mul_i32 s32, s19, 20480"); e("s_mul_i32 s31, s17, 160"); e("s_add_u32 s32, s32, s31")
        e("s_lshl_b32 s31, s34, 5"); e("s_add_u32 s33, s32, s31"); e("s_xor_b32 s31, s34, 1"); e("s_lshl_b32 s31, s31, 7"); e("s_add_u32 s32, s32, s31")
        FSC = os.environ.get("FSC", "")
        for i in range(10): e(f"v_cvt_pk_bf16_f32 v{RESID+i}, v{ACC+2*i}, v{ACC+2*i+1}")
        e(f"buffer_store_dwordx4 {vr(RESID,4)}, v16, s[60:63], s33 offen {FSC}")
        e(f"buffer_store_dwordx4 {vr(RESID+4,4)}, v16, s[60:63], s33 offen offset:64 {FSC}")
        e(f"buffer_store_dwordx2 {vr(RESID+8,2)}, v17, s[60:63], s32 offen {FSC}")
        k.stamp(st0+2)
        if STAMP: e("s_waitcnt vmcnt(0)")
        k.dump(15, "2")
        e("s_endpgm")
        k.label(f"{k.name}_nf")
    if True:
        e(f"s_add_u32 s37, s35, {xout}"); e(f"s_add_u32 s38, s36, {xout}")
        e("s_lshl_b32 s32, s19, 10"); e("s_lshl_b32 s33, s17, 7"); e("s_add_u32 s32, s32, s33"); e(f"s_add_u32 s32, s32, {stout}")
        e("v_lshlrev_b32 v16, 3, v1")
        for i in range(10): e(f"v_cvt_pk_bf16_f32 v{RESID+i}, v{ACC+2*i}, v{ACC+2*i+1}")
        e(f"buffer_store_dwordx4 {vr(RESID,4)}, v3, {RS_(xout)}, s37 offen {SC}")
        e(f"buffer_store_dwordx4 {vr(RESID+4,4)}, v3, {RS_(xout)}, s37 offen offset:1024 {SC}")
        e(f"buffer_store_dwordx2 {vr(RESID+8,2)}, v13, {RS_(xout)}, s38 offen {SC}")
        e(f"v_add_f32 v18, v{ACC}, v{ACC+1}"); e(f"v_mul_f32 v19, v{ACC}, v{ACC}"); e(f"v_add_f32 v20, v{ACC+2}, v{ACC+3}"); e(f"v_mul_f32 v21, v{ACC+1}, v{ACC+1}")
        e(f"v_fmac_f32 v19, v{ACC+2}, v{ACC+2}"); e(f"v_fmac_f32 v21, v{ACC+3}, v{ACC+3}")
        for i in range(4, 20, 2):
            e(f"v_add_f32 v18, v18, v{ACC+i}"); e(f"v_fmac_f32 v19, v{ACC+i}, v{ACC+i}")
            e(f"v_add_f32 v20, v20, v{ACC+i+1}"); e(f"v_fmac_f32 v21, v{ACC+i+1}, v{ACC+i+1}")
        e("v_add_f32 v18, v18, v20"); e("v_add_f32 v19, v19, v21")
        for sw in ("v_permlane16_swap_b32", "v_permlane32_swap_b32"):
            e("v_mov_b32 v20, v18"); e("v_mov_b32 v21, v19"); e("s_nop 0")
            e(f"{sw} v18, v20"); e(f"{sw} v19, v21"); e("s_nop 0")
            e("v_add_f32 v18, v18, v20"); e("v_add_f32 v19, v19, v21")
        e("s_mov_b64 exec, 0xffff")
        e(f"buffer_store_dwordx2 v[18:19], v16, {RS_(xout)}, s32 offen {SC}")
    k.stamp(st0+2)

def proj_l(k, wimg, nxt, src, sig=None, done=0, last=False):
    e = k.e
    if nxt is not None:
        ids_mt(k)
        e("s_min_u32 s17, s17, 14" if nxt == WA_I else "s_nop 0")
        e("s_mul_i32 s58, s17, 163840"); e("s_add_u32 s58, s58, s45"); e(f"s_add_u32 s58, s58, {nxt}")
    ids_rt(k)
    e("s_mul_i32 s50, s17, 102400"); e("s_add_u32 s50, s50, s45"); e(f"s_add_u32 s50, s50, {wimg}")
    e("s_mul_i32 s51, s16, 81920"); e("s_lshl_b32 s52, s17, 2"); e("s_add_u32 s52, s52, s39"); e("s_mul_i32 s52, s52, 2560"); e("s_add_u32 s51, s51, s52"); e(f"s_add_u32 s51, s51, {src}")
    e("v_min_u32 v21, 39, v1"); e("v_lshlrev_b32 v21, 6, v21")
    w = Wdma(k, 25, 50, "o"); k.vm = []
    T1, T2 = ENV('T1', '0'), ENV('T2', '3')
    if sig:
        def a8():
            e(f"v_mov_b32 v{PV_+3}, {LW}"); e("s_mov_b32 s49, 0")
            k.label(f"{k.name}_a8")
            e(f"ds_read_b32 v{PV_}, v{PV_+3}"); e("s_add_u32 s49, s49, 1"); e("s_waitcnt lgkmcnt(0)"); e(f"v_readfirstlane_b32 s44, v{PV_}")
            e("s_cmp_ge_u32 s49, 0x400000"); e("s_cselect_b32 s44, 8, s44"); e("s_cmp_lt_u32 s44, 8"); e(f"s_cbranch_scc1 {k.name}_a8")
        signal(k, "s1l", 0, 8, sig)
        if ENV('A8E', '0'): a8()
        ub_prep(k, 0)
    if last: w.rng(0, 6); e("s_barrier"); done = 6
    w.rng(done, 25, T1 if sig else ENV('T4', '5'))
    w2 = Wdma(k, 40, 58)
    if last:
        e("s_cmp_eq_u32 s3, 0"); e(f"s_cbranch_scc1 {k.name}_nl")
        e("s_waitcnt vmcnt(0)"); e("s_barrier"); e("buffer_load_dword v20, v21, s[12:15], s51 offen"); e("s_endpgm")
        k.label(f"{k.name}_nl")
    if sig:
        w2.rng(25, 33, T1)
        if not ENV('A8E', '0'): a8()
    if nxt is not None: w2.rng(33 if sig else 32, 39, T1 if sig else ENV('T4', '5'))
    if sig: ub_prep(k, 1)
    if last and ENV('WPF', '0'):
        e("v_lshlrev_b32 v22, 7, v1"); e("s_and_b32 s32, s21, 1"); e("s_lshl_b32 s32, s32, 2"); e("s_add_u32 s32, s32, s39"); e("s_lshl_b32 s32, s32, 14")
        e("s_sub_u32 s33, s58, s45"); e("s_add_u32 s33, s33, s32")
        for i in range(2):
            k.vmop(f"buffer_load_dword v23, v22, s[12:15], s33 offen {SC}"); e("s_add_u32 s33, s33, 8192")
            if ENV('WPF', '0') == 2: e("s_waitcnt vmcnt(0)"); k.vm = []
    k.waitvm("o24")
    e("s_barrier")
    if ENV('ATOUCH', '0'):
        k.vmop("buffer_load_dword v20, v21, s[12:15], s51 offen")
    if nxt is not None:
        if not sig: w2.rng(25, 32)
        e("s_barrier")
        w2.rng(0, 15, ENV('T3', '0'))
        e("s_barrier")
        k.waitvm("w14")
        if ENV('LSL', '0'): e(f"s_sleep {ENV('LSL', '0')}")
        w2.rng(15, 25, T2)
    return w2

def stats16(k, s, rstd, mop, mask):
    e = k.e
    e(f"v_add_f32 v{s}, v{s}, v{s+2}"); e(f"v_add_f32 v{s+1}, v{s+1}, v{s+3}")
    k.allred16("v_add_f32", s, s+2); k.allred16("v_add_f32", s+1, s+3)
    k.allred32("v_add_f32", s, s+2); k.allred32("v_add_f32", s+1, s+3)
    stats_finish(k, s, s+1, s+2, rstd, s+3)
    split3(k, s+2, mop, 17, 'm', mask)
def usum(k, u, dst, t=17):
    e = k.e
    e(f"v_add_f32 v{u}, v{u}, v{u+1}"); e(f"v_add_f32 v{u+2}, v{u+2}, v{u+3}"); e(f"v_add_f32 v{u}, v{u}, v{u+2}")
    split3(k, u, dst, t, 'u')
def scale_pack(k, a, sc, dst):
    for r in range(4): k.e(f"v_mul_f32 v{a+r}, v{a+r}, v{sc(r)}")
    for r in range(2): k.e(f"v_cvt_pk_bf16_f32 v{dst+r}, v{a+2*r}, v{a+2*r+1}")
EX = 102400
SOFF = 2*8192 + 7296
UOFF = lambda F: (F//4)*8192 + 7168 + (F%4)*256 + 128
TOKF = (0, 1, 2, 3, 6); FEAF = (4, 5, 7)

UO = 3456
def ub_prep(k, part):
    e = k.e
    if part:
        k.waitvm("up")
        for j_ in range(5): e(f"v_add_f32 v{64+j_}, v{64+j_}, v{69+j_}")
        e("v_add_f32 v64, v64, v65"); e("v_add_f32 v66, v66, v67"); e("v_add_f32 v64, v64, v68"); e("v_add_f32 v64, v64, v66")
        k.allred32("v_add_f32", 64, 65); split3(k, 64, 28, 17, 'u')
        return
    e("v_lshrrev_b32 v6, 5, v1"); e("v_and_b32 v5, 31, v1"); e("s_lshr_b32 s30, s21, 1")
    e("v_mul_u32_u24 v12, 5120, v6"); e("v_lshl_add_u32 v12, v5, 2, v12")
    e("s_mul_i32 s30, s30, 10240"); e("s_lshl_b32 s31, s39, 7"); e("s_add_u32 s30, s30, s31"); e(f"s_add_u32 s30, s30, {U_B}"); e("s_add_u32 s31, s30, 2560")
    for j_ in range(10): k.vmop(f"buffer_load_dword v{64+j_}, v12, s[12:15], s{30+j_//5} offen offset:{512*(j_%5)}", "up")
    e("v_bfe_u32 v6, v1, 4, 1"); e("v_lshlrev_b32 v46, 9, v6"); e("v_and_b32 v5, 15, v1"); e("v_lshl_add_u32 v46, v5, 3, v46")
    e("s_lshl_b32 s30, s39, 12"); e("v_add_u32 v46, s30, v46")

def atouch_pre(k, xin):
    e = k.e
    e("s_mul_i32 s51, s16, 163840"); e("s_lshl_b32 s52, s17, 2"); e("s_add_u32 s52, s52, s39"); e("s_mul_i32 s52, s52, 2560"); e("s_add_u32 s51, s51, s52"); e(f"s_add_u32 s51, s51, {xin}")
    e("v_min_u32 v21, 39, v1"); e("v_lshlrev_b32 v21, 6, v21")

G_ACC, G_BF, G_AR, G_DA = 64, 128, 160, 5
def gemm32_pre(k, xin, stin):
    e = k.e
    e("v_and_b32 v10, 31, v1"); e("v_lshrrev_b32 v4, 5, v1"); e("v_and_b32 v5, 15, v1")
    e("s_lshl_b32 s19, s16, 2"); e("s_add_u32 s19, s19, s18")
    e("v_bfe_u32 v7, v1, 4, 1"); e("v_mul_u32_u24 v8, 20480, v7"); e("v_lshl_add_u32 v8, v4, 8, v8"); e("v_lshl_add_u32 v8, v5, 4, v8")
    e("v_lshlrev_b32 v11, 10, v7"); e("v_lshl_add_u32 v11, v4, 9, v11"); e("v_lshl_add_u32 v11, v5, 3, v11")
    e("s_lshl_b32 s30, s19, 11"); e(f"s_add_u32 s30, s30, {stin}")
    e("s_mul_i32 s24, s19, 40960"); e(f"s_add_u32 s24, s24, {xin}")
    e("v_add_u32 v41, 65536, v3"); e("v_add_u32 v42, 131072, v3")
    e("v_subrev_u32 v58, 1, v4"); e("v_not_b32 v59, v58")
def gemm32_loads(k, R):
    e = k.e
    def ldA(ks):
        if ks % 4 == 0 and ks > 0: e("s_add_u32 s24, s24, 4096")
        for u in range(2):
            k.vmop(f"buffer_load_dwordx4 {vr(G_AR+8*(ks%G_DA)+4*u,4)}, v8, {R}, s24 offen offset:{(ks%4)*1024+512*u} {SC}", f"a{ks}")
    ldA(0)
    for q in range(4): k.vmop(f"buffer_load_dwordx2 {vr(16+2*q,2)}, v11, {R}, s30 offen offset:{128*q} {SC}", "st")
    for ks in range(1, G_DA-1): ldA(ks)
    return ldA
def gemm32_stats(k):
    e = k.e
    k.waitvm("st")
    e("v_add_f32 v16, v16, v18"); e("v_add_f32 v17, v17, v19"); e("v_add_f32 v20, v20, v22"); e("v_add_f32 v21, v21, v23")
    e("v_add_f32 v16, v16, v20"); e("v_add_f32 v17, v17, v21")
    k.allred32("v_add_f32", 16, 18); k.allred32("v_add_f32", 17, 18)
    stats_finish(k, 16, 17, 46, 47, 18)
    split3(k, 46, 48, 18, 'm', 58)
TN = 4
def gemm32(k, vmode, fl, ldA, bars, st0, late=None):
    e = k.e; ACC, BF, AR, DA = G_ACC, G_BF, G_AR, G_DA
    acc = lambda jf: vr(ACC+16*jf, 16)
    ops = [(ks, f//4, f%4) for ks in range(20-TN) for f in range(8)] + [(ks, u, jf) for jf in range(4) for ks in range(20-TN, 20) for u in range(2)]
    def rd(i):
        ks, u, jf = ops[i]; off = ks*8192 + 1024*(4*u+jf); hi = off >> 16
        k.dsop(f"ds_read_b128 {vr(BF+4*(i%8),4)}, v{(3,41,42)[hi]} offset:{off & 0xffff}", f"b{i}")
    def mm(i):
        ks, u, jf = ops[i]
        if i % 2 == 0: k.waitlg(f"b{i+1}")
        a = vr(AR+8*(ks%DA)+4*u, 4); b = vr(BF+4*(i%8), 4); c = acc(jf) if (ks or u) else "0"
        if vmode: e(f"v_mfma_f32_32x32x16_bf16 {acc(jf)}, {a}, {b}, {c}")
        else:     e(f"v_mfma_f32_32x32x16_bf16 {acc(jf)}, {b}, {a}, {c}")
        if i + 8 < 160: rd(i + 8)
    e("s_barrier")
    for i in range(8): rd(i)
    for ks in range(20-TN):
        k.waitvm(f"a{ks}")
        if ks == 0: k.stamp(st0+1)
        if ks in bars: e("s_barrier")
        if late and ks == late[0]: k.fill(fl, 1000); fl += late[1]
        for f in range(8):
            mm(8*ks + f)
            if f == 0 and ks + DA - 1 < 20: ldA(ks + DA - 1)
            if ks >= 1: k.fill(fl, 2)
    k.fill(fl, 1000)
    for jf in range(4):
        if vmode: e(f"v_mfma_f32_32x32x8_bf16 {acc(jf)}, v[48:49], {vr(50+2*jf,2)}, {acc(jf)}")
        else:     e(f"v_mfma_f32_32x32x8_bf16 {acc(jf)}, {vr(50+2*jf,2)}, v[48:49], {acc(jf)}")
    def tail(epi, tbars=(), end=None):
        pend = []
        for jf in range(4):
            if jf in tbars: e("s_barrier")
            for n in range(2*TN):
                i = 8*(20-TN) + 2*TN*jf + n
                if n % 2 == 0: k.waitvm(f"a{ops[i][0]}")
                mm(i)
                if n >= 2: k.fill(pend, ENV('TFILL', '4'))
            k.fill(pend, 1000)
            if jf == 3:
                k.stamp(st0+2)
                if end: end()
            pend = k.capture(lambda: epi(jf))
        k.fill(pend, 1000)
    return tail

TB, TS = 88448, 296
def toff(G): return (0, 64, 128, 168, 208, 248)[G//5] + 8*(G%5)

def qkvb_c(k, xin, stin, st0):
    e = k.e; nm = k.name
    ACC, BF = G_ACC, G_BF
    ids_mt(k); gemm32_pre(k, xin, stin)
    e("v_lshrrev_b32 v6, 4, v1")
    MC, MP, MP1 = 200, 204, 208
    NEG = fbits(-1e30)
    e("v_lshlrev_b32 v17, 2, v6"); e("v_sub_u32 v17, v5, v17"); e(f"v_mov_b32 v19, {NEG}")
    for r in range(4):
        e(f"v_subrev_u32 v18, {r}, v17"); e("v_and_b32 v16, 0x80000001, v18")
        e("v_cmp_eq_u32 vcc, 0, v16"); e(f"v_cndmask_b32 v{MC+r}, v19, 0, vcc")
        e("v_cmp_eq_u32 vcc, 0x80000000, v16"); e(f"v_cndmask_b32 v{MP+r}, v19, 0, vcc")
    e("s_cmp_eq_u32 s19, 0"); e(f"s_cselect_b32 s34, {NEG}, 0")
    for r in range(4): e(f"v_add_f32 v{MP1+r}, s34, v{MP+r}")
    e(f"s_mul_i32 s35, s18, {32*TS}"); e(f"s_add_u32 s35, s35, {TB}")
    e(f"v_mul_u32_u24 v16, {TS}, v10"); e("v_add_u32 v16, s35, v16"); e(f"v_add_u32 v16, {16*TS}, v16")
    e("v_lshl_add_u32 v212, v4, 3, v16"); e("v_lshl_add_u32 v213, v4, 5, v16"); e("v_mov_b32 v219, v16")
    e("v_lshl_add_u32 v215, v4, 6, v16")
    e(f"v_mul_u32_u24 v16, {TS}, v5"); e("v_add_u32 v16, s35, v16"); e("v_lshl_add_u32 v216, v6, 4, v16")
    e("v_lshrrev_b32 v17, 2, v1"); e(f"v_mul_u32_u24 v16, {TS}, v17"); e("v_add_u32 v16, s35, v16"); e("v_and_b32 v17, 3, v1")
    e("v_lshl_add_u32 v217, v17, 3, v16")
    e("v_mul_u32_u24 v18, 40, v17"); e("v_add_u32 v18, 240, v18"); e("v_cmp_gt_u32 vcc, 2, v17"); e("v_mov_b32 v19, 288"); e("v_cndmask_b32 v18, v19, v18, vcc"); e("v_add_u32 v218, v16, v18")
    e("v_lshlrev_b32 v43, 9, v7"); e("v_lshl_add_u32 v43, v5, 3, v43")
    e("v_mov_b32 v220, 0"); e("v_mov_b32 v221, 0"); e("v_mov_b32 v222, 0x3f803f80"); e("v_mov_b32 v223, 0x3f803f80")
    e("s_mul_i32 s25, s19, 40960"); e(f"s_add_u32 s25, s25, {OBT}")
    e("s_lshl_b32 s51, s17, 10"); e("s_add_u32 s51, s51, s25"); e("s_add_u32 s52, s51, 20480")
    e("s_lshr_b32 s53, s17, 2"); e("s_add_u32 s53, s53, 16"); e("s_lshl_b32 s53, s53, 10"); e("s_add_u32 s53, s53, s25")
    e("s_and_b32 s54, s17, 1"); e("s_lshl_b32 s54, s54, 9"); e("s_add_u32 s53, s53, s54")
    e("s_bfe_u32 s54, s17, 0x10001"); e("s_lshl_b32 s54, s54, 3"); e("s_add_u32 s53, s53, s54"); e("s_add_u32 s54, s53, 20480")
    def c2():
        e("s_lshl_b32 s48, s16, 9"); e(f"s_add_u32 s48, s48, {C2}")
        e(f"v_lshlrev_b32 v{PV_+1}, 8, v1"); e(f"v_lshlrev_b32 v{PV_+2}, 3, v1"); e(f"v_sub_u32 v{PV_+2}, 16, v{PV_+2}")
        e("s_cmp_eq_u32 s16, 0"); e("s_cselect_b64 s[56:57], 1, 3")
    e("s_cmp_eq_u32 s18, 1"); e(f"s_cbranch_scc0 {nm}_ad"); e("v_lshlrev_b32 v16, 8, v1"); e("s_mov_b32 s49, 0")
    k.label(f"{nm}_ap")
    e(f"buffer_load_dword v17, v16, s[8:11], 0 offen offset:{C1} {SC}"); e("s_add_u32 s49, s49, 1"); e("s_waitcnt vmcnt(0)")
    e("v_cmp_gt_u32 vcc, 16, v17"); e("s_cmp_ge_u32 s49, 0x20000"); e(f"s_cbranch_scc1 {nm}_ad"); e(f"s_cbranch_vccnz {nm}_ap")
    k.label(f"{nm}_ad")
    wait_go(k, "p3", 1, c2)
    k.stamp(st0)
    ldA = gemm32_loads(k, RS_(xin))
    fl = k.capture(lambda: (gemm32_stats(k), e(f"v_mul_f32 v45, {fbits(CSCALE)}, v47")))
    def uops():
        for jf in range(4): k.dsop(f"ds_read_b64 {vr(50+2*jf,2)}, v43 offset:{UO+4096*jf}", "uo")
    tail = gemm32(k, False, fl, ldA, {6}, st0, (8, k.capture(uops)))
    def tab(jf):
        if jf == 0:
            for q in range(3): k.dsop(f"ds_write_b64 v215, v[220:221] offset:{40+8*q}")
            k.dsop("ds_write_b64 v219, v[222:223] offset:288")
        for G in range(8*jf, min(8*jf+8, 30), 2):
            a = ACC + 2*G
            for r in range(4): e(f"v_mul_f32 v{a+r}, v{a+r}, v{45 if G < 10 else 47}")
            for r in range(2): e(f"v_cvt_pk_bf16_f32 v{a+r}, v{a+2*r}, v{a+2*r+1}")
            k.dsop(f"ds_write_b64 v{ {8: 212, 32: 213}[toff(G+1) - toff(G)] }, {vr(a,2)} offset:{toff(G)}")
    def words():
        e("s_cmp_eq_u32 s18, 0"); e(f"s_cbranch_scc0 {nm}_ni"); lw_init(k); k.label(f"{nm}_ni")
    tail(tab, (0, 2), words)
    e("s_waitcnt lgkmcnt(0)"); e("s_barrier")
    KO = lambda b, h: 160 + 8*b + 4*h
    QO = lambda b, h: 184 + 8*(b-1) + 4*h
    VO = lambda F, b: 20 + 8*FEAF.index(F) + 2*b if False else 224 + 6*FEAF.index(F) + 2*b - (0)
    VO = lambda F, b: (128, 136, 144)[FEAF.index(F)] + 2*b
    for b in (1, 2):
        for h in range(2):
            for x in range(2): e(f"ds_read_b64 {vr(QO(b,h)+2*x,2)}, v216 offset:{16*b*TS+64*h+8*x}")
    for b in range(3):
        for h in range(2):
            for x in range(2): e(f"ds_read_b64 {vr(KO(b,h)+2*x,2)}, v216 offset:{16*b*TS+128+40*h+8*x}")
    e("s_waitcnt lgkmcnt(0)")
    for b in range(3):
        for h in range(2): e(f"ds_read_b64_tr_b16 {vr(VO(4+h,b),2)}, v217 offset:{16*b*TS+208+40*h}")
        e(f"ds_read_b64_tr_b16 {vr(VO(7,b),2)}, v218 offset:{16*b*TS}")
    units = [(b, h) for b in (1, 2) for h in range(2)]
    SU = lambda i: 64 + 8*i
    TU = lambda i: ACC + 32 + 4*i
    PU = lambda i: ACC + 48 + 4*i
    OU = lambda i: 64 + 8*i
    for i, (b, h) in enumerate(units):
        e(f"v_mfma_f32_16x16x32_bf16 {vr(SU(i),4)}, {vr(KO(b-1,h),4)}, {vr(QO(b,h),4)}, {vr(MP1 if b == 1 else MP,4)}")
        e(f"v_mfma_f32_16x16x32_bf16 {vr(SU(i)+4,4)}, {vr(KO(b,h),4)}, {vr(QO(b,h),4)}, {vr(MC,4)}")
    e("s_waitcnt lgkmcnt(0)"); e("s_barrier")
    def allred(op):
        for sw in ("v_permlane16_swap_b32", "v_permlane32_swap_b32"):
            for i in range(4): e(f"v_mov_b32 v{TU(i)+1}, v{TU(i)}")
            for i in range(4): e(f"{sw} v{TU(i)}, v{TU(i)+1}")
            for i in range(4): e(f"{op} v{TU(i)}, v{TU(i)}, v{TU(i)+1}")
    for i in range(4):
        s = SU(i)
        e(f"v_max3_f32 v{TU(i)}, v{s}, v{s+1}, v{s+2}"); e(f"v_max3_f32 v{TU(i)}, v{s+3}, v{s+4}, v{TU(i)}")
        e(f"v_max3_f32 v{TU(i)}, v{s+5}, v{s+6}, v{TU(i)}"); e(f"v_max_f32 v{TU(i)}, v{s+7}, v{TU(i)}")
    allred("v_max_f32")
    for i in range(4):
        for r in range(8): e(f"v_sub_f32 v{SU(i)+r}, v{SU(i)+r}, v{TU(i)}")
    for i in range(4):
        for r in range(8): e(f"v_exp_f32 v{SU(i)+r}, v{SU(i)+r}")
    for i in range(4):
        for r in range(4): e(f"v_cvt_pk_bf16_f32 v{PU(i)+r}, v{SU(i)+2*r}, v{SU(i)+2*r+1}")
    for i, (b, h) in enumerate(units):
        e(f"v_mfma_f32_16x16x32_bf16 {vr(OU(i)+4,4)}, {vr(VO(7,b-1),4)}, {vr(PU(i),4)}, 0")
    for i, (b, h) in enumerate(units):
        e(f"v_mfma_f32_16x16x32_bf16 {vr(OU(i),4)}, {vr(VO(4+h,b-1),4)}, {vr(PU(i),4)}, 0")
    for i in range(4): e(f"v_mov_b32 v{TU(i)}, v{OU(i)+4}"); e(f"v_mov_b32 v{TU(i)+1}, v{OU(i)+4}")
    for i in range(4): e(f"v_permlane32_swap_b32 v{TU(i)}, v{TU(i)+1}")
    for i in range(4): e(f"v_rcp_f32 v{TU(i)+1}, v{TU(i)+1}")
    e("v_cmp_eq_u32 vcc, 0, v6")
    for bi in range(2):
        o0, o1 = OU(2*bi), OU(2*bi+1); d = 40 + 8*bi; t0, t1 = TU(2*bi)+1, TU(2*bi+1)+1
        for r in range(4): e(f"v_mul_f32 v{o0+r}, v{o0+r}, v{t0}"); e(f"v_mul_f32 v{o1+r}, v{o1+r}, v{t1}")
        e(f"v_cvt_pk_bf16_f32 v{d}, v{o0}, v{o0+1}"); e(f"v_cvt_pk_bf16_f32 v{d+1}, v{o0+2}, v{o0+3}")
        e(f"v_cvt_pk_bf16_f32 v{d+2}, v{o1}, v{o1+1}"); e(f"v_cvt_pk_bf16_f32 v{d+3}, v{o1+2}, v{o1+3}")
        e(f"buffer_store_dwordx4 {vr(d,4)}, v3, s[12:15], s{51+bi} offen {SC}")
        e(f"v_cndmask_b32 v{t0}, v{t1}, v{t0}, vcc")
        for r in range(4): e(f"v_cndmask_b32 v{o0+4+r}, v{o1+4+r}, v{o0+4+r}, vcc")
        for r in range(4): e(f"v_mul_f32 v{o0+4+r}, v{o0+4+r}, v{t0}")
        e(f"v_cvt_pk_bf16_f32 v{d+4}, v{o0+4}, v{o0+5}"); e(f"v_cvt_pk_bf16_f32 v{d+5}, v{o0+6}, v{o0+7}")
    e("s_mov_b32 exec_hi, 0")
    for bi in range(2): e(f"buffer_store_dwordx2 {vr(44+8*bi,2)}, v3, s[12:15], s{53+bi} offen {SC}")

def qkvb_l(k, xin, stin, w):
    e = k.e; nm = k.name
    ids_mt(k)
    e("v_and_b32 v5, 15, v1"); e("v_lshrrev_b32 v6, 4, v1")
    e("v_lshlrev_b32 v11, 3, v5"); e("v_lshl_add_u32 v11, v6, 8, v11")
    e("v_cmp_eq_u32 vcc, 0, v6"); e("s_lshl_b32 s22, s16, 3"); e("s_max_u32 s22, s22, 1"); e("v_cndmask_b32 v4, 0, -1, vcc")
    e("s_sub_u32 s22, s22, 1")
    e("s_mul_i32 s24, s22, 20480"); e(f"s_add_u32 s24, s24, {xin}"); e("s_add_u32 s24, s24, s45")
    e("s_lshl_b32 s27, s22, 10"); e(f"s_add_u32 s27, s27, {stin}")
    HP = 49152
    e("v_lshrrev_b32 v12, 1, v6"); e("v_lshlrev_b32 v40, 12, v12"); e("v_and_b32 v12, 1, v6"); e("v_lshl_add_u32 v40, v12, 9, v40"); e("v_lshl_add_u32 v40, v5, 4, v40")
    e("s_lshl_b32 s32, s39, 13"); e("v_add_u32 v40, s32, v40"); e("v_add_u32 v41, 65536, v40"); e("v_add_u32 v42, 131072, v40")
    e("s_mul_i32 s33, s39, 6144"); e(f"s_add_u32 s33, s33, {HP}"); e("v_add_u32 v43, s33, v3")
    e("s_min_u32 s40, s39, 2"); e("s_lshl_b32 s41, s40, 11"); e(f"s_add_u32 s41, s41, {HP}"); e("v_add_u32 v44, s41, v3")
    e("s_lshl_b32 s41, s40, 12"); e("v_lshlrev_b32 v45, 3, v5"); e("v_add_u32 v45, s41, v45")
    e(f"v_mul_u32_u24 v12, {TS}, v5"); e(f"v_add_u32 v12, {TB}, v12"); e("s_lshl_b32 s41, s40, 3"); e("s_sub_u32 s41, s41, 2")
    for x in range(2):
        e(f"v_add_u32 v13, s41, v6")
        if x: e("v_add_u32 v13, 4, v13")
        e("v_add_u32 v14, 16, v13")
        e("v_cmp_gt_u32 vcc, 20, v13"); e("v_cndmask_b32 v14, 0, v14, vcc"); e(f"v_lshl_add_u32 v{50+x}, v14, 3, v12")
    e("v_mov_b32 v47, v12"); e("v_mov_b32 v56, 0x3f803f80"); e("v_mov_b32 v57, 0x3f803f80")
    atouch_pre(k, xin)
    e(f"s_setprio {ENV('P3PRIO', '0')}")
    e("s_barrier")
    if ENV('ATOUCH', '0'): k.vmop("buffer_load_dword v20, v21, s[12:15], s51 offen")
    w.one(39)
    e(f"ds_write_b64 v46, v[28:29] offset:{UO}")
    for q_ in range(2): k.vmop(f"buffer_load_dwordx2 {vr(24+2*q_,2)}, v11, s[12:15], s27 offen offset:{128*q_} {SC}", "st")
    for i in range(5):
        k.vmop(f"buffer_load_dwordx4 {vr(128+4*i,4)}, v3, s[12:15], s24 offen {SC}", f"h{i}")
        if i < 4: e("s_add_u32 s24, s24, 4096")
    k.waitvm("st")
    stats16(k, 24, 48, 52, 4)
    e("s_waitcnt lgkmcnt(0)"); e("s_barrier")
    def rd(n):
        i, j = n // 6, 2 + n % 6
        k.dsop(f"ds_read_b128 {vr(96+4*(n%6),4)}, v{40+i//2} offset:{(i%2)*32768+1024*(j//2)+256*(j%2)}", f"r{n}")
    for n in range(6): rd(n)
    for x in range(2): k.dsop(f"ds_read_b64 {vr(20+2*x,2)}, v45 offset:{UO+4096+512*x}", "u")
    for n in range(30):
        i = n // 6
        if n % 6 == 0: k.waitvm(f"h{i}")
        k.waitlg(f"r{n}")
        c = vr(148+4*(n%6), 4)
        e(f"v_mfma_f32_16x16x32_bf16 {c}, {vr(96+4*(n%6),4)}, {vr(128+4*i,4)}, {c if i else 0}")
        if n + 6 < 30: rd(n + 6)
    e("s_barrier")
    for n in range(6): e(f"ds_write_b128 v43, {vr(148+4*n,4)} offset:{1024*n}")
    e("s_waitcnt lgkmcnt(0)"); e("s_barrier")
    for p_ in range(4):
        for x in range(2): e(f"ds_read_b128 {vr(96+8*p_+4*x,4)}, v44 offset:{6144*p_+1024*x}")
    e("s_waitcnt lgkmcnt(0)")
    for r in range(8):
        e(f"v_add_f32 v{96+r}, v{96+r}, v{104+r}"); e(f"v_add_f32 v{112+r}, v{112+r}, v{120+r}"); e(f"v_add_f32 v{80+r}, v{96+r}, v{112+r}")
    for x in range(2): e(f"v_mfma_f32_16x16x16_bf16 {vr(80+4*x,4)}, {vr(20+2*x,2)}, v[52:53], {vr(80+4*x,4)}")
    for x in range(2): scale_pack(k, 80+4*x, lambda r: 48, 88+2*x)
    for x in range(2): e(f"ds_write_b64 v{50+x}, {vr(88+2*x,2)}")
    e("ds_write_b64 v47, v[56:57] offset:288")
    e(f"s_setprio {ENV('LPRIO', '2')}")
    e("s_waitcnt lgkmcnt(0)"); e("s_barrier")
    k.vm = []; k.lg = []

def one(k, target):
    k.e(f"v_mov_b32 v{PV_+1}, 0"); k.e(f"v_mov_b32 v{PV_+2}, {target}"); k.e("s_mov_b64 s[56:57], 1")

def kvpos(k):
    k.e("s_and_b32 s36, s19, 31"); k.e("s_lshl_b32 s36, s36, 1"); k.e("s_lshr_b32 s34, s19, 5"); k.e("s_add_u32 s36, s36, s34")
    k.e("s_add_u32 s36, s36, 44"); k.e("s_and_b32 s36, s36, 63")
def addr_v(k, img):
    e = k.e
    e("s_sub_u32 s35, s17, 10"); e("s_lshl_b32 s35, s35, 7")
    kvpos(k); e("s_mul_i32 s36, s36, 2560"); e(f"s_add_u32 s33, s36, {img+KVIMG+1280}")
    e("v_mul_u32_u24 v20, 320, v4")
    for jf in range(4):
        e(f"v_add_u32 v16, s35, v10")
        if jf: e(f"v_add_u32 v16, {32*jf}, v16")
        e("v_mul_u32_u24 v17, 52429, v16"); e("v_lshrrev_b32 v17, 20, v17")
        e("v_mul_u32_u24 v18, 20, v17"); e("v_sub_u32 v18, v16, v18")
        e("v_mul_u32_u24 v17, 163840, v17"); e("v_lshl_add_u32 v17, v18, 4, v17")
        e(f"v_add_u32 v{24+jf}, v17, v20")
def addr_qk(k, img, xm=52):
    e = k.e; k.xm = xm
    e("s_cmp_ge_u32 s17, 5")
    e(f"s_cselect_b32 s33, {QI}, 0"); e(f"s_cselect_b32 s59, 1.0, {fbits(CSCALE)}"); e("s_cselect_b32 s35, 5, 0"); e("s_cselect_b32 s37, 1, 0")
    e(f"s_add_u32 s33, s33, {img+QIMG}")
    e("s_sub_u32 s35, s17, s35")
    kvpos(k); e("s_cmp_eq_u32 s37, 0"); e("s_cselect_b32 s36, s19, s36")
    e("s_mul_i32 s36, s36, 1280"); e("s_lshl_b32 s36, s36, s37"); e("s_add_u32 s33, s33, s36")
    e("s_lshl_b32 s34, 81920, s37")
    e("v_lshlrev_b32 v16, 4, v10"); e("v_lshlrev_b32 v17, 3, v10")
    e("v_lshl_add_u32 v18, v4, 9, v16")
    e("s_sub_u32 s36, s34, 512"); e("v_and_b32 v19, s36, v59"); e("v_add_u32 v19, v19, v16")
    e(f"s_mov_b32 s{xm}, -1"); e(f"s_mov_b32 s{xm+1}, 0"); e(f"s_mov_b32 s{xm+2}, 0"); e(f"s_mov_b32 s{xm+3}, -1")
def epi_qk1(k, v, jf):
    e = k.e; A = G_ACC + 16*jf
    QSC = os.environ.get("QSC", "sc1")
    for r in range(16): e(f"v_mul_f32 v{A+r}, v{A+r}, v47")
    for r in range(8): e(f"v_cvt_pk_bf16_f32 v{A+r}, v{A+2*r}, v{A+2*r+1}")
    for a2 in range(2):
        x = A + 4*a2
        e(f"v_permlane32_swap_b32 v{x}, v{x+2}"); e(f"v_permlane32_swap_b32 v{x+1}, v{x+3}")
    for a2 in range(2):
        x = A + 4*a2
        G = [32*v+8*jf+4*a2, 32*v+8*jf+4*a2+2]
        def main(g):
            h = g // 5; r = g % 5
            return h, (r // 2 if h % 2 == 0 else (r - 1) // 2)
        st = [g % 10 == 4 for g in G]
        def hoff(dst, h):
            if not h: return 33
            e(f"s_mul_i32 s{dst}, s34, {h}"); e(f"s_add_u32 s{dst}, s{dst}, s33"); return dst
        if not any(st):
            (h0, p0), (h1, p1) = main(G[0]), main(G[1])
            assert (h0 == h1 and (p0, p1) == (0, 1)) or (h1 == h0 + 1 and (p0, p1) == (1, 0))
            e(f"buffer_store_dwordx4 {vr(x,4)}, v{18 if h0 == h1 else 19}, {k.srdo}, s{hoff(36, h0)} offen offset:{512*p0} {QSC}")
        else:
            m = st.index(False); q = 1 - m
            h, p = main(G[m]); s0 = hoff(36, h); s1 = hoff(37, G[q] // 5); e(f"s_add_u32 s38, s{s1}, s34")
            e(f"s_mov_b64 exec, s[{k.xm+2*m}:{k.xm+1+2*m}]")
            e(f"buffer_store_dwordx4 {vr(x,4)}, v16, {k.srdo}, s{s0} offen offset:{512*p} {QSC}")
            e(f"s_mov_b64 exec, s[{k.xm+2*q}:{k.xm+1+2*q}]")
            e(f"buffer_store_dwordx2 {vr(x,2)}, v17, {k.srdo}, s{s1} offen offset:1024 {QSC}")
            e(f"buffer_store_dwordx2 {vr(x+2,2)}, v17, {k.srdo}, s38 offen offset:1024 {QSC}")
            e("s_mov_b64 exec, -1")
def epi_v1(k, jf, RS):
    e = k.e; A = G_ACC + 16*jf
    for r in range(16): e(f"v_mul_f32 v{A+r}, v{A+r}, v{RS+r}")
    for r in range(8): e(f"v_cvt_pk_bf16_f32 v{A+r}, v{A+2*r}, v{A+2*r+1}")
    for u in range(2): e(f"buffer_store_dwordx4 {vr(A+4*u,4)}, v{24+jf}, {k.srdo}, s33 offen offset:{640*u} {os.environ.get('VSC', 'sc1')}")
def dispatch5(k, body):
    e = k.e; nm = k.name + k.ptag
    for v in range(1, 5):
        e(f"s_cmp_eq_u32 s35, {v}"); e(f"s_cbranch_scc1 {nm}_e{v}")
    vm, lg = list(k.vm), list(k.lg)
    for v in range(5):
        if v: k.label(f"{nm}_e{v}")
        k.vm, k.lg = list(vm), list(lg)
        body(v); e(f"s_branch {nm}_fin5")
def epi_qk(k, ACC, BF):
    dispatch5(k, lambda v: (k.e("s_nop 7"), [epi_qk1(k, v, jf) for jf in range(4)]))
def epi_v(k, ACC, BF, RS):
    for jf in range(4): epi_v1(k, jf, RS)

def qkva_c(k, xin, stin, img, cnt, wbar, st0):
    k.ptag = '_p5'; k.srdo = 's[12:15]'
    e = k.e; nm = k.name + k.ptag
    DA = 5
    ACC, BF, AR, RS = 64, 128, 160, 200
    gemm32_pre(k, xin, stin)
    e("v_lshlrev_b32 v12, 4, v10")
    e("s_lshl_b32 s31, s17, 11"); e(f"s_add_u32 s31, s31, {U_A}")
    for jf in range(4): k.vmop(f"buffer_load_dwordx4 {vr(24+4*jf,4)}, v12, s[12:15], s31 offen offset:{512*jf}", "u")
    def c4(): one(k, 16); e("s_lshl_b32 s48, s16, 8"); e(f"s_add_u32 s48, s48, {cnt}")
    wait_go(k, "p5", 1, c4)
    k.stamp(st0)
    ldA = gemm32_loads(k, RS_(xin))
    def prolog(vmode):
        gemm32_stats(k)
        for jf in range(4): usum(k, 24+4*jf, 50+2*jf, 18)
        if vmode:
            e("v_lshlrev_b32 v16, 4, v4")
            for r in range(16):
                e(f"v_add_u32 v17, {(8*(r//4) + r%4)*4}, v16")
                k.dsop(f"ds_bpermute_b32 v{RS+r}, v17, v47", "rs")
            addr_v(k, img)
        else:
            addr_qk(k, img); e("v_mul_f32 v47, s59, v47")
    e("s_cmp_ge_u32 s17, 10"); e(f"s_cbranch_scc1 {nm}_qv")
    vm_save = list(k.vm)
    l5a = lambda: e("s_barrier")
    tail = gemm32(k, False, k.capture(lambda: prolog(False)), ldA, {w_ - 1 for w_ in wbar}, st0)
    dispatch5(k, lambda v: tail(lambda jf: epi_qk1(k, v, jf), (), l5a))
    k.label(f"{nm}_qv"); k.vm = vm_save; k.lg = []
    tail = gemm32(k, True, k.capture(lambda: prolog(True)), ldA, {w_ - 1 for w_ in wbar}, st0)
    tail(lambda jf: epi_v1(k, jf, RS), (), l5a)
    k.label(f"{nm}_fin5")

def ph_front(k):
    k.ptag = "_f"; k.srdo = "s[12:15]"
    e = k.e; nm = k.name + k.ptag; kn = k.name
    R, DEP, SCRB, UT = 4, 2, 131072, 65536
    need = lambda ks: ks // 2
    slot = lambda st: (st % R) * 32768
    e("s_cmp_ge_u32 s2, 256"); e(f"s_cbranch_scc1 {kn}_end"); k.stamp(0); k.rstamp(1)
    e("s_load_dwordx4 s[60:63], s[0:1], 0"); e("s_load_dwordx2 s[6:7], s[0:1], 64")
    e("s_load_dwordx2 s[4:5], s[0:1], 56")
    e("s_and_b32 s20, s2, 7"); e("s_lshr_b32 s21, s2, 3")
    e("v_lshrrev_b32 v2, 6, v0"); e("v_and_b32 v1, 63, v0")
    e("v_readfirstlane_b32 s18, v2")
    e("s_and_b32 s39, s18, 3"); e("s_lshl_b32 s45, s39, 10")
    ids_mt(k)
    e("v_lshlrev_b32 v3, 4, v1"); e(f"v_lshlrev_b32 v9, {ENV('BST', '6')}, v1")
    e("s_lshl_b32 s22, s2, 2"); e("s_add_u32 s22, s22, s39"); e("s_mul_i32 s23, s22, 2400")
    if ENV('XLOC', '1'): e("s_lshl_b32 s22, s20, 5"); e("s_add_u32 s22, s22, s21"); e("s_lshl_b32 s22, s22, 2"); e("s_add_u32 s22, s22, s39")
    e("s_mul_i32 s22, s22, 2560")
    def kwait():
        e("s_waitcnt lgkmcnt(0)")
        k.stamp(2)
        k.srd(8, 60, S*D*2); k.srd(28, 62, D*3*D*2); k.srd(12, 6, WS_END)
    def burst():
        if ENV('BURST', '1'):
            e("s_mov_b32 exec_hi, 0xff" if ENV('BST', '6') == 6 else "s_mov_b64 exec, 0xfffff")
            e(f"buffer_load_dword v240, v9, s[8:11], s22 offen {os.environ.get('XNT', '')}"); e(f"buffer_load_dword v241, v9, s[28:31], s23 offen {os.environ.get('WNT', '')}")
            e("s_mov_b64 exec, -1")
    def codepf(tg):
        if ENV('CPF', '1'):
            e("s_getpc_b64 s[34:35]"); k.label(f"{nm}_pc{tg}")
            e(f"s_sub_u32 s34, s34, {nm}_pc{tg} - {kn}"); e("s_subb_u32 s35, s35, 0")
            e("v_lshlrev_b32 v242, 4, v0"); e("s_lshl_b32 s36, s21, 12"); e("v_add_u32 v242, s36, v242")
            e(f"v_and_b32 v242, 0xffffffc0, v242"); e(f"v_min_u32 v242, code_end - {kn} - 4, v242")
            e("global_load_dword v243, v242, s[34:35]")
    e("s_cmp_ge_u32 s17, 15"); e(f"s_cbranch_scc1 {nm}_ub")
    e("v_and_b32 v10, 31, v1"); e("v_lshrrev_b32 v4, 5, v1"); e("v_and_b32 v5, 15, v1"); e("v_bfe_u32 v7, v1, 4, 1")
    e("v_lshrrev_b32 v13, 2, v5"); e("v_and_b32 v6, 3, v1")
    e("v_lshl_add_u32 v14, v4, 3, v13"); e("v_lshlrev_b32 v14, 8, v14"); e("v_lshl_add_u32 v14, v7, 5, v14"); e("v_lshl_add_u32 v14, v6, 3, v14")
    e("v_add_u32 v14, 16384, v14")
    def a0():
        e("s_lshl_b32 s48, s17, 11"); e(f"s_add_u32 s48, s48, {C0}"); e(f"v_lshlrev_b32 v{PV_+1}, 8, v1"); e("s_mov_b64 s[56:57], 0xff")
    SF = ENV('SF', '10')
    e("s_cmp_ge_u32 s18, 4"); e(f"s_cbranch_scc1 {nm}_ld")
    kwait(); burst(); codepf("c")
    if ENV('TLB', '1'):
        sh = ENV('TLBS', '18')
        e("s_load_dwordx4 s[84:87], s[0:1], 32"); e("s_load_dwordx2 s[88:89], s[0:1], 16")
        e(f"v_lshlrev_b32 v236, {sh}, v0" if sh < 21 else "v_lshlrev_b32 v236, 21, v1")
        e(f"v_min_u32 v236, {STAMPS-4}, v236")
        e("s_cmp_eq_u32 s18, 0" if sh == 21 else "s_cmp_lt_u32 s18, 4"); e(f"s_cbranch_scc0 {nm}_tl")
        e("buffer_load_dword v237, v236, s[12:15], 0 offen")
        e("v_and_b32 v236, 1, v1"); e("v_mul_u32_u24 v238, 819196, v236"); e("v_mul_u32_u24 v236, 2457596, v236"); e("s_mov_b64 exec, 3")
        e("s_waitcnt lgkmcnt(0)")
        e("global_load_dword v237, v236, s[84:85]"); e("global_load_dword v237, v238, s[86:87]"); e("global_load_dword v237, v238, s[88:89]")
        e("s_mov_b64 exec, -1")
        k.label(f"{nm}_tl")
        e("s_waitcnt lgkmcnt(0)")
    ACC, BF, AR, RS = 64, 128, 160, 200
    BA, AA = 216, 224
    e("s_lshl_b32 s19, s16, 2"); e("s_add_u32 s19, s19, s18")
    for jf in range(4):
        e(f"v_xor_b32 v15, {jf}, v13"); e(f"v_lshl_add_u32 v{BA+jf}, v15, 6, v14"); e(f"v_add_u32 v{BA+4+jf}, 65536, v{BA+jf}")
    e("v_lshl_add_u32 v15, v2, 5, v10"); e("v_lshlrev_b32 v15, 7, v15"); e("v_bfe_u32 v12, v10, 1, 3"); e("v_xor_b32 v12, v12, v4")
    for q in range(4):
        e(f"v_xor_b32 v11, {2*q}, v12"); e(f"v_lshl_add_u32 v{AA+q}, v11, 4, v15"); e(f"v_add_u32 v{AA+4+q}, 65536, v{AA+q}")
    e("v_mul_u32_u24 v8, 20480, v7"); e("v_lshl_add_u32 v8, v4, 8, v8"); e("v_lshl_add_u32 v8, v5, 4, v8")
    e("s_mul_i32 s24, s19, 40960"); e(f"s_add_u32 s24, s24, {XI}")
    e("v_subrev_u32 v58, 1, v4"); e("v_not_b32 v59, v58")
    e("s_lshl_b32 s40, s2, 2"); e("s_add_u32 s40, s40, s39"); e("s_mul_i32 s40, s40, 8192"); e(f"s_add_u32 s40, s40, {QIMG}"); e("v_lshlrev_b32 v238, 7, v1")
    e("s_cmp_ge_u32 s17, 10"); e(f"s_cbranch_scc1 {nm}_qv")
    FTN = ENV('FTN', '2'); K1 = 20 - FTN
    def mainloop(vmode):
        tagm = "v" if vmode else "q"
        acc = lambda jf: vr(ACC+16*jf, 16)
        fl = k.capture(lambda: addr_v(k, 0) if vmode else addr_qk(k, 0, 28))
        ops = [(ks, f//4, f%4) for ks in range(K1) for f in range(8)] + [(ks, u, jf) for jf in range(4) for ks in range(K1, 20) for u in range(2)]
        kb = [-1]; na = [0]
        def rdA(ks):
            sl = slot(ks//2)
            for u in range(2): k.dsop(f"ds_read_b128 {vr(AR+8*(ks%4)+4*u,4)}, v{AA+4*(sl>>16)+2*(ks%2)+u} offset:{sl & 0xffff}", f"a{ks}")
        def rd(i):
            ks, u, jf = ops[i]; sl = slot(ks//2)
            while kb[0] < need(ks): e("s_barrier"); kb[0] += 1
            while na[0] <= ks: rdA(na[0]); na[0] += 1
            for t in range(2):
                off = sl + (32*(ks%2) + 16*u + 4*t)*256
                k.dsop(f"ds_read_b64_tr_b16 {vr(BF+4*(i%8)+2*t,2)}, v{BA+4*(sl>>16)+jf} offset:{off & 0xffff}", f"b{i}")
        def mm(i):
            ks, u, jf = ops[i]
            if i % 2 == 0: k.waitlg(f"b{i+1}")
            a = vr(AR+8*(ks%4)+4*u, 4); b = vr(BF+4*(i%8), 4); c = acc(jf) if (ks or u) else "0"
            if vmode: e(f"v_mfma_f32_32x32x16_bf16 {acc(jf)}, {a}, {b}, {c}")
            else:     e(f"v_mfma_f32_32x32x16_bf16 {acc(jf)}, {b}, {a}, {c}")
            if i + 8 < 160: rd(i + 8)
        def xst(ks, tg):
            e(f"s_cmp_eq_u32 s17, {ks % 15}"); e(f"s_cbranch_scc0 {nm}_x{tg}{ks}")
            e(f"s_add_u32 s32, s24, {1024*ks}")
            for u in range(2): e(f"buffer_store_dwordx4 {vr(AR+8*(ks%4)+4*u,4)}, v8, s[12:15], s32 offen offset:{512*u} {SC}")
            k.label(f"{nm}_x{tg}{ks}")
        for i in range(8):
            rd(i)
            if i == 0: k.stamp(3)
        for ks in range(K1):
            for f in range(8):
                mm(8*ks + f)
                if ks >= 4: k.fill(fl, 1)
            xst(ks, tagm)
            if ks in (0, 1, 4, 9, 10, 14): k.stamp(7 + (0, 1, 4, 9, 10, 14).index(ks))
        assert not fl
        e(f"v_lshlrev_b32 v23, 2, v10"); e(f"v_add_u32 v23, {UT}, v23"); e("s_lshl_b32 s32, s18, 8"); e("v_add_u32 v22, s32, v23")
        if vmode: e("v_lshlrev_b32 v21, 4, v4"); e(f"s_add_u32 s32, s32, {UT}"); e("v_add_u32 v21, s32, v21")
        for n in range(2*FTN): mm(8*K1 + n)
        for ks in range(K1, 20): xst(ks, tagm)
        assert kb[0] == 9
        k.stamp(4)
        e("s_barrier")
        k.dsop("ds_read_b32 v48, v22 offset:1024", "u"); k.dsop("ds_read_b32 v49, v22 offset:1152", "u")
        for jf in range(4): k.dsop(f"ds_read_b32 v{28+2*jf}, v23 offset:{256*jf}", "u"); k.dsop(f"ds_read_b32 v{29+2*jf}, v23 offset:{256*jf+128}", "u")
        if vmode:
            for a_ in range(4): k.dsop(f"ds_read_b128 {vr(RS+4*a_,4)}, v21 offset:{2048+32*a_}", "u")
        else: k.dsop("ds_read_b32 v47, v22 offset:2048", "u")
        def corr(jf):
            if vmode: e(f"v_mfma_f32_32x32x8_bf16 {acc(jf)}, v[48:49], {vr(28+2*jf,2)}, {acc(jf)}")
            else:     e(f"v_mfma_f32_32x32x8_bf16 {acc(jf)}, {vr(28+2*jf,2)}, v[48:49], {acc(jf)}")
        for n in range(2): mm(8*K1 + 2*FTN + n)
        k.waitlg("u")
        e("v_and_b32 v48, v48, v58"); e("v_and_b32 v49, v49, v58")
        if not vmode: e("v_mul_f32 v47, s59, v47")
        corr(0)
        k.stamp(5)
        def tail(epi):
            pend = k.capture(lambda: epi(0))
            for jf in range(1, 4):
                for n in range(2 if jf == 1 else 0, 2*FTN):
                    mm(8*K1 + 2*FTN*jf + n)
                    if n >= (4 if jf == 1 else 2): k.fill(pend, ENV('TFILL', '4'))
                corr(jf)
                k.fill(pend, 1000)
                pend = k.capture(lambda: epi(jf))
            k.fill(pend, 1000)
        return tail
    tail = mainloop(False)
    dispatch5(k, lambda v: tail(lambda jf: epi_qk1(k, v, jf)))
    k.label(f"{nm}_qv"); k.lg = []
    tail = mainloop(True)
    tail(lambda jf: epi_v1(k, jf, RS))
    k.label(f"{nm}_fin5")
    k.stamp(6)
    e("s_barrier")
    signal(k, "sf", -1, 8, a0, 0, "s[12:15]")
    k.dump(13)
    e(f"s_branch {kn}_t0")
    k.label(f"{nm}_ld"); k.vm = []; k.lg = []
    e(f"s_setprio {ENV('LPRIO', '2')}")
    e("v_lshrrev_b32 v16, 4, v1"); e("v_and_b32 v17, 3, v2")
    e("v_lshl_add_u32 v18, v17, 2, v16"); e("v_mul_u32_u24 v20, 3840, v18")
    e("v_xor_b32 v18, v13, v16"); e("v_lshl_add_u32 v20, v18, 6, v20"); e("v_lshl_add_u32 v20, v6, 4, v20")
    e("v_lshrrev_b32 v18, 3, v1"); e("v_lshl_add_u32 v19, v17, 5, v18"); e("v_and_b32 v23, 7, v1")
    for i in range(4):
        e(f"v_add_u32 v42, {8*i}, v19"); e("v_bfe_u32 v43, v42, 1, 3"); e("v_xor_b32 v43, v43, v23")
        e("v_mul_u32_u24 v42, 1280, v42"); e(f"v_lshl_add_u32 v{48+i}, v43, 4, v42")
        if i: e(f"v_subrev_u32 v{48+i}, {1024*i}, v{48+i}")
    e("s_lshl_b32 s25, s17, 8"); e("s_mul_i32 s24, s16, 163840"); e("s_lshl_b32 s26, s39, 12")
    def ld1(st, n):
        if n < 4:
            e(f"s_add_u32 m0, s45, {slot(st)+16384+4096*n}"); e(f"s_add_u32 s32, s25, {(64*st+16*n)*3840}")
            k.vmop(f"buffer_load_dwordx4 v20, s[28:31], s32 offen {os.environ.get('WNT2', '')} lds", f"d{st}")
        else:
            e(f"s_add_u32 m0, s26, {slot(st)}"); e(f"s_add_u32 s33, s24, {128*st}")
            k.vmop(f"buffer_load_dwordx4 v{44+n}, s[8:11], s33 offen offset:{1024*(n-4)} {os.environ.get('XNT2', '')} lds", f"d{st}")
    ORD = [0, 4, 1, 5, 2, 6, 3, 7]
    def ld(st):
        for n in ORD: ld1(st, n)
    kwait(); ld(0)
    e("v_xor_b32 v15, v17, v13"); e("v_lshl_add_u32 v40, v15, 6, v14"); e("v_add_u32 v41, 65536, v40")
    e("v_and_b32 v42, 1, v16"); e("v_cmp_eq_u32 vcc, v42, v5"); e("v_mov_b32 v43, 0x3f803f80")
    for r in range(4): e(f"v_cndmask_b32 v{60+r}, 0, v43, vcc")
    k.srd(52, 4, 256)
    e("s_mul_i32 s27, s17, 163840"); e("s_add_u32 s27, s27, s45"); e(f"s_add_u32 s27, s27, {WA_I}")
    if ENV('LD1', '0'): ld(1)
    done = [0]
    def steps_of(kb):
        r = []
        while done[0] < 20 and need(done[0]) <= kb: r.append(done[0]); done[0] += 1
        return r
    def wa_store(q):
        e("s_lshl_b32 s32, s16, 13"); e("s_add_u32 s32, s32, s27")
        if q: e("s_add_u32 s32, s32, 131072")
        e("s_add_u32 s33, s32, 4096")
        for u in range(2): k.vmop(f"buffer_store_dwordx4 {vr(112+8*q+4*u,4)}, v3, s[12:15], s{32+u} offen {SC}")
    for kb in range(10):
        if kb == 5: k.stamp(5)
        k.waitvm(f"d{kb}")
        if kb == 5: k.stamp(6)
        e("s_barrier")
        if kb in (4, 5): k.stamp(2 if kb == 4 else 7)
        if kb == 0 and not ENV('LD1', '0'): ld(1)
        sl = slot(kb); todo = list(ORD) if kb + DEP < 10 else []
        nxt = lambda: ld1(kb + DEP, todo.pop(0)) if todo else None
        sts = steps_of(kb)
        for n_, ks in enumerate(sts):
            for u in range(2):
                for t in range(2):
                    e(f"ds_read_b64_tr_b16 {vr(136+8*n_+4*u+2*t,2)}, v{40+(sl>>16)} offset:{(sl + (32*(ks%2) + 16*u + 4*t)*256) & 0xffff}")
        nxt(); nxt()
        if kb == 4: k.stamp(3)
        e("s_waitcnt lgkmcnt(0)")
        mf = [(n_, ks, u) for n_, ks in enumerate(sts) for u in range(2)]
        for n_, ks, u in mf:
            e(f"v_mfma_f32_16x16x32_bf16 v[64:67], v[60:63], {vr(136+8*n_+4*u,4)}, {'v[64:67]' if ks or u else 0}")
            nxt()
        nxt(); nxt()
        if kb == 4: k.stamp(4)
        for n_, ks in enumerate(sts):
            e(f"s_cmp_eq_u32 s16, {ks % 16}"); e(f"s_cbranch_scc0 {nm}_w{ks}")
            for r in range(8): e(f"v_mov_b32 v{112+8*(ks//16)+r}, v{136+8*n_+r}")
            k.label(f"{nm}_w{ks}")
        assert not todo
        if kb == 8:
            e("v_and_b32 v24, 15, v1"); e("v_lshlrev_b32 v24, 2, v24"); e("s_mov_b32 s33, 0")
            k.label(f"{nm}_pl")
            e(f"buffer_load_dword v25, v24, s[52:55], 0 offen {SC}"); e("s_add_u32 s33, s33, 1"); e("s_waitcnt vmcnt(0)"); k.vm = []
            e("v_cmp_eq_u32 vcc, 0, v25"); e("s_cmp_ge_u32 s33, 0x20000"); e(f"s_cbranch_scc1 {nm}_px")
            e(f"s_cbranch_vccnz {nm}_pl")
            k.label(f"{nm}_px")
            e("v_lshlrev_b32 v24, 3, v10"); e("s_lshl_b32 s32, s16, 10"); e("s_lshl_b32 s33, s39, 8"); e("s_add_u32 s32, s32, s33"); e(f"s_add_u32 s32, s32, {STI}")
            k.vmop(f"buffer_load_dwordx2 v[44:45], v24, s[12:15], s32 offen {SC}", "rs")
        if kb == 9: k.waitvm("rs"); wa_store(0)
    k.waitvm("rs")
    stats_finish(k, 44, 45, 28, 29, 30)
    e("v_lshlrev_b32 v42, 2, v5"); e("ds_bpermute_b32 v68, v42, v64"); e("ds_bpermute_b32 v69, v42, v65"); e("v_cmp_eq_u32 vcc, 1, v7")
    split3(k, 28, 32, 36, 'm')
    e("s_waitcnt lgkmcnt(0)"); e("v_cndmask_b32 v64, v68, v69, vcc")
    split3(k, 64, 34, 36, 'u')
    e("v_lshlrev_b32 v24, 2, v10"); e("s_lshl_b32 s32, s39, 8"); e(f"s_add_u32 s32, s32, {UT}"); e("v_add_u32 v24, s32, v24")
    e("ds_write_b32 v24, v34"); e("ds_write_b32 v24, v35 offset:128"); e("ds_write_b32 v24, v32 offset:1024"); e("ds_write_b32 v24, v33 offset:1152"); e("ds_write_b32 v24, v29 offset:2048")
    e("s_waitcnt lgkmcnt(0)"); e("s_barrier")
    lwc_init(k); e("s_barrier")
    e("v_mov_b32 v44, v64")
    e("s_cmp_ge_u32 s16, 4"); e(f"s_cbranch_scc1 {nm}_le"); wa_store(1)
    e("s_cmp_eq_u32 s16, 0"); e(f"s_cbranch_scc0 {nm}_le")
    e("v_mov_b32 v45, 0"); e("v_mov_b32 v46, 0"); e("v_mov_b32 v47, 0"); e("v_lshlrev_b32 v24, 4, v10")
    e("s_lshl_b32 s32, s17, 11"); e("s_lshl_b32 s33, s39, 9"); e("s_add_u32 s32, s32, s33"); e(f"s_add_u32 s32, s32, {U_A}")
    e("s_mov_b32 exec_hi, 0"); e(f"buffer_store_dwordx4 v[44:47], v24, s[12:15], s32 offen {SC}")
    k.label(f"{nm}_le")
    e("s_mov_b64 exec, -1")
    signal(k, "sfl", -1, 8, a0, 0, "s[12:15]")
    k.dump(8)
    e(f"s_branch {kn}_t0")
    k.label(f"{nm}_ub"); k.vm = []; k.lg = []
    kwait()
    e("v_lshrrev_b32 v4, 3, v1"); e("v_lshl_add_u32 v4, v2, 4, v4"); e("v_mul_u32_u24 v5, 1280, v4"); e("v_and_b32 v6, 7, v1"); e("v_lshl_add_u32 v5, v6, 4, v5")
    e("s_mul_i32 s24, s16, 163840"); e("s_add_u32 s25, s24, 10240")
    for b_ in range(2):
        for i in range(10): k.vmop(f"buffer_load_dwordx4 {vr(24+40*b_+4*i,4)}, v5, s[8:11], s{24+b_} offen offset:{128*i} {os.environ.get('XNT2', '')}", f"x{b_}{i}")
    for j in range(8): e(f"v_mov_b32 v{8+j}, 0")
    e("v_mov_b32 v7, 0x3f803f80")
    e("v_lshlrev_b32 v16, 4, v0"); e("s_and_b32 s26, s16, 7"); e("s_lshl_b32 s26, s26, 13"); e(f"s_add_u32 s26, s26, {CNT}"); e("s_cmp_ge_u32 s16, 8"); e(f"s_cselect_b32 s27, {LS}, 0"); e("s_add_u32 s26, s26, s27")
    k.vmop(f"buffer_store_dwordx4 v[12:15], v16, s[12:15], s26 offen {SC}")
    for b_ in range(2):
        for i in range(10):
            k.waitvm(f"x{b_}{i}")
            for q in range(4):
                r = 24+40*b_+4*i+q
                e(f"v_dot2_f32_bf16 v{8+2*b_}, v{r}, v7, v{8+2*b_}"); e(f"v_dot2_f32_bf16 v{9+2*b_}, v{r}, v{r}, v{9+2*b_}")
    for dpp in ("quad_perm:[1,0,3,2]", "quad_perm:[2,3,0,1]", "row_half_mirror"):
        for q in range(4): e(f"v_add_f32_dpp v{8+q}, v{8+q}, v{8+q} {dpp} row_mask:0xf bank_mask:0xf")
    e("v_lshlrev_b32 v4, 3, v4"); e("s_lshl_b32 s26, s16, 10"); e(f"s_add_u32 s26, s26, {STI}")
    e("v_cmp_eq_u32 vcc, 0, v6"); k.srd(52, 4, 256); e("s_mov_b64 exec, vcc")
    e(f"buffer_store_dwordx2 v[8:9], v4, s[12:15], s26 offen {SC}"); e(f"buffer_store_dwordx2 v[10:11], v4, s[12:15], s26 offen offset:64 {SC}")
    e("s_mov_b64 exec, -1"); lwc_init(k)
    e("s_waitcnt vmcnt(0)"); e("s_barrier")
    e("s_cmp_ge_u32 s18, 4"); e(f"s_cbranch_scc1 {nm}_u2")
    codepf("u")
    e("s_cmp_eq_u32 s18, 0"); e(f"s_cbranch_scc0 {nm}_u2")
    e("v_mov_b32 v4, 0"); e("v_mov_b32 v5, 1"); e("s_lshl_b32 s26, s16, 2"); e("s_mov_b64 exec, 1")
    e(f"buffer_store_dword v5, v4, s[52:55], s26 offen {SC}")
    e("s_mov_b64 exec, 0xffff"); e("v_lshlrev_b32 v4, 2, v1"); e("s_mov_b32 s33, 0")
    k.label(f"{nm}_u1")
    e(f"buffer_load_dword v5, v4, s[52:55], 0 offen {SC}"); e("s_add_u32 s33, s33, 1"); e("s_waitcnt vmcnt(0)")
    e("v_cmp_eq_u32 vcc, 0, v5"); e("s_cmp_ge_u32 s33, 0x20000"); e(f"s_cbranch_scc1 {nm}_u2"); e(f"s_cbranch_vccnz {nm}_u1")
    k.label(f"{nm}_u2")
    e("s_mov_b64 exec, -1"); e("s_waitcnt vmcnt(0)")

def k_main():
    k = KB(NAME + "_kernel"); e = k.e; name = k.name
    ph_front(k)
    k.label(f"{name}_t0")
    e("s_load_dwordx2 s[46:47], s[0:1], 48"); e("s_mov_b32 s3, 0")
    k.srd(8, 6, 2*LS)
    e("s_waitcnt lgkmcnt(0)")
    k.srd(60, 46, S*D*2)
    k.label(f"{name}_top")
    k.vm = []; k.lg = []
    e("s_setprio 0"); k.stamp(0); k.rstamp(1)
    ph_attn(k)
    def a1():
        e("s_lshl_b32 s48, s17, 3"); e("s_and_b32 s49, s16, 1"); e("s_add_u32 s48, s48, s49"); e("s_lshl_b32 s48, s48, 8"); e(f"s_add_u32 s48, s48, {C1}")
        e(f"v_lshlrev_b32 v{PV_+1}, 9, v1"); e("s_mov_b64 s[56:57], 15")
    e("s_cmp_ge_u32 s18, 4"); e(f"s_cbranch_scc1 {name}_ld")
    signal(k, "s1", 0, 8, a1)
    def c1():
        e("s_lshl_b32 s48, s16, 9"); e(f"s_add_u32 s48, s48, {C1}")
        e(f"v_lshlrev_b32 v{PV_+1}, 8, v1"); e(f"v_mov_b32 v{PV_+2}, 16"); e("s_mov_b64 s[56:57], 3")
    proj_c(k, "p2", OT, XI, XM, STM, False, c1, 0, 6)
    def a2():
        e("s_lshr_b32 s48, s16, 1"); e("s_lshl_b32 s48, s48, 9"); e(f"s_add_u32 s48, s48, {C2}")
        e(f"v_mul_u32_u24 v{PV_+1}, 768, v1"); e("s_bitcmp1_b32 s16, 0"); e("s_cselect_b64 s[56:57], 3, 1")
    signal(k, "s2", 1, 4, a2)
    qkvb_c(k, XM, STM, 9)
    def a3(): one(k, 0); e("s_lshl_b32 s48, s16, 8"); e(f"s_add_u32 s48, s48, {C3}")
    signal(k, "s3", 0, 4, a3)
    def c3(): one(k, 16); e("s_lshr_b32 s48, s16, 1"); e("s_lshl_b32 s48, s48, 8"); e(f"s_add_u32 s48, s48, {C3}")
    proj_c(k, "p4", OBT, XM, XI, STI, True, c3, 0, 12)
    def a4(): one(k, 0); e("s_lshr_b32 s48, s16, 1"); e("s_lshl_b32 s48, s48, 8"); e(f"s_add_u32 s48, s48, {C4}")
    signal(k, "s4", 1, 4, a4)
    k.dump(15, "1")
    ids_mt(k)
    e("s_cmp_ge_u32 s17, 15"); e(f"s_cbranch_scc1 {name}_idle")
    qkva_c(k, XI, STI, 0, C4, [7], 3)
    k.stamp(6)
    e("s_barrier")
    def a5(): e("s_lshl_b32 s48, s17, 11"); e(f"s_add_u32 s48, s48, {LS + C0}"); e(f"v_lshlrev_b32 v{PV_+1}, 8, v1"); e("s_mov_b64 s[56:57], 0xff")
    signal(k, "s5", -1, 4, a5)
    k.dump(7, "3")
    k.label(f"{name}_t1")
    e("s_mov_b32 s3, 1"); e(f"s_add_u32 s8, s8, {LS}"); e("s_addc_u32 s9, s9, 0"); e(f"s_mov_b32 s10, {LS}")
    e(f"s_branch {name}_top")
    k.label(f"{name}_idle")
    for _ in range(4): e("s_barrier")
    e(f"s_branch {name}_t1")
    k.label(f"{name}_ld"); k.vm = []; k.lg = []
    if os.environ.get("FOC") == "at": e("s_add_u32 s84, s3, 4"); k.dump(8, "s84")
    e(f"s_setprio {ENV('LPRIO', '2')}")
    w = proj_l(k, WOA_I, WB_I, OT, a1, EARLY)
    qkvb_l(k, XM, STM, w)
    w = proj_l(k, WOB_I, WA_I, OBT, None, 0, True)
    ids_mt(k)
    atouch_pre(k, XI)
    e("s_barrier")
    w.one(39); e("s_waitcnt vmcnt(0)"); e("s_barrier")
    e("s_barrier"); lwc_init(k); e("s_barrier")
    e(f"s_branch {name}_t1")
    k.label(f"{name}_end"); e("s_endpgm")
    k.tail()
    return k.text(256 if STAMP else 244, 256 if STAMP else 244)

def build():
    hdr = open("cdna_kernels/" + NAME + ".s.ref").read().split("; Override launch")[0]
    out = hdr + "; @launch grid=(256,1,1) block=(512,1,1) lds=163840\n"
    out += '.amdgcn_target "amdgcn-amd-amdhsa--gfx950"\n'
    out += k_main()
    out += ".text\ncode_end:\n"
    return out

if __name__ == "__main__":
    dst = sys.argv[1] if len(sys.argv) > 1 else "cdna_kernels/" + NAME + ".s"
    open(dst, "w").write(build())
    print("wrote", dst)
```

```python
import sys, math
from lint import lint, fix

NAME = "interleave_layers__softmax_full_mha__sliding_local_dilated__prompt"
S, D, H, DH = 2048, 640, 32, 20
XS = S*D*2
IMG = H*64*2560
QI = H*64*1280
CNT = 0
C1 = CNT; C2 = C1 + 64*256; C3 = C2 + 34*256; C4 = C3 + 16*256; C0 = C4 + 16*256
LS = 65536
CS = LS + C4
XI = 2*LS; STI = XI + XS
QIMG = STI + S*64; KVIMG = QIMG + QI
OT = KVIMG + IMG; OBT = OT + XS; XM = OBT + XS
STM = XM + XS
U_A = STM + S*64
U_B = U_A + 32768
WA_I = U_B + 163840
WOA_I = WA_I + 15*163840
WB_I = WOA_I + 819200
WOB_I = WB_I + 16*163840
STAMPS = WOB_I + 819200
WS_END = STAMPS + 16*262144
import os
STAMP = int(os.environ.get("STAMP", "0"))
ATTN_WAVES = 8
AV = os.environ.get("AV", "")
CSCALE = (DH ** -0.5) * math.log2(math.e)
import struct
def fbits(x): return "0x%08x" % struct.unpack("<I", struct.pack("<f", x))[0]

FM = [(0,16),(32,48),(80,96),(112,128),(64,144)]
def FX(ks, t):
    return 160*(ks//5) + FM[ks%5][t]

class KB:
    def __init__(s, name):
        s.name = name; s.L = []; s.vm = []; s.lg = []; s.cap = None
    def e(s, line):
        if s.cap is not None: s.cap.append(('e', line, None))
        else: s.L.append("    " + line)
    def capture(s, fn):
        s.cap = []; fn(); c = s.cap; s.cap = None
        return [x for x in c if not (x[0] == 'e' and x[1].startswith('s_nop'))]
    def fill(s, lst, n=1):
        for _ in range(n):
            if not lst: return
            kind, a, b = lst.pop(0)
            if kind == 'e':
                s.e(a)
                if a.startswith('s_mov_b64 exec, s['):
                    while True:
                        x = lst.pop(0)[1]; s.e(x)
                        if x == 's_mov_b64 exec, -1': break
                if a.startswith('s_cmp'):
                    while lst and lst[0][0] == 'e' and lst[0][1].startswith('s_cselect'): s.e(lst.pop(0)[1])
            elif kind == 'ds': s.dsop(a, b)
            elif kind == 'wvm': s.waitvm(a)
            elif kind == 'wlg': s.waitlg(a)
    def c(s, txt): s.L.append("    ; " + txt)
    def label(s, l): s.L.append(l + ":")
    def vmop(s, line, tag=None): s.e(line); s.vm.append(tag); assert len(s.vm) <= 63, (s.name, len(s.vm))
    def dsop(s, line, tag=None):
        if s.cap is not None: s.cap.append(('ds', line, tag)); return
        s.e(line); s.lg.append(tag)
    def _n(s, lst, tag):
        idx = max(i for i, t in enumerate(lst) if t == tag)
        return idx
    def waitvm(s, tag):
        if s.cap is not None: s.cap.append(('wvm', tag, None)); return
        if tag not in s.vm: return
        i = s._n(s.vm, tag); n = len(s.vm) - 1 - i
        s.e(f"s_waitcnt vmcnt({n})"); s.vm = s.vm[i+1:]
    def waitlg(s, tag):
        if s.cap is not None: s.cap.append(('wlg', tag, None)); return
        if tag not in s.lg: return
        i = s._n(s.lg, tag); n = len(s.lg) - 1 - i
        if n > 15: n = 15; i = len(s.lg) - 1 - n
        s.e(f"s_waitcnt lgkmcnt({n})"); s.lg = s.lg[i+1:]
    def waitall(s):
        s.e("s_waitcnt vmcnt(0) lgkmcnt(0)"); s.vm = []; s.lg = []
    def srd(s, r, base, nbytes):
        s.e(f"s_mov_b32 s{r}, s{base}")
        s.e(f"s_and_b32 s{r+1}, s{base+1}, 0xffff")
        s.e(f"s_mov_b32 s{r+2}, {nbytes}")
        s.e(f"s_mov_b32 s{r+3}, 0x20000")
    def stamp(s, i):
        if not STAMP: return
        op = "s_memrealtime" if os.environ.get("RT") else "s_memtime"
        s.e(f"{op} s[{64+2*i}:{65+2*i}]" if i < 10 else f"{op} s[{72+2*i}:{73+2*i}]")
    def rstamp(s, i):
        if not STAMP: return
        s.e(f"s_memrealtime s[{64+2*i}:{65+2*i}]")
    def dump(s, n=8, slot="0", wave="s18"):
        if not STAMP: return
        e = s.e
        if os.environ.get("DBG"):
            keep = {"0": [(1, 246), (3, 247), (6, 248)], "1": [(2, 249), (5, 250), (14, 251)], "3": [(6, 252)], "2": [(2, 253), (5, 254), (14, 255)]}[slot]
            e("s_waitcnt lgkmcnt(0)")
            if n < 7 or (slot == "0" and n == 8): return
            for i, v in keep: e(f"v_mov_b32 v{v}, s{64+2*i if i < 10 else 72+2*i}")
            if slot == "2":
                e(f"s_cmp_eq_u32 s2, {os.environ['DBG']}"); e("s_cbranch_scc0 dbg_skip"); e("s_cmp_eq_u32 s18, 0"); e("s_cbranch_scc0 dbg_skip")
                e("s_load_dwordx2 s[84:85], s[0:1], 56"); e("s_memrealtime s[86:87]"); e("s_waitcnt lgkmcnt(0)")
                s.srd(88, 84, 256); e("s_mov_b64 exec, 1"); e("v_mov_b32 v0, 0"); e("v_mov_b32 v245, s86"); e("v_sub_u32 v245, v245, v246")
                for i in range(9):
                    e(f"v_sub_u32 v{247+i}, v{247+i}, v246"); e(f"buffer_store_dword v{247+i}, v0, s[88:91], 0 offen offset:{4*i}")
                e("buffer_store_dword v245, v0, s[88:91], 0 offen offset:36")
                s.label("dbg_skip")
            return
        e("s_memrealtime s[86:87]"); e("s_waitcnt lgkmcnt(0)")
        e("s_mov_b64 exec, 1")
        e(f"s_lshl_b32 s84, {slot}, 18")
        e("s_lshl_b32 s85, s2, 3"); e(f"s_add_u32 s85, s85, {wave}"); e("s_lshl_b32 s85, s85, 6"); e(f"s_add_u32 s85, s85, {STAMPS}"); e("s_add_u32 s85, s85, s84")
        e("v_mov_b32 v244, 0")
        for i in range(n):
            e(f"v_mov_b32 v245, s{64+2*i if i < 10 else 72+2*i}")
            e(f"buffer_store_dword v245, v244, s[12:15], s85 offen offset:{4*i}")
        e("v_mov_b32 v245, s86"); e("buffer_store_dword v245, v244, s[12:15], s85 offen offset:60")
        e("s_mov_b64 exec, -1")
    def text(s, vgpr, accum, sgpr=102):
        s.L, added = fix(s.L)
        if os.environ.get("V"): print(s.name, "auto nops:", added, "lines:", len(s.L))
        out = [".text", f".globl {s.name}", ".p2align 8", f".type {s.name},@function", f"{s.name}:"]
        out += s.L
        out += ['.section .rodata,"a"', ".p2align 6", f".amdhsa_kernel {s.name}",
                f"  .amdhsa_next_free_vgpr {vgpr}", f"  .amdhsa_next_free_sgpr {sgpr}", f"  .amdhsa_accum_offset {accum}",
                "  .amdhsa_group_segment_fixed_size 0", "  .amdhsa_kernarg_size 72", "  .amdhsa_user_sgpr_count 2",
                "  .amdhsa_user_sgpr_kernarg_segment_ptr 1", "  .amdhsa_system_sgpr_workgroup_id_x 1", ".end_amdhsa_kernel"]
        nb = lint(s.L, s.name)
        assert nb == 0, f"{nb} hazards in {s.name}"
        return "\n".join(out) + "\n"
    def allred32(s, op, v, t):
        s.e(f"v_mov_b32 v{t}, v{v}"); s.e("s_nop 1")
        s.e(f"v_permlane32_swap_b32 v{v}, v{t}"); s.e("s_nop 1")
        s.e(f"{op} v{v}, v{v}, v{t}")
    def allred16(s, op, v, t):
        s.e(f"v_mov_b32 v{t}, v{v}"); s.e("s_nop 1")
        s.e(f"v_permlane16_swap_b32 v{v}, v{t}"); s.e("s_nop 1")
        s.e(f"{op} v{v}, v{v}, v{t}")

def vr(a, n): return f"v[{a}:{a+n-1}]" if n > 1 else f"v{a}"
def ar(a, n): return f"a[{a}:{a+n-1}]" if n > 1 else f"a{a}"

def stats_finish(k, s1, s2, mean, rstd, t):
    e = k.e
    e(f"v_mul_f32 v{mean}, {fbits(1.0/D)}, v{s1}")
    e(f"v_mul_f32 v{t}, {fbits(1.0/D)}, v{s2}")
    e(f"v_fma_f32 v{t}, -v{mean}, v{mean}, v{t}")
    e(f"v_max_f32 v{t}, 0, v{t}")
    e(f"v_add_f32 v{t}, {fbits(1e-5)}, v{t}")
    e(f"v_rsq_f32 v{rstd}, v{t}")
    e("s_nop 0")

def split3(k, src, d, t, kind, maskv=None):
    e = k.e
    if kind == 'm':
        e(f"v_xor_b32 v{t+1}, 0x80000000, v{src}"); src = t+1
    e(f"v_and_b32 v{t}, 0xffff0000, v{src}")
    e(f"v_sub_f32 v{t+2}, v{src}, v{t}")
    if kind == 'u':
        e(f"v_cvt_pk_bf16_f32 v{d}, v{t}, v{t+2}")
        e(f"v_lshrrev_b32 v{d+1}, 16, v{t}")
    else:
        e(f"v_cvt_pk_bf16_f32 v{d}, v{t}, v{t}")
        e(f"v_cvt_pk_bf16_f32 v{d+1}, v{t+2}, 0")
    if maskv is not None:
        e(f"v_and_b32 v{d}, v{d}, v{maskv}"); e(f"v_and_b32 v{d+1}, v{d+1}, v{maskv}")

SC = "sc1"
RS_ = lambda off: "s[12:15]" if off >= 2*LS else "s[8:11]"
EARLY = int(os.environ.get('EARLY', '6'))
ENV = lambda n, d: int(os.environ.get(n, d))

def ids_mt(k):
    k.e("s_lshl_b32 s22, s20, 1"); k.e("s_and_b32 s23, s21, 1"); k.e("s_add_u32 s16, s22, s23"); k.e("s_lshr_b32 s17, s21, 1")
def ids_rt(k):
    k.e("s_lshl_b32 s22, s20, 2"); k.e("s_and_b32 s23, s21, 3"); k.e("s_add_u32 s16, s22, s23"); k.e("s_lshr_b32 s17, s21, 2")

LW = 163824
PV_ = 240
def lw_init(k):
    e = k.e
    e(f"v_mov_b32 v{PV_+3}, {LW}")
    for i in range(3): e(f"v_mov_b32 v{PV_+i}, 0")
    e(f"ds_write_b96 v{PV_+3}, v[{PV_}:{PV_+2}]"); e(f"ds_write_b32 v{PV_+3}, v{PV_} offset:12")

def lwc_init(k):
    k.e(f"v_mov_b32 v{PV_+3}, {LW-8}"); k.e(f"v_mov_b32 v{PV_}, 0"); k.e(f"v_mov_b32 v{PV_+1}, 0")
    k.e(f"ds_write_b64 v{PV_+3}, v[{PV_}:{PV_+1}]"); k.e("s_waitcnt lgkmcnt(0)")

def signal(k, tag, word, nw, addr_code, younger=0, srd="s[8:11]"):
    e = k.e
    addr_code()
    e(f"v_mov_b32 v{PV_+3}, {LW-8}"); e(f"v_mov_b32 v{PV_}, 1")
    e("s_mov_b64 exec, 1")
    assert younger == 0
    e("s_waitcnt vmcnt(0)"); k.vm = []
    if tag == os.environ.get("FOC"): k.stamp(2)
    e(f"ds_add_rtn_u32 v{PV_+2}, v{PV_+3}, v{PV_} offset:{8*word+8}")
    e("s_waitcnt lgkmcnt(0)"); k.lg = []
    e(f"v_readfirstlane_b32 s49, v{PV_+2}")
    e("s_mov_b64 exec, s[56:57]")
    e(f"s_cmp_eq_u32 s49, {nw-1}"); e(f"s_cbranch_scc0 {k.name}_{tag}_sg")
    e(f"buffer_atomic_add v{PV_}, v{PV_+1}, {srd}, s48 offen {SC}")
    if os.environ.get("FOC2") == tag: k.stamp(4)
    k.label(f"{k.name}_{tag}_sg")
    e("s_mov_b64 exec, -1")

def wait_go(k, tag, word, poll_code):
    e = k.e; nm = f"{k.name}_{tag}"
    e(f"v_mov_b32 v{PV_+3}, {LW-8}"); e("s_mov_b32 s49, 0")
    if poll_code:
        e("s_cmp_eq_u32 s18, 0"); e(f"s_cbranch_scc0 {nm}_sp")
        poll_code()
        e("s_mov_b64 exec, s[56:57]")
        if os.environ.get("FOC") == "g" + tag: k.stamp(2)
        k.label(f"{nm}_pl")
        e(f"v_mov_b32 v{PV_}, 0")
        e(f"buffer_atomic_add v{PV_}, v{PV_+1}, s[8:11], s48 offen sc0 sc1")
        e("s_add_u32 s49, s49, 1")
        e("s_waitcnt vmcnt(0)")
        e(f"v_cmp_ge_u32 vcc, v{PV_}, v{PV_+2}")
        e("s_cmp_ge_u32 s49, 0x20000"); e(f"s_cbranch_scc1 {nm}_px")
        e("s_cmp_eq_u64 vcc, exec"); e(f"s_cbranch_scc0 {nm}_pl")
        k.label(f"{nm}_px")
        if os.environ.get("FOC") == "g" + tag: e("s_add_u32 s70, s64, s49")
        e("s_mov_b64 exec, 1"); e(f"v_mov_b32 v{PV_}, 1")
        e(f"ds_write_b32 v{PV_+3}, v{PV_} offset:{8*word+12}")
        e(f"s_branch {nm}_go")
    k.label(f"{nm}_sp")
    e("s_sleep 1")
    e(f"ds_read_b32 v{PV_}, v{PV_+3} offset:{8*word+12}")
    e("s_add_u32 s49, s49, 1")
    e("s_waitcnt lgkmcnt(0)")
    e(f"v_readfirstlane_b32 s44, v{PV_}")
    e("s_cmp_ge_u32 s49, 0x400000"); e(f"s_cbranch_scc1 {nm}_go")
    e("s_cmp_eq_u32 s44, 0"); e(f"s_cbranch_scc1 {nm}_sp")
    k.label(f"{nm}_go")
    e("s_mov_b64 exec, -1")

class Wdma:
    def __init__(s, k, n, base=50, tag="w"): s.k = k; s.n = n; s.i = 0; s.base = base; s.tag = tag
    def one(s, i):
        s.k.e(f"s_add_u32 m0, s45, {4096*i}"); s.k.e(f"s_add_u32 s32, s{s.base}, {4096*i}")
        s.k.vmop(f"buffer_load_dwordx4 v3, s[12:15], s32 offen {SC} lds", f"{s.tag}{i}")
    def go(s, upto):
        while s.i < min(upto, s.n): s.one(s.i); s.i += 1
    def rng(s, a, b, thr=0):
        for i in range(a, b):
            s.one(i)
            if thr and len(s.k.vm) >= thr: s.k.e(f"s_waitcnt vmcnt({thr-1})"); s.k.vm = s.k.vm[len(s.k.vm)-thr+1:]

SIDE_SV = 152; SIDE_D = 160; SIDE_U = 192
def side_setup(k):
    e = k.e; nm = k.name
    e("s_load_dwordx4 s[84:87], s[0:1], 32"); e("s_load_dwordx2 s[88:89], s[0:1], 16")
    e("s_mul_i32 s49, s2, 3"); e("s_add_u32 s49, s49, s18"); e("s_sub_u32 s49, s49, 4")
    e("s_sub_u32 s32, s18, 4"); e("s_cmp_lt_u32 s32, 3"); e("s_cselect_b32 s49, s49, 959"); e("s_cmp_eq_u32 s3, 0"); e("s_cselect_b32 s49, s49, 959")
    e("s_lshl_b32 s35, s39, 13"); e("s_add_u32 s35, s35, 112640")
    e("s_mul_i32 s36, s49, 3277"); e("s_lshr_b32 s36, s36, 16"); e("s_mul_i32 s37, s36, 20"); e("s_sub_u32 s37, s49, s37")
    e("v_and_b32 v140, 15, v1"); e("v_lshrrev_b32 v141, 2, v140"); e("v_and_b32 v142, 3, v1")
    e("s_waitcnt lgkmcnt(0)")
    SV = SIDE_SV
    e("v_lshrrev_b32 v136, 4, v1")
    for r in list(range(SV, SV+5)) + list(range(144, 152)): e(f"v_mov_b32 v{r}, 0")
    e("s_mov_b32 s5, 0")
    e("s_mov_b32 s53, 0x7ff00000"); e("s_mov_b32 s54, s53"); e("s_mov_b32 s58, s53")
    e("s_cmp_ge_u32 s49, 320"); e(f"s_cbranch_scc1 {nm}_ss1")
    k.srd(88, 84, D*3*D*2)
    e(f"s_mul_i32 s5, s37, {32*3840}"); e("s_mul_i32 s32, s36, 80"); e("s_add_u32 s5, s5, s32")
    e("v_lshlrev_b32 v137, 2, v136"); e("v_xor_b32 v137, v137, v140"); e("v_min_u32 v137, 14, v137")
    e("v_mul_u32_u24 v138, 52, v137"); e("v_lshrrev_b32 v138, 8, v138"); e("v_mul_u32_u24 v138, 1200, v138"); e("v_lshl_add_u32 v138, v137, 4, v138")
    e("v_mul_u32_u24 v137, 3840, v136"); e(f"v_add_u32 v{SV}, v138, v137")
    e("v_lshrrev_b32 v137, 5, v1"); e("v_lshl_add_u32 v137, v137, 3, v141"); e("v_lshlrev_b32 v137, 8, v137"); e("v_and_b32 v138, 1, v136")
    e("v_lshl_add_u32 v137, v138, 5, v137"); e("v_lshl_add_u32 v137, v142, 3, v137"); e("v_add_u32 v137, s35, v137")
    for jf in range(4): e(f"v_xor_b32 v139, {jf}, v141"); e(f"v_lshl_add_u32 v{144+jf}, v139, 6, v137")
    e("s_mul_i32 s53, s36, 163840"); e("s_lshl_b32 s54, s37, 13"); e("s_add_u32 s53, s53, s54"); e(f"s_add_u32 s53, s53, {WB_I}"); e("s_add_u32 s54, s53, 4096"); e("s_mov_b32 s58, s54")
    e(f"s_branch {nm}_ss2")
    k.label(f"{nm}_ss1")
    e("s_cmp_ge_u32 s36, 24"); e("s_cselect_b32 s32, s86, s88"); e("s_cselect_b32 s33, s87, s89")
    k.srd(88, 32, D*D*2)
    e("s_cmp_ge_u32 s49, 640"); e(f"s_cbranch_scc1 {nm}_ss2")
    e("s_and_b32 s32, s36, 7"); e("s_mul_i32 s32, s32, 160")
    e("s_mul_i32 s5, s37, 40"); e("s_sub_u32 s34, s37, 16"); e("s_mul_i32 s34, s34, 160"); e("s_add_u32 s34, s34, 16")
    e("s_cmp_lt_u32 s37, 16"); e("s_cselect_b32 s5, s5, s34"); e("s_cselect_b32 s33, 4, 2"); e("s_cselect_b32 s34, 4, 16")
    e("s_mul_i32 s5, s5, 1280"); e("s_add_u32 s5, s5, s32")
    for i in range(5):
        e(f"v_add_u32 v137, {64*i}, v1"); e("v_mul_u32_u24 v138, 6554, v137"); e("v_lshrrev_b32 v138, 16, v138")
        e("v_lshrrev_b32 v139, s33, v138"); e("v_mul_u32_u24 v139, s34, v139"); e("v_mul_u32_u24 v139, 1280, v139")
        e("v_mul_u32_u24 v138, 1120, v138"); e("v_add_u32 v139, v139, v138"); e(f"v_lshl_add_u32 v{SV+i}, v137, 4, v139")
    e("v_lshlrev_b32 v137, 2, v136"); e("s_mov_b32 s32, 2560")
    e("s_cmp_ge_u32 s36, 24"); e(f"s_cbranch_scc1 {nm}_sf3"); e("s_cmp_ge_u32 s37, 16"); e(f"s_cbranch_scc1 {nm}_sf3")
    e("v_lshrrev_b32 v137, 1, v136"); e("v_lshlrev_b32 v137, 4, v137"); e("v_and_b32 v138, 1, v136"); e("v_lshl_add_u32 v137, v138, 2, v137"); e("s_mov_b32 s32, 1280")
    k.label(f"{nm}_sf3")
    e("v_add_u32 v137, v137, v141"); e("v_mul_u32_u24 v137, 160, v137"); e("v_add_u32 v137, s35, v137")
    e("s_and_b32 s33, s36, 1"); e("s_lshl_b32 s34, s33, 5"); e("s_xor_b32 s33, s33, 1"); e("s_lshl_b32 s33, s33, 7")
    e("v_lshl_add_u32 v144, v142, 4, v137"); e("v_add_u32 v144, s34, v144"); e("v_add_u32 v145, s32, v144")
    e("v_lshl_add_u32 v146, v142, 3, v137"); e("v_add_u32 v146, s33, v146"); e("v_add_u32 v147, s32, v146")
    e("s_cmp_ge_u32 s36, 24"); e(f"s_cselect_b32 s53, {WOB_I-WOA_I}, 0"); e("s_and_b32 s54, s36, 7"); e("s_mul_i32 s54, s54, 102400"); e("s_add_u32 s53, s53, s54")
    e("s_mul_i32 s54, s37, 5120"); e("s_add_u32 s53, s53, s54"); e(f"s_add_u32 s53, s53, {WOA_I}"); e("s_add_u32 s54, s53, 4096")
    k.label(f"{nm}_ss2")
    e("s_lshl_b32 s38, s49, 9"); e(f"s_add_u32 s38, s38, {U_B}"); e("s_cmp_ge_u32 s49, 320"); e("s_cselect_b32 s38, 0x7ff00000, s38")
    e("v_lshlrev_b32 v143, 2, v1")
    e("s_cmp_lt_u32 s49, 640"); e("s_cselect_b32 s4, 2, 0"); e("s_cmp_lt_u32 s49, 320"); e("s_cselect_b32 s4, 1, s4")
    e("s_and_b32 s55, s49, 15"); e("s_lshl_b32 s55, s55, 8"); e(f"s_add_u32 s55, s55, {CS}")

def ph_attn(k):
    e = k.e; nm = k.name
    KA, KT, VA = 4, 5, 6
    Q = [8, 14]; KF = [24, 32]; VF = [40, 48]; SS = [56, 72]; P = 88; O = [96, 112]; PF = 208
    SCR = 137216; TOP = 112640
    ids_rt(k)
    e("v_and_b32 v3, 31, v1"); e("v_lshrrev_b32 v7, 5, v1")
    e("v_lshlrev_b32 v22, 4, v1"); e("v_lshlrev_b32 v23, 3, v3")
    e("s_mul_i32 s19, s16, 163840")
    e("s_lshr_b32 s41, s18, 2")
    e("s_lshl_b32 s23, s17, 3"); e("s_lshl_b32 s22, s39, 1"); e("s_add_u32 s23, s23, s22")
    e("s_add_u32 s23, s23, s41")
    e("s_lshr_b32 s22, s19, 1"); e(f"s_add_u32 s22, s22, {QIMG}")
    e("s_mul_i32 s24, s23, 1280"); e("s_add_u32 s24, s24, s22"); e("s_xor_b32 s40, s23, 1"); e("s_mul_i32 s40, s40, 1280"); e("s_add_u32 s40, s40, s22")
    e("s_mul_i32 s42, s41, 2560"); e(f"s_add_u32 s42, s42, {TOP}")
    e("s_lshl_b32 s25, s18, 10")
    e(f"s_add_u32 s26, s19, {KVIMG}")
    rnd = [0]
    def dma():
        i = rnd[0]; rnd[0] += 1
        if i == 6:
            e("s_cmp_lt_u32 s18, 2"); e("s_cselect_b32 s27, 163840, 0"); e("s_add_u32 s27, s27, s25"); e("s_sub_u32 m0, s27, 2048")
        else: e(f"s_add_u32 m0, s25, {(TOP + 8192*i) if i < 6 else 8192*i - 51200}")
        e("s_add_u32 s27, s26, m0")
        k.vmop(f"buffer_load_dwordx4 v22, s[12:15], s27 offen {SC} lds", f"i{i}")
    e(f"v_add_u32 v{KA}, s42, v22")
    e(f"v_add_u32 v{KT}, s42, v23"); e(f"v_add_u32 v{KT}, 1024, v{KT}")
    if ENV('KTZ', '1'): e(f"v_lshl_add_u32 v{KT}, v7, 20, v{KT}")
    e("v_mul_u32_u24 v21, 20, v7"); e("v_add_u32 v21, v21, v3"); e("v_lshlrev_b32 v21, 4, v21")
    e("v_add_u32 v21, 1280, v21"); e(f"v_add_u32 v{VA}, s42, v21")
    e("s_mov_b32 s28, 0x000fffff"); e("s_mov_b32 s29, 0x000fffff")
    e("v_cmp_eq_u32 vcc, 20, v3"); e("v_mov_b32 v20, 0x3f803f80"); e("s_nop 0")
    e("v_cndmask_b32 v20, 0, v20, vcc")
    for r in range(16): e(f"v_mov_b32 v{VF[0]+r}, v20")
    for r in range(32): e(f"v_mov_b32 v{O[0]+r}, 0")
    for r in range(4): e(f"v_mov_b32 v{P+4+r}, 0")
    e("v_subrev_u32 v30, 1, v7")
    e("s_lshl_b32 s43, s21, 2"); e("s_add_u32 s43, s43, s39"); e(f"s_mul_i32 s43, s43, {2048*ENV('NPF', '14') - 1024}"); e(f"s_add_u32 s43, s43, {WOA_I}")
    e("s_mul_i32 s32, s23, 40960"); e(f"s_add_u32 s32, s32, {OT}")
    e("s_lshr_b32 s51, s16, 1"); e("s_lshl_b32 s51, s51, 10"); e("s_and_b32 s34, s16, 1"); e("s_lshl_b32 s34, s34, 9")
    e("s_add_u32 s51, s51, s34"); e("s_add_u32 s51, s51, s32")
    e("s_lshr_b32 s52, s16, 3"); e("s_add_u32 s52, s52, 16"); e("s_lshl_b32 s52, s52, 10"); e("s_add_u32 s52, s52, s32")
    e("s_and_b32 s35, s16, 3"); e("s_lshl_b32 s35, s35, 8"); e("s_add_u32 s52, s52, s35")
    e("s_bfe_u32 s35, s16, 0x10002"); e("s_lshl_b32 s35, s35, 3"); e("s_add_u32 s52, s52, s35")
    e("v_lshrrev_b32 v38, 4, v3"); e("v_mul_u32_u24 v38, 20480, v38"); e("v_and_b32 v39, 15, v3")
    e("v_lshl_add_u32 v38, v39, 4, v38"); e("v_lshl_add_u32 v39, v7, 8, v38")
    e("s_mul_i32 s32, s18, 3072"); e("s_xor_b32 s33, s18, 4"); e("s_mul_i32 s33, s33, 3072")
    e(f"v_add_u32 v132, {SCR}, v22"); e("v_add_u32 v133, s33, v132"); e("v_add_u32 v132, s32, v132")
    def c0(nl):
        e("s_lshl_b32 s48, s17, 8"); e(f"s_add_u32 s48, s48, {C0}"); e(f"v_mov_b32 v{PV_+2}, 16")
        e("s_mul_i32 s32, s16, 20"); e("s_add_u32 s33, s32, 19"); e("s_lshr_b32 s32, s32, 7"); e("s_lshr_b32 s33, s33, 7"); e("s_sub_u32 s33, s33, s32")
        e(f"v_lshrrev_b32 v{PV_+1}, 1, v1"); e(f"v_mul_u32_u24 v{PV_+1}, 5, v{PV_+1}"); e(f"v_and_b32 v{PV_}, s33, v1"); e(f"v_add3_u32 v{PV_+1}, v{PV_+1}, v{PV_}, s32")
        e(f"v_lshlrev_b32 v{PV_+1}, 11, v{PV_+1}"); e("s_mov_b64 s[56:57], 63")
    side_setup(k)
    e("s_lshl_b32 s59, s2, 2"); e("s_add_u32 s59, s59, s39"); e("s_mul_i32 s50, s17, 102400"); e("s_add_u32 s50, s50, s25"); e(f"s_add_u32 s50, s50, {WOA_I}"); e(f"s_mul_i32 s59, s59, {-(-(U_A - OT) // 1024 // 128) * 128}"); e(f"s_add_u32 s59, s59, {OT}")
    e("v_lshlrev_b32 v234, 7, v1")
    e("v_lshlrev_b32 v134, 11, v1"); e("s_lshl_b32 s32, s17, 8"); e(f"s_add_u32 s32, s32, {C0}"); e("v_add_u32 v134, s32, v134")
    e("v_lshlrev_b32 v135, 8, v1"); e(f"v_add_u32 v135, {CS - 4096}, v135"); e("v_cmp_gt_u32 vcc, 16, v1")
    e("v_cndmask_b32 v134, v135, v134, vcc"); e("v_cndmask_b32 v131, 40, 16, vcc"); e("v_mov_b32 v135, 64")
    wait_go(k, "t", -1, lambda: c0(6))
    k.stamp(2)
    e("s_or_b32 s44, s3, s41"); e("s_xor_b32 s44, s44, 1")
    dma()
    for x in range(2):
        k.vmop(f"buffer_load_dwordx4 {vr(Q[x],4)}, v22, s[12:15], s{(24,40)[x]} offen {SC}", "q")
        k.vmop(f"buffer_load_dwordx2 {vr(Q[x]+4,2)}, v23, s[12:15], s{(24,40)[x]} offen offset:1024 {SC}", "q")
    for _ in range(3): dma()
    k.waitvm("q")
    for x in range(2):
        e(f"v_and_b32 v{Q[x]+4}, v{Q[x]+4}, v30"); e(f"v_and_b32 v{Q[x]+5}, v{Q[x]+5}, v30")
    k.waitvm("i1"); e("s_barrier"); k.stamp(3)
    if os.environ.get("FOC") == "clk": k.rstamp(0)
    def rdK(buf, off):
        off *= 2
        e(f"ds_read_b128 {vr(KF[buf],4)}, v{KA} offset:{off}")
        e(f"ds_read_b64 {vr(KF[buf]+4,2)}, v{KT} offset:{off}")
    def rdV(buf, off):
        off *= 2
        e("s_mov_b64 exec, s[28:29]")
        e(f"ds_read_b128 {vr(VF[buf],4)}, v{VA} offset:{off}")
        e(f"ds_read_b128 {vr(VF[buf]+4,4)}, v{VA} offset:{off+640}")
        e("s_mov_b64 exec, -1")
    def qkm(x, kb): e(f"v_mfma_f32_32x32x16_bf16 {vr(SS[x],16)}, {vr(KF[kb],4)}, {vr(Q[x],4)}, 0")
    def qkt(x, kb): e(f"v_mfma_f32_32x32x8_bf16 {vr(SS[x],16)}, {vr(KF[kb]+4,2)}, {vr(Q[x]+4,2)}, {vr(SS[x],16)}")
    def pv(x, vb, u): e(f"v_mfma_f32_32x32x16_bf16 {vr(O[x],16)}, {vr(VF[vb]+4*u,4)}, {vr(P+4*u,4)}, {vr(O[x],16)}")
    def base(t):
        return 0 if t < 10 else 10 if t < 22 else 22
    def bump(regs, t):
        if t == 10:
            for r in regs: e(f"v_subrev_u32 v{r}, {TOP}, v{r}")
        elif t == 22:
            for r in regs: e(f"v_add_u32 v{r}, {12*5120}, v{r}")
    def unit(x, t, extra=()):
        p = t % 2; s = SS[x]
        ex = lambda i: e(f"v_exp_f32 v{s+i}, v{s+i}")
        cv = lambda i: e(f"v_cvt_pk_bf16_f32 v{P+i}, v{s+2*i}, v{s+2*i+1}")
        kb = p if x == 0 else 1-p
        if x == 1: e("s_waitcnt lgkmcnt(2)" if t < 31 else "s_waitcnt lgkmcnt(0)")
        if not (x == 1 and t == 31): qkm(1-x, kb)
        if x == 1 and t + 2 < 32:
            bump((KA, KT), t+2); rdK(p, (t+2-base(t+2))*2560)
        for i in range(0, 4): ex(i)
        if x == 0:
            pv(1, 1-p, 1)
            if t + 1 < 32:
                bump((VA,), t+1); rdV(1-p, (t+1-base(t+1))*2560)
        else:
            pv(0, p, 1)
        for f_ in extra: f_()
        for i in range(4, 8): ex(i)
        for i in range(0, 4): cv(i)
        if not (x == 1 and t == 31): qkt(1-x, kb)
        for i in range(8, 12): ex(i)
        if x == 0: e(f"s_waitcnt lgkmcnt({4 if t < 31 else 0})")
        pv(x, p, 0)
        for i in range(12, 16): ex(i)
        for i in range(4, 8): cv(i)
    rdK(0, 0); rdV(0, 0); rdK(1, 2560)
    e("s_waitcnt lgkmcnt(4)")
    qkm(0, 0); e("s_nop 10"); qkt(0, 0); e("s_nop 10")
    SYN = {1: 3, 4: 7, 10: 19}; SW = ENV('SW', '27')
    T_SI, T_SR, T_SA, T_PF, T_LC = 10, ENV('TSR', '16'), 26, ENV('TPF', '15'), 27
    hk = [0]
    def cond(test, fn):
        def g():
            hk[0] += 1; lab = f"{nm}_hk{hk[0]}"
            e(test); e(f"s_cbranch_scc0 {lab}"); fn(); k.label(lab)
        return g
    def prio1(): e("s_setprio 1")
    def pref():
        for _ in range(2): e(f"buffer_load_dwordx4 {vr(PF,4)}, v22, s[12:15], s43 offen {SC}"); e("s_add_u32 s43, s43, 1024")
    def side_issue():
        e("s_cmp_eq_u32 s4, 1"); e(f"s_cbranch_scc0 {nm}_i1")
        for i in range(8):
            e(f"s_add_u32 m0, s35, {1024*i}"); e(f"s_add_u32 s27, s5, {4*3840*i}")
            e(f"buffer_load_dwordx4 v{SIDE_SV}, s[88:91], s27 offen {os.environ.get('SNT', 'nt')} lds")
        e(f"s_branch {nm}_i2")
        k.label(f"{nm}_i1")
        for i in range(5):
            e(f"s_add_u32 m0, s35, {1024*i}"); e("s_nop 0")
            e(f"buffer_load_dwordx4 v{SIDE_SV+i}, s[88:91], s5 offen {os.environ.get('SNT', 'nt')} lds")
        k.label(f"{nm}_i2")
    def side_read():
        e("s_waitcnt vmcnt(0)")
        e("s_cmp_eq_u32 s4, 1"); e(f"s_cbranch_scc0 {nm}_r1")
        for F in range(8):
            for t in range(2): e(f"ds_read_b64_tr_b16 {vr(SIDE_D+4*F+2*t,2)}, v{144+F%4} offset:{4096*(F//4)+1024*t}")
        e(f"s_branch {nm}_r2")
        k.label(f"{nm}_r1")
        for nf in range(5):
            for t in range(2): e(f"ds_read_b64_tr_b16 {vr(SIDE_D+4*nf+2*t,2)}, v{144+t if nf < 4 else 146+t} offset:{64*(nf//2)+8*(nf%2) if nf < 4 else 0}")
        k.label(f"{nm}_r2")
    def side_done():
        e("s_waitcnt lgkmcnt(0)"); e(f"v_mov_b32 v{PV_+3}, {LW-8}"); e(f"v_mov_b32 v{PV_}, 1"); e("s_mov_b64 exec, 1")
        e(f"ds_add_u32 v{PV_+3}, v{PV_}"); e("s_mov_b64 exec, -1")
    UA = (SIDE_U, 212)
    def side_sum(q):
        def g():
            if q == 0:
                for r in range(4): e(f"v_mov_b32 v{228+r}, 0x3f803f80")
            for u in range(2):
                for x in range(2): e(f"v_mfma_f32_32x32x16_bf16 {vr(UA[x],16)}, v[228:231], {vr(SIDE_D+16*u+8*q+4*x,4)}, {vr(UA[x],16) if u else 0}")
        return g
    def side_sum2(q):
        def g():
            e("v_cmp_gt_u32 vcc, 32, v1"); e(f"v_cndmask_b32 v{232+q}, v{UA[1]}, v{UA[0]}, vcc")
            e(f"buffer_store_dword v{232+q}, v143, s[12:15], s38 offen offset:{256*q} {SC}")
        return g
    def side_store(F):
        return lambda: e(f"buffer_store_dwordx4 {vr(SIDE_D+4*F,4)}, v22, s[12:15], s{53 if F < 4 else 54 if F == 4 else 58} offen offset:{1024*(F%4)} {SC}")
    def side_arrive():
        e(f"v_mov_b32 v{PV_+1}, 0"); e(f"v_mov_b32 v{PV_}, 1"); e("s_waitcnt vmcnt(0)"); e("s_mov_b64 exec, 1")
        e(f"buffer_atomic_add v{PV_}, v{PV_+1}, s[12:15], s55 offen {SC}"); e("s_mov_b64 exec, -1")
    def touch():
        e("buffer_load_dword v235, v234, s[12:15], s59 offen")
    def late():
        e("s_mov_b32 exec_lo, 0xffff7fff"); e("s_mov_b32 exec_hi, 0"); e(f"buffer_load_dword v135, v134, s[12:15], 0 offen {SC}"); e("s_mov_b64 exec, -1")
    def init_words(): lw_init(k); e(f"v_mov_b32 v{PV_+3}, {LW-8}"); e(f"ds_write_b32 v{PV_+3}, v{PV_}")
    side = "s_cmp_lg_u32 s4, 0"
    for t in range(32):
        if t in SYN: k.waitvm(f"i{SYN[t]}"); e("s_barrier")
        x0, x1 = [], []
        if rnd[0] < 20: x0 += [dma, dma]; x1 += [dma, dma]
        if t in (1, 4, 10): cond("s_cmp_ge_u32 s18, 4", prio1)()
        if t == 3: x0.append(lambda: e("s_setprio 0"))
        if t == 8: x1.append(lambda: e("s_setprio 0"))
        if t == 10:
            x0.append(cond("s_cmp_eq_u32 s18, 4", lambda: lw_init(k)))
            if os.environ.get("FOC") == "at": k.stamp(2)
        if t == SW + 1 and os.environ.get("FOC") == "at": k.stamp(0)
        if t == T_SI: x1.append(cond(side, side_issue))
        if t == T_SR: x1.append(cond(side, side_read))
        if t == T_SR + 1: x0.append(cond(side, lambda: e("s_waitcnt lgkmcnt(0)"))); x1.append(cond("s_cmp_eq_u32 s4, 1", side_sum(0)))
        if t == T_SR + 2: x0.append(cond("s_cmp_eq_u32 s4, 1", side_sum2(0))); x1.append(cond("s_cmp_eq_u32 s4, 1", side_sum(1)))
        if t == T_SR + 3: x0.append(cond("s_cmp_eq_u32 s4, 1", side_sum2(1)))
        if T_SR + 1 <= t < T_SR + 9: x1.append(cond(side, side_store(t - T_SR - 1)))
        if ENV('TCH', '7') and t == ENV('TCH', '7'): x0.append(lambda: k.waitvm("i19") if ENV('TW', '1') else None); x0.append(cond("s_cmp_lg_u32 s44, 0", touch))
        if t == T_SA: x0.append(cond(side, side_arrive))
        if T_PF <= t < T_PF + ENV('NPF', '14') and ENV('PFW', '1'): x0.append(cond("s_cmp_lt_u32 s18, 4", pref))
        if t == T_LC: x1.append(cond("s_cmp_eq_u32 s18, 0", late))
        if t == SW: (x1 if ENV('SWX', '0') else x0).append(lambda: e("s_setprio 0"))
        unit(0, t, x0); unit(1, t, x1)
    pv(1, 1, 1); k.stamp(4)
    if os.environ.get("FOC") == "clk": k.rstamp(2)
    e("s_mov_b32 s30, 0")
    e(f"s_mov_b32 s32, {fbits(2.0**-60)}"); e(f"s_mov_b32 s33, {fbits(2.0**100)}"); e(f"s_mov_b32 s34, {fbits(2.0**126)}")
    k.label(f"{nm}_scrok")
    e("s_nop 7")
    for i in range(3): e(f"ds_write_b128 v132, {vr(O[1]+4*i,4)} offset:{1024*i}")
    e("s_waitcnt vmcnt(0)"); e("v_cmp_gt_u32 vcc, v131, v135"); e(f"s_cbranch_vccnz {nm}_late")
    k.label(f"{nm}_lok")
    e("s_waitcnt lgkmcnt(0)"); e("s_barrier")
    for i in (2, 0, 1): e(f"ds_read_b128 {vr(SS[0]+4*i,4)}, v133 offset:{1024*i}")
    OO = O[0]
    e("s_waitcnt lgkmcnt(2)")
    for r in range(8, 12): e(f"v_add_f32 v{OO+r}, v{OO+r}, v{SS[0]+r}")
    e("s_waitcnt lgkmcnt(0)")
    for r in range(8): e(f"v_add_f32 v{OO+r}, v{OO+r}, v{SS[0]+r}")
    k.label(f"{nm}_chk")
    e(f"v_mov_b32 v30, v{OO+8}"); e(f"v_mov_b32 v31, v{OO+8}")
    e(f"v_max3_f32 v28, abs(v{OO}), abs(v{OO+1}), abs(v{OO+2})")
    e("v_permlane32_swap_b32 v30, v31")
    e(f"v_max3_f32 v28, abs(v{OO+3}), abs(v{OO+4}), v28")
    e("v_rcp_f32 v30, v31")
    e(f"v_max3_f32 v28, abs(v{OO+5}), abs(v{OO+6}), v28")
    for r in range(12): e(f"v_mul_f32 v{SS[1]+r}, v{OO+r}, v30")
    for r in range(6): e(f"v_cvt_pk_bf16_f32 v{P+r}, v{SS[1]+2*r}, v{SS[1]+2*r+1}")
    e(f"buffer_store_dwordx4 {vr(P,4)}, v39, s[12:15], s51 offen {SC}")
    e("s_mov_b32 exec_hi, 0")
    e(f"buffer_store_dwordx2 {vr(P+4,2)}, v38, s[12:15], s52 offen {SC}")
    e("s_mov_b64 exec, -1")
    for i in range(EARLY//2):
        e(f"s_add_u32 m0, s25, {8192*i}"); e(f"s_add_u32 s27, s50, {8192*i}")
        e(f"buffer_load_dwordx4 v22, s[12:15], s27 offen {SC} lds")
    for r in range(7, 11, 2): e(f"v_max3_f32 v28, abs(v{OO+r}), abs(v{OO+r+1}), v28")
    e(f"v_max_f32 v28, abs(v{OO+11}), v28")
    e("v_cmp_le_f32 vcc, s32, v31"); e("v_cmp_ge_f32 s[36:37], s33, v31"); e("v_cmp_gt_f32 s[40:41], s34, v28")
    e("s_and_b64 s[36:37], s[36:37], vcc"); e("s_and_b64 s[36:37], s[36:37], s[40:41]")
    e("s_cmp_eq_u64 s[36:37], -1"); e(f"s_cbranch_scc0 {nm}_slow")
    def slowpath():
        k.label(f"{nm}_late")
        e("s_mov_b32 s49, 0")
        k.label(f"{nm}_late1")
        e("s_sleep 8"); late(); e("s_add_u32 s49, s49, 1"); e("s_waitcnt vmcnt(0)")
        e("v_cmp_gt_u32 vcc, v131, v135"); e("s_cmp_ge_u32 s49, 0x20000"); e(f"s_cbranch_scc1 {nm}_lok"); e(f"s_cbranch_vccnz {nm}_late1")
        e(f"s_branch {nm}_lok")
        k.label(f"{nm}_slow")
        e("s_cmp_eq_u32 s30, 0"); e(f"s_cbranch_scc0 {nm}_fin")
        e("s_mov_b32 s30, 1")
        e("s_waitcnt vmcnt(0)")
        NM = O[1]
        e("v_mov_b32 v32, 0xff800000")
        def slowqk(c):
            e(f"buffer_load_dwordx4 {vr(KF[0],4)}, v22, s[12:15], s27 offen {SC}")
            e(f"buffer_load_dwordx2 {vr(KF[0]+4,2)}, v23, s[12:15], s27 offen offset:1024 {SC}")
            e("s_waitcnt vmcnt(0)")
            e(f"v_mfma_f32_32x32x16_bf16 {vr(SS[0],16)}, {vr(KF[0],4)}, {vr(Q[0],4)}, {c}"); e("s_nop 10")
            e(f"v_mfma_f32_32x32x8_bf16 {vr(SS[0],16)}, {vr(KF[0]+4,2)}, {vr(Q[0]+4,2)}, {vr(SS[0],16)}"); e("s_nop 12")
        e(f"s_add_u32 s27, s19, {KVIMG}"); e("s_mov_b32 s31, 0")
        k.label(f"{nm}_mx")
        slowqk("0")
        for r in range(0, 16, 2): e(f"v_max3_f32 v32, v{SS[0]+r}, v{SS[0]+r+1}, v32")
        e("s_add_u32 s27, s27, 2560")
        e("s_add_u32 s31, s31, 1"); e("s_cmp_lt_u32 s31, 64"); e(f"s_cbranch_scc1 {nm}_mx")
        k.allred32("v_max_f32", 32, 33)
        e("v_xor_b32 v32, 0x80000000, v32")
        for r in range(16): e(f"v_mov_b32 v{NM+r}, v32")
        for r in range(16): e(f"v_mov_b32 v{OO+r}, 0")
        for r in range(8): e(f"v_mov_b32 v{VF[0]+r}, v20")
        e(f"s_add_u32 s27, s19, {KVIMG}"); e("s_mov_b32 s31, 0")
        k.label(f"{nm}_sl")
        e("s_mov_b64 exec, s[28:29]")
        e(f"buffer_load_dwordx4 {vr(VF[0],4)}, v21, s[12:15], s27 offen {SC}")
        e(f"buffer_load_dwordx4 {vr(VF[0]+4,4)}, v21, s[12:15], s27 offen offset:640 {SC}")
        e("s_mov_b64 exec, -1")
        slowqk(vr(NM,16))
        for i in range(16): e(f"v_exp_f32 v{SS[0]+i}, v{SS[0]+i}")
        e("s_nop 0")
        for i in range(8): e(f"v_cvt_pk_bf16_f32 v{P+i}, v{SS[0]+2*i}, v{SS[0]+2*i+1}")
        e("s_nop 1")
        pv(0, 0, 0); pv(0, 0, 1)
        e("s_add_u32 s27, s27, 2560")
        e("s_add_u32 s31, s31, 1"); e("s_cmp_lt_u32 s31, 64"); e(f"s_cbranch_scc1 {nm}_sl")
        e("s_nop 12"); e(f"s_branch {nm}_chk")
    k.tail = slowpath
    k.label(f"{nm}_fin")
    k.stamp(5)
    e("v_lshlrev_b32 v3, 4, v1")
    k.vm = []; k.lg = []

def proj_c(k, tag, src, xin, xout, stout, last, cnt_code, word, st0):
    final = False
    e = k.e
    ACC, RESID, A, BF = 24, 44, 76, 156
    NA0 = ENV('PA0', '8')
    ids_rt(k)
    e("s_lshl_b32 s19, s16, 2"); e("s_add_u32 s19, s19, s39")
    e("s_mul_i32 s24, s19, 20480")
    e("s_lshr_b32 s33, s17, 1"); e("s_mul_i32 s33, s33, 5120"); e("s_add_u32 s33, s33, s24")
    e("s_and_b32 s34, s17, 1"); e("s_mul_i32 s35, s34, 3072"); e("s_add_u32 s35, s35, s33")
    e("s_lshl_b32 s36, s34, 9"); e("s_add_u32 s36, s36, s33"); e("s_add_u32 s36, s36, 2048")
    e(f"s_add_u32 s37, s35, {xin}"); e(f"s_add_u32 s38, s36, {xin}")
    e("v_lshrrev_b32 v13, 5, v1"); e("v_lshlrev_b32 v13, 8, v13"); e("v_and_b32 v14, 15, v1"); e("v_lshl_add_u32 v13, v14, 4, v13")
    e("v_bfe_u32 v14, v1, 4, 1"); e("v_lshl_add_u32 v13, v14, 3, v13")
    k.vmop(f"buffer_load_dwordx4 {vr(RESID,4)}, v3, {RS_(xin)}, s37 offen {SC}", "r")
    k.vmop(f"buffer_load_dwordx4 {vr(RESID+4,4)}, v3, {RS_(xin)}, s37 offen offset:1024 {SC}", "r")
    k.vmop(f"buffer_load_dwordx2 {vr(RESID+8,2)}, v13, {RS_(xin)}, s38 offen {SC}", "r")
    e(f"s_add_u32 s24, s24, {src}")
    for i in range(1, 5): e(f"s_add_u32 s{24+i}, s24, {4096*i}")
    e("v_lshrrev_b32 v9, 4, v1"); e("v_add_u32 v12, 61440, v3")
    wait_go(k, tag, word, cnt_code)
    k.stamp(st0)
    def ldA(n): k.vmop(f"buffer_load_dwordx4 {vr(A+4*n,4)}, v3, s[12:15], s{24+n//4} offen offset:{(n%4)*1024} {SC}", f"a{n}")
    for n in range(NA0): ldA(n)
    k.waitvm("r")
    for i in range(10):
        e(f"v_lshlrev_b32 v{ACC+2*i}, 16, v{RESID+i}"); e(f"v_and_b32 v{ACC+2*i+1}, 0xffff0000, v{RESID+i}")
    def rd(n, nf):
        off = n*5120 + nf*1024; b = 3
        if n >= 12: off -= 61440; b = 12
        k.dsop(f"ds_read_b128 {vr(BF+20*(n%2)+4*nf,4)}, v{b} offset:{off}", f"b{n}_{nf}")
    e("s_barrier")
    for n in range(2):
        for nf in range(5): rd(n, nf)
    for n in range(20):
        if n < 2 or n % 2 == 0: k.waitvm(f"a{min(n + (n >= 2), 19)}")
        if n == 0: k.stamp(st0+1)
        for nf in range(5):
            if ENV('PW1', '1'):
                if nf == 0: k.waitlg(f"b{n}_4")
            elif nf in (0, 2, 4): k.waitlg(f"b{n}_{min(nf+1,4)}")
            if n == 12 and nf == 0 and not final: e("s_barrier")
            e(f"v_mfma_f32_16x16x32_bf16 {vr(ACC+4*nf,4)}, {vr(BF+20*(n%2)+4*nf,4)}, {vr(A+4*n,4)}, {vr(ACC+4*nf,4)}")
            if n + 2 < 20: rd(n+2, nf)
            if nf == 0 and n + NA0 < 20: ldA(n + NA0)
    e("s_barrier")
    if last:
        e("s_cmp_eq_u32 s3, 0"); e(f"s_cbranch_scc1 {k.name}_nf")
        e("v_and_b32 v16, 15, v1"); e("v_mul_u32_u24 v16, 1280, v16"); e("v_lshl_add_u32 v17, v9, 3, v16"); e("v_lshl_add_u32 v16, v9, 4, v16")
        e("s_mul_i32 s32, s19, 20480"); e("s_mul_i32 s31, s17, 160"); e("s_add_u32 s32, s32, s31")
        e("s_lshl_b32 s31, s34, 5"); e("s_add_u32 s33, s32, s31"); e("s_xor_b32 s31, s34, 1"); e("s_lshl_b32 s31, s31, 7"); e("s_add_u32 s32, s32, s31")
        FSC = os.environ.get("FSC", "")
        for i in range(10): e(f"v_cvt_pk_bf16_f32 v{RESID+i}, v{ACC+2*i}, v{ACC+2*i+1}")
        e(f"buffer_store_dwordx4 {vr(RESID,4)}, v16, s[60:63], s33 offen {FSC}")
        e(f"buffer_store_dwordx4 {vr(RESID+4,4)}, v16, s[60:63], s33 offen offset:64 {FSC}")
        e(f"buffer_store_dwordx2 {vr(RESID+8,2)}, v17, s[60:63], s32 offen {FSC}")
        k.stamp(st0+2)
        if STAMP: e("s_waitcnt vmcnt(0)")
        k.dump(15, "2")
        e("s_endpgm")
        k.label(f"{k.name}_nf")
    if True:
        e(f"s_add_u32 s37, s35, {xout}"); e(f"s_add_u32 s38, s36, {xout}")
        e("s_lshl_b32 s32, s19, 10"); e("s_lshl_b32 s33, s17, 7"); e("s_add_u32 s32, s32, s33"); e(f"s_add_u32 s32, s32, {stout}")
        e("v_lshlrev_b32 v16, 3, v1")
        for i in range(10): e(f"v_cvt_pk_bf16_f32 v{RESID+i}, v{ACC+2*i}, v{ACC+2*i+1}")
        e(f"buffer_store_dwordx4 {vr(RESID,4)}, v3, {RS_(xout)}, s37 offen {SC}")
        e(f"buffer_store_dwordx4 {vr(RESID+4,4)}, v3, {RS_(xout)}, s37 offen offset:1024 {SC}")
        e(f"buffer_store_dwordx2 {vr(RESID+8,2)}, v13, {RS_(xout)}, s38 offen {SC}")
        e(f"v_add_f32 v18, v{ACC}, v{ACC+1}"); e(f"v_mul_f32 v19, v{ACC}, v{ACC}"); e(f"v_add_f32 v20, v{ACC+2}, v{ACC+3}"); e(f"v_mul_f32 v21, v{ACC+1}, v{ACC+1}")
        e(f"v_fmac_f32 v19, v{ACC+2}, v{ACC+2}"); e(f"v_fmac_f32 v21, v{ACC+3}, v{ACC+3}")
        for i in range(4, 20, 2):
            e(f"v_add_f32 v18, v18, v{ACC+i}"); e(f"v_fmac_f32 v19, v{ACC+i}, v{ACC+i}")
            e(f"v_add_f32 v20, v20, v{ACC+i+1}"); e(f"v_fmac_f32 v21, v{ACC+i+1}, v{ACC+i+1}")
        e("v_add_f32 v18, v18, v20"); e("v_add_f32 v19, v19, v21")
        for sw in ("v_permlane16_swap_b32", "v_permlane32_swap_b32"):
            e("v_mov_b32 v20, v18"); e("v_mov_b32 v21, v19"); e("s_nop 0")
            e(f"{sw} v18, v20"); e(f"{sw} v19, v21"); e("s_nop 0")
            e("v_add_f32 v18, v18, v20"); e("v_add_f32 v19, v19, v21")
        e("s_mov_b64 exec, 0xffff")
        e(f"buffer_store_dwordx2 v[18:19], v16, {RS_(xout)}, s32 offen {SC}")
    k.stamp(st0+2)

def proj_l(k, wimg, nxt, src, sig=None, done=0, last=False):
    e = k.e
    if nxt is not None:
        ids_mt(k)
        e("s_min_u32 s17, s17, 14" if nxt == WA_I else "s_nop 0")
        e("s_mul_i32 s58, s17, 163840"); e("s_add_u32 s58, s58, s45"); e(f"s_add_u32 s58, s58, {nxt}")
    ids_rt(k)
    e("s_mul_i32 s50, s17, 102400"); e("s_add_u32 s50, s50, s45"); e(f"s_add_u32 s50, s50, {wimg}")
    e("s_mul_i32 s51, s16, 81920"); e("s_lshl_b32 s52, s17, 2"); e("s_add_u32 s52, s52, s39"); e("s_mul_i32 s52, s52, 2560"); e("s_add_u32 s51, s51, s52"); e(f"s_add_u32 s51, s51, {src}")
    e("v_min_u32 v21, 39, v1"); e("v_lshlrev_b32 v21, 6, v21")
    w = Wdma(k, 25, 50, "o"); k.vm = []
    T1, T2 = ENV('T1', '0'), ENV('T2', '3')
    if sig:
        def a8():
            e(f"v_mov_b32 v{PV_+3}, {LW}"); e("s_mov_b32 s49, 0")
            k.label(f"{k.name}_a8")
            e(f"ds_read_b32 v{PV_}, v{PV_+3}"); e("s_add_u32 s49, s49, 1"); e("s_waitcnt lgkmcnt(0)"); e(f"v_readfirstlane_b32 s44, v{PV_}")
            e("s_cmp_ge_u32 s49, 0x400000"); e("s_cselect_b32 s44, 8, s44"); e("s_cmp_lt_u32 s44, 8"); e(f"s_cbranch_scc1 {k.name}_a8")
        signal(k, "s1l", 0, 8, sig)
        if ENV('A8E', '0'): a8()
        ub_prep(k, 0)
    if last: w.rng(0, 6); e("s_barrier"); done = 6
    w.rng(done, 25, T1 if sig else ENV('T4', '5'))
    w2 = Wdma(k, 40, 58)
    if last:
        e("s_cmp_eq_u32 s3, 0"); e(f"s_cbranch_scc1 {k.name}_nl")
        e("s_waitcnt vmcnt(0)"); e("s_barrier"); e("buffer_load_dword v20, v21, s[12:15], s51 offen"); e("s_endpgm")
        k.label(f"{k.name}_nl")
    if sig:
        w2.rng(25, 33, T1)
        if not ENV('A8E', '0'): a8()
    if nxt is not None: w2.rng(33 if sig else 32, 39, T1 if sig else ENV('T4', '5'))
    if sig: ub_prep(k, 1)
    if last and ENV('WPF', '0'):
        e("v_lshlrev_b32 v22, 7, v1"); e("s_and_b32 s32, s21, 1"); e("s_lshl_b32 s32, s32, 2"); e("s_add_u32 s32, s32, s39"); e("s_lshl_b32 s32, s32, 14")
        e("s_sub_u32 s33, s58, s45"); e("s_add_u32 s33, s33, s32")
        for i in range(2):
            k.vmop(f"buffer_load_dword v23, v22, s[12:15], s33 offen {SC}"); e("s_add_u32 s33, s33, 8192")
            if ENV('WPF', '0') == 2: e("s_waitcnt vmcnt(0)"); k.vm = []
    k.waitvm("o24")
    e("s_barrier")
    if ENV('ATOUCH', '0'):
        k.vmop("buffer_load_dword v20, v21, s[12:15], s51 offen")
    if nxt is not None:
        if not sig: w2.rng(25, 32)
        e("s_barrier")
        w2.rng(0, 15, ENV('T3', '0'))
        e("s_barrier")
        k.waitvm("w14")
        if ENV('LSL', '0'): e(f"s_sleep {ENV('LSL', '0')}")
        w2.rng(15, 25, T2)
    return w2

def stats16(k, s, rstd, mop, mask):
    e = k.e
    e(f"v_add_f32 v{s}, v{s}, v{s+2}"); e(f"v_add_f32 v{s+1}, v{s+1}, v{s+3}")
    k.allred16("v_add_f32", s, s+2); k.allred16("v_add_f32", s+1, s+3)
    k.allred32("v_add_f32", s, s+2); k.allred32("v_add_f32", s+1, s+3)
    stats_finish(k, s, s+1, s+2, rstd, s+3)
    split3(k, s+2, mop, 17, 'm', mask)
def usum(k, u, dst, t=17):
    e = k.e
    e(f"v_add_f32 v{u}, v{u}, v{u+1}"); e(f"v_add_f32 v{u+2}, v{u+2}, v{u+3}"); e(f"v_add_f32 v{u}, v{u}, v{u+2}")
    split3(k, u, dst, t, 'u')
def scale_pack(k, a, sc, dst):
    for r in range(4): k.e(f"v_mul_f32 v{a+r}, v{a+r}, v{sc(r)}")
    for r in range(2): k.e(f"v_cvt_pk_bf16_f32 v{dst+r}, v{a+2*r}, v{a+2*r+1}")
EX = 102400
SOFF = 2*8192 + 7296
UOFF = lambda F: (F//4)*8192 + 7168 + (F%4)*256 + 128
TOKF = (0, 1, 2, 3, 6); FEAF = (4, 5, 7)

UO = 3456
def ub_prep(k, part):
    e = k.e
    if part:
        k.waitvm("up")
        for j_ in range(5): e(f"v_add_f32 v{64+j_}, v{64+j_}, v{69+j_}")
        e("v_add_f32 v64, v64, v65"); e("v_add_f32 v66, v66, v67"); e("v_add_f32 v64, v64, v68"); e("v_add_f32 v64, v64, v66")
        k.allred32("v_add_f32", 64, 65); split3(k, 64, 28, 17, 'u')
        return
    e("v_lshrrev_b32 v6, 5, v1"); e("v_and_b32 v5, 31, v1"); e("s_lshr_b32 s30, s21, 1")
    e("v_mul_u32_u24 v12, 5120, v6"); e("v_lshl_add_u32 v12, v5, 2, v12")
    e("s_mul_i32 s30, s30, 10240"); e("s_lshl_b32 s31, s39, 7"); e("s_add_u32 s30, s30, s31"); e(f"s_add_u32 s30, s30, {U_B}"); e("s_add_u32 s31, s30, 2560")
    for j_ in range(10): k.vmop(f"buffer_load_dword v{64+j_}, v12, s[12:15], s{30+j_//5} offen offset:{512*(j_%5)}", "up")
    e("v_bfe_u32 v6, v1, 4, 1"); e("v_lshlrev_b32 v46, 9, v6"); e("v_and_b32 v5, 15, v1"); e("v_lshl_add_u32 v46, v5, 3, v46")
    e("s_lshl_b32 s30, s39, 12"); e("v_add_u32 v46, s30, v46")

def atouch_pre(k, xin):
    e = k.e
    e("s_mul_i32 s51, s16, 163840"); e("s_lshl_b32 s52, s17, 2"); e("s_add_u32 s52, s52, s39"); e("s_mul_i32 s52, s52, 2560"); e("s_add_u32 s51, s51, s52"); e(f"s_add_u32 s51, s51, {xin}")
    e("v_min_u32 v21, 39, v1"); e("v_lshlrev_b32 v21, 6, v21")

G_ACC, G_BF, G_AR, G_DA = 64, 128, 160, 5
def gemm32_pre(k, xin, stin):
    e = k.e
    e("v_and_b32 v10, 31, v1"); e("v_lshrrev_b32 v4, 5, v1"); e("v_and_b32 v5, 15, v1")
    e("s_lshl_b32 s19, s16, 2"); e("s_add_u32 s19, s19, s18")
    e("v_bfe_u32 v7, v1, 4, 1"); e("v_mul_u32_u24 v8, 20480, v7"); e("v_lshl_add_u32 v8, v4, 8, v8"); e("v_lshl_add_u32 v8, v5, 4, v8")
    e("v_lshlrev_b32 v11, 10, v7"); e("v_lshl_add_u32 v11, v4, 9, v11"); e("v_lshl_add_u32 v11, v5, 3, v11")
    e("s_lshl_b32 s30, s19, 11"); e(f"s_add_u32 s30, s30, {stin}")
    e("s_mul_i32 s24, s19, 40960"); e(f"s_add_u32 s24, s24, {xin}")
    e("v_add_u32 v41, 65536, v3"); e("v_add_u32 v42, 131072, v3")
    e("v_subrev_u32 v58, 1, v4"); e("v_not_b32 v59, v58")
def gemm32_loads(k, R, G_DA=G_DA):
    e = k.e
    def ldA(ks):
        if ks % 4 == 0 and ks > 0: e("s_add_u32 s24, s24, 4096")
        for u in range(2):
            k.vmop(f"buffer_load_dwordx4 {vr(G_AR+8*(ks%G_DA)+4*u,4)}, v8, {R}, s24 offen offset:{(ks%4)*1024+512*u} {SC}", f"a{ks}")
    ldA(0)
    for q in range(4): k.vmop(f"buffer_load_dwordx2 {vr(16+2*q,2)}, v11, {R}, s30 offen offset:{128*q} {SC}", "st")
    for ks in range(1, 4): ldA(ks)
    return ldA
def gemm32_stats(k):
    e = k.e
    k.waitvm("st")
    e("v_add_f32 v16, v16, v18"); e("v_add_f32 v17, v17, v19"); e("v_add_f32 v20, v20, v22"); e("v_add_f32 v21, v21, v23")
    e("v_add_f32 v16, v16, v20"); e("v_add_f32 v17, v17, v21")
    k.allred32("v_add_f32", 16, 18); k.allred32("v_add_f32", 17, 18)
    stats_finish(k, 16, 17, 46, 47, 18)
    split3(k, 46, 48, 18, 'm', 58)
def gemm32(k, vmode, fl, ldA, bars, st0, late=None, DA=G_DA, TN=4):
    e = k.e; ACC, BF, AR = G_ACC, G_BF, G_AR; nld = [4]
    acc = lambda jf: vr(ACC+16*jf, 16)
    ops = [(ks, f//4, f%4) for ks in range(20-TN) for f in range(8)] + [(ks, u, jf) for jf in range(4) for ks in range(20-TN, 20) for u in range(2)]
    def rd(i):
        ks, u, jf = ops[i]; off = ks*8192 + 1024*(4*u+jf); hi = off >> 16
        k.dsop(f"ds_read_b128 {vr(BF+4*(i%8),4)}, v{(3,41,42)[hi]} offset:{off & 0xffff}", f"b{i}")
    def mm(i):
        ks, u, jf = ops[i]
        if i % 2 == 0: k.waitlg(f"b{i+1}")
        a = vr(AR+8*(ks%DA)+4*u, 4); b = vr(BF+4*(i%8), 4); c = acc(jf) if (ks or u) else "0"
        if vmode: e(f"v_mfma_f32_32x32x16_bf16 {acc(jf)}, {a}, {b}, {c}")
        else:     e(f"v_mfma_f32_32x32x16_bf16 {acc(jf)}, {b}, {a}, {c}")
        if i + 8 < 160: rd(i + 8)
    e("s_barrier")
    for i in range(8): rd(i)
    for ks in range(20-TN):
        k.waitvm(f"a{ks}")
        if ks == 0: k.stamp(st0+1)
        if ks in bars: e("s_barrier")
        if late and ks == late[0]: k.fill(fl, 1000); fl += late[1]
        for f in range(8):
            mm(8*ks + f)
            if f in (0, 4) and nld[0] < min(20, ks + DA): ldA(nld[0]); nld[0] += 1
            if ks >= 1: k.fill(fl, 2)
    assert nld[0] == 20
    k.fill(fl, 1000)
    for jf in range(4):
        if vmode: e(f"v_mfma_f32_32x32x8_bf16 {acc(jf)}, v[48:49], {vr(50+2*jf,2)}, {acc(jf)}")
        else:     e(f"v_mfma_f32_32x32x8_bf16 {acc(jf)}, {vr(50+2*jf,2)}, v[48:49], {acc(jf)}")
    def tail(epi, tbars=(), end=None):
        pend = []
        for jf in range(4):
            if jf in tbars: e("s_barrier")
            for n in range(2*TN):
                i = 8*(20-TN) + 2*TN*jf + n
                if n % 2 == 0: k.waitvm(f"a{ops[i][0]}")
                mm(i)
                if n >= 2: k.fill(pend, ENV('TFILL', '4'))
            k.fill(pend, 1000)
            if jf == 3:
                k.stamp(st0+2)
                if end: end()
            pend = k.capture(lambda: epi(jf))
        k.fill(pend, 1000)
    return tail

TB, TS = 88448, 296
def toff(G): return (0, 64, 128, 168, 208, 248)[G//5] + 8*(G%5)

def qkvb_c(k, xin, stin, st0):
    e = k.e; nm = k.name
    ACC, BF = G_ACC, G_BF
    ids_mt(k); gemm32_pre(k, xin, stin)
    e("v_lshrrev_b32 v6, 4, v1")
    MC, MP, MP1 = 200, 204, 208
    NEG = fbits(-1e30)
    e("v_lshlrev_b32 v17, 2, v6"); e("v_sub_u32 v17, v5, v17"); e(f"v_mov_b32 v19, {NEG}")
    for r in range(4):
        e(f"v_subrev_u32 v18, {r}, v17"); e("v_and_b32 v16, 0x80000001, v18")
        e("v_cmp_eq_u32 vcc, 0, v16"); e(f"v_cndmask_b32 v{MC+r}, v19, 0, vcc")
        e("v_cmp_eq_u32 vcc, 0x80000000, v16"); e(f"v_cndmask_b32 v{MP+r}, v19, 0, vcc")
    e("s_cmp_eq_u32 s19, 0"); e(f"s_cselect_b32 s34, {NEG}, 0")
    for r in range(4): e(f"v_add_f32 v{MP1+r}, s34, v{MP+r}")
    e(f"s_mul_i32 s35, s18, {32*TS}"); e(f"s_add_u32 s35, s35, {TB}")
    e(f"v_mul_u32_u24 v16, {TS}, v10"); e("v_add_u32 v16, s35, v16"); e(f"v_add_u32 v16, {16*TS}, v16")
    e("v_lshl_add_u32 v212, v4, 3, v16"); e("v_lshl_add_u32 v213, v4, 5, v16"); e("v_mov_b32 v219, v16")
    e("v_lshl_add_u32 v215, v4, 6, v16")
    e(f"v_mul_u32_u24 v16, {TS}, v5"); e("v_add_u32 v16, s35, v16"); e("v_lshl_add_u32 v216, v6, 4, v16")
    e("v_lshrrev_b32 v17, 2, v1"); e(f"v_mul_u32_u24 v16, {TS}, v17"); e("v_add_u32 v16, s35, v16"); e("v_and_b32 v17, 3, v1")
    e("v_lshl_add_u32 v217, v17, 3, v16")
    e("v_mul_u32_u24 v18, 40, v17"); e("v_add_u32 v18, 240, v18"); e("v_cmp_gt_u32 vcc, 2, v17"); e("v_mov_b32 v19, 288"); e("v_cndmask_b32 v18, v19, v18, vcc"); e("v_add_u32 v218, v16, v18")
    e("v_lshlrev_b32 v43, 9, v7"); e("v_lshl_add_u32 v43, v5, 3, v43")
    e("v_mov_b32 v220, 0"); e("v_mov_b32 v221, 0"); e("v_mov_b32 v222, 0x3f803f80"); e("v_mov_b32 v223, 0x3f803f80")
    e("s_mul_i32 s25, s19, 40960"); e(f"s_add_u32 s25, s25, {OBT}")
    e("s_lshl_b32 s51, s17, 10"); e("s_add_u32 s51, s51, s25"); e("s_add_u32 s52, s51, 20480")
    e("s_lshr_b32 s53, s17, 2"); e("s_add_u32 s53, s53, 16"); e("s_lshl_b32 s53, s53, 10"); e("s_add_u32 s53, s53, s25")
    e("s_and_b32 s54, s17, 1"); e("s_lshl_b32 s54, s54, 9"); e("s_add_u32 s53, s53, s54")
    e("s_bfe_u32 s54, s17, 0x10001"); e("s_lshl_b32 s54, s54, 3"); e("s_add_u32 s53, s53, s54"); e("s_add_u32 s54, s53, 20480")
    def c2():
        e("s_lshl_b32 s48, s16, 9"); e(f"s_add_u32 s48, s48, {C2}")
        e(f"v_lshlrev_b32 v{PV_+1}, 8, v1"); e(f"v_lshlrev_b32 v{PV_+2}, 3, v1"); e(f"v_sub_u32 v{PV_+2}, 16, v{PV_+2}")
        e("s_cmp_eq_u32 s16, 0"); e("s_cselect_b64 s[56:57], 1, 3")
    e("s_cmp_eq_u32 s18, 1"); e(f"s_cbranch_scc0 {nm}_ad"); e("v_lshlrev_b32 v16, 8, v1"); e("s_mov_b32 s49, 0")
    k.label(f"{nm}_ap")
    e(f"buffer_load_dword v17, v16, s[8:11], 0 offen offset:{C1} {SC}"); e("s_add_u32 s49, s49, 1"); e("s_waitcnt vmcnt(0)")
    e("v_cmp_gt_u32 vcc, 16, v17"); e("s_cmp_ge_u32 s49, 0x20000"); e(f"s_cbranch_scc1 {nm}_ad"); e(f"s_cbranch_vccnz {nm}_ap")
    k.label(f"{nm}_ad")
    wait_go(k, "p3", 1, c2)
    k.stamp(st0)
    ldA = gemm32_loads(k, RS_(xin))
    fl = k.capture(lambda: (gemm32_stats(k), e(f"v_mul_f32 v45, {fbits(CSCALE)}, v47")))
    def uops():
        for jf in range(4): k.dsop(f"ds_read_b64 {vr(50+2*jf,2)}, v43 offset:{UO+4096*jf}", "uo")
    tail = gemm32(k, False, fl, ldA, {6}, st0, (8, k.capture(uops)))
    def tab(jf):
        if jf == 0:
            for q in range(3): k.dsop(f"ds_write_b64 v215, v[220:221] offset:{40+8*q}")
            k.dsop("ds_write_b64 v219, v[222:223] offset:288")
        for G in range(8*jf, min(8*jf+8, 30), 2):
            a = ACC + 2*G
            for r in range(4): e(f"v_mul_f32 v{a+r}, v{a+r}, v{45 if G < 10 else 47}")
            for r in range(2): e(f"v_cvt_pk_bf16_f32 v{a+r}, v{a+2*r}, v{a+2*r+1}")
            k.dsop(f"ds_write_b64 v{ {8: 212, 32: 213}[toff(G+1) - toff(G)] }, {vr(a,2)} offset:{toff(G)}")
    def words():
        e("s_cmp_eq_u32 s18, 0"); e(f"s_cbranch_scc0 {nm}_ni"); lw_init(k); k.label(f"{nm}_ni")
    tail(tab, (0, 2), words)
    e("s_waitcnt lgkmcnt(0)"); e("s_barrier")
    KO = lambda b, h: 160 + 8*b + 4*h
    QO = lambda b, h: 184 + 8*(b-1) + 4*h
    VO = lambda F, b: 20 + 8*FEAF.index(F) + 2*b if False else 224 + 6*FEAF.index(F) + 2*b - (0)
    VO = lambda F, b: (128, 136, 144)[FEAF.index(F)] + 2*b
    for b in (1, 2):
        for h in range(2):
            for x in range(2): e(f"ds_read_b64 {vr(QO(b,h)+2*x,2)}, v216 offset:{16*b*TS+64*h+8*x}")
    for b in range(3):
        for h in range(2):
            for x in range(2): e(f"ds_read_b64 {vr(KO(b,h)+2*x,2)}, v216 offset:{16*b*TS+128+40*h+8*x}")
    e("s_waitcnt lgkmcnt(0)")
    for b in range(3):
        for h in range(2): e(f"ds_read_b64_tr_b16 {vr(VO(4+h,b),2)}, v217 offset:{16*b*TS+208+40*h}")
        e(f"ds_read_b64_tr_b16 {vr(VO(7,b),2)}, v218 offset:{16*b*TS}")
    units = [(b, h) for b in (1, 2) for h in range(2)]
    SU = lambda i: 64 + 8*i
    TU = lambda i: ACC + 32 + 4*i
    PU = lambda i: ACC + 48 + 4*i
    OU = lambda i: 64 + 8*i
    for i, (b, h) in enumerate(units):
        e(f"v_mfma_f32_16x16x32_bf16 {vr(SU(i),4)}, {vr(KO(b-1,h),4)}, {vr(QO(b,h),4)}, {vr(MP1 if b == 1 else MP,4)}")
        e(f"v_mfma_f32_16x16x32_bf16 {vr(SU(i)+4,4)}, {vr(KO(b,h),4)}, {vr(QO(b,h),4)}, {vr(MC,4)}")
    e("s_waitcnt lgkmcnt(0)"); e("s_barrier")
    def allred(op):
        for sw in ("v_permlane16_swap_b32", "v_permlane32_swap_b32"):
            for i in range(4): e(f"v_mov_b32 v{TU(i)+1}, v{TU(i)}")
            for i in range(4): e(f"{sw} v{TU(i)}, v{TU(i)+1}")
            for i in range(4): e(f"{op} v{TU(i)}, v{TU(i)}, v{TU(i)+1}")
    for i in range(4):
        s = SU(i)
        e(f"v_max3_f32 v{TU(i)}, v{s}, v{s+1}, v{s+2}"); e(f"v_max3_f32 v{TU(i)}, v{s+3}, v{s+4}, v{TU(i)}")
        e(f"v_max3_f32 v{TU(i)}, v{s+5}, v{s+6}, v{TU(i)}"); e(f"v_max_f32 v{TU(i)}, v{s+7}, v{TU(i)}")
    allred("v_max_f32")
    for i in range(4):
        for r in range(8): e(f"v_sub_f32 v{SU(i)+r}, v{SU(i)+r}, v{TU(i)}")
    for i in range(4):
        for r in range(8): e(f"v_exp_f32 v{SU(i)+r}, v{SU(i)+r}")
    for i in range(4):
        for r in range(4): e(f"v_cvt_pk_bf16_f32 v{PU(i)+r}, v{SU(i)+2*r}, v{SU(i)+2*r+1}")
    for i, (b, h) in enumerate(units):
        e(f"v_mfma_f32_16x16x32_bf16 {vr(OU(i)+4,4)}, {vr(VO(7,b-1),4)}, {vr(PU(i),4)}, 0")
    for i, (b, h) in enumerate(units):
        e(f"v_mfma_f32_16x16x32_bf16 {vr(OU(i),4)}, {vr(VO(4+h,b-1),4)}, {vr(PU(i),4)}, 0")
    for i in range(4): e(f"v_mov_b32 v{TU(i)}, v{OU(i)+4}"); e(f"v_mov_b32 v{TU(i)+1}, v{OU(i)+4}")
    for i in range(4): e(f"v_permlane32_swap_b32 v{TU(i)}, v{TU(i)+1}")
    for i in range(4): e(f"v_rcp_f32 v{TU(i)+1}, v{TU(i)+1}")
    e("v_cmp_eq_u32 vcc, 0, v6")
    for bi in range(2):
        o0, o1 = OU(2*bi), OU(2*bi+1); d = 40 + 8*bi; t0, t1 = TU(2*bi)+1, TU(2*bi+1)+1
        for r in range(4): e(f"v_mul_f32 v{o0+r}, v{o0+r}, v{t0}"); e(f"v_mul_f32 v{o1+r}, v{o1+r}, v{t1}")
        e(f"v_cvt_pk_bf16_f32 v{d}, v{o0}, v{o0+1}"); e(f"v_cvt_pk_bf16_f32 v{d+1}, v{o0+2}, v{o0+3}")
        e(f"v_cvt_pk_bf16_f32 v{d+2}, v{o1}, v{o1+1}"); e(f"v_cvt_pk_bf16_f32 v{d+3}, v{o1+2}, v{o1+3}")
        e(f"buffer_store_dwordx4 {vr(d,4)}, v3, s[12:15], s{51+bi} offen {SC}")
        e(f"v_cndmask_b32 v{t0}, v{t1}, v{t0}, vcc")
        for r in range(4): e(f"v_cndmask_b32 v{o0+4+r}, v{o1+4+r}, v{o0+4+r}, vcc")
        for r in range(4): e(f"v_mul_f32 v{o0+4+r}, v{o0+4+r}, v{t0}")
        e(f"v_cvt_pk_bf16_f32 v{d+4}, v{o0+4}, v{o0+5}"); e(f"v_cvt_pk_bf16_f32 v{d+5}, v{o0+6}, v{o0+7}")
    e("s_mov_b32 exec_hi, 0")
    for bi in range(2): e(f"buffer_store_dwordx2 {vr(44+8*bi,2)}, v3, s[12:15], s{53+bi} offen {SC}")

def qkvb_l(k, xin, stin, w):
    e = k.e; nm = k.name
    ids_mt(k)
    e("v_and_b32 v5, 15, v1"); e("v_lshrrev_b32 v6, 4, v1")
    e("v_lshlrev_b32 v11, 3, v5"); e("v_lshl_add_u32 v11, v6, 8, v11")
    e("v_cmp_eq_u32 vcc, 0, v6"); e("s_lshl_b32 s22, s16, 3"); e("s_max_u32 s22, s22, 1"); e("v_cndmask_b32 v4, 0, -1, vcc")
    e("s_sub_u32 s22, s22, 1")
    e("s_mul_i32 s24, s22, 20480"); e(f"s_add_u32 s24, s24, {xin}"); e("s_add_u32 s24, s24, s45")
    e("s_lshl_b32 s27, s22, 10"); e(f"s_add_u32 s27, s27, {stin}")
    HP = 49152
    e("v_lshrrev_b32 v12, 1, v6"); e("v_lshlrev_b32 v40, 12, v12"); e("v_and_b32 v12, 1, v6"); e("v_lshl_add_u32 v40, v12, 9, v40"); e("v_lshl_add_u32 v40, v5, 4, v40")
    e("s_lshl_b32 s32, s39, 13"); e("v_add_u32 v40, s32, v40"); e("v_add_u32 v41, 65536, v40"); e("v_add_u32 v42, 131072, v40")
    e("s_mul_i32 s33, s39, 6144"); e(f"s_add_u32 s33, s33, {HP}"); e("v_add_u32 v43, s33, v3")
    e("s_min_u32 s40, s39, 2"); e("s_lshl_b32 s41, s40, 11"); e(f"s_add_u32 s41, s41, {HP}"); e("v_add_u32 v44, s41, v3")
    e("s_lshl_b32 s41, s40, 12"); e("v_lshlrev_b32 v45, 3, v5"); e("v_add_u32 v45, s41, v45")
    e(f"v_mul_u32_u24 v12, {TS}, v5"); e(f"v_add_u32 v12, {TB}, v12"); e("s_lshl_b32 s41, s40, 3"); e("s_sub_u32 s41, s41, 2")
    for x in range(2):
        e(f"v_add_u32 v13, s41, v6")
        if x: e("v_add_u32 v13, 4, v13")
        e("v_add_u32 v14, 16, v13")
        e("v_cmp_gt_u32 vcc, 20, v13"); e("v_cndmask_b32 v14, 0, v14, vcc"); e(f"v_lshl_add_u32 v{50+x}, v14, 3, v12")
    e("v_mov_b32 v47, v12"); e("v_mov_b32 v56, 0x3f803f80"); e("v_mov_b32 v57, 0x3f803f80")
    atouch_pre(k, xin)
    e(f"s_setprio {ENV('P3PRIO', '0')}")
    e("s_barrier")
    if ENV('ATOUCH', '0'): k.vmop("buffer_load_dword v20, v21, s[12:15], s51 offen")
    w.one(39)
    e(f"ds_write_b64 v46, v[28:29] offset:{UO}")
    for q_ in range(2): k.vmop(f"buffer_load_dwordx2 {vr(24+2*q_,2)}, v11, s[12:15], s27 offen offset:{128*q_} {SC}", "st")
    for i in range(5):
        k.vmop(f"buffer_load_dwordx4 {vr(128+4*i,4)}, v3, s[12:15], s24 offen {SC}", f"h{i}")
        if i < 4: e("s_add_u32 s24, s24, 4096")
    k.waitvm("st")
    stats16(k, 24, 48, 52, 4)
    e("s_waitcnt lgkmcnt(0)"); e("s_barrier")
    def rd(n):
        i, j = n // 6, 2 + n % 6
        k.dsop(f"ds_read_b128 {vr(96+4*(n%6),4)}, v{40+i//2} offset:{(i%2)*32768+1024*(j//2)+256*(j%2)}", f"r{n}")
    for n in range(6): rd(n)
    for x in range(2): k.dsop(f"ds_read_b64 {vr(20+2*x,2)}, v45 offset:{UO+4096+512*x}", "u")
    for n in range(30):
        i = n // 6
        if n % 6 == 0: k.waitvm(f"h{i}")
        k.waitlg(f"r{n}")
        c = vr(148+4*(n%6), 4)
        e(f"v_mfma_f32_16x16x32_bf16 {c}, {vr(96+4*(n%6),4)}, {vr(128+4*i,4)}, {c if i else 0}")
        if n + 6 < 30: rd(n + 6)
    e("s_barrier")
    for n in range(6): e(f"ds_write_b128 v43, {vr(148+4*n,4)} offset:{1024*n}")
    e("s_waitcnt lgkmcnt(0)"); e("s_barrier")
    for p_ in range(4):
        for x in range(2): e(f"ds_read_b128 {vr(96+8*p_+4*x,4)}, v44 offset:{6144*p_+1024*x}")
    e("s_waitcnt lgkmcnt(0)")
    for r in range(8):
        e(f"v_add_f32 v{96+r}, v{96+r}, v{104+r}"); e(f"v_add_f32 v{112+r}, v{112+r}, v{120+r}"); e(f"v_add_f32 v{80+r}, v{96+r}, v{112+r}")
    for x in range(2): e(f"v_mfma_f32_16x16x16_bf16 {vr(80+4*x,4)}, {vr(20+2*x,2)}, v[52:53], {vr(80+4*x,4)}")
    for x in range(2): scale_pack(k, 80+4*x, lambda r: 48, 88+2*x)
    for x in range(2): e(f"ds_write_b64 v{50+x}, {vr(88+2*x,2)}")
    e("ds_write_b64 v47, v[56:57] offset:288")
    e(f"s_setprio {ENV('LPRIO', '2')}")
    e("s_waitcnt lgkmcnt(0)"); e("s_barrier")
    k.vm = []; k.lg = []

def one(k, target):
    k.e(f"v_mov_b32 v{PV_+1}, 0"); k.e(f"v_mov_b32 v{PV_+2}, {target}"); k.e("s_mov_b64 s[56:57], 1")

def kvpos(k):
    k.e("s_and_b32 s36, s19, 31"); k.e("s_lshl_b32 s36, s36, 1"); k.e("s_lshr_b32 s34, s19, 5"); k.e("s_add_u32 s36, s36, s34")
    k.e("s_add_u32 s36, s36, 44"); k.e("s_and_b32 s36, s36, 63")
def addr_v(k, img):
    e = k.e
    e("s_sub_u32 s35, s17, 10"); e("s_lshl_b32 s35, s35, 7")
    kvpos(k); e("s_mul_i32 s36, s36, 2560"); e(f"s_add_u32 s33, s36, {img+KVIMG+1280}")
    e("v_mul_u32_u24 v20, 320, v4")
    for jf in range(4):
        e(f"v_add_u32 v16, s35, v10")
        if jf: e(f"v_add_u32 v16, {32*jf}, v16")
        e("v_mul_u32_u24 v17, 52429, v16"); e("v_lshrrev_b32 v17, 20, v17")
        e("v_mul_u32_u24 v18, 20, v17"); e("v_sub_u32 v18, v16, v18")
        e("v_mul_u32_u24 v17, 163840, v17"); e("v_lshl_add_u32 v17, v18, 4, v17")
        e(f"v_add_u32 v{24+jf}, v17, v20")
def addr_qk(k, img, xm=52):
    e = k.e; k.xm = xm
    e("s_cmp_ge_u32 s17, 5")
    e(f"s_cselect_b32 s33, {QI}, 0"); e(f"s_cselect_b32 s59, 1.0, {fbits(CSCALE)}"); e("s_cselect_b32 s35, 5, 0"); e("s_cselect_b32 s37, 1, 0")
    e(f"s_add_u32 s33, s33, {img+QIMG}")
    e("s_sub_u32 s35, s17, s35")
    kvpos(k); e("s_cmp_eq_u32 s37, 0"); e("s_cselect_b32 s36, s19, s36")
    e("s_mul_i32 s36, s36, 1280"); e("s_lshl_b32 s36, s36, s37"); e("s_add_u32 s33, s33, s36")
    e("s_lshl_b32 s34, 81920, s37")
    e("v_lshlrev_b32 v16, 4, v10"); e("v_lshlrev_b32 v17, 3, v10")
    e("v_lshl_add_u32 v18, v4, 9, v16")
    e("s_sub_u32 s36, s34, 512"); e("v_and_b32 v19, s36, v59"); e("v_add_u32 v19, v19, v16")
    e(f"s_mov_b32 s{xm}, -1"); e(f"s_mov_b32 s{xm+1}, 0"); e(f"s_mov_b32 s{xm+2}, 0"); e(f"s_mov_b32 s{xm+3}, -1")
def epi_qk1(k, v, jf):
    e = k.e; A = G_ACC + 16*jf
    QSC = os.environ.get("QSC", "sc1")
    for r in range(16): e(f"v_mul_f32 v{A+r}, v{A+r}, v47")
    for r in range(8): e(f"v_cvt_pk_bf16_f32 v{A+r}, v{A+2*r}, v{A+2*r+1}")
    for a2 in range(2):
        x = A + 4*a2
        e(f"v_permlane32_swap_b32 v{x}, v{x+2}"); e(f"v_permlane32_swap_b32 v{x+1}, v{x+3}")
    for a2 in range(2):
        x = A + 4*a2
        G = [32*v+8*jf+4*a2, 32*v+8*jf+4*a2+2]
        def main(g):
            h = g // 5; r = g % 5
            return h, (r // 2 if h % 2 == 0 else (r - 1) // 2)
        st = [g % 10 == 4 for g in G]
        def hoff(dst, h):
            if not h: return 33
            e(f"s_mul_i32 s{dst}, s34, {h}"); e(f"s_add_u32 s{dst}, s{dst}, s33"); return dst
        if not any(st):
            (h0, p0), (h1, p1) = main(G[0]), main(G[1])
            assert (h0 == h1 and (p0, p1) == (0, 1)) or (h1 == h0 + 1 and (p0, p1) == (1, 0))
            e(f"buffer_store_dwordx4 {vr(x,4)}, v{18 if h0 == h1 else 19}, {k.srdo}, s{hoff(36, h0)} offen offset:{512*p0} {QSC}")
        else:
            m = st.index(False); q = 1 - m
            h, p = main(G[m]); s0 = hoff(36, h); s1 = hoff(37, G[q] // 5); e(f"s_add_u32 s38, s{s1}, s34")
            e(f"s_mov_b64 exec, s[{k.xm+2*m}:{k.xm+1+2*m}]")
            e(f"buffer_store_dwordx4 {vr(x,4)}, v16, {k.srdo}, s{s0} offen offset:{512*p} {QSC}")
            e(f"s_mov_b64 exec, s[{k.xm+2*q}:{k.xm+1+2*q}]")
            e(f"buffer_store_dwordx2 {vr(x,2)}, v17, {k.srdo}, s{s1} offen offset:1024 {QSC}")
            e(f"buffer_store_dwordx2 {vr(x+2,2)}, v17, {k.srdo}, s38 offen offset:1024 {QSC}")
            e("s_mov_b64 exec, -1")
def epi_v1(k, jf, RS):
    e = k.e; A = G_ACC + 16*jf
    for r in range(16): e(f"v_mul_f32 v{A+r}, v{A+r}, v{RS+r}")
    for r in range(8): e(f"v_cvt_pk_bf16_f32 v{A+r}, v{A+2*r}, v{A+2*r+1}")
    for u in range(2): e(f"buffer_store_dwordx4 {vr(A+4*u,4)}, v{24+jf}, {k.srdo}, s33 offen offset:{640*u} {os.environ.get('VSC', 'sc1')}")
def dispatch5(k, body):
    e = k.e; nm = k.name + k.ptag
    for v in range(1, 5):
        e(f"s_cmp_eq_u32 s35, {v}"); e(f"s_cbranch_scc1 {nm}_e{v}")
    vm, lg = list(k.vm), list(k.lg)
    for v in range(5):
        if v: k.label(f"{nm}_e{v}")
        k.vm, k.lg = list(vm), list(lg)
        body(v); e(f"s_branch {nm}_fin5")
def epi_qk(k, ACC, BF):
    dispatch5(k, lambda v: (k.e("s_nop 7"), [epi_qk1(k, v, jf) for jf in range(4)]))
def epi_v(k, ACC, BF, RS):
    for jf in range(4): epi_v1(k, jf, RS)

def qkva_c(k, xin, stin, img, cnt, wbar, st0):
    k.ptag = '_p5'; k.srdo = 's[12:15]'
    e = k.e; nm = k.name + k.ptag
    DA = 5
    PDA, PTN = ENV('PDA', '8'), ENV('PTN', '7')
    ACC, BF, AR, RS = 64, 128, 160, 224
    gemm32_pre(k, xin, stin)
    e("v_lshlrev_b32 v12, 4, v10")
    e("s_lshl_b32 s31, s17, 11"); e(f"s_add_u32 s31, s31, {U_A}")
    for jf in range(4): k.vmop(f"buffer_load_dwordx4 {vr(24+4*jf,4)}, v12, s[12:15], s31 offen offset:{512*jf}", "u")
    def c4(): one(k, 16); e("s_lshl_b32 s48, s16, 8"); e(f"s_add_u32 s48, s48, {cnt}")
    wait_go(k, "p5", 1, c4)
    k.stamp(st0)
    ldA = gemm32_loads(k, RS_(xin), PDA)
    def prolog(vmode):
        gemm32_stats(k)
        for jf in range(4): usum(k, 24+4*jf, 50+2*jf, 18)
        if vmode:
            e("v_lshlrev_b32 v16, 4, v4")
            for r in range(16):
                e(f"v_add_u32 v17, {(8*(r//4) + r%4)*4}, v16")
                k.dsop(f"ds_bpermute_b32 v{RS+r}, v17, v47", "rs")
            addr_v(k, img)
        else:
            addr_qk(k, img); e("v_mul_f32 v47, s59, v47")
    e("s_cmp_ge_u32 s17, 10"); e(f"s_cbranch_scc1 {nm}_qv")
    vm_save = list(k.vm)
    l5a = lambda: e("s_barrier")
    tail = gemm32(k, False, k.capture(lambda: prolog(False)), ldA, {w_ - 1 for w_ in wbar}, st0, None, PDA, PTN)
    dispatch5(k, lambda v: tail(lambda jf: epi_qk1(k, v, jf), (), l5a))
    k.label(f"{nm}_qv"); k.vm = vm_save; k.lg = []
    tail = gemm32(k, True, k.capture(lambda: prolog(True)), ldA, {w_ - 1 for w_ in wbar}, st0, None, PDA, PTN)
    tail(lambda jf: epi_v1(k, jf, RS), (), l5a)
    k.label(f"{nm}_fin5")

def ph_front(k):
    k.ptag = "_f"; k.srdo = "s[12:15]"
    e = k.e; nm = k.name + k.ptag; kn = k.name
    R, DEP, SCRB, UT = 4, 2, 131072, 65536
    need = lambda ks: ks // 2
    slot = lambda st: (st % R) * 32768
    e("s_cmp_ge_u32 s2, 256"); e(f"s_cbranch_scc1 {kn}_end"); k.stamp(0); k.rstamp(1)
    e("s_load_dwordx4 s[60:63], s[0:1], 0"); e("s_load_dwordx2 s[6:7], s[0:1], 64")
    e("s_load_dwordx2 s[4:5], s[0:1], 56")
    e("s_and_b32 s20, s2, 7"); e("s_lshr_b32 s21, s2, 3")
    e("v_lshrrev_b32 v2, 6, v0"); e("v_and_b32 v1, 63, v0")
    e("v_readfirstlane_b32 s18, v2")
    e("s_and_b32 s39, s18, 3"); e("s_lshl_b32 s45, s39, 10")
    ids_mt(k)
    e("v_lshlrev_b32 v3, 4, v1"); e(f"v_lshlrev_b32 v9, {ENV('BST', '6')}, v1")
    e("s_lshl_b32 s22, s2, 2"); e("s_add_u32 s22, s22, s39"); e("s_mul_i32 s23, s22, 2400")
    if ENV('XLOC', '1'): e("s_lshl_b32 s22, s20, 5"); e("s_add_u32 s22, s22, s21"); e("s_lshl_b32 s22, s22, 2"); e("s_add_u32 s22, s22, s39")
    e("s_mul_i32 s22, s22, 2560")
    def kwait():
        e("s_waitcnt lgkmcnt(0)")
        k.stamp(2)
        k.srd(8, 60, S*D*2); k.srd(28, 62, D*3*D*2); k.srd(12, 6, WS_END)
    def burst():
        if ENV('BURST', '1'):
            e("s_mov_b32 exec_hi, 0xff" if ENV('BST', '6') == 6 else "s_mov_b64 exec, 0xfffff")
            e(f"buffer_load_dword v240, v9, s[8:11], s22 offen {os.environ.get('XNT', '')}"); e(f"buffer_load_dword v241, v9, s[28:31], s23 offen {os.environ.get('WNT', '')}")
            e("s_mov_b64 exec, -1")
    def codepf(tg):
        if ENV('CPF', '1'):
            e("s_getpc_b64 s[34:35]"); k.label(f"{nm}_pc{tg}")
            e(f"s_sub_u32 s34, s34, {nm}_pc{tg} - {kn}"); e("s_subb_u32 s35, s35, 0")
            e("v_lshlrev_b32 v242, 4, v0"); e("s_lshl_b32 s36, s21, 12"); e("v_add_u32 v242, s36, v242")
            e(f"v_and_b32 v242, 0xffffffc0, v242"); e(f"v_min_u32 v242, code_end - {kn} - 4, v242")
            e("global_load_dword v243, v242, s[34:35]")
    e("s_cmp_ge_u32 s17, 15"); e(f"s_cbranch_scc1 {nm}_ub")
    e("v_and_b32 v10, 31, v1"); e("v_lshrrev_b32 v4, 5, v1"); e("v_and_b32 v5, 15, v1"); e("v_bfe_u32 v7, v1, 4, 1")
    e("v_lshrrev_b32 v13, 2, v5"); e("v_and_b32 v6, 3, v1")
    e("v_lshl_add_u32 v14, v4, 3, v13"); e("v_lshlrev_b32 v14, 8, v14"); e("v_lshl_add_u32 v14, v7, 5, v14"); e("v_lshl_add_u32 v14, v6, 3, v14")
    e("v_add_u32 v14, 16384, v14")
    def a0():
        e("s_lshl_b32 s48, s17, 11"); e(f"s_add_u32 s48, s48, {C0}"); e(f"v_lshlrev_b32 v{PV_+1}, 8, v1"); e("s_mov_b64 s[56:57], 0xff")
    SF = ENV('SF', '10')
    e("s_cmp_ge_u32 s18, 4"); e(f"s_cbranch_scc1 {nm}_ld")
    kwait(); burst(); codepf("c")
    if ENV('TLB', '1'):
        sh = ENV('TLBS', '18')
        e("s_load_dwordx4 s[84:87], s[0:1], 32"); e("s_load_dwordx2 s[88:89], s[0:1], 16")
        e(f"v_lshlrev_b32 v236, {sh}, v0" if sh < 21 else "v_lshlrev_b32 v236, 21, v1")
        e(f"v_min_u32 v236, {STAMPS-4}, v236")
        e("s_cmp_eq_u32 s18, 0" if sh == 21 else "s_cmp_lt_u32 s18, 4"); e(f"s_cbranch_scc0 {nm}_tl")
        e("buffer_load_dword v237, v236, s[12:15], 0 offen")
        e("v_and_b32 v236, 1, v1"); e("v_mul_u32_u24 v238, 819196, v236"); e("v_mul_u32_u24 v236, 2457596, v236"); e("s_mov_b64 exec, 3")
        e("s_waitcnt lgkmcnt(0)")
        e("global_load_dword v237, v236, s[84:85]"); e("global_load_dword v237, v238, s[86:87]"); e("global_load_dword v237, v238, s[88:89]")
        e("s_mov_b64 exec, -1")
        k.label(f"{nm}_tl")
        e("s_waitcnt lgkmcnt(0)")
    ACC, BF, AR, RS = 64, 128, 160, 200
    BA, AA = 216, 224
    e("s_lshl_b32 s19, s16, 2"); e("s_add_u32 s19, s19, s18")
    for jf in range(4):
        e(f"v_xor_b32 v15, {jf}, v13"); e(f"v_lshl_add_u32 v{BA+jf}, v15, 6, v14"); e(f"v_add_u32 v{BA+4+jf}, 65536, v{BA+jf}")
    e("v_lshl_add_u32 v15, v2, 5, v10"); e("v_lshlrev_b32 v15, 7, v15"); e("v_bfe_u32 v12, v10, 1, 3"); e("v_xor_b32 v12, v12, v4")
    for q in range(4):
        e(f"v_xor_b32 v11, {2*q}, v12"); e(f"v_lshl_add_u32 v{AA+q}, v11, 4, v15"); e(f"v_add_u32 v{AA+4+q}, 65536, v{AA+q}")
    e("v_mul_u32_u24 v8, 20480, v7"); e("v_lshl_add_u32 v8, v4, 8, v8"); e("v_lshl_add_u32 v8, v5, 4, v8")
    e("s_mul_i32 s24, s19, 40960"); e(f"s_add_u32 s24, s24, {XI}")
    e("v_subrev_u32 v58, 1, v4"); e("v_not_b32 v59, v58")
    e("s_lshl_b32 s40, s2, 2"); e("s_add_u32 s40, s40, s39"); e("s_mul_i32 s40, s40, 8192"); e(f"s_add_u32 s40, s40, {QIMG}"); e("v_lshlrev_b32 v238, 7, v1")
    e("s_cmp_ge_u32 s17, 10"); e(f"s_cbranch_scc1 {nm}_qv")
    FTN = ENV('FTN', '2'); K1 = 20 - FTN
    def mainloop(vmode):
        tagm = "v" if vmode else "q"
        acc = lambda jf: vr(ACC+16*jf, 16)
        fl = k.capture(lambda: addr_v(k, 0) if vmode else addr_qk(k, 0, 28))
        ops = [(ks, f//4, f%4) for ks in range(K1) for f in range(8)] + [(ks, u, jf) for jf in range(4) for ks in range(K1, 20) for u in range(2)]
        kb = [-1]; na = [0]
        def rdA(ks):
            sl = slot(ks//2)
            for u in range(2): k.dsop(f"ds_read_b128 {vr(AR+8*(ks%4)+4*u,4)}, v{AA+4*(sl>>16)+2*(ks%2)+u} offset:{sl & 0xffff}", f"a{ks}")
        def rd(i):
            ks, u, jf = ops[i]; sl = slot(ks//2)
            while kb[0] < need(ks): e("s_barrier"); kb[0] += 1
            while na[0] <= ks: rdA(na[0]); na[0] += 1
            for t in range(2):
                off = sl + (32*(ks%2) + 16*u + 4*t)*256
                k.dsop(f"ds_read_b64_tr_b16 {vr(BF+4*(i%8)+2*t,2)}, v{BA+4*(sl>>16)+jf} offset:{off & 0xffff}", f"b{i}")
        def mm(i):
            ks, u, jf = ops[i]
            if i % 2 == 0: k.waitlg(f"b{i+1}")
            a = vr(AR+8*(ks%4)+4*u, 4); b = vr(BF+4*(i%8), 4); c = acc(jf) if (ks or u) else "0"
            if vmode: e(f"v_mfma_f32_32x32x16_bf16 {acc(jf)}, {a}, {b}, {c}")
            else:     e(f"v_mfma_f32_32x32x16_bf16 {acc(jf)}, {b}, {a}, {c}")
            if i + 8 < 160: rd(i + 8)
        def xst(ks, tg):
            e(f"s_cmp_eq_u32 s17, {ks % 15}"); e(f"s_cbranch_scc0 {nm}_x{tg}{ks}")
            e(f"s_add_u32 s32, s24, {1024*ks}")
            for u in range(2): e(f"buffer_store_dwordx4 {vr(AR+8*(ks%4)+4*u,4)}, v8, s[12:15], s32 offen offset:{512*u} {SC}")
            k.label(f"{nm}_x{tg}{ks}")
        for i in range(8):
            rd(i)
            if i == 0: k.stamp(3)
        for ks in range(K1):
            for f in range(8):
                mm(8*ks + f)
                if ks >= 4: k.fill(fl, 1)
            xst(ks, tagm)
            if ks in (0, 1, 4, 9, 10, 14): k.stamp(7 + (0, 1, 4, 9, 10, 14).index(ks))
        assert not fl
        e(f"v_lshlrev_b32 v23, 2, v10"); e(f"v_add_u32 v23, {UT}, v23"); e("s_lshl_b32 s32, s18, 8"); e("v_add_u32 v22, s32, v23")
        if vmode: e("v_lshlrev_b32 v21, 4, v4"); e(f"s_add_u32 s32, s32, {UT}"); e("v_add_u32 v21, s32, v21")
        for n in range(2*FTN): mm(8*K1 + n)
        for ks in range(K1, 20): xst(ks, tagm)
        assert kb[0] == 9
        k.stamp(4)
        e("s_barrier")
        k.dsop("ds_read_b32 v48, v22 offset:1024", "u"); k.dsop("ds_read_b32 v49, v22 offset:1152", "u")
        for jf in range(4): k.dsop(f"ds_read_b32 v{28+2*jf}, v23 offset:{256*jf}", "u"); k.dsop(f"ds_read_b32 v{29+2*jf}, v23 offset:{256*jf+128}", "u")
        if vmode:
            for a_ in range(4): k.dsop(f"ds_read_b128 {vr(RS+4*a_,4)}, v21 offset:{2048+32*a_}", "u")
        else: k.dsop("ds_read_b32 v47, v22 offset:2048", "u")
        def corr(jf):
            if vmode: e(f"v_mfma_f32_32x32x8_bf16 {acc(jf)}, v[48:49], {vr(28+2*jf,2)}, {acc(jf)}")
            else:     e(f"v_mfma_f32_32x32x8_bf16 {acc(jf)}, {vr(28+2*jf,2)}, v[48:49], {acc(jf)}")
        for n in range(2): mm(8*K1 + 2*FTN + n)
        k.waitlg("u")
        e("v_and_b32 v48, v48, v58"); e("v_and_b32 v49, v49, v58")
        if not vmode: e("v_mul_f32 v47, s59, v47")
        corr(0)
        k.stamp(5)
        def tail(epi):
            pend = k.capture(lambda: epi(0))
            for jf in range(1, 4):
                for n in range(2 if jf == 1 else 0, 2*FTN):
                    mm(8*K1 + 2*FTN*jf + n)
                    if n >= (4 if jf == 1 else 2): k.fill(pend, ENV('TFILL', '4'))
                corr(jf)
                k.fill(pend, 1000)
                pend = k.capture(lambda: epi(jf))
            k.fill(pend, 1000)
        return tail
    tail = mainloop(False)
    dispatch5(k, lambda v: tail(lambda jf: epi_qk1(k, v, jf)))
    k.label(f"{nm}_qv"); k.lg = []
    tail = mainloop(True)
    tail(lambda jf: epi_v1(k, jf, RS))
    k.label(f"{nm}_fin5")
    k.stamp(6)
    e("s_barrier")
    signal(k, "sf", -1, 8, a0, 0, "s[12:15]")
    k.dump(13)
    e(f"s_branch {kn}_t0")
    k.label(f"{nm}_ld"); k.vm = []; k.lg = []
    e(f"s_setprio {ENV('LPRIO', '2')}")
    e("v_lshrrev_b32 v16, 4, v1"); e("v_and_b32 v17, 3, v2")
    e("v_lshl_add_u32 v18, v17, 2, v16"); e("v_mul_u32_u24 v20, 3840, v18")
    e("v_xor_b32 v18, v13, v16"); e("v_lshl_add_u32 v20, v18, 6, v20"); e("v_lshl_add_u32 v20, v6, 4, v20")
    e("v_lshrrev_b32 v18, 3, v1"); e("v_lshl_add_u32 v19, v17, 5, v18"); e("v_and_b32 v23, 7, v1")
    for i in range(4):
        e(f"v_add_u32 v42, {8*i}, v19"); e("v_bfe_u32 v43, v42, 1, 3"); e("v_xor_b32 v43, v43, v23")
        e("v_mul_u32_u24 v42, 1280, v42"); e(f"v_lshl_add_u32 v{48+i}, v43, 4, v42")
        if i: e(f"v_subrev_u32 v{48+i}, {1024*i}, v{48+i}")
    e("s_lshl_b32 s25, s17, 8"); e("s_mul_i32 s24, s16, 163840"); e("s_lshl_b32 s26, s39, 12")
    def ld1(st, n):
        if n < 4:
            e(f"s_add_u32 m0, s45, {slot(st)+16384+4096*n}"); e(f"s_add_u32 s32, s25, {(64*st+16*n)*3840}")
            k.vmop(f"buffer_load_dwordx4 v20, s[28:31], s32 offen {os.environ.get('WNT2', '')} lds", f"d{st}")
        else:
            e(f"s_add_u32 m0, s26, {slot(st)}"); e(f"s_add_u32 s33, s24, {128*st}")
            k.vmop(f"buffer_load_dwordx4 v{44+n}, s[8:11], s33 offen offset:{1024*(n-4)} {os.environ.get('XNT2', '')} lds", f"d{st}")
    ORD = [0, 4, 1, 5, 2, 6, 3, 7]
    def ld(st):
        for n in ORD: ld1(st, n)
    kwait(); ld(0)
    e("v_xor_b32 v15, v17, v13"); e("v_lshl_add_u32 v40, v15, 6, v14"); e("v_add_u32 v41, 65536, v40")
    e("v_and_b32 v42, 1, v16"); e("v_cmp_eq_u32 vcc, v42, v5"); e("v_mov_b32 v43, 0x3f803f80")
    for r in range(4): e(f"v_cndmask_b32 v{60+r}, 0, v43, vcc")
    k.srd(52, 4, 256)
    e("s_mul_i32 s27, s17, 163840"); e("s_add_u32 s27, s27, s45"); e(f"s_add_u32 s27, s27, {WA_I}")
    if ENV('LD1', '0'): ld(1)
    done = [0]
    def steps_of(kb):
        r = []
        while done[0] < 20 and need(done[0]) <= kb: r.append(done[0]); done[0] += 1
        return r
    def wa_store(q):
        e("s_lshl_b32 s32, s16, 13"); e("s_add_u32 s32, s32, s27")
        if q: e("s_add_u32 s32, s32, 131072")
        e("s_add_u32 s33, s32, 4096")
        for u in range(2): k.vmop(f"buffer_store_dwordx4 {vr(112+8*q+4*u,4)}, v3, s[12:15], s{32+u} offen {SC}")
    for kb in range(10):
        if kb == 5: k.stamp(5)
        k.waitvm(f"d{kb}")
        if kb == 5: k.stamp(6)
        e("s_barrier")
        if kb in (4, 5): k.stamp(2 if kb == 4 else 7)
        if kb == 0 and not ENV('LD1', '0'): ld(1)
        sl = slot(kb); todo = list(ORD) if kb + DEP < 10 else []
        nxt = lambda: ld1(kb + DEP, todo.pop(0)) if todo else None
        sts = steps_of(kb)
        for n_, ks in enumerate(sts):
            for u in range(2):
                for t in range(2):
                    e(f"ds_read_b64_tr_b16 {vr(136+8*n_+4*u+2*t,2)}, v{40+(sl>>16)} offset:{(sl + (32*(ks%2) + 16*u + 4*t)*256) & 0xffff}")
        nxt(); nxt()
        if kb == 4: k.stamp(3)
        e("s_waitcnt lgkmcnt(0)")
        mf = [(n_, ks, u) for n_, ks in enumerate(sts) for u in range(2)]
        for n_, ks, u in mf:
            e(f"v_mfma_f32_16x16x32_bf16 v[64:67], v[60:63], {vr(136+8*n_+4*u,4)}, {'v[64:67]' if ks or u else 0}")
            nxt()
        nxt(); nxt()
        if kb == 4: k.stamp(4)
        for n_, ks in enumerate(sts):
            e(f"s_cmp_eq_u32 s16, {ks % 16}"); e(f"s_cbranch_scc0 {nm}_w{ks}")
            for r in range(8): e(f"v_mov_b32 v{112+8*(ks//16)+r}, v{136+8*n_+r}")
            k.label(f"{nm}_w{ks}")
        assert not todo
        if kb == 8:
            e("v_and_b32 v24, 15, v1"); e("v_lshlrev_b32 v24, 2, v24"); e("s_mov_b32 s33, 0")
            k.label(f"{nm}_pl")
            e(f"buffer_load_dword v25, v24, s[52:55], 0 offen {SC}"); e("s_add_u32 s33, s33, 1"); e("s_waitcnt vmcnt(0)"); k.vm = []
            e("v_cmp_eq_u32 vcc, 0, v25"); e("s_cmp_ge_u32 s33, 0x20000"); e(f"s_cbranch_scc1 {nm}_px")
            e(f"s_cbranch_vccnz {nm}_pl")
            k.label(f"{nm}_px")
            e("v_lshlrev_b32 v24, 3, v10"); e("s_lshl_b32 s32, s16, 10"); e("s_lshl_b32 s33, s39, 8"); e("s_add_u32 s32, s32, s33"); e(f"s_add_u32 s32, s32, {STI}")
            k.vmop(f"buffer_load_dwordx2 v[44:45], v24, s[12:15], s32 offen {SC}", "rs")
        if kb == 9: k.waitvm("rs"); wa_store(0)
    k.waitvm("rs")
    stats_finish(k, 44, 45, 28, 29, 30)
    e("v_lshlrev_b32 v42, 2, v5"); e("ds_bpermute_b32 v68, v42, v64"); e("ds_bpermute_b32 v69, v42, v65"); e("v_cmp_eq_u32 vcc, 1, v7")
    split3(k, 28, 32, 36, 'm')
    e("s_waitcnt lgkmcnt(0)"); e("v_cndmask_b32 v64, v68, v69, vcc")
    split3(k, 64, 34, 36, 'u')
    e("v_lshlrev_b32 v24, 2, v10"); e("s_lshl_b32 s32, s39, 8"); e(f"s_add_u32 s32, s32, {UT}"); e("v_add_u32 v24, s32, v24")
    e("ds_write_b32 v24, v34"); e("ds_write_b32 v24, v35 offset:128"); e("ds_write_b32 v24, v32 offset:1024"); e("ds_write_b32 v24, v33 offset:1152"); e("ds_write_b32 v24, v29 offset:2048")
    e("s_waitcnt lgkmcnt(0)"); e("s_barrier")
    lwc_init(k); e("s_barrier")
    e("v_mov_b32 v44, v64")
    e("s_cmp_ge_u32 s16, 4"); e(f"s_cbranch_scc1 {nm}_le"); wa_store(1)
    e("s_cmp_eq_u32 s16, 0"); e(f"s_cbranch_scc0 {nm}_le")
    e("v_mov_b32 v45, 0"); e("v_mov_b32 v46, 0"); e("v_mov_b32 v47, 0"); e("v_lshlrev_b32 v24, 4, v10")
    e("s_lshl_b32 s32, s17, 11"); e("s_lshl_b32 s33, s39, 9"); e("s_add_u32 s32, s32, s33"); e(f"s_add_u32 s32, s32, {U_A}")
    e("s_mov_b32 exec_hi, 0"); e(f"buffer_store_dwordx4 v[44:47], v24, s[12:15], s32 offen {SC}")
    k.label(f"{nm}_le")
    e("s_mov_b64 exec, -1")
    signal(k, "sfl", -1, 8, a0, 0, "s[12:15]")
    k.dump(8)
    e(f"s_branch {kn}_t0")
    k.label(f"{nm}_ub"); k.vm = []; k.lg = []
    kwait()
    e("v_lshrrev_b32 v4, 3, v1"); e("v_lshl_add_u32 v4, v2, 4, v4"); e("v_mul_u32_u24 v5, 1280, v4"); e("v_and_b32 v6, 7, v1"); e("v_lshl_add_u32 v5, v6, 4, v5")
    e("s_mul_i32 s24, s16, 163840"); e("s_add_u32 s25, s24, 10240")
    for b_ in range(2):
        for i in range(10): k.vmop(f"buffer_load_dwordx4 {vr(24+40*b_+4*i,4)}, v5, s[8:11], s{24+b_} offen offset:{128*i} {os.environ.get('XNT2', '')}", f"x{b_}{i}")
    for j in range(8): e(f"v_mov_b32 v{8+j}, 0")
    e("v_mov_b32 v7, 0x3f803f80")
    e("v_lshlrev_b32 v16, 4, v0"); e("s_and_b32 s26, s16, 7"); e("s_lshl_b32 s26, s26, 13"); e(f"s_add_u32 s26, s26, {CNT}"); e("s_cmp_ge_u32 s16, 8"); e(f"s_cselect_b32 s27, {LS}, 0"); e("s_add_u32 s26, s26, s27")
    k.vmop(f"buffer_store_dwordx4 v[12:15], v16, s[12:15], s26 offen {SC}")
    for b_ in range(2):
        for i in range(10):
            k.waitvm(f"x{b_}{i}")
            for q in range(4):
                r = 24+40*b_+4*i+q
                e(f"v_dot2_f32_bf16 v{8+2*b_}, v{r}, v7, v{8+2*b_}"); e(f"v_dot2_f32_bf16 v{9+2*b_}, v{r}, v{r}, v{9+2*b_}")
    for dpp in ("quad_perm:[1,0,3,2]", "quad_perm:[2,3,0,1]", "row_half_mirror"):
        for q in range(4): e(f"v_add_f32_dpp v{8+q}, v{8+q}, v{8+q} {dpp} row_mask:0xf bank_mask:0xf")
    e("v_lshlrev_b32 v4, 3, v4"); e("s_lshl_b32 s26, s16, 10"); e(f"s_add_u32 s26, s26, {STI}")
    e("v_cmp_eq_u32 vcc, 0, v6"); k.srd(52, 4, 256); e("s_mov_b64 exec, vcc")
    e(f"buffer_store_dwordx2 v[8:9], v4, s[12:15], s26 offen {SC}"); e(f"buffer_store_dwordx2 v[10:11], v4, s[12:15], s26 offen offset:64 {SC}")
    e("s_mov_b64 exec, -1"); lwc_init(k)
    e("s_waitcnt vmcnt(0)"); e("s_barrier")
    e("s_cmp_ge_u32 s18, 4"); e(f"s_cbranch_scc1 {nm}_u2")
    codepf("u")
    e("s_cmp_eq_u32 s18, 0"); e(f"s_cbranch_scc0 {nm}_u2")
    e("v_mov_b32 v4, 0"); e("v_mov_b32 v5, 1"); e("s_lshl_b32 s26, s16, 2"); e("s_mov_b64 exec, 1")
    e(f"buffer_store_dword v5, v4, s[52:55], s26 offen {SC}")
    e("s_mov_b64 exec, 0xffff"); e("v_lshlrev_b32 v4, 2, v1"); e("s_mov_b32 s33, 0")
    k.label(f"{nm}_u1")
    e(f"buffer_load_dword v5, v4, s[52:55], 0 offen {SC}"); e("s_add_u32 s33, s33, 1"); e("s_waitcnt vmcnt(0)")
    e("v_cmp_eq_u32 vcc, 0, v5"); e("s_cmp_ge_u32 s33, 0x20000"); e(f"s_cbranch_scc1 {nm}_u2"); e(f"s_cbranch_vccnz {nm}_u1")
    k.label(f"{nm}_u2")
    e("s_mov_b64 exec, -1"); e("s_waitcnt vmcnt(0)")

def k_main():
    k = KB(NAME + "_kernel"); e = k.e; name = k.name
    ph_front(k)
    k.label(f"{name}_t0")
    e("s_load_dwordx2 s[46:47], s[0:1], 48"); e("s_mov_b32 s3, 0")
    k.srd(8, 6, 2*LS)
    e("s_waitcnt lgkmcnt(0)")
    k.srd(60, 46, S*D*2)
    k.label(f"{name}_top")
    k.vm = []; k.lg = []
    e("s_setprio 0"); k.stamp(0); k.rstamp(1)
    ph_attn(k)
    def a1():
        e("s_lshl_b32 s48, s17, 3"); e("s_and_b32 s49, s16, 1"); e("s_add_u32 s48, s48, s49"); e("s_lshl_b32 s48, s48, 8"); e(f"s_add_u32 s48, s48, {C1}")
        e(f"v_lshlrev_b32 v{PV_+1}, 9, v1"); e("s_mov_b64 s[56:57], 15")
    e("s_cmp_ge_u32 s18, 4"); e(f"s_cbranch_scc1 {name}_ld")
    signal(k, "s1", 0, 8, a1)
    def c1():
        e("s_lshl_b32 s48, s16, 9"); e(f"s_add_u32 s48, s48, {C1}")
        e(f"v_lshlrev_b32 v{PV_+1}, 8, v1"); e(f"v_mov_b32 v{PV_+2}, 16"); e("s_mov_b64 s[56:57], 3")
    proj_c(k, "p2", OT, XI, XM, STM, False, c1, 0, 6)
    def a2():
        e("s_lshr_b32 s48, s16, 1"); e("s_lshl_b32 s48, s48, 9"); e(f"s_add_u32 s48, s48, {C2}")
        e(f"v_mul_u32_u24 v{PV_+1}, 768, v1"); e("s_bitcmp1_b32 s16, 0"); e("s_cselect_b64 s[56:57], 3, 1")
    signal(k, "s2", 1, 4, a2)
    qkvb_c(k, XM, STM, 9)
    def a3(): one(k, 0); e("s_lshl_b32 s48, s16, 8"); e(f"s_add_u32 s48, s48, {C3}")
    signal(k, "s3", 0, 4, a3)
    def c3(): one(k, 16); e("s_lshr_b32 s48, s16, 1"); e("s_lshl_b32 s48, s48, 8"); e(f"s_add_u32 s48, s48, {C3}")
    proj_c(k, "p4", OBT, XM, XI, STI, True, c3, 0, 12)
    def a4(): one(k, 0); e("s_lshr_b32 s48, s16, 1"); e("s_lshl_b32 s48, s48, 8"); e(f"s_add_u32 s48, s48, {C4}")
    signal(k, "s4", 1, 4, a4)
    k.dump(15, "1")
    ids_mt(k)
    e("s_cmp_ge_u32 s17, 15"); e(f"s_cbranch_scc1 {name}_idle")
    qkva_c(k, XI, STI, 0, C4, [7], 3)
    k.stamp(6)
    e("s_barrier")
    def a5(): e("s_lshl_b32 s48, s17, 11"); e(f"s_add_u32 s48, s48, {LS + C0}"); e(f"v_lshlrev_b32 v{PV_+1}, 8, v1"); e("s_mov_b64 s[56:57], 0xff")
    signal(k, "s5", -1, 4, a5)
    k.dump(7, "3")
    k.label(f"{name}_t1")
    e("s_mov_b32 s3, 1"); e(f"s_add_u32 s8, s8, {LS}"); e("s_addc_u32 s9, s9, 0"); e(f"s_mov_b32 s10, {LS}")
    e(f"s_branch {name}_top")
    k.label(f"{name}_idle")
    for _ in range(4): e("s_barrier")
    e(f"s_branch {name}_t1")
    k.label(f"{name}_ld"); k.vm = []; k.lg = []
    if os.environ.get("FOC") == "at": e("s_add_u32 s84, s3, 4"); k.dump(8, "s84")
    e(f"s_setprio {ENV('LPRIO', '2')}")
    w = proj_l(k, WOA_I, WB_I, OT, a1, EARLY)
    qkvb_l(k, XM, STM, w)
    w = proj_l(k, WOB_I, WA_I, OBT, None, 0, True)
    ids_mt(k)
    atouch_pre(k, XI)
    e("s_barrier")
    w.one(39); e("s_waitcnt vmcnt(0)"); e("s_barrier")
    e("s_barrier"); lwc_init(k); e("s_barrier")
    e(f"s_branch {name}_t1")
    k.label(f"{name}_end"); e("s_endpgm")
    k.tail()
    return k.text(256 if STAMP else 244, 256 if STAMP else 244)

DOC = """
;   2 x [ full attention -> out projection + residual -> QKV + dilated local attention -> out projection + residual -> next QKV ]
; Hand-offs between workgroups: write-through (sc1) stores, s_waitcnt vmcnt(0), one agent-scope atomic per workgroup on a
; counter in d_ws (zeroed in this launch, published through d_debug), bounded polling, sc1 loads.  Placement only affects speed.
; Full attention: exp2(s) with 0 standing in for the row max; the row sum and the output are range-checked at run time and
; a wave whose check fails recomputes its rows with the true row max (label *_slow).  Local attention subtracts the true max.
"""
def build():
    hdr = open("cdna_kernels/" + NAME + ".s.ref").read().split("; Override launch")[0]
    out = hdr + "; @launch grid=(256,1,1) block=(512,1,1) lds=163840\n"
    out += '.amdgcn_target "amdgcn-amd-amdhsa--gfx950"\n'
    out += DOC
    out += k_main()
    out += ".text\ncode_end:\n"
    return out

if __name__ == "__main__":
    dst = sys.argv[1] if len(sys.argv) > 1 else "cdna_kernels/" + NAME + ".s"
    open(dst, "w").write(build())
    print("wrote", dst)
```

```python
import sys, math
from lint import lint, fix

NAME = "interleave_layers__softmax_full_mha__sliding_local_dilated__prompt"
S, D, H, DH = 2048, 640, 32, 20
XS = S*D*2
IMG = H*64*2560
QI = H*64*1280
CNT = 0
C1 = CNT; C2 = C1 + 64*256; C3 = C2 + 34*256; C4 = C3 + 16*256; C0 = C4 + 16*256
LS = 65536
CS = LS + C4
XI = 2*LS; STI = XI + XS
QIMG = STI + S*64; KVIMG = QIMG + QI
OT = KVIMG + IMG; OBT = OT + XS; XM = OBT + XS
STM = XM + XS
U_A = STM + S*64
U_B = U_A + 32768
WA_I = U_B + 163840
WOA_I = WA_I + 15*163840
WB_I = WOA_I + 819200
WOB_I = WB_I + 16*163840
STAMPS = WOB_I + 819200
WS_END = STAMPS + 16*262144
import os
STAMP = int(os.environ.get("STAMP", "0"))
ATTN_WAVES = 8
AV = os.environ.get("AV", "")
CSCALE = (DH ** -0.5) * math.log2(math.e)
import struct
def fbits(x): return "0x%08x" % struct.unpack("<I", struct.pack("<f", x))[0]

FM = [(0,16),(32,48),(80,96),(112,128),(64,144)]
def FX(ks, t):
    return 160*(ks//5) + FM[ks%5][t]

class KB:
    def __init__(s, name):
        s.name = name; s.L = []; s.vm = []; s.lg = []; s.cap = None
    def e(s, line):
        if s.cap is not None: s.cap.append(('e', line, None))
        else: s.L.append("    " + line)
    def capture(s, fn):
        s.cap = []; fn(); c = s.cap; s.cap = None
        return [x for x in c if not (x[0] == 'e' and x[1].startswith('s_nop'))]
    def fill(s, lst, n=1):
        for _ in range(n):
            if not lst: return
            kind, a, b = lst.pop(0)
            if kind == 'e':
                s.e(a)
                if a.startswith('s_mov_b64 exec, s['):
                    while True:
                        x = lst.pop(0)[1]; s.e(x)
                        if x == 's_mov_b64 exec, -1': break
                if a.startswith('s_cmp'):
                    while lst and lst[0][0] == 'e' and lst[0][1].startswith('s_cselect'): s.e(lst.pop(0)[1])
            elif kind == 'ds': s.dsop(a, b)
            elif kind == 'wvm': s.waitvm(a)
            elif kind == 'wlg': s.waitlg(a)
    def c(s, txt): s.L.append("    ; " + txt)
    def label(s, l): s.L.append(l + ":")
    def vmop(s, line, tag=None): s.e(line); s.vm.append(tag); assert len(s.vm) <= 63, (s.name, len(s.vm))
    def dsop(s, line, tag=None):
        if s.cap is not None: s.cap.append(('ds', line, tag)); return
        s.e(line); s.lg.append(tag)
    def _n(s, lst, tag):
        idx = max(i for i, t in enumerate(lst) if t == tag)
        return idx
    def waitvm(s, tag):
        if s.cap is not None: s.cap.append(('wvm', tag, None)); return
        if tag not in s.vm: return
        i = s._n(s.vm, tag); n = len(s.vm) - 1 - i
        s.e(f"s_waitcnt vmcnt({n})"); s.vm = s.vm[i+1:]
    def waitlg(s, tag):
        if s.cap is not None: s.cap.append(('wlg', tag, None)); return
        if tag not in s.lg: return
        i = s._n(s.lg, tag); n = len(s.lg) - 1 - i
        if n > 15: n = 15; i = len(s.lg) - 1 - n
        s.e(f"s_waitcnt lgkmcnt({n})"); s.lg = s.lg[i+1:]
    def waitall(s):
        s.e("s_waitcnt vmcnt(0) lgkmcnt(0)"); s.vm = []; s.lg = []
    def srd(s, r, base, nbytes):
        s.e(f"s_mov_b32 s{r}, s{base}")
        s.e(f"s_and_b32 s{r+1}, s{base+1}, 0xffff")
        s.e(f"s_mov_b32 s{r+2}, {nbytes}")
        s.e(f"s_mov_b32 s{r+3}, 0x20000")
    def stamp(s, i):
        if not STAMP: return
        op = "s_memrealtime" if os.environ.get("RT") else "s_memtime"
        s.e(f"{op} s[{64+2*i}:{65+2*i}]" if i < 10 else f"{op} s[{72+2*i}:{73+2*i}]")
    def rstamp(s, i):
        if not STAMP: return
        s.e(f"s_memrealtime s[{64+2*i}:{65+2*i}]")
    def dump(s, n=8, slot="0", wave="s18"):
        if not STAMP: return
        e = s.e
        if os.environ.get("DBG"):
            keep = {"0": [(1, 246), (3, 247), (6, 248)], "1": [(2, 249), (5, 250), (14, 251)], "3": [(6, 252)], "2": [(2, 253), (5, 254), (14, 255)]}[slot]
            e("s_waitcnt lgkmcnt(0)")
            if n < 7 or (slot == "0" and n == 8): return
            for i, v in keep: e(f"v_mov_b32 v{v}, s{64+2*i if i < 10 else 72+2*i}")
            if slot == "2":
                e(f"s_cmp_eq_u32 s2, {os.environ['DBG']}"); e("s_cbranch_scc0 dbg_skip"); e("s_cmp_eq_u32 s18, 0"); e("s_cbranch_scc0 dbg_skip")
                e("s_load_dwordx2 s[84:85], s[0:1], 56"); e("s_memrealtime s[86:87]"); e("s_waitcnt lgkmcnt(0)")
                s.srd(88, 84, 256); e("s_mov_b64 exec, 1"); e("v_mov_b32 v0, 0"); e("v_mov_b32 v245, s86"); e("v_sub_u32 v245, v245, v246")
                for i in range(9):
                    e(f"v_sub_u32 v{247+i}, v{247+i}, v246"); e(f"buffer_store_dword v{247+i}, v0, s[88:91], 0 offen offset:{4*i}")
                e("buffer_store_dword v245, v0, s[88:91], 0 offen offset:36")
                s.label("dbg_skip")
            return
        e("s_memrealtime s[86:87]"); e("s_waitcnt lgkmcnt(0)")
        e("s_mov_b64 exec, 1")
        e(f"s_lshl_b32 s84, {slot}, 18")
        e("s_lshl_b32 s85, s2, 3"); e(f"s_add_u32 s85, s85, {wave}"); e("s_lshl_b32 s85, s85, 6"); e(f"s_add_u32 s85, s85, {STAMPS}"); e("s_add_u32 s85, s85, s84")
        e("v_mov_b32 v244, 0")
        for i in range(n):
            e(f"v_mov_b32 v245, s{64+2*i if i < 10 else 72+2*i}")
            e(f"buffer_store_dword v245, v244, s[12:15], s85 offen offset:{4*i}")
        e("v_mov_b32 v245, s86"); e("buffer_store_dword v245, v244, s[12:15], s85 offen offset:60")
        e("s_mov_b64 exec, -1")
    def text(s, vgpr, accum, sgpr=102):
        s.L, added = fix(s.L)
        if os.environ.get("V"): print(s.name, "auto nops:", added, "lines:", len(s.L))
        out = [".text", f".globl {s.name}", ".p2align 8", f".type {s.name},@function", f"{s.name}:"]
        out += s.L
        out += ['.section .rodata,"a"', ".p2align 6", f".amdhsa_kernel {s.name}",
                f"  .amdhsa_next_free_vgpr {vgpr}", f"  .amdhsa_next_free_sgpr {sgpr}", f"  .amdhsa_accum_offset {accum}",
                "  .amdhsa_group_segment_fixed_size 0", "  .amdhsa_kernarg_size 72", "  .amdhsa_user_sgpr_count 2",
                "  .amdhsa_user_sgpr_kernarg_segment_ptr 1", "  .amdhsa_system_sgpr_workgroup_id_x 1", ".end_amdhsa_kernel"]
        nb = lint(s.L, s.name)
        assert nb == 0, f"{nb} hazards in {s.name}"
        return "\n".join(out) + "\n"
    def allred32(s, op, v, t):
        s.e(f"v_mov_b32 v{t}, v{v}"); s.e("s_nop 1")
        s.e(f"v_permlane32_swap_b32 v{v}, v{t}"); s.e("s_nop 1")
        s.e(f"{op} v{v}, v{v}, v{t}")
    def allred16(s, op, v, t):
        s.e(f"v_mov_b32 v{t}, v{v}"); s.e("s_nop 1")
        s.e(f"v_permlane16_swap_b32 v{v}, v{t}"); s.e("s_nop 1")
        s.e(f"{op} v{v}, v{v}, v{t}")

def vr(a, n): return f"v[{a}:{a+n-1}]" if n > 1 else f"v{a}"
def ar(a, n): return f"a[{a}:{a+n-1}]" if n > 1 else f"a{a}"

def stats_finish(k, s1, s2, mean, rstd, t):
    e = k.e
    e(f"v_mul_f32 v{mean}, {fbits(1.0/D)}, v{s1}")
    e(f"v_mul_f32 v{t}, {fbits(1.0/D)}, v{s2}")
    e(f"v_fma_f32 v{t}, -v{mean}, v{mean}, v{t}")
    e(f"v_max_f32 v{t}, 0, v{t}")
    e(f"v_add_f32 v{t}, {fbits(1e-5)}, v{t}")
    e(f"v_rsq_f32 v{rstd}, v{t}")
    e("s_nop 0")

def split3(k, src, d, t, kind, maskv=None):
    e = k.e
    if kind == 'm':
        e(f"v_xor_b32 v{t+1}, 0x80000000, v{src}"); src = t+1
    e(f"v_and_b32 v{t}, 0xffff0000, v{src}")
    e(f"v_sub_f32 v{t+2}, v{src}, v{t}")
    if kind == 'u':
        e(f"v_cvt_pk_bf16_f32 v{d}, v{t}, v{t+2}")
        e(f"v_lshrrev_b32 v{d+1}, 16, v{t}")
    else:
        e(f"v_cvt_pk_bf16_f32 v{d}, v{t}, v{t}")
        e(f"v_cvt_pk_bf16_f32 v{d+1}, v{t+2}, 0")
    if maskv is not None:
        e(f"v_and_b32 v{d}, v{d}, v{maskv}"); e(f"v_and_b32 v{d+1}, v{d+1}, v{maskv}")

SC = "sc1"
RS_ = lambda off: "s[12:15]" if off >= 2*LS else "s[8:11]"
EARLY = int(os.environ.get('EARLY', '6'))
ENV = lambda n, d: int(os.environ.get(n, d))

def ids_mt(k):
    k.e("s_lshl_b32 s22, s20, 1"); k.e("s_and_b32 s23, s21, 1"); k.e("s_add_u32 s16, s22, s23"); k.e("s_lshr_b32 s17, s21, 1")
def ids_rt(k):
    k.e("s_lshl_b32 s22, s20, 2"); k.e("s_and_b32 s23, s21, 3"); k.e("s_add_u32 s16, s22, s23"); k.e("s_lshr_b32 s17, s21, 2")

LW = 163824
PV_ = 240
def lw_init(k):
    e = k.e
    e(f"v_mov_b32 v{PV_+3}, {LW}")
    for i in range(3): e(f"v_mov_b32 v{PV_+i}, 0")
    e(f"ds_write_b96 v{PV_+3}, v[{PV_}:{PV_+2}]"); e(f"ds_write_b32 v{PV_+3}, v{PV_} offset:12")

def lwc_init(k):
    k.e(f"v_mov_b32 v{PV_+3}, {LW-8}"); k.e(f"v_mov_b32 v{PV_}, 0"); k.e(f"v_mov_b32 v{PV_+1}, 0")
    k.e(f"ds_write_b64 v{PV_+3}, v[{PV_}:{PV_+1}]"); k.e("s_waitcnt lgkmcnt(0)")

def signal(k, tag, word, nw, addr_code, younger=0, srd="s[8:11]"):
    e = k.e
    addr_code()
    e(f"v_mov_b32 v{PV_+3}, {LW-8}"); e(f"v_mov_b32 v{PV_}, 1")
    e("s_mov_b64 exec, 1")
    assert younger == 0
    e("s_waitcnt vmcnt(0)"); k.vm = []
    if tag == os.environ.get("FOC"): k.stamp(2)
    e(f"ds_add_rtn_u32 v{PV_+2}, v{PV_+3}, v{PV_} offset:{8*word+8}")
    e("s_waitcnt lgkmcnt(0)"); k.lg = []
    e(f"v_readfirstlane_b32 s49, v{PV_+2}")
    e("s_mov_b64 exec, s[56:57]")
    e(f"s_cmp_eq_u32 s49, {nw-1}"); e(f"s_cbranch_scc0 {k.name}_{tag}_sg")
    e(f"buffer_atomic_add v{PV_}, v{PV_+1}, {srd}, s48 offen {SC}")
    if os.environ.get("FOC2") == tag: k.stamp(4)
    k.label(f"{k.name}_{tag}_sg")
    e("s_mov_b64 exec, -1")

def wait_go(k, tag, word, poll_code):
    e = k.e; nm = f"{k.name}_{tag}"
    e(f"v_mov_b32 v{PV_+3}, {LW-8}"); e("s_mov_b32 s49, 0")
    if poll_code:
        e("s_cmp_eq_u32 s18, 0"); e(f"s_cbranch_scc0 {nm}_sp")
        poll_code()
        e("s_mov_b64 exec, s[56:57]")
        if os.environ.get("FOC") == "g" + tag: k.stamp(2)
        k.label(f"{nm}_pl")
        e(f"v_mov_b32 v{PV_}, 0")
        e(f"buffer_atomic_add v{PV_}, v{PV_+1}, s[8:11], s48 offen sc0 sc1")
        e("s_add_u32 s49, s49, 1")
        e("s_waitcnt vmcnt(0)")
        e(f"v_cmp_ge_u32 vcc, v{PV_}, v{PV_+2}")
        e("s_cmp_ge_u32 s49, 0x20000"); e(f"s_cbranch_scc1 {nm}_px")
        e("s_cmp_eq_u64 vcc, exec"); e(f"s_cbranch_scc0 {nm}_pl")
        k.label(f"{nm}_px")
        if os.environ.get("FOC") == "g" + tag: e("s_add_u32 s70, s64, s49")
        e("s_mov_b64 exec, 1"); e(f"v_mov_b32 v{PV_}, 1")
        e(f"ds_write_b32 v{PV_+3}, v{PV_} offset:{8*word+12}")
        e(f"s_branch {nm}_go")
    k.label(f"{nm}_sp")
    e("s_sleep 1")
    e(f"ds_read_b32 v{PV_}, v{PV_+3} offset:{8*word+12}")
    e("s_add_u32 s49, s49, 1")
    e("s_waitcnt lgkmcnt(0)")
    e(f"v_readfirstlane_b32 s44, v{PV_}")
    e("s_cmp_ge_u32 s49, 0x400000"); e(f"s_cbranch_scc1 {nm}_go")
    e("s_cmp_eq_u32 s44, 0"); e(f"s_cbranch_scc1 {nm}_sp")
    k.label(f"{nm}_go")
    e("s_mov_b64 exec, -1")

class Wdma:
    def __init__(s, k, n, base=50, tag="w"): s.k = k; s.n = n; s.i = 0; s.base = base; s.tag = tag
    def one(s, i):
        s.k.e(f"s_add_u32 m0, s45, {4096*i}"); s.k.e(f"s_add_u32 s32, s{s.base}, {4096*i}")
        s.k.vmop(f"buffer_load_dwordx4 v3, s[12:15], s32 offen {SC} lds", f"{s.tag}{i}")
    def go(s, upto):
        while s.i < min(upto, s.n): s.one(s.i); s.i += 1
    def rng(s, a, b, thr=0):
        for i in range(a, b):
            s.one(i)
            if thr and len(s.k.vm) >= thr: s.k.e(f"s_waitcnt vmcnt({thr-1})"); s.k.vm = s.k.vm[len(s.k.vm)-thr+1:]

SIDE_SV = 152; SIDE_D = 160; SIDE_U = 192
def side_setup(k):
    e = k.e; nm = k.name
    e("s_load_dwordx4 s[84:87], s[0:1], 32"); e("s_load_dwordx2 s[88:89], s[0:1], 16")
    e("s_mul_i32 s49, s2, 3"); e("s_add_u32 s49, s49, s18"); e("s_sub_u32 s49, s49, 4")
    e("s_sub_u32 s32, s18, 4"); e("s_cmp_lt_u32 s32, 3"); e("s_cselect_b32 s49, s49, 959"); e("s_cmp_eq_u32 s3, 0"); e("s_cselect_b32 s49, s49, 959")
    e("s_lshl_b32 s35, s39, 13"); e("s_add_u32 s35, s35, 112640")
    e("s_mul_i32 s36, s49, 3277"); e("s_lshr_b32 s36, s36, 16"); e("s_mul_i32 s37, s36, 20"); e("s_sub_u32 s37, s49, s37")
    e("v_and_b32 v140, 15, v1"); e("v_lshrrev_b32 v141, 2, v140"); e("v_and_b32 v142, 3, v1")
    e("s_waitcnt lgkmcnt(0)")
    SV = SIDE_SV
    e("v_lshrrev_b32 v136, 4, v1")
    for r in list(range(SV, SV+5)) + list(range(144, 152)): e(f"v_mov_b32 v{r}, 0")
    e("s_mov_b32 s5, 0")
    e("s_mov_b32 s53, 0x7ff00000"); e("s_mov_b32 s54, s53"); e("s_mov_b32 s58, s53")
    e("s_cmp_ge_u32 s49, 320"); e(f"s_cbranch_scc1 {nm}_ss1")
    k.srd(88, 84, D*3*D*2)
    e(f"s_mul_i32 s5, s37, {32*3840}"); e("s_mul_i32 s32, s36, 80"); e("s_add_u32 s5, s5, s32")
    e("v_lshlrev_b32 v137, 2, v136"); e("v_xor_b32 v137, v137, v140"); e("v_min_u32 v137, 14, v137")
    e("v_mul_u32_u24 v138, 52, v137"); e("v_lshrrev_b32 v138, 8, v138"); e("v_mul_u32_u24 v138, 1200, v138"); e("v_lshl_add_u32 v138, v137, 4, v138")
    e("v_mul_u32_u24 v137, 3840, v136"); e(f"v_add_u32 v{SV}, v138, v137")
    e("v_lshrrev_b32 v137, 5, v1"); e("v_lshl_add_u32 v137, v137, 3, v141"); e("v_lshlrev_b32 v137, 8, v137"); e("v_and_b32 v138, 1, v136")
    e("v_lshl_add_u32 v137, v138, 5, v137"); e("v_lshl_add_u32 v137, v142, 3, v137"); e("v_add_u32 v137, s35, v137")
    for jf in range(4): e(f"v_xor_b32 v139, {jf}, v141"); e(f"v_lshl_add_u32 v{144+jf}, v139, 6, v137")
    e("s_mul_i32 s53, s36, 163840"); e("s_lshl_b32 s54, s37, 13"); e("s_add_u32 s53, s53, s54"); e(f"s_add_u32 s53, s53, {WB_I}"); e("s_add_u32 s54, s53, 4096"); e("s_mov_b32 s58, s54")
    e(f"s_branch {nm}_ss2")
    k.label(f"{nm}_ss1")
    e("s_cmp_ge_u32 s36, 24"); e("s_cselect_b32 s32, s86, s88"); e("s_cselect_b32 s33, s87, s89")
    k.srd(88, 32, D*D*2)
    e("s_cmp_ge_u32 s49, 640"); e(f"s_cbranch_scc1 {nm}_ss2")
    e("s_and_b32 s32, s36, 7"); e("s_mul_i32 s32, s32, 160")
    e("s_mul_i32 s5, s37, 40"); e("s_sub_u32 s34, s37, 16"); e("s_mul_i32 s34, s34, 160"); e("s_add_u32 s34, s34, 16")
    e("s_cmp_lt_u32 s37, 16"); e("s_cselect_b32 s5, s5, s34"); e("s_cselect_b32 s33, 4, 2"); e("s_cselect_b32 s34, 4, 16")
    e("s_mul_i32 s5, s5, 1280"); e("s_add_u32 s5, s5, s32")
    for i in range(5):
        e(f"v_add_u32 v137, {64*i}, v1"); e("v_mul_u32_u24 v138, 6554, v137"); e("v_lshrrev_b32 v138, 16, v138")
        e("v_lshrrev_b32 v139, s33, v138"); e("v_mul_u32_u24 v139, s34, v139"); e("v_mul_u32_u24 v139, 1280, v139")
        e("v_mul_u32_u24 v138, 1120, v138"); e("v_add_u32 v139, v139, v138"); e(f"v_lshl_add_u32 v{SV+i}, v137, 4, v139")
    e("v_lshlrev_b32 v137, 2, v136"); e("s_mov_b32 s32, 2560")
    e("s_cmp_ge_u32 s36, 24"); e(f"s_cbranch_scc1 {nm}_sf3"); e("s_cmp_ge_u32 s37, 16"); e(f"s_cbranch_scc1 {nm}_sf3")
    e("v_lshrrev_b32 v137, 1, v136"); e("v_lshlrev_b32 v137, 4, v137"); e("v_and_b32 v138, 1, v136"); e("v_lshl_add_u32 v137, v138, 2, v137"); e("s_mov_b32 s32, 1280")
    k.label(f"{nm}_sf3")
    e("v_add_u32 v137, v137, v141"); e("v_mul_u32_u24 v137, 160, v137"); e("v_add_u32 v137, s35, v137")
    e("s_and_b32 s33, s36, 1"); e("s_lshl_b32 s34, s33, 5"); e("s_xor_b32 s33, s33, 1"); e("s_lshl_b32 s33, s33, 7")
    e("v_lshl_add_u32 v144, v142, 4, v137"); e("v_add_u32 v144, s34, v144"); e("v_add_u32 v145, s32, v144")
    e("v_lshl_add_u32 v146, v142, 3, v137"); e("v_add_u32 v146, s33, v146"); e("v_add_u32 v147, s32, v146")
    e("s_cmp_ge_u32 s36, 24"); e(f"s_cselect_b32 s53, {WOB_I-WOA_I}, 0"); e("s_and_b32 s54, s36, 7"); e("s_mul_i32 s54, s54, 102400"); e("s_add_u32 s53, s53, s54")
    e("s_mul_i32 s54, s37, 5120"); e("s_add_u32 s53, s53, s54"); e(f"s_add_u32 s53, s53, {WOA_I}"); e("s_add_u32 s54, s53, 4096")
    k.label(f"{nm}_ss2")
    e("s_lshl_b32 s38, s49, 9"); e(f"s_add_u32 s38, s38, {U_B}"); e("s_cmp_ge_u32 s49, 320"); e("s_cselect_b32 s38, 0x7ff00000, s38")
    e("v_lshlrev_b32 v143, 2, v1")
    e("s_cmp_lt_u32 s49, 640"); e("s_cselect_b32 s4, 2, 0"); e("s_cmp_lt_u32 s49, 320"); e("s_cselect_b32 s4, 1, s4")
    e("s_and_b32 s55, s49, 15"); e("s_lshl_b32 s55, s55, 8"); e(f"s_add_u32 s55, s55, {CS}")

def ph_attn(k):
    e = k.e; nm = k.name
    KA, KT, VA = 4, 5, 6
    Q = [8, 14]; KF = [24, 32]; VF = [40, 48]; SS = [56, 72]; P = 88; O = [96, 112]; PF = 208
    SCR = 137216; TOP = 112640
    ids_rt(k)
    e("v_and_b32 v3, 31, v1"); e("v_lshrrev_b32 v7, 5, v1")
    e("v_lshlrev_b32 v22, 4, v1"); e("v_lshlrev_b32 v23, 3, v3")
    e("s_mul_i32 s19, s16, 163840")
    e("s_lshr_b32 s41, s18, 2")
    e("s_lshl_b32 s23, s17, 3"); e("s_lshl_b32 s22, s39, 1"); e("s_add_u32 s23, s23, s22")
    e("s_add_u32 s23, s23, s41")
    e("s_lshr_b32 s22, s19, 1"); e(f"s_add_u32 s22, s22, {QIMG}")
    e("s_mul_i32 s24, s23, 1280"); e("s_add_u32 s24, s24, s22"); e("s_xor_b32 s40, s23, 1"); e("s_mul_i32 s40, s40, 1280"); e("s_add_u32 s40, s40, s22")
    e("s_mul_i32 s42, s41, 2560"); e(f"s_add_u32 s42, s42, {TOP}")
    e("s_lshl_b32 s25, s18, 10")
    e(f"s_add_u32 s26, s19, {KVIMG}")
    rnd = [0]
    def dma():
        i = rnd[0]; rnd[0] += 1
        if i == 6:
            e("s_cmp_lt_u32 s18, 2"); e("s_cselect_b32 s27, 163840, 0"); e("s_add_u32 s27, s27, s25"); e("s_sub_u32 m0, s27, 2048")
        else: e(f"s_add_u32 m0, s25, {(TOP + 8192*i) if i < 6 else 8192*i - 51200}")
        e("s_add_u32 s27, s26, m0")
        k.vmop(f"buffer_load_dwordx4 v22, s[12:15], s27 offen {SC} lds", f"i{i}")
    e(f"v_add_u32 v{KA}, s42, v22")
    e(f"v_add_u32 v{KT}, s42, v23"); e(f"v_add_u32 v{KT}, 1024, v{KT}")
    if ENV('KTZ', '1'): e(f"v_lshl_add_u32 v{KT}, v7, 20, v{KT}")
    e("v_mul_u32_u24 v21, 20, v7"); e("v_add_u32 v21, v21, v3"); e("v_lshlrev_b32 v21, 4, v21")
    e("v_add_u32 v21, 1280, v21"); e(f"v_add_u32 v{VA}, s42, v21")
    e("s_mov_b32 s28, 0x000fffff"); e("s_mov_b32 s29, 0x000fffff")
    e("v_cmp_eq_u32 vcc, 20, v3"); e("v_mov_b32 v20, 0x3f803f80"); e("s_nop 0")
    e("v_cndmask_b32 v20, 0, v20, vcc")
    for r in range(16): e(f"v_mov_b32 v{VF[0]+r}, v20")
    for r in range(32): e(f"v_mov_b32 v{O[0]+r}, 0")
    for r in range(4): e(f"v_mov_b32 v{P+4+r}, 0")
    e("v_subrev_u32 v30, 1, v7")
    e("s_lshl_b32 s43, s21, 2"); e("s_add_u32 s43, s43, s39"); e(f"s_mul_i32 s43, s43, {2048*ENV('NPF', '14') - 1024}"); e(f"s_add_u32 s43, s43, {WOA_I}")
    e("s_mul_i32 s32, s23, 40960"); e(f"s_add_u32 s32, s32, {OT}")
    e("s_lshr_b32 s51, s16, 1"); e("s_lshl_b32 s51, s51, 10"); e("s_and_b32 s34, s16, 1"); e("s_lshl_b32 s34, s34, 9")
    e("s_add_u32 s51, s51, s34"); e("s_add_u32 s51, s51, s32")
    e("s_lshr_b32 s52, s16, 3"); e("s_add_u32 s52, s52, 16"); e("s_lshl_b32 s52, s52, 10"); e("s_add_u32 s52, s52, s32")
    e("s_and_b32 s35, s16, 3"); e("s_lshl_b32 s35, s35, 8"); e("s_add_u32 s52, s52, s35")
    e("s_bfe_u32 s35, s16, 0x10002"); e("s_lshl_b32 s35, s35, 3"); e("s_add_u32 s52, s52, s35")
    e("v_lshrrev_b32 v38, 4, v3"); e("v_mul_u32_u24 v38, 20480, v38"); e("v_and_b32 v39, 15, v3")
    e("v_lshl_add_u32 v38, v39, 4, v38"); e("v_lshl_add_u32 v39, v7, 8, v38")
    e("s_mul_i32 s32, s18, 3072"); e("s_xor_b32 s33, s18, 4"); e("s_mul_i32 s33, s33, 3072")
    e(f"v_add_u32 v132, {SCR}, v22"); e("v_add_u32 v133, s33, v132"); e("v_add_u32 v132, s32, v132")
    def c0(nl):
        e("s_lshl_b32 s48, s17, 8"); e(f"s_add_u32 s48, s48, {C0}"); e(f"v_mov_b32 v{PV_+2}, 16")
        e("s_mul_i32 s32, s16, 20"); e("s_add_u32 s33, s32, 19"); e("s_lshr_b32 s32, s32, 7"); e("s_lshr_b32 s33, s33, 7"); e("s_sub_u32 s33, s33, s32")
        e(f"v_lshrrev_b32 v{PV_+1}, 1, v1"); e(f"v_mul_u32_u24 v{PV_+1}, 5, v{PV_+1}"); e(f"v_and_b32 v{PV_}, s33, v1"); e(f"v_add3_u32 v{PV_+1}, v{PV_+1}, v{PV_}, s32")
        e(f"v_lshlrev_b32 v{PV_+1}, 11, v{PV_+1}"); e("s_mov_b64 s[56:57], 63")
    side_setup(k)
    e("s_lshl_b32 s59, s2, 2"); e("s_add_u32 s59, s59, s39"); e("s_mul_i32 s50, s17, 102400"); e("s_add_u32 s50, s50, s25"); e(f"s_add_u32 s50, s50, {WOA_I}"); e(f"s_mul_i32 s59, s59, {-(-(U_A - OT) // 1024 // 128) * 128}"); e(f"s_add_u32 s59, s59, {OT}")
    e("v_lshlrev_b32 v234, 7, v1")
    e("v_lshlrev_b32 v134, 11, v1"); e("s_lshl_b32 s32, s17, 8"); e(f"s_add_u32 s32, s32, {C0}"); e("v_add_u32 v134, s32, v134")
    e("v_lshlrev_b32 v135, 8, v1"); e(f"v_add_u32 v135, {CS - 4096}, v135"); e("v_cmp_gt_u32 vcc, 16, v1")
    e("v_cndmask_b32 v134, v135, v134, vcc"); e("v_cndmask_b32 v131, 40, 16, vcc"); e("v_mov_b32 v135, 64")
    wait_go(k, "t", -1, lambda: c0(6))
    k.stamp(2)
    e("s_or_b32 s44, s3, s41"); e("s_xor_b32 s44, s44, 1")
    dma()
    for x in range(2):
        k.vmop(f"buffer_load_dwordx4 {vr(Q[x],4)}, v22, s[12:15], s{(24,40)[x]} offen {SC}", "q")
        k.vmop(f"buffer_load_dwordx2 {vr(Q[x]+4,2)}, v23, s[12:15], s{(24,40)[x]} offen offset:1024 {SC}", "q")
    for _ in range(3): dma()
    k.waitvm("q")
    for x in range(2):
        e(f"v_and_b32 v{Q[x]+4}, v{Q[x]+4}, v30"); e(f"v_and_b32 v{Q[x]+5}, v{Q[x]+5}, v30")
    k.waitvm("i1"); e("s_barrier"); k.stamp(3)
    if os.environ.get("FOC") == "clk": k.rstamp(0)
    def rdK(buf, off):
        off *= 2
        e(f"ds_read_b128 {vr(KF[buf],4)}, v{KA} offset:{off}")
        e(f"ds_read_b64 {vr(KF[buf]+4,2)}, v{KT} offset:{off}")
    def rdV(buf, off):
        off *= 2
        e("s_mov_b64 exec, s[28:29]")
        e(f"ds_read_b128 {vr(VF[buf],4)}, v{VA} offset:{off}")
        e(f"ds_read_b128 {vr(VF[buf]+4,4)}, v{VA} offset:{off+640}")
        e("s_mov_b64 exec, -1")
    def qkm(x, kb): e(f"v_mfma_f32_32x32x16_bf16 {vr(SS[x],16)}, {vr(KF[kb],4)}, {vr(Q[x],4)}, 0")
    def qkt(x, kb): e(f"v_mfma_f32_32x32x8_bf16 {vr(SS[x],16)}, {vr(KF[kb]+4,2)}, {vr(Q[x]+4,2)}, {vr(SS[x],16)}")
    def pv(x, vb, u): e(f"v_mfma_f32_32x32x16_bf16 {vr(O[x],16)}, {vr(VF[vb]+4*u,4)}, {vr(P+4*u,4)}, {vr(O[x],16)}")
    def base(t):
        return 0 if t < 10 else 10 if t < 22 else 22
    def bump(regs, t):
        if t == 10:
            for r in regs: e(f"v_subrev_u32 v{r}, {TOP}, v{r}")
        elif t == 22:
            for r in regs: e(f"v_add_u32 v{r}, {12*5120}, v{r}")
    def unit(x, t, extra=()):
        p = t % 2; s = SS[x]
        ex = lambda i: e(f"v_exp_f32 v{s+i}, v{s+i}")
        cv = lambda i: e(f"v_cvt_pk_bf16_f32 v{P+i}, v{s+2*i}, v{s+2*i+1}")
        kb = p if x == 0 else 1-p
        if x == 1: e("s_waitcnt lgkmcnt(2)" if t < 31 else "s_waitcnt lgkmcnt(0)")
        if not (x == 1 and t == 31): qkm(1-x, kb)
        if x == 1 and t + 2 < 32:
            bump((KA, KT), t+2); rdK(p, (t+2-base(t+2))*2560)
        for i in range(0, 4): ex(i)
        if x == 0:
            pv(1, 1-p, 1)
            if t + 1 < 32:
                bump((VA,), t+1); rdV(1-p, (t+1-base(t+1))*2560)
        else:
            pv(0, p, 1)
        for f_ in extra: f_()
        for i in range(4, 8): ex(i)
        for i in range(0, 4): cv(i)
        if not (x == 1 and t == 31): qkt(1-x, kb)
        for i in range(8, 12): ex(i)
        if x == 0: e(f"s_waitcnt lgkmcnt({4 if t < 31 else 0})")
        pv(x, p, 0)
        for i in range(12, 16): ex(i)
        for i in range(4, 8): cv(i)
    rdK(0, 0); rdV(0, 0); rdK(1, 2560)
    e("s_waitcnt lgkmcnt(4)")
    qkm(0, 0); e("s_nop 10"); qkt(0, 0); e("s_nop 10")
    SYN = {1: 3, 4: 7, 10: 19}; SW = ENV('SW', '27')
    T_SI, T_SR, T_SA, T_PF, T_LC = 10, ENV('TSR', '16'), 26, ENV('TPF', '15'), 27
    hk = [0]
    def cond(test, fn):
        def g():
            hk[0] += 1; lab = f"{nm}_hk{hk[0]}"
            e(test); e(f"s_cbranch_scc0 {lab}"); fn(); k.label(lab)
        return g
    def prio1(): e("s_setprio 1")
    def pref():
        for _ in range(2): e(f"buffer_load_dwordx4 {vr(PF,4)}, v22, s[12:15], s43 offen {SC}"); e("s_add_u32 s43, s43, 1024")
    def side_issue():
        e("s_cmp_eq_u32 s4, 1"); e(f"s_cbranch_scc0 {nm}_i1")
        for i in range(8):
            e(f"s_add_u32 m0, s35, {1024*i}"); e(f"s_add_u32 s27, s5, {4*3840*i}")
            e(f"buffer_load_dwordx4 v{SIDE_SV}, s[88:91], s27 offen {os.environ.get('SNT', 'nt')} lds")
        e(f"s_branch {nm}_i2")
        k.label(f"{nm}_i1")
        for i in range(5):
            e(f"s_add_u32 m0, s35, {1024*i}"); e("s_nop 0")
            e(f"buffer_load_dwordx4 v{SIDE_SV+i}, s[88:91], s5 offen {os.environ.get('SNT', 'nt')} lds")
        k.label(f"{nm}_i2")
    def side_read():
        e("s_waitcnt vmcnt(0)")
        e("s_cmp_eq_u32 s4, 1"); e(f"s_cbranch_scc0 {nm}_r1")
        for F in range(8):
            for t in range(2): e(f"ds_read_b64_tr_b16 {vr(SIDE_D+4*F+2*t,2)}, v{144+F%4} offset:{4096*(F//4)+1024*t}")
        e(f"s_branch {nm}_r2")
        k.label(f"{nm}_r1")
        for nf in range(5):
            for t in range(2): e(f"ds_read_b64_tr_b16 {vr(SIDE_D+4*nf+2*t,2)}, v{144+t if nf < 4 else 146+t} offset:{64*(nf//2)+8*(nf%2) if nf < 4 else 0}")
        k.label(f"{nm}_r2")
    def side_done():
        e("s_waitcnt lgkmcnt(0)"); e(f"v_mov_b32 v{PV_+3}, {LW-8}"); e(f"v_mov_b32 v{PV_}, 1"); e("s_mov_b64 exec, 1")
        e(f"ds_add_u32 v{PV_+3}, v{PV_}"); e("s_mov_b64 exec, -1")
    UA = (SIDE_U, 212)
    def side_sum(q):
        def g():
            if q == 0:
                for r in range(4): e(f"v_mov_b32 v{228+r}, 0x3f803f80")
            for u in range(2):
                for x in range(2): e(f"v_mfma_f32_32x32x16_bf16 {vr(UA[x],16)}, v[228:231], {vr(SIDE_D+16*u+8*q+4*x,4)}, {vr(UA[x],16) if u else 0}")
        return g
    def side_sum2(q):
        def g():
            e("v_cmp_gt_u32 vcc, 32, v1"); e(f"v_cndmask_b32 v{232+q}, v{UA[1]}, v{UA[0]}, vcc")
            e(f"buffer_store_dword v{232+q}, v143, s[12:15], s38 offen offset:{256*q} {SC}")
        return g
    def side_store(F):
        return lambda: e(f"buffer_store_dwordx4 {vr(SIDE_D+4*F,4)}, v22, s[12:15], s{53 if F < 4 else 54 if F == 4 else 58} offen offset:{1024*(F%4)} {SC}")
    def side_arrive():
        e(f"v_mov_b32 v{PV_+1}, 0"); e(f"v_mov_b32 v{PV_}, 1"); e("s_waitcnt vmcnt(0)"); e("s_mov_b64 exec, 1")
        e(f"buffer_atomic_add v{PV_}, v{PV_+1}, s[12:15], s55 offen {SC}"); e("s_mov_b64 exec, -1")
    def touch():
        e("buffer_load_dword v235, v234, s[12:15], s59 offen")
    def late():
        e("s_mov_b32 exec_lo, 0xffff7fff"); e("s_mov_b32 exec_hi, 0"); e(f"buffer_load_dword v135, v134, s[12:15], 0 offen {SC}"); e("s_mov_b64 exec, -1")
    def init_words(): lw_init(k); e(f"v_mov_b32 v{PV_+3}, {LW-8}"); e(f"ds_write_b32 v{PV_+3}, v{PV_}")
    side = "s_cmp_lg_u32 s4, 0"
    for t in range(32):
        if t in SYN: k.waitvm(f"i{SYN[t]}"); e("s_barrier")
        x0, x1 = [], []
        if rnd[0] < 20: x0 += [dma, dma]; x1 += [dma, dma]
        if t in (1, 4, 10): cond("s_cmp_ge_u32 s18, 4", prio1)()
        if t == 3: x0.append(lambda: e("s_setprio 0"))
        if t == 8: x1.append(lambda: e("s_setprio 0"))
        if t == 10:
            x0.append(cond("s_cmp_eq_u32 s18, 4", lambda: lw_init(k)))
            if os.environ.get("FOC") == "at": k.stamp(2)
        if t == SW + 1 and os.environ.get("FOC") == "at": k.stamp(0)
        if t == T_SI: x1.append(cond(side, side_issue))
        if t == T_SR: x1.append(cond(side, side_read))
        if t == T_SR + 1: x0.append(cond(side, lambda: e("s_waitcnt lgkmcnt(0)"))); x1.append(cond("s_cmp_eq_u32 s4, 1", side_sum(0)))
        if t == T_SR + 2: x0.append(cond("s_cmp_eq_u32 s4, 1", side_sum2(0))); x1.append(cond("s_cmp_eq_u32 s4, 1", side_sum(1)))
        if t == T_SR + 3: x0.append(cond("s_cmp_eq_u32 s4, 1", side_sum2(1)))
        if T_SR + 1 <= t < T_SR + 9: x1.append(cond(side, side_store(t - T_SR - 1)))
        if ENV('TCH', '7') and t == ENV('TCH', '7'): x0.append(lambda: k.waitvm("i19") if ENV('TW', '1') else None); x0.append(cond("s_cmp_lg_u32 s44, 0", touch))
        if t == T_SA: x0.append(cond(side, side_arrive))
        if T_PF <= t < T_PF + ENV('NPF', '14') and ENV('PFW', '1'): x0.append(cond("s_cmp_lt_u32 s18, 4", pref))
        if t == T_LC: x1.append(cond("s_cmp_eq_u32 s18, 0", late))
        if t == SW: (x1 if ENV('SWX', '0') else x0).append(lambda: e("s_setprio 0"))
        unit(0, t, x0); unit(1, t, x1)
    pv(1, 1, 1); k.stamp(4)
    if os.environ.get("FOC") == "clk": k.rstamp(2)
    e("s_mov_b32 s30, 0")
    e(f"s_mov_b32 s32, {fbits(2.0**-60)}"); e(f"s_mov_b32 s33, {fbits(2.0**100)}"); e(f"s_mov_b32 s34, {fbits(2.0**126)}")
    k.label(f"{nm}_scrok")
    e("s_nop 7")
    for i in range(3): e(f"ds_write_b128 v132, {vr(O[1]+4*i,4)} offset:{1024*i}")
    e("s_waitcnt vmcnt(0)"); e("v_cmp_gt_u32 vcc, v131, v135"); e(f"s_cbranch_vccnz {nm}_late")
    k.label(f"{nm}_lok")
    e("s_waitcnt lgkmcnt(0)"); e("s_barrier")
    for i in (2, 0, 1): e(f"ds_read_b128 {vr(SS[0]+4*i,4)}, v133 offset:{1024*i}")
    OO = O[0]
    e("s_waitcnt lgkmcnt(2)")
    for r in range(8, 12): e(f"v_add_f32 v{OO+r}, v{OO+r}, v{SS[0]+r}")
    e("s_waitcnt lgkmcnt(0)")
    for r in range(8): e(f"v_add_f32 v{OO+r}, v{OO+r}, v{SS[0]+r}")
    k.label(f"{nm}_chk")
    e(f"v_mov_b32 v30, v{OO+8}"); e(f"v_mov_b32 v31, v{OO+8}")
    e(f"v_max3_f32 v28, abs(v{OO}), abs(v{OO+1}), abs(v{OO+2})")
    e("v_permlane32_swap_b32 v30, v31")
    e(f"v_max3_f32 v28, abs(v{OO+3}), abs(v{OO+4}), v28")
    e("v_rcp_f32 v30, v31")
    e(f"v_max3_f32 v28, abs(v{OO+5}), abs(v{OO+6}), v28")
    for r in range(12): e(f"v_mul_f32 v{SS[1]+r}, v{OO+r}, v30")
    for r in range(6): e(f"v_cvt_pk_bf16_f32 v{P+r}, v{SS[1]+2*r}, v{SS[1]+2*r+1}")
    e(f"buffer_store_dwordx4 {vr(P,4)}, v39, s[12:15], s51 offen {SC}")
    e("s_mov_b32 exec_hi, 0")
    e(f"buffer_store_dwordx2 {vr(P+4,2)}, v38, s[12:15], s52 offen {SC}")
    e("s_mov_b64 exec, -1")
    for i in range(EARLY//2):
        e(f"s_add_u32 m0, s25, {8192*i}"); e(f"s_add_u32 s27, s50, {8192*i}")
        e(f"buffer_load_dwordx4 v22, s[12:15], s27 offen {SC} lds")
    for r in range(7, 11, 2): e(f"v_max3_f32 v28, abs(v{OO+r}), abs(v{OO+r+1}), v28")
    e(f"v_max_f32 v28, abs(v{OO+11}), v28")
    e("v_cmp_le_f32 vcc, s32, v31"); e("v_cmp_ge_f32 s[36:37], s33, v31"); e("v_cmp_gt_f32 s[40:41], s34, v28")
    e("s_and_b64 s[36:37], s[36:37], vcc"); e("s_and_b64 s[36:37], s[36:37], s[40:41]")
    e("s_cmp_eq_u64 s[36:37], -1"); e(f"s_cbranch_scc0 {nm}_slow")
    def slowpath():
        k.label(f"{nm}_late")
        e("s_mov_b32 s49, 0")
        k.label(f"{nm}_late1")
        e("s_sleep 8"); late(); e("s_add_u32 s49, s49, 1"); e("s_waitcnt vmcnt(0)")
        e("v_cmp_gt_u32 vcc, v131, v135"); e("s_cmp_ge_u32 s49, 0x20000"); e(f"s_cbranch_scc1 {nm}_lok"); e(f"s_cbranch_vccnz {nm}_late1")
        e(f"s_branch {nm}_lok")
        k.label(f"{nm}_slow")
        e("s_cmp_eq_u32 s30, 0"); e(f"s_cbranch_scc0 {nm}_fin")
        e("s_mov_b32 s30, 1")
        e("s_waitcnt vmcnt(0)")
        NM = O[1]
        e("v_mov_b32 v32, 0xff800000")
        def slowqk(c):
            e(f"buffer_load_dwordx4 {vr(KF[0],4)}, v22, s[12:15], s27 offen {SC}")
            e(f"buffer_load_dwordx2 {vr(KF[0]+4,2)}, v23, s[12:15], s27 offen offset:1024 {SC}")
            e("s_waitcnt vmcnt(0)")
            e(f"v_mfma_f32_32x32x16_bf16 {vr(SS[0],16)}, {vr(KF[0],4)}, {vr(Q[0],4)}, {c}"); e("s_nop 10")
            e(f"v_mfma_f32_32x32x8_bf16 {vr(SS[0],16)}, {vr(KF[0]+4,2)}, {vr(Q[0]+4,2)}, {vr(SS[0],16)}"); e("s_nop 12")
        e(f"s_add_u32 s27, s19, {KVIMG}"); e("s_mov_b32 s31, 0")
        k.label(f"{nm}_mx")
        slowqk("0")
        for r in range(0, 16, 2): e(f"v_max3_f32 v32, v{SS[0]+r}, v{SS[0]+r+1}, v32")
        e("s_add_u32 s27, s27, 2560")
        e("s_add_u32 s31, s31, 1"); e("s_cmp_lt_u32 s31, 64"); e(f"s_cbranch_scc1 {nm}_mx")
        k.allred32("v_max_f32", 32, 33)
        e("v_xor_b32 v32, 0x80000000, v32")
        for r in range(16): e(f"v_mov_b32 v{NM+r}, v32")
        for r in range(16): e(f"v_mov_b32 v{OO+r}, 0")
        for r in range(8): e(f"v_mov_b32 v{VF[0]+r}, v20")
        e(f"s_add_u32 s27, s19, {KVIMG}"); e("s_mov_b32 s31, 0")
        k.label(f"{nm}_sl")
        e("s_mov_b64 exec, s[28:29]")
        e(f"buffer_load_dwordx4 {vr(VF[0],4)}, v21, s[12:15], s27 offen {SC}")
        e(f"buffer_load_dwordx4 {vr(VF[0]+4,4)}, v21, s[12:15], s27 offen offset:640 {SC}")
        e("s_mov_b64 exec, -1")
        slowqk(vr(NM,16))
        for i in range(16): e(f"v_exp_f32 v{SS[0]+i}, v{SS[0]+i}")
        e("s_nop 0")
        for i in range(8): e(f"v_cvt_pk_bf16_f32 v{P+i}, v{SS[0]+2*i}, v{SS[0]+2*i+1}")
        e("s_nop 1")
        pv(0, 0, 0); pv(0, 0, 1)
        e("s_add_u32 s27, s27, 2560")
        e("s_add_u32 s31, s31, 1"); e("s_cmp_lt_u32 s31, 64"); e(f"s_cbranch_scc1 {nm}_sl")
        e("s_nop 12"); e(f"s_branch {nm}_chk")
    k.tail = slowpath
    k.label(f"{nm}_fin")
    k.stamp(5)
    e("v_lshlrev_b32 v3, 4, v1")
    k.vm = []; k.lg = []

def proj_c(k, tag, src, xin, xout, stout, last, cnt_code, word, st0):
    final = False
    e = k.e
    ACC, RESID, A, BF = 24, 44, 76, 156
    NA0 = ENV('PA0', '8')
    ids_rt(k)
    e("s_lshl_b32 s19, s16, 2"); e("s_add_u32 s19, s19, s39")
    e("s_mul_i32 s24, s19, 20480")
    e("s_lshr_b32 s33, s17, 1"); e("s_mul_i32 s33, s33, 5120"); e("s_add_u32 s33, s33, s24")
    e("s_and_b32 s34, s17, 1"); e("s_mul_i32 s35, s34, 3072"); e("s_add_u32 s35, s35, s33")
    e("s_lshl_b32 s36, s34, 9"); e("s_add_u32 s36, s36, s33"); e("s_add_u32 s36, s36, 2048")
    e(f"s_add_u32 s37, s35, {xin}"); e(f"s_add_u32 s38, s36, {xin}")
    e("v_lshrrev_b32 v13, 5, v1"); e("v_lshlrev_b32 v13, 8, v13"); e("v_and_b32 v14, 15, v1"); e("v_lshl_add_u32 v13, v14, 4, v13")
    e("v_bfe_u32 v14, v1, 4, 1"); e("v_lshl_add_u32 v13, v14, 3, v13")
    k.vmop(f"buffer_load_dwordx4 {vr(RESID,4)}, v3, {RS_(xin)}, s37 offen {SC}", "r")
    k.vmop(f"buffer_load_dwordx4 {vr(RESID+4,4)}, v3, {RS_(xin)}, s37 offen offset:1024 {SC}", "r")
    k.vmop(f"buffer_load_dwordx2 {vr(RESID+8,2)}, v13, {RS_(xin)}, s38 offen {SC}", "r")
    e(f"s_add_u32 s24, s24, {src}")
    for i in range(1, 5): e(f"s_add_u32 s{24+i}, s24, {4096*i}")
    e("v_lshrrev_b32 v9, 4, v1"); e("v_add_u32 v12, 61440, v3")
    wait_go(k, tag, word, cnt_code)
    k.stamp(st0)
    def ldA(n): k.vmop(f"buffer_load_dwordx4 {vr(A+4*n,4)}, v3, s[12:15], s{24+n//4} offen offset:{(n%4)*1024} {SC}", f"a{n}")
    for n in range(NA0): ldA(n)
    k.waitvm("r")
    for i in range(10):
        e(f"v_lshlrev_b32 v{ACC+2*i}, 16, v{RESID+i}"); e(f"v_and_b32 v{ACC+2*i+1}, 0xffff0000, v{RESID+i}")
    PT = ENV('PJT', '6'); K1 = 20 - PT
    GR = ((0, 1), (2, 3), (4,))
    ops = [(n, nf) for n in range(K1) for nf in range(5)] + [(n, nf) for g in GR for n in range(K1, 20) for nf in g]
    def rd(i):
        n, nf = ops[i]; off = n*5120 + nf*1024; b = 3
        if n >= 12: off -= 61440; b = 12
        k.dsop(f"ds_read_b128 {vr(BF+4*(i%10),4)}, v{b} offset:{off}", f"b{i}")
    def mm(i):
        n, nf = ops[i]
        if i % 5 == 0: k.waitlg(f"b{i+4}")
        if i == 60: e("s_barrier")
        e(f"v_mfma_f32_16x16x32_bf16 {vr(ACC+4*nf,4)}, {vr(BF+4*(i%10),4)}, {vr(A+4*n,4)}, {vr(ACC+4*nf,4)}")
        if i + 10 < 100: rd(i + 10)
    if last:
        e("v_and_b32 v54, 15, v1"); e("v_mul_u32_u24 v54, 1280, v54"); e("v_lshl_add_u32 v55, v9, 3, v54"); e("v_lshl_add_u32 v54, v9, 4, v54")
        e("s_mul_i32 s40, s19, 20480"); e("s_mul_i32 s31, s17, 160"); e("s_add_u32 s40, s40, s31")
        e("s_lshl_b32 s31, s34, 5"); e("s_add_u32 s41, s40, s31"); e("s_xor_b32 s31, s34, 1"); e("s_lshl_b32 s31, s31, 7"); e("s_add_u32 s40, s40, s31")
    e(f"s_add_u32 s37, s35, {xout}"); e(f"s_add_u32 s38, s36, {xout}")
    e("s_lshl_b32 s32, s19, 10"); e("s_lshl_b32 s33, s17, 7"); e("s_add_u32 s32, s32, s33"); e(f"s_add_u32 s32, s32, {stout}")
    e("v_lshlrev_b32 v16, 3, v1")
    for r in range(18, 22): e(f"v_mov_b32 v{r}, 0")
    e("s_barrier")
    for i in range(10): rd(i)
    for n in range(K1):
        if n < 2 or n % 2 == 0: k.waitvm(f"a{min(n + (n >= 2), 19)}")
        if n == 0: k.stamp(st0+1)
        for nf in range(5):
            mm(5*n + nf)
            if nf == 0 and n + NA0 < 20: ldA(n + NA0)
    def epi(g, final):
        lo, hi = 2*GR[g][0], 2*GR[g][-1] + 2
        for i in range(lo, hi): e(f"v_cvt_pk_bf16_f32 v{RESID+i}, v{ACC+2*i}, v{ACC+2*i+1}")
        if final:
            FSC = os.environ.get("FSC", "")
            if g < 2: e(f"buffer_store_dwordx4 {vr(RESID+4*g,4)}, v54, s[60:63], s41 offen offset:{64*g} {FSC}")
            else: e(f"buffer_store_dwordx2 {vr(RESID+8,2)}, v55, s[60:63], s40 offen {FSC}")
            return
        if g < 2: e(f"buffer_store_dwordx4 {vr(RESID+4*g,4)}, v3, {RS_(xout)}, s37 offen offset:{1024*g} {SC}")
        else: e(f"buffer_store_dwordx2 {vr(RESID+8,2)}, v13, {RS_(xout)}, s38 offen {SC}")
        for i in range(2*lo, 2*hi, 2):
            e(f"v_add_f32 v18, v18, v{ACC+i}"); e(f"v_fmac_f32 v19, v{ACC+i}, v{ACC+i}")
            e(f"v_add_f32 v20, v20, v{ACC+i+1}"); e(f"v_fmac_f32 v21, v{ACC+i+1}, v{ACC+i+1}")
    def tail(final):
        i = 5*K1; pend = []
        for g in range(3):
            for m in range(PT*len(GR[g])):
                k.waitvm(f"a{ops[i][0]}")
                mm(i); i += 1
                if m >= 3: k.fill(pend, ENV('PFIL', '2'))
            k.fill(pend, 1000)
            if g == 2: e("s_barrier")
            pend = k.capture(lambda: epi(g, final))
        k.fill(pend, 1000)
    if last:
        vm, lg = list(k.vm), list(k.lg)
        e("s_cmp_eq_u32 s3, 0"); e(f"s_cbranch_scc1 {k.name}_nf")
        tail(True)
        k.stamp(st0+2)
        if STAMP: e("s_waitcnt vmcnt(0)")
        k.dump(15, "2")
        e("s_endpgm")
        k.label(f"{k.name}_nf"); k.vm, k.lg = vm, lg
    tail(False)
    e("v_add_f32 v18, v18, v20"); e("v_add_f32 v19, v19, v21")
    for sw in ("v_permlane16_swap_b32", "v_permlane32_swap_b32"):
        e("v_mov_b32 v20, v18"); e("v_mov_b32 v21, v19"); e("s_nop 0")
        e(f"{sw} v18, v20"); e(f"{sw} v19, v21"); e("s_nop 0")
        e("v_add_f32 v18, v18, v20"); e("v_add_f32 v19, v19, v21")
    e("s_mov_b64 exec, 0xffff")
    e(f"buffer_store_dwordx2 v[18:19], v16, {RS_(xout)}, s32 offen {SC}")
    k.stamp(st0+2)

def proj_l(k, wimg, nxt, src, sig=None, done=0, last=False):
    e = k.e
    if nxt is not None:
        ids_mt(k)
        e("s_min_u32 s17, s17, 14" if nxt == WA_I else "s_nop 0")
        e("s_mul_i32 s58, s17, 163840"); e("s_add_u32 s58, s58, s45"); e(f"s_add_u32 s58, s58, {nxt}")
    ids_rt(k)
    e("s_mul_i32 s50, s17, 102400"); e("s_add_u32 s50, s50, s45"); e(f"s_add_u32 s50, s50, {wimg}")
    e("s_mul_i32 s51, s16, 81920"); e("s_lshl_b32 s52, s17, 2"); e("s_add_u32 s52, s52, s39"); e("s_mul_i32 s52, s52, 2560"); e("s_add_u32 s51, s51, s52"); e(f"s_add_u32 s51, s51, {src}")
    e("v_min_u32 v21, 39, v1"); e("v_lshlrev_b32 v21, 6, v21")
    w = Wdma(k, 25, 50, "o"); k.vm = []
    T1, T2 = ENV('T1', '0'), ENV('T2', '3')
    if sig:
        def a8():
            e(f"v_mov_b32 v{PV_+3}, {LW}"); e("s_mov_b32 s49, 0")
            k.label(f"{k.name}_a8")
            e(f"ds_read_b32 v{PV_}, v{PV_+3}"); e("s_add_u32 s49, s49, 1"); e("s_waitcnt lgkmcnt(0)"); e(f"v_readfirstlane_b32 s44, v{PV_}")
            e("s_cmp_ge_u32 s49, 0x400000"); e("s_cselect_b32 s44, 8, s44"); e("s_cmp_lt_u32 s44, 8"); e(f"s_cbranch_scc1 {k.name}_a8")
        signal(k, "s1l", 0, 8, sig)
        if ENV('A8E', '0'): a8()
        ub_prep(k, 0)
    if last: w.rng(0, 6); e("s_barrier"); done = 6
    w.rng(done, 25, T1 if sig else ENV('T4', '5'))
    w2 = Wdma(k, 40, 58)
    if last:
        e("s_cmp_eq_u32 s3, 0"); e(f"s_cbranch_scc1 {k.name}_nl")
        e("s_waitcnt vmcnt(0)"); e("s_barrier"); e("buffer_load_dword v20, v21, s[12:15], s51 offen"); e("s_endpgm")
        k.label(f"{k.name}_nl")
    if sig:
        w2.rng(25, 33, T1)
        if not ENV('A8E', '0'): a8()
    if nxt is not None: w2.rng(33 if sig else 32, 39, T1 if sig else ENV('T4', '5'))
    if sig: ub_prep(k, 1)
    if last and ENV('WPF', '0'):
        e("v_lshlrev_b32 v22, 7, v1"); e("s_and_b32 s32, s21, 1"); e("s_lshl_b32 s32, s32, 2"); e("s_add_u32 s32, s32, s39"); e("s_lshl_b32 s32, s32, 14")
        e("s_sub_u32 s33, s58, s45"); e("s_add_u32 s33, s33, s32")
        for i in range(2):
            k.vmop(f"buffer_load_dword v23, v22, s[12:15], s33 offen {SC}"); e("s_add_u32 s33, s33, 8192")
            if ENV('WPF', '0') == 2: e("s_waitcnt vmcnt(0)"); k.vm = []
    k.waitvm("o24")
    e("s_barrier")
    if ENV('ATOUCH', '0'):
        k.vmop("buffer_load_dword v20, v21, s[12:15], s51 offen")
    if nxt is not None:
        if not sig: w2.rng(25, 32)
        e("s_barrier")
        w2.rng(0, 15, ENV('T3', '0'))
        e("s_barrier")
        k.waitvm("w14")
        if ENV('LSL', '0'): e(f"s_sleep {ENV('LSL', '0')}")
        w2.rng(15, 25, T2)
    return w2

def stats16(k, s, rstd, mop, mask):
    e = k.e
    e(f"v_add_f32 v{s}, v{s}, v{s+2}"); e(f"v_add_f32 v{s+1}, v{s+1}, v{s+3}")
    k.allred16("v_add_f32", s, s+2); k.allred16("v_add_f32", s+1, s+3)
    k.allred32("v_add_f32", s, s+2); k.allred32("v_add_f32", s+1, s+3)
    stats_finish(k, s, s+1, s+2, rstd, s+3)
    split3(k, s+2, mop, 17, 'm', mask)
def usum(k, u, dst, t=17):
    e = k.e
    e(f"v_add_f32 v{u}, v{u}, v{u+1}"); e(f"v_add_f32 v{u+2}, v{u+2}, v{u+3}"); e(f"v_add_f32 v{u}, v{u}, v{u+2}")
    split3(k, u, dst, t, 'u')
def scale_pack(k, a, sc, dst):
    for r in range(4): k.e(f"v_mul_f32 v{a+r}, v{a+r}, v{sc(r)}")
    for r in range(2): k.e(f"v_cvt_pk_bf16_f32 v{dst+r}, v{a+2*r}, v{a+2*r+1}")
EX = 102400
SOFF = 2*8192 + 7296
UOFF = lambda F: (F//4)*8192 + 7168 + (F%4)*256 + 128
TOKF = (0, 1, 2, 3, 6); FEAF = (4, 5, 7)

UO = 3456
def ub_prep(k, part):
    e = k.e
    if part:
        k.waitvm("up")
        for j_ in range(5): e(f"v_add_f32 v{64+j_}, v{64+j_}, v{69+j_}")
        e("v_add_f32 v64, v64, v65"); e("v_add_f32 v66, v66, v67"); e("v_add_f32 v64, v64, v68"); e("v_add_f32 v64, v64, v66")
        k.allred32("v_add_f32", 64, 65); split3(k, 64, 28, 17, 'u')
        return
    e("v_lshrrev_b32 v6, 5, v1"); e("v_and_b32 v5, 31, v1"); e("s_lshr_b32 s30, s21, 1")
    e("v_mul_u32_u24 v12, 5120, v6"); e("v_lshl_add_u32 v12, v5, 2, v12")
    e("s_mul_i32 s30, s30, 10240"); e("s_lshl_b32 s31, s39, 7"); e("s_add_u32 s30, s30, s31"); e(f"s_add_u32 s30, s30, {U_B}"); e("s_add_u32 s31, s30, 2560")
    for j_ in range(10): k.vmop(f"buffer_load_dword v{64+j_}, v12, s[12:15], s{30+j_//5} offen offset:{512*(j_%5)}", "up")
    e("v_bfe_u32 v6, v1, 4, 1"); e("v_lshlrev_b32 v46, 9, v6"); e("v_and_b32 v5, 15, v1"); e("v_lshl_add_u32 v46, v5, 3, v46")
    e("s_lshl_b32 s30, s39, 12"); e("v_add_u32 v46, s30, v46")

def atouch_pre(k, xin):
    e = k.e
    e("s_mul_i32 s51, s16, 163840"); e("s_lshl_b32 s52, s17, 2"); e("s_add_u32 s52, s52, s39"); e("s_mul_i32 s52, s52, 2560"); e("s_add_u32 s51, s51, s52"); e(f"s_add_u32 s51, s51, {xin}")
    e("v_min_u32 v21, 39, v1"); e("v_lshlrev_b32 v21, 6, v21")

G_ACC, G_BF, G_AR, G_DA = 64, 128, 160, 5
def gemm32_pre(k, xin, stin):
    e = k.e
    e("v_and_b32 v10, 31, v1"); e("v_lshrrev_b32 v4, 5, v1"); e("v_and_b32 v5, 15, v1")
    e("s_lshl_b32 s19, s16, 2"); e("s_add_u32 s19, s19, s18")
    e("v_bfe_u32 v7, v1, 4, 1"); e("v_mul_u32_u24 v8, 20480, v7"); e("v_lshl_add_u32 v8, v4, 8, v8"); e("v_lshl_add_u32 v8, v5, 4, v8")
    e("v_lshlrev_b32 v11, 10, v7"); e("v_lshl_add_u32 v11, v4, 9, v11"); e("v_lshl_add_u32 v11, v5, 3, v11")
    e("s_lshl_b32 s30, s19, 11"); e(f"s_add_u32 s30, s30, {stin}")
    e("s_mul_i32 s24, s19, 40960"); e(f"s_add_u32 s24, s24, {xin}")
    e("v_add_u32 v41, 65536, v3"); e("v_add_u32 v42, 131072, v3")
    e("v_subrev_u32 v58, 1, v4"); e("v_not_b32 v59, v58")
def gemm32_loads(k, R, G_DA=G_DA):
    e = k.e
    def ldA(ks):
        if ks % 4 == 0 and ks > 0: e("s_add_u32 s24, s24, 4096")
        for u in range(2):
            k.vmop(f"buffer_load_dwordx4 {vr(G_AR+8*(ks%G_DA)+4*u,4)}, v8, {R}, s24 offen offset:{(ks%4)*1024+512*u} {SC}", f"a{ks}")
    ldA(0)
    for q in range(4): k.vmop(f"buffer_load_dwordx2 {vr(16+2*q,2)}, v11, {R}, s30 offen offset:{128*q} {SC}", "st")
    for ks in range(1, 4): ldA(ks)
    return ldA
def gemm32_stats(k):
    e = k.e
    k.waitvm("st")
    e("v_add_f32 v16, v16, v18"); e("v_add_f32 v17, v17, v19"); e("v_add_f32 v20, v20, v22"); e("v_add_f32 v21, v21, v23")
    e("v_add_f32 v16, v16, v20"); e("v_add_f32 v17, v17, v21")
    k.allred32("v_add_f32", 16, 18); k.allred32("v_add_f32", 17, 18)
    stats_finish(k, 16, 17, 46, 47, 18)
    split3(k, 46, 48, 18, 'm', 58)
def gemm32(k, vmode, fl, ldA, bars, st0, late=None, DA=G_DA, TN=4):
    e = k.e; ACC, BF, AR = G_ACC, G_BF, G_AR; nld = [4]
    acc = lambda jf: vr(ACC+16*jf, 16)
    ops = [(ks, f//4, f%4) for ks in range(20-TN) for f in range(8)] + [(ks, u, jf) for jf in range(4) for ks in range(20-TN, 20) for u in range(2)]
    def rd(i):
        ks, u, jf = ops[i]; off = ks*8192 + 1024*(4*u+jf); hi = off >> 16
        k.dsop(f"ds_read_b128 {vr(BF+4*(i%8),4)}, v{(3,41,42)[hi]} offset:{off & 0xffff}", f"b{i}")
    def mm(i):
        ks, u, jf = ops[i]
        if i % 2 == 0: k.waitlg(f"b{i+1}")
        a = vr(AR+8*(ks%DA)+4*u, 4); b = vr(BF+4*(i%8), 4); c = acc(jf) if (ks or u) else "0"
        if vmode: e(f"v_mfma_f32_32x32x16_bf16 {acc(jf)}, {a}, {b}, {c}")
        else:     e(f"v_mfma_f32_32x32x16_bf16 {acc(jf)}, {b}, {a}, {c}")
        if i + 8 < 160: rd(i + 8)
    e("s_barrier")
    for i in range(8): rd(i)
    for ks in range(20-TN):
        k.waitvm(f"a{ks}")
        if ks == 0: k.stamp(st0+1)
        if ks in bars: e("s_barrier")
        if late and ks == late[0]: k.fill(fl, 1000); fl += late[1]
        for f in range(8):
            mm(8*ks + f)
            if f in (0, 4) and nld[0] < min(20, ks + DA): ldA(nld[0]); nld[0] += 1
            if ks >= 1: k.fill(fl, 2)
    assert nld[0] == 20
    k.fill(fl, 1000)
    for jf in range(4):
        if vmode: e(f"v_mfma_f32_32x32x8_bf16 {acc(jf)}, v[48:49], {vr(50+2*jf,2)}, {acc(jf)}")
        else:     e(f"v_mfma_f32_32x32x8_bf16 {acc(jf)}, {vr(50+2*jf,2)}, v[48:49], {acc(jf)}")
    def tail(epi, tbars=(), end=None):
        pend = []
        for jf in range(4):
            if jf in tbars: e("s_barrier")
            for n in range(2*TN):
                i = 8*(20-TN) + 2*TN*jf + n
                if n % 2 == 0: k.waitvm(f"a{ops[i][0]}")
                mm(i)
                if n >= 2: k.fill(pend, ENV('TFILL', '4'))
            k.fill(pend, 1000)
            if jf == 3:
                k.stamp(st0+2)
                if end: end()
            pend = k.capture(lambda: epi(jf))
        k.fill(pend, 1000)
    return tail

TB, TS = 88448, 296
def toff(G): return (0, 64, 128, 168, 208, 248)[G//5] + 8*(G%5)

def qkvb_c(k, xin, stin, st0):
    e = k.e; nm = k.name
    ACC, BF = G_ACC, G_BF
    ids_mt(k); gemm32_pre(k, xin, stin)
    e("v_lshrrev_b32 v6, 4, v1")
    MC, MP, MP1 = 200, 204, 208
    NEG = fbits(-1e30)
    e("v_lshlrev_b32 v17, 2, v6"); e("v_sub_u32 v17, v5, v17"); e(f"v_mov_b32 v19, {NEG}")
    for r in range(4):
        e(f"v_subrev_u32 v18, {r}, v17"); e("v_and_b32 v16, 0x80000001, v18")
        e("v_cmp_eq_u32 vcc, 0, v16"); e(f"v_cndmask_b32 v{MC+r}, v19, 0, vcc")
        e("v_cmp_eq_u32 vcc, 0x80000000, v16"); e(f"v_cndmask_b32 v{MP+r}, v19, 0, vcc")
    e("s_cmp_eq_u32 s19, 0"); e(f"s_cselect_b32 s34, {NEG}, 0")
    for r in range(4): e(f"v_add_f32 v{MP1+r}, s34, v{MP+r}")
    e(f"s_mul_i32 s35, s18, {32*TS}"); e(f"s_add_u32 s35, s35, {TB}")
    e(f"v_mul_u32_u24 v16, {TS}, v10"); e("v_add_u32 v16, s35, v16"); e(f"v_add_u32 v16, {16*TS}, v16")
    e("v_lshl_add_u32 v212, v4, 3, v16"); e("v_lshl_add_u32 v213, v4, 5, v16"); e("v_mov_b32 v219, v16")
    e("v_lshl_add_u32 v215, v4, 6, v16")
    e(f"v_mul_u32_u24 v16, {TS}, v5"); e("v_add_u32 v16, s35, v16"); e("v_lshl_add_u32 v216, v6, 4, v16")
    e("v_lshrrev_b32 v17, 2, v1"); e(f"v_mul_u32_u24 v16, {TS}, v17"); e("v_add_u32 v16, s35, v16"); e("v_and_b32 v17, 3, v1")
    e("v_lshl_add_u32 v217, v17, 3, v16")
    e("v_mul_u32_u24 v18, 40, v17"); e("v_add_u32 v18, 240, v18"); e("v_cmp_gt_u32 vcc, 2, v17"); e("v_mov_b32 v19, 288"); e("v_cndmask_b32 v18, v19, v18, vcc"); e("v_add_u32 v218, v16, v18")
    e("v_lshlrev_b32 v43, 9, v7"); e("v_lshl_add_u32 v43, v5, 3, v43")
    e("v_mov_b32 v220, 0"); e("v_mov_b32 v221, 0"); e("v_mov_b32 v222, 0x3f803f80"); e("v_mov_b32 v223, 0x3f803f80")
    e("s_mul_i32 s25, s19, 40960"); e(f"s_add_u32 s25, s25, {OBT}")
    e("s_lshl_b32 s51, s17, 10"); e("s_add_u32 s51, s51, s25"); e("s_add_u32 s52, s51, 20480")
    e("s_lshr_b32 s53, s17, 2"); e("s_add_u32 s53, s53, 16"); e("s_lshl_b32 s53, s53, 10"); e("s_add_u32 s53, s53, s25")
    e("s_and_b32 s54, s17, 1"); e("s_lshl_b32 s54, s54, 9"); e("s_add_u32 s53, s53, s54")
    e("s_bfe_u32 s54, s17, 0x10001"); e("s_lshl_b32 s54, s54, 3"); e("s_add_u32 s53, s53, s54"); e("s_add_u32 s54, s53, 20480")
    def c2():
        e("s_lshl_b32 s48, s16, 9"); e(f"s_add_u32 s48, s48, {C2}")
        e(f"v_lshlrev_b32 v{PV_+1}, 8, v1"); e(f"v_lshlrev_b32 v{PV_+2}, 3, v1"); e(f"v_sub_u32 v{PV_+2}, 16, v{PV_+2}")
        e("s_cmp_eq_u32 s16, 0"); e("s_cselect_b64 s[56:57], 1, 3")
    e("s_cmp_eq_u32 s18, 1"); e(f"s_cbranch_scc0 {nm}_ad"); e("v_lshlrev_b32 v16, 8, v1"); e("s_mov_b32 s49, 0")
    k.label(f"{nm}_ap")
    e(f"buffer_load_dword v17, v16, s[8:11], 0 offen offset:{C1} {SC}"); e("s_add_u32 s49, s49, 1"); e("s_waitcnt vmcnt(0)")
    e("v_cmp_gt_u32 vcc, 16, v17"); e("s_cmp_ge_u32 s49, 0x20000"); e(f"s_cbranch_scc1 {nm}_ad"); e(f"s_cbranch_vccnz {nm}_ap")
    k.label(f"{nm}_ad")
    wait_go(k, "p3", 1, c2)
    k.stamp(st0)
    ldA = gemm32_loads(k, RS_(xin))
    fl = k.capture(lambda: (gemm32_stats(k), e(f"v_mul_f32 v45, {fbits(CSCALE)}, v47")))
    def uops():
        for jf in range(4): k.dsop(f"ds_read_b64 {vr(50+2*jf,2)}, v43 offset:{UO+4096*jf}", "uo")
    tail = gemm32(k, False, fl, ldA, {6}, st0, (8, k.capture(uops)))
    def tab(jf):
        if jf == 0:
            for q in range(3): k.dsop(f"ds_write_b64 v215, v[220:221] offset:{40+8*q}")
            k.dsop("ds_write_b64 v219, v[222:223] offset:288")
        for G in range(8*jf, min(8*jf+8, 30), 2):
            a = ACC + 2*G
            for r in range(4): e(f"v_mul_f32 v{a+r}, v{a+r}, v{45 if G < 10 else 47}")
            for r in range(2): e(f"v_cvt_pk_bf16_f32 v{a+r}, v{a+2*r}, v{a+2*r+1}")
            k.dsop(f"ds_write_b64 v{ {8: 212, 32: 213}[toff(G+1) - toff(G)] }, {vr(a,2)} offset:{toff(G)}")
    def words():
        e("s_cmp_eq_u32 s18, 0"); e(f"s_cbranch_scc0 {nm}_ni"); lw_init(k); k.label(f"{nm}_ni")
    tail(tab, (0, 2), words)
    e("s_waitcnt lgkmcnt(0)"); e("s_barrier")
    KO = lambda b, h: 160 + 8*b + 4*h
    QO = lambda b, h: 184 + 8*(b-1) + 4*h
    VO = lambda F, b: 20 + 8*FEAF.index(F) + 2*b if False else 224 + 6*FEAF.index(F) + 2*b - (0)
    VO = lambda F, b: (128, 136, 144)[FEAF.index(F)] + 2*b
    for b in (1, 2):
        for h in range(2):
            for x in range(2): e(f"ds_read_b64 {vr(QO(b,h)+2*x,2)}, v216 offset:{16*b*TS+64*h+8*x}")
    for b in range(3):
        for h in range(2):
            for x in range(2): e(f"ds_read_b64 {vr(KO(b,h)+2*x,2)}, v216 offset:{16*b*TS+128+40*h+8*x}")
    e("s_waitcnt lgkmcnt(0)")
    for b in range(3):
        for h in range(2): e(f"ds_read_b64_tr_b16 {vr(VO(4+h,b),2)}, v217 offset:{16*b*TS+208+40*h}")
        e(f"ds_read_b64_tr_b16 {vr(VO(7,b),2)}, v218 offset:{16*b*TS}")
    units = [(b, h) for b in (1, 2) for h in range(2)]
    SU = lambda i: 64 + 8*i
    TU = lambda i: ACC + 32 + 4*i
    PU = lambda i: ACC + 48 + 4*i
    OU = lambda i: 64 + 8*i
    for i, (b, h) in enumerate(units):
        e(f"v_mfma_f32_16x16x32_bf16 {vr(SU(i),4)}, {vr(KO(b-1,h),4)}, {vr(QO(b,h),4)}, {vr(MP1 if b == 1 else MP,4)}")
        e(f"v_mfma_f32_16x16x32_bf16 {vr(SU(i)+4,4)}, {vr(KO(b,h),4)}, {vr(QO(b,h),4)}, {vr(MC,4)}")
    e("s_waitcnt lgkmcnt(0)"); e("s_barrier")
    def allred(op):
        for sw in ("v_permlane16_swap_b32", "v_permlane32_swap_b32"):
            for i in range(4): e(f"v_mov_b32 v{TU(i)+1}, v{TU(i)}")
            for i in range(4): e(f"{sw} v{TU(i)}, v{TU(i)+1}")
            for i in range(4): e(f"{op} v{TU(i)}, v{TU(i)}, v{TU(i)+1}")
    for i in range(4):
        s = SU(i)
        e(f"v_max3_f32 v{TU(i)}, v{s}, v{s+1}, v{s+2}"); e(f"v_max3_f32 v{TU(i)}, v{s+3}, v{s+4}, v{TU(i)}")
        e(f"v_max3_f32 v{TU(i)}, v{s+5}, v{s+6}, v{TU(i)}"); e(f"v_max_f32 v{TU(i)}, v{s+7}, v{TU(i)}")
    allred("v_max_f32")
    for i in range(4):
        for r in range(8): e(f"v_sub_f32 v{SU(i)+r}, v{SU(i)+r}, v{TU(i)}")
    for i in range(4):
        for r in range(8): e(f"v_exp_f32 v{SU(i)+r}, v{SU(i)+r}")
    for i in range(4):
        for r in range(4): e(f"v_cvt_pk_bf16_f32 v{PU(i)+r}, v{SU(i)+2*r}, v{SU(i)+2*r+1}")
    for i, (b, h) in enumerate(units):
        e(f"v_mfma_f32_16x16x32_bf16 {vr(OU(i)+4,4)}, {vr(VO(7,b-1),4)}, {vr(PU(i),4)}, 0")
    for i, (b, h) in enumerate(units):
        e(f"v_mfma_f32_16x16x32_bf16 {vr(OU(i),4)}, {vr(VO(4+h,b-1),4)}, {vr(PU(i),4)}, 0")
    for i in range(4): e(f"v_mov_b32 v{TU(i)}, v{OU(i)+4}"); e(f"v_mov_b32 v{TU(i)+1}, v{OU(i)+4}")
    for i in range(4): e(f"v_permlane32_swap_b32 v{TU(i)}, v{TU(i)+1}")
    for i in range(4): e(f"v_rcp_f32 v{TU(i)+1}, v{TU(i)+1}")
    e("v_cmp_eq_u32 vcc, 0, v6")
    for bi in range(2):
        o0, o1 = OU(2*bi), OU(2*bi+1); d = 40 + 8*bi; t0, t1 = TU(2*bi)+1, TU(2*bi+1)+1
        for r in range(4): e(f"v_mul_f32 v{o0+r}, v{o0+r}, v{t0}"); e(f"v_mul_f32 v{o1+r}, v{o1+r}, v{t1}")
        e(f"v_cvt_pk_bf16_f32 v{d}, v{o0}, v{o0+1}"); e(f"v_cvt_pk_bf16_f32 v{d+1}, v{o0+2}, v{o0+3}")
        e(f"v_cvt_pk_bf16_f32 v{d+2}, v{o1}, v{o1+1}"); e(f"v_cvt_pk_bf16_f32 v{d+3}, v{o1+2}, v{o1+3}")
        e(f"buffer_store_dwordx4 {vr(d,4)}, v3, s[12:15], s{51+bi} offen {SC}")
        e(f"v_cndmask_b32 v{t0}, v{t1}, v{t0}, vcc")
        for r in range(4): e(f"v_cndmask_b32 v{o0+4+r}, v{o1+4+r}, v{o0+4+r}, vcc")
        for r in range(4): e(f"v_mul_f32 v{o0+4+r}, v{o0+4+r}, v{t0}")
        e(f"v_cvt_pk_bf16_f32 v{d+4}, v{o0+4}, v{o0+5}"); e(f"v_cvt_pk_bf16_f32 v{d+5}, v{o0+6}, v{o0+7}")
    e("s_mov_b32 exec_hi, 0")
    for bi in range(2): e(f"buffer_store_dwordx2 {vr(44+8*bi,2)}, v3, s[12:15], s{53+bi} offen {SC}")

def qkvb_l(k, xin, stin, w):
    e = k.e; nm = k.name
    ids_mt(k)
    e("v_and_b32 v5, 15, v1"); e("v_lshrrev_b32 v6, 4, v1")
    e("v_lshlrev_b32 v11, 3, v5"); e("v_lshl_add_u32 v11, v6, 8, v11")
    e("v_cmp_eq_u32 vcc, 0, v6"); e("s_lshl_b32 s22, s16, 3"); e("s_max_u32 s22, s22, 1"); e("v_cndmask_b32 v4, 0, -1, vcc")
    e("s_sub_u32 s22, s22, 1")
    e("s_mul_i32 s24, s22, 20480"); e(f"s_add_u32 s24, s24, {xin}"); e("s_add_u32 s24, s24, s45")
    e("s_lshl_b32 s27, s22, 10"); e(f"s_add_u32 s27, s27, {stin}")
    HP = 49152
    e("v_lshrrev_b32 v12, 1, v6"); e("v_lshlrev_b32 v40, 12, v12"); e("v_and_b32 v12, 1, v6"); e("v_lshl_add_u32 v40, v12, 9, v40"); e("v_lshl_add_u32 v40, v5, 4, v40")
    e("s_lshl_b32 s32, s39, 13"); e("v_add_u32 v40, s32, v40"); e("v_add_u32 v41, 65536, v40"); e("v_add_u32 v42, 131072, v40")
    e("s_mul_i32 s33, s39, 6144"); e(f"s_add_u32 s33, s33, {HP}"); e("v_add_u32 v43, s33, v3")
    e("s_min_u32 s40, s39, 2"); e("s_lshl_b32 s41, s40, 11"); e(f"s_add_u32 s41, s41, {HP}"); e("v_add_u32 v44, s41, v3")
    e("s_lshl_b32 s41, s40, 12"); e("v_lshlrev_b32 v45, 3, v5"); e("v_add_u32 v45, s41, v45")
    e(f"v_mul_u32_u24 v12, {TS}, v5"); e(f"v_add_u32 v12, {TB}, v12"); e("s_lshl_b32 s41, s40, 3"); e("s_sub_u32 s41, s41, 2")
    for x in range(2):
        e(f"v_add_u32 v13, s41, v6")
        if x: e("v_add_u32 v13, 4, v13")
        e("v_add_u32 v14, 16, v13")
        e("v_cmp_gt_u32 vcc, 20, v13"); e("v_cndmask_b32 v14, 0, v14, vcc"); e(f"v_lshl_add_u32 v{50+x}, v14, 3, v12")
    e("v_mov_b32 v47, v12"); e("v_mov_b32 v56, 0x3f803f80"); e("v_mov_b32 v57, 0x3f803f80")
    atouch_pre(k, xin)
    e(f"s_setprio {ENV('P3PRIO', '0')}")
    e("s_barrier")
    if ENV('ATOUCH', '0'): k.vmop("buffer_load_dword v20, v21, s[12:15], s51 offen")
    w.one(39)
    e(f"ds_write_b64 v46, v[28:29] offset:{UO}")
    for q_ in range(2): k.vmop(f"buffer_load_dwordx2 {vr(24+2*q_,2)}, v11, s[12:15], s27 offen offset:{128*q_} {SC}", "st")
    for i in range(5):
        k.vmop(f"buffer_load_dwordx4 {vr(128+4*i,4)}, v3, s[12:15], s24 offen {SC}", f"h{i}")
        if i < 4: e("s_add_u32 s24, s24, 4096")
    k.waitvm("st")
    stats16(k, 24, 48, 52, 4)
    e("s_waitcnt lgkmcnt(0)"); e("s_barrier")
    def rd(n):
        i, j = n // 6, 2 + n % 6
        k.dsop(f"ds_read_b128 {vr(96+4*(n%6),4)}, v{40+i//2} offset:{(i%2)*32768+1024*(j//2)+256*(j%2)}", f"r{n}")
    for n in range(6): rd(n)
    for x in range(2): k.dsop(f"ds_read_b64 {vr(20+2*x,2)}, v45 offset:{UO+4096+512*x}", "u")
    for n in range(30):
        i = n // 6
        if n % 6 == 0: k.waitvm(f"h{i}")
        k.waitlg(f"r{n}")
        c = vr(148+4*(n%6), 4)
        e(f"v_mfma_f32_16x16x32_bf16 {c}, {vr(96+4*(n%6),4)}, {vr(128+4*i,4)}, {c if i else 0}")
        if n + 6 < 30: rd(n + 6)
    e("s_barrier")
    for n in range(6): e(f"ds_write_b128 v43, {vr(148+4*n,4)} offset:{1024*n}")
    e("s_waitcnt lgkmcnt(0)"); e("s_barrier")
    for p_ in range(4):
        for x in range(2): e(f"ds_read_b128 {vr(96+8*p_+4*x,4)}, v44 offset:{6144*p_+1024*x}")
    e("s_waitcnt lgkmcnt(0)")
    for r in range(8):
        e(f"v_add_f32 v{96+r}, v{96+r}, v{104+r}"); e(f"v_add_f32 v{112+r}, v{112+r}, v{120+r}"); e(f"v_add_f32 v{80+r}, v{96+r}, v{112+r}")
    for x in range(2): e(f"v_mfma_f32_16x16x16_bf16 {vr(80+4*x,4)}, {vr(20+2*x,2)}, v[52:53], {vr(80+4*x,4)}")
    for x in range(2): scale_pack(k, 80+4*x, lambda r: 48, 88+2*x)
    for x in range(2): e(f"ds_write_b64 v{50+x}, {vr(88+2*x,2)}")
    e("ds_write_b64 v47, v[56:57] offset:288")
    e(f"s_setprio {ENV('LPRIO', '2')}")
    e("s_waitcnt lgkmcnt(0)"); e("s_barrier")
    k.vm = []; k.lg = []

def one(k, target):
    k.e(f"v_mov_b32 v{PV_+1}, 0"); k.e(f"v_mov_b32 v{PV_+2}, {target}"); k.e("s_mov_b64 s[56:57], 1")

def kvpos(k):
    k.e("s_and_b32 s36, s19, 31"); k.e("s_lshl_b32 s36, s36, 1"); k.e("s_lshr_b32 s34, s19, 5"); k.e("s_add_u32 s36, s36, s34")
    k.e("s_add_u32 s36, s36, 44"); k.e("s_and_b32 s36, s36, 63")
def addr_v(k, img):
    e = k.e
    e("s_sub_u32 s35, s17, 10"); e("s_lshl_b32 s35, s35, 7")
    kvpos(k); e("s_mul_i32 s36, s36, 2560"); e(f"s_add_u32 s33, s36, {img+KVIMG+1280}")
    e("v_mul_u32_u24 v20, 320, v4")
    for jf in range(4):
        e(f"v_add_u32 v16, s35, v10")
        if jf: e(f"v_add_u32 v16, {32*jf}, v16")
        e("v_mul_u32_u24 v17, 52429, v16"); e("v_lshrrev_b32 v17, 20, v17")
        e("v_mul_u32_u24 v18, 20, v17"); e("v_sub_u32 v18, v16, v18")
        e("v_mul_u32_u24 v17, 163840, v17"); e("v_lshl_add_u32 v17, v18, 4, v17")
        e(f"v_add_u32 v{24+jf}, v17, v20")
def addr_qk(k, img, xm=52):
    e = k.e; k.xm = xm
    e("s_cmp_ge_u32 s17, 5")
    e(f"s_cselect_b32 s33, {QI}, 0"); e(f"s_cselect_b32 s59, 1.0, {fbits(CSCALE)}"); e("s_cselect_b32 s35, 5, 0"); e("s_cselect_b32 s37, 1, 0")
    e(f"s_add_u32 s33, s33, {img+QIMG}")
    e("s_sub_u32 s35, s17, s35")
    kvpos(k); e("s_cmp_eq_u32 s37, 0"); e("s_cselect_b32 s36, s19, s36")
    e("s_mul_i32 s36, s36, 1280"); e("s_lshl_b32 s36, s36, s37"); e("s_add_u32 s33, s33, s36")
    e("s_lshl_b32 s34, 81920, s37")
    e("v_lshlrev_b32 v16, 4, v10"); e("v_lshlrev_b32 v17, 3, v10")
    e("v_lshl_add_u32 v18, v4, 9, v16")
    e("s_sub_u32 s36, s34, 512"); e("v_and_b32 v19, s36, v59"); e("v_add_u32 v19, v19, v16")
    e(f"s_mov_b32 s{xm}, -1"); e(f"s_mov_b32 s{xm+1}, 0"); e(f"s_mov_b32 s{xm+2}, 0"); e(f"s_mov_b32 s{xm+3}, -1")
def epi_qk1(k, v, jf):
    e = k.e; A = G_ACC + 16*jf
    QSC = os.environ.get("QSC", "sc1")
    for r in range(16): e(f"v_mul_f32 v{A+r}, v{A+r}, v47")
    for r in range(8): e(f"v_cvt_pk_bf16_f32 v{A+r}, v{A+2*r}, v{A+2*r+1}")
    for a2 in range(2):
        x = A + 4*a2
        e(f"v_permlane32_swap_b32 v{x}, v{x+2}"); e(f"v_permlane32_swap_b32 v{x+1}, v{x+3}")
    for a2 in range(2):
        x = A + 4*a2
        G = [32*v+8*jf+4*a2, 32*v+8*jf+4*a2+2]
        def main(g):
            h = g // 5; r = g % 5
            return h, (r // 2 if h % 2 == 0 else (r - 1) // 2)
        st = [g % 10 == 4 for g in G]
        def hoff(dst, h):
            if not h: return 33
            e(f"s_mul_i32 s{dst}, s34, {h}"); e(f"s_add_u32 s{dst}, s{dst}, s33"); return dst
        if not any(st):
            (h0, p0), (h1, p1) = main(G[0]), main(G[1])
            assert (h0 == h1 and (p0, p1) == (0, 1)) or (h1 == h0 + 1 and (p0, p1) == (1, 0))
            e(f"buffer_store_dwordx4 {vr(x,4)}, v{18 if h0 == h1 else 19}, {k.srdo}, s{hoff(36, h0)} offen offset:{512*p0} {QSC}")
        else:
            m = st.index(False); q = 1 - m
            h, p = main(G[m]); s0 = hoff(36, h); s1 = hoff(37, G[q] // 5); e(f"s_add_u32 s38, s{s1}, s34")
            e(f"s_mov_b64 exec, s[{k.xm+2*m}:{k.xm+1+2*m}]")
            e(f"buffer_store_dwordx4 {vr(x,4)}, v16, {k.srdo}, s{s0} offen offset:{512*p} {QSC}")
            e(f"s_mov_b64 exec, s[{k.xm+2*q}:{k.xm+1+2*q}]")
            e(f"buffer_store_dwordx2 {vr(x,2)}, v17, {k.srdo}, s{s1} offen offset:1024 {QSC}")
            e(f"buffer_store_dwordx2 {vr(x+2,2)}, v17, {k.srdo}, s38 offen offset:1024 {QSC}")
            e("s_mov_b64 exec, -1")
def epi_v1(k, jf, RS):
    e = k.e; A = G_ACC + 16*jf
    for r in range(16): e(f"v_mul_f32 v{A+r}, v{A+r}, v{RS+r}")
    for r in range(8): e(f"v_cvt_pk_bf16_f32 v{A+r}, v{A+2*r}, v{A+2*r+1}")
    for u in range(2): e(f"buffer_store_dwordx4 {vr(A+4*u,4)}, v{24+jf}, {k.srdo}, s33 offen offset:{640*u} {os.environ.get('VSC', 'sc1')}")
def dispatch5(k, body):
    e = k.e; nm = k.name + k.ptag
    for v in range(1, 5):
        e(f"s_cmp_eq_u32 s35, {v}"); e(f"s_cbranch_scc1 {nm}_e{v}")
    vm, lg = list(k.vm), list(k.lg)
    for v in range(5):
        if v: k.label(f"{nm}_e{v}")
        k.vm, k.lg = list(vm), list(lg)
        body(v); e(f"s_branch {nm}_fin5")
def epi_qk(k, ACC, BF):
    dispatch5(k, lambda v: (k.e("s_nop 7"), [epi_qk1(k, v, jf) for jf in range(4)]))
def epi_v(k, ACC, BF, RS):
    for jf in range(4): epi_v1(k, jf, RS)

def qkva_c(k, xin, stin, img, cnt, wbar, st0):
    k.ptag = '_p5'; k.srdo = 's[12:15]'
    e = k.e; nm = k.name + k.ptag
    DA = 5
    PDA, PTN = ENV('PDA', '8'), ENV('PTN', '7')
    ACC, BF, AR, RS = 64, 128, 160, 224
    gemm32_pre(k, xin, stin)
    e("v_lshlrev_b32 v12, 4, v10")
    e("s_lshl_b32 s31, s17, 11"); e(f"s_add_u32 s31, s31, {U_A}")
    for jf in range(4): k.vmop(f"buffer_load_dwordx4 {vr(24+4*jf,4)}, v12, s[12:15], s31 offen offset:{512*jf}", "u")
    def c4(): one(k, 16); e("s_lshl_b32 s48, s16, 8"); e(f"s_add_u32 s48, s48, {cnt}")
    wait_go(k, "p5", 1, c4)
    k.stamp(st0)
    ldA = gemm32_loads(k, RS_(xin), PDA)
    def prolog(vmode):
        gemm32_stats(k)
        for jf in range(4): usum(k, 24+4*jf, 50+2*jf, 18)
        if vmode:
            e("v_lshlrev_b32 v16, 4, v4")
            for r in range(16):
                e(f"v_add_u32 v17, {(8*(r//4) + r%4)*4}, v16")
                k.dsop(f"ds_bpermute_b32 v{RS+r}, v17, v47", "rs")
            addr_v(k, img)
        else:
            addr_qk(k, img); e("v_mul_f32 v47, s59, v47")
    e("s_cmp_ge_u32 s17, 10"); e(f"s_cbranch_scc1 {nm}_qv")
    vm_save = list(k.vm)
    l5a = lambda: e("s_barrier")
    tail = gemm32(k, False, k.capture(lambda: prolog(False)), ldA, {w_ - 1 for w_ in wbar}, st0, None, PDA, PTN)
    dispatch5(k, lambda v: tail(lambda jf: epi_qk1(k, v, jf), (), l5a))
    k.label(f"{nm}_qv"); k.vm = vm_save; k.lg = []
    tail = gemm32(k, True, k.capture(lambda: prolog(True)), ldA, {w_ - 1 for w_ in wbar}, st0, None, PDA, PTN)
    tail(lambda jf: epi_v1(k, jf, RS), (), l5a)
    k.label(f"{nm}_fin5")

def ph_front(k):
    k.ptag = "_f"; k.srdo = "s[12:15]"
    e = k.e; nm = k.name + k.ptag; kn = k.name
    R, DEP, SCRB, UT = 4, 2, 131072, 65536
    need = lambda ks: ks // 2
    slot = lambda st: (st % R) * 32768
    e("s_cmp_ge_u32 s2, 256"); e(f"s_cbranch_scc1 {kn}_end"); k.stamp(0); k.rstamp(1)
    e("s_load_dwordx4 s[60:63], s[0:1], 0"); e("s_load_dwordx2 s[6:7], s[0:1], 64")
    e("s_load_dwordx2 s[4:5], s[0:1], 56")
    e("s_and_b32 s20, s2, 7"); e("s_lshr_b32 s21, s2, 3")
    e("v_lshrrev_b32 v2, 6, v0"); e("v_and_b32 v1, 63, v0")
    e("v_readfirstlane_b32 s18, v2")
    e("s_and_b32 s39, s18, 3"); e("s_lshl_b32 s45, s39, 10")
    ids_mt(k)
    e("v_lshlrev_b32 v3, 4, v1"); e(f"v_lshlrev_b32 v9, {ENV('BST', '6')}, v1")
    e("s_lshl_b32 s22, s2, 2"); e("s_add_u32 s22, s22, s39"); e("s_mul_i32 s23, s22, 2400")
    if ENV('XLOC', '1'): e("s_lshl_b32 s22, s20, 5"); e("s_add_u32 s22, s22, s21"); e("s_lshl_b32 s22, s22, 2"); e("s_add_u32 s22, s22, s39")
    e("s_mul_i32 s22, s22, 2560")
    def kwait():
        e("s_waitcnt lgkmcnt(0)")
        k.stamp(2)
        k.srd(8, 60, S*D*2); k.srd(28, 62, D*3*D*2); k.srd(12, 6, WS_END)
    def burst():
        if ENV('BURST', '1'):
            e("s_mov_b32 exec_hi, 0xff" if ENV('BST', '6') == 6 else "s_mov_b64 exec, 0xfffff")
            e(f"buffer_load_dword v240, v9, s[8:11], s22 offen {os.environ.get('XNT', '')}"); e(f"buffer_load_dword v241, v9, s[28:31], s23 offen {os.environ.get('WNT', '')}")
            e("s_mov_b64 exec, -1")
    def codepf(tg):
        if ENV('CPF', '1'):
            e("s_getpc_b64 s[34:35]"); k.label(f"{nm}_pc{tg}")
            e(f"s_sub_u32 s34, s34, {nm}_pc{tg} - {kn}"); e("s_subb_u32 s35, s35, 0")
            e("v_lshlrev_b32 v242, 4, v0"); e("s_lshl_b32 s36, s21, 12"); e("v_add_u32 v242, s36, v242")
            e(f"v_and_b32 v242, 0xffffffc0, v242"); e(f"v_min_u32 v242, code_end - {kn} - 4, v242")
            e("global_load_dword v243, v242, s[34:35]")
    e("s_cmp_ge_u32 s17, 15"); e(f"s_cbranch_scc1 {nm}_ub")
    e("v_and_b32 v10, 31, v1"); e("v_lshrrev_b32 v4, 5, v1"); e("v_and_b32 v5, 15, v1"); e("v_bfe_u32 v7, v1, 4, 1")
    e("v_lshrrev_b32 v13, 2, v5"); e("v_and_b32 v6, 3, v1")
    e("v_lshl_add_u32 v14, v4, 3, v13"); e("v_lshlrev_b32 v14, 8, v14"); e("v_lshl_add_u32 v14, v7, 5, v14"); e("v_lshl_add_u32 v14, v6, 3, v14")
    e("v_add_u32 v14, 16384, v14")
    def a0():
        e("s_lshl_b32 s48, s17, 11"); e(f"s_add_u32 s48, s48, {C0}"); e(f"v_lshlrev_b32 v{PV_+1}, 8, v1"); e("s_mov_b64 s[56:57], 0xff")
    SF = ENV('SF', '10')
    e("s_cmp_ge_u32 s18, 4"); e(f"s_cbranch_scc1 {nm}_ld")
    kwait(); burst(); codepf("c")
    if ENV('TLB', '1'):
        sh = ENV('TLBS', '18')
        e("s_load_dwordx4 s[84:87], s[0:1], 32"); e("s_load_dwordx2 s[88:89], s[0:1], 16")
        e(f"v_lshlrev_b32 v236, {sh}, v0" if sh < 21 else "v_lshlrev_b32 v236, 21, v1")
        e(f"v_min_u32 v236, {STAMPS-4}, v236")
        e("s_cmp_eq_u32 s18, 0" if sh == 21 else "s_cmp_lt_u32 s18, 4"); e(f"s_cbranch_scc0 {nm}_tl")
        e("buffer_load_dword v237, v236, s[12:15], 0 offen")
        e("v_and_b32 v236, 1, v1"); e("v_mul_u32_u24 v238, 819196, v236"); e("v_mul_u32_u24 v236, 2457596, v236"); e("s_mov_b64 exec, 3")
        e("s_waitcnt lgkmcnt(0)")
        e("global_load_dword v237, v236, s[84:85]"); e("global_load_dword v237, v238, s[86:87]"); e("global_load_dword v237, v238, s[88:89]")
        e("s_mov_b64 exec, -1")
        k.label(f"{nm}_tl")
        e("s_waitcnt lgkmcnt(0)")
    ACC, BF, AR, RS = 64, 128, 160, 200
    BA, AA = 216, 224
    e("s_lshl_b32 s19, s16, 2"); e("s_add_u32 s19, s19, s18")
    for jf in range(4):
        e(f"v_xor_b32 v15, {jf}, v13"); e(f"v_lshl_add_u32 v{BA+jf}, v15, 6, v14"); e(f"v_add_u32 v{BA+4+jf}, 65536, v{BA+jf}")
    e("v_lshl_add_u32 v15, v2, 5, v10"); e("v_lshlrev_b32 v15, 7, v15"); e("v_bfe_u32 v12, v10, 1, 3"); e("v_xor_b32 v12, v12, v4")
    for q in range(4):
        e(f"v_xor_b32 v11, {2*q}, v12"); e(f"v_lshl_add_u32 v{AA+q}, v11, 4, v15"); e(f"v_add_u32 v{AA+4+q}, 65536, v{AA+q}")
    e("v_mul_u32_u24 v8, 20480, v7"); e("v_lshl_add_u32 v8, v4, 8, v8"); e("v_lshl_add_u32 v8, v5, 4, v8")
    e("s_mul_i32 s24, s19, 40960"); e(f"s_add_u32 s24, s24, {XI}")
    e("v_subrev_u32 v58, 1, v4"); e("v_not_b32 v59, v58")
    e("s_lshl_b32 s40, s2, 2"); e("s_add_u32 s40, s40, s39"); e("s_mul_i32 s40, s40, 8192"); e(f"s_add_u32 s40, s40, {QIMG}"); e("v_lshlrev_b32 v238, 7, v1")
    e("s_cmp_ge_u32 s17, 10"); e(f"s_cbranch_scc1 {nm}_qv")
    FTN = ENV('FTN', '2'); K1 = 20 - FTN
    def mainloop(vmode):
        tagm = "v" if vmode else "q"
        acc = lambda jf: vr(ACC+16*jf, 16)
        fl = k.capture(lambda: addr_v(k, 0) if vmode else addr_qk(k, 0, 28))
        ops = [(ks, f//4, f%4) for ks in range(K1) for f in range(8)] + [(ks, u, jf) for jf in range(4) for ks in range(K1, 20) for u in range(2)]
        kb = [-1]; na = [0]
        def rdA(ks):
            sl = slot(ks//2)
            for u in range(2): k.dsop(f"ds_read_b128 {vr(AR+8*(ks%4)+4*u,4)}, v{AA+4*(sl>>16)+2*(ks%2)+u} offset:{sl & 0xffff}", f"a{ks}")
        def rd(i):
            ks, u, jf = ops[i]; sl = slot(ks//2)
            while kb[0] < need(ks): e("s_barrier"); kb[0] += 1
            while na[0] <= ks: rdA(na[0]); na[0] += 1
            for t in range(2):
                off = sl + (32*(ks%2) + 16*u + 4*t)*256
                k.dsop(f"ds_read_b64_tr_b16 {vr(BF+4*(i%8)+2*t,2)}, v{BA+4*(sl>>16)+jf} offset:{off & 0xffff}", f"b{i}")
        def mm(i):
            ks, u, jf = ops[i]
            if i % 2 == 0: k.waitlg(f"b{i+1}")
            a = vr(AR+8*(ks%4)+4*u, 4); b = vr(BF+4*(i%8), 4); c = acc(jf) if (ks or u) else "0"
            if vmode: e(f"v_mfma_f32_32x32x16_bf16 {acc(jf)}, {a}, {b}, {c}")
            else:     e(f"v_mfma_f32_32x32x16_bf16 {acc(jf)}, {b}, {a}, {c}")
            if i + 8 < 160: rd(i + 8)
        def xst(ks, tg):
            e(f"s_cmp_eq_u32 s17, {ks % 15}"); e(f"s_cbranch_scc0 {nm}_x{tg}{ks}")
            e(f"s_add_u32 s32, s24, {1024*ks}")
            for u in range(2): e(f"buffer_store_dwordx4 {vr(AR+8*(ks%4)+4*u,4)}, v8, s[12:15], s32 offen offset:{512*u} {SC}")
            k.label(f"{nm}_x{tg}{ks}")
        for i in range(8):
            rd(i)
            if i == 0: k.stamp(3)
        for ks in range(K1):
            for f in range(8):
                mm(8*ks + f)
                if ks >= 4: k.fill(fl, 1)
            xst(ks, tagm)
            if ks in (0, 1, 4, 9, 10, 14): k.stamp(7 + (0, 1, 4, 9, 10, 14).index(ks))
        assert not fl
        e(f"v_lshlrev_b32 v23, 2, v10"); e(f"v_add_u32 v23, {UT}, v23"); e("s_lshl_b32 s32, s18, 8"); e("v_add_u32 v22, s32, v23")
        if vmode: e("v_lshlrev_b32 v21, 4, v4"); e(f"s_add_u32 s32, s32, {UT}"); e("v_add_u32 v21, s32, v21")
        for n in range(2*FTN): mm(8*K1 + n)
        for ks in range(K1, 20): xst(ks, tagm)
        assert kb[0] == 9
        k.stamp(4)
        e("s_barrier")
        k.dsop("ds_read_b32 v48, v22 offset:1024", "u"); k.dsop("ds_read_b32 v49, v22 offset:1152", "u")
        for jf in range(4): k.dsop(f"ds_read_b32 v{28+2*jf}, v23 offset:{256*jf}", "u"); k.dsop(f"ds_read_b32 v{29+2*jf}, v23 offset:{256*jf+128}", "u")
        if vmode:
            for a_ in range(4): k.dsop(f"ds_read_b128 {vr(RS+4*a_,4)}, v21 offset:{2048+32*a_}", "u")
        else: k.dsop("ds_read_b32 v47, v22 offset:2048", "u")
        def corr(jf):
            if vmode: e(f"v_mfma_f32_32x32x8_bf16 {acc(jf)}, v[48:49], {vr(28+2*jf,2)}, {acc(jf)}")
            else:     e(f"v_mfma_f32_32x32x8_bf16 {acc(jf)}, {vr(28+2*jf,2)}, v[48:49], {acc(jf)}")
        for n in range(2): mm(8*K1 + 2*FTN + n)
        k.waitlg("u")
        e("v_and_b32 v48, v48, v58"); e("v_and_b32 v49, v49, v58")
        if not vmode: e("v_mul_f32 v47, s59, v47")
        corr(0)
        k.stamp(5)
        def tail(epi):
            pend = k.capture(lambda: epi(0))
            for jf in range(1, 4):
                for n in range(2 if jf == 1 else 0, 2*FTN):
                    mm(8*K1 + 2*FTN*jf + n)
                    if n >= (4 if jf == 1 else 2): k.fill(pend, ENV('TFILL', '4'))
                corr(jf)
                k.fill(pend, 1000)
                pend = k.capture(lambda: epi(jf))
            k.fill(pend, 1000)
        return tail
    tail = mainloop(False)
    dispatch5(k, lambda v: tail(lambda jf: epi_qk1(k, v, jf)))
    k.label(f"{nm}_qv"); k.lg = []
    tail = mainloop(True)
    tail(lambda jf: epi_v1(k, jf, RS))
    k.label(f"{nm}_fin5")
    k.stamp(6)
    e("s_barrier")
    signal(k, "sf", -1, 8, a0, 0, "s[12:15]")
    k.dump(13)
    e(f"s_branch {kn}_t0")
    k.label(f"{nm}_ld"); k.vm = []; k.lg = []
    e(f"s_setprio {ENV('LPRIO', '2')}")
    e("v_lshrrev_b32 v16, 4, v1"); e("v_and_b32 v17, 3, v2")
    e("v_lshl_add_u32 v18, v17, 2, v16"); e("v_mul_u32_u24 v20, 3840, v18")
    e("v_xor_b32 v18, v13, v16"); e("v_lshl_add_u32 v20, v18, 6, v20"); e("v_lshl_add_u32 v20, v6, 4, v20")
    e("v_lshrrev_b32 v18, 3, v1"); e("v_lshl_add_u32 v19, v17, 5, v18"); e("v_and_b32 v23, 7, v1")
    for i in range(4):
        e(f"v_add_u32 v42, {8*i}, v19"); e("v_bfe_u32 v43, v42, 1, 3"); e("v_xor_b32 v43, v43, v23")
        e("v_mul_u32_u24 v42, 1280, v42"); e(f"v_lshl_add_u32 v{48+i}, v43, 4, v42")
        if i: e(f"v_subrev_u32 v{48+i}, {1024*i}, v{48+i}")
    e("s_lshl_b32 s25, s17, 8"); e("s_mul_i32 s24, s16, 163840"); e("s_lshl_b32 s26, s39, 12")
    def ld1(st, n):
        if n < 4:
            e(f"s_add_u32 m0, s45, {slot(st)+16384+4096*n}"); e(f"s_add_u32 s32, s25, {(64*st+16*n)*3840}")
            k.vmop(f"buffer_load_dwordx4 v20, s[28:31], s32 offen {os.environ.get('WNT2', '')} lds", f"d{st}")
        else:
            e(f"s_add_u32 m0, s26, {slot(st)}"); e(f"s_add_u32 s33, s24, {128*st}")
            k.vmop(f"buffer_load_dwordx4 v{44+n}, s[8:11], s33 offen offset:{1024*(n-4)} {os.environ.get('XNT2', '')} lds", f"d{st}")
    ORD = [0, 4, 1, 5, 2, 6, 3, 7]
    def ld(st):
        for n in ORD: ld1(st, n)
    kwait(); ld(0)
    e("v_xor_b32 v15, v17, v13"); e("v_lshl_add_u32 v40, v15, 6, v14"); e("v_add_u32 v41, 65536, v40")
    e("v_and_b32 v42, 1, v16"); e("v_cmp_eq_u32 vcc, v42, v5"); e("v_mov_b32 v43, 0x3f803f80")
    for r in range(4): e(f"v_cndmask_b32 v{60+r}, 0, v43, vcc")
    k.srd(52, 4, 256)
    e("s_mul_i32 s27, s17, 163840"); e("s_add_u32 s27, s27, s45"); e(f"s_add_u32 s27, s27, {WA_I}")
    if ENV('LD1', '0'): ld(1)
    done = [0]
    def steps_of(kb):
        r = []
        while done[0] < 20 and need(done[0]) <= kb: r.append(done[0]); done[0] += 1
        return r
    def wa_store(q):
        e("s_lshl_b32 s32, s16, 13"); e("s_add_u32 s32, s32, s27")
        if q: e("s_add_u32 s32, s32, 131072")
        e("s_add_u32 s33, s32, 4096")
        for u in range(2): k.vmop(f"buffer_store_dwordx4 {vr(112+8*q+4*u,4)}, v3, s[12:15], s{32+u} offen {SC}")
    for kb in range(10):
        if kb == 5: k.stamp(5)
        k.waitvm(f"d{kb}")
        if kb == 5: k.stamp(6)
        e("s_barrier")
        if kb in (4, 5): k.stamp(2 if kb == 4 else 7)
        if kb == 0 and not ENV('LD1', '0'): ld(1)
        sl = slot(kb); todo = list(ORD) if kb + DEP < 10 else []
        nxt = lambda: ld1(kb + DEP, todo.pop(0)) if todo else None
        sts = steps_of(kb)
        for n_, ks in enumerate(sts):
            for u in range(2):
                for t in range(2):
                    e(f"ds_read_b64_tr_b16 {vr(136+8*n_+4*u+2*t,2)}, v{40+(sl>>16)} offset:{(sl + (32*(ks%2) + 16*u + 4*t)*256) & 0xffff}")
        nxt(); nxt()
        if kb == 4: k.stamp(3)
        e("s_waitcnt lgkmcnt(0)")
        mf = [(n_, ks, u) for n_, ks in enumerate(sts) for u in range(2)]
        for n_, ks, u in mf:
            e(f"v_mfma_f32_16x16x32_bf16 v[64:67], v[60:63], {vr(136+8*n_+4*u,4)}, {'v[64:67]' if ks or u else 0}")
            nxt()
        nxt(); nxt()
        if kb == 4: k.stamp(4)
        for n_, ks in enumerate(sts):
            e(f"s_cmp_eq_u32 s16, {ks % 16}"); e(f"s_cbranch_scc0 {nm}_w{ks}")
            for r in range(8): e(f"v_mov_b32 v{112+8*(ks//16)+r}, v{136+8*n_+r}")
            k.label(f"{nm}_w{ks}")
        assert not todo
        if kb == 8:
            e("v_and_b32 v24, 15, v1"); e("v_lshlrev_b32 v24, 2, v24"); e("s_mov_b32 s33, 0")
            k.label(f"{nm}_pl")
            e(f"buffer_load_dword v25, v24, s[52:55], 0 offen {SC}"); e("s_add_u32 s33, s33, 1"); e("s_waitcnt vmcnt(0)"); k.vm = []
            e("v_cmp_eq_u32 vcc, 0, v25"); e("s_cmp_ge_u32 s33, 0x20000"); e(f"s_cbranch_scc1 {nm}_px")
            e(f"s_cbranch_vccnz {nm}_pl")
            k.label(f"{nm}_px")
            e("v_lshlrev_b32 v24, 3, v10"); e("s_lshl_b32 s32, s16, 10"); e("s_lshl_b32 s33, s39, 8"); e("s_add_u32 s32, s32, s33"); e(f"s_add_u32 s32, s32, {STI}")
            k.vmop(f"buffer_load_dwordx2 v[44:45], v24, s[12:15], s32 offen {SC}", "rs")
        if kb == 9: k.waitvm("rs"); wa_store(0)
    k.waitvm("rs")
    stats_finish(k, 44, 45, 28, 29, 30)
    e("v_lshlrev_b32 v42, 2, v5"); e("ds_bpermute_b32 v68, v42, v64"); e("ds_bpermute_b32 v69, v42, v65"); e("v_cmp_eq_u32 vcc, 1, v7")
    split3(k, 28, 32, 36, 'm')
    e("s_waitcnt lgkmcnt(0)"); e("v_cndmask_b32 v64, v68, v69, vcc")
    split3(k, 64, 34, 36, 'u')
    e("v_lshlrev_b32 v24, 2, v10"); e("s_lshl_b32 s32, s39, 8"); e(f"s_add_u32 s32, s32, {UT}"); e("v_add_u32 v24, s32, v24")
    e("ds_write_b32 v24, v34"); e("ds_write_b32 v24, v35 offset:128"); e("ds_write_b32 v24, v32 offset:1024"); e("ds_write_b32 v24, v33 offset:1152"); e("ds_write_b32 v24, v29 offset:2048")
    e("s_waitcnt lgkmcnt(0)"); e("s_barrier")
    lwc_init(k); e("s_barrier")
    e("v_mov_b32 v44, v64")
    e("s_cmp_ge_u32 s16, 4"); e(f"s_cbranch_scc1 {nm}_le"); wa_store(1)
    e("s_cmp_eq_u32 s16, 0"); e(f"s_cbranch_scc0 {nm}_le")
    e("v_mov_b32 v45, 0"); e("v_mov_b32 v46, 0"); e("v_mov_b32 v47, 0"); e("v_lshlrev_b32 v24, 4, v10")
    e("s_lshl_b32 s32, s17, 11"); e("s_lshl_b32 s33, s39, 9"); e("s_add_u32 s32, s32, s33"); e(f"s_add_u32 s32, s32, {U_A}")
    e("s_mov_b32 exec_hi, 0"); e(f"buffer_store_dwordx4 v[44:47], v24, s[12:15], s32 offen {SC}")
    k.label(f"{nm}_le")
    e("s_mov_b64 exec, -1")
    signal(k, "sfl", -1, 8, a0, 0, "s[12:15]")
    k.dump(8)
    e(f"s_branch {kn}_t0")
    k.label(f"{nm}_ub"); k.vm = []; k.lg = []
    kwait()
    e("v_lshrrev_b32 v4, 3, v1"); e("v_lshl_add_u32 v4, v2, 4, v4"); e("v_mul_u32_u24 v5, 1280, v4"); e("v_and_b32 v6, 7, v1"); e("v_lshl_add_u32 v5, v6, 4, v5")
    e("s_mul_i32 s24, s16, 163840"); e("s_add_u32 s25, s24, 10240")
    for b_ in range(2):
        for i in range(10): k.vmop(f"buffer_load_dwordx4 {vr(24+40*b_+4*i,4)}, v5, s[8:11], s{24+b_} offen offset:{128*i} {os.environ.get('XNT2', '')}", f"x{b_}{i}")
    for j in range(8): e(f"v_mov_b32 v{8+j}, 0")
    e("v_mov_b32 v7, 0x3f803f80")
    e("v_lshlrev_b32 v16, 4, v0"); e("s_and_b32 s26, s16, 7"); e("s_lshl_b32 s26, s26, 13"); e(f"s_add_u32 s26, s26, {CNT}"); e("s_cmp_ge_u32 s16, 8"); e(f"s_cselect_b32 s27, {LS}, 0"); e("s_add_u32 s26, s26, s27")
    k.vmop(f"buffer_store_dwordx4 v[12:15], v16, s[12:15], s26 offen {SC}")
    for b_ in range(2):
        for i in range(10):
            k.waitvm(f"x{b_}{i}")
            for q in range(4):
                r = 24+40*b_+4*i+q
                e(f"v_dot2_f32_bf16 v{8+2*b_}, v{r}, v7, v{8+2*b_}"); e(f"v_dot2_f32_bf16 v{9+2*b_}, v{r}, v{r}, v{9+2*b_}")
    for dpp in ("quad_perm:[1,0,3,2]", "quad_perm:[2,3,0,1]", "row_half_mirror"):
        for q in range(4): e(f"v_add_f32_dpp v{8+q}, v{8+q}, v{8+q} {dpp} row_mask:0xf bank_mask:0xf")
    e("v_lshlrev_b32 v4, 3, v4"); e("s_lshl_b32 s26, s16, 10"); e(f"s_add_u32 s26, s26, {STI}")
    e("v_cmp_eq_u32 vcc, 0, v6"); k.srd(52, 4, 256); e("s_mov_b64 exec, vcc")
    e(f"buffer_store_dwordx2 v[8:9], v4, s[12:15], s26 offen {SC}"); e(f"buffer_store_dwordx2 v[10:11], v4, s[12:15], s26 offen offset:64 {SC}")
    e("s_mov_b64 exec, -1"); lwc_init(k)
    e("s_waitcnt vmcnt(0)"); e("s_barrier")
    e("s_cmp_ge_u32 s18, 4"); e(f"s_cbranch_scc1 {nm}_u2")
    codepf("u")
    e("s_cmp_eq_u32 s18, 0"); e(f"s_cbranch_scc0 {nm}_u2")
    e("v_mov_b32 v4, 0"); e("v_mov_b32 v5, 1"); e("s_lshl_b32 s26, s16, 2"); e("s_mov_b64 exec, 1")
    e(f"buffer_store_dword v5, v4, s[52:55], s26 offen {SC}")
    e("s_mov_b64 exec, 0xffff"); e("v_lshlrev_b32 v4, 2, v1"); e("s_mov_b32 s33, 0")
    k.label(f"{nm}_u1")
    e(f"buffer_load_dword v5, v4, s[52:55], 0 offen {SC}"); e("s_add_u32 s33, s33, 1"); e("s_waitcnt vmcnt(0)")
    e("v_cmp_eq_u32 vcc, 0, v5"); e("s_cmp_ge_u32 s33, 0x20000"); e(f"s_cbranch_scc1 {nm}_u2"); e(f"s_cbranch_vccnz {nm}_u1")
    k.label(f"{nm}_u2")
    e("s_mov_b64 exec, -1"); e("s_waitcnt vmcnt(0)")

def k_main():
    k = KB(NAME + "_kernel"); e = k.e; name = k.name
    ph_front(k)
    k.label(f"{name}_t0")
    e("s_load_dwordx2 s[46:47], s[0:1], 48"); e("s_mov_b32 s3, 0")
    k.srd(8, 6, 2*LS)
    e("s_waitcnt lgkmcnt(0)")
    k.srd(60, 46, S*D*2)
    k.label(f"{name}_top")
    k.vm = []; k.lg = []
    e("s_setprio 0"); k.stamp(0); k.rstamp(1)
    ph_attn(k)
    def a1():
        e("s_lshl_b32 s48, s17, 3"); e("s_and_b32 s49, s16, 1"); e("s_add_u32 s48, s48, s49"); e("s_lshl_b32 s48, s48, 8"); e(f"s_add_u32 s48, s48, {C1}")
        e(f"v_lshlrev_b32 v{PV_+1}, 9, v1"); e("s_mov_b64 s[56:57], 15")
    e("s_cmp_ge_u32 s18, 4"); e(f"s_cbranch_scc1 {name}_ld")
    signal(k, "s1", 0, 8, a1)
    def c1():
        e("s_lshl_b32 s48, s16, 9"); e(f"s_add_u32 s48, s48, {C1}")
        e(f"v_lshlrev_b32 v{PV_+1}, 8, v1"); e(f"v_mov_b32 v{PV_+2}, 16"); e("s_mov_b64 s[56:57], 3")
    proj_c(k, "p2", OT, XI, XM, STM, False, c1, 0, 6)
    def a2():
        e("s_lshr_b32 s48, s16, 1"); e("s_lshl_b32 s48, s48, 9"); e(f"s_add_u32 s48, s48, {C2}")
        e(f"v_mul_u32_u24 v{PV_+1}, 768, v1"); e("s_bitcmp1_b32 s16, 0"); e("s_cselect_b64 s[56:57], 3, 1")
    signal(k, "s2", 1, 4, a2)
    qkvb_c(k, XM, STM, 9)
    def a3(): one(k, 0); e("s_lshl_b32 s48, s16, 8"); e(f"s_add_u32 s48, s48, {C3}")
    signal(k, "s3", 0, 4, a3)
    def c3(): one(k, 16); e("s_lshr_b32 s48, s16, 1"); e("s_lshl_b32 s48, s48, 8"); e(f"s_add_u32 s48, s48, {C3}")
    proj_c(k, "p4", OBT, XM, XI, STI, True, c3, 0, 12)
    def a4(): one(k, 0); e("s_lshr_b32 s48, s16, 1"); e("s_lshl_b32 s48, s48, 8"); e(f"s_add_u32 s48, s48, {C4}")
    signal(k, "s4", 1, 4, a4)
    k.dump(15, "1")
    ids_mt(k)
    e("s_cmp_ge_u32 s17, 15"); e(f"s_cbranch_scc1 {name}_idle")
    qkva_c(k, XI, STI, 0, C4, [7], 3)
    k.stamp(6)
    e("s_barrier")
    def a5(): e("s_lshl_b32 s48, s17, 11"); e(f"s_add_u32 s48, s48, {LS + C0}"); e(f"v_lshlrev_b32 v{PV_+1}, 8, v1"); e("s_mov_b64 s[56:57], 0xff")
    signal(k, "s5", -1, 4, a5)
    k.dump(7, "3")
    k.label(f"{name}_t1")
    e("s_mov_b32 s3, 1"); e(f"s_add_u32 s8, s8, {LS}"); e("s_addc_u32 s9, s9, 0"); e(f"s_mov_b32 s10, {LS}")
    e(f"s_branch {name}_top")
    k.label(f"{name}_idle")
    for _ in range(4): e("s_barrier")
    e(f"s_branch {name}_t1")
    k.label(f"{name}_ld"); k.vm = []; k.lg = []
    if os.environ.get("FOC") == "at": e("s_add_u32 s84, s3, 4"); k.dump(8, "s84")
    e(f"s_setprio {ENV('LPRIO', '2')}")
    w = proj_l(k, WOA_I, WB_I, OT, a1, EARLY)
    qkvb_l(k, XM, STM, w)
    w = proj_l(k, WOB_I, WA_I, OBT, None, 0, True)
    ids_mt(k)
    atouch_pre(k, XI)
    e("s_barrier")
    w.one(39); e("s_waitcnt vmcnt(0)"); e("s_barrier")
    e("s_barrier"); lwc_init(k); e("s_barrier")
    e(f"s_branch {name}_t1")
    k.label(f"{name}_end"); e("s_endpgm")
    k.tail()
    return k.text(256 if STAMP else 244, 256 if STAMP else 244)

DOC = """
;   2 x [ full attention -> out projection + residual -> QKV + dilated local attention -> out projection + residual -> next QKV ]
; Hand-offs between workgroups: write-through (sc1) stores, s_waitcnt vmcnt(0), one agent-scope atomic per workgroup on a
; counter in d_ws (zeroed in this launch, published through d_debug), bounded polling, sc1 loads.  Placement only affects speed.
; Full attention: exp2(s) with 0 standing in for the row max; the row sum and the output are range-checked at run time and
; a wave whose check fails recomputes its rows with the true row max (label *_slow).  Local attention subtracts the true max.
"""
def build():
    hdr = open("cdna_kernels/" + NAME + ".s.ref").read().split("; Override launch")[0]
    out = hdr + "; @launch grid=(256,1,1) block=(512,1,1) lds=163840\n"
    out += '.amdgcn_target "amdgcn-amd-amdhsa--gfx950"\n'
    out += DOC
    out += k_main()
    out += ".text\ncode_end:\n"
    return out

if __name__ == "__main__":
    dst = sys.argv[1] if len(sys.argv) > 1 else "cdna_kernels/" + NAME + ".s"
    open(dst, "w").write(build())
    print("wrote", dst)
```

```python
import sys, math
from lint import lint, fix

NAME = "interleave_layers__softmax_full_mha__sliding_local_dilated__prompt"
S, D, H, DH = 2048, 640, 32, 20
XS = S*D*2
IMG = H*64*2560
QI = H*64*1280
CNT = 0
C1 = CNT; C2 = C1 + 64*256; C3 = C2 + 34*256; C4 = C3 + 16*256; C0 = C4 + 16*256
LS = 65536
CS = LS + C4
XI = 2*LS; STI = XI + XS
QIMG = STI + S*64; KVIMG = QIMG + QI
OT = KVIMG + IMG; OBT = OT + XS; XM = OBT + XS
STM = XM + XS
U_A = STM + S*64
U_B = U_A + 32768
WA_I = U_B + 163840
WOA_I = WA_I + 15*163840
WB_I = WOA_I + 819200
WOB_I = WB_I + 16*163840
STAMPS = WOB_I + 819200
WS_END = STAMPS + 16*262144
import os
STAMP = int(os.environ.get("STAMP", "0"))
ATTN_WAVES = 8
AV = os.environ.get("AV", "")
CSCALE = (DH ** -0.5) * math.log2(math.e)
import struct
def fbits(x): return "0x%08x" % struct.unpack("<I", struct.pack("<f", x))[0]

FM = [(0,16),(32,48),(80,96),(112,128),(64,144)]
def FX(ks, t):
    return 160*(ks//5) + FM[ks%5][t]

class KB:
    def __init__(s, name):
        s.name = name; s.L = []; s.vm = []; s.lg = []; s.cap = None
    def e(s, line):
        if s.cap is not None: s.cap.append(('e', line, None))
        else: s.L.append("    " + line)
    def capture(s, fn):
        s.cap = []; fn(); c = s.cap; s.cap = None
        return [x for x in c if not (x[0] == 'e' and x[1].startswith('s_nop'))]
    def fill(s, lst, n=1):
        for _ in range(n):
            if not lst: return
            kind, a, b = lst.pop(0)
            if kind == 'e':
                s.e(a)
                if a.startswith('s_mov_b64 exec, s['):
                    while True:
                        x = lst.pop(0)[1]; s.e(x)
                        if x == 's_mov_b64 exec, -1': break
                if a.startswith('s_cmp'):
                    while lst and lst[0][0] == 'e' and lst[0][1].startswith('s_cselect'): s.e(lst.pop(0)[1])
            elif kind == 'ds': s.dsop(a, b)
            elif kind == 'wvm': s.waitvm(a)
            elif kind == 'wlg': s.waitlg(a)
    def c(s, txt): s.L.append("    ; " + txt)
    def label(s, l): s.L.append(l + ":")
    def vmop(s, line, tag=None): s.e(line); s.vm.append(tag); assert len(s.vm) <= 63, (s.name, len(s.vm))
    def dsop(s, line, tag=None):
        if s.cap is not None: s.cap.append(('ds', line, tag)); return
        s.e(line); s.lg.append(tag)
    def _n(s, lst, tag):
        idx = max(i for i, t in enumerate(lst) if t == tag)
        return idx
    def waitvm(s, tag):
        if s.cap is not None: s.cap.append(('wvm', tag, None)); return
        if tag not in s.vm: return
        i = s._n(s.vm, tag); n = len(s.vm) - 1 - i
        s.e(f"s_waitcnt vmcnt({n})"); s.vm = s.vm[i+1:]
    def waitlg(s, tag):
        if s.cap is not None: s.cap.append(('wlg', tag, None)); return
        if tag not in s.lg: return
        i = s._n(s.lg, tag); n = len(s.lg) - 1 - i
        if n > 15: n = 15; i = len(s.lg) - 1 - n
        s.e(f"s_waitcnt lgkmcnt({n})"); s.lg = s.lg[i+1:]
    def waitall(s):
        s.e("s_waitcnt vmcnt(0) lgkmcnt(0)"); s.vm = []; s.lg = []
    def srd(s, r, base, nbytes):
        s.e(f"s_mov_b32 s{r}, s{base}")
        s.e(f"s_and_b32 s{r+1}, s{base+1}, 0xffff")
        s.e(f"s_mov_b32 s{r+2}, {nbytes}")
        s.e(f"s_mov_b32 s{r+3}, 0x20000")
    def stamp(s, i):
        if not STAMP: return
        op = "s_memrealtime" if os.environ.get("RT") else "s_memtime"
        s.e(f"{op} s[{64+2*i}:{65+2*i}]" if i < 10 else f"{op} s[{72+2*i}:{73+2*i}]")
    def rstamp(s, i):
        if not STAMP: return
        s.e(f"s_memrealtime s[{64+2*i}:{65+2*i}]")
    def dump(s, n=8, slot="0", wave="s18"):
        if not STAMP: return
        e = s.e
        if os.environ.get("DBG"):
            keep = {"0": [(1, 246), (3, 247), (6, 248)], "1": [(2, 249), (5, 250), (14, 251)], "3": [(6, 252)], "2": [(2, 253), (5, 254), (14, 255)]}[slot]
            e("s_waitcnt lgkmcnt(0)")
            if n < 7 or (slot == "0" and n == 8): return
            for i, v in keep: e(f"v_mov_b32 v{v}, s{64+2*i if i < 10 else 72+2*i}")
            if slot == "2":
                e(f"s_cmp_eq_u32 s2, {os.environ['DBG']}"); e("s_cbranch_scc0 dbg_skip"); e("s_cmp_eq_u32 s18, 0"); e("s_cbranch_scc0 dbg_skip")
                e("s_load_dwordx2 s[84:85], s[0:1], 56"); e("s_memrealtime s[86:87]"); e("s_waitcnt lgkmcnt(0)")
                s.srd(88, 84, 256); e("s_mov_b64 exec, 1"); e("v_mov_b32 v0, 0"); e("v_mov_b32 v245, s86"); e("v_sub_u32 v245, v245, v246")
                for i in range(9):
                    e(f"v_sub_u32 v{247+i}, v{247+i}, v246"); e(f"buffer_store_dword v{247+i}, v0, s[88:91], 0 offen offset:{4*i}")
                e("buffer_store_dword v245, v0, s[88:91], 0 offen offset:36")
                s.label("dbg_skip")
            return
        e("s_memrealtime s[86:87]"); e("s_waitcnt lgkmcnt(0)")
        e("s_mov_b64 exec, 1")
        e(f"s_lshl_b32 s84, {slot}, 18")
        e("s_lshl_b32 s85, s2, 3"); e(f"s_add_u32 s85, s85, {wave}"); e("s_lshl_b32 s85, s85, 6"); e(f"s_add_u32 s85, s85, {STAMPS}"); e("s_add_u32 s85, s85, s84")
        e("v_mov_b32 v244, 0")
        for i in range(n):
            e(f"v_mov_b32 v245, s{64+2*i if i < 10 else 72+2*i}")
            e(f"buffer_store_dword v245, v244, s[12:15], s85 offen offset:{4*i}")
        e("v_mov_b32 v245, s86"); e("buffer_store_dword v245, v244, s[12:15], s85 offen offset:60")
        e("s_mov_b64 exec, -1")
    def text(s, vgpr, accum, sgpr=102):
        s.L, added = fix(s.L)
        if os.environ.get("V"): print(s.name, "auto nops:", added, "lines:", len(s.L))
        out = [".text", f".globl {s.name}", ".p2align 8", f".type {s.name},@function", f"{s.name}:"]
        out += s.L
        out += ['.section .rodata,"a"', ".p2align 6", f".amdhsa_kernel {s.name}",
                f"  .amdhsa_next_free_vgpr {vgpr}", f"  .amdhsa_next_free_sgpr {sgpr}", f"  .amdhsa_accum_offset {accum}",
                "  .amdhsa_group_segment_fixed_size 0", "  .amdhsa_kernarg_size 72", "  .amdhsa_user_sgpr_count 2",
                "  .amdhsa_user_sgpr_kernarg_segment_ptr 1", "  .amdhsa_system_sgpr_workgroup_id_x 1", ".end_amdhsa_kernel"]
        nb = lint(s.L, s.name)
        assert nb == 0, f"{nb} hazards in {s.name}"
        return "\n".join(out) + "\n"
    def allred32(s, op, v, t):
        s.e(f"v_mov_b32 v{t}, v{v}"); s.e("s_nop 1")
        s.e(f"v_permlane32_swap_b32 v{v}, v{t}"); s.e("s_nop 1")
        s.e(f"{op} v{v}, v{v}, v{t}")
    def allred16(s, op, v, t):
        s.e(f"v_mov_b32 v{t}, v{v}"); s.e("s_nop 1")
        s.e(f"v_permlane16_swap_b32 v{v}, v{t}"); s.e("s_nop 1")
        s.e(f"{op} v{v}, v{v}, v{t}")

def vr(a, n): return f"v[{a}:{a+n-1}]" if n > 1 else f"v{a}"
def ar(a, n): return f"a[{a}:{a+n-1}]" if n > 1 else f"a{a}"

def stats_finish(k, s1, s2, mean, rstd, t):
    e = k.e
    e(f"v_mul_f32 v{mean}, {fbits(1.0/D)}, v{s1}")
    e(f"v_mul_f32 v{t}, {fbits(1.0/D)}, v{s2}")
    e(f"v_fma_f32 v{t}, -v{mean}, v{mean}, v{t}")
    e(f"v_max_f32 v{t}, 0, v{t}")
    e(f"v_add_f32 v{t}, {fbits(1e-5)}, v{t}")
    e(f"v_rsq_f32 v{rstd}, v{t}")
    e("s_nop 0")

def split3(k, src, d, t, kind, maskv=None):
    e = k.e
    if kind == 'm':
        e(f"v_xor_b32 v{t+1}, 0x80000000, v{src}"); src = t+1
    e(f"v_and_b32 v{t}, 0xffff0000, v{src}")
    e(f"v_sub_f32 v{t+2}, v{src}, v{t}")
    if kind == 'u':
        e(f"v_cvt_pk_bf16_f32 v{d}, v{t}, v{t+2}")
        e(f"v_lshrrev_b32 v{d+1}, 16, v{t}")
    else:
        e(f"v_cvt_pk_bf16_f32 v{d}, v{t}, v{t}")
        e(f"v_cvt_pk_bf16_f32 v{d+1}, v{t+2}, 0")
    if maskv is not None:
        e(f"v_and_b32 v{d}, v{d}, v{maskv}"); e(f"v_and_b32 v{d+1}, v{d+1}, v{maskv}")

SC = "sc1"
RS_ = lambda off: "s[12:15]" if off >= 2*LS else "s[8:11]"
EARLY = int(os.environ.get('EARLY', '6'))
ENV = lambda n, d: int(os.environ.get(n, d))

def ids_mt(k):
    k.e("s_lshl_b32 s22, s20, 1"); k.e("s_and_b32 s23, s21, 1"); k.e("s_add_u32 s16, s22, s23"); k.e("s_lshr_b32 s17, s21, 1")
def ids_rt(k):
    k.e("s_lshl_b32 s22, s20, 2"); k.e("s_and_b32 s23, s21, 3"); k.e("s_add_u32 s16, s22, s23"); k.e("s_lshr_b32 s17, s21, 2")

LW = 163824
PV_ = 240
def lw_init(k):
    e = k.e
    e(f"v_mov_b32 v{PV_+3}, {LW}")
    for i in range(3): e(f"v_mov_b32 v{PV_+i}, 0")
    e(f"ds_write_b96 v{PV_+3}, v[{PV_}:{PV_+2}]"); e(f"ds_write_b32 v{PV_+3}, v{PV_} offset:12")

def lwc_init(k):
    k.e(f"v_mov_b32 v{PV_+3}, {LW-8}"); k.e(f"v_mov_b32 v{PV_}, 0"); k.e(f"v_mov_b32 v{PV_+1}, 0")
    k.e(f"ds_write_b64 v{PV_+3}, v[{PV_}:{PV_+1}]"); k.e("s_waitcnt lgkmcnt(0)")

def signal(k, tag, word, nw, addr_code, younger=0, srd="s[8:11]"):
    e = k.e
    addr_code()
    e(f"v_mov_b32 v{PV_+3}, {LW-8}"); e(f"v_mov_b32 v{PV_}, 1")
    e("s_mov_b64 exec, 1")
    assert younger == 0
    e("s_waitcnt vmcnt(0)"); k.vm = []
    if tag == os.environ.get("FOC"): k.stamp(2)
    e(f"ds_add_rtn_u32 v{PV_+2}, v{PV_+3}, v{PV_} offset:{8*word+8}")
    e("s_waitcnt lgkmcnt(0)"); k.lg = []
    e(f"v_readfirstlane_b32 s49, v{PV_+2}")
    e("s_mov_b64 exec, s[56:57]")
    e(f"s_cmp_eq_u32 s49, {nw-1}"); e(f"s_cbranch_scc0 {k.name}_{tag}_sg")
    e(f"buffer_atomic_add v{PV_}, v{PV_+1}, {srd}, s48 offen {SC}")
    if os.environ.get("FOC2") == tag: k.stamp(4)
    k.label(f"{k.name}_{tag}_sg")
    e("s_mov_b64 exec, -1")

def wait_go(k, tag, word, poll_code):
    e = k.e; nm = f"{k.name}_{tag}"
    e(f"v_mov_b32 v{PV_+3}, {LW-8}"); e("s_mov_b32 s49, 0")
    if poll_code:
        e("s_cmp_eq_u32 s18, 0"); e(f"s_cbranch_scc0 {nm}_sp")
        poll_code()
        e("s_mov_b64 exec, s[56:57]")
        if os.environ.get("FOC") == "g" + tag: k.stamp(2)
        k.label(f"{nm}_pl")
        e(f"v_mov_b32 v{PV_}, 0")
        e(f"buffer_atomic_add v{PV_}, v{PV_+1}, s[8:11], s48 offen sc0 sc1")
        e("s_add_u32 s49, s49, 1")
        e("s_waitcnt vmcnt(0)")
        e(f"v_cmp_ge_u32 vcc, v{PV_}, v{PV_+2}")
        e("s_cmp_ge_u32 s49, 0x20000"); e(f"s_cbranch_scc1 {nm}_px")
        e("s_cmp_eq_u64 vcc, exec"); e(f"s_cbranch_scc0 {nm}_pl")
        k.label(f"{nm}_px")
        if os.environ.get("FOC") == "g" + tag: e("s_add_u32 s70, s64, s49")
        e("s_mov_b64 exec, 1"); e(f"v_mov_b32 v{PV_}, 1")
        e(f"ds_write_b32 v{PV_+3}, v{PV_} offset:{8*word+12}")
        e(f"s_branch {nm}_go")
    k.label(f"{nm}_sp")
    e("s_sleep 1")
    e(f"ds_read_b32 v{PV_}, v{PV_+3} offset:{8*word+12}")
    e("s_add_u32 s49, s49, 1")
    e("s_waitcnt lgkmcnt(0)")
    e(f"v_readfirstlane_b32 s44, v{PV_}")
    e("s_cmp_ge_u32 s49, 0x400000"); e(f"s_cbranch_scc1 {nm}_go")
    e("s_cmp_eq_u32 s44, 0"); e(f"s_cbranch_scc1 {nm}_sp")
    k.label(f"{nm}_go")
    e("s_mov_b64 exec, -1")

class Wdma:
    def __init__(s, k, n, base=50, tag="w"): s.k = k; s.n = n; s.i = 0; s.base = base; s.tag = tag
    def one(s, i):
        s.k.e(f"s_add_u32 m0, s45, {4096*i}"); s.k.e(f"s_add_u32 s32, s{s.base}, {4096*i}")
        s.k.vmop(f"buffer_load_dwordx4 v3, s[12:15], s32 offen {SC} lds", f"{s.tag}{i}")
    def go(s, upto):
        while s.i < min(upto, s.n): s.one(s.i); s.i += 1
    def rng(s, a, b, thr=0):
        for i in range(a, b):
            s.one(i)
            if thr and len(s.k.vm) >= thr: s.k.e(f"s_waitcnt vmcnt({thr-1})"); s.k.vm = s.k.vm[len(s.k.vm)-thr+1:]

SIDE_SV = 152; SIDE_D = 160; SIDE_U = 192
def side_setup(k):
    e = k.e; nm = k.name
    e("s_load_dwordx4 s[84:87], s[0:1], 32"); e("s_load_dwordx2 s[88:89], s[0:1], 16")
    e("s_mul_i32 s49, s2, 3"); e("s_add_u32 s49, s49, s18"); e("s_sub_u32 s49, s49, 4")
    e("s_sub_u32 s32, s18, 4"); e("s_cmp_lt_u32 s32, 3"); e("s_cselect_b32 s49, s49, 959"); e("s_cmp_eq_u32 s3, 0"); e("s_cselect_b32 s49, s49, 959")
    e("s_lshl_b32 s35, s39, 13"); e("s_add_u32 s35, s35, 112640")
    e("s_mul_i32 s36, s49, 3277"); e("s_lshr_b32 s36, s36, 16"); e("s_mul_i32 s37, s36, 20"); e("s_sub_u32 s37, s49, s37")
    e("v_and_b32 v140, 15, v1"); e("v_lshrrev_b32 v141, 2, v140"); e("v_and_b32 v142, 3, v1")
    e("s_waitcnt lgkmcnt(0)")
    SV = SIDE_SV
    e("v_lshrrev_b32 v136, 4, v1")
    for r in list(range(SV, SV+5)) + list(range(144, 152)): e(f"v_mov_b32 v{r}, 0")
    e("s_mov_b32 s5, 0")
    e("s_mov_b32 s53, 0x7ff00000"); e("s_mov_b32 s54, s53"); e("s_mov_b32 s58, s53")
    e("s_cmp_ge_u32 s49, 320"); e(f"s_cbranch_scc1 {nm}_ss1")
    k.srd(88, 84, D*3*D*2)
    e(f"s_mul_i32 s5, s37, {32*3840}"); e("s_mul_i32 s32, s36, 80"); e("s_add_u32 s5, s5, s32")
    e("v_lshlrev_b32 v137, 2, v136"); e("v_xor_b32 v137, v137, v140"); e("v_min_u32 v137, 14, v137")
    e("v_mul_u32_u24 v138, 52, v137"); e("v_lshrrev_b32 v138, 8, v138"); e("v_mul_u32_u24 v138, 1200, v138"); e("v_lshl_add_u32 v138, v137, 4, v138")
    e("v_mul_u32_u24 v137, 3840, v136"); e(f"v_add_u32 v{SV}, v138, v137")
    e("v_lshrrev_b32 v137, 5, v1"); e("v_lshl_add_u32 v137, v137, 3, v141"); e("v_lshlrev_b32 v137, 8, v137"); e("v_and_b32 v138, 1, v136")
    e("v_lshl_add_u32 v137, v138, 5, v137"); e("v_lshl_add_u32 v137, v142, 3, v137"); e("v_add_u32 v137, s35, v137")
    for jf in range(4): e(f"v_xor_b32 v139, {jf}, v141"); e(f"v_lshl_add_u32 v{144+jf}, v139, 6, v137")
    e("s_mul_i32 s53, s36, 163840"); e("s_lshl_b32 s54, s37, 13"); e("s_add_u32 s53, s53, s54"); e(f"s_add_u32 s53, s53, {WB_I}"); e("s_add_u32 s54, s53, 4096"); e("s_mov_b32 s58, s54")
    e(f"s_branch {nm}_ss2")
    k.label(f"{nm}_ss1")
    e("s_cmp_ge_u32 s36, 24"); e("s_cselect_b32 s32, s86, s88"); e("s_cselect_b32 s33, s87, s89")
    k.srd(88, 32, D*D*2)
    e("s_cmp_ge_u32 s49, 640"); e(f"s_cbranch_scc1 {nm}_ss2")
    e("s_and_b32 s32, s36, 7"); e("s_mul_i32 s32, s32, 160")
    e("s_mul_i32 s5, s37, 40"); e("s_sub_u32 s34, s37, 16"); e("s_mul_i32 s34, s34, 160"); e("s_add_u32 s34, s34, 16")
    e("s_cmp_lt_u32 s37, 16"); e("s_cselect_b32 s5, s5, s34"); e("s_cselect_b32 s33, 4, 2"); e("s_cselect_b32 s34, 4, 16")
    e("s_mul_i32 s5, s5, 1280"); e("s_add_u32 s5, s5, s32")
    for i in range(5):
        e(f"v_add_u32 v137, {64*i}, v1"); e("v_mul_u32_u24 v138, 6554, v137"); e("v_lshrrev_b32 v138, 16, v138")
        e("v_lshrrev_b32 v139, s33, v138"); e("v_mul_u32_u24 v139, s34, v139"); e("v_mul_u32_u24 v139, 1280, v139")
        e("v_mul_u32_u24 v138, 1120, v138"); e("v_add_u32 v139, v139, v138"); e(f"v_lshl_add_u32 v{SV+i}, v137, 4, v139")
    e("v_lshlrev_b32 v137, 2, v136"); e("s_mov_b32 s32, 2560")
    e("s_cmp_ge_u32 s36, 24"); e(f"s_cbranch_scc1 {nm}_sf3"); e("s_cmp_ge_u32 s37, 16"); e(f"s_cbranch_scc1 {nm}_sf3")
    e("v_lshrrev_b32 v137, 1, v136"); e("v_lshlrev_b32 v137, 4, v137"); e("v_and_b32 v138, 1, v136"); e("v_lshl_add_u32 v137, v138, 2, v137"); e("s_mov_b32 s32, 1280")
    k.label(f"{nm}_sf3")
    e("v_add_u32 v137, v137, v141"); e("v_mul_u32_u24 v137, 160, v137"); e("v_add_u32 v137, s35, v137")
    e("s_and_b32 s33, s36, 1"); e("s_lshl_b32 s34, s33, 5"); e("s_xor_b32 s33, s33, 1"); e("s_lshl_b32 s33, s33, 7")
    e("v_lshl_add_u32 v144, v142, 4, v137"); e("v_add_u32 v144, s34, v144"); e("v_add_u32 v145, s32, v144")
    e("v_lshl_add_u32 v146, v142, 3, v137"); e("v_add_u32 v146, s33, v146"); e("v_add_u32 v147, s32, v146")
    e("s_cmp_ge_u32 s36, 24"); e(f"s_cselect_b32 s53, {WOB_I-WOA_I}, 0"); e("s_and_b32 s54, s36, 7"); e("s_mul_i32 s54, s54, 102400"); e("s_add_u32 s53, s53, s54")
    e("s_mul_i32 s54, s37, 5120"); e("s_add_u32 s53, s53, s54"); e(f"s_add_u32 s53, s53, {WOA_I}"); e("s_add_u32 s54, s53, 4096")
    k.label(f"{nm}_ss2")
    e("s_lshl_b32 s38, s49, 9"); e(f"s_add_u32 s38, s38, {U_B}"); e("s_cmp_ge_u32 s49, 320"); e("s_cselect_b32 s38, 0x7ff00000, s38")
    e("v_lshlrev_b32 v143, 2, v1")
    e("s_cmp_lt_u32 s49, 640"); e("s_cselect_b32 s4, 2, 0"); e("s_cmp_lt_u32 s49, 320"); e("s_cselect_b32 s4, 1, s4")
    e("s_and_b32 s55, s49, 15"); e("s_lshl_b32 s55, s55, 8"); e(f"s_add_u32 s55, s55, {CS}")

def ph_attn(k):
    e = k.e; nm = k.name
    KA, KT, VA = 4, 5, 6
    Q = [8, 14]; KF = [24, 32]; VF = [40, 48]; SS = [56, 72]; P = 88; O = [96, 112]; PF = 208
    SCR = 137216; TOP = 112640
    ids_rt(k)
    e("v_and_b32 v3, 31, v1"); e("v_lshrrev_b32 v7, 5, v1")
    e("v_lshlrev_b32 v22, 4, v1"); e("v_lshlrev_b32 v23, 3, v3")
    e("s_mul_i32 s19, s16, 163840")
    e("s_lshr_b32 s41, s18, 2")
    e("s_lshl_b32 s23, s17, 3"); e("s_lshl_b32 s22, s39, 1"); e("s_add_u32 s23, s23, s22")
    e("s_add_u32 s23, s23, s41")
    e("s_lshr_b32 s22, s19, 1"); e(f"s_add_u32 s22, s22, {QIMG}")
    e("s_mul_i32 s24, s23, 1280"); e("s_add_u32 s24, s24, s22"); e("s_xor_b32 s40, s23, 1"); e("s_mul_i32 s40, s40, 1280"); e("s_add_u32 s40, s40, s22")
    e("s_mul_i32 s42, s41, 2560"); e(f"s_add_u32 s42, s42, {TOP}")
    e("s_lshl_b32 s25, s18, 10")
    e(f"s_add_u32 s26, s19, {KVIMG}")
    rnd = [0]
    def dma():
        i = rnd[0]; rnd[0] += 1
        if i == 6:
            e("s_cmp_lt_u32 s18, 2"); e("s_cselect_b32 s27, 163840, 0"); e("s_add_u32 s27, s27, s25"); e("s_sub_u32 m0, s27, 2048")
        else: e(f"s_add_u32 m0, s25, {(TOP + 8192*i) if i < 6 else 8192*i - 51200}")
        e("s_add_u32 s27, s26, m0")
        k.vmop(f"buffer_load_dwordx4 v22, s[12:15], s27 offen {SC} lds", f"i{i}")
    e(f"v_add_u32 v{KA}, s42, v22")
    e(f"v_add_u32 v{KT}, s42, v23"); e(f"v_add_u32 v{KT}, 1024, v{KT}")
    if ENV('KTZ', '1'): e(f"v_lshl_add_u32 v{KT}, v7, 20, v{KT}")
    e("v_mul_u32_u24 v21, 20, v7"); e("v_add_u32 v21, v21, v3"); e("v_lshlrev_b32 v21, 4, v21")
    e("v_add_u32 v21, 1280, v21"); e(f"v_add_u32 v{VA}, s42, v21")
    e("s_mov_b32 s28, 0x000fffff"); e("s_mov_b32 s29, 0x000fffff")
    e("v_cmp_eq_u32 vcc, 20, v3"); e("v_mov_b32 v20, 0x3f803f80"); e("s_nop 0")
    e("v_cndmask_b32 v20, 0, v20, vcc")
    for r in range(16): e(f"v_mov_b32 v{VF[0]+r}, v20")
    for r in range(32): e(f"v_mov_b32 v{O[0]+r}, 0")
    for r in range(4): e(f"v_mov_b32 v{P+4+r}, 0")
    e("v_subrev_u32 v30, 1, v7")
    e("s_lshl_b32 s43, s21, 2"); e("s_add_u32 s43, s43, s39"); e(f"s_mul_i32 s43, s43, {2048*ENV('NPF', '14') - 1024}"); e(f"s_add_u32 s43, s43, {WOA_I}")
    e("s_mul_i32 s32, s23, 40960"); e(f"s_add_u32 s32, s32, {OT}")
    e("s_lshr_b32 s51, s16, 1"); e("s_lshl_b32 s51, s51, 10"); e("s_and_b32 s34, s16, 1"); e("s_lshl_b32 s34, s34, 9")
    e("s_add_u32 s51, s51, s34"); e("s_add_u32 s51, s51, s32")
    e("s_lshr_b32 s52, s16, 3"); e("s_add_u32 s52, s52, 16"); e("s_lshl_b32 s52, s52, 10"); e("s_add_u32 s52, s52, s32")
    e("s_and_b32 s35, s16, 3"); e("s_lshl_b32 s35, s35, 8"); e("s_add_u32 s52, s52, s35")
    e("s_bfe_u32 s35, s16, 0x10002"); e("s_lshl_b32 s35, s35, 3"); e("s_add_u32 s52, s52, s35")
    e("v_lshrrev_b32 v38, 4, v3"); e("v_mul_u32_u24 v38, 20480, v38"); e("v_and_b32 v39, 15, v3")
    e("v_lshl_add_u32 v38, v39, 4, v38"); e("v_lshl_add_u32 v39, v7, 8, v38")
    e("s_mul_i32 s32, s18, 3072"); e("s_xor_b32 s33, s18, 4"); e("s_mul_i32 s33, s33, 3072")
    e(f"v_add_u32 v132, {SCR}, v22"); e("v_add_u32 v133, s33, v132"); e("v_add_u32 v132, s32, v132")
    def c0(nl):
        e("s_lshl_b32 s48, s17, 8"); e(f"s_add_u32 s48, s48, {C0}"); e(f"v_mov_b32 v{PV_+2}, 16")
        e("s_mul_i32 s32, s16, 20"); e("s_add_u32 s33, s32, 19"); e("s_lshr_b32 s32, s32, 7"); e("s_lshr_b32 s33, s33, 7"); e("s_sub_u32 s33, s33, s32")
        e(f"v_lshrrev_b32 v{PV_+1}, 1, v1"); e(f"v_mul_u32_u24 v{PV_+1}, 5, v{PV_+1}"); e(f"v_and_b32 v{PV_}, s33, v1"); e(f"v_add3_u32 v{PV_+1}, v{PV_+1}, v{PV_}, s32")
        e(f"v_lshlrev_b32 v{PV_+1}, 11, v{PV_+1}"); e("s_mov_b64 s[56:57], 63")
    side_setup(k)
    e("s_lshl_b32 s59, s2, 2"); e("s_add_u32 s59, s59, s39"); e("s_mul_i32 s50, s17, 102400"); e("s_add_u32 s50, s50, s25"); e(f"s_add_u32 s50, s50, {WOA_I}"); e(f"s_mul_i32 s59, s59, {-(-(U_A - OT) // 1024 // 128) * 128}"); e(f"s_add_u32 s59, s59, {OT}")
    e("v_lshlrev_b32 v234, 7, v1")
    e("v_lshlrev_b32 v134, 11, v1"); e("s_lshl_b32 s32, s17, 8"); e(f"s_add_u32 s32, s32, {C0}"); e("v_add_u32 v134, s32, v134")
    e("v_lshlrev_b32 v135, 8, v1"); e(f"v_add_u32 v135, {CS - 4096}, v135"); e("v_cmp_gt_u32 vcc, 16, v1")
    e("v_cndmask_b32 v134, v135, v134, vcc"); e("v_cndmask_b32 v131, 40, 16, vcc"); e("v_mov_b32 v135, 64")
    wait_go(k, "t", -1, lambda: c0(6))
    k.stamp(2)
    e("s_or_b32 s44, s3, s41"); e("s_xor_b32 s44, s44, 1")
    dma(); dma()
    for x in range(2):
        k.vmop(f"buffer_load_dwordx4 {vr(Q[x],4)}, v22, s[12:15], s{(24,40)[x]} offen {SC}", f"q{x}")
        k.vmop(f"buffer_load_dwordx2 {vr(Q[x]+4,2)}, v23, s[12:15], s{(24,40)[x]} offen offset:1024 {SC}", f"q{x}")
    k.waitvm("i1"); e("s_barrier"); k.stamp(3)
    if os.environ.get("FOC") == "clk": k.rstamp(0)
    def rdK(buf, off):
        off *= 2
        e(f"ds_read_b128 {vr(KF[buf],4)}, v{KA} offset:{off}")
        e(f"ds_read_b64 {vr(KF[buf]+4,2)}, v{KT} offset:{off}")
    def rdV(buf, off):
        off *= 2
        e("s_mov_b64 exec, s[28:29]")
        e(f"ds_read_b128 {vr(VF[buf],4)}, v{VA} offset:{off}")
        e(f"ds_read_b128 {vr(VF[buf]+4,4)}, v{VA} offset:{off+640}")
        e("s_mov_b64 exec, -1")
    def qkm(x, kb): e(f"v_mfma_f32_32x32x16_bf16 {vr(SS[x],16)}, {vr(KF[kb],4)}, {vr(Q[x],4)}, 0")
    def qkt(x, kb): e(f"v_mfma_f32_32x32x8_bf16 {vr(SS[x],16)}, {vr(KF[kb]+4,2)}, {vr(Q[x]+4,2)}, {vr(SS[x],16)}")
    def pv(x, vb, u): e(f"v_mfma_f32_32x32x16_bf16 {vr(O[x],16)}, {vr(VF[vb]+4*u,4)}, {vr(P+4*u,4)}, {vr(O[x],16)}")
    def base(t):
        return 0 if t < 10 else 10 if t < 22 else 22
    def bump(regs, t):
        if t == 10:
            for r in regs: e(f"v_subrev_u32 v{r}, {TOP}, v{r}")
        elif t == 22:
            for r in regs: e(f"v_add_u32 v{r}, {12*5120}, v{r}")
    def unit(x, t, extra=()):
        p = t % 2; s = SS[x]
        ex = lambda i: e(f"v_exp_f32 v{s+i}, v{s+i}")
        cv = lambda i: e(f"v_cvt_pk_bf16_f32 v{P+i}, v{s+2*i}, v{s+2*i+1}")
        kb = p if x == 0 else 1-p
        if x == 1: e("s_waitcnt lgkmcnt(2)" if t < 31 else "s_waitcnt lgkmcnt(0)")
        if not (x == 1 and t == 31): qkm(1-x, kb)
        if x == 1 and t + 2 < 32:
            bump((KA, KT), t+2); rdK(p, (t+2-base(t+2))*2560)
        for i in range(0, 4): ex(i)
        if x == 0:
            pv(1, 1-p, 1)
            if t + 1 < 32:
                bump((VA,), t+1); rdV(1-p, (t+1-base(t+1))*2560)
        else:
            pv(0, p, 1)
        for f_ in extra: f_()
        for i in range(4, 8): ex(i)
        for i in range(0, 4): cv(i)
        if not (x == 1 and t == 31): qkt(1-x, kb)
        for i in range(8, 12): ex(i)
        if x == 0: e(f"s_waitcnt lgkmcnt({4 if t < 31 else 0})")
        pv(x, p, 0)
        for i in range(12, 16): ex(i)
        for i in range(4, 8): cv(i)
    rdK(0, 0); rdV(0, 0); rdK(1, 2560)
    dma(); dma()
    def qmask(x):
        k.waitvm(f"q{x}"); e(f"v_and_b32 v{Q[x]+4}, v{Q[x]+4}, v30"); e(f"v_and_b32 v{Q[x]+5}, v{Q[x]+5}, v30")
    qmask(0)
    e("s_waitcnt lgkmcnt(4)")
    qkm(0, 0); e("s_nop 10"); qkt(0, 0); qmask(1); e("s_nop 7")
    SYN = {1: 3, 4: 7, 10: 19}; SW = ENV('SW', '27')
    T_SI, T_SR, T_SA, T_PF, T_LC = 10, ENV('TSR', '16'), 26, ENV('TPF', '15'), 27
    hk = [0]
    def cond(test, fn):
        def g():
            hk[0] += 1; lab = f"{nm}_hk{hk[0]}"
            e(test); e(f"s_cbranch_scc0 {lab}"); fn(); k.label(lab)
        return g
    def prio1(): e("s_setprio 1")
    def pref():
        for _ in range(2): e(f"buffer_load_dwordx4 {vr(PF,4)}, v22, s[12:15], s43 offen {SC}"); e("s_add_u32 s43, s43, 1024")
    def side_issue():
        e("s_cmp_eq_u32 s4, 1"); e(f"s_cbranch_scc0 {nm}_i1")
        for i in range(8):
            e(f"s_add_u32 m0, s35, {1024*i}"); e(f"s_add_u32 s27, s5, {4*3840*i}")
            e(f"buffer_load_dwordx4 v{SIDE_SV}, s[88:91], s27 offen {os.environ.get('SNT', 'nt')} lds")
        e(f"s_branch {nm}_i2")
        k.label(f"{nm}_i1")
        for i in range(5):
            e(f"s_add_u32 m0, s35, {1024*i}"); e("s_nop 0")
            e(f"buffer_load_dwordx4 v{SIDE_SV+i}, s[88:91], s5 offen {os.environ.get('SNT', 'nt')} lds")
        k.label(f"{nm}_i2")
    def side_read():
        e("s_waitcnt vmcnt(0)")
        e("s_cmp_eq_u32 s4, 1"); e(f"s_cbranch_scc0 {nm}_r1")
        for F in range(8):
            for t in range(2): e(f"ds_read_b64_tr_b16 {vr(SIDE_D+4*F+2*t,2)}, v{144+F%4} offset:{4096*(F//4)+1024*t}")
        e(f"s_branch {nm}_r2")
        k.label(f"{nm}_r1")
        for nf in range(5):
            for t in range(2): e(f"ds_read_b64_tr_b16 {vr(SIDE_D+4*nf+2*t,2)}, v{144+t if nf < 4 else 146+t} offset:{64*(nf//2)+8*(nf%2) if nf < 4 else 0}")
        k.label(f"{nm}_r2")
    def side_done():
        e("s_waitcnt lgkmcnt(0)"); e(f"v_mov_b32 v{PV_+3}, {LW-8}"); e(f"v_mov_b32 v{PV_}, 1"); e("s_mov_b64 exec, 1")
        e(f"ds_add_u32 v{PV_+3}, v{PV_}"); e("s_mov_b64 exec, -1")
    UA = (SIDE_U, 212)
    def side_sum(q):
        def g():
            if q == 0:
                for r in range(4): e(f"v_mov_b32 v{228+r}, 0x3f803f80")
            for u in range(2):
                for x in range(2): e(f"v_mfma_f32_32x32x16_bf16 {vr(UA[x],16)}, v[228:231], {vr(SIDE_D+16*u+8*q+4*x,4)}, {vr(UA[x],16) if u else 0}")
        return g
    def side_sum2(q):
        def g():
            e("v_cmp_gt_u32 vcc, 32, v1"); e(f"v_cndmask_b32 v{232+q}, v{UA[1]}, v{UA[0]}, vcc")
            e(f"buffer_store_dword v{232+q}, v143, s[12:15], s38 offen offset:{256*q} {SC}")
        return g
    def side_store(F):
        return lambda: e(f"buffer_store_dwordx4 {vr(SIDE_D+4*F,4)}, v22, s[12:15], s{53 if F < 4 else 54 if F == 4 else 58} offen offset:{1024*(F%4)} {SC}")
    def side_arrive():
        e(f"v_mov_b32 v{PV_+1}, 0"); e(f"v_mov_b32 v{PV_}, 1"); e("s_waitcnt vmcnt(0)"); e("s_mov_b64 exec, 1")
        e(f"buffer_atomic_add v{PV_}, v{PV_+1}, s[12:15], s55 offen {SC}"); e("s_mov_b64 exec, -1")
    def touch():
        e("buffer_load_dword v235, v234, s[12:15], s59 offen")
    def late():
        e("s_mov_b32 exec_lo, 0xffff7fff"); e("s_mov_b32 exec_hi, 0"); e(f"buffer_load_dword v135, v134, s[12:15], 0 offen {SC}"); e("s_mov_b64 exec, -1")
    def init_words(): lw_init(k); e(f"v_mov_b32 v{PV_+3}, {LW-8}"); e(f"ds_write_b32 v{PV_+3}, v{PV_}")
    side = "s_cmp_lg_u32 s4, 0"
    for t in range(32):
        if t in SYN: k.waitvm(f"i{SYN[t]}"); e("s_barrier")
        x0, x1 = [], []
        if rnd[0] < 20: x0 += [dma, dma]; x1 += [dma, dma]
        if t in (1, 4, 10): cond("s_cmp_ge_u32 s18, 4", prio1)()
        if t == 3: x0.append(lambda: e("s_setprio 0"))
        if t == 8: x1.append(lambda: e("s_setprio 0"))
        if t == 10:
            x0.append(cond("s_cmp_eq_u32 s18, 4", lambda: lw_init(k)))
            if os.environ.get("FOC") == "at": k.stamp(2)
        if t == SW + 1 and os.environ.get("FOC") == "at": k.stamp(0)
        if t == T_SI: x1.append(cond(side, side_issue))
        if t == T_SR: x1.append(cond(side, side_read))
        if t == T_SR + 1: x0.append(cond(side, lambda: e("s_waitcnt lgkmcnt(0)"))); x1.append(cond("s_cmp_eq_u32 s4, 1", side_sum(0)))
        if t == T_SR + 2: x0.append(cond("s_cmp_eq_u32 s4, 1", side_sum2(0))); x1.append(cond("s_cmp_eq_u32 s4, 1", side_sum(1)))
        if t == T_SR + 3: x0.append(cond("s_cmp_eq_u32 s4, 1", side_sum2(1)))
        if T_SR + 1 <= t < T_SR + 9: x1.append(cond(side, side_store(t - T_SR - 1)))
        if ENV('TCH', '7') and t == ENV('TCH', '7'): x0.append(lambda: k.waitvm("i19") if ENV('TW', '1') else None); x0.append(cond("s_cmp_lg_u32 s44, 0", touch))
        if t == T_SA: x0.append(cond(side, side_arrive))
        if T_PF <= t < T_PF + ENV('NPF', '14') and ENV('PFW', '1'): x0.append(cond("s_cmp_lt_u32 s18, 4", pref))
        if t == T_LC: x1.append(cond("s_cmp_eq_u32 s18, 0", late))
        if t == SW: (x1 if ENV('SWX', '0') else x0).append(lambda: e("s_setprio 0"))
        unit(0, t, x0); unit(1, t, x1)
    pv(1, 1, 1); k.stamp(4)
    if os.environ.get("FOC") == "clk": k.rstamp(2)
    e("s_mov_b32 s30, 0")
    e(f"s_mov_b32 s32, {fbits(2.0**-60)}"); e(f"s_mov_b32 s33, {fbits(2.0**100)}"); e(f"s_mov_b32 s34, {fbits(2.0**126)}")
    k.label(f"{nm}_scrok")
    e("s_nop 7")
    for i in range(3): e(f"ds_write_b128 v132, {vr(O[1]+4*i,4)} offset:{1024*i}")
    e("s_waitcnt vmcnt(0)"); e("v_cmp_gt_u32 vcc, v131, v135"); e(f"s_cbranch_vccnz {nm}_late")
    k.label(f"{nm}_lok")
    e("s_waitcnt lgkmcnt(0)"); e("s_barrier")
    for i in (2, 0, 1): e(f"ds_read_b128 {vr(SS[0]+4*i,4)}, v133 offset:{1024*i}")
    OO = O[0]
    e("s_waitcnt lgkmcnt(2)")
    for r in range(8, 12): e(f"v_add_f32 v{OO+r}, v{OO+r}, v{SS[0]+r}")
    e("s_waitcnt lgkmcnt(0)")
    for r in range(8): e(f"v_add_f32 v{OO+r}, v{OO+r}, v{SS[0]+r}")
    k.label(f"{nm}_chk")
    e(f"v_mov_b32 v30, v{OO+8}"); e(f"v_mov_b32 v31, v{OO+8}")
    e(f"v_max3_f32 v28, abs(v{OO}), abs(v{OO+1}), abs(v{OO+2})")
    e("v_permlane32_swap_b32 v30, v31")
    e(f"v_max3_f32 v28, abs(v{OO+3}), abs(v{OO+4}), v28")
    e("v_rcp_f32 v30, v31")
    e(f"v_max3_f32 v28, abs(v{OO+5}), abs(v{OO+6}), v28")
    for r in range(12): e(f"v_mul_f32 v{SS[1]+r}, v{OO+r}, v30")
    for r in range(6): e(f"v_cvt_pk_bf16_f32 v{P+r}, v{SS[1]+2*r}, v{SS[1]+2*r+1}")
    e(f"buffer_store_dwordx4 {vr(P,4)}, v39, s[12:15], s51 offen {SC}")
    e("s_mov_b32 exec_hi, 0")
    e(f"buffer_store_dwordx2 {vr(P+4,2)}, v38, s[12:15], s52 offen {SC}")
    e("s_mov_b64 exec, -1")
    for i in range(EARLY//2):
        e(f"s_add_u32 m0, s25, {8192*i}"); e(f"s_add_u32 s27, s50, {8192*i}")
        e(f"buffer_load_dwordx4 v22, s[12:15], s27 offen {SC} lds")
    for r in range(7, 11, 2): e(f"v_max3_f32 v28, abs(v{OO+r}), abs(v{OO+r+1}), v28")
    e(f"v_max_f32 v28, abs(v{OO+11}), v28")
    e("v_cmp_le_f32 vcc, s32, v31"); e("v_cmp_ge_f32 s[36:37], s33, v31"); e("v_cmp_gt_f32 s[40:41], s34, v28")
    e("s_and_b64 s[36:37], s[36:37], vcc"); e("s_and_b64 s[36:37], s[36:37], s[40:41]")
    e("s_cmp_eq_u64 s[36:37], -1"); e(f"s_cbranch_scc0 {nm}_slow")
    def slowpath():
        k.label(f"{nm}_late")
        e("s_mov_b32 s49, 0")
        k.label(f"{nm}_late1")
        e("s_sleep 8"); late(); e("s_add_u32 s49, s49, 1"); e("s_waitcnt vmcnt(0)")
        e("v_cmp_gt_u32 vcc, v131, v135"); e("s_cmp_ge_u32 s49, 0x20000"); e(f"s_cbranch_scc1 {nm}_lok"); e(f"s_cbranch_vccnz {nm}_late1")
        e(f"s_branch {nm}_lok")
        k.label(f"{nm}_slow")
        e("s_cmp_eq_u32 s30, 0"); e(f"s_cbranch_scc0 {nm}_fin")
        e("s_mov_b32 s30, 1")
        e("s_waitcnt vmcnt(0)")
        NM = O[1]
        e("v_mov_b32 v32, 0xff800000")
        def slowqk(c):
            e(f"buffer_load_dwordx4 {vr(KF[0],4)}, v22, s[12:15], s27 offen {SC}")
            e(f"buffer_load_dwordx2 {vr(KF[0]+4,2)}, v23, s[12:15], s27 offen offset:1024 {SC}")
            e("s_waitcnt vmcnt(0)")
            e(f"v_mfma_f32_32x32x16_bf16 {vr(SS[0],16)}, {vr(KF[0],4)}, {vr(Q[0],4)}, {c}"); e("s_nop 10")
            e(f"v_mfma_f32_32x32x8_bf16 {vr(SS[0],16)}, {vr(KF[0]+4,2)}, {vr(Q[0]+4,2)}, {vr(SS[0],16)}"); e("s_nop 12")
        e(f"s_add_u32 s27, s19, {KVIMG}"); e("s_mov_b32 s31, 0")
        k.label(f"{nm}_mx")
        slowqk("0")
        for r in range(0, 16, 2): e(f"v_max3_f32 v32, v{SS[0]+r}, v{SS[0]+r+1}, v32")
        e("s_add_u32 s27, s27, 2560")
        e("s_add_u32 s31, s31, 1"); e("s_cmp_lt_u32 s31, 64"); e(f"s_cbranch_scc1 {nm}_mx")
        k.allred32("v_max_f32", 32, 33)
        e("v_xor_b32 v32, 0x80000000, v32")
        for r in range(16): e(f"v_mov_b32 v{NM+r}, v32")
        for r in range(16): e(f"v_mov_b32 v{OO+r}, 0")
        for r in range(8): e(f"v_mov_b32 v{VF[0]+r}, v20")
        e(f"s_add_u32 s27, s19, {KVIMG}"); e("s_mov_b32 s31, 0")
        k.label(f"{nm}_sl")
        e("s_mov_b64 exec, s[28:29]")
        e(f"buffer_load_dwordx4 {vr(VF[0],4)}, v21, s[12:15], s27 offen {SC}")
        e(f"buffer_load_dwordx4 {vr(VF[0]+4,4)}, v21, s[12:15], s27 offen offset:640 {SC}")
        e("s_mov_b64 exec, -1")
        slowqk(vr(NM,16))
        for i in range(16): e(f"v_exp_f32 v{SS[0]+i}, v{SS[0]+i}")
        e("s_nop 0")
        for i in range(8): e(f"v_cvt_pk_bf16_f32 v{P+i}, v{SS[0]+2*i}, v{SS[0]+2*i+1}")
        e("s_nop 1")
        pv(0, 0, 0); pv(0, 0, 1)
        e("s_add_u32 s27, s27, 2560")
        e("s_add_u32 s31, s31, 1"); e("s_cmp_lt_u32 s31, 64"); e(f"s_cbranch_scc1 {nm}_sl")
        e("s_nop 12"); e(f"s_branch {nm}_chk")
    k.tail = slowpath
    k.label(f"{nm}_fin")
    k.stamp(5)
    e("v_lshlrev_b32 v3, 4, v1")
    k.vm = []; k.lg = []

def proj_c(k, tag, src, xin, xout, stout, last, cnt_code, word, st0):
    final = False
    e = k.e
    ACC, RESID, A, BF = 24, 44, 76, 156
    NA0 = ENV('PA0', '8')
    ids_rt(k)
    e("s_lshl_b32 s19, s16, 2"); e("s_add_u32 s19, s19, s39")
    e("s_mul_i32 s24, s19, 20480")
    e("s_lshr_b32 s33, s17, 1"); e("s_mul_i32 s33, s33, 5120"); e("s_add_u32 s33, s33, s24")
    e("s_and_b32 s34, s17, 1"); e("s_mul_i32 s35, s34, 3072"); e("s_add_u32 s35, s35, s33")
    e("s_lshl_b32 s36, s34, 9"); e("s_add_u32 s36, s36, s33"); e("s_add_u32 s36, s36, 2048")
    e(f"s_add_u32 s37, s35, {xin}"); e(f"s_add_u32 s38, s36, {xin}")
    e("v_lshrrev_b32 v13, 5, v1"); e("v_lshlrev_b32 v13, 8, v13"); e("v_and_b32 v14, 15, v1"); e("v_lshl_add_u32 v13, v14, 4, v13")
    e("v_bfe_u32 v14, v1, 4, 1"); e("v_lshl_add_u32 v13, v14, 3, v13")
    k.vmop(f"buffer_load_dwordx4 {vr(RESID,4)}, v3, {RS_(xin)}, s37 offen {SC}", "r")
    k.vmop(f"buffer_load_dwordx4 {vr(RESID+4,4)}, v3, {RS_(xin)}, s37 offen offset:1024 {SC}", "r")
    k.vmop(f"buffer_load_dwordx2 {vr(RESID+8,2)}, v13, {RS_(xin)}, s38 offen {SC}", "r")
    e(f"s_add_u32 s24, s24, {src}")
    for i in range(1, 5): e(f"s_add_u32 s{24+i}, s24, {4096*i}")
    e("v_lshrrev_b32 v9, 4, v1"); e("v_add_u32 v12, 61440, v3")
    wait_go(k, tag, word, cnt_code)
    k.stamp(st0)
    def ldA(n): k.vmop(f"buffer_load_dwordx4 {vr(A+4*n,4)}, v3, s[12:15], s{24+n//4} offen offset:{(n%4)*1024} {SC}", f"a{n}")
    for n in range(NA0): ldA(n)
    k.waitvm("r")
    for i in range(10):
        e(f"v_lshlrev_b32 v{ACC+2*i}, 16, v{RESID+i}"); e(f"v_and_b32 v{ACC+2*i+1}, 0xffff0000, v{RESID+i}")
    PT = ENV('PJT', '6'); K1 = 20 - PT
    GR = ((0, 1), (2, 3), (4,))
    ops = [(n, nf) for n in range(K1) for nf in range(5)] + [(n, nf) for g in GR for n in range(K1, 20) for nf in g]
    def rd(i):
        n, nf = ops[i]; off = n*5120 + nf*1024; b = 3
        if n >= 12: off -= 61440; b = 12
        k.dsop(f"ds_read_b128 {vr(BF+4*(i%10),4)}, v{b} offset:{off}", f"b{i}")
    def mm(i):
        n, nf = ops[i]
        if i % 5 == 0: k.waitlg(f"b{i+4}")
        if i == 60: e("s_barrier")
        e(f"v_mfma_f32_16x16x32_bf16 {vr(ACC+4*nf,4)}, {vr(BF+4*(i%10),4)}, {vr(A+4*n,4)}, {vr(ACC+4*nf,4)}")
        if i + 10 < 100: rd(i + 10)
    if last:
        e("v_and_b32 v54, 15, v1"); e("v_mul_u32_u24 v54, 1280, v54"); e("v_lshl_add_u32 v55, v9, 3, v54"); e("v_lshl_add_u32 v54, v9, 4, v54")
        e("s_mul_i32 s40, s19, 20480"); e("s_mul_i32 s31, s17, 160"); e("s_add_u32 s40, s40, s31")
        e("s_lshl_b32 s31, s34, 5"); e("s_add_u32 s41, s40, s31"); e("s_xor_b32 s31, s34, 1"); e("s_lshl_b32 s31, s31, 7"); e("s_add_u32 s40, s40, s31")
    e(f"s_add_u32 s37, s35, {xout}"); e(f"s_add_u32 s38, s36, {xout}")
    e("s_lshl_b32 s32, s19, 10"); e("s_lshl_b32 s33, s17, 7"); e("s_add_u32 s32, s32, s33"); e(f"s_add_u32 s32, s32, {stout}")
    e("v_lshlrev_b32 v16, 3, v1")
    for r in range(18, 22): e(f"v_mov_b32 v{r}, 0")
    e("s_barrier")
    for i in range(10): rd(i)
    for n in range(K1):
        if n < 2 or n % 2 == 0: k.waitvm(f"a{min(n + (n >= 2), 19)}")
        if n == 0: k.stamp(st0+1)
        for nf in range(5):
            mm(5*n + nf)
            if nf == 0 and n + NA0 < 20: ldA(n + NA0)
    def epi(g, final):
        lo, hi = 2*GR[g][0], 2*GR[g][-1] + 2
        for i in range(lo, hi): e(f"v_cvt_pk_bf16_f32 v{RESID+i}, v{ACC+2*i}, v{ACC+2*i+1}")
        if final:
            FSC = os.environ.get("FSC", "")
            if g < 2: e(f"buffer_store_dwordx4 {vr(RESID+4*g,4)}, v54, s[60:63], s41 offen offset:{64*g} {FSC}")
            else: e(f"buffer_store_dwordx2 {vr(RESID+8,2)}, v55, s[60:63], s40 offen {FSC}")
            return
        if g < 2: e(f"buffer_store_dwordx4 {vr(RESID+4*g,4)}, v3, {RS_(xout)}, s37 offen offset:{1024*g} {SC}")
        else: e(f"buffer_store_dwordx2 {vr(RESID+8,2)}, v13, {RS_(xout)}, s38 offen {SC}")
        for i in range(2*lo, 2*hi, 2):
            e(f"v_add_f32 v18, v18, v{ACC+i}"); e(f"v_fmac_f32 v19, v{ACC+i}, v{ACC+i}")
            e(f"v_add_f32 v20, v20, v{ACC+i+1}"); e(f"v_fmac_f32 v21, v{ACC+i+1}, v{ACC+i+1}")
    def tail(final):
        i = 5*K1; pend = []
        for g in range(3):
            for m in range(PT*len(GR[g])):
                k.waitvm(f"a{ops[i][0]}")
                mm(i); i += 1
                if m >= 3: k.fill(pend, ENV('PFIL', '2'))
            k.fill(pend, 1000)
            if g == 2: e("s_barrier")
            pend = k.capture(lambda: epi(g, final))
        k.fill(pend, 1000)
    if last:
        vm, lg = list(k.vm), list(k.lg)
        e("s_cmp_eq_u32 s3, 0"); e(f"s_cbranch_scc1 {k.name}_nf")
        tail(True)
        k.stamp(st0+2)
        if STAMP: e("s_waitcnt vmcnt(0)")
        k.dump(15, "2")
        e("s_endpgm")
        k.label(f"{k.name}_nf"); k.vm, k.lg = vm, lg
    tail(False)
    e("v_add_f32 v18, v18, v20"); e("v_add_f32 v19, v19, v21")
    for sw in ("v_permlane16_swap_b32", "v_permlane32_swap_b32"):
        e("v_mov_b32 v20, v18"); e("v_mov_b32 v21, v19"); e("s_nop 0")
        e(f"{sw} v18, v20"); e(f"{sw} v19, v21"); e("s_nop 0")
        e("v_add_f32 v18, v18, v20"); e("v_add_f32 v19, v19, v21")
    e("s_mov_b64 exec, 0xffff")
    e(f"buffer_store_dwordx2 v[18:19], v16, {RS_(xout)}, s32 offen {SC}")
    k.stamp(st0+2)

def proj_l(k, wimg, nxt, src, sig=None, done=0, last=False):
    e = k.e
    if nxt is not None:
        ids_mt(k)
        e("s_min_u32 s17, s17, 14" if nxt == WA_I else "s_nop 0")
        e("s_mul_i32 s58, s17, 163840"); e("s_add_u32 s58, s58, s45"); e(f"s_add_u32 s58, s58, {nxt}")
    ids_rt(k)
    e("s_mul_i32 s50, s17, 102400"); e("s_add_u32 s50, s50, s45"); e(f"s_add_u32 s50, s50, {wimg}")
    e("s_mul_i32 s51, s16, 81920"); e("s_lshl_b32 s52, s17, 2"); e("s_add_u32 s52, s52, s39"); e("s_mul_i32 s52, s52, 2560"); e("s_add_u32 s51, s51, s52"); e(f"s_add_u32 s51, s51, {src}")
    e("v_min_u32 v21, 39, v1"); e("v_lshlrev_b32 v21, 6, v21")
    w = Wdma(k, 25, 50, "o"); k.vm = []
    T1, T2 = ENV('T1', '0'), ENV('T2', '3')
    if sig:
        def a8():
            e(f"v_mov_b32 v{PV_+3}, {LW}"); e("s_mov_b32 s49, 0")
            k.label(f"{k.name}_a8")
            e(f"ds_read_b32 v{PV_}, v{PV_+3}"); e("s_add_u32 s49, s49, 1"); e("s_waitcnt lgkmcnt(0)"); e(f"v_readfirstlane_b32 s44, v{PV_}")
            e("s_cmp_ge_u32 s49, 0x400000"); e("s_cselect_b32 s44, 8, s44"); e("s_cmp_lt_u32 s44, 8"); e(f"s_cbranch_scc1 {k.name}_a8")
        signal(k, "s1l", 0, 8, sig)
        if ENV('A8E', '0'): a8()
        ub_prep(k, 0)
    if last: w.rng(0, 6); e("s_barrier"); done = 6
    w.rng(done, 25, T1 if sig else ENV('T4', '5'))
    w2 = Wdma(k, 40, 58)
    if last:
        e("s_cmp_eq_u32 s3, 0"); e(f"s_cbranch_scc1 {k.name}_nl")
        e("s_waitcnt vmcnt(0)"); e("s_barrier"); e("buffer_load_dword v20, v21, s[12:15], s51 offen"); e("s_endpgm")
        k.label(f"{k.name}_nl")
    if sig:
        w2.rng(25, 33, T1)
        if not ENV('A8E', '0'): a8()
    if nxt is not None: w2.rng(33 if sig else 32, 39, T1 if sig else ENV('T4', '5'))
    if sig: ub_prep(k, 1)
    if last and ENV('WPF', '0'):
        e("v_lshlrev_b32 v22, 7, v1"); e("s_and_b32 s32, s21, 1"); e("s_lshl_b32 s32, s32, 2"); e("s_add_u32 s32, s32, s39"); e("s_lshl_b32 s32, s32, 14")
        e("s_sub_u32 s33, s58, s45"); e("s_add_u32 s33, s33, s32")
        for i in range(2):
            k.vmop(f"buffer_load_dword v23, v22, s[12:15], s33 offen {SC}"); e("s_add_u32 s33, s33, 8192")
            if ENV('WPF', '0') == 2: e("s_waitcnt vmcnt(0)"); k.vm = []
    k.waitvm("o24")
    e("s_barrier")
    if ENV('ATOUCH', '0'):
        k.vmop("buffer_load_dword v20, v21, s[12:15], s51 offen")
    if nxt is not None:
        if not sig: w2.rng(25, 32)
        e("s_barrier")
        w2.rng(0, 15, ENV('T3', '0'))
        e("s_barrier")
        k.waitvm("w14")
        if ENV('LSL', '0'): e(f"s_sleep {ENV('LSL', '0')}")
        w2.rng(15, 25, T2)
    return w2

def stats16(k, s, rstd, mop, mask):
    e = k.e
    e(f"v_add_f32 v{s}, v{s}, v{s+2}"); e(f"v_add_f32 v{s+1}, v{s+1}, v{s+3}")
    k.allred16("v_add_f32", s, s+2); k.allred16("v_add_f32", s+1, s+3)
    k.allred32("v_add_f32", s, s+2); k.allred32("v_add_f32", s+1, s+3)
    stats_finish(k, s, s+1, s+2, rstd, s+3)
    split3(k, s+2, mop, 17, 'm', mask)
def usum(k, u, dst, t=17):
    e = k.e
    e(f"v_add_f32 v{u}, v{u}, v{u+1}"); e(f"v_add_f32 v{u+2}, v{u+2}, v{u+3}"); e(f"v_add_f32 v{u}, v{u}, v{u+2}")
    split3(k, u, dst, t, 'u')
def scale_pack(k, a, sc, dst):
    for r in range(4): k.e(f"v_mul_f32 v{a+r}, v{a+r}, v{sc(r)}")
    for r in range(2): k.e(f"v_cvt_pk_bf16_f32 v{dst+r}, v{a+2*r}, v{a+2*r+1}")
EX = 102400
SOFF = 2*8192 + 7296
UOFF = lambda F: (F//4)*8192 + 7168 + (F%4)*256 + 128
TOKF = (0, 1, 2, 3, 6); FEAF = (4, 5, 7)

UO = 3456
def ub_prep(k, part):
    e = k.e
    if part:
        k.waitvm("up")
        for j_ in range(5): e(f"v_add_f32 v{64+j_}, v{64+j_}, v{69+j_}")
        e("v_add_f32 v64, v64, v65"); e("v_add_f32 v66, v66, v67"); e("v_add_f32 v64, v64, v68"); e("v_add_f32 v64, v64, v66")
        k.allred32("v_add_f32", 64, 65); split3(k, 64, 28, 17, 'u')
        return
    e("v_lshrrev_b32 v6, 5, v1"); e("v_and_b32 v5, 31, v1"); e("s_lshr_b32 s30, s21, 1")
    e("v_mul_u32_u24 v12, 5120, v6"); e("v_lshl_add_u32 v12, v5, 2, v12")
    e("s_mul_i32 s30, s30, 10240"); e("s_lshl_b32 s31, s39, 7"); e("s_add_u32 s30, s30, s31"); e(f"s_add_u32 s30, s30, {U_B}"); e("s_add_u32 s31, s30, 2560")
    for j_ in range(10): k.vmop(f"buffer_load_dword v{64+j_}, v12, s[12:15], s{30+j_//5} offen offset:{512*(j_%5)}", "up")
    e("v_bfe_u32 v6, v1, 4, 1"); e("v_lshlrev_b32 v46, 9, v6"); e("v_and_b32 v5, 15, v1"); e("v_lshl_add_u32 v46, v5, 3, v46")
    e("s_lshl_b32 s30, s39, 12"); e("v_add_u32 v46, s30, v46")

def atouch_pre(k, xin):
    e = k.e
    e("s_mul_i32 s51, s16, 163840"); e("s_lshl_b32 s52, s17, 2"); e("s_add_u32 s52, s52, s39"); e("s_mul_i32 s52, s52, 2560"); e("s_add_u32 s51, s51, s52"); e(f"s_add_u32 s51, s51, {xin}")
    e("v_min_u32 v21, 39, v1"); e("v_lshlrev_b32 v21, 6, v21")

G_ACC, G_BF, G_AR, G_DA = 64, 128, 160, 5
def gemm32_pre(k, xin, stin):
    e = k.e
    e("v_and_b32 v10, 31, v1"); e("v_lshrrev_b32 v4, 5, v1"); e("v_and_b32 v5, 15, v1")
    e("s_lshl_b32 s19, s16, 2"); e("s_add_u32 s19, s19, s18")
    e("v_bfe_u32 v7, v1, 4, 1"); e("v_mul_u32_u24 v8, 20480, v7"); e("v_lshl_add_u32 v8, v4, 8, v8"); e("v_lshl_add_u32 v8, v5, 4, v8")
    e("v_lshlrev_b32 v11, 10, v7"); e("v_lshl_add_u32 v11, v4, 9, v11"); e("v_lshl_add_u32 v11, v5, 3, v11")
    e("s_lshl_b32 s30, s19, 11"); e(f"s_add_u32 s30, s30, {stin}")
    e("s_mul_i32 s24, s19, 40960"); e(f"s_add_u32 s24, s24, {xin}")
    e("v_add_u32 v41, 65536, v3"); e("v_add_u32 v42, 131072, v3")
    e("v_subrev_u32 v58, 1, v4"); e("v_not_b32 v59, v58")
def gemm32_loads(k, R, G_DA=G_DA):
    e = k.e
    def ldA(ks):
        if ks % 4 == 0 and ks > 0: e("s_add_u32 s24, s24, 4096")
        for u in range(2):
            k.vmop(f"buffer_load_dwordx4 {vr(G_AR+8*(ks%G_DA)+4*u,4)}, v8, {R}, s24 offen offset:{(ks%4)*1024+512*u} {SC}", f"a{ks}")
    ldA(0)
    for q in range(4): k.vmop(f"buffer_load_dwordx2 {vr(16+2*q,2)}, v11, {R}, s30 offen offset:{128*q} {SC}", "st")
    for ks in range(1, 4): ldA(ks)
    return ldA
def gemm32_stats(k):
    e = k.e
    k.waitvm("st")
    e("v_add_f32 v16, v16, v18"); e("v_add_f32 v17, v17, v19"); e("v_add_f32 v20, v20, v22"); e("v_add_f32 v21, v21, v23")
    e("v_add_f32 v16, v16, v20"); e("v_add_f32 v17, v17, v21")
    k.allred32("v_add_f32", 16, 18); k.allred32("v_add_f32", 17, 18)
    stats_finish(k, 16, 17, 46, 47, 18)
    split3(k, 46, 48, 18, 'm', 58)
def gemm32(k, vmode, fl, ldA, bars, st0, late=None, DA=G_DA, TN=4):
    e = k.e; ACC, BF, AR = G_ACC, G_BF, G_AR; nld = [4]
    acc = lambda jf: vr(ACC+16*jf, 16)
    ops = [(ks, f//4, f%4) for ks in range(20-TN) for f in range(8)] + [(ks, u, jf) for jf in range(4) for ks in range(20-TN, 20) for u in range(2)]
    def rd(i):
        ks, u, jf = ops[i]; off = ks*8192 + 1024*(4*u+jf); hi = off >> 16
        k.dsop(f"ds_read_b128 {vr(BF+4*(i%8),4)}, v{(3,41,42)[hi]} offset:{off & 0xffff}", f"b{i}")
    def mm(i):
        ks, u, jf = ops[i]
        if i % 2 == 0: k.waitlg(f"b{i+1}")
        a = vr(AR+8*(ks%DA)+4*u, 4); b = vr(BF+4*(i%8), 4); c = acc(jf) if (ks or u) else "0"
        if vmode: e(f"v_mfma_f32_32x32x16_bf16 {acc(jf)}, {a}, {b}, {c}")
        else:     e(f"v_mfma_f32_32x32x16_bf16 {acc(jf)}, {b}, {a}, {c}")
        if i + 8 < 160: rd(i + 8)
    e("s_barrier")
    for i in range(8): rd(i)
    for ks in range(20-TN):
        k.waitvm(f"a{ks}")
        if ks == 0: k.stamp(st0+1)
        if ks in bars: e("s_barrier")
        if late and ks == late[0]: k.fill(fl, 1000); fl += late[1]
        for f in range(8):
            mm(8*ks + f)
            if f in (0, 4) and nld[0] < min(20, ks + DA): ldA(nld[0]); nld[0] += 1
            if ks >= 1: k.fill(fl, 2)
    assert nld[0] == 20
    k.fill(fl, 1000)
    for jf in range(4):
        if vmode: e(f"v_mfma_f32_32x32x8_bf16 {acc(jf)}, v[48:49], {vr(50+2*jf,2)}, {acc(jf)}")
        else:     e(f"v_mfma_f32_32x32x8_bf16 {acc(jf)}, {vr(50+2*jf,2)}, v[48:49], {acc(jf)}")
    def tail(epi, tbars=(), end=None):
        pend = []
        for jf in range(4):
            if jf in tbars: e("s_barrier")
            for n in range(2*TN):
                i = 8*(20-TN) + 2*TN*jf + n
                if n % 2 == 0: k.waitvm(f"a{ops[i][0]}")
                mm(i)
                if n >= 2: k.fill(pend, ENV('TFILL', '4'))
            k.fill(pend, 1000)
            if jf == 3:
                k.stamp(st0+2)
                if end: end()
            pend = k.capture(lambda: epi(jf))
        k.fill(pend, 1000)
    return tail

TB, TS = 88448, 296
def toff(G): return (0, 64, 128, 168, 208, 248)[G//5] + 8*(G%5)

def qkvb_c(k, xin, stin, st0):
    e = k.e; nm = k.name
    ACC, BF = G_ACC, G_BF
    ids_mt(k); gemm32_pre(k, xin, stin)
    e("v_lshrrev_b32 v6, 4, v1")
    MC, MP, MP1 = 200, 204, 208
    NEG = fbits(-1e30)
    e("v_lshlrev_b32 v17, 2, v6"); e("v_sub_u32 v17, v5, v17"); e(f"v_mov_b32 v19, {NEG}")
    for r in range(4):
        e(f"v_subrev_u32 v18, {r}, v17"); e("v_and_b32 v16, 0x80000001, v18")
        e("v_cmp_eq_u32 vcc, 0, v16"); e(f"v_cndmask_b32 v{MC+r}, v19, 0, vcc")
        e("v_cmp_eq_u32 vcc, 0x80000000, v16"); e(f"v_cndmask_b32 v{MP+r}, v19, 0, vcc")
    e("s_cmp_eq_u32 s19, 0"); e(f"s_cselect_b32 s34, {NEG}, 0")
    for r in range(4): e(f"v_add_f32 v{MP1+r}, s34, v{MP+r}")
    e(f"s_mul_i32 s35, s18, {32*TS}"); e(f"s_add_u32 s35, s35, {TB}")
    e(f"v_mul_u32_u24 v16, {TS}, v10"); e("v_add_u32 v16, s35, v16"); e(f"v_add_u32 v16, {16*TS}, v16")
    e("v_lshl_add_u32 v212, v4, 3, v16"); e("v_lshl_add_u32 v213, v4, 5, v16"); e("v_mov_b32 v219, v16")
    e("v_lshl_add_u32 v215, v4, 6, v16")
    e(f"v_mul_u32_u24 v16, {TS}, v5"); e("v_add_u32 v16, s35, v16"); e("v_lshl_add_u32 v216, v6, 4, v16")
    e("v_lshrrev_b32 v17, 2, v1"); e(f"v_mul_u32_u24 v16, {TS}, v17"); e("v_add_u32 v16, s35, v16"); e("v_and_b32 v17, 3, v1")
    e("v_lshl_add_u32 v217, v17, 3, v16")
    e("v_mul_u32_u24 v18, 40, v17"); e("v_add_u32 v18, 240, v18"); e("v_cmp_gt_u32 vcc, 2, v17"); e("v_mov_b32 v19, 288"); e("v_cndmask_b32 v18, v19, v18, vcc"); e("v_add_u32 v218, v16, v18")
    e("v_lshlrev_b32 v43, 9, v7"); e("v_lshl_add_u32 v43, v5, 3, v43")
    e("v_mov_b32 v220, 0"); e("v_mov_b32 v221, 0"); e("v_mov_b32 v222, 0x3f803f80"); e("v_mov_b32 v223, 0x3f803f80")
    e("s_mul_i32 s25, s19, 40960"); e(f"s_add_u32 s25, s25, {OBT}")
    e("s_lshl_b32 s51, s17, 10"); e("s_add_u32 s51, s51, s25"); e("s_add_u32 s52, s51, 20480")
    e("s_lshr_b32 s53, s17, 2"); e("s_add_u32 s53, s53, 16"); e("s_lshl_b32 s53, s53, 10"); e("s_add_u32 s53, s53, s25")
    e("s_and_b32 s54, s17, 1"); e("s_lshl_b32 s54, s54, 9"); e("s_add_u32 s53, s53, s54")
    e("s_bfe_u32 s54, s17, 0x10001"); e("s_lshl_b32 s54, s54, 3"); e("s_add_u32 s53, s53, s54"); e("s_add_u32 s54, s53, 20480")
    def c2():
        e("s_lshl_b32 s48, s16, 9"); e(f"s_add_u32 s48, s48, {C2}")
        e(f"v_lshlrev_b32 v{PV_+1}, 8, v1"); e(f"v_lshlrev_b32 v{PV_+2}, 3, v1"); e(f"v_sub_u32 v{PV_+2}, 16, v{PV_+2}")
        e("s_cmp_eq_u32 s16, 0"); e("s_cselect_b64 s[56:57], 1, 3")
    e("s_cmp_eq_u32 s18, 1"); e(f"s_cbranch_scc0 {nm}_ad"); e("v_lshlrev_b32 v16, 8, v1"); e("s_mov_b32 s49, 0")
    k.label(f"{nm}_ap")
    e(f"buffer_load_dword v17, v16, s[8:11], 0 offen offset:{C1} {SC}"); e("s_add_u32 s49, s49, 1"); e("s_waitcnt vmcnt(0)")
    e("v_cmp_gt_u32 vcc, 16, v17"); e("s_cmp_ge_u32 s49, 0x20000"); e(f"s_cbranch_scc1 {nm}_ad"); e(f"s_cbranch_vccnz {nm}_ap")
    k.label(f"{nm}_ad")
    wait_go(k, "p3", 1, c2)
    k.stamp(st0)
    ldA = gemm32_loads(k, RS_(xin))
    fl = k.capture(lambda: (gemm32_stats(k), e(f"v_mul_f32 v45, {fbits(CSCALE)}, v47")))
    def uops():
        for jf in range(4): k.dsop(f"ds_read_b64 {vr(50+2*jf,2)}, v43 offset:{UO+4096*jf}", "uo")
    tail = gemm32(k, False, fl, ldA, {6}, st0, (8, k.capture(uops)))
    def tab(jf):
        if jf == 0:
            for q in range(3): k.dsop(f"ds_write_b64 v215, v[220:221] offset:{40+8*q}")
            k.dsop("ds_write_b64 v219, v[222:223] offset:288")
        for G in range(8*jf, min(8*jf+8, 30), 2):
            a = ACC + 2*G
            for r in range(4): e(f"v_mul_f32 v{a+r}, v{a+r}, v{45 if G < 10 else 47}")
            for r in range(2): e(f"v_cvt_pk_bf16_f32 v{a+r}, v{a+2*r}, v{a+2*r+1}")
            k.dsop(f"ds_write_b64 v{ {8: 212, 32: 213}[toff(G+1) - toff(G)] }, {vr(a,2)} offset:{toff(G)}")
    def words():
        e("s_cmp_eq_u32 s18, 0"); e(f"s_cbranch_scc0 {nm}_ni"); lw_init(k); k.label(f"{nm}_ni")
    tail(tab, (0, 2), words)
    e("s_waitcnt lgkmcnt(0)"); e("s_barrier")
    KO = lambda b, h: 160 + 8*b + 4*h
    QO = lambda b, h: 184 + 8*(b-1) + 4*h
    VO = lambda F, b: 20 + 8*FEAF.index(F) + 2*b if False else 224 + 6*FEAF.index(F) + 2*b - (0)
    VO = lambda F, b: (128, 136, 144)[FEAF.index(F)] + 2*b
    for b in (1, 2):
        for h in range(2):
            for x in range(2): e(f"ds_read_b64 {vr(QO(b,h)+2*x,2)}, v216 offset:{16*b*TS+64*h+8*x}")
    for b in range(3):
        for h in range(2):
            for x in range(2): e(f"ds_read_b64 {vr(KO(b,h)+2*x,2)}, v216 offset:{16*b*TS+128+40*h+8*x}")
    e("s_waitcnt lgkmcnt(0)")
    for b in range(3):
        for h in range(2): e(f"ds_read_b64_tr_b16 {vr(VO(4+h,b),2)}, v217 offset:{16*b*TS+208+40*h}")
        e(f"ds_read_b64_tr_b16 {vr(VO(7,b),2)}, v218 offset:{16*b*TS}")
    units = [(b, h) for b in (1, 2) for h in range(2)]
    SU = lambda i: 64 + 8*i
    TU = lambda i: ACC + 32 + 4*i
    PU = lambda i: ACC + 48 + 4*i
    OU = lambda i: 64 + 8*i
    for i, (b, h) in enumerate(units):
        e(f"v_mfma_f32_16x16x32_bf16 {vr(SU(i),4)}, {vr(KO(b-1,h),4)}, {vr(QO(b,h),4)}, {vr(MP1 if b == 1 else MP,4)}")
        e(f"v_mfma_f32_16x16x32_bf16 {vr(SU(i)+4,4)}, {vr(KO(b,h),4)}, {vr(QO(b,h),4)}, {vr(MC,4)}")
    e("s_waitcnt lgkmcnt(0)"); e("s_barrier")
    def allred(op):
        for sw in ("v_permlane16_swap_b32", "v_permlane32_swap_b32"):
            for i in range(4): e(f"v_mov_b32 v{TU(i)+1}, v{TU(i)}")
            for i in range(4): e(f"{sw} v{TU(i)}, v{TU(i)+1}")
            for i in range(4): e(f"{op} v{TU(i)}, v{TU(i)}, v{TU(i)+1}")
    for i in range(4):
        s = SU(i)
        e(f"v_max3_f32 v{TU(i)}, v{s}, v{s+1}, v{s+2}"); e(f"v_max3_f32 v{TU(i)}, v{s+3}, v{s+4}, v{TU(i)}")
        e(f"v_max3_f32 v{TU(i)}, v{s+5}, v{s+6}, v{TU(i)}"); e(f"v_max_f32 v{TU(i)}, v{s+7}, v{TU(i)}")
    allred("v_max_f32")
    for i in range(4):
        for r in range(8): e(f"v_sub_f32 v{SU(i)+r}, v{SU(i)+r}, v{TU(i)}")
    for i in range(4):
        for r in range(8): e(f"v_exp_f32 v{SU(i)+r}, v{SU(i)+r}")
    for i in range(4):
        for r in range(4): e(f"v_cvt_pk_bf16_f32 v{PU(i)+r}, v{SU(i)+2*r}, v{SU(i)+2*r+1}")
    for i, (b, h) in enumerate(units):
        e(f"v_mfma_f32_16x16x32_bf16 {vr(OU(i)+4,4)}, {vr(VO(7,b-1),4)}, {vr(PU(i),4)}, 0")
    for i, (b, h) in enumerate(units):
        e(f"v_mfma_f32_16x16x32_bf16 {vr(OU(i),4)}, {vr(VO(4+h,b-1),4)}, {vr(PU(i),4)}, 0")
    for i in range(4): e(f"v_mov_b32 v{TU(i)}, v{OU(i)+4}"); e(f"v_mov_b32 v{TU(i)+1}, v{OU(i)+4}")
    for i in range(4): e(f"v_permlane32_swap_b32 v{TU(i)}, v{TU(i)+1}")
    for i in range(4): e(f"v_rcp_f32 v{TU(i)+1}, v{TU(i)+1}")
    e("v_cmp_eq_u32 vcc, 0, v6")
    for bi in range(2):
        o0, o1 = OU(2*bi), OU(2*bi+1); d = 40 + 8*bi; t0, t1 = TU(2*bi)+1, TU(2*bi+1)+1
        for r in range(4): e(f"v_mul_f32 v{o0+r}, v{o0+r}, v{t0}"); e(f"v_mul_f32 v{o1+r}, v{o1+r}, v{t1}")
        e(f"v_cvt_pk_bf16_f32 v{d}, v{o0}, v{o0+1}"); e(f"v_cvt_pk_bf16_f32 v{d+1}, v{o0+2}, v{o0+3}")
        e(f"v_cvt_pk_bf16_f32 v{d+2}, v{o1}, v{o1+1}"); e(f"v_cvt_pk_bf16_f32 v{d+3}, v{o1+2}, v{o1+3}")
        e(f"buffer_store_dwordx4 {vr(d,4)}, v3, s[12:15], s{51+bi} offen {SC}")
        e(f"v_cndmask_b32 v{t0}, v{t1}, v{t0}, vcc")
        for r in range(4): e(f"v_cndmask_b32 v{o0+4+r}, v{o1+4+r}, v{o0+4+r}, vcc")
        for r in range(4): e(f"v_mul_f32 v{o0+4+r}, v{o0+4+r}, v{t0}")
        e(f"v_cvt_pk_bf16_f32 v{d+4}, v{o0+4}, v{o0+5}"); e(f"v_cvt_pk_bf16_f32 v{d+5}, v{o0+6}, v{o0+7}")
    e("s_mov_b32 exec_hi, 0")
    for bi in range(2): e(f"buffer_store_dwordx2 {vr(44+8*bi,2)}, v3, s[12:15], s{53+bi} offen {SC}")

def qkvb_l(k, xin, stin, w):
    e = k.e; nm = k.name
    ids_mt(k)
    e("v_and_b32 v5, 15, v1"); e("v_lshrrev_b32 v6, 4, v1")
    e("v_lshlrev_b32 v11, 3, v5"); e("v_lshl_add_u32 v11, v6, 8, v11")
    e("v_cmp_eq_u32 vcc, 0, v6"); e("s_lshl_b32 s22, s16, 3"); e("s_max_u32 s22, s22, 1"); e("v_cndmask_b32 v4, 0, -1, vcc")
    e("s_sub_u32 s22, s22, 1")
    e("s_mul_i32 s24, s22, 20480"); e(f"s_add_u32 s24, s24, {xin}"); e("s_add_u32 s24, s24, s45")
    e("s_lshl_b32 s27, s22, 10"); e(f"s_add_u32 s27, s27, {stin}")
    HP = 49152
    e("v_lshrrev_b32 v12, 1, v6"); e("v_lshlrev_b32 v40, 12, v12"); e("v_and_b32 v12, 1, v6"); e("v_lshl_add_u32 v40, v12, 9, v40"); e("v_lshl_add_u32 v40, v5, 4, v40")
    e("s_lshl_b32 s32, s39, 13"); e("v_add_u32 v40, s32, v40"); e("v_add_u32 v41, 65536, v40"); e("v_add_u32 v42, 131072, v40")
    e("s_mul_i32 s33, s39, 6144"); e(f"s_add_u32 s33, s33, {HP}"); e("v_add_u32 v43, s33, v3")
    e("s_min_u32 s40, s39, 2"); e("s_lshl_b32 s41, s40, 11"); e(f"s_add_u32 s41, s41, {HP}"); e("v_add_u32 v44, s41, v3")
    e("s_lshl_b32 s41, s40, 12"); e("v_lshlrev_b32 v45, 3, v5"); e("v_add_u32 v45, s41, v45")
    e(f"v_mul_u32_u24 v12, {TS}, v5"); e(f"v_add_u32 v12, {TB}, v12"); e("s_lshl_b32 s41, s40, 3"); e("s_sub_u32 s41, s41, 2")
    for x in range(2):
        e(f"v_add_u32 v13, s41, v6")
        if x: e("v_add_u32 v13, 4, v13")
        e("v_add_u32 v14, 16, v13")
        e("v_cmp_gt_u32 vcc, 20, v13"); e("v_cndmask_b32 v14, 0, v14, vcc"); e(f"v_lshl_add_u32 v{50+x}, v14, 3, v12")
    e("v_mov_b32 v47, v12"); e("v_mov_b32 v56, 0x3f803f80"); e("v_mov_b32 v57, 0x3f803f80")
    atouch_pre(k, xin)
    e(f"s_setprio {ENV('P3PRIO', '0')}")
    e("s_barrier")
    if ENV('ATOUCH', '0'): k.vmop("buffer_load_dword v20, v21, s[12:15], s51 offen")
    w.one(39)
    e(f"ds_write_b64 v46, v[28:29] offset:{UO}")
    for q_ in range(2): k.vmop(f"buffer_load_dwordx2 {vr(24+2*q_,2)}, v11, s[12:15], s27 offen offset:{128*q_} {SC}", "st")
    for i in range(5):
        k.vmop(f"buffer_load_dwordx4 {vr(128+4*i,4)}, v3, s[12:15], s24 offen {SC}", f"h{i}")
        if i < 4: e("s_add_u32 s24, s24, 4096")
    k.waitvm("st")
    stats16(k, 24, 48, 52, 4)
    e("s_waitcnt lgkmcnt(0)"); e("s_barrier")
    def rd(n):
        i, j = n // 6, 2 + n % 6
        k.dsop(f"ds_read_b128 {vr(96+4*(n%6),4)}, v{40+i//2} offset:{(i%2)*32768+1024*(j//2)+256*(j%2)}", f"r{n}")
    for n in range(6): rd(n)
    for x in range(2): k.dsop(f"ds_read_b64 {vr(20+2*x,2)}, v45 offset:{UO+4096+512*x}", "u")
    for n in range(30):
        i = n // 6
        if n % 6 == 0: k.waitvm(f"h{i}")
        k.waitlg(f"r{n}")
        c = vr(148+4*(n%6), 4)
        e(f"v_mfma_f32_16x16x32_bf16 {c}, {vr(96+4*(n%6),4)}, {vr(128+4*i,4)}, {c if i else 0}")
        if n + 6 < 30: rd(n + 6)
    e("s_barrier")
    for n in range(6): e(f"ds_write_b128 v43, {vr(148+4*n,4)} offset:{1024*n}")
    e("s_waitcnt lgkmcnt(0)"); e("s_barrier")
    for p_ in range(4):
        for x in range(2): e(f"ds_read_b128 {vr(96+8*p_+4*x,4)}, v44 offset:{6144*p_+1024*x}")
    e("s_waitcnt lgkmcnt(0)")
    for r in range(8):
        e(f"v_add_f32 v{96+r}, v{96+r}, v{104+r}"); e(f"v_add_f32 v{112+r}, v{112+r}, v{120+r}"); e(f"v_add_f32 v{80+r}, v{96+r}, v{112+r}")
    for x in range(2): e(f"v_mfma_f32_16x16x16_bf16 {vr(80+4*x,4)}, {vr(20+2*x,2)}, v[52:53], {vr(80+4*x,4)}")
    for x in range(2): scale_pack(k, 80+4*x, lambda r: 48, 88+2*x)
    for x in range(2): e(f"ds_write_b64 v{50+x}, {vr(88+2*x,2)}")
    e("ds_write_b64 v47, v[56:57] offset:288")
    e(f"s_setprio {ENV('LPRIO', '2')}")
    e("s_waitcnt lgkmcnt(0)"); e("s_barrier")
    k.vm = []; k.lg = []

def one(k, target):
    k.e(f"v_mov_b32 v{PV_+1}, 0"); k.e(f"v_mov_b32 v{PV_+2}, {target}"); k.e("s_mov_b64 s[56:57], 1")

def kvpos(k):
    k.e("s_and_b32 s36, s19, 31"); k.e("s_lshl_b32 s36, s36, 1"); k.e("s_lshr_b32 s34, s19, 5"); k.e("s_add_u32 s36, s36, s34")
    k.e("s_add_u32 s36, s36, 44"); k.e("s_and_b32 s36, s36, 63")
def addr_v(k, img):
    e = k.e
    e("s_sub_u32 s35, s17, 10"); e("s_lshl_b32 s35, s35, 7")
    kvpos(k); e("s_mul_i32 s36, s36, 2560"); e(f"s_add_u32 s33, s36, {img+KVIMG+1280}")
    e("v_mul_u32_u24 v20, 320, v4")
    for jf in range(4):
        e(f"v_add_u32 v16, s35, v10")
        if jf: e(f"v_add_u32 v16, {32*jf}, v16")
        e("v_mul_u32_u24 v17, 52429, v16"); e("v_lshrrev_b32 v17, 20, v17")
        e("v_mul_u32_u24 v18, 20, v17"); e("v_sub_u32 v18, v16, v18")
        e("v_mul_u32_u24 v17, 163840, v17"); e("v_lshl_add_u32 v17, v18, 4, v17")
        e(f"v_add_u32 v{24+jf}, v17, v20")
def addr_qk(k, img, xm=52):
    e = k.e; k.xm = xm
    e("s_cmp_ge_u32 s17, 5")
    e(f"s_cselect_b32 s33, {QI}, 0"); e(f"s_cselect_b32 s59, 1.0, {fbits(CSCALE)}"); e("s_cselect_b32 s35, 5, 0"); e("s_cselect_b32 s37, 1, 0")
    e(f"s_add_u32 s33, s33, {img+QIMG}")
    e("s_sub_u32 s35, s17, s35")
    kvpos(k); e("s_cmp_eq_u32 s37, 0"); e("s_cselect_b32 s36, s19, s36")
    e("s_mul_i32 s36, s36, 1280"); e("s_lshl_b32 s36, s36, s37"); e("s_add_u32 s33, s33, s36")
    e("s_lshl_b32 s34, 81920, s37")
    e("v_lshlrev_b32 v16, 4, v10"); e("v_lshlrev_b32 v17, 3, v10")
    e("v_lshl_add_u32 v18, v4, 9, v16")
    e("s_sub_u32 s36, s34, 512"); e("v_and_b32 v19, s36, v59"); e("v_add_u32 v19, v19, v16")
    e(f"s_mov_b32 s{xm}, -1"); e(f"s_mov_b32 s{xm+1}, 0"); e(f"s_mov_b32 s{xm+2}, 0"); e(f"s_mov_b32 s{xm+3}, -1")
def epi_qk1(k, v, jf):
    e = k.e; A = G_ACC + 16*jf
    QSC = os.environ.get("QSC", "sc1")
    for r in range(16): e(f"v_mul_f32 v{A+r}, v{A+r}, v47")
    for r in range(8): e(f"v_cvt_pk_bf16_f32 v{A+r}, v{A+2*r}, v{A+2*r+1}")
    for a2 in range(2):
        x = A + 4*a2
        e(f"v_permlane32_swap_b32 v{x}, v{x+2}"); e(f"v_permlane32_swap_b32 v{x+1}, v{x+3}")
    for a2 in range(2):
        x = A + 4*a2
        G = [32*v+8*jf+4*a2, 32*v+8*jf+4*a2+2]
        def main(g):
            h = g // 5; r = g % 5
            return h, (r // 2 if h % 2 == 0 else (r - 1) // 2)
        st = [g % 10 == 4 for g in G]
        def hoff(dst, h):
            if not h: return 33
            e(f"s_mul_i32 s{dst}, s34, {h}"); e(f"s_add_u32 s{dst}, s{dst}, s33"); return dst
        if not any(st):
            (h0, p0), (h1, p1) = main(G[0]), main(G[1])
            assert (h0 == h1 and (p0, p1) == (0, 1)) or (h1 == h0 + 1 and (p0, p1) == (1, 0))
            e(f"buffer_store_dwordx4 {vr(x,4)}, v{18 if h0 == h1 else 19}, {k.srdo}, s{hoff(36, h0)} offen offset:{512*p0} {QSC}")
        else:
            m = st.index(False); q = 1 - m
            h, p = main(G[m]); s0 = hoff(36, h); s1 = hoff(37, G[q] // 5); e(f"s_add_u32 s38, s{s1}, s34")
            e(f"s_mov_b64 exec, s[{k.xm+2*m}:{k.xm+1+2*m}]")
            e(f"buffer_store_dwordx4 {vr(x,4)}, v16, {k.srdo}, s{s0} offen offset:{512*p} {QSC}")
            e(f"s_mov_b64 exec, s[{k.xm+2*q}:{k.xm+1+2*q}]")
            e(f"buffer_store_dwordx2 {vr(x,2)}, v17, {k.srdo}, s{s1} offen offset:1024 {QSC}")
            e(f"buffer_store_dwordx2 {vr(x+2,2)}, v17, {k.srdo}, s38 offen offset:1024 {QSC}")
            e("s_mov_b64 exec, -1")
def epi_v1(k, jf, RS):
    e = k.e; A = G_ACC + 16*jf
    for r in range(16): e(f"v_mul_f32 v{A+r}, v{A+r}, v{RS+r}")
    for r in range(8): e(f"v_cvt_pk_bf16_f32 v{A+r}, v{A+2*r}, v{A+2*r+1}")
    for u in range(2): e(f"buffer_store_dwordx4 {vr(A+4*u,4)}, v{24+jf}, {k.srdo}, s33 offen offset:{640*u} {os.environ.get('VSC', 'sc1')}")
def dispatch5(k, body):
    e = k.e; nm = k.name + k.ptag
    for v in range(1, 5):
        e(f"s_cmp_eq_u32 s35, {v}"); e(f"s_cbranch_scc1 {nm}_e{v}")
    vm, lg = list(k.vm), list(k.lg)
    for v in range(5):
        if v: k.label(f"{nm}_e{v}")
        k.vm, k.lg = list(vm), list(lg)
        body(v); e(f"s_branch {nm}_fin5")
def epi_qk(k, ACC, BF):
    dispatch5(k, lambda v: (k.e("s_nop 7"), [epi_qk1(k, v, jf) for jf in range(4)]))
def epi_v(k, ACC, BF, RS):
    for jf in range(4): epi_v1(k, jf, RS)

def qkva_c(k, xin, stin, img, cnt, wbar, st0):
    k.ptag = '_p5'; k.srdo = 's[12:15]'
    e = k.e; nm = k.name + k.ptag
    DA = 5
    PDA, PTN = ENV('PDA', '8'), ENV('PTN', '7')
    ACC, BF, AR, RS = 64, 128, 160, 224
    gemm32_pre(k, xin, stin)
    e("v_lshlrev_b32 v12, 4, v10")
    e("s_lshl_b32 s31, s17, 11"); e(f"s_add_u32 s31, s31, {U_A}")
    for jf in range(4): k.vmop(f"buffer_load_dwordx4 {vr(24+4*jf,4)}, v12, s[12:15], s31 offen offset:{512*jf}", "u")
    def c4(): one(k, 16); e("s_lshl_b32 s48, s16, 8"); e(f"s_add_u32 s48, s48, {cnt}")
    wait_go(k, "p5", 1, c4)
    k.stamp(st0)
    ldA = gemm32_loads(k, RS_(xin), PDA)
    def prolog(vmode):
        gemm32_stats(k)
        for jf in range(4): usum(k, 24+4*jf, 50+2*jf, 18)
        if vmode:
            e("v_lshlrev_b32 v16, 4, v4")
            for r in range(16):
                e(f"v_add_u32 v17, {(8*(r//4) + r%4)*4}, v16")
                k.dsop(f"ds_bpermute_b32 v{RS+r}, v17, v47", "rs")
            addr_v(k, img)
        else:
            addr_qk(k, img); e("v_mul_f32 v47, s59, v47")
    e("s_cmp_ge_u32 s17, 10"); e(f"s_cbranch_scc1 {nm}_qv")
    vm_save = list(k.vm)
    l5a = lambda: e("s_barrier")
    tail = gemm32(k, False, k.capture(lambda: prolog(False)), ldA, {w_ - 1 for w_ in wbar}, st0, None, PDA, PTN)
    dispatch5(k, lambda v: tail(lambda jf: epi_qk1(k, v, jf), (), l5a))
    k.label(f"{nm}_qv"); k.vm = vm_save; k.lg = []
    tail = gemm32(k, True, k.capture(lambda: prolog(True)), ldA, {w_ - 1 for w_ in wbar}, st0, None, PDA, PTN)
    tail(lambda jf: epi_v1(k, jf, RS), (), l5a)
    k.label(f"{nm}_fin5")

def ph_front(k):
    k.ptag = "_f"; k.srdo = "s[12:15]"
    e = k.e; nm = k.name + k.ptag; kn = k.name
    R, DEP, SCRB, UT = 4, 2, 131072, 65536
    need = lambda ks: ks // 2
    slot = lambda st: (st % R) * 32768
    e("s_cmp_ge_u32 s2, 256"); e(f"s_cbranch_scc1 {kn}_end"); k.stamp(0); k.rstamp(1)
    e("s_load_dwordx4 s[60:63], s[0:1], 0"); e("s_load_dwordx2 s[6:7], s[0:1], 64")
    e("s_load_dwordx2 s[4:5], s[0:1], 56")
    e("s_and_b32 s20, s2, 7"); e("s_lshr_b32 s21, s2, 3")
    e("v_lshrrev_b32 v2, 6, v0"); e("v_and_b32 v1, 63, v0")
    e("v_readfirstlane_b32 s18, v2")
    e("s_and_b32 s39, s18, 3"); e("s_lshl_b32 s45, s39, 10")
    ids_mt(k)
    e("v_lshlrev_b32 v3, 4, v1"); e(f"v_lshlrev_b32 v9, {ENV('BST', '6')}, v1")
    e("s_lshl_b32 s22, s2, 2"); e("s_add_u32 s22, s22, s39"); e("s_mul_i32 s23, s22, 2400")
    if ENV('XLOC', '1'): e("s_lshl_b32 s22, s20, 5"); e("s_add_u32 s22, s22, s21"); e("s_lshl_b32 s22, s22, 2"); e("s_add_u32 s22, s22, s39")
    e("s_mul_i32 s22, s22, 2560")
    def kwait():
        e("s_waitcnt lgkmcnt(0)")
        k.stamp(2)
        k.srd(8, 60, S*D*2); k.srd(28, 62, D*3*D*2); k.srd(12, 6, WS_END)
    def burst():
        if ENV('BURST', '1'):
            e("s_mov_b32 exec_hi, 0xff" if ENV('BST', '6') == 6 else "s_mov_b64 exec, 0xfffff")
            e(f"buffer_load_dword v240, v9, s[8:11], s22 offen {os.environ.get('XNT', '')}"); e(f"buffer_load_dword v241, v9, s[28:31], s23 offen {os.environ.get('WNT', '')}")
            e("s_mov_b64 exec, -1")
    def codepf(tg):
        if ENV('CPF', '1'):
            e("s_getpc_b64 s[34:35]"); k.label(f"{nm}_pc{tg}")
            e(f"s_sub_u32 s34, s34, {nm}_pc{tg} - {kn}"); e("s_subb_u32 s35, s35, 0")
            e("v_lshlrev_b32 v242, 4, v0"); e("s_lshl_b32 s36, s21, 12"); e("v_add_u32 v242, s36, v242")
            e(f"v_and_b32 v242, 0xffffffc0, v242"); e(f"v_min_u32 v242, code_end - {kn} - 4, v242")
            e("global_load_dword v243, v242, s[34:35]")
    e("s_cmp_ge_u32 s17, 15"); e(f"s_cbranch_scc1 {nm}_ub")
    e("v_and_b32 v10, 31, v1"); e("v_lshrrev_b32 v4, 5, v1"); e("v_and_b32 v5, 15, v1"); e("v_bfe_u32 v7, v1, 4, 1")
    e("v_lshrrev_b32 v13, 2, v5"); e("v_and_b32 v6, 3, v1")
    e("v_lshl_add_u32 v14, v4, 3, v13"); e("v_lshlrev_b32 v14, 8, v14"); e("v_lshl_add_u32 v14, v7, 5, v14"); e("v_lshl_add_u32 v14, v6, 3, v14")
    e("v_add_u32 v14, 16384, v14")
    def a0():
        e("s_lshl_b32 s48, s17, 11"); e(f"s_add_u32 s48, s48, {C0}"); e(f"v_lshlrev_b32 v{PV_+1}, 8, v1"); e("s_mov_b64 s[56:57], 0xff")
    SF = ENV('SF', '10')
    e("s_cmp_ge_u32 s18, 4"); e(f"s_cbranch_scc1 {nm}_ld")
    kwait(); burst(); codepf("c")
    def tlb(tg):
        sh = ENV('TLBS', '18')
        e("s_load_dwordx4 s[84:87], s[0:1], 32"); e("s_load_dwordx2 s[88:89], s[0:1], 16")
        e(f"v_lshlrev_b32 v236, {sh}, v0" if sh < 21 else "v_lshlrev_b32 v236, 21, v1")
        e(f"v_min_u32 v236, {STAMPS-4}, v236")
        e("s_cmp_eq_u32 s18, 0" if sh == 21 else "s_cmp_lt_u32 s18, 4"); e(f"s_cbranch_scc0 {nm}_tl{tg}")
        e("buffer_load_dword v237, v236, s[12:15], 0 offen")
        e("v_and_b32 v236, 1, v1"); e("v_mul_u32_u24 v238, 819196, v236"); e("v_mul_u32_u24 v236, 2457596, v236"); e("s_mov_b64 exec, 3")
        e("s_waitcnt lgkmcnt(0)")
        e("global_load_dword v237, v236, s[84:85]"); e("global_load_dword v237, v238, s[86:87]"); e("global_load_dword v237, v238, s[88:89]")
        e("s_mov_b64 exec, -1")
        k.label(f"{nm}_tl{tg}")
        e("s_waitcnt lgkmcnt(0)")
    if ENV('TLB', '1') == 1: tlb('')
    ACC, BF, AR, RS = 64, 128, 160, 200
    BA, AA = 216, 224
    e("s_lshl_b32 s19, s16, 2"); e("s_add_u32 s19, s19, s18")
    for jf in range(4):
        e(f"v_xor_b32 v15, {jf}, v13"); e(f"v_lshl_add_u32 v{BA+jf}, v15, 6, v14"); e(f"v_add_u32 v{BA+4+jf}, 65536, v{BA+jf}")
    e("v_lshl_add_u32 v15, v2, 5, v10"); e("v_lshlrev_b32 v15, 7, v15"); e("v_bfe_u32 v12, v10, 1, 3"); e("v_xor_b32 v12, v12, v4")
    for q in range(4):
        e(f"v_xor_b32 v11, {2*q}, v12"); e(f"v_lshl_add_u32 v{AA+q}, v11, 4, v15"); e(f"v_add_u32 v{AA+4+q}, 65536, v{AA+q}")
    e("v_mul_u32_u24 v8, 20480, v7"); e("v_lshl_add_u32 v8, v4, 8, v8"); e("v_lshl_add_u32 v8, v5, 4, v8")
    e("s_mul_i32 s24, s19, 40960"); e(f"s_add_u32 s24, s24, {XI}")
    e("v_subrev_u32 v58, 1, v4"); e("v_not_b32 v59, v58")
    e("s_lshl_b32 s40, s2, 2"); e("s_add_u32 s40, s40, s39"); e("s_mul_i32 s40, s40, 8192"); e(f"s_add_u32 s40, s40, {QIMG}"); e("v_lshlrev_b32 v238, 7, v1")
    e("s_cmp_ge_u32 s17, 10"); e(f"s_cbranch_scc1 {nm}_qv")
    FTN = ENV('FTN', '2'); K1 = 20 - FTN
    def mainloop(vmode):
        tagm = "v" if vmode else "q"
        acc = lambda jf: vr(ACC+16*jf, 16)
        fl = k.capture(lambda: addr_v(k, 0) if vmode else addr_qk(k, 0, 28))
        ops = [(ks, f//4, f%4) for ks in range(K1) for f in range(8)] + [(ks, u, jf) for jf in range(4) for ks in range(K1, 20) for u in range(2)]
        kb = [-1]; na = [0]
        def rdA(ks):
            sl = slot(ks//2)
            for u in range(2): k.dsop(f"ds_read_b128 {vr(AR+8*(ks%4)+4*u,4)}, v{AA+4*(sl>>16)+2*(ks%2)+u} offset:{sl & 0xffff}", f"a{ks}")
        def rd(i):
            ks, u, jf = ops[i]; sl = slot(ks//2)
            while kb[0] < need(ks): e("s_barrier"); kb[0] += 1
            while na[0] <= ks: rdA(na[0]); na[0] += 1
            for t in range(2):
                off = sl + (32*(ks%2) + 16*u + 4*t)*256
                k.dsop(f"ds_read_b64_tr_b16 {vr(BF+4*(i%8)+2*t,2)}, v{BA+4*(sl>>16)+jf} offset:{off & 0xffff}", f"b{i}")
        def mm(i):
            ks, u, jf = ops[i]
            if i % 2 == 0: k.waitlg(f"b{i+1}")
            a = vr(AR+8*(ks%4)+4*u, 4); b = vr(BF+4*(i%8), 4); c = acc(jf) if (ks or u) else "0"
            if vmode: e(f"v_mfma_f32_32x32x16_bf16 {acc(jf)}, {a}, {b}, {c}")
            else:     e(f"v_mfma_f32_32x32x16_bf16 {acc(jf)}, {b}, {a}, {c}")
            if i + 8 < 160: rd(i + 8)
        def xst(ks, tg):
            e(f"s_cmp_eq_u32 s17, {ks % 15}"); e(f"s_cbranch_scc0 {nm}_x{tg}{ks}")
            e(f"s_add_u32 s32, s24, {1024*ks}")
            for u in range(2): e(f"buffer_store_dwordx4 {vr(AR+8*(ks%4)+4*u,4)}, v8, s[12:15], s32 offen offset:{512*u} {SC}")
            k.label(f"{nm}_x{tg}{ks}")
        for i in range(8):
            rd(i)
            if i == 0: k.stamp(3)
        for ks in range(K1):
            for f in range(8):
                mm(8*ks + f)
                if ks >= 4: k.fill(fl, 1)
            xst(ks, tagm)
            if ENV('TLB', '1') == 2 and ks == 2: tlb(tagm)
            if ks in (0, 1, 4, 9, 10, 14): k.stamp(7 + (0, 1, 4, 9, 10, 14).index(ks))
        assert not fl
        e(f"v_lshlrev_b32 v23, 2, v10"); e(f"v_add_u32 v23, {UT}, v23"); e("s_lshl_b32 s32, s18, 8"); e("v_add_u32 v22, s32, v23")
        if vmode: e("v_lshlrev_b32 v21, 4, v4"); e(f"s_add_u32 s32, s32, {UT}"); e("v_add_u32 v21, s32, v21")
        for n in range(2*FTN): mm(8*K1 + n)
        for ks in range(K1, 20): xst(ks, tagm)
        assert kb[0] == 9
        k.stamp(4)
        e("s_barrier")
        k.dsop("ds_read_b32 v48, v22 offset:1024", "u"); k.dsop("ds_read_b32 v49, v22 offset:1152", "u")
        for jf in range(4): k.dsop(f"ds_read_b32 v{28+2*jf}, v23 offset:{256*jf}", "u"); k.dsop(f"ds_read_b32 v{29+2*jf}, v23 offset:{256*jf+128}", "u")
        if vmode:
            for a_ in range(4): k.dsop(f"ds_read_b128 {vr(RS+4*a_,4)}, v21 offset:{2048+32*a_}", "u")
        else: k.dsop("ds_read_b32 v47, v22 offset:2048", "u")
        def corr(jf):
            if vmode: e(f"v_mfma_f32_32x32x8_bf16 {acc(jf)}, v[48:49], {vr(28+2*jf,2)}, {acc(jf)}")
            else:     e(f"v_mfma_f32_32x32x8_bf16 {acc(jf)}, {vr(28+2*jf,2)}, v[48:49], {acc(jf)}")
        for n in range(2): mm(8*K1 + 2*FTN + n)
        k.waitlg("u")
        e("v_and_b32 v48, v48, v58"); e("v_and_b32 v49, v49, v58")
        if not vmode: e("v_mul_f32 v47, s59, v47")
        corr(0)
        k.stamp(5)
        def tail(epi):
            pend = k.capture(lambda: epi(0))
            for jf in range(1, 4):
                for n in range(2 if jf == 1 else 0, 2*FTN):
                    mm(8*K1 + 2*FTN*jf + n)
                    if n >= (4 if jf == 1 else 2): k.fill(pend, ENV('TFILL', '4'))
                corr(jf)
                k.fill(pend, 1000)
                pend = k.capture(lambda: epi(jf))
            k.fill(pend, 1000)
        return tail
    tail = mainloop(False)
    dispatch5(k, lambda v: tail(lambda jf: epi_qk1(k, v, jf)))
    k.label(f"{nm}_qv"); k.lg = []
    tail = mainloop(True)
    tail(lambda jf: epi_v1(k, jf, RS))
    k.label(f"{nm}_fin5")
    k.stamp(6)
    e("s_barrier")
    signal(k, "sf", -1, 8, a0, 0, "s[12:15]")
    k.dump(13)
    e(f"s_branch {kn}_t0")
    k.label(f"{nm}_ld"); k.vm = []; k.lg = []
    e(f"s_setprio {ENV('LPRIO', '2')}")
    e("v_lshrrev_b32 v16, 4, v1"); e("v_and_b32 v17, 3, v2")
    e("v_lshl_add_u32 v18, v17, 2, v16"); e("v_mul_u32_u24 v20, 3840, v18")
    e("v_xor_b32 v18, v13, v16"); e("v_lshl_add_u32 v20, v18, 6, v20"); e("v_lshl_add_u32 v20, v6, 4, v20")
    e("v_lshrrev_b32 v18, 3, v1"); e("v_lshl_add_u32 v19, v17, 5, v18"); e("v_and_b32 v23, 7, v1")
    for i in range(4):
        e(f"v_add_u32 v42, {8*i}, v19"); e("v_bfe_u32 v43, v42, 1, 3"); e("v_xor_b32 v43, v43, v23")
        e("v_mul_u32_u24 v42, 1280, v42"); e(f"v_lshl_add_u32 v{48+i}, v43, 4, v42")
        if i: e(f"v_subrev_u32 v{48+i}, {1024*i}, v{48+i}")
    e("s_lshl_b32 s25, s17, 8"); e("s_mul_i32 s24, s16, 163840"); e("s_lshl_b32 s26, s39, 12")
    def ld1(st, n):
        if n < 4:
            e(f"s_add_u32 m0, s45, {slot(st)+16384+4096*n}"); e(f"s_add_u32 s32, s25, {(64*st+16*n)*3840}")
            k.vmop(f"buffer_load_dwordx4 v20, s[28:31], s32 offen {os.environ.get('WNT2', '')} lds", f"d{st}")
        else:
            e(f"s_add_u32 m0, s26, {slot(st)}"); e(f"s_add_u32 s33, s24, {128*st}")
            k.vmop(f"buffer_load_dwordx4 v{44+n}, s[8:11], s33 offen offset:{1024*(n-4)} {os.environ.get('XNT2', '')} lds", f"d{st}")
    ORD = [0, 4, 1, 5, 2, 6, 3, 7]
    def ld(st):
        for n in ORD: ld1(st, n)
    kwait(); ld(0)
    e("v_xor_b32 v15, v17, v13"); e("v_lshl_add_u32 v40, v15, 6, v14"); e("v_add_u32 v41, 65536, v40")
    e("v_and_b32 v42, 1, v16"); e("v_cmp_eq_u32 vcc, v42, v5"); e("v_mov_b32 v43, 0x3f803f80")
    for r in range(4): e(f"v_cndmask_b32 v{60+r}, 0, v43, vcc")
    k.srd(52, 4, 256)
    e("s_mul_i32 s27, s17, 163840"); e("s_add_u32 s27, s27, s45"); e(f"s_add_u32 s27, s27, {WA_I}")
    if ENV('LD1', '0'): ld(1)
    done = [0]
    def steps_of(kb):
        r = []
        while done[0] < 20 and need(done[0]) <= kb: r.append(done[0]); done[0] += 1
        return r
    def wa_store(q):
        e("s_lshl_b32 s32, s16, 13"); e("s_add_u32 s32, s32, s27")
        if q: e("s_add_u32 s32, s32, 131072")
        e("s_add_u32 s33, s32, 4096")
        for u in range(2): k.vmop(f"buffer_store_dwordx4 {vr(112+8*q+4*u,4)}, v3, s[12:15], s{32+u} offen {SC}")
    for kb in range(10):
        if kb == 5: k.stamp(5)
        k.waitvm(f"d{kb}")
        if kb == 5: k.stamp(6)
        e("s_barrier")
        if kb in (4, 5): k.stamp(2 if kb == 4 else 7)
        if kb == 0 and not ENV('LD1', '0'): ld(1)
        sl = slot(kb); todo = list(ORD) if kb + DEP < 10 else []
        nxt = lambda: ld1(kb + DEP, todo.pop(0)) if todo else None
        sts = steps_of(kb)
        for n_, ks in enumerate(sts):
            for u in range(2):
                for t in range(2):
                    e(f"ds_read_b64_tr_b16 {vr(136+8*n_+4*u+2*t,2)}, v{40+(sl>>16)} offset:{(sl + (32*(ks%2) + 16*u + 4*t)*256) & 0xffff}")
        nxt(); nxt()
        if kb == 4: k.stamp(3)
        e("s_waitcnt lgkmcnt(0)")
        mf = [(n_, ks, u) for n_, ks in enumerate(sts) for u in range(2)]
        for n_, ks, u in mf:
            e(f"v_mfma_f32_16x16x32_bf16 v[64:67], v[60:63], {vr(136+8*n_+4*u,4)}, {'v[64:67]' if ks or u else 0}")
            nxt()
        nxt(); nxt()
        if kb == 4: k.stamp(4)
        for n_, ks in enumerate(sts):
            e(f"s_cmp_eq_u32 s16, {ks % 16}"); e(f"s_cbranch_scc0 {nm}_w{ks}")
            for r in range(8): e(f"v_mov_b32 v{112+8*(ks//16)+r}, v{136+8*n_+r}")
            k.label(f"{nm}_w{ks}")
        assert not todo
        if kb == 8:
            e("v_and_b32 v24, 15, v1"); e("v_lshlrev_b32 v24, 2, v24"); e("s_mov_b32 s33, 0")
            k.label(f"{nm}_pl")
            e(f"buffer_load_dword v25, v24, s[52:55], 0 offen {SC}"); e("s_add_u32 s33, s33, 1"); e("s_waitcnt vmcnt(0)"); k.vm = []
            e("v_cmp_eq_u32 vcc, 0, v25"); e("s_cmp_ge_u32 s33, 0x20000"); e(f"s_cbranch_scc1 {nm}_px")
            e(f"s_cbranch_vccnz {nm}_pl")
            k.label(f"{nm}_px")
            e("v_lshlrev_b32 v24, 3, v10"); e("s_lshl_b32 s32, s16, 10"); e("s_lshl_b32 s33, s39, 8"); e("s_add_u32 s32, s32, s33"); e(f"s_add_u32 s32, s32, {STI}")
            k.vmop(f"buffer_load_dwordx2 v[44:45], v24, s[12:15], s32 offen {SC}", "rs")
        if kb == 9: k.waitvm("rs"); wa_store(0)
    k.waitvm("rs")
    stats_finish(k, 44, 45, 28, 29, 30)
    e("v_lshlrev_b32 v42, 2, v5"); e("ds_bpermute_b32 v68, v42, v64"); e("ds_bpermute_b32 v69, v42, v65"); e("v_cmp_eq_u32 vcc, 1, v7")
    split3(k, 28, 32, 36, 'm')
    e("s_waitcnt lgkmcnt(0)"); e("v_cndmask_b32 v64, v68, v69, vcc")
    split3(k, 64, 34, 36, 'u')
    e("v_lshlrev_b32 v24, 2, v10"); e("s_lshl_b32 s32, s39, 8"); e(f"s_add_u32 s32, s32, {UT}"); e("v_add_u32 v24, s32, v24")
    e("ds_write_b32 v24, v34"); e("ds_write_b32 v24, v35 offset:128"); e("ds_write_b32 v24, v32 offset:1024"); e("ds_write_b32 v24, v33 offset:1152"); e("ds_write_b32 v24, v29 offset:2048")
    e("s_waitcnt lgkmcnt(0)"); e("s_barrier")
    lwc_init(k); e("s_barrier")
    e("v_mov_b32 v44, v64")
    e("s_cmp_ge_u32 s16, 4"); e(f"s_cbranch_scc1 {nm}_le"); wa_store(1)
    e("s_cmp_eq_u32 s16, 0"); e(f"s_cbranch_scc0 {nm}_le")
    e("v_mov_b32 v45, 0"); e("v_mov_b32 v46, 0"); e("v_mov_b32 v47, 0"); e("v_lshlrev_b32 v24, 4, v10")
    e("s_lshl_b32 s32, s17, 11"); e("s_lshl_b32 s33, s39, 9"); e("s_add_u32 s32, s32, s33"); e(f"s_add_u32 s32, s32, {U_A}")
    e("s_mov_b32 exec_hi, 0"); e(f"buffer_store_dwordx4 v[44:47], v24, s[12:15], s32 offen {SC}")
    k.label(f"{nm}_le")
    e("s_mov_b64 exec, -1")
    signal(k, "sfl", -1, 8, a0, 0, "s[12:15]")
    k.dump(8)
    e(f"s_branch {kn}_t0")
    k.label(f"{nm}_ub"); k.vm = []; k.lg = []
    kwait()
    e("v_lshrrev_b32 v4, 3, v1"); e("v_lshl_add_u32 v4, v2, 4, v4"); e("v_mul_u32_u24 v5, 1280, v4"); e("v_and_b32 v6, 7, v1"); e("v_lshl_add_u32 v5, v6, 4, v5")
    e("s_mul_i32 s24, s16, 163840"); e("s_add_u32 s25, s24, 10240")
    for b_ in range(2):
        for i in range(10): k.vmop(f"buffer_load_dwordx4 {vr(24+40*b_+4*i,4)}, v5, s[8:11], s{24+b_} offen offset:{128*i} {os.environ.get('XNT2', '')}", f"x{b_}{i}")
    for j in range(8): e(f"v_mov_b32 v{8+j}, 0")
    e("v_mov_b32 v7, 0x3f803f80")
    e("v_lshlrev_b32 v16, 4, v0"); e("s_and_b32 s26, s16, 7"); e("s_lshl_b32 s26, s26, 13"); e(f"s_add_u32 s26, s26, {CNT}"); e("s_cmp_ge_u32 s16, 8"); e(f"s_cselect_b32 s27, {LS}, 0"); e("s_add_u32 s26, s26, s27")
    k.vmop(f"buffer_store_dwordx4 v[12:15], v16, s[12:15], s26 offen {SC}")
    for b_ in range(2):
        for i in range(10):
            k.waitvm(f"x{b_}{i}")
            for q in range(4):
                r = 24+40*b_+4*i+q
                e(f"v_dot2_f32_bf16 v{8+2*b_}, v{r}, v7, v{8+2*b_}"); e(f"v_dot2_f32_bf16 v{9+2*b_}, v{r}, v{r}, v{9+2*b_}")
    for dpp in ("quad_perm:[1,0,3,2]", "quad_perm:[2,3,0,1]", "row_half_mirror"):
        for q in range(4): e(f"v_add_f32_dpp v{8+q}, v{8+q}, v{8+q} {dpp} row_mask:0xf bank_mask:0xf")
    e("v_lshlrev_b32 v4, 3, v4"); e("s_lshl_b32 s26, s16, 10"); e(f"s_add_u32 s26, s26, {STI}")
    e("v_cmp_eq_u32 vcc, 0, v6"); k.srd(52, 4, 256); e("s_mov_b64 exec, vcc")
    e(f"buffer_store_dwordx2 v[8:9], v4, s[12:15], s26 offen {SC}"); e(f"buffer_store_dwordx2 v[10:11], v4, s[12:15], s26 offen offset:64 {SC}")
    e("s_mov_b64 exec, -1"); lwc_init(k)
    e("s_waitcnt vmcnt(0)"); e("s_barrier")
    e("s_cmp_ge_u32 s18, 4"); e(f"s_cbranch_scc1 {nm}_u2")
    codepf("u")
    e("s_cmp_eq_u32 s18, 0"); e(f"s_cbranch_scc0 {nm}_u2")
    e("v_mov_b32 v4, 0"); e("v_mov_b32 v5, 1"); e("s_lshl_b32 s26, s16, 2"); e("s_mov_b64 exec, 1")
    e(f"buffer_store_dword v5, v4, s[52:55], s26 offen {SC}")
    e("s_mov_b64 exec, 0xffff"); e("v_lshlrev_b32 v4, 2, v1"); e("s_mov_b32 s33, 0")
    k.label(f"{nm}_u1")
    e(f"buffer_load_dword v5, v4, s[52:55], 0 offen {SC}"); e("s_add_u32 s33, s33, 1"); e("s_waitcnt vmcnt(0)")
    e("v_cmp_eq_u32 vcc, 0, v5"); e("s_cmp_ge_u32 s33, 0x20000"); e(f"s_cbranch_scc1 {nm}_u2"); e(f"s_cbranch_vccnz {nm}_u1")
    k.label(f"{nm}_u2")
    e("s_mov_b64 exec, -1"); e("s_waitcnt vmcnt(0)")

def k_main():
    k = KB(NAME + "_kernel"); e = k.e; name = k.name
    ph_front(k)
    k.label(f"{name}_t0")
    e("s_load_dwordx2 s[46:47], s[0:1], 48"); e("s_mov_b32 s3, 0")
    k.srd(8, 6, 2*LS)
    e("s_waitcnt lgkmcnt(0)")
    k.srd(60, 46, S*D*2)
    k.label(f"{name}_top")
    k.vm = []; k.lg = []
    e("s_setprio 0"); k.stamp(0); k.rstamp(1)
    ph_attn(k)
    def a1():
        e("s_lshl_b32 s48, s17, 3"); e("s_and_b32 s49, s16, 1"); e("s_add_u32 s48, s48, s49"); e("s_lshl_b32 s48, s48, 8"); e(f"s_add_u32 s48, s48, {C1}")
        e(f"v_lshlrev_b32 v{PV_+1}, 9, v1"); e("s_mov_b64 s[56:57], 15")
    e("s_cmp_ge_u32 s18, 4"); e(f"s_cbranch_scc1 {name}_ld")
    signal(k, "s1", 0, 8, a1)
    def c1():
        e("s_lshl_b32 s48, s16, 9"); e(f"s_add_u32 s48, s48, {C1}")
        e(f"v_lshlrev_b32 v{PV_+1}, 8, v1"); e(f"v_mov_b32 v{PV_+2}, 16"); e("s_mov_b64 s[56:57], 3")
    proj_c(k, "p2", OT, XI, XM, STM, False, c1, 0, 6)
    def a2():
        e("s_lshr_b32 s48, s16, 1"); e("s_lshl_b32 s48, s48, 9"); e(f"s_add_u32 s48, s48, {C2}")
        e(f"v_mul_u32_u24 v{PV_+1}, 768, v1"); e("s_bitcmp1_b32 s16, 0"); e("s_cselect_b64 s[56:57], 3, 1")
    signal(k, "s2", 1, 4, a2)
    qkvb_c(k, XM, STM, 9)
    def a3(): one(k, 0); e("s_lshl_b32 s48, s16, 8"); e(f"s_add_u32 s48, s48, {C3}")
    signal(k, "s3", 0, 4, a3)
    def c3(): one(k, 16); e("s_lshr_b32 s48, s16, 1"); e("s_lshl_b32 s48, s48, 8"); e(f"s_add_u32 s48, s48, {C3}")
    proj_c(k, "p4", OBT, XM, XI, STI, True, c3, 0, 12)
    def a4(): one(k, 0); e("s_lshr_b32 s48, s16, 1"); e("s_lshl_b32 s48, s48, 8"); e(f"s_add_u32 s48, s48, {C4}")
    signal(k, "s4", 1, 4, a4)
    k.dump(15, "1")
    ids_mt(k)
    e("s_cmp_ge_u32 s17, 15"); e(f"s_cbranch_scc1 {name}_idle")
    qkva_c(k, XI, STI, 0, C4, [7], 3)
    k.stamp(6)
    e("s_barrier")
    def a5(): e("s_lshl_b32 s48, s17, 11"); e(f"s_add_u32 s48, s48, {LS + C0}"); e(f"v_lshlrev_b32 v{PV_+1}, 8, v1"); e("s_mov_b64 s[56:57], 0xff")
    signal(k, "s5", -1, 4, a5)
    k.dump(7, "3")
    k.label(f"{name}_t1")
    e("s_mov_b32 s3, 1"); e(f"s_add_u32 s8, s8, {LS}"); e("s_addc_u32 s9, s9, 0"); e(f"s_mov_b32 s10, {LS}")
    e(f"s_branch {name}_top")
    k.label(f"{name}_idle")
    for _ in range(4): e("s_barrier")
    e(f"s_branch {name}_t1")
    k.label(f"{name}_ld"); k.vm = []; k.lg = []
    if os.environ.get("FOC") == "at": e("s_add_u32 s84, s3, 4"); k.dump(8, "s84")
    e(f"s_setprio {ENV('LPRIO', '2')}")
    w = proj_l(k, WOA_I, WB_I, OT, a1, EARLY)
    qkvb_l(k, XM, STM, w)
    w = proj_l(k, WOB_I, WA_I, OBT, None, 0, True)
    ids_mt(k)
    atouch_pre(k, XI)
    e("s_barrier")
    w.one(39); e("s_waitcnt vmcnt(0)"); e("s_barrier")
    e("s_barrier"); lwc_init(k); e("s_barrier")
    e(f"s_branch {name}_t1")
    k.label(f"{name}_end"); e("s_endpgm")
    k.tail()
    return k.text(256 if STAMP else 244, 256 if STAMP else 244)

DOC = """
;   2 x [ full attention -> out projection + residual -> QKV + dilated local attention -> out projection + residual -> next QKV ]
; Hand-offs between workgroups: write-through (sc1) stores, s_waitcnt vmcnt(0), one agent-scope atomic per workgroup on a
; counter in d_ws (zeroed in this launch, published through d_debug), bounded polling, sc1 loads.  Placement only affects speed.
; Full attention: exp2(s) with 0 standing in for the row max; the row sum and the output are range-checked at run time and
; a wave whose check fails recomputes its rows with the true row max (label *_slow).  Local attention subtracts the true max.
"""
def build():
    hdr = open("cdna_kernels/" + NAME + ".s.ref").read().split("; Override launch")[0]
    out = hdr + "; @launch grid=(256,1,1) block=(512,1,1) lds=163840\n"
    out += '.amdgcn_target "amdgcn-amd-amdhsa--gfx950"\n'
    out += DOC
    out += k_main()
    out += ".text\ncode_end:\n"
    return out

if __name__ == "__main__":
    dst = sys.argv[1] if len(sys.argv) > 1 else "cdna_kernels/" + NAME + ".s"
    open(dst, "w").write(build())
    print("wrote", dst)
```
